```python
import torch

def _softmax(x, axis=-1):
    return torch.softmax(x, dim=axis)
def _gelu(x):
    return torch.nn.functional.gelu(x, approximate="tanh")
def _silu(x):
    return torch.nn.functional.silu(x)
def _sigmoid(x):
    return torch.sigmoid(x)
def _layernorm(x, axis=-1, eps=1e-5):
    m = x.mean(dim=axis, keepdim=True)
    v = x.var(dim=axis, keepdim=True, unbiased=False)
    return (x - m) / torch.sqrt(v + eps)
def _scatter_add(tgt, idx, src, axis=0):
    return tgt.clone().index_add_(axis, idx, src)
def _segment_sum(src, seg, n):
    out = torch.zeros((n,) + src.shape[1:], dtype=src.dtype)
    return out.index_add_(0, seg, src)
def _pad(x, pw):
    flat = tuple(v for pair in reversed(pw) for v in pair)
    return torch.nn.functional.pad(x, flat)

kernel_name = 'interleave_layers__sliding_local_dilated__mixer_channel_mlp__prompt'

def setup_inputs():

    _w = (lambda a: (lambda t: t.to(torch.bfloat16) if t.is_floating_point() else t)(torch.as_tensor(a)))
    def _A_setup():
        B, S, D = 1, 2048, 448
        return {
            "x": _w((lambda *s: torch.randn(*s, dtype=torch.bfloat16) * 0.05)(B, S, D)),
            "wqkv": _w((lambda *s: torch.randn(*s, dtype=torch.bfloat16) * 0.05)(D, 3 * D)),
            "wo": _w((lambda *s: torch.randn(*s, dtype=torch.bfloat16) * 0.05)(D, D)),
        }
    _A_in = _A_setup()

    def _B_setup():
        B, S, D, F = 1, 2048, 448, 1792
        return {
            "x": _w((lambda *s: torch.randn(*s, dtype=torch.bfloat16) * 0.05)(B, S, D)),
            "w1": _w((lambda *s: torch.randn(*s, dtype=torch.bfloat16) * 1.6)(D, F) * (D ** -0.5)),
            "b1": _w((lambda *s: torch.randn(*s, dtype=torch.bfloat16) * 0.8)(F)),
            "w2": _w((lambda *s: torch.randn(*s, dtype=torch.bfloat16) * 0.2)(F, D) * (F ** -0.5)),
            "b2": _w((lambda *s: torch.randn(*s, dtype=torch.bfloat16) * 0.2)(D)),
        }
    _B_in = _B_setup()

    return {
        "A_x": _A_in["x"],
        "A_wqkv": _A_in["wqkv"],
        "A_wo": _A_in["wo"],
        "B_x": _B_in["x"],
        "B_w1": _B_in["w1"],
        "B_b1": _B_in["b1"],
        "B_w2": _B_in["w2"],
        "B_b2": _B_in["b2"],
    }

def reference(A_x, A_wqkv, A_wo, B_x, B_w1, B_b1, B_w2, B_b2):
    def _A_ref(x, wqkv, wo):
        B, S, D = x.shape
        H = 16; Dh = D // H
        W, dil = 8, 2
        qkv = (lambda x, *d: x.permute(*d))((x @ wqkv).reshape(B, S, 3, H, Dh), 2, 0, 3, 1, 4)
        q, k, v = qkv[0], qkv[1], qkv[2]
        scale = Dh ** -0.5
        pos = torch.arange(S)
        off = torch.arange(W) * dil
        idx = pos[:, None] - off[None, :]
        mask = idx >= 0
        idx_c = torch.where(mask, idx, 0).reshape(-1)
        kg = k[:, :, idx_c, :].reshape(B, H, S, W, Dh)
        vg = v[:, :, idx_c, :].reshape(B, H, S, W, Dh)
        logits = torch.einsum("bhsd,bhswd->bhsw", q, kg) * scale
        logits = torch.where(mask[None, None, :, :], logits, -1e9)
        attn = _softmax(logits, axis=-1)
        o = torch.einsum("bhsw,bhswd->bhsd", attn, vg)
        return (lambda x, *d: x.permute(*d))(o, 0, 2, 1, 3).reshape(B, S, D) @ wo

    def _B_ref(x, w1, b1, w2, b2):
        y = _layernorm(x, axis=-1)
        h = _gelu(torch.einsum("bsd,df->bsf", y, w1) + b1)
        return torch.einsum("bsf,fd->bsd", h, w2) + b2

    x = A_x
    x = x + _A_ref(_layernorm(x, axis=-1), A_wqkv, A_wo)
    x = x + _B_ref(_layernorm(x, axis=-1), B_w1, B_b1, B_w2, B_b2)
    x = x + _A_ref(_layernorm(x, axis=-1), A_wqkv, A_wo)
    x = x + _B_ref(_layernorm(x, axis=-1), B_w1, B_b1, B_w2, B_b2)
    return x
```

```python
import re

REG_RE = re.compile(r'(?<![\w.])([vas])(?:\[(\d+):(\d+)\]|(\d+))(?![\w])')

TRANS = ('v_exp_f32', 'v_log_f32', 'v_rcp_f32', 'v_rsq_f32', 'v_sqrt_f32', 'v_sin_f32', 'v_cos_f32')


def regs_of(tok):
    out = set()
    for m in REG_RE.finditer(tok):
        cls = m.group(1)
        if m.group(2) is not None:
            for i in range(int(m.group(2)), int(m.group(3)) + 1):
                out.add((cls, i))
        else:
            out.add((cls, int(m.group(4))))
    if re.search(r'(?<![\w])vcc(?![\w])', tok):
        out.add(('s', 'vcc'))
    if re.search(r'(?<![\w])exec(?![\w])', tok):
        out.add(('s', 'exec'))
    if re.search(r'(?<![\w])m0(?![\w])', tok):
        out.add(('s', 'm0'))
    return out


def split_ops(s):
    ops, depth, cur = [], 0, ''
    for ch in s:
        if ch == '[':
            depth += 1
        if ch == ']':
            depth -= 1
        if ch == ',' and depth == 0:
            ops.append(cur.strip())
            cur = ''
        else:
            cur += ch
    if cur.strip():
        ops.append(cur.strip())
    return ops


class Ins:
    __slots__ = ('text', 'mn', 'kind', 'w', 'r', 'states', 'srcC', 'dpp', 'wide_store', 'is_label')

    def __init__(self, text):
        self.text = text
        self.is_label = text.endswith(':')
        self.w, self.r = set(), set()
        self.kind = 'other'
        self.states = 1
        self.srcC = set()
        self.dpp = False
        self.wide_store = False
        if self.is_label or text.startswith(';') or text.startswith('.'):
            self.mn = ''
            self.states = 0
            self.kind = 'label' if self.is_label else 'meta'
            return
        parts = text.split(None, 1)
        mn = parts[0]
        self.mn = mn
        rest = parts[1] if len(parts) > 1 else ''
        rest = rest.split(';')[0]
        ops = split_ops(rest)
        if mn == 's_nop':
            self.kind = 'nop'
            self.states = int(ops[0]) + 1
            return
        if mn.startswith('v_mfma'):
            self.kind = 'mfma'
            self.w = regs_of(ops[0])
            self.r = regs_of(ops[1]) | regs_of(ops[2]) | regs_of(ops[3])
            self.srcC = regs_of(ops[3])
            return
        if mn.startswith('v_'):
            self.kind = 'trans' if mn.replace('_e32', '').replace('_e64', '') in TRANS else 'valu'
            self.dpp = '_dpp' in mn or 'row_' in rest or 'quad_perm' in rest
            if mn.startswith('v_cmp'):
                self.w = regs_of(ops[0])
                for o in ops[1:]:
                    self.r |= regs_of(o)
                if mn.startswith('v_cmpx'):
                    self.w.add(('s', 'exec'))
            elif mn.startswith('v_permlane'):
                self.kind = 'permlane'
                self.w = regs_of(ops[0]) | regs_of(ops[1])
                self.r = set(self.w)
            elif mn.startswith('v_readlane') or mn.startswith('v_readfirstlane'):
                self.kind = 'readlane'
                self.w = regs_of(ops[0])
                for o in ops[1:]:
                    self.r |= regs_of(o)
            elif mn.startswith(('v_add_co', 'v_sub_co', 'v_addc_co', 'v_subb_co')):
                self.w = regs_of(ops[0]) | regs_of(ops[1])
                for o in ops[2:]:
                    self.r |= regs_of(o)
            else:
                self.w = regs_of(ops[0])
                for o in ops[1:]:
                    self.r |= regs_of(o)
                if mn.startswith(('v_fmac', 'v_dot2c', 'v_pk_fmac')):
                    self.r |= self.w
                if mn.startswith('v_cndmask') and len(ops) == 3:
                    self.r.add(('s', 'vcc'))
                if self.dpp:
                    self.r |= self.w
            return
        if mn.startswith('ds_'):
            self.kind = 'ds'
            if mn.startswith(('ds_read', 'ds_bpermute', 'ds_permute', 'ds_swizzle')):
                self.w = regs_of(ops[0])
                for o in ops[1:]:
                    self.r |= regs_of(o)
            else:
                for o in ops:
                    self.r |= regs_of(o)
            return
        if mn.startswith(('buffer_', 'global_')):
            self.kind = 'vmem'
            is_lds = bool(re.search(r'(?<![\w])lds(?![\w])', rest))
            if 'load' in mn and not is_lds:
                self.w = regs_of(ops[0])
                for o in ops[1:]:
                    self.r |= regs_of(o)
            else:
                for o in ops:
                    self.r |= regs_of(o)
                if is_lds:
                    self.r.add(('s', 'm0'))
            if 'store' in mn and ('x3' in mn or 'x4' in mn):
                self.wide_store = True
                self.srcC = regs_of(ops[0]) if mn.startswith('buffer_') else regs_of(ops[1])
            return
        if mn.startswith('s_'):
            self.kind = 'salu'
            if mn.startswith(('s_cmp', 's_cbranch', 's_branch', 's_waitcnt', 's_barrier', 's_endpgm',
                              's_sleep', 's_setprio', 's_bitcmp')):
                for o in ops:
                    self.r |= regs_of(o)
                if mn.startswith('s_cbranch_vcc'):
                    self.r.add(('s', 'vcc'))
            else:
                self.w = regs_of(ops[0]) if ops else set()
                for o in ops[1:]:
                    self.r |= regs_of(o)
                if 'saveexec' in mn:
                    self.w.add(('s', 'exec'))
                    self.r.add(('s', 'exec'))
            return
        raise ValueError('unknown instruction: ' + text)


def vgprs(s):
    return {x for x in s if x[0] in 'va'}


def sgprs(s):
    return {x for x in s if x[0] == 's'}


def required_gap(p, c):
    need = 0
    pv, cv_r = vgprs(p.w), vgprs(c.r)
    valu_like = ('valu', 'trans', 'permlane', 'readlane')
    if p.kind in valu_like:
        if c.kind == 'mfma' and pv & cv_r:
            need = max(need, 2)
        if c.kind == 'permlane' and pv & cv_r:
            need = max(need, 2)
        if c.dpp and pv & cv_r:
            need = max(need, 2)
        if c.kind == 'readlane' and pv & cv_r:
            need = max(need, 1)
        if p.kind == 'trans' and c.kind in valu_like + ('mfma',) and pv & cv_r:
            need = max(need, 1)
        ps = sgprs(p.w)
        if ps:
            if c.kind in valu_like and ps & sgprs(c.r):
                need = max(need, 4 if c.kind == 'readlane' else 2)
            if c.kind == 'vmem' and ps & sgprs(c.r):
                need = max(need, 5)
            if c.kind == 'salu' and ps & sgprs(c.r):
                need = max(need, 4)
            if ('s', 'exec') in ps:
                if c.kind == 'mfma' or c.kind == 'permlane' or c.kind == 'readlane':
                    need = max(need, 4)
                if c.dpp:
                    need = max(need, 5)
    if p.mn.startswith('v_dot2') and c.mn != p.mn and c.kind in valu_like + ('mfma', 'ds', 'vmem') and pv & (cv_r | vgprs(c.w)):
        need = max(need, 3)
    if p.kind == 'mfma':
        if c.kind == 'mfma':
            if pv & (vgprs(c.r) - c.srcC):
                need = max(need, 8)
            ov = pv & c.srcC
            if ov and c.srcC != p.w:
                need = max(need, 6)
            if pv & vgprs(c.w) and c.w != p.w:
                need = max(need, 6)
        elif c.kind in valu_like:
            if pv & (cv_r | vgprs(c.w)):
                need = max(need, 8)
            if p.srcC & vgprs(c.w):
                need = max(need, 3)
        elif c.kind in ('ds', 'vmem'):
            if pv & (cv_r | vgprs(c.w)):
                need = max(need, 8)
    if p.wide_store and c.kind in valu_like + ('mfma',) and p.srcC & vgprs(c.w):
        need = max(need, 2)
    if p.kind == 'salu' and ('s', 'm0') in p.w and c.kind == 'vmem' and ('s', 'm0') in c.r:
        need = max(need, 1)
    if p.kind == 'salu' and ('s', 'exec') in p.w and (c.dpp or c.kind in ('permlane',)):
        need = max(need, 1)
    return need


class Asm:
    def __init__(self):
        self.ins = []
        self.vm_issued = 0
        self.lg_issued = 0

    def __call__(self, text):
        for line in text.strip().split('\n'):
            line = line.strip()
            if not line:
                continue
            i = Ins(line)
            self.ins.append(i)
            if i.kind == 'vmem':
                self.vm_issued += 1
            if i.kind == 'ds':
                self.lg_issued += 1
        return self

    def label(self, name):
        self(name + ':')

    def comment(self, text):
        self.ins.append(Ins('; ' + text))

    def vm_mark(self):
        return self.vm_issued

    def lg_mark(self):
        return self.lg_issued

    def wait_vm(self, mark):
        n = self.vm_issued - mark
        assert 0 <= n
        self('s_waitcnt vmcnt(%d)' % min(n, 63))

    def wait_lg(self, mark):
        n = self.lg_issued - mark
        assert 0 <= n
        self('s_waitcnt lgkmcnt(%d)' % min(n, 15))

    def finalize(self):
        out = []
        WIN = 12
        for c in self.ins:
            if c.states == 0:
                out.append(c)
                continue
            need = 0
            dist = 0
            for p in reversed(out):
                if p.states == 0:
                    continue
                if dist >= WIN:
                    break
                g = required_gap(p, c)
                if g > dist:
                    need = max(need, g - dist)
                dist += p.states
            while need > 0:
                k = min(need, 16)
                out.append(Ins('s_nop %d' % (k - 1)))
                need -= k
            out.append(c)
        self.ins = out

    def text(self):
        lines = []
        for i in self.ins:
            lines.append(i.text if i.is_label else '    ' + i.text)
        return '\n'.join(lines) + '\n'


def interleave(a, main, fill, per=2, start=0):
    fi = 0
    n = 0
    for m in main:
        a(m)
        if m.startswith('v_mfma'):
            n += 1
            if n > start:
                for _ in range(per):
                    if fi < len(fill):
                        a(fill[fi])
                        fi += 1
    while fi < len(fill):
        a(fill[fi])
        fi += 1
```

```python
KB = 1024
off = 0


def take(n, align=4096):
    global off
    off = (off + align - 1) // align * align
    r = off
    off += n
    return r


EPOCH = take(4096)
FQ = take(16 * 256)
FP = take(8 * 128)
FX = [take(128 * 128), take(128 * 128)]
FA = [take(128 * 64), take(128 * 64)]
FB = [take(128 * 64), take(128 * 64)]
FC = [take(128 * 256), take(128 * 256)]
FSA = take(128 * 128)
FSB = [take(128 * 64), take(128 * 64)]
FH = take(17 * 128)
FSH = take(17 * 128)
FW1 = take(392 * 4)
FXC = take(16 * 64)
WA = take(16 * 84 * KB)
WB = take(28 * 16 * KB)
WC = take(112 * 14 * KB)
CSC = take(112 * 64)
WD = take(28 * 56 * KB)
XA = [take(128 * 14 * KB), take(128 * 14 * KB)]
SA = [take(128 * 14 * 128), take(128 * 14 * 128)]
O = [take(128 * 16 * KB), take(128 * 16 * KB)]
XB = [take(128 * 14 * KB), take(128 * 14 * KB)]
SB = [take(128 * 14 * 128), take(128 * 14 * 128)]
H = [take(128 * 56 * KB), take(128 * 56 * KB)]
WS_USED = (off + 4095) // 4096 * 4096

L_WA = 0
L_R2 = 84 * KB
L_T = L_R2 + 64 * KB
L_CSA = L_T
L_STC = L_T + 512
L_STA = L_T + 1536
L_CSR = L_T + 1536 + 4 * 384
LDS_BYTES = 160 * KB
assert L_CSR + 256 <= LDS_BYTES

if __name__ == '__main__':
    for k, v in list(globals().items()):
        if k.isupper():
            print(k, v)
```

```python
import sys
from asmlib import Asm, interleave
import layout as L

NAME = 'interleave_layers__sliding_local_dilated__mixer_channel_mlp__prompt'
DIAG = '--diag' in sys.argv
SPIN_LIMIT = 200000
INV = 0x80000000

a = Asm()

S_WS, S_TMP, S_B1, S_OUT = 4, 8, 12, 16
P_X, P_WQKV, P_WO, P_BX, P_W1, P_B1, P_W2, P_B2, P_OUT, P_DBG, P_WSP = 20, 22, 24, 26, 28, 30, 32, 34, 36, 38, 40
sS, sC, sG, sJ, sW, sT, sPAIR, sSPIN = 42, 43, 44, 45, 46, 47, 48, 49
sM1 = 50
sM2 = 58
sM0 = 66
sO = 74
sA, sB, sCc, sD = 90, 91, 92, 93
sMK = 94
sTS = 96
sGT = 98
sERR = 99
sSTI = 100


def srd(n):
    return 's[%d:%d]' % (n, n + 3)


def vr(n, k=4):
    return 'v[%d:%d]' % (n, n + k - 1)


def ar(n, k=4):
    return 'a[%d:%d]' % (n, n + k - 1)


def sp(n):
    return 's[%d:%d]' % (n, n + 1)


V_LANE, V_L16, V_T, V_STAMP = 0, 1, 254, 255
stamp_no = [0]


def stamp():
    if not DIAG:
        return
    a('s_memtime %s' % sp(sTS))
    a('s_waitcnt lgkmcnt(0)')
    a('s_lshl_b64 exec, 1, s%d' % sSTI)
    a('v_mov_b32 v%d, s%d' % (V_STAMP, sTS))
    a('s_mov_b64 exec, -1')
    a('s_add_u32 s%d, s%d, 1' % (sSTI, sSTI))


lab_no = [0]


def newlab(p):
    lab_no[0] += 1
    return '%s_%d' % (p, lab_no[0])


def build_srd(dst, ptr, nbytes):
    a('s_mov_b32 s%d, s%d' % (dst, ptr))
    a('s_and_b32 s%d, s%d, 0xffff' % (dst + 1, ptr + 1))
    a('s_mov_b32 s%d, 0x%x' % (dst + 2, nbytes))
    a('s_mov_b32 s%d, 0x20000' % (dst + 3))


def poll(voff):
    lab, done = newlab('L_poll'), newlab('L_polldone')
    a('s_mov_b64 exec, %s' % sp(sMK))
    a('s_mov_b32 s%d, 0' % sSPIN)
    a.label(lab)
    a('buffer_load_dword v253, v%d, %s, 0 offen sc1' % (voff, srd(S_WS)))
    a('s_waitcnt vmcnt(0)')
    a('v_cmp_ne_u32 vcc, s%d, v253' % sT)
    a('s_nop 4')
    a('s_cbranch_vccz %s' % done)
    a('s_add_u32 s%d, s%d, 1' % (sSPIN, sSPIN))
    a('s_cmp_lt_u32 s%d, %d' % (sSPIN, SPIN_LIMIT))
    a('s_cbranch_scc1 %s' % lab)
    a('s_add_u32 s%d, s%d, 1' % (sERR, sERR))
    a.label(done)
    a('s_mov_b64 exec, -1')


def set_flags(voff, nlanes):
    a('s_waitcnt vmcnt(0)')
    a('s_mov_b64 exec, %d' % ((1 << nlanes) - 1))
    a('buffer_store_dword v%d, v%d, %s, 0 offen sc1' % (V_T, voff, srd(S_WS)))
    a('s_mov_b64 exec, -1')


def xg_reduce(x, t, op='v_add_f32'):
    return ['v_mov_b32 v%d, v%d' % (t, x),
            'v_permlane32_swap_b32 v%d, v%d' % (x, t),
            '%s v%d, v%d, v%d' % (op, x, x, t),
            'v_mov_b32 v%d, v%d' % (t, x),
            'v_permlane16_swap_b32 v%d, v%d' % (x, t),
            '%s v%d, v%d, v%d' % (op, x, x, t)]


def gather8(dst, srdn, vlo, vhi, sbase, stride):
    for e in range(8):
        off = (16 * (e >> 2) + (e & 3)) * stride
        if off == 0:
            so = sbase
        else:
            so = sD
            a('s_add_u32 s%d, s%d, %d' % (sD, sbase, off))
        a('buffer_load_ushort v%d, v%d, %s, s%d offen' % (dst + e, vlo if e < 4 else vhi, srd(srdn), so))


def pack8(dst, src):
    for p in range(4):
        a('v_lshl_or_b32 v%d, v%d, 16, v%d' % (dst + p, src + 2 * p + 1, src + 2 * p))


EPS = 1e-5
import struct


def f2h(x):
    return '0x%08x' % struct.unpack('<I', struct.pack('<f', x))[0]


def stats_finish(s1, s2, t, double_ln):
    o = ['v_mul_f32 v%d, %s, v%d' % (s1, f2h(1.0 / 448), s1),
         'v_mul_f32 v%d, %s, v%d' % (s2, f2h(1.0 / 448), s2),
         'v_fma_f32 v%d, -v%d, v%d, v%d' % (s2, s1, s1, s2),
         'v_max_f32 v%d, 0, v%d' % (s2, s2),
         'v_add_f32 v%d, %s, v%d' % (t, f2h(EPS), s2),
         'v_rsq_f32 v%d, v%d' % (t, t)]
    if not double_ln:
        o += ['v_mov_b32 v%d, v%d' % (s2, t)]
    else:
        o += ['v_mul_f32 v%d, v%d, v%d' % (s2, s2, t),
              'v_fmaak_f32 v%d, v%d, v%d, %s' % (s2, s2, t, f2h(EPS)),
              'v_rsq_f32 v%d, v%d' % (s2, s2),
              'v_mul_f32 v%d, v%d, v%d' % (s2, s2, t)]
    return o


a('s_cmp_ge_u32 s2, 256')
a('s_cbranch_scc1 L_end')
a('s_load_dwordx16 s[20:35], s[0:1], 0')
a('s_load_dwordx4 s[36:39], s[0:1], 64')
a('s_load_dwordx2 s[40:41], s[0:1], 80')
a('s_and_b32 s%d, s2, 7' % sA)
a('s_lshr_b32 s%d, s2, 3' % sB)
a('s_lshr_b32 s%d, s%d, 4' % (sCc, sB))
a('s_lshl_b32 s%d, s%d, 1' % (sS, sA))
a('s_add_u32 s%d, s%d, s%d' % (sS, sS, sCc))
a('s_and_b32 s%d, s%d, 15' % (sC, sB))
a('s_lshr_b32 s%d, s%d, 3' % (sA, sC))
a('s_lshl_b32 s%d, s%d, 1' % (sG, sS))
a('s_add_u32 s%d, s%d, s%d' % (sG, sG, sA))
a('s_and_b32 s%d, s%d, 7' % (sJ, sC))
a('s_mov_b32 s%d, 0' % sERR)
a('v_lshrrev_b32 v2, 6, v0')
a('v_and_b32 v0, 63, v0')
a('v_readfirstlane_b32 s%d, v2' % sW)
a('v_lshlrev_b32 v1, 4, v0')
if DIAG:
    a('v_mov_b32 v%d, 0' % V_STAMP)
    a('s_mov_b32 s%d, 0' % sSTI)
stamp()
V_TOK, V_G = 250, 251
a('v_and_b32 v%d, 15, v0' % V_TOK)
a('v_lshrrev_b32 v%d, 4, v0' % V_G)
a('s_waitcnt lgkmcnt(0)')
build_srd(S_WS, P_WSP, L.WS_USED)
build_srd(S_B1, P_B1, 1792 * 2)
build_srd(S_OUT, P_OUT, 2048 * 896)
a('buffer_load_dword v%d, off, %s, 0 sc1' % (V_T, srd(S_WS)))

build_srd(S_TMP, P_X, 2048 * 896)
a('v_mul_u32_u24 v2, 896, v%d' % V_TOK)
a('v_lshl_add_u32 v2, v%d, 3, v2' % V_G)
a('s_lshr_b32 s%d, s%d, 1' % (sA, sC))
a('s_lshl_b32 s%d, s%d, 3' % (sB, sS))
a('s_add_u32 s%d, s%d, s%d' % (sO + 0, sA, sB))
a('s_and_b32 s%d, s%d, 1' % (sA, sC))
a('s_mul_i32 s%d, s%d, 7' % (sA, sA))
a('s_add_u32 s%d, s%d, s%d' % (sO + 1, sA, sW))
a('s_cmp_lt_u32 s%d, 3' % sW)
a('s_cselect_b32 s%d, 0, 0x%x' % (sO + 2, INV))
a('s_mul_i32 s%d, s%d, 14336' % (sA, sO + 0))
a('s_lshl_b32 s%d, s%d, 6' % (sB, sO + 1))
a('s_add_u32 s%d, s%d, s%d' % (sA, sA, sB))
a('v_or_b32 v3, s%d, v2' % (sO + 2))
a('buffer_load_dwordx2 v[10:11], v2, %s, s%d offen' % (srd(S_TMP), sA))
a('buffer_load_dwordx2 v[12:13], v2, %s, s%d offen offset:32' % (srd(S_TMP), sA))
a('buffer_load_dwordx2 v[14:15], v3, %s, s%d offen offset:256' % (srd(S_TMP), sA))
a('buffer_load_dwordx2 v[16:17], v3, %s, s%d offen offset:288' % (srd(S_TMP), sA))

build_srd(S_TMP, P_WQKV, 448 * 2688)
a('v_mul_u32_u24 v4, %d, v%d' % (4 * 2688, V_G))
a('v_lshl_add_u32 v4, v%d, 1, v4' % V_TOK)
a('v_mov_b32 v6, 0x%x' % INV)
a('v_cmp_lt_u32 vcc, 11, v%d' % V_TOK)
a('v_cndmask_b32 v5, 0, v6, vcc')
QK_RAW = 20
for k in range(2):
    f, part, u = sO + 3 + 4 * k, sO + 4 + 4 * k, sO + 5 + 4 * k
    inv = sO + 6 + 4 * k
    a('s_add_u32 s%d, s%d, %d' % (sA, sW, 4 * k))
    a('s_lshl_b32 s%d, s%d, 4' % (sA, sA))
    a('s_add_u32 s%d, s%d, s%d' % (f, sA, sS))
    a('s_cmp_lt_u32 s%d, 84' % f)
    a('s_cselect_b32 s%d, 0, 0x%x' % (inv, INV))
    a('s_min_u32 s%d, s%d, 83' % (f, f))
    a('s_mul_i32 s%d, s%d, 4682' % (part, f))
    a('s_lshr_b32 s%d, s%d, 16' % (part, part))
    a('s_mul_i32 s%d, s%d, 14' % (sA, part))
    a('s_sub_u32 s%d, s%d, s%d' % (u, f, sA))
    a('s_and_b32 s%d, s%d, 1' % (sA, part))
    a('s_sub_u32 s%d, 0, s%d' % (sB, sA))
    a('v_and_b32 v6, s%d, v5' % sB)
    a('v_or_b32 v6, v6, v4')
    a('v_or_b32 v6, s%d, v6' % inv)
    a('s_lshl_b32 s%d, s%d, 4' % (sA, sA))
    a('s_lshr_b32 s%d, s%d, 1' % (sB, part))
    a('s_mul_i32 s%d, s%d, 448' % (sB, sB))
    a('s_add_u32 s%d, s%d, s%d' % (sA, sA, sB))
    a('s_mul_i32 s%d, s%d, 28' % (sB, sC))
    a('s_add_u32 s%d, s%d, s%d' % (sA, sA, sB))
    a('s_lshl_b32 s%d, s%d, 1' % (sA, sA))
    a('s_mul_i32 s%d, s%d, %d' % (sB, u, 32 * 2688))
    a('s_add_u32 s%d, s%d, s%d' % (sA, sA, sB))
    gather8(QK_RAW + 8 * k, S_TMP, 6, 6, sA, 2688)

BD_RAW, C_RAW = 40, 70
a('s_cmp_eq_u32 s%d, 7' % sJ)
a('s_cbranch_scc1 L_p2_none')
a('v_mul_u32_u24 v7, %d, v%d' % (4 * 896, V_G))
a('v_lshl_add_u32 v7, v%d, 1, v7' % V_TOK)
a('v_mov_b32 v9, 0x%x' % INV)
a('v_cmp_eq_u32 vcc, 3, v%d' % V_G)
a('v_cndmask_b32 v8, 0, v9, vcc')
a('v_or_b32 v8, v8, v7')
a('s_lshl_b32 s%d, s%d, 5' % (sA, sW))
a('s_add_u32 s%d, s%d, s%d' % (sA, sA, sG))
a('s_cmp_lt_u32 s%d, 2' % sW)
a('s_cbranch_scc0 L_p2_d0')
build_srd(S_TMP, P_WO, 448 * 896)
a('s_lshr_b32 s%d, s%d, 4' % (sB, sA))
a('s_lshl_b32 s%d, s%d, 2' % (sCc, sJ))
a('s_add_u32 s%d, s%d, s%d' % (sB, sB, sCc))
a('s_and_b32 s%d, s%d, 15' % (sA, sA))
a('s_lshl_b32 s%d, s%d, 4' % (sCc, sB))
a('s_add_u32 s%d, s%d, s%d' % (sCc, sCc, sA))
a('s_lshl_b32 s%d, s%d, 10' % (sCc, sCc))
a('s_add_u32 s%d, s%d, %d' % (sO + 11, sCc, L.WB))
a('s_mul_i32 s%d, s%d, %d' % (sA, sA, 28 * 896))
a('s_lshl_b32 s%d, s%d, 5' % (sB, sB))
a('s_add_u32 s%d, s%d, s%d' % (sA, sA, sB))
gather8(BD_RAW, S_TMP, 7, 8, sA, 896)
build_srd(S_TMP, P_W2, 1792 * 896)
a('s_branch L_p2_d1')
a.label('L_p2_d0')
build_srd(S_TMP, P_W2, 1792 * 896)


def wd_frag(slot, s_idx):
    a('s_sub_u32 s%d, s%d, 64' % (sA, s_idx))
    a('s_mul_i32 s%d, s%d, 1171' % (sB, sA))
    a('s_lshr_b32 s%d, s%d, 16' % (sB, sB))
    a('s_mul_i32 s%d, s%d, 56' % (sCc, sB))
    a('s_sub_u32 s%d, s%d, s%d' % (sA, sA, sCc))
    a('s_lshl_b32 s%d, s%d, 2' % (sCc, sJ))
    a('s_add_u32 s%d, s%d, s%d' % (sB, sB, sCc))
    a('s_mul_i32 s%d, s%d, 56' % (sCc, sB))
    a('s_add_u32 s%d, s%d, s%d' % (sCc, sCc, sA))
    a('s_lshl_b32 s%d, s%d, 10' % (sCc, sCc))
    a('s_add_u32 s%d, s%d, %d' % (sO + 11 + slot, sCc, L.WD))
    a('s_mul_i32 s%d, s%d, %d' % (sA, sA, 32 * 896))
    a('s_lshl_b32 s%d, s%d, 5' % (sB, sB))
    a('s_add_u32 s%d, s%d, s%d' % (sA, sA, sB))


for v in range(224):
    assert (v * 1171) >> 16 == v // 56
wd_frag(0, sA)
gather8(BD_RAW, S_TMP, 7, 7, sA, 896)
a.label('L_p2_d1')
a('s_add_u32 s%d, s%d, 4' % (sA, sW))
a('s_lshl_b32 s%d, s%d, 5' % (sA, sA))
a('s_add_u32 s%d, s%d, s%d' % (sA, sA, sG))
wd_frag(1, sA)
gather8(BD_RAW + 8, S_TMP, 7, 7, sA, 896)
a('s_add_u32 s%d, s%d, 256' % (sA, sG))
wd_frag(2, sA)
a('s_cmp_eq_u32 s%d, 0' % sW)
a('s_cselect_b32 s%d, 0, 0x%x' % (sO + 14, INV))
a('v_or_b32 v9, s%d, v7' % (sO + 14))
gather8(BD_RAW + 16, S_TMP, 9, 9, sA, 896)
a('s_cmp_lt_u32 s%d, 16' % sG)
a('s_cbranch_scc0 L_p2_noc')
build_srd(S_TMP, P_W1, 448 * 3584)
a('v_mul_u32_u24 v18, %d, v%d' % (4 * 3584, V_G))
a('v_lshl_add_u32 v18, v%d, 1, v18' % V_TOK)
a('s_cmp_lt_u32 s%d, 2' % sW)
a('s_cselect_b32 s%d, 0, 0x%x' % (sO + 15, INV))
a('v_or_b32 v19, s%d, v18' % (sO + 15))
a('s_lshl_b32 s%d, s%d, 4' % (sB, sJ))
a('s_add_u32 s%d, s%d, s%d' % (sB, sB, sG))
a('s_lshl_b32 s%d, s%d, 5' % (sB, sB))
for i in range(4):
    a('s_add_u32 s%d, s%d, %d' % (sA, sW, 4 * i))
    a('s_min_u32 s%d, s%d, 13' % (sA, sA))
    a('s_mul_i32 s%d, s%d, %d' % (sA, sA, 32 * 3584))
    a('s_add_u32 s%d, s%d, s%d' % (sA, sA, sB))
    vv = 19 if i == 3 else 18
    gather8(C_RAW + 8 * i, S_TMP, vv, vv, sA, 3584)
a('s_waitcnt vmcnt(56)')
a('s_branch L_p1_ready')
a.label('L_p2_noc')
a('s_waitcnt vmcnt(24)')
a('s_branch L_p1_ready')
a.label('L_p2_none')
a('s_waitcnt vmcnt(0)')
a.label('L_p1_ready')
stamp()

a('s_mov_b32 s%d, 0x9E3779B1' % sA)
a('v_mul_lo_u32 v%d, v%d, s%d' % (V_T, V_T, sA))
a('v_add_u32 v%d, 0x7F4A7C15, v%d' % (V_T, V_T))
a('v_readfirstlane_b32 s%d, v%d' % (sT, V_T))

a('s_mul_i32 s%d, s%d, 14' % (sA, sO + 0))
a('s_add_u32 s%d, s%d, s%d' % (sA, sA, sO + 1))
a('s_lshl_b32 s%d, s%d, 10' % (sB, sA))
a('s_add_u32 s%d, s%d, %d' % (sB, sB, L.XA[0]))
a('v_or_b32 v3, s%d, v1' % (sO + 2))
a('buffer_store_dwordx4 v[10:13], v1, %s, s%d offen sc1' % (srd(S_WS), sB))
a('s_add_u32 s%d, s%d, 4096' % (sB, sB))
a('buffer_store_dwordx4 v[14:17], v3, %s, s%d offen sc1' % (srd(S_WS), sB))
for k in range(2):
    f, inv = sO + 3 + 4 * k, sO + 6 + 4 * k
    for p in range(4):
        a('v_lshl_or_b32 v%d, v%d, 16, v%d' % (QK_RAW + 8 * k + p, QK_RAW + 8 * k + 2 * p + 1, QK_RAW + 8 * k + 2 * p))
    a('s_mul_i32 s%d, s%d, 84' % (sB, sC))
    a('s_add_u32 s%d, s%d, s%d' % (sB, sB, f))
    a('s_lshl_b32 s%d, s%d, 10' % (sB, sB))
    a('s_add_u32 s%d, s%d, %d' % (sB, sB, L.WA))
    a('v_or_b32 v6, s%d, v1' % inv)
    a('buffer_store_dwordx4 %s, v6, %s, s%d offen sc1' % (vr(QK_RAW + 8 * k), srd(S_WS), sB))
a('v_mov_b32 v2, 0x3f803f80')
for k in range(2):
    x, s1, s2 = 10 + 4 * k, 110 + 2 * k, 111 + 2 * k
    a('v_mov_b32 v%d, 0' % s1)
    a('v_mov_b32 v%d, 0' % s2)
    for p in range(4):
        a('v_dot2_f32_bf16 v%d, v%d, v2, v%d' % (s1, x + p, s1))
        a('v_dot2_f32_bf16 v%d, v%d, v%d, v%d' % (s2, x + p, x + p, s2))
    for t in xg_reduce(s1, 114) + xg_reduce(s2, 115):
        a(t)
a('s_lshl_b32 s%d, s%d, 7' % (sB, sA))
a('s_add_u32 s%d, s%d, %d' % (sB, sB, L.SA[0]))
a('v_lshlrev_b32 v2, 3, v%d' % V_TOK)
a('v_or_b32 v3, s%d, v2' % (sO + 2))
a('s_mov_b64 exec, 0xffff')
a('buffer_store_dwordx2 v[110:111], v2, %s, s%d offen sc1' % (srd(S_WS), sB))
a('buffer_store_dwordx2 v[112:113], v3, %s, s%d offen offset:512 sc1' % (srd(S_WS), sB))
a('s_mov_b64 exec, -1')
a('s_lshl_b32 s%d, s%d, 4' % (sA, sO + 0))
a('s_add_u32 s%d, s%d, s%d' % (sA, sA, sO + 1))
a('s_lshl_b32 s%d, s%d, 2' % (sA, sA))
a('s_add_u32 s%d, s%d, %d' % (sA, sA, L.FX[0]))
a('v_lshlrev_b32 v2, 4, v0')
a('v_add_u32 v2, s%d, v2' % sA)
a('v_cmp_eq_u32 vcc, 1, v0')
a('v_mov_b32 v3, s%d' % (sO + 2))
a('v_cndmask_b32 v3, 0, v3, vcc')
a('v_or_b32 v2, v2, v3')
a('s_lshl_b32 s%d, s%d, 6' % (sA, sC))
a('s_lshl_b32 s%d, s%d, 2' % (sB, sS))
a('s_add_u32 s%d, s%d, s%d' % (sA, sA, sB))
a('s_add_u32 s%d, s%d, s%d' % (sA, sA, sW))
a('s_lshl_b32 s%d, s%d, 2' % (sA, sA))
a('s_add_u32 s%d, s%d, %d' % (sA, sA, L.FQ))
a('v_mov_b32 v3, s%d' % sA)
a('v_cmp_eq_u32 vcc, 2, v0')
a('v_cndmask_b32 v2, v2, v3, vcc')
set_flags(2, 3)
stamp()

a('s_cmp_eq_u32 s%d, 7' % sJ)
a('s_cbranch_scc1 L_p2_done')
for k in range(3):
    r = BD_RAW + 8 * k
    for p in range(4):
        a('v_lshl_or_b32 v%d, v%d, 16, v%d' % (r + p, r + 2 * p + 1, r + 2 * p))
    if k == 2:
        a('v_or_b32 v6, s%d, v1' % (sO + 14))
    a('buffer_store_dwordx4 %s, v%d, %s, s%d offen sc1' % (vr(r), 6 if k == 2 else 1, srd(S_WS), sO + 11 + k))
a('s_cmp_lt_u32 s%d, 16' % sG)
a('s_cbranch_scc0 L_p2_flag')
a('s_lshl_b32 s%d, s%d, 4' % (sB, sJ))
a('s_add_u32 s%d, s%d, s%d' % (sB, sB, sG))
a('s_mul_i32 s%d, s%d, 14' % (sA, sB))
a('s_add_u32 s%d, s%d, s%d' % (sA, sA, sW))
a('s_lshl_b32 s%d, s%d, 10' % (sA, sA))
a('s_add_u32 s%d, s%d, %d' % (sA, sA, L.WC))
a('v_mov_b32 v2, 0x3f803f80')
a('v_mov_b32 v110, 0')
for i in range(4):
    r = C_RAW + 8 * i
    for p in range(4):
        a('v_lshl_or_b32 v%d, v%d, 16, v%d' % (r + p, r + 2 * p + 1, r + 2 * p))
    if i == 3:
        a('v_or_b32 v6, s%d, v1' % (sO + 15))
    a('buffer_store_dwordx4 %s, v%d, %s, s%d offen sc1' % (vr(r), 6 if i == 3 else 1, srd(S_WS), sA))
    a('s_add_u32 s%d, s%d, 4096' % (sA, sA))
    for p in range(4):
        a('v_dot2_f32_bf16 v110, v%d, v2, v110' % (r + p))
for t in xg_reduce(110, 114):
    a(t)
a('s_lshl_b32 s%d, s%d, 6' % (sA, sW))
a('s_add_u32 s%d, s%d, %d' % (sA, sA, L.L_CSR))
a('v_lshlrev_b32 v2, 2, v%d' % V_TOK)
a('v_add_u32 v3, s%d, v2' % sA)
a('ds_write_b32 v3, v110')
a('s_waitcnt lgkmcnt(0)')
a('s_barrier')
a('v_add_u32 v3, %d, v2' % L.L_CSR)
for i in range(4):
    a('ds_read_b32 v%d, v3 offset:%d' % (104 + i, 64 * i))
a('s_waitcnt lgkmcnt(0)')
a('v_add_f32 v104, v104, v105')
a('v_add_f32 v106, v106, v107')
a('v_add_f32 v104, v104, v106')
a('s_lshl_b32 s%d, s%d, 6' % (sB, sB))
a('s_add_u32 s%d, s%d, %d' % (sB, sB, L.CSC))
a('s_mov_b64 exec, 0xffff')
a('buffer_store_dword v104, v2, %s, s%d offen sc1' % (srd(S_WS), sB))
a('s_mov_b64 exec, -1')
a.label('L_p2_flag')
a('s_waitcnt vmcnt(0)')
a('s_barrier')
a('s_lshl_b32 s%d, s%d, 5' % (sA, sJ))
a('s_add_u32 s%d, s%d, s%d' % (sA, sA, sG))
a('s_lshl_b32 s%d, s%d, 2' % (sA, sA))
a('s_add_u32 s%d, s%d, %d' % (sA, sA, L.FP))
a('v_mov_b32 v2, s%d' % sA)
a('s_cmp_eq_u32 s%d, 0' % sW)
a('s_cbranch_scc0 L_p2_done')
set_flags(2, 1)
a.label('L_p2_done')
stamp()

a('v_and_b32 v2, 1, v%d' % V_TOK)
a('v_lshlrev_b32 v3, 2, v%d' % V_G)
a('v_add_u32 v6, 2, v%d' % V_TOK)
for i in range(4):
    a('v_add_u32 v4, %d, v3' % i)
    a('v_cmp_eq_u32 vcc, %d, v2' % (i & 1))
    a('s_mov_b64 %s, vcc' % sp(sMK))
    a('v_cmp_ge_u32 vcc, v4, v6')
    a('s_and_b64 %s, vcc, %s' % (sp(sM1 + 2 * i), sp(sMK)))
    a('v_cmp_le_u32 vcc, v4, v%d' % V_TOK)
    a('s_and_b64 %s, vcc, %s' % (sp(sM2 + 2 * i), sp(sMK)))
a('s_lshl_b32 s%d, s%d, 3' % (sA, sS))
a('s_lshl_b32 s%d, s%d, 1' % (sB, sW))
a('s_add_u32 s%d, s%d, s%d' % (sGT, sA, sB))
a('s_cmp_eq_u32 s%d, 0' % sGT)
for i in range(4):
    a('s_cselect_b64 %s, 0, %s' % (sp(sM0 + 2 * i), sp(sM1 + 2 * i)))

a('s_lshl_b32 s%d, s%d, 8' % (sA, sC))
a('s_add_u32 s%d, s%d, %d' % (sA, sA, L.FQ))
a('v_lshl_add_u32 v2, v0, 2, s%d' % sA)
a('s_mov_b64 %s, -1' % sp(sMK))
poll(2)
stamp()
a('s_mul_i32 s%d, s%d, %d' % (sA, sC, 84 * 1024))
a('s_mul_i32 s%d, s%d, %d' % (sB, sW, 21 * 1024))
a('s_add_u32 s%d, s%d, s%d' % (sA, sA, sB))
a('s_add_u32 s%d, s%d, %d' % (sA, sA, L.WA))
a('s_add_u32 s%d, s%d, %d' % (sB, sB, L.L_WA))
for q in range(6):
    a('s_mov_b32 m0, s%d' % sB)
    for k in range(4 if q < 5 else 1):
        a('buffer_load_dwordx4 v1, %s, s%d offen offset:%d sc1 lds' % (srd(S_WS), sA, 1024 * k))
    if q < 5:
        a('s_add_u32 s%d, s%d, 4096' % (sA, sA))
        a('s_add_u32 s%d, s%d, 4096' % (sB, sB))
a('s_waitcnt vmcnt(0)')
a('s_barrier')
stamp()
for p in range(4):
    a('v_mov_b32 v%d, 0x3f803f80' % (4 + p))
a('v_cmp_eq_u32 vcc, 0, v%d' % V_TOK)
a('s_mov_b64 %s, vcc' % sp(sMK))
for k in range(2):
    if k == 1:
        a('s_cmp_lt_u32 s%d, 2' % sW)
        a('s_cbranch_scc0 L_csa_done')
    a('s_add_u32 s%d, s%d, %d' % (sA, sW, 4 * k))
    a('s_mul_i32 s%d, s%d, %d' % (sB, sA, 14 * 1024))
    a('v_add_u32 v2, s%d, v1' % sB)
    for u in range(14):
        a('ds_read_b128 %s, v2 offset:%d' % (vr(16 + 4 * u), 1024 * u))
    a('s_waitcnt lgkmcnt(0)')
    for u in range(14):
        a('v_mfma_f32_16x16x32_bf16 v[8:11], %s, v[4:7], %s' % (vr(16 + 4 * u), '0' if u == 0 else 'v[8:11]'))
    a('s_lshl_b32 s%d, s%d, 6' % (sA, sA))
    a('s_add_u32 s%d, s%d, %d' % (sA, sA, L.L_CSA))
    a('v_lshl_add_u32 v3, v%d, 4, s%d' % (V_G, sA))
    a('s_mov_b64 exec, %s' % sp(sMK))
    a('ds_write_b128 v3, v[8:11]')
    a('s_mov_b64 exec, -1')
a.label('L_csa_done')
a('s_waitcnt lgkmcnt(0)')
a('s_barrier')
a('s_mov_b32 s%d, 0' % sPAIR)
stamp()

a.label('L_pair')

AQ, AK, AV = 2, 18, 42
WBUF = [66, 90]
XR = 114
STR = 210
SM, SR = 234, 237
NR = 8

a('s_mul_i32 s%d, s%d, %d' % (sA, sPAIR, L.FX[1] - L.FX[0]))
a('s_add_u32 s%d, s%d, %d' % (sA, sA, L.FX[0] - 64))
a('s_lshl_b32 s%d, s%d, 6' % (sB, sGT))
a('s_add_u32 s%d, s%d, s%d' % (sA, sA, sB))
a('v_lshl_add_u32 v2, v0, 2, s%d' % sA)
a('s_mov_b32 s%d, 0x3fff3fff' % sMK)
a('s_mov_b32 s%d, 0x3fff' % (sMK + 1))
a('s_cmp_eq_u32 s%d, 0' % sGT)
a('s_cselect_b32 s%d, 0x3fff0000, s%d' % (sMK, sMK))
poll(2)
stamp()
a('s_mul_i32 s%d, s%d, %d' % (sA, sPAIR, L.XA[1] - L.XA[0]))
a('s_add_u32 s%d, s%d, %d' % (sA, sA, L.XA[0]))
a('s_mul_i32 s%d, s%d, 14336' % (sB, sGT))
a('s_add_u32 s%d, s%d, s%d' % (sO + 4, sA, sB))
a('s_add_u32 s%d, s%d, 14336' % (sO + 8, sO + 4))
a('s_sub_u32 s%d, s%d, 14336' % (sO + 0, sO + 4))
a('s_cmp_eq_u32 s%d, 0' % sGT)
a('s_cselect_b32 s%d, s%d, s%d' % (sO + 0, sO + 4, sO + 0))
for t in range(3):
    for q in range(1, 4):
        a('s_add_u32 s%d, s%d, %d' % (sO + 4 * t + q, sO + 4 * t, 4096 * q))


def a_xload(u):
    slot = u % NR
    return ['buffer_load_dwordx4 %s, v1, %s, s%d offen offset:%d sc1' %
            (vr(XR + (slot * 3 + t) * 4), srd(S_WS), sO + 4 * t + (u >> 2), 1024 * (u & 3)) for t in range(3)]


xmark = {}
for u in range(NR):
    for t in a_xload(u):
        a(t)
    xmark[u] = a.vm_mark()
a('s_mul_i32 s%d, s%d, %d' % (sA, sPAIR, L.SA[1] - L.SA[0]))
a('s_add_u32 s%d, s%d, %d' % (sA, sA, L.SA[0]))
a('s_mul_i32 s%d, s%d, 1792' % (sB, sGT))
a('s_add_u32 s%d, s%d, s%d' % (sO + 13, sA, sB))
a('s_add_u32 s%d, s%d, 1792' % (sO + 14, sO + 13))
a('s_sub_u32 s%d, s%d, 1792' % (sO + 12, sO + 13))
a('s_cmp_eq_u32 s%d, 0' % sGT)
a('s_cselect_b32 s%d, s%d, s%d' % (sO + 12, sO + 13, sO + 12))
a('v_and_b32 v%d, 15, v0' % V_TOK)
a('v_lshrrev_b32 v%d, 4, v0' % V_G)
a('v_lshlrev_b32 v240, 3, v%d' % V_TOK)
a('v_lshl_add_u32 v240, v%d, 7, v240' % V_G)
a('v_mov_b32 v242, 0x%x' % INV)
a('v_cmp_lt_u32 vcc, 1, v%d' % V_G)
a('v_cndmask_b32 v241, 0, v242, vcc')
a('v_or_b32 v241, v241, v240')
for t in range(3):
    for i in range(4):
        a('buffer_load_dwordx2 %s, v%d, %s, s%d offen offset:%d sc1' %
          (vr(STR + (t * 4 + i) * 2, 2), 241 if i == 3 else 240, srd(S_WS), sO + 12 + t, 512 * i))
st_mark = a.vm_mark()
a('v_add_u32 v243, %d, v1' % (56 * 1024))
csa_fill = []


def a_wread(u):
    b = WBUF[u & 1]
    o = []
    for p in range(6):
        if p < 4:
            o.append('ds_read_b128 %s, v1 offset:%d' % (vr(b + 4 * p), L.L_WA + (p * 14 + u) * 1024))
        else:
            o.append('ds_read_b128 %s, v243 offset:%d' % (vr(b + 4 * p), L.L_WA + ((p - 4) * 14 + u) * 1024))
    return o


for t in a_wread(0):
    a(t)
stat_fill = []
for t in range(3):
    r = STR + 8 * t
    for c_ in range(2):
        stat_fill += ['v_add_f32 v%d, v%d, v%d' % (r + c_, r + c_, r + 2 + c_),
                      'v_add_f32 v%d, v%d, v%d' % (r + 4 + c_, r + 4 + c_, r + 6 + c_),
                      'v_add_f32 v%d, v%d, v%d' % (r + c_, r + c_, r + 4 + c_)]
    stat_fill += xg_reduce(r, r + 2) + xg_reduce(r + 1, r + 3)
    stat_fill += stats_finish(r, r + 1, r + 2, False)
    stat_fill += ['v_mov_b32 v%d, v%d' % (SM + t, r), 'v_mov_b32 v%d, v%d' % (SR + t, r + 1)]

for u in range(14):
    if u == 0:
        a.wait_vm(xmark[0])
    elif u <= 7:
        a.wait_vm(xmark[u])
    else:
        a.wait_vm(xmark[u])
    a('s_waitcnt lgkmcnt(0)')
    wb = WBUF[u & 1]
    xs = XR + (u % NR) * 12
    mf = []
    cz = (lambda r: '0') if u == 0 else (lambda r: vr(r))
    for t in range(2):
        for hf in range(2):
            r = AQ + (t * 2 + hf) * 4
            mf.append('v_mfma_f32_16x16x32_bf16 %s, %s, %s, %s' % (vr(r), vr(wb + 4 * hf), vr(xs + 4 * (t + 1)), cz(r)))
    for t in range(3):
        for hf in range(2):
            r = AK + (t * 2 + hf) * 4
            mf.append('v_mfma_f32_16x16x32_bf16 %s, %s, %s, %s' % (vr(r), vr(wb + 8 + 4 * hf), vr(xs + 4 * t), cz(r)))
    for t in range(3):
        for hf in range(2):
            r = AV + (t * 2 + hf) * 4
            mf.append('v_mfma_f32_16x16x32_bf16 %s, %s, %s, %s' % (vr(r), vr(xs + 4 * t), vr(wb + 16 + 4 * hf), cz(r)))
    mem = a_wread(u + 1) if u < 13 else []
    if u == 13:
        mem = ['ds_read_b128 %s, v244 offset:%d' % (vr(WBUF[0] + 4 * p), 64 * p) for p in range(4)]
        mem += ['ds_read_b32 v%d, v245 offset:%d' % (WBUF[0] + 16 + d, 64 * (4 + d)) for d in range(2)]
        a('v_lshlrev_b32 v244, 4, v%d' % V_G)
        a('v_add_u32 v244, %d, v244' % L.L_CSA)
        a('v_lshlrev_b32 v245, 2, v%d' % V_TOK)
        a('v_add_u32 v245, %d, v245' % L.L_CSA)
    fill = []
    if u >= 9:
        n = (len(stat_fill) + 4) // 5
        fill = stat_fill[(u - 9) * n:(u - 8) * n]
    fi = 0
    for k, m in enumerate(mf):
        a(m)
        if k < len(mem):
            a(mem[k])
        for _ in range(2):
            if fi < len(fill) and k >= 1:
                a(fill[fi])
                fi += 1
    assert fi == len(fill), (u, fi, len(fill))
    if u + NR < 14:
        for t in a_xload(u + NR):
            a(t)
        xmark[u + NR] = a.vm_mark()
stamp()
CSQ = WBUF[0]
a('s_mul_i32 s%d, s%d, 384' % (sA, sW))
a('s_add_u32 s%d, s%d, %d' % (sA, sA, L.L_STA))
a('v_lshl_add_u32 v246, v%d, 2, s%d' % (V_TOK, sA))
a('v_lshl_add_u32 v247, v%d, 4, s%d' % (V_G, sA))
a('s_mov_b64 exec, 0xffff')
for t in range(3):
    a('ds_write_b32 v246, v%d offset:%d' % (SM + t, 128 * t))
    a('ds_write_b32 v246, v%d offset:%d' % (SR + t, 128 * t + 64))
a('s_mov_b64 exec, -1')
MROW, RROW = 114, 126
a('s_waitcnt lgkmcnt(0)')
for t in range(3):
    a('ds_read_b128 %s, v247 offset:%d' % (vr(MROW + 4 * t), 128 * t))
    a('ds_read_b128 %s, v247 offset:%d' % (vr(RROW + 4 * t), 128 * t + 64))
QF, KF, VF = 140, 148, 160
for t in range(2):
    for hf in range(2):
        r = AQ + (t * 2 + hf) * 4
        for i in range(4):
            a('v_fma_f32 v%d, -v%d, v%d, v%d' % (r + i, SM + t + 1, CSQ + 4 * hf + i, r + i))
        for p in range(2):
            a('v_cvt_pk_bf16_f32 v%d, v%d, v%d' % (QF + 4 * t + 2 * hf + p, r + 2 * p, r + 2 * p + 1))
for t in range(3):
    for hf in range(2):
        r = AK + (t * 2 + hf) * 4
        for i in range(4):
            a('v_fma_f32 v%d, -v%d, v%d, v%d' % (r + i, SM + t, CSQ + 8 + 4 * hf + i, r + i))
        for p in range(2):
            a('v_cvt_pk_bf16_f32 v%d, v%d, v%d' % (KF + 4 * t + 2 * hf + p, r + 2 * p, r + 2 * p + 1))
SS = 172
for t in range(2):
    a('v_mfma_f32_16x16x32_bf16 %s, %s, %s, 0' % (vr(SS + 8 * t), vr(KF + 4 * t), vr(QF + 4 * t)))
    a('v_mfma_f32_16x16x32_bf16 %s, %s, %s, 0' % (vr(SS + 8 * t + 4), vr(KF + 4 * t + 4), vr(QF + 4 * t)))
a('s_waitcnt lgkmcnt(0)')
for t in range(3):
    for d in range(2):
        r = AV + (t * 2 + d) * 4
        for i in range(4):
            a('v_fma_f32 v%d, -v%d, v%d, v%d' % (r + i, MROW + 4 * t + i, CSQ + 16 + d, r + i))
        for p in range(2):
            a('v_cvt_pk_bf16_f32 v%d, v%d, v%d' % (VF + 6 * d + 2 * t + p, r + 2 * p, r + 2 * p + 1))
SCALE = (28.0 ** -0.5) * 1.4426950408889634
MX, CC, LS, TMPR = 190, 192, 194, 196
PF = 200
a('v_mov_b32 v198, 0xff800000')
seq = [[], []]
for t in range(2):
    s = SS + 8 * t
    q = seq[t]
    for e in range(8):
        q.append('v_mul_f32 v%d, v%d, v%d' % (s + e, s + e, RROW + 4 * (t + (e >> 2)) + (e & 3)))
    for e in range(8):
        mk = (sM0 if t == 0 else sM1) + 2 * e if e < 4 else sM2 + 2 * (e - 4)
        q.append('v_cndmask_b32 v%d, v198, v%d, %s' % (s + e, s + e, sp(mk)))
    q.append('v_max3_f32 v%d, v%d, v%d, v%d' % (MX + t, s, s + 1, s + 2))
    q.append('v_max3_f32 v%d, v%d, v%d, v%d' % (MX + t, MX + t, s + 3, s + 4))
    q.append('v_max3_f32 v%d, v%d, v%d, v%d' % (MX + t, MX + t, s + 5, s + 6))
    q.append('v_max_f32 v%d, v%d, v%d' % (MX + t, MX + t, s + 7))
    q += xg_reduce(MX + t, TMPR + t, 'v_max_f32')
    q.append('v_mul_f32 v%d, %s, v%d' % (CC + t, f2h(SCALE), SR + t + 1))
    q.append('v_mul_f32 v%d, v%d, v%d' % (MX + t, MX + t, CC + t))
    for e in range(8):
        q.append('v_fma_f32 v%d, v%d, v%d, -v%d' % (s + e, s + e, CC + t, MX + t))
    for e in range(8):
        q.append('v_exp_f32 v%d, v%d' % (s + e, s + e))
    q.append('v_add_f32 v%d, v%d, v%d' % (LS + t, s, s + 1))
    for e in range(2, 8):
        q.append('v_add_f32 v%d, v%d, v%d' % (LS + t, LS + t, s + e))
    q += xg_reduce(LS + t, TMPR + t)
    q.append('v_rcp_f32 v%d, v%d' % (LS + t, LS + t))
    for e in range(8):
        q.append('v_mul_f32 v%d, v%d, v%d' % (s + e, s + e, RROW + 4 * (t + (e >> 2)) + (e & 3)))
    for p in range(4):
        q.append('v_cvt_pk_bf16_f32 v%d, v%d, v%d' % (PF + 4 * t + p, s + 2 * p, s + 2 * p + 1))
for x, y in zip(*seq):
    a(x)
    a(y)
OO = 208
for t in range(2):
    for d in range(2):
        a('v_mfma_f32_16x16x32_bf16 %s, %s, %s, 0' % (vr(OO + 8 * t + 4 * d), vr(VF + 6 * d + 2 * t), vr(PF + 4 * t)))
a('s_mul_i32 s%d, s%d, %d' % (sA, sPAIR, L.O[1] - L.O[0]))
a('s_add_u32 s%d, s%d, %d' % (sA, sA, L.O[0]))
a('s_lshl_b32 s%d, s%d, 4' % (sB, sGT))
a('s_add_u32 s%d, s%d, s%d' % (sB, sB, sC))
a('s_lshl_b32 s%d, s%d, 10' % (sB, sB))
a('s_add_u32 s%d, s%d, s%d' % (sA, sA, sB))
for t in range(2):
    for e in range(8):
        a('v_mul_f32 v%d, v%d, v%d' % (OO + 8 * t + e, OO + 8 * t + e, LS + t))
    for p in range(4):
        a('v_cvt_pk_bf16_f32 v%d, v%d, v%d' % (PF + 4 * t + p, OO + 8 * t + 2 * p, OO + 8 * t + 2 * p + 1))
    a('buffer_store_dwordx4 %s, v1, %s, s%d offen sc1' % (vr(PF + 4 * t), srd(S_WS), sA))
    if t == 0:
        a('s_add_u32 s%d, s%d, 16384' % (sA, sA))
a('s_mul_i32 s%d, s%d, %d' % (sA, sPAIR, L.FA[1] - L.FA[0]))
a('s_add_u32 s%d, s%d, %d' % (sA, sA, L.FA[0]))
a('s_lshl_b32 s%d, s%d, 4' % (sB, sGT))
a('s_add_u32 s%d, s%d, s%d' % (sB, sB, sC))
a('s_lshl_b32 s%d, s%d, 2' % (sB, sB))
a('s_add_u32 s%d, s%d, s%d' % (sA, sA, sB))
a('v_lshlrev_b32 v2, 6, v0')
a('v_add_u32 v2, s%d, v2' % sA)
set_flags(2, 2)
stamp()
a('s_cmp_eq_u32 s%d, 7' % sJ)
a('s_cbranch_scc1 L_next_pair')

WD_CH = [(0, 14), (14, 28), (28, 56)]


def wd_loads(lo, hi):
    for fi in range(lo, hi):
        kk, t = fi >> 2, fi & 3
        a('buffer_load_dwordx4 %s, v1, %s, s%d offen offset:%d sc1' %
          (ar(4 * fi), srd(S_WS), sO + 4 * t + (kk >> 2), 1024 * (kk & 3)))


def wd_bases():
    a('s_lshl_b32 s%d, s%d, 2' % (sA, sJ))
    a('s_mul_i32 s%d, s%d, %d' % (sA, sA, 56 * 1024))
    a('s_mul_i32 s%d, s%d, %d' % (sB, sW, 14 * 1024))
    a('s_add_u32 s%d, s%d, s%d' % (sA, sA, sB))
    a('s_add_u32 s%d, s%d, %d' % (sO, sA, L.WD))
    for t in range(4):
        if t:
            a('s_add_u32 s%d, s%d, %d' % (sO + 4 * t, sO + 4 * (t - 1), 56 * 1024))
        for q in range(1, 4):
            a('s_add_u32 s%d, s%d, %d' % (sO + 4 * t + q, sO + 4 * t, 4096 * q))


A_RES, A_B2 = 224, 232
a('s_cmp_eq_u32 s%d, 0' % sPAIR)
a('s_cbranch_scc0 L_b_start')
a('s_lshl_b32 s%d, s%d, 7' % (sA, sJ))
a('s_add_u32 s%d, s%d, %d' % (sA, sA, L.FP))
a('v_lshl_add_u32 v2, v0, 2, s%d' % sA)
a('s_mov_b32 s%d, -1' % sMK)
a('s_mov_b32 s%d, 0' % (sMK + 1))
poll(2)
a('s_and_b32 s%d, s%d, 1' % (sA, sW))
a('s_lshr_b32 s%d, s%d, 1' % (sB, sW))
a('s_lshl_b32 s%d, s%d, 2' % (sCc, sG))
a('s_add_u32 s%d, s%d, s%d' % (sB, sB, sCc))
a('s_mul_i32 s%d, s%d, 14' % (sB, sB))
a('s_lshl_b32 s%d, s%d, 1' % (sCc, sJ))
a('s_add_u32 s%d, s%d, s%d' % (sB, sB, sCc))
a('s_add_u32 s%d, s%d, s%d' % (sB, sB, sA))
a('s_lshl_b32 s%d, s%d, 10' % (sB, sB))
a('s_add_u32 s%d, s%d, %d' % (sB, sB, L.XA[0]))
a('s_lshl_b32 s%d, s%d, 8' % (sCc, sG))
a('s_add_u32 s%d, s%d, %d' % (sCc, sCc, L.FX[0]))
a('v_lshl_add_u32 v2, v0, 2, s%d' % sCc)
a('s_mov_b32 s%d, 0x3fff3fff' % sMK)
a('s_mov_b32 s%d, 0x3fff3fff' % (sMK + 1))
poll(2)
a('buffer_load_dwordx4 %s, v1, %s, s%d offen sc1' % (ar(A_RES), srd(S_WS), sB))
a('s_add_u32 s%d, s%d, %d' % (sB, sB, 2 * 14336))
a('buffer_load_dwordx4 %s, v1, %s, s%d offen sc1' % (ar(A_RES + 4), srd(S_WS), sB))
build_srd(S_TMP, P_B2, 896)
a('s_lshl_b32 s%d, s%d, 7' % (sB, sJ))
a('s_lshl_b32 s%d, s%d, 6' % (sA, sA))
a('s_add_u32 s%d, s%d, s%d' % (sB, sB, sA))
a('v_lshlrev_b32 v2, 3, v%d' % V_G)
a('buffer_load_dwordx2 v[4:5], v2, %s, s%d offen' % (srd(S_TMP), sB))
a('buffer_load_dwordx2 v[6:7], v2, %s, s%d offen offset:32' % (srd(S_TMP), sB))
a('s_waitcnt vmcnt(0)')
for k in range(4):
    a('v_lshlrev_b32 v8, 16, v%d' % (4 + k))
    a('v_and_b32 v9, 0xffff0000, v%d' % (4 + k))
    a('v_accvgpr_write_b32 a%d, v8' % (A_B2 + 2 * k))
    a('v_accvgpr_write_b32 a%d, v9' % (A_B2 + 2 * k + 1))
wd_bases()
wd_loads(*WD_CH[0])
a.label('L_b_start')

def reduce_epilogue(acc, st, is_d, rd):
    o = []
    for tt in range(2):
        for t in range(4):
            o.append('ds_write_b128 v248, %s offset:%d' % (vr(acc + (tt * 4 + t) * 4), st * 32768 + tt * 4096 + t * 1024))
    return o


def owner_finish(st, is_d, rd, tmp):
    for b in range(4):
        for k in range(2):
            a('ds_read_b128 %s, v249 offset:%d' % (vr(rd + (b * 2 + k) * 4), st * 32768 + b * 8192 + k * 1024))
    res = A_RES + 4 * st
    for p in range(4):
        a('v_accvgpr_read_b32 v%d, a%d' % (tmp + 8 + p, res + p))
    for p in range(4):
        a('v_lshlrev_b32 v%d, 16, v%d' % (tmp + 2 * p, tmp + 8 + p))
        a('v_and_b32 v%d, 0xffff0000, v%d' % (tmp + 2 * p + 1, tmp + 8 + p))
    if is_d:
        for e in range(0, 8):
            a('v_accvgpr_read_b32 v%d, a%d' % (tmp + 8 + e, A_B2 + e))
        for e in range(0, 8, 2):
            a('v_pk_add_f32 %s, %s, %s' % (vr(tmp + e, 2), vr(tmp + e, 2), vr(tmp + 8 + e, 2)))
    a('s_waitcnt lgkmcnt(0)')
    for e in range(0, 8, 2):
        a('v_pk_add_f32 %s, %s, %s' % (vr(rd + e, 2), vr(rd + e, 2), vr(rd + 8 + e, 2)))
        a('v_pk_add_f32 %s, %s, %s' % (vr(rd + 16 + e, 2), vr(rd + 16 + e, 2), vr(rd + 24 + e, 2)))
    for e in range(0, 8, 2):
        a('v_pk_add_f32 %s, %s, %s' % (vr(rd + e, 2), vr(rd + e, 2), vr(rd + 16 + e, 2)))
    for e in range(0, 8, 2):
        a('v_pk_add_f32 %s, %s, %s' % (vr(tmp + e, 2), vr(tmp + e, 2), vr(rd + e, 2)))
    for p in range(4):
        a('v_cvt_pk_bf16_f32 v%d, v%d, v%d' % (rd + p, tmp + 2 * p, tmp + 2 * p + 1))
    for p in range(4):
        a('v_accvgpr_write_b32 a%d, v%d' % (res + p, rd + p))


def owner_stats(tmp, s1, s2, t):
    a('v_pk_add_f32 %s, %s, %s' % (vr(t, 2), vr(tmp, 2), vr(tmp + 2, 2)))
    a('v_pk_add_f32 %s, %s, %s' % (vr(t + 2, 2), vr(tmp + 4, 2), vr(tmp + 6, 2)))
    a('v_pk_add_f32 %s, %s, %s' % (vr(t, 2), vr(t, 2), vr(t + 2, 2)))
    a('v_add_f32 v%d, v%d, v%d' % (s1, t, t + 1))
    a('v_pk_mul_f32 %s, %s, %s' % (vr(t, 2), vr(tmp, 2), vr(tmp, 2)))
    for e in (2, 4, 6):
        a('v_pk_fma_f32 %s, %s, %s, %s' % (vr(t, 2), vr(tmp + e, 2), vr(tmp + e, 2), vr(t, 2)))
    a('v_add_f32 v%d, v%d, v%d' % (s2, t, t + 1))
    for x in xg_reduce(s1, t) + xg_reduce(s2, t + 1):
        a(x)


def red_addrs():
    a('s_lshl_b32 s%d, s%d, 13' % (sA, sW))
    a('s_add_u32 s%d, s%d, %d' % (sA, sA, L.L_R2))
    a('v_add_u32 v248, s%d, v1' % sA)
    a('s_and_b32 s%d, s%d, 1' % (sA, sW))
    a('s_lshl_b32 s%d, s%d, 11' % (sA, sA))
    a('s_lshr_b32 s%d, s%d, 1' % (sB, sW))
    a('s_lshl_b32 s%d, s%d, 12' % (sB, sB))
    a('s_add_u32 s%d, s%d, s%d' % (sA, sA, sB))
    a('s_add_u32 s%d, s%d, %d' % (sA, sA, L.L_R2))
    a('v_add_u32 v249, s%d, v1' % sA)


def owner_index():
    a('s_lshr_b32 s%d, s%d, 1' % (sB, sW))
    a('s_lshl_b32 s%d, s%d, 2' % (sCc, sG))
    a('s_add_u32 s%d, s%d, s%d' % (sB, sB, sCc))
    a('s_and_b32 s%d, s%d, 1' % (sA, sW))
    a('s_lshl_b32 s%d, s%d, 1' % (sCc, sJ))
    a('s_add_u32 s%d, s%d, s%d' % (sA, sA, sCc))


def publish_x(xbuf, sbuf, fbuf, st, rd, tmp, pairsel):
    if st == 0:
        owner_index()
        a('s_mul_i32 s%d, s%d, 14' % (sCc, sB))
        a('s_add_u32 s%d, s%d, s%d' % (sCc, sCc, sA))
        a('s_lshl_b32 s%d, s%d, 10' % (sO + 0, sCc))
        a('s_mul_i32 s%d, s%d, %d' % (sD, sPAIR, xbuf[1]))
        a('s_add_u32 s%d, s%d, s%d' % (sO + 0, sO + 0, sD))
        a('s_add_u32 s%d, s%d, %d' % (sO + 0, sO + 0, xbuf[0]))
        a('s_lshl_b32 s%d, s%d, 7' % (sO + 1, sCc))
        a('s_mul_i32 s%d, s%d, %d' % (sD, sPAIR, sbuf[1]))
        a('s_add_u32 s%d, s%d, s%d' % (sO + 1, sO + 1, sD))
        a('s_add_u32 s%d, s%d, %d' % (sO + 1, sO + 1, sbuf[0]))
        a('s_lshl_b32 s%d, s%d, 4' % (sO + 2, sB))
        a('s_add_u32 s%d, s%d, s%d' % (sO + 2, sO + 2, sA))
        a('s_lshl_b32 s%d, s%d, 2' % (sO + 2, sO + 2))
        a('s_mul_i32 s%d, s%d, %d' % (sD, sPAIR, fbuf[1]))
        a('s_add_u32 s%d, s%d, s%d' % (sO + 2, sO + 2, sD))
        a('s_add_u32 s%d, s%d, %d' % (sO + 2, sO + 2, fbuf[0]))
    else:
        a('s_add_u32 s%d, s%d, %d' % (sO + 0, sO + 0, 2 * 14336))
        a('s_add_u32 s%d, s%d, %d' % (sO + 1, sO + 1, 2 * 1792))
    a('buffer_store_dwordx4 %s, v1, %s, s%d offen sc1' % (vr(rd), srd(S_WS), sO + 0))
    owner_stats(tmp, rd + 4, rd + 5, rd + 6)
    a('v_and_b32 v%d, 15, v0' % V_TOK)
    a('v_lshlrev_b32 v%d, 3, v%d' % (rd + 6, V_TOK))
    a('s_mov_b64 exec, 0xffff')
    a('buffer_store_dwordx2 %s, v%d, %s, s%d offen sc1' % (vr(rd + 4, 2), rd + 6, srd(S_WS), sO + 1))
    a('s_mov_b64 exec, -1')


def publish_flags():
    a('v_lshlrev_b32 v2, 7, v0')
    a('v_add_u32 v2, s%d, v2' % (sO + 2))
    set_flags(2, 2)


BW, BO, BACC, BRD, BTMP = 2, 66, 130, 194, 226
a('s_lshl_b32 s%d, s%d, 2' % (sA, sJ))
a('s_lshl_b32 s%d, s%d, 4' % (sA, sA))
a('s_lshl_b32 s%d, s%d, 2' % (sB, sW))
a('s_add_u32 s%d, s%d, s%d' % (sA, sA, sB))
a('s_lshl_b32 s%d, s%d, 10' % (sA, sA))
a('s_add_u32 s%d, s%d, %d' % (sA, sA, L.WB))
for t in range(4):
    for i in range(4):
        a('buffer_load_dwordx4 %s, v1, %s, s%d offen offset:%d sc1' % (vr(BW + (i * 4 + t) * 4), srd(S_WS), sA, 1024 * i))
    if t < 3:
        a('s_add_u32 s%d, s%d, %d' % (sA, sA, 16 * 1024))
a('s_mul_i32 s%d, s%d, %d' % (sA, sPAIR, L.FA[1] - L.FA[0]))
a('s_add_u32 s%d, s%d, %d' % (sA, sA, L.FA[0]))
a('s_lshl_b32 s%d, s%d, 8' % (sB, sG))
a('s_add_u32 s%d, s%d, s%d' % (sA, sA, sB))
a('v_lshl_add_u32 v240, v0, 2, s%d' % sA)
a('s_lshl_b32 s%d, s%d, 2' % (sB, sW))
a('s_lshl_b32 s%d, 0x000f000f, s%d' % (sMK, sB))
a('s_mov_b32 s%d, s%d' % (sMK + 1, sMK))
poll(240)
stamp()
a('s_mul_i32 s%d, s%d, %d' % (sA, sPAIR, L.O[1] - L.O[0]))
a('s_add_u32 s%d, s%d, %d' % (sA, sA, L.O[0]))
a('s_lshl_b32 s%d, s%d, 6' % (sB, sG))
a('s_lshl_b32 s%d, s%d, 2' % (sCc, sW))
a('s_add_u32 s%d, s%d, s%d' % (sB, sB, sCc))
a('s_lshl_b32 s%d, s%d, 10' % (sB, sB))
a('s_add_u32 s%d, s%d, s%d' % (sA, sA, sB))
omark = []
for tile in range(4):
    for i in range(4):
        a('buffer_load_dwordx4 %s, v1, %s, s%d offen offset:%d sc1' % (vr(BO + (tile * 4 + i) * 4), srd(S_WS), sA, 1024 * i))
    omark.append(a.vm_mark())
    if tile < 3:
        a('s_add_u32 s%d, s%d, 16384' % (sA, sA))
red_addrs()
for st in range(2):
    for tt in range(2):
        tile = 2 * st + tt
        a.wait_vm(omark[tile])
        for i in range(4):
            for t in range(4):
                r = BACC + (tile * 4 + t) * 4
                a('v_mfma_f32_16x16x32_bf16 %s, %s, %s, %s' %
                  (vr(r), vr(BW + (i * 4 + t) * 4), vr(BO + (tile * 4 + i) * 4), '0' if i == 0 else vr(r)))
    for x in reduce_epilogue(BACC + st * 32, st, False, BRD):
        a(x)
    if st == 1:
        owner_finish(0, False, BRD, BTMP)
        publish_x((L.XB[0], L.XB[1] - L.XB[0]), (L.SB[0], L.SB[1] - L.SB[0]), (L.FB[0], L.FB[1] - L.FB[0]), 0, BRD, BTMP, None)
    a('s_waitcnt lgkmcnt(0)')
    a('s_barrier')
owner_finish(1, False, BRD, BTMP)
publish_x((L.XB[0], L.XB[1] - L.XB[0]), (L.SB[0], L.SB[1] - L.SB[0]), (L.FB[0], L.FB[1] - L.FB[0]), 1, BRD, BTMP, None)
publish_flags()
stamp()

CACC, CW, CX, CCS, CB1, CB1R, CSTR, CMR = 2, 66, 162, 194, 210, 226, 234, 242
NRC = 6
a('s_cmp_eq_u32 s%d, 0' % sPAIR)
a('s_cbranch_scc0 L_c_start')
wd_bases()
wd_loads(*WD_CH[1])
a.label('L_c_start')
a('s_lshl_b32 s%d, s%d, 4' % (sA, sJ))
a('s_lshl_b32 s%d, s%d, 2' % (sB, sW))
a('s_add_u32 s%d, s%d, s%d' % (sA, sA, sB))
a('s_mul_i32 s%d, s%d, %d' % (sB, sA, 14 * 1024))
a('s_add_u32 s%d, s%d, %d' % (sO, sB, L.WC))
for t in range(4):
    if t:
        a('s_add_u32 s%d, s%d, %d' % (sO + 4 * t, sO + 4 * (t - 1), 14 * 1024))
    for q in range(1, 4):
        a('s_add_u32 s%d, s%d, %d' % (sO + 4 * t + q, sO + 4 * t, 4096 * q))


def c_wload(u):
    slot = u % NRC
    return ['buffer_load_dwordx4 %s, v1, %s, s%d offen offset:%d sc1' %
            (vr(CW + (slot * 4 + t) * 4), srd(S_WS), sO + 4 * t + (u >> 2), 1024 * (u & 3)) for t in range(4)]


for u in range(NRC):
    for x in c_wload(u):
        a(x)
a('v_lshrrev_b32 v%d, 4, v0' % V_G)
a('v_lshlrev_b32 v240, 4, v%d' % V_G)
a('s_lshl_b32 s%d, s%d, 6' % (sB, sA))
a('s_add_u32 s%d, s%d, %d' % (sB, sB, L.CSC))
for t in range(4):
    a('buffer_load_dwordx4 %s, v240, %s, s%d offen offset:%d sc1' % (vr(CCS + 4 * t), srd(S_WS), sB, 64 * t))
a('v_lshlrev_b32 v240, 3, v%d' % V_G)
a('s_lshl_b32 s%d, s%d, 5' % (sB, sA))
for t in range(4):
    a('buffer_load_dwordx2 %s, v240, %s, s%d offen offset:%d' % (vr(CB1R + 2 * t, 2), srd(S_B1), sB, 32 * t))
a('s_mul_i32 s%d, s%d, %d' % (sA, sPAIR, L.FB[1] - L.FB[0]))
a('s_add_u32 s%d, s%d, %d' % (sA, sA, L.FB[0]))
a('s_lshl_b32 s%d, s%d, 8' % (sB, sG))
a('s_add_u32 s%d, s%d, s%d' % (sA, sA, sB))
a('v_lshl_add_u32 v240, v0, 2, s%d' % sA)
a('s_mov_b32 s%d, 0x3fff3fff' % sMK)
a('s_mov_b32 s%d, 0x3fff3fff' % (sMK + 1))
poll(240)
stamp()
a('s_barrier')
a('s_lshl_b32 s%d, s%d, 2' % (sB, sG))
a('s_add_u32 s%d, s%d, s%d' % (sB, sB, sW))
a('s_mul_i32 s%d, s%d, %d' % (sA, sPAIR, L.XB[1] - L.XB[0]))
a('s_add_u32 s%d, s%d, %d' % (sA, sA, L.XB[0]))
a('s_mul_i32 s%d, s%d, 14336' % (sCc, sB))
a('s_add_u32 s%d, s%d, s%d' % (sA, sA, sCc))
a('s_mul_i32 s%d, s%d, 14336' % (sCc, sW))
a('s_add_u32 s%d, s%d, %d' % (sCc, sCc, L.L_R2))
for q in range(4):
    a('s_mov_b32 m0, s%d' % sCc)
    for k in range(4 if q < 3 else 2):
        a('buffer_load_dwordx4 v1, %s, s%d offen offset:%d sc1 lds' % (srd(S_WS), sA, 1024 * k))
    if q < 3:
        a('s_add_u32 s%d, s%d, 4096' % (sA, sA))
        a('s_add_u32 s%d, s%d, 4096' % (sCc, sCc))
a('s_mul_i32 s%d, s%d, %d' % (sA, sPAIR, L.SB[1] - L.SB[0]))
a('s_add_u32 s%d, s%d, %d' % (sA, sA, L.SB[0]))
a('s_mul_i32 s%d, s%d, 1792' % (sCc, sB))
a('s_add_u32 s%d, s%d, s%d' % (sA, sA, sCc))
a('v_and_b32 v%d, 15, v0' % V_TOK)
a('v_lshlrev_b32 v240, 3, v%d' % V_TOK)
a('v_lshl_add_u32 v240, v%d, 7, v240' % V_G)
a('v_mov_b32 v242, 0x%x' % INV)
a('v_cmp_lt_u32 vcc, 1, v%d' % V_G)
a('v_cndmask_b32 v241, 0, v242, vcc')
a('v_or_b32 v241, v241, v240')
for i in range(4):
    a('buffer_load_dwordx2 %s, v%d, %s, s%d offen offset:%d sc1' %
      (vr(CSTR + 2 * i, 2), 241 if i == 3 else 240, srd(S_WS), sA, 512 * i))
a('s_waitcnt vmcnt(0)')
r = CSTR
for c_ in range(2):
    a('v_add_f32 v%d, v%d, v%d' % (r + c_, r + c_, r + 2 + c_))
    a('v_add_f32 v%d, v%d, v%d' % (r + 4 + c_, r + 4 + c_, r + 6 + c_))
    a('v_add_f32 v%d, v%d, v%d' % (r + c_, r + c_, r + 4 + c_))
for x in xg_reduce(r, r + 2) + xg_reduce(r + 1, r + 3) + stats_finish(r, r + 1, r + 2, True):
    a(x)
a('s_lshl_b32 s%d, s%d, 7' % (sA, sW))
a('s_add_u32 s%d, s%d, %d' % (sA, sA, L.L_STC))
a('v_lshl_add_u32 v240, v%d, 3, s%d' % (V_TOK, sA))
a('s_mov_b64 exec, 0xffff')
a('ds_write_b64 v240, %s' % vr(r, 2))
a('s_mov_b64 exec, -1')
a('s_waitcnt lgkmcnt(0)')
a('s_barrier')
stamp()
a('v_add_u32 v252, %d, v1' % L.L_R2)
a('v_lshlrev_b32 v240, 3, v%d' % V_TOK)
a('v_add_u32 v240, %d, v240' % L.L_STC)
for t in range(4):
    a('ds_read_b64 %s, v240 offset:%d' % (vr(CMR + 2 * t, 2), 128 * t))


def c_xread(u):
    b = CX + 16 * (u & 1)
    return ['ds_read_b128 %s, v252 offset:%d' % (vr(b + 4 * t), (t * 14 + u) * 1024) for t in range(4)]


for x in c_xread(0):
    a(x)
wm = {}
for u in range(14):
    if u >= NRC:
        a.wait_vm(wm[u])
    a('s_waitcnt lgkmcnt(0)')
    ws_ = CW + (u % NRC) * 16
    xb = CX + 16 * (u & 1)
    mem = c_xread(u + 1) if u < 13 else []
    k = 0
    for tile in range(4):
        for t in range(4):
            r = CACC + (tile * 4 + t) * 4
            a('v_mfma_f32_16x16x32_bf16 %s, %s, %s, %s' % (vr(r), vr(ws_ + 4 * t), vr(xb + 4 * tile), '0' if u == 0 else vr(r)))
            if k < len(mem):
                a(mem[k])
            k += 1
    if u + NRC < 14:
        for x in c_wload(u + NRC):
            a(x)
        wm[u + NRC] = a.vm_mark()
stamp()
for t in range(4):
    for p in range(2):
        a('v_lshlrev_b32 v%d, 16, v%d' % (CB1 + 4 * t + 2 * p, CB1R + 2 * t + p))
        a('v_and_b32 v%d, 0xffff0000, v%d' % (CB1 + 4 * t + 2 * p + 1, CB1R + 2 * t + p))
GA = 2.0 * 0.7978845608028654 * 1.4426950408889634
GB = GA * 0.044715
a('s_mov_b32 s%d, %s' % (sO + 0, f2h(-GA)))
a('s_mov_b32 s%d, %s' % (sO + 1, f2h(-GA)))
a('s_mov_b32 s%d, %s' % (sO + 2, f2h(-GB)))
a('s_mov_b32 s%d, %s' % (sO + 3, f2h(-GB)))
a('s_mul_i32 s%d, s%d, %d' % (sA, sPAIR, L.H[1] - L.H[0]))
a('s_add_u32 s%d, s%d, %d' % (sA, sA, L.H[0]))
a('s_mul_i32 s%d, s%d, %d' % (sB, sG, 4 * 56 * 1024))
a('s_add_u32 s%d, s%d, s%d' % (sA, sA, sB))
a('s_lshl_b32 s%d, s%d, 2' % (sB, sJ))
a('s_add_u32 s%d, s%d, s%d' % (sB, sB, sW))
a('s_lshl_b32 s%d, s%d, 11' % (sB, sB))
a('s_add_u32 s%d, s%d, s%d' % (sA, sA, sB))
GT = 66
a('v_mov_b32 v%d, s%d' % (GT + 30, sO + 0))
a('v_mov_b32 v%d, s%d' % (GT + 31, sO + 0))
for tile in range(4):
    m, rr = CMR + 2 * tile, CMR + 2 * tile + 1
    for pp in range(2):
        hf = GT + 16 + 4 * ((tile * 2 + pp) & 1)
        for k in range(2):
            t = 2 * pp + k
            for p in range(2):
                z = CACC + (tile * 4 + t) * 4 + 2 * p
                t0 = GT + 2 * ((k * 2 + p) & 3)
                t1 = GT + 8 + 2 * ((k * 2 + p) & 3)
                a('v_pk_fma_f32 %s, %s, %s, %s op_sel_hi:[1,0,1] neg_lo:[0,1,0] neg_hi:[0,1,0]' %
                  (vr(z, 2), vr(CCS + 4 * t + 2 * p, 2), vr(m, 2), vr(z, 2)))
                a('v_pk_fma_f32 %s, %s, %s, %s op_sel:[0,1,0] op_sel_hi:[1,1,1]' %
                  (vr(z, 2), vr(z, 2), vr(m, 2), vr(CB1 + 4 * t + 2 * p, 2)))
                a('v_pk_mul_f32 %s, %s, %s' % (vr(t0, 2), vr(z, 2), vr(z, 2)))
                a('v_pk_fma_f32 %s, %s, %s, %s' % (vr(t0, 2), vr(t0, 2), sp(sO + 2), vr(GT + 30, 2)))
                a('v_pk_mul_f32 %s, %s, %s' % (vr(t0, 2), vr(t0, 2), vr(z, 2)))
                a('v_exp_f32 v%d, v%d' % (t0, t0))
                a('v_exp_f32 v%d, v%d' % (t0 + 1, t0 + 1))
                a('v_pk_add_f32 %s, %s, 1.0 op_sel_hi:[1,0]' % (vr(t0, 2), vr(t0, 2)))
                a('v_rcp_f32 v%d, v%d' % (t0, t0))
                a('v_rcp_f32 v%d, v%d' % (t0 + 1, t0 + 1))
                a('v_pk_mul_f32 %s, %s, %s' % (vr(t0, 2), vr(t0, 2), vr(z, 2)))
                a('v_cvt_pk_bf16_f32 v%d, v%d, v%d' % (hf + 2 * k + p, t0, t0 + 1))
        a('buffer_store_dwordx4 %s, v1, %s, s%d offen offset:%d sc1' % (vr(hf), srd(S_WS), sA, 1024 * pp))
    if tile < 3:
        a('s_add_u32 s%d, s%d, %d' % (sA, sA, 56 * 1024))
a('s_mul_i32 s%d, s%d, %d' % (sA, sPAIR, L.FC[1] - L.FC[0]))
a('s_add_u32 s%d, s%d, %d' % (sA, sA, L.FC[0]))
a('s_lshl_b32 s%d, s%d, 5' % (sB, sG))
a('s_lshl_b32 s%d, s%d, 2' % (sCc, sJ))
a('s_add_u32 s%d, s%d, s%d' % (sB, sB, sCc))
a('s_add_u32 s%d, s%d, s%d' % (sB, sB, sW))
a('s_lshl_b32 s%d, s%d, 2' % (sB, sB))
a('s_add_u32 s%d, s%d, s%d' % (sA, sA, sB))
a('v_mov_b32 v2, s%d' % sA)
set_flags(2, 1)
stamp()

DH, DACC, DRD, DTMP = 2, 114, 178, 210
a('s_cmp_eq_u32 s%d, 0' % sPAIR)
a('s_cbranch_scc0 L_d_start')
wd_bases()
wd_loads(*WD_CH[2])
a.label('L_d_start')
a('s_mul_i32 s%d, s%d, %d' % (sA, sPAIR, L.FC[1] - L.FC[0]))
a('s_add_u32 s%d, s%d, %d' % (sA, sA, L.FC[0]))
a('s_lshl_b32 s%d, s%d, 7' % (sB, sG))
a('s_add_u32 s%d, s%d, s%d' % (sA, sA, sB))
a('v_lshl_add_u32 v240, v0, 2, s%d' % sA)
a('s_mul_i32 s%d, s%d, 7' % (sB, sW))
a('s_lshl_b32 s%d, 0x7f, s%d' % (sMK, sB))
a('s_mov_b32 s%d, 0' % (sMK + 1))
poll(240)
stamp()
a('s_mul_i32 s%d, s%d, %d' % (sA, sPAIR, L.H[1] - L.H[0]))
a('s_add_u32 s%d, s%d, %d' % (sA, sA, L.H[0]))
a('s_mul_i32 s%d, s%d, %d' % (sB, sG, 4 * 56 * 1024))
a('s_add_u32 s%d, s%d, s%d' % (sA, sA, sB))
a('s_mul_i32 s%d, s%d, %d' % (sB, sW, 14 * 1024))
a('s_add_u32 s%d, s%d, s%d' % (sO, sA, sB))
for t in range(4):
    if t:
        a('s_add_u32 s%d, s%d, %d' % (sO + 4 * t, sO + 4 * (t - 1), 56 * 1024))
    for q in range(1, 4):
        a('s_add_u32 s%d, s%d, %d' % (sO + 4 * t + q, sO + 4 * t, 4096 * q))


def d_hload(tile, kk):
    return ('buffer_load_dwordx4 %s, v1, %s, s%d offen offset:%d sc1' %
            (vr(DH + ((tile & 1) * 14 + kk) * 4), srd(S_WS), sO + 4 * tile + (kk >> 2), 1024 * (kk & 3)))


hm = {}
for tile in range(2):
    for kk in range(14):
        a(d_hload(tile, kk))
        hm[(tile, kk)] = a.vm_mark()
red_addrs()
a('s_barrier')
for st in range(2):
    for tt in range(2):
        tile = 2 * st + tt
        for kk in range(14):
            if kk % 2 == 0:
                a.wait_vm(hm[(tile, min(kk + 1, 13))])
            for t in range(4):
                r = DACC + (tile * 4 + t) * 4
                a('v_mfma_f32_16x16x32_bf16 %s, %s, %s, %s' %
                  (vr(r), ar((kk * 4 + t) * 4), vr(DH + ((tile & 1) * 14 + kk) * 4), '0' if kk == 0 else vr(r)))
            if tile < 2:
                a(d_hload(tile + 2, kk))
                hm[(tile + 2, kk)] = a.vm_mark()
    for x in reduce_epilogue(DACC + st * 32, st, True, DRD):
        a(x)
    a('s_waitcnt lgkmcnt(0)')
    a('s_barrier')
stamp()


def d_out_store(st):
    if st == 0:
        owner_index()
        a('s_mul_i32 s%d, s%d, 14336' % (sO + 0, sB))
        a('s_lshl_b32 s%d, s%d, 6' % (sA, sA))
        a('s_add_u32 s%d, s%d, s%d' % (sO + 0, sO + 0, sA))
        a('v_and_b32 v%d, 15, v0' % V_TOK)
        a('v_lshrrev_b32 v%d, 4, v0' % V_G)
        a('v_mul_u32_u24 v240, 896, v%d' % V_TOK)
        a('v_lshl_add_u32 v240, v%d, 3, v240' % V_G)
    else:
        a('s_add_u32 s%d, s%d, %d' % (sO + 0, sO + 0, 2 * 14336))
    a('buffer_store_dwordx2 %s, v240, %s, s%d offen' % (vr(DRD, 2), srd(S_OUT), sO + 0))
    a('buffer_store_dwordx2 %s, v240, %s, s%d offen offset:32' % (vr(DRD + 2, 2), srd(S_OUT), sO + 0))


a('s_cmp_eq_u32 s%d, 0' % sPAIR)
a('s_cbranch_scc0 L_d_final')
for st in range(2):
    owner_finish(st, True, DRD, DTMP)
    publish_x((L.XA[1], 0), (L.SA[1], 0), (L.FX[1], 0), st, DRD, DTMP, None)
publish_flags()
stamp()
a('s_branch L_next_pair')
a.label('L_d_final')
for st in range(2):
    owner_finish(st, True, DRD, DTMP)
    d_out_store(st)
    a('s_nop 1')
stamp()
a.label('L_next_pair')
a('s_add_u32 s%d, s%d, 1' % (sPAIR, sPAIR))
a('s_cmp_lt_u32 s%d, 2' % sPAIR)
a('s_cbranch_scc1 L_pair')

a('s_cmp_eq_u32 s2, 0')
a('s_cbranch_scc0 L_noepoch')
a('s_cmp_eq_u32 s%d, 0' % sW)
a('s_cbranch_scc0 L_noepoch')
a('buffer_load_dword v2, off, %s, 0 sc1' % srd(S_WS))
a('s_waitcnt vmcnt(0)')
a('v_add_u32 v2, 1, v2')
a('s_mov_b64 exec, 1')
a('buffer_store_dword v2, off, %s, 0 sc1' % srd(S_WS))
a('s_mov_b64 exec, -1')
a.label('L_noepoch')
if DIAG:
    stamp()
    a('s_mov_b32 s%d, 63' % sSTI)
    a('s_lshl_b64 exec, 1, s%d' % sSTI)
    a('v_mov_b32 v%d, s%d' % (V_STAMP, sERR))
    a('s_mov_b64 exec, -1')
    a('s_lshl_b32 s%d, s2, 2' % sA)
    a('s_add_u32 s%d, s%d, s%d' % (sA, sA, sW))
    a('s_lshl_b32 s%d, s%d, 8' % (sA, sA))
    a('v_lshlrev_b32 v2, 2, v0')
    a('s_add_u32 s%d, s%d, %d' % (sA, sA, L.WS_USED))
    a('s_mov_b32 s%d, 0x%x' % (S_WS + 2, L.WS_USED + 256 * 1024))
    a('buffer_store_dword v%d, v2, %s, s%d offen' % (V_STAMP, srd(S_WS), sA))
a.label('L_end')
a('s_endpgm')

a.finalize()
body = a.text()

hdr = open(__file__.rsplit('/', 1)[0] + '/header.txt').read() if '/' in __file__ else open('header.txt').read()
out = hdr + '; @launch grid=(256,1,1) block=(256,1,1) lds=%d\n' % L.LDS_BYTES
out += '.amdgcn_target "amdgcn-amd-amdhsa--gfx950"\n.text\n.globl %s_kernel\n.p2align 8\n.type %s_kernel,@function\n%s_kernel:\n' % (NAME, NAME, NAME)
out += body
out += '''.section .rodata,"a"
.p2align 6
.amdhsa_kernel %s_kernel
  .amdhsa_next_free_vgpr 512
  .amdhsa_next_free_sgpr 102
  .amdhsa_accum_offset 256
  .amdhsa_group_segment_fixed_size 0
  .amdhsa_kernarg_size 88
  .amdhsa_user_sgpr_count 2
  .amdhsa_user_sgpr_kernarg_segment_ptr 1
  .amdhsa_system_sgpr_workgroup_id_x 1
.end_amdhsa_kernel
''' % NAME
sys.stdout.write(out)
```

```python
import struct
import sys
from asmlib import Asm
import layout as L

NAME = 'interleave_layers__sliding_local_dilated__mixer_channel_mlp__prompt'
DIAG = '--diag' in sys.argv
NOFAST = '--nofast' in sys.argv
SPIN_LIMIT = 200000
INV = 0x80000000

a = Asm()

sXCC = 3
S_WS, S_TMP, S_B1, S_OUT = 4, 8, 12, 16
P_X, P_WQKV, P_WO, P_BX, P_W1, P_B1, P_W2, P_B2, P_OUT, P_DBG, P_WSP = 20, 22, 24, 26, 28, 30, 32, 34, 36, 38, 40
sS, sC, sG, sJ, sW, sT, sPAIR, sSPIN = 42, 43, 44, 45, 46, 47, 48, 49
sM1 = 50
sM2 = 58
sM0 = 66
sO = 74
sA, sB, sCc, sD = 90, 91, 92, 93
sMK = 94
sTS = 96
sGT = 98
sERR = 99
sSTI = 100
sFAST = 101


def srd(n):
    return 's[%d:%d]' % (n, n + 3)


def vr(n, k=4):
    return 'v[%d:%d]' % (n, n + k - 1)


def ar(n, k=4):
    return 'a[%d:%d]' % (n, n + k - 1)


def sp(n):
    return 's[%d:%d]' % (n, n + 1)


def f2h(x):
    return '0x%08x' % struct.unpack('<I', struct.pack('<f', x))[0]


V_T, V_STAMP = 254, 255
V_TOK, V_G = 250, 251
MFMA = 'v_mfma_f32_16x16x32_bf16'


def stamp():
    if not DIAG:
        return
    a('s_memtime %s' % sp(sTS))
    a('s_waitcnt lgkmcnt(0)')
    a('s_lshl_b64 exec, 1, s%d' % sSTI)
    a('v_mov_b32 v%d, s%d' % (V_STAMP, sTS))
    a('s_mov_b64 exec, -1')
    a('s_add_u32 s%d, s%d, 1' % (sSTI, sSTI))


lab_no = [0]


def newlab(p):
    lab_no[0] += 1
    return '%s_%d' % (p, lab_no[0])


def build_srd(dst, ptr, nbytes):
    a('s_mov_b32 s%d, s%d' % (dst, ptr))
    a('s_and_b32 s%d, s%d, 0xffff' % (dst + 1, ptr + 1))
    a('s_mov_b32 s%d, 0x%x' % (dst + 2, nbytes))
    a('s_mov_b32 s%d, 0x20000' % (dst + 3))


def poll(voff):
    lab, done = newlab('L_poll'), newlab('L_polldone')
    a('s_mov_b64 exec, %s' % sp(sMK))
    a('s_mov_b32 s%d, 0' % sSPIN)
    a.label(lab)
    a('buffer_load_dword v253, v%d, %s, 0 offen sc1' % (voff, srd(S_WS)))
    a('s_waitcnt vmcnt(0)')
    a('v_cmp_ne_u32 vcc, s%d, v253' % sT)
    a('s_nop 4')
    a('s_cbranch_vccz %s' % done)
    a('s_add_u32 s%d, s%d, 1' % (sSPIN, sSPIN))
    a('s_cmp_lt_u32 s%d, %d' % (sSPIN, SPIN_LIMIT))
    a('s_cbranch_scc1 %s' % lab)
    a('s_add_u32 s%d, s%d, 1' % (sERR, sERR))
    a.label(done)
    a('s_mov_b64 exec, -1')


def store(fmt, cond=None):
    if cond is None or NOFAST:
        a(fmt + ' sc1')
        return
    slow, done = newlab('L_slow'), newlab('L_st')
    a('s_cmp_eq_u32 s%d, 0' % cond)
    a('s_cbranch_scc1 %s' % slow)
    a(fmt)
    a('s_branch %s' % done)
    a.label(slow)
    a(fmt + ' sc1')
    a.vm_issued -= 1
    a.label(done)


def set_flags(voff, nlanes, cond=None, val=V_T):
    a('s_waitcnt vmcnt(0)')
    a('s_mov_b64 exec, %d' % ((1 << nlanes) - 1))
    store('buffer_store_dword v%d, v%d, %s, 0 offen' % (val, voff, srd(S_WS)), cond)
    a('s_mov_b64 exec, -1')


def xg_reduce(x, t, op='v_add_f32'):
    return ['v_mov_b32 v%d, v%d' % (t, x),
            'v_permlane32_swap_b32 v%d, v%d' % (x, t),
            '%s v%d, v%d, v%d' % (op, x, x, t),
            'v_mov_b32 v%d, v%d' % (t, x),
            'v_permlane16_swap_b32 v%d, v%d' % (x, t),
            '%s v%d, v%d, v%d' % (op, x, x, t)]


EPS = 1e-5


def stats_finish(s1, s2, t, double_ln):
    o = ['v_mul_f32 v%d, %s, v%d' % (s1, f2h(1.0 / 448), s1),
         'v_mul_f32 v%d, %s, v%d' % (s2, f2h(1.0 / 448), s2),
         'v_fma_f32 v%d, -v%d, v%d, v%d' % (s2, s1, s1, s2),
         'v_max_f32 v%d, 0, v%d' % (s2, s2),
         'v_add_f32 v%d, %s, v%d' % (t, f2h(EPS), s2),
         'v_rsq_f32 v%d, v%d' % (t, t)]
    if not double_ln:
        o += ['v_mov_b32 v%d, v%d' % (s2, t)]
    else:
        o += ['v_mul_f32 v%d, v%d, v%d' % (s2, s2, t),
              'v_fmaak_f32 v%d, v%d, v%d, %s' % (s2, s2, t, f2h(EPS)),
              'v_rsq_f32 v%d, v%d' % (s2, s2),
              'v_mul_f32 v%d, v%d, v%d' % (s2, s2, t)]
    return o


def pair_base(dst, arr):
    a('s_mul_i32 s%d, s%d, %d' % (dst, sPAIR, arr[1] - arr[0]))
    a('s_add_u32 s%d, s%d, %d' % (dst, dst, arr[0]))


def quarter_offsets(n, stride):
    for t in range(n):
        if t:
            a('s_add_u32 s%d, s%d, %d' % (sO + 4 * t, sO + 4 * (t - 1), stride))
        for q in range(1, 4):
            a('s_add_u32 s%d, s%d, %d' % (sO + 4 * t + q, sO + 4 * t, 4096 * q))


a('s_cmp_ge_u32 s2, 256')
a('s_cbranch_scc1 L_end')
a('s_load_dwordx16 s[20:35], s[0:1], 0')
a('s_load_dwordx4 s[36:39], s[0:1], 64')
a('s_load_dwordx2 s[40:41], s[0:1], 80')
a('s_getreg_b32 s%d, hwreg(HW_REG_XCC_ID, 0, 4)' % sXCC)
a('s_and_b32 s%d, s2, 7' % sA)
a('s_lshr_b32 s%d, s2, 3' % sB)
a('s_lshr_b32 s%d, s%d, 4' % (sCc, sB))
a('s_lshl_b32 s%d, s%d, 1' % (sS, sA))
a('s_add_u32 s%d, s%d, s%d' % (sS, sS, sCc))
a('s_and_b32 s%d, s%d, 15' % (sC, sB))
a('s_lshr_b32 s%d, s%d, 3' % (sA, sC))
a('s_lshl_b32 s%d, s%d, 1' % (sG, sS))
a('s_add_u32 s%d, s%d, s%d' % (sG, sG, sA))
a('s_and_b32 s%d, s%d, 7' % (sJ, sC))
a('s_mov_b32 s%d, 0' % sERR)
a('v_lshrrev_b32 v2, 6, v0')
a('v_and_b32 v0, 63, v0')
a('v_readfirstlane_b32 s%d, v2' % sW)
a('v_lshlrev_b32 v1, 4, v0')
if DIAG:
    a('v_mov_b32 v%d, 0' % V_STAMP)
    a('s_mov_b32 s%d, 0' % sSTI)
stamp()
a('v_and_b32 v%d, 15, v0' % V_TOK)
a('v_lshrrev_b32 v%d, 4, v0' % V_G)
sSTG = sO + 15
a('s_lshl_b32 s%d, s%d, 14' % (sSTG, sW))
a('s_add_u32 s%d, s%d, %d' % (sSTG, sSTG, L.L_R2))
a('s_waitcnt lgkmcnt(0)')
build_srd(S_WS, P_WSP, L.WS_USED)
a('buffer_load_dword v%d, off, %s, 0 sc1' % (V_T, srd(S_WS)))

build_srd(S_TMP, P_X, 2048 * 896)
a('v_mul_u32_u24 v2, 896, v%d' % V_TOK)
a('v_lshl_add_u32 v2, v%d, 3, v2' % V_G)
a('s_lshr_b32 s%d, s%d, 1' % (sA, sC))
a('s_lshl_b32 s%d, s%d, 3' % (sB, sS))
a('s_add_u32 s%d, s%d, s%d' % (sO + 0, sA, sB))
a('s_and_b32 s%d, s%d, 1' % (sA, sC))
a('s_mul_i32 s%d, s%d, 7' % (sA, sA))
a('s_add_u32 s%d, s%d, s%d' % (sO + 1, sA, sW))
a('s_cmp_lt_u32 s%d, 3' % sW)
a('s_cselect_b32 s%d, 0, 0x%x' % (sO + 2, INV))
a('s_mul_i32 s%d, s%d, 14336' % (sA, sO + 0))
a('s_lshl_b32 s%d, s%d, 6' % (sB, sO + 1))
a('s_add_u32 s%d, s%d, s%d' % (sA, sA, sB))
a('v_or_b32 v3, s%d, v2' % (sO + 2))
a('buffer_load_dwordx2 v[10:11], v2, %s, s%d offen' % (srd(S_TMP), sA))
a('buffer_load_dwordx2 v[12:13], v2, %s, s%d offen offset:32' % (srd(S_TMP), sA))
a('buffer_load_dwordx2 v[14:15], v3, %s, s%d offen offset:256' % (srd(S_TMP), sA))
a('buffer_load_dwordx2 v[16:17], v3, %s, s%d offen offset:288' % (srd(S_TMP), sA))

build_srd(S_TMP, P_WQKV, 448 * 2688)
qMAT, qU, qINV = sO + 3, sO + 4, sO + 5
a('s_lshl_b32 s%d, s%d, 4' % (sA, sW))
a('s_add_u32 s%d, s%d, s%d' % (sA, sA, sS))
a('s_cmp_lt_u32 s%d, 42' % sA)
a('s_cselect_b32 s%d, 0, 0x%x' % (qINV, INV))
a('s_min_u32 s%d, s%d, 41' % (sA, sA))
a('s_mul_i32 s%d, s%d, 4682' % (qMAT, sA))
a('s_lshr_b32 s%d, s%d, 16' % (qMAT, qMAT))
a('s_mul_i32 s%d, s%d, 14' % (sB, qMAT))
a('s_sub_u32 s%d, s%d, s%d' % (qU, sA, sB))
a('s_mul_i32 s%d, s%d, %d' % (sA, qU, 32 * 2688))
a('s_mul_i32 s%d, s%d, 896' % (sB, qMAT))
a('s_add_u32 s%d, s%d, s%d' % (sA, sA, sB))
a('s_mul_i32 s%d, s%d, 56' % (sB, sC))
a('s_add_u32 s%d, s%d, s%d' % (sA, sA, sB))
a('v_lshrrev_b32 v4, 2, v0')
a('v_mul_u32_u24 v4, 2688, v4')
a('v_and_b32 v5, 3, v0')
a('v_lshl_add_u32 v4, v5, 4, v4')
a('v_or_b32 v4, s%d, v4' % qINV)
a('s_mov_b32 m0, s%d' % sSTG)
a('s_add_u32 s%d, s%d, %d' % (sB, sA, 16 * 2688))
a('buffer_load_dwordx4 v4, %s, s%d offen lds' % (srd(S_TMP), sA))
a('s_add_u32 m0, s%d, 1024' % sSTG)
a('s_nop 0')
a('buffer_load_dwordx4 v4, %s, s%d offen lds' % (srd(S_TMP), sB))

bINV, bDST, bSTR = sO + 6, sO + 7, sO + 8
a('s_lshl_b32 s%d, s%d, 5' % (sA, sW))
a('s_add_u32 s%d, s%d, s%d' % (sA, sA, sG))
a('s_cmp_lt_u32 s%d, 72' % sA)
a('s_cselect_b32 s%d, 0, 0x%x' % (bINV, INV))
a('s_cmp_eq_u32 s%d, 7' % sJ)
a('s_cselect_b32 s%d, 0x%x, s%d' % (bINV, INV, bINV))
a('s_min_u32 s%d, s%d, 71' % (sA, sA))
a('s_min_u32 s%d, s%d, 6' % (sD, sJ))
a('s_cmp_lt_u32 s%d, 16' % sA)
a('s_cselect_b32 s%d, s%d, s%d' % (S_TMP, P_WO, P_W2))
a('s_cselect_b32 s%d, s%d, s%d' % (S_TMP + 1, P_WO + 1, P_W2 + 1))
a('s_mov_b32 s%d, 0x%x' % (S_TMP + 2, 1792 * 896))
a('s_cselect_b32 s%d, 0x%x, s%d' % (S_TMP + 2, 448 * 896, S_TMP + 2))
a('s_cselect_b32 s%d, 28, 32' % sB)
a('s_cselect_b32 s%d, 0, 16' % sCc)
a('s_mov_b32 s%d, %d' % (bSTR, 56 * 1024))
a('s_cselect_b32 s%d, %d, s%d' % (bSTR, 16 * 1024, bSTR))
a('s_mov_b32 s%d, %d' % (bDST, L.WD))
a('s_cselect_b32 s%d, %d, s%d' % (bDST, L.WB, bDST))
a('s_cselect_b32 s%d, 0x%x, 0' % (sO + 9, INV))
a('s_and_b32 s%d, s%d, 0xffff' % (S_TMP + 1, S_TMP + 1))
a('s_mov_b32 s%d, 0x20000' % (S_TMP + 3))
a('s_sub_u32 s%d, s%d, s%d' % (sA, sA, sCc))
a('s_lshl_b32 s%d, s%d, 10' % (sCc, sA))
a('s_add_u32 s%d, s%d, s%d' % (bDST, bDST, sCc))
a('s_lshl_b32 s%d, s%d, 2' % (sCc, sD))
a('s_mul_i32 s%d, s%d, s%d' % (sCc, sCc, bSTR))
a('s_add_u32 s%d, s%d, s%d' % (bDST, bDST, sCc))
a('s_mul_i32 s%d, s%d, s%d' % (sA, sA, sB))
a('s_mul_i32 s%d, s%d, 896' % (sA, sA))
a('s_lshl_b32 s%d, s%d, 7' % (sB, sD))
a('s_add_u32 s%d, s%d, s%d' % (sA, sA, sB))
a('v_lshrrev_b32 v6, 3, v0')
a('v_mul_u32_u24 v6, 896, v6')
a('v_and_b32 v5, 7, v0')
a('v_lshl_add_u32 v6, v5, 4, v6')
a('v_or_b32 v6, s%d, v6' % bINV)
a('v_cmp_lt_u32 vcc, 31, v0')
a('v_mov_b32 v7, s%d' % (sO + 9))
a('v_cndmask_b32 v7, 0, v7, vcc')
a('v_or_b32 v7, v7, v6')
for q in range(4):
    a('s_add_u32 m0, s%d, %d' % (sSTG, 2048 + 1024 * q))
    if q:
        a('s_add_u32 s%d, s%d, %d' % (sA, sA, 8 * 896))
    else:
        a('s_nop 0')
    a('buffer_load_dwordx4 v%d, %s, s%d offen lds' % (7 if q == 3 else 6, srd(S_TMP), sA))

build_srd(S_TMP, P_W1, 448 * 3584)
cINV, cNT = sO + 10, sO + 11
a('s_cmp_lt_u32 s%d, 16' % sG)
a('s_cselect_b32 s%d, 0, 0x%x' % (cINV, INV))
a('s_cmp_eq_u32 s%d, 7' % sJ)
a('s_cselect_b32 s%d, 0x%x, s%d' % (cINV, INV, cINV))
a('s_min_u32 s%d, s%d, 6' % (sD, sJ))
a('s_lshl_b32 s%d, s%d, 4' % (cNT, sD))
a('s_and_b32 s%d, s%d, 15' % (sA, sG))
a('s_add_u32 s%d, s%d, s%d' % (cNT, cNT, sA))
a('s_cmp_lt_u32 s%d, 2' % sW)
a('s_cselect_b32 s%d, s%d, 0x%x' % (sO + 12, cINV, INV))
a('v_lshrrev_b32 v8, 1, v0')
a('v_mul_u32_u24 v8, 3584, v8')
a('v_and_b32 v5, 1, v0')
a('v_lshl_add_u32 v8, v5, 4, v8')
a('v_or_b32 v9, s%d, v8' % (sO + 12))
a('v_or_b32 v8, s%d, v8' % cINV)
a('s_lshl_b32 s%d, s%d, 5' % (sB, cNT))
for i in range(4):
    a('s_add_u32 s%d, s%d, %d' % (sA, sW, 4 * i))
    a('s_min_u32 s%d, s%d, 13' % (sA, sA))
    a('s_mul_i32 s%d, s%d, %d' % (sA, sA, 32 * 3584))
    a('s_add_u32 s%d, s%d, s%d' % (sA, sA, sB))
    a('s_add_u32 m0, s%d, %d' % (sSTG, 6144 + 1024 * i))
    a('s_nop 0')
    a('buffer_load_dwordx4 v%d, %s, s%d offen lds' % (9 if i == 3 else 8, srd(S_TMP), sA))
build_srd(S_B1, P_B1, 1792 * 2)
build_srd(S_OUT, P_OUT, 2048 * 896)
a('v_bfe_u32 v18, v0, 2, 2')
a('v_lshl_add_u32 v18, v%d, 2, v18' % V_G)
a('v_and_b32 v19, 3, v0')
a('v_lshlrev_b32 v19, 3, v19')
a('s_waitcnt vmcnt(8)')
stamp()

a('s_mov_b32 s%d, 0x9E3779B1' % sA)
a('v_mul_lo_u32 v%d, v%d, s%d' % (V_T, V_T, sA))
a('v_add_u32 v%d, 0x7F4A7C15, v%d' % (V_T, V_T))
a('v_and_b32 v%d, -16, v%d' % (V_T, V_T))
a('v_lshl_add_u32 v20, v18, 6, v19')
a('v_add_u32 v20, s%d, v20' % sSTG)
for hf in range(2):
    a('ds_read_b64_tr_b16 %s, v20 offset:%d' % (vr(24 + 4 * hf, 2), 32 * hf))
    a('ds_read_b64_tr_b16 %s, v20 offset:%d' % (vr(26 + 4 * hf, 2), 32 * hf + 1024))
a('v_readfirstlane_b32 s%d, v%d' % (sT, V_T))
a('s_mul_i32 s%d, s%d, 14' % (sA, sO + 0))
a('s_add_u32 s%d, s%d, s%d' % (sA, sA, sO + 1))
a('s_lshl_b32 s%d, s%d, 10' % (sB, sA))
a('s_add_u32 s%d, s%d, %d' % (sB, sB, L.XA[0]))
a('v_or_b32 v3, s%d, v1' % (sO + 2))
a('buffer_store_dwordx4 v[10:13], v1, %s, s%d offen sc1' % (srd(S_WS), sB))
a('s_add_u32 s%d, s%d, 4096' % (sB, sB))
a('buffer_store_dwordx4 v[14:17], v3, %s, s%d offen sc1' % (srd(S_WS), sB))
a('v_cmp_gt_u32 vcc, 12, v%d' % V_TOK)
a('s_mul_i32 s%d, s%d, 84' % (sB, sC))
a('s_mul_i32 s%d, s%d, 28' % (sCc, qMAT))
a('s_add_u32 s%d, s%d, s%d' % (sB, sB, sCc))
a('s_add_u32 s%d, s%d, s%d' % (sB, sB, qU))
a('s_lshl_b32 s%d, s%d, 10' % (sB, sB))
a('s_add_u32 s%d, s%d, %d' % (sB, sB, L.WA))
a('v_or_b32 v4, s%d, v1' % qINV)
a('s_waitcnt lgkmcnt(0)')
for p in range(4):
    a('v_cndmask_b32 v%d, 0, v%d, vcc' % (28 + p, 28 + p))
a('buffer_store_dwordx4 v[24:27], v4, %s, s%d offen sc1' % (srd(S_WS), sB))
a('s_add_u32 s%d, s%d, %d' % (sB, sB, 14 * 1024))
a('buffer_store_dwordx4 v[28:31], v4, %s, s%d offen sc1' % (srd(S_WS), sB))
a('v_mov_b32 v2, 0x3f803f80')
for k in range(2):
    x, s1, s2 = 10 + 4 * k, 110 + 2 * k, 111 + 2 * k
    a('v_mov_b32 v%d, 0' % s1)
    a('v_mov_b32 v%d, 0' % s2)
    for p in range(4):
        a('v_dot2_f32_bf16 v%d, v%d, v2, v%d' % (s1, x + p, s1))
        a('v_dot2_f32_bf16 v%d, v%d, v%d, v%d' % (s2, x + p, x + p, s2))
    for t in xg_reduce(s1, 114) + xg_reduce(s2, 115):
        a(t)
a('s_lshl_b32 s%d, s%d, 7' % (sB, sA))
a('s_add_u32 s%d, s%d, %d' % (sB, sB, L.SA[0]))
a('v_lshlrev_b32 v2, 3, v%d' % V_TOK)
a('v_or_b32 v3, s%d, v2' % (sO + 2))
a('s_mov_b64 exec, 0xffff')
a('buffer_store_dwordx2 v[110:111], v2, %s, s%d offen sc1' % (srd(S_WS), sB))
a('buffer_store_dwordx2 v[112:113], v3, %s, s%d offen offset:512 sc1' % (srd(S_WS), sB))
a('s_mov_b64 exec, -1')
a('s_lshl_b32 s%d, s%d, 4' % (sA, sO + 0))
a('s_add_u32 s%d, s%d, s%d' % (sA, sA, sO + 1))
a('s_lshl_b32 s%d, s%d, 2' % (sA, sA))
a('s_add_u32 s%d, s%d, %d' % (sA, sA, L.FX[0]))
a('v_lshlrev_b32 v2, 4, v0')
a('v_add_u32 v2, s%d, v2' % sA)
a('v_cmp_eq_u32 vcc, 1, v0')
a('v_mov_b32 v3, s%d' % (sO + 2))
a('v_cndmask_b32 v3, 0, v3, vcc')
a('v_or_b32 v2, v2, v3')
a('s_lshl_b32 s%d, s%d, 6' % (sA, sC))
a('s_lshl_b32 s%d, s%d, 2' % (sB, sS))
a('s_add_u32 s%d, s%d, s%d' % (sA, sA, sB))
a('s_add_u32 s%d, s%d, s%d' % (sA, sA, sW))
a('s_lshl_b32 s%d, s%d, 2' % (sA, sA))
a('s_add_u32 s%d, s%d, %d' % (sA, sA, L.FQ))
a('v_mov_b32 v3, s%d' % sA)
a('v_cmp_eq_u32 vcc, 2, v0')
a('v_cndmask_b32 v2, v2, v3, vcc')
a('s_lshl_b32 s%d, s%d, 4' % (sA, sS))
a('s_add_u32 s%d, s%d, s%d' % (sA, sA, sC))
a('s_lshl_b32 s%d, s%d, 2' % (sA, sA))
a('s_add_u32 s%d, s%d, %d' % (sA, sA, L.FXC))
a('s_cmp_eq_u32 s%d, 0' % sW)
a('s_cselect_b32 s%d, s%d, 0x%x' % (sA, sA, INV))
a('v_mov_b32 v3, s%d' % sA)
a('v_cmp_eq_u32 vcc, 3, v0')
a('v_cndmask_b32 v2, v2, v3, vcc')
a('v_or_b32 v3, s%d, v%d' % (sXCC, V_T))
a('v_cndmask_b32 v3, v%d, v3, vcc' % V_T)
set_flags(2, 4, None, 3)
stamp()

a('v_lshl_add_u32 v20, v18, 7, v19')
a('v_add_u32 v20, s%d, v20' % sSTG)
for t in range(4):
    a('ds_read_b64_tr_b16 %s, v20 offset:%d' % (vr(24 + 4 * t, 2), 2048 + 32 * t))
    a('ds_read_b64_tr_b16 %s, v20 offset:%d' % (vr(26 + 4 * t, 2), 2048 + 32 * t + 2048))
a('v_lshl_add_u32 v21, v18, 5, v19')
a('v_add_u32 v21, s%d, v21' % sSTG)
for i in range(4):
    a('ds_read_b64_tr_b16 %s, v21 offset:%d' % (vr(40 + 4 * i, 2), 6144 + 1024 * i))
    a('ds_read_b64_tr_b16 %s, v21 offset:%d' % (vr(42 + 4 * i, 2), 6144 + 1024 * i + 512))
a('v_or_b32 v6, s%d, v1' % bINV)
a('s_waitcnt lgkmcnt(8)')
for t in range(4):
    a('buffer_store_dwordx4 %s, v6, %s, s%d offen sc1' % (vr(24 + 4 * t), srd(S_WS), bDST))
    if t < 3:
        a('s_add_u32 s%d, s%d, s%d' % (bDST, bDST, bSTR))
a('s_mul_i32 s%d, s%d, 14' % (sA, cNT))
a('s_add_u32 s%d, s%d, s%d' % (sA, sA, sW))
a('s_lshl_b32 s%d, s%d, 10' % (sA, sA))
a('s_add_u32 s%d, s%d, %d' % (sA, sA, L.WC))
a('v_or_b32 v8, s%d, v1' % cINV)
a('v_or_b32 v9, s%d, v1' % (sO + 12))
a('v_mov_b32 v2, 0x3f803f80')
a('v_mov_b32 v110, 0')
a('s_waitcnt lgkmcnt(0)')
for i in range(4):
    a('buffer_store_dwordx4 %s, v%d, %s, s%d offen sc1' % (vr(40 + 4 * i), 9 if i == 3 else 8, srd(S_WS), sA))
    a('s_add_u32 s%d, s%d, 4096' % (sA, sA))
for i in range(4):
    for p in range(4):
        a('v_dot2_f32_bf16 v110, v%d, v2, v110' % (40 + 4 * i + p))
for t in xg_reduce(110, 114):
    a(t)
a('s_lshl_b32 s%d, s%d, 6' % (sA, sW))
a('s_add_u32 s%d, s%d, %d' % (sA, sA, L.L_CSR))
a('v_lshlrev_b32 v2, 2, v%d' % V_TOK)
a('v_add_u32 v3, s%d, v2' % sA)
a('ds_write_b32 v3, v110')
a('s_waitcnt lgkmcnt(0)')
a('s_barrier')
a('v_add_u32 v3, %d, v2' % L.L_CSR)
for i in range(4):
    a('ds_read_b32 v%d, v3 offset:%d' % (104 + i, 64 * i))
a('s_lshl_b32 s%d, s%d, 6' % (sB, cNT))
a('s_add_u32 s%d, s%d, %d' % (sB, sB, L.CSC))
a('s_cmp_eq_u32 s%d, 0' % sW)
a('s_cselect_b32 s%d, s%d, 0x%x' % (sA, cINV, INV))
a('v_or_b32 v2, s%d, v2' % sA)
a('s_waitcnt lgkmcnt(0)')
a('v_add_f32 v104, v104, v105')
a('v_add_f32 v106, v106, v107')
a('v_add_f32 v104, v104, v106')
a('s_mov_b64 exec, 0xffff')
a('buffer_store_dword v104, v2, %s, s%d offen sc1' % (srd(S_WS), sB))
a('s_mov_b64 exec, -1')

a('v_and_b32 v2, 1, v%d' % V_TOK)
a('v_lshlrev_b32 v3, 2, v%d' % V_G)
a('v_add_u32 v6, 2, v%d' % V_TOK)
for i in range(4):
    a('v_add_u32 v4, %d, v3' % i)
    a('v_cmp_eq_u32 vcc, %d, v2' % (i & 1))
    a('s_mov_b64 %s, vcc' % sp(sMK))
    a('v_cmp_ge_u32 vcc, v4, v6')
    a('s_and_b64 %s, vcc, %s' % (sp(sM1 + 2 * i), sp(sMK)))
    a('v_cmp_le_u32 vcc, v4, v%d' % V_TOK)
    a('s_and_b64 %s, vcc, %s' % (sp(sM2 + 2 * i), sp(sMK)))
a('s_lshl_b32 s%d, s%d, 3' % (sA, sS))
a('s_lshl_b32 s%d, s%d, 1' % (sB, sW))
a('s_add_u32 s%d, s%d, s%d' % (sGT, sA, sB))
a('s_cmp_eq_u32 s%d, 0' % sGT)
for i in range(4):
    a('s_cselect_b64 %s, 0, %s' % (sp(sM0 + 2 * i), sp(sM1 + 2 * i)))
a('s_mov_b32 s%d, 0' % sPAIR)
a('s_waitcnt vmcnt(0)')
a('s_barrier')
a('s_lshl_b32 s%d, s%d, 5' % (sA, sJ))
a('s_add_u32 s%d, s%d, s%d' % (sA, sA, sG))
a('s_lshl_b32 s%d, s%d, 2' % (sA, sA))
a('s_add_u32 s%d, s%d, %d' % (sA, sA, L.FP))
a('s_cmp_eq_u32 s%d, 0' % sW)
a('s_cselect_b32 s%d, s%d, 0x%x' % (sA, sA, INV))
a('v_mov_b32 v2, s%d' % sA)
set_flags(2, 1)
stamp()


def a_flag_addr(dst):
    pair_base(sA, L.FX)
    a('s_lshl_b32 s%d, s%d, 6' % (sB, sGT))
    a('s_add_u32 s%d, s%d, s%d' % (sA, sA, sB))
    a('s_sub_u32 s%d, s%d, 64' % (sA, sA))
    a('v_lshl_add_u32 v%d, v0, 2, s%d' % (dst, sA))
    a('s_mov_b32 s%d, 0x3fff3fff' % sMK)
    a('s_mov_b32 s%d, 0x3fff' % (sMK + 1))
    a('s_cmp_eq_u32 s%d, 0' % sGT)
    a('s_cselect_b32 s%d, 0x3fff0000, s%d' % (sMK, sMK))


a('s_lshl_b32 s%d, s%d, 8' % (sA, sC))
a('s_add_u32 s%d, s%d, %d' % (sA, sA, L.FQ))
a('v_lshl_add_u32 v2, v0, 2, s%d' % sA)
a_flag_addr(3)
a('s_lshl_b32 s%d, s%d, 6' % (sA, sS))
a('s_add_u32 s%d, s%d, %d' % (sA, sA, L.FXC - 48 * 4))
a('v_lshl_add_u32 v4, v0, 2, s%d' % sA)
a('v_cmp_lt_u32 vcc, 47, v0')
a('v_cndmask_b32 v3, v3, v4, vcc')
a('v_mov_b32 v5, -1')
a('v_mov_b32 v6, -16')
a('v_cndmask_b32 v5, v5, v6, vcc')
a('s_or_b32 s%d, s%d, 0xffff0000' % (sMK + 1, sMK + 1))
a('s_mov_b32 s%d, 0' % sSPIN)
a.label('L_poll0')
a('buffer_load_dword v7, v2, %s, 0 offen sc1' % srd(S_WS))
a('s_mov_b64 exec, %s' % sp(sMK))
a('buffer_load_dword v8, v3, %s, 0 offen sc1' % srd(S_WS))
a('s_waitcnt vmcnt(0)')
a('v_and_b32 v9, v5, v8')
a('v_cmp_ne_u32 vcc, s%d, v9' % sT)
a('s_mov_b64 exec, -1')
a('s_mov_b64 %s, vcc' % sp(sTS))
a('v_cmp_ne_u32 vcc, s%d, v7' % sT)
a('s_or_b64 vcc, vcc, %s' % sp(sTS))
a('s_cbranch_vccz L_poll0_done')
a('s_add_u32 s%d, s%d, 1' % (sSPIN, sSPIN))
a('s_cmp_lt_u32 s%d, %d' % (sSPIN, SPIN_LIMIT))
a('s_cbranch_scc1 L_poll0')
a('s_add_u32 s%d, s%d, 1' % (sERR, sERR))
a.label('L_poll0_done')
a('v_and_b32 v9, 15, v8')
a('v_cmp_ne_u32 vcc, s%d, v9' % sXCC)
a('s_and_b32 s%d, vcc_hi, 0xffff0000' % sA)
a('s_cmp_eq_u32 s%d, 0' % sA)
a('s_cselect_b32 s%d, 1, 0' % sFAST)
stamp()
a('s_mul_i32 s%d, s%d, %d' % (sA, sC, 84 * 1024))
a('s_mul_i32 s%d, s%d, %d' % (sB, sW, 21 * 1024))
a('s_add_u32 s%d, s%d, s%d' % (sA, sA, sB))
a('s_add_u32 s%d, s%d, %d' % (sA, sA, L.WA))
a('s_add_u32 s%d, s%d, %d' % (sB, sB, L.L_WA))
for q in range(6):
    a('s_mov_b32 m0, s%d' % sB)
    a('s_nop 0')
    for k in range(4 if q < 5 else 1):
        a('buffer_load_dwordx4 v1, %s, s%d offen offset:%d sc1 lds' % (srd(S_WS), sA, 1024 * k))
    if q < 5:
        a('s_add_u32 s%d, s%d, 4096' % (sA, sA))
        a('s_add_u32 s%d, s%d, 4096' % (sB, sB))
wa_mark = a.vm_mark()

AQ, AK, AV = 2, 18, 42
WBUF = [66, 90]
XR = 114
STR = 210
SM, SR = 234, 237
NR, LOOK = 8, 4


def a_xload(u):
    slot = u % NR
    return ['buffer_load_dwordx4 %s, v1, %s, s%d offen offset:%d sc1' %
            (vr(XR + (slot * 3 + t) * 4), srd(S_WS), sO + 4 * t + (u >> 2), 1024 * (u & 3)) for t in range(3)]


def a_issue():
    pair_base(sA, L.XA)
    a('s_mul_i32 s%d, s%d, 14336' % (sB, sGT))
    a('s_add_u32 s%d, s%d, s%d' % (sO + 4, sA, sB))
    a('s_add_u32 s%d, s%d, 14336' % (sO + 8, sO + 4))
    a('s_sub_u32 s%d, s%d, 14336' % (sO + 0, sO + 4))
    a('s_cmp_eq_u32 s%d, 0' % sGT)
    a('s_cselect_b32 s%d, s%d, s%d' % (sO + 0, sO + 4, sO + 0))
    for t in range(3):
        for q in range(1, 4):
            a('s_add_u32 s%d, s%d, %d' % (sO + 4 * t + q, sO + 4 * t, 4096 * q))
    marks = {}
    for u in range(LOOK):
        for t in a_xload(u):
            a(t)
        marks[u] = a.vm_mark()
    return marks


a_issue()
a.wait_vm(wa_mark)
a('s_barrier')
stamp()
for p in range(4):
    a('v_mov_b32 v%d, 0x3f803f80' % (4 + p))
a('s_mul_i32 s%d, s%d, %d' % (sB, sW, 14 * 1024))
a('v_add_u32 v2, s%d, v1' % sB)
a('s_cmp_lt_u32 s%d, 2' % sW)
a('s_cselect_b32 s%d, %d, 0' % (sB, 56 * 1024))
a('v_add_u32 v3, s%d, v2' % sB)
for u in range(7):
    for hh in range(2):
        a('ds_read_b128 %s, v2 offset:%d' % (vr(16 + 8 * u + 4 * hh), 1024 * (2 * u + hh)))
for u in range(5):
    for hh in range(2):
        a('ds_read_b128 %s, v3 offset:%d' % (vr(72 + 8 * u + 4 * hh) if u < 5 else '', 1024 * (2 * u + hh)))
a('s_waitcnt lgkmcnt(10)')
for u in range(14):
    a('%s %s, %s, v[4:7], %s' % (MFMA, vr(8 + 4 * (u & 1)) if False else 'v[8:11]', vr(16 + 4 * u), '0' if u == 0 else 'v[8:11]'))
a('s_waitcnt lgkmcnt(0)')
for u in range(10):
    a('%s v[12:15], %s, v[4:7], %s' % (MFMA, vr(72 + 4 * u), '0' if u == 0 else 'v[12:15]'))
for u in range(4):
    a('ds_read_b128 %s, v3 offset:%d' % (vr(16 + 4 * u), 1024 * (10 + u)))
a('s_waitcnt lgkmcnt(0)')
for u in range(4):
    a('%s v[12:15], %s, v[4:7], v[12:15]' % (MFMA, vr(16 + 4 * u)))
a('v_cmp_eq_u32 vcc, 0, v%d' % V_TOK)
a('s_lshl_b32 s%d, s%d, 6' % (sA, sW))
a('s_add_u32 s%d, s%d, %d' % (sA, sA, L.L_CSA))
a('v_lshl_add_u32 v3, v%d, 4, s%d' % (V_G, sA))
a('s_mov_b64 exec, vcc')
a('ds_write_b128 v3, v[8:11]')
a('s_cmp_lt_u32 s%d, 2' % sW)
a('s_cbranch_scc0 L_csa_done')
a('ds_write_b128 v3, v[12:15] offset:256')
a.label('L_csa_done')
a('s_mov_b64 exec, -1')
a('s_waitcnt lgkmcnt(0)')
a('s_barrier')
stamp()
a('s_branch L_a_main')

a.label('L_pair')
a_flag_addr(2)
poll(2)
stamp()
xmark = a_issue()
if DIAG:
    a('s_add_u32 s%d, s%d, 0' % (sSTI, sSTI))
a.label('L_a_main')
pair_base(sA, L.SA)
a('s_mul_i32 s%d, s%d, 1792' % (sB, sGT))
a('s_add_u32 s%d, s%d, s%d' % (sO + 13, sA, sB))
a('s_add_u32 s%d, s%d, 1792' % (sO + 14, sO + 13))
a('s_sub_u32 s%d, s%d, 1792' % (sO + 12, sO + 13))
a('s_cmp_eq_u32 s%d, 0' % sGT)
a('s_cselect_b32 s%d, s%d, s%d' % (sO + 12, sO + 13, sO + 12))
a('v_and_b32 v%d, 15, v0' % V_TOK)
a('v_lshrrev_b32 v%d, 4, v0' % V_G)
a('v_lshlrev_b32 v240, 3, v%d' % V_TOK)
a('v_lshl_add_u32 v240, v%d, 7, v240' % V_G)
a('v_mov_b32 v242, 0x%x' % INV)
a('v_cmp_lt_u32 vcc, 1, v%d' % V_G)
a('v_cndmask_b32 v241, 0, v242, vcc')
a('v_or_b32 v241, v241, v240')
a('v_add_u32 v243, %d, v1' % (56 * 1024))
a('v_lshlrev_b32 v244, 4, v%d' % V_G)
a('v_add_u32 v244, %d, v244' % L.L_CSA)
a('v_lshlrev_b32 v245, 2, v%d' % V_TOK)
a('v_add_u32 v245, %d, v245' % L.L_CSA)
stat_loads = ['buffer_load_dwordx2 %s, v%d, %s, s%d offen offset:%d sc1' %
              (vr(STR + (t * 4 + i) * 2, 2), 241 if i == 3 else 240, srd(S_WS), sO + 12 + t, 512 * i)
              for t in range(3) for i in range(4)]


def a_wread(u):
    b = WBUF[u & 1]
    o = []
    for p in range(6):
        if p < 4:
            o.append('ds_read_b128 %s, v1 offset:%d' % (vr(b + 4 * p), L.L_WA + (p * 14 + u) * 1024))
        else:
            o.append('ds_read_b128 %s, v243 offset:%d' % (vr(b + 4 * p), L.L_WA + ((p - 4) * 14 + u) * 1024))
    return o


for t in a_wread(0):
    a(t)
stat_fill = []
for t in range(3):
    r = STR + 8 * t
    for c_ in range(2):
        stat_fill += ['v_add_f32 v%d, v%d, v%d' % (r + c_, r + c_, r + 2 + c_),
                      'v_add_f32 v%d, v%d, v%d' % (r + 4 + c_, r + 4 + c_, r + 6 + c_),
                      'v_add_f32 v%d, v%d, v%d' % (r + c_, r + c_, r + 4 + c_)]
    stat_fill += xg_reduce(r, r + 2) + xg_reduce(r + 1, r + 3)
    stat_fill += stats_finish(r, r + 1, r + 2, False)
    stat_fill += ['v_mov_b32 v%d, v%d' % (SM + t, r), 'v_mov_b32 v%d, v%d' % (SR + t, r + 1)]

st_mark = None
for u in range(14):
    need = xmark[u]
    if u == 9:
        need = max(need, st_mark)
    a.wait_vm(need)
    a('s_waitcnt lgkmcnt(0)')
    wb = WBUF[u & 1]
    xs = XR + (u % NR) * 12
    mf = []
    cz = (lambda r: '0') if u == 0 else (lambda r: vr(r))
    for t in range(2):
        for hf in range(2):
            r = AQ + (t * 2 + hf) * 4
            mf.append('%s %s, %s, %s, %s' % (MFMA, vr(r), vr(wb + 4 * hf), vr(xs + 4 * (t + 1)), cz(r)))
    for t in range(3):
        for hf in range(2):
            r = AK + (t * 2 + hf) * 4
            mf.append('%s %s, %s, %s, %s' % (MFMA, vr(r), vr(wb + 8 + 4 * hf), vr(xs + 4 * t), cz(r)))
    for t in range(3):
        for hf in range(2):
            r = AV + (t * 2 + hf) * 4
            mf.append('%s %s, %s, %s, %s' % (MFMA, vr(r), vr(xs + 4 * t), vr(wb + 16 + 4 * hf), cz(r)))
    mem = {}
    if u < 13:
        for k, x in enumerate(a_wread(u + 1)):
            mem[k] = x
    else:
        for p in range(4):
            mem[p] = 'ds_read_b128 %s, v244 offset:%d' % (vr(WBUF[0] + 4 * p), 64 * p)
        for d in range(2):
            mem[4 + d] = 'ds_read_b32 v%d, v245 offset:%d' % (WBUF[0] + 16 + d, 64 * (4 + d))
    if u + LOOK < 14:
        xl = a_xload(u + LOOK)
        mem[6], mem[9], mem[12] = xl
    if u < 6:
        mem[8], mem[14] = stat_loads[2 * u], stat_loads[2 * u + 1]
    fill = []
    if u >= 9:
        n = (len(stat_fill) + 4) // 5
        fill = stat_fill[(u - 9) * n:(u - 8) * n]
    fi = 0
    for k, m in enumerate(mf):
        a(m)
        if k in mem:
            a(mem[k])
            if k == 12 and u + LOOK < 14:
                xmark[u + LOOK] = a.vm_mark()
            if k == 14 and u == 5:
                st_mark = a.vm_mark()
        for _ in range(2):
            if fi < len(fill) and k >= 1:
                a(fill[fi])
                fi += 1
    assert fi == len(fill), (u, fi, len(fill))
stamp()
CSQ = WBUF[0]
a('s_mul_i32 s%d, s%d, 384' % (sA, sW))
a('s_add_u32 s%d, s%d, %d' % (sA, sA, L.L_STA))
a('v_lshl_add_u32 v246, v%d, 2, s%d' % (V_TOK, sA))
a('v_lshl_add_u32 v247, v%d, 4, s%d' % (V_G, sA))
a('s_mov_b64 exec, 0xffff')
for t in range(3):
    a('ds_write_b32 v246, v%d offset:%d' % (SM + t, 128 * t))
    a('ds_write_b32 v246, v%d offset:%d' % (SR + t, 128 * t + 64))
a('s_mov_b64 exec, -1')
MROW, RROW = 114, 126
a('s_waitcnt lgkmcnt(0)')
for t in range(3):
    a('ds_read_b128 %s, v247 offset:%d' % (vr(MROW + 4 * t), 128 * t))
    a('ds_read_b128 %s, v247 offset:%d' % (vr(RROW + 4 * t), 128 * t + 64))
QF, KF, VF = 140, 148, 160
for t in range(2):
    for hf in range(2):
        r = AQ + (t * 2 + hf) * 4
        for i in range(4):
            a('v_fma_f32 v%d, -v%d, v%d, v%d' % (r + i, SM + t + 1, CSQ + 4 * hf + i, r + i))
        for p in range(2):
            a('v_cvt_pk_bf16_f32 v%d, v%d, v%d' % (QF + 4 * t + 2 * hf + p, r + 2 * p, r + 2 * p + 1))
for t in range(3):
    for hf in range(2):
        r = AK + (t * 2 + hf) * 4
        for i in range(4):
            a('v_fma_f32 v%d, -v%d, v%d, v%d' % (r + i, SM + t, CSQ + 8 + 4 * hf + i, r + i))
        for p in range(2):
            a('v_cvt_pk_bf16_f32 v%d, v%d, v%d' % (KF + 4 * t + 2 * hf + p, r + 2 * p, r + 2 * p + 1))
SS = 172
for t in range(2):
    a('%s %s, %s, %s, 0' % (MFMA, vr(SS + 8 * t), vr(KF + 4 * t), vr(QF + 4 * t)))
    a('%s %s, %s, %s, 0' % (MFMA, vr(SS + 8 * t + 4), vr(KF + 4 * t + 4), vr(QF + 4 * t)))
a('s_waitcnt lgkmcnt(0)')
for t in range(3):
    for d in range(2):
        r = AV + (t * 2 + d) * 4
        for i in range(4):
            a('v_fma_f32 v%d, -v%d, v%d, v%d' % (r + i, MROW + 4 * t + i, CSQ + 16 + d, r + i))
        for p in range(2):
            a('v_cvt_pk_bf16_f32 v%d, v%d, v%d' % (VF + 6 * d + 2 * t + p, r + 2 * p, r + 2 * p + 1))
SCALE = (28.0 ** -0.5) * 1.4426950408889634
MX, CC, LS, TMPR = 190, 192, 194, 196
PF = 200
a('v_mov_b32 v198, 0xff800000')
seq = [[], []]
for t in range(2):
    s = SS + 8 * t
    q = seq[t]
    for e in range(8):
        q.append('v_mul_f32 v%d, v%d, v%d' % (s + e, s + e, RROW + 4 * (t + (e >> 2)) + (e & 3)))
    for e in range(8):
        mk = (sM0 if t == 0 else sM1) + 2 * e if e < 4 else sM2 + 2 * (e - 4)
        q.append('v_cndmask_b32 v%d, v198, v%d, %s' % (s + e, s + e, sp(mk)))
    q.append('v_max3_f32 v%d, v%d, v%d, v%d' % (MX + t, s, s + 1, s + 2))
    q.append('v_max3_f32 v%d, v%d, v%d, v%d' % (MX + t, MX + t, s + 3, s + 4))
    q.append('v_max3_f32 v%d, v%d, v%d, v%d' % (MX + t, MX + t, s + 5, s + 6))
    q.append('v_max_f32 v%d, v%d, v%d' % (MX + t, MX + t, s + 7))
    q += xg_reduce(MX + t, TMPR + t, 'v_max_f32')
    q.append('v_mul_f32 v%d, %s, v%d' % (CC + t, f2h(SCALE), SR + t + 1))
    q.append('v_mul_f32 v%d, v%d, v%d' % (MX + t, MX + t, CC + t))
    for e in range(8):
        q.append('v_fma_f32 v%d, v%d, v%d, -v%d' % (s + e, s + e, CC + t, MX + t))
    for e in range(8):
        q.append('v_exp_f32 v%d, v%d' % (s + e, s + e))
    q.append('v_add_f32 v%d, v%d, v%d' % (LS + t, s, s + 1))
    for e in range(2, 8):
        q.append('v_add_f32 v%d, v%d, v%d' % (LS + t, LS + t, s + e))
    q += xg_reduce(LS + t, TMPR + t)
    q.append('v_rcp_f32 v%d, v%d' % (LS + t, LS + t))
    for e in range(8):
        q.append('v_mul_f32 v%d, v%d, v%d' % (s + e, s + e, RROW + 4 * (t + (e >> 2)) + (e & 3)))
    for p in range(4):
        q.append('v_cvt_pk_bf16_f32 v%d, v%d, v%d' % (PF + 4 * t + p, s + 2 * p, s + 2 * p + 1))
for x, y in zip(*seq):
    a(x)
    a(y)
OO = 208
for t in range(2):
    for d in range(2):
        a('%s %s, %s, %s, 0' % (MFMA, vr(OO + 8 * t + 4 * d), vr(VF + 6 * d + 2 * t), vr(PF + 4 * t)))
pair_base(sA, L.O)
a('s_lshl_b32 s%d, s%d, 4' % (sB, sGT))
a('s_add_u32 s%d, s%d, s%d' % (sB, sB, sC))
a('s_lshl_b32 s%d, s%d, 10' % (sB, sB))
a('s_add_u32 s%d, s%d, s%d' % (sA, sA, sB))
for t in range(2):
    for e in range(8):
        a('v_mul_f32 v%d, v%d, v%d' % (OO + 8 * t + e, OO + 8 * t + e, LS + t))
    for p in range(4):
        a('v_cvt_pk_bf16_f32 v%d, v%d, v%d' % (PF + 4 * t + p, OO + 8 * t + 2 * p, OO + 8 * t + 2 * p + 1))
    store('buffer_store_dwordx4 %s, v1, %s, s%d offen' % (vr(PF + 4 * t), srd(S_WS), sA), sFAST)
    if t == 0:
        a('s_add_u32 s%d, s%d, 16384' % (sA, sA))
pair_base(sA, L.FA)
a('s_lshl_b32 s%d, s%d, 4' % (sB, sGT))
a('s_add_u32 s%d, s%d, s%d' % (sB, sB, sC))
a('s_lshl_b32 s%d, s%d, 2' % (sB, sB))
a('s_add_u32 s%d, s%d, s%d' % (sA, sA, sB))
a('v_lshlrev_b32 v2, 6, v0')
a('v_add_u32 v2, s%d, v2' % sA)
set_flags(2, 2, sFAST)
stamp()
a('s_cmp_eq_u32 s%d, 7' % sJ)
a('s_cbranch_scc1 L_next_pair')


def wd_loads(lo, hi):
    a('s_lshl_b32 s%d, s%d, 2' % (sA, sJ))
    a('s_mul_i32 s%d, s%d, %d' % (sA, sA, 56 * 1024))
    a('s_mul_i32 s%d, s%d, %d' % (sB, sW, 14 * 1024))
    a('s_add_u32 s%d, s%d, s%d' % (sA, sA, sB))
    a('s_add_u32 s%d, s%d, %d' % (sO, sA, L.WD))
    quarter_offsets(4, 56 * 1024)
    for fi in range(lo, hi):
        kk, t = fi >> 2, fi & 3
        a('buffer_load_dwordx4 %s, v1, %s, s%d offen offset:%d sc1' %
          (ar(4 * fi), srd(S_WS), sO + 4 * t + (kk >> 2), 1024 * (kk & 3)))


WD_CH = [(0, 12), (12, 24), (24, 56)]
A_RES, A_B2 = 224, 232


def owner_index():
    a('s_lshr_b32 s%d, s%d, 1' % (sB, sW))
    a('s_lshl_b32 s%d, s%d, 2' % (sCc, sG))
    a('s_add_u32 s%d, s%d, s%d' % (sB, sB, sCc))
    a('s_and_b32 s%d, s%d, 1' % (sA, sW))
    a('s_lshl_b32 s%d, s%d, 1' % (sCc, sJ))
    a('s_add_u32 s%d, s%d, s%d' % (sA, sA, sCc))


BW, BO, BACC, BRD, BTMP = 2, 66, 130, 194, 226


def b_wloads():
    a('s_lshl_b32 s%d, s%d, 6' % (sA, sJ))
    a('s_lshl_b32 s%d, s%d, 2' % (sB, sW))
    a('s_add_u32 s%d, s%d, s%d' % (sA, sA, sB))
    a('s_lshl_b32 s%d, s%d, 10' % (sA, sA))
    a('s_add_u32 s%d, s%d, %d' % (sA, sA, L.WB))
    for t in range(4):
        for i in range(4):
            a('buffer_load_dwordx4 %s, v1, %s, s%d offen offset:%d sc1' % (vr(BW + (i * 4 + t) * 4), srd(S_WS), sA, 1024 * i))
        if t < 3:
            a('s_add_u32 s%d, s%d, %d' % (sA, sA, 16 * 1024))


a('s_cmp_eq_u32 s%d, 0' % sPAIR)
a('s_cbranch_scc0 L_b_start')
a('s_lshl_b32 s%d, s%d, 7' % (sA, sJ))
a('s_add_u32 s%d, s%d, %d' % (sA, sA, L.FP))
a('v_lshl_add_u32 v2, v0, 2, s%d' % sA)
a('s_mov_b32 s%d, -1' % sMK)
a('s_mov_b32 s%d, 0' % (sMK + 1))
poll(2)
a('s_lshl_b32 s%d, s%d, 8' % (sCc, sG))
a('s_add_u32 s%d, s%d, %d' % (sCc, sCc, L.FX[0]))
a('v_lshl_add_u32 v2, v0, 2, s%d' % sCc)
a('s_mov_b32 s%d, 0x3fff3fff' % sMK)
a('s_mov_b32 s%d, 0x3fff3fff' % (sMK + 1))
poll(2)
owner_index()
a('s_mul_i32 s%d, s%d, 14' % (sB, sB))
a('s_add_u32 s%d, s%d, s%d' % (sB, sB, sA))
a('s_lshl_b32 s%d, s%d, 10' % (sB, sB))
a('s_add_u32 s%d, s%d, %d' % (sB, sB, L.XA[0]))
a('buffer_load_dwordx4 %s, v1, %s, s%d offen sc1' % (ar(A_RES), srd(S_WS), sB))
a('s_add_u32 s%d, s%d, %d' % (sB, sB, 2 * 14336))
a('buffer_load_dwordx4 %s, v1, %s, s%d offen sc1' % (ar(A_RES + 4), srd(S_WS), sB))
build_srd(S_TMP, P_B2, 896)
a('s_lshl_b32 s%d, s%d, 6' % (sB, sA))
a('v_lshlrev_b32 v240, 3, v%d' % V_G)
a('buffer_load_dwordx2 v[232:233], v240, %s, s%d offen' % (srd(S_TMP), sB))
a('buffer_load_dwordx2 v[234:235], v240, %s, s%d offen offset:32' % (srd(S_TMP), sB))
b2_mark = a.vm_mark()
b_wloads()
a.wait_vm(b2_mark)
for k in range(4):
    a('v_lshlrev_b32 v236, 16, v%d' % (232 + k))
    a('v_and_b32 v237, 0xffff0000, v%d' % (232 + k))
    a('v_accvgpr_write_b32 a%d, v236' % (A_B2 + 2 * k))
    a('v_accvgpr_write_b32 a%d, v237' % (A_B2 + 2 * k + 1))
wd_loads(*WD_CH[0])
a('s_branch L_b_poll')
a.label('L_b_start')
b_wloads()
a.label('L_b_poll')


def red_writes(acc, tile):
    return ['ds_write_b128 v248, %s offset:%d' % (vr(acc + 4 * t), (tile >> 1) * 32768 + (tile & 1) * 4096 + t * 1024)
            for t in range(4)]


def red_reads(st, rd):
    return ['ds_read_b128 %s, v249 offset:%d' % (vr(rd + (b * 2 + k) * 4), st * 32768 + b * 8192 + k * 1024)
            for b in range(4) for k in range(2)]


def owner_finish(st, is_d, rd, tmp):
    res = A_RES + 4 * st
    for p in range(4):
        a('v_accvgpr_read_b32 v%d, a%d' % (tmp + 8 + p, res + p))
    for p in range(4):
        a('v_lshlrev_b32 v%d, 16, v%d' % (tmp + 2 * p, tmp + 8 + p))
        a('v_and_b32 v%d, 0xffff0000, v%d' % (tmp + 2 * p + 1, tmp + 8 + p))
    if is_d:
        for e in range(0, 8):
            a('v_accvgpr_read_b32 v%d, a%d' % (tmp + 8 + e, A_B2 + e))
        for e in range(0, 8, 2):
            a('v_pk_add_f32 %s, %s, %s' % (vr(tmp + e, 2), vr(tmp + e, 2), vr(tmp + 8 + e, 2)))
    a('s_waitcnt lgkmcnt(0)')
    for e in range(0, 8, 2):
        a('v_pk_add_f32 %s, %s, %s' % (vr(rd + e, 2), vr(rd + e, 2), vr(rd + 8 + e, 2)))
        a('v_pk_add_f32 %s, %s, %s' % (vr(rd + 16 + e, 2), vr(rd + 16 + e, 2), vr(rd + 24 + e, 2)))
    for e in range(0, 8, 2):
        a('v_pk_add_f32 %s, %s, %s' % (vr(rd + e, 2), vr(rd + e, 2), vr(rd + 16 + e, 2)))
    for e in range(0, 8, 2):
        a('v_pk_add_f32 %s, %s, %s' % (vr(tmp + e, 2), vr(tmp + e, 2), vr(rd + e, 2)))
    for p in range(4):
        a('v_cvt_pk_bf16_f32 v%d, v%d, v%d' % (rd + p, tmp + 2 * p, tmp + 2 * p + 1))
    for p in range(4):
        a('v_accvgpr_write_b32 a%d, v%d' % (res + p, rd + p))


def owner_stats(tmp, s1, s2, t):
    a('v_pk_add_f32 %s, %s, %s' % (vr(t, 2), vr(tmp, 2), vr(tmp + 2, 2)))
    a('v_pk_add_f32 %s, %s, %s' % (vr(t + 2, 2), vr(tmp + 4, 2), vr(tmp + 6, 2)))
    a('v_pk_add_f32 %s, %s, %s' % (vr(t, 2), vr(t, 2), vr(t + 2, 2)))
    a('v_add_f32 v%d, v%d, v%d' % (s1, t, t + 1))
    a('v_pk_mul_f32 %s, %s, %s' % (vr(t, 2), vr(tmp, 2), vr(tmp, 2)))
    for e in (2, 4, 6):
        a('v_pk_fma_f32 %s, %s, %s, %s' % (vr(t, 2), vr(tmp + e, 2), vr(tmp + e, 2), vr(t, 2)))
    a('v_add_f32 v%d, v%d, v%d' % (s2, t, t + 1))
    for x in xg_reduce(s1, t) + xg_reduce(s2, t + 1):
        a(x)


def red_addrs():
    a('s_lshl_b32 s%d, s%d, 13' % (sA, sW))
    a('s_add_u32 s%d, s%d, %d' % (sA, sA, L.L_R2))
    a('v_add_u32 v248, s%d, v1' % sA)
    a('s_and_b32 s%d, s%d, 1' % (sA, sW))
    a('s_lshl_b32 s%d, s%d, 11' % (sA, sA))
    a('s_lshr_b32 s%d, s%d, 1' % (sB, sW))
    a('s_lshl_b32 s%d, s%d, 12' % (sB, sB))
    a('s_add_u32 s%d, s%d, s%d' % (sA, sA, sB))
    a('s_add_u32 s%d, s%d, %d' % (sA, sA, L.L_R2))
    a('v_add_u32 v249, s%d, v1' % sA)


sPX, sPS, sPF, sPC = 36, 37, 38, 39


def publish_setup(xbase, sbase, fbase, per_pair):
    owner_index()
    a('s_mul_i32 s%d, s%d, 14' % (sCc, sB))
    a('s_add_u32 s%d, s%d, s%d' % (sCc, sCc, sA))
    a('s_lshl_b32 s%d, s%d, 10' % (sPX, sCc))
    a('s_lshl_b32 s%d, s%d, 7' % (sPS, sCc))
    a('s_lshl_b32 s%d, s%d, 4' % (sPF, sB))
    a('s_add_u32 s%d, s%d, s%d' % (sPF, sPF, sA))
    a('s_lshl_b32 s%d, s%d, 2' % (sPF, sPF))
    for dst, arr in ((sPX, xbase), (sPS, sbase), (sPF, fbase)):
        if per_pair:
            pair_base(sD, arr)
            a('s_add_u32 s%d, s%d, s%d' % (dst, dst, sD))
        else:
            a('s_add_u32 s%d, s%d, %d' % (dst, dst, arr))


def publish_x(st, rd, tmp):
    if st == 1:
        a('s_add_u32 s%d, s%d, %d' % (sPX, sPX, 2 * 14336))
        a('s_add_u32 s%d, s%d, %d' % (sPS, sPS, 2 * 1792))
    store('buffer_store_dwordx4 %s, v1, %s, s%d offen' % (vr(rd), srd(S_WS), sPX), sPC)
    owner_stats(tmp, rd + 4, rd + 5, rd + 6)
    a('v_and_b32 v%d, 15, v0' % V_TOK)
    a('v_lshlrev_b32 v%d, 3, v%d' % (rd + 6, V_TOK))
    a('s_mov_b64 exec, 0xffff')
    store('buffer_store_dwordx2 %s, v%d, %s, s%d offen' % (vr(rd + 4, 2), rd + 6, srd(S_WS), sPS), sPC)
    a('s_mov_b64 exec, -1')


def publish_flags():
    a('v_lshlrev_b32 v2, 7, v0')
    a('v_add_u32 v2, s%d, v2' % sPF)
    set_flags(2, 2, sPC)


def ksplit_phase(acc, rd, tmp, is_d, tile_mfmas, finish_publish):
    extra = {1: red_writes(acc + 0, 0), 2: red_writes(acc + 16, 1), 3: red_writes(acc + 32, 2) + red_reads(0, rd)}
    for tile in range(4):
        items = tile_mfmas(tile)
        ex = list(extra.get(tile, []))
        n = len(items)
        step = max(1, (n - 4) // max(1, len(ex))) if ex else 1
        for k, (pre, m, post) in enumerate(items):
            for x in pre:
                x()
            a(m)
            if post:
                post()
            elif ex and k >= 3 and (k - 3) % step == 0:
                a(ex.pop(0))
        for x in ex:
            a(x)
        if tile == 2:
            a('s_waitcnt lgkmcnt(0)')
            a('s_barrier')
    for x in red_writes(acc + 48, 3):
        a(x)
    finish_publish(0)
    a('s_waitcnt lgkmcnt(0)')
    a('s_barrier')
    for x in red_reads(1, rd):
        a(x)
    finish_publish(1)


pair_base(sA, L.FA)
a('s_lshl_b32 s%d, s%d, 8' % (sB, sG))
a('s_add_u32 s%d, s%d, s%d' % (sA, sA, sB))
a('v_lshl_add_u32 v240, v0, 2, s%d' % sA)
a('s_lshl_b32 s%d, s%d, 2' % (sB, sW))
a('s_lshl_b32 s%d, 0x000f000f, s%d' % (sMK, sB))
a('s_mov_b32 s%d, s%d' % (sMK + 1, sMK))
red_addrs()
publish_setup(L.XB, L.SB, L.FB, True)
a('s_mov_b32 s%d, s%d' % (sPC, sFAST))
pair_base(sA, L.O)
a('s_lshl_b32 s%d, s%d, 6' % (sB, sG))
a('s_lshl_b32 s%d, s%d, 2' % (sCc, sW))
a('s_add_u32 s%d, s%d, s%d' % (sB, sB, sCc))
a('s_lshl_b32 s%d, s%d, 10' % (sB, sB))
a('s_add_u32 s%d, s%d, s%d' % (sO, sA, sB))
for t in range(1, 4):
    a('s_add_u32 s%d, s%d, %d' % (sO + t, sO, 16384 * t))
poll(240)
stamp()


def b_oload(tile, i):
    return 'buffer_load_dwordx4 %s, v1, %s, s%d offen offset:%d sc1' % (vr(BO + (tile * 4 + i) * 4), srd(S_WS), sO + tile, 1024 * i)


om = {}
for tile in range(2):
    for i in range(4):
        a(b_oload(tile, i))
        om[(tile, i)] = a.vm_mark()


def b_tile(tile):
    items = []
    for i in range(4):
        for t in range(4):
            r = BACC + (tile * 4 + t) * 4
            pre = [(lambda tl=tile, ii=i: a.wait_vm(om[(tl, ii)]))] if t == 0 else []
            post = None
            if tile < 2 and t == 1:
                def post(tl=tile + 2, ii=i):
                    a(b_oload(tl, ii))
                    om[(tl, ii)] = a.vm_mark()
            items.append((pre, '%s %s, %s, %s, %s' % (MFMA, vr(r), vr(BW + (i * 4 + t) * 4), vr(BO + (tile * 4 + i) * 4),
                                                      '0' if i == 0 else vr(r)), post))
    return items


def b_fin(st):
    owner_finish(st, False, BRD, BTMP)
    publish_x(st, BRD, BTMP)


ksplit_phase(BACC, BRD, BTMP, False, b_tile, b_fin)
publish_flags()
stamp()

CACC, CW, CX, CCS, CB1, CB1R, CSTR, CMR = 2, 66, 162, 194, 210, 226, 234, 242
NRC = 6
a('s_cmp_eq_u32 s%d, 0' % sPAIR)
a('s_cbranch_scc0 L_c_start')
wd_loads(*WD_CH[1])
a.label('L_c_start')
a('s_lshl_b32 s%d, s%d, 4' % (sA, sJ))
a('s_lshl_b32 s%d, s%d, 2' % (sB, sW))
a('s_add_u32 s%d, s%d, s%d' % (sA, sA, sB))
a('s_mul_i32 s%d, s%d, %d' % (sB, sA, 14 * 1024))
a('s_add_u32 s%d, s%d, %d' % (sO, sB, L.WC))
quarter_offsets(4, 14 * 1024)


def c_wload(u):
    slot = u % NRC
    return ['buffer_load_dwordx4 %s, v1, %s, s%d offen offset:%d sc1' %
            (vr(CW + (slot * 4 + t) * 4), srd(S_WS), sO + 4 * t + (u >> 2), 1024 * (u & 3)) for t in range(4)]


for u in range(NRC):
    for x in c_wload(u):
        a(x)
a('v_lshrrev_b32 v%d, 4, v0' % V_G)
a('v_and_b32 v%d, 15, v0' % V_TOK)
a('v_lshlrev_b32 v240, 4, v%d' % V_G)
a('s_lshl_b32 s%d, s%d, 6' % (sB, sA))
a('s_add_u32 s%d, s%d, %d' % (sB, sB, L.CSC))
for t in range(4):
    a('buffer_load_dwordx4 %s, v240, %s, s%d offen offset:%d sc1' % (vr(CCS + 4 * t), srd(S_WS), sB, 64 * t))
a('v_lshlrev_b32 v240, 3, v%d' % V_G)
a('s_lshl_b32 s%d, s%d, 5' % (sB, sA))
for t in range(4):
    a('buffer_load_dwordx2 %s, v240, %s, s%d offen offset:%d' % (vr(CB1R + 2 * t, 2), srd(S_B1), sB, 32 * t))
pair_base(sA, L.FB)
a('s_lshl_b32 s%d, s%d, 8' % (sB, sG))
a('s_add_u32 s%d, s%d, s%d' % (sA, sA, sB))
a('v_lshl_add_u32 v240, v0, 2, s%d' % sA)
a('s_mov_b32 s%d, 0x3fff3fff' % sMK)
a('s_mov_b32 s%d, 0x3fff3fff' % (sMK + 1))
a('s_lshl_b32 s%d, s%d, 2' % (sB, sG))
a('s_add_u32 s%d, s%d, s%d' % (sB, sB, sW))
pair_base(36, L.XB)
a('s_mul_i32 s%d, s%d, 14336' % (sCc, sB))
a('s_add_u32 s36, s36, s%d' % sCc)
a('s_mul_i32 s37, s%d, 14336' % sW)
a('s_add_u32 s37, s37, %d' % L.L_R2)
pair_base(38, L.SB)
a('s_mul_i32 s%d, s%d, 1792' % (sCc, sB))
a('s_add_u32 s38, s38, s%d' % sCc)
a('v_lshlrev_b32 v238, 3, v%d' % V_TOK)
a('v_lshl_add_u32 v238, v%d, 7, v238' % V_G)
a('v_mov_b32 v242, 0x%x' % INV)
a('v_cmp_lt_u32 vcc, 1, v%d' % V_G)
a('v_cndmask_b32 v239, 0, v242, vcc')
a('v_or_b32 v239, v239, v238')
poll(240)
stamp()
for q in range(4):
    a('s_mov_b32 m0, s37')
    a('s_nop 0')
    for k in range(4 if q < 3 else 2):
        a('buffer_load_dwordx4 v1, %s, s36 offen offset:%d sc1 lds' % (srd(S_WS), 1024 * k))
    if q < 3:
        a('s_add_u32 s36, s36, 4096')
        a('s_add_u32 s37, s37, 4096')
x1_mark = a.vm_mark()
CST2 = 244
for i in range(4):
    a('buffer_load_dwordx2 %s, v%d, %s, s38 offen offset:%d sc1' %
      (vr(CSTR + 2 * i, 2) if i < 2 else vr(CST2 + 2 * (i - 2), 2), 239 if i == 3 else 238, srd(S_WS), 512 * i))
cst_mark = a.vm_mark()
a('v_add_u32 v252, %d, v1' % L.L_R2)
a.wait_vm(x1_mark)
a('s_barrier')
stamp()


def c_xread(u):
    b = CX + 16 * (u & 1)
    return ['ds_read_b128 %s, v252 offset:%d' % (vr(b + 4 * t), (t * 14 + u) * 1024) for t in range(4)]


for x in c_xread(0):
    a(x)
r = CSTR
cst_fill = []
for c_ in range(2):
    cst_fill += ['v_add_f32 v%d, v%d, v%d' % (r + c_, r + c_, r + 2 + c_),
                 'v_add_f32 v%d, v%d, v%d' % (CST2 + c_, CST2 + c_, CST2 + 2 + c_),
                 'v_add_f32 v%d, v%d, v%d' % (r + c_, r + c_, CST2 + c_)]
cst_fill += xg_reduce(r, r + 2) + xg_reduce(r + 1, r + 3) + stats_finish(r, r + 1, r + 2, True)
for t in range(4):
    for p in range(2):
        cst_fill += ['v_lshlrev_b32 v%d, 16, v%d' % (CB1 + 4 * t + 2 * p, CB1R + 2 * t + p),
                     'v_and_b32 v%d, 0xffff0000, v%d' % (CB1 + 4 * t + 2 * p + 1, CB1R + 2 * t + p)]
wm = {}
for u in range(14):
    if u >= NRC:
        a.wait_vm(wm[u])
    elif u == 2:
        a.wait_vm(cst_mark)
    a('s_waitcnt lgkmcnt(0)')
    ws_ = CW + (u % NRC) * 16
    xb = CX + 16 * (u & 1)
    mem = {}
    if u < 13:
        for k, x in enumerate(c_xread(u + 1)):
            mem[k] = x
    if 1 <= u and u - 1 + NRC < 14:
        for k, x in enumerate(c_wload(u - 1 + NRC)):
            mem[4 + 3 * k] = x
    fill = []
    if 2 <= u < 6:
        n = (len(cst_fill) + 3) // 4
        fill = cst_fill[(u - 2) * n:(u - 1) * n]
    if u == 7:
        a('s_lshl_b32 s%d, s%d, 7' % (sA, sW))
        a('s_add_u32 s%d, s%d, %d' % (sA, sA, L.L_STC))
        a('v_lshl_add_u32 v240, v%d, 3, s%d' % (V_TOK, sA))
        mem[14] = 'ds_write_b64 v240, %s' % vr(CSTR, 2)
    k = 0
    fi = 0
    for tile in range(4):
        for t in range(4):
            r = CACC + (tile * 4 + t) * 4
            a('%s %s, %s, %s, %s' % (MFMA, vr(r), vr(ws_ + 4 * t), vr(xb + 4 * tile), '0' if u == 0 else vr(r)))
            if k in mem:
                a(mem[k])
                if k == 13 and 1 <= u and u - 1 + NRC < 14:
                    wm[u - 1 + NRC] = a.vm_mark()
            for _ in range(2):
                if fi < len(fill):
                    a(fill[fi])
                    fi += 1
            k += 1
    assert fi == len(fill)
a('s_waitcnt lgkmcnt(0)')
a('s_barrier')
a('v_lshlrev_b32 v240, 3, v%d' % V_TOK)
a('v_add_u32 v240, %d, v240' % L.L_STC)
for t in range(4):
    a('ds_read_b64 %s, v240 offset:%d' % (vr(CMR + 2 * t, 2), 128 * t))
stamp()
GA = 2.0 * 0.7978845608028654 * 1.4426950408889634
GB = GA * 0.044715
a('s_mov_b32 s%d, %s' % (sO + 2, f2h(-GB)))
a('s_mov_b32 s%d, %s' % (sO + 3, f2h(-GB)))
pair_base(sA, L.H)
a('s_mul_i32 s%d, s%d, %d' % (sB, sG, 4 * 56 * 1024))
a('s_add_u32 s%d, s%d, s%d' % (sA, sA, sB))
a('s_lshl_b32 s%d, s%d, 2' % (sB, sJ))
a('s_add_u32 s%d, s%d, s%d' % (sB, sB, sW))
a('s_lshl_b32 s%d, s%d, 11' % (sB, sB))
a('s_add_u32 s%d, s%d, s%d' % (sA, sA, sB))
GT = 66
a('v_mov_b32 v%d, %s' % (GT + 30, f2h(-GA)))
a('v_mov_b32 v%d, %s' % (GT + 31, f2h(-GA)))
a('s_waitcnt lgkmcnt(0)')
for tile in range(4):
    m = CMR + 2 * tile
    for pp in range(2):
        hf = GT + 16 + 4 * ((tile * 2 + pp) & 1)
        zs = [(CACC + (tile * 4 + 2 * pp + k) * 4 + 2 * p, 2 * pp + k, p, GT + 2 * (k * 2 + p), hf + 2 * k + p)
              for k in range(2) for p in range(2)]
        for z, t, p, t0, h in zs:
            a('v_pk_fma_f32 %s, %s, %s, %s op_sel_hi:[1,0,1] neg_lo:[0,1,0] neg_hi:[0,1,0]' %
              (vr(z, 2), vr(CCS + 4 * t + 2 * p, 2), vr(m, 2), vr(z, 2)))
        for z, t, p, t0, h in zs:
            a('v_pk_fma_f32 %s, %s, %s, %s op_sel:[0,1,0] op_sel_hi:[1,1,1]' %
              (vr(z, 2), vr(z, 2), vr(m, 2), vr(CB1 + 4 * t + 2 * p, 2)))
        for z, t, p, t0, h in zs:
            a('v_pk_mul_f32 %s, %s, %s' % (vr(t0, 2), vr(z, 2), vr(z, 2)))
        for z, t, p, t0, h in zs:
            a('v_pk_fma_f32 %s, %s, %s, %s' % (vr(t0, 2), vr(t0, 2), sp(sO + 2), vr(GT + 30, 2)))
        for z, t, p, t0, h in zs:
            a('v_pk_mul_f32 %s, %s, %s' % (vr(t0, 2), vr(t0, 2), vr(z, 2)))
        for z, t, p, t0, h in zs:
            a('v_exp_f32 v%d, v%d' % (t0, t0))
            a('v_exp_f32 v%d, v%d' % (t0 + 1, t0 + 1))
        for z, t, p, t0, h in zs:
            a('v_pk_add_f32 %s, %s, 1.0 op_sel_hi:[1,0]' % (vr(t0, 2), vr(t0, 2)))
        for z, t, p, t0, h in zs:
            a('v_rcp_f32 v%d, v%d' % (t0, t0))
            a('v_rcp_f32 v%d, v%d' % (t0 + 1, t0 + 1))
        for z, t, p, t0, h in zs:
            a('v_pk_mul_f32 %s, %s, %s' % (vr(t0, 2), vr(t0, 2), vr(z, 2)))
        for z, t, p, t0, h in zs:
            a('v_cvt_pk_bf16_f32 v%d, v%d, v%d' % (h, t0, t0 + 1))
        store('buffer_store_dwordx4 %s, v1, %s, s%d offen offset:%d' % (vr(hf), srd(S_WS), sA, 1024 * pp), sFAST)
    if tile < 3:
        a('s_add_u32 s%d, s%d, %d' % (sA, sA, 56 * 1024))
pair_base(sA, L.FC)
a('s_lshl_b32 s%d, s%d, 5' % (sB, sG))
a('s_lshl_b32 s%d, s%d, 2' % (sCc, sJ))
a('s_add_u32 s%d, s%d, s%d' % (sB, sB, sCc))
a('s_add_u32 s%d, s%d, s%d' % (sB, sB, sW))
a('s_lshl_b32 s%d, s%d, 2' % (sB, sB))
a('s_add_u32 s%d, s%d, s%d' % (sA, sA, sB))
a('v_mov_b32 v2, s%d' % sA)
set_flags(2, 1, sFAST)
stamp()

DH, DACC, DRD, DTMP = 2, 114, 178, 210
DRING, DLOOK = 16, 10
a('s_cmp_eq_u32 s%d, 0' % sPAIR)
a('s_cbranch_scc0 L_d_start')
wd_loads(*WD_CH[2])
a.label('L_d_start')
pair_base(sA, L.FC)
a('s_lshl_b32 s%d, s%d, 7' % (sB, sG))
a('s_add_u32 s%d, s%d, s%d' % (sA, sA, sB))
a('v_lshl_add_u32 v240, v0, 2, s%d' % sA)
a('s_mul_i32 s%d, s%d, 7' % (sB, sW))
a('s_lshl_b32 s%d, 0x7f, s%d' % (sMK, sB))
a('s_mov_b32 s%d, 0' % (sMK + 1))
red_addrs()
publish_setup(L.XA[1], L.SA[1], L.FX[1], False)
a('s_and_b32 s%d, s%d, 1' % (sA, sG))
a('s_lshr_b32 s%d, s%d, 1' % (sB, sW))
a('s_and_b32 s%d, s%d, s%d' % (sA, sA, sB))
a('s_xor_b32 s%d, s%d, 1' % (sA, sA))
a('s_and_b32 s%d, s%d, s%d' % (sPC, sFAST, sA))
pair_base(sA, L.H)
a('s_mul_i32 s%d, s%d, %d' % (sB, sG, 4 * 56 * 1024))
a('s_add_u32 s%d, s%d, s%d' % (sA, sA, sB))
a('s_mul_i32 s%d, s%d, %d' % (sB, sW, 14 * 1024))
a('s_add_u32 s%d, s%d, s%d' % (sO, sA, sB))
quarter_offsets(4, 56 * 1024)
poll(240)
stamp()


def d_hload(q):
    tile, kk = divmod(q, 14)
    return ('buffer_load_dwordx4 %s, v1, %s, s%d offen offset:%d sc1' %
            (vr(DH + (q % DRING) * 4), srd(S_WS), sO + 4 * tile + (kk >> 2), 1024 * (kk & 3)))


hm = {}
for q in range(DLOOK):
    a(d_hload(q))
    hm[q] = a.vm_mark()
a('s_barrier')


def d_tile(tile):
    items = []
    for kk in range(14):
        q = tile * 14 + kk
        for t in range(4):
            r = DACC + (tile * 4 + t) * 4
            pre = [(lambda qq=q: a.wait_vm(hm[qq]))] if t == 0 else []
            post = None
            if t == 0 and q + DLOOK < 56:
                def post(qq=q + DLOOK):
                    a(d_hload(qq))
                    hm[qq] = a.vm_mark()
            items.append((pre, '%s %s, %s, %s, %s' % (MFMA, vr(r), ar((kk * 4 + t) * 4), vr(DH + (q % DRING) * 4),
                                                      '0' if kk == 0 else vr(r)), post))
    return items


def d_out_store(st):
    if st == 0:
        owner_index()
        a('s_mul_i32 s%d, s%d, 14336' % (sPX, sB))
        a('s_lshl_b32 s%d, s%d, 6' % (sA, sA))
        a('s_add_u32 s%d, s%d, s%d' % (sPX, sPX, sA))
        a('v_and_b32 v%d, 15, v0' % V_TOK)
        a('v_lshrrev_b32 v%d, 4, v0' % V_G)
        a('v_mul_u32_u24 v240, 896, v%d' % V_TOK)
        a('v_lshl_add_u32 v240, v%d, 3, v240' % V_G)
    else:
        a('s_add_u32 s%d, s%d, %d' % (sPX, sPX, 2 * 14336))
    a('buffer_store_dwordx2 %s, v240, %s, s%d offen' % (vr(DRD, 2), srd(S_OUT), sPX))
    a('buffer_store_dwordx2 %s, v240, %s, s%d offen offset:32' % (vr(DRD + 2, 2), srd(S_OUT), sPX))


def d_fin(st):
    owner_finish(st, True, DRD, DTMP)
    fin, done = newlab('L_dfin'), newlab('L_ddone')
    a('s_cmp_eq_u32 s%d, 0' % sPAIR)
    a('s_cbranch_scc0 %s' % fin)
    n0 = a.vm_issued
    publish_x(st, DRD, DTMP)
    a('s_branch %s' % done)
    a.label(fin)
    n1 = a.vm_issued
    d_out_store(st)
    a.vm_issued = n1
    a.label(done)
    a('s_nop 1')


ksplit_phase(DACC, DRD, DTMP, True, d_tile, d_fin)
stamp()
a('s_cmp_eq_u32 s%d, 0' % sPAIR)
a('s_cbranch_scc0 L_next_pair')
publish_flags()
a.label('L_next_pair')
stamp()
a('s_add_u32 s%d, s%d, 1' % (sPAIR, sPAIR))
a('s_cmp_lt_u32 s%d, 2' % sPAIR)
a('s_cbranch_scc1 L_pair')

a('s_cmp_eq_u32 s2, 0')
a('s_cbranch_scc0 L_noepoch')
a('s_cmp_eq_u32 s%d, 0' % sW)
a('s_cbranch_scc0 L_noepoch')
a('buffer_load_dword v2, off, %s, 0 sc1' % srd(S_WS))
a('s_waitcnt vmcnt(0)')
a('v_add_u32 v2, 1, v2')
a('s_mov_b64 exec, 1')
a('buffer_store_dword v2, off, %s, 0 sc1' % srd(S_WS))
a('s_mov_b64 exec, -1')
a.label('L_noepoch')
if DIAG:
    stamp()
    a('s_mov_b32 s%d, 63' % sSTI)
    a('s_lshl_b64 exec, 1, s%d' % sSTI)
    a('v_mov_b32 v%d, s%d' % (V_STAMP, sERR))
    a('s_mov_b32 s%d, 62' % sSTI)
    a('s_lshl_b64 exec, 1, s%d' % sSTI)
    a('v_mov_b32 v%d, s%d' % (V_STAMP, sFAST))
    a('s_mov_b64 exec, -1')
    a('s_lshl_b32 s%d, s2, 2' % sA)
    a('s_add_u32 s%d, s%d, s%d' % (sA, sA, sW))
    a('s_lshl_b32 s%d, s%d, 8' % (sA, sA))
    a('v_lshlrev_b32 v2, 2, v0')
    a('s_add_u32 s%d, s%d, %d' % (sA, sA, L.WS_USED))
    a('s_mov_b32 s%d, 0x%x' % (S_WS + 2, L.WS_USED + 256 * 1024))
    a('buffer_store_dword v%d, v2, %s, s%d offen' % (V_STAMP, srd(S_WS), sA))
a.label('L_end')
a('s_endpgm')

a.finalize()
body = a.text()

import os
hdr = open(os.path.join(os.path.dirname(os.path.abspath(__file__)), 'header.txt')).read()
out = hdr + '; @launch grid=(256,1,1) block=(256,1,1) lds=%d\n' % L.LDS_BYTES
out += '.amdgcn_target "amdgcn-amd-amdhsa--gfx950"\n.text\n.globl %s_kernel\n.p2align 8\n.type %s_kernel,@function\n%s_kernel:\n' % (NAME, NAME, NAME)
out += body
out += '''.section .rodata,"a"
.p2align 6
.amdhsa_kernel %s_kernel
  .amdhsa_next_free_vgpr 512
  .amdhsa_next_free_sgpr 102
  .amdhsa_accum_offset 256
  .amdhsa_group_segment_fixed_size 0
  .amdhsa_kernarg_size 88
  .amdhsa_user_sgpr_count 2
  .amdhsa_user_sgpr_kernarg_segment_ptr 1
  .amdhsa_system_sgpr_workgroup_id_x 1
.end_amdhsa_kernel
''' % NAME
sys.stdout.write(out)
```

```python
import struct
import sys
from asmlib import Asm
import layout as L

NAME = 'interleave_layers__sliding_local_dilated__mixer_channel_mlp__prompt'
DIAG = '--diag' in sys.argv
NOFAST = '--nofast' in sys.argv
DBG = '--dbg' in sys.argv
SPIN_LIMIT = 200000
INV = 0x80000000

a = Asm()

sXCC = 3
S_WS, S_TMP, S_B1, S_OUT = 4, 8, 12, 16
P_X, P_WQKV, P_WO, P_BX, P_W1, P_B1, P_W2, P_B2, P_OUT, P_DBG, P_WSP = 20, 22, 24, 26, 28, 30, 32, 34, 36, 38, 40
sS, sC, sG, sJ, sW, sT, sPAIR, sSPIN = 42, 43, 44, 45, 46, 47, 48, 49
sM1 = 50
sM2 = 58
sM0 = 66
sO = 74
sA, sB, sCc, sD = 90, 91, 92, 93
sMK = 94
sTS = 96
sGT = 98
sERR = 99
sSTI = 100
sFAST = 101


def srd(n):
    return 's[%d:%d]' % (n, n + 3)


def vr(n, k=4):
    return 'v[%d:%d]' % (n, n + k - 1)


def ar(n, k=4):
    return 'a[%d:%d]' % (n, n + k - 1)


def sp(n):
    return 's[%d:%d]' % (n, n + 1)


def f2h(x):
    return '0x%08x' % struct.unpack('<I', struct.pack('<f', x))[0]


V_T, V_STAMP = 254, 255
V_TOK, V_G = 250, 251
MFMA = 'v_mfma_f32_16x16x32_bf16'


def stamp():
    if not DIAG:
        return
    a('s_memtime %s' % sp(sTS))
    a('s_waitcnt lgkmcnt(0)')
    a('s_lshl_b64 exec, 1, s%d' % sSTI)
    a('v_mov_b32 v%d, s%d' % (V_STAMP, sTS))
    a('s_mov_b64 exec, -1')
    a('s_add_u32 s%d, s%d, 1' % (sSTI, sSTI))


lab_no = [0]


def newlab(p):
    lab_no[0] += 1
    return '%s_%d' % (p, lab_no[0])


def build_srd(dst, ptr, nbytes):
    a('s_mov_b32 s%d, s%d' % (dst, ptr))
    a('s_and_b32 s%d, s%d, 0xffff' % (dst + 1, ptr + 1))
    a('s_mov_b32 s%d, 0x%x' % (dst + 2, nbytes))
    a('s_mov_b32 s%d, 0x20000' % (dst + 3))


def poll(voff):
    lab, done = newlab('L_poll'), newlab('L_polldone')
    a('s_mov_b64 exec, %s' % sp(sMK))
    a('s_mov_b32 s%d, 0' % sSPIN)
    a.label(lab)
    a('buffer_load_dword v253, v%d, %s, 0 offen sc1' % (voff, srd(S_WS)))
    a('s_waitcnt vmcnt(0)')
    a('v_cmp_ne_u32 vcc, s%d, v253' % sT)
    a('s_nop 4')
    a('s_cbranch_vccz %s' % done)
    a('s_add_u32 s%d, s%d, 1' % (sSPIN, sSPIN))
    a('s_cmp_lt_u32 s%d, %d' % (sSPIN, SPIN_LIMIT))
    a('s_cbranch_scc1 %s' % lab)
    a('s_add_u32 s%d, s%d, 1' % (sERR, sERR))
    a.label(done)
    a('s_mov_b64 exec, -1')


def store(fmt, cond=None):
    if cond is None or NOFAST:
        a(fmt + ' sc1')
        return
    slow, done = newlab('L_slow'), newlab('L_st')
    a('s_cmp_eq_u32 s%d, 0' % cond)
    a('s_cbranch_scc1 %s' % slow)
    a(fmt)
    a('s_branch %s' % done)
    a.label(slow)
    a(fmt + ' sc1')
    a.vm_issued -= 1
    a.label(done)


def set_flags(voff, nlanes, cond=None, val=V_T):
    a('s_waitcnt vmcnt(0)')
    a('s_mov_b64 exec, %d' % ((1 << nlanes) - 1))
    store('buffer_store_dword v%d, v%d, %s, 0 offen' % (val, voff, srd(S_WS)), cond)
    a('s_mov_b64 exec, -1')


def xg_reduce(x, t, op='v_add_f32'):
    return ['v_mov_b32 v%d, v%d' % (t, x),
            'v_permlane32_swap_b32 v%d, v%d' % (x, t),
            '%s v%d, v%d, v%d' % (op, x, x, t),
            'v_mov_b32 v%d, v%d' % (t, x),
            'v_permlane16_swap_b32 v%d, v%d' % (x, t),
            '%s v%d, v%d, v%d' % (op, x, x, t)]


EPS = 1e-5


def stats_finish(s1, s2, t, double_ln):
    o = ['v_mul_f32 v%d, %s, v%d' % (s1, f2h(1.0 / 448), s1),
         'v_mul_f32 v%d, %s, v%d' % (s2, f2h(1.0 / 448), s2),
         'v_fma_f32 v%d, -v%d, v%d, v%d' % (s2, s1, s1, s2),
         'v_max_f32 v%d, 0, v%d' % (s2, s2),
         'v_add_f32 v%d, %s, v%d' % (t, f2h(EPS), s2),
         'v_rsq_f32 v%d, v%d' % (t, t)]
    if not double_ln:
        o += ['v_mov_b32 v%d, v%d' % (s2, t)]
    else:
        o += ['v_mul_f32 v%d, v%d, v%d' % (s2, s2, t),
              'v_fmaak_f32 v%d, v%d, v%d, %s' % (s2, s2, t, f2h(EPS)),
              'v_rsq_f32 v%d, v%d' % (s2, s2),
              'v_mul_f32 v%d, v%d, v%d' % (s2, s2, t)]
    return o


def pair_base(dst, arr):
    a('s_mul_i32 s%d, s%d, %d' % (dst, sPAIR, arr[1] - arr[0]))
    a('s_add_u32 s%d, s%d, %d' % (dst, dst, arr[0]))


def quarter_offsets(n, stride):
    for t in range(n):
        if t:
            a('s_add_u32 s%d, s%d, %d' % (sO + 4 * t, sO + 4 * (t - 1), stride))
        for q in range(1, 4):
            a('s_add_u32 s%d, s%d, %d' % (sO + 4 * t + q, sO + 4 * t, 4096 * q))


a('s_cmp_ge_u32 s2, 256')
a('s_cbranch_scc1 L_end')
a('s_load_dwordx16 s[20:35], s[0:1], 0')
a('s_load_dwordx4 s[36:39], s[0:1], 64')
a('s_load_dwordx2 s[40:41], s[0:1], 80')
a('s_getreg_b32 s%d, hwreg(HW_REG_XCC_ID, 0, 4)' % sXCC)
a('s_and_b32 s%d, s2, 7' % sA)
a('s_lshr_b32 s%d, s2, 3' % sB)
a('s_lshr_b32 s%d, s%d, 4' % (sCc, sB))
a('s_lshl_b32 s%d, s%d, 1' % (sS, sA))
a('s_add_u32 s%d, s%d, s%d' % (sS, sS, sCc))
a('s_and_b32 s%d, s%d, 15' % (sC, sB))
a('s_lshr_b32 s%d, s%d, 3' % (sA, sC))
a('s_lshl_b32 s%d, s%d, 1' % (sG, sS))
a('s_add_u32 s%d, s%d, s%d' % (sG, sG, sA))
a('s_and_b32 s%d, s%d, 7' % (sJ, sC))
a('s_mov_b32 s%d, 0' % sERR)
a('v_lshrrev_b32 v2, 6, v0')
a('v_and_b32 v0, 63, v0')
a('v_readfirstlane_b32 s%d, v2' % sW)
a('v_lshlrev_b32 v1, 4, v0')
if DIAG:
    a('v_mov_b32 v%d, 0' % V_STAMP)
    a('s_mov_b32 s%d, 0' % sSTI)
stamp()
a('v_and_b32 v%d, 15, v0' % V_TOK)
a('v_lshrrev_b32 v%d, 4, v0' % V_G)
sSTG = sO + 15
a('s_lshl_b32 s%d, s%d, 14' % (sSTG, sW))
a('s_add_u32 s%d, s%d, %d' % (sSTG, sSTG, L.L_R2))
a('s_waitcnt lgkmcnt(0)')
if DBG:
    a('s_memtime s[26:27]')
    a('s_memrealtime s[0:1]')
    a('s_waitcnt lgkmcnt(0)')
build_srd(S_WS, P_WSP, L.WS_USED)
a('buffer_load_dword v%d, off, %s, 0 sc1' % (V_T, srd(S_WS)))

build_srd(S_TMP, P_X, 2048 * 896)
a('v_mul_u32_u24 v2, 896, v%d' % V_TOK)
a('v_lshl_add_u32 v2, v%d, 3, v2' % V_G)
a('s_lshr_b32 s%d, s%d, 1' % (sA, sC))
a('s_lshl_b32 s%d, s%d, 3' % (sB, sS))
a('s_add_u32 s%d, s%d, s%d' % (sO + 0, sA, sB))
a('s_and_b32 s%d, s%d, 1' % (sA, sC))
a('s_mul_i32 s%d, s%d, 7' % (sA, sA))
a('s_add_u32 s%d, s%d, s%d' % (sO + 1, sA, sW))
a('s_cmp_lt_u32 s%d, 3' % sW)
a('s_cselect_b32 s%d, 0, 0x%x' % (sO + 2, INV))
a('s_mul_i32 s%d, s%d, 14336' % (sA, sO + 0))
a('s_lshl_b32 s%d, s%d, 6' % (sB, sO + 1))
a('s_add_u32 s%d, s%d, s%d' % (sA, sA, sB))
a('v_or_b32 v3, s%d, v2' % (sO + 2))
a('buffer_load_dwordx2 v[10:11], v2, %s, s%d offen' % (srd(S_TMP), sA))
a('buffer_load_dwordx2 v[12:13], v2, %s, s%d offen offset:32' % (srd(S_TMP), sA))
a('buffer_load_dwordx2 v[14:15], v3, %s, s%d offen offset:256' % (srd(S_TMP), sA))
a('buffer_load_dwordx2 v[16:17], v3, %s, s%d offen offset:288' % (srd(S_TMP), sA))

build_srd(S_TMP, P_WQKV, 448 * 2688)
qMAT, qU, qINV = sO + 3, sO + 4, sO + 5
a('s_lshl_b32 s%d, s%d, 4' % (sA, sW))
a('s_add_u32 s%d, s%d, s%d' % (sA, sA, sS))
a('s_cmp_lt_u32 s%d, 42' % sA)
a('s_cselect_b32 s%d, 0, 0x%x' % (qINV, INV))
a('s_min_u32 s%d, s%d, 41' % (sA, sA))
a('s_mul_i32 s%d, s%d, 4682' % (qMAT, sA))
a('s_lshr_b32 s%d, s%d, 16' % (qMAT, qMAT))
a('s_mul_i32 s%d, s%d, 14' % (sB, qMAT))
a('s_sub_u32 s%d, s%d, s%d' % (qU, sA, sB))
a('s_mul_i32 s%d, s%d, %d' % (sA, qU, 32 * 2688))
a('s_mul_i32 s%d, s%d, 896' % (sB, qMAT))
a('s_add_u32 s%d, s%d, s%d' % (sA, sA, sB))
a('s_mul_i32 s%d, s%d, 56' % (sB, sC))
a('s_add_u32 s%d, s%d, s%d' % (sA, sA, sB))
a('v_lshrrev_b32 v4, 2, v0')
a('v_mul_u32_u24 v4, 2688, v4')
a('v_and_b32 v5, 3, v0')
a('v_lshl_add_u32 v4, v5, 4, v4')
a('v_or_b32 v4, s%d, v4' % qINV)
a('s_mov_b32 m0, s%d' % sSTG)
a('s_add_u32 s%d, s%d, %d' % (sB, sA, 16 * 2688))
a('buffer_load_dwordx4 v4, %s, s%d offen lds' % (srd(S_TMP), sA))
a('s_add_u32 m0, s%d, 1024' % sSTG)
a('s_nop 0')
a('buffer_load_dwordx4 v4, %s, s%d offen lds' % (srd(S_TMP), sB))

bINV, bDST, bSTR = sO + 6, sO + 7, sO + 8
a('s_lshl_b32 s%d, s%d, 5' % (sA, sW))
a('s_add_u32 s%d, s%d, s%d' % (sA, sA, sG))
a('s_cmp_lt_u32 s%d, 72' % sA)
a('s_cselect_b32 s%d, 0, 0x%x' % (bINV, INV))
a('s_cmp_eq_u32 s%d, 7' % sJ)
a('s_cselect_b32 s%d, 0x%x, s%d' % (bINV, INV, bINV))
a('s_min_u32 s%d, s%d, 71' % (sA, sA))
a('s_min_u32 s%d, s%d, 6' % (sD, sJ))
a('s_cmp_lt_u32 s%d, 16' % sA)
a('s_cselect_b32 s%d, s%d, s%d' % (S_TMP, P_WO, P_W2))
a('s_cselect_b32 s%d, s%d, s%d' % (S_TMP + 1, P_WO + 1, P_W2 + 1))
a('s_mov_b32 s%d, 0x%x' % (S_TMP + 2, 1792 * 896))
a('s_cselect_b32 s%d, 0x%x, s%d' % (S_TMP + 2, 448 * 896, S_TMP + 2))
a('s_cselect_b32 s%d, 28, 32' % sB)
a('s_cselect_b32 s%d, 0, 16' % sCc)
a('s_mov_b32 s%d, %d' % (bSTR, 56 * 1024))
a('s_cselect_b32 s%d, %d, s%d' % (bSTR, 16 * 1024, bSTR))
a('s_mov_b32 s%d, %d' % (bDST, L.WD))
a('s_cselect_b32 s%d, %d, s%d' % (bDST, L.WB, bDST))
a('s_cselect_b32 s%d, 0x%x, 0' % (sO + 9, INV))
a('s_and_b32 s%d, s%d, 0xffff' % (S_TMP + 1, S_TMP + 1))
a('s_mov_b32 s%d, 0x20000' % (S_TMP + 3))
a('s_sub_u32 s%d, s%d, s%d' % (sA, sA, sCc))
a('s_lshl_b32 s%d, s%d, 10' % (sCc, sA))
a('s_add_u32 s%d, s%d, s%d' % (bDST, bDST, sCc))
a('s_lshl_b32 s%d, s%d, 2' % (sCc, sD))
a('s_mul_i32 s%d, s%d, s%d' % (sCc, sCc, bSTR))
a('s_add_u32 s%d, s%d, s%d' % (bDST, bDST, sCc))
a('s_mul_i32 s%d, s%d, s%d' % (sA, sA, sB))
a('s_mul_i32 s%d, s%d, 896' % (sA, sA))
a('s_lshl_b32 s%d, s%d, 7' % (sB, sD))
a('s_add_u32 s%d, s%d, s%d' % (sA, sA, sB))
a('v_lshrrev_b32 v6, 3, v0')
a('v_mul_u32_u24 v6, 896, v6')
a('v_and_b32 v5, 7, v0')
a('v_lshl_add_u32 v6, v5, 4, v6')
a('v_or_b32 v6, s%d, v6' % bINV)
a('v_cmp_lt_u32 vcc, 31, v0')
a('v_mov_b32 v7, s%d' % (sO + 9))
a('v_cndmask_b32 v7, 0, v7, vcc')
a('v_or_b32 v7, v7, v6')
for q in range(4):
    a('s_add_u32 m0, s%d, %d' % (sSTG, 2048 + 1024 * q))
    if q:
        a('s_add_u32 s%d, s%d, %d' % (sA, sA, 8 * 896))
    else:
        a('s_nop 0')
    a('buffer_load_dwordx4 v%d, %s, s%d offen lds' % (7 if q == 3 else 6, srd(S_TMP), sA))

build_srd(S_TMP, P_W1, 448 * 3584)
cINV, cNT = sO + 10, sO + 11
a('s_cmp_lt_u32 s%d, 16' % sG)
a('s_cselect_b32 s%d, 0, 0x%x' % (cINV, INV))
a('s_cmp_eq_u32 s%d, 7' % sJ)
a('s_cselect_b32 s%d, 0x%x, s%d' % (cINV, INV, cINV))
a('s_min_u32 s%d, s%d, 6' % (sD, sJ))
a('s_lshl_b32 s%d, s%d, 4' % (cNT, sD))
a('s_and_b32 s%d, s%d, 15' % (sA, sG))
a('s_add_u32 s%d, s%d, s%d' % (cNT, cNT, sA))
a('s_cmp_lt_u32 s%d, 2' % sW)
a('s_cselect_b32 s%d, s%d, 0x%x' % (sO + 12, cINV, INV))
a('v_lshrrev_b32 v8, 1, v0')
a('v_mul_u32_u24 v8, 3584, v8')
a('v_and_b32 v5, 1, v0')
a('v_lshl_add_u32 v8, v5, 4, v8')
a('v_or_b32 v9, s%d, v8' % (sO + 12))
a('v_or_b32 v8, s%d, v8' % cINV)
a('s_lshl_b32 s%d, s%d, 5' % (sB, cNT))
for i in range(4):
    a('s_add_u32 s%d, s%d, %d' % (sA, sW, 4 * i))
    a('s_min_u32 s%d, s%d, 13' % (sA, sA))
    a('s_mul_i32 s%d, s%d, %d' % (sA, sA, 32 * 3584))
    a('s_add_u32 s%d, s%d, s%d' % (sA, sA, sB))
    a('s_add_u32 m0, s%d, %d' % (sSTG, 6144 + 1024 * i))
    a('s_nop 0')
    a('buffer_load_dwordx4 v%d, %s, s%d offen lds' % (9 if i == 3 else 8, srd(S_TMP), sA))
build_srd(S_B1, P_B1, 1792 * 2)
build_srd(S_OUT, P_OUT, 2048 * 896)
a('v_bfe_u32 v18, v0, 2, 2')
a('v_lshl_add_u32 v18, v%d, 2, v18' % V_G)
a('v_and_b32 v19, 3, v0')
a('v_lshlrev_b32 v19, 3, v19')
a('s_waitcnt vmcnt(8)')
stamp()

a('s_mov_b32 s%d, 0x9E3779B1' % sA)
a('v_mul_lo_u32 v%d, v%d, s%d' % (V_T, V_T, sA))
a('v_add_u32 v%d, 0x7F4A7C15, v%d' % (V_T, V_T))
a('v_and_b32 v%d, -16, v%d' % (V_T, V_T))
a('v_lshl_add_u32 v20, v18, 6, v19')
a('v_add_u32 v20, s%d, v20' % sSTG)
for hf in range(2):
    a('ds_read_b64_tr_b16 %s, v20 offset:%d' % (vr(24 + 4 * hf, 2), 32 * hf))
    a('ds_read_b64_tr_b16 %s, v20 offset:%d' % (vr(26 + 4 * hf, 2), 32 * hf + 1024))
a('v_readfirstlane_b32 s%d, v%d' % (sT, V_T))
a('s_mul_i32 s%d, s%d, 14' % (sA, sO + 0))
a('s_add_u32 s%d, s%d, s%d' % (sA, sA, sO + 1))
a('s_lshl_b32 s%d, s%d, 10' % (sB, sA))
a('s_add_u32 s%d, s%d, %d' % (sB, sB, L.XA[0]))
a('v_or_b32 v3, s%d, v1' % (sO + 2))
a('buffer_store_dwordx4 v[10:13], v1, %s, s%d offen sc1' % (srd(S_WS), sB))
a('s_add_u32 s%d, s%d, 4096' % (sB, sB))
a('buffer_store_dwordx4 v[14:17], v3, %s, s%d offen sc1' % (srd(S_WS), sB))
a('v_cmp_gt_u32 vcc, 12, v%d' % V_TOK)
a('s_mul_i32 s%d, s%d, 84' % (sB, sC))
a('s_mul_i32 s%d, s%d, 28' % (sCc, qMAT))
a('s_add_u32 s%d, s%d, s%d' % (sB, sB, sCc))
a('s_add_u32 s%d, s%d, s%d' % (sB, sB, qU))
a('s_lshl_b32 s%d, s%d, 10' % (sB, sB))
a('s_add_u32 s%d, s%d, %d' % (sB, sB, L.WA))
a('v_or_b32 v4, s%d, v1' % qINV)
a('s_waitcnt lgkmcnt(0)')
for p in range(4):
    a('v_cndmask_b32 v%d, 0, v%d, vcc' % (28 + p, 28 + p))
a('buffer_store_dwordx4 v[24:27], v4, %s, s%d offen sc1' % (srd(S_WS), sB))
a('s_add_u32 s%d, s%d, %d' % (sB, sB, 14 * 1024))
a('buffer_store_dwordx4 v[28:31], v4, %s, s%d offen sc1' % (srd(S_WS), sB))
a('v_mov_b32 v2, 0x3f803f80')
for k in range(2):
    x, s1, s2 = 10 + 4 * k, 110 + 2 * k, 111 + 2 * k
    a('v_mov_b32 v%d, 0' % s1)
    a('v_mov_b32 v%d, 0' % s2)
    for p in range(4):
        a('v_dot2_f32_bf16 v%d, v%d, v2, v%d' % (s1, x + p, s1))
        a('v_dot2_f32_bf16 v%d, v%d, v%d, v%d' % (s2, x + p, x + p, s2))
    for t in xg_reduce(s1, 114) + xg_reduce(s2, 115):
        a(t)
a('s_lshl_b32 s%d, s%d, 7' % (sB, sA))
a('s_add_u32 s%d, s%d, %d' % (sB, sB, L.SA[0]))
a('v_lshlrev_b32 v2, 3, v%d' % V_TOK)
a('v_or_b32 v3, s%d, v2' % (sO + 2))
a('s_mov_b64 exec, 0xffff')
a('buffer_store_dwordx2 v[110:111], v2, %s, s%d offen sc1' % (srd(S_WS), sB))
a('buffer_store_dwordx2 v[112:113], v3, %s, s%d offen offset:512 sc1' % (srd(S_WS), sB))
a('s_mov_b64 exec, -1')
a('s_lshl_b32 s%d, s%d, 4' % (sA, sO + 0))
a('s_add_u32 s%d, s%d, s%d' % (sA, sA, sO + 1))
a('s_lshl_b32 s%d, s%d, 2' % (sA, sA))
a('s_add_u32 s%d, s%d, %d' % (sA, sA, L.FX[0]))
a('v_lshlrev_b32 v2, 4, v0')
a('v_add_u32 v2, s%d, v2' % sA)
a('v_cmp_eq_u32 vcc, 1, v0')
a('v_mov_b32 v3, s%d' % (sO + 2))
a('v_cndmask_b32 v3, 0, v3, vcc')
a('v_or_b32 v2, v2, v3')
a('s_lshl_b32 s%d, s%d, 6' % (sA, sC))
a('s_lshl_b32 s%d, s%d, 2' % (sB, sS))
a('s_add_u32 s%d, s%d, s%d' % (sA, sA, sB))
a('s_add_u32 s%d, s%d, s%d' % (sA, sA, sW))
a('s_lshl_b32 s%d, s%d, 2' % (sA, sA))
a('s_add_u32 s%d, s%d, %d' % (sA, sA, L.FQ))
a('v_mov_b32 v3, s%d' % sA)
a('v_cmp_eq_u32 vcc, 2, v0')
a('v_cndmask_b32 v2, v2, v3, vcc')
a('s_lshl_b32 s%d, s%d, 4' % (sA, sS))
a('s_add_u32 s%d, s%d, s%d' % (sA, sA, sC))
a('s_lshl_b32 s%d, s%d, 2' % (sA, sA))
a('s_add_u32 s%d, s%d, %d' % (sA, sA, L.FXC))
a('s_cmp_eq_u32 s%d, 0' % sW)
a('s_cselect_b32 s%d, s%d, 0x%x' % (sA, sA, INV))
a('v_mov_b32 v3, s%d' % sA)
a('v_cmp_eq_u32 vcc, 3, v0')
a('v_cndmask_b32 v2, v2, v3, vcc')
a('v_or_b32 v3, s%d, v%d' % (sXCC, V_T))
a('v_cndmask_b32 v3, v%d, v3, vcc' % V_T)
set_flags(2, 4, None, 3)
stamp()

a('v_lshl_add_u32 v20, v18, 7, v19')
a('v_add_u32 v20, s%d, v20' % sSTG)
for t in range(4):
    a('ds_read_b64_tr_b16 %s, v20 offset:%d' % (vr(24 + 4 * t, 2), 2048 + 32 * t))
    a('ds_read_b64_tr_b16 %s, v20 offset:%d' % (vr(26 + 4 * t, 2), 2048 + 32 * t + 2048))
a('v_lshl_add_u32 v21, v18, 5, v19')
a('v_add_u32 v21, s%d, v21' % sSTG)
for i in range(4):
    a('ds_read_b64_tr_b16 %s, v21 offset:%d' % (vr(40 + 4 * i, 2), 6144 + 1024 * i))
    a('ds_read_b64_tr_b16 %s, v21 offset:%d' % (vr(42 + 4 * i, 2), 6144 + 1024 * i + 512))
a('v_or_b32 v6, s%d, v1' % bINV)
a('s_waitcnt lgkmcnt(8)')
for t in range(4):
    a('buffer_store_dwordx4 %s, v6, %s, s%d offen sc1' % (vr(24 + 4 * t), srd(S_WS), bDST))
    if t < 3:
        a('s_add_u32 s%d, s%d, s%d' % (bDST, bDST, bSTR))
a('s_mul_i32 s%d, s%d, 14' % (sA, cNT))
a('s_add_u32 s%d, s%d, s%d' % (sA, sA, sW))
a('s_lshl_b32 s%d, s%d, 10' % (sA, sA))
a('s_add_u32 s%d, s%d, %d' % (sA, sA, L.WC))
a('v_or_b32 v8, s%d, v1' % cINV)
a('v_or_b32 v9, s%d, v1' % (sO + 12))
a('v_mov_b32 v2, 0x3f803f80')
a('v_mov_b32 v110, 0')
a('s_waitcnt lgkmcnt(0)')
for i in range(4):
    a('buffer_store_dwordx4 %s, v%d, %s, s%d offen sc1' % (vr(40 + 4 * i), 9 if i == 3 else 8, srd(S_WS), sA))
    a('s_add_u32 s%d, s%d, 4096' % (sA, sA))
for i in range(4):
    for p in range(4):
        a('v_dot2_f32_bf16 v110, v%d, v2, v110' % (40 + 4 * i + p))
for t in xg_reduce(110, 114):
    a(t)
a('s_lshl_b32 s%d, s%d, 6' % (sA, sW))
a('s_add_u32 s%d, s%d, %d' % (sA, sA, L.L_CSR))
a('v_lshlrev_b32 v2, 2, v%d' % V_TOK)
a('v_add_u32 v3, s%d, v2' % sA)
a('ds_write_b32 v3, v110')
a('s_waitcnt lgkmcnt(0)')
a('s_barrier')
a('v_add_u32 v3, %d, v2' % L.L_CSR)
for i in range(4):
    a('ds_read_b32 v%d, v3 offset:%d' % (104 + i, 64 * i))
a('s_lshl_b32 s%d, s%d, 6' % (sB, cNT))
a('s_add_u32 s%d, s%d, %d' % (sB, sB, L.CSC))
a('s_cmp_eq_u32 s%d, 0' % sW)
a('s_cselect_b32 s%d, s%d, 0x%x' % (sA, cINV, INV))
a('v_or_b32 v2, s%d, v2' % sA)
a('s_waitcnt lgkmcnt(0)')
a('v_add_f32 v104, v104, v105')
a('v_add_f32 v106, v106, v107')
a('v_add_f32 v104, v104, v106')
a('s_mov_b64 exec, 0xffff')
a('buffer_store_dword v104, v2, %s, s%d offen sc1' % (srd(S_WS), sB))
a('s_mov_b64 exec, -1')

a('v_and_b32 v2, 1, v%d' % V_TOK)
a('v_lshlrev_b32 v3, 2, v%d' % V_G)
a('v_add_u32 v6, 2, v%d' % V_TOK)
for i in range(4):
    a('v_add_u32 v4, %d, v3' % i)
    a('v_cmp_eq_u32 vcc, %d, v2' % (i & 1))
    a('s_mov_b64 %s, vcc' % sp(sMK))
    a('v_cmp_ge_u32 vcc, v4, v6')
    a('s_and_b64 %s, vcc, %s' % (sp(sM1 + 2 * i), sp(sMK)))
    a('v_cmp_le_u32 vcc, v4, v%d' % V_TOK)
    a('s_and_b64 %s, vcc, %s' % (sp(sM2 + 2 * i), sp(sMK)))
a('s_lshl_b32 s%d, s%d, 3' % (sA, sS))
a('s_lshl_b32 s%d, s%d, 1' % (sB, sW))
a('s_add_u32 s%d, s%d, s%d' % (sGT, sA, sB))
a('s_cmp_eq_u32 s%d, 0' % sGT)
for i in range(4):
    a('s_cselect_b64 %s, 0, %s' % (sp(sM0 + 2 * i), sp(sM1 + 2 * i)))
a('s_mov_b32 s%d, 0' % sPAIR)
a('s_waitcnt vmcnt(0)')
a('s_barrier')
a('s_lshl_b32 s%d, s%d, 5' % (sA, sJ))
a('s_add_u32 s%d, s%d, s%d' % (sA, sA, sG))
a('s_lshl_b32 s%d, s%d, 2' % (sA, sA))
a('s_add_u32 s%d, s%d, %d' % (sA, sA, L.FP))
a('s_cmp_eq_u32 s%d, 0' % sW)
a('s_cselect_b32 s%d, s%d, 0x%x' % (sA, sA, INV))
a('v_mov_b32 v2, s%d' % sA)
set_flags(2, 1)
stamp()


def a_flag_addr(dst):
    pair_base(sA, L.FX)
    a('s_lshl_b32 s%d, s%d, 6' % (sB, sGT))
    a('s_add_u32 s%d, s%d, s%d' % (sA, sA, sB))
    a('s_sub_u32 s%d, s%d, 64' % (sA, sA))
    a('v_lshl_add_u32 v%d, v0, 2, s%d' % (dst, sA))
    a('s_mov_b32 s%d, 0x3fff3fff' % sMK)
    a('s_mov_b32 s%d, 0x3fff' % (sMK + 1))
    a('s_cmp_eq_u32 s%d, 0' % sGT)
    a('s_cselect_b32 s%d, 0x3fff0000, s%d' % (sMK, sMK))


a('s_lshl_b32 s%d, s%d, 8' % (sA, sC))
a('s_add_u32 s%d, s%d, %d' % (sA, sA, L.FQ))
a('v_lshl_add_u32 v2, v0, 2, s%d' % sA)
a_flag_addr(3)
a('s_lshl_b32 s%d, s%d, 6' % (sA, sS))
a('s_add_u32 s%d, s%d, %d' % (sA, sA, L.FXC - 48 * 4))
a('v_lshl_add_u32 v4, v0, 2, s%d' % sA)
a('v_cmp_lt_u32 vcc, 47, v0')
a('v_cndmask_b32 v3, v3, v4, vcc')
a('v_mov_b32 v5, -1')
a('v_mov_b32 v6, -16')
a('v_cndmask_b32 v5, v5, v6, vcc')
a('s_or_b32 s%d, s%d, 0xffff0000' % (sMK + 1, sMK + 1))
a('s_mov_b32 s%d, 0' % sSPIN)
a.label('L_poll0')
a('buffer_load_dword v7, v2, %s, 0 offen sc1' % srd(S_WS))
a('s_mov_b64 exec, %s' % sp(sMK))
a('buffer_load_dword v8, v3, %s, 0 offen sc1' % srd(S_WS))
a('s_waitcnt vmcnt(0)')
a('v_and_b32 v9, v5, v8')
a('v_cmp_ne_u32 vcc, s%d, v9' % sT)
a('s_mov_b64 exec, -1')
a('s_mov_b64 %s, vcc' % sp(sTS))
a('v_cmp_ne_u32 vcc, s%d, v7' % sT)
a('s_or_b64 vcc, vcc, %s' % sp(sTS))
a('s_cbranch_vccz L_poll0_done')
a('s_add_u32 s%d, s%d, 1' % (sSPIN, sSPIN))
a('s_cmp_lt_u32 s%d, %d' % (sSPIN, SPIN_LIMIT))
a('s_cbranch_scc1 L_poll0')
a('s_add_u32 s%d, s%d, 1' % (sERR, sERR))
a.label('L_poll0_done')
a('v_and_b32 v9, 15, v8')
a('v_cmp_ne_u32 vcc, s%d, v9' % sXCC)
a('s_and_b32 s%d, vcc_hi, 0xffff0000' % sA)
a('s_cmp_eq_u32 s%d, 0' % sA)
a('s_cselect_b32 s%d, 1, 0' % sFAST)
stamp()
a('s_mul_i32 s%d, s%d, %d' % (sA, sC, 84 * 1024))
a('s_mul_i32 s%d, s%d, %d' % (sB, sW, 21 * 1024))
a('s_add_u32 s%d, s%d, s%d' % (sA, sA, sB))
a('s_add_u32 s%d, s%d, %d' % (sA, sA, L.WA))
a('s_add_u32 s%d, s%d, %d' % (sB, sB, L.L_WA))
for q in range(6):
    a('s_mov_b32 m0, s%d' % sB)
    a('s_nop 0')
    for k in range(4 if q < 5 else 1):
        a('buffer_load_dwordx4 v1, %s, s%d offen offset:%d sc1 lds' % (srd(S_WS), sA, 1024 * k))
    if q < 5:
        a('s_add_u32 s%d, s%d, 4096' % (sA, sA))
        a('s_add_u32 s%d, s%d, 4096' % (sB, sB))
wa_mark = a.vm_mark()

AQ, AK, AV = 2, 18, 42
WBUF = [66, 90]
XR = 114
STR = 210
SM, SR = 234, 237
NR, LOOK = 8, 4


def a_xload(u):
    slot = u % NR
    return ['buffer_load_dwordx4 %s, v1, %s, s%d offen offset:%d sc1' %
            (vr(XR + (slot * 3 + t) * 4), srd(S_WS), sO + 4 * t + (u >> 2), 1024 * (u & 3)) for t in range(3)]


def a_issue():
    pair_base(sA, L.XA)
    a('s_mul_i32 s%d, s%d, 14336' % (sB, sGT))
    a('s_add_u32 s%d, s%d, s%d' % (sO + 4, sA, sB))
    a('s_add_u32 s%d, s%d, 14336' % (sO + 8, sO + 4))
    a('s_sub_u32 s%d, s%d, 14336' % (sO + 0, sO + 4))
    a('s_cmp_eq_u32 s%d, 0' % sGT)
    a('s_cselect_b32 s%d, s%d, s%d' % (sO + 0, sO + 4, sO + 0))
    for t in range(3):
        for q in range(1, 4):
            a('s_add_u32 s%d, s%d, %d' % (sO + 4 * t + q, sO + 4 * t, 4096 * q))
    marks = {}
    for u in range(LOOK):
        for t in a_xload(u):
            a(t)
        marks[u] = a.vm_mark()
    return marks


a_issue()
a.wait_vm(wa_mark)
a('s_barrier')
stamp()
for p in range(4):
    a('v_mov_b32 v%d, 0x3f803f80' % (4 + p))
a('s_mul_i32 s%d, s%d, %d' % (sB, sW, 14 * 1024))
a('v_add_u32 v2, s%d, v1' % sB)
a('s_cmp_lt_u32 s%d, 2' % sW)
a('s_cselect_b32 s%d, %d, 0' % (sB, 56 * 1024))
a('v_add_u32 v3, s%d, v2' % sB)
for u in range(7):
    for hh in range(2):
        a('ds_read_b128 %s, v2 offset:%d' % (vr(16 + 8 * u + 4 * hh), 1024 * (2 * u + hh)))
for u in range(5):
    for hh in range(2):
        a('ds_read_b128 %s, v3 offset:%d' % (vr(72 + 8 * u + 4 * hh) if u < 5 else '', 1024 * (2 * u + hh)))
a('s_waitcnt lgkmcnt(10)')
for u in range(14):
    a('%s %s, %s, v[4:7], %s' % (MFMA, vr(8 + 4 * (u & 1)) if False else 'v[8:11]', vr(16 + 4 * u), '0' if u == 0 else 'v[8:11]'))
a('s_waitcnt lgkmcnt(0)')
for u in range(10):
    a('%s v[12:15], %s, v[4:7], %s' % (MFMA, vr(72 + 4 * u), '0' if u == 0 else 'v[12:15]'))
for u in range(4):
    a('ds_read_b128 %s, v3 offset:%d' % (vr(16 + 4 * u), 1024 * (10 + u)))
a('s_waitcnt lgkmcnt(0)')
for u in range(4):
    a('%s v[12:15], %s, v[4:7], v[12:15]' % (MFMA, vr(16 + 4 * u)))
a('v_cmp_eq_u32 vcc, 0, v%d' % V_TOK)
a('s_lshl_b32 s%d, s%d, 6' % (sA, sW))
a('s_add_u32 s%d, s%d, %d' % (sA, sA, L.L_CSA))
a('v_lshl_add_u32 v3, v%d, 4, s%d' % (V_G, sA))
a('s_mov_b64 exec, vcc')
a('ds_write_b128 v3, v[8:11]')
a('s_cmp_lt_u32 s%d, 2' % sW)
a('s_cbranch_scc0 L_csa_done')
a('ds_write_b128 v3, v[12:15] offset:256')
a.label('L_csa_done')
a('s_mov_b64 exec, -1')
a('s_waitcnt lgkmcnt(0)')
a('s_barrier')
stamp()
a('s_branch L_a_main')

a.label('L_pair')
a_flag_addr(2)
poll(2)
stamp()
xmark = a_issue()
if DIAG:
    a('s_add_u32 s%d, s%d, 0' % (sSTI, sSTI))
a.label('L_a_main')
pair_base(sA, L.SA)
a('s_mul_i32 s%d, s%d, 1792' % (sB, sGT))
a('s_add_u32 s%d, s%d, s%d' % (sO + 13, sA, sB))
a('s_add_u32 s%d, s%d, 1792' % (sO + 14, sO + 13))
a('s_sub_u32 s%d, s%d, 1792' % (sO + 12, sO + 13))
a('s_cmp_eq_u32 s%d, 0' % sGT)
a('s_cselect_b32 s%d, s%d, s%d' % (sO + 12, sO + 13, sO + 12))
a('v_and_b32 v%d, 15, v0' % V_TOK)
a('v_lshrrev_b32 v%d, 4, v0' % V_G)
a('v_lshlrev_b32 v240, 3, v%d' % V_TOK)
a('v_lshl_add_u32 v240, v%d, 7, v240' % V_G)
a('v_mov_b32 v242, 0x%x' % INV)
a('v_cmp_lt_u32 vcc, 1, v%d' % V_G)
a('v_cndmask_b32 v241, 0, v242, vcc')
a('v_or_b32 v241, v241, v240')
a('v_add_u32 v243, %d, v1' % (56 * 1024))
a('v_lshlrev_b32 v244, 4, v%d' % V_G)
a('v_add_u32 v244, %d, v244' % L.L_CSA)
a('v_lshlrev_b32 v245, 2, v%d' % V_TOK)
a('v_add_u32 v245, %d, v245' % L.L_CSA)
stat_loads = ['buffer_load_dwordx2 %s, v%d, %s, s%d offen offset:%d sc1' %
              (vr(STR + (t * 4 + i) * 2, 2), 241 if i == 3 else 240, srd(S_WS), sO + 12 + t, 512 * i)
              for t in range(3) for i in range(4)]


def a_wread(u):
    b = WBUF[u & 1]
    o = []
    for p in range(6):
        if p < 4:
            o.append('ds_read_b128 %s, v1 offset:%d' % (vr(b + 4 * p), L.L_WA + (p * 14 + u) * 1024))
        else:
            o.append('ds_read_b128 %s, v243 offset:%d' % (vr(b + 4 * p), L.L_WA + ((p - 4) * 14 + u) * 1024))
    return o


for t in a_wread(0):
    a(t)
stat_fill = []
for t in range(3):
    r = STR + 8 * t
    for c_ in range(2):
        stat_fill += ['v_add_f32 v%d, v%d, v%d' % (r + c_, r + c_, r + 2 + c_),
                      'v_add_f32 v%d, v%d, v%d' % (r + 4 + c_, r + 4 + c_, r + 6 + c_),
                      'v_add_f32 v%d, v%d, v%d' % (r + c_, r + c_, r + 4 + c_)]
    stat_fill += xg_reduce(r, r + 2) + xg_reduce(r + 1, r + 3)
    stat_fill += stats_finish(r, r + 1, r + 2, False)
    stat_fill += ['v_mov_b32 v%d, v%d' % (SM + t, r), 'v_mov_b32 v%d, v%d' % (SR + t, r + 1)]

st_mark = None
for u in range(14):
    need = xmark[u]
    if u == 9:
        need = max(need, st_mark)
    a.wait_vm(need)
    a('s_waitcnt lgkmcnt(0)')
    wb = WBUF[u & 1]
    xs = XR + (u % NR) * 12
    mf = []
    cz = (lambda r: '0') if u == 0 else (lambda r: vr(r))
    for t in range(2):
        for hf in range(2):
            r = AQ + (t * 2 + hf) * 4
            mf.append('%s %s, %s, %s, %s' % (MFMA, vr(r), vr(wb + 4 * hf), vr(xs + 4 * (t + 1)), cz(r)))
    for t in range(3):
        for hf in range(2):
            r = AK + (t * 2 + hf) * 4
            mf.append('%s %s, %s, %s, %s' % (MFMA, vr(r), vr(wb + 8 + 4 * hf), vr(xs + 4 * t), cz(r)))
    for t in range(3):
        for hf in range(2):
            r = AV + (t * 2 + hf) * 4
            mf.append('%s %s, %s, %s, %s' % (MFMA, vr(r), vr(xs + 4 * t), vr(wb + 16 + 4 * hf), cz(r)))
    mem = {}
    if u < 13:
        for k, x in enumerate(a_wread(u + 1)):
            mem[k] = x
    else:
        for p in range(4):
            mem[p] = 'ds_read_b128 %s, v244 offset:%d' % (vr(WBUF[0] + 4 * p), 64 * p)
        for d in range(2):
            mem[4 + d] = 'ds_read_b32 v%d, v245 offset:%d' % (WBUF[0] + 16 + d, 64 * (4 + d))
    if u + LOOK < 14:
        xl = a_xload(u + LOOK)
        mem[6], mem[9], mem[12] = xl
    if u < 6:
        mem[8], mem[14] = stat_loads[2 * u], stat_loads[2 * u + 1]
    fill = []
    if u >= 9:
        n = (len(stat_fill) + 4) // 5
        fill = stat_fill[(u - 9) * n:(u - 8) * n]
    fi = 0
    for k, m in enumerate(mf):
        a(m)
        if k in mem:
            a(mem[k])
            if k == 12 and u + LOOK < 14:
                xmark[u + LOOK] = a.vm_mark()
            if k == 14 and u == 5:
                st_mark = a.vm_mark()
        for _ in range(2):
            if fi < len(fill) and k >= 1:
                a(fill[fi])
                fi += 1
    assert fi == len(fill), (u, fi, len(fill))
stamp()
CSQ = WBUF[0]
a('s_mul_i32 s%d, s%d, 384' % (sA, sW))
a('s_add_u32 s%d, s%d, %d' % (sA, sA, L.L_STA))
a('v_lshl_add_u32 v246, v%d, 2, s%d' % (V_TOK, sA))
a('v_lshl_add_u32 v247, v%d, 4, s%d' % (V_G, sA))
a('s_mov_b64 exec, 0xffff')
for t in range(3):
    a('ds_write_b32 v246, v%d offset:%d' % (SM + t, 128 * t))
    a('ds_write_b32 v246, v%d offset:%d' % (SR + t, 128 * t + 64))
a('s_mov_b64 exec, -1')
MROW, RROW = 114, 126
a('s_waitcnt lgkmcnt(0)')
for t in range(3):
    a('ds_read_b128 %s, v247 offset:%d' % (vr(MROW + 4 * t), 128 * t))
    a('ds_read_b128 %s, v247 offset:%d' % (vr(RROW + 4 * t), 128 * t + 64))
QF, KF, VF = 140, 148, 160
for t in range(2):
    for hf in range(2):
        r = AQ + (t * 2 + hf) * 4
        for i in range(4):
            a('v_fma_f32 v%d, -v%d, v%d, v%d' % (r + i, SM + t + 1, CSQ + 4 * hf + i, r + i))
        for p in range(2):
            a('v_cvt_pk_bf16_f32 v%d, v%d, v%d' % (QF + 4 * t + 2 * hf + p, r + 2 * p, r + 2 * p + 1))
for t in range(3):
    for hf in range(2):
        r = AK + (t * 2 + hf) * 4
        for i in range(4):
            a('v_fma_f32 v%d, -v%d, v%d, v%d' % (r + i, SM + t, CSQ + 8 + 4 * hf + i, r + i))
        for p in range(2):
            a('v_cvt_pk_bf16_f32 v%d, v%d, v%d' % (KF + 4 * t + 2 * hf + p, r + 2 * p, r + 2 * p + 1))
SS = 172
for t in range(2):
    a('%s %s, %s, %s, 0' % (MFMA, vr(SS + 8 * t), vr(KF + 4 * t), vr(QF + 4 * t)))
    a('%s %s, %s, %s, 0' % (MFMA, vr(SS + 8 * t + 4), vr(KF + 4 * t + 4), vr(QF + 4 * t)))
a('s_waitcnt lgkmcnt(0)')
for t in range(3):
    for d in range(2):
        r = AV + (t * 2 + d) * 4
        for i in range(4):
            a('v_fma_f32 v%d, -v%d, v%d, v%d' % (r + i, MROW + 4 * t + i, CSQ + 16 + d, r + i))
        for p in range(2):
            a('v_cvt_pk_bf16_f32 v%d, v%d, v%d' % (VF + 6 * d + 2 * t + p, r + 2 * p, r + 2 * p + 1))
SCALE = (28.0 ** -0.5) * 1.4426950408889634
MX, CC, LS, TMPR = 190, 192, 194, 196
PF = 200
a('v_mov_b32 v198, 0xff800000')
seq = [[], []]
for t in range(2):
    s = SS + 8 * t
    q = seq[t]
    for e in range(8):
        q.append('v_mul_f32 v%d, v%d, v%d' % (s + e, s + e, RROW + 4 * (t + (e >> 2)) + (e & 3)))
    for e in range(8):
        mk = (sM0 if t == 0 else sM1) + 2 * e if e < 4 else sM2 + 2 * (e - 4)
        q.append('v_cndmask_b32 v%d, v198, v%d, %s' % (s + e, s + e, sp(mk)))
    q.append('v_max3_f32 v%d, v%d, v%d, v%d' % (MX + t, s, s + 1, s + 2))
    q.append('v_max3_f32 v%d, v%d, v%d, v%d' % (MX + t, MX + t, s + 3, s + 4))
    q.append('v_max3_f32 v%d, v%d, v%d, v%d' % (MX + t, MX + t, s + 5, s + 6))
    q.append('v_max_f32 v%d, v%d, v%d' % (MX + t, MX + t, s + 7))
    q += xg_reduce(MX + t, TMPR + t, 'v_max_f32')
    q.append('v_mul_f32 v%d, %s, v%d' % (CC + t, f2h(SCALE), SR + t + 1))
    q.append('v_mul_f32 v%d, v%d, v%d' % (MX + t, MX + t, CC + t))
    for e in range(8):
        q.append('v_fma_f32 v%d, v%d, v%d, -v%d' % (s + e, s + e, CC + t, MX + t))
    for e in range(8):
        q.append('v_exp_f32 v%d, v%d' % (s + e, s + e))
    q.append('v_add_f32 v%d, v%d, v%d' % (LS + t, s, s + 1))
    for e in range(2, 8):
        q.append('v_add_f32 v%d, v%d, v%d' % (LS + t, LS + t, s + e))
    q += xg_reduce(LS + t, TMPR + t)
    q.append('v_rcp_f32 v%d, v%d' % (LS + t, LS + t))
    for e in range(8):
        q.append('v_mul_f32 v%d, v%d, v%d' % (s + e, s + e, RROW + 4 * (t + (e >> 2)) + (e & 3)))
    for p in range(4):
        q.append('v_cvt_pk_bf16_f32 v%d, v%d, v%d' % (PF + 4 * t + p, s + 2 * p, s + 2 * p + 1))
for x, y in zip(*seq):
    a(x)
    a(y)
OO = 208
for t in range(2):
    for d in range(2):
        a('%s %s, %s, %s, 0' % (MFMA, vr(OO + 8 * t + 4 * d), vr(VF + 6 * d + 2 * t), vr(PF + 4 * t)))
pair_base(sA, L.O)
a('s_lshl_b32 s%d, s%d, 4' % (sB, sGT))
a('s_add_u32 s%d, s%d, s%d' % (sB, sB, sC))
a('s_lshl_b32 s%d, s%d, 10' % (sB, sB))
a('s_add_u32 s%d, s%d, s%d' % (sA, sA, sB))
for t in range(2):
    for e in range(8):
        a('v_mul_f32 v%d, v%d, v%d' % (OO + 8 * t + e, OO + 8 * t + e, LS + t))
    for p in range(4):
        a('v_cvt_pk_bf16_f32 v%d, v%d, v%d' % (PF + 4 * t + p, OO + 8 * t + 2 * p, OO + 8 * t + 2 * p + 1))
    store('buffer_store_dwordx4 %s, v1, %s, s%d offen' % (vr(PF + 4 * t), srd(S_WS), sA), sFAST)
    if t == 0:
        a('s_add_u32 s%d, s%d, 16384' % (sA, sA))
pair_base(sA, L.FA)
a('s_lshl_b32 s%d, s%d, 4' % (sB, sGT))
a('s_add_u32 s%d, s%d, s%d' % (sB, sB, sC))
a('s_lshl_b32 s%d, s%d, 2' % (sB, sB))
a('s_add_u32 s%d, s%d, s%d' % (sA, sA, sB))
a('v_lshlrev_b32 v2, 6, v0')
a('v_add_u32 v2, s%d, v2' % sA)
set_flags(2, 2, sFAST)
stamp()
a('s_cmp_eq_u32 s%d, 7' % sJ)
a('s_cbranch_scc1 L_next_pair')


def wd_loads(lo, hi):
    a('s_lshl_b32 s%d, s%d, 2' % (sA, sJ))
    a('s_mul_i32 s%d, s%d, %d' % (sA, sA, 56 * 1024))
    a('s_mul_i32 s%d, s%d, %d' % (sB, sW, 14 * 1024))
    a('s_add_u32 s%d, s%d, s%d' % (sA, sA, sB))
    a('s_add_u32 s%d, s%d, %d' % (sO, sA, L.WD))
    quarter_offsets(4, 56 * 1024)
    for fi in range(lo, hi):
        kk, t = fi >> 2, fi & 3
        a('buffer_load_dwordx4 %s, v1, %s, s%d offen offset:%d sc1' %
          (ar(4 * fi), srd(S_WS), sO + 4 * t + (kk >> 2), 1024 * (kk & 3)))


WD_CH = [(0, 12), (12, 24), (24, 56)]
A_RES, A_B2 = 224, 232


def owner_index():
    a('s_lshr_b32 s%d, s%d, 1' % (sB, sW))
    a('s_lshl_b32 s%d, s%d, 2' % (sCc, sG))
    a('s_add_u32 s%d, s%d, s%d' % (sB, sB, sCc))
    a('s_and_b32 s%d, s%d, 1' % (sA, sW))
    a('s_lshl_b32 s%d, s%d, 1' % (sCc, sJ))
    a('s_add_u32 s%d, s%d, s%d' % (sA, sA, sCc))


BW, BO, BACC, BRD, BTMP = 2, 66, 130, 194, 226


def b_wloads():
    a('s_lshl_b32 s%d, s%d, 6' % (sA, sJ))
    a('s_lshl_b32 s%d, s%d, 2' % (sB, sW))
    a('s_add_u32 s%d, s%d, s%d' % (sA, sA, sB))
    a('s_lshl_b32 s%d, s%d, 10' % (sA, sA))
    a('s_add_u32 s%d, s%d, %d' % (sA, sA, L.WB))
    for t in range(4):
        for i in range(4):
            a('buffer_load_dwordx4 %s, v1, %s, s%d offen offset:%d sc1' % (vr(BW + (i * 4 + t) * 4), srd(S_WS), sA, 1024 * i))
        if t < 3:
            a('s_add_u32 s%d, s%d, %d' % (sA, sA, 16 * 1024))


a('s_cmp_eq_u32 s%d, 0' % sPAIR)
a('s_cbranch_scc0 L_b_start')
a('s_lshl_b32 s%d, s%d, 7' % (sA, sJ))
a('s_add_u32 s%d, s%d, %d' % (sA, sA, L.FP))
a('v_lshl_add_u32 v2, v0, 2, s%d' % sA)
a('s_mov_b32 s%d, -1' % sMK)
a('s_mov_b32 s%d, 0' % (sMK + 1))
poll(2)
a('s_lshl_b32 s%d, s%d, 8' % (sCc, sG))
a('s_add_u32 s%d, s%d, %d' % (sCc, sCc, L.FX[0]))
a('v_lshl_add_u32 v2, v0, 2, s%d' % sCc)
a('s_mov_b32 s%d, 0x3fff3fff' % sMK)
a('s_mov_b32 s%d, 0x3fff3fff' % (sMK + 1))
poll(2)
owner_index()
a('s_mul_i32 s%d, s%d, 14' % (sB, sB))
a('s_add_u32 s%d, s%d, s%d' % (sB, sB, sA))
a('s_lshl_b32 s%d, s%d, 10' % (sB, sB))
a('s_add_u32 s%d, s%d, %d' % (sB, sB, L.XA[0]))
a('buffer_load_dwordx4 %s, v1, %s, s%d offen sc1' % (ar(A_RES), srd(S_WS), sB))
a('s_add_u32 s%d, s%d, %d' % (sB, sB, 2 * 14336))
a('buffer_load_dwordx4 %s, v1, %s, s%d offen sc1' % (ar(A_RES + 4), srd(S_WS), sB))
build_srd(S_TMP, P_B2, 896)
a('s_lshl_b32 s%d, s%d, 6' % (sB, sA))
a('v_lshlrev_b32 v240, 3, v%d' % V_G)
a('buffer_load_dwordx2 v[232:233], v240, %s, s%d offen' % (srd(S_TMP), sB))
a('buffer_load_dwordx2 v[234:235], v240, %s, s%d offen offset:32' % (srd(S_TMP), sB))
b2_mark = a.vm_mark()
b_wloads()
a.wait_vm(b2_mark)
for k in range(4):
    a('v_lshlrev_b32 v236, 16, v%d' % (232 + k))
    a('v_and_b32 v237, 0xffff0000, v%d' % (232 + k))
    a('v_accvgpr_write_b32 a%d, v236' % (A_B2 + 2 * k))
    a('v_accvgpr_write_b32 a%d, v237' % (A_B2 + 2 * k + 1))
wd_loads(*WD_CH[0])
a('s_branch L_b_poll')
a.label('L_b_start')
b_wloads()
a.label('L_b_poll')


def red_writes(acc, tile):
    return ['ds_write_b128 v248, %s offset:%d' % (vr(acc + 4 * t), (tile >> 1) * 32768 + (tile & 1) * 4096 + t * 1024)
            for t in range(4)]


def red_reads(st, rd):
    return ['ds_read_b128 %s, v249 offset:%d' % (vr(rd + (b * 2 + k) * 4), st * 32768 + b * 8192 + k * 1024)
            for b in range(4) for k in range(2)]


def owner_finish(st, is_d, rd, tmp):
    res = A_RES + 4 * st
    for p in range(4):
        a('v_accvgpr_read_b32 v%d, a%d' % (tmp + 8 + p, res + p))
    for p in range(4):
        a('v_lshlrev_b32 v%d, 16, v%d' % (tmp + 2 * p, tmp + 8 + p))
        a('v_and_b32 v%d, 0xffff0000, v%d' % (tmp + 2 * p + 1, tmp + 8 + p))
    if is_d:
        for e in range(0, 8):
            a('v_accvgpr_read_b32 v%d, a%d' % (tmp + 8 + e, A_B2 + e))
        for e in range(0, 8, 2):
            a('v_pk_add_f32 %s, %s, %s' % (vr(tmp + e, 2), vr(tmp + e, 2), vr(tmp + 8 + e, 2)))
    a('s_waitcnt lgkmcnt(0)')
    for e in range(0, 8, 2):
        a('v_pk_add_f32 %s, %s, %s' % (vr(rd + e, 2), vr(rd + e, 2), vr(rd + 8 + e, 2)))
        a('v_pk_add_f32 %s, %s, %s' % (vr(rd + 16 + e, 2), vr(rd + 16 + e, 2), vr(rd + 24 + e, 2)))
    for e in range(0, 8, 2):
        a('v_pk_add_f32 %s, %s, %s' % (vr(rd + e, 2), vr(rd + e, 2), vr(rd + 16 + e, 2)))
    for e in range(0, 8, 2):
        a('v_pk_add_f32 %s, %s, %s' % (vr(tmp + e, 2), vr(tmp + e, 2), vr(rd + e, 2)))
    for p in range(4):
        a('v_cvt_pk_bf16_f32 v%d, v%d, v%d' % (rd + p, tmp + 2 * p, tmp + 2 * p + 1))
    for p in range(4):
        a('v_accvgpr_write_b32 a%d, v%d' % (res + p, rd + p))


def owner_stats(tmp, s1, s2, t):
    a('v_pk_add_f32 %s, %s, %s' % (vr(t, 2), vr(tmp, 2), vr(tmp + 2, 2)))
    a('v_pk_add_f32 %s, %s, %s' % (vr(t + 2, 2), vr(tmp + 4, 2), vr(tmp + 6, 2)))
    a('v_pk_add_f32 %s, %s, %s' % (vr(t, 2), vr(t, 2), vr(t + 2, 2)))
    a('v_add_f32 v%d, v%d, v%d' % (s1, t, t + 1))
    a('v_pk_mul_f32 %s, %s, %s' % (vr(t, 2), vr(tmp, 2), vr(tmp, 2)))
    for e in (2, 4, 6):
        a('v_pk_fma_f32 %s, %s, %s, %s' % (vr(t, 2), vr(tmp + e, 2), vr(tmp + e, 2), vr(t, 2)))
    a('v_add_f32 v%d, v%d, v%d' % (s2, t, t + 1))
    for x in xg_reduce(s1, t) + xg_reduce(s2, t + 1):
        a(x)


def red_addrs():
    a('s_lshl_b32 s%d, s%d, 13' % (sA, sW))
    a('s_add_u32 s%d, s%d, %d' % (sA, sA, L.L_R2))
    a('v_add_u32 v248, s%d, v1' % sA)
    a('s_and_b32 s%d, s%d, 1' % (sA, sW))
    a('s_lshl_b32 s%d, s%d, 11' % (sA, sA))
    a('s_lshr_b32 s%d, s%d, 1' % (sB, sW))
    a('s_lshl_b32 s%d, s%d, 12' % (sB, sB))
    a('s_add_u32 s%d, s%d, s%d' % (sA, sA, sB))
    a('s_add_u32 s%d, s%d, %d' % (sA, sA, L.L_R2))
    a('v_add_u32 v249, s%d, v1' % sA)


sPX, sPS, sPF, sPC = 36, 37, 28, 29


def publish_setup(xbase, sbase, fbase, per_pair):
    owner_index()
    a('s_mul_i32 s%d, s%d, 14' % (sCc, sB))
    a('s_add_u32 s%d, s%d, s%d' % (sCc, sCc, sA))
    a('s_lshl_b32 s%d, s%d, 10' % (sPX, sCc))
    a('s_lshl_b32 s%d, s%d, 7' % (sPS, sCc))
    a('s_lshl_b32 s%d, s%d, 4' % (sPF, sB))
    a('s_add_u32 s%d, s%d, s%d' % (sPF, sPF, sA))
    a('s_lshl_b32 s%d, s%d, 2' % (sPF, sPF))
    for dst, arr in ((sPX, xbase), (sPS, sbase), (sPF, fbase)):
        if per_pair:
            pair_base(sD, arr)
            a('s_add_u32 s%d, s%d, s%d' % (dst, dst, sD))
        else:
            a('s_add_u32 s%d, s%d, %d' % (dst, dst, arr))


def publish_x(st, rd, tmp):
    if st == 1:
        a('s_add_u32 s%d, s%d, %d' % (sPX, sPX, 2 * 14336))
        a('s_add_u32 s%d, s%d, %d' % (sPS, sPS, 2 * 1792))
    store('buffer_store_dwordx4 %s, v1, %s, s%d offen' % (vr(rd), srd(S_WS), sPX), sPC)
    owner_stats(tmp, rd + 4, rd + 5, rd + 6)
    a('v_and_b32 v%d, 15, v0' % V_TOK)
    a('v_lshlrev_b32 v%d, 3, v%d' % (rd + 6, V_TOK))
    a('s_mov_b64 exec, 0xffff')
    store('buffer_store_dwordx2 %s, v%d, %s, s%d offen' % (vr(rd + 4, 2), rd + 6, srd(S_WS), sPS), sPC)
    a('s_mov_b64 exec, -1')


def publish_flags():
    a('v_lshlrev_b32 v2, 7, v0')
    a('v_add_u32 v2, s%d, v2' % sPF)
    set_flags(2, 2, sPC)


def ksplit_phase(acc, rd, tmp, is_d, tile_mfmas, finish_publish):
    extra = {1: red_writes(acc + 0, 0), 2: red_writes(acc + 16, 1), 3: red_writes(acc + 32, 2) + red_reads(0, rd)}
    for tile in range(4):
        items = tile_mfmas(tile)
        ex = list(extra.get(tile, []))
        n = len(items)
        step = max(1, (n - 4) // max(1, len(ex))) if ex else 1
        for k, (pre, m, post) in enumerate(items):
            for x in pre:
                x()
            a(m)
            if post:
                post()
            elif ex and k >= 3 and (k - 3) % step == 0:
                a(ex.pop(0))
        for x in ex:
            a(x)
        if tile == 2:
            a('s_waitcnt lgkmcnt(0)')
            a('s_barrier')
    for x in red_writes(acc + 48, 3):
        a(x)
    finish_publish(0)
    a('s_waitcnt lgkmcnt(0)')
    a('s_barrier')
    for x in red_reads(1, rd):
        a(x)
    finish_publish(1)


pair_base(sA, L.FA)
a('s_lshl_b32 s%d, s%d, 8' % (sB, sG))
a('s_add_u32 s%d, s%d, s%d' % (sA, sA, sB))
a('v_lshl_add_u32 v240, v0, 2, s%d' % sA)
a('s_lshl_b32 s%d, s%d, 2' % (sB, sW))
a('s_lshl_b32 s%d, 0x000f000f, s%d' % (sMK, sB))
a('s_mov_b32 s%d, s%d' % (sMK + 1, sMK))
red_addrs()
publish_setup(L.XB, L.SB, L.FB, True)
a('s_mov_b32 s%d, s%d' % (sPC, sFAST))
pair_base(sA, L.O)
a('s_lshl_b32 s%d, s%d, 6' % (sB, sG))
a('s_lshl_b32 s%d, s%d, 2' % (sCc, sW))
a('s_add_u32 s%d, s%d, s%d' % (sB, sB, sCc))
a('s_lshl_b32 s%d, s%d, 10' % (sB, sB))
a('s_add_u32 s%d, s%d, s%d' % (sO, sA, sB))
for t in range(1, 4):
    a('s_add_u32 s%d, s%d, %d' % (sO + t, sO, 16384 * t))
poll(240)
stamp()


def b_oload(tile, i):
    return 'buffer_load_dwordx4 %s, v1, %s, s%d offen offset:%d sc1' % (vr(BO + (tile * 4 + i) * 4), srd(S_WS), sO + tile, 1024 * i)


om = {}
for tile in range(2):
    for i in range(4):
        a(b_oload(tile, i))
        om[(tile, i)] = a.vm_mark()


def b_tile(tile):
    items = []
    for i in range(4):
        for t in range(4):
            r = BACC + (tile * 4 + t) * 4
            pre = [(lambda tl=tile, ii=i: a.wait_vm(om[(tl, ii)]))] if t == 0 else []
            post = None
            if tile < 2 and t == 1:
                def post(tl=tile + 2, ii=i):
                    a(b_oload(tl, ii))
                    om[(tl, ii)] = a.vm_mark()
            items.append((pre, '%s %s, %s, %s, %s' % (MFMA, vr(r), vr(BW + (i * 4 + t) * 4), vr(BO + (tile * 4 + i) * 4),
                                                      '0' if i == 0 else vr(r)), post))
    return items


def b_fin(st):
    owner_finish(st, False, BRD, BTMP)
    publish_x(st, BRD, BTMP)


ksplit_phase(BACC, BRD, BTMP, False, b_tile, b_fin)
publish_flags()
stamp()

CACC, CW, CX, CCS, CB1, CB1R, CSTR, CMR = 2, 66, 162, 194, 210, 226, 234, 242
NRC = 6
a('s_cmp_eq_u32 s%d, 0' % sPAIR)
a('s_cbranch_scc0 L_c_start')
wd_loads(*WD_CH[1])
a.label('L_c_start')
a('s_lshl_b32 s%d, s%d, 4' % (sA, sJ))
a('s_lshl_b32 s%d, s%d, 2' % (sB, sW))
a('s_add_u32 s%d, s%d, s%d' % (sA, sA, sB))
a('s_mul_i32 s%d, s%d, %d' % (sB, sA, 14 * 1024))
a('s_add_u32 s%d, s%d, %d' % (sO, sB, L.WC))
quarter_offsets(4, 14 * 1024)


def c_wload(u):
    slot = u % NRC
    return ['buffer_load_dwordx4 %s, v1, %s, s%d offen offset:%d sc1' %
            (vr(CW + (slot * 4 + t) * 4), srd(S_WS), sO + 4 * t + (u >> 2), 1024 * (u & 3)) for t in range(4)]


for u in range(NRC):
    for x in c_wload(u):
        a(x)
a('v_lshrrev_b32 v%d, 4, v0' % V_G)
a('v_and_b32 v%d, 15, v0' % V_TOK)
a('v_lshlrev_b32 v240, 4, v%d' % V_G)
a('s_lshl_b32 s%d, s%d, 6' % (sB, sA))
a('s_add_u32 s%d, s%d, %d' % (sB, sB, L.CSC))
for t in range(4):
    a('buffer_load_dwordx4 %s, v240, %s, s%d offen offset:%d sc1' % (vr(CCS + 4 * t), srd(S_WS), sB, 64 * t))
a('v_lshlrev_b32 v240, 3, v%d' % V_G)
a('s_lshl_b32 s%d, s%d, 5' % (sB, sA))
for t in range(4):
    a('buffer_load_dwordx2 %s, v240, %s, s%d offen offset:%d' % (vr(CB1R + 2 * t, 2), srd(S_B1), sB, 32 * t))
pair_base(sA, L.FB)
a('s_lshl_b32 s%d, s%d, 8' % (sB, sG))
a('s_add_u32 s%d, s%d, s%d' % (sA, sA, sB))
a('v_lshl_add_u32 v240, v0, 2, s%d' % sA)
a('s_mov_b32 s%d, 0x3fff3fff' % sMK)
a('s_mov_b32 s%d, 0x3fff3fff' % (sMK + 1))
a('s_lshl_b32 s%d, s%d, 2' % (sB, sG))
a('s_add_u32 s%d, s%d, s%d' % (sB, sB, sW))
pair_base(36, L.XB)
a('s_mul_i32 s%d, s%d, 14336' % (sCc, sB))
a('s_add_u32 s36, s36, s%d' % sCc)
a('s_mul_i32 s37, s%d, 14336' % sW)
a('s_add_u32 s37, s37, %d' % L.L_R2)
pair_base(28, L.SB)
a('s_mul_i32 s%d, s%d, 1792' % (sCc, sB))
a('s_add_u32 s28, s28, s%d' % sCc)
a('v_lshlrev_b32 v238, 3, v%d' % V_TOK)
a('v_lshl_add_u32 v238, v%d, 7, v238' % V_G)
a('v_mov_b32 v242, 0x%x' % INV)
a('v_cmp_lt_u32 vcc, 1, v%d' % V_G)
a('v_cndmask_b32 v239, 0, v242, vcc')
a('v_or_b32 v239, v239, v238')
poll(240)
stamp()
for q in range(4):
    a('s_mov_b32 m0, s37')
    a('s_nop 0')
    for k in range(4 if q < 3 else 2):
        a('buffer_load_dwordx4 v1, %s, s36 offen offset:%d sc1 lds' % (srd(S_WS), 1024 * k))
    if q < 3:
        a('s_add_u32 s36, s36, 4096')
        a('s_add_u32 s37, s37, 4096')
x1_mark = a.vm_mark()
CST2 = 244
for i in range(4):
    a('buffer_load_dwordx2 %s, v%d, %s, s28 offen offset:%d sc1' %
      (vr(CSTR + 2 * i, 2) if i < 2 else vr(CST2 + 2 * (i - 2), 2), 239 if i == 3 else 238, srd(S_WS), 512 * i))
cst_mark = a.vm_mark()
a('v_add_u32 v252, %d, v1' % L.L_R2)
a.wait_vm(x1_mark)
a('s_barrier')
stamp()


def c_xread(u):
    b = CX + 16 * (u & 1)
    return ['ds_read_b128 %s, v252 offset:%d' % (vr(b + 4 * t), (t * 14 + u) * 1024) for t in range(4)]


for x in c_xread(0):
    a(x)
r = CSTR
cst_fill = []
for c_ in range(2):
    cst_fill += ['v_add_f32 v%d, v%d, v%d' % (r + c_, r + c_, r + 2 + c_),
                 'v_add_f32 v%d, v%d, v%d' % (CST2 + c_, CST2 + c_, CST2 + 2 + c_),
                 'v_add_f32 v%d, v%d, v%d' % (r + c_, r + c_, CST2 + c_)]
cst_fill += xg_reduce(r, r + 2) + xg_reduce(r + 1, r + 3) + stats_finish(r, r + 1, r + 2, True)
for t in range(4):
    for p in range(2):
        cst_fill += ['v_lshlrev_b32 v%d, 16, v%d' % (CB1 + 4 * t + 2 * p, CB1R + 2 * t + p),
                     'v_and_b32 v%d, 0xffff0000, v%d' % (CB1 + 4 * t + 2 * p + 1, CB1R + 2 * t + p)]
wm = {}
for u in range(14):
    if u >= NRC:
        a.wait_vm(wm[u])
    elif u == 2:
        a.wait_vm(cst_mark)
    a('s_waitcnt lgkmcnt(0)')
    ws_ = CW + (u % NRC) * 16
    xb = CX + 16 * (u & 1)
    mem = {}
    if u < 13:
        for k, x in enumerate(c_xread(u + 1)):
            mem[k] = x
    if 1 <= u and u - 1 + NRC < 14:
        for k, x in enumerate(c_wload(u - 1 + NRC)):
            mem[4 + 3 * k] = x
    fill = []
    if 2 <= u < 6:
        n = (len(cst_fill) + 3) // 4
        fill = cst_fill[(u - 2) * n:(u - 1) * n]
    if u == 7:
        a('s_lshl_b32 s%d, s%d, 7' % (sA, sW))
        a('s_add_u32 s%d, s%d, %d' % (sA, sA, L.L_STC))
        a('v_lshl_add_u32 v240, v%d, 3, s%d' % (V_TOK, sA))
        mem[14] = 'ds_write_b64 v240, %s' % vr(CSTR, 2)
    k = 0
    fi = 0
    for tile in range(4):
        for t in range(4):
            r = CACC + (tile * 4 + t) * 4
            a('%s %s, %s, %s, %s' % (MFMA, vr(r), vr(ws_ + 4 * t), vr(xb + 4 * tile), '0' if u == 0 else vr(r)))
            if k in mem:
                a(mem[k])
                if k == 13 and 1 <= u and u - 1 + NRC < 14:
                    wm[u - 1 + NRC] = a.vm_mark()
            for _ in range(2):
                if fi < len(fill):
                    a(fill[fi])
                    fi += 1
            k += 1
    assert fi == len(fill)
a('s_waitcnt lgkmcnt(0)')
a('s_barrier')
a('v_lshlrev_b32 v240, 3, v%d' % V_TOK)
a('v_add_u32 v240, %d, v240' % L.L_STC)
for t in range(4):
    a('ds_read_b64 %s, v240 offset:%d' % (vr(CMR + 2 * t, 2), 128 * t))
stamp()
GA = 2.0 * 0.7978845608028654 * 1.4426950408889634
GB = GA * 0.044715
a('s_mov_b32 s%d, %s' % (sO + 2, f2h(-GB)))
a('s_mov_b32 s%d, %s' % (sO + 3, f2h(-GB)))
pair_base(sA, L.H)
a('s_mul_i32 s%d, s%d, %d' % (sB, sG, 4 * 56 * 1024))
a('s_add_u32 s%d, s%d, s%d' % (sA, sA, sB))
a('s_lshl_b32 s%d, s%d, 2' % (sB, sJ))
a('s_add_u32 s%d, s%d, s%d' % (sB, sB, sW))
a('s_lshl_b32 s%d, s%d, 11' % (sB, sB))
a('s_add_u32 s%d, s%d, s%d' % (sA, sA, sB))
GT = 66
a('v_mov_b32 v%d, %s' % (GT + 30, f2h(-GA)))
a('v_mov_b32 v%d, %s' % (GT + 31, f2h(-GA)))
a('s_waitcnt lgkmcnt(0)')
for tile in range(4):
    m = CMR + 2 * tile
    for pp in range(2):
        hf = GT + 16 + 4 * ((tile * 2 + pp) & 1)
        zs = [(CACC + (tile * 4 + 2 * pp + k) * 4 + 2 * p, 2 * pp + k, p, GT + 2 * (k * 2 + p), hf + 2 * k + p)
              for k in range(2) for p in range(2)]
        for z, t, p, t0, h in zs:
            a('v_pk_fma_f32 %s, %s, %s, %s op_sel_hi:[1,0,1] neg_lo:[0,1,0] neg_hi:[0,1,0]' %
              (vr(z, 2), vr(CCS + 4 * t + 2 * p, 2), vr(m, 2), vr(z, 2)))
        for z, t, p, t0, h in zs:
            a('v_pk_fma_f32 %s, %s, %s, %s op_sel:[0,1,0] op_sel_hi:[1,1,1]' %
              (vr(z, 2), vr(z, 2), vr(m, 2), vr(CB1 + 4 * t + 2 * p, 2)))
        for z, t, p, t0, h in zs:
            a('v_pk_mul_f32 %s, %s, %s' % (vr(t0, 2), vr(z, 2), vr(z, 2)))
        for z, t, p, t0, h in zs:
            a('v_pk_fma_f32 %s, %s, %s, %s' % (vr(t0, 2), vr(t0, 2), sp(sO + 2), vr(GT + 30, 2)))
        for z, t, p, t0, h in zs:
            a('v_pk_mul_f32 %s, %s, %s' % (vr(t0, 2), vr(t0, 2), vr(z, 2)))
        for z, t, p, t0, h in zs:
            a('v_exp_f32 v%d, v%d' % (t0, t0))
            a('v_exp_f32 v%d, v%d' % (t0 + 1, t0 + 1))
        for z, t, p, t0, h in zs:
            a('v_pk_add_f32 %s, %s, 1.0 op_sel_hi:[1,0]' % (vr(t0, 2), vr(t0, 2)))
        for z, t, p, t0, h in zs:
            a('v_rcp_f32 v%d, v%d' % (t0, t0))
            a('v_rcp_f32 v%d, v%d' % (t0 + 1, t0 + 1))
        for z, t, p, t0, h in zs:
            a('v_pk_mul_f32 %s, %s, %s' % (vr(t0, 2), vr(t0, 2), vr(z, 2)))
        for z, t, p, t0, h in zs:
            a('v_cvt_pk_bf16_f32 v%d, v%d, v%d' % (h, t0, t0 + 1))
        store('buffer_store_dwordx4 %s, v1, %s, s%d offen offset:%d' % (vr(hf), srd(S_WS), sA, 1024 * pp), sFAST)
    if tile < 3:
        a('s_add_u32 s%d, s%d, %d' % (sA, sA, 56 * 1024))
pair_base(sA, L.FC)
a('s_lshl_b32 s%d, s%d, 5' % (sB, sG))
a('s_lshl_b32 s%d, s%d, 2' % (sCc, sJ))
a('s_add_u32 s%d, s%d, s%d' % (sB, sB, sCc))
a('s_add_u32 s%d, s%d, s%d' % (sB, sB, sW))
a('s_lshl_b32 s%d, s%d, 2' % (sB, sB))
a('s_add_u32 s%d, s%d, s%d' % (sA, sA, sB))
a('v_mov_b32 v2, s%d' % sA)
set_flags(2, 1, sFAST)
stamp()

DH, DACC, DRD, DTMP = 2, 114, 178, 210
DRING, DLOOK = 16, 10
a('s_cmp_eq_u32 s%d, 0' % sPAIR)
a('s_cbranch_scc0 L_d_start')
wd_loads(*WD_CH[2])
a.label('L_d_start')
pair_base(sA, L.FC)
a('s_lshl_b32 s%d, s%d, 7' % (sB, sG))
a('s_add_u32 s%d, s%d, s%d' % (sA, sA, sB))
a('v_lshl_add_u32 v240, v0, 2, s%d' % sA)
a('s_mul_i32 s%d, s%d, 7' % (sB, sW))
a('s_lshl_b32 s%d, 0x7f, s%d' % (sMK, sB))
a('s_mov_b32 s%d, 0' % (sMK + 1))
red_addrs()
publish_setup(L.XA[1], L.SA[1], L.FX[1], False)
a('s_and_b32 s%d, s%d, 1' % (sA, sG))
a('s_lshr_b32 s%d, s%d, 1' % (sB, sW))
a('s_and_b32 s%d, s%d, s%d' % (sA, sA, sB))
a('s_xor_b32 s%d, s%d, 1' % (sA, sA))
a('s_and_b32 s%d, s%d, s%d' % (sPC, sFAST, sA))
pair_base(sA, L.H)
a('s_mul_i32 s%d, s%d, %d' % (sB, sG, 4 * 56 * 1024))
a('s_add_u32 s%d, s%d, s%d' % (sA, sA, sB))
a('s_mul_i32 s%d, s%d, %d' % (sB, sW, 14 * 1024))
a('s_add_u32 s%d, s%d, s%d' % (sO, sA, sB))
quarter_offsets(4, 56 * 1024)
poll(240)
stamp()


def d_hload(q):
    tile, kk = divmod(q, 14)
    return ('buffer_load_dwordx4 %s, v1, %s, s%d offen offset:%d sc1' %
            (vr(DH + (q % DRING) * 4), srd(S_WS), sO + 4 * tile + (kk >> 2), 1024 * (kk & 3)))


hm = {}
for q in range(DLOOK):
    a(d_hload(q))
    hm[q] = a.vm_mark()
a('s_barrier')


def d_tile(tile):
    items = []
    for kk in range(14):
        q = tile * 14 + kk
        for t in range(4):
            r = DACC + (tile * 4 + t) * 4
            pre = [(lambda qq=q: a.wait_vm(hm[qq]))] if t == 0 else []
            post = None
            if t == 0 and q + DLOOK < 56:
                def post(qq=q + DLOOK):
                    a(d_hload(qq))
                    hm[qq] = a.vm_mark()
            items.append((pre, '%s %s, %s, %s, %s' % (MFMA, vr(r), ar((kk * 4 + t) * 4), vr(DH + (q % DRING) * 4),
                                                      '0' if kk == 0 else vr(r)), post))
    return items


def d_out_store(st):
    if st == 0:
        owner_index()
        a('s_mul_i32 s%d, s%d, 14336' % (sPX, sB))
        a('s_lshl_b32 s%d, s%d, 6' % (sA, sA))
        a('s_add_u32 s%d, s%d, s%d' % (sPX, sPX, sA))
        a('v_and_b32 v%d, 15, v0' % V_TOK)
        a('v_lshrrev_b32 v%d, 4, v0' % V_G)
        a('v_mul_u32_u24 v240, 896, v%d' % V_TOK)
        a('v_lshl_add_u32 v240, v%d, 3, v240' % V_G)
    else:
        a('s_add_u32 s%d, s%d, %d' % (sPX, sPX, 2 * 14336))
    a('buffer_store_dwordx2 %s, v240, %s, s%d offen' % (vr(DRD, 2), srd(S_OUT), sPX))
    a('buffer_store_dwordx2 %s, v240, %s, s%d offen offset:32' % (vr(DRD + 2, 2), srd(S_OUT), sPX))


def d_fin(st):
    owner_finish(st, True, DRD, DTMP)
    fin, done = newlab('L_dfin'), newlab('L_ddone')
    a('s_cmp_eq_u32 s%d, 0' % sPAIR)
    a('s_cbranch_scc0 %s' % fin)
    n0 = a.vm_issued
    publish_x(st, DRD, DTMP)
    a('s_branch %s' % done)
    a.label(fin)
    n1 = a.vm_issued
    d_out_store(st)
    a.vm_issued = n1
    a.label(done)
    a('s_nop 1')


ksplit_phase(DACC, DRD, DTMP, True, d_tile, d_fin)
stamp()
a('s_cmp_eq_u32 s%d, 0' % sPAIR)
a('s_cbranch_scc0 L_next_pair')
publish_flags()
a.label('L_next_pair')
stamp()
a('s_add_u32 s%d, s%d, 1' % (sPAIR, sPAIR))
a('s_cmp_lt_u32 s%d, 2' % sPAIR)
a('s_cbranch_scc1 L_pair')

a('s_cmp_eq_u32 s2, 0')
a('s_cbranch_scc0 L_noepoch')
a('s_cmp_eq_u32 s%d, 0' % sW)
a('s_cbranch_scc0 L_noepoch')
a('buffer_load_dword v2, off, %s, 0 sc1' % srd(S_WS))
a('s_waitcnt vmcnt(0)')
a('v_add_u32 v2, 1, v2')
a('s_mov_b64 exec, 1')
a('buffer_store_dword v2, off, %s, 0 sc1' % srd(S_WS))
a('s_mov_b64 exec, -1')
a.label('L_noepoch')
if DBG:
    a('s_memtime s[32:33]')
    a('s_memrealtime s[34:35]')
    a('s_waitcnt lgkmcnt(0)')
    a('s_sub_u32 s32, s32, s26')
    a('s_sub_u32 s34, s34, s0')
    build_srd(S_TMP, P_DBG, 256)
    a('v_mov_b32 v2, s32')
    a('v_mov_b32 v3, s34')
    a('v_mov_b32 v4, s%d' % sFAST)
    a('v_mov_b32 v5, s%d' % sXCC)
    a('s_lshr_b32 s%d, s2, 6' % sA)
    a('s_lshl_b32 s%d, s%d, 4' % (sA, sA))
    a('s_and_b32 s%d, s2, 63' % sB)
    a('s_or_b32 s%d, s%d, s%d' % (sB, sB, sW))
    a('s_cmp_eq_u32 s%d, 0' % sB)
    a('s_cselect_b32 s%d, s%d, 0x%x' % (sA, sA, INV))
    a('v_mov_b32 v6, s%d' % sA)
    a('s_mov_b64 exec, 1')
    a('buffer_store_dwordx4 v[2:5], v6, %s, 0 offen' % srd(S_TMP))
    a('s_mov_b64 exec, -1')
if DIAG:
    stamp()
    a('s_mov_b32 s%d, 63' % sSTI)
    a('s_lshl_b64 exec, 1, s%d' % sSTI)
    a('v_mov_b32 v%d, s%d' % (V_STAMP, sERR))
    a('s_mov_b32 s%d, 62' % sSTI)
    a('s_lshl_b64 exec, 1, s%d' % sSTI)
    a('v_mov_b32 v%d, s%d' % (V_STAMP, sFAST))
    a('s_mov_b64 exec, -1')
    a('s_lshl_b32 s%d, s2, 2' % sA)
    a('s_add_u32 s%d, s%d, s%d' % (sA, sA, sW))
    a('s_lshl_b32 s%d, s%d, 8' % (sA, sA))
    a('v_lshlrev_b32 v2, 2, v0')
    a('s_add_u32 s%d, s%d, %d' % (sA, sA, L.WS_USED))
    a('s_mov_b32 s%d, 0x%x' % (S_WS + 2, L.WS_USED + 256 * 1024))
    a('buffer_store_dword v%d, v2, %s, s%d offen' % (V_STAMP, srd(S_WS), sA))
a.label('L_end')
a('s_endpgm')

a.finalize()
body = a.text()

import os
hdr = open(os.path.join(os.path.dirname(os.path.abspath(__file__)), 'header.txt')).read()
out = hdr + '; @launch grid=(256,1,1) block=(256,1,1) lds=%d\n' % L.LDS_BYTES
out += '.amdgcn_target "amdgcn-amd-amdhsa--gfx950"\n.text\n.globl %s_kernel\n.p2align 8\n.type %s_kernel,@function\n%s_kernel:\n' % (NAME, NAME, NAME)
out += body
out += '''.section .rodata,"a"
.p2align 6
.amdhsa_kernel %s_kernel
  .amdhsa_next_free_vgpr 512
  .amdhsa_next_free_sgpr 102
  .amdhsa_accum_offset 256
  .amdhsa_group_segment_fixed_size 0
  .amdhsa_kernarg_size 88
  .amdhsa_user_sgpr_count 2
  .amdhsa_user_sgpr_kernarg_segment_ptr 1
  .amdhsa_system_sgpr_workgroup_id_x 1
.end_amdhsa_kernel
''' % NAME
sys.stdout.write(out)
```

```python
import struct
import sys
from asmlib import Asm
import layout as L

NAME = 'interleave_layers__sliding_local_dilated__mixer_channel_mlp__prompt'
DIAG = '--diag' in sys.argv
NOFAST = '--nofast' in sys.argv
PAD = [int(x[6:]) for x in sys.argv if x.startswith('--pad=')]
DBG = '--dbg' in sys.argv or bool(PAD)
SPIN_LIMIT = 200000
INV = 0x80000000

a = Asm()

sXCC = 3
S_WS, S_TMP, S_B1, S_OUT = 4, 8, 12, 16
P_X, P_WQKV, P_WO, P_BX, P_W1, P_B1, P_W2, P_B2, P_OUT, P_DBG, P_WSP = 20, 22, 24, 26, 28, 30, 32, 34, 36, 38, 40
sS, sC, sG, sJ, sW, sT, sPAIR, sSPIN = 42, 43, 44, 45, 46, 47, 48, 49
sM1 = 50
sM2 = 58
sM0 = 66
sO = 74
sA, sB, sCc, sD = 90, 91, 92, 93
sMK = 94
sTS = 96
sGT = 98
sERR = 99
sSTI = 100
sFAST = 101


def srd(n):
    return 's[%d:%d]' % (n, n + 3)


def vr(n, k=4):
    return 'v[%d:%d]' % (n, n + k - 1)


def ar(n, k=4):
    return 'a[%d:%d]' % (n, n + k - 1)


def sp(n):
    return 's[%d:%d]' % (n, n + 1)


def f2h(x):
    return '0x%08x' % struct.unpack('<I', struct.pack('<f', x))[0]


V_T, V_STAMP = 254, 255
V_TOK, V_G = 250, 251
MFMA = 'v_mfma_f32_16x16x32_bf16'


def stamp():
    if not DIAG:
        return
    a('s_memtime %s' % sp(sTS))
    a('s_waitcnt lgkmcnt(0)')
    a('s_lshl_b64 exec, 1, s%d' % sSTI)
    a('v_mov_b32 v%d, s%d' % (V_STAMP, sTS))
    a('s_mov_b64 exec, -1')
    a('s_add_u32 s%d, s%d, 1' % (sSTI, sSTI))


lab_no = [0]


def newlab(p):
    lab_no[0] += 1
    return '%s_%d' % (p, lab_no[0])


def build_srd(dst, ptr, nbytes):
    a('s_mov_b32 s%d, s%d' % (dst, ptr))
    a('s_and_b32 s%d, s%d, 0xffff' % (dst + 1, ptr + 1))
    a('s_mov_b32 s%d, 0x%x' % (dst + 2, nbytes))
    a('s_mov_b32 s%d, 0x20000' % (dst + 3))


def poll(voff):
    lab, done = newlab('L_poll'), newlab('L_polldone')
    a('s_mov_b64 exec, %s' % sp(sMK))
    a('s_mov_b32 s%d, 0' % sSPIN)
    a.label(lab)
    a('buffer_load_dword v253, v%d, %s, 0 offen sc1' % (voff, srd(S_WS)))
    a('s_waitcnt vmcnt(0)')
    a('v_cmp_ne_u32 vcc, s%d, v253' % sT)
    a('s_nop 4')
    a('s_cbranch_vccz %s' % done)
    a('s_add_u32 s%d, s%d, 1' % (sSPIN, sSPIN))
    a('s_cmp_lt_u32 s%d, %d' % (sSPIN, SPIN_LIMIT))
    a('s_cbranch_scc1 %s' % lab)
    a('s_add_u32 s%d, s%d, 1' % (sERR, sERR))
    a.label(done)
    a('s_mov_b64 exec, -1')


def store(fmt, cond=None):
    if cond is None or NOFAST:
        a(fmt + ' sc1')
        return
    slow, done = newlab('L_slow'), newlab('L_st')
    a('s_cmp_eq_u32 s%d, 0' % cond)
    a('s_cbranch_scc1 %s' % slow)
    a(fmt)
    a('s_branch %s' % done)
    a.label(slow)
    a(fmt + ' sc1')
    a.vm_issued -= 1
    a.label(done)


def set_flags(voff, nlanes, cond=None, val=V_T):
    a('s_waitcnt vmcnt(0)')
    a('s_mov_b64 exec, %d' % ((1 << nlanes) - 1))
    store('buffer_store_dword v%d, v%d, %s, 0 offen' % (val, voff, srd(S_WS)), cond)
    a('s_mov_b64 exec, -1')


def xg_reduce(x, t, op='v_add_f32'):
    return ['v_mov_b32 v%d, v%d' % (t, x),
            'v_permlane32_swap_b32 v%d, v%d' % (x, t),
            '%s v%d, v%d, v%d' % (op, x, x, t),
            'v_mov_b32 v%d, v%d' % (t, x),
            'v_permlane16_swap_b32 v%d, v%d' % (x, t),
            '%s v%d, v%d, v%d' % (op, x, x, t)]


EPS = 1e-5


def stats_finish(s1, s2, t, double_ln):
    o = ['v_mul_f32 v%d, %s, v%d' % (s1, f2h(1.0 / 448), s1),
         'v_mul_f32 v%d, %s, v%d' % (s2, f2h(1.0 / 448), s2),
         'v_fma_f32 v%d, -v%d, v%d, v%d' % (s2, s1, s1, s2),
         'v_max_f32 v%d, 0, v%d' % (s2, s2),
         'v_add_f32 v%d, %s, v%d' % (t, f2h(EPS), s2),
         'v_rsq_f32 v%d, v%d' % (t, t)]
    if not double_ln:
        o += ['v_mov_b32 v%d, v%d' % (s2, t)]
    else:
        o += ['v_mul_f32 v%d, v%d, v%d' % (s2, s2, t),
              'v_fmaak_f32 v%d, v%d, v%d, %s' % (s2, s2, t, f2h(EPS)),
              'v_rsq_f32 v%d, v%d' % (s2, s2),
              'v_mul_f32 v%d, v%d, v%d' % (s2, s2, t)]
    return o


def pair_base(dst, arr):
    a('s_mul_i32 s%d, s%d, %d' % (dst, sPAIR, arr[1] - arr[0]))
    a('s_add_u32 s%d, s%d, %d' % (dst, dst, arr[0]))


def quarter_offsets(n, stride):
    for t in range(n):
        if t:
            a('s_add_u32 s%d, s%d, %d' % (sO + 4 * t, sO + 4 * (t - 1), stride))
        for q in range(1, 4):
            a('s_add_u32 s%d, s%d, %d' % (sO + 4 * t + q, sO + 4 * t, 4096 * q))


a('s_cmp_ge_u32 s2, 256')
a('s_cbranch_scc1 L_end')
a('s_load_dwordx16 s[20:35], s[0:1], 0')
a('s_load_dwordx4 s[36:39], s[0:1], 64')
a('s_load_dwordx2 s[40:41], s[0:1], 80')
a('s_getreg_b32 s%d, hwreg(HW_REG_XCC_ID, 0, 4)' % sXCC)
a('s_and_b32 s%d, s2, 7' % sA)
a('s_lshr_b32 s%d, s2, 3' % sB)
a('s_lshr_b32 s%d, s%d, 4' % (sCc, sB))
a('s_lshl_b32 s%d, s%d, 1' % (sS, sA))
a('s_add_u32 s%d, s%d, s%d' % (sS, sS, sCc))
a('s_and_b32 s%d, s%d, 15' % (sC, sB))
a('s_lshr_b32 s%d, s%d, 3' % (sA, sC))
a('s_lshl_b32 s%d, s%d, 1' % (sG, sS))
a('s_add_u32 s%d, s%d, s%d' % (sG, sG, sA))
a('s_and_b32 s%d, s%d, 7' % (sJ, sC))
a('s_mov_b32 s%d, 0' % sERR)
a('v_lshrrev_b32 v2, 6, v0')
a('v_and_b32 v0, 63, v0')
a('v_readfirstlane_b32 s%d, v2' % sW)
a('v_lshlrev_b32 v1, 4, v0')
if DIAG:
    a('v_mov_b32 v%d, 0' % V_STAMP)
    a('s_mov_b32 s%d, 0' % sSTI)
stamp()
a('v_and_b32 v%d, 15, v0' % V_TOK)
a('v_lshrrev_b32 v%d, 4, v0' % V_G)
sSTG = sO + 15
a('s_lshl_b32 s%d, s%d, 14' % (sSTG, sW))
a('s_add_u32 s%d, s%d, %d' % (sSTG, sSTG, L.L_R2))
a('s_waitcnt lgkmcnt(0)')
if DBG:
    a('s_memtime s[26:27]')
    a('s_memrealtime s[0:1]')
    a('s_waitcnt lgkmcnt(0)')
build_srd(S_WS, P_WSP, L.WS_USED)
a('buffer_load_dword v%d, off, %s, 0 sc1' % (V_T, srd(S_WS)))

build_srd(S_TMP, P_X, 2048 * 896)
a('v_mul_u32_u24 v2, 896, v%d' % V_TOK)
a('v_lshl_add_u32 v2, v%d, 3, v2' % V_G)
a('s_lshr_b32 s%d, s%d, 1' % (sA, sC))
a('s_lshl_b32 s%d, s%d, 3' % (sB, sS))
a('s_add_u32 s%d, s%d, s%d' % (sO + 0, sA, sB))
a('s_and_b32 s%d, s%d, 1' % (sA, sC))
a('s_mul_i32 s%d, s%d, 7' % (sA, sA))
a('s_add_u32 s%d, s%d, s%d' % (sO + 1, sA, sW))
a('s_cmp_lt_u32 s%d, 3' % sW)
a('s_cselect_b32 s%d, 0, 0x%x' % (sO + 2, INV))
a('s_mul_i32 s%d, s%d, 14336' % (sA, sO + 0))
a('s_lshl_b32 s%d, s%d, 6' % (sB, sO + 1))
a('s_add_u32 s%d, s%d, s%d' % (sA, sA, sB))
a('v_or_b32 v3, s%d, v2' % (sO + 2))
a('buffer_load_dwordx2 v[10:11], v2, %s, s%d offen' % (srd(S_TMP), sA))
a('buffer_load_dwordx2 v[12:13], v2, %s, s%d offen offset:32' % (srd(S_TMP), sA))
a('buffer_load_dwordx2 v[14:15], v3, %s, s%d offen offset:256' % (srd(S_TMP), sA))
a('buffer_load_dwordx2 v[16:17], v3, %s, s%d offen offset:288' % (srd(S_TMP), sA))

build_srd(S_TMP, P_WQKV, 448 * 2688)
qMAT, qU, qINV = sO + 3, sO + 4, sO + 5
a('s_lshl_b32 s%d, s%d, 4' % (sA, sW))
a('s_add_u32 s%d, s%d, s%d' % (sA, sA, sS))
a('s_cmp_lt_u32 s%d, 42' % sA)
a('s_cselect_b32 s%d, 0, 0x%x' % (qINV, INV))
a('s_min_u32 s%d, s%d, 41' % (sA, sA))
a('s_mul_i32 s%d, s%d, 4682' % (qMAT, sA))
a('s_lshr_b32 s%d, s%d, 16' % (qMAT, qMAT))
a('s_mul_i32 s%d, s%d, 14' % (sB, qMAT))
a('s_sub_u32 s%d, s%d, s%d' % (qU, sA, sB))
a('s_mul_i32 s%d, s%d, %d' % (sA, qU, 32 * 2688))
a('s_mul_i32 s%d, s%d, 896' % (sB, qMAT))
a('s_add_u32 s%d, s%d, s%d' % (sA, sA, sB))
a('s_mul_i32 s%d, s%d, 56' % (sB, sC))
a('s_add_u32 s%d, s%d, s%d' % (sA, sA, sB))
a('v_lshrrev_b32 v4, 2, v0')
a('v_mul_u32_u24 v4, 2688, v4')
a('v_and_b32 v5, 3, v0')
a('v_lshl_add_u32 v4, v5, 4, v4')
a('v_or_b32 v4, s%d, v4' % qINV)
a('s_mov_b32 m0, s%d' % sSTG)
a('s_add_u32 s%d, s%d, %d' % (sB, sA, 16 * 2688))
a('buffer_load_dwordx4 v4, %s, s%d offen lds' % (srd(S_TMP), sA))
a('s_add_u32 m0, s%d, 1024' % sSTG)
a('s_nop 0')
a('buffer_load_dwordx4 v4, %s, s%d offen lds' % (srd(S_TMP), sB))

bINV, bDST, bSTR = sO + 6, sO + 7, sO + 8
a('s_lshl_b32 s%d, s%d, 5' % (sA, sW))
a('s_add_u32 s%d, s%d, s%d' % (sA, sA, sG))
a('s_cmp_lt_u32 s%d, 72' % sA)
a('s_cselect_b32 s%d, 0, 0x%x' % (bINV, INV))
a('s_cmp_eq_u32 s%d, 7' % sJ)
a('s_cselect_b32 s%d, 0x%x, s%d' % (bINV, INV, bINV))
a('s_min_u32 s%d, s%d, 71' % (sA, sA))
a('s_min_u32 s%d, s%d, 6' % (sD, sJ))
a('s_cmp_lt_u32 s%d, 16' % sA)
a('s_cselect_b32 s%d, s%d, s%d' % (S_TMP, P_WO, P_W2))
a('s_cselect_b32 s%d, s%d, s%d' % (S_TMP + 1, P_WO + 1, P_W2 + 1))
a('s_mov_b32 s%d, 0x%x' % (S_TMP + 2, 1792 * 896))
a('s_cselect_b32 s%d, 0x%x, s%d' % (S_TMP + 2, 448 * 896, S_TMP + 2))
a('s_cselect_b32 s%d, 28, 32' % sB)
a('s_cselect_b32 s%d, 0, 16' % sCc)
a('s_mov_b32 s%d, %d' % (bSTR, 56 * 1024))
a('s_cselect_b32 s%d, %d, s%d' % (bSTR, 16 * 1024, bSTR))
a('s_mov_b32 s%d, %d' % (bDST, L.WD))
a('s_cselect_b32 s%d, %d, s%d' % (bDST, L.WB, bDST))
a('s_cselect_b32 s%d, 0x%x, 0' % (sO + 9, INV))
a('s_and_b32 s%d, s%d, 0xffff' % (S_TMP + 1, S_TMP + 1))
a('s_mov_b32 s%d, 0x20000' % (S_TMP + 3))
a('s_sub_u32 s%d, s%d, s%d' % (sA, sA, sCc))
a('s_lshl_b32 s%d, s%d, 10' % (sCc, sA))
a('s_add_u32 s%d, s%d, s%d' % (bDST, bDST, sCc))
a('s_lshl_b32 s%d, s%d, 2' % (sCc, sD))
a('s_mul_i32 s%d, s%d, s%d' % (sCc, sCc, bSTR))
a('s_add_u32 s%d, s%d, s%d' % (bDST, bDST, sCc))
a('s_mul_i32 s%d, s%d, s%d' % (sA, sA, sB))
a('s_mul_i32 s%d, s%d, 896' % (sA, sA))
a('s_lshl_b32 s%d, s%d, 7' % (sB, sD))
a('s_add_u32 s%d, s%d, s%d' % (sA, sA, sB))
a('v_lshrrev_b32 v6, 3, v0')
a('v_mul_u32_u24 v6, 896, v6')
a('v_and_b32 v5, 7, v0')
a('v_lshl_add_u32 v6, v5, 4, v6')
a('v_or_b32 v6, s%d, v6' % bINV)
a('v_cmp_lt_u32 vcc, 31, v0')
a('v_mov_b32 v7, s%d' % (sO + 9))
a('v_cndmask_b32 v7, 0, v7, vcc')
a('v_or_b32 v7, v7, v6')
for q in range(4):
    a('s_add_u32 m0, s%d, %d' % (sSTG, 2048 + 1024 * q))
    if q:
        a('s_add_u32 s%d, s%d, %d' % (sA, sA, 8 * 896))
    else:
        a('s_nop 0')
    a('buffer_load_dwordx4 v%d, %s, s%d offen lds' % (7 if q == 3 else 6, srd(S_TMP), sA))

build_srd(S_TMP, P_W1, 448 * 3584)
cINV, cNT = sO + 10, sO + 11
a('s_cmp_lt_u32 s%d, 16' % sG)
a('s_cselect_b32 s%d, 0, 0x%x' % (cINV, INV))
a('s_cmp_eq_u32 s%d, 7' % sJ)
a('s_cselect_b32 s%d, 0x%x, s%d' % (cINV, INV, cINV))
a('s_min_u32 s%d, s%d, 6' % (sD, sJ))
a('s_lshl_b32 s%d, s%d, 4' % (cNT, sD))
a('s_and_b32 s%d, s%d, 15' % (sA, sG))
a('s_add_u32 s%d, s%d, s%d' % (cNT, cNT, sA))
a('s_cmp_lt_u32 s%d, 2' % sW)
a('s_cselect_b32 s%d, s%d, 0x%x' % (sO + 12, cINV, INV))
a('v_lshrrev_b32 v8, 1, v0')
a('v_mul_u32_u24 v8, 3584, v8')
a('v_and_b32 v5, 1, v0')
a('v_lshl_add_u32 v8, v5, 4, v8')
a('v_or_b32 v9, s%d, v8' % (sO + 12))
a('v_or_b32 v8, s%d, v8' % cINV)
a('s_lshl_b32 s%d, s%d, 5' % (sB, cNT))
for i in range(4):
    a('s_add_u32 s%d, s%d, %d' % (sA, sW, 4 * i))
    a('s_min_u32 s%d, s%d, 13' % (sA, sA))
    a('s_mul_i32 s%d, s%d, %d' % (sA, sA, 32 * 3584))
    a('s_add_u32 s%d, s%d, s%d' % (sA, sA, sB))
    a('s_add_u32 m0, s%d, %d' % (sSTG, 6144 + 1024 * i))
    a('s_nop 0')
    a('buffer_load_dwordx4 v%d, %s, s%d offen lds' % (9 if i == 3 else 8, srd(S_TMP), sA))
build_srd(S_B1, P_B1, 1792 * 2)
build_srd(S_OUT, P_OUT, 2048 * 896)
a('v_bfe_u32 v18, v0, 2, 2')
a('v_lshl_add_u32 v18, v%d, 2, v18' % V_G)
a('v_and_b32 v19, 3, v0')
a('v_lshlrev_b32 v19, 3, v19')
a('s_waitcnt vmcnt(8)')
stamp()

a('s_mov_b32 s%d, 0x9E3779B1' % sA)
a('v_mul_lo_u32 v%d, v%d, s%d' % (V_T, V_T, sA))
a('v_add_u32 v%d, 0x7F4A7C15, v%d' % (V_T, V_T))
a('v_and_b32 v%d, -16, v%d' % (V_T, V_T))
a('v_lshl_add_u32 v20, v18, 6, v19')
a('v_add_u32 v20, s%d, v20' % sSTG)
for hf in range(2):
    a('ds_read_b64_tr_b16 %s, v20 offset:%d' % (vr(24 + 4 * hf, 2), 32 * hf))
    a('ds_read_b64_tr_b16 %s, v20 offset:%d' % (vr(26 + 4 * hf, 2), 32 * hf + 1024))
a('v_readfirstlane_b32 s%d, v%d' % (sT, V_T))
a('s_mul_i32 s%d, s%d, 14' % (sA, sO + 0))
a('s_add_u32 s%d, s%d, s%d' % (sA, sA, sO + 1))
a('s_lshl_b32 s%d, s%d, 10' % (sB, sA))
a('s_add_u32 s%d, s%d, %d' % (sB, sB, L.XA[0]))
a('v_or_b32 v3, s%d, v1' % (sO + 2))
a('buffer_store_dwordx4 v[10:13], v1, %s, s%d offen sc1' % (srd(S_WS), sB))
a('s_add_u32 s%d, s%d, 4096' % (sB, sB))
a('buffer_store_dwordx4 v[14:17], v3, %s, s%d offen sc1' % (srd(S_WS), sB))
a('v_cmp_gt_u32 vcc, 12, v%d' % V_TOK)
a('s_mul_i32 s%d, s%d, 84' % (sB, sC))
a('s_mul_i32 s%d, s%d, 28' % (sCc, qMAT))
a('s_add_u32 s%d, s%d, s%d' % (sB, sB, sCc))
a('s_add_u32 s%d, s%d, s%d' % (sB, sB, qU))
a('s_lshl_b32 s%d, s%d, 10' % (sB, sB))
a('s_add_u32 s%d, s%d, %d' % (sB, sB, L.WA))
a('v_or_b32 v4, s%d, v1' % qINV)
a('s_waitcnt lgkmcnt(0)')
for p in range(4):
    a('v_cndmask_b32 v%d, 0, v%d, vcc' % (28 + p, 28 + p))
a('buffer_store_dwordx4 v[24:27], v4, %s, s%d offen sc1' % (srd(S_WS), sB))
a('s_add_u32 s%d, s%d, %d' % (sB, sB, 14 * 1024))
a('buffer_store_dwordx4 v[28:31], v4, %s, s%d offen sc1' % (srd(S_WS), sB))
a('v_mov_b32 v2, 0x3f803f80')
for k in range(2):
    x, s1, s2 = 10 + 4 * k, 110 + 2 * k, 111 + 2 * k
    a('v_mov_b32 v%d, 0' % s1)
    a('v_mov_b32 v%d, 0' % s2)
    for p in range(4):
        a('v_dot2_f32_bf16 v%d, v%d, v2, v%d' % (s1, x + p, s1))
        a('v_dot2_f32_bf16 v%d, v%d, v%d, v%d' % (s2, x + p, x + p, s2))
    for t in xg_reduce(s1, 114) + xg_reduce(s2, 115):
        a(t)
a('s_lshl_b32 s%d, s%d, 7' % (sB, sA))
a('s_add_u32 s%d, s%d, %d' % (sB, sB, L.SA[0]))
a('v_lshlrev_b32 v2, 3, v%d' % V_TOK)
a('v_or_b32 v3, s%d, v2' % (sO + 2))
a('s_mov_b64 exec, 0xffff')
a('buffer_store_dwordx2 v[110:111], v2, %s, s%d offen sc1' % (srd(S_WS), sB))
a('buffer_store_dwordx2 v[112:113], v3, %s, s%d offen offset:512 sc1' % (srd(S_WS), sB))
a('s_mov_b64 exec, -1')
a('s_lshl_b32 s%d, s%d, 4' % (sA, sO + 0))
a('s_add_u32 s%d, s%d, s%d' % (sA, sA, sO + 1))
a('s_lshl_b32 s%d, s%d, 2' % (sA, sA))
a('s_add_u32 s%d, s%d, %d' % (sA, sA, L.FX[0]))
a('v_lshlrev_b32 v2, 4, v0')
a('v_add_u32 v2, s%d, v2' % sA)
a('v_cmp_eq_u32 vcc, 1, v0')
a('v_mov_b32 v3, s%d' % (sO + 2))
a('v_cndmask_b32 v3, 0, v3, vcc')
a('v_or_b32 v2, v2, v3')
a('s_lshl_b32 s%d, s%d, 6' % (sA, sC))
a('s_lshl_b32 s%d, s%d, 2' % (sB, sS))
a('s_add_u32 s%d, s%d, s%d' % (sA, sA, sB))
a('s_add_u32 s%d, s%d, s%d' % (sA, sA, sW))
a('s_lshl_b32 s%d, s%d, 2' % (sA, sA))
a('s_add_u32 s%d, s%d, %d' % (sA, sA, L.FQ))
a('v_mov_b32 v3, s%d' % sA)
a('v_cmp_eq_u32 vcc, 2, v0')
a('v_cndmask_b32 v2, v2, v3, vcc')
a('s_lshl_b32 s%d, s%d, 4' % (sA, sS))
a('s_add_u32 s%d, s%d, s%d' % (sA, sA, sC))
a('s_lshl_b32 s%d, s%d, 2' % (sA, sA))
a('s_add_u32 s%d, s%d, %d' % (sA, sA, L.FXC))
a('s_cmp_eq_u32 s%d, 0' % sW)
a('s_cselect_b32 s%d, s%d, 0x%x' % (sA, sA, INV))
a('v_mov_b32 v3, s%d' % sA)
a('v_cmp_eq_u32 vcc, 3, v0')
a('v_cndmask_b32 v2, v2, v3, vcc')
a('v_or_b32 v3, s%d, v%d' % (sXCC, V_T))
a('v_cndmask_b32 v3, v%d, v3, vcc' % V_T)
set_flags(2, 4, None, 3)
stamp()

a('v_lshl_add_u32 v20, v18, 7, v19')
a('v_add_u32 v20, s%d, v20' % sSTG)
for t in range(4):
    a('ds_read_b64_tr_b16 %s, v20 offset:%d' % (vr(24 + 4 * t, 2), 2048 + 32 * t))
    a('ds_read_b64_tr_b16 %s, v20 offset:%d' % (vr(26 + 4 * t, 2), 2048 + 32 * t + 2048))
a('v_lshl_add_u32 v21, v18, 5, v19')
a('v_add_u32 v21, s%d, v21' % sSTG)
for i in range(4):
    a('ds_read_b64_tr_b16 %s, v21 offset:%d' % (vr(40 + 4 * i, 2), 6144 + 1024 * i))
    a('ds_read_b64_tr_b16 %s, v21 offset:%d' % (vr(42 + 4 * i, 2), 6144 + 1024 * i + 512))
a('v_or_b32 v6, s%d, v1' % bINV)
a('s_waitcnt lgkmcnt(8)')
for t in range(4):
    a('buffer_store_dwordx4 %s, v6, %s, s%d offen sc1' % (vr(24 + 4 * t), srd(S_WS), bDST))
    if t < 3:
        a('s_add_u32 s%d, s%d, s%d' % (bDST, bDST, bSTR))
a('s_mul_i32 s%d, s%d, 14' % (sA, cNT))
a('s_add_u32 s%d, s%d, s%d' % (sA, sA, sW))
a('s_lshl_b32 s%d, s%d, 10' % (sA, sA))
a('s_add_u32 s%d, s%d, %d' % (sA, sA, L.WC))
a('v_or_b32 v8, s%d, v1' % cINV)
a('v_or_b32 v9, s%d, v1' % (sO + 12))
a('v_mov_b32 v2, 0x3f803f80')
a('v_mov_b32 v110, 0')
a('s_waitcnt lgkmcnt(0)')
for i in range(4):
    a('buffer_store_dwordx4 %s, v%d, %s, s%d offen sc1' % (vr(40 + 4 * i), 9 if i == 3 else 8, srd(S_WS), sA))
    a('s_add_u32 s%d, s%d, 4096' % (sA, sA))
for i in range(4):
    for p in range(4):
        a('v_dot2_f32_bf16 v110, v%d, v2, v110' % (40 + 4 * i + p))
for t in xg_reduce(110, 114):
    a(t)
a('s_lshl_b32 s%d, s%d, 6' % (sA, sW))
a('s_add_u32 s%d, s%d, %d' % (sA, sA, L.L_CSR))
a('v_lshlrev_b32 v2, 2, v%d' % V_TOK)
a('v_add_u32 v3, s%d, v2' % sA)
a('ds_write_b32 v3, v110')
a('s_waitcnt lgkmcnt(0)')
a('s_barrier')
a('v_add_u32 v3, %d, v2' % L.L_CSR)
for i in range(4):
    a('ds_read_b32 v%d, v3 offset:%d' % (104 + i, 64 * i))
a('s_lshl_b32 s%d, s%d, 6' % (sB, cNT))
a('s_add_u32 s%d, s%d, %d' % (sB, sB, L.CSC))
a('s_cmp_eq_u32 s%d, 0' % sW)
a('s_cselect_b32 s%d, s%d, 0x%x' % (sA, cINV, INV))
a('v_or_b32 v2, s%d, v2' % sA)
a('s_waitcnt lgkmcnt(0)')
a('v_add_f32 v104, v104, v105')
a('v_add_f32 v106, v106, v107')
a('v_add_f32 v104, v104, v106')
a('s_mov_b64 exec, 0xffff')
a('buffer_store_dword v104, v2, %s, s%d offen sc1' % (srd(S_WS), sB))
a('s_mov_b64 exec, -1')

a('v_and_b32 v2, 1, v%d' % V_TOK)
a('v_lshlrev_b32 v3, 2, v%d' % V_G)
a('v_add_u32 v6, 2, v%d' % V_TOK)
for i in range(4):
    a('v_add_u32 v4, %d, v3' % i)
    a('v_cmp_eq_u32 vcc, %d, v2' % (i & 1))
    a('s_mov_b64 %s, vcc' % sp(sMK))
    a('v_cmp_ge_u32 vcc, v4, v6')
    a('s_and_b64 %s, vcc, %s' % (sp(sM1 + 2 * i), sp(sMK)))
    a('v_cmp_le_u32 vcc, v4, v%d' % V_TOK)
    a('s_and_b64 %s, vcc, %s' % (sp(sM2 + 2 * i), sp(sMK)))
a('s_lshl_b32 s%d, s%d, 3' % (sA, sS))
a('s_lshl_b32 s%d, s%d, 1' % (sB, sW))
a('s_add_u32 s%d, s%d, s%d' % (sGT, sA, sB))
a('s_cmp_eq_u32 s%d, 0' % sGT)
for i in range(4):
    a('s_cselect_b64 %s, 0, %s' % (sp(sM0 + 2 * i), sp(sM1 + 2 * i)))
a('s_mov_b32 s%d, 0' % sPAIR)
a('s_waitcnt vmcnt(0)')
a('s_barrier')
a('s_lshl_b32 s%d, s%d, 5' % (sA, sJ))
a('s_add_u32 s%d, s%d, s%d' % (sA, sA, sG))
a('s_lshl_b32 s%d, s%d, 2' % (sA, sA))
a('s_add_u32 s%d, s%d, %d' % (sA, sA, L.FP))
a('s_cmp_eq_u32 s%d, 0' % sW)
a('s_cselect_b32 s%d, s%d, 0x%x' % (sA, sA, INV))
a('v_mov_b32 v2, s%d' % sA)
set_flags(2, 1)
stamp()


def a_flag_addr(dst):
    pair_base(sA, L.FX)
    a('s_lshl_b32 s%d, s%d, 6' % (sB, sGT))
    a('s_add_u32 s%d, s%d, s%d' % (sA, sA, sB))
    a('s_sub_u32 s%d, s%d, 64' % (sA, sA))
    a('v_lshl_add_u32 v%d, v0, 2, s%d' % (dst, sA))
    a('s_mov_b32 s%d, 0x3fff3fff' % sMK)
    a('s_mov_b32 s%d, 0x3fff' % (sMK + 1))
    a('s_cmp_eq_u32 s%d, 0' % sGT)
    a('s_cselect_b32 s%d, 0x3fff0000, s%d' % (sMK, sMK))


a('s_lshl_b32 s%d, s%d, 8' % (sA, sC))
a('s_add_u32 s%d, s%d, %d' % (sA, sA, L.FQ))
a('v_lshl_add_u32 v2, v0, 2, s%d' % sA)
a_flag_addr(3)
a('s_lshl_b32 s%d, s%d, 6' % (sA, sS))
a('s_add_u32 s%d, s%d, %d' % (sA, sA, L.FXC - 48 * 4))
a('v_lshl_add_u32 v4, v0, 2, s%d' % sA)
a('v_cmp_lt_u32 vcc, 47, v0')
a('v_cndmask_b32 v3, v3, v4, vcc')
a('v_mov_b32 v5, -1')
a('v_mov_b32 v6, -16')
a('v_cndmask_b32 v5, v5, v6, vcc')
a('s_or_b32 s%d, s%d, 0xffff0000' % (sMK + 1, sMK + 1))
a('s_mov_b32 s%d, 0' % sSPIN)
a.label('L_poll0')
a('buffer_load_dword v7, v2, %s, 0 offen sc1' % srd(S_WS))
a('s_mov_b64 exec, %s' % sp(sMK))
a('buffer_load_dword v8, v3, %s, 0 offen sc1' % srd(S_WS))
a('s_waitcnt vmcnt(0)')
a('v_and_b32 v9, v5, v8')
a('v_cmp_ne_u32 vcc, s%d, v9' % sT)
a('s_mov_b64 exec, -1')
a('s_mov_b64 %s, vcc' % sp(sTS))
a('v_cmp_ne_u32 vcc, s%d, v7' % sT)
a('s_or_b64 vcc, vcc, %s' % sp(sTS))
a('s_cbranch_vccz L_poll0_done')
a('s_add_u32 s%d, s%d, 1' % (sSPIN, sSPIN))
a('s_cmp_lt_u32 s%d, %d' % (sSPIN, SPIN_LIMIT))
a('s_cbranch_scc1 L_poll0')
a('s_add_u32 s%d, s%d, 1' % (sERR, sERR))
a.label('L_poll0_done')
a('v_and_b32 v9, 15, v8')
a('v_cmp_ne_u32 vcc, s%d, v9' % sXCC)
a('s_and_b32 s%d, vcc_hi, 0xffff0000' % sA)
a('s_cmp_eq_u32 s%d, 0' % sA)
a('s_cselect_b32 s%d, 1, 0' % sFAST)
stamp()
a('s_mul_i32 s%d, s%d, %d' % (sA, sC, 84 * 1024))
a('s_mul_i32 s%d, s%d, %d' % (sB, sW, 21 * 1024))
a('s_add_u32 s%d, s%d, s%d' % (sA, sA, sB))
a('s_add_u32 s%d, s%d, %d' % (sA, sA, L.WA))
a('s_add_u32 s%d, s%d, %d' % (sB, sB, L.L_WA))
for q in range(6):
    a('s_mov_b32 m0, s%d' % sB)
    a('s_nop 0')
    for k in range(4 if q < 5 else 1):
        a('buffer_load_dwordx4 v1, %s, s%d offen offset:%d sc1 lds' % (srd(S_WS), sA, 1024 * k))
    if q < 5:
        a('s_add_u32 s%d, s%d, 4096' % (sA, sA))
        a('s_add_u32 s%d, s%d, 4096' % (sB, sB))
wa_mark = a.vm_mark()

AQ, AK, AV = 2, 18, 42
WBUF = [66, 90]
XR = 114
STR = 210
SM, SR = 234, 237
NR, LOOK = 8, 4


def a_xload(u):
    slot = u % NR
    return ['buffer_load_dwordx4 %s, v1, %s, s%d offen offset:%d sc1' %
            (vr(XR + (slot * 3 + t) * 4), srd(S_WS), sO + 4 * t + (u >> 2), 1024 * (u & 3)) for t in range(3)]


def a_issue():
    pair_base(sA, L.XA)
    a('s_mul_i32 s%d, s%d, 14336' % (sB, sGT))
    a('s_add_u32 s%d, s%d, s%d' % (sO + 4, sA, sB))
    a('s_add_u32 s%d, s%d, 14336' % (sO + 8, sO + 4))
    a('s_sub_u32 s%d, s%d, 14336' % (sO + 0, sO + 4))
    a('s_cmp_eq_u32 s%d, 0' % sGT)
    a('s_cselect_b32 s%d, s%d, s%d' % (sO + 0, sO + 4, sO + 0))
    for t in range(3):
        for q in range(1, 4):
            a('s_add_u32 s%d, s%d, %d' % (sO + 4 * t + q, sO + 4 * t, 4096 * q))
    marks = {}
    for u in range(LOOK):
        for t in a_xload(u):
            a(t)
        marks[u] = a.vm_mark()
    return marks


a_issue()
a.wait_vm(wa_mark)
a('s_barrier')
stamp()
for p in range(4):
    a('v_mov_b32 v%d, 0x3f803f80' % (4 + p))
a('s_mul_i32 s%d, s%d, %d' % (sB, sW, 14 * 1024))
a('v_add_u32 v2, s%d, v1' % sB)
a('s_cmp_lt_u32 s%d, 2' % sW)
a('s_cselect_b32 s%d, %d, 0' % (sB, 56 * 1024))
a('v_add_u32 v3, s%d, v2' % sB)
for u in range(7):
    for hh in range(2):
        a('ds_read_b128 %s, v2 offset:%d' % (vr(16 + 8 * u + 4 * hh), 1024 * (2 * u + hh)))
for u in range(5):
    for hh in range(2):
        a('ds_read_b128 %s, v3 offset:%d' % (vr(72 + 8 * u + 4 * hh) if u < 5 else '', 1024 * (2 * u + hh)))
a('s_waitcnt lgkmcnt(10)')
for u in range(14):
    a('%s %s, %s, v[4:7], %s' % (MFMA, vr(8 + 4 * (u & 1)) if False else 'v[8:11]', vr(16 + 4 * u), '0' if u == 0 else 'v[8:11]'))
a('s_waitcnt lgkmcnt(0)')
for u in range(10):
    a('%s v[12:15], %s, v[4:7], %s' % (MFMA, vr(72 + 4 * u), '0' if u == 0 else 'v[12:15]'))
for u in range(4):
    a('ds_read_b128 %s, v3 offset:%d' % (vr(16 + 4 * u), 1024 * (10 + u)))
a('s_waitcnt lgkmcnt(0)')
for u in range(4):
    a('%s v[12:15], %s, v[4:7], v[12:15]' % (MFMA, vr(16 + 4 * u)))
a('v_cmp_eq_u32 vcc, 0, v%d' % V_TOK)
a('s_lshl_b32 s%d, s%d, 6' % (sA, sW))
a('s_add_u32 s%d, s%d, %d' % (sA, sA, L.L_CSA))
a('v_lshl_add_u32 v3, v%d, 4, s%d' % (V_G, sA))
a('s_mov_b64 exec, vcc')
a('ds_write_b128 v3, v[8:11]')
a('s_cmp_lt_u32 s%d, 2' % sW)
a('s_cbranch_scc0 L_csa_done')
a('ds_write_b128 v3, v[12:15] offset:256')
a.label('L_csa_done')
a('s_mov_b64 exec, -1')
a('s_waitcnt lgkmcnt(0)')
a('s_barrier')
stamp()
a('s_branch L_a_main')

a.label('L_pair')
a_flag_addr(2)
poll(2)
stamp()
xmark = a_issue()
if DIAG:
    a('s_add_u32 s%d, s%d, 0' % (sSTI, sSTI))
a.label('L_a_main')
pair_base(sA, L.SA)
a('s_mul_i32 s%d, s%d, 1792' % (sB, sGT))
a('s_add_u32 s%d, s%d, s%d' % (sO + 13, sA, sB))
a('s_add_u32 s%d, s%d, 1792' % (sO + 14, sO + 13))
a('s_sub_u32 s%d, s%d, 1792' % (sO + 12, sO + 13))
a('s_cmp_eq_u32 s%d, 0' % sGT)
a('s_cselect_b32 s%d, s%d, s%d' % (sO + 12, sO + 13, sO + 12))
a('v_and_b32 v%d, 15, v0' % V_TOK)
a('v_lshrrev_b32 v%d, 4, v0' % V_G)
a('v_lshlrev_b32 v240, 3, v%d' % V_TOK)
a('v_lshl_add_u32 v240, v%d, 7, v240' % V_G)
a('v_mov_b32 v242, 0x%x' % INV)
a('v_cmp_lt_u32 vcc, 1, v%d' % V_G)
a('v_cndmask_b32 v241, 0, v242, vcc')
a('v_or_b32 v241, v241, v240')
a('v_add_u32 v243, %d, v1' % (56 * 1024))
a('v_lshlrev_b32 v244, 4, v%d' % V_G)
a('v_add_u32 v244, %d, v244' % L.L_CSA)
a('v_lshlrev_b32 v245, 2, v%d' % V_TOK)
a('v_add_u32 v245, %d, v245' % L.L_CSA)
stat_loads = ['buffer_load_dwordx2 %s, v%d, %s, s%d offen offset:%d sc1' %
              (vr(STR + (t * 4 + i) * 2, 2), 241 if i == 3 else 240, srd(S_WS), sO + 12 + t, 512 * i)
              for t in range(3) for i in range(4)]


def a_wread(u):
    b = WBUF[u & 1]
    o = []
    for p in range(6):
        if p < 4:
            o.append('ds_read_b128 %s, v1 offset:%d' % (vr(b + 4 * p), L.L_WA + (p * 14 + u) * 1024))
        else:
            o.append('ds_read_b128 %s, v243 offset:%d' % (vr(b + 4 * p), L.L_WA + ((p - 4) * 14 + u) * 1024))
    return o


for t in a_wread(0):
    a(t)
stat_fill = []
for t in range(3):
    r = STR + 8 * t
    for c_ in range(2):
        stat_fill += ['v_add_f32 v%d, v%d, v%d' % (r + c_, r + c_, r + 2 + c_),
                      'v_add_f32 v%d, v%d, v%d' % (r + 4 + c_, r + 4 + c_, r + 6 + c_),
                      'v_add_f32 v%d, v%d, v%d' % (r + c_, r + c_, r + 4 + c_)]
    stat_fill += xg_reduce(r, r + 2) + xg_reduce(r + 1, r + 3)
    stat_fill += stats_finish(r, r + 1, r + 2, False)
    stat_fill += ['v_mov_b32 v%d, v%d' % (SM + t, r), 'v_mov_b32 v%d, v%d' % (SR + t, r + 1)]

st_mark = None
for u in range(14):
    need = xmark[u]
    if u == 9:
        need = max(need, st_mark)
    a.wait_vm(need)
    a('s_waitcnt lgkmcnt(0)')
    wb = WBUF[u & 1]
    xs = XR + (u % NR) * 12
    mf = []
    cz = (lambda r: '0') if u == 0 else (lambda r: vr(r))
    for t in range(2):
        for hf in range(2):
            r = AQ + (t * 2 + hf) * 4
            mf.append('%s %s, %s, %s, %s' % (MFMA, vr(r), vr(wb + 4 * hf), vr(xs + 4 * (t + 1)), cz(r)))
    for t in range(3):
        for hf in range(2):
            r = AK + (t * 2 + hf) * 4
            mf.append('%s %s, %s, %s, %s' % (MFMA, vr(r), vr(wb + 8 + 4 * hf), vr(xs + 4 * t), cz(r)))
    for t in range(3):
        for hf in range(2):
            r = AV + (t * 2 + hf) * 4
            mf.append('%s %s, %s, %s, %s' % (MFMA, vr(r), vr(xs + 4 * t), vr(wb + 16 + 4 * hf), cz(r)))
    mem = {}
    if u < 13:
        for k, x in enumerate(a_wread(u + 1)):
            mem[k] = x
    else:
        for p in range(4):
            mem[p] = 'ds_read_b128 %s, v244 offset:%d' % (vr(WBUF[0] + 4 * p), 64 * p)
        for d in range(2):
            mem[4 + d] = 'ds_read_b32 v%d, v245 offset:%d' % (WBUF[0] + 16 + d, 64 * (4 + d))
    if u + LOOK < 14:
        xl = a_xload(u + LOOK)
        mem[6], mem[9], mem[12] = xl
    if u < 6:
        mem[8], mem[14] = stat_loads[2 * u], stat_loads[2 * u + 1]
    fill = []
    if u >= 9:
        n = (len(stat_fill) + 4) // 5
        fill = stat_fill[(u - 9) * n:(u - 8) * n]
    fi = 0
    for k, m in enumerate(mf):
        a(m)
        if k in mem:
            a(mem[k])
            if k == 12 and u + LOOK < 14:
                xmark[u + LOOK] = a.vm_mark()
            if k == 14 and u == 5:
                st_mark = a.vm_mark()
        for _ in range(2):
            if fi < len(fill) and k >= 1:
                a(fill[fi])
                fi += 1
    assert fi == len(fill), (u, fi, len(fill))
stamp()
CSQ = WBUF[0]
a('s_mul_i32 s%d, s%d, 384' % (sA, sW))
a('s_add_u32 s%d, s%d, %d' % (sA, sA, L.L_STA))
a('v_lshl_add_u32 v246, v%d, 2, s%d' % (V_TOK, sA))
a('v_lshl_add_u32 v247, v%d, 4, s%d' % (V_G, sA))
a('s_mov_b64 exec, 0xffff')
for t in range(3):
    a('ds_write_b32 v246, v%d offset:%d' % (SM + t, 128 * t))
    a('ds_write_b32 v246, v%d offset:%d' % (SR + t, 128 * t + 64))
a('s_mov_b64 exec, -1')
MROW, RROW = 114, 126
a('s_waitcnt lgkmcnt(0)')
for t in range(3):
    a('ds_read_b128 %s, v247 offset:%d' % (vr(MROW + 4 * t), 128 * t))
    a('ds_read_b128 %s, v247 offset:%d' % (vr(RROW + 4 * t), 128 * t + 64))
QF, KF, VF = 140, 148, 160
for t in range(2):
    for hf in range(2):
        r = AQ + (t * 2 + hf) * 4
        for i in range(4):
            a('v_fma_f32 v%d, -v%d, v%d, v%d' % (r + i, SM + t + 1, CSQ + 4 * hf + i, r + i))
        for p in range(2):
            a('v_cvt_pk_bf16_f32 v%d, v%d, v%d' % (QF + 4 * t + 2 * hf + p, r + 2 * p, r + 2 * p + 1))
for t in range(3):
    for hf in range(2):
        r = AK + (t * 2 + hf) * 4
        for i in range(4):
            a('v_fma_f32 v%d, -v%d, v%d, v%d' % (r + i, SM + t, CSQ + 8 + 4 * hf + i, r + i))
        for p in range(2):
            a('v_cvt_pk_bf16_f32 v%d, v%d, v%d' % (KF + 4 * t + 2 * hf + p, r + 2 * p, r + 2 * p + 1))
SS = 172
for t in range(2):
    a('%s %s, %s, %s, 0' % (MFMA, vr(SS + 8 * t), vr(KF + 4 * t), vr(QF + 4 * t)))
    a('%s %s, %s, %s, 0' % (MFMA, vr(SS + 8 * t + 4), vr(KF + 4 * t + 4), vr(QF + 4 * t)))
a('s_waitcnt lgkmcnt(0)')
for t in range(3):
    for d in range(2):
        r = AV + (t * 2 + d) * 4
        for i in range(4):
            a('v_fma_f32 v%d, -v%d, v%d, v%d' % (r + i, MROW + 4 * t + i, CSQ + 16 + d, r + i))
        for p in range(2):
            a('v_cvt_pk_bf16_f32 v%d, v%d, v%d' % (VF + 6 * d + 2 * t + p, r + 2 * p, r + 2 * p + 1))
SCALE = (28.0 ** -0.5) * 1.4426950408889634
MX, CC, LS, TMPR = 190, 192, 194, 196
PF = 200
a('v_mov_b32 v198, 0xff800000')
seq = [[], []]
for t in range(2):
    s = SS + 8 * t
    q = seq[t]
    for e in range(8):
        q.append('v_mul_f32 v%d, v%d, v%d' % (s + e, s + e, RROW + 4 * (t + (e >> 2)) + (e & 3)))
    for e in range(8):
        mk = (sM0 if t == 0 else sM1) + 2 * e if e < 4 else sM2 + 2 * (e - 4)
        q.append('v_cndmask_b32 v%d, v198, v%d, %s' % (s + e, s + e, sp(mk)))
    q.append('v_max3_f32 v%d, v%d, v%d, v%d' % (MX + t, s, s + 1, s + 2))
    q.append('v_max3_f32 v%d, v%d, v%d, v%d' % (MX + t, MX + t, s + 3, s + 4))
    q.append('v_max3_f32 v%d, v%d, v%d, v%d' % (MX + t, MX + t, s + 5, s + 6))
    q.append('v_max_f32 v%d, v%d, v%d' % (MX + t, MX + t, s + 7))
    q += xg_reduce(MX + t, TMPR + t, 'v_max_f32')
    q.append('v_mul_f32 v%d, %s, v%d' % (CC + t, f2h(SCALE), SR + t + 1))
    q.append('v_mul_f32 v%d, v%d, v%d' % (MX + t, MX + t, CC + t))
    for e in range(8):
        q.append('v_fma_f32 v%d, v%d, v%d, -v%d' % (s + e, s + e, CC + t, MX + t))
    for e in range(8):
        q.append('v_exp_f32 v%d, v%d' % (s + e, s + e))
    q.append('v_add_f32 v%d, v%d, v%d' % (LS + t, s, s + 1))
    for e in range(2, 8):
        q.append('v_add_f32 v%d, v%d, v%d' % (LS + t, LS + t, s + e))
    q += xg_reduce(LS + t, TMPR + t)
    q.append('v_rcp_f32 v%d, v%d' % (LS + t, LS + t))
    for e in range(8):
        q.append('v_mul_f32 v%d, v%d, v%d' % (s + e, s + e, RROW + 4 * (t + (e >> 2)) + (e & 3)))
    for p in range(4):
        q.append('v_cvt_pk_bf16_f32 v%d, v%d, v%d' % (PF + 4 * t + p, s + 2 * p, s + 2 * p + 1))
for x, y in zip(*seq):
    a(x)
    a(y)
OO = 208
for t in range(2):
    for d in range(2):
        a('%s %s, %s, %s, 0' % (MFMA, vr(OO + 8 * t + 4 * d), vr(VF + 6 * d + 2 * t), vr(PF + 4 * t)))
pair_base(sA, L.O)
a('s_lshl_b32 s%d, s%d, 4' % (sB, sGT))
a('s_add_u32 s%d, s%d, s%d' % (sB, sB, sC))
a('s_lshl_b32 s%d, s%d, 10' % (sB, sB))
a('s_add_u32 s%d, s%d, s%d' % (sA, sA, sB))
for t in range(2):
    for e in range(8):
        a('v_mul_f32 v%d, v%d, v%d' % (OO + 8 * t + e, OO + 8 * t + e, LS + t))
    for p in range(4):
        a('v_cvt_pk_bf16_f32 v%d, v%d, v%d' % (PF + 4 * t + p, OO + 8 * t + 2 * p, OO + 8 * t + 2 * p + 1))
    store('buffer_store_dwordx4 %s, v1, %s, s%d offen' % (vr(PF + 4 * t), srd(S_WS), sA), sFAST)
    if t == 0:
        a('s_add_u32 s%d, s%d, 16384' % (sA, sA))
pair_base(sA, L.FA)
a('s_lshl_b32 s%d, s%d, 4' % (sB, sGT))
a('s_add_u32 s%d, s%d, s%d' % (sB, sB, sC))
a('s_lshl_b32 s%d, s%d, 2' % (sB, sB))
a('s_add_u32 s%d, s%d, s%d' % (sA, sA, sB))
a('v_lshlrev_b32 v2, 6, v0')
a('v_add_u32 v2, s%d, v2' % sA)
set_flags(2, 2, sFAST)
stamp()
a('s_cmp_eq_u32 s%d, 7' % sJ)
a('s_cbranch_scc1 L_next_pair')


def wd_loads(lo, hi):
    a('s_lshl_b32 s%d, s%d, 2' % (sA, sJ))
    a('s_mul_i32 s%d, s%d, %d' % (sA, sA, 56 * 1024))
    a('s_mul_i32 s%d, s%d, %d' % (sB, sW, 14 * 1024))
    a('s_add_u32 s%d, s%d, s%d' % (sA, sA, sB))
    a('s_add_u32 s%d, s%d, %d' % (sO, sA, L.WD))
    quarter_offsets(4, 56 * 1024)
    for fi in range(lo, hi):
        kk, t = fi >> 2, fi & 3
        a('buffer_load_dwordx4 %s, v1, %s, s%d offen offset:%d sc1' %
          (ar(4 * fi), srd(S_WS), sO + 4 * t + (kk >> 2), 1024 * (kk & 3)))


WD_CH = [(0, 12), (12, 24), (24, 56)]
A_RES, A_B2 = 224, 232


def owner_index():
    a('s_lshr_b32 s%d, s%d, 1' % (sB, sW))
    a('s_lshl_b32 s%d, s%d, 2' % (sCc, sG))
    a('s_add_u32 s%d, s%d, s%d' % (sB, sB, sCc))
    a('s_and_b32 s%d, s%d, 1' % (sA, sW))
    a('s_lshl_b32 s%d, s%d, 1' % (sCc, sJ))
    a('s_add_u32 s%d, s%d, s%d' % (sA, sA, sCc))


BW, BO, BACC, BRD, BTMP = 2, 66, 130, 194, 226


def b_wloads():
    a('s_lshl_b32 s%d, s%d, 6' % (sA, sJ))
    a('s_lshl_b32 s%d, s%d, 2' % (sB, sW))
    a('s_add_u32 s%d, s%d, s%d' % (sA, sA, sB))
    a('s_lshl_b32 s%d, s%d, 10' % (sA, sA))
    a('s_add_u32 s%d, s%d, %d' % (sA, sA, L.WB))
    for t in range(4):
        for i in range(4):
            a('buffer_load_dwordx4 %s, v1, %s, s%d offen offset:%d sc1' % (vr(BW + (i * 4 + t) * 4), srd(S_WS), sA, 1024 * i))
        if t < 3:
            a('s_add_u32 s%d, s%d, %d' % (sA, sA, 16 * 1024))


a('s_cmp_eq_u32 s%d, 0' % sPAIR)
a('s_cbranch_scc0 L_b_start')
a('s_lshl_b32 s%d, s%d, 7' % (sA, sJ))
a('s_add_u32 s%d, s%d, %d' % (sA, sA, L.FP))
a('v_lshl_add_u32 v2, v0, 2, s%d' % sA)
a('s_mov_b32 s%d, -1' % sMK)
a('s_mov_b32 s%d, 0' % (sMK + 1))
poll(2)
a('s_lshl_b32 s%d, s%d, 8' % (sCc, sG))
a('s_add_u32 s%d, s%d, %d' % (sCc, sCc, L.FX[0]))
a('v_lshl_add_u32 v2, v0, 2, s%d' % sCc)
a('s_mov_b32 s%d, 0x3fff3fff' % sMK)
a('s_mov_b32 s%d, 0x3fff3fff' % (sMK + 1))
poll(2)
owner_index()
a('s_mul_i32 s%d, s%d, 14' % (sB, sB))
a('s_add_u32 s%d, s%d, s%d' % (sB, sB, sA))
a('s_lshl_b32 s%d, s%d, 10' % (sB, sB))
a('s_add_u32 s%d, s%d, %d' % (sB, sB, L.XA[0]))
a('buffer_load_dwordx4 %s, v1, %s, s%d offen sc1' % (ar(A_RES), srd(S_WS), sB))
a('s_add_u32 s%d, s%d, %d' % (sB, sB, 2 * 14336))
a('buffer_load_dwordx4 %s, v1, %s, s%d offen sc1' % (ar(A_RES + 4), srd(S_WS), sB))
build_srd(S_TMP, P_B2, 896)
a('s_lshl_b32 s%d, s%d, 6' % (sB, sA))
a('v_lshlrev_b32 v240, 3, v%d' % V_G)
a('buffer_load_dwordx2 v[232:233], v240, %s, s%d offen' % (srd(S_TMP), sB))
a('buffer_load_dwordx2 v[234:235], v240, %s, s%d offen offset:32' % (srd(S_TMP), sB))
b2_mark = a.vm_mark()
b_wloads()
a.wait_vm(b2_mark)
for k in range(4):
    a('v_lshlrev_b32 v236, 16, v%d' % (232 + k))
    a('v_and_b32 v237, 0xffff0000, v%d' % (232 + k))
    a('v_accvgpr_write_b32 a%d, v236' % (A_B2 + 2 * k))
    a('v_accvgpr_write_b32 a%d, v237' % (A_B2 + 2 * k + 1))
wd_loads(*WD_CH[0])
a('s_branch L_b_poll')
a.label('L_b_start')
b_wloads()
a.label('L_b_poll')


def red_writes(acc, tile):
    return ['ds_write_b128 v248, %s offset:%d' % (vr(acc + 4 * t), (tile >> 1) * 32768 + (tile & 1) * 4096 + t * 1024)
            for t in range(4)]


def red_reads(st, rd):
    return ['ds_read_b128 %s, v249 offset:%d' % (vr(rd + (b * 2 + k) * 4), st * 32768 + b * 8192 + k * 1024)
            for b in range(4) for k in range(2)]


def owner_finish(st, is_d, rd, tmp):
    res = A_RES + 4 * st
    for p in range(4):
        a('v_accvgpr_read_b32 v%d, a%d' % (tmp + 8 + p, res + p))
    for p in range(4):
        a('v_lshlrev_b32 v%d, 16, v%d' % (tmp + 2 * p, tmp + 8 + p))
        a('v_and_b32 v%d, 0xffff0000, v%d' % (tmp + 2 * p + 1, tmp + 8 + p))
    if is_d:
        for e in range(0, 8):
            a('v_accvgpr_read_b32 v%d, a%d' % (tmp + 8 + e, A_B2 + e))
        for e in range(0, 8, 2):
            a('v_pk_add_f32 %s, %s, %s' % (vr(tmp + e, 2), vr(tmp + e, 2), vr(tmp + 8 + e, 2)))
    a('s_waitcnt lgkmcnt(0)')
    for e in range(0, 8, 2):
        a('v_pk_add_f32 %s, %s, %s' % (vr(rd + e, 2), vr(rd + e, 2), vr(rd + 8 + e, 2)))
        a('v_pk_add_f32 %s, %s, %s' % (vr(rd + 16 + e, 2), vr(rd + 16 + e, 2), vr(rd + 24 + e, 2)))
    for e in range(0, 8, 2):
        a('v_pk_add_f32 %s, %s, %s' % (vr(rd + e, 2), vr(rd + e, 2), vr(rd + 16 + e, 2)))
    for e in range(0, 8, 2):
        a('v_pk_add_f32 %s, %s, %s' % (vr(tmp + e, 2), vr(tmp + e, 2), vr(rd + e, 2)))
    for p in range(4):
        a('v_cvt_pk_bf16_f32 v%d, v%d, v%d' % (rd + p, tmp + 2 * p, tmp + 2 * p + 1))
    for p in range(4):
        a('v_accvgpr_write_b32 a%d, v%d' % (res + p, rd + p))


def owner_stats(tmp, s1, s2, t):
    a('v_pk_add_f32 %s, %s, %s' % (vr(t, 2), vr(tmp, 2), vr(tmp + 2, 2)))
    a('v_pk_add_f32 %s, %s, %s' % (vr(t + 2, 2), vr(tmp + 4, 2), vr(tmp + 6, 2)))
    a('v_pk_add_f32 %s, %s, %s' % (vr(t, 2), vr(t, 2), vr(t + 2, 2)))
    a('v_add_f32 v%d, v%d, v%d' % (s1, t, t + 1))
    a('v_pk_mul_f32 %s, %s, %s' % (vr(t, 2), vr(tmp, 2), vr(tmp, 2)))
    for e in (2, 4, 6):
        a('v_pk_fma_f32 %s, %s, %s, %s' % (vr(t, 2), vr(tmp + e, 2), vr(tmp + e, 2), vr(t, 2)))
    a('v_add_f32 v%d, v%d, v%d' % (s2, t, t + 1))
    for x in xg_reduce(s1, t) + xg_reduce(s2, t + 1):
        a(x)


def red_addrs():
    a('s_lshl_b32 s%d, s%d, 13' % (sA, sW))
    a('s_add_u32 s%d, s%d, %d' % (sA, sA, L.L_R2))
    a('v_add_u32 v248, s%d, v1' % sA)
    a('s_and_b32 s%d, s%d, 1' % (sA, sW))
    a('s_lshl_b32 s%d, s%d, 11' % (sA, sA))
    a('s_lshr_b32 s%d, s%d, 1' % (sB, sW))
    a('s_lshl_b32 s%d, s%d, 12' % (sB, sB))
    a('s_add_u32 s%d, s%d, s%d' % (sA, sA, sB))
    a('s_add_u32 s%d, s%d, %d' % (sA, sA, L.L_R2))
    a('v_add_u32 v249, s%d, v1' % sA)


sPX, sPS, sPF, sPC = 36, 37, 28, 29


def publish_setup(xbase, sbase, fbase, per_pair):
    owner_index()
    a('s_mul_i32 s%d, s%d, 14' % (sCc, sB))
    a('s_add_u32 s%d, s%d, s%d' % (sCc, sCc, sA))
    a('s_lshl_b32 s%d, s%d, 10' % (sPX, sCc))
    a('s_lshl_b32 s%d, s%d, 7' % (sPS, sCc))
    a('s_lshl_b32 s%d, s%d, 4' % (sPF, sB))
    a('s_add_u32 s%d, s%d, s%d' % (sPF, sPF, sA))
    a('s_lshl_b32 s%d, s%d, 2' % (sPF, sPF))
    for dst, arr in ((sPX, xbase), (sPS, sbase), (sPF, fbase)):
        if per_pair:
            pair_base(sD, arr)
            a('s_add_u32 s%d, s%d, s%d' % (dst, dst, sD))
        else:
            a('s_add_u32 s%d, s%d, %d' % (dst, dst, arr))


def publish_x(st, rd, tmp):
    if st == 1:
        a('s_add_u32 s%d, s%d, %d' % (sPX, sPX, 2 * 14336))
        a('s_add_u32 s%d, s%d, %d' % (sPS, sPS, 2 * 1792))
    store('buffer_store_dwordx4 %s, v1, %s, s%d offen' % (vr(rd), srd(S_WS), sPX), sPC)
    owner_stats(tmp, rd + 4, rd + 5, rd + 6)
    a('v_and_b32 v%d, 15, v0' % V_TOK)
    a('v_lshlrev_b32 v%d, 3, v%d' % (rd + 6, V_TOK))
    a('s_mov_b64 exec, 0xffff')
    store('buffer_store_dwordx2 %s, v%d, %s, s%d offen' % (vr(rd + 4, 2), rd + 6, srd(S_WS), sPS), sPC)
    a('s_mov_b64 exec, -1')


def publish_flags():
    a('v_lshlrev_b32 v2, 7, v0')
    a('v_add_u32 v2, s%d, v2' % sPF)
    set_flags(2, 2, sPC)


def ksplit_phase(acc, rd, tmp, is_d, tile_mfmas, finish_publish):
    extra = {1: red_writes(acc + 0, 0), 2: red_writes(acc + 16, 1), 3: red_writes(acc + 32, 2) + red_reads(0, rd)}
    for tile in range(4):
        items = tile_mfmas(tile)
        ex = list(extra.get(tile, []))
        n = len(items)
        step = max(1, (n - 4) // max(1, len(ex))) if ex else 1
        for k, (pre, m, post) in enumerate(items):
            for x in pre:
                x()
            a(m)
            if post:
                post()
            elif ex and k >= 3 and (k - 3) % step == 0:
                a(ex.pop(0))
        for x in ex:
            a(x)
        if tile == 2:
            a('s_waitcnt lgkmcnt(0)')
            a('s_barrier')
    for x in red_writes(acc + 48, 3):
        a(x)
    finish_publish(0)
    a('s_waitcnt lgkmcnt(0)')
    a('s_barrier')
    for x in red_reads(1, rd):
        a(x)
    finish_publish(1)


pair_base(sA, L.FA)
a('s_lshl_b32 s%d, s%d, 8' % (sB, sG))
a('s_add_u32 s%d, s%d, s%d' % (sA, sA, sB))
a('v_lshl_add_u32 v240, v0, 2, s%d' % sA)
a('s_lshl_b32 s%d, s%d, 2' % (sB, sW))
a('s_lshl_b32 s%d, 0x000f000f, s%d' % (sMK, sB))
a('s_mov_b32 s%d, s%d' % (sMK + 1, sMK))
red_addrs()
publish_setup(L.XB, L.SB, L.FB, True)
a('s_mov_b32 s%d, s%d' % (sPC, sFAST))
pair_base(sA, L.O)
a('s_lshl_b32 s%d, s%d, 6' % (sB, sG))
a('s_lshl_b32 s%d, s%d, 2' % (sCc, sW))
a('s_add_u32 s%d, s%d, s%d' % (sB, sB, sCc))
a('s_lshl_b32 s%d, s%d, 10' % (sB, sB))
a('s_add_u32 s%d, s%d, s%d' % (sO, sA, sB))
for t in range(1, 4):
    a('s_add_u32 s%d, s%d, %d' % (sO + t, sO, 16384 * t))
poll(240)
stamp()


def b_oload(tile, i):
    return 'buffer_load_dwordx4 %s, v1, %s, s%d offen offset:%d sc1' % (vr(BO + (tile * 4 + i) * 4), srd(S_WS), sO + tile, 1024 * i)


om = {}
for tile in range(2):
    for i in range(4):
        a(b_oload(tile, i))
        om[(tile, i)] = a.vm_mark()


def b_tile(tile):
    items = []
    for i in range(4):
        for t in range(4):
            r = BACC + (tile * 4 + t) * 4
            pre = [(lambda tl=tile, ii=i: a.wait_vm(om[(tl, ii)]))] if t == 0 else []
            post = None
            if tile < 2 and t == 1:
                def post(tl=tile + 2, ii=i):
                    a(b_oload(tl, ii))
                    om[(tl, ii)] = a.vm_mark()
            items.append((pre, '%s %s, %s, %s, %s' % (MFMA, vr(r), vr(BW + (i * 4 + t) * 4), vr(BO + (tile * 4 + i) * 4),
                                                      '0' if i == 0 else vr(r)), post))
    return items


def b_fin(st):
    owner_finish(st, False, BRD, BTMP)
    publish_x(st, BRD, BTMP)


ksplit_phase(BACC, BRD, BTMP, False, b_tile, b_fin)
publish_flags()
stamp()

CACC, CW, CX, CCS, CB1, CB1R, CSTR, CMR = 2, 66, 162, 194, 210, 226, 234, 242
NRC = 6
a('s_cmp_eq_u32 s%d, 0' % sPAIR)
a('s_cbranch_scc0 L_c_start')
wd_loads(*WD_CH[1])
a.label('L_c_start')
a('s_lshl_b32 s%d, s%d, 4' % (sA, sJ))
a('s_lshl_b32 s%d, s%d, 2' % (sB, sW))
a('s_add_u32 s%d, s%d, s%d' % (sA, sA, sB))
a('s_mul_i32 s%d, s%d, %d' % (sB, sA, 14 * 1024))
a('s_add_u32 s%d, s%d, %d' % (sO, sB, L.WC))
quarter_offsets(4, 14 * 1024)


def c_wload(u):
    slot = u % NRC
    return ['buffer_load_dwordx4 %s, v1, %s, s%d offen offset:%d sc1' %
            (vr(CW + (slot * 4 + t) * 4), srd(S_WS), sO + 4 * t + (u >> 2), 1024 * (u & 3)) for t in range(4)]


for u in range(NRC):
    for x in c_wload(u):
        a(x)
a('v_lshrrev_b32 v%d, 4, v0' % V_G)
a('v_and_b32 v%d, 15, v0' % V_TOK)
a('v_lshlrev_b32 v240, 4, v%d' % V_G)
a('s_lshl_b32 s%d, s%d, 6' % (sB, sA))
a('s_add_u32 s%d, s%d, %d' % (sB, sB, L.CSC))
for t in range(4):
    a('buffer_load_dwordx4 %s, v240, %s, s%d offen offset:%d sc1' % (vr(CCS + 4 * t), srd(S_WS), sB, 64 * t))
a('v_lshlrev_b32 v240, 3, v%d' % V_G)
a('s_lshl_b32 s%d, s%d, 5' % (sB, sA))
for t in range(4):
    a('buffer_load_dwordx2 %s, v240, %s, s%d offen offset:%d' % (vr(CB1R + 2 * t, 2), srd(S_B1), sB, 32 * t))
pair_base(sA, L.FB)
a('s_lshl_b32 s%d, s%d, 8' % (sB, sG))
a('s_add_u32 s%d, s%d, s%d' % (sA, sA, sB))
a('v_lshl_add_u32 v240, v0, 2, s%d' % sA)
a('s_mov_b32 s%d, 0x3fff3fff' % sMK)
a('s_mov_b32 s%d, 0x3fff3fff' % (sMK + 1))
a('s_lshl_b32 s%d, s%d, 2' % (sB, sG))
a('s_add_u32 s%d, s%d, s%d' % (sB, sB, sW))
pair_base(36, L.XB)
a('s_mul_i32 s%d, s%d, 14336' % (sCc, sB))
a('s_add_u32 s36, s36, s%d' % sCc)
a('s_mul_i32 s37, s%d, 14336' % sW)
a('s_add_u32 s37, s37, %d' % L.L_R2)
pair_base(28, L.SB)
a('s_mul_i32 s%d, s%d, 1792' % (sCc, sB))
a('s_add_u32 s28, s28, s%d' % sCc)
a('v_lshlrev_b32 v238, 3, v%d' % V_TOK)
a('v_lshl_add_u32 v238, v%d, 7, v238' % V_G)
a('v_mov_b32 v242, 0x%x' % INV)
a('v_cmp_lt_u32 vcc, 1, v%d' % V_G)
a('v_cndmask_b32 v239, 0, v242, vcc')
a('v_or_b32 v239, v239, v238')
poll(240)
stamp()
for q in range(4):
    a('s_mov_b32 m0, s37')
    a('s_nop 0')
    for k in range(4 if q < 3 else 2):
        a('buffer_load_dwordx4 v1, %s, s36 offen offset:%d sc1 lds' % (srd(S_WS), 1024 * k))
    if q < 3:
        a('s_add_u32 s36, s36, 4096')
        a('s_add_u32 s37, s37, 4096')
x1_mark = a.vm_mark()
CST2 = 244
for i in range(4):
    a('buffer_load_dwordx2 %s, v%d, %s, s28 offen offset:%d sc1' %
      (vr(CSTR + 2 * i, 2) if i < 2 else vr(CST2 + 2 * (i - 2), 2), 239 if i == 3 else 238, srd(S_WS), 512 * i))
cst_mark = a.vm_mark()
a('v_add_u32 v252, %d, v1' % L.L_R2)
a.wait_vm(x1_mark)
a('s_barrier')
stamp()


def c_xread(u):
    b = CX + 16 * (u & 1)
    return ['ds_read_b128 %s, v252 offset:%d' % (vr(b + 4 * t), (t * 14 + u) * 1024) for t in range(4)]


for x in c_xread(0):
    a(x)
r = CSTR
cst_fill = []
for c_ in range(2):
    cst_fill += ['v_add_f32 v%d, v%d, v%d' % (r + c_, r + c_, r + 2 + c_),
                 'v_add_f32 v%d, v%d, v%d' % (CST2 + c_, CST2 + c_, CST2 + 2 + c_),
                 'v_add_f32 v%d, v%d, v%d' % (r + c_, r + c_, CST2 + c_)]
cst_fill += xg_reduce(r, r + 2) + xg_reduce(r + 1, r + 3) + stats_finish(r, r + 1, r + 2, True)
for t in range(4):
    for p in range(2):
        cst_fill += ['v_lshlrev_b32 v%d, 16, v%d' % (CB1 + 4 * t + 2 * p, CB1R + 2 * t + p),
                     'v_and_b32 v%d, 0xffff0000, v%d' % (CB1 + 4 * t + 2 * p + 1, CB1R + 2 * t + p)]
wm = {}
for u in range(14):
    if u >= NRC:
        a.wait_vm(wm[u])
    elif u == 2:
        a.wait_vm(cst_mark)
    a('s_waitcnt lgkmcnt(0)')
    ws_ = CW + (u % NRC) * 16
    xb = CX + 16 * (u & 1)
    mem = {}
    if u < 13:
        for k, x in enumerate(c_xread(u + 1)):
            mem[k] = x
    if 1 <= u and u - 1 + NRC < 14:
        for k, x in enumerate(c_wload(u - 1 + NRC)):
            mem[4 + 3 * k] = x
    fill = []
    if 2 <= u < 6:
        n = (len(cst_fill) + 3) // 4
        fill = cst_fill[(u - 2) * n:(u - 1) * n]
    if u == 7:
        a('s_lshl_b32 s%d, s%d, 7' % (sA, sW))
        a('s_add_u32 s%d, s%d, %d' % (sA, sA, L.L_STC))
        a('v_lshl_add_u32 v240, v%d, 3, s%d' % (V_TOK, sA))
        mem[14] = 'ds_write_b64 v240, %s' % vr(CSTR, 2)
    k = 0
    fi = 0
    for tile in range(4):
        for t in range(4):
            r = CACC + (tile * 4 + t) * 4
            a('%s %s, %s, %s, %s' % (MFMA, vr(r), vr(ws_ + 4 * t), vr(xb + 4 * tile), '0' if u == 0 else vr(r)))
            if k in mem:
                a(mem[k])
                if k == 13 and 1 <= u and u - 1 + NRC < 14:
                    wm[u - 1 + NRC] = a.vm_mark()
            for _ in range(2):
                if fi < len(fill):
                    a(fill[fi])
                    fi += 1
            k += 1
    assert fi == len(fill)
a('s_waitcnt lgkmcnt(0)')
a('s_barrier')
a('v_lshlrev_b32 v240, 3, v%d' % V_TOK)
a('v_add_u32 v240, %d, v240' % L.L_STC)
for t in range(4):
    a('ds_read_b64 %s, v240 offset:%d' % (vr(CMR + 2 * t, 2), 128 * t))
stamp()
GA = 2.0 * 0.7978845608028654 * 1.4426950408889634
GB = GA * 0.044715
a('s_mov_b32 s%d, %s' % (sO + 2, f2h(-GB)))
a('s_mov_b32 s%d, %s' % (sO + 3, f2h(-GB)))
pair_base(sA, L.H)
a('s_mul_i32 s%d, s%d, %d' % (sB, sG, 4 * 56 * 1024))
a('s_add_u32 s%d, s%d, s%d' % (sA, sA, sB))
a('s_lshl_b32 s%d, s%d, 2' % (sB, sJ))
a('s_add_u32 s%d, s%d, s%d' % (sB, sB, sW))
a('s_lshl_b32 s%d, s%d, 11' % (sB, sB))
a('s_add_u32 s%d, s%d, s%d' % (sA, sA, sB))
GT = 66
a('v_mov_b32 v%d, %s' % (GT + 30, f2h(-GA)))
a('v_mov_b32 v%d, %s' % (GT + 31, f2h(-GA)))
a('s_waitcnt lgkmcnt(0)')
for tile in range(4):
    m = CMR + 2 * tile
    for pp in range(2):
        hf = GT + 16 + 4 * ((tile * 2 + pp) & 1)
        zs = [(CACC + (tile * 4 + 2 * pp + k) * 4 + 2 * p, 2 * pp + k, p, GT + 2 * (k * 2 + p), hf + 2 * k + p)
              for k in range(2) for p in range(2)]
        for z, t, p, t0, h in zs:
            a('v_pk_fma_f32 %s, %s, %s, %s op_sel_hi:[1,0,1] neg_lo:[0,1,0] neg_hi:[0,1,0]' %
              (vr(z, 2), vr(CCS + 4 * t + 2 * p, 2), vr(m, 2), vr(z, 2)))
        for z, t, p, t0, h in zs:
            a('v_pk_fma_f32 %s, %s, %s, %s op_sel:[0,1,0] op_sel_hi:[1,1,1]' %
              (vr(z, 2), vr(z, 2), vr(m, 2), vr(CB1 + 4 * t + 2 * p, 2)))
        for z, t, p, t0, h in zs:
            a('v_pk_mul_f32 %s, %s, %s' % (vr(t0, 2), vr(z, 2), vr(z, 2)))
        for z, t, p, t0, h in zs:
            a('v_pk_fma_f32 %s, %s, %s, %s' % (vr(t0, 2), vr(t0, 2), sp(sO + 2), vr(GT + 30, 2)))
        for z, t, p, t0, h in zs:
            a('v_pk_mul_f32 %s, %s, %s' % (vr(t0, 2), vr(t0, 2), vr(z, 2)))
        for z, t, p, t0, h in zs:
            a('v_exp_f32 v%d, v%d' % (t0, t0))
            a('v_exp_f32 v%d, v%d' % (t0 + 1, t0 + 1))
        for z, t, p, t0, h in zs:
            a('v_pk_add_f32 %s, %s, 1.0 op_sel_hi:[1,0]' % (vr(t0, 2), vr(t0, 2)))
        for z, t, p, t0, h in zs:
            a('v_rcp_f32 v%d, v%d' % (t0, t0))
            a('v_rcp_f32 v%d, v%d' % (t0 + 1, t0 + 1))
        for z, t, p, t0, h in zs:
            a('v_pk_mul_f32 %s, %s, %s' % (vr(t0, 2), vr(t0, 2), vr(z, 2)))
        for z, t, p, t0, h in zs:
            a('v_cvt_pk_bf16_f32 v%d, v%d, v%d' % (h, t0, t0 + 1))
        store('buffer_store_dwordx4 %s, v1, %s, s%d offen offset:%d' % (vr(hf), srd(S_WS), sA, 1024 * pp), sFAST)
    if tile < 3:
        a('s_add_u32 s%d, s%d, %d' % (sA, sA, 56 * 1024))
pair_base(sA, L.FC)
a('s_lshl_b32 s%d, s%d, 5' % (sB, sG))
a('s_lshl_b32 s%d, s%d, 2' % (sCc, sJ))
a('s_add_u32 s%d, s%d, s%d' % (sB, sB, sCc))
a('s_add_u32 s%d, s%d, s%d' % (sB, sB, sW))
a('s_lshl_b32 s%d, s%d, 2' % (sB, sB))
a('s_add_u32 s%d, s%d, s%d' % (sA, sA, sB))
a('v_mov_b32 v2, s%d' % sA)
set_flags(2, 1, sFAST)
stamp()

DH, DACC, DRD, DTMP = 2, 114, 178, 210
DRING, DLOOK = 16, 10
a('s_cmp_eq_u32 s%d, 0' % sPAIR)
a('s_cbranch_scc0 L_d_start')
wd_loads(*WD_CH[2])
a.label('L_d_start')
pair_base(sA, L.FC)
a('s_lshl_b32 s%d, s%d, 7' % (sB, sG))
a('s_add_u32 s%d, s%d, s%d' % (sA, sA, sB))
a('v_lshl_add_u32 v240, v0, 2, s%d' % sA)
a('s_mul_i32 s%d, s%d, 7' % (sB, sW))
a('s_lshl_b32 s%d, 0x7f, s%d' % (sMK, sB))
a('s_mov_b32 s%d, 0' % (sMK + 1))
red_addrs()
publish_setup(L.XA[1], L.SA[1], L.FX[1], False)
a('s_and_b32 s%d, s%d, 1' % (sA, sG))
a('s_lshr_b32 s%d, s%d, 1' % (sB, sW))
a('s_and_b32 s%d, s%d, s%d' % (sA, sA, sB))
a('s_xor_b32 s%d, s%d, 1' % (sA, sA))
a('s_and_b32 s%d, s%d, s%d' % (sPC, sFAST, sA))
pair_base(sA, L.H)
a('s_mul_i32 s%d, s%d, %d' % (sB, sG, 4 * 56 * 1024))
a('s_add_u32 s%d, s%d, s%d' % (sA, sA, sB))
a('s_mul_i32 s%d, s%d, %d' % (sB, sW, 14 * 1024))
a('s_add_u32 s%d, s%d, s%d' % (sO, sA, sB))
quarter_offsets(4, 56 * 1024)
poll(240)
stamp()


def d_hload(q):
    tile, kk = divmod(q, 14)
    return ('buffer_load_dwordx4 %s, v1, %s, s%d offen offset:%d sc1' %
            (vr(DH + (q % DRING) * 4), srd(S_WS), sO + 4 * tile + (kk >> 2), 1024 * (kk & 3)))


hm = {}
for q in range(DLOOK):
    a(d_hload(q))
    hm[q] = a.vm_mark()
a('s_barrier')


def d_tile(tile):
    items = []
    for kk in range(14):
        q = tile * 14 + kk
        for t in range(4):
            r = DACC + (tile * 4 + t) * 4
            pre = [(lambda qq=q: a.wait_vm(hm[qq]))] if t == 0 else []
            post = None
            if t == 0 and q + DLOOK < 56:
                def post(qq=q + DLOOK):
                    a(d_hload(qq))
                    hm[qq] = a.vm_mark()
            items.append((pre, '%s %s, %s, %s, %s' % (MFMA, vr(r), ar((kk * 4 + t) * 4), vr(DH + (q % DRING) * 4),
                                                      '0' if kk == 0 else vr(r)), post))
    return items


def d_out_store(st):
    if st == 0:
        owner_index()
        a('s_mul_i32 s%d, s%d, 14336' % (sPX, sB))
        a('s_lshl_b32 s%d, s%d, 6' % (sA, sA))
        a('s_add_u32 s%d, s%d, s%d' % (sPX, sPX, sA))
        a('v_and_b32 v%d, 15, v0' % V_TOK)
        a('v_lshrrev_b32 v%d, 4, v0' % V_G)
        a('v_mul_u32_u24 v240, 896, v%d' % V_TOK)
        a('v_lshl_add_u32 v240, v%d, 3, v240' % V_G)
    else:
        a('s_add_u32 s%d, s%d, %d' % (sPX, sPX, 2 * 14336))
    a('buffer_store_dwordx2 %s, v240, %s, s%d offen' % (vr(DRD, 2), srd(S_OUT), sPX))
    a('buffer_store_dwordx2 %s, v240, %s, s%d offen offset:32' % (vr(DRD + 2, 2), srd(S_OUT), sPX))


def d_fin(st):
    owner_finish(st, True, DRD, DTMP)
    fin, done = newlab('L_dfin'), newlab('L_ddone')
    a('s_cmp_eq_u32 s%d, 0' % sPAIR)
    a('s_cbranch_scc0 %s' % fin)
    n0 = a.vm_issued
    publish_x(st, DRD, DTMP)
    a('s_branch %s' % done)
    a.label(fin)
    n1 = a.vm_issued
    d_out_store(st)
    a.vm_issued = n1
    a.label(done)
    a('s_nop 1')


ksplit_phase(DACC, DRD, DTMP, True, d_tile, d_fin)
stamp()
a('s_cmp_eq_u32 s%d, 0' % sPAIR)
a('s_cbranch_scc0 L_next_pair')
publish_flags()
a.label('L_next_pair')
stamp()
a('s_add_u32 s%d, s%d, 1' % (sPAIR, sPAIR))
a('s_cmp_lt_u32 s%d, 2' % sPAIR)
a('s_cbranch_scc1 L_pair')

a('s_cmp_eq_u32 s2, 0')
a('s_cbranch_scc0 L_noepoch')
a('s_cmp_eq_u32 s%d, 0' % sW)
a('s_cbranch_scc0 L_noepoch')
a('buffer_load_dword v2, off, %s, 0 sc1' % srd(S_WS))
a('s_waitcnt vmcnt(0)')
a('v_add_u32 v2, 1, v2')
a('s_mov_b64 exec, 1')
a('buffer_store_dword v2, off, %s, 0 sc1' % srd(S_WS))
a('s_mov_b64 exec, -1')
a.label('L_noepoch')
if PAD:
    a.label('L_padspin')
    a('s_memrealtime s[34:35]')
    a('s_waitcnt lgkmcnt(0)')
    a('s_sub_u32 s34, s34, s0')
    a('s_cmp_lt_u32 s34, %d' % PAD[0])
    a('s_cbranch_scc1 L_padspin')
if DBG:
    a('s_memtime s[32:33]')
    a('s_memrealtime s[34:35]')
    a('s_waitcnt lgkmcnt(0)')
    a('s_sub_u32 s32, s32, s26')
    a('s_sub_u32 s34, s34, s0')
    build_srd(S_TMP, P_DBG, 256)
    a('v_mov_b32 v2, s32')
    a('v_mov_b32 v3, s34')
    a('v_mov_b32 v4, s%d' % sFAST)
    a('v_mov_b32 v5, s%d' % sXCC)
    a('s_lshr_b32 s%d, s2, 6' % sA)
    a('s_lshl_b32 s%d, s%d, 4' % (sA, sA))
    a('s_and_b32 s%d, s2, 63' % sB)
    a('s_or_b32 s%d, s%d, s%d' % (sB, sB, sW))
    a('s_cmp_eq_u32 s%d, 0' % sB)
    a('s_cselect_b32 s%d, s%d, 0x%x' % (sA, sA, INV))
    a('v_mov_b32 v6, s%d' % sA)
    a('s_mov_b64 exec, 1')
    a('buffer_store_dwordx4 v[2:5], v6, %s, 0 offen' % srd(S_TMP))
    a('s_mov_b64 exec, -1')
if DIAG:
    stamp()
    a('s_mov_b32 s%d, 63' % sSTI)
    a('s_lshl_b64 exec, 1, s%d' % sSTI)
    a('v_mov_b32 v%d, s%d' % (V_STAMP, sERR))
    a('s_mov_b32 s%d, 62' % sSTI)
    a('s_lshl_b64 exec, 1, s%d' % sSTI)
    a('v_mov_b32 v%d, s%d' % (V_STAMP, sFAST))
    a('s_mov_b64 exec, -1')
    a('s_lshl_b32 s%d, s2, 2' % sA)
    a('s_add_u32 s%d, s%d, s%d' % (sA, sA, sW))
    a('s_lshl_b32 s%d, s%d, 8' % (sA, sA))
    a('v_lshlrev_b32 v2, 2, v0')
    a('s_add_u32 s%d, s%d, %d' % (sA, sA, L.WS_USED))
    a('s_mov_b32 s%d, 0x%x' % (S_WS + 2, L.WS_USED + 256 * 1024))
    a('buffer_store_dword v%d, v2, %s, s%d offen' % (V_STAMP, srd(S_WS), sA))
a.label('L_end')
a('s_endpgm')

a.finalize()
body = a.text()

import os
hdr = open(os.path.join(os.path.dirname(os.path.abspath(__file__)), 'header.txt')).read()
out = hdr + '; @launch grid=(256,1,1) block=(256,1,1) lds=%d\n' % L.LDS_BYTES
out += '.amdgcn_target "amdgcn-amd-amdhsa--gfx950"\n.text\n.globl %s_kernel\n.p2align 8\n.type %s_kernel,@function\n%s_kernel:\n' % (NAME, NAME, NAME)
out += body
out += '''.section .rodata,"a"
.p2align 6
.amdhsa_kernel %s_kernel
  .amdhsa_next_free_vgpr 512
  .amdhsa_next_free_sgpr 102
  .amdhsa_accum_offset 256
  .amdhsa_group_segment_fixed_size 0
  .amdhsa_kernarg_size 88
  .amdhsa_user_sgpr_count 2
  .amdhsa_user_sgpr_kernarg_segment_ptr 1
  .amdhsa_system_sgpr_workgroup_id_x 1
.end_amdhsa_kernel
''' % NAME
sys.stdout.write(out)
```

```python
import struct
import sys
from asmlib import Asm
import layout as L

NAME = 'interleave_layers__sliding_local_dilated__mixer_channel_mlp__prompt'
DIAG = '--diag' in sys.argv
NOFAST = '--fast' not in sys.argv
PAD = [int(x[6:]) for x in sys.argv if x.startswith('--pad=')]
DBG = '--dbg' in sys.argv or bool(PAD)
SPIN_LIMIT = 200000
INV = 0x80000000

a = Asm()

sXCC = 3
S_WS, S_TMP, S_B1, S_OUT = 4, 8, 12, 16
P_X, P_WQKV, P_WO, P_BX, P_W1, P_B1, P_W2, P_B2, P_OUT, P_DBG, P_WSP = 20, 22, 24, 26, 28, 30, 32, 34, 36, 38, 40
sS, sC, sG, sJ, sW, sT, sPAIR, sSPIN = 42, 43, 44, 45, 46, 47, 48, 49
sM1 = 50
sM2 = 58
sM0 = 66
sO = 74
sA, sB, sCc, sD = 90, 91, 92, 93
sMK = 94
sTS = 96
sGT = 98
sERR = 99
sSTI = 100
sFAST = 101


def srd(n):
    return 's[%d:%d]' % (n, n + 3)


def vr(n, k=4):
    return 'v[%d:%d]' % (n, n + k - 1)


def ar(n, k=4):
    return 'a[%d:%d]' % (n, n + k - 1)


def sp(n):
    return 's[%d:%d]' % (n, n + 1)


def f2h(x):
    return '0x%08x' % struct.unpack('<I', struct.pack('<f', x))[0]


V_T, V_STAMP = 254, 255
V_TOK, V_G = 250, 251
MFMA = 'v_mfma_f32_16x16x32_bf16'


def stamp():
    if not DIAG:
        return
    a('s_memtime %s' % sp(sTS))
    a('s_waitcnt lgkmcnt(0)')
    a('s_lshl_b64 exec, 1, s%d' % sSTI)
    a('v_mov_b32 v%d, s%d' % (V_STAMP, sTS))
    a('s_mov_b64 exec, -1')
    a('s_add_u32 s%d, s%d, 1' % (sSTI, sSTI))


lab_no = [0]


def newlab(p):
    lab_no[0] += 1
    return '%s_%d' % (p, lab_no[0])


def build_srd(dst, ptr, nbytes):
    a('s_mov_b32 s%d, s%d' % (dst, ptr))
    a('s_and_b32 s%d, s%d, 0xffff' % (dst + 1, ptr + 1))
    a('s_mov_b32 s%d, 0x%x' % (dst + 2, nbytes))
    a('s_mov_b32 s%d, 0x20000' % (dst + 3))


def poll(voff):
    lab, done = newlab('L_poll'), newlab('L_polldone')
    a('s_mov_b64 exec, %s' % sp(sMK))
    a('s_mov_b32 s%d, 0' % sSPIN)
    a.label(lab)
    a('buffer_load_dword v253, v%d, %s, 0 offen sc1' % (voff, srd(S_WS)))
    a('s_waitcnt vmcnt(0)')
    a('v_cmp_ne_u32 vcc, s%d, v253' % sT)
    a('s_nop 4')
    a('s_cbranch_vccz %s' % done)
    a('s_add_u32 s%d, s%d, 1' % (sSPIN, sSPIN))
    a('s_cmp_lt_u32 s%d, %d' % (sSPIN, SPIN_LIMIT))
    a('s_cbranch_scc1 %s' % lab)
    a('s_add_u32 s%d, s%d, 1' % (sERR, sERR))
    a.label(done)
    a('s_mov_b64 exec, -1')


sMK2 = 30


def early_issue(dst, voff):
    a('s_mov_b64 exec, %s' % sp(sMK2))
    a('buffer_load_dword v%d, v%d, %s, 0 offen sc1' % (dst, voff, srd(S_WS)))
    a('s_mov_b64 exec, -1')
    return a.vm_mark()


def early_check(dst, voff, mark):
    ok = newlab('L_early')
    a.wait_vm(mark)
    a('s_mov_b64 exec, %s' % sp(sMK2))
    a('v_cmp_ne_u32 vcc, s%d, v%d' % (sT, dst))
    a('s_mov_b64 exec, -1')
    a('s_nop 2')
    a('s_cbranch_vccz %s' % ok)
    a('s_mov_b64 %s, %s' % (sp(sMK), sp(sMK2)))
    n = a.vm_issued
    poll(voff)
    a.vm_issued = n
    a.label(ok)


def store(fmt, cond=None):
    if cond is None or NOFAST:
        a(fmt + ' sc1')
        return
    slow, done = newlab('L_slow'), newlab('L_st')
    a('s_cmp_eq_u32 s%d, 0' % cond)
    a('s_cbranch_scc1 %s' % slow)
    a(fmt)
    a('s_branch %s' % done)
    a.label(slow)
    a(fmt + ' sc1')
    a.vm_issued -= 1
    a.label(done)


def set_flags(voff, nlanes, cond=None, val=V_T, between=()):
    mark = a.vm_mark()
    for x in between:
        a(x)
    a.wait_vm(mark)
    a('s_mov_b64 exec, %d' % ((1 << nlanes) - 1))
    store('buffer_store_dword v%d, v%d, %s, 0 offen' % (val, voff, srd(S_WS)), cond)
    a('s_mov_b64 exec, -1')


def xg_reduce(x, t, op='v_add_f32'):
    return ['v_mov_b32 v%d, v%d' % (t, x),
            'v_permlane32_swap_b32 v%d, v%d' % (x, t),
            '%s v%d, v%d, v%d' % (op, x, x, t),
            'v_mov_b32 v%d, v%d' % (t, x),
            'v_permlane16_swap_b32 v%d, v%d' % (x, t),
            '%s v%d, v%d, v%d' % (op, x, x, t)]


EPS = 1e-5


def stats_finish(s1, s2, t, double_ln):
    o = ['v_mul_f32 v%d, %s, v%d' % (s1, f2h(1.0 / 448), s1),
         'v_mul_f32 v%d, %s, v%d' % (s2, f2h(1.0 / 448), s2),
         'v_fma_f32 v%d, -v%d, v%d, v%d' % (s2, s1, s1, s2),
         'v_max_f32 v%d, 0, v%d' % (s2, s2),
         'v_add_f32 v%d, %s, v%d' % (t, f2h(EPS), s2),
         'v_rsq_f32 v%d, v%d' % (t, t)]
    if not double_ln:
        o += ['v_mov_b32 v%d, v%d' % (s2, t)]
    else:
        o += ['v_mul_f32 v%d, v%d, v%d' % (s2, s2, t),
              'v_fmaak_f32 v%d, v%d, v%d, %s' % (s2, s2, t, f2h(EPS)),
              'v_rsq_f32 v%d, v%d' % (s2, s2),
              'v_mul_f32 v%d, v%d, v%d' % (s2, s2, t)]
    return o


def pair_base(dst, arr):
    a('s_mul_i32 s%d, s%d, %d' % (dst, sPAIR, arr[1] - arr[0]))
    a('s_add_u32 s%d, s%d, %d' % (dst, dst, arr[0]))


def quarter_offsets(n, stride):
    for t in range(n):
        if t:
            a('s_add_u32 s%d, s%d, %d' % (sO + 4 * t, sO + 4 * (t - 1), stride))
        for q in range(1, 4):
            a('s_add_u32 s%d, s%d, %d' % (sO + 4 * t + q, sO + 4 * t, 4096 * q))


a('s_cmp_ge_u32 s2, 256')
a('s_cbranch_scc1 L_end')
a('s_load_dwordx16 s[20:35], s[0:1], 0')
a('s_load_dwordx4 s[36:39], s[0:1], 64')
a('s_load_dwordx2 s[40:41], s[0:1], 80')
a('s_getreg_b32 s%d, hwreg(HW_REG_XCC_ID, 0, 4)' % sXCC)
a('s_and_b32 s%d, s2, 7' % sA)
a('s_lshr_b32 s%d, s2, 3' % sB)
a('s_lshr_b32 s%d, s%d, 4' % (sCc, sB))
a('s_lshl_b32 s%d, s%d, 1' % (sS, sA))
a('s_add_u32 s%d, s%d, s%d' % (sS, sS, sCc))
a('s_and_b32 s%d, s%d, 15' % (sC, sB))
a('s_lshr_b32 s%d, s%d, 3' % (sA, sC))
a('s_lshl_b32 s%d, s%d, 1' % (sG, sS))
a('s_add_u32 s%d, s%d, s%d' % (sG, sG, sA))
a('s_and_b32 s%d, s%d, 7' % (sJ, sC))
a('s_mov_b32 s%d, 0' % sERR)
a('v_lshrrev_b32 v2, 6, v0')
a('v_and_b32 v0, 63, v0')
a('v_readfirstlane_b32 s%d, v2' % sW)
a('v_lshlrev_b32 v1, 4, v0')
if DIAG:
    a('v_mov_b32 v%d, 0' % V_STAMP)
    a('s_mov_b32 s%d, 0' % sSTI)
stamp()
a('v_and_b32 v%d, 15, v0' % V_TOK)
a('v_lshrrev_b32 v%d, 4, v0' % V_G)
sSTG = 40
a('s_waitcnt lgkmcnt(0)')
if DBG:
    a('s_memtime s[26:27]')
    a('s_memrealtime s[0:1]')
    a('s_waitcnt lgkmcnt(0)')
build_srd(S_WS, P_WSP, L.WS_USED)
a('buffer_load_dword v%d, off, %s, 0 sc1' % (V_T, srd(S_WS)))
a('s_lshl_b32 s%d, s%d, 14' % (sSTG, sW))
a('s_add_u32 s%d, s%d, %d' % (sSTG, sSTG, L.L_R2))

build_srd(S_TMP, P_X, 2048 * 896)
a('v_mul_u32_u24 v2, 896, v%d' % V_TOK)
a('v_lshl_add_u32 v2, v%d, 3, v2' % V_G)
a('s_lshr_b32 s%d, s%d, 1' % (sA, sC))
a('s_lshl_b32 s%d, s%d, 3' % (sB, sS))
a('s_add_u32 s%d, s%d, s%d' % (sO + 0, sA, sB))
a('s_and_b32 s%d, s%d, 1' % (sA, sC))
a('s_mul_i32 s%d, s%d, 7' % (sA, sA))
a('s_add_u32 s%d, s%d, s%d' % (sO + 1, sA, sW))
a('s_cmp_lt_u32 s%d, 3' % sW)
a('s_cselect_b32 s%d, 0, 0x%x' % (sO + 2, INV))
a('s_mul_i32 s%d, s%d, 14336' % (sA, sO + 0))
a('s_lshl_b32 s%d, s%d, 6' % (sB, sO + 1))
a('s_add_u32 s%d, s%d, s%d' % (sA, sA, sB))
a('v_or_b32 v3, s%d, v2' % (sO + 2))
a('buffer_load_dwordx2 v[10:11], v2, %s, s%d offen' % (srd(S_TMP), sA))
a('buffer_load_dwordx2 v[12:13], v2, %s, s%d offen offset:32' % (srd(S_TMP), sA))
a('buffer_load_dwordx2 v[14:15], v3, %s, s%d offen offset:256' % (srd(S_TMP), sA))
a('buffer_load_dwordx2 v[16:17], v3, %s, s%d offen offset:288' % (srd(S_TMP), sA))

build_srd(S_TMP, P_WQKV, 448 * 2688)
qMAT, qU, qINV = sO + 3, sO + 4, sO + 5
a('s_lshl_b32 s%d, s%d, 4' % (sA, sW))
a('s_add_u32 s%d, s%d, s%d' % (sA, sA, sS))
a('s_cmp_lt_u32 s%d, 42' % sA)
a('s_cselect_b32 s%d, 0, 0x%x' % (qINV, INV))
a('s_min_u32 s%d, s%d, 41' % (sA, sA))
a('s_mul_i32 s%d, s%d, 4682' % (qMAT, sA))
a('s_lshr_b32 s%d, s%d, 16' % (qMAT, qMAT))
a('s_mul_i32 s%d, s%d, 14' % (sB, qMAT))
a('s_sub_u32 s%d, s%d, s%d' % (qU, sA, sB))
a('s_mul_i32 s%d, s%d, %d' % (sA, qU, 32 * 2688))
a('s_mul_i32 s%d, s%d, 896' % (sB, qMAT))
a('s_add_u32 s%d, s%d, s%d' % (sA, sA, sB))
a('s_mul_i32 s%d, s%d, 56' % (sB, sC))
a('s_add_u32 s%d, s%d, s%d' % (sA, sA, sB))
a('v_lshrrev_b32 v4, 2, v0')
a('v_mul_u32_u24 v4, 2688, v4')
a('v_and_b32 v5, 3, v0')
a('v_lshl_add_u32 v4, v5, 4, v4')
a('v_or_b32 v4, s%d, v4' % qINV)
a('s_mov_b32 m0, s%d' % sSTG)
a('s_add_u32 s%d, s%d, %d' % (sB, sA, 16 * 2688))
a('buffer_load_dwordx4 v4, %s, s%d offen lds' % (srd(S_TMP), sA))
a('s_add_u32 m0, s%d, 1024' % sSTG)
a('s_nop 0')
a('buffer_load_dwordx4 v4, %s, s%d offen lds' % (srd(S_TMP), sB))

bINV, bDST, bSTR = 20, 21, 22
a('s_lshl_b32 s%d, s%d, 5' % (sA, sW))
a('s_add_u32 s%d, s%d, s%d' % (sA, sA, sG))
a('s_cmp_lt_u32 s%d, 72' % sA)
a('s_cselect_b32 s%d, 0, 0x%x' % (bINV, INV))
a('s_cmp_eq_u32 s%d, 7' % sJ)
a('s_cselect_b32 s%d, 0x%x, s%d' % (bINV, INV, bINV))
a('s_min_u32 s%d, s%d, 71' % (sA, sA))
a('s_min_u32 s%d, s%d, 6' % (sD, sJ))
a('s_cmp_lt_u32 s%d, 16' % sA)
a('s_cselect_b32 s%d, s%d, s%d' % (S_TMP, P_WO, P_W2))
a('s_cselect_b32 s%d, s%d, s%d' % (S_TMP + 1, P_WO + 1, P_W2 + 1))
a('s_mov_b32 s%d, 0x%x' % (S_TMP + 2, 1792 * 896))
a('s_cselect_b32 s%d, 0x%x, s%d' % (S_TMP + 2, 448 * 896, S_TMP + 2))
a('s_cselect_b32 s%d, 28, 32' % sB)
a('s_cselect_b32 s%d, 0, 16' % sCc)
a('s_mov_b32 s%d, %d' % (bSTR, 56 * 1024))
a('s_cselect_b32 s%d, %d, s%d' % (bSTR, 16 * 1024, bSTR))
a('s_mov_b32 s%d, %d' % (bDST, L.WD))
a('s_cselect_b32 s%d, %d, s%d' % (bDST, L.WB, bDST))
a('s_cselect_b32 s%d, 0x%x, 0' % (sO + 9, INV))
a('s_and_b32 s%d, s%d, 0xffff' % (S_TMP + 1, S_TMP + 1))
a('s_mov_b32 s%d, 0x20000' % (S_TMP + 3))
a('s_sub_u32 s%d, s%d, s%d' % (sA, sA, sCc))
a('s_lshl_b32 s%d, s%d, 10' % (sCc, sA))
a('s_add_u32 s%d, s%d, s%d' % (bDST, bDST, sCc))
a('s_lshl_b32 s%d, s%d, 2' % (sCc, sD))
a('s_mul_i32 s%d, s%d, s%d' % (sCc, sCc, bSTR))
a('s_add_u32 s%d, s%d, s%d' % (bDST, bDST, sCc))
a('s_mul_i32 s%d, s%d, s%d' % (sA, sA, sB))
a('s_mul_i32 s%d, s%d, 896' % (sA, sA))
a('s_lshl_b32 s%d, s%d, 7' % (sB, sD))
a('s_add_u32 s%d, s%d, s%d' % (sA, sA, sB))
a('v_lshrrev_b32 v6, 3, v0')
a('v_mul_u32_u24 v6, 896, v6')
a('v_and_b32 v5, 7, v0')
a('v_lshl_add_u32 v6, v5, 4, v6')
a('v_or_b32 v6, s%d, v6' % bINV)
a('v_cmp_lt_u32 vcc, 31, v0')
a('v_mov_b32 v7, s%d' % (sO + 9))
a('v_cndmask_b32 v7, 0, v7, vcc')
a('v_or_b32 v7, v7, v6')
for q in range(4):
    a('s_add_u32 m0, s%d, %d' % (sSTG, 2048 + 1024 * q))
    if q:
        a('s_add_u32 s%d, s%d, %d' % (sA, sA, 8 * 896))
    else:
        a('s_nop 0')
    a('buffer_load_dwordx4 v%d, %s, s%d offen lds' % (7 if q == 3 else 6, srd(S_TMP), sA))

build_srd(S_TMP, P_W1, 448 * 3584)
cINV, cNT, cI12 = 23, 24, 25
a('s_cmp_lt_u32 s%d, 16' % sG)
a('s_cselect_b32 s%d, 0, 0x%x' % (cINV, INV))
a('s_cmp_eq_u32 s%d, 7' % sJ)
a('s_cselect_b32 s%d, 0x%x, s%d' % (cINV, INV, cINV))
a('s_min_u32 s%d, s%d, 6' % (sD, sJ))
a('s_lshl_b32 s%d, s%d, 4' % (cNT, sD))
a('s_and_b32 s%d, s%d, 15' % (sA, sG))
a('s_add_u32 s%d, s%d, s%d' % (cNT, cNT, sA))
a('s_cmp_lt_u32 s%d, 2' % sW)
a('s_cselect_b32 s%d, s%d, 0x%x' % (cI12, cINV, INV))
a('v_lshrrev_b32 v8, 1, v0')
a('v_mul_u32_u24 v8, 3584, v8')
a('v_and_b32 v5, 1, v0')
a('v_lshl_add_u32 v8, v5, 4, v8')
a('v_or_b32 v9, s%d, v8' % cI12)
a('v_or_b32 v8, s%d, v8' % cINV)
a('s_lshl_b32 s%d, s%d, 5' % (sB, cNT))
for i in range(4):
    a('s_add_u32 s%d, s%d, %d' % (sA, sW, 4 * i))
    a('s_min_u32 s%d, s%d, 13' % (sA, sA))
    a('s_mul_i32 s%d, s%d, %d' % (sA, sA, 32 * 3584))
    a('s_add_u32 s%d, s%d, s%d' % (sA, sA, sB))
    a('s_add_u32 m0, s%d, %d' % (sSTG, 6144 + 1024 * i))
    a('s_nop 0')
    a('buffer_load_dwordx4 v%d, %s, s%d offen lds' % (9 if i == 3 else 8, srd(S_TMP), sA))
build_srd(S_B1, P_B1, 1792 * 2)
build_srd(S_OUT, P_OUT, 2048 * 896)
a('v_bfe_u32 v18, v0, 2, 2')
a('v_lshl_add_u32 v18, v%d, 2, v18' % V_G)
a('v_and_b32 v19, 3, v0')
a('v_lshlrev_b32 v19, 3, v19')
a('s_waitcnt vmcnt(8)')
stamp()

a('s_mov_b32 s%d, 0x9E3779B1' % sA)
a('v_mul_lo_u32 v%d, v%d, s%d' % (V_T, V_T, sA))
a('v_add_u32 v%d, 0x7F4A7C15, v%d' % (V_T, V_T))
a('v_and_b32 v%d, -16, v%d' % (V_T, V_T))
a('v_lshl_add_u32 v20, v18, 6, v19')
a('v_add_u32 v20, s%d, v20' % sSTG)
for hf in range(2):
    a('ds_read_b64_tr_b16 %s, v20 offset:%d' % (vr(24 + 4 * hf, 2), 32 * hf))
    a('ds_read_b64_tr_b16 %s, v20 offset:%d' % (vr(26 + 4 * hf, 2), 32 * hf + 1024))
a('v_readfirstlane_b32 s%d, v%d' % (sT, V_T))
a('s_mul_i32 s%d, s%d, 14' % (sA, sO + 0))
a('s_add_u32 s%d, s%d, s%d' % (sA, sA, sO + 1))
a('s_lshl_b32 s%d, s%d, 10' % (sB, sA))
a('s_add_u32 s%d, s%d, %d' % (sB, sB, L.XA[0]))
a('v_or_b32 v3, s%d, v1' % (sO + 2))
a('buffer_store_dwordx4 v[10:13], v1, %s, s%d offen sc1' % (srd(S_WS), sB))
a('s_add_u32 s%d, s%d, 4096' % (sB, sB))
a('buffer_store_dwordx4 v[14:17], v3, %s, s%d offen sc1' % (srd(S_WS), sB))
a('v_cmp_gt_u32 vcc, 12, v%d' % V_TOK)
a('s_mul_i32 s%d, s%d, 84' % (sB, sC))
a('s_mul_i32 s%d, s%d, 28' % (sCc, qMAT))
a('s_add_u32 s%d, s%d, s%d' % (sB, sB, sCc))
a('s_add_u32 s%d, s%d, s%d' % (sB, sB, qU))
a('s_lshl_b32 s%d, s%d, 10' % (sB, sB))
a('s_add_u32 s%d, s%d, %d' % (sB, sB, L.WA))
a('v_or_b32 v4, s%d, v1' % qINV)
a('s_waitcnt lgkmcnt(0)')
for p in range(4):
    a('v_cndmask_b32 v%d, 0, v%d, vcc' % (28 + p, 28 + p))
a('buffer_store_dwordx4 v[24:27], v4, %s, s%d offen sc1' % (srd(S_WS), sB))
a('s_add_u32 s%d, s%d, %d' % (sB, sB, 14 * 1024))
a('buffer_store_dwordx4 v[28:31], v4, %s, s%d offen sc1' % (srd(S_WS), sB))
a('v_mov_b32 v2, 0x3f803f80')
for k in range(2):
    x, s1, s2 = 10 + 4 * k, 110 + 2 * k, 111 + 2 * k
    a('v_mov_b32 v%d, 0' % s1)
    a('v_mov_b32 v%d, 0' % s2)
    for p in range(4):
        a('v_dot2_f32_bf16 v%d, v%d, v2, v%d' % (s1, x + p, s1))
        a('v_dot2_f32_bf16 v%d, v%d, v%d, v%d' % (s2, x + p, x + p, s2))
    for t in xg_reduce(s1, 114) + xg_reduce(s2, 115):
        a(t)
a('s_lshl_b32 s%d, s%d, 7' % (sB, sA))
a('s_add_u32 s%d, s%d, %d' % (sB, sB, L.SA[0]))
a('v_lshlrev_b32 v2, 3, v%d' % V_TOK)
a('v_or_b32 v3, s%d, v2' % (sO + 2))
a('s_mov_b64 exec, 0xffff')
a('buffer_store_dwordx2 v[110:111], v2, %s, s%d offen sc1' % (srd(S_WS), sB))
a('buffer_store_dwordx2 v[112:113], v3, %s, s%d offen offset:512 sc1' % (srd(S_WS), sB))
a('s_mov_b64 exec, -1')
a('s_lshl_b32 s%d, s%d, 4' % (sA, sO + 0))
a('s_add_u32 s%d, s%d, s%d' % (sA, sA, sO + 1))
a('s_lshl_b32 s%d, s%d, 2' % (sA, sA))
a('s_add_u32 s%d, s%d, %d' % (sA, sA, L.FX[0]))
a('v_lshlrev_b32 v2, 4, v0')
a('v_add_u32 v2, s%d, v2' % sA)
a('v_cmp_eq_u32 vcc, 1, v0')
a('v_mov_b32 v3, s%d' % (sO + 2))
a('v_cndmask_b32 v3, 0, v3, vcc')
a('v_or_b32 v2, v2, v3')
a('s_lshl_b32 s%d, s%d, 6' % (sA, sC))
a('s_lshl_b32 s%d, s%d, 2' % (sB, sS))
a('s_add_u32 s%d, s%d, s%d' % (sA, sA, sB))
a('s_add_u32 s%d, s%d, s%d' % (sA, sA, sW))
a('s_lshl_b32 s%d, s%d, 2' % (sA, sA))
a('s_add_u32 s%d, s%d, %d' % (sA, sA, L.FQ))
a('v_mov_b32 v3, s%d' % sA)
a('v_cmp_eq_u32 vcc, 2, v0')
a('v_cndmask_b32 v2, v2, v3, vcc')
a('s_lshl_b32 s%d, s%d, 4' % (sA, sS))
a('s_add_u32 s%d, s%d, s%d' % (sA, sA, sC))
a('s_lshl_b32 s%d, s%d, 2' % (sA, sA))
a('s_add_u32 s%d, s%d, %d' % (sA, sA, L.FXC))
a('s_cmp_eq_u32 s%d, 0' % sW)
a('s_cselect_b32 s%d, s%d, 0x%x' % (sA, sA, INV))
a('v_mov_b32 v3, s%d' % sA)
a('v_cmp_eq_u32 vcc, 3, v0')
a('v_cndmask_b32 v2, v2, v3, vcc')
a('v_or_b32 v3, s%d, v%d' % (sXCC, V_T))
a('v_cndmask_b32 v3, v%d, v3, vcc' % V_T)
set_flags(2, 4, None, 3)
stamp()

a('v_and_b32 v2, 1, v%d' % V_TOK)
a('v_lshlrev_b32 v3, 2, v%d' % V_G)
a('v_add_u32 v6, 2, v%d' % V_TOK)
for i in range(4):
    a('v_add_u32 v4, %d, v3' % i)
    a('v_cmp_eq_u32 vcc, %d, v2' % (i & 1))
    a('s_mov_b64 %s, vcc' % sp(sMK))
    a('v_cmp_ge_u32 vcc, v4, v6')
    a('s_and_b64 %s, vcc, %s' % (sp(sM1 + 2 * i), sp(sMK)))
    a('v_cmp_le_u32 vcc, v4, v%d' % V_TOK)
    a('s_and_b64 %s, vcc, %s' % (sp(sM2 + 2 * i), sp(sMK)))
a('s_lshl_b32 s%d, s%d, 3' % (sA, sS))
a('s_lshl_b32 s%d, s%d, 1' % (sB, sW))
a('s_add_u32 s%d, s%d, s%d' % (sGT, sA, sB))
a('s_cmp_eq_u32 s%d, 0' % sGT)
for i in range(4):
    a('s_cselect_b64 %s, 0, %s' % (sp(sM0 + 2 * i), sp(sM1 + 2 * i)))
a('s_mov_b32 s%d, 0' % sPAIR)

def a_flag_addr(dst):
    pair_base(sA, L.FX)
    a('s_lshl_b32 s%d, s%d, 6' % (sB, sGT))
    a('s_add_u32 s%d, s%d, s%d' % (sA, sA, sB))
    a('s_sub_u32 s%d, s%d, 64' % (sA, sA))
    a('v_lshl_add_u32 v%d, v0, 2, s%d' % (dst, sA))
    a('s_mov_b32 s%d, 0x3fff3fff' % sMK)
    a('s_mov_b32 s%d, 0x3fff' % (sMK + 1))
    a('s_cmp_eq_u32 s%d, 0' % sGT)
    a('s_cselect_b32 s%d, 0x3fff0000, s%d' % (sMK, sMK))


a('s_lshl_b32 s%d, s%d, 8' % (sA, sC))
a('s_add_u32 s%d, s%d, %d' % (sA, sA, L.FQ))
a('v_lshl_add_u32 v2, v0, 2, s%d' % sA)
a_flag_addr(3)
a('s_lshl_b32 s%d, s%d, 6' % (sA, sS))
a('s_add_u32 s%d, s%d, %d' % (sA, sA, L.FXC - 48 * 4))
a('v_lshl_add_u32 v4, v0, 2, s%d' % sA)
a('v_cmp_lt_u32 vcc, 47, v0')
a('v_cndmask_b32 v3, v3, v4, vcc')
a('v_mov_b32 v5, -1')
a('v_mov_b32 v6, -16')
a('v_cndmask_b32 v5, v5, v6, vcc')
a('s_or_b32 s%d, s%d, 0xffff0000' % (sMK + 1, sMK + 1))
a('s_mov_b32 s%d, 0' % sSPIN)
a.label('L_poll0')
a('buffer_load_dword v7, v2, %s, 0 offen sc1' % srd(S_WS))
a('s_mov_b64 exec, %s' % sp(sMK))
a('buffer_load_dword v8, v3, %s, 0 offen sc1' % srd(S_WS))
a('s_waitcnt vmcnt(0)')
a('v_and_b32 v9, v5, v8')
a('v_cmp_ne_u32 vcc, s%d, v9' % sT)
a('s_mov_b64 exec, -1')
a('s_mov_b64 %s, vcc' % sp(sTS))
a('v_cmp_ne_u32 vcc, s%d, v7' % sT)
a('s_or_b64 vcc, vcc, %s' % sp(sTS))
a('s_cbranch_vccz L_poll0_done')
a('s_add_u32 s%d, s%d, 1' % (sSPIN, sSPIN))
a('s_cmp_lt_u32 s%d, %d' % (sSPIN, SPIN_LIMIT))
a('s_cbranch_scc1 L_poll0')
a('s_add_u32 s%d, s%d, 1' % (sERR, sERR))
a.label('L_poll0_done')
a('v_and_b32 v9, 15, v8')
a('v_cmp_ne_u32 vcc, s%d, v9' % sXCC)
a('s_and_b32 s%d, vcc_hi, 0xffff0000' % sA)
a('s_cmp_eq_u32 s%d, 0' % sA)
a('s_cselect_b32 s%d, 1, 0' % sFAST)
stamp()
a('s_mul_i32 s%d, s%d, %d' % (sA, sC, 84 * 1024))
a('s_mul_i32 s%d, s%d, %d' % (sB, sW, 21 * 1024))
a('s_add_u32 s%d, s%d, s%d' % (sA, sA, sB))
a('s_add_u32 s%d, s%d, %d' % (sA, sA, L.WA))
a('s_add_u32 s%d, s%d, %d' % (sB, sB, L.L_WA))
for q in range(6):
    a('s_mov_b32 m0, s%d' % sB)
    a('s_nop 0')
    for k in range(4 if q < 5 else 1):
        a('buffer_load_dwordx4 v1, %s, s%d offen offset:%d sc1 lds' % (srd(S_WS), sA, 1024 * k))
    if q < 5:
        a('s_add_u32 s%d, s%d, 4096' % (sA, sA))
        a('s_add_u32 s%d, s%d, 4096' % (sB, sB))
wa_mark = a.vm_mark()

AQ, AK, AV = 2, 18, 42
WBUF = [66, 90]
XR = 114
STR = 210
SM, SR = 234, 237
NR, LOOK = 8, 4


def a_xload(u):
    slot = u % NR
    return ['buffer_load_dwordx4 %s, v1, %s, s%d offen offset:%d sc1' %
            (vr(XR + (slot * 3 + t) * 4), srd(S_WS), sO + 4 * t + (u >> 2), 1024 * (u & 3)) for t in range(3)]


def a_issue():
    pair_base(sA, L.XA)
    a('s_mul_i32 s%d, s%d, 14336' % (sB, sGT))
    a('s_add_u32 s%d, s%d, s%d' % (sO + 4, sA, sB))
    a('s_add_u32 s%d, s%d, 14336' % (sO + 8, sO + 4))
    a('s_sub_u32 s%d, s%d, 14336' % (sO + 0, sO + 4))
    a('s_cmp_eq_u32 s%d, 0' % sGT)
    a('s_cselect_b32 s%d, s%d, s%d' % (sO + 0, sO + 4, sO + 0))
    for t in range(3):
        for q in range(1, 4):
            a('s_add_u32 s%d, s%d, %d' % (sO + 4 * t + q, sO + 4 * t, 4096 * q))
    marks = {}
    for u in range(LOOK):
        for t in a_xload(u):
            a(t)
        marks[u] = a.vm_mark()
    return marks


a_issue()
a('v_lshl_add_u32 v20, v18, 7, v19')
a('v_add_u32 v20, s%d, v20' % sSTG)
for t in range(4):
    a('ds_read_b64_tr_b16 %s, v20 offset:%d' % (vr(24 + 4 * t, 2), 2048 + 32 * t))
    a('ds_read_b64_tr_b16 %s, v20 offset:%d' % (vr(26 + 4 * t, 2), 2048 + 32 * t + 2048))
a('v_lshl_add_u32 v21, v18, 5, v19')
a('v_add_u32 v21, s%d, v21' % sSTG)
for i in range(4):
    a('ds_read_b64_tr_b16 %s, v21 offset:%d' % (vr(40 + 4 * i, 2), 6144 + 1024 * i))
    a('ds_read_b64_tr_b16 %s, v21 offset:%d' % (vr(42 + 4 * i, 2), 6144 + 1024 * i + 512))
a('v_or_b32 v6, s%d, v1' % bINV)
a('s_waitcnt lgkmcnt(8)')
for t in range(4):
    a('buffer_store_dwordx4 %s, v6, %s, s%d offen sc1' % (vr(24 + 4 * t), srd(S_WS), bDST))
    if t < 3:
        a('s_add_u32 s%d, s%d, s%d' % (bDST, bDST, bSTR))
a('s_mul_i32 s%d, s%d, 14' % (sA, cNT))
a('s_add_u32 s%d, s%d, s%d' % (sA, sA, sW))
a('s_lshl_b32 s%d, s%d, 10' % (sA, sA))
a('s_add_u32 s%d, s%d, %d' % (sA, sA, L.WC))
a('v_or_b32 v8, s%d, v1' % cINV)
a('v_or_b32 v9, s%d, v1' % cI12)
a('v_mov_b32 v2, 0x3f803f80')
a('v_mov_b32 v100, 0')
a('s_waitcnt lgkmcnt(0)')
for i in range(4):
    a('buffer_store_dwordx4 %s, v%d, %s, s%d offen sc1' % (vr(40 + 4 * i), 9 if i == 3 else 8, srd(S_WS), sA))
    a('s_add_u32 s%d, s%d, 4096' % (sA, sA))
for i in range(4):
    for p in range(4):
        a('v_dot2_f32_bf16 v100, v%d, v2, v100' % (40 + 4 * i + p))
for t in xg_reduce(100, 101):
    a(t)
a('s_lshl_b32 s%d, s%d, 6' % (sA, sW))
a('s_add_u32 s%d, s%d, %d' % (sA, sA, L.L_CSR))
a('v_lshlrev_b32 v2, 2, v%d' % V_TOK)
a('v_add_u32 v3, s%d, v2' % sA)
a('ds_write_b32 v3, v100')
a('s_waitcnt lgkmcnt(0)')
a('s_barrier')
a('v_add_u32 v3, %d, v2' % L.L_CSR)
for i in range(4):
    a('ds_read_b32 v%d, v3 offset:%d' % (104 + i, 64 * i))
a('s_lshl_b32 s%d, s%d, 6' % (sB, cNT))
a('s_add_u32 s%d, s%d, %d' % (sB, sB, L.CSC))
a('s_cmp_eq_u32 s%d, 0' % sW)
a('s_cselect_b32 s%d, s%d, 0x%x' % (sA, cINV, INV))
a('v_or_b32 v2, s%d, v2' % sA)
a('s_waitcnt lgkmcnt(0)')
a('v_add_f32 v104, v104, v105')
a('v_add_f32 v106, v106, v107')
a('v_add_f32 v104, v104, v106')
a('s_mov_b64 exec, 0xffff')
a('buffer_store_dword v104, v2, %s, s%d offen sc1' % (srd(S_WS), sB))
a('s_mov_b64 exec, -1')

a('s_waitcnt vmcnt(0)')
a('s_barrier')
a('s_lshl_b32 s%d, s%d, 5' % (sA, sJ))
a('s_add_u32 s%d, s%d, s%d' % (sA, sA, sG))
a('s_lshl_b32 s%d, s%d, 2' % (sA, sA))
a('s_add_u32 s%d, s%d, %d' % (sA, sA, L.FP))
a('s_cmp_eq_u32 s%d, 0' % sW)
a('s_cselect_b32 s%d, s%d, 0x%x' % (sA, sA, INV))
a('v_mov_b32 v2, s%d' % sA)
a('s_mov_b64 exec, 1')
a('buffer_store_dword v%d, v2, %s, 0 offen sc1' % (V_T, srd(S_WS)))
a('s_mov_b64 exec, -1')
stamp()
for p in range(4):
    a('v_mov_b32 v%d, 0x3f803f80' % (4 + p))
a('s_mul_i32 s%d, s%d, %d' % (sB, sW, 14 * 1024))
a('v_add_u32 v2, s%d, v1' % sB)
a('s_cmp_lt_u32 s%d, 2' % sW)
a('s_cselect_b32 s%d, %d, 0' % (sB, 56 * 1024))
a('v_add_u32 v3, s%d, v2' % sB)
for u in range(7):
    for hh in range(2):
        a('ds_read_b128 %s, v2 offset:%d' % (vr(16 + 8 * u + 4 * hh), 1024 * (2 * u + hh)))
for u in range(5):
    for hh in range(2):
        a('ds_read_b128 %s, v3 offset:%d' % (vr(72 + 8 * u + 4 * hh) if u < 5 else '', 1024 * (2 * u + hh)))
a('s_waitcnt lgkmcnt(10)')
for u in range(14):
    a('%s %s, %s, v[4:7], %s' % (MFMA, vr(8 + 4 * (u & 1)) if False else 'v[8:11]', vr(16 + 4 * u), '0' if u == 0 else 'v[8:11]'))
a('s_waitcnt lgkmcnt(0)')
for u in range(10):
    a('%s v[12:15], %s, v[4:7], %s' % (MFMA, vr(72 + 4 * u), '0' if u == 0 else 'v[12:15]'))
for u in range(4):
    a('ds_read_b128 %s, v3 offset:%d' % (vr(16 + 4 * u), 1024 * (10 + u)))
a('s_waitcnt lgkmcnt(0)')
for u in range(4):
    a('%s v[12:15], %s, v[4:7], v[12:15]' % (MFMA, vr(16 + 4 * u)))
a('v_cmp_eq_u32 vcc, 0, v%d' % V_TOK)
a('s_lshl_b32 s%d, s%d, 6' % (sA, sW))
a('s_add_u32 s%d, s%d, %d' % (sA, sA, L.L_CSA))
a('v_lshl_add_u32 v3, v%d, 4, s%d' % (V_G, sA))
a('s_mov_b64 exec, vcc')
a('ds_write_b128 v3, v[8:11]')
a('s_cmp_lt_u32 s%d, 2' % sW)
a('s_cbranch_scc0 L_csa_done')
a('ds_write_b128 v3, v[12:15] offset:256')
a.label('L_csa_done')
a('s_mov_b64 exec, -1')
a('s_waitcnt lgkmcnt(0)')
a('s_barrier')
stamp()
a('s_branch L_a_main')

a.label('L_pair')
a_flag_addr(2)
poll(2)
stamp()
xmark = a_issue()
if DIAG:
    a('s_add_u32 s%d, s%d, 0' % (sSTI, sSTI))
a.label('L_a_main')
pair_base(sA, L.SA)
a('s_mul_i32 s%d, s%d, 1792' % (sB, sGT))
a('s_add_u32 s%d, s%d, s%d' % (sO + 13, sA, sB))
a('s_add_u32 s%d, s%d, 1792' % (sO + 14, sO + 13))
a('s_sub_u32 s%d, s%d, 1792' % (sO + 12, sO + 13))
a('s_cmp_eq_u32 s%d, 0' % sGT)
a('s_cselect_b32 s%d, s%d, s%d' % (sO + 12, sO + 13, sO + 12))
a('v_and_b32 v%d, 15, v0' % V_TOK)
a('v_lshrrev_b32 v%d, 4, v0' % V_G)
a('v_lshlrev_b32 v240, 3, v%d' % V_TOK)
a('v_lshl_add_u32 v240, v%d, 7, v240' % V_G)
a('v_mov_b32 v242, 0x%x' % INV)
a('v_cmp_lt_u32 vcc, 1, v%d' % V_G)
a('v_cndmask_b32 v241, 0, v242, vcc')
a('v_or_b32 v241, v241, v240')
a('v_add_u32 v243, %d, v1' % (56 * 1024))
a('v_lshlrev_b32 v244, 4, v%d' % V_G)
a('v_add_u32 v244, %d, v244' % L.L_CSA)
a('v_lshlrev_b32 v245, 2, v%d' % V_TOK)
a('v_add_u32 v245, %d, v245' % L.L_CSA)
stat_loads = ['buffer_load_dwordx2 %s, v%d, %s, s%d offen offset:%d sc1' %
              (vr(STR + (t * 4 + i) * 2, 2), 241 if i == 3 else 240, srd(S_WS), sO + 12 + t, 512 * i)
              for t in range(3) for i in range(4)]


def a_wread(u):
    b = WBUF[u & 1]
    o = []
    for p in range(6):
        if p < 4:
            o.append('ds_read_b128 %s, v1 offset:%d' % (vr(b + 4 * p), L.L_WA + (p * 14 + u) * 1024))
        else:
            o.append('ds_read_b128 %s, v243 offset:%d' % (vr(b + 4 * p), L.L_WA + ((p - 4) * 14 + u) * 1024))
    return o


for t in a_wread(0):
    a(t)
stat_fill = []
for t in range(3):
    r = STR + 8 * t
    for c_ in range(2):
        stat_fill += ['v_add_f32 v%d, v%d, v%d' % (r + c_, r + c_, r + 2 + c_),
                      'v_add_f32 v%d, v%d, v%d' % (r + 4 + c_, r + 4 + c_, r + 6 + c_),
                      'v_add_f32 v%d, v%d, v%d' % (r + c_, r + c_, r + 4 + c_)]
    stat_fill += xg_reduce(r, r + 2) + xg_reduce(r + 1, r + 3)
    stat_fill += stats_finish(r, r + 1, r + 2, False)
    stat_fill += ['v_mov_b32 v%d, v%d' % (SM + t, r), 'v_mov_b32 v%d, v%d' % (SR + t, r + 1)]

a('s_lshl_b32 s%d, s%d, 7' % (sA, sJ))
a('s_add_u32 s%d, s%d, %d' % (sA, sA, L.FP))
a('v_lshl_add_u32 v248, v0, 2, s%d' % sA)
a('s_lshr_b32 s%d, s%d, 1' % (sB, sW))
a('s_lshl_b32 s%d, s%d, 2' % (sCc, sG))
a('s_add_u32 s%d, s%d, s%d' % (sB, sB, sCc))
a('s_lshl_b32 s%d, s%d, 4' % (sB, sB))
a('s_and_b32 s%d, s%d, 1' % (sA, sW))
a('s_add_u32 s%d, s%d, s%d' % (sB, sB, sA))
a('s_min_u32 s%d, s%d, 6' % (sA, sJ))
a('s_lshl_b32 s%d, s%d, 1' % (sA, sA))
a('s_add_u32 s%d, s%d, s%d' % (sB, sB, sA))
a('s_lshl_b32 s%d, s%d, 2' % (sB, sB))
a('s_add_u32 s%d, s%d, %d' % (sB, sB, L.FX[0] - 32 * 128))
a('v_lshl_add_u32 v249, v0, 7, s%d' % sB)
a('v_cmp_lt_u32 vcc, 31, v0')
a('v_cndmask_b32 v248, v248, v249, vcc')
a('s_mov_b32 s%d, -1' % sMK2)
a('s_mov_b32 s%d, 3' % (sMK2 + 1))
ep_mark = None
st_mark = None
for u in range(14):
    need = xmark[u]
    if u == 9:
        need = max(need, st_mark)
    a.wait_vm(need)
    a('s_waitcnt lgkmcnt(0)')
    wb = WBUF[u & 1]
    xs = XR + (u % NR) * 12
    mf = []
    cz = (lambda r: '0') if u == 0 else (lambda r: vr(r))
    for t in range(2):
        for hf in range(2):
            r = AQ + (t * 2 + hf) * 4
            mf.append('%s %s, %s, %s, %s' % (MFMA, vr(r), vr(wb + 4 * hf), vr(xs + 4 * (t + 1)), cz(r)))
    for t in range(3):
        for hf in range(2):
            r = AK + (t * 2 + hf) * 4
            mf.append('%s %s, %s, %s, %s' % (MFMA, vr(r), vr(wb + 8 + 4 * hf), vr(xs + 4 * t), cz(r)))
    for t in range(3):
        for hf in range(2):
            r = AV + (t * 2 + hf) * 4
            mf.append('%s %s, %s, %s, %s' % (MFMA, vr(r), vr(xs + 4 * t), vr(wb + 16 + 4 * hf), cz(r)))
    mem = {}
    if u < 13:
        for k, x in enumerate(a_wread(u + 1)):
            mem[k] = x
    else:
        for p in range(4):
            mem[p] = 'ds_read_b128 %s, v244 offset:%d' % (vr(WBUF[0] + 4 * p), 64 * p)
        for d in range(2):
            mem[4 + d] = 'ds_read_b32 v%d, v245 offset:%d' % (WBUF[0] + 16 + d, 64 * (4 + d))
    if u + LOOK < 14:
        xl = a_xload(u + LOOK)
        mem[6], mem[9], mem[12] = xl
    if u < 6:
        mem[8], mem[14] = stat_loads[2 * u], stat_loads[2 * u + 1]
    if u == 11:
        mem[8] = 'EARLY'
    fill = []
    if u >= 9:
        n = (len(stat_fill) + 4) // 5
        fill = stat_fill[(u - 9) * n:(u - 8) * n]
    fi = 0
    for k, m in enumerate(mf):
        a(m)
        if k in mem:
            if mem[k] == 'EARLY':
                ep_mark = early_issue(249, 248)
            else:
                a(mem[k])
            if k == 12 and u + LOOK < 14:
                xmark[u + LOOK] = a.vm_mark()
            if k == 14 and u == 5:
                st_mark = a.vm_mark()
        for _ in range(2):
            if fi < len(fill) and k >= 1:
                a(fill[fi])
                fi += 1
    assert fi == len(fill), (u, fi, len(fill))
stamp()
early_check(249, 248, ep_mark)
BW = 2
a('s_lshl_b32 s%d, s%d, 6' % (sA, sJ))
a('s_lshl_b32 s%d, s%d, 2' % (sB, sW))
a('s_add_u32 s%d, s%d, s%d' % (sA, sA, sB))
a('s_lshl_b32 s%d, s%d, 10' % (sA, sA))
a('s_add_u32 s20, s%d, %d' % (sA, L.WB))
for t in range(1, 4):
    a('s_add_u32 s%d, s20, %d' % (20 + t, 16 * 1024 * t))
wb_loads = ['buffer_load_dwordx4 %s, v1, %s, s%d offen offset:%d sc1' % (vr(BW + (i * 4 + t) * 4), srd(S_WS), 20 + t, 1024 * i)
            for i in range(4) for t in range(4)]
A_RES, A_B2 = 224, 232


def owner_index():
    a('s_lshr_b32 s%d, s%d, 1' % (sB, sW))
    a('s_lshl_b32 s%d, s%d, 2' % (sCc, sG))
    a('s_add_u32 s%d, s%d, s%d' % (sB, sB, sCc))
    a('s_and_b32 s%d, s%d, 1' % (sA, sW))
    a('s_lshl_b32 s%d, s%d, 1' % (sCc, sJ))
    a('s_add_u32 s%d, s%d, s%d' % (sA, sA, sCc))


a('s_cmp_eq_u32 s%d, 0' % sPAIR)
a('s_cbranch_scc0 L_a_nores')
owner_index()
a('s_mul_i32 s%d, s%d, 14' % (sB, sB))
a('s_add_u32 s%d, s%d, s%d' % (sB, sB, sA))
a('s_lshl_b32 s%d, s%d, 10' % (sB, sB))
a('s_add_u32 s%d, s%d, %d' % (sB, sB, L.XA[0]))
a('buffer_load_dwordx4 %s, v1, %s, s%d offen sc1' % (ar(A_RES), srd(S_WS), sB))
a('s_add_u32 s%d, s%d, %d' % (sB, sB, 2 * 14336))
a('buffer_load_dwordx4 %s, v1, %s, s%d offen sc1' % (ar(A_RES + 4), srd(S_WS), sB))
build_srd(S_TMP, P_B2, 896)
a('s_lshl_b32 s%d, s%d, 6' % (sB, sA))
a('v_lshlrev_b32 v240, 3, v%d' % V_G)
a('buffer_load_dwordx2 v[228:229], v240, %s, s%d offen' % (srd(S_TMP), sB))
a('buffer_load_dwordx2 v[230:231], v240, %s, s%d offen offset:32' % (srd(S_TMP), sB))
a.label('L_a_nores')
CSQ = WBUF[0]
a('s_mul_i32 s%d, s%d, 384' % (sA, sW))
a('s_add_u32 s%d, s%d, %d' % (sA, sA, L.L_STA))
a('v_lshl_add_u32 v246, v%d, 2, s%d' % (V_TOK, sA))
a('v_lshl_add_u32 v247, v%d, 4, s%d' % (V_G, sA))
a('s_mov_b64 exec, 0xffff')
for t in range(3):
    a('ds_write_b32 v246, v%d offset:%d' % (SM + t, 128 * t))
    a('ds_write_b32 v246, v%d offset:%d' % (SR + t, 128 * t + 64))
a('s_mov_b64 exec, -1')
MROW, RROW = 114, 126
a('s_waitcnt lgkmcnt(0)')
for t in range(3):
    a('ds_read_b128 %s, v247 offset:%d' % (vr(MROW + 4 * t), 128 * t))
    a('ds_read_b128 %s, v247 offset:%d' % (vr(RROW + 4 * t), 128 * t + 64))
QF, KF, VF = 140, 148, 160
for t in range(2):
    for hf in range(2):
        r = AQ + (t * 2 + hf) * 4
        for i in range(4):
            a('v_fma_f32 v%d, -v%d, v%d, v%d' % (r + i, SM + t + 1, CSQ + 4 * hf + i, r + i))
        for p in range(2):
            a('v_cvt_pk_bf16_f32 v%d, v%d, v%d' % (QF + 4 * t + 2 * hf + p, r + 2 * p, r + 2 * p + 1))
for t in range(3):
    for hf in range(2):
        r = AK + (t * 2 + hf) * 4
        for i in range(4):
            a('v_fma_f32 v%d, -v%d, v%d, v%d' % (r + i, SM + t, CSQ + 8 + 4 * hf + i, r + i))
        for p in range(2):
            a('v_cvt_pk_bf16_f32 v%d, v%d, v%d' % (KF + 4 * t + 2 * hf + p, r + 2 * p, r + 2 * p + 1))
SS = 172
for t in range(2):
    a('%s %s, %s, %s, 0' % (MFMA, vr(SS + 8 * t), vr(KF + 4 * t), vr(QF + 4 * t)))
    a('%s %s, %s, %s, 0' % (MFMA, vr(SS + 8 * t + 4), vr(KF + 4 * t + 4), vr(QF + 4 * t)))
a('s_waitcnt lgkmcnt(0)')
for t in range(3):
    for d in range(2):
        r = AV + (t * 2 + d) * 4
        for i in range(4):
            a('v_fma_f32 v%d, -v%d, v%d, v%d' % (r + i, MROW + 4 * t + i, CSQ + 16 + d, r + i))
        for p in range(2):
            a('v_cvt_pk_bf16_f32 v%d, v%d, v%d' % (VF + 6 * d + 2 * t + p, r + 2 * p, r + 2 * p + 1))
SCALE = (28.0 ** -0.5) * 1.4426950408889634
MX, CC, LS, TMPR = 190, 192, 194, 196
PF = 200
a('v_mov_b32 v198, 0xff800000')
seq = [[], []]
for t in range(2):
    s = SS + 8 * t
    q = seq[t]
    for e in range(8):
        q.append('v_mul_f32 v%d, v%d, v%d' % (s + e, s + e, RROW + 4 * (t + (e >> 2)) + (e & 3)))
    for e in range(8):
        mk = (sM0 if t == 0 else sM1) + 2 * e if e < 4 else sM2 + 2 * (e - 4)
        q.append('v_cndmask_b32 v%d, v198, v%d, %s' % (s + e, s + e, sp(mk)))
    q.append('v_max3_f32 v%d, v%d, v%d, v%d' % (MX + t, s, s + 1, s + 2))
    q.append('v_max3_f32 v%d, v%d, v%d, v%d' % (MX + t, MX + t, s + 3, s + 4))
    q.append('v_max3_f32 v%d, v%d, v%d, v%d' % (MX + t, MX + t, s + 5, s + 6))
    q.append('v_max_f32 v%d, v%d, v%d' % (MX + t, MX + t, s + 7))
    q += xg_reduce(MX + t, TMPR + t, 'v_max_f32')
    q.append('v_mul_f32 v%d, %s, v%d' % (CC + t, f2h(SCALE), SR + t + 1))
    q.append('v_mul_f32 v%d, v%d, v%d' % (MX + t, MX + t, CC + t))
    for e in range(8):
        q.append('v_fma_f32 v%d, v%d, v%d, -v%d' % (s + e, s + e, CC + t, MX + t))
    for e in range(8):
        q.append('v_exp_f32 v%d, v%d' % (s + e, s + e))
    q.append('v_add_f32 v%d, v%d, v%d' % (LS + t, s, s + 1))
    for e in range(2, 8):
        q.append('v_add_f32 v%d, v%d, v%d' % (LS + t, LS + t, s + e))
    q += xg_reduce(LS + t, TMPR + t)
    q.append('v_rcp_f32 v%d, v%d' % (LS + t, LS + t))
    for e in range(8):
        q.append('v_mul_f32 v%d, v%d, v%d' % (s + e, s + e, RROW + 4 * (t + (e >> 2)) + (e & 3)))
    for p in range(4):
        q.append('v_cvt_pk_bf16_f32 v%d, v%d, v%d' % (PF + 4 * t + p, s + 2 * p, s + 2 * p + 1))
merged = [z for xy in zip(*seq) for z in xy]
gap = len(merged) // (len(wb_loads) + 1)
for k, x in enumerate(merged):
    a(x)
    if k % gap == gap - 1 and wb_loads:
        a(wb_loads.pop(0))
assert not wb_loads
OO = 208
for t in range(2):
    for d in range(2):
        a('%s %s, %s, %s, 0' % (MFMA, vr(OO + 8 * t + 4 * d), vr(VF + 6 * d + 2 * t), vr(PF + 4 * t)))
pair_base(sA, L.O)
a('s_lshl_b32 s%d, s%d, 4' % (sB, sGT))
a('s_add_u32 s%d, s%d, s%d' % (sB, sB, sC))
a('s_lshl_b32 s%d, s%d, 10' % (sB, sB))
a('s_add_u32 s%d, s%d, s%d' % (sA, sA, sB))
for t in range(2):
    for e in range(8):
        a('v_mul_f32 v%d, v%d, v%d' % (OO + 8 * t + e, OO + 8 * t + e, LS + t))
    for p in range(4):
        a('v_cvt_pk_bf16_f32 v%d, v%d, v%d' % (PF + 4 * t + p, OO + 8 * t + 2 * p, OO + 8 * t + 2 * p + 1))
    store('buffer_store_dwordx4 %s, v1, %s, s%d offen' % (vr(PF + 4 * t), srd(S_WS), sA), sFAST)
    if t == 0:
        a('s_add_u32 s%d, s%d, 16384' % (sA, sA))
pair_base(sA, L.FA)
a('s_lshl_b32 s%d, s%d, 4' % (sB, sGT))
a('s_add_u32 s%d, s%d, s%d' % (sB, sB, sC))
a('s_lshl_b32 s%d, s%d, 2' % (sB, sB))
a('s_add_u32 s%d, s%d, s%d' % (sA, sA, sB))
a('v_lshlrev_b32 v241, 6, v0')
a('v_add_u32 v241, s%d, v241' % sA)
set_flags(241, 2, sFAST)
stamp()
a('s_cmp_eq_u32 s%d, 7' % sJ)
a('s_cbranch_scc1 L_next_pair')


def wd_bases():
    a('s_lshl_b32 s%d, s%d, 2' % (sA, sJ))
    a('s_mul_i32 s%d, s%d, %d' % (sA, sA, 56 * 1024))
    a('s_mul_i32 s%d, s%d, %d' % (sB, sW, 14 * 1024))
    a('s_add_u32 s%d, s%d, s%d' % (sA, sA, sB))
    a('s_add_u32 s%d, s%d, %d' % (sO, sA, L.WD))
    quarter_offsets(4, 56 * 1024)


def wd_load(fi):
    kk, t = fi >> 2, fi & 3
    return ('buffer_load_dwordx4 %s, v1, %s, s%d offen offset:%d sc1' %
            (ar(4 * fi), srd(S_WS), sO + 4 * t + (kk >> 2), 1024 * (kk & 3)))


WD_CH = [(0, 12), (12, 44), (44, 56)]
BO, BACC, BRD, BTMP = 66, 130, 194, 226
a('s_cmp_eq_u32 s%d, 0' % sPAIR)
a('s_cbranch_scc0 L_b_start')
for k in range(4):
    a('v_lshlrev_b32 v236, 16, v%d' % (228 + k))
    a('v_and_b32 v237, 0xffff0000, v%d' % (228 + k))
    a('v_accvgpr_write_b32 a%d, v236' % (A_B2 + 2 * k))
    a('v_accvgpr_write_b32 a%d, v237' % (A_B2 + 2 * k + 1))
wd_bases()
for fi in range(*WD_CH[0]):
    a(wd_load(fi))
a.label('L_b_start')
CACC, CW, CX, CCS, CB1, CB1R, CSTR, CMR = 2, 66, 162, 194, 210, 226, 234, 242
NRC = 6
a('s_lshl_b32 s%d, s%d, 4' % (sA, sJ))
a('s_lshl_b32 s%d, s%d, 2' % (sB, sW))
a('s_add_u32 s%d, s%d, s%d' % (sA, sA, sB))
a('s_mov_b32 s41, s%d' % sA)
a('s_mul_i32 s%d, s%d, %d' % (sB, sA, 14 * 1024))
a('s_add_u32 s%d, s%d, %d' % (sO, sB, L.WC))
quarter_offsets(4, 14 * 1024)


def c_wload(u):
    slot = u % NRC
    return ['buffer_load_dwordx4 %s, v1, %s, s%d offen offset:%d sc1' %
            (vr(CW + (slot * 4 + t) * 4), srd(S_WS), sO + 4 * t + (u >> 2), 1024 * (u & 3)) for t in range(4)]


def red_writes(acc, tile):
    return ['ds_write_b128 v248, %s offset:%d' % (vr(acc + 4 * t), (tile >> 1) * 32768 + (tile & 1) * 4096 + t * 1024)
            for t in range(4)]


def red_reads(st, rd):
    return ['ds_read_b128 %s, v249 offset:%d' % (vr(rd + (b * 2 + k) * 4), st * 32768 + b * 8192 + k * 1024)
            for b in range(4) for k in range(2)]


def owner_finish(st, is_d, rd, tmp):
    res = A_RES + 4 * st
    for p in range(4):
        a('v_accvgpr_read_b32 v%d, a%d' % (tmp + 8 + p, res + p))
    for p in range(4):
        a('v_lshlrev_b32 v%d, 16, v%d' % (tmp + 2 * p, tmp + 8 + p))
        a('v_and_b32 v%d, 0xffff0000, v%d' % (tmp + 2 * p + 1, tmp + 8 + p))
    if is_d:
        for e in range(0, 8):
            a('v_accvgpr_read_b32 v%d, a%d' % (tmp + 8 + e, A_B2 + e))
        for e in range(0, 8, 2):
            a('v_pk_add_f32 %s, %s, %s' % (vr(tmp + e, 2), vr(tmp + e, 2), vr(tmp + 8 + e, 2)))
    a('s_waitcnt lgkmcnt(0)')
    for e in range(0, 8, 2):
        a('v_pk_add_f32 %s, %s, %s' % (vr(rd + e, 2), vr(rd + e, 2), vr(rd + 8 + e, 2)))
        a('v_pk_add_f32 %s, %s, %s' % (vr(rd + 16 + e, 2), vr(rd + 16 + e, 2), vr(rd + 24 + e, 2)))
    for e in range(0, 8, 2):
        a('v_pk_add_f32 %s, %s, %s' % (vr(rd + e, 2), vr(rd + e, 2), vr(rd + 16 + e, 2)))
    for e in range(0, 8, 2):
        a('v_pk_add_f32 %s, %s, %s' % (vr(tmp + e, 2), vr(tmp + e, 2), vr(rd + e, 2)))
    for p in range(4):
        a('v_cvt_pk_bf16_f32 v%d, v%d, v%d' % (rd + p, tmp + 2 * p, tmp + 2 * p + 1))
    for p in range(4):
        a('v_accvgpr_write_b32 a%d, v%d' % (res + p, rd + p))


def owner_stats(tmp, s1, s2, t):
    a('v_pk_add_f32 %s, %s, %s' % (vr(t, 2), vr(tmp, 2), vr(tmp + 2, 2)))
    a('v_pk_add_f32 %s, %s, %s' % (vr(t + 2, 2), vr(tmp + 4, 2), vr(tmp + 6, 2)))
    a('v_pk_add_f32 %s, %s, %s' % (vr(t, 2), vr(t, 2), vr(t + 2, 2)))
    a('v_add_f32 v%d, v%d, v%d' % (s1, t, t + 1))
    a('v_pk_mul_f32 %s, %s, %s' % (vr(t, 2), vr(tmp, 2), vr(tmp, 2)))
    for e in (2, 4, 6):
        a('v_pk_fma_f32 %s, %s, %s, %s' % (vr(t, 2), vr(tmp + e, 2), vr(tmp + e, 2), vr(t, 2)))
    a('v_add_f32 v%d, v%d, v%d' % (s2, t, t + 1))
    for x in xg_reduce(s1, t) + xg_reduce(s2, t + 1):
        a(x)


def red_addrs():
    a('s_lshl_b32 s%d, s%d, 13' % (sA, sW))
    a('s_add_u32 s%d, s%d, %d' % (sA, sA, L.L_R2))
    a('v_add_u32 v248, s%d, v1' % sA)
    a('s_and_b32 s%d, s%d, 1' % (sA, sW))
    a('s_lshl_b32 s%d, s%d, 11' % (sA, sA))
    a('s_lshr_b32 s%d, s%d, 1' % (sB, sW))
    a('s_lshl_b32 s%d, s%d, 12' % (sB, sB))
    a('s_add_u32 s%d, s%d, s%d' % (sA, sA, sB))
    a('s_add_u32 s%d, s%d, %d' % (sA, sA, L.L_R2))
    a('v_add_u32 v249, s%d, v1' % sA)


sPX, sPS, sPF, sPC = 36, 37, 28, 29


def publish_setup(xbase, sbase, fbase, per_pair):
    owner_index()
    a('s_mul_i32 s%d, s%d, 14' % (sCc, sB))
    a('s_add_u32 s%d, s%d, s%d' % (sCc, sCc, sA))
    a('s_lshl_b32 s%d, s%d, 10' % (sPX, sCc))
    a('s_lshl_b32 s%d, s%d, 7' % (sPS, sCc))
    a('s_lshl_b32 s%d, s%d, 4' % (sPF, sB))
    a('s_add_u32 s%d, s%d, s%d' % (sPF, sPF, sA))
    a('s_lshl_b32 s%d, s%d, 2' % (sPF, sPF))
    for dst, arr in ((sPX, xbase), (sPS, sbase), (sPF, fbase)):
        if per_pair:
            pair_base(sD, arr)
            a('s_add_u32 s%d, s%d, s%d' % (dst, dst, sD))
        else:
            a('s_add_u32 s%d, s%d, %d' % (dst, dst, arr))


def publish_x(st, rd, tmp):
    if st == 1:
        a('s_add_u32 s%d, s%d, %d' % (sPX, sPX, 2 * 14336))
        a('s_add_u32 s%d, s%d, %d' % (sPS, sPS, 2 * 1792))
    store('buffer_store_dwordx4 %s, v1, %s, s%d offen' % (vr(rd), srd(S_WS), sPX), sPC)
    owner_stats(tmp, rd + 4, rd + 5, rd + 6)
    a('v_and_b32 v%d, 15, v0' % V_TOK)
    a('v_lshlrev_b32 v%d, 3, v%d' % (rd + 6, V_TOK))
    a('s_mov_b64 exec, 0xffff')
    store('buffer_store_dwordx2 %s, v%d, %s, s%d offen' % (vr(rd + 4, 2), rd + 6, srd(S_WS), sPS), sPC)
    a('s_mov_b64 exec, -1')


def publish_flags(between=()):
    a('v_lshlrev_b32 v241, 7, v0')
    a('v_add_u32 v241, s%d, v241' % sPF)
    set_flags(241, 2, sPC, V_T, between)


def ksplit_phase(acc, rd, tmp, is_d, tile_mfmas, finish_publish):
    extra = {1: red_writes(acc + 0, 0), 2: red_writes(acc + 16, 1), 3: red_writes(acc + 32, 2) + red_reads(0, rd)}
    for tile in range(4):
        items = tile_mfmas(tile)
        ex = list(extra.get(tile, []))
        n = len(items)
        step = max(1, (n - 4) // max(1, len(ex))) if ex else 1
        for k, (pre, m, post) in enumerate(items):
            for x in pre:
                x()
            a(m)
            if post:
                post()
            elif ex and k >= 3 and (k - 3) % step == 0:
                a(ex.pop(0))
        for x in ex:
            a(x)
        if tile == 2:
            a('s_waitcnt lgkmcnt(0)')
            a('s_barrier')
    for x in red_writes(acc + 48, 3):
        a(x)
    finish_publish(0)
    a('s_waitcnt lgkmcnt(0)')
    a('s_barrier')
    for x in red_reads(1, rd):
        a(x)
    finish_publish(1)


pair_base(sA, L.FA)
a('s_lshl_b32 s%d, s%d, 8' % (sB, sG))
a('s_add_u32 s%d, s%d, s%d' % (sA, sA, sB))
a('v_lshl_add_u32 v240, v0, 2, s%d' % sA)
a('s_lshl_b32 s%d, s%d, 2' % (sB, sW))
a('s_lshl_b32 s%d, 0x000f000f, s%d' % (sMK, sB))
a('s_mov_b32 s%d, s%d' % (sMK + 1, sMK))
red_addrs()
publish_setup(L.XB, L.SB, L.FB, True)
a('s_mov_b32 s%d, s%d' % (sPC, sFAST))
pair_base(sA, L.O)
a('s_lshl_b32 s%d, s%d, 6' % (sB, sG))
a('s_lshl_b32 s%d, s%d, 2' % (sCc, sW))
a('s_add_u32 s%d, s%d, s%d' % (sB, sB, sCc))
a('s_lshl_b32 s%d, s%d, 10' % (sB, sB))
a('s_add_u32 s20, s%d, s%d' % (sA, sB))
for t in range(1, 4):
    a('s_add_u32 s%d, s20, %d' % (20 + t, 16384 * t))
poll(240)
stamp()


def b_oload(tile, i):
    return 'buffer_load_dwordx4 %s, v1, %s, s%d offen offset:%d sc1' % (vr(BO + (tile * 4 + i) * 4), srd(S_WS), 20 + tile, 1024 * i)


om = {}
for tile in range(2):
    for i in range(4):
        a(b_oload(tile, i))
        om[(tile, i)] = a.vm_mark()


def b_tile(tile):
    items = []
    for i in range(4):
        for t in range(4):
            r = BACC + (tile * 4 + t) * 4
            pre = [(lambda tl=tile, ii=i: a.wait_vm(om[(tl, ii)]))] if t == 0 else []
            post = None
            if tile < 2 and t == 1:
                def post(tl=tile + 2, ii=i):
                    a(b_oload(tl, ii))
                    om[(tl, ii)] = a.vm_mark()
            if tile >= 2 and t == 1:
                def post(u=tile - 2, ii=i):
                    a(c_wload(u)[ii])
            items.append((pre, '%s %s, %s, %s, %s' % (MFMA, vr(r), vr(BW + (i * 4 + t) * 4), vr(BO + (tile * 4 + i) * 4),
                                                      '0' if i == 0 else vr(r)), post))
    return items


def b_fin(st):
    owner_finish(st, False, BRD, BTMP)
    publish_x(st, BRD, BTMP)


ksplit_phase(BACC, BRD, BTMP, False, b_tile, b_fin)
publish_flags(c_wload(2) + c_wload(3))
stamp()

for u in (4, 5):
    for x in c_wload(u):
        a(x)
a('s_mov_b32 s%d, s41' % sA)
a('v_lshrrev_b32 v%d, 4, v0' % V_G)
a('v_and_b32 v%d, 15, v0' % V_TOK)
a('v_lshlrev_b32 v240, 4, v%d' % V_G)
a('s_lshl_b32 s%d, s%d, 6' % (sB, sA))
a('s_add_u32 s%d, s%d, %d' % (sB, sB, L.CSC))
for t in range(4):
    a('buffer_load_dwordx4 %s, v240, %s, s%d offen offset:%d sc1' % (vr(CCS + 4 * t), srd(S_WS), sB, 64 * t))
a('v_lshlrev_b32 v240, 3, v%d' % V_G)
a('s_lshl_b32 s%d, s%d, 5' % (sB, sA))
for t in range(4):
    a('buffer_load_dwordx2 %s, v240, %s, s%d offen offset:%d' % (vr(CB1R + 2 * t, 2), srd(S_B1), sB, 32 * t))
pair_base(sA, L.FB)
a('s_lshl_b32 s%d, s%d, 8' % (sB, sG))
a('s_add_u32 s%d, s%d, s%d' % (sA, sA, sB))
a('v_lshl_add_u32 v240, v0, 2, s%d' % sA)
a('s_mov_b32 s%d, 0x3fff3fff' % sMK)
a('s_mov_b32 s%d, 0x3fff3fff' % (sMK + 1))
a('s_lshl_b32 s%d, s%d, 2' % (sB, sG))
a('s_add_u32 s%d, s%d, s%d' % (sB, sB, sW))
pair_base(36, L.XB)
a('s_mul_i32 s%d, s%d, 14336' % (sCc, sB))
a('s_add_u32 s36, s36, s%d' % sCc)
a('s_mul_i32 s37, s%d, 14336' % sW)
a('s_add_u32 s37, s37, %d' % L.L_R2)
pair_base(28, L.SB)
a('s_mul_i32 s%d, s%d, 1792' % (sCc, sB))
a('s_add_u32 s28, s28, s%d' % sCc)
a('v_lshlrev_b32 v238, 3, v%d' % V_TOK)
a('v_lshl_add_u32 v238, v%d, 7, v238' % V_G)
a('v_mov_b32 v242, 0x%x' % INV)
a('v_cmp_lt_u32 vcc, 1, v%d' % V_G)
a('v_cndmask_b32 v239, 0, v242, vcc')
a('v_or_b32 v239, v239, v238')
poll(240)
stamp()
for q in range(4):
    a('s_mov_b32 m0, s37')
    a('s_nop 0')
    for k in range(4 if q < 3 else 2):
        a('buffer_load_dwordx4 v1, %s, s36 offen offset:%d sc1 lds' % (srd(S_WS), 1024 * k))
    if q < 3:
        a('s_add_u32 s36, s36, 4096')
        a('s_add_u32 s37, s37, 4096')
x1_mark = a.vm_mark()
CST2 = 244
for i in range(4):
    a('buffer_load_dwordx2 %s, v%d, %s, s28 offen offset:%d sc1' %
      (vr(CSTR + 2 * i, 2) if i < 2 else vr(CST2 + 2 * (i - 2), 2), 239 if i == 3 else 238, srd(S_WS), 512 * i))
cst_mark = a.vm_mark()
a('v_add_u32 v252, %d, v1' % L.L_R2)
a.wait_vm(x1_mark)
a('s_barrier')
stamp()


def c_xread(u):
    b = CX + 16 * (u & 1)
    return ['ds_read_b128 %s, v252 offset:%d' % (vr(b + 4 * t), (t * 14 + u) * 1024) for t in range(4)]


for x in c_xread(0):
    a(x)
r = CSTR
cst_fill = []
for c_ in range(2):
    cst_fill += ['v_add_f32 v%d, v%d, v%d' % (r + c_, r + c_, r + 2 + c_),
                 'v_add_f32 v%d, v%d, v%d' % (CST2 + c_, CST2 + c_, CST2 + 2 + c_),
                 'v_add_f32 v%d, v%d, v%d' % (r + c_, r + c_, CST2 + c_)]
cst_fill += xg_reduce(r, r + 2) + xg_reduce(r + 1, r + 3) + stats_finish(r, r + 1, r + 2, True)
for t in range(4):
    for p in range(2):
        cst_fill += ['v_lshlrev_b32 v%d, 16, v%d' % (CB1 + 4 * t + 2 * p, CB1R + 2 * t + p),
                     'v_and_b32 v%d, 0xffff0000, v%d' % (CB1 + 4 * t + 2 * p + 1, CB1R + 2 * t + p)]
wm = {}
for u in range(14):
    if u >= NRC:
        a.wait_vm(wm[u])
    elif u == 2:
        a.wait_vm(cst_mark)
    a('s_waitcnt lgkmcnt(0)')
    ws_ = CW + (u % NRC) * 16
    xb = CX + 16 * (u & 1)
    mem = {}
    if u < 13:
        for k, x in enumerate(c_xread(u + 1)):
            mem[k] = x
    if 1 <= u and u - 1 + NRC < 14:
        for k, x in enumerate(c_wload(u - 1 + NRC)):
            mem[4 + 3 * k] = x
    fill = []
    if 2 <= u < 6:
        n = (len(cst_fill) + 3) // 4
        fill = cst_fill[(u - 2) * n:(u - 1) * n]
    if u == 7:
        a('s_lshl_b32 s%d, s%d, 7' % (sA, sW))
        a('s_add_u32 s%d, s%d, %d' % (sA, sA, L.L_STC))
        a('v_lshl_add_u32 v240, v%d, 3, s%d' % (V_TOK, sA))
        mem[14] = 'ds_write_b64 v240, %s' % vr(CSTR, 2)
    k = 0
    fi = 0
    for tile in range(4):
        for t in range(4):
            r = CACC + (tile * 4 + t) * 4
            a('%s %s, %s, %s, %s' % (MFMA, vr(r), vr(ws_ + 4 * t), vr(xb + 4 * tile), '0' if u == 0 else vr(r)))
            if k in mem:
                a(mem[k])
                if k == 13 and 1 <= u and u - 1 + NRC < 14:
                    wm[u - 1 + NRC] = a.vm_mark()
            for _ in range(2):
                if fi < len(fill):
                    a(fill[fi])
                    fi += 1
            k += 1
    assert fi == len(fill)
a('s_waitcnt lgkmcnt(0)')
a('s_barrier')
a('v_lshlrev_b32 v240, 3, v%d' % V_TOK)
a('v_add_u32 v240, %d, v240' % L.L_STC)
for t in range(4):
    a('ds_read_b64 %s, v240 offset:%d' % (vr(CMR + 2 * t, 2), 128 * t))
stamp()
GA = 2.0 * 0.7978845608028654 * 1.4426950408889634
GB = GA * 0.044715
a('s_mov_b32 s34, %s' % f2h(-GB))
a('s_mov_b32 s35, %s' % f2h(-GB))
GT = 66
a('v_mov_b32 v%d, %s' % (GT + 30, f2h(-GA)))
a('v_mov_b32 v%d, %s' % (GT + 31, f2h(-GA)))


def h_base():
    pair_base(sA, L.H)
    a('s_mul_i32 s%d, s%d, %d' % (sB, sG, 4 * 56 * 1024))
    a('s_add_u32 s%d, s%d, s%d' % (sA, sA, sB))
    a('s_lshl_b32 s%d, s%d, 2' % (sB, sJ))
    a('s_add_u32 s%d, s%d, s%d' % (sB, sB, sW))
    a('s_lshl_b32 s%d, s%d, 11' % (sB, sB))
    a('s_add_u32 s%d, s%d, s%d' % (sA, sA, sB))


def emit_gelu(extra):
    extra = list(extra)
    per = -(-len(extra) // 8)
    for tile in range(4):
        m = CMR + 2 * tile
        for pp in range(2):
            hf = GT + 16 + 4 * ((tile * 2 + pp) & 1)
            zs = [(CACC + (tile * 4 + 2 * pp + k) * 4 + 2 * p, 2 * pp + k, p, GT + 2 * (k * 2 + p), hf + 2 * k + p)
                  for k in range(2) for p in range(2)]
            left = [per]

            def maybe():
                if extra and left[0] > 0:
                    a(extra.pop(0))
                    left[0] -= 1
            for z, t, p, t0, h in zs:
                a('v_pk_fma_f32 %s, %s, %s, %s op_sel_hi:[1,0,1] neg_lo:[0,1,0] neg_hi:[0,1,0]' %
                  (vr(z, 2), vr(CCS + 4 * t + 2 * p, 2), vr(m, 2), vr(z, 2)))
            for z, t, p, t0, h in zs:
                a('v_pk_fma_f32 %s, %s, %s, %s op_sel:[0,1,0] op_sel_hi:[1,1,1]' %
                  (vr(z, 2), vr(z, 2), vr(m, 2), vr(CB1 + 4 * t + 2 * p, 2)))
            maybe()
            for z, t, p, t0, h in zs:
                a('v_pk_mul_f32 %s, %s, %s' % (vr(t0, 2), vr(z, 2), vr(z, 2)))
            for z, t, p, t0, h in zs:
                a('v_pk_fma_f32 %s, %s, %s, %s' % (vr(t0, 2), vr(t0, 2), 's[34:35]', vr(GT + 30, 2)))
            for z, t, p, t0, h in zs:
                a('v_pk_mul_f32 %s, %s, %s' % (vr(t0, 2), vr(t0, 2), vr(z, 2)))
            maybe()
            for z, t, p, t0, h in zs:
                a('v_exp_f32 v%d, v%d' % (t0, t0))
                a('v_exp_f32 v%d, v%d' % (t0 + 1, t0 + 1))
            maybe()
            for z, t, p, t0, h in zs:
                a('v_pk_add_f32 %s, %s, 1.0 op_sel_hi:[1,0]' % (vr(t0, 2), vr(t0, 2)))
            for z, t, p, t0, h in zs:
                a('v_rcp_f32 v%d, v%d' % (t0, t0))
                a('v_rcp_f32 v%d, v%d' % (t0 + 1, t0 + 1))
            maybe()
            for z, t, p, t0, h in zs:
                a('v_pk_mul_f32 %s, %s, %s' % (vr(t0, 2), vr(t0, 2), vr(z, 2)))
            for z, t, p, t0, h in zs:
                a('v_cvt_pk_bf16_f32 v%d, v%d, v%d' % (h, t0, t0 + 1))
            store('buffer_store_dwordx4 %s, v1, %s, s%d offen offset:%d' % (vr(hf), srd(S_WS), sA, 1024 * pp), sFAST)
        if tile < 3:
            a('s_add_u32 s%d, s%d, %d' % (sA, sA, 56 * 1024))
    assert not extra


a('s_cmp_eq_u32 s%d, 0' % sPAIR)
a('s_cbranch_scc0 L_gelu1')
wd_bases()
h_base()
a('s_waitcnt lgkmcnt(0)')
emit_gelu([wd_load(fi) for fi in range(*WD_CH[1])])
a('s_branch L_gelu_done')
a.label('L_gelu1')
h_base()
a('s_waitcnt lgkmcnt(0)')
emit_gelu([])
a.label('L_gelu_done')
pair_base(sA, L.FC)
a('s_lshl_b32 s%d, s%d, 5' % (sB, sG))
a('s_lshl_b32 s%d, s%d, 2' % (sCc, sJ))
a('s_add_u32 s%d, s%d, s%d' % (sB, sB, sCc))
a('s_add_u32 s%d, s%d, s%d' % (sB, sB, sW))
a('s_lshl_b32 s%d, s%d, 2' % (sB, sB))
a('s_add_u32 s%d, s%d, s%d' % (sA, sA, sB))
a('v_mov_b32 v241, s%d' % sA)
set_flags(241, 1, sFAST)
stamp()

DH, DACC, DRD, DTMP = 2, 114, 178, 210
DRING, DLOOK = 16, 10
a('s_cmp_eq_u32 s%d, 0' % sPAIR)
a('s_cbranch_scc0 L_d_start')
for fi in range(*WD_CH[2]):
    a(wd_load(fi))
a.label('L_d_start')
pair_base(sA, L.FC)
a('s_lshl_b32 s%d, s%d, 7' % (sB, sG))
a('s_add_u32 s%d, s%d, s%d' % (sA, sA, sB))
a('v_lshl_add_u32 v240, v0, 2, s%d' % sA)
a('s_mul_i32 s%d, s%d, 7' % (sB, sW))
a('s_lshl_b32 s%d, 0x7f, s%d' % (sMK, sB))
a('s_mov_b32 s%d, 0' % (sMK + 1))
red_addrs()
publish_setup(L.XA[1], L.SA[1], L.FX[1], False)
a('s_and_b32 s%d, s%d, 1' % (sA, sG))
a('s_lshr_b32 s%d, s%d, 1' % (sB, sW))
a('s_and_b32 s%d, s%d, s%d' % (sA, sA, sB))
a('s_xor_b32 s%d, s%d, 1' % (sA, sA))
a('s_and_b32 s%d, s%d, s%d' % (sPC, sFAST, sA))
pair_base(sA, L.H)
a('s_mul_i32 s%d, s%d, %d' % (sB, sG, 4 * 56 * 1024))
a('s_add_u32 s%d, s%d, s%d' % (sA, sA, sB))
a('s_mul_i32 s%d, s%d, %d' % (sB, sW, 14 * 1024))
a('s_add_u32 s%d, s%d, s%d' % (sO, sA, sB))
quarter_offsets(4, 56 * 1024)
poll(240)
stamp()


def d_hload(q):
    tile, kk = divmod(q, 14)
    return ('buffer_load_dwordx4 %s, v1, %s, s%d offen offset:%d sc1' %
            (vr(DH + (q % DRING) * 4), srd(S_WS), sO + 4 * tile + (kk >> 2), 1024 * (kk & 3)))


hm = {}
for q in range(DLOOK):
    a(d_hload(q))
    hm[q] = a.vm_mark()
a('s_barrier')


def d_tile(tile):
    items = []
    for kk in range(14):
        q = tile * 14 + kk
        for t in range(4):
            r = DACC + (tile * 4 + t) * 4
            pre = [(lambda qq=q: a.wait_vm(hm[qq]))] if t == 0 else []
            post = None
            if t == 0 and q + DLOOK < 56:
                def post(qq=q + DLOOK):
                    a(d_hload(qq))
                    hm[qq] = a.vm_mark()
            items.append((pre, '%s %s, %s, %s, %s' % (MFMA, vr(r), ar((kk * 4 + t) * 4), vr(DH + (q % DRING) * 4),
                                                      '0' if kk == 0 else vr(r)), post))
    return items


def d_out_store(st):
    if st == 0:
        owner_index()
        a('s_mul_i32 s%d, s%d, 14336' % (sPX, sB))
        a('s_lshl_b32 s%d, s%d, 6' % (sA, sA))
        a('s_add_u32 s%d, s%d, s%d' % (sPX, sPX, sA))
        a('v_and_b32 v%d, 15, v0' % V_TOK)
        a('v_lshrrev_b32 v%d, 4, v0' % V_G)
        a('v_mul_u32_u24 v240, 896, v%d' % V_TOK)
        a('v_lshl_add_u32 v240, v%d, 3, v240' % V_G)
    else:
        a('s_add_u32 s%d, s%d, %d' % (sPX, sPX, 2 * 14336))
    a('buffer_store_dwordx2 %s, v240, %s, s%d offen' % (vr(DRD, 2), srd(S_OUT), sPX))
    a('buffer_store_dwordx2 %s, v240, %s, s%d offen offset:32' % (vr(DRD + 2, 2), srd(S_OUT), sPX))


def d_fin(st):
    owner_finish(st, True, DRD, DTMP)
    fin, done = newlab('L_dfin'), newlab('L_ddone')
    a('s_cmp_eq_u32 s%d, 0' % sPAIR)
    a('s_cbranch_scc0 %s' % fin)
    n0 = a.vm_issued
    publish_x(st, DRD, DTMP)
    a('s_branch %s' % done)
    a.label(fin)
    n1 = a.vm_issued
    d_out_store(st)
    a.vm_issued = n1
    a.label(done)
    a('s_nop 1')


ksplit_phase(DACC, DRD, DTMP, True, d_tile, d_fin)
stamp()
a('s_cmp_eq_u32 s%d, 0' % sPAIR)
a('s_cbranch_scc0 L_next_pair')
publish_flags()
a.label('L_next_pair')
stamp()
a('s_add_u32 s%d, s%d, 1' % (sPAIR, sPAIR))
a('s_cmp_lt_u32 s%d, 2' % sPAIR)
a('s_cbranch_scc1 L_pair')

a('s_cmp_eq_u32 s2, 0')
a('s_cbranch_scc0 L_noepoch')
a('s_cmp_eq_u32 s%d, 0' % sW)
a('s_cbranch_scc0 L_noepoch')
a('buffer_load_dword v2, off, %s, 0 sc1' % srd(S_WS))
a('s_waitcnt vmcnt(0)')
a('v_add_u32 v2, 1, v2')
a('s_mov_b64 exec, 1')
a('buffer_store_dword v2, off, %s, 0 sc1' % srd(S_WS))
a('s_mov_b64 exec, -1')
a.label('L_noepoch')
if PAD:
    a.label('L_padspin')
    a('s_memrealtime s[34:35]')
    a('s_waitcnt lgkmcnt(0)')
    a('s_sub_u32 s34, s34, s0')
    a('s_cmp_lt_u32 s34, %d' % PAD[0])
    a('s_cbranch_scc1 L_padspin')
if DBG:
    a('s_memtime s[32:33]')
    a('s_memrealtime s[34:35]')
    a('s_waitcnt lgkmcnt(0)')
    a('s_sub_u32 s32, s32, s26')
    a('s_sub_u32 s34, s34, s0')
    build_srd(S_TMP, P_DBG, 256)
    a('v_mov_b32 v2, s32')
    a('v_mov_b32 v3, s34')
    a('v_mov_b32 v4, s%d' % sFAST)
    a('v_mov_b32 v5, s%d' % sXCC)
    a('s_lshr_b32 s%d, s2, 6' % sA)
    a('s_lshl_b32 s%d, s%d, 4' % (sA, sA))
    a('s_and_b32 s%d, s2, 63' % sB)
    a('s_or_b32 s%d, s%d, s%d' % (sB, sB, sW))
    a('s_cmp_eq_u32 s%d, 0' % sB)
    a('s_cselect_b32 s%d, s%d, 0x%x' % (sA, sA, INV))
    a('v_mov_b32 v6, s%d' % sA)
    a('s_mov_b64 exec, 1')
    a('buffer_store_dwordx4 v[2:5], v6, %s, 0 offen' % srd(S_TMP))
    a('s_mov_b64 exec, -1')
if DIAG:
    stamp()
    a('s_mov_b32 s%d, 63' % sSTI)
    a('s_lshl_b64 exec, 1, s%d' % sSTI)
    a('v_mov_b32 v%d, s%d' % (V_STAMP, sERR))
    a('s_mov_b32 s%d, 62' % sSTI)
    a('s_lshl_b64 exec, 1, s%d' % sSTI)
    a('v_mov_b32 v%d, s%d' % (V_STAMP, sFAST))
    a('s_mov_b64 exec, -1')
    a('s_lshl_b32 s%d, s2, 2' % sA)
    a('s_add_u32 s%d, s%d, s%d' % (sA, sA, sW))
    a('s_lshl_b32 s%d, s%d, 8' % (sA, sA))
    a('v_lshlrev_b32 v2, 2, v0')
    a('s_add_u32 s%d, s%d, %d' % (sA, sA, L.WS_USED))
    a('s_mov_b32 s%d, 0x%x' % (S_WS + 2, L.WS_USED + 256 * 1024))
    a('buffer_store_dword v%d, v2, %s, s%d offen' % (V_STAMP, srd(S_WS), sA))
a.label('L_end')
a('s_endpgm')

a.finalize()
body = a.text()

import os
hdr = open(os.path.join(os.path.dirname(os.path.abspath(__file__)), 'header.txt')).read()
out = hdr + '; @launch grid=(256,1,1) block=(256,1,1) lds=%d\n' % L.LDS_BYTES
out += '.amdgcn_target "amdgcn-amd-amdhsa--gfx950"\n.text\n.globl %s_kernel\n.p2align 8\n.type %s_kernel,@function\n%s_kernel:\n' % (NAME, NAME, NAME)
out += body
out += '''.section .rodata,"a"
.p2align 6
.amdhsa_kernel %s_kernel
  .amdhsa_next_free_vgpr 512
  .amdhsa_next_free_sgpr 102
  .amdhsa_accum_offset 256
  .amdhsa_group_segment_fixed_size 0
  .amdhsa_kernarg_size 88
  .amdhsa_user_sgpr_count 2
  .amdhsa_user_sgpr_kernarg_segment_ptr 1
  .amdhsa_system_sgpr_workgroup_id_x 1
.end_amdhsa_kernel
''' % NAME
sys.stdout.write(out)
```

```python
import struct
import sys
from asmlib import Asm
import layout as L

NAME = 'interleave_layers__sliding_local_dilated__mixer_channel_mlp__prompt'
DIAG = '--diag' in sys.argv
FASTMODE = ([x[7:] for x in sys.argv if x.startswith('--fast=')] + ['none'])[0]
NOFAST = FASTMODE == 'none'
PAD = [int(x[6:]) for x in sys.argv if x.startswith('--pad=')]
DBG = '--dbg' in sys.argv or bool(PAD)
SPIN_LIMIT = 200000
INV = 0x80000000

a = Asm()

sXCC = 3
S_WS, S_TMP, S_B1, S_OUT = 4, 8, 12, 16
P_X, P_WQKV, P_WO, P_BX, P_W1, P_B1, P_W2, P_B2, P_OUT, P_DBG, P_WSP = 20, 22, 24, 26, 28, 30, 32, 34, 36, 38, 40
sS, sC, sG, sJ, sW, sT, sPAIR, sSPIN = 42, 43, 44, 45, 46, 47, 48, 49
sM1 = 50
sM2 = 58
sM0 = 66
sO = 74
sA, sB, sCc, sD = 90, 91, 92, 93
sMK = 94
sTS = 96
sGT = 98
sERR = 99
sSTI = 100
sFAST = 101
sFD = 27
sPFC = 26


def srd(n):
    return 's[%d:%d]' % (n, n + 3)


def vr(n, k=4):
    return 'v[%d:%d]' % (n, n + k - 1)


def ar(n, k=4):
    return 'a[%d:%d]' % (n, n + k - 1)


def sp(n):
    return 's[%d:%d]' % (n, n + 1)


def f2h(x):
    return '0x%08x' % struct.unpack('<I', struct.pack('<f', x))[0]


V_T, V_STAMP = 254, 255
V_TOK, V_G = 250, 251
MFMA = 'v_mfma_f32_16x16x32_bf16'


def stamp():
    if not DIAG:
        return
    a('s_memtime %s' % sp(sTS))
    a('s_waitcnt lgkmcnt(0)')
    a('s_lshl_b64 exec, 1, s%d' % sSTI)
    a('v_mov_b32 v%d, s%d' % (V_STAMP, sTS))
    a('s_mov_b64 exec, -1')
    a('s_add_u32 s%d, s%d, 1' % (sSTI, sSTI))


lab_no = [0]


def newlab(p):
    lab_no[0] += 1
    return '%s_%d' % (p, lab_no[0])


def build_srd(dst, ptr, nbytes):
    a('s_mov_b32 s%d, s%d' % (dst, ptr))
    a('s_and_b32 s%d, s%d, 0xffff' % (dst + 1, ptr + 1))
    a('s_mov_b32 s%d, 0x%x' % (dst + 2, nbytes))
    a('s_mov_b32 s%d, 0x20000' % (dst + 3))


def poll(voff):
    lab, done = newlab('L_poll'), newlab('L_polldone')
    a('s_mov_b64 exec, %s' % sp(sMK))
    a('s_mov_b32 s%d, 0' % sSPIN)
    a.label(lab)
    a('buffer_load_dword v253, v%d, %s, 0 offen sc1' % (voff, srd(S_WS)))
    a('s_waitcnt vmcnt(0)')
    a('v_cmp_ne_u32 vcc, s%d, v253' % sT)
    a('s_nop 4')
    a('s_cbranch_vccz %s' % done)
    a('s_add_u32 s%d, s%d, 1' % (sSPIN, sSPIN))
    a('s_cmp_lt_u32 s%d, %d' % (sSPIN, SPIN_LIMIT))
    a('s_cbranch_scc1 %s' % lab)
    a('s_add_u32 s%d, s%d, 1' % (sERR, sERR))
    a.label(done)
    a('s_mov_b64 exec, -1')


sMK2 = 30


def early_issue(dst, voff):
    a('s_mov_b64 exec, %s' % sp(sMK2))
    a('buffer_load_dword v%d, v%d, %s, 0 offen sc1' % (dst, voff, srd(S_WS)))
    a('s_mov_b64 exec, -1')
    return a.vm_mark()


def early_check(dst, voff, mark):
    ok = newlab('L_early')
    a.wait_vm(mark)
    a('s_mov_b64 exec, %s' % sp(sMK2))
    a('v_cmp_ne_u32 vcc, s%d, v%d' % (sT, dst))
    a('s_mov_b64 exec, -1')
    a('s_nop 2')
    a('s_cbranch_vccz %s' % ok)
    a('s_mov_b64 %s, %s' % (sp(sMK), sp(sMK2)))
    n = a.vm_issued
    poll(voff)
    a.vm_issued = n
    a.label(ok)


def store(fmt, cond=None):
    if cond is None or NOFAST:
        a(fmt + ' sc1')
        return
    slow, done = newlab('L_slow'), newlab('L_st')
    a('s_cmp_eq_u32 s%d, 0' % cond)
    a('s_cbranch_scc1 %s' % slow)
    a(fmt)
    a('s_branch %s' % done)
    a.label(slow)
    a(fmt + ' sc1')
    a.vm_issued -= 1
    a.label(done)


def set_flags(voff, nlanes, cond=None, val=V_T, between=()):
    mark = a.vm_mark()
    for x in between:
        a(x)
    a.wait_vm(mark)
    a('s_mov_b64 exec, %d' % ((1 << nlanes) - 1))
    store('buffer_store_dword v%d, v%d, %s, 0 offen' % (val, voff, srd(S_WS)), cond)
    a('s_mov_b64 exec, -1')


def xg_reduce(x, t, op='v_add_f32'):
    return ['v_mov_b32 v%d, v%d' % (t, x),
            'v_permlane32_swap_b32 v%d, v%d' % (x, t),
            '%s v%d, v%d, v%d' % (op, x, x, t),
            'v_mov_b32 v%d, v%d' % (t, x),
            'v_permlane16_swap_b32 v%d, v%d' % (x, t),
            '%s v%d, v%d, v%d' % (op, x, x, t)]


EPS = 1e-5


def stats_finish(s1, s2, t, double_ln):
    o = ['v_mul_f32 v%d, %s, v%d' % (s1, f2h(1.0 / 448), s1),
         'v_mul_f32 v%d, %s, v%d' % (s2, f2h(1.0 / 448), s2),
         'v_fma_f32 v%d, -v%d, v%d, v%d' % (s2, s1, s1, s2),
         'v_max_f32 v%d, 0, v%d' % (s2, s2),
         'v_add_f32 v%d, %s, v%d' % (t, f2h(EPS), s2),
         'v_rsq_f32 v%d, v%d' % (t, t)]
    if not double_ln:
        o += ['v_mov_b32 v%d, v%d' % (s2, t)]
    else:
        o += ['v_mul_f32 v%d, v%d, v%d' % (s2, s2, t),
              'v_fmaak_f32 v%d, v%d, v%d, %s' % (s2, s2, t, f2h(EPS)),
              'v_rsq_f32 v%d, v%d' % (s2, s2),
              'v_mul_f32 v%d, v%d, v%d' % (s2, s2, t)]
    return o


def pair_base(dst, arr):
    a('s_mul_i32 s%d, s%d, %d' % (dst, sPAIR, arr[1] - arr[0]))
    a('s_add_u32 s%d, s%d, %d' % (dst, dst, arr[0]))


def quarter_offsets(n, stride):
    for t in range(n):
        if t:
            a('s_add_u32 s%d, s%d, %d' % (sO + 4 * t, sO + 4 * (t - 1), stride))
        for q in range(1, 4):
            a('s_add_u32 s%d, s%d, %d' % (sO + 4 * t + q, sO + 4 * t, 4096 * q))


a('s_cmp_ge_u32 s2, 256')
a('s_cbranch_scc1 L_end')
a('s_load_dwordx16 s[20:35], s[0:1], 0')
a('s_load_dwordx4 s[36:39], s[0:1], 64')
a('s_load_dwordx2 s[40:41], s[0:1], 80')
a('s_getreg_b32 s%d, hwreg(HW_REG_XCC_ID, 0, 4)' % sXCC)
a('s_and_b32 s%d, s2, 7' % sA)
a('s_lshr_b32 s%d, s2, 3' % sB)
a('s_lshr_b32 s%d, s%d, 4' % (sCc, sB))
a('s_lshl_b32 s%d, s%d, 1' % (sS, sA))
a('s_add_u32 s%d, s%d, s%d' % (sS, sS, sCc))
a('s_and_b32 s%d, s%d, 15' % (sC, sB))
a('s_lshr_b32 s%d, s%d, 3' % (sA, sC))
a('s_lshl_b32 s%d, s%d, 1' % (sG, sS))
a('s_add_u32 s%d, s%d, s%d' % (sG, sG, sA))
a('s_and_b32 s%d, s%d, 7' % (sJ, sC))
a('s_mov_b32 s%d, 0' % sERR)
a('v_lshrrev_b32 v2, 6, v0')
a('v_and_b32 v0, 63, v0')
a('v_readfirstlane_b32 s%d, v2' % sW)
a('v_lshlrev_b32 v1, 4, v0')
if DIAG:
    a('v_mov_b32 v%d, 0' % V_STAMP)
    a('s_mov_b32 s%d, 0' % sSTI)
stamp()
a('v_and_b32 v%d, 15, v0' % V_TOK)
a('v_lshrrev_b32 v%d, 4, v0' % V_G)
sSTG = 40
a('s_waitcnt lgkmcnt(0)')
if DBG:
    a('s_memtime s[26:27]')
    a('s_memrealtime s[0:1]')
    a('s_waitcnt lgkmcnt(0)')
build_srd(S_WS, P_WSP, L.WS_USED)
a('buffer_load_dword v%d, off, %s, 0 sc1' % (V_T, srd(S_WS)))
a('s_lshl_b32 s%d, s%d, 14' % (sSTG, sW))
a('s_add_u32 s%d, s%d, %d' % (sSTG, sSTG, L.L_R2))

build_srd(S_TMP, P_X, 2048 * 896)
a('v_mul_u32_u24 v2, 896, v%d' % V_TOK)
a('v_lshl_add_u32 v2, v%d, 3, v2' % V_G)
a('s_lshr_b32 s%d, s%d, 1' % (sA, sC))
a('s_lshl_b32 s%d, s%d, 3' % (sB, sS))
a('s_add_u32 s%d, s%d, s%d' % (sO + 0, sA, sB))
a('s_and_b32 s%d, s%d, 1' % (sA, sC))
a('s_mul_i32 s%d, s%d, 7' % (sA, sA))
a('s_add_u32 s%d, s%d, s%d' % (sO + 1, sA, sW))
a('s_cmp_lt_u32 s%d, 3' % sW)
a('s_cselect_b32 s%d, 0, 0x%x' % (sO + 2, INV))
a('s_mul_i32 s%d, s%d, 14336' % (sA, sO + 0))
a('s_lshl_b32 s%d, s%d, 6' % (sB, sO + 1))
a('s_add_u32 s%d, s%d, s%d' % (sA, sA, sB))
a('v_or_b32 v3, s%d, v2' % (sO + 2))
a('buffer_load_dwordx2 v[10:11], v2, %s, s%d offen' % (srd(S_TMP), sA))
a('buffer_load_dwordx2 v[12:13], v2, %s, s%d offen offset:32' % (srd(S_TMP), sA))
a('buffer_load_dwordx2 v[14:15], v3, %s, s%d offen offset:256' % (srd(S_TMP), sA))
a('buffer_load_dwordx2 v[16:17], v3, %s, s%d offen offset:288' % (srd(S_TMP), sA))

build_srd(S_TMP, P_WQKV, 448 * 2688)
qMAT, qU, qINV = sO + 3, sO + 4, sO + 5
a('s_lshl_b32 s%d, s%d, 4' % (sA, sW))
a('s_add_u32 s%d, s%d, s%d' % (sA, sA, sS))
a('s_cmp_lt_u32 s%d, 42' % sA)
a('s_cselect_b32 s%d, 0, 0x%x' % (qINV, INV))
a('s_min_u32 s%d, s%d, 41' % (sA, sA))
a('s_mul_i32 s%d, s%d, 4682' % (qMAT, sA))
a('s_lshr_b32 s%d, s%d, 16' % (qMAT, qMAT))
a('s_mul_i32 s%d, s%d, 14' % (sB, qMAT))
a('s_sub_u32 s%d, s%d, s%d' % (qU, sA, sB))
a('s_mul_i32 s%d, s%d, %d' % (sA, qU, 32 * 2688))
a('s_mul_i32 s%d, s%d, 896' % (sB, qMAT))
a('s_add_u32 s%d, s%d, s%d' % (sA, sA, sB))
a('s_mul_i32 s%d, s%d, 56' % (sB, sC))
a('s_add_u32 s%d, s%d, s%d' % (sA, sA, sB))
a('v_lshrrev_b32 v4, 2, v0')
a('v_mul_u32_u24 v4, 2688, v4')
a('v_and_b32 v5, 3, v0')
a('v_lshl_add_u32 v4, v5, 4, v4')
a('v_or_b32 v4, s%d, v4' % qINV)
a('s_mov_b32 m0, s%d' % sSTG)
a('s_add_u32 s%d, s%d, %d' % (sB, sA, 16 * 2688))
a('buffer_load_dwordx4 v4, %s, s%d offen lds' % (srd(S_TMP), sA))
a('s_add_u32 m0, s%d, 1024' % sSTG)
a('s_nop 0')
a('buffer_load_dwordx4 v4, %s, s%d offen lds' % (srd(S_TMP), sB))

bINV, bDST, bSTR = 20, 21, 22
a('s_lshl_b32 s%d, s%d, 5' % (sA, sW))
a('s_add_u32 s%d, s%d, s%d' % (sA, sA, sG))
a('s_cmp_lt_u32 s%d, 72' % sA)
a('s_cselect_b32 s%d, 0, 0x%x' % (bINV, INV))
a('s_cmp_eq_u32 s%d, 7' % sJ)
a('s_cselect_b32 s%d, 0x%x, s%d' % (bINV, INV, bINV))
a('s_min_u32 s%d, s%d, 71' % (sA, sA))
a('s_min_u32 s%d, s%d, 6' % (sD, sJ))
a('s_cmp_lt_u32 s%d, 16' % sA)
a('s_cselect_b32 s%d, s%d, s%d' % (S_TMP, P_WO, P_W2))
a('s_cselect_b32 s%d, s%d, s%d' % (S_TMP + 1, P_WO + 1, P_W2 + 1))
a('s_mov_b32 s%d, 0x%x' % (S_TMP + 2, 1792 * 896))
a('s_cselect_b32 s%d, 0x%x, s%d' % (S_TMP + 2, 448 * 896, S_TMP + 2))
a('s_cselect_b32 s%d, 28, 32' % sB)
a('s_cselect_b32 s%d, 0, 16' % sCc)
a('s_mov_b32 s%d, %d' % (bSTR, 56 * 1024))
a('s_cselect_b32 s%d, %d, s%d' % (bSTR, 16 * 1024, bSTR))
a('s_mov_b32 s%d, %d' % (bDST, L.WD))
a('s_cselect_b32 s%d, %d, s%d' % (bDST, L.WB, bDST))
a('s_cselect_b32 s%d, 0x%x, 0' % (sO + 9, INV))
a('s_and_b32 s%d, s%d, 0xffff' % (S_TMP + 1, S_TMP + 1))
a('s_mov_b32 s%d, 0x20000' % (S_TMP + 3))
a('s_sub_u32 s%d, s%d, s%d' % (sA, sA, sCc))
a('s_lshl_b32 s%d, s%d, 10' % (sCc, sA))
a('s_add_u32 s%d, s%d, s%d' % (bDST, bDST, sCc))
a('s_lshl_b32 s%d, s%d, 2' % (sCc, sD))
a('s_mul_i32 s%d, s%d, s%d' % (sCc, sCc, bSTR))
a('s_add_u32 s%d, s%d, s%d' % (bDST, bDST, sCc))
a('s_mul_i32 s%d, s%d, s%d' % (sA, sA, sB))
a('s_mul_i32 s%d, s%d, 896' % (sA, sA))
a('s_lshl_b32 s%d, s%d, 7' % (sB, sD))
a('s_add_u32 s%d, s%d, s%d' % (sA, sA, sB))
a('v_lshrrev_b32 v6, 3, v0')
a('v_mul_u32_u24 v6, 896, v6')
a('v_and_b32 v5, 7, v0')
a('v_lshl_add_u32 v6, v5, 4, v6')
a('v_or_b32 v6, s%d, v6' % bINV)
a('v_cmp_lt_u32 vcc, 31, v0')
a('v_mov_b32 v7, s%d' % (sO + 9))
a('v_cndmask_b32 v7, 0, v7, vcc')
a('v_or_b32 v7, v7, v6')
for q in range(4):
    a('s_add_u32 m0, s%d, %d' % (sSTG, 2048 + 1024 * q))
    if q:
        a('s_add_u32 s%d, s%d, %d' % (sA, sA, 8 * 896))
    else:
        a('s_nop 0')
    a('buffer_load_dwordx4 v%d, %s, s%d offen lds' % (7 if q == 3 else 6, srd(S_TMP), sA))

build_srd(S_TMP, P_W1, 448 * 3584)
cINV, cNT, cI12 = 23, 24, 25
a('s_cmp_lt_u32 s%d, 16' % sG)
a('s_cselect_b32 s%d, 0, 0x%x' % (cINV, INV))
a('s_cmp_eq_u32 s%d, 7' % sJ)
a('s_cselect_b32 s%d, 0x%x, s%d' % (cINV, INV, cINV))
a('s_min_u32 s%d, s%d, 6' % (sD, sJ))
a('s_lshl_b32 s%d, s%d, 4' % (cNT, sD))
a('s_and_b32 s%d, s%d, 15' % (sA, sG))
a('s_add_u32 s%d, s%d, s%d' % (cNT, cNT, sA))
a('s_cmp_lt_u32 s%d, 2' % sW)
a('s_cselect_b32 s%d, s%d, 0x%x' % (cI12, cINV, INV))
a('v_lshrrev_b32 v8, 1, v0')
a('v_mul_u32_u24 v8, 3584, v8')
a('v_and_b32 v5, 1, v0')
a('v_lshl_add_u32 v8, v5, 4, v8')
a('v_or_b32 v9, s%d, v8' % cI12)
a('v_or_b32 v8, s%d, v8' % cINV)
a('s_lshl_b32 s%d, s%d, 5' % (sB, cNT))
for i in range(4):
    a('s_add_u32 s%d, s%d, %d' % (sA, sW, 4 * i))
    a('s_min_u32 s%d, s%d, 13' % (sA, sA))
    a('s_mul_i32 s%d, s%d, %d' % (sA, sA, 32 * 3584))
    a('s_add_u32 s%d, s%d, s%d' % (sA, sA, sB))
    a('s_add_u32 m0, s%d, %d' % (sSTG, 6144 + 1024 * i))
    a('s_nop 0')
    a('buffer_load_dwordx4 v%d, %s, s%d offen lds' % (9 if i == 3 else 8, srd(S_TMP), sA))
build_srd(S_B1, P_B1, 1792 * 2)
build_srd(S_OUT, P_OUT, 2048 * 896)
a('v_bfe_u32 v18, v0, 2, 2')
a('v_lshl_add_u32 v18, v%d, 2, v18' % V_G)
a('v_and_b32 v19, 3, v0')
a('v_lshlrev_b32 v19, 3, v19')
a('s_waitcnt vmcnt(8)')
stamp()

a('s_mov_b32 s%d, 0x9E3779B1' % sA)
a('v_mul_lo_u32 v%d, v%d, s%d' % (V_T, V_T, sA))
a('v_add_u32 v%d, 0x7F4A7C15, v%d' % (V_T, V_T))
a('v_and_b32 v%d, -16, v%d' % (V_T, V_T))
a('v_lshl_add_u32 v20, v18, 6, v19')
a('v_add_u32 v20, s%d, v20' % sSTG)
for hf in range(2):
    a('ds_read_b64_tr_b16 %s, v20 offset:%d' % (vr(24 + 4 * hf, 2), 32 * hf))
    a('ds_read_b64_tr_b16 %s, v20 offset:%d' % (vr(26 + 4 * hf, 2), 32 * hf + 1024))
a('v_readfirstlane_b32 s%d, v%d' % (sT, V_T))
a('s_mul_i32 s%d, s%d, 14' % (sA, sO + 0))
a('s_add_u32 s%d, s%d, s%d' % (sA, sA, sO + 1))
a('s_lshl_b32 s%d, s%d, 10' % (sB, sA))
a('s_add_u32 s%d, s%d, %d' % (sB, sB, L.XA[0]))
a('v_or_b32 v3, s%d, v1' % (sO + 2))
a('buffer_store_dwordx4 v[10:13], v1, %s, s%d offen sc1' % (srd(S_WS), sB))
a('s_add_u32 s%d, s%d, 4096' % (sB, sB))
a('buffer_store_dwordx4 v[14:17], v3, %s, s%d offen sc1' % (srd(S_WS), sB))
a('v_cmp_gt_u32 vcc, 12, v%d' % V_TOK)
a('s_mul_i32 s%d, s%d, 84' % (sB, sC))
a('s_mul_i32 s%d, s%d, 28' % (sCc, qMAT))
a('s_add_u32 s%d, s%d, s%d' % (sB, sB, sCc))
a('s_add_u32 s%d, s%d, s%d' % (sB, sB, qU))
a('s_lshl_b32 s%d, s%d, 10' % (sB, sB))
a('s_add_u32 s%d, s%d, %d' % (sB, sB, L.WA))
a('v_or_b32 v4, s%d, v1' % qINV)
a('s_waitcnt lgkmcnt(0)')
for p in range(4):
    a('v_cndmask_b32 v%d, 0, v%d, vcc' % (28 + p, 28 + p))
a('buffer_store_dwordx4 v[24:27], v4, %s, s%d offen sc1' % (srd(S_WS), sB))
a('s_add_u32 s%d, s%d, %d' % (sB, sB, 14 * 1024))
a('buffer_store_dwordx4 v[28:31], v4, %s, s%d offen sc1' % (srd(S_WS), sB))
a('v_mov_b32 v2, 0x3f803f80')
for k in range(2):
    x, s1, s2 = 10 + 4 * k, 110 + 2 * k, 111 + 2 * k
    a('v_mov_b32 v%d, 0' % s1)
    a('v_mov_b32 v%d, 0' % s2)
    for p in range(4):
        a('v_dot2_f32_bf16 v%d, v%d, v2, v%d' % (s1, x + p, s1))
        a('v_dot2_f32_bf16 v%d, v%d, v%d, v%d' % (s2, x + p, x + p, s2))
    for t in xg_reduce(s1, 114) + xg_reduce(s2, 115):
        a(t)
a('s_lshl_b32 s%d, s%d, 7' % (sB, sA))
a('s_add_u32 s%d, s%d, %d' % (sB, sB, L.SA[0]))
a('v_lshlrev_b32 v2, 3, v%d' % V_TOK)
a('v_or_b32 v3, s%d, v2' % (sO + 2))
a('s_mov_b64 exec, 0xffff')
a('buffer_store_dwordx2 v[110:111], v2, %s, s%d offen sc1' % (srd(S_WS), sB))
a('buffer_store_dwordx2 v[112:113], v3, %s, s%d offen offset:512 sc1' % (srd(S_WS), sB))
a('s_mov_b64 exec, -1')
a('s_lshl_b32 s%d, s%d, 4' % (sA, sO + 0))
a('s_add_u32 s%d, s%d, s%d' % (sA, sA, sO + 1))
a('s_lshl_b32 s%d, s%d, 2' % (sA, sA))
a('s_add_u32 s%d, s%d, %d' % (sA, sA, L.FX[0]))
a('v_lshlrev_b32 v2, 4, v0')
a('v_add_u32 v2, s%d, v2' % sA)
a('v_cmp_eq_u32 vcc, 1, v0')
a('v_mov_b32 v3, s%d' % (sO + 2))
a('v_cndmask_b32 v3, 0, v3, vcc')
a('v_or_b32 v2, v2, v3')
a('s_lshl_b32 s%d, s%d, 6' % (sA, sC))
a('s_lshl_b32 s%d, s%d, 2' % (sB, sS))
a('s_add_u32 s%d, s%d, s%d' % (sA, sA, sB))
a('s_add_u32 s%d, s%d, s%d' % (sA, sA, sW))
a('s_lshl_b32 s%d, s%d, 2' % (sA, sA))
a('s_add_u32 s%d, s%d, %d' % (sA, sA, L.FQ))
a('v_mov_b32 v3, s%d' % sA)
a('v_cmp_eq_u32 vcc, 2, v0')
a('v_cndmask_b32 v2, v2, v3, vcc')
a('s_lshl_b32 s%d, s%d, 4' % (sA, sS))
a('s_add_u32 s%d, s%d, s%d' % (sA, sA, sC))
a('s_lshl_b32 s%d, s%d, 2' % (sA, sA))
a('s_add_u32 s%d, s%d, %d' % (sA, sA, L.FXC))
a('s_cmp_eq_u32 s%d, 0' % sW)
a('s_cselect_b32 s%d, s%d, 0x%x' % (sA, sA, INV))
a('v_mov_b32 v3, s%d' % sA)
a('v_cmp_eq_u32 vcc, 3, v0')
a('v_cndmask_b32 v2, v2, v3, vcc')
a('v_or_b32 v3, s%d, v%d' % (sXCC, V_T))
a('v_cndmask_b32 v3, v%d, v3, vcc' % V_T)
set_flags(2, 4, None, 3)
stamp()

a('v_and_b32 v2, 1, v%d' % V_TOK)
a('v_lshlrev_b32 v3, 2, v%d' % V_G)
a('v_add_u32 v6, 2, v%d' % V_TOK)
for i in range(4):
    a('v_add_u32 v4, %d, v3' % i)
    a('v_cmp_eq_u32 vcc, %d, v2' % (i & 1))
    a('s_mov_b64 %s, vcc' % sp(sMK))
    a('v_cmp_ge_u32 vcc, v4, v6')
    a('s_and_b64 %s, vcc, %s' % (sp(sM1 + 2 * i), sp(sMK)))
    a('v_cmp_le_u32 vcc, v4, v%d' % V_TOK)
    a('s_and_b64 %s, vcc, %s' % (sp(sM2 + 2 * i), sp(sMK)))
a('s_lshl_b32 s%d, s%d, 3' % (sA, sS))
a('s_lshl_b32 s%d, s%d, 1' % (sB, sW))
a('s_add_u32 s%d, s%d, s%d' % (sGT, sA, sB))
a('s_cmp_eq_u32 s%d, 0' % sGT)
for i in range(4):
    a('s_cselect_b64 %s, 0, %s' % (sp(sM0 + 2 * i), sp(sM1 + 2 * i)))
a('s_mov_b32 s%d, 0' % sPAIR)

def a_flag_addr(dst):
    pair_base(sA, L.FX)
    a('s_lshl_b32 s%d, s%d, 6' % (sB, sGT))
    a('s_add_u32 s%d, s%d, s%d' % (sA, sA, sB))
    a('s_sub_u32 s%d, s%d, 64' % (sA, sA))
    a('v_lshl_add_u32 v%d, v0, 2, s%d' % (dst, sA))
    a('s_mov_b32 s%d, 0x3fff3fff' % sMK)
    a('s_mov_b32 s%d, 0x3fff' % (sMK + 1))
    a('s_cmp_eq_u32 s%d, 0' % sGT)
    a('s_cselect_b32 s%d, 0x3fff0000, s%d' % (sMK, sMK))


a('s_lshl_b32 s%d, s%d, 8' % (sA, sC))
a('s_add_u32 s%d, s%d, %d' % (sA, sA, L.FQ))
a('v_lshl_add_u32 v2, v0, 2, s%d' % sA)
a_flag_addr(3)
a('s_lshl_b32 s%d, s%d, 6' % (sA, sS))
a('s_add_u32 s%d, s%d, %d' % (sA, sA, L.FXC - 48 * 4))
a('v_lshl_add_u32 v4, v0, 2, s%d' % sA)
a('v_cmp_lt_u32 vcc, 47, v0')
a('v_cndmask_b32 v3, v3, v4, vcc')
a('v_mov_b32 v5, -1')
a('v_mov_b32 v6, -16')
a('v_cndmask_b32 v5, v5, v6, vcc')
a('s_or_b32 s%d, s%d, 0xffff0000' % (sMK + 1, sMK + 1))
a('s_mov_b32 s%d, 0' % sSPIN)
a.label('L_poll0')
a('buffer_load_dword v7, v2, %s, 0 offen sc1' % srd(S_WS))
a('s_mov_b64 exec, %s' % sp(sMK))
a('buffer_load_dword v8, v3, %s, 0 offen sc1' % srd(S_WS))
a('s_waitcnt vmcnt(0)')
a('v_and_b32 v9, v5, v8')
a('v_cmp_ne_u32 vcc, s%d, v9' % sT)
a('s_mov_b64 exec, -1')
a('s_mov_b64 %s, vcc' % sp(sTS))
a('v_cmp_ne_u32 vcc, s%d, v7' % sT)
a('s_or_b64 vcc, vcc, %s' % sp(sTS))
a('s_cbranch_vccz L_poll0_done')
a('s_add_u32 s%d, s%d, 1' % (sSPIN, sSPIN))
a('s_cmp_lt_u32 s%d, %d' % (sSPIN, SPIN_LIMIT))
a('s_cbranch_scc1 L_poll0')
a('s_add_u32 s%d, s%d, 1' % (sERR, sERR))
a.label('L_poll0_done')
a('v_and_b32 v9, 15, v8')
a('v_cmp_ne_u32 vcc, s%d, v9' % sXCC)
a('s_and_b32 s%d, vcc_hi, 0xffff0000' % sA)
a('s_cmp_eq_u32 s%d, 0' % sA)
a('s_cselect_b32 s%d, 1, 0' % sFAST)
stamp()
a('s_mul_i32 s%d, s%d, %d' % (sA, sC, 84 * 1024))
a('s_mul_i32 s%d, s%d, %d' % (sB, sW, 21 * 1024))
a('s_add_u32 s%d, s%d, s%d' % (sA, sA, sB))
a('s_add_u32 s%d, s%d, %d' % (sA, sA, L.WA))
a('s_add_u32 s%d, s%d, %d' % (sB, sB, L.L_WA))
for q in range(6):
    a('s_mov_b32 m0, s%d' % sB)
    a('s_nop 0')
    for k in range(4 if q < 5 else 1):
        a('buffer_load_dwordx4 v1, %s, s%d offen offset:%d sc1 lds' % (srd(S_WS), sA, 1024 * k))
    if q < 5:
        a('s_add_u32 s%d, s%d, 4096' % (sA, sA))
        a('s_add_u32 s%d, s%d, 4096' % (sB, sB))
wa_mark = a.vm_mark()

AQ, AK, AV = 2, 18, 42
WBUF = [66, 90]
XR = 114
STR = 210
SM, SR = 234, 237
NR, LOOK = 8, 4


def a_xload(u):
    slot = u % NR
    return ['buffer_load_dwordx4 %s, v1, %s, s%d offen offset:%d sc1' %
            (vr(XR + (slot * 3 + t) * 4), srd(S_WS), sO + 4 * t + (u >> 2), 1024 * (u & 3)) for t in range(3)]


def a_issue():
    pair_base(sA, L.XA)
    a('s_mul_i32 s%d, s%d, 14336' % (sB, sGT))
    a('s_add_u32 s%d, s%d, s%d' % (sO + 4, sA, sB))
    a('s_add_u32 s%d, s%d, 14336' % (sO + 8, sO + 4))
    a('s_sub_u32 s%d, s%d, 14336' % (sO + 0, sO + 4))
    a('s_cmp_eq_u32 s%d, 0' % sGT)
    a('s_cselect_b32 s%d, s%d, s%d' % (sO + 0, sO + 4, sO + 0))
    for t in range(3):
        for q in range(1, 4):
            a('s_add_u32 s%d, s%d, %d' % (sO + 4 * t + q, sO + 4 * t, 4096 * q))
    marks = {}
    for u in range(LOOK):
        for t in a_xload(u):
            a(t)
        marks[u] = a.vm_mark()
    return marks


a_issue()
a('v_lshl_add_u32 v20, v18, 7, v19')
a('v_add_u32 v20, s%d, v20' % sSTG)
for t in range(4):
    a('ds_read_b64_tr_b16 %s, v20 offset:%d' % (vr(24 + 4 * t, 2), 2048 + 32 * t))
    a('ds_read_b64_tr_b16 %s, v20 offset:%d' % (vr(26 + 4 * t, 2), 2048 + 32 * t + 2048))
a('v_lshl_add_u32 v21, v18, 5, v19')
a('v_add_u32 v21, s%d, v21' % sSTG)
for i in range(4):
    a('ds_read_b64_tr_b16 %s, v21 offset:%d' % (vr(40 + 4 * i, 2), 6144 + 1024 * i))
    a('ds_read_b64_tr_b16 %s, v21 offset:%d' % (vr(42 + 4 * i, 2), 6144 + 1024 * i + 512))
a('v_or_b32 v6, s%d, v1' % bINV)
a('s_waitcnt lgkmcnt(8)')
for t in range(4):
    a('buffer_store_dwordx4 %s, v6, %s, s%d offen sc1' % (vr(24 + 4 * t), srd(S_WS), bDST))
    if t < 3:
        a('s_add_u32 s%d, s%d, s%d' % (bDST, bDST, bSTR))
a('s_mul_i32 s%d, s%d, 14' % (sA, cNT))
a('s_add_u32 s%d, s%d, s%d' % (sA, sA, sW))
a('s_lshl_b32 s%d, s%d, 10' % (sA, sA))
a('s_add_u32 s%d, s%d, %d' % (sA, sA, L.WC))
a('v_or_b32 v8, s%d, v1' % cINV)
a('v_or_b32 v9, s%d, v1' % cI12)
a('v_mov_b32 v2, 0x3f803f80')
a('v_mov_b32 v100, 0')
a('s_waitcnt lgkmcnt(0)')
for i in range(4):
    a('buffer_store_dwordx4 %s, v%d, %s, s%d offen sc1' % (vr(40 + 4 * i), 9 if i == 3 else 8, srd(S_WS), sA))
    a('s_add_u32 s%d, s%d, 4096' % (sA, sA))
for i in range(4):
    for p in range(4):
        a('v_dot2_f32_bf16 v100, v%d, v2, v100' % (40 + 4 * i + p))
for t in xg_reduce(100, 101):
    a(t)
a('s_lshl_b32 s%d, s%d, 6' % (sA, sW))
a('s_add_u32 s%d, s%d, %d' % (sA, sA, L.L_CSR))
a('v_lshlrev_b32 v2, 2, v%d' % V_TOK)
a('v_add_u32 v3, s%d, v2' % sA)
a('ds_write_b32 v3, v100')
a('s_waitcnt lgkmcnt(0)')
a('s_barrier')
a('v_add_u32 v3, %d, v2' % L.L_CSR)
for i in range(4):
    a('ds_read_b32 v%d, v3 offset:%d' % (104 + i, 64 * i))
a('s_lshl_b32 s%d, s%d, 6' % (sB, cNT))
a('s_add_u32 s%d, s%d, %d' % (sB, sB, L.CSC))
a('s_cmp_eq_u32 s%d, 0' % sW)
a('s_cselect_b32 s%d, s%d, 0x%x' % (sA, cINV, INV))
a('v_or_b32 v2, s%d, v2' % sA)
a('s_waitcnt lgkmcnt(0)')
a('v_add_f32 v104, v104, v105')
a('v_add_f32 v106, v106, v107')
a('v_add_f32 v104, v104, v106')
a('s_mov_b64 exec, 0xffff')
a('buffer_store_dword v104, v2, %s, s%d offen sc1' % (srd(S_WS), sB))
a('s_mov_b64 exec, -1')

a('s_waitcnt vmcnt(0)')
a('s_barrier')
a('s_lshl_b32 s%d, s%d, 5' % (sA, sJ))
a('s_add_u32 s%d, s%d, s%d' % (sA, sA, sG))
a('s_lshl_b32 s%d, s%d, 2' % (sA, sA))
a('s_add_u32 s%d, s%d, %d' % (sA, sA, L.FP))
a('s_cmp_eq_u32 s%d, 0' % sW)
a('s_cselect_b32 s%d, s%d, 0x%x' % (sA, sA, INV))
a('v_mov_b32 v2, s%d' % sA)
a('s_mov_b64 exec, 1')
a('buffer_store_dword v%d, v2, %s, 0 offen sc1' % (V_T, srd(S_WS)))
a('s_mov_b64 exec, -1')
stamp()
for p in range(4):
    a('v_mov_b32 v%d, 0x3f803f80' % (4 + p))
a('s_mul_i32 s%d, s%d, %d' % (sB, sW, 14 * 1024))
a('v_add_u32 v2, s%d, v1' % sB)
a('s_cmp_lt_u32 s%d, 2' % sW)
a('s_cselect_b32 s%d, %d, 0' % (sB, 56 * 1024))
a('v_add_u32 v3, s%d, v2' % sB)
for u in range(7):
    for hh in range(2):
        a('ds_read_b128 %s, v2 offset:%d' % (vr(16 + 8 * u + 4 * hh), 1024 * (2 * u + hh)))
for u in range(5):
    for hh in range(2):
        a('ds_read_b128 %s, v3 offset:%d' % (vr(72 + 8 * u + 4 * hh) if u < 5 else '', 1024 * (2 * u + hh)))
a('s_waitcnt lgkmcnt(10)')
for u in range(14):
    a('%s %s, %s, v[4:7], %s' % (MFMA, vr(8 + 4 * (u & 1)) if False else 'v[8:11]', vr(16 + 4 * u), '0' if u == 0 else 'v[8:11]'))
a('s_waitcnt lgkmcnt(0)')
for u in range(10):
    a('%s v[12:15], %s, v[4:7], %s' % (MFMA, vr(72 + 4 * u), '0' if u == 0 else 'v[12:15]'))
for u in range(4):
    a('ds_read_b128 %s, v3 offset:%d' % (vr(16 + 4 * u), 1024 * (10 + u)))
a('s_waitcnt lgkmcnt(0)')
for u in range(4):
    a('%s v[12:15], %s, v[4:7], v[12:15]' % (MFMA, vr(16 + 4 * u)))
a('v_cmp_eq_u32 vcc, 0, v%d' % V_TOK)
a('s_lshl_b32 s%d, s%d, 6' % (sA, sW))
a('s_add_u32 s%d, s%d, %d' % (sA, sA, L.L_CSA))
a('v_lshl_add_u32 v3, v%d, 4, s%d' % (V_G, sA))
a('s_mov_b64 exec, vcc')
a('ds_write_b128 v3, v[8:11]')
a('s_cmp_lt_u32 s%d, 2' % sW)
a('s_cbranch_scc0 L_csa_done')
a('ds_write_b128 v3, v[12:15] offset:256')
a.label('L_csa_done')
a('s_mov_b64 exec, -1')
a('s_waitcnt lgkmcnt(0)')
a('s_barrier')
stamp()
a('s_branch L_a_main')

a.label('L_pair')
a_flag_addr(2)
poll(2)
stamp()
xmark = a_issue()
if DIAG:
    a('s_add_u32 s%d, s%d, 0' % (sSTI, sSTI))
a.label('L_a_main')
if FASTMODE == 'flags':
    a('s_mov_b32 s%d, 0' % sFD)
elif FASTMODE == 'p0':
    a('s_xor_b32 s%d, s%d, 1' % (sFD, sPAIR))
    a('s_and_b32 s%d, s%d, s%d' % (sFD, sFD, sFAST))
else:
    a('s_mov_b32 s%d, s%d' % (sFD, sFAST))
pair_base(sA, L.SA)
a('s_mul_i32 s%d, s%d, 1792' % (sB, sGT))
a('s_add_u32 s%d, s%d, s%d' % (sO + 13, sA, sB))
a('s_add_u32 s%d, s%d, 1792' % (sO + 14, sO + 13))
a('s_sub_u32 s%d, s%d, 1792' % (sO + 12, sO + 13))
a('s_cmp_eq_u32 s%d, 0' % sGT)
a('s_cselect_b32 s%d, s%d, s%d' % (sO + 12, sO + 13, sO + 12))
a('v_and_b32 v%d, 15, v0' % V_TOK)
a('v_lshrrev_b32 v%d, 4, v0' % V_G)
a('v_lshlrev_b32 v240, 3, v%d' % V_TOK)
a('v_lshl_add_u32 v240, v%d, 7, v240' % V_G)
a('v_mov_b32 v242, 0x%x' % INV)
a('v_cmp_lt_u32 vcc, 1, v%d' % V_G)
a('v_cndmask_b32 v241, 0, v242, vcc')
a('v_or_b32 v241, v241, v240')
a('v_add_u32 v243, %d, v1' % (56 * 1024))
a('v_lshlrev_b32 v244, 4, v%d' % V_G)
a('v_add_u32 v244, %d, v244' % L.L_CSA)
a('v_lshlrev_b32 v245, 2, v%d' % V_TOK)
a('v_add_u32 v245, %d, v245' % L.L_CSA)
stat_loads = ['buffer_load_dwordx2 %s, v%d, %s, s%d offen offset:%d sc1' %
              (vr(STR + (t * 4 + i) * 2, 2), 241 if i == 3 else 240, srd(S_WS), sO + 12 + t, 512 * i)
              for t in range(3) for i in range(4)]


def a_wread(u):
    b = WBUF[u & 1]
    o = []
    for p in range(6):
        if p < 4:
            o.append('ds_read_b128 %s, v1 offset:%d' % (vr(b + 4 * p), L.L_WA + (p * 14 + u) * 1024))
        else:
            o.append('ds_read_b128 %s, v243 offset:%d' % (vr(b + 4 * p), L.L_WA + ((p - 4) * 14 + u) * 1024))
    return o


for t in a_wread(0):
    a(t)
stat_fill = []
for t in range(3):
    r = STR + 8 * t
    for c_ in range(2):
        stat_fill += ['v_add_f32 v%d, v%d, v%d' % (r + c_, r + c_, r + 2 + c_),
                      'v_add_f32 v%d, v%d, v%d' % (r + 4 + c_, r + 4 + c_, r + 6 + c_),
                      'v_add_f32 v%d, v%d, v%d' % (r + c_, r + c_, r + 4 + c_)]
    stat_fill += xg_reduce(r, r + 2) + xg_reduce(r + 1, r + 3)
    stat_fill += stats_finish(r, r + 1, r + 2, False)
    stat_fill += ['v_mov_b32 v%d, v%d' % (SM + t, r), 'v_mov_b32 v%d, v%d' % (SR + t, r + 1)]

a('s_lshl_b32 s%d, s%d, 7' % (sA, sJ))
a('s_add_u32 s%d, s%d, %d' % (sA, sA, L.FP))
a('v_lshl_add_u32 v248, v0, 2, s%d' % sA)
a('s_lshr_b32 s%d, s%d, 1' % (sB, sW))
a('s_lshl_b32 s%d, s%d, 2' % (sCc, sG))
a('s_add_u32 s%d, s%d, s%d' % (sB, sB, sCc))
a('s_lshl_b32 s%d, s%d, 4' % (sB, sB))
a('s_and_b32 s%d, s%d, 1' % (sA, sW))
a('s_add_u32 s%d, s%d, s%d' % (sB, sB, sA))
a('s_min_u32 s%d, s%d, 6' % (sA, sJ))
a('s_lshl_b32 s%d, s%d, 1' % (sA, sA))
a('s_add_u32 s%d, s%d, s%d' % (sB, sB, sA))
a('s_lshl_b32 s%d, s%d, 2' % (sB, sB))
a('s_add_u32 s%d, s%d, %d' % (sB, sB, L.FX[0] - 32 * 128))
a('v_lshl_add_u32 v249, v0, 7, s%d' % sB)
a('v_cmp_lt_u32 vcc, 31, v0')
a('v_cndmask_b32 v248, v248, v249, vcc')
a('s_mov_b32 s%d, -1' % sMK2)
a('s_mov_b32 s%d, 3' % (sMK2 + 1))
ep_mark = None
st_mark = None
for u in range(14):
    need = xmark[u]
    if u == 9:
        need = max(need, st_mark)
    a.wait_vm(need)
    a('s_waitcnt lgkmcnt(0)')
    wb = WBUF[u & 1]
    xs = XR + (u % NR) * 12
    mf = []
    cz = (lambda r: '0') if u == 0 else (lambda r: vr(r))
    for t in range(2):
        for hf in range(2):
            r = AQ + (t * 2 + hf) * 4
            mf.append('%s %s, %s, %s, %s' % (MFMA, vr(r), vr(wb + 4 * hf), vr(xs + 4 * (t + 1)), cz(r)))
    for t in range(3):
        for hf in range(2):
            r = AK + (t * 2 + hf) * 4
            mf.append('%s %s, %s, %s, %s' % (MFMA, vr(r), vr(wb + 8 + 4 * hf), vr(xs + 4 * t), cz(r)))
    for t in range(3):
        for hf in range(2):
            r = AV + (t * 2 + hf) * 4
            mf.append('%s %s, %s, %s, %s' % (MFMA, vr(r), vr(xs + 4 * t), vr(wb + 16 + 4 * hf), cz(r)))
    mem = {}
    if u < 13:
        for k, x in enumerate(a_wread(u + 1)):
            mem[k] = x
    else:
        for p in range(4):
            mem[p] = 'ds_read_b128 %s, v244 offset:%d' % (vr(WBUF[0] + 4 * p), 64 * p)
        for d in range(2):
            mem[4 + d] = 'ds_read_b32 v%d, v245 offset:%d' % (WBUF[0] + 16 + d, 64 * (4 + d))
    if u + LOOK < 14:
        xl = a_xload(u + LOOK)
        mem[6], mem[9], mem[12] = xl
    if u < 6:
        mem[8], mem[14] = stat_loads[2 * u], stat_loads[2 * u + 1]
    if u == 11:
        mem[8] = 'EARLY'
    fill = []
    if u >= 9:
        n = (len(stat_fill) + 4) // 5
        fill = stat_fill[(u - 9) * n:(u - 8) * n]
    fi = 0
    for k, m in enumerate(mf):
        a(m)
        if k in mem:
            if mem[k] == 'EARLY':
                ep_mark = early_issue(249, 248)
            else:
                a(mem[k])
            if k == 12 and u + LOOK < 14:
                xmark[u + LOOK] = a.vm_mark()
            if k == 14 and u == 5:
                st_mark = a.vm_mark()
        for _ in range(2):
            if fi < len(fill) and k >= 1:
                a(fill[fi])
                fi += 1
    assert fi == len(fill), (u, fi, len(fill))
stamp()
early_check(249, 248, ep_mark)
BW = 2
a('s_lshl_b32 s%d, s%d, 6' % (sA, sJ))
a('s_lshl_b32 s%d, s%d, 2' % (sB, sW))
a('s_add_u32 s%d, s%d, s%d' % (sA, sA, sB))
a('s_lshl_b32 s%d, s%d, 10' % (sA, sA))
a('s_add_u32 s20, s%d, %d' % (sA, L.WB))
for t in range(1, 4):
    a('s_add_u32 s%d, s20, %d' % (20 + t, 16 * 1024 * t))
wb_loads = ['buffer_load_dwordx4 %s, v1, %s, s%d offen offset:%d sc1' % (vr(BW + (i * 4 + t) * 4), srd(S_WS), 20 + t, 1024 * i)
            for i in range(4) for t in range(4)]
A_RES, A_B2 = 224, 232


def owner_index():
    a('s_lshr_b32 s%d, s%d, 1' % (sB, sW))
    a('s_lshl_b32 s%d, s%d, 2' % (sCc, sG))
    a('s_add_u32 s%d, s%d, s%d' % (sB, sB, sCc))
    a('s_and_b32 s%d, s%d, 1' % (sA, sW))
    a('s_lshl_b32 s%d, s%d, 1' % (sCc, sJ))
    a('s_add_u32 s%d, s%d, s%d' % (sA, sA, sCc))


a('s_cmp_eq_u32 s%d, 0' % sPAIR)
a('s_cbranch_scc0 L_a_nores')
owner_index()
a('s_mul_i32 s%d, s%d, 14' % (sB, sB))
a('s_add_u32 s%d, s%d, s%d' % (sB, sB, sA))
a('s_lshl_b32 s%d, s%d, 10' % (sB, sB))
a('s_add_u32 s%d, s%d, %d' % (sB, sB, L.XA[0]))
a('buffer_load_dwordx4 %s, v1, %s, s%d offen sc1' % (ar(A_RES), srd(S_WS), sB))
a('s_add_u32 s%d, s%d, %d' % (sB, sB, 2 * 14336))
a('buffer_load_dwordx4 %s, v1, %s, s%d offen sc1' % (ar(A_RES + 4), srd(S_WS), sB))
build_srd(S_TMP, P_B2, 896)
a('s_lshl_b32 s%d, s%d, 6' % (sB, sA))
a('v_lshlrev_b32 v240, 3, v%d' % V_G)
a('buffer_load_dwordx2 v[228:229], v240, %s, s%d offen' % (srd(S_TMP), sB))
a('buffer_load_dwordx2 v[230:231], v240, %s, s%d offen offset:32' % (srd(S_TMP), sB))
a.label('L_a_nores')
CSQ = WBUF[0]
a('s_mul_i32 s%d, s%d, 384' % (sA, sW))
a('s_add_u32 s%d, s%d, %d' % (sA, sA, L.L_STA))
a('v_lshl_add_u32 v246, v%d, 2, s%d' % (V_TOK, sA))
a('v_lshl_add_u32 v247, v%d, 4, s%d' % (V_G, sA))
a('s_mov_b64 exec, 0xffff')
for t in range(3):
    a('ds_write_b32 v246, v%d offset:%d' % (SM + t, 128 * t))
    a('ds_write_b32 v246, v%d offset:%d' % (SR + t, 128 * t + 64))
a('s_mov_b64 exec, -1')
MROW, RROW = 114, 126
a('s_waitcnt lgkmcnt(0)')
for t in range(3):
    a('ds_read_b128 %s, v247 offset:%d' % (vr(MROW + 4 * t), 128 * t))
    a('ds_read_b128 %s, v247 offset:%d' % (vr(RROW + 4 * t), 128 * t + 64))
QF, KF, VF = 140, 148, 160
for t in range(2):
    for hf in range(2):
        r = AQ + (t * 2 + hf) * 4
        for i in range(4):
            a('v_fma_f32 v%d, -v%d, v%d, v%d' % (r + i, SM + t + 1, CSQ + 4 * hf + i, r + i))
        for p in range(2):
            a('v_cvt_pk_bf16_f32 v%d, v%d, v%d' % (QF + 4 * t + 2 * hf + p, r + 2 * p, r + 2 * p + 1))
for t in range(3):
    for hf in range(2):
        r = AK + (t * 2 + hf) * 4
        for i in range(4):
            a('v_fma_f32 v%d, -v%d, v%d, v%d' % (r + i, SM + t, CSQ + 8 + 4 * hf + i, r + i))
        for p in range(2):
            a('v_cvt_pk_bf16_f32 v%d, v%d, v%d' % (KF + 4 * t + 2 * hf + p, r + 2 * p, r + 2 * p + 1))
SS = 172
for t in range(2):
    a('%s %s, %s, %s, 0' % (MFMA, vr(SS + 8 * t), vr(KF + 4 * t), vr(QF + 4 * t)))
    a('%s %s, %s, %s, 0' % (MFMA, vr(SS + 8 * t + 4), vr(KF + 4 * t + 4), vr(QF + 4 * t)))
a('s_waitcnt lgkmcnt(0)')
for t in range(3):
    for d in range(2):
        r = AV + (t * 2 + d) * 4
        for i in range(4):
            a('v_fma_f32 v%d, -v%d, v%d, v%d' % (r + i, MROW + 4 * t + i, CSQ + 16 + d, r + i))
        for p in range(2):
            a('v_cvt_pk_bf16_f32 v%d, v%d, v%d' % (VF + 6 * d + 2 * t + p, r + 2 * p, r + 2 * p + 1))
SCALE = (28.0 ** -0.5) * 1.4426950408889634
MX, CC, LS, TMPR = 190, 192, 194, 196
PF = 200
a('v_mov_b32 v198, 0xff800000')
seq = [[], []]
for t in range(2):
    s = SS + 8 * t
    q = seq[t]
    for e in range(8):
        q.append('v_mul_f32 v%d, v%d, v%d' % (s + e, s + e, RROW + 4 * (t + (e >> 2)) + (e & 3)))
    for e in range(8):
        mk = (sM0 if t == 0 else sM1) + 2 * e if e < 4 else sM2 + 2 * (e - 4)
        q.append('v_cndmask_b32 v%d, v198, v%d, %s' % (s + e, s + e, sp(mk)))
    q.append('v_max3_f32 v%d, v%d, v%d, v%d' % (MX + t, s, s + 1, s + 2))
    q.append('v_max3_f32 v%d, v%d, v%d, v%d' % (MX + t, MX + t, s + 3, s + 4))
    q.append('v_max3_f32 v%d, v%d, v%d, v%d' % (MX + t, MX + t, s + 5, s + 6))
    q.append('v_max_f32 v%d, v%d, v%d' % (MX + t, MX + t, s + 7))
    q += xg_reduce(MX + t, TMPR + t, 'v_max_f32')
    q.append('v_mul_f32 v%d, %s, v%d' % (CC + t, f2h(SCALE), SR + t + 1))
    q.append('v_mul_f32 v%d, v%d, v%d' % (MX + t, MX + t, CC + t))
    for e in range(8):
        q.append('v_fma_f32 v%d, v%d, v%d, -v%d' % (s + e, s + e, CC + t, MX + t))
    for e in range(8):
        q.append('v_exp_f32 v%d, v%d' % (s + e, s + e))
    q.append('v_add_f32 v%d, v%d, v%d' % (LS + t, s, s + 1))
    for e in range(2, 8):
        q.append('v_add_f32 v%d, v%d, v%d' % (LS + t, LS + t, s + e))
    q += xg_reduce(LS + t, TMPR + t)
    q.append('v_rcp_f32 v%d, v%d' % (LS + t, LS + t))
    for e in range(8):
        q.append('v_mul_f32 v%d, v%d, v%d' % (s + e, s + e, RROW + 4 * (t + (e >> 2)) + (e & 3)))
    for p in range(4):
        q.append('v_cvt_pk_bf16_f32 v%d, v%d, v%d' % (PF + 4 * t + p, s + 2 * p, s + 2 * p + 1))
merged = [z for xy in zip(*seq) for z in xy]
gap = len(merged) // (len(wb_loads) + 1)
for k, x in enumerate(merged):
    a(x)
    if k % gap == gap - 1 and wb_loads:
        a(wb_loads.pop(0))
assert not wb_loads
OO = 208
for t in range(2):
    for d in range(2):
        a('%s %s, %s, %s, 0' % (MFMA, vr(OO + 8 * t + 4 * d), vr(VF + 6 * d + 2 * t), vr(PF + 4 * t)))
pair_base(sA, L.O)
a('s_lshl_b32 s%d, s%d, 4' % (sB, sGT))
a('s_add_u32 s%d, s%d, s%d' % (sB, sB, sC))
a('s_lshl_b32 s%d, s%d, 10' % (sB, sB))
a('s_add_u32 s%d, s%d, s%d' % (sA, sA, sB))
for t in range(2):
    for e in range(8):
        a('v_mul_f32 v%d, v%d, v%d' % (OO + 8 * t + e, OO + 8 * t + e, LS + t))
    for p in range(4):
        a('v_cvt_pk_bf16_f32 v%d, v%d, v%d' % (PF + 4 * t + p, OO + 8 * t + 2 * p, OO + 8 * t + 2 * p + 1))
    store('buffer_store_dwordx4 %s, v1, %s, s%d offen' % (vr(PF + 4 * t), srd(S_WS), sA), sFD)
    if t == 0:
        a('s_add_u32 s%d, s%d, 16384' % (sA, sA))
pair_base(sA, L.FA)
a('s_lshl_b32 s%d, s%d, 4' % (sB, sGT))
a('s_add_u32 s%d, s%d, s%d' % (sB, sB, sC))
a('s_lshl_b32 s%d, s%d, 2' % (sB, sB))
a('s_add_u32 s%d, s%d, s%d' % (sA, sA, sB))
a('v_lshlrev_b32 v241, 6, v0')
a('v_add_u32 v241, s%d, v241' % sA)
set_flags(241, 2, sFAST)
stamp()
a('s_cmp_eq_u32 s%d, 7' % sJ)
a('s_cbranch_scc1 L_next_pair')


def wd_bases():
    a('s_lshl_b32 s%d, s%d, 2' % (sA, sJ))
    a('s_mul_i32 s%d, s%d, %d' % (sA, sA, 56 * 1024))
    a('s_mul_i32 s%d, s%d, %d' % (sB, sW, 14 * 1024))
    a('s_add_u32 s%d, s%d, s%d' % (sA, sA, sB))
    a('s_add_u32 s%d, s%d, %d' % (sO, sA, L.WD))
    quarter_offsets(4, 56 * 1024)


def wd_load(fi):
    kk, t = fi >> 2, fi & 3
    return ('buffer_load_dwordx4 %s, v1, %s, s%d offen offset:%d sc1' %
            (ar(4 * fi), srd(S_WS), sO + 4 * t + (kk >> 2), 1024 * (kk & 3)))


WD_CH = [(0, 12), (12, 44), (44, 56)]
BO, BACC, BRD, BTMP = 66, 130, 194, 226
a('s_cmp_eq_u32 s%d, 0' % sPAIR)
a('s_cbranch_scc0 L_b_start')
for k in range(4):
    a('v_lshlrev_b32 v236, 16, v%d' % (228 + k))
    a('v_and_b32 v237, 0xffff0000, v%d' % (228 + k))
    a('v_accvgpr_write_b32 a%d, v236' % (A_B2 + 2 * k))
    a('v_accvgpr_write_b32 a%d, v237' % (A_B2 + 2 * k + 1))
wd_bases()
for fi in range(*WD_CH[0]):
    a(wd_load(fi))
a.label('L_b_start')
CACC, CW, CX, CCS, CB1, CB1R, CSTR, CMR = 2, 66, 162, 194, 210, 226, 234, 242
NRC = 6
a('s_lshl_b32 s%d, s%d, 4' % (sA, sJ))
a('s_lshl_b32 s%d, s%d, 2' % (sB, sW))
a('s_add_u32 s%d, s%d, s%d' % (sA, sA, sB))
a('s_mov_b32 s41, s%d' % sA)
a('s_mul_i32 s%d, s%d, %d' % (sB, sA, 14 * 1024))
a('s_add_u32 s%d, s%d, %d' % (sO, sB, L.WC))
quarter_offsets(4, 14 * 1024)


def c_wload(u):
    slot = u % NRC
    return ['buffer_load_dwordx4 %s, v1, %s, s%d offen offset:%d sc1' %
            (vr(CW + (slot * 4 + t) * 4), srd(S_WS), sO + 4 * t + (u >> 2), 1024 * (u & 3)) for t in range(4)]


def red_writes(acc, tile):
    return ['ds_write_b128 v248, %s offset:%d' % (vr(acc + 4 * t), (tile >> 1) * 32768 + (tile & 1) * 4096 + t * 1024)
            for t in range(4)]


def red_reads(st, rd):
    return ['ds_read_b128 %s, v249 offset:%d' % (vr(rd + (b * 2 + k) * 4), st * 32768 + b * 8192 + k * 1024)
            for b in range(4) for k in range(2)]


def owner_finish(st, is_d, rd, tmp):
    res = A_RES + 4 * st
    for p in range(4):
        a('v_accvgpr_read_b32 v%d, a%d' % (tmp + 8 + p, res + p))
    for p in range(4):
        a('v_lshlrev_b32 v%d, 16, v%d' % (tmp + 2 * p, tmp + 8 + p))
        a('v_and_b32 v%d, 0xffff0000, v%d' % (tmp + 2 * p + 1, tmp + 8 + p))
    if is_d:
        for e in range(0, 8):
            a('v_accvgpr_read_b32 v%d, a%d' % (tmp + 8 + e, A_B2 + e))
        for e in range(0, 8, 2):
            a('v_pk_add_f32 %s, %s, %s' % (vr(tmp + e, 2), vr(tmp + e, 2), vr(tmp + 8 + e, 2)))
    a('s_waitcnt lgkmcnt(0)')
    for e in range(0, 8, 2):
        a('v_pk_add_f32 %s, %s, %s' % (vr(rd + e, 2), vr(rd + e, 2), vr(rd + 8 + e, 2)))
        a('v_pk_add_f32 %s, %s, %s' % (vr(rd + 16 + e, 2), vr(rd + 16 + e, 2), vr(rd + 24 + e, 2)))
    for e in range(0, 8, 2):
        a('v_pk_add_f32 %s, %s, %s' % (vr(rd + e, 2), vr(rd + e, 2), vr(rd + 16 + e, 2)))
    for e in range(0, 8, 2):
        a('v_pk_add_f32 %s, %s, %s' % (vr(tmp + e, 2), vr(tmp + e, 2), vr(rd + e, 2)))
    for p in range(4):
        a('v_cvt_pk_bf16_f32 v%d, v%d, v%d' % (rd + p, tmp + 2 * p, tmp + 2 * p + 1))
    for p in range(4):
        a('v_accvgpr_write_b32 a%d, v%d' % (res + p, rd + p))


def owner_stats(tmp, s1, s2, t):
    a('v_pk_add_f32 %s, %s, %s' % (vr(t, 2), vr(tmp, 2), vr(tmp + 2, 2)))
    a('v_pk_add_f32 %s, %s, %s' % (vr(t + 2, 2), vr(tmp + 4, 2), vr(tmp + 6, 2)))
    a('v_pk_add_f32 %s, %s, %s' % (vr(t, 2), vr(t, 2), vr(t + 2, 2)))
    a('v_add_f32 v%d, v%d, v%d' % (s1, t, t + 1))
    a('v_pk_mul_f32 %s, %s, %s' % (vr(t, 2), vr(tmp, 2), vr(tmp, 2)))
    for e in (2, 4, 6):
        a('v_pk_fma_f32 %s, %s, %s, %s' % (vr(t, 2), vr(tmp + e, 2), vr(tmp + e, 2), vr(t, 2)))
    a('v_add_f32 v%d, v%d, v%d' % (s2, t, t + 1))
    for x in xg_reduce(s1, t) + xg_reduce(s2, t + 1):
        a(x)


def red_addrs():
    a('s_lshl_b32 s%d, s%d, 13' % (sA, sW))
    a('s_add_u32 s%d, s%d, %d' % (sA, sA, L.L_R2))
    a('v_add_u32 v248, s%d, v1' % sA)
    a('s_and_b32 s%d, s%d, 1' % (sA, sW))
    a('s_lshl_b32 s%d, s%d, 11' % (sA, sA))
    a('s_lshr_b32 s%d, s%d, 1' % (sB, sW))
    a('s_lshl_b32 s%d, s%d, 12' % (sB, sB))
    a('s_add_u32 s%d, s%d, s%d' % (sA, sA, sB))
    a('s_add_u32 s%d, s%d, %d' % (sA, sA, L.L_R2))
    a('v_add_u32 v249, s%d, v1' % sA)


sPX, sPS, sPF, sPC = 36, 37, 28, 29


def publish_setup(xbase, sbase, fbase, per_pair):
    owner_index()
    a('s_mul_i32 s%d, s%d, 14' % (sCc, sB))
    a('s_add_u32 s%d, s%d, s%d' % (sCc, sCc, sA))
    a('s_lshl_b32 s%d, s%d, 10' % (sPX, sCc))
    a('s_lshl_b32 s%d, s%d, 7' % (sPS, sCc))
    a('s_lshl_b32 s%d, s%d, 4' % (sPF, sB))
    a('s_add_u32 s%d, s%d, s%d' % (sPF, sPF, sA))
    a('s_lshl_b32 s%d, s%d, 2' % (sPF, sPF))
    for dst, arr in ((sPX, xbase), (sPS, sbase), (sPF, fbase)):
        if per_pair:
            pair_base(sD, arr)
            a('s_add_u32 s%d, s%d, s%d' % (dst, dst, sD))
        else:
            a('s_add_u32 s%d, s%d, %d' % (dst, dst, arr))


def publish_x(st, rd, tmp):
    if st == 1:
        a('s_add_u32 s%d, s%d, %d' % (sPX, sPX, 2 * 14336))
        a('s_add_u32 s%d, s%d, %d' % (sPS, sPS, 2 * 1792))
    store('buffer_store_dwordx4 %s, v1, %s, s%d offen' % (vr(rd), srd(S_WS), sPX), sPC)
    owner_stats(tmp, rd + 4, rd + 5, rd + 6)
    a('v_and_b32 v%d, 15, v0' % V_TOK)
    a('v_lshlrev_b32 v%d, 3, v%d' % (rd + 6, V_TOK))
    a('s_mov_b64 exec, 0xffff')
    store('buffer_store_dwordx2 %s, v%d, %s, s%d offen' % (vr(rd + 4, 2), rd + 6, srd(S_WS), sPS), sPC)
    a('s_mov_b64 exec, -1')


def publish_flags(between=()):
    a('v_lshlrev_b32 v241, 7, v0')
    a('v_add_u32 v241, s%d, v241' % sPF)
    set_flags(241, 2, sPFC, V_T, between)


def ksplit_phase(acc, rd, tmp, is_d, tile_mfmas, finish_publish):
    extra = {1: red_writes(acc + 0, 0), 2: red_writes(acc + 16, 1), 3: red_writes(acc + 32, 2) + red_reads(0, rd)}
    for tile in range(4):
        items = tile_mfmas(tile)
        ex = list(extra.get(tile, []))
        n = len(items)
        step = max(1, (n - 4) // max(1, len(ex))) if ex else 1
        for k, (pre, m, post) in enumerate(items):
            for x in pre:
                x()
            a(m)
            if post:
                post()
            elif ex and k >= 3 and (k - 3) % step == 0:
                a(ex.pop(0))
        for x in ex:
            a(x)
        if tile == 2:
            a('s_waitcnt lgkmcnt(0)')
            a('s_barrier')
    for x in red_writes(acc + 48, 3):
        a(x)
    finish_publish(0)
    a('s_waitcnt lgkmcnt(0)')
    a('s_barrier')
    for x in red_reads(1, rd):
        a(x)
    finish_publish(1)


pair_base(sA, L.FA)
a('s_lshl_b32 s%d, s%d, 8' % (sB, sG))
a('s_add_u32 s%d, s%d, s%d' % (sA, sA, sB))
a('v_lshl_add_u32 v240, v0, 2, s%d' % sA)
a('s_lshl_b32 s%d, s%d, 2' % (sB, sW))
a('s_lshl_b32 s%d, 0x000f000f, s%d' % (sMK, sB))
a('s_mov_b32 s%d, s%d' % (sMK + 1, sMK))
red_addrs()
publish_setup(L.XB, L.SB, L.FB, True)
a('s_mov_b32 s%d, s%d' % (sPC, sFD))
a('s_mov_b32 s%d, s%d' % (sPFC, sFAST))
pair_base(sA, L.O)
a('s_lshl_b32 s%d, s%d, 6' % (sB, sG))
a('s_lshl_b32 s%d, s%d, 2' % (sCc, sW))
a('s_add_u32 s%d, s%d, s%d' % (sB, sB, sCc))
a('s_lshl_b32 s%d, s%d, 10' % (sB, sB))
a('s_add_u32 s20, s%d, s%d' % (sA, sB))
for t in range(1, 4):
    a('s_add_u32 s%d, s20, %d' % (20 + t, 16384 * t))
poll(240)
stamp()


def b_oload(tile, i):
    return 'buffer_load_dwordx4 %s, v1, %s, s%d offen offset:%d sc1' % (vr(BO + (tile * 4 + i) * 4), srd(S_WS), 20 + tile, 1024 * i)


om = {}
for tile in range(2):
    for i in range(4):
        a(b_oload(tile, i))
        om[(tile, i)] = a.vm_mark()


def b_tile(tile):
    items = []
    for i in range(4):
        for t in range(4):
            r = BACC + (tile * 4 + t) * 4
            pre = [(lambda tl=tile, ii=i: a.wait_vm(om[(tl, ii)]))] if t == 0 else []
            post = None
            if tile < 2 and t == 1:
                def post(tl=tile + 2, ii=i):
                    a(b_oload(tl, ii))
                    om[(tl, ii)] = a.vm_mark()
            if tile >= 2 and t == 1:
                def post(u=tile - 2, ii=i):
                    a(c_wload(u)[ii])
            items.append((pre, '%s %s, %s, %s, %s' % (MFMA, vr(r), vr(BW + (i * 4 + t) * 4), vr(BO + (tile * 4 + i) * 4),
                                                      '0' if i == 0 else vr(r)), post))
    return items


def b_fin(st):
    owner_finish(st, False, BRD, BTMP)
    publish_x(st, BRD, BTMP)


ksplit_phase(BACC, BRD, BTMP, False, b_tile, b_fin)
publish_flags(c_wload(2) + c_wload(3))
stamp()

for u in (4, 5):
    for x in c_wload(u):
        a(x)
a('s_mov_b32 s%d, s41' % sA)
a('v_lshrrev_b32 v%d, 4, v0' % V_G)
a('v_and_b32 v%d, 15, v0' % V_TOK)
a('v_lshlrev_b32 v240, 4, v%d' % V_G)
a('s_lshl_b32 s%d, s%d, 6' % (sB, sA))
a('s_add_u32 s%d, s%d, %d' % (sB, sB, L.CSC))
for t in range(4):
    a('buffer_load_dwordx4 %s, v240, %s, s%d offen offset:%d sc1' % (vr(CCS + 4 * t), srd(S_WS), sB, 64 * t))
a('v_lshlrev_b32 v240, 3, v%d' % V_G)
a('s_lshl_b32 s%d, s%d, 5' % (sB, sA))
for t in range(4):
    a('buffer_load_dwordx2 %s, v240, %s, s%d offen offset:%d' % (vr(CB1R + 2 * t, 2), srd(S_B1), sB, 32 * t))
pair_base(sA, L.FB)
a('s_lshl_b32 s%d, s%d, 8' % (sB, sG))
a('s_add_u32 s%d, s%d, s%d' % (sA, sA, sB))
a('v_lshl_add_u32 v240, v0, 2, s%d' % sA)
a('s_mov_b32 s%d, 0x3fff3fff' % sMK)
a('s_mov_b32 s%d, 0x3fff3fff' % (sMK + 1))
a('s_lshl_b32 s%d, s%d, 2' % (sB, sG))
a('s_add_u32 s%d, s%d, s%d' % (sB, sB, sW))
pair_base(36, L.XB)
a('s_mul_i32 s%d, s%d, 14336' % (sCc, sB))
a('s_add_u32 s36, s36, s%d' % sCc)
a('s_mul_i32 s37, s%d, 14336' % sW)
a('s_add_u32 s37, s37, %d' % L.L_R2)
pair_base(28, L.SB)
a('s_mul_i32 s%d, s%d, 1792' % (sCc, sB))
a('s_add_u32 s28, s28, s%d' % sCc)
a('v_lshlrev_b32 v238, 3, v%d' % V_TOK)
a('v_lshl_add_u32 v238, v%d, 7, v238' % V_G)
a('v_mov_b32 v242, 0x%x' % INV)
a('v_cmp_lt_u32 vcc, 1, v%d' % V_G)
a('v_cndmask_b32 v239, 0, v242, vcc')
a('v_or_b32 v239, v239, v238')
poll(240)
stamp()
for q in range(4):
    a('s_mov_b32 m0, s37')
    a('s_nop 0')
    for k in range(4 if q < 3 else 2):
        a('buffer_load_dwordx4 v1, %s, s36 offen offset:%d sc1 lds' % (srd(S_WS), 1024 * k))
    if q < 3:
        a('s_add_u32 s36, s36, 4096')
        a('s_add_u32 s37, s37, 4096')
x1_mark = a.vm_mark()
CST2 = 244
for i in range(4):
    a('buffer_load_dwordx2 %s, v%d, %s, s28 offen offset:%d sc1' %
      (vr(CSTR + 2 * i, 2) if i < 2 else vr(CST2 + 2 * (i - 2), 2), 239 if i == 3 else 238, srd(S_WS), 512 * i))
cst_mark = a.vm_mark()
a('v_add_u32 v252, %d, v1' % L.L_R2)
a.wait_vm(x1_mark)
a('s_barrier')
stamp()


def c_xread(u):
    b = CX + 16 * (u & 1)
    return ['ds_read_b128 %s, v252 offset:%d' % (vr(b + 4 * t), (t * 14 + u) * 1024) for t in range(4)]


for x in c_xread(0):
    a(x)
r = CSTR
cst_fill = []
for c_ in range(2):
    cst_fill += ['v_add_f32 v%d, v%d, v%d' % (r + c_, r + c_, r + 2 + c_),
                 'v_add_f32 v%d, v%d, v%d' % (CST2 + c_, CST2 + c_, CST2 + 2 + c_),
                 'v_add_f32 v%d, v%d, v%d' % (r + c_, r + c_, CST2 + c_)]
cst_fill += xg_reduce(r, r + 2) + xg_reduce(r + 1, r + 3) + stats_finish(r, r + 1, r + 2, True)
for t in range(4):
    for p in range(2):
        cst_fill += ['v_lshlrev_b32 v%d, 16, v%d' % (CB1 + 4 * t + 2 * p, CB1R + 2 * t + p),
                     'v_and_b32 v%d, 0xffff0000, v%d' % (CB1 + 4 * t + 2 * p + 1, CB1R + 2 * t + p)]
wm = {}
for u in range(14):
    if u >= NRC:
        a.wait_vm(wm[u])
    elif u == 2:
        a.wait_vm(cst_mark)
    a('s_waitcnt lgkmcnt(0)')
    ws_ = CW + (u % NRC) * 16
    xb = CX + 16 * (u & 1)
    mem = {}
    if u < 13:
        for k, x in enumerate(c_xread(u + 1)):
            mem[k] = x
    if 1 <= u and u - 1 + NRC < 14:
        for k, x in enumerate(c_wload(u - 1 + NRC)):
            mem[4 + 3 * k] = x
    fill = []
    if 2 <= u < 6:
        n = (len(cst_fill) + 3) // 4
        fill = cst_fill[(u - 2) * n:(u - 1) * n]
    if u == 7:
        a('s_lshl_b32 s%d, s%d, 7' % (sA, sW))
        a('s_add_u32 s%d, s%d, %d' % (sA, sA, L.L_STC))
        a('v_lshl_add_u32 v240, v%d, 3, s%d' % (V_TOK, sA))
        mem[14] = 'ds_write_b64 v240, %s' % vr(CSTR, 2)
    k = 0
    fi = 0
    for tile in range(4):
        for t in range(4):
            r = CACC + (tile * 4 + t) * 4
            a('%s %s, %s, %s, %s' % (MFMA, vr(r), vr(ws_ + 4 * t), vr(xb + 4 * tile), '0' if u == 0 else vr(r)))
            if k in mem:
                a(mem[k])
                if k == 13 and 1 <= u and u - 1 + NRC < 14:
                    wm[u - 1 + NRC] = a.vm_mark()
            for _ in range(2):
                if fi < len(fill):
                    a(fill[fi])
                    fi += 1
            k += 1
    assert fi == len(fill)
a('s_waitcnt lgkmcnt(0)')
a('s_barrier')
a('v_lshlrev_b32 v240, 3, v%d' % V_TOK)
a('v_add_u32 v240, %d, v240' % L.L_STC)
for t in range(4):
    a('ds_read_b64 %s, v240 offset:%d' % (vr(CMR + 2 * t, 2), 128 * t))
stamp()
GA = 2.0 * 0.7978845608028654 * 1.4426950408889634
GB = GA * 0.044715
a('s_mov_b32 s34, %s' % f2h(-GB))
a('s_mov_b32 s35, %s' % f2h(-GB))
GT = 66
a('v_mov_b32 v%d, %s' % (GT + 30, f2h(-GA)))
a('v_mov_b32 v%d, %s' % (GT + 31, f2h(-GA)))


def h_base():
    pair_base(sA, L.H)
    a('s_mul_i32 s%d, s%d, %d' % (sB, sG, 4 * 56 * 1024))
    a('s_add_u32 s%d, s%d, s%d' % (sA, sA, sB))
    a('s_lshl_b32 s%d, s%d, 2' % (sB, sJ))
    a('s_add_u32 s%d, s%d, s%d' % (sB, sB, sW))
    a('s_lshl_b32 s%d, s%d, 11' % (sB, sB))
    a('s_add_u32 s%d, s%d, s%d' % (sA, sA, sB))


def emit_gelu(extra):
    extra = list(extra)
    per = -(-len(extra) // 8)
    for tile in range(4):
        m = CMR + 2 * tile
        for pp in range(2):
            hf = GT + 16 + 4 * ((tile * 2 + pp) & 1)
            zs = [(CACC + (tile * 4 + 2 * pp + k) * 4 + 2 * p, 2 * pp + k, p, GT + 2 * (k * 2 + p), hf + 2 * k + p)
                  for k in range(2) for p in range(2)]
            left = [per]

            def maybe():
                if extra and left[0] > 0:
                    a(extra.pop(0))
                    left[0] -= 1
            for z, t, p, t0, h in zs:
                a('v_pk_fma_f32 %s, %s, %s, %s op_sel_hi:[1,0,1] neg_lo:[0,1,0] neg_hi:[0,1,0]' %
                  (vr(z, 2), vr(CCS + 4 * t + 2 * p, 2), vr(m, 2), vr(z, 2)))
            for z, t, p, t0, h in zs:
                a('v_pk_fma_f32 %s, %s, %s, %s op_sel:[0,1,0] op_sel_hi:[1,1,1]' %
                  (vr(z, 2), vr(z, 2), vr(m, 2), vr(CB1 + 4 * t + 2 * p, 2)))
            maybe()
            for z, t, p, t0, h in zs:
                a('v_pk_mul_f32 %s, %s, %s' % (vr(t0, 2), vr(z, 2), vr(z, 2)))
            for z, t, p, t0, h in zs:
                a('v_pk_fma_f32 %s, %s, %s, %s' % (vr(t0, 2), vr(t0, 2), 's[34:35]', vr(GT + 30, 2)))
            for z, t, p, t0, h in zs:
                a('v_pk_mul_f32 %s, %s, %s' % (vr(t0, 2), vr(t0, 2), vr(z, 2)))
            maybe()
            for z, t, p, t0, h in zs:
                a('v_exp_f32 v%d, v%d' % (t0, t0))
                a('v_exp_f32 v%d, v%d' % (t0 + 1, t0 + 1))
            maybe()
            for z, t, p, t0, h in zs:
                a('v_pk_add_f32 %s, %s, 1.0 op_sel_hi:[1,0]' % (vr(t0, 2), vr(t0, 2)))
            for z, t, p, t0, h in zs:
                a('v_rcp_f32 v%d, v%d' % (t0, t0))
                a('v_rcp_f32 v%d, v%d' % (t0 + 1, t0 + 1))
            maybe()
            for z, t, p, t0, h in zs:
                a('v_pk_mul_f32 %s, %s, %s' % (vr(t0, 2), vr(t0, 2), vr(z, 2)))
            for z, t, p, t0, h in zs:
                a('v_cvt_pk_bf16_f32 v%d, v%d, v%d' % (h, t0, t0 + 1))
            store('buffer_store_dwordx4 %s, v1, %s, s%d offen offset:%d' % (vr(hf), srd(S_WS), sA, 1024 * pp), sFD)
        if tile < 3:
            a('s_add_u32 s%d, s%d, %d' % (sA, sA, 56 * 1024))
    assert not extra


a('s_cmp_eq_u32 s%d, 0' % sPAIR)
a('s_cbranch_scc0 L_gelu1')
wd_bases()
h_base()
a('s_waitcnt lgkmcnt(0)')
emit_gelu([wd_load(fi) for fi in range(*WD_CH[1])])
a('s_branch L_gelu_done')
a.label('L_gelu1')
h_base()
a('s_waitcnt lgkmcnt(0)')
emit_gelu([])
a.label('L_gelu_done')
pair_base(sA, L.FC)
a('s_lshl_b32 s%d, s%d, 5' % (sB, sG))
a('s_lshl_b32 s%d, s%d, 2' % (sCc, sJ))
a('s_add_u32 s%d, s%d, s%d' % (sB, sB, sCc))
a('s_add_u32 s%d, s%d, s%d' % (sB, sB, sW))
a('s_lshl_b32 s%d, s%d, 2' % (sB, sB))
a('s_add_u32 s%d, s%d, s%d' % (sA, sA, sB))
a('v_mov_b32 v241, s%d' % sA)
set_flags(241, 1, sFAST)
stamp()

DH, DACC, DRD, DTMP = 2, 114, 178, 210
DRING, DLOOK = 16, 10
a('s_cmp_eq_u32 s%d, 0' % sPAIR)
a('s_cbranch_scc0 L_d_start')
for fi in range(*WD_CH[2]):
    a(wd_load(fi))
a.label('L_d_start')
pair_base(sA, L.FC)
a('s_lshl_b32 s%d, s%d, 7' % (sB, sG))
a('s_add_u32 s%d, s%d, s%d' % (sA, sA, sB))
a('v_lshl_add_u32 v240, v0, 2, s%d' % sA)
a('s_mul_i32 s%d, s%d, 7' % (sB, sW))
a('s_lshl_b32 s%d, 0x7f, s%d' % (sMK, sB))
a('s_mov_b32 s%d, 0' % (sMK + 1))
red_addrs()
publish_setup(L.XA[1], L.SA[1], L.FX[1], False)
a('s_and_b32 s%d, s%d, 1' % (sA, sG))
a('s_lshr_b32 s%d, s%d, 1' % (sB, sW))
a('s_and_b32 s%d, s%d, s%d' % (sA, sA, sB))
a('s_xor_b32 s%d, s%d, 1' % (sA, sA))
a('s_and_b32 s%d, s%d, s%d' % (sPC, sFD, sA))
a('s_and_b32 s%d, s%d, s%d' % (sPFC, sFAST, sA))
pair_base(sA, L.H)
a('s_mul_i32 s%d, s%d, %d' % (sB, sG, 4 * 56 * 1024))
a('s_add_u32 s%d, s%d, s%d' % (sA, sA, sB))
a('s_mul_i32 s%d, s%d, %d' % (sB, sW, 14 * 1024))
a('s_add_u32 s%d, s%d, s%d' % (sO, sA, sB))
quarter_offsets(4, 56 * 1024)
poll(240)
stamp()


def d_hload(q):
    tile, kk = divmod(q, 14)
    return ('buffer_load_dwordx4 %s, v1, %s, s%d offen offset:%d sc1' %
            (vr(DH + (q % DRING) * 4), srd(S_WS), sO + 4 * tile + (kk >> 2), 1024 * (kk & 3)))


hm = {}
for q in range(DLOOK):
    a(d_hload(q))
    hm[q] = a.vm_mark()
a('s_barrier')


def d_tile(tile):
    items = []
    for kk in range(14):
        q = tile * 14 + kk
        for t in range(4):
            r = DACC + (tile * 4 + t) * 4
            pre = [(lambda qq=q: a.wait_vm(hm[qq]))] if t == 0 else []
            post = None
            if t == 0 and q + DLOOK < 56:
                def post(qq=q + DLOOK):
                    a(d_hload(qq))
                    hm[qq] = a.vm_mark()
            items.append((pre, '%s %s, %s, %s, %s' % (MFMA, vr(r), ar((kk * 4 + t) * 4), vr(DH + (q % DRING) * 4),
                                                      '0' if kk == 0 else vr(r)), post))
    return items


def d_out_store(st):
    if st == 0:
        owner_index()
        a('s_mul_i32 s%d, s%d, 14336' % (sPX, sB))
        a('s_lshl_b32 s%d, s%d, 6' % (sA, sA))
        a('s_add_u32 s%d, s%d, s%d' % (sPX, sPX, sA))
        a('v_and_b32 v%d, 15, v0' % V_TOK)
        a('v_lshrrev_b32 v%d, 4, v0' % V_G)
        a('v_mul_u32_u24 v240, 896, v%d' % V_TOK)
        a('v_lshl_add_u32 v240, v%d, 3, v240' % V_G)
    else:
        a('s_add_u32 s%d, s%d, %d' % (sPX, sPX, 2 * 14336))
    a('buffer_store_dwordx2 %s, v240, %s, s%d offen' % (vr(DRD, 2), srd(S_OUT), sPX))
    a('buffer_store_dwordx2 %s, v240, %s, s%d offen offset:32' % (vr(DRD + 2, 2), srd(S_OUT), sPX))


def d_fin(st):
    owner_finish(st, True, DRD, DTMP)
    fin, done = newlab('L_dfin'), newlab('L_ddone')
    a('s_cmp_eq_u32 s%d, 0' % sPAIR)
    a('s_cbranch_scc0 %s' % fin)
    n0 = a.vm_issued
    publish_x(st, DRD, DTMP)
    a('s_branch %s' % done)
    a.label(fin)
    n1 = a.vm_issued
    d_out_store(st)
    a.vm_issued = n1
    a.label(done)
    a('s_nop 1')


ksplit_phase(DACC, DRD, DTMP, True, d_tile, d_fin)
stamp()
a('s_cmp_eq_u32 s%d, 0' % sPAIR)
a('s_cbranch_scc0 L_next_pair')
publish_flags()
a.label('L_next_pair')
stamp()
a('s_add_u32 s%d, s%d, 1' % (sPAIR, sPAIR))
a('s_cmp_lt_u32 s%d, 2' % sPAIR)
a('s_cbranch_scc1 L_pair')

a('s_cmp_eq_u32 s2, 0')
a('s_cbranch_scc0 L_noepoch')
a('s_cmp_eq_u32 s%d, 0' % sW)
a('s_cbranch_scc0 L_noepoch')
a('buffer_load_dword v2, off, %s, 0 sc1' % srd(S_WS))
a('s_waitcnt vmcnt(0)')
a('v_add_u32 v2, 1, v2')
a('s_mov_b64 exec, 1')
a('buffer_store_dword v2, off, %s, 0 sc1' % srd(S_WS))
a('s_mov_b64 exec, -1')
a.label('L_noepoch')
if PAD:
    a.label('L_padspin')
    a('s_memrealtime s[34:35]')
    a('s_waitcnt lgkmcnt(0)')
    a('s_sub_u32 s34, s34, s0')
    a('s_cmp_lt_u32 s34, %d' % PAD[0])
    a('s_cbranch_scc1 L_padspin')
if DBG:
    a('s_memtime s[32:33]')
    a('s_memrealtime s[34:35]')
    a('s_waitcnt lgkmcnt(0)')
    a('s_sub_u32 s32, s32, s26')
    a('s_sub_u32 s34, s34, s0')
    build_srd(S_TMP, P_DBG, 256)
    a('v_mov_b32 v2, s32')
    a('v_mov_b32 v3, s34')
    a('v_mov_b32 v4, s%d' % sFAST)
    a('v_mov_b32 v5, s%d' % sXCC)
    a('s_lshr_b32 s%d, s2, 6' % sA)
    a('s_lshl_b32 s%d, s%d, 4' % (sA, sA))
    a('s_and_b32 s%d, s2, 63' % sB)
    a('s_or_b32 s%d, s%d, s%d' % (sB, sB, sW))
    a('s_cmp_eq_u32 s%d, 0' % sB)
    a('s_cselect_b32 s%d, s%d, 0x%x' % (sA, sA, INV))
    a('v_mov_b32 v6, s%d' % sA)
    a('s_mov_b64 exec, 1')
    a('buffer_store_dwordx4 v[2:5], v6, %s, 0 offen' % srd(S_TMP))
    a('s_mov_b64 exec, -1')
if DIAG:
    stamp()
    a('s_mov_b32 s%d, 63' % sSTI)
    a('s_lshl_b64 exec, 1, s%d' % sSTI)
    a('v_mov_b32 v%d, s%d' % (V_STAMP, sERR))
    a('s_mov_b32 s%d, 62' % sSTI)
    a('s_lshl_b64 exec, 1, s%d' % sSTI)
    a('v_mov_b32 v%d, s%d' % (V_STAMP, sFAST))
    a('s_mov_b64 exec, -1')
    a('s_lshl_b32 s%d, s2, 2' % sA)
    a('s_add_u32 s%d, s%d, s%d' % (sA, sA, sW))
    a('s_lshl_b32 s%d, s%d, 8' % (sA, sA))
    a('v_lshlrev_b32 v2, 2, v0')
    a('s_add_u32 s%d, s%d, %d' % (sA, sA, L.WS_USED))
    a('s_mov_b32 s%d, 0x%x' % (S_WS + 2, L.WS_USED + 256 * 1024))
    a('buffer_store_dword v%d, v2, %s, s%d offen' % (V_STAMP, srd(S_WS), sA))
a.label('L_end')
a('s_endpgm')

a.finalize()
body = a.text()

import os
hdr = open(os.path.join(os.path.dirname(os.path.abspath(__file__)), 'header.txt')).read()
out = hdr + '; @launch grid=(256,1,1) block=(256,1,1) lds=%d\n' % L.LDS_BYTES
out += '.amdgcn_target "amdgcn-amd-amdhsa--gfx950"\n.text\n.globl %s_kernel\n.p2align 8\n.type %s_kernel,@function\n%s_kernel:\n' % (NAME, NAME, NAME)
out += body
out += '''.section .rodata,"a"
.p2align 6
.amdhsa_kernel %s_kernel
  .amdhsa_next_free_vgpr 512
  .amdhsa_next_free_sgpr 102
  .amdhsa_accum_offset 256
  .amdhsa_group_segment_fixed_size 0
  .amdhsa_kernarg_size 88
  .amdhsa_user_sgpr_count 2
  .amdhsa_user_sgpr_kernarg_segment_ptr 1
  .amdhsa_system_sgpr_workgroup_id_x 1
.end_amdhsa_kernel
''' % NAME
sys.stdout.write(out)
```

```python
import struct
import sys
from asmlib import Asm
import layout as L

NAME = 'interleave_layers__sliding_local_dilated__mixer_channel_mlp__prompt'
DIAG = '--diag' in sys.argv
FASTMODE = ([x[7:] for x in sys.argv if x.startswith('--fast=')] + ['flags'])[0]
NOFAST = FASTMODE == 'none'
PAD = [int(x[6:]) for x in sys.argv if x.startswith('--pad=')]
DBG = '--dbg' in sys.argv or bool(PAD)
SPIN_LIMIT = 200000
OUTSC = ([x[8:] for x in sys.argv if x.startswith('--outsc=')] + [''])[0].replace('_', ' ')
SLEEP = int(([x[8:] for x in sys.argv if x.startswith('--sleep=')] + ['0'])[0])
INV = 0x80000000

a = Asm()

sXCC = 3
S_WS, S_TMP, S_B1, S_OUT = 4, 8, 12, 16
P_X, P_WQKV, P_WO, P_BX, P_W1, P_B1, P_W2, P_B2, P_OUT, P_DBG, P_WSP = 20, 22, 24, 26, 28, 30, 32, 34, 36, 38, 40
sS, sC, sG, sJ, sW, sT, sPAIR, sSPIN = 42, 43, 44, 45, 46, 47, 48, 49
sM1 = 50
sM2 = 58
sM0 = 66
sO = 74
sA, sB, sCc, sD = 90, 91, 92, 93
sMK = 94
sTS = 96
sGT = 98
sERR = 99
sSTI = 100
sFAST = 101
sFD = 27
sPFC = 26
sFH = 39


def srd(n):
    return 's[%d:%d]' % (n, n + 3)


def vr(n, k=4):
    return 'v[%d:%d]' % (n, n + k - 1)


def ar(n, k=4):
    return 'a[%d:%d]' % (n, n + k - 1)


def sp(n):
    return 's[%d:%d]' % (n, n + 1)


def f2h(x):
    return '0x%08x' % struct.unpack('<I', struct.pack('<f', x))[0]


V_T, V_STAMP = 254, 255
V_TOK, V_G = 250, 251
MFMA = 'v_mfma_f32_16x16x32_bf16'


DIAG2 = '--diag2' in sys.argv


def stamp2():
    if DIAG2:
        stamp()


def stamp():
    if not DIAG:
        return
    a('s_memtime %s' % sp(sTS))
    a('s_waitcnt lgkmcnt(0)')
    a('s_lshl_b64 exec, 1, s%d' % sSTI)
    a('v_mov_b32 v%d, s%d' % (V_STAMP, sTS))
    a('s_mov_b64 exec, -1')
    a('s_add_u32 s%d, s%d, 1' % (sSTI, sSTI))


lab_no = [0]


def newlab(p):
    lab_no[0] += 1
    return '%s_%d' % (p, lab_no[0])


def build_srd(dst, ptr, nbytes):
    a('s_mov_b32 s%d, s%d' % (dst, ptr))
    a('s_and_b32 s%d, s%d, 0xffff' % (dst + 1, ptr + 1))
    a('s_mov_b32 s%d, 0x%x' % (dst + 2, nbytes))
    a('s_mov_b32 s%d, 0x20000' % (dst + 3))


def poll(voff):
    lab, done = newlab('L_poll'), newlab('L_polldone')
    a('s_mov_b64 exec, %s' % sp(sMK))
    a('s_mov_b32 s%d, 0' % sSPIN)
    a.label(lab)
    a('buffer_load_dword v253, v%d, %s, 0 offen sc1' % (voff, srd(S_WS)))
    a('s_waitcnt vmcnt(0)')
    a('v_cmp_ne_u32 vcc, s%d, v253' % sT)
    a('s_nop 4')
    a('s_cbranch_vccz %s' % done)
    if SLEEP:
        a('s_sleep %d' % SLEEP)
    a('s_add_u32 s%d, s%d, 1' % (sSPIN, sSPIN))
    a('s_cmp_lt_u32 s%d, %d' % (sSPIN, SPIN_LIMIT))
    a('s_cbranch_scc1 %s' % lab)
    a('s_add_u32 s%d, s%d, 1' % (sERR, sERR))
    a.label(done)
    a('s_mov_b64 exec, -1')


sMK2 = 30


def early_issue(dst, voff):
    a('s_mov_b64 exec, %s' % sp(sMK2))
    a('buffer_load_dword v%d, v%d, %s, 0 offen sc1' % (dst, voff, srd(S_WS)))
    a('s_mov_b64 exec, -1')
    return a.vm_mark()


def early_check(dst, voff, mark):
    ok = newlab('L_early')
    a.wait_vm(mark)
    a('s_mov_b64 exec, %s' % sp(sMK2))
    a('v_cmp_ne_u32 vcc, s%d, v%d' % (sT, dst))
    a('s_mov_b64 exec, -1')
    a('s_nop 2')
    a('s_cbranch_vccz %s' % ok)
    a('s_mov_b64 %s, %s' % (sp(sMK), sp(sMK2)))
    n = a.vm_issued
    poll(voff)
    a.vm_issued = n
    a.label(ok)


def store(fmt, cond=None):
    if cond is None or NOFAST:
        a(fmt + ' sc1')
        return
    slow, done = newlab('L_slow'), newlab('L_st')
    a('s_cmp_eq_u32 s%d, 0' % cond)
    a('s_cbranch_scc1 %s' % slow)
    a(fmt)
    a('s_branch %s' % done)
    a.label(slow)
    a(fmt + ' sc1')
    a.vm_issued -= 1
    a.label(done)


def set_flags(voff, nlanes, cond=None, val=V_T, between=()):
    mark = a.vm_mark()
    for x in between:
        a(x)
    a.wait_vm(mark)
    a('s_mov_b64 exec, %d' % ((1 << nlanes) - 1))
    store('buffer_store_dword v%d, v%d, %s, 0 offen' % (val, voff, srd(S_WS)), cond)
    a('s_mov_b64 exec, -1')


def xg_reduce(x, t, op='v_add_f32'):
    return ['v_mov_b32 v%d, v%d' % (t, x),
            'v_permlane32_swap_b32 v%d, v%d' % (x, t),
            '%s v%d, v%d, v%d' % (op, x, x, t),
            'v_mov_b32 v%d, v%d' % (t, x),
            'v_permlane16_swap_b32 v%d, v%d' % (x, t),
            '%s v%d, v%d, v%d' % (op, x, x, t)]


EPS = 1e-5


def stats_finish(s1, s2, t, double_ln):
    o = ['v_mul_f32 v%d, %s, v%d' % (s1, f2h(1.0 / 448), s1),
         'v_mul_f32 v%d, %s, v%d' % (s2, f2h(1.0 / 448), s2),
         'v_fma_f32 v%d, -v%d, v%d, v%d' % (s2, s1, s1, s2),
         'v_max_f32 v%d, 0, v%d' % (s2, s2),
         'v_add_f32 v%d, %s, v%d' % (t, f2h(EPS), s2),
         'v_rsq_f32 v%d, v%d' % (t, t)]
    if not double_ln:
        o += ['v_mov_b32 v%d, v%d' % (s2, t)]
    else:
        o += ['v_mul_f32 v%d, v%d, v%d' % (s2, s2, t),
              'v_fmaak_f32 v%d, v%d, v%d, %s' % (s2, s2, t, f2h(EPS)),
              'v_rsq_f32 v%d, v%d' % (s2, s2),
              'v_mul_f32 v%d, v%d, v%d' % (s2, s2, t)]
    return o


def pair_base(dst, arr):
    a('s_mul_i32 s%d, s%d, %d' % (dst, sPAIR, arr[1] - arr[0]))
    a('s_add_u32 s%d, s%d, %d' % (dst, dst, arr[0]))


def quarter_offsets(n, stride):
    for t in range(n):
        if t:
            a('s_add_u32 s%d, s%d, %d' % (sO + 4 * t, sO + 4 * (t - 1), stride))
        for q in range(1, 4):
            a('s_add_u32 s%d, s%d, %d' % (sO + 4 * t + q, sO + 4 * t, 4096 * q))


sPX, sPS, sPF, sPC, sPX2 = 36, 37, 28, 29, 33


def stats_flags(delta, lsh):
    a('v_lshlrev_b32 v241, %d, v0' % lsh)
    a('s_add_u32 s%d, s%d, %d' % (sA, sPF, delta))
    a('v_add_u32 v241, s%d, v241' % sA)
    a('s_mov_b64 exec, 3')
    store('buffer_store_dword v%d, v241, %s, 0 offen' % (V_T, srd(S_WS)), sPFC)
    a('s_mov_b64 exec, -1')


a('s_cmp_ge_u32 s2, 256')
a('s_cbranch_scc1 L_end')
a('s_load_dwordx16 s[20:35], s[0:1], 0')
a('s_load_dwordx4 s[36:39], s[0:1], 64')
a('s_load_dwordx2 s[40:41], s[0:1], 80')
a('s_getreg_b32 s%d, hwreg(HW_REG_XCC_ID, 0, 4)' % sXCC)
a('s_and_b32 s%d, s2, 7' % sA)
a('s_lshr_b32 s%d, s2, 3' % sB)
a('s_lshr_b32 s%d, s%d, 4' % (sCc, sB))
a('s_lshl_b32 s%d, s%d, 1' % (sS, sA))
a('s_add_u32 s%d, s%d, s%d' % (sS, sS, sCc))
a('s_and_b32 s%d, s%d, 15' % (sC, sB))
a('s_lshr_b32 s%d, s%d, 3' % (sA, sC))
a('s_lshl_b32 s%d, s%d, 1' % (sG, sS))
a('s_add_u32 s%d, s%d, s%d' % (sG, sG, sA))
a('s_and_b32 s%d, s%d, 7' % (sJ, sC))
a('s_mov_b32 s%d, 0' % sERR)
a('v_lshrrev_b32 v2, 6, v0')
a('v_and_b32 v0, 63, v0')
a('v_readfirstlane_b32 s%d, v2' % sW)
a('v_lshlrev_b32 v1, 4, v0')
if DIAG:
    a('v_mov_b32 v%d, 0' % V_STAMP)
    a('s_mov_b32 s%d, 0' % sSTI)
stamp()
a('v_and_b32 v%d, 15, v0' % V_TOK)
a('v_lshrrev_b32 v%d, 4, v0' % V_G)
sSTG = 40
a('s_waitcnt lgkmcnt(0)')
if DBG:
    a('s_memtime s[26:27]')
    a('s_memrealtime s[0:1]')
    a('s_waitcnt lgkmcnt(0)')
build_srd(S_WS, P_WSP, L.WS_USED)
a('buffer_load_dword v%d, off, %s, 0 sc1' % (V_T, srd(S_WS)))
a('s_lshl_b32 s%d, s%d, 14' % (sSTG, sW))
a('s_add_u32 s%d, s%d, %d' % (sSTG, sSTG, L.L_R2))

build_srd(S_TMP, P_X, 2048 * 896)
a('v_mul_u32_u24 v2, 896, v%d' % V_TOK)
a('v_lshl_add_u32 v2, v%d, 3, v2' % V_G)
a('s_lshr_b32 s%d, s%d, 1' % (sA, sC))
a('s_lshl_b32 s%d, s%d, 3' % (sB, sS))
a('s_add_u32 s%d, s%d, s%d' % (sO + 0, sA, sB))
a('s_and_b32 s%d, s%d, 1' % (sA, sC))
a('s_mul_i32 s%d, s%d, 7' % (sA, sA))
a('s_add_u32 s%d, s%d, s%d' % (sO + 1, sA, sW))
a('s_cmp_lt_u32 s%d, 3' % sW)
a('s_cselect_b32 s%d, 0, 0x%x' % (sO + 2, INV))
a('s_mul_i32 s%d, s%d, 14336' % (sA, sO + 0))
a('s_lshl_b32 s%d, s%d, 6' % (sB, sO + 1))
a('s_add_u32 s%d, s%d, s%d' % (sA, sA, sB))
a('v_or_b32 v3, s%d, v2' % (sO + 2))
a('buffer_load_dwordx2 v[10:11], v2, %s, s%d offen' % (srd(S_TMP), sA))
a('buffer_load_dwordx2 v[12:13], v2, %s, s%d offen offset:32' % (srd(S_TMP), sA))
a('buffer_load_dwordx2 v[14:15], v3, %s, s%d offen offset:256' % (srd(S_TMP), sA))
a('buffer_load_dwordx2 v[16:17], v3, %s, s%d offen offset:288' % (srd(S_TMP), sA))

build_srd(S_TMP, P_WQKV, 448 * 2688)
qMAT, qU, qINV = sO + 3, sO + 4, sO + 5
a('s_lshl_b32 s%d, s%d, 4' % (sA, sW))
a('s_add_u32 s%d, s%d, s%d' % (sA, sA, sS))
a('s_cmp_lt_u32 s%d, 42' % sA)
a('s_cselect_b32 s%d, 0, 0x%x' % (qINV, INV))
a('s_min_u32 s%d, s%d, 41' % (sA, sA))
a('s_mul_i32 s%d, s%d, 4682' % (qMAT, sA))
a('s_lshr_b32 s%d, s%d, 16' % (qMAT, qMAT))
a('s_mul_i32 s%d, s%d, 14' % (sB, qMAT))
a('s_sub_u32 s%d, s%d, s%d' % (qU, sA, sB))
a('s_mul_i32 s%d, s%d, %d' % (sA, qU, 32 * 2688))
a('s_mul_i32 s%d, s%d, 896' % (sB, qMAT))
a('s_add_u32 s%d, s%d, s%d' % (sA, sA, sB))
a('s_mul_i32 s%d, s%d, 56' % (sB, sC))
a('s_add_u32 s%d, s%d, s%d' % (sA, sA, sB))
a('v_lshrrev_b32 v4, 2, v0')
a('v_mul_u32_u24 v4, 2688, v4')
a('v_and_b32 v5, 3, v0')
a('v_lshl_add_u32 v4, v5, 4, v4')
a('v_or_b32 v4, s%d, v4' % qINV)
a('s_mov_b32 m0, s%d' % sSTG)
a('s_add_u32 s%d, s%d, %d' % (sB, sA, 16 * 2688))
a('buffer_load_dwordx4 v4, %s, s%d offen lds' % (srd(S_TMP), sA))
a('s_add_u32 m0, s%d, 1024' % sSTG)
a('s_nop 0')
a('buffer_load_dwordx4 v4, %s, s%d offen lds' % (srd(S_TMP), sB))

bINV, bDST, bSTR = 20, 21, 22
a('s_lshl_b32 s%d, s%d, 5' % (sA, sW))
a('s_add_u32 s%d, s%d, s%d' % (sA, sA, sG))
a('s_cmp_lt_u32 s%d, 72' % sA)
a('s_cselect_b32 s%d, 0, 0x%x' % (bINV, INV))
a('s_cmp_eq_u32 s%d, 7' % sJ)
a('s_cselect_b32 s%d, 0x%x, s%d' % (bINV, INV, bINV))
a('s_min_u32 s%d, s%d, 71' % (sA, sA))
a('s_min_u32 s%d, s%d, 6' % (sD, sJ))
a('s_cmp_lt_u32 s%d, 16' % sA)
a('s_cselect_b32 s%d, s%d, s%d' % (S_TMP, P_WO, P_W2))
a('s_cselect_b32 s%d, s%d, s%d' % (S_TMP + 1, P_WO + 1, P_W2 + 1))
a('s_mov_b32 s%d, 0x%x' % (S_TMP + 2, 1792 * 896))
a('s_cselect_b32 s%d, 0x%x, s%d' % (S_TMP + 2, 448 * 896, S_TMP + 2))
a('s_cselect_b32 s%d, 28, 32' % sB)
a('s_cselect_b32 s%d, 0, 16' % sCc)
a('s_mov_b32 s%d, %d' % (bSTR, 56 * 1024))
a('s_cselect_b32 s%d, %d, s%d' % (bSTR, 16 * 1024, bSTR))
a('s_mov_b32 s%d, %d' % (bDST, L.WD))
a('s_cselect_b32 s%d, %d, s%d' % (bDST, L.WB, bDST))
a('s_cselect_b32 s%d, 0x%x, 0' % (sO + 9, INV))
a('s_and_b32 s%d, s%d, 0xffff' % (S_TMP + 1, S_TMP + 1))
a('s_mov_b32 s%d, 0x20000' % (S_TMP + 3))
a('s_sub_u32 s%d, s%d, s%d' % (sA, sA, sCc))
a('s_lshl_b32 s%d, s%d, 10' % (sCc, sA))
a('s_add_u32 s%d, s%d, s%d' % (bDST, bDST, sCc))
a('s_lshl_b32 s%d, s%d, 2' % (sCc, sD))
a('s_mul_i32 s%d, s%d, s%d' % (sCc, sCc, bSTR))
a('s_add_u32 s%d, s%d, s%d' % (bDST, bDST, sCc))
a('s_mul_i32 s%d, s%d, s%d' % (sA, sA, sB))
a('s_mul_i32 s%d, s%d, 896' % (sA, sA))
a('s_lshl_b32 s%d, s%d, 7' % (sB, sD))
a('s_add_u32 s%d, s%d, s%d' % (sA, sA, sB))
a('v_lshrrev_b32 v6, 3, v0')
a('v_mul_u32_u24 v6, 896, v6')
a('v_and_b32 v5, 7, v0')
a('v_lshl_add_u32 v6, v5, 4, v6')
a('v_or_b32 v6, s%d, v6' % bINV)
a('v_cmp_lt_u32 vcc, 31, v0')
a('v_mov_b32 v7, s%d' % (sO + 9))
a('v_cndmask_b32 v7, 0, v7, vcc')
a('v_or_b32 v7, v7, v6')
for q in range(4):
    a('s_add_u32 m0, s%d, %d' % (sSTG, 2048 + 1024 * q))
    if q:
        a('s_add_u32 s%d, s%d, %d' % (sA, sA, 8 * 896))
    else:
        a('s_nop 0')
    a('buffer_load_dwordx4 v%d, %s, s%d offen lds' % (7 if q == 3 else 6, srd(S_TMP), sA))

build_srd(S_TMP, P_W1, 448 * 3584)
cINV, cNT, cI12 = 23, 24, 25
a('s_cmp_lt_u32 s%d, 16' % sG)
a('s_cselect_b32 s%d, 0, 0x%x' % (cINV, INV))
a('s_cmp_eq_u32 s%d, 7' % sJ)
a('s_cselect_b32 s%d, 0x%x, s%d' % (cINV, INV, cINV))
a('s_min_u32 s%d, s%d, 6' % (sD, sJ))
a('s_lshl_b32 s%d, s%d, 4' % (cNT, sD))
a('s_and_b32 s%d, s%d, 15' % (sA, sG))
a('s_add_u32 s%d, s%d, s%d' % (cNT, cNT, sA))
a('s_cmp_lt_u32 s%d, 2' % sW)
a('s_cselect_b32 s%d, s%d, 0x%x' % (cI12, cINV, INV))
a('v_lshrrev_b32 v8, 1, v0')
a('v_mul_u32_u24 v8, 3584, v8')
a('v_and_b32 v5, 1, v0')
a('v_lshl_add_u32 v8, v5, 4, v8')
a('v_or_b32 v9, s%d, v8' % cI12)
a('v_or_b32 v8, s%d, v8' % cINV)
a('s_lshl_b32 s%d, s%d, 5' % (sB, cNT))
for i in range(4):
    a('s_add_u32 s%d, s%d, %d' % (sA, sW, 4 * i))
    a('s_min_u32 s%d, s%d, 13' % (sA, sA))
    a('s_mul_i32 s%d, s%d, %d' % (sA, sA, 32 * 3584))
    a('s_add_u32 s%d, s%d, s%d' % (sA, sA, sB))
    a('s_add_u32 m0, s%d, %d' % (sSTG, 6144 + 1024 * i))
    a('s_nop 0')
    a('buffer_load_dwordx4 v%d, %s, s%d offen lds' % (9 if i == 3 else 8, srd(S_TMP), sA))
build_srd(S_B1, P_B1, 1792 * 2)
build_srd(S_OUT, P_OUT, 2048 * 896)
a('v_bfe_u32 v18, v0, 2, 2')
a('v_lshl_add_u32 v18, v%d, 2, v18' % V_G)
a('v_and_b32 v19, 3, v0')
a('v_lshlrev_b32 v19, 3, v19')
a('s_waitcnt vmcnt(8)')
stamp()

a('s_mov_b32 s%d, 0x9E3779B1' % sA)
a('v_mul_lo_u32 v%d, v%d, s%d' % (V_T, V_T, sA))
a('v_add_u32 v%d, 0x7F4A7C15, v%d' % (V_T, V_T))
a('v_and_b32 v%d, -16, v%d' % (V_T, V_T))
a('v_lshl_add_u32 v20, v18, 6, v19')
a('v_add_u32 v20, s%d, v20' % sSTG)
for hf in range(2):
    a('ds_read_b64_tr_b16 %s, v20 offset:%d' % (vr(24 + 4 * hf, 2), 32 * hf))
    a('ds_read_b64_tr_b16 %s, v20 offset:%d' % (vr(26 + 4 * hf, 2), 32 * hf + 1024))
a('v_readfirstlane_b32 s%d, v%d' % (sT, V_T))
a('s_mul_i32 s%d, s%d, 14' % (sA, sO + 0))
a('s_add_u32 s%d, s%d, s%d' % (sA, sA, sO + 1))
a('s_lshl_b32 s%d, s%d, 10' % (sB, sA))
a('s_add_u32 s%d, s%d, %d' % (sB, sB, L.XA[0]))
a('v_or_b32 v3, s%d, v1' % (sO + 2))
a('buffer_store_dwordx4 v[10:13], v1, %s, s%d offen sc1' % (srd(S_WS), sB))
a('s_add_u32 s%d, s%d, 4096' % (sB, sB))
a('buffer_store_dwordx4 v[14:17], v3, %s, s%d offen sc1' % (srd(S_WS), sB))
a('v_cmp_gt_u32 vcc, 12, v%d' % V_TOK)
a('s_mul_i32 s%d, s%d, 84' % (sB, sC))
a('s_mul_i32 s%d, s%d, 28' % (sCc, qMAT))
a('s_add_u32 s%d, s%d, s%d' % (sB, sB, sCc))
a('s_add_u32 s%d, s%d, s%d' % (sB, sB, qU))
a('s_lshl_b32 s%d, s%d, 10' % (sB, sB))
a('s_add_u32 s%d, s%d, %d' % (sB, sB, L.WA))
a('v_or_b32 v4, s%d, v1' % qINV)
a('s_waitcnt lgkmcnt(0)')
for p in range(4):
    a('v_cndmask_b32 v%d, 0, v%d, vcc' % (28 + p, 28 + p))
a('buffer_store_dwordx4 v[24:27], v4, %s, s%d offen sc1' % (srd(S_WS), sB))
a('s_add_u32 s%d, s%d, %d' % (sB, sB, 14 * 1024))
a('buffer_store_dwordx4 v[28:31], v4, %s, s%d offen sc1' % (srd(S_WS), sB))
a('v_mov_b32 v2, 0x3f803f80')
for k in range(2):
    x, s1, s2 = 10 + 4 * k, 110 + 2 * k, 111 + 2 * k
    a('v_mov_b32 v%d, 0' % s1)
    a('v_mov_b32 v%d, 0' % s2)
    for p in range(4):
        a('v_dot2_f32_bf16 v%d, v%d, v2, v%d' % (s1, x + p, s1))
        a('v_dot2_f32_bf16 v%d, v%d, v%d, v%d' % (s2, x + p, x + p, s2))
    for t in xg_reduce(s1, 114) + xg_reduce(s2, 115):
        a(t)
a('s_lshl_b32 s%d, s%d, 7' % (sB, sA))
a('s_add_u32 s%d, s%d, %d' % (sB, sB, L.SA[0]))
a('v_lshlrev_b32 v2, 3, v%d' % V_TOK)
a('v_or_b32 v3, s%d, v2' % (sO + 2))
a('s_mov_b64 exec, 0xffff')
a('buffer_store_dwordx2 v[110:111], v2, %s, s%d offen sc1' % (srd(S_WS), sB))
a('buffer_store_dwordx2 v[112:113], v3, %s, s%d offen offset:512 sc1' % (srd(S_WS), sB))
a('s_mov_b64 exec, -1')
a('s_lshl_b32 s%d, s%d, 5' % (sA, sO + 0))
a('s_add_u32 s%d, s%d, s%d' % (sA, sA, sO + 1))
a('s_lshl_b32 s%d, s%d, 2' % (sA, sA))
a('s_add_u32 s%d, s%d, %d' % (sA, sA, L.FX[0]))
a('v_lshlrev_b32 v2, 4, v0')
a('v_add_u32 v2, s%d, v2' % sA)
a('v_cmp_eq_u32 vcc, 1, v0')
a('v_mov_b32 v3, s%d' % (sO + 2))
a('v_cndmask_b32 v3, 0, v3, vcc')
a('v_or_b32 v2, v2, v3')
a('s_lshl_b32 s%d, s%d, 6' % (sA, sC))
a('s_lshl_b32 s%d, s%d, 2' % (sB, sS))
a('s_add_u32 s%d, s%d, s%d' % (sA, sA, sB))
a('s_add_u32 s%d, s%d, s%d' % (sA, sA, sW))
a('s_lshl_b32 s%d, s%d, 2' % (sA, sA))
a('s_add_u32 s%d, s%d, %d' % (sA, sA, L.FQ))
a('v_mov_b32 v3, s%d' % sA)
a('v_cmp_eq_u32 vcc, 2, v0')
a('v_cndmask_b32 v2, v2, v3, vcc')
a('s_lshl_b32 s%d, s%d, 4' % (sA, sS))
a('s_add_u32 s%d, s%d, s%d' % (sA, sA, sC))
a('s_lshl_b32 s%d, s%d, 2' % (sA, sA))
a('s_add_u32 s%d, s%d, %d' % (sA, sA, L.FXC))
a('s_cmp_eq_u32 s%d, 0' % sW)
a('s_cselect_b32 s%d, s%d, 0x%x' % (sA, sA, INV))
a('v_mov_b32 v3, s%d' % sA)
a('v_cmp_eq_u32 vcc, 3, v0')
a('v_cndmask_b32 v2, v2, v3, vcc')
a('v_or_b32 v3, s%d, v%d' % (sXCC, V_T))
a('v_cndmask_b32 v3, v%d, v3, vcc' % V_T)
set_flags(2, 4, None, 3)
stamp()

a('v_lshl_add_u32 v20, v18, 7, v19')
a('v_add_u32 v20, s%d, v20' % sSTG)
for t in range(4):
    a('ds_read_b64_tr_b16 %s, v20 offset:%d' % (vr(24 + 4 * t, 2), 2048 + 32 * t))
    a('ds_read_b64_tr_b16 %s, v20 offset:%d' % (vr(26 + 4 * t, 2), 2048 + 32 * t + 2048))
a('v_lshl_add_u32 v21, v18, 5, v19')
a('v_add_u32 v21, s%d, v21' % sSTG)
for i in range(4):
    a('ds_read_b64_tr_b16 %s, v21 offset:%d' % (vr(40 + 4 * i, 2), 6144 + 1024 * i))
    a('ds_read_b64_tr_b16 %s, v21 offset:%d' % (vr(42 + 4 * i, 2), 6144 + 1024 * i + 512))
a('v_or_b32 v6, s%d, v1' % bINV)
a('s_waitcnt lgkmcnt(8)')
for t in range(4):
    a('buffer_store_dwordx4 %s, v6, %s, s%d offen sc1' % (vr(24 + 4 * t), srd(S_WS), bDST))
    if t < 3:
        a('s_add_u32 s%d, s%d, s%d' % (bDST, bDST, bSTR))
a('s_mul_i32 s%d, s%d, 14' % (sA, cNT))
a('s_add_u32 s%d, s%d, s%d' % (sA, sA, sW))
a('s_lshl_b32 s%d, s%d, 10' % (sA, sA))
a('s_add_u32 s%d, s%d, %d' % (sA, sA, L.WC))
a('v_or_b32 v8, s%d, v1' % cINV)
a('v_or_b32 v9, s%d, v1' % cI12)
a('v_mov_b32 v2, 0x3f803f80')
a('v_mov_b32 v100, 0')
a('s_waitcnt lgkmcnt(0)')
for i in range(4):
    a('buffer_store_dwordx4 %s, v%d, %s, s%d offen sc1' % (vr(40 + 4 * i), 9 if i == 3 else 8, srd(S_WS), sA))
    a('s_add_u32 s%d, s%d, 4096' % (sA, sA))
for i in range(4):
    for p in range(4):
        a('v_dot2_f32_bf16 v100, v%d, v2, v100' % (40 + 4 * i + p))
for t in xg_reduce(100, 101):
    a(t)
a('s_lshl_b32 s%d, s%d, 6' % (sA, sW))
a('s_add_u32 s%d, s%d, %d' % (sA, sA, L.L_CSR))
a('v_lshlrev_b32 v2, 2, v%d' % V_TOK)
a('v_add_u32 v3, s%d, v2' % sA)
a('ds_write_b32 v3, v100')
a('s_waitcnt lgkmcnt(0)')
a('s_barrier')
a('v_add_u32 v3, %d, v2' % L.L_CSR)
for i in range(4):
    a('ds_read_b32 v%d, v3 offset:%d' % (104 + i, 64 * i))
a('s_lshl_b32 s%d, s%d, 6' % (sB, cNT))
a('s_add_u32 s%d, s%d, %d' % (sB, sB, L.CSC))
a('s_cmp_eq_u32 s%d, 0' % sW)
a('s_cselect_b32 s%d, s%d, 0x%x' % (sA, cINV, INV))
a('v_or_b32 v2, s%d, v2' % sA)
a('s_waitcnt lgkmcnt(0)')
a('v_add_f32 v104, v104, v105')
a('v_add_f32 v106, v106, v107')
a('v_add_f32 v104, v104, v106')
a('s_mov_b64 exec, 0xffff')
a('buffer_store_dword v104, v2, %s, s%d offen sc1' % (srd(S_WS), sB))
a('s_mov_b64 exec, -1')

a('v_and_b32 v2, 1, v%d' % V_TOK)
a('v_lshlrev_b32 v3, 2, v%d' % V_G)
a('v_add_u32 v6, 2, v%d' % V_TOK)
for i in range(4):
    a('v_add_u32 v4, %d, v3' % i)
    a('v_cmp_eq_u32 vcc, %d, v2' % (i & 1))
    a('s_mov_b64 %s, vcc' % sp(sMK))
    a('v_cmp_ge_u32 vcc, v4, v6')
    a('s_and_b64 %s, vcc, %s' % (sp(sM1 + 2 * i), sp(sMK)))
    a('v_cmp_le_u32 vcc, v4, v%d' % V_TOK)
    a('s_and_b64 %s, vcc, %s' % (sp(sM2 + 2 * i), sp(sMK)))
a('s_lshl_b32 s%d, s%d, 3' % (sA, sS))
a('s_lshl_b32 s%d, s%d, 1' % (sB, sW))
a('s_add_u32 s%d, s%d, s%d' % (sGT, sA, sB))
a('s_cmp_eq_u32 s%d, 0' % sGT)
for i in range(4):
    a('s_cselect_b64 %s, 0, %s' % (sp(sM0 + 2 * i), sp(sM1 + 2 * i)))
a('s_mov_b32 s%d, 0' % sPAIR)

def a_flag_addr(dst):
    pair_base(sA, L.FX)
    a('s_lshl_b32 s%d, s%d, 7' % (sB, sGT))
    a('s_add_u32 s%d, s%d, s%d' % (sA, sA, sB))
    a('s_sub_u32 s%d, s%d, 128' % (sA, sA))
    a('v_and_b32 v%d, 48, v0' % dst)
    a('v_add_u32 v%d, v%d, v0' % (dst, dst))
    a('v_lshl_add_u32 v%d, v%d, 2, s%d' % (dst, dst, sA))
    a('s_mov_b32 s%d, 0x3fff3fff' % sMK)
    a('s_mov_b32 s%d, 0x3fff' % (sMK + 1))
    a('s_cmp_eq_u32 s%d, 0' % sGT)
    a('s_cselect_b32 s%d, 0x3fff0000, s%d' % (sMK, sMK))


a('s_lshl_b32 s%d, s%d, 8' % (sA, sC))
a('s_add_u32 s%d, s%d, %d' % (sA, sA, L.FQ))
a('v_lshl_add_u32 v2, v0, 2, s%d' % sA)
a_flag_addr(3)
a('s_lshl_b32 s%d, s%d, 6' % (sA, sS))
a('s_add_u32 s%d, s%d, %d' % (sA, sA, L.FXC - 48 * 4))
a('v_lshl_add_u32 v4, v0, 2, s%d' % sA)
a('v_cmp_lt_u32 vcc, 47, v0')
a('v_cndmask_b32 v3, v3, v4, vcc')
a('v_mov_b32 v5, -1')
a('v_mov_b32 v6, -16')
a('v_cndmask_b32 v5, v5, v6, vcc')
a('s_or_b32 s%d, s%d, 0xffff0000' % (sMK + 1, sMK + 1))
a('s_mov_b32 s%d, 0' % sSPIN)
a.label('L_poll0')
a('buffer_load_dword v7, v2, %s, 0 offen sc1' % srd(S_WS))
a('s_mov_b64 exec, %s' % sp(sMK))
a('buffer_load_dword v8, v3, %s, 0 offen sc1' % srd(S_WS))
a('s_waitcnt vmcnt(0)')
a('v_and_b32 v9, v5, v8')
a('v_cmp_ne_u32 vcc, s%d, v9' % sT)
a('s_mov_b64 exec, -1')
a('s_mov_b64 %s, vcc' % sp(sTS))
a('v_cmp_ne_u32 vcc, s%d, v7' % sT)
a('s_or_b64 vcc, vcc, %s' % sp(sTS))
a('s_cbranch_vccz L_poll0_done')
a('s_add_u32 s%d, s%d, 1' % (sSPIN, sSPIN))
a('s_cmp_lt_u32 s%d, %d' % (sSPIN, SPIN_LIMIT))
a('s_cbranch_scc1 L_poll0')
a('s_add_u32 s%d, s%d, 1' % (sERR, sERR))
a.label('L_poll0_done')
a('v_and_b32 v9, 15, v8')
a('v_cmp_ne_u32 vcc, s%d, v9' % sXCC)
a('s_and_b32 s%d, vcc_hi, 0xffff0000' % sA)
a('s_cmp_eq_u32 s%d, 0' % sA)
a('s_cselect_b32 s%d, 1, 0' % sFAST)
stamp()
a('s_mul_i32 s%d, s%d, %d' % (sA, sC, 84 * 1024))
a('s_mul_i32 s%d, s%d, %d' % (sB, sW, 21 * 1024))
a('s_add_u32 s%d, s%d, s%d' % (sA, sA, sB))
a('s_add_u32 s%d, s%d, %d' % (sA, sA, L.WA))
a('s_add_u32 s%d, s%d, %d' % (sB, sB, L.L_WA))
for q in range(6):
    a('s_mov_b32 m0, s%d' % sB)
    a('s_nop 0')
    for k in range(4 if q < 5 else 1):
        a('buffer_load_dwordx4 v1, %s, s%d offen offset:%d sc1 lds' % (srd(S_WS), sA, 1024 * k))
    if q < 5:
        a('s_add_u32 s%d, s%d, 4096' % (sA, sA))
        a('s_add_u32 s%d, s%d, 4096' % (sB, sB))
wa_mark = a.vm_mark()

AQ, AK, AV = 2, 18, 42
WBUF = [66, 90]
XR = 114
STR = 210
SM, SR = 234, 237
NR, LOOK = 8, 4


def a_xload(u):
    slot = u % NR
    return ['buffer_load_dwordx4 %s, v1, %s, s%d offen offset:%d sc1' %
            (vr(XR + (slot * 3 + t) * 4), srd(S_WS), sO + 4 * t + (u >> 2), 1024 * (u & 3)) for t in range(3)]


def a_issue():
    pair_base(sA, L.XA)
    a('s_mul_i32 s%d, s%d, 14336' % (sB, sGT))
    a('s_add_u32 s%d, s%d, s%d' % (sO + 4, sA, sB))
    a('s_add_u32 s%d, s%d, 14336' % (sO + 8, sO + 4))
    a('s_sub_u32 s%d, s%d, 14336' % (sO + 0, sO + 4))
    a('s_cmp_eq_u32 s%d, 0' % sGT)
    a('s_cselect_b32 s%d, s%d, s%d' % (sO + 0, sO + 4, sO + 0))
    for t in range(3):
        for q in range(1, 4):
            a('s_add_u32 s%d, s%d, %d' % (sO + 4 * t + q, sO + 4 * t, 4096 * q))
    marks = {}
    for u in range(LOOK):
        for t in a_xload(u):
            a(t)
        marks[u] = a.vm_mark()
    return marks


a_issue()
a('s_waitcnt vmcnt(0)')
a('s_barrier')
a('s_lshl_b32 s%d, s%d, 5' % (sA, sJ))
a('s_add_u32 s%d, s%d, s%d' % (sA, sA, sG))
a('s_lshl_b32 s%d, s%d, 2' % (sA, sA))
a('s_add_u32 s%d, s%d, %d' % (sA, sA, L.FP))
a('s_cmp_eq_u32 s%d, 0' % sW)
a('s_cselect_b32 s%d, s%d, 0x%x' % (sA, sA, INV))
a('v_mov_b32 v2, s%d' % sA)
a('s_mov_b64 exec, 1')
a('buffer_store_dword v%d, v2, %s, 0 offen sc1' % (V_T, srd(S_WS)))
a('s_mov_b64 exec, -1')
stamp()
for p in range(4):
    a('v_mov_b32 v%d, 0x3f803f80' % (4 + p))
a('s_mul_i32 s%d, s%d, %d' % (sB, sW, 14 * 1024))
a('v_add_u32 v2, s%d, v1' % sB)
a('s_cmp_lt_u32 s%d, 2' % sW)
a('s_cselect_b32 s%d, %d, 0' % (sB, 56 * 1024))
a('v_add_u32 v3, s%d, v2' % sB)
for u in range(7):
    for hh in range(2):
        a('ds_read_b128 %s, v2 offset:%d' % (vr(16 + 8 * u + 4 * hh), 1024 * (2 * u + hh)))
for u in range(5):
    for hh in range(2):
        a('ds_read_b128 %s, v3 offset:%d' % (vr(72 + 8 * u + 4 * hh) if u < 5 else '', 1024 * (2 * u + hh)))
a('s_waitcnt lgkmcnt(10)')
for u in range(14):
    a('%s %s, %s, v[4:7], %s' % (MFMA, vr(8 + 4 * (u & 1)) if False else 'v[8:11]', vr(16 + 4 * u), '0' if u == 0 else 'v[8:11]'))
a('s_waitcnt lgkmcnt(0)')
for u in range(10):
    a('%s v[12:15], %s, v[4:7], %s' % (MFMA, vr(72 + 4 * u), '0' if u == 0 else 'v[12:15]'))
for u in range(4):
    a('ds_read_b128 %s, v3 offset:%d' % (vr(16 + 4 * u), 1024 * (10 + u)))
a('s_waitcnt lgkmcnt(0)')
for u in range(4):
    a('%s v[12:15], %s, v[4:7], v[12:15]' % (MFMA, vr(16 + 4 * u)))
a('v_cmp_eq_u32 vcc, 0, v%d' % V_TOK)
a('s_lshl_b32 s%d, s%d, 6' % (sA, sW))
a('s_add_u32 s%d, s%d, %d' % (sA, sA, L.L_CSA))
a('v_lshl_add_u32 v3, v%d, 4, s%d' % (V_G, sA))
a('s_mov_b64 exec, vcc')
a('ds_write_b128 v3, v[8:11]')
a('s_cmp_lt_u32 s%d, 2' % sW)
a('s_cbranch_scc0 L_csa_done')
a('ds_write_b128 v3, v[12:15] offset:256')
a.label('L_csa_done')
a('s_mov_b64 exec, -1')
a('s_waitcnt lgkmcnt(0)')
a('s_barrier')
stamp()
a('s_branch L_a_main')

a.label('L_pair')
a_flag_addr(2)
poll(2)
stamp()
xmark = a_issue()

if DIAG:
    a('s_add_u32 s%d, s%d, 0' % (sSTI, sSTI))
a.label('L_a_main')
if FASTMODE == 'flags':
    a('s_mov_b32 s%d, 0' % sFD)
    a('s_mov_b32 s%d, 0' % sFH)
elif FASTMODE == 'p0':
    a('s_xor_b32 s%d, s%d, 1' % (sFD, sPAIR))
    a('s_and_b32 s%d, s%d, s%d' % (sFD, sFD, sFAST))
    a('s_mov_b32 s%d, s%d' % (sFH, sFD))
elif FASTMODE == 'small':
    a('s_mov_b32 s%d, s%d' % (sFD, sFAST))
    a('s_mov_b32 s%d, 0' % sFH)
elif FASTMODE == 'smallp0':
    a('s_mov_b32 s%d, s%d' % (sFD, sFAST))
    a('s_xor_b32 s%d, s%d, 1' % (sFH, sPAIR))
    a('s_and_b32 s%d, s%d, s%d' % (sFH, sFH, sFAST))
else:
    a('s_mov_b32 s%d, s%d' % (sFD, sFAST))
    a('s_mov_b32 s%d, s%d' % (sFH, sFAST))
pair_base(sA, L.SA)
a('s_mul_i32 s%d, s%d, 1792' % (sB, sGT))
a('s_add_u32 s%d, s%d, s%d' % (sO + 13, sA, sB))
a('s_add_u32 s%d, s%d, 1792' % (sO + 14, sO + 13))
a('s_sub_u32 s%d, s%d, 1792' % (sO + 12, sO + 13))
a('s_cmp_eq_u32 s%d, 0' % sGT)
a('s_cselect_b32 s%d, s%d, s%d' % (sO + 12, sO + 13, sO + 12))
a('v_and_b32 v%d, 15, v0' % V_TOK)
a('v_lshrrev_b32 v%d, 4, v0' % V_G)
a('v_lshlrev_b32 v240, 3, v%d' % V_TOK)
a('v_lshl_add_u32 v240, v%d, 7, v240' % V_G)
a('v_mov_b32 v242, 0x%x' % INV)
a('v_cmp_lt_u32 vcc, 1, v%d' % V_G)
a('v_cndmask_b32 v241, 0, v242, vcc')
a('v_or_b32 v241, v241, v240')
a('v_add_u32 v243, %d, v1' % (56 * 1024))
a('v_lshlrev_b32 v244, 4, v%d' % V_G)
a('v_add_u32 v244, %d, v244' % L.L_CSA)
a('v_lshlrev_b32 v245, 2, v%d' % V_TOK)
a('v_add_u32 v245, %d, v245' % L.L_CSA)
stat_loads = ['buffer_load_dwordx2 %s, v%d, %s, s%d offen offset:%d sc1' %
              (vr(STR + (t * 4 + i) * 2, 2), 241 if i == 3 else 240, srd(S_WS), sO + 12 + t, 512 * i)
              for t in range(3) for i in range(4)]


def a_wread(u):
    b = WBUF[u & 1]
    o = []
    for p in range(6):
        if p < 4:
            o.append('ds_read_b128 %s, v1 offset:%d' % (vr(b + 4 * p), L.L_WA + (p * 14 + u) * 1024))
        else:
            o.append('ds_read_b128 %s, v243 offset:%d' % (vr(b + 4 * p), L.L_WA + ((p - 4) * 14 + u) * 1024))
    return o


for t in a_wread(0):
    a(t)
stat_fill = []
for t in range(3):
    r = STR + 8 * t
    for c_ in range(2):
        stat_fill += ['v_add_f32 v%d, v%d, v%d' % (r + c_, r + c_, r + 2 + c_),
                      'v_add_f32 v%d, v%d, v%d' % (r + 4 + c_, r + 4 + c_, r + 6 + c_),
                      'v_add_f32 v%d, v%d, v%d' % (r + c_, r + c_, r + 4 + c_)]
    stat_fill += xg_reduce(r, r + 2) + xg_reduce(r + 1, r + 3)
    stat_fill += stats_finish(r, r + 1, r + 2, False)
    stat_fill += ['v_mov_b32 v%d, v%d' % (SM + t, r), 'v_mov_b32 v%d, v%d' % (SR + t, r + 1)]

a('s_lshl_b32 s%d, s%d, 7' % (sA, sJ))
a('s_add_u32 s%d, s%d, %d' % (sA, sA, L.FP))
a('v_lshl_add_u32 v248, v0, 2, s%d' % sA)
a('s_lshr_b32 s%d, s%d, 1' % (sB, sW))
a('s_lshl_b32 s%d, s%d, 2' % (sCc, sG))
a('s_add_u32 s%d, s%d, s%d' % (sB, sB, sCc))
a('s_lshl_b32 s%d, s%d, 5' % (sB, sB))
a('s_and_b32 s%d, s%d, 1' % (sA, sW))
a('s_add_u32 s%d, s%d, s%d' % (sB, sB, sA))
a('s_min_u32 s%d, s%d, 6' % (sA, sJ))
a('s_lshl_b32 s%d, s%d, 1' % (sA, sA))
a('s_add_u32 s%d, s%d, s%d' % (sB, sB, sA))
a('s_lshl_b32 s%d, s%d, 2' % (sB, sB))
a('s_add_u32 s%d, s%d, %d' % (sB, sB, L.FX[0] - 32 * 256))
a('v_lshl_add_u32 v249, v0, 8, s%d' % sB)
a('v_cmp_lt_u32 vcc, 31, v0')
a('v_cndmask_b32 v248, v248, v249, vcc')
a('s_cmp_eq_u32 s%d, 0' % sPAIR)
a('s_mov_b32 s%d, %d' % (sA, L.FSA - 128))
a('s_cselect_b32 s%d, %d, s%d' % (sA, L.FX[0] - 128, sA))
a('s_lshl_b32 s%d, s%d, 7' % (sB, sGT))
a('s_add_u32 s%d, s%d, s%d' % (sA, sA, sB))
a('v_and_b32 v247, 48, v0')
a('v_add_u32 v247, v247, v0')
a('v_lshl_add_u32 v247, v247, 2, s%d' % sA)
a('s_mov_b32 s%d, 0x3fff3fff' % sMK2)
a('s_mov_b32 s%d, 0x3fff' % (sMK2 + 1))
a('s_cmp_eq_u32 s%d, 0' % sGT)
a('s_cselect_b32 s%d, 0x3fff0000, s%d' % (sMK2, sMK2))
ep_mark = None
es_mark = None
st_mark = None
for u in range(14):
    need = xmark[u]
    if u == 10:
        need = max(need, st_mark)
    a.wait_vm(need)
    if u == 3:
        early_check(246, 247, es_mark)
    if u == 11:
        a('s_mov_b32 s%d, -1' % sMK2)
        a('s_mov_b32 s%d, 3' % (sMK2 + 1))
    a('s_waitcnt lgkmcnt(0)')
    wb = WBUF[u & 1]
    xs = XR + (u % NR) * 12
    mf = []
    cz = (lambda r: '0') if u == 0 else (lambda r: vr(r))
    for t in range(2):
        for hf in range(2):
            r = AQ + (t * 2 + hf) * 4
            mf.append('%s %s, %s, %s, %s' % (MFMA, vr(r), vr(wb + 4 * hf), vr(xs + 4 * (t + 1)), cz(r)))
    for t in range(3):
        for hf in range(2):
            r = AK + (t * 2 + hf) * 4
            mf.append('%s %s, %s, %s, %s' % (MFMA, vr(r), vr(wb + 8 + 4 * hf), vr(xs + 4 * t), cz(r)))
    for t in range(3):
        for hf in range(2):
            r = AV + (t * 2 + hf) * 4
            mf.append('%s %s, %s, %s, %s' % (MFMA, vr(r), vr(xs + 4 * t), vr(wb + 16 + 4 * hf), cz(r)))
    mem = {}
    if u < 13:
        for k, x in enumerate(a_wread(u + 1)):
            mem[k] = x
    else:
        for p in range(4):
            mem[p] = 'ds_read_b128 %s, v244 offset:%d' % (vr(WBUF[0] + 4 * p), 64 * p)
        for d in range(2):
            mem[4 + d] = 'ds_read_b32 v%d, v245 offset:%d' % (WBUF[0] + 16 + d, 64 * (4 + d))
    if u + LOOK < 14:
        xl = a_xload(u + LOOK)
        mem[6], mem[9], mem[12] = xl
    if 3 <= u < 9:
        mem[8], mem[14] = stat_loads[2 * (u - 3)], stat_loads[2 * (u - 3) + 1]
    if u == 11:
        mem[8] = 'EARLY'
    if u == 1:
        mem[8] = 'ESTAT'
    fill = []
    if u >= 10:
        n = (len(stat_fill) + 3) // 4
        fill = stat_fill[(u - 10) * n:(u - 9) * n]
    fi = 0
    for k, m in enumerate(mf):
        a(m)
        if k in mem:
            if mem[k] == 'EARLY':
                ep_mark = early_issue(249, 248)
            elif mem[k] == 'ESTAT':
                es_mark = early_issue(246, 247)
            else:
                a(mem[k])
            if k == 12 and u + LOOK < 14:
                xmark[u + LOOK] = a.vm_mark()
            if k == 14 and u == 8:
                st_mark = a.vm_mark()
        for _ in range(2):
            if fi < len(fill) and k >= 1:
                a(fill[fi])
                fi += 1
    assert fi == len(fill), (u, fi, len(fill))
stamp()
early_check(249, 248, ep_mark)
BW = 2
a('s_lshl_b32 s%d, s%d, 6' % (sA, sJ))
a('s_lshl_b32 s%d, s%d, 2' % (sB, sW))
a('s_add_u32 s%d, s%d, s%d' % (sA, sA, sB))
a('s_lshl_b32 s%d, s%d, 10' % (sA, sA))
a('s_add_u32 s20, s%d, %d' % (sA, L.WB))
for t in range(1, 4):
    a('s_add_u32 s%d, s20, %d' % (20 + t, 16 * 1024 * t))
wb_loads = ['buffer_load_dwordx4 %s, v1, %s, s%d offen offset:%d sc1' % (vr(BW + (i * 4 + t) * 4), srd(S_WS), 20 + t, 1024 * i)
            for i in range(4) for t in range(4)]
A_RES, A_B2 = 224, 232


def owner_index():
    a('s_lshr_b32 s%d, s%d, 1' % (sB, sW))
    a('s_lshl_b32 s%d, s%d, 2' % (sCc, sG))
    a('s_add_u32 s%d, s%d, s%d' % (sB, sB, sCc))
    a('s_and_b32 s%d, s%d, 1' % (sA, sW))
    a('s_lshl_b32 s%d, s%d, 1' % (sCc, sJ))
    a('s_add_u32 s%d, s%d, s%d' % (sA, sA, sCc))


a('s_cmp_eq_u32 s%d, 0' % sPAIR)
a('s_cbranch_scc0 L_a_nores')
owner_index()
a('s_mul_i32 s%d, s%d, 14' % (sB, sB))
a('s_add_u32 s%d, s%d, s%d' % (sB, sB, sA))
a('s_lshl_b32 s%d, s%d, 10' % (sB, sB))
a('s_add_u32 s%d, s%d, %d' % (sB, sB, L.XA[0]))
a('buffer_load_dwordx4 %s, v1, %s, s%d offen sc1' % (ar(A_RES), srd(S_WS), sB))
a('s_add_u32 s%d, s%d, %d' % (sB, sB, 2 * 14336))
a('buffer_load_dwordx4 %s, v1, %s, s%d offen sc1' % (ar(A_RES + 4), srd(S_WS), sB))
build_srd(S_TMP, P_B2, 896)
a('s_lshl_b32 s%d, s%d, 6' % (sB, sA))
a('v_lshlrev_b32 v240, 3, v%d' % V_G)
a('buffer_load_dwordx2 v[228:229], v240, %s, s%d offen' % (srd(S_TMP), sB))
a('buffer_load_dwordx2 v[230:231], v240, %s, s%d offen offset:32' % (srd(S_TMP), sB))
a.label('L_a_nores')
CSQ = WBUF[0]
a('s_mul_i32 s%d, s%d, 384' % (sA, sW))
a('s_add_u32 s%d, s%d, %d' % (sA, sA, L.L_STA))
a('v_lshl_add_u32 v246, v%d, 2, s%d' % (V_TOK, sA))
a('v_lshl_add_u32 v247, v%d, 4, s%d' % (V_G, sA))
a('s_mov_b64 exec, 0xffff')
for t in range(3):
    a('ds_write_b32 v246, v%d offset:%d' % (SM + t, 128 * t))
    a('ds_write_b32 v246, v%d offset:%d' % (SR + t, 128 * t + 64))
a('s_mov_b64 exec, -1')
MROW, RROW = 114, 126
a('s_waitcnt lgkmcnt(0)')
for t in range(3):
    a('ds_read_b128 %s, v247 offset:%d' % (vr(MROW + 4 * t), 128 * t))
    a('ds_read_b128 %s, v247 offset:%d' % (vr(RROW + 4 * t), 128 * t + 64))
QF, KF, VF = 140, 148, 160
for t in range(2):
    for hf in range(2):
        r = AQ + (t * 2 + hf) * 4
        for i in range(4):
            a('v_fma_f32 v%d, -v%d, v%d, v%d' % (r + i, SM + t + 1, CSQ + 4 * hf + i, r + i))
        for p in range(2):
            a('v_cvt_pk_bf16_f32 v%d, v%d, v%d' % (QF + 4 * t + 2 * hf + p, r + 2 * p, r + 2 * p + 1))
for t in range(3):
    for hf in range(2):
        r = AK + (t * 2 + hf) * 4
        for i in range(4):
            a('v_fma_f32 v%d, -v%d, v%d, v%d' % (r + i, SM + t, CSQ + 8 + 4 * hf + i, r + i))
        for p in range(2):
            a('v_cvt_pk_bf16_f32 v%d, v%d, v%d' % (KF + 4 * t + 2 * hf + p, r + 2 * p, r + 2 * p + 1))
SS = 172
for t in range(2):
    a('%s %s, %s, %s, 0' % (MFMA, vr(SS + 8 * t), vr(KF + 4 * t), vr(QF + 4 * t)))
    a('%s %s, %s, %s, 0' % (MFMA, vr(SS + 8 * t + 4), vr(KF + 4 * t + 4), vr(QF + 4 * t)))
a('s_waitcnt lgkmcnt(0)')
for t in range(3):
    for d in range(2):
        r = AV + (t * 2 + d) * 4
        for i in range(4):
            a('v_fma_f32 v%d, -v%d, v%d, v%d' % (r + i, MROW + 4 * t + i, CSQ + 16 + d, r + i))
        for p in range(2):
            a('v_cvt_pk_bf16_f32 v%d, v%d, v%d' % (VF + 6 * d + 2 * t + p, r + 2 * p, r + 2 * p + 1))
SCALE = (28.0 ** -0.5) * 1.4426950408889634
MX, CC, LS, TMPR = 190, 192, 194, 196
PF = 200
a('v_mov_b32 v198, 0xff800000')
seq = [[], []]
for t in range(2):
    s = SS + 8 * t
    q = seq[t]
    for e in range(8):
        q.append('v_mul_f32 v%d, v%d, v%d' % (s + e, s + e, RROW + 4 * (t + (e >> 2)) + (e & 3)))
    for e in range(8):
        mk = (sM0 if t == 0 else sM1) + 2 * e if e < 4 else sM2 + 2 * (e - 4)
        q.append('v_cndmask_b32 v%d, v198, v%d, %s' % (s + e, s + e, sp(mk)))
    q.append('v_max3_f32 v%d, v%d, v%d, v%d' % (MX + t, s, s + 1, s + 2))
    q.append('v_max3_f32 v%d, v%d, v%d, v%d' % (MX + t, MX + t, s + 3, s + 4))
    q.append('v_max3_f32 v%d, v%d, v%d, v%d' % (MX + t, MX + t, s + 5, s + 6))
    q.append('v_max_f32 v%d, v%d, v%d' % (MX + t, MX + t, s + 7))
    q += xg_reduce(MX + t, TMPR + t, 'v_max_f32')
    q.append('v_mul_f32 v%d, %s, v%d' % (CC + t, f2h(SCALE), SR + t + 1))
    q.append('v_mul_f32 v%d, v%d, v%d' % (MX + t, MX + t, CC + t))
    for e in range(8):
        q.append('v_fma_f32 v%d, v%d, v%d, -v%d' % (s + e, s + e, CC + t, MX + t))
    for e in range(8):
        q.append('v_exp_f32 v%d, v%d' % (s + e, s + e))
    q.append('v_add_f32 v%d, v%d, v%d' % (LS + t, s, s + 1))
    for e in range(2, 8):
        q.append('v_add_f32 v%d, v%d, v%d' % (LS + t, LS + t, s + e))
    q += xg_reduce(LS + t, TMPR + t)
    q.append('v_rcp_f32 v%d, v%d' % (LS + t, LS + t))
    for e in range(8):
        q.append('v_mul_f32 v%d, v%d, v%d' % (s + e, s + e, RROW + 4 * (t + (e >> 2)) + (e & 3)))
    for p in range(4):
        q.append('v_cvt_pk_bf16_f32 v%d, v%d, v%d' % (PF + 4 * t + p, s + 2 * p, s + 2 * p + 1))
merged = [z for xy in zip(*seq) for z in xy]
gap = len(merged) // (len(wb_loads) + 1)
for k, x in enumerate(merged):
    a(x)
    if k % gap == gap - 1 and wb_loads:
        a(wb_loads.pop(0))
assert not wb_loads
OO = 208
for t in range(2):
    for d in range(2):
        a('%s %s, %s, %s, 0' % (MFMA, vr(OO + 8 * t + 4 * d), vr(VF + 6 * d + 2 * t), vr(PF + 4 * t)))
pair_base(sA, L.O)
a('s_lshl_b32 s%d, s%d, 4' % (sB, sGT))
a('s_add_u32 s%d, s%d, s%d' % (sB, sB, sC))
a('s_lshl_b32 s%d, s%d, 10' % (sB, sB))
a('s_add_u32 s%d, s%d, s%d' % (sA, sA, sB))
for t in range(2):
    for e in range(8):
        a('v_mul_f32 v%d, v%d, v%d' % (OO + 8 * t + e, OO + 8 * t + e, LS + t))
    for p in range(4):
        a('v_cvt_pk_bf16_f32 v%d, v%d, v%d' % (PF + 4 * t + p, OO + 8 * t + 2 * p, OO + 8 * t + 2 * p + 1))
    store('buffer_store_dwordx4 %s, v1, %s, s%d offen' % (vr(PF + 4 * t), srd(S_WS), sA), sFD)
    if t == 0:
        a('s_add_u32 s%d, s%d, 16384' % (sA, sA))
pair_base(sA, L.FA)
a('s_lshl_b32 s%d, s%d, 4' % (sB, sGT))
a('s_add_u32 s%d, s%d, s%d' % (sB, sB, sC))
a('s_lshl_b32 s%d, s%d, 2' % (sB, sB))
a('s_add_u32 s%d, s%d, s%d' % (sA, sA, sB))
a('v_lshlrev_b32 v241, 6, v0')
a('v_add_u32 v241, s%d, v241' % sA)
set_flags(241, 2, sFAST)
stamp()
a('s_cmp_eq_u32 s%d, 7' % sJ)
a('s_cbranch_scc1 L_next_pair')


def wd_bases():
    a('s_lshl_b32 s%d, s%d, 2' % (sA, sJ))
    a('s_mul_i32 s%d, s%d, %d' % (sA, sA, 56 * 1024))
    a('s_mul_i32 s%d, s%d, %d' % (sB, sW, 14 * 1024))
    a('s_add_u32 s%d, s%d, s%d' % (sA, sA, sB))
    a('s_add_u32 s%d, s%d, %d' % (sO, sA, L.WD))
    quarter_offsets(4, 56 * 1024)


def wd_load(fi):
    kk, t = fi >> 2, fi & 3
    return ('buffer_load_dwordx4 %s, v1, %s, s%d offen offset:%d sc1' %
            (ar(4 * fi), srd(S_WS), sO + 4 * t + (kk >> 2), 1024 * (kk & 3)))


WD_CH = [(0, 12), (12, 44), (44, 56)]
BO, BACC, BRD, BTMP = 66, 130, 194, 226
a('s_cmp_eq_u32 s%d, 0' % sPAIR)
a('s_cbranch_scc0 L_b_start')
for k in range(4):
    a('v_lshlrev_b32 v236, 16, v%d' % (228 + k))
    a('v_and_b32 v237, 0xffff0000, v%d' % (228 + k))
    a('v_accvgpr_write_b32 a%d, v236' % (A_B2 + 2 * k))
    a('v_accvgpr_write_b32 a%d, v237' % (A_B2 + 2 * k + 1))
wd_bases()
for fi in range(*WD_CH[0]):
    a(wd_load(fi))
a.label('L_b_start')
CACC, CW, CX, CCS, CB1, CB1R, CSTR, CMR = 2, 66, 162, 194, 210, 226, 234, 242
NRC = 6
a('s_lshl_b32 s%d, s%d, 4' % (sA, sJ))
a('s_lshl_b32 s%d, s%d, 2' % (sB, sW))
a('s_add_u32 s%d, s%d, s%d' % (sA, sA, sB))
a('s_mov_b32 s41, s%d' % sA)
a('s_mul_i32 s%d, s%d, %d' % (sB, sA, 14 * 1024))
a('s_add_u32 s%d, s%d, %d' % (sO, sB, L.WC))
quarter_offsets(4, 14 * 1024)


def c_wload(u):
    slot = u % NRC
    return ['buffer_load_dwordx4 %s, v1, %s, s%d offen offset:%d sc1' %
            (vr(CW + (slot * 4 + t) * 4), srd(S_WS), sO + 4 * t + (u >> 2), 1024 * (u & 3)) for t in range(4)]


def red_writes(acc, tile):
    return ['ds_write_b128 v248, %s offset:%d' % (vr(acc + 4 * t), (tile >> 1) * 32768 + (tile & 1) * 4096 + t * 1024)
            for t in range(4)]


def red_reads(st, rd):
    return ['ds_read_b128 %s, v249 offset:%d' % (vr(rd + (b * 2 + k) * 4), st * 32768 + b * 8192 + k * 1024)
            for b in range(4) for k in range(2)]


def add8(dst, x, y, packed):
    if packed:
        return ['v_pk_add_f32 %s, %s, %s' % (vr(dst + e, 2), vr(x + e, 2), vr(y + e, 2)) for e in range(0, 8, 2)]
    return ['v_add_f32 v%d, v%d, v%d' % (dst + e, x + e, y + e) for e in range(8)]


def finish_pre(st, is_d, tmp):
    res = A_RES + 4 * st
    o = ['v_accvgpr_read_b32 v%d, a%d' % (tmp + 8 + p, res + p) for p in range(4)]
    for p in range(4):
        o += ['v_lshlrev_b32 v%d, 16, v%d' % (tmp + 2 * p, tmp + 8 + p),
              'v_and_b32 v%d, 0xffff0000, v%d' % (tmp + 2 * p + 1, tmp + 8 + p)]
    if is_d:
        o += ['v_accvgpr_read_b32 v%d, a%d' % (tmp + 8 + e, A_B2 + e) for e in range(8)]
        o += ['v_add_f32 v%d, v%d, v%d' % (tmp + e, tmp + e, tmp + 8 + e) for e in range(8)]
    return o


def finish_sum(st, rd, tmp, pk, packed):
    o = add8(rd, rd, rd + 8, packed) + add8(rd + 16, rd + 16, rd + 24, packed) + add8(rd, rd, rd + 16, packed)
    o += add8(tmp, tmp, rd, packed)
    o += ['v_cvt_pk_bf16_f32 v%d, v%d, v%d' % (pk + p, tmp + 2 * p, tmp + 2 * p + 1) for p in range(4)]
    o += ['v_accvgpr_write_b32 a%d, v%d' % (A_RES + 4 * st + p, pk + p) for p in range(4)]
    return o


def owner_stats(tmp, s1, t):
    a('v_pk_add_f32 %s, %s, %s' % (vr(t, 2), vr(tmp, 2), vr(tmp + 2, 2)))
    a('v_pk_add_f32 %s, %s, %s' % (vr(t + 2, 2), vr(tmp + 4, 2), vr(tmp + 6, 2)))
    a('v_pk_add_f32 %s, %s, %s' % (vr(t, 2), vr(t, 2), vr(t + 2, 2)))
    a('v_add_f32 v%d, v%d, v%d' % (s1, t, t + 1))
    a('v_pk_mul_f32 %s, %s, %s' % (vr(t, 2), vr(tmp, 2), vr(tmp, 2)))
    for e in (2, 4, 6):
        a('v_pk_fma_f32 %s, %s, %s, %s' % (vr(t, 2), vr(tmp + e, 2), vr(tmp + e, 2), vr(t, 2)))
    a('v_add_f32 v%d, v%d, v%d' % (s1 + 1, t, t + 1))
    for x, y in zip(xg_reduce(s1, t), xg_reduce(s1 + 1, t + 1)):
        a(x)
        a(y)


def red_addrs():
    a('s_lshl_b32 s%d, s%d, 13' % (sA, sW))
    a('s_add_u32 s%d, s%d, %d' % (sA, sA, L.L_R2))
    a('v_add_u32 v248, s%d, v1' % sA)
    a('s_and_b32 s%d, s%d, 1' % (sA, sW))
    a('s_lshl_b32 s%d, s%d, 11' % (sA, sA))
    a('s_lshr_b32 s%d, s%d, 1' % (sB, sW))
    a('s_lshl_b32 s%d, s%d, 12' % (sB, sB))
    a('s_add_u32 s%d, s%d, s%d' % (sA, sA, sB))
    a('s_add_u32 s%d, s%d, %d' % (sA, sA, L.L_R2))
    a('v_add_u32 v249, s%d, v1' % sA)


def publish_setup(xbase, sbase, fbase, per_pair, fsh):
    owner_index()
    a('s_mul_i32 s%d, s%d, 14' % (sCc, sB))
    a('s_add_u32 s%d, s%d, s%d' % (sCc, sCc, sA))
    a('s_lshl_b32 s%d, s%d, 10' % (sPX, sCc))
    a('s_lshl_b32 s%d, s%d, 7' % (sPS, sCc))
    a('s_lshl_b32 s%d, s%d, %d' % (sPF, sB, fsh))
    a('s_add_u32 s%d, s%d, s%d' % (sPF, sPF, sA))
    a('s_lshl_b32 s%d, s%d, 2' % (sPF, sPF))
    for dst, arr in ((sPX, xbase), (sPS, sbase), (sPF, fbase)):
        if per_pair:
            pair_base(sD, arr)
            a('s_add_u32 s%d, s%d, s%d' % (dst, dst, sD))
        else:
            a('s_add_u32 s%d, s%d, %d' % (dst, dst, arr))
    a('s_add_u32 s%d, s%d, %d' % (sPX2, sPX, 2 * 14336))


def publish_data(st, pk):
    store('buffer_store_dwordx4 %s, v1, %s, s%d offen offset:0' % (vr(pk), srd(S_WS), sPX if st == 0 else sPX2), sPC)


def publish_stats(tmps, t, s1):
    a('v_and_b32 v%d, 15, v0' % V_TOK)
    a('v_lshlrev_b32 v%d, 3, v%d' % (t + 4, V_TOK))
    for st in range(2):
        owner_stats(tmps[st], s1 + 2 * st, t)
    a('s_mov_b64 exec, 0xffff')
    store('buffer_store_dwordx2 %s, v%d, %s, s%d offen' % (vr(s1, 2), t + 4, srd(S_WS), sPS), sPC)
    a('s_add_u32 s%d, s%d, %d' % (sPS, sPS, 2 * 1792))
    store('buffer_store_dwordx2 %s, v%d, %s, s%d offen' % (vr(s1 + 2, 2), t + 4, srd(S_WS), sPS), sPC)
    a('s_mov_b64 exec, -1')


def publish_flags(lsh, between=()):
    a('v_lshlrev_b32 v241, %d, v0' % lsh)
    a('v_add_u32 v241, s%d, v241' % sPF)
    set_flags(241, 2, sPFC, V_T, between)


def run_tiles(tile_items, extras):
    for tile in range(4):
        items = tile_items(tile)
        ex = list(extras.get(tile, []))
        free = [k for k, it in enumerate(items) if k >= 3 and not it[2]]
        per = -(-len(ex) // max(1, len(free))) if ex else 0
        for k, (pre, m, post) in enumerate(items):
            for x in pre:
                x()
            a(m)
            if post:
                post()
            elif k >= 3:
                for _ in range(per):
                    if ex:
                        x = ex.pop(0)
                        if callable(x):
                            x()
                        else:
                            a(x)
        assert not ex


pair_base(sA, L.FA)
a('s_lshl_b32 s%d, s%d, 8' % (sB, sG))
a('s_add_u32 s%d, s%d, s%d' % (sA, sA, sB))
a('v_lshl_add_u32 v240, v0, 2, s%d' % sA)
a('s_lshl_b32 s%d, s%d, 2' % (sB, sW))
a('s_lshl_b32 s%d, 0x000f000f, s%d' % (sMK, sB))
a('s_mov_b32 s%d, s%d' % (sMK + 1, sMK))
red_addrs()
publish_setup(L.XB, L.SB, L.FB, True, 4)
a('s_mov_b32 s%d, s%d' % (sPC, sFD))
a('s_mov_b32 s%d, s%d' % (sPFC, sFAST))
pair_base(sA, L.O)
a('s_lshl_b32 s%d, s%d, 6' % (sB, sG))
a('s_lshl_b32 s%d, s%d, 2' % (sCc, sW))
a('s_add_u32 s%d, s%d, s%d' % (sB, sB, sCc))
a('s_lshl_b32 s%d, s%d, 10' % (sB, sB))
a('s_add_u32 s20, s%d, s%d' % (sA, sB))
for t in range(1, 4):
    a('s_add_u32 s%d, s20, %d' % (20 + t, 16384 * t))
poll(240)
stamp()


def b_oload(tile, i):
    return 'buffer_load_dwordx4 %s, v1, %s, s%d offen offset:%d sc1' % (vr(BO + (tile * 4 + i) * 4), srd(S_WS), 20 + tile, 1024 * i)


om = {}
for tile in range(2):
    for i in range(4):
        a(b_oload(tile, i))
        om[(tile, i)] = a.vm_mark()


def b_tile(tile):
    items = []
    for i in range(4):
        for t in range(4):
            r = BACC + (tile * 4 + t) * 4
            pre = [(lambda tl=tile, ii=i: a.wait_vm(om[(tl, ii)]))] if t == 0 else []
            post = None
            if tile < 2 and t == 1:
                def post(tl=tile + 2, ii=i):
                    a(b_oload(tl, ii))
                    om[(tl, ii)] = a.vm_mark()
            if tile >= 2 and t == 1:
                def post(u=tile - 2, ii=i):
                    a(c_wload(u)[ii])
            items.append((pre, '%s %s, %s, %s, %s' % (MFMA, vr(r), vr(BW + (i * 4 + t) * 4), vr(BO + (tile * 4 + i) * 4),
                                                      '0' if i == 0 else vr(r)), post))
    return items


BT0, BT1, BPK = 226, 2, 18
run_tiles(b_tile, {1: red_writes(BACC, 0), 2: red_writes(BACC + 16, 1), 3: red_writes(BACC + 32, 2)})
stamp2()
for x in red_writes(BACC + 48, 3):
    a(x)
for x in finish_pre(0, False, BT0) + finish_pre(1, False, BT1):
    a(x)
a('s_waitcnt lgkmcnt(0)')
a('s_barrier')
stamp2()
BRD1 = 162
for x in red_reads(0, BRD) + red_reads(1, BRD1):
    a(x)
a('s_waitcnt lgkmcnt(8)')
for x in finish_sum(0, BRD, BT0, BPK, True):
    a(x)
publish_data(0, BPK)
a('s_waitcnt lgkmcnt(0)')
for x in finish_sum(1, BRD1, BT1, BPK + 4, True):
    a(x)
publish_data(1, BPK + 4)
stamp2()
publish_flags(7, c_wload(2) + c_wload(3))
publish_stats([BT0, BT1], 36, 32)
stamp()

bst_mark = a.vm_mark()
for u in (4, 5):
    for x in c_wload(u):
        a(x)
pair_base(sD, L.FSB)
a('s_sub_u32 s%d, s%d, %d' % (sD, sD, L.FB[0]))
a('s_mul_i32 s%d, s%d, %d' % (sCc, sPAIR, L.FB[1] - L.FB[0]))
a('s_sub_u32 s%d, s%d, s%d' % (sD, sD, sCc))
a('v_lshlrev_b32 v241, 7, v0')
a('s_add_u32 s%d, s%d, s%d' % (sA, sPF, sD))
a('v_add_u32 v241, s%d, v241' % sA)
a.wait_vm(bst_mark)
a('s_mov_b64 exec, 3')
store('buffer_store_dword v%d, v241, %s, 0 offen' % (V_T, srd(S_WS)), sPFC)
a('s_mov_b64 exec, -1')
a('v_lshrrev_b32 v%d, 4, v0' % V_G)
a('v_and_b32 v%d, 15, v0' % V_TOK)
pair_base(sA, L.FB)
a('s_lshl_b32 s%d, s%d, 8' % (sB, sG))
a('s_add_u32 s%d, s%d, s%d' % (sA, sA, sB))
a('v_lshl_add_u32 v240, v0, 2, s%d' % sA)
a('s_mov_b32 s%d, 0x3fff3fff' % sMK)
a('s_mov_b32 s%d, 0x3fff3fff' % (sMK + 1))
a('s_lshl_b32 s%d, s%d, 2' % (sB, sG))
a('s_add_u32 s%d, s%d, s%d' % (sB, sB, sW))
pair_base(20, L.XB)
a('s_mul_i32 s%d, s%d, 14336' % (sCc, sB))
a('s_add_u32 s20, s20, s%d' % sCc)
for q in range(1, 4):
    a('s_add_u32 s%d, s20, %d' % (20 + q, 4096 * q))
a('s_mul_i32 s37, s%d, 14336' % sW)
a('s_add_u32 s37, s37, %d' % L.L_R2)
pair_base(32, L.SB)
a('s_mul_i32 s%d, s%d, 1792' % (sCc, sB))
a('s_add_u32 s32, s32, s%d' % sCc)
pair_base(sA, L.FSB)
a('s_lshl_b32 s%d, s%d, 6' % (sB, sB))
a('s_add_u32 s%d, s%d, s%d' % (sA, sA, sB))
a('v_lshl_add_u32 v247, v0, 2, s%d' % sA)
a('s_mov_b32 s%d, 0x3fff' % sMK2)
a('s_mov_b32 s%d, 0' % (sMK2 + 1))
a('v_lshlrev_b32 v238, 3, v%d' % V_TOK)
a('v_lshl_add_u32 v238, v%d, 7, v238' % V_G)
a('v_mov_b32 v242, 0x%x' % INV)
a('v_cmp_lt_u32 vcc, 1, v%d' % V_G)
a('v_cndmask_b32 v239, 0, v242, vcc')
a('v_or_b32 v239, v239, v238')
a('v_add_u32 v252, %d, v1' % L.L_R2)
poll(240)
stamp()


def c_xdma(u):
    def f():
        a('s_add_u32 m0, s37, %d' % (4096 * (u >> 2)))
        a('buffer_load_dwordx4 v1, %s, s%d offen offset:%d sc1 lds' % (srd(S_WS), 20 + (u >> 2), 1024 * (u & 3)))
    return f


xm = {}
for u in range(4):
    c_xdma(u)()
    xm[u] = a.vm_mark()
a.wait_vm(xm[3])
a('s_barrier')
stamp()


def c_xread(u):
    b = CX + 16 * (u & 1)
    return ['ds_read_b128 %s, v252 offset:%d' % (vr(b + 4 * t), (t * 14 + u) * 1024) for t in range(4)]


for x in c_xread(0):
    a(x)
CST2 = 244
cst_loads = ['buffer_load_dwordx2 %s, v%d, %s, s32 offen offset:%d sc1' %
             (vr(CSTR + 2 * i, 2) if i < 2 else vr(CST2 + 2 * (i - 2), 2), 239 if i == 3 else 238, srd(S_WS), 512 * i)
             for i in range(4)]
r = CSTR
cst_fill = []
for c_ in range(2):
    cst_fill += ['v_add_f32 v%d, v%d, v%d' % (r + c_, r + c_, r + 2 + c_),
                 'v_add_f32 v%d, v%d, v%d' % (CST2 + c_, CST2 + c_, CST2 + 2 + c_),
                 'v_add_f32 v%d, v%d, v%d' % (r + c_, r + c_, CST2 + c_)]
cst_fill += xg_reduce(r, r + 2) + xg_reduce(r + 1, r + 3) + stats_finish(r, r + 1, r + 2, True)
b1_fill = []
for t in range(4):
    for p in range(2):
        b1_fill += ['v_lshlrev_b32 v%d, 16, v%d' % (CB1 + 4 * t + 2 * p, CB1R + 2 * t + p),
                    'v_and_b32 v%d, 0xffff0000, v%d' % (CB1 + 4 * t + 2 * p + 1, CB1R + 2 * t + p)]
a('v_lshlrev_b32 v248, 4, v%d' % V_G)
a('v_lshlrev_b32 v249, 3, v%d' % V_G)
a('s_lshl_b32 s33, s41, 6')
a('s_add_u32 s33, s33, %d' % L.CSC)
a('s_lshl_b32 s36, s41, 5')
small = ['buffer_load_dwordx4 %s, v248, %s, s33 offen offset:%d sc1' % (vr(CCS + 4 * t), srd(S_WS), 64 * t) for t in range(4)]
small += ['buffer_load_dwordx2 %s, v249, %s, s36 offen offset:%d' % (vr(CB1R + 2 * t, 2), srd(S_B1), 32 * t) for t in range(4)]
W = {u: c_wload(u) for u in range(6, 14)}
plan = [[('x', 4), ('x', 5), ('x', 6), ('x', 7)],
        [('x', 8), ('w', 6, 0), ('w', 6, 1), ('w', 6, 2)],
        [('w', 6, 3), ('x', 9), ('x', 10), ('w', 7, 0)],
        [('x', 11), ('w', 7, 1), ('w', 7, 2), ('w', 7, 3), ('e', 0)],
        [('x', 12), ('x', 13), ('w', 8, 0), ('w', 8, 1)],
        [('w', 8, 2), ('w', 8, 3), ('w', 9, 0), ('w', 9, 1)],
        [('w', 9, 2), ('w', 9, 3), ('c', 0), ('c', 1), ('w', 10, 0)],
        [('w', 10, 1), ('w', 10, 2), ('w', 10, 3), ('c', 2), ('c', 3)],
        [('w', 11, 0), ('w', 11, 1), ('w', 11, 2), ('w', 11, 3)],
        [('w', 12, 0), ('w', 12, 1), ('w', 12, 2), ('w', 12, 3)],
        [('w', 13, 0), ('w', 13, 1), ('w', 13, 2), ('w', 13, 3)],
        [('s', 0), ('s', 1), ('s', 2), ('s', 3)],
        [('s', 4), ('s', 5), ('s', 6), ('s', 7)],
        []]
BARS = {3: 7, 7: 11, 11: 13}
wm, marks = {}, {}
for u in range(14):
    if u >= NRC:
        a.wait_vm(wm[u])
    if u == 6:
        early_check(246, 247, marks['e'])
    if u == 10:
        a.wait_vm(marks['c'])
    a('s_waitcnt lgkmcnt(0)')
    ws_ = CW + (u % NRC) * 16
    xb = CX + 16 * (u & 1)
    ev = {}
    reads = c_xread(u + 1) if u < 13 else []
    if u in BARS:
        ev[3] = [('bar', BARS[u])]
        for k, x in enumerate(reads):
            ev.setdefault(4 + k, []).append(x)
        slots = [8, 10, 12, 14, 15]
    else:
        for k, x in enumerate(reads):
            ev.setdefault(k, []).append(x)
        slots = [4, 7, 10, 13, 15]
    for k, it in zip(slots, plan[u]):
        ev.setdefault(k, []).append(it)
    fill = []
    if 10 <= u < 13:
        n = (len(cst_fill) + 2) // 3
        fill = cst_fill[(u - 10) * n:(u - 9) * n]
    if u == 13:
        a('s_lshl_b32 s%d, s%d, 7' % (sA, sW))
        a('s_add_u32 s%d, s%d, %d' % (sA, sA, L.L_STC))
        a('v_lshl_add_u32 v240, v%d, 3, s%d' % (V_TOK, sA))
        ev.setdefault(1, []).append('ds_write_b64 v240, %s' % vr(CSTR, 2))
    k = 0
    fi = 0
    for tile in range(4):
        for t in range(4):
            r = CACC + (tile * 4 + t) * 4
            a('%s %s, %s, %s, %s' % (MFMA, vr(r), vr(ws_ + 4 * t), vr(xb + 4 * tile), '0' if u == 0 else vr(r)))
            for it in ev.get(k, []):
                if isinstance(it, str):
                    a(it)
                elif it[0] == 'bar':
                    a.wait_vm(xm[it[1]])
                    a('s_barrier')
                elif it[0] == 'x':
                    c_xdma(it[1])()
                    xm[it[1]] = a.vm_mark()
                elif it[0] == 'w':
                    a(W[it[1]][it[2]])
                    wm[it[1]] = a.vm_mark()
                elif it[0] == 'e':
                    marks['e'] = early_issue(246, 247)
                elif it[0] == 'c':
                    a(cst_loads[it[1]])
                    marks['c'] = a.vm_mark()
                elif it[0] == 's':
                    a(small[it[1]])
                    marks['s'] = a.vm_mark()
            for _ in range(2):
                if fi < len(fill) and k >= 1:
                    a(fill[fi])
                    fi += 1
            k += 1
    assert fi == len(fill)
a.wait_vm(marks['s'])
for x in b1_fill:
    a(x)
a('s_waitcnt lgkmcnt(0)')
a('s_barrier')
a('v_lshlrev_b32 v240, 3, v%d' % V_TOK)
a('v_add_u32 v240, %d, v240' % L.L_STC)
for t in range(4):
    a('ds_read_b64 %s, v240 offset:%d' % (vr(CMR + 2 * t, 2), 128 * t))
stamp()
GA = 2.0 * 0.7978845608028654 * 1.4426950408889634
GB = GA * 0.044715
a('s_mov_b32 s34, %s' % f2h(-GB))
a('s_mov_b32 s35, %s' % f2h(-GB))
GT = 66
a('v_mov_b32 v%d, %s' % (GT + 30, f2h(-GA)))
a('v_mov_b32 v%d, %s' % (GT + 31, f2h(-GA)))


def h_base():
    pair_base(sA, L.H)
    a('s_mul_i32 s%d, s%d, %d' % (sB, sG, 4 * 56 * 1024))
    a('s_add_u32 s%d, s%d, s%d' % (sA, sA, sB))
    a('s_lshl_b32 s%d, s%d, 2' % (sB, sJ))
    a('s_add_u32 s%d, s%d, s%d' % (sB, sB, sW))
    a('s_lshl_b32 s%d, s%d, 11' % (sB, sB))
    a('s_add_u32 s%d, s%d, s%d' % (sA, sA, sB))


def emit_gelu(extra):
    extra = list(extra)
    per = -(-len(extra) // 8)
    for tile in range(4):
        m = CMR + 2 * tile
        for pp in range(2):
            hf = GT + 16 + 4 * ((tile * 2 + pp) & 1)
            zs = [(CACC + (tile * 4 + 2 * pp + k) * 4 + 2 * p, 2 * pp + k, p, GT + 2 * (k * 2 + p), hf + 2 * k + p)
                  for k in range(2) for p in range(2)]
            left = [per]

            def maybe():
                if extra and left[0] > 0:
                    a(extra.pop(0))
                    left[0] -= 1
            for z, t, p, t0, h in zs:
                a('v_pk_fma_f32 %s, %s, %s, %s op_sel_hi:[1,0,1] neg_lo:[0,1,0] neg_hi:[0,1,0]' %
                  (vr(z, 2), vr(CCS + 4 * t + 2 * p, 2), vr(m, 2), vr(z, 2)))
            for z, t, p, t0, h in zs:
                a('v_pk_fma_f32 %s, %s, %s, %s op_sel:[0,1,0] op_sel_hi:[1,1,1]' %
                  (vr(z, 2), vr(z, 2), vr(m, 2), vr(CB1 + 4 * t + 2 * p, 2)))
            maybe()
            for z, t, p, t0, h in zs:
                a('v_pk_mul_f32 %s, %s, %s' % (vr(t0, 2), vr(z, 2), vr(z, 2)))
            for z, t, p, t0, h in zs:
                a('v_pk_fma_f32 %s, %s, %s, %s' % (vr(t0, 2), vr(t0, 2), 's[34:35]', vr(GT + 30, 2)))
            for z, t, p, t0, h in zs:
                a('v_pk_mul_f32 %s, %s, %s' % (vr(t0, 2), vr(t0, 2), vr(z, 2)))
            maybe()
            for z, t, p, t0, h in zs:
                a('v_exp_f32 v%d, v%d' % (t0, t0))
                a('v_exp_f32 v%d, v%d' % (t0 + 1, t0 + 1))
            maybe()
            for z, t, p, t0, h in zs:
                a('v_pk_add_f32 %s, %s, 1.0 op_sel_hi:[1,0]' % (vr(t0, 2), vr(t0, 2)))
            for z, t, p, t0, h in zs:
                a('v_rcp_f32 v%d, v%d' % (t0, t0))
                a('v_rcp_f32 v%d, v%d' % (t0 + 1, t0 + 1))
            maybe()
            for z, t, p, t0, h in zs:
                a('v_pk_mul_f32 %s, %s, %s' % (vr(t0, 2), vr(t0, 2), vr(z, 2)))
            for z, t, p, t0, h in zs:
                a('v_cvt_pk_bf16_f32 v%d, v%d, v%d' % (h, t0, t0 + 1))
            store('buffer_store_dwordx4 %s, v1, %s, s%d offen offset:%d' % (vr(hf), srd(S_WS), sA, 1024 * pp), sFH)
        if tile < 3:
            a('s_add_u32 s%d, s%d, %d' % (sA, sA, 56 * 1024))
    assert not extra


a('s_cmp_eq_u32 s%d, 0' % sPAIR)
a('s_cbranch_scc0 L_gelu1')
wd_bases()
h_base()
a('s_waitcnt lgkmcnt(0)')
emit_gelu([wd_load(fi) for fi in range(*WD_CH[1])])
a('s_branch L_gelu_done')
a.label('L_gelu1')
h_base()
a('s_waitcnt lgkmcnt(0)')
emit_gelu([])
a.label('L_gelu_done')
pair_base(sA, L.FC)
a('s_lshl_b32 s%d, s%d, 5' % (sB, sG))
a('s_lshl_b32 s%d, s%d, 2' % (sCc, sJ))
a('s_add_u32 s%d, s%d, s%d' % (sB, sB, sCc))
a('s_add_u32 s%d, s%d, s%d' % (sB, sB, sW))
a('s_lshl_b32 s%d, s%d, 2' % (sB, sB))
a('s_add_u32 s%d, s%d, s%d' % (sA, sA, sB))
a('v_mov_b32 v241, s%d' % sA)
set_flags(241, 1, sFAST)
stamp()

DH, DACC, DRD, DTMP = 2, 114, 178, 210
DRING, DLOOK = 16, 10
a('s_cmp_eq_u32 s%d, 0' % sPAIR)
a('s_cbranch_scc0 L_d_start')
for fi in range(*WD_CH[2]):
    a(wd_load(fi))
a.label('L_d_start')
pair_base(sA, L.FC)
a('s_lshl_b32 s%d, s%d, 7' % (sB, sG))
a('s_add_u32 s%d, s%d, s%d' % (sA, sA, sB))
a('v_lshl_add_u32 v243, v0, 2, s%d' % sA)
a('s_mul_i32 s%d, s%d, 7' % (sB, sW))
a('s_lshl_b32 s%d, 0x7f, s%d' % (sMK, sB))
a('s_mov_b32 s%d, 0' % (sMK + 1))
red_addrs()
publish_setup(L.XA[1], L.SA[1], L.FX[1], False, 5)
a('s_and_b32 s%d, s%d, 1' % (sA, sG))
a('s_lshr_b32 s%d, s%d, 1' % (sB, sW))
a('s_and_b32 s%d, s%d, s%d' % (sA, sA, sB))
a('s_xor_b32 s%d, s%d, 1' % (sA, sA))
a('s_and_b32 s%d, s%d, s%d' % (sPC, sFD, sA))
a('s_and_b32 s%d, s%d, s%d' % (sPFC, sFAST, sA))
pair_base(sA, L.H)
a('s_mul_i32 s%d, s%d, %d' % (sB, sG, 4 * 56 * 1024))
a('s_add_u32 s%d, s%d, s%d' % (sA, sA, sB))
a('s_mul_i32 s%d, s%d, %d' % (sB, sW, 14 * 1024))
a('s_add_u32 s%d, s%d, s%d' % (sO, sA, sB))
quarter_offsets(4, 56 * 1024)
a('s_cmp_eq_u32 s%d, 0' % sPAIR)
a('s_cbranch_scc1 L_d_nout')
owner_index()
a('s_mul_i32 s%d, s%d, 14336' % (sPX, sB))
a('s_lshl_b32 s%d, s%d, 6' % (sA, sA))
a('s_add_u32 s%d, s%d, s%d' % (sPX, sPX, sA))
a('s_add_u32 s%d, s%d, %d' % (sPX2, sPX, 2 * 14336))
a.label('L_d_nout')
a('v_and_b32 v%d, 15, v0' % V_TOK)
a('v_lshrrev_b32 v%d, 4, v0' % V_G)
a('v_mul_u32_u24 v242, 896, v%d' % V_TOK)
a('v_lshl_add_u32 v242, v%d, 3, v242' % V_G)
poll(243)
stamp()


def d_hload(q):
    tile, kk = divmod(q, 14)
    return ('buffer_load_dwordx4 %s, v1, %s, s%d offen offset:%d sc1' %
            (vr(DH + (q % DRING) * 4), srd(S_WS), sO + 4 * tile + (kk >> 2), 1024 * (kk & 3)))


hm = {}
for q in range(DLOOK):
    a(d_hload(q))
    hm[q] = a.vm_mark()
a('s_barrier')


def d_tile(tile):
    items = []
    for kk in range(14):
        q = tile * 14 + kk
        for t in range(4):
            r = DACC + (tile * 4 + t) * 4
            pre = [(lambda qq=q: a.wait_vm(hm[qq]))] if t == 0 else []
            post = None
            if t == 0 and q + DLOOK < 56:
                def post(qq=q + DLOOK):
                    a(d_hload(qq))
                    hm[qq] = a.vm_mark()
            items.append((pre, '%s %s, %s, %s, %s' % (MFMA, vr(r), ar((kk * 4 + t) * 4), vr(DH + (q % DRING) * 4),
                                                      '0' if kk == 0 else vr(r)), post))
    return items


def d_out_store(st, pk):
    a('buffer_store_dwordx2 %s, v242, %s, s%d offen %s' % (vr(pk, 2), srd(S_OUT), sPX if st == 0 else sPX2, OUTSC))
    a('buffer_store_dwordx2 %s, v242, %s, s%d offen offset:32 %s' % (vr(pk + 2, 2), srd(S_OUT), sPX if st == 0 else sPX2, OUTSC))


def d_store(st, pk):
    fin, done = newlab('L_dfin'), newlab('L_ddone')
    a('s_cmp_eq_u32 s%d, 0' % sPAIR)
    a('s_cbranch_scc0 %s' % fin)
    publish_data(st, pk)
    a('s_branch %s' % done)
    a.label(fin)
    n = a.vm_issued
    d_out_store(st, pk)
    a.vm_issued = n
    a.label(done)


DT0, DT1, DPK = 210, 226, 66
stage0 = [lambda: (a('s_waitcnt lgkmcnt(0)'), a('s_barrier'))] + red_reads(0, DRD) + finish_pre(0, True, DT0)
stage0 += [lambda: a('s_waitcnt lgkmcnt(0)')] + finish_sum(0, DRD, DT0, DPK, False) + [lambda: d_store(0, DPK)]
run_tiles(d_tile, {1: red_writes(DACC, 0), 2: red_writes(DACC + 16, 1), 3: red_writes(DACC + 32, 2) + stage0})
stamp2()
for x in red_writes(DACC + 48, 3):
    a(x)
for x in finish_pre(1, True, DT1):
    a(x)
a('s_waitcnt lgkmcnt(0)')
a('s_barrier')
stamp2()
for x in red_reads(1, DRD):
    a(x)
a('s_waitcnt lgkmcnt(0)')
for x in finish_sum(1, DRD, DT1, DPK + 4, True):
    a(x)
d_store(1, DPK + 4)
stamp()
a('s_cmp_eq_u32 s%d, 0' % sPAIR)
a('s_cbranch_scc0 L_next_pair')
publish_flags(8)
publish_stats([DT0, DT1], 88, 84)
a('s_waitcnt vmcnt(0)')
stats_flags(L.FSA - L.FX[1], 8)
a.label('L_next_pair')
stamp()
a('s_add_u32 s%d, s%d, 1' % (sPAIR, sPAIR))
a('s_cmp_lt_u32 s%d, 2' % sPAIR)
a('s_cbranch_scc1 L_pair')

a('s_cmp_eq_u32 s2, 0')
a('s_cbranch_scc0 L_noepoch')
a('s_cmp_eq_u32 s%d, 0' % sW)
a('s_cbranch_scc0 L_noepoch')
a('buffer_load_dword v2, off, %s, 0 sc1' % srd(S_WS))
a('s_waitcnt vmcnt(0)')
a('v_add_u32 v2, 1, v2')
a('s_mov_b64 exec, 1')
a('buffer_store_dword v2, off, %s, 0 sc1' % srd(S_WS))
a('s_mov_b64 exec, -1')
a.label('L_noepoch')
if PAD:
    a.label('L_padspin')
    a('s_memrealtime s[34:35]')
    a('s_waitcnt lgkmcnt(0)')
    a('s_sub_u32 s34, s34, s0')
    a('s_cmp_lt_u32 s34, %d' % PAD[0])
    a('s_cbranch_scc1 L_padspin')
if DBG:
    a('s_memtime s[32:33]')
    a('s_memrealtime s[34:35]')
    a('s_waitcnt lgkmcnt(0)')
    a('s_sub_u32 s32, s32, s26')
    a('s_sub_u32 s34, s34, s0')
    build_srd(S_TMP, P_DBG, 256)
    a('v_mov_b32 v2, s32')
    a('v_mov_b32 v3, s34')
    a('v_mov_b32 v4, s%d' % sFAST)
    a('v_mov_b32 v5, s%d' % sXCC)
    a('s_lshr_b32 s%d, s2, 6' % sA)
    a('s_lshl_b32 s%d, s%d, 4' % (sA, sA))
    a('s_and_b32 s%d, s2, 63' % sB)
    a('s_or_b32 s%d, s%d, s%d' % (sB, sB, sW))
    a('s_cmp_eq_u32 s%d, 0' % sB)
    a('s_cselect_b32 s%d, s%d, 0x%x' % (sA, sA, INV))
    a('v_mov_b32 v6, s%d' % sA)
    a('s_mov_b64 exec, 1')
    a('buffer_store_dwordx4 v[2:5], v6, %s, 0 offen' % srd(S_TMP))
    a('s_mov_b64 exec, -1')
if DIAG:
    stamp()
    a('s_mov_b32 s%d, 63' % sSTI)
    a('s_lshl_b64 exec, 1, s%d' % sSTI)
    a('v_mov_b32 v%d, s%d' % (V_STAMP, sERR))
    a('s_mov_b32 s%d, 62' % sSTI)
    a('s_lshl_b64 exec, 1, s%d' % sSTI)
    a('v_mov_b32 v%d, s%d' % (V_STAMP, sFAST))
    a('s_mov_b64 exec, -1')
    a('s_lshl_b32 s%d, s2, 2' % sA)
    a('s_add_u32 s%d, s%d, s%d' % (sA, sA, sW))
    a('s_lshl_b32 s%d, s%d, 8' % (sA, sA))
    a('v_lshlrev_b32 v2, 2, v0')
    a('s_add_u32 s%d, s%d, %d' % (sA, sA, L.WS_USED))
    a('s_mov_b32 s%d, 0x%x' % (S_WS + 2, L.WS_USED + 256 * 1024))
    a('buffer_store_dword v%d, v2, %s, s%d offen' % (V_STAMP, srd(S_WS), sA))
a.label('L_end')
a('s_endpgm')

a.finalize()
body = a.text()

import os
hdr = open(os.path.join(os.path.dirname(os.path.abspath(__file__)), 'header.txt')).read()
out = hdr + '; @launch grid=(256,1,1) block=(256,1,1) lds=%d\n' % L.LDS_BYTES
out += '.amdgcn_target "amdgcn-amd-amdhsa--gfx950"\n.text\n.globl %s_kernel\n.p2align 8\n.type %s_kernel,@function\n%s_kernel:\n' % (NAME, NAME, NAME)
out += body
out += '''.section .rodata,"a"
.p2align 6
.amdhsa_kernel %s_kernel
  .amdhsa_next_free_vgpr 512
  .amdhsa_next_free_sgpr 102
  .amdhsa_accum_offset 256
  .amdhsa_group_segment_fixed_size 0
  .amdhsa_kernarg_size 88
  .amdhsa_user_sgpr_count 2
  .amdhsa_user_sgpr_kernarg_segment_ptr 1
  .amdhsa_system_sgpr_workgroup_id_x 1
.end_amdhsa_kernel
''' % NAME
sys.stdout.write(out)
```

```python
import struct
import sys
from asmlib import Asm
import layout as L

NAME = 'interleave_layers__sliding_local_dilated__mixer_channel_mlp__prompt'
DIAG = '--diag' in sys.argv
FASTMODE = ([x[7:] for x in sys.argv if x.startswith('--fast=')] + ['flags'])[0]
NOFAST = FASTMODE == 'none'
PAD = [int(x[6:]) for x in sys.argv if x.startswith('--pad=')]
DBG = '--dbg' in sys.argv or bool(PAD)
SPIN_LIMIT = 200000
OUTSC = ([x[8:] for x in sys.argv if x.startswith('--outsc=')] + [''])[0].replace('_', ' ')
SLEEP = int(([x[8:] for x in sys.argv if x.startswith('--sleep=')] + ['0'])[0])
INV = 0x80000000

a = Asm()

sXCC = 3
S_WS, S_TMP, S_B1, S_OUT = 4, 8, 12, 16
P_X, P_WQKV, P_WO, P_BX, P_W1, P_B1, P_W2, P_B2, P_OUT, P_DBG, P_WSP = 20, 22, 24, 26, 28, 30, 32, 34, 36, 38, 40
sS, sC, sG, sJ, sW, sT, sPAIR, sSPIN = 42, 43, 44, 45, 46, 47, 48, 49
sM1 = 50
sM2 = 58
sM0 = 66
sO = 74
sA, sB, sCc, sD = 90, 91, 92, 93
sMK = 94
sTS = 96
sGT = 98
sERR = 99
sSTI = 100
sFAST = 101
sFD = 27
sPFC = 26
sFH = 39


def srd(n):
    return 's[%d:%d]' % (n, n + 3)


def vr(n, k=4):
    return 'v[%d:%d]' % (n, n + k - 1)


def ar(n, k=4):
    return 'a[%d:%d]' % (n, n + k - 1)


def sp(n):
    return 's[%d:%d]' % (n, n + 1)


def f2h(x):
    return '0x%08x' % struct.unpack('<I', struct.pack('<f', x))[0]


V_T, V_STAMP = 254, 255
V_TOK, V_G = 250, 251
MFMA = 'v_mfma_f32_16x16x32_bf16'


DIAG2 = '--diag2' in sys.argv


def stamp2():
    if DIAG2:
        stamp()


def stamp():
    if not DIAG:
        return
    a('s_memtime %s' % sp(sTS))
    a('s_waitcnt lgkmcnt(0)')
    a('s_lshl_b64 exec, 1, s%d' % sSTI)
    a('v_mov_b32 v%d, s%d' % (V_STAMP, sTS))
    a('s_mov_b64 exec, -1')
    a('s_add_u32 s%d, s%d, 1' % (sSTI, sSTI))


lab_no = [0]


def newlab(p):
    lab_no[0] += 1
    return '%s_%d' % (p, lab_no[0])


def build_srd(dst, ptr, nbytes):
    a('s_mov_b32 s%d, s%d' % (dst, ptr))
    a('s_and_b32 s%d, s%d, 0xffff' % (dst + 1, ptr + 1))
    a('s_mov_b32 s%d, 0x%x' % (dst + 2, nbytes))
    a('s_mov_b32 s%d, 0x20000' % (dst + 3))


def poll(voff, off2=None):
    lab, done = newlab('L_poll'), newlab('L_polldone')
    a('s_mov_b64 exec, %s' % sp(sMK))
    a('s_mov_b32 s%d, 0' % sSPIN)
    a.label(lab)
    a('buffer_load_dword v253, v%d, %s, 0 offen sc1' % (voff, srd(S_WS)))
    if off2 is not None:
        a('buffer_load_dword v245, v%d, %s, 0 offen offset:%d sc1' % (voff, srd(S_WS), off2))
    a('s_waitcnt vmcnt(0)')
    if off2 is not None:
        a('v_xor_b32 v245, s%d, v245' % sT)
        a('v_xor_b32 v253, s%d, v253' % sT)
        a('v_or_b32 v253, v253, v245')
        a('v_cmp_ne_u32 vcc, 0, v253')
    else:
        a('v_cmp_ne_u32 vcc, s%d, v253' % sT)
    a('s_nop 4')
    a('s_cbranch_vccz %s' % done)
    if SLEEP:
        a('s_sleep %d' % SLEEP)
    a('s_add_u32 s%d, s%d, 1' % (sSPIN, sSPIN))
    a('s_cmp_lt_u32 s%d, %d' % (sSPIN, SPIN_LIMIT))
    a('s_cbranch_scc1 %s' % lab)
    a('s_add_u32 s%d, s%d, 1' % (sERR, sERR))
    a.label(done)
    a('s_mov_b64 exec, -1')


sMK2 = 30


def early_issue(dst, voff, off=0):
    a('s_mov_b64 exec, %s' % sp(sMK2))
    a('buffer_load_dword v%d, v%d, %s, 0 offen offset:%d sc1' % (dst, voff, srd(S_WS), off))
    a('s_mov_b64 exec, -1')
    return a.vm_mark()


def early_check(dst, voff, mark, off=0):
    ok = newlab('L_early')
    a.wait_vm(mark)
    a('s_mov_b64 exec, %s' % sp(sMK2))
    a('v_cmp_ne_u32 vcc, s%d, v%d' % (sT, dst))
    a('s_mov_b64 exec, -1')
    a('s_nop 2')
    a('s_cbranch_vccz %s' % ok)
    a('s_mov_b64 %s, %s' % (sp(sMK), sp(sMK2)))
    n = a.vm_issued
    if off:
        a('v_add_u32 v253, %d, v%d' % (off, voff))
        a('v_mov_b32 v%d, v253' % dst)
        poll(dst)
    else:
        poll(voff)
    a.vm_issued = n
    a.label(ok)


def store(fmt, cond=None):
    if cond is None or NOFAST or (FASTMODE == 'flags' and cond in (sFD, sFH, sPC)):
        a(fmt + ' sc1')
        return
    slow, done = newlab('L_slow'), newlab('L_st')
    a('s_cmp_eq_u32 s%d, 0' % cond)
    a('s_cbranch_scc1 %s' % slow)
    a(fmt)
    a('s_branch %s' % done)
    a.label(slow)
    a(fmt + ' sc1')
    a.vm_issued -= 1
    a.label(done)


def set_flags(voff, nlanes, cond=None, val=V_T, between=()):
    mark = a.vm_mark()
    for x in between:
        a(x)
    a.wait_vm(mark)
    a('s_mov_b64 exec, %d' % ((1 << nlanes) - 1))
    store('buffer_store_dword v%d, v%d, %s, 0 offen' % (val, voff, srd(S_WS)), cond)
    a('s_mov_b64 exec, -1')


def xg_reduce(x, t, op='v_add_f32'):
    return ['v_mov_b32 v%d, v%d' % (t, x),
            'v_permlane32_swap_b32 v%d, v%d' % (x, t),
            '%s v%d, v%d, v%d' % (op, x, x, t),
            'v_mov_b32 v%d, v%d' % (t, x),
            'v_permlane16_swap_b32 v%d, v%d' % (x, t),
            '%s v%d, v%d, v%d' % (op, x, x, t)]


EPS = 1e-5


def stats_finish(s1, s2, t, double_ln):
    o = ['v_mul_f32 v%d, %s, v%d' % (s1, f2h(1.0 / 448), s1),
         'v_mul_f32 v%d, %s, v%d' % (s2, f2h(1.0 / 448), s2),
         'v_fma_f32 v%d, -v%d, v%d, v%d' % (s2, s1, s1, s2),
         'v_max_f32 v%d, 0, v%d' % (s2, s2),
         'v_add_f32 v%d, %s, v%d' % (t, f2h(EPS), s2),
         'v_rsq_f32 v%d, v%d' % (t, t)]
    if not double_ln:
        o += ['v_mov_b32 v%d, v%d' % (s2, t)]
    else:
        o += ['v_mul_f32 v%d, v%d, v%d' % (s2, s2, t),
              'v_fmaak_f32 v%d, v%d, v%d, %s' % (s2, s2, t, f2h(EPS)),
              'v_rsq_f32 v%d, v%d' % (s2, s2),
              'v_mul_f32 v%d, v%d, v%d' % (s2, s2, t)]
    return o


def pair_base(dst, arr):
    a('s_mul_i32 s%d, s%d, %d' % (dst, sPAIR, arr[1] - arr[0]))
    a('s_add_u32 s%d, s%d, %d' % (dst, dst, arr[0]))


def quarter_offsets(n, stride):
    for t in range(n):
        if t:
            a('s_add_u32 s%d, s%d, %d' % (sO + 4 * t, sO + 4 * (t - 1), stride))
        for q in range(1, 4):
            a('s_add_u32 s%d, s%d, %d' % (sO + 4 * t + q, sO + 4 * t, 4096 * q))


sPX, sPS, sPF, sPC, sPX2 = 36, 37, 28, 29, 33


def stats_flags(delta, lsh):
    a('v_lshlrev_b32 v241, %d, v0' % lsh)
    a('s_add_u32 s%d, s%d, %d' % (sA, sPF, delta))
    a('v_add_u32 v241, s%d, v241' % sA)
    a('s_mov_b64 exec, 3')
    store('buffer_store_dword v%d, v241, %s, 0 offen' % (V_T, srd(S_WS)), sPFC)
    a('s_mov_b64 exec, -1')


a('s_cmp_ge_u32 s2, 256')
a('s_cbranch_scc1 L_end')
a('s_load_dwordx16 s[20:35], s[0:1], 0')
a('s_load_dwordx4 s[36:39], s[0:1], 64')
a('s_load_dwordx2 s[40:41], s[0:1], 80')
a('s_getreg_b32 s%d, hwreg(HW_REG_XCC_ID, 0, 4)' % sXCC)
a('s_and_b32 s%d, s2, 7' % sA)
a('s_lshr_b32 s%d, s2, 3' % sB)
a('s_lshr_b32 s%d, s%d, 4' % (sCc, sB))
a('s_lshl_b32 s%d, s%d, 1' % (sS, sA))
a('s_add_u32 s%d, s%d, s%d' % (sS, sS, sCc))
a('s_and_b32 s%d, s%d, 15' % (sC, sB))
a('s_lshr_b32 s%d, s%d, 3' % (sA, sC))
a('s_lshl_b32 s%d, s%d, 1' % (sG, sS))
a('s_add_u32 s%d, s%d, s%d' % (sG, sG, sA))
a('s_and_b32 s%d, s%d, 7' % (sJ, sC))
a('s_mov_b32 s%d, 0' % sERR)
a('v_lshrrev_b32 v2, 6, v0')
a('v_and_b32 v0, 63, v0')
a('v_readfirstlane_b32 s%d, v2' % sW)
a('v_lshlrev_b32 v1, 4, v0')
if DIAG:
    a('v_mov_b32 v%d, 0' % V_STAMP)
    a('s_mov_b32 s%d, 0' % sSTI)
stamp()
a('v_and_b32 v%d, 15, v0' % V_TOK)
a('v_lshrrev_b32 v%d, 4, v0' % V_G)
sSTG = 40
a('s_waitcnt lgkmcnt(0)')
if DBG:
    a('s_memtime s[26:27]')
    a('s_memrealtime s[0:1]')
    a('s_waitcnt lgkmcnt(0)')
build_srd(S_WS, P_WSP, L.WS_USED)
a('buffer_load_dword v%d, off, %s, 0 sc1' % (V_T, srd(S_WS)))
a('s_lshl_b32 s%d, s%d, 14' % (sSTG, sW))
a('s_add_u32 s%d, s%d, %d' % (sSTG, sSTG, L.L_R2))

build_srd(S_TMP, P_X, 2048 * 896)
a('v_mul_u32_u24 v2, 896, v%d' % V_TOK)
a('v_lshl_add_u32 v2, v%d, 3, v2' % V_G)
a('s_lshr_b32 s%d, s%d, 1' % (sA, sC))
a('s_lshl_b32 s%d, s%d, 3' % (sB, sS))
a('s_add_u32 s%d, s%d, s%d' % (sO + 0, sA, sB))
a('s_and_b32 s%d, s%d, 1' % (sA, sC))
a('s_mul_i32 s%d, s%d, 7' % (sA, sA))
a('s_add_u32 s%d, s%d, s%d' % (sO + 1, sA, sW))
a('s_cmp_lt_u32 s%d, 3' % sW)
a('s_cselect_b32 s%d, 0, 0x%x' % (sO + 2, INV))
a('s_mul_i32 s%d, s%d, 14336' % (sA, sO + 0))
a('s_lshl_b32 s%d, s%d, 6' % (sB, sO + 1))
a('s_add_u32 s%d, s%d, s%d' % (sA, sA, sB))
a('v_or_b32 v3, s%d, v2' % (sO + 2))
a('buffer_load_dwordx2 v[10:11], v2, %s, s%d offen' % (srd(S_TMP), sA))
a('buffer_load_dwordx2 v[12:13], v2, %s, s%d offen offset:32' % (srd(S_TMP), sA))
a('buffer_load_dwordx2 v[14:15], v3, %s, s%d offen offset:256' % (srd(S_TMP), sA))
a('buffer_load_dwordx2 v[16:17], v3, %s, s%d offen offset:288' % (srd(S_TMP), sA))

build_srd(S_TMP, P_WQKV, 448 * 2688)
qMAT, qU, qINV = sO + 3, sO + 4, sO + 5
a('s_lshl_b32 s%d, s%d, 4' % (sA, sW))
a('s_add_u32 s%d, s%d, s%d' % (sA, sA, sS))
a('s_cmp_lt_u32 s%d, 42' % sA)
a('s_cselect_b32 s%d, 0, 0x%x' % (qINV, INV))
a('s_min_u32 s%d, s%d, 41' % (sA, sA))
a('s_mul_i32 s%d, s%d, 4682' % (qMAT, sA))
a('s_lshr_b32 s%d, s%d, 16' % (qMAT, qMAT))
a('s_mul_i32 s%d, s%d, 14' % (sB, qMAT))
a('s_sub_u32 s%d, s%d, s%d' % (qU, sA, sB))
a('s_mul_i32 s%d, s%d, %d' % (sA, qU, 32 * 2688))
a('s_mul_i32 s%d, s%d, 896' % (sB, qMAT))
a('s_add_u32 s%d, s%d, s%d' % (sA, sA, sB))
a('s_mul_i32 s%d, s%d, 56' % (sB, sC))
a('s_add_u32 s%d, s%d, s%d' % (sA, sA, sB))
a('v_lshrrev_b32 v4, 2, v0')
a('v_mul_u32_u24 v4, 2688, v4')
a('v_and_b32 v5, 3, v0')
a('v_lshl_add_u32 v4, v5, 4, v4')
a('v_or_b32 v4, s%d, v4' % qINV)
a('s_mov_b32 m0, s%d' % sSTG)
a('s_add_u32 s%d, s%d, %d' % (sB, sA, 16 * 2688))
a('buffer_load_dwordx4 v4, %s, s%d offen lds' % (srd(S_TMP), sA))
a('s_add_u32 m0, s%d, 1024' % sSTG)
a('s_nop 0')
a('buffer_load_dwordx4 v4, %s, s%d offen lds' % (srd(S_TMP), sB))

bINV, bDST, bSTR = 20, 21, 22
a('s_lshl_b32 s%d, s%d, 5' % (sA, sW))
a('s_add_u32 s%d, s%d, s%d' % (sA, sA, sG))
a('s_cmp_lt_u32 s%d, 72' % sA)
a('s_cselect_b32 s%d, 0, 0x%x' % (bINV, INV))
a('s_cmp_eq_u32 s%d, 7' % sJ)
a('s_cselect_b32 s%d, 0x%x, s%d' % (bINV, INV, bINV))
a('s_min_u32 s%d, s%d, 71' % (sA, sA))
a('s_min_u32 s%d, s%d, 6' % (sD, sJ))
a('s_cmp_lt_u32 s%d, 16' % sA)
a('s_cselect_b32 s%d, s%d, s%d' % (S_TMP, P_WO, P_W2))
a('s_cselect_b32 s%d, s%d, s%d' % (S_TMP + 1, P_WO + 1, P_W2 + 1))
a('s_mov_b32 s%d, 0x%x' % (S_TMP + 2, 1792 * 896))
a('s_cselect_b32 s%d, 0x%x, s%d' % (S_TMP + 2, 448 * 896, S_TMP + 2))
a('s_cselect_b32 s%d, 28, 32' % sB)
a('s_cselect_b32 s%d, 0, 16' % sCc)
a('s_mov_b32 s%d, %d' % (bSTR, 56 * 1024))
a('s_cselect_b32 s%d, %d, s%d' % (bSTR, 16 * 1024, bSTR))
a('s_mov_b32 s%d, %d' % (bDST, L.WD))
a('s_cselect_b32 s%d, %d, s%d' % (bDST, L.WB, bDST))
a('s_cselect_b32 s%d, 0x%x, 0' % (sO + 9, INV))
a('s_and_b32 s%d, s%d, 0xffff' % (S_TMP + 1, S_TMP + 1))
a('s_mov_b32 s%d, 0x20000' % (S_TMP + 3))
a('s_sub_u32 s%d, s%d, s%d' % (sA, sA, sCc))
a('s_lshl_b32 s%d, s%d, 10' % (sCc, sA))
a('s_add_u32 s%d, s%d, s%d' % (bDST, bDST, sCc))
a('s_lshl_b32 s%d, s%d, 2' % (sCc, sD))
a('s_mul_i32 s%d, s%d, s%d' % (sCc, sCc, bSTR))
a('s_add_u32 s%d, s%d, s%d' % (bDST, bDST, sCc))
a('s_mul_i32 s%d, s%d, s%d' % (sA, sA, sB))
a('s_mul_i32 s%d, s%d, 896' % (sA, sA))
a('s_lshl_b32 s%d, s%d, 7' % (sB, sD))
a('s_add_u32 s%d, s%d, s%d' % (sA, sA, sB))
a('v_lshrrev_b32 v6, 3, v0')
a('v_mul_u32_u24 v6, 896, v6')
a('v_and_b32 v5, 7, v0')
a('v_lshl_add_u32 v6, v5, 4, v6')
a('v_or_b32 v6, s%d, v6' % bINV)
a('v_cmp_lt_u32 vcc, 31, v0')
a('v_mov_b32 v7, s%d' % (sO + 9))
a('v_cndmask_b32 v7, 0, v7, vcc')
a('v_or_b32 v7, v7, v6')
for q in range(4):
    a('s_add_u32 m0, s%d, %d' % (sSTG, 2048 + 1024 * q))
    if q:
        a('s_add_u32 s%d, s%d, %d' % (sA, sA, 8 * 896))
    else:
        a('s_nop 0')
    a('buffer_load_dwordx4 v%d, %s, s%d offen lds' % (7 if q == 3 else 6, srd(S_TMP), sA))

build_srd(S_TMP, P_W1, 448 * 3584)
cINV, cNT, cI12 = 23, 24, 25
a('s_cmp_lt_u32 s%d, 16' % sG)
a('s_cselect_b32 s%d, 0, 0x%x' % (cINV, INV))
a('s_cmp_eq_u32 s%d, 7' % sJ)
a('s_cselect_b32 s%d, 0x%x, s%d' % (cINV, INV, cINV))
a('s_min_u32 s%d, s%d, 6' % (sD, sJ))
a('s_lshl_b32 s%d, s%d, 4' % (cNT, sD))
a('s_and_b32 s%d, s%d, 15' % (sA, sG))
a('s_add_u32 s%d, s%d, s%d' % (cNT, cNT, sA))
a('s_cmp_lt_u32 s%d, 2' % sW)
a('s_cselect_b32 s%d, s%d, 0x%x' % (cI12, cINV, INV))
a('v_lshrrev_b32 v8, 1, v0')
a('v_mul_u32_u24 v8, 3584, v8')
a('v_and_b32 v5, 1, v0')
a('v_lshl_add_u32 v8, v5, 4, v8')
a('v_or_b32 v9, s%d, v8' % cI12)
a('v_or_b32 v8, s%d, v8' % cINV)
a('s_lshl_b32 s%d, s%d, 5' % (sB, cNT))
for i in range(4):
    a('s_add_u32 s%d, s%d, %d' % (sA, sW, 4 * i))
    a('s_min_u32 s%d, s%d, 13' % (sA, sA))
    a('s_mul_i32 s%d, s%d, %d' % (sA, sA, 32 * 3584))
    a('s_add_u32 s%d, s%d, s%d' % (sA, sA, sB))
    a('s_add_u32 m0, s%d, %d' % (sSTG, 6144 + 1024 * i))
    a('s_nop 0')
    a('buffer_load_dwordx4 v%d, %s, s%d offen lds' % (9 if i == 3 else 8, srd(S_TMP), sA))
build_srd(S_B1, P_B1, 1792 * 2)
build_srd(S_OUT, P_OUT, 2048 * 896)
a('v_bfe_u32 v18, v0, 2, 2')
a('v_lshl_add_u32 v18, v%d, 2, v18' % V_G)
a('v_and_b32 v19, 3, v0')
a('v_lshlrev_b32 v19, 3, v19')
a('s_waitcnt vmcnt(8)')
stamp()

a('s_mov_b32 s%d, 0x9E3779B1' % sA)
a('v_mul_lo_u32 v%d, v%d, s%d' % (V_T, V_T, sA))
a('v_add_u32 v%d, 0x7F4A7C15, v%d' % (V_T, V_T))
a('v_and_b32 v%d, -16, v%d' % (V_T, V_T))
a('v_lshl_add_u32 v20, v18, 6, v19')
a('v_add_u32 v20, s%d, v20' % sSTG)
for hf in range(2):
    a('ds_read_b64_tr_b16 %s, v20 offset:%d' % (vr(24 + 4 * hf, 2), 32 * hf))
    a('ds_read_b64_tr_b16 %s, v20 offset:%d' % (vr(26 + 4 * hf, 2), 32 * hf + 1024))
a('v_readfirstlane_b32 s%d, v%d' % (sT, V_T))
a('s_mul_i32 s%d, s%d, 14' % (sA, sO + 0))
a('s_add_u32 s%d, s%d, s%d' % (sA, sA, sO + 1))
a('s_lshl_b32 s%d, s%d, 10' % (sB, sA))
a('s_add_u32 s%d, s%d, %d' % (sB, sB, L.XA[0]))
a('v_or_b32 v3, s%d, v1' % (sO + 2))
a('buffer_store_dwordx4 v[10:13], v1, %s, s%d offen sc1' % (srd(S_WS), sB))
a('s_add_u32 s%d, s%d, 4096' % (sB, sB))
a('buffer_store_dwordx4 v[14:17], v3, %s, s%d offen sc1' % (srd(S_WS), sB))
a('v_cmp_gt_u32 vcc, 12, v%d' % V_TOK)
a('s_mul_i32 s%d, s%d, 84' % (sB, sC))
a('s_mul_i32 s%d, s%d, 28' % (sCc, qMAT))
a('s_add_u32 s%d, s%d, s%d' % (sB, sB, sCc))
a('s_add_u32 s%d, s%d, s%d' % (sB, sB, qU))
a('s_lshl_b32 s%d, s%d, 10' % (sB, sB))
a('s_add_u32 s%d, s%d, %d' % (sB, sB, L.WA))
a('v_or_b32 v4, s%d, v1' % qINV)
a('s_waitcnt lgkmcnt(0)')
for p in range(4):
    a('v_cndmask_b32 v%d, 0, v%d, vcc' % (28 + p, 28 + p))
a('buffer_store_dwordx4 v[24:27], v4, %s, s%d offen sc1' % (srd(S_WS), sB))
a('s_add_u32 s%d, s%d, %d' % (sB, sB, 14 * 1024))
a('buffer_store_dwordx4 v[28:31], v4, %s, s%d offen sc1' % (srd(S_WS), sB))
a('v_mov_b32 v2, 0x3f803f80')
for k in range(2):
    x, s1, s2 = 10 + 4 * k, 110 + 2 * k, 111 + 2 * k
    a('v_mov_b32 v%d, 0' % s1)
    a('v_mov_b32 v%d, 0' % s2)
    for p in range(4):
        a('v_dot2_f32_bf16 v%d, v%d, v2, v%d' % (s1, x + p, s1))
        a('v_dot2_f32_bf16 v%d, v%d, v%d, v%d' % (s2, x + p, x + p, s2))
    for t in xg_reduce(s1, 114) + xg_reduce(s2, 115):
        a(t)
a('s_lshl_b32 s%d, s%d, 7' % (sB, sA))
a('s_add_u32 s%d, s%d, %d' % (sB, sB, L.SA[0]))
a('v_lshlrev_b32 v2, 3, v%d' % V_TOK)
a('v_or_b32 v3, s%d, v2' % (sO + 2))
a('s_mov_b64 exec, 0xffff')
a('buffer_store_dwordx2 v[110:111], v2, %s, s%d offen sc1' % (srd(S_WS), sB))
a('buffer_store_dwordx2 v[112:113], v3, %s, s%d offen offset:512 sc1' % (srd(S_WS), sB))
a('s_mov_b64 exec, -1')
a('s_lshl_b32 s%d, s%d, 5' % (sA, sO + 0))
a('s_add_u32 s%d, s%d, s%d' % (sA, sA, sO + 1))
a('s_lshl_b32 s%d, s%d, 2' % (sA, sA))
a('s_add_u32 s%d, s%d, %d' % (sA, sA, L.FX[0]))
a('v_lshlrev_b32 v2, 4, v0')
a('v_add_u32 v2, s%d, v2' % sA)
a('v_cmp_eq_u32 vcc, 1, v0')
a('v_mov_b32 v3, s%d' % (sO + 2))
a('v_cndmask_b32 v3, 0, v3, vcc')
a('v_or_b32 v2, v2, v3')
a('s_lshl_b32 s%d, s%d, 6' % (sA, sC))
a('s_lshl_b32 s%d, s%d, 2' % (sB, sS))
a('s_add_u32 s%d, s%d, s%d' % (sA, sA, sB))
a('s_add_u32 s%d, s%d, s%d' % (sA, sA, sW))
a('s_lshl_b32 s%d, s%d, 2' % (sA, sA))
a('s_add_u32 s%d, s%d, %d' % (sA, sA, L.FQ))
a('v_mov_b32 v3, s%d' % sA)
a('v_cmp_eq_u32 vcc, 2, v0')
a('v_cndmask_b32 v2, v2, v3, vcc')
a('s_lshl_b32 s%d, s%d, 4' % (sA, sS))
a('s_add_u32 s%d, s%d, s%d' % (sA, sA, sC))
a('s_lshl_b32 s%d, s%d, 2' % (sA, sA))
a('s_add_u32 s%d, s%d, %d' % (sA, sA, L.FXC))
a('s_cmp_eq_u32 s%d, 0' % sW)
a('s_cselect_b32 s%d, s%d, 0x%x' % (sA, sA, INV))
a('v_mov_b32 v3, s%d' % sA)
a('v_cmp_eq_u32 vcc, 3, v0')
a('v_cndmask_b32 v2, v2, v3, vcc')
a('v_or_b32 v3, s%d, v%d' % (sXCC, V_T))
a('v_cndmask_b32 v3, v%d, v3, vcc' % V_T)
set_flags(2, 4, None, 3)
stamp()

a('v_lshl_add_u32 v20, v18, 7, v19')
a('v_add_u32 v20, s%d, v20' % sSTG)
for t in range(4):
    a('ds_read_b64_tr_b16 %s, v20 offset:%d' % (vr(24 + 4 * t, 2), 2048 + 32 * t))
    a('ds_read_b64_tr_b16 %s, v20 offset:%d' % (vr(26 + 4 * t, 2), 2048 + 32 * t + 2048))
a('v_lshl_add_u32 v21, v18, 5, v19')
a('v_add_u32 v21, s%d, v21' % sSTG)
for i in range(4):
    a('ds_read_b64_tr_b16 %s, v21 offset:%d' % (vr(40 + 4 * i, 2), 6144 + 1024 * i))
    a('ds_read_b64_tr_b16 %s, v21 offset:%d' % (vr(42 + 4 * i, 2), 6144 + 1024 * i + 512))
a('v_or_b32 v6, s%d, v1' % bINV)
a('s_waitcnt lgkmcnt(8)')
for t in range(4):
    a('buffer_store_dwordx4 %s, v6, %s, s%d offen sc1' % (vr(24 + 4 * t), srd(S_WS), bDST))
    if t < 3:
        a('s_add_u32 s%d, s%d, s%d' % (bDST, bDST, bSTR))
a('s_mul_i32 s%d, s%d, 14' % (sA, cNT))
a('s_add_u32 s%d, s%d, s%d' % (sA, sA, sW))
a('s_lshl_b32 s%d, s%d, 10' % (sA, sA))
a('s_add_u32 s%d, s%d, %d' % (sA, sA, L.WC))
a('v_or_b32 v8, s%d, v1' % cINV)
a('v_or_b32 v9, s%d, v1' % cI12)
a('v_mov_b32 v2, 0x3f803f80')
a('v_mov_b32 v100, 0')
a('s_waitcnt lgkmcnt(0)')
for i in range(4):
    a('buffer_store_dwordx4 %s, v%d, %s, s%d offen sc1' % (vr(40 + 4 * i), 9 if i == 3 else 8, srd(S_WS), sA))
    a('s_add_u32 s%d, s%d, 4096' % (sA, sA))
for i in range(4):
    for p in range(4):
        a('v_dot2_f32_bf16 v100, v%d, v2, v100' % (40 + 4 * i + p))
for t in xg_reduce(100, 101):
    a(t)
a('s_lshl_b32 s%d, s%d, 6' % (sA, sW))
a('s_add_u32 s%d, s%d, %d' % (sA, sA, L.L_CSR))
a('v_lshlrev_b32 v2, 2, v%d' % V_TOK)
a('v_add_u32 v3, s%d, v2' % sA)
a('ds_write_b32 v3, v100')
a('s_waitcnt lgkmcnt(0)')
a('s_barrier')
a('v_add_u32 v3, %d, v2' % L.L_CSR)
for i in range(4):
    a('ds_read_b32 v%d, v3 offset:%d' % (104 + i, 64 * i))
a('s_lshl_b32 s%d, s%d, 6' % (sB, cNT))
a('s_add_u32 s%d, s%d, %d' % (sB, sB, L.CSC))
a('s_cmp_eq_u32 s%d, 0' % sW)
a('s_cselect_b32 s%d, s%d, 0x%x' % (sA, cINV, INV))
a('v_or_b32 v2, s%d, v2' % sA)
a('s_waitcnt lgkmcnt(0)')
a('v_add_f32 v104, v104, v105')
a('v_add_f32 v106, v106, v107')
a('v_add_f32 v104, v104, v106')
a('s_mov_b64 exec, 0xffff')
a('buffer_store_dword v104, v2, %s, s%d offen sc1' % (srd(S_WS), sB))
a('s_mov_b64 exec, -1')

a('v_and_b32 v2, 1, v%d' % V_TOK)
a('v_lshlrev_b32 v3, 2, v%d' % V_G)
a('v_add_u32 v6, 2, v%d' % V_TOK)
for i in range(4):
    a('v_add_u32 v4, %d, v3' % i)
    a('v_cmp_eq_u32 vcc, %d, v2' % (i & 1))
    a('s_mov_b64 %s, vcc' % sp(sMK))
    a('v_cmp_ge_u32 vcc, v4, v6')
    a('s_and_b64 %s, vcc, %s' % (sp(sM1 + 2 * i), sp(sMK)))
    a('v_cmp_le_u32 vcc, v4, v%d' % V_TOK)
    a('s_and_b64 %s, vcc, %s' % (sp(sM2 + 2 * i), sp(sMK)))
a('s_lshl_b32 s%d, s%d, 3' % (sA, sS))
a('s_lshl_b32 s%d, s%d, 1' % (sB, sW))
a('s_add_u32 s%d, s%d, s%d' % (sGT, sA, sB))
a('s_cmp_eq_u32 s%d, 0' % sGT)
for i in range(4):
    a('s_cselect_b64 %s, 0, %s' % (sp(sM0 + 2 * i), sp(sM1 + 2 * i)))
a('s_mov_b32 s%d, 0' % sPAIR)

def a_flag_addr(dst):
    pair_base(sA, L.FX)
    a('s_lshl_b32 s%d, s%d, 7' % (sB, sGT))
    a('s_add_u32 s%d, s%d, s%d' % (sA, sA, sB))
    a('s_sub_u32 s%d, s%d, 128' % (sA, sA))
    a('v_and_b32 v%d, 48, v0' % dst)
    a('v_add_u32 v%d, v%d, v0' % (dst, dst))
    a('v_lshl_add_u32 v%d, v%d, 2, s%d' % (dst, dst, sA))
    a('s_mov_b32 s%d, 0x3fff3fff' % sMK)
    a('s_mov_b32 s%d, 0x3fff' % (sMK + 1))
    a('s_cmp_eq_u32 s%d, 0' % sGT)
    a('s_cselect_b32 s%d, 0x3fff0000, s%d' % (sMK, sMK))


a('s_lshl_b32 s%d, s%d, 8' % (sA, sC))
a('s_add_u32 s%d, s%d, %d' % (sA, sA, L.FQ))
a('v_lshl_add_u32 v2, v0, 2, s%d' % sA)
a_flag_addr(3)
a('s_lshl_b32 s%d, s%d, 6' % (sA, sS))
a('s_add_u32 s%d, s%d, %d' % (sA, sA, L.FXC - 48 * 4))
a('v_lshl_add_u32 v4, v0, 2, s%d' % sA)
a('v_cmp_lt_u32 vcc, 47, v0')
a('v_cndmask_b32 v3, v3, v4, vcc')
a('v_mov_b32 v5, -1')
a('v_mov_b32 v6, -16')
a('v_cndmask_b32 v5, v5, v6, vcc')
a('s_or_b32 s%d, s%d, 0xffff0000' % (sMK + 1, sMK + 1))
a('s_mov_b32 s%d, 0' % sSPIN)
a.label('L_poll0')
a('buffer_load_dword v7, v2, %s, 0 offen sc1' % srd(S_WS))
a('s_mov_b64 exec, %s' % sp(sMK))
a('buffer_load_dword v8, v3, %s, 0 offen sc1' % srd(S_WS))
a('s_waitcnt vmcnt(0)')
a('v_and_b32 v9, v5, v8')
a('v_cmp_ne_u32 vcc, s%d, v9' % sT)
a('s_mov_b64 exec, -1')
a('s_mov_b64 %s, vcc' % sp(sTS))
a('v_cmp_ne_u32 vcc, s%d, v7' % sT)
a('s_or_b64 vcc, vcc, %s' % sp(sTS))
a('s_cbranch_vccz L_poll0_done')
a('s_add_u32 s%d, s%d, 1' % (sSPIN, sSPIN))
a('s_cmp_lt_u32 s%d, %d' % (sSPIN, SPIN_LIMIT))
a('s_cbranch_scc1 L_poll0')
a('s_add_u32 s%d, s%d, 1' % (sERR, sERR))
a.label('L_poll0_done')
a('v_and_b32 v9, 15, v8')
a('v_cmp_ne_u32 vcc, s%d, v9' % sXCC)
a('s_and_b32 s%d, vcc_hi, 0xffff0000' % sA)
a('s_cmp_eq_u32 s%d, 0' % sA)
a('s_cselect_b32 s%d, 1, 0' % sFAST)
stamp()
AQ, AK, AV = 2, 18, 42
WBUF = [66, 90]
XR = 114
CSACC = 186
STR = 210
SM, SR = 234, 237
NR, LOOK = 6, 4
A_ONES = 240


def a_xload(u):
    slot = u % NR
    return ['buffer_load_dwordx4 %s, v1, %s, s%d offen offset:%d sc1' %
            (vr(XR + (slot * 3 + t) * 4), srd(S_WS), sO + 4 * t + (u >> 2), 1024 * (u & 3)) for t in range(3)]


def a_offsets():
    pair_base(sA, L.XA)
    a('s_mul_i32 s%d, s%d, 14336' % (sB, sGT))
    a('s_add_u32 s%d, s%d, s%d' % (sO + 4, sA, sB))
    a('s_add_u32 s%d, s%d, 14336' % (sO + 8, sO + 4))
    a('s_sub_u32 s%d, s%d, 14336' % (sO + 0, sO + 4))
    a('s_cmp_eq_u32 s%d, 0' % sGT)
    a('s_cselect_b32 s%d, s%d, s%d' % (sO + 0, sO + 4, sO + 0))
    for t in range(3):
        for q in range(1, 4):
            a('s_add_u32 s%d, s%d, %d' % (sO + 4 * t + q, sO + 4 * t, 4096 * q))


def a_setup():
    if FASTMODE == 'flags':
        a('s_mov_b32 s%d, 0' % sFD)
        a('s_mov_b32 s%d, 0' % sFH)
    elif FASTMODE == 'p0':
        a('s_xor_b32 s%d, s%d, 1' % (sFD, sPAIR))
        a('s_and_b32 s%d, s%d, s%d' % (sFD, sFD, sFAST))
        a('s_mov_b32 s%d, s%d' % (sFH, sFD))
    elif FASTMODE == 'small':
        a('s_mov_b32 s%d, s%d' % (sFD, sFAST))
        a('s_mov_b32 s%d, 0' % sFH)
    elif FASTMODE == 'smallp0':
        a('s_mov_b32 s%d, s%d' % (sFD, sFAST))
        a('s_xor_b32 s%d, s%d, 1' % (sFH, sPAIR))
        a('s_and_b32 s%d, s%d, s%d' % (sFH, sFH, sFAST))
    else:
        a('s_mov_b32 s%d, s%d' % (sFD, sFAST))
        a('s_mov_b32 s%d, s%d' % (sFH, sFAST))
    pair_base(sA, L.SA)
    a('s_mul_i32 s%d, s%d, 1792' % (sB, sGT))
    a('s_add_u32 s%d, s%d, s%d' % (sO + 13, sA, sB))
    a('s_add_u32 s%d, s%d, 1792' % (sO + 14, sO + 13))
    a('s_sub_u32 s%d, s%d, 1792' % (sO + 12, sO + 13))
    a('s_cmp_eq_u32 s%d, 0' % sGT)
    a('s_cselect_b32 s%d, s%d, s%d' % (sO + 12, sO + 13, sO + 12))
    a('v_and_b32 v%d, 15, v0' % V_TOK)
    a('v_lshrrev_b32 v%d, 4, v0' % V_G)
    a('v_lshlrev_b32 v240, 3, v%d' % V_TOK)
    a('v_lshl_add_u32 v240, v%d, 7, v240' % V_G)
    a('v_mov_b32 v242, 0x%x' % INV)
    a('v_cmp_lt_u32 vcc, 1, v%d' % V_G)
    a('v_cndmask_b32 v241, 0, v242, vcc')
    a('v_or_b32 v241, v241, v240')
    a('v_add_u32 v243, %d, v1' % (56 * 1024))
    a('v_lshlrev_b32 v244, 4, v%d' % V_G)
    a('v_add_u32 v244, %d, v244' % L.L_CSA)
    a('v_lshlrev_b32 v245, 2, v%d' % V_TOK)
    a('v_add_u32 v245, %d, v245' % L.L_CSA)
    a('s_lshl_b32 s%d, s%d, 7' % (sA, sJ))
    a('s_add_u32 s%d, s%d, %d' % (sA, sA, L.FP))
    a('v_lshl_add_u32 v248, v0, 2, s%d' % sA)
    a('s_lshr_b32 s%d, s%d, 1' % (sB, sW))
    a('s_lshl_b32 s%d, s%d, 2' % (sCc, sG))
    a('s_add_u32 s%d, s%d, s%d' % (sB, sB, sCc))
    a('s_lshl_b32 s%d, s%d, 5' % (sB, sB))
    a('s_and_b32 s%d, s%d, 1' % (sA, sW))
    a('s_add_u32 s%d, s%d, s%d' % (sB, sB, sA))
    a('s_min_u32 s%d, s%d, 6' % (sA, sJ))
    a('s_lshl_b32 s%d, s%d, 1' % (sA, sA))
    a('s_add_u32 s%d, s%d, s%d' % (sB, sB, sA))
    a('s_lshl_b32 s%d, s%d, 2' % (sB, sB))
    a('s_add_u32 s%d, s%d, %d' % (sB, sB, L.FX[0] - 32 * 256))
    a('v_lshl_add_u32 v249, v0, 8, s%d' % sB)
    a('v_cmp_lt_u32 vcc, 31, v0')
    a('v_cndmask_b32 v248, v248, v249, vcc')
    a('s_cmp_eq_u32 s%d, 0' % sPAIR)
    a('s_mov_b32 s%d, %d' % (sA, L.FSA - 128))
    a('s_cselect_b32 s%d, %d, s%d' % (sA, L.FX[0] - 128, sA))
    a('s_lshl_b32 s%d, s%d, 7' % (sB, sGT))
    a('s_add_u32 s%d, s%d, s%d' % (sA, sA, sB))
    a('v_and_b32 v247, 48, v0')
    a('v_add_u32 v247, v247, v0')
    a('v_lshl_add_u32 v247, v247, 2, s%d' % sA)
    a('s_mov_b32 s%d, 0x3fff3fff' % sMK2)
    a('s_mov_b32 s%d, 0x3fff' % (sMK2 + 1))
    a('s_cmp_eq_u32 s%d, 0' % sGT)
    a('s_cselect_b32 s%d, 0x3fff0000, s%d' % (sMK2, sMK2))


stat_loads = ['buffer_load_dwordx2 %s, v%d, %s, s%d offen offset:%d sc1' %
              (vr(STR + (t * 4 + i) * 2, 2), 241 if i == 3 else 240, srd(S_WS), sO + 12 + t, 512 * i)
              for t in range(3) for i in range(4)]


def a_wread(u):
    b = WBUF[u & 1]
    o = []
    for p in range(6):
        if p < 4:
            o.append('ds_read_b128 %s, v1 offset:%d' % (vr(b + 4 * p), L.L_WA + (p * 14 + u) * 1024))
        else:
            o.append('ds_read_b128 %s, v243 offset:%d' % (vr(b + 4 * p), L.L_WA + ((p - 4) * 14 + u) * 1024))
    return o


stat_fill = []
for t in range(3):
    r = STR + 8 * t
    for c_ in range(2):
        stat_fill += ['v_add_f32 v%d, v%d, v%d' % (r + c_, r + c_, r + 2 + c_),
                      'v_add_f32 v%d, v%d, v%d' % (r + 4 + c_, r + 4 + c_, r + 6 + c_),
                      'v_add_f32 v%d, v%d, v%d' % (r + c_, r + c_, r + 4 + c_)]
    stat_fill += xg_reduce(r, r + 2) + xg_reduce(r + 1, r + 3)
    stat_fill += stats_finish(r, r + 1, r + 2, False)
    stat_fill += ['v_mov_b32 v%d, v%d' % (SM + t, r), 'v_mov_b32 v%d, v%d' % (SR + t, r + 1)]

sWA = [20, 21, 22]
sWAG = 23


def wa_dma(pr, i):
    def f():
        a('s_add_u32 m0, s%d, %d' % (sWA[i], L.L_WA + 2048 * pr))
        a('s_add_u32 s%d, s%d, s%d' % (sD, sWA[i], sWAG))
        if pr:
            a('s_add_u32 s%d, s%d, %d' % (sD, sD, 2048 * pr))
        a('buffer_load_dwordx4 v1, %s, s%d offen sc1 lds' % (srd(S_WS), sD))
    return f


amark = {}


def emit_a_loop(first, xmark, wam):
    ep_mark = es_mark = st_mark = None
    for t in a_wread(0):
        a(t)
    for u in range(14):
        need = xmark[u]
        if u == 12:
            need = max(need, st_mark)
        a.wait_vm(need)
        if u == 6:
            early_check(246, 247, es_mark)
        if u == 11:
            a('s_mov_b32 s%d, -1' % sMK2)
            a('s_mov_b32 s%d, 3' % (sMK2 + 1))
        a('s_waitcnt lgkmcnt(0)')
        wb = WBUF[u & 1]
        xs = XR + (u % NR) * 12
        mf = []
        cz = (lambda r: '0') if u == 0 else (lambda r: vr(r))
        for t in range(2):
            for hf in range(2):
                r = AQ + (t * 2 + hf) * 4
                mf.append('%s %s, %s, %s, %s' % (MFMA, vr(r), vr(wb + 4 * hf), vr(xs + 4 * (t + 1)), cz(r)))
        for t in range(3):
            for hf in range(2):
                r = AK + (t * 2 + hf) * 4
                mf.append('%s %s, %s, %s, %s' % (MFMA, vr(r), vr(wb + 8 + 4 * hf), vr(xs + 4 * t), cz(r)))
        for t in range(3):
            for hf in range(2):
                r = AV + (t * 2 + hf) * 4
                mf.append('%s %s, %s, %s, %s' % (MFMA, vr(r), vr(xs + 4 * t), vr(wb + 16 + 4 * hf), cz(r)))
        if first:
            for p in range(6):
                r = CSACC + 4 * p
                if p < 4:
                    mf.append('%s %s, %s, %s, %s' % (MFMA, vr(r), vr(wb + 4 * p), ar(A_ONES), cz(r)))
                else:
                    mf.append('%s %s, %s, %s, %s' % (MFMA, vr(r), ar(A_ONES), vr(wb + 4 * p), cz(r)))
        mem = {}

        def put(k, x):
            mem.setdefault(k, []).append(x)
        off = 0
        if first and u % 2 == 1 and u < 13:
            put(2, ('bar', (u + 1) // 2))
            off = 3
        if u < 13:
            for k, x in enumerate(a_wread(u + 1)):
                put(off + k, x)
        elif not first:
            for p in range(4):
                put(p, 'ds_read_b128 %s, v244 offset:%d' % (vr(WBUF[0] + 4 * p), 64 * p))
            for d in range(2):
                put(4 + d, 'ds_read_b32 v%d, v245 offset:%d' % (WBUF[0] + 16 + d, 64 * (4 + d)))
        if u + LOOK < 14:
            for k, x in zip((6, 9, 12), a_xload(u + LOOK)):
                put(k + off, x)
            put(12 + off, ('xm', u + LOOK))
        if first and u % 2 == 0 and u // 2 + 3 <= 6:
            for i, k in enumerate((13, 16, 19)):
                put(k, ('wa', u // 2 + 3, i))
        if 6 <= u < 10:
            for k, x in zip((8, 11, 14), stat_loads[3 * (u - 6):3 * (u - 6) + 3]):
                put(k, x)
            if u == 9:
                put(14, ('st',))
        if u == 11:
            put(8, ('early',))
        if u == 4:
            put(8, ('estat',))
        fill = stat_fill[(u - 12) * 30:(u - 11) * 30] if u >= 12 else []
        fi = 0
        for k, m in enumerate(mf):
            a(m)
            for it in mem.get(k, []):
                if isinstance(it, str):
                    a(it)
                elif it[0] == 'early':
                    ep_mark = early_issue(249, 248)
                elif it[0] == 'estat':
                    es_mark = early_issue(246, 247)
                elif it[0] == 'xm':
                    xmark[it[1]] = a.vm_mark()
                elif it[0] == 'st':
                    st_mark = a.vm_mark()
                elif it[0] == 'bar':
                    a.wait_vm(wam[it[1]])
                    a('s_barrier')
                elif it[0] == 'wa':
                    wa_dma(it[1], it[2])()
                    wam[it[1]] = a.vm_mark()
            for _ in range(2):
                if fi < len(fill) and k >= 1:
                    a(fill[fi])
                    fi += 1
        assert fi == len(fill), (u, fi, len(fill))
    amark['ep'] = ep_mark


for p in range(4):
    a('v_mov_b32 v4, 0x3f803f80')
    a('v_accvgpr_write_b32 a%d, v4' % (A_ONES + p))
a('s_mul_i32 s%d, s%d, 14336' % (sWA[0], sW))
a('s_add_u32 s%d, s%d, 4' % (sA, sW))
a('s_mul_i32 s%d, s%d, 14336' % (sA, sA))
a('s_sub_u32 s%d, s%d, 2' % (sB, sW))
a('s_mul_i32 s%d, s%d, 14336' % (sB, sB))
a('s_add_u32 s%d, s%d, 1024' % (sB, sB))
a('s_cmp_lt_u32 s%d, 2' % sW)
a('s_cselect_b32 s%d, s%d, s%d' % (sWA[1], sA, sB))
a('s_add_u32 s%d, s%d, 2' % (sA, sW))
a('s_mul_i32 s%d, s%d, 14336' % (sA, sA))
a('s_add_u32 s%d, s%d, 1024' % (sWA[2], sA))
a('s_mul_i32 s%d, s%d, %d' % (sWAG, sC, 84 * 1024))
a('s_add_u32 s%d, s%d, %d' % (sWAG, sWAG, L.WA))
a_offsets()
xm0, wam0 = {}, {}


def wa_pair(pr):
    for i in range(3):
        wa_dma(pr, i)()
    wam0[pr] = a.vm_mark()


for pr in range(3):
    wa_pair(pr)
    for u in (2 * pr, 2 * pr + 1):
        if u < LOOK:
            for t in a_xload(u):
                a(t)
            xm0[u] = a.vm_mark()
a_setup()
a.wait_vm(wam0[0])
a('s_barrier')
a('s_lshl_b32 s%d, s%d, 5' % (sA, sJ))
a('s_add_u32 s%d, s%d, s%d' % (sA, sA, sG))
a('s_lshl_b32 s%d, s%d, 2' % (sA, sA))
a('s_add_u32 s%d, s%d, %d' % (sA, sA, L.FP))
a('s_cmp_eq_u32 s%d, 0' % sW)
a('s_cselect_b32 s%d, s%d, 0x%x' % (sA, sA, INV))
a('v_mov_b32 v2, s%d' % sA)
a('s_mov_b64 exec, 1')
a('buffer_store_dword v%d, v2, %s, 0 offen sc1' % (V_T, srd(S_WS)))
a.vm_issued -= 1
a('s_mov_b64 exec, -1')
stamp()
emit_a_loop(True, xm0, wam0)
n_join = a.vm_issued - amark['ep']
CSQ = WBUF[0]
a('v_cmp_eq_u32 vcc, 0, v%d' % V_TOK)
a('s_mov_b64 exec, vcc')
for p in range(4):
    a('ds_write_b128 v244, %s offset:%d' % (vr(CSACC + 4 * p), 64 * p))
a('s_mov_b64 exec, 0xffff')
for d in range(2):
    a('ds_write_b32 v245, v%d offset:%d' % (CSACC + 16 + 4 * d, 64 * (4 + d)))
a('s_mov_b64 exec, -1')
for e in range(16):
    a('v_mov_b32 v%d, v%d' % (CSQ + e, CSACC + e))
for d in range(2):
    a('v_mov_b32 v%d, v%d' % (CSQ + 16 + d, CSACC + 16 + 4 * d))
a('s_branch L_a_epi')

a.label('L_pair')
a_flag_addr(2)
poll(2)
stamp()
a_offsets()
xmark = {}
for u in range(LOOK):
    for t in a_xload(u):
        a(t)
    xmark[u] = a.vm_mark()
a_setup()
emit_a_loop(False, xmark, None)
assert a.vm_issued - amark['ep'] == n_join
ep_mark = amark['ep']
a.label('L_a_epi')
stamp()
for x in stat_fill[60:]:
    a(x)
early_check(249, 248, ep_mark)
BW = 2
a('s_lshl_b32 s%d, s%d, 6' % (sA, sJ))
a('s_lshl_b32 s%d, s%d, 2' % (sB, sW))
a('s_add_u32 s%d, s%d, s%d' % (sA, sA, sB))
a('s_lshl_b32 s%d, s%d, 10' % (sA, sA))
a('s_add_u32 s20, s%d, %d' % (sA, L.WB))
for t in range(1, 4):
    a('s_add_u32 s%d, s20, %d' % (20 + t, 16 * 1024 * t))
wb_loads = ['buffer_load_dwordx4 %s, v1, %s, s%d offen offset:%d sc1' % (vr(BW + (i * 4 + t) * 4), srd(S_WS), 20 + t, 1024 * i)
            for i in range(4) for t in range(4)]
A_RES, A_B2 = 224, 232


def owner_index():
    a('s_lshr_b32 s%d, s%d, 1' % (sB, sW))
    a('s_lshl_b32 s%d, s%d, 2' % (sCc, sG))
    a('s_add_u32 s%d, s%d, s%d' % (sB, sB, sCc))
    a('s_and_b32 s%d, s%d, 1' % (sA, sW))
    a('s_lshl_b32 s%d, s%d, 1' % (sCc, sJ))
    a('s_add_u32 s%d, s%d, s%d' % (sA, sA, sCc))


a('s_cmp_eq_u32 s%d, 0' % sPAIR)
a('s_cbranch_scc0 L_a_nores')
owner_index()
a('s_mul_i32 s%d, s%d, 14' % (sB, sB))
a('s_add_u32 s%d, s%d, s%d' % (sB, sB, sA))
a('s_lshl_b32 s%d, s%d, 10' % (sB, sB))
a('s_add_u32 s%d, s%d, %d' % (sB, sB, L.XA[0]))
a('buffer_load_dwordx4 %s, v1, %s, s%d offen sc1' % (ar(A_RES), srd(S_WS), sB))
a('s_add_u32 s%d, s%d, %d' % (sB, sB, 2 * 14336))
a('buffer_load_dwordx4 %s, v1, %s, s%d offen sc1' % (ar(A_RES + 4), srd(S_WS), sB))
build_srd(S_TMP, P_B2, 896)
a('s_lshl_b32 s%d, s%d, 6' % (sB, sA))
a('v_lshlrev_b32 v240, 3, v%d' % V_G)
a('buffer_load_dwordx2 v[228:229], v240, %s, s%d offen' % (srd(S_TMP), sB))
a('buffer_load_dwordx2 v[230:231], v240, %s, s%d offen offset:32' % (srd(S_TMP), sB))
a.label('L_a_nores')
CSQ = WBUF[0]
a('s_mul_i32 s%d, s%d, 384' % (sA, sW))
a('s_add_u32 s%d, s%d, %d' % (sA, sA, L.L_STA))
a('v_lshl_add_u32 v246, v%d, 2, s%d' % (V_TOK, sA))
a('v_lshl_add_u32 v247, v%d, 4, s%d' % (V_G, sA))
a('s_mov_b64 exec, 0xffff')
for t in range(3):
    a('ds_write_b32 v246, v%d offset:%d' % (SM + t, 128 * t))
    a('ds_write_b32 v246, v%d offset:%d' % (SR + t, 128 * t + 64))
a('s_mov_b64 exec, -1')
MROW, RROW = 114, 126
a('s_waitcnt lgkmcnt(0)')
for t in range(3):
    a('ds_read_b128 %s, v247 offset:%d' % (vr(MROW + 4 * t), 128 * t))
    a('ds_read_b128 %s, v247 offset:%d' % (vr(RROW + 4 * t), 128 * t + 64))
QF, KF, VF = 140, 148, 160
for t in range(2):
    for hf in range(2):
        r = AQ + (t * 2 + hf) * 4
        for i in range(4):
            a('v_fma_f32 v%d, -v%d, v%d, v%d' % (r + i, SM + t + 1, CSQ + 4 * hf + i, r + i))
        for p in range(2):
            a('v_cvt_pk_bf16_f32 v%d, v%d, v%d' % (QF + 4 * t + 2 * hf + p, r + 2 * p, r + 2 * p + 1))
for t in range(3):
    for hf in range(2):
        r = AK + (t * 2 + hf) * 4
        for i in range(4):
            a('v_fma_f32 v%d, -v%d, v%d, v%d' % (r + i, SM + t, CSQ + 8 + 4 * hf + i, r + i))
        for p in range(2):
            a('v_cvt_pk_bf16_f32 v%d, v%d, v%d' % (KF + 4 * t + 2 * hf + p, r + 2 * p, r + 2 * p + 1))
SS = 172
for t in range(2):
    a('%s %s, %s, %s, 0' % (MFMA, vr(SS + 8 * t), vr(KF + 4 * t), vr(QF + 4 * t)))
    a('%s %s, %s, %s, 0' % (MFMA, vr(SS + 8 * t + 4), vr(KF + 4 * t + 4), vr(QF + 4 * t)))
a('s_waitcnt lgkmcnt(0)')
for t in range(3):
    for d in range(2):
        r = AV + (t * 2 + d) * 4
        for i in range(4):
            a('v_fma_f32 v%d, -v%d, v%d, v%d' % (r + i, MROW + 4 * t + i, CSQ + 16 + d, r + i))
        for p in range(2):
            a('v_cvt_pk_bf16_f32 v%d, v%d, v%d' % (VF + 6 * d + 2 * t + p, r + 2 * p, r + 2 * p + 1))
SCALE = (28.0 ** -0.5) * 1.4426950408889634
MX, CC, LS, TMPR = 190, 192, 194, 196
PF = 200
a('v_mov_b32 v198, 0xff800000')
seq = [[], []]
for t in range(2):
    s = SS + 8 * t
    q = seq[t]
    for e in range(8):
        q.append('v_mul_f32 v%d, v%d, v%d' % (s + e, s + e, RROW + 4 * (t + (e >> 2)) + (e & 3)))
    for e in range(8):
        mk = (sM0 if t == 0 else sM1) + 2 * e if e < 4 else sM2 + 2 * (e - 4)
        q.append('v_cndmask_b32 v%d, v198, v%d, %s' % (s + e, s + e, sp(mk)))
    q.append('v_max3_f32 v%d, v%d, v%d, v%d' % (MX + t, s, s + 1, s + 2))
    q.append('v_max3_f32 v%d, v%d, v%d, v%d' % (MX + t, MX + t, s + 3, s + 4))
    q.append('v_max3_f32 v%d, v%d, v%d, v%d' % (MX + t, MX + t, s + 5, s + 6))
    q.append('v_max_f32 v%d, v%d, v%d' % (MX + t, MX + t, s + 7))
    q += xg_reduce(MX + t, TMPR + t, 'v_max_f32')
    q.append('v_mul_f32 v%d, %s, v%d' % (CC + t, f2h(SCALE), SR + t + 1))
    q.append('v_mul_f32 v%d, v%d, v%d' % (MX + t, MX + t, CC + t))
    for e in range(8):
        q.append('v_fma_f32 v%d, v%d, v%d, -v%d' % (s + e, s + e, CC + t, MX + t))
    for e in range(8):
        q.append('v_exp_f32 v%d, v%d' % (s + e, s + e))
    q.append('v_add_f32 v%d, v%d, v%d' % (LS + t, s, s + 1))
    for e in range(2, 8):
        q.append('v_add_f32 v%d, v%d, v%d' % (LS + t, LS + t, s + e))
    q += xg_reduce(LS + t, TMPR + t)
    q.append('v_rcp_f32 v%d, v%d' % (LS + t, LS + t))
    for e in range(8):
        q.append('v_mul_f32 v%d, v%d, v%d' % (s + e, s + e, RROW + 4 * (t + (e >> 2)) + (e & 3)))
    for p in range(4):
        q.append('v_cvt_pk_bf16_f32 v%d, v%d, v%d' % (PF + 4 * t + p, s + 2 * p, s + 2 * p + 1))
merged = [z for xy in zip(*seq) for z in xy]
gap = len(merged) // (len(wb_loads) + 1)
for k, x in enumerate(merged):
    a(x)
    if k % gap == gap - 1 and wb_loads:
        a(wb_loads.pop(0))
assert not wb_loads
OO = 208
for t in range(2):
    for d in range(2):
        a('%s %s, %s, %s, 0' % (MFMA, vr(OO + 8 * t + 4 * d), vr(VF + 6 * d + 2 * t), vr(PF + 4 * t)))
pair_base(sA, L.O)
a('s_lshl_b32 s%d, s%d, 4' % (sB, sGT))
a('s_add_u32 s%d, s%d, s%d' % (sB, sB, sC))
a('s_lshl_b32 s%d, s%d, 10' % (sB, sB))
a('s_add_u32 s%d, s%d, s%d' % (sA, sA, sB))
for t in range(2):
    for e in range(8):
        a('v_mul_f32 v%d, v%d, v%d' % (OO + 8 * t + e, OO + 8 * t + e, LS + t))
    for p in range(4):
        a('v_cvt_pk_bf16_f32 v%d, v%d, v%d' % (PF + 4 * t + p, OO + 8 * t + 2 * p, OO + 8 * t + 2 * p + 1))
    store('buffer_store_dwordx4 %s, v1, %s, s%d offen' % (vr(PF + 4 * t), srd(S_WS), sA), sFD)
    if t == 0:
        a('s_add_u32 s%d, s%d, 16384' % (sA, sA))
pair_base(sA, L.FA)
a('s_lshl_b32 s%d, s%d, 4' % (sB, sGT))
a('s_add_u32 s%d, s%d, s%d' % (sB, sB, sC))
a('s_lshl_b32 s%d, s%d, 2' % (sB, sB))
a('s_add_u32 s%d, s%d, s%d' % (sA, sA, sB))
a('v_lshlrev_b32 v241, 6, v0')
a('v_add_u32 v241, s%d, v241' % sA)
set_flags(241, 2, sFAST)
stamp()
a('s_cmp_eq_u32 s%d, 7' % sJ)
a('s_cbranch_scc1 L_next_pair')


def wd_bases():
    a('s_lshl_b32 s%d, s%d, 2' % (sA, sJ))
    a('s_mul_i32 s%d, s%d, %d' % (sA, sA, 56 * 1024))
    a('s_mul_i32 s%d, s%d, %d' % (sB, sW, 14 * 1024))
    a('s_add_u32 s%d, s%d, s%d' % (sA, sA, sB))
    a('s_add_u32 s%d, s%d, %d' % (sO, sA, L.WD))
    quarter_offsets(4, 56 * 1024)


def wd_load(fi):
    kk, t = fi >> 2, fi & 3
    return ('buffer_load_dwordx4 %s, v1, %s, s%d offen offset:%d sc1' %
            (ar(4 * fi), srd(S_WS), sO + 4 * t + (kk >> 2), 1024 * (kk & 3)))


WD_CH = [(0, 12), (12, 56)]
BO, BACC, BRD, BTMP = 66, 130, 194, 226
a('s_cmp_eq_u32 s%d, 0' % sPAIR)
a('s_cbranch_scc0 L_b_start')
for k in range(4):
    a('v_lshlrev_b32 v236, 16, v%d' % (228 + k))
    a('v_and_b32 v237, 0xffff0000, v%d' % (228 + k))
    a('v_accvgpr_write_b32 a%d, v236' % (A_B2 + 2 * k))
    a('v_accvgpr_write_b32 a%d, v237' % (A_B2 + 2 * k + 1))
wd_bases()
for fi in range(*WD_CH[0]):
    a(wd_load(fi))
a.label('L_b_start')
CWW = 66
sCI = 41
a('s_lshr_b32 s%d, s%d, 3' % (sA, sC))
a('s_mul_i32 s%d, s%d, 7' % (sA, sA))
a('s_add_u32 s%d, s%d, s%d' % (sCI, sA, sJ))
a('s_lshl_b32 s%d, s%d, 3' % (sA, sCI))
a('s_lshl_b32 s%d, s%d, 1' % (sB, sW))
a('s_add_u32 s%d, s%d, s%d' % (sA, sA, sB))
a('s_mul_i32 s%d, s%d, %d' % (sB, sA, 14 * 1024))
a('s_add_u32 s%d, s%d, %d' % (sO, sB, L.WC))
quarter_offsets(2, 14 * 1024)


def c_wload(idx):
    u, k = idx >> 1, idx & 1
    return ('buffer_load_dwordx4 %s, v1, %s, s%d offen offset:%d sc1' %
            (vr(CWW + 4 * idx), srd(S_WS), sO + 4 * k + (u >> 2), 1024 * (u & 3)))


def red_writes(acc, tile):
    return ['ds_write_b128 v248, %s offset:%d' % (vr(acc + 4 * t), (tile >> 1) * 32768 + (tile & 1) * 4096 + t * 1024)
            for t in range(4)]


def red_reads(st, rd):
    return ['ds_read_b128 %s, v249 offset:%d' % (vr(rd + (b * 2 + k) * 4), st * 32768 + b * 8192 + k * 1024)
            for b in range(4) for k in range(2)]


def add8(dst, x, y, packed):
    if packed:
        return ['v_pk_add_f32 %s, %s, %s' % (vr(dst + e, 2), vr(x + e, 2), vr(y + e, 2)) for e in range(0, 8, 2)]
    return ['v_add_f32 v%d, v%d, v%d' % (dst + e, x + e, y + e) for e in range(8)]


def finish_pre(st, is_d, tmp):
    res = A_RES + 4 * st
    o = ['v_accvgpr_read_b32 v%d, a%d' % (tmp + 8 + p, res + p) for p in range(4)]
    for p in range(4):
        o += ['v_lshlrev_b32 v%d, 16, v%d' % (tmp + 2 * p, tmp + 8 + p),
              'v_and_b32 v%d, 0xffff0000, v%d' % (tmp + 2 * p + 1, tmp + 8 + p)]
    if is_d:
        o += ['v_accvgpr_read_b32 v%d, a%d' % (tmp + 8 + e, A_B2 + e) for e in range(8)]
        o += ['v_add_f32 v%d, v%d, v%d' % (tmp + e, tmp + e, tmp + 8 + e) for e in range(8)]
    return o


def finish_sum(st, rd, tmp, pk, packed):
    o = add8(rd, rd, rd + 8, packed) + add8(rd + 16, rd + 16, rd + 24, packed) + add8(rd, rd, rd + 16, packed)
    o += add8(tmp, tmp, rd, packed)
    o += ['v_cvt_pk_bf16_f32 v%d, v%d, v%d' % (pk + p, tmp + 2 * p, tmp + 2 * p + 1) for p in range(4)]
    o += ['v_accvgpr_write_b32 a%d, v%d' % (A_RES + 4 * st + p, pk + p) for p in range(4)]
    return o


def owner_stats(tmp, s1, t):
    a('v_pk_add_f32 %s, %s, %s' % (vr(t, 2), vr(tmp, 2), vr(tmp + 2, 2)))
    a('v_pk_add_f32 %s, %s, %s' % (vr(t + 2, 2), vr(tmp + 4, 2), vr(tmp + 6, 2)))
    a('v_pk_add_f32 %s, %s, %s' % (vr(t, 2), vr(t, 2), vr(t + 2, 2)))
    a('v_add_f32 v%d, v%d, v%d' % (s1, t, t + 1))
    a('v_pk_mul_f32 %s, %s, %s' % (vr(t, 2), vr(tmp, 2), vr(tmp, 2)))
    for e in (2, 4, 6):
        a('v_pk_fma_f32 %s, %s, %s, %s' % (vr(t, 2), vr(tmp + e, 2), vr(tmp + e, 2), vr(t, 2)))
    a('v_add_f32 v%d, v%d, v%d' % (s1 + 1, t, t + 1))
    for x, y in zip(xg_reduce(s1, t), xg_reduce(s1 + 1, t + 1)):
        a(x)
        a(y)


def red_addrs():
    a('s_lshl_b32 s%d, s%d, 13' % (sA, sW))
    a('s_add_u32 s%d, s%d, %d' % (sA, sA, L.L_R2))
    a('v_add_u32 v248, s%d, v1' % sA)
    a('s_and_b32 s%d, s%d, 1' % (sA, sW))
    a('s_lshl_b32 s%d, s%d, 11' % (sA, sA))
    a('s_lshr_b32 s%d, s%d, 1' % (sB, sW))
    a('s_lshl_b32 s%d, s%d, 12' % (sB, sB))
    a('s_add_u32 s%d, s%d, s%d' % (sA, sA, sB))
    a('s_add_u32 s%d, s%d, %d' % (sA, sA, L.L_R2))
    a('v_add_u32 v249, s%d, v1' % sA)


def publish_setup(xbase, sbase, fbase, per_pair, fsh):
    owner_index()
    a('s_mul_i32 s%d, s%d, 14' % (sCc, sB))
    a('s_add_u32 s%d, s%d, s%d' % (sCc, sCc, sA))
    a('s_lshl_b32 s%d, s%d, 10' % (sPX, sCc))
    a('s_lshl_b32 s%d, s%d, 7' % (sPS, sCc))
    a('s_lshl_b32 s%d, s%d, %d' % (sPF, sB, fsh))
    a('s_add_u32 s%d, s%d, s%d' % (sPF, sPF, sA))
    a('s_lshl_b32 s%d, s%d, 2' % (sPF, sPF))
    for dst, arr in ((sPX, xbase), (sPS, sbase), (sPF, fbase)):
        if per_pair:
            pair_base(sD, arr)
            a('s_add_u32 s%d, s%d, s%d' % (dst, dst, sD))
        else:
            a('s_add_u32 s%d, s%d, %d' % (dst, dst, arr))
    a('s_add_u32 s%d, s%d, %d' % (sPX2, sPX, 2 * 14336))


def publish_data(st, pk):
    store('buffer_store_dwordx4 %s, v1, %s, s%d offen offset:0' % (vr(pk), srd(S_WS), sPX if st == 0 else sPX2), sPC)


def publish_stats(tmps, t, s1):
    a('v_and_b32 v%d, 15, v0' % V_TOK)
    a('v_lshlrev_b32 v%d, 3, v%d' % (t + 4, V_TOK))
    for st in range(2):
        owner_stats(tmps[st], s1 + 2 * st, t)
    a('s_mov_b64 exec, 0xffff')
    store('buffer_store_dwordx2 %s, v%d, %s, s%d offen' % (vr(s1, 2), t + 4, srd(S_WS), sPS), sPC)
    a('s_add_u32 s%d, s%d, %d' % (sPS, sPS, 2 * 1792))
    store('buffer_store_dwordx2 %s, v%d, %s, s%d offen' % (vr(s1 + 2, 2), t + 4, srd(S_WS), sPS), sPC)
    a('s_mov_b64 exec, -1')


def publish_flags(lsh, between=()):
    a('v_lshlrev_b32 v241, %d, v0' % lsh)
    a('v_add_u32 v241, s%d, v241' % sPF)
    set_flags(241, 2, sPFC, V_T, between)


def run_tiles(tile_items, extras):
    for tile in range(4):
        items = tile_items(tile)
        ex = list(extras.get(tile, []))
        free = [k for k, it in enumerate(items) if k >= 3 and not it[2]]
        per = -(-len(ex) // max(1, len(free))) if ex else 0
        for k, (pre, m, post) in enumerate(items):
            for x in pre:
                x()
            a(m)
            if post:
                post()
            elif k >= 3:
                for _ in range(per):
                    if ex:
                        x = ex.pop(0)
                        if callable(x):
                            x()
                        else:
                            a(x)
        assert not ex


pair_base(sA, L.FA)
a('s_lshl_b32 s%d, s%d, 8' % (sB, sG))
a('s_add_u32 s%d, s%d, s%d' % (sA, sA, sB))
a('v_lshl_add_u32 v240, v0, 2, s%d' % sA)
a('s_lshl_b32 s%d, s%d, 2' % (sB, sW))
a('s_lshl_b32 s%d, 0x000f000f, s%d' % (sMK, sB))
a('s_mov_b32 s%d, s%d' % (sMK + 1, sMK))
red_addrs()
publish_setup(L.XB, L.SB, L.FB, True, 4)
a('s_mov_b32 s%d, s%d' % (sPC, sFD))
a('s_mov_b32 s%d, s%d' % (sPFC, sFAST))
pair_base(sA, L.O)
a('s_lshl_b32 s%d, s%d, 6' % (sB, sG))
a('s_lshl_b32 s%d, s%d, 2' % (sCc, sW))
a('s_add_u32 s%d, s%d, s%d' % (sB, sB, sCc))
a('s_lshl_b32 s%d, s%d, 10' % (sB, sB))
a('s_add_u32 s20, s%d, s%d' % (sA, sB))
for t in range(1, 4):
    a('s_add_u32 s%d, s20, %d' % (20 + t, 16384 * t))
poll(240)
stamp()


def b_oload(tile, i):
    return 'buffer_load_dwordx4 %s, v1, %s, s%d offen offset:%d sc1' % (vr(BO + (tile * 4 + i) * 4), srd(S_WS), 20 + tile, 1024 * i)


om = {}
for tile in range(2):
    for i in range(4):
        a(b_oload(tile, i))
        om[(tile, i)] = a.vm_mark()


def b_tile(tile):
    items = []
    for i in range(4):
        for t in range(4):
            r = BACC + (tile * 4 + t) * 4
            pre = [(lambda tl=tile, ii=i: a.wait_vm(om[(tl, ii)]))] if t == 0 else []
            post = None
            if tile < 2 and t == 1:
                def post(tl=tile + 2, ii=i):
                    a(b_oload(tl, ii))
                    om[(tl, ii)] = a.vm_mark()
            if tile >= 2 and t == 1:
                def post(idx=4 * (tile - 2) + i):
                    a(c_wload(idx))
            items.append((pre, '%s %s, %s, %s, %s' % (MFMA, vr(r), vr(BW + (i * 4 + t) * 4), vr(BO + (tile * 4 + i) * 4),
                                                      '0' if i == 0 else vr(r)), post))
    return items


BT0, BT1, BPK = 226, 2, 18
run_tiles(b_tile, {1: red_writes(BACC, 0), 2: red_writes(BACC + 16, 1), 3: red_writes(BACC + 32, 2)})
stamp2()
for x in red_writes(BACC + 48, 3):
    a(x)
for x in finish_pre(0, False, BT0) + finish_pre(1, False, BT1):
    a(x)
a('s_waitcnt lgkmcnt(0)')
a('s_barrier')
stamp2()
BRD1 = 162
for x in red_reads(0, BRD) + red_reads(1, BRD1):
    a(x)
a('s_waitcnt lgkmcnt(8)')
for x in finish_sum(0, BRD, BT0, BPK, True):
    a(x)
publish_data(0, BPK)
a('s_waitcnt lgkmcnt(0)')
for x in finish_sum(1, BRD1, BT1, BPK + 4, True):
    a(x)
publish_data(1, BPK + 4)
stamp2()
publish_stats([BT0, BT1], 36, 32)
publish_flags(7, [c_wload(i) for i in range(8, 16)])
stamp()

for i in range(16, 22):
    a(c_wload(i))
CA = [2, 10]
XF, NXF = 18, 8
GTMP, GH = 50, 58
CCS, CB1, CB1R = 178, 186, 194
CSTR = 198
CMR = 214
VGA = 218
a('v_lshrrev_b32 v%d, 4, v0' % V_G)
a('v_and_b32 v%d, 15, v0' % V_TOK)
a('s_lshl_b32 s%d, s%d, 3' % (sA, sCI))
a('s_lshl_b32 s%d, s%d, 1' % (sB, sW))
a('s_add_u32 s%d, s%d, s%d' % (sA, sA, sB))
a('s_lshl_b32 s%d, s%d, 6' % (sB, sA))
a('s_add_u32 s%d, s%d, %d' % (sB, sB, L.CSC))
a('v_lshlrev_b32 v248, 4, v%d' % V_G)
for k in range(2):
    a('buffer_load_dwordx4 %s, v248, %s, s%d offen offset:%d sc1' % (vr(CCS + 4 * k), srd(S_WS), sB, 64 * k))
a('s_lshl_b32 s%d, s%d, 5' % (sB, sA))
a('v_lshlrev_b32 v248, 3, v%d' % V_G)
for k in range(2):
    a('buffer_load_dwordx2 %s, v248, %s, s%d offen offset:%d' % (vr(CB1R + 2 * k, 2), srd(S_B1), sB, 32 * k))
pair_base(sA, L.FB)
a('s_lshl_b32 s%d, s%d, 9' % (sB, sS))
a('s_add_u32 s%d, s%d, s%d' % (sA, sA, sB))
a('v_lshl_add_u32 v240, v0, 2, s%d' % sA)
a('s_mov_b32 s%d, 0x3fff3fff' % sMK)
a('s_mov_b32 s%d, 0x3fff3fff' % (sMK + 1))
pair_base(20, L.XB)
a('s_mul_i32 s%d, s%d, %d' % (sB, sS, 8 * 14336))
a('s_add_u32 s20, s20, s%d' % sB)
a('s_lshl_b32 s%d, s%d, 12' % (sB, sW))
a('s_add_u32 s20, s20, s%d' % sB)
a('s_add_u32 s21, s%d, %d' % (sB, L.L_R2))
pair_base(22, L.SB)
a('s_lshl_b32 s%d, s%d, 3' % (sB, sS))
a('s_add_u32 s%d, s%d, s%d' % (sB, sB, sW))
a('s_mul_i32 s%d, s%d, 1792' % (sB, sB))
a('s_add_u32 s22, s22, s%d' % sB)
a('s_add_u32 s23, s22, %d' % (4 * 1792))
pair_base(32, L.H)
a('s_mul_i32 s%d, s%d, %d' % (sB, sS, 8 * 56 * 1024))
a('s_add_u32 s32, s32, s%d' % sB)
a('s_lshl_b32 s%d, s%d, 2' % (sB, sCI))
a('s_add_u32 s%d, s%d, s%d' % (sB, sB, sW))
a('s_lshl_b32 s%d, s%d, 10' % (sCc, sB))
a('s_add_u32 s32, s32, s%d' % sCc)
pair_base(33, L.FC)
a('s_lshl_b32 s%d, s%d, 11' % (sCc, sS))
a('s_add_u32 s33, s33, s%d' % sCc)
a('s_lshl_b32 s%d, s%d, 2' % (sB, sB))
a('s_add_u32 s33, s33, s%d' % sB)
a('v_mov_b32 v241, s33')
a('v_mov_b32 v242, 0x%x' % INV)
a('v_cmp_eq_u32 vcc, 0, v0')
a('v_cndmask_b32 v241, v242, v241, vcc')
a('v_lshlrev_b32 v238, 3, v%d' % V_TOK)
a('v_lshl_add_u32 v238, v%d, 7, v238' % V_G)
a('v_mov_b32 v242, 0x%x' % INV)
a('v_cmp_lt_u32 vcc, 1, v%d' % V_G)
a('v_cndmask_b32 v239, 0, v242, vcc')
a('v_or_b32 v239, v239, v238')
a('v_add_u32 v252, %d, v1' % L.L_R2)
a('v_lshlrev_b32 v246, 3, v%d' % V_TOK)
a('v_add_u32 v246, %d, v246' % L.L_STC)
GA = 2.0 * 0.7978845608028654 * 1.4426950408889634
GB = GA * 0.044715
a('v_mov_b32 v%d, %s' % (VGA, f2h(-GA)))
a('v_mov_b32 v%d, %s' % (VGA + 1, f2h(-GA)))
a('s_mov_b32 s34, %s' % f2h(-GB))
a('s_mov_b32 s35, %s' % f2h(-GB))
wd_bases_hi = True
poll(240, 256)
stamp()


def c_dma_setup(t):
    return ['s_add_u32 s36, s20, %d' % (t * 14336), 's_add_u32 m0, s21, %d' % ((t & 3) * 16384)]


def c_dma(t, i):
    return 'buffer_load_dwordx4 v1, %s, s36 offen offset:%d sc1 lds' % (srd(S_WS), 1024 * i)


dm = {}
for x in c_dma_setup(0) + [c_dma(0, i) for i in range(4)]:
    a(x)
dm[0] = a.vm_mark()
wlate = {}
for i in range(22, 28):
    a(c_wload(i))
    wlate[i >> 1] = a.vm_mark()
for tt in range(2):
    for i in range(4):
        a('buffer_load_dwordx2 %s, v%d, %s, s%d offen offset:%d sc1' %
          (vr(CSTR + 8 * tt + 2 * i, 2), 239 if i == 3 else 238, srd(S_WS), 22 + tt, 512 * i))
cst_mark = a.vm_mark()
for x in c_dma_setup(1) + [c_dma(1, i) for i in range(4)]:
    a(x)
dm[1] = a.vm_mark()
for k in range(2):
    for p in range(2):
        a('v_lshlrev_b32 v%d, 16, v%d' % (CB1 + 4 * k + 2 * p, CB1R + 2 * k + p))
        a('v_and_b32 v%d, 0xffff0000, v%d' % (CB1 + 4 * k + 2 * p + 1, CB1R + 2 * k + p))
wd_bases()
a.wait_vm(dm[0])
a('s_barrier')
stamp()


def c_xread(t, u):
    n = t * 14 + u
    return 'ds_read_b128 %s, v252 offset:%d' % (vr(XF + 4 * (n % NXF)), (t & 3) * 16384 + u * 1024)


def gelu_pre(t):
    z, m = CA[t & 1], CMR + 2 * (t & 1)
    P = range(0, 8, 2)
    o = ['v_pk_fma_f32 %s, %s, %s, %s op_sel_hi:[1,0,1] neg_lo:[0,1,0] neg_hi:[0,1,0]' % (vr(z + e, 2), vr(CCS + e, 2), vr(m, 2), vr(z + e, 2)) for e in P]
    o += ['v_pk_fma_f32 %s, %s, %s, %s op_sel:[0,1,0] op_sel_hi:[1,1,1]' % (vr(z + e, 2), vr(z + e, 2), vr(m, 2), vr(CB1 + e, 2)) for e in P]
    o += ['v_pk_mul_f32 %s, %s, %s' % (vr(GTMP + e, 2), vr(z + e, 2), vr(z + e, 2)) for e in P]
    o += ['v_pk_fma_f32 %s, %s, s[34:35], %s' % (vr(GTMP + e, 2), vr(GTMP + e, 2), vr(VGA, 2)) for e in P]
    o += ['v_pk_mul_f32 %s, %s, %s' % (vr(GTMP + e, 2), vr(GTMP + e, 2), vr(z + e, 2)) for e in P]
    return o


def gelu_mid():
    o = {}
    for e in range(8):
        o.setdefault(2 * e, []).append('v_exp_f32 v%d, v%d' % (GTMP + e, GTMP + e))
        o.setdefault(2 * e + 3, []).append('v_add_f32 v%d, 1.0, v%d' % (GTMP + e, GTMP + e))
    for e in range(6):
        o.setdefault(16 + 2 * e, []).append('v_rcp_f32 v%d, v%d' % (GTMP + e, GTMP + e))
    o.setdefault(25, []).append('v_rcp_f32 v%d, v%d' % (GTMP + 6, GTMP + 6))
    o.setdefault(27, []).append('v_rcp_f32 v%d, v%d' % (GTMP + 7, GTMP + 7))
    return o


def gelu_post(t):
    z, h = CA[t & 1], GH + 4 * (t & 1)
    o = ['v_pk_mul_f32 %s, %s, %s' % (vr(GTMP + e, 2), vr(GTMP + e, 2), vr(z + e, 2)) for e in range(0, 8, 2)]
    o += ['v_cvt_pk_bf16_f32 v%d, v%d, v%d' % (h + p, GTMP + 2 * p, GTMP + 2 * p + 1) for p in range(4)]
    return o


def gelu_packed(t):
    z, m, h = CA[t & 1], CMR + 2 * (t & 1), GH + 4 * (t & 1)
    P = range(0, 8, 2)
    for e in P:
        a('v_pk_fma_f32 %s, %s, %s, %s op_sel_hi:[1,0,1] neg_lo:[0,1,0] neg_hi:[0,1,0]' % (vr(z + e, 2), vr(CCS + e, 2), vr(m, 2), vr(z + e, 2)))
    for e in P:
        a('v_pk_fma_f32 %s, %s, %s, %s op_sel:[0,1,0] op_sel_hi:[1,1,1]' % (vr(z + e, 2), vr(z + e, 2), vr(m, 2), vr(CB1 + e, 2)))
    for e in P:
        a('v_pk_mul_f32 %s, %s, %s' % (vr(GTMP + e, 2), vr(z + e, 2), vr(z + e, 2)))
    for e in P:
        a('v_pk_fma_f32 %s, %s, s[34:35], %s' % (vr(GTMP + e, 2), vr(GTMP + e, 2), vr(VGA, 2)))
    for e in P:
        a('v_pk_mul_f32 %s, %s, %s' % (vr(GTMP + e, 2), vr(GTMP + e, 2), vr(z + e, 2)))
    for e in range(8):
        a('v_exp_f32 v%d, v%d' % (GTMP + e, GTMP + e))
    for e in P:
        a('v_pk_add_f32 %s, %s, 1.0 op_sel_hi:[1,0]' % (vr(GTMP + e, 2), vr(GTMP + e, 2)))
    for e in range(8):
        a('v_rcp_f32 v%d, v%d' % (GTMP + e, GTMP + e))
    for e in P:
        a('v_pk_mul_f32 %s, %s, %s' % (vr(GTMP + e, 2), vr(GTMP + e, 2), vr(z + e, 2)))
    for p in range(4):
        a('v_cvt_pk_bf16_f32 v%d, v%d, v%d' % (h + p, GTMP + 2 * p, GTMP + 2 * p + 1))


hmk, fmk = {}, {}


def h_store(t):
    def f():
        a('s_add_u32 s36, s32, %d' % (t * 56 * 1024))
        store('buffer_store_dwordx4 %s, v1, %s, s36 offen' % (vr(GH + 4 * (t & 1)), srd(S_WS)), sFH)
        hmk[t] = a.vm_mark()
    return f


def h_flag(t):
    def f():
        a.wait_vm(hmk[t])
        store('buffer_store_dword v%d, v241, %s, 0 offen offset:%d' % (V_T, srd(S_WS), 256 * t), sFAST)
    return f


def wd_block(fis, wave):
    def f():
        skip = newlab('L_wd')
        a('s_cmp_eq_u32 s24, %d' % wave)
        a('s_cbranch_scc0 %s' % skip)
        for fi in fis:
            a(wd_load(fi))
            a.vm_issued -= 1
        a.label(skip)
    return f


cst_fill = []
for tt in range(2):
    r = CSTR + 8 * tt
    for c_ in range(2):
        cst_fill += ['v_add_f32 v%d, v%d, v%d' % (r + c_, r + c_, r + 2 + c_),
                     'v_add_f32 v%d, v%d, v%d' % (r + 4 + c_, r + 4 + c_, r + 6 + c_),
                     'v_add_f32 v%d, v%d, v%d' % (r + c_, r + c_, r + 4 + c_)]
    cst_fill += xg_reduce(r, r + 2) + xg_reduce(r + 1, r + 3) + stats_finish(r, r + 1, r + 2, True)
a('s_lshl_b32 s%d, s%d, 7' % (sA, sW))
a('v_add_u32 v247, s%d, v246' % sA)
cst_fill += ['ds_write_b64 v247, %s' % vr(CSTR, 2), 'ds_write_b64 v247, %s offset:512' % vr(CSTR + 8, 2)]
LOOKX = 6


def emit_c_loop(wd_list):
    for u in range(LOOKX):
        a(c_xread(0, u))
    for t in range(8):
        nonvec = {}

        def put(k, x):
            nonvec.setdefault(k, []).append(x)
        for u in range(14):
            n = t * 14 + u
            m = n + LOOKX
            if m < 8 * 14:
                put(2 * u + 1, c_xread(m // 14, m % 14))
            if u % 2 == 1 and n + 1 < 8 * 14:
                put(2 * u + 1, 's_waitcnt lgkmcnt(%d)' % min(LOOKX - 2, 8 * 14 - 1 - (n + 2)))
        if t < 7:
            nonvec[14] = [('bar', t + 1)] + nonvec.get(14, [])
        if t + 2 < 8:
            su = c_dma_setup(t + 2)
            put(0, su[0])
            put(0, su[1])
            for i in range(4):
                put(2 + 2 * i, ('dma', t + 2, i))
        if t >= 3:
            put(20, ('call', h_flag(t - 3)))
        if t < 7:
            for k in (10, 12, 16, 18, 22, 24, 26):
                if wd_list:
                    put(k, wd_load(wd_list.pop(0)))
        if t > 0:
            put(17, 'ds_read_b64 %s, v246 offset:%d' % (vr(CMR + 2 * (t & 1), 2), 128 * t))
        valu = gelu_mid() if t >= 1 else {}
        if t >= 2:
            for x in gelu_post(t - 2):
                a(x)
            h_store(t - 2)()
        if t >= 1:
            for x in gelu_pre(t - 1):
                a(x)
        fill = list(cst_fill) if t == 0 else []
        first = 8
        fi = 0
        for k in range(28):
            u, kk = k >> 1, k & 1
            n = t * 14 + u
            if t == 0 and k == 0:
                a('s_waitcnt lgkmcnt(%d)' % (LOOKX - 2))
            if t == 0 and kk == 0 and u in wlate:
                a.wait_vm(wlate[u])
            if t == 0 and k == first:
                a.wait_vm(cst_mark)
            r = CA[t & 1] + 4 * kk
            a('%s %s, %s, %s, %s' % (MFMA, vr(r), vr(CWW + 4 * (2 * u + kk)), vr(XF + 4 * (n % NXF)), '0' if u == 0 else vr(r)))
            for it in nonvec.get(k, []):
                if isinstance(it, str):
                    a(it)
                elif it[0] == 'bar':
                    a.wait_vm(dm[it[1]])
                    a('s_barrier')
                elif it[0] == 'dma':
                    a(c_dma(it[1], it[2]))
                    dm[it[1]] = a.vm_mark()
                elif it[0] == 'call':
                    it[1]()
            for x in valu.get(k, []):
                a(x)
            if fill and k >= first:
                want = -(-(len(fill)) * (k - first + 1) // (28 - first))
                while fi < want:
                    a(fill[fi])
                    fi += 1
        assert fi == len(fill)
        if t == 0:
            a('s_waitcnt lgkmcnt(0)')
            a('s_barrier')
            a('ds_read_b64 %s, v246 offset:0' % vr(CMR, 2))
            a('s_waitcnt lgkmcnt(0)')
    assert not wd_list


n_before = a.vm_issued
dm_init = dict(dm)
a('s_cmp_eq_u32 s%d, 0' % sPAIR)
a('s_cbranch_scc0 L_c_loop1')
emit_c_loop(list(range(*WD_CH[1])))
a('s_branch L_c_done')
a.label('L_c_loop1')
extra = a.vm_issued - n_before
a.vm_issued = n_before
dm.clear()
dm.update(dm_init)
emit_c_loop([])
a.label('L_c_done')
stamp()
pair_base(sA, L.FC)
a('s_lshl_b32 s%d, s%d, 10' % (sB, sG))
a('s_add_u32 s%d, s%d, s%d' % (sA, sA, sB))
a('s_mul_i32 s%d, s%d, 56' % (sB, sW))
a('s_add_u32 s%d, s%d, s%d' % (sA, sA, sB))
a('v_lshl_add_u32 v243, v0, 2, s%d' % sA)
a('s_mov_b32 s%d, 0x3fff' % sMK2)
a('s_mov_b32 s%d, 0' % (sMK2 + 1))
d0_mark = early_issue(244, 243)
for x in gelu_post(6):
    a(x)
h_store(6)()
a('s_waitcnt lgkmcnt(0)')
gelu_packed(7)
h_flag(5)()
h_store(7)()
stamp()

DH, DACC, DRD, DTMP = 2, 114, 178, 210
DRING, DLOOK = 16, 10
red_addrs()
publish_setup(L.XA[1], L.SA[1], L.FX[1], False, 5)
a('s_and_b32 s%d, s%d, 1' % (sA, sG))
a('s_lshr_b32 s%d, s%d, 1' % (sB, sW))
a('s_and_b32 s%d, s%d, s%d' % (sA, sA, sB))
a('s_xor_b32 s%d, s%d, 1' % (sA, sA))
a('s_and_b32 s%d, s%d, s%d' % (sPC, sFD, sA))
a('s_and_b32 s%d, s%d, s%d' % (sPFC, sFAST, sA))
pair_base(sA, L.H)
a('s_mul_i32 s%d, s%d, %d' % (sB, sG, 4 * 56 * 1024))
a('s_add_u32 s%d, s%d, s%d' % (sA, sA, sB))
a('s_mul_i32 s%d, s%d, %d' % (sB, sW, 14 * 1024))
a('s_add_u32 s%d, s%d, s%d' % (sO, sA, sB))
quarter_offsets(4, 56 * 1024)
a('s_cmp_eq_u32 s%d, 0' % sPAIR)
a('s_cbranch_scc1 L_d_nout')
owner_index()
a('s_mul_i32 s%d, s%d, 14336' % (sPX, sB))
a('s_lshl_b32 s%d, s%d, 6' % (sA, sA))
a('s_add_u32 s%d, s%d, s%d' % (sPX, sPX, sA))
a('s_add_u32 s%d, s%d, %d' % (sPX2, sPX, 2 * 14336))
a.label('L_d_nout')
a('v_and_b32 v%d, 15, v0' % V_TOK)
a('v_lshrrev_b32 v%d, 4, v0' % V_G)
a('v_mul_u32_u24 v242, 896, v%d' % V_TOK)
a('v_lshl_add_u32 v242, v%d, 3, v242' % V_G)
early_check(244, 243, d0_mark)
stamp()


def d_hload(q):
    tile, kk = divmod(q, 14)
    return ('buffer_load_dwordx4 %s, v1, %s, s%d offen offset:%d sc1' %
            (vr(DH + (q % DRING) * 4), srd(S_WS), sO + 4 * tile + (kk >> 2), 1024 * (kk & 3)))


hm = {}
dmk = {}
for q in range(DLOOK):
    a(d_hload(q))
    hm[q] = a.vm_mark()
    if q == 6:
        dmk[1] = early_issue(244, 243, 256)
a('s_barrier')


def d_tile(tile):
    items = []
    for kk in range(14):
        q = tile * 14 + kk
        for t in range(4):
            r = DACC + (tile * 4 + t) * 4
            pre = [(lambda qq=q: a.wait_vm(hm[qq]))] if t == 0 else []
            if t == 0 and q in (3, 9):
                pre.append(h_flag({3: 6, 9: 7}[q]))
            post = None
            if t == 0 and q + DLOOK < 56:
                def post(qq=q + DLOOK):
                    if qq % 14 == 0:
                        early_check(244, 243, dmk[qq // 14], 256 * (qq // 14))
                    a(d_hload(qq))
                    hm[qq] = a.vm_mark()
                    if qq % 14 == 6 and qq // 14 < 3:
                        dmk[qq // 14 + 1] = early_issue(244, 243, 256 * (qq // 14 + 1))
            items.append((pre, '%s %s, %s, %s, %s' % (MFMA, vr(r), ar((kk * 4 + t) * 4), vr(DH + (q % DRING) * 4),
                                                      '0' if kk == 0 else vr(r)), post))
    return items


def d_out_store(st, pk):
    a('buffer_store_dwordx2 %s, v242, %s, s%d offen %s' % (vr(pk, 2), srd(S_OUT), sPX if st == 0 else sPX2, OUTSC))
    a('buffer_store_dwordx2 %s, v242, %s, s%d offen offset:32 %s' % (vr(pk + 2, 2), srd(S_OUT), sPX if st == 0 else sPX2, OUTSC))


def d_store(st, pk):
    fin, done = newlab('L_dfin'), newlab('L_ddone')
    a('s_cmp_eq_u32 s%d, 0' % sPAIR)
    a('s_cbranch_scc0 %s' % fin)
    publish_data(st, pk)
    a('s_branch %s' % done)
    a.label(fin)
    n = a.vm_issued
    d_out_store(st, pk)
    a.vm_issued = n
    a.label(done)


DT0, DT1, DPK = 210, 226, 66
stage0 = [lambda: (a('s_waitcnt lgkmcnt(0)'), a('s_barrier'))] + red_reads(0, DRD) + finish_pre(0, True, DT0)
stage0 += [lambda: a('s_waitcnt lgkmcnt(0)')] + finish_sum(0, DRD, DT0, DPK, False) + [lambda: d_store(0, DPK)]
run_tiles(d_tile, {1: red_writes(DACC, 0), 2: red_writes(DACC + 16, 1), 3: red_writes(DACC + 32, 2) + stage0})
stamp2()
for x in red_writes(DACC + 48, 3):
    a(x)
for x in finish_pre(1, True, DT1):
    a(x)
a('s_waitcnt lgkmcnt(0)')
a('s_barrier')
stamp2()
for x in red_reads(1, DRD):
    a(x)
a('s_waitcnt lgkmcnt(0)')
for x in finish_sum(1, DRD, DT1, DPK + 4, True):
    a(x)
d_store(1, DPK + 4)
stamp()
a('s_cmp_eq_u32 s%d, 0' % sPAIR)
a('s_cbranch_scc0 L_next_pair')
publish_flags(8)
publish_stats([DT0, DT1], 88, 84)
a('s_waitcnt vmcnt(0)')
stats_flags(L.FSA - L.FX[1], 8)
a.label('L_next_pair')
stamp()
a('s_add_u32 s%d, s%d, 1' % (sPAIR, sPAIR))
a('s_cmp_lt_u32 s%d, 2' % sPAIR)
a('s_cbranch_scc1 L_pair')

a('s_cmp_eq_u32 s2, 0')
a('s_cbranch_scc0 L_noepoch')
a('s_cmp_eq_u32 s%d, 0' % sW)
a('s_cbranch_scc0 L_noepoch')
a('buffer_load_dword v2, off, %s, 0 sc1' % srd(S_WS))
a('s_waitcnt vmcnt(0)')
a('v_add_u32 v2, 1, v2')
a('s_mov_b64 exec, 1')
a('buffer_store_dword v2, off, %s, 0 sc1' % srd(S_WS))
a('s_mov_b64 exec, -1')
a.label('L_noepoch')
if PAD:
    a.label('L_padspin')
    a('s_memrealtime s[34:35]')
    a('s_waitcnt lgkmcnt(0)')
    a('s_sub_u32 s34, s34, s0')
    a('s_cmp_lt_u32 s34, %d' % PAD[0])
    a('s_cbranch_scc1 L_padspin')
if DBG:
    a('s_memtime s[32:33]')
    a('s_memrealtime s[34:35]')
    a('s_waitcnt lgkmcnt(0)')
    a('s_sub_u32 s32, s32, s26')
    a('s_sub_u32 s34, s34, s0')
    build_srd(S_TMP, P_DBG, 256)
    a('v_mov_b32 v2, s32')
    a('v_mov_b32 v3, s34')
    a('v_mov_b32 v4, s%d' % sFAST)
    a('v_mov_b32 v5, s%d' % sXCC)
    a('s_lshr_b32 s%d, s2, 6' % sA)
    a('s_lshl_b32 s%d, s%d, 4' % (sA, sA))
    a('s_and_b32 s%d, s2, 63' % sB)
    a('s_or_b32 s%d, s%d, s%d' % (sB, sB, sW))
    a('s_cmp_eq_u32 s%d, 0' % sB)
    a('s_cselect_b32 s%d, s%d, 0x%x' % (sA, sA, INV))
    a('v_mov_b32 v6, s%d' % sA)
    a('s_mov_b64 exec, 1')
    a('buffer_store_dwordx4 v[2:5], v6, %s, 0 offen' % srd(S_TMP))
    a('s_mov_b64 exec, -1')
if DIAG:
    stamp()
    a('s_mov_b32 s%d, 63' % sSTI)
    a('s_lshl_b64 exec, 1, s%d' % sSTI)
    a('v_mov_b32 v%d, s%d' % (V_STAMP, sERR))
    a('s_mov_b32 s%d, 62' % sSTI)
    a('s_lshl_b64 exec, 1, s%d' % sSTI)
    a('v_mov_b32 v%d, s%d' % (V_STAMP, sFAST))
    a('s_mov_b64 exec, -1')
    a('s_lshl_b32 s%d, s2, 2' % sA)
    a('s_add_u32 s%d, s%d, s%d' % (sA, sA, sW))
    a('s_lshl_b32 s%d, s%d, 8' % (sA, sA))
    a('v_lshlrev_b32 v2, 2, v0')
    a('s_add_u32 s%d, s%d, %d' % (sA, sA, L.WS_USED))
    a('s_mov_b32 s%d, 0x%x' % (S_WS + 2, L.WS_USED + 256 * 1024))
    a('buffer_store_dword v%d, v2, %s, s%d offen' % (V_STAMP, srd(S_WS), sA))
a.label('L_end')
a('s_endpgm')

a.finalize()
body = a.text()

import os
hdr = open(os.path.join(os.path.dirname(os.path.abspath(__file__)), 'header.txt')).read()
out = hdr + '; @launch grid=(256,1,1) block=(256,1,1) lds=%d\n' % L.LDS_BYTES
out += '.amdgcn_target "amdgcn-amd-amdhsa--gfx950"\n.text\n.globl %s_kernel\n.p2align 8\n.type %s_kernel,@function\n%s_kernel:\n' % (NAME, NAME, NAME)
out += body
out += '''.section .rodata,"a"
.p2align 6
.amdhsa_kernel %s_kernel
  .amdhsa_next_free_vgpr 512
  .amdhsa_next_free_sgpr 102
  .amdhsa_accum_offset 256
  .amdhsa_group_segment_fixed_size 0
  .amdhsa_kernarg_size 88
  .amdhsa_user_sgpr_count 2
  .amdhsa_user_sgpr_kernarg_segment_ptr 1
  .amdhsa_system_sgpr_workgroup_id_x 1
.end_amdhsa_kernel
''' % NAME
sys.stdout.write(out)
```

```python
import struct
import sys
from asmlib import Asm
import layout as L

NAME = 'interleave_layers__sliding_local_dilated__mixer_channel_mlp__prompt'
DIAG = '--diag' in sys.argv
FASTMODE = ([x[7:] for x in sys.argv if x.startswith('--fast=')] + ['flags'])[0]
NOFAST = FASTMODE == 'none'
PAD = [int(x[6:]) for x in sys.argv if x.startswith('--pad=')]
DBG = '--dbg' in sys.argv or bool(PAD)
SPIN_LIMIT = 200000
OUTSC = ([x[8:] for x in sys.argv if x.startswith('--outsc=')] + [''])[0].replace('_', ' ')
SLEEP = int(([x[8:] for x in sys.argv if x.startswith('--sleep=')] + ['0'])[0])
INV = 0x80000000

a = Asm()

sXCC = 3
S_WS, S_TMP, S_B1, S_OUT = 4, 8, 12, 16
P_X, P_WQKV, P_WO, P_BX, P_W1, P_B1, P_W2, P_B2, P_OUT, P_DBG, P_WSP = 20, 22, 24, 26, 28, 30, 32, 34, 36, 38, 40
sS, sC, sG, sJ, sW, sT, sPAIR, sSPIN = 42, 43, 44, 45, 46, 47, 48, 49
sM1 = 50
sM2 = 58
sM0 = 66
sO = 74
sA, sB, sCc, sD = 90, 91, 92, 93
sMK = 94
sTS = 96
sGT = 98
sERR = 99
sSTI = 100
sFAST = 101
sFD = 27
sPFC = 26
sFH = 39


def srd(n):
    return 's[%d:%d]' % (n, n + 3)


def vr(n, k=4):
    return 'v[%d:%d]' % (n, n + k - 1)


def ar(n, k=4):
    return 'a[%d:%d]' % (n, n + k - 1)


def sp(n):
    return 's[%d:%d]' % (n, n + 1)


def f2h(x):
    return '0x%08x' % struct.unpack('<I', struct.pack('<f', x))[0]


V_T, V_STAMP = 254, 255
V_TOK, V_G = 250, 251
MFMA = 'v_mfma_f32_16x16x32_bf16'


DIAG2 = '--diag2' in sys.argv
PREF = '--nopref' not in sys.argv


def stamp2():
    if DIAG2:
        stamp()


def stamp():
    if not DIAG:
        return
    a('s_memtime %s' % sp(sTS))
    a('s_waitcnt lgkmcnt(0)')
    a('s_lshl_b64 exec, 1, s%d' % sSTI)
    a('v_mov_b32 v%d, s%d' % (V_STAMP, sTS))
    a('s_mov_b64 exec, -1')
    a('s_add_u32 s%d, s%d, 1' % (sSTI, sSTI))


lab_no = [0]


def newlab(p):
    lab_no[0] += 1
    return '%s_%d' % (p, lab_no[0])


def build_srd(dst, ptr, nbytes):
    a('s_mov_b32 s%d, s%d' % (dst, ptr))
    a('s_and_b32 s%d, s%d, 0xffff' % (dst + 1, ptr + 1))
    a('s_mov_b32 s%d, 0x%x' % (dst + 2, nbytes))
    a('s_mov_b32 s%d, 0x20000' % (dst + 3))


def poll(voff, off2=None):
    lab, done = newlab('L_poll'), newlab('L_polldone')
    a('s_mov_b64 exec, %s' % sp(sMK))
    a('s_mov_b32 s%d, 0' % sSPIN)
    a.label(lab)
    a('buffer_load_dword v253, v%d, %s, 0 offen sc1' % (voff, srd(S_WS)))
    if off2 is not None:
        a('buffer_load_dword v245, v%d, %s, 0 offen offset:%d sc1' % (voff, srd(S_WS), off2))
    a('s_waitcnt vmcnt(0)')
    if off2 is not None:
        a('v_xor_b32 v245, s%d, v245' % sT)
        a('v_xor_b32 v253, s%d, v253' % sT)
        a('v_or_b32 v253, v253, v245')
        a('v_cmp_ne_u32 vcc, 0, v253')
    else:
        a('v_cmp_ne_u32 vcc, s%d, v253' % sT)
    a('s_nop 4')
    a('s_cbranch_vccz %s' % done)
    if SLEEP:
        a('s_sleep %d' % SLEEP)
    a('s_add_u32 s%d, s%d, 1' % (sSPIN, sSPIN))
    a('s_cmp_lt_u32 s%d, %d' % (sSPIN, SPIN_LIMIT))
    a('s_cbranch_scc1 %s' % lab)
    a('s_add_u32 s%d, s%d, 1' % (sERR, sERR))
    a.label(done)
    a('s_mov_b64 exec, -1')


sMK2 = 30


def early_issue(dst, voff, off=0):
    a('s_mov_b64 exec, %s' % sp(sMK2))
    a('buffer_load_dword v%d, v%d, %s, 0 offen offset:%d sc1' % (dst, voff, srd(S_WS), off))
    a('s_mov_b64 exec, -1')
    return a.vm_mark()


def early_check(dst, voff, mark, off=0):
    ok = newlab('L_early')
    a.wait_vm(mark)
    a('s_mov_b64 exec, %s' % sp(sMK2))
    a('v_cmp_ne_u32 vcc, s%d, v%d' % (sT, dst))
    a('s_mov_b64 exec, -1')
    a('s_nop 2')
    a('s_cbranch_vccz %s' % ok)
    a('s_mov_b64 %s, %s' % (sp(sMK), sp(sMK2)))
    n = a.vm_issued
    if off:
        a('v_add_u32 v253, %d, v%d' % (off, voff))
        a('v_mov_b32 v%d, v253' % dst)
        poll(dst)
    else:
        poll(voff)
    a.vm_issued = n
    a.label(ok)


def store(fmt, cond=None):
    if cond is None or NOFAST or (FASTMODE == 'flags' and cond in (sFD, sFH, sPC)):
        a(fmt + ' sc1')
        return
    slow, done = newlab('L_slow'), newlab('L_st')
    a('s_cmp_eq_u32 s%d, 0' % cond)
    a('s_cbranch_scc1 %s' % slow)
    a(fmt)
    a('s_branch %s' % done)
    a.label(slow)
    a(fmt + ' sc1')
    a.vm_issued -= 1
    a.label(done)


def set_flags(voff, nlanes, cond=None, val=V_T, between=()):
    mark = a.vm_mark()
    for x in between:
        a(x)
    a.wait_vm(mark)
    a('s_mov_b64 exec, %d' % ((1 << nlanes) - 1))
    store('buffer_store_dword v%d, v%d, %s, 0 offen' % (val, voff, srd(S_WS)), cond)
    a('s_mov_b64 exec, -1')


def xg_reduce(x, t, op='v_add_f32'):
    return ['v_mov_b32 v%d, v%d' % (t, x),
            'v_permlane32_swap_b32 v%d, v%d' % (x, t),
            '%s v%d, v%d, v%d' % (op, x, x, t),
            'v_mov_b32 v%d, v%d' % (t, x),
            'v_permlane16_swap_b32 v%d, v%d' % (x, t),
            '%s v%d, v%d, v%d' % (op, x, x, t)]


EPS = 1e-5


def stats_finish(s1, s2, t, double_ln):
    o = ['v_mul_f32 v%d, %s, v%d' % (s1, f2h(1.0 / 448), s1),
         'v_mul_f32 v%d, %s, v%d' % (s2, f2h(1.0 / 448), s2),
         'v_fma_f32 v%d, -v%d, v%d, v%d' % (s2, s1, s1, s2),
         'v_max_f32 v%d, 0, v%d' % (s2, s2),
         'v_add_f32 v%d, %s, v%d' % (t, f2h(EPS), s2),
         'v_rsq_f32 v%d, v%d' % (t, t)]
    if not double_ln:
        o += ['v_mov_b32 v%d, v%d' % (s2, t)]
    else:
        o += ['v_mul_f32 v%d, v%d, v%d' % (s2, s2, t),
              'v_fmaak_f32 v%d, v%d, v%d, %s' % (s2, s2, t, f2h(EPS)),
              'v_rsq_f32 v%d, v%d' % (s2, s2),
              'v_mul_f32 v%d, v%d, v%d' % (s2, s2, t)]
    return o


def pair_base(dst, arr):
    a('s_mul_i32 s%d, s%d, %d' % (dst, sPAIR, arr[1] - arr[0]))
    a('s_add_u32 s%d, s%d, %d' % (dst, dst, arr[0]))


def quarter_offsets(n, stride):
    for t in range(n):
        if t:
            a('s_add_u32 s%d, s%d, %d' % (sO + 4 * t, sO + 4 * (t - 1), stride))
        for q in range(1, 4):
            a('s_add_u32 s%d, s%d, %d' % (sO + 4 * t + q, sO + 4 * t, 4096 * q))


sPX, sPS, sPF, sPC, sPX2 = 36, 37, 28, 29, 33


def stats_flags(delta, lsh):
    a('v_lshlrev_b32 v241, %d, v0' % lsh)
    a('s_add_u32 s%d, s%d, %d' % (sA, sPF, delta))
    a('v_add_u32 v241, s%d, v241' % sA)
    a('s_mov_b64 exec, 3')
    store('buffer_store_dword v%d, v241, %s, 0 offen' % (V_T, srd(S_WS)), sPFC)
    a('s_mov_b64 exec, -1')


a('s_cmp_ge_u32 s2, 256')
a('s_cbranch_scc1 L_end')
a('s_load_dwordx16 s[20:35], s[0:1], 0')
a('s_load_dwordx4 s[36:39], s[0:1], 64')
a('s_load_dwordx2 s[40:41], s[0:1], 80')
a('s_getreg_b32 s%d, hwreg(HW_REG_XCC_ID, 0, 4)' % sXCC)
a('s_and_b32 s%d, s2, 7' % sA)
a('s_lshr_b32 s%d, s2, 3' % sB)
a('s_lshr_b32 s%d, s%d, 4' % (sCc, sB))
a('s_lshl_b32 s%d, s%d, 1' % (sS, sA))
a('s_add_u32 s%d, s%d, s%d' % (sS, sS, sCc))
a('s_and_b32 s%d, s%d, 15' % (sC, sB))
a('s_lshr_b32 s%d, s%d, 3' % (sA, sC))
a('s_lshl_b32 s%d, s%d, 1' % (sG, sS))
a('s_add_u32 s%d, s%d, s%d' % (sG, sG, sA))
a('s_and_b32 s%d, s%d, 7' % (sJ, sC))
a('s_mov_b32 s%d, 0' % sERR)
if PREF:
    a('s_getpc_b64 s[96:97]')
    a.label('L_pc')
    a('s_lshl_b32 s%d, s%d, 11' % (sA, sB))
    a('v_lshlrev_b32 v3, 3, v0')
    a('v_add_u32 v3, s%d, v3' % sA)
    a('v_min_u32 v3, L_end-L_pc-8, v3')
    a('global_load_dwordx2 v[252:253], v3, s[96:97]')
a('v_lshrrev_b32 v2, 6, v0')
a('v_and_b32 v0, 63, v0')
a('v_readfirstlane_b32 s%d, v2' % sW)
a('v_lshlrev_b32 v1, 4, v0')
if DIAG:
    a('v_mov_b32 v%d, 0' % V_STAMP)
    a('s_mov_b32 s%d, 0' % sSTI)
stamp()
a('v_and_b32 v%d, 15, v0' % V_TOK)
a('v_lshrrev_b32 v%d, 4, v0' % V_G)
sSTG = 40
a('s_waitcnt lgkmcnt(0)')
if DBG:
    a('s_memtime s[26:27]')
    a('s_memrealtime s[0:1]')
    a('s_waitcnt lgkmcnt(0)')
build_srd(S_WS, P_WSP, L.WS_USED)
a('buffer_load_dword v%d, off, %s, 0 sc1' % (V_T, srd(S_WS)))
a('s_lshl_b32 s%d, s%d, 14' % (sSTG, sW))
a('s_add_u32 s%d, s%d, %d' % (sSTG, sSTG, L.L_R2))

build_srd(S_TMP, P_X, 2048 * 896)
a('v_mul_u32_u24 v2, 896, v%d' % V_TOK)
a('v_lshl_add_u32 v2, v%d, 3, v2' % V_G)
a('s_lshr_b32 s%d, s%d, 1' % (sA, sC))
a('s_lshl_b32 s%d, s%d, 3' % (sB, sS))
a('s_add_u32 s%d, s%d, s%d' % (sO + 0, sA, sB))
a('s_and_b32 s%d, s%d, 1' % (sA, sC))
a('s_mul_i32 s%d, s%d, 7' % (sA, sA))
a('s_add_u32 s%d, s%d, s%d' % (sO + 1, sA, sW))
a('s_cmp_lt_u32 s%d, 3' % sW)
a('s_cselect_b32 s%d, 0, 0x%x' % (sO + 2, INV))
a('s_mul_i32 s%d, s%d, 14336' % (sA, sO + 0))
a('s_lshl_b32 s%d, s%d, 6' % (sB, sO + 1))
a('s_add_u32 s%d, s%d, s%d' % (sA, sA, sB))
a('v_or_b32 v3, s%d, v2' % (sO + 2))
a('buffer_load_dwordx2 v[10:11], v2, %s, s%d offen' % (srd(S_TMP), sA))
a('buffer_load_dwordx2 v[12:13], v2, %s, s%d offen offset:32' % (srd(S_TMP), sA))
a('buffer_load_dwordx2 v[14:15], v3, %s, s%d offen offset:256' % (srd(S_TMP), sA))
a('buffer_load_dwordx2 v[16:17], v3, %s, s%d offen offset:288' % (srd(S_TMP), sA))

build_srd(S_TMP, P_WQKV, 448 * 2688)
qMAT, qU, qINV = sO + 3, sO + 4, sO + 5
a('s_lshl_b32 s%d, s%d, 4' % (sA, sW))
a('s_add_u32 s%d, s%d, s%d' % (sA, sA, sS))
a('s_cmp_lt_u32 s%d, 42' % sA)
a('s_cselect_b32 s%d, 0, 0x%x' % (qINV, INV))
a('s_min_u32 s%d, s%d, 41' % (sA, sA))
a('s_mul_i32 s%d, s%d, 4682' % (qMAT, sA))
a('s_lshr_b32 s%d, s%d, 16' % (qMAT, qMAT))
a('s_mul_i32 s%d, s%d, 14' % (sB, qMAT))
a('s_sub_u32 s%d, s%d, s%d' % (qU, sA, sB))
a('s_mul_i32 s%d, s%d, %d' % (sA, qU, 32 * 2688))
a('s_mul_i32 s%d, s%d, 896' % (sB, qMAT))
a('s_add_u32 s%d, s%d, s%d' % (sA, sA, sB))
a('s_mul_i32 s%d, s%d, 56' % (sB, sC))
a('s_add_u32 s%d, s%d, s%d' % (sA, sA, sB))
a('v_lshrrev_b32 v4, 2, v0')
a('v_mul_u32_u24 v4, 2688, v4')
a('v_and_b32 v5, 3, v0')
a('v_lshl_add_u32 v4, v5, 4, v4')
a('v_or_b32 v4, s%d, v4' % qINV)
a('s_mov_b32 m0, s%d' % sSTG)
a('s_add_u32 s%d, s%d, %d' % (sB, sA, 16 * 2688))
a('buffer_load_dwordx4 v4, %s, s%d offen lds' % (srd(S_TMP), sA))
a('s_add_u32 m0, s%d, 1024' % sSTG)
a('s_nop 0')
a('buffer_load_dwordx4 v4, %s, s%d offen lds' % (srd(S_TMP), sB))

bINV, bDST, bSTR = 20, 21, 22
a('s_lshl_b32 s%d, s%d, 5' % (sA, sW))
a('s_add_u32 s%d, s%d, s%d' % (sA, sA, sG))
a('s_cmp_lt_u32 s%d, 72' % sA)
a('s_cselect_b32 s%d, 0, 0x%x' % (bINV, INV))
a('s_cmp_eq_u32 s%d, 7' % sJ)
a('s_cselect_b32 s%d, 0x%x, s%d' % (bINV, INV, bINV))
a('s_min_u32 s%d, s%d, 71' % (sA, sA))
a('s_min_u32 s%d, s%d, 6' % (sD, sJ))
a('s_cmp_lt_u32 s%d, 16' % sA)
a('s_cselect_b32 s%d, s%d, s%d' % (S_TMP, P_WO, P_W2))
a('s_cselect_b32 s%d, s%d, s%d' % (S_TMP + 1, P_WO + 1, P_W2 + 1))
a('s_mov_b32 s%d, 0x%x' % (S_TMP + 2, 1792 * 896))
a('s_cselect_b32 s%d, 0x%x, s%d' % (S_TMP + 2, 448 * 896, S_TMP + 2))
a('s_cselect_b32 s%d, 28, 32' % sB)
a('s_cselect_b32 s%d, 0, 16' % sCc)
a('s_mov_b32 s%d, %d' % (bSTR, 56 * 1024))
a('s_cselect_b32 s%d, %d, s%d' % (bSTR, 16 * 1024, bSTR))
a('s_mov_b32 s%d, %d' % (bDST, L.WD))
a('s_cselect_b32 s%d, %d, s%d' % (bDST, L.WB, bDST))
a('s_cselect_b32 s%d, 0x%x, 0' % (sO + 9, INV))
a('s_and_b32 s%d, s%d, 0xffff' % (S_TMP + 1, S_TMP + 1))
a('s_mov_b32 s%d, 0x20000' % (S_TMP + 3))
a('s_sub_u32 s%d, s%d, s%d' % (sA, sA, sCc))
a('s_lshl_b32 s%d, s%d, 10' % (sCc, sA))
a('s_add_u32 s%d, s%d, s%d' % (bDST, bDST, sCc))
a('s_lshl_b32 s%d, s%d, 2' % (sCc, sD))
a('s_mul_i32 s%d, s%d, s%d' % (sCc, sCc, bSTR))
a('s_add_u32 s%d, s%d, s%d' % (bDST, bDST, sCc))
a('s_mul_i32 s%d, s%d, s%d' % (sA, sA, sB))
a('s_mul_i32 s%d, s%d, 896' % (sA, sA))
a('s_lshl_b32 s%d, s%d, 7' % (sB, sD))
a('s_add_u32 s%d, s%d, s%d' % (sA, sA, sB))
a('v_lshrrev_b32 v6, 3, v0')
a('v_mul_u32_u24 v6, 896, v6')
a('v_and_b32 v5, 7, v0')
a('v_lshl_add_u32 v6, v5, 4, v6')
a('v_or_b32 v6, s%d, v6' % bINV)
a('v_cmp_lt_u32 vcc, 31, v0')
a('v_mov_b32 v7, s%d' % (sO + 9))
a('v_cndmask_b32 v7, 0, v7, vcc')
a('v_or_b32 v7, v7, v6')
for q in range(4):
    a('s_add_u32 m0, s%d, %d' % (sSTG, 2048 + 1024 * q))
    if q:
        a('s_add_u32 s%d, s%d, %d' % (sA, sA, 8 * 896))
    else:
        a('s_nop 0')
    a('buffer_load_dwordx4 v%d, %s, s%d offen lds' % (7 if q == 3 else 6, srd(S_TMP), sA))

build_srd(S_TMP, P_W1, 448 * 3584)
cINV, cNT, cI12 = 23, 24, 25
a('s_cmp_lt_u32 s%d, 16' % sG)
a('s_cselect_b32 s%d, 0, 0x%x' % (cINV, INV))
a('s_cmp_eq_u32 s%d, 7' % sJ)
a('s_cselect_b32 s%d, 0x%x, s%d' % (cINV, INV, cINV))
a('s_min_u32 s%d, s%d, 6' % (sD, sJ))
a('s_lshl_b32 s%d, s%d, 4' % (cNT, sD))
a('s_and_b32 s%d, s%d, 15' % (sA, sG))
a('s_add_u32 s%d, s%d, s%d' % (cNT, cNT, sA))
a('s_cmp_lt_u32 s%d, 2' % sW)
a('s_cselect_b32 s%d, s%d, 0x%x' % (cI12, cINV, INV))
a('v_lshrrev_b32 v8, 1, v0')
a('v_mul_u32_u24 v8, 3584, v8')
a('v_and_b32 v5, 1, v0')
a('v_lshl_add_u32 v8, v5, 4, v8')
a('v_or_b32 v9, s%d, v8' % cI12)
a('v_or_b32 v8, s%d, v8' % cINV)
a('s_lshl_b32 s%d, s%d, 5' % (sB, cNT))
for i in range(4):
    a('s_add_u32 s%d, s%d, %d' % (sA, sW, 4 * i))
    a('s_min_u32 s%d, s%d, 13' % (sA, sA))
    a('s_mul_i32 s%d, s%d, %d' % (sA, sA, 32 * 3584))
    a('s_add_u32 s%d, s%d, s%d' % (sA, sA, sB))
    a('s_add_u32 m0, s%d, %d' % (sSTG, 6144 + 1024 * i))
    a('s_nop 0')
    a('buffer_load_dwordx4 v%d, %s, s%d offen lds' % (9 if i == 3 else 8, srd(S_TMP), sA))
build_srd(S_B1, P_B1, 1792 * 2)
build_srd(S_OUT, P_OUT, 2048 * 896)
a('v_bfe_u32 v18, v0, 2, 2')
a('v_lshl_add_u32 v18, v%d, 2, v18' % V_G)
a('v_and_b32 v19, 3, v0')
a('v_lshlrev_b32 v19, 3, v19')
a('s_waitcnt vmcnt(8)')
stamp()

a('s_mov_b32 s%d, 0x9E3779B1' % sA)
a('v_mul_lo_u32 v%d, v%d, s%d' % (V_T, V_T, sA))
a('v_add_u32 v%d, 0x7F4A7C15, v%d' % (V_T, V_T))
a('v_and_b32 v%d, -16, v%d' % (V_T, V_T))
a('v_lshl_add_u32 v20, v18, 6, v19')
a('v_add_u32 v20, s%d, v20' % sSTG)
for hf in range(2):
    a('ds_read_b64_tr_b16 %s, v20 offset:%d' % (vr(24 + 4 * hf, 2), 32 * hf))
    a('ds_read_b64_tr_b16 %s, v20 offset:%d' % (vr(26 + 4 * hf, 2), 32 * hf + 1024))
a('v_readfirstlane_b32 s%d, v%d' % (sT, V_T))
a('s_mul_i32 s%d, s%d, 14' % (sA, sO + 0))
a('s_add_u32 s%d, s%d, s%d' % (sA, sA, sO + 1))
a('s_lshl_b32 s%d, s%d, 10' % (sB, sA))
a('s_add_u32 s%d, s%d, %d' % (sB, sB, L.XA[0]))
a('v_or_b32 v3, s%d, v1' % (sO + 2))
a('buffer_store_dwordx4 v[10:13], v1, %s, s%d offen sc1' % (srd(S_WS), sB))
a('s_add_u32 s%d, s%d, 4096' % (sB, sB))
a('buffer_store_dwordx4 v[14:17], v3, %s, s%d offen sc1' % (srd(S_WS), sB))
a('v_cmp_gt_u32 vcc, 12, v%d' % V_TOK)
a('s_mul_i32 s%d, s%d, 84' % (sB, sC))
a('s_mul_i32 s%d, s%d, 28' % (sCc, qMAT))
a('s_add_u32 s%d, s%d, s%d' % (sB, sB, sCc))
a('s_add_u32 s%d, s%d, s%d' % (sB, sB, qU))
a('s_lshl_b32 s%d, s%d, 10' % (sB, sB))
a('s_add_u32 s%d, s%d, %d' % (sB, sB, L.WA))
a('v_or_b32 v4, s%d, v1' % qINV)
a('s_waitcnt lgkmcnt(0)')
for p in range(4):
    a('v_cndmask_b32 v%d, 0, v%d, vcc' % (28 + p, 28 + p))
a('buffer_store_dwordx4 v[24:27], v4, %s, s%d offen sc1' % (srd(S_WS), sB))
a('s_add_u32 s%d, s%d, %d' % (sB, sB, 14 * 1024))
a('buffer_store_dwordx4 v[28:31], v4, %s, s%d offen sc1' % (srd(S_WS), sB))
a('v_mov_b32 v2, 0x3f803f80')
for k in range(2):
    x, s1, s2 = 10 + 4 * k, 110 + 2 * k, 111 + 2 * k
    a('v_mov_b32 v%d, 0' % s1)
    a('v_mov_b32 v%d, 0' % s2)
    for p in range(4):
        a('v_dot2_f32_bf16 v%d, v%d, v2, v%d' % (s1, x + p, s1))
        a('v_dot2_f32_bf16 v%d, v%d, v%d, v%d' % (s2, x + p, x + p, s2))
    for t in xg_reduce(s1, 114) + xg_reduce(s2, 115):
        a(t)
a('s_lshl_b32 s%d, s%d, 7' % (sB, sA))
a('s_add_u32 s%d, s%d, %d' % (sB, sB, L.SA[0]))
a('v_lshlrev_b32 v2, 3, v%d' % V_TOK)
a('v_or_b32 v3, s%d, v2' % (sO + 2))
a('s_mov_b64 exec, 0xffff')
a('buffer_store_dwordx2 v[110:111], v2, %s, s%d offen sc1' % (srd(S_WS), sB))
a('buffer_store_dwordx2 v[112:113], v3, %s, s%d offen offset:512 sc1' % (srd(S_WS), sB))
a('s_mov_b64 exec, -1')
a('s_lshl_b32 s%d, s%d, 5' % (sA, sO + 0))
a('s_add_u32 s%d, s%d, s%d' % (sA, sA, sO + 1))
a('s_lshl_b32 s%d, s%d, 2' % (sA, sA))
a('s_add_u32 s%d, s%d, %d' % (sA, sA, L.FX[0]))
a('v_lshlrev_b32 v2, 4, v0')
a('v_add_u32 v2, s%d, v2' % sA)
a('v_cmp_eq_u32 vcc, 1, v0')
a('v_mov_b32 v3, s%d' % (sO + 2))
a('v_cndmask_b32 v3, 0, v3, vcc')
a('v_or_b32 v2, v2, v3')
a('s_lshl_b32 s%d, s%d, 6' % (sA, sC))
a('s_lshl_b32 s%d, s%d, 2' % (sB, sS))
a('s_add_u32 s%d, s%d, s%d' % (sA, sA, sB))
a('s_add_u32 s%d, s%d, s%d' % (sA, sA, sW))
a('s_lshl_b32 s%d, s%d, 2' % (sA, sA))
a('s_add_u32 s%d, s%d, %d' % (sA, sA, L.FQ))
a('v_mov_b32 v3, s%d' % sA)
a('v_cmp_eq_u32 vcc, 2, v0')
a('v_cndmask_b32 v2, v2, v3, vcc')
a('s_lshl_b32 s%d, s%d, 4' % (sA, sS))
a('s_add_u32 s%d, s%d, s%d' % (sA, sA, sC))
a('s_lshl_b32 s%d, s%d, 2' % (sA, sA))
a('s_add_u32 s%d, s%d, %d' % (sA, sA, L.FXC))
a('s_cmp_eq_u32 s%d, 0' % sW)
a('s_cselect_b32 s%d, s%d, 0x%x' % (sA, sA, INV))
a('v_mov_b32 v3, s%d' % sA)
a('v_cmp_eq_u32 vcc, 3, v0')
a('v_cndmask_b32 v2, v2, v3, vcc')
a('v_or_b32 v3, s%d, v%d' % (sXCC, V_T))
a('v_cndmask_b32 v3, v%d, v3, vcc' % V_T)
set_flags(2, 4, None, 3)
stamp()

a('v_lshl_add_u32 v20, v18, 7, v19')
a('v_add_u32 v20, s%d, v20' % sSTG)
for t in range(4):
    a('ds_read_b64_tr_b16 %s, v20 offset:%d' % (vr(24 + 4 * t, 2), 2048 + 32 * t))
    a('ds_read_b64_tr_b16 %s, v20 offset:%d' % (vr(26 + 4 * t, 2), 2048 + 32 * t + 2048))
a('v_lshl_add_u32 v21, v18, 5, v19')
a('v_add_u32 v21, s%d, v21' % sSTG)
for i in range(4):
    a('ds_read_b64_tr_b16 %s, v21 offset:%d' % (vr(40 + 4 * i, 2), 6144 + 1024 * i))
    a('ds_read_b64_tr_b16 %s, v21 offset:%d' % (vr(42 + 4 * i, 2), 6144 + 1024 * i + 512))
a('v_or_b32 v6, s%d, v1' % bINV)
a('s_waitcnt lgkmcnt(8)')
for t in range(4):
    a('buffer_store_dwordx4 %s, v6, %s, s%d offen sc1' % (vr(24 + 4 * t), srd(S_WS), bDST))
    if t < 3:
        a('s_add_u32 s%d, s%d, s%d' % (bDST, bDST, bSTR))
a('s_mul_i32 s%d, s%d, 14' % (sA, cNT))
a('s_add_u32 s%d, s%d, s%d' % (sA, sA, sW))
a('s_lshl_b32 s%d, s%d, 10' % (sA, sA))
a('s_add_u32 s%d, s%d, %d' % (sA, sA, L.WC))
a('v_or_b32 v8, s%d, v1' % cINV)
a('v_or_b32 v9, s%d, v1' % cI12)
a('v_mov_b32 v2, 0x3f803f80')
a('v_mov_b32 v100, 0')
a('s_waitcnt lgkmcnt(0)')
for i in range(4):
    a('buffer_store_dwordx4 %s, v%d, %s, s%d offen sc1' % (vr(40 + 4 * i), 9 if i == 3 else 8, srd(S_WS), sA))
    a('s_add_u32 s%d, s%d, 4096' % (sA, sA))
for i in range(4):
    for p in range(4):
        a('v_dot2_f32_bf16 v100, v%d, v2, v100' % (40 + 4 * i + p))
for t in xg_reduce(100, 101):
    a(t)
a('s_lshl_b32 s%d, s%d, 6' % (sA, sW))
a('s_add_u32 s%d, s%d, %d' % (sA, sA, L.L_CSR))
a('v_lshlrev_b32 v2, 2, v%d' % V_TOK)
a('v_add_u32 v3, s%d, v2' % sA)
a('ds_write_b32 v3, v100')
a('s_waitcnt lgkmcnt(0)')
a('s_barrier')
a('v_add_u32 v3, %d, v2' % L.L_CSR)
for i in range(4):
    a('ds_read_b32 v%d, v3 offset:%d' % (104 + i, 64 * i))
a('s_lshl_b32 s%d, s%d, 6' % (sB, cNT))
a('s_add_u32 s%d, s%d, %d' % (sB, sB, L.CSC))
a('s_cmp_eq_u32 s%d, 0' % sW)
a('s_cselect_b32 s%d, s%d, 0x%x' % (sA, cINV, INV))
a('v_or_b32 v2, s%d, v2' % sA)
a('s_waitcnt lgkmcnt(0)')
a('v_add_f32 v104, v104, v105')
a('v_add_f32 v106, v106, v107')
a('v_add_f32 v104, v104, v106')
a('s_mov_b64 exec, 0xffff')
a('buffer_store_dword v104, v2, %s, s%d offen sc1' % (srd(S_WS), sB))
a('s_mov_b64 exec, -1')

a('v_and_b32 v2, 1, v%d' % V_TOK)
a('v_lshlrev_b32 v3, 2, v%d' % V_G)
a('v_add_u32 v6, 2, v%d' % V_TOK)
for i in range(4):
    a('v_add_u32 v4, %d, v3' % i)
    a('v_cmp_eq_u32 vcc, %d, v2' % (i & 1))
    a('s_mov_b64 %s, vcc' % sp(sMK))
    a('v_cmp_ge_u32 vcc, v4, v6')
    a('s_and_b64 %s, vcc, %s' % (sp(sM1 + 2 * i), sp(sMK)))
    a('v_cmp_le_u32 vcc, v4, v%d' % V_TOK)
    a('s_and_b64 %s, vcc, %s' % (sp(sM2 + 2 * i), sp(sMK)))
a('s_lshl_b32 s%d, s%d, 3' % (sA, sS))
a('s_lshl_b32 s%d, s%d, 1' % (sB, sW))
a('s_add_u32 s%d, s%d, s%d' % (sGT, sA, sB))
a('s_cmp_eq_u32 s%d, 0' % sGT)
for i in range(4):
    a('s_cselect_b64 %s, 0, %s' % (sp(sM0 + 2 * i), sp(sM1 + 2 * i)))
a('s_mov_b32 s%d, 0' % sPAIR)

def a_flag_addr(dst):
    pair_base(sA, L.FX)
    a('s_lshl_b32 s%d, s%d, 7' % (sB, sGT))
    a('s_add_u32 s%d, s%d, s%d' % (sA, sA, sB))
    a('s_sub_u32 s%d, s%d, 128' % (sA, sA))
    a('v_and_b32 v%d, 48, v0' % dst)
    a('v_add_u32 v%d, v%d, v0' % (dst, dst))
    a('v_lshl_add_u32 v%d, v%d, 2, s%d' % (dst, dst, sA))
    a('s_mov_b32 s%d, 0x3fff3fff' % sMK)
    a('s_mov_b32 s%d, 0x3fff' % (sMK + 1))
    a('s_cmp_eq_u32 s%d, 0' % sGT)
    a('s_cselect_b32 s%d, 0x3fff0000, s%d' % (sMK, sMK))


a('s_lshl_b32 s%d, s%d, 8' % (sA, sC))
a('s_add_u32 s%d, s%d, %d' % (sA, sA, L.FQ))
a('v_lshl_add_u32 v2, v0, 2, s%d' % sA)
a_flag_addr(3)
a('s_lshl_b32 s%d, s%d, 6' % (sA, sS))
a('s_add_u32 s%d, s%d, %d' % (sA, sA, L.FXC - 48 * 4))
a('v_lshl_add_u32 v4, v0, 2, s%d' % sA)
a('v_cmp_lt_u32 vcc, 47, v0')
a('v_cndmask_b32 v3, v3, v4, vcc')
a('v_mov_b32 v5, -1')
a('v_mov_b32 v6, -16')
a('v_cndmask_b32 v5, v5, v6, vcc')
a('s_or_b32 s%d, s%d, 0xffff0000' % (sMK + 1, sMK + 1))
a('s_mov_b32 s%d, 0' % sSPIN)
a.label('L_poll0')
a('buffer_load_dword v7, v2, %s, 0 offen sc1' % srd(S_WS))
a('s_mov_b64 exec, %s' % sp(sMK))
a('buffer_load_dword v8, v3, %s, 0 offen sc1' % srd(S_WS))
a('s_waitcnt vmcnt(0)')
a('v_and_b32 v9, v5, v8')
a('v_cmp_ne_u32 vcc, s%d, v9' % sT)
a('s_mov_b64 exec, -1')
a('s_mov_b64 %s, vcc' % sp(sTS))
a('v_cmp_ne_u32 vcc, s%d, v7' % sT)
a('s_or_b64 vcc, vcc, %s' % sp(sTS))
a('s_cbranch_vccz L_poll0_done')
a('s_add_u32 s%d, s%d, 1' % (sSPIN, sSPIN))
a('s_cmp_lt_u32 s%d, %d' % (sSPIN, SPIN_LIMIT))
a('s_cbranch_scc1 L_poll0')
a('s_add_u32 s%d, s%d, 1' % (sERR, sERR))
a.label('L_poll0_done')
a('v_and_b32 v9, 15, v8')
a('v_cmp_ne_u32 vcc, s%d, v9' % sXCC)
a('s_and_b32 s%d, vcc_hi, 0xffff0000' % sA)
a('s_cmp_eq_u32 s%d, 0' % sA)
a('s_cselect_b32 s%d, 1, 0' % sFAST)
stamp()
AQ, AK, AV = 2, 18, 42
WBUF = [66, 90]
XR = 114
CSACC = 186
STR = 210
SM, SR = 234, 237
NR, LOOK = 6, 4
A_ONES = 240


def a_xload(u):
    slot = u % NR
    return ['buffer_load_dwordx4 %s, v1, %s, s%d offen offset:%d sc1' %
            (vr(XR + (slot * 3 + t) * 4), srd(S_WS), sO + 4 * t + (u >> 2), 1024 * (u & 3)) for t in range(3)]


def a_offsets():
    pair_base(sA, L.XA)
    a('s_mul_i32 s%d, s%d, 14336' % (sB, sGT))
    a('s_add_u32 s%d, s%d, s%d' % (sO + 4, sA, sB))
    a('s_add_u32 s%d, s%d, 14336' % (sO + 8, sO + 4))
    a('s_sub_u32 s%d, s%d, 14336' % (sO + 0, sO + 4))
    a('s_cmp_eq_u32 s%d, 0' % sGT)
    a('s_cselect_b32 s%d, s%d, s%d' % (sO + 0, sO + 4, sO + 0))
    for t in range(3):
        for q in range(1, 4):
            a('s_add_u32 s%d, s%d, %d' % (sO + 4 * t + q, sO + 4 * t, 4096 * q))


def a_setup():
    if FASTMODE == 'flags':
        a('s_mov_b32 s%d, 0' % sFD)
        a('s_mov_b32 s%d, 0' % sFH)
    elif FASTMODE == 'p0':
        a('s_xor_b32 s%d, s%d, 1' % (sFD, sPAIR))
        a('s_and_b32 s%d, s%d, s%d' % (sFD, sFD, sFAST))
        a('s_mov_b32 s%d, s%d' % (sFH, sFD))
    elif FASTMODE == 'small':
        a('s_mov_b32 s%d, s%d' % (sFD, sFAST))
        a('s_mov_b32 s%d, 0' % sFH)
    elif FASTMODE == 'smallp0':
        a('s_mov_b32 s%d, s%d' % (sFD, sFAST))
        a('s_xor_b32 s%d, s%d, 1' % (sFH, sPAIR))
        a('s_and_b32 s%d, s%d, s%d' % (sFH, sFH, sFAST))
    else:
        a('s_mov_b32 s%d, s%d' % (sFD, sFAST))
        a('s_mov_b32 s%d, s%d' % (sFH, sFAST))
    pair_base(sA, L.SA)
    a('s_mul_i32 s%d, s%d, 1792' % (sB, sGT))
    a('s_add_u32 s%d, s%d, s%d' % (sO + 13, sA, sB))
    a('s_add_u32 s%d, s%d, 1792' % (sO + 14, sO + 13))
    a('s_sub_u32 s%d, s%d, 1792' % (sO + 12, sO + 13))
    a('s_cmp_eq_u32 s%d, 0' % sGT)
    a('s_cselect_b32 s%d, s%d, s%d' % (sO + 12, sO + 13, sO + 12))
    a('v_and_b32 v%d, 15, v0' % V_TOK)
    a('v_lshrrev_b32 v%d, 4, v0' % V_G)
    a('v_lshlrev_b32 v240, 3, v%d' % V_TOK)
    a('v_lshl_add_u32 v240, v%d, 7, v240' % V_G)
    a('v_mov_b32 v242, 0x%x' % INV)
    a('v_cmp_lt_u32 vcc, 1, v%d' % V_G)
    a('v_cndmask_b32 v241, 0, v242, vcc')
    a('v_or_b32 v241, v241, v240')
    a('v_add_u32 v243, %d, v1' % (56 * 1024))
    a('v_lshlrev_b32 v244, 4, v%d' % V_G)
    a('v_add_u32 v244, %d, v244' % L.L_CSA)
    a('v_lshlrev_b32 v245, 2, v%d' % V_TOK)
    a('v_add_u32 v245, %d, v245' % L.L_CSA)
    a('s_lshl_b32 s%d, s%d, 7' % (sA, sJ))
    a('s_add_u32 s%d, s%d, %d' % (sA, sA, L.FP))
    a('v_lshl_add_u32 v248, v0, 2, s%d' % sA)
    a('s_lshr_b32 s%d, s%d, 1' % (sB, sW))
    a('s_lshl_b32 s%d, s%d, 2' % (sCc, sG))
    a('s_add_u32 s%d, s%d, s%d' % (sB, sB, sCc))
    a('s_lshl_b32 s%d, s%d, 5' % (sB, sB))
    a('s_and_b32 s%d, s%d, 1' % (sA, sW))
    a('s_add_u32 s%d, s%d, s%d' % (sB, sB, sA))
    a('s_min_u32 s%d, s%d, 6' % (sA, sJ))
    a('s_lshl_b32 s%d, s%d, 1' % (sA, sA))
    a('s_add_u32 s%d, s%d, s%d' % (sB, sB, sA))
    a('s_lshl_b32 s%d, s%d, 2' % (sB, sB))
    a('s_add_u32 s%d, s%d, %d' % (sB, sB, L.FX[0] - 32 * 256))
    a('v_lshl_add_u32 v249, v0, 8, s%d' % sB)
    a('v_cmp_lt_u32 vcc, 31, v0')
    a('v_cndmask_b32 v248, v248, v249, vcc')
    a('s_cmp_eq_u32 s%d, 0' % sPAIR)
    a('s_mov_b32 s%d, %d' % (sA, L.FSA - 128))
    a('s_cselect_b32 s%d, %d, s%d' % (sA, L.FX[0] - 128, sA))
    a('s_lshl_b32 s%d, s%d, 7' % (sB, sGT))
    a('s_add_u32 s%d, s%d, s%d' % (sA, sA, sB))
    a('v_and_b32 v247, 48, v0')
    a('v_add_u32 v247, v247, v0')
    a('v_lshl_add_u32 v247, v247, 2, s%d' % sA)
    a('s_mov_b32 s%d, 0x3fff3fff' % sMK2)
    a('s_mov_b32 s%d, 0x3fff' % (sMK2 + 1))
    a('s_cmp_eq_u32 s%d, 0' % sGT)
    a('s_cselect_b32 s%d, 0x3fff0000, s%d' % (sMK2, sMK2))


stat_loads = ['buffer_load_dwordx2 %s, v%d, %s, s%d offen offset:%d sc1' %
              (vr(STR + (t * 4 + i) * 2, 2), 241 if i == 3 else 240, srd(S_WS), sO + 12 + t, 512 * i)
              for t in range(3) for i in range(4)]


def a_wread(u):
    b = WBUF[u & 1]
    o = []
    for p in range(6):
        if p < 4:
            o.append('ds_read_b128 %s, v1 offset:%d' % (vr(b + 4 * p), L.L_WA + (p * 14 + u) * 1024))
        else:
            o.append('ds_read_b128 %s, v243 offset:%d' % (vr(b + 4 * p), L.L_WA + ((p - 4) * 14 + u) * 1024))
    return o


stat_fill = []
for t in range(3):
    r = STR + 8 * t
    for c_ in range(2):
        stat_fill += ['v_add_f32 v%d, v%d, v%d' % (r + c_, r + c_, r + 2 + c_),
                      'v_add_f32 v%d, v%d, v%d' % (r + 4 + c_, r + 4 + c_, r + 6 + c_),
                      'v_add_f32 v%d, v%d, v%d' % (r + c_, r + c_, r + 4 + c_)]
    stat_fill += xg_reduce(r, r + 2) + xg_reduce(r + 1, r + 3)
    stat_fill += stats_finish(r, r + 1, r + 2, False)
    stat_fill += ['v_mov_b32 v%d, v%d' % (SM + t, r), 'v_mov_b32 v%d, v%d' % (SR + t, r + 1)]

sWA = [20, 21, 22]
sWAG = 23


def wa_dma(pr, i):
    def f():
        a('s_add_u32 m0, s%d, %d' % (sWA[i], L.L_WA + 2048 * pr))
        a('s_add_u32 s%d, s%d, s%d' % (sD, sWA[i], sWAG))
        if pr:
            a('s_add_u32 s%d, s%d, %d' % (sD, sD, 2048 * pr))
        a('buffer_load_dwordx4 v1, %s, s%d offen sc1 lds' % (srd(S_WS), sD))
    return f


amark = {}


def emit_a_loop(first, xmark, wam):
    ep_mark = es_mark = st_mark = None
    for t in a_wread(0):
        a(t)
    for u in range(14):
        need = xmark[u]
        if u == 12:
            need = max(need, st_mark)
        a.wait_vm(need)
        if u == 6:
            early_check(246, 247, es_mark)
        if u == 11:
            a('s_mov_b32 s%d, -1' % sMK2)
            a('s_mov_b32 s%d, 3' % (sMK2 + 1))
        a('s_waitcnt lgkmcnt(0)')
        wb = WBUF[u & 1]
        xs = XR + (u % NR) * 12
        mf = []
        cz = (lambda r: '0') if u == 0 else (lambda r: vr(r))
        for t in range(2):
            for hf in range(2):
                r = AQ + (t * 2 + hf) * 4
                mf.append('%s %s, %s, %s, %s' % (MFMA, vr(r), vr(wb + 4 * hf), vr(xs + 4 * (t + 1)), cz(r)))
        for t in range(3):
            for hf in range(2):
                r = AK + (t * 2 + hf) * 4
                mf.append('%s %s, %s, %s, %s' % (MFMA, vr(r), vr(wb + 8 + 4 * hf), vr(xs + 4 * t), cz(r)))
        for t in range(3):
            for hf in range(2):
                r = AV + (t * 2 + hf) * 4
                mf.append('%s %s, %s, %s, %s' % (MFMA, vr(r), vr(xs + 4 * t), vr(wb + 16 + 4 * hf), cz(r)))
        if first:
            for p in range(6):
                r = CSACC + 4 * p
                if p < 4:
                    mf.append('%s %s, %s, %s, %s' % (MFMA, vr(r), vr(wb + 4 * p), ar(A_ONES), cz(r)))
                else:
                    mf.append('%s %s, %s, %s, %s' % (MFMA, vr(r), ar(A_ONES), vr(wb + 4 * p), cz(r)))
        mem = {}

        def put(k, x):
            mem.setdefault(k, []).append(x)
        off = 0
        if first and u % 2 == 1 and u < 13:
            put(2, ('bar', (u + 1) // 2))
            off = 3
        if u < 13:
            for k, x in enumerate(a_wread(u + 1)):
                put(off + k, x)
        elif not first:
            for p in range(4):
                put(p, 'ds_read_b128 %s, v244 offset:%d' % (vr(WBUF[0] + 4 * p), 64 * p))
            for d in range(2):
                put(4 + d, 'ds_read_b32 v%d, v245 offset:%d' % (WBUF[0] + 16 + d, 64 * (4 + d)))
        if u + LOOK < 14:
            for k, x in zip((6, 9, 12), a_xload(u + LOOK)):
                put(k + off, x)
            put(12 + off, ('xm', u + LOOK))
        if first and u % 2 == 0 and u // 2 + 3 <= 6:
            for i, k in enumerate((13, 16, 19)):
                put(k, ('wa', u // 2 + 3, i))
        if 6 <= u < 10:
            for k, x in zip((8, 11, 14), stat_loads[3 * (u - 6):3 * (u - 6) + 3]):
                put(k, x)
            if u == 9:
                put(14, ('st',))
        if u == 11:
            put(8, ('early',))
        if u == 4:
            put(8, ('estat',))
        fill = stat_fill[(u - 12) * 30:(u - 11) * 30] if u >= 12 else []
        fi = 0
        for k, m in enumerate(mf):
            a(m)
            for it in mem.get(k, []):
                if isinstance(it, str):
                    a(it)
                elif it[0] == 'early':
                    ep_mark = early_issue(249, 248)
                elif it[0] == 'estat':
                    es_mark = early_issue(246, 247)
                elif it[0] == 'xm':
                    xmark[it[1]] = a.vm_mark()
                elif it[0] == 'st':
                    st_mark = a.vm_mark()
                elif it[0] == 'bar':
                    a.wait_vm(wam[it[1]])
                    a('s_barrier')
                elif it[0] == 'wa':
                    wa_dma(it[1], it[2])()
                    wam[it[1]] = a.vm_mark()
            for _ in range(2):
                if fi < len(fill) and k >= 1:
                    a(fill[fi])
                    fi += 1
        assert fi == len(fill), (u, fi, len(fill))
    amark['ep'] = ep_mark


for p in range(4):
    a('v_mov_b32 v4, 0x3f803f80')
    a('v_accvgpr_write_b32 a%d, v4' % (A_ONES + p))
a('s_mul_i32 s%d, s%d, 14336' % (sWA[0], sW))
a('s_add_u32 s%d, s%d, 4' % (sA, sW))
a('s_mul_i32 s%d, s%d, 14336' % (sA, sA))
a('s_sub_u32 s%d, s%d, 2' % (sB, sW))
a('s_mul_i32 s%d, s%d, 14336' % (sB, sB))
a('s_add_u32 s%d, s%d, 1024' % (sB, sB))
a('s_cmp_lt_u32 s%d, 2' % sW)
a('s_cselect_b32 s%d, s%d, s%d' % (sWA[1], sA, sB))
a('s_add_u32 s%d, s%d, 2' % (sA, sW))
a('s_mul_i32 s%d, s%d, 14336' % (sA, sA))
a('s_add_u32 s%d, s%d, 1024' % (sWA[2], sA))
a('s_mul_i32 s%d, s%d, %d' % (sWAG, sC, 84 * 1024))
a('s_add_u32 s%d, s%d, %d' % (sWAG, sWAG, L.WA))
a_offsets()
xm0, wam0 = {}, {}


def wa_pair(pr):
    for i in range(3):
        wa_dma(pr, i)()
    wam0[pr] = a.vm_mark()


for pr in range(3):
    wa_pair(pr)
    for u in (2 * pr, 2 * pr + 1):
        if u < LOOK:
            for t in a_xload(u):
                a(t)
            xm0[u] = a.vm_mark()
a_setup()
a.wait_vm(wam0[0])
a('s_barrier')
a('s_lshl_b32 s%d, s%d, 5' % (sA, sJ))
a('s_add_u32 s%d, s%d, s%d' % (sA, sA, sG))
a('s_lshl_b32 s%d, s%d, 2' % (sA, sA))
a('s_add_u32 s%d, s%d, %d' % (sA, sA, L.FP))
a('s_cmp_eq_u32 s%d, 0' % sW)
a('s_cselect_b32 s%d, s%d, 0x%x' % (sA, sA, INV))
a('v_mov_b32 v2, s%d' % sA)
a('s_mov_b64 exec, 1')
a('buffer_store_dword v%d, v2, %s, 0 offen sc1' % (V_T, srd(S_WS)))
a.vm_issued -= 1
a('s_mov_b64 exec, -1')
stamp()
emit_a_loop(True, xm0, wam0)
n_join = a.vm_issued - amark['ep']
CSQ = WBUF[0]
a('v_cmp_eq_u32 vcc, 0, v%d' % V_TOK)
a('s_mov_b64 exec, vcc')
for p in range(4):
    a('ds_write_b128 v244, %s offset:%d' % (vr(CSACC + 4 * p), 64 * p))
a('s_mov_b64 exec, 0xffff')
for d in range(2):
    a('ds_write_b32 v245, v%d offset:%d' % (CSACC + 16 + 4 * d, 64 * (4 + d)))
a('s_mov_b64 exec, -1')
for e in range(16):
    a('v_mov_b32 v%d, v%d' % (CSQ + e, CSACC + e))
for d in range(2):
    a('v_mov_b32 v%d, v%d' % (CSQ + 16 + d, CSACC + 16 + 4 * d))
a('s_branch L_a_epi')

a.label('L_pair')
a_flag_addr(2)
poll(2)
stamp()
a_offsets()
xmark = {}
for u in range(LOOK):
    for t in a_xload(u):
        a(t)
    xmark[u] = a.vm_mark()
a_setup()
emit_a_loop(False, xmark, None)
assert a.vm_issued - amark['ep'] == n_join
ep_mark = amark['ep']
a.label('L_a_epi')
stamp()
for x in stat_fill[60:]:
    a(x)
early_check(249, 248, ep_mark)
BW = 2
a('s_lshl_b32 s%d, s%d, 6' % (sA, sJ))
a('s_lshl_b32 s%d, s%d, 2' % (sB, sW))
a('s_add_u32 s%d, s%d, s%d' % (sA, sA, sB))
a('s_lshl_b32 s%d, s%d, 10' % (sA, sA))
a('s_add_u32 s20, s%d, %d' % (sA, L.WB))
for t in range(1, 4):
    a('s_add_u32 s%d, s20, %d' % (20 + t, 16 * 1024 * t))
wb_loads = ['buffer_load_dwordx4 %s, v1, %s, s%d offen offset:%d sc1' % (vr(BW + (i * 4 + t) * 4), srd(S_WS), 20 + t, 1024 * i)
            for i in range(4) for t in range(4)]
A_RES, A_B2 = 224, 232


def owner_index():
    a('s_lshr_b32 s%d, s%d, 1' % (sB, sW))
    a('s_lshl_b32 s%d, s%d, 2' % (sCc, sG))
    a('s_add_u32 s%d, s%d, s%d' % (sB, sB, sCc))
    a('s_and_b32 s%d, s%d, 1' % (sA, sW))
    a('s_lshl_b32 s%d, s%d, 1' % (sCc, sJ))
    a('s_add_u32 s%d, s%d, s%d' % (sA, sA, sCc))


a('s_cmp_eq_u32 s%d, 0' % sPAIR)
a('s_cbranch_scc0 L_a_nores')
owner_index()
a('s_mul_i32 s%d, s%d, 14' % (sB, sB))
a('s_add_u32 s%d, s%d, s%d' % (sB, sB, sA))
a('s_lshl_b32 s%d, s%d, 10' % (sB, sB))
a('s_add_u32 s%d, s%d, %d' % (sB, sB, L.XA[0]))
a('buffer_load_dwordx4 %s, v1, %s, s%d offen sc1' % (ar(A_RES), srd(S_WS), sB))
a('s_add_u32 s%d, s%d, %d' % (sB, sB, 2 * 14336))
a('buffer_load_dwordx4 %s, v1, %s, s%d offen sc1' % (ar(A_RES + 4), srd(S_WS), sB))
build_srd(S_TMP, P_B2, 896)
a('s_lshl_b32 s%d, s%d, 6' % (sB, sA))
a('v_lshlrev_b32 v240, 3, v%d' % V_G)
a('buffer_load_dwordx2 v[228:229], v240, %s, s%d offen' % (srd(S_TMP), sB))
a('buffer_load_dwordx2 v[230:231], v240, %s, s%d offen offset:32' % (srd(S_TMP), sB))
a.label('L_a_nores')
CSQ = WBUF[0]
a('s_mul_i32 s%d, s%d, 384' % (sA, sW))
a('s_add_u32 s%d, s%d, %d' % (sA, sA, L.L_STA))
a('v_lshl_add_u32 v246, v%d, 2, s%d' % (V_TOK, sA))
a('v_lshl_add_u32 v247, v%d, 4, s%d' % (V_G, sA))
a('s_mov_b64 exec, 0xffff')
for t in range(3):
    a('ds_write_b32 v246, v%d offset:%d' % (SM + t, 128 * t))
    a('ds_write_b32 v246, v%d offset:%d' % (SR + t, 128 * t + 64))
a('s_mov_b64 exec, -1')
MROW, RROW = 114, 126
a('s_waitcnt lgkmcnt(0)')
for t in range(3):
    a('ds_read_b128 %s, v247 offset:%d' % (vr(MROW + 4 * t), 128 * t))
    a('ds_read_b128 %s, v247 offset:%d' % (vr(RROW + 4 * t), 128 * t + 64))
QF, KF, VF = 140, 148, 160
for t in range(2):
    for hf in range(2):
        r = AQ + (t * 2 + hf) * 4
        for i in range(4):
            a('v_fma_f32 v%d, -v%d, v%d, v%d' % (r + i, SM + t + 1, CSQ + 4 * hf + i, r + i))
        for p in range(2):
            a('v_cvt_pk_bf16_f32 v%d, v%d, v%d' % (QF + 4 * t + 2 * hf + p, r + 2 * p, r + 2 * p + 1))
for t in range(3):
    for hf in range(2):
        r = AK + (t * 2 + hf) * 4
        for i in range(4):
            a('v_fma_f32 v%d, -v%d, v%d, v%d' % (r + i, SM + t, CSQ + 8 + 4 * hf + i, r + i))
        for p in range(2):
            a('v_cvt_pk_bf16_f32 v%d, v%d, v%d' % (KF + 4 * t + 2 * hf + p, r + 2 * p, r + 2 * p + 1))
SS = 172
for t in range(2):
    a('%s %s, %s, %s, 0' % (MFMA, vr(SS + 8 * t), vr(KF + 4 * t), vr(QF + 4 * t)))
    a('%s %s, %s, %s, 0' % (MFMA, vr(SS + 8 * t + 4), vr(KF + 4 * t + 4), vr(QF + 4 * t)))
a('s_waitcnt lgkmcnt(0)')
for t in range(3):
    for d in range(2):
        r = AV + (t * 2 + d) * 4
        for i in range(4):
            a('v_fma_f32 v%d, -v%d, v%d, v%d' % (r + i, MROW + 4 * t + i, CSQ + 16 + d, r + i))
        for p in range(2):
            a('v_cvt_pk_bf16_f32 v%d, v%d, v%d' % (VF + 6 * d + 2 * t + p, r + 2 * p, r + 2 * p + 1))
SCALE = (28.0 ** -0.5) * 1.4426950408889634
MX, CC, LS, TMPR = 190, 192, 194, 196
PF = 200
a('v_mov_b32 v198, 0xff800000')
seq = [[], []]
for t in range(2):
    s = SS + 8 * t
    q = seq[t]
    for e in range(8):
        q.append('v_mul_f32 v%d, v%d, v%d' % (s + e, s + e, RROW + 4 * (t + (e >> 2)) + (e & 3)))
    for e in range(8):
        mk = (sM0 if t == 0 else sM1) + 2 * e if e < 4 else sM2 + 2 * (e - 4)
        q.append('v_cndmask_b32 v%d, v198, v%d, %s' % (s + e, s + e, sp(mk)))
    q.append('v_max3_f32 v%d, v%d, v%d, v%d' % (MX + t, s, s + 1, s + 2))
    q.append('v_max3_f32 v%d, v%d, v%d, v%d' % (MX + t, MX + t, s + 3, s + 4))
    q.append('v_max3_f32 v%d, v%d, v%d, v%d' % (MX + t, MX + t, s + 5, s + 6))
    q.append('v_max_f32 v%d, v%d, v%d' % (MX + t, MX + t, s + 7))
    q += xg_reduce(MX + t, TMPR + t, 'v_max_f32')
    q.append('v_mul_f32 v%d, %s, v%d' % (CC + t, f2h(SCALE), SR + t + 1))
    q.append('v_mul_f32 v%d, v%d, v%d' % (MX + t, MX + t, CC + t))
    for e in range(8):
        q.append('v_fma_f32 v%d, v%d, v%d, -v%d' % (s + e, s + e, CC + t, MX + t))
    for e in range(8):
        q.append('v_exp_f32 v%d, v%d' % (s + e, s + e))
    q.append('v_add_f32 v%d, v%d, v%d' % (LS + t, s, s + 1))
    for e in range(2, 8):
        q.append('v_add_f32 v%d, v%d, v%d' % (LS + t, LS + t, s + e))
    q += xg_reduce(LS + t, TMPR + t)
    q.append('v_rcp_f32 v%d, v%d' % (LS + t, LS + t))
    for e in range(8):
        q.append('v_mul_f32 v%d, v%d, v%d' % (s + e, s + e, RROW + 4 * (t + (e >> 2)) + (e & 3)))
    for p in range(4):
        q.append('v_cvt_pk_bf16_f32 v%d, v%d, v%d' % (PF + 4 * t + p, s + 2 * p, s + 2 * p + 1))
merged = [z for xy in zip(*seq) for z in xy]
gap = len(merged) // (len(wb_loads) + 1)
for k, x in enumerate(merged):
    a(x)
    if k % gap == gap - 1 and wb_loads:
        a(wb_loads.pop(0))
assert not wb_loads
OO = 208
for t in range(2):
    for d in range(2):
        a('%s %s, %s, %s, 0' % (MFMA, vr(OO + 8 * t + 4 * d), vr(VF + 6 * d + 2 * t), vr(PF + 4 * t)))
pair_base(sA, L.O)
a('s_lshl_b32 s%d, s%d, 4' % (sB, sGT))
a('s_add_u32 s%d, s%d, s%d' % (sB, sB, sC))
a('s_lshl_b32 s%d, s%d, 10' % (sB, sB))
a('s_add_u32 s%d, s%d, s%d' % (sA, sA, sB))
for t in range(2):
    for e in range(8):
        a('v_mul_f32 v%d, v%d, v%d' % (OO + 8 * t + e, OO + 8 * t + e, LS + t))
    for p in range(4):
        a('v_cvt_pk_bf16_f32 v%d, v%d, v%d' % (PF + 4 * t + p, OO + 8 * t + 2 * p, OO + 8 * t + 2 * p + 1))
    store('buffer_store_dwordx4 %s, v1, %s, s%d offen' % (vr(PF + 4 * t), srd(S_WS), sA), sFD)
    if t == 0:
        a('s_add_u32 s%d, s%d, 16384' % (sA, sA))
pair_base(sA, L.FA)
a('s_lshl_b32 s%d, s%d, 4' % (sB, sGT))
a('s_add_u32 s%d, s%d, s%d' % (sB, sB, sC))
a('s_lshl_b32 s%d, s%d, 2' % (sB, sB))
a('s_add_u32 s%d, s%d, s%d' % (sA, sA, sB))
a('v_lshlrev_b32 v241, 6, v0')
a('v_add_u32 v241, s%d, v241' % sA)
set_flags(241, 2, sFAST)
stamp()
a('s_cmp_eq_u32 s%d, 7' % sJ)
a('s_cbranch_scc1 L_next_pair')


def wd_bases():
    a('s_lshl_b32 s%d, s%d, 2' % (sA, sJ))
    a('s_mul_i32 s%d, s%d, %d' % (sA, sA, 56 * 1024))
    a('s_mul_i32 s%d, s%d, %d' % (sB, sW, 14 * 1024))
    a('s_add_u32 s%d, s%d, s%d' % (sA, sA, sB))
    a('s_add_u32 s%d, s%d, %d' % (sO, sA, L.WD))
    quarter_offsets(4, 56 * 1024)


def wd_load(fi):
    kk, t = fi >> 2, fi & 3
    return ('buffer_load_dwordx4 %s, v1, %s, s%d offen offset:%d sc1' %
            (ar(4 * fi), srd(S_WS), sO + 4 * t + (kk >> 2), 1024 * (kk & 3)))


WD_CH = [(0, 12), (12, 56)]
BO, BACC, BRD, BTMP = 66, 130, 194, 226
a('s_cmp_eq_u32 s%d, 0' % sPAIR)
a('s_cbranch_scc0 L_b_start')
for k in range(4):
    a('v_lshlrev_b32 v236, 16, v%d' % (228 + k))
    a('v_and_b32 v237, 0xffff0000, v%d' % (228 + k))
    a('v_accvgpr_write_b32 a%d, v236' % (A_B2 + 2 * k))
    a('v_accvgpr_write_b32 a%d, v237' % (A_B2 + 2 * k + 1))
wd_bases()
for fi in range(*WD_CH[0]):
    a(wd_load(fi))
a.label('L_b_start')
CWW = 66
sCI = 41
a('s_lshr_b32 s%d, s%d, 3' % (sA, sC))
a('s_mul_i32 s%d, s%d, 7' % (sA, sA))
a('s_add_u32 s%d, s%d, s%d' % (sCI, sA, sJ))
a('s_lshl_b32 s%d, s%d, 3' % (sA, sCI))
a('s_lshl_b32 s%d, s%d, 1' % (sB, sW))
a('s_add_u32 s%d, s%d, s%d' % (sA, sA, sB))
a('s_mul_i32 s%d, s%d, %d' % (sB, sA, 14 * 1024))
a('s_add_u32 s%d, s%d, %d' % (sO, sB, L.WC))
quarter_offsets(2, 14 * 1024)


def c_wload(idx):
    u, k = idx >> 1, idx & 1
    return ('buffer_load_dwordx4 %s, v1, %s, s%d offen offset:%d sc1' %
            (vr(CWW + 4 * idx), srd(S_WS), sO + 4 * k + (u >> 2), 1024 * (u & 3)))


def red_writes(acc, tile):
    return ['ds_write_b128 v248, %s offset:%d' % (vr(acc + 4 * t), (tile >> 1) * 32768 + (tile & 1) * 4096 + t * 1024)
            for t in range(4)]


def red_reads(st, rd):
    return ['ds_read_b128 %s, v249 offset:%d' % (vr(rd + (b * 2 + k) * 4), st * 32768 + b * 8192 + k * 1024)
            for b in range(4) for k in range(2)]


def add8(dst, x, y, packed):
    if packed:
        return ['v_pk_add_f32 %s, %s, %s' % (vr(dst + e, 2), vr(x + e, 2), vr(y + e, 2)) for e in range(0, 8, 2)]
    return ['v_add_f32 v%d, v%d, v%d' % (dst + e, x + e, y + e) for e in range(8)]


def finish_pre(st, is_d, tmp):
    res = A_RES + 4 * st
    o = ['v_accvgpr_read_b32 v%d, a%d' % (tmp + 8 + p, res + p) for p in range(4)]
    for p in range(4):
        o += ['v_lshlrev_b32 v%d, 16, v%d' % (tmp + 2 * p, tmp + 8 + p),
              'v_and_b32 v%d, 0xffff0000, v%d' % (tmp + 2 * p + 1, tmp + 8 + p)]
    if is_d:
        o += ['v_accvgpr_read_b32 v%d, a%d' % (tmp + 8 + e, A_B2 + e) for e in range(8)]
        o += ['v_add_f32 v%d, v%d, v%d' % (tmp + e, tmp + e, tmp + 8 + e) for e in range(8)]
    return o


def finish_sum(st, rd, tmp, pk, packed):
    o = add8(rd, rd, rd + 8, packed) + add8(rd + 16, rd + 16, rd + 24, packed) + add8(rd, rd, rd + 16, packed)
    o += add8(tmp, tmp, rd, packed)
    o += ['v_cvt_pk_bf16_f32 v%d, v%d, v%d' % (pk + p, tmp + 2 * p, tmp + 2 * p + 1) for p in range(4)]
    o += ['v_accvgpr_write_b32 a%d, v%d' % (A_RES + 4 * st + p, pk + p) for p in range(4)]
    return o


def owner_stats(tmp, s1, t):
    a('v_pk_add_f32 %s, %s, %s' % (vr(t, 2), vr(tmp, 2), vr(tmp + 2, 2)))
    a('v_pk_add_f32 %s, %s, %s' % (vr(t + 2, 2), vr(tmp + 4, 2), vr(tmp + 6, 2)))
    a('v_pk_add_f32 %s, %s, %s' % (vr(t, 2), vr(t, 2), vr(t + 2, 2)))
    a('v_add_f32 v%d, v%d, v%d' % (s1, t, t + 1))
    a('v_pk_mul_f32 %s, %s, %s' % (vr(t, 2), vr(tmp, 2), vr(tmp, 2)))
    for e in (2, 4, 6):
        a('v_pk_fma_f32 %s, %s, %s, %s' % (vr(t, 2), vr(tmp + e, 2), vr(tmp + e, 2), vr(t, 2)))
    a('v_add_f32 v%d, v%d, v%d' % (s1 + 1, t, t + 1))
    for x, y in zip(xg_reduce(s1, t), xg_reduce(s1 + 1, t + 1)):
        a(x)
        a(y)


def red_addrs():
    a('s_lshl_b32 s%d, s%d, 13' % (sA, sW))
    a('s_add_u32 s%d, s%d, %d' % (sA, sA, L.L_R2))
    a('v_add_u32 v248, s%d, v1' % sA)
    a('s_and_b32 s%d, s%d, 1' % (sA, sW))
    a('s_lshl_b32 s%d, s%d, 11' % (sA, sA))
    a('s_lshr_b32 s%d, s%d, 1' % (sB, sW))
    a('s_lshl_b32 s%d, s%d, 12' % (sB, sB))
    a('s_add_u32 s%d, s%d, s%d' % (sA, sA, sB))
    a('s_add_u32 s%d, s%d, %d' % (sA, sA, L.L_R2))
    a('v_add_u32 v249, s%d, v1' % sA)


def publish_setup(xbase, sbase, fbase, per_pair, fsh):
    owner_index()
    a('s_mul_i32 s%d, s%d, 14' % (sCc, sB))
    a('s_add_u32 s%d, s%d, s%d' % (sCc, sCc, sA))
    a('s_lshl_b32 s%d, s%d, 10' % (sPX, sCc))
    a('s_lshl_b32 s%d, s%d, 7' % (sPS, sCc))
    a('s_lshl_b32 s%d, s%d, %d' % (sPF, sB, fsh))
    a('s_add_u32 s%d, s%d, s%d' % (sPF, sPF, sA))
    a('s_lshl_b32 s%d, s%d, 2' % (sPF, sPF))
    for dst, arr in ((sPX, xbase), (sPS, sbase), (sPF, fbase)):
        if per_pair:
            pair_base(sD, arr)
            a('s_add_u32 s%d, s%d, s%d' % (dst, dst, sD))
        else:
            a('s_add_u32 s%d, s%d, %d' % (dst, dst, arr))
    a('s_add_u32 s%d, s%d, %d' % (sPX2, sPX, 2 * 14336))


def publish_data(st, pk):
    store('buffer_store_dwordx4 %s, v1, %s, s%d offen offset:0' % (vr(pk), srd(S_WS), sPX if st == 0 else sPX2), sPC)


def publish_stats(tmps, t, s1):
    a('v_and_b32 v%d, 15, v0' % V_TOK)
    a('v_lshlrev_b32 v%d, 3, v%d' % (t + 4, V_TOK))
    for st in range(2):
        owner_stats(tmps[st], s1 + 2 * st, t)
    a('s_mov_b64 exec, 0xffff')
    store('buffer_store_dwordx2 %s, v%d, %s, s%d offen' % (vr(s1, 2), t + 4, srd(S_WS), sPS), sPC)
    a('s_add_u32 s%d, s%d, %d' % (sPS, sPS, 2 * 1792))
    store('buffer_store_dwordx2 %s, v%d, %s, s%d offen' % (vr(s1 + 2, 2), t + 4, srd(S_WS), sPS), sPC)
    a('s_mov_b64 exec, -1')


def publish_flags(lsh, between=()):
    a('v_lshlrev_b32 v241, %d, v0' % lsh)
    a('v_add_u32 v241, s%d, v241' % sPF)
    set_flags(241, 2, sPFC, V_T, between)


def run_tiles(tile_items, extras):
    for tile in range(4):
        items = tile_items(tile)
        ex = list(extras.get(tile, []))
        free = [k for k, it in enumerate(items) if k >= 3 and not it[2]]
        per = -(-len(ex) // max(1, len(free))) if ex else 0
        for k, (pre, m, post) in enumerate(items):
            for x in pre:
                x()
            a(m)
            if post:
                post()
            elif k >= 3:
                for _ in range(per):
                    if ex:
                        x = ex.pop(0)
                        if callable(x):
                            x()
                        else:
                            a(x)
        assert not ex


pair_base(sA, L.FA)
a('s_lshl_b32 s%d, s%d, 8' % (sB, sG))
a('s_add_u32 s%d, s%d, s%d' % (sA, sA, sB))
a('v_lshl_add_u32 v240, v0, 2, s%d' % sA)
a('s_lshl_b32 s%d, s%d, 2' % (sB, sW))
a('s_lshl_b32 s%d, 0x000f000f, s%d' % (sMK, sB))
a('s_mov_b32 s%d, s%d' % (sMK + 1, sMK))
red_addrs()
publish_setup(L.XB, L.SB, L.FB, True, 4)
a('s_mov_b32 s%d, s%d' % (sPC, sFD))
a('s_mov_b32 s%d, s%d' % (sPFC, sFAST))
pair_base(sA, L.O)
a('s_lshl_b32 s%d, s%d, 6' % (sB, sG))
a('s_lshl_b32 s%d, s%d, 2' % (sCc, sW))
a('s_add_u32 s%d, s%d, s%d' % (sB, sB, sCc))
a('s_lshl_b32 s%d, s%d, 10' % (sB, sB))
a('s_add_u32 s20, s%d, s%d' % (sA, sB))
for t in range(1, 4):
    a('s_add_u32 s%d, s20, %d' % (20 + t, 16384 * t))
poll(240)
stamp()


def b_oload(tile, i):
    return 'buffer_load_dwordx4 %s, v1, %s, s%d offen offset:%d sc1' % (vr(BO + (tile * 4 + i) * 4), srd(S_WS), 20 + tile, 1024 * i)


om = {}
for tile in range(2):
    for i in range(4):
        a(b_oload(tile, i))
        om[(tile, i)] = a.vm_mark()


def b_tile(tile):
    items = []
    for i in range(4):
        for t in range(4):
            r = BACC + (tile * 4 + t) * 4
            pre = [(lambda tl=tile, ii=i: a.wait_vm(om[(tl, ii)]))] if t == 0 else []
            post = None
            if tile < 2 and t == 1:
                def post(tl=tile + 2, ii=i):
                    a(b_oload(tl, ii))
                    om[(tl, ii)] = a.vm_mark()
            if tile >= 2 and t == 1:
                def post(idx=4 * (tile - 2) + i):
                    a(c_wload(idx))
            items.append((pre, '%s %s, %s, %s, %s' % (MFMA, vr(r), vr(BW + (i * 4 + t) * 4), vr(BO + (tile * 4 + i) * 4),
                                                      '0' if i == 0 else vr(r)), post))
    return items


BT0, BT1, BPK = 226, 2, 18
run_tiles(b_tile, {1: red_writes(BACC, 0), 2: red_writes(BACC + 16, 1), 3: red_writes(BACC + 32, 2)})
stamp2()
for x in red_writes(BACC + 48, 3):
    a(x)
for x in finish_pre(0, False, BT0) + finish_pre(1, False, BT1):
    a(x)
a('s_waitcnt lgkmcnt(0)')
a('s_barrier')
stamp2()
BRD1 = 162
for x in red_reads(0, BRD) + red_reads(1, BRD1):
    a(x)
a('s_waitcnt lgkmcnt(8)')
for x in finish_sum(0, BRD, BT0, BPK, True):
    a(x)
publish_data(0, BPK)
a('s_waitcnt lgkmcnt(0)')
for x in finish_sum(1, BRD1, BT1, BPK + 4, True):
    a(x)
publish_data(1, BPK + 4)
stamp2()
publish_stats([BT0, BT1], 36, 32)
publish_flags(7, [c_wload(i) for i in range(8, 16)])
stamp()

for i in range(16, 22):
    a(c_wload(i))
CA = [2, 10]
XF, NXF = 18, 8
GTMP, GH = 50, 58
CCS, CB1, CB1R = 178, 186, 194
CSTR = 198
CMR = 214
VGA = 218
a('v_lshrrev_b32 v%d, 4, v0' % V_G)
a('v_and_b32 v%d, 15, v0' % V_TOK)
a('s_lshl_b32 s%d, s%d, 3' % (sA, sCI))
a('s_lshl_b32 s%d, s%d, 1' % (sB, sW))
a('s_add_u32 s%d, s%d, s%d' % (sA, sA, sB))
a('s_lshl_b32 s%d, s%d, 6' % (sB, sA))
a('s_add_u32 s%d, s%d, %d' % (sB, sB, L.CSC))
a('v_lshlrev_b32 v248, 4, v%d' % V_G)
for k in range(2):
    a('buffer_load_dwordx4 %s, v248, %s, s%d offen offset:%d sc1' % (vr(CCS + 4 * k), srd(S_WS), sB, 64 * k))
a('s_lshl_b32 s%d, s%d, 5' % (sB, sA))
a('v_lshlrev_b32 v248, 3, v%d' % V_G)
for k in range(2):
    a('buffer_load_dwordx2 %s, v248, %s, s%d offen offset:%d' % (vr(CB1R + 2 * k, 2), srd(S_B1), sB, 32 * k))
pair_base(sA, L.FB)
a('s_lshl_b32 s%d, s%d, 9' % (sB, sS))
a('s_add_u32 s%d, s%d, s%d' % (sA, sA, sB))
a('v_lshl_add_u32 v240, v0, 2, s%d' % sA)
a('s_mov_b32 s%d, 0x3fff3fff' % sMK)
a('s_mov_b32 s%d, 0x3fff3fff' % (sMK + 1))
pair_base(20, L.XB)
a('s_mul_i32 s%d, s%d, %d' % (sB, sS, 8 * 14336))
a('s_add_u32 s20, s20, s%d' % sB)
a('s_lshl_b32 s%d, s%d, 12' % (sB, sW))
a('s_add_u32 s20, s20, s%d' % sB)
a('s_add_u32 s21, s%d, %d' % (sB, L.L_R2))
pair_base(22, L.SB)
a('s_lshl_b32 s%d, s%d, 3' % (sB, sS))
a('s_add_u32 s%d, s%d, s%d' % (sB, sB, sW))
a('s_mul_i32 s%d, s%d, 1792' % (sB, sB))
a('s_add_u32 s22, s22, s%d' % sB)
a('s_add_u32 s23, s22, %d' % (4 * 1792))
pair_base(32, L.H)
a('s_mul_i32 s%d, s%d, %d' % (sB, sS, 8 * 56 * 1024))
a('s_add_u32 s32, s32, s%d' % sB)
a('s_lshl_b32 s%d, s%d, 2' % (sB, sCI))
a('s_add_u32 s%d, s%d, s%d' % (sB, sB, sW))
a('s_lshl_b32 s%d, s%d, 10' % (sCc, sB))
a('s_add_u32 s32, s32, s%d' % sCc)
pair_base(33, L.FC)
a('s_lshl_b32 s%d, s%d, 11' % (sCc, sS))
a('s_add_u32 s33, s33, s%d' % sCc)
a('s_lshl_b32 s%d, s%d, 2' % (sB, sB))
a('s_add_u32 s33, s33, s%d' % sB)
a('v_mov_b32 v241, s33')
a('v_mov_b32 v242, 0x%x' % INV)
a('v_cmp_eq_u32 vcc, 0, v0')
a('v_cndmask_b32 v241, v242, v241, vcc')
a('v_lshlrev_b32 v238, 3, v%d' % V_TOK)
a('v_lshl_add_u32 v238, v%d, 7, v238' % V_G)
a('v_mov_b32 v242, 0x%x' % INV)
a('v_cmp_lt_u32 vcc, 1, v%d' % V_G)
a('v_cndmask_b32 v239, 0, v242, vcc')
a('v_or_b32 v239, v239, v238')
a('v_add_u32 v252, %d, v1' % L.L_R2)
a('v_lshlrev_b32 v246, 3, v%d' % V_TOK)
a('v_add_u32 v246, %d, v246' % L.L_STC)
GA = 2.0 * 0.7978845608028654 * 1.4426950408889634
GB = GA * 0.044715
a('v_mov_b32 v%d, %s' % (VGA, f2h(-GA)))
a('v_mov_b32 v%d, %s' % (VGA + 1, f2h(-GA)))
a('s_mov_b32 s34, %s' % f2h(-GB))
a('s_mov_b32 s35, %s' % f2h(-GB))
wd_bases_hi = True
poll(240, 256)
stamp()


def c_dma_setup(t):
    return ['s_add_u32 s36, s20, %d' % (t * 14336), 's_add_u32 m0, s21, %d' % ((t & 3) * 16384)]


def c_dma(t, i):
    return 'buffer_load_dwordx4 v1, %s, s36 offen offset:%d sc1 lds' % (srd(S_WS), 1024 * i)


dm = {}
for x in c_dma_setup(0) + [c_dma(0, i) for i in range(4)]:
    a(x)
dm[0] = a.vm_mark()
wlate = {}
for i in range(22, 28):
    a(c_wload(i))
    wlate[i >> 1] = a.vm_mark()
for tt in range(2):
    for i in range(4):
        a('buffer_load_dwordx2 %s, v%d, %s, s%d offen offset:%d sc1' %
          (vr(CSTR + 8 * tt + 2 * i, 2), 239 if i == 3 else 238, srd(S_WS), 22 + tt, 512 * i))
cst_mark = a.vm_mark()
for x in c_dma_setup(1) + [c_dma(1, i) for i in range(4)]:
    a(x)
dm[1] = a.vm_mark()
for k in range(2):
    for p in range(2):
        a('v_lshlrev_b32 v%d, 16, v%d' % (CB1 + 4 * k + 2 * p, CB1R + 2 * k + p))
        a('v_and_b32 v%d, 0xffff0000, v%d' % (CB1 + 4 * k + 2 * p + 1, CB1R + 2 * k + p))
wd_bases()
a.wait_vm(dm[0])
a('s_barrier')
stamp()


def c_xread(t, u):
    n = t * 14 + u
    return 'ds_read_b128 %s, v252 offset:%d' % (vr(XF + 4 * (n % NXF)), (t & 3) * 16384 + u * 1024)


def gelu_pre(t):
    z, m = CA[t & 1], CMR + 2 * (t & 1)
    P = range(0, 8, 2)
    o = ['v_pk_fma_f32 %s, %s, %s, %s op_sel_hi:[1,0,1] neg_lo:[0,1,0] neg_hi:[0,1,0]' % (vr(z + e, 2), vr(CCS + e, 2), vr(m, 2), vr(z + e, 2)) for e in P]
    o += ['v_pk_fma_f32 %s, %s, %s, %s op_sel:[0,1,0] op_sel_hi:[1,1,1]' % (vr(z + e, 2), vr(z + e, 2), vr(m, 2), vr(CB1 + e, 2)) for e in P]
    o += ['v_pk_mul_f32 %s, %s, %s' % (vr(GTMP + e, 2), vr(z + e, 2), vr(z + e, 2)) for e in P]
    o += ['v_pk_fma_f32 %s, %s, s[34:35], %s' % (vr(GTMP + e, 2), vr(GTMP + e, 2), vr(VGA, 2)) for e in P]
    o += ['v_pk_mul_f32 %s, %s, %s' % (vr(GTMP + e, 2), vr(GTMP + e, 2), vr(z + e, 2)) for e in P]
    return o


def gelu_mid():
    o = {}
    for e in range(8):
        o.setdefault(2 * e, []).append('v_exp_f32 v%d, v%d' % (GTMP + e, GTMP + e))
        o.setdefault(2 * e + 3, []).append('v_add_f32 v%d, 1.0, v%d' % (GTMP + e, GTMP + e))
    for e in range(6):
        o.setdefault(16 + 2 * e, []).append('v_rcp_f32 v%d, v%d' % (GTMP + e, GTMP + e))
    o.setdefault(25, []).append('v_rcp_f32 v%d, v%d' % (GTMP + 6, GTMP + 6))
    o.setdefault(27, []).append('v_rcp_f32 v%d, v%d' % (GTMP + 7, GTMP + 7))
    return o


def gelu_post(t):
    z, h = CA[t & 1], GH + 4 * (t & 1)
    o = ['v_pk_mul_f32 %s, %s, %s' % (vr(GTMP + e, 2), vr(GTMP + e, 2), vr(z + e, 2)) for e in range(0, 8, 2)]
    o += ['v_cvt_pk_bf16_f32 v%d, v%d, v%d' % (h + p, GTMP + 2 * p, GTMP + 2 * p + 1) for p in range(4)]
    return o


def gelu_packed(t):
    z, m, h = CA[t & 1], CMR + 2 * (t & 1), GH + 4 * (t & 1)
    P = range(0, 8, 2)
    for e in P:
        a('v_pk_fma_f32 %s, %s, %s, %s op_sel_hi:[1,0,1] neg_lo:[0,1,0] neg_hi:[0,1,0]' % (vr(z + e, 2), vr(CCS + e, 2), vr(m, 2), vr(z + e, 2)))
    for e in P:
        a('v_pk_fma_f32 %s, %s, %s, %s op_sel:[0,1,0] op_sel_hi:[1,1,1]' % (vr(z + e, 2), vr(z + e, 2), vr(m, 2), vr(CB1 + e, 2)))
    for e in P:
        a('v_pk_mul_f32 %s, %s, %s' % (vr(GTMP + e, 2), vr(z + e, 2), vr(z + e, 2)))
    for e in P:
        a('v_pk_fma_f32 %s, %s, s[34:35], %s' % (vr(GTMP + e, 2), vr(GTMP + e, 2), vr(VGA, 2)))
    for e in P:
        a('v_pk_mul_f32 %s, %s, %s' % (vr(GTMP + e, 2), vr(GTMP + e, 2), vr(z + e, 2)))
    for e in range(8):
        a('v_exp_f32 v%d, v%d' % (GTMP + e, GTMP + e))
    for e in P:
        a('v_pk_add_f32 %s, %s, 1.0 op_sel_hi:[1,0]' % (vr(GTMP + e, 2), vr(GTMP + e, 2)))
    for e in range(8):
        a('v_rcp_f32 v%d, v%d' % (GTMP + e, GTMP + e))
    for e in P:
        a('v_pk_mul_f32 %s, %s, %s' % (vr(GTMP + e, 2), vr(GTMP + e, 2), vr(z + e, 2)))
    for p in range(4):
        a('v_cvt_pk_bf16_f32 v%d, v%d, v%d' % (h + p, GTMP + 2 * p, GTMP + 2 * p + 1))


hmk, fmk = {}, {}


def h_store(t):
    def f():
        a('s_add_u32 s36, s32, %d' % (t * 56 * 1024))
        store('buffer_store_dwordx4 %s, v1, %s, s36 offen' % (vr(GH + 4 * (t & 1)), srd(S_WS)), sFH)
        hmk[t] = a.vm_mark()
    return f


def h_flag(t):
    def f():
        a.wait_vm(hmk[t])
        store('buffer_store_dword v%d, v241, %s, 0 offen offset:%d' % (V_T, srd(S_WS), 256 * t), sFAST)
    return f


def wd_block(fis, wave):
    def f():
        skip = newlab('L_wd')
        a('s_cmp_eq_u32 s24, %d' % wave)
        a('s_cbranch_scc0 %s' % skip)
        for fi in fis:
            a(wd_load(fi))
            a.vm_issued -= 1
        a.label(skip)
    return f


cst_fill = []
for tt in range(2):
    r = CSTR + 8 * tt
    for c_ in range(2):
        cst_fill += ['v_add_f32 v%d, v%d, v%d' % (r + c_, r + c_, r + 2 + c_),
                     'v_add_f32 v%d, v%d, v%d' % (r + 4 + c_, r + 4 + c_, r + 6 + c_),
                     'v_add_f32 v%d, v%d, v%d' % (r + c_, r + c_, r + 4 + c_)]
    cst_fill += xg_reduce(r, r + 2) + xg_reduce(r + 1, r + 3) + stats_finish(r, r + 1, r + 2, True)
a('s_lshl_b32 s%d, s%d, 7' % (sA, sW))
a('v_add_u32 v247, s%d, v246' % sA)
cst_fill += ['ds_write_b64 v247, %s' % vr(CSTR, 2), 'ds_write_b64 v247, %s offset:512' % vr(CSTR + 8, 2)]
LOOKX = 6


def emit_c_loop(wd_list):
    for u in range(LOOKX):
        a(c_xread(0, u))
    for t in range(8):
        nonvec = {}

        def put(k, x):
            nonvec.setdefault(k, []).append(x)
        for u in range(14):
            n = t * 14 + u
            m = n + LOOKX
            if m < 8 * 14:
                put(2 * u + 1, c_xread(m // 14, m % 14))
            if u % 2 == 1 and n + 1 < 8 * 14:
                put(2 * u + 1, 's_waitcnt lgkmcnt(%d)' % min(LOOKX - 2, 8 * 14 - 1 - (n + 2)))
        if t < 7:
            nonvec[14] = [('bar', t + 1)] + nonvec.get(14, [])
        if t + 2 < 8:
            su = c_dma_setup(t + 2)
            put(0, su[0])
            put(0, su[1])
            for i in range(4):
                put(2 + 2 * i, ('dma', t + 2, i))
        if t >= 3:
            put(20, ('call', h_flag(t - 3)))
        if t < 7:
            for k in (10, 12, 16, 18, 22, 24, 26):
                if wd_list:
                    put(k, wd_load(wd_list.pop(0)))
        if t > 0:
            put(17, 'ds_read_b64 %s, v246 offset:%d' % (vr(CMR + 2 * (t & 1), 2), 128 * t))
        valu = gelu_mid() if t >= 1 else {}
        if t >= 2:
            for x in gelu_post(t - 2):
                a(x)
            h_store(t - 2)()
        if t >= 1:
            for x in gelu_pre(t - 1):
                a(x)
        fill = list(cst_fill) if t == 0 else []
        first = 8
        fi = 0
        for k in range(28):
            u, kk = k >> 1, k & 1
            n = t * 14 + u
            if t == 0 and k == 0:
                a('s_waitcnt lgkmcnt(%d)' % (LOOKX - 2))
            if t == 0 and kk == 0 and u in wlate:
                a.wait_vm(wlate[u])
            if t == 0 and k == first:
                a.wait_vm(cst_mark)
            r = CA[t & 1] + 4 * kk
            a('%s %s, %s, %s, %s' % (MFMA, vr(r), vr(CWW + 4 * (2 * u + kk)), vr(XF + 4 * (n % NXF)), '0' if u == 0 else vr(r)))
            for it in nonvec.get(k, []):
                if isinstance(it, str):
                    a(it)
                elif it[0] == 'bar':
                    a.wait_vm(dm[it[1]])
                    a('s_barrier')
                elif it[0] == 'dma':
                    a(c_dma(it[1], it[2]))
                    dm[it[1]] = a.vm_mark()
                elif it[0] == 'call':
                    it[1]()
            for x in valu.get(k, []):
                a(x)
            if fill and k >= first:
                want = -(-(len(fill)) * (k - first + 1) // (28 - first))
                while fi < want:
                    a(fill[fi])
                    fi += 1
        assert fi == len(fill)
        if t == 0:
            a('s_waitcnt lgkmcnt(0)')
            a('s_barrier')
            a('ds_read_b64 %s, v246 offset:0' % vr(CMR, 2))
            a('s_waitcnt lgkmcnt(0)')
    assert not wd_list


n_before = a.vm_issued
dm_init = dict(dm)
a('s_cmp_eq_u32 s%d, 0' % sPAIR)
a('s_cbranch_scc0 L_c_loop1')
emit_c_loop(list(range(*WD_CH[1])))
a('s_branch L_c_done')
a.label('L_c_loop1')
extra = a.vm_issued - n_before
a.vm_issued = n_before
dm.clear()
dm.update(dm_init)
emit_c_loop([])
a.label('L_c_done')
stamp()
pair_base(sA, L.FC)
a('s_lshl_b32 s%d, s%d, 10' % (sB, sG))
a('s_add_u32 s%d, s%d, s%d' % (sA, sA, sB))
a('s_mul_i32 s%d, s%d, 56' % (sB, sW))
a('s_add_u32 s%d, s%d, s%d' % (sA, sA, sB))
a('v_lshl_add_u32 v243, v0, 2, s%d' % sA)
a('s_mov_b32 s%d, 0x3fff' % sMK2)
a('s_mov_b32 s%d, 0' % (sMK2 + 1))
d0_mark = early_issue(244, 243)
for x in gelu_post(6):
    a(x)
h_store(6)()
a('s_waitcnt lgkmcnt(0)')
gelu_packed(7)
h_flag(5)()
h_store(7)()
stamp()

DH, DACC, DRD, DTMP = 2, 114, 178, 210
DRING, DLOOK = 16, 10
red_addrs()
publish_setup(L.XA[1], L.SA[1], L.FX[1], False, 5)
a('s_and_b32 s%d, s%d, 1' % (sA, sG))
a('s_lshr_b32 s%d, s%d, 1' % (sB, sW))
a('s_and_b32 s%d, s%d, s%d' % (sA, sA, sB))
a('s_xor_b32 s%d, s%d, 1' % (sA, sA))
a('s_and_b32 s%d, s%d, s%d' % (sPC, sFD, sA))
a('s_and_b32 s%d, s%d, s%d' % (sPFC, sFAST, sA))
pair_base(sA, L.H)
a('s_mul_i32 s%d, s%d, %d' % (sB, sG, 4 * 56 * 1024))
a('s_add_u32 s%d, s%d, s%d' % (sA, sA, sB))
a('s_mul_i32 s%d, s%d, %d' % (sB, sW, 14 * 1024))
a('s_add_u32 s%d, s%d, s%d' % (sO, sA, sB))
quarter_offsets(4, 56 * 1024)
a('s_cmp_eq_u32 s%d, 0' % sPAIR)
a('s_cbranch_scc1 L_d_nout')
owner_index()
a('s_mul_i32 s%d, s%d, 14336' % (sPX, sB))
a('s_lshl_b32 s%d, s%d, 6' % (sA, sA))
a('s_add_u32 s%d, s%d, s%d' % (sPX, sPX, sA))
a('s_add_u32 s%d, s%d, %d' % (sPX2, sPX, 2 * 14336))
a.label('L_d_nout')
a('v_and_b32 v%d, 15, v0' % V_TOK)
a('v_lshrrev_b32 v%d, 4, v0' % V_G)
a('v_mul_u32_u24 v242, 896, v%d' % V_TOK)
a('v_lshl_add_u32 v242, v%d, 3, v242' % V_G)
early_check(244, 243, d0_mark)
stamp()


def d_hload(q):
    tile, kk = divmod(q, 14)
    return ('buffer_load_dwordx4 %s, v1, %s, s%d offen offset:%d sc1' %
            (vr(DH + (q % DRING) * 4), srd(S_WS), sO + 4 * tile + (kk >> 2), 1024 * (kk & 3)))


hm = {}
dmk = {}
for q in range(DLOOK):
    a(d_hload(q))
    hm[q] = a.vm_mark()
    if q == 6:
        dmk[1] = early_issue(244, 243, 256)
a('s_barrier')


def d_tile(tile):
    items = []
    for kk in range(14):
        q = tile * 14 + kk
        for t in range(4):
            r = DACC + (tile * 4 + t) * 4
            pre = [(lambda qq=q: a.wait_vm(hm[qq]))] if t == 0 else []
            if t == 0 and q in (3, 9):
                pre.append(h_flag({3: 6, 9: 7}[q]))
            post = None
            if t == 0 and q + DLOOK < 56:
                def post(qq=q + DLOOK):
                    if qq % 14 == 0:
                        early_check(244, 243, dmk[qq // 14], 256 * (qq // 14))
                    a(d_hload(qq))
                    hm[qq] = a.vm_mark()
                    if qq % 14 == 6 and qq // 14 < 3:
                        dmk[qq // 14 + 1] = early_issue(244, 243, 256 * (qq // 14 + 1))
            items.append((pre, '%s %s, %s, %s, %s' % (MFMA, vr(r), ar((kk * 4 + t) * 4), vr(DH + (q % DRING) * 4),
                                                      '0' if kk == 0 else vr(r)), post))
    return items


def d_out_store(st, pk):
    a('buffer_store_dwordx2 %s, v242, %s, s%d offen %s' % (vr(pk, 2), srd(S_OUT), sPX if st == 0 else sPX2, OUTSC))
    a('buffer_store_dwordx2 %s, v242, %s, s%d offen offset:32 %s' % (vr(pk + 2, 2), srd(S_OUT), sPX if st == 0 else sPX2, OUTSC))


def d_store(st, pk):
    fin, done = newlab('L_dfin'), newlab('L_ddone')
    a('s_cmp_eq_u32 s%d, 0' % sPAIR)
    a('s_cbranch_scc0 %s' % fin)
    publish_data(st, pk)
    a('s_branch %s' % done)
    a.label(fin)
    n = a.vm_issued
    d_out_store(st, pk)
    a.vm_issued = n
    a.label(done)


DT0, DT1, DPK = 210, 226, 66
stage0 = [lambda: (a('s_waitcnt lgkmcnt(0)'), a('s_barrier'))] + red_reads(0, DRD) + finish_pre(0, True, DT0)
stage0 += [lambda: a('s_waitcnt lgkmcnt(0)')] + finish_sum(0, DRD, DT0, DPK, False) + [lambda: d_store(0, DPK)]
run_tiles(d_tile, {1: red_writes(DACC, 0), 2: red_writes(DACC + 16, 1), 3: red_writes(DACC + 32, 2) + stage0})
stamp2()
for x in red_writes(DACC + 48, 3):
    a(x)
for x in finish_pre(1, True, DT1):
    a(x)
a('s_waitcnt lgkmcnt(0)')
a('s_barrier')
stamp2()
for x in red_reads(1, DRD):
    a(x)
a('s_waitcnt lgkmcnt(0)')
for x in finish_sum(1, DRD, DT1, DPK + 4, True):
    a(x)
d_store(1, DPK + 4)
stamp()
a('s_cmp_eq_u32 s%d, 0' % sPAIR)
a('s_cbranch_scc0 L_next_pair')
publish_flags(8)
publish_stats([DT0, DT1], 88, 84)
a('s_waitcnt vmcnt(0)')
stats_flags(L.FSA - L.FX[1], 8)
a.label('L_next_pair')
stamp()
a('s_add_u32 s%d, s%d, 1' % (sPAIR, sPAIR))
a('s_cmp_lt_u32 s%d, 2' % sPAIR)
a('s_cbranch_scc1 L_pair')

a('s_cmp_eq_u32 s2, 0')
a('s_cbranch_scc0 L_noepoch')
a('s_cmp_eq_u32 s%d, 0' % sW)
a('s_cbranch_scc0 L_noepoch')
a('buffer_load_dword v2, off, %s, 0 sc1' % srd(S_WS))
a('s_waitcnt vmcnt(0)')
a('v_add_u32 v2, 1, v2')
a('s_mov_b64 exec, 1')
a('buffer_store_dword v2, off, %s, 0 sc1' % srd(S_WS))
a('s_mov_b64 exec, -1')
a.label('L_noepoch')
if PAD:
    a.label('L_padspin')
    a('s_memrealtime s[34:35]')
    a('s_waitcnt lgkmcnt(0)')
    a('s_sub_u32 s34, s34, s0')
    a('s_cmp_lt_u32 s34, %d' % PAD[0])
    a('s_cbranch_scc1 L_padspin')
if DBG:
    a('s_memtime s[32:33]')
    a('s_memrealtime s[34:35]')
    a('s_waitcnt lgkmcnt(0)')
    a('s_sub_u32 s32, s32, s26')
    a('s_sub_u32 s34, s34, s0')
    build_srd(S_TMP, P_DBG, 256)
    a('v_mov_b32 v2, s32')
    a('v_mov_b32 v3, s34')
    a('v_mov_b32 v4, s%d' % sFAST)
    a('v_mov_b32 v5, s%d' % sXCC)
    a('s_lshr_b32 s%d, s2, 6' % sA)
    a('s_lshl_b32 s%d, s%d, 4' % (sA, sA))
    a('s_and_b32 s%d, s2, 63' % sB)
    a('s_or_b32 s%d, s%d, s%d' % (sB, sB, sW))
    a('s_cmp_eq_u32 s%d, 0' % sB)
    a('s_cselect_b32 s%d, s%d, 0x%x' % (sA, sA, INV))
    a('v_mov_b32 v6, s%d' % sA)
    a('s_mov_b64 exec, 1')
    a('buffer_store_dwordx4 v[2:5], v6, %s, 0 offen' % srd(S_TMP))
    a('s_mov_b64 exec, -1')
if DIAG:
    stamp()
    a('s_mov_b32 s%d, 63' % sSTI)
    a('s_lshl_b64 exec, 1, s%d' % sSTI)
    a('v_mov_b32 v%d, s%d' % (V_STAMP, sERR))
    a('s_mov_b32 s%d, 62' % sSTI)
    a('s_lshl_b64 exec, 1, s%d' % sSTI)
    a('v_mov_b32 v%d, s%d' % (V_STAMP, sFAST))
    a('s_mov_b64 exec, -1')
    a('s_lshl_b32 s%d, s2, 2' % sA)
    a('s_add_u32 s%d, s%d, s%d' % (sA, sA, sW))
    a('s_lshl_b32 s%d, s%d, 8' % (sA, sA))
    a('v_lshlrev_b32 v2, 2, v0')
    a('s_add_u32 s%d, s%d, %d' % (sA, sA, L.WS_USED))
    a('s_mov_b32 s%d, 0x%x' % (S_WS + 2, L.WS_USED + 256 * 1024))
    a('buffer_store_dword v%d, v2, %s, s%d offen' % (V_STAMP, srd(S_WS), sA))
a.label('L_end')
a('s_endpgm')

a.finalize()
body = a.text()

import os
hdr = open(os.path.join(os.path.dirname(os.path.abspath(__file__)), 'header.txt')).read()
out = hdr + '; @launch grid=(256,1,1) block=(256,1,1) lds=%d\n' % L.LDS_BYTES
out += '.amdgcn_target "amdgcn-amd-amdhsa--gfx950"\n.text\n.globl %s_kernel\n.p2align 8\n.type %s_kernel,@function\n%s_kernel:\n' % (NAME, NAME, NAME)
out += body
out += '''.section .rodata,"a"
.p2align 6
.amdhsa_kernel %s_kernel
  .amdhsa_next_free_vgpr 512
  .amdhsa_next_free_sgpr 102
  .amdhsa_accum_offset 256
  .amdhsa_group_segment_fixed_size 0
  .amdhsa_kernarg_size 88
  .amdhsa_user_sgpr_count 2
  .amdhsa_user_sgpr_kernarg_segment_ptr 1
  .amdhsa_system_sgpr_workgroup_id_x 1
.end_amdhsa_kernel
''' % NAME
sys.stdout.write(out)
```

```python
import struct
import sys
from asmlib import Asm
import layout as L

NAME = 'interleave_layers__sliding_local_dilated__mixer_channel_mlp__prompt'
DIAG = '--diag' in sys.argv
FASTMODE = ([x[7:] for x in sys.argv if x.startswith('--fast=')] + ['flags'])[0]
NOFAST = FASTMODE == 'none'
PAD = [int(x[6:]) for x in sys.argv if x.startswith('--pad=')]
DBG = '--dbg' in sys.argv or bool(PAD)
SPIN_LIMIT = 200000
OUTSC = ([x[8:] for x in sys.argv if x.startswith('--outsc=')] + [''])[0].replace('_', ' ')
SLEEP = int(([x[8:] for x in sys.argv if x.startswith('--sleep=')] + ['0'])[0])
INV = 0x80000000

a = Asm()

sXCC = 3
S_WS, S_TMP, S_B1, S_OUT = 4, 8, 12, 16
P_X, P_WQKV, P_WO, P_BX, P_W1, P_B1, P_W2, P_B2, P_OUT, P_DBG, P_WSP = 20, 22, 24, 26, 28, 30, 32, 34, 36, 38, 40
sS, sC, sG, sJ, sW, sT, sPAIR, sSPIN = 42, 43, 44, 45, 46, 47, 48, 49
sM1 = 50
sM2 = 58
sM0 = 66
sO = 74
sA, sB, sCc, sD = 90, 91, 92, 93
sMK = 94
sTS = 96
sGT = 98
sERR = 99
sSTI = 100
sFAST = 101
sFD = 27
sPFC = 26
sFH = 25


def srd(n):
    return 's[%d:%d]' % (n, n + 3)


def vr(n, k=4):
    return 'v[%d:%d]' % (n, n + k - 1)


def ar(n, k=4):
    return 'a[%d:%d]' % (n, n + k - 1)


def sp(n):
    return 's[%d:%d]' % (n, n + 1)


def f2h(x):
    return '0x%08x' % struct.unpack('<I', struct.pack('<f', x))[0]


V_T, V_STAMP = 254, 255
V_TOK, V_G = 250, 251
MFMA = 'v_mfma_f32_16x16x32_bf16'


DIAG2 = '--diag2' in sys.argv
PREF = '--pref' in sys.argv
DBGST = '--dbgst' in sys.argv


def stamp2():
    if DIAG2:
        stamp()


def stamp():
    if not DIAG:
        return
    a('s_memtime %s' % sp(sTS))
    a('s_waitcnt lgkmcnt(0)')
    a('s_lshl_b64 exec, 1, s%d' % sSTI)
    a('v_mov_b32 v%d, s%d' % (V_STAMP, sTS))
    a('s_mov_b64 exec, -1')
    a('s_add_u32 s%d, s%d, 1' % (sSTI, sSTI))


lab_no = [0]


def newlab(p):
    lab_no[0] += 1
    return '%s_%d' % (p, lab_no[0])


def build_srd(dst, ptr, nbytes):
    a('s_mov_b32 s%d, s%d' % (dst, ptr))
    a('s_and_b32 s%d, s%d, 0xffff' % (dst + 1, ptr + 1))
    a('s_mov_b32 s%d, 0x%x' % (dst + 2, nbytes))
    a('s_mov_b32 s%d, 0x20000' % (dst + 3))


def poll(voff, off2=None):
    lab, done = newlab('L_poll'), newlab('L_polldone')
    a('s_mov_b64 exec, %s' % sp(sMK))
    a('s_mov_b32 s%d, 0' % sSPIN)
    a.label(lab)
    a('buffer_load_dword v253, v%d, %s, 0 offen sc1' % (voff, srd(S_WS)))
    if off2 is not None:
        a('buffer_load_dword v245, v%d, %s, 0 offen offset:%d sc1' % (voff, srd(S_WS), off2))
    a('s_waitcnt vmcnt(0)')
    if off2 is not None:
        a('v_xor_b32 v245, s%d, v245' % sT)
        a('v_xor_b32 v253, s%d, v253' % sT)
        a('v_or_b32 v253, v253, v245')
        a('v_cmp_ne_u32 vcc, 0, v253')
    else:
        a('v_cmp_ne_u32 vcc, s%d, v253' % sT)
    a('s_nop 4')
    a('s_cbranch_vccz %s' % done)
    if SLEEP:
        a('s_sleep %d' % SLEEP)
    a('s_add_u32 s%d, s%d, 1' % (sSPIN, sSPIN))
    a('s_cmp_lt_u32 s%d, %d' % (sSPIN, SPIN_LIMIT))
    a('s_cbranch_scc1 %s' % lab)
    a('s_add_u32 s%d, s%d, 1' % (sERR, sERR))
    a.label(done)
    a('s_mov_b64 exec, -1')


sMK2 = 30


def early_issue(dst, voff, off=0):
    a('s_mov_b64 exec, %s' % sp(sMK2))
    a('buffer_load_dword v%d, v%d, %s, 0 offen offset:%d sc1' % (dst, voff, srd(S_WS), off))
    a('s_mov_b64 exec, -1')
    return a.vm_mark()


def early_check(dst, voff, mark, off=0):
    ok = newlab('L_early')
    a.wait_vm(mark)
    a('s_mov_b64 exec, %s' % sp(sMK2))
    a('v_cmp_ne_u32 vcc, s%d, v%d' % (sT, dst))
    a('s_mov_b64 exec, -1')
    a('s_nop 2')
    a('s_cbranch_vccz %s' % ok)
    a('s_mov_b64 %s, %s' % (sp(sMK), sp(sMK2)))
    n = a.vm_issued
    if off:
        a('v_add_u32 v253, %d, v%d' % (off, voff))
        a('v_mov_b32 v%d, v253' % dst)
        poll(dst)
    else:
        poll(voff)
    a.vm_issued = n
    a.label(ok)


def store(fmt, cond=None):
    if cond is None or NOFAST or (FASTMODE == 'flags' and cond in (sFD, sFH, sPC)):
        a(fmt + ' sc1')
        return
    slow, done = newlab('L_slow'), newlab('L_st')
    a('s_cmp_eq_u32 s%d, 0' % cond)
    a('s_cbranch_scc1 %s' % slow)
    a(fmt)
    a('s_branch %s' % done)
    a.label(slow)
    a(fmt + ' sc1')
    a.vm_issued -= 1
    a.label(done)


def set_flags(voff, nlanes, cond=None, val=V_T, between=()):
    mark = a.vm_mark()
    for x in between:
        a(x)
    a.wait_vm(mark)
    a('s_mov_b64 exec, %d' % ((1 << nlanes) - 1))
    store('buffer_store_dword v%d, v%d, %s, 0 offen' % (val, voff, srd(S_WS)), cond)
    a('s_mov_b64 exec, -1')


def xg_reduce(x, t, op='v_add_f32'):
    return ['v_mov_b32 v%d, v%d' % (t, x),
            'v_permlane32_swap_b32 v%d, v%d' % (x, t),
            '%s v%d, v%d, v%d' % (op, x, x, t),
            'v_mov_b32 v%d, v%d' % (t, x),
            'v_permlane16_swap_b32 v%d, v%d' % (x, t),
            '%s v%d, v%d, v%d' % (op, x, x, t)]


EPS = 1e-5


def stats_finish(s1, s2, t, double_ln):
    o = ['v_mul_f32 v%d, %s, v%d' % (s1, f2h(1.0 / 448), s1),
         'v_mul_f32 v%d, %s, v%d' % (s2, f2h(1.0 / 448), s2),
         'v_fma_f32 v%d, -v%d, v%d, v%d' % (s2, s1, s1, s2),
         'v_max_f32 v%d, 0, v%d' % (s2, s2),
         'v_add_f32 v%d, %s, v%d' % (t, f2h(EPS), s2),
         'v_rsq_f32 v%d, v%d' % (t, t)]
    if not double_ln:
        o += ['v_mov_b32 v%d, v%d' % (s2, t)]
    else:
        o += ['v_mul_f32 v%d, v%d, v%d' % (s2, s2, t),
              'v_fmaak_f32 v%d, v%d, v%d, %s' % (s2, s2, t, f2h(EPS)),
              'v_rsq_f32 v%d, v%d' % (s2, s2),
              'v_mul_f32 v%d, v%d, v%d' % (s2, s2, t)]
    return o


def pair_base(dst, arr):
    a('s_mul_i32 s%d, s%d, %d' % (dst, sPAIR, arr[1] - arr[0]))
    a('s_add_u32 s%d, s%d, %d' % (dst, dst, arr[0]))


def quarter_offsets(n, stride):
    for t in range(n):
        if t:
            a('s_add_u32 s%d, s%d, %d' % (sO + 4 * t, sO + 4 * (t - 1), stride))
        for q in range(1, 4):
            a('s_add_u32 s%d, s%d, %d' % (sO + 4 * t + q, sO + 4 * t, 4096 * q))


sPX, sPS, sPF, sPC, sPX2 = 36, 37, 28, 29, 33


def stats_flags(delta, lsh):
    a('v_lshlrev_b32 v241, %d, v0' % lsh)
    a('s_add_u32 s%d, s%d, %d' % (sA, sPF, delta))
    a('v_add_u32 v241, s%d, v241' % sA)
    a('s_mov_b64 exec, 3')
    store('buffer_store_dword v%d, v241, %s, 0 offen' % (V_T, srd(S_WS)), sPFC)
    a('s_mov_b64 exec, -1')


a('s_cmp_ge_u32 s2, 256')
a('s_cbranch_scc1 L_end')
a('s_load_dwordx16 s[20:35], s[0:1], 0')
a('s_load_dwordx4 s[36:39], s[0:1], 64')
a('s_load_dwordx2 s[40:41], s[0:1], 80')
a('s_getreg_b32 s%d, hwreg(HW_REG_XCC_ID, 0, 4)' % sXCC)
a('s_and_b32 s%d, s2, 7' % sA)
a('s_lshr_b32 s%d, s2, 3' % sB)
a('s_lshr_b32 s%d, s%d, 4' % (sCc, sB))
a('s_lshl_b32 s%d, s%d, 1' % (sS, sA))
a('s_add_u32 s%d, s%d, s%d' % (sS, sS, sCc))
a('s_and_b32 s%d, s%d, 15' % (sC, sB))
a('s_lshr_b32 s%d, s%d, 3' % (sA, sC))
a('s_lshl_b32 s%d, s%d, 1' % (sG, sS))
a('s_add_u32 s%d, s%d, s%d' % (sG, sG, sA))
a('s_and_b32 s%d, s%d, 7' % (sJ, sC))
a('s_mov_b32 s%d, 0' % sERR)
if PREF:
    a('s_getpc_b64 s[96:97]')
    a.label('L_pc')
    a('s_lshl_b32 s%d, s%d, 11' % (sA, sB))
    a('v_lshlrev_b32 v3, 3, v0')
    a('v_add_u32 v3, s%d, v3' % sA)
    a('v_min_u32 v3, L_end-L_pc-8, v3')
    a('global_load_dwordx2 v[252:253], v3, s[96:97]')
a('v_lshrrev_b32 v2, 6, v0')
a('v_and_b32 v0, 63, v0')
a('v_readfirstlane_b32 s%d, v2' % sW)
a('v_lshlrev_b32 v1, 4, v0')
if DIAG:
    a('v_mov_b32 v%d, 0' % V_STAMP)
    a('s_mov_b32 s%d, 0' % sSTI)
stamp()
a('v_and_b32 v%d, 15, v0' % V_TOK)
a('v_lshrrev_b32 v%d, 4, v0' % V_G)
sSTG = 40
a('s_waitcnt lgkmcnt(0)')
if DBG:
    a('s_memtime s[26:27]')
    a('s_memrealtime s[0:1]')
    a('s_waitcnt lgkmcnt(0)')
build_srd(S_WS, P_WSP, L.WS_USED)
a('buffer_load_dword v%d, off, %s, 0 sc1' % (V_T, srd(S_WS)))
a('s_lshl_b32 s%d, s%d, 14' % (sSTG, sW))
a('s_add_u32 s%d, s%d, %d' % (sSTG, sSTG, L.L_R2))

build_srd(S_TMP, P_X, 2048 * 896)
a('v_mul_u32_u24 v2, 896, v%d' % V_TOK)
a('v_lshl_add_u32 v2, v%d, 3, v2' % V_G)
a('s_lshr_b32 s%d, s%d, 1' % (sA, sC))
a('s_lshl_b32 s%d, s%d, 3' % (sB, sS))
a('s_add_u32 s%d, s%d, s%d' % (sO + 0, sA, sB))
a('s_and_b32 s%d, s%d, 1' % (sA, sC))
a('s_mul_i32 s%d, s%d, 7' % (sA, sA))
a('s_add_u32 s%d, s%d, s%d' % (sO + 1, sA, sW))
a('s_cmp_lt_u32 s%d, 3' % sW)
a('s_cselect_b32 s%d, 0, 0x%x' % (sO + 2, INV))
a('s_mul_i32 s%d, s%d, 14336' % (sA, sO + 0))
a('s_lshl_b32 s%d, s%d, 6' % (sB, sO + 1))
a('s_add_u32 s%d, s%d, s%d' % (sA, sA, sB))
a('v_or_b32 v3, s%d, v2' % (sO + 2))
a('buffer_load_dwordx2 v[10:11], v2, %s, s%d offen' % (srd(S_TMP), sA))
a('buffer_load_dwordx2 v[12:13], v2, %s, s%d offen offset:32' % (srd(S_TMP), sA))
a('buffer_load_dwordx2 v[14:15], v3, %s, s%d offen offset:256' % (srd(S_TMP), sA))
a('buffer_load_dwordx2 v[16:17], v3, %s, s%d offen offset:288' % (srd(S_TMP), sA))

build_srd(S_TMP, P_WQKV, 448 * 2688)
qMAT, qU, qINV = sO + 3, sO + 4, sO + 5
a('s_lshl_b32 s%d, s%d, 4' % (sA, sW))
a('s_add_u32 s%d, s%d, s%d' % (sA, sA, sS))
a('s_cmp_lt_u32 s%d, 42' % sA)
a('s_cselect_b32 s%d, 0, 0x%x' % (qINV, INV))
a('s_min_u32 s%d, s%d, 41' % (sA, sA))
a('s_mul_i32 s%d, s%d, 4682' % (qMAT, sA))
a('s_lshr_b32 s%d, s%d, 16' % (qMAT, qMAT))
a('s_mul_i32 s%d, s%d, 14' % (sB, qMAT))
a('s_sub_u32 s%d, s%d, s%d' % (qU, sA, sB))
a('s_mul_i32 s%d, s%d, %d' % (sA, qU, 32 * 2688))
a('s_mul_i32 s%d, s%d, 896' % (sB, qMAT))
a('s_add_u32 s%d, s%d, s%d' % (sA, sA, sB))
a('s_mul_i32 s%d, s%d, 56' % (sB, sC))
a('s_add_u32 s%d, s%d, s%d' % (sA, sA, sB))
a('v_lshrrev_b32 v4, 2, v0')
a('v_mul_u32_u24 v4, 2688, v4')
a('v_and_b32 v5, 3, v0')
a('v_lshl_add_u32 v4, v5, 4, v4')
a('v_or_b32 v4, s%d, v4' % qINV)
a('s_mov_b32 m0, s%d' % sSTG)
a('s_add_u32 s%d, s%d, %d' % (sB, sA, 16 * 2688))
a('buffer_load_dwordx4 v4, %s, s%d offen lds' % (srd(S_TMP), sA))
a('s_add_u32 m0, s%d, 1024' % sSTG)
a('s_nop 0')
a('buffer_load_dwordx4 v4, %s, s%d offen lds' % (srd(S_TMP), sB))

bINV, bDST, bSTR = 20, 21, 22
a('s_lshl_b32 s%d, s%d, 5' % (sA, sW))
a('s_add_u32 s%d, s%d, s%d' % (sA, sA, sG))
a('s_cmp_lt_u32 s%d, 72' % sA)
a('s_cselect_b32 s%d, 0, 0x%x' % (bINV, INV))
a('s_cmp_eq_u32 s%d, 7' % sJ)
a('s_cselect_b32 s%d, 0x%x, s%d' % (bINV, INV, bINV))
a('s_min_u32 s%d, s%d, 71' % (sA, sA))
a('s_min_u32 s%d, s%d, 6' % (sD, sJ))
a('s_cmp_lt_u32 s%d, 16' % sA)
a('s_cselect_b32 s%d, s%d, s%d' % (S_TMP, P_WO, P_W2))
a('s_cselect_b32 s%d, s%d, s%d' % (S_TMP + 1, P_WO + 1, P_W2 + 1))
a('s_mov_b32 s%d, 0x%x' % (S_TMP + 2, 1792 * 896))
a('s_cselect_b32 s%d, 0x%x, s%d' % (S_TMP + 2, 448 * 896, S_TMP + 2))
a('s_cselect_b32 s%d, 28, 32' % sB)
a('s_cselect_b32 s%d, 0, 16' % sCc)
a('s_mov_b32 s%d, %d' % (bSTR, 56 * 1024))
a('s_cselect_b32 s%d, %d, s%d' % (bSTR, 16 * 1024, bSTR))
a('s_mov_b32 s%d, %d' % (bDST, L.WD))
a('s_cselect_b32 s%d, %d, s%d' % (bDST, L.WB, bDST))
a('s_cselect_b32 s%d, 0x%x, 0' % (sO + 9, INV))
a('s_and_b32 s%d, s%d, 0xffff' % (S_TMP + 1, S_TMP + 1))
a('s_mov_b32 s%d, 0x20000' % (S_TMP + 3))
a('s_sub_u32 s%d, s%d, s%d' % (sA, sA, sCc))
a('s_lshl_b32 s%d, s%d, 10' % (sCc, sA))
a('s_add_u32 s%d, s%d, s%d' % (bDST, bDST, sCc))
a('s_lshl_b32 s%d, s%d, 2' % (sCc, sD))
a('s_mul_i32 s%d, s%d, s%d' % (sCc, sCc, bSTR))
a('s_add_u32 s%d, s%d, s%d' % (bDST, bDST, sCc))
a('s_mul_i32 s%d, s%d, s%d' % (sA, sA, sB))
a('s_mul_i32 s%d, s%d, 896' % (sA, sA))
a('s_lshl_b32 s%d, s%d, 7' % (sB, sD))
a('s_add_u32 s%d, s%d, s%d' % (sA, sA, sB))
a('v_lshrrev_b32 v6, 3, v0')
a('v_mul_u32_u24 v6, 896, v6')
a('v_and_b32 v5, 7, v0')
a('v_lshl_add_u32 v6, v5, 4, v6')
a('v_or_b32 v6, s%d, v6' % bINV)
a('v_cmp_lt_u32 vcc, 31, v0')
a('v_mov_b32 v7, s%d' % (sO + 9))
a('v_cndmask_b32 v7, 0, v7, vcc')
a('v_or_b32 v7, v7, v6')
for q in range(4):
    a('s_add_u32 m0, s%d, %d' % (sSTG, 2048 + 1024 * q))
    if q:
        a('s_add_u32 s%d, s%d, %d' % (sA, sA, 8 * 896))
    else:
        a('s_nop 0')
    a('buffer_load_dwordx4 v%d, %s, s%d offen lds' % (7 if q == 3 else 6, srd(S_TMP), sA))

build_srd(S_TMP, P_W1, 448 * 3584)
cINV, cNT, cI12 = 23, 24, 25
a('s_cmp_lt_u32 s%d, 16' % sG)
a('s_cselect_b32 s%d, 0, 0x%x' % (cINV, INV))
a('s_cmp_eq_u32 s%d, 7' % sJ)
a('s_cselect_b32 s%d, 0x%x, s%d' % (cINV, INV, cINV))
a('s_min_u32 s%d, s%d, 6' % (sD, sJ))
a('s_lshl_b32 s%d, s%d, 4' % (cNT, sD))
a('s_and_b32 s%d, s%d, 15' % (sA, sG))
a('s_add_u32 s%d, s%d, s%d' % (cNT, cNT, sA))
a('s_cmp_lt_u32 s%d, 2' % sW)
a('s_cselect_b32 s%d, s%d, 0x%x' % (cI12, cINV, INV))
a('v_lshrrev_b32 v8, 1, v0')
a('v_mul_u32_u24 v8, 3584, v8')
a('v_and_b32 v5, 1, v0')
a('v_lshl_add_u32 v8, v5, 4, v8')
a('v_or_b32 v9, s%d, v8' % cI12)
a('v_or_b32 v8, s%d, v8' % cINV)
a('s_lshl_b32 s%d, s%d, 5' % (sB, cNT))
for i in range(4):
    a('s_add_u32 s%d, s%d, %d' % (sA, sW, 4 * i))
    a('s_min_u32 s%d, s%d, 13' % (sA, sA))
    a('s_mul_i32 s%d, s%d, %d' % (sA, sA, 32 * 3584))
    a('s_add_u32 s%d, s%d, s%d' % (sA, sA, sB))
    a('s_add_u32 m0, s%d, %d' % (sSTG, 6144 + 1024 * i))
    a('s_nop 0')
    a('buffer_load_dwordx4 v%d, %s, s%d offen lds' % (9 if i == 3 else 8, srd(S_TMP), sA))
build_srd(S_B1, P_B1, 1792 * 2)
build_srd(S_OUT, P_OUT, 2048 * 896)
a('v_bfe_u32 v18, v0, 2, 2')
a('v_lshl_add_u32 v18, v%d, 2, v18' % V_G)
a('v_and_b32 v19, 3, v0')
a('v_lshlrev_b32 v19, 3, v19')
a('s_waitcnt vmcnt(8)')
stamp()

a('s_mov_b32 s%d, 0x9E3779B1' % sA)
a('v_mul_lo_u32 v%d, v%d, s%d' % (V_T, V_T, sA))
a('v_add_u32 v%d, 0x7F4A7C15, v%d' % (V_T, V_T))
a('v_and_b32 v%d, -16, v%d' % (V_T, V_T))
a('v_lshl_add_u32 v20, v18, 6, v19')
a('v_add_u32 v20, s%d, v20' % sSTG)
for hf in range(2):
    a('ds_read_b64_tr_b16 %s, v20 offset:%d' % (vr(24 + 4 * hf, 2), 32 * hf))
    a('ds_read_b64_tr_b16 %s, v20 offset:%d' % (vr(26 + 4 * hf, 2), 32 * hf + 1024))
a('v_readfirstlane_b32 s%d, v%d' % (sT, V_T))
a('s_mul_i32 s%d, s%d, 14' % (sA, sO + 0))
a('s_add_u32 s%d, s%d, s%d' % (sA, sA, sO + 1))
a('s_lshl_b32 s%d, s%d, 10' % (sB, sA))
a('s_add_u32 s%d, s%d, %d' % (sB, sB, L.XA[0]))
a('v_or_b32 v3, s%d, v1' % (sO + 2))
a('buffer_store_dwordx4 v[10:13], v1, %s, s%d offen sc1' % (srd(S_WS), sB))
a('s_add_u32 s%d, s%d, 4096' % (sB, sB))
a('buffer_store_dwordx4 v[14:17], v3, %s, s%d offen sc1' % (srd(S_WS), sB))
a('v_cmp_gt_u32 vcc, 12, v%d' % V_TOK)
a('s_mul_i32 s%d, s%d, 84' % (sB, sC))
a('s_mul_i32 s%d, s%d, 28' % (sCc, qMAT))
a('s_add_u32 s%d, s%d, s%d' % (sB, sB, sCc))
a('s_add_u32 s%d, s%d, s%d' % (sB, sB, qU))
a('s_lshl_b32 s%d, s%d, 10' % (sB, sB))
a('s_add_u32 s%d, s%d, %d' % (sB, sB, L.WA))
a('v_or_b32 v4, s%d, v1' % qINV)
a('s_waitcnt lgkmcnt(0)')
for p in range(4):
    a('v_cndmask_b32 v%d, 0, v%d, vcc' % (28 + p, 28 + p))
a('buffer_store_dwordx4 v[24:27], v4, %s, s%d offen sc1' % (srd(S_WS), sB))
a('s_add_u32 s%d, s%d, %d' % (sB, sB, 14 * 1024))
a('buffer_store_dwordx4 v[28:31], v4, %s, s%d offen sc1' % (srd(S_WS), sB))
a('v_mov_b32 v2, 0x3f803f80')
for k in range(2):
    x, s1, s2 = 10 + 4 * k, 110 + 2 * k, 111 + 2 * k
    a('v_mov_b32 v%d, 0' % s1)
    a('v_mov_b32 v%d, 0' % s2)
    for p in range(4):
        a('v_dot2_f32_bf16 v%d, v%d, v2, v%d' % (s1, x + p, s1))
        a('v_dot2_f32_bf16 v%d, v%d, v%d, v%d' % (s2, x + p, x + p, s2))
    for t in xg_reduce(s1, 114) + xg_reduce(s2, 115):
        a(t)
a('s_lshl_b32 s%d, s%d, 7' % (sB, sA))
a('s_add_u32 s%d, s%d, %d' % (sB, sB, L.SA[0]))
a('v_lshlrev_b32 v2, 3, v%d' % V_TOK)
a('v_or_b32 v3, s%d, v2' % (sO + 2))
a('s_mov_b64 exec, 0xffff')
a('buffer_store_dwordx2 v[110:111], v2, %s, s%d offen sc1' % (srd(S_WS), sB))
a('buffer_store_dwordx2 v[112:113], v3, %s, s%d offen offset:512 sc1' % (srd(S_WS), sB))
a('s_mov_b64 exec, -1')
a('s_lshl_b32 s%d, s%d, 5' % (sA, sO + 0))
a('s_add_u32 s%d, s%d, s%d' % (sA, sA, sO + 1))
a('s_lshl_b32 s%d, s%d, 2' % (sA, sA))
a('s_add_u32 s%d, s%d, %d' % (sA, sA, L.FX[0]))
a('v_lshlrev_b32 v2, 4, v0')
a('v_add_u32 v2, s%d, v2' % sA)
a('v_cmp_eq_u32 vcc, 1, v0')
a('v_mov_b32 v3, s%d' % (sO + 2))
a('v_cndmask_b32 v3, 0, v3, vcc')
a('v_or_b32 v2, v2, v3')
a('s_lshl_b32 s%d, s%d, 6' % (sA, sC))
a('s_lshl_b32 s%d, s%d, 2' % (sB, sS))
a('s_add_u32 s%d, s%d, s%d' % (sA, sA, sB))
a('s_add_u32 s%d, s%d, s%d' % (sA, sA, sW))
a('s_lshl_b32 s%d, s%d, 2' % (sA, sA))
a('s_add_u32 s%d, s%d, %d' % (sA, sA, L.FQ))
a('v_mov_b32 v3, s%d' % sA)
a('v_cmp_eq_u32 vcc, 2, v0')
a('v_cndmask_b32 v2, v2, v3, vcc')
a('s_lshl_b32 s%d, s%d, 4' % (sA, sS))
a('s_add_u32 s%d, s%d, s%d' % (sA, sA, sC))
a('s_lshl_b32 s%d, s%d, 2' % (sA, sA))
a('s_add_u32 s%d, s%d, %d' % (sA, sA, L.FXC))
a('s_cmp_eq_u32 s%d, 0' % sW)
a('s_cselect_b32 s%d, s%d, 0x%x' % (sA, sA, INV))
a('v_mov_b32 v3, s%d' % sA)
a('v_cmp_eq_u32 vcc, 3, v0')
a('v_cndmask_b32 v2, v2, v3, vcc')
a('v_or_b32 v3, s%d, v%d' % (sXCC, V_T))
a('v_cndmask_b32 v3, v%d, v3, vcc' % V_T)
set_flags(2, 4, None, 3)
stamp()

a('v_lshl_add_u32 v20, v18, 7, v19')
a('v_add_u32 v20, s%d, v20' % sSTG)
for t in range(4):
    a('ds_read_b64_tr_b16 %s, v20 offset:%d' % (vr(24 + 4 * t, 2), 2048 + 32 * t))
    a('ds_read_b64_tr_b16 %s, v20 offset:%d' % (vr(26 + 4 * t, 2), 2048 + 32 * t + 2048))
a('v_lshl_add_u32 v21, v18, 5, v19')
a('v_add_u32 v21, s%d, v21' % sSTG)
for i in range(4):
    a('ds_read_b64_tr_b16 %s, v21 offset:%d' % (vr(40 + 4 * i, 2), 6144 + 1024 * i))
    a('ds_read_b64_tr_b16 %s, v21 offset:%d' % (vr(42 + 4 * i, 2), 6144 + 1024 * i + 512))
a('v_or_b32 v6, s%d, v1' % bINV)
a('s_waitcnt lgkmcnt(8)')
for t in range(4):
    a('buffer_store_dwordx4 %s, v6, %s, s%d offen sc1' % (vr(24 + 4 * t), srd(S_WS), bDST))
    if t < 3:
        a('s_add_u32 s%d, s%d, s%d' % (bDST, bDST, bSTR))
a('s_mul_i32 s%d, s%d, 14' % (sA, cNT))
a('s_add_u32 s%d, s%d, s%d' % (sA, sA, sW))
a('s_lshl_b32 s%d, s%d, 10' % (sA, sA))
a('s_add_u32 s%d, s%d, %d' % (sA, sA, L.WC))
a('v_or_b32 v8, s%d, v1' % cINV)
a('v_or_b32 v9, s%d, v1' % cI12)
a('v_mov_b32 v2, 0x3f803f80')
a('v_mov_b32 v100, 0')
a('s_waitcnt lgkmcnt(0)')
for i in range(4):
    a('buffer_store_dwordx4 %s, v%d, %s, s%d offen sc1' % (vr(40 + 4 * i), 9 if i == 3 else 8, srd(S_WS), sA))
    a('s_add_u32 s%d, s%d, 4096' % (sA, sA))
for i in range(4):
    for p in range(4):
        a('v_dot2_f32_bf16 v100, v%d, v2, v100' % (40 + 4 * i + p))
for t in xg_reduce(100, 101):
    a(t)
a('s_lshl_b32 s%d, s%d, 6' % (sA, sW))
a('s_add_u32 s%d, s%d, %d' % (sA, sA, L.L_CSR))
a('v_lshlrev_b32 v2, 2, v%d' % V_TOK)
a('v_add_u32 v3, s%d, v2' % sA)
a('ds_write_b32 v3, v100')
a('s_waitcnt lgkmcnt(0)')
a('s_barrier')
a('v_add_u32 v3, %d, v2' % L.L_CSR)
for i in range(4):
    a('ds_read_b32 v%d, v3 offset:%d' % (104 + i, 64 * i))
a('s_lshl_b32 s%d, s%d, 6' % (sB, cNT))
a('s_add_u32 s%d, s%d, %d' % (sB, sB, L.CSC))
a('s_cmp_eq_u32 s%d, 0' % sW)
a('s_cselect_b32 s%d, s%d, 0x%x' % (sA, cINV, INV))
a('v_or_b32 v2, s%d, v2' % sA)
a('s_waitcnt lgkmcnt(0)')
a('v_add_f32 v104, v104, v105')
a('v_add_f32 v106, v106, v107')
a('v_add_f32 v104, v104, v106')
a('s_mov_b64 exec, 0xffff')
a('buffer_store_dword v104, v2, %s, s%d offen sc1' % (srd(S_WS), sB))
a('s_mov_b64 exec, -1')

a('v_and_b32 v2, 1, v%d' % V_TOK)
a('v_lshlrev_b32 v3, 2, v%d' % V_G)
a('v_add_u32 v6, 2, v%d' % V_TOK)
for i in range(4):
    a('v_add_u32 v4, %d, v3' % i)
    a('v_cmp_eq_u32 vcc, %d, v2' % (i & 1))
    a('s_mov_b64 %s, vcc' % sp(sMK))
    a('v_cmp_ge_u32 vcc, v4, v6')
    a('s_and_b64 %s, vcc, %s' % (sp(sM1 + 2 * i), sp(sMK)))
    a('v_cmp_le_u32 vcc, v4, v%d' % V_TOK)
    a('s_and_b64 %s, vcc, %s' % (sp(sM2 + 2 * i), sp(sMK)))
a('s_lshl_b32 s%d, s%d, 3' % (sA, sS))
a('s_lshl_b32 s%d, s%d, 1' % (sB, sW))
a('s_add_u32 s%d, s%d, s%d' % (sGT, sA, sB))
a('s_cmp_eq_u32 s%d, 0' % sGT)
for i in range(4):
    a('s_cselect_b64 %s, 0, %s' % (sp(sM0 + 2 * i), sp(sM1 + 2 * i)))
a('s_mov_b32 s%d, 0' % sPAIR)

def a_flag_addr(dst):
    pair_base(sA, L.FX)
    a('s_lshl_b32 s%d, s%d, 7' % (sB, sGT))
    a('s_add_u32 s%d, s%d, s%d' % (sA, sA, sB))
    a('s_sub_u32 s%d, s%d, 128' % (sA, sA))
    a('v_and_b32 v%d, 48, v0' % dst)
    a('v_add_u32 v%d, v%d, v0' % (dst, dst))
    a('v_lshl_add_u32 v%d, v%d, 2, s%d' % (dst, dst, sA))
    a('s_mov_b32 s%d, 0x3fff3fff' % sMK)
    a('s_mov_b32 s%d, 0x3fff' % (sMK + 1))
    a('s_cmp_eq_u32 s%d, 0' % sGT)
    a('s_cselect_b32 s%d, 0x3fff0000, s%d' % (sMK, sMK))


a('s_lshl_b32 s%d, s%d, 8' % (sA, sC))
a('s_add_u32 s%d, s%d, %d' % (sA, sA, L.FQ))
a('v_lshl_add_u32 v2, v0, 2, s%d' % sA)
a_flag_addr(3)
a('s_lshl_b32 s%d, s%d, 6' % (sA, sS))
a('s_add_u32 s%d, s%d, %d' % (sA, sA, L.FXC - 48 * 4))
a('v_lshl_add_u32 v4, v0, 2, s%d' % sA)
a('v_cmp_lt_u32 vcc, 47, v0')
a('v_cndmask_b32 v3, v3, v4, vcc')
a('v_mov_b32 v5, -1')
a('v_mov_b32 v6, -16')
a('v_cndmask_b32 v5, v5, v6, vcc')
a('s_or_b32 s%d, s%d, 0xffff0000' % (sMK + 1, sMK + 1))
a('s_mov_b32 s%d, 0' % sSPIN)
a.label('L_poll0')
a('buffer_load_dword v7, v2, %s, 0 offen sc1' % srd(S_WS))
a('s_mov_b64 exec, %s' % sp(sMK))
a('buffer_load_dword v8, v3, %s, 0 offen sc1' % srd(S_WS))
a('s_waitcnt vmcnt(0)')
a('v_and_b32 v9, v5, v8')
a('v_cmp_ne_u32 vcc, s%d, v9' % sT)
a('s_mov_b64 exec, -1')
a('s_mov_b64 %s, vcc' % sp(sTS))
a('v_cmp_ne_u32 vcc, s%d, v7' % sT)
a('s_or_b64 vcc, vcc, %s' % sp(sTS))
a('s_cbranch_vccz L_poll0_done')
a('s_add_u32 s%d, s%d, 1' % (sSPIN, sSPIN))
a('s_cmp_lt_u32 s%d, %d' % (sSPIN, SPIN_LIMIT))
a('s_cbranch_scc1 L_poll0')
a('s_add_u32 s%d, s%d, 1' % (sERR, sERR))
a.label('L_poll0_done')
a('v_and_b32 v9, 15, v8')
a('v_cmp_ne_u32 vcc, s%d, v9' % sXCC)
a('s_and_b32 s%d, vcc_hi, 0xffff0000' % sA)
a('s_cmp_eq_u32 s%d, 0' % sA)
a('s_cselect_b32 s%d, 1, 0' % sFAST)
stamp()
AQ, AK, AV = 2, 18, 42
WBUF = [66, 90]
XR = 114
CSACC = 186
STR = 210
SM, SR = 234, 237
NR, LOOK = 6, 4
A_ONES = 240


def a_xload(u):
    slot = u % NR
    return ['buffer_load_dwordx4 %s, v1, %s, s%d offen offset:%d sc1' %
            (vr(XR + (slot * 3 + t) * 4), srd(S_WS), sO + 4 * t + (u >> 2), 1024 * (u & 3)) for t in range(3)]


def a_offsets():
    pair_base(sA, L.XA)
    a('s_mul_i32 s%d, s%d, 14336' % (sB, sGT))
    a('s_add_u32 s%d, s%d, s%d' % (sO + 4, sA, sB))
    a('s_add_u32 s%d, s%d, 14336' % (sO + 8, sO + 4))
    a('s_sub_u32 s%d, s%d, 14336' % (sO + 0, sO + 4))
    a('s_cmp_eq_u32 s%d, 0' % sGT)
    a('s_cselect_b32 s%d, s%d, s%d' % (sO + 0, sO + 4, sO + 0))
    for t in range(3):
        for q in range(1, 4):
            a('s_add_u32 s%d, s%d, %d' % (sO + 4 * t + q, sO + 4 * t, 4096 * q))


def a_setup():
    if FASTMODE == 'flags':
        a('s_mov_b32 s%d, 0' % sFD)
        a('s_mov_b32 s%d, 0' % sFH)
    elif FASTMODE == 'p0':
        a('s_xor_b32 s%d, s%d, 1' % (sFD, sPAIR))
        a('s_and_b32 s%d, s%d, s%d' % (sFD, sFD, sFAST))
        a('s_mov_b32 s%d, s%d' % (sFH, sFD))
    elif FASTMODE == 'small':
        a('s_mov_b32 s%d, s%d' % (sFD, sFAST))
        a('s_mov_b32 s%d, 0' % sFH)
    elif FASTMODE == 'smallp0':
        a('s_mov_b32 s%d, s%d' % (sFD, sFAST))
        a('s_xor_b32 s%d, s%d, 1' % (sFH, sPAIR))
        a('s_and_b32 s%d, s%d, s%d' % (sFH, sFH, sFAST))
    else:
        a('s_mov_b32 s%d, s%d' % (sFD, sFAST))
        a('s_mov_b32 s%d, s%d' % (sFH, sFAST))
    pair_base(sA, L.SA)
    a('s_mul_i32 s%d, s%d, 1792' % (sB, sGT))
    a('s_add_u32 s%d, s%d, s%d' % (sO + 13, sA, sB))
    a('s_add_u32 s%d, s%d, 1792' % (sO + 14, sO + 13))
    a('s_sub_u32 s%d, s%d, 1792' % (sO + 12, sO + 13))
    a('s_cmp_eq_u32 s%d, 0' % sGT)
    a('s_cselect_b32 s%d, s%d, s%d' % (sO + 12, sO + 13, sO + 12))
    a('v_and_b32 v%d, 15, v0' % V_TOK)
    a('v_lshrrev_b32 v%d, 4, v0' % V_G)
    a('v_lshlrev_b32 v240, 3, v%d' % V_TOK)
    a('v_lshl_add_u32 v240, v%d, 7, v240' % V_G)
    a('v_mov_b32 v242, 0x%x' % INV)
    a('v_cmp_lt_u32 vcc, 1, v%d' % V_G)
    a('v_cndmask_b32 v241, 0, v242, vcc')
    a('v_or_b32 v241, v241, v240')
    a('v_add_u32 v243, %d, v1' % (56 * 1024))
    a('v_lshlrev_b32 v244, 4, v%d' % V_G)
    a('v_add_u32 v244, %d, v244' % L.L_CSA)
    a('v_lshlrev_b32 v245, 2, v%d' % V_TOK)
    a('v_add_u32 v245, %d, v245' % L.L_CSA)
    a('s_lshl_b32 s%d, s%d, 7' % (sA, sJ))
    a('s_add_u32 s%d, s%d, %d' % (sA, sA, L.FP))
    a('v_lshl_add_u32 v248, v0, 2, s%d' % sA)
    a('s_lshr_b32 s%d, s%d, 1' % (sB, sW))
    a('s_lshl_b32 s%d, s%d, 2' % (sCc, sG))
    a('s_add_u32 s%d, s%d, s%d' % (sB, sB, sCc))
    a('s_lshl_b32 s%d, s%d, 5' % (sB, sB))
    a('s_and_b32 s%d, s%d, 1' % (sA, sW))
    a('s_add_u32 s%d, s%d, s%d' % (sB, sB, sA))
    a('s_min_u32 s%d, s%d, 6' % (sA, sJ))
    a('s_lshl_b32 s%d, s%d, 1' % (sA, sA))
    a('s_add_u32 s%d, s%d, s%d' % (sB, sB, sA))
    a('s_lshl_b32 s%d, s%d, 2' % (sB, sB))
    a('s_add_u32 s%d, s%d, %d' % (sB, sB, L.FX[0] - 32 * 256))
    a('v_lshl_add_u32 v249, v0, 8, s%d' % sB)
    a('v_cmp_lt_u32 vcc, 31, v0')
    a('v_cndmask_b32 v248, v248, v249, vcc')
    a('s_cmp_eq_u32 s%d, 0' % sPAIR)
    a('s_mov_b32 s%d, %d' % (sA, L.FSA - 128))
    a('s_cselect_b32 s%d, %d, s%d' % (sA, L.FX[0] - 128, sA))
    a('s_lshl_b32 s%d, s%d, 7' % (sB, sGT))
    a('s_add_u32 s%d, s%d, s%d' % (sA, sA, sB))
    a('v_and_b32 v247, 48, v0')
    a('v_add_u32 v247, v247, v0')
    a('v_lshl_add_u32 v247, v247, 2, s%d' % sA)
    a('s_mov_b32 s%d, 0x3fff3fff' % sMK2)
    a('s_mov_b32 s%d, 0x3fff' % (sMK2 + 1))
    a('s_cmp_eq_u32 s%d, 0' % sGT)
    a('s_cselect_b32 s%d, 0x3fff0000, s%d' % (sMK2, sMK2))


stat_loads = ['buffer_load_dwordx2 %s, v%d, %s, s%d offen offset:%d sc1' %
              (vr(STR + (t * 4 + i) * 2, 2), 241 if i == 3 else 240, srd(S_WS), sO + 12 + t, 512 * i)
              for t in range(3) for i in range(4)]


def a_wread(u):
    b = WBUF[u & 1]
    o = []
    for p in range(6):
        if p < 4:
            o.append('ds_read_b128 %s, v1 offset:%d' % (vr(b + 4 * p), L.L_WA + (p * 14 + u) * 1024))
        else:
            o.append('ds_read_b128 %s, v243 offset:%d' % (vr(b + 4 * p), L.L_WA + ((p - 4) * 14 + u) * 1024))
    return o


stat_fill = []
for t in range(3):
    r = STR + 8 * t
    for c_ in range(2):
        stat_fill += ['v_add_f32 v%d, v%d, v%d' % (r + c_, r + c_, r + 2 + c_),
                      'v_add_f32 v%d, v%d, v%d' % (r + 4 + c_, r + 4 + c_, r + 6 + c_),
                      'v_add_f32 v%d, v%d, v%d' % (r + c_, r + c_, r + 4 + c_)]
    stat_fill += xg_reduce(r, r + 2) + xg_reduce(r + 1, r + 3)
    stat_fill += stats_finish(r, r + 1, r + 2, False)
    stat_fill += ['v_mov_b32 v%d, v%d' % (SM + t, r), 'v_mov_b32 v%d, v%d' % (SR + t, r + 1)]

sWA = [20, 21, 22]
sWAG = 23


def wa_dma(pr, i):
    def f():
        a('s_add_u32 m0, s%d, %d' % (sWA[i], L.L_WA + 2048 * pr))
        a('s_add_u32 s%d, s%d, s%d' % (sD, sWA[i], sWAG))
        if pr:
            a('s_add_u32 s%d, s%d, %d' % (sD, sD, 2048 * pr))
        a('buffer_load_dwordx4 v1, %s, s%d offen sc1 lds' % (srd(S_WS), sD))
    return f


amark = {}


def emit_a_loop(first, xmark, wam):
    ep_mark = es_mark = st_mark = None
    for t in a_wread(0):
        a(t)
    for u in range(14):
        need = xmark[u]
        if u == 12:
            need = max(need, st_mark)
        a.wait_vm(need)
        if u == 6:
            early_check(246, 247, es_mark)
        if u == 11:
            a('s_mov_b32 s%d, -1' % sMK2)
            a('s_mov_b32 s%d, 3' % (sMK2 + 1))
        a('s_waitcnt lgkmcnt(0)')
        wb = WBUF[u & 1]
        xs = XR + (u % NR) * 12
        mf = []
        cz = (lambda r: '0') if u == 0 else (lambda r: vr(r))
        for t in range(2):
            for hf in range(2):
                r = AQ + (t * 2 + hf) * 4
                mf.append('%s %s, %s, %s, %s' % (MFMA, vr(r), vr(wb + 4 * hf), vr(xs + 4 * (t + 1)), cz(r)))
        for t in range(3):
            for hf in range(2):
                r = AK + (t * 2 + hf) * 4
                mf.append('%s %s, %s, %s, %s' % (MFMA, vr(r), vr(wb + 8 + 4 * hf), vr(xs + 4 * t), cz(r)))
        for t in range(3):
            for hf in range(2):
                r = AV + (t * 2 + hf) * 4
                mf.append('%s %s, %s, %s, %s' % (MFMA, vr(r), vr(xs + 4 * t), vr(wb + 16 + 4 * hf), cz(r)))
        if first:
            for p in range(6):
                r = CSACC + 4 * p
                if p < 4:
                    mf.append('%s %s, %s, %s, %s' % (MFMA, vr(r), vr(wb + 4 * p), ar(A_ONES), cz(r)))
                else:
                    mf.append('%s %s, %s, %s, %s' % (MFMA, vr(r), ar(A_ONES), vr(wb + 4 * p), cz(r)))
        mem = {}

        def put(k, x):
            mem.setdefault(k, []).append(x)
        off = 0
        if first and u % 2 == 1 and u < 13:
            put(2, ('bar', (u + 1) // 2))
            off = 3
        if u < 13:
            for k, x in enumerate(a_wread(u + 1)):
                put(off + k, x)
        elif not first:
            for p in range(4):
                put(p, 'ds_read_b128 %s, v244 offset:%d' % (vr(WBUF[0] + 4 * p), 64 * p))
            for d in range(2):
                put(4 + d, 'ds_read_b32 v%d, v245 offset:%d' % (WBUF[0] + 16 + d, 64 * (4 + d)))
        if u + LOOK < 14:
            for k, x in zip((6, 9, 12), a_xload(u + LOOK)):
                put(k + off, x)
            put(12 + off, ('xm', u + LOOK))
        if first and u % 2 == 0 and u // 2 + 3 <= 6:
            for i, k in enumerate((13, 16, 19)):
                put(k, ('wa', u // 2 + 3, i))
        if 6 <= u < 10:
            for k, x in zip((8, 11, 14), stat_loads[3 * (u - 6):3 * (u - 6) + 3]):
                put(k, x)
            if u == 9:
                put(14, ('st',))
        if u == 11:
            put(8, ('early',))
        if u == 4:
            put(8, ('estat',))
        fill = stat_fill[(u - 12) * 30:(u - 11) * 30] if u >= 12 else []
        fi = 0
        for k, m in enumerate(mf):
            a(m)
            for it in mem.get(k, []):
                if isinstance(it, str):
                    a(it)
                elif it[0] == 'early':
                    ep_mark = early_issue(249, 248)
                elif it[0] == 'estat':
                    es_mark = early_issue(246, 247)
                elif it[0] == 'xm':
                    xmark[it[1]] = a.vm_mark()
                elif it[0] == 'st':
                    st_mark = a.vm_mark()
                elif it[0] == 'bar':
                    a.wait_vm(wam[it[1]])
                    a('s_barrier')
                elif it[0] == 'wa':
                    wa_dma(it[1], it[2])()
                    wam[it[1]] = a.vm_mark()
            for _ in range(2):
                if fi < len(fill) and k >= 1:
                    a(fill[fi])
                    fi += 1
        assert fi == len(fill), (u, fi, len(fill))
    amark['ep'] = ep_mark


for p in range(4):
    a('v_mov_b32 v4, 0x3f803f80')
    a('v_accvgpr_write_b32 a%d, v4' % (A_ONES + p))
a('s_mul_i32 s%d, s%d, 14336' % (sWA[0], sW))
a('s_add_u32 s%d, s%d, 4' % (sA, sW))
a('s_mul_i32 s%d, s%d, 14336' % (sA, sA))
a('s_sub_u32 s%d, s%d, 2' % (sB, sW))
a('s_mul_i32 s%d, s%d, 14336' % (sB, sB))
a('s_add_u32 s%d, s%d, 1024' % (sB, sB))
a('s_cmp_lt_u32 s%d, 2' % sW)
a('s_cselect_b32 s%d, s%d, s%d' % (sWA[1], sA, sB))
a('s_add_u32 s%d, s%d, 2' % (sA, sW))
a('s_mul_i32 s%d, s%d, 14336' % (sA, sA))
a('s_add_u32 s%d, s%d, 1024' % (sWA[2], sA))
a('s_mul_i32 s%d, s%d, %d' % (sWAG, sC, 84 * 1024))
a('s_add_u32 s%d, s%d, %d' % (sWAG, sWAG, L.WA))
a_offsets()
xm0, wam0 = {}, {}


def wa_pair(pr):
    for i in range(3):
        wa_dma(pr, i)()
    wam0[pr] = a.vm_mark()


for pr in range(3):
    wa_pair(pr)
    for u in (2 * pr, 2 * pr + 1):
        if u < LOOK:
            for t in a_xload(u):
                a(t)
            xm0[u] = a.vm_mark()
a_setup()
a.wait_vm(wam0[0])
a('s_barrier')
a('s_lshl_b32 s%d, s%d, 5' % (sA, sJ))
a('s_add_u32 s%d, s%d, s%d' % (sA, sA, sG))
a('s_lshl_b32 s%d, s%d, 2' % (sA, sA))
a('s_add_u32 s%d, s%d, %d' % (sA, sA, L.FP))
a('s_cmp_eq_u32 s%d, 0' % sW)
a('s_cselect_b32 s%d, s%d, 0x%x' % (sA, sA, INV))
a('v_mov_b32 v2, s%d' % sA)
a('s_mov_b64 exec, 1')
a('buffer_store_dword v%d, v2, %s, 0 offen sc1' % (V_T, srd(S_WS)))
a.vm_issued -= 1
a('s_mov_b64 exec, -1')
stamp()
emit_a_loop(True, xm0, wam0)
n_join = a.vm_issued - amark['ep']
CSQ = WBUF[0]
a('v_cmp_eq_u32 vcc, 0, v%d' % V_TOK)
a('s_mov_b64 exec, vcc')
for p in range(4):
    a('ds_write_b128 v244, %s offset:%d' % (vr(CSACC + 4 * p), 64 * p))
a('s_mov_b64 exec, 0xffff')
for d in range(2):
    a('ds_write_b32 v245, v%d offset:%d' % (CSACC + 16 + 4 * d, 64 * (4 + d)))
a('s_mov_b64 exec, -1')
for e in range(16):
    a('v_mov_b32 v%d, v%d' % (CSQ + e, CSACC + e))
for d in range(2):
    a('v_mov_b32 v%d, v%d' % (CSQ + 16 + d, CSACC + 16 + 4 * d))
a('s_branch L_a_epi')

a.label('L_pair')
a_flag_addr(2)
poll(2)
stamp()
a_offsets()
xmark = {}
for u in range(LOOK):
    for t in a_xload(u):
        a(t)
    xmark[u] = a.vm_mark()
a_setup()
emit_a_loop(False, xmark, None)
assert a.vm_issued - amark['ep'] == n_join
ep_mark = amark['ep']
a.label('L_a_epi')
stamp()
for x in stat_fill[60:]:
    a(x)
early_check(249, 248, ep_mark)
BW = 2
a('s_lshl_b32 s%d, s%d, 6' % (sA, sJ))
a('s_lshl_b32 s%d, s%d, 2' % (sB, sW))
a('s_add_u32 s%d, s%d, s%d' % (sA, sA, sB))
a('s_lshl_b32 s%d, s%d, 10' % (sA, sA))
a('s_add_u32 s20, s%d, %d' % (sA, L.WB))
for t in range(1, 4):
    a('s_add_u32 s%d, s20, %d' % (20 + t, 16 * 1024 * t))
wb_loads = ['buffer_load_dwordx4 %s, v1, %s, s%d offen offset:%d sc1' % (vr(BW + (i * 4 + t) * 4), srd(S_WS), 20 + t, 1024 * i)
            for i in range(4) for t in range(4)]
A_RES, A_B2 = 224, 232


def owner_index():
    a('s_lshr_b32 s%d, s%d, 1' % (sB, sW))
    a('s_lshl_b32 s%d, s%d, 2' % (sCc, sG))
    a('s_add_u32 s%d, s%d, s%d' % (sB, sB, sCc))
    a('s_and_b32 s%d, s%d, 1' % (sA, sW))
    a('s_lshl_b32 s%d, s%d, 1' % (sCc, sJ))
    a('s_add_u32 s%d, s%d, s%d' % (sA, sA, sCc))


a('s_cmp_eq_u32 s%d, 0' % sPAIR)
a('s_cbranch_scc0 L_a_nores')
owner_index()
a('s_mul_i32 s%d, s%d, 14' % (sB, sB))
a('s_add_u32 s%d, s%d, s%d' % (sB, sB, sA))
a('s_lshl_b32 s%d, s%d, 10' % (sB, sB))
a('s_add_u32 s%d, s%d, %d' % (sB, sB, L.XA[0]))
a('buffer_load_dwordx4 %s, v1, %s, s%d offen sc1' % (ar(A_RES), srd(S_WS), sB))
a('s_add_u32 s%d, s%d, %d' % (sB, sB, 2 * 14336))
a('buffer_load_dwordx4 %s, v1, %s, s%d offen sc1' % (ar(A_RES + 4), srd(S_WS), sB))
build_srd(S_TMP, P_B2, 896)
a('s_lshl_b32 s%d, s%d, 6' % (sB, sA))
a('v_lshlrev_b32 v240, 3, v%d' % V_G)
a('buffer_load_dwordx2 v[228:229], v240, %s, s%d offen' % (srd(S_TMP), sB))
a('buffer_load_dwordx2 v[230:231], v240, %s, s%d offen offset:32' % (srd(S_TMP), sB))
a.label('L_a_nores')
CSQ = WBUF[0]
a('s_mul_i32 s%d, s%d, 384' % (sA, sW))
a('s_add_u32 s%d, s%d, %d' % (sA, sA, L.L_STA))
a('v_lshl_add_u32 v246, v%d, 2, s%d' % (V_TOK, sA))
a('v_lshl_add_u32 v247, v%d, 4, s%d' % (V_G, sA))
a('s_mov_b64 exec, 0xffff')
for t in range(3):
    a('ds_write_b32 v246, v%d offset:%d' % (SM + t, 128 * t))
    a('ds_write_b32 v246, v%d offset:%d' % (SR + t, 128 * t + 64))
a('s_mov_b64 exec, -1')
MROW, RROW = 114, 126
a('s_waitcnt lgkmcnt(0)')
for t in range(3):
    a('ds_read_b128 %s, v247 offset:%d' % (vr(MROW + 4 * t), 128 * t))
    a('ds_read_b128 %s, v247 offset:%d' % (vr(RROW + 4 * t), 128 * t + 64))
QF, KF, VF = 140, 148, 160
for t in range(2):
    for hf in range(2):
        r = AQ + (t * 2 + hf) * 4
        for i in range(4):
            a('v_fma_f32 v%d, -v%d, v%d, v%d' % (r + i, SM + t + 1, CSQ + 4 * hf + i, r + i))
        for p in range(2):
            a('v_cvt_pk_bf16_f32 v%d, v%d, v%d' % (QF + 4 * t + 2 * hf + p, r + 2 * p, r + 2 * p + 1))
for t in range(3):
    for hf in range(2):
        r = AK + (t * 2 + hf) * 4
        for i in range(4):
            a('v_fma_f32 v%d, -v%d, v%d, v%d' % (r + i, SM + t, CSQ + 8 + 4 * hf + i, r + i))
        for p in range(2):
            a('v_cvt_pk_bf16_f32 v%d, v%d, v%d' % (KF + 4 * t + 2 * hf + p, r + 2 * p, r + 2 * p + 1))
SS = 172
for t in range(2):
    a('%s %s, %s, %s, 0' % (MFMA, vr(SS + 8 * t), vr(KF + 4 * t), vr(QF + 4 * t)))
    a('%s %s, %s, %s, 0' % (MFMA, vr(SS + 8 * t + 4), vr(KF + 4 * t + 4), vr(QF + 4 * t)))
a('s_waitcnt lgkmcnt(0)')
for t in range(3):
    for d in range(2):
        r = AV + (t * 2 + d) * 4
        for i in range(4):
            a('v_fma_f32 v%d, -v%d, v%d, v%d' % (r + i, MROW + 4 * t + i, CSQ + 16 + d, r + i))
        for p in range(2):
            a('v_cvt_pk_bf16_f32 v%d, v%d, v%d' % (VF + 6 * d + 2 * t + p, r + 2 * p, r + 2 * p + 1))
SCALE = (28.0 ** -0.5) * 1.4426950408889634
MX, CC, LS, TMPR = 190, 192, 194, 196
PF = 200
a('v_mov_b32 v198, 0xff800000')
seq = [[], []]
for t in range(2):
    s = SS + 8 * t
    q = seq[t]
    for e in range(8):
        q.append('v_mul_f32 v%d, v%d, v%d' % (s + e, s + e, RROW + 4 * (t + (e >> 2)) + (e & 3)))
    for e in range(8):
        mk = (sM0 if t == 0 else sM1) + 2 * e if e < 4 else sM2 + 2 * (e - 4)
        q.append('v_cndmask_b32 v%d, v198, v%d, %s' % (s + e, s + e, sp(mk)))
    q.append('v_max3_f32 v%d, v%d, v%d, v%d' % (MX + t, s, s + 1, s + 2))
    q.append('v_max3_f32 v%d, v%d, v%d, v%d' % (MX + t, MX + t, s + 3, s + 4))
    q.append('v_max3_f32 v%d, v%d, v%d, v%d' % (MX + t, MX + t, s + 5, s + 6))
    q.append('v_max_f32 v%d, v%d, v%d' % (MX + t, MX + t, s + 7))
    q += xg_reduce(MX + t, TMPR + t, 'v_max_f32')
    q.append('v_mul_f32 v%d, %s, v%d' % (CC + t, f2h(SCALE), SR + t + 1))
    q.append('v_mul_f32 v%d, v%d, v%d' % (MX + t, MX + t, CC + t))
    for e in range(8):
        q.append('v_fma_f32 v%d, v%d, v%d, -v%d' % (s + e, s + e, CC + t, MX + t))
    for e in range(8):
        q.append('v_exp_f32 v%d, v%d' % (s + e, s + e))
    q.append('v_add_f32 v%d, v%d, v%d' % (LS + t, s, s + 1))
    for e in range(2, 8):
        q.append('v_add_f32 v%d, v%d, v%d' % (LS + t, LS + t, s + e))
    q += xg_reduce(LS + t, TMPR + t)
    q.append('v_rcp_f32 v%d, v%d' % (LS + t, LS + t))
    for e in range(8):
        q.append('v_mul_f32 v%d, v%d, v%d' % (s + e, s + e, RROW + 4 * (t + (e >> 2)) + (e & 3)))
    for p in range(4):
        q.append('v_cvt_pk_bf16_f32 v%d, v%d, v%d' % (PF + 4 * t + p, s + 2 * p, s + 2 * p + 1))
merged = [z for xy in zip(*seq) for z in xy]
gap = len(merged) // (len(wb_loads) + 1)
for k, x in enumerate(merged):
    a(x)
    if k % gap == gap - 1 and wb_loads:
        a(wb_loads.pop(0))
assert not wb_loads
OO = 208
for t in range(2):
    for d in range(2):
        a('%s %s, %s, %s, 0' % (MFMA, vr(OO + 8 * t + 4 * d), vr(VF + 6 * d + 2 * t), vr(PF + 4 * t)))
pair_base(sA, L.O)
a('s_lshl_b32 s%d, s%d, 4' % (sB, sGT))
a('s_add_u32 s%d, s%d, s%d' % (sB, sB, sC))
a('s_lshl_b32 s%d, s%d, 10' % (sB, sB))
a('s_add_u32 s%d, s%d, s%d' % (sA, sA, sB))
for t in range(2):
    for e in range(8):
        a('v_mul_f32 v%d, v%d, v%d' % (OO + 8 * t + e, OO + 8 * t + e, LS + t))
    for p in range(4):
        a('v_cvt_pk_bf16_f32 v%d, v%d, v%d' % (PF + 4 * t + p, OO + 8 * t + 2 * p, OO + 8 * t + 2 * p + 1))
    store('buffer_store_dwordx4 %s, v1, %s, s%d offen' % (vr(PF + 4 * t), srd(S_WS), sA), sFD)
    if t == 0:
        a('s_add_u32 s%d, s%d, 16384' % (sA, sA))
pair_base(sA, L.FA)
a('s_lshl_b32 s%d, s%d, 4' % (sB, sGT))
a('s_add_u32 s%d, s%d, s%d' % (sB, sB, sC))
a('s_lshl_b32 s%d, s%d, 2' % (sB, sB))
a('s_add_u32 s%d, s%d, s%d' % (sA, sA, sB))
a('v_lshlrev_b32 v241, 6, v0')
a('v_add_u32 v241, s%d, v241' % sA)
set_flags(241, 2, sFAST)
stamp()
a('s_cmp_eq_u32 s%d, 7' % sJ)
a('s_cbranch_scc1 L_next_pair')


def wd_bases():
    a('s_lshl_b32 s%d, s%d, 2' % (sA, sJ))
    a('s_mul_i32 s%d, s%d, %d' % (sA, sA, 56 * 1024))
    a('s_mul_i32 s%d, s%d, %d' % (sB, sW, 14 * 1024))
    a('s_add_u32 s%d, s%d, s%d' % (sA, sA, sB))
    a('s_add_u32 s%d, s%d, %d' % (sO, sA, L.WD))
    quarter_offsets(4, 56 * 1024)


def wd_load(fi):
    kk, t = fi >> 2, fi & 3
    return ('buffer_load_dwordx4 %s, v1, %s, s%d offen offset:%d sc1' %
            (ar(4 * fi), srd(S_WS), sO + 4 * t + (kk >> 2), 1024 * (kk & 3)))


WD_CH = [(0, 12), (12, 56)]
BO, BACC, BRD, BTMP = 66, 130, 194, 226
a('s_cmp_eq_u32 s%d, 0' % sPAIR)
a('s_cbranch_scc0 L_b_start')
for k in range(4):
    a('v_lshlrev_b32 v236, 16, v%d' % (228 + k))
    a('v_and_b32 v237, 0xffff0000, v%d' % (228 + k))
    a('v_accvgpr_write_b32 a%d, v236' % (A_B2 + 2 * k))
    a('v_accvgpr_write_b32 a%d, v237' % (A_B2 + 2 * k + 1))
wd_bases()
for fi in range(*WD_CH[0]):
    a(wd_load(fi))
a.label('L_b_start')
CWW = 66
sCI = 41
a('s_lshr_b32 s%d, s%d, 3' % (sA, sC))
a('s_mul_i32 s%d, s%d, 7' % (sA, sA))
a('s_add_u32 s%d, s%d, s%d' % (sCI, sA, sJ))
a('s_lshl_b32 s%d, s%d, 3' % (sA, sCI))
a('s_lshl_b32 s%d, s%d, 1' % (sB, sW))
a('s_add_u32 s%d, s%d, s%d' % (sA, sA, sB))
a('s_mul_i32 s%d, s%d, %d' % (sB, sA, 14 * 1024))
a('s_add_u32 s%d, s%d, %d' % (sO, sB, L.WC))
quarter_offsets(2, 14 * 1024)


def c_wload(idx):
    u, k = idx >> 1, idx & 1
    return ('buffer_load_dwordx4 %s, v1, %s, s%d offen offset:%d sc1' %
            (vr(CWW + 4 * idx), srd(S_WS), sO + 4 * k + (u >> 2), 1024 * (u & 3)))


def red_writes(acc, tile):
    return ['ds_write_b128 v248, %s offset:%d' % (vr(acc + 4 * t), (tile >> 1) * 32768 + (tile & 1) * 4096 + t * 1024)
            for t in range(4)]


def red_reads(st, rd):
    return ['ds_read_b128 %s, v249 offset:%d' % (vr(rd + (b * 2 + k) * 4), st * 32768 + b * 8192 + k * 1024)
            for b in range(4) for k in range(2)]


def add8(dst, x, y, packed):
    if packed:
        return ['v_pk_add_f32 %s, %s, %s' % (vr(dst + e, 2), vr(x + e, 2), vr(y + e, 2)) for e in range(0, 8, 2)]
    return ['v_add_f32 v%d, v%d, v%d' % (dst + e, x + e, y + e) for e in range(8)]


def finish_pre(st, is_d, tmp):
    res = A_RES + 4 * st
    o = ['v_accvgpr_read_b32 v%d, a%d' % (tmp + 8 + p, res + p) for p in range(4)]
    for p in range(4):
        o += ['v_lshlrev_b32 v%d, 16, v%d' % (tmp + 2 * p, tmp + 8 + p),
              'v_and_b32 v%d, 0xffff0000, v%d' % (tmp + 2 * p + 1, tmp + 8 + p)]
    if is_d:
        o += ['v_accvgpr_read_b32 v%d, a%d' % (tmp + 8 + e, A_B2 + e) for e in range(8)]
        o += ['v_add_f32 v%d, v%d, v%d' % (tmp + e, tmp + e, tmp + 8 + e) for e in range(8)]
    return o


def finish_sum(st, rd, tmp, pk, packed):
    o = add8(rd, rd, rd + 8, packed) + add8(rd + 16, rd + 16, rd + 24, packed) + add8(rd, rd, rd + 16, packed)
    o += add8(tmp, tmp, rd, packed)
    o += ['v_cvt_pk_bf16_f32 v%d, v%d, v%d' % (pk + p, tmp + 2 * p, tmp + 2 * p + 1) for p in range(4)]
    o += ['v_accvgpr_write_b32 a%d, v%d' % (A_RES + 4 * st + p, pk + p) for p in range(4)]
    return o


def owner_stats(tmp, s1, t):
    a('v_pk_add_f32 %s, %s, %s' % (vr(t, 2), vr(tmp, 2), vr(tmp + 2, 2)))
    a('v_pk_add_f32 %s, %s, %s' % (vr(t + 2, 2), vr(tmp + 4, 2), vr(tmp + 6, 2)))
    a('v_pk_add_f32 %s, %s, %s' % (vr(t, 2), vr(t, 2), vr(t + 2, 2)))
    a('v_add_f32 v%d, v%d, v%d' % (s1, t, t + 1))
    a('v_pk_mul_f32 %s, %s, %s' % (vr(t, 2), vr(tmp, 2), vr(tmp, 2)))
    for e in (2, 4, 6):
        a('v_pk_fma_f32 %s, %s, %s, %s' % (vr(t, 2), vr(tmp + e, 2), vr(tmp + e, 2), vr(t, 2)))
    a('v_add_f32 v%d, v%d, v%d' % (s1 + 1, t, t + 1))
    for x, y in zip(xg_reduce(s1, t), xg_reduce(s1 + 1, t + 1)):
        a(x)
        a(y)


def red_addrs():
    a('s_lshl_b32 s%d, s%d, 13' % (sA, sW))
    a('s_add_u32 s%d, s%d, %d' % (sA, sA, L.L_R2))
    a('v_add_u32 v248, s%d, v1' % sA)
    a('s_and_b32 s%d, s%d, 1' % (sA, sW))
    a('s_lshl_b32 s%d, s%d, 11' % (sA, sA))
    a('s_lshr_b32 s%d, s%d, 1' % (sB, sW))
    a('s_lshl_b32 s%d, s%d, 12' % (sB, sB))
    a('s_add_u32 s%d, s%d, s%d' % (sA, sA, sB))
    a('s_add_u32 s%d, s%d, %d' % (sA, sA, L.L_R2))
    a('v_add_u32 v249, s%d, v1' % sA)


def publish_setup(xbase, sbase, fbase, per_pair, fsh):
    owner_index()
    a('s_mul_i32 s%d, s%d, 14' % (sCc, sB))
    a('s_add_u32 s%d, s%d, s%d' % (sCc, sCc, sA))
    a('s_lshl_b32 s%d, s%d, 10' % (sPX, sCc))
    a('s_lshl_b32 s%d, s%d, 7' % (sPS, sCc))
    a('s_lshl_b32 s%d, s%d, %d' % (sPF, sB, fsh))
    a('s_add_u32 s%d, s%d, s%d' % (sPF, sPF, sA))
    a('s_lshl_b32 s%d, s%d, 2' % (sPF, sPF))
    for dst, arr in ((sPX, xbase), (sPS, sbase), (sPF, fbase)):
        if per_pair:
            pair_base(sD, arr)
            a('s_add_u32 s%d, s%d, s%d' % (dst, dst, sD))
        else:
            a('s_add_u32 s%d, s%d, %d' % (dst, dst, arr))
    a('s_add_u32 s%d, s%d, %d' % (sPX2, sPX, 2 * 14336))


def publish_data(st, pk):
    store('buffer_store_dwordx4 %s, v1, %s, s%d offen offset:0' % (vr(pk), srd(S_WS), sPX if st == 0 else sPX2), sPC)


def publish_stats(tmps, t, s1):
    a('v_and_b32 v%d, 15, v0' % V_TOK)
    a('v_lshlrev_b32 v%d, 3, v%d' % (t + 4, V_TOK))
    for st in range(2):
        owner_stats(tmps[st], s1 + 2 * st, t)
    a('s_mov_b64 exec, 0xffff')
    store('buffer_store_dwordx2 %s, v%d, %s, s%d offen' % (vr(s1, 2), t + 4, srd(S_WS), sPS), sPC)
    a('s_add_u32 s%d, s%d, %d' % (sPS, sPS, 2 * 1792))
    store('buffer_store_dwordx2 %s, v%d, %s, s%d offen' % (vr(s1 + 2, 2), t + 4, srd(S_WS), sPS), sPC)
    a('s_mov_b64 exec, -1')


def publish_flags(lsh, between=()):
    a('v_lshlrev_b32 v241, %d, v0' % lsh)
    a('v_add_u32 v241, s%d, v241' % sPF)
    set_flags(241, 2, sPFC, V_T, between)


def run_tiles(tile_items, extras):
    for tile in range(4):
        items = tile_items(tile)
        ex = list(extras.get(tile, []))
        free = [k for k, it in enumerate(items) if k >= 3 and not it[2]]
        per = -(-len(ex) // max(1, len(free))) if ex else 0
        for k, (pre, m, post) in enumerate(items):
            for x in pre:
                x()
            a(m)
            if post:
                post()
            elif k >= 3:
                for _ in range(per):
                    if ex:
                        x = ex.pop(0)
                        if callable(x):
                            x()
                        else:
                            a(x)
        assert not ex


pair_base(sA, L.FA)
a('s_lshl_b32 s%d, s%d, 8' % (sB, sG))
a('s_add_u32 s%d, s%d, s%d' % (sA, sA, sB))
a('v_lshl_add_u32 v240, v0, 2, s%d' % sA)
a('s_lshl_b32 s%d, s%d, 2' % (sB, sW))
a('s_lshl_b32 s%d, 0x000f000f, s%d' % (sMK, sB))
a('s_mov_b32 s%d, s%d' % (sMK + 1, sMK))
red_addrs()
publish_setup(L.XB, L.SB, L.FB, True, 4)
a('s_mov_b32 s%d, s%d' % (sPC, sFD))
a('s_mov_b32 s%d, s%d' % (sPFC, sFAST))
pair_base(sA, L.O)
a('s_lshl_b32 s%d, s%d, 6' % (sB, sG))
a('s_lshl_b32 s%d, s%d, 2' % (sCc, sW))
a('s_add_u32 s%d, s%d, s%d' % (sB, sB, sCc))
a('s_lshl_b32 s%d, s%d, 10' % (sB, sB))
a('s_add_u32 s20, s%d, s%d' % (sA, sB))
for t in range(1, 4):
    a('s_add_u32 s%d, s20, %d' % (20 + t, 16384 * t))
poll(240)
stamp()


def b_oload(tile, i):
    return 'buffer_load_dwordx4 %s, v1, %s, s%d offen offset:%d sc1' % (vr(BO + (tile * 4 + i) * 4), srd(S_WS), 20 + tile, 1024 * i)


om = {}
for tile in range(2):
    for i in range(4):
        a(b_oload(tile, i))
        om[(tile, i)] = a.vm_mark()


def b_tile(tile):
    items = []
    for i in range(4):
        for t in range(4):
            r = BACC + (tile * 4 + t) * 4
            pre = [(lambda tl=tile, ii=i: a.wait_vm(om[(tl, ii)]))] if t == 0 else []
            post = None
            if tile < 2 and t == 1:
                def post(tl=tile + 2, ii=i):
                    a(b_oload(tl, ii))
                    om[(tl, ii)] = a.vm_mark()
            if tile >= 2 and t == 1:
                def post(idx=4 * (tile - 2) + i):
                    a(c_wload(idx))
            items.append((pre, '%s %s, %s, %s, %s' % (MFMA, vr(r), vr(BW + (i * 4 + t) * 4), vr(BO + (tile * 4 + i) * 4),
                                                      '0' if i == 0 else vr(r)), post))
    return items


BT0, BT1, BPK = 226, 2, 18
run_tiles(b_tile, {1: red_writes(BACC, 0), 2: red_writes(BACC + 16, 1), 3: red_writes(BACC + 32, 2)})
stamp2()
for x in red_writes(BACC + 48, 3):
    a(x)
for x in finish_pre(0, False, BT0) + finish_pre(1, False, BT1):
    a(x)
a('s_waitcnt lgkmcnt(0)')
a('s_barrier')
stamp2()
BRD1 = 162
for x in red_reads(0, BRD) + red_reads(1, BRD1):
    a(x)
a('s_waitcnt lgkmcnt(8)')
for x in finish_sum(0, BRD, BT0, BPK, True):
    a(x)
publish_data(0, BPK)
a('s_waitcnt lgkmcnt(0)')
for x in finish_sum(1, BRD1, BT1, BPK + 4, True):
    a(x)
publish_data(1, BPK + 4)
stamp2()
publish_stats([BT0, BT1], 36, 32)
publish_flags(7, [c_wload(i) for i in range(8, 16)])
stamp()

for i in range(16, 22):
    a(c_wload(i))
CA = [2, 10]
XF, NXF = 18, 8
GTMP, GH = 50, 58
CCS, CB1, CB1R = 178, 186, 194
CSTR = 198
CMR = 214
VGA = 218
a('v_lshrrev_b32 v%d, 4, v0' % V_G)
a('v_and_b32 v%d, 15, v0' % V_TOK)
a('s_lshl_b32 s%d, s%d, 3' % (sA, sCI))
a('s_lshl_b32 s%d, s%d, 1' % (sB, sW))
a('s_add_u32 s%d, s%d, s%d' % (sA, sA, sB))
a('s_lshl_b32 s%d, s%d, 6' % (sB, sA))
a('s_add_u32 s%d, s%d, %d' % (sB, sB, L.CSC))
a('v_lshlrev_b32 v248, 4, v%d' % V_G)
for k in range(2):
    a('buffer_load_dwordx4 %s, v248, %s, s%d offen offset:%d sc1' % (vr(CCS + 4 * k), srd(S_WS), sB, 64 * k))
a('s_lshl_b32 s%d, s%d, 5' % (sB, sA))
a('v_lshlrev_b32 v248, 3, v%d' % V_G)
for k in range(2):
    a('buffer_load_dwordx2 %s, v248, %s, s%d offen offset:%d' % (vr(CB1R + 2 * k, 2), srd(S_B1), sB, 32 * k))
pair_base(sA, L.FB)
a('s_lshl_b32 s%d, s%d, 9' % (sB, sS))
a('s_add_u32 s%d, s%d, s%d' % (sA, sA, sB))
a('v_lshl_add_u32 v240, v0, 2, s%d' % sA)
a('s_mov_b32 s%d, 0x3fff3fff' % sMK)
a('s_mov_b32 s%d, 0x3fff3fff' % (sMK + 1))
pair_base(20, L.XB)
a('s_mul_i32 s%d, s%d, %d' % (sB, sS, 8 * 14336))
a('s_add_u32 s20, s20, s%d' % sB)
a('s_lshl_b32 s%d, s%d, 12' % (sB, sW))
a('s_add_u32 s20, s20, s%d' % sB)
a('s_add_u32 s21, s%d, %d' % (sB, L.L_R2))
pair_base(22, L.SB)
a('s_lshl_b32 s%d, s%d, 3' % (sB, sS))
a('s_add_u32 s%d, s%d, s%d' % (sB, sB, sW))
a('s_mul_i32 s%d, s%d, 1792' % (sB, sB))
a('s_add_u32 s22, s22, s%d' % sB)
a('s_add_u32 s23, s22, %d' % (4 * 1792))
pair_base(32, L.H)
a('s_mul_i32 s%d, s%d, %d' % (sB, sS, 8 * 56 * 1024))
a('s_add_u32 s32, s32, s%d' % sB)
a('s_lshl_b32 s%d, s%d, 2' % (sB, sCI))
a('s_add_u32 s%d, s%d, s%d' % (sB, sB, sW))
a('s_lshl_b32 s%d, s%d, 10' % (sCc, sB))
a('s_add_u32 s32, s32, s%d' % sCc)
pair_base(33, L.FC)
a('s_lshl_b32 s%d, s%d, 11' % (sCc, sS))
a('s_add_u32 s33, s33, s%d' % sCc)
a('s_lshl_b32 s%d, s%d, 2' % (sB, sB))
a('s_add_u32 s33, s33, s%d' % sB)
a('v_mov_b32 v241, s33')
a('v_mov_b32 v242, 0x%x' % INV)
a('v_cmp_eq_u32 vcc, 0, v0')
a('v_cndmask_b32 v241, v242, v241, vcc')
a('v_lshlrev_b32 v238, 3, v%d' % V_TOK)
a('v_lshl_add_u32 v238, v%d, 7, v238' % V_G)
a('v_mov_b32 v242, 0x%x' % INV)
a('v_cmp_lt_u32 vcc, 1, v%d' % V_G)
a('v_cndmask_b32 v239, 0, v242, vcc')
a('v_or_b32 v239, v239, v238')
a('v_add_u32 v252, %d, v1' % L.L_R2)
a('v_lshlrev_b32 v246, 3, v%d' % V_TOK)
a('v_add_u32 v246, %d, v246' % L.L_STC)
GA = 2.0 * 0.7978845608028654 * 1.4426950408889634
GB = GA * 0.044715
a('v_mov_b32 v%d, %s' % (VGA, f2h(-GA)))
a('v_mov_b32 v%d, %s' % (VGA + 1, f2h(-GA)))
a('s_mov_b32 s34, %s' % f2h(-GB))
a('s_mov_b32 s35, %s' % f2h(-GB))
wd_bases_hi = True
poll(240, 256)
stamp()


def c_dma_setup(t):
    return ['s_add_u32 s36, s20, %d' % (t * 14336), 's_add_u32 m0, s21, %d' % ((t & 3) * 16384)]


def c_dma(t, i):
    return 'buffer_load_dwordx4 v1, %s, s36 offen offset:%d sc1 lds' % (srd(S_WS), 1024 * i)


dm = {}
for x in c_dma_setup(0) + [c_dma(0, i) for i in range(4)]:
    a(x)
dm[0] = a.vm_mark()
wlate = {}
for i in range(22, 28):
    a(c_wload(i))
    wlate[i >> 1] = a.vm_mark()
for tt in range(2):
    for i in range(4):
        a('buffer_load_dwordx2 %s, v%d, %s, s%d offen offset:%d sc1' %
          (vr(CSTR + 8 * tt + 2 * i, 2), 239 if i == 3 else 238, srd(S_WS), 22 + tt, 512 * i))
cst_mark = a.vm_mark()
for x in c_dma_setup(1) + [c_dma(1, i) for i in range(4)]:
    a(x)
dm[1] = a.vm_mark()
for k in range(2):
    for p in range(2):
        a('v_lshlrev_b32 v%d, 16, v%d' % (CB1 + 4 * k + 2 * p, CB1R + 2 * k + p))
        a('v_and_b32 v%d, 0xffff0000, v%d' % (CB1 + 4 * k + 2 * p + 1, CB1R + 2 * k + p))
wd_bases()
a.wait_vm(dm[0])
a('s_barrier')
stamp()


def c_xread(t, u):
    n = t * 14 + u
    return 'ds_read_b128 %s, v252 offset:%d' % (vr(XF + 4 * (n % NXF)), (t & 3) * 16384 + u * 1024)


def gelu_pre(t):
    z, m = CA[t & 1], CMR + 2 * (t & 1)
    P = range(0, 8, 2)
    o = ['v_pk_fma_f32 %s, %s, %s, %s op_sel_hi:[1,0,1] neg_lo:[0,1,0] neg_hi:[0,1,0]' % (vr(z + e, 2), vr(CCS + e, 2), vr(m, 2), vr(z + e, 2)) for e in P]
    o += ['v_pk_fma_f32 %s, %s, %s, %s op_sel:[0,1,0] op_sel_hi:[1,1,1]' % (vr(z + e, 2), vr(z + e, 2), vr(m, 2), vr(CB1 + e, 2)) for e in P]
    o += ['v_pk_mul_f32 %s, %s, %s' % (vr(GTMP + e, 2), vr(z + e, 2), vr(z + e, 2)) for e in P]
    o += ['v_pk_fma_f32 %s, %s, s[34:35], %s' % (vr(GTMP + e, 2), vr(GTMP + e, 2), vr(VGA, 2)) for e in P]
    o += ['v_pk_mul_f32 %s, %s, %s' % (vr(GTMP + e, 2), vr(GTMP + e, 2), vr(z + e, 2)) for e in P]
    return o


def gelu_mid():
    o = {}
    for e in range(8):
        o.setdefault(2 * e, []).append('v_exp_f32 v%d, v%d' % (GTMP + e, GTMP + e))
        o.setdefault(2 * e + 3, []).append('v_add_f32 v%d, 1.0, v%d' % (GTMP + e, GTMP + e))
    for e in range(6):
        o.setdefault(16 + 2 * e, []).append('v_rcp_f32 v%d, v%d' % (GTMP + e, GTMP + e))
    o.setdefault(25, []).append('v_rcp_f32 v%d, v%d' % (GTMP + 6, GTMP + 6))
    o.setdefault(27, []).append('v_rcp_f32 v%d, v%d' % (GTMP + 7, GTMP + 7))
    return o


def gelu_post(t):
    z, h = CA[t & 1], GH + 4 * (t & 1)
    o = ['v_pk_mul_f32 %s, %s, %s' % (vr(GTMP + e, 2), vr(GTMP + e, 2), vr(z + e, 2)) for e in range(0, 8, 2)]
    o += ['v_cvt_pk_bf16_f32 v%d, v%d, v%d' % (h + p, GTMP + 2 * p, GTMP + 2 * p + 1) for p in range(4)]
    return o


def gelu_packed(t):
    z, m, h = CA[t & 1], CMR + 2 * (t & 1), GH + 4 * (t & 1)
    P = range(0, 8, 2)
    for e in P:
        a('v_pk_fma_f32 %s, %s, %s, %s op_sel_hi:[1,0,1] neg_lo:[0,1,0] neg_hi:[0,1,0]' % (vr(z + e, 2), vr(CCS + e, 2), vr(m, 2), vr(z + e, 2)))
    for e in P:
        a('v_pk_fma_f32 %s, %s, %s, %s op_sel:[0,1,0] op_sel_hi:[1,1,1]' % (vr(z + e, 2), vr(z + e, 2), vr(m, 2), vr(CB1 + e, 2)))
    for e in P:
        a('v_pk_mul_f32 %s, %s, %s' % (vr(GTMP + e, 2), vr(z + e, 2), vr(z + e, 2)))
    for e in P:
        a('v_pk_fma_f32 %s, %s, s[34:35], %s' % (vr(GTMP + e, 2), vr(GTMP + e, 2), vr(VGA, 2)))
    for e in P:
        a('v_pk_mul_f32 %s, %s, %s' % (vr(GTMP + e, 2), vr(GTMP + e, 2), vr(z + e, 2)))
    for e in range(8):
        a('v_exp_f32 v%d, v%d' % (GTMP + e, GTMP + e))
    for e in P:
        a('v_pk_add_f32 %s, %s, 1.0 op_sel_hi:[1,0]' % (vr(GTMP + e, 2), vr(GTMP + e, 2)))
    for e in range(8):
        a('v_rcp_f32 v%d, v%d' % (GTMP + e, GTMP + e))
    for e in P:
        a('v_pk_mul_f32 %s, %s, %s' % (vr(GTMP + e, 2), vr(GTMP + e, 2), vr(z + e, 2)))
    for p in range(4):
        a('v_cvt_pk_bf16_f32 v%d, v%d, v%d' % (h + p, GTMP + 2 * p, GTMP + 2 * p + 1))


hmk, fmk = {}, {}


def h_store(t):
    def f():
        a('s_add_u32 s36, s32, %d' % (t * 56 * 1024))
        store('buffer_store_dwordx4 %s, v1, %s, s36 offen' % (vr(GH + 4 * (t & 1)), srd(S_WS)), sFH)
        hmk[t] = a.vm_mark()
    return f


def h_flag(t):
    def f():
        a.wait_vm(hmk[t])
        store('buffer_store_dword v%d, v241, %s, 0 offen offset:%d' % (V_T, srd(S_WS), 256 * t), sFAST)
    return f


def wd_block(fis, wave):
    def f():
        skip = newlab('L_wd')
        a('s_cmp_eq_u32 s24, %d' % wave)
        a('s_cbranch_scc0 %s' % skip)
        for fi in fis:
            a(wd_load(fi))
            a.vm_issued -= 1
        a.label(skip)
    return f


cst_fill = []
for tt in range(2):
    r = CSTR + 8 * tt
    for c_ in range(2):
        cst_fill += ['v_add_f32 v%d, v%d, v%d' % (r + c_, r + c_, r + 2 + c_),
                     'v_add_f32 v%d, v%d, v%d' % (r + 4 + c_, r + 4 + c_, r + 6 + c_),
                     'v_add_f32 v%d, v%d, v%d' % (r + c_, r + c_, r + 4 + c_)]
    cst_fill += xg_reduce(r, r + 2) + xg_reduce(r + 1, r + 3) + stats_finish(r, r + 1, r + 2, True)
a('s_lshl_b32 s%d, s%d, 7' % (sA, sW))
a('v_add_u32 v247, s%d, v246' % sA)
cst_fill += ['ds_write_b64 v247, %s' % vr(CSTR, 2), 'ds_write_b64 v247, %s offset:512' % vr(CSTR + 8, 2)]
LOOKX = 6


def emit_c_loop(wd_list):
    for u in range(LOOKX):
        a(c_xread(0, u))
    for t in range(8):
        nonvec = {}

        def put(k, x):
            nonvec.setdefault(k, []).append(x)
        for u in range(14):
            n = t * 14 + u
            m = n + LOOKX
            if m < 8 * 14:
                put(2 * u + 1, c_xread(m // 14, m % 14))
            if u % 2 == 1 and n + 1 < 8 * 14:
                put(2 * u + 1, 's_waitcnt lgkmcnt(%d)' % min(LOOKX - 2, 8 * 14 - 1 - (n + 2)))
        if t < 7:
            nonvec[14] = [('bar', t + 1)] + nonvec.get(14, [])
        if t + 2 < 8:
            su = c_dma_setup(t + 2)
            put(0, su[0])
            put(0, su[1])
            for i in range(4):
                put(2 + 2 * i, ('dma', t + 2, i))
        if t >= 3:
            put(20, ('call', h_flag(t - 3)))
        if t < 7:
            for k in (10, 12, 16, 18, 22, 24, 26):
                if wd_list:
                    put(k, wd_load(wd_list.pop(0)))
        if t > 0:
            put(17, 'ds_read_b64 %s, v246 offset:%d' % (vr(CMR + 2 * (t & 1), 2), 128 * t))
        valu = gelu_mid() if t >= 1 else {}
        if t >= 2:
            for x in gelu_post(t - 2):
                a(x)
            h_store(t - 2)()
        if t >= 1:
            for x in gelu_pre(t - 1):
                a(x)
        fill = list(cst_fill) if t == 0 else []
        first = 8
        fi = 0
        for k in range(28):
            u, kk = k >> 1, k & 1
            n = t * 14 + u
            if t == 0 and k == 0:
                a('s_waitcnt lgkmcnt(%d)' % (LOOKX - 2))
            if t == 0 and kk == 0 and u in wlate:
                a.wait_vm(wlate[u])
            if t == 0 and k == first:
                a.wait_vm(cst_mark)
            r = CA[t & 1] + 4 * kk
            a('%s %s, %s, %s, %s' % (MFMA, vr(r), vr(CWW + 4 * (2 * u + kk)), vr(XF + 4 * (n % NXF)), '0' if u == 0 else vr(r)))
            for it in nonvec.get(k, []):
                if isinstance(it, str):
                    a(it)
                elif it[0] == 'bar':
                    a.wait_vm(dm[it[1]])
                    a('s_barrier')
                elif it[0] == 'dma':
                    a(c_dma(it[1], it[2]))
                    dm[it[1]] = a.vm_mark()
                elif it[0] == 'call':
                    it[1]()
            for x in valu.get(k, []):
                a(x)
            if fill and k >= first:
                want = -(-(len(fill)) * (k - first + 1) // (28 - first))
                while fi < want:
                    a(fill[fi])
                    fi += 1
        assert fi == len(fill)
        if t == 0:
            a('s_waitcnt lgkmcnt(0)')
            a('s_barrier')
            a('ds_read_b64 %s, v246 offset:0' % vr(CMR, 2))
            a('s_waitcnt lgkmcnt(0)')
    assert not wd_list


n_before = a.vm_issued
dm_init = dict(dm)
a('s_cmp_eq_u32 s%d, 0' % sPAIR)
a('s_cbranch_scc0 L_c_loop1')
emit_c_loop(list(range(*WD_CH[1])))
a('s_branch L_c_done')
a.label('L_c_loop1')
extra = a.vm_issued - n_before
a.vm_issued = n_before
dm.clear()
dm.update(dm_init)
emit_c_loop([])
a.label('L_c_done')
stamp()
pair_base(sA, L.FC)
a('s_lshl_b32 s%d, s%d, 10' % (sB, sG))
a('s_add_u32 s%d, s%d, s%d' % (sA, sA, sB))
a('s_mul_i32 s%d, s%d, 56' % (sB, sW))
a('s_add_u32 s%d, s%d, s%d' % (sA, sA, sB))
a('v_lshl_add_u32 v243, v0, 2, s%d' % sA)
a('s_mov_b32 s%d, 0x3fff' % sMK2)
a('s_mov_b32 s%d, 0' % (sMK2 + 1))
d0_mark = early_issue(244, 243)
for x in gelu_post(6):
    a(x)
h_store(6)()
a('s_waitcnt lgkmcnt(0)')
gelu_packed(7)
h_flag(5)()
h_store(7)()
stamp()

DH, DACC, DRD, DTMP = 2, 114, 178, 210
DRING, DLOOK = 16, 10
red_addrs()
publish_setup(L.XA[1], L.SA[1], L.FX[1], False, 5)
a('s_and_b32 s%d, s%d, 1' % (sA, sG))
a('s_lshr_b32 s%d, s%d, 1' % (sB, sW))
a('s_and_b32 s%d, s%d, s%d' % (sA, sA, sB))
a('s_xor_b32 s%d, s%d, 1' % (sA, sA))
a('s_and_b32 s%d, s%d, s%d' % (sPC, sFD, sA))
a('s_and_b32 s%d, s%d, s%d' % (sPFC, sFAST, sA))
pair_base(sA, L.H)
a('s_mul_i32 s%d, s%d, %d' % (sB, sG, 4 * 56 * 1024))
a('s_add_u32 s%d, s%d, s%d' % (sA, sA, sB))
a('s_mul_i32 s%d, s%d, %d' % (sB, sW, 14 * 1024))
a('s_add_u32 s%d, s%d, s%d' % (sO, sA, sB))
quarter_offsets(4, 56 * 1024)
a('s_cmp_eq_u32 s%d, 0' % sPAIR)
a('s_cbranch_scc1 L_d_nout')
owner_index()
a('s_mul_i32 s%d, s%d, 14336' % (sPX, sB))
a('s_lshl_b32 s%d, s%d, 6' % (sA, sA))
a('s_add_u32 s%d, s%d, s%d' % (sPX, sPX, sA))
a('s_add_u32 s%d, s%d, %d' % (sPX2, sPX, 2 * 14336))
a.label('L_d_nout')
a('v_and_b32 v%d, 15, v0' % V_TOK)
a('v_lshrrev_b32 v%d, 4, v0' % V_G)
a('v_mul_u32_u24 v242, 896, v%d' % V_TOK)
a('v_lshl_add_u32 v242, v%d, 3, v242' % V_G)
early_check(244, 243, d0_mark)
stamp()


def d_hload(q):
    tile, kk = divmod(q, 14)
    return ('buffer_load_dwordx4 %s, v1, %s, s%d offen offset:%d sc1' %
            (vr(DH + (q % DRING) * 4), srd(S_WS), sO + 4 * tile + (kk >> 2), 1024 * (kk & 3)))


hm = {}
dmk = {}
for q in range(DLOOK):
    a(d_hload(q))
    hm[q] = a.vm_mark()
    if q == 6:
        dmk[1] = early_issue(244, 243, 256)
a('s_barrier')


def d_tile(tile):
    items = []
    for kk in range(14):
        q = tile * 14 + kk
        for t in range(4):
            r = DACC + (tile * 4 + t) * 4
            pre = [(lambda qq=q: a.wait_vm(hm[qq]))] if t == 0 else []
            if t == 0 and q in (3, 9):
                pre.append(h_flag({3: 6, 9: 7}[q]))
            post = None
            if t == 0 and q + DLOOK < 56:
                def post(qq=q + DLOOK):
                    if qq % 14 == 0:
                        early_check(244, 243, dmk[qq // 14], 256 * (qq // 14))
                    a(d_hload(qq))
                    hm[qq] = a.vm_mark()
                    if qq % 14 == 6 and qq // 14 < 3:
                        dmk[qq // 14 + 1] = early_issue(244, 243, 256 * (qq // 14 + 1))
            items.append((pre, '%s %s, %s, %s, %s' % (MFMA, vr(r), ar((kk * 4 + t) * 4), vr(DH + (q % DRING) * 4),
                                                      '0' if kk == 0 else vr(r)), post))
    return items


def d_out_store(st, pk):
    a('buffer_store_dwordx2 %s, v242, %s, s%d offen %s' % (vr(pk, 2), srd(S_OUT), sPX if st == 0 else sPX2, OUTSC))
    a('buffer_store_dwordx2 %s, v242, %s, s%d offen offset:32 %s' % (vr(pk + 2, 2), srd(S_OUT), sPX if st == 0 else sPX2, OUTSC))


def d_store(st, pk):
    fin, done = newlab('L_dfin'), newlab('L_ddone')
    a('s_cmp_eq_u32 s%d, 0' % sPAIR)
    a('s_cbranch_scc0 %s' % fin)
    publish_data(st, pk)
    a('s_branch %s' % done)
    a.label(fin)
    n = a.vm_issued
    d_out_store(st, pk)
    a.vm_issued = n
    a.label(done)


DT0, DT1, DPK = 210, 226, 66
stage0 = [lambda: (a('s_waitcnt lgkmcnt(0)'), a('s_barrier'))] + red_reads(0, DRD) + finish_pre(0, True, DT0)
stage0 += [lambda: a('s_waitcnt lgkmcnt(0)')] + finish_sum(0, DRD, DT0, DPK, False) + [lambda: d_store(0, DPK)]
run_tiles(d_tile, {1: red_writes(DACC, 0), 2: red_writes(DACC + 16, 1), 3: red_writes(DACC + 32, 2) + stage0})
stamp2()
for x in red_writes(DACC + 48, 3):
    a(x)
for x in finish_pre(1, True, DT1):
    a(x)
a('s_waitcnt lgkmcnt(0)')
a('s_barrier')
stamp2()
for x in red_reads(1, DRD):
    a(x)
a('s_waitcnt lgkmcnt(0)')
for x in finish_sum(1, DRD, DT1, DPK + 4, True):
    a(x)
d_store(1, DPK + 4)
stamp()
a('s_cmp_eq_u32 s%d, 0' % sPAIR)
a('s_cbranch_scc0 L_next_pair')
publish_flags(8)
publish_stats([DT0, DT1], 88, 84)
a('s_waitcnt vmcnt(0)')
stats_flags(L.FSA - L.FX[1], 8)
a.label('L_next_pair')
stamp()
a('s_add_u32 s%d, s%d, 1' % (sPAIR, sPAIR))
a('s_cmp_lt_u32 s%d, 2' % sPAIR)
a('s_cbranch_scc1 L_pair')

a('s_cmp_eq_u32 s2, 0')
a('s_cbranch_scc0 L_noepoch')
a('s_cmp_eq_u32 s%d, 0' % sW)
a('s_cbranch_scc0 L_noepoch')
a('buffer_load_dword v2, off, %s, 0 sc1' % srd(S_WS))
a('s_waitcnt vmcnt(0)')
a('v_add_u32 v2, 1, v2')
a('s_mov_b64 exec, 1')
a('buffer_store_dword v2, off, %s, 0 sc1' % srd(S_WS))
a('s_mov_b64 exec, -1')
a.label('L_noepoch')
if PAD:
    a.label('L_padspin')
    a('s_memrealtime s[34:35]')
    a('s_waitcnt lgkmcnt(0)')
    a('s_sub_u32 s34, s34, s0')
    a('s_cmp_lt_u32 s34, %d' % PAD[0])
    a('s_cbranch_scc1 L_padspin')
if DBG:
    a('s_memtime s[32:33]')
    a('s_memrealtime s[34:35]')
    a('s_waitcnt lgkmcnt(0)')
    a('s_sub_u32 s32, s32, s26')
    a('s_sub_u32 s34, s34, s0')
    build_srd(S_TMP, P_DBG, 256)
    a('v_mov_b32 v2, s32')
    a('v_mov_b32 v3, s34')
    a('v_mov_b32 v4, s%d' % sFAST)
    a('v_mov_b32 v5, s%d' % sXCC)
    a('s_lshr_b32 s%d, s2, 6' % sA)
    a('s_lshl_b32 s%d, s%d, 4' % (sA, sA))
    a('s_and_b32 s%d, s2, 63' % sB)
    a('s_or_b32 s%d, s%d, s%d' % (sB, sB, sW))
    a('s_cmp_eq_u32 s%d, 0' % sB)
    a('s_cselect_b32 s%d, s%d, 0x%x' % (sA, sA, INV))
    a('v_mov_b32 v6, s%d' % sA)
    a('s_mov_b64 exec, 1')
    a('buffer_store_dwordx4 v[2:5], v6, %s, 0 offen' % srd(S_TMP))
    a('s_mov_b64 exec, -1')
if DIAG:
    stamp()
    a('s_mov_b32 s%d, 63' % sSTI)
    a('s_lshl_b64 exec, 1, s%d' % sSTI)
    a('v_mov_b32 v%d, s%d' % (V_STAMP, sERR))
    a('s_mov_b32 s%d, 62' % sSTI)
    a('s_lshl_b64 exec, 1, s%d' % sSTI)
    a('v_mov_b32 v%d, s%d' % (V_STAMP, sFAST))
    a('s_mov_b64 exec, -1')
    a('s_lshl_b32 s%d, s2, 2' % sA)
    a('s_add_u32 s%d, s%d, s%d' % (sA, sA, sW))
    a('s_lshl_b32 s%d, s%d, 8' % (sA, sA))
    a('v_lshlrev_b32 v2, 2, v0')
    a('s_add_u32 s%d, s%d, %d' % (sA, sA, L.WS_USED))
    a('s_mov_b32 s%d, 0x%x' % (S_WS + 2, L.WS_USED + 256 * 1024))
    a('buffer_store_dword v%d, v2, %s, s%d offen' % (V_STAMP, srd(S_WS), sA))
    if DBGST:
        build_srd(S_TMP, P_DBG, 256)
        a('v_readfirstlane_b32 s%d, v%d' % (sA, V_STAMP))
        a('s_nop 4')
        a('v_subrev_u32 v3, s%d, v%d' % (sA, V_STAMP))
        a('s_or_b32 s%d, s2, s%d' % (sB, sW))
        a('s_cmp_eq_u32 s%d, 0' % sB)
        a('s_cselect_b32 s%d, 0, 0x%x' % (sB, INV))
        a('v_or_b32 v2, s%d, v2' % sB)
        SEL = [int(x[6:]) for x in sys.argv if x.startswith('--sel=')]
        sel = SEL[0] if SEL else 1
        a('v_subrev_u32 v2, %d, v2' % (4 * sel))
        a('buffer_store_dword v3, v2, %s, 0 offen' % srd(S_TMP))
a.label('L_end')
a('s_endpgm')

a.finalize()
body = a.text()

import os
hdr = open(os.path.join(os.path.dirname(os.path.abspath(__file__)), 'header.txt')).read()
out = hdr + '; @launch grid=(256,1,1) block=(256,1,1) lds=%d\n' % L.LDS_BYTES
out += '.amdgcn_target "amdgcn-amd-amdhsa--gfx950"\n.text\n.globl %s_kernel\n.p2align 8\n.type %s_kernel,@function\n%s_kernel:\n' % (NAME, NAME, NAME)
out += body
out += '''.section .rodata,"a"
.p2align 6
.amdhsa_kernel %s_kernel
  .amdhsa_next_free_vgpr 512
  .amdhsa_next_free_sgpr 102
  .amdhsa_accum_offset 256
  .amdhsa_group_segment_fixed_size 0
  .amdhsa_kernarg_size 88
  .amdhsa_user_sgpr_count 2
  .amdhsa_user_sgpr_kernarg_segment_ptr 1
  .amdhsa_system_sgpr_workgroup_id_x 1
.end_amdhsa_kernel
''' % NAME
sys.stdout.write(out)
```

```python
import struct
import sys
from asmlib import Asm
import layout as L

NAME = 'interleave_layers__sliding_local_dilated__mixer_channel_mlp__prompt'
DIAG = '--diag' in sys.argv
FASTMODE = ([x[7:] for x in sys.argv if x.startswith('--fast=')] + ['flags'])[0]
NOFAST = FASTMODE == 'none'
PAD = [int(x[6:]) for x in sys.argv if x.startswith('--pad=')]
DBG = '--dbg' in sys.argv or bool(PAD)
SPIN_LIMIT = 200000
OUTSC = ([x[8:] for x in sys.argv if x.startswith('--outsc=')] + [''])[0].replace('_', ' ')
SLEEP = int(([x[8:] for x in sys.argv if x.startswith('--sleep=')] + ['0'])[0])
INV = 0x80000000

a = Asm()

sXCC = 3
S_WS, S_TMP, S_B1, S_OUT = 4, 8, 12, 16
P_X, P_WQKV, P_WO, P_BX, P_W1, P_B1, P_W2, P_B2, P_OUT, P_DBG, P_WSP = 20, 22, 24, 26, 28, 30, 32, 34, 36, 38, 40
sS, sC, sG, sJ, sW, sT, sPAIR, sSPIN = 42, 43, 44, 45, 46, 47, 48, 49
sM1 = 50
sM2 = 58
sM0 = 66
sO = 74
sA, sB, sCc, sD = 90, 91, 92, 93
sMK = 94
sTS = 96
sGT = 98
sERR = 99
sSTI = 100
sFAST = 101
sFD = 27
sPFC = 26
sFH = 25


def srd(n):
    return 's[%d:%d]' % (n, n + 3)


def vr(n, k=4):
    return 'v[%d:%d]' % (n, n + k - 1)


def ar(n, k=4):
    return 'a[%d:%d]' % (n, n + k - 1)


def sp(n):
    return 's[%d:%d]' % (n, n + 1)


def f2h(x):
    return '0x%08x' % struct.unpack('<I', struct.pack('<f', x))[0]


V_T, V_STAMP = 254, 255
V_TOK, V_G = 250, 251
MFMA = 'v_mfma_f32_16x16x32_bf16'


DIAG2 = '--diag2' in sys.argv
PREF = '--pref' in sys.argv
TOUCH = '--touch' in sys.argv
DBGST = '--dbgst' in sys.argv


def stamp2():
    if DIAG2:
        stamp()


def stamp():
    if not DIAG:
        return
    a('s_memtime %s' % sp(sTS))
    a('s_waitcnt lgkmcnt(0)')
    a('s_lshl_b64 exec, 1, s%d' % sSTI)
    a('v_mov_b32 v%d, s%d' % (V_STAMP, sTS))
    a('s_mov_b64 exec, -1')
    a('s_add_u32 s%d, s%d, 1' % (sSTI, sSTI))


lab_no = [0]


def newlab(p):
    lab_no[0] += 1
    return '%s_%d' % (p, lab_no[0])


def build_srd(dst, ptr, nbytes):
    a('s_mov_b32 s%d, s%d' % (dst, ptr))
    a('s_and_b32 s%d, s%d, 0xffff' % (dst + 1, ptr + 1))
    a('s_mov_b32 s%d, 0x%x' % (dst + 2, nbytes))
    a('s_mov_b32 s%d, 0x20000' % (dst + 3))


def poll(voff, off2=None):
    lab, done = newlab('L_poll'), newlab('L_polldone')
    a('s_mov_b64 exec, %s' % sp(sMK))
    a('s_mov_b32 s%d, 0' % sSPIN)
    a.label(lab)
    a('buffer_load_dword v253, v%d, %s, 0 offen sc1' % (voff, srd(S_WS)))
    if off2 is not None:
        a('buffer_load_dword v245, v%d, %s, 0 offen offset:%d sc1' % (voff, srd(S_WS), off2))
    a('s_waitcnt vmcnt(0)')
    if off2 is not None:
        a('v_xor_b32 v245, s%d, v245' % sT)
        a('v_xor_b32 v253, s%d, v253' % sT)
        a('v_or_b32 v253, v253, v245')
        a('v_cmp_ne_u32 vcc, 0, v253')
    else:
        a('v_cmp_ne_u32 vcc, s%d, v253' % sT)
    a('s_nop 4')
    a('s_cbranch_vccz %s' % done)
    if SLEEP:
        a('s_sleep %d' % SLEEP)
    a('s_add_u32 s%d, s%d, 1' % (sSPIN, sSPIN))
    a('s_cmp_lt_u32 s%d, %d' % (sSPIN, SPIN_LIMIT))
    a('s_cbranch_scc1 %s' % lab)
    a('s_add_u32 s%d, s%d, 1' % (sERR, sERR))
    a.label(done)
    a('s_mov_b64 exec, -1')


sMK2 = 30


def early_issue(dst, voff, off=0):
    a('s_mov_b64 exec, %s' % sp(sMK2))
    a('buffer_load_dword v%d, v%d, %s, 0 offen offset:%d sc1' % (dst, voff, srd(S_WS), off))
    a('s_mov_b64 exec, -1')
    return a.vm_mark()


def early_check(dst, voff, mark, off=0):
    ok = newlab('L_early')
    a.wait_vm(mark)
    a('s_mov_b64 exec, %s' % sp(sMK2))
    a('v_cmp_ne_u32 vcc, s%d, v%d' % (sT, dst))
    a('s_mov_b64 exec, -1')
    a('s_nop 2')
    a('s_cbranch_vccz %s' % ok)
    a('s_mov_b64 %s, %s' % (sp(sMK), sp(sMK2)))
    n = a.vm_issued
    if off:
        a('v_add_u32 v253, %d, v%d' % (off, voff))
        a('v_mov_b32 v%d, v253' % dst)
        poll(dst)
    else:
        poll(voff)
    a.vm_issued = n
    a.label(ok)


def store(fmt, cond=None):
    if cond is None or NOFAST or (FASTMODE == 'flags' and cond in (sFD, sFH, sPC)):
        a(fmt + ' sc1')
        return
    slow, done = newlab('L_slow'), newlab('L_st')
    a('s_cmp_eq_u32 s%d, 0' % cond)
    a('s_cbranch_scc1 %s' % slow)
    a(fmt)
    a('s_branch %s' % done)
    a.label(slow)
    a(fmt + ' sc1')
    a.vm_issued -= 1
    a.label(done)


def set_flags(voff, nlanes, cond=None, val=V_T, between=()):
    mark = a.vm_mark()
    for x in between:
        a(x)
    a.wait_vm(mark)
    a('s_mov_b64 exec, %d' % ((1 << nlanes) - 1))
    store('buffer_store_dword v%d, v%d, %s, 0 offen' % (val, voff, srd(S_WS)), cond)
    a('s_mov_b64 exec, -1')


def xg_reduce(x, t, op='v_add_f32'):
    return ['v_mov_b32 v%d, v%d' % (t, x),
            'v_permlane32_swap_b32 v%d, v%d' % (x, t),
            '%s v%d, v%d, v%d' % (op, x, x, t),
            'v_mov_b32 v%d, v%d' % (t, x),
            'v_permlane16_swap_b32 v%d, v%d' % (x, t),
            '%s v%d, v%d, v%d' % (op, x, x, t)]


EPS = 1e-5


def stats_finish(s1, s2, t, double_ln):
    o = ['v_mul_f32 v%d, %s, v%d' % (s1, f2h(1.0 / 448), s1),
         'v_mul_f32 v%d, %s, v%d' % (s2, f2h(1.0 / 448), s2),
         'v_fma_f32 v%d, -v%d, v%d, v%d' % (s2, s1, s1, s2),
         'v_max_f32 v%d, 0, v%d' % (s2, s2),
         'v_add_f32 v%d, %s, v%d' % (t, f2h(EPS), s2),
         'v_rsq_f32 v%d, v%d' % (t, t)]
    if not double_ln:
        o += ['v_mov_b32 v%d, v%d' % (s2, t)]
    else:
        o += ['v_mul_f32 v%d, v%d, v%d' % (s2, s2, t),
              'v_fmaak_f32 v%d, v%d, v%d, %s' % (s2, s2, t, f2h(EPS)),
              'v_rsq_f32 v%d, v%d' % (s2, s2),
              'v_mul_f32 v%d, v%d, v%d' % (s2, s2, t)]
    return o


def pair_base(dst, arr):
    a('s_mul_i32 s%d, s%d, %d' % (dst, sPAIR, arr[1] - arr[0]))
    a('s_add_u32 s%d, s%d, %d' % (dst, dst, arr[0]))


def quarter_offsets(n, stride):
    for t in range(n):
        if t:
            a('s_add_u32 s%d, s%d, %d' % (sO + 4 * t, sO + 4 * (t - 1), stride))
        for q in range(1, 4):
            a('s_add_u32 s%d, s%d, %d' % (sO + 4 * t + q, sO + 4 * t, 4096 * q))


sPX, sPS, sPF, sPC, sPX2 = 36, 37, 28, 29, 33


def stats_flags(delta, lsh):
    a('v_lshlrev_b32 v241, %d, v0' % lsh)
    a('s_add_u32 s%d, s%d, %d' % (sA, sPF, delta))
    a('v_add_u32 v241, s%d, v241' % sA)
    a('s_mov_b64 exec, 3')
    store('buffer_store_dword v%d, v241, %s, 0 offen' % (V_T, srd(S_WS)), sPFC)
    a('s_mov_b64 exec, -1')


a('s_cmp_ge_u32 s2, 256')
a('s_cbranch_scc1 L_end')
a('s_load_dwordx16 s[20:35], s[0:1], 0')
a('s_load_dwordx4 s[36:39], s[0:1], 64')
a('s_load_dwordx2 s[40:41], s[0:1], 80')
a('s_getreg_b32 s%d, hwreg(HW_REG_XCC_ID, 0, 4)' % sXCC)
a('s_and_b32 s%d, s2, 7' % sA)
a('s_lshr_b32 s%d, s2, 3' % sB)
a('s_lshr_b32 s%d, s%d, 4' % (sCc, sB))
a('s_lshl_b32 s%d, s%d, 1' % (sS, sA))
a('s_add_u32 s%d, s%d, s%d' % (sS, sS, sCc))
a('s_and_b32 s%d, s%d, 15' % (sC, sB))
a('s_lshr_b32 s%d, s%d, 3' % (sA, sC))
a('s_lshl_b32 s%d, s%d, 1' % (sG, sS))
a('s_add_u32 s%d, s%d, s%d' % (sG, sG, sA))
a('s_and_b32 s%d, s%d, 7' % (sJ, sC))
a('s_mov_b32 s%d, 0' % sERR)
if PREF:
    a('s_getpc_b64 s[96:97]')
    a.label('L_pc')
    a('s_lshl_b32 s%d, s%d, 11' % (sA, sB))
    a('v_lshlrev_b32 v3, 3, v0')
    a('v_add_u32 v3, s%d, v3' % sA)
    a('v_min_u32 v3, L_end-L_pc-8, v3')
    a('global_load_dwordx2 v[252:253], v3, s[96:97]')
a('v_lshrrev_b32 v2, 6, v0')
a('v_and_b32 v0, 63, v0')
a('v_readfirstlane_b32 s%d, v2' % sW)
a('v_lshlrev_b32 v1, 4, v0')
if DIAG:
    a('v_mov_b32 v%d, 0' % V_STAMP)
    a('s_mov_b32 s%d, 0' % sSTI)
stamp()
a('v_and_b32 v%d, 15, v0' % V_TOK)
a('v_lshrrev_b32 v%d, 4, v0' % V_G)
sSTG = 40
a('s_waitcnt lgkmcnt(0)')
if DBG:
    a('s_memtime s[26:27]')
    a('s_memrealtime s[0:1]')
    a('s_waitcnt lgkmcnt(0)')
build_srd(S_WS, P_WSP, L.WS_USED)
a('buffer_load_dword v%d, off, %s, 0 sc1' % (V_T, srd(S_WS)))
a('s_lshl_b32 s%d, s%d, 14' % (sSTG, sW))
a('s_add_u32 s%d, s%d, %d' % (sSTG, sSTG, L.L_R2))

build_srd(S_TMP, P_X, 2048 * 896)
a('v_mul_u32_u24 v2, 896, v%d' % V_TOK)
a('v_lshl_add_u32 v2, v%d, 3, v2' % V_G)
a('s_lshr_b32 s%d, s%d, 1' % (sA, sC))
a('s_lshl_b32 s%d, s%d, 3' % (sB, sS))
a('s_add_u32 s%d, s%d, s%d' % (sO + 0, sA, sB))
a('s_and_b32 s%d, s%d, 1' % (sA, sC))
a('s_mul_i32 s%d, s%d, 7' % (sA, sA))
a('s_add_u32 s%d, s%d, s%d' % (sO + 1, sA, sW))
a('s_cmp_lt_u32 s%d, 3' % sW)
a('s_cselect_b32 s%d, 0, 0x%x' % (sO + 2, INV))
a('s_mul_i32 s%d, s%d, 14336' % (sA, sO + 0))
a('s_lshl_b32 s%d, s%d, 6' % (sB, sO + 1))
a('s_add_u32 s%d, s%d, s%d' % (sA, sA, sB))
a('v_or_b32 v3, s%d, v2' % (sO + 2))
a('buffer_load_dwordx2 v[10:11], v2, %s, s%d offen' % (srd(S_TMP), sA))
a('buffer_load_dwordx2 v[12:13], v2, %s, s%d offen offset:32' % (srd(S_TMP), sA))
a('buffer_load_dwordx2 v[14:15], v3, %s, s%d offen offset:256' % (srd(S_TMP), sA))
a('buffer_load_dwordx2 v[16:17], v3, %s, s%d offen offset:288' % (srd(S_TMP), sA))

build_srd(S_TMP, P_WQKV, 448 * 2688)
qMAT, qU, qINV = sO + 3, sO + 4, sO + 5
a('s_lshl_b32 s%d, s%d, 4' % (sA, sW))
a('s_add_u32 s%d, s%d, s%d' % (sA, sA, sS))
a('s_cmp_lt_u32 s%d, 42' % sA)
a('s_cselect_b32 s%d, 0, 0x%x' % (qINV, INV))
a('s_min_u32 s%d, s%d, 41' % (sA, sA))
a('s_mul_i32 s%d, s%d, 4682' % (qMAT, sA))
a('s_lshr_b32 s%d, s%d, 16' % (qMAT, qMAT))
a('s_mul_i32 s%d, s%d, 14' % (sB, qMAT))
a('s_sub_u32 s%d, s%d, s%d' % (qU, sA, sB))
a('s_mul_i32 s%d, s%d, %d' % (sA, qU, 32 * 2688))
a('s_mul_i32 s%d, s%d, 896' % (sB, qMAT))
a('s_add_u32 s%d, s%d, s%d' % (sA, sA, sB))
a('s_mul_i32 s%d, s%d, 56' % (sB, sC))
a('s_add_u32 s%d, s%d, s%d' % (sA, sA, sB))
a('v_lshrrev_b32 v4, 2, v0')
a('v_mul_u32_u24 v4, 2688, v4')
a('v_and_b32 v5, 3, v0')
a('v_lshl_add_u32 v4, v5, 4, v4')
a('v_or_b32 v4, s%d, v4' % qINV)
a('s_mov_b32 m0, s%d' % sSTG)
a('s_add_u32 s%d, s%d, %d' % (sB, sA, 16 * 2688))
a('buffer_load_dwordx4 v4, %s, s%d offen lds' % (srd(S_TMP), sA))
a('s_add_u32 m0, s%d, 1024' % sSTG)
a('s_nop 0')
a('buffer_load_dwordx4 v4, %s, s%d offen lds' % (srd(S_TMP), sB))

bINV, bDST, bSTR = 20, 21, 22
a('s_lshl_b32 s%d, s%d, 5' % (sA, sW))
a('s_add_u32 s%d, s%d, s%d' % (sA, sA, sG))
a('s_cmp_lt_u32 s%d, 72' % sA)
a('s_cselect_b32 s%d, 0, 0x%x' % (bINV, INV))
a('s_cmp_eq_u32 s%d, 7' % sJ)
a('s_cselect_b32 s%d, 0x%x, s%d' % (bINV, INV, bINV))
a('s_min_u32 s%d, s%d, 71' % (sA, sA))
a('s_min_u32 s%d, s%d, 6' % (sD, sJ))
a('s_cmp_lt_u32 s%d, 16' % sA)
a('s_cselect_b32 s%d, s%d, s%d' % (S_TMP, P_WO, P_W2))
a('s_cselect_b32 s%d, s%d, s%d' % (S_TMP + 1, P_WO + 1, P_W2 + 1))
a('s_mov_b32 s%d, 0x%x' % (S_TMP + 2, 1792 * 896))
a('s_cselect_b32 s%d, 0x%x, s%d' % (S_TMP + 2, 448 * 896, S_TMP + 2))
a('s_cselect_b32 s%d, 28, 32' % sB)
a('s_cselect_b32 s%d, 0, 16' % sCc)
a('s_mov_b32 s%d, %d' % (bSTR, 56 * 1024))
a('s_cselect_b32 s%d, %d, s%d' % (bSTR, 16 * 1024, bSTR))
a('s_mov_b32 s%d, %d' % (bDST, L.WD))
a('s_cselect_b32 s%d, %d, s%d' % (bDST, L.WB, bDST))
a('s_cselect_b32 s%d, 0x%x, 0' % (sO + 9, INV))
a('s_and_b32 s%d, s%d, 0xffff' % (S_TMP + 1, S_TMP + 1))
a('s_mov_b32 s%d, 0x20000' % (S_TMP + 3))
a('s_sub_u32 s%d, s%d, s%d' % (sA, sA, sCc))
a('s_lshl_b32 s%d, s%d, 10' % (sCc, sA))
a('s_add_u32 s%d, s%d, s%d' % (bDST, bDST, sCc))
a('s_lshl_b32 s%d, s%d, 2' % (sCc, sD))
a('s_mul_i32 s%d, s%d, s%d' % (sCc, sCc, bSTR))
a('s_add_u32 s%d, s%d, s%d' % (bDST, bDST, sCc))
a('s_mul_i32 s%d, s%d, s%d' % (sA, sA, sB))
a('s_mul_i32 s%d, s%d, 896' % (sA, sA))
a('s_lshl_b32 s%d, s%d, 7' % (sB, sD))
a('s_add_u32 s%d, s%d, s%d' % (sA, sA, sB))
a('v_lshrrev_b32 v6, 3, v0')
a('v_mul_u32_u24 v6, 896, v6')
a('v_and_b32 v5, 7, v0')
a('v_lshl_add_u32 v6, v5, 4, v6')
a('v_or_b32 v6, s%d, v6' % bINV)
a('v_cmp_lt_u32 vcc, 31, v0')
a('v_mov_b32 v7, s%d' % (sO + 9))
a('v_cndmask_b32 v7, 0, v7, vcc')
a('v_or_b32 v7, v7, v6')
for q in range(4):
    a('s_add_u32 m0, s%d, %d' % (sSTG, 2048 + 1024 * q))
    if q:
        a('s_add_u32 s%d, s%d, %d' % (sA, sA, 8 * 896))
    else:
        a('s_nop 0')
    a('buffer_load_dwordx4 v%d, %s, s%d offen lds' % (7 if q == 3 else 6, srd(S_TMP), sA))

build_srd(S_TMP, P_W1, 448 * 3584)
cINV, cNT, cI12 = 23, 24, 25
a('s_cmp_lt_u32 s%d, 16' % sG)
a('s_cselect_b32 s%d, 0, 0x%x' % (cINV, INV))
a('s_cmp_eq_u32 s%d, 7' % sJ)
a('s_cselect_b32 s%d, 0x%x, s%d' % (cINV, INV, cINV))
a('s_min_u32 s%d, s%d, 6' % (sD, sJ))
a('s_lshl_b32 s%d, s%d, 4' % (cNT, sD))
a('s_and_b32 s%d, s%d, 15' % (sA, sG))
a('s_add_u32 s%d, s%d, s%d' % (cNT, cNT, sA))
a('s_cmp_lt_u32 s%d, 2' % sW)
a('s_cselect_b32 s%d, s%d, 0x%x' % (cI12, cINV, INV))
a('v_lshrrev_b32 v8, 1, v0')
a('v_mul_u32_u24 v8, 3584, v8')
a('v_and_b32 v5, 1, v0')
a('v_lshl_add_u32 v8, v5, 4, v8')
a('v_or_b32 v9, s%d, v8' % cI12)
a('v_or_b32 v8, s%d, v8' % cINV)
a('s_lshl_b32 s%d, s%d, 5' % (sB, cNT))
for i in range(4):
    a('s_add_u32 s%d, s%d, %d' % (sA, sW, 4 * i))
    a('s_min_u32 s%d, s%d, 13' % (sA, sA))
    a('s_mul_i32 s%d, s%d, %d' % (sA, sA, 32 * 3584))
    a('s_add_u32 s%d, s%d, s%d' % (sA, sA, sB))
    a('s_add_u32 m0, s%d, %d' % (sSTG, 6144 + 1024 * i))
    a('s_nop 0')
    a('buffer_load_dwordx4 v%d, %s, s%d offen lds' % (9 if i == 3 else 8, srd(S_TMP), sA))
build_srd(S_B1, P_B1, 1792 * 2)
build_srd(S_OUT, P_OUT, 2048 * 896)
a('v_bfe_u32 v18, v0, 2, 2')
a('v_lshl_add_u32 v18, v%d, 2, v18' % V_G)
a('v_and_b32 v19, 3, v0')
a('v_lshlrev_b32 v19, 3, v19')
if TOUCH:
    a('v_lshlrev_b32 v21, 21, v0')
    a('s_mov_b64 exec, 0x1ffff')
    a('buffer_load_dword v253, v21, %s, 0 offen' % srd(S_WS))
    a('s_mov_b64 exec, -1')
    a('s_waitcnt vmcnt(9)')
else:
    a('s_waitcnt vmcnt(8)')
stamp()

a('s_mov_b32 s%d, 0x9E3779B1' % sA)
a('v_mul_lo_u32 v%d, v%d, s%d' % (V_T, V_T, sA))
a('v_add_u32 v%d, 0x7F4A7C15, v%d' % (V_T, V_T))
a('v_and_b32 v%d, -16, v%d' % (V_T, V_T))
a('v_lshl_add_u32 v20, v18, 6, v19')
a('v_add_u32 v20, s%d, v20' % sSTG)
for hf in range(2):
    a('ds_read_b64_tr_b16 %s, v20 offset:%d' % (vr(24 + 4 * hf, 2), 32 * hf))
    a('ds_read_b64_tr_b16 %s, v20 offset:%d' % (vr(26 + 4 * hf, 2), 32 * hf + 1024))
a('v_readfirstlane_b32 s%d, v%d' % (sT, V_T))
a('s_mul_i32 s%d, s%d, 14' % (sA, sO + 0))
a('s_add_u32 s%d, s%d, s%d' % (sA, sA, sO + 1))
a('s_lshl_b32 s%d, s%d, 10' % (sB, sA))
a('s_add_u32 s%d, s%d, %d' % (sB, sB, L.XA[0]))
a('v_or_b32 v3, s%d, v1' % (sO + 2))
a('buffer_store_dwordx4 v[10:13], v1, %s, s%d offen sc1' % (srd(S_WS), sB))
a('s_add_u32 s%d, s%d, 4096' % (sB, sB))
a('buffer_store_dwordx4 v[14:17], v3, %s, s%d offen sc1' % (srd(S_WS), sB))
a('v_cmp_gt_u32 vcc, 12, v%d' % V_TOK)
a('s_mul_i32 s%d, s%d, 84' % (sB, sC))
a('s_mul_i32 s%d, s%d, 28' % (sCc, qMAT))
a('s_add_u32 s%d, s%d, s%d' % (sB, sB, sCc))
a('s_add_u32 s%d, s%d, s%d' % (sB, sB, qU))
a('s_lshl_b32 s%d, s%d, 10' % (sB, sB))
a('s_add_u32 s%d, s%d, %d' % (sB, sB, L.WA))
a('v_or_b32 v4, s%d, v1' % qINV)
a('s_waitcnt lgkmcnt(0)')
for p in range(4):
    a('v_cndmask_b32 v%d, 0, v%d, vcc' % (28 + p, 28 + p))
a('buffer_store_dwordx4 v[24:27], v4, %s, s%d offen sc1' % (srd(S_WS), sB))
a('s_add_u32 s%d, s%d, %d' % (sB, sB, 14 * 1024))
a('buffer_store_dwordx4 v[28:31], v4, %s, s%d offen sc1' % (srd(S_WS), sB))
a('v_mov_b32 v2, 0x3f803f80')
for k in range(2):
    x, s1, s2 = 10 + 4 * k, 110 + 2 * k, 111 + 2 * k
    a('v_mov_b32 v%d, 0' % s1)
    a('v_mov_b32 v%d, 0' % s2)
    for p in range(4):
        a('v_dot2_f32_bf16 v%d, v%d, v2, v%d' % (s1, x + p, s1))
        a('v_dot2_f32_bf16 v%d, v%d, v%d, v%d' % (s2, x + p, x + p, s2))
    for t in xg_reduce(s1, 114) + xg_reduce(s2, 115):
        a(t)
a('s_lshl_b32 s%d, s%d, 7' % (sB, sA))
a('s_add_u32 s%d, s%d, %d' % (sB, sB, L.SA[0]))
a('v_lshlrev_b32 v2, 3, v%d' % V_TOK)
a('v_or_b32 v3, s%d, v2' % (sO + 2))
a('s_mov_b64 exec, 0xffff')
a('buffer_store_dwordx2 v[110:111], v2, %s, s%d offen sc1' % (srd(S_WS), sB))
a('buffer_store_dwordx2 v[112:113], v3, %s, s%d offen offset:512 sc1' % (srd(S_WS), sB))
a('s_mov_b64 exec, -1')
a('s_lshl_b32 s%d, s%d, 5' % (sA, sO + 0))
a('s_add_u32 s%d, s%d, s%d' % (sA, sA, sO + 1))
a('s_lshl_b32 s%d, s%d, 2' % (sA, sA))
a('s_add_u32 s%d, s%d, %d' % (sA, sA, L.FX[0]))
a('v_lshlrev_b32 v2, 4, v0')
a('v_add_u32 v2, s%d, v2' % sA)
a('v_cmp_eq_u32 vcc, 1, v0')
a('v_mov_b32 v3, s%d' % (sO + 2))
a('v_cndmask_b32 v3, 0, v3, vcc')
a('v_or_b32 v2, v2, v3')
a('s_lshl_b32 s%d, s%d, 6' % (sA, sC))
a('s_lshl_b32 s%d, s%d, 2' % (sB, sS))
a('s_add_u32 s%d, s%d, s%d' % (sA, sA, sB))
a('s_add_u32 s%d, s%d, s%d' % (sA, sA, sW))
a('s_lshl_b32 s%d, s%d, 2' % (sA, sA))
a('s_add_u32 s%d, s%d, %d' % (sA, sA, L.FQ))
a('v_mov_b32 v3, s%d' % sA)
a('v_cmp_eq_u32 vcc, 2, v0')
a('v_cndmask_b32 v2, v2, v3, vcc')
a('s_lshl_b32 s%d, s%d, 4' % (sA, sS))
a('s_add_u32 s%d, s%d, s%d' % (sA, sA, sC))
a('s_lshl_b32 s%d, s%d, 2' % (sA, sA))
a('s_add_u32 s%d, s%d, %d' % (sA, sA, L.FXC))
a('s_cmp_eq_u32 s%d, 0' % sW)
a('s_cselect_b32 s%d, s%d, 0x%x' % (sA, sA, INV))
a('v_mov_b32 v3, s%d' % sA)
a('v_cmp_eq_u32 vcc, 3, v0')
a('v_cndmask_b32 v2, v2, v3, vcc')
a('v_or_b32 v3, s%d, v%d' % (sXCC, V_T))
a('v_cndmask_b32 v3, v%d, v3, vcc' % V_T)
stamp2()
set_flags(2, 4, None, 3)
stamp()

a('v_lshl_add_u32 v20, v18, 7, v19')
a('v_add_u32 v20, s%d, v20' % sSTG)
for t in range(4):
    a('ds_read_b64_tr_b16 %s, v20 offset:%d' % (vr(24 + 4 * t, 2), 2048 + 32 * t))
    a('ds_read_b64_tr_b16 %s, v20 offset:%d' % (vr(26 + 4 * t, 2), 2048 + 32 * t + 2048))
a('v_lshl_add_u32 v21, v18, 5, v19')
a('v_add_u32 v21, s%d, v21' % sSTG)
for i in range(4):
    a('ds_read_b64_tr_b16 %s, v21 offset:%d' % (vr(40 + 4 * i, 2), 6144 + 1024 * i))
    a('ds_read_b64_tr_b16 %s, v21 offset:%d' % (vr(42 + 4 * i, 2), 6144 + 1024 * i + 512))
a('v_or_b32 v6, s%d, v1' % bINV)
a('s_waitcnt lgkmcnt(8)')
for t in range(4):
    a('buffer_store_dwordx4 %s, v6, %s, s%d offen sc1' % (vr(24 + 4 * t), srd(S_WS), bDST))
    if t < 3:
        a('s_add_u32 s%d, s%d, s%d' % (bDST, bDST, bSTR))
a('s_mul_i32 s%d, s%d, 14' % (sA, cNT))
a('s_add_u32 s%d, s%d, s%d' % (sA, sA, sW))
a('s_lshl_b32 s%d, s%d, 10' % (sA, sA))
a('s_add_u32 s%d, s%d, %d' % (sA, sA, L.WC))
a('v_or_b32 v8, s%d, v1' % cINV)
a('v_or_b32 v9, s%d, v1' % cI12)
a('v_mov_b32 v2, 0x3f803f80')
a('v_mov_b32 v100, 0')
a('s_waitcnt lgkmcnt(0)')
for i in range(4):
    a('buffer_store_dwordx4 %s, v%d, %s, s%d offen sc1' % (vr(40 + 4 * i), 9 if i == 3 else 8, srd(S_WS), sA))
    a('s_add_u32 s%d, s%d, 4096' % (sA, sA))
for i in range(4):
    for p in range(4):
        a('v_dot2_f32_bf16 v100, v%d, v2, v100' % (40 + 4 * i + p))
for t in xg_reduce(100, 101):
    a(t)
a('s_lshl_b32 s%d, s%d, 6' % (sA, sW))
a('s_add_u32 s%d, s%d, %d' % (sA, sA, L.L_CSR))
a('v_lshlrev_b32 v2, 2, v%d' % V_TOK)
a('v_add_u32 v3, s%d, v2' % sA)
a('ds_write_b32 v3, v100')
a('s_waitcnt lgkmcnt(0)')
a('s_barrier')
a('v_add_u32 v3, %d, v2' % L.L_CSR)
for i in range(4):
    a('ds_read_b32 v%d, v3 offset:%d' % (104 + i, 64 * i))
a('s_lshl_b32 s%d, s%d, 6' % (sB, cNT))
a('s_add_u32 s%d, s%d, %d' % (sB, sB, L.CSC))
a('s_cmp_eq_u32 s%d, 0' % sW)
a('s_cselect_b32 s%d, s%d, 0x%x' % (sA, cINV, INV))
a('v_or_b32 v2, s%d, v2' % sA)
a('s_waitcnt lgkmcnt(0)')
a('v_add_f32 v104, v104, v105')
a('v_add_f32 v106, v106, v107')
a('v_add_f32 v104, v104, v106')
a('s_mov_b64 exec, 0xffff')
a('buffer_store_dword v104, v2, %s, s%d offen sc1' % (srd(S_WS), sB))
a('s_mov_b64 exec, -1')

a('v_and_b32 v2, 1, v%d' % V_TOK)
a('v_lshlrev_b32 v3, 2, v%d' % V_G)
a('v_add_u32 v6, 2, v%d' % V_TOK)
for i in range(4):
    a('v_add_u32 v4, %d, v3' % i)
    a('v_cmp_eq_u32 vcc, %d, v2' % (i & 1))
    a('s_mov_b64 %s, vcc' % sp(sMK))
    a('v_cmp_ge_u32 vcc, v4, v6')
    a('s_and_b64 %s, vcc, %s' % (sp(sM1 + 2 * i), sp(sMK)))
    a('v_cmp_le_u32 vcc, v4, v%d' % V_TOK)
    a('s_and_b64 %s, vcc, %s' % (sp(sM2 + 2 * i), sp(sMK)))
a('s_lshl_b32 s%d, s%d, 3' % (sA, sS))
a('s_lshl_b32 s%d, s%d, 1' % (sB, sW))
a('s_add_u32 s%d, s%d, s%d' % (sGT, sA, sB))
a('s_cmp_eq_u32 s%d, 0' % sGT)
for i in range(4):
    a('s_cselect_b64 %s, 0, %s' % (sp(sM0 + 2 * i), sp(sM1 + 2 * i)))
a('s_mov_b32 s%d, 0' % sPAIR)

def a_flag_addr(dst):
    pair_base(sA, L.FX)
    a('s_lshl_b32 s%d, s%d, 7' % (sB, sGT))
    a('s_add_u32 s%d, s%d, s%d' % (sA, sA, sB))
    a('s_sub_u32 s%d, s%d, 128' % (sA, sA))
    a('v_and_b32 v%d, 48, v0' % dst)
    a('v_add_u32 v%d, v%d, v0' % (dst, dst))
    a('v_lshl_add_u32 v%d, v%d, 2, s%d' % (dst, dst, sA))
    a('s_mov_b32 s%d, 0x3fff3fff' % sMK)
    a('s_mov_b32 s%d, 0x3fff' % (sMK + 1))
    a('s_cmp_eq_u32 s%d, 0' % sGT)
    a('s_cselect_b32 s%d, 0x3fff0000, s%d' % (sMK, sMK))


a('s_lshl_b32 s%d, s%d, 8' % (sA, sC))
a('s_add_u32 s%d, s%d, %d' % (sA, sA, L.FQ))
a('v_lshl_add_u32 v2, v0, 2, s%d' % sA)
a_flag_addr(3)
a('s_lshl_b32 s%d, s%d, 6' % (sA, sS))
a('s_add_u32 s%d, s%d, %d' % (sA, sA, L.FXC - 48 * 4))
a('v_lshl_add_u32 v4, v0, 2, s%d' % sA)
a('v_cmp_lt_u32 vcc, 47, v0')
a('v_cndmask_b32 v3, v3, v4, vcc')
a('v_mov_b32 v5, -1')
a('v_mov_b32 v6, -16')
a('v_cndmask_b32 v5, v5, v6, vcc')
a('s_or_b32 s%d, s%d, 0xffff0000' % (sMK + 1, sMK + 1))
a('s_mov_b32 s%d, 0' % sSPIN)
a.label('L_poll0')
a('buffer_load_dword v7, v2, %s, 0 offen sc1' % srd(S_WS))
a('s_mov_b64 exec, %s' % sp(sMK))
a('buffer_load_dword v8, v3, %s, 0 offen sc1' % srd(S_WS))
a('s_waitcnt vmcnt(0)')
a('v_and_b32 v9, v5, v8')
a('v_cmp_ne_u32 vcc, s%d, v9' % sT)
a('s_mov_b64 exec, -1')
a('s_mov_b64 %s, vcc' % sp(sTS))
a('v_cmp_ne_u32 vcc, s%d, v7' % sT)
a('s_or_b64 vcc, vcc, %s' % sp(sTS))
a('s_cbranch_vccz L_poll0_done')
a('s_add_u32 s%d, s%d, 1' % (sSPIN, sSPIN))
a('s_cmp_lt_u32 s%d, %d' % (sSPIN, SPIN_LIMIT))
a('s_cbranch_scc1 L_poll0')
a('s_add_u32 s%d, s%d, 1' % (sERR, sERR))
a.label('L_poll0_done')
a('v_and_b32 v9, 15, v8')
a('v_cmp_ne_u32 vcc, s%d, v9' % sXCC)
a('s_and_b32 s%d, vcc_hi, 0xffff0000' % sA)
a('s_cmp_eq_u32 s%d, 0' % sA)
a('s_cselect_b32 s%d, 1, 0' % sFAST)
stamp()
AQ, AK, AV = 2, 18, 42
WBUF = [66, 90]
XR = 114
CSACC = 186
STR = 210
SM, SR = 234, 237
NR, LOOK = 6, 4
A_ONES = 240


def a_xload(u):
    slot = u % NR
    return ['buffer_load_dwordx4 %s, v1, %s, s%d offen offset:%d sc1' %
            (vr(XR + (slot * 3 + t) * 4), srd(S_WS), sO + 4 * t + (u >> 2), 1024 * (u & 3)) for t in range(3)]


def a_offsets():
    pair_base(sA, L.XA)
    a('s_mul_i32 s%d, s%d, 14336' % (sB, sGT))
    a('s_add_u32 s%d, s%d, s%d' % (sO + 4, sA, sB))
    a('s_add_u32 s%d, s%d, 14336' % (sO + 8, sO + 4))
    a('s_sub_u32 s%d, s%d, 14336' % (sO + 0, sO + 4))
    a('s_cmp_eq_u32 s%d, 0' % sGT)
    a('s_cselect_b32 s%d, s%d, s%d' % (sO + 0, sO + 4, sO + 0))
    for t in range(3):
        for q in range(1, 4):
            a('s_add_u32 s%d, s%d, %d' % (sO + 4 * t + q, sO + 4 * t, 4096 * q))


def a_setup():
    if FASTMODE == 'flags':
        a('s_mov_b32 s%d, 0' % sFD)
        a('s_mov_b32 s%d, 0' % sFH)
    elif FASTMODE == 'p0':
        a('s_xor_b32 s%d, s%d, 1' % (sFD, sPAIR))
        a('s_and_b32 s%d, s%d, s%d' % (sFD, sFD, sFAST))
        a('s_mov_b32 s%d, s%d' % (sFH, sFD))
    elif FASTMODE == 'small':
        a('s_mov_b32 s%d, s%d' % (sFD, sFAST))
        a('s_mov_b32 s%d, 0' % sFH)
    elif FASTMODE == 'smallp0':
        a('s_mov_b32 s%d, s%d' % (sFD, sFAST))
        a('s_xor_b32 s%d, s%d, 1' % (sFH, sPAIR))
        a('s_and_b32 s%d, s%d, s%d' % (sFH, sFH, sFAST))
    else:
        a('s_mov_b32 s%d, s%d' % (sFD, sFAST))
        a('s_mov_b32 s%d, s%d' % (sFH, sFAST))
    pair_base(sA, L.SA)
    a('s_mul_i32 s%d, s%d, 1792' % (sB, sGT))
    a('s_add_u32 s%d, s%d, s%d' % (sO + 13, sA, sB))
    a('s_add_u32 s%d, s%d, 1792' % (sO + 14, sO + 13))
    a('s_sub_u32 s%d, s%d, 1792' % (sO + 12, sO + 13))
    a('s_cmp_eq_u32 s%d, 0' % sGT)
    a('s_cselect_b32 s%d, s%d, s%d' % (sO + 12, sO + 13, sO + 12))
    a('v_and_b32 v%d, 15, v0' % V_TOK)
    a('v_lshrrev_b32 v%d, 4, v0' % V_G)
    a('v_lshlrev_b32 v240, 3, v%d' % V_TOK)
    a('v_lshl_add_u32 v240, v%d, 7, v240' % V_G)
    a('v_mov_b32 v242, 0x%x' % INV)
    a('v_cmp_lt_u32 vcc, 1, v%d' % V_G)
    a('v_cndmask_b32 v241, 0, v242, vcc')
    a('v_or_b32 v241, v241, v240')
    a('v_add_u32 v243, %d, v1' % (56 * 1024))
    a('v_lshlrev_b32 v244, 4, v%d' % V_G)
    a('v_add_u32 v244, %d, v244' % L.L_CSA)
    a('v_lshlrev_b32 v245, 2, v%d' % V_TOK)
    a('v_add_u32 v245, %d, v245' % L.L_CSA)
    a('s_lshl_b32 s%d, s%d, 7' % (sA, sJ))
    a('s_add_u32 s%d, s%d, %d' % (sA, sA, L.FP))
    a('v_lshl_add_u32 v248, v0, 2, s%d' % sA)
    a('s_lshr_b32 s%d, s%d, 1' % (sB, sW))
    a('s_lshl_b32 s%d, s%d, 2' % (sCc, sG))
    a('s_add_u32 s%d, s%d, s%d' % (sB, sB, sCc))
    a('s_lshl_b32 s%d, s%d, 5' % (sB, sB))
    a('s_and_b32 s%d, s%d, 1' % (sA, sW))
    a('s_add_u32 s%d, s%d, s%d' % (sB, sB, sA))
    a('s_min_u32 s%d, s%d, 6' % (sA, sJ))
    a('s_lshl_b32 s%d, s%d, 1' % (sA, sA))
    a('s_add_u32 s%d, s%d, s%d' % (sB, sB, sA))
    a('s_lshl_b32 s%d, s%d, 2' % (sB, sB))
    a('s_add_u32 s%d, s%d, %d' % (sB, sB, L.FX[0] - 32 * 256))
    a('v_lshl_add_u32 v249, v0, 8, s%d' % sB)
    a('v_cmp_lt_u32 vcc, 31, v0')
    a('v_cndmask_b32 v248, v248, v249, vcc')
    a('s_cmp_eq_u32 s%d, 0' % sPAIR)
    a('s_mov_b32 s%d, %d' % (sA, L.FSA - 128))
    a('s_cselect_b32 s%d, %d, s%d' % (sA, L.FX[0] - 128, sA))
    a('s_lshl_b32 s%d, s%d, 7' % (sB, sGT))
    a('s_add_u32 s%d, s%d, s%d' % (sA, sA, sB))
    a('v_and_b32 v247, 48, v0')
    a('v_add_u32 v247, v247, v0')
    a('v_lshl_add_u32 v247, v247, 2, s%d' % sA)
    a('s_mov_b32 s%d, 0x3fff3fff' % sMK2)
    a('s_mov_b32 s%d, 0x3fff' % (sMK2 + 1))
    a('s_cmp_eq_u32 s%d, 0' % sGT)
    a('s_cselect_b32 s%d, 0x3fff0000, s%d' % (sMK2, sMK2))


stat_loads = ['buffer_load_dwordx2 %s, v%d, %s, s%d offen offset:%d sc1' %
              (vr(STR + (t * 4 + i) * 2, 2), 241 if i == 3 else 240, srd(S_WS), sO + 12 + t, 512 * i)
              for t in range(3) for i in range(4)]


def a_wread(u):
    b = WBUF[u & 1]
    o = []
    for p in range(6):
        if p < 4:
            o.append('ds_read_b128 %s, v1 offset:%d' % (vr(b + 4 * p), L.L_WA + (p * 14 + u) * 1024))
        else:
            o.append('ds_read_b128 %s, v243 offset:%d' % (vr(b + 4 * p), L.L_WA + ((p - 4) * 14 + u) * 1024))
    return o


stat_fill = []
for t in range(3):
    r = STR + 8 * t
    for c_ in range(2):
        stat_fill += ['v_add_f32 v%d, v%d, v%d' % (r + c_, r + c_, r + 2 + c_),
                      'v_add_f32 v%d, v%d, v%d' % (r + 4 + c_, r + 4 + c_, r + 6 + c_),
                      'v_add_f32 v%d, v%d, v%d' % (r + c_, r + c_, r + 4 + c_)]
    stat_fill += xg_reduce(r, r + 2) + xg_reduce(r + 1, r + 3)
    stat_fill += stats_finish(r, r + 1, r + 2, False)
    stat_fill += ['v_mov_b32 v%d, v%d' % (SM + t, r), 'v_mov_b32 v%d, v%d' % (SR + t, r + 1)]

sWA = [20, 21, 22]
sWAG = 23


def wa_dma(pr, i):
    def f():
        a('s_add_u32 m0, s%d, %d' % (sWA[i], L.L_WA + 2048 * pr))
        a('s_add_u32 s%d, s%d, s%d' % (sD, sWA[i], sWAG))
        if pr:
            a('s_add_u32 s%d, s%d, %d' % (sD, sD, 2048 * pr))
        a('buffer_load_dwordx4 v1, %s, s%d offen sc1 lds' % (srd(S_WS), sD))
    return f


amark = {}


def emit_a_loop(first, xmark, wam):
    ep_mark = es_mark = st_mark = None
    for t in a_wread(0):
        a(t)
    for u in range(14):
        need = xmark[u]
        if u == 12:
            need = max(need, st_mark)
        a.wait_vm(need)
        if u == 6:
            early_check(246, 247, es_mark)
        if u == 11:
            a('s_mov_b32 s%d, -1' % sMK2)
            a('s_mov_b32 s%d, 3' % (sMK2 + 1))
        a('s_waitcnt lgkmcnt(0)')
        wb = WBUF[u & 1]
        xs = XR + (u % NR) * 12
        mf = []
        cz = (lambda r: '0') if u == 0 else (lambda r: vr(r))
        for t in range(2):
            for hf in range(2):
                r = AQ + (t * 2 + hf) * 4
                mf.append('%s %s, %s, %s, %s' % (MFMA, vr(r), vr(wb + 4 * hf), vr(xs + 4 * (t + 1)), cz(r)))
        for t in range(3):
            for hf in range(2):
                r = AK + (t * 2 + hf) * 4
                mf.append('%s %s, %s, %s, %s' % (MFMA, vr(r), vr(wb + 8 + 4 * hf), vr(xs + 4 * t), cz(r)))
        for t in range(3):
            for hf in range(2):
                r = AV + (t * 2 + hf) * 4
                mf.append('%s %s, %s, %s, %s' % (MFMA, vr(r), vr(xs + 4 * t), vr(wb + 16 + 4 * hf), cz(r)))
        if first:
            for p in range(6):
                r = CSACC + 4 * p
                if p < 4:
                    mf.append('%s %s, %s, %s, %s' % (MFMA, vr(r), vr(wb + 4 * p), ar(A_ONES), cz(r)))
                else:
                    mf.append('%s %s, %s, %s, %s' % (MFMA, vr(r), ar(A_ONES), vr(wb + 4 * p), cz(r)))
        mem = {}

        def put(k, x):
            mem.setdefault(k, []).append(x)
        off = 0
        if first and u % 2 == 1 and u < 13:
            put(2, ('bar', (u + 1) // 2))
            off = 3
        if u < 13:
            for k, x in enumerate(a_wread(u + 1)):
                put(off + k, x)
        elif not first:
            for p in range(4):
                put(p, 'ds_read_b128 %s, v244 offset:%d' % (vr(WBUF[0] + 4 * p), 64 * p))
            for d in range(2):
                put(4 + d, 'ds_read_b32 v%d, v245 offset:%d' % (WBUF[0] + 16 + d, 64 * (4 + d)))
        if u + LOOK < 14:
            for k, x in zip((6, 9, 12), a_xload(u + LOOK)):
                put(k + off, x)
            put(12 + off, ('xm', u + LOOK))
        if first and u % 2 == 0 and u // 2 + 3 <= 6:
            for i, k in enumerate((13, 16, 19)):
                put(k, ('wa', u // 2 + 3, i))
        if 6 <= u < 10:
            for k, x in zip((8, 11, 14), stat_loads[3 * (u - 6):3 * (u - 6) + 3]):
                put(k, x)
            if u == 9:
                put(14, ('st',))
        if u == 11:
            put(8, ('early',))
        if u == 4:
            put(8, ('estat',))
        fill = stat_fill[(u - 12) * 30:(u - 11) * 30] if u >= 12 else []
        fi = 0
        for k, m in enumerate(mf):
            a(m)
            for it in mem.get(k, []):
                if isinstance(it, str):
                    a(it)
                elif it[0] == 'early':
                    ep_mark = early_issue(249, 248)
                elif it[0] == 'estat':
                    es_mark = early_issue(246, 247)
                elif it[0] == 'xm':
                    xmark[it[1]] = a.vm_mark()
                elif it[0] == 'st':
                    st_mark = a.vm_mark()
                elif it[0] == 'bar':
                    a.wait_vm(wam[it[1]])
                    a('s_barrier')
                elif it[0] == 'wa':
                    wa_dma(it[1], it[2])()
                    wam[it[1]] = a.vm_mark()
            for _ in range(2):
                if fi < len(fill) and k >= 1:
                    a(fill[fi])
                    fi += 1
        assert fi == len(fill), (u, fi, len(fill))
    amark['ep'] = ep_mark


for p in range(4):
    a('v_mov_b32 v4, 0x3f803f80')
    a('v_accvgpr_write_b32 a%d, v4' % (A_ONES + p))
a('s_mul_i32 s%d, s%d, 14336' % (sWA[0], sW))
a('s_add_u32 s%d, s%d, 4' % (sA, sW))
a('s_mul_i32 s%d, s%d, 14336' % (sA, sA))
a('s_sub_u32 s%d, s%d, 2' % (sB, sW))
a('s_mul_i32 s%d, s%d, 14336' % (sB, sB))
a('s_add_u32 s%d, s%d, 1024' % (sB, sB))
a('s_cmp_lt_u32 s%d, 2' % sW)
a('s_cselect_b32 s%d, s%d, s%d' % (sWA[1], sA, sB))
a('s_add_u32 s%d, s%d, 2' % (sA, sW))
a('s_mul_i32 s%d, s%d, 14336' % (sA, sA))
a('s_add_u32 s%d, s%d, 1024' % (sWA[2], sA))
a('s_mul_i32 s%d, s%d, %d' % (sWAG, sC, 84 * 1024))
a('s_add_u32 s%d, s%d, %d' % (sWAG, sWAG, L.WA))
a_offsets()
xm0, wam0 = {}, {}


def wa_pair(pr):
    for i in range(3):
        wa_dma(pr, i)()
    wam0[pr] = a.vm_mark()


for pr in range(3):
    wa_pair(pr)
    for u in (2 * pr, 2 * pr + 1):
        if u < LOOK:
            for t in a_xload(u):
                a(t)
            xm0[u] = a.vm_mark()
a_setup()
a.wait_vm(wam0[0])
a('s_barrier')
a('s_lshl_b32 s%d, s%d, 5' % (sA, sJ))
a('s_add_u32 s%d, s%d, s%d' % (sA, sA, sG))
a('s_lshl_b32 s%d, s%d, 2' % (sA, sA))
a('s_add_u32 s%d, s%d, %d' % (sA, sA, L.FP))
a('s_cmp_eq_u32 s%d, 0' % sW)
a('s_cselect_b32 s%d, s%d, 0x%x' % (sA, sA, INV))
a('v_mov_b32 v2, s%d' % sA)
a('s_mov_b64 exec, 1')
a('buffer_store_dword v%d, v2, %s, 0 offen sc1' % (V_T, srd(S_WS)))
a.vm_issued -= 1
a('s_mov_b64 exec, -1')
stamp()
emit_a_loop(True, xm0, wam0)
n_join = a.vm_issued - amark['ep']
CSQ = WBUF[0]
a('v_cmp_eq_u32 vcc, 0, v%d' % V_TOK)
a('s_mov_b64 exec, vcc')
for p in range(4):
    a('ds_write_b128 v244, %s offset:%d' % (vr(CSACC + 4 * p), 64 * p))
a('s_mov_b64 exec, 0xffff')
for d in range(2):
    a('ds_write_b32 v245, v%d offset:%d' % (CSACC + 16 + 4 * d, 64 * (4 + d)))
a('s_mov_b64 exec, -1')
for e in range(16):
    a('v_mov_b32 v%d, v%d' % (CSQ + e, CSACC + e))
for d in range(2):
    a('v_mov_b32 v%d, v%d' % (CSQ + 16 + d, CSACC + 16 + 4 * d))
a('s_branch L_a_epi')

a.label('L_pair')
a_flag_addr(2)
poll(2)
stamp()
a_offsets()
xmark = {}
for u in range(LOOK):
    for t in a_xload(u):
        a(t)
    xmark[u] = a.vm_mark()
a_setup()
emit_a_loop(False, xmark, None)
assert a.vm_issued - amark['ep'] == n_join
ep_mark = amark['ep']
a.label('L_a_epi')
stamp()
for x in stat_fill[60:]:
    a(x)
early_check(249, 248, ep_mark)
BW = 2
a('s_lshl_b32 s%d, s%d, 6' % (sA, sJ))
a('s_lshl_b32 s%d, s%d, 2' % (sB, sW))
a('s_add_u32 s%d, s%d, s%d' % (sA, sA, sB))
a('s_lshl_b32 s%d, s%d, 10' % (sA, sA))
a('s_add_u32 s20, s%d, %d' % (sA, L.WB))
for t in range(1, 4):
    a('s_add_u32 s%d, s20, %d' % (20 + t, 16 * 1024 * t))
wb_loads = ['buffer_load_dwordx4 %s, v1, %s, s%d offen offset:%d sc1' % (vr(BW + (i * 4 + t) * 4), srd(S_WS), 20 + t, 1024 * i)
            for i in range(4) for t in range(4)]
A_RES, A_B2 = 224, 232


def owner_index():
    a('s_lshr_b32 s%d, s%d, 1' % (sB, sW))
    a('s_lshl_b32 s%d, s%d, 2' % (sCc, sG))
    a('s_add_u32 s%d, s%d, s%d' % (sB, sB, sCc))
    a('s_and_b32 s%d, s%d, 1' % (sA, sW))
    a('s_lshl_b32 s%d, s%d, 1' % (sCc, sJ))
    a('s_add_u32 s%d, s%d, s%d' % (sA, sA, sCc))


a('s_cmp_eq_u32 s%d, 0' % sPAIR)
a('s_cbranch_scc0 L_a_nores')
owner_index()
a('s_mul_i32 s%d, s%d, 14' % (sB, sB))
a('s_add_u32 s%d, s%d, s%d' % (sB, sB, sA))
a('s_lshl_b32 s%d, s%d, 10' % (sB, sB))
a('s_add_u32 s%d, s%d, %d' % (sB, sB, L.XA[0]))
a('buffer_load_dwordx4 %s, v1, %s, s%d offen sc1' % (ar(A_RES), srd(S_WS), sB))
a('s_add_u32 s%d, s%d, %d' % (sB, sB, 2 * 14336))
a('buffer_load_dwordx4 %s, v1, %s, s%d offen sc1' % (ar(A_RES + 4), srd(S_WS), sB))
build_srd(S_TMP, P_B2, 896)
a('s_lshl_b32 s%d, s%d, 6' % (sB, sA))
a('v_lshlrev_b32 v240, 3, v%d' % V_G)
a('buffer_load_dwordx2 v[228:229], v240, %s, s%d offen' % (srd(S_TMP), sB))
a('buffer_load_dwordx2 v[230:231], v240, %s, s%d offen offset:32' % (srd(S_TMP), sB))
a.label('L_a_nores')
CSQ = WBUF[0]
a('s_mul_i32 s%d, s%d, 384' % (sA, sW))
a('s_add_u32 s%d, s%d, %d' % (sA, sA, L.L_STA))
a('v_lshl_add_u32 v246, v%d, 2, s%d' % (V_TOK, sA))
a('v_lshl_add_u32 v247, v%d, 4, s%d' % (V_G, sA))
a('s_mov_b64 exec, 0xffff')
for t in range(3):
    a('ds_write_b32 v246, v%d offset:%d' % (SM + t, 128 * t))
    a('ds_write_b32 v246, v%d offset:%d' % (SR + t, 128 * t + 64))
a('s_mov_b64 exec, -1')
MROW, RROW = 114, 126
a('s_waitcnt lgkmcnt(0)')
for t in range(3):
    a('ds_read_b128 %s, v247 offset:%d' % (vr(MROW + 4 * t), 128 * t))
    a('ds_read_b128 %s, v247 offset:%d' % (vr(RROW + 4 * t), 128 * t + 64))
QF, KF, VF = 140, 148, 160
for t in range(2):
    for hf in range(2):
        r = AQ + (t * 2 + hf) * 4
        for i in range(4):
            a('v_fma_f32 v%d, -v%d, v%d, v%d' % (r + i, SM + t + 1, CSQ + 4 * hf + i, r + i))
        for p in range(2):
            a('v_cvt_pk_bf16_f32 v%d, v%d, v%d' % (QF + 4 * t + 2 * hf + p, r + 2 * p, r + 2 * p + 1))
for t in range(3):
    for hf in range(2):
        r = AK + (t * 2 + hf) * 4
        for i in range(4):
            a('v_fma_f32 v%d, -v%d, v%d, v%d' % (r + i, SM + t, CSQ + 8 + 4 * hf + i, r + i))
        for p in range(2):
            a('v_cvt_pk_bf16_f32 v%d, v%d, v%d' % (KF + 4 * t + 2 * hf + p, r + 2 * p, r + 2 * p + 1))
SS = 172
for t in range(2):
    a('%s %s, %s, %s, 0' % (MFMA, vr(SS + 8 * t), vr(KF + 4 * t), vr(QF + 4 * t)))
    a('%s %s, %s, %s, 0' % (MFMA, vr(SS + 8 * t + 4), vr(KF + 4 * t + 4), vr(QF + 4 * t)))
a('s_waitcnt lgkmcnt(0)')
for t in range(3):
    for d in range(2):
        r = AV + (t * 2 + d) * 4
        for i in range(4):
            a('v_fma_f32 v%d, -v%d, v%d, v%d' % (r + i, MROW + 4 * t + i, CSQ + 16 + d, r + i))
        for p in range(2):
            a('v_cvt_pk_bf16_f32 v%d, v%d, v%d' % (VF + 6 * d + 2 * t + p, r + 2 * p, r + 2 * p + 1))
SCALE = (28.0 ** -0.5) * 1.4426950408889634
MX, CC, LS, TMPR = 190, 192, 194, 196
PF = 200
a('v_mov_b32 v198, 0xff800000')
seq = [[], []]
for t in range(2):
    s = SS + 8 * t
    q = seq[t]
    for e in range(8):
        q.append('v_mul_f32 v%d, v%d, v%d' % (s + e, s + e, RROW + 4 * (t + (e >> 2)) + (e & 3)))
    for e in range(8):
        mk = (sM0 if t == 0 else sM1) + 2 * e if e < 4 else sM2 + 2 * (e - 4)
        q.append('v_cndmask_b32 v%d, v198, v%d, %s' % (s + e, s + e, sp(mk)))
    q.append('v_max3_f32 v%d, v%d, v%d, v%d' % (MX + t, s, s + 1, s + 2))
    q.append('v_max3_f32 v%d, v%d, v%d, v%d' % (MX + t, MX + t, s + 3, s + 4))
    q.append('v_max3_f32 v%d, v%d, v%d, v%d' % (MX + t, MX + t, s + 5, s + 6))
    q.append('v_max_f32 v%d, v%d, v%d' % (MX + t, MX + t, s + 7))
    q += xg_reduce(MX + t, TMPR + t, 'v_max_f32')
    q.append('v_mul_f32 v%d, %s, v%d' % (CC + t, f2h(SCALE), SR + t + 1))
    q.append('v_mul_f32 v%d, v%d, v%d' % (MX + t, MX + t, CC + t))
    for e in range(8):
        q.append('v_fma_f32 v%d, v%d, v%d, -v%d' % (s + e, s + e, CC + t, MX + t))
    for e in range(8):
        q.append('v_exp_f32 v%d, v%d' % (s + e, s + e))
    q.append('v_add_f32 v%d, v%d, v%d' % (LS + t, s, s + 1))
    for e in range(2, 8):
        q.append('v_add_f32 v%d, v%d, v%d' % (LS + t, LS + t, s + e))
    q += xg_reduce(LS + t, TMPR + t)
    q.append('v_rcp_f32 v%d, v%d' % (LS + t, LS + t))
    for e in range(8):
        q.append('v_mul_f32 v%d, v%d, v%d' % (s + e, s + e, RROW + 4 * (t + (e >> 2)) + (e & 3)))
    for p in range(4):
        q.append('v_cvt_pk_bf16_f32 v%d, v%d, v%d' % (PF + 4 * t + p, s + 2 * p, s + 2 * p + 1))
merged = [z for xy in zip(*seq) for z in xy]
gap = len(merged) // (len(wb_loads) + 1)
for k, x in enumerate(merged):
    a(x)
    if k % gap == gap - 1 and wb_loads:
        a(wb_loads.pop(0))
assert not wb_loads
OO = 208
for t in range(2):
    for d in range(2):
        a('%s %s, %s, %s, 0' % (MFMA, vr(OO + 8 * t + 4 * d), vr(VF + 6 * d + 2 * t), vr(PF + 4 * t)))
pair_base(sA, L.O)
a('s_lshl_b32 s%d, s%d, 4' % (sB, sGT))
a('s_add_u32 s%d, s%d, s%d' % (sB, sB, sC))
a('s_lshl_b32 s%d, s%d, 10' % (sB, sB))
a('s_add_u32 s%d, s%d, s%d' % (sA, sA, sB))
for t in range(2):
    for e in range(8):
        a('v_mul_f32 v%d, v%d, v%d' % (OO + 8 * t + e, OO + 8 * t + e, LS + t))
    for p in range(4):
        a('v_cvt_pk_bf16_f32 v%d, v%d, v%d' % (PF + 4 * t + p, OO + 8 * t + 2 * p, OO + 8 * t + 2 * p + 1))
    store('buffer_store_dwordx4 %s, v1, %s, s%d offen' % (vr(PF + 4 * t), srd(S_WS), sA), sFD)
    if t == 0:
        a('s_add_u32 s%d, s%d, 16384' % (sA, sA))
pair_base(sA, L.FA)
a('s_lshl_b32 s%d, s%d, 4' % (sB, sGT))
a('s_add_u32 s%d, s%d, s%d' % (sB, sB, sC))
a('s_lshl_b32 s%d, s%d, 2' % (sB, sB))
a('s_add_u32 s%d, s%d, s%d' % (sA, sA, sB))
a('v_lshlrev_b32 v241, 6, v0')
a('v_add_u32 v241, s%d, v241' % sA)
set_flags(241, 2, sFAST)
stamp()
a('s_cmp_eq_u32 s%d, 7' % sJ)
a('s_cbranch_scc1 L_next_pair')


def wd_bases():
    a('s_lshl_b32 s%d, s%d, 2' % (sA, sJ))
    a('s_mul_i32 s%d, s%d, %d' % (sA, sA, 56 * 1024))
    a('s_mul_i32 s%d, s%d, %d' % (sB, sW, 14 * 1024))
    a('s_add_u32 s%d, s%d, s%d' % (sA, sA, sB))
    a('s_add_u32 s%d, s%d, %d' % (sO, sA, L.WD))
    quarter_offsets(4, 56 * 1024)


def wd_load(fi):
    kk, t = fi >> 2, fi & 3
    return ('buffer_load_dwordx4 %s, v1, %s, s%d offen offset:%d sc1' %
            (ar(4 * fi), srd(S_WS), sO + 4 * t + (kk >> 2), 1024 * (kk & 3)))


WD_CH = [(0, 12), (12, 56)]
BO, BACC, BRD, BTMP = 66, 130, 194, 226
a('s_cmp_eq_u32 s%d, 0' % sPAIR)
a('s_cbranch_scc0 L_b_start')
for k in range(4):
    a('v_lshlrev_b32 v236, 16, v%d' % (228 + k))
    a('v_and_b32 v237, 0xffff0000, v%d' % (228 + k))
    a('v_accvgpr_write_b32 a%d, v236' % (A_B2 + 2 * k))
    a('v_accvgpr_write_b32 a%d, v237' % (A_B2 + 2 * k + 1))
wd_bases()
for fi in range(*WD_CH[0]):
    a(wd_load(fi))
a.label('L_b_start')
CWW = 66
sCI = 41
a('s_lshr_b32 s%d, s%d, 3' % (sA, sC))
a('s_mul_i32 s%d, s%d, 7' % (sA, sA))
a('s_add_u32 s%d, s%d, s%d' % (sCI, sA, sJ))
a('s_lshl_b32 s%d, s%d, 3' % (sA, sCI))
a('s_lshl_b32 s%d, s%d, 1' % (sB, sW))
a('s_add_u32 s%d, s%d, s%d' % (sA, sA, sB))
a('s_mul_i32 s%d, s%d, %d' % (sB, sA, 14 * 1024))
a('s_add_u32 s%d, s%d, %d' % (sO, sB, L.WC))
quarter_offsets(2, 14 * 1024)


def c_wload(idx):
    u, k = idx >> 1, idx & 1
    return ('buffer_load_dwordx4 %s, v1, %s, s%d offen offset:%d sc1' %
            (vr(CWW + 4 * idx), srd(S_WS), sO + 4 * k + (u >> 2), 1024 * (u & 3)))


def red_writes(acc, tile):
    return ['ds_write_b128 v248, %s offset:%d' % (vr(acc + 4 * t), (tile >> 1) * 32768 + (tile & 1) * 4096 + t * 1024)
            for t in range(4)]


def red_reads(st, rd):
    return ['ds_read_b128 %s, v249 offset:%d' % (vr(rd + (b * 2 + k) * 4), st * 32768 + b * 8192 + k * 1024)
            for b in range(4) for k in range(2)]


def add8(dst, x, y, packed):
    if packed:
        return ['v_pk_add_f32 %s, %s, %s' % (vr(dst + e, 2), vr(x + e, 2), vr(y + e, 2)) for e in range(0, 8, 2)]
    return ['v_add_f32 v%d, v%d, v%d' % (dst + e, x + e, y + e) for e in range(8)]


def finish_pre(st, is_d, tmp):
    res = A_RES + 4 * st
    o = ['v_accvgpr_read_b32 v%d, a%d' % (tmp + 8 + p, res + p) for p in range(4)]
    for p in range(4):
        o += ['v_lshlrev_b32 v%d, 16, v%d' % (tmp + 2 * p, tmp + 8 + p),
              'v_and_b32 v%d, 0xffff0000, v%d' % (tmp + 2 * p + 1, tmp + 8 + p)]
    if is_d:
        o += ['v_accvgpr_read_b32 v%d, a%d' % (tmp + 8 + e, A_B2 + e) for e in range(8)]
        o += ['v_add_f32 v%d, v%d, v%d' % (tmp + e, tmp + e, tmp + 8 + e) for e in range(8)]
    return o


def finish_sum(st, rd, tmp, pk, packed):
    o = add8(rd, rd, rd + 8, packed) + add8(rd + 16, rd + 16, rd + 24, packed) + add8(rd, rd, rd + 16, packed)
    o += add8(tmp, tmp, rd, packed)
    o += ['v_cvt_pk_bf16_f32 v%d, v%d, v%d' % (pk + p, tmp + 2 * p, tmp + 2 * p + 1) for p in range(4)]
    o += ['v_accvgpr_write_b32 a%d, v%d' % (A_RES + 4 * st + p, pk + p) for p in range(4)]
    return o


def owner_stats(tmp, s1, t):
    a('v_pk_add_f32 %s, %s, %s' % (vr(t, 2), vr(tmp, 2), vr(tmp + 2, 2)))
    a('v_pk_add_f32 %s, %s, %s' % (vr(t + 2, 2), vr(tmp + 4, 2), vr(tmp + 6, 2)))
    a('v_pk_add_f32 %s, %s, %s' % (vr(t, 2), vr(t, 2), vr(t + 2, 2)))
    a('v_add_f32 v%d, v%d, v%d' % (s1, t, t + 1))
    a('v_pk_mul_f32 %s, %s, %s' % (vr(t, 2), vr(tmp, 2), vr(tmp, 2)))
    for e in (2, 4, 6):
        a('v_pk_fma_f32 %s, %s, %s, %s' % (vr(t, 2), vr(tmp + e, 2), vr(tmp + e, 2), vr(t, 2)))
    a('v_add_f32 v%d, v%d, v%d' % (s1 + 1, t, t + 1))
    for x, y in zip(xg_reduce(s1, t), xg_reduce(s1 + 1, t + 1)):
        a(x)
        a(y)


def red_addrs():
    a('s_lshl_b32 s%d, s%d, 13' % (sA, sW))
    a('s_add_u32 s%d, s%d, %d' % (sA, sA, L.L_R2))
    a('v_add_u32 v248, s%d, v1' % sA)
    a('s_and_b32 s%d, s%d, 1' % (sA, sW))
    a('s_lshl_b32 s%d, s%d, 11' % (sA, sA))
    a('s_lshr_b32 s%d, s%d, 1' % (sB, sW))
    a('s_lshl_b32 s%d, s%d, 12' % (sB, sB))
    a('s_add_u32 s%d, s%d, s%d' % (sA, sA, sB))
    a('s_add_u32 s%d, s%d, %d' % (sA, sA, L.L_R2))
    a('v_add_u32 v249, s%d, v1' % sA)


def publish_setup(xbase, sbase, fbase, per_pair, fsh):
    owner_index()
    a('s_mul_i32 s%d, s%d, 14' % (sCc, sB))
    a('s_add_u32 s%d, s%d, s%d' % (sCc, sCc, sA))
    a('s_lshl_b32 s%d, s%d, 10' % (sPX, sCc))
    a('s_lshl_b32 s%d, s%d, 7' % (sPS, sCc))
    a('s_lshl_b32 s%d, s%d, %d' % (sPF, sB, fsh))
    a('s_add_u32 s%d, s%d, s%d' % (sPF, sPF, sA))
    a('s_lshl_b32 s%d, s%d, 2' % (sPF, sPF))
    for dst, arr in ((sPX, xbase), (sPS, sbase), (sPF, fbase)):
        if per_pair:
            pair_base(sD, arr)
            a('s_add_u32 s%d, s%d, s%d' % (dst, dst, sD))
        else:
            a('s_add_u32 s%d, s%d, %d' % (dst, dst, arr))
    a('s_add_u32 s%d, s%d, %d' % (sPX2, sPX, 2 * 14336))


def publish_data(st, pk):
    store('buffer_store_dwordx4 %s, v1, %s, s%d offen offset:0' % (vr(pk), srd(S_WS), sPX if st == 0 else sPX2), sPC)


def publish_stats(tmps, t, s1):
    a('v_and_b32 v%d, 15, v0' % V_TOK)
    a('v_lshlrev_b32 v%d, 3, v%d' % (t + 4, V_TOK))
    for st in range(2):
        owner_stats(tmps[st], s1 + 2 * st, t)
    a('s_mov_b64 exec, 0xffff')
    store('buffer_store_dwordx2 %s, v%d, %s, s%d offen' % (vr(s1, 2), t + 4, srd(S_WS), sPS), sPC)
    a('s_add_u32 s%d, s%d, %d' % (sPS, sPS, 2 * 1792))
    store('buffer_store_dwordx2 %s, v%d, %s, s%d offen' % (vr(s1 + 2, 2), t + 4, srd(S_WS), sPS), sPC)
    a('s_mov_b64 exec, -1')


def publish_flags(lsh, between=()):
    a('v_lshlrev_b32 v241, %d, v0' % lsh)
    a('v_add_u32 v241, s%d, v241' % sPF)
    set_flags(241, 2, sPFC, V_T, between)


def run_tiles(tile_items, extras):
    for tile in range(4):
        items = tile_items(tile)
        ex = list(extras.get(tile, []))
        free = [k for k, it in enumerate(items) if k >= 3 and not it[2]]
        per = -(-len(ex) // max(1, len(free))) if ex else 0
        for k, (pre, m, post) in enumerate(items):
            for x in pre:
                x()
            a(m)
            if post:
                post()
            elif k >= 3:
                for _ in range(per):
                    if ex:
                        x = ex.pop(0)
                        if callable(x):
                            x()
                        else:
                            a(x)
        assert not ex


pair_base(sA, L.FA)
a('s_lshl_b32 s%d, s%d, 8' % (sB, sG))
a('s_add_u32 s%d, s%d, s%d' % (sA, sA, sB))
a('v_lshl_add_u32 v240, v0, 2, s%d' % sA)
a('s_lshl_b32 s%d, s%d, 2' % (sB, sW))
a('s_lshl_b32 s%d, 0x000f000f, s%d' % (sMK, sB))
a('s_mov_b32 s%d, s%d' % (sMK + 1, sMK))
red_addrs()
publish_setup(L.XB, L.SB, L.FB, True, 4)
a('s_mov_b32 s%d, s%d' % (sPC, sFD))
a('s_mov_b32 s%d, s%d' % (sPFC, sFAST))
pair_base(sA, L.O)
a('s_lshl_b32 s%d, s%d, 6' % (sB, sG))
a('s_lshl_b32 s%d, s%d, 2' % (sCc, sW))
a('s_add_u32 s%d, s%d, s%d' % (sB, sB, sCc))
a('s_lshl_b32 s%d, s%d, 10' % (sB, sB))
a('s_add_u32 s20, s%d, s%d' % (sA, sB))
for t in range(1, 4):
    a('s_add_u32 s%d, s20, %d' % (20 + t, 16384 * t))
poll(240)
stamp()


def b_oload(tile, i):
    return 'buffer_load_dwordx4 %s, v1, %s, s%d offen offset:%d sc1' % (vr(BO + (tile * 4 + i) * 4), srd(S_WS), 20 + tile, 1024 * i)


om = {}
for tile in range(2):
    for i in range(4):
        a(b_oload(tile, i))
        om[(tile, i)] = a.vm_mark()


def b_tile(tile):
    items = []
    for i in range(4):
        for t in range(4):
            r = BACC + (tile * 4 + t) * 4
            pre = [(lambda tl=tile, ii=i: a.wait_vm(om[(tl, ii)]))] if t == 0 else []
            post = None
            if tile < 2 and t == 1:
                def post(tl=tile + 2, ii=i):
                    a(b_oload(tl, ii))
                    om[(tl, ii)] = a.vm_mark()
            if tile >= 2 and t == 1:
                def post(idx=4 * (tile - 2) + i):
                    a(c_wload(idx))
            items.append((pre, '%s %s, %s, %s, %s' % (MFMA, vr(r), vr(BW + (i * 4 + t) * 4), vr(BO + (tile * 4 + i) * 4),
                                                      '0' if i == 0 else vr(r)), post))
    return items


BT0, BT1, BPK = 226, 2, 18
run_tiles(b_tile, {1: red_writes(BACC, 0), 2: red_writes(BACC + 16, 1), 3: red_writes(BACC + 32, 2)})
stamp2()
for x in red_writes(BACC + 48, 3):
    a(x)
for x in finish_pre(0, False, BT0) + finish_pre(1, False, BT1):
    a(x)
a('s_waitcnt lgkmcnt(0)')
a('s_barrier')
stamp2()
BRD1 = 162
for x in red_reads(0, BRD) + red_reads(1, BRD1):
    a(x)
a('s_waitcnt lgkmcnt(8)')
for x in finish_sum(0, BRD, BT0, BPK, True):
    a(x)
publish_data(0, BPK)
a('s_waitcnt lgkmcnt(0)')
for x in finish_sum(1, BRD1, BT1, BPK + 4, True):
    a(x)
publish_data(1, BPK + 4)
stamp2()
publish_stats([BT0, BT1], 36, 32)
publish_flags(7, [c_wload(i) for i in range(8, 16)])
stamp()

for i in range(16, 22):
    a(c_wload(i))
CA = [2, 10]
XF, NXF = 18, 8
GTMP, GH = 50, 58
CCS, CB1, CB1R = 178, 186, 194
CSTR = 198
CMR = 214
VGA = 218
a('v_lshrrev_b32 v%d, 4, v0' % V_G)
a('v_and_b32 v%d, 15, v0' % V_TOK)
a('s_lshl_b32 s%d, s%d, 3' % (sA, sCI))
a('s_lshl_b32 s%d, s%d, 1' % (sB, sW))
a('s_add_u32 s%d, s%d, s%d' % (sA, sA, sB))
a('s_lshl_b32 s%d, s%d, 6' % (sB, sA))
a('s_add_u32 s%d, s%d, %d' % (sB, sB, L.CSC))
a('v_lshlrev_b32 v248, 4, v%d' % V_G)
for k in range(2):
    a('buffer_load_dwordx4 %s, v248, %s, s%d offen offset:%d sc1' % (vr(CCS + 4 * k), srd(S_WS), sB, 64 * k))
a('s_lshl_b32 s%d, s%d, 5' % (sB, sA))
a('v_lshlrev_b32 v248, 3, v%d' % V_G)
for k in range(2):
    a('buffer_load_dwordx2 %s, v248, %s, s%d offen offset:%d' % (vr(CB1R + 2 * k, 2), srd(S_B1), sB, 32 * k))
pair_base(sA, L.FB)
a('s_lshl_b32 s%d, s%d, 9' % (sB, sS))
a('s_add_u32 s%d, s%d, s%d' % (sA, sA, sB))
a('v_lshl_add_u32 v240, v0, 2, s%d' % sA)
a('s_mov_b32 s%d, 0x3fff3fff' % sMK)
a('s_mov_b32 s%d, 0x3fff3fff' % (sMK + 1))
pair_base(20, L.XB)
a('s_mul_i32 s%d, s%d, %d' % (sB, sS, 8 * 14336))
a('s_add_u32 s20, s20, s%d' % sB)
a('s_lshl_b32 s%d, s%d, 12' % (sB, sW))
a('s_add_u32 s20, s20, s%d' % sB)
a('s_add_u32 s21, s%d, %d' % (sB, L.L_R2))
pair_base(22, L.SB)
a('s_lshl_b32 s%d, s%d, 3' % (sB, sS))
a('s_add_u32 s%d, s%d, s%d' % (sB, sB, sW))
a('s_mul_i32 s%d, s%d, 1792' % (sB, sB))
a('s_add_u32 s22, s22, s%d' % sB)
a('s_add_u32 s23, s22, %d' % (4 * 1792))
pair_base(32, L.H)
a('s_mul_i32 s%d, s%d, %d' % (sB, sS, 8 * 56 * 1024))
a('s_add_u32 s32, s32, s%d' % sB)
a('s_lshl_b32 s%d, s%d, 2' % (sB, sCI))
a('s_add_u32 s%d, s%d, s%d' % (sB, sB, sW))
a('s_lshl_b32 s%d, s%d, 10' % (sCc, sB))
a('s_add_u32 s32, s32, s%d' % sCc)
pair_base(33, L.FC)
a('s_lshl_b32 s%d, s%d, 11' % (sCc, sS))
a('s_add_u32 s33, s33, s%d' % sCc)
a('s_lshl_b32 s%d, s%d, 2' % (sB, sB))
a('s_add_u32 s33, s33, s%d' % sB)
a('v_mov_b32 v241, s33')
a('v_mov_b32 v242, 0x%x' % INV)
a('v_cmp_eq_u32 vcc, 0, v0')
a('v_cndmask_b32 v241, v242, v241, vcc')
a('v_lshlrev_b32 v238, 3, v%d' % V_TOK)
a('v_lshl_add_u32 v238, v%d, 7, v238' % V_G)
a('v_mov_b32 v242, 0x%x' % INV)
a('v_cmp_lt_u32 vcc, 1, v%d' % V_G)
a('v_cndmask_b32 v239, 0, v242, vcc')
a('v_or_b32 v239, v239, v238')
a('v_add_u32 v252, %d, v1' % L.L_R2)
a('v_lshlrev_b32 v246, 3, v%d' % V_TOK)
a('v_add_u32 v246, %d, v246' % L.L_STC)
GA = 2.0 * 0.7978845608028654 * 1.4426950408889634
GB = GA * 0.044715
a('v_mov_b32 v%d, %s' % (VGA, f2h(-GA)))
a('v_mov_b32 v%d, %s' % (VGA + 1, f2h(-GA)))
a('s_mov_b32 s34, %s' % f2h(-GB))
a('s_mov_b32 s35, %s' % f2h(-GB))
wd_bases_hi = True
poll(240, 256)
stamp()


def c_dma_setup(t):
    return ['s_add_u32 s36, s20, %d' % (t * 14336), 's_add_u32 m0, s21, %d' % ((t & 3) * 16384)]


def c_dma(t, i):
    return 'buffer_load_dwordx4 v1, %s, s36 offen offset:%d sc1 lds' % (srd(S_WS), 1024 * i)


dm = {}
for x in c_dma_setup(0) + [c_dma(0, i) for i in range(4)]:
    a(x)
dm[0] = a.vm_mark()
wlate = {}
for i in range(22, 28):
    a(c_wload(i))
    wlate[i >> 1] = a.vm_mark()
for tt in range(2):
    for i in range(4):
        a('buffer_load_dwordx2 %s, v%d, %s, s%d offen offset:%d sc1' %
          (vr(CSTR + 8 * tt + 2 * i, 2), 239 if i == 3 else 238, srd(S_WS), 22 + tt, 512 * i))
cst_mark = a.vm_mark()
for x in c_dma_setup(1) + [c_dma(1, i) for i in range(4)]:
    a(x)
dm[1] = a.vm_mark()
for k in range(2):
    for p in range(2):
        a('v_lshlrev_b32 v%d, 16, v%d' % (CB1 + 4 * k + 2 * p, CB1R + 2 * k + p))
        a('v_and_b32 v%d, 0xffff0000, v%d' % (CB1 + 4 * k + 2 * p + 1, CB1R + 2 * k + p))
wd_bases()
a.wait_vm(dm[0])
a('s_barrier')
stamp()


def c_xread(t, u):
    n = t * 14 + u
    return 'ds_read_b128 %s, v252 offset:%d' % (vr(XF + 4 * (n % NXF)), (t & 3) * 16384 + u * 1024)


def gelu_pre(t):
    z, m = CA[t & 1], CMR + 2 * (t & 1)
    P = range(0, 8, 2)
    o = ['v_pk_fma_f32 %s, %s, %s, %s op_sel_hi:[1,0,1] neg_lo:[0,1,0] neg_hi:[0,1,0]' % (vr(z + e, 2), vr(CCS + e, 2), vr(m, 2), vr(z + e, 2)) for e in P]
    o += ['v_pk_fma_f32 %s, %s, %s, %s op_sel:[0,1,0] op_sel_hi:[1,1,1]' % (vr(z + e, 2), vr(z + e, 2), vr(m, 2), vr(CB1 + e, 2)) for e in P]
    o += ['v_pk_mul_f32 %s, %s, %s' % (vr(GTMP + e, 2), vr(z + e, 2), vr(z + e, 2)) for e in P]
    o += ['v_pk_fma_f32 %s, %s, s[34:35], %s' % (vr(GTMP + e, 2), vr(GTMP + e, 2), vr(VGA, 2)) for e in P]
    o += ['v_pk_mul_f32 %s, %s, %s' % (vr(GTMP + e, 2), vr(GTMP + e, 2), vr(z + e, 2)) for e in P]
    return o


def gelu_mid():
    o = {}
    for e in range(8):
        o.setdefault(2 * e, []).append('v_exp_f32 v%d, v%d' % (GTMP + e, GTMP + e))
        o.setdefault(2 * e + 3, []).append('v_add_f32 v%d, 1.0, v%d' % (GTMP + e, GTMP + e))
    for e in range(6):
        o.setdefault(16 + 2 * e, []).append('v_rcp_f32 v%d, v%d' % (GTMP + e, GTMP + e))
    o.setdefault(25, []).append('v_rcp_f32 v%d, v%d' % (GTMP + 6, GTMP + 6))
    o.setdefault(27, []).append('v_rcp_f32 v%d, v%d' % (GTMP + 7, GTMP + 7))
    return o


def gelu_post(t):
    z, h = CA[t & 1], GH + 4 * (t & 1)
    o = ['v_pk_mul_f32 %s, %s, %s' % (vr(GTMP + e, 2), vr(GTMP + e, 2), vr(z + e, 2)) for e in range(0, 8, 2)]
    o += ['v_cvt_pk_bf16_f32 v%d, v%d, v%d' % (h + p, GTMP + 2 * p, GTMP + 2 * p + 1) for p in range(4)]
    return o


def gelu_packed(t):
    z, m, h = CA[t & 1], CMR + 2 * (t & 1), GH + 4 * (t & 1)
    P = range(0, 8, 2)
    for e in P:
        a('v_pk_fma_f32 %s, %s, %s, %s op_sel_hi:[1,0,1] neg_lo:[0,1,0] neg_hi:[0,1,0]' % (vr(z + e, 2), vr(CCS + e, 2), vr(m, 2), vr(z + e, 2)))
    for e in P:
        a('v_pk_fma_f32 %s, %s, %s, %s op_sel:[0,1,0] op_sel_hi:[1,1,1]' % (vr(z + e, 2), vr(z + e, 2), vr(m, 2), vr(CB1 + e, 2)))
    for e in P:
        a('v_pk_mul_f32 %s, %s, %s' % (vr(GTMP + e, 2), vr(z + e, 2), vr(z + e, 2)))
    for e in P:
        a('v_pk_fma_f32 %s, %s, s[34:35], %s' % (vr(GTMP + e, 2), vr(GTMP + e, 2), vr(VGA, 2)))
    for e in P:
        a('v_pk_mul_f32 %s, %s, %s' % (vr(GTMP + e, 2), vr(GTMP + e, 2), vr(z + e, 2)))
    for e in range(8):
        a('v_exp_f32 v%d, v%d' % (GTMP + e, GTMP + e))
    for e in P:
        a('v_pk_add_f32 %s, %s, 1.0 op_sel_hi:[1,0]' % (vr(GTMP + e, 2), vr(GTMP + e, 2)))
    for e in range(8):
        a('v_rcp_f32 v%d, v%d' % (GTMP + e, GTMP + e))
    for e in P:
        a('v_pk_mul_f32 %s, %s, %s' % (vr(GTMP + e, 2), vr(GTMP + e, 2), vr(z + e, 2)))
    for p in range(4):
        a('v_cvt_pk_bf16_f32 v%d, v%d, v%d' % (h + p, GTMP + 2 * p, GTMP + 2 * p + 1))


hmk, fmk = {}, {}


def h_store(t):
    def f():
        a('s_add_u32 s36, s32, %d' % (t * 56 * 1024))
        store('buffer_store_dwordx4 %s, v1, %s, s36 offen' % (vr(GH + 4 * (t & 1)), srd(S_WS)), sFH)
        hmk[t] = a.vm_mark()
    return f


def h_flag(t):
    def f():
        a.wait_vm(hmk[t])
        store('buffer_store_dword v%d, v241, %s, 0 offen offset:%d' % (V_T, srd(S_WS), 256 * t), sFAST)
    return f


def wd_block(fis, wave):
    def f():
        skip = newlab('L_wd')
        a('s_cmp_eq_u32 s24, %d' % wave)
        a('s_cbranch_scc0 %s' % skip)
        for fi in fis:
            a(wd_load(fi))
            a.vm_issued -= 1
        a.label(skip)
    return f


cst_fill = []
for tt in range(2):
    r = CSTR + 8 * tt
    for c_ in range(2):
        cst_fill += ['v_add_f32 v%d, v%d, v%d' % (r + c_, r + c_, r + 2 + c_),
                     'v_add_f32 v%d, v%d, v%d' % (r + 4 + c_, r + 4 + c_, r + 6 + c_),
                     'v_add_f32 v%d, v%d, v%d' % (r + c_, r + c_, r + 4 + c_)]
    cst_fill += xg_reduce(r, r + 2) + xg_reduce(r + 1, r + 3) + stats_finish(r, r + 1, r + 2, True)
a('s_lshl_b32 s%d, s%d, 7' % (sA, sW))
a('v_add_u32 v247, s%d, v246' % sA)
cst_fill += ['ds_write_b64 v247, %s' % vr(CSTR, 2), 'ds_write_b64 v247, %s offset:512' % vr(CSTR + 8, 2)]
LOOKX = 6


def emit_c_loop(wd_list):
    for u in range(LOOKX):
        a(c_xread(0, u))
    for t in range(8):
        nonvec = {}

        def put(k, x):
            nonvec.setdefault(k, []).append(x)
        for u in range(14):
            n = t * 14 + u
            m = n + LOOKX
            if m < 8 * 14:
                put(2 * u + 1, c_xread(m // 14, m % 14))
            if u % 2 == 1 and n + 1 < 8 * 14:
                put(2 * u + 1, 's_waitcnt lgkmcnt(%d)' % min(LOOKX - 2, 8 * 14 - 1 - (n + 2)))
        if t < 7:
            nonvec[14] = [('bar', t + 1)] + nonvec.get(14, [])
        if t + 2 < 8:
            su = c_dma_setup(t + 2)
            put(0, su[0])
            put(0, su[1])
            for i in range(4):
                put(2 + 2 * i, ('dma', t + 2, i))
        if t >= 3:
            put(20, ('call', h_flag(t - 3)))
        if t < 7:
            for k in (10, 12, 16, 18, 22, 24, 26):
                if wd_list:
                    put(k, wd_load(wd_list.pop(0)))
        if t > 0:
            put(17, 'ds_read_b64 %s, v246 offset:%d' % (vr(CMR + 2 * (t & 1), 2), 128 * t))
        valu = gelu_mid() if t >= 1 else {}
        if t >= 2:
            for x in gelu_post(t - 2):
                a(x)
            h_store(t - 2)()
        if t >= 1:
            for x in gelu_pre(t - 1):
                a(x)
        fill = list(cst_fill) if t == 0 else []
        first = 8
        fi = 0
        for k in range(28):
            u, kk = k >> 1, k & 1
            n = t * 14 + u
            if t == 0 and k == 0:
                a('s_waitcnt lgkmcnt(%d)' % (LOOKX - 2))
            if t == 0 and kk == 0 and u in wlate:
                a.wait_vm(wlate[u])
            if t == 0 and k == first:
                a.wait_vm(cst_mark)
            r = CA[t & 1] + 4 * kk
            a('%s %s, %s, %s, %s' % (MFMA, vr(r), vr(CWW + 4 * (2 * u + kk)), vr(XF + 4 * (n % NXF)), '0' if u == 0 else vr(r)))
            for it in nonvec.get(k, []):
                if isinstance(it, str):
                    a(it)
                elif it[0] == 'bar':
                    a.wait_vm(dm[it[1]])
                    a('s_barrier')
                elif it[0] == 'dma':
                    a(c_dma(it[1], it[2]))
                    dm[it[1]] = a.vm_mark()
                elif it[0] == 'call':
                    it[1]()
            for x in valu.get(k, []):
                a(x)
            if fill and k >= first:
                want = -(-(len(fill)) * (k - first + 1) // (28 - first))
                while fi < want:
                    a(fill[fi])
                    fi += 1
        assert fi == len(fill)
        if t == 0:
            a('s_waitcnt lgkmcnt(0)')
            a('s_barrier')
            a('ds_read_b64 %s, v246 offset:0' % vr(CMR, 2))
            a('s_waitcnt lgkmcnt(0)')
    assert not wd_list


n_before = a.vm_issued
dm_init = dict(dm)
a('s_cmp_eq_u32 s%d, 0' % sPAIR)
a('s_cbranch_scc0 L_c_loop1')
emit_c_loop(list(range(*WD_CH[1])))
a('s_branch L_c_done')
a.label('L_c_loop1')
extra = a.vm_issued - n_before
a.vm_issued = n_before
dm.clear()
dm.update(dm_init)
emit_c_loop([])
a.label('L_c_done')
stamp()
pair_base(sA, L.FC)
a('s_lshl_b32 s%d, s%d, 10' % (sB, sG))
a('s_add_u32 s%d, s%d, s%d' % (sA, sA, sB))
a('s_mul_i32 s%d, s%d, 56' % (sB, sW))
a('s_add_u32 s%d, s%d, s%d' % (sA, sA, sB))
a('v_lshl_add_u32 v243, v0, 2, s%d' % sA)
a('s_mov_b32 s%d, 0x3fff' % sMK2)
a('s_mov_b32 s%d, 0' % (sMK2 + 1))
d0_mark = early_issue(244, 243)
for x in gelu_post(6):
    a(x)
h_store(6)()
a('s_waitcnt lgkmcnt(0)')
gelu_packed(7)
h_flag(5)()
h_store(7)()
stamp()

DH, DACC, DRD, DTMP = 2, 114, 178, 210
DRING, DLOOK = 16, 10
red_addrs()
publish_setup(L.XA[1], L.SA[1], L.FX[1], False, 5)
a('s_and_b32 s%d, s%d, 1' % (sA, sG))
a('s_lshr_b32 s%d, s%d, 1' % (sB, sW))
a('s_and_b32 s%d, s%d, s%d' % (sA, sA, sB))
a('s_xor_b32 s%d, s%d, 1' % (sA, sA))
a('s_and_b32 s%d, s%d, s%d' % (sPC, sFD, sA))
a('s_and_b32 s%d, s%d, s%d' % (sPFC, sFAST, sA))
pair_base(sA, L.H)
a('s_mul_i32 s%d, s%d, %d' % (sB, sG, 4 * 56 * 1024))
a('s_add_u32 s%d, s%d, s%d' % (sA, sA, sB))
a('s_mul_i32 s%d, s%d, %d' % (sB, sW, 14 * 1024))
a('s_add_u32 s%d, s%d, s%d' % (sO, sA, sB))
quarter_offsets(4, 56 * 1024)
a('s_cmp_eq_u32 s%d, 0' % sPAIR)
a('s_cbranch_scc1 L_d_nout')
owner_index()
a('s_mul_i32 s%d, s%d, 14336' % (sPX, sB))
a('s_lshl_b32 s%d, s%d, 6' % (sA, sA))
a('s_add_u32 s%d, s%d, s%d' % (sPX, sPX, sA))
a('s_add_u32 s%d, s%d, %d' % (sPX2, sPX, 2 * 14336))
a.label('L_d_nout')
a('v_and_b32 v%d, 15, v0' % V_TOK)
a('v_lshrrev_b32 v%d, 4, v0' % V_G)
a('v_mul_u32_u24 v242, 896, v%d' % V_TOK)
a('v_lshl_add_u32 v242, v%d, 3, v242' % V_G)
early_check(244, 243, d0_mark)
stamp()


def d_hload(q):
    tile, kk = divmod(q, 14)
    return ('buffer_load_dwordx4 %s, v1, %s, s%d offen offset:%d sc1' %
            (vr(DH + (q % DRING) * 4), srd(S_WS), sO + 4 * tile + (kk >> 2), 1024 * (kk & 3)))


hm = {}
dmk = {}
for q in range(DLOOK):
    a(d_hload(q))
    hm[q] = a.vm_mark()
    if q == 6:
        dmk[1] = early_issue(244, 243, 256)
a('s_barrier')


def d_tile(tile):
    items = []
    for kk in range(14):
        q = tile * 14 + kk
        for t in range(4):
            r = DACC + (tile * 4 + t) * 4
            pre = [(lambda qq=q: a.wait_vm(hm[qq]))] if t == 0 else []
            if t == 0 and q in (3, 9):
                pre.append(h_flag({3: 6, 9: 7}[q]))
            post = None
            if t == 0 and q + DLOOK < 56:
                def post(qq=q + DLOOK):
                    if qq % 14 == 0:
                        early_check(244, 243, dmk[qq // 14], 256 * (qq // 14))
                    a(d_hload(qq))
                    hm[qq] = a.vm_mark()
                    if qq % 14 == 6 and qq // 14 < 3:
                        dmk[qq // 14 + 1] = early_issue(244, 243, 256 * (qq // 14 + 1))
            items.append((pre, '%s %s, %s, %s, %s' % (MFMA, vr(r), ar((kk * 4 + t) * 4), vr(DH + (q % DRING) * 4),
                                                      '0' if kk == 0 else vr(r)), post))
    return items


def d_out_store(st, pk):
    a('buffer_store_dwordx2 %s, v242, %s, s%d offen %s' % (vr(pk, 2), srd(S_OUT), sPX if st == 0 else sPX2, OUTSC))
    a('buffer_store_dwordx2 %s, v242, %s, s%d offen offset:32 %s' % (vr(pk + 2, 2), srd(S_OUT), sPX if st == 0 else sPX2, OUTSC))


def d_store(st, pk):
    fin, done = newlab('L_dfin'), newlab('L_ddone')
    a('s_cmp_eq_u32 s%d, 0' % sPAIR)
    a('s_cbranch_scc0 %s' % fin)
    publish_data(st, pk)
    a('s_branch %s' % done)
    a.label(fin)
    n = a.vm_issued
    d_out_store(st, pk)
    a.vm_issued = n
    a.label(done)


DT0, DT1, DPK = 210, 226, 66
stage0 = [lambda: (a('s_waitcnt lgkmcnt(0)'), a('s_barrier'))] + red_reads(0, DRD) + finish_pre(0, True, DT0)
stage0 += [lambda: a('s_waitcnt lgkmcnt(0)')] + finish_sum(0, DRD, DT0, DPK, False) + [lambda: d_store(0, DPK)]
run_tiles(d_tile, {1: red_writes(DACC, 0), 2: red_writes(DACC + 16, 1), 3: red_writes(DACC + 32, 2) + stage0})
stamp2()
for x in red_writes(DACC + 48, 3):
    a(x)
for x in finish_pre(1, True, DT1):
    a(x)
a('s_waitcnt lgkmcnt(0)')
a('s_barrier')
stamp2()
for x in red_reads(1, DRD):
    a(x)
a('s_waitcnt lgkmcnt(0)')
for x in finish_sum(1, DRD, DT1, DPK + 4, True):
    a(x)
d_store(1, DPK + 4)
stamp()
a('s_cmp_eq_u32 s%d, 0' % sPAIR)
a('s_cbranch_scc0 L_next_pair')
publish_flags(8)
publish_stats([DT0, DT1], 88, 84)
a('s_waitcnt vmcnt(0)')
stats_flags(L.FSA - L.FX[1], 8)
a.label('L_next_pair')
stamp()
a('s_add_u32 s%d, s%d, 1' % (sPAIR, sPAIR))
a('s_cmp_lt_u32 s%d, 2' % sPAIR)
a('s_cbranch_scc1 L_pair')

a('s_cmp_eq_u32 s2, 0')
a('s_cbranch_scc0 L_noepoch')
a('s_cmp_eq_u32 s%d, 0' % sW)
a('s_cbranch_scc0 L_noepoch')
a('buffer_load_dword v2, off, %s, 0 sc1' % srd(S_WS))
a('s_waitcnt vmcnt(0)')
a('v_add_u32 v2, 1, v2')
a('s_mov_b64 exec, 1')
a('buffer_store_dword v2, off, %s, 0 sc1' % srd(S_WS))
a('s_mov_b64 exec, -1')
a.label('L_noepoch')
if PAD:
    a.label('L_padspin')
    a('s_memrealtime s[34:35]')
    a('s_waitcnt lgkmcnt(0)')
    a('s_sub_u32 s34, s34, s0')
    a('s_cmp_lt_u32 s34, %d' % PAD[0])
    a('s_cbranch_scc1 L_padspin')
if DBG:
    a('s_memtime s[32:33]')
    a('s_memrealtime s[34:35]')
    a('s_waitcnt lgkmcnt(0)')
    a('s_sub_u32 s32, s32, s26')
    a('s_sub_u32 s34, s34, s0')
    build_srd(S_TMP, P_DBG, 256)
    a('v_mov_b32 v2, s32')
    a('v_mov_b32 v3, s34')
    a('v_mov_b32 v4, s%d' % sFAST)
    a('v_mov_b32 v5, s%d' % sXCC)
    a('s_lshr_b32 s%d, s2, 6' % sA)
    a('s_lshl_b32 s%d, s%d, 4' % (sA, sA))
    a('s_and_b32 s%d, s2, 63' % sB)
    a('s_or_b32 s%d, s%d, s%d' % (sB, sB, sW))
    a('s_cmp_eq_u32 s%d, 0' % sB)
    a('s_cselect_b32 s%d, s%d, 0x%x' % (sA, sA, INV))
    a('v_mov_b32 v6, s%d' % sA)
    a('s_mov_b64 exec, 1')
    a('buffer_store_dwordx4 v[2:5], v6, %s, 0 offen' % srd(S_TMP))
    a('s_mov_b64 exec, -1')
if DIAG:
    stamp()
    a('s_mov_b32 s%d, 63' % sSTI)
    a('s_lshl_b64 exec, 1, s%d' % sSTI)
    a('v_mov_b32 v%d, s%d' % (V_STAMP, sERR))
    a('s_mov_b32 s%d, 62' % sSTI)
    a('s_lshl_b64 exec, 1, s%d' % sSTI)
    a('v_mov_b32 v%d, s%d' % (V_STAMP, sFAST))
    a('s_mov_b64 exec, -1')
    a('s_lshl_b32 s%d, s2, 2' % sA)
    a('s_add_u32 s%d, s%d, s%d' % (sA, sA, sW))
    a('s_lshl_b32 s%d, s%d, 8' % (sA, sA))
    a('v_lshlrev_b32 v2, 2, v0')
    a('s_add_u32 s%d, s%d, %d' % (sA, sA, L.WS_USED))
    a('s_mov_b32 s%d, 0x%x' % (S_WS + 2, L.WS_USED + 256 * 1024))
    a('buffer_store_dword v%d, v2, %s, s%d offen' % (V_STAMP, srd(S_WS), sA))
    if DBGST:
        build_srd(S_TMP, P_DBG, 256)
        a('v_readfirstlane_b32 s%d, v%d' % (sA, V_STAMP))
        a('s_nop 4')
        a('v_subrev_u32 v3, s%d, v%d' % (sA, V_STAMP))
        a('s_or_b32 s%d, s2, s%d' % (sB, sW))
        a('s_cmp_eq_u32 s%d, 0' % sB)
        a('s_cselect_b32 s%d, 0, 0x%x' % (sB, INV))
        a('v_or_b32 v2, s%d, v2' % sB)
        SEL = [int(x[6:]) for x in sys.argv if x.startswith('--sel=')]
        sel = SEL[0] if SEL else 1
        a('v_subrev_u32 v2, %d, v2' % (4 * sel))
        a('buffer_store_dword v3, v2, %s, 0 offen' % srd(S_TMP))
a.label('L_end')
a('s_endpgm')

a.finalize()
body = a.text()

import os
hdr = open(os.path.join(os.path.dirname(os.path.abspath(__file__)), 'header.txt')).read()
out = hdr + '; @launch grid=(256,1,1) block=(256,1,1) lds=%d\n' % L.LDS_BYTES
out += '.amdgcn_target "amdgcn-amd-amdhsa--gfx950"\n.text\n.globl %s_kernel\n.p2align 8\n.type %s_kernel,@function\n%s_kernel:\n' % (NAME, NAME, NAME)
out += body
out += '''.section .rodata,"a"
.p2align 6
.amdhsa_kernel %s_kernel
  .amdhsa_next_free_vgpr 512
  .amdhsa_next_free_sgpr 102
  .amdhsa_accum_offset 256
  .amdhsa_group_segment_fixed_size 0
  .amdhsa_kernarg_size 88
  .amdhsa_user_sgpr_count 2
  .amdhsa_user_sgpr_kernarg_segment_ptr 1
  .amdhsa_system_sgpr_workgroup_id_x 1
.end_amdhsa_kernel
''' % NAME
sys.stdout.write(out)
```

```python
import struct
import sys
from asmlib import Asm
import layout as L

NAME = 'interleave_layers__sliding_local_dilated__mixer_channel_mlp__prompt'
DIAG = '--diag' in sys.argv
FASTMODE = ([x[7:] for x in sys.argv if x.startswith('--fast=')] + ['flags'])[0]
NOFAST = FASTMODE == 'none'
PAD = [int(x[6:]) for x in sys.argv if x.startswith('--pad=')]
DBG = '--dbg' in sys.argv or bool(PAD)
SPIN_LIMIT = 200000
OUTSC = ([x[8:] for x in sys.argv if x.startswith('--outsc=')] + [''])[0].replace('_', ' ')
SLEEP = int(([x[8:] for x in sys.argv if x.startswith('--sleep=')] + ['0'])[0])
INV = 0x80000000

a = Asm()

sXCC = 3
S_WS, S_TMP, S_B1, S_OUT = 4, 8, 12, 16
P_X, P_WQKV, P_WO, P_BX, P_W1, P_B1, P_W2, P_B2, P_OUT, P_DBG, P_WSP = 20, 22, 24, 26, 28, 30, 32, 34, 36, 38, 40
sS, sC, sG, sJ, sW, sT, sPAIR, sSPIN = 42, 43, 44, 45, 46, 47, 48, 49
sM1 = 50
sM2 = 58
sM0 = 66
sO = 74
sA, sB, sCc, sD = 90, 91, 92, 93
sMK = 94
sTS = 96
sGT = 98
sERR = 99
sSTI = 100
sFAST = 101
sFD = 27
sPFC = 26
sFH = 25


def srd(n):
    return 's[%d:%d]' % (n, n + 3)


def vr(n, k=4):
    return 'v[%d:%d]' % (n, n + k - 1)


def ar(n, k=4):
    return 'a[%d:%d]' % (n, n + k - 1)


def sp(n):
    return 's[%d:%d]' % (n, n + 1)


def f2h(x):
    return '0x%08x' % struct.unpack('<I', struct.pack('<f', x))[0]


V_T, V_STAMP = 254, 255
V_TOK, V_G = 250, 251
MFMA = 'v_mfma_f32_16x16x32_bf16'


DIAG2 = '--diag2' in sys.argv
PREF = '--pref' in sys.argv
TOUCH = '--touch' in sys.argv
DBGST = '--dbgst' in sys.argv


def stamp2():
    if DIAG2:
        stamp()


def stamp():
    if not DIAG:
        return
    a('s_memtime %s' % sp(sTS))
    a('s_waitcnt lgkmcnt(0)')
    a('s_lshl_b64 exec, 1, s%d' % sSTI)
    a('v_mov_b32 v%d, s%d' % (V_STAMP, sTS))
    a('s_mov_b64 exec, -1')
    a('s_add_u32 s%d, s%d, 1' % (sSTI, sSTI))


lab_no = [0]


def newlab(p):
    lab_no[0] += 1
    return '%s_%d' % (p, lab_no[0])


def build_srd(dst, ptr, nbytes):
    a('s_mov_b32 s%d, s%d' % (dst, ptr))
    a('s_and_b32 s%d, s%d, 0xffff' % (dst + 1, ptr + 1))
    a('s_mov_b32 s%d, 0x%x' % (dst + 2, nbytes))
    a('s_mov_b32 s%d, 0x20000' % (dst + 3))


def poll(voff, off2=None):
    lab, done = newlab('L_poll'), newlab('L_polldone')
    a('s_mov_b64 exec, %s' % sp(sMK))
    a('s_mov_b32 s%d, 0' % sSPIN)
    a.label(lab)
    a('buffer_load_dword v253, v%d, %s, 0 offen sc1' % (voff, srd(S_WS)))
    if off2 is not None:
        a('buffer_load_dword v245, v%d, %s, 0 offen offset:%d sc1' % (voff, srd(S_WS), off2))
    a('s_waitcnt vmcnt(0)')
    if off2 is not None:
        a('v_xor_b32 v245, s%d, v245' % sT)
        a('v_xor_b32 v253, s%d, v253' % sT)
        a('v_or_b32 v253, v253, v245')
        a('v_cmp_ne_u32 vcc, 0, v253')
    else:
        a('v_cmp_ne_u32 vcc, s%d, v253' % sT)
    a('s_nop 4')
    a('s_cbranch_vccz %s' % done)
    if SLEEP:
        a('s_sleep %d' % SLEEP)
    a('s_add_u32 s%d, s%d, 1' % (sSPIN, sSPIN))
    a('s_cmp_lt_u32 s%d, %d' % (sSPIN, SPIN_LIMIT))
    a('s_cbranch_scc1 %s' % lab)
    a('s_add_u32 s%d, s%d, 1' % (sERR, sERR))
    a.label(done)
    a('s_mov_b64 exec, -1')


sMK2 = 30


def early_issue(dst, voff, off=0):
    a('s_mov_b64 exec, %s' % sp(sMK2))
    a('buffer_load_dword v%d, v%d, %s, 0 offen offset:%d sc1' % (dst, voff, srd(S_WS), off))
    a('s_mov_b64 exec, -1')
    return a.vm_mark()


def early_check(dst, voff, mark, off=0):
    ok = newlab('L_early')
    a.wait_vm(mark)
    a('s_mov_b64 exec, %s' % sp(sMK2))
    a('v_cmp_ne_u32 vcc, s%d, v%d' % (sT, dst))
    a('s_mov_b64 exec, -1')
    a('s_nop 2')
    a('s_cbranch_vccz %s' % ok)
    a('s_mov_b64 %s, %s' % (sp(sMK), sp(sMK2)))
    n = a.vm_issued
    if off:
        a('v_add_u32 v253, %d, v%d' % (off, voff))
        a('v_mov_b32 v%d, v253' % dst)
        poll(dst)
    else:
        poll(voff)
    a.vm_issued = n
    a.label(ok)


def store(fmt, cond=None):
    if cond is None or NOFAST or (FASTMODE == 'flags' and cond in (sFD, sFH, sPC)):
        a(fmt + ' sc1')
        return
    slow, done = newlab('L_slow'), newlab('L_st')
    a('s_cmp_eq_u32 s%d, 0' % cond)
    a('s_cbranch_scc1 %s' % slow)
    a(fmt)
    a('s_branch %s' % done)
    a.label(slow)
    a(fmt + ' sc1')
    a.vm_issued -= 1
    a.label(done)


def set_flags(voff, nlanes, cond=None, val=V_T, between=()):
    mark = a.vm_mark()
    for x in between:
        a(x)
    a.wait_vm(mark)
    a('s_mov_b64 exec, %d' % ((1 << nlanes) - 1))
    store('buffer_store_dword v%d, v%d, %s, 0 offen' % (val, voff, srd(S_WS)), cond)
    a('s_mov_b64 exec, -1')


def xg_reduce(x, t, op='v_add_f32'):
    return ['v_mov_b32 v%d, v%d' % (t, x),
            'v_permlane32_swap_b32 v%d, v%d' % (x, t),
            '%s v%d, v%d, v%d' % (op, x, x, t),
            'v_mov_b32 v%d, v%d' % (t, x),
            'v_permlane16_swap_b32 v%d, v%d' % (x, t),
            '%s v%d, v%d, v%d' % (op, x, x, t)]


EPS = 1e-5


def stats_finish(s1, s2, t, double_ln):
    o = ['v_mul_f32 v%d, %s, v%d' % (s1, f2h(1.0 / 448), s1),
         'v_mul_f32 v%d, %s, v%d' % (s2, f2h(1.0 / 448), s2),
         'v_fma_f32 v%d, -v%d, v%d, v%d' % (s2, s1, s1, s2),
         'v_max_f32 v%d, 0, v%d' % (s2, s2),
         'v_add_f32 v%d, %s, v%d' % (t, f2h(EPS), s2),
         'v_rsq_f32 v%d, v%d' % (t, t)]
    if not double_ln:
        o += ['v_mov_b32 v%d, v%d' % (s2, t)]
    else:
        o += ['v_mul_f32 v%d, v%d, v%d' % (s2, s2, t),
              'v_fmaak_f32 v%d, v%d, v%d, %s' % (s2, s2, t, f2h(EPS)),
              'v_rsq_f32 v%d, v%d' % (s2, s2),
              'v_mul_f32 v%d, v%d, v%d' % (s2, s2, t)]
    return o


def pair_base(dst, arr):
    a('s_mul_i32 s%d, s%d, %d' % (dst, sPAIR, arr[1] - arr[0]))
    a('s_add_u32 s%d, s%d, %d' % (dst, dst, arr[0]))


def quarter_offsets(n, stride):
    for t in range(n):
        if t:
            a('s_add_u32 s%d, s%d, %d' % (sO + 4 * t, sO + 4 * (t - 1), stride))
        for q in range(1, 4):
            a('s_add_u32 s%d, s%d, %d' % (sO + 4 * t + q, sO + 4 * t, 4096 * q))


sPX, sPS, sPF, sPC, sPX2 = 36, 37, 28, 29, 33


def stats_flags(delta, lsh):
    a('v_lshlrev_b32 v241, %d, v0' % lsh)
    a('s_add_u32 s%d, s%d, %d' % (sA, sPF, delta))
    a('v_add_u32 v241, s%d, v241' % sA)
    a('s_mov_b64 exec, 3')
    store('buffer_store_dword v%d, v241, %s, 0 offen' % (V_T, srd(S_WS)), sPFC)
    a('s_mov_b64 exec, -1')


a('s_cmp_ge_u32 s2, 256')
a('s_cbranch_scc1 L_end')
a('s_load_dwordx16 s[20:35], s[0:1], 0')
a('s_load_dwordx4 s[36:39], s[0:1], 64')
a('s_load_dwordx2 s[40:41], s[0:1], 80')
a('s_getreg_b32 s%d, hwreg(HW_REG_XCC_ID, 0, 4)' % sXCC)
a('s_and_b32 s%d, s2, 7' % sA)
a('s_lshr_b32 s%d, s2, 3' % sB)
a('s_lshr_b32 s%d, s%d, 4' % (sCc, sB))
a('s_lshl_b32 s%d, s%d, 1' % (sS, sA))
a('s_add_u32 s%d, s%d, s%d' % (sS, sS, sCc))
a('s_and_b32 s%d, s%d, 15' % (sC, sB))
a('s_lshr_b32 s%d, s%d, 3' % (sA, sC))
a('s_lshl_b32 s%d, s%d, 1' % (sG, sS))
a('s_add_u32 s%d, s%d, s%d' % (sG, sG, sA))
a('s_and_b32 s%d, s%d, 7' % (sJ, sC))
a('s_mov_b32 s%d, 0' % sERR)
if PREF:
    a('s_getpc_b64 s[96:97]')
    a.label('L_pc')
    a('s_lshl_b32 s%d, s%d, 11' % (sA, sB))
    a('v_lshlrev_b32 v3, 3, v0')
    a('v_add_u32 v3, s%d, v3' % sA)
    a('v_min_u32 v3, L_end-L_pc-8, v3')
    a('global_load_dwordx2 v[252:253], v3, s[96:97]')
a('v_lshrrev_b32 v2, 6, v0')
a('v_and_b32 v0, 63, v0')
a('v_readfirstlane_b32 s%d, v2' % sW)
a('v_lshlrev_b32 v1, 4, v0')
if DIAG:
    a('v_mov_b32 v%d, 0' % V_STAMP)
    a('s_mov_b32 s%d, 0' % sSTI)
stamp()
a('v_and_b32 v%d, 15, v0' % V_TOK)
a('v_lshrrev_b32 v%d, 4, v0' % V_G)
sSTG = 40
a('s_waitcnt lgkmcnt(0)')
if DBG:
    a('s_memtime s[26:27]')
    a('s_memrealtime s[0:1]')
    a('s_waitcnt lgkmcnt(0)')
build_srd(S_WS, P_WSP, L.WS_USED)
a('buffer_load_dword v%d, off, %s, 0 sc1' % (V_T, srd(S_WS)))
a('s_lshl_b32 s%d, s%d, 14' % (sSTG, sW))
a('s_add_u32 s%d, s%d, %d' % (sSTG, sSTG, L.L_R2))

build_srd(S_TMP, P_X, 2048 * 896)
a('v_mul_u32_u24 v2, 896, v%d' % V_TOK)
a('v_lshl_add_u32 v2, v%d, 3, v2' % V_G)
a('s_lshr_b32 s%d, s%d, 1' % (sA, sC))
a('s_lshl_b32 s%d, s%d, 3' % (sB, sS))
a('s_add_u32 s%d, s%d, s%d' % (sO + 0, sA, sB))
a('s_and_b32 s%d, s%d, 1' % (sA, sC))
a('s_mul_i32 s%d, s%d, 7' % (sA, sA))
a('s_add_u32 s%d, s%d, s%d' % (sO + 1, sA, sW))
a('s_cmp_lt_u32 s%d, 3' % sW)
a('s_cselect_b32 s%d, 0, 0x%x' % (sO + 2, INV))
a('s_mul_i32 s%d, s%d, 14336' % (sA, sO + 0))
a('s_lshl_b32 s%d, s%d, 6' % (sB, sO + 1))
a('s_add_u32 s%d, s%d, s%d' % (sA, sA, sB))
a('v_or_b32 v3, s%d, v2' % (sO + 2))
a('buffer_load_dwordx2 v[10:11], v2, %s, s%d offen' % (srd(S_TMP), sA))
a('buffer_load_dwordx2 v[12:13], v2, %s, s%d offen offset:32' % (srd(S_TMP), sA))
a('buffer_load_dwordx2 v[14:15], v3, %s, s%d offen offset:256' % (srd(S_TMP), sA))
a('buffer_load_dwordx2 v[16:17], v3, %s, s%d offen offset:288' % (srd(S_TMP), sA))

build_srd(S_TMP, P_WQKV, 448 * 2688)
qMAT, qU, qINV = sO + 3, sO + 4, sO + 5
a('s_lshl_b32 s%d, s%d, 4' % (sA, sW))
a('s_add_u32 s%d, s%d, s%d' % (sA, sA, sS))
a('s_cmp_lt_u32 s%d, 42' % sA)
a('s_cselect_b32 s%d, 0, 0x%x' % (qINV, INV))
a('s_min_u32 s%d, s%d, 41' % (sA, sA))
a('s_mul_i32 s%d, s%d, 4682' % (qMAT, sA))
a('s_lshr_b32 s%d, s%d, 16' % (qMAT, qMAT))
a('s_mul_i32 s%d, s%d, 14' % (sB, qMAT))
a('s_sub_u32 s%d, s%d, s%d' % (qU, sA, sB))
a('s_mul_i32 s%d, s%d, %d' % (sA, qU, 32 * 2688))
a('s_mul_i32 s%d, s%d, 896' % (sB, qMAT))
a('s_add_u32 s%d, s%d, s%d' % (sA, sA, sB))
a('s_mul_i32 s%d, s%d, 56' % (sB, sC))
a('s_add_u32 s%d, s%d, s%d' % (sA, sA, sB))
a('v_lshrrev_b32 v4, 2, v0')
a('v_mul_u32_u24 v4, 2688, v4')
a('v_and_b32 v5, 3, v0')
a('v_lshl_add_u32 v4, v5, 4, v4')
a('v_or_b32 v4, s%d, v4' % qINV)
a('s_mov_b32 m0, s%d' % sSTG)
a('s_add_u32 s%d, s%d, %d' % (sB, sA, 16 * 2688))
a('buffer_load_dwordx4 v4, %s, s%d offen lds' % (srd(S_TMP), sA))
a('s_add_u32 m0, s%d, 1024' % sSTG)
a('s_nop 0')
a('buffer_load_dwordx4 v4, %s, s%d offen lds' % (srd(S_TMP), sB))

build_srd(S_B1, P_B1, 1792 * 2)
build_srd(S_OUT, P_OUT, 2048 * 896)
a('v_bfe_u32 v18, v0, 2, 2')
a('v_lshl_add_u32 v18, v%d, 2, v18' % V_G)
a('v_and_b32 v19, 3, v0')
a('v_lshlrev_b32 v19, 3, v19')
if TOUCH:
    a('v_lshlrev_b32 v21, 21, v0')
    a('s_mov_b64 exec, 0x1ffff')
    a('buffer_load_dword v253, v21, %s, 0 offen' % srd(S_WS))
    a('s_mov_b64 exec, -1')
    a('s_waitcnt vmcnt(1)')
else:
    a('s_waitcnt vmcnt(0)')
stamp()

a('s_mov_b32 s%d, 0x9E3779B1' % sA)
a('v_mul_lo_u32 v%d, v%d, s%d' % (V_T, V_T, sA))
a('v_add_u32 v%d, 0x7F4A7C15, v%d' % (V_T, V_T))
a('v_and_b32 v%d, -16, v%d' % (V_T, V_T))
a('v_lshl_add_u32 v20, v18, 6, v19')
a('v_add_u32 v20, s%d, v20' % sSTG)
for hf in range(2):
    a('ds_read_b64_tr_b16 %s, v20 offset:%d' % (vr(24 + 4 * hf, 2), 32 * hf))
    a('ds_read_b64_tr_b16 %s, v20 offset:%d' % (vr(26 + 4 * hf, 2), 32 * hf + 1024))
a('v_readfirstlane_b32 s%d, v%d' % (sT, V_T))
a('s_mul_i32 s%d, s%d, 14' % (sA, sO + 0))
a('s_add_u32 s%d, s%d, s%d' % (sA, sA, sO + 1))
a('s_lshl_b32 s%d, s%d, 10' % (sB, sA))
a('s_add_u32 s%d, s%d, %d' % (sB, sB, L.XA[0]))
a('v_or_b32 v3, s%d, v1' % (sO + 2))
a('buffer_store_dwordx4 v[10:13], v1, %s, s%d offen sc1' % (srd(S_WS), sB))
a('s_add_u32 s%d, s%d, 4096' % (sB, sB))
a('buffer_store_dwordx4 v[14:17], v3, %s, s%d offen sc1' % (srd(S_WS), sB))
a('v_cmp_gt_u32 vcc, 12, v%d' % V_TOK)
a('s_mul_i32 s%d, s%d, 84' % (sB, sC))
a('s_mul_i32 s%d, s%d, 28' % (sCc, qMAT))
a('s_add_u32 s%d, s%d, s%d' % (sB, sB, sCc))
a('s_add_u32 s%d, s%d, s%d' % (sB, sB, qU))
a('s_lshl_b32 s%d, s%d, 10' % (sB, sB))
a('s_add_u32 s%d, s%d, %d' % (sB, sB, L.WA))
a('v_or_b32 v4, s%d, v1' % qINV)
a('s_waitcnt lgkmcnt(0)')
for p in range(4):
    a('v_cndmask_b32 v%d, 0, v%d, vcc' % (28 + p, 28 + p))
a('buffer_store_dwordx4 v[24:27], v4, %s, s%d offen sc1' % (srd(S_WS), sB))
a('s_add_u32 s%d, s%d, %d' % (sB, sB, 14 * 1024))
a('buffer_store_dwordx4 v[28:31], v4, %s, s%d offen sc1' % (srd(S_WS), sB))
a('v_mov_b32 v2, 0x3f803f80')
for k in range(2):
    x, s1, s2 = 10 + 4 * k, 110 + 2 * k, 111 + 2 * k
    a('v_mov_b32 v%d, 0' % s1)
    a('v_mov_b32 v%d, 0' % s2)
    for p in range(4):
        a('v_dot2_f32_bf16 v%d, v%d, v2, v%d' % (s1, x + p, s1))
        a('v_dot2_f32_bf16 v%d, v%d, v%d, v%d' % (s2, x + p, x + p, s2))
    for t in xg_reduce(s1, 114) + xg_reduce(s2, 115):
        a(t)
a('s_lshl_b32 s%d, s%d, 7' % (sB, sA))
a('s_add_u32 s%d, s%d, %d' % (sB, sB, L.SA[0]))
a('v_lshlrev_b32 v2, 3, v%d' % V_TOK)
a('v_or_b32 v3, s%d, v2' % (sO + 2))
a('s_mov_b64 exec, 0xffff')
a('buffer_store_dwordx2 v[110:111], v2, %s, s%d offen sc1' % (srd(S_WS), sB))
a('buffer_store_dwordx2 v[112:113], v3, %s, s%d offen offset:512 sc1' % (srd(S_WS), sB))
a('s_mov_b64 exec, -1')
crit_mark = a.vm_mark()
bINV, bDST, bSTR = 20, 21, 22
a('s_lshl_b32 s%d, s%d, 5' % (sA, sW))
a('s_add_u32 s%d, s%d, s%d' % (sA, sA, sG))
a('s_cmp_lt_u32 s%d, 72' % sA)
a('s_cselect_b32 s%d, 0, 0x%x' % (bINV, INV))
a('s_cmp_eq_u32 s%d, 7' % sJ)
a('s_cselect_b32 s%d, 0x%x, s%d' % (bINV, INV, bINV))
a('s_min_u32 s%d, s%d, 71' % (sA, sA))
a('s_min_u32 s%d, s%d, 6' % (sD, sJ))
a('s_cmp_lt_u32 s%d, 16' % sA)
a('s_cselect_b32 s%d, s%d, s%d' % (S_TMP, P_WO, P_W2))
a('s_cselect_b32 s%d, s%d, s%d' % (S_TMP + 1, P_WO + 1, P_W2 + 1))
a('s_mov_b32 s%d, 0x%x' % (S_TMP + 2, 1792 * 896))
a('s_cselect_b32 s%d, 0x%x, s%d' % (S_TMP + 2, 448 * 896, S_TMP + 2))
a('s_cselect_b32 s%d, 28, 32' % sB)
a('s_cselect_b32 s%d, 0, 16' % sCc)
a('s_mov_b32 s%d, %d' % (bSTR, 56 * 1024))
a('s_cselect_b32 s%d, %d, s%d' % (bSTR, 16 * 1024, bSTR))
a('s_mov_b32 s%d, %d' % (bDST, L.WD))
a('s_cselect_b32 s%d, %d, s%d' % (bDST, L.WB, bDST))
a('s_cselect_b32 s%d, 0x%x, 0' % (sO + 9, INV))
a('s_and_b32 s%d, s%d, 0xffff' % (S_TMP + 1, S_TMP + 1))
a('s_mov_b32 s%d, 0x20000' % (S_TMP + 3))
a('s_sub_u32 s%d, s%d, s%d' % (sA, sA, sCc))
a('s_lshl_b32 s%d, s%d, 10' % (sCc, sA))
a('s_add_u32 s%d, s%d, s%d' % (bDST, bDST, sCc))
a('s_lshl_b32 s%d, s%d, 2' % (sCc, sD))
a('s_mul_i32 s%d, s%d, s%d' % (sCc, sCc, bSTR))
a('s_add_u32 s%d, s%d, s%d' % (bDST, bDST, sCc))
a('s_mul_i32 s%d, s%d, s%d' % (sA, sA, sB))
a('s_mul_i32 s%d, s%d, 896' % (sA, sA))
a('s_lshl_b32 s%d, s%d, 7' % (sB, sD))
a('s_add_u32 s%d, s%d, s%d' % (sA, sA, sB))
a('v_lshrrev_b32 v6, 3, v0')
a('v_mul_u32_u24 v6, 896, v6')
a('v_and_b32 v5, 7, v0')
a('v_lshl_add_u32 v6, v5, 4, v6')
a('v_or_b32 v6, s%d, v6' % bINV)
a('v_cmp_lt_u32 vcc, 31, v0')
a('v_mov_b32 v7, s%d' % (sO + 9))
a('v_cndmask_b32 v7, 0, v7, vcc')
a('v_or_b32 v7, v7, v6')
for q in range(4):
    a('s_add_u32 m0, s%d, %d' % (sSTG, 2048 + 1024 * q))
    if q:
        a('s_add_u32 s%d, s%d, %d' % (sA, sA, 8 * 896))
    else:
        a('s_nop 0')
    a('buffer_load_dwordx4 v%d, %s, s%d offen lds' % (7 if q == 3 else 6, srd(S_TMP), sA))

build_srd(S_TMP, P_W1, 448 * 3584)
cINV, cNT, cI12 = 23, 24, 25
a('s_cmp_lt_u32 s%d, 16' % sG)
a('s_cselect_b32 s%d, 0, 0x%x' % (cINV, INV))
a('s_cmp_eq_u32 s%d, 7' % sJ)
a('s_cselect_b32 s%d, 0x%x, s%d' % (cINV, INV, cINV))
a('s_min_u32 s%d, s%d, 6' % (sD, sJ))
a('s_lshl_b32 s%d, s%d, 4' % (cNT, sD))
a('s_and_b32 s%d, s%d, 15' % (sA, sG))
a('s_add_u32 s%d, s%d, s%d' % (cNT, cNT, sA))
a('s_cmp_lt_u32 s%d, 2' % sW)
a('s_cselect_b32 s%d, s%d, 0x%x' % (cI12, cINV, INV))
a('v_lshrrev_b32 v8, 1, v0')
a('v_mul_u32_u24 v8, 3584, v8')
a('v_and_b32 v5, 1, v0')
a('v_lshl_add_u32 v8, v5, 4, v8')
a('v_or_b32 v9, s%d, v8' % cI12)
a('v_or_b32 v8, s%d, v8' % cINV)
a('s_lshl_b32 s%d, s%d, 5' % (sB, cNT))
for i in range(4):
    a('s_add_u32 s%d, s%d, %d' % (sA, sW, 4 * i))
    a('s_min_u32 s%d, s%d, 13' % (sA, sA))
    a('s_mul_i32 s%d, s%d, %d' % (sA, sA, 32 * 3584))
    a('s_add_u32 s%d, s%d, s%d' % (sA, sA, sB))
    a('s_add_u32 m0, s%d, %d' % (sSTG, 6144 + 1024 * i))
    a('s_nop 0')
    a('buffer_load_dwordx4 v%d, %s, s%d offen lds' % (9 if i == 3 else 8, srd(S_TMP), sA))
a('s_lshl_b32 s%d, s%d, 5' % (sA, sO + 0))
a('s_add_u32 s%d, s%d, s%d' % (sA, sA, sO + 1))
a('s_lshl_b32 s%d, s%d, 2' % (sA, sA))
a('s_add_u32 s%d, s%d, %d' % (sA, sA, L.FX[0]))
a('v_lshlrev_b32 v2, 4, v0')
a('v_add_u32 v2, s%d, v2' % sA)
a('v_cmp_eq_u32 vcc, 1, v0')
a('v_mov_b32 v3, s%d' % (sO + 2))
a('v_cndmask_b32 v3, 0, v3, vcc')
a('v_or_b32 v2, v2, v3')
a('s_lshl_b32 s%d, s%d, 6' % (sA, sC))
a('s_lshl_b32 s%d, s%d, 2' % (sB, sS))
a('s_add_u32 s%d, s%d, s%d' % (sA, sA, sB))
a('s_add_u32 s%d, s%d, s%d' % (sA, sA, sW))
a('s_lshl_b32 s%d, s%d, 2' % (sA, sA))
a('s_add_u32 s%d, s%d, %d' % (sA, sA, L.FQ))
a('v_mov_b32 v3, s%d' % sA)
a('v_cmp_eq_u32 vcc, 2, v0')
a('v_cndmask_b32 v2, v2, v3, vcc')
a('s_lshl_b32 s%d, s%d, 4' % (sA, sS))
a('s_add_u32 s%d, s%d, s%d' % (sA, sA, sC))
a('s_lshl_b32 s%d, s%d, 2' % (sA, sA))
a('s_add_u32 s%d, s%d, %d' % (sA, sA, L.FXC))
a('s_cmp_eq_u32 s%d, 0' % sW)
a('s_cselect_b32 s%d, s%d, 0x%x' % (sA, sA, INV))
a('v_mov_b32 v3, s%d' % sA)
a('v_cmp_eq_u32 vcc, 3, v0')
a('v_cndmask_b32 v2, v2, v3, vcc')
a('v_or_b32 v3, s%d, v%d' % (sXCC, V_T))
a('v_cndmask_b32 v3, v%d, v3, vcc' % V_T)
stamp2()
a.wait_vm(crit_mark)
a('s_mov_b64 exec, 15')
a('buffer_store_dword v3, v2, %s, 0 offen sc1' % srd(S_WS))
a('s_mov_b64 exec, -1')
stamp()

a('s_waitcnt vmcnt(1)')
a('v_lshl_add_u32 v20, v18, 7, v19')
a('v_add_u32 v20, s%d, v20' % sSTG)
for t in range(4):
    a('ds_read_b64_tr_b16 %s, v20 offset:%d' % (vr(24 + 4 * t, 2), 2048 + 32 * t))
    a('ds_read_b64_tr_b16 %s, v20 offset:%d' % (vr(26 + 4 * t, 2), 2048 + 32 * t + 2048))
a('v_lshl_add_u32 v21, v18, 5, v19')
a('v_add_u32 v21, s%d, v21' % sSTG)
for i in range(4):
    a('ds_read_b64_tr_b16 %s, v21 offset:%d' % (vr(40 + 4 * i, 2), 6144 + 1024 * i))
    a('ds_read_b64_tr_b16 %s, v21 offset:%d' % (vr(42 + 4 * i, 2), 6144 + 1024 * i + 512))
a('v_or_b32 v6, s%d, v1' % bINV)
a('s_waitcnt lgkmcnt(8)')
for t in range(4):
    a('buffer_store_dwordx4 %s, v6, %s, s%d offen sc1' % (vr(24 + 4 * t), srd(S_WS), bDST))
    if t < 3:
        a('s_add_u32 s%d, s%d, s%d' % (bDST, bDST, bSTR))
a('s_mul_i32 s%d, s%d, 14' % (sA, cNT))
a('s_add_u32 s%d, s%d, s%d' % (sA, sA, sW))
a('s_lshl_b32 s%d, s%d, 10' % (sA, sA))
a('s_add_u32 s%d, s%d, %d' % (sA, sA, L.WC))
a('v_or_b32 v8, s%d, v1' % cINV)
a('v_or_b32 v9, s%d, v1' % cI12)
a('v_mov_b32 v2, 0x3f803f80')
a('v_mov_b32 v100, 0')
a('s_waitcnt lgkmcnt(0)')
for i in range(4):
    a('buffer_store_dwordx4 %s, v%d, %s, s%d offen sc1' % (vr(40 + 4 * i), 9 if i == 3 else 8, srd(S_WS), sA))
    a('s_add_u32 s%d, s%d, 4096' % (sA, sA))
for i in range(4):
    for p in range(4):
        a('v_dot2_f32_bf16 v100, v%d, v2, v100' % (40 + 4 * i + p))
for t in xg_reduce(100, 101):
    a(t)
a('s_lshl_b32 s%d, s%d, 6' % (sA, sW))
a('s_add_u32 s%d, s%d, %d' % (sA, sA, L.L_CSR))
a('v_lshlrev_b32 v2, 2, v%d' % V_TOK)
a('v_add_u32 v3, s%d, v2' % sA)
a('ds_write_b32 v3, v100')
a('s_waitcnt lgkmcnt(0)')
a('s_barrier')
a('v_add_u32 v3, %d, v2' % L.L_CSR)
for i in range(4):
    a('ds_read_b32 v%d, v3 offset:%d' % (104 + i, 64 * i))
a('s_lshl_b32 s%d, s%d, 6' % (sB, cNT))
a('s_add_u32 s%d, s%d, %d' % (sB, sB, L.CSC))
a('s_cmp_eq_u32 s%d, 0' % sW)
a('s_cselect_b32 s%d, s%d, 0x%x' % (sA, cINV, INV))
a('v_or_b32 v2, s%d, v2' % sA)
a('s_waitcnt lgkmcnt(0)')
a('v_add_f32 v104, v104, v105')
a('v_add_f32 v106, v106, v107')
a('v_add_f32 v104, v104, v106')
a('s_mov_b64 exec, 0xffff')
a('buffer_store_dword v104, v2, %s, s%d offen sc1' % (srd(S_WS), sB))
a('s_mov_b64 exec, -1')

a('v_and_b32 v2, 1, v%d' % V_TOK)
a('v_lshlrev_b32 v3, 2, v%d' % V_G)
a('v_add_u32 v6, 2, v%d' % V_TOK)
for i in range(4):
    a('v_add_u32 v4, %d, v3' % i)
    a('v_cmp_eq_u32 vcc, %d, v2' % (i & 1))
    a('s_mov_b64 %s, vcc' % sp(sMK))
    a('v_cmp_ge_u32 vcc, v4, v6')
    a('s_and_b64 %s, vcc, %s' % (sp(sM1 + 2 * i), sp(sMK)))
    a('v_cmp_le_u32 vcc, v4, v%d' % V_TOK)
    a('s_and_b64 %s, vcc, %s' % (sp(sM2 + 2 * i), sp(sMK)))
a('s_lshl_b32 s%d, s%d, 3' % (sA, sS))
a('s_lshl_b32 s%d, s%d, 1' % (sB, sW))
a('s_add_u32 s%d, s%d, s%d' % (sGT, sA, sB))
a('s_cmp_eq_u32 s%d, 0' % sGT)
for i in range(4):
    a('s_cselect_b64 %s, 0, %s' % (sp(sM0 + 2 * i), sp(sM1 + 2 * i)))
a('s_mov_b32 s%d, 0' % sPAIR)

def a_flag_addr(dst):
    pair_base(sA, L.FX)
    a('s_lshl_b32 s%d, s%d, 7' % (sB, sGT))
    a('s_add_u32 s%d, s%d, s%d' % (sA, sA, sB))
    a('s_sub_u32 s%d, s%d, 128' % (sA, sA))
    a('v_and_b32 v%d, 48, v0' % dst)
    a('v_add_u32 v%d, v%d, v0' % (dst, dst))
    a('v_lshl_add_u32 v%d, v%d, 2, s%d' % (dst, dst, sA))
    a('s_mov_b32 s%d, 0x3fff3fff' % sMK)
    a('s_mov_b32 s%d, 0x3fff' % (sMK + 1))
    a('s_cmp_eq_u32 s%d, 0' % sGT)
    a('s_cselect_b32 s%d, 0x3fff0000, s%d' % (sMK, sMK))


a('s_lshl_b32 s%d, s%d, 8' % (sA, sC))
a('s_add_u32 s%d, s%d, %d' % (sA, sA, L.FQ))
a('v_lshl_add_u32 v2, v0, 2, s%d' % sA)
a_flag_addr(3)
a('s_lshl_b32 s%d, s%d, 6' % (sA, sS))
a('s_add_u32 s%d, s%d, %d' % (sA, sA, L.FXC - 48 * 4))
a('v_lshl_add_u32 v4, v0, 2, s%d' % sA)
a('v_cmp_lt_u32 vcc, 47, v0')
a('v_cndmask_b32 v3, v3, v4, vcc')
a('v_mov_b32 v5, -1')
a('v_mov_b32 v6, -16')
a('v_cndmask_b32 v5, v5, v6, vcc')
a('s_or_b32 s%d, s%d, 0xffff0000' % (sMK + 1, sMK + 1))
a('s_mov_b32 s%d, 0' % sSPIN)
a.label('L_poll0')
a('buffer_load_dword v7, v2, %s, 0 offen sc1' % srd(S_WS))
a('s_mov_b64 exec, %s' % sp(sMK))
a('buffer_load_dword v8, v3, %s, 0 offen sc1' % srd(S_WS))
a('s_waitcnt vmcnt(0)')
a('v_and_b32 v9, v5, v8')
a('v_cmp_ne_u32 vcc, s%d, v9' % sT)
a('s_mov_b64 exec, -1')
a('s_mov_b64 %s, vcc' % sp(sTS))
a('v_cmp_ne_u32 vcc, s%d, v7' % sT)
a('s_or_b64 vcc, vcc, %s' % sp(sTS))
a('s_cbranch_vccz L_poll0_done')
a('s_add_u32 s%d, s%d, 1' % (sSPIN, sSPIN))
a('s_cmp_lt_u32 s%d, %d' % (sSPIN, SPIN_LIMIT))
a('s_cbranch_scc1 L_poll0')
a('s_add_u32 s%d, s%d, 1' % (sERR, sERR))
a.label('L_poll0_done')
a('v_and_b32 v9, 15, v8')
a('v_cmp_ne_u32 vcc, s%d, v9' % sXCC)
a('s_and_b32 s%d, vcc_hi, 0xffff0000' % sA)
a('s_cmp_eq_u32 s%d, 0' % sA)
a('s_cselect_b32 s%d, 1, 0' % sFAST)
stamp()
AQ, AK, AV = 2, 18, 42
WBUF = [66, 90]
XR = 114
CSACC = 186
STR = 210
SM, SR = 234, 237
NR, LOOK = 6, 4
A_ONES = 240


def a_xload(u):
    slot = u % NR
    return ['buffer_load_dwordx4 %s, v1, %s, s%d offen offset:%d sc1' %
            (vr(XR + (slot * 3 + t) * 4), srd(S_WS), sO + 4 * t + (u >> 2), 1024 * (u & 3)) for t in range(3)]


def a_offsets():
    pair_base(sA, L.XA)
    a('s_mul_i32 s%d, s%d, 14336' % (sB, sGT))
    a('s_add_u32 s%d, s%d, s%d' % (sO + 4, sA, sB))
    a('s_add_u32 s%d, s%d, 14336' % (sO + 8, sO + 4))
    a('s_sub_u32 s%d, s%d, 14336' % (sO + 0, sO + 4))
    a('s_cmp_eq_u32 s%d, 0' % sGT)
    a('s_cselect_b32 s%d, s%d, s%d' % (sO + 0, sO + 4, sO + 0))
    for t in range(3):
        for q in range(1, 4):
            a('s_add_u32 s%d, s%d, %d' % (sO + 4 * t + q, sO + 4 * t, 4096 * q))


def a_setup():
    if FASTMODE == 'flags':
        a('s_mov_b32 s%d, 0' % sFD)
        a('s_mov_b32 s%d, 0' % sFH)
    elif FASTMODE == 'p0':
        a('s_xor_b32 s%d, s%d, 1' % (sFD, sPAIR))
        a('s_and_b32 s%d, s%d, s%d' % (sFD, sFD, sFAST))
        a('s_mov_b32 s%d, s%d' % (sFH, sFD))
    elif FASTMODE == 'small':
        a('s_mov_b32 s%d, s%d' % (sFD, sFAST))
        a('s_mov_b32 s%d, 0' % sFH)
    elif FASTMODE == 'smallp0':
        a('s_mov_b32 s%d, s%d' % (sFD, sFAST))
        a('s_xor_b32 s%d, s%d, 1' % (sFH, sPAIR))
        a('s_and_b32 s%d, s%d, s%d' % (sFH, sFH, sFAST))
    else:
        a('s_mov_b32 s%d, s%d' % (sFD, sFAST))
        a('s_mov_b32 s%d, s%d' % (sFH, sFAST))
    pair_base(sA, L.SA)
    a('s_mul_i32 s%d, s%d, 1792' % (sB, sGT))
    a('s_add_u32 s%d, s%d, s%d' % (sO + 13, sA, sB))
    a('s_add_u32 s%d, s%d, 1792' % (sO + 14, sO + 13))
    a('s_sub_u32 s%d, s%d, 1792' % (sO + 12, sO + 13))
    a('s_cmp_eq_u32 s%d, 0' % sGT)
    a('s_cselect_b32 s%d, s%d, s%d' % (sO + 12, sO + 13, sO + 12))
    a('v_and_b32 v%d, 15, v0' % V_TOK)
    a('v_lshrrev_b32 v%d, 4, v0' % V_G)
    a('v_lshlrev_b32 v240, 3, v%d' % V_TOK)
    a('v_lshl_add_u32 v240, v%d, 7, v240' % V_G)
    a('v_mov_b32 v242, 0x%x' % INV)
    a('v_cmp_lt_u32 vcc, 1, v%d' % V_G)
    a('v_cndmask_b32 v241, 0, v242, vcc')
    a('v_or_b32 v241, v241, v240')
    a('v_add_u32 v243, %d, v1' % (56 * 1024))
    a('v_lshlrev_b32 v244, 4, v%d' % V_G)
    a('v_add_u32 v244, %d, v244' % L.L_CSA)
    a('v_lshlrev_b32 v245, 2, v%d' % V_TOK)
    a('v_add_u32 v245, %d, v245' % L.L_CSA)
    a('s_lshl_b32 s%d, s%d, 7' % (sA, sJ))
    a('s_add_u32 s%d, s%d, %d' % (sA, sA, L.FP))
    a('v_lshl_add_u32 v248, v0, 2, s%d' % sA)
    a('s_lshr_b32 s%d, s%d, 1' % (sB, sW))
    a('s_lshl_b32 s%d, s%d, 2' % (sCc, sG))
    a('s_add_u32 s%d, s%d, s%d' % (sB, sB, sCc))
    a('s_lshl_b32 s%d, s%d, 5' % (sB, sB))
    a('s_and_b32 s%d, s%d, 1' % (sA, sW))
    a('s_add_u32 s%d, s%d, s%d' % (sB, sB, sA))
    a('s_min_u32 s%d, s%d, 6' % (sA, sJ))
    a('s_lshl_b32 s%d, s%d, 1' % (sA, sA))
    a('s_add_u32 s%d, s%d, s%d' % (sB, sB, sA))
    a('s_lshl_b32 s%d, s%d, 2' % (sB, sB))
    a('s_add_u32 s%d, s%d, %d' % (sB, sB, L.FX[0] - 32 * 256))
    a('v_lshl_add_u32 v249, v0, 8, s%d' % sB)
    a('v_cmp_lt_u32 vcc, 31, v0')
    a('v_cndmask_b32 v248, v248, v249, vcc')
    a('s_cmp_eq_u32 s%d, 0' % sPAIR)
    a('s_mov_b32 s%d, %d' % (sA, L.FSA - 128))
    a('s_cselect_b32 s%d, %d, s%d' % (sA, L.FX[0] - 128, sA))
    a('s_lshl_b32 s%d, s%d, 7' % (sB, sGT))
    a('s_add_u32 s%d, s%d, s%d' % (sA, sA, sB))
    a('v_and_b32 v247, 48, v0')
    a('v_add_u32 v247, v247, v0')
    a('v_lshl_add_u32 v247, v247, 2, s%d' % sA)
    a('s_mov_b32 s%d, 0x3fff3fff' % sMK2)
    a('s_mov_b32 s%d, 0x3fff' % (sMK2 + 1))
    a('s_cmp_eq_u32 s%d, 0' % sGT)
    a('s_cselect_b32 s%d, 0x3fff0000, s%d' % (sMK2, sMK2))


stat_loads = ['buffer_load_dwordx2 %s, v%d, %s, s%d offen offset:%d sc1' %
              (vr(STR + (t * 4 + i) * 2, 2), 241 if i == 3 else 240, srd(S_WS), sO + 12 + t, 512 * i)
              for t in range(3) for i in range(4)]


def a_wread(u):
    b = WBUF[u & 1]
    o = []
    for p in range(6):
        if p < 4:
            o.append('ds_read_b128 %s, v1 offset:%d' % (vr(b + 4 * p), L.L_WA + (p * 14 + u) * 1024))
        else:
            o.append('ds_read_b128 %s, v243 offset:%d' % (vr(b + 4 * p), L.L_WA + ((p - 4) * 14 + u) * 1024))
    return o


stat_fill = []
for t in range(3):
    r = STR + 8 * t
    for c_ in range(2):
        stat_fill += ['v_add_f32 v%d, v%d, v%d' % (r + c_, r + c_, r + 2 + c_),
                      'v_add_f32 v%d, v%d, v%d' % (r + 4 + c_, r + 4 + c_, r + 6 + c_),
                      'v_add_f32 v%d, v%d, v%d' % (r + c_, r + c_, r + 4 + c_)]
    stat_fill += xg_reduce(r, r + 2) + xg_reduce(r + 1, r + 3)
    stat_fill += stats_finish(r, r + 1, r + 2, False)
    stat_fill += ['v_mov_b32 v%d, v%d' % (SM + t, r), 'v_mov_b32 v%d, v%d' % (SR + t, r + 1)]

sWA = [20, 21, 22]
sWAG = 23


def wa_dma(pr, i):
    def f():
        a('s_add_u32 m0, s%d, %d' % (sWA[i], L.L_WA + 2048 * pr))
        a('s_add_u32 s%d, s%d, s%d' % (sD, sWA[i], sWAG))
        if pr:
            a('s_add_u32 s%d, s%d, %d' % (sD, sD, 2048 * pr))
        a('buffer_load_dwordx4 v1, %s, s%d offen sc1 lds' % (srd(S_WS), sD))
    return f


amark = {}


def emit_a_loop(first, xmark, wam):
    ep_mark = es_mark = st_mark = None
    for t in a_wread(0):
        a(t)
    for u in range(14):
        need = xmark[u]
        if u == 12:
            need = max(need, st_mark)
        a.wait_vm(need)
        if u == 6:
            early_check(246, 247, es_mark)
        if u == 11:
            a('s_mov_b32 s%d, -1' % sMK2)
            a('s_mov_b32 s%d, 3' % (sMK2 + 1))
        a('s_waitcnt lgkmcnt(0)')
        wb = WBUF[u & 1]
        xs = XR + (u % NR) * 12
        mf = []
        cz = (lambda r: '0') if u == 0 else (lambda r: vr(r))
        for t in range(2):
            for hf in range(2):
                r = AQ + (t * 2 + hf) * 4
                mf.append('%s %s, %s, %s, %s' % (MFMA, vr(r), vr(wb + 4 * hf), vr(xs + 4 * (t + 1)), cz(r)))
        for t in range(3):
            for hf in range(2):
                r = AK + (t * 2 + hf) * 4
                mf.append('%s %s, %s, %s, %s' % (MFMA, vr(r), vr(wb + 8 + 4 * hf), vr(xs + 4 * t), cz(r)))
        for t in range(3):
            for hf in range(2):
                r = AV + (t * 2 + hf) * 4
                mf.append('%s %s, %s, %s, %s' % (MFMA, vr(r), vr(xs + 4 * t), vr(wb + 16 + 4 * hf), cz(r)))
        if first:
            for p in range(6):
                r = CSACC + 4 * p
                if p < 4:
                    mf.append('%s %s, %s, %s, %s' % (MFMA, vr(r), vr(wb + 4 * p), ar(A_ONES), cz(r)))
                else:
                    mf.append('%s %s, %s, %s, %s' % (MFMA, vr(r), ar(A_ONES), vr(wb + 4 * p), cz(r)))
        mem = {}

        def put(k, x):
            mem.setdefault(k, []).append(x)
        off = 0
        if first and u % 2 == 1 and u < 13:
            put(2, ('bar', (u + 1) // 2))
            off = 3
        if u < 13:
            for k, x in enumerate(a_wread(u + 1)):
                put(off + k, x)
        elif not first:
            for p in range(4):
                put(p, 'ds_read_b128 %s, v244 offset:%d' % (vr(WBUF[0] + 4 * p), 64 * p))
            for d in range(2):
                put(4 + d, 'ds_read_b32 v%d, v245 offset:%d' % (WBUF[0] + 16 + d, 64 * (4 + d)))
        if u + LOOK < 14:
            for k, x in zip((6, 9, 12), a_xload(u + LOOK)):
                put(k + off, x)
            put(12 + off, ('xm', u + LOOK))
        if first and u % 2 == 0 and u // 2 + 3 <= 6:
            for i, k in enumerate((13, 16, 19)):
                put(k, ('wa', u // 2 + 3, i))
        if 6 <= u < 10:
            for k, x in zip((8, 11, 14), stat_loads[3 * (u - 6):3 * (u - 6) + 3]):
                put(k, x)
            if u == 9:
                put(14, ('st',))
        if u == 11:
            put(8, ('early',))
        if u == 4:
            put(8, ('estat',))
        fill = stat_fill[(u - 12) * 30:(u - 11) * 30] if u >= 12 else []
        fi = 0
        for k, m in enumerate(mf):
            a(m)
            for it in mem.get(k, []):
                if isinstance(it, str):
                    a(it)
                elif it[0] == 'early':
                    ep_mark = early_issue(249, 248)
                elif it[0] == 'estat':
                    es_mark = early_issue(246, 247)
                elif it[0] == 'xm':
                    xmark[it[1]] = a.vm_mark()
                elif it[0] == 'st':
                    st_mark = a.vm_mark()
                elif it[0] == 'bar':
                    a.wait_vm(wam[it[1]])
                    a('s_barrier')
                elif it[0] == 'wa':
                    wa_dma(it[1], it[2])()
                    wam[it[1]] = a.vm_mark()
            for _ in range(2):
                if fi < len(fill) and k >= 1:
                    a(fill[fi])
                    fi += 1
        assert fi == len(fill), (u, fi, len(fill))
    amark['ep'] = ep_mark


for p in range(4):
    a('v_mov_b32 v4, 0x3f803f80')
    a('v_accvgpr_write_b32 a%d, v4' % (A_ONES + p))
a('s_mul_i32 s%d, s%d, 14336' % (sWA[0], sW))
a('s_add_u32 s%d, s%d, 4' % (sA, sW))
a('s_mul_i32 s%d, s%d, 14336' % (sA, sA))
a('s_sub_u32 s%d, s%d, 2' % (sB, sW))
a('s_mul_i32 s%d, s%d, 14336' % (sB, sB))
a('s_add_u32 s%d, s%d, 1024' % (sB, sB))
a('s_cmp_lt_u32 s%d, 2' % sW)
a('s_cselect_b32 s%d, s%d, s%d' % (sWA[1], sA, sB))
a('s_add_u32 s%d, s%d, 2' % (sA, sW))
a('s_mul_i32 s%d, s%d, 14336' % (sA, sA))
a('s_add_u32 s%d, s%d, 1024' % (sWA[2], sA))
a('s_mul_i32 s%d, s%d, %d' % (sWAG, sC, 84 * 1024))
a('s_add_u32 s%d, s%d, %d' % (sWAG, sWAG, L.WA))
a_offsets()
xm0, wam0 = {}, {}


def wa_pair(pr):
    for i in range(3):
        wa_dma(pr, i)()
    wam0[pr] = a.vm_mark()


for pr in range(3):
    wa_pair(pr)
    for u in (2 * pr, 2 * pr + 1):
        if u < LOOK:
            for t in a_xload(u):
                a(t)
            xm0[u] = a.vm_mark()
a_setup()
a.wait_vm(wam0[0])
a('s_barrier')
a('s_lshl_b32 s%d, s%d, 5' % (sA, sJ))
a('s_add_u32 s%d, s%d, s%d' % (sA, sA, sG))
a('s_lshl_b32 s%d, s%d, 2' % (sA, sA))
a('s_add_u32 s%d, s%d, %d' % (sA, sA, L.FP))
a('s_cmp_eq_u32 s%d, 0' % sW)
a('s_cselect_b32 s%d, s%d, 0x%x' % (sA, sA, INV))
a('v_mov_b32 v2, s%d' % sA)
a('s_mov_b64 exec, 1')
a('buffer_store_dword v%d, v2, %s, 0 offen sc1' % (V_T, srd(S_WS)))
a.vm_issued -= 1
a('s_mov_b64 exec, -1')
stamp()
emit_a_loop(True, xm0, wam0)
n_join = a.vm_issued - amark['ep']
CSQ = WBUF[0]
a('v_cmp_eq_u32 vcc, 0, v%d' % V_TOK)
a('s_mov_b64 exec, vcc')
for p in range(4):
    a('ds_write_b128 v244, %s offset:%d' % (vr(CSACC + 4 * p), 64 * p))
a('s_mov_b64 exec, 0xffff')
for d in range(2):
    a('ds_write_b32 v245, v%d offset:%d' % (CSACC + 16 + 4 * d, 64 * (4 + d)))
a('s_mov_b64 exec, -1')
for e in range(16):
    a('v_mov_b32 v%d, v%d' % (CSQ + e, CSACC + e))
for d in range(2):
    a('v_mov_b32 v%d, v%d' % (CSQ + 16 + d, CSACC + 16 + 4 * d))
a('s_branch L_a_epi')

a.label('L_pair')
a_flag_addr(2)
poll(2)
stamp()
a_offsets()
xmark = {}
for u in range(LOOK):
    for t in a_xload(u):
        a(t)
    xmark[u] = a.vm_mark()
a_setup()
emit_a_loop(False, xmark, None)
assert a.vm_issued - amark['ep'] == n_join
ep_mark = amark['ep']
a.label('L_a_epi')
stamp()
for x in stat_fill[60:]:
    a(x)
early_check(249, 248, ep_mark)
BW = 2
a('s_lshl_b32 s%d, s%d, 6' % (sA, sJ))
a('s_lshl_b32 s%d, s%d, 2' % (sB, sW))
a('s_add_u32 s%d, s%d, s%d' % (sA, sA, sB))
a('s_lshl_b32 s%d, s%d, 10' % (sA, sA))
a('s_add_u32 s20, s%d, %d' % (sA, L.WB))
for t in range(1, 4):
    a('s_add_u32 s%d, s20, %d' % (20 + t, 16 * 1024 * t))
wb_loads = ['buffer_load_dwordx4 %s, v1, %s, s%d offen offset:%d sc1' % (vr(BW + (i * 4 + t) * 4), srd(S_WS), 20 + t, 1024 * i)
            for i in range(4) for t in range(4)]
A_RES, A_B2 = 224, 232


def owner_index():
    a('s_lshr_b32 s%d, s%d, 1' % (sB, sW))
    a('s_lshl_b32 s%d, s%d, 2' % (sCc, sG))
    a('s_add_u32 s%d, s%d, s%d' % (sB, sB, sCc))
    a('s_and_b32 s%d, s%d, 1' % (sA, sW))
    a('s_lshl_b32 s%d, s%d, 1' % (sCc, sJ))
    a('s_add_u32 s%d, s%d, s%d' % (sA, sA, sCc))


a('s_cmp_eq_u32 s%d, 0' % sPAIR)
a('s_cbranch_scc0 L_a_nores')
owner_index()
a('s_mul_i32 s%d, s%d, 14' % (sB, sB))
a('s_add_u32 s%d, s%d, s%d' % (sB, sB, sA))
a('s_lshl_b32 s%d, s%d, 10' % (sB, sB))
a('s_add_u32 s%d, s%d, %d' % (sB, sB, L.XA[0]))
a('buffer_load_dwordx4 %s, v1, %s, s%d offen sc1' % (ar(A_RES), srd(S_WS), sB))
a('s_add_u32 s%d, s%d, %d' % (sB, sB, 2 * 14336))
a('buffer_load_dwordx4 %s, v1, %s, s%d offen sc1' % (ar(A_RES + 4), srd(S_WS), sB))
build_srd(S_TMP, P_B2, 896)
a('s_lshl_b32 s%d, s%d, 6' % (sB, sA))
a('v_lshlrev_b32 v240, 3, v%d' % V_G)
a('buffer_load_dwordx2 v[228:229], v240, %s, s%d offen' % (srd(S_TMP), sB))
a('buffer_load_dwordx2 v[230:231], v240, %s, s%d offen offset:32' % (srd(S_TMP), sB))
a.label('L_a_nores')
CSQ = WBUF[0]
a('s_mul_i32 s%d, s%d, 384' % (sA, sW))
a('s_add_u32 s%d, s%d, %d' % (sA, sA, L.L_STA))
a('v_lshl_add_u32 v246, v%d, 2, s%d' % (V_TOK, sA))
a('v_lshl_add_u32 v247, v%d, 4, s%d' % (V_G, sA))
a('s_mov_b64 exec, 0xffff')
for t in range(3):
    a('ds_write_b32 v246, v%d offset:%d' % (SM + t, 128 * t))
    a('ds_write_b32 v246, v%d offset:%d' % (SR + t, 128 * t + 64))
a('s_mov_b64 exec, -1')
MROW, RROW = 114, 126
a('s_waitcnt lgkmcnt(0)')
for t in range(3):
    a('ds_read_b128 %s, v247 offset:%d' % (vr(MROW + 4 * t), 128 * t))
    a('ds_read_b128 %s, v247 offset:%d' % (vr(RROW + 4 * t), 128 * t + 64))
QF, KF, VF = 140, 148, 160
for t in range(2):
    for hf in range(2):
        r = AQ + (t * 2 + hf) * 4
        for i in range(4):
            a('v_fma_f32 v%d, -v%d, v%d, v%d' % (r + i, SM + t + 1, CSQ + 4 * hf + i, r + i))
        for p in range(2):
            a('v_cvt_pk_bf16_f32 v%d, v%d, v%d' % (QF + 4 * t + 2 * hf + p, r + 2 * p, r + 2 * p + 1))
for t in range(3):
    for hf in range(2):
        r = AK + (t * 2 + hf) * 4
        for i in range(4):
            a('v_fma_f32 v%d, -v%d, v%d, v%d' % (r + i, SM + t, CSQ + 8 + 4 * hf + i, r + i))
        for p in range(2):
            a('v_cvt_pk_bf16_f32 v%d, v%d, v%d' % (KF + 4 * t + 2 * hf + p, r + 2 * p, r + 2 * p + 1))
SS = 172
for t in range(2):
    a('%s %s, %s, %s, 0' % (MFMA, vr(SS + 8 * t), vr(KF + 4 * t), vr(QF + 4 * t)))
    a('%s %s, %s, %s, 0' % (MFMA, vr(SS + 8 * t + 4), vr(KF + 4 * t + 4), vr(QF + 4 * t)))
a('s_waitcnt lgkmcnt(0)')
for t in range(3):
    for d in range(2):
        r = AV + (t * 2 + d) * 4
        for i in range(4):
            a('v_fma_f32 v%d, -v%d, v%d, v%d' % (r + i, MROW + 4 * t + i, CSQ + 16 + d, r + i))
        for p in range(2):
            a('v_cvt_pk_bf16_f32 v%d, v%d, v%d' % (VF + 6 * d + 2 * t + p, r + 2 * p, r + 2 * p + 1))
SCALE = (28.0 ** -0.5) * 1.4426950408889634
MX, CC, LS, TMPR = 190, 192, 194, 196
PF = 200
a('v_mov_b32 v198, 0xff800000')
seq = [[], []]
for t in range(2):
    s = SS + 8 * t
    q = seq[t]
    for e in range(8):
        q.append('v_mul_f32 v%d, v%d, v%d' % (s + e, s + e, RROW + 4 * (t + (e >> 2)) + (e & 3)))
    for e in range(8):
        mk = (sM0 if t == 0 else sM1) + 2 * e if e < 4 else sM2 + 2 * (e - 4)
        q.append('v_cndmask_b32 v%d, v198, v%d, %s' % (s + e, s + e, sp(mk)))
    q.append('v_max3_f32 v%d, v%d, v%d, v%d' % (MX + t, s, s + 1, s + 2))
    q.append('v_max3_f32 v%d, v%d, v%d, v%d' % (MX + t, MX + t, s + 3, s + 4))
    q.append('v_max3_f32 v%d, v%d, v%d, v%d' % (MX + t, MX + t, s + 5, s + 6))
    q.append('v_max_f32 v%d, v%d, v%d' % (MX + t, MX + t, s + 7))
    q += xg_reduce(MX + t, TMPR + t, 'v_max_f32')
    q.append('v_mul_f32 v%d, %s, v%d' % (CC + t, f2h(SCALE), SR + t + 1))
    q.append('v_mul_f32 v%d, v%d, v%d' % (MX + t, MX + t, CC + t))
    for e in range(8):
        q.append('v_fma_f32 v%d, v%d, v%d, -v%d' % (s + e, s + e, CC + t, MX + t))
    for e in range(8):
        q.append('v_exp_f32 v%d, v%d' % (s + e, s + e))
    q.append('v_add_f32 v%d, v%d, v%d' % (LS + t, s, s + 1))
    for e in range(2, 8):
        q.append('v_add_f32 v%d, v%d, v%d' % (LS + t, LS + t, s + e))
    q += xg_reduce(LS + t, TMPR + t)
    q.append('v_rcp_f32 v%d, v%d' % (LS + t, LS + t))
    for e in range(8):
        q.append('v_mul_f32 v%d, v%d, v%d' % (s + e, s + e, RROW + 4 * (t + (e >> 2)) + (e & 3)))
    for p in range(4):
        q.append('v_cvt_pk_bf16_f32 v%d, v%d, v%d' % (PF + 4 * t + p, s + 2 * p, s + 2 * p + 1))
merged = [z for xy in zip(*seq) for z in xy]
gap = len(merged) // (len(wb_loads) + 1)
for k, x in enumerate(merged):
    a(x)
    if k % gap == gap - 1 and wb_loads:
        a(wb_loads.pop(0))
assert not wb_loads
OO = 208
for t in range(2):
    for d in range(2):
        a('%s %s, %s, %s, 0' % (MFMA, vr(OO + 8 * t + 4 * d), vr(VF + 6 * d + 2 * t), vr(PF + 4 * t)))
pair_base(sA, L.O)
a('s_lshl_b32 s%d, s%d, 4' % (sB, sGT))
a('s_add_u32 s%d, s%d, s%d' % (sB, sB, sC))
a('s_lshl_b32 s%d, s%d, 10' % (sB, sB))
a('s_add_u32 s%d, s%d, s%d' % (sA, sA, sB))
for t in range(2):
    for e in range(8):
        a('v_mul_f32 v%d, v%d, v%d' % (OO + 8 * t + e, OO + 8 * t + e, LS + t))
    for p in range(4):
        a('v_cvt_pk_bf16_f32 v%d, v%d, v%d' % (PF + 4 * t + p, OO + 8 * t + 2 * p, OO + 8 * t + 2 * p + 1))
    store('buffer_store_dwordx4 %s, v1, %s, s%d offen' % (vr(PF + 4 * t), srd(S_WS), sA), sFD)
    if t == 0:
        a('s_add_u32 s%d, s%d, 16384' % (sA, sA))
pair_base(sA, L.FA)
a('s_lshl_b32 s%d, s%d, 4' % (sB, sGT))
a('s_add_u32 s%d, s%d, s%d' % (sB, sB, sC))
a('s_lshl_b32 s%d, s%d, 2' % (sB, sB))
a('s_add_u32 s%d, s%d, s%d' % (sA, sA, sB))
a('v_lshlrev_b32 v241, 6, v0')
a('v_add_u32 v241, s%d, v241' % sA)
set_flags(241, 2, sFAST)
stamp()
a('s_cmp_eq_u32 s%d, 7' % sJ)
a('s_cbranch_scc1 L_next_pair')


def wd_bases():
    a('s_lshl_b32 s%d, s%d, 2' % (sA, sJ))
    a('s_mul_i32 s%d, s%d, %d' % (sA, sA, 56 * 1024))
    a('s_mul_i32 s%d, s%d, %d' % (sB, sW, 14 * 1024))
    a('s_add_u32 s%d, s%d, s%d' % (sA, sA, sB))
    a('s_add_u32 s%d, s%d, %d' % (sO, sA, L.WD))
    quarter_offsets(4, 56 * 1024)


def wd_load(fi):
    kk, t = fi >> 2, fi & 3
    return ('buffer_load_dwordx4 %s, v1, %s, s%d offen offset:%d sc1' %
            (ar(4 * fi), srd(S_WS), sO + 4 * t + (kk >> 2), 1024 * (kk & 3)))


WD_CH = [(0, 12), (12, 56)]
BO, BACC, BRD, BTMP = 66, 130, 194, 226
a('s_cmp_eq_u32 s%d, 0' % sPAIR)
a('s_cbranch_scc0 L_b_start')
for k in range(4):
    a('v_lshlrev_b32 v236, 16, v%d' % (228 + k))
    a('v_and_b32 v237, 0xffff0000, v%d' % (228 + k))
    a('v_accvgpr_write_b32 a%d, v236' % (A_B2 + 2 * k))
    a('v_accvgpr_write_b32 a%d, v237' % (A_B2 + 2 * k + 1))
wd_bases()
for fi in range(*WD_CH[0]):
    a(wd_load(fi))
a.label('L_b_start')
CWW = 66
sCI = 41
a('s_lshr_b32 s%d, s%d, 3' % (sA, sC))
a('s_mul_i32 s%d, s%d, 7' % (sA, sA))
a('s_add_u32 s%d, s%d, s%d' % (sCI, sA, sJ))
a('s_lshl_b32 s%d, s%d, 3' % (sA, sCI))
a('s_lshl_b32 s%d, s%d, 1' % (sB, sW))
a('s_add_u32 s%d, s%d, s%d' % (sA, sA, sB))
a('s_mul_i32 s%d, s%d, %d' % (sB, sA, 14 * 1024))
a('s_add_u32 s%d, s%d, %d' % (sO, sB, L.WC))
quarter_offsets(2, 14 * 1024)


def c_wload(idx):
    u, k = idx >> 1, idx & 1
    return ('buffer_load_dwordx4 %s, v1, %s, s%d offen offset:%d sc1' %
            (vr(CWW + 4 * idx), srd(S_WS), sO + 4 * k + (u >> 2), 1024 * (u & 3)))


def red_writes(acc, tile):
    return ['ds_write_b128 v248, %s offset:%d' % (vr(acc + 4 * t), (tile >> 1) * 32768 + (tile & 1) * 4096 + t * 1024)
            for t in range(4)]


def red_reads(st, rd):
    return ['ds_read_b128 %s, v249 offset:%d' % (vr(rd + (b * 2 + k) * 4), st * 32768 + b * 8192 + k * 1024)
            for b in range(4) for k in range(2)]


def add8(dst, x, y, packed):
    if packed:
        return ['v_pk_add_f32 %s, %s, %s' % (vr(dst + e, 2), vr(x + e, 2), vr(y + e, 2)) for e in range(0, 8, 2)]
    return ['v_add_f32 v%d, v%d, v%d' % (dst + e, x + e, y + e) for e in range(8)]


def finish_pre(st, is_d, tmp):
    res = A_RES + 4 * st
    o = ['v_accvgpr_read_b32 v%d, a%d' % (tmp + 8 + p, res + p) for p in range(4)]
    for p in range(4):
        o += ['v_lshlrev_b32 v%d, 16, v%d' % (tmp + 2 * p, tmp + 8 + p),
              'v_and_b32 v%d, 0xffff0000, v%d' % (tmp + 2 * p + 1, tmp + 8 + p)]
    if is_d:
        o += ['v_accvgpr_read_b32 v%d, a%d' % (tmp + 8 + e, A_B2 + e) for e in range(8)]
        o += ['v_add_f32 v%d, v%d, v%d' % (tmp + e, tmp + e, tmp + 8 + e) for e in range(8)]
    return o


def finish_sum(st, rd, tmp, pk, packed):
    o = add8(rd, rd, rd + 8, packed) + add8(rd + 16, rd + 16, rd + 24, packed) + add8(rd, rd, rd + 16, packed)
    o += add8(tmp, tmp, rd, packed)
    o += ['v_cvt_pk_bf16_f32 v%d, v%d, v%d' % (pk + p, tmp + 2 * p, tmp + 2 * p + 1) for p in range(4)]
    o += ['v_accvgpr_write_b32 a%d, v%d' % (A_RES + 4 * st + p, pk + p) for p in range(4)]
    return o


def owner_stats(tmp, s1, t):
    a('v_pk_add_f32 %s, %s, %s' % (vr(t, 2), vr(tmp, 2), vr(tmp + 2, 2)))
    a('v_pk_add_f32 %s, %s, %s' % (vr(t + 2, 2), vr(tmp + 4, 2), vr(tmp + 6, 2)))
    a('v_pk_add_f32 %s, %s, %s' % (vr(t, 2), vr(t, 2), vr(t + 2, 2)))
    a('v_add_f32 v%d, v%d, v%d' % (s1, t, t + 1))
    a('v_pk_mul_f32 %s, %s, %s' % (vr(t, 2), vr(tmp, 2), vr(tmp, 2)))
    for e in (2, 4, 6):
        a('v_pk_fma_f32 %s, %s, %s, %s' % (vr(t, 2), vr(tmp + e, 2), vr(tmp + e, 2), vr(t, 2)))
    a('v_add_f32 v%d, v%d, v%d' % (s1 + 1, t, t + 1))
    for x, y in zip(xg_reduce(s1, t), xg_reduce(s1 + 1, t + 1)):
        a(x)
        a(y)


def red_addrs():
    a('s_lshl_b32 s%d, s%d, 13' % (sA, sW))
    a('s_add_u32 s%d, s%d, %d' % (sA, sA, L.L_R2))
    a('v_add_u32 v248, s%d, v1' % sA)
    a('s_and_b32 s%d, s%d, 1' % (sA, sW))
    a('s_lshl_b32 s%d, s%d, 11' % (sA, sA))
    a('s_lshr_b32 s%d, s%d, 1' % (sB, sW))
    a('s_lshl_b32 s%d, s%d, 12' % (sB, sB))
    a('s_add_u32 s%d, s%d, s%d' % (sA, sA, sB))
    a('s_add_u32 s%d, s%d, %d' % (sA, sA, L.L_R2))
    a('v_add_u32 v249, s%d, v1' % sA)


def publish_setup(xbase, sbase, fbase, per_pair, fsh):
    owner_index()
    a('s_mul_i32 s%d, s%d, 14' % (sCc, sB))
    a('s_add_u32 s%d, s%d, s%d' % (sCc, sCc, sA))
    a('s_lshl_b32 s%d, s%d, 10' % (sPX, sCc))
    a('s_lshl_b32 s%d, s%d, 7' % (sPS, sCc))
    a('s_lshl_b32 s%d, s%d, %d' % (sPF, sB, fsh))
    a('s_add_u32 s%d, s%d, s%d' % (sPF, sPF, sA))
    a('s_lshl_b32 s%d, s%d, 2' % (sPF, sPF))
    for dst, arr in ((sPX, xbase), (sPS, sbase), (sPF, fbase)):
        if per_pair:
            pair_base(sD, arr)
            a('s_add_u32 s%d, s%d, s%d' % (dst, dst, sD))
        else:
            a('s_add_u32 s%d, s%d, %d' % (dst, dst, arr))
    a('s_add_u32 s%d, s%d, %d' % (sPX2, sPX, 2 * 14336))


def publish_data(st, pk):
    store('buffer_store_dwordx4 %s, v1, %s, s%d offen offset:0' % (vr(pk), srd(S_WS), sPX if st == 0 else sPX2), sPC)


def publish_stats(tmps, t, s1):
    a('v_and_b32 v%d, 15, v0' % V_TOK)
    a('v_lshlrev_b32 v%d, 3, v%d' % (t + 4, V_TOK))
    for st in range(2):
        owner_stats(tmps[st], s1 + 2 * st, t)
    a('s_mov_b64 exec, 0xffff')
    store('buffer_store_dwordx2 %s, v%d, %s, s%d offen' % (vr(s1, 2), t + 4, srd(S_WS), sPS), sPC)
    a('s_add_u32 s%d, s%d, %d' % (sPS, sPS, 2 * 1792))
    store('buffer_store_dwordx2 %s, v%d, %s, s%d offen' % (vr(s1 + 2, 2), t + 4, srd(S_WS), sPS), sPC)
    a('s_mov_b64 exec, -1')


def publish_flags(lsh, between=()):
    a('v_lshlrev_b32 v241, %d, v0' % lsh)
    a('v_add_u32 v241, s%d, v241' % sPF)
    set_flags(241, 2, sPFC, V_T, between)


def run_tiles(tile_items, extras):
    for tile in range(4):
        items = tile_items(tile)
        ex = list(extras.get(tile, []))
        free = [k for k, it in enumerate(items) if k >= 3 and not it[2]]
        per = -(-len(ex) // max(1, len(free))) if ex else 0
        for k, (pre, m, post) in enumerate(items):
            for x in pre:
                x()
            a(m)
            if post:
                post()
            elif k >= 3:
                for _ in range(per):
                    if ex:
                        x = ex.pop(0)
                        if callable(x):
                            x()
                        else:
                            a(x)
        assert not ex


pair_base(sA, L.FA)
a('s_lshl_b32 s%d, s%d, 8' % (sB, sG))
a('s_add_u32 s%d, s%d, s%d' % (sA, sA, sB))
a('v_lshl_add_u32 v240, v0, 2, s%d' % sA)
a('s_lshl_b32 s%d, s%d, 2' % (sB, sW))
a('s_lshl_b32 s%d, 0x000f000f, s%d' % (sMK, sB))
a('s_mov_b32 s%d, s%d' % (sMK + 1, sMK))
red_addrs()
publish_setup(L.XB, L.SB, L.FB, True, 4)
a('s_mov_b32 s%d, s%d' % (sPC, sFD))
a('s_mov_b32 s%d, s%d' % (sPFC, sFAST))
pair_base(sA, L.O)
a('s_lshl_b32 s%d, s%d, 6' % (sB, sG))
a('s_lshl_b32 s%d, s%d, 2' % (sCc, sW))
a('s_add_u32 s%d, s%d, s%d' % (sB, sB, sCc))
a('s_lshl_b32 s%d, s%d, 10' % (sB, sB))
a('s_add_u32 s20, s%d, s%d' % (sA, sB))
for t in range(1, 4):
    a('s_add_u32 s%d, s20, %d' % (20 + t, 16384 * t))
poll(240)
stamp()


def b_oload(tile, i):
    return 'buffer_load_dwordx4 %s, v1, %s, s%d offen offset:%d sc1' % (vr(BO + (tile * 4 + i) * 4), srd(S_WS), 20 + tile, 1024 * i)


om = {}
for tile in range(2):
    for i in range(4):
        a(b_oload(tile, i))
        om[(tile, i)] = a.vm_mark()


def b_tile(tile):
    items = []
    for i in range(4):
        for t in range(4):
            r = BACC + (tile * 4 + t) * 4
            pre = [(lambda tl=tile, ii=i: a.wait_vm(om[(tl, ii)]))] if t == 0 else []
            post = None
            if tile < 2 and t == 1:
                def post(tl=tile + 2, ii=i):
                    a(b_oload(tl, ii))
                    om[(tl, ii)] = a.vm_mark()
            if tile >= 2 and t == 1:
                def post(idx=4 * (tile - 2) + i):
                    a(c_wload(idx))
            items.append((pre, '%s %s, %s, %s, %s' % (MFMA, vr(r), vr(BW + (i * 4 + t) * 4), vr(BO + (tile * 4 + i) * 4),
                                                      '0' if i == 0 else vr(r)), post))
    return items


BT0, BT1, BPK = 226, 2, 18
run_tiles(b_tile, {1: red_writes(BACC, 0), 2: red_writes(BACC + 16, 1), 3: red_writes(BACC + 32, 2)})
stamp2()
for x in red_writes(BACC + 48, 3):
    a(x)
for x in finish_pre(0, False, BT0) + finish_pre(1, False, BT1):
    a(x)
a('s_waitcnt lgkmcnt(0)')
a('s_barrier')
stamp2()
BRD1 = 162
for x in red_reads(0, BRD) + red_reads(1, BRD1):
    a(x)
a('s_waitcnt lgkmcnt(8)')
for x in finish_sum(0, BRD, BT0, BPK, True):
    a(x)
publish_data(0, BPK)
a('s_waitcnt lgkmcnt(0)')
for x in finish_sum(1, BRD1, BT1, BPK + 4, True):
    a(x)
publish_data(1, BPK + 4)
stamp2()
publish_stats([BT0, BT1], 36, 32)
publish_flags(7, [c_wload(i) for i in range(8, 16)])
stamp()

for i in range(16, 22):
    a(c_wload(i))
CA = [2, 10]
XF, NXF = 18, 8
GTMP, GH = 50, 58
CCS, CB1, CB1R = 178, 186, 194
CSTR = 198
CMR = 214
VGA = 218
a('v_lshrrev_b32 v%d, 4, v0' % V_G)
a('v_and_b32 v%d, 15, v0' % V_TOK)
a('s_lshl_b32 s%d, s%d, 3' % (sA, sCI))
a('s_lshl_b32 s%d, s%d, 1' % (sB, sW))
a('s_add_u32 s%d, s%d, s%d' % (sA, sA, sB))
a('s_lshl_b32 s%d, s%d, 6' % (sB, sA))
a('s_add_u32 s%d, s%d, %d' % (sB, sB, L.CSC))
a('v_lshlrev_b32 v248, 4, v%d' % V_G)
for k in range(2):
    a('buffer_load_dwordx4 %s, v248, %s, s%d offen offset:%d sc1' % (vr(CCS + 4 * k), srd(S_WS), sB, 64 * k))
a('s_lshl_b32 s%d, s%d, 5' % (sB, sA))
a('v_lshlrev_b32 v248, 3, v%d' % V_G)
for k in range(2):
    a('buffer_load_dwordx2 %s, v248, %s, s%d offen offset:%d' % (vr(CB1R + 2 * k, 2), srd(S_B1), sB, 32 * k))
pair_base(sA, L.FB)
a('s_lshl_b32 s%d, s%d, 9' % (sB, sS))
a('s_add_u32 s%d, s%d, s%d' % (sA, sA, sB))
a('v_lshl_add_u32 v240, v0, 2, s%d' % sA)
a('s_mov_b32 s%d, 0x3fff3fff' % sMK)
a('s_mov_b32 s%d, 0x3fff3fff' % (sMK + 1))
pair_base(20, L.XB)
a('s_mul_i32 s%d, s%d, %d' % (sB, sS, 8 * 14336))
a('s_add_u32 s20, s20, s%d' % sB)
a('s_lshl_b32 s%d, s%d, 12' % (sB, sW))
a('s_add_u32 s20, s20, s%d' % sB)
a('s_add_u32 s21, s%d, %d' % (sB, L.L_R2))
pair_base(22, L.SB)
a('s_lshl_b32 s%d, s%d, 3' % (sB, sS))
a('s_add_u32 s%d, s%d, s%d' % (sB, sB, sW))
a('s_mul_i32 s%d, s%d, 1792' % (sB, sB))
a('s_add_u32 s22, s22, s%d' % sB)
a('s_add_u32 s23, s22, %d' % (4 * 1792))
pair_base(32, L.H)
a('s_mul_i32 s%d, s%d, %d' % (sB, sS, 8 * 56 * 1024))
a('s_add_u32 s32, s32, s%d' % sB)
a('s_lshl_b32 s%d, s%d, 2' % (sB, sCI))
a('s_add_u32 s%d, s%d, s%d' % (sB, sB, sW))
a('s_lshl_b32 s%d, s%d, 10' % (sCc, sB))
a('s_add_u32 s32, s32, s%d' % sCc)
pair_base(33, L.FC)
a('s_lshl_b32 s%d, s%d, 11' % (sCc, sS))
a('s_add_u32 s33, s33, s%d' % sCc)
a('s_lshl_b32 s%d, s%d, 2' % (sB, sB))
a('s_add_u32 s33, s33, s%d' % sB)
a('v_mov_b32 v241, s33')
a('v_mov_b32 v242, 0x%x' % INV)
a('v_cmp_eq_u32 vcc, 0, v0')
a('v_cndmask_b32 v241, v242, v241, vcc')
a('v_lshlrev_b32 v238, 3, v%d' % V_TOK)
a('v_lshl_add_u32 v238, v%d, 7, v238' % V_G)
a('v_mov_b32 v242, 0x%x' % INV)
a('v_cmp_lt_u32 vcc, 1, v%d' % V_G)
a('v_cndmask_b32 v239, 0, v242, vcc')
a('v_or_b32 v239, v239, v238')
a('v_add_u32 v252, %d, v1' % L.L_R2)
a('v_lshlrev_b32 v246, 3, v%d' % V_TOK)
a('v_add_u32 v246, %d, v246' % L.L_STC)
GA = 2.0 * 0.7978845608028654 * 1.4426950408889634
GB = GA * 0.044715
a('v_mov_b32 v%d, %s' % (VGA, f2h(-GA)))
a('v_mov_b32 v%d, %s' % (VGA + 1, f2h(-GA)))
a('s_mov_b32 s34, %s' % f2h(-GB))
a('s_mov_b32 s35, %s' % f2h(-GB))
wd_bases_hi = True
poll(240, 256)
stamp()


def c_dma_setup(t):
    return ['s_add_u32 s36, s20, %d' % (t * 14336), 's_add_u32 m0, s21, %d' % ((t & 3) * 16384)]


def c_dma(t, i):
    return 'buffer_load_dwordx4 v1, %s, s36 offen offset:%d sc1 lds' % (srd(S_WS), 1024 * i)


dm = {}
for x in c_dma_setup(0) + [c_dma(0, i) for i in range(4)]:
    a(x)
dm[0] = a.vm_mark()
wlate = {}
for i in range(22, 28):
    a(c_wload(i))
    wlate[i >> 1] = a.vm_mark()
for tt in range(2):
    for i in range(4):
        a('buffer_load_dwordx2 %s, v%d, %s, s%d offen offset:%d sc1' %
          (vr(CSTR + 8 * tt + 2 * i, 2), 239 if i == 3 else 238, srd(S_WS), 22 + tt, 512 * i))
cst_mark = a.vm_mark()
for x in c_dma_setup(1) + [c_dma(1, i) for i in range(4)]:
    a(x)
dm[1] = a.vm_mark()
for k in range(2):
    for p in range(2):
        a('v_lshlrev_b32 v%d, 16, v%d' % (CB1 + 4 * k + 2 * p, CB1R + 2 * k + p))
        a('v_and_b32 v%d, 0xffff0000, v%d' % (CB1 + 4 * k + 2 * p + 1, CB1R + 2 * k + p))
wd_bases()
a.wait_vm(dm[0])
a('s_barrier')
stamp()


def c_xread(t, u):
    n = t * 14 + u
    return 'ds_read_b128 %s, v252 offset:%d' % (vr(XF + 4 * (n % NXF)), (t & 3) * 16384 + u * 1024)


def gelu_pre(t):
    z, m = CA[t & 1], CMR + 2 * (t & 1)
    P = range(0, 8, 2)
    o = ['v_pk_fma_f32 %s, %s, %s, %s op_sel_hi:[1,0,1] neg_lo:[0,1,0] neg_hi:[0,1,0]' % (vr(z + e, 2), vr(CCS + e, 2), vr(m, 2), vr(z + e, 2)) for e in P]
    o += ['v_pk_fma_f32 %s, %s, %s, %s op_sel:[0,1,0] op_sel_hi:[1,1,1]' % (vr(z + e, 2), vr(z + e, 2), vr(m, 2), vr(CB1 + e, 2)) for e in P]
    o += ['v_pk_mul_f32 %s, %s, %s' % (vr(GTMP + e, 2), vr(z + e, 2), vr(z + e, 2)) for e in P]
    o += ['v_pk_fma_f32 %s, %s, s[34:35], %s' % (vr(GTMP + e, 2), vr(GTMP + e, 2), vr(VGA, 2)) for e in P]
    o += ['v_pk_mul_f32 %s, %s, %s' % (vr(GTMP + e, 2), vr(GTMP + e, 2), vr(z + e, 2)) for e in P]
    return o


def gelu_mid():
    o = {}
    for e in range(8):
        o.setdefault(2 * e, []).append('v_exp_f32 v%d, v%d' % (GTMP + e, GTMP + e))
        o.setdefault(2 * e + 3, []).append('v_add_f32 v%d, 1.0, v%d' % (GTMP + e, GTMP + e))
    for e in range(6):
        o.setdefault(16 + 2 * e, []).append('v_rcp_f32 v%d, v%d' % (GTMP + e, GTMP + e))
    o.setdefault(25, []).append('v_rcp_f32 v%d, v%d' % (GTMP + 6, GTMP + 6))
    o.setdefault(27, []).append('v_rcp_f32 v%d, v%d' % (GTMP + 7, GTMP + 7))
    return o


def gelu_post(t):
    z, h = CA[t & 1], GH + 4 * (t & 1)
    o = ['v_pk_mul_f32 %s, %s, %s' % (vr(GTMP + e, 2), vr(GTMP + e, 2), vr(z + e, 2)) for e in range(0, 8, 2)]
    o += ['v_cvt_pk_bf16_f32 v%d, v%d, v%d' % (h + p, GTMP + 2 * p, GTMP + 2 * p + 1) for p in range(4)]
    return o


def gelu_packed(t):
    z, m, h = CA[t & 1], CMR + 2 * (t & 1), GH + 4 * (t & 1)
    P = range(0, 8, 2)
    for e in P:
        a('v_pk_fma_f32 %s, %s, %s, %s op_sel_hi:[1,0,1] neg_lo:[0,1,0] neg_hi:[0,1,0]' % (vr(z + e, 2), vr(CCS + e, 2), vr(m, 2), vr(z + e, 2)))
    for e in P:
        a('v_pk_fma_f32 %s, %s, %s, %s op_sel:[0,1,0] op_sel_hi:[1,1,1]' % (vr(z + e, 2), vr(z + e, 2), vr(m, 2), vr(CB1 + e, 2)))
    for e in P:
        a('v_pk_mul_f32 %s, %s, %s' % (vr(GTMP + e, 2), vr(z + e, 2), vr(z + e, 2)))
    for e in P:
        a('v_pk_fma_f32 %s, %s, s[34:35], %s' % (vr(GTMP + e, 2), vr(GTMP + e, 2), vr(VGA, 2)))
    for e in P:
        a('v_pk_mul_f32 %s, %s, %s' % (vr(GTMP + e, 2), vr(GTMP + e, 2), vr(z + e, 2)))
    for e in range(8):
        a('v_exp_f32 v%d, v%d' % (GTMP + e, GTMP + e))
    for e in P:
        a('v_pk_add_f32 %s, %s, 1.0 op_sel_hi:[1,0]' % (vr(GTMP + e, 2), vr(GTMP + e, 2)))
    for e in range(8):
        a('v_rcp_f32 v%d, v%d' % (GTMP + e, GTMP + e))
    for e in P:
        a('v_pk_mul_f32 %s, %s, %s' % (vr(GTMP + e, 2), vr(GTMP + e, 2), vr(z + e, 2)))
    for p in range(4):
        a('v_cvt_pk_bf16_f32 v%d, v%d, v%d' % (h + p, GTMP + 2 * p, GTMP + 2 * p + 1))


hmk, fmk = {}, {}


def h_store(t):
    def f():
        a('s_add_u32 s36, s32, %d' % (t * 56 * 1024))
        store('buffer_store_dwordx4 %s, v1, %s, s36 offen' % (vr(GH + 4 * (t & 1)), srd(S_WS)), sFH)
        hmk[t] = a.vm_mark()
    return f


def h_flag(t):
    def f():
        a.wait_vm(hmk[t])
        store('buffer_store_dword v%d, v241, %s, 0 offen offset:%d' % (V_T, srd(S_WS), 256 * t), sFAST)
    return f


def wd_block(fis, wave):
    def f():
        skip = newlab('L_wd')
        a('s_cmp_eq_u32 s24, %d' % wave)
        a('s_cbranch_scc0 %s' % skip)
        for fi in fis:
            a(wd_load(fi))
            a.vm_issued -= 1
        a.label(skip)
    return f


cst_fill = []
for tt in range(2):
    r = CSTR + 8 * tt
    for c_ in range(2):
        cst_fill += ['v_add_f32 v%d, v%d, v%d' % (r + c_, r + c_, r + 2 + c_),
                     'v_add_f32 v%d, v%d, v%d' % (r + 4 + c_, r + 4 + c_, r + 6 + c_),
                     'v_add_f32 v%d, v%d, v%d' % (r + c_, r + c_, r + 4 + c_)]
    cst_fill += xg_reduce(r, r + 2) + xg_reduce(r + 1, r + 3) + stats_finish(r, r + 1, r + 2, True)
a('s_lshl_b32 s%d, s%d, 7' % (sA, sW))
a('v_add_u32 v247, s%d, v246' % sA)
cst_fill += ['ds_write_b64 v247, %s' % vr(CSTR, 2), 'ds_write_b64 v247, %s offset:512' % vr(CSTR + 8, 2)]
LOOKX = 6


def emit_c_loop(wd_list):
    for u in range(LOOKX):
        a(c_xread(0, u))
    for t in range(8):
        nonvec = {}

        def put(k, x):
            nonvec.setdefault(k, []).append(x)
        for u in range(14):
            n = t * 14 + u
            m = n + LOOKX
            if m < 8 * 14:
                put(2 * u + 1, c_xread(m // 14, m % 14))
            if u % 2 == 1 and n + 1 < 8 * 14:
                put(2 * u + 1, 's_waitcnt lgkmcnt(%d)' % min(LOOKX - 2, 8 * 14 - 1 - (n + 2)))
        if t < 7:
            nonvec[14] = [('bar', t + 1)] + nonvec.get(14, [])
        if t + 2 < 8:
            su = c_dma_setup(t + 2)
            put(0, su[0])
            put(0, su[1])
            for i in range(4):
                put(2 + 2 * i, ('dma', t + 2, i))
        if t >= 3:
            put(20, ('call', h_flag(t - 3)))
        if t < 7:
            for k in (10, 12, 16, 18, 22, 24, 26):
                if wd_list:
                    put(k, wd_load(wd_list.pop(0)))
        if t > 0:
            put(17, 'ds_read_b64 %s, v246 offset:%d' % (vr(CMR + 2 * (t & 1), 2), 128 * t))
        valu = gelu_mid() if t >= 1 else {}
        if t >= 2:
            for x in gelu_post(t - 2):
                a(x)
            h_store(t - 2)()
        if t >= 1:
            for x in gelu_pre(t - 1):
                a(x)
        fill = list(cst_fill) if t == 0 else []
        first = 8
        fi = 0
        for k in range(28):
            u, kk = k >> 1, k & 1
            n = t * 14 + u
            if t == 0 and k == 0:
                a('s_waitcnt lgkmcnt(%d)' % (LOOKX - 2))
            if t == 0 and kk == 0 and u in wlate:
                a.wait_vm(wlate[u])
            if t == 0 and k == first:
                a.wait_vm(cst_mark)
            r = CA[t & 1] + 4 * kk
            a('%s %s, %s, %s, %s' % (MFMA, vr(r), vr(CWW + 4 * (2 * u + kk)), vr(XF + 4 * (n % NXF)), '0' if u == 0 else vr(r)))
            for it in nonvec.get(k, []):
                if isinstance(it, str):
                    a(it)
                elif it[0] == 'bar':
                    a.wait_vm(dm[it[1]])
                    a('s_barrier')
                elif it[0] == 'dma':
                    a(c_dma(it[1], it[2]))
                    dm[it[1]] = a.vm_mark()
                elif it[0] == 'call':
                    it[1]()
            for x in valu.get(k, []):
                a(x)
            if fill and k >= first:
                want = -(-(len(fill)) * (k - first + 1) // (28 - first))
                while fi < want:
                    a(fill[fi])
                    fi += 1
        assert fi == len(fill)
        if t == 0:
            a('s_waitcnt lgkmcnt(0)')
            a('s_barrier')
            a('ds_read_b64 %s, v246 offset:0' % vr(CMR, 2))
            a('s_waitcnt lgkmcnt(0)')
    assert not wd_list


n_before = a.vm_issued
dm_init = dict(dm)
a('s_cmp_eq_u32 s%d, 0' % sPAIR)
a('s_cbranch_scc0 L_c_loop1')
emit_c_loop(list(range(*WD_CH[1])))
a('s_branch L_c_done')
a.label('L_c_loop1')
extra = a.vm_issued - n_before
a.vm_issued = n_before
dm.clear()
dm.update(dm_init)
emit_c_loop([])
a.label('L_c_done')
stamp()
pair_base(sA, L.FC)
a('s_lshl_b32 s%d, s%d, 10' % (sB, sG))
a('s_add_u32 s%d, s%d, s%d' % (sA, sA, sB))
a('s_mul_i32 s%d, s%d, 56' % (sB, sW))
a('s_add_u32 s%d, s%d, s%d' % (sA, sA, sB))
a('v_lshl_add_u32 v243, v0, 2, s%d' % sA)
a('s_mov_b32 s%d, 0x3fff' % sMK2)
a('s_mov_b32 s%d, 0' % (sMK2 + 1))
d0_mark = early_issue(244, 243)
for x in gelu_post(6):
    a(x)
h_store(6)()
a('s_waitcnt lgkmcnt(0)')
gelu_packed(7)
h_flag(5)()
h_store(7)()
stamp()

DH, DACC, DRD, DTMP = 2, 114, 178, 210
DRING, DLOOK = 16, 10
red_addrs()
publish_setup(L.XA[1], L.SA[1], L.FX[1], False, 5)
a('s_and_b32 s%d, s%d, 1' % (sA, sG))
a('s_lshr_b32 s%d, s%d, 1' % (sB, sW))
a('s_and_b32 s%d, s%d, s%d' % (sA, sA, sB))
a('s_xor_b32 s%d, s%d, 1' % (sA, sA))
a('s_and_b32 s%d, s%d, s%d' % (sPC, sFD, sA))
a('s_and_b32 s%d, s%d, s%d' % (sPFC, sFAST, sA))
pair_base(sA, L.H)
a('s_mul_i32 s%d, s%d, %d' % (sB, sG, 4 * 56 * 1024))
a('s_add_u32 s%d, s%d, s%d' % (sA, sA, sB))
a('s_mul_i32 s%d, s%d, %d' % (sB, sW, 14 * 1024))
a('s_add_u32 s%d, s%d, s%d' % (sO, sA, sB))
quarter_offsets(4, 56 * 1024)
a('s_cmp_eq_u32 s%d, 0' % sPAIR)
a('s_cbranch_scc1 L_d_nout')
owner_index()
a('s_mul_i32 s%d, s%d, 14336' % (sPX, sB))
a('s_lshl_b32 s%d, s%d, 6' % (sA, sA))
a('s_add_u32 s%d, s%d, s%d' % (sPX, sPX, sA))
a('s_add_u32 s%d, s%d, %d' % (sPX2, sPX, 2 * 14336))
a.label('L_d_nout')
a('v_and_b32 v%d, 15, v0' % V_TOK)
a('v_lshrrev_b32 v%d, 4, v0' % V_G)
a('v_mul_u32_u24 v242, 896, v%d' % V_TOK)
a('v_lshl_add_u32 v242, v%d, 3, v242' % V_G)
early_check(244, 243, d0_mark)
stamp()


def d_hload(q):
    tile, kk = divmod(q, 14)
    return ('buffer_load_dwordx4 %s, v1, %s, s%d offen offset:%d sc1' %
            (vr(DH + (q % DRING) * 4), srd(S_WS), sO + 4 * tile + (kk >> 2), 1024 * (kk & 3)))


hm = {}
dmk = {}
for q in range(DLOOK):
    a(d_hload(q))
    hm[q] = a.vm_mark()
    if q == 6:
        dmk[1] = early_issue(244, 243, 256)
a('s_barrier')


def d_tile(tile):
    items = []
    for kk in range(14):
        q = tile * 14 + kk
        for t in range(4):
            r = DACC + (tile * 4 + t) * 4
            pre = [(lambda qq=q: a.wait_vm(hm[qq]))] if t == 0 else []
            if t == 0 and q in (3, 9):
                pre.append(h_flag({3: 6, 9: 7}[q]))
            post = None
            if t == 0 and q + DLOOK < 56:
                def post(qq=q + DLOOK):
                    if qq % 14 == 0:
                        early_check(244, 243, dmk[qq // 14], 256 * (qq // 14))
                    a(d_hload(qq))
                    hm[qq] = a.vm_mark()
                    if qq % 14 == 6 and qq // 14 < 3:
                        dmk[qq // 14 + 1] = early_issue(244, 243, 256 * (qq // 14 + 1))
            items.append((pre, '%s %s, %s, %s, %s' % (MFMA, vr(r), ar((kk * 4 + t) * 4), vr(DH + (q % DRING) * 4),
                                                      '0' if kk == 0 else vr(r)), post))
    return items


def d_out_store(st, pk):
    a('buffer_store_dwordx2 %s, v242, %s, s%d offen %s' % (vr(pk, 2), srd(S_OUT), sPX if st == 0 else sPX2, OUTSC))
    a('buffer_store_dwordx2 %s, v242, %s, s%d offen offset:32 %s' % (vr(pk + 2, 2), srd(S_OUT), sPX if st == 0 else sPX2, OUTSC))


def d_store(st, pk):
    fin, done = newlab('L_dfin'), newlab('L_ddone')
    a('s_cmp_eq_u32 s%d, 0' % sPAIR)
    a('s_cbranch_scc0 %s' % fin)
    publish_data(st, pk)
    a('s_branch %s' % done)
    a.label(fin)
    n = a.vm_issued
    d_out_store(st, pk)
    a.vm_issued = n
    a.label(done)


DT0, DT1, DPK = 210, 226, 66
stage0 = [lambda: (a('s_waitcnt lgkmcnt(0)'), a('s_barrier'))] + red_reads(0, DRD) + finish_pre(0, True, DT0)
stage0 += [lambda: a('s_waitcnt lgkmcnt(0)')] + finish_sum(0, DRD, DT0, DPK, False) + [lambda: d_store(0, DPK)]
run_tiles(d_tile, {1: red_writes(DACC, 0), 2: red_writes(DACC + 16, 1), 3: red_writes(DACC + 32, 2) + stage0})
stamp2()
for x in red_writes(DACC + 48, 3):
    a(x)
for x in finish_pre(1, True, DT1):
    a(x)
a('s_waitcnt lgkmcnt(0)')
a('s_barrier')
stamp2()
for x in red_reads(1, DRD):
    a(x)
a('s_waitcnt lgkmcnt(0)')
for x in finish_sum(1, DRD, DT1, DPK + 4, True):
    a(x)
d_store(1, DPK + 4)
stamp()
a('s_cmp_eq_u32 s%d, 0' % sPAIR)
a('s_cbranch_scc0 L_next_pair')
publish_flags(8)
publish_stats([DT0, DT1], 88, 84)
a('s_waitcnt vmcnt(0)')
stats_flags(L.FSA - L.FX[1], 8)
a.label('L_next_pair')
stamp()
a('s_add_u32 s%d, s%d, 1' % (sPAIR, sPAIR))
a('s_cmp_lt_u32 s%d, 2' % sPAIR)
a('s_cbranch_scc1 L_pair')

a('s_cmp_eq_u32 s2, 0')
a('s_cbranch_scc0 L_noepoch')
a('s_cmp_eq_u32 s%d, 0' % sW)
a('s_cbranch_scc0 L_noepoch')
a('buffer_load_dword v2, off, %s, 0 sc1' % srd(S_WS))
a('s_waitcnt vmcnt(0)')
a('v_add_u32 v2, 1, v2')
a('s_mov_b64 exec, 1')
a('buffer_store_dword v2, off, %s, 0 sc1' % srd(S_WS))
a('s_mov_b64 exec, -1')
a.label('L_noepoch')
if PAD:
    a.label('L_padspin')
    a('s_memrealtime s[34:35]')
    a('s_waitcnt lgkmcnt(0)')
    a('s_sub_u32 s34, s34, s0')
    a('s_cmp_lt_u32 s34, %d' % PAD[0])
    a('s_cbranch_scc1 L_padspin')
if DBG:
    a('s_memtime s[32:33]')
    a('s_memrealtime s[34:35]')
    a('s_waitcnt lgkmcnt(0)')
    a('s_sub_u32 s32, s32, s26')
    a('s_sub_u32 s34, s34, s0')
    build_srd(S_TMP, P_DBG, 256)
    a('v_mov_b32 v2, s32')
    a('v_mov_b32 v3, s34')
    a('v_mov_b32 v4, s%d' % sFAST)
    a('v_mov_b32 v5, s%d' % sXCC)
    a('s_lshr_b32 s%d, s2, 6' % sA)
    a('s_lshl_b32 s%d, s%d, 4' % (sA, sA))
    a('s_and_b32 s%d, s2, 63' % sB)
    a('s_or_b32 s%d, s%d, s%d' % (sB, sB, sW))
    a('s_cmp_eq_u32 s%d, 0' % sB)
    a('s_cselect_b32 s%d, s%d, 0x%x' % (sA, sA, INV))
    a('v_mov_b32 v6, s%d' % sA)
    a('s_mov_b64 exec, 1')
    a('buffer_store_dwordx4 v[2:5], v6, %s, 0 offen' % srd(S_TMP))
    a('s_mov_b64 exec, -1')
if DIAG:
    stamp()
    a('s_mov_b32 s%d, 63' % sSTI)
    a('s_lshl_b64 exec, 1, s%d' % sSTI)
    a('v_mov_b32 v%d, s%d' % (V_STAMP, sERR))
    a('s_mov_b32 s%d, 62' % sSTI)
    a('s_lshl_b64 exec, 1, s%d' % sSTI)
    a('v_mov_b32 v%d, s%d' % (V_STAMP, sFAST))
    a('s_mov_b64 exec, -1')
    a('s_lshl_b32 s%d, s2, 2' % sA)
    a('s_add_u32 s%d, s%d, s%d' % (sA, sA, sW))
    a('s_lshl_b32 s%d, s%d, 8' % (sA, sA))
    a('v_lshlrev_b32 v2, 2, v0')
    a('s_add_u32 s%d, s%d, %d' % (sA, sA, L.WS_USED))
    a('s_mov_b32 s%d, 0x%x' % (S_WS + 2, L.WS_USED + 256 * 1024))
    a('buffer_store_dword v%d, v2, %s, s%d offen' % (V_STAMP, srd(S_WS), sA))
    if DBGST:
        build_srd(S_TMP, P_DBG, 256)
        a('v_readfirstlane_b32 s%d, v%d' % (sA, V_STAMP))
        a('s_nop 4')
        a('v_subrev_u32 v3, s%d, v%d' % (sA, V_STAMP))
        a('s_or_b32 s%d, s2, s%d' % (sB, sW))
        a('s_cmp_eq_u32 s%d, 0' % sB)
        a('s_cselect_b32 s%d, 0, 0x%x' % (sB, INV))
        a('v_or_b32 v2, s%d, v2' % sB)
        SEL = [int(x[6:]) for x in sys.argv if x.startswith('--sel=')]
        sel = SEL[0] if SEL else 1
        a('v_subrev_u32 v2, %d, v2' % (4 * sel))
        a('buffer_store_dword v3, v2, %s, 0 offen' % srd(S_TMP))
a.label('L_end')
a('s_endpgm')

a.finalize()
body = a.text()

import os
hdr = open(os.path.join(os.path.dirname(os.path.abspath(__file__)), 'header.txt')).read()
out = hdr + '; @launch grid=(256,1,1) block=(256,1,1) lds=%d\n' % L.LDS_BYTES
out += '.amdgcn_target "amdgcn-amd-amdhsa--gfx950"\n.text\n.globl %s_kernel\n.p2align 8\n.type %s_kernel,@function\n%s_kernel:\n' % (NAME, NAME, NAME)
out += body
out += '''.section .rodata,"a"
.p2align 6
.amdhsa_kernel %s_kernel
  .amdhsa_next_free_vgpr 512
  .amdhsa_next_free_sgpr 102
  .amdhsa_accum_offset 256
  .amdhsa_group_segment_fixed_size 0
  .amdhsa_kernarg_size 88
  .amdhsa_user_sgpr_count 2
  .amdhsa_user_sgpr_kernarg_segment_ptr 1
  .amdhsa_system_sgpr_workgroup_id_x 1
.end_amdhsa_kernel
''' % NAME
sys.stdout.write(out)
```

```python
import struct
import sys
from asmlib import Asm
import layout as L

NAME = 'interleave_layers__sliding_local_dilated__mixer_channel_mlp__prompt'
DIAG = '--diag' in sys.argv
FASTMODE = ([x[7:] for x in sys.argv if x.startswith('--fast=')] + ['flags'])[0]
NOFAST = FASTMODE == 'none'
PAD = [int(x[6:]) for x in sys.argv if x.startswith('--pad=')]
DBG = '--dbg' in sys.argv or bool(PAD)
SPIN_LIMIT = 200000
OUTSC = ([x[8:] for x in sys.argv if x.startswith('--outsc=')] + [''])[0].replace('_', ' ')
SLEEP = int(([x[8:] for x in sys.argv if x.startswith('--sleep=')] + ['0'])[0])
INV = 0x80000000

a = Asm()

sXCC = 3
S_WS, S_TMP, S_B1, S_OUT = 4, 8, 12, 16
P_X, P_WQKV, P_WO, P_BX, P_W1, P_B1, P_W2, P_B2, P_OUT, P_DBG, P_WSP = 20, 22, 24, 26, 28, 30, 32, 34, 36, 38, 40
sS, sC, sG, sJ, sW, sT, sPAIR, sSPIN = 42, 43, 44, 45, 46, 47, 48, 49
sM1 = 50
sM2 = 58
sM0 = 66
sO = 74
sA, sB, sCc, sD = 90, 91, 92, 93
sMK = 94
sTS = 96
sGT = 98
sERR = 99
sSTI = 100
sFAST = 101
sFD = 27
sPFC = 26
sFH = 25


def srd(n):
    return 's[%d:%d]' % (n, n + 3)


def vr(n, k=4):
    return 'v[%d:%d]' % (n, n + k - 1)


def ar(n, k=4):
    return 'a[%d:%d]' % (n, n + k - 1)


def sp(n):
    return 's[%d:%d]' % (n, n + 1)


def f2h(x):
    return '0x%08x' % struct.unpack('<I', struct.pack('<f', x))[0]


V_T, V_STAMP = 254, 255
V_TOK, V_G = 250, 251
MFMA = 'v_mfma_f32_16x16x32_bf16'


DIAG2 = '--diag2' in sys.argv
PREF = '--pref' in sys.argv
TOUCH = '--touch' in sys.argv
SKEW = [int(x[7:]) for x in sys.argv if x.startswith('--skew=')]
DBGST = '--dbgst' in sys.argv


def stamp2():
    if DIAG2:
        stamp()


def stamp():
    if not DIAG:
        return
    a('s_memtime %s' % sp(sTS))
    a('s_waitcnt lgkmcnt(0)')
    a('s_lshl_b64 exec, 1, s%d' % sSTI)
    a('v_mov_b32 v%d, s%d' % (V_STAMP, sTS))
    a('s_mov_b64 exec, -1')
    a('s_add_u32 s%d, s%d, 1' % (sSTI, sSTI))


lab_no = [0]


def newlab(p):
    lab_no[0] += 1
    return '%s_%d' % (p, lab_no[0])


def skew_store(point, have=False):
    if not SKEW or SKEW[0] != point:
        return
    if not have:
        a('s_memrealtime s[96:97]')
        a('s_waitcnt lgkmcnt(0)')
    build_srd(S_TMP, P_DBG, 256)
    a('s_and_b32 s%d, s2, 15' % sA)
    a('s_or_b32 s%d, s%d, s%d' % (sA, sA, sW))
    a('s_cmp_eq_u32 s%d, 0' % sA)
    a('s_cselect_b32 s%d, 0, 0x%x' % (sA, INV))
    a('s_lshr_b32 s%d, s2, 2' % sB)
    a('s_or_b32 s%d, s%d, s%d' % (sA, sA, sB))
    a('v_mov_b32 v21, s%d' % sA)
    a('v_mov_b32 v22, s96')
    a('s_mov_b64 exec, 1')
    a('buffer_store_dword v22, v21, %s, 0 offen' % srd(S_TMP))
    a.vm_issued -= 1
    a('s_mov_b64 exec, -1')


def build_srd(dst, ptr, nbytes):
    a('s_mov_b32 s%d, s%d' % (dst, ptr))
    a('s_and_b32 s%d, s%d, 0xffff' % (dst + 1, ptr + 1))
    a('s_mov_b32 s%d, 0x%x' % (dst + 2, nbytes))
    a('s_mov_b32 s%d, 0x20000' % (dst + 3))


def poll(voff, off2=None):
    lab, done = newlab('L_poll'), newlab('L_polldone')
    a('s_mov_b64 exec, %s' % sp(sMK))
    a('s_mov_b32 s%d, 0' % sSPIN)
    a.label(lab)
    a('buffer_load_dword v253, v%d, %s, 0 offen sc1' % (voff, srd(S_WS)))
    if off2 is not None:
        a('buffer_load_dword v245, v%d, %s, 0 offen offset:%d sc1' % (voff, srd(S_WS), off2))
    a('s_waitcnt vmcnt(0)')
    if off2 is not None:
        a('v_xor_b32 v245, s%d, v245' % sT)
        a('v_xor_b32 v253, s%d, v253' % sT)
        a('v_or_b32 v253, v253, v245')
        a('v_cmp_ne_u32 vcc, 0, v253')
    else:
        a('v_cmp_ne_u32 vcc, s%d, v253' % sT)
    a('s_nop 4')
    a('s_cbranch_vccz %s' % done)
    if SLEEP:
        a('s_sleep %d' % SLEEP)
    a('s_add_u32 s%d, s%d, 1' % (sSPIN, sSPIN))
    a('s_cmp_lt_u32 s%d, %d' % (sSPIN, SPIN_LIMIT))
    a('s_cbranch_scc1 %s' % lab)
    a('s_add_u32 s%d, s%d, 1' % (sERR, sERR))
    a.label(done)
    a('s_mov_b64 exec, -1')


sMK2 = 30


def early_issue(dst, voff, off=0):
    a('s_mov_b64 exec, %s' % sp(sMK2))
    a('buffer_load_dword v%d, v%d, %s, 0 offen offset:%d sc1' % (dst, voff, srd(S_WS), off))
    a('s_mov_b64 exec, -1')
    return a.vm_mark()


def early_check(dst, voff, mark, off=0):
    ok = newlab('L_early')
    a.wait_vm(mark)
    a('s_mov_b64 exec, %s' % sp(sMK2))
    a('v_cmp_ne_u32 vcc, s%d, v%d' % (sT, dst))
    a('s_mov_b64 exec, -1')
    a('s_nop 2')
    a('s_cbranch_vccz %s' % ok)
    a('s_mov_b64 %s, %s' % (sp(sMK), sp(sMK2)))
    n = a.vm_issued
    if off:
        a('v_add_u32 v253, %d, v%d' % (off, voff))
        a('v_mov_b32 v%d, v253' % dst)
        poll(dst)
    else:
        poll(voff)
    a.vm_issued = n
    a.label(ok)


def store(fmt, cond=None):
    if cond is None or NOFAST or (FASTMODE == 'flags' and cond in (sFD, sFH, sPC)):
        a(fmt + ' sc1')
        return
    slow, done = newlab('L_slow'), newlab('L_st')
    a('s_cmp_eq_u32 s%d, 0' % cond)
    a('s_cbranch_scc1 %s' % slow)
    a(fmt)
    a('s_branch %s' % done)
    a.label(slow)
    a(fmt + ' sc1')
    a.vm_issued -= 1
    a.label(done)


def set_flags(voff, nlanes, cond=None, val=V_T, between=()):
    mark = a.vm_mark()
    for x in between:
        a(x)
    a.wait_vm(mark)
    a('s_mov_b64 exec, %d' % ((1 << nlanes) - 1))
    store('buffer_store_dword v%d, v%d, %s, 0 offen' % (val, voff, srd(S_WS)), cond)
    a('s_mov_b64 exec, -1')


def xg_reduce(x, t, op='v_add_f32'):
    return ['v_mov_b32 v%d, v%d' % (t, x),
            'v_permlane32_swap_b32 v%d, v%d' % (x, t),
            '%s v%d, v%d, v%d' % (op, x, x, t),
            'v_mov_b32 v%d, v%d' % (t, x),
            'v_permlane16_swap_b32 v%d, v%d' % (x, t),
            '%s v%d, v%d, v%d' % (op, x, x, t)]


EPS = 1e-5


def stats_finish(s1, s2, t, double_ln):
    o = ['v_mul_f32 v%d, %s, v%d' % (s1, f2h(1.0 / 448), s1),
         'v_mul_f32 v%d, %s, v%d' % (s2, f2h(1.0 / 448), s2),
         'v_fma_f32 v%d, -v%d, v%d, v%d' % (s2, s1, s1, s2),
         'v_max_f32 v%d, 0, v%d' % (s2, s2),
         'v_add_f32 v%d, %s, v%d' % (t, f2h(EPS), s2),
         'v_rsq_f32 v%d, v%d' % (t, t)]
    if not double_ln:
        o += ['v_mov_b32 v%d, v%d' % (s2, t)]
    else:
        o += ['v_mul_f32 v%d, v%d, v%d' % (s2, s2, t),
              'v_fmaak_f32 v%d, v%d, v%d, %s' % (s2, s2, t, f2h(EPS)),
              'v_rsq_f32 v%d, v%d' % (s2, s2),
              'v_mul_f32 v%d, v%d, v%d' % (s2, s2, t)]
    return o


def pair_base(dst, arr):
    a('s_mul_i32 s%d, s%d, %d' % (dst, sPAIR, arr[1] - arr[0]))
    a('s_add_u32 s%d, s%d, %d' % (dst, dst, arr[0]))


def quarter_offsets(n, stride):
    for t in range(n):
        if t:
            a('s_add_u32 s%d, s%d, %d' % (sO + 4 * t, sO + 4 * (t - 1), stride))
        for q in range(1, 4):
            a('s_add_u32 s%d, s%d, %d' % (sO + 4 * t + q, sO + 4 * t, 4096 * q))


sPX, sPS, sPF, sPC, sPX2 = 36, 37, 28, 29, 33


def stats_flags(delta, lsh):
    a('v_lshlrev_b32 v241, %d, v0' % lsh)
    a('s_add_u32 s%d, s%d, %d' % (sA, sPF, delta))
    a('v_add_u32 v241, s%d, v241' % sA)
    a('s_mov_b64 exec, 3')
    store('buffer_store_dword v%d, v241, %s, 0 offen' % (V_T, srd(S_WS)), sPFC)
    a('s_mov_b64 exec, -1')


a('s_cmp_ge_u32 s2, 256')
a('s_cbranch_scc1 L_end')
a('s_load_dwordx16 s[20:35], s[0:1], 0')
a('s_load_dwordx4 s[36:39], s[0:1], 64')
a('s_load_dwordx2 s[40:41], s[0:1], 80')
a('s_getreg_b32 s%d, hwreg(HW_REG_XCC_ID, 0, 4)' % sXCC)
a('s_and_b32 s%d, s2, 7' % sA)
a('s_lshr_b32 s%d, s2, 3' % sB)
a('s_lshr_b32 s%d, s%d, 4' % (sCc, sB))
a('s_lshl_b32 s%d, s%d, 1' % (sS, sA))
a('s_add_u32 s%d, s%d, s%d' % (sS, sS, sCc))
a('s_and_b32 s%d, s%d, 15' % (sC, sB))
a('s_lshr_b32 s%d, s%d, 3' % (sA, sC))
a('s_lshl_b32 s%d, s%d, 1' % (sG, sS))
a('s_add_u32 s%d, s%d, s%d' % (sG, sG, sA))
a('s_and_b32 s%d, s%d, 7' % (sJ, sC))
a('s_mov_b32 s%d, 0' % sERR)
if SKEW and SKEW[0] == 0:
    a('s_memrealtime s[96:97]')
if PREF:
    a('s_getpc_b64 s[96:97]')
    a.label('L_pc')
    a('s_lshl_b32 s%d, s%d, 11' % (sA, sB))
    a('v_lshlrev_b32 v3, 3, v0')
    a('v_add_u32 v3, s%d, v3' % sA)
    a('v_min_u32 v3, L_end-L_pc-8, v3')
    a('global_load_dwordx2 v[252:253], v3, s[96:97]')
a('v_lshrrev_b32 v2, 6, v0')
a('v_and_b32 v0, 63, v0')
a('v_readfirstlane_b32 s%d, v2' % sW)
a('v_lshlrev_b32 v1, 4, v0')
if DIAG:
    a('v_mov_b32 v%d, 0' % V_STAMP)
    a('s_mov_b32 s%d, 0' % sSTI)
stamp()
a('v_and_b32 v%d, 15, v0' % V_TOK)
a('v_lshrrev_b32 v%d, 4, v0' % V_G)
sSTG = 40
a('s_waitcnt lgkmcnt(0)')
if DBG:
    a('s_memtime s[26:27]')
    a('s_memrealtime s[0:1]')
    a('s_waitcnt lgkmcnt(0)')
skew_store(0, True)
build_srd(S_WS, P_WSP, L.WS_USED)
a('buffer_load_dword v%d, off, %s, 0 sc1' % (V_T, srd(S_WS)))
a('s_lshl_b32 s%d, s%d, 14' % (sSTG, sW))
a('s_add_u32 s%d, s%d, %d' % (sSTG, sSTG, L.L_R2))

build_srd(S_TMP, P_X, 2048 * 896)
a('v_mul_u32_u24 v2, 896, v%d' % V_TOK)
a('v_lshl_add_u32 v2, v%d, 3, v2' % V_G)
a('s_lshr_b32 s%d, s%d, 1' % (sA, sC))
a('s_lshl_b32 s%d, s%d, 3' % (sB, sS))
a('s_add_u32 s%d, s%d, s%d' % (sO + 0, sA, sB))
a('s_and_b32 s%d, s%d, 1' % (sA, sC))
a('s_mul_i32 s%d, s%d, 7' % (sA, sA))
a('s_add_u32 s%d, s%d, s%d' % (sO + 1, sA, sW))
a('s_cmp_lt_u32 s%d, 3' % sW)
a('s_cselect_b32 s%d, 0, 0x%x' % (sO + 2, INV))
a('s_mul_i32 s%d, s%d, 14336' % (sA, sO + 0))
a('s_lshl_b32 s%d, s%d, 6' % (sB, sO + 1))
a('s_add_u32 s%d, s%d, s%d' % (sA, sA, sB))
a('v_or_b32 v3, s%d, v2' % (sO + 2))
a('buffer_load_dwordx2 v[10:11], v2, %s, s%d offen' % (srd(S_TMP), sA))
a('buffer_load_dwordx2 v[12:13], v2, %s, s%d offen offset:32' % (srd(S_TMP), sA))
a('buffer_load_dwordx2 v[14:15], v3, %s, s%d offen offset:256' % (srd(S_TMP), sA))
a('buffer_load_dwordx2 v[16:17], v3, %s, s%d offen offset:288' % (srd(S_TMP), sA))

build_srd(S_TMP, P_WQKV, 448 * 2688)
qMAT, qU, qINV = sO + 3, sO + 4, sO + 5
a('s_lshl_b32 s%d, s%d, 4' % (sA, sW))
a('s_add_u32 s%d, s%d, s%d' % (sA, sA, sS))
a('s_cmp_lt_u32 s%d, 42' % sA)
a('s_cselect_b32 s%d, 0, 0x%x' % (qINV, INV))
a('s_min_u32 s%d, s%d, 41' % (sA, sA))
a('s_mul_i32 s%d, s%d, 4682' % (qMAT, sA))
a('s_lshr_b32 s%d, s%d, 16' % (qMAT, qMAT))
a('s_mul_i32 s%d, s%d, 14' % (sB, qMAT))
a('s_sub_u32 s%d, s%d, s%d' % (qU, sA, sB))
a('s_mul_i32 s%d, s%d, %d' % (sA, qU, 32 * 2688))
a('s_mul_i32 s%d, s%d, 896' % (sB, qMAT))
a('s_add_u32 s%d, s%d, s%d' % (sA, sA, sB))
a('s_mul_i32 s%d, s%d, 56' % (sB, sC))
a('s_add_u32 s%d, s%d, s%d' % (sA, sA, sB))
a('v_lshrrev_b32 v4, 2, v0')
a('v_mul_u32_u24 v4, 2688, v4')
a('v_and_b32 v5, 3, v0')
a('v_lshl_add_u32 v4, v5, 4, v4')
a('v_or_b32 v4, s%d, v4' % qINV)
a('s_mov_b32 m0, s%d' % sSTG)
a('s_add_u32 s%d, s%d, %d' % (sB, sA, 16 * 2688))
a('buffer_load_dwordx4 v4, %s, s%d offen lds' % (srd(S_TMP), sA))
a('s_add_u32 m0, s%d, 1024' % sSTG)
a('s_nop 0')
a('buffer_load_dwordx4 v4, %s, s%d offen lds' % (srd(S_TMP), sB))

build_srd(S_B1, P_B1, 1792 * 2)
build_srd(S_OUT, P_OUT, 2048 * 896)
a('v_bfe_u32 v18, v0, 2, 2')
a('v_lshl_add_u32 v18, v%d, 2, v18' % V_G)
a('v_and_b32 v19, 3, v0')
a('v_lshlrev_b32 v19, 3, v19')
if TOUCH:
    a('v_lshlrev_b32 v21, 21, v0')
    a('s_mov_b64 exec, 0x1ffff')
    a('buffer_load_dword v253, v21, %s, 0 offen' % srd(S_WS))
    a('s_mov_b64 exec, -1')
    a('s_waitcnt vmcnt(1)')
else:
    a('s_waitcnt vmcnt(0)')
stamp()

a('s_mov_b32 s%d, 0x9E3779B1' % sA)
a('v_mul_lo_u32 v%d, v%d, s%d' % (V_T, V_T, sA))
a('v_add_u32 v%d, 0x7F4A7C15, v%d' % (V_T, V_T))
a('v_and_b32 v%d, -16, v%d' % (V_T, V_T))
a('v_lshl_add_u32 v20, v18, 6, v19')
a('v_add_u32 v20, s%d, v20' % sSTG)
for hf in range(2):
    a('ds_read_b64_tr_b16 %s, v20 offset:%d' % (vr(24 + 4 * hf, 2), 32 * hf))
    a('ds_read_b64_tr_b16 %s, v20 offset:%d' % (vr(26 + 4 * hf, 2), 32 * hf + 1024))
a('v_readfirstlane_b32 s%d, v%d' % (sT, V_T))
a('s_mul_i32 s%d, s%d, 14' % (sA, sO + 0))
a('s_add_u32 s%d, s%d, s%d' % (sA, sA, sO + 1))
a('s_lshl_b32 s%d, s%d, 10' % (sB, sA))
a('s_add_u32 s%d, s%d, %d' % (sB, sB, L.XA[0]))
a('v_or_b32 v3, s%d, v1' % (sO + 2))
a('buffer_store_dwordx4 v[10:13], v1, %s, s%d offen sc1' % (srd(S_WS), sB))
a('s_add_u32 s%d, s%d, 4096' % (sB, sB))
a('buffer_store_dwordx4 v[14:17], v3, %s, s%d offen sc1' % (srd(S_WS), sB))
a('v_cmp_gt_u32 vcc, 12, v%d' % V_TOK)
a('s_mul_i32 s%d, s%d, 84' % (sB, sC))
a('s_mul_i32 s%d, s%d, 28' % (sCc, qMAT))
a('s_add_u32 s%d, s%d, s%d' % (sB, sB, sCc))
a('s_add_u32 s%d, s%d, s%d' % (sB, sB, qU))
a('s_lshl_b32 s%d, s%d, 10' % (sB, sB))
a('s_add_u32 s%d, s%d, %d' % (sB, sB, L.WA))
a('v_or_b32 v4, s%d, v1' % qINV)
a('s_waitcnt lgkmcnt(0)')
for p in range(4):
    a('v_cndmask_b32 v%d, 0, v%d, vcc' % (28 + p, 28 + p))
a('buffer_store_dwordx4 v[24:27], v4, %s, s%d offen sc1' % (srd(S_WS), sB))
a('s_add_u32 s%d, s%d, %d' % (sB, sB, 14 * 1024))
a('buffer_store_dwordx4 v[28:31], v4, %s, s%d offen sc1' % (srd(S_WS), sB))
a('v_mov_b32 v2, 0x3f803f80')
for k in range(2):
    x, s1, s2 = 10 + 4 * k, 110 + 2 * k, 111 + 2 * k
    a('v_mov_b32 v%d, 0' % s1)
    a('v_mov_b32 v%d, 0' % s2)
    for p in range(4):
        a('v_dot2_f32_bf16 v%d, v%d, v2, v%d' % (s1, x + p, s1))
        a('v_dot2_f32_bf16 v%d, v%d, v%d, v%d' % (s2, x + p, x + p, s2))
    for t in xg_reduce(s1, 114) + xg_reduce(s2, 115):
        a(t)
a('s_lshl_b32 s%d, s%d, 7' % (sB, sA))
a('s_add_u32 s%d, s%d, %d' % (sB, sB, L.SA[0]))
a('v_lshlrev_b32 v2, 3, v%d' % V_TOK)
a('v_or_b32 v3, s%d, v2' % (sO + 2))
a('s_mov_b64 exec, 0xffff')
a('buffer_store_dwordx2 v[110:111], v2, %s, s%d offen sc1' % (srd(S_WS), sB))
a('buffer_store_dwordx2 v[112:113], v3, %s, s%d offen offset:512 sc1' % (srd(S_WS), sB))
a('s_mov_b64 exec, -1')
crit_mark = a.vm_mark()
bINV, bDST, bSTR = 20, 21, 22
a('s_lshl_b32 s%d, s%d, 5' % (sA, sW))
a('s_add_u32 s%d, s%d, s%d' % (sA, sA, sG))
a('s_cmp_lt_u32 s%d, 72' % sA)
a('s_cselect_b32 s%d, 0, 0x%x' % (bINV, INV))
a('s_cmp_eq_u32 s%d, 7' % sJ)
a('s_cselect_b32 s%d, 0x%x, s%d' % (bINV, INV, bINV))
a('s_min_u32 s%d, s%d, 71' % (sA, sA))
a('s_min_u32 s%d, s%d, 6' % (sD, sJ))
a('s_cmp_lt_u32 s%d, 16' % sA)
a('s_cselect_b32 s%d, s%d, s%d' % (S_TMP, P_WO, P_W2))
a('s_cselect_b32 s%d, s%d, s%d' % (S_TMP + 1, P_WO + 1, P_W2 + 1))
a('s_mov_b32 s%d, 0x%x' % (S_TMP + 2, 1792 * 896))
a('s_cselect_b32 s%d, 0x%x, s%d' % (S_TMP + 2, 448 * 896, S_TMP + 2))
a('s_cselect_b32 s%d, 28, 32' % sB)
a('s_cselect_b32 s%d, 0, 16' % sCc)
a('s_mov_b32 s%d, %d' % (bSTR, 56 * 1024))
a('s_cselect_b32 s%d, %d, s%d' % (bSTR, 16 * 1024, bSTR))
a('s_mov_b32 s%d, %d' % (bDST, L.WD))
a('s_cselect_b32 s%d, %d, s%d' % (bDST, L.WB, bDST))
a('s_cselect_b32 s%d, 0x%x, 0' % (sO + 9, INV))
a('s_and_b32 s%d, s%d, 0xffff' % (S_TMP + 1, S_TMP + 1))
a('s_mov_b32 s%d, 0x20000' % (S_TMP + 3))
a('s_sub_u32 s%d, s%d, s%d' % (sA, sA, sCc))
a('s_lshl_b32 s%d, s%d, 10' % (sCc, sA))
a('s_add_u32 s%d, s%d, s%d' % (bDST, bDST, sCc))
a('s_lshl_b32 s%d, s%d, 2' % (sCc, sD))
a('s_mul_i32 s%d, s%d, s%d' % (sCc, sCc, bSTR))
a('s_add_u32 s%d, s%d, s%d' % (bDST, bDST, sCc))
a('s_mul_i32 s%d, s%d, s%d' % (sA, sA, sB))
a('s_mul_i32 s%d, s%d, 896' % (sA, sA))
a('s_lshl_b32 s%d, s%d, 7' % (sB, sD))
a('s_add_u32 s%d, s%d, s%d' % (sA, sA, sB))
a('v_lshrrev_b32 v6, 3, v0')
a('v_mul_u32_u24 v6, 896, v6')
a('v_and_b32 v5, 7, v0')
a('v_lshl_add_u32 v6, v5, 4, v6')
a('v_or_b32 v6, s%d, v6' % bINV)
a('v_cmp_lt_u32 vcc, 31, v0')
a('v_mov_b32 v7, s%d' % (sO + 9))
a('v_cndmask_b32 v7, 0, v7, vcc')
a('v_or_b32 v7, v7, v6')
for q in range(4):
    a('s_add_u32 m0, s%d, %d' % (sSTG, 2048 + 1024 * q))
    if q:
        a('s_add_u32 s%d, s%d, %d' % (sA, sA, 8 * 896))
    else:
        a('s_nop 0')
    a('buffer_load_dwordx4 v%d, %s, s%d offen lds' % (7 if q == 3 else 6, srd(S_TMP), sA))

build_srd(S_TMP, P_W1, 448 * 3584)
cINV, cNT, cI12 = 23, 24, 25
a('s_cmp_lt_u32 s%d, 16' % sG)
a('s_cselect_b32 s%d, 0, 0x%x' % (cINV, INV))
a('s_cmp_eq_u32 s%d, 7' % sJ)
a('s_cselect_b32 s%d, 0x%x, s%d' % (cINV, INV, cINV))
a('s_min_u32 s%d, s%d, 6' % (sD, sJ))
a('s_lshl_b32 s%d, s%d, 4' % (cNT, sD))
a('s_and_b32 s%d, s%d, 15' % (sA, sG))
a('s_add_u32 s%d, s%d, s%d' % (cNT, cNT, sA))
a('s_cmp_lt_u32 s%d, 2' % sW)
a('s_cselect_b32 s%d, s%d, 0x%x' % (cI12, cINV, INV))
a('v_lshrrev_b32 v8, 1, v0')
a('v_mul_u32_u24 v8, 3584, v8')
a('v_and_b32 v5, 1, v0')
a('v_lshl_add_u32 v8, v5, 4, v8')
a('v_or_b32 v9, s%d, v8' % cI12)
a('v_or_b32 v8, s%d, v8' % cINV)
a('s_lshl_b32 s%d, s%d, 5' % (sB, cNT))
for i in range(4):
    a('s_add_u32 s%d, s%d, %d' % (sA, sW, 4 * i))
    a('s_min_u32 s%d, s%d, 13' % (sA, sA))
    a('s_mul_i32 s%d, s%d, %d' % (sA, sA, 32 * 3584))
    a('s_add_u32 s%d, s%d, s%d' % (sA, sA, sB))
    a('s_add_u32 m0, s%d, %d' % (sSTG, 6144 + 1024 * i))
    a('s_nop 0')
    a('buffer_load_dwordx4 v%d, %s, s%d offen lds' % (9 if i == 3 else 8, srd(S_TMP), sA))
a('s_lshl_b32 s%d, s%d, 5' % (sA, sO + 0))
a('s_add_u32 s%d, s%d, s%d' % (sA, sA, sO + 1))
a('s_lshl_b32 s%d, s%d, 2' % (sA, sA))
a('s_add_u32 s%d, s%d, %d' % (sA, sA, L.FX[0]))
a('v_lshlrev_b32 v2, 4, v0')
a('v_add_u32 v2, s%d, v2' % sA)
a('v_cmp_eq_u32 vcc, 1, v0')
a('v_mov_b32 v3, s%d' % (sO + 2))
a('v_cndmask_b32 v3, 0, v3, vcc')
a('v_or_b32 v2, v2, v3')
a('s_lshl_b32 s%d, s%d, 6' % (sA, sC))
a('s_lshl_b32 s%d, s%d, 2' % (sB, sS))
a('s_add_u32 s%d, s%d, s%d' % (sA, sA, sB))
a('s_add_u32 s%d, s%d, s%d' % (sA, sA, sW))
a('s_lshl_b32 s%d, s%d, 2' % (sA, sA))
a('s_add_u32 s%d, s%d, %d' % (sA, sA, L.FQ))
a('v_mov_b32 v3, s%d' % sA)
a('v_cmp_eq_u32 vcc, 2, v0')
a('v_cndmask_b32 v2, v2, v3, vcc')
a('s_lshl_b32 s%d, s%d, 4' % (sA, sS))
a('s_add_u32 s%d, s%d, s%d' % (sA, sA, sC))
a('s_lshl_b32 s%d, s%d, 2' % (sA, sA))
a('s_add_u32 s%d, s%d, %d' % (sA, sA, L.FXC))
a('s_cmp_eq_u32 s%d, 0' % sW)
a('s_cselect_b32 s%d, s%d, 0x%x' % (sA, sA, INV))
a('v_mov_b32 v3, s%d' % sA)
a('v_cmp_eq_u32 vcc, 3, v0')
a('v_cndmask_b32 v2, v2, v3, vcc')
a('v_or_b32 v3, s%d, v%d' % (sXCC, V_T))
a('v_cndmask_b32 v3, v%d, v3, vcc' % V_T)
stamp2()
a.wait_vm(crit_mark)
a('s_mov_b64 exec, 15')
a('buffer_store_dword v3, v2, %s, 0 offen sc1' % srd(S_WS))
a('s_mov_b64 exec, -1')
stamp()

skew_store(1)
a('s_waitcnt vmcnt(1)')
a('v_lshl_add_u32 v20, v18, 7, v19')
a('v_add_u32 v20, s%d, v20' % sSTG)
for t in range(4):
    a('ds_read_b64_tr_b16 %s, v20 offset:%d' % (vr(24 + 4 * t, 2), 2048 + 32 * t))
    a('ds_read_b64_tr_b16 %s, v20 offset:%d' % (vr(26 + 4 * t, 2), 2048 + 32 * t + 2048))
a('v_lshl_add_u32 v21, v18, 5, v19')
a('v_add_u32 v21, s%d, v21' % sSTG)
for i in range(4):
    a('ds_read_b64_tr_b16 %s, v21 offset:%d' % (vr(40 + 4 * i, 2), 6144 + 1024 * i))
    a('ds_read_b64_tr_b16 %s, v21 offset:%d' % (vr(42 + 4 * i, 2), 6144 + 1024 * i + 512))
a('v_or_b32 v6, s%d, v1' % bINV)
a('s_waitcnt lgkmcnt(8)')
for t in range(4):
    a('buffer_store_dwordx4 %s, v6, %s, s%d offen sc1' % (vr(24 + 4 * t), srd(S_WS), bDST))
    if t < 3:
        a('s_add_u32 s%d, s%d, s%d' % (bDST, bDST, bSTR))
a('s_mul_i32 s%d, s%d, 14' % (sA, cNT))
a('s_add_u32 s%d, s%d, s%d' % (sA, sA, sW))
a('s_lshl_b32 s%d, s%d, 10' % (sA, sA))
a('s_add_u32 s%d, s%d, %d' % (sA, sA, L.WC))
a('v_or_b32 v8, s%d, v1' % cINV)
a('v_or_b32 v9, s%d, v1' % cI12)
a('v_mov_b32 v2, 0x3f803f80')
a('v_mov_b32 v100, 0')
a('s_waitcnt lgkmcnt(0)')
for i in range(4):
    a('buffer_store_dwordx4 %s, v%d, %s, s%d offen sc1' % (vr(40 + 4 * i), 9 if i == 3 else 8, srd(S_WS), sA))
    a('s_add_u32 s%d, s%d, 4096' % (sA, sA))
for i in range(4):
    for p in range(4):
        a('v_dot2_f32_bf16 v100, v%d, v2, v100' % (40 + 4 * i + p))
for t in xg_reduce(100, 101):
    a(t)
a('s_lshl_b32 s%d, s%d, 6' % (sA, sW))
a('s_add_u32 s%d, s%d, %d' % (sA, sA, L.L_CSR))
a('v_lshlrev_b32 v2, 2, v%d' % V_TOK)
a('v_add_u32 v3, s%d, v2' % sA)
a('ds_write_b32 v3, v100')
a('s_waitcnt lgkmcnt(0)')
a('s_barrier')
a('v_add_u32 v3, %d, v2' % L.L_CSR)
for i in range(4):
    a('ds_read_b32 v%d, v3 offset:%d' % (104 + i, 64 * i))
a('s_lshl_b32 s%d, s%d, 6' % (sB, cNT))
a('s_add_u32 s%d, s%d, %d' % (sB, sB, L.CSC))
a('s_cmp_eq_u32 s%d, 0' % sW)
a('s_cselect_b32 s%d, s%d, 0x%x' % (sA, cINV, INV))
a('v_or_b32 v2, s%d, v2' % sA)
a('s_waitcnt lgkmcnt(0)')
a('v_add_f32 v104, v104, v105')
a('v_add_f32 v106, v106, v107')
a('v_add_f32 v104, v104, v106')
a('s_mov_b64 exec, 0xffff')
a('buffer_store_dword v104, v2, %s, s%d offen sc1' % (srd(S_WS), sB))
a('s_mov_b64 exec, -1')

skew_store(3)
a('v_and_b32 v2, 1, v%d' % V_TOK)
a('v_lshlrev_b32 v3, 2, v%d' % V_G)
a('v_add_u32 v6, 2, v%d' % V_TOK)
for i in range(4):
    a('v_add_u32 v4, %d, v3' % i)
    a('v_cmp_eq_u32 vcc, %d, v2' % (i & 1))
    a('s_mov_b64 %s, vcc' % sp(sMK))
    a('v_cmp_ge_u32 vcc, v4, v6')
    a('s_and_b64 %s, vcc, %s' % (sp(sM1 + 2 * i), sp(sMK)))
    a('v_cmp_le_u32 vcc, v4, v%d' % V_TOK)
    a('s_and_b64 %s, vcc, %s' % (sp(sM2 + 2 * i), sp(sMK)))
a('s_lshl_b32 s%d, s%d, 3' % (sA, sS))
a('s_lshl_b32 s%d, s%d, 1' % (sB, sW))
a('s_add_u32 s%d, s%d, s%d' % (sGT, sA, sB))
a('s_cmp_eq_u32 s%d, 0' % sGT)
for i in range(4):
    a('s_cselect_b64 %s, 0, %s' % (sp(sM0 + 2 * i), sp(sM1 + 2 * i)))
a('s_mov_b32 s%d, 0' % sPAIR)

def a_flag_addr(dst):
    pair_base(sA, L.FX)
    a('s_lshl_b32 s%d, s%d, 7' % (sB, sGT))
    a('s_add_u32 s%d, s%d, s%d' % (sA, sA, sB))
    a('s_sub_u32 s%d, s%d, 128' % (sA, sA))
    a('v_and_b32 v%d, 48, v0' % dst)
    a('v_add_u32 v%d, v%d, v0' % (dst, dst))
    a('v_lshl_add_u32 v%d, v%d, 2, s%d' % (dst, dst, sA))
    a('s_mov_b32 s%d, 0x3fff3fff' % sMK)
    a('s_mov_b32 s%d, 0x3fff' % (sMK + 1))
    a('s_cmp_eq_u32 s%d, 0' % sGT)
    a('s_cselect_b32 s%d, 0x3fff0000, s%d' % (sMK, sMK))


a('s_lshl_b32 s%d, s%d, 8' % (sA, sC))
a('s_add_u32 s%d, s%d, %d' % (sA, sA, L.FQ))
a('v_lshl_add_u32 v2, v0, 2, s%d' % sA)
a_flag_addr(3)
a('s_lshl_b32 s%d, s%d, 6' % (sA, sS))
a('s_add_u32 s%d, s%d, %d' % (sA, sA, L.FXC - 48 * 4))
a('v_lshl_add_u32 v4, v0, 2, s%d' % sA)
a('v_cmp_lt_u32 vcc, 47, v0')
a('v_cndmask_b32 v3, v3, v4, vcc')
a('v_mov_b32 v5, -1')
a('v_mov_b32 v6, -16')
a('v_cndmask_b32 v5, v5, v6, vcc')
a('s_or_b32 s%d, s%d, 0xffff0000' % (sMK + 1, sMK + 1))
a('s_mov_b32 s%d, 0' % sSPIN)
a.label('L_poll0')
a('buffer_load_dword v7, v2, %s, 0 offen sc1' % srd(S_WS))
a('s_mov_b64 exec, %s' % sp(sMK))
a('buffer_load_dword v8, v3, %s, 0 offen sc1' % srd(S_WS))
a('s_waitcnt vmcnt(0)')
a('v_and_b32 v9, v5, v8')
a('v_cmp_ne_u32 vcc, s%d, v9' % sT)
a('s_mov_b64 exec, -1')
a('s_mov_b64 %s, vcc' % sp(sTS))
a('v_cmp_ne_u32 vcc, s%d, v7' % sT)
a('s_or_b64 vcc, vcc, %s' % sp(sTS))
a('s_cbranch_vccz L_poll0_done')
a('s_add_u32 s%d, s%d, 1' % (sSPIN, sSPIN))
a('s_cmp_lt_u32 s%d, %d' % (sSPIN, SPIN_LIMIT))
a('s_cbranch_scc1 L_poll0')
a('s_add_u32 s%d, s%d, 1' % (sERR, sERR))
a.label('L_poll0_done')
skew_store(2)
a('v_and_b32 v9, 15, v8')
a('v_cmp_ne_u32 vcc, s%d, v9' % sXCC)
a('s_and_b32 s%d, vcc_hi, 0xffff0000' % sA)
a('s_cmp_eq_u32 s%d, 0' % sA)
a('s_cselect_b32 s%d, 1, 0' % sFAST)
stamp()
AQ, AK, AV = 2, 18, 42
WBUF = [66, 90]
XR = 114
CSACC = 186
STR = 210
SM, SR = 234, 237
NR, LOOK = 6, 4
A_ONES = 240


def a_xload(u):
    slot = u % NR
    return ['buffer_load_dwordx4 %s, v1, %s, s%d offen offset:%d sc1' %
            (vr(XR + (slot * 3 + t) * 4), srd(S_WS), sO + 4 * t + (u >> 2), 1024 * (u & 3)) for t in range(3)]


def a_offsets():
    pair_base(sA, L.XA)
    a('s_mul_i32 s%d, s%d, 14336' % (sB, sGT))
    a('s_add_u32 s%d, s%d, s%d' % (sO + 4, sA, sB))
    a('s_add_u32 s%d, s%d, 14336' % (sO + 8, sO + 4))
    a('s_sub_u32 s%d, s%d, 14336' % (sO + 0, sO + 4))
    a('s_cmp_eq_u32 s%d, 0' % sGT)
    a('s_cselect_b32 s%d, s%d, s%d' % (sO + 0, sO + 4, sO + 0))
    for t in range(3):
        for q in range(1, 4):
            a('s_add_u32 s%d, s%d, %d' % (sO + 4 * t + q, sO + 4 * t, 4096 * q))


def a_setup():
    if FASTMODE == 'flags':
        a('s_mov_b32 s%d, 0' % sFD)
        a('s_mov_b32 s%d, 0' % sFH)
    elif FASTMODE == 'p0':
        a('s_xor_b32 s%d, s%d, 1' % (sFD, sPAIR))
        a('s_and_b32 s%d, s%d, s%d' % (sFD, sFD, sFAST))
        a('s_mov_b32 s%d, s%d' % (sFH, sFD))
    elif FASTMODE == 'small':
        a('s_mov_b32 s%d, s%d' % (sFD, sFAST))
        a('s_mov_b32 s%d, 0' % sFH)
    elif FASTMODE == 'smallp0':
        a('s_mov_b32 s%d, s%d' % (sFD, sFAST))
        a('s_xor_b32 s%d, s%d, 1' % (sFH, sPAIR))
        a('s_and_b32 s%d, s%d, s%d' % (sFH, sFH, sFAST))
    else:
        a('s_mov_b32 s%d, s%d' % (sFD, sFAST))
        a('s_mov_b32 s%d, s%d' % (sFH, sFAST))
    pair_base(sA, L.SA)
    a('s_mul_i32 s%d, s%d, 1792' % (sB, sGT))
    a('s_add_u32 s%d, s%d, s%d' % (sO + 13, sA, sB))
    a('s_add_u32 s%d, s%d, 1792' % (sO + 14, sO + 13))
    a('s_sub_u32 s%d, s%d, 1792' % (sO + 12, sO + 13))
    a('s_cmp_eq_u32 s%d, 0' % sGT)
    a('s_cselect_b32 s%d, s%d, s%d' % (sO + 12, sO + 13, sO + 12))
    a('v_and_b32 v%d, 15, v0' % V_TOK)
    a('v_lshrrev_b32 v%d, 4, v0' % V_G)
    a('v_lshlrev_b32 v240, 3, v%d' % V_TOK)
    a('v_lshl_add_u32 v240, v%d, 7, v240' % V_G)
    a('v_mov_b32 v242, 0x%x' % INV)
    a('v_cmp_lt_u32 vcc, 1, v%d' % V_G)
    a('v_cndmask_b32 v241, 0, v242, vcc')
    a('v_or_b32 v241, v241, v240')
    a('v_add_u32 v243, %d, v1' % (56 * 1024))
    a('v_lshlrev_b32 v244, 4, v%d' % V_G)
    a('v_add_u32 v244, %d, v244' % L.L_CSA)
    a('v_lshlrev_b32 v245, 2, v%d' % V_TOK)
    a('v_add_u32 v245, %d, v245' % L.L_CSA)
    a('s_lshl_b32 s%d, s%d, 7' % (sA, sJ))
    a('s_add_u32 s%d, s%d, %d' % (sA, sA, L.FP))
    a('v_lshl_add_u32 v248, v0, 2, s%d' % sA)
    a('s_lshr_b32 s%d, s%d, 1' % (sB, sW))
    a('s_lshl_b32 s%d, s%d, 2' % (sCc, sG))
    a('s_add_u32 s%d, s%d, s%d' % (sB, sB, sCc))
    a('s_lshl_b32 s%d, s%d, 5' % (sB, sB))
    a('s_and_b32 s%d, s%d, 1' % (sA, sW))
    a('s_add_u32 s%d, s%d, s%d' % (sB, sB, sA))
    a('s_min_u32 s%d, s%d, 6' % (sA, sJ))
    a('s_lshl_b32 s%d, s%d, 1' % (sA, sA))
    a('s_add_u32 s%d, s%d, s%d' % (sB, sB, sA))
    a('s_lshl_b32 s%d, s%d, 2' % (sB, sB))
    a('s_add_u32 s%d, s%d, %d' % (sB, sB, L.FX[0] - 32 * 256))
    a('v_lshl_add_u32 v249, v0, 8, s%d' % sB)
    a('v_cmp_lt_u32 vcc, 31, v0')
    a('v_cndmask_b32 v248, v248, v249, vcc')
    a('s_cmp_eq_u32 s%d, 0' % sPAIR)
    a('s_mov_b32 s%d, %d' % (sA, L.FSA - 128))
    a('s_cselect_b32 s%d, %d, s%d' % (sA, L.FX[0] - 128, sA))
    a('s_lshl_b32 s%d, s%d, 7' % (sB, sGT))
    a('s_add_u32 s%d, s%d, s%d' % (sA, sA, sB))
    a('v_and_b32 v247, 48, v0')
    a('v_add_u32 v247, v247, v0')
    a('v_lshl_add_u32 v247, v247, 2, s%d' % sA)
    a('s_mov_b32 s%d, 0x3fff3fff' % sMK2)
    a('s_mov_b32 s%d, 0x3fff' % (sMK2 + 1))
    a('s_cmp_eq_u32 s%d, 0' % sGT)
    a('s_cselect_b32 s%d, 0x3fff0000, s%d' % (sMK2, sMK2))


stat_loads = ['buffer_load_dwordx2 %s, v%d, %s, s%d offen offset:%d sc1' %
              (vr(STR + (t * 4 + i) * 2, 2), 241 if i == 3 else 240, srd(S_WS), sO + 12 + t, 512 * i)
              for t in range(3) for i in range(4)]


def a_wread(u):
    b = WBUF[u & 1]
    o = []
    for p in range(6):
        if p < 4:
            o.append('ds_read_b128 %s, v1 offset:%d' % (vr(b + 4 * p), L.L_WA + (p * 14 + u) * 1024))
        else:
            o.append('ds_read_b128 %s, v243 offset:%d' % (vr(b + 4 * p), L.L_WA + ((p - 4) * 14 + u) * 1024))
    return o


stat_fill = []
for t in range(3):
    r = STR + 8 * t
    for c_ in range(2):
        stat_fill += ['v_add_f32 v%d, v%d, v%d' % (r + c_, r + c_, r + 2 + c_),
                      'v_add_f32 v%d, v%d, v%d' % (r + 4 + c_, r + 4 + c_, r + 6 + c_),
                      'v_add_f32 v%d, v%d, v%d' % (r + c_, r + c_, r + 4 + c_)]
    stat_fill += xg_reduce(r, r + 2) + xg_reduce(r + 1, r + 3)
    stat_fill += stats_finish(r, r + 1, r + 2, False)
    stat_fill += ['v_mov_b32 v%d, v%d' % (SM + t, r), 'v_mov_b32 v%d, v%d' % (SR + t, r + 1)]

sWA = [20, 21, 22]
sWAG = 23


def wa_dma(pr, i):
    def f():
        a('s_add_u32 m0, s%d, %d' % (sWA[i], L.L_WA + 2048 * pr))
        a('s_add_u32 s%d, s%d, s%d' % (sD, sWA[i], sWAG))
        if pr:
            a('s_add_u32 s%d, s%d, %d' % (sD, sD, 2048 * pr))
        a('buffer_load_dwordx4 v1, %s, s%d offen sc1 lds' % (srd(S_WS), sD))
    return f


amark = {}


def emit_a_loop(first, xmark, wam):
    ep_mark = es_mark = st_mark = None
    for t in a_wread(0):
        a(t)
    for u in range(14):
        need = xmark[u]
        if u == 12:
            need = max(need, st_mark)
        a.wait_vm(need)
        if u == 6:
            early_check(246, 247, es_mark)
        if u == 11:
            a('s_mov_b32 s%d, -1' % sMK2)
            a('s_mov_b32 s%d, 3' % (sMK2 + 1))
        a('s_waitcnt lgkmcnt(0)')
        wb = WBUF[u & 1]
        xs = XR + (u % NR) * 12
        mf = []
        cz = (lambda r: '0') if u == 0 else (lambda r: vr(r))
        for t in range(2):
            for hf in range(2):
                r = AQ + (t * 2 + hf) * 4
                mf.append('%s %s, %s, %s, %s' % (MFMA, vr(r), vr(wb + 4 * hf), vr(xs + 4 * (t + 1)), cz(r)))
        for t in range(3):
            for hf in range(2):
                r = AK + (t * 2 + hf) * 4
                mf.append('%s %s, %s, %s, %s' % (MFMA, vr(r), vr(wb + 8 + 4 * hf), vr(xs + 4 * t), cz(r)))
        for t in range(3):
            for hf in range(2):
                r = AV + (t * 2 + hf) * 4
                mf.append('%s %s, %s, %s, %s' % (MFMA, vr(r), vr(xs + 4 * t), vr(wb + 16 + 4 * hf), cz(r)))
        if first:
            for p in range(6):
                r = CSACC + 4 * p
                if p < 4:
                    mf.append('%s %s, %s, %s, %s' % (MFMA, vr(r), vr(wb + 4 * p), ar(A_ONES), cz(r)))
                else:
                    mf.append('%s %s, %s, %s, %s' % (MFMA, vr(r), ar(A_ONES), vr(wb + 4 * p), cz(r)))
        mem = {}

        def put(k, x):
            mem.setdefault(k, []).append(x)
        off = 0
        if first and u % 2 == 1 and u < 13:
            put(2, ('bar', (u + 1) // 2))
            off = 3
        if u < 13:
            for k, x in enumerate(a_wread(u + 1)):
                put(off + k, x)
        elif not first:
            for p in range(4):
                put(p, 'ds_read_b128 %s, v244 offset:%d' % (vr(WBUF[0] + 4 * p), 64 * p))
            for d in range(2):
                put(4 + d, 'ds_read_b32 v%d, v245 offset:%d' % (WBUF[0] + 16 + d, 64 * (4 + d)))
        if u + LOOK < 14:
            for k, x in zip((6, 9, 12), a_xload(u + LOOK)):
                put(k + off, x)
            put(12 + off, ('xm', u + LOOK))
        if first and u % 2 == 0 and u // 2 + 3 <= 6:
            for i, k in enumerate((13, 16, 19)):
                put(k, ('wa', u // 2 + 3, i))
        if 6 <= u < 10:
            for k, x in zip((8, 11, 14), stat_loads[3 * (u - 6):3 * (u - 6) + 3]):
                put(k, x)
            if u == 9:
                put(14, ('st',))
        if u == 11:
            put(8, ('early',))
        if u == 4:
            put(8, ('estat',))
        fill = stat_fill[(u - 12) * 30:(u - 11) * 30] if u >= 12 else []
        fi = 0
        for k, m in enumerate(mf):
            a(m)
            for it in mem.get(k, []):
                if isinstance(it, str):
                    a(it)
                elif it[0] == 'early':
                    ep_mark = early_issue(249, 248)
                elif it[0] == 'estat':
                    es_mark = early_issue(246, 247)
                elif it[0] == 'xm':
                    xmark[it[1]] = a.vm_mark()
                elif it[0] == 'st':
                    st_mark = a.vm_mark()
                elif it[0] == 'bar':
                    a.wait_vm(wam[it[1]])
                    a('s_barrier')
                elif it[0] == 'wa':
                    wa_dma(it[1], it[2])()
                    wam[it[1]] = a.vm_mark()
            for _ in range(2):
                if fi < len(fill) and k >= 1:
                    a(fill[fi])
                    fi += 1
        assert fi == len(fill), (u, fi, len(fill))
    amark['ep'] = ep_mark


for p in range(4):
    a('v_mov_b32 v4, 0x3f803f80')
    a('v_accvgpr_write_b32 a%d, v4' % (A_ONES + p))
a('s_mul_i32 s%d, s%d, 14336' % (sWA[0], sW))
a('s_add_u32 s%d, s%d, 4' % (sA, sW))
a('s_mul_i32 s%d, s%d, 14336' % (sA, sA))
a('s_sub_u32 s%d, s%d, 2' % (sB, sW))
a('s_mul_i32 s%d, s%d, 14336' % (sB, sB))
a('s_add_u32 s%d, s%d, 1024' % (sB, sB))
a('s_cmp_lt_u32 s%d, 2' % sW)
a('s_cselect_b32 s%d, s%d, s%d' % (sWA[1], sA, sB))
a('s_add_u32 s%d, s%d, 2' % (sA, sW))
a('s_mul_i32 s%d, s%d, 14336' % (sA, sA))
a('s_add_u32 s%d, s%d, 1024' % (sWA[2], sA))
a('s_mul_i32 s%d, s%d, %d' % (sWAG, sC, 84 * 1024))
a('s_add_u32 s%d, s%d, %d' % (sWAG, sWAG, L.WA))
a_offsets()
xm0, wam0 = {}, {}


def wa_pair(pr):
    for i in range(3):
        wa_dma(pr, i)()
    wam0[pr] = a.vm_mark()


for pr in range(3):
    wa_pair(pr)
    for u in (2 * pr, 2 * pr + 1):
        if u < LOOK:
            for t in a_xload(u):
                a(t)
            xm0[u] = a.vm_mark()
a_setup()
a.wait_vm(wam0[0])
a('s_barrier')
a('s_lshl_b32 s%d, s%d, 5' % (sA, sJ))
a('s_add_u32 s%d, s%d, s%d' % (sA, sA, sG))
a('s_lshl_b32 s%d, s%d, 2' % (sA, sA))
a('s_add_u32 s%d, s%d, %d' % (sA, sA, L.FP))
a('s_cmp_eq_u32 s%d, 0' % sW)
a('s_cselect_b32 s%d, s%d, 0x%x' % (sA, sA, INV))
a('v_mov_b32 v2, s%d' % sA)
a('s_mov_b64 exec, 1')
a('buffer_store_dword v%d, v2, %s, 0 offen sc1' % (V_T, srd(S_WS)))
a.vm_issued -= 1
a('s_mov_b64 exec, -1')
stamp()
emit_a_loop(True, xm0, wam0)
n_join = a.vm_issued - amark['ep']
CSQ = WBUF[0]
a('v_cmp_eq_u32 vcc, 0, v%d' % V_TOK)
a('s_mov_b64 exec, vcc')
for p in range(4):
    a('ds_write_b128 v244, %s offset:%d' % (vr(CSACC + 4 * p), 64 * p))
a('s_mov_b64 exec, 0xffff')
for d in range(2):
    a('ds_write_b32 v245, v%d offset:%d' % (CSACC + 16 + 4 * d, 64 * (4 + d)))
a('s_mov_b64 exec, -1')
for e in range(16):
    a('v_mov_b32 v%d, v%d' % (CSQ + e, CSACC + e))
for d in range(2):
    a('v_mov_b32 v%d, v%d' % (CSQ + 16 + d, CSACC + 16 + 4 * d))
a('s_branch L_a_epi')

a.label('L_pair')
a_flag_addr(2)
poll(2)
stamp()
a_offsets()
xmark = {}
for u in range(LOOK):
    for t in a_xload(u):
        a(t)
    xmark[u] = a.vm_mark()
a_setup()
emit_a_loop(False, xmark, None)
assert a.vm_issued - amark['ep'] == n_join
ep_mark = amark['ep']
a.label('L_a_epi')
stamp()
for x in stat_fill[60:]:
    a(x)
early_check(249, 248, ep_mark)
BW = 2
a('s_lshl_b32 s%d, s%d, 6' % (sA, sJ))
a('s_lshl_b32 s%d, s%d, 2' % (sB, sW))
a('s_add_u32 s%d, s%d, s%d' % (sA, sA, sB))
a('s_lshl_b32 s%d, s%d, 10' % (sA, sA))
a('s_add_u32 s20, s%d, %d' % (sA, L.WB))
for t in range(1, 4):
    a('s_add_u32 s%d, s20, %d' % (20 + t, 16 * 1024 * t))
wb_loads = ['buffer_load_dwordx4 %s, v1, %s, s%d offen offset:%d sc1' % (vr(BW + (i * 4 + t) * 4), srd(S_WS), 20 + t, 1024 * i)
            for i in range(4) for t in range(4)]
A_RES, A_B2 = 224, 232


def owner_index():
    a('s_lshr_b32 s%d, s%d, 1' % (sB, sW))
    a('s_lshl_b32 s%d, s%d, 2' % (sCc, sG))
    a('s_add_u32 s%d, s%d, s%d' % (sB, sB, sCc))
    a('s_and_b32 s%d, s%d, 1' % (sA, sW))
    a('s_lshl_b32 s%d, s%d, 1' % (sCc, sJ))
    a('s_add_u32 s%d, s%d, s%d' % (sA, sA, sCc))


a('s_cmp_eq_u32 s%d, 0' % sPAIR)
a('s_cbranch_scc0 L_a_nores')
owner_index()
a('s_mul_i32 s%d, s%d, 14' % (sB, sB))
a('s_add_u32 s%d, s%d, s%d' % (sB, sB, sA))
a('s_lshl_b32 s%d, s%d, 10' % (sB, sB))
a('s_add_u32 s%d, s%d, %d' % (sB, sB, L.XA[0]))
a('buffer_load_dwordx4 %s, v1, %s, s%d offen sc1' % (ar(A_RES), srd(S_WS), sB))
a('s_add_u32 s%d, s%d, %d' % (sB, sB, 2 * 14336))
a('buffer_load_dwordx4 %s, v1, %s, s%d offen sc1' % (ar(A_RES + 4), srd(S_WS), sB))
build_srd(S_TMP, P_B2, 896)
a('s_lshl_b32 s%d, s%d, 6' % (sB, sA))
a('v_lshlrev_b32 v240, 3, v%d' % V_G)
a('buffer_load_dwordx2 v[228:229], v240, %s, s%d offen' % (srd(S_TMP), sB))
a('buffer_load_dwordx2 v[230:231], v240, %s, s%d offen offset:32' % (srd(S_TMP), sB))
a.label('L_a_nores')
CSQ = WBUF[0]
a('s_mul_i32 s%d, s%d, 384' % (sA, sW))
a('s_add_u32 s%d, s%d, %d' % (sA, sA, L.L_STA))
a('v_lshl_add_u32 v246, v%d, 2, s%d' % (V_TOK, sA))
a('v_lshl_add_u32 v247, v%d, 4, s%d' % (V_G, sA))
a('s_mov_b64 exec, 0xffff')
for t in range(3):
    a('ds_write_b32 v246, v%d offset:%d' % (SM + t, 128 * t))
    a('ds_write_b32 v246, v%d offset:%d' % (SR + t, 128 * t + 64))
a('s_mov_b64 exec, -1')
MROW, RROW = 114, 126
a('s_waitcnt lgkmcnt(0)')
for t in range(3):
    a('ds_read_b128 %s, v247 offset:%d' % (vr(MROW + 4 * t), 128 * t))
    a('ds_read_b128 %s, v247 offset:%d' % (vr(RROW + 4 * t), 128 * t + 64))
QF, KF, VF = 140, 148, 160
for t in range(2):
    for hf in range(2):
        r = AQ + (t * 2 + hf) * 4
        for i in range(4):
            a('v_fma_f32 v%d, -v%d, v%d, v%d' % (r + i, SM + t + 1, CSQ + 4 * hf + i, r + i))
        for p in range(2):
            a('v_cvt_pk_bf16_f32 v%d, v%d, v%d' % (QF + 4 * t + 2 * hf + p, r + 2 * p, r + 2 * p + 1))
for t in range(3):
    for hf in range(2):
        r = AK + (t * 2 + hf) * 4
        for i in range(4):
            a('v_fma_f32 v%d, -v%d, v%d, v%d' % (r + i, SM + t, CSQ + 8 + 4 * hf + i, r + i))
        for p in range(2):
            a('v_cvt_pk_bf16_f32 v%d, v%d, v%d' % (KF + 4 * t + 2 * hf + p, r + 2 * p, r + 2 * p + 1))
SS = 172
for t in range(2):
    a('%s %s, %s, %s, 0' % (MFMA, vr(SS + 8 * t), vr(KF + 4 * t), vr(QF + 4 * t)))
    a('%s %s, %s, %s, 0' % (MFMA, vr(SS + 8 * t + 4), vr(KF + 4 * t + 4), vr(QF + 4 * t)))
a('s_waitcnt lgkmcnt(0)')
for t in range(3):
    for d in range(2):
        r = AV + (t * 2 + d) * 4
        for i in range(4):
            a('v_fma_f32 v%d, -v%d, v%d, v%d' % (r + i, MROW + 4 * t + i, CSQ + 16 + d, r + i))
        for p in range(2):
            a('v_cvt_pk_bf16_f32 v%d, v%d, v%d' % (VF + 6 * d + 2 * t + p, r + 2 * p, r + 2 * p + 1))
SCALE = (28.0 ** -0.5) * 1.4426950408889634
MX, CC, LS, TMPR = 190, 192, 194, 196
PF = 200
a('v_mov_b32 v198, 0xff800000')
seq = [[], []]
for t in range(2):
    s = SS + 8 * t
    q = seq[t]
    for e in range(8):
        q.append('v_mul_f32 v%d, v%d, v%d' % (s + e, s + e, RROW + 4 * (t + (e >> 2)) + (e & 3)))
    for e in range(8):
        mk = (sM0 if t == 0 else sM1) + 2 * e if e < 4 else sM2 + 2 * (e - 4)
        q.append('v_cndmask_b32 v%d, v198, v%d, %s' % (s + e, s + e, sp(mk)))
    q.append('v_max3_f32 v%d, v%d, v%d, v%d' % (MX + t, s, s + 1, s + 2))
    q.append('v_max3_f32 v%d, v%d, v%d, v%d' % (MX + t, MX + t, s + 3, s + 4))
    q.append('v_max3_f32 v%d, v%d, v%d, v%d' % (MX + t, MX + t, s + 5, s + 6))
    q.append('v_max_f32 v%d, v%d, v%d' % (MX + t, MX + t, s + 7))
    q += xg_reduce(MX + t, TMPR + t, 'v_max_f32')
    q.append('v_mul_f32 v%d, %s, v%d' % (CC + t, f2h(SCALE), SR + t + 1))
    q.append('v_mul_f32 v%d, v%d, v%d' % (MX + t, MX + t, CC + t))
    for e in range(8):
        q.append('v_fma_f32 v%d, v%d, v%d, -v%d' % (s + e, s + e, CC + t, MX + t))
    for e in range(8):
        q.append('v_exp_f32 v%d, v%d' % (s + e, s + e))
    q.append('v_add_f32 v%d, v%d, v%d' % (LS + t, s, s + 1))
    for e in range(2, 8):
        q.append('v_add_f32 v%d, v%d, v%d' % (LS + t, LS + t, s + e))
    q += xg_reduce(LS + t, TMPR + t)
    q.append('v_rcp_f32 v%d, v%d' % (LS + t, LS + t))
    for e in range(8):
        q.append('v_mul_f32 v%d, v%d, v%d' % (s + e, s + e, RROW + 4 * (t + (e >> 2)) + (e & 3)))
    for p in range(4):
        q.append('v_cvt_pk_bf16_f32 v%d, v%d, v%d' % (PF + 4 * t + p, s + 2 * p, s + 2 * p + 1))
merged = [z for xy in zip(*seq) for z in xy]
gap = len(merged) // (len(wb_loads) + 1)
for k, x in enumerate(merged):
    a(x)
    if k % gap == gap - 1 and wb_loads:
        a(wb_loads.pop(0))
assert not wb_loads
OO = 208
for t in range(2):
    for d in range(2):
        a('%s %s, %s, %s, 0' % (MFMA, vr(OO + 8 * t + 4 * d), vr(VF + 6 * d + 2 * t), vr(PF + 4 * t)))
pair_base(sA, L.O)
a('s_lshl_b32 s%d, s%d, 4' % (sB, sGT))
a('s_add_u32 s%d, s%d, s%d' % (sB, sB, sC))
a('s_lshl_b32 s%d, s%d, 10' % (sB, sB))
a('s_add_u32 s%d, s%d, s%d' % (sA, sA, sB))
for t in range(2):
    for e in range(8):
        a('v_mul_f32 v%d, v%d, v%d' % (OO + 8 * t + e, OO + 8 * t + e, LS + t))
    for p in range(4):
        a('v_cvt_pk_bf16_f32 v%d, v%d, v%d' % (PF + 4 * t + p, OO + 8 * t + 2 * p, OO + 8 * t + 2 * p + 1))
    store('buffer_store_dwordx4 %s, v1, %s, s%d offen' % (vr(PF + 4 * t), srd(S_WS), sA), sFD)
    if t == 0:
        a('s_add_u32 s%d, s%d, 16384' % (sA, sA))
pair_base(sA, L.FA)
a('s_lshl_b32 s%d, s%d, 4' % (sB, sGT))
a('s_add_u32 s%d, s%d, s%d' % (sB, sB, sC))
a('s_lshl_b32 s%d, s%d, 2' % (sB, sB))
a('s_add_u32 s%d, s%d, s%d' % (sA, sA, sB))
a('v_lshlrev_b32 v241, 6, v0')
a('v_add_u32 v241, s%d, v241' % sA)
set_flags(241, 2, sFAST)
stamp()
a('s_cmp_eq_u32 s%d, 7' % sJ)
a('s_cbranch_scc1 L_next_pair')


def wd_bases():
    a('s_lshl_b32 s%d, s%d, 2' % (sA, sJ))
    a('s_mul_i32 s%d, s%d, %d' % (sA, sA, 56 * 1024))
    a('s_mul_i32 s%d, s%d, %d' % (sB, sW, 14 * 1024))
    a('s_add_u32 s%d, s%d, s%d' % (sA, sA, sB))
    a('s_add_u32 s%d, s%d, %d' % (sO, sA, L.WD))
    quarter_offsets(4, 56 * 1024)


def wd_load(fi):
    kk, t = fi >> 2, fi & 3
    return ('buffer_load_dwordx4 %s, v1, %s, s%d offen offset:%d sc1' %
            (ar(4 * fi), srd(S_WS), sO + 4 * t + (kk >> 2), 1024 * (kk & 3)))


WD_CH = [(0, 12), (12, 56)]
BO, BACC, BRD, BTMP = 66, 130, 194, 226
a('s_cmp_eq_u32 s%d, 0' % sPAIR)
a('s_cbranch_scc0 L_b_start')
for k in range(4):
    a('v_lshlrev_b32 v236, 16, v%d' % (228 + k))
    a('v_and_b32 v237, 0xffff0000, v%d' % (228 + k))
    a('v_accvgpr_write_b32 a%d, v236' % (A_B2 + 2 * k))
    a('v_accvgpr_write_b32 a%d, v237' % (A_B2 + 2 * k + 1))
wd_bases()
for fi in range(*WD_CH[0]):
    a(wd_load(fi))
a.label('L_b_start')
CWW = 66
sCI = 41
a('s_lshr_b32 s%d, s%d, 3' % (sA, sC))
a('s_mul_i32 s%d, s%d, 7' % (sA, sA))
a('s_add_u32 s%d, s%d, s%d' % (sCI, sA, sJ))
a('s_lshl_b32 s%d, s%d, 3' % (sA, sCI))
a('s_lshl_b32 s%d, s%d, 1' % (sB, sW))
a('s_add_u32 s%d, s%d, s%d' % (sA, sA, sB))
a('s_mul_i32 s%d, s%d, %d' % (sB, sA, 14 * 1024))
a('s_add_u32 s%d, s%d, %d' % (sO, sB, L.WC))
quarter_offsets(2, 14 * 1024)


def c_wload(idx):
    u, k = idx >> 1, idx & 1
    return ('buffer_load_dwordx4 %s, v1, %s, s%d offen offset:%d sc1' %
            (vr(CWW + 4 * idx), srd(S_WS), sO + 4 * k + (u >> 2), 1024 * (u & 3)))


def red_writes(acc, tile):
    return ['ds_write_b128 v248, %s offset:%d' % (vr(acc + 4 * t), (tile >> 1) * 32768 + (tile & 1) * 4096 + t * 1024)
            for t in range(4)]


def red_reads(st, rd):
    return ['ds_read_b128 %s, v249 offset:%d' % (vr(rd + (b * 2 + k) * 4), st * 32768 + b * 8192 + k * 1024)
            for b in range(4) for k in range(2)]


def add8(dst, x, y, packed):
    if packed:
        return ['v_pk_add_f32 %s, %s, %s' % (vr(dst + e, 2), vr(x + e, 2), vr(y + e, 2)) for e in range(0, 8, 2)]
    return ['v_add_f32 v%d, v%d, v%d' % (dst + e, x + e, y + e) for e in range(8)]


def finish_pre(st, is_d, tmp):
    res = A_RES + 4 * st
    o = ['v_accvgpr_read_b32 v%d, a%d' % (tmp + 8 + p, res + p) for p in range(4)]
    for p in range(4):
        o += ['v_lshlrev_b32 v%d, 16, v%d' % (tmp + 2 * p, tmp + 8 + p),
              'v_and_b32 v%d, 0xffff0000, v%d' % (tmp + 2 * p + 1, tmp + 8 + p)]
    if is_d:
        o += ['v_accvgpr_read_b32 v%d, a%d' % (tmp + 8 + e, A_B2 + e) for e in range(8)]
        o += ['v_add_f32 v%d, v%d, v%d' % (tmp + e, tmp + e, tmp + 8 + e) for e in range(8)]
    return o


def finish_sum(st, rd, tmp, pk, packed):
    o = add8(rd, rd, rd + 8, packed) + add8(rd + 16, rd + 16, rd + 24, packed) + add8(rd, rd, rd + 16, packed)
    o += add8(tmp, tmp, rd, packed)
    o += ['v_cvt_pk_bf16_f32 v%d, v%d, v%d' % (pk + p, tmp + 2 * p, tmp + 2 * p + 1) for p in range(4)]
    o += ['v_accvgpr_write_b32 a%d, v%d' % (A_RES + 4 * st + p, pk + p) for p in range(4)]
    return o


def owner_stats(tmp, s1, t):
    a('v_pk_add_f32 %s, %s, %s' % (vr(t, 2), vr(tmp, 2), vr(tmp + 2, 2)))
    a('v_pk_add_f32 %s, %s, %s' % (vr(t + 2, 2), vr(tmp + 4, 2), vr(tmp + 6, 2)))
    a('v_pk_add_f32 %s, %s, %s' % (vr(t, 2), vr(t, 2), vr(t + 2, 2)))
    a('v_add_f32 v%d, v%d, v%d' % (s1, t, t + 1))
    a('v_pk_mul_f32 %s, %s, %s' % (vr(t, 2), vr(tmp, 2), vr(tmp, 2)))
    for e in (2, 4, 6):
        a('v_pk_fma_f32 %s, %s, %s, %s' % (vr(t, 2), vr(tmp + e, 2), vr(tmp + e, 2), vr(t, 2)))
    a('v_add_f32 v%d, v%d, v%d' % (s1 + 1, t, t + 1))
    for x, y in zip(xg_reduce(s1, t), xg_reduce(s1 + 1, t + 1)):
        a(x)
        a(y)


def red_addrs():
    a('s_lshl_b32 s%d, s%d, 13' % (sA, sW))
    a('s_add_u32 s%d, s%d, %d' % (sA, sA, L.L_R2))
    a('v_add_u32 v248, s%d, v1' % sA)
    a('s_and_b32 s%d, s%d, 1' % (sA, sW))
    a('s_lshl_b32 s%d, s%d, 11' % (sA, sA))
    a('s_lshr_b32 s%d, s%d, 1' % (sB, sW))
    a('s_lshl_b32 s%d, s%d, 12' % (sB, sB))
    a('s_add_u32 s%d, s%d, s%d' % (sA, sA, sB))
    a('s_add_u32 s%d, s%d, %d' % (sA, sA, L.L_R2))
    a('v_add_u32 v249, s%d, v1' % sA)


def publish_setup(xbase, sbase, fbase, per_pair, fsh):
    owner_index()
    a('s_mul_i32 s%d, s%d, 14' % (sCc, sB))
    a('s_add_u32 s%d, s%d, s%d' % (sCc, sCc, sA))
    a('s_lshl_b32 s%d, s%d, 10' % (sPX, sCc))
    a('s_lshl_b32 s%d, s%d, 7' % (sPS, sCc))
    a('s_lshl_b32 s%d, s%d, %d' % (sPF, sB, fsh))
    a('s_add_u32 s%d, s%d, s%d' % (sPF, sPF, sA))
    a('s_lshl_b32 s%d, s%d, 2' % (sPF, sPF))
    for dst, arr in ((sPX, xbase), (sPS, sbase), (sPF, fbase)):
        if per_pair:
            pair_base(sD, arr)
            a('s_add_u32 s%d, s%d, s%d' % (dst, dst, sD))
        else:
            a('s_add_u32 s%d, s%d, %d' % (dst, dst, arr))
    a('s_add_u32 s%d, s%d, %d' % (sPX2, sPX, 2 * 14336))


def publish_data(st, pk):
    store('buffer_store_dwordx4 %s, v1, %s, s%d offen offset:0' % (vr(pk), srd(S_WS), sPX if st == 0 else sPX2), sPC)


def publish_stats(tmps, t, s1):
    a('v_and_b32 v%d, 15, v0' % V_TOK)
    a('v_lshlrev_b32 v%d, 3, v%d' % (t + 4, V_TOK))
    for st in range(2):
        owner_stats(tmps[st], s1 + 2 * st, t)
    a('s_mov_b64 exec, 0xffff')
    store('buffer_store_dwordx2 %s, v%d, %s, s%d offen' % (vr(s1, 2), t + 4, srd(S_WS), sPS), sPC)
    a('s_add_u32 s%d, s%d, %d' % (sPS, sPS, 2 * 1792))
    store('buffer_store_dwordx2 %s, v%d, %s, s%d offen' % (vr(s1 + 2, 2), t + 4, srd(S_WS), sPS), sPC)
    a('s_mov_b64 exec, -1')


def publish_flags(lsh, between=()):
    a('v_lshlrev_b32 v241, %d, v0' % lsh)
    a('v_add_u32 v241, s%d, v241' % sPF)
    set_flags(241, 2, sPFC, V_T, between)


def run_tiles(tile_items, extras):
    for tile in range(4):
        items = tile_items(tile)
        ex = list(extras.get(tile, []))
        free = [k for k, it in enumerate(items) if k >= 3 and not it[2]]
        per = -(-len(ex) // max(1, len(free))) if ex else 0
        for k, (pre, m, post) in enumerate(items):
            for x in pre:
                x()
            a(m)
            if post:
                post()
            elif k >= 3:
                for _ in range(per):
                    if ex:
                        x = ex.pop(0)
                        if callable(x):
                            x()
                        else:
                            a(x)
        assert not ex


pair_base(sA, L.FA)
a('s_lshl_b32 s%d, s%d, 8' % (sB, sG))
a('s_add_u32 s%d, s%d, s%d' % (sA, sA, sB))
a('v_lshl_add_u32 v240, v0, 2, s%d' % sA)
a('s_lshl_b32 s%d, s%d, 2' % (sB, sW))
a('s_lshl_b32 s%d, 0x000f000f, s%d' % (sMK, sB))
a('s_mov_b32 s%d, s%d' % (sMK + 1, sMK))
red_addrs()
publish_setup(L.XB, L.SB, L.FB, True, 4)
a('s_mov_b32 s%d, s%d' % (sPC, sFD))
a('s_mov_b32 s%d, s%d' % (sPFC, sFAST))
pair_base(sA, L.O)
a('s_lshl_b32 s%d, s%d, 6' % (sB, sG))
a('s_lshl_b32 s%d, s%d, 2' % (sCc, sW))
a('s_add_u32 s%d, s%d, s%d' % (sB, sB, sCc))
a('s_lshl_b32 s%d, s%d, 10' % (sB, sB))
a('s_add_u32 s20, s%d, s%d' % (sA, sB))
for t in range(1, 4):
    a('s_add_u32 s%d, s20, %d' % (20 + t, 16384 * t))
poll(240)
stamp()


def b_oload(tile, i):
    return 'buffer_load_dwordx4 %s, v1, %s, s%d offen offset:%d sc1' % (vr(BO + (tile * 4 + i) * 4), srd(S_WS), 20 + tile, 1024 * i)


om = {}
for tile in range(2):
    for i in range(4):
        a(b_oload(tile, i))
        om[(tile, i)] = a.vm_mark()


def b_tile(tile):
    items = []
    for i in range(4):
        for t in range(4):
            r = BACC + (tile * 4 + t) * 4
            pre = [(lambda tl=tile, ii=i: a.wait_vm(om[(tl, ii)]))] if t == 0 else []
            post = None
            if tile < 2 and t == 1:
                def post(tl=tile + 2, ii=i):
                    a(b_oload(tl, ii))
                    om[(tl, ii)] = a.vm_mark()
            if tile >= 2 and t == 1:
                def post(idx=4 * (tile - 2) + i):
                    a(c_wload(idx))
            items.append((pre, '%s %s, %s, %s, %s' % (MFMA, vr(r), vr(BW + (i * 4 + t) * 4), vr(BO + (tile * 4 + i) * 4),
                                                      '0' if i == 0 else vr(r)), post))
    return items


BT0, BT1, BPK = 226, 2, 18
run_tiles(b_tile, {1: red_writes(BACC, 0), 2: red_writes(BACC + 16, 1), 3: red_writes(BACC + 32, 2)})
stamp2()
for x in red_writes(BACC + 48, 3):
    a(x)
for x in finish_pre(0, False, BT0) + finish_pre(1, False, BT1):
    a(x)
a('s_waitcnt lgkmcnt(0)')
a('s_barrier')
stamp2()
BRD1 = 162
for x in red_reads(0, BRD) + red_reads(1, BRD1):
    a(x)
a('s_waitcnt lgkmcnt(8)')
for x in finish_sum(0, BRD, BT0, BPK, True):
    a(x)
publish_data(0, BPK)
a('s_waitcnt lgkmcnt(0)')
for x in finish_sum(1, BRD1, BT1, BPK + 4, True):
    a(x)
publish_data(1, BPK + 4)
stamp2()
publish_stats([BT0, BT1], 36, 32)
publish_flags(7, [c_wload(i) for i in range(8, 16)])
stamp()

for i in range(16, 22):
    a(c_wload(i))
CA = [2, 10]
XF, NXF = 18, 8
GTMP, GH = 50, 58
CCS, CB1, CB1R = 178, 186, 194
CSTR = 198
CMR = 214
VGA = 218
a('v_lshrrev_b32 v%d, 4, v0' % V_G)
a('v_and_b32 v%d, 15, v0' % V_TOK)
a('s_lshl_b32 s%d, s%d, 3' % (sA, sCI))
a('s_lshl_b32 s%d, s%d, 1' % (sB, sW))
a('s_add_u32 s%d, s%d, s%d' % (sA, sA, sB))
a('s_lshl_b32 s%d, s%d, 6' % (sB, sA))
a('s_add_u32 s%d, s%d, %d' % (sB, sB, L.CSC))
a('v_lshlrev_b32 v248, 4, v%d' % V_G)
for k in range(2):
    a('buffer_load_dwordx4 %s, v248, %s, s%d offen offset:%d sc1' % (vr(CCS + 4 * k), srd(S_WS), sB, 64 * k))
a('s_lshl_b32 s%d, s%d, 5' % (sB, sA))
a('v_lshlrev_b32 v248, 3, v%d' % V_G)
for k in range(2):
    a('buffer_load_dwordx2 %s, v248, %s, s%d offen offset:%d' % (vr(CB1R + 2 * k, 2), srd(S_B1), sB, 32 * k))
pair_base(sA, L.FB)
a('s_lshl_b32 s%d, s%d, 9' % (sB, sS))
a('s_add_u32 s%d, s%d, s%d' % (sA, sA, sB))
a('v_lshl_add_u32 v240, v0, 2, s%d' % sA)
a('s_mov_b32 s%d, 0x3fff3fff' % sMK)
a('s_mov_b32 s%d, 0x3fff3fff' % (sMK + 1))
pair_base(20, L.XB)
a('s_mul_i32 s%d, s%d, %d' % (sB, sS, 8 * 14336))
a('s_add_u32 s20, s20, s%d' % sB)
a('s_lshl_b32 s%d, s%d, 12' % (sB, sW))
a('s_add_u32 s20, s20, s%d' % sB)
a('s_add_u32 s21, s%d, %d' % (sB, L.L_R2))
pair_base(22, L.SB)
a('s_lshl_b32 s%d, s%d, 3' % (sB, sS))
a('s_add_u32 s%d, s%d, s%d' % (sB, sB, sW))
a('s_mul_i32 s%d, s%d, 1792' % (sB, sB))
a('s_add_u32 s22, s22, s%d' % sB)
a('s_add_u32 s23, s22, %d' % (4 * 1792))
pair_base(32, L.H)
a('s_mul_i32 s%d, s%d, %d' % (sB, sS, 8 * 56 * 1024))
a('s_add_u32 s32, s32, s%d' % sB)
a('s_lshl_b32 s%d, s%d, 2' % (sB, sCI))
a('s_add_u32 s%d, s%d, s%d' % (sB, sB, sW))
a('s_lshl_b32 s%d, s%d, 10' % (sCc, sB))
a('s_add_u32 s32, s32, s%d' % sCc)
pair_base(33, L.FC)
a('s_lshl_b32 s%d, s%d, 11' % (sCc, sS))
a('s_add_u32 s33, s33, s%d' % sCc)
a('s_lshl_b32 s%d, s%d, 2' % (sB, sB))
a('s_add_u32 s33, s33, s%d' % sB)
a('v_mov_b32 v241, s33')
a('v_mov_b32 v242, 0x%x' % INV)
a('v_cmp_eq_u32 vcc, 0, v0')
a('v_cndmask_b32 v241, v242, v241, vcc')
a('v_lshlrev_b32 v238, 3, v%d' % V_TOK)
a('v_lshl_add_u32 v238, v%d, 7, v238' % V_G)
a('v_mov_b32 v242, 0x%x' % INV)
a('v_cmp_lt_u32 vcc, 1, v%d' % V_G)
a('v_cndmask_b32 v239, 0, v242, vcc')
a('v_or_b32 v239, v239, v238')
a('v_add_u32 v252, %d, v1' % L.L_R2)
a('v_lshlrev_b32 v246, 3, v%d' % V_TOK)
a('v_add_u32 v246, %d, v246' % L.L_STC)
GA = 2.0 * 0.7978845608028654 * 1.4426950408889634
GB = GA * 0.044715
a('v_mov_b32 v%d, %s' % (VGA, f2h(-GA)))
a('v_mov_b32 v%d, %s' % (VGA + 1, f2h(-GA)))
a('s_mov_b32 s34, %s' % f2h(-GB))
a('s_mov_b32 s35, %s' % f2h(-GB))
wd_bases_hi = True
poll(240, 256)
stamp()


def c_dma_setup(t):
    return ['s_add_u32 s36, s20, %d' % (t * 14336), 's_add_u32 m0, s21, %d' % ((t & 3) * 16384)]


def c_dma(t, i):
    return 'buffer_load_dwordx4 v1, %s, s36 offen offset:%d sc1 lds' % (srd(S_WS), 1024 * i)


dm = {}
for x in c_dma_setup(0) + [c_dma(0, i) for i in range(4)]:
    a(x)
dm[0] = a.vm_mark()
wlate = {}
for i in range(22, 28):
    a(c_wload(i))
    wlate[i >> 1] = a.vm_mark()
for tt in range(2):
    for i in range(4):
        a('buffer_load_dwordx2 %s, v%d, %s, s%d offen offset:%d sc1' %
          (vr(CSTR + 8 * tt + 2 * i, 2), 239 if i == 3 else 238, srd(S_WS), 22 + tt, 512 * i))
cst_mark = a.vm_mark()
for x in c_dma_setup(1) + [c_dma(1, i) for i in range(4)]:
    a(x)
dm[1] = a.vm_mark()
for k in range(2):
    for p in range(2):
        a('v_lshlrev_b32 v%d, 16, v%d' % (CB1 + 4 * k + 2 * p, CB1R + 2 * k + p))
        a('v_and_b32 v%d, 0xffff0000, v%d' % (CB1 + 4 * k + 2 * p + 1, CB1R + 2 * k + p))
wd_bases()
a.wait_vm(dm[0])
a('s_barrier')
stamp()


def c_xread(t, u):
    n = t * 14 + u
    return 'ds_read_b128 %s, v252 offset:%d' % (vr(XF + 4 * (n % NXF)), (t & 3) * 16384 + u * 1024)


def gelu_pre(t):
    z, m = CA[t & 1], CMR + 2 * (t & 1)
    P = range(0, 8, 2)
    o = ['v_pk_fma_f32 %s, %s, %s, %s op_sel_hi:[1,0,1] neg_lo:[0,1,0] neg_hi:[0,1,0]' % (vr(z + e, 2), vr(CCS + e, 2), vr(m, 2), vr(z + e, 2)) for e in P]
    o += ['v_pk_fma_f32 %s, %s, %s, %s op_sel:[0,1,0] op_sel_hi:[1,1,1]' % (vr(z + e, 2), vr(z + e, 2), vr(m, 2), vr(CB1 + e, 2)) for e in P]
    o += ['v_pk_mul_f32 %s, %s, %s' % (vr(GTMP + e, 2), vr(z + e, 2), vr(z + e, 2)) for e in P]
    o += ['v_pk_fma_f32 %s, %s, s[34:35], %s' % (vr(GTMP + e, 2), vr(GTMP + e, 2), vr(VGA, 2)) for e in P]
    o += ['v_pk_mul_f32 %s, %s, %s' % (vr(GTMP + e, 2), vr(GTMP + e, 2), vr(z + e, 2)) for e in P]
    return o


def gelu_mid():
    o = {}
    for e in range(8):
        o.setdefault(2 * e, []).append('v_exp_f32 v%d, v%d' % (GTMP + e, GTMP + e))
        o.setdefault(2 * e + 3, []).append('v_add_f32 v%d, 1.0, v%d' % (GTMP + e, GTMP + e))
    for e in range(6):
        o.setdefault(16 + 2 * e, []).append('v_rcp_f32 v%d, v%d' % (GTMP + e, GTMP + e))
    o.setdefault(25, []).append('v_rcp_f32 v%d, v%d' % (GTMP + 6, GTMP + 6))
    o.setdefault(27, []).append('v_rcp_f32 v%d, v%d' % (GTMP + 7, GTMP + 7))
    return o


def gelu_post(t):
    z, h = CA[t & 1], GH + 4 * (t & 1)
    o = ['v_pk_mul_f32 %s, %s, %s' % (vr(GTMP + e, 2), vr(GTMP + e, 2), vr(z + e, 2)) for e in range(0, 8, 2)]
    o += ['v_cvt_pk_bf16_f32 v%d, v%d, v%d' % (h + p, GTMP + 2 * p, GTMP + 2 * p + 1) for p in range(4)]
    return o


def gelu_packed(t):
    z, m, h = CA[t & 1], CMR + 2 * (t & 1), GH + 4 * (t & 1)
    P = range(0, 8, 2)
    for e in P:
        a('v_pk_fma_f32 %s, %s, %s, %s op_sel_hi:[1,0,1] neg_lo:[0,1,0] neg_hi:[0,1,0]' % (vr(z + e, 2), vr(CCS + e, 2), vr(m, 2), vr(z + e, 2)))
    for e in P:
        a('v_pk_fma_f32 %s, %s, %s, %s op_sel:[0,1,0] op_sel_hi:[1,1,1]' % (vr(z + e, 2), vr(z + e, 2), vr(m, 2), vr(CB1 + e, 2)))
    for e in P:
        a('v_pk_mul_f32 %s, %s, %s' % (vr(GTMP + e, 2), vr(z + e, 2), vr(z + e, 2)))
    for e in P:
        a('v_pk_fma_f32 %s, %s, s[34:35], %s' % (vr(GTMP + e, 2), vr(GTMP + e, 2), vr(VGA, 2)))
    for e in P:
        a('v_pk_mul_f32 %s, %s, %s' % (vr(GTMP + e, 2), vr(GTMP + e, 2), vr(z + e, 2)))
    for e in range(8):
        a('v_exp_f32 v%d, v%d' % (GTMP + e, GTMP + e))
    for e in P:
        a('v_pk_add_f32 %s, %s, 1.0 op_sel_hi:[1,0]' % (vr(GTMP + e, 2), vr(GTMP + e, 2)))
    for e in range(8):
        a('v_rcp_f32 v%d, v%d' % (GTMP + e, GTMP + e))
    for e in P:
        a('v_pk_mul_f32 %s, %s, %s' % (vr(GTMP + e, 2), vr(GTMP + e, 2), vr(z + e, 2)))
    for p in range(4):
        a('v_cvt_pk_bf16_f32 v%d, v%d, v%d' % (h + p, GTMP + 2 * p, GTMP + 2 * p + 1))


hmk, fmk = {}, {}


def h_store(t):
    def f():
        a('s_add_u32 s36, s32, %d' % (t * 56 * 1024))
        store('buffer_store_dwordx4 %s, v1, %s, s36 offen' % (vr(GH + 4 * (t & 1)), srd(S_WS)), sFH)
        hmk[t] = a.vm_mark()
    return f


def h_flag(t):
    def f():
        a.wait_vm(hmk[t])
        store('buffer_store_dword v%d, v241, %s, 0 offen offset:%d' % (V_T, srd(S_WS), 256 * t), sFAST)
    return f


def wd_block(fis, wave):
    def f():
        skip = newlab('L_wd')
        a('s_cmp_eq_u32 s24, %d' % wave)
        a('s_cbranch_scc0 %s' % skip)
        for fi in fis:
            a(wd_load(fi))
            a.vm_issued -= 1
        a.label(skip)
    return f


cst_fill = []
for tt in range(2):
    r = CSTR + 8 * tt
    for c_ in range(2):
        cst_fill += ['v_add_f32 v%d, v%d, v%d' % (r + c_, r + c_, r + 2 + c_),
                     'v_add_f32 v%d, v%d, v%d' % (r + 4 + c_, r + 4 + c_, r + 6 + c_),
                     'v_add_f32 v%d, v%d, v%d' % (r + c_, r + c_, r + 4 + c_)]
    cst_fill += xg_reduce(r, r + 2) + xg_reduce(r + 1, r + 3) + stats_finish(r, r + 1, r + 2, True)
a('s_lshl_b32 s%d, s%d, 7' % (sA, sW))
a('v_add_u32 v247, s%d, v246' % sA)
cst_fill += ['ds_write_b64 v247, %s' % vr(CSTR, 2), 'ds_write_b64 v247, %s offset:512' % vr(CSTR + 8, 2)]
LOOKX = 6


def emit_c_loop(wd_list):
    for u in range(LOOKX):
        a(c_xread(0, u))
    for t in range(8):
        nonvec = {}

        def put(k, x):
            nonvec.setdefault(k, []).append(x)
        for u in range(14):
            n = t * 14 + u
            m = n + LOOKX
            if m < 8 * 14:
                put(2 * u + 1, c_xread(m // 14, m % 14))
            if u % 2 == 1 and n + 1 < 8 * 14:
                put(2 * u + 1, 's_waitcnt lgkmcnt(%d)' % min(LOOKX - 2, 8 * 14 - 1 - (n + 2)))
        if t < 7:
            nonvec[14] = [('bar', t + 1)] + nonvec.get(14, [])
        if t + 2 < 8:
            su = c_dma_setup(t + 2)
            put(0, su[0])
            put(0, su[1])
            for i in range(4):
                put(2 + 2 * i, ('dma', t + 2, i))
        if t >= 3:
            put(20, ('call', h_flag(t - 3)))
        if t < 7:
            for k in (10, 12, 16, 18, 22, 24, 26):
                if wd_list:
                    put(k, wd_load(wd_list.pop(0)))
        if t > 0:
            put(17, 'ds_read_b64 %s, v246 offset:%d' % (vr(CMR + 2 * (t & 1), 2), 128 * t))
        valu = gelu_mid() if t >= 1 else {}
        if t >= 2:
            for x in gelu_post(t - 2):
                a(x)
            h_store(t - 2)()
        if t >= 1:
            for x in gelu_pre(t - 1):
                a(x)
        fill = list(cst_fill) if t == 0 else []
        first = 8
        fi = 0
        for k in range(28):
            u, kk = k >> 1, k & 1
            n = t * 14 + u
            if t == 0 and k == 0:
                a('s_waitcnt lgkmcnt(%d)' % (LOOKX - 2))
            if t == 0 and kk == 0 and u in wlate:
                a.wait_vm(wlate[u])
            if t == 0 and k == first:
                a.wait_vm(cst_mark)
            r = CA[t & 1] + 4 * kk
            a('%s %s, %s, %s, %s' % (MFMA, vr(r), vr(CWW + 4 * (2 * u + kk)), vr(XF + 4 * (n % NXF)), '0' if u == 0 else vr(r)))
            for it in nonvec.get(k, []):
                if isinstance(it, str):
                    a(it)
                elif it[0] == 'bar':
                    a.wait_vm(dm[it[1]])
                    a('s_barrier')
                elif it[0] == 'dma':
                    a(c_dma(it[1], it[2]))
                    dm[it[1]] = a.vm_mark()
                elif it[0] == 'call':
                    it[1]()
            for x in valu.get(k, []):
                a(x)
            if fill and k >= first:
                want = -(-(len(fill)) * (k - first + 1) // (28 - first))
                while fi < want:
                    a(fill[fi])
                    fi += 1
        assert fi == len(fill)
        if t == 0:
            a('s_waitcnt lgkmcnt(0)')
            a('s_barrier')
            a('ds_read_b64 %s, v246 offset:0' % vr(CMR, 2))
            a('s_waitcnt lgkmcnt(0)')
    assert not wd_list


n_before = a.vm_issued
dm_init = dict(dm)
a('s_cmp_eq_u32 s%d, 0' % sPAIR)
a('s_cbranch_scc0 L_c_loop1')
emit_c_loop(list(range(*WD_CH[1])))
a('s_branch L_c_done')
a.label('L_c_loop1')
extra = a.vm_issued - n_before
a.vm_issued = n_before
dm.clear()
dm.update(dm_init)
emit_c_loop([])
a.label('L_c_done')
stamp()
pair_base(sA, L.FC)
a('s_lshl_b32 s%d, s%d, 10' % (sB, sG))
a('s_add_u32 s%d, s%d, s%d' % (sA, sA, sB))
a('s_mul_i32 s%d, s%d, 56' % (sB, sW))
a('s_add_u32 s%d, s%d, s%d' % (sA, sA, sB))
a('v_lshl_add_u32 v243, v0, 2, s%d' % sA)
a('s_mov_b32 s%d, 0x3fff' % sMK2)
a('s_mov_b32 s%d, 0' % (sMK2 + 1))
d0_mark = early_issue(244, 243)
for x in gelu_post(6):
    a(x)
h_store(6)()
a('s_waitcnt lgkmcnt(0)')
gelu_packed(7)
h_flag(5)()
h_store(7)()
stamp()

DH, DACC, DRD, DTMP = 2, 114, 178, 210
DRING, DLOOK = 16, 10
red_addrs()
publish_setup(L.XA[1], L.SA[1], L.FX[1], False, 5)
a('s_and_b32 s%d, s%d, 1' % (sA, sG))
a('s_lshr_b32 s%d, s%d, 1' % (sB, sW))
a('s_and_b32 s%d, s%d, s%d' % (sA, sA, sB))
a('s_xor_b32 s%d, s%d, 1' % (sA, sA))
a('s_and_b32 s%d, s%d, s%d' % (sPC, sFD, sA))
a('s_and_b32 s%d, s%d, s%d' % (sPFC, sFAST, sA))
pair_base(sA, L.H)
a('s_mul_i32 s%d, s%d, %d' % (sB, sG, 4 * 56 * 1024))
a('s_add_u32 s%d, s%d, s%d' % (sA, sA, sB))
a('s_mul_i32 s%d, s%d, %d' % (sB, sW, 14 * 1024))
a('s_add_u32 s%d, s%d, s%d' % (sO, sA, sB))
quarter_offsets(4, 56 * 1024)
a('s_cmp_eq_u32 s%d, 0' % sPAIR)
a('s_cbranch_scc1 L_d_nout')
owner_index()
a('s_mul_i32 s%d, s%d, 14336' % (sPX, sB))
a('s_lshl_b32 s%d, s%d, 6' % (sA, sA))
a('s_add_u32 s%d, s%d, s%d' % (sPX, sPX, sA))
a('s_add_u32 s%d, s%d, %d' % (sPX2, sPX, 2 * 14336))
a.label('L_d_nout')
a('v_and_b32 v%d, 15, v0' % V_TOK)
a('v_lshrrev_b32 v%d, 4, v0' % V_G)
a('v_mul_u32_u24 v242, 896, v%d' % V_TOK)
a('v_lshl_add_u32 v242, v%d, 3, v242' % V_G)
early_check(244, 243, d0_mark)
stamp()


def d_hload(q):
    tile, kk = divmod(q, 14)
    return ('buffer_load_dwordx4 %s, v1, %s, s%d offen offset:%d sc1' %
            (vr(DH + (q % DRING) * 4), srd(S_WS), sO + 4 * tile + (kk >> 2), 1024 * (kk & 3)))


hm = {}
dmk = {}
for q in range(DLOOK):
    a(d_hload(q))
    hm[q] = a.vm_mark()
    if q == 6:
        dmk[1] = early_issue(244, 243, 256)
a('s_barrier')


def d_tile(tile):
    items = []
    for kk in range(14):
        q = tile * 14 + kk
        for t in range(4):
            r = DACC + (tile * 4 + t) * 4
            pre = [(lambda qq=q: a.wait_vm(hm[qq]))] if t == 0 else []
            if t == 0 and q in (3, 9):
                pre.append(h_flag({3: 6, 9: 7}[q]))
            post = None
            if t == 0 and q + DLOOK < 56:
                def post(qq=q + DLOOK):
                    if qq % 14 == 0:
                        early_check(244, 243, dmk[qq // 14], 256 * (qq // 14))
                    a(d_hload(qq))
                    hm[qq] = a.vm_mark()
                    if qq % 14 == 6 and qq // 14 < 3:
                        dmk[qq // 14 + 1] = early_issue(244, 243, 256 * (qq // 14 + 1))
            items.append((pre, '%s %s, %s, %s, %s' % (MFMA, vr(r), ar((kk * 4 + t) * 4), vr(DH + (q % DRING) * 4),
                                                      '0' if kk == 0 else vr(r)), post))
    return items


def d_out_store(st, pk):
    a('buffer_store_dwordx2 %s, v242, %s, s%d offen %s' % (vr(pk, 2), srd(S_OUT), sPX if st == 0 else sPX2, OUTSC))
    a('buffer_store_dwordx2 %s, v242, %s, s%d offen offset:32 %s' % (vr(pk + 2, 2), srd(S_OUT), sPX if st == 0 else sPX2, OUTSC))


def d_store(st, pk):
    fin, done = newlab('L_dfin'), newlab('L_ddone')
    a('s_cmp_eq_u32 s%d, 0' % sPAIR)
    a('s_cbranch_scc0 %s' % fin)
    publish_data(st, pk)
    a('s_branch %s' % done)
    a.label(fin)
    n = a.vm_issued
    d_out_store(st, pk)
    a.vm_issued = n
    a.label(done)


DT0, DT1, DPK = 210, 226, 66
stage0 = [lambda: (a('s_waitcnt lgkmcnt(0)'), a('s_barrier'))] + red_reads(0, DRD) + finish_pre(0, True, DT0)
stage0 += [lambda: a('s_waitcnt lgkmcnt(0)')] + finish_sum(0, DRD, DT0, DPK, False) + [lambda: d_store(0, DPK)]
run_tiles(d_tile, {1: red_writes(DACC, 0), 2: red_writes(DACC + 16, 1), 3: red_writes(DACC + 32, 2) + stage0})
stamp2()
for x in red_writes(DACC + 48, 3):
    a(x)
for x in finish_pre(1, True, DT1):
    a(x)
a('s_waitcnt lgkmcnt(0)')
a('s_barrier')
stamp2()
for x in red_reads(1, DRD):
    a(x)
a('s_waitcnt lgkmcnt(0)')
for x in finish_sum(1, DRD, DT1, DPK + 4, True):
    a(x)
d_store(1, DPK + 4)
stamp()
a('s_cmp_eq_u32 s%d, 0' % sPAIR)
a('s_cbranch_scc0 L_next_pair')
publish_flags(8)
publish_stats([DT0, DT1], 88, 84)
a('s_waitcnt vmcnt(0)')
stats_flags(L.FSA - L.FX[1], 8)
a.label('L_next_pair')
stamp()
a('s_add_u32 s%d, s%d, 1' % (sPAIR, sPAIR))
a('s_cmp_lt_u32 s%d, 2' % sPAIR)
a('s_cbranch_scc1 L_pair')

a('s_cmp_eq_u32 s2, 0')
a('s_cbranch_scc0 L_noepoch')
a('s_cmp_eq_u32 s%d, 0' % sW)
a('s_cbranch_scc0 L_noepoch')
a('buffer_load_dword v2, off, %s, 0 sc1' % srd(S_WS))
a('s_waitcnt vmcnt(0)')
a('v_add_u32 v2, 1, v2')
a('s_mov_b64 exec, 1')
a('buffer_store_dword v2, off, %s, 0 sc1' % srd(S_WS))
a('s_mov_b64 exec, -1')
a.label('L_noepoch')
if PAD:
    a.label('L_padspin')
    a('s_memrealtime s[34:35]')
    a('s_waitcnt lgkmcnt(0)')
    a('s_sub_u32 s34, s34, s0')
    a('s_cmp_lt_u32 s34, %d' % PAD[0])
    a('s_cbranch_scc1 L_padspin')
if DBG:
    a('s_memtime s[32:33]')
    a('s_memrealtime s[34:35]')
    a('s_waitcnt lgkmcnt(0)')
    a('s_sub_u32 s32, s32, s26')
    a('s_sub_u32 s34, s34, s0')
    build_srd(S_TMP, P_DBG, 256)
    a('v_mov_b32 v2, s32')
    a('v_mov_b32 v3, s34')
    a('v_mov_b32 v4, s%d' % sFAST)
    a('v_mov_b32 v5, s%d' % sXCC)
    a('s_lshr_b32 s%d, s2, 6' % sA)
    a('s_lshl_b32 s%d, s%d, 4' % (sA, sA))
    a('s_and_b32 s%d, s2, 63' % sB)
    a('s_or_b32 s%d, s%d, s%d' % (sB, sB, sW))
    a('s_cmp_eq_u32 s%d, 0' % sB)
    a('s_cselect_b32 s%d, s%d, 0x%x' % (sA, sA, INV))
    a('v_mov_b32 v6, s%d' % sA)
    a('s_mov_b64 exec, 1')
    a('buffer_store_dwordx4 v[2:5], v6, %s, 0 offen' % srd(S_TMP))
    a('s_mov_b64 exec, -1')
if DIAG:
    stamp()
    a('s_mov_b32 s%d, 63' % sSTI)
    a('s_lshl_b64 exec, 1, s%d' % sSTI)
    a('v_mov_b32 v%d, s%d' % (V_STAMP, sERR))
    a('s_mov_b32 s%d, 62' % sSTI)
    a('s_lshl_b64 exec, 1, s%d' % sSTI)
    a('v_mov_b32 v%d, s%d' % (V_STAMP, sFAST))
    a('s_mov_b64 exec, -1')
    a('s_lshl_b32 s%d, s2, 2' % sA)
    a('s_add_u32 s%d, s%d, s%d' % (sA, sA, sW))
    a('s_lshl_b32 s%d, s%d, 8' % (sA, sA))
    a('v_lshlrev_b32 v2, 2, v0')
    a('s_add_u32 s%d, s%d, %d' % (sA, sA, L.WS_USED))
    a('s_mov_b32 s%d, 0x%x' % (S_WS + 2, L.WS_USED + 256 * 1024))
    a('buffer_store_dword v%d, v2, %s, s%d offen' % (V_STAMP, srd(S_WS), sA))
    if DBGST:
        build_srd(S_TMP, P_DBG, 256)
        a('v_readfirstlane_b32 s%d, v%d' % (sA, V_STAMP))
        a('s_nop 4')
        a('v_subrev_u32 v3, s%d, v%d' % (sA, V_STAMP))
        a('s_or_b32 s%d, s2, s%d' % (sB, sW))
        a('s_cmp_eq_u32 s%d, 0' % sB)
        a('s_cselect_b32 s%d, 0, 0x%x' % (sB, INV))
        a('v_or_b32 v2, s%d, v2' % sB)
        SEL = [int(x[6:]) for x in sys.argv if x.startswith('--sel=')]
        sel = SEL[0] if SEL else 1
        a('v_subrev_u32 v2, %d, v2' % (4 * sel))
        a('buffer_store_dword v3, v2, %s, 0 offen' % srd(S_TMP))
a.label('L_end')
a('s_endpgm')

a.finalize()
body = a.text()

import os
hdr = open(os.path.join(os.path.dirname(os.path.abspath(__file__)), 'header.txt')).read()
out = hdr + '; @launch grid=(256,1,1) block=(256,1,1) lds=%d\n' % L.LDS_BYTES
out += '.amdgcn_target "amdgcn-amd-amdhsa--gfx950"\n.text\n.globl %s_kernel\n.p2align 8\n.type %s_kernel,@function\n%s_kernel:\n' % (NAME, NAME, NAME)
out += body
out += '''.section .rodata,"a"
.p2align 6
.amdhsa_kernel %s_kernel
  .amdhsa_next_free_vgpr 512
  .amdhsa_next_free_sgpr 102
  .amdhsa_accum_offset 256
  .amdhsa_group_segment_fixed_size 0
  .amdhsa_kernarg_size 88
  .amdhsa_user_sgpr_count 2
  .amdhsa_user_sgpr_kernarg_segment_ptr 1
  .amdhsa_system_sgpr_workgroup_id_x 1
.end_amdhsa_kernel
''' % NAME
sys.stdout.write(out)
```

```python
import struct
import sys
from asmlib import Asm
import layout as L

NAME = 'interleave_layers__sliding_local_dilated__mixer_channel_mlp__prompt'
DIAG = '--diag' in sys.argv
FASTMODE = ([x[7:] for x in sys.argv if x.startswith('--fast=')] + ['flags'])[0]
NOFAST = FASTMODE == 'none'
PAD = [int(x[6:]) for x in sys.argv if x.startswith('--pad=')]
DBG = '--dbg' in sys.argv or bool(PAD)
SPIN_LIMIT = 200000
OUTSC = ([x[8:] for x in sys.argv if x.startswith('--outsc=')] + [''])[0].replace('_', ' ')
SLEEP = int(([x[8:] for x in sys.argv if x.startswith('--sleep=')] + ['0'])[0])
INV = 0x80000000

a = Asm()

sXCC = 3
S_WS, S_TMP, S_B1, S_OUT = 4, 8, 12, 16
P_X, P_WQKV, P_WO, P_BX, P_W1, P_B1, P_W2, P_B2, P_OUT, P_DBG, P_WSP = 20, 22, 24, 26, 28, 30, 32, 34, 36, 38, 40
sS, sC, sG, sJ, sW, sT, sPAIR, sSPIN = 42, 43, 44, 45, 46, 47, 48, 49
sM1 = 50
sM2 = 58
sM0 = 66
sO = 74
sA, sB, sCc, sD = 90, 91, 92, 93
sMK = 94
sTS = 96
sGT = 98
sERR = 99
sSTI = 100
sFAST = 101
sFD = 27
sPFC = 26
sFH = 25


def srd(n):
    return 's[%d:%d]' % (n, n + 3)


def vr(n, k=4):
    return 'v[%d:%d]' % (n, n + k - 1)


def ar(n, k=4):
    return 'a[%d:%d]' % (n, n + k - 1)


def sp(n):
    return 's[%d:%d]' % (n, n + 1)


def f2h(x):
    return '0x%08x' % struct.unpack('<I', struct.pack('<f', x))[0]


V_T, V_STAMP = 254, 255
V_TOK, V_G = 250, 251
MFMA = 'v_mfma_f32_16x16x32_bf16'


DIAG2 = '--diag2' in sys.argv
PREF = '--pref' in sys.argv
TOUCH = '--touch' in sys.argv
SKEW = [int(x[7:]) for x in sys.argv if x.startswith('--skew=')]
DBGST = '--dbgst' in sys.argv


def stamp2():
    if DIAG2:
        stamp()


def stamp():
    if not DIAG:
        return
    a('s_memtime %s' % sp(sTS))
    a('s_waitcnt lgkmcnt(0)')
    a('s_lshl_b64 exec, 1, s%d' % sSTI)
    a('v_mov_b32 v%d, s%d' % (V_STAMP, sTS))
    a('s_mov_b64 exec, -1')
    a('s_add_u32 s%d, s%d, 1' % (sSTI, sSTI))


lab_no = [0]


def newlab(p):
    lab_no[0] += 1
    return '%s_%d' % (p, lab_no[0])


def skew_store(point, have=False):
    if not SKEW or SKEW[0] != point:
        return
    if not have:
        a('s_memrealtime s[96:97]')
        a('s_waitcnt lgkmcnt(0)')
    build_srd(S_TMP, P_DBG, 256)
    a('s_and_b32 s%d, s2, 15' % sA)
    a('s_or_b32 s%d, s%d, s%d' % (sA, sA, sW))
    a('s_cmp_eq_u32 s%d, 0' % sA)
    a('s_cselect_b32 s%d, 0, 0x%x' % (sA, INV))
    a('s_lshr_b32 s%d, s2, 2' % sB)
    a('s_or_b32 s%d, s%d, s%d' % (sA, sA, sB))
    a('v_mov_b32 v21, s%d' % sA)
    a('v_mov_b32 v22, s96')
    a('s_mov_b64 exec, 1')
    a('buffer_store_dword v22, v21, %s, 0 offen' % srd(S_TMP))
    a.vm_issued -= 1
    a('s_mov_b64 exec, -1')


def build_srd(dst, ptr, nbytes):
    a('s_mov_b32 s%d, s%d' % (dst, ptr))
    a('s_and_b32 s%d, s%d, 0xffff' % (dst + 1, ptr + 1))
    a('s_mov_b32 s%d, 0x%x' % (dst + 2, nbytes))
    a('s_mov_b32 s%d, 0x20000' % (dst + 3))


def poll(voff, off2=None):
    lab, done = newlab('L_poll'), newlab('L_polldone')
    a('s_mov_b64 exec, %s' % sp(sMK))
    a('s_mov_b32 s%d, 0' % sSPIN)
    a.label(lab)
    a('buffer_load_dword v253, v%d, %s, 0 offen sc1' % (voff, srd(S_WS)))
    if off2 is not None:
        a('buffer_load_dword v245, v%d, %s, 0 offen offset:%d sc1' % (voff, srd(S_WS), off2))
    a('s_waitcnt vmcnt(0)')
    if off2 is not None:
        a('v_xor_b32 v245, s%d, v245' % sT)
        a('v_xor_b32 v253, s%d, v253' % sT)
        a('v_or_b32 v253, v253, v245')
        a('v_cmp_ne_u32 vcc, 0, v253')
    else:
        a('v_cmp_ne_u32 vcc, s%d, v253' % sT)
    a('s_nop 4')
    a('s_cbranch_vccz %s' % done)
    if SLEEP:
        a('s_sleep %d' % SLEEP)
    a('s_add_u32 s%d, s%d, 1' % (sSPIN, sSPIN))
    a('s_cmp_lt_u32 s%d, %d' % (sSPIN, SPIN_LIMIT))
    a('s_cbranch_scc1 %s' % lab)
    a('s_add_u32 s%d, s%d, 1' % (sERR, sERR))
    a.label(done)
    a('s_mov_b64 exec, -1')


sMK2 = 30


def early_issue(dst, voff, off=0):
    a('s_mov_b64 exec, %s' % sp(sMK2))
    a('buffer_load_dword v%d, v%d, %s, 0 offen offset:%d sc1' % (dst, voff, srd(S_WS), off))
    a('s_mov_b64 exec, -1')
    return a.vm_mark()


def early_check(dst, voff, mark, off=0):
    ok = newlab('L_early')
    a.wait_vm(mark)
    a('s_mov_b64 exec, %s' % sp(sMK2))
    a('v_cmp_ne_u32 vcc, s%d, v%d' % (sT, dst))
    a('s_mov_b64 exec, -1')
    a('s_nop 2')
    a('s_cbranch_vccz %s' % ok)
    a('s_mov_b64 %s, %s' % (sp(sMK), sp(sMK2)))
    n = a.vm_issued
    if off:
        a('v_add_u32 v253, %d, v%d' % (off, voff))
        a('v_mov_b32 v%d, v253' % dst)
        poll(dst)
    else:
        poll(voff)
    a.vm_issued = n
    a.label(ok)


def store(fmt, cond=None):
    if cond is None or NOFAST or (FASTMODE == 'flags' and cond in (sFD, sFH, sPC)):
        a(fmt + ' sc1')
        return
    slow, done = newlab('L_slow'), newlab('L_st')
    a('s_cmp_eq_u32 s%d, 0' % cond)
    a('s_cbranch_scc1 %s' % slow)
    a(fmt)
    a('s_branch %s' % done)
    a.label(slow)
    a(fmt + ' sc1')
    a.vm_issued -= 1
    a.label(done)


def set_flags(voff, nlanes, cond=None, val=V_T, between=()):
    mark = a.vm_mark()
    for x in between:
        a(x)
    a.wait_vm(mark)
    a('s_mov_b64 exec, %d' % ((1 << nlanes) - 1))
    store('buffer_store_dword v%d, v%d, %s, 0 offen' % (val, voff, srd(S_WS)), cond)
    a('s_mov_b64 exec, -1')


def xg_reduce(x, t, op='v_add_f32'):
    return ['v_mov_b32 v%d, v%d' % (t, x),
            'v_permlane32_swap_b32 v%d, v%d' % (x, t),
            '%s v%d, v%d, v%d' % (op, x, x, t),
            'v_mov_b32 v%d, v%d' % (t, x),
            'v_permlane16_swap_b32 v%d, v%d' % (x, t),
            '%s v%d, v%d, v%d' % (op, x, x, t)]


EPS = 1e-5


def stats_finish(s1, s2, t, double_ln):
    o = ['v_mul_f32 v%d, %s, v%d' % (s1, f2h(1.0 / 448), s1),
         'v_mul_f32 v%d, %s, v%d' % (s2, f2h(1.0 / 448), s2),
         'v_fma_f32 v%d, -v%d, v%d, v%d' % (s2, s1, s1, s2),
         'v_max_f32 v%d, 0, v%d' % (s2, s2),
         'v_add_f32 v%d, %s, v%d' % (t, f2h(EPS), s2),
         'v_rsq_f32 v%d, v%d' % (t, t)]
    if not double_ln:
        o += ['v_mov_b32 v%d, v%d' % (s2, t)]
    else:
        o += ['v_mul_f32 v%d, v%d, v%d' % (s2, s2, t),
              'v_fmaak_f32 v%d, v%d, v%d, %s' % (s2, s2, t, f2h(EPS)),
              'v_rsq_f32 v%d, v%d' % (s2, s2),
              'v_mul_f32 v%d, v%d, v%d' % (s2, s2, t)]
    return o


def pair_base(dst, arr):
    a('s_mul_i32 s%d, s%d, %d' % (dst, sPAIR, arr[1] - arr[0]))
    a('s_add_u32 s%d, s%d, %d' % (dst, dst, arr[0]))


def quarter_offsets(n, stride):
    for t in range(n):
        if t:
            a('s_add_u32 s%d, s%d, %d' % (sO + 4 * t, sO + 4 * (t - 1), stride))
        for q in range(1, 4):
            a('s_add_u32 s%d, s%d, %d' % (sO + 4 * t + q, sO + 4 * t, 4096 * q))


sPX, sPS, sPF, sPC, sPX2 = 36, 37, 28, 29, 33


def stats_flags(delta, lsh):
    a('v_lshlrev_b32 v241, %d, v0' % lsh)
    a('s_add_u32 s%d, s%d, %d' % (sA, sPF, delta))
    a('v_add_u32 v241, s%d, v241' % sA)
    a('s_mov_b64 exec, 3')
    store('buffer_store_dword v%d, v241, %s, 0 offen' % (V_T, srd(S_WS)), sPFC)
    a('s_mov_b64 exec, -1')


a('s_cmp_ge_u32 s2, 256')
a('s_cbranch_scc1 L_end')
a('s_load_dwordx16 s[20:35], s[0:1], 0')
a('s_load_dwordx4 s[36:39], s[0:1], 64')
a('s_load_dwordx2 s[40:41], s[0:1], 80')
a('s_getreg_b32 s%d, hwreg(HW_REG_XCC_ID, 0, 4)' % sXCC)
a('s_and_b32 s%d, s2, 7' % sA)
a('s_lshr_b32 s%d, s2, 3' % sB)
a('s_lshr_b32 s%d, s%d, 4' % (sCc, sB))
a('s_lshl_b32 s%d, s%d, 1' % (sS, sA))
a('s_add_u32 s%d, s%d, s%d' % (sS, sS, sCc))
a('s_and_b32 s%d, s%d, 15' % (sC, sB))
a('s_lshr_b32 s%d, s%d, 3' % (sA, sC))
a('s_lshl_b32 s%d, s%d, 1' % (sG, sS))
a('s_add_u32 s%d, s%d, s%d' % (sG, sG, sA))
a('s_and_b32 s%d, s%d, 7' % (sJ, sC))
a('s_mov_b32 s%d, 0' % sERR)
if SKEW and SKEW[0] == 0:
    a('s_memrealtime s[96:97]')
if PREF:
    a('s_getpc_b64 s[96:97]')
    a.label('L_pc')
    a('s_lshl_b32 s%d, s%d, 11' % (sA, sB))
    a('v_lshlrev_b32 v3, 3, v0')
    a('v_add_u32 v3, s%d, v3' % sA)
    a('v_min_u32 v3, L_end-L_pc-8, v3')
    a('global_load_dwordx2 v[252:253], v3, s[96:97]')
a('v_lshrrev_b32 v2, 6, v0')
a('v_and_b32 v0, 63, v0')
a('v_readfirstlane_b32 s%d, v2' % sW)
a('v_lshlrev_b32 v1, 4, v0')
if DIAG:
    a('v_mov_b32 v%d, 0' % V_STAMP)
    a('s_mov_b32 s%d, 0' % sSTI)
stamp()
a('v_and_b32 v%d, 15, v0' % V_TOK)
a('v_lshrrev_b32 v%d, 4, v0' % V_G)
sSTG = 40
a('s_waitcnt lgkmcnt(0)')
if DBG:
    a('s_memtime s[26:27]')
    a('s_memrealtime s[0:1]')
    a('s_waitcnt lgkmcnt(0)')
skew_store(0, True)
build_srd(S_WS, P_WSP, L.WS_USED)
a('buffer_load_dword v%d, off, %s, 0 sc1' % (V_T, srd(S_WS)))
a('s_lshl_b32 s%d, s%d, 14' % (sSTG, sW))
a('s_add_u32 s%d, s%d, %d' % (sSTG, sSTG, L.L_R2))

build_srd(S_TMP, P_X, 2048 * 896)
a('v_mul_u32_u24 v2, 896, v%d' % V_TOK)
a('v_lshl_add_u32 v2, v%d, 3, v2' % V_G)
a('s_lshr_b32 s%d, s%d, 1' % (sA, sC))
a('s_lshl_b32 s%d, s%d, 3' % (sB, sS))
a('s_add_u32 s%d, s%d, s%d' % (sO + 0, sA, sB))
a('s_and_b32 s%d, s%d, 1' % (sA, sC))
a('s_mul_i32 s%d, s%d, 7' % (sA, sA))
a('s_add_u32 s%d, s%d, s%d' % (sO + 1, sA, sW))
a('s_cmp_lt_u32 s%d, 3' % sW)
a('s_cselect_b32 s%d, 0, 0x%x' % (sO + 2, INV))
a('s_mul_i32 s%d, s%d, 14336' % (sA, sO + 0))
a('s_lshl_b32 s%d, s%d, 6' % (sB, sO + 1))
a('s_add_u32 s%d, s%d, s%d' % (sA, sA, sB))
a('v_or_b32 v3, s%d, v2' % (sO + 2))
a('buffer_load_dwordx2 v[10:11], v2, %s, s%d offen' % (srd(S_TMP), sA))
a('buffer_load_dwordx2 v[12:13], v2, %s, s%d offen offset:32' % (srd(S_TMP), sA))
a('buffer_load_dwordx2 v[14:15], v3, %s, s%d offen offset:256' % (srd(S_TMP), sA))
a('buffer_load_dwordx2 v[16:17], v3, %s, s%d offen offset:288' % (srd(S_TMP), sA))

build_srd(S_TMP, P_WQKV, 448 * 2688)
qMAT, qU, qINV = sO + 3, sO + 4, sO + 5
a('s_lshl_b32 s%d, s%d, 4' % (sA, sW))
a('s_add_u32 s%d, s%d, s%d' % (sA, sA, sS))
a('s_cmp_lt_u32 s%d, 42' % sA)
a('s_cselect_b32 s%d, 0, 0x%x' % (qINV, INV))
a('s_min_u32 s%d, s%d, 41' % (sA, sA))
a('s_mul_i32 s%d, s%d, 4682' % (qMAT, sA))
a('s_lshr_b32 s%d, s%d, 16' % (qMAT, qMAT))
a('s_mul_i32 s%d, s%d, 14' % (sB, qMAT))
a('s_sub_u32 s%d, s%d, s%d' % (qU, sA, sB))
a('s_mul_i32 s%d, s%d, %d' % (sA, qU, 32 * 2688))
a('s_mul_i32 s%d, s%d, 896' % (sB, qMAT))
a('s_add_u32 s%d, s%d, s%d' % (sA, sA, sB))
a('s_mul_i32 s%d, s%d, 56' % (sB, sC))
a('s_add_u32 s%d, s%d, s%d' % (sA, sA, sB))
a('v_lshrrev_b32 v4, 2, v0')
a('v_mul_u32_u24 v4, 2688, v4')
a('v_and_b32 v5, 3, v0')
a('v_lshl_add_u32 v4, v5, 4, v4')
a('v_or_b32 v4, s%d, v4' % qINV)
a('s_mov_b32 m0, s%d' % sSTG)
a('s_add_u32 s%d, s%d, %d' % (sB, sA, 16 * 2688))
a('buffer_load_dwordx4 v4, %s, s%d offen lds' % (srd(S_TMP), sA))
a('s_add_u32 m0, s%d, 1024' % sSTG)
a('s_nop 0')
a('buffer_load_dwordx4 v4, %s, s%d offen lds' % (srd(S_TMP), sB))

build_srd(S_B1, P_B1, 1792 * 2)
build_srd(S_OUT, P_OUT, 2048 * 896)
a('v_bfe_u32 v18, v0, 2, 2')
a('v_lshl_add_u32 v18, v%d, 2, v18' % V_G)
a('v_and_b32 v19, 3, v0')
a('v_lshlrev_b32 v19, 3, v19')
if TOUCH:
    a('v_lshlrev_b32 v21, 21, v0')
    a('s_mov_b64 exec, 0x1ffff')
    a('buffer_load_dword v253, v21, %s, 0 offen' % srd(S_WS))
    a('s_mov_b64 exec, -1')
    a('s_waitcnt vmcnt(1)')
else:
    a('s_waitcnt vmcnt(0)')
stamp()

a('s_mov_b32 s%d, 0x9E3779B1' % sA)
a('v_mul_lo_u32 v%d, v%d, s%d' % (V_T, V_T, sA))
a('v_add_u32 v%d, 0x7F4A7C15, v%d' % (V_T, V_T))
a('v_and_b32 v%d, -16, v%d' % (V_T, V_T))
a('v_lshl_add_u32 v20, v18, 6, v19')
a('v_add_u32 v20, s%d, v20' % sSTG)
for hf in range(2):
    a('ds_read_b64_tr_b16 %s, v20 offset:%d' % (vr(24 + 4 * hf, 2), 32 * hf))
    a('ds_read_b64_tr_b16 %s, v20 offset:%d' % (vr(26 + 4 * hf, 2), 32 * hf + 1024))
a('v_readfirstlane_b32 s%d, v%d' % (sT, V_T))
a('s_mul_i32 s%d, s%d, 14' % (sA, sO + 0))
a('s_add_u32 s%d, s%d, s%d' % (sA, sA, sO + 1))
a('s_lshl_b32 s%d, s%d, 10' % (sB, sA))
a('s_add_u32 s%d, s%d, %d' % (sB, sB, L.XA[0]))
a('v_or_b32 v3, s%d, v1' % (sO + 2))
a('buffer_store_dwordx4 v[10:13], v1, %s, s%d offen sc1' % (srd(S_WS), sB))
a('s_add_u32 s%d, s%d, 4096' % (sB, sB))
a('buffer_store_dwordx4 v[14:17], v3, %s, s%d offen sc1' % (srd(S_WS), sB))
a('v_cmp_gt_u32 vcc, 12, v%d' % V_TOK)
a('s_mul_i32 s%d, s%d, 84' % (sB, sC))
a('s_mul_i32 s%d, s%d, 28' % (sCc, qMAT))
a('s_add_u32 s%d, s%d, s%d' % (sB, sB, sCc))
a('s_add_u32 s%d, s%d, s%d' % (sB, sB, qU))
a('s_lshl_b32 s%d, s%d, 10' % (sB, sB))
a('s_add_u32 s%d, s%d, %d' % (sB, sB, L.WA))
a('v_or_b32 v4, s%d, v1' % qINV)
a('s_waitcnt lgkmcnt(0)')
for p in range(4):
    a('v_cndmask_b32 v%d, 0, v%d, vcc' % (28 + p, 28 + p))
a('buffer_store_dwordx4 v[24:27], v4, %s, s%d offen sc1' % (srd(S_WS), sB))
a('s_add_u32 s%d, s%d, %d' % (sB, sB, 14 * 1024))
a('buffer_store_dwordx4 v[28:31], v4, %s, s%d offen sc1' % (srd(S_WS), sB))
a('v_mov_b32 v2, 0x3f803f80')
for k in range(2):
    x, s1, s2 = 10 + 4 * k, 110 + 2 * k, 111 + 2 * k
    a('v_mov_b32 v%d, 0' % s1)
    a('v_mov_b32 v%d, 0' % s2)
    for p in range(4):
        a('v_dot2_f32_bf16 v%d, v%d, v2, v%d' % (s1, x + p, s1))
        a('v_dot2_f32_bf16 v%d, v%d, v%d, v%d' % (s2, x + p, x + p, s2))
    for t in xg_reduce(s1, 114) + xg_reduce(s2, 115):
        a(t)
a('s_lshl_b32 s%d, s%d, 7' % (sB, sA))
a('s_add_u32 s%d, s%d, %d' % (sB, sB, L.SA[0]))
a('v_lshlrev_b32 v2, 3, v%d' % V_TOK)
a('v_or_b32 v3, s%d, v2' % (sO + 2))
a('s_mov_b64 exec, 0xffff')
a('buffer_store_dwordx2 v[110:111], v2, %s, s%d offen sc1' % (srd(S_WS), sB))
a('buffer_store_dwordx2 v[112:113], v3, %s, s%d offen offset:512 sc1' % (srd(S_WS), sB))
a('s_mov_b64 exec, -1')
crit_mark = a.vm_mark()
bINV, bDST, bSTR, bINV2, bDST2, sSTRD = 20, 21, 22, 23, 24, 25
a('s_cmp_eq_u32 s%d, 3' % sW)
a('s_cbranch_scc1 L_p2_w1')
a('s_lshl_b32 s%d, s%d, 5' % (sA, sW))
a('s_add_u32 s%d, s%d, s%d' % (sA, sA, sG))
a('s_cmp_lt_u32 s%d, 72' % sA)
a('s_cselect_b32 s%d, 0, 0x%x' % (bINV, INV))
a('s_cmp_eq_u32 s%d, 7' % sJ)
a('s_cselect_b32 s%d, 0x%x, s%d' % (bINV, INV, bINV))
a('s_min_u32 s%d, s%d, 71' % (sA, sA))
a('s_min_u32 s%d, s%d, 6' % (sD, sJ))
a('s_cmp_lt_u32 s%d, 16' % sA)
a('s_cselect_b32 s%d, s%d, s%d' % (S_TMP, P_WO, P_W2))
a('s_cselect_b32 s%d, s%d, s%d' % (S_TMP + 1, P_WO + 1, P_W2 + 1))
a('s_mov_b32 s%d, 0x%x' % (S_TMP + 2, 1792 * 896))
a('s_cselect_b32 s%d, 0x%x, s%d' % (S_TMP + 2, 448 * 896, S_TMP + 2))
a('s_cselect_b32 s%d, 28, 32' % sB)
a('s_cselect_b32 s%d, 0, 16' % sCc)
a('s_mov_b32 s%d, %d' % (bSTR, 56 * 1024))
a('s_cselect_b32 s%d, %d, s%d' % (bSTR, 16 * 1024, bSTR))
a('s_mov_b32 s%d, %d' % (bDST, L.WD))
a('s_cselect_b32 s%d, %d, s%d' % (bDST, L.WB, bDST))
a('s_cselect_b32 s%d, 0x%x, 0' % (sO + 9, INV))
a('s_and_b32 s%d, s%d, 0xffff' % (S_TMP + 1, S_TMP + 1))
a('s_mov_b32 s%d, 0x20000' % (S_TMP + 3))
a('s_sub_u32 s%d, s%d, s%d' % (sA, sA, sCc))
a('s_lshl_b32 s%d, s%d, 10' % (sCc, sA))
a('s_add_u32 s%d, s%d, s%d' % (bDST, bDST, sCc))
a('s_lshl_b32 s%d, s%d, 2' % (sCc, sD))
a('s_mul_i32 s%d, s%d, s%d' % (sCc, sCc, bSTR))
a('s_add_u32 s%d, s%d, s%d' % (bDST, bDST, sCc))
a('s_mul_i32 s%d, s%d, s%d' % (sA, sA, sB))
a('s_mul_i32 s%d, s%d, 896' % (sA, sA))
a('s_lshl_b32 s%d, s%d, 7' % (sB, sD))
a('s_add_u32 s%d, s%d, s%d' % (sO + 10, sA, sB))
a('s_mov_b32 s%d, 896' % sSTRD)
a('s_mov_b32 s%d, 0x%x' % (bINV2, INV))
a('s_mov_b32 s%d, 0' % bDST2)
a('s_mov_b32 s%d, 0' % (sO + 11))
a('s_branch L_p2_go')
a.label('L_p2_w1')
build_srd(S_TMP, P_W1, 448 * 3584)
a('s_lshl_b32 s%d, s%d, 4' % (sA, sS))
a('s_add_u32 s%d, s%d, s%d' % (sA, sA, sC))
a('s_cmp_lt_u32 s%d, 136' % sA)
a('s_cselect_b32 s%d, 0, 0x%x' % (bINV2, INV))
a('s_mov_b32 s%d, 0' % bINV)
a('s_mov_b32 s%d, 0' % (sO + 9))
a('s_mov_b32 s%d, %d' % (bSTR, 14 * 1024))
a('s_mov_b32 s%d, 3584' % sSTRD)
for dst, src, add in ((bDST, sO + 10, 0), (bDST2, sO + 11, 256)):
    a('s_add_u32 s%d, s%d, %d' % (sB, sA, add))
    a('s_min_u32 s%d, s%d, 391' % (sB, sB))
    a('s_mul_i32 s%d, s%d, 4682' % (sCc, sB))
    a('s_lshr_b32 s%d, s%d, 16' % (sCc, sCc))
    a('s_mul_i32 s%d, s%d, 14' % (sD, sCc))
    a('s_sub_u32 s%d, s%d, s%d' % (sB, sB, sD))
    a('s_mul_i32 s%d, s%d, %d' % (src, sB, 32 * 3584))
    a('s_lshl_b32 s%d, s%d, 7' % (sD, sCc))
    a('s_add_u32 s%d, s%d, s%d' % (src, src, sD))
    a('s_mul_i32 s%d, s%d, 56' % (sD, sCc))
    a('s_add_u32 s%d, s%d, s%d' % (sD, sD, sB))
    a('s_lshl_b32 s%d, s%d, 10' % (sD, sD))
    a('s_add_u32 s%d, s%d, %d' % (dst, sD, L.WC))
a.label('L_p2_go')
a('v_lshrrev_b32 v6, 3, v0')
a('v_mul_lo_u32 v6, v6, s%d' % sSTRD)
a('v_and_b32 v5, 7, v0')
a('v_lshl_add_u32 v6, v5, 4, v6')
a('v_or_b32 v8, s%d, v6' % bINV2)
a('v_or_b32 v6, s%d, v6' % bINV)
a('v_cmp_lt_u32 vcc, 31, v0')
a('v_mov_b32 v7, s%d' % (sO + 9))
a('v_cndmask_b32 v7, 0, v7, vcc')
a('v_or_b32 v7, v7, v6')
a('s_lshl_b32 s%d, s%d, 3' % (sB, sSTRD))
for slot in range(2):
    src = sO + 10 + slot
    for q in range(4):
        a('s_add_u32 m0, s%d, %d' % (sSTG, 2048 + 4096 * slot + 1024 * q))
        if q:
            a('s_add_u32 s%d, s%d, s%d' % (src, src, sB))
        else:
            a('s_nop 0')
        a('buffer_load_dwordx4 v%d, %s, s%d offen lds' % (8 if slot else (7 if q == 3 else 6), srd(S_TMP), src))
a('s_lshl_b32 s%d, s%d, 5' % (sA, sO + 0))
a('s_add_u32 s%d, s%d, s%d' % (sA, sA, sO + 1))
a('s_lshl_b32 s%d, s%d, 2' % (sA, sA))
a('s_add_u32 s%d, s%d, %d' % (sA, sA, L.FX[0]))
a('v_lshlrev_b32 v2, 4, v0')
a('v_add_u32 v2, s%d, v2' % sA)
a('v_cmp_eq_u32 vcc, 1, v0')
a('v_mov_b32 v3, s%d' % (sO + 2))
a('v_cndmask_b32 v3, 0, v3, vcc')
a('v_or_b32 v2, v2, v3')
a('s_lshl_b32 s%d, s%d, 6' % (sA, sC))
a('s_lshl_b32 s%d, s%d, 2' % (sB, sS))
a('s_add_u32 s%d, s%d, s%d' % (sA, sA, sB))
a('s_add_u32 s%d, s%d, s%d' % (sA, sA, sW))
a('s_lshl_b32 s%d, s%d, 2' % (sA, sA))
a('s_add_u32 s%d, s%d, %d' % (sA, sA, L.FQ))
a('v_mov_b32 v3, s%d' % sA)
a('v_cmp_eq_u32 vcc, 2, v0')
a('v_cndmask_b32 v2, v2, v3, vcc')
a('s_lshl_b32 s%d, s%d, 4' % (sA, sS))
a('s_add_u32 s%d, s%d, s%d' % (sA, sA, sC))
a('s_lshl_b32 s%d, s%d, 2' % (sA, sA))
a('s_add_u32 s%d, s%d, %d' % (sA, sA, L.FXC))
a('s_cmp_eq_u32 s%d, 0' % sW)
a('s_cselect_b32 s%d, s%d, 0x%x' % (sA, sA, INV))
a('v_mov_b32 v3, s%d' % sA)
a('v_cmp_eq_u32 vcc, 3, v0')
a('v_cndmask_b32 v2, v2, v3, vcc')
a('v_or_b32 v3, s%d, v%d' % (sXCC, V_T))
a('v_cndmask_b32 v3, v%d, v3, vcc' % V_T)
stamp2()
a.wait_vm(crit_mark)
a('s_mov_b64 exec, 15')
a('buffer_store_dword v3, v2, %s, 0 offen sc1' % srd(S_WS))
a('s_mov_b64 exec, -1')
stamp()

skew_store(1)
a('s_waitcnt vmcnt(1)')
a('v_lshl_add_u32 v20, v18, 7, v19')
a('v_add_u32 v20, s%d, v20' % sSTG)
for slot in range(2):
    for t in range(4):
        a('ds_read_b64_tr_b16 %s, v20 offset:%d' % (vr(24 + 16 * slot + 4 * t, 2), 2048 + 4096 * slot + 32 * t))
        a('ds_read_b64_tr_b16 %s, v20 offset:%d' % (vr(26 + 16 * slot + 4 * t, 2), 2048 + 4096 * slot + 32 * t + 2048))
a('v_or_b32 v6, s%d, v1' % bINV)
a('v_or_b32 v8, s%d, v1' % bINV2)
a('s_waitcnt lgkmcnt(8)')
for t in range(4):
    a('buffer_store_dwordx4 %s, v6, %s, s%d offen sc1' % (vr(24 + 4 * t), srd(S_WS), bDST))
    if t < 3:
        a('s_add_u32 s%d, s%d, s%d' % (bDST, bDST, bSTR))
a('s_waitcnt lgkmcnt(0)')
for t in range(4):
    a('buffer_store_dwordx4 %s, v8, %s, s%d offen sc1' % (vr(40 + 4 * t), srd(S_WS), bDST2))
    if t < 3:
        a('s_add_u32 s%d, s%d, s%d' % (bDST2, bDST2, bSTR))
a('s_lshl_b32 s%d, s%d, 4' % (sA, sS))
a('s_add_u32 s%d, s%d, s%d' % (sA, sA, sC))
a('s_lshl_b32 s%d, s%d, 2' % (sA, sA))
a('s_add_u32 s%d, s%d, %d' % (sA, sA, L.FW1))
a('v_lshlrev_b32 v22, 10, v0')
a('v_add_u32 v22, s%d, v22' % sA)
a('v_cmp_eq_u32 vcc, 1, v0')
a('v_mov_b32 v23, s%d' % bINV2)
a('v_cndmask_b32 v23, 0, v23, vcc')
a('v_or_b32 v22, v22, v23')
a('s_cmp_eq_u32 s%d, 3' % sW)
a('s_cselect_b32 s%d, 0, 0x%x' % (sA, INV))
a('v_or_b32 v22, s%d, v22' % sA)

skew_store(3)
a('v_and_b32 v2, 1, v%d' % V_TOK)
a('v_lshlrev_b32 v3, 2, v%d' % V_G)
a('v_add_u32 v6, 2, v%d' % V_TOK)
for i in range(4):
    a('v_add_u32 v4, %d, v3' % i)
    a('v_cmp_eq_u32 vcc, %d, v2' % (i & 1))
    a('s_mov_b64 %s, vcc' % sp(sMK))
    a('v_cmp_ge_u32 vcc, v4, v6')
    a('s_and_b64 %s, vcc, %s' % (sp(sM1 + 2 * i), sp(sMK)))
    a('v_cmp_le_u32 vcc, v4, v%d' % V_TOK)
    a('s_and_b64 %s, vcc, %s' % (sp(sM2 + 2 * i), sp(sMK)))
a('s_lshl_b32 s%d, s%d, 3' % (sA, sS))
a('s_lshl_b32 s%d, s%d, 1' % (sB, sW))
a('s_add_u32 s%d, s%d, s%d' % (sGT, sA, sB))
a('s_cmp_eq_u32 s%d, 0' % sGT)
for i in range(4):
    a('s_cselect_b64 %s, 0, %s' % (sp(sM0 + 2 * i), sp(sM1 + 2 * i)))
a('s_mov_b32 s%d, 0' % sPAIR)

def a_flag_addr(dst):
    pair_base(sA, L.FX)
    a('s_lshl_b32 s%d, s%d, 7' % (sB, sGT))
    a('s_add_u32 s%d, s%d, s%d' % (sA, sA, sB))
    a('s_sub_u32 s%d, s%d, 128' % (sA, sA))
    a('v_and_b32 v%d, 48, v0' % dst)
    a('v_add_u32 v%d, v%d, v0' % (dst, dst))
    a('v_lshl_add_u32 v%d, v%d, 2, s%d' % (dst, dst, sA))
    a('s_mov_b32 s%d, 0x3fff3fff' % sMK)
    a('s_mov_b32 s%d, 0x3fff' % (sMK + 1))
    a('s_cmp_eq_u32 s%d, 0' % sGT)
    a('s_cselect_b32 s%d, 0x3fff0000, s%d' % (sMK, sMK))


a('s_lshl_b32 s%d, s%d, 8' % (sA, sC))
a('s_add_u32 s%d, s%d, %d' % (sA, sA, L.FQ))
a('v_lshl_add_u32 v2, v0, 2, s%d' % sA)
a_flag_addr(3)
a('s_lshl_b32 s%d, s%d, 6' % (sA, sS))
a('s_add_u32 s%d, s%d, %d' % (sA, sA, L.FXC - 48 * 4))
a('v_lshl_add_u32 v4, v0, 2, s%d' % sA)
a('v_cmp_lt_u32 vcc, 47, v0')
a('v_cndmask_b32 v3, v3, v4, vcc')
a('v_mov_b32 v5, -1')
a('v_mov_b32 v6, -16')
a('v_cndmask_b32 v5, v5, v6, vcc')
a('s_or_b32 s%d, s%d, 0xffff0000' % (sMK + 1, sMK + 1))
a('s_mov_b32 s%d, 0' % sSPIN)
a.label('L_poll0')
a('buffer_load_dword v7, v2, %s, 0 offen sc1' % srd(S_WS))
a('s_mov_b64 exec, %s' % sp(sMK))
a('buffer_load_dword v8, v3, %s, 0 offen sc1' % srd(S_WS))
a('s_waitcnt vmcnt(0)')
a('v_and_b32 v9, v5, v8')
a('v_cmp_ne_u32 vcc, s%d, v9' % sT)
a('s_mov_b64 exec, -1')
a('s_mov_b64 %s, vcc' % sp(sTS))
a('v_cmp_ne_u32 vcc, s%d, v7' % sT)
a('s_or_b64 vcc, vcc, %s' % sp(sTS))
a('s_cbranch_vccz L_poll0_done')
a('s_add_u32 s%d, s%d, 1' % (sSPIN, sSPIN))
a('s_cmp_lt_u32 s%d, %d' % (sSPIN, SPIN_LIMIT))
a('s_cbranch_scc1 L_poll0')
a('s_add_u32 s%d, s%d, 1' % (sERR, sERR))
a.label('L_poll0_done')
a('s_mov_b64 exec, 3')
a('buffer_store_dword v%d, v22, %s, 0 offen sc1' % (V_T, srd(S_WS)))
a('s_mov_b64 exec, -1')
skew_store(2)
a('v_and_b32 v9, 15, v8')
a('v_cmp_ne_u32 vcc, s%d, v9' % sXCC)
a('s_and_b32 s%d, vcc_hi, 0xffff0000' % sA)
a('s_cmp_eq_u32 s%d, 0' % sA)
a('s_cselect_b32 s%d, 1, 0' % sFAST)
stamp()
AQ, AK, AV = 2, 18, 42
WBUF = [66, 90]
XR = 114
CSACC = 186
STR = 210
SM, SR = 234, 237
NR, LOOK = 6, 4
A_ONES = 240


def a_xload(u):
    slot = u % NR
    return ['buffer_load_dwordx4 %s, v1, %s, s%d offen offset:%d sc1' %
            (vr(XR + (slot * 3 + t) * 4), srd(S_WS), sO + 4 * t + (u >> 2), 1024 * (u & 3)) for t in range(3)]


def a_offsets():
    pair_base(sA, L.XA)
    a('s_mul_i32 s%d, s%d, 14336' % (sB, sGT))
    a('s_add_u32 s%d, s%d, s%d' % (sO + 4, sA, sB))
    a('s_add_u32 s%d, s%d, 14336' % (sO + 8, sO + 4))
    a('s_sub_u32 s%d, s%d, 14336' % (sO + 0, sO + 4))
    a('s_cmp_eq_u32 s%d, 0' % sGT)
    a('s_cselect_b32 s%d, s%d, s%d' % (sO + 0, sO + 4, sO + 0))
    for t in range(3):
        for q in range(1, 4):
            a('s_add_u32 s%d, s%d, %d' % (sO + 4 * t + q, sO + 4 * t, 4096 * q))


def a_setup():
    if FASTMODE == 'flags':
        a('s_mov_b32 s%d, 0' % sFD)
        a('s_mov_b32 s%d, 0' % sFH)
    elif FASTMODE == 'p0':
        a('s_xor_b32 s%d, s%d, 1' % (sFD, sPAIR))
        a('s_and_b32 s%d, s%d, s%d' % (sFD, sFD, sFAST))
        a('s_mov_b32 s%d, s%d' % (sFH, sFD))
    elif FASTMODE == 'small':
        a('s_mov_b32 s%d, s%d' % (sFD, sFAST))
        a('s_mov_b32 s%d, 0' % sFH)
    elif FASTMODE == 'smallp0':
        a('s_mov_b32 s%d, s%d' % (sFD, sFAST))
        a('s_xor_b32 s%d, s%d, 1' % (sFH, sPAIR))
        a('s_and_b32 s%d, s%d, s%d' % (sFH, sFH, sFAST))
    else:
        a('s_mov_b32 s%d, s%d' % (sFD, sFAST))
        a('s_mov_b32 s%d, s%d' % (sFH, sFAST))
    pair_base(sA, L.SA)
    a('s_mul_i32 s%d, s%d, 1792' % (sB, sGT))
    a('s_add_u32 s%d, s%d, s%d' % (sO + 13, sA, sB))
    a('s_add_u32 s%d, s%d, 1792' % (sO + 14, sO + 13))
    a('s_sub_u32 s%d, s%d, 1792' % (sO + 12, sO + 13))
    a('s_cmp_eq_u32 s%d, 0' % sGT)
    a('s_cselect_b32 s%d, s%d, s%d' % (sO + 12, sO + 13, sO + 12))
    a('v_and_b32 v%d, 15, v0' % V_TOK)
    a('v_lshrrev_b32 v%d, 4, v0' % V_G)
    a('v_lshlrev_b32 v240, 3, v%d' % V_TOK)
    a('v_lshl_add_u32 v240, v%d, 7, v240' % V_G)
    a('v_mov_b32 v242, 0x%x' % INV)
    a('v_cmp_lt_u32 vcc, 1, v%d' % V_G)
    a('v_cndmask_b32 v241, 0, v242, vcc')
    a('v_or_b32 v241, v241, v240')
    a('v_add_u32 v243, %d, v1' % (56 * 1024))
    a('v_lshlrev_b32 v244, 4, v%d' % V_G)
    a('v_add_u32 v244, %d, v244' % L.L_CSA)
    a('v_lshlrev_b32 v245, 2, v%d' % V_TOK)
    a('v_add_u32 v245, %d, v245' % L.L_CSA)
    a('s_lshl_b32 s%d, s%d, 7' % (sA, sJ))
    a('s_add_u32 s%d, s%d, %d' % (sA, sA, L.FP))
    a('v_lshl_add_u32 v248, v0, 2, s%d' % sA)
    a('s_lshr_b32 s%d, s%d, 1' % (sB, sW))
    a('s_lshl_b32 s%d, s%d, 2' % (sCc, sG))
    a('s_add_u32 s%d, s%d, s%d' % (sB, sB, sCc))
    a('s_lshl_b32 s%d, s%d, 5' % (sB, sB))
    a('s_and_b32 s%d, s%d, 1' % (sA, sW))
    a('s_add_u32 s%d, s%d, s%d' % (sB, sB, sA))
    a('s_min_u32 s%d, s%d, 6' % (sA, sJ))
    a('s_lshl_b32 s%d, s%d, 1' % (sA, sA))
    a('s_add_u32 s%d, s%d, s%d' % (sB, sB, sA))
    a('s_lshl_b32 s%d, s%d, 2' % (sB, sB))
    a('s_add_u32 s%d, s%d, %d' % (sB, sB, L.FX[0] - 32 * 256))
    a('v_lshl_add_u32 v249, v0, 8, s%d' % sB)
    a('v_cmp_lt_u32 vcc, 31, v0')
    a('v_cndmask_b32 v248, v248, v249, vcc')
    a('s_lshr_b32 s%d, s%d, 3' % (sA, sC))
    a('s_mul_i32 s%d, s%d, 7' % (sA, sA))
    a('s_min_u32 s%d, s%d, 6' % (sB, sJ))
    a('s_add_u32 s%d, s%d, s%d' % (sA, sA, sB))
    a('s_mul_i32 s%d, s%d, 112' % (sA, sA))
    a('s_add_u32 s%d, s%d, %d' % (sA, sA, L.FW1 - 34 * 4))
    a('v_lshl_add_u32 v249, v0, 2, s%d' % sA)
    a('v_cmp_lt_u32 vcc, 33, v0')
    a('v_cndmask_b32 v248, v248, v249, vcc')
    a('s_cmp_eq_u32 s%d, 0' % sPAIR)
    a('s_mov_b32 s%d, %d' % (sA, L.FSA - 128))
    a('s_cselect_b32 s%d, %d, s%d' % (sA, L.FX[0] - 128, sA))
    a('s_lshl_b32 s%d, s%d, 7' % (sB, sGT))
    a('s_add_u32 s%d, s%d, s%d' % (sA, sA, sB))
    a('v_and_b32 v247, 48, v0')
    a('v_add_u32 v247, v247, v0')
    a('v_lshl_add_u32 v247, v247, 2, s%d' % sA)
    a('s_mov_b32 s%d, 0x3fff3fff' % sMK2)
    a('s_mov_b32 s%d, 0x3fff' % (sMK2 + 1))
    a('s_cmp_eq_u32 s%d, 0' % sGT)
    a('s_cselect_b32 s%d, 0x3fff0000, s%d' % (sMK2, sMK2))


stat_loads = ['buffer_load_dwordx2 %s, v%d, %s, s%d offen offset:%d sc1' %
              (vr(STR + (t * 4 + i) * 2, 2), 241 if i == 3 else 240, srd(S_WS), sO + 12 + t, 512 * i)
              for t in range(3) for i in range(4)]


def a_wread(u):
    b = WBUF[u & 1]
    o = []
    for p in range(6):
        if p < 4:
            o.append('ds_read_b128 %s, v1 offset:%d' % (vr(b + 4 * p), L.L_WA + (p * 14 + u) * 1024))
        else:
            o.append('ds_read_b128 %s, v243 offset:%d' % (vr(b + 4 * p), L.L_WA + ((p - 4) * 14 + u) * 1024))
    return o


stat_fill = []
for t in range(3):
    r = STR + 8 * t
    for c_ in range(2):
        stat_fill += ['v_add_f32 v%d, v%d, v%d' % (r + c_, r + c_, r + 2 + c_),
                      'v_add_f32 v%d, v%d, v%d' % (r + 4 + c_, r + 4 + c_, r + 6 + c_),
                      'v_add_f32 v%d, v%d, v%d' % (r + c_, r + c_, r + 4 + c_)]
    stat_fill += xg_reduce(r, r + 2) + xg_reduce(r + 1, r + 3)
    stat_fill += stats_finish(r, r + 1, r + 2, False)
    stat_fill += ['v_mov_b32 v%d, v%d' % (SM + t, r), 'v_mov_b32 v%d, v%d' % (SR + t, r + 1)]

sWA = [20, 21, 22]
sWAG = 23


def wa_dma(pr, i):
    def f():
        a('s_add_u32 m0, s%d, %d' % (sWA[i], L.L_WA + 2048 * pr))
        a('s_add_u32 s%d, s%d, s%d' % (sD, sWA[i], sWAG))
        if pr:
            a('s_add_u32 s%d, s%d, %d' % (sD, sD, 2048 * pr))
        a('buffer_load_dwordx4 v1, %s, s%d offen sc1 lds' % (srd(S_WS), sD))
    return f


amark = {}


def emit_a_loop(first, xmark, wam):
    ep_mark = es_mark = st_mark = None
    for t in a_wread(0):
        a(t)
    for u in range(14):
        need = xmark[u]
        if u == 12:
            need = max(need, st_mark)
        a.wait_vm(need)
        if u == 6:
            early_check(246, 247, es_mark)
        if u == 11:
            a('s_mov_b32 s%d, -1' % sMK2)
            a('s_mov_b32 s%d, 0x3fffffff' % (sMK2 + 1))
        a('s_waitcnt lgkmcnt(0)')
        wb = WBUF[u & 1]
        xs = XR + (u % NR) * 12
        mf = []
        cz = (lambda r: '0') if u == 0 else (lambda r: vr(r))
        for t in range(2):
            for hf in range(2):
                r = AQ + (t * 2 + hf) * 4
                mf.append('%s %s, %s, %s, %s' % (MFMA, vr(r), vr(wb + 4 * hf), vr(xs + 4 * (t + 1)), cz(r)))
        for t in range(3):
            for hf in range(2):
                r = AK + (t * 2 + hf) * 4
                mf.append('%s %s, %s, %s, %s' % (MFMA, vr(r), vr(wb + 8 + 4 * hf), vr(xs + 4 * t), cz(r)))
        for t in range(3):
            for hf in range(2):
                r = AV + (t * 2 + hf) * 4
                mf.append('%s %s, %s, %s, %s' % (MFMA, vr(r), vr(xs + 4 * t), vr(wb + 16 + 4 * hf), cz(r)))
        if first:
            for p in range(6):
                r = CSACC + 4 * p
                if p < 4:
                    mf.append('%s %s, %s, %s, %s' % (MFMA, vr(r), vr(wb + 4 * p), ar(A_ONES), cz(r)))
                else:
                    mf.append('%s %s, %s, %s, %s' % (MFMA, vr(r), ar(A_ONES), vr(wb + 4 * p), cz(r)))
        mem = {}

        def put(k, x):
            mem.setdefault(k, []).append(x)
        off = 0
        if first and u % 2 == 1 and u < 13:
            put(2, ('bar', (u + 1) // 2))
            off = 3
        if u < 13:
            for k, x in enumerate(a_wread(u + 1)):
                put(off + k, x)
        elif not first:
            for p in range(4):
                put(p, 'ds_read_b128 %s, v244 offset:%d' % (vr(WBUF[0] + 4 * p), 64 * p))
            for d in range(2):
                put(4 + d, 'ds_read_b32 v%d, v245 offset:%d' % (WBUF[0] + 16 + d, 64 * (4 + d)))
        if u + LOOK < 14:
            for k, x in zip((6, 9, 12), a_xload(u + LOOK)):
                put(k + off, x)
            put(12 + off, ('xm', u + LOOK))
        if first and u % 2 == 0 and u // 2 + 3 <= 6:
            for i, k in enumerate((13, 16, 19)):
                put(k, ('wa', u // 2 + 3, i))
        if 6 <= u < 10:
            for k, x in zip((8, 11, 14), stat_loads[3 * (u - 6):3 * (u - 6) + 3]):
                put(k, x)
            if u == 9:
                put(14, ('st',))
        if u == 11:
            put(8, ('early',))
        if u == 4:
            put(8, ('estat',))
        fill = stat_fill[(u - 12) * 30:(u - 11) * 30] if u >= 12 else []
        fi = 0
        for k, m in enumerate(mf):
            a(m)
            for it in mem.get(k, []):
                if isinstance(it, str):
                    a(it)
                elif it[0] == 'early':
                    ep_mark = early_issue(249, 248)
                elif it[0] == 'estat':
                    es_mark = early_issue(246, 247)
                elif it[0] == 'xm':
                    xmark[it[1]] = a.vm_mark()
                elif it[0] == 'st':
                    st_mark = a.vm_mark()
                elif it[0] == 'bar':
                    a.wait_vm(wam[it[1]])
                    a('s_barrier')
                elif it[0] == 'wa':
                    wa_dma(it[1], it[2])()
                    wam[it[1]] = a.vm_mark()
            for _ in range(2):
                if fi < len(fill) and k >= 1:
                    a(fill[fi])
                    fi += 1
        assert fi == len(fill), (u, fi, len(fill))
    amark['ep'] = ep_mark


for p in range(4):
    a('v_mov_b32 v4, 0x3f803f80')
    a('v_accvgpr_write_b32 a%d, v4' % (A_ONES + p))
a('s_mul_i32 s%d, s%d, 14336' % (sWA[0], sW))
a('s_add_u32 s%d, s%d, 4' % (sA, sW))
a('s_mul_i32 s%d, s%d, 14336' % (sA, sA))
a('s_sub_u32 s%d, s%d, 2' % (sB, sW))
a('s_mul_i32 s%d, s%d, 14336' % (sB, sB))
a('s_add_u32 s%d, s%d, 1024' % (sB, sB))
a('s_cmp_lt_u32 s%d, 2' % sW)
a('s_cselect_b32 s%d, s%d, s%d' % (sWA[1], sA, sB))
a('s_add_u32 s%d, s%d, 2' % (sA, sW))
a('s_mul_i32 s%d, s%d, 14336' % (sA, sA))
a('s_add_u32 s%d, s%d, 1024' % (sWA[2], sA))
a('s_mul_i32 s%d, s%d, %d' % (sWAG, sC, 84 * 1024))
a('s_add_u32 s%d, s%d, %d' % (sWAG, sWAG, L.WA))
a_offsets()
xm0, wam0 = {}, {}


def wa_pair(pr):
    for i in range(3):
        wa_dma(pr, i)()
    wam0[pr] = a.vm_mark()


for pr in range(3):
    wa_pair(pr)
    for u in (2 * pr, 2 * pr + 1):
        if u < LOOK:
            for t in a_xload(u):
                a(t)
            xm0[u] = a.vm_mark()
a_setup()
a.wait_vm(wam0[0])
a('s_barrier')
a('s_lshl_b32 s%d, s%d, 5' % (sA, sJ))
a('s_add_u32 s%d, s%d, s%d' % (sA, sA, sG))
a('s_lshl_b32 s%d, s%d, 2' % (sA, sA))
a('s_add_u32 s%d, s%d, %d' % (sA, sA, L.FP))
a('s_cmp_eq_u32 s%d, 0' % sW)
a('s_cselect_b32 s%d, s%d, 0x%x' % (sA, sA, INV))
a('v_mov_b32 v2, s%d' % sA)
a('s_mov_b64 exec, 1')
a('buffer_store_dword v%d, v2, %s, 0 offen sc1' % (V_T, srd(S_WS)))
a.vm_issued -= 1
a('s_mov_b64 exec, -1')
stamp()
emit_a_loop(True, xm0, wam0)
n_join = a.vm_issued - amark['ep']
CSQ = WBUF[0]
a('v_cmp_eq_u32 vcc, 0, v%d' % V_TOK)
a('s_mov_b64 exec, vcc')
for p in range(4):
    a('ds_write_b128 v244, %s offset:%d' % (vr(CSACC + 4 * p), 64 * p))
a('s_mov_b64 exec, 0xffff')
for d in range(2):
    a('ds_write_b32 v245, v%d offset:%d' % (CSACC + 16 + 4 * d, 64 * (4 + d)))
a('s_mov_b64 exec, -1')
for e in range(16):
    a('v_mov_b32 v%d, v%d' % (CSQ + e, CSACC + e))
for d in range(2):
    a('v_mov_b32 v%d, v%d' % (CSQ + 16 + d, CSACC + 16 + 4 * d))
a('s_branch L_a_epi')

a.label('L_pair')
a_flag_addr(2)
poll(2)
stamp()
a_offsets()
xmark = {}
for u in range(LOOK):
    for t in a_xload(u):
        a(t)
    xmark[u] = a.vm_mark()
a_setup()
emit_a_loop(False, xmark, None)
assert a.vm_issued - amark['ep'] == n_join
ep_mark = amark['ep']
a.label('L_a_epi')
stamp()
for x in stat_fill[60:]:
    a(x)
early_check(249, 248, ep_mark)
BW = 2
a('s_lshl_b32 s%d, s%d, 6' % (sA, sJ))
a('s_lshl_b32 s%d, s%d, 2' % (sB, sW))
a('s_add_u32 s%d, s%d, s%d' % (sA, sA, sB))
a('s_lshl_b32 s%d, s%d, 10' % (sA, sA))
a('s_add_u32 s20, s%d, %d' % (sA, L.WB))
for t in range(1, 4):
    a('s_add_u32 s%d, s20, %d' % (20 + t, 16 * 1024 * t))
wb_loads = ['buffer_load_dwordx4 %s, v1, %s, s%d offen offset:%d sc1' % (vr(BW + (i * 4 + t) * 4), srd(S_WS), 20 + t, 1024 * i)
            for i in range(4) for t in range(4)]
A_RES, A_B2 = 224, 232


def owner_index():
    a('s_lshr_b32 s%d, s%d, 1' % (sB, sW))
    a('s_lshl_b32 s%d, s%d, 2' % (sCc, sG))
    a('s_add_u32 s%d, s%d, s%d' % (sB, sB, sCc))
    a('s_and_b32 s%d, s%d, 1' % (sA, sW))
    a('s_lshl_b32 s%d, s%d, 1' % (sCc, sJ))
    a('s_add_u32 s%d, s%d, s%d' % (sA, sA, sCc))


a('s_cmp_eq_u32 s%d, 0' % sPAIR)
a('s_cbranch_scc0 L_a_nores')
owner_index()
a('s_mul_i32 s%d, s%d, 14' % (sB, sB))
a('s_add_u32 s%d, s%d, s%d' % (sB, sB, sA))
a('s_lshl_b32 s%d, s%d, 10' % (sB, sB))
a('s_add_u32 s%d, s%d, %d' % (sB, sB, L.XA[0]))
a('buffer_load_dwordx4 %s, v1, %s, s%d offen sc1' % (ar(A_RES), srd(S_WS), sB))
a('s_add_u32 s%d, s%d, %d' % (sB, sB, 2 * 14336))
a('buffer_load_dwordx4 %s, v1, %s, s%d offen sc1' % (ar(A_RES + 4), srd(S_WS), sB))
build_srd(S_TMP, P_B2, 896)
a('s_lshl_b32 s%d, s%d, 6' % (sB, sA))
a('v_lshlrev_b32 v240, 3, v%d' % V_G)
a('buffer_load_dwordx2 v[228:229], v240, %s, s%d offen' % (srd(S_TMP), sB))
a('buffer_load_dwordx2 v[230:231], v240, %s, s%d offen offset:32' % (srd(S_TMP), sB))
a.label('L_a_nores')
CSQ = WBUF[0]
a('s_mul_i32 s%d, s%d, 384' % (sA, sW))
a('s_add_u32 s%d, s%d, %d' % (sA, sA, L.L_STA))
a('v_lshl_add_u32 v246, v%d, 2, s%d' % (V_TOK, sA))
a('v_lshl_add_u32 v247, v%d, 4, s%d' % (V_G, sA))
a('s_mov_b64 exec, 0xffff')
for t in range(3):
    a('ds_write_b32 v246, v%d offset:%d' % (SM + t, 128 * t))
    a('ds_write_b32 v246, v%d offset:%d' % (SR + t, 128 * t + 64))
a('s_mov_b64 exec, -1')
MROW, RROW = 114, 126
a('s_waitcnt lgkmcnt(0)')
for t in range(3):
    a('ds_read_b128 %s, v247 offset:%d' % (vr(MROW + 4 * t), 128 * t))
    a('ds_read_b128 %s, v247 offset:%d' % (vr(RROW + 4 * t), 128 * t + 64))
QF, KF, VF = 140, 148, 160
for t in range(2):
    for hf in range(2):
        r = AQ + (t * 2 + hf) * 4
        for i in range(4):
            a('v_fma_f32 v%d, -v%d, v%d, v%d' % (r + i, SM + t + 1, CSQ + 4 * hf + i, r + i))
        for p in range(2):
            a('v_cvt_pk_bf16_f32 v%d, v%d, v%d' % (QF + 4 * t + 2 * hf + p, r + 2 * p, r + 2 * p + 1))
for t in range(3):
    for hf in range(2):
        r = AK + (t * 2 + hf) * 4
        for i in range(4):
            a('v_fma_f32 v%d, -v%d, v%d, v%d' % (r + i, SM + t, CSQ + 8 + 4 * hf + i, r + i))
        for p in range(2):
            a('v_cvt_pk_bf16_f32 v%d, v%d, v%d' % (KF + 4 * t + 2 * hf + p, r + 2 * p, r + 2 * p + 1))
SS = 172
for t in range(2):
    a('%s %s, %s, %s, 0' % (MFMA, vr(SS + 8 * t), vr(KF + 4 * t), vr(QF + 4 * t)))
    a('%s %s, %s, %s, 0' % (MFMA, vr(SS + 8 * t + 4), vr(KF + 4 * t + 4), vr(QF + 4 * t)))
a('s_waitcnt lgkmcnt(0)')
for t in range(3):
    for d in range(2):
        r = AV + (t * 2 + d) * 4
        for i in range(4):
            a('v_fma_f32 v%d, -v%d, v%d, v%d' % (r + i, MROW + 4 * t + i, CSQ + 16 + d, r + i))
        for p in range(2):
            a('v_cvt_pk_bf16_f32 v%d, v%d, v%d' % (VF + 6 * d + 2 * t + p, r + 2 * p, r + 2 * p + 1))
SCALE = (28.0 ** -0.5) * 1.4426950408889634
MX, CC, LS, TMPR = 190, 192, 194, 196
PF = 200
a('v_mov_b32 v198, 0xff800000')
seq = [[], []]
for t in range(2):
    s = SS + 8 * t
    q = seq[t]
    for e in range(8):
        q.append('v_mul_f32 v%d, v%d, v%d' % (s + e, s + e, RROW + 4 * (t + (e >> 2)) + (e & 3)))
    for e in range(8):
        mk = (sM0 if t == 0 else sM1) + 2 * e if e < 4 else sM2 + 2 * (e - 4)
        q.append('v_cndmask_b32 v%d, v198, v%d, %s' % (s + e, s + e, sp(mk)))
    q.append('v_max3_f32 v%d, v%d, v%d, v%d' % (MX + t, s, s + 1, s + 2))
    q.append('v_max3_f32 v%d, v%d, v%d, v%d' % (MX + t, MX + t, s + 3, s + 4))
    q.append('v_max3_f32 v%d, v%d, v%d, v%d' % (MX + t, MX + t, s + 5, s + 6))
    q.append('v_max_f32 v%d, v%d, v%d' % (MX + t, MX + t, s + 7))
    q += xg_reduce(MX + t, TMPR + t, 'v_max_f32')
    q.append('v_mul_f32 v%d, %s, v%d' % (CC + t, f2h(SCALE), SR + t + 1))
    q.append('v_mul_f32 v%d, v%d, v%d' % (MX + t, MX + t, CC + t))
    for e in range(8):
        q.append('v_fma_f32 v%d, v%d, v%d, -v%d' % (s + e, s + e, CC + t, MX + t))
    for e in range(8):
        q.append('v_exp_f32 v%d, v%d' % (s + e, s + e))
    q.append('v_add_f32 v%d, v%d, v%d' % (LS + t, s, s + 1))
    for e in range(2, 8):
        q.append('v_add_f32 v%d, v%d, v%d' % (LS + t, LS + t, s + e))
    q += xg_reduce(LS + t, TMPR + t)
    q.append('v_rcp_f32 v%d, v%d' % (LS + t, LS + t))
    for e in range(8):
        q.append('v_mul_f32 v%d, v%d, v%d' % (s + e, s + e, RROW + 4 * (t + (e >> 2)) + (e & 3)))
    for p in range(4):
        q.append('v_cvt_pk_bf16_f32 v%d, v%d, v%d' % (PF + 4 * t + p, s + 2 * p, s + 2 * p + 1))
merged = [z for xy in zip(*seq) for z in xy]
gap = len(merged) // (len(wb_loads) + 1)
for k, x in enumerate(merged):
    a(x)
    if k % gap == gap - 1 and wb_loads:
        a(wb_loads.pop(0))
assert not wb_loads
OO = 208
for t in range(2):
    for d in range(2):
        a('%s %s, %s, %s, 0' % (MFMA, vr(OO + 8 * t + 4 * d), vr(VF + 6 * d + 2 * t), vr(PF + 4 * t)))
pair_base(sA, L.O)
a('s_lshl_b32 s%d, s%d, 4' % (sB, sGT))
a('s_add_u32 s%d, s%d, s%d' % (sB, sB, sC))
a('s_lshl_b32 s%d, s%d, 10' % (sB, sB))
a('s_add_u32 s%d, s%d, s%d' % (sA, sA, sB))
for t in range(2):
    for e in range(8):
        a('v_mul_f32 v%d, v%d, v%d' % (OO + 8 * t + e, OO + 8 * t + e, LS + t))
    for p in range(4):
        a('v_cvt_pk_bf16_f32 v%d, v%d, v%d' % (PF + 4 * t + p, OO + 8 * t + 2 * p, OO + 8 * t + 2 * p + 1))
    store('buffer_store_dwordx4 %s, v1, %s, s%d offen' % (vr(PF + 4 * t), srd(S_WS), sA), sFD)
    if t == 0:
        a('s_add_u32 s%d, s%d, 16384' % (sA, sA))
pair_base(sA, L.FA)
a('s_lshl_b32 s%d, s%d, 4' % (sB, sGT))
a('s_add_u32 s%d, s%d, s%d' % (sB, sB, sC))
a('s_lshl_b32 s%d, s%d, 2' % (sB, sB))
a('s_add_u32 s%d, s%d, s%d' % (sA, sA, sB))
a('v_lshlrev_b32 v241, 6, v0')
a('v_add_u32 v241, s%d, v241' % sA)
set_flags(241, 2, sFAST)
stamp()
a('s_cmp_eq_u32 s%d, 7' % sJ)
a('s_cbranch_scc1 L_next_pair')


def wd_bases():
    a('s_lshl_b32 s%d, s%d, 2' % (sA, sJ))
    a('s_mul_i32 s%d, s%d, %d' % (sA, sA, 56 * 1024))
    a('s_mul_i32 s%d, s%d, %d' % (sB, sW, 14 * 1024))
    a('s_add_u32 s%d, s%d, s%d' % (sA, sA, sB))
    a('s_add_u32 s%d, s%d, %d' % (sO, sA, L.WD))
    quarter_offsets(4, 56 * 1024)


def wd_load(fi):
    kk, t = fi >> 2, fi & 3
    return ('buffer_load_dwordx4 %s, v1, %s, s%d offen offset:%d sc1' %
            (ar(4 * fi), srd(S_WS), sO + 4 * t + (kk >> 2), 1024 * (kk & 3)))


WD_CH = [(0, 12), (12, 56)]
BO, BACC, BRD, BTMP = 66, 130, 194, 226
a('s_cmp_eq_u32 s%d, 0' % sPAIR)
a('s_cbranch_scc0 L_b_start')
for k in range(4):
    a('v_lshlrev_b32 v236, 16, v%d' % (228 + k))
    a('v_and_b32 v237, 0xffff0000, v%d' % (228 + k))
    a('v_accvgpr_write_b32 a%d, v236' % (A_B2 + 2 * k))
    a('v_accvgpr_write_b32 a%d, v237' % (A_B2 + 2 * k + 1))
wd_bases()
for fi in range(*WD_CH[0]):
    a(wd_load(fi))
a.label('L_b_start')
CWW = 66
sCI = 41
a('s_lshr_b32 s%d, s%d, 3' % (sA, sC))
a('s_mul_i32 s%d, s%d, 7' % (sA, sA))
a('s_add_u32 s%d, s%d, s%d' % (sCI, sA, sJ))
a('s_lshl_b32 s%d, s%d, 3' % (sA, sCI))
a('s_lshl_b32 s%d, s%d, 1' % (sB, sW))
a('s_add_u32 s%d, s%d, s%d' % (sA, sA, sB))
a('s_mul_i32 s%d, s%d, %d' % (sB, sA, 14 * 1024))
a('s_add_u32 s%d, s%d, %d' % (sO, sB, L.WC))
quarter_offsets(2, 14 * 1024)


def c_wload(idx):
    u, k = idx >> 1, idx & 1
    return ('buffer_load_dwordx4 %s, v1, %s, s%d offen offset:%d sc1' %
            (vr(CWW + 4 * idx), srd(S_WS), sO + 4 * k + (u >> 2), 1024 * (u & 3)))


def red_writes(acc, tile):
    return ['ds_write_b128 v248, %s offset:%d' % (vr(acc + 4 * t), (tile >> 1) * 32768 + (tile & 1) * 4096 + t * 1024)
            for t in range(4)]


def red_reads(st, rd):
    return ['ds_read_b128 %s, v249 offset:%d' % (vr(rd + (b * 2 + k) * 4), st * 32768 + b * 8192 + k * 1024)
            for b in range(4) for k in range(2)]


def add8(dst, x, y, packed):
    if packed:
        return ['v_pk_add_f32 %s, %s, %s' % (vr(dst + e, 2), vr(x + e, 2), vr(y + e, 2)) for e in range(0, 8, 2)]
    return ['v_add_f32 v%d, v%d, v%d' % (dst + e, x + e, y + e) for e in range(8)]


def finish_pre(st, is_d, tmp):
    res = A_RES + 4 * st
    o = ['v_accvgpr_read_b32 v%d, a%d' % (tmp + 8 + p, res + p) for p in range(4)]
    for p in range(4):
        o += ['v_lshlrev_b32 v%d, 16, v%d' % (tmp + 2 * p, tmp + 8 + p),
              'v_and_b32 v%d, 0xffff0000, v%d' % (tmp + 2 * p + 1, tmp + 8 + p)]
    if is_d:
        o += ['v_accvgpr_read_b32 v%d, a%d' % (tmp + 8 + e, A_B2 + e) for e in range(8)]
        o += ['v_add_f32 v%d, v%d, v%d' % (tmp + e, tmp + e, tmp + 8 + e) for e in range(8)]
    return o


def finish_sum(st, rd, tmp, pk, packed):
    o = add8(rd, rd, rd + 8, packed) + add8(rd + 16, rd + 16, rd + 24, packed) + add8(rd, rd, rd + 16, packed)
    o += add8(tmp, tmp, rd, packed)
    o += ['v_cvt_pk_bf16_f32 v%d, v%d, v%d' % (pk + p, tmp + 2 * p, tmp + 2 * p + 1) for p in range(4)]
    o += ['v_accvgpr_write_b32 a%d, v%d' % (A_RES + 4 * st + p, pk + p) for p in range(4)]
    return o


def owner_stats(tmp, s1, t):
    a('v_pk_add_f32 %s, %s, %s' % (vr(t, 2), vr(tmp, 2), vr(tmp + 2, 2)))
    a('v_pk_add_f32 %s, %s, %s' % (vr(t + 2, 2), vr(tmp + 4, 2), vr(tmp + 6, 2)))
    a('v_pk_add_f32 %s, %s, %s' % (vr(t, 2), vr(t, 2), vr(t + 2, 2)))
    a('v_add_f32 v%d, v%d, v%d' % (s1, t, t + 1))
    a('v_pk_mul_f32 %s, %s, %s' % (vr(t, 2), vr(tmp, 2), vr(tmp, 2)))
    for e in (2, 4, 6):
        a('v_pk_fma_f32 %s, %s, %s, %s' % (vr(t, 2), vr(tmp + e, 2), vr(tmp + e, 2), vr(t, 2)))
    a('v_add_f32 v%d, v%d, v%d' % (s1 + 1, t, t + 1))
    for x, y in zip(xg_reduce(s1, t), xg_reduce(s1 + 1, t + 1)):
        a(x)
        a(y)


def red_addrs():
    a('s_lshl_b32 s%d, s%d, 13' % (sA, sW))
    a('s_add_u32 s%d, s%d, %d' % (sA, sA, L.L_R2))
    a('v_add_u32 v248, s%d, v1' % sA)
    a('s_and_b32 s%d, s%d, 1' % (sA, sW))
    a('s_lshl_b32 s%d, s%d, 11' % (sA, sA))
    a('s_lshr_b32 s%d, s%d, 1' % (sB, sW))
    a('s_lshl_b32 s%d, s%d, 12' % (sB, sB))
    a('s_add_u32 s%d, s%d, s%d' % (sA, sA, sB))
    a('s_add_u32 s%d, s%d, %d' % (sA, sA, L.L_R2))
    a('v_add_u32 v249, s%d, v1' % sA)


def publish_setup(xbase, sbase, fbase, per_pair, fsh):
    owner_index()
    a('s_mul_i32 s%d, s%d, 14' % (sCc, sB))
    a('s_add_u32 s%d, s%d, s%d' % (sCc, sCc, sA))
    a('s_lshl_b32 s%d, s%d, 10' % (sPX, sCc))
    a('s_lshl_b32 s%d, s%d, 7' % (sPS, sCc))
    a('s_lshl_b32 s%d, s%d, %d' % (sPF, sB, fsh))
    a('s_add_u32 s%d, s%d, s%d' % (sPF, sPF, sA))
    a('s_lshl_b32 s%d, s%d, 2' % (sPF, sPF))
    for dst, arr in ((sPX, xbase), (sPS, sbase), (sPF, fbase)):
        if per_pair:
            pair_base(sD, arr)
            a('s_add_u32 s%d, s%d, s%d' % (dst, dst, sD))
        else:
            a('s_add_u32 s%d, s%d, %d' % (dst, dst, arr))
    a('s_add_u32 s%d, s%d, %d' % (sPX2, sPX, 2 * 14336))


def publish_data(st, pk):
    store('buffer_store_dwordx4 %s, v1, %s, s%d offen offset:0' % (vr(pk), srd(S_WS), sPX if st == 0 else sPX2), sPC)


def publish_stats(tmps, t, s1):
    a('v_and_b32 v%d, 15, v0' % V_TOK)
    a('v_lshlrev_b32 v%d, 3, v%d' % (t + 4, V_TOK))
    for st in range(2):
        owner_stats(tmps[st], s1 + 2 * st, t)
    a('s_mov_b64 exec, 0xffff')
    store('buffer_store_dwordx2 %s, v%d, %s, s%d offen' % (vr(s1, 2), t + 4, srd(S_WS), sPS), sPC)
    a('s_add_u32 s%d, s%d, %d' % (sPS, sPS, 2 * 1792))
    store('buffer_store_dwordx2 %s, v%d, %s, s%d offen' % (vr(s1 + 2, 2), t + 4, srd(S_WS), sPS), sPC)
    a('s_mov_b64 exec, -1')


def publish_flags(lsh, between=()):
    a('v_lshlrev_b32 v241, %d, v0' % lsh)
    a('v_add_u32 v241, s%d, v241' % sPF)
    set_flags(241, 2, sPFC, V_T, between)


def run_tiles(tile_items, extras):
    for tile in range(4):
        items = tile_items(tile)
        ex = list(extras.get(tile, []))
        free = [k for k, it in enumerate(items) if k >= 3 and not it[2]]
        per = -(-len(ex) // max(1, len(free))) if ex else 0
        for k, (pre, m, post) in enumerate(items):
            for x in pre:
                x()
            a(m)
            if post:
                post()
            elif k >= 3:
                for _ in range(per):
                    if ex:
                        x = ex.pop(0)
                        if callable(x):
                            x()
                        else:
                            a(x)
        assert not ex


pair_base(sA, L.FA)
a('s_lshl_b32 s%d, s%d, 8' % (sB, sG))
a('s_add_u32 s%d, s%d, s%d' % (sA, sA, sB))
a('v_lshl_add_u32 v240, v0, 2, s%d' % sA)
a('s_lshl_b32 s%d, s%d, 2' % (sB, sW))
a('s_lshl_b32 s%d, 0x000f000f, s%d' % (sMK, sB))
a('s_mov_b32 s%d, s%d' % (sMK + 1, sMK))
red_addrs()
publish_setup(L.XB, L.SB, L.FB, True, 4)
a('s_mov_b32 s%d, s%d' % (sPC, sFD))
a('s_mov_b32 s%d, s%d' % (sPFC, sFAST))
pair_base(sA, L.O)
a('s_lshl_b32 s%d, s%d, 6' % (sB, sG))
a('s_lshl_b32 s%d, s%d, 2' % (sCc, sW))
a('s_add_u32 s%d, s%d, s%d' % (sB, sB, sCc))
a('s_lshl_b32 s%d, s%d, 10' % (sB, sB))
a('s_add_u32 s20, s%d, s%d' % (sA, sB))
for t in range(1, 4):
    a('s_add_u32 s%d, s20, %d' % (20 + t, 16384 * t))
poll(240)
stamp()


def b_oload(tile, i):
    return 'buffer_load_dwordx4 %s, v1, %s, s%d offen offset:%d sc1' % (vr(BO + (tile * 4 + i) * 4), srd(S_WS), 20 + tile, 1024 * i)


om = {}
for tile in range(2):
    for i in range(4):
        a(b_oload(tile, i))
        om[(tile, i)] = a.vm_mark()


def b_tile(tile):
    items = []
    for i in range(4):
        for t in range(4):
            r = BACC + (tile * 4 + t) * 4
            pre = [(lambda tl=tile, ii=i: a.wait_vm(om[(tl, ii)]))] if t == 0 else []
            post = None
            if tile < 2 and t == 1:
                def post(tl=tile + 2, ii=i):
                    a(b_oload(tl, ii))
                    om[(tl, ii)] = a.vm_mark()
            if tile >= 2 and t == 1:
                def post(idx=4 * (tile - 2) + i):
                    a(c_wload(idx))
            items.append((pre, '%s %s, %s, %s, %s' % (MFMA, vr(r), vr(BW + (i * 4 + t) * 4), vr(BO + (tile * 4 + i) * 4),
                                                      '0' if i == 0 else vr(r)), post))
    return items


BT0, BT1, BPK = 226, 2, 18
run_tiles(b_tile, {1: red_writes(BACC, 0), 2: red_writes(BACC + 16, 1), 3: red_writes(BACC + 32, 2)})
stamp2()
for x in red_writes(BACC + 48, 3):
    a(x)
for x in finish_pre(0, False, BT0) + finish_pre(1, False, BT1):
    a(x)
a('s_waitcnt lgkmcnt(0)')
a('s_barrier')
stamp2()
BRD1 = 162
for x in red_reads(0, BRD) + red_reads(1, BRD1):
    a(x)
a('s_waitcnt lgkmcnt(8)')
for x in finish_sum(0, BRD, BT0, BPK, True):
    a(x)
publish_data(0, BPK)
a('s_waitcnt lgkmcnt(0)')
for x in finish_sum(1, BRD1, BT1, BPK + 4, True):
    a(x)
publish_data(1, BPK + 4)
stamp2()
publish_stats([BT0, BT1], 36, 32)
publish_flags(7, [c_wload(i) for i in range(8, 16)])
stamp()

for i in range(16, 22):
    a(c_wload(i))
CA = [2, 10]
XF, NXF = 18, 8
GTMP, GH = 50, 58
CCS, CB1, CB1R = 178, 186, 194
CSTR = 198
CMR = 214
VGA = 218
a('v_lshrrev_b32 v%d, 4, v0' % V_G)
a('v_and_b32 v%d, 15, v0' % V_TOK)
a('s_lshl_b32 s%d, s%d, 3' % (sA, sCI))
a('s_lshl_b32 s%d, s%d, 1' % (sB, sW))
a('s_add_u32 s%d, s%d, s%d' % (sA, sA, sB))
a('s_lshl_b32 s%d, s%d, 5' % (sB, sA))
a('v_lshlrev_b32 v248, 3, v%d' % V_G)
for k in range(2):
    a('buffer_load_dwordx2 %s, v248, %s, s%d offen offset:%d' % (vr(CB1R + 2 * k, 2), srd(S_B1), sB, 32 * k))
pair_base(sA, L.FB)
a('s_lshl_b32 s%d, s%d, 9' % (sB, sS))
a('s_add_u32 s%d, s%d, s%d' % (sA, sA, sB))
a('v_lshl_add_u32 v240, v0, 2, s%d' % sA)
a('s_mov_b32 s%d, 0x3fff3fff' % sMK)
a('s_mov_b32 s%d, 0x3fff3fff' % (sMK + 1))
pair_base(20, L.XB)
a('s_mul_i32 s%d, s%d, %d' % (sB, sS, 8 * 14336))
a('s_add_u32 s20, s20, s%d' % sB)
a('s_lshl_b32 s%d, s%d, 12' % (sB, sW))
a('s_add_u32 s20, s20, s%d' % sB)
a('s_add_u32 s21, s%d, %d' % (sB, L.L_R2))
pair_base(22, L.SB)
a('s_lshl_b32 s%d, s%d, 3' % (sB, sS))
a('s_add_u32 s%d, s%d, s%d' % (sB, sB, sW))
a('s_mul_i32 s%d, s%d, 1792' % (sB, sB))
a('s_add_u32 s22, s22, s%d' % sB)
a('s_add_u32 s23, s22, %d' % (4 * 1792))
pair_base(32, L.H)
a('s_mul_i32 s%d, s%d, %d' % (sB, sS, 8 * 56 * 1024))
a('s_add_u32 s32, s32, s%d' % sB)
a('s_lshl_b32 s%d, s%d, 2' % (sB, sCI))
a('s_add_u32 s%d, s%d, s%d' % (sB, sB, sW))
a('s_lshl_b32 s%d, s%d, 10' % (sCc, sB))
a('s_add_u32 s32, s32, s%d' % sCc)
pair_base(33, L.FC)
a('s_lshl_b32 s%d, s%d, 11' % (sCc, sS))
a('s_add_u32 s33, s33, s%d' % sCc)
a('s_lshl_b32 s%d, s%d, 2' % (sB, sB))
a('s_add_u32 s33, s33, s%d' % sB)
a('v_mov_b32 v241, s33')
a('v_mov_b32 v242, 0x%x' % INV)
a('v_cmp_eq_u32 vcc, 0, v0')
a('v_cndmask_b32 v241, v242, v241, vcc')
a('v_lshlrev_b32 v238, 3, v%d' % V_TOK)
a('v_lshl_add_u32 v238, v%d, 7, v238' % V_G)
a('v_mov_b32 v242, 0x%x' % INV)
a('v_cmp_lt_u32 vcc, 1, v%d' % V_G)
a('v_cndmask_b32 v239, 0, v242, vcc')
a('v_or_b32 v239, v239, v238')
a('v_add_u32 v252, %d, v1' % L.L_R2)
a('v_lshlrev_b32 v246, 3, v%d' % V_TOK)
a('v_add_u32 v246, %d, v246' % L.L_STC)
GA = 2.0 * 0.7978845608028654 * 1.4426950408889634
GB = GA * 0.044715
a('v_mov_b32 v%d, %s' % (VGA, f2h(-GA)))
a('v_mov_b32 v%d, %s' % (VGA + 1, f2h(-GA)))
a('s_mov_b32 s34, %s' % f2h(-GB))
a('s_mov_b32 s35, %s' % f2h(-GB))
wd_bases_hi = True
poll(240, 256)
stamp()


def c_dma_setup(t):
    return ['s_add_u32 s36, s20, %d' % (t * 14336), 's_add_u32 m0, s21, %d' % ((t & 3) * 16384)]


def c_dma(t, i):
    return 'buffer_load_dwordx4 v1, %s, s36 offen offset:%d sc1 lds' % (srd(S_WS), 1024 * i)


dm = {}
for x in c_dma_setup(0) + [c_dma(0, i) for i in range(4)]:
    a(x)
dm[0] = a.vm_mark()
wlate = {}
for i in range(22, 28):
    a(c_wload(i))
    wlate[i >> 1] = a.vm_mark()
for tt in range(2):
    for i in range(4):
        a('buffer_load_dwordx2 %s, v%d, %s, s%d offen offset:%d sc1' %
          (vr(CSTR + 8 * tt + 2 * i, 2), 239 if i == 3 else 238, srd(S_WS), 22 + tt, 512 * i))
cst_mark = a.vm_mark()
for x in c_dma_setup(1) + [c_dma(1, i) for i in range(4)]:
    a(x)
dm[1] = a.vm_mark()
for k in range(2):
    for p in range(2):
        a('v_lshlrev_b32 v%d, 16, v%d' % (CB1 + 4 * k + 2 * p, CB1R + 2 * k + p))
        a('v_and_b32 v%d, 0xffff0000, v%d' % (CB1 + 4 * k + 2 * p + 1, CB1R + 2 * k + p))
wd_bases()
a.wait_vm(dm[0])
a('s_barrier')
stamp()


def c_xread(t, u):
    n = t * 14 + u
    return 'ds_read_b128 %s, v252 offset:%d' % (vr(XF + 4 * (n % NXF)), (t & 3) * 16384 + u * 1024)


def gelu_pre(t):
    z, m = CA[t & 1], CMR + 2 * (t & 1)
    P = range(0, 8, 2)
    o = ['v_pk_fma_f32 %s, %s, %s, %s op_sel_hi:[1,0,1] neg_lo:[0,1,0] neg_hi:[0,1,0]' % (vr(z + e, 2), vr(CCS + e, 2), vr(m, 2), vr(z + e, 2)) for e in P]
    o += ['v_pk_fma_f32 %s, %s, %s, %s op_sel:[0,1,0] op_sel_hi:[1,1,1]' % (vr(z + e, 2), vr(z + e, 2), vr(m, 2), vr(CB1 + e, 2)) for e in P]
    o += ['v_pk_mul_f32 %s, %s, %s' % (vr(GTMP + e, 2), vr(z + e, 2), vr(z + e, 2)) for e in P]
    o += ['v_pk_fma_f32 %s, %s, s[34:35], %s' % (vr(GTMP + e, 2), vr(GTMP + e, 2), vr(VGA, 2)) for e in P]
    o += ['v_pk_mul_f32 %s, %s, %s' % (vr(GTMP + e, 2), vr(GTMP + e, 2), vr(z + e, 2)) for e in P]
    return o


def gelu_mid():
    o = {}
    for e in range(8):
        o.setdefault(2 * e, []).append('v_exp_f32 v%d, v%d' % (GTMP + e, GTMP + e))
        o.setdefault(2 * e + 3, []).append('v_add_f32 v%d, 1.0, v%d' % (GTMP + e, GTMP + e))
    for e in range(6):
        o.setdefault(16 + 2 * e, []).append('v_rcp_f32 v%d, v%d' % (GTMP + e, GTMP + e))
    o.setdefault(25, []).append('v_rcp_f32 v%d, v%d' % (GTMP + 6, GTMP + 6))
    o.setdefault(27, []).append('v_rcp_f32 v%d, v%d' % (GTMP + 7, GTMP + 7))
    return o


def gelu_post(t):
    z, h = CA[t & 1], GH + 4 * (t & 1)
    o = ['v_pk_mul_f32 %s, %s, %s' % (vr(GTMP + e, 2), vr(GTMP + e, 2), vr(z + e, 2)) for e in range(0, 8, 2)]
    o += ['v_cvt_pk_bf16_f32 v%d, v%d, v%d' % (h + p, GTMP + 2 * p, GTMP + 2 * p + 1) for p in range(4)]
    return o


def gelu_packed(t):
    z, m, h = CA[t & 1], CMR + 2 * (t & 1), GH + 4 * (t & 1)
    P = range(0, 8, 2)
    for e in P:
        a('v_pk_fma_f32 %s, %s, %s, %s op_sel_hi:[1,0,1] neg_lo:[0,1,0] neg_hi:[0,1,0]' % (vr(z + e, 2), vr(CCS + e, 2), vr(m, 2), vr(z + e, 2)))
    for e in P:
        a('v_pk_fma_f32 %s, %s, %s, %s op_sel:[0,1,0] op_sel_hi:[1,1,1]' % (vr(z + e, 2), vr(z + e, 2), vr(m, 2), vr(CB1 + e, 2)))
    for e in P:
        a('v_pk_mul_f32 %s, %s, %s' % (vr(GTMP + e, 2), vr(z + e, 2), vr(z + e, 2)))
    for e in P:
        a('v_pk_fma_f32 %s, %s, s[34:35], %s' % (vr(GTMP + e, 2), vr(GTMP + e, 2), vr(VGA, 2)))
    for e in P:
        a('v_pk_mul_f32 %s, %s, %s' % (vr(GTMP + e, 2), vr(GTMP + e, 2), vr(z + e, 2)))
    for e in range(8):
        a('v_exp_f32 v%d, v%d' % (GTMP + e, GTMP + e))
    for e in P:
        a('v_pk_add_f32 %s, %s, 1.0 op_sel_hi:[1,0]' % (vr(GTMP + e, 2), vr(GTMP + e, 2)))
    for e in range(8):
        a('v_rcp_f32 v%d, v%d' % (GTMP + e, GTMP + e))
    for e in P:
        a('v_pk_mul_f32 %s, %s, %s' % (vr(GTMP + e, 2), vr(GTMP + e, 2), vr(z + e, 2)))
    for p in range(4):
        a('v_cvt_pk_bf16_f32 v%d, v%d, v%d' % (h + p, GTMP + 2 * p, GTMP + 2 * p + 1))


hmk, fmk = {}, {}


def h_store(t):
    def f():
        a('s_add_u32 s36, s32, %d' % (t * 56 * 1024))
        store('buffer_store_dwordx4 %s, v1, %s, s36 offen' % (vr(GH + 4 * (t & 1)), srd(S_WS)), sFH)
        hmk[t] = a.vm_mark()
    return f


def h_flag(t):
    def f():
        a.wait_vm(hmk[t])
        store('buffer_store_dword v%d, v241, %s, 0 offen offset:%d' % (V_T, srd(S_WS), 256 * t), sFAST)
    return f


def wd_block(fis, wave):
    def f():
        skip = newlab('L_wd')
        a('s_cmp_eq_u32 s24, %d' % wave)
        a('s_cbranch_scc0 %s' % skip)
        for fi in fis:
            a(wd_load(fi))
            a.vm_issued -= 1
        a.label(skip)
    return f


cst_fill = []
for tt in range(2):
    r = CSTR + 8 * tt
    for c_ in range(2):
        cst_fill += ['v_add_f32 v%d, v%d, v%d' % (r + c_, r + c_, r + 2 + c_),
                     'v_add_f32 v%d, v%d, v%d' % (r + 4 + c_, r + 4 + c_, r + 6 + c_),
                     'v_add_f32 v%d, v%d, v%d' % (r + c_, r + c_, r + 4 + c_)]
    cst_fill += xg_reduce(r, r + 2) + xg_reduce(r + 1, r + 3) + stats_finish(r, r + 1, r + 2, True)
a('s_lshl_b32 s%d, s%d, 7' % (sA, sW))
a('v_add_u32 v247, s%d, v246' % sA)
cst_fill += ['ds_write_b64 v247, %s' % vr(CSTR, 2), 'ds_write_b64 v247, %s offset:512' % vr(CSTR + 8, 2)]
LOOKX = 6


A_CCS = 244


def emit_c_loop(wd_list):
    pass0 = bool(wd_list)
    if not pass0:
        for e in range(8):
            a('v_accvgpr_read_b32 v%d, a%d' % (CCS + e, A_CCS + e))
    for u in range(LOOKX):
        a(c_xread(0, u))
    for t in range(8):
        nonvec = {}

        def put(k, x):
            nonvec.setdefault(k, []).append(x)
        for u in range(14):
            n = t * 14 + u
            m = n + LOOKX
            if m < 8 * 14:
                put(2 * u + 1, c_xread(m // 14, m % 14))
            if u % 2 == 1 and n + 1 < 8 * 14:
                put(2 * u + 1, 's_waitcnt lgkmcnt(%d)' % min(LOOKX - 2, 8 * 14 - 1 - (n + 2)))
        if t < 7:
            nonvec[14] = [('bar', t + 1)] + nonvec.get(14, [])
        if t + 2 < 8:
            su = c_dma_setup(t + 2)
            put(0, su[0])
            put(0, su[1])
            for i in range(4):
                put(2 + 2 * i, ('dma', t + 2, i))
        if t >= 3:
            put(20, ('call', h_flag(t - 3)))
        if t < 7:
            for k in (10, 12, 16, 18, 22, 24, 26):
                if wd_list:
                    put(k, wd_load(wd_list.pop(0)))
        if t > 0:
            put(17, 'ds_read_b64 %s, v246 offset:%d' % (vr(CMR + 2 * (t & 1), 2), 128 * t))
        valu = gelu_mid() if t >= 1 else {}
        if t >= 2:
            for x in gelu_post(t - 2):
                a(x)
            h_store(t - 2)()
        if t >= 1:
            for x in gelu_pre(t - 1):
                a(x)
        fill = list(cst_fill) if t == 0 else []
        first = 8
        fi = 0
        for k in range(28):
            u, kk = k >> 1, k & 1
            n = t * 14 + u
            if t == 0 and k == 0:
                a('s_waitcnt lgkmcnt(%d)' % (LOOKX - 2))
            if t == 0 and kk == 0 and u in wlate:
                a.wait_vm(wlate[u])
            if t == 0 and k == first:
                a.wait_vm(cst_mark)
            r = CA[t & 1] + 4 * kk
            a('%s %s, %s, %s, %s' % (MFMA, vr(r), vr(CWW + 4 * (2 * u + kk)), vr(XF + 4 * (n % NXF)), '0' if u == 0 else vr(r)))
            if pass0 and t == 0:
                a('%s %s, %s, %s, %s' % (MFMA, vr(CCS + 4 * kk), vr(CWW + 4 * (2 * u + kk)), ar(A_ONES), '0' if u == 0 else vr(CCS + 4 * kk)))
            for it in nonvec.get(k, []):
                if isinstance(it, str):
                    a(it)
                elif it[0] == 'bar':
                    a.wait_vm(dm[it[1]])
                    a('s_barrier')
                elif it[0] == 'dma':
                    a(c_dma(it[1], it[2]))
                    dm[it[1]] = a.vm_mark()
                elif it[0] == 'call':
                    it[1]()
            for x in valu.get(k, []):
                a(x)
            if fill and k >= first:
                want = -(-(len(fill)) * (k - first + 1) // (28 - first))
                while fi < want:
                    a(fill[fi])
                    fi += 1
        assert fi == len(fill)
        if t == 0:
            a('s_waitcnt lgkmcnt(0)')
            a('s_barrier')
            a('ds_read_b64 %s, v246 offset:0' % vr(CMR, 2))
            if pass0:
                for e in range(8):
                    a('v_accvgpr_write_b32 a%d, v%d' % (A_CCS + e, CCS + e))
            a('s_waitcnt lgkmcnt(0)')
    assert not wd_list


n_before = a.vm_issued
dm_init = dict(dm)
a('s_cmp_eq_u32 s%d, 0' % sPAIR)
a('s_cbranch_scc0 L_c_loop1')
emit_c_loop(list(range(*WD_CH[1])))
a('s_branch L_c_done')
a.label('L_c_loop1')
extra = a.vm_issued - n_before
a.vm_issued = n_before
dm.clear()
dm.update(dm_init)
emit_c_loop([])
a.label('L_c_done')
stamp()
pair_base(sA, L.FC)
a('s_lshl_b32 s%d, s%d, 10' % (sB, sG))
a('s_add_u32 s%d, s%d, s%d' % (sA, sA, sB))
a('s_mul_i32 s%d, s%d, 56' % (sB, sW))
a('s_add_u32 s%d, s%d, s%d' % (sA, sA, sB))
a('v_lshl_add_u32 v243, v0, 2, s%d' % sA)
a('s_mov_b32 s%d, 0x3fff' % sMK2)
a('s_mov_b32 s%d, 0' % (sMK2 + 1))
d0_mark = early_issue(244, 243)
for x in gelu_post(6):
    a(x)
h_store(6)()
a('s_waitcnt lgkmcnt(0)')
gelu_packed(7)
h_flag(5)()
h_store(7)()
stamp()

DH, DACC, DRD, DTMP = 2, 114, 178, 210
DRING, DLOOK = 16, 10
red_addrs()
publish_setup(L.XA[1], L.SA[1], L.FX[1], False, 5)
a('s_and_b32 s%d, s%d, 1' % (sA, sG))
a('s_lshr_b32 s%d, s%d, 1' % (sB, sW))
a('s_and_b32 s%d, s%d, s%d' % (sA, sA, sB))
a('s_xor_b32 s%d, s%d, 1' % (sA, sA))
a('s_and_b32 s%d, s%d, s%d' % (sPC, sFD, sA))
a('s_and_b32 s%d, s%d, s%d' % (sPFC, sFAST, sA))
pair_base(sA, L.H)
a('s_mul_i32 s%d, s%d, %d' % (sB, sG, 4 * 56 * 1024))
a('s_add_u32 s%d, s%d, s%d' % (sA, sA, sB))
a('s_mul_i32 s%d, s%d, %d' % (sB, sW, 14 * 1024))
a('s_add_u32 s%d, s%d, s%d' % (sO, sA, sB))
quarter_offsets(4, 56 * 1024)
a('s_cmp_eq_u32 s%d, 0' % sPAIR)
a('s_cbranch_scc1 L_d_nout')
owner_index()
a('s_mul_i32 s%d, s%d, 14336' % (sPX, sB))
a('s_lshl_b32 s%d, s%d, 6' % (sA, sA))
a('s_add_u32 s%d, s%d, s%d' % (sPX, sPX, sA))
a('s_add_u32 s%d, s%d, %d' % (sPX2, sPX, 2 * 14336))
a.label('L_d_nout')
a('v_and_b32 v%d, 15, v0' % V_TOK)
a('v_lshrrev_b32 v%d, 4, v0' % V_G)
a('v_mul_u32_u24 v242, 896, v%d' % V_TOK)
a('v_lshl_add_u32 v242, v%d, 3, v242' % V_G)
early_check(244, 243, d0_mark)
stamp()


def d_hload(q):
    tile, kk = divmod(q, 14)
    return ('buffer_load_dwordx4 %s, v1, %s, s%d offen offset:%d sc1' %
            (vr(DH + (q % DRING) * 4), srd(S_WS), sO + 4 * tile + (kk >> 2), 1024 * (kk & 3)))


hm = {}
dmk = {}
for q in range(DLOOK):
    a(d_hload(q))
    hm[q] = a.vm_mark()
    if q == 6:
        dmk[1] = early_issue(244, 243, 256)
a('s_barrier')


def d_tile(tile):
    items = []
    for kk in range(14):
        q = tile * 14 + kk
        for t in range(4):
            r = DACC + (tile * 4 + t) * 4
            pre = [(lambda qq=q: a.wait_vm(hm[qq]))] if t == 0 else []
            if t == 0 and q in (3, 9):
                pre.append(h_flag({3: 6, 9: 7}[q]))
            post = None
            if t == 0 and q + DLOOK < 56:
                def post(qq=q + DLOOK):
                    if qq % 14 == 0:
                        early_check(244, 243, dmk[qq // 14], 256 * (qq // 14))
                    a(d_hload(qq))
                    hm[qq] = a.vm_mark()
                    if qq % 14 == 6 and qq // 14 < 3:
                        dmk[qq // 14 + 1] = early_issue(244, 243, 256 * (qq // 14 + 1))
            items.append((pre, '%s %s, %s, %s, %s' % (MFMA, vr(r), ar((kk * 4 + t) * 4), vr(DH + (q % DRING) * 4),
                                                      '0' if kk == 0 else vr(r)), post))
    return items


def d_out_store(st, pk):
    a('buffer_store_dwordx2 %s, v242, %s, s%d offen %s' % (vr(pk, 2), srd(S_OUT), sPX if st == 0 else sPX2, OUTSC))
    a('buffer_store_dwordx2 %s, v242, %s, s%d offen offset:32 %s' % (vr(pk + 2, 2), srd(S_OUT), sPX if st == 0 else sPX2, OUTSC))


def d_store(st, pk):
    fin, done = newlab('L_dfin'), newlab('L_ddone')
    a('s_cmp_eq_u32 s%d, 0' % sPAIR)
    a('s_cbranch_scc0 %s' % fin)
    publish_data(st, pk)
    a('s_branch %s' % done)
    a.label(fin)
    n = a.vm_issued
    d_out_store(st, pk)
    a.vm_issued = n
    a.label(done)


DT0, DT1, DPK = 210, 226, 66
stage0 = [lambda: (a('s_waitcnt lgkmcnt(0)'), a('s_barrier'))] + red_reads(0, DRD) + finish_pre(0, True, DT0)
stage0 += [lambda: a('s_waitcnt lgkmcnt(0)')] + finish_sum(0, DRD, DT0, DPK, False) + [lambda: d_store(0, DPK)]
run_tiles(d_tile, {1: red_writes(DACC, 0), 2: red_writes(DACC + 16, 1), 3: red_writes(DACC + 32, 2) + stage0})
stamp2()
for x in red_writes(DACC + 48, 3):
    a(x)
for x in finish_pre(1, True, DT1):
    a(x)
a('s_waitcnt lgkmcnt(0)')
a('s_barrier')
stamp2()
for x in red_reads(1, DRD):
    a(x)
a('s_waitcnt lgkmcnt(0)')
for x in finish_sum(1, DRD, DT1, DPK + 4, True):
    a(x)
d_store(1, DPK + 4)
stamp()
a('s_cmp_eq_u32 s%d, 0' % sPAIR)
a('s_cbranch_scc0 L_next_pair')
publish_flags(8)
publish_stats([DT0, DT1], 88, 84)
a('s_waitcnt vmcnt(0)')
stats_flags(L.FSA - L.FX[1], 8)
a.label('L_next_pair')
stamp()
a('s_add_u32 s%d, s%d, 1' % (sPAIR, sPAIR))
a('s_cmp_lt_u32 s%d, 2' % sPAIR)
a('s_cbranch_scc1 L_pair')

a('s_cmp_eq_u32 s2, 0')
a('s_cbranch_scc0 L_noepoch')
a('s_cmp_eq_u32 s%d, 0' % sW)
a('s_cbranch_scc0 L_noepoch')
a('buffer_load_dword v2, off, %s, 0 sc1' % srd(S_WS))
a('s_waitcnt vmcnt(0)')
a('v_add_u32 v2, 1, v2')
a('s_mov_b64 exec, 1')
a('buffer_store_dword v2, off, %s, 0 sc1' % srd(S_WS))
a('s_mov_b64 exec, -1')
a.label('L_noepoch')
if PAD:
    a.label('L_padspin')
    a('s_memrealtime s[34:35]')
    a('s_waitcnt lgkmcnt(0)')
    a('s_sub_u32 s34, s34, s0')
    a('s_cmp_lt_u32 s34, %d' % PAD[0])
    a('s_cbranch_scc1 L_padspin')
if DBG:
    a('s_memtime s[32:33]')
    a('s_memrealtime s[34:35]')
    a('s_waitcnt lgkmcnt(0)')
    a('s_sub_u32 s32, s32, s26')
    a('s_sub_u32 s34, s34, s0')
    build_srd(S_TMP, P_DBG, 256)
    a('v_mov_b32 v2, s32')
    a('v_mov_b32 v3, s34')
    a('v_mov_b32 v4, s%d' % sFAST)
    a('v_mov_b32 v5, s%d' % sXCC)
    a('s_lshr_b32 s%d, s2, 6' % sA)
    a('s_lshl_b32 s%d, s%d, 4' % (sA, sA))
    a('s_and_b32 s%d, s2, 63' % sB)
    a('s_or_b32 s%d, s%d, s%d' % (sB, sB, sW))
    a('s_cmp_eq_u32 s%d, 0' % sB)
    a('s_cselect_b32 s%d, s%d, 0x%x' % (sA, sA, INV))
    a('v_mov_b32 v6, s%d' % sA)
    a('s_mov_b64 exec, 1')
    a('buffer_store_dwordx4 v[2:5], v6, %s, 0 offen' % srd(S_TMP))
    a('s_mov_b64 exec, -1')
if DIAG:
    stamp()
    a('s_mov_b32 s%d, 63' % sSTI)
    a('s_lshl_b64 exec, 1, s%d' % sSTI)
    a('v_mov_b32 v%d, s%d' % (V_STAMP, sERR))
    a('s_mov_b32 s%d, 62' % sSTI)
    a('s_lshl_b64 exec, 1, s%d' % sSTI)
    a('v_mov_b32 v%d, s%d' % (V_STAMP, sFAST))
    a('s_mov_b64 exec, -1')
    a('s_lshl_b32 s%d, s2, 2' % sA)
    a('s_add_u32 s%d, s%d, s%d' % (sA, sA, sW))
    a('s_lshl_b32 s%d, s%d, 8' % (sA, sA))
    a('v_lshlrev_b32 v2, 2, v0')
    a('s_add_u32 s%d, s%d, %d' % (sA, sA, L.WS_USED))
    a('s_mov_b32 s%d, 0x%x' % (S_WS + 2, L.WS_USED + 256 * 1024))
    a('buffer_store_dword v%d, v2, %s, s%d offen' % (V_STAMP, srd(S_WS), sA))
    if DBGST:
        build_srd(S_TMP, P_DBG, 256)
        a('v_readfirstlane_b32 s%d, v%d' % (sA, V_STAMP))
        a('s_nop 4')
        a('v_subrev_u32 v3, s%d, v%d' % (sA, V_STAMP))
        a('s_or_b32 s%d, s2, s%d' % (sB, sW))
        a('s_cmp_eq_u32 s%d, 0' % sB)
        a('s_cselect_b32 s%d, 0, 0x%x' % (sB, INV))
        a('v_or_b32 v2, s%d, v2' % sB)
        SEL = [int(x[6:]) for x in sys.argv if x.startswith('--sel=')]
        sel = SEL[0] if SEL else 1
        a('v_subrev_u32 v2, %d, v2' % (4 * sel))
        a('buffer_store_dword v3, v2, %s, 0 offen' % srd(S_TMP))
a.label('L_end')
a('s_endpgm')

a.finalize()
body = a.text()

import os
hdr = open(os.path.join(os.path.dirname(os.path.abspath(__file__)), 'header.txt')).read()
out = hdr + '; @launch grid=(256,1,1) block=(256,1,1) lds=%d\n' % L.LDS_BYTES
out += '.amdgcn_target "amdgcn-amd-amdhsa--gfx950"\n.text\n.globl %s_kernel\n.p2align 8\n.type %s_kernel,@function\n%s_kernel:\n' % (NAME, NAME, NAME)
out += body
out += '''.section .rodata,"a"
.p2align 6
.amdhsa_kernel %s_kernel
  .amdhsa_next_free_vgpr 512
  .amdhsa_next_free_sgpr 102
  .amdhsa_accum_offset 256
  .amdhsa_group_segment_fixed_size 0
  .amdhsa_kernarg_size 88
  .amdhsa_user_sgpr_count 2
  .amdhsa_user_sgpr_kernarg_segment_ptr 1
  .amdhsa_system_sgpr_workgroup_id_x 1
.end_amdhsa_kernel
''' % NAME
sys.stdout.write(out)
```

```python
import struct
import sys
from asmlib import Asm
import layout as L

NAME = 'interleave_layers__sliding_local_dilated__mixer_channel_mlp__prompt'
DIAG = '--diag' in sys.argv
FASTMODE = ([x[7:] for x in sys.argv if x.startswith('--fast=')] + ['flags'])[0]
NOFAST = FASTMODE == 'none'
PAD = [int(x[6:]) for x in sys.argv if x.startswith('--pad=')]
DBG = '--dbg' in sys.argv or bool(PAD)
SPIN_LIMIT = 200000
OUTSC = ([x[8:] for x in sys.argv if x.startswith('--outsc=')] + [''])[0].replace('_', ' ')
SLEEP = int(([x[8:] for x in sys.argv if x.startswith('--sleep=')] + ['0'])[0])
INV = 0x80000000

a = Asm()

sXCC = 3
S_WS, S_TMP, S_B1, S_OUT = 4, 8, 12, 16
P_X, P_WQKV, P_WO, P_BX, P_W1, P_B1, P_W2, P_B2, P_OUT, P_DBG, P_WSP = 20, 22, 24, 26, 28, 30, 32, 34, 36, 38, 40
sS, sC, sG, sJ, sW, sT, sPAIR, sSPIN = 42, 43, 44, 45, 46, 47, 48, 49
sM1 = 50
sM2 = 58
sM0 = 66
sO = 74
sA, sB, sCc, sD = 90, 91, 92, 93
sMK = 94
sTS = 96
sGT = 98
sERR = 99
sSTI = 100
sFAST = 101
sFD = 27
sPFC = 26
sFH = 25


def srd(n):
    return 's[%d:%d]' % (n, n + 3)


def vr(n, k=4):
    return 'v[%d:%d]' % (n, n + k - 1)


def ar(n, k=4):
    return 'a[%d:%d]' % (n, n + k - 1)


def sp(n):
    return 's[%d:%d]' % (n, n + 1)


def f2h(x):
    return '0x%08x' % struct.unpack('<I', struct.pack('<f', x))[0]


V_T, V_STAMP = 254, 255
V_TOK, V_G = 250, 251
MFMA = 'v_mfma_f32_16x16x32_bf16'


DIAG2 = '--diag2' in sys.argv
PREF = '--pref' in sys.argv
TOUCH = '--touch' in sys.argv
P2EARLY = '--p2late' not in sys.argv
SKEW = [int(x[7:]) for x in sys.argv if x.startswith('--skew=')]
DBGST = '--dbgst' in sys.argv


def stamp2():
    if DIAG2:
        stamp()


def stamp():
    if not DIAG:
        return
    a('s_memtime %s' % sp(sTS))
    a('s_waitcnt lgkmcnt(0)')
    a('s_lshl_b64 exec, 1, s%d' % sSTI)
    a('v_mov_b32 v%d, s%d' % (V_STAMP, sTS))
    a('s_mov_b64 exec, -1')
    a('s_add_u32 s%d, s%d, 1' % (sSTI, sSTI))


lab_no = [0]


def newlab(p):
    lab_no[0] += 1
    return '%s_%d' % (p, lab_no[0])


def skew_store(point, have=False):
    if not SKEW or SKEW[0] != point:
        return
    if not have:
        a('s_memrealtime s[96:97]')
        a('s_waitcnt lgkmcnt(0)')
    build_srd(S_TMP, P_DBG, 256)
    a('s_and_b32 s%d, s2, 15' % sA)
    a('s_or_b32 s%d, s%d, s%d' % (sA, sA, sW))
    a('s_cmp_eq_u32 s%d, 0' % sA)
    a('s_cselect_b32 s%d, 0, 0x%x' % (sA, INV))
    a('s_lshr_b32 s%d, s2, 2' % sB)
    a('s_or_b32 s%d, s%d, s%d' % (sA, sA, sB))
    a('v_mov_b32 v21, s%d' % sA)
    a('v_mov_b32 v22, s96')
    a('s_mov_b64 exec, 1')
    a('buffer_store_dword v22, v21, %s, 0 offen' % srd(S_TMP))
    a.vm_issued -= 1
    a('s_mov_b64 exec, -1')


def build_srd(dst, ptr, nbytes):
    a('s_mov_b32 s%d, s%d' % (dst, ptr))
    a('s_and_b32 s%d, s%d, 0xffff' % (dst + 1, ptr + 1))
    a('s_mov_b32 s%d, 0x%x' % (dst + 2, nbytes))
    a('s_mov_b32 s%d, 0x20000' % (dst + 3))


def poll(voff, off2=None):
    lab, done = newlab('L_poll'), newlab('L_polldone')
    a('s_mov_b64 exec, %s' % sp(sMK))
    a('s_mov_b32 s%d, 0' % sSPIN)
    a.label(lab)
    a('buffer_load_dword v253, v%d, %s, 0 offen sc1' % (voff, srd(S_WS)))
    if off2 is not None:
        a('buffer_load_dword v245, v%d, %s, 0 offen offset:%d sc1' % (voff, srd(S_WS), off2))
    a('s_waitcnt vmcnt(0)')
    if off2 is not None:
        a('v_xor_b32 v245, s%d, v245' % sT)
        a('v_xor_b32 v253, s%d, v253' % sT)
        a('v_or_b32 v253, v253, v245')
        a('v_cmp_ne_u32 vcc, 0, v253')
    else:
        a('v_cmp_ne_u32 vcc, s%d, v253' % sT)
    a('s_nop 4')
    a('s_cbranch_vccz %s' % done)
    if SLEEP:
        a('s_sleep %d' % SLEEP)
    a('s_add_u32 s%d, s%d, 1' % (sSPIN, sSPIN))
    a('s_cmp_lt_u32 s%d, %d' % (sSPIN, SPIN_LIMIT))
    a('s_cbranch_scc1 %s' % lab)
    a('s_add_u32 s%d, s%d, 1' % (sERR, sERR))
    a.label(done)
    a('s_mov_b64 exec, -1')


sMK2 = 30


def early_issue(dst, voff, off=0):
    a('s_mov_b64 exec, %s' % sp(sMK2))
    a('buffer_load_dword v%d, v%d, %s, 0 offen offset:%d sc1' % (dst, voff, srd(S_WS), off))
    a('s_mov_b64 exec, -1')
    return a.vm_mark()


def early_check(dst, voff, mark, off=0):
    ok = newlab('L_early')
    a.wait_vm(mark)
    a('s_mov_b64 exec, %s' % sp(sMK2))
    a('v_cmp_ne_u32 vcc, s%d, v%d' % (sT, dst))
    a('s_mov_b64 exec, -1')
    a('s_nop 2')
    a('s_cbranch_vccz %s' % ok)
    a('s_mov_b64 %s, %s' % (sp(sMK), sp(sMK2)))
    n = a.vm_issued
    if off:
        a('v_add_u32 v253, %d, v%d' % (off, voff))
        a('v_mov_b32 v%d, v253' % dst)
        poll(dst)
    else:
        poll(voff)
    a.vm_issued = n
    a.label(ok)


def store(fmt, cond=None):
    if cond is None or NOFAST or (FASTMODE == 'flags' and cond in (sFD, sFH, sPC)):
        a(fmt + ' sc1')
        return
    slow, done = newlab('L_slow'), newlab('L_st')
    a('s_cmp_eq_u32 s%d, 0' % cond)
    a('s_cbranch_scc1 %s' % slow)
    a(fmt)
    a('s_branch %s' % done)
    a.label(slow)
    a(fmt + ' sc1')
    a.vm_issued -= 1
    a.label(done)


def set_flags(voff, nlanes, cond=None, val=V_T, between=()):
    mark = a.vm_mark()
    for x in between:
        a(x)
    a.wait_vm(mark)
    a('s_mov_b64 exec, %d' % ((1 << nlanes) - 1))
    store('buffer_store_dword v%d, v%d, %s, 0 offen' % (val, voff, srd(S_WS)), cond)
    a('s_mov_b64 exec, -1')


def xg_reduce(x, t, op='v_add_f32'):
    return ['v_mov_b32 v%d, v%d' % (t, x),
            'v_permlane32_swap_b32 v%d, v%d' % (x, t),
            '%s v%d, v%d, v%d' % (op, x, x, t),
            'v_mov_b32 v%d, v%d' % (t, x),
            'v_permlane16_swap_b32 v%d, v%d' % (x, t),
            '%s v%d, v%d, v%d' % (op, x, x, t)]


EPS = 1e-5


def stats_finish(s1, s2, t, double_ln):
    o = ['v_mul_f32 v%d, %s, v%d' % (s1, f2h(1.0 / 448), s1),
         'v_mul_f32 v%d, %s, v%d' % (s2, f2h(1.0 / 448), s2),
         'v_fma_f32 v%d, -v%d, v%d, v%d' % (s2, s1, s1, s2),
         'v_max_f32 v%d, 0, v%d' % (s2, s2),
         'v_add_f32 v%d, %s, v%d' % (t, f2h(EPS), s2),
         'v_rsq_f32 v%d, v%d' % (t, t)]
    if not double_ln:
        o += ['v_mov_b32 v%d, v%d' % (s2, t)]
    else:
        o += ['v_mul_f32 v%d, v%d, v%d' % (s2, s2, t),
              'v_fmaak_f32 v%d, v%d, v%d, %s' % (s2, s2, t, f2h(EPS)),
              'v_rsq_f32 v%d, v%d' % (s2, s2),
              'v_mul_f32 v%d, v%d, v%d' % (s2, s2, t)]
    return o


def pair_base(dst, arr):
    a('s_mul_i32 s%d, s%d, %d' % (dst, sPAIR, arr[1] - arr[0]))
    a('s_add_u32 s%d, s%d, %d' % (dst, dst, arr[0]))


def quarter_offsets(n, stride):
    for t in range(n):
        if t:
            a('s_add_u32 s%d, s%d, %d' % (sO + 4 * t, sO + 4 * (t - 1), stride))
        for q in range(1, 4):
            a('s_add_u32 s%d, s%d, %d' % (sO + 4 * t + q, sO + 4 * t, 4096 * q))


sPX, sPS, sPF, sPC, sPX2 = 36, 37, 28, 29, 33


def stats_flags(delta, lsh):
    a('v_lshlrev_b32 v241, %d, v0' % lsh)
    a('s_add_u32 s%d, s%d, %d' % (sA, sPF, delta))
    a('v_add_u32 v241, s%d, v241' % sA)
    a('s_mov_b64 exec, 3')
    store('buffer_store_dword v%d, v241, %s, 0 offen' % (V_T, srd(S_WS)), sPFC)
    a('s_mov_b64 exec, -1')


a('s_cmp_ge_u32 s2, 256')
a('s_cbranch_scc1 L_end')
a('s_load_dwordx16 s[20:35], s[0:1], 0')
a('s_load_dwordx4 s[36:39], s[0:1], 64')
a('s_load_dwordx2 s[40:41], s[0:1], 80')
a('s_getreg_b32 s%d, hwreg(HW_REG_XCC_ID, 0, 4)' % sXCC)
a('s_and_b32 s%d, s2, 7' % sA)
a('s_lshr_b32 s%d, s2, 3' % sB)
a('s_lshr_b32 s%d, s%d, 4' % (sCc, sB))
a('s_lshl_b32 s%d, s%d, 1' % (sS, sA))
a('s_add_u32 s%d, s%d, s%d' % (sS, sS, sCc))
a('s_and_b32 s%d, s%d, 15' % (sC, sB))
a('s_lshr_b32 s%d, s%d, 3' % (sA, sC))
a('s_lshl_b32 s%d, s%d, 1' % (sG, sS))
a('s_add_u32 s%d, s%d, s%d' % (sG, sG, sA))
a('s_and_b32 s%d, s%d, 7' % (sJ, sC))
a('s_mov_b32 s%d, 0' % sERR)
if SKEW and SKEW[0] == 0:
    a('s_memrealtime s[96:97]')
if PREF:
    a('s_getpc_b64 s[96:97]')
    a.label('L_pc')
    a('s_lshl_b32 s%d, s%d, 11' % (sA, sB))
    a('v_lshlrev_b32 v3, 3, v0')
    a('v_add_u32 v3, s%d, v3' % sA)
    a('v_min_u32 v3, L_end-L_pc-8, v3')
    a('global_load_dwordx2 v[252:253], v3, s[96:97]')
a('v_lshrrev_b32 v2, 6, v0')
a('v_and_b32 v0, 63, v0')
a('v_readfirstlane_b32 s%d, v2' % sW)
a('v_lshlrev_b32 v1, 4, v0')
if DIAG:
    a('v_mov_b32 v%d, 0' % V_STAMP)
    a('s_mov_b32 s%d, 0' % sSTI)
stamp()
a('v_and_b32 v%d, 15, v0' % V_TOK)
a('v_lshrrev_b32 v%d, 4, v0' % V_G)
sSTG = 40
a('s_waitcnt lgkmcnt(0)')
if DBG:
    a('s_memtime s[26:27]')
    a('s_memrealtime s[0:1]')
    a('s_waitcnt lgkmcnt(0)')
skew_store(0, True)
build_srd(S_WS, P_WSP, L.WS_USED)
a('buffer_load_dword v%d, off, %s, 0 sc1' % (V_T, srd(S_WS)))
a('s_lshl_b32 s%d, s%d, 14' % (sSTG, sW))
a('s_add_u32 s%d, s%d, %d' % (sSTG, sSTG, L.L_R2))

build_srd(S_TMP, P_X, 2048 * 896)
a('v_mul_u32_u24 v2, 896, v%d' % V_TOK)
a('v_lshl_add_u32 v2, v%d, 3, v2' % V_G)
a('s_lshr_b32 s%d, s%d, 1' % (sA, sC))
a('s_lshl_b32 s%d, s%d, 3' % (sB, sS))
a('s_add_u32 s%d, s%d, s%d' % (sO + 0, sA, sB))
a('s_and_b32 s%d, s%d, 1' % (sA, sC))
a('s_mul_i32 s%d, s%d, 7' % (sA, sA))
a('s_add_u32 s%d, s%d, s%d' % (sO + 1, sA, sW))
a('s_cmp_lt_u32 s%d, 3' % sW)
a('s_cselect_b32 s%d, 0, 0x%x' % (sO + 2, INV))
a('s_mul_i32 s%d, s%d, 14336' % (sA, sO + 0))
a('s_lshl_b32 s%d, s%d, 6' % (sB, sO + 1))
a('s_add_u32 s%d, s%d, s%d' % (sA, sA, sB))
a('v_or_b32 v3, s%d, v2' % (sO + 2))
a('buffer_load_dwordx2 v[10:11], v2, %s, s%d offen' % (srd(S_TMP), sA))
a('buffer_load_dwordx2 v[12:13], v2, %s, s%d offen offset:32' % (srd(S_TMP), sA))
a('buffer_load_dwordx2 v[14:15], v3, %s, s%d offen offset:256' % (srd(S_TMP), sA))
a('buffer_load_dwordx2 v[16:17], v3, %s, s%d offen offset:288' % (srd(S_TMP), sA))

build_srd(S_TMP, P_WQKV, 448 * 2688)
qMAT, qU, qINV = sO + 3, sO + 4, sO + 5
a('s_lshl_b32 s%d, s%d, 4' % (sA, sW))
a('s_add_u32 s%d, s%d, s%d' % (sA, sA, sS))
a('s_cmp_lt_u32 s%d, 42' % sA)
a('s_cselect_b32 s%d, 0, 0x%x' % (qINV, INV))
a('s_min_u32 s%d, s%d, 41' % (sA, sA))
a('s_mul_i32 s%d, s%d, 4682' % (qMAT, sA))
a('s_lshr_b32 s%d, s%d, 16' % (qMAT, qMAT))
a('s_mul_i32 s%d, s%d, 14' % (sB, qMAT))
a('s_sub_u32 s%d, s%d, s%d' % (qU, sA, sB))
a('s_mul_i32 s%d, s%d, %d' % (sA, qU, 32 * 2688))
a('s_mul_i32 s%d, s%d, 896' % (sB, qMAT))
a('s_add_u32 s%d, s%d, s%d' % (sA, sA, sB))
a('s_mul_i32 s%d, s%d, 56' % (sB, sC))
a('s_add_u32 s%d, s%d, s%d' % (sA, sA, sB))
a('v_lshrrev_b32 v4, 2, v0')
a('v_mul_u32_u24 v4, 2688, v4')
a('v_and_b32 v5, 3, v0')
a('v_lshl_add_u32 v4, v5, 4, v4')
a('v_or_b32 v4, s%d, v4' % qINV)
a('s_mov_b32 m0, s%d' % sSTG)
a('s_add_u32 s%d, s%d, %d' % (sB, sA, 16 * 2688))
a('buffer_load_dwordx4 v4, %s, s%d offen lds' % (srd(S_TMP), sA))
a('s_add_u32 m0, s%d, 1024' % sSTG)
a('s_nop 0')
a('buffer_load_dwordx4 v4, %s, s%d offen lds' % (srd(S_TMP), sB))

bINV, bDST, bSTR, bINV2, bDST2, sSTRD = 20, 21, 22, 23, 24, 25


def emit_p2_issue():
    a('s_cmp_eq_u32 s%d, 3' % sW)
    a('s_cbranch_scc1 L_p2_w1')
    a('s_lshl_b32 s%d, s%d, 5' % (sA, sW))
    a('s_add_u32 s%d, s%d, s%d' % (sA, sA, sG))
    a('s_cmp_lt_u32 s%d, 72' % sA)
    a('s_cselect_b32 s%d, 0, 0x%x' % (bINV, INV))
    a('s_cmp_eq_u32 s%d, 7' % sJ)
    a('s_cselect_b32 s%d, 0x%x, s%d' % (bINV, INV, bINV))
    a('s_min_u32 s%d, s%d, 71' % (sA, sA))
    a('s_min_u32 s%d, s%d, 6' % (sD, sJ))
    a('s_cmp_lt_u32 s%d, 16' % sA)
    a('s_cselect_b32 s%d, s%d, s%d' % (S_TMP, P_WO, P_W2))
    a('s_cselect_b32 s%d, s%d, s%d' % (S_TMP + 1, P_WO + 1, P_W2 + 1))
    a('s_mov_b32 s%d, 0x%x' % (S_TMP + 2, 1792 * 896))
    a('s_cselect_b32 s%d, 0x%x, s%d' % (S_TMP + 2, 448 * 896, S_TMP + 2))
    a('s_cselect_b32 s%d, 28, 32' % sB)
    a('s_cselect_b32 s%d, 0, 16' % sCc)
    a('s_mov_b32 s%d, %d' % (bSTR, 56 * 1024))
    a('s_cselect_b32 s%d, %d, s%d' % (bSTR, 16 * 1024, bSTR))
    a('s_mov_b32 s%d, %d' % (bDST, L.WD))
    a('s_cselect_b32 s%d, %d, s%d' % (bDST, L.WB, bDST))
    a('s_cselect_b32 s%d, 0x%x, 0' % (sO + 9, INV))
    a('s_and_b32 s%d, s%d, 0xffff' % (S_TMP + 1, S_TMP + 1))
    a('s_mov_b32 s%d, 0x20000' % (S_TMP + 3))
    a('s_sub_u32 s%d, s%d, s%d' % (sA, sA, sCc))
    a('s_lshl_b32 s%d, s%d, 10' % (sCc, sA))
    a('s_add_u32 s%d, s%d, s%d' % (bDST, bDST, sCc))
    a('s_lshl_b32 s%d, s%d, 2' % (sCc, sD))
    a('s_mul_i32 s%d, s%d, s%d' % (sCc, sCc, bSTR))
    a('s_add_u32 s%d, s%d, s%d' % (bDST, bDST, sCc))
    a('s_mul_i32 s%d, s%d, s%d' % (sA, sA, sB))
    a('s_mul_i32 s%d, s%d, 896' % (sA, sA))
    a('s_lshl_b32 s%d, s%d, 7' % (sB, sD))
    a('s_add_u32 s%d, s%d, s%d' % (sO + 10, sA, sB))
    a('s_mov_b32 s%d, 896' % sSTRD)
    a('s_mov_b32 s%d, 0x%x' % (bINV2, INV))
    a('s_mov_b32 s%d, 0' % bDST2)
    a('s_mov_b32 s%d, 0' % (sO + 11))
    a('s_branch L_p2_go')
    a.label('L_p2_w1')
    build_srd(S_TMP, P_W1, 448 * 3584)
    a('s_lshl_b32 s%d, s%d, 4' % (sA, sS))
    a('s_add_u32 s%d, s%d, s%d' % (sA, sA, sC))
    a('s_cmp_lt_u32 s%d, 136' % sA)
    a('s_cselect_b32 s%d, 0, 0x%x' % (bINV2, INV))
    a('s_mov_b32 s%d, 0' % bINV)
    a('s_mov_b32 s%d, 0' % (sO + 9))
    a('s_mov_b32 s%d, %d' % (bSTR, 14 * 1024))
    a('s_mov_b32 s%d, 3584' % sSTRD)
    for dst, src, add in ((bDST, sO + 10, 0), (bDST2, sO + 11, 256)):
        a('s_add_u32 s%d, s%d, %d' % (sB, sA, add))
        a('s_min_u32 s%d, s%d, 391' % (sB, sB))
        a('s_mul_i32 s%d, s%d, 4682' % (sCc, sB))
        a('s_lshr_b32 s%d, s%d, 16' % (sCc, sCc))
        a('s_mul_i32 s%d, s%d, 14' % (sD, sCc))
        a('s_sub_u32 s%d, s%d, s%d' % (sB, sB, sD))
        a('s_mul_i32 s%d, s%d, %d' % (src, sB, 32 * 3584))
        a('s_lshl_b32 s%d, s%d, 7' % (sD, sCc))
        a('s_add_u32 s%d, s%d, s%d' % (src, src, sD))
        a('s_mul_i32 s%d, s%d, 56' % (sD, sCc))
        a('s_add_u32 s%d, s%d, s%d' % (sD, sD, sB))
        a('s_lshl_b32 s%d, s%d, 10' % (sD, sD))
        a('s_add_u32 s%d, s%d, %d' % (dst, sD, L.WC))
    a.label('L_p2_go')
    a('v_lshrrev_b32 v6, 3, v0')
    a('v_mul_lo_u32 v6, v6, s%d' % sSTRD)
    a('v_and_b32 v5, 7, v0')
    a('v_lshl_add_u32 v6, v5, 4, v6')
    a('v_or_b32 v8, s%d, v6' % bINV2)
    a('v_or_b32 v6, s%d, v6' % bINV)
    a('v_cmp_lt_u32 vcc, 31, v0')
    a('v_mov_b32 v7, s%d' % (sO + 9))
    a('v_cndmask_b32 v7, 0, v7, vcc')
    a('v_or_b32 v7, v7, v6')
    a('s_lshl_b32 s%d, s%d, 3' % (sB, sSTRD))
    for slot in range(2):
        src = sO + 10 + slot
        for q in range(4):
            a('s_add_u32 m0, s%d, %d' % (sSTG, 2048 + 4096 * slot + 1024 * q))
            if q:
                a('s_add_u32 s%d, s%d, s%d' % (src, src, sB))
            else:
                a('s_nop 0')
            a('buffer_load_dwordx4 v%d, %s, s%d offen lds' % (8 if slot else (7 if q == 3 else 6), srd(S_TMP), src))


if P2EARLY:
    emit_p2_issue()
build_srd(S_B1, P_B1, 1792 * 2)
build_srd(S_OUT, P_OUT, 2048 * 896)
a('v_bfe_u32 v18, v0, 2, 2')
a('v_lshl_add_u32 v18, v%d, 2, v18' % V_G)
a('v_and_b32 v19, 3, v0')
a('v_lshlrev_b32 v19, 3, v19')
if TOUCH:
    a('v_lshlrev_b32 v21, 21, v0')
    a('s_mov_b64 exec, 0x1ffff')
    a('buffer_load_dword v253, v21, %s, 0 offen' % srd(S_WS))
    a('s_mov_b64 exec, -1')
    a('s_waitcnt vmcnt(%d)' % (9 if P2EARLY else 1))
else:
    a('s_waitcnt vmcnt(%d)' % (8 if P2EARLY else 0))
stamp()

a('s_mov_b32 s%d, 0x9E3779B1' % sA)
a('v_mul_lo_u32 v%d, v%d, s%d' % (V_T, V_T, sA))
a('v_add_u32 v%d, 0x7F4A7C15, v%d' % (V_T, V_T))
a('v_and_b32 v%d, -16, v%d' % (V_T, V_T))
a('v_lshl_add_u32 v20, v18, 6, v19')
a('v_add_u32 v20, s%d, v20' % sSTG)
for hf in range(2):
    a('ds_read_b64_tr_b16 %s, v20 offset:%d' % (vr(24 + 4 * hf, 2), 32 * hf))
    a('ds_read_b64_tr_b16 %s, v20 offset:%d' % (vr(26 + 4 * hf, 2), 32 * hf + 1024))
a('v_readfirstlane_b32 s%d, v%d' % (sT, V_T))
a('s_mul_i32 s%d, s%d, 14' % (sA, sO + 0))
a('s_add_u32 s%d, s%d, s%d' % (sA, sA, sO + 1))
a('s_lshl_b32 s%d, s%d, 10' % (sB, sA))
a('s_add_u32 s%d, s%d, %d' % (sB, sB, L.XA[0]))
a('v_or_b32 v3, s%d, v1' % (sO + 2))
a('buffer_store_dwordx4 v[10:13], v1, %s, s%d offen sc1' % (srd(S_WS), sB))
a('s_add_u32 s%d, s%d, 4096' % (sB, sB))
a('buffer_store_dwordx4 v[14:17], v3, %s, s%d offen sc1' % (srd(S_WS), sB))
a('v_cmp_gt_u32 vcc, 12, v%d' % V_TOK)
a('s_mul_i32 s%d, s%d, 84' % (sB, sC))
a('s_mul_i32 s%d, s%d, 28' % (sCc, qMAT))
a('s_add_u32 s%d, s%d, s%d' % (sB, sB, sCc))
a('s_add_u32 s%d, s%d, s%d' % (sB, sB, qU))
a('s_lshl_b32 s%d, s%d, 10' % (sB, sB))
a('s_add_u32 s%d, s%d, %d' % (sB, sB, L.WA))
a('v_or_b32 v4, s%d, v1' % qINV)
a('s_waitcnt lgkmcnt(0)')
for p in range(4):
    a('v_cndmask_b32 v%d, 0, v%d, vcc' % (28 + p, 28 + p))
a('buffer_store_dwordx4 v[24:27], v4, %s, s%d offen sc1' % (srd(S_WS), sB))
a('s_add_u32 s%d, s%d, %d' % (sB, sB, 14 * 1024))
a('buffer_store_dwordx4 v[28:31], v4, %s, s%d offen sc1' % (srd(S_WS), sB))
a('v_mov_b32 v2, 0x3f803f80')
for k in range(2):
    x, s1, s2 = 10 + 4 * k, 110 + 2 * k, 111 + 2 * k
    a('v_mov_b32 v%d, 0' % s1)
    a('v_mov_b32 v%d, 0' % s2)
    for p in range(4):
        a('v_dot2_f32_bf16 v%d, v%d, v2, v%d' % (s1, x + p, s1))
        a('v_dot2_f32_bf16 v%d, v%d, v%d, v%d' % (s2, x + p, x + p, s2))
    for t in xg_reduce(s1, 114) + xg_reduce(s2, 115):
        a(t)
a('s_lshl_b32 s%d, s%d, 7' % (sB, sA))
a('s_add_u32 s%d, s%d, %d' % (sB, sB, L.SA[0]))
a('v_lshlrev_b32 v2, 3, v%d' % V_TOK)
a('v_or_b32 v3, s%d, v2' % (sO + 2))
a('s_mov_b64 exec, 0xffff')
a('buffer_store_dwordx2 v[110:111], v2, %s, s%d offen sc1' % (srd(S_WS), sB))
a('buffer_store_dwordx2 v[112:113], v3, %s, s%d offen offset:512 sc1' % (srd(S_WS), sB))
a('s_mov_b64 exec, -1')
crit_mark = a.vm_mark()
if not P2EARLY:
    emit_p2_issue()
a('s_lshl_b32 s%d, s%d, 5' % (sA, sO + 0))
a('s_add_u32 s%d, s%d, s%d' % (sA, sA, sO + 1))
a('s_lshl_b32 s%d, s%d, 2' % (sA, sA))
a('s_add_u32 s%d, s%d, %d' % (sA, sA, L.FX[0]))
a('v_lshlrev_b32 v2, 4, v0')
a('v_add_u32 v2, s%d, v2' % sA)
a('v_cmp_eq_u32 vcc, 1, v0')
a('v_mov_b32 v3, s%d' % (sO + 2))
a('v_cndmask_b32 v3, 0, v3, vcc')
a('v_or_b32 v2, v2, v3')
a('s_lshl_b32 s%d, s%d, 6' % (sA, sC))
a('s_lshl_b32 s%d, s%d, 2' % (sB, sS))
a('s_add_u32 s%d, s%d, s%d' % (sA, sA, sB))
a('s_add_u32 s%d, s%d, s%d' % (sA, sA, sW))
a('s_lshl_b32 s%d, s%d, 2' % (sA, sA))
a('s_add_u32 s%d, s%d, %d' % (sA, sA, L.FQ))
a('v_mov_b32 v3, s%d' % sA)
a('v_cmp_eq_u32 vcc, 2, v0')
a('v_cndmask_b32 v2, v2, v3, vcc')
a('s_lshl_b32 s%d, s%d, 4' % (sA, sS))
a('s_add_u32 s%d, s%d, s%d' % (sA, sA, sC))
a('s_lshl_b32 s%d, s%d, 2' % (sA, sA))
a('s_add_u32 s%d, s%d, %d' % (sA, sA, L.FXC))
a('s_cmp_eq_u32 s%d, 0' % sW)
a('s_cselect_b32 s%d, s%d, 0x%x' % (sA, sA, INV))
a('v_mov_b32 v3, s%d' % sA)
a('v_cmp_eq_u32 vcc, 3, v0')
a('v_cndmask_b32 v2, v2, v3, vcc')
a('v_or_b32 v3, s%d, v%d' % (sXCC, V_T))
a('v_cndmask_b32 v3, v%d, v3, vcc' % V_T)
stamp2()
a.wait_vm(crit_mark)
a('s_mov_b64 exec, 15')
a('buffer_store_dword v3, v2, %s, 0 offen sc1' % srd(S_WS))
a('s_mov_b64 exec, -1')
stamp()

skew_store(1)
a('s_waitcnt vmcnt(1)')
a('v_lshl_add_u32 v20, v18, 7, v19')
a('v_add_u32 v20, s%d, v20' % sSTG)
for slot in range(2):
    for t in range(4):
        a('ds_read_b64_tr_b16 %s, v20 offset:%d' % (vr(24 + 16 * slot + 4 * t, 2), 2048 + 4096 * slot + 32 * t))
        a('ds_read_b64_tr_b16 %s, v20 offset:%d' % (vr(26 + 16 * slot + 4 * t, 2), 2048 + 4096 * slot + 32 * t + 2048))
a('v_or_b32 v6, s%d, v1' % bINV)
a('v_or_b32 v8, s%d, v1' % bINV2)
a('s_waitcnt lgkmcnt(8)')
for t in range(4):
    a('buffer_store_dwordx4 %s, v6, %s, s%d offen sc1' % (vr(24 + 4 * t), srd(S_WS), bDST))
    if t < 3:
        a('s_add_u32 s%d, s%d, s%d' % (bDST, bDST, bSTR))
a('s_waitcnt lgkmcnt(0)')
for t in range(4):
    a('buffer_store_dwordx4 %s, v8, %s, s%d offen sc1' % (vr(40 + 4 * t), srd(S_WS), bDST2))
    if t < 3:
        a('s_add_u32 s%d, s%d, s%d' % (bDST2, bDST2, bSTR))
a('s_lshl_b32 s%d, s%d, 4' % (sA, sS))
a('s_add_u32 s%d, s%d, s%d' % (sA, sA, sC))
a('s_lshl_b32 s%d, s%d, 2' % (sA, sA))
a('s_add_u32 s%d, s%d, %d' % (sA, sA, L.FW1))
a('v_lshlrev_b32 v22, 10, v0')
a('v_add_u32 v22, s%d, v22' % sA)
a('v_cmp_eq_u32 vcc, 1, v0')
a('v_mov_b32 v23, s%d' % bINV2)
a('v_cndmask_b32 v23, 0, v23, vcc')
a('v_or_b32 v22, v22, v23')
a('s_cmp_eq_u32 s%d, 3' % sW)
a('s_cselect_b32 s%d, 0, 0x%x' % (sA, INV))
a('v_or_b32 v22, s%d, v22' % sA)

skew_store(3)
a('v_and_b32 v2, 1, v%d' % V_TOK)
a('v_lshlrev_b32 v3, 2, v%d' % V_G)
a('v_add_u32 v6, 2, v%d' % V_TOK)
for i in range(4):
    a('v_add_u32 v4, %d, v3' % i)
    a('v_cmp_eq_u32 vcc, %d, v2' % (i & 1))
    a('s_mov_b64 %s, vcc' % sp(sMK))
    a('v_cmp_ge_u32 vcc, v4, v6')
    a('s_and_b64 %s, vcc, %s' % (sp(sM1 + 2 * i), sp(sMK)))
    a('v_cmp_le_u32 vcc, v4, v%d' % V_TOK)
    a('s_and_b64 %s, vcc, %s' % (sp(sM2 + 2 * i), sp(sMK)))
a('s_lshl_b32 s%d, s%d, 3' % (sA, sS))
a('s_lshl_b32 s%d, s%d, 1' % (sB, sW))
a('s_add_u32 s%d, s%d, s%d' % (sGT, sA, sB))
a('s_cmp_eq_u32 s%d, 0' % sGT)
for i in range(4):
    a('s_cselect_b64 %s, 0, %s' % (sp(sM0 + 2 * i), sp(sM1 + 2 * i)))
a('s_mov_b32 s%d, 0' % sPAIR)

def a_flag_addr(dst):
    pair_base(sA, L.FX)
    a('s_lshl_b32 s%d, s%d, 7' % (sB, sGT))
    a('s_add_u32 s%d, s%d, s%d' % (sA, sA, sB))
    a('s_sub_u32 s%d, s%d, 128' % (sA, sA))
    a('v_and_b32 v%d, 48, v0' % dst)
    a('v_add_u32 v%d, v%d, v0' % (dst, dst))
    a('v_lshl_add_u32 v%d, v%d, 2, s%d' % (dst, dst, sA))
    a('s_mov_b32 s%d, 0x3fff3fff' % sMK)
    a('s_mov_b32 s%d, 0x3fff' % (sMK + 1))
    a('s_cmp_eq_u32 s%d, 0' % sGT)
    a('s_cselect_b32 s%d, 0x3fff0000, s%d' % (sMK, sMK))


a('s_lshl_b32 s%d, s%d, 8' % (sA, sC))
a('s_add_u32 s%d, s%d, %d' % (sA, sA, L.FQ))
a('v_lshl_add_u32 v2, v0, 2, s%d' % sA)
a_flag_addr(3)
a('s_lshl_b32 s%d, s%d, 6' % (sA, sS))
a('s_add_u32 s%d, s%d, %d' % (sA, sA, L.FXC - 48 * 4))
a('v_lshl_add_u32 v4, v0, 2, s%d' % sA)
a('v_cmp_lt_u32 vcc, 47, v0')
a('v_cndmask_b32 v3, v3, v4, vcc')
a('v_mov_b32 v5, -1')
a('v_mov_b32 v6, -16')
a('v_cndmask_b32 v5, v5, v6, vcc')
a('s_or_b32 s%d, s%d, 0xffff0000' % (sMK + 1, sMK + 1))
a('s_mov_b32 s%d, 0' % sSPIN)
a.label('L_poll0')
a('buffer_load_dword v7, v2, %s, 0 offen sc1' % srd(S_WS))
a('s_mov_b64 exec, %s' % sp(sMK))
a('buffer_load_dword v8, v3, %s, 0 offen sc1' % srd(S_WS))
a('s_waitcnt vmcnt(0)')
a('v_and_b32 v9, v5, v8')
a('v_cmp_ne_u32 vcc, s%d, v9' % sT)
a('s_mov_b64 exec, -1')
a('s_mov_b64 %s, vcc' % sp(sTS))
a('v_cmp_ne_u32 vcc, s%d, v7' % sT)
a('s_or_b64 vcc, vcc, %s' % sp(sTS))
a('s_cbranch_vccz L_poll0_done')
a('s_add_u32 s%d, s%d, 1' % (sSPIN, sSPIN))
a('s_cmp_lt_u32 s%d, %d' % (sSPIN, SPIN_LIMIT))
a('s_cbranch_scc1 L_poll0')
a('s_add_u32 s%d, s%d, 1' % (sERR, sERR))
a.label('L_poll0_done')
a('s_mov_b64 exec, 3')
a('buffer_store_dword v%d, v22, %s, 0 offen sc1' % (V_T, srd(S_WS)))
a('s_mov_b64 exec, -1')
skew_store(2)
a('v_and_b32 v9, 15, v8')
a('v_cmp_ne_u32 vcc, s%d, v9' % sXCC)
a('s_and_b32 s%d, vcc_hi, 0xffff0000' % sA)
a('s_cmp_eq_u32 s%d, 0' % sA)
a('s_cselect_b32 s%d, 1, 0' % sFAST)
stamp()
AQ, AK, AV = 2, 18, 42
WBUF = [66, 90]
XR = 114
CSACC = 186
STR = 210
SM, SR = 234, 237
NR, LOOK = 6, 4
A_ONES = 240


def a_xload(u):
    slot = u % NR
    return ['buffer_load_dwordx4 %s, v1, %s, s%d offen offset:%d sc1' %
            (vr(XR + (slot * 3 + t) * 4), srd(S_WS), sO + 4 * t + (u >> 2), 1024 * (u & 3)) for t in range(3)]


def a_offsets():
    pair_base(sA, L.XA)
    a('s_mul_i32 s%d, s%d, 14336' % (sB, sGT))
    a('s_add_u32 s%d, s%d, s%d' % (sO + 4, sA, sB))
    a('s_add_u32 s%d, s%d, 14336' % (sO + 8, sO + 4))
    a('s_sub_u32 s%d, s%d, 14336' % (sO + 0, sO + 4))
    a('s_cmp_eq_u32 s%d, 0' % sGT)
    a('s_cselect_b32 s%d, s%d, s%d' % (sO + 0, sO + 4, sO + 0))
    for t in range(3):
        for q in range(1, 4):
            a('s_add_u32 s%d, s%d, %d' % (sO + 4 * t + q, sO + 4 * t, 4096 * q))


def a_setup():
    if FASTMODE == 'flags':
        a('s_mov_b32 s%d, 0' % sFD)
        a('s_mov_b32 s%d, 0' % sFH)
    elif FASTMODE == 'p0':
        a('s_xor_b32 s%d, s%d, 1' % (sFD, sPAIR))
        a('s_and_b32 s%d, s%d, s%d' % (sFD, sFD, sFAST))
        a('s_mov_b32 s%d, s%d' % (sFH, sFD))
    elif FASTMODE == 'small':
        a('s_mov_b32 s%d, s%d' % (sFD, sFAST))
        a('s_mov_b32 s%d, 0' % sFH)
    elif FASTMODE == 'smallp0':
        a('s_mov_b32 s%d, s%d' % (sFD, sFAST))
        a('s_xor_b32 s%d, s%d, 1' % (sFH, sPAIR))
        a('s_and_b32 s%d, s%d, s%d' % (sFH, sFH, sFAST))
    else:
        a('s_mov_b32 s%d, s%d' % (sFD, sFAST))
        a('s_mov_b32 s%d, s%d' % (sFH, sFAST))
    pair_base(sA, L.SA)
    a('s_mul_i32 s%d, s%d, 1792' % (sB, sGT))
    a('s_add_u32 s%d, s%d, s%d' % (sO + 13, sA, sB))
    a('s_add_u32 s%d, s%d, 1792' % (sO + 14, sO + 13))
    a('s_sub_u32 s%d, s%d, 1792' % (sO + 12, sO + 13))
    a('s_cmp_eq_u32 s%d, 0' % sGT)
    a('s_cselect_b32 s%d, s%d, s%d' % (sO + 12, sO + 13, sO + 12))
    a('v_and_b32 v%d, 15, v0' % V_TOK)
    a('v_lshrrev_b32 v%d, 4, v0' % V_G)
    a('v_lshlrev_b32 v240, 3, v%d' % V_TOK)
    a('v_lshl_add_u32 v240, v%d, 7, v240' % V_G)
    a('v_mov_b32 v242, 0x%x' % INV)
    a('v_cmp_lt_u32 vcc, 1, v%d' % V_G)
    a('v_cndmask_b32 v241, 0, v242, vcc')
    a('v_or_b32 v241, v241, v240')
    a('v_add_u32 v243, %d, v1' % (56 * 1024))
    a('v_lshlrev_b32 v244, 4, v%d' % V_G)
    a('v_add_u32 v244, %d, v244' % L.L_CSA)
    a('v_lshlrev_b32 v245, 2, v%d' % V_TOK)
    a('v_add_u32 v245, %d, v245' % L.L_CSA)
    a('s_lshl_b32 s%d, s%d, 7' % (sA, sJ))
    a('s_add_u32 s%d, s%d, %d' % (sA, sA, L.FP))
    a('v_lshl_add_u32 v248, v0, 2, s%d' % sA)
    a('s_lshr_b32 s%d, s%d, 1' % (sB, sW))
    a('s_lshl_b32 s%d, s%d, 2' % (sCc, sG))
    a('s_add_u32 s%d, s%d, s%d' % (sB, sB, sCc))
    a('s_lshl_b32 s%d, s%d, 5' % (sB, sB))
    a('s_and_b32 s%d, s%d, 1' % (sA, sW))
    a('s_add_u32 s%d, s%d, s%d' % (sB, sB, sA))
    a('s_min_u32 s%d, s%d, 6' % (sA, sJ))
    a('s_lshl_b32 s%d, s%d, 1' % (sA, sA))
    a('s_add_u32 s%d, s%d, s%d' % (sB, sB, sA))
    a('s_lshl_b32 s%d, s%d, 2' % (sB, sB))
    a('s_add_u32 s%d, s%d, %d' % (sB, sB, L.FX[0] - 32 * 256))
    a('v_lshl_add_u32 v249, v0, 8, s%d' % sB)
    a('v_cmp_lt_u32 vcc, 31, v0')
    a('v_cndmask_b32 v248, v248, v249, vcc')
    a('s_lshr_b32 s%d, s%d, 3' % (sA, sC))
    a('s_mul_i32 s%d, s%d, 7' % (sA, sA))
    a('s_min_u32 s%d, s%d, 6' % (sB, sJ))
    a('s_add_u32 s%d, s%d, s%d' % (sA, sA, sB))
    a('s_mul_i32 s%d, s%d, 112' % (sA, sA))
    a('s_add_u32 s%d, s%d, %d' % (sA, sA, L.FW1 - 34 * 4))
    a('v_lshl_add_u32 v249, v0, 2, s%d' % sA)
    a('v_cmp_lt_u32 vcc, 33, v0')
    a('v_cndmask_b32 v248, v248, v249, vcc')
    a('s_cmp_eq_u32 s%d, 0' % sPAIR)
    a('s_mov_b32 s%d, %d' % (sA, L.FSA - 128))
    a('s_cselect_b32 s%d, %d, s%d' % (sA, L.FX[0] - 128, sA))
    a('s_lshl_b32 s%d, s%d, 7' % (sB, sGT))
    a('s_add_u32 s%d, s%d, s%d' % (sA, sA, sB))
    a('v_and_b32 v247, 48, v0')
    a('v_add_u32 v247, v247, v0')
    a('v_lshl_add_u32 v247, v247, 2, s%d' % sA)
    a('s_mov_b32 s%d, 0x3fff3fff' % sMK2)
    a('s_mov_b32 s%d, 0x3fff' % (sMK2 + 1))
    a('s_cmp_eq_u32 s%d, 0' % sGT)
    a('s_cselect_b32 s%d, 0x3fff0000, s%d' % (sMK2, sMK2))


stat_loads = ['buffer_load_dwordx2 %s, v%d, %s, s%d offen offset:%d sc1' %
              (vr(STR + (t * 4 + i) * 2, 2), 241 if i == 3 else 240, srd(S_WS), sO + 12 + t, 512 * i)
              for t in range(3) for i in range(4)]


def a_wread(u):
    b = WBUF[u & 1]
    o = []
    for p in range(6):
        if p < 4:
            o.append('ds_read_b128 %s, v1 offset:%d' % (vr(b + 4 * p), L.L_WA + (p * 14 + u) * 1024))
        else:
            o.append('ds_read_b128 %s, v243 offset:%d' % (vr(b + 4 * p), L.L_WA + ((p - 4) * 14 + u) * 1024))
    return o


stat_fill = []
for t in range(3):
    r = STR + 8 * t
    for c_ in range(2):
        stat_fill += ['v_add_f32 v%d, v%d, v%d' % (r + c_, r + c_, r + 2 + c_),
                      'v_add_f32 v%d, v%d, v%d' % (r + 4 + c_, r + 4 + c_, r + 6 + c_),
                      'v_add_f32 v%d, v%d, v%d' % (r + c_, r + c_, r + 4 + c_)]
    stat_fill += xg_reduce(r, r + 2) + xg_reduce(r + 1, r + 3)
    stat_fill += stats_finish(r, r + 1, r + 2, False)
    stat_fill += ['v_mov_b32 v%d, v%d' % (SM + t, r), 'v_mov_b32 v%d, v%d' % (SR + t, r + 1)]

sWA = [20, 21, 22]
sWAG = 23


def wa_dma(pr, i):
    def f():
        a('s_add_u32 m0, s%d, %d' % (sWA[i], L.L_WA + 2048 * pr))
        a('s_add_u32 s%d, s%d, s%d' % (sD, sWA[i], sWAG))
        if pr:
            a('s_add_u32 s%d, s%d, %d' % (sD, sD, 2048 * pr))
        a('buffer_load_dwordx4 v1, %s, s%d offen sc1 lds' % (srd(S_WS), sD))
    return f


amark = {}


def emit_a_loop(first, xmark, wam):
    ep_mark = es_mark = st_mark = None
    for t in a_wread(0):
        a(t)
    for u in range(14):
        need = xmark[u]
        if u == 12:
            need = max(need, st_mark)
        a.wait_vm(need)
        if u == 6:
            early_check(246, 247, es_mark)
        if u == 11:
            a('s_mov_b32 s%d, -1' % sMK2)
            a('s_mov_b32 s%d, 0x3fffffff' % (sMK2 + 1))
        a('s_waitcnt lgkmcnt(0)')
        wb = WBUF[u & 1]
        xs = XR + (u % NR) * 12
        mf = []
        cz = (lambda r: '0') if u == 0 else (lambda r: vr(r))
        for t in range(2):
            for hf in range(2):
                r = AQ + (t * 2 + hf) * 4
                mf.append('%s %s, %s, %s, %s' % (MFMA, vr(r), vr(wb + 4 * hf), vr(xs + 4 * (t + 1)), cz(r)))
        for t in range(3):
            for hf in range(2):
                r = AK + (t * 2 + hf) * 4
                mf.append('%s %s, %s, %s, %s' % (MFMA, vr(r), vr(wb + 8 + 4 * hf), vr(xs + 4 * t), cz(r)))
        for t in range(3):
            for hf in range(2):
                r = AV + (t * 2 + hf) * 4
                mf.append('%s %s, %s, %s, %s' % (MFMA, vr(r), vr(xs + 4 * t), vr(wb + 16 + 4 * hf), cz(r)))
        if first:
            for p in range(6):
                r = CSACC + 4 * p
                if p < 4:
                    mf.append('%s %s, %s, %s, %s' % (MFMA, vr(r), vr(wb + 4 * p), ar(A_ONES), cz(r)))
                else:
                    mf.append('%s %s, %s, %s, %s' % (MFMA, vr(r), ar(A_ONES), vr(wb + 4 * p), cz(r)))
        mem = {}

        def put(k, x):
            mem.setdefault(k, []).append(x)
        off = 0
        if first and u % 2 == 1 and u < 13:
            put(2, ('bar', (u + 1) // 2))
            off = 3
        if u < 13:
            for k, x in enumerate(a_wread(u + 1)):
                put(off + k, x)
        elif not first:
            for p in range(4):
                put(p, 'ds_read_b128 %s, v244 offset:%d' % (vr(WBUF[0] + 4 * p), 64 * p))
            for d in range(2):
                put(4 + d, 'ds_read_b32 v%d, v245 offset:%d' % (WBUF[0] + 16 + d, 64 * (4 + d)))
        if u + LOOK < 14:
            for k, x in zip((6, 9, 12), a_xload(u + LOOK)):
                put(k + off, x)
            put(12 + off, ('xm', u + LOOK))
        if first and u % 2 == 0 and u // 2 + 3 <= 6:
            for i, k in enumerate((13, 16, 19)):
                put(k, ('wa', u // 2 + 3, i))
        if 6 <= u < 10:
            for k, x in zip((8, 11, 14), stat_loads[3 * (u - 6):3 * (u - 6) + 3]):
                put(k, x)
            if u == 9:
                put(14, ('st',))
        if u == 11:
            put(8, ('early',))
        if u == 4:
            put(8, ('estat',))
        fill = stat_fill[(u - 12) * 30:(u - 11) * 30] if u >= 12 else []
        fi = 0
        for k, m in enumerate(mf):
            a(m)
            for it in mem.get(k, []):
                if isinstance(it, str):
                    a(it)
                elif it[0] == 'early':
                    ep_mark = early_issue(249, 248)
                elif it[0] == 'estat':
                    es_mark = early_issue(246, 247)
                elif it[0] == 'xm':
                    xmark[it[1]] = a.vm_mark()
                elif it[0] == 'st':
                    st_mark = a.vm_mark()
                elif it[0] == 'bar':
                    a.wait_vm(wam[it[1]])
                    a('s_barrier')
                elif it[0] == 'wa':
                    wa_dma(it[1], it[2])()
                    wam[it[1]] = a.vm_mark()
            for _ in range(2):
                if fi < len(fill) and k >= 1:
                    a(fill[fi])
                    fi += 1
        assert fi == len(fill), (u, fi, len(fill))
    amark['ep'] = ep_mark


for p in range(4):
    a('v_mov_b32 v4, 0x3f803f80')
    a('v_accvgpr_write_b32 a%d, v4' % (A_ONES + p))
a('s_mul_i32 s%d, s%d, 14336' % (sWA[0], sW))
a('s_add_u32 s%d, s%d, 4' % (sA, sW))
a('s_mul_i32 s%d, s%d, 14336' % (sA, sA))
a('s_sub_u32 s%d, s%d, 2' % (sB, sW))
a('s_mul_i32 s%d, s%d, 14336' % (sB, sB))
a('s_add_u32 s%d, s%d, 1024' % (sB, sB))
a('s_cmp_lt_u32 s%d, 2' % sW)
a('s_cselect_b32 s%d, s%d, s%d' % (sWA[1], sA, sB))
a('s_add_u32 s%d, s%d, 2' % (sA, sW))
a('s_mul_i32 s%d, s%d, 14336' % (sA, sA))
a('s_add_u32 s%d, s%d, 1024' % (sWA[2], sA))
a('s_mul_i32 s%d, s%d, %d' % (sWAG, sC, 84 * 1024))
a('s_add_u32 s%d, s%d, %d' % (sWAG, sWAG, L.WA))
a_offsets()
xm0, wam0 = {}, {}


def wa_pair(pr):
    for i in range(3):
        wa_dma(pr, i)()
    wam0[pr] = a.vm_mark()


for pr in range(3):
    wa_pair(pr)
    for u in (2 * pr, 2 * pr + 1):
        if u < LOOK:
            for t in a_xload(u):
                a(t)
            xm0[u] = a.vm_mark()
a_setup()
a.wait_vm(wam0[0])
a('s_barrier')
a('s_lshl_b32 s%d, s%d, 5' % (sA, sJ))
a('s_add_u32 s%d, s%d, s%d' % (sA, sA, sG))
a('s_lshl_b32 s%d, s%d, 2' % (sA, sA))
a('s_add_u32 s%d, s%d, %d' % (sA, sA, L.FP))
a('s_cmp_eq_u32 s%d, 0' % sW)
a('s_cselect_b32 s%d, s%d, 0x%x' % (sA, sA, INV))
a('v_mov_b32 v2, s%d' % sA)
a('s_mov_b64 exec, 1')
a('buffer_store_dword v%d, v2, %s, 0 offen sc1' % (V_T, srd(S_WS)))
a.vm_issued -= 1
a('s_mov_b64 exec, -1')
stamp()
emit_a_loop(True, xm0, wam0)
n_join = a.vm_issued - amark['ep']
CSQ = WBUF[0]
a('v_cmp_eq_u32 vcc, 0, v%d' % V_TOK)
a('s_mov_b64 exec, vcc')
for p in range(4):
    a('ds_write_b128 v244, %s offset:%d' % (vr(CSACC + 4 * p), 64 * p))
a('s_mov_b64 exec, 0xffff')
for d in range(2):
    a('ds_write_b32 v245, v%d offset:%d' % (CSACC + 16 + 4 * d, 64 * (4 + d)))
a('s_mov_b64 exec, -1')
for e in range(16):
    a('v_mov_b32 v%d, v%d' % (CSQ + e, CSACC + e))
for d in range(2):
    a('v_mov_b32 v%d, v%d' % (CSQ + 16 + d, CSACC + 16 + 4 * d))
a('s_branch L_a_epi')

a.label('L_pair')
a_flag_addr(2)
poll(2)
stamp()
a_offsets()
xmark = {}
for u in range(LOOK):
    for t in a_xload(u):
        a(t)
    xmark[u] = a.vm_mark()
a_setup()
emit_a_loop(False, xmark, None)
assert a.vm_issued - amark['ep'] == n_join
ep_mark = amark['ep']
a.label('L_a_epi')
stamp()
for x in stat_fill[60:]:
    a(x)
early_check(249, 248, ep_mark)
BW = 2
a('s_lshl_b32 s%d, s%d, 6' % (sA, sJ))
a('s_lshl_b32 s%d, s%d, 2' % (sB, sW))
a('s_add_u32 s%d, s%d, s%d' % (sA, sA, sB))
a('s_lshl_b32 s%d, s%d, 10' % (sA, sA))
a('s_add_u32 s20, s%d, %d' % (sA, L.WB))
for t in range(1, 4):
    a('s_add_u32 s%d, s20, %d' % (20 + t, 16 * 1024 * t))
wb_loads = ['buffer_load_dwordx4 %s, v1, %s, s%d offen offset:%d sc1' % (vr(BW + (i * 4 + t) * 4), srd(S_WS), 20 + t, 1024 * i)
            for i in range(4) for t in range(4)]
A_RES, A_B2 = 224, 232


def owner_index():
    a('s_lshr_b32 s%d, s%d, 1' % (sB, sW))
    a('s_lshl_b32 s%d, s%d, 2' % (sCc, sG))
    a('s_add_u32 s%d, s%d, s%d' % (sB, sB, sCc))
    a('s_and_b32 s%d, s%d, 1' % (sA, sW))
    a('s_lshl_b32 s%d, s%d, 1' % (sCc, sJ))
    a('s_add_u32 s%d, s%d, s%d' % (sA, sA, sCc))


a('s_cmp_eq_u32 s%d, 0' % sPAIR)
a('s_cbranch_scc0 L_a_nores')
owner_index()
a('s_mul_i32 s%d, s%d, 14' % (sB, sB))
a('s_add_u32 s%d, s%d, s%d' % (sB, sB, sA))
a('s_lshl_b32 s%d, s%d, 10' % (sB, sB))
a('s_add_u32 s%d, s%d, %d' % (sB, sB, L.XA[0]))
a('buffer_load_dwordx4 %s, v1, %s, s%d offen sc1' % (ar(A_RES), srd(S_WS), sB))
a('s_add_u32 s%d, s%d, %d' % (sB, sB, 2 * 14336))
a('buffer_load_dwordx4 %s, v1, %s, s%d offen sc1' % (ar(A_RES + 4), srd(S_WS), sB))
build_srd(S_TMP, P_B2, 896)
a('s_lshl_b32 s%d, s%d, 6' % (sB, sA))
a('v_lshlrev_b32 v240, 3, v%d' % V_G)
a('buffer_load_dwordx2 v[228:229], v240, %s, s%d offen' % (srd(S_TMP), sB))
a('buffer_load_dwordx2 v[230:231], v240, %s, s%d offen offset:32' % (srd(S_TMP), sB))
a.label('L_a_nores')
CSQ = WBUF[0]
a('s_mul_i32 s%d, s%d, 384' % (sA, sW))
a('s_add_u32 s%d, s%d, %d' % (sA, sA, L.L_STA))
a('v_lshl_add_u32 v246, v%d, 2, s%d' % (V_TOK, sA))
a('v_lshl_add_u32 v247, v%d, 4, s%d' % (V_G, sA))
a('s_mov_b64 exec, 0xffff')
for t in range(3):
    a('ds_write_b32 v246, v%d offset:%d' % (SM + t, 128 * t))
    a('ds_write_b32 v246, v%d offset:%d' % (SR + t, 128 * t + 64))
a('s_mov_b64 exec, -1')
MROW, RROW = 114, 126
a('s_waitcnt lgkmcnt(0)')
for t in range(3):
    a('ds_read_b128 %s, v247 offset:%d' % (vr(MROW + 4 * t), 128 * t))
    a('ds_read_b128 %s, v247 offset:%d' % (vr(RROW + 4 * t), 128 * t + 64))
QF, KF, VF = 140, 148, 160
for t in range(2):
    for hf in range(2):
        r = AQ + (t * 2 + hf) * 4
        for i in range(4):
            a('v_fma_f32 v%d, -v%d, v%d, v%d' % (r + i, SM + t + 1, CSQ + 4 * hf + i, r + i))
        for p in range(2):
            a('v_cvt_pk_bf16_f32 v%d, v%d, v%d' % (QF + 4 * t + 2 * hf + p, r + 2 * p, r + 2 * p + 1))
for t in range(3):
    for hf in range(2):
        r = AK + (t * 2 + hf) * 4
        for i in range(4):
            a('v_fma_f32 v%d, -v%d, v%d, v%d' % (r + i, SM + t, CSQ + 8 + 4 * hf + i, r + i))
        for p in range(2):
            a('v_cvt_pk_bf16_f32 v%d, v%d, v%d' % (KF + 4 * t + 2 * hf + p, r + 2 * p, r + 2 * p + 1))
SS = 172
for t in range(2):
    a('%s %s, %s, %s, 0' % (MFMA, vr(SS + 8 * t), vr(KF + 4 * t), vr(QF + 4 * t)))
    a('%s %s, %s, %s, 0' % (MFMA, vr(SS + 8 * t + 4), vr(KF + 4 * t + 4), vr(QF + 4 * t)))
a('s_waitcnt lgkmcnt(0)')
for t in range(3):
    for d in range(2):
        r = AV + (t * 2 + d) * 4
        for i in range(4):
            a('v_fma_f32 v%d, -v%d, v%d, v%d' % (r + i, MROW + 4 * t + i, CSQ + 16 + d, r + i))
        for p in range(2):
            a('v_cvt_pk_bf16_f32 v%d, v%d, v%d' % (VF + 6 * d + 2 * t + p, r + 2 * p, r + 2 * p + 1))
SCALE = (28.0 ** -0.5) * 1.4426950408889634
MX, CC, LS, TMPR = 190, 192, 194, 196
PF = 200
a('v_mov_b32 v198, 0xff800000')
seq = [[], []]
for t in range(2):
    s = SS + 8 * t
    q = seq[t]
    for e in range(8):
        q.append('v_mul_f32 v%d, v%d, v%d' % (s + e, s + e, RROW + 4 * (t + (e >> 2)) + (e & 3)))
    for e in range(8):
        mk = (sM0 if t == 0 else sM1) + 2 * e if e < 4 else sM2 + 2 * (e - 4)
        q.append('v_cndmask_b32 v%d, v198, v%d, %s' % (s + e, s + e, sp(mk)))
    q.append('v_max3_f32 v%d, v%d, v%d, v%d' % (MX + t, s, s + 1, s + 2))
    q.append('v_max3_f32 v%d, v%d, v%d, v%d' % (MX + t, MX + t, s + 3, s + 4))
    q.append('v_max3_f32 v%d, v%d, v%d, v%d' % (MX + t, MX + t, s + 5, s + 6))
    q.append('v_max_f32 v%d, v%d, v%d' % (MX + t, MX + t, s + 7))
    q += xg_reduce(MX + t, TMPR + t, 'v_max_f32')
    q.append('v_mul_f32 v%d, %s, v%d' % (CC + t, f2h(SCALE), SR + t + 1))
    q.append('v_mul_f32 v%d, v%d, v%d' % (MX + t, MX + t, CC + t))
    for e in range(8):
        q.append('v_fma_f32 v%d, v%d, v%d, -v%d' % (s + e, s + e, CC + t, MX + t))
    for e in range(8):
        q.append('v_exp_f32 v%d, v%d' % (s + e, s + e))
    q.append('v_add_f32 v%d, v%d, v%d' % (LS + t, s, s + 1))
    for e in range(2, 8):
        q.append('v_add_f32 v%d, v%d, v%d' % (LS + t, LS + t, s + e))
    q += xg_reduce(LS + t, TMPR + t)
    q.append('v_rcp_f32 v%d, v%d' % (LS + t, LS + t))
    for e in range(8):
        q.append('v_mul_f32 v%d, v%d, v%d' % (s + e, s + e, RROW + 4 * (t + (e >> 2)) + (e & 3)))
    for p in range(4):
        q.append('v_cvt_pk_bf16_f32 v%d, v%d, v%d' % (PF + 4 * t + p, s + 2 * p, s + 2 * p + 1))
merged = [z for xy in zip(*seq) for z in xy]
gap = len(merged) // (len(wb_loads) + 1)
for k, x in enumerate(merged):
    a(x)
    if k % gap == gap - 1 and wb_loads:
        a(wb_loads.pop(0))
assert not wb_loads
OO = 208
for t in range(2):
    for d in range(2):
        a('%s %s, %s, %s, 0' % (MFMA, vr(OO + 8 * t + 4 * d), vr(VF + 6 * d + 2 * t), vr(PF + 4 * t)))
pair_base(sA, L.O)
a('s_lshl_b32 s%d, s%d, 4' % (sB, sGT))
a('s_add_u32 s%d, s%d, s%d' % (sB, sB, sC))
a('s_lshl_b32 s%d, s%d, 10' % (sB, sB))
a('s_add_u32 s%d, s%d, s%d' % (sA, sA, sB))
for t in range(2):
    for e in range(8):
        a('v_mul_f32 v%d, v%d, v%d' % (OO + 8 * t + e, OO + 8 * t + e, LS + t))
    for p in range(4):
        a('v_cvt_pk_bf16_f32 v%d, v%d, v%d' % (PF + 4 * t + p, OO + 8 * t + 2 * p, OO + 8 * t + 2 * p + 1))
    store('buffer_store_dwordx4 %s, v1, %s, s%d offen' % (vr(PF + 4 * t), srd(S_WS), sA), sFD)
    if t == 0:
        a('s_add_u32 s%d, s%d, 16384' % (sA, sA))
pair_base(sA, L.FA)
a('s_lshl_b32 s%d, s%d, 4' % (sB, sGT))
a('s_add_u32 s%d, s%d, s%d' % (sB, sB, sC))
a('s_lshl_b32 s%d, s%d, 2' % (sB, sB))
a('s_add_u32 s%d, s%d, s%d' % (sA, sA, sB))
a('v_lshlrev_b32 v241, 6, v0')
a('v_add_u32 v241, s%d, v241' % sA)
set_flags(241, 2, sFAST)
stamp()
a('s_cmp_eq_u32 s%d, 7' % sJ)
a('s_cbranch_scc1 L_next_pair')


def wd_bases():
    a('s_lshl_b32 s%d, s%d, 2' % (sA, sJ))
    a('s_mul_i32 s%d, s%d, %d' % (sA, sA, 56 * 1024))
    a('s_mul_i32 s%d, s%d, %d' % (sB, sW, 14 * 1024))
    a('s_add_u32 s%d, s%d, s%d' % (sA, sA, sB))
    a('s_add_u32 s%d, s%d, %d' % (sO, sA, L.WD))
    quarter_offsets(4, 56 * 1024)


def wd_load(fi):
    kk, t = fi >> 2, fi & 3
    return ('buffer_load_dwordx4 %s, v1, %s, s%d offen offset:%d sc1' %
            (ar(4 * fi), srd(S_WS), sO + 4 * t + (kk >> 2), 1024 * (kk & 3)))


WD_CH = [(0, 12), (12, 56)]
BO, BACC, BRD, BTMP = 66, 130, 194, 226
a('s_cmp_eq_u32 s%d, 0' % sPAIR)
a('s_cbranch_scc0 L_b_start')
for k in range(4):
    a('v_lshlrev_b32 v236, 16, v%d' % (228 + k))
    a('v_and_b32 v237, 0xffff0000, v%d' % (228 + k))
    a('v_accvgpr_write_b32 a%d, v236' % (A_B2 + 2 * k))
    a('v_accvgpr_write_b32 a%d, v237' % (A_B2 + 2 * k + 1))
wd_bases()
for fi in range(*WD_CH[0]):
    a(wd_load(fi))
a.label('L_b_start')
CWW = 66
sCI = 41
a('s_lshr_b32 s%d, s%d, 3' % (sA, sC))
a('s_mul_i32 s%d, s%d, 7' % (sA, sA))
a('s_add_u32 s%d, s%d, s%d' % (sCI, sA, sJ))
a('s_lshl_b32 s%d, s%d, 3' % (sA, sCI))
a('s_lshl_b32 s%d, s%d, 1' % (sB, sW))
a('s_add_u32 s%d, s%d, s%d' % (sA, sA, sB))
a('s_mul_i32 s%d, s%d, %d' % (sB, sA, 14 * 1024))
a('s_add_u32 s%d, s%d, %d' % (sO, sB, L.WC))
quarter_offsets(2, 14 * 1024)


def c_wload(idx):
    u, k = idx >> 1, idx & 1
    return ('buffer_load_dwordx4 %s, v1, %s, s%d offen offset:%d sc1' %
            (vr(CWW + 4 * idx), srd(S_WS), sO + 4 * k + (u >> 2), 1024 * (u & 3)))


def red_writes(acc, tile):
    return ['ds_write_b128 v248, %s offset:%d' % (vr(acc + 4 * t), (tile >> 1) * 32768 + (tile & 1) * 4096 + t * 1024)
            for t in range(4)]


def red_reads(st, rd):
    return ['ds_read_b128 %s, v249 offset:%d' % (vr(rd + (b * 2 + k) * 4), st * 32768 + b * 8192 + k * 1024)
            for b in range(4) for k in range(2)]


def add8(dst, x, y, packed):
    if packed:
        return ['v_pk_add_f32 %s, %s, %s' % (vr(dst + e, 2), vr(x + e, 2), vr(y + e, 2)) for e in range(0, 8, 2)]
    return ['v_add_f32 v%d, v%d, v%d' % (dst + e, x + e, y + e) for e in range(8)]


def finish_pre(st, is_d, tmp):
    res = A_RES + 4 * st
    o = ['v_accvgpr_read_b32 v%d, a%d' % (tmp + 8 + p, res + p) for p in range(4)]
    for p in range(4):
        o += ['v_lshlrev_b32 v%d, 16, v%d' % (tmp + 2 * p, tmp + 8 + p),
              'v_and_b32 v%d, 0xffff0000, v%d' % (tmp + 2 * p + 1, tmp + 8 + p)]
    if is_d:
        o += ['v_accvgpr_read_b32 v%d, a%d' % (tmp + 8 + e, A_B2 + e) for e in range(8)]
        o += ['v_add_f32 v%d, v%d, v%d' % (tmp + e, tmp + e, tmp + 8 + e) for e in range(8)]
    return o


def finish_sum(st, rd, tmp, pk, packed):
    o = add8(rd, rd, rd + 8, packed) + add8(rd + 16, rd + 16, rd + 24, packed) + add8(rd, rd, rd + 16, packed)
    o += add8(tmp, tmp, rd, packed)
    o += ['v_cvt_pk_bf16_f32 v%d, v%d, v%d' % (pk + p, tmp + 2 * p, tmp + 2 * p + 1) for p in range(4)]
    o += ['v_accvgpr_write_b32 a%d, v%d' % (A_RES + 4 * st + p, pk + p) for p in range(4)]
    return o


def owner_stats(tmp, s1, t):
    a('v_pk_add_f32 %s, %s, %s' % (vr(t, 2), vr(tmp, 2), vr(tmp + 2, 2)))
    a('v_pk_add_f32 %s, %s, %s' % (vr(t + 2, 2), vr(tmp + 4, 2), vr(tmp + 6, 2)))
    a('v_pk_add_f32 %s, %s, %s' % (vr(t, 2), vr(t, 2), vr(t + 2, 2)))
    a('v_add_f32 v%d, v%d, v%d' % (s1, t, t + 1))
    a('v_pk_mul_f32 %s, %s, %s' % (vr(t, 2), vr(tmp, 2), vr(tmp, 2)))
    for e in (2, 4, 6):
        a('v_pk_fma_f32 %s, %s, %s, %s' % (vr(t, 2), vr(tmp + e, 2), vr(tmp + e, 2), vr(t, 2)))
    a('v_add_f32 v%d, v%d, v%d' % (s1 + 1, t, t + 1))
    for x, y in zip(xg_reduce(s1, t), xg_reduce(s1 + 1, t + 1)):
        a(x)
        a(y)


def red_addrs():
    a('s_lshl_b32 s%d, s%d, 13' % (sA, sW))
    a('s_add_u32 s%d, s%d, %d' % (sA, sA, L.L_R2))
    a('v_add_u32 v248, s%d, v1' % sA)
    a('s_and_b32 s%d, s%d, 1' % (sA, sW))
    a('s_lshl_b32 s%d, s%d, 11' % (sA, sA))
    a('s_lshr_b32 s%d, s%d, 1' % (sB, sW))
    a('s_lshl_b32 s%d, s%d, 12' % (sB, sB))
    a('s_add_u32 s%d, s%d, s%d' % (sA, sA, sB))
    a('s_add_u32 s%d, s%d, %d' % (sA, sA, L.L_R2))
    a('v_add_u32 v249, s%d, v1' % sA)


def publish_setup(xbase, sbase, fbase, per_pair, fsh):
    owner_index()
    a('s_mul_i32 s%d, s%d, 14' % (sCc, sB))
    a('s_add_u32 s%d, s%d, s%d' % (sCc, sCc, sA))
    a('s_lshl_b32 s%d, s%d, 10' % (sPX, sCc))
    a('s_lshl_b32 s%d, s%d, 7' % (sPS, sCc))
    a('s_lshl_b32 s%d, s%d, %d' % (sPF, sB, fsh))
    a('s_add_u32 s%d, s%d, s%d' % (sPF, sPF, sA))
    a('s_lshl_b32 s%d, s%d, 2' % (sPF, sPF))
    for dst, arr in ((sPX, xbase), (sPS, sbase), (sPF, fbase)):
        if per_pair:
            pair_base(sD, arr)
            a('s_add_u32 s%d, s%d, s%d' % (dst, dst, sD))
        else:
            a('s_add_u32 s%d, s%d, %d' % (dst, dst, arr))
    a('s_add_u32 s%d, s%d, %d' % (sPX2, sPX, 2 * 14336))


def publish_data(st, pk):
    store('buffer_store_dwordx4 %s, v1, %s, s%d offen offset:0' % (vr(pk), srd(S_WS), sPX if st == 0 else sPX2), sPC)


def publish_stats(tmps, t, s1):
    a('v_and_b32 v%d, 15, v0' % V_TOK)
    a('v_lshlrev_b32 v%d, 3, v%d' % (t + 4, V_TOK))
    for st in range(2):
        owner_stats(tmps[st], s1 + 2 * st, t)
    a('s_mov_b64 exec, 0xffff')
    store('buffer_store_dwordx2 %s, v%d, %s, s%d offen' % (vr(s1, 2), t + 4, srd(S_WS), sPS), sPC)
    a('s_add_u32 s%d, s%d, %d' % (sPS, sPS, 2 * 1792))
    store('buffer_store_dwordx2 %s, v%d, %s, s%d offen' % (vr(s1 + 2, 2), t + 4, srd(S_WS), sPS), sPC)
    a('s_mov_b64 exec, -1')


def publish_flags(lsh, between=()):
    a('v_lshlrev_b32 v241, %d, v0' % lsh)
    a('v_add_u32 v241, s%d, v241' % sPF)
    set_flags(241, 2, sPFC, V_T, between)


def run_tiles(tile_items, extras):
    for tile in range(4):
        items = tile_items(tile)
        ex = list(extras.get(tile, []))
        free = [k for k, it in enumerate(items) if k >= 3 and not it[2]]
        per = -(-len(ex) // max(1, len(free))) if ex else 0
        for k, (pre, m, post) in enumerate(items):
            for x in pre:
                x()
            a(m)
            if post:
                post()
            elif k >= 3:
                for _ in range(per):
                    if ex:
                        x = ex.pop(0)
                        if callable(x):
                            x()
                        else:
                            a(x)
        assert not ex


pair_base(sA, L.FA)
a('s_lshl_b32 s%d, s%d, 8' % (sB, sG))
a('s_add_u32 s%d, s%d, s%d' % (sA, sA, sB))
a('v_lshl_add_u32 v240, v0, 2, s%d' % sA)
a('s_lshl_b32 s%d, s%d, 2' % (sB, sW))
a('s_lshl_b32 s%d, 0x000f000f, s%d' % (sMK, sB))
a('s_mov_b32 s%d, s%d' % (sMK + 1, sMK))
red_addrs()
publish_setup(L.XB, L.SB, L.FB, True, 4)
a('s_mov_b32 s%d, s%d' % (sPC, sFD))
a('s_mov_b32 s%d, s%d' % (sPFC, sFAST))
pair_base(sA, L.O)
a('s_lshl_b32 s%d, s%d, 6' % (sB, sG))
a('s_lshl_b32 s%d, s%d, 2' % (sCc, sW))
a('s_add_u32 s%d, s%d, s%d' % (sB, sB, sCc))
a('s_lshl_b32 s%d, s%d, 10' % (sB, sB))
a('s_add_u32 s20, s%d, s%d' % (sA, sB))
for t in range(1, 4):
    a('s_add_u32 s%d, s20, %d' % (20 + t, 16384 * t))
poll(240)
stamp()


def b_oload(tile, i):
    return 'buffer_load_dwordx4 %s, v1, %s, s%d offen offset:%d sc1' % (vr(BO + (tile * 4 + i) * 4), srd(S_WS), 20 + tile, 1024 * i)


om = {}
for tile in range(2):
    for i in range(4):
        a(b_oload(tile, i))
        om[(tile, i)] = a.vm_mark()


def b_tile(tile):
    items = []
    for i in range(4):
        for t in range(4):
            r = BACC + (tile * 4 + t) * 4
            pre = [(lambda tl=tile, ii=i: a.wait_vm(om[(tl, ii)]))] if t == 0 else []
            post = None
            if tile < 2 and t == 1:
                def post(tl=tile + 2, ii=i):
                    a(b_oload(tl, ii))
                    om[(tl, ii)] = a.vm_mark()
            if tile >= 2 and t == 1:
                def post(idx=4 * (tile - 2) + i):
                    a(c_wload(idx))
            items.append((pre, '%s %s, %s, %s, %s' % (MFMA, vr(r), vr(BW + (i * 4 + t) * 4), vr(BO + (tile * 4 + i) * 4),
                                                      '0' if i == 0 else vr(r)), post))
    return items


BT0, BT1, BPK = 226, 2, 18
run_tiles(b_tile, {1: red_writes(BACC, 0), 2: red_writes(BACC + 16, 1), 3: red_writes(BACC + 32, 2)})
stamp2()
for x in red_writes(BACC + 48, 3):
    a(x)
for x in finish_pre(0, False, BT0) + finish_pre(1, False, BT1):
    a(x)
a('s_waitcnt lgkmcnt(0)')
a('s_barrier')
stamp2()
BRD1 = 162
for x in red_reads(0, BRD) + red_reads(1, BRD1):
    a(x)
a('s_waitcnt lgkmcnt(8)')
for x in finish_sum(0, BRD, BT0, BPK, True):
    a(x)
publish_data(0, BPK)
a('s_waitcnt lgkmcnt(0)')
for x in finish_sum(1, BRD1, BT1, BPK + 4, True):
    a(x)
publish_data(1, BPK + 4)
stamp2()
publish_stats([BT0, BT1], 36, 32)
publish_flags(7, [c_wload(i) for i in range(8, 16)])
stamp()

for i in range(16, 22):
    a(c_wload(i))
CA = [2, 10]
XF, NXF = 18, 8
GTMP, GH = 50, 58
CCS, CB1, CB1R = 178, 186, 194
CSTR = 198
CMR = 214
VGA = 218
a('v_lshrrev_b32 v%d, 4, v0' % V_G)
a('v_and_b32 v%d, 15, v0' % V_TOK)
a('s_lshl_b32 s%d, s%d, 3' % (sA, sCI))
a('s_lshl_b32 s%d, s%d, 1' % (sB, sW))
a('s_add_u32 s%d, s%d, s%d' % (sA, sA, sB))
a('s_lshl_b32 s%d, s%d, 5' % (sB, sA))
a('v_lshlrev_b32 v248, 3, v%d' % V_G)
for k in range(2):
    a('buffer_load_dwordx2 %s, v248, %s, s%d offen offset:%d' % (vr(CB1R + 2 * k, 2), srd(S_B1), sB, 32 * k))
pair_base(sA, L.FB)
a('s_lshl_b32 s%d, s%d, 9' % (sB, sS))
a('s_add_u32 s%d, s%d, s%d' % (sA, sA, sB))
a('v_lshl_add_u32 v240, v0, 2, s%d' % sA)
a('s_mov_b32 s%d, 0x3fff3fff' % sMK)
a('s_mov_b32 s%d, 0x3fff3fff' % (sMK + 1))
pair_base(20, L.XB)
a('s_mul_i32 s%d, s%d, %d' % (sB, sS, 8 * 14336))
a('s_add_u32 s20, s20, s%d' % sB)
a('s_lshl_b32 s%d, s%d, 12' % (sB, sW))
a('s_add_u32 s20, s20, s%d' % sB)
a('s_add_u32 s21, s%d, %d' % (sB, L.L_R2))
pair_base(22, L.SB)
a('s_lshl_b32 s%d, s%d, 3' % (sB, sS))
a('s_add_u32 s%d, s%d, s%d' % (sB, sB, sW))
a('s_mul_i32 s%d, s%d, 1792' % (sB, sB))
a('s_add_u32 s22, s22, s%d' % sB)
a('s_add_u32 s23, s22, %d' % (4 * 1792))
pair_base(32, L.H)
a('s_mul_i32 s%d, s%d, %d' % (sB, sS, 8 * 56 * 1024))
a('s_add_u32 s32, s32, s%d' % sB)
a('s_lshl_b32 s%d, s%d, 2' % (sB, sCI))
a('s_add_u32 s%d, s%d, s%d' % (sB, sB, sW))
a('s_lshl_b32 s%d, s%d, 10' % (sCc, sB))
a('s_add_u32 s32, s32, s%d' % sCc)
pair_base(33, L.FC)
a('s_lshl_b32 s%d, s%d, 11' % (sCc, sS))
a('s_add_u32 s33, s33, s%d' % sCc)
a('s_lshl_b32 s%d, s%d, 2' % (sB, sB))
a('s_add_u32 s33, s33, s%d' % sB)
a('v_mov_b32 v241, s33')
a('v_mov_b32 v242, 0x%x' % INV)
a('v_cmp_eq_u32 vcc, 0, v0')
a('v_cndmask_b32 v241, v242, v241, vcc')
a('v_lshlrev_b32 v238, 3, v%d' % V_TOK)
a('v_lshl_add_u32 v238, v%d, 7, v238' % V_G)
a('v_mov_b32 v242, 0x%x' % INV)
a('v_cmp_lt_u32 vcc, 1, v%d' % V_G)
a('v_cndmask_b32 v239, 0, v242, vcc')
a('v_or_b32 v239, v239, v238')
a('v_add_u32 v252, %d, v1' % L.L_R2)
a('v_lshlrev_b32 v246, 3, v%d' % V_TOK)
a('v_add_u32 v246, %d, v246' % L.L_STC)
GA = 2.0 * 0.7978845608028654 * 1.4426950408889634
GB = GA * 0.044715
a('v_mov_b32 v%d, %s' % (VGA, f2h(-GA)))
a('v_mov_b32 v%d, %s' % (VGA + 1, f2h(-GA)))
a('s_mov_b32 s34, %s' % f2h(-GB))
a('s_mov_b32 s35, %s' % f2h(-GB))
wd_bases_hi = True
poll(240, 256)
stamp()


def c_dma_setup(t):
    return ['s_add_u32 s36, s20, %d' % (t * 14336), 's_add_u32 m0, s21, %d' % ((t & 3) * 16384)]


def c_dma(t, i):
    return 'buffer_load_dwordx4 v1, %s, s36 offen offset:%d sc1 lds' % (srd(S_WS), 1024 * i)


dm = {}
for x in c_dma_setup(0) + [c_dma(0, i) for i in range(4)]:
    a(x)
dm[0] = a.vm_mark()
wlate = {}
for i in range(22, 28):
    a(c_wload(i))
    wlate[i >> 1] = a.vm_mark()
for tt in range(2):
    for i in range(4):
        a('buffer_load_dwordx2 %s, v%d, %s, s%d offen offset:%d sc1' %
          (vr(CSTR + 8 * tt + 2 * i, 2), 239 if i == 3 else 238, srd(S_WS), 22 + tt, 512 * i))
cst_mark = a.vm_mark()
for x in c_dma_setup(1) + [c_dma(1, i) for i in range(4)]:
    a(x)
dm[1] = a.vm_mark()
for k in range(2):
    for p in range(2):
        a('v_lshlrev_b32 v%d, 16, v%d' % (CB1 + 4 * k + 2 * p, CB1R + 2 * k + p))
        a('v_and_b32 v%d, 0xffff0000, v%d' % (CB1 + 4 * k + 2 * p + 1, CB1R + 2 * k + p))
wd_bases()
a.wait_vm(dm[0])
a('s_barrier')
stamp()


def c_xread(t, u):
    n = t * 14 + u
    return 'ds_read_b128 %s, v252 offset:%d' % (vr(XF + 4 * (n % NXF)), (t & 3) * 16384 + u * 1024)


def gelu_pre(t):
    z, m = CA[t & 1], CMR + 2 * (t & 1)
    P = range(0, 8, 2)
    o = ['v_pk_fma_f32 %s, %s, %s, %s op_sel_hi:[1,0,1] neg_lo:[0,1,0] neg_hi:[0,1,0]' % (vr(z + e, 2), vr(CCS + e, 2), vr(m, 2), vr(z + e, 2)) for e in P]
    o += ['v_pk_fma_f32 %s, %s, %s, %s op_sel:[0,1,0] op_sel_hi:[1,1,1]' % (vr(z + e, 2), vr(z + e, 2), vr(m, 2), vr(CB1 + e, 2)) for e in P]
    o += ['v_pk_mul_f32 %s, %s, %s' % (vr(GTMP + e, 2), vr(z + e, 2), vr(z + e, 2)) for e in P]
    o += ['v_pk_fma_f32 %s, %s, s[34:35], %s' % (vr(GTMP + e, 2), vr(GTMP + e, 2), vr(VGA, 2)) for e in P]
    o += ['v_pk_mul_f32 %s, %s, %s' % (vr(GTMP + e, 2), vr(GTMP + e, 2), vr(z + e, 2)) for e in P]
    return o


def gelu_mid():
    o = {}
    for e in range(8):
        o.setdefault(2 * e, []).append('v_exp_f32 v%d, v%d' % (GTMP + e, GTMP + e))
        o.setdefault(2 * e + 3, []).append('v_add_f32 v%d, 1.0, v%d' % (GTMP + e, GTMP + e))
    for e in range(6):
        o.setdefault(16 + 2 * e, []).append('v_rcp_f32 v%d, v%d' % (GTMP + e, GTMP + e))
    o.setdefault(25, []).append('v_rcp_f32 v%d, v%d' % (GTMP + 6, GTMP + 6))
    o.setdefault(27, []).append('v_rcp_f32 v%d, v%d' % (GTMP + 7, GTMP + 7))
    return o


def gelu_post(t):
    z, h = CA[t & 1], GH + 4 * (t & 1)
    o = ['v_pk_mul_f32 %s, %s, %s' % (vr(GTMP + e, 2), vr(GTMP + e, 2), vr(z + e, 2)) for e in range(0, 8, 2)]
    o += ['v_cvt_pk_bf16_f32 v%d, v%d, v%d' % (h + p, GTMP + 2 * p, GTMP + 2 * p + 1) for p in range(4)]
    return o


def gelu_packed(t):
    z, m, h = CA[t & 1], CMR + 2 * (t & 1), GH + 4 * (t & 1)
    P = range(0, 8, 2)
    for e in P:
        a('v_pk_fma_f32 %s, %s, %s, %s op_sel_hi:[1,0,1] neg_lo:[0,1,0] neg_hi:[0,1,0]' % (vr(z + e, 2), vr(CCS + e, 2), vr(m, 2), vr(z + e, 2)))
    for e in P:
        a('v_pk_fma_f32 %s, %s, %s, %s op_sel:[0,1,0] op_sel_hi:[1,1,1]' % (vr(z + e, 2), vr(z + e, 2), vr(m, 2), vr(CB1 + e, 2)))
    for e in P:
        a('v_pk_mul_f32 %s, %s, %s' % (vr(GTMP + e, 2), vr(z + e, 2), vr(z + e, 2)))
    for e in P:
        a('v_pk_fma_f32 %s, %s, s[34:35], %s' % (vr(GTMP + e, 2), vr(GTMP + e, 2), vr(VGA, 2)))
    for e in P:
        a('v_pk_mul_f32 %s, %s, %s' % (vr(GTMP + e, 2), vr(GTMP + e, 2), vr(z + e, 2)))
    for e in range(8):
        a('v_exp_f32 v%d, v%d' % (GTMP + e, GTMP + e))
    for e in P:
        a('v_pk_add_f32 %s, %s, 1.0 op_sel_hi:[1,0]' % (vr(GTMP + e, 2), vr(GTMP + e, 2)))
    for e in range(8):
        a('v_rcp_f32 v%d, v%d' % (GTMP + e, GTMP + e))
    for e in P:
        a('v_pk_mul_f32 %s, %s, %s' % (vr(GTMP + e, 2), vr(GTMP + e, 2), vr(z + e, 2)))
    for p in range(4):
        a('v_cvt_pk_bf16_f32 v%d, v%d, v%d' % (h + p, GTMP + 2 * p, GTMP + 2 * p + 1))


hmk, fmk = {}, {}


def h_store(t):
    def f():
        a('s_add_u32 s36, s32, %d' % (t * 56 * 1024))
        store('buffer_store_dwordx4 %s, v1, %s, s36 offen' % (vr(GH + 4 * (t & 1)), srd(S_WS)), sFH)
        hmk[t] = a.vm_mark()
    return f


def h_flag(t):
    def f():
        a.wait_vm(hmk[t])
        store('buffer_store_dword v%d, v241, %s, 0 offen offset:%d' % (V_T, srd(S_WS), 256 * t), sFAST)
    return f


def wd_block(fis, wave):
    def f():
        skip = newlab('L_wd')
        a('s_cmp_eq_u32 s24, %d' % wave)
        a('s_cbranch_scc0 %s' % skip)
        for fi in fis:
            a(wd_load(fi))
            a.vm_issued -= 1
        a.label(skip)
    return f


cst_fill = []
for tt in range(2):
    r = CSTR + 8 * tt
    for c_ in range(2):
        cst_fill += ['v_add_f32 v%d, v%d, v%d' % (r + c_, r + c_, r + 2 + c_),
                     'v_add_f32 v%d, v%d, v%d' % (r + 4 + c_, r + 4 + c_, r + 6 + c_),
                     'v_add_f32 v%d, v%d, v%d' % (r + c_, r + c_, r + 4 + c_)]
    cst_fill += xg_reduce(r, r + 2) + xg_reduce(r + 1, r + 3) + stats_finish(r, r + 1, r + 2, True)
a('s_lshl_b32 s%d, s%d, 7' % (sA, sW))
a('v_add_u32 v247, s%d, v246' % sA)
cst_fill += ['ds_write_b64 v247, %s' % vr(CSTR, 2), 'ds_write_b64 v247, %s offset:512' % vr(CSTR + 8, 2)]
LOOKX = 6


A_CCS = 244


def emit_c_loop(wd_list):
    pass0 = bool(wd_list)
    if not pass0:
        for e in range(8):
            a('v_accvgpr_read_b32 v%d, a%d' % (CCS + e, A_CCS + e))
    for u in range(LOOKX):
        a(c_xread(0, u))
    for t in range(8):
        nonvec = {}

        def put(k, x):
            nonvec.setdefault(k, []).append(x)
        for u in range(14):
            n = t * 14 + u
            m = n + LOOKX
            if m < 8 * 14:
                put(2 * u + 1, c_xread(m // 14, m % 14))
            if u % 2 == 1 and n + 1 < 8 * 14:
                put(2 * u + 1, 's_waitcnt lgkmcnt(%d)' % min(LOOKX - 2, 8 * 14 - 1 - (n + 2)))
        if t < 7:
            nonvec[14] = [('bar', t + 1)] + nonvec.get(14, [])
        if t + 2 < 8:
            su = c_dma_setup(t + 2)
            put(0, su[0])
            put(0, su[1])
            for i in range(4):
                put(2 + 2 * i, ('dma', t + 2, i))
        if t >= 3:
            put(20, ('call', h_flag(t - 3)))
        if t < 7:
            for k in (10, 12, 16, 18, 22, 24, 26):
                if wd_list:
                    put(k, wd_load(wd_list.pop(0)))
        if t > 0:
            put(17, 'ds_read_b64 %s, v246 offset:%d' % (vr(CMR + 2 * (t & 1), 2), 128 * t))
        valu = gelu_mid() if t >= 1 else {}
        if t >= 2:
            for x in gelu_post(t - 2):
                a(x)
            h_store(t - 2)()
        if t >= 1:
            for x in gelu_pre(t - 1):
                a(x)
        fill = list(cst_fill) if t == 0 else []
        first = 8
        fi = 0
        for k in range(28):
            u, kk = k >> 1, k & 1
            n = t * 14 + u
            if t == 0 and k == 0:
                a('s_waitcnt lgkmcnt(%d)' % (LOOKX - 2))
            if t == 0 and kk == 0 and u in wlate:
                a.wait_vm(wlate[u])
            if t == 0 and k == first:
                a.wait_vm(cst_mark)
            r = CA[t & 1] + 4 * kk
            a('%s %s, %s, %s, %s' % (MFMA, vr(r), vr(CWW + 4 * (2 * u + kk)), vr(XF + 4 * (n % NXF)), '0' if u == 0 else vr(r)))
            if pass0 and t == 0:
                a('%s %s, %s, %s, %s' % (MFMA, vr(CCS + 4 * kk), vr(CWW + 4 * (2 * u + kk)), ar(A_ONES), '0' if u == 0 else vr(CCS + 4 * kk)))
            for it in nonvec.get(k, []):
                if isinstance(it, str):
                    a(it)
                elif it[0] == 'bar':
                    a.wait_vm(dm[it[1]])
                    a('s_barrier')
                elif it[0] == 'dma':
                    a(c_dma(it[1], it[2]))
                    dm[it[1]] = a.vm_mark()
                elif it[0] == 'call':
                    it[1]()
            for x in valu.get(k, []):
                a(x)
            if fill and k >= first:
                want = -(-(len(fill)) * (k - first + 1) // (28 - first))
                while fi < want:
                    a(fill[fi])
                    fi += 1
        assert fi == len(fill)
        if t == 0:
            a('s_waitcnt lgkmcnt(0)')
            a('s_barrier')
            a('ds_read_b64 %s, v246 offset:0' % vr(CMR, 2))
            if pass0:
                for e in range(8):
                    a('v_accvgpr_write_b32 a%d, v%d' % (A_CCS + e, CCS + e))
            a('s_waitcnt lgkmcnt(0)')
    assert not wd_list


n_before = a.vm_issued
dm_init = dict(dm)
a('s_cmp_eq_u32 s%d, 0' % sPAIR)
a('s_cbranch_scc0 L_c_loop1')
emit_c_loop(list(range(*WD_CH[1])))
a('s_branch L_c_done')
a.label('L_c_loop1')
extra = a.vm_issued - n_before
a.vm_issued = n_before
dm.clear()
dm.update(dm_init)
emit_c_loop([])
a.label('L_c_done')
stamp()
pair_base(sA, L.FC)
a('s_lshl_b32 s%d, s%d, 10' % (sB, sG))
a('s_add_u32 s%d, s%d, s%d' % (sA, sA, sB))
a('s_mul_i32 s%d, s%d, 56' % (sB, sW))
a('s_add_u32 s%d, s%d, s%d' % (sA, sA, sB))
a('v_lshl_add_u32 v243, v0, 2, s%d' % sA)
a('s_mov_b32 s%d, 0x3fff' % sMK2)
a('s_mov_b32 s%d, 0' % (sMK2 + 1))
d0_mark = early_issue(244, 243)
for x in gelu_post(6):
    a(x)
h_store(6)()
a('s_waitcnt lgkmcnt(0)')
gelu_packed(7)
h_flag(5)()
h_store(7)()
stamp()

DH, DACC, DRD, DTMP = 2, 114, 178, 210
DRING, DLOOK = 16, 10
red_addrs()
publish_setup(L.XA[1], L.SA[1], L.FX[1], False, 5)
a('s_and_b32 s%d, s%d, 1' % (sA, sG))
a('s_lshr_b32 s%d, s%d, 1' % (sB, sW))
a('s_and_b32 s%d, s%d, s%d' % (sA, sA, sB))
a('s_xor_b32 s%d, s%d, 1' % (sA, sA))
a('s_and_b32 s%d, s%d, s%d' % (sPC, sFD, sA))
a('s_and_b32 s%d, s%d, s%d' % (sPFC, sFAST, sA))
pair_base(sA, L.H)
a('s_mul_i32 s%d, s%d, %d' % (sB, sG, 4 * 56 * 1024))
a('s_add_u32 s%d, s%d, s%d' % (sA, sA, sB))
a('s_mul_i32 s%d, s%d, %d' % (sB, sW, 14 * 1024))
a('s_add_u32 s%d, s%d, s%d' % (sO, sA, sB))
quarter_offsets(4, 56 * 1024)
a('s_cmp_eq_u32 s%d, 0' % sPAIR)
a('s_cbranch_scc1 L_d_nout')
owner_index()
a('s_mul_i32 s%d, s%d, 14336' % (sPX, sB))
a('s_lshl_b32 s%d, s%d, 6' % (sA, sA))
a('s_add_u32 s%d, s%d, s%d' % (sPX, sPX, sA))
a('s_add_u32 s%d, s%d, %d' % (sPX2, sPX, 2 * 14336))
a.label('L_d_nout')
a('v_and_b32 v%d, 15, v0' % V_TOK)
a('v_lshrrev_b32 v%d, 4, v0' % V_G)
a('v_mul_u32_u24 v242, 896, v%d' % V_TOK)
a('v_lshl_add_u32 v242, v%d, 3, v242' % V_G)
early_check(244, 243, d0_mark)
stamp()


def d_hload(q):
    tile, kk = divmod(q, 14)
    return ('buffer_load_dwordx4 %s, v1, %s, s%d offen offset:%d sc1' %
            (vr(DH + (q % DRING) * 4), srd(S_WS), sO + 4 * tile + (kk >> 2), 1024 * (kk & 3)))


hm = {}
dmk = {}
for q in range(DLOOK):
    a(d_hload(q))
    hm[q] = a.vm_mark()
    if q == 6:
        dmk[1] = early_issue(244, 243, 256)
a('s_barrier')


def d_tile(tile):
    items = []
    for kk in range(14):
        q = tile * 14 + kk
        for t in range(4):
            r = DACC + (tile * 4 + t) * 4
            pre = [(lambda qq=q: a.wait_vm(hm[qq]))] if t == 0 else []
            if t == 0 and q in (3, 9):
                pre.append(h_flag({3: 6, 9: 7}[q]))
            post = None
            if t == 0 and q + DLOOK < 56:
                def post(qq=q + DLOOK):
                    if qq % 14 == 0:
                        early_check(244, 243, dmk[qq // 14], 256 * (qq // 14))
                    a(d_hload(qq))
                    hm[qq] = a.vm_mark()
                    if qq % 14 == 6 and qq // 14 < 3:
                        dmk[qq // 14 + 1] = early_issue(244, 243, 256 * (qq // 14 + 1))
            items.append((pre, '%s %s, %s, %s, %s' % (MFMA, vr(r), ar((kk * 4 + t) * 4), vr(DH + (q % DRING) * 4),
                                                      '0' if kk == 0 else vr(r)), post))
    return items


def d_out_store(st, pk):
    a('buffer_store_dwordx2 %s, v242, %s, s%d offen %s' % (vr(pk, 2), srd(S_OUT), sPX if st == 0 else sPX2, OUTSC))
    a('buffer_store_dwordx2 %s, v242, %s, s%d offen offset:32 %s' % (vr(pk + 2, 2), srd(S_OUT), sPX if st == 0 else sPX2, OUTSC))


def d_store(st, pk):
    fin, done = newlab('L_dfin'), newlab('L_ddone')
    a('s_cmp_eq_u32 s%d, 0' % sPAIR)
    a('s_cbranch_scc0 %s' % fin)
    publish_data(st, pk)
    a('s_branch %s' % done)
    a.label(fin)
    n = a.vm_issued
    d_out_store(st, pk)
    a.vm_issued = n
    a.label(done)


DT0, DT1, DPK = 210, 226, 66
stage0 = [lambda: (a('s_waitcnt lgkmcnt(0)'), a('s_barrier'))] + red_reads(0, DRD) + finish_pre(0, True, DT0)
stage0 += [lambda: a('s_waitcnt lgkmcnt(0)')] + finish_sum(0, DRD, DT0, DPK, False) + [lambda: d_store(0, DPK)]
run_tiles(d_tile, {1: red_writes(DACC, 0), 2: red_writes(DACC + 16, 1), 3: red_writes(DACC + 32, 2) + stage0})
stamp2()
for x in red_writes(DACC + 48, 3):
    a(x)
for x in finish_pre(1, True, DT1):
    a(x)
a('s_waitcnt lgkmcnt(0)')
a('s_barrier')
stamp2()
for x in red_reads(1, DRD):
    a(x)
a('s_waitcnt lgkmcnt(0)')
for x in finish_sum(1, DRD, DT1, DPK + 4, True):
    a(x)
d_store(1, DPK + 4)
stamp()
a('s_cmp_eq_u32 s%d, 0' % sPAIR)
a('s_cbranch_scc0 L_next_pair')
publish_flags(8)
publish_stats([DT0, DT1], 88, 84)
a('s_waitcnt vmcnt(0)')
stats_flags(L.FSA - L.FX[1], 8)
a.label('L_next_pair')
stamp()
a('s_add_u32 s%d, s%d, 1' % (sPAIR, sPAIR))
a('s_cmp_lt_u32 s%d, 2' % sPAIR)
a('s_cbranch_scc1 L_pair')

a('s_cmp_eq_u32 s2, 0')
a('s_cbranch_scc0 L_noepoch')
a('s_cmp_eq_u32 s%d, 0' % sW)
a('s_cbranch_scc0 L_noepoch')
a('buffer_load_dword v2, off, %s, 0 sc1' % srd(S_WS))
a('s_waitcnt vmcnt(0)')
a('v_add_u32 v2, 1, v2')
a('s_mov_b64 exec, 1')
a('buffer_store_dword v2, off, %s, 0 sc1' % srd(S_WS))
a('s_mov_b64 exec, -1')
a.label('L_noepoch')
if PAD:
    a.label('L_padspin')
    a('s_memrealtime s[34:35]')
    a('s_waitcnt lgkmcnt(0)')
    a('s_sub_u32 s34, s34, s0')
    a('s_cmp_lt_u32 s34, %d' % PAD[0])
    a('s_cbranch_scc1 L_padspin')
if DBG:
    a('s_memtime s[32:33]')
    a('s_memrealtime s[34:35]')
    a('s_waitcnt lgkmcnt(0)')
    a('s_sub_u32 s32, s32, s26')
    a('s_sub_u32 s34, s34, s0')
    build_srd(S_TMP, P_DBG, 256)
    a('v_mov_b32 v2, s32')
    a('v_mov_b32 v3, s34')
    a('v_mov_b32 v4, s%d' % sFAST)
    a('v_mov_b32 v5, s%d' % sXCC)
    a('s_lshr_b32 s%d, s2, 6' % sA)
    a('s_lshl_b32 s%d, s%d, 4' % (sA, sA))
    a('s_and_b32 s%d, s2, 63' % sB)
    a('s_or_b32 s%d, s%d, s%d' % (sB, sB, sW))
    a('s_cmp_eq_u32 s%d, 0' % sB)
    a('s_cselect_b32 s%d, s%d, 0x%x' % (sA, sA, INV))
    a('v_mov_b32 v6, s%d' % sA)
    a('s_mov_b64 exec, 1')
    a('buffer_store_dwordx4 v[2:5], v6, %s, 0 offen' % srd(S_TMP))
    a('s_mov_b64 exec, -1')
if DIAG:
    stamp()
    a('s_mov_b32 s%d, 63' % sSTI)
    a('s_lshl_b64 exec, 1, s%d' % sSTI)
    a('v_mov_b32 v%d, s%d' % (V_STAMP, sERR))
    a('s_mov_b32 s%d, 62' % sSTI)
    a('s_lshl_b64 exec, 1, s%d' % sSTI)
    a('v_mov_b32 v%d, s%d' % (V_STAMP, sFAST))
    a('s_mov_b64 exec, -1')
    a('s_lshl_b32 s%d, s2, 2' % sA)
    a('s_add_u32 s%d, s%d, s%d' % (sA, sA, sW))
    a('s_lshl_b32 s%d, s%d, 8' % (sA, sA))
    a('v_lshlrev_b32 v2, 2, v0')
    a('s_add_u32 s%d, s%d, %d' % (sA, sA, L.WS_USED))
    a('s_mov_b32 s%d, 0x%x' % (S_WS + 2, L.WS_USED + 256 * 1024))
    a('buffer_store_dword v%d, v2, %s, s%d offen' % (V_STAMP, srd(S_WS), sA))
    if DBGST:
        build_srd(S_TMP, P_DBG, 256)
        a('v_readfirstlane_b32 s%d, v%d' % (sA, V_STAMP))
        a('s_nop 4')
        a('v_subrev_u32 v3, s%d, v%d' % (sA, V_STAMP))
        a('s_or_b32 s%d, s2, s%d' % (sB, sW))
        a('s_cmp_eq_u32 s%d, 0' % sB)
        a('s_cselect_b32 s%d, 0, 0x%x' % (sB, INV))
        a('v_or_b32 v2, s%d, v2' % sB)
        SEL = [int(x[6:]) for x in sys.argv if x.startswith('--sel=')]
        sel = SEL[0] if SEL else 1
        a('v_subrev_u32 v2, %d, v2' % (4 * sel))
        a('buffer_store_dword v3, v2, %s, 0 offen' % srd(S_TMP))
a.label('L_end')
a('s_endpgm')

a.finalize()
body = a.text()

import os
hdr = open(os.path.join(os.path.dirname(os.path.abspath(__file__)), 'header.txt')).read()
out = hdr + '; @launch grid=(256,1,1) block=(256,1,1) lds=%d\n' % L.LDS_BYTES
out += '.amdgcn_target "amdgcn-amd-amdhsa--gfx950"\n.text\n.globl %s_kernel\n.p2align 8\n.type %s_kernel,@function\n%s_kernel:\n' % (NAME, NAME, NAME)
out += body
out += '''.section .rodata,"a"
.p2align 6
.amdhsa_kernel %s_kernel
  .amdhsa_next_free_vgpr 512
  .amdhsa_next_free_sgpr 102
  .amdhsa_accum_offset 256
  .amdhsa_group_segment_fixed_size 0
  .amdhsa_kernarg_size 88
  .amdhsa_user_sgpr_count 2
  .amdhsa_user_sgpr_kernarg_segment_ptr 1
  .amdhsa_system_sgpr_workgroup_id_x 1
.end_amdhsa_kernel
''' % NAME
sys.stdout.write(out)
```

```python
import struct
import sys
from asmlib import Asm
import layout as L

NAME = 'interleave_layers__sliding_local_dilated__mixer_channel_mlp__prompt'
DIAG = '--diag' in sys.argv
FASTMODE = ([x[7:] for x in sys.argv if x.startswith('--fast=')] + ['flags'])[0]
NOFAST = FASTMODE == 'none'
PAD = [int(x[6:]) for x in sys.argv if x.startswith('--pad=')]
DBG = '--dbg' in sys.argv or bool(PAD)
SPIN_LIMIT = 200000
OUTSC = ([x[8:] for x in sys.argv if x.startswith('--outsc=')] + [''])[0].replace('_', ' ')
SLEEP = int(([x[8:] for x in sys.argv if x.startswith('--sleep=')] + ['0'])[0])
INV = 0x80000000

a = Asm()

sXCC = 3
S_WS, S_TMP, S_B1, S_OUT = 4, 8, 12, 16
P_X, P_WQKV, P_WO, P_BX, P_W1, P_B1, P_W2, P_B2, P_OUT, P_DBG, P_WSP = 20, 22, 24, 26, 28, 30, 32, 34, 36, 38, 40
sS, sC, sG, sJ, sW, sT, sPAIR, sSPIN = 42, 43, 44, 45, 46, 47, 48, 49
sM1 = 50
sM2 = 58
sM0 = 66
sO = 74
sA, sB, sCc, sD = 90, 91, 92, 93
sMK = 94
sTS = 96
sGT = 98
sERR = 99
sSTI = 100
sFAST = 101
sFD = 27
sPFC = 26
sFH = 25


def srd(n):
    return 's[%d:%d]' % (n, n + 3)


def vr(n, k=4):
    return 'v[%d:%d]' % (n, n + k - 1)


def ar(n, k=4):
    return 'a[%d:%d]' % (n, n + k - 1)


def sp(n):
    return 's[%d:%d]' % (n, n + 1)


def f2h(x):
    return '0x%08x' % struct.unpack('<I', struct.pack('<f', x))[0]


V_T, V_STAMP = 254, 255
V_TOK, V_G = 250, 251
MFMA = 'v_mfma_f32_16x16x32_bf16'


DIAG2 = '--diag2' in sys.argv
PREF = '--pref' in sys.argv
TOUCH = '--notouch' not in sys.argv
P2EARLY = '--p2early' in sys.argv
SKEW = [int(x[7:]) for x in sys.argv if x.startswith('--skew=')]
DBGST = '--dbgst' in sys.argv


def stamp2():
    if DIAG2:
        stamp()


def stamp():
    if not DIAG:
        return
    a('s_memtime %s' % sp(sTS))
    a('s_waitcnt lgkmcnt(0)')
    a('s_lshl_b64 exec, 1, s%d' % sSTI)
    a('v_mov_b32 v%d, s%d' % (V_STAMP, sTS))
    a('s_mov_b64 exec, -1')
    a('s_add_u32 s%d, s%d, 1' % (sSTI, sSTI))


lab_no = [0]


def newlab(p):
    lab_no[0] += 1
    return '%s_%d' % (p, lab_no[0])


def skew_store(point, have=False):
    if not SKEW or SKEW[0] != point:
        return
    if not have:
        a('s_memrealtime s[96:97]')
        a('s_waitcnt lgkmcnt(0)')
    build_srd(S_TMP, P_DBG, 256)
    a('s_and_b32 s%d, s2, 15' % sA)
    a('s_or_b32 s%d, s%d, s%d' % (sA, sA, sW))
    a('s_cmp_eq_u32 s%d, 0' % sA)
    a('s_cselect_b32 s%d, 0, 0x%x' % (sA, INV))
    a('s_lshr_b32 s%d, s2, 2' % sB)
    a('s_or_b32 s%d, s%d, s%d' % (sA, sA, sB))
    a('v_mov_b32 v21, s%d' % sA)
    a('v_mov_b32 v22, s96')
    a('s_mov_b64 exec, 1')
    a('buffer_store_dword v22, v21, %s, 0 offen' % srd(S_TMP))
    a.vm_issued -= 1
    a('s_mov_b64 exec, -1')


def build_srd(dst, ptr, nbytes):
    a('s_mov_b32 s%d, s%d' % (dst, ptr))
    a('s_and_b32 s%d, s%d, 0xffff' % (dst + 1, ptr + 1))
    a('s_mov_b32 s%d, 0x%x' % (dst + 2, nbytes))
    a('s_mov_b32 s%d, 0x20000' % (dst + 3))


def poll(voff, off2=None):
    lab, done = newlab('L_poll'), newlab('L_polldone')
    a('s_mov_b64 exec, %s' % sp(sMK))
    a('s_mov_b32 s%d, 0' % sSPIN)
    a.label(lab)
    a('buffer_load_dword v253, v%d, %s, 0 offen sc1' % (voff, srd(S_WS)))
    if off2 is not None:
        a('buffer_load_dword v245, v%d, %s, 0 offen offset:%d sc1' % (voff, srd(S_WS), off2))
    a('s_waitcnt vmcnt(0)')
    if off2 is not None:
        a('v_xor_b32 v245, s%d, v245' % sT)
        a('v_xor_b32 v253, s%d, v253' % sT)
        a('v_or_b32 v253, v253, v245')
        a('v_cmp_ne_u32 vcc, 0, v253')
    else:
        a('v_cmp_ne_u32 vcc, s%d, v253' % sT)
    a('s_nop 4')
    a('s_cbranch_vccz %s' % done)
    if SLEEP:
        a('s_sleep %d' % SLEEP)
    a('s_add_u32 s%d, s%d, 1' % (sSPIN, sSPIN))
    a('s_cmp_lt_u32 s%d, %d' % (sSPIN, SPIN_LIMIT))
    a('s_cbranch_scc1 %s' % lab)
    a('s_add_u32 s%d, s%d, 1' % (sERR, sERR))
    a.label(done)
    a('s_mov_b64 exec, -1')


sMK2 = 30


def early_issue(dst, voff, off=0):
    a('s_mov_b64 exec, %s' % sp(sMK2))
    a('buffer_load_dword v%d, v%d, %s, 0 offen offset:%d sc1' % (dst, voff, srd(S_WS), off))
    a('s_mov_b64 exec, -1')
    return a.vm_mark()


def early_check(dst, voff, mark, off=0):
    ok = newlab('L_early')
    a.wait_vm(mark)
    a('s_mov_b64 exec, %s' % sp(sMK2))
    a('v_cmp_ne_u32 vcc, s%d, v%d' % (sT, dst))
    a('s_mov_b64 exec, -1')
    a('s_nop 2')
    a('s_cbranch_vccz %s' % ok)
    a('s_mov_b64 %s, %s' % (sp(sMK), sp(sMK2)))
    n = a.vm_issued
    if off:
        a('v_add_u32 v253, %d, v%d' % (off, voff))
        a('v_mov_b32 v%d, v253' % dst)
        poll(dst)
    else:
        poll(voff)
    a.vm_issued = n
    a.label(ok)


def store(fmt, cond=None):
    if cond is None or NOFAST or (FASTMODE == 'flags' and cond in (sFD, sFH, sPC)):
        a(fmt + ' sc1')
        return
    slow, done = newlab('L_slow'), newlab('L_st')
    a('s_cmp_eq_u32 s%d, 0' % cond)
    a('s_cbranch_scc1 %s' % slow)
    a(fmt)
    a('s_branch %s' % done)
    a.label(slow)
    a(fmt + ' sc1')
    a.vm_issued -= 1
    a.label(done)


def set_flags(voff, nlanes, cond=None, val=V_T, between=()):
    mark = a.vm_mark()
    for x in between:
        a(x)
    a.wait_vm(mark)
    a('s_mov_b64 exec, %d' % ((1 << nlanes) - 1))
    store('buffer_store_dword v%d, v%d, %s, 0 offen' % (val, voff, srd(S_WS)), cond)
    a('s_mov_b64 exec, -1')


def xg_reduce(x, t, op='v_add_f32'):
    return ['v_mov_b32 v%d, v%d' % (t, x),
            'v_permlane32_swap_b32 v%d, v%d' % (x, t),
            '%s v%d, v%d, v%d' % (op, x, x, t),
            'v_mov_b32 v%d, v%d' % (t, x),
            'v_permlane16_swap_b32 v%d, v%d' % (x, t),
            '%s v%d, v%d, v%d' % (op, x, x, t)]


EPS = 1e-5


def stats_finish(s1, s2, t, double_ln):
    o = ['v_mul_f32 v%d, %s, v%d' % (s1, f2h(1.0 / 448), s1),
         'v_mul_f32 v%d, %s, v%d' % (s2, f2h(1.0 / 448), s2),
         'v_fma_f32 v%d, -v%d, v%d, v%d' % (s2, s1, s1, s2),
         'v_max_f32 v%d, 0, v%d' % (s2, s2),
         'v_add_f32 v%d, %s, v%d' % (t, f2h(EPS), s2),
         'v_rsq_f32 v%d, v%d' % (t, t)]
    if not double_ln:
        o += ['v_mov_b32 v%d, v%d' % (s2, t)]
    else:
        o += ['v_mul_f32 v%d, v%d, v%d' % (s2, s2, t),
              'v_fmaak_f32 v%d, v%d, v%d, %s' % (s2, s2, t, f2h(EPS)),
              'v_rsq_f32 v%d, v%d' % (s2, s2),
              'v_mul_f32 v%d, v%d, v%d' % (s2, s2, t)]
    return o


def pair_base(dst, arr):
    a('s_mul_i32 s%d, s%d, %d' % (dst, sPAIR, arr[1] - arr[0]))
    a('s_add_u32 s%d, s%d, %d' % (dst, dst, arr[0]))


def quarter_offsets(n, stride):
    for t in range(n):
        if t:
            a('s_add_u32 s%d, s%d, %d' % (sO + 4 * t, sO + 4 * (t - 1), stride))
        for q in range(1, 4):
            a('s_add_u32 s%d, s%d, %d' % (sO + 4 * t + q, sO + 4 * t, 4096 * q))


sPX, sPS, sPF, sPC, sPX2 = 36, 37, 28, 29, 33


def stats_flags(delta, lsh):
    a('v_lshlrev_b32 v241, %d, v0' % lsh)
    a('s_add_u32 s%d, s%d, %d' % (sA, sPF, delta))
    a('v_add_u32 v241, s%d, v241' % sA)
    a('s_mov_b64 exec, 3')
    store('buffer_store_dword v%d, v241, %s, 0 offen' % (V_T, srd(S_WS)), sPFC)
    a('s_mov_b64 exec, -1')


a('s_cmp_ge_u32 s2, 256')
a('s_cbranch_scc1 L_end')
a('s_load_dwordx16 s[20:35], s[0:1], 0')
a('s_load_dwordx4 s[36:39], s[0:1], 64')
a('s_load_dwordx2 s[40:41], s[0:1], 80')
a('s_getreg_b32 s%d, hwreg(HW_REG_XCC_ID, 0, 4)' % sXCC)
a('s_and_b32 s%d, s2, 7' % sA)
a('s_lshr_b32 s%d, s2, 3' % sB)
a('s_lshr_b32 s%d, s%d, 4' % (sCc, sB))
a('s_lshl_b32 s%d, s%d, 1' % (sS, sA))
a('s_add_u32 s%d, s%d, s%d' % (sS, sS, sCc))
a('s_and_b32 s%d, s%d, 15' % (sC, sB))
a('s_lshr_b32 s%d, s%d, 3' % (sA, sC))
a('s_lshl_b32 s%d, s%d, 1' % (sG, sS))
a('s_add_u32 s%d, s%d, s%d' % (sG, sG, sA))
a('s_and_b32 s%d, s%d, 7' % (sJ, sC))
a('s_mov_b32 s%d, 0' % sERR)
if SKEW and SKEW[0] == 0:
    a('s_memrealtime s[96:97]')
if PREF:
    a('s_getpc_b64 s[96:97]')
    a.label('L_pc')
    a('s_lshl_b32 s%d, s%d, 11' % (sA, sB))
    a('v_lshlrev_b32 v3, 3, v0')
    a('v_add_u32 v3, s%d, v3' % sA)
    a('v_min_u32 v3, L_end-L_pc-8, v3')
    a('global_load_dwordx2 v[252:253], v3, s[96:97]')
a('v_lshrrev_b32 v2, 6, v0')
a('v_and_b32 v0, 63, v0')
a('v_readfirstlane_b32 s%d, v2' % sW)
a('v_lshlrev_b32 v1, 4, v0')
if DIAG:
    a('v_mov_b32 v%d, 0' % V_STAMP)
    a('s_mov_b32 s%d, 0' % sSTI)
stamp()
a('v_and_b32 v%d, 15, v0' % V_TOK)
a('v_lshrrev_b32 v%d, 4, v0' % V_G)
sSTG = 40
a('s_waitcnt lgkmcnt(0)')
if DBG:
    a('s_memtime s[26:27]')
    a('s_memrealtime s[0:1]')
    a('s_waitcnt lgkmcnt(0)')
skew_store(0, True)
build_srd(S_WS, P_WSP, L.WS_USED)
a('buffer_load_dword v%d, off, %s, 0 sc1' % (V_T, srd(S_WS)))
a('s_lshl_b32 s%d, s%d, 14' % (sSTG, sW))
a('s_add_u32 s%d, s%d, %d' % (sSTG, sSTG, L.L_R2))

build_srd(S_TMP, P_X, 2048 * 896)
a('v_mul_u32_u24 v2, 896, v%d' % V_TOK)
a('v_lshl_add_u32 v2, v%d, 3, v2' % V_G)
a('s_lshr_b32 s%d, s%d, 1' % (sA, sC))
a('s_lshl_b32 s%d, s%d, 3' % (sB, sS))
a('s_add_u32 s%d, s%d, s%d' % (sO + 0, sA, sB))
a('s_and_b32 s%d, s%d, 1' % (sA, sC))
a('s_mul_i32 s%d, s%d, 7' % (sA, sA))
a('s_add_u32 s%d, s%d, s%d' % (sO + 1, sA, sW))
a('s_cmp_lt_u32 s%d, 3' % sW)
a('s_cselect_b32 s%d, 0, 0x%x' % (sO + 2, INV))
a('s_mul_i32 s%d, s%d, 14336' % (sA, sO + 0))
a('s_lshl_b32 s%d, s%d, 6' % (sB, sO + 1))
a('s_add_u32 s%d, s%d, s%d' % (sA, sA, sB))
a('v_or_b32 v3, s%d, v2' % (sO + 2))
a('buffer_load_dwordx2 v[10:11], v2, %s, s%d offen' % (srd(S_TMP), sA))
a('buffer_load_dwordx2 v[12:13], v2, %s, s%d offen offset:32' % (srd(S_TMP), sA))
a('buffer_load_dwordx2 v[14:15], v3, %s, s%d offen offset:256' % (srd(S_TMP), sA))
a('buffer_load_dwordx2 v[16:17], v3, %s, s%d offen offset:288' % (srd(S_TMP), sA))

build_srd(S_TMP, P_WQKV, 448 * 2688)
qMAT, qU, qINV = sO + 3, sO + 4, sO + 5
a('s_lshl_b32 s%d, s%d, 4' % (sA, sW))
a('s_add_u32 s%d, s%d, s%d' % (sA, sA, sS))
a('s_cmp_lt_u32 s%d, 42' % sA)
a('s_cselect_b32 s%d, 0, 0x%x' % (qINV, INV))
a('s_min_u32 s%d, s%d, 41' % (sA, sA))
a('s_mul_i32 s%d, s%d, 4682' % (qMAT, sA))
a('s_lshr_b32 s%d, s%d, 16' % (qMAT, qMAT))
a('s_mul_i32 s%d, s%d, 14' % (sB, qMAT))
a('s_sub_u32 s%d, s%d, s%d' % (qU, sA, sB))
a('s_mul_i32 s%d, s%d, %d' % (sA, qU, 32 * 2688))
a('s_mul_i32 s%d, s%d, 896' % (sB, qMAT))
a('s_add_u32 s%d, s%d, s%d' % (sA, sA, sB))
a('s_mul_i32 s%d, s%d, 56' % (sB, sC))
a('s_add_u32 s%d, s%d, s%d' % (sA, sA, sB))
a('v_lshrrev_b32 v4, 2, v0')
a('v_mul_u32_u24 v4, 2688, v4')
a('v_and_b32 v5, 3, v0')
a('v_lshl_add_u32 v4, v5, 4, v4')
a('v_or_b32 v4, s%d, v4' % qINV)
a('s_mov_b32 m0, s%d' % sSTG)
a('s_add_u32 s%d, s%d, %d' % (sB, sA, 16 * 2688))
a('buffer_load_dwordx4 v4, %s, s%d offen lds' % (srd(S_TMP), sA))
a('s_add_u32 m0, s%d, 1024' % sSTG)
a('s_nop 0')
a('buffer_load_dwordx4 v4, %s, s%d offen lds' % (srd(S_TMP), sB))

bINV, bDST, bSTR, bINV2, bDST2, sSTRD = 20, 21, 22, 23, 24, 25


def emit_p2_issue():
    a('s_cmp_eq_u32 s%d, 3' % sW)
    a('s_cbranch_scc1 L_p2_w1')
    a('s_lshl_b32 s%d, s%d, 5' % (sA, sW))
    a('s_add_u32 s%d, s%d, s%d' % (sA, sA, sG))
    a('s_cmp_lt_u32 s%d, 72' % sA)
    a('s_cselect_b32 s%d, 0, 0x%x' % (bINV, INV))
    a('s_cmp_eq_u32 s%d, 7' % sJ)
    a('s_cselect_b32 s%d, 0x%x, s%d' % (bINV, INV, bINV))
    a('s_min_u32 s%d, s%d, 71' % (sA, sA))
    a('s_min_u32 s%d, s%d, 6' % (sD, sJ))
    a('s_cmp_lt_u32 s%d, 16' % sA)
    a('s_cselect_b32 s%d, s%d, s%d' % (S_TMP, P_WO, P_W2))
    a('s_cselect_b32 s%d, s%d, s%d' % (S_TMP + 1, P_WO + 1, P_W2 + 1))
    a('s_mov_b32 s%d, 0x%x' % (S_TMP + 2, 1792 * 896))
    a('s_cselect_b32 s%d, 0x%x, s%d' % (S_TMP + 2, 448 * 896, S_TMP + 2))
    a('s_cselect_b32 s%d, 28, 32' % sB)
    a('s_cselect_b32 s%d, 0, 16' % sCc)
    a('s_mov_b32 s%d, %d' % (bSTR, 56 * 1024))
    a('s_cselect_b32 s%d, %d, s%d' % (bSTR, 16 * 1024, bSTR))
    a('s_mov_b32 s%d, %d' % (bDST, L.WD))
    a('s_cselect_b32 s%d, %d, s%d' % (bDST, L.WB, bDST))
    a('s_cselect_b32 s%d, 0x%x, 0' % (sO + 9, INV))
    a('s_and_b32 s%d, s%d, 0xffff' % (S_TMP + 1, S_TMP + 1))
    a('s_mov_b32 s%d, 0x20000' % (S_TMP + 3))
    a('s_sub_u32 s%d, s%d, s%d' % (sA, sA, sCc))
    a('s_lshl_b32 s%d, s%d, 10' % (sCc, sA))
    a('s_add_u32 s%d, s%d, s%d' % (bDST, bDST, sCc))
    a('s_lshl_b32 s%d, s%d, 2' % (sCc, sD))
    a('s_mul_i32 s%d, s%d, s%d' % (sCc, sCc, bSTR))
    a('s_add_u32 s%d, s%d, s%d' % (bDST, bDST, sCc))
    a('s_mul_i32 s%d, s%d, s%d' % (sA, sA, sB))
    a('s_mul_i32 s%d, s%d, 896' % (sA, sA))
    a('s_lshl_b32 s%d, s%d, 7' % (sB, sD))
    a('s_add_u32 s%d, s%d, s%d' % (sO + 10, sA, sB))
    a('s_mov_b32 s%d, 896' % sSTRD)
    a('s_mov_b32 s%d, 0x%x' % (bINV2, INV))
    a('s_mov_b32 s%d, 0' % bDST2)
    a('s_mov_b32 s%d, 0' % (sO + 11))
    a('s_branch L_p2_go')
    a.label('L_p2_w1')
    build_srd(S_TMP, P_W1, 448 * 3584)
    a('s_lshl_b32 s%d, s%d, 4' % (sA, sS))
    a('s_add_u32 s%d, s%d, s%d' % (sA, sA, sC))
    a('s_cmp_lt_u32 s%d, 136' % sA)
    a('s_cselect_b32 s%d, 0, 0x%x' % (bINV2, INV))
    a('s_mov_b32 s%d, 0' % bINV)
    a('s_mov_b32 s%d, 0' % (sO + 9))
    a('s_mov_b32 s%d, %d' % (bSTR, 14 * 1024))
    a('s_mov_b32 s%d, 3584' % sSTRD)
    for dst, src, add in ((bDST, sO + 10, 0), (bDST2, sO + 11, 256)):
        a('s_add_u32 s%d, s%d, %d' % (sB, sA, add))
        a('s_min_u32 s%d, s%d, 391' % (sB, sB))
        a('s_mul_i32 s%d, s%d, 4682' % (sCc, sB))
        a('s_lshr_b32 s%d, s%d, 16' % (sCc, sCc))
        a('s_mul_i32 s%d, s%d, 14' % (sD, sCc))
        a('s_sub_u32 s%d, s%d, s%d' % (sB, sB, sD))
        a('s_mul_i32 s%d, s%d, %d' % (src, sB, 32 * 3584))
        a('s_lshl_b32 s%d, s%d, 7' % (sD, sCc))
        a('s_add_u32 s%d, s%d, s%d' % (src, src, sD))
        a('s_mul_i32 s%d, s%d, 56' % (sD, sCc))
        a('s_add_u32 s%d, s%d, s%d' % (sD, sD, sB))
        a('s_lshl_b32 s%d, s%d, 10' % (sD, sD))
        a('s_add_u32 s%d, s%d, %d' % (dst, sD, L.WC))
    a.label('L_p2_go')
    a('v_lshrrev_b32 v6, 3, v0')
    a('v_mul_lo_u32 v6, v6, s%d' % sSTRD)
    a('v_and_b32 v5, 7, v0')
    a('v_lshl_add_u32 v6, v5, 4, v6')
    a('v_or_b32 v8, s%d, v6' % bINV2)
    a('v_or_b32 v6, s%d, v6' % bINV)
    a('v_cmp_lt_u32 vcc, 31, v0')
    a('v_mov_b32 v7, s%d' % (sO + 9))
    a('v_cndmask_b32 v7, 0, v7, vcc')
    a('v_or_b32 v7, v7, v6')
    a('s_lshl_b32 s%d, s%d, 3' % (sB, sSTRD))
    for slot in range(2):
        src = sO + 10 + slot
        for q in range(4):
            a('s_add_u32 m0, s%d, %d' % (sSTG, 2048 + 4096 * slot + 1024 * q))
            if q:
                a('s_add_u32 s%d, s%d, s%d' % (src, src, sB))
            else:
                a('s_nop 0')
            a('buffer_load_dwordx4 v%d, %s, s%d offen lds' % (8 if slot else (7 if q == 3 else 6), srd(S_TMP), src))


if P2EARLY:
    emit_p2_issue()
build_srd(S_B1, P_B1, 1792 * 2)
build_srd(S_OUT, P_OUT, 2048 * 896)
a('v_bfe_u32 v18, v0, 2, 2')
a('v_lshl_add_u32 v18, v%d, 2, v18' % V_G)
a('v_and_b32 v19, 3, v0')
a('v_lshlrev_b32 v19, 3, v19')
if TOUCH:
    a('v_lshlrev_b32 v21, 21, v0')
    a('s_mov_b64 exec, 0x1ffff')
    a('buffer_load_dword v253, v21, %s, 0 offen' % srd(S_WS))
    a('s_mov_b64 exec, -1')
    a('s_waitcnt vmcnt(%d)' % (9 if P2EARLY else 1))
else:
    a('s_waitcnt vmcnt(%d)' % (8 if P2EARLY else 0))
stamp()

a('s_mov_b32 s%d, 0x9E3779B1' % sA)
a('v_mul_lo_u32 v%d, v%d, s%d' % (V_T, V_T, sA))
a('v_add_u32 v%d, 0x7F4A7C15, v%d' % (V_T, V_T))
a('v_and_b32 v%d, -16, v%d' % (V_T, V_T))
a('v_lshl_add_u32 v20, v18, 6, v19')
a('v_add_u32 v20, s%d, v20' % sSTG)
for hf in range(2):
    a('ds_read_b64_tr_b16 %s, v20 offset:%d' % (vr(24 + 4 * hf, 2), 32 * hf))
    a('ds_read_b64_tr_b16 %s, v20 offset:%d' % (vr(26 + 4 * hf, 2), 32 * hf + 1024))
a('v_readfirstlane_b32 s%d, v%d' % (sT, V_T))
a('s_mul_i32 s%d, s%d, 14' % (sA, sO + 0))
a('s_add_u32 s%d, s%d, s%d' % (sA, sA, sO + 1))
a('s_lshl_b32 s%d, s%d, 10' % (sB, sA))
a('s_add_u32 s%d, s%d, %d' % (sB, sB, L.XA[0]))
a('v_or_b32 v3, s%d, v1' % (sO + 2))
a('buffer_store_dwordx4 v[10:13], v1, %s, s%d offen sc1' % (srd(S_WS), sB))
a('s_add_u32 s%d, s%d, 4096' % (sB, sB))
a('buffer_store_dwordx4 v[14:17], v3, %s, s%d offen sc1' % (srd(S_WS), sB))
a('v_cmp_gt_u32 vcc, 12, v%d' % V_TOK)
a('s_mul_i32 s%d, s%d, 84' % (sB, sC))
a('s_mul_i32 s%d, s%d, 28' % (sCc, qMAT))
a('s_add_u32 s%d, s%d, s%d' % (sB, sB, sCc))
a('s_add_u32 s%d, s%d, s%d' % (sB, sB, qU))
a('s_lshl_b32 s%d, s%d, 10' % (sB, sB))
a('s_add_u32 s%d, s%d, %d' % (sB, sB, L.WA))
a('v_or_b32 v4, s%d, v1' % qINV)
a('s_waitcnt lgkmcnt(0)')
for p in range(4):
    a('v_cndmask_b32 v%d, 0, v%d, vcc' % (28 + p, 28 + p))
a('buffer_store_dwordx4 v[24:27], v4, %s, s%d offen sc1' % (srd(S_WS), sB))
a('s_add_u32 s%d, s%d, %d' % (sB, sB, 14 * 1024))
a('buffer_store_dwordx4 v[28:31], v4, %s, s%d offen sc1' % (srd(S_WS), sB))
a('v_mov_b32 v2, 0x3f803f80')
for k in range(2):
    x, s1, s2 = 10 + 4 * k, 110 + 2 * k, 111 + 2 * k
    a('v_mov_b32 v%d, 0' % s1)
    a('v_mov_b32 v%d, 0' % s2)
    for p in range(4):
        a('v_dot2_f32_bf16 v%d, v%d, v2, v%d' % (s1, x + p, s1))
        a('v_dot2_f32_bf16 v%d, v%d, v%d, v%d' % (s2, x + p, x + p, s2))
    for t in xg_reduce(s1, 114) + xg_reduce(s2, 115):
        a(t)
a('s_lshl_b32 s%d, s%d, 7' % (sB, sA))
a('s_add_u32 s%d, s%d, %d' % (sB, sB, L.SA[0]))
a('v_lshlrev_b32 v2, 3, v%d' % V_TOK)
a('v_or_b32 v3, s%d, v2' % (sO + 2))
a('s_mov_b64 exec, 0xffff')
a('buffer_store_dwordx2 v[110:111], v2, %s, s%d offen sc1' % (srd(S_WS), sB))
a('buffer_store_dwordx2 v[112:113], v3, %s, s%d offen offset:512 sc1' % (srd(S_WS), sB))
a('s_mov_b64 exec, -1')
crit_mark = a.vm_mark()
if not P2EARLY:
    emit_p2_issue()
a('s_lshl_b32 s%d, s%d, 5' % (sA, sO + 0))
a('s_add_u32 s%d, s%d, s%d' % (sA, sA, sO + 1))
a('s_lshl_b32 s%d, s%d, 2' % (sA, sA))
a('s_add_u32 s%d, s%d, %d' % (sA, sA, L.FX[0]))
a('v_lshlrev_b32 v2, 4, v0')
a('v_add_u32 v2, s%d, v2' % sA)
a('v_cmp_eq_u32 vcc, 1, v0')
a('v_mov_b32 v3, s%d' % (sO + 2))
a('v_cndmask_b32 v3, 0, v3, vcc')
a('v_or_b32 v2, v2, v3')
a('s_lshl_b32 s%d, s%d, 6' % (sA, sC))
a('s_lshl_b32 s%d, s%d, 2' % (sB, sS))
a('s_add_u32 s%d, s%d, s%d' % (sA, sA, sB))
a('s_add_u32 s%d, s%d, s%d' % (sA, sA, sW))
a('s_lshl_b32 s%d, s%d, 2' % (sA, sA))
a('s_add_u32 s%d, s%d, %d' % (sA, sA, L.FQ))
a('v_mov_b32 v3, s%d' % sA)
a('v_cmp_eq_u32 vcc, 2, v0')
a('v_cndmask_b32 v2, v2, v3, vcc')
a('s_lshl_b32 s%d, s%d, 4' % (sA, sS))
a('s_add_u32 s%d, s%d, s%d' % (sA, sA, sC))
a('s_lshl_b32 s%d, s%d, 2' % (sA, sA))
a('s_add_u32 s%d, s%d, %d' % (sA, sA, L.FXC))
a('s_cmp_eq_u32 s%d, 0' % sW)
a('s_cselect_b32 s%d, s%d, 0x%x' % (sA, sA, INV))
a('v_mov_b32 v3, s%d' % sA)
a('v_cmp_eq_u32 vcc, 3, v0')
a('v_cndmask_b32 v2, v2, v3, vcc')
a('v_or_b32 v3, s%d, v%d' % (sXCC, V_T))
a('v_cndmask_b32 v3, v%d, v3, vcc' % V_T)
stamp2()
a.wait_vm(crit_mark)
a('s_mov_b64 exec, 15')
a('buffer_store_dword v3, v2, %s, 0 offen sc1' % srd(S_WS))
a('s_mov_b64 exec, -1')
stamp()

skew_store(1)
a('s_waitcnt vmcnt(1)')
a('v_lshl_add_u32 v20, v18, 7, v19')
a('v_add_u32 v20, s%d, v20' % sSTG)
for slot in range(2):
    for t in range(4):
        a('ds_read_b64_tr_b16 %s, v20 offset:%d' % (vr(24 + 16 * slot + 4 * t, 2), 2048 + 4096 * slot + 32 * t))
        a('ds_read_b64_tr_b16 %s, v20 offset:%d' % (vr(26 + 16 * slot + 4 * t, 2), 2048 + 4096 * slot + 32 * t + 2048))
a('v_or_b32 v6, s%d, v1' % bINV)
a('v_or_b32 v8, s%d, v1' % bINV2)
a('s_waitcnt lgkmcnt(8)')
for t in range(4):
    a('buffer_store_dwordx4 %s, v6, %s, s%d offen sc1' % (vr(24 + 4 * t), srd(S_WS), bDST))
    if t < 3:
        a('s_add_u32 s%d, s%d, s%d' % (bDST, bDST, bSTR))
a('s_waitcnt lgkmcnt(0)')
for t in range(4):
    a('buffer_store_dwordx4 %s, v8, %s, s%d offen sc1' % (vr(40 + 4 * t), srd(S_WS), bDST2))
    if t < 3:
        a('s_add_u32 s%d, s%d, s%d' % (bDST2, bDST2, bSTR))
a('s_lshl_b32 s%d, s%d, 4' % (sA, sS))
a('s_add_u32 s%d, s%d, s%d' % (sA, sA, sC))
a('s_lshl_b32 s%d, s%d, 2' % (sA, sA))
a('s_add_u32 s%d, s%d, %d' % (sA, sA, L.FW1))
a('v_lshlrev_b32 v22, 10, v0')
a('v_add_u32 v22, s%d, v22' % sA)
a('v_cmp_eq_u32 vcc, 1, v0')
a('v_mov_b32 v23, s%d' % bINV2)
a('v_cndmask_b32 v23, 0, v23, vcc')
a('v_or_b32 v22, v22, v23')
a('s_cmp_eq_u32 s%d, 3' % sW)
a('s_cselect_b32 s%d, 0, 0x%x' % (sA, INV))
a('v_or_b32 v22, s%d, v22' % sA)

skew_store(3)
a('v_and_b32 v2, 1, v%d' % V_TOK)
a('v_lshlrev_b32 v3, 2, v%d' % V_G)
a('v_add_u32 v6, 2, v%d' % V_TOK)
for i in range(4):
    a('v_add_u32 v4, %d, v3' % i)
    a('v_cmp_eq_u32 vcc, %d, v2' % (i & 1))
    a('s_mov_b64 %s, vcc' % sp(sMK))
    a('v_cmp_ge_u32 vcc, v4, v6')
    a('s_and_b64 %s, vcc, %s' % (sp(sM1 + 2 * i), sp(sMK)))
    a('v_cmp_le_u32 vcc, v4, v%d' % V_TOK)
    a('s_and_b64 %s, vcc, %s' % (sp(sM2 + 2 * i), sp(sMK)))
a('s_lshl_b32 s%d, s%d, 3' % (sA, sS))
a('s_lshl_b32 s%d, s%d, 1' % (sB, sW))
a('s_add_u32 s%d, s%d, s%d' % (sGT, sA, sB))
a('s_cmp_eq_u32 s%d, 0' % sGT)
for i in range(4):
    a('s_cselect_b64 %s, 0, %s' % (sp(sM0 + 2 * i), sp(sM1 + 2 * i)))
a('s_mov_b32 s%d, 0' % sPAIR)

def a_flag_addr(dst):
    pair_base(sA, L.FX)
    a('s_lshl_b32 s%d, s%d, 7' % (sB, sGT))
    a('s_add_u32 s%d, s%d, s%d' % (sA, sA, sB))
    a('s_sub_u32 s%d, s%d, 128' % (sA, sA))
    a('v_and_b32 v%d, 48, v0' % dst)
    a('v_add_u32 v%d, v%d, v0' % (dst, dst))
    a('v_lshl_add_u32 v%d, v%d, 2, s%d' % (dst, dst, sA))
    a('s_mov_b32 s%d, 0x3fff3fff' % sMK)
    a('s_mov_b32 s%d, 0x3fff' % (sMK + 1))
    a('s_cmp_eq_u32 s%d, 0' % sGT)
    a('s_cselect_b32 s%d, 0x3fff0000, s%d' % (sMK, sMK))


a('s_lshl_b32 s%d, s%d, 8' % (sA, sC))
a('s_add_u32 s%d, s%d, %d' % (sA, sA, L.FQ))
a('v_lshl_add_u32 v2, v0, 2, s%d' % sA)
a_flag_addr(3)
a('s_lshl_b32 s%d, s%d, 6' % (sA, sS))
a('s_add_u32 s%d, s%d, %d' % (sA, sA, L.FXC - 48 * 4))
a('v_lshl_add_u32 v4, v0, 2, s%d' % sA)
a('v_cmp_lt_u32 vcc, 47, v0')
a('v_cndmask_b32 v3, v3, v4, vcc')
a('v_mov_b32 v5, -1')
a('v_mov_b32 v6, -16')
a('v_cndmask_b32 v5, v5, v6, vcc')
a('s_or_b32 s%d, s%d, 0xffff0000' % (sMK + 1, sMK + 1))
a('s_mov_b32 s%d, 0' % sSPIN)
a.label('L_poll0')
a('buffer_load_dword v7, v2, %s, 0 offen sc1' % srd(S_WS))
a('s_mov_b64 exec, %s' % sp(sMK))
a('buffer_load_dword v8, v3, %s, 0 offen sc1' % srd(S_WS))
a('s_waitcnt vmcnt(0)')
a('v_and_b32 v9, v5, v8')
a('v_cmp_ne_u32 vcc, s%d, v9' % sT)
a('s_mov_b64 exec, -1')
a('s_mov_b64 %s, vcc' % sp(sTS))
a('v_cmp_ne_u32 vcc, s%d, v7' % sT)
a('s_or_b64 vcc, vcc, %s' % sp(sTS))
a('s_cbranch_vccz L_poll0_done')
a('s_add_u32 s%d, s%d, 1' % (sSPIN, sSPIN))
a('s_cmp_lt_u32 s%d, %d' % (sSPIN, SPIN_LIMIT))
a('s_cbranch_scc1 L_poll0')
a('s_add_u32 s%d, s%d, 1' % (sERR, sERR))
a.label('L_poll0_done')
a('s_mov_b64 exec, 3')
a('buffer_store_dword v%d, v22, %s, 0 offen sc1' % (V_T, srd(S_WS)))
a('s_mov_b64 exec, -1')
skew_store(2)
a('v_and_b32 v9, 15, v8')
a('v_cmp_ne_u32 vcc, s%d, v9' % sXCC)
a('s_and_b32 s%d, vcc_hi, 0xffff0000' % sA)
a('s_cmp_eq_u32 s%d, 0' % sA)
a('s_cselect_b32 s%d, 1, 0' % sFAST)
stamp()
AQ, AK, AV = 2, 18, 42
WBUF = [66, 90]
XR = 114
CSACC = 186
STR = 210
SM, SR = 234, 237
NR, LOOK = 6, 4
A_ONES = 240


def a_xload(u):
    slot = u % NR
    return ['buffer_load_dwordx4 %s, v1, %s, s%d offen offset:%d sc1' %
            (vr(XR + (slot * 3 + t) * 4), srd(S_WS), sO + 4 * t + (u >> 2), 1024 * (u & 3)) for t in range(3)]


def a_offsets():
    pair_base(sA, L.XA)
    a('s_mul_i32 s%d, s%d, 14336' % (sB, sGT))
    a('s_add_u32 s%d, s%d, s%d' % (sO + 4, sA, sB))
    a('s_add_u32 s%d, s%d, 14336' % (sO + 8, sO + 4))
    a('s_sub_u32 s%d, s%d, 14336' % (sO + 0, sO + 4))
    a('s_cmp_eq_u32 s%d, 0' % sGT)
    a('s_cselect_b32 s%d, s%d, s%d' % (sO + 0, sO + 4, sO + 0))
    for t in range(3):
        for q in range(1, 4):
            a('s_add_u32 s%d, s%d, %d' % (sO + 4 * t + q, sO + 4 * t, 4096 * q))


def a_setup():
    if FASTMODE == 'flags':
        a('s_mov_b32 s%d, 0' % sFD)
        a('s_mov_b32 s%d, 0' % sFH)
    elif FASTMODE == 'p0':
        a('s_xor_b32 s%d, s%d, 1' % (sFD, sPAIR))
        a('s_and_b32 s%d, s%d, s%d' % (sFD, sFD, sFAST))
        a('s_mov_b32 s%d, s%d' % (sFH, sFD))
    elif FASTMODE == 'small':
        a('s_mov_b32 s%d, s%d' % (sFD, sFAST))
        a('s_mov_b32 s%d, 0' % sFH)
    elif FASTMODE == 'smallp0':
        a('s_mov_b32 s%d, s%d' % (sFD, sFAST))
        a('s_xor_b32 s%d, s%d, 1' % (sFH, sPAIR))
        a('s_and_b32 s%d, s%d, s%d' % (sFH, sFH, sFAST))
    else:
        a('s_mov_b32 s%d, s%d' % (sFD, sFAST))
        a('s_mov_b32 s%d, s%d' % (sFH, sFAST))
    pair_base(sA, L.SA)
    a('s_mul_i32 s%d, s%d, 1792' % (sB, sGT))
    a('s_add_u32 s%d, s%d, s%d' % (sO + 13, sA, sB))
    a('s_add_u32 s%d, s%d, 1792' % (sO + 14, sO + 13))
    a('s_sub_u32 s%d, s%d, 1792' % (sO + 12, sO + 13))
    a('s_cmp_eq_u32 s%d, 0' % sGT)
    a('s_cselect_b32 s%d, s%d, s%d' % (sO + 12, sO + 13, sO + 12))
    a('v_and_b32 v%d, 15, v0' % V_TOK)
    a('v_lshrrev_b32 v%d, 4, v0' % V_G)
    a('v_lshlrev_b32 v240, 3, v%d' % V_TOK)
    a('v_lshl_add_u32 v240, v%d, 7, v240' % V_G)
    a('v_mov_b32 v242, 0x%x' % INV)
    a('v_cmp_lt_u32 vcc, 1, v%d' % V_G)
    a('v_cndmask_b32 v241, 0, v242, vcc')
    a('v_or_b32 v241, v241, v240')
    a('v_add_u32 v243, %d, v1' % (56 * 1024))
    a('v_lshlrev_b32 v244, 4, v%d' % V_G)
    a('v_add_u32 v244, %d, v244' % L.L_CSA)
    a('v_lshlrev_b32 v245, 2, v%d' % V_TOK)
    a('v_add_u32 v245, %d, v245' % L.L_CSA)
    a('s_lshl_b32 s%d, s%d, 7' % (sA, sJ))
    a('s_add_u32 s%d, s%d, %d' % (sA, sA, L.FP))
    a('v_lshl_add_u32 v248, v0, 2, s%d' % sA)
    a('s_lshr_b32 s%d, s%d, 1' % (sB, sW))
    a('s_lshl_b32 s%d, s%d, 2' % (sCc, sG))
    a('s_add_u32 s%d, s%d, s%d' % (sB, sB, sCc))
    a('s_lshl_b32 s%d, s%d, 5' % (sB, sB))
    a('s_and_b32 s%d, s%d, 1' % (sA, sW))
    a('s_add_u32 s%d, s%d, s%d' % (sB, sB, sA))
    a('s_min_u32 s%d, s%d, 6' % (sA, sJ))
    a('s_lshl_b32 s%d, s%d, 1' % (sA, sA))
    a('s_add_u32 s%d, s%d, s%d' % (sB, sB, sA))
    a('s_lshl_b32 s%d, s%d, 2' % (sB, sB))
    a('s_add_u32 s%d, s%d, %d' % (sB, sB, L.FX[0] - 32 * 256))
    a('v_lshl_add_u32 v249, v0, 8, s%d' % sB)
    a('v_cmp_lt_u32 vcc, 31, v0')
    a('v_cndmask_b32 v248, v248, v249, vcc')
    a('s_lshr_b32 s%d, s%d, 3' % (sA, sC))
    a('s_mul_i32 s%d, s%d, 7' % (sA, sA))
    a('s_min_u32 s%d, s%d, 6' % (sB, sJ))
    a('s_add_u32 s%d, s%d, s%d' % (sA, sA, sB))
    a('s_mul_i32 s%d, s%d, 112' % (sA, sA))
    a('s_add_u32 s%d, s%d, %d' % (sA, sA, L.FW1 - 34 * 4))
    a('v_lshl_add_u32 v249, v0, 2, s%d' % sA)
    a('v_cmp_lt_u32 vcc, 33, v0')
    a('v_cndmask_b32 v248, v248, v249, vcc')
    a('s_cmp_eq_u32 s%d, 0' % sPAIR)
    a('s_mov_b32 s%d, %d' % (sA, L.FSA - 128))
    a('s_cselect_b32 s%d, %d, s%d' % (sA, L.FX[0] - 128, sA))
    a('s_lshl_b32 s%d, s%d, 7' % (sB, sGT))
    a('s_add_u32 s%d, s%d, s%d' % (sA, sA, sB))
    a('v_and_b32 v247, 48, v0')
    a('v_add_u32 v247, v247, v0')
    a('v_lshl_add_u32 v247, v247, 2, s%d' % sA)
    a('s_mov_b32 s%d, 0x3fff3fff' % sMK2)
    a('s_mov_b32 s%d, 0x3fff' % (sMK2 + 1))
    a('s_cmp_eq_u32 s%d, 0' % sGT)
    a('s_cselect_b32 s%d, 0x3fff0000, s%d' % (sMK2, sMK2))


stat_loads = ['buffer_load_dwordx2 %s, v%d, %s, s%d offen offset:%d sc1' %
              (vr(STR + (t * 4 + i) * 2, 2), 241 if i == 3 else 240, srd(S_WS), sO + 12 + t, 512 * i)
              for t in range(3) for i in range(4)]


def a_wread(u):
    b = WBUF[u & 1]
    o = []
    for p in range(6):
        if p < 4:
            o.append('ds_read_b128 %s, v1 offset:%d' % (vr(b + 4 * p), L.L_WA + (p * 14 + u) * 1024))
        else:
            o.append('ds_read_b128 %s, v243 offset:%d' % (vr(b + 4 * p), L.L_WA + ((p - 4) * 14 + u) * 1024))
    return o


stat_fill = []
for t in range(3):
    r = STR + 8 * t
    for c_ in range(2):
        stat_fill += ['v_add_f32 v%d, v%d, v%d' % (r + c_, r + c_, r + 2 + c_),
                      'v_add_f32 v%d, v%d, v%d' % (r + 4 + c_, r + 4 + c_, r + 6 + c_),
                      'v_add_f32 v%d, v%d, v%d' % (r + c_, r + c_, r + 4 + c_)]
    stat_fill += xg_reduce(r, r + 2) + xg_reduce(r + 1, r + 3)
    stat_fill += stats_finish(r, r + 1, r + 2, False)
    stat_fill += ['v_mov_b32 v%d, v%d' % (SM + t, r), 'v_mov_b32 v%d, v%d' % (SR + t, r + 1)]

sWA = [20, 21, 22]
sWAG = 23


def wa_dma(pr, i):
    def f():
        a('s_add_u32 m0, s%d, %d' % (sWA[i], L.L_WA + 2048 * pr))
        a('s_add_u32 s%d, s%d, s%d' % (sD, sWA[i], sWAG))
        if pr:
            a('s_add_u32 s%d, s%d, %d' % (sD, sD, 2048 * pr))
        a('buffer_load_dwordx4 v1, %s, s%d offen sc1 lds' % (srd(S_WS), sD))
    return f


amark = {}


def emit_a_loop(first, xmark, wam):
    ep_mark = es_mark = st_mark = None
    for t in a_wread(0):
        a(t)
    for u in range(14):
        need = xmark[u]
        if u == 12:
            need = max(need, st_mark)
        a.wait_vm(need)
        if u == 6:
            early_check(246, 247, es_mark)
        if u == 11:
            a('s_mov_b32 s%d, -1' % sMK2)
            a('s_mov_b32 s%d, 0x3fffffff' % (sMK2 + 1))
        a('s_waitcnt lgkmcnt(0)')
        wb = WBUF[u & 1]
        xs = XR + (u % NR) * 12
        mf = []
        cz = (lambda r: '0') if u == 0 else (lambda r: vr(r))
        for t in range(2):
            for hf in range(2):
                r = AQ + (t * 2 + hf) * 4
                mf.append('%s %s, %s, %s, %s' % (MFMA, vr(r), vr(wb + 4 * hf), vr(xs + 4 * (t + 1)), cz(r)))
        for t in range(3):
            for hf in range(2):
                r = AK + (t * 2 + hf) * 4
                mf.append('%s %s, %s, %s, %s' % (MFMA, vr(r), vr(wb + 8 + 4 * hf), vr(xs + 4 * t), cz(r)))
        for t in range(3):
            for hf in range(2):
                r = AV + (t * 2 + hf) * 4
                mf.append('%s %s, %s, %s, %s' % (MFMA, vr(r), vr(xs + 4 * t), vr(wb + 16 + 4 * hf), cz(r)))
        if first:
            for p in range(6):
                r = CSACC + 4 * p
                if p < 4:
                    mf.append('%s %s, %s, %s, %s' % (MFMA, vr(r), vr(wb + 4 * p), ar(A_ONES), cz(r)))
                else:
                    mf.append('%s %s, %s, %s, %s' % (MFMA, vr(r), ar(A_ONES), vr(wb + 4 * p), cz(r)))
        mem = {}

        def put(k, x):
            mem.setdefault(k, []).append(x)
        off = 0
        if first and u % 2 == 1 and u < 13:
            put(2, ('bar', (u + 1) // 2))
            off = 3
        if u < 13:
            for k, x in enumerate(a_wread(u + 1)):
                put(off + k, x)
        elif not first:
            for p in range(4):
                put(p, 'ds_read_b128 %s, v244 offset:%d' % (vr(WBUF[0] + 4 * p), 64 * p))
            for d in range(2):
                put(4 + d, 'ds_read_b32 v%d, v245 offset:%d' % (WBUF[0] + 16 + d, 64 * (4 + d)))
        if u + LOOK < 14:
            for k, x in zip((6, 9, 12), a_xload(u + LOOK)):
                put(k + off, x)
            put(12 + off, ('xm', u + LOOK))
        if first and u % 2 == 0 and u // 2 + 3 <= 6:
            for i, k in enumerate((13, 16, 19)):
                put(k, ('wa', u // 2 + 3, i))
        if 6 <= u < 10:
            for k, x in zip((8, 11, 14), stat_loads[3 * (u - 6):3 * (u - 6) + 3]):
                put(k, x)
            if u == 9:
                put(14, ('st',))
        if u == 11:
            put(8, ('early',))
        if u == 4:
            put(8, ('estat',))
        fill = stat_fill[(u - 12) * 30:(u - 11) * 30] if u >= 12 else []
        fi = 0
        for k, m in enumerate(mf):
            a(m)
            for it in mem.get(k, []):
                if isinstance(it, str):
                    a(it)
                elif it[0] == 'early':
                    ep_mark = early_issue(249, 248)
                elif it[0] == 'estat':
                    es_mark = early_issue(246, 247)
                elif it[0] == 'xm':
                    xmark[it[1]] = a.vm_mark()
                elif it[0] == 'st':
                    st_mark = a.vm_mark()
                elif it[0] == 'bar':
                    a.wait_vm(wam[it[1]])
                    a('s_barrier')
                elif it[0] == 'wa':
                    wa_dma(it[1], it[2])()
                    wam[it[1]] = a.vm_mark()
            for _ in range(2):
                if fi < len(fill) and k >= 1:
                    a(fill[fi])
                    fi += 1
        assert fi == len(fill), (u, fi, len(fill))
    amark['ep'] = ep_mark


for p in range(4):
    a('v_mov_b32 v4, 0x3f803f80')
    a('v_accvgpr_write_b32 a%d, v4' % (A_ONES + p))
a('s_mul_i32 s%d, s%d, 14336' % (sWA[0], sW))
a('s_add_u32 s%d, s%d, 4' % (sA, sW))
a('s_mul_i32 s%d, s%d, 14336' % (sA, sA))
a('s_sub_u32 s%d, s%d, 2' % (sB, sW))
a('s_mul_i32 s%d, s%d, 14336' % (sB, sB))
a('s_add_u32 s%d, s%d, 1024' % (sB, sB))
a('s_cmp_lt_u32 s%d, 2' % sW)
a('s_cselect_b32 s%d, s%d, s%d' % (sWA[1], sA, sB))
a('s_add_u32 s%d, s%d, 2' % (sA, sW))
a('s_mul_i32 s%d, s%d, 14336' % (sA, sA))
a('s_add_u32 s%d, s%d, 1024' % (sWA[2], sA))
a('s_mul_i32 s%d, s%d, %d' % (sWAG, sC, 84 * 1024))
a('s_add_u32 s%d, s%d, %d' % (sWAG, sWAG, L.WA))
a_offsets()
xm0, wam0 = {}, {}


def wa_pair(pr):
    for i in range(3):
        wa_dma(pr, i)()
    wam0[pr] = a.vm_mark()


for pr in range(3):
    wa_pair(pr)
    for u in (2 * pr, 2 * pr + 1):
        if u < LOOK:
            for t in a_xload(u):
                a(t)
            xm0[u] = a.vm_mark()
a_setup()
a.wait_vm(wam0[0])
a('s_barrier')
a('s_lshl_b32 s%d, s%d, 5' % (sA, sJ))
a('s_add_u32 s%d, s%d, s%d' % (sA, sA, sG))
a('s_lshl_b32 s%d, s%d, 2' % (sA, sA))
a('s_add_u32 s%d, s%d, %d' % (sA, sA, L.FP))
a('s_cmp_eq_u32 s%d, 0' % sW)
a('s_cselect_b32 s%d, s%d, 0x%x' % (sA, sA, INV))
a('v_mov_b32 v2, s%d' % sA)
a('s_mov_b64 exec, 1')
a('buffer_store_dword v%d, v2, %s, 0 offen sc1' % (V_T, srd(S_WS)))
a.vm_issued -= 1
a('s_mov_b64 exec, -1')
stamp()
emit_a_loop(True, xm0, wam0)
n_join = a.vm_issued - amark['ep']
CSQ = WBUF[0]
a('v_cmp_eq_u32 vcc, 0, v%d' % V_TOK)
a('s_mov_b64 exec, vcc')
for p in range(4):
    a('ds_write_b128 v244, %s offset:%d' % (vr(CSACC + 4 * p), 64 * p))
a('s_mov_b64 exec, 0xffff')
for d in range(2):
    a('ds_write_b32 v245, v%d offset:%d' % (CSACC + 16 + 4 * d, 64 * (4 + d)))
a('s_mov_b64 exec, -1')
for e in range(16):
    a('v_mov_b32 v%d, v%d' % (CSQ + e, CSACC + e))
for d in range(2):
    a('v_mov_b32 v%d, v%d' % (CSQ + 16 + d, CSACC + 16 + 4 * d))
a('s_branch L_a_epi')

a.label('L_pair')
a_flag_addr(2)
poll(2)
stamp()
a('s_mov_b64 exec, 3')
store('buffer_store_dword v%d, v242, %s, 0 offen' % (V_T, srd(S_WS)), sPFC)
a.vm_issued -= 1
a('s_mov_b64 exec, -1')
a_offsets()
xmark = {}
for u in range(LOOK):
    for t in a_xload(u):
        a(t)
    xmark[u] = a.vm_mark()
a_setup()
emit_a_loop(False, xmark, None)
assert a.vm_issued - amark['ep'] == n_join
ep_mark = amark['ep']
a.label('L_a_epi')
stamp()
for x in stat_fill[60:]:
    a(x)
early_check(249, 248, ep_mark)
BW = 2
a('s_lshl_b32 s%d, s%d, 6' % (sA, sJ))
a('s_lshl_b32 s%d, s%d, 2' % (sB, sW))
a('s_add_u32 s%d, s%d, s%d' % (sA, sA, sB))
a('s_lshl_b32 s%d, s%d, 10' % (sA, sA))
a('s_add_u32 s20, s%d, %d' % (sA, L.WB))
for t in range(1, 4):
    a('s_add_u32 s%d, s20, %d' % (20 + t, 16 * 1024 * t))
wb_loads = ['buffer_load_dwordx4 %s, v1, %s, s%d offen offset:%d sc1' % (vr(BW + (i * 4 + t) * 4), srd(S_WS), 20 + t, 1024 * i)
            for i in range(4) for t in range(4)]
A_RES, A_B2 = 224, 232


def red_addrs():
    a('s_lshl_b32 s%d, s%d, 13' % (sA, sW))
    a('s_add_u32 s%d, s%d, %d' % (sA, sA, L.L_R2))
    a('v_add_u32 v248, s%d, v1' % sA)
    a('s_and_b32 s%d, s%d, 1' % (sA, sW))
    a('s_lshl_b32 s%d, s%d, 11' % (sA, sA))
    a('s_lshr_b32 s%d, s%d, 1' % (sB, sW))
    a('s_lshl_b32 s%d, s%d, 12' % (sB, sB))
    a('s_add_u32 s%d, s%d, s%d' % (sA, sA, sB))
    a('s_add_u32 s%d, s%d, %d' % (sA, sA, L.L_R2))
    a('v_add_u32 v249, s%d, v1' % sA)


def publish_setup(xbase, sbase, fbase, per_pair, fsh):
    owner_index()
    a('s_mul_i32 s%d, s%d, 14' % (sCc, sB))
    a('s_add_u32 s%d, s%d, s%d' % (sCc, sCc, sA))
    a('s_lshl_b32 s%d, s%d, 10' % (sPX, sCc))
    a('s_lshl_b32 s%d, s%d, 7' % (sPS, sCc))
    a('s_lshl_b32 s%d, s%d, %d' % (sPF, sB, fsh))
    a('s_add_u32 s%d, s%d, s%d' % (sPF, sPF, sA))
    a('s_lshl_b32 s%d, s%d, 2' % (sPF, sPF))
    for dst, arr in ((sPX, xbase), (sPS, sbase), (sPF, fbase)):
        if per_pair:
            pair_base(sD, arr)
            a('s_add_u32 s%d, s%d, s%d' % (dst, dst, sD))
        else:
            a('s_add_u32 s%d, s%d, %d' % (dst, dst, arr))
    a('s_add_u32 s%d, s%d, %d' % (sPX2, sPX, 2 * 14336))


def owner_index():
    a('s_lshr_b32 s%d, s%d, 1' % (sB, sW))
    a('s_lshl_b32 s%d, s%d, 2' % (sCc, sG))
    a('s_add_u32 s%d, s%d, s%d' % (sB, sB, sCc))
    a('s_and_b32 s%d, s%d, 1' % (sA, sW))
    a('s_lshl_b32 s%d, s%d, 1' % (sCc, sJ))
    a('s_add_u32 s%d, s%d, s%d' % (sA, sA, sCc))


a('s_cmp_eq_u32 s%d, 0' % sPAIR)
a('s_cbranch_scc0 L_a_nores')
owner_index()
a('s_mul_i32 s%d, s%d, 14' % (sB, sB))
a('s_add_u32 s%d, s%d, s%d' % (sB, sB, sA))
a('s_lshl_b32 s%d, s%d, 10' % (sB, sB))
a('s_add_u32 s%d, s%d, %d' % (sB, sB, L.XA[0]))
a('buffer_load_dwordx4 %s, v1, %s, s%d offen sc1' % (ar(A_RES), srd(S_WS), sB))
a('s_add_u32 s%d, s%d, %d' % (sB, sB, 2 * 14336))
a('buffer_load_dwordx4 %s, v1, %s, s%d offen sc1' % (ar(A_RES + 4), srd(S_WS), sB))
build_srd(S_TMP, P_B2, 896)
a('s_lshl_b32 s%d, s%d, 6' % (sB, sA))
a('v_lshlrev_b32 v240, 3, v%d' % V_G)
a('buffer_load_dwordx2 v[228:229], v240, %s, s%d offen' % (srd(S_TMP), sB))
a('buffer_load_dwordx2 v[230:231], v240, %s, s%d offen offset:32' % (srd(S_TMP), sB))
a.label('L_a_nores')
CSQ = WBUF[0]
a('s_mul_i32 s%d, s%d, 384' % (sA, sW))
a('s_add_u32 s%d, s%d, %d' % (sA, sA, L.L_STA))
a('v_lshl_add_u32 v246, v%d, 2, s%d' % (V_TOK, sA))
a('v_lshl_add_u32 v247, v%d, 4, s%d' % (V_G, sA))
a('s_mov_b64 exec, 0xffff')
for t in range(3):
    a('ds_write_b32 v246, v%d offset:%d' % (SM + t, 128 * t))
    a('ds_write_b32 v246, v%d offset:%d' % (SR + t, 128 * t + 64))
a('s_mov_b64 exec, -1')
MROW, RROW = 114, 126
a('s_waitcnt lgkmcnt(0)')
for t in range(3):
    a('ds_read_b128 %s, v247 offset:%d' % (vr(MROW + 4 * t), 128 * t))
    a('ds_read_b128 %s, v247 offset:%d' % (vr(RROW + 4 * t), 128 * t + 64))
QF, KF, VF = 140, 148, 160


def pk(op, dst, srcs, neg=None):
    ops, lo, hi = [], [], []
    for x in srcs:
        if isinstance(x, tuple):
            ops.append(vr(x[1] & ~1, 2))
            lo.append(x[1] & 1)
            hi.append(x[1] & 1)
        else:
            ops.append(vr(x, 2))
            lo.append(0)
            hi.append(1)
    t = '%s %s, %s op_sel:[%s] op_sel_hi:[%s]' % (op, vr(dst, 2), ', '.join(ops), ','.join(map(str, lo)), ','.join(map(str, hi)))
    if neg is not None:
        m = ','.join('1' if k == neg else '0' for k in range(len(srcs)))
        t += ' neg_lo:[%s] neg_hi:[%s]' % (m, m)
    return t


for t in range(2):
    for hf in range(2):
        r = AQ + (t * 2 + hf) * 4
        for i in (0, 2):
            a(pk('v_pk_fma_f32', r + i, [('b', SM + t + 1), CSQ + 4 * hf + i, r + i], 0))
        for p in range(2):
            a('v_cvt_pk_bf16_f32 v%d, v%d, v%d' % (QF + 4 * t + 2 * hf + p, r + 2 * p, r + 2 * p + 1))
for t in range(3):
    for hf in range(2):
        r = AK + (t * 2 + hf) * 4
        for i in (0, 2):
            a(pk('v_pk_fma_f32', r + i, [('b', SM + t), CSQ + 8 + 4 * hf + i, r + i], 0))
        for p in range(2):
            a('v_cvt_pk_bf16_f32 v%d, v%d, v%d' % (KF + 4 * t + 2 * hf + p, r + 2 * p, r + 2 * p + 1))
SS = 172
for t in range(2):
    a('%s %s, %s, %s, 0' % (MFMA, vr(SS + 8 * t), vr(KF + 4 * t), vr(QF + 4 * t)))
    a('%s %s, %s, %s, 0' % (MFMA, vr(SS + 8 * t + 4), vr(KF + 4 * t + 4), vr(QF + 4 * t)))
pair_base(sA, L.O)
a('s_lshl_b32 s%d, s%d, 4' % (sB, sGT))
a('s_add_u32 s%d, s%d, s%d' % (sB, sB, sC))
a('s_lshl_b32 s%d, s%d, 10' % (sB, sB))
a('s_add_u32 s32, s%d, s%d' % (sA, sB))
a('s_add_u32 s33, s32, 16384')
a('s_waitcnt lgkmcnt(0)')
for t in range(3):
    for d in range(2):
        r = AV + (t * 2 + d) * 4
        for i in (0, 2):
            a(pk('v_pk_fma_f32', r + i, [MROW + 4 * t + i, ('b', CSQ + 16 + d), r + i], 0))
        for p in range(2):
            a('v_cvt_pk_bf16_f32 v%d, v%d, v%d' % (VF + 6 * d + 2 * t + p, r + 2 * p, r + 2 * p + 1))
SCALE = (28.0 ** -0.5) * 1.4426950408889634
MX, CC, LS, TMPR = 190, 192, 194, 196
PF = 200
SUMT = [(224, 226), (232, 188)]
a('v_mov_b32 v198, 0xff800000')
seq = [[], []]
for t in range(2):
    s_ = SS + 8 * t
    q = seq[t]
    rr = lambda e: RROW + 4 * (t + (e >> 2)) + (e & 3)
    for e in range(0, 8, 2):
        q.append(pk('v_pk_mul_f32', s_ + e, [s_ + e, rr(e)]))
    for e in range(8):
        mk = (sM0 if t == 0 else sM1) + 2 * e if e < 4 else sM2 + 2 * (e - 4)
        q.append('v_cndmask_b32 v%d, v198, v%d, %s' % (s_ + e, s_ + e, sp(mk)))
    q.append('v_max3_f32 v%d, v%d, v%d, v%d' % (MX + t, s_, s_ + 1, s_ + 2))
    q.append('v_max3_f32 v%d, v%d, v%d, v%d' % (MX + t, MX + t, s_ + 3, s_ + 4))
    q.append('v_max3_f32 v%d, v%d, v%d, v%d' % (MX + t, MX + t, s_ + 5, s_ + 6))
    q.append('v_max_f32 v%d, v%d, v%d' % (MX + t, MX + t, s_ + 7))
    q += xg_reduce(MX + t, TMPR + t, 'v_max_f32')
    q.append('v_mul_f32 v%d, %s, v%d' % (CC + t, f2h(SCALE), SR + t + 1))
    q.append('v_mul_f32 v%d, v%d, v%d' % (MX + t, MX + t, CC + t))
    for e in range(0, 8, 2):
        q.append(pk('v_pk_fma_f32', s_ + e, [s_ + e, ('b', CC + t), ('b', MX + t)], 2))
    for e in range(8):
        q.append('v_exp_f32 v%d, v%d' % (s_ + e, s_ + e))
    u_, u2 = SUMT[t]
    q.append(pk('v_pk_add_f32', u_, [s_, s_ + 2]))
    q.append(pk('v_pk_add_f32', u2, [s_ + 4, s_ + 6]))
    q.append(pk('v_pk_add_f32', u_, [u_, u2]))
    q.append('v_add_f32 v%d, v%d, v%d' % (LS + t, u_, u_ + 1))
    q += xg_reduce(LS + t, TMPR + t)
    q.append('v_rcp_f32 v%d, v%d' % (LS + t, LS + t))
    for e in range(0, 8, 2):
        q.append(pk('v_pk_mul_f32', s_ + e, [s_ + e, rr(e)]))
    for p in range(4):
        q.append('v_cvt_pk_bf16_f32 v%d, v%d, v%d' % (PF + 4 * t + p, s_ + 2 * p, s_ + 2 * p + 1))
merged = [z for xy in zip(*seq) for z in xy]
gap = len(merged) // (len(wb_loads) + 1)
for k, x in enumerate(merged):
    a(x)
    if k % gap == gap - 1 and wb_loads:
        a(wb_loads.pop(0))
assert not wb_loads
OO = 208
for t in range(2):
    for d in range(2):
        a('%s %s, %s, %s, 0' % (MFMA, vr(OO + 8 * t + 4 * d), vr(VF + 6 * d + 2 * t), vr(PF + 4 * t)))
for t in range(2):
    for e in range(0, 8, 2):
        a(pk('v_pk_mul_f32', OO + 8 * t + e, [OO + 8 * t + e, ('b', LS + t)]))
    for p in range(4):
        a('v_cvt_pk_bf16_f32 v%d, v%d, v%d' % (PF + 4 * t + p, OO + 8 * t + 2 * p, OO + 8 * t + 2 * p + 1))
    store('buffer_store_dwordx4 %s, v1, %s, s%d offen' % (vr(PF + 4 * t), srd(S_WS), 32 + t), sFD)
o_mark = a.vm_mark()
pair_base(sA, L.FA)
a('s_lshl_b32 s%d, s%d, 4' % (sB, sGT))
a('s_add_u32 s%d, s%d, s%d' % (sB, sB, sC))
a('s_lshl_b32 s%d, s%d, 2' % (sB, sB))
a('s_add_u32 s%d, s%d, s%d' % (sA, sA, sB))
a('v_lshlrev_b32 v241, 6, v0')
a('v_add_u32 v241, s%d, v241' % sA)
pair_base(sA, L.FA)
a('s_lshl_b32 s%d, s%d, 8' % (sB, sG))
a('s_add_u32 s%d, s%d, s%d' % (sA, sA, sB))
a('v_lshl_add_u32 v240, v0, 2, s%d' % sA)
a('s_lshl_b32 s%d, s%d, 2' % (sB, sW))
a('s_lshl_b32 s%d, 0x000f000f, s%d' % (sMK, sB))
a('s_mov_b32 s%d, s%d' % (sMK + 1, sMK))
red_addrs()
publish_setup(L.XB, L.SB, L.FB, True, 4)
a('s_mov_b32 s%d, s%d' % (sPC, sFD))
a('s_mov_b32 s%d, s%d' % (sPFC, sFAST))
pair_base(sA, L.O)
a('s_lshl_b32 s%d, s%d, 6' % (sB, sG))
a('s_lshl_b32 s%d, s%d, 2' % (sCc, sW))
a('s_add_u32 s%d, s%d, s%d' % (sB, sB, sCc))
a('s_lshl_b32 s%d, s%d, 10' % (sB, sB))
a('s_add_u32 s20, s%d, s%d' % (sA, sB))
for t in range(1, 4):
    a('s_add_u32 s%d, s20, %d' % (20 + t, 16384 * t))
a.wait_vm(o_mark)
a('s_mov_b64 exec, 3')
store('buffer_store_dword v%d, v241, %s, 0 offen' % (V_T, srd(S_WS)), sFAST)
a('s_mov_b64 exec, -1')
stamp()
a('s_cmp_eq_u32 s%d, 7' % sJ)
a('s_cbranch_scc1 L_next_pair')


def wd_bases():
    a('s_lshl_b32 s%d, s%d, 2' % (sA, sJ))
    a('s_mul_i32 s%d, s%d, %d' % (sA, sA, 56 * 1024))
    a('s_mul_i32 s%d, s%d, %d' % (sB, sW, 14 * 1024))
    a('s_add_u32 s%d, s%d, s%d' % (sA, sA, sB))
    a('s_add_u32 s%d, s%d, %d' % (sO, sA, L.WD))
    quarter_offsets(4, 56 * 1024)


def wd_load(fi):
    kk, t = fi >> 2, fi & 3
    return ('buffer_load_dwordx4 %s, v1, %s, s%d offen offset:%d sc1' %
            (ar(4 * fi), srd(S_WS), sO + 4 * t + (kk >> 2), 1024 * (kk & 3)))


WD_CH = [(0, 12), (12, 56)]
BO, BACC, BRD, BTMP = 66, 130, 194, 226
a('s_cmp_eq_u32 s%d, 0' % sPAIR)
a('s_cbranch_scc0 L_b_start')
for k in range(4):
    a('v_lshlrev_b32 v236, 16, v%d' % (228 + k))
    a('v_and_b32 v237, 0xffff0000, v%d' % (228 + k))
    a('v_accvgpr_write_b32 a%d, v236' % (A_B2 + 2 * k))
    a('v_accvgpr_write_b32 a%d, v237' % (A_B2 + 2 * k + 1))
wd_bases()
for fi in range(*WD_CH[0]):
    a(wd_load(fi))
a.label('L_b_start')
CWW = 66
sCI = 41
a('s_lshr_b32 s%d, s%d, 3' % (sA, sC))
a('s_mul_i32 s%d, s%d, 7' % (sA, sA))
a('s_add_u32 s%d, s%d, s%d' % (sCI, sA, sJ))
a('s_lshl_b32 s%d, s%d, 3' % (sA, sCI))
a('s_lshl_b32 s%d, s%d, 1' % (sB, sW))
a('s_add_u32 s%d, s%d, s%d' % (sA, sA, sB))
a('s_mul_i32 s%d, s%d, %d' % (sB, sA, 14 * 1024))
a('s_add_u32 s%d, s%d, %d' % (sO, sB, L.WC))
quarter_offsets(2, 14 * 1024)


def c_wload(idx):
    u, k = idx >> 1, idx & 1
    return ('buffer_load_dwordx4 %s, v1, %s, s%d offen offset:%d sc1' %
            (vr(CWW + 4 * idx), srd(S_WS), sO + 4 * k + (u >> 2), 1024 * (u & 3)))


def red_writes(acc, tile):
    return ['ds_write_b128 v248, %s offset:%d' % (vr(acc + 4 * t), (tile >> 1) * 32768 + (tile & 1) * 4096 + t * 1024)
            for t in range(4)]


def red_reads(st, rd):
    return ['ds_read_b128 %s, v249 offset:%d' % (vr(rd + (b * 2 + k) * 4), st * 32768 + b * 8192 + k * 1024)
            for b in range(4) for k in range(2)]


def add8(dst, x, y, packed):
    if packed:
        return ['v_pk_add_f32 %s, %s, %s' % (vr(dst + e, 2), vr(x + e, 2), vr(y + e, 2)) for e in range(0, 8, 2)]
    return ['v_add_f32 v%d, v%d, v%d' % (dst + e, x + e, y + e) for e in range(8)]


def finish_pre(st, is_d, tmp):
    res = A_RES + 4 * st
    o = ['v_accvgpr_read_b32 v%d, a%d' % (tmp + 8 + p, res + p) for p in range(4)]
    for p in range(4):
        o += ['v_lshlrev_b32 v%d, 16, v%d' % (tmp + 2 * p, tmp + 8 + p),
              'v_and_b32 v%d, 0xffff0000, v%d' % (tmp + 2 * p + 1, tmp + 8 + p)]
    if is_d:
        o += ['v_accvgpr_read_b32 v%d, a%d' % (tmp + 8 + e, A_B2 + e) for e in range(8)]
        o += ['v_add_f32 v%d, v%d, v%d' % (tmp + e, tmp + e, tmp + 8 + e) for e in range(8)]
    return o


def finish_sum(st, rd, tmp, pk, packed):
    o = add8(rd, rd, rd + 8, packed) + add8(rd + 16, rd + 16, rd + 24, packed) + add8(rd, rd, rd + 16, packed)
    o += add8(tmp, tmp, rd, packed)
    o += ['v_cvt_pk_bf16_f32 v%d, v%d, v%d' % (pk + p, tmp + 2 * p, tmp + 2 * p + 1) for p in range(4)]
    o += ['v_accvgpr_write_b32 a%d, v%d' % (A_RES + 4 * st + p, pk + p) for p in range(4)]
    return o


def owner_stats(tmp, s1, t):
    a('v_pk_add_f32 %s, %s, %s' % (vr(t, 2), vr(tmp, 2), vr(tmp + 2, 2)))
    a('v_pk_add_f32 %s, %s, %s' % (vr(t + 2, 2), vr(tmp + 4, 2), vr(tmp + 6, 2)))
    a('v_pk_add_f32 %s, %s, %s' % (vr(t, 2), vr(t, 2), vr(t + 2, 2)))
    a('v_add_f32 v%d, v%d, v%d' % (s1, t, t + 1))
    a('v_pk_mul_f32 %s, %s, %s' % (vr(t, 2), vr(tmp, 2), vr(tmp, 2)))
    for e in (2, 4, 6):
        a('v_pk_fma_f32 %s, %s, %s, %s' % (vr(t, 2), vr(tmp + e, 2), vr(tmp + e, 2), vr(t, 2)))
    a('v_add_f32 v%d, v%d, v%d' % (s1 + 1, t, t + 1))
    for x, y in zip(xg_reduce(s1, t), xg_reduce(s1 + 1, t + 1)):
        a(x)
        a(y)


def publish_data(st, pk):
    store('buffer_store_dwordx4 %s, v1, %s, s%d offen offset:0' % (vr(pk), srd(S_WS), sPX if st == 0 else sPX2), sPC)


def publish_stats(tmps, t, s1):
    a('v_and_b32 v%d, 15, v0' % V_TOK)
    a('v_lshlrev_b32 v%d, 3, v%d' % (t + 4, V_TOK))
    for st in range(2):
        owner_stats(tmps[st], s1 + 2 * st, t)
    a('s_mov_b64 exec, 0xffff')
    store('buffer_store_dwordx2 %s, v%d, %s, s%d offen' % (vr(s1, 2), t + 4, srd(S_WS), sPS), sPC)
    a('s_add_u32 s%d, s%d, %d' % (sPS, sPS, 2 * 1792))
    store('buffer_store_dwordx2 %s, v%d, %s, s%d offen' % (vr(s1 + 2, 2), t + 4, srd(S_WS), sPS), sPC)
    a('s_mov_b64 exec, -1')


def publish_flags(lsh, between=()):
    a('v_lshlrev_b32 v241, %d, v0' % lsh)
    a('v_add_u32 v241, s%d, v241' % sPF)
    set_flags(241, 2, sPFC, V_T, between)


def run_tiles(tile_items, extras):
    for tile in range(4):
        items = tile_items(tile)
        ex = list(extras.get(tile, []))
        free = [k for k, it in enumerate(items) if k >= 3 and not it[2]]
        per = -(-len(ex) // max(1, len(free))) if ex else 0
        for k, (pre, m, post) in enumerate(items):
            for x in pre:
                x()
            a(m)
            if post:
                post()
            elif k >= 3:
                for _ in range(per):
                    if ex:
                        x = ex.pop(0)
                        if callable(x):
                            x()
                        else:
                            a(x)
        assert not ex


poll(240)
stamp()


def b_oload(tile, i):
    return 'buffer_load_dwordx4 %s, v1, %s, s%d offen offset:%d sc1' % (vr(BO + (tile * 4 + i) * 4), srd(S_WS), 20 + tile, 1024 * i)


om = {}
for tile in range(2):
    for i in range(4):
        a(b_oload(tile, i))
        om[(tile, i)] = a.vm_mark()


def b_tile(tile):
    items = []
    for i in range(4):
        for t in range(4):
            r = BACC + (tile * 4 + t) * 4
            pre = [(lambda tl=tile, ii=i: a.wait_vm(om[(tl, ii)]))] if t == 0 else []
            post = None
            if tile < 2 and t == 1:
                def post(tl=tile + 2, ii=i):
                    a(b_oload(tl, ii))
                    om[(tl, ii)] = a.vm_mark()
            if tile >= 2 and t == 1:
                def post(idx=4 * (tile - 2) + i):
                    a(c_wload(idx))
            items.append((pre, '%s %s, %s, %s, %s' % (MFMA, vr(r), vr(BW + (i * 4 + t) * 4), vr(BO + (tile * 4 + i) * 4),
                                                      '0' if i == 0 else vr(r)), post))
    return items


BT0, BT1, BPK = 226, 2, 18
run_tiles(b_tile, {1: red_writes(BACC, 0), 2: red_writes(BACC + 16, 1), 3: red_writes(BACC + 32, 2)})
stamp2()
for x in red_writes(BACC + 48, 3):
    a(x)
for x in finish_pre(0, False, BT0) + finish_pre(1, False, BT1):
    a(x)
a('s_waitcnt lgkmcnt(0)')
a('s_barrier')
stamp2()
BRD1 = 162
for x in red_reads(0, BRD) + red_reads(1, BRD1):
    a(x)
a('s_waitcnt lgkmcnt(8)')
for x in finish_sum(0, BRD, BT0, BPK, True):
    a(x)
publish_data(0, BPK)
a('s_waitcnt lgkmcnt(0)')
for x in finish_sum(1, BRD1, BT1, BPK + 4, True):
    a(x)
publish_data(1, BPK + 4)
stamp2()
publish_stats([BT0, BT1], 36, 32)
b_mark = a.vm_mark()
a('v_lshlrev_b32 v236, 7, v0')
a('v_add_u32 v236, s%d, v236' % sPF)
for i in range(8, 16):
    a(c_wload(i))
CA = [2, 10]
XF, NXF = 18, 8
GTMP, GH = 50, 58
CCS, CB1, CB1R = 178, 186, 194
CSTR = 198
CMR = 214
VGA = 218
a('v_lshrrev_b32 v%d, 4, v0' % V_G)
a('v_and_b32 v%d, 15, v0' % V_TOK)
pair_base(sA, L.FB)
a('s_lshl_b32 s%d, s%d, 9' % (sB, sS))
a('s_add_u32 s%d, s%d, s%d' % (sA, sA, sB))
a('v_lshl_add_u32 v240, v0, 2, s%d' % sA)
a('s_mov_b32 s%d, 0x3fff3fff' % sMK)
a('s_mov_b32 s%d, 0x3fff3fff' % (sMK + 1))
pair_base(20, L.XB)
a('s_mul_i32 s%d, s%d, %d' % (sB, sS, 8 * 14336))
a('s_add_u32 s20, s20, s%d' % sB)
a('s_lshl_b32 s%d, s%d, 12' % (sB, sW))
a('s_add_u32 s20, s20, s%d' % sB)
a('s_add_u32 s21, s%d, %d' % (sB, L.L_R2))
pair_base(22, L.SB)
a('s_lshl_b32 s%d, s%d, 3' % (sB, sS))
a('s_add_u32 s%d, s%d, s%d' % (sB, sB, sW))
a('s_mul_i32 s%d, s%d, 1792' % (sB, sB))
a('s_add_u32 s22, s22, s%d' % sB)
a('s_add_u32 s23, s22, %d' % (4 * 1792))
pair_base(32, L.H)
a('s_mul_i32 s%d, s%d, %d' % (sB, sS, 8 * 56 * 1024))
a('s_add_u32 s32, s32, s%d' % sB)
a('s_lshl_b32 s%d, s%d, 2' % (sB, sCI))
a('s_add_u32 s%d, s%d, s%d' % (sB, sB, sW))
a('s_lshl_b32 s%d, s%d, 10' % (sCc, sB))
a('s_add_u32 s32, s32, s%d' % sCc)
pair_base(33, L.FC)
a('s_lshl_b32 s%d, s%d, 11' % (sCc, sS))
a('s_add_u32 s33, s33, s%d' % sCc)
a('s_lshl_b32 s%d, s%d, 2' % (sB, sB))
a('s_add_u32 s33, s33, s%d' % sB)
a('v_mov_b32 v241, s33')
a('v_mov_b32 v242, 0x%x' % INV)
a('v_cmp_eq_u32 vcc, 0, v0')
a('v_cndmask_b32 v241, v242, v241, vcc')
a('v_lshlrev_b32 v238, 3, v%d' % V_TOK)
a('v_lshl_add_u32 v238, v%d, 7, v238' % V_G)
a('v_mov_b32 v242, 0x%x' % INV)
a('v_cmp_lt_u32 vcc, 1, v%d' % V_G)
a('v_cndmask_b32 v239, 0, v242, vcc')
a('v_or_b32 v239, v239, v238')
a('v_add_u32 v252, %d, v1' % L.L_R2)
a('v_lshlrev_b32 v246, 3, v%d' % V_TOK)
a('v_add_u32 v246, %d, v246' % L.L_STC)
GA = 2.0 * 0.7978845608028654 * 1.4426950408889634
GB = GA * 0.044715
a('v_mov_b32 v%d, %s' % (VGA, f2h(-GA)))
a('v_mov_b32 v%d, %s' % (VGA + 1, f2h(-GA)))
a('s_mov_b32 s34, %s' % f2h(-GB))
a('s_mov_b32 s35, %s' % f2h(-GB))
wd_bases_hi = True
a.wait_vm(b_mark)
a('s_mov_b64 exec, 3')
store('buffer_store_dword v%d, v236, %s, 0 offen' % (V_T, srd(S_WS)), sPFC)
a('s_mov_b64 exec, -1')
stamp()

for i in range(16, 22):
    a(c_wload(i))
a('s_lshl_b32 s%d, s%d, 3' % (sA, sCI))
a('s_lshl_b32 s%d, s%d, 1' % (sB, sW))
a('s_add_u32 s%d, s%d, s%d' % (sA, sA, sB))
a('s_lshl_b32 s%d, s%d, 5' % (sB, sA))
a('v_lshlrev_b32 v248, 3, v%d' % V_G)
for k in range(2):
    a('buffer_load_dwordx2 %s, v248, %s, s%d offen offset:%d' % (vr(CB1R + 2 * k, 2), srd(S_B1), sB, 32 * k))
poll(240, 256)
stamp()


def c_dma_setup(t):
    return ['s_add_u32 s36, s20, %d' % (t * 14336), 's_add_u32 m0, s21, %d' % ((t & 3) * 16384)]


def c_dma(t, i):
    return 'buffer_load_dwordx4 v1, %s, s36 offen offset:%d sc1 lds' % (srd(S_WS), 1024 * i)


dm = {}
for x in c_dma_setup(0) + [c_dma(0, i) for i in range(4)]:
    a(x)
dm[0] = a.vm_mark()
wlate = {}
for i in range(22, 28):
    a(c_wload(i))
    wlate[i >> 1] = a.vm_mark()
for tt in range(2):
    for i in range(4):
        a('buffer_load_dwordx2 %s, v%d, %s, s%d offen offset:%d sc1' %
          (vr(CSTR + 8 * tt + 2 * i, 2), 239 if i == 3 else 238, srd(S_WS), 22 + tt, 512 * i))
cst_mark = a.vm_mark()
for x in c_dma_setup(1) + [c_dma(1, i) for i in range(4)]:
    a(x)
dm[1] = a.vm_mark()
for k in range(2):
    for p in range(2):
        a('v_lshlrev_b32 v%d, 16, v%d' % (CB1 + 4 * k + 2 * p, CB1R + 2 * k + p))
        a('v_and_b32 v%d, 0xffff0000, v%d' % (CB1 + 4 * k + 2 * p + 1, CB1R + 2 * k + p))
wd_bases()
a.wait_vm(dm[0])
a('s_barrier')
stamp()


def c_xread(t, u):
    n = t * 14 + u
    return 'ds_read_b128 %s, v252 offset:%d' % (vr(XF + 4 * (n % NXF)), (t & 3) * 16384 + u * 1024)


def gelu_pre(t):
    z, m = CA[t & 1], CMR + 2 * (t & 1)
    P = range(0, 8, 2)
    o = ['v_pk_fma_f32 %s, %s, %s, %s op_sel_hi:[1,0,1] neg_lo:[0,1,0] neg_hi:[0,1,0]' % (vr(z + e, 2), vr(CCS + e, 2), vr(m, 2), vr(z + e, 2)) for e in P]
    o += ['v_pk_fma_f32 %s, %s, %s, %s op_sel:[0,1,0] op_sel_hi:[1,1,1]' % (vr(z + e, 2), vr(z + e, 2), vr(m, 2), vr(CB1 + e, 2)) for e in P]
    o += ['v_pk_mul_f32 %s, %s, %s' % (vr(GTMP + e, 2), vr(z + e, 2), vr(z + e, 2)) for e in P]
    o += ['v_pk_fma_f32 %s, %s, s[34:35], %s' % (vr(GTMP + e, 2), vr(GTMP + e, 2), vr(VGA, 2)) for e in P]
    o += ['v_pk_mul_f32 %s, %s, %s' % (vr(GTMP + e, 2), vr(GTMP + e, 2), vr(z + e, 2)) for e in P]
    return o


def gelu_mid():
    o = {}
    for e in range(8):
        o.setdefault(2 * e, []).append('v_exp_f32 v%d, v%d' % (GTMP + e, GTMP + e))
        o.setdefault(2 * e + 3, []).append('v_add_f32 v%d, 1.0, v%d' % (GTMP + e, GTMP + e))
    for e in range(6):
        o.setdefault(16 + 2 * e, []).append('v_rcp_f32 v%d, v%d' % (GTMP + e, GTMP + e))
    o.setdefault(25, []).append('v_rcp_f32 v%d, v%d' % (GTMP + 6, GTMP + 6))
    o.setdefault(27, []).append('v_rcp_f32 v%d, v%d' % (GTMP + 7, GTMP + 7))
    return o


def gelu_post(t):
    z, h = CA[t & 1], GH + 4 * (t & 1)
    o = ['v_pk_mul_f32 %s, %s, %s' % (vr(GTMP + e, 2), vr(GTMP + e, 2), vr(z + e, 2)) for e in range(0, 8, 2)]
    o += ['v_cvt_pk_bf16_f32 v%d, v%d, v%d' % (h + p, GTMP + 2 * p, GTMP + 2 * p + 1) for p in range(4)]
    return o


def gelu_packed(t):
    z, m, h = CA[t & 1], CMR + 2 * (t & 1), GH + 4 * (t & 1)
    P = range(0, 8, 2)
    for e in P:
        a('v_pk_fma_f32 %s, %s, %s, %s op_sel_hi:[1,0,1] neg_lo:[0,1,0] neg_hi:[0,1,0]' % (vr(z + e, 2), vr(CCS + e, 2), vr(m, 2), vr(z + e, 2)))
    for e in P:
        a('v_pk_fma_f32 %s, %s, %s, %s op_sel:[0,1,0] op_sel_hi:[1,1,1]' % (vr(z + e, 2), vr(z + e, 2), vr(m, 2), vr(CB1 + e, 2)))
    for e in P:
        a('v_pk_mul_f32 %s, %s, %s' % (vr(GTMP + e, 2), vr(z + e, 2), vr(z + e, 2)))
    for e in P:
        a('v_pk_fma_f32 %s, %s, s[34:35], %s' % (vr(GTMP + e, 2), vr(GTMP + e, 2), vr(VGA, 2)))
    for e in P:
        a('v_pk_mul_f32 %s, %s, %s' % (vr(GTMP + e, 2), vr(GTMP + e, 2), vr(z + e, 2)))
    for e in range(8):
        a('v_exp_f32 v%d, v%d' % (GTMP + e, GTMP + e))
    for e in P:
        a('v_pk_add_f32 %s, %s, 1.0 op_sel_hi:[1,0]' % (vr(GTMP + e, 2), vr(GTMP + e, 2)))
    for e in range(8):
        a('v_rcp_f32 v%d, v%d' % (GTMP + e, GTMP + e))
    for e in P:
        a('v_pk_mul_f32 %s, %s, %s' % (vr(GTMP + e, 2), vr(GTMP + e, 2), vr(z + e, 2)))
    for p in range(4):
        a('v_cvt_pk_bf16_f32 v%d, v%d, v%d' % (h + p, GTMP + 2 * p, GTMP + 2 * p + 1))


hmk, fmk = {}, {}


def h_store(t):
    def f():
        a('s_add_u32 s24, s32, %d' % (t * 56 * 1024))
        store('buffer_store_dwordx4 %s, v1, %s, s24 offen' % (vr(GH + 4 * (t & 1)), srd(S_WS)), sFH)
        hmk[t] = a.vm_mark()
    return f


def h_flag(t):
    def f():
        a.wait_vm(hmk[t])
        store('buffer_store_dword v%d, v241, %s, 0 offen offset:%d' % (V_T, srd(S_WS), 256 * t), sFAST)
    return f


def wd_block(fis, wave):
    def f():
        skip = newlab('L_wd')
        a('s_cmp_eq_u32 s24, %d' % wave)
        a('s_cbranch_scc0 %s' % skip)
        for fi in fis:
            a(wd_load(fi))
            a.vm_issued -= 1
        a.label(skip)
    return f


cst_fill = []
for tt in range(2):
    r = CSTR + 8 * tt
    for c_ in range(2):
        cst_fill += ['v_add_f32 v%d, v%d, v%d' % (r + c_, r + c_, r + 2 + c_),
                     'v_add_f32 v%d, v%d, v%d' % (r + 4 + c_, r + 4 + c_, r + 6 + c_),
                     'v_add_f32 v%d, v%d, v%d' % (r + c_, r + c_, r + 4 + c_)]
    cst_fill += xg_reduce(r, r + 2) + xg_reduce(r + 1, r + 3) + stats_finish(r, r + 1, r + 2, True)
a('s_lshl_b32 s%d, s%d, 7' % (sA, sW))
a('v_add_u32 v247, s%d, v246' % sA)
cst_fill += ['ds_write_b64 v247, %s' % vr(CSTR, 2), 'ds_write_b64 v247, %s offset:512' % vr(CSTR + 8, 2)]
LOOKX = 6


A_CCS = 244


def emit_c_loop(wd_list):
    pass0 = bool(wd_list)
    if not pass0:
        for e in range(8):
            a('v_accvgpr_read_b32 v%d, a%d' % (CCS + e, A_CCS + e))
    for u in range(LOOKX):
        a(c_xread(0, u))
    for t in range(8):
        nonvec = {}

        def put(k, x):
            nonvec.setdefault(k, []).append(x)
        for u in range(14):
            n = t * 14 + u
            m = n + LOOKX
            if m < 8 * 14:
                put(2 * u + 1, c_xread(m // 14, m % 14))
            if u % 2 == 1 and n + 1 < 8 * 14:
                put(2 * u + 1, 's_waitcnt lgkmcnt(%d)' % min(LOOKX - 2, 8 * 14 - 1 - (n + 2)))
        if t < 7:
            nonvec[14] = [('bar', t + 1)] + nonvec.get(14, [])
        if t + 2 < 8:
            su = c_dma_setup(t + 2)
            put(0, su[0])
            put(0, su[1])
            for i in range(4):
                put(2 + 2 * i, ('dma', t + 2, i))
        if t >= 3:
            put(20, ('call', h_flag(t - 3)))
        if t == 7:
            def issue_d0():
                amark['d0'] = early_issue(244, 243)
            put(22, ('call', issue_d0))
        if t < 7:
            for k in (10, 12, 16, 18, 22, 24, 26):
                if wd_list:
                    put(k, wd_load(wd_list.pop(0)))
        if t > 0:
            put(17, 'ds_read_b64 %s, v246 offset:%d' % (vr(CMR + 2 * (t & 1), 2), 128 * t))
        valu = gelu_mid() if t >= 1 else {}
        if t >= 2:
            for x in gelu_post(t - 2):
                a(x)
            h_store(t - 2)()
        if t >= 1:
            for x in gelu_pre(t - 1):
                a(x)
        fill = list(cst_fill) if t == 0 else []
        first = 8
        fi = 0
        for k in range(28):
            u, kk = k >> 1, k & 1
            n = t * 14 + u
            if t == 0 and k == 0:
                a('s_waitcnt lgkmcnt(%d)' % (LOOKX - 2))
            if t == 0 and kk == 0 and u in wlate:
                a.wait_vm(wlate[u])
            if t == 0 and k == first:
                a.wait_vm(cst_mark)
            r = CA[t & 1] + 4 * kk
            a('%s %s, %s, %s, %s' % (MFMA, vr(r), vr(CWW + 4 * (2 * u + kk)), vr(XF + 4 * (n % NXF)), '0' if u == 0 else vr(r)))
            if pass0 and t == 0:
                a('%s %s, %s, %s, %s' % (MFMA, vr(CCS + 4 * kk), vr(CWW + 4 * (2 * u + kk)), ar(A_ONES), '0' if u == 0 else vr(CCS + 4 * kk)))
            for it in nonvec.get(k, []):
                if isinstance(it, str):
                    a(it)
                elif it[0] == 'bar':
                    a.wait_vm(dm[it[1]])
                    a('s_barrier')
                elif it[0] == 'dma':
                    a(c_dma(it[1], it[2]))
                    dm[it[1]] = a.vm_mark()
                elif it[0] == 'call':
                    it[1]()
            for x in valu.get(k, []):
                a(x)
            if fill and k >= first:
                want = -(-(len(fill)) * (k - first + 1) // (28 - first))
                while fi < want:
                    a(fill[fi])
                    fi += 1
        assert fi == len(fill)
        if t == 0:
            a('s_waitcnt lgkmcnt(0)')
            a('s_barrier')
            a('ds_read_b64 %s, v246 offset:0' % vr(CMR, 2))
            if pass0:
                for e in range(8):
                    a('v_accvgpr_write_b32 a%d, v%d' % (A_CCS + e, CCS + e))
            a('s_waitcnt lgkmcnt(0)')
    assert not wd_list


pair_base(sA, L.FC)
a('s_lshl_b32 s%d, s%d, 10' % (sB, sG))
a('s_add_u32 s%d, s%d, s%d' % (sA, sA, sB))
a('s_mul_i32 s%d, s%d, 56' % (sB, sW))
a('s_add_u32 s%d, s%d, s%d' % (sA, sA, sB))
a('v_lshl_add_u32 v243, v0, 2, s%d' % sA)
a('s_mov_b32 s%d, 0x3fff' % sMK2)
a('s_mov_b32 s%d, 0' % (sMK2 + 1))
n_before = a.vm_issued
dm_init = dict(dm)
a('s_cmp_eq_u32 s%d, 0' % sPAIR)
a('s_cbranch_scc0 L_c_loop1')
emit_c_loop(list(range(*WD_CH[1])))
a('s_branch L_c_done')
a.label('L_c_loop1')
extra = a.vm_issued - n_before
a.vm_issued = n_before
dm.clear()
dm.update(dm_init)
emit_c_loop([])
a.label('L_c_done')
stamp()
DH, DACC, DRD = 66, 130, 194
DRING, DLOOK = 16, 10
red_addrs()
publish_setup(L.XA[1], L.SA[1], L.FX[1], False, 5)
a('s_and_b32 s%d, s%d, 1' % (sA, sG))
a('s_lshr_b32 s%d, s%d, 1' % (sB, sW))
a('s_and_b32 s%d, s%d, s%d' % (sA, sA, sB))
a('s_xor_b32 s%d, s%d, 1' % (sA, sA))
a('s_and_b32 s%d, s%d, s%d' % (sPC, sFD, sA))
a('s_and_b32 s%d, s%d, s%d' % (sPFC, sFAST, sA))
pair_base(sA, L.H)
a('s_mul_i32 s%d, s%d, %d' % (sB, sG, 4 * 56 * 1024))
a('s_add_u32 s%d, s%d, s%d' % (sA, sA, sB))
a('s_mul_i32 s%d, s%d, %d' % (sB, sW, 14 * 1024))
a('s_add_u32 s%d, s%d, s%d' % (sO, sA, sB))
quarter_offsets(4, 56 * 1024)
a('s_cmp_eq_u32 s%d, 0' % sPAIR)
a('s_cbranch_scc1 L_d_nout')
owner_index()
a('s_mul_i32 s%d, s%d, 14336' % (sPX, sB))
a('s_lshl_b32 s%d, s%d, 6' % (sA, sA))
a('s_add_u32 s%d, s%d, s%d' % (sPX, sPX, sA))
a('s_add_u32 s%d, s%d, %d' % (sPX2, sPX, 2 * 14336))
a.label('L_d_nout')
a('v_and_b32 v%d, 15, v0' % V_TOK)
a('v_lshrrev_b32 v%d, 4, v0' % V_G)
a('v_mul_u32_u24 v242, 896, v%d' % V_TOK)
a('v_lshl_add_u32 v242, v%d, 3, v242' % V_G)
early_check(244, 243, amark['d0'])


def d_hload(q):
    tile, kk = divmod(q, 14)
    return ('buffer_load_dwordx4 %s, v1, %s, s%d offen offset:%d sc1' %
            (vr(DH + (q % DRING) * 4), srd(S_WS), sO + 4 * tile + (kk >> 2), 1024 * (kk & 3)))


hm = {}
dmk = {}
for q in range(DLOOK):
    a(d_hload(q))
    hm[q] = a.vm_mark()
    if q == 6:
        dmk[1] = early_issue(244, 243, 256)
stamp()
for x in gelu_post(6):
    a(x)
h_store(6)()
a('s_waitcnt lgkmcnt(0)')
gelu_packed(7)
h_flag(5)()
h_store(7)()
stamp()

a('s_barrier')
stamp()


def d_tile(tile):
    items = []
    for kk in range(14):
        q = tile * 14 + kk
        for t in range(4):
            r = DACC + (tile * 4 + t) * 4
            pre = [(lambda qq=q: a.wait_vm(hm[qq]))] if t == 0 else []
            if t == 0 and q in (3, 9):
                pre.append(h_flag({3: 6, 9: 7}[q]))
            post = None
            if t == 0 and q + DLOOK < 56:
                def post(qq=q + DLOOK):
                    if qq % 14 == 0:
                        early_check(244, 243, dmk[qq // 14], 256 * (qq // 14))
                    a(d_hload(qq))
                    hm[qq] = a.vm_mark()
                    if qq % 14 == 6 and qq // 14 < 3:
                        dmk[qq // 14 + 1] = early_issue(244, 243, 256 * (qq // 14 + 1))
            items.append((pre, '%s %s, %s, %s, %s' % (MFMA, vr(r), ar((kk * 4 + t) * 4), vr(DH + (q % DRING) * 4),
                                                      '0' if kk == 0 else vr(r)), post))
    return items


def d_out_store(st, pk):
    a('buffer_store_dwordx2 %s, v242, %s, s%d offen %s' % (vr(pk, 2), srd(S_OUT), sPX if st == 0 else sPX2, OUTSC))
    a('buffer_store_dwordx2 %s, v242, %s, s%d offen offset:32 %s' % (vr(pk + 2, 2), srd(S_OUT), sPX if st == 0 else sPX2, OUTSC))


def d_store(st, pk):
    fin, done = newlab('L_dfin'), newlab('L_ddone')
    a('s_cmp_eq_u32 s%d, 0' % sPAIR)
    a('s_cbranch_scc0 %s' % fin)
    publish_data(st, pk)
    a('s_branch %s' % done)
    a.label(fin)
    n = a.vm_issued
    d_out_store(st, pk)
    a.vm_issued = n
    a.label(done)


DT0, DT1, DPK, DSTT, DSTS = 226, 2, 18, 28, 36
stage0 = [lambda: (a('s_waitcnt lgkmcnt(0)'), a('s_barrier'))] + red_reads(0, DRD) + finish_pre(0, True, DT0)
stage0 += [lambda: a('s_waitcnt lgkmcnt(0)')] + finish_sum(0, DRD, DT0, DPK, False) + [lambda: d_store(0, DPK)]
run_tiles(d_tile, {1: red_writes(DACC, 0), 2: red_writes(DACC + 16, 1), 3: red_writes(DACC + 32, 2) + stage0})
stamp2()
for x in red_writes(DACC + 48, 3):
    a(x)
for x in finish_pre(1, True, DT1):
    a(x)
a('s_waitcnt lgkmcnt(0)')
a('s_barrier')
stamp2()
for x in red_reads(1, DRD):
    a(x)
a('s_waitcnt lgkmcnt(0)')
for x in finish_sum(1, DRD, DT1, DPK + 4, True):
    a(x)
d_store(1, DPK + 4)
stamp()
a('s_cmp_eq_u32 s%d, 0' % sPAIR)
a('s_cbranch_scc0 L_next_pair')
publish_flags(8)
publish_stats([DT0, DT1], DSTT, DSTS)
a('v_lshlrev_b32 v242, 8, v0')
a('s_add_u32 s%d, s%d, %d' % (sA, sPF, L.FSA - L.FX[1]))
a('v_add_u32 v242, s%d, v242' % sA)
a('s_branch L_next_pair2')
a.label('L_next_pair')
a('v_mov_b32 v242, 0x%x' % INV)
a.label('L_next_pair2')
stamp()
a('s_add_u32 s%d, s%d, 1' % (sPAIR, sPAIR))
a('s_cmp_lt_u32 s%d, 2' % sPAIR)
a('s_cbranch_scc1 L_pair')

a('s_cmp_eq_u32 s2, 0')
a('s_cbranch_scc0 L_noepoch')
a('s_cmp_eq_u32 s%d, 0' % sW)
a('s_cbranch_scc0 L_noepoch')
a('buffer_load_dword v2, off, %s, 0 sc1' % srd(S_WS))
a('s_waitcnt vmcnt(0)')
a('v_add_u32 v2, 1, v2')
a('s_mov_b64 exec, 1')
a('buffer_store_dword v2, off, %s, 0 sc1' % srd(S_WS))
a('s_mov_b64 exec, -1')
a.label('L_noepoch')
if PAD:
    a.label('L_padspin')
    a('s_memrealtime s[34:35]')
    a('s_waitcnt lgkmcnt(0)')
    a('s_sub_u32 s34, s34, s0')
    a('s_cmp_lt_u32 s34, %d' % PAD[0])
    a('s_cbranch_scc1 L_padspin')
if DBG:
    a('s_memtime s[32:33]')
    a('s_memrealtime s[34:35]')
    a('s_waitcnt lgkmcnt(0)')
    a('s_sub_u32 s32, s32, s26')
    a('s_sub_u32 s34, s34, s0')
    build_srd(S_TMP, P_DBG, 256)
    a('v_mov_b32 v2, s32')
    a('v_mov_b32 v3, s34')
    a('v_mov_b32 v4, s%d' % sFAST)
    a('v_mov_b32 v5, s%d' % sXCC)
    a('s_lshr_b32 s%d, s2, 6' % sA)
    a('s_lshl_b32 s%d, s%d, 4' % (sA, sA))
    a('s_and_b32 s%d, s2, 63' % sB)
    a('s_or_b32 s%d, s%d, s%d' % (sB, sB, sW))
    a('s_cmp_eq_u32 s%d, 0' % sB)
    a('s_cselect_b32 s%d, s%d, 0x%x' % (sA, sA, INV))
    a('v_mov_b32 v6, s%d' % sA)
    a('s_mov_b64 exec, 1')
    a('buffer_store_dwordx4 v[2:5], v6, %s, 0 offen' % srd(S_TMP))
    a('s_mov_b64 exec, -1')
if DIAG:
    stamp()
    a('s_mov_b32 s%d, 63' % sSTI)
    a('s_lshl_b64 exec, 1, s%d' % sSTI)
    a('v_mov_b32 v%d, s%d' % (V_STAMP, sERR))
    a('s_mov_b32 s%d, 62' % sSTI)
    a('s_lshl_b64 exec, 1, s%d' % sSTI)
    a('v_mov_b32 v%d, s%d' % (V_STAMP, sFAST))
    a('s_mov_b64 exec, -1')
    a('s_lshl_b32 s%d, s2, 2' % sA)
    a('s_add_u32 s%d, s%d, s%d' % (sA, sA, sW))
    a('s_lshl_b32 s%d, s%d, 8' % (sA, sA))
    a('v_lshlrev_b32 v2, 2, v0')
    a('s_add_u32 s%d, s%d, %d' % (sA, sA, L.WS_USED))
    a('s_mov_b32 s%d, 0x%x' % (S_WS + 2, L.WS_USED + 256 * 1024))
    a('buffer_store_dword v%d, v2, %s, s%d offen' % (V_STAMP, srd(S_WS), sA))
    if DBGST:
        build_srd(S_TMP, P_DBG, 256)
        a('v_readfirstlane_b32 s%d, v%d' % (sA, V_STAMP))
        a('s_nop 4')
        a('v_subrev_u32 v3, s%d, v%d' % (sA, V_STAMP))
        a('s_or_b32 s%d, s2, s%d' % (sB, sW))
        a('s_cmp_eq_u32 s%d, 0' % sB)
        a('s_cselect_b32 s%d, 0, 0x%x' % (sB, INV))
        a('v_or_b32 v2, s%d, v2' % sB)
        SEL = [int(x[6:]) for x in sys.argv if x.startswith('--sel=')]
        sel = SEL[0] if SEL else 1
        a('v_subrev_u32 v2, %d, v2' % (4 * sel))
        a('buffer_store_dword v3, v2, %s, 0 offen' % srd(S_TMP))
a.label('L_end')
a('s_endpgm')

a.finalize()
body = a.text()

import os
hdr = open(os.path.join(os.path.dirname(os.path.abspath(__file__)), 'header.txt')).read()
out = hdr + '; @launch grid=(256,1,1) block=(256,1,1) lds=%d\n' % L.LDS_BYTES
out += '.amdgcn_target "amdgcn-amd-amdhsa--gfx950"\n.text\n.globl %s_kernel\n.p2align 8\n.type %s_kernel,@function\n%s_kernel:\n' % (NAME, NAME, NAME)
out += body
out += '''.section .rodata,"a"
.p2align 6
.amdhsa_kernel %s_kernel
  .amdhsa_next_free_vgpr 512
  .amdhsa_next_free_sgpr 102
  .amdhsa_accum_offset 256
  .amdhsa_group_segment_fixed_size 0
  .amdhsa_kernarg_size 88
  .amdhsa_user_sgpr_count 2
  .amdhsa_user_sgpr_kernarg_segment_ptr 1
  .amdhsa_system_sgpr_workgroup_id_x 1
.end_amdhsa_kernel
''' % NAME
sys.stdout.write(out)
```

```python
import struct
import sys
from asmlib import Asm
import layout as L

NAME = 'interleave_layers__sliding_local_dilated__mixer_channel_mlp__prompt'
DIAG = '--diag' in sys.argv
FASTMODE = ([x[7:] for x in sys.argv if x.startswith('--fast=')] + ['flags'])[0]
NOFAST = FASTMODE == 'none'
PAD = [int(x[6:]) for x in sys.argv if x.startswith('--pad=')]
DBG = '--dbg' in sys.argv or bool(PAD)
SPIN_LIMIT = 200000
OUTSC = ([x[8:] for x in sys.argv if x.startswith('--outsc=')] + [''])[0].replace('_', ' ')
SLEEP = int(([x[8:] for x in sys.argv if x.startswith('--sleep=')] + ['0'])[0])
INV = 0x80000000

a = Asm()

sXCC = 3
S_WS, S_TMP, S_B1, S_OUT = 4, 8, 12, 16
P_X, P_WQKV, P_WO, P_BX, P_W1, P_B1, P_W2, P_B2, P_OUT, P_DBG, P_WSP = 20, 22, 24, 26, 28, 30, 32, 34, 36, 38, 40
sS, sC, sG, sJ, sW, sT, sPAIR, sSPIN = 42, 43, 44, 45, 46, 47, 48, 49
sM1 = 50
sM2 = 58
sM0 = 66
sO = 74
sA, sB, sCc, sD = 90, 91, 92, 93
sMK = 94
sTS = 96
sGT = 98
sERR = 99
sSTI = 100
sFAST = 101
sFD = 27
sPFC = 26
sFH = 25


def srd(n):
    return 's[%d:%d]' % (n, n + 3)


def vr(n, k=4):
    return 'v[%d:%d]' % (n, n + k - 1)


def ar(n, k=4):
    return 'a[%d:%d]' % (n, n + k - 1)


def sp(n):
    return 's[%d:%d]' % (n, n + 1)


def f2h(x):
    return '0x%08x' % struct.unpack('<I', struct.pack('<f', x))[0]


V_T, V_STAMP = 254, 255
V_TOK, V_G = 250, 251
MFMA = 'v_mfma_f32_16x16x32_bf16'


DIAG2 = '--diag2' in sys.argv
PREF = '--pref' in sys.argv
TOUCH = '--notouch' not in sys.argv
P2EARLY = '--p2early' in sys.argv
SKEW = [int(x[7:]) for x in sys.argv if x.startswith('--skew=')]
DBGST = '--dbgst' in sys.argv


def stamp2():
    if DIAG2:
        stamp()


def stamp():
    if not DIAG:
        return
    a('s_memtime %s' % sp(sTS))
    a('s_waitcnt lgkmcnt(0)')
    a('s_lshl_b64 exec, 1, s%d' % sSTI)
    a('v_mov_b32 v%d, s%d' % (V_STAMP, sTS))
    a('s_mov_b64 exec, -1')
    a('s_add_u32 s%d, s%d, 1' % (sSTI, sSTI))


lab_no = [0]


def newlab(p):
    lab_no[0] += 1
    return '%s_%d' % (p, lab_no[0])


def skew_store(point, have=False):
    if not SKEW or SKEW[0] != point:
        return
    if not have:
        a('s_memrealtime s[96:97]')
        a('s_waitcnt lgkmcnt(0)')
    build_srd(S_TMP, P_DBG, 256)
    a('s_and_b32 s%d, s2, 15' % sA)
    a('s_or_b32 s%d, s%d, s%d' % (sA, sA, sW))
    a('s_cmp_eq_u32 s%d, 0' % sA)
    a('s_cselect_b32 s%d, 0, 0x%x' % (sA, INV))
    a('s_lshr_b32 s%d, s2, 2' % sB)
    a('s_or_b32 s%d, s%d, s%d' % (sA, sA, sB))
    a('v_mov_b32 v21, s%d' % sA)
    a('v_mov_b32 v22, s96')
    a('s_mov_b64 exec, 1')
    a('buffer_store_dword v22, v21, %s, 0 offen' % srd(S_TMP))
    a.vm_issued -= 1
    a('s_mov_b64 exec, -1')


def build_srd(dst, ptr, nbytes):
    a('s_mov_b32 s%d, s%d' % (dst, ptr))
    a('s_and_b32 s%d, s%d, 0xffff' % (dst + 1, ptr + 1))
    a('s_mov_b32 s%d, 0x%x' % (dst + 2, nbytes))
    a('s_mov_b32 s%d, 0x20000' % (dst + 3))


def poll(voff, off2=None):
    lab, done = newlab('L_poll'), newlab('L_polldone')
    a('s_mov_b64 exec, %s' % sp(sMK))
    a('s_mov_b32 s%d, 0' % sSPIN)
    a.label(lab)
    a('buffer_load_dword v253, v%d, %s, 0 offen sc1' % (voff, srd(S_WS)))
    if off2 is not None:
        a('buffer_load_dword v245, v%d, %s, 0 offen offset:%d sc1' % (voff, srd(S_WS), off2))
    a('s_waitcnt vmcnt(0)')
    if off2 is not None:
        a('v_xor_b32 v245, s%d, v245' % sT)
        a('v_xor_b32 v253, s%d, v253' % sT)
        a('v_or_b32 v253, v253, v245')
        a('v_cmp_ne_u32 vcc, 0, v253')
    else:
        a('v_cmp_ne_u32 vcc, s%d, v253' % sT)
    a('s_nop 4')
    a('s_cbranch_vccz %s' % done)
    if SLEEP:
        a('s_sleep %d' % SLEEP)
    a('s_add_u32 s%d, s%d, 1' % (sSPIN, sSPIN))
    a('s_cmp_lt_u32 s%d, %d' % (sSPIN, SPIN_LIMIT))
    a('s_cbranch_scc1 %s' % lab)
    a('s_add_u32 s%d, s%d, 1' % (sERR, sERR))
    a.label(done)
    a('s_mov_b64 exec, -1')


sMK2 = 30


def early_issue(dst, voff, off=0):
    a('s_mov_b64 exec, %s' % sp(sMK2))
    a('buffer_load_dword v%d, v%d, %s, 0 offen offset:%d sc1' % (dst, voff, srd(S_WS), off))
    a('s_mov_b64 exec, -1')
    return a.vm_mark()


def early_check(dst, voff, mark, off=0):
    ok = newlab('L_early')
    a.wait_vm(mark)
    a('s_mov_b64 exec, %s' % sp(sMK2))
    a('v_cmp_ne_u32 vcc, s%d, v%d' % (sT, dst))
    a('s_mov_b64 exec, -1')
    a('s_nop 2')
    a('s_cbranch_vccz %s' % ok)
    a('s_mov_b64 %s, %s' % (sp(sMK), sp(sMK2)))
    n = a.vm_issued
    if off:
        a('v_add_u32 v253, %d, v%d' % (off, voff))
        a('v_mov_b32 v%d, v253' % dst)
        poll(dst)
    else:
        poll(voff)
    a.vm_issued = n
    a.label(ok)


def store(fmt, cond=None):
    if cond is None or NOFAST or (FASTMODE == 'flags' and cond in (sFD, sFH, sPC)):
        a(fmt + ' sc1')
        return
    slow, done = newlab('L_slow'), newlab('L_st')
    a('s_cmp_eq_u32 s%d, 0' % cond)
    a('s_cbranch_scc1 %s' % slow)
    a(fmt)
    a('s_branch %s' % done)
    a.label(slow)
    a(fmt + ' sc1')
    a.vm_issued -= 1
    a.label(done)


def set_flags(voff, nlanes, cond=None, val=V_T, between=()):
    mark = a.vm_mark()
    for x in between:
        a(x)
    a.wait_vm(mark)
    a('s_mov_b64 exec, %d' % ((1 << nlanes) - 1))
    store('buffer_store_dword v%d, v%d, %s, 0 offen' % (val, voff, srd(S_WS)), cond)
    a('s_mov_b64 exec, -1')


def xg_reduce(x, t, op='v_add_f32'):
    return ['v_mov_b32 v%d, v%d' % (t, x),
            'v_permlane32_swap_b32 v%d, v%d' % (x, t),
            '%s v%d, v%d, v%d' % (op, x, x, t),
            'v_mov_b32 v%d, v%d' % (t, x),
            'v_permlane16_swap_b32 v%d, v%d' % (x, t),
            '%s v%d, v%d, v%d' % (op, x, x, t)]


EPS = 1e-5


def stats_finish(s1, s2, t, double_ln):
    o = ['v_mul_f32 v%d, %s, v%d' % (s1, f2h(1.0 / 448), s1),
         'v_mul_f32 v%d, %s, v%d' % (s2, f2h(1.0 / 448), s2),
         'v_fma_f32 v%d, -v%d, v%d, v%d' % (s2, s1, s1, s2),
         'v_max_f32 v%d, 0, v%d' % (s2, s2),
         'v_add_f32 v%d, %s, v%d' % (t, f2h(EPS), s2),
         'v_rsq_f32 v%d, v%d' % (t, t)]
    if not double_ln:
        o += ['v_mov_b32 v%d, v%d' % (s2, t)]
    else:
        o += ['v_mul_f32 v%d, v%d, v%d' % (s2, s2, t),
              'v_fmaak_f32 v%d, v%d, v%d, %s' % (s2, s2, t, f2h(EPS)),
              'v_rsq_f32 v%d, v%d' % (s2, s2),
              'v_mul_f32 v%d, v%d, v%d' % (s2, s2, t)]
    return o


def pair_base(dst, arr):
    a('s_mul_i32 s%d, s%d, %d' % (dst, sPAIR, arr[1] - arr[0]))
    a('s_add_u32 s%d, s%d, %d' % (dst, dst, arr[0]))


def quarter_offsets(n, stride):
    for t in range(n):
        if t:
            a('s_add_u32 s%d, s%d, %d' % (sO + 4 * t, sO + 4 * (t - 1), stride))
        for q in range(1, 4):
            a('s_add_u32 s%d, s%d, %d' % (sO + 4 * t + q, sO + 4 * t, 4096 * q))


sPX, sPS, sPF, sPC, sPX2 = 36, 37, 28, 29, 33


def stats_flags(delta, lsh):
    a('v_lshlrev_b32 v241, %d, v0' % lsh)
    a('s_add_u32 s%d, s%d, %d' % (sA, sPF, delta))
    a('v_add_u32 v241, s%d, v241' % sA)
    a('s_mov_b64 exec, 3')
    store('buffer_store_dword v%d, v241, %s, 0 offen' % (V_T, srd(S_WS)), sPFC)
    a('s_mov_b64 exec, -1')


a('s_cmp_ge_u32 s2, 256')
a('s_cbranch_scc1 L_end')
a('s_load_dwordx16 s[20:35], s[0:1], 0')
a('s_load_dwordx4 s[36:39], s[0:1], 64')
a('s_load_dwordx2 s[40:41], s[0:1], 80')
a('s_getreg_b32 s%d, hwreg(HW_REG_XCC_ID, 0, 4)' % sXCC)
a('s_and_b32 s%d, s2, 7' % sA)
a('s_lshr_b32 s%d, s2, 3' % sB)
a('s_lshr_b32 s%d, s%d, 4' % (sCc, sB))
a('s_lshl_b32 s%d, s%d, 1' % (sS, sA))
a('s_add_u32 s%d, s%d, s%d' % (sS, sS, sCc))
a('s_and_b32 s%d, s%d, 15' % (sC, sB))
a('s_lshr_b32 s%d, s%d, 3' % (sA, sC))
a('s_lshl_b32 s%d, s%d, 1' % (sG, sS))
a('s_add_u32 s%d, s%d, s%d' % (sG, sG, sA))
a('s_and_b32 s%d, s%d, 7' % (sJ, sC))
a('s_mov_b32 s%d, 0' % sERR)
if SKEW and SKEW[0] == 0:
    a('s_memrealtime s[96:97]')
if PREF:
    a('s_getpc_b64 s[96:97]')
    a.label('L_pc')
    a('s_lshl_b32 s%d, s%d, 11' % (sA, sB))
    a('v_lshlrev_b32 v3, 3, v0')
    a('v_add_u32 v3, s%d, v3' % sA)
    a('v_min_u32 v3, L_end-L_pc-8, v3')
    a('global_load_dwordx2 v[252:253], v3, s[96:97]')
a('v_lshrrev_b32 v2, 6, v0')
a('v_and_b32 v0, 63, v0')
a('v_readfirstlane_b32 s%d, v2' % sW)
a('v_lshlrev_b32 v1, 4, v0')
if DIAG:
    a('v_mov_b32 v%d, 0' % V_STAMP)
    a('s_mov_b32 s%d, 0' % sSTI)
stamp()
a('v_and_b32 v%d, 15, v0' % V_TOK)
a('v_lshrrev_b32 v%d, 4, v0' % V_G)
sSTG = 40
a('s_waitcnt lgkmcnt(0)')
if DBG:
    a('s_memtime s[26:27]')
    a('s_memrealtime s[0:1]')
    a('s_waitcnt lgkmcnt(0)')
skew_store(0, True)
build_srd(S_WS, P_WSP, L.WS_USED)
a('buffer_load_dword v%d, off, %s, 0 sc1' % (V_T, srd(S_WS)))
a('s_lshl_b32 s%d, s%d, 14' % (sSTG, sW))
a('s_add_u32 s%d, s%d, %d' % (sSTG, sSTG, L.L_R2))

build_srd(S_TMP, P_X, 2048 * 896)
a('v_mul_u32_u24 v2, 896, v%d' % V_TOK)
a('v_lshl_add_u32 v2, v%d, 3, v2' % V_G)
a('s_lshr_b32 s%d, s%d, 1' % (sA, sC))
a('s_lshl_b32 s%d, s%d, 3' % (sB, sS))
a('s_add_u32 s%d, s%d, s%d' % (sO + 0, sA, sB))
a('s_and_b32 s%d, s%d, 1' % (sA, sC))
a('s_mul_i32 s%d, s%d, 7' % (sA, sA))
a('s_add_u32 s%d, s%d, s%d' % (sO + 1, sA, sW))
a('s_cmp_lt_u32 s%d, 3' % sW)
a('s_cselect_b32 s%d, 0, 0x%x' % (sO + 2, INV))
a('s_mul_i32 s%d, s%d, 14336' % (sA, sO + 0))
a('s_lshl_b32 s%d, s%d, 6' % (sB, sO + 1))
a('s_add_u32 s%d, s%d, s%d' % (sA, sA, sB))
a('v_or_b32 v3, s%d, v2' % (sO + 2))
a('buffer_load_dwordx2 v[10:11], v2, %s, s%d offen' % (srd(S_TMP), sA))
a('buffer_load_dwordx2 v[12:13], v2, %s, s%d offen offset:32' % (srd(S_TMP), sA))
a('buffer_load_dwordx2 v[14:15], v3, %s, s%d offen offset:256' % (srd(S_TMP), sA))
a('buffer_load_dwordx2 v[16:17], v3, %s, s%d offen offset:288' % (srd(S_TMP), sA))

build_srd(S_TMP, P_WQKV, 448 * 2688)
qMAT, qU, qINV = sO + 3, sO + 4, sO + 5
a('s_lshl_b32 s%d, s%d, 4' % (sA, sW))
a('s_add_u32 s%d, s%d, s%d' % (sA, sA, sS))
a('s_cmp_lt_u32 s%d, 42' % sA)
a('s_cselect_b32 s%d, 0, 0x%x' % (qINV, INV))
a('s_min_u32 s%d, s%d, 41' % (sA, sA))
a('s_mul_i32 s%d, s%d, 4682' % (qMAT, sA))
a('s_lshr_b32 s%d, s%d, 16' % (qMAT, qMAT))
a('s_mul_i32 s%d, s%d, 14' % (sB, qMAT))
a('s_sub_u32 s%d, s%d, s%d' % (qU, sA, sB))
a('s_mul_i32 s%d, s%d, %d' % (sA, qU, 32 * 2688))
a('s_mul_i32 s%d, s%d, 896' % (sB, qMAT))
a('s_add_u32 s%d, s%d, s%d' % (sA, sA, sB))
a('s_mul_i32 s%d, s%d, 56' % (sB, sC))
a('s_add_u32 s%d, s%d, s%d' % (sA, sA, sB))
a('v_lshrrev_b32 v4, 2, v0')
a('v_mul_u32_u24 v4, 2688, v4')
a('v_and_b32 v5, 3, v0')
a('v_lshl_add_u32 v4, v5, 4, v4')
a('v_or_b32 v4, s%d, v4' % qINV)
a('s_mov_b32 m0, s%d' % sSTG)
a('s_add_u32 s%d, s%d, %d' % (sB, sA, 16 * 2688))
a('buffer_load_dwordx4 v4, %s, s%d offen lds' % (srd(S_TMP), sA))
a('s_add_u32 m0, s%d, 1024' % sSTG)
a('s_nop 0')
a('buffer_load_dwordx4 v4, %s, s%d offen lds' % (srd(S_TMP), sB))

bINV, bDST, bSTR, bINV2, bDST2, sSTRD = 20, 21, 22, 23, 24, 25


def emit_p2_issue():
    a('s_cmp_eq_u32 s%d, 3' % sW)
    a('s_cbranch_scc1 L_p2_w1')
    a('s_lshl_b32 s%d, s%d, 5' % (sA, sW))
    a('s_add_u32 s%d, s%d, s%d' % (sA, sA, sG))
    a('s_cmp_lt_u32 s%d, 72' % sA)
    a('s_cselect_b32 s%d, 0, 0x%x' % (bINV, INV))
    a('s_cmp_eq_u32 s%d, 7' % sJ)
    a('s_cselect_b32 s%d, 0x%x, s%d' % (bINV, INV, bINV))
    a('s_min_u32 s%d, s%d, 71' % (sA, sA))
    a('s_min_u32 s%d, s%d, 6' % (sD, sJ))
    a('s_cmp_lt_u32 s%d, 16' % sA)
    a('s_cselect_b32 s%d, s%d, s%d' % (S_TMP, P_WO, P_W2))
    a('s_cselect_b32 s%d, s%d, s%d' % (S_TMP + 1, P_WO + 1, P_W2 + 1))
    a('s_mov_b32 s%d, 0x%x' % (S_TMP + 2, 1792 * 896))
    a('s_cselect_b32 s%d, 0x%x, s%d' % (S_TMP + 2, 448 * 896, S_TMP + 2))
    a('s_cselect_b32 s%d, 28, 32' % sB)
    a('s_cselect_b32 s%d, 0, 16' % sCc)
    a('s_mov_b32 s%d, %d' % (bSTR, 56 * 1024))
    a('s_cselect_b32 s%d, %d, s%d' % (bSTR, 16 * 1024, bSTR))
    a('s_mov_b32 s%d, %d' % (bDST, L.WD))
    a('s_cselect_b32 s%d, %d, s%d' % (bDST, L.WB, bDST))
    a('s_cselect_b32 s%d, 0x%x, 0' % (sO + 9, INV))
    a('s_and_b32 s%d, s%d, 0xffff' % (S_TMP + 1, S_TMP + 1))
    a('s_mov_b32 s%d, 0x20000' % (S_TMP + 3))
    a('s_sub_u32 s%d, s%d, s%d' % (sA, sA, sCc))
    a('s_lshl_b32 s%d, s%d, 10' % (sCc, sA))
    a('s_add_u32 s%d, s%d, s%d' % (bDST, bDST, sCc))
    a('s_lshl_b32 s%d, s%d, 2' % (sCc, sD))
    a('s_mul_i32 s%d, s%d, s%d' % (sCc, sCc, bSTR))
    a('s_add_u32 s%d, s%d, s%d' % (bDST, bDST, sCc))
    a('s_mul_i32 s%d, s%d, s%d' % (sA, sA, sB))
    a('s_mul_i32 s%d, s%d, 896' % (sA, sA))
    a('s_lshl_b32 s%d, s%d, 7' % (sB, sD))
    a('s_add_u32 s%d, s%d, s%d' % (sO + 10, sA, sB))
    a('s_mov_b32 s%d, 896' % sSTRD)
    a('s_mov_b32 s%d, 0x%x' % (bINV2, INV))
    a('s_mov_b32 s%d, 0' % bDST2)
    a('s_mov_b32 s%d, 0' % (sO + 11))
    a('s_branch L_p2_go')
    a.label('L_p2_w1')
    build_srd(S_TMP, P_W1, 448 * 3584)
    a('s_lshl_b32 s%d, s%d, 4' % (sA, sS))
    a('s_add_u32 s%d, s%d, s%d' % (sA, sA, sC))
    a('s_cmp_lt_u32 s%d, 136' % sA)
    a('s_cselect_b32 s%d, 0, 0x%x' % (bINV2, INV))
    a('s_mov_b32 s%d, 0' % bINV)
    a('s_mov_b32 s%d, 0' % (sO + 9))
    a('s_mov_b32 s%d, %d' % (bSTR, 14 * 1024))
    a('s_mov_b32 s%d, 3584' % sSTRD)
    for dst, src, add in ((bDST, sO + 10, 0), (bDST2, sO + 11, 256)):
        a('s_add_u32 s%d, s%d, %d' % (sB, sA, add))
        a('s_min_u32 s%d, s%d, 391' % (sB, sB))
        a('s_mul_i32 s%d, s%d, 4682' % (sCc, sB))
        a('s_lshr_b32 s%d, s%d, 16' % (sCc, sCc))
        a('s_mul_i32 s%d, s%d, 14' % (sD, sCc))
        a('s_sub_u32 s%d, s%d, s%d' % (sB, sB, sD))
        a('s_mul_i32 s%d, s%d, %d' % (src, sB, 32 * 3584))
        a('s_lshl_b32 s%d, s%d, 7' % (sD, sCc))
        a('s_add_u32 s%d, s%d, s%d' % (src, src, sD))
        a('s_mul_i32 s%d, s%d, 56' % (sD, sCc))
        a('s_add_u32 s%d, s%d, s%d' % (sD, sD, sB))
        a('s_lshl_b32 s%d, s%d, 10' % (sD, sD))
        a('s_add_u32 s%d, s%d, %d' % (dst, sD, L.WC))
    a.label('L_p2_go')
    a('v_lshrrev_b32 v6, 3, v0')
    a('v_mul_lo_u32 v6, v6, s%d' % sSTRD)
    a('v_and_b32 v5, 7, v0')
    a('v_lshl_add_u32 v6, v5, 4, v6')
    a('v_or_b32 v8, s%d, v6' % bINV2)
    a('v_or_b32 v6, s%d, v6' % bINV)
    a('v_cmp_lt_u32 vcc, 31, v0')
    a('v_mov_b32 v7, s%d' % (sO + 9))
    a('v_cndmask_b32 v7, 0, v7, vcc')
    a('v_or_b32 v7, v7, v6')
    a('s_lshl_b32 s%d, s%d, 3' % (sB, sSTRD))
    for slot in range(2):
        src = sO + 10 + slot
        for q in range(4):
            a('s_add_u32 m0, s%d, %d' % (sSTG, 2048 + 4096 * slot + 1024 * q))
            if q:
                a('s_add_u32 s%d, s%d, s%d' % (src, src, sB))
            else:
                a('s_nop 0')
            a('buffer_load_dwordx4 v%d, %s, s%d offen lds' % (8 if slot else (7 if q == 3 else 6), srd(S_TMP), src))


if P2EARLY:
    emit_p2_issue()
build_srd(S_B1, P_B1, 1792 * 2)
build_srd(S_OUT, P_OUT, 2048 * 896)
a('v_bfe_u32 v18, v0, 2, 2')
a('v_lshl_add_u32 v18, v%d, 2, v18' % V_G)
a('v_and_b32 v19, 3, v0')
a('v_lshlrev_b32 v19, 3, v19')
if TOUCH:
    a('v_lshlrev_b32 v21, 21, v0')
    a('s_mov_b64 exec, 0x1ffff')
    a('buffer_load_dword v253, v21, %s, 0 offen' % srd(S_WS))
    a('s_mov_b64 exec, -1')
    a('s_waitcnt vmcnt(%d)' % (9 if P2EARLY else 1))
else:
    a('s_waitcnt vmcnt(%d)' % (8 if P2EARLY else 0))
stamp()

a('s_mov_b32 s%d, 0x9E3779B1' % sA)
a('v_mul_lo_u32 v%d, v%d, s%d' % (V_T, V_T, sA))
a('v_add_u32 v%d, 0x7F4A7C15, v%d' % (V_T, V_T))
a('v_and_b32 v%d, -16, v%d' % (V_T, V_T))
a('v_lshl_add_u32 v20, v18, 6, v19')
a('v_add_u32 v20, s%d, v20' % sSTG)
for hf in range(2):
    a('ds_read_b64_tr_b16 %s, v20 offset:%d' % (vr(24 + 4 * hf, 2), 32 * hf))
    a('ds_read_b64_tr_b16 %s, v20 offset:%d' % (vr(26 + 4 * hf, 2), 32 * hf + 1024))
a('v_readfirstlane_b32 s%d, v%d' % (sT, V_T))
a('s_mul_i32 s%d, s%d, 14' % (sA, sO + 0))
a('s_add_u32 s%d, s%d, s%d' % (sA, sA, sO + 1))
a('s_lshl_b32 s%d, s%d, 10' % (sB, sA))
a('s_add_u32 s%d, s%d, %d' % (sB, sB, L.XA[0]))
a('v_or_b32 v3, s%d, v1' % (sO + 2))
a('buffer_store_dwordx4 v[10:13], v1, %s, s%d offen sc1' % (srd(S_WS), sB))
a('s_add_u32 s%d, s%d, 4096' % (sB, sB))
a('buffer_store_dwordx4 v[14:17], v3, %s, s%d offen sc1' % (srd(S_WS), sB))
a('v_cmp_gt_u32 vcc, 12, v%d' % V_TOK)
a('s_mul_i32 s%d, s%d, 84' % (sB, sC))
a('s_mul_i32 s%d, s%d, 28' % (sCc, qMAT))
a('s_add_u32 s%d, s%d, s%d' % (sB, sB, sCc))
a('s_add_u32 s%d, s%d, s%d' % (sB, sB, qU))
a('s_lshl_b32 s%d, s%d, 10' % (sB, sB))
a('s_add_u32 s%d, s%d, %d' % (sB, sB, L.WA))
a('v_or_b32 v4, s%d, v1' % qINV)
a('s_waitcnt lgkmcnt(0)')
for p in range(4):
    a('v_cndmask_b32 v%d, 0, v%d, vcc' % (28 + p, 28 + p))
a('buffer_store_dwordx4 v[24:27], v4, %s, s%d offen sc1' % (srd(S_WS), sB))
a('s_add_u32 s%d, s%d, %d' % (sB, sB, 14 * 1024))
a('buffer_store_dwordx4 v[28:31], v4, %s, s%d offen sc1' % (srd(S_WS), sB))
a('v_mov_b32 v2, 0x3f803f80')
for k in range(2):
    x, s1, s2 = 10 + 4 * k, 110 + 2 * k, 111 + 2 * k
    a('v_mov_b32 v%d, 0' % s1)
    a('v_mov_b32 v%d, 0' % s2)
    for p in range(4):
        a('v_dot2_f32_bf16 v%d, v%d, v2, v%d' % (s1, x + p, s1))
        a('v_dot2_f32_bf16 v%d, v%d, v%d, v%d' % (s2, x + p, x + p, s2))
    for t in xg_reduce(s1, 114) + xg_reduce(s2, 115):
        a(t)
a('s_lshl_b32 s%d, s%d, 7' % (sB, sA))
a('s_add_u32 s%d, s%d, %d' % (sB, sB, L.SA[0]))
a('v_lshlrev_b32 v2, 3, v%d' % V_TOK)
a('v_or_b32 v3, s%d, v2' % (sO + 2))
a('s_mov_b64 exec, 0xffff')
a('buffer_store_dwordx2 v[110:111], v2, %s, s%d offen sc1' % (srd(S_WS), sB))
a('buffer_store_dwordx2 v[112:113], v3, %s, s%d offen offset:512 sc1' % (srd(S_WS), sB))
a('s_mov_b64 exec, -1')
crit_mark = a.vm_mark()
if not P2EARLY:
    emit_p2_issue()
a('s_lshl_b32 s%d, s%d, 5' % (sA, sO + 0))
a('s_add_u32 s%d, s%d, s%d' % (sA, sA, sO + 1))
a('s_lshl_b32 s%d, s%d, 2' % (sA, sA))
a('s_add_u32 s%d, s%d, %d' % (sA, sA, L.FX[0]))
a('v_lshlrev_b32 v2, 4, v0')
a('v_add_u32 v2, s%d, v2' % sA)
a('v_cmp_eq_u32 vcc, 1, v0')
a('v_mov_b32 v3, s%d' % (sO + 2))
a('v_cndmask_b32 v3, 0, v3, vcc')
a('v_or_b32 v2, v2, v3')
a('s_lshl_b32 s%d, s%d, 6' % (sA, sC))
a('s_lshl_b32 s%d, s%d, 2' % (sB, sS))
a('s_add_u32 s%d, s%d, s%d' % (sA, sA, sB))
a('s_add_u32 s%d, s%d, s%d' % (sA, sA, sW))
a('s_lshl_b32 s%d, s%d, 2' % (sA, sA))
a('s_add_u32 s%d, s%d, %d' % (sA, sA, L.FQ))
a('v_mov_b32 v3, s%d' % sA)
a('v_cmp_eq_u32 vcc, 2, v0')
a('v_cndmask_b32 v2, v2, v3, vcc')
a('s_lshl_b32 s%d, s%d, 4' % (sA, sS))
a('s_add_u32 s%d, s%d, s%d' % (sA, sA, sC))
a('s_lshl_b32 s%d, s%d, 2' % (sA, sA))
a('s_add_u32 s%d, s%d, %d' % (sA, sA, L.FXC))
a('s_cmp_eq_u32 s%d, 0' % sW)
a('s_cselect_b32 s%d, s%d, 0x%x' % (sA, sA, INV))
a('v_mov_b32 v3, s%d' % sA)
a('v_cmp_eq_u32 vcc, 3, v0')
a('v_cndmask_b32 v2, v2, v3, vcc')
a('v_or_b32 v3, s%d, v%d' % (sXCC, V_T))
a('v_cndmask_b32 v3, v%d, v3, vcc' % V_T)
stamp2()
a.wait_vm(crit_mark)
a('s_mov_b64 exec, 15')
a('buffer_store_dword v3, v2, %s, 0 offen sc1' % srd(S_WS))
a('s_mov_b64 exec, -1')
stamp()

skew_store(1)
a('s_waitcnt vmcnt(1)')
a('v_lshl_add_u32 v20, v18, 7, v19')
a('v_add_u32 v20, s%d, v20' % sSTG)
for slot in range(2):
    for t in range(4):
        a('ds_read_b64_tr_b16 %s, v20 offset:%d' % (vr(24 + 16 * slot + 4 * t, 2), 2048 + 4096 * slot + 32 * t))
        a('ds_read_b64_tr_b16 %s, v20 offset:%d' % (vr(26 + 16 * slot + 4 * t, 2), 2048 + 4096 * slot + 32 * t + 2048))
a('v_or_b32 v6, s%d, v1' % bINV)
a('v_or_b32 v8, s%d, v1' % bINV2)
a('s_waitcnt lgkmcnt(8)')
for t in range(4):
    a('buffer_store_dwordx4 %s, v6, %s, s%d offen sc1' % (vr(24 + 4 * t), srd(S_WS), bDST))
    if t < 3:
        a('s_add_u32 s%d, s%d, s%d' % (bDST, bDST, bSTR))
a('s_waitcnt lgkmcnt(0)')
for t in range(4):
    a('buffer_store_dwordx4 %s, v8, %s, s%d offen sc1' % (vr(40 + 4 * t), srd(S_WS), bDST2))
    if t < 3:
        a('s_add_u32 s%d, s%d, s%d' % (bDST2, bDST2, bSTR))
a('s_lshl_b32 s%d, s%d, 4' % (sA, sS))
a('s_add_u32 s%d, s%d, s%d' % (sA, sA, sC))
a('s_lshl_b32 s%d, s%d, 2' % (sA, sA))
a('s_add_u32 s%d, s%d, %d' % (sA, sA, L.FW1))
a('v_lshlrev_b32 v22, 10, v0')
a('v_add_u32 v22, s%d, v22' % sA)
a('v_cmp_eq_u32 vcc, 1, v0')
a('v_mov_b32 v23, s%d' % bINV2)
a('v_cndmask_b32 v23, 0, v23, vcc')
a('v_or_b32 v22, v22, v23')
a('s_cmp_eq_u32 s%d, 3' % sW)
a('s_cselect_b32 s%d, 0, 0x%x' % (sA, INV))
a('v_or_b32 v22, s%d, v22' % sA)

skew_store(3)
a('v_and_b32 v2, 1, v%d' % V_TOK)
a('v_lshlrev_b32 v3, 2, v%d' % V_G)
a('v_add_u32 v6, 2, v%d' % V_TOK)
for i in range(4):
    a('v_add_u32 v4, %d, v3' % i)
    a('v_cmp_eq_u32 vcc, %d, v2' % (i & 1))
    a('s_mov_b64 %s, vcc' % sp(sMK))
    a('v_cmp_ge_u32 vcc, v4, v6')
    a('s_and_b64 %s, vcc, %s' % (sp(sM1 + 2 * i), sp(sMK)))
    a('v_cmp_le_u32 vcc, v4, v%d' % V_TOK)
    a('s_and_b64 %s, vcc, %s' % (sp(sM2 + 2 * i), sp(sMK)))
a('s_lshl_b32 s%d, s%d, 3' % (sA, sS))
a('s_lshl_b32 s%d, s%d, 1' % (sB, sW))
a('s_add_u32 s%d, s%d, s%d' % (sGT, sA, sB))
a('s_cmp_eq_u32 s%d, 0' % sGT)
for i in range(4):
    a('s_cselect_b64 %s, 0, %s' % (sp(sM0 + 2 * i), sp(sM1 + 2 * i)))
a('s_mov_b32 s%d, 0' % sPAIR)

def a_flag_addr(dst):
    pair_base(sA, L.FX)
    a('s_lshl_b32 s%d, s%d, 7' % (sB, sGT))
    a('s_add_u32 s%d, s%d, s%d' % (sA, sA, sB))
    a('s_sub_u32 s%d, s%d, 128' % (sA, sA))
    a('v_and_b32 v%d, 48, v0' % dst)
    a('v_add_u32 v%d, v%d, v0' % (dst, dst))
    a('v_lshl_add_u32 v%d, v%d, 2, s%d' % (dst, dst, sA))
    a('s_mov_b32 s%d, 0x3fff3fff' % sMK)
    a('s_mov_b32 s%d, 0x3fff' % (sMK + 1))
    a('s_cmp_eq_u32 s%d, 0' % sGT)
    a('s_cselect_b32 s%d, 0x3fff0000, s%d' % (sMK, sMK))


a('s_lshl_b32 s%d, s%d, 8' % (sA, sC))
a('s_add_u32 s%d, s%d, %d' % (sA, sA, L.FQ))
a('v_lshl_add_u32 v2, v0, 2, s%d' % sA)
a_flag_addr(3)
a('s_lshl_b32 s%d, s%d, 6' % (sA, sS))
a('s_add_u32 s%d, s%d, %d' % (sA, sA, L.FXC - 48 * 4))
a('v_lshl_add_u32 v4, v0, 2, s%d' % sA)
a('v_cmp_lt_u32 vcc, 47, v0')
a('v_cndmask_b32 v3, v3, v4, vcc')
a('v_mov_b32 v5, -1')
a('v_mov_b32 v6, -16')
a('v_cndmask_b32 v5, v5, v6, vcc')
a('s_or_b32 s%d, s%d, 0xffff0000' % (sMK + 1, sMK + 1))
a('s_mov_b32 s%d, 0' % sSPIN)
a.label('L_poll0')
a('buffer_load_dword v7, v2, %s, 0 offen sc1' % srd(S_WS))
a('s_mov_b64 exec, %s' % sp(sMK))
a('buffer_load_dword v8, v3, %s, 0 offen sc1' % srd(S_WS))
a('s_waitcnt vmcnt(0)')
a('v_and_b32 v9, v5, v8')
a('v_cmp_ne_u32 vcc, s%d, v9' % sT)
a('s_mov_b64 exec, -1')
a('s_mov_b64 %s, vcc' % sp(sTS))
a('v_cmp_ne_u32 vcc, s%d, v7' % sT)
a('s_or_b64 vcc, vcc, %s' % sp(sTS))
a('s_cbranch_vccz L_poll0_done')
a('s_add_u32 s%d, s%d, 1' % (sSPIN, sSPIN))
a('s_cmp_lt_u32 s%d, %d' % (sSPIN, SPIN_LIMIT))
a('s_cbranch_scc1 L_poll0')
a('s_add_u32 s%d, s%d, 1' % (sERR, sERR))
a.label('L_poll0_done')
a('s_mov_b64 exec, 3')
a('buffer_store_dword v%d, v22, %s, 0 offen sc1' % (V_T, srd(S_WS)))
a('s_mov_b64 exec, -1')
skew_store(2)
a('v_and_b32 v9, 15, v8')
a('v_cmp_ne_u32 vcc, s%d, v9' % sXCC)
a('s_and_b32 s%d, vcc_hi, 0xffff0000' % sA)
a('s_cmp_eq_u32 s%d, 0' % sA)
a('s_cselect_b32 s%d, 1, 0' % sFAST)
stamp()
AQ, AK, AV = 2, 18, 42
WBUF = [66, 90]
XR = 114
CSACC = 186
STR = 210
SM, SR = 234, 237
NR, LOOK = 6, 4
A_ONES = 240


def a_xload(u):
    slot = u % NR
    return ['buffer_load_dwordx4 %s, v1, %s, s%d offen offset:%d sc1' %
            (vr(XR + (slot * 3 + t) * 4), srd(S_WS), sO + 4 * t + (u >> 2), 1024 * (u & 3)) for t in range(3)]


def a_offsets():
    pair_base(sA, L.XA)
    a('s_mul_i32 s%d, s%d, 14336' % (sB, sGT))
    a('s_add_u32 s%d, s%d, s%d' % (sO + 4, sA, sB))
    a('s_add_u32 s%d, s%d, 14336' % (sO + 8, sO + 4))
    a('s_sub_u32 s%d, s%d, 14336' % (sO + 0, sO + 4))
    a('s_cmp_eq_u32 s%d, 0' % sGT)
    a('s_cselect_b32 s%d, s%d, s%d' % (sO + 0, sO + 4, sO + 0))
    for t in range(3):
        for q in range(1, 4):
            a('s_add_u32 s%d, s%d, %d' % (sO + 4 * t + q, sO + 4 * t, 4096 * q))


def a_setup():
    if FASTMODE == 'flags':
        a('s_mov_b32 s%d, 0' % sFD)
        a('s_mov_b32 s%d, 0' % sFH)
    elif FASTMODE == 'p0':
        a('s_xor_b32 s%d, s%d, 1' % (sFD, sPAIR))
        a('s_and_b32 s%d, s%d, s%d' % (sFD, sFD, sFAST))
        a('s_mov_b32 s%d, s%d' % (sFH, sFD))
    elif FASTMODE == 'small':
        a('s_mov_b32 s%d, s%d' % (sFD, sFAST))
        a('s_mov_b32 s%d, 0' % sFH)
    elif FASTMODE == 'smallp0':
        a('s_mov_b32 s%d, s%d' % (sFD, sFAST))
        a('s_xor_b32 s%d, s%d, 1' % (sFH, sPAIR))
        a('s_and_b32 s%d, s%d, s%d' % (sFH, sFH, sFAST))
    else:
        a('s_mov_b32 s%d, s%d' % (sFD, sFAST))
        a('s_mov_b32 s%d, s%d' % (sFH, sFAST))
    pair_base(sA, L.SA)
    a('s_mul_i32 s%d, s%d, 1792' % (sB, sGT))
    a('s_add_u32 s%d, s%d, s%d' % (sO + 13, sA, sB))
    a('s_add_u32 s%d, s%d, 1792' % (sO + 14, sO + 13))
    a('s_sub_u32 s%d, s%d, 1792' % (sO + 12, sO + 13))
    a('s_cmp_eq_u32 s%d, 0' % sGT)
    a('s_cselect_b32 s%d, s%d, s%d' % (sO + 12, sO + 13, sO + 12))
    a('v_and_b32 v%d, 15, v0' % V_TOK)
    a('v_lshrrev_b32 v%d, 4, v0' % V_G)
    a('v_lshlrev_b32 v240, 3, v%d' % V_TOK)
    a('v_lshl_add_u32 v240, v%d, 7, v240' % V_G)
    a('v_mov_b32 v242, 0x%x' % INV)
    a('v_cmp_lt_u32 vcc, 1, v%d' % V_G)
    a('v_cndmask_b32 v241, 0, v242, vcc')
    a('v_or_b32 v241, v241, v240')
    a('v_add_u32 v243, %d, v1' % (56 * 1024))
    a('v_lshlrev_b32 v244, 4, v%d' % V_G)
    a('v_add_u32 v244, %d, v244' % L.L_CSA)
    a('v_lshlrev_b32 v245, 2, v%d' % V_TOK)
    a('v_add_u32 v245, %d, v245' % L.L_CSA)
    a('s_lshl_b32 s%d, s%d, 7' % (sA, sJ))
    a('s_add_u32 s%d, s%d, %d' % (sA, sA, L.FP))
    a('v_lshl_add_u32 v248, v0, 2, s%d' % sA)
    a('s_lshr_b32 s%d, s%d, 1' % (sB, sW))
    a('s_lshl_b32 s%d, s%d, 2' % (sCc, sG))
    a('s_add_u32 s%d, s%d, s%d' % (sB, sB, sCc))
    a('s_lshl_b32 s%d, s%d, 5' % (sB, sB))
    a('s_and_b32 s%d, s%d, 1' % (sA, sW))
    a('s_add_u32 s%d, s%d, s%d' % (sB, sB, sA))
    a('s_min_u32 s%d, s%d, 6' % (sA, sJ))
    a('s_lshl_b32 s%d, s%d, 1' % (sA, sA))
    a('s_add_u32 s%d, s%d, s%d' % (sB, sB, sA))
    a('s_lshl_b32 s%d, s%d, 2' % (sB, sB))
    a('s_add_u32 s%d, s%d, %d' % (sB, sB, L.FX[0] - 32 * 256))
    a('v_lshl_add_u32 v249, v0, 8, s%d' % sB)
    a('v_cmp_lt_u32 vcc, 31, v0')
    a('v_cndmask_b32 v248, v248, v249, vcc')
    a('s_lshr_b32 s%d, s%d, 3' % (sA, sC))
    a('s_mul_i32 s%d, s%d, 7' % (sA, sA))
    a('s_min_u32 s%d, s%d, 6' % (sB, sJ))
    a('s_add_u32 s%d, s%d, s%d' % (sA, sA, sB))
    a('s_mul_i32 s%d, s%d, 112' % (sA, sA))
    a('s_add_u32 s%d, s%d, %d' % (sA, sA, L.FW1 - 34 * 4))
    a('v_lshl_add_u32 v249, v0, 2, s%d' % sA)
    a('v_cmp_lt_u32 vcc, 33, v0')
    a('v_cndmask_b32 v248, v248, v249, vcc')
    a('s_cmp_eq_u32 s%d, 0' % sPAIR)
    a('s_mov_b32 s%d, %d' % (sA, L.FSA - 128))
    a('s_cselect_b32 s%d, %d, s%d' % (sA, L.FX[0] - 128, sA))
    a('s_lshl_b32 s%d, s%d, 7' % (sB, sGT))
    a('s_add_u32 s%d, s%d, s%d' % (sA, sA, sB))
    a('v_and_b32 v247, 48, v0')
    a('v_add_u32 v247, v247, v0')
    a('v_lshl_add_u32 v247, v247, 2, s%d' % sA)
    a('s_mov_b32 s%d, 0x3fff3fff' % sMK2)
    a('s_mov_b32 s%d, 0x3fff' % (sMK2 + 1))
    a('s_cmp_eq_u32 s%d, 0' % sGT)
    a('s_cselect_b32 s%d, 0x3fff0000, s%d' % (sMK2, sMK2))


stat_loads = ['buffer_load_dwordx2 %s, v%d, %s, s%d offen offset:%d sc1' %
              (vr(STR + (t * 4 + i) * 2, 2), 241 if i == 3 else 240, srd(S_WS), sO + 12 + t, 512 * i)
              for t in range(3) for i in range(4)]


def a_wread(u):
    b = WBUF[u & 1]
    o = []
    for p in range(6):
        if p < 4:
            o.append('ds_read_b128 %s, v1 offset:%d' % (vr(b + 4 * p), L.L_WA + (p * 14 + u) * 1024))
        else:
            o.append('ds_read_b128 %s, v243 offset:%d' % (vr(b + 4 * p), L.L_WA + ((p - 4) * 14 + u) * 1024))
    return o


stat_fill = []
for t in range(3):
    r = STR + 8 * t
    for c_ in range(2):
        stat_fill += ['v_add_f32 v%d, v%d, v%d' % (r + c_, r + c_, r + 2 + c_),
                      'v_add_f32 v%d, v%d, v%d' % (r + 4 + c_, r + 4 + c_, r + 6 + c_),
                      'v_add_f32 v%d, v%d, v%d' % (r + c_, r + c_, r + 4 + c_)]
    stat_fill += xg_reduce(r, r + 2) + xg_reduce(r + 1, r + 3)
    stat_fill += stats_finish(r, r + 1, r + 2, False)
    stat_fill += ['v_mov_b32 v%d, v%d' % (SM + t, r), 'v_mov_b32 v%d, v%d' % (SR + t, r + 1)]

sWA = [20, 21, 22]
sWAG = 23


def wa_dma(pr, i):
    def f():
        a('s_add_u32 m0, s%d, %d' % (sWA[i], L.L_WA + 2048 * pr))
        a('s_add_u32 s%d, s%d, s%d' % (sD, sWA[i], sWAG))
        if pr:
            a('s_add_u32 s%d, s%d, %d' % (sD, sD, 2048 * pr))
        a('buffer_load_dwordx4 v1, %s, s%d offen sc1 lds' % (srd(S_WS), sD))
    return f


amark = {}


def emit_a_loop(first, xmark, wam):
    ep_mark = es_mark = st_mark = None
    for t in a_wread(0):
        a(t)
    for u in range(14):
        need = xmark[u]
        if u == 12:
            need = max(need, st_mark)
        a.wait_vm(need)
        if u == 6:
            early_check(246, 247, es_mark)
        if u == 11:
            a('s_mov_b32 s%d, -1' % sMK2)
            a('s_mov_b32 s%d, 0x3fffffff' % (sMK2 + 1))
        a('s_waitcnt lgkmcnt(0)')
        wb = WBUF[u & 1]
        xs = XR + (u % NR) * 12
        mf = []
        cz = (lambda r: '0') if u == 0 else (lambda r: vr(r))
        for t in range(2):
            for hf in range(2):
                r = AQ + (t * 2 + hf) * 4
                mf.append('%s %s, %s, %s, %s' % (MFMA, vr(r), vr(wb + 4 * hf), vr(xs + 4 * (t + 1)), cz(r)))
        for t in range(3):
            for hf in range(2):
                r = AK + (t * 2 + hf) * 4
                mf.append('%s %s, %s, %s, %s' % (MFMA, vr(r), vr(wb + 8 + 4 * hf), vr(xs + 4 * t), cz(r)))
        for t in range(3):
            for hf in range(2):
                r = AV + (t * 2 + hf) * 4
                mf.append('%s %s, %s, %s, %s' % (MFMA, vr(r), vr(xs + 4 * t), vr(wb + 16 + 4 * hf), cz(r)))
        if first:
            mf.append('%s %s, %s, %s, %s' % (MFMA, vr(CSACC + 8), vr(CSACC), ar(A_ONES), cz(CSACC + 8)))
            mf.append('%s %s, %s, %s, %s' % (MFMA, vr(CSACC + 12), ar(A_ONES), vr(CSACC + 4), cz(CSACC + 12)))
        mem = {}

        def put(k, x):
            mem.setdefault(k, []).append(x)
        off = 0
        if first:
            a('ds_read_b128 %s, v252 offset:%d' % (vr(CSACC), 1024 * u))
            a('ds_read_b128 %s, v242 offset:%d' % (vr(CSACC + 4), 1024 * u))
            put(15, 's_waitcnt lgkmcnt(%d)' % (6 if u < 13 else 0))
        if first and u % 2 == 1 and u < 13:
            put(2, ('bar', (u + 1) // 2))
            off = 3
        if u < 13:
            for k, x in enumerate(a_wread(u + 1)):
                put(off + k, x)
        elif not first:
            for p in range(4):
                put(p, 'ds_read_b128 %s, v244 offset:%d' % (vr(WBUF[0] + 4 * p), 64 * p))
            for d in range(2):
                put(4 + d, 'ds_read_b32 v%d, v245 offset:%d' % (WBUF[0] + 16 + d, 64 * (4 + d)))
        if first and u < 2:
            for j_, uu in enumerate((2 * u + 2, 2 * u + 3)):
                for k, x in zip((6, 8, 10), a_xload(uu)):
                    put(k + 6 * j_, x)
                put(10 + 6 * j_, ('xm', uu))
            if u == 0:
                for i, k in enumerate((7, 9, 11)):
                    put(k, ('wa', 2, i))
        elif u + LOOK < 14:
            for k, x in zip((6, 9, 12), a_xload(u + LOOK)):
                put(k + off, x)
            put(12 + off, ('xm', u + LOOK))
        if first and u % 2 == 0 and u // 2 + 3 <= 6:
            for i, k in enumerate((13, 15, 17) if u == 0 else (11, 14, 17)):
                put(k, ('wa', u // 2 + 3, i))
        if 6 <= u < 10:
            for k, x in zip((8, 11, 14), stat_loads[3 * (u - 6):3 * (u - 6) + 3]):
                put(k, x)
            if u == 9:
                put(14, ('st',))
        if u == 11:
            put(8, ('early',))
        if u == 4:
            put(8, ('estat',))
        fill = stat_fill[(u - 12) * 30:(u - 11) * 30] if u >= 12 else []
        fi = 0
        for k, m in enumerate(mf):
            a(m)
            for it in mem.get(k, []):
                if isinstance(it, str):
                    a(it)
                elif it[0] == 'early':
                    ep_mark = early_issue(249, 248)
                elif it[0] == 'estat':
                    es_mark = early_issue(246, 247)
                elif it[0] == 'xm':
                    xmark[it[1]] = a.vm_mark()
                elif it[0] == 'st':
                    st_mark = a.vm_mark()
                elif it[0] == 'bar':
                    a.wait_vm(wam[it[1]])
                    a('s_barrier')
                elif it[0] == 'wa':
                    wa_dma(it[1], it[2])()
                    wam[it[1]] = a.vm_mark()
            for _ in range(2):
                if fi < len(fill) and k >= 1:
                    a(fill[fi])
                    fi += 1
        assert fi == len(fill), (u, fi, len(fill))
    amark['ep'] = ep_mark


for p in range(4):
    a('v_mov_b32 v4, 0x3f803f80')
    a('v_accvgpr_write_b32 a%d, v4' % (A_ONES + p))
a('s_mul_i32 s%d, s%d, 14336' % (sWA[0], sW))
a('s_add_u32 s%d, s%d, 4' % (sA, sW))
a('s_mul_i32 s%d, s%d, 14336' % (sA, sA))
a('s_sub_u32 s%d, s%d, 2' % (sB, sW))
a('s_mul_i32 s%d, s%d, 14336' % (sB, sB))
a('s_add_u32 s%d, s%d, 1024' % (sB, sB))
a('s_cmp_lt_u32 s%d, 2' % sW)
a('s_cselect_b32 s%d, s%d, s%d' % (sWA[1], sA, sB))
a('s_add_u32 s%d, s%d, 2' % (sA, sW))
a('s_mul_i32 s%d, s%d, 14336' % (sA, sA))
a('s_add_u32 s%d, s%d, 1024' % (sWA[2], sA))
a('s_mul_i32 s%d, s%d, %d' % (sWAG, sC, 84 * 1024))
a('s_add_u32 s%d, s%d, %d' % (sWAG, sWAG, L.WA))
a_offsets()
xm0, wam0 = {}, {}


def wa_pair(pr):
    for i in range(3):
        wa_dma(pr, i)()
    wam0[pr] = a.vm_mark()


wa_pair(0)
for u in range(2):
    for t in a_xload(u):
        a(t)
    xm0[u] = a.vm_mark()
wa_pair(1)
a_setup()
a('s_mul_i32 s%d, s%d, 14336' % (sA, sW))
a('v_add_u32 v252, s%d, v1' % sA)
a('s_and_b32 s%d, s%d, 1' % (sA, sW))
a('s_mul_i32 s%d, s%d, 14336' % (sA, sA))
a('v_add_u32 v242, s%d, v243' % sA)
a.wait_vm(wam0[0])
a('s_barrier')
a('s_lshl_b32 s%d, s%d, 5' % (sA, sJ))
a('s_add_u32 s%d, s%d, s%d' % (sA, sA, sG))
a('s_lshl_b32 s%d, s%d, 2' % (sA, sA))
a('s_add_u32 s%d, s%d, %d' % (sA, sA, L.FP))
a('s_cmp_eq_u32 s%d, 0' % sW)
a('s_cselect_b32 s%d, s%d, 0x%x' % (sA, sA, INV))
a('v_mov_b32 v2, s%d' % sA)
a('s_mov_b64 exec, 1')
a('buffer_store_dword v%d, v2, %s, 0 offen sc1' % (V_T, srd(S_WS)))
a.vm_issued -= 1
a('s_mov_b64 exec, -1')
stamp()
emit_a_loop(True, xm0, wam0)
n_join = a.vm_issued - amark['ep']
CSQ = WBUF[0]
a('v_cmp_eq_u32 vcc, 0, v%d' % V_TOK)
a('s_lshl_b32 s%d, s%d, 6' % (sA, sW))
a('v_add_u32 v252, s%d, v244' % sA)
a('s_and_b32 s%d, s%d, 1' % (sA, sW))
a('s_lshl_b32 s%d, s%d, 6' % (sA, sA))
a('v_add_u32 v242, s%d, v245' % sA)
a('s_mov_b64 exec, vcc')
a('ds_write_b128 v252, %s' % vr(CSACC + 8))
a('s_mov_b64 exec, 0xffff')
a('ds_write_b32 v242, v%d offset:256' % (CSACC + 12))
a('s_mov_b64 exec, -1')
a('s_waitcnt lgkmcnt(0)')
a('s_barrier')
for p in range(4):
    a('ds_read_b128 %s, v244 offset:%d' % (vr(WBUF[0] + 4 * p), 64 * p))
for d in range(2):
    a('ds_read_b32 v%d, v245 offset:%d' % (WBUF[0] + 16 + d, 64 * (4 + d)))
a('s_branch L_a_epi')

a.label('L_pair')
a_flag_addr(2)
poll(2)
stamp()
a('s_mov_b64 exec, 3')
store('buffer_store_dword v%d, v242, %s, 0 offen' % (V_T, srd(S_WS)), sPFC)
a.vm_issued -= 1
a('s_mov_b64 exec, -1')
a_offsets()
xmark = {}
for u in range(LOOK):
    for t in a_xload(u):
        a(t)
    xmark[u] = a.vm_mark()
a_setup()
emit_a_loop(False, xmark, None)
assert a.vm_issued - amark['ep'] == n_join
ep_mark = amark['ep']
a.label('L_a_epi')
stamp()
for x in stat_fill[60:]:
    a(x)
early_check(249, 248, ep_mark)
BW = 2
a('s_lshl_b32 s%d, s%d, 6' % (sA, sJ))
a('s_lshl_b32 s%d, s%d, 2' % (sB, sW))
a('s_add_u32 s%d, s%d, s%d' % (sA, sA, sB))
a('s_lshl_b32 s%d, s%d, 10' % (sA, sA))
a('s_add_u32 s20, s%d, %d' % (sA, L.WB))
for t in range(1, 4):
    a('s_add_u32 s%d, s20, %d' % (20 + t, 16 * 1024 * t))
wb_loads = ['buffer_load_dwordx4 %s, v1, %s, s%d offen offset:%d sc1' % (vr(BW + (i * 4 + t) * 4), srd(S_WS), 20 + t, 1024 * i)
            for i in range(4) for t in range(4)]
A_RES, A_B2 = 224, 232


def red_addrs():
    a('s_lshl_b32 s%d, s%d, 13' % (sA, sW))
    a('s_add_u32 s%d, s%d, %d' % (sA, sA, L.L_R2))
    a('v_add_u32 v248, s%d, v1' % sA)
    a('s_and_b32 s%d, s%d, 1' % (sA, sW))
    a('s_lshl_b32 s%d, s%d, 11' % (sA, sA))
    a('s_lshr_b32 s%d, s%d, 1' % (sB, sW))
    a('s_lshl_b32 s%d, s%d, 12' % (sB, sB))
    a('s_add_u32 s%d, s%d, s%d' % (sA, sA, sB))
    a('s_add_u32 s%d, s%d, %d' % (sA, sA, L.L_R2))
    a('v_add_u32 v249, s%d, v1' % sA)


def publish_setup(xbase, sbase, fbase, per_pair, fsh):
    owner_index()
    a('s_mul_i32 s%d, s%d, 14' % (sCc, sB))
    a('s_add_u32 s%d, s%d, s%d' % (sCc, sCc, sA))
    a('s_lshl_b32 s%d, s%d, 10' % (sPX, sCc))
    a('s_lshl_b32 s%d, s%d, 7' % (sPS, sCc))
    a('s_lshl_b32 s%d, s%d, %d' % (sPF, sB, fsh))
    a('s_add_u32 s%d, s%d, s%d' % (sPF, sPF, sA))
    a('s_lshl_b32 s%d, s%d, 2' % (sPF, sPF))
    for dst, arr in ((sPX, xbase), (sPS, sbase), (sPF, fbase)):
        if per_pair:
            pair_base(sD, arr)
            a('s_add_u32 s%d, s%d, s%d' % (dst, dst, sD))
        else:
            a('s_add_u32 s%d, s%d, %d' % (dst, dst, arr))
    a('s_add_u32 s%d, s%d, %d' % (sPX2, sPX, 2 * 14336))


def owner_index():
    a('s_lshr_b32 s%d, s%d, 1' % (sB, sW))
    a('s_lshl_b32 s%d, s%d, 2' % (sCc, sG))
    a('s_add_u32 s%d, s%d, s%d' % (sB, sB, sCc))
    a('s_and_b32 s%d, s%d, 1' % (sA, sW))
    a('s_lshl_b32 s%d, s%d, 1' % (sCc, sJ))
    a('s_add_u32 s%d, s%d, s%d' % (sA, sA, sCc))


a('s_cmp_eq_u32 s%d, 0' % sPAIR)
a('s_cbranch_scc0 L_a_nores')
owner_index()
a('s_mul_i32 s%d, s%d, 14' % (sB, sB))
a('s_add_u32 s%d, s%d, s%d' % (sB, sB, sA))
a('s_lshl_b32 s%d, s%d, 10' % (sB, sB))
a('s_add_u32 s%d, s%d, %d' % (sB, sB, L.XA[0]))
a('buffer_load_dwordx4 %s, v1, %s, s%d offen sc1' % (ar(A_RES), srd(S_WS), sB))
a('s_add_u32 s%d, s%d, %d' % (sB, sB, 2 * 14336))
a('buffer_load_dwordx4 %s, v1, %s, s%d offen sc1' % (ar(A_RES + 4), srd(S_WS), sB))
build_srd(S_TMP, P_B2, 896)
a('s_lshl_b32 s%d, s%d, 6' % (sB, sA))
a('v_lshlrev_b32 v240, 3, v%d' % V_G)
a('buffer_load_dwordx2 v[228:229], v240, %s, s%d offen' % (srd(S_TMP), sB))
a('buffer_load_dwordx2 v[230:231], v240, %s, s%d offen offset:32' % (srd(S_TMP), sB))
a.label('L_a_nores')
CSQ = WBUF[0]
a('s_mul_i32 s%d, s%d, 384' % (sA, sW))
a('s_add_u32 s%d, s%d, %d' % (sA, sA, L.L_STA))
a('v_lshl_add_u32 v246, v%d, 2, s%d' % (V_TOK, sA))
a('v_lshl_add_u32 v247, v%d, 4, s%d' % (V_G, sA))
a('s_mov_b64 exec, 0xffff')
for t in range(3):
    a('ds_write_b32 v246, v%d offset:%d' % (SM + t, 128 * t))
    a('ds_write_b32 v246, v%d offset:%d' % (SR + t, 128 * t + 64))
a('s_mov_b64 exec, -1')
MROW, RROW = 114, 126
a('s_waitcnt lgkmcnt(0)')
for t in range(3):
    a('ds_read_b128 %s, v247 offset:%d' % (vr(MROW + 4 * t), 128 * t))
    a('ds_read_b128 %s, v247 offset:%d' % (vr(RROW + 4 * t), 128 * t + 64))
QF, KF, VF = 140, 148, 160


def pk(op, dst, srcs, neg=None):
    ops, lo, hi = [], [], []
    for x in srcs:
        if isinstance(x, tuple):
            ops.append(vr(x[1] & ~1, 2))
            lo.append(x[1] & 1)
            hi.append(x[1] & 1)
        else:
            ops.append(vr(x, 2))
            lo.append(0)
            hi.append(1)
    t = '%s %s, %s op_sel:[%s] op_sel_hi:[%s]' % (op, vr(dst, 2), ', '.join(ops), ','.join(map(str, lo)), ','.join(map(str, hi)))
    if neg is not None:
        m = ','.join('1' if k == neg else '0' for k in range(len(srcs)))
        t += ' neg_lo:[%s] neg_hi:[%s]' % (m, m)
    return t


for t in range(2):
    for hf in range(2):
        r = AQ + (t * 2 + hf) * 4
        for i in (0, 2):
            a(pk('v_pk_fma_f32', r + i, [('b', SM + t + 1), CSQ + 4 * hf + i, r + i], 0))
        for p in range(2):
            a('v_cvt_pk_bf16_f32 v%d, v%d, v%d' % (QF + 4 * t + 2 * hf + p, r + 2 * p, r + 2 * p + 1))
for t in range(3):
    for hf in range(2):
        r = AK + (t * 2 + hf) * 4
        for i in (0, 2):
            a(pk('v_pk_fma_f32', r + i, [('b', SM + t), CSQ + 8 + 4 * hf + i, r + i], 0))
        for p in range(2):
            a('v_cvt_pk_bf16_f32 v%d, v%d, v%d' % (KF + 4 * t + 2 * hf + p, r + 2 * p, r + 2 * p + 1))
SS = 172
for t in range(2):
    a('%s %s, %s, %s, 0' % (MFMA, vr(SS + 8 * t), vr(KF + 4 * t), vr(QF + 4 * t)))
    a('%s %s, %s, %s, 0' % (MFMA, vr(SS + 8 * t + 4), vr(KF + 4 * t + 4), vr(QF + 4 * t)))
pair_base(sA, L.O)
a('s_lshl_b32 s%d, s%d, 4' % (sB, sGT))
a('s_add_u32 s%d, s%d, s%d' % (sB, sB, sC))
a('s_lshl_b32 s%d, s%d, 10' % (sB, sB))
a('s_add_u32 s32, s%d, s%d' % (sA, sB))
a('s_add_u32 s33, s32, 16384')
a('s_waitcnt lgkmcnt(0)')
for t in range(3):
    for d in range(2):
        r = AV + (t * 2 + d) * 4
        for i in (0, 2):
            a(pk('v_pk_fma_f32', r + i, [MROW + 4 * t + i, ('b', CSQ + 16 + d), r + i], 0))
        for p in range(2):
            a('v_cvt_pk_bf16_f32 v%d, v%d, v%d' % (VF + 6 * d + 2 * t + p, r + 2 * p, r + 2 * p + 1))
SCALE = (28.0 ** -0.5) * 1.4426950408889634
MX, CC, LS, TMPR = 190, 192, 194, 196
PF = 200
SUMT = [(224, 226), (232, 188)]
a('v_mov_b32 v198, 0xff800000')
seq = [[], []]
for t in range(2):
    s_ = SS + 8 * t
    q = seq[t]
    rr = lambda e: RROW + 4 * (t + (e >> 2)) + (e & 3)
    for e in range(0, 8, 2):
        q.append(pk('v_pk_mul_f32', s_ + e, [s_ + e, rr(e)]))
    for e in range(8):
        mk = (sM0 if t == 0 else sM1) + 2 * e if e < 4 else sM2 + 2 * (e - 4)
        q.append('v_cndmask_b32 v%d, v198, v%d, %s' % (s_ + e, s_ + e, sp(mk)))
    q.append('v_max3_f32 v%d, v%d, v%d, v%d' % (MX + t, s_, s_ + 1, s_ + 2))
    q.append('v_max3_f32 v%d, v%d, v%d, v%d' % (MX + t, MX + t, s_ + 3, s_ + 4))
    q.append('v_max3_f32 v%d, v%d, v%d, v%d' % (MX + t, MX + t, s_ + 5, s_ + 6))
    q.append('v_max_f32 v%d, v%d, v%d' % (MX + t, MX + t, s_ + 7))
    q += xg_reduce(MX + t, TMPR + t, 'v_max_f32')
    q.append('v_mul_f32 v%d, %s, v%d' % (CC + t, f2h(SCALE), SR + t + 1))
    q.append('v_mul_f32 v%d, v%d, v%d' % (MX + t, MX + t, CC + t))
    for e in range(0, 8, 2):
        q.append(pk('v_pk_fma_f32', s_ + e, [s_ + e, ('b', CC + t), ('b', MX + t)], 2))
    for e in range(8):
        q.append('v_exp_f32 v%d, v%d' % (s_ + e, s_ + e))
    u_, u2 = SUMT[t]
    q.append(pk('v_pk_add_f32', u_, [s_, s_ + 2]))
    q.append(pk('v_pk_add_f32', u2, [s_ + 4, s_ + 6]))
    q.append(pk('v_pk_add_f32', u_, [u_, u2]))
    q.append('v_add_f32 v%d, v%d, v%d' % (LS + t, u_, u_ + 1))
    q += xg_reduce(LS + t, TMPR + t)
    q.append('v_rcp_f32 v%d, v%d' % (LS + t, LS + t))
    for e in range(0, 8, 2):
        q.append(pk('v_pk_mul_f32', s_ + e, [s_ + e, rr(e)]))
    for p in range(4):
        q.append('v_cvt_pk_bf16_f32 v%d, v%d, v%d' % (PF + 4 * t + p, s_ + 2 * p, s_ + 2 * p + 1))
merged = [z for xy in zip(*seq) for z in xy]
gap = len(merged) // (len(wb_loads) + 1)
for k, x in enumerate(merged):
    a(x)
    if k % gap == gap - 1 and wb_loads:
        a(wb_loads.pop(0))
assert not wb_loads
OO = 208
for t in range(2):
    for d in range(2):
        a('%s %s, %s, %s, 0' % (MFMA, vr(OO + 8 * t + 4 * d), vr(VF + 6 * d + 2 * t), vr(PF + 4 * t)))
for t in range(2):
    for e in range(0, 8, 2):
        a(pk('v_pk_mul_f32', OO + 8 * t + e, [OO + 8 * t + e, ('b', LS + t)]))
    for p in range(4):
        a('v_cvt_pk_bf16_f32 v%d, v%d, v%d' % (PF + 4 * t + p, OO + 8 * t + 2 * p, OO + 8 * t + 2 * p + 1))
    store('buffer_store_dwordx4 %s, v1, %s, s%d offen' % (vr(PF + 4 * t), srd(S_WS), 32 + t), sFD)
o_mark = a.vm_mark()
pair_base(sA, L.FA)
a('s_lshl_b32 s%d, s%d, 4' % (sB, sGT))
a('s_add_u32 s%d, s%d, s%d' % (sB, sB, sC))
a('s_lshl_b32 s%d, s%d, 2' % (sB, sB))
a('s_add_u32 s%d, s%d, s%d' % (sA, sA, sB))
a('v_lshlrev_b32 v241, 6, v0')
a('v_add_u32 v241, s%d, v241' % sA)
pair_base(sA, L.FA)
a('s_lshl_b32 s%d, s%d, 8' % (sB, sG))
a('s_add_u32 s%d, s%d, s%d' % (sA, sA, sB))
a('v_lshl_add_u32 v240, v0, 2, s%d' % sA)
a('s_lshl_b32 s%d, s%d, 2' % (sB, sW))
a('s_lshl_b32 s%d, 0x000f000f, s%d' % (sMK, sB))
a('s_mov_b32 s%d, s%d' % (sMK + 1, sMK))
red_addrs()
publish_setup(L.XB, L.SB, L.FB, True, 4)
a('s_mov_b32 s%d, s%d' % (sPC, sFD))
a('s_mov_b32 s%d, s%d' % (sPFC, sFAST))
pair_base(sA, L.O)
a('s_lshl_b32 s%d, s%d, 6' % (sB, sG))
a('s_lshl_b32 s%d, s%d, 2' % (sCc, sW))
a('s_add_u32 s%d, s%d, s%d' % (sB, sB, sCc))
a('s_lshl_b32 s%d, s%d, 10' % (sB, sB))
a('s_add_u32 s20, s%d, s%d' % (sA, sB))
for t in range(1, 4):
    a('s_add_u32 s%d, s20, %d' % (20 + t, 16384 * t))
a.wait_vm(o_mark)
a('s_mov_b64 exec, 3')
store('buffer_store_dword v%d, v241, %s, 0 offen' % (V_T, srd(S_WS)), sFAST)
a('s_mov_b64 exec, -1')
stamp()
a('s_cmp_eq_u32 s%d, 7' % sJ)
a('s_cbranch_scc1 L_next_pair')


def wd_bases():
    a('s_lshl_b32 s%d, s%d, 2' % (sA, sJ))
    a('s_mul_i32 s%d, s%d, %d' % (sA, sA, 56 * 1024))
    a('s_mul_i32 s%d, s%d, %d' % (sB, sW, 14 * 1024))
    a('s_add_u32 s%d, s%d, s%d' % (sA, sA, sB))
    a('s_add_u32 s%d, s%d, %d' % (sO, sA, L.WD))
    quarter_offsets(4, 56 * 1024)


def wd_load(fi):
    kk, t = fi >> 2, fi & 3
    return ('buffer_load_dwordx4 %s, v1, %s, s%d offen offset:%d sc1' %
            (ar(4 * fi), srd(S_WS), sO + 4 * t + (kk >> 2), 1024 * (kk & 3)))


WD_CH = [(0, 12), (12, 56)]
BO, BACC, BRD, BTMP = 66, 130, 194, 226
a('s_cmp_eq_u32 s%d, 0' % sPAIR)
a('s_cbranch_scc0 L_b_start')
for k in range(4):
    a('v_lshlrev_b32 v236, 16, v%d' % (228 + k))
    a('v_and_b32 v237, 0xffff0000, v%d' % (228 + k))
    a('v_accvgpr_write_b32 a%d, v236' % (A_B2 + 2 * k))
    a('v_accvgpr_write_b32 a%d, v237' % (A_B2 + 2 * k + 1))
wd_bases()
for fi in range(*WD_CH[0]):
    a(wd_load(fi))
a.label('L_b_start')
CWW = 66
sCI = 41
a('s_lshr_b32 s%d, s%d, 3' % (sA, sC))
a('s_mul_i32 s%d, s%d, 7' % (sA, sA))
a('s_add_u32 s%d, s%d, s%d' % (sCI, sA, sJ))
a('s_lshl_b32 s%d, s%d, 3' % (sA, sCI))
a('s_lshl_b32 s%d, s%d, 1' % (sB, sW))
a('s_add_u32 s%d, s%d, s%d' % (sA, sA, sB))
a('s_mul_i32 s%d, s%d, %d' % (sB, sA, 14 * 1024))
a('s_add_u32 s%d, s%d, %d' % (sO, sB, L.WC))
quarter_offsets(2, 14 * 1024)


def c_wload(idx):
    u, k = idx >> 1, idx & 1
    return ('buffer_load_dwordx4 %s, v1, %s, s%d offen offset:%d sc1' %
            (vr(CWW + 4 * idx), srd(S_WS), sO + 4 * k + (u >> 2), 1024 * (u & 3)))


def red_writes(acc, tile):
    return ['ds_write_b128 v248, %s offset:%d' % (vr(acc + 4 * t), (tile >> 1) * 32768 + (tile & 1) * 4096 + t * 1024)
            for t in range(4)]


def red_reads(st, rd):
    return ['ds_read_b128 %s, v249 offset:%d' % (vr(rd + (b * 2 + k) * 4), st * 32768 + b * 8192 + k * 1024)
            for b in range(4) for k in range(2)]


def add8(dst, x, y, packed):
    if packed:
        return ['v_pk_add_f32 %s, %s, %s' % (vr(dst + e, 2), vr(x + e, 2), vr(y + e, 2)) for e in range(0, 8, 2)]
    return ['v_add_f32 v%d, v%d, v%d' % (dst + e, x + e, y + e) for e in range(8)]


def finish_pre(st, is_d, tmp):
    res = A_RES + 4 * st
    o = ['v_accvgpr_read_b32 v%d, a%d' % (tmp + 8 + p, res + p) for p in range(4)]
    for p in range(4):
        o += ['v_lshlrev_b32 v%d, 16, v%d' % (tmp + 2 * p, tmp + 8 + p),
              'v_and_b32 v%d, 0xffff0000, v%d' % (tmp + 2 * p + 1, tmp + 8 + p)]
    if is_d:
        o += ['v_accvgpr_read_b32 v%d, a%d' % (tmp + 8 + e, A_B2 + e) for e in range(8)]
        o += ['v_add_f32 v%d, v%d, v%d' % (tmp + e, tmp + e, tmp + 8 + e) for e in range(8)]
    return o


def finish_sum(st, rd, tmp, pk, packed):
    o = add8(rd, rd, rd + 8, packed) + add8(rd + 16, rd + 16, rd + 24, packed) + add8(rd, rd, rd + 16, packed)
    o += add8(tmp, tmp, rd, packed)
    o += ['v_cvt_pk_bf16_f32 v%d, v%d, v%d' % (pk + p, tmp + 2 * p, tmp + 2 * p + 1) for p in range(4)]
    o += ['v_accvgpr_write_b32 a%d, v%d' % (A_RES + 4 * st + p, pk + p) for p in range(4)]
    return o


def owner_stats(tmp, s1, t):
    a('v_pk_add_f32 %s, %s, %s' % (vr(t, 2), vr(tmp, 2), vr(tmp + 2, 2)))
    a('v_pk_add_f32 %s, %s, %s' % (vr(t + 2, 2), vr(tmp + 4, 2), vr(tmp + 6, 2)))
    a('v_pk_add_f32 %s, %s, %s' % (vr(t, 2), vr(t, 2), vr(t + 2, 2)))
    a('v_add_f32 v%d, v%d, v%d' % (s1, t, t + 1))
    a('v_pk_mul_f32 %s, %s, %s' % (vr(t, 2), vr(tmp, 2), vr(tmp, 2)))
    for e in (2, 4, 6):
        a('v_pk_fma_f32 %s, %s, %s, %s' % (vr(t, 2), vr(tmp + e, 2), vr(tmp + e, 2), vr(t, 2)))
    a('v_add_f32 v%d, v%d, v%d' % (s1 + 1, t, t + 1))
    for x, y in zip(xg_reduce(s1, t), xg_reduce(s1 + 1, t + 1)):
        a(x)
        a(y)


def publish_data(st, pk):
    store('buffer_store_dwordx4 %s, v1, %s, s%d offen offset:0' % (vr(pk), srd(S_WS), sPX if st == 0 else sPX2), sPC)


def publish_stats(tmps, t, s1):
    a('v_and_b32 v%d, 15, v0' % V_TOK)
    a('v_lshlrev_b32 v%d, 3, v%d' % (t + 4, V_TOK))
    for st in range(2):
        owner_stats(tmps[st], s1 + 2 * st, t)
    a('s_mov_b64 exec, 0xffff')
    store('buffer_store_dwordx2 %s, v%d, %s, s%d offen' % (vr(s1, 2), t + 4, srd(S_WS), sPS), sPC)
    a('s_add_u32 s%d, s%d, %d' % (sPS, sPS, 2 * 1792))
    store('buffer_store_dwordx2 %s, v%d, %s, s%d offen' % (vr(s1 + 2, 2), t + 4, srd(S_WS), sPS), sPC)
    a('s_mov_b64 exec, -1')


def publish_flags(lsh, between=()):
    a('v_lshlrev_b32 v241, %d, v0' % lsh)
    a('v_add_u32 v241, s%d, v241' % sPF)
    set_flags(241, 2, sPFC, V_T, between)


def run_tiles(tile_items, extras):
    for tile in range(4):
        items = tile_items(tile)
        ex = list(extras.get(tile, []))
        free = [k for k, it in enumerate(items) if k >= 3 and not it[2]]
        per = -(-len(ex) // max(1, len(free))) if ex else 0
        for k, (pre, m, post) in enumerate(items):
            for x in pre:
                x()
            a(m)
            if post:
                post()
            elif k >= 3:
                for _ in range(per):
                    if ex:
                        x = ex.pop(0)
                        if callable(x):
                            x()
                        else:
                            a(x)
        assert not ex


poll(240)
stamp()


def b_oload(tile, i):
    return 'buffer_load_dwordx4 %s, v1, %s, s%d offen offset:%d sc1' % (vr(BO + (tile * 4 + i) * 4), srd(S_WS), 20 + tile, 1024 * i)


om = {}
for tile in range(2):
    for i in range(4):
        a(b_oload(tile, i))
        om[(tile, i)] = a.vm_mark()


def b_tile(tile):
    items = []
    for i in range(4):
        for t in range(4):
            r = BACC + (tile * 4 + t) * 4
            pre = [(lambda tl=tile, ii=i: a.wait_vm(om[(tl, ii)]))] if t == 0 else []
            post = None
            if tile < 2 and t == 1:
                def post(tl=tile + 2, ii=i):
                    a(b_oload(tl, ii))
                    om[(tl, ii)] = a.vm_mark()
            if tile >= 2 and t == 1:
                def post(idx=4 * (tile - 2) + i):
                    a(c_wload(idx))
            items.append((pre, '%s %s, %s, %s, %s' % (MFMA, vr(r), vr(BW + (i * 4 + t) * 4), vr(BO + (tile * 4 + i) * 4),
                                                      '0' if i == 0 else vr(r)), post))
    return items


BT0, BT1, BPK = 226, 2, 18
run_tiles(b_tile, {1: red_writes(BACC, 0), 2: red_writes(BACC + 16, 1), 3: red_writes(BACC + 32, 2)})
stamp2()
for x in red_writes(BACC + 48, 3):
    a(x)
for x in finish_pre(0, False, BT0) + finish_pre(1, False, BT1):
    a(x)
a('s_waitcnt lgkmcnt(0)')
a('s_barrier')
stamp2()
BRD1 = 162
for x in red_reads(0, BRD) + red_reads(1, BRD1):
    a(x)
a('s_waitcnt lgkmcnt(8)')
for x in finish_sum(0, BRD, BT0, BPK, True):
    a(x)
publish_data(0, BPK)
a('s_waitcnt lgkmcnt(0)')
for x in finish_sum(1, BRD1, BT1, BPK + 4, True):
    a(x)
publish_data(1, BPK + 4)
stamp2()
publish_stats([BT0, BT1], 36, 32)
b_mark = a.vm_mark()
a('v_lshlrev_b32 v236, 7, v0')
a('v_add_u32 v236, s%d, v236' % sPF)
for i in range(8, 16):
    a(c_wload(i))
CA = [2, 10]
XF, NXF = 18, 8
GTMP, GH = 50, 58
CCS, CB1, CB1R = 178, 186, 194
CSTR = 198
CMR = 214
VGA = 218
a('v_lshrrev_b32 v%d, 4, v0' % V_G)
a('v_and_b32 v%d, 15, v0' % V_TOK)
pair_base(sA, L.FB)
a('s_lshl_b32 s%d, s%d, 9' % (sB, sS))
a('s_add_u32 s%d, s%d, s%d' % (sA, sA, sB))
a('v_lshl_add_u32 v240, v0, 2, s%d' % sA)
a('s_mov_b32 s%d, 0x3fff3fff' % sMK)
a('s_mov_b32 s%d, 0x3fff3fff' % (sMK + 1))
pair_base(20, L.XB)
a('s_mul_i32 s%d, s%d, %d' % (sB, sS, 8 * 14336))
a('s_add_u32 s20, s20, s%d' % sB)
a('s_lshl_b32 s%d, s%d, 12' % (sB, sW))
a('s_add_u32 s20, s20, s%d' % sB)
a('s_add_u32 s21, s%d, %d' % (sB, L.L_R2))
pair_base(22, L.SB)
a('s_lshl_b32 s%d, s%d, 3' % (sB, sS))
a('s_add_u32 s%d, s%d, s%d' % (sB, sB, sW))
a('s_mul_i32 s%d, s%d, 1792' % (sB, sB))
a('s_add_u32 s22, s22, s%d' % sB)
a('s_add_u32 s23, s22, %d' % (4 * 1792))
pair_base(32, L.H)
a('s_mul_i32 s%d, s%d, %d' % (sB, sS, 8 * 56 * 1024))
a('s_add_u32 s32, s32, s%d' % sB)
a('s_lshl_b32 s%d, s%d, 2' % (sB, sCI))
a('s_add_u32 s%d, s%d, s%d' % (sB, sB, sW))
a('s_lshl_b32 s%d, s%d, 10' % (sCc, sB))
a('s_add_u32 s32, s32, s%d' % sCc)
pair_base(33, L.FC)
a('s_lshl_b32 s%d, s%d, 11' % (sCc, sS))
a('s_add_u32 s33, s33, s%d' % sCc)
a('s_lshl_b32 s%d, s%d, 2' % (sB, sB))
a('s_add_u32 s33, s33, s%d' % sB)
a('v_mov_b32 v241, s33')
a('v_mov_b32 v242, 0x%x' % INV)
a('v_cmp_eq_u32 vcc, 0, v0')
a('v_cndmask_b32 v241, v242, v241, vcc')
a('v_lshlrev_b32 v238, 3, v%d' % V_TOK)
a('v_lshl_add_u32 v238, v%d, 7, v238' % V_G)
a('v_mov_b32 v242, 0x%x' % INV)
a('v_cmp_lt_u32 vcc, 1, v%d' % V_G)
a('v_cndmask_b32 v239, 0, v242, vcc')
a('v_or_b32 v239, v239, v238')
a('v_add_u32 v252, %d, v1' % L.L_R2)
a('v_lshlrev_b32 v246, 3, v%d' % V_TOK)
a('v_add_u32 v246, %d, v246' % L.L_STC)
GA = 2.0 * 0.7978845608028654 * 1.4426950408889634
GB = GA * 0.044715
a('v_mov_b32 v%d, %s' % (VGA, f2h(-GA)))
a('v_mov_b32 v%d, %s' % (VGA + 1, f2h(-GA)))
a('s_mov_b32 s34, %s' % f2h(-GB))
a('s_mov_b32 s35, %s' % f2h(-GB))
wd_bases_hi = True
a.wait_vm(b_mark)
a('s_mov_b64 exec, 3')
store('buffer_store_dword v%d, v236, %s, 0 offen' % (V_T, srd(S_WS)), sPFC)
a('s_mov_b64 exec, -1')
stamp()

for i in range(16, 22):
    a(c_wload(i))
a('s_lshl_b32 s%d, s%d, 3' % (sA, sCI))
a('s_lshl_b32 s%d, s%d, 1' % (sB, sW))
a('s_add_u32 s%d, s%d, s%d' % (sA, sA, sB))
a('s_lshl_b32 s%d, s%d, 5' % (sB, sA))
a('v_lshlrev_b32 v248, 3, v%d' % V_G)
for k in range(2):
    a('buffer_load_dwordx2 %s, v248, %s, s%d offen offset:%d' % (vr(CB1R + 2 * k, 2), srd(S_B1), sB, 32 * k))
poll(240, 256)
stamp()


def c_dma_setup(t):
    return ['s_add_u32 s36, s20, %d' % (t * 14336), 's_add_u32 m0, s21, %d' % ((t & 3) * 16384)]


def c_dma(t, i):
    return 'buffer_load_dwordx4 v1, %s, s36 offen offset:%d sc1 lds' % (srd(S_WS), 1024 * i)


dm = {}
for x in c_dma_setup(0) + [c_dma(0, i) for i in range(4)]:
    a(x)
dm[0] = a.vm_mark()
wlate = {}
for i in range(22, 28):
    a(c_wload(i))
    wlate[i >> 1] = a.vm_mark()
for tt in range(2):
    for i in range(4):
        a('buffer_load_dwordx2 %s, v%d, %s, s%d offen offset:%d sc1' %
          (vr(CSTR + 8 * tt + 2 * i, 2), 239 if i == 3 else 238, srd(S_WS), 22 + tt, 512 * i))
cst_mark = a.vm_mark()
for x in c_dma_setup(1) + [c_dma(1, i) for i in range(4)]:
    a(x)
dm[1] = a.vm_mark()
for k in range(2):
    for p in range(2):
        a('v_lshlrev_b32 v%d, 16, v%d' % (CB1 + 4 * k + 2 * p, CB1R + 2 * k + p))
        a('v_and_b32 v%d, 0xffff0000, v%d' % (CB1 + 4 * k + 2 * p + 1, CB1R + 2 * k + p))
wd_bases()
a.wait_vm(dm[0])
a('s_barrier')
stamp()


def c_xread(t, u):
    n = t * 14 + u
    return 'ds_read_b128 %s, v252 offset:%d' % (vr(XF + 4 * (n % NXF)), (t & 3) * 16384 + u * 1024)


def gelu_pre(t):
    z, m = CA[t & 1], CMR + 2 * (t & 1)
    P = range(0, 8, 2)
    o = ['v_pk_fma_f32 %s, %s, %s, %s op_sel_hi:[1,0,1] neg_lo:[0,1,0] neg_hi:[0,1,0]' % (vr(z + e, 2), vr(CCS + e, 2), vr(m, 2), vr(z + e, 2)) for e in P]
    o += ['v_pk_fma_f32 %s, %s, %s, %s op_sel:[0,1,0] op_sel_hi:[1,1,1]' % (vr(z + e, 2), vr(z + e, 2), vr(m, 2), vr(CB1 + e, 2)) for e in P]
    o += ['v_pk_mul_f32 %s, %s, %s' % (vr(GTMP + e, 2), vr(z + e, 2), vr(z + e, 2)) for e in P]
    o += ['v_pk_fma_f32 %s, %s, s[34:35], %s' % (vr(GTMP + e, 2), vr(GTMP + e, 2), vr(VGA, 2)) for e in P]
    o += ['v_pk_mul_f32 %s, %s, %s' % (vr(GTMP + e, 2), vr(GTMP + e, 2), vr(z + e, 2)) for e in P]
    return o


def gelu_mid():
    o = {}
    for e in range(8):
        o.setdefault(2 * e, []).append('v_exp_f32 v%d, v%d' % (GTMP + e, GTMP + e))
        o.setdefault(2 * e + 3, []).append('v_add_f32 v%d, 1.0, v%d' % (GTMP + e, GTMP + e))
    for e in range(6):
        o.setdefault(16 + 2 * e, []).append('v_rcp_f32 v%d, v%d' % (GTMP + e, GTMP + e))
    o.setdefault(25, []).append('v_rcp_f32 v%d, v%d' % (GTMP + 6, GTMP + 6))
    o.setdefault(27, []).append('v_rcp_f32 v%d, v%d' % (GTMP + 7, GTMP + 7))
    return o


def gelu_post(t):
    z, h = CA[t & 1], GH + 4 * (t & 1)
    o = ['v_pk_mul_f32 %s, %s, %s' % (vr(GTMP + e, 2), vr(GTMP + e, 2), vr(z + e, 2)) for e in range(0, 8, 2)]
    o += ['v_cvt_pk_bf16_f32 v%d, v%d, v%d' % (h + p, GTMP + 2 * p, GTMP + 2 * p + 1) for p in range(4)]
    return o


def gelu_packed(t):
    z, m, h = CA[t & 1], CMR + 2 * (t & 1), GH + 4 * (t & 1)
    P = range(0, 8, 2)
    for e in P:
        a('v_pk_fma_f32 %s, %s, %s, %s op_sel_hi:[1,0,1] neg_lo:[0,1,0] neg_hi:[0,1,0]' % (vr(z + e, 2), vr(CCS + e, 2), vr(m, 2), vr(z + e, 2)))
    for e in P:
        a('v_pk_fma_f32 %s, %s, %s, %s op_sel:[0,1,0] op_sel_hi:[1,1,1]' % (vr(z + e, 2), vr(z + e, 2), vr(m, 2), vr(CB1 + e, 2)))
    for e in P:
        a('v_pk_mul_f32 %s, %s, %s' % (vr(GTMP + e, 2), vr(z + e, 2), vr(z + e, 2)))
    for e in P:
        a('v_pk_fma_f32 %s, %s, s[34:35], %s' % (vr(GTMP + e, 2), vr(GTMP + e, 2), vr(VGA, 2)))
    for e in P:
        a('v_pk_mul_f32 %s, %s, %s' % (vr(GTMP + e, 2), vr(GTMP + e, 2), vr(z + e, 2)))
    for e in range(8):
        a('v_exp_f32 v%d, v%d' % (GTMP + e, GTMP + e))
    for e in P:
        a('v_pk_add_f32 %s, %s, 1.0 op_sel_hi:[1,0]' % (vr(GTMP + e, 2), vr(GTMP + e, 2)))
    for e in range(8):
        a('v_rcp_f32 v%d, v%d' % (GTMP + e, GTMP + e))
    for e in P:
        a('v_pk_mul_f32 %s, %s, %s' % (vr(GTMP + e, 2), vr(GTMP + e, 2), vr(z + e, 2)))
    for p in range(4):
        a('v_cvt_pk_bf16_f32 v%d, v%d, v%d' % (h + p, GTMP + 2 * p, GTMP + 2 * p + 1))


hmk, fmk = {}, {}


def h_store(t):
    def f():
        a('s_add_u32 s24, s32, %d' % (t * 56 * 1024))
        store('buffer_store_dwordx4 %s, v1, %s, s24 offen' % (vr(GH + 4 * (t & 1)), srd(S_WS)), sFH)
        hmk[t] = a.vm_mark()
    return f


def h_flag(t):
    def f():
        a.wait_vm(hmk[t])
        store('buffer_store_dword v%d, v241, %s, 0 offen offset:%d' % (V_T, srd(S_WS), 256 * t), sFAST)
    return f


def wd_block(fis, wave):
    def f():
        skip = newlab('L_wd')
        a('s_cmp_eq_u32 s24, %d' % wave)
        a('s_cbranch_scc0 %s' % skip)
        for fi in fis:
            a(wd_load(fi))
            a.vm_issued -= 1
        a.label(skip)
    return f


cst_fill = []
for tt in range(2):
    r = CSTR + 8 * tt
    for c_ in range(2):
        cst_fill += ['v_add_f32 v%d, v%d, v%d' % (r + c_, r + c_, r + 2 + c_),
                     'v_add_f32 v%d, v%d, v%d' % (r + 4 + c_, r + 4 + c_, r + 6 + c_),
                     'v_add_f32 v%d, v%d, v%d' % (r + c_, r + c_, r + 4 + c_)]
    cst_fill += xg_reduce(r, r + 2) + xg_reduce(r + 1, r + 3) + stats_finish(r, r + 1, r + 2, True)
a('s_lshl_b32 s%d, s%d, 7' % (sA, sW))
a('v_add_u32 v247, s%d, v246' % sA)
cst_fill += ['ds_write_b64 v247, %s' % vr(CSTR, 2), 'ds_write_b64 v247, %s offset:512' % vr(CSTR + 8, 2)]
LOOKX = 6


A_CCS = 244


def emit_c_loop(wd_list):
    pass0 = bool(wd_list)
    if not pass0:
        for e in range(8):
            a('v_accvgpr_read_b32 v%d, a%d' % (CCS + e, A_CCS + e))
    for u in range(LOOKX):
        a(c_xread(0, u))
    for t in range(8):
        nonvec = {}

        def put(k, x):
            nonvec.setdefault(k, []).append(x)
        for u in range(14):
            n = t * 14 + u
            m = n + LOOKX
            if m < 8 * 14:
                put(2 * u + 1, c_xread(m // 14, m % 14))
            if u % 2 == 1 and n + 1 < 8 * 14:
                put(2 * u + 1, 's_waitcnt lgkmcnt(%d)' % min(LOOKX - 2, 8 * 14 - 1 - (n + 2)))
        if t < 7:
            nonvec[14] = [('bar', t + 1)] + nonvec.get(14, [])
        if t + 2 < 8:
            su = c_dma_setup(t + 2)
            put(0, su[0])
            put(0, su[1])
            for i in range(4):
                put(2 + 2 * i, ('dma', t + 2, i))
        if t >= 3:
            put(20, ('call', h_flag(t - 3)))
        if t == 7:
            def issue_d0():
                amark['d0'] = early_issue(244, 243)
            put(22, ('call', issue_d0))
        if t < 7:
            for k in (10, 12, 16, 18, 22, 24, 26):
                if wd_list:
                    put(k, wd_load(wd_list.pop(0)))
        if t > 0:
            put(17, 'ds_read_b64 %s, v246 offset:%d' % (vr(CMR + 2 * (t & 1), 2), 128 * t))
        valu = gelu_mid() if t >= 1 else {}
        if t >= 2:
            for x in gelu_post(t - 2):
                a(x)
            h_store(t - 2)()
        if t >= 1:
            for x in gelu_pre(t - 1):
                a(x)
        fill = list(cst_fill) if t == 0 else []
        first = 8
        fi = 0
        for k in range(28):
            u, kk = k >> 1, k & 1
            n = t * 14 + u
            if t == 0 and k == 0:
                a('s_waitcnt lgkmcnt(%d)' % (LOOKX - 2))
            if t == 0 and kk == 0 and u in wlate:
                a.wait_vm(wlate[u])
            if t == 0 and k == first:
                a.wait_vm(cst_mark)
            r = CA[t & 1] + 4 * kk
            a('%s %s, %s, %s, %s' % (MFMA, vr(r), vr(CWW + 4 * (2 * u + kk)), vr(XF + 4 * (n % NXF)), '0' if u == 0 else vr(r)))
            if pass0 and t == 0:
                a('%s %s, %s, %s, %s' % (MFMA, vr(CCS + 4 * kk), vr(CWW + 4 * (2 * u + kk)), ar(A_ONES), '0' if u == 0 else vr(CCS + 4 * kk)))
            for it in nonvec.get(k, []):
                if isinstance(it, str):
                    a(it)
                elif it[0] == 'bar':
                    a.wait_vm(dm[it[1]])
                    a('s_barrier')
                elif it[0] == 'dma':
                    a(c_dma(it[1], it[2]))
                    dm[it[1]] = a.vm_mark()
                elif it[0] == 'call':
                    it[1]()
            for x in valu.get(k, []):
                a(x)
            if fill and k >= first:
                want = -(-(len(fill)) * (k - first + 1) // (28 - first))
                while fi < want:
                    a(fill[fi])
                    fi += 1
        assert fi == len(fill)
        if t == 0:
            a('s_waitcnt lgkmcnt(0)')
            a('s_barrier')
            a('ds_read_b64 %s, v246 offset:0' % vr(CMR, 2))
            if pass0:
                for e in range(8):
                    a('v_accvgpr_write_b32 a%d, v%d' % (A_CCS + e, CCS + e))
            a('s_waitcnt lgkmcnt(0)')
    assert not wd_list


pair_base(sA, L.FC)
a('s_lshl_b32 s%d, s%d, 10' % (sB, sG))
a('s_add_u32 s%d, s%d, s%d' % (sA, sA, sB))
a('s_mul_i32 s%d, s%d, 56' % (sB, sW))
a('s_add_u32 s%d, s%d, s%d' % (sA, sA, sB))
a('v_lshl_add_u32 v243, v0, 2, s%d' % sA)
a('s_mov_b32 s%d, 0x3fff' % sMK2)
a('s_mov_b32 s%d, 0' % (sMK2 + 1))
n_before = a.vm_issued
dm_init = dict(dm)
a('s_cmp_eq_u32 s%d, 0' % sPAIR)
a('s_cbranch_scc0 L_c_loop1')
emit_c_loop(list(range(*WD_CH[1])))
a('s_branch L_c_done')
a.label('L_c_loop1')
extra = a.vm_issued - n_before
a.vm_issued = n_before
dm.clear()
dm.update(dm_init)
emit_c_loop([])
a.label('L_c_done')
stamp()
DH, DACC, DRD = 66, 130, 194
DRING, DLOOK = 16, 10
red_addrs()
publish_setup(L.XA[1], L.SA[1], L.FX[1], False, 5)
a('s_and_b32 s%d, s%d, 1' % (sA, sG))
a('s_lshr_b32 s%d, s%d, 1' % (sB, sW))
a('s_and_b32 s%d, s%d, s%d' % (sA, sA, sB))
a('s_xor_b32 s%d, s%d, 1' % (sA, sA))
a('s_and_b32 s%d, s%d, s%d' % (sPC, sFD, sA))
a('s_and_b32 s%d, s%d, s%d' % (sPFC, sFAST, sA))
pair_base(sA, L.H)
a('s_mul_i32 s%d, s%d, %d' % (sB, sG, 4 * 56 * 1024))
a('s_add_u32 s%d, s%d, s%d' % (sA, sA, sB))
a('s_mul_i32 s%d, s%d, %d' % (sB, sW, 14 * 1024))
a('s_add_u32 s%d, s%d, s%d' % (sO, sA, sB))
quarter_offsets(4, 56 * 1024)
a('s_cmp_eq_u32 s%d, 0' % sPAIR)
a('s_cbranch_scc1 L_d_nout')
owner_index()
a('s_mul_i32 s%d, s%d, 14336' % (sPX, sB))
a('s_lshl_b32 s%d, s%d, 6' % (sA, sA))
a('s_add_u32 s%d, s%d, s%d' % (sPX, sPX, sA))
a('s_add_u32 s%d, s%d, %d' % (sPX2, sPX, 2 * 14336))
a.label('L_d_nout')
a('v_and_b32 v%d, 15, v0' % V_TOK)
a('v_lshrrev_b32 v%d, 4, v0' % V_G)
a('v_mul_u32_u24 v242, 896, v%d' % V_TOK)
a('v_lshl_add_u32 v242, v%d, 3, v242' % V_G)
early_check(244, 243, amark['d0'])


def d_hload(q):
    tile, kk = divmod(q, 14)
    return ('buffer_load_dwordx4 %s, v1, %s, s%d offen offset:%d sc1' %
            (vr(DH + (q % DRING) * 4), srd(S_WS), sO + 4 * tile + (kk >> 2), 1024 * (kk & 3)))


hm = {}
dmk = {}
for q in range(DLOOK):
    a(d_hload(q))
    hm[q] = a.vm_mark()
    if q == 6:
        dmk[1] = early_issue(244, 243, 256)
stamp()
for x in gelu_post(6):
    a(x)
h_store(6)()
a('s_waitcnt lgkmcnt(0)')
gelu_packed(7)
h_flag(5)()
h_store(7)()
stamp()

a('s_barrier')
stamp()


def d_tile(tile):
    items = []
    for kk in range(14):
        q = tile * 14 + kk
        for t in range(4):
            r = DACC + (tile * 4 + t) * 4
            pre = [(lambda qq=q: a.wait_vm(hm[qq]))] if t == 0 else []
            if t == 0 and q in (3, 9):
                pre.append(h_flag({3: 6, 9: 7}[q]))
            post = None
            if t == 0 and q + DLOOK < 56:
                def post(qq=q + DLOOK):
                    if qq % 14 == 0:
                        early_check(244, 243, dmk[qq // 14], 256 * (qq // 14))
                    a(d_hload(qq))
                    hm[qq] = a.vm_mark()
                    if qq % 14 == 6 and qq // 14 < 3:
                        dmk[qq // 14 + 1] = early_issue(244, 243, 256 * (qq // 14 + 1))
            items.append((pre, '%s %s, %s, %s, %s' % (MFMA, vr(r), ar((kk * 4 + t) * 4), vr(DH + (q % DRING) * 4),
                                                      '0' if kk == 0 else vr(r)), post))
    return items


def d_out_store(st, pk):
    a('buffer_store_dwordx2 %s, v242, %s, s%d offen %s' % (vr(pk, 2), srd(S_OUT), sPX if st == 0 else sPX2, OUTSC))
    a('buffer_store_dwordx2 %s, v242, %s, s%d offen offset:32 %s' % (vr(pk + 2, 2), srd(S_OUT), sPX if st == 0 else sPX2, OUTSC))


def d_store(st, pk):
    fin, done = newlab('L_dfin'), newlab('L_ddone')
    a('s_cmp_eq_u32 s%d, 0' % sPAIR)
    a('s_cbranch_scc0 %s' % fin)
    publish_data(st, pk)
    a('s_branch %s' % done)
    a.label(fin)
    n = a.vm_issued
    d_out_store(st, pk)
    a.vm_issued = n
    a.label(done)


DT0, DT1, DPK, DSTT, DSTS = 226, 2, 18, 28, 36
stage0 = [lambda: (a('s_waitcnt lgkmcnt(0)'), a('s_barrier'))] + red_reads(0, DRD) + finish_pre(0, True, DT0)
stage0 += [lambda: a('s_waitcnt lgkmcnt(0)')] + finish_sum(0, DRD, DT0, DPK, False) + [lambda: d_store(0, DPK)]
run_tiles(d_tile, {1: red_writes(DACC, 0), 2: red_writes(DACC + 16, 1), 3: red_writes(DACC + 32, 2) + stage0})
stamp2()
for x in red_writes(DACC + 48, 3):
    a(x)
for x in finish_pre(1, True, DT1):
    a(x)
a('s_waitcnt lgkmcnt(0)')
a('s_barrier')
stamp2()
for x in red_reads(1, DRD):
    a(x)
a('s_waitcnt lgkmcnt(0)')
for x in finish_sum(1, DRD, DT1, DPK + 4, True):
    a(x)
d_store(1, DPK + 4)
stamp()
a('s_cmp_eq_u32 s%d, 0' % sPAIR)
a('s_cbranch_scc0 L_next_pair')
publish_flags(8)
publish_stats([DT0, DT1], DSTT, DSTS)
a('v_lshlrev_b32 v242, 8, v0')
a('s_add_u32 s%d, s%d, %d' % (sA, sPF, L.FSA - L.FX[1]))
a('v_add_u32 v242, s%d, v242' % sA)
a('s_branch L_next_pair2')
a.label('L_next_pair')
a('v_mov_b32 v242, 0x%x' % INV)
a.label('L_next_pair2')
stamp()
a('s_add_u32 s%d, s%d, 1' % (sPAIR, sPAIR))
a('s_cmp_lt_u32 s%d, 2' % sPAIR)
a('s_cbranch_scc1 L_pair')

a('s_cmp_eq_u32 s2, 0')
a('s_cbranch_scc0 L_noepoch')
a('s_cmp_eq_u32 s%d, 0' % sW)
a('s_cbranch_scc0 L_noepoch')
a('buffer_load_dword v2, off, %s, 0 sc1' % srd(S_WS))
a('s_waitcnt vmcnt(0)')
a('v_add_u32 v2, 1, v2')
a('s_mov_b64 exec, 1')
a('buffer_store_dword v2, off, %s, 0 sc1' % srd(S_WS))
a('s_mov_b64 exec, -1')
a.label('L_noepoch')
if PAD:
    a.label('L_padspin')
    a('s_memrealtime s[34:35]')
    a('s_waitcnt lgkmcnt(0)')
    a('s_sub_u32 s34, s34, s0')
    a('s_cmp_lt_u32 s34, %d' % PAD[0])
    a('s_cbranch_scc1 L_padspin')
if DBG:
    a('s_memtime s[32:33]')
    a('s_memrealtime s[34:35]')
    a('s_waitcnt lgkmcnt(0)')
    a('s_sub_u32 s32, s32, s26')
    a('s_sub_u32 s34, s34, s0')
    build_srd(S_TMP, P_DBG, 256)
    a('v_mov_b32 v2, s32')
    a('v_mov_b32 v3, s34')
    a('v_mov_b32 v4, s%d' % sFAST)
    a('v_mov_b32 v5, s%d' % sXCC)
    a('s_lshr_b32 s%d, s2, 6' % sA)
    a('s_lshl_b32 s%d, s%d, 4' % (sA, sA))
    a('s_and_b32 s%d, s2, 63' % sB)
    a('s_or_b32 s%d, s%d, s%d' % (sB, sB, sW))
    a('s_cmp_eq_u32 s%d, 0' % sB)
    a('s_cselect_b32 s%d, s%d, 0x%x' % (sA, sA, INV))
    a('v_mov_b32 v6, s%d' % sA)
    a('s_mov_b64 exec, 1')
    a('buffer_store_dwordx4 v[2:5], v6, %s, 0 offen' % srd(S_TMP))
    a('s_mov_b64 exec, -1')
if DIAG:
    stamp()
    a('s_mov_b32 s%d, 63' % sSTI)
    a('s_lshl_b64 exec, 1, s%d' % sSTI)
    a('v_mov_b32 v%d, s%d' % (V_STAMP, sERR))
    a('s_mov_b32 s%d, 62' % sSTI)
    a('s_lshl_b64 exec, 1, s%d' % sSTI)
    a('v_mov_b32 v%d, s%d' % (V_STAMP, sFAST))
    a('s_mov_b64 exec, -1')
    a('s_lshl_b32 s%d, s2, 2' % sA)
    a('s_add_u32 s%d, s%d, s%d' % (sA, sA, sW))
    a('s_lshl_b32 s%d, s%d, 8' % (sA, sA))
    a('v_lshlrev_b32 v2, 2, v0')
    a('s_add_u32 s%d, s%d, %d' % (sA, sA, L.WS_USED))
    a('s_mov_b32 s%d, 0x%x' % (S_WS + 2, L.WS_USED + 256 * 1024))
    a('buffer_store_dword v%d, v2, %s, s%d offen' % (V_STAMP, srd(S_WS), sA))
    if DBGST:
        build_srd(S_TMP, P_DBG, 256)
        a('v_readfirstlane_b32 s%d, v%d' % (sA, V_STAMP))
        a('s_nop 4')
        a('v_subrev_u32 v3, s%d, v%d' % (sA, V_STAMP))
        a('s_or_b32 s%d, s2, s%d' % (sB, sW))
        a('s_cmp_eq_u32 s%d, 0' % sB)
        a('s_cselect_b32 s%d, 0, 0x%x' % (sB, INV))
        a('v_or_b32 v2, s%d, v2' % sB)
        SEL = [int(x[6:]) for x in sys.argv if x.startswith('--sel=')]
        sel = SEL[0] if SEL else 1
        a('v_subrev_u32 v2, %d, v2' % (4 * sel))
        a('buffer_store_dword v3, v2, %s, 0 offen' % srd(S_TMP))
a.label('L_end')
a('s_endpgm')

a.finalize()
body = a.text()

import os
hdr = open(os.path.join(os.path.dirname(os.path.abspath(__file__)), 'header.txt')).read()
out = hdr + '; @launch grid=(256,1,1) block=(256,1,1) lds=%d\n' % L.LDS_BYTES
out += '.amdgcn_target "amdgcn-amd-amdhsa--gfx950"\n.text\n.globl %s_kernel\n.p2align 8\n.type %s_kernel,@function\n%s_kernel:\n' % (NAME, NAME, NAME)
out += body
out += '''.section .rodata,"a"
.p2align 6
.amdhsa_kernel %s_kernel
  .amdhsa_next_free_vgpr 512
  .amdhsa_next_free_sgpr 102
  .amdhsa_accum_offset 256
  .amdhsa_group_segment_fixed_size 0
  .amdhsa_kernarg_size 88
  .amdhsa_user_sgpr_count 2
  .amdhsa_user_sgpr_kernarg_segment_ptr 1
  .amdhsa_system_sgpr_workgroup_id_x 1
.end_amdhsa_kernel
''' % NAME
sys.stdout.write(out)
```

```python
import struct
import sys
from asmlib import Asm
import layout as L

NAME = 'interleave_layers__sliding_local_dilated__mixer_channel_mlp__prompt'
DIAG = '--diag' in sys.argv
FASTMODE = ([x[7:] for x in sys.argv if x.startswith('--fast=')] + ['flags'])[0]
NOFAST = FASTMODE == 'none'
PAD = [int(x[6:]) for x in sys.argv if x.startswith('--pad=')]
DBG = '--dbg' in sys.argv or bool(PAD)
SPIN_LIMIT = 200000
OUTSC = ([x[8:] for x in sys.argv if x.startswith('--outsc=')] + [''])[0].replace('_', ' ')
SLEEP = int(([x[8:] for x in sys.argv if x.startswith('--sleep=')] + ['0'])[0])
INV = 0x80000000

a = Asm()

sXCC = 3
S_WS, S_TMP, S_B1, S_OUT = 4, 8, 12, 16
P_X, P_WQKV, P_WO, P_BX, P_W1, P_B1, P_W2, P_B2, P_OUT, P_DBG, P_WSP = 20, 22, 24, 26, 28, 30, 32, 34, 36, 38, 40
sS, sC, sG, sJ, sW, sT, sPAIR, sSPIN = 42, 43, 44, 45, 46, 47, 48, 49
sM1 = 50
sM2 = 58
sM0 = 66
sO = 74
sA, sB, sCc, sD = 90, 91, 92, 93
sMK = 94
sTS = 96
sGT = 98
sERR = 99
sSTI = 100
sFAST = 101
sFD = 27
sPFC = 26
sFH = 25


def srd(n):
    return 's[%d:%d]' % (n, n + 3)


def vr(n, k=4):
    return 'v[%d:%d]' % (n, n + k - 1)


def ar(n, k=4):
    return 'a[%d:%d]' % (n, n + k - 1)


def sp(n):
    return 's[%d:%d]' % (n, n + 1)


def f2h(x):
    return '0x%08x' % struct.unpack('<I', struct.pack('<f', x))[0]


V_T, V_STAMP = 254, 255
V_TOK, V_G = 250, 251
MFMA = 'v_mfma_f32_16x16x32_bf16'


DIAG2 = '--diag2' in sys.argv
PREF = '--pref' in sys.argv
TOUCH = '--notouch' not in sys.argv
STWAIT = '--stwait' in sys.argv
P2EARLY = '--p2early' in sys.argv
SKEW = [int(x[7:]) for x in sys.argv if x.startswith('--skew=')]
DBGST = '--dbgst' in sys.argv


def stamp2():
    if DIAG2:
        stamp()


def stamp():
    if not DIAG:
        return
    a('%s %s' % ('s_memrealtime' if '--rt' in sys.argv else 's_memtime', sp(sTS)))
    a('s_waitcnt lgkmcnt(0)')
    a('s_lshl_b64 exec, 1, s%d' % sSTI)
    a('v_mov_b32 v%d, s%d' % (V_STAMP, sTS))
    a('s_mov_b64 exec, -1')
    a('s_add_u32 s%d, s%d, 1' % (sSTI, sSTI))


lab_no = [0]


def newlab(p):
    lab_no[0] += 1
    return '%s_%d' % (p, lab_no[0])


def skew_store(point, have=False):
    if not SKEW or SKEW[0] != point:
        return
    if not have:
        a('s_memrealtime s[96:97]')
        a('s_waitcnt lgkmcnt(0)')
    build_srd(S_TMP, P_DBG, 256)
    a('s_and_b32 s%d, s2, 15' % sA)
    a('s_or_b32 s%d, s%d, s%d' % (sA, sA, sW))
    a('s_cmp_eq_u32 s%d, 0' % sA)
    a('s_cselect_b32 s%d, 0, 0x%x' % (sA, INV))
    a('s_lshr_b32 s%d, s2, 2' % sB)
    a('s_or_b32 s%d, s%d, s%d' % (sA, sA, sB))
    a('v_mov_b32 v21, s%d' % sA)
    a('v_mov_b32 v22, s96')
    a('s_mov_b64 exec, 1')
    a('buffer_store_dword v22, v21, %s, 0 offen' % srd(S_TMP))
    a.vm_issued -= 1
    a('s_mov_b64 exec, -1')


def build_srd(dst, ptr, nbytes):
    a('s_mov_b32 s%d, s%d' % (dst, ptr))
    a('s_and_b32 s%d, s%d, 0xffff' % (dst + 1, ptr + 1))
    a('s_mov_b32 s%d, 0x%x' % (dst + 2, nbytes))
    a('s_mov_b32 s%d, 0x20000' % (dst + 3))


def poll(voff, off2=None):
    lab, done = newlab('L_poll'), newlab('L_polldone')
    a('s_mov_b64 exec, %s' % sp(sMK))
    a('s_mov_b32 s%d, 0' % sSPIN)
    a.label(lab)
    a('buffer_load_dword v253, v%d, %s, 0 offen sc1' % (voff, srd(S_WS)))
    if off2 is not None:
        a('buffer_load_dword v245, v%d, %s, 0 offen offset:%d sc1' % (voff, srd(S_WS), off2))
    a('s_waitcnt vmcnt(0)')
    if off2 is not None:
        a('v_xor_b32 v245, s%d, v245' % sT)
        a('v_xor_b32 v253, s%d, v253' % sT)
        a('v_or_b32 v253, v253, v245')
        a('v_cmp_ne_u32 vcc, 0, v253')
    else:
        a('v_cmp_ne_u32 vcc, s%d, v253' % sT)
    a('s_nop 4')
    a('s_cbranch_vccz %s' % done)
    if SLEEP:
        a('s_sleep %d' % SLEEP)
    a('s_add_u32 s%d, s%d, 1' % (sSPIN, sSPIN))
    a('s_cmp_lt_u32 s%d, %d' % (sSPIN, SPIN_LIMIT))
    a('s_cbranch_scc1 %s' % lab)
    a('s_add_u32 s%d, s%d, 1' % (sERR, sERR))
    a.label(done)
    a('s_mov_b64 exec, -1')


sMK2 = 30


def early_issue(dst, voff, off=0):
    a('s_mov_b64 exec, %s' % sp(sMK2))
    a('buffer_load_dword v%d, v%d, %s, 0 offen offset:%d sc1' % (dst, voff, srd(S_WS), off))
    a('s_mov_b64 exec, -1')
    return a.vm_mark()


def early_check(dst, voff, mark, off=0):
    ok = newlab('L_early')
    a.wait_vm(mark)
    a('s_mov_b64 exec, %s' % sp(sMK2))
    a('v_cmp_ne_u32 vcc, s%d, v%d' % (sT, dst))
    a('s_mov_b64 exec, -1')
    a('s_nop 2')
    a('s_cbranch_vccz %s' % ok)
    a('s_mov_b64 %s, %s' % (sp(sMK), sp(sMK2)))
    n = a.vm_issued
    if off:
        a('v_add_u32 v253, %d, v%d' % (off, voff))
        a('v_mov_b32 v%d, v253' % dst)
        poll(dst)
    else:
        poll(voff)
    a.vm_issued = n
    a.label(ok)


def store(fmt, cond=None):
    if cond is None or NOFAST or (FASTMODE == 'flags' and cond in (sFD, sFH, sPC)):
        a(fmt + ' sc1')
        return
    slow, done = newlab('L_slow'), newlab('L_st')
    a('s_cmp_eq_u32 s%d, 0' % cond)
    a('s_cbranch_scc1 %s' % slow)
    a(fmt)
    a('s_branch %s' % done)
    a.label(slow)
    a(fmt + ' sc1')
    a.vm_issued -= 1
    a.label(done)


def set_flags(voff, nlanes, cond=None, val=V_T, between=()):
    mark = a.vm_mark()
    for x in between:
        a(x)
    a.wait_vm(mark)
    a('s_mov_b64 exec, %d' % ((1 << nlanes) - 1))
    store('buffer_store_dword v%d, v%d, %s, 0 offen' % (val, voff, srd(S_WS)), cond)
    a('s_mov_b64 exec, -1')


def xg_reduce(x, t, op='v_add_f32'):
    return ['v_mov_b32 v%d, v%d' % (t, x),
            'v_permlane32_swap_b32 v%d, v%d' % (x, t),
            '%s v%d, v%d, v%d' % (op, x, x, t),
            'v_mov_b32 v%d, v%d' % (t, x),
            'v_permlane16_swap_b32 v%d, v%d' % (x, t),
            '%s v%d, v%d, v%d' % (op, x, x, t)]


EPS = 1e-5


def stats_finish(s1, s2, t, double_ln):
    o = ['v_mul_f32 v%d, %s, v%d' % (s1, f2h(1.0 / 448), s1),
         'v_mul_f32 v%d, %s, v%d' % (s2, f2h(1.0 / 448), s2),
         'v_fma_f32 v%d, -v%d, v%d, v%d' % (s2, s1, s1, s2),
         'v_max_f32 v%d, 0, v%d' % (s2, s2),
         'v_add_f32 v%d, %s, v%d' % (t, f2h(EPS), s2),
         'v_rsq_f32 v%d, v%d' % (t, t)]
    if not double_ln:
        o += ['v_mov_b32 v%d, v%d' % (s2, t)]
    else:
        o += ['v_mul_f32 v%d, v%d, v%d' % (s2, s2, t),
              'v_fmaak_f32 v%d, v%d, v%d, %s' % (s2, s2, t, f2h(EPS)),
              'v_rsq_f32 v%d, v%d' % (s2, s2),
              'v_mul_f32 v%d, v%d, v%d' % (s2, s2, t)]
    return o


def pair_base(dst, arr):
    a('s_mul_i32 s%d, s%d, %d' % (dst, sPAIR, arr[1] - arr[0]))
    a('s_add_u32 s%d, s%d, %d' % (dst, dst, arr[0]))


def quarter_offsets(n, stride):
    for t in range(n):
        if t:
            a('s_add_u32 s%d, s%d, %d' % (sO + 4 * t, sO + 4 * (t - 1), stride))
        for q in range(1, 4):
            a('s_add_u32 s%d, s%d, %d' % (sO + 4 * t + q, sO + 4 * t, 4096 * q))


sPX, sPS, sPF, sPC, sPX2 = 36, 37, 28, 29, 33


def stats_flags(delta, lsh):
    a('v_lshlrev_b32 v241, %d, v0' % lsh)
    a('s_add_u32 s%d, s%d, %d' % (sA, sPF, delta))
    a('v_add_u32 v241, s%d, v241' % sA)
    a('s_mov_b64 exec, 3')
    store('buffer_store_dword v%d, v241, %s, 0 offen' % (V_T, srd(S_WS)), sPFC)
    a('s_mov_b64 exec, -1')


a('s_cmp_ge_u32 s2, 256')
a('s_cbranch_scc1 L_end')
a('s_load_dwordx16 s[20:35], s[0:1], 0')
a('s_load_dwordx4 s[36:39], s[0:1], 64')
a('s_load_dwordx2 s[40:41], s[0:1], 80')
a('s_getreg_b32 s%d, hwreg(HW_REG_XCC_ID, 0, 4)' % sXCC)
a('s_and_b32 s%d, s2, 7' % sA)
a('s_lshr_b32 s%d, s2, 3' % sB)
a('s_lshr_b32 s%d, s%d, 4' % (sCc, sB))
a('s_lshl_b32 s%d, s%d, 1' % (sS, sA))
a('s_add_u32 s%d, s%d, s%d' % (sS, sS, sCc))
a('s_and_b32 s%d, s%d, 15' % (sC, sB))
a('s_lshr_b32 s%d, s%d, 3' % (sA, sC))
a('s_lshl_b32 s%d, s%d, 1' % (sG, sS))
a('s_add_u32 s%d, s%d, s%d' % (sG, sG, sA))
a('s_and_b32 s%d, s%d, 7' % (sJ, sC))
a('s_mov_b32 s%d, 0' % sERR)
if SKEW and SKEW[0] == 0:
    a('s_memrealtime s[96:97]')
if PREF:
    a('s_getpc_b64 s[96:97]')
    a.label('L_pc')
    a('s_lshl_b32 s%d, s%d, 11' % (sA, sB))
    a('v_lshlrev_b32 v3, 3, v0')
    a('v_add_u32 v3, s%d, v3' % sA)
    a('v_min_u32 v3, L_end-L_pc-8, v3')
    a('global_load_dwordx2 v[252:253], v3, s[96:97]')
a('v_lshrrev_b32 v2, 6, v0')
a('v_and_b32 v0, 63, v0')
a('v_readfirstlane_b32 s%d, v2' % sW)
a('v_lshlrev_b32 v1, 4, v0')
if DIAG:
    a('v_mov_b32 v%d, 0' % V_STAMP)
    a('s_mov_b32 s%d, 0' % sSTI)
stamp()
a('v_and_b32 v%d, 15, v0' % V_TOK)
a('v_lshrrev_b32 v%d, 4, v0' % V_G)
sSTG = 40
a('s_waitcnt lgkmcnt(0)')
if DBG:
    a('s_memtime s[26:27]')
    a('s_memrealtime s[0:1]')
    a('s_waitcnt lgkmcnt(0)')
skew_store(0, True)
build_srd(S_WS, P_WSP, L.WS_USED)
a('buffer_load_dword v%d, off, %s, 0 sc1' % (V_T, srd(S_WS)))
a('s_lshl_b32 s%d, s%d, 14' % (sSTG, sW))
a('s_add_u32 s%d, s%d, %d' % (sSTG, sSTG, L.L_R2))

build_srd(S_TMP, P_X, 2048 * 896)
a('v_mul_u32_u24 v2, 896, v%d' % V_TOK)
a('v_lshl_add_u32 v2, v%d, 3, v2' % V_G)
a('s_lshr_b32 s%d, s%d, 1' % (sA, sC))
a('s_lshl_b32 s%d, s%d, 3' % (sB, sS))
a('s_add_u32 s%d, s%d, s%d' % (sO + 0, sA, sB))
a('s_and_b32 s%d, s%d, 1' % (sA, sC))
a('s_mul_i32 s%d, s%d, 7' % (sA, sA))
a('s_add_u32 s%d, s%d, s%d' % (sO + 1, sA, sW))
a('s_cmp_lt_u32 s%d, 3' % sW)
a('s_cselect_b32 s%d, 0, 0x%x' % (sO + 2, INV))
a('s_mul_i32 s%d, s%d, 14336' % (sA, sO + 0))
a('s_lshl_b32 s%d, s%d, 6' % (sB, sO + 1))
a('s_add_u32 s%d, s%d, s%d' % (sA, sA, sB))
a('v_or_b32 v3, s%d, v2' % (sO + 2))
a('buffer_load_dwordx2 v[10:11], v2, %s, s%d offen' % (srd(S_TMP), sA))
a('buffer_load_dwordx2 v[12:13], v2, %s, s%d offen offset:32' % (srd(S_TMP), sA))
a('buffer_load_dwordx2 v[14:15], v3, %s, s%d offen offset:256' % (srd(S_TMP), sA))
a('buffer_load_dwordx2 v[16:17], v3, %s, s%d offen offset:288' % (srd(S_TMP), sA))

build_srd(S_TMP, P_WQKV, 448 * 2688)
qMAT, qU, qINV = sO + 3, sO + 4, sO + 5
a('s_lshl_b32 s%d, s%d, 4' % (sA, sW))
a('s_add_u32 s%d, s%d, s%d' % (sA, sA, sS))
a('s_cmp_lt_u32 s%d, 42' % sA)
a('s_cselect_b32 s%d, 0, 0x%x' % (qINV, INV))
a('s_min_u32 s%d, s%d, 41' % (sA, sA))
a('s_mul_i32 s%d, s%d, 4682' % (qMAT, sA))
a('s_lshr_b32 s%d, s%d, 16' % (qMAT, qMAT))
a('s_mul_i32 s%d, s%d, 14' % (sB, qMAT))
a('s_sub_u32 s%d, s%d, s%d' % (qU, sA, sB))
a('s_mul_i32 s%d, s%d, %d' % (sA, qU, 32 * 2688))
a('s_mul_i32 s%d, s%d, 896' % (sB, qMAT))
a('s_add_u32 s%d, s%d, s%d' % (sA, sA, sB))
a('s_mul_i32 s%d, s%d, 56' % (sB, sC))
a('s_add_u32 s%d, s%d, s%d' % (sA, sA, sB))
a('v_lshrrev_b32 v4, 2, v0')
a('v_mul_u32_u24 v4, 2688, v4')
a('v_and_b32 v5, 3, v0')
a('v_lshl_add_u32 v4, v5, 4, v4')
a('v_or_b32 v4, s%d, v4' % qINV)
a('s_mov_b32 m0, s%d' % sSTG)
a('s_add_u32 s%d, s%d, %d' % (sB, sA, 16 * 2688))
a('buffer_load_dwordx4 v4, %s, s%d offen lds' % (srd(S_TMP), sA))
a('s_add_u32 m0, s%d, 1024' % sSTG)
a('s_nop 0')
a('buffer_load_dwordx4 v4, %s, s%d offen lds' % (srd(S_TMP), sB))

bINV, bDST, bSTR, bINV2, bDST2, sSTRD = 20, 21, 22, 23, 24, 25


def emit_p2_issue():
    a('s_cmp_eq_u32 s%d, 3' % sW)
    a('s_cbranch_scc1 L_p2_w1')
    a('s_lshl_b32 s%d, s%d, 5' % (sA, sW))
    a('s_add_u32 s%d, s%d, s%d' % (sA, sA, sG))
    a('s_cmp_lt_u32 s%d, 72' % sA)
    a('s_cselect_b32 s%d, 0, 0x%x' % (bINV, INV))
    a('s_cmp_eq_u32 s%d, 7' % sJ)
    a('s_cselect_b32 s%d, 0x%x, s%d' % (bINV, INV, bINV))
    a('s_min_u32 s%d, s%d, 71' % (sA, sA))
    a('s_min_u32 s%d, s%d, 6' % (sD, sJ))
    a('s_cmp_lt_u32 s%d, 16' % sA)
    a('s_cselect_b32 s%d, s%d, s%d' % (S_TMP, P_WO, P_W2))
    a('s_cselect_b32 s%d, s%d, s%d' % (S_TMP + 1, P_WO + 1, P_W2 + 1))
    a('s_mov_b32 s%d, 0x%x' % (S_TMP + 2, 1792 * 896))
    a('s_cselect_b32 s%d, 0x%x, s%d' % (S_TMP + 2, 448 * 896, S_TMP + 2))
    a('s_cselect_b32 s%d, 28, 32' % sB)
    a('s_cselect_b32 s%d, 0, 16' % sCc)
    a('s_mov_b32 s%d, %d' % (bSTR, 56 * 1024))
    a('s_cselect_b32 s%d, %d, s%d' % (bSTR, 16 * 1024, bSTR))
    a('s_mov_b32 s%d, %d' % (bDST, L.WD))
    a('s_cselect_b32 s%d, %d, s%d' % (bDST, L.WB, bDST))
    a('s_cselect_b32 s%d, 0x%x, 0' % (sO + 9, INV))
    a('s_and_b32 s%d, s%d, 0xffff' % (S_TMP + 1, S_TMP + 1))
    a('s_mov_b32 s%d, 0x20000' % (S_TMP + 3))
    a('s_sub_u32 s%d, s%d, s%d' % (sA, sA, sCc))
    a('s_lshl_b32 s%d, s%d, 10' % (sCc, sA))
    a('s_add_u32 s%d, s%d, s%d' % (bDST, bDST, sCc))
    a('s_lshl_b32 s%d, s%d, 2' % (sCc, sD))
    a('s_mul_i32 s%d, s%d, s%d' % (sCc, sCc, bSTR))
    a('s_add_u32 s%d, s%d, s%d' % (bDST, bDST, sCc))
    a('s_mul_i32 s%d, s%d, s%d' % (sA, sA, sB))
    a('s_mul_i32 s%d, s%d, 896' % (sA, sA))
    a('s_lshl_b32 s%d, s%d, 7' % (sB, sD))
    a('s_add_u32 s%d, s%d, s%d' % (sO + 10, sA, sB))
    a('s_mov_b32 s%d, 896' % sSTRD)
    a('s_mov_b32 s%d, 0x%x' % (bINV2, INV))
    a('s_mov_b32 s%d, 0' % bDST2)
    a('s_mov_b32 s%d, 0' % (sO + 11))
    a('s_branch L_p2_go')
    a.label('L_p2_w1')
    build_srd(S_TMP, P_W1, 448 * 3584)
    a('s_lshl_b32 s%d, s%d, 4' % (sA, sS))
    a('s_add_u32 s%d, s%d, s%d' % (sA, sA, sC))
    a('s_cmp_lt_u32 s%d, 136' % sA)
    a('s_cselect_b32 s%d, 0, 0x%x' % (bINV2, INV))
    a('s_mov_b32 s%d, 0' % bINV)
    a('s_mov_b32 s%d, 0' % (sO + 9))
    a('s_mov_b32 s%d, %d' % (bSTR, 14 * 1024))
    a('s_mov_b32 s%d, 3584' % sSTRD)
    for dst, src, add in ((bDST, sO + 10, 0), (bDST2, sO + 11, 256)):
        a('s_add_u32 s%d, s%d, %d' % (sB, sA, add))
        a('s_min_u32 s%d, s%d, 391' % (sB, sB))
        a('s_mul_i32 s%d, s%d, 4682' % (sCc, sB))
        a('s_lshr_b32 s%d, s%d, 16' % (sCc, sCc))
        a('s_mul_i32 s%d, s%d, 14' % (sD, sCc))
        a('s_sub_u32 s%d, s%d, s%d' % (sB, sB, sD))
        a('s_mul_i32 s%d, s%d, %d' % (src, sB, 32 * 3584))
        a('s_lshl_b32 s%d, s%d, 7' % (sD, sCc))
        a('s_add_u32 s%d, s%d, s%d' % (src, src, sD))
        a('s_mul_i32 s%d, s%d, 56' % (sD, sCc))
        a('s_add_u32 s%d, s%d, s%d' % (sD, sD, sB))
        a('s_lshl_b32 s%d, s%d, 10' % (sD, sD))
        a('s_add_u32 s%d, s%d, %d' % (dst, sD, L.WC))
    a.label('L_p2_go')
    a('v_lshrrev_b32 v6, 3, v0')
    a('v_mul_lo_u32 v6, v6, s%d' % sSTRD)
    a('v_and_b32 v5, 7, v0')
    a('v_lshl_add_u32 v6, v5, 4, v6')
    a('v_or_b32 v8, s%d, v6' % bINV2)
    a('v_or_b32 v6, s%d, v6' % bINV)
    a('v_cmp_lt_u32 vcc, 31, v0')
    a('v_mov_b32 v7, s%d' % (sO + 9))
    a('v_cndmask_b32 v7, 0, v7, vcc')
    a('v_or_b32 v7, v7, v6')
    a('s_lshl_b32 s%d, s%d, 3' % (sB, sSTRD))
    for slot in range(2):
        src = sO + 10 + slot
        for q in range(4):
            a('s_add_u32 m0, s%d, %d' % (sSTG, 2048 + 4096 * slot + 1024 * q))
            if q:
                a('s_add_u32 s%d, s%d, s%d' % (src, src, sB))
            else:
                a('s_nop 0')
            a('buffer_load_dwordx4 v%d, %s, s%d offen lds' % (8 if slot else (7 if q == 3 else 6), srd(S_TMP), src))


if P2EARLY:
    emit_p2_issue()
build_srd(S_B1, P_B1, 1792 * 2)
build_srd(S_OUT, P_OUT, 2048 * 896)
a('v_bfe_u32 v18, v0, 2, 2')
a('v_lshl_add_u32 v18, v%d, 2, v18' % V_G)
a('v_and_b32 v19, 3, v0')
a('v_lshlrev_b32 v19, 3, v19')
if TOUCH:
    a('v_lshlrev_b32 v21, 21, v0')
    a('s_mov_b64 exec, 0x1ffff')
    a('buffer_load_dword v253, v21, %s, 0 offen' % srd(S_WS))
    a('s_mov_b64 exec, -1')
    a('s_waitcnt vmcnt(%d)' % (9 if P2EARLY else 1))
else:
    a('s_waitcnt vmcnt(%d)' % (8 if P2EARLY else 0))
stamp()

a('s_mov_b32 s%d, 0x9E3779B1' % sA)
a('v_mul_lo_u32 v%d, v%d, s%d' % (V_T, V_T, sA))
a('v_add_u32 v%d, 0x7F4A7C15, v%d' % (V_T, V_T))
a('v_and_b32 v%d, -16, v%d' % (V_T, V_T))
a('v_lshl_add_u32 v20, v18, 6, v19')
a('v_add_u32 v20, s%d, v20' % sSTG)
for hf in range(2):
    a('ds_read_b64_tr_b16 %s, v20 offset:%d' % (vr(24 + 4 * hf, 2), 32 * hf))
    a('ds_read_b64_tr_b16 %s, v20 offset:%d' % (vr(26 + 4 * hf, 2), 32 * hf + 1024))
a('v_readfirstlane_b32 s%d, v%d' % (sT, V_T))
a('s_mul_i32 s%d, s%d, 14' % (sA, sO + 0))
a('s_add_u32 s%d, s%d, s%d' % (sA, sA, sO + 1))
a('s_lshl_b32 s%d, s%d, 10' % (sB, sA))
a('s_add_u32 s%d, s%d, %d' % (sB, sB, L.XA[0]))
a('v_or_b32 v3, s%d, v1' % (sO + 2))
a('buffer_store_dwordx4 v[10:13], v1, %s, s%d offen sc1' % (srd(S_WS), sB))
a('s_add_u32 s%d, s%d, 4096' % (sB, sB))
a('buffer_store_dwordx4 v[14:17], v3, %s, s%d offen sc1' % (srd(S_WS), sB))
a('v_cmp_gt_u32 vcc, 12, v%d' % V_TOK)
a('s_mul_i32 s%d, s%d, 84' % (sB, sC))
a('s_mul_i32 s%d, s%d, 28' % (sCc, qMAT))
a('s_add_u32 s%d, s%d, s%d' % (sB, sB, sCc))
a('s_add_u32 s%d, s%d, s%d' % (sB, sB, qU))
a('s_lshl_b32 s%d, s%d, 10' % (sB, sB))
a('s_add_u32 s%d, s%d, %d' % (sB, sB, L.WA))
a('v_or_b32 v4, s%d, v1' % qINV)
a('s_waitcnt lgkmcnt(0)')
for p in range(4):
    a('v_cndmask_b32 v%d, 0, v%d, vcc' % (28 + p, 28 + p))
a('buffer_store_dwordx4 v[24:27], v4, %s, s%d offen sc1' % (srd(S_WS), sB))
a('s_add_u32 s%d, s%d, %d' % (sB, sB, 14 * 1024))
a('buffer_store_dwordx4 v[28:31], v4, %s, s%d offen sc1' % (srd(S_WS), sB))
a('v_mov_b32 v2, 0x3f803f80')
for k in range(2):
    x, s1, s2 = 10 + 4 * k, 110 + 2 * k, 111 + 2 * k
    a('v_mov_b32 v%d, 0' % s1)
    a('v_mov_b32 v%d, 0' % s2)
    for p in range(4):
        a('v_dot2_f32_bf16 v%d, v%d, v2, v%d' % (s1, x + p, s1))
        a('v_dot2_f32_bf16 v%d, v%d, v%d, v%d' % (s2, x + p, x + p, s2))
    for t in xg_reduce(s1, 114) + xg_reduce(s2, 115):
        a(t)
a('s_lshl_b32 s%d, s%d, 7' % (sB, sA))
a('s_add_u32 s%d, s%d, %d' % (sB, sB, L.SA[0]))
a('v_lshlrev_b32 v2, 3, v%d' % V_TOK)
a('v_or_b32 v3, s%d, v2' % (sO + 2))
a('s_mov_b64 exec, 0xffff')
a('buffer_store_dwordx2 v[110:111], v2, %s, s%d offen sc1' % (srd(S_WS), sB))
a('buffer_store_dwordx2 v[112:113], v3, %s, s%d offen offset:512 sc1' % (srd(S_WS), sB))
a('s_mov_b64 exec, -1')
crit_mark = a.vm_mark()
if not P2EARLY:
    emit_p2_issue()
a('s_lshl_b32 s%d, s%d, 5' % (sA, sO + 0))
a('s_add_u32 s%d, s%d, s%d' % (sA, sA, sO + 1))
a('s_lshl_b32 s%d, s%d, 2' % (sA, sA))
a('s_add_u32 s%d, s%d, %d' % (sA, sA, L.FX[0]))
a('v_lshlrev_b32 v2, 4, v0')
a('v_add_u32 v2, s%d, v2' % sA)
a('v_cmp_eq_u32 vcc, 1, v0')
a('v_mov_b32 v3, s%d' % (sO + 2))
a('v_cndmask_b32 v3, 0, v3, vcc')
a('v_or_b32 v2, v2, v3')
a('s_lshl_b32 s%d, s%d, 6' % (sA, sC))
a('s_lshl_b32 s%d, s%d, 2' % (sB, sS))
a('s_add_u32 s%d, s%d, s%d' % (sA, sA, sB))
a('s_add_u32 s%d, s%d, s%d' % (sA, sA, sW))
a('s_lshl_b32 s%d, s%d, 2' % (sA, sA))
a('s_add_u32 s%d, s%d, %d' % (sA, sA, L.FQ))
a('v_mov_b32 v3, s%d' % sA)
a('v_cmp_eq_u32 vcc, 2, v0')
a('v_cndmask_b32 v2, v2, v3, vcc')
a('s_lshl_b32 s%d, s%d, 4' % (sA, sS))
a('s_add_u32 s%d, s%d, s%d' % (sA, sA, sC))
a('s_lshl_b32 s%d, s%d, 2' % (sA, sA))
a('s_add_u32 s%d, s%d, %d' % (sA, sA, L.FXC))
a('s_cmp_eq_u32 s%d, 0' % sW)
a('s_cselect_b32 s%d, s%d, 0x%x' % (sA, sA, INV))
a('v_mov_b32 v3, s%d' % sA)
a('v_cmp_eq_u32 vcc, 3, v0')
a('v_cndmask_b32 v2, v2, v3, vcc')
a('v_or_b32 v3, s%d, v%d' % (sXCC, V_T))
a('v_cndmask_b32 v3, v%d, v3, vcc' % V_T)
stamp2()
a.wait_vm(crit_mark)
a('s_mov_b64 exec, 15')
a('buffer_store_dword v3, v2, %s, 0 offen sc1' % srd(S_WS))
a('s_mov_b64 exec, -1')
stamp()

skew_store(1)
a('s_waitcnt vmcnt(1)')
a('v_lshl_add_u32 v20, v18, 7, v19')
a('v_add_u32 v20, s%d, v20' % sSTG)
for slot in range(2):
    for t in range(4):
        a('ds_read_b64_tr_b16 %s, v20 offset:%d' % (vr(24 + 16 * slot + 4 * t, 2), 2048 + 4096 * slot + 32 * t))
        a('ds_read_b64_tr_b16 %s, v20 offset:%d' % (vr(26 + 16 * slot + 4 * t, 2), 2048 + 4096 * slot + 32 * t + 2048))
a('v_or_b32 v6, s%d, v1' % bINV)
a('v_or_b32 v8, s%d, v1' % bINV2)
a('s_waitcnt lgkmcnt(8)')
for t in range(4):
    a('buffer_store_dwordx4 %s, v6, %s, s%d offen sc1' % (vr(24 + 4 * t), srd(S_WS), bDST))
    if t < 3:
        a('s_add_u32 s%d, s%d, s%d' % (bDST, bDST, bSTR))
a('s_waitcnt lgkmcnt(0)')
for t in range(4):
    a('buffer_store_dwordx4 %s, v8, %s, s%d offen sc1' % (vr(40 + 4 * t), srd(S_WS), bDST2))
    if t < 3:
        a('s_add_u32 s%d, s%d, s%d' % (bDST2, bDST2, bSTR))
a('s_lshl_b32 s%d, s%d, 4' % (sA, sS))
a('s_add_u32 s%d, s%d, s%d' % (sA, sA, sC))
a('s_lshl_b32 s%d, s%d, 2' % (sA, sA))
a('s_add_u32 s%d, s%d, %d' % (sA, sA, L.FW1))
a('v_lshlrev_b32 v22, 10, v0')
a('v_add_u32 v22, s%d, v22' % sA)
a('v_cmp_eq_u32 vcc, 1, v0')
a('v_mov_b32 v23, s%d' % bINV2)
a('v_cndmask_b32 v23, 0, v23, vcc')
a('v_or_b32 v22, v22, v23')
a('s_cmp_eq_u32 s%d, 3' % sW)
a('s_cselect_b32 s%d, 0, 0x%x' % (sA, INV))
a('v_or_b32 v22, s%d, v22' % sA)

skew_store(3)
a('v_and_b32 v2, 1, v%d' % V_TOK)
a('v_lshlrev_b32 v3, 2, v%d' % V_G)
a('v_add_u32 v6, 2, v%d' % V_TOK)
for i in range(4):
    a('v_add_u32 v4, %d, v3' % i)
    a('v_cmp_eq_u32 vcc, %d, v2' % (i & 1))
    a('s_mov_b64 %s, vcc' % sp(sMK))
    a('v_cmp_ge_u32 vcc, v4, v6')
    a('s_and_b64 %s, vcc, %s' % (sp(sM1 + 2 * i), sp(sMK)))
    a('v_cmp_le_u32 vcc, v4, v%d' % V_TOK)
    a('s_and_b64 %s, vcc, %s' % (sp(sM2 + 2 * i), sp(sMK)))
a('s_lshl_b32 s%d, s%d, 3' % (sA, sS))
a('s_lshl_b32 s%d, s%d, 1' % (sB, sW))
a('s_add_u32 s%d, s%d, s%d' % (sGT, sA, sB))
a('s_cmp_eq_u32 s%d, 0' % sGT)
for i in range(4):
    a('s_cselect_b64 %s, 0, %s' % (sp(sM0 + 2 * i), sp(sM1 + 2 * i)))
a('s_mov_b32 s%d, 0' % sPAIR)

def a_flag_addr(dst):
    pair_base(sA, L.FX)
    a('s_lshl_b32 s%d, s%d, 7' % (sB, sGT))
    a('s_add_u32 s%d, s%d, s%d' % (sA, sA, sB))
    a('s_sub_u32 s%d, s%d, 128' % (sA, sA))
    a('v_and_b32 v%d, 48, v0' % dst)
    a('v_add_u32 v%d, v%d, v0' % (dst, dst))
    a('v_lshl_add_u32 v%d, v%d, 2, s%d' % (dst, dst, sA))
    a('s_mov_b32 s%d, 0x3fff3fff' % sMK)
    a('s_mov_b32 s%d, 0x3fff' % (sMK + 1))
    a('s_cmp_eq_u32 s%d, 0' % sGT)
    a('s_cselect_b32 s%d, 0x3fff0000, s%d' % (sMK, sMK))


a('s_lshl_b32 s%d, s%d, 8' % (sA, sC))
a('s_add_u32 s%d, s%d, %d' % (sA, sA, L.FQ))
a('v_lshl_add_u32 v2, v0, 2, s%d' % sA)
a_flag_addr(3)
a('s_lshl_b32 s%d, s%d, 6' % (sA, sS))
a('s_add_u32 s%d, s%d, %d' % (sA, sA, L.FXC - 48 * 4))
a('v_lshl_add_u32 v4, v0, 2, s%d' % sA)
a('v_cmp_lt_u32 vcc, 47, v0')
a('v_cndmask_b32 v3, v3, v4, vcc')
a('v_mov_b32 v5, -1')
a('v_mov_b32 v6, -16')
a('v_cndmask_b32 v5, v5, v6, vcc')
a('s_or_b32 s%d, s%d, 0xffff0000' % (sMK + 1, sMK + 1))
a('s_mov_b32 s%d, 0' % sSPIN)
a.label('L_poll0')
a('buffer_load_dword v7, v2, %s, 0 offen sc1' % srd(S_WS))
a('s_mov_b64 exec, %s' % sp(sMK))
a('buffer_load_dword v8, v3, %s, 0 offen sc1' % srd(S_WS))
a('s_waitcnt vmcnt(0)')
a('v_and_b32 v9, v5, v8')
a('v_cmp_ne_u32 vcc, s%d, v9' % sT)
a('s_mov_b64 exec, -1')
a('s_mov_b64 %s, vcc' % sp(sTS))
a('v_cmp_ne_u32 vcc, s%d, v7' % sT)
a('s_or_b64 vcc, vcc, %s' % sp(sTS))
a('s_cbranch_vccz L_poll0_done')
a('s_add_u32 s%d, s%d, 1' % (sSPIN, sSPIN))
a('s_cmp_lt_u32 s%d, %d' % (sSPIN, SPIN_LIMIT))
a('s_cbranch_scc1 L_poll0')
a('s_add_u32 s%d, s%d, 1' % (sERR, sERR))
a.label('L_poll0_done')
a('s_mov_b64 exec, 3')
a('buffer_store_dword v%d, v22, %s, 0 offen sc1' % (V_T, srd(S_WS)))
a('s_mov_b64 exec, -1')
skew_store(2)
a('v_and_b32 v9, 15, v8')
a('v_cmp_ne_u32 vcc, s%d, v9' % sXCC)
a('s_and_b32 s%d, vcc_hi, 0xffff0000' % sA)
a('s_cmp_eq_u32 s%d, 0' % sA)
a('s_cselect_b32 s%d, 1, 0' % sFAST)
stamp()
AQ, AK, AV = 2, 18, 42
WBUF = [66, 90]
XR = 114
CSACC = 186
STR = 210
SM, SR = 234, 237
NR, LOOK = 6, 4
A_ONES = 240


def a_xload(u):
    slot = u % NR
    return ['buffer_load_dwordx4 %s, v1, %s, s%d offen offset:%d sc1' %
            (vr(XR + (slot * 3 + t) * 4), srd(S_WS), sO + 4 * t + (u >> 2), 1024 * (u & 3)) for t in range(3)]


def a_offsets():
    pair_base(sA, L.XA)
    a('s_mul_i32 s%d, s%d, 14336' % (sB, sGT))
    a('s_add_u32 s%d, s%d, s%d' % (sO + 4, sA, sB))
    a('s_add_u32 s%d, s%d, 14336' % (sO + 8, sO + 4))
    a('s_sub_u32 s%d, s%d, 14336' % (sO + 0, sO + 4))
    a('s_cmp_eq_u32 s%d, 0' % sGT)
    a('s_cselect_b32 s%d, s%d, s%d' % (sO + 0, sO + 4, sO + 0))
    for t in range(3):
        for q in range(1, 4):
            a('s_add_u32 s%d, s%d, %d' % (sO + 4 * t + q, sO + 4 * t, 4096 * q))


def a_setup():
    if FASTMODE == 'flags':
        a('s_mov_b32 s%d, 0' % sFD)
        a('s_mov_b32 s%d, 0' % sFH)
    elif FASTMODE == 'p0':
        a('s_xor_b32 s%d, s%d, 1' % (sFD, sPAIR))
        a('s_and_b32 s%d, s%d, s%d' % (sFD, sFD, sFAST))
        a('s_mov_b32 s%d, s%d' % (sFH, sFD))
    elif FASTMODE == 'small':
        a('s_mov_b32 s%d, s%d' % (sFD, sFAST))
        a('s_mov_b32 s%d, 0' % sFH)
    elif FASTMODE == 'smallp0':
        a('s_mov_b32 s%d, s%d' % (sFD, sFAST))
        a('s_xor_b32 s%d, s%d, 1' % (sFH, sPAIR))
        a('s_and_b32 s%d, s%d, s%d' % (sFH, sFH, sFAST))
    else:
        a('s_mov_b32 s%d, s%d' % (sFD, sFAST))
        a('s_mov_b32 s%d, s%d' % (sFH, sFAST))
    pair_base(sA, L.SA)
    a('s_mul_i32 s%d, s%d, 1792' % (sB, sGT))
    a('s_add_u32 s%d, s%d, s%d' % (sO + 13, sA, sB))
    a('s_add_u32 s%d, s%d, 1792' % (sO + 14, sO + 13))
    a('s_sub_u32 s%d, s%d, 1792' % (sO + 12, sO + 13))
    a('s_cmp_eq_u32 s%d, 0' % sGT)
    a('s_cselect_b32 s%d, s%d, s%d' % (sO + 12, sO + 13, sO + 12))
    a('v_and_b32 v%d, 15, v0' % V_TOK)
    a('v_lshrrev_b32 v%d, 4, v0' % V_G)
    a('v_lshlrev_b32 v240, 3, v%d' % V_TOK)
    a('v_lshl_add_u32 v240, v%d, 7, v240' % V_G)
    a('v_mov_b32 v242, 0x%x' % INV)
    a('v_cmp_lt_u32 vcc, 1, v%d' % V_G)
    a('v_cndmask_b32 v241, 0, v242, vcc')
    a('v_or_b32 v241, v241, v240')
    a('v_add_u32 v243, %d, v1' % (56 * 1024))
    a('v_lshlrev_b32 v244, 4, v%d' % V_G)
    a('v_add_u32 v244, %d, v244' % L.L_CSA)
    a('v_lshlrev_b32 v245, 2, v%d' % V_TOK)
    a('v_add_u32 v245, %d, v245' % L.L_CSA)
    a('s_lshl_b32 s%d, s%d, 7' % (sA, sJ))
    a('s_add_u32 s%d, s%d, %d' % (sA, sA, L.FP))
    a('v_lshl_add_u32 v248, v0, 2, s%d' % sA)
    a('s_lshr_b32 s%d, s%d, 1' % (sB, sW))
    a('s_lshl_b32 s%d, s%d, 2' % (sCc, sG))
    a('s_add_u32 s%d, s%d, s%d' % (sB, sB, sCc))
    a('s_lshl_b32 s%d, s%d, 5' % (sB, sB))
    a('s_and_b32 s%d, s%d, 1' % (sA, sW))
    a('s_add_u32 s%d, s%d, s%d' % (sB, sB, sA))
    a('s_min_u32 s%d, s%d, 6' % (sA, sJ))
    a('s_lshl_b32 s%d, s%d, 1' % (sA, sA))
    a('s_add_u32 s%d, s%d, s%d' % (sB, sB, sA))
    a('s_lshl_b32 s%d, s%d, 2' % (sB, sB))
    a('s_add_u32 s%d, s%d, %d' % (sB, sB, L.FX[0] - 32 * 256))
    a('v_lshl_add_u32 v249, v0, 8, s%d' % sB)
    a('v_cmp_lt_u32 vcc, 31, v0')
    a('v_cndmask_b32 v248, v248, v249, vcc')
    a('s_lshr_b32 s%d, s%d, 3' % (sA, sC))
    a('s_mul_i32 s%d, s%d, 7' % (sA, sA))
    a('s_min_u32 s%d, s%d, 6' % (sB, sJ))
    a('s_add_u32 s%d, s%d, s%d' % (sA, sA, sB))
    a('s_mul_i32 s%d, s%d, 112' % (sA, sA))
    a('s_add_u32 s%d, s%d, %d' % (sA, sA, L.FW1 - 34 * 4))
    a('v_lshl_add_u32 v249, v0, 2, s%d' % sA)
    a('v_cmp_lt_u32 vcc, 33, v0')
    a('v_cndmask_b32 v248, v248, v249, vcc')
    a('s_cmp_eq_u32 s%d, 0' % sPAIR)
    a('s_mov_b32 s%d, %d' % (sA, L.FSA - 128))
    a('s_cselect_b32 s%d, %d, s%d' % (sA, L.FX[0] - 128, sA))
    a('s_lshl_b32 s%d, s%d, 7' % (sB, sGT))
    a('s_add_u32 s%d, s%d, s%d' % (sA, sA, sB))
    a('v_and_b32 v247, 48, v0')
    a('v_add_u32 v247, v247, v0')
    a('v_lshl_add_u32 v247, v247, 2, s%d' % sA)
    a('s_lshl_b32 s%d, s%d, 7' % (sA, sS))
    a('s_add_u32 s%d, s%d, %d' % (sA, sA, L.FSH))
    a('v_lshl_add_u32 v253, v0, 2, s%d' % sA)
    a('s_cmp_eq_u32 s%d, 0' % sW)
    a('s_cselect_b32 s%d, 16, 0' % sA)
    a('s_cmp_eq_u32 s%d, 0' % sPAIR)
    a('s_cselect_b32 s%d, 0, s%d' % (sA, sA))
    a('v_cmp_gt_u32 vcc, s%d, v0' % sA)
    a('v_cndmask_b32 v247, v247, v253, vcc')
    a('s_mov_b32 s%d, 0x3fff3fff' % sMK2)
    a('s_mov_b32 s%d, 0x3fff' % (sMK2 + 1))
    a('s_cmp_eq_u32 s%d, 0' % sGT)
    a('s_cselect_b32 s%d, 0x3fff0000, s%d' % (sMK2, sMK2))


stat_loads = ['buffer_load_dwordx2 %s, v%d, %s, s%d offen offset:%d sc1' %
              (vr(STR + (t * 4 + i) * 2, 2), 241 if i == 3 else 240, srd(S_WS), sO + 12 + t, 512 * i)
              for t in range(3) for i in range(4)]


def a_wread(u):
    b = WBUF[u & 1]
    o = []
    for p in range(6):
        if p < 4:
            o.append('ds_read_b128 %s, v1 offset:%d' % (vr(b + 4 * p), L.L_WA + (p * 14 + u) * 1024))
        else:
            o.append('ds_read_b128 %s, v243 offset:%d' % (vr(b + 4 * p), L.L_WA + ((p - 4) * 14 + u) * 1024))
    return o


stat_fill = []
for t in range(3):
    r = STR + 8 * t
    for c_ in range(2):
        stat_fill += ['v_add_f32 v%d, v%d, v%d' % (r + c_, r + c_, r + 2 + c_),
                      'v_add_f32 v%d, v%d, v%d' % (r + 4 + c_, r + 4 + c_, r + 6 + c_),
                      'v_add_f32 v%d, v%d, v%d' % (r + c_, r + c_, r + 4 + c_)]
    stat_fill += xg_reduce(r, r + 2) + xg_reduce(r + 1, r + 3)
    stat_fill += stats_finish(r, r + 1, r + 2, False)
    stat_fill += ['v_mov_b32 v%d, v%d' % (SM + t, r), 'v_mov_b32 v%d, v%d' % (SR + t, r + 1)]

sWA = [20, 21, 22]
sWAG = 23


def wa_dma(pr, i):
    def f():
        a('s_add_u32 m0, s%d, %d' % (sWA[i], L.L_WA + 2048 * pr))
        a('s_add_u32 s%d, s%d, s%d' % (sD, sWA[i], sWAG))
        if pr:
            a('s_add_u32 s%d, s%d, %d' % (sD, sD, 2048 * pr))
        a('buffer_load_dwordx4 v1, %s, s%d offen sc1 lds' % (srd(S_WS), sD))
    return f


amark = {}


def emit_a_loop(first, xmark, wam):
    ep_mark = es_mark = st_mark = None
    for t in a_wread(0):
        a(t)
    for u in range(14):
        need = xmark[u]
        if u == 12:
            need = max(need, st_mark)
        a.wait_vm(need)
        if u == 6:
            early_check(246, 247, es_mark)
        if u == 11:
            a('s_mov_b32 s%d, -1' % sMK2)
            a('s_mov_b32 s%d, 0x3fffffff' % (sMK2 + 1))
        a('s_waitcnt lgkmcnt(0)')
        wb = WBUF[u & 1]
        xs = XR + (u % NR) * 12
        mf = []
        cz = (lambda r: '0') if u == 0 else (lambda r: vr(r))
        for t in range(2):
            for hf in range(2):
                r = AQ + (t * 2 + hf) * 4
                mf.append('%s %s, %s, %s, %s' % (MFMA, vr(r), vr(wb + 4 * hf), vr(xs + 4 * (t + 1)), cz(r)))
        for t in range(3):
            for hf in range(2):
                r = AK + (t * 2 + hf) * 4
                mf.append('%s %s, %s, %s, %s' % (MFMA, vr(r), vr(wb + 8 + 4 * hf), vr(xs + 4 * t), cz(r)))
        for t in range(3):
            for hf in range(2):
                r = AV + (t * 2 + hf) * 4
                mf.append('%s %s, %s, %s, %s' % (MFMA, vr(r), vr(xs + 4 * t), vr(wb + 16 + 4 * hf), cz(r)))
        if first:
            mf.append('%s %s, %s, %s, %s' % (MFMA, vr(CSACC + 8), vr(CSACC), ar(A_ONES), cz(CSACC + 8)))
            mf.append('%s %s, %s, %s, %s' % (MFMA, vr(CSACC + 12), ar(A_ONES), vr(CSACC + 4), cz(CSACC + 12)))
        mem = {}

        def put(k, x):
            mem.setdefault(k, []).append(x)
        off = 0
        if first:
            a('ds_read_b128 %s, v252 offset:%d' % (vr(CSACC), 1024 * u))
            a('ds_read_b128 %s, v242 offset:%d' % (vr(CSACC + 4), 1024 * u))
            put(15, 's_waitcnt lgkmcnt(%d)' % (6 if u < 13 else 0))
        if first and u % 2 == 1 and u < 13:
            put(2, ('bar', (u + 1) // 2))
            off = 3
        if u < 13:
            for k, x in enumerate(a_wread(u + 1)):
                put(off + k, x)
        elif not first:
            for p in range(4):
                put(p, 'ds_read_b128 %s, v244 offset:%d' % (vr(WBUF[0] + 4 * p), 64 * p))
            for d in range(2):
                put(4 + d, 'ds_read_b32 v%d, v245 offset:%d' % (WBUF[0] + 16 + d, 64 * (4 + d)))
        if first and u < 2:
            for j_, uu in enumerate((2 * u + 2, 2 * u + 3)):
                for k, x in zip((6, 8, 10), a_xload(uu)):
                    put(k + 6 * j_, x)
                put(10 + 6 * j_, ('xm', uu))
            if u == 0:
                for i, k in enumerate((7, 9, 11)):
                    put(k, ('wa', 2, i))
        elif u + LOOK < 14:
            for k, x in zip((6, 9, 12), a_xload(u + LOOK)):
                put(k + off, x)
            put(12 + off, ('xm', u + LOOK))
        if first and u % 2 == 0 and u // 2 + 3 <= 6:
            for i, k in enumerate((13, 15, 17) if u == 0 else (11, 14, 17)):
                put(k, ('wa', u // 2 + 3, i))
        if 6 <= u < 10:
            for k, x in zip((8, 11, 14), stat_loads[3 * (u - 6):3 * (u - 6) + 3]):
                put(k, x)
            if u == 9:
                put(14, ('st',))
        if u == 11:
            put(8, ('early',))
        if u == 4:
            put(8, ('estat',))
        fill = stat_fill[(u - 12) * 30:(u - 11) * 30] if u >= 12 else []
        fi = 0
        for k, m in enumerate(mf):
            a(m)
            for it in mem.get(k, []):
                if isinstance(it, str):
                    a(it)
                elif it[0] == 'early':
                    ep_mark = early_issue(249, 248)
                elif it[0] == 'estat':
                    es_mark = early_issue(246, 247)
                elif it[0] == 'xm':
                    xmark[it[1]] = a.vm_mark()
                elif it[0] == 'st':
                    st_mark = a.vm_mark()
                elif it[0] == 'bar':
                    a.wait_vm(wam[it[1]])
                    a('s_barrier')
                elif it[0] == 'wa':
                    wa_dma(it[1], it[2])()
                    wam[it[1]] = a.vm_mark()
            for _ in range(2):
                if fi < len(fill) and k >= 1:
                    a(fill[fi])
                    fi += 1
        assert fi == len(fill), (u, fi, len(fill))
    amark['ep'] = ep_mark


for p in range(4):
    a('v_mov_b32 v4, 0x3f803f80')
    a('v_accvgpr_write_b32 a%d, v4' % (A_ONES + p))
a('s_mul_i32 s%d, s%d, 14336' % (sWA[0], sW))
a('s_add_u32 s%d, s%d, 4' % (sA, sW))
a('s_mul_i32 s%d, s%d, 14336' % (sA, sA))
a('s_sub_u32 s%d, s%d, 2' % (sB, sW))
a('s_mul_i32 s%d, s%d, 14336' % (sB, sB))
a('s_add_u32 s%d, s%d, 1024' % (sB, sB))
a('s_cmp_lt_u32 s%d, 2' % sW)
a('s_cselect_b32 s%d, s%d, s%d' % (sWA[1], sA, sB))
a('s_add_u32 s%d, s%d, 2' % (sA, sW))
a('s_mul_i32 s%d, s%d, 14336' % (sA, sA))
a('s_add_u32 s%d, s%d, 1024' % (sWA[2], sA))
a('s_mul_i32 s%d, s%d, %d' % (sWAG, sC, 84 * 1024))
a('s_add_u32 s%d, s%d, %d' % (sWAG, sWAG, L.WA))
a_offsets()
xm0, wam0 = {}, {}


def wa_pair(pr):
    for i in range(3):
        wa_dma(pr, i)()
    wam0[pr] = a.vm_mark()


wa_pair(0)
for u in range(2):
    for t in a_xload(u):
        a(t)
    xm0[u] = a.vm_mark()
wa_pair(1)
a_setup()
a('s_mul_i32 s%d, s%d, 14336' % (sA, sW))
a('v_add_u32 v252, s%d, v1' % sA)
a('s_and_b32 s%d, s%d, 1' % (sA, sW))
a('s_mul_i32 s%d, s%d, 14336' % (sA, sA))
a('v_add_u32 v242, s%d, v243' % sA)
a.wait_vm(wam0[0])
a('s_barrier')
a('s_lshl_b32 s%d, s%d, 5' % (sA, sJ))
a('s_add_u32 s%d, s%d, s%d' % (sA, sA, sG))
a('s_lshl_b32 s%d, s%d, 2' % (sA, sA))
a('s_add_u32 s%d, s%d, %d' % (sA, sA, L.FP))
a('s_cmp_eq_u32 s%d, 0' % sW)
a('s_cselect_b32 s%d, s%d, 0x%x' % (sA, sA, INV))
a('v_mov_b32 v2, s%d' % sA)
a('s_mov_b64 exec, 1')
a('buffer_store_dword v%d, v2, %s, 0 offen sc1' % (V_T, srd(S_WS)))
a.vm_issued -= 1
a('s_mov_b64 exec, -1')
stamp()
emit_a_loop(True, xm0, wam0)
n_join = a.vm_issued - amark['ep']
CSQ = WBUF[0]
a('v_cmp_eq_u32 vcc, 0, v%d' % V_TOK)
a('s_lshl_b32 s%d, s%d, 6' % (sA, sW))
a('v_add_u32 v252, s%d, v244' % sA)
a('s_and_b32 s%d, s%d, 1' % (sA, sW))
a('s_lshl_b32 s%d, s%d, 6' % (sA, sA))
a('v_add_u32 v242, s%d, v245' % sA)
a('s_mov_b64 exec, vcc')
a('ds_write_b128 v252, %s' % vr(CSACC + 8))
a('s_mov_b64 exec, 0xffff')
a('ds_write_b32 v242, v%d offset:256' % (CSACC + 12))
a('s_mov_b64 exec, -1')
a('s_waitcnt lgkmcnt(0)')
a('s_barrier')
for p in range(4):
    a('ds_read_b128 %s, v244 offset:%d' % (vr(WBUF[0] + 4 * p), 64 * p))
for d in range(2):
    a('ds_read_b32 v%d, v245 offset:%d' % (WBUF[0] + 16 + d, 64 * (4 + d)))
a('s_branch L_a_epi')

a.label('L_pair')
a_flag_addr(2)
a('s_lshl_b32 s%d, s%d, 7' % (sA, sS))
a('s_add_u32 s%d, s%d, %d' % (sA, sA, L.FH))
a('v_lshl_add_u32 v3, v0, 2, s%d' % sA)
a('s_cmp_eq_u32 s%d, 0' % sW)
a('s_cselect_b32 s%d, 16, 0' % sA)
a('v_cmp_gt_u32 vcc, s%d, v0' % sA)
a('v_cndmask_b32 v2, v2, v3, vcc')
poll(2)
stamp()
a('s_mov_b64 exec, 3')
store('buffer_store_dword v%d, v242, %s, 0 offen' % (V_T, srd(S_WS)), sPFC)
a.vm_issued -= 1
a('s_mov_b64 exec, 1')
a('buffer_store_dword v%d, v243, %s, 0 offen sc1' % (V_T, srd(S_WS)))
a.vm_issued -= 1
a('s_mov_b64 exec, -1')
a_offsets()
xmark = {}
for u in range(LOOK):
    for t in a_xload(u):
        a(t)
    xmark[u] = a.vm_mark()
a_setup()
emit_a_loop(False, xmark, None)
assert a.vm_issued - amark['ep'] == n_join
ep_mark = amark['ep']
a.label('L_a_epi')
stamp()
for x in stat_fill[60:]:
    a(x)
early_check(249, 248, ep_mark)
BW = 2
a('s_lshl_b32 s%d, s%d, 6' % (sA, sJ))
a('s_lshl_b32 s%d, s%d, 2' % (sB, sW))
a('s_add_u32 s%d, s%d, s%d' % (sA, sA, sB))
a('s_lshl_b32 s%d, s%d, 10' % (sA, sA))
a('s_add_u32 s20, s%d, %d' % (sA, L.WB))
for t in range(1, 4):
    a('s_add_u32 s%d, s20, %d' % (20 + t, 16 * 1024 * t))
wb_loads = ['buffer_load_dwordx4 %s, v1, %s, s%d offen offset:%d sc1' % (vr(BW + (i * 4 + t) * 4), srd(S_WS), 20 + t, 1024 * i)
            for i in range(4) for t in range(4)]
A_RES, A_B2 = 224, 232


def red_addrs():
    a('s_lshl_b32 s%d, s%d, 13' % (sA, sW))
    a('s_add_u32 s%d, s%d, %d' % (sA, sA, L.L_R2))
    a('v_add_u32 v248, s%d, v1' % sA)
    a('s_and_b32 s%d, s%d, 1' % (sA, sW))
    a('s_lshl_b32 s%d, s%d, 11' % (sA, sA))
    a('s_lshr_b32 s%d, s%d, 1' % (sB, sW))
    a('s_lshl_b32 s%d, s%d, 12' % (sB, sB))
    a('s_add_u32 s%d, s%d, s%d' % (sA, sA, sB))
    a('s_add_u32 s%d, s%d, %d' % (sA, sA, L.L_R2))
    a('v_add_u32 v249, s%d, v1' % sA)


def publish_setup(xbase, sbase, fbase, per_pair, fsh):
    owner_index()
    a('s_mul_i32 s%d, s%d, 14' % (sCc, sB))
    a('s_add_u32 s%d, s%d, s%d' % (sCc, sCc, sA))
    a('s_lshl_b32 s%d, s%d, 10' % (sPX, sCc))
    a('s_lshl_b32 s%d, s%d, 7' % (sPS, sCc))
    a('s_lshl_b32 s%d, s%d, %d' % (sPF, sB, fsh))
    a('s_add_u32 s%d, s%d, s%d' % (sPF, sPF, sA))
    a('s_lshl_b32 s%d, s%d, 2' % (sPF, sPF))
    for dst, arr in ((sPX, xbase), (sPS, sbase), (sPF, fbase)):
        if per_pair:
            pair_base(sD, arr)
            a('s_add_u32 s%d, s%d, s%d' % (dst, dst, sD))
        else:
            a('s_add_u32 s%d, s%d, %d' % (dst, dst, arr))
    a('s_add_u32 s%d, s%d, %d' % (sPX2, sPX, 2 * 14336))


def owner_index():
    a('s_lshr_b32 s%d, s%d, 1' % (sB, sW))
    a('s_lshl_b32 s%d, s%d, 2' % (sCc, sG))
    a('s_add_u32 s%d, s%d, s%d' % (sB, sB, sCc))
    a('s_and_b32 s%d, s%d, 1' % (sA, sW))
    a('s_lshl_b32 s%d, s%d, 1' % (sCc, sJ))
    a('s_add_u32 s%d, s%d, s%d' % (sA, sA, sCc))


a('s_cmp_eq_u32 s%d, 0' % sPAIR)
a('s_cbranch_scc0 L_a_nores')
owner_index()
a('s_mul_i32 s%d, s%d, 14' % (sB, sB))
a('s_add_u32 s%d, s%d, s%d' % (sB, sB, sA))
a('s_lshl_b32 s%d, s%d, 10' % (sB, sB))
a('s_add_u32 s%d, s%d, %d' % (sB, sB, L.XA[0]))
a('buffer_load_dwordx4 %s, v1, %s, s%d offen sc1' % (ar(A_RES), srd(S_WS), sB))
a('s_add_u32 s%d, s%d, %d' % (sB, sB, 2 * 14336))
a('buffer_load_dwordx4 %s, v1, %s, s%d offen sc1' % (ar(A_RES + 4), srd(S_WS), sB))
build_srd(S_TMP, P_B2, 896)
a('s_lshl_b32 s%d, s%d, 6' % (sB, sA))
a('v_lshlrev_b32 v240, 3, v%d' % V_G)
a('buffer_load_dwordx2 v[228:229], v240, %s, s%d offen' % (srd(S_TMP), sB))
a('buffer_load_dwordx2 v[230:231], v240, %s, s%d offen offset:32' % (srd(S_TMP), sB))
a.label('L_a_nores')
CSQ = WBUF[0]
a('s_mul_i32 s%d, s%d, 384' % (sA, sW))
a('s_add_u32 s%d, s%d, %d' % (sA, sA, L.L_STA))
a('v_lshl_add_u32 v246, v%d, 2, s%d' % (V_TOK, sA))
a('v_lshl_add_u32 v247, v%d, 4, s%d' % (V_G, sA))
a('s_mov_b64 exec, 0xffff')
for t in range(3):
    a('ds_write_b32 v246, v%d offset:%d' % (SM + t, 128 * t))
    a('ds_write_b32 v246, v%d offset:%d' % (SR + t, 128 * t + 64))
a('s_mov_b64 exec, -1')
MROW, RROW = 114, 126
a('s_waitcnt lgkmcnt(0)')
for t in range(3):
    a('ds_read_b128 %s, v247 offset:%d' % (vr(MROW + 4 * t), 128 * t))
    a('ds_read_b128 %s, v247 offset:%d' % (vr(RROW + 4 * t), 128 * t + 64))
QF, KF, VF = 140, 148, 160


def pk(op, dst, srcs, neg=None):
    ops, lo, hi = [], [], []
    for x in srcs:
        if isinstance(x, tuple):
            ops.append(vr(x[1] & ~1, 2))
            lo.append(x[1] & 1)
            hi.append(x[1] & 1)
        else:
            ops.append(vr(x, 2))
            lo.append(0)
            hi.append(1)
    t = '%s %s, %s op_sel:[%s] op_sel_hi:[%s]' % (op, vr(dst, 2), ', '.join(ops), ','.join(map(str, lo)), ','.join(map(str, hi)))
    if neg is not None:
        m = ','.join('1' if k == neg else '0' for k in range(len(srcs)))
        t += ' neg_lo:[%s] neg_hi:[%s]' % (m, m)
    return t


for t in range(2):
    for hf in range(2):
        r = AQ + (t * 2 + hf) * 4
        for i in (0, 2):
            a(pk('v_pk_fma_f32', r + i, [('b', SM + t + 1), CSQ + 4 * hf + i, r + i], 0))
        for p in range(2):
            a('v_cvt_pk_bf16_f32 v%d, v%d, v%d' % (QF + 4 * t + 2 * hf + p, r + 2 * p, r + 2 * p + 1))
for t in range(3):
    for hf in range(2):
        r = AK + (t * 2 + hf) * 4
        for i in (0, 2):
            a(pk('v_pk_fma_f32', r + i, [('b', SM + t), CSQ + 8 + 4 * hf + i, r + i], 0))
        for p in range(2):
            a('v_cvt_pk_bf16_f32 v%d, v%d, v%d' % (KF + 4 * t + 2 * hf + p, r + 2 * p, r + 2 * p + 1))
SS = 172
for t in range(2):
    a('%s %s, %s, %s, 0' % (MFMA, vr(SS + 8 * t), vr(KF + 4 * t), vr(QF + 4 * t)))
    a('%s %s, %s, %s, 0' % (MFMA, vr(SS + 8 * t + 4), vr(KF + 4 * t + 4), vr(QF + 4 * t)))
pair_base(sA, L.O)
a('s_lshl_b32 s%d, s%d, 4' % (sB, sGT))
a('s_add_u32 s%d, s%d, s%d' % (sB, sB, sC))
a('s_lshl_b32 s%d, s%d, 10' % (sB, sB))
a('s_add_u32 s32, s%d, s%d' % (sA, sB))
a('s_add_u32 s33, s32, 16384')
a('s_waitcnt lgkmcnt(0)')
for t in range(3):
    for d in range(2):
        r = AV + (t * 2 + d) * 4
        for i in (0, 2):
            a(pk('v_pk_fma_f32', r + i, [MROW + 4 * t + i, ('b', CSQ + 16 + d), r + i], 0))
        for p in range(2):
            a('v_cvt_pk_bf16_f32 v%d, v%d, v%d' % (VF + 6 * d + 2 * t + p, r + 2 * p, r + 2 * p + 1))
SCALE = (28.0 ** -0.5) * 1.4426950408889634
MX, CC, LS, TMPR = 190, 192, 194, 196
PF = 200
SUMT = [(224, 226), (232, 188)]
a('v_mov_b32 v198, 0xff800000')
seq = [[], []]
for t in range(2):
    s_ = SS + 8 * t
    q = seq[t]
    rr = lambda e: RROW + 4 * (t + (e >> 2)) + (e & 3)
    for e in range(0, 8, 2):
        q.append(pk('v_pk_mul_f32', s_ + e, [s_ + e, rr(e)]))
    for e in range(8):
        mk = (sM0 if t == 0 else sM1) + 2 * e if e < 4 else sM2 + 2 * (e - 4)
        q.append('v_cndmask_b32 v%d, v198, v%d, %s' % (s_ + e, s_ + e, sp(mk)))
    q.append('v_max3_f32 v%d, v%d, v%d, v%d' % (MX + t, s_, s_ + 1, s_ + 2))
    q.append('v_max3_f32 v%d, v%d, v%d, v%d' % (MX + t, MX + t, s_ + 3, s_ + 4))
    q.append('v_max3_f32 v%d, v%d, v%d, v%d' % (MX + t, MX + t, s_ + 5, s_ + 6))
    q.append('v_max_f32 v%d, v%d, v%d' % (MX + t, MX + t, s_ + 7))
    q += xg_reduce(MX + t, TMPR + t, 'v_max_f32')
    q.append('v_mul_f32 v%d, %s, v%d' % (CC + t, f2h(SCALE), SR + t + 1))
    q.append('v_mul_f32 v%d, v%d, v%d' % (MX + t, MX + t, CC + t))
    for e in range(0, 8, 2):
        q.append(pk('v_pk_fma_f32', s_ + e, [s_ + e, ('b', CC + t), ('b', MX + t)], 2))
    for e in range(8):
        q.append('v_exp_f32 v%d, v%d' % (s_ + e, s_ + e))
    u_, u2 = SUMT[t]
    q.append(pk('v_pk_add_f32', u_, [s_, s_ + 2]))
    q.append(pk('v_pk_add_f32', u2, [s_ + 4, s_ + 6]))
    q.append(pk('v_pk_add_f32', u_, [u_, u2]))
    q.append('v_add_f32 v%d, v%d, v%d' % (LS + t, u_, u_ + 1))
    q += xg_reduce(LS + t, TMPR + t)
    q.append('v_rcp_f32 v%d, v%d' % (LS + t, LS + t))
    for e in range(0, 8, 2):
        q.append(pk('v_pk_mul_f32', s_ + e, [s_ + e, rr(e)]))
    for p in range(4):
        q.append('v_cvt_pk_bf16_f32 v%d, v%d, v%d' % (PF + 4 * t + p, s_ + 2 * p, s_ + 2 * p + 1))
merged = [z for xy in zip(*seq) for z in xy]
gap = len(merged) // (len(wb_loads) + 1)
for k, x in enumerate(merged):
    a(x)
    if k % gap == gap - 1 and wb_loads:
        a(wb_loads.pop(0))
assert not wb_loads
OO = 208
for t in range(2):
    for d in range(2):
        a('%s %s, %s, %s, 0' % (MFMA, vr(OO + 8 * t + 4 * d), vr(VF + 6 * d + 2 * t), vr(PF + 4 * t)))
for t in range(2):
    for e in range(0, 8, 2):
        a(pk('v_pk_mul_f32', OO + 8 * t + e, [OO + 8 * t + e, ('b', LS + t)]))
    for p in range(4):
        a('v_cvt_pk_bf16_f32 v%d, v%d, v%d' % (PF + 4 * t + p, OO + 8 * t + 2 * p, OO + 8 * t + 2 * p + 1))
    store('buffer_store_dwordx4 %s, v1, %s, s%d offen' % (vr(PF + 4 * t), srd(S_WS), 32 + t), sFD)
o_mark = a.vm_mark()
pair_base(sA, L.FA)
a('s_lshl_b32 s%d, s%d, 4' % (sB, sGT))
a('s_add_u32 s%d, s%d, s%d' % (sB, sB, sC))
a('s_lshl_b32 s%d, s%d, 2' % (sB, sB))
a('s_add_u32 s%d, s%d, s%d' % (sA, sA, sB))
a('v_lshlrev_b32 v241, 6, v0')
a('v_add_u32 v241, s%d, v241' % sA)
pair_base(sA, L.FA)
a('s_lshl_b32 s%d, s%d, 8' % (sB, sG))
a('s_add_u32 s%d, s%d, s%d' % (sA, sA, sB))
a('v_lshl_add_u32 v240, v0, 2, s%d' % sA)
a('s_lshl_b32 s%d, s%d, 2' % (sB, sW))
a('s_lshl_b32 s%d, 0x000f000f, s%d' % (sMK, sB))
a('s_mov_b32 s%d, s%d' % (sMK + 1, sMK))
red_addrs()
publish_setup(L.XB, L.SB, L.FB, True, 4)
a('s_mov_b32 s%d, s%d' % (sPC, sFD))
a('s_mov_b32 s%d, s%d' % (sPFC, sFAST))
pair_base(sA, L.O)
a('s_lshl_b32 s%d, s%d, 6' % (sB, sG))
a('s_lshl_b32 s%d, s%d, 2' % (sCc, sW))
a('s_add_u32 s%d, s%d, s%d' % (sB, sB, sCc))
a('s_lshl_b32 s%d, s%d, 10' % (sB, sB))
a('s_add_u32 s20, s%d, s%d' % (sA, sB))
for t in range(1, 4):
    a('s_add_u32 s%d, s20, %d' % (20 + t, 16384 * t))
a.wait_vm(o_mark)
a('s_mov_b64 exec, 3')
store('buffer_store_dword v%d, v241, %s, 0 offen' % (V_T, srd(S_WS)), sFAST)
a('s_mov_b64 exec, -1')
stamp()
a('s_cmp_eq_u32 s%d, 7' % sJ)
a('s_cbranch_scc1 L_next_pair')


def wd_bases():
    a('s_lshl_b32 s%d, s%d, 2' % (sA, sJ))
    a('s_mul_i32 s%d, s%d, %d' % (sA, sA, 56 * 1024))
    a('s_mul_i32 s%d, s%d, %d' % (sB, sW, 14 * 1024))
    a('s_add_u32 s%d, s%d, s%d' % (sA, sA, sB))
    a('s_add_u32 s%d, s%d, %d' % (sO, sA, L.WD))
    quarter_offsets(4, 56 * 1024)


def wd_load(fi):
    kk, t = fi >> 2, fi & 3
    return ('buffer_load_dwordx4 %s, v1, %s, s%d offen offset:%d sc1' %
            (ar(4 * fi), srd(S_WS), sO + 4 * t + (kk >> 2), 1024 * (kk & 3)))


WD_CH = [(0, 12), (12, 56)]
BO, BACC, BRD, BTMP = 66, 130, 194, 226
a('s_cmp_eq_u32 s%d, 0' % sPAIR)
a('s_cbranch_scc0 L_b_start')
for k in range(4):
    a('v_lshlrev_b32 v236, 16, v%d' % (228 + k))
    a('v_and_b32 v237, 0xffff0000, v%d' % (228 + k))
    a('v_accvgpr_write_b32 a%d, v236' % (A_B2 + 2 * k))
    a('v_accvgpr_write_b32 a%d, v237' % (A_B2 + 2 * k + 1))
wd_bases()
for fi in range(*WD_CH[0]):
    a(wd_load(fi))
a.label('L_b_start')
CWW = 66
sCI = 41
a('s_lshr_b32 s%d, s%d, 3' % (sA, sC))
a('s_mul_i32 s%d, s%d, 7' % (sA, sA))
a('s_add_u32 s%d, s%d, s%d' % (sCI, sA, sJ))
a('s_lshl_b32 s%d, s%d, 3' % (sA, sCI))
a('s_lshl_b32 s%d, s%d, 1' % (sB, sW))
a('s_add_u32 s%d, s%d, s%d' % (sA, sA, sB))
a('s_mul_i32 s%d, s%d, %d' % (sB, sA, 14 * 1024))
a('s_add_u32 s%d, s%d, %d' % (sO, sB, L.WC))
quarter_offsets(2, 14 * 1024)


def c_wload(idx):
    u, k = idx >> 1, idx & 1
    return ('buffer_load_dwordx4 %s, v1, %s, s%d offen offset:%d sc1' %
            (vr(CWW + 4 * idx), srd(S_WS), sO + 4 * k + (u >> 2), 1024 * (u & 3)))


def red_writes(acc, tile):
    return ['ds_write_b128 v248, %s offset:%d' % (vr(acc + 4 * t), (tile >> 1) * 32768 + (tile & 1) * 4096 + t * 1024)
            for t in range(4)]


def red_reads(st, rd):
    return ['ds_read_b128 %s, v249 offset:%d' % (vr(rd + (b * 2 + k) * 4), st * 32768 + b * 8192 + k * 1024)
            for b in range(4) for k in range(2)]


def add8(dst, x, y, packed):
    if packed:
        return ['v_pk_add_f32 %s, %s, %s' % (vr(dst + e, 2), vr(x + e, 2), vr(y + e, 2)) for e in range(0, 8, 2)]
    return ['v_add_f32 v%d, v%d, v%d' % (dst + e, x + e, y + e) for e in range(8)]


def finish_pre(st, is_d, tmp):
    res = A_RES + 4 * st
    o = ['v_accvgpr_read_b32 v%d, a%d' % (tmp + 8 + p, res + p) for p in range(4)]
    for p in range(4):
        o += ['v_lshlrev_b32 v%d, 16, v%d' % (tmp + 2 * p, tmp + 8 + p),
              'v_and_b32 v%d, 0xffff0000, v%d' % (tmp + 2 * p + 1, tmp + 8 + p)]
    if is_d:
        o += ['v_accvgpr_read_b32 v%d, a%d' % (tmp + 8 + e, A_B2 + e) for e in range(8)]
        o += ['v_add_f32 v%d, v%d, v%d' % (tmp + e, tmp + e, tmp + 8 + e) for e in range(8)]
    return o


def finish_sum(st, rd, tmp, pk, packed):
    o = add8(rd, rd, rd + 8, packed) + add8(rd + 16, rd + 16, rd + 24, packed) + add8(rd, rd, rd + 16, packed)
    o += add8(tmp, tmp, rd, packed)
    o += ['v_cvt_pk_bf16_f32 v%d, v%d, v%d' % (pk + p, tmp + 2 * p, tmp + 2 * p + 1) for p in range(4)]
    o += ['v_accvgpr_write_b32 a%d, v%d' % (A_RES + 4 * st + p, pk + p) for p in range(4)]
    return o


def owner_stats(tmp, s1, t):
    a('v_pk_add_f32 %s, %s, %s' % (vr(t, 2), vr(tmp, 2), vr(tmp + 2, 2)))
    a('v_pk_add_f32 %s, %s, %s' % (vr(t + 2, 2), vr(tmp + 4, 2), vr(tmp + 6, 2)))
    a('v_pk_add_f32 %s, %s, %s' % (vr(t, 2), vr(t, 2), vr(t + 2, 2)))
    a('v_add_f32 v%d, v%d, v%d' % (s1, t, t + 1))
    a('v_pk_mul_f32 %s, %s, %s' % (vr(t, 2), vr(tmp, 2), vr(tmp, 2)))
    for e in (2, 4, 6):
        a('v_pk_fma_f32 %s, %s, %s, %s' % (vr(t, 2), vr(tmp + e, 2), vr(tmp + e, 2), vr(t, 2)))
    a('v_add_f32 v%d, v%d, v%d' % (s1 + 1, t, t + 1))
    for x, y in zip(xg_reduce(s1, t), xg_reduce(s1 + 1, t + 1)):
        a(x)
        a(y)


def publish_data(st, pk):
    store('buffer_store_dwordx4 %s, v1, %s, s%d offen offset:0' % (vr(pk), srd(S_WS), sPX if st == 0 else sPX2), sPC)


def publish_stats(tmps, t, s1):
    a('v_and_b32 v%d, 15, v0' % V_TOK)
    a('v_lshlrev_b32 v%d, 3, v%d' % (t + 4, V_TOK))
    for st in range(2):
        owner_stats(tmps[st], s1 + 2 * st, t)
    a('s_mov_b64 exec, 0xffff')
    store('buffer_store_dwordx2 %s, v%d, %s, s%d offen' % (vr(s1, 2), t + 4, srd(S_WS), sPS), sPC)
    a('s_add_u32 s%d, s%d, %d' % (sPS, sPS, 2 * 1792))
    store('buffer_store_dwordx2 %s, v%d, %s, s%d offen' % (vr(s1 + 2, 2), t + 4, srd(S_WS), sPS), sPC)
    a('s_mov_b64 exec, -1')


def publish_flags(lsh, between=()):
    a('v_lshlrev_b32 v241, %d, v0' % lsh)
    a('v_add_u32 v241, s%d, v241' % sPF)
    set_flags(241, 2, sPFC, V_T, between)


def run_tiles(tile_items, extras):
    for tile in range(4):
        items = tile_items(tile)
        ex = list(extras.get(tile, []))
        free = [k for k, it in enumerate(items) if k >= 3 and not it[2]]
        per = -(-len(ex) // max(1, len(free))) if ex else 0
        for k, (pre, m, post) in enumerate(items):
            for x in pre:
                x()
            a(m)
            if post:
                post()
            elif k >= 3:
                for _ in range(per):
                    if ex:
                        x = ex.pop(0)
                        if callable(x):
                            x()
                        else:
                            a(x)
        assert not ex


poll(240)
stamp()


def b_oload(tile, i):
    return 'buffer_load_dwordx4 %s, v1, %s, s%d offen offset:%d sc1' % (vr(BO + (tile * 4 + i) * 4), srd(S_WS), 20 + tile, 1024 * i)


om = {}
for tile in range(2):
    for i in range(4):
        a(b_oload(tile, i))
        om[(tile, i)] = a.vm_mark()


def b_tile(tile):
    items = []
    for i in range(4):
        for t in range(4):
            r = BACC + (tile * 4 + t) * 4
            pre = [(lambda tl=tile, ii=i: a.wait_vm(om[(tl, ii)]))] if t == 0 else []
            post = None
            if tile < 2 and t == 1:
                def post(tl=tile + 2, ii=i):
                    a(b_oload(tl, ii))
                    om[(tl, ii)] = a.vm_mark()
            if tile >= 2 and t == 1:
                def post(idx=4 * (tile - 2) + i):
                    a(c_wload(idx))
            items.append((pre, '%s %s, %s, %s, %s' % (MFMA, vr(r), vr(BW + (i * 4 + t) * 4), vr(BO + (tile * 4 + i) * 4),
                                                      '0' if i == 0 else vr(r)), post))
    return items


BT0, BT1, BPK = 226, 2, 18
run_tiles(b_tile, {1: red_writes(BACC, 0), 2: red_writes(BACC + 16, 1), 3: red_writes(BACC + 32, 2)})
stamp2()
for x in red_writes(BACC + 48, 3):
    a(x)
for x in finish_pre(0, False, BT0) + finish_pre(1, False, BT1):
    a(x)
a('s_waitcnt lgkmcnt(0)')
a('s_barrier')
stamp2()
BRD1 = 162
for x in red_reads(0, BRD) + red_reads(1, BRD1):
    a(x)
a('s_waitcnt lgkmcnt(8)')
for x in finish_sum(0, BRD, BT0, BPK, True):
    a(x)
publish_data(0, BPK)
a('s_waitcnt lgkmcnt(0)')
for x in finish_sum(1, BRD1, BT1, BPK + 4, True):
    a(x)
publish_data(1, BPK + 4)
stamp2()
publish_stats([BT0, BT1], 36, 32)
b_mark = a.vm_mark()
a('v_lshlrev_b32 v236, 7, v0')
a('v_add_u32 v236, s%d, v236' % sPF)
for i in range(8, 16):
    a(c_wload(i))
CA = [2, 10]
XF, NXF = 18, 8
GTMP, GH = 50, 58
CCS, CB1, CB1R = 178, 186, 194
CSTR = 198
CMR = 214
VGA = 218
a('v_lshrrev_b32 v%d, 4, v0' % V_G)
a('v_and_b32 v%d, 15, v0' % V_TOK)
pair_base(sA, L.FB)
a('s_lshl_b32 s%d, s%d, 9' % (sB, sS))
a('s_add_u32 s%d, s%d, s%d' % (sA, sA, sB))
a('v_lshl_add_u32 v240, v0, 2, s%d' % sA)
a('s_mov_b32 s%d, 0x3fff3fff' % sMK)
a('s_mov_b32 s%d, 0x3fff3fff' % (sMK + 1))
pair_base(20, L.XB)
a('s_mul_i32 s%d, s%d, %d' % (sB, sS, 8 * 14336))
a('s_add_u32 s20, s20, s%d' % sB)
a('s_lshl_b32 s%d, s%d, 12' % (sB, sW))
a('s_add_u32 s20, s20, s%d' % sB)
a('s_add_u32 s21, s%d, %d' % (sB, L.L_R2))
pair_base(22, L.SB)
a('s_lshl_b32 s%d, s%d, 3' % (sB, sS))
a('s_add_u32 s%d, s%d, s%d' % (sB, sB, sW))
a('s_mul_i32 s%d, s%d, 1792' % (sB, sB))
a('s_add_u32 s22, s22, s%d' % sB)
a('s_add_u32 s23, s22, %d' % (4 * 1792))
pair_base(32, L.H)
a('s_mul_i32 s%d, s%d, %d' % (sB, sS, 8 * 56 * 1024))
a('s_add_u32 s32, s32, s%d' % sB)
a('s_lshl_b32 s%d, s%d, 2' % (sB, sCI))
a('s_add_u32 s%d, s%d, s%d' % (sB, sB, sW))
a('s_lshl_b32 s%d, s%d, 10' % (sCc, sB))
a('s_add_u32 s32, s32, s%d' % sCc)
pair_base(33, L.FC)
a('s_lshl_b32 s%d, s%d, 11' % (sCc, sS))
a('s_add_u32 s33, s33, s%d' % sCc)
a('s_lshl_b32 s%d, s%d, 2' % (sB, sB))
a('s_add_u32 s33, s33, s%d' % sB)
a('v_mov_b32 v241, s33')
a('v_mov_b32 v242, 0x%x' % INV)
a('v_cmp_eq_u32 vcc, 0, v0')
a('v_cndmask_b32 v241, v242, v241, vcc')
a('v_lshlrev_b32 v238, 3, v%d' % V_TOK)
a('v_lshl_add_u32 v238, v%d, 7, v238' % V_G)
a('v_mov_b32 v242, 0x%x' % INV)
a('v_cmp_lt_u32 vcc, 1, v%d' % V_G)
a('v_cndmask_b32 v239, 0, v242, vcc')
a('v_or_b32 v239, v239, v238')
a('v_add_u32 v252, %d, v1' % L.L_R2)
a('v_lshlrev_b32 v246, 3, v%d' % V_TOK)
a('v_add_u32 v246, %d, v246' % L.L_STC)
GA = 2.0 * 0.7978845608028654 * 1.4426950408889634
GB = GA * 0.044715
a('v_mov_b32 v%d, %s' % (VGA, f2h(-GA)))
a('v_mov_b32 v%d, %s' % (VGA + 1, f2h(-GA)))
a('s_mov_b32 s34, %s' % f2h(-GB))
a('s_mov_b32 s35, %s' % f2h(-GB))
wd_bases_hi = True
a.wait_vm(b_mark)
a('s_mov_b64 exec, 3')
store('buffer_store_dword v%d, v236, %s, 0 offen' % (V_T, srd(S_WS)), sPFC)
a('s_mov_b64 exec, -1')
stamp()

for i in range(16, 22):
    a(c_wload(i))
a('s_lshl_b32 s%d, s%d, 3' % (sA, sCI))
a('s_lshl_b32 s%d, s%d, 1' % (sB, sW))
a('s_add_u32 s%d, s%d, s%d' % (sA, sA, sB))
a('s_lshl_b32 s%d, s%d, 5' % (sB, sA))
a('v_lshlrev_b32 v248, 3, v%d' % V_G)
for k in range(2):
    a('buffer_load_dwordx2 %s, v248, %s, s%d offen offset:%d' % (vr(CB1R + 2 * k, 2), srd(S_B1), sB, 32 * k))
poll(240, 256)
stamp()


def c_dma_setup(t):
    return ['s_add_u32 s36, s20, %d' % (t * 14336), 's_add_u32 m0, s21, %d' % ((t & 3) * 16384)]


def c_dma(t, i):
    return 'buffer_load_dwordx4 v1, %s, s36 offen offset:%d sc1 lds' % (srd(S_WS), 1024 * i)


dm = {}
for x in c_dma_setup(0) + [c_dma(0, i) for i in range(4)]:
    a(x)
dm[0] = a.vm_mark()
wlate = {}
for i in range(22, 28):
    a(c_wload(i))
    wlate[i >> 1] = a.vm_mark()
for tt in range(2):
    for i in range(4):
        a('buffer_load_dwordx2 %s, v%d, %s, s%d offen offset:%d sc1' %
          (vr(CSTR + 8 * tt + 2 * i, 2), 239 if i == 3 else 238, srd(S_WS), 22 + tt, 512 * i))
cst_mark = a.vm_mark()
for x in c_dma_setup(1) + [c_dma(1, i) for i in range(4)]:
    a(x)
dm[1] = a.vm_mark()
for k in range(2):
    for p in range(2):
        a('v_lshlrev_b32 v%d, 16, v%d' % (CB1 + 4 * k + 2 * p, CB1R + 2 * k + p))
        a('v_and_b32 v%d, 0xffff0000, v%d' % (CB1 + 4 * k + 2 * p + 1, CB1R + 2 * k + p))
wd_bases()
a.wait_vm(dm[0])
a('s_barrier')
stamp()


def c_xread(t, u):
    n = t * 14 + u
    return 'ds_read_b128 %s, v252 offset:%d' % (vr(XF + 4 * (n % NXF)), (t & 3) * 16384 + u * 1024)


def gelu_pre(t):
    z, m = CA[t & 1], CMR + 2 * (t & 1)
    P = range(0, 8, 2)
    o = ['v_pk_fma_f32 %s, %s, %s, %s op_sel_hi:[1,0,1] neg_lo:[0,1,0] neg_hi:[0,1,0]' % (vr(z + e, 2), vr(CCS + e, 2), vr(m, 2), vr(z + e, 2)) for e in P]
    o += ['v_pk_fma_f32 %s, %s, %s, %s op_sel:[0,1,0] op_sel_hi:[1,1,1]' % (vr(z + e, 2), vr(z + e, 2), vr(m, 2), vr(CB1 + e, 2)) for e in P]
    o += ['v_pk_mul_f32 %s, %s, %s' % (vr(GTMP + e, 2), vr(z + e, 2), vr(z + e, 2)) for e in P]
    o += ['v_pk_fma_f32 %s, %s, s[34:35], %s' % (vr(GTMP + e, 2), vr(GTMP + e, 2), vr(VGA, 2)) for e in P]
    o += ['v_pk_mul_f32 %s, %s, %s' % (vr(GTMP + e, 2), vr(GTMP + e, 2), vr(z + e, 2)) for e in P]
    return o


def gelu_mid():
    o = {}
    for e in range(8):
        o.setdefault(2 * e, []).append('v_exp_f32 v%d, v%d' % (GTMP + e, GTMP + e))
        o.setdefault(2 * e + 3, []).append('v_add_f32 v%d, 1.0, v%d' % (GTMP + e, GTMP + e))
    for e in range(6):
        o.setdefault(16 + 2 * e, []).append('v_rcp_f32 v%d, v%d' % (GTMP + e, GTMP + e))
    o.setdefault(25, []).append('v_rcp_f32 v%d, v%d' % (GTMP + 6, GTMP + 6))
    o.setdefault(27, []).append('v_rcp_f32 v%d, v%d' % (GTMP + 7, GTMP + 7))
    return o


def gelu_post(t):
    z, h = CA[t & 1], GH + 4 * (t & 1)
    o = ['v_pk_mul_f32 %s, %s, %s' % (vr(GTMP + e, 2), vr(GTMP + e, 2), vr(z + e, 2)) for e in range(0, 8, 2)]
    o += ['v_cvt_pk_bf16_f32 v%d, v%d, v%d' % (h + p, GTMP + 2 * p, GTMP + 2 * p + 1) for p in range(4)]
    return o


def gelu_packed(t):
    z, m, h = CA[t & 1], CMR + 2 * (t & 1), GH + 4 * (t & 1)
    P = range(0, 8, 2)
    for e in P:
        a('v_pk_fma_f32 %s, %s, %s, %s op_sel_hi:[1,0,1] neg_lo:[0,1,0] neg_hi:[0,1,0]' % (vr(z + e, 2), vr(CCS + e, 2), vr(m, 2), vr(z + e, 2)))
    for e in P:
        a('v_pk_fma_f32 %s, %s, %s, %s op_sel:[0,1,0] op_sel_hi:[1,1,1]' % (vr(z + e, 2), vr(z + e, 2), vr(m, 2), vr(CB1 + e, 2)))
    for e in P:
        a('v_pk_mul_f32 %s, %s, %s' % (vr(GTMP + e, 2), vr(z + e, 2), vr(z + e, 2)))
    for e in P:
        a('v_pk_fma_f32 %s, %s, s[34:35], %s' % (vr(GTMP + e, 2), vr(GTMP + e, 2), vr(VGA, 2)))
    for e in P:
        a('v_pk_mul_f32 %s, %s, %s' % (vr(GTMP + e, 2), vr(GTMP + e, 2), vr(z + e, 2)))
    for e in range(8):
        a('v_exp_f32 v%d, v%d' % (GTMP + e, GTMP + e))
    for e in P:
        a('v_pk_add_f32 %s, %s, 1.0 op_sel_hi:[1,0]' % (vr(GTMP + e, 2), vr(GTMP + e, 2)))
    for e in range(8):
        a('v_rcp_f32 v%d, v%d' % (GTMP + e, GTMP + e))
    for e in P:
        a('v_pk_mul_f32 %s, %s, %s' % (vr(GTMP + e, 2), vr(GTMP + e, 2), vr(z + e, 2)))
    for p in range(4):
        a('v_cvt_pk_bf16_f32 v%d, v%d, v%d' % (h + p, GTMP + 2 * p, GTMP + 2 * p + 1))


hmk, fmk = {}, {}


def h_store(t):
    def f():
        a('s_add_u32 s24, s32, %d' % (t * 56 * 1024))
        store('buffer_store_dwordx4 %s, v1, %s, s24 offen' % (vr(GH + 4 * (t & 1)), srd(S_WS)), sFH)
        hmk[t] = a.vm_mark()
    return f


def h_flag(t):
    def f():
        a.wait_vm(hmk[t])
        store('buffer_store_dword v%d, v241, %s, 0 offen offset:%d' % (V_T, srd(S_WS), 256 * t), sFAST)
    return f


def wd_block(fis, wave):
    def f():
        skip = newlab('L_wd')
        a('s_cmp_eq_u32 s24, %d' % wave)
        a('s_cbranch_scc0 %s' % skip)
        for fi in fis:
            a(wd_load(fi))
            a.vm_issued -= 1
        a.label(skip)
    return f


cst_fill = []
for tt in range(2):
    r = CSTR + 8 * tt
    for c_ in range(2):
        cst_fill += ['v_add_f32 v%d, v%d, v%d' % (r + c_, r + c_, r + 2 + c_),
                     'v_add_f32 v%d, v%d, v%d' % (r + 4 + c_, r + 4 + c_, r + 6 + c_),
                     'v_add_f32 v%d, v%d, v%d' % (r + c_, r + c_, r + 4 + c_)]
    cst_fill += xg_reduce(r, r + 2) + xg_reduce(r + 1, r + 3) + stats_finish(r, r + 1, r + 2, True)
a('s_lshl_b32 s%d, s%d, 7' % (sA, sW))
a('v_add_u32 v247, s%d, v246' % sA)
cst_fill += ['ds_write_b64 v247, %s' % vr(CSTR, 2), 'ds_write_b64 v247, %s offset:512' % vr(CSTR + 8, 2)]
LOOKX = 6


A_CCS = 244


def emit_c_loop(wd_list):
    pass0 = bool(wd_list)
    if not pass0:
        for e in range(8):
            a('v_accvgpr_read_b32 v%d, a%d' % (CCS + e, A_CCS + e))
    for u in range(LOOKX):
        a(c_xread(0, u))
    for t in range(8):
        nonvec = {}

        def put(k, x):
            nonvec.setdefault(k, []).append(x)
        for u in range(14):
            n = t * 14 + u
            m = n + LOOKX
            if m < 8 * 14:
                put(2 * u + 1, c_xread(m // 14, m % 14))
            if u % 2 == 1 and n + 1 < 8 * 14:
                put(2 * u + 1, 's_waitcnt lgkmcnt(%d)' % min(LOOKX - 2, 8 * 14 - 1 - (n + 2)))
        if t < 7:
            nonvec[14] = [('bar', t + 1)] + nonvec.get(14, [])
        if t + 2 < 8:
            su = c_dma_setup(t + 2)
            put(0, su[0])
            put(0, su[1])
            for i in range(4):
                put(2 + 2 * i, ('dma', t + 2, i))
        if t >= 3:
            put(20, ('call', h_flag(t - 3)))
        if t == 7:
            def issue_d0():
                amark['d0'] = early_issue(244, 243)
            put(22, ('call', issue_d0))
        if t < 7:
            for k in (10, 12, 16, 18, 22, 24, 26):
                if wd_list:
                    put(k, wd_load(wd_list.pop(0)))
        if t > 0:
            put(17, 'ds_read_b64 %s, v246 offset:%d' % (vr(CMR + 2 * (t & 1), 2), 128 * t))
        valu = gelu_mid() if t >= 1 else {}
        if t >= 2:
            for x in gelu_post(t - 2):
                a(x)
            h_store(t - 2)()
        if t >= 1:
            for x in gelu_pre(t - 1):
                a(x)
        fill = list(cst_fill) if t == 0 else []
        first = 8
        fi = 0
        for k in range(28):
            u, kk = k >> 1, k & 1
            n = t * 14 + u
            if t == 0 and k == 0:
                a('s_waitcnt lgkmcnt(%d)' % (LOOKX - 2))
            if t == 0 and kk == 0 and u in wlate:
                a.wait_vm(wlate[u])
            if t == 0 and k == first:
                a.wait_vm(cst_mark)
            r = CA[t & 1] + 4 * kk
            a('%s %s, %s, %s, %s' % (MFMA, vr(r), vr(CWW + 4 * (2 * u + kk)), vr(XF + 4 * (n % NXF)), '0' if u == 0 else vr(r)))
            if pass0 and t == 0:
                a('%s %s, %s, %s, %s' % (MFMA, vr(CCS + 4 * kk), vr(CWW + 4 * (2 * u + kk)), ar(A_ONES), '0' if u == 0 else vr(CCS + 4 * kk)))
            for it in nonvec.get(k, []):
                if isinstance(it, str):
                    a(it)
                elif it[0] == 'bar':
                    a.wait_vm(dm[it[1]])
                    a('s_barrier')
                elif it[0] == 'dma':
                    a(c_dma(it[1], it[2]))
                    dm[it[1]] = a.vm_mark()
                elif it[0] == 'call':
                    it[1]()
            for x in valu.get(k, []):
                a(x)
            if fill and k >= first:
                want = -(-(len(fill)) * (k - first + 1) // (28 - first))
                while fi < want:
                    a(fill[fi])
                    fi += 1
        assert fi == len(fill)
        if t == 0:
            a('s_waitcnt lgkmcnt(0)')
            a('s_barrier')
            a('ds_read_b64 %s, v246 offset:0' % vr(CMR, 2))
            if pass0:
                for e in range(8):
                    a('v_accvgpr_write_b32 a%d, v%d' % (A_CCS + e, CCS + e))
            a('s_waitcnt lgkmcnt(0)')
    assert not wd_list


pair_base(sA, L.FC)
a('s_lshl_b32 s%d, s%d, 10' % (sB, sG))
a('s_add_u32 s%d, s%d, s%d' % (sA, sA, sB))
a('s_mul_i32 s%d, s%d, 56' % (sB, sW))
a('s_add_u32 s%d, s%d, s%d' % (sA, sA, sB))
a('v_lshl_add_u32 v243, v0, 2, s%d' % sA)
a('s_mov_b32 s%d, 0x3fff' % sMK2)
a('s_mov_b32 s%d, 0' % (sMK2 + 1))
n_before = a.vm_issued
dm_init = dict(dm)
a('s_cmp_eq_u32 s%d, 0' % sPAIR)
a('s_cbranch_scc0 L_c_loop1')
emit_c_loop(list(range(*WD_CH[1])))
a('s_branch L_c_done')
a.label('L_c_loop1')
extra = a.vm_issued - n_before
a.vm_issued = n_before
dm.clear()
dm.update(dm_init)
emit_c_loop([])
a.label('L_c_done')
stamp()
DH, DACC, DRD = 66, 130, 194
DRING, DLOOK = 16, 10
red_addrs()
publish_setup(L.XA[1], L.SA[1], L.FX[1], False, 5)
a('s_and_b32 s%d, s%d, 1' % (sA, sG))
a('s_lshr_b32 s%d, s%d, 1' % (sB, sW))
a('s_and_b32 s%d, s%d, s%d' % (sA, sA, sB))
a('s_xor_b32 s%d, s%d, 1' % (sA, sA))
a('s_and_b32 s%d, s%d, s%d' % (sPC, sFD, sA))
a('s_mov_b32 s%d, s%d' % (sPFC, sFAST))
a('s_cmp_eq_u32 s%d, 0' % sA)
a('s_cselect_b32 s%d, 0, 0x%x' % (sCc, INV))
a('s_add_u32 s%d, s%d, 1' % (sA, sS))
a('s_lshl_b32 s%d, s%d, 5' % (sA, sA))
a('s_lshl_b32 s%d, s%d, 1' % (sB, sJ))
a('s_add_u32 s%d, s%d, s%d' % (sA, sA, sB))
a('s_and_b32 s%d, s%d, 1' % (sB, sW))
a('s_add_u32 s%d, s%d, s%d' % (sA, sA, sB))
a('s_lshl_b32 s%d, s%d, 2' % (sA, sA))
a('s_add_u32 s%d, s%d, %d' % (sA, sA, L.FH))
a('s_or_b32 s20, s%d, s%d' % (sA, sCc))
pair_base(sA, L.H)
a('s_mul_i32 s%d, s%d, %d' % (sB, sG, 4 * 56 * 1024))
a('s_add_u32 s%d, s%d, s%d' % (sA, sA, sB))
a('s_mul_i32 s%d, s%d, %d' % (sB, sW, 14 * 1024))
a('s_add_u32 s%d, s%d, s%d' % (sO, sA, sB))
quarter_offsets(4, 56 * 1024)
a('s_cmp_eq_u32 s%d, 0' % sPAIR)
a('s_cbranch_scc1 L_d_nout')
owner_index()
a('s_mul_i32 s%d, s%d, 14336' % (sPX, sB))
a('s_lshl_b32 s%d, s%d, 6' % (sA, sA))
a('s_add_u32 s%d, s%d, s%d' % (sPX, sPX, sA))
a('s_add_u32 s%d, s%d, %d' % (sPX2, sPX, 2 * 14336))
a.label('L_d_nout')
a('v_and_b32 v%d, 15, v0' % V_TOK)
a('v_lshrrev_b32 v%d, 4, v0' % V_G)
a('v_mul_u32_u24 v242, 896, v%d' % V_TOK)
a('v_lshl_add_u32 v242, v%d, 3, v242' % V_G)
early_check(244, 243, amark['d0'])


def d_hload(q):
    tile, kk = divmod(q, 14)
    return ('buffer_load_dwordx4 %s, v1, %s, s%d offen offset:%d sc1' %
            (vr(DH + (q % DRING) * 4), srd(S_WS), sO + 4 * tile + (kk >> 2), 1024 * (kk & 3)))


hm = {}
dmk = {}
for q in range(DLOOK):
    a(d_hload(q))
    hm[q] = a.vm_mark()
    if q == 6:
        dmk[1] = early_issue(244, 243, 256)
stamp()
for x in gelu_post(6):
    a(x)
h_store(6)()
a('s_waitcnt lgkmcnt(0)')
gelu_packed(7)
h_flag(5)()
h_store(7)()
stamp()

a('s_barrier')
stamp()


def d_tile(tile):
    items = []
    for kk in range(14):
        q = tile * 14 + kk
        for t in range(4):
            r = DACC + (tile * 4 + t) * 4
            pre = [(lambda qq=q: a.wait_vm(hm[qq]))] if t == 0 else []
            if t == 0 and q in (3, 9):
                pre.append(h_flag({3: 6, 9: 7}[q]))
            post = None
            if t == 0 and q + DLOOK < 56:
                def post(qq=q + DLOOK):
                    if qq % 14 == 0:
                        early_check(244, 243, dmk[qq // 14], 256 * (qq // 14))
                    a(d_hload(qq))
                    hm[qq] = a.vm_mark()
                    if qq % 14 == 6 and qq // 14 < 3:
                        dmk[qq // 14 + 1] = early_issue(244, 243, 256 * (qq // 14 + 1))
            items.append((pre, '%s %s, %s, %s, %s' % (MFMA, vr(r), ar((kk * 4 + t) * 4), vr(DH + (q % DRING) * 4),
                                                      '0' if kk == 0 else vr(r)), post))
    return items


def d_out_store(st, pk):
    a('buffer_store_dwordx2 %s, v242, %s, s%d offen %s' % (vr(pk, 2), srd(S_OUT), sPX if st == 0 else sPX2, OUTSC))
    a('buffer_store_dwordx2 %s, v242, %s, s%d offen offset:32 %s' % (vr(pk + 2, 2), srd(S_OUT), sPX if st == 0 else sPX2, OUTSC))


def d_store(st, pk):
    fin, done = newlab('L_dfin'), newlab('L_ddone')
    a('s_cmp_eq_u32 s%d, 0' % sPAIR)
    a('s_cbranch_scc0 %s' % fin)
    publish_data(st, pk)
    a('s_branch %s' % done)
    a.label(fin)
    n = a.vm_issued
    d_out_store(st, pk)
    a.vm_issued = n
    a.label(done)


DT0, DT1, DPK, DSTT, DSTS = 226, 2, 18, 28, 36
stage0 = [lambda: (a('s_waitcnt lgkmcnt(0)'), a('s_barrier'))] + red_reads(0, DRD) + finish_pre(0, True, DT0)
stage0 += [lambda: a('s_waitcnt lgkmcnt(0)')] + finish_sum(0, DRD, DT0, DPK, False) + [lambda: d_store(0, DPK)]
run_tiles(d_tile, {1: red_writes(DACC, 0), 2: red_writes(DACC + 16, 1), 3: red_writes(DACC + 32, 2) + stage0})
stamp2()
for x in red_writes(DACC + 48, 3):
    a(x)
for x in finish_pre(1, True, DT1):
    a(x)
a('s_waitcnt lgkmcnt(0)')
a('s_barrier')
stamp2()
for x in red_reads(1, DRD):
    a(x)
a('s_waitcnt lgkmcnt(0)')
for x in finish_sum(1, DRD, DT1, DPK + 4, True):
    a(x)
d_store(1, DPK + 4)
stamp()
a('s_cmp_eq_u32 s%d, 0' % sPAIR)
a('s_cbranch_scc0 L_next_pair')
publish_flags(8)
a('v_mov_b32 v241, s20')
a('s_mov_b64 exec, 1')
a('buffer_store_dword v%d, v241, %s, 0 offen sc1' % (V_T, srd(S_WS)))
a('s_mov_b64 exec, -1')
publish_stats([DT0, DT1], DSTT, DSTS)
if STWAIT:
    a('s_waitcnt vmcnt(0)')
a('v_lshlrev_b32 v242, 8, v0')
a('s_add_u32 s%d, s%d, %d' % (sA, sPF, L.FSA - L.FX[1]))
a('v_add_u32 v242, s%d, v242' % sA)
a('s_add_u32 s20, s20, %d' % (L.FSH - L.FH))
a('v_mov_b32 v243, s20')
a('s_branch L_next_pair2')
a.label('L_next_pair')
a('v_mov_b32 v242, 0x%x' % INV)
a('v_mov_b32 v243, 0x%x' % INV)
a.label('L_next_pair2')
stamp()
a('s_add_u32 s%d, s%d, 1' % (sPAIR, sPAIR))
a('s_cmp_lt_u32 s%d, 2' % sPAIR)
a('s_cbranch_scc1 L_pair')

a('s_cmp_eq_u32 s2, 0')
a('s_cbranch_scc0 L_noepoch')
a('s_cmp_eq_u32 s%d, 0' % sW)
a('s_cbranch_scc0 L_noepoch')
a('buffer_load_dword v2, off, %s, 0 sc1' % srd(S_WS))
a('s_waitcnt vmcnt(0)')
a('v_add_u32 v2, 1, v2')
a('s_mov_b64 exec, 1')
a('buffer_store_dword v2, off, %s, 0 sc1' % srd(S_WS))
a('s_mov_b64 exec, -1')
a.label('L_noepoch')
if PAD:
    a.label('L_padspin')
    a('s_memrealtime s[34:35]')
    a('s_waitcnt lgkmcnt(0)')
    a('s_sub_u32 s34, s34, s0')
    a('s_cmp_lt_u32 s34, %d' % PAD[0])
    a('s_cbranch_scc1 L_padspin')
if DBG:
    a('s_memtime s[32:33]')
    a('s_memrealtime s[34:35]')
    a('s_waitcnt lgkmcnt(0)')
    a('s_sub_u32 s32, s32, s26')
    a('s_sub_u32 s34, s34, s0')
    build_srd(S_TMP, P_DBG, 256)
    a('v_mov_b32 v2, s32')
    a('v_mov_b32 v3, s34')
    a('v_mov_b32 v4, s%d' % sFAST)
    a('v_mov_b32 v5, s%d' % sXCC)
    a('s_lshr_b32 s%d, s2, 6' % sA)
    a('s_lshl_b32 s%d, s%d, 4' % (sA, sA))
    a('s_and_b32 s%d, s2, 63' % sB)
    a('s_or_b32 s%d, s%d, s%d' % (sB, sB, sW))
    a('s_cmp_eq_u32 s%d, 0' % sB)
    a('s_cselect_b32 s%d, s%d, 0x%x' % (sA, sA, INV))
    a('v_mov_b32 v6, s%d' % sA)
    a('s_mov_b64 exec, 1')
    a('buffer_store_dwordx4 v[2:5], v6, %s, 0 offen' % srd(S_TMP))
    a('s_mov_b64 exec, -1')
if DIAG:
    stamp()
    a('s_mov_b32 s%d, 63' % sSTI)
    a('s_lshl_b64 exec, 1, s%d' % sSTI)
    a('v_mov_b32 v%d, s%d' % (V_STAMP, sERR))
    a('s_mov_b32 s%d, 62' % sSTI)
    a('s_lshl_b64 exec, 1, s%d' % sSTI)
    a('v_mov_b32 v%d, s%d' % (V_STAMP, sFAST))
    a('s_mov_b64 exec, -1')
    a('s_lshl_b32 s%d, s2, 2' % sA)
    a('s_add_u32 s%d, s%d, s%d' % (sA, sA, sW))
    a('s_lshl_b32 s%d, s%d, 8' % (sA, sA))
    a('v_lshlrev_b32 v2, 2, v0')
    a('s_add_u32 s%d, s%d, %d' % (sA, sA, L.WS_USED))
    a('s_mov_b32 s%d, 0x%x' % (S_WS + 2, L.WS_USED + 256 * 1024))
    a('buffer_store_dword v%d, v2, %s, s%d offen' % (V_STAMP, srd(S_WS), sA))
    if DBGST:
        build_srd(S_TMP, P_DBG, 256)
        a('v_readfirstlane_b32 s%d, v%d' % (sA, V_STAMP))
        a('s_nop 4')
        a('v_subrev_u32 v3, s%d, v%d' % (sA, V_STAMP))
        a('s_or_b32 s%d, s2, s%d' % (sB, sW))
        a('s_cmp_eq_u32 s%d, 0' % sB)
        a('s_cselect_b32 s%d, 0, 0x%x' % (sB, INV))
        a('v_or_b32 v2, s%d, v2' % sB)
        SEL = [int(x[6:]) for x in sys.argv if x.startswith('--sel=')]
        sel = SEL[0] if SEL else 1
        a('v_subrev_u32 v2, %d, v2' % (4 * sel))
        a('buffer_store_dword v3, v2, %s, 0 offen' % srd(S_TMP))
a.label('L_end')
a('s_endpgm')

a.finalize()
body = a.text()

import os
hdr = open(os.path.join(os.path.dirname(os.path.abspath(__file__)), 'header.txt')).read()
out = hdr + '; @launch grid=(256,1,1) block=(256,1,1) lds=%d\n' % L.LDS_BYTES
out += '.amdgcn_target "amdgcn-amd-amdhsa--gfx950"\n.text\n.globl %s_kernel\n.p2align 8\n.type %s_kernel,@function\n%s_kernel:\n' % (NAME, NAME, NAME)
out += body
out += '''.section .rodata,"a"
.p2align 6
.amdhsa_kernel %s_kernel
  .amdhsa_next_free_vgpr 512
  .amdhsa_next_free_sgpr 102
  .amdhsa_accum_offset 256
  .amdhsa_group_segment_fixed_size 0
  .amdhsa_kernarg_size 88
  .amdhsa_user_sgpr_count 2
  .amdhsa_user_sgpr_kernarg_segment_ptr 1
  .amdhsa_system_sgpr_workgroup_id_x 1
.end_amdhsa_kernel
''' % NAME
sys.stdout.write(out)
```

```python
import struct
import sys
from asmlib import Asm
import layout as L

NAME = 'interleave_layers__sliding_local_dilated__mixer_channel_mlp__prompt'
DIAG = '--diag' in sys.argv
FASTMODE = ([x[7:] for x in sys.argv if x.startswith('--fast=')] + ['flags'])[0]
NOFAST = FASTMODE == 'none'
PAD = [int(x[6:]) for x in sys.argv if x.startswith('--pad=')]
DBG = '--dbg' in sys.argv or bool(PAD)
SPIN_LIMIT = 200000
OUTSC = ([x[8:] for x in sys.argv if x.startswith('--outsc=')] + [''])[0].replace('_', ' ')
SLEEP = int(([x[8:] for x in sys.argv if x.startswith('--sleep=')] + ['0'])[0])
INV = 0x80000000

a = Asm()

sXCC = 3
S_WS, S_TMP, S_B1, S_OUT = 4, 8, 12, 16
P_X, P_WQKV, P_WO, P_BX, P_W1, P_B1, P_W2, P_B2, P_OUT, P_DBG, P_WSP = 20, 22, 24, 26, 28, 30, 32, 34, 36, 38, 40
sS, sC, sG, sJ, sW, sT, sPAIR, sSPIN = 42, 43, 44, 45, 46, 47, 48, 49
sM1 = 50
sM2 = 58
sM0 = 66
sO = 74
sA, sB, sCc, sD = 90, 91, 92, 93
sMK = 94
sTS = 96
sGT = 98
sERR = 99
sSTI = 100
sFAST = 101
sFD = 27
sPFC = 26
sFH = 25


def srd(n):
    return 's[%d:%d]' % (n, n + 3)


def vr(n, k=4):
    return 'v[%d:%d]' % (n, n + k - 1)


def ar(n, k=4):
    return 'a[%d:%d]' % (n, n + k - 1)


def sp(n):
    return 's[%d:%d]' % (n, n + 1)


def f2h(x):
    return '0x%08x' % struct.unpack('<I', struct.pack('<f', x))[0]


V_T, V_STAMP = 254, 255
V_TOK, V_G = 250, 251
MFMA = 'v_mfma_f32_16x16x32_bf16'


DIAG2 = '--diag2' in sys.argv
PREF = '--pref' in sys.argv
TOUCH = '--notouch' not in sys.argv
STWAIT = '--stwait' in sys.argv
P2EARLY = '--p2early' in sys.argv
SKEW = [int(x[7:]) for x in sys.argv if x.startswith('--skew=')]
DBGST = '--dbgst' in sys.argv


def stamp2():
    if DIAG2:
        stamp()


def stamp():
    if not DIAG:
        return
    a('%s %s' % ('s_memrealtime' if '--rt' in sys.argv else 's_memtime', sp(sTS)))
    a('s_waitcnt lgkmcnt(0)')
    a('s_lshl_b64 exec, 1, s%d' % sSTI)
    a('v_mov_b32 v%d, s%d' % (V_STAMP, sTS))
    a('s_mov_b64 exec, -1')
    a('s_add_u32 s%d, s%d, 1' % (sSTI, sSTI))


lab_no = [0]


def newlab(p):
    lab_no[0] += 1
    return '%s_%d' % (p, lab_no[0])


def skew_store(point, have=False):
    if not SKEW or SKEW[0] != point:
        return
    if not have:
        a('s_memrealtime s[96:97]')
        a('s_waitcnt lgkmcnt(0)')
    build_srd(S_TMP, P_DBG, 256)
    a('s_and_b32 s%d, s2, 15' % sA)
    a('s_or_b32 s%d, s%d, s%d' % (sA, sA, sW))
    a('s_cmp_eq_u32 s%d, 0' % sA)
    a('s_cselect_b32 s%d, 0, 0x%x' % (sA, INV))
    a('s_lshr_b32 s%d, s2, 2' % sB)
    a('s_or_b32 s%d, s%d, s%d' % (sA, sA, sB))
    a('v_mov_b32 v21, s%d' % sA)
    a('v_mov_b32 v22, s96')
    a('s_mov_b64 exec, 1')
    a('buffer_store_dword v22, v21, %s, 0 offen' % srd(S_TMP))
    a.vm_issued -= 1
    a('s_mov_b64 exec, -1')


def build_srd(dst, ptr, nbytes):
    a('s_mov_b32 s%d, s%d' % (dst, ptr))
    a('s_and_b32 s%d, s%d, 0xffff' % (dst + 1, ptr + 1))
    a('s_mov_b32 s%d, 0x%x' % (dst + 2, nbytes))
    a('s_mov_b32 s%d, 0x20000' % (dst + 3))


def poll(voff, off2=None, sleep=None):
    lab, done = newlab('L_poll'), newlab('L_polldone')
    a('s_mov_b64 exec, %s' % sp(sMK))
    a('s_mov_b32 s%d, 0' % sSPIN)
    a.label(lab)
    a('buffer_load_dword v253, v%d, %s, 0 offen sc1' % (voff, srd(S_WS)))
    if off2 is not None:
        a('buffer_load_dword v245, v%d, %s, 0 offen offset:%d sc1' % (voff, srd(S_WS), off2))
    a('s_waitcnt vmcnt(0)')
    if off2 is not None:
        a('v_xor_b32 v245, s%d, v245' % sT)
        a('v_xor_b32 v253, s%d, v253' % sT)
        a('v_or_b32 v253, v253, v245')
        a('v_cmp_ne_u32 vcc, 0, v253')
    else:
        a('v_cmp_ne_u32 vcc, s%d, v253' % sT)
    a('s_nop 4')
    a('s_cbranch_vccz %s' % done)
    if sleep or SLEEP:
        a('s_sleep %d' % (sleep or SLEEP))
    a('s_add_u32 s%d, s%d, 1' % (sSPIN, sSPIN))
    a('s_cmp_lt_u32 s%d, %d' % (sSPIN, SPIN_LIMIT))
    a('s_cbranch_scc1 %s' % lab)
    a('s_add_u32 s%d, s%d, 1' % (sERR, sERR))
    a.label(done)
    a('s_mov_b64 exec, -1')


sMK2 = 30


def early_issue(dst, voff, off=0):
    a('s_mov_b64 exec, %s' % sp(sMK2))
    a('buffer_load_dword v%d, v%d, %s, 0 offen offset:%d sc1' % (dst, voff, srd(S_WS), off))
    a('s_mov_b64 exec, -1')
    return a.vm_mark()


def early_check(dst, voff, mark, off=0):
    ok = newlab('L_early')
    a.wait_vm(mark)
    a('s_mov_b64 exec, %s' % sp(sMK2))
    a('v_cmp_ne_u32 vcc, s%d, v%d' % (sT, dst))
    a('s_mov_b64 exec, -1')
    a('s_nop 2')
    a('s_cbranch_vccz %s' % ok)
    a('s_mov_b64 %s, %s' % (sp(sMK), sp(sMK2)))
    n = a.vm_issued
    if off:
        a('v_add_u32 v253, %d, v%d' % (off, voff))
        a('v_mov_b32 v%d, v253' % dst)
        poll(dst)
    else:
        poll(voff)
    a.vm_issued = n
    a.label(ok)


def store(fmt, cond=None):
    if cond is None or NOFAST or (FASTMODE == 'flags' and cond in (sFD, sFH, sPC)):
        a(fmt + ' sc1')
        return
    slow, done = newlab('L_slow'), newlab('L_st')
    a('s_cmp_eq_u32 s%d, 0' % cond)
    a('s_cbranch_scc1 %s' % slow)
    a(fmt)
    a('s_branch %s' % done)
    a.label(slow)
    a(fmt + ' sc1')
    a.vm_issued -= 1
    a.label(done)


def set_flags(voff, nlanes, cond=None, val=V_T, between=()):
    mark = a.vm_mark()
    for x in between:
        a(x)
    a.wait_vm(mark)
    a('s_mov_b64 exec, %d' % ((1 << nlanes) - 1))
    store('buffer_store_dword v%d, v%d, %s, 0 offen' % (val, voff, srd(S_WS)), cond)
    a('s_mov_b64 exec, -1')


def xg_reduce(x, t, op='v_add_f32'):
    return ['v_mov_b32 v%d, v%d' % (t, x),
            'v_permlane32_swap_b32 v%d, v%d' % (x, t),
            '%s v%d, v%d, v%d' % (op, x, x, t),
            'v_mov_b32 v%d, v%d' % (t, x),
            'v_permlane16_swap_b32 v%d, v%d' % (x, t),
            '%s v%d, v%d, v%d' % (op, x, x, t)]


EPS = 1e-5


def stats_finish(s1, s2, t, double_ln):
    o = ['v_mul_f32 v%d, %s, v%d' % (s1, f2h(1.0 / 448), s1),
         'v_mul_f32 v%d, %s, v%d' % (s2, f2h(1.0 / 448), s2),
         'v_fma_f32 v%d, -v%d, v%d, v%d' % (s2, s1, s1, s2),
         'v_max_f32 v%d, 0, v%d' % (s2, s2),
         'v_add_f32 v%d, %s, v%d' % (t, f2h(EPS), s2),
         'v_rsq_f32 v%d, v%d' % (t, t)]
    if not double_ln:
        o += ['v_mov_b32 v%d, v%d' % (s2, t)]
    else:
        o += ['v_mul_f32 v%d, v%d, v%d' % (s2, s2, t),
              'v_fmaak_f32 v%d, v%d, v%d, %s' % (s2, s2, t, f2h(EPS)),
              'v_rsq_f32 v%d, v%d' % (s2, s2),
              'v_mul_f32 v%d, v%d, v%d' % (s2, s2, t)]
    return o


def pair_base(dst, arr):
    a('s_mul_i32 s%d, s%d, %d' % (dst, sPAIR, arr[1] - arr[0]))
    a('s_add_u32 s%d, s%d, %d' % (dst, dst, arr[0]))


def quarter_offsets(n, stride):
    for t in range(n):
        if t:
            a('s_add_u32 s%d, s%d, %d' % (sO + 4 * t, sO + 4 * (t - 1), stride))
        for q in range(1, 4):
            a('s_add_u32 s%d, s%d, %d' % (sO + 4 * t + q, sO + 4 * t, 4096 * q))


sPX, sPS, sPF, sPC, sPX2 = 36, 37, 28, 29, 33


def stats_flags(delta, lsh):
    a('v_lshlrev_b32 v241, %d, v0' % lsh)
    a('s_add_u32 s%d, s%d, %d' % (sA, sPF, delta))
    a('v_add_u32 v241, s%d, v241' % sA)
    a('s_mov_b64 exec, 3')
    store('buffer_store_dword v%d, v241, %s, 0 offen' % (V_T, srd(S_WS)), sPFC)
    a('s_mov_b64 exec, -1')


a('s_cmp_ge_u32 s2, 256')
a('s_cbranch_scc1 L_end')
a('s_load_dwordx16 s[20:35], s[0:1], 0')
a('s_load_dwordx4 s[36:39], s[0:1], 64')
a('s_load_dwordx2 s[40:41], s[0:1], 80')
a('s_getreg_b32 s%d, hwreg(HW_REG_XCC_ID, 0, 4)' % sXCC)
a('s_and_b32 s%d, s2, 7' % sA)
a('s_lshr_b32 s%d, s2, 3' % sB)
a('s_lshr_b32 s%d, s%d, 4' % (sCc, sB))
a('s_lshl_b32 s%d, s%d, 1' % (sS, sA))
a('s_add_u32 s%d, s%d, s%d' % (sS, sS, sCc))
a('s_and_b32 s%d, s%d, 15' % (sC, sB))
a('s_lshr_b32 s%d, s%d, 3' % (sA, sC))
a('s_lshl_b32 s%d, s%d, 1' % (sG, sS))
a('s_add_u32 s%d, s%d, s%d' % (sG, sG, sA))
a('s_and_b32 s%d, s%d, 7' % (sJ, sC))
a('s_mov_b32 s%d, 0' % sERR)
if SKEW and SKEW[0] == 0:
    a('s_memrealtime s[96:97]')
if PREF:
    a('s_getpc_b64 s[96:97]')
    a.label('L_pc')
    a('s_lshl_b32 s%d, s%d, 11' % (sA, sB))
    a('v_lshlrev_b32 v3, 3, v0')
    a('v_add_u32 v3, s%d, v3' % sA)
    a('v_min_u32 v3, L_end-L_pc-8, v3')
    a('global_load_dwordx2 v[252:253], v3, s[96:97]')
a('v_lshrrev_b32 v2, 6, v0')
a('v_and_b32 v0, 63, v0')
a('v_readfirstlane_b32 s%d, v2' % sW)
a('v_lshlrev_b32 v1, 4, v0')
if DIAG:
    a('v_mov_b32 v%d, 0' % V_STAMP)
    a('s_mov_b32 s%d, 0' % sSTI)
stamp()
a('v_and_b32 v%d, 15, v0' % V_TOK)
a('v_lshrrev_b32 v%d, 4, v0' % V_G)
sSTG = 40
a('s_waitcnt lgkmcnt(0)')
if DBG:
    a('s_memtime s[26:27]')
    a('s_memrealtime s[0:1]')
    a('s_waitcnt lgkmcnt(0)')
skew_store(0, True)
build_srd(S_WS, P_WSP, L.WS_USED)
a('buffer_load_dword v%d, off, %s, 0 sc1' % (V_T, srd(S_WS)))
a('s_lshl_b32 s%d, s%d, 14' % (sSTG, sW))
a('s_add_u32 s%d, s%d, %d' % (sSTG, sSTG, L.L_R2))

build_srd(S_TMP, P_X, 2048 * 896)
a('v_mul_u32_u24 v2, 896, v%d' % V_TOK)
a('v_lshl_add_u32 v2, v%d, 3, v2' % V_G)
a('s_lshr_b32 s%d, s%d, 1' % (sA, sC))
a('s_lshl_b32 s%d, s%d, 3' % (sB, sS))
a('s_add_u32 s%d, s%d, s%d' % (sO + 0, sA, sB))
a('s_and_b32 s%d, s%d, 1' % (sA, sC))
a('s_mul_i32 s%d, s%d, 7' % (sA, sA))
a('s_add_u32 s%d, s%d, s%d' % (sO + 1, sA, sW))
a('s_cmp_lt_u32 s%d, 3' % sW)
a('s_cselect_b32 s%d, 0, 0x%x' % (sO + 2, INV))
a('s_mul_i32 s%d, s%d, 14336' % (sA, sO + 0))
a('s_lshl_b32 s%d, s%d, 6' % (sB, sO + 1))
a('s_add_u32 s%d, s%d, s%d' % (sA, sA, sB))
a('v_or_b32 v3, s%d, v2' % (sO + 2))
a('buffer_load_dwordx2 v[10:11], v2, %s, s%d offen' % (srd(S_TMP), sA))
a('buffer_load_dwordx2 v[12:13], v2, %s, s%d offen offset:32' % (srd(S_TMP), sA))
a('buffer_load_dwordx2 v[14:15], v3, %s, s%d offen offset:256' % (srd(S_TMP), sA))
a('buffer_load_dwordx2 v[16:17], v3, %s, s%d offen offset:288' % (srd(S_TMP), sA))

build_srd(S_TMP, P_WQKV, 448 * 2688)
qMAT, qU, qINV = sO + 3, sO + 4, sO + 5
a('s_lshl_b32 s%d, s%d, 4' % (sA, sW))
a('s_add_u32 s%d, s%d, s%d' % (sA, sA, sS))
a('s_cmp_lt_u32 s%d, 42' % sA)
a('s_cselect_b32 s%d, 0, 0x%x' % (qINV, INV))
a('s_min_u32 s%d, s%d, 41' % (sA, sA))
a('s_mul_i32 s%d, s%d, 4682' % (qMAT, sA))
a('s_lshr_b32 s%d, s%d, 16' % (qMAT, qMAT))
a('s_mul_i32 s%d, s%d, 14' % (sB, qMAT))
a('s_sub_u32 s%d, s%d, s%d' % (qU, sA, sB))
a('s_mul_i32 s%d, s%d, %d' % (sA, qU, 32 * 2688))
a('s_mul_i32 s%d, s%d, 896' % (sB, qMAT))
a('s_add_u32 s%d, s%d, s%d' % (sA, sA, sB))
a('s_mul_i32 s%d, s%d, 56' % (sB, sC))
a('s_add_u32 s%d, s%d, s%d' % (sA, sA, sB))
a('v_lshrrev_b32 v4, 2, v0')
a('v_mul_u32_u24 v4, 2688, v4')
a('v_and_b32 v5, 3, v0')
a('v_lshl_add_u32 v4, v5, 4, v4')
a('v_or_b32 v4, s%d, v4' % qINV)
a('s_mov_b32 m0, s%d' % sSTG)
a('s_add_u32 s%d, s%d, %d' % (sB, sA, 16 * 2688))
a('buffer_load_dwordx4 v4, %s, s%d offen lds' % (srd(S_TMP), sA))
a('s_add_u32 m0, s%d, 1024' % sSTG)
a('s_nop 0')
a('buffer_load_dwordx4 v4, %s, s%d offen lds' % (srd(S_TMP), sB))

bINV, bDST, bSTR, bINV2, bDST2, sSTRD = 20, 21, 22, 23, 24, 25


def emit_p2_issue():
    a('s_cmp_eq_u32 s%d, 3' % sW)
    a('s_cbranch_scc1 L_p2_w1')
    a('s_lshl_b32 s%d, s%d, 5' % (sA, sW))
    a('s_add_u32 s%d, s%d, s%d' % (sA, sA, sG))
    a('s_cmp_lt_u32 s%d, 72' % sA)
    a('s_cselect_b32 s%d, 0, 0x%x' % (bINV, INV))
    a('s_cmp_eq_u32 s%d, 7' % sJ)
    a('s_cselect_b32 s%d, 0x%x, s%d' % (bINV, INV, bINV))
    a('s_min_u32 s%d, s%d, 71' % (sA, sA))
    a('s_min_u32 s%d, s%d, 6' % (sD, sJ))
    a('s_cmp_lt_u32 s%d, 16' % sA)
    a('s_cselect_b32 s%d, s%d, s%d' % (S_TMP, P_WO, P_W2))
    a('s_cselect_b32 s%d, s%d, s%d' % (S_TMP + 1, P_WO + 1, P_W2 + 1))
    a('s_mov_b32 s%d, 0x%x' % (S_TMP + 2, 1792 * 896))
    a('s_cselect_b32 s%d, 0x%x, s%d' % (S_TMP + 2, 448 * 896, S_TMP + 2))
    a('s_cselect_b32 s%d, 28, 32' % sB)
    a('s_cselect_b32 s%d, 0, 16' % sCc)
    a('s_mov_b32 s%d, %d' % (bSTR, 56 * 1024))
    a('s_cselect_b32 s%d, %d, s%d' % (bSTR, 16 * 1024, bSTR))
    a('s_mov_b32 s%d, %d' % (bDST, L.WD))
    a('s_cselect_b32 s%d, %d, s%d' % (bDST, L.WB, bDST))
    a('s_cselect_b32 s%d, 0x%x, 0' % (sO + 9, INV))
    a('s_and_b32 s%d, s%d, 0xffff' % (S_TMP + 1, S_TMP + 1))
    a('s_mov_b32 s%d, 0x20000' % (S_TMP + 3))
    a('s_sub_u32 s%d, s%d, s%d' % (sA, sA, sCc))
    a('s_lshl_b32 s%d, s%d, 10' % (sCc, sA))
    a('s_add_u32 s%d, s%d, s%d' % (bDST, bDST, sCc))
    a('s_lshl_b32 s%d, s%d, 2' % (sCc, sD))
    a('s_mul_i32 s%d, s%d, s%d' % (sCc, sCc, bSTR))
    a('s_add_u32 s%d, s%d, s%d' % (bDST, bDST, sCc))
    a('s_mul_i32 s%d, s%d, s%d' % (sA, sA, sB))
    a('s_mul_i32 s%d, s%d, 896' % (sA, sA))
    a('s_lshl_b32 s%d, s%d, 7' % (sB, sD))
    a('s_add_u32 s%d, s%d, s%d' % (sO + 10, sA, sB))
    a('s_mov_b32 s%d, 896' % sSTRD)
    a('s_mov_b32 s%d, 0x%x' % (bINV2, INV))
    a('s_mov_b32 s%d, 0' % bDST2)
    a('s_mov_b32 s%d, 0' % (sO + 11))
    a('s_branch L_p2_go')
    a.label('L_p2_w1')
    build_srd(S_TMP, P_W1, 448 * 3584)
    a('s_lshl_b32 s%d, s%d, 4' % (sA, sS))
    a('s_add_u32 s%d, s%d, s%d' % (sA, sA, sC))
    a('s_cmp_lt_u32 s%d, 136' % sA)
    a('s_cselect_b32 s%d, 0, 0x%x' % (bINV2, INV))
    a('s_mov_b32 s%d, 0' % bINV)
    a('s_mov_b32 s%d, 0' % (sO + 9))
    a('s_mov_b32 s%d, %d' % (bSTR, 14 * 1024))
    a('s_mov_b32 s%d, 3584' % sSTRD)
    for dst, src, add in ((bDST, sO + 10, 0), (bDST2, sO + 11, 256)):
        a('s_add_u32 s%d, s%d, %d' % (sB, sA, add))
        a('s_min_u32 s%d, s%d, 391' % (sB, sB))
        a('s_mul_i32 s%d, s%d, 4682' % (sCc, sB))
        a('s_lshr_b32 s%d, s%d, 16' % (sCc, sCc))
        a('s_mul_i32 s%d, s%d, 14' % (sD, sCc))
        a('s_sub_u32 s%d, s%d, s%d' % (sB, sB, sD))
        a('s_mul_i32 s%d, s%d, %d' % (src, sB, 32 * 3584))
        a('s_lshl_b32 s%d, s%d, 7' % (sD, sCc))
        a('s_add_u32 s%d, s%d, s%d' % (src, src, sD))
        a('s_mul_i32 s%d, s%d, 56' % (sD, sCc))
        a('s_add_u32 s%d, s%d, s%d' % (sD, sD, sB))
        a('s_lshl_b32 s%d, s%d, 10' % (sD, sD))
        a('s_add_u32 s%d, s%d, %d' % (dst, sD, L.WC))
    a.label('L_p2_go')
    a('v_lshrrev_b32 v6, 3, v0')
    a('v_mul_lo_u32 v6, v6, s%d' % sSTRD)
    a('v_and_b32 v5, 7, v0')
    a('v_lshl_add_u32 v6, v5, 4, v6')
    a('v_or_b32 v8, s%d, v6' % bINV2)
    a('v_or_b32 v6, s%d, v6' % bINV)
    a('v_cmp_lt_u32 vcc, 31, v0')
    a('v_mov_b32 v7, s%d' % (sO + 9))
    a('v_cndmask_b32 v7, 0, v7, vcc')
    a('v_or_b32 v7, v7, v6')
    a('s_lshl_b32 s%d, s%d, 3' % (sB, sSTRD))
    for slot in range(2):
        src = sO + 10 + slot
        for q in range(4):
            a('s_add_u32 m0, s%d, %d' % (sSTG, 2048 + 4096 * slot + 1024 * q))
            if q:
                a('s_add_u32 s%d, s%d, s%d' % (src, src, sB))
            else:
                a('s_nop 0')
            a('buffer_load_dwordx4 v%d, %s, s%d offen lds' % (8 if slot else (7 if q == 3 else 6), srd(S_TMP), src))


if P2EARLY:
    emit_p2_issue()
build_srd(S_B1, P_B1, 1792 * 2)
build_srd(S_OUT, P_OUT, 2048 * 896)
a('v_bfe_u32 v18, v0, 2, 2')
a('v_lshl_add_u32 v18, v%d, 2, v18' % V_G)
a('v_and_b32 v19, 3, v0')
a('v_lshlrev_b32 v19, 3, v19')
if TOUCH:
    a('v_lshlrev_b32 v21, 21, v0')
    a('s_mov_b64 exec, 0x1ffff')
    a('buffer_load_dword v253, v21, %s, 0 offen' % srd(S_WS))
    a('s_mov_b64 exec, -1')
    a('s_waitcnt vmcnt(%d)' % (9 if P2EARLY else 1))
else:
    a('s_waitcnt vmcnt(%d)' % (8 if P2EARLY else 0))
stamp()

a('s_mov_b32 s%d, 0x9E3779B1' % sA)
a('v_mul_lo_u32 v%d, v%d, s%d' % (V_T, V_T, sA))
a('v_add_u32 v%d, 0x7F4A7C15, v%d' % (V_T, V_T))
a('v_and_b32 v%d, -16, v%d' % (V_T, V_T))
a('v_lshl_add_u32 v20, v18, 6, v19')
a('v_add_u32 v20, s%d, v20' % sSTG)
for hf in range(2):
    a('ds_read_b64_tr_b16 %s, v20 offset:%d' % (vr(24 + 4 * hf, 2), 32 * hf))
    a('ds_read_b64_tr_b16 %s, v20 offset:%d' % (vr(26 + 4 * hf, 2), 32 * hf + 1024))
a('v_readfirstlane_b32 s%d, v%d' % (sT, V_T))
a('s_mul_i32 s%d, s%d, 14' % (sA, sO + 0))
a('s_add_u32 s%d, s%d, s%d' % (sA, sA, sO + 1))
a('s_lshl_b32 s%d, s%d, 10' % (sB, sA))
a('s_add_u32 s%d, s%d, %d' % (sB, sB, L.XA[0]))
a('v_or_b32 v3, s%d, v1' % (sO + 2))
a('buffer_store_dwordx4 v[10:13], v1, %s, s%d offen sc1' % (srd(S_WS), sB))
a('s_add_u32 s%d, s%d, 4096' % (sB, sB))
a('buffer_store_dwordx4 v[14:17], v3, %s, s%d offen sc1' % (srd(S_WS), sB))
a('v_cmp_gt_u32 vcc, 12, v%d' % V_TOK)
a('s_mul_i32 s%d, s%d, 84' % (sB, sC))
a('s_mul_i32 s%d, s%d, 28' % (sCc, qMAT))
a('s_add_u32 s%d, s%d, s%d' % (sB, sB, sCc))
a('s_add_u32 s%d, s%d, s%d' % (sB, sB, qU))
a('s_lshl_b32 s%d, s%d, 10' % (sB, sB))
a('s_add_u32 s%d, s%d, %d' % (sB, sB, L.WA))
a('v_or_b32 v4, s%d, v1' % qINV)
a('s_waitcnt lgkmcnt(0)')
for p in range(4):
    a('v_cndmask_b32 v%d, 0, v%d, vcc' % (28 + p, 28 + p))
a('buffer_store_dwordx4 v[24:27], v4, %s, s%d offen sc1' % (srd(S_WS), sB))
a('s_add_u32 s%d, s%d, %d' % (sB, sB, 14 * 1024))
a('buffer_store_dwordx4 v[28:31], v4, %s, s%d offen sc1' % (srd(S_WS), sB))
a('v_mov_b32 v2, 0x3f803f80')
for k in range(2):
    x, s1, s2 = 10 + 4 * k, 110 + 2 * k, 111 + 2 * k
    a('v_mov_b32 v%d, 0' % s1)
    a('v_mov_b32 v%d, 0' % s2)
    for p in range(4):
        a('v_dot2_f32_bf16 v%d, v%d, v2, v%d' % (s1, x + p, s1))
        a('v_dot2_f32_bf16 v%d, v%d, v%d, v%d' % (s2, x + p, x + p, s2))
    for t in xg_reduce(s1, 114) + xg_reduce(s2, 115):
        a(t)
a('s_lshl_b32 s%d, s%d, 7' % (sB, sA))
a('s_add_u32 s%d, s%d, %d' % (sB, sB, L.SA[0]))
a('v_lshlrev_b32 v2, 3, v%d' % V_TOK)
a('v_or_b32 v3, s%d, v2' % (sO + 2))
a('s_mov_b64 exec, 0xffff')
a('buffer_store_dwordx2 v[110:111], v2, %s, s%d offen sc1' % (srd(S_WS), sB))
a('buffer_store_dwordx2 v[112:113], v3, %s, s%d offen offset:512 sc1' % (srd(S_WS), sB))
a('s_mov_b64 exec, -1')
crit_mark = a.vm_mark()
if not P2EARLY:
    emit_p2_issue()
a('s_lshl_b32 s%d, s%d, 5' % (sA, sO + 0))
a('s_add_u32 s%d, s%d, s%d' % (sA, sA, sO + 1))
a('s_lshl_b32 s%d, s%d, 2' % (sA, sA))
a('s_add_u32 s%d, s%d, %d' % (sA, sA, L.FX[0]))
a('v_lshlrev_b32 v2, 4, v0')
a('v_add_u32 v2, s%d, v2' % sA)
a('v_cmp_eq_u32 vcc, 1, v0')
a('v_mov_b32 v3, s%d' % (sO + 2))
a('v_cndmask_b32 v3, 0, v3, vcc')
a('v_or_b32 v2, v2, v3')
a('s_lshl_b32 s%d, s%d, 6' % (sA, sC))
a('s_lshl_b32 s%d, s%d, 2' % (sB, sS))
a('s_add_u32 s%d, s%d, s%d' % (sA, sA, sB))
a('s_add_u32 s%d, s%d, s%d' % (sA, sA, sW))
a('s_lshl_b32 s%d, s%d, 2' % (sA, sA))
a('s_add_u32 s%d, s%d, %d' % (sA, sA, L.FQ))
a('v_mov_b32 v3, s%d' % sA)
a('v_cmp_eq_u32 vcc, 2, v0')
a('v_cndmask_b32 v2, v2, v3, vcc')
a('s_lshl_b32 s%d, s%d, 4' % (sA, sS))
a('s_add_u32 s%d, s%d, s%d' % (sA, sA, sC))
a('s_lshl_b32 s%d, s%d, 2' % (sA, sA))
a('s_add_u32 s%d, s%d, %d' % (sA, sA, L.FXC))
a('s_cmp_eq_u32 s%d, 0' % sW)
a('s_cselect_b32 s%d, s%d, 0x%x' % (sA, sA, INV))
a('v_mov_b32 v3, s%d' % sA)
a('v_cmp_eq_u32 vcc, 3, v0')
a('v_cndmask_b32 v2, v2, v3, vcc')
a('v_or_b32 v3, s%d, v%d' % (sXCC, V_T))
a('v_cndmask_b32 v3, v%d, v3, vcc' % V_T)
stamp2()
a.wait_vm(crit_mark)
a('s_mov_b64 exec, 15')
a('buffer_store_dword v3, v2, %s, 0 offen sc1' % srd(S_WS))
a('s_mov_b64 exec, -1')
stamp()

skew_store(1)
a('s_waitcnt vmcnt(1)')
a('v_lshl_add_u32 v20, v18, 7, v19')
a('v_add_u32 v20, s%d, v20' % sSTG)
for slot in range(2):
    for t in range(4):
        a('ds_read_b64_tr_b16 %s, v20 offset:%d' % (vr(24 + 16 * slot + 4 * t, 2), 2048 + 4096 * slot + 32 * t))
        a('ds_read_b64_tr_b16 %s, v20 offset:%d' % (vr(26 + 16 * slot + 4 * t, 2), 2048 + 4096 * slot + 32 * t + 2048))
a('v_or_b32 v6, s%d, v1' % bINV)
a('v_or_b32 v8, s%d, v1' % bINV2)
a('s_waitcnt lgkmcnt(8)')
for t in range(4):
    a('buffer_store_dwordx4 %s, v6, %s, s%d offen sc1' % (vr(24 + 4 * t), srd(S_WS), bDST))
    if t < 3:
        a('s_add_u32 s%d, s%d, s%d' % (bDST, bDST, bSTR))
a('s_waitcnt lgkmcnt(0)')
for t in range(4):
    a('buffer_store_dwordx4 %s, v8, %s, s%d offen sc1' % (vr(40 + 4 * t), srd(S_WS), bDST2))
    if t < 3:
        a('s_add_u32 s%d, s%d, s%d' % (bDST2, bDST2, bSTR))
a('s_lshl_b32 s%d, s%d, 4' % (sA, sS))
a('s_add_u32 s%d, s%d, s%d' % (sA, sA, sC))
a('s_lshl_b32 s%d, s%d, 2' % (sA, sA))
a('s_add_u32 s%d, s%d, %d' % (sA, sA, L.FW1))
a('v_lshlrev_b32 v22, 10, v0')
a('v_add_u32 v22, s%d, v22' % sA)
a('v_cmp_eq_u32 vcc, 1, v0')
a('v_mov_b32 v23, s%d' % bINV2)
a('v_cndmask_b32 v23, 0, v23, vcc')
a('v_or_b32 v22, v22, v23')
a('s_cmp_eq_u32 s%d, 3' % sW)
a('s_cselect_b32 s%d, 0, 0x%x' % (sA, INV))
a('v_or_b32 v22, s%d, v22' % sA)

skew_store(3)
a('v_and_b32 v2, 1, v%d' % V_TOK)
a('v_lshlrev_b32 v3, 2, v%d' % V_G)
a('v_add_u32 v6, 2, v%d' % V_TOK)
for i in range(4):
    a('v_add_u32 v4, %d, v3' % i)
    a('v_cmp_eq_u32 vcc, %d, v2' % (i & 1))
    a('s_mov_b64 %s, vcc' % sp(sMK))
    a('v_cmp_ge_u32 vcc, v4, v6')
    a('s_and_b64 %s, vcc, %s' % (sp(sM1 + 2 * i), sp(sMK)))
    a('v_cmp_le_u32 vcc, v4, v%d' % V_TOK)
    a('s_and_b64 %s, vcc, %s' % (sp(sM2 + 2 * i), sp(sMK)))
a('s_lshl_b32 s%d, s%d, 3' % (sA, sS))
a('s_lshl_b32 s%d, s%d, 1' % (sB, sW))
a('s_add_u32 s%d, s%d, s%d' % (sGT, sA, sB))
a('s_cmp_eq_u32 s%d, 0' % sGT)
for i in range(4):
    a('s_cselect_b64 %s, 0, %s' % (sp(sM0 + 2 * i), sp(sM1 + 2 * i)))
a('s_mov_b32 s%d, 0' % sPAIR)

def a_flag_addr(dst):
    pair_base(sA, L.FX)
    a('s_lshl_b32 s%d, s%d, 7' % (sB, sGT))
    a('s_add_u32 s%d, s%d, s%d' % (sA, sA, sB))
    a('s_sub_u32 s%d, s%d, 128' % (sA, sA))
    a('v_and_b32 v%d, 48, v0' % dst)
    a('v_add_u32 v%d, v%d, v0' % (dst, dst))
    a('v_lshl_add_u32 v%d, v%d, 2, s%d' % (dst, dst, sA))
    a('s_mov_b32 s%d, 0x3fff3fff' % sMK)
    a('s_mov_b32 s%d, 0x3fff' % (sMK + 1))
    a('s_cmp_eq_u32 s%d, 0' % sGT)
    a('s_cselect_b32 s%d, 0x3fff0000, s%d' % (sMK, sMK))


a('s_lshl_b32 s%d, s%d, 8' % (sA, sC))
a('s_add_u32 s%d, s%d, %d' % (sA, sA, L.FQ))
a('v_lshl_add_u32 v2, v0, 2, s%d' % sA)
a_flag_addr(3)
a('s_lshl_b32 s%d, s%d, 6' % (sA, sS))
a('s_add_u32 s%d, s%d, %d' % (sA, sA, L.FXC - 48 * 4))
a('v_lshl_add_u32 v4, v0, 2, s%d' % sA)
a('v_cmp_lt_u32 vcc, 47, v0')
a('v_cndmask_b32 v3, v3, v4, vcc')
a('v_mov_b32 v5, -1')
a('v_mov_b32 v6, -16')
a('v_cndmask_b32 v5, v5, v6, vcc')
a('s_or_b32 s%d, s%d, 0xffff0000' % (sMK + 1, sMK + 1))
a('s_mov_b32 s%d, 0' % sSPIN)
a.label('L_poll0')
a('buffer_load_dword v7, v2, %s, 0 offen sc1' % srd(S_WS))
a('s_mov_b64 exec, %s' % sp(sMK))
a('buffer_load_dword v8, v3, %s, 0 offen sc1' % srd(S_WS))
a('s_waitcnt vmcnt(0)')
a('v_and_b32 v9, v5, v8')
a('v_cmp_ne_u32 vcc, s%d, v9' % sT)
a('s_mov_b64 exec, -1')
a('s_mov_b64 %s, vcc' % sp(sTS))
a('v_cmp_ne_u32 vcc, s%d, v7' % sT)
a('s_or_b64 vcc, vcc, %s' % sp(sTS))
a('s_cbranch_vccz L_poll0_done')
a('s_add_u32 s%d, s%d, 1' % (sSPIN, sSPIN))
a('s_cmp_lt_u32 s%d, %d' % (sSPIN, SPIN_LIMIT))
a('s_cbranch_scc1 L_poll0')
a('s_add_u32 s%d, s%d, 1' % (sERR, sERR))
a.label('L_poll0_done')
a('s_mov_b64 exec, 3')
a('buffer_store_dword v%d, v22, %s, 0 offen sc1' % (V_T, srd(S_WS)))
a('s_mov_b64 exec, -1')
skew_store(2)
a('v_and_b32 v9, 15, v8')
a('v_cmp_ne_u32 vcc, s%d, v9' % sXCC)
a('s_and_b32 s%d, vcc_hi, 0xffff0000' % sA)
a('s_cmp_eq_u32 s%d, 0' % sA)
a('s_cselect_b32 s%d, 1, 0' % sFAST)
stamp()
AQ, AK, AV, HACC = 2, 18, 34, 50
WBUF = [66, 90]
XR = 114
CSACC = 186
STR = 210
SM, SR = 234, 237
NR, LOOK = 6, 4
A_ONES = 240


def a_xload(u):
    slot = u % NR
    return ['buffer_load_dwordx4 %s, v1, %s, s%d offen offset:%d sc1' %
            (vr(XR + (slot * 2 + t) * 4), srd(S_WS), sO + 4 * (t + 1) + (u >> 2), 1024 * (u & 3)) for t in range(2)]


def a_offsets():
    pair_base(sA, L.XA)
    a('s_mul_i32 s%d, s%d, 14336' % (sB, sGT))
    a('s_add_u32 s%d, s%d, s%d' % (sO + 4, sA, sB))
    a('s_add_u32 s%d, s%d, 14336' % (sO + 8, sO + 4))
    for t in range(1, 3):
        for q in range(1, 4):
            a('s_add_u32 s%d, s%d, %d' % (sO + 4 * t + q, sO + 4 * t, 4096 * q))
    a('s_lshl_b32 s%d, s%d, 3' % (sB, sS))
    a('s_max_u32 s%d, s%d, 1' % (sB, sB))
    a('s_sub_u32 s%d, s%d, 1' % (sB, sB))
    a('s_mul_i32 s%d, s%d, 14336' % (sB, sB))
    a('s_add_u32 s%d, s%d, s%d' % (sO + 0, sA, sB))
    a('s_lshl_b32 s%d, s%d, 12' % (sB, sW))
    a('s_add_u32 s%d, s%d, s%d' % (sO + 0, sO + 0, sB))
    a('s_add_u32 s%d, s%d, %d' % (sO + 1, sB, L.L_R2))


def a_setup():
    if FASTMODE == 'flags':
        a('s_mov_b32 s%d, 0' % sFD)
        a('s_mov_b32 s%d, 0' % sFH)
    elif FASTMODE == 'p0':
        a('s_xor_b32 s%d, s%d, 1' % (sFD, sPAIR))
        a('s_and_b32 s%d, s%d, s%d' % (sFD, sFD, sFAST))
        a('s_mov_b32 s%d, s%d' % (sFH, sFD))
    elif FASTMODE == 'small':
        a('s_mov_b32 s%d, s%d' % (sFD, sFAST))
        a('s_mov_b32 s%d, 0' % sFH)
    elif FASTMODE == 'smallp0':
        a('s_mov_b32 s%d, s%d' % (sFD, sFAST))
        a('s_xor_b32 s%d, s%d, 1' % (sFH, sPAIR))
        a('s_and_b32 s%d, s%d, s%d' % (sFH, sFH, sFAST))
    else:
        a('s_mov_b32 s%d, s%d' % (sFD, sFAST))
        a('s_mov_b32 s%d, s%d' % (sFH, sFAST))
    pair_base(sA, L.SA)
    a('s_mul_i32 s%d, s%d, 1792' % (sB, sGT))
    a('s_add_u32 s%d, s%d, s%d' % (sO + 13, sA, sB))
    a('s_add_u32 s%d, s%d, 1792' % (sO + 14, sO + 13))
    a('s_sub_u32 s%d, s%d, 1792' % (sO + 12, sO + 13))
    a('s_cmp_eq_u32 s%d, 0' % sGT)
    a('s_cselect_b32 s%d, s%d, s%d' % (sO + 12, sO + 13, sO + 12))
    a('v_and_b32 v%d, 15, v0' % V_TOK)
    a('v_lshrrev_b32 v%d, 4, v0' % V_G)
    a('v_lshlrev_b32 v240, 3, v%d' % V_TOK)
    a('v_lshl_add_u32 v240, v%d, 7, v240' % V_G)
    a('v_mov_b32 v242, 0x%x' % INV)
    a('v_cmp_lt_u32 vcc, 1, v%d' % V_G)
    a('v_cndmask_b32 v241, 0, v242, vcc')
    a('v_or_b32 v241, v241, v240')
    a('v_add_u32 v243, %d, v1' % (56 * 1024))
    a('v_lshlrev_b32 v244, 4, v%d' % V_G)
    a('v_add_u32 v244, %d, v244' % L.L_CSA)
    a('v_lshlrev_b32 v245, 2, v%d' % V_TOK)
    a('v_add_u32 v245, %d, v245' % L.L_CSA)
    a('s_lshl_b32 s%d, s%d, 7' % (sA, sJ))
    a('s_add_u32 s%d, s%d, %d' % (sA, sA, L.FP))
    a('v_lshl_add_u32 v248, v0, 2, s%d' % sA)
    a('s_lshr_b32 s%d, s%d, 1' % (sB, sW))
    a('s_lshl_b32 s%d, s%d, 2' % (sCc, sG))
    a('s_add_u32 s%d, s%d, s%d' % (sB, sB, sCc))
    a('s_lshl_b32 s%d, s%d, 5' % (sB, sB))
    a('s_and_b32 s%d, s%d, 1' % (sA, sW))
    a('s_add_u32 s%d, s%d, s%d' % (sB, sB, sA))
    a('s_min_u32 s%d, s%d, 6' % (sA, sJ))
    a('s_lshl_b32 s%d, s%d, 1' % (sA, sA))
    a('s_add_u32 s%d, s%d, s%d' % (sB, sB, sA))
    a('s_lshl_b32 s%d, s%d, 2' % (sB, sB))
    a('s_add_u32 s%d, s%d, %d' % (sB, sB, L.FX[0] - 32 * 256))
    a('v_lshl_add_u32 v249, v0, 8, s%d' % sB)
    a('v_cmp_lt_u32 vcc, 31, v0')
    a('v_cndmask_b32 v248, v248, v249, vcc')
    a('s_lshr_b32 s%d, s%d, 3' % (sA, sC))
    a('s_mul_i32 s%d, s%d, 7' % (sA, sA))
    a('s_min_u32 s%d, s%d, 6' % (sB, sJ))
    a('s_add_u32 s%d, s%d, s%d' % (sA, sA, sB))
    a('s_mul_i32 s%d, s%d, 112' % (sA, sA))
    a('s_add_u32 s%d, s%d, %d' % (sA, sA, L.FW1 - 34 * 4))
    a('v_lshl_add_u32 v249, v0, 2, s%d' % sA)
    a('v_cmp_lt_u32 vcc, 33, v0')
    a('v_cndmask_b32 v248, v248, v249, vcc')
    a('s_lshl_b32 s%d, s%d, 7' % (sA, sS))
    a('s_add_u32 s%d, s%d, %d' % (sA, sA, L.FH))
    a('v_and_b32 v247, 15, v0')
    a('v_lshl_add_u32 v247, v247, 2, s%d' % sA)
    a('s_lshl_b32 s%d, s%d, 7' % (sB, sGT))
    a('s_add_u32 s%d, s%d, %d' % (sB, sB, L.FX[1] - 128))
    a('v_lshl_add_u32 v253, v0, 2, s%d' % sB)
    a('s_cmp_eq_u32 s%d, 0' % sW)
    a('s_cselect_b32 s%d, 0, 16' % sA)
    a('v_cmp_gt_u32 vcc, s%d, v0' % sA)
    a('v_cndmask_b32 v247, v247, v253, vcc')
    a('s_mov_b32 s%d, 0x3fff3fff' % sMK2)
    a('s_mov_b32 s%d, 0' % (sMK2 + 1))
    a('s_cmp_eq_u32 s%d, 0' % sS)
    a('s_cselect_b32 s%d, 0x3fff, s%d' % (sMK2, sMK2))
    a('v_and_b32 v253, 15, v0')
    a('v_lshlrev_b32 v253, 2, v253')
    a('v_add_u32 v253, %d, v253' % L.FX[1])
    a('s_cmp_eq_u32 s%d, 0' % sGT)
    a('s_cselect_b64 vcc, -1, 0')
    a('v_cndmask_b32 v247, v247, v253, vcc')


stat_loads = ['buffer_load_dwordx2 %s, v%d, %s, s%d offen offset:%d sc1' %
              (vr(STR + (t * 4 + i) * 2, 2), 241 if i == 3 else 240, srd(S_WS), sO + 12 + t, 512 * i)
              for t in range(3) for i in range(4)]


def a_wread(u):
    b = WBUF[u & 1]
    o = []
    for p in range(6):
        if p < 4:
            o.append('ds_read_b128 %s, v1 offset:%d' % (vr(b + 4 * p), L.L_WA + (p * 14 + u) * 1024))
        else:
            o.append('ds_read_b128 %s, v243 offset:%d' % (vr(b + 4 * p), L.L_WA + ((p - 4) * 14 + u) * 1024))
    return o


stat_fill = []
for t in range(3):
    r = STR + 8 * t
    for c_ in range(2):
        stat_fill += ['v_add_f32 v%d, v%d, v%d' % (r + c_, r + c_, r + 2 + c_),
                      'v_add_f32 v%d, v%d, v%d' % (r + 4 + c_, r + 4 + c_, r + 6 + c_),
                      'v_add_f32 v%d, v%d, v%d' % (r + c_, r + c_, r + 4 + c_)]
    stat_fill += xg_reduce(r, r + 2) + xg_reduce(r + 1, r + 3)
    stat_fill += stats_finish(r, r + 1, r + 2, False)
    stat_fill += ['v_mov_b32 v%d, v%d' % (SM + t, r), 'v_mov_b32 v%d, v%d' % (SR + t, r + 1)]

sWA = [20, 21, 22]
sWAG = 23


def wa_dma(pr, i):
    def f():
        a('s_add_u32 m0, s%d, %d' % (sWA[i], L.L_WA + 2048 * pr))
        a('s_add_u32 s%d, s%d, s%d' % (sD, sWA[i], sWAG))
        if pr:
            a('s_add_u32 s%d, s%d, %d' % (sD, sD, 2048 * pr))
        a('buffer_load_dwordx4 v1, %s, s%d offen sc1 lds' % (srd(S_WS), sD))
    return f


amark = {}


def emit_a_loop(first, xmark, wam):
    ep_mark = es_mark = st_mark = None
    for t in a_wread(0):
        a(t)
    for u in range(14):
        need = xmark[u]
        if u == 11:
            need = max(need, st_mark)
        a.wait_vm(need)
        if not first and u == 6:
            early_check(246, 247, es_mark)
            a('s_nop 0')
        if u == 11:
            a('s_mov_b32 s%d, -1' % sMK2)
            a('s_mov_b32 s%d, 0x3fffffff' % (sMK2 + 1))
        a('s_waitcnt lgkmcnt(0)')
        wb = WBUF[u & 1]
        xs = XR + (u % NR) * 8
        mf = []
        cz = (lambda r: '0') if u == 0 else (lambda r: vr(r))
        for t in range(2):
            for hf in range(2):
                r = AQ + (t * 2 + hf) * 4
                mf.append('%s %s, %s, %s, %s' % (MFMA, vr(r), vr(wb + 4 * hf), vr(xs + 4 * t), cz(r)))
        for t in range(2):
            for hf in range(2):
                r = AK + (t * 2 + hf) * 4
                mf.append('%s %s, %s, %s, %s' % (MFMA, vr(r), vr(wb + 8 + 4 * hf), vr(xs + 4 * t), cz(r)))
        for t in range(2):
            for hf in range(2):
                r = AV + (t * 2 + hf) * 4
                mf.append('%s %s, %s, %s, %s' % (MFMA, vr(r), vr(xs + 4 * t), vr(wb + 16 + 4 * hf), cz(r)))
        if first:
            mf.append('%s %s, %s, %s, %s' % (MFMA, vr(CSACC + 8), vr(CSACC), ar(A_ONES), cz(CSACC + 8)))
            mf.append('%s %s, %s, %s, %s' % (MFMA, vr(CSACC + 12), ar(A_ONES), vr(CSACC + 4), cz(CSACC + 12)))
        mem = {}

        def put(k, x):
            mem.setdefault(k, []).append(x)
        nm = len(mf)
        off = 0
        if first:
            a('ds_read_b128 %s, v252 offset:%d' % (vr(CSACC), 1024 * u))
            a('ds_read_b128 %s, v242 offset:%d' % (vr(CSACC + 4), 1024 * u))
            put(11, 's_waitcnt lgkmcnt(%d)' % (6 if u < 13 else 0))
        if first and u % 2 == 1 and u < 13:
            put(2, ('bar', (u + 1) // 2))
            off = 3
        if u < 13:
            for k, x in enumerate(a_wread(u + 1)):
                put(off + k, x)
        elif not first:
            for p in range(4):
                put(p, 'ds_read_b128 %s, v244 offset:%d' % (vr(WBUF[0] + 4 * p), 64 * p))
            for d in range(2):
                put(4 + d, 'ds_read_b32 v%d, v245 offset:%d' % (WBUF[0] + 16 + d, 64 * (4 + d)))
        if first and u < 2:
            for j_, uu in enumerate((2 * u + 2, 2 * u + 3)):
                for k, x in zip((6, 8), a_xload(uu)):
                    put(k + 4 * j_, x)
                put(8 + 4 * j_, ('xm', uu))
            if u == 0:
                for i, k in enumerate((7, 9, 11)):
                    put(k, ('wa', 2, i))
        elif u + LOOK < 14:
            for k, x in zip((6, 9), a_xload(u + LOOK)):
                put(k, x)
            put(9, ('xm', u + LOOK))
        if first and u % 2 == 0 and u // 2 + 3 <= 6:
            for i, k in enumerate((12, 13, 13) if u == 0 else (7, 10, 12)):
                put(k, ('wa', u // 2 + 3, i))
        order = list(range(4, 12)) + list(range(0, 4))
        if 2 <= u < 6:
            for k, x in zip((8, 11), order[2 * (u - 2):2 * (u - 2) + 2]):
                put(k, stat_loads[x])
        if not first and u == 3:
            put(7, ('estat',))
        if u in (7, 8):
            for k, x in zip((8, 11), order[8 + 2 * (u - 7):8 + 2 * (u - 7) + 2]):
                put(k, stat_loads[x])
            if u == 8:
                put(11, ('st',))
        if u == 6:
            put(10, 's_mov_b32 m0, s%d' % (sO + 1))
            for i, k in enumerate((10, 10, 11, 11)):
                put(k, 'buffer_load_dwordx4 v1, %s, s%d offen offset:%d sc1 lds' % (srd(S_WS), sO + 0, 1024 * i))
            put(11, ('hm',))
        if u == 13:
            put(8, ('early',))
        fill = stat_fill[(u - 11) * 22:(u - 10) * 22] if u >= 11 else []
        fi = 0
        for k, m in enumerate(mf):
            a(m)
            for it in mem.get(k, []):
                if isinstance(it, str):
                    a(it)
                elif it[0] == 'early':
                    ep_mark = early_issue(249, 248)
                elif it[0] == 'estat':
                    es_mark = early_issue(246, 247)
                elif it[0] == 'xm':
                    xmark[it[1]] = a.vm_mark()
                elif it[0] == 'st':
                    st_mark = a.vm_mark()
                elif it[0] == 'hm':
                    amark['halo'] = a.vm_mark()
                elif it[0] == 'bar':
                    a.wait_vm(wam[it[1]])
                    a('s_barrier')
                elif it[0] == 'wa':
                    wa_dma(it[1], it[2])()
                    wam[it[1]] = a.vm_mark()
            for _ in range(2):
                if fi < len(fill) and k >= 1:
                    a(fill[fi])
                    fi += 1
        assert fi == len(fill), (u, fi, len(fill))
    amark['ep'] = ep_mark


for p in range(4):
    a('v_mov_b32 v4, 0x3f803f80')
    a('v_accvgpr_write_b32 a%d, v4' % (A_ONES + p))
a('s_mul_i32 s%d, s%d, 14336' % (sWA[0], sW))
a('s_add_u32 s%d, s%d, 4' % (sA, sW))
a('s_mul_i32 s%d, s%d, 14336' % (sA, sA))
a('s_sub_u32 s%d, s%d, 2' % (sB, sW))
a('s_mul_i32 s%d, s%d, 14336' % (sB, sB))
a('s_add_u32 s%d, s%d, 1024' % (sB, sB))
a('s_cmp_lt_u32 s%d, 2' % sW)
a('s_cselect_b32 s%d, s%d, s%d' % (sWA[1], sA, sB))
a('s_add_u32 s%d, s%d, 2' % (sA, sW))
a('s_mul_i32 s%d, s%d, 14336' % (sA, sA))
a('s_add_u32 s%d, s%d, 1024' % (sWA[2], sA))
a('s_mul_i32 s%d, s%d, %d' % (sWAG, sC, 84 * 1024))
a('s_add_u32 s%d, s%d, %d' % (sWAG, sWAG, L.WA))
a_offsets()
xm0, wam0 = {}, {}


def wa_pair(pr):
    for i in range(3):
        wa_dma(pr, i)()
    wam0[pr] = a.vm_mark()


wa_pair(0)
for u in range(2):
    for t in a_xload(u):
        a(t)
    xm0[u] = a.vm_mark()
wa_pair(1)
a_setup()
a('s_mul_i32 s%d, s%d, 14336' % (sA, sW))
a('v_add_u32 v252, s%d, v1' % sA)
a('s_and_b32 s%d, s%d, 1' % (sA, sW))
a('s_mul_i32 s%d, s%d, 14336' % (sA, sA))
a('v_add_u32 v242, s%d, v243' % sA)
a.wait_vm(wam0[0])
a('s_barrier')
a('s_lshl_b32 s%d, s%d, 5' % (sA, sJ))
a('s_add_u32 s%d, s%d, s%d' % (sA, sA, sG))
a('s_lshl_b32 s%d, s%d, 2' % (sA, sA))
a('s_add_u32 s%d, s%d, %d' % (sA, sA, L.FP))
a('s_cmp_eq_u32 s%d, 0' % sW)
a('s_cselect_b32 s%d, s%d, 0x%x' % (sA, sA, INV))
a('v_mov_b32 v2, s%d' % sA)
a('s_mov_b64 exec, 1')
a('buffer_store_dword v%d, v2, %s, 0 offen sc1' % (V_T, srd(S_WS)))
a.vm_issued -= 1
a('s_mov_b64 exec, -1')
stamp()
emit_a_loop(True, xm0, wam0)
n_join = a.vm_issued - amark['ep']
CSQ = WBUF[0]
a('v_cmp_eq_u32 vcc, 0, v%d' % V_TOK)
a('s_lshl_b32 s%d, s%d, 6' % (sA, sW))
a('v_add_u32 v252, s%d, v244' % sA)
a('s_and_b32 s%d, s%d, 1' % (sA, sW))
a('s_lshl_b32 s%d, s%d, 6' % (sA, sA))
a('v_add_u32 v242, s%d, v245' % sA)
a('s_mov_b64 exec, vcc')
a('ds_write_b128 v252, %s' % vr(CSACC + 8))
a('s_mov_b64 exec, 0xffff')
a('ds_write_b32 v242, v%d offset:256' % (CSACC + 12))
a('s_mov_b64 exec, -1')
a('s_waitcnt lgkmcnt(0)')
a('s_barrier')
for p in range(4):
    a('ds_read_b128 %s, v244 offset:%d' % (vr(WBUF[0] + 4 * p), 64 * p))
for d in range(2):
    a('ds_read_b32 v%d, v245 offset:%d' % (WBUF[0] + 16 + d, 64 * (4 + d)))
a('s_branch L_a_epi')

a.label('L_pair')
a_flag_addr(2)
a('s_mov_b32 s%d, 0x3fff0000' % sMK)
ASLEEP = int(([x[9:] for x in sys.argv if x.startswith('--asleep=')] + ['0'])[0])
poll(2, None, ASLEEP)
stamp()
a_offsets()
xmark = {}
for u in range(LOOK):
    for t in a_xload(u):
        a(t)
    xmark[u] = a.vm_mark()
a_setup()
emit_a_loop(False, xmark, None)
assert a.vm_issued - amark['ep'] == n_join
ep_mark = amark['ep']
a.label('L_a_epi')
stamp()
a('s_add_u32 s%d, s%d, 2' % (sA, sW))
a('s_mul_i32 s%d, s%d, 14336' % (sA, sA))
a('v_add_u32 v246, s%d, v1' % sA)
a('v_add_u32 v247, %d, v1' % L.L_R2)
a('s_cmp_lt_u32 s%d, 2' % sW)
a('s_cselect_b64 vcc, -1, 0')
a('v_cndmask_b32 v252, v247, v246, vcc')
a('v_cndmask_b32 v253, v246, v247, vcc')
a.wait_vm(amark['halo'])
a('s_barrier')
HOP = 90
def h_reads(u):
    r = HOP + 8 * (u % 3)
    return ['ds_read_b128 %s, v252 offset:%d' % (vr(r), 1024 * u), 'ds_read_b128 %s, v253 offset:%d' % (vr(r + 4), 1024 * u)]
for u in range(2):
    for x in h_reads(u):
        a(x)
rest = stat_fill[66:]
for u in range(14):
    if u + 2 < 14:
        for x in h_reads(u + 2):
            a(x)
    a('s_waitcnt lgkmcnt(%d)' % (4 if u < 12 else (2 if u == 12 else 0)))
    r = HOP + 8 * (u % 3)
    a('%s %s, %s, %s, %s' % (MFMA, vr(HACC), vr(r), vr(r + 4), '0' if u == 0 else vr(HACC)))
    if rest:
        a(rest.pop(0))
for x in rest:
    a(x)
early_check(249, 248, ep_mark)
BW = 2
a('s_lshl_b32 s%d, s%d, 6' % (sA, sJ))
a('s_lshl_b32 s%d, s%d, 2' % (sB, sW))
a('s_add_u32 s%d, s%d, s%d' % (sA, sA, sB))
a('s_lshl_b32 s%d, s%d, 10' % (sA, sA))
a('s_add_u32 s20, s%d, %d' % (sA, L.WB))
for t in range(1, 4):
    a('s_add_u32 s%d, s20, %d' % (20 + t, 16 * 1024 * t))
wb_loads = ['buffer_load_dwordx4 %s, v1, %s, s%d offen offset:%d sc1' % (vr(BW + (i * 4 + t) * 4), srd(S_WS), 20 + t, 1024 * i)
            for i in range(4) for t in range(4)]
A_RES, A_B2 = 224, 232


def red_addrs():
    a('s_lshl_b32 s%d, s%d, 13' % (sA, sW))
    a('s_add_u32 s%d, s%d, %d' % (sA, sA, L.L_R2))
    a('v_add_u32 v248, s%d, v1' % sA)
    a('s_and_b32 s%d, s%d, 1' % (sA, sW))
    a('s_lshl_b32 s%d, s%d, 11' % (sA, sA))
    a('s_lshr_b32 s%d, s%d, 1' % (sB, sW))
    a('s_lshl_b32 s%d, s%d, 12' % (sB, sB))
    a('s_add_u32 s%d, s%d, s%d' % (sA, sA, sB))
    a('s_add_u32 s%d, s%d, %d' % (sA, sA, L.L_R2))
    a('v_add_u32 v249, s%d, v1' % sA)


def publish_setup(xbase, sbase, fbase, per_pair, fsh):
    owner_index()
    a('s_mul_i32 s%d, s%d, 14' % (sCc, sB))
    a('s_add_u32 s%d, s%d, s%d' % (sCc, sCc, sA))
    a('s_lshl_b32 s%d, s%d, 10' % (sPX, sCc))
    a('s_lshl_b32 s%d, s%d, 7' % (sPS, sCc))
    a('s_lshl_b32 s%d, s%d, %d' % (sPF, sB, fsh))
    a('s_add_u32 s%d, s%d, s%d' % (sPF, sPF, sA))
    a('s_lshl_b32 s%d, s%d, 2' % (sPF, sPF))
    for dst, arr in ((sPX, xbase), (sPS, sbase), (sPF, fbase)):
        if per_pair:
            pair_base(sD, arr)
            a('s_add_u32 s%d, s%d, s%d' % (dst, dst, sD))
        else:
            a('s_add_u32 s%d, s%d, %d' % (dst, dst, arr))
    a('s_add_u32 s%d, s%d, %d' % (sPX2, sPX, 2 * 14336))


def owner_index():
    a('s_lshr_b32 s%d, s%d, 1' % (sB, sW))
    a('s_lshl_b32 s%d, s%d, 2' % (sCc, sG))
    a('s_add_u32 s%d, s%d, s%d' % (sB, sB, sCc))
    a('s_and_b32 s%d, s%d, 1' % (sA, sW))
    a('s_lshl_b32 s%d, s%d, 1' % (sCc, sJ))
    a('s_add_u32 s%d, s%d, s%d' % (sA, sA, sCc))


a('s_cmp_eq_u32 s%d, 0' % sPAIR)
a('s_cbranch_scc0 L_a_nores')
owner_index()
a('s_mul_i32 s%d, s%d, 14' % (sB, sB))
a('s_add_u32 s%d, s%d, s%d' % (sB, sB, sA))
a('s_lshl_b32 s%d, s%d, 10' % (sB, sB))
a('s_add_u32 s%d, s%d, %d' % (sB, sB, L.XA[0]))
a('buffer_load_dwordx4 %s, v1, %s, s%d offen sc1' % (ar(A_RES), srd(S_WS), sB))
a('s_add_u32 s%d, s%d, %d' % (sB, sB, 2 * 14336))
a('buffer_load_dwordx4 %s, v1, %s, s%d offen sc1' % (ar(A_RES + 4), srd(S_WS), sB))
build_srd(S_TMP, P_B2, 896)
a('s_lshl_b32 s%d, s%d, 6' % (sB, sA))
a('v_lshlrev_b32 v240, 3, v%d' % V_G)
a('buffer_load_dwordx2 v[228:229], v240, %s, s%d offen' % (srd(S_TMP), sB))
a('buffer_load_dwordx2 v[230:231], v240, %s, s%d offen offset:32' % (srd(S_TMP), sB))
a.label('L_a_nores')
CSQ = WBUF[0]
a('s_mul_i32 s%d, s%d, 384' % (sA, sW))
a('s_add_u32 s%d, s%d, %d' % (sA, sA, L.L_STA))
a('v_lshl_add_u32 v246, v%d, 2, s%d' % (V_TOK, sA))
a('v_lshl_add_u32 v247, v%d, 4, s%d' % (V_G, sA))
a('s_mov_b64 exec, 0xffff')
for t in range(3):
    a('ds_write_b32 v246, v%d offset:%d' % (SM + t, 128 * t))
    a('ds_write_b32 v246, v%d offset:%d' % (SR + t, 128 * t + 64))
a('s_mov_b64 exec, -1')
MROW, RROW = 114, 126
a('s_waitcnt lgkmcnt(0)')
for t in range(3):
    a('ds_read_b128 %s, v247 offset:%d' % (vr(MROW + 4 * t), 128 * t))
    a('ds_read_b128 %s, v247 offset:%d' % (vr(RROW + 4 * t), 128 * t + 64))
QF, KF, VF = 140, 148, 160


def pk(op, dst, srcs, neg=None):
    ops, lo, hi = [], [], []
    for x in srcs:
        if isinstance(x, tuple):
            ops.append(vr(x[1] & ~1, 2))
            lo.append(x[1] & 1)
            hi.append(x[1] & 1)
        else:
            ops.append(vr(x, 2))
            lo.append(0)
            hi.append(1)
    t = '%s %s, %s op_sel:[%s] op_sel_hi:[%s]' % (op, vr(dst, 2), ', '.join(ops), ','.join(map(str, lo)), ','.join(map(str, hi)))
    if neg is not None:
        m = ','.join('1' if k == neg else '0' for k in range(len(srcs)))
        t += ' neg_lo:[%s] neg_hi:[%s]' % (m, m)
    return t


for t in range(2):
    for hf in range(2):
        r = AQ + (t * 2 + hf) * 4
        for i in (0, 2):
            a(pk('v_pk_fma_f32', r + i, [('b', SM + t + 1), CSQ + 4 * hf + i, r + i], 0))
        for p in range(2):
            a('v_cvt_pk_bf16_f32 v%d, v%d, v%d' % (QF + 4 * t + 2 * hf + p, r + 2 * p, r + 2 * p + 1))
for t in range(2):
    for hf in range(2):
        r = AK + (t * 2 + hf) * 4
        for i in (0, 2):
            a(pk('v_pk_fma_f32', r + i, [('b', SM + t + 1), CSQ + 8 + 4 * hf + i, r + i], 0))
        for p in range(2):
            a('v_cvt_pk_bf16_f32 v%d, v%d, v%d' % (KF + 4 * (t + 1) + 2 * hf + p, r + 2 * p, r + 2 * p + 1))
L_E, L_HX = L.L_R2 + 16384, L.L_R2 + 26624
a('s_lshl_b32 s%d, s%d, 11' % (sA, sW))
a('s_add_u32 s%d, s%d, %d' % (sA, sA, L_E))
a('v_add_u32 v246, s%d, v1' % sA)
a('s_lshl_b32 s%d, s%d, 10' % (sA, sW))
a('s_add_u32 s%d, s%d, %d' % (sA, sA, L_HX))
a('v_add_u32 v247, s%d, v1' % sA)
a('s_waitcnt lgkmcnt(0)')
for t in range(2):
    for d in range(2):
        r = AV + (t * 2 + d) * 4
        for i in (0, 2):
            a(pk('v_pk_fma_f32', r + i, [MROW + 4 * (t + 1) + i, ('b', CSQ + 16 + d), r + i], 0))
        for p in range(2):
            a('v_cvt_pk_bf16_f32 v%d, v%d, v%d' % (VF + 6 * d + 2 * (t + 1) + p, r + 2 * p, r + 2 * p + 1))
a('ds_write_b128 v246, %s offset:2048' % vr(KF + 8))
a('ds_write_b64 v246, %s offset:3072' % vr(VF + 4, 2))
a('ds_write_b64 v246, %s offset:3080' % vr(VF + 10, 2))
a('ds_write_b128 v247, %s' % vr(HACC))
pair_base(sA, L.O)
a('s_lshl_b32 s%d, s%d, 4' % (sB, sGT))
a('s_add_u32 s%d, s%d, s%d' % (sB, sB, sC))
a('s_lshl_b32 s%d, s%d, 10' % (sB, sB))
a('s_add_u32 s32, s%d, s%d' % (sA, sB))
a('s_add_u32 s33, s32, 16384')
a('s_waitcnt lgkmcnt(0)')
a('s_barrier')
SS = 172
a('s_cmp_eq_u32 s%d, 0' % sW)
a('s_cbranch_scc1 L_a_halo')
a('ds_read_b128 %s, v246' % vr(KF))
a('ds_read_b64 %s, v246 offset:1024' % vr(VF, 2))
a('ds_read_b64 %s, v246 offset:1032' % vr(VF + 6, 2))
a('s_waitcnt lgkmcnt(0)')
a('s_branch L_a_prev')
a.label('L_a_halo')
a('v_add_u32 v247, %d, v1' % L_HX)
for p in range(4):
    a('ds_read_b128 %s, v247 offset:%d' % (vr(SS + 4 * p), 1024 * p))
a('s_waitcnt lgkmcnt(0)')
for hf in range(2):
    r = SS + 4 * hf
    for i in (0, 2):
        a(pk('v_pk_fma_f32', r + i, [('b', SM), CSQ + 8 + 4 * hf + i, r + i], 0))
    for p in range(2):
        a('v_cvt_pk_bf16_f32 v%d, v%d, v%d' % (KF + 2 * hf + p, r + 2 * p, r + 2 * p + 1))
for d in range(2):
    r = SS + 8 + 4 * d
    for i in (0, 2):
        a(pk('v_pk_fma_f32', r + i, [MROW + i, ('b', CSQ + 16 + d), r + i], 0))
    for p in range(2):
        a('v_cvt_pk_bf16_f32 v%d, v%d, v%d' % (VF + 6 * d + p, r + 2 * p, r + 2 * p + 1))
a.label('L_a_prev')
a('s_nop 1')
for t in range(2):
    a('%s %s, %s, %s, 0' % (MFMA, vr(SS + 8 * t), vr(KF + 4 * t), vr(QF + 4 * t)))
    a('%s %s, %s, %s, 0' % (MFMA, vr(SS + 8 * t + 4), vr(KF + 4 * t + 4), vr(QF + 4 * t)))
SCALE = (28.0 ** -0.5) * 1.4426950408889634
MX, CC, LS, TMPR = 190, 192, 194, 196
PF = 200
SUMT = [(224, 226), (232, 188)]
a('v_mov_b32 v198, 0xff800000')
seq = [[], []]
for t in range(2):
    s_ = SS + 8 * t
    q = seq[t]
    rr = lambda e: RROW + 4 * (t + (e >> 2)) + (e & 3)
    for e in range(0, 8, 2):
        q.append(pk('v_pk_mul_f32', s_ + e, [s_ + e, rr(e)]))
    for e in range(8):
        mk = (sM0 if t == 0 else sM1) + 2 * e if e < 4 else sM2 + 2 * (e - 4)
        q.append('v_cndmask_b32 v%d, v198, v%d, %s' % (s_ + e, s_ + e, sp(mk)))
    q.append('v_max3_f32 v%d, v%d, v%d, v%d' % (MX + t, s_, s_ + 1, s_ + 2))
    q.append('v_max3_f32 v%d, v%d, v%d, v%d' % (MX + t, MX + t, s_ + 3, s_ + 4))
    q.append('v_max3_f32 v%d, v%d, v%d, v%d' % (MX + t, MX + t, s_ + 5, s_ + 6))
    q.append('v_max_f32 v%d, v%d, v%d' % (MX + t, MX + t, s_ + 7))
    q += xg_reduce(MX + t, TMPR + t, 'v_max_f32')
    q.append('v_mul_f32 v%d, %s, v%d' % (CC + t, f2h(SCALE), SR + t + 1))
    q.append('v_mul_f32 v%d, v%d, v%d' % (MX + t, MX + t, CC + t))
    for e in range(0, 8, 2):
        q.append(pk('v_pk_fma_f32', s_ + e, [s_ + e, ('b', CC + t), ('b', MX + t)], 2))
    for e in range(8):
        q.append('v_exp_f32 v%d, v%d' % (s_ + e, s_ + e))
    u_, u2 = SUMT[t]
    q.append(pk('v_pk_add_f32', u_, [s_, s_ + 2]))
    q.append(pk('v_pk_add_f32', u2, [s_ + 4, s_ + 6]))
    q.append(pk('v_pk_add_f32', u_, [u_, u2]))
    q.append('v_add_f32 v%d, v%d, v%d' % (LS + t, u_, u_ + 1))
    q += xg_reduce(LS + t, TMPR + t)
    q.append('v_rcp_f32 v%d, v%d' % (LS + t, LS + t))
    for e in range(0, 8, 2):
        q.append(pk('v_pk_mul_f32', s_ + e, [s_ + e, rr(e)]))
    for p in range(4):
        q.append('v_cvt_pk_bf16_f32 v%d, v%d, v%d' % (PF + 4 * t + p, s_ + 2 * p, s_ + 2 * p + 1))
merged = [z for xy in zip(*seq) for z in xy]
gap = len(merged) // (len(wb_loads) + 1)
for k, x in enumerate(merged):
    a(x)
    if k % gap == gap - 1 and wb_loads:
        a(wb_loads.pop(0))
assert not wb_loads
OO = 208
for t in range(2):
    for d in range(2):
        a('%s %s, %s, %s, 0' % (MFMA, vr(OO + 8 * t + 4 * d), vr(VF + 6 * d + 2 * t), vr(PF + 4 * t)))
for t in range(2):
    for e in range(0, 8, 2):
        a(pk('v_pk_mul_f32', OO + 8 * t + e, [OO + 8 * t + e, ('b', LS + t)]))
    for p in range(4):
        a('v_cvt_pk_bf16_f32 v%d, v%d, v%d' % (PF + 4 * t + p, OO + 8 * t + 2 * p, OO + 8 * t + 2 * p + 1))
    store('buffer_store_dwordx4 %s, v1, %s, s%d offen' % (vr(PF + 4 * t), srd(S_WS), 32 + t), sFD)
o_mark = a.vm_mark()
pair_base(sA, L.FA)
a('s_lshl_b32 s%d, s%d, 4' % (sB, sGT))
a('s_add_u32 s%d, s%d, s%d' % (sB, sB, sC))
a('s_lshl_b32 s%d, s%d, 2' % (sB, sB))
a('s_add_u32 s%d, s%d, s%d' % (sA, sA, sB))
a('v_lshlrev_b32 v241, 6, v0')
a('v_add_u32 v241, s%d, v241' % sA)
pair_base(sA, L.FA)
a('s_lshl_b32 s%d, s%d, 8' % (sB, sG))
a('s_add_u32 s%d, s%d, s%d' % (sA, sA, sB))
a('v_lshl_add_u32 v240, v0, 2, s%d' % sA)
a('s_lshl_b32 s%d, s%d, 2' % (sB, sW))
a('s_lshl_b32 s%d, 0x000f000f, s%d' % (sMK, sB))
a('s_mov_b32 s%d, s%d' % (sMK + 1, sMK))
red_addrs()
publish_setup(L.XB, L.SB, L.FB, True, 4)
a('s_mov_b32 s%d, s%d' % (sPC, sFD))
a('s_mov_b32 s%d, s%d' % (sPFC, sFAST))
pair_base(sA, L.O)
a('s_lshl_b32 s%d, s%d, 6' % (sB, sG))
a('s_lshl_b32 s%d, s%d, 2' % (sCc, sW))
a('s_add_u32 s%d, s%d, s%d' % (sB, sB, sCc))
a('s_lshl_b32 s%d, s%d, 10' % (sB, sB))
a('s_add_u32 s20, s%d, s%d' % (sA, sB))
for t in range(1, 4):
    a('s_add_u32 s%d, s20, %d' % (20 + t, 16384 * t))
a.wait_vm(o_mark)
a('s_mov_b64 exec, 3')
store('buffer_store_dword v%d, v241, %s, 0 offen' % (V_T, srd(S_WS)), sFAST)
a('s_mov_b64 exec, -1')
stamp()
a('s_cmp_eq_u32 s%d, 7' % sJ)
a('s_cbranch_scc1 L_next_pair')


def wd_bases():
    a('s_lshl_b32 s%d, s%d, 2' % (sA, sJ))
    a('s_mul_i32 s%d, s%d, %d' % (sA, sA, 56 * 1024))
    a('s_mul_i32 s%d, s%d, %d' % (sB, sW, 14 * 1024))
    a('s_add_u32 s%d, s%d, s%d' % (sA, sA, sB))
    a('s_add_u32 s%d, s%d, %d' % (sO, sA, L.WD))
    quarter_offsets(4, 56 * 1024)


def wd_load(fi):
    kk, t = fi >> 2, fi & 3
    return ('buffer_load_dwordx4 %s, v1, %s, s%d offen offset:%d sc1' %
            (ar(4 * fi), srd(S_WS), sO + 4 * t + (kk >> 2), 1024 * (kk & 3)))


WD_CH = [(0, 12), (12, 56)]
BO, BACC, BRD, BTMP = 66, 130, 194, 226
a('s_cmp_eq_u32 s%d, 0' % sPAIR)
a('s_cbranch_scc0 L_b_start')
for k in range(4):
    a('v_lshlrev_b32 v236, 16, v%d' % (228 + k))
    a('v_and_b32 v237, 0xffff0000, v%d' % (228 + k))
    a('v_accvgpr_write_b32 a%d, v236' % (A_B2 + 2 * k))
    a('v_accvgpr_write_b32 a%d, v237' % (A_B2 + 2 * k + 1))
wd_bases()
for fi in range(*WD_CH[0]):
    a(wd_load(fi))
a.label('L_b_start')
CWW = 66
sCI = 41
a('s_lshr_b32 s%d, s%d, 3' % (sA, sC))
a('s_mul_i32 s%d, s%d, 7' % (sA, sA))
a('s_add_u32 s%d, s%d, s%d' % (sCI, sA, sJ))
a('s_lshl_b32 s%d, s%d, 3' % (sA, sCI))
a('s_lshl_b32 s%d, s%d, 1' % (sB, sW))
a('s_add_u32 s%d, s%d, s%d' % (sA, sA, sB))
a('s_mul_i32 s%d, s%d, %d' % (sB, sA, 14 * 1024))
a('s_add_u32 s%d, s%d, %d' % (sO, sB, L.WC))
quarter_offsets(2, 14 * 1024)


def c_wload(idx):
    u, k = idx >> 1, idx & 1
    return ('buffer_load_dwordx4 %s, v1, %s, s%d offen offset:%d sc1' %
            (vr(CWW + 4 * idx), srd(S_WS), sO + 4 * k + (u >> 2), 1024 * (u & 3)))


def red_writes(acc, tile):
    return ['ds_write_b128 v248, %s offset:%d' % (vr(acc + 4 * t), (tile >> 1) * 32768 + (tile & 1) * 4096 + t * 1024)
            for t in range(4)]


def red_reads(st, rd):
    return ['ds_read_b128 %s, v249 offset:%d' % (vr(rd + (b * 2 + k) * 4), st * 32768 + b * 8192 + k * 1024)
            for b in range(4) for k in range(2)]


def add8(dst, x, y, packed):
    if packed:
        return ['v_pk_add_f32 %s, %s, %s' % (vr(dst + e, 2), vr(x + e, 2), vr(y + e, 2)) for e in range(0, 8, 2)]
    return ['v_add_f32 v%d, v%d, v%d' % (dst + e, x + e, y + e) for e in range(8)]


def finish_pre(st, is_d, tmp):
    res = A_RES + 4 * st
    o = ['v_accvgpr_read_b32 v%d, a%d' % (tmp + 8 + p, res + p) for p in range(4)]
    for p in range(4):
        o += ['v_lshlrev_b32 v%d, 16, v%d' % (tmp + 2 * p, tmp + 8 + p),
              'v_and_b32 v%d, 0xffff0000, v%d' % (tmp + 2 * p + 1, tmp + 8 + p)]
    if is_d:
        o += ['v_accvgpr_read_b32 v%d, a%d' % (tmp + 8 + e, A_B2 + e) for e in range(8)]
        o += ['v_add_f32 v%d, v%d, v%d' % (tmp + e, tmp + e, tmp + 8 + e) for e in range(8)]
    return o


def finish_sum(st, rd, tmp, pk, packed):
    o = add8(rd, rd, rd + 8, packed) + add8(rd + 16, rd + 16, rd + 24, packed) + add8(rd, rd, rd + 16, packed)
    o += add8(tmp, tmp, rd, packed)
    o += ['v_cvt_pk_bf16_f32 v%d, v%d, v%d' % (pk + p, tmp + 2 * p, tmp + 2 * p + 1) for p in range(4)]
    o += ['v_accvgpr_write_b32 a%d, v%d' % (A_RES + 4 * st + p, pk + p) for p in range(4)]
    return o


def owner_stats(tmp, s1, t):
    a('v_pk_add_f32 %s, %s, %s' % (vr(t, 2), vr(tmp, 2), vr(tmp + 2, 2)))
    a('v_pk_add_f32 %s, %s, %s' % (vr(t + 2, 2), vr(tmp + 4, 2), vr(tmp + 6, 2)))
    a('v_pk_add_f32 %s, %s, %s' % (vr(t, 2), vr(t, 2), vr(t + 2, 2)))
    a('v_add_f32 v%d, v%d, v%d' % (s1, t, t + 1))
    a('v_pk_mul_f32 %s, %s, %s' % (vr(t, 2), vr(tmp, 2), vr(tmp, 2)))
    for e in (2, 4, 6):
        a('v_pk_fma_f32 %s, %s, %s, %s' % (vr(t, 2), vr(tmp + e, 2), vr(tmp + e, 2), vr(t, 2)))
    a('v_add_f32 v%d, v%d, v%d' % (s1 + 1, t, t + 1))
    for x, y in zip(xg_reduce(s1, t), xg_reduce(s1 + 1, t + 1)):
        a(x)
        a(y)


def publish_data(st, pk):
    store('buffer_store_dwordx4 %s, v1, %s, s%d offen offset:0' % (vr(pk), srd(S_WS), sPX if st == 0 else sPX2), sPC)


def publish_stats(tmps, t, s1):
    a('v_and_b32 v%d, 15, v0' % V_TOK)
    a('v_lshlrev_b32 v%d, 3, v%d' % (t + 4, V_TOK))
    for st in range(2):
        owner_stats(tmps[st], s1 + 2 * st, t)
    a('s_mov_b64 exec, 0xffff')
    store('buffer_store_dwordx2 %s, v%d, %s, s%d offen' % (vr(s1, 2), t + 4, srd(S_WS), sPS), sPC)
    a('s_add_u32 s%d, s%d, %d' % (sPS, sPS, 2 * 1792))
    store('buffer_store_dwordx2 %s, v%d, %s, s%d offen' % (vr(s1 + 2, 2), t + 4, srd(S_WS), sPS), sPC)
    a('s_mov_b64 exec, -1')


def publish_flags(lsh, between=()):
    a('v_lshlrev_b32 v241, %d, v0' % lsh)
    a('v_add_u32 v241, s%d, v241' % sPF)
    set_flags(241, 2, sPFC, V_T, between)


def run_tiles(tile_items, extras):
    for tile in range(4):
        items = tile_items(tile)
        ex = list(extras.get(tile, []))
        free = [k for k, it in enumerate(items) if k >= 3 and not it[2]]
        per = -(-len(ex) // max(1, len(free))) if ex else 0
        for k, (pre, m, post) in enumerate(items):
            for x in pre:
                x()
            a(m)
            if post:
                post()
            elif k >= 3:
                for _ in range(per):
                    if ex:
                        x = ex.pop(0)
                        if callable(x):
                            x()
                        else:
                            a(x)
        assert not ex


poll(240)
stamp()


def b_oload(tile, i):
    return 'buffer_load_dwordx4 %s, v1, %s, s%d offen offset:%d sc1' % (vr(BO + (tile * 4 + i) * 4), srd(S_WS), 20 + tile, 1024 * i)


om = {}
for tile in range(2):
    for i in range(4):
        a(b_oload(tile, i))
        om[(tile, i)] = a.vm_mark()


def b_tile(tile):
    items = []
    for i in range(4):
        for t in range(4):
            r = BACC + (tile * 4 + t) * 4
            pre = [(lambda tl=tile, ii=i: a.wait_vm(om[(tl, ii)]))] if t == 0 else []
            post = None
            if tile < 2 and t == 1:
                def post(tl=tile + 2, ii=i):
                    a(b_oload(tl, ii))
                    om[(tl, ii)] = a.vm_mark()
            if tile >= 2 and t == 1:
                def post(idx=4 * (tile - 2) + i):
                    a(c_wload(idx))
            items.append((pre, '%s %s, %s, %s, %s' % (MFMA, vr(r), vr(BW + (i * 4 + t) * 4), vr(BO + (tile * 4 + i) * 4),
                                                      '0' if i == 0 else vr(r)), post))
    return items


BT0, BT1, BPK = 226, 2, 18
run_tiles(b_tile, {1: red_writes(BACC, 0), 2: red_writes(BACC + 16, 1), 3: red_writes(BACC + 32, 2)})
stamp2()
for x in red_writes(BACC + 48, 3):
    a(x)
for x in finish_pre(0, False, BT0) + finish_pre(1, False, BT1):
    a(x)
a('s_waitcnt lgkmcnt(0)')
a('s_barrier')
stamp2()
BRD1 = 162
for x in red_reads(0, BRD) + red_reads(1, BRD1):
    a(x)
a('s_waitcnt lgkmcnt(8)')
for x in finish_sum(0, BRD, BT0, BPK, True):
    a(x)
publish_data(0, BPK)
a('s_waitcnt lgkmcnt(0)')
for x in finish_sum(1, BRD1, BT1, BPK + 4, True):
    a(x)
publish_data(1, BPK + 4)
stamp2()
publish_stats([BT0, BT1], 36, 32)
b_mark = a.vm_mark()
a('v_lshlrev_b32 v236, 7, v0')
a('v_add_u32 v236, s%d, v236' % sPF)
for i in range(8, 16):
    a(c_wload(i))
CA = [2, 10]
XF, NXF = 18, 8
GTMP, GH = 50, 58
CCS, CB1, CB1R = 178, 186, 194
CSTR = 198
CMR = 214
VGA = 218
a('v_lshrrev_b32 v%d, 4, v0' % V_G)
a('v_and_b32 v%d, 15, v0' % V_TOK)
pair_base(sA, L.FB)
a('s_lshl_b32 s%d, s%d, 9' % (sB, sS))
a('s_add_u32 s%d, s%d, s%d' % (sA, sA, sB))
a('v_lshl_add_u32 v240, v0, 2, s%d' % sA)
a('s_mov_b32 s%d, 0x3fff3fff' % sMK)
a('s_mov_b32 s%d, 0x3fff3fff' % (sMK + 1))
pair_base(20, L.XB)
a('s_mul_i32 s%d, s%d, %d' % (sB, sS, 8 * 14336))
a('s_add_u32 s20, s20, s%d' % sB)
a('s_lshl_b32 s%d, s%d, 12' % (sB, sW))
a('s_add_u32 s20, s20, s%d' % sB)
a('s_add_u32 s21, s%d, %d' % (sB, L.L_R2))
pair_base(22, L.SB)
a('s_lshl_b32 s%d, s%d, 3' % (sB, sS))
a('s_add_u32 s%d, s%d, s%d' % (sB, sB, sW))
a('s_mul_i32 s%d, s%d, 1792' % (sB, sB))
a('s_add_u32 s22, s22, s%d' % sB)
a('s_add_u32 s23, s22, %d' % (4 * 1792))
pair_base(32, L.H)
a('s_mul_i32 s%d, s%d, %d' % (sB, sS, 8 * 56 * 1024))
a('s_add_u32 s32, s32, s%d' % sB)
a('s_lshl_b32 s%d, s%d, 2' % (sB, sCI))
a('s_add_u32 s%d, s%d, s%d' % (sB, sB, sW))
a('s_lshl_b32 s%d, s%d, 10' % (sCc, sB))
a('s_add_u32 s32, s32, s%d' % sCc)
pair_base(33, L.FC)
a('s_lshl_b32 s%d, s%d, 11' % (sCc, sS))
a('s_add_u32 s33, s33, s%d' % sCc)
a('s_lshl_b32 s%d, s%d, 2' % (sB, sB))
a('s_add_u32 s33, s33, s%d' % sB)
a('v_mov_b32 v241, s33')
a('v_mov_b32 v242, 0x%x' % INV)
a('v_cmp_eq_u32 vcc, 0, v0')
a('v_cndmask_b32 v241, v242, v241, vcc')
a('v_lshlrev_b32 v238, 3, v%d' % V_TOK)
a('v_lshl_add_u32 v238, v%d, 7, v238' % V_G)
a('v_mov_b32 v242, 0x%x' % INV)
a('v_cmp_lt_u32 vcc, 1, v%d' % V_G)
a('v_cndmask_b32 v239, 0, v242, vcc')
a('v_or_b32 v239, v239, v238')
a('v_add_u32 v252, %d, v1' % L.L_R2)
a('v_lshlrev_b32 v246, 3, v%d' % V_TOK)
a('v_add_u32 v246, %d, v246' % L.L_STC)
GA = 2.0 * 0.7978845608028654 * 1.4426950408889634
GB = GA * 0.044715
a('v_mov_b32 v%d, %s' % (VGA, f2h(-GA)))
a('v_mov_b32 v%d, %s' % (VGA + 1, f2h(-GA)))
a('s_mov_b32 s34, %s' % f2h(-GB))
a('s_mov_b32 s35, %s' % f2h(-GB))
wd_bases_hi = True
a.wait_vm(b_mark)
a('s_mov_b64 exec, 3')
store('buffer_store_dword v%d, v236, %s, 0 offen' % (V_T, srd(S_WS)), sPFC)
a('s_mov_b64 exec, -1')
stamp()

poll(240, 256)
stamp()


def c_dma_setup(t):
    return ['s_add_u32 s36, s20, %d' % (t * 14336), 's_add_u32 m0, s21, %d' % ((t & 3) * 16384)]


def c_dma(t, i):
    return 'buffer_load_dwordx4 v1, %s, s36 offen offset:%d sc1 lds' % (srd(S_WS), 1024 * i)


dm = {}
for x in c_dma_setup(0) + [c_dma(0, i) for i in range(4)]:
    a(x)
dm[0] = a.vm_mark()
wlate = {}
for i in range(16, 22):
    a(c_wload(i))
    wlate[i >> 1] = a.vm_mark()
for x in c_dma_setup(1) + [c_dma(1, i) for i in range(4)]:
    a(x)
dm[1] = a.vm_mark()
a('s_lshl_b32 s%d, s%d, 3' % (sA, sCI))
a('s_lshl_b32 s%d, s%d, 1' % (sB, sW))
a('s_add_u32 s%d, s%d, s%d' % (sA, sA, sB))
a('s_lshl_b32 s24, s%d, 5' % sA)
a('v_lshlrev_b32 v248, 3, v%d' % V_G)
t0_loads = [('w', i) for i in range(22, 28)]
t0_loads += [('s', 'buffer_load_dwordx2 %s, v%d, %s, s%d offen offset:%d sc1' %
              (vr(CSTR + 8 * tt + 2 * i, 2), 239 if i == 3 else 238, srd(S_WS), 22 + tt, 512 * i)) for tt in range(2) for i in range(4)]
t0_loads += [('s', 'buffer_load_dwordx2 %s, v248, %s, s24 offen offset:%d' % (vr(CB1R + 2 * k, 2), srd(S_B1), 32 * k)) for k in range(2)]
b1_unpack = []
for k in range(2):
    for p in range(2):
        b1_unpack += ['v_lshlrev_b32 v%d, 16, v%d' % (CB1 + 4 * k + 2 * p, CB1R + 2 * k + p),
                      'v_and_b32 v%d, 0xffff0000, v%d' % (CB1 + 4 * k + 2 * p + 1, CB1R + 2 * k + p)]
a.wait_vm(dm[0])
a('s_barrier')
stamp()


def c_xread(t, u):
    n = t * 14 + u
    return 'ds_read_b128 %s, v252 offset:%d' % (vr(XF + 4 * (n % NXF)), (t & 3) * 16384 + u * 1024)


def gelu_pre(t):
    z, m = CA[t & 1], CMR + 2 * (t & 1)
    P = range(0, 8, 2)
    o = ['v_pk_fma_f32 %s, %s, %s, %s op_sel_hi:[1,0,1] neg_lo:[0,1,0] neg_hi:[0,1,0]' % (vr(z + e, 2), vr(CCS + e, 2), vr(m, 2), vr(z + e, 2)) for e in P]
    o += ['v_pk_fma_f32 %s, %s, %s, %s op_sel:[0,1,0] op_sel_hi:[1,1,1]' % (vr(z + e, 2), vr(z + e, 2), vr(m, 2), vr(CB1 + e, 2)) for e in P]
    o += ['v_pk_mul_f32 %s, %s, %s' % (vr(GTMP + e, 2), vr(z + e, 2), vr(z + e, 2)) for e in P]
    o += ['v_pk_fma_f32 %s, %s, s[34:35], %s' % (vr(GTMP + e, 2), vr(GTMP + e, 2), vr(VGA, 2)) for e in P]
    o += ['v_pk_mul_f32 %s, %s, %s' % (vr(GTMP + e, 2), vr(GTMP + e, 2), vr(z + e, 2)) for e in P]
    return o


def gelu_mid():
    o = {}
    for e in range(8):
        o.setdefault(2 * e, []).append('v_exp_f32 v%d, v%d' % (GTMP + e, GTMP + e))
        o.setdefault(2 * e + 3, []).append('v_add_f32 v%d, 1.0, v%d' % (GTMP + e, GTMP + e))
    for e in range(6):
        o.setdefault(16 + 2 * e, []).append('v_rcp_f32 v%d, v%d' % (GTMP + e, GTMP + e))
    o.setdefault(25, []).append('v_rcp_f32 v%d, v%d' % (GTMP + 6, GTMP + 6))
    o.setdefault(27, []).append('v_rcp_f32 v%d, v%d' % (GTMP + 7, GTMP + 7))
    return o


def gelu_post(t):
    z, h = CA[t & 1], GH + 4 * (t & 1)
    o = ['v_pk_mul_f32 %s, %s, %s' % (vr(GTMP + e, 2), vr(GTMP + e, 2), vr(z + e, 2)) for e in range(0, 8, 2)]
    o += ['v_cvt_pk_bf16_f32 v%d, v%d, v%d' % (h + p, GTMP + 2 * p, GTMP + 2 * p + 1) for p in range(4)]
    return o


def gelu_packed(t):
    z, m, h = CA[t & 1], CMR + 2 * (t & 1), GH + 4 * (t & 1)
    P = range(0, 8, 2)
    for e in P:
        a('v_pk_fma_f32 %s, %s, %s, %s op_sel_hi:[1,0,1] neg_lo:[0,1,0] neg_hi:[0,1,0]' % (vr(z + e, 2), vr(CCS + e, 2), vr(m, 2), vr(z + e, 2)))
    for e in P:
        a('v_pk_fma_f32 %s, %s, %s, %s op_sel:[0,1,0] op_sel_hi:[1,1,1]' % (vr(z + e, 2), vr(z + e, 2), vr(m, 2), vr(CB1 + e, 2)))
    for e in P:
        a('v_pk_mul_f32 %s, %s, %s' % (vr(GTMP + e, 2), vr(z + e, 2), vr(z + e, 2)))
    for e in P:
        a('v_pk_fma_f32 %s, %s, s[34:35], %s' % (vr(GTMP + e, 2), vr(GTMP + e, 2), vr(VGA, 2)))
    for e in P:
        a('v_pk_mul_f32 %s, %s, %s' % (vr(GTMP + e, 2), vr(GTMP + e, 2), vr(z + e, 2)))
    for e in range(8):
        a('v_exp_f32 v%d, v%d' % (GTMP + e, GTMP + e))
    for e in P:
        a('v_pk_add_f32 %s, %s, 1.0 op_sel_hi:[1,0]' % (vr(GTMP + e, 2), vr(GTMP + e, 2)))
    for e in range(8):
        a('v_rcp_f32 v%d, v%d' % (GTMP + e, GTMP + e))
    for e in P:
        a('v_pk_mul_f32 %s, %s, %s' % (vr(GTMP + e, 2), vr(GTMP + e, 2), vr(z + e, 2)))
    for p in range(4):
        a('v_cvt_pk_bf16_f32 v%d, v%d, v%d' % (h + p, GTMP + 2 * p, GTMP + 2 * p + 1))


hmk, fmk = {}, {}


def h_store(t):
    def f():
        a('s_add_u32 s24, s32, %d' % (t * 56 * 1024))
        store('buffer_store_dwordx4 %s, v1, %s, s24 offen' % (vr(GH + 4 * (t & 1)), srd(S_WS)), sFH)
        hmk[t] = a.vm_mark()
    return f


def h_flag(t):
    def f():
        a.wait_vm(hmk[t])
        store('buffer_store_dword v%d, v241, %s, 0 offen offset:%d' % (V_T, srd(S_WS), 256 * t), sFAST)
    return f


def wd_block(fis, wave):
    def f():
        skip = newlab('L_wd')
        a('s_cmp_eq_u32 s24, %d' % wave)
        a('s_cbranch_scc0 %s' % skip)
        for fi in fis:
            a(wd_load(fi))
            a.vm_issued -= 1
        a.label(skip)
    return f


cst_fill = []
for tt in range(2):
    r = CSTR + 8 * tt
    for c_ in range(2):
        cst_fill += ['v_add_f32 v%d, v%d, v%d' % (r + c_, r + c_, r + 2 + c_),
                     'v_add_f32 v%d, v%d, v%d' % (r + 4 + c_, r + 4 + c_, r + 6 + c_),
                     'v_add_f32 v%d, v%d, v%d' % (r + c_, r + c_, r + 4 + c_)]
    cst_fill += xg_reduce(r, r + 2) + xg_reduce(r + 1, r + 3) + stats_finish(r, r + 1, r + 2, True)
a('s_lshl_b32 s%d, s%d, 7' % (sA, sW))
a('v_add_u32 v247, s%d, v246' % sA)
cst_fill += ['ds_write_b64 v247, %s' % vr(CSTR, 2), 'ds_write_b64 v247, %s offset:512' % vr(CSTR + 8, 2)] + b1_unpack
LOOKX = 6


A_CCS = 244


def emit_c_loop(wd_list):
    pass0 = bool(wd_list)
    if not pass0:
        for e in range(8):
            a('v_accvgpr_read_b32 v%d, a%d' % (CCS + e, A_CCS + e))
    for u in range(LOOKX):
        a(c_xread(0, u))
    for t in range(8):
        nonvec = {}

        def put(k, x):
            nonvec.setdefault(k, []).append(x)
        for u in range(14):
            n = t * 14 + u
            m = n + LOOKX
            if m < 8 * 14:
                put(2 * u + 1, c_xread(m // 14, m % 14))
            if u % 2 == 1 and n + 1 < 8 * 14:
                put(2 * u + 1, 's_waitcnt lgkmcnt(%d)' % min(LOOKX - 2, 8 * 14 - 1 - (n + 2)))
        if t < 7:
            nonvec[14] = [('bar', t + 1)] + nonvec.get(14, [])
        if t + 2 < 8:
            su = c_dma_setup(t + 2)
            put(0, su[0])
            put(0, su[1])
            for i in range(4):
                put(2 + 2 * i, ('dma', t + 2, i))
        if t >= 3:
            put(20, ('call', h_flag(t - 3)))
        if t == 7:
            def issue_d0():
                amark['d0'] = early_issue(244, 243)
            put(22, ('call', issue_d0))
        if t < 7:
            for k in (10, 12, 16, 18, 22, 24, 26):
                if wd_list:
                    put(k, wd_load(wd_list.pop(0)))
        if t > 0:
            put(17, 'ds_read_b64 %s, v246 offset:%d' % (vr(CMR + 2 * (t & 1), 2), 128 * t))
        if t == 0:
            for k, it in enumerate(t0_loads):
                put(k, ('t0', it))
            put(6, ('call', wd_bases))
        valu = gelu_mid() if t >= 1 else {}
        if t >= 2:
            for x in gelu_post(t - 2):
                a(x)
            h_store(t - 2)()
        if t >= 1:
            for x in gelu_pre(t - 1):
                a(x)
        fill = list(cst_fill) if t == 0 else []
        first = 18
        fi = 0
        for k in range(28):
            u, kk = k >> 1, k & 1
            n = t * 14 + u
            if t == 0 and k == 0:
                a('s_waitcnt lgkmcnt(%d)' % (LOOKX - 2))
            if t == 0 and kk == 0 and u in wlate:
                a.wait_vm(wlate[u])
            if t == 0 and k == first:
                a.wait_vm(amark['cst'])
            r = CA[t & 1] + 4 * kk
            a('%s %s, %s, %s, %s' % (MFMA, vr(r), vr(CWW + 4 * (2 * u + kk)), vr(XF + 4 * (n % NXF)), '0' if u == 0 else vr(r)))
            if pass0 and t == 0:
                a('%s %s, %s, %s, %s' % (MFMA, vr(CCS + 4 * kk), vr(CWW + 4 * (2 * u + kk)), ar(A_ONES), '0' if u == 0 else vr(CCS + 4 * kk)))
            for it in nonvec.get(k, []):
                if isinstance(it, str):
                    a(it)
                elif it[0] == 'bar':
                    a.wait_vm(dm[it[1]])
                    a('s_barrier')
                elif it[0] == 'dma':
                    a(c_dma(it[1], it[2]))
                    dm[it[1]] = a.vm_mark()
                elif it[0] == 'call':
                    it[1]()
                elif it[0] == 't0':
                    if it[1][0] == 'w':
                        a(c_wload(it[1][1]))
                        wlate[it[1][1] >> 1] = a.vm_mark()
                    else:
                        a(it[1][1])
                        amark['cst'] = a.vm_mark()
            for x in valu.get(k, []):
                a(x)
            if fill and k >= first:
                want = -(-(len(fill)) * (k - first + 1) // (28 - first))
                while fi < want:
                    a(fill[fi])
                    fi += 1
        assert fi == len(fill)
        if t == 0:
            a('s_waitcnt lgkmcnt(0)')
            a('s_barrier')
            a('ds_read_b64 %s, v246 offset:0' % vr(CMR, 2))
            if pass0:
                for e in range(8):
                    a('v_accvgpr_write_b32 a%d, v%d' % (A_CCS + e, CCS + e))
            a('s_waitcnt lgkmcnt(0)')
    assert not wd_list


pair_base(sA, L.FC)
a('s_lshl_b32 s%d, s%d, 10' % (sB, sG))
a('s_add_u32 s%d, s%d, s%d' % (sA, sA, sB))
a('s_mul_i32 s%d, s%d, 56' % (sB, sW))
a('s_add_u32 s%d, s%d, s%d' % (sA, sA, sB))
a('v_lshl_add_u32 v243, v0, 2, s%d' % sA)
a('s_mov_b32 s%d, 0x3fff' % sMK2)
a('s_mov_b32 s%d, 0' % (sMK2 + 1))
n_before = a.vm_issued
dm_init = dict(dm)
a('s_cmp_eq_u32 s%d, 0' % sPAIR)
a('s_cbranch_scc0 L_c_loop1')
emit_c_loop(list(range(*WD_CH[1])))
a('s_branch L_c_done')
a.label('L_c_loop1')
extra = a.vm_issued - n_before
a.vm_issued = n_before
dm.clear()
dm.update(dm_init)
emit_c_loop([])
a.label('L_c_done')
stamp()
DH, DACC, DRD = 66, 130, 194
DRING, DLOOK = 16, 10
red_addrs()
publish_setup(L.XA[1], L.SA[1], L.FX[1], False, 5)
a('s_and_b32 s%d, s%d, 1' % (sA, sG))
a('s_lshr_b32 s%d, s%d, 1' % (sB, sW))
a('s_and_b32 s%d, s%d, s%d' % (sA, sA, sB))
a('s_xor_b32 s%d, s%d, 1' % (sA, sA))
a('s_and_b32 s%d, s%d, s%d' % (sPC, sFD, sA))
a('s_mov_b32 s%d, s%d' % (sPFC, sFAST))
a('s_cmp_eq_u32 s%d, 0' % sA)
a('s_cselect_b32 s%d, 0, 0x%x' % (sCc, INV))
a('s_add_u32 s%d, s%d, 1' % (sA, sS))
a('s_lshl_b32 s%d, s%d, 5' % (sA, sA))
a('s_lshl_b32 s%d, s%d, 1' % (sB, sJ))
a('s_add_u32 s%d, s%d, s%d' % (sA, sA, sB))
a('s_and_b32 s%d, s%d, 1' % (sB, sW))
a('s_add_u32 s%d, s%d, s%d' % (sA, sA, sB))
a('s_lshl_b32 s%d, s%d, 2' % (sA, sA))
a('s_add_u32 s%d, s%d, %d' % (sA, sA, L.FH))
a('s_or_b32 s20, s%d, s%d' % (sA, sCc))
pair_base(sA, L.H)
a('s_mul_i32 s%d, s%d, %d' % (sB, sG, 4 * 56 * 1024))
a('s_add_u32 s%d, s%d, s%d' % (sA, sA, sB))
a('s_mul_i32 s%d, s%d, %d' % (sB, sW, 14 * 1024))
a('s_add_u32 s%d, s%d, s%d' % (sO, sA, sB))
quarter_offsets(4, 56 * 1024)
a('s_cmp_eq_u32 s%d, 0' % sPAIR)
a('s_cbranch_scc1 L_d_nout')
owner_index()
a('s_mul_i32 s%d, s%d, 14336' % (sPX, sB))
a('s_lshl_b32 s%d, s%d, 6' % (sA, sA))
a('s_add_u32 s%d, s%d, s%d' % (sPX, sPX, sA))
a('s_add_u32 s%d, s%d, %d' % (sPX2, sPX, 2 * 14336))
a.label('L_d_nout')
a('v_and_b32 v%d, 15, v0' % V_TOK)
a('v_lshrrev_b32 v%d, 4, v0' % V_G)
a('v_mul_u32_u24 v242, 896, v%d' % V_TOK)
a('v_lshl_add_u32 v242, v%d, 3, v242' % V_G)
early_check(244, 243, amark['d0'])


def d_hload(q):
    tile, kk = divmod(q, 14)
    return ('buffer_load_dwordx4 %s, v1, %s, s%d offen offset:%d sc1' %
            (vr(DH + (q % DRING) * 4), srd(S_WS), sO + 4 * tile + (kk >> 2), 1024 * (kk & 3)))


hm = {}
dmk = {}
for q in range(DLOOK):
    a(d_hload(q))
    hm[q] = a.vm_mark()
    if q == 6:
        dmk[1] = early_issue(244, 243, 256)
stamp()
for x in gelu_post(6):
    a(x)
h_store(6)()
a('s_waitcnt lgkmcnt(0)')
gelu_packed(7)
h_flag(5)()
h_store(7)()
stamp()

a('s_barrier')
stamp()


def d_tile(tile):
    items = []
    for kk in range(14):
        q = tile * 14 + kk
        for t in range(4):
            r = DACC + (tile * 4 + t) * 4
            pre = [(lambda qq=q: a.wait_vm(hm[qq]))] if t == 0 else []
            if t == 0 and q in (3, 9):
                pre.append(h_flag({3: 6, 9: 7}[q]))
            post = None
            if t == 0 and q + DLOOK < 56:
                def post(qq=q + DLOOK):
                    if qq % 14 == 0:
                        early_check(244, 243, dmk[qq // 14], 256 * (qq // 14))
                    a(d_hload(qq))
                    hm[qq] = a.vm_mark()
                    if qq % 14 == 6 and qq // 14 < 3:
                        dmk[qq // 14 + 1] = early_issue(244, 243, 256 * (qq // 14 + 1))
            items.append((pre, '%s %s, %s, %s, %s' % (MFMA, vr(r), ar((kk * 4 + t) * 4), vr(DH + (q % DRING) * 4),
                                                      '0' if kk == 0 else vr(r)), post))
    return items


def d_out_store(st, pk):
    a('buffer_store_dwordx2 %s, v242, %s, s%d offen %s' % (vr(pk, 2), srd(S_OUT), sPX if st == 0 else sPX2, OUTSC))
    a('buffer_store_dwordx2 %s, v242, %s, s%d offen offset:32 %s' % (vr(pk + 2, 2), srd(S_OUT), sPX if st == 0 else sPX2, OUTSC))


def d_store(st, pk):
    fin, done = newlab('L_dfin'), newlab('L_ddone')
    a('s_cmp_eq_u32 s%d, 0' % sPAIR)
    a('s_cbranch_scc0 %s' % fin)
    publish_data(st, pk)
    a('s_branch %s' % done)
    a.label(fin)
    n = a.vm_issued
    d_out_store(st, pk)
    a.vm_issued = n
    a.label(done)


DT0, DT1, DPK, DSTT, DSTS = 226, 2, 18, 28, 36
stage0 = [lambda: (a('s_waitcnt lgkmcnt(0)'), a('s_barrier'))] + red_reads(0, DRD) + finish_pre(0, True, DT0)
stage0 += [lambda: a('s_waitcnt lgkmcnt(0)')] + finish_sum(0, DRD, DT0, DPK, False) + [lambda: d_store(0, DPK)]
run_tiles(d_tile, {1: red_writes(DACC, 0), 2: red_writes(DACC + 16, 1), 3: red_writes(DACC + 32, 2) + stage0})
stamp2()
for x in red_writes(DACC + 48, 3):
    a(x)
for x in finish_pre(1, True, DT1):
    a(x)
a('s_waitcnt lgkmcnt(0)')
a('s_barrier')
stamp2()
for x in red_reads(1, DRD):
    a(x)
a('s_waitcnt lgkmcnt(0)')
for x in finish_sum(1, DRD, DT1, DPK + 4, True):
    a(x)
d_store(1, DPK + 4)
stamp()
a('s_cmp_eq_u32 s%d, 0' % sPAIR)
a('s_cbranch_scc0 L_next_pair')
publish_stats([DT0, DT1], DSTT, DSTS)
FHMODE = ([x[5:] for x in sys.argv if x.startswith('--fh=')] + ['after'])[0]
a('v_mov_b32 v240, s20')
if FHMODE == 'before':
    a('s_waitcnt vmcnt(0)')
    a('s_mov_b64 exec, 1')
    a('buffer_store_dword v%d, v240, %s, 0 offen sc1' % (V_T, srd(S_WS)))
    a('s_mov_b64 exec, -1')
    a('v_lshlrev_b32 v241, 8, v0')
    a('v_add_u32 v241, s%d, v241' % sPF)
    a('s_mov_b64 exec, 3')
    store('buffer_store_dword v%d, v241, %s, 0 offen' % (V_T, srd(S_WS)), sPFC)
    a('s_mov_b64 exec, -1')
else:
    publish_flags(8)
    if FHMODE == 'wait':
        a('s_waitcnt vmcnt(0)')
    a('s_mov_b64 exec, 1')
    a('buffer_store_dword v%d, v240, %s, 0 offen sc1' % (V_T, srd(S_WS)))
    a('s_mov_b64 exec, -1')
a.label('L_next_pair')
stamp()
a('s_add_u32 s%d, s%d, 1' % (sPAIR, sPAIR))
a('s_cmp_lt_u32 s%d, 2' % sPAIR)
a('s_cbranch_scc1 L_pair')

a('s_cmp_eq_u32 s2, 0')
a('s_cbranch_scc0 L_noepoch')
a('s_cmp_eq_u32 s%d, 0' % sW)
a('s_cbranch_scc0 L_noepoch')
a('buffer_load_dword v2, off, %s, 0 sc1' % srd(S_WS))
a('s_waitcnt vmcnt(0)')
a('v_add_u32 v2, 1, v2')
a('s_mov_b64 exec, 1')
a('buffer_store_dword v2, off, %s, 0 sc1' % srd(S_WS))
a('s_mov_b64 exec, -1')
a.label('L_noepoch')
if PAD:
    a.label('L_padspin')
    a('s_memrealtime s[34:35]')
    a('s_waitcnt lgkmcnt(0)')
    a('s_sub_u32 s34, s34, s0')
    a('s_cmp_lt_u32 s34, %d' % PAD[0])
    a('s_cbranch_scc1 L_padspin')
if DBG:
    a('s_memtime s[32:33]')
    a('s_memrealtime s[34:35]')
    a('s_waitcnt lgkmcnt(0)')
    a('s_sub_u32 s32, s32, s26')
    a('s_sub_u32 s34, s34, s0')
    build_srd(S_TMP, P_DBG, 256)
    a('v_mov_b32 v2, s32')
    a('v_mov_b32 v3, s34')
    a('v_mov_b32 v4, s%d' % sFAST)
    a('v_mov_b32 v5, s%d' % sXCC)
    a('s_lshr_b32 s%d, s2, 6' % sA)
    a('s_lshl_b32 s%d, s%d, 4' % (sA, sA))
    a('s_and_b32 s%d, s2, 63' % sB)
    a('s_or_b32 s%d, s%d, s%d' % (sB, sB, sW))
    a('s_cmp_eq_u32 s%d, 0' % sB)
    a('s_cselect_b32 s%d, s%d, 0x%x' % (sA, sA, INV))
    a('v_mov_b32 v6, s%d' % sA)
    a('s_mov_b64 exec, 1')
    a('buffer_store_dwordx4 v[2:5], v6, %s, 0 offen' % srd(S_TMP))
    a('s_mov_b64 exec, -1')
if DIAG:
    stamp()
    a('s_mov_b32 s%d, 63' % sSTI)
    a('s_lshl_b64 exec, 1, s%d' % sSTI)
    a('v_mov_b32 v%d, s%d' % (V_STAMP, sERR))
    a('s_mov_b32 s%d, 62' % sSTI)
    a('s_lshl_b64 exec, 1, s%d' % sSTI)
    a('v_mov_b32 v%d, s%d' % (V_STAMP, sFAST))
    a('s_mov_b64 exec, -1')
    a('s_lshl_b32 s%d, s2, 2' % sA)
    a('s_add_u32 s%d, s%d, s%d' % (sA, sA, sW))
    a('s_lshl_b32 s%d, s%d, 8' % (sA, sA))
    a('v_lshlrev_b32 v2, 2, v0')
    a('s_add_u32 s%d, s%d, %d' % (sA, sA, L.WS_USED))
    a('s_mov_b32 s%d, 0x%x' % (S_WS + 2, L.WS_USED + 256 * 1024))
    a('buffer_store_dword v%d, v2, %s, s%d offen' % (V_STAMP, srd(S_WS), sA))
    if DBGST:
        build_srd(S_TMP, P_DBG, 256)
        a('v_readfirstlane_b32 s%d, v%d' % (sA, V_STAMP))
        a('s_nop 4')
        a('v_subrev_u32 v3, s%d, v%d' % (sA, V_STAMP))
        a('s_or_b32 s%d, s2, s%d' % (sB, sW))
        a('s_cmp_eq_u32 s%d, 0' % sB)
        a('s_cselect_b32 s%d, 0, 0x%x' % (sB, INV))
        a('v_or_b32 v2, s%d, v2' % sB)
        SEL = [int(x[6:]) for x in sys.argv if x.startswith('--sel=')]
        sel = SEL[0] if SEL else 1
        a('v_subrev_u32 v2, %d, v2' % (4 * sel))
        a('buffer_store_dword v3, v2, %s, 0 offen' % srd(S_TMP))
a.label('L_end')
a('s_endpgm')

a.finalize()
body = a.text()

import os
hdr = open(os.path.join(os.path.dirname(os.path.abspath(__file__)), 'header.txt')).read()
out = hdr + '; @launch grid=(256,1,1) block=(256,1,1) lds=%d\n' % L.LDS_BYTES
out += '.amdgcn_target "amdgcn-amd-amdhsa--gfx950"\n.text\n.globl %s_kernel\n.p2align 8\n.type %s_kernel,@function\n%s_kernel:\n' % (NAME, NAME, NAME)
out += body
out += '''.section .rodata,"a"
.p2align 6
.amdhsa_kernel %s_kernel
  .amdhsa_next_free_vgpr 512
  .amdhsa_next_free_sgpr 102
  .amdhsa_accum_offset 256
  .amdhsa_group_segment_fixed_size 0
  .amdhsa_kernarg_size 88
  .amdhsa_user_sgpr_count 2
  .amdhsa_user_sgpr_kernarg_segment_ptr 1
  .amdhsa_system_sgpr_workgroup_id_x 1
.end_amdhsa_kernel
''' % NAME
sys.stdout.write(out)
```

```python
import re

REG_RE = re.compile(r'(?<![\w.])([vas])(?:\[(\d+):(\d+)\]|(\d+))(?![\w])')

TRANS = ('v_exp_f32', 'v_log_f32', 'v_rcp_f32', 'v_rsq_f32', 'v_sqrt_f32', 'v_sin_f32', 'v_cos_f32')


def regs_of(tok):
    out = set()
    for m in REG_RE.finditer(tok):
        cls = m.group(1)
        if m.group(2) is not None:
            for i in range(int(m.group(2)), int(m.group(3)) + 1):
                out.add((cls, i))
        else:
            out.add((cls, int(m.group(4))))
    if re.search(r'(?<![\w])vcc(?![\w])', tok):
        out.add(('s', 'vcc'))
    if re.search(r'(?<![\w])exec(?![\w])', tok):
        out.add(('s', 'exec'))
    if re.search(r'(?<![\w])m0(?![\w])', tok):
        out.add(('s', 'm0'))
    return out


def split_ops(s):
    ops, depth, cur = [], 0, ''
    for ch in s:
        if ch == '[':
            depth += 1
        if ch == ']':
            depth -= 1
        if ch == ',' and depth == 0:
            ops.append(cur.strip())
            cur = ''
        else:
            cur += ch
    if cur.strip():
        ops.append(cur.strip())
    return ops


class Ins:
    __slots__ = ('text', 'mn', 'kind', 'w', 'r', 'states', 'srcC', 'dpp', 'wide_store', 'is_label')

    def __init__(self, text):
        self.text = text
        self.is_label = text.endswith(':')
        self.w, self.r = set(), set()
        self.kind = 'other'
        self.states = 1
        self.srcC = set()
        self.dpp = False
        self.wide_store = False
        if self.is_label or text.startswith(';') or text.startswith('.'):
            self.mn = ''
            self.states = 0
            self.kind = 'label' if self.is_label else 'meta'
            return
        parts = text.split(None, 1)
        mn = parts[0]
        self.mn = mn
        rest = parts[1] if len(parts) > 1 else ''
        rest = rest.split(';')[0]
        ops = split_ops(rest)
        if mn == 's_nop':
            self.kind = 'nop'
            self.states = int(ops[0]) + 1
            return
        if mn.startswith('v_mfma'):
            self.kind = 'mfma'
            self.w = regs_of(ops[0])
            self.r = regs_of(ops[1]) | regs_of(ops[2]) | regs_of(ops[3])
            self.srcC = regs_of(ops[3])
            return
        if mn.startswith('v_'):
            self.kind = 'trans' if mn.replace('_e32', '').replace('_e64', '') in TRANS else 'valu'
            self.dpp = '_dpp' in mn or 'row_' in rest or 'quad_perm' in rest
            if mn.startswith('v_cmp'):
                self.w = regs_of(ops[0])
                for o in ops[1:]:
                    self.r |= regs_of(o)
                if mn.startswith('v_cmpx'):
                    self.w.add(('s', 'exec'))
            elif mn.startswith('v_permlane'):
                self.kind = 'permlane'
                self.w = regs_of(ops[0]) | regs_of(ops[1])
                self.r = set(self.w)
            elif mn.startswith('v_readlane') or mn.startswith('v_readfirstlane'):
                self.kind = 'readlane'
                self.w = regs_of(ops[0])
                for o in ops[1:]:
                    self.r |= regs_of(o)
            elif mn.startswith(('v_add_co', 'v_sub_co', 'v_addc_co', 'v_subb_co')):
                self.w = regs_of(ops[0]) | regs_of(ops[1])
                for o in ops[2:]:
                    self.r |= regs_of(o)
            else:
                self.w = regs_of(ops[0])
                for o in ops[1:]:
                    self.r |= regs_of(o)
                if mn.startswith(('v_fmac', 'v_dot2c', 'v_pk_fmac')):
                    self.r |= self.w
                if mn.startswith('v_cndmask') and len(ops) == 3:
                    self.r.add(('s', 'vcc'))
                if self.dpp:
                    self.r |= self.w
            return
        if mn.startswith('ds_'):
            self.kind = 'ds'
            if mn.startswith(('ds_read', 'ds_bpermute', 'ds_permute', 'ds_swizzle')):
                self.w = regs_of(ops[0])
                for o in ops[1:]:
                    self.r |= regs_of(o)
            else:
                for o in ops:
                    self.r |= regs_of(o)
            return
        if mn.startswith(('buffer_', 'global_')):
            self.kind = 'vmem'
            is_lds = bool(re.search(r'(?<![\w])lds(?![\w])', rest))
            if 'load' in mn and not is_lds:
                self.w = regs_of(ops[0])
                for o in ops[1:]:
                    self.r |= regs_of(o)
            else:
                for o in ops:
                    self.r |= regs_of(o)
                if is_lds:
                    self.r.add(('s', 'm0'))
            if 'store' in mn and ('x3' in mn or 'x4' in mn):
                self.wide_store = True
                self.srcC = regs_of(ops[0]) if mn.startswith('buffer_') else regs_of(ops[1])
            return
        if mn.startswith('s_'):
            self.kind = 'salu'
            if mn.startswith(('s_cmp', 's_cbranch', 's_branch', 's_waitcnt', 's_barrier', 's_endpgm',
                              's_sleep', 's_setprio', 's_bitcmp')):
                for o in ops:
                    self.r |= regs_of(o)
                if mn.startswith('s_cbranch_vcc'):
                    self.r.add(('s', 'vcc'))
            else:
                self.w = regs_of(ops[0]) if ops else set()
                for o in ops[1:]:
                    self.r |= regs_of(o)
                if 'saveexec' in mn:
                    self.w.add(('s', 'exec'))
                    self.r.add(('s', 'exec'))
            return
        raise ValueError('unknown instruction: ' + text)


def vgprs(s):
    return {x for x in s if x[0] in 'va'}


def sgprs(s):
    return {x for x in s if x[0] == 's'}


def required_gap(p, c):
    need = 0
    pv, cv_r = vgprs(p.w), vgprs(c.r)
    valu_like = ('valu', 'trans', 'permlane', 'readlane')
    if p.kind in valu_like:
        if c.kind == 'mfma' and pv & cv_r:
            need = max(need, 2)
        if c.kind == 'permlane' and pv & cv_r:
            need = max(need, 2)
        if c.dpp and pv & cv_r:
            need = max(need, 2)
        if c.kind == 'readlane' and pv & cv_r:
            need = max(need, 1)
        if p.kind == 'trans' and c.kind in valu_like + ('mfma',) and pv & cv_r:
            need = max(need, 1)
        ps = sgprs(p.w)
        if ps:
            if c.kind in valu_like and ps & sgprs(c.r):
                need = max(need, 4 if c.kind == 'readlane' else 2)
            if c.kind == 'vmem' and ps & sgprs(c.r):
                need = max(need, 5)
            if c.kind == 'salu' and ps & sgprs(c.r):
                need = max(need, 4)
            if ('s', 'exec') in ps:
                if c.kind == 'mfma' or c.kind == 'permlane' or c.kind == 'readlane':
                    need = max(need, 4)
                if c.dpp:
                    need = max(need, 5)
    if p.mn.startswith('v_dot2') and c.mn != p.mn and c.kind in valu_like + ('mfma', 'ds', 'vmem') and pv & (cv_r | vgprs(c.w)):
        need = max(need, 3)
    if p.kind == 'mfma':
        big = '32x32' in p.mn
        rd, ovl, war = (12, 10, 7) if big else (8, 6, 3)
        if c.kind == 'mfma':
            if pv & (vgprs(c.r) - c.srcC):
                need = max(need, rd)
            ov = pv & c.srcC
            if ov and (c.srcC != p.w or c.mn != p.mn):
                need = max(need, ovl)
            if pv & vgprs(c.w) and c.w != p.w:
                need = max(need, ovl)
        elif c.kind in valu_like:
            if pv & (cv_r | vgprs(c.w)):
                need = max(need, rd)
            if p.srcC & vgprs(c.w):
                need = max(need, war)
        elif c.kind in ('ds', 'vmem'):
            if pv & (cv_r | vgprs(c.w)):
                need = max(need, rd)
    if p.wide_store and c.kind in valu_like + ('mfma',) and p.srcC & vgprs(c.w):
        need = max(need, 2)
    if p.kind == 'salu' and ('s', 'm0') in p.w and c.kind == 'vmem' and ('s', 'm0') in c.r:
        need = max(need, 1)
    if p.kind == 'salu' and ('s', 'exec') in p.w and (c.dpp or c.kind in ('permlane',)):
        need = max(need, 1)
    return need


class Asm:
    def __init__(self):
        self.ins = []
        self.vm_issued = 0
        self.lg_issued = 0

    def __call__(self, text):
        for line in text.strip().split('\n'):
            line = line.strip()
            if not line:
                continue
            i = Ins(line)
            self.ins.append(i)
            if i.kind == 'vmem':
                self.vm_issued += 1
            if i.kind == 'ds':
                self.lg_issued += 1
        return self

    def label(self, name):
        self(name + ':')

    def comment(self, text):
        self.ins.append(Ins('; ' + text))

    def vm_mark(self):
        return self.vm_issued

    def lg_mark(self):
        return self.lg_issued

    def wait_vm(self, mark):
        n = self.vm_issued - mark
        assert 0 <= n
        self('s_waitcnt vmcnt(%d)' % min(n, 63))

    def wait_lg(self, mark):
        n = self.lg_issued - mark
        assert 0 <= n
        self('s_waitcnt lgkmcnt(%d)' % min(n, 15))

    def finalize(self):
        out = []
        WIN = 14
        for c in self.ins:
            if c.states == 0:
                out.append(c)
                continue
            need = 0
            dist = 0
            for p in reversed(out):
                if p.states == 0:
                    continue
                if dist >= WIN:
                    break
                g = required_gap(p, c)
                if g > dist:
                    need = max(need, g - dist)
                dist += p.states
            while need > 0:
                k = min(need, 16)
                out.append(Ins('s_nop %d' % (k - 1)))
                need -= k
            out.append(c)
        self.ins = out

    def text(self):
        lines = []
        for i in self.ins:
            lines.append(i.text if i.is_label else '    ' + i.text)
        return '\n'.join(lines) + '\n'


def interleave(a, main, fill, per=2, start=0):
    fi = 0
    n = 0
    for m in main:
        a(m)
        if m.startswith('v_mfma'):
            n += 1
            if n > start:
                for _ in range(per):
                    if fi < len(fill):
                        a(fill[fi])
                        fi += 1
    while fi < len(fill):
        a(fill[fi])
        fi += 1
```

```python
import struct
import sys
from asmlib import Asm
import layout as L

NAME = 'interleave_layers__sliding_local_dilated__mixer_channel_mlp__prompt'
DIAG = '--diag' in sys.argv
FASTMODE = ([x[7:] for x in sys.argv if x.startswith('--fast=')] + ['flags'])[0]
NOFAST = FASTMODE == 'none'
PAD = [int(x[6:]) for x in sys.argv if x.startswith('--pad=')]
DBG = '--dbg' in sys.argv or bool(PAD)
SPIN_LIMIT = 200000
OUTSC = ([x[8:] for x in sys.argv if x.startswith('--outsc=')] + [''])[0].replace('_', ' ')
SLEEP = int(([x[8:] for x in sys.argv if x.startswith('--sleep=')] + ['0'])[0])
INV = 0x80000000

a = Asm()

sXCC = 3
S_WS, S_TMP, S_B1, S_OUT = 4, 8, 12, 16
P_X, P_WQKV, P_WO, P_BX, P_W1, P_B1, P_W2, P_B2, P_OUT, P_DBG, P_WSP = 20, 22, 24, 26, 28, 30, 32, 34, 36, 38, 40
sS, sC, sG, sJ, sW, sT, sPAIR, sSPIN = 42, 43, 44, 45, 46, 47, 48, 49
sM1 = 50
sM2 = 58
sM0 = 66
sO = 74
sA, sB, sCc, sD = 90, 91, 92, 93
sMK = 94
sTS = 96
sGT = 98
sERR = 99
sSTI = 100
sFAST = 101
sFD = 27
sPFC = 26
sFH = 25


def srd(n):
    return 's[%d:%d]' % (n, n + 3)


def vr(n, k=4):
    return 'v[%d:%d]' % (n, n + k - 1)


def ar(n, k=4):
    return 'a[%d:%d]' % (n, n + k - 1)


def sp(n):
    return 's[%d:%d]' % (n, n + 1)


def f2h(x):
    return '0x%08x' % struct.unpack('<I', struct.pack('<f', x))[0]


V_T, V_STAMP = 254, 255
V_TOK, V_G = 250, 251
MFMA = 'v_mfma_f32_16x16x32_bf16'


DIAG2 = '--diag2' in sys.argv
PREF = '--pref' in sys.argv
TOUCH = '--notouch' not in sys.argv
STWAIT = '--stwait' in sys.argv
P2EARLY = '--p2early' in sys.argv
SKEW = [int(x[7:]) for x in sys.argv if x.startswith('--skew=')]
DBGST = '--dbgst' in sys.argv


def stamp2():
    if DIAG2:
        stamp()


def stamp():
    if not DIAG:
        return
    a('%s %s' % ('s_memrealtime' if '--rt' in sys.argv else 's_memtime', sp(sTS)))
    a('s_waitcnt lgkmcnt(0)')
    a('s_lshl_b64 exec, 1, s%d' % sSTI)
    a('v_mov_b32 v%d, s%d' % (V_STAMP, sTS))
    a('s_mov_b64 exec, -1')
    a('s_add_u32 s%d, s%d, 1' % (sSTI, sSTI))


lab_no = [0]


def newlab(p):
    lab_no[0] += 1
    return '%s_%d' % (p, lab_no[0])


def skew_store(point, have=False):
    if not SKEW or SKEW[0] != point:
        return
    if not have:
        a('s_memrealtime s[96:97]')
        a('s_waitcnt lgkmcnt(0)')
    build_srd(S_TMP, P_DBG, 256)
    a('s_and_b32 s%d, s2, 15' % sA)
    a('s_or_b32 s%d, s%d, s%d' % (sA, sA, sW))
    a('s_cmp_eq_u32 s%d, 0' % sA)
    a('s_cselect_b32 s%d, 0, 0x%x' % (sA, INV))
    a('s_lshr_b32 s%d, s2, 2' % sB)
    a('s_or_b32 s%d, s%d, s%d' % (sA, sA, sB))
    a('v_mov_b32 v21, s%d' % sA)
    a('v_mov_b32 v22, s96')
    a('s_mov_b64 exec, 1')
    a('buffer_store_dword v22, v21, %s, 0 offen' % srd(S_TMP))
    a.vm_issued -= 1
    a('s_mov_b64 exec, -1')


def build_srd(dst, ptr, nbytes):
    a('s_mov_b32 s%d, s%d' % (dst, ptr))
    a('s_and_b32 s%d, s%d, 0xffff' % (dst + 1, ptr + 1))
    a('s_mov_b32 s%d, 0x%x' % (dst + 2, nbytes))
    a('s_mov_b32 s%d, 0x20000' % (dst + 3))


def poll(voff, off2=None, sleep=None):
    lab, done = newlab('L_poll'), newlab('L_polldone')
    a('s_mov_b64 exec, %s' % sp(sMK))
    a('s_mov_b32 s%d, 0' % sSPIN)
    a.label(lab)
    a('buffer_load_dword v253, v%d, %s, 0 offen sc1' % (voff, srd(S_WS)))
    if off2 is not None:
        a('buffer_load_dword v245, v%d, %s, 0 offen offset:%d sc1' % (voff, srd(S_WS), off2))
    a('s_waitcnt vmcnt(0)')
    if off2 is not None:
        a('v_xor_b32 v245, s%d, v245' % sT)
        a('v_xor_b32 v253, s%d, v253' % sT)
        a('v_or_b32 v253, v253, v245')
        a('v_cmp_ne_u32 vcc, 0, v253')
    else:
        a('v_cmp_ne_u32 vcc, s%d, v253' % sT)
    a('s_nop 4')
    a('s_cbranch_vccz %s' % done)
    if sleep or SLEEP:
        a('s_sleep %d' % (sleep or SLEEP))
    a('s_add_u32 s%d, s%d, 1' % (sSPIN, sSPIN))
    a('s_cmp_lt_u32 s%d, %d' % (sSPIN, SPIN_LIMIT))
    a('s_cbranch_scc1 %s' % lab)
    a('s_add_u32 s%d, s%d, 1' % (sERR, sERR))
    a.label(done)
    a('s_mov_b64 exec, -1')


sMK2 = 30


def early_issue(dst, voff, off=0):
    a('s_mov_b64 exec, %s' % sp(sMK2))
    a('buffer_load_dword v%d, v%d, %s, 0 offen offset:%d sc1' % (dst, voff, srd(S_WS), off))
    a('s_mov_b64 exec, -1')
    return a.vm_mark()


def early_check(dst, voff, mark, off=0):
    ok = newlab('L_early')
    a.wait_vm(mark)
    a('s_mov_b64 exec, %s' % sp(sMK2))
    a('v_cmp_ne_u32 vcc, s%d, v%d' % (sT, dst))
    a('s_mov_b64 exec, -1')
    a('s_nop 2')
    a('s_cbranch_vccz %s' % ok)
    a('s_mov_b64 %s, %s' % (sp(sMK), sp(sMK2)))
    n = a.vm_issued
    if off:
        a('v_add_u32 v253, %d, v%d' % (off, voff))
        a('v_mov_b32 v%d, v253' % dst)
        poll(dst)
    else:
        poll(voff)
    a.vm_issued = n
    a.label(ok)


def store(fmt, cond=None):
    if cond is None or NOFAST or (FASTMODE == 'flags' and cond in (sFD, sFH, sPC)):
        a(fmt + ' sc1')
        return
    slow, done = newlab('L_slow'), newlab('L_st')
    a('s_cmp_eq_u32 s%d, 0' % cond)
    a('s_cbranch_scc1 %s' % slow)
    a(fmt)
    a('s_branch %s' % done)
    a.label(slow)
    a(fmt + ' sc1')
    a.vm_issued -= 1
    a.label(done)


def set_flags(voff, nlanes, cond=None, val=V_T, between=()):
    mark = a.vm_mark()
    for x in between:
        a(x)
    a.wait_vm(mark)
    a('s_mov_b64 exec, %d' % ((1 << nlanes) - 1))
    store('buffer_store_dword v%d, v%d, %s, 0 offen' % (val, voff, srd(S_WS)), cond)
    a('s_mov_b64 exec, -1')


def xg_reduce(x, t, op='v_add_f32'):
    return ['v_mov_b32 v%d, v%d' % (t, x),
            'v_permlane32_swap_b32 v%d, v%d' % (x, t),
            '%s v%d, v%d, v%d' % (op, x, x, t),
            'v_mov_b32 v%d, v%d' % (t, x),
            'v_permlane16_swap_b32 v%d, v%d' % (x, t),
            '%s v%d, v%d, v%d' % (op, x, x, t)]


EPS = 1e-5


def stats_finish(s1, s2, t, double_ln):
    o = ['v_mul_f32 v%d, %s, v%d' % (s1, f2h(1.0 / 448), s1),
         'v_mul_f32 v%d, %s, v%d' % (s2, f2h(1.0 / 448), s2),
         'v_fma_f32 v%d, -v%d, v%d, v%d' % (s2, s1, s1, s2),
         'v_max_f32 v%d, 0, v%d' % (s2, s2),
         'v_add_f32 v%d, %s, v%d' % (t, f2h(EPS), s2),
         'v_rsq_f32 v%d, v%d' % (t, t)]
    if not double_ln:
        o += ['v_mov_b32 v%d, v%d' % (s2, t)]
    else:
        o += ['v_mul_f32 v%d, v%d, v%d' % (s2, s2, t),
              'v_fmaak_f32 v%d, v%d, v%d, %s' % (s2, s2, t, f2h(EPS)),
              'v_rsq_f32 v%d, v%d' % (s2, s2),
              'v_mul_f32 v%d, v%d, v%d' % (s2, s2, t)]
    return o


def pair_base(dst, arr):
    a('s_mul_i32 s%d, s%d, %d' % (dst, sPAIR, arr[1] - arr[0]))
    a('s_add_u32 s%d, s%d, %d' % (dst, dst, arr[0]))


def quarter_offsets(n, stride):
    for t in range(n):
        if t:
            a('s_add_u32 s%d, s%d, %d' % (sO + 4 * t, sO + 4 * (t - 1), stride))
        for q in range(1, 4):
            a('s_add_u32 s%d, s%d, %d' % (sO + 4 * t + q, sO + 4 * t, 4096 * q))


sPX, sPS, sPF, sPC, sPX2 = 36, 37, 28, 29, 33


def stats_flags(delta, lsh):
    a('v_lshlrev_b32 v241, %d, v0' % lsh)
    a('s_add_u32 s%d, s%d, %d' % (sA, sPF, delta))
    a('v_add_u32 v241, s%d, v241' % sA)
    a('s_mov_b64 exec, 3')
    store('buffer_store_dword v%d, v241, %s, 0 offen' % (V_T, srd(S_WS)), sPFC)
    a('s_mov_b64 exec, -1')


a('s_cmp_ge_u32 s2, 256')
a('s_cbranch_scc1 L_end')
a('s_load_dwordx16 s[20:35], s[0:1], 0')
a('s_load_dwordx4 s[36:39], s[0:1], 64')
a('s_load_dwordx2 s[40:41], s[0:1], 80')
a('s_getreg_b32 s%d, hwreg(HW_REG_XCC_ID, 0, 4)' % sXCC)
a('s_and_b32 s%d, s2, 7' % sA)
a('s_lshr_b32 s%d, s2, 3' % sB)
a('s_lshr_b32 s%d, s%d, 4' % (sCc, sB))
a('s_lshl_b32 s%d, s%d, 1' % (sS, sA))
a('s_add_u32 s%d, s%d, s%d' % (sS, sS, sCc))
a('s_and_b32 s%d, s%d, 15' % (sC, sB))
a('s_lshr_b32 s%d, s%d, 3' % (sA, sC))
a('s_lshl_b32 s%d, s%d, 1' % (sG, sS))
a('s_add_u32 s%d, s%d, s%d' % (sG, sG, sA))
a('s_and_b32 s%d, s%d, 7' % (sJ, sC))
a('s_mov_b32 s%d, 0' % sERR)
if SKEW and SKEW[0] == 0:
    a('s_memrealtime s[96:97]')
if PREF:
    a('s_getpc_b64 s[96:97]')
    a.label('L_pc')
    a('s_lshl_b32 s%d, s%d, 11' % (sA, sB))
    a('v_lshlrev_b32 v3, 3, v0')
    a('v_add_u32 v3, s%d, v3' % sA)
    a('v_min_u32 v3, L_end-L_pc-8, v3')
    a('global_load_dwordx2 v[252:253], v3, s[96:97]')
a('v_lshrrev_b32 v2, 6, v0')
a('v_and_b32 v0, 63, v0')
a('v_readfirstlane_b32 s%d, v2' % sW)
a('v_lshlrev_b32 v1, 4, v0')
if DIAG:
    a('v_mov_b32 v%d, 0' % V_STAMP)
    a('s_mov_b32 s%d, 0' % sSTI)
stamp()
a('v_and_b32 v%d, 15, v0' % V_TOK)
a('v_lshrrev_b32 v%d, 4, v0' % V_G)
sSTG = 40
a('s_waitcnt lgkmcnt(0)')
if DBG:
    a('s_memtime s[26:27]')
    a('s_memrealtime s[0:1]')
    a('s_waitcnt lgkmcnt(0)')
skew_store(0, True)
build_srd(S_WS, P_WSP, L.WS_USED)
a('buffer_load_dword v%d, off, %s, 0 sc1' % (V_T, srd(S_WS)))
a('s_lshl_b32 s%d, s%d, 14' % (sSTG, sW))
a('s_add_u32 s%d, s%d, %d' % (sSTG, sSTG, L.L_R2))

build_srd(S_TMP, P_X, 2048 * 896)
a('v_mul_u32_u24 v2, 896, v%d' % V_TOK)
a('v_lshl_add_u32 v2, v%d, 3, v2' % V_G)
a('s_lshr_b32 s%d, s%d, 1' % (sA, sC))
a('s_lshl_b32 s%d, s%d, 3' % (sB, sS))
a('s_add_u32 s%d, s%d, s%d' % (sO + 0, sA, sB))
a('s_and_b32 s%d, s%d, 1' % (sA, sC))
a('s_mul_i32 s%d, s%d, 7' % (sA, sA))
a('s_add_u32 s%d, s%d, s%d' % (sO + 1, sA, sW))
a('s_cmp_lt_u32 s%d, 3' % sW)
a('s_cselect_b32 s%d, 0, 0x%x' % (sO + 2, INV))
a('s_mul_i32 s%d, s%d, 14336' % (sA, sO + 0))
a('s_lshl_b32 s%d, s%d, 6' % (sB, sO + 1))
a('s_add_u32 s%d, s%d, s%d' % (sA, sA, sB))
a('v_or_b32 v3, s%d, v2' % (sO + 2))
a('buffer_load_dwordx2 v[10:11], v2, %s, s%d offen' % (srd(S_TMP), sA))
a('buffer_load_dwordx2 v[12:13], v2, %s, s%d offen offset:32' % (srd(S_TMP), sA))
a('buffer_load_dwordx2 v[14:15], v3, %s, s%d offen offset:256' % (srd(S_TMP), sA))
a('buffer_load_dwordx2 v[16:17], v3, %s, s%d offen offset:288' % (srd(S_TMP), sA))

build_srd(S_TMP, P_WQKV, 448 * 2688)
qMAT, qU, qINV = sO + 3, sO + 4, sO + 5
a('s_lshl_b32 s%d, s%d, 4' % (sA, sW))
a('s_add_u32 s%d, s%d, s%d' % (sA, sA, sS))
a('s_cmp_lt_u32 s%d, 42' % sA)
a('s_cselect_b32 s%d, 0, 0x%x' % (qINV, INV))
a('s_min_u32 s%d, s%d, 41' % (sA, sA))
a('s_mul_i32 s%d, s%d, 4682' % (qMAT, sA))
a('s_lshr_b32 s%d, s%d, 16' % (qMAT, qMAT))
a('s_mul_i32 s%d, s%d, 14' % (sB, qMAT))
a('s_sub_u32 s%d, s%d, s%d' % (qU, sA, sB))
a('s_mul_i32 s%d, s%d, %d' % (sA, qU, 32 * 2688))
a('s_mul_i32 s%d, s%d, 896' % (sB, qMAT))
a('s_add_u32 s%d, s%d, s%d' % (sA, sA, sB))
a('s_mul_i32 s%d, s%d, 56' % (sB, sC))
a('s_add_u32 s%d, s%d, s%d' % (sA, sA, sB))
a('v_lshrrev_b32 v4, 2, v0')
a('v_mul_u32_u24 v4, 2688, v4')
a('v_and_b32 v5, 3, v0')
a('v_lshl_add_u32 v4, v5, 4, v4')
a('v_or_b32 v4, s%d, v4' % qINV)
a('s_mov_b32 m0, s%d' % sSTG)
a('s_add_u32 s%d, s%d, %d' % (sB, sA, 16 * 2688))
a('buffer_load_dwordx4 v4, %s, s%d offen lds' % (srd(S_TMP), sA))
a('s_add_u32 m0, s%d, 1024' % sSTG)
a('s_nop 0')
a('buffer_load_dwordx4 v4, %s, s%d offen lds' % (srd(S_TMP), sB))

bINV, bDST, bSTR, bINV2, bDST2, sSTRD = 20, 21, 22, 23, 24, 25


def emit_p2_issue():
    a('s_cmp_eq_u32 s%d, 3' % sW)
    a('s_cbranch_scc1 L_p2_w1')
    a('s_lshl_b32 s%d, s%d, 5' % (sA, sW))
    a('s_add_u32 s%d, s%d, s%d' % (sA, sA, sG))
    a('s_cmp_lt_u32 s%d, 72' % sA)
    a('s_cselect_b32 s%d, 0, 0x%x' % (bINV, INV))
    a('s_cmp_eq_u32 s%d, 7' % sJ)
    a('s_cselect_b32 s%d, 0x%x, s%d' % (bINV, INV, bINV))
    a('s_min_u32 s%d, s%d, 71' % (sA, sA))
    a('s_min_u32 s%d, s%d, 6' % (sD, sJ))
    a('s_cmp_lt_u32 s%d, 16' % sA)
    a('s_cselect_b32 s%d, s%d, s%d' % (S_TMP, P_WO, P_W2))
    a('s_cselect_b32 s%d, s%d, s%d' % (S_TMP + 1, P_WO + 1, P_W2 + 1))
    a('s_mov_b32 s%d, 0x%x' % (S_TMP + 2, 1792 * 896))
    a('s_cselect_b32 s%d, 0x%x, s%d' % (S_TMP + 2, 448 * 896, S_TMP + 2))
    a('s_cselect_b32 s%d, 28, 32' % sB)
    a('s_cselect_b32 s%d, 0, 16' % sCc)
    a('s_mov_b32 s%d, %d' % (bSTR, 56 * 1024))
    a('s_cselect_b32 s%d, %d, s%d' % (bSTR, 16 * 1024, bSTR))
    a('s_mov_b32 s%d, %d' % (bDST, L.WD))
    a('s_cselect_b32 s%d, %d, s%d' % (bDST, L.WB, bDST))
    a('s_cselect_b32 s%d, 0x%x, 0' % (sO + 9, INV))
    a('s_and_b32 s%d, s%d, 0xffff' % (S_TMP + 1, S_TMP + 1))
    a('s_mov_b32 s%d, 0x20000' % (S_TMP + 3))
    a('s_sub_u32 s%d, s%d, s%d' % (sA, sA, sCc))
    a('s_lshl_b32 s%d, s%d, 10' % (sCc, sA))
    a('s_add_u32 s%d, s%d, s%d' % (bDST, bDST, sCc))
    a('s_lshl_b32 s%d, s%d, 2' % (sCc, sD))
    a('s_mul_i32 s%d, s%d, s%d' % (sCc, sCc, bSTR))
    a('s_add_u32 s%d, s%d, s%d' % (bDST, bDST, sCc))
    a('s_mul_i32 s%d, s%d, s%d' % (sA, sA, sB))
    a('s_mul_i32 s%d, s%d, 896' % (sA, sA))
    a('s_lshl_b32 s%d, s%d, 7' % (sB, sD))
    a('s_add_u32 s%d, s%d, s%d' % (sO + 10, sA, sB))
    a('s_mov_b32 s%d, 896' % sSTRD)
    a('s_mov_b32 s%d, 0x%x' % (bINV2, INV))
    a('s_mov_b32 s%d, 0' % bDST2)
    a('s_mov_b32 s%d, 0' % (sO + 11))
    a('s_branch L_p2_go')
    a.label('L_p2_w1')
    build_srd(S_TMP, P_W1, 448 * 3584)
    a('s_lshl_b32 s%d, s%d, 4' % (sA, sS))
    a('s_add_u32 s%d, s%d, s%d' % (sA, sA, sC))
    a('s_cmp_lt_u32 s%d, 136' % sA)
    a('s_cselect_b32 s%d, 0, 0x%x' % (bINV2, INV))
    a('s_mov_b32 s%d, 0' % bINV)
    a('s_mov_b32 s%d, 0' % (sO + 9))
    a('s_mov_b32 s%d, %d' % (bSTR, 14 * 1024))
    a('s_mov_b32 s%d, 3584' % sSTRD)
    for dst, src, add in ((bDST, sO + 10, 0), (bDST2, sO + 11, 256)):
        a('s_add_u32 s%d, s%d, %d' % (sB, sA, add))
        a('s_min_u32 s%d, s%d, 391' % (sB, sB))
        a('s_mul_i32 s%d, s%d, 4682' % (sCc, sB))
        a('s_lshr_b32 s%d, s%d, 16' % (sCc, sCc))
        a('s_mul_i32 s%d, s%d, 14' % (sD, sCc))
        a('s_sub_u32 s%d, s%d, s%d' % (sB, sB, sD))
        a('s_mul_i32 s%d, s%d, %d' % (src, sB, 32 * 3584))
        a('s_lshl_b32 s%d, s%d, 7' % (sD, sCc))
        a('s_add_u32 s%d, s%d, s%d' % (src, src, sD))
        a('s_mul_i32 s%d, s%d, 56' % (sD, sCc))
        a('s_add_u32 s%d, s%d, s%d' % (sD, sD, sB))
        a('s_lshl_b32 s%d, s%d, 10' % (sD, sD))
        a('s_add_u32 s%d, s%d, %d' % (dst, sD, L.WC))
    a.label('L_p2_go')
    a('v_lshrrev_b32 v6, 3, v0')
    a('v_mul_lo_u32 v6, v6, s%d' % sSTRD)
    a('v_and_b32 v5, 7, v0')
    a('v_lshl_add_u32 v6, v5, 4, v6')
    a('v_or_b32 v8, s%d, v6' % bINV2)
    a('v_or_b32 v6, s%d, v6' % bINV)
    a('v_cmp_lt_u32 vcc, 31, v0')
    a('v_mov_b32 v7, s%d' % (sO + 9))
    a('v_cndmask_b32 v7, 0, v7, vcc')
    a('v_or_b32 v7, v7, v6')
    a('s_lshl_b32 s%d, s%d, 3' % (sB, sSTRD))
    for slot in range(2):
        src = sO + 10 + slot
        for q in range(4):
            a('s_add_u32 m0, s%d, %d' % (sSTG, 2048 + 4096 * slot + 1024 * q))
            if q:
                a('s_add_u32 s%d, s%d, s%d' % (src, src, sB))
            else:
                a('s_nop 0')
            a('buffer_load_dwordx4 v%d, %s, s%d offen lds' % (8 if slot else (7 if q == 3 else 6), srd(S_TMP), src))


if P2EARLY:
    emit_p2_issue()
build_srd(S_B1, P_B1, 1792 * 2)
build_srd(S_OUT, P_OUT, 2048 * 896)
a('v_bfe_u32 v18, v0, 2, 2')
a('v_lshl_add_u32 v18, v%d, 2, v18' % V_G)
a('v_and_b32 v19, 3, v0')
a('v_lshlrev_b32 v19, 3, v19')
if TOUCH:
    a('v_lshlrev_b32 v21, 21, v0')
    a('s_mov_b64 exec, 0x1ffff')
    a('buffer_load_dword v253, v21, %s, 0 offen' % srd(S_WS))
    a('s_mov_b64 exec, -1')
    a('s_waitcnt vmcnt(%d)' % (9 if P2EARLY else 1))
else:
    a('s_waitcnt vmcnt(%d)' % (8 if P2EARLY else 0))
stamp()

a('s_mov_b32 s%d, 0x9E3779B1' % sA)
a('v_mul_lo_u32 v%d, v%d, s%d' % (V_T, V_T, sA))
a('v_add_u32 v%d, 0x7F4A7C15, v%d' % (V_T, V_T))
a('v_and_b32 v%d, -16, v%d' % (V_T, V_T))
a('v_lshl_add_u32 v20, v18, 6, v19')
a('v_add_u32 v20, s%d, v20' % sSTG)
for hf in range(2):
    a('ds_read_b64_tr_b16 %s, v20 offset:%d' % (vr(24 + 4 * hf, 2), 32 * hf))
    a('ds_read_b64_tr_b16 %s, v20 offset:%d' % (vr(26 + 4 * hf, 2), 32 * hf + 1024))
a('v_readfirstlane_b32 s%d, v%d' % (sT, V_T))
a('s_mul_i32 s%d, s%d, 14' % (sA, sO + 0))
a('s_add_u32 s%d, s%d, s%d' % (sA, sA, sO + 1))
a('s_lshl_b32 s%d, s%d, 10' % (sB, sA))
a('s_add_u32 s%d, s%d, %d' % (sB, sB, L.XA[0]))
a('v_or_b32 v3, s%d, v1' % (sO + 2))
a('buffer_store_dwordx4 v[10:13], v1, %s, s%d offen sc1' % (srd(S_WS), sB))
a('s_add_u32 s%d, s%d, 4096' % (sB, sB))
a('buffer_store_dwordx4 v[14:17], v3, %s, s%d offen sc1' % (srd(S_WS), sB))
a('v_cmp_gt_u32 vcc, 12, v%d' % V_TOK)
a('s_mul_i32 s%d, s%d, 84' % (sB, sC))
a('s_mul_i32 s%d, s%d, 28' % (sCc, qMAT))
a('s_add_u32 s%d, s%d, s%d' % (sB, sB, sCc))
a('s_add_u32 s%d, s%d, s%d' % (sB, sB, qU))
a('s_lshl_b32 s%d, s%d, 10' % (sB, sB))
a('s_add_u32 s%d, s%d, %d' % (sB, sB, L.WA))
a('v_or_b32 v4, s%d, v1' % qINV)
a('s_waitcnt lgkmcnt(0)')
for p in range(4):
    a('v_cndmask_b32 v%d, 0, v%d, vcc' % (28 + p, 28 + p))
a('buffer_store_dwordx4 v[24:27], v4, %s, s%d offen sc1' % (srd(S_WS), sB))
a('s_add_u32 s%d, s%d, %d' % (sB, sB, 14 * 1024))
a('buffer_store_dwordx4 v[28:31], v4, %s, s%d offen sc1' % (srd(S_WS), sB))
a('v_mov_b32 v2, 0x3f803f80')
for k in range(2):
    x, s1, s2 = 10 + 4 * k, 110 + 2 * k, 111 + 2 * k
    a('v_mov_b32 v%d, 0' % s1)
    a('v_mov_b32 v%d, 0' % s2)
    for p in range(4):
        a('v_dot2_f32_bf16 v%d, v%d, v2, v%d' % (s1, x + p, s1))
        a('v_dot2_f32_bf16 v%d, v%d, v%d, v%d' % (s2, x + p, x + p, s2))
    for t in xg_reduce(s1, 114) + xg_reduce(s2, 115):
        a(t)
a('s_lshl_b32 s%d, s%d, 7' % (sB, sA))
a('s_add_u32 s%d, s%d, %d' % (sB, sB, L.SA[0]))
a('v_lshlrev_b32 v2, 3, v%d' % V_TOK)
a('v_or_b32 v3, s%d, v2' % (sO + 2))
a('s_mov_b64 exec, 0xffff')
a('buffer_store_dwordx2 v[110:111], v2, %s, s%d offen sc1' % (srd(S_WS), sB))
a('buffer_store_dwordx2 v[112:113], v3, %s, s%d offen offset:512 sc1' % (srd(S_WS), sB))
a('s_mov_b64 exec, -1')
crit_mark = a.vm_mark()
if not P2EARLY:
    emit_p2_issue()
a('s_lshl_b32 s%d, s%d, 5' % (sA, sO + 0))
a('s_add_u32 s%d, s%d, s%d' % (sA, sA, sO + 1))
a('s_lshl_b32 s%d, s%d, 2' % (sA, sA))
a('s_add_u32 s%d, s%d, %d' % (sA, sA, L.FX[0]))
a('v_lshlrev_b32 v2, 4, v0')
a('v_add_u32 v2, s%d, v2' % sA)
a('v_cmp_eq_u32 vcc, 1, v0')
a('v_mov_b32 v3, s%d' % (sO + 2))
a('v_cndmask_b32 v3, 0, v3, vcc')
a('v_or_b32 v2, v2, v3')
a('s_lshl_b32 s%d, s%d, 6' % (sA, sC))
a('s_lshl_b32 s%d, s%d, 2' % (sB, sS))
a('s_add_u32 s%d, s%d, s%d' % (sA, sA, sB))
a('s_add_u32 s%d, s%d, s%d' % (sA, sA, sW))
a('s_lshl_b32 s%d, s%d, 2' % (sA, sA))
a('s_add_u32 s%d, s%d, %d' % (sA, sA, L.FQ))
a('v_mov_b32 v3, s%d' % sA)
a('v_cmp_eq_u32 vcc, 2, v0')
a('v_cndmask_b32 v2, v2, v3, vcc')
a('s_lshl_b32 s%d, s%d, 4' % (sA, sS))
a('s_add_u32 s%d, s%d, s%d' % (sA, sA, sC))
a('s_lshl_b32 s%d, s%d, 2' % (sA, sA))
a('s_add_u32 s%d, s%d, %d' % (sA, sA, L.FXC))
a('s_cmp_eq_u32 s%d, 0' % sW)
a('s_cselect_b32 s%d, s%d, 0x%x' % (sA, sA, INV))
a('v_mov_b32 v3, s%d' % sA)
a('v_cmp_eq_u32 vcc, 3, v0')
a('v_cndmask_b32 v2, v2, v3, vcc')
a('v_or_b32 v3, s%d, v%d' % (sXCC, V_T))
a('v_cndmask_b32 v3, v%d, v3, vcc' % V_T)
stamp2()
a.wait_vm(crit_mark)
a('s_mov_b64 exec, 15')
a('buffer_store_dword v3, v2, %s, 0 offen sc1' % srd(S_WS))
a('s_mov_b64 exec, -1')
stamp()

skew_store(1)
a('s_waitcnt vmcnt(1)')
a('v_lshl_add_u32 v20, v18, 7, v19')
a('v_add_u32 v20, s%d, v20' % sSTG)
for slot in range(2):
    for t in range(4):
        a('ds_read_b64_tr_b16 %s, v20 offset:%d' % (vr(24 + 16 * slot + 4 * t, 2), 2048 + 4096 * slot + 32 * t))
        a('ds_read_b64_tr_b16 %s, v20 offset:%d' % (vr(26 + 16 * slot + 4 * t, 2), 2048 + 4096 * slot + 32 * t + 2048))
a('v_or_b32 v6, s%d, v1' % bINV)
a('v_or_b32 v8, s%d, v1' % bINV2)
a('s_waitcnt lgkmcnt(8)')
for t in range(4):
    a('buffer_store_dwordx4 %s, v6, %s, s%d offen sc1' % (vr(24 + 4 * t), srd(S_WS), bDST))
    if t < 3:
        a('s_add_u32 s%d, s%d, s%d' % (bDST, bDST, bSTR))
a('s_waitcnt lgkmcnt(0)')
for t in range(4):
    a('buffer_store_dwordx4 %s, v8, %s, s%d offen sc1' % (vr(40 + 4 * t), srd(S_WS), bDST2))
    if t < 3:
        a('s_add_u32 s%d, s%d, s%d' % (bDST2, bDST2, bSTR))
a('s_lshl_b32 s%d, s%d, 4' % (sA, sS))
a('s_add_u32 s%d, s%d, s%d' % (sA, sA, sC))
a('s_lshl_b32 s%d, s%d, 2' % (sA, sA))
a('s_add_u32 s%d, s%d, %d' % (sA, sA, L.FW1))
a('v_lshlrev_b32 v22, 10, v0')
a('v_add_u32 v22, s%d, v22' % sA)
a('v_cmp_eq_u32 vcc, 1, v0')
a('v_mov_b32 v23, s%d' % bINV2)
a('v_cndmask_b32 v23, 0, v23, vcc')
a('v_or_b32 v22, v22, v23')
a('s_cmp_eq_u32 s%d, 3' % sW)
a('s_cselect_b32 s%d, 0, 0x%x' % (sA, INV))
a('v_or_b32 v22, s%d, v22' % sA)

skew_store(3)
a('v_and_b32 v2, 1, v%d' % V_TOK)
a('v_lshlrev_b32 v3, 2, v%d' % V_G)
a('v_add_u32 v6, 2, v%d' % V_TOK)
for i in range(4):
    a('v_add_u32 v4, %d, v3' % i)
    a('v_cmp_eq_u32 vcc, %d, v2' % (i & 1))
    a('s_mov_b64 %s, vcc' % sp(sMK))
    a('v_cmp_ge_u32 vcc, v4, v6')
    a('s_and_b64 %s, vcc, %s' % (sp(sM1 + 2 * i), sp(sMK)))
    a('v_cmp_le_u32 vcc, v4, v%d' % V_TOK)
    a('s_and_b64 %s, vcc, %s' % (sp(sM2 + 2 * i), sp(sMK)))
a('s_lshl_b32 s%d, s%d, 3' % (sA, sS))
a('s_lshl_b32 s%d, s%d, 1' % (sB, sW))
a('s_add_u32 s%d, s%d, s%d' % (sGT, sA, sB))
a('s_cmp_eq_u32 s%d, 0' % sGT)
for i in range(4):
    a('s_cselect_b64 %s, 0, %s' % (sp(sM0 + 2 * i), sp(sM1 + 2 * i)))
a('s_mov_b32 s%d, 0' % sPAIR)

def a_flag_addr(dst):
    pair_base(sA, L.FX)
    a('s_lshl_b32 s%d, s%d, 7' % (sB, sGT))
    a('s_add_u32 s%d, s%d, s%d' % (sA, sA, sB))
    a('s_sub_u32 s%d, s%d, 128' % (sA, sA))
    a('v_and_b32 v%d, 48, v0' % dst)
    a('v_add_u32 v%d, v%d, v0' % (dst, dst))
    a('v_lshl_add_u32 v%d, v%d, 2, s%d' % (dst, dst, sA))
    a('s_mov_b32 s%d, 0x3fff3fff' % sMK)
    a('s_mov_b32 s%d, 0x3fff' % (sMK + 1))
    a('s_cmp_eq_u32 s%d, 0' % sGT)
    a('s_cselect_b32 s%d, 0x3fff0000, s%d' % (sMK, sMK))


a('s_lshl_b32 s%d, s%d, 8' % (sA, sC))
a('s_add_u32 s%d, s%d, %d' % (sA, sA, L.FQ))
a('v_lshl_add_u32 v2, v0, 2, s%d' % sA)
a_flag_addr(3)
a('s_lshl_b32 s%d, s%d, 6' % (sA, sS))
a('s_add_u32 s%d, s%d, %d' % (sA, sA, L.FXC - 48 * 4))
a('v_lshl_add_u32 v4, v0, 2, s%d' % sA)
a('v_cmp_lt_u32 vcc, 47, v0')
a('v_cndmask_b32 v3, v3, v4, vcc')
a('v_mov_b32 v5, -1')
a('v_mov_b32 v6, -16')
a('v_cndmask_b32 v5, v5, v6, vcc')
a('s_or_b32 s%d, s%d, 0xffff0000' % (sMK + 1, sMK + 1))
a('s_mov_b32 s%d, 0' % sSPIN)
a.label('L_poll0')
a('buffer_load_dword v7, v2, %s, 0 offen sc1' % srd(S_WS))
a('s_mov_b64 exec, %s' % sp(sMK))
a('buffer_load_dword v8, v3, %s, 0 offen sc1' % srd(S_WS))
a('s_waitcnt vmcnt(0)')
a('v_and_b32 v9, v5, v8')
a('v_cmp_ne_u32 vcc, s%d, v9' % sT)
a('s_mov_b64 exec, -1')
a('s_mov_b64 %s, vcc' % sp(sTS))
a('v_cmp_ne_u32 vcc, s%d, v7' % sT)
a('s_or_b64 vcc, vcc, %s' % sp(sTS))
a('s_cbranch_vccz L_poll0_done')
a('s_add_u32 s%d, s%d, 1' % (sSPIN, sSPIN))
a('s_cmp_lt_u32 s%d, %d' % (sSPIN, SPIN_LIMIT))
a('s_cbranch_scc1 L_poll0')
a('s_add_u32 s%d, s%d, 1' % (sERR, sERR))
a.label('L_poll0_done')
a('s_mov_b64 exec, 3')
a('buffer_store_dword v%d, v22, %s, 0 offen sc1' % (V_T, srd(S_WS)))
a('s_mov_b64 exec, -1')
skew_store(2)
a('v_and_b32 v9, 15, v8')
a('v_cmp_ne_u32 vcc, s%d, v9' % sXCC)
a('s_and_b32 s%d, vcc_hi, 0xffff0000' % sA)
a('s_cmp_eq_u32 s%d, 0' % sA)
a('s_cselect_b32 s%d, 1, 0' % sFAST)
stamp()
AQ, AK, AV, HACC = 2, 18, 34, 50
WBUF = [66, 90]
XR = 114
CSACC = 186
STR = 210
SM, SR = 234, 237
NR, LOOK = 6, 4
A_ONES = 240


def a_xload(u):
    slot = u % NR
    return ['buffer_load_dwordx4 %s, v1, %s, s%d offen offset:%d sc1' %
            (vr(XR + (slot * 2 + t) * 4), srd(S_WS), sO + 4 * (t + 1) + (u >> 2), 1024 * (u & 3)) for t in range(2)]


def a_offsets():
    pair_base(sA, L.XA)
    a('s_mul_i32 s%d, s%d, 14336' % (sB, sGT))
    a('s_add_u32 s%d, s%d, s%d' % (sO + 4, sA, sB))
    a('s_add_u32 s%d, s%d, 14336' % (sO + 8, sO + 4))
    for t in range(1, 3):
        for q in range(1, 4):
            a('s_add_u32 s%d, s%d, %d' % (sO + 4 * t + q, sO + 4 * t, 4096 * q))
    a('s_lshl_b32 s%d, s%d, 3' % (sB, sS))
    a('s_max_u32 s%d, s%d, 1' % (sB, sB))
    a('s_sub_u32 s%d, s%d, 1' % (sB, sB))
    a('s_mul_i32 s%d, s%d, 14336' % (sB, sB))
    a('s_add_u32 s%d, s%d, s%d' % (sO + 0, sA, sB))
    a('s_lshl_b32 s%d, s%d, 12' % (sB, sW))
    a('s_add_u32 s%d, s%d, s%d' % (sO + 0, sO + 0, sB))
    a('s_add_u32 s%d, s%d, %d' % (sO + 1, sB, L.L_R2))


def a_setup():
    if FASTMODE == 'flags':
        a('s_mov_b32 s%d, 0' % sFD)
        a('s_mov_b32 s%d, 0' % sFH)
    elif FASTMODE == 'p0':
        a('s_xor_b32 s%d, s%d, 1' % (sFD, sPAIR))
        a('s_and_b32 s%d, s%d, s%d' % (sFD, sFD, sFAST))
        a('s_mov_b32 s%d, s%d' % (sFH, sFD))
    elif FASTMODE == 'small':
        a('s_mov_b32 s%d, s%d' % (sFD, sFAST))
        a('s_mov_b32 s%d, 0' % sFH)
    elif FASTMODE == 'smallp0':
        a('s_mov_b32 s%d, s%d' % (sFD, sFAST))
        a('s_xor_b32 s%d, s%d, 1' % (sFH, sPAIR))
        a('s_and_b32 s%d, s%d, s%d' % (sFH, sFH, sFAST))
    else:
        a('s_mov_b32 s%d, s%d' % (sFD, sFAST))
        a('s_mov_b32 s%d, s%d' % (sFH, sFAST))
    pair_base(sA, L.SA)
    a('s_mul_i32 s%d, s%d, 1792' % (sB, sGT))
    a('s_add_u32 s%d, s%d, s%d' % (sO + 13, sA, sB))
    a('s_add_u32 s%d, s%d, 1792' % (sO + 14, sO + 13))
    a('s_sub_u32 s%d, s%d, 1792' % (sO + 12, sO + 13))
    a('s_cmp_eq_u32 s%d, 0' % sGT)
    a('s_cselect_b32 s%d, s%d, s%d' % (sO + 12, sO + 13, sO + 12))
    a('v_and_b32 v%d, 15, v0' % V_TOK)
    a('v_lshrrev_b32 v%d, 4, v0' % V_G)
    a('v_lshlrev_b32 v240, 3, v%d' % V_TOK)
    a('v_lshl_add_u32 v240, v%d, 7, v240' % V_G)
    a('v_mov_b32 v242, 0x%x' % INV)
    a('v_cmp_lt_u32 vcc, 1, v%d' % V_G)
    a('v_cndmask_b32 v241, 0, v242, vcc')
    a('v_or_b32 v241, v241, v240')
    a('v_add_u32 v243, %d, v1' % (56 * 1024))
    a('v_lshlrev_b32 v244, 4, v%d' % V_G)
    a('v_add_u32 v244, %d, v244' % L.L_CSA)
    a('v_lshlrev_b32 v245, 2, v%d' % V_TOK)
    a('v_add_u32 v245, %d, v245' % L.L_CSA)
    a('s_lshl_b32 s%d, s%d, 7' % (sA, sJ))
    a('s_add_u32 s%d, s%d, %d' % (sA, sA, L.FP))
    a('v_lshl_add_u32 v248, v0, 2, s%d' % sA)
    a('s_lshr_b32 s%d, s%d, 1' % (sB, sW))
    a('s_lshl_b32 s%d, s%d, 2' % (sCc, sG))
    a('s_add_u32 s%d, s%d, s%d' % (sB, sB, sCc))
    a('s_lshl_b32 s%d, s%d, 5' % (sB, sB))
    a('s_and_b32 s%d, s%d, 1' % (sA, sW))
    a('s_add_u32 s%d, s%d, s%d' % (sB, sB, sA))
    a('s_min_u32 s%d, s%d, 6' % (sA, sJ))
    a('s_lshl_b32 s%d, s%d, 1' % (sA, sA))
    a('s_add_u32 s%d, s%d, s%d' % (sB, sB, sA))
    a('s_lshl_b32 s%d, s%d, 2' % (sB, sB))
    a('s_add_u32 s%d, s%d, %d' % (sB, sB, L.FX[0] - 32 * 256))
    a('v_lshl_add_u32 v249, v0, 8, s%d' % sB)
    a('v_cmp_lt_u32 vcc, 31, v0')
    a('v_cndmask_b32 v248, v248, v249, vcc')
    a('s_lshr_b32 s%d, s%d, 3' % (sA, sC))
    a('s_mul_i32 s%d, s%d, 7' % (sA, sA))
    a('s_min_u32 s%d, s%d, 6' % (sB, sJ))
    a('s_add_u32 s%d, s%d, s%d' % (sA, sA, sB))
    a('s_mul_i32 s%d, s%d, 112' % (sA, sA))
    a('s_add_u32 s%d, s%d, %d' % (sA, sA, L.FW1 - 34 * 4))
    a('v_lshl_add_u32 v249, v0, 2, s%d' % sA)
    a('v_cmp_lt_u32 vcc, 33, v0')
    a('v_cndmask_b32 v248, v248, v249, vcc')
    a('s_lshl_b32 s%d, s%d, 7' % (sA, sS))
    a('s_add_u32 s%d, s%d, %d' % (sA, sA, L.FH))
    a('v_and_b32 v247, 15, v0')
    a('v_lshl_add_u32 v247, v247, 2, s%d' % sA)
    a('s_lshl_b32 s%d, s%d, 7' % (sB, sGT))
    a('s_add_u32 s%d, s%d, %d' % (sB, sB, L.FX[1] - 128))
    a('v_lshl_add_u32 v253, v0, 2, s%d' % sB)
    a('s_cmp_eq_u32 s%d, 0' % sW)
    a('s_cselect_b32 s%d, 0, 16' % sA)
    a('v_cmp_gt_u32 vcc, s%d, v0' % sA)
    a('v_cndmask_b32 v247, v247, v253, vcc')
    a('s_mov_b32 s%d, 0x3fff3fff' % sMK2)
    a('s_mov_b32 s%d, 0' % (sMK2 + 1))
    a('s_cmp_eq_u32 s%d, 0' % sS)
    a('s_cselect_b32 s%d, 0x3fff, s%d' % (sMK2, sMK2))
    a('v_and_b32 v253, 15, v0')
    a('v_lshlrev_b32 v253, 2, v253')
    a('v_add_u32 v253, %d, v253' % L.FX[1])
    a('s_cmp_eq_u32 s%d, 0' % sGT)
    a('s_cselect_b64 vcc, -1, 0')
    a('v_cndmask_b32 v247, v247, v253, vcc')


stat_loads = ['buffer_load_dwordx2 %s, v%d, %s, s%d offen offset:%d sc1' %
              (vr(STR + (t * 4 + i) * 2, 2), 241 if i == 3 else 240, srd(S_WS), sO + 12 + t, 512 * i)
              for t in range(3) for i in range(4)]


def a_wread(u):
    b = WBUF[u & 1]
    o = []
    for p in range(6):
        if p < 4:
            o.append('ds_read_b128 %s, v1 offset:%d' % (vr(b + 4 * p), L.L_WA + (p * 14 + u) * 1024))
        else:
            o.append('ds_read_b128 %s, v243 offset:%d' % (vr(b + 4 * p), L.L_WA + ((p - 4) * 14 + u) * 1024))
    return o


stat_fill = []
for t in range(3):
    r = STR + 8 * t
    for c_ in range(2):
        stat_fill += ['v_add_f32 v%d, v%d, v%d' % (r + c_, r + c_, r + 2 + c_),
                      'v_add_f32 v%d, v%d, v%d' % (r + 4 + c_, r + 4 + c_, r + 6 + c_),
                      'v_add_f32 v%d, v%d, v%d' % (r + c_, r + c_, r + 4 + c_)]
    stat_fill += xg_reduce(r, r + 2) + xg_reduce(r + 1, r + 3)
    stat_fill += stats_finish(r, r + 1, r + 2, False)
    stat_fill += ['v_mov_b32 v%d, v%d' % (SM + t, r), 'v_mov_b32 v%d, v%d' % (SR + t, r + 1)]

sWA = [20, 21, 22]
sWAG = 23


def wa_dma(pr, i):
    def f():
        a('s_add_u32 m0, s%d, %d' % (sWA[i], L.L_WA + 2048 * pr))
        a('s_add_u32 s%d, s%d, s%d' % (sD, sWA[i], sWAG))
        if pr:
            a('s_add_u32 s%d, s%d, %d' % (sD, sD, 2048 * pr))
        a('buffer_load_dwordx4 v1, %s, s%d offen sc1 lds' % (srd(S_WS), sD))
    return f


amark = {}


def emit_a_loop(first, xmark, wam):
    ep_mark = es_mark = st_mark = None
    for t in a_wread(0):
        a(t)
    for u in range(14):
        need = xmark[u]
        if u == 11:
            need = max(need, st_mark)
        a.wait_vm(need)
        if not first and u == 6:
            early_check(246, 247, es_mark)
            a('s_nop 0')
        if u == 11:
            a('s_mov_b32 s%d, -1' % sMK2)
            a('s_mov_b32 s%d, 0x3fffffff' % (sMK2 + 1))
        a('s_waitcnt lgkmcnt(0)')
        wb = WBUF[u & 1]
        xs = XR + (u % NR) * 8
        mf = []
        cz = (lambda r: '0') if u == 0 else (lambda r: vr(r))
        for t in range(2):
            for hf in range(2):
                r = AQ + (t * 2 + hf) * 4
                mf.append('%s %s, %s, %s, %s' % (MFMA, vr(r), vr(wb + 4 * hf), vr(xs + 4 * t), cz(r)))
        for t in range(2):
            for hf in range(2):
                r = AK + (t * 2 + hf) * 4
                mf.append('%s %s, %s, %s, %s' % (MFMA, vr(r), vr(wb + 8 + 4 * hf), vr(xs + 4 * t), cz(r)))
        for t in range(2):
            for hf in range(2):
                r = AV + (t * 2 + hf) * 4
                mf.append('%s %s, %s, %s, %s' % (MFMA, vr(r), vr(xs + 4 * t), vr(wb + 16 + 4 * hf), cz(r)))
        if first:
            mf.append('%s %s, %s, %s, %s' % (MFMA, vr(CSACC + 8), vr(CSACC), ar(A_ONES), cz(CSACC + 8)))
            mf.append('%s %s, %s, %s, %s' % (MFMA, vr(CSACC + 12), ar(A_ONES), vr(CSACC + 4), cz(CSACC + 12)))
        mem = {}

        def put(k, x):
            mem.setdefault(k, []).append(x)
        nm = len(mf)
        off = 0
        if first:
            a('ds_read_b128 %s, v252 offset:%d' % (vr(CSACC), 1024 * u))
            a('ds_read_b128 %s, v242 offset:%d' % (vr(CSACC + 4), 1024 * u))
            put(11, 's_waitcnt lgkmcnt(%d)' % (6 if u < 13 else 0))
        if first and u % 2 == 1 and u < 13:
            put(2, ('bar', (u + 1) // 2))
            off = 3
        if u < 13:
            for k, x in enumerate(a_wread(u + 1)):
                put(off + k, x)
        elif not first:
            for p in range(4):
                put(p, 'ds_read_b128 %s, v244 offset:%d' % (vr(WBUF[0] + 4 * p), 64 * p))
            for d in range(2):
                put(4 + d, 'ds_read_b32 v%d, v245 offset:%d' % (WBUF[0] + 16 + d, 64 * (4 + d)))
        if first and u < 2:
            for j_, uu in enumerate((2 * u + 2, 2 * u + 3)):
                for k, x in zip((6, 8), a_xload(uu)):
                    put(k + 4 * j_, x)
                put(8 + 4 * j_, ('xm', uu))
            if u == 0:
                for i, k in enumerate((7, 9, 11)):
                    put(k, ('wa', 2, i))
        elif u + LOOK < 14:
            for k, x in zip((6, 9), a_xload(u + LOOK)):
                put(k, x)
            put(9, ('xm', u + LOOK))
        if first and u % 2 == 0 and u // 2 + 3 <= 6:
            for i, k in enumerate((12, 13, 13) if u == 0 else (7, 10, 12)):
                put(k, ('wa', u // 2 + 3, i))
        order = list(range(4, 12)) + list(range(0, 4))
        if 2 <= u < 6:
            for k, x in zip((8, 11), order[2 * (u - 2):2 * (u - 2) + 2]):
                put(k, stat_loads[x])
        if not first and u == 3:
            put(7, ('estat',))
        if u in (7, 8):
            for k, x in zip((8, 11), order[8 + 2 * (u - 7):8 + 2 * (u - 7) + 2]):
                put(k, stat_loads[x])
            if u == 8:
                put(11, ('st',))
        if u == 6:
            put(10, 's_mov_b32 m0, s%d' % (sO + 1))
            for i, k in enumerate((10, 10, 11, 11)):
                put(k, 'buffer_load_dwordx4 v1, %s, s%d offen offset:%d sc1 lds' % (srd(S_WS), sO + 0, 1024 * i))
            put(11, ('hm',))
        if u == 13:
            put(8, ('early',))
        fill = stat_fill[(u - 11) * 22:(u - 10) * 22] if u >= 11 else []
        fi = 0
        for k, m in enumerate(mf):
            a(m)
            for it in mem.get(k, []):
                if isinstance(it, str):
                    a(it)
                elif it[0] == 'early':
                    ep_mark = early_issue(249, 248)
                elif it[0] == 'estat':
                    es_mark = early_issue(246, 247)
                elif it[0] == 'xm':
                    xmark[it[1]] = a.vm_mark()
                elif it[0] == 'st':
                    st_mark = a.vm_mark()
                elif it[0] == 'hm':
                    amark['halo'] = a.vm_mark()
                elif it[0] == 'bar':
                    a.wait_vm(wam[it[1]])
                    a('s_barrier')
                elif it[0] == 'wa':
                    wa_dma(it[1], it[2])()
                    wam[it[1]] = a.vm_mark()
            for _ in range(2):
                if fi < len(fill) and k >= 1:
                    a(fill[fi])
                    fi += 1
        assert fi == len(fill), (u, fi, len(fill))
    amark['ep'] = ep_mark


for p in range(4):
    a('v_mov_b32 v4, 0x3f803f80')
    a('v_accvgpr_write_b32 a%d, v4' % (A_ONES + p))
a('s_mul_i32 s%d, s%d, 14336' % (sWA[0], sW))
a('s_add_u32 s%d, s%d, 4' % (sA, sW))
a('s_mul_i32 s%d, s%d, 14336' % (sA, sA))
a('s_sub_u32 s%d, s%d, 2' % (sB, sW))
a('s_mul_i32 s%d, s%d, 14336' % (sB, sB))
a('s_add_u32 s%d, s%d, 1024' % (sB, sB))
a('s_cmp_lt_u32 s%d, 2' % sW)
a('s_cselect_b32 s%d, s%d, s%d' % (sWA[1], sA, sB))
a('s_add_u32 s%d, s%d, 2' % (sA, sW))
a('s_mul_i32 s%d, s%d, 14336' % (sA, sA))
a('s_add_u32 s%d, s%d, 1024' % (sWA[2], sA))
a('s_mul_i32 s%d, s%d, %d' % (sWAG, sC, 84 * 1024))
a('s_add_u32 s%d, s%d, %d' % (sWAG, sWAG, L.WA))
a_offsets()
xm0, wam0 = {}, {}


def wa_pair(pr):
    for i in range(3):
        wa_dma(pr, i)()
    wam0[pr] = a.vm_mark()


wa_pair(0)
for u in range(2):
    for t in a_xload(u):
        a(t)
    xm0[u] = a.vm_mark()
wa_pair(1)
a_setup()
a('s_mul_i32 s%d, s%d, 14336' % (sA, sW))
a('v_add_u32 v252, s%d, v1' % sA)
a('s_and_b32 s%d, s%d, 1' % (sA, sW))
a('s_mul_i32 s%d, s%d, 14336' % (sA, sA))
a('v_add_u32 v242, s%d, v243' % sA)
a.wait_vm(wam0[0])
a('s_barrier')
a('s_lshl_b32 s%d, s%d, 5' % (sA, sJ))
a('s_add_u32 s%d, s%d, s%d' % (sA, sA, sG))
a('s_lshl_b32 s%d, s%d, 2' % (sA, sA))
a('s_add_u32 s%d, s%d, %d' % (sA, sA, L.FP))
a('s_cmp_eq_u32 s%d, 0' % sW)
a('s_cselect_b32 s%d, s%d, 0x%x' % (sA, sA, INV))
a('v_mov_b32 v2, s%d' % sA)
a('s_mov_b64 exec, 1')
a('buffer_store_dword v%d, v2, %s, 0 offen sc1' % (V_T, srd(S_WS)))
a.vm_issued -= 1
a('s_mov_b64 exec, -1')
stamp()
emit_a_loop(True, xm0, wam0)
n_join = a.vm_issued - amark['ep']
CSQ = WBUF[0]
a('v_cmp_eq_u32 vcc, 0, v%d' % V_TOK)
a('s_lshl_b32 s%d, s%d, 6' % (sA, sW))
a('v_add_u32 v252, s%d, v244' % sA)
a('s_and_b32 s%d, s%d, 1' % (sA, sW))
a('s_lshl_b32 s%d, s%d, 6' % (sA, sA))
a('v_add_u32 v242, s%d, v245' % sA)
a('s_mov_b64 exec, vcc')
a('ds_write_b128 v252, %s' % vr(CSACC + 8))
a('s_mov_b64 exec, 0xffff')
a('ds_write_b32 v242, v%d offset:256' % (CSACC + 12))
a('s_mov_b64 exec, -1')
a('s_waitcnt lgkmcnt(0)')
a('s_barrier')
for p in range(4):
    a('ds_read_b128 %s, v244 offset:%d' % (vr(WBUF[0] + 4 * p), 64 * p))
for d in range(2):
    a('ds_read_b32 v%d, v245 offset:%d' % (WBUF[0] + 16 + d, 64 * (4 + d)))
a('s_branch L_a_epi')

a.label('L_pair')
a_flag_addr(2)
a('s_mov_b32 s%d, 0x3fff0000' % sMK)
ASLEEP = int(([x[9:] for x in sys.argv if x.startswith('--asleep=')] + ['0'])[0])
poll(2, None, ASLEEP)
stamp()
a_offsets()
xmark = {}
for u in range(LOOK):
    for t in a_xload(u):
        a(t)
    xmark[u] = a.vm_mark()
a_setup()
emit_a_loop(False, xmark, None)
assert a.vm_issued - amark['ep'] == n_join
ep_mark = amark['ep']
a.label('L_a_epi')
stamp()
a('s_add_u32 s%d, s%d, 2' % (sA, sW))
a('s_mul_i32 s%d, s%d, 14336' % (sA, sA))
a('v_add_u32 v246, s%d, v1' % sA)
a('v_add_u32 v247, %d, v1' % L.L_R2)
a('s_cmp_lt_u32 s%d, 2' % sW)
a('s_cselect_b64 vcc, -1, 0')
a('v_cndmask_b32 v252, v247, v246, vcc')
a('v_cndmask_b32 v253, v246, v247, vcc')
a.wait_vm(amark['halo'])
a('s_barrier')
HOP = 90
def h_reads(u):
    r = HOP + 8 * (u % 3)
    return ['ds_read_b128 %s, v252 offset:%d' % (vr(r), 1024 * u), 'ds_read_b128 %s, v253 offset:%d' % (vr(r + 4), 1024 * u)]
for u in range(2):
    for x in h_reads(u):
        a(x)
rest = stat_fill[66:]
for u in range(14):
    if u + 2 < 14:
        for x in h_reads(u + 2):
            a(x)
    a('s_waitcnt lgkmcnt(%d)' % (4 if u < 12 else (2 if u == 12 else 0)))
    r = HOP + 8 * (u % 3)
    a('%s %s, %s, %s, %s' % (MFMA, vr(HACC), vr(r), vr(r + 4), '0' if u == 0 else vr(HACC)))
    if rest:
        a(rest.pop(0))
for x in rest:
    a(x)
stamp2()
early_check(249, 248, ep_mark)
BW = 2
a('s_lshl_b32 s%d, s%d, 6' % (sA, sJ))
a('s_lshl_b32 s%d, s%d, 2' % (sB, sW))
a('s_add_u32 s%d, s%d, s%d' % (sA, sA, sB))
a('s_lshl_b32 s%d, s%d, 10' % (sA, sA))
a('s_add_u32 s20, s%d, %d' % (sA, L.WB))
for t in range(1, 4):
    a('s_add_u32 s%d, s20, %d' % (20 + t, 16 * 1024 * t))
wb_all = ['buffer_load_dwordx4 %s, v1, %s, s%d offen offset:%d sc1' % (vr(BW + (i * 4 + t) * 4), srd(S_WS), 20 + t, 1024 * i)
          for i in range(4) for t in range(4)]
for x in wb_all[13:16]:
    a(x)
wb_loads = wb_all[8:13]
A_RES, A_B2 = 224, 232


def red_addrs():
    a('s_lshl_b32 s%d, s%d, 13' % (sA, sW))
    a('s_add_u32 s%d, s%d, %d' % (sA, sA, L.L_R2))
    a('v_add_u32 v248, s%d, v1' % sA)
    a('s_and_b32 s%d, s%d, 1' % (sA, sW))
    a('s_lshl_b32 s%d, s%d, 11' % (sA, sA))
    a('s_lshr_b32 s%d, s%d, 1' % (sB, sW))
    a('s_lshl_b32 s%d, s%d, 12' % (sB, sB))
    a('s_add_u32 s%d, s%d, s%d' % (sA, sA, sB))
    a('s_add_u32 s%d, s%d, %d' % (sA, sA, L.L_R2))
    a('v_add_u32 v249, s%d, v1' % sA)


def publish_setup(xbase, sbase, fbase, per_pair, fsh):
    owner_index()
    a('s_mul_i32 s%d, s%d, 14' % (sCc, sB))
    a('s_add_u32 s%d, s%d, s%d' % (sCc, sCc, sA))
    a('s_lshl_b32 s%d, s%d, 10' % (sPX, sCc))
    a('s_lshl_b32 s%d, s%d, 7' % (sPS, sCc))
    a('s_lshl_b32 s%d, s%d, %d' % (sPF, sB, fsh))
    a('s_add_u32 s%d, s%d, s%d' % (sPF, sPF, sA))
    a('s_lshl_b32 s%d, s%d, 2' % (sPF, sPF))
    for dst, arr in ((sPX, xbase), (sPS, sbase), (sPF, fbase)):
        if per_pair:
            pair_base(sD, arr)
            a('s_add_u32 s%d, s%d, s%d' % (dst, dst, sD))
        else:
            a('s_add_u32 s%d, s%d, %d' % (dst, dst, arr))
    a('s_add_u32 s%d, s%d, %d' % (sPX2, sPX, 2 * 14336))


def owner_index():
    a('s_lshr_b32 s%d, s%d, 1' % (sB, sW))
    a('s_lshl_b32 s%d, s%d, 2' % (sCc, sG))
    a('s_add_u32 s%d, s%d, s%d' % (sB, sB, sCc))
    a('s_and_b32 s%d, s%d, 1' % (sA, sW))
    a('s_lshl_b32 s%d, s%d, 1' % (sCc, sJ))
    a('s_add_u32 s%d, s%d, s%d' % (sA, sA, sCc))


a('s_cmp_eq_u32 s%d, 0' % sPAIR)
a('s_cbranch_scc0 L_a_nores')
owner_index()
a('s_mul_i32 s%d, s%d, 14' % (sB, sB))
a('s_add_u32 s%d, s%d, s%d' % (sB, sB, sA))
a('s_lshl_b32 s%d, s%d, 10' % (sB, sB))
a('s_add_u32 s%d, s%d, %d' % (sB, sB, L.XA[0]))
a('buffer_load_dwordx4 %s, v1, %s, s%d offen sc1' % (ar(A_RES), srd(S_WS), sB))
a('s_add_u32 s%d, s%d, %d' % (sB, sB, 2 * 14336))
a('buffer_load_dwordx4 %s, v1, %s, s%d offen sc1' % (ar(A_RES + 4), srd(S_WS), sB))
build_srd(S_TMP, P_B2, 896)
a('s_lshl_b32 s%d, s%d, 6' % (sB, sA))
a('v_lshlrev_b32 v240, 3, v%d' % V_G)
a('buffer_load_dwordx2 v[228:229], v240, %s, s%d offen' % (srd(S_TMP), sB))
a('buffer_load_dwordx2 v[230:231], v240, %s, s%d offen offset:32' % (srd(S_TMP), sB))
a.label('L_a_nores')
CSQ = WBUF[0]
a('s_mul_i32 s%d, s%d, 384' % (sA, sW))
a('s_add_u32 s%d, s%d, %d' % (sA, sA, L.L_STA))
a('v_lshl_add_u32 v246, v%d, 2, s%d' % (V_TOK, sA))
a('v_lshl_add_u32 v247, v%d, 4, s%d' % (V_G, sA))
a('s_mov_b64 exec, 0xffff')
for t in range(3):
    a('ds_write_b32 v246, v%d offset:%d' % (SM + t, 128 * t))
    a('ds_write_b32 v246, v%d offset:%d' % (SR + t, 128 * t + 64))
a('s_mov_b64 exec, -1')
MROW, RROW = 114, 126
a('s_waitcnt lgkmcnt(0)')
for t in range(3):
    a('ds_read_b128 %s, v247 offset:%d' % (vr(MROW + 4 * t), 128 * t))
    a('ds_read_b128 %s, v247 offset:%d' % (vr(RROW + 4 * t), 128 * t + 64))
QF, KF, VF = 140, 148, 160


def pk(op, dst, srcs, neg=None):
    ops, lo, hi = [], [], []
    for x in srcs:
        if isinstance(x, tuple):
            ops.append(vr(x[1] & ~1, 2))
            lo.append(x[1] & 1)
            hi.append(x[1] & 1)
        else:
            ops.append(vr(x, 2))
            lo.append(0)
            hi.append(1)
    t = '%s %s, %s op_sel:[%s] op_sel_hi:[%s]' % (op, vr(dst, 2), ', '.join(ops), ','.join(map(str, lo)), ','.join(map(str, hi)))
    if neg is not None:
        m = ','.join('1' if k == neg else '0' for k in range(len(srcs)))
        t += ' neg_lo:[%s] neg_hi:[%s]' % (m, m)
    return t


for t in range(2):
    for hf in range(2):
        r = AQ + (t * 2 + hf) * 4
        for i in (0, 2):
            a(pk('v_pk_fma_f32', r + i, [('b', SM + t + 1), CSQ + 4 * hf + i, r + i], 0))
        for p in range(2):
            a('v_cvt_pk_bf16_f32 v%d, v%d, v%d' % (QF + 4 * t + 2 * hf + p, r + 2 * p, r + 2 * p + 1))
        a(wb_all[2 * t + hf])
for t in range(2):
    for hf in range(2):
        r = AK + (t * 2 + hf) * 4
        for i in (0, 2):
            a(pk('v_pk_fma_f32', r + i, [('b', SM + t + 1), CSQ + 8 + 4 * hf + i, r + i], 0))
        for p in range(2):
            a('v_cvt_pk_bf16_f32 v%d, v%d, v%d' % (KF + 4 * (t + 1) + 2 * hf + p, r + 2 * p, r + 2 * p + 1))
        a(wb_all[4 + 2 * t + hf])
L_E, L_HX = L.L_R2 + 16384, L.L_R2 + 26624
a('s_lshl_b32 s%d, s%d, 11' % (sA, sW))
a('s_add_u32 s%d, s%d, %d' % (sA, sA, L_E))
a('v_add_u32 v246, s%d, v1' % sA)
a('s_lshl_b32 s%d, s%d, 10' % (sA, sW))
a('s_add_u32 s%d, s%d, %d' % (sA, sA, L_HX))
a('v_add_u32 v247, s%d, v1' % sA)
a('s_waitcnt lgkmcnt(0)')
for t in range(2):
    for d in range(2):
        r = AV + (t * 2 + d) * 4
        for i in (0, 2):
            a(pk('v_pk_fma_f32', r + i, [MROW + 4 * (t + 1) + i, ('b', CSQ + 16 + d), r + i], 0))
        for p in range(2):
            a('v_cvt_pk_bf16_f32 v%d, v%d, v%d' % (VF + 6 * d + 2 * (t + 1) + p, r + 2 * p, r + 2 * p + 1))
a('ds_write_b128 v246, %s offset:2048' % vr(KF + 8))
a('ds_write_b64 v246, %s offset:3072' % vr(VF + 4, 2))
a('ds_write_b64 v246, %s offset:3080' % vr(VF + 10, 2))
a('ds_write_b128 v247, %s' % vr(HACC))
pair_base(sA, L.O)
a('s_lshl_b32 s%d, s%d, 4' % (sB, sGT))
a('s_add_u32 s%d, s%d, s%d' % (sB, sB, sC))
a('s_lshl_b32 s%d, s%d, 10' % (sB, sB))
a('s_add_u32 s32, s%d, s%d' % (sA, sB))
a('s_add_u32 s33, s32, 16384')
stamp2()
a('s_waitcnt lgkmcnt(0)')
a('s_barrier')
stamp2()
SS = 172
a('s_cmp_eq_u32 s%d, 0' % sW)
a('s_cbranch_scc1 L_a_halo')
a('ds_read_b128 %s, v246' % vr(KF))
a('ds_read_b64 %s, v246 offset:1024' % vr(VF, 2))
a('ds_read_b64 %s, v246 offset:1032' % vr(VF + 6, 2))
a('s_waitcnt lgkmcnt(0)')
a('s_branch L_a_prev')
a.label('L_a_halo')
a('v_add_u32 v247, %d, v1' % L_HX)
for p in range(4):
    a('ds_read_b128 %s, v247 offset:%d' % (vr(SS + 4 * p), 1024 * p))
a('s_waitcnt lgkmcnt(0)')
for hf in range(2):
    r = SS + 4 * hf
    for i in (0, 2):
        a(pk('v_pk_fma_f32', r + i, [('b', SM), CSQ + 8 + 4 * hf + i, r + i], 0))
    for p in range(2):
        a('v_cvt_pk_bf16_f32 v%d, v%d, v%d' % (KF + 2 * hf + p, r + 2 * p, r + 2 * p + 1))
for d in range(2):
    r = SS + 8 + 4 * d
    for i in (0, 2):
        a(pk('v_pk_fma_f32', r + i, [MROW + i, ('b', CSQ + 16 + d), r + i], 0))
    for p in range(2):
        a('v_cvt_pk_bf16_f32 v%d, v%d, v%d' % (VF + 6 * d + p, r + 2 * p, r + 2 * p + 1))
a.label('L_a_prev')
a('s_nop 1')
for t in range(2):
    a('%s %s, %s, %s, 0' % (MFMA, vr(SS + 8 * t), vr(KF + 4 * t), vr(QF + 4 * t)))
    a('%s %s, %s, %s, 0' % (MFMA, vr(SS + 8 * t + 4), vr(KF + 4 * t + 4), vr(QF + 4 * t)))
SCALE = (28.0 ** -0.5) * 1.4426950408889634
MX, CC, LS, TMPR = 190, 192, 194, 196
PF = 200
SUMT = [(224, 226), (232, 188)]
a('v_mov_b32 v198, 0xff800000')
seq = [[], []]
for t in range(2):
    s_ = SS + 8 * t
    q = seq[t]
    rr = lambda e: RROW + 4 * (t + (e >> 2)) + (e & 3)
    for e in range(0, 8, 2):
        q.append(pk('v_pk_mul_f32', s_ + e, [s_ + e, rr(e)]))
    for e in range(8):
        mk = (sM0 if t == 0 else sM1) + 2 * e if e < 4 else sM2 + 2 * (e - 4)
        q.append('v_cndmask_b32 v%d, v198, v%d, %s' % (s_ + e, s_ + e, sp(mk)))
    q.append('v_max3_f32 v%d, v%d, v%d, v%d' % (MX + t, s_, s_ + 1, s_ + 2))
    q.append('v_max3_f32 v%d, v%d, v%d, v%d' % (MX + t, MX + t, s_ + 3, s_ + 4))
    q.append('v_max3_f32 v%d, v%d, v%d, v%d' % (MX + t, MX + t, s_ + 5, s_ + 6))
    q.append('v_max_f32 v%d, v%d, v%d' % (MX + t, MX + t, s_ + 7))
    q += xg_reduce(MX + t, TMPR + t, 'v_max_f32')
    q.append('v_mul_f32 v%d, %s, v%d' % (CC + t, f2h(SCALE), SR + t + 1))
    q.append('v_mul_f32 v%d, v%d, v%d' % (MX + t, MX + t, CC + t))
    for e in range(0, 8, 2):
        q.append(pk('v_pk_fma_f32', s_ + e, [s_ + e, ('b', CC + t), ('b', MX + t)], 2))
    for e in range(8):
        q.append('v_exp_f32 v%d, v%d' % (s_ + e, s_ + e))
    u_, u2 = SUMT[t]
    q.append(pk('v_pk_add_f32', u_, [s_, s_ + 2]))
    q.append(pk('v_pk_add_f32', u2, [s_ + 4, s_ + 6]))
    q.append(pk('v_pk_add_f32', u_, [u_, u2]))
    q.append('v_add_f32 v%d, v%d, v%d' % (LS + t, u_, u_ + 1))
    q += xg_reduce(LS + t, TMPR + t)
    q.append('v_rcp_f32 v%d, v%d' % (LS + t, LS + t))
    for e in range(0, 8, 2):
        q.append(pk('v_pk_mul_f32', s_ + e, [s_ + e, rr(e)]))
    for p in range(4):
        q.append('v_cvt_pk_bf16_f32 v%d, v%d, v%d' % (PF + 4 * t + p, s_ + 2 * p, s_ + 2 * p + 1))
merged = [z for xy in zip(*seq) for z in xy]
gap = len(merged) // (len(wb_loads) + 1)
for k, x in enumerate(merged):
    a(x)
    if k % gap == gap - 1 and wb_loads:
        a(wb_loads.pop(0))
assert not wb_loads
stamp2()
OO = 208
for t in range(2):
    for d in range(2):
        a('%s %s, %s, %s, 0' % (MFMA, vr(OO + 8 * t + 4 * d), vr(VF + 6 * d + 2 * t), vr(PF + 4 * t)))
for t in range(2):
    for e in range(0, 8, 2):
        a(pk('v_pk_mul_f32', OO + 8 * t + e, [OO + 8 * t + e, ('b', LS + t)]))
    for p in range(4):
        a('v_cvt_pk_bf16_f32 v%d, v%d, v%d' % (PF + 4 * t + p, OO + 8 * t + 2 * p, OO + 8 * t + 2 * p + 1))
    store('buffer_store_dwordx4 %s, v1, %s, s%d offen' % (vr(PF + 4 * t), srd(S_WS), 32 + t), sFD)
o_mark = a.vm_mark()
stamp2()
pair_base(sA, L.FA)
a('s_lshl_b32 s%d, s%d, 4' % (sB, sGT))
a('s_add_u32 s%d, s%d, s%d' % (sB, sB, sC))
a('s_lshl_b32 s%d, s%d, 2' % (sB, sB))
a('s_add_u32 s%d, s%d, s%d' % (sA, sA, sB))
a('v_lshlrev_b32 v241, 6, v0')
a('v_add_u32 v241, s%d, v241' % sA)
pair_base(sA, L.FA)
a('s_lshl_b32 s%d, s%d, 8' % (sB, sG))
a('s_add_u32 s%d, s%d, s%d' % (sA, sA, sB))
a('v_lshl_add_u32 v240, v0, 2, s%d' % sA)
a('s_lshl_b32 s%d, s%d, 2' % (sB, sW))
a('s_lshl_b32 s%d, 0x000f000f, s%d' % (sMK, sB))
a('s_mov_b32 s%d, s%d' % (sMK + 1, sMK))
red_addrs()
publish_setup(L.XB, L.SB, L.FB, True, 4)
a('s_mov_b32 s%d, s%d' % (sPC, sFD))
a('s_mov_b32 s%d, s%d' % (sPFC, sFAST))
pair_base(sA, L.O)
a('s_lshl_b32 s%d, s%d, 6' % (sB, sG))
a('s_lshl_b32 s%d, s%d, 2' % (sCc, sW))
a('s_add_u32 s%d, s%d, s%d' % (sB, sB, sCc))
a('s_lshl_b32 s%d, s%d, 10' % (sB, sB))
a('s_add_u32 s20, s%d, s%d' % (sA, sB))
for t in range(1, 4):
    a('s_add_u32 s%d, s20, %d' % (20 + t, 16384 * t))
a.wait_vm(o_mark)
a('s_mov_b64 exec, 3')
store('buffer_store_dword v%d, v241, %s, 0 offen' % (V_T, srd(S_WS)), sFAST)
a('s_mov_b64 exec, -1')
stamp()
a('s_cmp_eq_u32 s%d, 7' % sJ)
a('s_cbranch_scc1 L_next_pair')


def wd_bases():
    a('s_lshl_b32 s%d, s%d, 2' % (sA, sJ))
    a('s_mul_i32 s%d, s%d, %d' % (sA, sA, 56 * 1024))
    a('s_mul_i32 s%d, s%d, %d' % (sB, sW, 14 * 1024))
    a('s_add_u32 s%d, s%d, s%d' % (sA, sA, sB))
    a('s_add_u32 s%d, s%d, %d' % (sO, sA, L.WD))
    quarter_offsets(4, 56 * 1024)


def wd_load(fi):
    kk, t = fi >> 2, fi & 3
    return ('buffer_load_dwordx4 %s, v1, %s, s%d offen offset:%d sc1' %
            (ar(4 * fi), srd(S_WS), sO + 4 * t + (kk >> 2), 1024 * (kk & 3)))


WD_CH = [(0, 12), (12, 56)]
BO, BACC, BRD, BTMP = 66, 130, 194, 226
a('s_cmp_eq_u32 s%d, 0' % sPAIR)
a('s_cbranch_scc0 L_b_start')
for k in range(4):
    a('v_lshlrev_b32 v236, 16, v%d' % (228 + k))
    a('v_and_b32 v237, 0xffff0000, v%d' % (228 + k))
    a('v_accvgpr_write_b32 a%d, v236' % (A_B2 + 2 * k))
    a('v_accvgpr_write_b32 a%d, v237' % (A_B2 + 2 * k + 1))
wd_bases()
for fi in range(*WD_CH[0]):
    a(wd_load(fi))
a.label('L_b_start')
CWW = 66
sCI = 41
a('s_lshr_b32 s%d, s%d, 3' % (sA, sC))
a('s_mul_i32 s%d, s%d, 7' % (sA, sA))
a('s_add_u32 s%d, s%d, s%d' % (sCI, sA, sJ))
a('s_lshl_b32 s%d, s%d, 3' % (sA, sCI))
a('s_lshl_b32 s%d, s%d, 1' % (sB, sW))
a('s_add_u32 s%d, s%d, s%d' % (sA, sA, sB))
a('s_mul_i32 s%d, s%d, %d' % (sB, sA, 14 * 1024))
a('s_add_u32 s%d, s%d, %d' % (sO, sB, L.WC))
quarter_offsets(2, 14 * 1024)


def c_wload(idx):
    u, k = idx >> 1, idx & 1
    return ('buffer_load_dwordx4 %s, v1, %s, s%d offen offset:%d sc1' %
            (vr(CWW + 4 * idx), srd(S_WS), sO + 4 * k + (u >> 2), 1024 * (u & 3)))


def red_writes(acc, tile):
    return ['ds_write_b128 v248, %s offset:%d' % (vr(acc + 4 * t), (tile >> 1) * 32768 + (tile & 1) * 4096 + t * 1024)
            for t in range(4)]


def red_reads(st, rd):
    return ['ds_read_b128 %s, v249 offset:%d' % (vr(rd + (b * 2 + k) * 4), st * 32768 + b * 8192 + k * 1024)
            for b in range(4) for k in range(2)]


def add8(dst, x, y, packed):
    if packed:
        return ['v_pk_add_f32 %s, %s, %s' % (vr(dst + e, 2), vr(x + e, 2), vr(y + e, 2)) for e in range(0, 8, 2)]
    return ['v_add_f32 v%d, v%d, v%d' % (dst + e, x + e, y + e) for e in range(8)]


def finish_pre(st, is_d, tmp):
    res = A_RES + 4 * st
    o = ['v_accvgpr_read_b32 v%d, a%d' % (tmp + 8 + p, res + p) for p in range(4)]
    for p in range(4):
        o += ['v_lshlrev_b32 v%d, 16, v%d' % (tmp + 2 * p, tmp + 8 + p),
              'v_and_b32 v%d, 0xffff0000, v%d' % (tmp + 2 * p + 1, tmp + 8 + p)]
    if is_d:
        o += ['v_accvgpr_read_b32 v%d, a%d' % (tmp + 8 + e, A_B2 + e) for e in range(8)]
        o += ['v_add_f32 v%d, v%d, v%d' % (tmp + e, tmp + e, tmp + 8 + e) for e in range(8)]
    return o


def finish_sum(st, rd, tmp, pk, packed):
    o = add8(rd, rd, rd + 8, packed) + add8(rd + 16, rd + 16, rd + 24, packed) + add8(rd, rd, rd + 16, packed)
    o += add8(tmp, tmp, rd, packed)
    o += ['v_cvt_pk_bf16_f32 v%d, v%d, v%d' % (pk + p, tmp + 2 * p, tmp + 2 * p + 1) for p in range(4)]
    o += ['v_accvgpr_write_b32 a%d, v%d' % (A_RES + 4 * st + p, pk + p) for p in range(4)]
    return o


def owner_stats(tmp, s1, t):
    a('v_pk_add_f32 %s, %s, %s' % (vr(t, 2), vr(tmp, 2), vr(tmp + 2, 2)))
    a('v_pk_add_f32 %s, %s, %s' % (vr(t + 2, 2), vr(tmp + 4, 2), vr(tmp + 6, 2)))
    a('v_pk_add_f32 %s, %s, %s' % (vr(t, 2), vr(t, 2), vr(t + 2, 2)))
    a('v_add_f32 v%d, v%d, v%d' % (s1, t, t + 1))
    a('v_pk_mul_f32 %s, %s, %s' % (vr(t, 2), vr(tmp, 2), vr(tmp, 2)))
    for e in (2, 4, 6):
        a('v_pk_fma_f32 %s, %s, %s, %s' % (vr(t, 2), vr(tmp + e, 2), vr(tmp + e, 2), vr(t, 2)))
    a('v_add_f32 v%d, v%d, v%d' % (s1 + 1, t, t + 1))
    for x, y in zip(xg_reduce(s1, t), xg_reduce(s1 + 1, t + 1)):
        a(x)
        a(y)


def publish_data(st, pk):
    store('buffer_store_dwordx4 %s, v1, %s, s%d offen offset:0' % (vr(pk), srd(S_WS), sPX if st == 0 else sPX2), sPC)


def publish_stats(tmps, t, s1):
    a('v_and_b32 v%d, 15, v0' % V_TOK)
    a('v_lshlrev_b32 v%d, 3, v%d' % (t + 4, V_TOK))
    for st in range(2):
        owner_stats(tmps[st], s1 + 2 * st, t)
    a('s_mov_b64 exec, 0xffff')
    store('buffer_store_dwordx2 %s, v%d, %s, s%d offen' % (vr(s1, 2), t + 4, srd(S_WS), sPS), sPC)
    a('s_add_u32 s%d, s%d, %d' % (sPS, sPS, 2 * 1792))
    store('buffer_store_dwordx2 %s, v%d, %s, s%d offen' % (vr(s1 + 2, 2), t + 4, srd(S_WS), sPS), sPC)
    a('s_mov_b64 exec, -1')


def publish_flags(lsh, between=()):
    a('v_lshlrev_b32 v241, %d, v0' % lsh)
    a('v_add_u32 v241, s%d, v241' % sPF)
    set_flags(241, 2, sPFC, V_T, between)


def run_tiles(tile_items, extras):
    for tile in range(4):
        items = tile_items(tile)
        ex = list(extras.get(tile, []))
        free = [k for k, it in enumerate(items) if k >= 3 and not it[2]]
        per = -(-len(ex) // max(1, len(free))) if ex else 0
        for k, (pre, m, post) in enumerate(items):
            for x in pre:
                x()
            a(m)
            if post:
                post()
            elif k >= 3:
                for _ in range(per):
                    if ex:
                        x = ex.pop(0)
                        if callable(x):
                            x()
                        else:
                            a(x)
        assert not ex


poll(240)
stamp()


def b_oload(tile, i):
    return 'buffer_load_dwordx4 %s, v1, %s, s%d offen offset:%d sc1' % (vr(BO + (tile * 4 + i) * 4), srd(S_WS), 20 + tile, 1024 * i)


om = {}
for tile in range(2):
    for i in range(4):
        a(b_oload(tile, i))
        om[(tile, i)] = a.vm_mark()


def b_tile(tile):
    items = []
    for i in range(4):
        for t in range(4):
            r = BACC + (tile * 4 + t) * 4
            pre = [(lambda tl=tile, ii=i: a.wait_vm(om[(tl, ii)]))] if t == 0 else []
            post = None
            if tile < 2 and t == 1:
                def post(tl=tile + 2, ii=i):
                    a(b_oload(tl, ii))
                    om[(tl, ii)] = a.vm_mark()
            if tile >= 2 and t == 1:
                def post(idx=4 * (tile - 2) + i):
                    a(c_wload(idx))
            items.append((pre, '%s %s, %s, %s, %s' % (MFMA, vr(r), vr(BW + (i * 4 + t) * 4), vr(BO + (tile * 4 + i) * 4),
                                                      '0' if i == 0 else vr(r)), post))
    return items


BT0, BT1, BPK = 226, 2, 18
run_tiles(b_tile, {1: red_writes(BACC, 0), 2: red_writes(BACC + 16, 1), 3: red_writes(BACC + 32, 2)})
stamp2()
for x in red_writes(BACC + 48, 3):
    a(x)
for x in finish_pre(0, False, BT0) + finish_pre(1, False, BT1):
    a(x)
a('s_waitcnt lgkmcnt(0)')
a('s_barrier')
stamp2()
BRD1 = 162
for x in red_reads(0, BRD) + red_reads(1, BRD1):
    a(x)
a('s_waitcnt lgkmcnt(8)')
for x in finish_sum(0, BRD, BT0, BPK, True):
    a(x)
publish_data(0, BPK)
a('s_waitcnt lgkmcnt(0)')
for x in finish_sum(1, BRD1, BT1, BPK + 4, True):
    a(x)
publish_data(1, BPK + 4)
stamp2()
publish_stats([BT0, BT1], 36, 32)
b_mark = a.vm_mark()
a('v_lshlrev_b32 v236, 7, v0')
a('v_add_u32 v236, s%d, v236' % sPF)
for i in range(8, 16):
    a(c_wload(i))
CA = [2, 10]
XF, NXF = 18, 8
GTMP, GH = 50, 58
CCS, CB1, CB1R = 178, 186, 194
CSTR = 198
CMR = 214
VGA = 218
a('v_lshrrev_b32 v%d, 4, v0' % V_G)
a('v_and_b32 v%d, 15, v0' % V_TOK)
pair_base(sA, L.FB)
a('s_lshl_b32 s%d, s%d, 9' % (sB, sS))
a('s_add_u32 s%d, s%d, s%d' % (sA, sA, sB))
a('v_lshl_add_u32 v240, v0, 2, s%d' % sA)
a('s_mov_b32 s%d, 0x3fff3fff' % sMK)
a('s_mov_b32 s%d, 0x3fff3fff' % (sMK + 1))
pair_base(20, L.XB)
a('s_mul_i32 s%d, s%d, %d' % (sB, sS, 8 * 14336))
a('s_add_u32 s20, s20, s%d' % sB)
a('s_lshl_b32 s%d, s%d, 12' % (sB, sW))
a('s_add_u32 s20, s20, s%d' % sB)
a('s_add_u32 s21, s%d, %d' % (sB, L.L_R2))
pair_base(22, L.SB)
a('s_lshl_b32 s%d, s%d, 3' % (sB, sS))
a('s_add_u32 s%d, s%d, s%d' % (sB, sB, sW))
a('s_mul_i32 s%d, s%d, 1792' % (sB, sB))
a('s_add_u32 s22, s22, s%d' % sB)
a('s_add_u32 s23, s22, %d' % (4 * 1792))
pair_base(32, L.H)
a('s_mul_i32 s%d, s%d, %d' % (sB, sS, 8 * 56 * 1024))
a('s_add_u32 s32, s32, s%d' % sB)
a('s_lshl_b32 s%d, s%d, 2' % (sB, sCI))
a('s_add_u32 s%d, s%d, s%d' % (sB, sB, sW))
a('s_lshl_b32 s%d, s%d, 10' % (sCc, sB))
a('s_add_u32 s32, s32, s%d' % sCc)
pair_base(33, L.FC)
a('s_lshl_b32 s%d, s%d, 11' % (sCc, sS))
a('s_add_u32 s33, s33, s%d' % sCc)
a('s_lshl_b32 s%d, s%d, 2' % (sB, sB))
a('s_add_u32 s33, s33, s%d' % sB)
a('v_mov_b32 v241, s33')
a('v_mov_b32 v242, 0x%x' % INV)
a('v_cmp_eq_u32 vcc, 0, v0')
a('v_cndmask_b32 v241, v242, v241, vcc')
a('v_lshlrev_b32 v238, 3, v%d' % V_TOK)
a('v_lshl_add_u32 v238, v%d, 7, v238' % V_G)
a('v_mov_b32 v242, 0x%x' % INV)
a('v_cmp_lt_u32 vcc, 1, v%d' % V_G)
a('v_cndmask_b32 v239, 0, v242, vcc')
a('v_or_b32 v239, v239, v238')
a('v_add_u32 v252, %d, v1' % L.L_R2)
a('v_lshlrev_b32 v246, 3, v%d' % V_TOK)
a('v_add_u32 v246, %d, v246' % L.L_STC)
GA = 2.0 * 0.7978845608028654 * 1.4426950408889634
GB = GA * 0.044715
a('v_mov_b32 v%d, %s' % (VGA, f2h(-GA)))
a('v_mov_b32 v%d, %s' % (VGA + 1, f2h(-GA)))
a('s_mov_b32 s34, %s' % f2h(-GB))
a('s_mov_b32 s35, %s' % f2h(-GB))
wd_bases_hi = True
a.wait_vm(b_mark)
a('s_mov_b64 exec, 3')
store('buffer_store_dword v%d, v236, %s, 0 offen' % (V_T, srd(S_WS)), sPFC)
a('s_mov_b64 exec, -1')
stamp()

for i in range(16, 22):
    a(c_wload(i))
a('s_lshl_b32 s%d, s%d, 3' % (sA, sCI))
a('s_lshl_b32 s%d, s%d, 1' % (sB, sW))
a('s_add_u32 s%d, s%d, s%d' % (sA, sA, sB))
a('s_lshl_b32 s24, s%d, 5' % sA)
a('v_lshlrev_b32 v248, 3, v%d' % V_G)
for k in range(2):
    a('buffer_load_dwordx2 %s, v248, %s, s24 offen offset:%d' % (vr(CB1R + 2 * k, 2), srd(S_B1), 32 * k))
poll(240, 256)
stamp()


def c_dma_setup(t):
    return ['s_add_u32 s36, s20, %d' % (t * 14336), 's_add_u32 m0, s21, %d' % ((t & 3) * 16384)]


def c_dma(t, i):
    return 'buffer_load_dwordx4 v1, %s, s36 offen offset:%d sc1 lds' % (srd(S_WS), 1024 * i)


dm = {}
for x in c_dma_setup(0) + [c_dma(0, i) for i in range(4)]:
    a(x)
dm[0] = a.vm_mark()
wlate = {}
for i in range(22, 28):
    a(c_wload(i))
    wlate[i >> 1] = a.vm_mark()
for tt in range(2):
    for i in range(4):
        a('buffer_load_dwordx2 %s, v%d, %s, s%d offen offset:%d sc1' %
          (vr(CSTR + 8 * tt + 2 * i, 2), 239 if i == 3 else 238, srd(S_WS), 22 + tt, 512 * i))
amark['cst'] = a.vm_mark()
for x in c_dma_setup(1) + [c_dma(1, i) for i in range(4)]:
    a(x)
dm[1] = a.vm_mark()
wd_bases()
t0_loads = []
b1_unpack = []
for k in range(2):
    for p in range(2):
        b1_unpack += ['v_lshlrev_b32 v%d, 16, v%d' % (CB1 + 4 * k + 2 * p, CB1R + 2 * k + p),
                      'v_and_b32 v%d, 0xffff0000, v%d' % (CB1 + 4 * k + 2 * p + 1, CB1R + 2 * k + p)]
a.wait_vm(dm[0])
a('s_barrier')
stamp()


def c_xread(t, u):
    n = t * 14 + u
    return 'ds_read_b128 %s, v252 offset:%d' % (vr(XF + 4 * (n % NXF)), (t & 3) * 16384 + u * 1024)


def gelu_pre(t):
    z, m = CA[t & 1], CMR + 2 * (t & 1)
    P = range(0, 8, 2)
    o = ['v_pk_fma_f32 %s, %s, %s, %s op_sel_hi:[1,0,1] neg_lo:[0,1,0] neg_hi:[0,1,0]' % (vr(z + e, 2), vr(CCS + e, 2), vr(m, 2), vr(z + e, 2)) for e in P]
    o += ['v_pk_fma_f32 %s, %s, %s, %s op_sel:[0,1,0] op_sel_hi:[1,1,1]' % (vr(z + e, 2), vr(z + e, 2), vr(m, 2), vr(CB1 + e, 2)) for e in P]
    o += ['v_pk_mul_f32 %s, %s, %s' % (vr(GTMP + e, 2), vr(z + e, 2), vr(z + e, 2)) for e in P]
    o += ['v_pk_fma_f32 %s, %s, s[34:35], %s' % (vr(GTMP + e, 2), vr(GTMP + e, 2), vr(VGA, 2)) for e in P]
    o += ['v_pk_mul_f32 %s, %s, %s' % (vr(GTMP + e, 2), vr(GTMP + e, 2), vr(z + e, 2)) for e in P]
    return o


def gelu_mid():
    o = {}
    for e in range(8):
        o.setdefault(2 * e, []).append('v_exp_f32 v%d, v%d' % (GTMP + e, GTMP + e))
        o.setdefault(2 * e + 3, []).append('v_add_f32 v%d, 1.0, v%d' % (GTMP + e, GTMP + e))
    for e in range(6):
        o.setdefault(16 + 2 * e, []).append('v_rcp_f32 v%d, v%d' % (GTMP + e, GTMP + e))
    o.setdefault(25, []).append('v_rcp_f32 v%d, v%d' % (GTMP + 6, GTMP + 6))
    o.setdefault(27, []).append('v_rcp_f32 v%d, v%d' % (GTMP + 7, GTMP + 7))
    return o


def gelu_post(t):
    z, h = CA[t & 1], GH + 4 * (t & 1)
    o = ['v_pk_mul_f32 %s, %s, %s' % (vr(GTMP + e, 2), vr(GTMP + e, 2), vr(z + e, 2)) for e in range(0, 8, 2)]
    o += ['v_cvt_pk_bf16_f32 v%d, v%d, v%d' % (h + p, GTMP + 2 * p, GTMP + 2 * p + 1) for p in range(4)]
    return o


def gelu_packed(t):
    z, m, h = CA[t & 1], CMR + 2 * (t & 1), GH + 4 * (t & 1)
    P = range(0, 8, 2)
    for e in P:
        a('v_pk_fma_f32 %s, %s, %s, %s op_sel_hi:[1,0,1] neg_lo:[0,1,0] neg_hi:[0,1,0]' % (vr(z + e, 2), vr(CCS + e, 2), vr(m, 2), vr(z + e, 2)))
    for e in P:
        a('v_pk_fma_f32 %s, %s, %s, %s op_sel:[0,1,0] op_sel_hi:[1,1,1]' % (vr(z + e, 2), vr(z + e, 2), vr(m, 2), vr(CB1 + e, 2)))
    for e in P:
        a('v_pk_mul_f32 %s, %s, %s' % (vr(GTMP + e, 2), vr(z + e, 2), vr(z + e, 2)))
    for e in P:
        a('v_pk_fma_f32 %s, %s, s[34:35], %s' % (vr(GTMP + e, 2), vr(GTMP + e, 2), vr(VGA, 2)))
    for e in P:
        a('v_pk_mul_f32 %s, %s, %s' % (vr(GTMP + e, 2), vr(GTMP + e, 2), vr(z + e, 2)))
    for e in range(8):
        a('v_exp_f32 v%d, v%d' % (GTMP + e, GTMP + e))
    for e in P:
        a('v_pk_add_f32 %s, %s, 1.0 op_sel_hi:[1,0]' % (vr(GTMP + e, 2), vr(GTMP + e, 2)))
    for e in range(8):
        a('v_rcp_f32 v%d, v%d' % (GTMP + e, GTMP + e))
    for e in P:
        a('v_pk_mul_f32 %s, %s, %s' % (vr(GTMP + e, 2), vr(GTMP + e, 2), vr(z + e, 2)))
    for p in range(4):
        a('v_cvt_pk_bf16_f32 v%d, v%d, v%d' % (h + p, GTMP + 2 * p, GTMP + 2 * p + 1))


hmk, fmk = {}, {}


def h_store(t):
    def f():
        a('s_add_u32 s24, s32, %d' % (t * 56 * 1024))
        store('buffer_store_dwordx4 %s, v1, %s, s24 offen' % (vr(GH + 4 * (t & 1)), srd(S_WS)), sFH)
        hmk[t] = a.vm_mark()
    return f


def h_flag(t):
    def f():
        a.wait_vm(hmk[t])
        store('buffer_store_dword v%d, v241, %s, 0 offen offset:%d' % (V_T, srd(S_WS), 256 * t), sFAST)
    return f


def wd_block(fis, wave):
    def f():
        skip = newlab('L_wd')
        a('s_cmp_eq_u32 s24, %d' % wave)
        a('s_cbranch_scc0 %s' % skip)
        for fi in fis:
            a(wd_load(fi))
            a.vm_issued -= 1
        a.label(skip)
    return f


cst_fill = []
for tt in range(2):
    r = CSTR + 8 * tt
    for c_ in range(2):
        cst_fill += ['v_add_f32 v%d, v%d, v%d' % (r + c_, r + c_, r + 2 + c_),
                     'v_add_f32 v%d, v%d, v%d' % (r + 4 + c_, r + 4 + c_, r + 6 + c_),
                     'v_add_f32 v%d, v%d, v%d' % (r + c_, r + c_, r + 4 + c_)]
    cst_fill += xg_reduce(r, r + 2) + xg_reduce(r + 1, r + 3) + stats_finish(r, r + 1, r + 2, True)
a('s_lshl_b32 s%d, s%d, 7' % (sA, sW))
a('v_add_u32 v247, s%d, v246' % sA)
cst_fill += ['ds_write_b64 v247, %s' % vr(CSTR, 2), 'ds_write_b64 v247, %s offset:512' % vr(CSTR + 8, 2)] + b1_unpack
LOOKX = 6


A_CCS = 244


def emit_c_loop(wd_list):
    pass0 = bool(wd_list)
    if not pass0:
        for e in range(8):
            a('v_accvgpr_read_b32 v%d, a%d' % (CCS + e, A_CCS + e))
    for u in range(LOOKX):
        a(c_xread(0, u))
    for t in range(8):
        nonvec = {}

        def put(k, x):
            nonvec.setdefault(k, []).append(x)
        for u in range(14):
            n = t * 14 + u
            m = n + LOOKX
            if m < 8 * 14:
                put(2 * u + 1, c_xread(m // 14, m % 14))
            if u % 2 == 1 and n + 1 < 8 * 14:
                put(2 * u + 1, 's_waitcnt lgkmcnt(%d)' % min(LOOKX - 2, 8 * 14 - 1 - (n + 2)))
        if t < 7:
            nonvec[14] = [('bar', t + 1)] + nonvec.get(14, [])
        if t + 2 < 8:
            su = c_dma_setup(t + 2)
            put(0, su[0])
            put(0, su[1])
            for i in range(4):
                put(2 + 2 * i, ('dma', t + 2, i))
        if t >= 3:
            put(20, ('call', h_flag(t - 3)))
        if t == 7:
            def issue_d0():
                amark['d0'] = early_issue(244, 243)
            put(22, ('call', issue_d0))
        if t < 7:
            for k in (10, 12, 16, 18, 22, 24, 26):
                if wd_list:
                    put(k, wd_load(wd_list.pop(0)))
        if t > 0:
            put(17, 'ds_read_b64 %s, v246 offset:%d' % (vr(CMR + 2 * (t & 1), 2), 128 * t))
        if t == 0:
            for k, it in enumerate(t0_loads):
                put(k, ('t0', it))
        valu = gelu_mid() if t >= 1 else {}
        if t >= 2:
            for x in gelu_post(t - 2):
                a(x)
            h_store(t - 2)()
        if t >= 1:
            for x in gelu_pre(t - 1):
                a(x)
        fill = list(cst_fill) if t == 0 else []
        first = 8
        fi = 0
        for k in range(28):
            u, kk = k >> 1, k & 1
            n = t * 14 + u
            if t == 0 and k == 0:
                a('s_waitcnt lgkmcnt(%d)' % (LOOKX - 2))
            if t == 0 and kk == 0 and u in wlate:
                a.wait_vm(wlate[u])
            if t == 0 and k == first:
                a.wait_vm(amark['cst'])
            r = CA[t & 1] + 4 * kk
            a('%s %s, %s, %s, %s' % (MFMA, vr(r), vr(CWW + 4 * (2 * u + kk)), vr(XF + 4 * (n % NXF)), '0' if u == 0 else vr(r)))
            if pass0 and t == 0:
                a('%s %s, %s, %s, %s' % (MFMA, vr(CCS + 4 * kk), vr(CWW + 4 * (2 * u + kk)), ar(A_ONES), '0' if u == 0 else vr(CCS + 4 * kk)))
            for it in nonvec.get(k, []):
                if isinstance(it, str):
                    a(it)
                elif it[0] == 'bar':
                    a.wait_vm(dm[it[1]])
                    a('s_barrier')
                elif it[0] == 'dma':
                    a(c_dma(it[1], it[2]))
                    dm[it[1]] = a.vm_mark()
                elif it[0] == 'call':
                    it[1]()
                elif it[0] == 't0':
                    if it[1][0] == 'w':
                        a(c_wload(it[1][1]))
                        wlate[it[1][1] >> 1] = a.vm_mark()
                    else:
                        a(it[1][1])
                        amark['cst'] = a.vm_mark()
            for x in valu.get(k, []):
                a(x)
            if fill and k >= first:
                want = -(-(len(fill)) * (k - first + 1) // (28 - first))
                while fi < want:
                    a(fill[fi])
                    fi += 1
        assert fi == len(fill)
        if t == 0:
            a('s_waitcnt lgkmcnt(0)')
            a('s_barrier')
            a('ds_read_b64 %s, v246 offset:0' % vr(CMR, 2))
            if pass0:
                for e in range(8):
                    a('v_accvgpr_write_b32 a%d, v%d' % (A_CCS + e, CCS + e))
            a('s_waitcnt lgkmcnt(0)')
    assert not wd_list


pair_base(sA, L.FC)
a('s_lshl_b32 s%d, s%d, 10' % (sB, sG))
a('s_add_u32 s%d, s%d, s%d' % (sA, sA, sB))
a('s_mul_i32 s%d, s%d, 56' % (sB, sW))
a('s_add_u32 s%d, s%d, s%d' % (sA, sA, sB))
a('v_lshl_add_u32 v243, v0, 2, s%d' % sA)
a('s_mov_b32 s%d, 0x3fff' % sMK2)
a('s_mov_b32 s%d, 0' % (sMK2 + 1))
n_before = a.vm_issued
dm_init = dict(dm)
a('s_cmp_eq_u32 s%d, 0' % sPAIR)
a('s_cbranch_scc0 L_c_loop1')
emit_c_loop(list(range(*WD_CH[1])))
a('s_branch L_c_done')
a.label('L_c_loop1')
extra = a.vm_issued - n_before
a.vm_issued = n_before
dm.clear()
dm.update(dm_init)
emit_c_loop([])
a.label('L_c_done')
stamp()
DH, DACC, DRD = 66, 130, 194
DRING, DLOOK = 16, 10
red_addrs()
publish_setup(L.XA[1], L.SA[1], L.FX[1], False, 5)
a('s_and_b32 s%d, s%d, 1' % (sA, sG))
a('s_lshr_b32 s%d, s%d, 1' % (sB, sW))
a('s_and_b32 s%d, s%d, s%d' % (sA, sA, sB))
a('s_xor_b32 s%d, s%d, 1' % (sA, sA))
a('s_and_b32 s%d, s%d, s%d' % (sPC, sFD, sA))
a('s_mov_b32 s%d, s%d' % (sPFC, sFAST))
a('s_cmp_eq_u32 s%d, 0' % sA)
a('s_cselect_b32 s%d, 0, 0x%x' % (sCc, INV))
a('s_add_u32 s%d, s%d, 1' % (sA, sS))
a('s_lshl_b32 s%d, s%d, 5' % (sA, sA))
a('s_lshl_b32 s%d, s%d, 1' % (sB, sJ))
a('s_add_u32 s%d, s%d, s%d' % (sA, sA, sB))
a('s_and_b32 s%d, s%d, 1' % (sB, sW))
a('s_add_u32 s%d, s%d, s%d' % (sA, sA, sB))
a('s_lshl_b32 s%d, s%d, 2' % (sA, sA))
a('s_add_u32 s%d, s%d, %d' % (sA, sA, L.FH))
a('s_or_b32 s20, s%d, s%d' % (sA, sCc))
pair_base(sA, L.H)
a('s_mul_i32 s%d, s%d, %d' % (sB, sG, 4 * 56 * 1024))
a('s_add_u32 s%d, s%d, s%d' % (sA, sA, sB))
a('s_mul_i32 s%d, s%d, %d' % (sB, sW, 14 * 1024))
a('s_add_u32 s%d, s%d, s%d' % (sO, sA, sB))
quarter_offsets(4, 56 * 1024)
a('s_cmp_eq_u32 s%d, 0' % sPAIR)
a('s_cbranch_scc1 L_d_nout')
owner_index()
a('s_mul_i32 s%d, s%d, 14336' % (sPX, sB))
a('s_lshl_b32 s%d, s%d, 6' % (sA, sA))
a('s_add_u32 s%d, s%d, s%d' % (sPX, sPX, sA))
a('s_add_u32 s%d, s%d, %d' % (sPX2, sPX, 2 * 14336))
a.label('L_d_nout')
a('v_and_b32 v%d, 15, v0' % V_TOK)
a('v_lshrrev_b32 v%d, 4, v0' % V_G)
a('v_mul_u32_u24 v242, 896, v%d' % V_TOK)
a('v_lshl_add_u32 v242, v%d, 3, v242' % V_G)
early_check(244, 243, amark['d0'])


def d_hload(q):
    tile, kk = divmod(q, 14)
    return ('buffer_load_dwordx4 %s, v1, %s, s%d offen offset:%d sc1' %
            (vr(DH + (q % DRING) * 4), srd(S_WS), sO + 4 * tile + (kk >> 2), 1024 * (kk & 3)))


hm = {}
dmk = {}
for q in range(DLOOK):
    a(d_hload(q))
    hm[q] = a.vm_mark()
    if q == 6:
        dmk[1] = early_issue(244, 243, 256)
stamp()
for x in gelu_post(6):
    a(x)
h_store(6)()
a('s_waitcnt lgkmcnt(0)')
gelu_packed(7)
h_flag(5)()
h_store(7)()
stamp()

a('s_barrier')
stamp()


def d_tile(tile):
    items = []
    for kk in range(14):
        q = tile * 14 + kk
        for t in range(4):
            r = DACC + (tile * 4 + t) * 4
            pre = [(lambda qq=q: a.wait_vm(hm[qq]))] if t == 0 else []
            if t == 0 and q in (3, 9):
                pre.append(h_flag({3: 6, 9: 7}[q]))
            post = None
            if t == 0 and q + DLOOK < 56:
                def post(qq=q + DLOOK):
                    if qq % 14 == 0:
                        early_check(244, 243, dmk[qq // 14], 256 * (qq // 14))
                    a(d_hload(qq))
                    hm[qq] = a.vm_mark()
                    if qq % 14 == 6 and qq // 14 < 3:
                        dmk[qq // 14 + 1] = early_issue(244, 243, 256 * (qq // 14 + 1))
            items.append((pre, '%s %s, %s, %s, %s' % (MFMA, vr(r), ar((kk * 4 + t) * 4), vr(DH + (q % DRING) * 4),
                                                      '0' if kk == 0 else vr(r)), post))
    return items


def d_out_store(st, pk):
    a('buffer_store_dwordx2 %s, v242, %s, s%d offen %s' % (vr(pk, 2), srd(S_OUT), sPX if st == 0 else sPX2, OUTSC))
    a('buffer_store_dwordx2 %s, v242, %s, s%d offen offset:32 %s' % (vr(pk + 2, 2), srd(S_OUT), sPX if st == 0 else sPX2, OUTSC))


def d_store(st, pk):
    fin, done = newlab('L_dfin'), newlab('L_ddone')
    a('s_cmp_eq_u32 s%d, 0' % sPAIR)
    a('s_cbranch_scc0 %s' % fin)
    publish_data(st, pk)
    a('s_branch %s' % done)
    a.label(fin)
    n = a.vm_issued
    d_out_store(st, pk)
    a.vm_issued = n
    a.label(done)


DT0, DT1, DPK, DSTT, DSTS = 226, 2, 18, 28, 36
stage0 = [lambda: (a('s_waitcnt lgkmcnt(0)'), a('s_barrier'))] + red_reads(0, DRD) + finish_pre(0, True, DT0)
stage0 += [lambda: a('s_waitcnt lgkmcnt(0)')] + finish_sum(0, DRD, DT0, DPK, False) + [lambda: d_store(0, DPK)]
run_tiles(d_tile, {1: red_writes(DACC, 0), 2: red_writes(DACC + 16, 1), 3: red_writes(DACC + 32, 2) + stage0})
stamp2()
for x in red_writes(DACC + 48, 3):
    a(x)
for x in finish_pre(1, True, DT1):
    a(x)
a('s_waitcnt lgkmcnt(0)')
a('s_barrier')
stamp2()
for x in red_reads(1, DRD):
    a(x)
a('s_waitcnt lgkmcnt(0)')
for x in finish_sum(1, DRD, DT1, DPK + 4, True):
    a(x)
d_store(1, DPK + 4)
stamp()
a('s_cmp_eq_u32 s%d, 0' % sPAIR)
a('s_cbranch_scc0 L_next_pair')
publish_stats([DT0, DT1], DSTT, DSTS)
FHMODE = ([x[5:] for x in sys.argv if x.startswith('--fh=')] + ['after'])[0]
a('v_mov_b32 v240, s20')
if FHMODE == 'before':
    a('s_waitcnt vmcnt(0)')
    a('s_mov_b64 exec, 1')
    a('buffer_store_dword v%d, v240, %s, 0 offen sc1' % (V_T, srd(S_WS)))
    a('s_mov_b64 exec, -1')
    a('v_lshlrev_b32 v241, 8, v0')
    a('v_add_u32 v241, s%d, v241' % sPF)
    a('s_mov_b64 exec, 3')
    store('buffer_store_dword v%d, v241, %s, 0 offen' % (V_T, srd(S_WS)), sPFC)
    a('s_mov_b64 exec, -1')
else:
    publish_flags(8)
    if FHMODE == 'wait':
        a('s_waitcnt vmcnt(0)')
    a('s_mov_b64 exec, 1')
    a('buffer_store_dword v%d, v240, %s, 0 offen sc1' % (V_T, srd(S_WS)))
    a('s_mov_b64 exec, -1')
a.label('L_next_pair')
stamp()
a('s_add_u32 s%d, s%d, 1' % (sPAIR, sPAIR))
a('s_cmp_lt_u32 s%d, 2' % sPAIR)
a('s_cbranch_scc1 L_pair')

a('s_cmp_eq_u32 s2, 0')
a('s_cbranch_scc0 L_noepoch')
a('s_cmp_eq_u32 s%d, 0' % sW)
a('s_cbranch_scc0 L_noepoch')
a('buffer_load_dword v2, off, %s, 0 sc1' % srd(S_WS))
a('s_waitcnt vmcnt(0)')
a('v_add_u32 v2, 1, v2')
a('s_mov_b64 exec, 1')
a('buffer_store_dword v2, off, %s, 0 sc1' % srd(S_WS))
a('s_mov_b64 exec, -1')
a.label('L_noepoch')
if PAD:
    a.label('L_padspin')
    a('s_memrealtime s[34:35]')
    a('s_waitcnt lgkmcnt(0)')
    a('s_sub_u32 s34, s34, s0')
    a('s_cmp_lt_u32 s34, %d' % PAD[0])
    a('s_cbranch_scc1 L_padspin')
if DBG:
    a('s_memtime s[32:33]')
    a('s_memrealtime s[34:35]')
    a('s_waitcnt lgkmcnt(0)')
    a('s_sub_u32 s32, s32, s26')
    a('s_sub_u32 s34, s34, s0')
    build_srd(S_TMP, P_DBG, 256)
    a('v_mov_b32 v2, s32')
    a('v_mov_b32 v3, s34')
    a('v_mov_b32 v4, s%d' % sFAST)
    a('v_mov_b32 v5, s%d' % sXCC)
    a('s_lshr_b32 s%d, s2, 6' % sA)
    a('s_lshl_b32 s%d, s%d, 4' % (sA, sA))
    a('s_and_b32 s%d, s2, 63' % sB)
    a('s_or_b32 s%d, s%d, s%d' % (sB, sB, sW))
    a('s_cmp_eq_u32 s%d, 0' % sB)
    a('s_cselect_b32 s%d, s%d, 0x%x' % (sA, sA, INV))
    a('v_mov_b32 v6, s%d' % sA)
    a('s_mov_b64 exec, 1')
    a('buffer_store_dwordx4 v[2:5], v6, %s, 0 offen' % srd(S_TMP))
    a('s_mov_b64 exec, -1')
if DIAG:
    stamp()
    a('s_mov_b32 s%d, 63' % sSTI)
    a('s_lshl_b64 exec, 1, s%d' % sSTI)
    a('v_mov_b32 v%d, s%d' % (V_STAMP, sERR))
    a('s_mov_b32 s%d, 62' % sSTI)
    a('s_lshl_b64 exec, 1, s%d' % sSTI)
    a('v_mov_b32 v%d, s%d' % (V_STAMP, sFAST))
    a('s_mov_b64 exec, -1')
    a('s_lshl_b32 s%d, s2, 2' % sA)
    a('s_add_u32 s%d, s%d, s%d' % (sA, sA, sW))
    a('s_lshl_b32 s%d, s%d, 8' % (sA, sA))
    a('v_lshlrev_b32 v2, 2, v0')
    a('s_add_u32 s%d, s%d, %d' % (sA, sA, L.WS_USED))
    a('s_mov_b32 s%d, 0x%x' % (S_WS + 2, L.WS_USED + 256 * 1024))
    a('buffer_store_dword v%d, v2, %s, s%d offen' % (V_STAMP, srd(S_WS), sA))
    if DBGST:
        build_srd(S_TMP, P_DBG, 256)
        a('v_readfirstlane_b32 s%d, v%d' % (sA, V_STAMP))
        a('s_nop 4')
        a('v_subrev_u32 v3, s%d, v%d' % (sA, V_STAMP))
        a('s_or_b32 s%d, s2, s%d' % (sB, sW))
        a('s_cmp_eq_u32 s%d, 0' % sB)
        a('s_cselect_b32 s%d, 0, 0x%x' % (sB, INV))
        a('v_or_b32 v2, s%d, v2' % sB)
        SEL = [int(x[6:]) for x in sys.argv if x.startswith('--sel=')]
        sel = SEL[0] if SEL else 1
        a('v_subrev_u32 v2, %d, v2' % (4 * sel))
        a('buffer_store_dword v3, v2, %s, 0 offen' % srd(S_TMP))
a.label('L_end')
a('s_endpgm')

a.finalize()
body = a.text()

import os
hdr = open(os.path.join(os.path.dirname(os.path.abspath(__file__)), 'header.txt')).read()
out = hdr + '; @launch grid=(256,1,1) block=(256,1,1) lds=%d\n' % L.LDS_BYTES
out += '.amdgcn_target "amdgcn-amd-amdhsa--gfx950"\n.text\n.globl %s_kernel\n.p2align 8\n.type %s_kernel,@function\n%s_kernel:\n' % (NAME, NAME, NAME)
out += body
out += '''.section .rodata,"a"
.p2align 6
.amdhsa_kernel %s_kernel
  .amdhsa_next_free_vgpr 512
  .amdhsa_next_free_sgpr 102
  .amdhsa_accum_offset 256
  .amdhsa_group_segment_fixed_size 0
  .amdhsa_kernarg_size 88
  .amdhsa_user_sgpr_count 2
  .amdhsa_user_sgpr_kernarg_segment_ptr 1
  .amdhsa_system_sgpr_workgroup_id_x 1
.end_amdhsa_kernel
''' % NAME
sys.stdout.write(out)
```

```python
import struct
import sys
from asmlib import Asm
import layout as L

NAME = 'interleave_layers__sliding_local_dilated__mixer_channel_mlp__prompt'
DIAG = '--diag' in sys.argv
FASTMODE = ([x[7:] for x in sys.argv if x.startswith('--fast=')] + ['flags'])[0]
NOFAST = FASTMODE == 'none'
PAD = [int(x[6:]) for x in sys.argv if x.startswith('--pad=')]
DBG = '--dbg' in sys.argv or bool(PAD)
SPIN_LIMIT = 200000
OUTSC = ([x[8:] for x in sys.argv if x.startswith('--outsc=')] + [''])[0].replace('_', ' ')
SLEEP = int(([x[8:] for x in sys.argv if x.startswith('--sleep=')] + ['0'])[0])
INV = 0x80000000

a = Asm()

sXCC = 3
S_WS, S_TMP, S_B1, S_OUT = 4, 8, 12, 16
P_X, P_WQKV, P_WO, P_BX, P_W1, P_B1, P_W2, P_B2, P_OUT, P_DBG, P_WSP = 20, 22, 24, 26, 28, 30, 32, 34, 36, 38, 40
sS, sC, sG, sJ, sW, sT, sPAIR, sSPIN = 42, 43, 44, 45, 46, 47, 48, 49
sM1 = 50
sM2 = 58
sM0 = 66
sO = 74
sA, sB, sCc, sD = 90, 91, 92, 93
sMK = 94
sTS = 96
sGT = 98
sERR = 99
sSTI = 100
sFAST = 101
sFD = 27
sPFC = 26
sFH = 25


def srd(n):
    return 's[%d:%d]' % (n, n + 3)


def vr(n, k=4):
    return 'v[%d:%d]' % (n, n + k - 1)


def ar(n, k=4):
    return 'a[%d:%d]' % (n, n + k - 1)


def sp(n):
    return 's[%d:%d]' % (n, n + 1)


def f2h(x):
    return '0x%08x' % struct.unpack('<I', struct.pack('<f', x))[0]


V_T, V_STAMP = 254, 255
V_TOK, V_G = 250, 251
MFMA = 'v_mfma_f32_16x16x32_bf16'


DIAG2 = '--diag2' in sys.argv
PREF = '--pref' in sys.argv
TOUCH = '--notouch' not in sys.argv
STWAIT = '--stwait' in sys.argv
P2EARLY = '--p2early' in sys.argv
SKEW = [int(x[7:]) for x in sys.argv if x.startswith('--skew=')]
DBGST = '--dbgst' in sys.argv


def stamp2():
    if DIAG2:
        stamp()


def stamp():
    if not DIAG:
        return
    a('%s %s' % ('s_memrealtime' if '--rt' in sys.argv else 's_memtime', sp(sTS)))
    a('s_waitcnt lgkmcnt(0)')
    a('s_lshl_b64 exec, 1, s%d' % sSTI)
    a('v_mov_b32 v%d, s%d' % (V_STAMP, sTS))
    a('s_mov_b64 exec, -1')
    a('s_add_u32 s%d, s%d, 1' % (sSTI, sSTI))


lab_no = [0]


def newlab(p):
    lab_no[0] += 1
    return '%s_%d' % (p, lab_no[0])


def skew_store(point, have=False):
    if not SKEW or SKEW[0] != point:
        return
    if not have:
        a('s_memrealtime s[96:97]')
        a('s_waitcnt lgkmcnt(0)')
    build_srd(S_TMP, P_DBG, 256)
    a('s_and_b32 s%d, s2, 15' % sA)
    a('s_or_b32 s%d, s%d, s%d' % (sA, sA, sW))
    a('s_cmp_eq_u32 s%d, 0' % sA)
    a('s_cselect_b32 s%d, 0, 0x%x' % (sA, INV))
    a('s_lshr_b32 s%d, s2, 2' % sB)
    a('s_or_b32 s%d, s%d, s%d' % (sA, sA, sB))
    a('v_mov_b32 v21, s%d' % sA)
    a('v_mov_b32 v22, s96')
    a('s_mov_b64 exec, 1')
    a('buffer_store_dword v22, v21, %s, 0 offen' % srd(S_TMP))
    a.vm_issued -= 1
    a('s_mov_b64 exec, -1')


def build_srd(dst, ptr, nbytes):
    a('s_mov_b32 s%d, s%d' % (dst, ptr))
    a('s_and_b32 s%d, s%d, 0xffff' % (dst + 1, ptr + 1))
    a('s_mov_b32 s%d, 0x%x' % (dst + 2, nbytes))
    a('s_mov_b32 s%d, 0x20000' % (dst + 3))


def poll(voff, off2=None, sleep=None):
    lab, done = newlab('L_poll'), newlab('L_polldone')
    a('s_mov_b64 exec, %s' % sp(sMK))
    a('s_mov_b32 s%d, 0' % sSPIN)
    a.label(lab)
    a('buffer_load_dword v253, v%d, %s, 0 offen sc1' % (voff, srd(S_WS)))
    if off2 is not None:
        a('buffer_load_dword v245, v%d, %s, 0 offen offset:%d sc1' % (voff, srd(S_WS), off2))
    a('s_waitcnt vmcnt(0)')
    if off2 is not None:
        a('v_xor_b32 v245, s%d, v245' % sT)
        a('v_xor_b32 v253, s%d, v253' % sT)
        a('v_or_b32 v253, v253, v245')
        a('v_cmp_ne_u32 vcc, 0, v253')
    else:
        a('v_cmp_ne_u32 vcc, s%d, v253' % sT)
    a('s_nop 4')
    a('s_cbranch_vccz %s' % done)
    if sleep or SLEEP:
        a('s_sleep %d' % (sleep or SLEEP))
    a('s_add_u32 s%d, s%d, 1' % (sSPIN, sSPIN))
    a('s_cmp_lt_u32 s%d, %d' % (sSPIN, SPIN_LIMIT))
    a('s_cbranch_scc1 %s' % lab)
    a('s_add_u32 s%d, s%d, 1' % (sERR, sERR))
    a.label(done)
    a('s_mov_b64 exec, -1')


sMK2 = 30


def early_issue(dst, voff, off=0):
    a('s_mov_b64 exec, %s' % sp(sMK2))
    a('buffer_load_dword v%d, v%d, %s, 0 offen offset:%d sc1' % (dst, voff, srd(S_WS), off))
    a('s_mov_b64 exec, -1')
    return a.vm_mark()


def early_check(dst, voff, mark, off=0):
    ok = newlab('L_early')
    a.wait_vm(mark)
    a('s_mov_b64 exec, %s' % sp(sMK2))
    a('v_cmp_ne_u32 vcc, s%d, v%d' % (sT, dst))
    a('s_mov_b64 exec, -1')
    a('s_nop 2')
    a('s_cbranch_vccz %s' % ok)
    a('s_mov_b64 %s, %s' % (sp(sMK), sp(sMK2)))
    n = a.vm_issued
    if off:
        a('v_add_u32 v253, %d, v%d' % (off, voff))
        a('v_mov_b32 v%d, v253' % dst)
        poll(dst)
    else:
        poll(voff)
    a.vm_issued = n
    a.label(ok)


def store(fmt, cond=None):
    if cond is None or NOFAST or (FASTMODE == 'flags' and cond in (sFD, sFH, sPC)):
        a(fmt + ' sc1')
        return
    slow, done = newlab('L_slow'), newlab('L_st')
    a('s_cmp_eq_u32 s%d, 0' % cond)
    a('s_cbranch_scc1 %s' % slow)
    a(fmt)
    a('s_branch %s' % done)
    a.label(slow)
    a(fmt + ' sc1')
    a.vm_issued -= 1
    a.label(done)


def set_flags(voff, nlanes, cond=None, val=V_T, between=()):
    mark = a.vm_mark()
    for x in between:
        a(x)
    a.wait_vm(mark)
    a('s_mov_b64 exec, %d' % ((1 << nlanes) - 1))
    store('buffer_store_dword v%d, v%d, %s, 0 offen' % (val, voff, srd(S_WS)), cond)
    a('s_mov_b64 exec, -1')


def xg_reduce(x, t, op='v_add_f32'):
    return ['v_mov_b32 v%d, v%d' % (t, x),
            'v_permlane32_swap_b32 v%d, v%d' % (x, t),
            '%s v%d, v%d, v%d' % (op, x, x, t),
            'v_mov_b32 v%d, v%d' % (t, x),
            'v_permlane16_swap_b32 v%d, v%d' % (x, t),
            '%s v%d, v%d, v%d' % (op, x, x, t)]


EPS = 1e-5


def stats_finish(s1, s2, t, double_ln):
    o = ['v_mul_f32 v%d, %s, v%d' % (s1, f2h(1.0 / 448), s1),
         'v_mul_f32 v%d, %s, v%d' % (s2, f2h(1.0 / 448), s2),
         'v_fma_f32 v%d, -v%d, v%d, v%d' % (s2, s1, s1, s2),
         'v_max_f32 v%d, 0, v%d' % (s2, s2),
         'v_add_f32 v%d, %s, v%d' % (t, f2h(EPS), s2),
         'v_rsq_f32 v%d, v%d' % (t, t)]
    if not double_ln:
        o += ['v_mov_b32 v%d, v%d' % (s2, t)]
    else:
        o += ['v_mul_f32 v%d, v%d, v%d' % (s2, s2, t),
              'v_fmaak_f32 v%d, v%d, v%d, %s' % (s2, s2, t, f2h(EPS)),
              'v_rsq_f32 v%d, v%d' % (s2, s2),
              'v_mul_f32 v%d, v%d, v%d' % (s2, s2, t)]
    return o


def pair_base(dst, arr):
    a('s_mul_i32 s%d, s%d, %d' % (dst, sPAIR, arr[1] - arr[0]))
    a('s_add_u32 s%d, s%d, %d' % (dst, dst, arr[0]))


def quarter_offsets(n, stride):
    for t in range(n):
        if t:
            a('s_add_u32 s%d, s%d, %d' % (sO + 4 * t, sO + 4 * (t - 1), stride))
        for q in range(1, 4):
            a('s_add_u32 s%d, s%d, %d' % (sO + 4 * t + q, sO + 4 * t, 4096 * q))


sPX, sPS, sPF, sPC, sPX2 = 36, 37, 28, 29, 33


def stats_flags(delta, lsh):
    a('v_lshlrev_b32 v241, %d, v0' % lsh)
    a('s_add_u32 s%d, s%d, %d' % (sA, sPF, delta))
    a('v_add_u32 v241, s%d, v241' % sA)
    a('s_mov_b64 exec, 3')
    store('buffer_store_dword v%d, v241, %s, 0 offen' % (V_T, srd(S_WS)), sPFC)
    a('s_mov_b64 exec, -1')


a('s_cmp_ge_u32 s2, 256')
a('s_cbranch_scc1 L_end')
if '--perm' in sys.argv:
    a('s_and_b32 s90, s2, 7')
    a('s_lshr_b32 s91, s2, 3')
    a('s_and_b32 s91, s91, 7')
    a('s_and_b32 s2, s2, 0xc0')
    a('s_lshl_b32 s90, s90, 3')
    a('s_or_b32 s2, s2, s90')
    a('s_or_b32 s2, s2, s91')
a('s_load_dwordx16 s[20:35], s[0:1], 0')
a('s_load_dwordx4 s[36:39], s[0:1], 64')
a('s_load_dwordx2 s[40:41], s[0:1], 80')
a('s_getreg_b32 s%d, hwreg(HW_REG_XCC_ID, 0, 4)' % sXCC)
a('s_and_b32 s%d, s2, 7' % sA)
a('s_lshr_b32 s%d, s2, 3' % sB)
a('s_lshr_b32 s%d, s%d, 4' % (sCc, sB))
a('s_lshl_b32 s%d, s%d, 1' % (sS, sA))
a('s_add_u32 s%d, s%d, s%d' % (sS, sS, sCc))
a('s_and_b32 s%d, s%d, 15' % (sC, sB))
a('s_lshr_b32 s%d, s%d, 3' % (sA, sC))
a('s_lshl_b32 s%d, s%d, 1' % (sG, sS))
a('s_add_u32 s%d, s%d, s%d' % (sG, sG, sA))
a('s_and_b32 s%d, s%d, 7' % (sJ, sC))
a('s_mov_b32 s%d, 0' % sERR)
if SKEW and SKEW[0] == 0:
    a('s_memrealtime s[96:97]')
if PREF:
    a('s_getpc_b64 s[96:97]')
    a.label('L_pc')
    a('s_lshl_b32 s%d, s%d, 11' % (sA, sB))
    a('v_lshlrev_b32 v3, 3, v0')
    a('v_add_u32 v3, s%d, v3' % sA)
    a('v_min_u32 v3, L_end-L_pc-8, v3')
    a('global_load_dwordx2 v[252:253], v3, s[96:97]')
a('v_lshrrev_b32 v2, 6, v0')
a('v_and_b32 v0, 63, v0')
a('v_readfirstlane_b32 s%d, v2' % sW)
a('v_lshlrev_b32 v1, 4, v0')
if DIAG:
    a('v_mov_b32 v%d, 0' % V_STAMP)
    a('s_mov_b32 s%d, 0' % sSTI)
stamp()
a('v_and_b32 v%d, 15, v0' % V_TOK)
a('v_lshrrev_b32 v%d, 4, v0' % V_G)
sSTG = 40
a('s_waitcnt lgkmcnt(0)')
if DBG:
    a('s_memtime s[26:27]')
    a('s_memrealtime s[0:1]')
    a('s_waitcnt lgkmcnt(0)')
skew_store(0, True)
build_srd(S_WS, P_WSP, L.WS_USED)
a('buffer_load_dword v%d, off, %s, 0 sc1' % (V_T, srd(S_WS)))
a('s_lshl_b32 s%d, s%d, 14' % (sSTG, sW))
a('s_add_u32 s%d, s%d, %d' % (sSTG, sSTG, L.L_R2))

build_srd(S_TMP, P_X, 2048 * 896)
a('v_mul_u32_u24 v2, 896, v%d' % V_TOK)
a('v_lshl_add_u32 v2, v%d, 3, v2' % V_G)
a('s_lshr_b32 s%d, s%d, 1' % (sA, sC))
a('s_lshl_b32 s%d, s%d, 3' % (sB, sS))
a('s_add_u32 s%d, s%d, s%d' % (sO + 0, sA, sB))
a('s_and_b32 s%d, s%d, 1' % (sA, sC))
a('s_mul_i32 s%d, s%d, 7' % (sA, sA))
a('s_add_u32 s%d, s%d, s%d' % (sO + 1, sA, sW))
a('s_cmp_lt_u32 s%d, 3' % sW)
a('s_cselect_b32 s%d, 0, 0x%x' % (sO + 2, INV))
a('s_mul_i32 s%d, s%d, 14336' % (sA, sO + 0))
a('s_lshl_b32 s%d, s%d, 6' % (sB, sO + 1))
a('s_add_u32 s%d, s%d, s%d' % (sA, sA, sB))
a('v_or_b32 v3, s%d, v2' % (sO + 2))
a('buffer_load_dwordx2 v[10:11], v2, %s, s%d offen' % (srd(S_TMP), sA))
a('buffer_load_dwordx2 v[12:13], v2, %s, s%d offen offset:32' % (srd(S_TMP), sA))
a('buffer_load_dwordx2 v[14:15], v3, %s, s%d offen offset:256' % (srd(S_TMP), sA))
a('buffer_load_dwordx2 v[16:17], v3, %s, s%d offen offset:288' % (srd(S_TMP), sA))

build_srd(S_TMP, P_WQKV, 448 * 2688)
qMAT, qU, qINV = sO + 3, sO + 4, sO + 5
a('s_lshl_b32 s%d, s%d, 4' % (sA, sW))
a('s_add_u32 s%d, s%d, s%d' % (sA, sA, sS))
a('s_cmp_lt_u32 s%d, 42' % sA)
a('s_cselect_b32 s%d, 0, 0x%x' % (qINV, INV))
a('s_min_u32 s%d, s%d, 41' % (sA, sA))
a('s_mul_i32 s%d, s%d, 4682' % (qMAT, sA))
a('s_lshr_b32 s%d, s%d, 16' % (qMAT, qMAT))
a('s_mul_i32 s%d, s%d, 14' % (sB, qMAT))
a('s_sub_u32 s%d, s%d, s%d' % (qU, sA, sB))
a('s_mul_i32 s%d, s%d, %d' % (sA, qU, 32 * 2688))
a('s_mul_i32 s%d, s%d, 896' % (sB, qMAT))
a('s_add_u32 s%d, s%d, s%d' % (sA, sA, sB))
a('s_mul_i32 s%d, s%d, 56' % (sB, sC))
a('s_add_u32 s%d, s%d, s%d' % (sA, sA, sB))
a('v_lshrrev_b32 v4, 2, v0')
a('v_mul_u32_u24 v4, 2688, v4')
a('v_and_b32 v5, 3, v0')
a('v_lshl_add_u32 v4, v5, 4, v4')
a('v_or_b32 v4, s%d, v4' % qINV)
a('s_mov_b32 m0, s%d' % sSTG)
a('s_add_u32 s%d, s%d, %d' % (sB, sA, 16 * 2688))
a('buffer_load_dwordx4 v4, %s, s%d offen lds' % (srd(S_TMP), sA))
a('s_add_u32 m0, s%d, 1024' % sSTG)
a('s_nop 0')
a('buffer_load_dwordx4 v4, %s, s%d offen lds' % (srd(S_TMP), sB))

bINV, bDST, bSTR, bINV2, bDST2, sSTRD = 20, 21, 22, 23, 24, 25


def emit_p2_issue():
    a('s_cmp_eq_u32 s%d, 3' % sW)
    a('s_cbranch_scc1 L_p2_w1')
    a('s_lshl_b32 s%d, s%d, 5' % (sA, sW))
    a('s_add_u32 s%d, s%d, s%d' % (sA, sA, sG))
    a('s_cmp_lt_u32 s%d, 72' % sA)
    a('s_cselect_b32 s%d, 0, 0x%x' % (bINV, INV))
    a('s_cmp_eq_u32 s%d, 7' % sJ)
    a('s_cselect_b32 s%d, 0x%x, s%d' % (bINV, INV, bINV))
    a('s_min_u32 s%d, s%d, 71' % (sA, sA))
    a('s_min_u32 s%d, s%d, 6' % (sD, sJ))
    a('s_cmp_lt_u32 s%d, 16' % sA)
    a('s_cselect_b32 s%d, s%d, s%d' % (S_TMP, P_WO, P_W2))
    a('s_cselect_b32 s%d, s%d, s%d' % (S_TMP + 1, P_WO + 1, P_W2 + 1))
    a('s_mov_b32 s%d, 0x%x' % (S_TMP + 2, 1792 * 896))
    a('s_cselect_b32 s%d, 0x%x, s%d' % (S_TMP + 2, 448 * 896, S_TMP + 2))
    a('s_cselect_b32 s%d, 28, 32' % sB)
    a('s_cselect_b32 s%d, 0, 16' % sCc)
    a('s_mov_b32 s%d, %d' % (bSTR, 56 * 1024))
    a('s_cselect_b32 s%d, %d, s%d' % (bSTR, 16 * 1024, bSTR))
    a('s_mov_b32 s%d, %d' % (bDST, L.WD))
    a('s_cselect_b32 s%d, %d, s%d' % (bDST, L.WB, bDST))
    a('s_cselect_b32 s%d, 0x%x, 0' % (sO + 9, INV))
    a('s_and_b32 s%d, s%d, 0xffff' % (S_TMP + 1, S_TMP + 1))
    a('s_mov_b32 s%d, 0x20000' % (S_TMP + 3))
    a('s_sub_u32 s%d, s%d, s%d' % (sA, sA, sCc))
    a('s_lshl_b32 s%d, s%d, 10' % (sCc, sA))
    a('s_add_u32 s%d, s%d, s%d' % (bDST, bDST, sCc))
    a('s_lshl_b32 s%d, s%d, 2' % (sCc, sD))
    a('s_mul_i32 s%d, s%d, s%d' % (sCc, sCc, bSTR))
    a('s_add_u32 s%d, s%d, s%d' % (bDST, bDST, sCc))
    a('s_mul_i32 s%d, s%d, s%d' % (sA, sA, sB))
    a('s_mul_i32 s%d, s%d, 896' % (sA, sA))
    a('s_lshl_b32 s%d, s%d, 7' % (sB, sD))
    a('s_add_u32 s%d, s%d, s%d' % (sO + 10, sA, sB))
    a('s_mov_b32 s%d, 896' % sSTRD)
    a('s_mov_b32 s%d, 0x%x' % (bINV2, INV))
    a('s_mov_b32 s%d, 0' % bDST2)
    a('s_mov_b32 s%d, 0' % (sO + 11))
    a('s_branch L_p2_go')
    a.label('L_p2_w1')
    build_srd(S_TMP, P_W1, 448 * 3584)
    a('s_lshl_b32 s%d, s%d, 4' % (sA, sS))
    a('s_add_u32 s%d, s%d, s%d' % (sA, sA, sC))
    a('s_cmp_lt_u32 s%d, 136' % sA)
    a('s_cselect_b32 s%d, 0, 0x%x' % (bINV2, INV))
    a('s_mov_b32 s%d, 0' % bINV)
    a('s_mov_b32 s%d, 0' % (sO + 9))
    a('s_mov_b32 s%d, %d' % (bSTR, 14 * 1024))
    a('s_mov_b32 s%d, 3584' % sSTRD)
    for dst, src, add in ((bDST, sO + 10, 0), (bDST2, sO + 11, 256)):
        a('s_add_u32 s%d, s%d, %d' % (sB, sA, add))
        a('s_min_u32 s%d, s%d, 391' % (sB, sB))
        a('s_mul_i32 s%d, s%d, 4682' % (sCc, sB))
        a('s_lshr_b32 s%d, s%d, 16' % (sCc, sCc))
        a('s_mul_i32 s%d, s%d, 14' % (sD, sCc))
        a('s_sub_u32 s%d, s%d, s%d' % (sB, sB, sD))
        a('s_mul_i32 s%d, s%d, %d' % (src, sB, 32 * 3584))
        a('s_lshl_b32 s%d, s%d, 7' % (sD, sCc))
        a('s_add_u32 s%d, s%d, s%d' % (src, src, sD))
        a('s_mul_i32 s%d, s%d, 56' % (sD, sCc))
        a('s_add_u32 s%d, s%d, s%d' % (sD, sD, sB))
        a('s_lshl_b32 s%d, s%d, 10' % (sD, sD))
        a('s_add_u32 s%d, s%d, %d' % (dst, sD, L.WC))
    a.label('L_p2_go')
    a('v_lshrrev_b32 v6, 3, v0')
    a('v_mul_lo_u32 v6, v6, s%d' % sSTRD)
    a('v_and_b32 v5, 7, v0')
    a('v_lshl_add_u32 v6, v5, 4, v6')
    a('v_or_b32 v8, s%d, v6' % bINV2)
    a('v_or_b32 v6, s%d, v6' % bINV)
    a('v_cmp_lt_u32 vcc, 31, v0')
    a('v_mov_b32 v7, s%d' % (sO + 9))
    a('v_cndmask_b32 v7, 0, v7, vcc')
    a('v_or_b32 v7, v7, v6')
    a('s_lshl_b32 s%d, s%d, 3' % (sB, sSTRD))
    for slot in range(2):
        src = sO + 10 + slot
        for q in range(4):
            a('s_add_u32 m0, s%d, %d' % (sSTG, 2048 + 4096 * slot + 1024 * q))
            if q:
                a('s_add_u32 s%d, s%d, s%d' % (src, src, sB))
            else:
                a('s_nop 0')
            a('buffer_load_dwordx4 v%d, %s, s%d offen lds' % (8 if slot else (7 if q == 3 else 6), srd(S_TMP), src))


if P2EARLY:
    emit_p2_issue()
build_srd(S_B1, P_B1, 1792 * 2)
build_srd(S_OUT, P_OUT, 2048 * 896)
a('v_bfe_u32 v18, v0, 2, 2')
a('v_lshl_add_u32 v18, v%d, 2, v18' % V_G)
a('v_and_b32 v19, 3, v0')
a('v_lshlrev_b32 v19, 3, v19')
if TOUCH:
    a('v_lshlrev_b32 v21, 21, v0')
    a('s_mov_b64 exec, 0x1ffff')
    a('buffer_load_dword v253, v21, %s, 0 offen' % srd(S_WS))
    a('s_mov_b64 exec, -1')
    a('s_waitcnt vmcnt(%d)' % (9 if P2EARLY else 1))
else:
    a('s_waitcnt vmcnt(%d)' % (8 if P2EARLY else 0))
stamp()

a('s_mov_b32 s%d, 0x9E3779B1' % sA)
a('v_mul_lo_u32 v%d, v%d, s%d' % (V_T, V_T, sA))
a('v_add_u32 v%d, 0x7F4A7C15, v%d' % (V_T, V_T))
a('v_and_b32 v%d, -16, v%d' % (V_T, V_T))
a('v_lshl_add_u32 v20, v18, 6, v19')
a('v_add_u32 v20, s%d, v20' % sSTG)
for hf in range(2):
    a('ds_read_b64_tr_b16 %s, v20 offset:%d' % (vr(24 + 4 * hf, 2), 32 * hf))
    a('ds_read_b64_tr_b16 %s, v20 offset:%d' % (vr(26 + 4 * hf, 2), 32 * hf + 1024))
a('v_readfirstlane_b32 s%d, v%d' % (sT, V_T))
a('s_mul_i32 s%d, s%d, 14' % (sA, sO + 0))
a('s_add_u32 s%d, s%d, s%d' % (sA, sA, sO + 1))
a('s_lshl_b32 s%d, s%d, 10' % (sB, sA))
a('s_add_u32 s%d, s%d, %d' % (sB, sB, L.XA[0]))
a('v_or_b32 v3, s%d, v1' % (sO + 2))
a('buffer_store_dwordx4 v[10:13], v1, %s, s%d offen sc1' % (srd(S_WS), sB))
a('s_add_u32 s%d, s%d, 4096' % (sB, sB))
a('buffer_store_dwordx4 v[14:17], v3, %s, s%d offen sc1' % (srd(S_WS), sB))
a('v_cmp_gt_u32 vcc, 12, v%d' % V_TOK)
a('s_mul_i32 s%d, s%d, 84' % (sB, sC))
a('s_mul_i32 s%d, s%d, 28' % (sCc, qMAT))
a('s_add_u32 s%d, s%d, s%d' % (sB, sB, sCc))
a('s_add_u32 s%d, s%d, s%d' % (sB, sB, qU))
a('s_lshl_b32 s%d, s%d, 10' % (sB, sB))
a('s_add_u32 s%d, s%d, %d' % (sB, sB, L.WA))
a('v_or_b32 v4, s%d, v1' % qINV)
a('s_waitcnt lgkmcnt(0)')
for p in range(4):
    a('v_cndmask_b32 v%d, 0, v%d, vcc' % (28 + p, 28 + p))
a('buffer_store_dwordx4 v[24:27], v4, %s, s%d offen sc1' % (srd(S_WS), sB))
a('s_add_u32 s%d, s%d, %d' % (sB, sB, 14 * 1024))
a('buffer_store_dwordx4 v[28:31], v4, %s, s%d offen sc1' % (srd(S_WS), sB))
a('v_mov_b32 v2, 0x3f803f80')
for k in range(2):
    x, s1, s2 = 10 + 4 * k, 110 + 2 * k, 111 + 2 * k
    a('v_mov_b32 v%d, 0' % s1)
    a('v_mov_b32 v%d, 0' % s2)
    for p in range(4):
        a('v_dot2_f32_bf16 v%d, v%d, v2, v%d' % (s1, x + p, s1))
        a('v_dot2_f32_bf16 v%d, v%d, v%d, v%d' % (s2, x + p, x + p, s2))
    for t in xg_reduce(s1, 114) + xg_reduce(s2, 115):
        a(t)
a('s_lshl_b32 s%d, s%d, 7' % (sB, sA))
a('s_add_u32 s%d, s%d, %d' % (sB, sB, L.SA[0]))
a('v_lshlrev_b32 v2, 3, v%d' % V_TOK)
a('v_or_b32 v3, s%d, v2' % (sO + 2))
a('s_mov_b64 exec, 0xffff')
a('buffer_store_dwordx2 v[110:111], v2, %s, s%d offen sc1' % (srd(S_WS), sB))
a('buffer_store_dwordx2 v[112:113], v3, %s, s%d offen offset:512 sc1' % (srd(S_WS), sB))
a('s_mov_b64 exec, -1')
crit_mark = a.vm_mark()
if not P2EARLY:
    emit_p2_issue()
a('s_lshl_b32 s%d, s%d, 5' % (sA, sO + 0))
a('s_add_u32 s%d, s%d, s%d' % (sA, sA, sO + 1))
a('s_lshl_b32 s%d, s%d, 2' % (sA, sA))
a('s_add_u32 s%d, s%d, %d' % (sA, sA, L.FX[0]))
a('v_lshlrev_b32 v2, 4, v0')
a('v_add_u32 v2, s%d, v2' % sA)
a('v_cmp_eq_u32 vcc, 1, v0')
a('v_mov_b32 v3, s%d' % (sO + 2))
a('v_cndmask_b32 v3, 0, v3, vcc')
a('v_or_b32 v2, v2, v3')
a('s_lshl_b32 s%d, s%d, 6' % (sA, sC))
a('s_lshl_b32 s%d, s%d, 2' % (sB, sS))
a('s_add_u32 s%d, s%d, s%d' % (sA, sA, sB))
a('s_add_u32 s%d, s%d, s%d' % (sA, sA, sW))
a('s_lshl_b32 s%d, s%d, 2' % (sA, sA))
a('s_add_u32 s%d, s%d, %d' % (sA, sA, L.FQ))
a('v_mov_b32 v3, s%d' % sA)
a('v_cmp_eq_u32 vcc, 2, v0')
a('v_cndmask_b32 v2, v2, v3, vcc')
a('s_lshl_b32 s%d, s%d, 4' % (sA, sS))
a('s_add_u32 s%d, s%d, s%d' % (sA, sA, sC))
a('s_lshl_b32 s%d, s%d, 2' % (sA, sA))
a('s_add_u32 s%d, s%d, %d' % (sA, sA, L.FXC))
a('s_cmp_eq_u32 s%d, 0' % sW)
a('s_cselect_b32 s%d, s%d, 0x%x' % (sA, sA, INV))
a('v_mov_b32 v3, s%d' % sA)
a('v_cmp_eq_u32 vcc, 3, v0')
a('v_cndmask_b32 v2, v2, v3, vcc')
a('v_or_b32 v3, s%d, v%d' % (sXCC, V_T))
a('v_cndmask_b32 v3, v%d, v3, vcc' % V_T)
stamp2()
a.wait_vm(crit_mark)
a('s_mov_b64 exec, 15')
a('buffer_store_dword v3, v2, %s, 0 offen sc1' % srd(S_WS))
a('s_mov_b64 exec, -1')
stamp()

skew_store(1)
a('s_waitcnt vmcnt(1)')
a('v_lshl_add_u32 v20, v18, 7, v19')
a('v_add_u32 v20, s%d, v20' % sSTG)
for slot in range(2):
    for t in range(4):
        a('ds_read_b64_tr_b16 %s, v20 offset:%d' % (vr(24 + 16 * slot + 4 * t, 2), 2048 + 4096 * slot + 32 * t))
        a('ds_read_b64_tr_b16 %s, v20 offset:%d' % (vr(26 + 16 * slot + 4 * t, 2), 2048 + 4096 * slot + 32 * t + 2048))
a('v_or_b32 v6, s%d, v1' % bINV)
a('v_or_b32 v8, s%d, v1' % bINV2)
a('s_waitcnt lgkmcnt(8)')
for t in range(4):
    a('buffer_store_dwordx4 %s, v6, %s, s%d offen sc1' % (vr(24 + 4 * t), srd(S_WS), bDST))
    if t < 3:
        a('s_add_u32 s%d, s%d, s%d' % (bDST, bDST, bSTR))
a('s_waitcnt lgkmcnt(0)')
for t in range(4):
    a('buffer_store_dwordx4 %s, v8, %s, s%d offen sc1' % (vr(40 + 4 * t), srd(S_WS), bDST2))
    if t < 3:
        a('s_add_u32 s%d, s%d, s%d' % (bDST2, bDST2, bSTR))
a('s_lshl_b32 s%d, s%d, 4' % (sA, sS))
a('s_add_u32 s%d, s%d, s%d' % (sA, sA, sC))
a('s_lshl_b32 s%d, s%d, 2' % (sA, sA))
a('s_add_u32 s%d, s%d, %d' % (sA, sA, L.FW1))
a('v_lshlrev_b32 v22, 10, v0')
a('v_add_u32 v22, s%d, v22' % sA)
a('v_cmp_eq_u32 vcc, 1, v0')
a('v_mov_b32 v23, s%d' % bINV2)
a('v_cndmask_b32 v23, 0, v23, vcc')
a('v_or_b32 v22, v22, v23')
a('s_cmp_eq_u32 s%d, 3' % sW)
a('s_cselect_b32 s%d, 0, 0x%x' % (sA, INV))
a('v_or_b32 v22, s%d, v22' % sA)

skew_store(3)
a('v_and_b32 v2, 1, v%d' % V_TOK)
a('v_lshlrev_b32 v3, 2, v%d' % V_G)
a('v_add_u32 v6, 2, v%d' % V_TOK)
for i in range(4):
    a('v_add_u32 v4, %d, v3' % i)
    a('v_cmp_eq_u32 vcc, %d, v2' % (i & 1))
    a('s_mov_b64 %s, vcc' % sp(sMK))
    a('v_cmp_ge_u32 vcc, v4, v6')
    a('s_and_b64 %s, vcc, %s' % (sp(sM1 + 2 * i), sp(sMK)))
    a('v_cmp_le_u32 vcc, v4, v%d' % V_TOK)
    a('s_and_b64 %s, vcc, %s' % (sp(sM2 + 2 * i), sp(sMK)))
a('s_lshl_b32 s%d, s%d, 3' % (sA, sS))
a('s_lshl_b32 s%d, s%d, 1' % (sB, sW))
a('s_add_u32 s%d, s%d, s%d' % (sGT, sA, sB))
a('s_cmp_eq_u32 s%d, 0' % sGT)
for i in range(4):
    a('s_cselect_b64 %s, 0, %s' % (sp(sM0 + 2 * i), sp(sM1 + 2 * i)))
a('s_mov_b32 s%d, 0' % sPAIR)

def a_flag_addr(dst):
    pair_base(sA, L.FX)
    a('s_lshl_b32 s%d, s%d, 7' % (sB, sGT))
    a('s_add_u32 s%d, s%d, s%d' % (sA, sA, sB))
    a('s_sub_u32 s%d, s%d, 128' % (sA, sA))
    a('v_and_b32 v%d, 48, v0' % dst)
    a('v_add_u32 v%d, v%d, v0' % (dst, dst))
    a('v_lshl_add_u32 v%d, v%d, 2, s%d' % (dst, dst, sA))
    a('s_mov_b32 s%d, 0x3fff3fff' % sMK)
    a('s_mov_b32 s%d, 0x3fff' % (sMK + 1))
    a('s_cmp_eq_u32 s%d, 0' % sGT)
    a('s_cselect_b32 s%d, 0x3fff0000, s%d' % (sMK, sMK))


a('s_lshl_b32 s%d, s%d, 8' % (sA, sC))
a('s_add_u32 s%d, s%d, %d' % (sA, sA, L.FQ))
a('v_lshl_add_u32 v2, v0, 2, s%d' % sA)
a_flag_addr(3)
a('s_lshl_b32 s%d, s%d, 6' % (sA, sS))
a('s_add_u32 s%d, s%d, %d' % (sA, sA, L.FXC - 48 * 4))
a('v_lshl_add_u32 v4, v0, 2, s%d' % sA)
a('v_cmp_lt_u32 vcc, 47, v0')
a('v_cndmask_b32 v3, v3, v4, vcc')
a('v_mov_b32 v5, -1')
a('v_mov_b32 v6, -16')
a('v_cndmask_b32 v5, v5, v6, vcc')
a('s_or_b32 s%d, s%d, 0xffff0000' % (sMK + 1, sMK + 1))
a('s_mov_b32 s%d, 0' % sSPIN)
a.label('L_poll0')
a('buffer_load_dword v7, v2, %s, 0 offen sc1' % srd(S_WS))
a('s_mov_b64 exec, %s' % sp(sMK))
a('buffer_load_dword v8, v3, %s, 0 offen sc1' % srd(S_WS))
a('s_waitcnt vmcnt(0)')
a('v_and_b32 v9, v5, v8')
a('v_cmp_ne_u32 vcc, s%d, v9' % sT)
a('s_mov_b64 exec, -1')
a('s_mov_b64 %s, vcc' % sp(sTS))
a('v_cmp_ne_u32 vcc, s%d, v7' % sT)
a('s_or_b64 vcc, vcc, %s' % sp(sTS))
a('s_cbranch_vccz L_poll0_done')
a('s_add_u32 s%d, s%d, 1' % (sSPIN, sSPIN))
a('s_cmp_lt_u32 s%d, %d' % (sSPIN, SPIN_LIMIT))
a('s_cbranch_scc1 L_poll0')
a('s_add_u32 s%d, s%d, 1' % (sERR, sERR))
a.label('L_poll0_done')
a('s_mov_b64 exec, 3')
a('buffer_store_dword v%d, v22, %s, 0 offen sc1' % (V_T, srd(S_WS)))
a('s_mov_b64 exec, -1')
skew_store(2)
a('v_and_b32 v9, 15, v8')
a('v_cmp_ne_u32 vcc, s%d, v9' % sXCC)
a('s_and_b32 s%d, vcc_hi, 0xffff0000' % sA)
a('s_cmp_eq_u32 s%d, 0' % sA)
a('s_cselect_b32 s%d, 1, 0' % sFAST)
stamp()
AQ, AK, AV, HACC = 2, 18, 34, 50
WBUF = [66, 90]
XR = 114
CSACC = 186
STR = 210
SM, SR = 234, 237
NR, LOOK = 6, 4
A_ONES = 240


def a_xload(u):
    slot = u % NR
    return ['buffer_load_dwordx4 %s, v1, %s, s%d offen offset:%d sc1' %
            (vr(XR + (slot * 2 + t) * 4), srd(S_WS), sO + 4 * (t + 1) + (u >> 2), 1024 * (u & 3)) for t in range(2)]


def a_offsets():
    pair_base(sA, L.XA)
    a('s_mul_i32 s%d, s%d, 14336' % (sB, sGT))
    a('s_add_u32 s%d, s%d, s%d' % (sO + 4, sA, sB))
    a('s_add_u32 s%d, s%d, 14336' % (sO + 8, sO + 4))
    for t in range(1, 3):
        for q in range(1, 4):
            a('s_add_u32 s%d, s%d, %d' % (sO + 4 * t + q, sO + 4 * t, 4096 * q))
    a('s_lshl_b32 s%d, s%d, 3' % (sB, sS))
    a('s_max_u32 s%d, s%d, 1' % (sB, sB))
    a('s_sub_u32 s%d, s%d, 1' % (sB, sB))
    a('s_mul_i32 s%d, s%d, 14336' % (sB, sB))
    a('s_add_u32 s%d, s%d, s%d' % (sO + 0, sA, sB))
    a('s_lshl_b32 s%d, s%d, 12' % (sB, sW))
    a('s_add_u32 s%d, s%d, s%d' % (sO + 0, sO + 0, sB))
    a('s_add_u32 s%d, s%d, %d' % (sO + 1, sB, L.L_R2))


def a_setup():
    if FASTMODE == 'flags':
        a('s_mov_b32 s%d, 0' % sFD)
        a('s_mov_b32 s%d, 0' % sFH)
    elif FASTMODE == 'p0':
        a('s_xor_b32 s%d, s%d, 1' % (sFD, sPAIR))
        a('s_and_b32 s%d, s%d, s%d' % (sFD, sFD, sFAST))
        a('s_mov_b32 s%d, s%d' % (sFH, sFD))
    elif FASTMODE == 'small':
        a('s_mov_b32 s%d, s%d' % (sFD, sFAST))
        a('s_mov_b32 s%d, 0' % sFH)
    elif FASTMODE == 'smallp0':
        a('s_mov_b32 s%d, s%d' % (sFD, sFAST))
        a('s_xor_b32 s%d, s%d, 1' % (sFH, sPAIR))
        a('s_and_b32 s%d, s%d, s%d' % (sFH, sFH, sFAST))
    else:
        a('s_mov_b32 s%d, s%d' % (sFD, sFAST))
        a('s_mov_b32 s%d, s%d' % (sFH, sFAST))
    pair_base(sA, L.SA)
    a('s_mul_i32 s%d, s%d, 1792' % (sB, sGT))
    a('s_add_u32 s%d, s%d, s%d' % (sO + 13, sA, sB))
    a('s_add_u32 s%d, s%d, 1792' % (sO + 14, sO + 13))
    a('s_sub_u32 s%d, s%d, 1792' % (sO + 12, sO + 13))
    a('s_cmp_eq_u32 s%d, 0' % sGT)
    a('s_cselect_b32 s%d, s%d, s%d' % (sO + 12, sO + 13, sO + 12))
    a('v_and_b32 v%d, 15, v0' % V_TOK)
    a('v_lshrrev_b32 v%d, 4, v0' % V_G)
    a('v_lshlrev_b32 v240, 3, v%d' % V_TOK)
    a('v_lshl_add_u32 v240, v%d, 7, v240' % V_G)
    a('v_mov_b32 v242, 0x%x' % INV)
    a('v_cmp_lt_u32 vcc, 1, v%d' % V_G)
    a('v_cndmask_b32 v241, 0, v242, vcc')
    a('v_or_b32 v241, v241, v240')
    a('v_add_u32 v243, %d, v1' % (56 * 1024))
    a('v_lshlrev_b32 v244, 4, v%d' % V_G)
    a('v_add_u32 v244, %d, v244' % L.L_CSA)
    a('v_lshlrev_b32 v245, 2, v%d' % V_TOK)
    a('v_add_u32 v245, %d, v245' % L.L_CSA)
    a('s_lshl_b32 s%d, s%d, 7' % (sA, sJ))
    a('s_add_u32 s%d, s%d, %d' % (sA, sA, L.FP))
    a('v_lshl_add_u32 v248, v0, 2, s%d' % sA)
    a('s_lshr_b32 s%d, s%d, 1' % (sB, sW))
    a('s_lshl_b32 s%d, s%d, 2' % (sCc, sG))
    a('s_add_u32 s%d, s%d, s%d' % (sB, sB, sCc))
    a('s_lshl_b32 s%d, s%d, 5' % (sB, sB))
    a('s_and_b32 s%d, s%d, 1' % (sA, sW))
    a('s_add_u32 s%d, s%d, s%d' % (sB, sB, sA))
    a('s_min_u32 s%d, s%d, 6' % (sA, sJ))
    a('s_lshl_b32 s%d, s%d, 1' % (sA, sA))
    a('s_add_u32 s%d, s%d, s%d' % (sB, sB, sA))
    a('s_lshl_b32 s%d, s%d, 2' % (sB, sB))
    a('s_add_u32 s%d, s%d, %d' % (sB, sB, L.FX[0] - 32 * 256))
    a('v_lshl_add_u32 v249, v0, 8, s%d' % sB)
    a('v_cmp_lt_u32 vcc, 31, v0')
    a('v_cndmask_b32 v248, v248, v249, vcc')
    a('s_lshr_b32 s%d, s%d, 3' % (sA, sC))
    a('s_mul_i32 s%d, s%d, 7' % (sA, sA))
    a('s_min_u32 s%d, s%d, 6' % (sB, sJ))
    a('s_add_u32 s%d, s%d, s%d' % (sA, sA, sB))
    a('s_mul_i32 s%d, s%d, 112' % (sA, sA))
    a('s_add_u32 s%d, s%d, %d' % (sA, sA, L.FW1 - 34 * 4))
    a('v_lshl_add_u32 v249, v0, 2, s%d' % sA)
    a('v_cmp_lt_u32 vcc, 33, v0')
    a('v_cndmask_b32 v248, v248, v249, vcc')
    a('s_lshl_b32 s%d, s%d, 7' % (sA, sS))
    a('s_add_u32 s%d, s%d, %d' % (sA, sA, L.FH))
    a('v_and_b32 v247, 15, v0')
    a('v_lshl_add_u32 v247, v247, 2, s%d' % sA)
    a('s_lshl_b32 s%d, s%d, 7' % (sB, sGT))
    a('s_add_u32 s%d, s%d, %d' % (sB, sB, L.FX[1] - 128))
    a('v_lshl_add_u32 v253, v0, 2, s%d' % sB)
    a('s_cmp_eq_u32 s%d, 0' % sW)
    a('s_cselect_b32 s%d, 0, 16' % sA)
    a('v_cmp_gt_u32 vcc, s%d, v0' % sA)
    a('v_cndmask_b32 v247, v247, v253, vcc')
    a('s_mov_b32 s%d, 0x3fff3fff' % sMK2)
    a('s_mov_b32 s%d, 0' % (sMK2 + 1))
    a('s_cmp_eq_u32 s%d, 0' % sS)
    a('s_cselect_b32 s%d, 0x3fff, s%d' % (sMK2, sMK2))
    a('v_and_b32 v253, 15, v0')
    a('v_lshlrev_b32 v253, 2, v253')
    a('v_add_u32 v253, %d, v253' % L.FX[1])
    a('s_cmp_eq_u32 s%d, 0' % sGT)
    a('s_cselect_b64 vcc, -1, 0')
    a('v_cndmask_b32 v247, v247, v253, vcc')


stat_loads = ['buffer_load_dwordx2 %s, v%d, %s, s%d offen offset:%d sc1' %
              (vr(STR + (t * 4 + i) * 2, 2), 241 if i == 3 else 240, srd(S_WS), sO + 12 + t, 512 * i)
              for t in range(3) for i in range(4)]


def a_wread(u):
    b = WBUF[u & 1]
    o = []
    for p in range(6):
        if p < 4:
            o.append('ds_read_b128 %s, v1 offset:%d' % (vr(b + 4 * p), L.L_WA + (p * 14 + u) * 1024))
        else:
            o.append('ds_read_b128 %s, v243 offset:%d' % (vr(b + 4 * p), L.L_WA + ((p - 4) * 14 + u) * 1024))
    return o


stat_fill = []
for t in range(3):
    r = STR + 8 * t
    for c_ in range(2):
        stat_fill += ['v_add_f32 v%d, v%d, v%d' % (r + c_, r + c_, r + 2 + c_),
                      'v_add_f32 v%d, v%d, v%d' % (r + 4 + c_, r + 4 + c_, r + 6 + c_),
                      'v_add_f32 v%d, v%d, v%d' % (r + c_, r + c_, r + 4 + c_)]
    stat_fill += xg_reduce(r, r + 2) + xg_reduce(r + 1, r + 3)
    stat_fill += stats_finish(r, r + 1, r + 2, False)
    stat_fill += ['v_mov_b32 v%d, v%d' % (SM + t, r), 'v_mov_b32 v%d, v%d' % (SR + t, r + 1)]

sWA = [20, 21, 22]
sWAG = 23


def wa_dma(pr, i):
    def f():
        a('s_add_u32 m0, s%d, %d' % (sWA[i], L.L_WA + 2048 * pr))
        a('s_add_u32 s%d, s%d, s%d' % (sD, sWA[i], sWAG))
        if pr:
            a('s_add_u32 s%d, s%d, %d' % (sD, sD, 2048 * pr))
        a('buffer_load_dwordx4 v1, %s, s%d offen sc1 lds' % (srd(S_WS), sD))
    return f


amark = {}


def emit_a_loop(first, xmark, wam):
    ep_mark = es_mark = st_mark = None
    for t in a_wread(0):
        a(t)
    for u in range(14):
        need = xmark[u]
        if u == 11:
            need = max(need, st_mark)
        a.wait_vm(need)
        if not first and u == 6:
            early_check(246, 247, es_mark)
            a('s_nop 0')
        if u == 11:
            a('s_mov_b32 s%d, -1' % sMK2)
            a('s_mov_b32 s%d, 0x3fffffff' % (sMK2 + 1))
        a('s_waitcnt lgkmcnt(0)')
        wb = WBUF[u & 1]
        xs = XR + (u % NR) * 8
        mf = []
        cz = (lambda r: '0') if u == 0 else (lambda r: vr(r))
        for t in range(2):
            for hf in range(2):
                r = AQ + (t * 2 + hf) * 4
                mf.append('%s %s, %s, %s, %s' % (MFMA, vr(r), vr(wb + 4 * hf), vr(xs + 4 * t), cz(r)))
        for t in range(2):
            for hf in range(2):
                r = AK + (t * 2 + hf) * 4
                mf.append('%s %s, %s, %s, %s' % (MFMA, vr(r), vr(wb + 8 + 4 * hf), vr(xs + 4 * t), cz(r)))
        for t in range(2):
            for hf in range(2):
                r = AV + (t * 2 + hf) * 4
                mf.append('%s %s, %s, %s, %s' % (MFMA, vr(r), vr(xs + 4 * t), vr(wb + 16 + 4 * hf), cz(r)))
        if first:
            mf.append('%s %s, %s, %s, %s' % (MFMA, vr(CSACC + 8), vr(CSACC), ar(A_ONES), cz(CSACC + 8)))
            mf.append('%s %s, %s, %s, %s' % (MFMA, vr(CSACC + 12), ar(A_ONES), vr(CSACC + 4), cz(CSACC + 12)))
        mem = {}

        def put(k, x):
            mem.setdefault(k, []).append(x)
        nm = len(mf)
        off = 0
        if first:
            a('ds_read_b128 %s, v252 offset:%d' % (vr(CSACC), 1024 * u))
            a('ds_read_b128 %s, v242 offset:%d' % (vr(CSACC + 4), 1024 * u))
            put(11, 's_waitcnt lgkmcnt(%d)' % (6 if u < 13 else 0))
        if first and u % 2 == 1 and u < 13:
            put(2, ('bar', (u + 1) // 2))
            off = 3
        if u < 13:
            for k, x in enumerate(a_wread(u + 1)):
                put(off + k, x)
        elif not first:
            for p in range(4):
                put(p, 'ds_read_b128 %s, v244 offset:%d' % (vr(WBUF[0] + 4 * p), 64 * p))
            for d in range(2):
                put(4 + d, 'ds_read_b32 v%d, v245 offset:%d' % (WBUF[0] + 16 + d, 64 * (4 + d)))
        if first and u < 2:
            for j_, uu in enumerate((2 * u + 2, 2 * u + 3)):
                for k, x in zip((6, 8), a_xload(uu)):
                    put(k + 4 * j_, x)
                put(8 + 4 * j_, ('xm', uu))
            if u == 0:
                for i, k in enumerate((7, 9, 11)):
                    put(k, ('wa', 2, i))
        elif u + LOOK < 14:
            for k, x in zip((6, 9), a_xload(u + LOOK)):
                put(k, x)
            put(9, ('xm', u + LOOK))
        if first and u % 2 == 0 and u // 2 + 3 <= 6:
            for i, k in enumerate((12, 13, 13) if u == 0 else (7, 10, 12)):
                put(k, ('wa', u // 2 + 3, i))
        order = list(range(4, 12)) + list(range(0, 4))
        if 2 <= u < 6:
            for k, x in zip((8, 11), order[2 * (u - 2):2 * (u - 2) + 2]):
                put(k, stat_loads[x])
        if not first and u == 3:
            put(7, ('estat',))
        if u in (7, 8):
            for k, x in zip((8, 11), order[8 + 2 * (u - 7):8 + 2 * (u - 7) + 2]):
                put(k, stat_loads[x])
            if u == 8:
                put(11, ('st',))
        if u == 6:
            put(10, 's_mov_b32 m0, s%d' % (sO + 1))
            for i, k in enumerate((10, 10, 11, 11)):
                put(k, 'buffer_load_dwordx4 v1, %s, s%d offen offset:%d sc1 lds' % (srd(S_WS), sO + 0, 1024 * i))
            put(11, ('hm',))
        if u == 13:
            put(8, ('early',))
        fill = stat_fill[(u - 11) * 22:(u - 10) * 22] if u >= 11 else []
        fi = 0
        for k, m in enumerate(mf):
            a(m)
            for it in mem.get(k, []):
                if isinstance(it, str):
                    a(it)
                elif it[0] == 'early':
                    ep_mark = early_issue(249, 248)
                elif it[0] == 'estat':
                    es_mark = early_issue(246, 247)
                elif it[0] == 'xm':
                    xmark[it[1]] = a.vm_mark()
                elif it[0] == 'st':
                    st_mark = a.vm_mark()
                elif it[0] == 'hm':
                    amark['halo'] = a.vm_mark()
                elif it[0] == 'bar':
                    a.wait_vm(wam[it[1]])
                    a('s_barrier')
                elif it[0] == 'wa':
                    wa_dma(it[1], it[2])()
                    wam[it[1]] = a.vm_mark()
            for _ in range(2):
                if fi < len(fill) and k >= 1:
                    a(fill[fi])
                    fi += 1
        assert fi == len(fill), (u, fi, len(fill))
    amark['ep'] = ep_mark


for p in range(4):
    a('v_mov_b32 v4, 0x3f803f80')
    a('v_accvgpr_write_b32 a%d, v4' % (A_ONES + p))
a('s_mul_i32 s%d, s%d, 14336' % (sWA[0], sW))
a('s_add_u32 s%d, s%d, 4' % (sA, sW))
a('s_mul_i32 s%d, s%d, 14336' % (sA, sA))
a('s_sub_u32 s%d, s%d, 2' % (sB, sW))
a('s_mul_i32 s%d, s%d, 14336' % (sB, sB))
a('s_add_u32 s%d, s%d, 1024' % (sB, sB))
a('s_cmp_lt_u32 s%d, 2' % sW)
a('s_cselect_b32 s%d, s%d, s%d' % (sWA[1], sA, sB))
a('s_add_u32 s%d, s%d, 2' % (sA, sW))
a('s_mul_i32 s%d, s%d, 14336' % (sA, sA))
a('s_add_u32 s%d, s%d, 1024' % (sWA[2], sA))
a('s_mul_i32 s%d, s%d, %d' % (sWAG, sC, 84 * 1024))
a('s_add_u32 s%d, s%d, %d' % (sWAG, sWAG, L.WA))
a_offsets()
xm0, wam0 = {}, {}


def wa_pair(pr):
    for i in range(3):
        wa_dma(pr, i)()
    wam0[pr] = a.vm_mark()


wa_pair(0)
for u in range(2):
    for t in a_xload(u):
        a(t)
    xm0[u] = a.vm_mark()
wa_pair(1)
a_setup()
a('s_mul_i32 s%d, s%d, 14336' % (sA, sW))
a('v_add_u32 v252, s%d, v1' % sA)
a('s_and_b32 s%d, s%d, 1' % (sA, sW))
a('s_mul_i32 s%d, s%d, 14336' % (sA, sA))
a('v_add_u32 v242, s%d, v243' % sA)
a.wait_vm(wam0[0])
a('s_barrier')
a('s_lshl_b32 s%d, s%d, 5' % (sA, sJ))
a('s_add_u32 s%d, s%d, s%d' % (sA, sA, sG))
a('s_lshl_b32 s%d, s%d, 2' % (sA, sA))
a('s_add_u32 s%d, s%d, %d' % (sA, sA, L.FP))
a('s_cmp_eq_u32 s%d, 0' % sW)
a('s_cselect_b32 s%d, s%d, 0x%x' % (sA, sA, INV))
a('v_mov_b32 v2, s%d' % sA)
a('s_mov_b64 exec, 1')
a('buffer_store_dword v%d, v2, %s, 0 offen sc1' % (V_T, srd(S_WS)))
a.vm_issued -= 1
a('s_mov_b64 exec, -1')
stamp()
emit_a_loop(True, xm0, wam0)
n_join = a.vm_issued - amark['ep']
CSQ = WBUF[0]
a('v_cmp_eq_u32 vcc, 0, v%d' % V_TOK)
a('s_lshl_b32 s%d, s%d, 6' % (sA, sW))
a('v_add_u32 v252, s%d, v244' % sA)
a('s_and_b32 s%d, s%d, 1' % (sA, sW))
a('s_lshl_b32 s%d, s%d, 6' % (sA, sA))
a('v_add_u32 v242, s%d, v245' % sA)
a('s_mov_b64 exec, vcc')
a('ds_write_b128 v252, %s' % vr(CSACC + 8))
a('s_mov_b64 exec, 0xffff')
a('ds_write_b32 v242, v%d offset:256' % (CSACC + 12))
a('s_mov_b64 exec, -1')
a('s_waitcnt lgkmcnt(0)')
a('s_barrier')
for p in range(4):
    a('ds_read_b128 %s, v244 offset:%d' % (vr(WBUF[0] + 4 * p), 64 * p))
for d in range(2):
    a('ds_read_b32 v%d, v245 offset:%d' % (WBUF[0] + 16 + d, 64 * (4 + d)))
a('s_branch L_a_epi')

a.label('L_pair')
a_flag_addr(2)
a('s_mov_b32 s%d, 0x3fff0000' % sMK)
ASLEEP = int(([x[9:] for x in sys.argv if x.startswith('--asleep=')] + ['0'])[0])
poll(2, None, ASLEEP)
stamp()
a_offsets()
xmark = {}
for u in range(LOOK):
    for t in a_xload(u):
        a(t)
    xmark[u] = a.vm_mark()
a_setup()
emit_a_loop(False, xmark, None)
assert a.vm_issued - amark['ep'] == n_join
ep_mark = amark['ep']
a.label('L_a_epi')
stamp()
a('s_add_u32 s%d, s%d, 2' % (sA, sW))
a('s_mul_i32 s%d, s%d, 14336' % (sA, sA))
a('v_add_u32 v246, s%d, v1' % sA)
a('v_add_u32 v247, %d, v1' % L.L_R2)
a('s_cmp_lt_u32 s%d, 2' % sW)
a('s_cselect_b64 vcc, -1, 0')
a('v_cndmask_b32 v252, v247, v246, vcc')
a('v_cndmask_b32 v253, v246, v247, vcc')
a.wait_vm(amark['halo'])
a('s_barrier')
HOP = 90
def h_reads(u):
    r = HOP + 8 * (u % 3)
    return ['ds_read_b128 %s, v252 offset:%d' % (vr(r), 1024 * u), 'ds_read_b128 %s, v253 offset:%d' % (vr(r + 4), 1024 * u)]
for u in range(2):
    for x in h_reads(u):
        a(x)
rest = stat_fill[66:]
for u in range(14):
    if u + 2 < 14:
        for x in h_reads(u + 2):
            a(x)
    a('s_waitcnt lgkmcnt(%d)' % (4 if u < 12 else (2 if u == 12 else 0)))
    r = HOP + 8 * (u % 3)
    a('%s %s, %s, %s, %s' % (MFMA, vr(HACC), vr(r), vr(r + 4), '0' if u == 0 else vr(HACC)))
    if rest:
        a(rest.pop(0))
for x in rest:
    a(x)
stamp2()
early_check(249, 248, ep_mark)
BW = 2
a('s_lshl_b32 s%d, s%d, 6' % (sA, sJ))
a('s_lshl_b32 s%d, s%d, 2' % (sB, sW))
a('s_add_u32 s%d, s%d, s%d' % (sA, sA, sB))
a('s_lshl_b32 s%d, s%d, 10' % (sA, sA))
a('s_add_u32 s20, s%d, %d' % (sA, L.WB))
for t in range(1, 4):
    a('s_add_u32 s%d, s20, %d' % (20 + t, 16 * 1024 * t))
wb_all = ['buffer_load_dwordx4 %s, v1, %s, s%d offen offset:%d sc1' % (vr(BW + (i * 4 + t) * 4), srd(S_WS), 20 + t, 1024 * i)
          for i in range(4) for t in range(4)]
for x in wb_all[13:16]:
    a(x)
wb_loads = wb_all[8:13]
A_RES, A_B2 = 224, 232


def red_addrs():
    a('s_lshl_b32 s%d, s%d, 13' % (sA, sW))
    a('s_add_u32 s%d, s%d, %d' % (sA, sA, L.L_R2))
    a('v_add_u32 v248, s%d, v1' % sA)
    a('s_and_b32 s%d, s%d, 1' % (sA, sW))
    a('s_lshl_b32 s%d, s%d, 11' % (sA, sA))
    a('s_lshr_b32 s%d, s%d, 1' % (sB, sW))
    a('s_lshl_b32 s%d, s%d, 12' % (sB, sB))
    a('s_add_u32 s%d, s%d, s%d' % (sA, sA, sB))
    a('s_add_u32 s%d, s%d, %d' % (sA, sA, L.L_R2))
    a('v_add_u32 v249, s%d, v1' % sA)


def publish_setup(xbase, sbase, fbase, per_pair, fsh):
    owner_index()
    a('s_mul_i32 s%d, s%d, 14' % (sCc, sB))
    a('s_add_u32 s%d, s%d, s%d' % (sCc, sCc, sA))
    a('s_lshl_b32 s%d, s%d, 10' % (sPX, sCc))
    a('s_lshl_b32 s%d, s%d, 7' % (sPS, sCc))
    a('s_lshl_b32 s%d, s%d, %d' % (sPF, sB, fsh))
    a('s_add_u32 s%d, s%d, s%d' % (sPF, sPF, sA))
    a('s_lshl_b32 s%d, s%d, 2' % (sPF, sPF))
    for dst, arr in ((sPX, xbase), (sPS, sbase), (sPF, fbase)):
        if per_pair:
            pair_base(sD, arr)
            a('s_add_u32 s%d, s%d, s%d' % (dst, dst, sD))
        else:
            a('s_add_u32 s%d, s%d, %d' % (dst, dst, arr))
    a('s_add_u32 s%d, s%d, %d' % (sPX2, sPX, 2 * 14336))


def owner_index():
    a('s_lshr_b32 s%d, s%d, 1' % (sB, sW))
    a('s_lshl_b32 s%d, s%d, 2' % (sCc, sG))
    a('s_add_u32 s%d, s%d, s%d' % (sB, sB, sCc))
    a('s_and_b32 s%d, s%d, 1' % (sA, sW))
    a('s_lshl_b32 s%d, s%d, 1' % (sCc, sJ))
    a('s_add_u32 s%d, s%d, s%d' % (sA, sA, sCc))


a('s_cmp_eq_u32 s%d, 0' % sPAIR)
a('s_cbranch_scc0 L_a_nores')
owner_index()
a('s_mul_i32 s%d, s%d, 14' % (sB, sB))
a('s_add_u32 s%d, s%d, s%d' % (sB, sB, sA))
a('s_lshl_b32 s%d, s%d, 10' % (sB, sB))
a('s_add_u32 s%d, s%d, %d' % (sB, sB, L.XA[0]))
a('buffer_load_dwordx4 %s, v1, %s, s%d offen sc1' % (ar(A_RES), srd(S_WS), sB))
a('s_add_u32 s%d, s%d, %d' % (sB, sB, 2 * 14336))
a('buffer_load_dwordx4 %s, v1, %s, s%d offen sc1' % (ar(A_RES + 4), srd(S_WS), sB))
build_srd(S_TMP, P_B2, 896)
a('s_lshl_b32 s%d, s%d, 6' % (sB, sA))
a('v_lshlrev_b32 v240, 3, v%d' % V_G)
a('buffer_load_dwordx2 v[228:229], v240, %s, s%d offen' % (srd(S_TMP), sB))
a('buffer_load_dwordx2 v[230:231], v240, %s, s%d offen offset:32' % (srd(S_TMP), sB))
a.label('L_a_nores')
CSQ = WBUF[0]
a('s_mul_i32 s%d, s%d, 384' % (sA, sW))
a('s_add_u32 s%d, s%d, %d' % (sA, sA, L.L_STA))
a('v_lshl_add_u32 v246, v%d, 2, s%d' % (V_TOK, sA))
a('v_lshl_add_u32 v247, v%d, 4, s%d' % (V_G, sA))
a('s_mov_b64 exec, 0xffff')
for t in range(3):
    a('ds_write_b32 v246, v%d offset:%d' % (SM + t, 128 * t))
    a('ds_write_b32 v246, v%d offset:%d' % (SR + t, 128 * t + 64))
a('s_mov_b64 exec, -1')
MROW, RROW = 114, 126
a('s_waitcnt lgkmcnt(0)')
for t in range(3):
    a('ds_read_b128 %s, v247 offset:%d' % (vr(MROW + 4 * t), 128 * t))
    a('ds_read_b128 %s, v247 offset:%d' % (vr(RROW + 4 * t), 128 * t + 64))
QF, KF, VF = 140, 148, 160


def pk(op, dst, srcs, neg=None):
    ops, lo, hi = [], [], []
    for x in srcs:
        if isinstance(x, tuple):
            ops.append(vr(x[1] & ~1, 2))
            lo.append(x[1] & 1)
            hi.append(x[1] & 1)
        else:
            ops.append(vr(x, 2))
            lo.append(0)
            hi.append(1)
    t = '%s %s, %s op_sel:[%s] op_sel_hi:[%s]' % (op, vr(dst, 2), ', '.join(ops), ','.join(map(str, lo)), ','.join(map(str, hi)))
    if neg is not None:
        m = ','.join('1' if k == neg else '0' for k in range(len(srcs)))
        t += ' neg_lo:[%s] neg_hi:[%s]' % (m, m)
    return t


for t in range(2):
    for hf in range(2):
        r = AQ + (t * 2 + hf) * 4
        for i in (0, 2):
            a(pk('v_pk_fma_f32', r + i, [('b', SM + t + 1), CSQ + 4 * hf + i, r + i], 0))
        for p in range(2):
            a('v_cvt_pk_bf16_f32 v%d, v%d, v%d' % (QF + 4 * t + 2 * hf + p, r + 2 * p, r + 2 * p + 1))
        a(wb_all[2 * t + hf])
for t in range(2):
    for hf in range(2):
        r = AK + (t * 2 + hf) * 4
        for i in (0, 2):
            a(pk('v_pk_fma_f32', r + i, [('b', SM + t + 1), CSQ + 8 + 4 * hf + i, r + i], 0))
        for p in range(2):
            a('v_cvt_pk_bf16_f32 v%d, v%d, v%d' % (KF + 4 * (t + 1) + 2 * hf + p, r + 2 * p, r + 2 * p + 1))
        a(wb_all[4 + 2 * t + hf])
L_E, L_HX = L.L_R2 + 16384, L.L_R2 + 26624
a('s_lshl_b32 s%d, s%d, 11' % (sA, sW))
a('s_add_u32 s%d, s%d, %d' % (sA, sA, L_E))
a('v_add_u32 v246, s%d, v1' % sA)
a('s_lshl_b32 s%d, s%d, 10' % (sA, sW))
a('s_add_u32 s%d, s%d, %d' % (sA, sA, L_HX))
a('v_add_u32 v247, s%d, v1' % sA)
a('s_waitcnt lgkmcnt(0)')
for t in range(2):
    for d in range(2):
        r = AV + (t * 2 + d) * 4
        for i in (0, 2):
            a(pk('v_pk_fma_f32', r + i, [MROW + 4 * (t + 1) + i, ('b', CSQ + 16 + d), r + i], 0))
        for p in range(2):
            a('v_cvt_pk_bf16_f32 v%d, v%d, v%d' % (VF + 6 * d + 2 * (t + 1) + p, r + 2 * p, r + 2 * p + 1))
a('ds_write_b128 v246, %s offset:2048' % vr(KF + 8))
a('ds_write_b64 v246, %s offset:3072' % vr(VF + 4, 2))
a('ds_write_b64 v246, %s offset:3080' % vr(VF + 10, 2))
a('ds_write_b128 v247, %s' % vr(HACC))
pair_base(sA, L.O)
a('s_lshl_b32 s%d, s%d, 4' % (sB, sGT))
a('s_add_u32 s%d, s%d, s%d' % (sB, sB, sC))
a('s_lshl_b32 s%d, s%d, 10' % (sB, sB))
a('s_add_u32 s32, s%d, s%d' % (sA, sB))
a('s_add_u32 s33, s32, 16384')
stamp2()
a('s_waitcnt lgkmcnt(0)')
a('s_barrier')
stamp2()
SS = 172
a('s_cmp_eq_u32 s%d, 0' % sW)
a('s_cbranch_scc1 L_a_halo')
a('ds_read_b128 %s, v246' % vr(KF))
a('ds_read_b64 %s, v246 offset:1024' % vr(VF, 2))
a('ds_read_b64 %s, v246 offset:1032' % vr(VF + 6, 2))
a('s_waitcnt lgkmcnt(0)')
a('s_branch L_a_prev')
a.label('L_a_halo')
a('v_add_u32 v247, %d, v1' % L_HX)
for p in range(4):
    a('ds_read_b128 %s, v247 offset:%d' % (vr(SS + 4 * p), 1024 * p))
a('s_waitcnt lgkmcnt(0)')
for hf in range(2):
    r = SS + 4 * hf
    for i in (0, 2):
        a(pk('v_pk_fma_f32', r + i, [('b', SM), CSQ + 8 + 4 * hf + i, r + i], 0))
    for p in range(2):
        a('v_cvt_pk_bf16_f32 v%d, v%d, v%d' % (KF + 2 * hf + p, r + 2 * p, r + 2 * p + 1))
for d in range(2):
    r = SS + 8 + 4 * d
    for i in (0, 2):
        a(pk('v_pk_fma_f32', r + i, [MROW + i, ('b', CSQ + 16 + d), r + i], 0))
    for p in range(2):
        a('v_cvt_pk_bf16_f32 v%d, v%d, v%d' % (VF + 6 * d + p, r + 2 * p, r + 2 * p + 1))
a.label('L_a_prev')
a('s_nop 1')
for t in range(2):
    a('%s %s, %s, %s, 0' % (MFMA, vr(SS + 8 * t), vr(KF + 4 * t), vr(QF + 4 * t)))
    a('%s %s, %s, %s, 0' % (MFMA, vr(SS + 8 * t + 4), vr(KF + 4 * t + 4), vr(QF + 4 * t)))
SCALE = (28.0 ** -0.5) * 1.4426950408889634
MX, CC, LS, TMPR = 190, 192, 194, 196
PF = 200
SUMT = [(224, 226), (232, 188)]
a('v_mov_b32 v198, 0xff800000')
seq = [[], []]
for t in range(2):
    s_ = SS + 8 * t
    q = seq[t]
    rr = lambda e: RROW + 4 * (t + (e >> 2)) + (e & 3)
    for e in range(0, 8, 2):
        q.append(pk('v_pk_mul_f32', s_ + e, [s_ + e, rr(e)]))
    for e in range(8):
        mk = (sM0 if t == 0 else sM1) + 2 * e if e < 4 else sM2 + 2 * (e - 4)
        q.append('v_cndmask_b32 v%d, v198, v%d, %s' % (s_ + e, s_ + e, sp(mk)))
    q.append('v_max3_f32 v%d, v%d, v%d, v%d' % (MX + t, s_, s_ + 1, s_ + 2))
    q.append('v_max3_f32 v%d, v%d, v%d, v%d' % (MX + t, MX + t, s_ + 3, s_ + 4))
    q.append('v_max3_f32 v%d, v%d, v%d, v%d' % (MX + t, MX + t, s_ + 5, s_ + 6))
    q.append('v_max_f32 v%d, v%d, v%d' % (MX + t, MX + t, s_ + 7))
    q += xg_reduce(MX + t, TMPR + t, 'v_max_f32')
    q.append('v_mul_f32 v%d, %s, v%d' % (CC + t, f2h(SCALE), SR + t + 1))
    q.append('v_mul_f32 v%d, v%d, v%d' % (MX + t, MX + t, CC + t))
    for e in range(0, 8, 2):
        q.append(pk('v_pk_fma_f32', s_ + e, [s_ + e, ('b', CC + t), ('b', MX + t)], 2))
    for e in range(8):
        q.append('v_exp_f32 v%d, v%d' % (s_ + e, s_ + e))
    u_, u2 = SUMT[t]
    q.append(pk('v_pk_add_f32', u_, [s_, s_ + 2]))
    q.append(pk('v_pk_add_f32', u2, [s_ + 4, s_ + 6]))
    q.append(pk('v_pk_add_f32', u_, [u_, u2]))
    q.append('v_add_f32 v%d, v%d, v%d' % (LS + t, u_, u_ + 1))
    q += xg_reduce(LS + t, TMPR + t)
    q.append('v_rcp_f32 v%d, v%d' % (LS + t, LS + t))
    for e in range(0, 8, 2):
        q.append(pk('v_pk_mul_f32', s_ + e, [s_ + e, rr(e)]))
    for p in range(4):
        q.append('v_cvt_pk_bf16_f32 v%d, v%d, v%d' % (PF + 4 * t + p, s_ + 2 * p, s_ + 2 * p + 1))
merged = [z for xy in zip(*seq) for z in xy]
gap = len(merged) // (len(wb_loads) + 1)
for k, x in enumerate(merged):
    a(x)
    if k % gap == gap - 1 and wb_loads:
        a(wb_loads.pop(0))
assert not wb_loads
stamp2()
OO = 208
for t in range(2):
    for d in range(2):
        a('%s %s, %s, %s, 0' % (MFMA, vr(OO + 8 * t + 4 * d), vr(VF + 6 * d + 2 * t), vr(PF + 4 * t)))
for t in range(2):
    for e in range(0, 8, 2):
        a(pk('v_pk_mul_f32', OO + 8 * t + e, [OO + 8 * t + e, ('b', LS + t)]))
    for p in range(4):
        a('v_cvt_pk_bf16_f32 v%d, v%d, v%d' % (PF + 4 * t + p, OO + 8 * t + 2 * p, OO + 8 * t + 2 * p + 1))
    store('buffer_store_dwordx4 %s, v1, %s, s%d offen' % (vr(PF + 4 * t), srd(S_WS), 32 + t), sFD)
o_mark = a.vm_mark()
stamp2()
pair_base(sA, L.FA)
a('s_lshl_b32 s%d, s%d, 4' % (sB, sGT))
a('s_add_u32 s%d, s%d, s%d' % (sB, sB, sC))
a('s_lshl_b32 s%d, s%d, 2' % (sB, sB))
a('s_add_u32 s%d, s%d, s%d' % (sA, sA, sB))
a('v_lshlrev_b32 v241, 6, v0')
a('v_add_u32 v241, s%d, v241' % sA)
pair_base(sA, L.FA)
a('s_lshl_b32 s%d, s%d, 8' % (sB, sG))
a('s_add_u32 s%d, s%d, s%d' % (sA, sA, sB))
a('v_lshl_add_u32 v240, v0, 2, s%d' % sA)
a('s_lshl_b32 s%d, s%d, 2' % (sB, sW))
a('s_lshl_b32 s%d, 0x000f000f, s%d' % (sMK, sB))
a('s_mov_b32 s%d, s%d' % (sMK + 1, sMK))
red_addrs()
publish_setup(L.XB, L.SB, L.FB, True, 4)
a('s_mov_b32 s%d, s%d' % (sPC, sFD))
a('s_mov_b32 s%d, s%d' % (sPFC, sFAST))
pair_base(sA, L.O)
a('s_lshl_b32 s%d, s%d, 6' % (sB, sG))
a('s_lshl_b32 s%d, s%d, 2' % (sCc, sW))
a('s_add_u32 s%d, s%d, s%d' % (sB, sB, sCc))
a('s_lshl_b32 s%d, s%d, 10' % (sB, sB))
a('s_add_u32 s20, s%d, s%d' % (sA, sB))
for t in range(1, 4):
    a('s_add_u32 s%d, s20, %d' % (20 + t, 16384 * t))
a.wait_vm(o_mark)
a('s_mov_b64 exec, 3')
store('buffer_store_dword v%d, v241, %s, 0 offen' % (V_T, srd(S_WS)), sFAST)
a('s_mov_b64 exec, -1')
stamp()
a('s_cmp_eq_u32 s%d, 7' % sJ)
a('s_cbranch_scc1 L_next_pair')


def wd_bases():
    a('s_lshl_b32 s%d, s%d, 2' % (sA, sJ))
    a('s_mul_i32 s%d, s%d, %d' % (sA, sA, 56 * 1024))
    a('s_mul_i32 s%d, s%d, %d' % (sB, sW, 14 * 1024))
    a('s_add_u32 s%d, s%d, s%d' % (sA, sA, sB))
    a('s_add_u32 s%d, s%d, %d' % (sO, sA, L.WD))
    quarter_offsets(4, 56 * 1024)


def wd_load(fi):
    kk, t = fi >> 2, fi & 3
    return ('buffer_load_dwordx4 %s, v1, %s, s%d offen offset:%d sc1' %
            (ar(4 * fi), srd(S_WS), sO + 4 * t + (kk >> 2), 1024 * (kk & 3)))


WD_CH = [(0, 12), (12, 56)]
BO, BACC, BRD, BTMP = 66, 130, 194, 226
a('s_cmp_eq_u32 s%d, 0' % sPAIR)
a('s_cbranch_scc0 L_b_start')
for k in range(4):
    a('v_lshlrev_b32 v236, 16, v%d' % (228 + k))
    a('v_and_b32 v237, 0xffff0000, v%d' % (228 + k))
    a('v_accvgpr_write_b32 a%d, v236' % (A_B2 + 2 * k))
    a('v_accvgpr_write_b32 a%d, v237' % (A_B2 + 2 * k + 1))
wd_bases()
for fi in range(*WD_CH[0]):
    a(wd_load(fi))
a.label('L_b_start')
CWW = 66
sCI = 41
a('s_lshr_b32 s%d, s%d, 3' % (sA, sC))
a('s_mul_i32 s%d, s%d, 7' % (sA, sA))
a('s_add_u32 s%d, s%d, s%d' % (sCI, sA, sJ))
a('s_lshl_b32 s%d, s%d, 3' % (sA, sCI))
a('s_lshl_b32 s%d, s%d, 1' % (sB, sW))
a('s_add_u32 s%d, s%d, s%d' % (sA, sA, sB))
a('s_mul_i32 s%d, s%d, %d' % (sB, sA, 14 * 1024))
a('s_add_u32 s%d, s%d, %d' % (sO, sB, L.WC))
quarter_offsets(2, 14 * 1024)


def c_wload(idx):
    u, k = idx >> 1, idx & 1
    return ('buffer_load_dwordx4 %s, v1, %s, s%d offen offset:%d sc1' %
            (vr(CWW + 4 * idx), srd(S_WS), sO + 4 * k + (u >> 2), 1024 * (u & 3)))


def red_writes(acc, tile):
    return ['ds_write_b128 v248, %s offset:%d' % (vr(acc + 4 * t), (tile >> 1) * 32768 + (tile & 1) * 4096 + t * 1024)
            for t in range(4)]


def red_reads(st, rd):
    return ['ds_read_b128 %s, v249 offset:%d' % (vr(rd + (b * 2 + k) * 4), st * 32768 + b * 8192 + k * 1024)
            for b in range(4) for k in range(2)]


def add8(dst, x, y, packed):
    if packed:
        return ['v_pk_add_f32 %s, %s, %s' % (vr(dst + e, 2), vr(x + e, 2), vr(y + e, 2)) for e in range(0, 8, 2)]
    return ['v_add_f32 v%d, v%d, v%d' % (dst + e, x + e, y + e) for e in range(8)]


def finish_pre(st, is_d, tmp):
    res = A_RES + 4 * st
    o = ['v_accvgpr_read_b32 v%d, a%d' % (tmp + 8 + p, res + p) for p in range(4)]
    for p in range(4):
        o += ['v_lshlrev_b32 v%d, 16, v%d' % (tmp + 2 * p, tmp + 8 + p),
              'v_and_b32 v%d, 0xffff0000, v%d' % (tmp + 2 * p + 1, tmp + 8 + p)]
    if is_d:
        o += ['v_accvgpr_read_b32 v%d, a%d' % (tmp + 8 + e, A_B2 + e) for e in range(8)]
        o += ['v_add_f32 v%d, v%d, v%d' % (tmp + e, tmp + e, tmp + 8 + e) for e in range(8)]
    return o


def finish_sum(st, rd, tmp, pk, packed):
    o = add8(rd, rd, rd + 8, packed) + add8(rd + 16, rd + 16, rd + 24, packed) + add8(rd, rd, rd + 16, packed)
    o += add8(tmp, tmp, rd, packed)
    o += ['v_cvt_pk_bf16_f32 v%d, v%d, v%d' % (pk + p, tmp + 2 * p, tmp + 2 * p + 1) for p in range(4)]
    o += ['v_accvgpr_write_b32 a%d, v%d' % (A_RES + 4 * st + p, pk + p) for p in range(4)]
    return o


def owner_stats(tmp, s1, t):
    a('v_pk_add_f32 %s, %s, %s' % (vr(t, 2), vr(tmp, 2), vr(tmp + 2, 2)))
    a('v_pk_add_f32 %s, %s, %s' % (vr(t + 2, 2), vr(tmp + 4, 2), vr(tmp + 6, 2)))
    a('v_pk_add_f32 %s, %s, %s' % (vr(t, 2), vr(t, 2), vr(t + 2, 2)))
    a('v_add_f32 v%d, v%d, v%d' % (s1, t, t + 1))
    a('v_pk_mul_f32 %s, %s, %s' % (vr(t, 2), vr(tmp, 2), vr(tmp, 2)))
    for e in (2, 4, 6):
        a('v_pk_fma_f32 %s, %s, %s, %s' % (vr(t, 2), vr(tmp + e, 2), vr(tmp + e, 2), vr(t, 2)))
    a('v_add_f32 v%d, v%d, v%d' % (s1 + 1, t, t + 1))
    for x, y in zip(xg_reduce(s1, t), xg_reduce(s1 + 1, t + 1)):
        a(x)
        a(y)


def publish_data(st, pk):
    store('buffer_store_dwordx4 %s, v1, %s, s%d offen offset:0' % (vr(pk), srd(S_WS), sPX if st == 0 else sPX2), sPC)


def publish_stats(tmps, t, s1):
    a('v_and_b32 v%d, 15, v0' % V_TOK)
    a('v_lshlrev_b32 v%d, 3, v%d' % (t + 4, V_TOK))
    for st in range(2):
        owner_stats(tmps[st], s1 + 2 * st, t)
    a('s_mov_b64 exec, 0xffff')
    store('buffer_store_dwordx2 %s, v%d, %s, s%d offen' % (vr(s1, 2), t + 4, srd(S_WS), sPS), sPC)
    a('s_add_u32 s%d, s%d, %d' % (sPS, sPS, 2 * 1792))
    store('buffer_store_dwordx2 %s, v%d, %s, s%d offen' % (vr(s1 + 2, 2), t + 4, srd(S_WS), sPS), sPC)
    a('s_mov_b64 exec, -1')


def publish_flags(lsh, between=()):
    a('v_lshlrev_b32 v241, %d, v0' % lsh)
    a('v_add_u32 v241, s%d, v241' % sPF)
    set_flags(241, 2, sPFC, V_T, between)


def run_tiles(tile_items, extras):
    for tile in range(4):
        if tile and '--diag3' in sys.argv:
            stamp()
        items = tile_items(tile)
        ex = list(extras.get(tile, []))
        free = [k for k, it in enumerate(items) if k >= 3 and not it[2]]
        per = -(-len(ex) // max(1, len(free))) if ex else 0
        for k, (pre, m, post) in enumerate(items):
            for x in pre:
                x()
            a(m)
            if post:
                post()
            elif k >= 3:
                for _ in range(per):
                    if ex:
                        x = ex.pop(0)
                        if callable(x):
                            x()
                        else:
                            a(x)
        assert not ex


poll(240)
a('s_barrier')
stamp()


def b_oload(tile, i):
    return 'buffer_load_dwordx4 %s, v1, %s, s%d offen offset:%d sc1' % (vr(BO + (tile * 4 + i) * 4), srd(S_WS), 20 + tile, 1024 * i)


om = {}
for tile in range(2):
    for i in range(4):
        a(b_oload(tile, i))
        om[(tile, i)] = a.vm_mark()


def b_tile(tile):
    items = []
    for i in range(4):
        for t in range(4):
            r = BACC + (tile * 4 + t) * 4
            pre = [(lambda tl=tile, ii=i: a.wait_vm(om[(tl, ii)]))] if t == 0 else []
            post = None
            if tile < 2 and t == 1:
                def post(tl=tile + 2, ii=i):
                    a(b_oload(tl, ii))
                    om[(tl, ii)] = a.vm_mark()
            if tile >= 2 and t == 1:
                def post(idx=4 * (tile - 2) + i):
                    a(c_wload(idx))
            items.append((pre, '%s %s, %s, %s, %s' % (MFMA, vr(r), vr(BW + (i * 4 + t) * 4), vr(BO + (tile * 4 + i) * 4),
                                                      '0' if i == 0 else vr(r)), post))
    return items


BT0, BT1, BPK = 226, 2, 18
run_tiles(b_tile, {1: red_writes(BACC, 0), 2: red_writes(BACC + 16, 1), 3: red_writes(BACC + 32, 2)})
stamp2()
for x in red_writes(BACC + 48, 3):
    a(x)
for x in finish_pre(0, False, BT0) + finish_pre(1, False, BT1):
    a(x)
a('s_waitcnt lgkmcnt(0)')
a('s_barrier')
stamp2()
BRD1 = 162
for x in red_reads(0, BRD) + red_reads(1, BRD1):
    a(x)
a('s_waitcnt lgkmcnt(8)')
for x in finish_sum(0, BRD, BT0, BPK, True):
    a(x)
publish_data(0, BPK)
a('s_waitcnt lgkmcnt(0)')
for x in finish_sum(1, BRD1, BT1, BPK + 4, True):
    a(x)
publish_data(1, BPK + 4)
stamp2()
publish_stats([BT0, BT1], 36, 32)
b_mark = a.vm_mark()
a('v_lshlrev_b32 v236, 7, v0')
a('v_add_u32 v236, s%d, v236' % sPF)
for i in range(8, 16):
    a(c_wload(i))
CA = [2, 10]
XF, NXF = 18, 8
GTMP, GH = 50, 58
CCS, CB1, CB1R = 178, 186, 194
CSTR = 198
CMR = 214
VGA = 218
a('v_lshrrev_b32 v%d, 4, v0' % V_G)
a('v_and_b32 v%d, 15, v0' % V_TOK)
pair_base(sA, L.FB)
a('s_lshl_b32 s%d, s%d, 9' % (sB, sS))
a('s_add_u32 s%d, s%d, s%d' % (sA, sA, sB))
a('v_lshl_add_u32 v240, v0, 2, s%d' % sA)
a('s_mov_b32 s%d, 0x3fff3fff' % sMK)
a('s_mov_b32 s%d, 0x3fff3fff' % (sMK + 1))
pair_base(20, L.XB)
a('s_mul_i32 s%d, s%d, %d' % (sB, sS, 8 * 14336))
a('s_add_u32 s20, s20, s%d' % sB)
a('s_lshl_b32 s%d, s%d, 12' % (sB, sW))
a('s_add_u32 s20, s20, s%d' % sB)
a('s_add_u32 s21, s%d, %d' % (sB, L.L_R2))
pair_base(22, L.SB)
a('s_lshl_b32 s%d, s%d, 3' % (sB, sS))
a('s_add_u32 s%d, s%d, s%d' % (sB, sB, sW))
a('s_mul_i32 s%d, s%d, 1792' % (sB, sB))
a('s_add_u32 s22, s22, s%d' % sB)
a('s_add_u32 s23, s22, %d' % (4 * 1792))
pair_base(32, L.H)
a('s_mul_i32 s%d, s%d, %d' % (sB, sS, 8 * 56 * 1024))
a('s_add_u32 s32, s32, s%d' % sB)
a('s_lshl_b32 s%d, s%d, 2' % (sB, sCI))
a('s_add_u32 s%d, s%d, s%d' % (sB, sB, sW))
a('s_lshl_b32 s%d, s%d, 10' % (sCc, sB))
a('s_add_u32 s32, s32, s%d' % sCc)
pair_base(33, L.FC)
a('s_lshl_b32 s%d, s%d, 11' % (sCc, sS))
a('s_add_u32 s33, s33, s%d' % sCc)
a('s_lshl_b32 s%d, s%d, 2' % (sB, sB))
a('s_add_u32 s33, s33, s%d' % sB)
a('v_mov_b32 v241, s33')
a('v_mov_b32 v242, 0x%x' % INV)
a('v_cmp_eq_u32 vcc, 0, v0')
a('v_cndmask_b32 v241, v242, v241, vcc')
a('v_lshlrev_b32 v238, 3, v%d' % V_TOK)
a('v_lshl_add_u32 v238, v%d, 7, v238' % V_G)
a('v_mov_b32 v242, 0x%x' % INV)
a('v_cmp_lt_u32 vcc, 1, v%d' % V_G)
a('v_cndmask_b32 v239, 0, v242, vcc')
a('v_or_b32 v239, v239, v238')
a('v_add_u32 v252, %d, v1' % L.L_R2)
a('v_lshlrev_b32 v246, 3, v%d' % V_TOK)
a('v_add_u32 v246, %d, v246' % L.L_STC)
GA = 2.0 * 0.7978845608028654 * 1.4426950408889634
GB = GA * 0.044715
a('v_mov_b32 v%d, %s' % (VGA, f2h(-GA)))
a('v_mov_b32 v%d, %s' % (VGA + 1, f2h(-GA)))
a('s_mov_b32 s34, %s' % f2h(-GB))
a('s_mov_b32 s35, %s' % f2h(-GB))
wd_bases_hi = True
a.wait_vm(b_mark)
a('s_mov_b64 exec, 3')
store('buffer_store_dword v%d, v236, %s, 0 offen' % (V_T, srd(S_WS)), sPFC)
a('s_mov_b64 exec, -1')
stamp()

for i in range(16, 22):
    a(c_wload(i))
a('s_lshl_b32 s%d, s%d, 3' % (sA, sCI))
a('s_lshl_b32 s%d, s%d, 1' % (sB, sW))
a('s_add_u32 s%d, s%d, s%d' % (sA, sA, sB))
a('s_lshl_b32 s24, s%d, 5' % sA)
a('v_lshlrev_b32 v248, 3, v%d' % V_G)
for k in range(2):
    a('buffer_load_dwordx2 %s, v248, %s, s24 offen offset:%d' % (vr(CB1R + 2 * k, 2), srd(S_B1), 32 * k))
poll(240, 256)
stamp()


TORD = [0, 4, 1, 5, 2, 6, 3, 7]


def c_dma_setup(t):
    return ['s_add_u32 s36, s20, %d' % (TORD[t] * 14336), 's_add_u32 m0, s21, %d' % ((t & 3) * 16384)]


def c_dma(t, i):
    return 'buffer_load_dwordx4 v1, %s, s36 offen offset:%d sc1 lds' % (srd(S_WS), 1024 * i)


dm = {}
for x in c_dma_setup(0) + [c_dma(0, i) for i in range(4)]:
    a(x)
dm[0] = a.vm_mark()
wlate = {}
for i in range(22, 28):
    a(c_wload(i))
    wlate[i >> 1] = a.vm_mark()
for tt in range(2):
    for i in range(4):
        a('buffer_load_dwordx2 %s, v%d, %s, s%d offen offset:%d sc1' %
          (vr(CSTR + 8 * tt + 2 * i, 2), 239 if i == 3 else 238, srd(S_WS), 22 + tt, 512 * i))
amark['cst'] = a.vm_mark()
for x in c_dma_setup(1) + [c_dma(1, i) for i in range(4)]:
    a(x)
dm[1] = a.vm_mark()
wd_bases()
t0_loads = []
b1_unpack = []
for k in range(2):
    for p in range(2):
        b1_unpack += ['v_lshlrev_b32 v%d, 16, v%d' % (CB1 + 4 * k + 2 * p, CB1R + 2 * k + p),
                      'v_and_b32 v%d, 0xffff0000, v%d' % (CB1 + 4 * k + 2 * p + 1, CB1R + 2 * k + p)]
a.wait_vm(dm[0])
a('s_barrier')
stamp()


def c_xread(t, u):
    n = t * 14 + u
    return 'ds_read_b128 %s, v252 offset:%d' % (vr(XF + 4 * (n % NXF)), (t & 3) * 16384 + u * 1024)


def gelu_pre(t):
    z, m = CA[t & 1], CMR + 2 * (t & 1)
    P = range(0, 8, 2)
    o = ['v_pk_fma_f32 %s, %s, %s, %s op_sel_hi:[1,0,1] neg_lo:[0,1,0] neg_hi:[0,1,0]' % (vr(z + e, 2), vr(CCS + e, 2), vr(m, 2), vr(z + e, 2)) for e in P]
    o += ['v_pk_fma_f32 %s, %s, %s, %s op_sel:[0,1,0] op_sel_hi:[1,1,1]' % (vr(z + e, 2), vr(z + e, 2), vr(m, 2), vr(CB1 + e, 2)) for e in P]
    o += ['v_pk_mul_f32 %s, %s, %s' % (vr(GTMP + e, 2), vr(z + e, 2), vr(z + e, 2)) for e in P]
    o += ['v_pk_fma_f32 %s, %s, s[34:35], %s' % (vr(GTMP + e, 2), vr(GTMP + e, 2), vr(VGA, 2)) for e in P]
    o += ['v_pk_mul_f32 %s, %s, %s' % (vr(GTMP + e, 2), vr(GTMP + e, 2), vr(z + e, 2)) for e in P]
    return o


def gelu_mid():
    o = {}
    for e in range(8):
        o.setdefault(2 * e, []).append('v_exp_f32 v%d, v%d' % (GTMP + e, GTMP + e))
        o.setdefault(2 * e + 3, []).append('v_add_f32 v%d, 1.0, v%d' % (GTMP + e, GTMP + e))
    for e in range(6):
        o.setdefault(16 + 2 * e, []).append('v_rcp_f32 v%d, v%d' % (GTMP + e, GTMP + e))
    o.setdefault(25, []).append('v_rcp_f32 v%d, v%d' % (GTMP + 6, GTMP + 6))
    o.setdefault(27, []).append('v_rcp_f32 v%d, v%d' % (GTMP + 7, GTMP + 7))
    return o


def gelu_post(t):
    z, h = CA[t & 1], GH + 4 * (t & 1)
    o = ['v_pk_mul_f32 %s, %s, %s' % (vr(GTMP + e, 2), vr(GTMP + e, 2), vr(z + e, 2)) for e in range(0, 8, 2)]
    o += ['v_cvt_pk_bf16_f32 v%d, v%d, v%d' % (h + p, GTMP + 2 * p, GTMP + 2 * p + 1) for p in range(4)]
    return o


def gelu_packed(t):
    z, m, h = CA[t & 1], CMR + 2 * (t & 1), GH + 4 * (t & 1)
    P = range(0, 8, 2)
    for e in P:
        a('v_pk_fma_f32 %s, %s, %s, %s op_sel_hi:[1,0,1] neg_lo:[0,1,0] neg_hi:[0,1,0]' % (vr(z + e, 2), vr(CCS + e, 2), vr(m, 2), vr(z + e, 2)))
    for e in P:
        a('v_pk_fma_f32 %s, %s, %s, %s op_sel:[0,1,0] op_sel_hi:[1,1,1]' % (vr(z + e, 2), vr(z + e, 2), vr(m, 2), vr(CB1 + e, 2)))
    for e in P:
        a('v_pk_mul_f32 %s, %s, %s' % (vr(GTMP + e, 2), vr(z + e, 2), vr(z + e, 2)))
    for e in P:
        a('v_pk_fma_f32 %s, %s, s[34:35], %s' % (vr(GTMP + e, 2), vr(GTMP + e, 2), vr(VGA, 2)))
    for e in P:
        a('v_pk_mul_f32 %s, %s, %s' % (vr(GTMP + e, 2), vr(GTMP + e, 2), vr(z + e, 2)))
    for e in range(8):
        a('v_exp_f32 v%d, v%d' % (GTMP + e, GTMP + e))
    for e in P:
        a('v_pk_add_f32 %s, %s, 1.0 op_sel_hi:[1,0]' % (vr(GTMP + e, 2), vr(GTMP + e, 2)))
    for e in range(8):
        a('v_rcp_f32 v%d, v%d' % (GTMP + e, GTMP + e))
    for e in P:
        a('v_pk_mul_f32 %s, %s, %s' % (vr(GTMP + e, 2), vr(GTMP + e, 2), vr(z + e, 2)))
    for p in range(4):
        a('v_cvt_pk_bf16_f32 v%d, v%d, v%d' % (h + p, GTMP + 2 * p, GTMP + 2 * p + 1))


hmk, fmk = {}, {}


def h_store(t):
    def f():
        a('s_add_u32 s24, s32, %d' % (TORD[t] * 56 * 1024))
        store('buffer_store_dwordx4 %s, v1, %s, s24 offen' % (vr(GH + 4 * (t & 1)), srd(S_WS)), sFH)
        hmk[t] = a.vm_mark()
    return f


def h_flag(t):
    def f():
        a.wait_vm(hmk[t])
        store('buffer_store_dword v%d, v241, %s, 0 offen offset:%d' % (V_T, srd(S_WS), 256 * TORD[t]), sFAST)
    return f


def wd_block(fis, wave):
    def f():
        skip = newlab('L_wd')
        a('s_cmp_eq_u32 s24, %d' % wave)
        a('s_cbranch_scc0 %s' % skip)
        for fi in fis:
            a(wd_load(fi))
            a.vm_issued -= 1
        a.label(skip)
    return f


cst_fill = []
for tt in range(2):
    r = CSTR + 8 * tt
    for c_ in range(2):
        cst_fill += ['v_add_f32 v%d, v%d, v%d' % (r + c_, r + c_, r + 2 + c_),
                     'v_add_f32 v%d, v%d, v%d' % (r + 4 + c_, r + 4 + c_, r + 6 + c_),
                     'v_add_f32 v%d, v%d, v%d' % (r + c_, r + c_, r + 4 + c_)]
    cst_fill += xg_reduce(r, r + 2) + xg_reduce(r + 1, r + 3) + stats_finish(r, r + 1, r + 2, True)
a('s_lshl_b32 s%d, s%d, 7' % (sA, sW))
a('v_add_u32 v247, s%d, v246' % sA)
cst_fill += ['ds_write_b64 v247, %s' % vr(CSTR, 2), 'ds_write_b64 v247, %s offset:512' % vr(CSTR + 8, 2)] + b1_unpack
LOOKX = 6


A_CCS = 244


DFIRST = [194, 198, 202, 206, 210, 220, 224, 228, 232]
hm = {}


def emit_c_loop(wd_list):
    pass0 = bool(wd_list)
    if not pass0:
        for e in range(8):
            a('v_accvgpr_read_b32 v%d, a%d' % (CCS + e, A_CCS + e))
    for u in range(LOOKX):
        a(c_xread(0, u))
    for t in range(8):
        nonvec = {}

        def put(k, x):
            nonvec.setdefault(k, []).append(x)
        for u in range(14):
            n = t * 14 + u
            m = n + LOOKX
            if m < 8 * 14:
                put(2 * u + 1, c_xread(m // 14, m % 14))
            if u % 2 == 1 and n + 1 < 8 * 14:
                put(2 * u + 1, 's_waitcnt lgkmcnt(%d)' % min(LOOKX - 2, 8 * 14 - 1 - (n + 2)))
        if t < 7:
            nonvec[14] = [('bar', t + 1)] + nonvec.get(14, [])
        if t + 2 < 8:
            su = c_dma_setup(t + 2)
            put(0, su[0])
            put(0, su[1])
            for i in range(4):
                put(2 + 2 * i, ('dma', t + 2, i))
        if t >= 3:
            put(20, ('call', h_flag(t - 3)))
        if t == 1:
            put(0, 's_add_u32 s22, s25, 12288')
        if t == 5:
            def issue_d0():
                amark['d0'] = early_issue(244, 243)
            put(22, ('call', issue_d0))
        if t == 6:
            put(2, ('call', lambda: early_check(244, 243, amark['d0'])))
        if t in (6, 7):
            for k, q in zip((4, 6, 8, 20, 22) if t == 6 else (2, 4, 6, 8), range(0, 5) if t == 6 else range(5, 9)):
                put(k, ('h0', q))
        if t < 7:
            for k in (10, 12, 16, 18, 22, 24, 26):
                if wd_list:
                    put(k, wd_load(wd_list.pop(0)))
        if t > 0:
            put(17, 'ds_read_b64 %s, v246 offset:%d' % (vr(CMR + 2 * (t & 1), 2), 128 * TORD[t]))
        if t == 0:
            for k, it in enumerate(t0_loads):
                put(k, ('t0', it))
        valu = gelu_mid() if t >= 1 else {}
        if t >= 2:
            for x in gelu_post(t - 2):
                a(x)
            h_store(t - 2)()
        if t >= 1:
            for x in gelu_pre(t - 1):
                a(x)
        fill = list(cst_fill) if t == 0 else []
        first = 8
        fi = 0
        for k in range(28):
            u, kk = k >> 1, k & 1
            n = t * 14 + u
            if t == 0 and k == 0:
                a('s_waitcnt lgkmcnt(%d)' % (LOOKX - 2))
            if t == 0 and kk == 0 and u in wlate:
                a.wait_vm(wlate[u])
            if t == 0 and k == first:
                a.wait_vm(amark['cst'])
            r = CA[t & 1] + 4 * kk
            a('%s %s, %s, %s, %s' % (MFMA, vr(r), vr(CWW + 4 * (2 * u + kk)), vr(XF + 4 * (n % NXF)), '0' if u == 0 else vr(r)))
            if pass0 and t == 0:
                a('%s %s, %s, %s, %s' % (MFMA, vr(CCS + 4 * kk), vr(CWW + 4 * (2 * u + kk)), ar(A_ONES), '0' if u == 0 else vr(CCS + 4 * kk)))
            for it in nonvec.get(k, []):
                if isinstance(it, str):
                    a(it)
                elif it[0] == 'bar':
                    a.wait_vm(dm[it[1]])
                    a('s_barrier')
                elif it[0] == 'dma':
                    a(c_dma(it[1], it[2]))
                    dm[it[1]] = a.vm_mark()
                elif it[0] == 'call':
                    it[1]()
                elif it[0] == 'h0':
                    q = it[1]
                    a('buffer_load_dwordx4 %s, v1, %s, s%d offen offset:%d sc1' %
                      (vr(DFIRST[q] if q < 9 else 66 + 4 * q), srd(S_WS), (25, 27, 29, 22)[q >> 2], 1024 * (q & 3)))
                    hm[q] = a.vm_mark()
                elif it[0] == 't0':
                    if it[1][0] == 'w':
                        a(c_wload(it[1][1]))
                        wlate[it[1][1] >> 1] = a.vm_mark()
                    else:
                        a(it[1][1])
                        amark['cst'] = a.vm_mark()
            for x in valu.get(k, []):
                a(x)
            if fill and k >= first:
                want = -(-(len(fill)) * (k - first + 1) // (28 - first))
                while fi < want:
                    a(fill[fi])
                    fi += 1
        assert fi == len(fill)
        if t == 0:
            a('s_waitcnt lgkmcnt(0)')
            a('s_barrier')
            a('ds_read_b64 %s, v246 offset:0' % vr(CMR, 2))
            if pass0:
                for e in range(8):
                    a('v_accvgpr_write_b32 a%d, v%d' % (A_CCS + e, CCS + e))
            a('s_waitcnt lgkmcnt(0)')
    assert not wd_list


pair_base(sA, L.FC)
a('s_lshl_b32 s%d, s%d, 10' % (sB, sG))
a('s_add_u32 s%d, s%d, s%d' % (sA, sA, sB))
a('s_mul_i32 s%d, s%d, 56' % (sB, sW))
a('s_add_u32 s%d, s%d, s%d' % (sA, sA, sB))
a('v_lshl_add_u32 v243, v0, 2, s%d' % sA)
a('s_mov_b32 s%d, 0x3fff' % sMK2)
a('s_mov_b32 s%d, 0' % (sMK2 + 1))
pair_base(sA, L.H)
a('s_mul_i32 s%d, s%d, %d' % (sB, sG, 4 * 56 * 1024))
a('s_add_u32 s%d, s%d, s%d' % (sA, sA, sB))
a('s_mul_i32 s%d, s%d, %d' % (sB, sW, 14 * 1024))
a('s_add_u32 s25, s%d, s%d' % (sA, sB))
a('s_add_u32 s27, s25, 4096')
a('s_add_u32 s29, s25, 8192')
n_before = a.vm_issued
dm_init = dict(dm)
a('s_cmp_eq_u32 s%d, 0' % sPAIR)
a('s_cbranch_scc0 L_c_loop1')
emit_c_loop(list(range(*WD_CH[1])))
a('s_branch L_c_done')
a.label('L_c_loop1')
extra = a.vm_issued - n_before
a.vm_issued = n_before
dm.clear()
dm.update(dm_init)
emit_c_loop([])
a.label('L_c_done')
stamp()
DH, DACC, DRD = 66, 130, 194
DRING, DLOOK = 16, 10
red_addrs()
publish_setup(L.XA[1], L.SA[1], L.FX[1], False, 5)
a('s_and_b32 s%d, s%d, 1' % (sA, sG))
a('s_lshr_b32 s%d, s%d, 1' % (sB, sW))
a('s_and_b32 s%d, s%d, s%d' % (sA, sA, sB))
a('s_xor_b32 s%d, s%d, 1' % (sA, sA))
a('s_and_b32 s%d, s%d, s%d' % (sPC, sFD, sA))
a('s_mov_b32 s%d, s%d' % (sPFC, sFAST))
a('s_cmp_eq_u32 s%d, 0' % sA)
a('s_cselect_b32 s%d, 0, 0x%x' % (sCc, INV))
a('s_add_u32 s%d, s%d, 1' % (sA, sS))
a('s_lshl_b32 s%d, s%d, 5' % (sA, sA))
a('s_lshl_b32 s%d, s%d, 1' % (sB, sJ))
a('s_add_u32 s%d, s%d, s%d' % (sA, sA, sB))
a('s_and_b32 s%d, s%d, 1' % (sB, sW))
a('s_add_u32 s%d, s%d, s%d' % (sA, sA, sB))
a('s_lshl_b32 s%d, s%d, 2' % (sA, sA))
a('s_add_u32 s%d, s%d, %d' % (sA, sA, L.FH))
a('s_or_b32 s20, s%d, s%d' % (sA, sCc))
pair_base(sA, L.H)
a('s_mul_i32 s%d, s%d, %d' % (sB, sG, 4 * 56 * 1024))
a('s_add_u32 s%d, s%d, s%d' % (sA, sA, sB))
a('s_mul_i32 s%d, s%d, %d' % (sB, sW, 14 * 1024))
a('s_add_u32 s%d, s%d, s%d' % (sO, sA, sB))
quarter_offsets(4, 56 * 1024)
a('s_cmp_eq_u32 s%d, 0' % sPAIR)
a('s_cbranch_scc1 L_d_nout')
owner_index()
a('s_mul_i32 s%d, s%d, 14336' % (sPX, sB))
a('s_lshl_b32 s%d, s%d, 6' % (sA, sA))
a('s_add_u32 s%d, s%d, s%d' % (sPX, sPX, sA))
a('s_add_u32 s%d, s%d, %d' % (sPX2, sPX, 2 * 14336))
a.label('L_d_nout')
a('v_and_b32 v%d, 15, v0' % V_TOK)
a('v_lshrrev_b32 v%d, 4, v0' % V_G)
a('v_mul_u32_u24 v242, 896, v%d' % V_TOK)
a('v_lshl_add_u32 v242, v%d, 3, v242' % V_G)


def d_hload(q):
    tile, kk = divmod(q, 14)
    return ('buffer_load_dwordx4 %s, v1, %s, s%d offen offset:%d sc1' %
            (vr(d_reg(q)), srd(S_WS), sO + 4 * tile + (kk >> 2), 1024 * (kk & 3)))


def d_reg(q):
    return DFIRST[q] if q < len(DFIRST) else DH + (q % DRING) * 4


dmk = {}
for q in range(len(DFIRST), DLOOK):
    a(d_hload(q))
    hm[q] = a.vm_mark()
dmk[1] = early_issue(244, 243, 256)
stamp()
for x in gelu_post(6):
    a(x)
h_store(6)()
a('s_waitcnt lgkmcnt(0)')
gelu_packed(7)
h_flag(5)()
h_store(7)()
stamp()

a('s_barrier')
stamp()


def d_tile(tile):
    items = []
    for kk in range(14):
        q = tile * 14 + kk
        for t in range(4):
            r = DACC + (tile * 4 + t) * 4
            pre = [(lambda qq=q: a.wait_vm(hm[qq]))] if t == 0 else []
            if t == 0 and q in (6, 12):
                pre.append(h_flag({6: 6, 12: 7}[q]))
            post = None
            if t == 0 and q + DLOOK < 56:
                def post(qq=q + DLOOK):
                    if qq % 14 == 0:
                        early_check(244, 243, dmk[qq // 14], 256 * (qq // 14))
                    a(d_hload(qq))
                    hm[qq] = a.vm_mark()
                    if qq % 14 == 6 and qq // 14 < 3:
                        dmk[qq // 14 + 1] = early_issue(244, 243, 256 * (qq // 14 + 1))
            items.append((pre, '%s %s, %s, %s, %s' % (MFMA, vr(r), ar((kk * 4 + t) * 4), vr(d_reg(q)),
                                                      '0' if kk == 0 else vr(r)), post))
    return items


def d_out_store(st, pk):
    a('buffer_store_dwordx2 %s, v242, %s, s%d offen %s' % (vr(pk, 2), srd(S_OUT), sPX if st == 0 else sPX2, OUTSC))
    a('buffer_store_dwordx2 %s, v242, %s, s%d offen offset:32 %s' % (vr(pk + 2, 2), srd(S_OUT), sPX if st == 0 else sPX2, OUTSC))


def d_store(st, pk):
    fin, done = newlab('L_dfin'), newlab('L_ddone')
    a('s_cmp_eq_u32 s%d, 0' % sPAIR)
    a('s_cbranch_scc0 %s' % fin)
    publish_data(st, pk)
    a('s_branch %s' % done)
    a.label(fin)
    n = a.vm_issued
    d_out_store(st, pk)
    a.vm_issued = n
    a.label(done)


DT0, DT1, DPK, DSTT, DSTS = 226, 2, 18, 28, 36
stage0 = [lambda: (a('s_waitcnt lgkmcnt(0)'), a('s_barrier'))] + red_reads(0, DRD) + finish_pre(0, True, DT0)
stage0 += [lambda: a('s_waitcnt lgkmcnt(0)')] + finish_sum(0, DRD, DT0, DPK, False) + [lambda: d_store(0, DPK)]
run_tiles(d_tile, {1: red_writes(DACC, 0), 2: red_writes(DACC + 16, 1), 3: red_writes(DACC + 32, 2) + stage0})
stamp2()
for x in red_writes(DACC + 48, 3):
    a(x)
for x in finish_pre(1, True, DT1):
    a(x)
a('s_waitcnt lgkmcnt(0)')
a('s_barrier')
stamp2()
for x in red_reads(1, DRD):
    a(x)
a('s_waitcnt lgkmcnt(0)')
for x in finish_sum(1, DRD, DT1, DPK + 4, True):
    a(x)
d_store(1, DPK + 4)
stamp()
a('s_cmp_eq_u32 s%d, 0' % sPAIR)
a('s_cbranch_scc0 L_next_pair')
publish_stats([DT0, DT1], DSTT, DSTS)
FHMODE = ([x[5:] for x in sys.argv if x.startswith('--fh=')] + ['after'])[0]
a('v_mov_b32 v240, s20')
if FHMODE == 'before':
    a('s_waitcnt vmcnt(0)')
    a('s_mov_b64 exec, 1')
    a('buffer_store_dword v%d, v240, %s, 0 offen sc1' % (V_T, srd(S_WS)))
    a('s_mov_b64 exec, -1')
    a('v_lshlrev_b32 v241, 8, v0')
    a('v_add_u32 v241, s%d, v241' % sPF)
    a('s_mov_b64 exec, 3')
    store('buffer_store_dword v%d, v241, %s, 0 offen' % (V_T, srd(S_WS)), sPFC)
    a('s_mov_b64 exec, -1')
else:
    publish_flags(8)
    if FHMODE == 'wait':
        a('s_waitcnt vmcnt(0)')
    a('s_mov_b64 exec, 1')
    a('buffer_store_dword v%d, v240, %s, 0 offen sc1' % (V_T, srd(S_WS)))
    a('s_mov_b64 exec, -1')
a.label('L_next_pair')
stamp()
a('s_add_u32 s%d, s%d, 1' % (sPAIR, sPAIR))
a('s_cmp_lt_u32 s%d, 2' % sPAIR)
a('s_cbranch_scc1 L_pair')

a('s_cmp_eq_u32 s2, 0')
a('s_cbranch_scc0 L_noepoch')
a('s_cmp_eq_u32 s%d, 0' % sW)
a('s_cbranch_scc0 L_noepoch')
a('buffer_load_dword v2, off, %s, 0 sc1' % srd(S_WS))
a('s_waitcnt vmcnt(0)')
a('v_add_u32 v2, 1, v2')
a('s_mov_b64 exec, 1')
a('buffer_store_dword v2, off, %s, 0 sc1' % srd(S_WS))
a('s_mov_b64 exec, -1')
a.label('L_noepoch')
if PAD:
    a.label('L_padspin')
    a('s_memrealtime s[34:35]')
    a('s_waitcnt lgkmcnt(0)')
    a('s_sub_u32 s34, s34, s0')
    a('s_cmp_lt_u32 s34, %d' % PAD[0])
    a('s_cbranch_scc1 L_padspin')
if DBG:
    a('s_memtime s[32:33]')
    a('s_memrealtime s[34:35]')
    a('s_waitcnt lgkmcnt(0)')
    a('s_sub_u32 s32, s32, s26')
    a('s_sub_u32 s34, s34, s0')
    build_srd(S_TMP, P_DBG, 256)
    a('v_mov_b32 v2, s32')
    a('v_mov_b32 v3, s34')
    a('v_mov_b32 v4, s%d' % sFAST)
    a('v_mov_b32 v5, s%d' % sXCC)
    a('s_lshr_b32 s%d, s2, 6' % sA)
    a('s_lshl_b32 s%d, s%d, 4' % (sA, sA))
    a('s_and_b32 s%d, s2, 63' % sB)
    a('s_or_b32 s%d, s%d, s%d' % (sB, sB, sW))
    a('s_cmp_eq_u32 s%d, 0' % sB)
    a('s_cselect_b32 s%d, s%d, 0x%x' % (sA, sA, INV))
    a('v_mov_b32 v6, s%d' % sA)
    a('s_mov_b64 exec, 1')
    a('buffer_store_dwordx4 v[2:5], v6, %s, 0 offen' % srd(S_TMP))
    a('s_mov_b64 exec, -1')
if DIAG:
    stamp()
    a('s_mov_b32 s%d, 63' % sSTI)
    a('s_lshl_b64 exec, 1, s%d' % sSTI)
    a('v_mov_b32 v%d, s%d' % (V_STAMP, sERR))
    a('s_mov_b32 s%d, 62' % sSTI)
    a('s_lshl_b64 exec, 1, s%d' % sSTI)
    a('v_mov_b32 v%d, s%d' % (V_STAMP, sFAST))
    a('s_mov_b64 exec, -1')
    a('s_lshl_b32 s%d, s2, 2' % sA)
    a('s_add_u32 s%d, s%d, s%d' % (sA, sA, sW))
    a('s_lshl_b32 s%d, s%d, 8' % (sA, sA))
    a('v_lshlrev_b32 v2, 2, v0')
    a('s_add_u32 s%d, s%d, %d' % (sA, sA, L.WS_USED))
    a('s_mov_b32 s%d, 0x%x' % (S_WS + 2, L.WS_USED + 256 * 1024))
    a('buffer_store_dword v%d, v2, %s, s%d offen' % (V_STAMP, srd(S_WS), sA))
    if DBGST:
        build_srd(S_TMP, P_DBG, 256)
        a('v_readfirstlane_b32 s%d, v%d' % (sA, V_STAMP))
        a('s_nop 4')
        a('v_subrev_u32 v3, s%d, v%d' % (sA, V_STAMP))
        a('s_or_b32 s%d, s2, s%d' % (sB, sW))
        a('s_cmp_eq_u32 s%d, 0' % sB)
        a('s_cselect_b32 s%d, 0, 0x%x' % (sB, INV))
        a('v_or_b32 v2, s%d, v2' % sB)
        SEL = [int(x[6:]) for x in sys.argv if x.startswith('--sel=')]
        sel = SEL[0] if SEL else 1
        a('v_subrev_u32 v2, %d, v2' % (4 * sel))
        a('buffer_store_dword v3, v2, %s, 0 offen' % srd(S_TMP))
a.label('L_end')
a('s_endpgm')

a.finalize()
body = a.text()

import os
hdr = open(os.path.join(os.path.dirname(os.path.abspath(__file__)), 'header.txt')).read()
out = hdr + '; @launch grid=(256,1,1) block=(256,1,1) lds=%d\n' % L.LDS_BYTES
out += '.amdgcn_target "amdgcn-amd-amdhsa--gfx950"\n.text\n.globl %s_kernel\n.p2align 8\n.type %s_kernel,@function\n%s_kernel:\n' % (NAME, NAME, NAME)
out += body
out += '''.section .rodata,"a"
.p2align 6
.amdhsa_kernel %s_kernel
  .amdhsa_next_free_vgpr 512
  .amdhsa_next_free_sgpr 102
  .amdhsa_accum_offset 256
  .amdhsa_group_segment_fixed_size 0
  .amdhsa_kernarg_size 88
  .amdhsa_user_sgpr_count 2
  .amdhsa_user_sgpr_kernarg_segment_ptr 1
  .amdhsa_system_sgpr_workgroup_id_x 1
.end_amdhsa_kernel
''' % NAME
sys.stdout.write(out)
```

```python
import struct
import sys
from asmlib import Asm
import layout as L

NAME = 'interleave_layers__sliding_local_dilated__mixer_channel_mlp__prompt'
DIAG = '--diag' in sys.argv
FASTMODE = ([x[7:] for x in sys.argv if x.startswith('--fast=')] + ['flags'])[0]
NOFAST = FASTMODE == 'none'
PAD = [int(x[6:]) for x in sys.argv if x.startswith('--pad=')]
DBG = '--dbg' in sys.argv or bool(PAD)
SPIN_LIMIT = 200000
OUTSC = ([x[8:] for x in sys.argv if x.startswith('--outsc=')] + [''])[0].replace('_', ' ')
SLEEP = int(([x[8:] for x in sys.argv if x.startswith('--sleep=')] + ['0'])[0])
INV = 0x80000000

a = Asm()

sXCC = 3
S_WS, S_TMP, S_B1, S_OUT = 4, 8, 12, 16
P_X, P_WQKV, P_WO, P_BX, P_W1, P_B1, P_W2, P_B2, P_OUT, P_DBG, P_WSP = 20, 22, 24, 26, 28, 30, 32, 34, 36, 38, 40
sS, sC, sG, sJ, sW, sT, sPAIR, sSPIN = 42, 43, 44, 45, 46, 47, 48, 49
sM1 = 50
sM2 = 58
sM0 = 66
sO = 74
sA, sB, sCc, sD = 90, 91, 92, 93
sMK = 94
sTS = 96
sGT = 98
sERR = 99
sSTI = 100
sFAST = 101
sFD = 27
sPFC = 26
sFH = 25


def srd(n):
    return 's[%d:%d]' % (n, n + 3)


def vr(n, k=4):
    return 'v[%d:%d]' % (n, n + k - 1)


def ar(n, k=4):
    return 'a[%d:%d]' % (n, n + k - 1)


def sp(n):
    return 's[%d:%d]' % (n, n + 1)


def f2h(x):
    return '0x%08x' % struct.unpack('<I', struct.pack('<f', x))[0]


V_T, V_STAMP = 254, 255
V_TOK, V_G = 250, 251
MFMA = 'v_mfma_f32_16x16x32_bf16'


DIAG2 = '--diag2' in sys.argv
PREF = '--pref' in sys.argv
TOUCH = '--notouch' not in sys.argv
STWAIT = '--stwait' in sys.argv
P2EARLY = '--p2early' in sys.argv
SKEW = [int(x[7:]) for x in sys.argv if x.startswith('--skew=')]
DBGST = '--dbgst' in sys.argv


def stamp2():
    if DIAG2:
        stamp()


def stamp():
    if not DIAG:
        return
    a('%s %s' % ('s_memrealtime' if '--rt' in sys.argv else 's_memtime', sp(sTS)))
    a('s_waitcnt lgkmcnt(0)')
    a('s_lshl_b64 exec, 1, s%d' % sSTI)
    a('v_mov_b32 v%d, s%d' % (V_STAMP, sTS))
    a('s_mov_b64 exec, -1')
    a('s_add_u32 s%d, s%d, 1' % (sSTI, sSTI))


lab_no = [0]


def newlab(p):
    lab_no[0] += 1
    return '%s_%d' % (p, lab_no[0])


def skew_store(point, have=False):
    if not SKEW or SKEW[0] != point:
        return
    if not have:
        a('s_memrealtime s[96:97]')
        a('s_waitcnt lgkmcnt(0)')
    build_srd(S_TMP, P_DBG, 256)
    a('s_and_b32 s%d, s2, 15' % sA)
    a('s_or_b32 s%d, s%d, s%d' % (sA, sA, sW))
    a('s_cmp_eq_u32 s%d, 0' % sA)
    a('s_cselect_b32 s%d, 0, 0x%x' % (sA, INV))
    a('s_lshr_b32 s%d, s2, 2' % sB)
    a('s_or_b32 s%d, s%d, s%d' % (sA, sA, sB))
    a('v_mov_b32 v21, s%d' % sA)
    a('v_mov_b32 v22, s96')
    a('s_mov_b64 exec, 1')
    a('buffer_store_dword v22, v21, %s, 0 offen' % srd(S_TMP))
    a.vm_issued -= 1
    a('s_mov_b64 exec, -1')


def build_srd(dst, ptr, nbytes):
    a('s_mov_b32 s%d, s%d' % (dst, ptr))
    a('s_and_b32 s%d, s%d, 0xffff' % (dst + 1, ptr + 1))
    a('s_mov_b32 s%d, 0x%x' % (dst + 2, nbytes))
    a('s_mov_b32 s%d, 0x20000' % (dst + 3))


def poll(voff, off2=None, sleep=None):
    lab, done = newlab('L_poll'), newlab('L_polldone')
    a('s_mov_b64 exec, %s' % sp(sMK))
    a('s_mov_b32 s%d, 0' % sSPIN)
    a.label(lab)
    a('buffer_load_dword v253, v%d, %s, 0 offen sc1' % (voff, srd(S_WS)))
    if off2 is not None:
        a('buffer_load_dword v245, v%d, %s, 0 offen offset:%d sc1' % (voff, srd(S_WS), off2))
    a('s_waitcnt vmcnt(0)')
    if off2 is not None:
        a('v_xor_b32 v245, s%d, v245' % sT)
        a('v_xor_b32 v253, s%d, v253' % sT)
        a('v_or_b32 v253, v253, v245')
        a('v_cmp_ne_u32 vcc, 0, v253')
    else:
        a('v_cmp_ne_u32 vcc, s%d, v253' % sT)
    a('s_nop 4')
    a('s_cbranch_vccz %s' % done)
    if sleep or SLEEP:
        a('s_sleep %d' % (sleep or SLEEP))
    a('s_add_u32 s%d, s%d, 1' % (sSPIN, sSPIN))
    a('s_cmp_lt_u32 s%d, %d' % (sSPIN, SPIN_LIMIT))
    a('s_cbranch_scc1 %s' % lab)
    a('s_add_u32 s%d, s%d, 1' % (sERR, sERR))
    a.label(done)
    a('s_mov_b64 exec, -1')


sMK2 = 30


def early_issue(dst, voff, off=0):
    a('s_mov_b64 exec, %s' % sp(sMK2))
    a('buffer_load_dword v%d, v%d, %s, 0 offen offset:%d sc1' % (dst, voff, srd(S_WS), off))
    a('s_mov_b64 exec, -1')
    return a.vm_mark()


def early_check(dst, voff, mark, off=0):
    ok = newlab('L_early')
    a.wait_vm(mark)
    a('s_mov_b64 exec, %s' % sp(sMK2))
    a('v_cmp_ne_u32 vcc, s%d, v%d' % (sT, dst))
    a('s_mov_b64 exec, -1')
    a('s_nop 2')
    a('s_cbranch_vccz %s' % ok)
    a('s_mov_b64 %s, %s' % (sp(sMK), sp(sMK2)))
    n = a.vm_issued
    if off:
        a('v_add_u32 v253, %d, v%d' % (off, voff))
        a('v_mov_b32 v%d, v253' % dst)
        poll(dst)
    else:
        poll(voff)
    a.vm_issued = n
    a.label(ok)


def store(fmt, cond=None):
    if cond is None or NOFAST or (FASTMODE == 'flags' and cond in (sFD, sFH, sPC)):
        a(fmt + ' sc1')
        return
    slow, done = newlab('L_slow'), newlab('L_st')
    a('s_cmp_eq_u32 s%d, 0' % cond)
    a('s_cbranch_scc1 %s' % slow)
    a(fmt)
    a('s_branch %s' % done)
    a.label(slow)
    a(fmt + ' sc1')
    a.vm_issued -= 1
    a.label(done)


def set_flags(voff, nlanes, cond=None, val=V_T, between=()):
    mark = a.vm_mark()
    for x in between:
        a(x)
    a.wait_vm(mark)
    a('s_mov_b64 exec, %d' % ((1 << nlanes) - 1))
    store('buffer_store_dword v%d, v%d, %s, 0 offen' % (val, voff, srd(S_WS)), cond)
    a('s_mov_b64 exec, -1')


def xg_reduce(x, t, op='v_add_f32'):
    return ['v_mov_b32 v%d, v%d' % (t, x),
            'v_permlane32_swap_b32 v%d, v%d' % (x, t),
            '%s v%d, v%d, v%d' % (op, x, x, t),
            'v_mov_b32 v%d, v%d' % (t, x),
            'v_permlane16_swap_b32 v%d, v%d' % (x, t),
            '%s v%d, v%d, v%d' % (op, x, x, t)]


EPS = 1e-5


def stats_finish(s1, s2, t, double_ln):
    o = ['v_mul_f32 v%d, %s, v%d' % (s1, f2h(1.0 / 448), s1),
         'v_mul_f32 v%d, %s, v%d' % (s2, f2h(1.0 / 448), s2),
         'v_fma_f32 v%d, -v%d, v%d, v%d' % (s2, s1, s1, s2),
         'v_max_f32 v%d, 0, v%d' % (s2, s2),
         'v_add_f32 v%d, %s, v%d' % (t, f2h(EPS), s2),
         'v_rsq_f32 v%d, v%d' % (t, t)]
    if not double_ln:
        o += ['v_mov_b32 v%d, v%d' % (s2, t)]
    else:
        o += ['v_mul_f32 v%d, v%d, v%d' % (s2, s2, t),
              'v_fmaak_f32 v%d, v%d, v%d, %s' % (s2, s2, t, f2h(EPS)),
              'v_rsq_f32 v%d, v%d' % (s2, s2),
              'v_mul_f32 v%d, v%d, v%d' % (s2, s2, t)]
    return o


def pair_base(dst, arr):
    a('s_mul_i32 s%d, s%d, %d' % (dst, sPAIR, arr[1] - arr[0]))
    a('s_add_u32 s%d, s%d, %d' % (dst, dst, arr[0]))


def quarter_offsets(n, stride):
    for t in range(n):
        if t:
            a('s_add_u32 s%d, s%d, %d' % (sO + 4 * t, sO + 4 * (t - 1), stride))
        for q in range(1, 4):
            a('s_add_u32 s%d, s%d, %d' % (sO + 4 * t + q, sO + 4 * t, 4096 * q))


sPX, sPS, sPF, sPC, sPX2 = 36, 37, 28, 29, 33


def stats_flags(delta, lsh):
    a('v_lshlrev_b32 v241, %d, v0' % lsh)
    a('s_add_u32 s%d, s%d, %d' % (sA, sPF, delta))
    a('v_add_u32 v241, s%d, v241' % sA)
    a('s_mov_b64 exec, 3')
    store('buffer_store_dword v%d, v241, %s, 0 offen' % (V_T, srd(S_WS)), sPFC)
    a('s_mov_b64 exec, -1')


a('s_cmp_ge_u32 s2, 256')
a('s_cbranch_scc1 L_end')
if '--perm' in sys.argv:
    a('s_and_b32 s90, s2, 7')
    a('s_lshr_b32 s91, s2, 3')
    a('s_and_b32 s91, s91, 7')
    a('s_and_b32 s2, s2, 0xc0')
    a('s_lshl_b32 s90, s90, 3')
    a('s_or_b32 s2, s2, s90')
    a('s_or_b32 s2, s2, s91')
a('s_load_dwordx16 s[20:35], s[0:1], 0')
a('s_load_dwordx4 s[36:39], s[0:1], 64')
a('s_load_dwordx2 s[40:41], s[0:1], 80')
a('s_getreg_b32 s%d, hwreg(HW_REG_XCC_ID, 0, 4)' % sXCC)
a('s_and_b32 s%d, s2, 7' % sA)
a('s_lshr_b32 s%d, s2, 3' % sB)
a('s_lshr_b32 s%d, s%d, 4' % (sCc, sB))
a('s_lshl_b32 s%d, s%d, 1' % (sS, sA))
a('s_add_u32 s%d, s%d, s%d' % (sS, sS, sCc))
a('s_and_b32 s%d, s%d, 15' % (sC, sB))
a('s_lshr_b32 s%d, s%d, 3' % (sA, sC))
a('s_lshl_b32 s%d, s%d, 1' % (sG, sS))
a('s_add_u32 s%d, s%d, s%d' % (sG, sG, sA))
a('s_and_b32 s%d, s%d, 7' % (sJ, sC))
a('s_mov_b32 s%d, 0' % sERR)
if SKEW and SKEW[0] == 0:
    a('s_memrealtime s[96:97]')
if PREF:
    a('s_getpc_b64 s[96:97]')
    a.label('L_pc')
    a('s_lshl_b32 s%d, s%d, 11' % (sA, sB))
    a('v_lshlrev_b32 v3, 3, v0')
    a('v_add_u32 v3, s%d, v3' % sA)
    a('v_min_u32 v3, L_end-L_pc-8, v3')
    a('global_load_dwordx2 v[252:253], v3, s[96:97]')
a('v_lshrrev_b32 v2, 6, v0')
a('v_and_b32 v0, 63, v0')
a('v_readfirstlane_b32 s%d, v2' % sW)
a('v_lshlrev_b32 v1, 4, v0')
if DIAG:
    a('v_mov_b32 v%d, 0' % V_STAMP)
    a('s_mov_b32 s%d, 0' % sSTI)
stamp()
a('v_and_b32 v%d, 15, v0' % V_TOK)
a('v_lshrrev_b32 v%d, 4, v0' % V_G)
sSTG = 40
a('s_waitcnt lgkmcnt(0)')
if DBG:
    a('s_memtime s[26:27]')
    a('s_memrealtime s[0:1]')
    a('s_waitcnt lgkmcnt(0)')
skew_store(0, True)
build_srd(S_WS, P_WSP, L.WS_USED)
a('buffer_load_dword v%d, off, %s, 0 sc1' % (V_T, srd(S_WS)))
a('s_lshl_b32 s%d, s%d, 14' % (sSTG, sW))
a('s_add_u32 s%d, s%d, %d' % (sSTG, sSTG, L.L_R2))

build_srd(S_TMP, P_X, 2048 * 896)
a('v_mul_u32_u24 v2, 896, v%d' % V_TOK)
a('v_lshl_add_u32 v2, v%d, 3, v2' % V_G)
a('s_lshr_b32 s%d, s%d, 1' % (sA, sC))
a('s_lshl_b32 s%d, s%d, 3' % (sB, sS))
a('s_add_u32 s%d, s%d, s%d' % (sO + 0, sA, sB))
a('s_and_b32 s%d, s%d, 1' % (sA, sC))
a('s_mul_i32 s%d, s%d, 7' % (sA, sA))
a('s_add_u32 s%d, s%d, s%d' % (sO + 1, sA, sW))
a('s_cmp_lt_u32 s%d, 3' % sW)
a('s_cselect_b32 s%d, 0, 0x%x' % (sO + 2, INV))
a('s_mul_i32 s%d, s%d, 14336' % (sA, sO + 0))
a('s_lshl_b32 s%d, s%d, 6' % (sB, sO + 1))
a('s_add_u32 s%d, s%d, s%d' % (sA, sA, sB))
a('v_or_b32 v3, s%d, v2' % (sO + 2))
a('buffer_load_dwordx2 v[10:11], v2, %s, s%d offen' % (srd(S_TMP), sA))
a('buffer_load_dwordx2 v[12:13], v2, %s, s%d offen offset:32' % (srd(S_TMP), sA))
a('buffer_load_dwordx2 v[14:15], v3, %s, s%d offen offset:256' % (srd(S_TMP), sA))
a('buffer_load_dwordx2 v[16:17], v3, %s, s%d offen offset:288' % (srd(S_TMP), sA))

build_srd(S_TMP, P_WQKV, 448 * 2688)
qMAT, qU, qINV = sO + 3, sO + 4, sO + 5
a('s_lshl_b32 s%d, s%d, 4' % (sA, sW))
a('s_add_u32 s%d, s%d, s%d' % (sA, sA, sS))
a('s_cmp_lt_u32 s%d, 42' % sA)
a('s_cselect_b32 s%d, 0, 0x%x' % (qINV, INV))
a('s_min_u32 s%d, s%d, 41' % (sA, sA))
a('s_mul_i32 s%d, s%d, 4682' % (qMAT, sA))
a('s_lshr_b32 s%d, s%d, 16' % (qMAT, qMAT))
a('s_mul_i32 s%d, s%d, 14' % (sB, qMAT))
a('s_sub_u32 s%d, s%d, s%d' % (qU, sA, sB))
a('s_mul_i32 s%d, s%d, %d' % (sA, qU, 32 * 2688))
a('s_mul_i32 s%d, s%d, 896' % (sB, qMAT))
a('s_add_u32 s%d, s%d, s%d' % (sA, sA, sB))
a('s_mul_i32 s%d, s%d, 56' % (sB, sC))
a('s_add_u32 s%d, s%d, s%d' % (sA, sA, sB))
a('v_lshrrev_b32 v4, 2, v0')
a('v_mul_u32_u24 v4, 2688, v4')
a('v_and_b32 v5, 3, v0')
a('v_lshl_add_u32 v4, v5, 4, v4')
a('v_or_b32 v4, s%d, v4' % qINV)
a('s_mov_b32 m0, s%d' % sSTG)
a('s_add_u32 s%d, s%d, %d' % (sB, sA, 16 * 2688))
a('buffer_load_dwordx4 v4, %s, s%d offen lds' % (srd(S_TMP), sA))
a('s_add_u32 m0, s%d, 1024' % sSTG)
a('s_nop 0')
a('buffer_load_dwordx4 v4, %s, s%d offen lds' % (srd(S_TMP), sB))

bINV, bDST, bSTR, bINV2, bDST2, sSTRD = 20, 21, 22, 23, 24, 25


def emit_p2_issue():
    a('s_cmp_eq_u32 s%d, 3' % sW)
    a('s_cbranch_scc1 L_p2_w1')
    a('s_lshl_b32 s%d, s%d, 5' % (sA, sW))
    a('s_add_u32 s%d, s%d, s%d' % (sA, sA, sG))
    a('s_cmp_lt_u32 s%d, 72' % sA)
    a('s_cselect_b32 s%d, 0, 0x%x' % (bINV, INV))
    a('s_cmp_eq_u32 s%d, 7' % sJ)
    a('s_cselect_b32 s%d, 0x%x, s%d' % (bINV, INV, bINV))
    a('s_min_u32 s%d, s%d, 71' % (sA, sA))
    a('s_min_u32 s%d, s%d, 6' % (sD, sJ))
    a('s_cmp_lt_u32 s%d, 16' % sA)
    a('s_cselect_b32 s%d, s%d, s%d' % (S_TMP, P_WO, P_W2))
    a('s_cselect_b32 s%d, s%d, s%d' % (S_TMP + 1, P_WO + 1, P_W2 + 1))
    a('s_mov_b32 s%d, 0x%x' % (S_TMP + 2, 1792 * 896))
    a('s_cselect_b32 s%d, 0x%x, s%d' % (S_TMP + 2, 448 * 896, S_TMP + 2))
    a('s_cselect_b32 s%d, 28, 32' % sB)
    a('s_cselect_b32 s%d, 0, 16' % sCc)
    a('s_mov_b32 s%d, %d' % (bSTR, 56 * 1024))
    a('s_cselect_b32 s%d, %d, s%d' % (bSTR, 16 * 1024, bSTR))
    a('s_mov_b32 s%d, %d' % (bDST, L.WD))
    a('s_cselect_b32 s%d, %d, s%d' % (bDST, L.WB, bDST))
    a('s_cselect_b32 s%d, 0x%x, 0' % (sO + 9, INV))
    a('s_and_b32 s%d, s%d, 0xffff' % (S_TMP + 1, S_TMP + 1))
    a('s_mov_b32 s%d, 0x20000' % (S_TMP + 3))
    a('s_sub_u32 s%d, s%d, s%d' % (sA, sA, sCc))
    a('s_lshl_b32 s%d, s%d, 10' % (sCc, sA))
    a('s_add_u32 s%d, s%d, s%d' % (bDST, bDST, sCc))
    a('s_lshl_b32 s%d, s%d, 2' % (sCc, sD))
    a('s_mul_i32 s%d, s%d, s%d' % (sCc, sCc, bSTR))
    a('s_add_u32 s%d, s%d, s%d' % (bDST, bDST, sCc))
    a('s_mul_i32 s%d, s%d, s%d' % (sA, sA, sB))
    a('s_mul_i32 s%d, s%d, 896' % (sA, sA))
    a('s_lshl_b32 s%d, s%d, 7' % (sB, sD))
    a('s_add_u32 s%d, s%d, s%d' % (sO + 10, sA, sB))
    a('s_mov_b32 s%d, 896' % sSTRD)
    a('s_mov_b32 s%d, 0x%x' % (bINV2, INV))
    a('s_mov_b32 s%d, 0' % bDST2)
    a('s_mov_b32 s%d, 0' % (sO + 11))
    a('s_branch L_p2_go')
    a.label('L_p2_w1')
    build_srd(S_TMP, P_W1, 448 * 3584)
    a('s_lshl_b32 s%d, s%d, 4' % (sA, sS))
    a('s_add_u32 s%d, s%d, s%d' % (sA, sA, sC))
    a('s_cmp_lt_u32 s%d, 136' % sA)
    a('s_cselect_b32 s%d, 0, 0x%x' % (bINV2, INV))
    a('s_mov_b32 s%d, 0' % bINV)
    a('s_mov_b32 s%d, 0' % (sO + 9))
    a('s_mov_b32 s%d, %d' % (bSTR, 14 * 1024))
    a('s_mov_b32 s%d, 3584' % sSTRD)
    for dst, src, add in ((bDST, sO + 10, 0), (bDST2, sO + 11, 256)):
        a('s_add_u32 s%d, s%d, %d' % (sB, sA, add))
        a('s_min_u32 s%d, s%d, 391' % (sB, sB))
        a('s_mul_i32 s%d, s%d, 4682' % (sCc, sB))
        a('s_lshr_b32 s%d, s%d, 16' % (sCc, sCc))
        a('s_mul_i32 s%d, s%d, 14' % (sD, sCc))
        a('s_sub_u32 s%d, s%d, s%d' % (sB, sB, sD))
        a('s_mul_i32 s%d, s%d, %d' % (src, sB, 32 * 3584))
        a('s_lshl_b32 s%d, s%d, 7' % (sD, sCc))
        a('s_add_u32 s%d, s%d, s%d' % (src, src, sD))
        a('s_mul_i32 s%d, s%d, 56' % (sD, sCc))
        a('s_add_u32 s%d, s%d, s%d' % (sD, sD, sB))
        a('s_lshl_b32 s%d, s%d, 10' % (sD, sD))
        a('s_add_u32 s%d, s%d, %d' % (dst, sD, L.WC))
    a.label('L_p2_go')
    a('v_lshrrev_b32 v6, 3, v0')
    a('v_mul_lo_u32 v6, v6, s%d' % sSTRD)
    a('v_and_b32 v5, 7, v0')
    a('v_lshl_add_u32 v6, v5, 4, v6')
    a('v_or_b32 v8, s%d, v6' % bINV2)
    a('v_or_b32 v6, s%d, v6' % bINV)
    a('v_cmp_lt_u32 vcc, 31, v0')
    a('v_mov_b32 v7, s%d' % (sO + 9))
    a('v_cndmask_b32 v7, 0, v7, vcc')
    a('v_or_b32 v7, v7, v6')
    a('s_lshl_b32 s%d, s%d, 3' % (sB, sSTRD))
    for slot in range(2):
        src = sO + 10 + slot
        for q in range(4):
            a('s_add_u32 m0, s%d, %d' % (sSTG, 2048 + 4096 * slot + 1024 * q))
            if q:
                a('s_add_u32 s%d, s%d, s%d' % (src, src, sB))
            else:
                a('s_nop 0')
            a('buffer_load_dwordx4 v%d, %s, s%d offen lds' % (8 if slot else (7 if q == 3 else 6), srd(S_TMP), src))


if P2EARLY:
    emit_p2_issue()
build_srd(S_B1, P_B1, 1792 * 2)
build_srd(S_OUT, P_OUT, 2048 * 896)
a('v_bfe_u32 v18, v0, 2, 2')
a('v_lshl_add_u32 v18, v%d, 2, v18' % V_G)
a('v_and_b32 v19, 3, v0')
a('v_lshlrev_b32 v19, 3, v19')
if TOUCH:
    a('v_lshlrev_b32 v21, 21, v0')
    a('s_mov_b64 exec, 0x1ffff')
    a('buffer_load_dword v253, v21, %s, 0 offen' % srd(S_WS))
    a('s_mov_b64 exec, -1')
    a('s_waitcnt vmcnt(%d)' % (9 if P2EARLY else 1))
else:
    a('s_waitcnt vmcnt(%d)' % (8 if P2EARLY else 0))
stamp()

a('s_mov_b32 s%d, 0x9E3779B1' % sA)
a('v_mul_lo_u32 v%d, v%d, s%d' % (V_T, V_T, sA))
a('v_add_u32 v%d, 0x7F4A7C15, v%d' % (V_T, V_T))
a('v_and_b32 v%d, -16, v%d' % (V_T, V_T))
a('v_lshl_add_u32 v20, v18, 6, v19')
a('v_add_u32 v20, s%d, v20' % sSTG)
for hf in range(2):
    a('ds_read_b64_tr_b16 %s, v20 offset:%d' % (vr(24 + 4 * hf, 2), 32 * hf))
    a('ds_read_b64_tr_b16 %s, v20 offset:%d' % (vr(26 + 4 * hf, 2), 32 * hf + 1024))
a('v_readfirstlane_b32 s%d, v%d' % (sT, V_T))
a('s_mul_i32 s%d, s%d, 14' % (sA, sO + 0))
a('s_add_u32 s%d, s%d, s%d' % (sA, sA, sO + 1))
a('s_lshl_b32 s%d, s%d, 10' % (sB, sA))
a('s_add_u32 s%d, s%d, %d' % (sB, sB, L.XA[0]))
a('v_or_b32 v3, s%d, v1' % (sO + 2))
a('buffer_store_dwordx4 v[10:13], v1, %s, s%d offen sc1' % (srd(S_WS), sB))
a('s_add_u32 s%d, s%d, 4096' % (sB, sB))
a('buffer_store_dwordx4 v[14:17], v3, %s, s%d offen sc1' % (srd(S_WS), sB))
a('v_cmp_gt_u32 vcc, 12, v%d' % V_TOK)
a('s_mul_i32 s%d, s%d, 84' % (sB, sC))
a('s_mul_i32 s%d, s%d, 28' % (sCc, qMAT))
a('s_add_u32 s%d, s%d, s%d' % (sB, sB, sCc))
a('s_add_u32 s%d, s%d, s%d' % (sB, sB, qU))
a('s_lshl_b32 s%d, s%d, 10' % (sB, sB))
a('s_add_u32 s%d, s%d, %d' % (sB, sB, L.WA))
a('v_or_b32 v4, s%d, v1' % qINV)
a('s_waitcnt lgkmcnt(0)')
for p in range(4):
    a('v_cndmask_b32 v%d, 0, v%d, vcc' % (28 + p, 28 + p))
a('buffer_store_dwordx4 v[24:27], v4, %s, s%d offen sc1' % (srd(S_WS), sB))
a('s_add_u32 s%d, s%d, %d' % (sB, sB, 14 * 1024))
a('buffer_store_dwordx4 v[28:31], v4, %s, s%d offen sc1' % (srd(S_WS), sB))
a('v_mov_b32 v2, 0x3f803f80')
for k in range(2):
    x, s1, s2 = 10 + 4 * k, 110 + 2 * k, 111 + 2 * k
    a('v_mov_b32 v%d, 0' % s1)
    a('v_mov_b32 v%d, 0' % s2)
    for p in range(4):
        a('v_dot2_f32_bf16 v%d, v%d, v2, v%d' % (s1, x + p, s1))
        a('v_dot2_f32_bf16 v%d, v%d, v%d, v%d' % (s2, x + p, x + p, s2))
    for t in xg_reduce(s1, 114) + xg_reduce(s2, 115):
        a(t)
a('s_lshl_b32 s%d, s%d, 7' % (sB, sA))
a('s_add_u32 s%d, s%d, %d' % (sB, sB, L.SA[0]))
a('v_lshlrev_b32 v2, 3, v%d' % V_TOK)
a('v_or_b32 v3, s%d, v2' % (sO + 2))
a('s_mov_b64 exec, 0xffff')
a('buffer_store_dwordx2 v[110:111], v2, %s, s%d offen sc1' % (srd(S_WS), sB))
a('buffer_store_dwordx2 v[112:113], v3, %s, s%d offen offset:512 sc1' % (srd(S_WS), sB))
a('s_mov_b64 exec, -1')
crit_mark = a.vm_mark()
if not P2EARLY:
    emit_p2_issue()
a('s_lshl_b32 s%d, s%d, 5' % (sA, sO + 0))
a('s_add_u32 s%d, s%d, s%d' % (sA, sA, sO + 1))
a('s_lshl_b32 s%d, s%d, 2' % (sA, sA))
a('s_add_u32 s%d, s%d, %d' % (sA, sA, L.FX[0]))
a('v_lshlrev_b32 v2, 4, v0')
a('v_add_u32 v2, s%d, v2' % sA)
a('v_cmp_eq_u32 vcc, 1, v0')
a('v_mov_b32 v3, s%d' % (sO + 2))
a('v_cndmask_b32 v3, 0, v3, vcc')
a('v_or_b32 v2, v2, v3')
a('s_lshl_b32 s%d, s%d, 6' % (sA, sC))
a('s_lshl_b32 s%d, s%d, 2' % (sB, sS))
a('s_add_u32 s%d, s%d, s%d' % (sA, sA, sB))
a('s_add_u32 s%d, s%d, s%d' % (sA, sA, sW))
a('s_lshl_b32 s%d, s%d, 2' % (sA, sA))
a('s_add_u32 s%d, s%d, %d' % (sA, sA, L.FQ))
a('v_mov_b32 v3, s%d' % sA)
a('v_cmp_eq_u32 vcc, 2, v0')
a('v_cndmask_b32 v2, v2, v3, vcc')
a('s_lshl_b32 s%d, s%d, 4' % (sA, sS))
a('s_add_u32 s%d, s%d, s%d' % (sA, sA, sC))
a('s_lshl_b32 s%d, s%d, 2' % (sA, sA))
a('s_add_u32 s%d, s%d, %d' % (sA, sA, L.FXC))
a('s_cmp_eq_u32 s%d, 0' % sW)
a('s_cselect_b32 s%d, s%d, 0x%x' % (sA, sA, INV))
a('v_mov_b32 v3, s%d' % sA)
a('v_cmp_eq_u32 vcc, 3, v0')
a('v_cndmask_b32 v2, v2, v3, vcc')
a('v_or_b32 v3, s%d, v%d' % (sXCC, V_T))
a('v_cndmask_b32 v3, v%d, v3, vcc' % V_T)
stamp2()
a.wait_vm(crit_mark)
a('s_mov_b64 exec, 15')
a('buffer_store_dword v3, v2, %s, 0 offen sc1' % srd(S_WS))
a('s_mov_b64 exec, -1')
stamp()

skew_store(1)
a('s_waitcnt vmcnt(1)')
a('v_lshl_add_u32 v20, v18, 7, v19')
a('v_add_u32 v20, s%d, v20' % sSTG)
for slot in range(2):
    for t in range(4):
        a('ds_read_b64_tr_b16 %s, v20 offset:%d' % (vr(24 + 16 * slot + 4 * t, 2), 2048 + 4096 * slot + 32 * t))
        a('ds_read_b64_tr_b16 %s, v20 offset:%d' % (vr(26 + 16 * slot + 4 * t, 2), 2048 + 4096 * slot + 32 * t + 2048))
a('v_or_b32 v6, s%d, v1' % bINV)
a('v_or_b32 v8, s%d, v1' % bINV2)
a('s_waitcnt lgkmcnt(8)')
for t in range(4):
    a('buffer_store_dwordx4 %s, v6, %s, s%d offen sc1' % (vr(24 + 4 * t), srd(S_WS), bDST))
    if t < 3:
        a('s_add_u32 s%d, s%d, s%d' % (bDST, bDST, bSTR))
a('s_waitcnt lgkmcnt(0)')
for t in range(4):
    a('buffer_store_dwordx4 %s, v8, %s, s%d offen sc1' % (vr(40 + 4 * t), srd(S_WS), bDST2))
    if t < 3:
        a('s_add_u32 s%d, s%d, s%d' % (bDST2, bDST2, bSTR))
a('s_lshl_b32 s%d, s%d, 4' % (sA, sS))
a('s_add_u32 s%d, s%d, s%d' % (sA, sA, sC))
a('s_lshl_b32 s%d, s%d, 2' % (sA, sA))
a('s_add_u32 s%d, s%d, %d' % (sA, sA, L.FW1))
a('v_lshlrev_b32 v22, 10, v0')
a('v_add_u32 v22, s%d, v22' % sA)
a('v_cmp_eq_u32 vcc, 1, v0')
a('v_mov_b32 v23, s%d' % bINV2)
a('v_cndmask_b32 v23, 0, v23, vcc')
a('v_or_b32 v22, v22, v23')
a('s_cmp_eq_u32 s%d, 3' % sW)
a('s_cselect_b32 s%d, 0, 0x%x' % (sA, INV))
a('v_or_b32 v22, s%d, v22' % sA)

skew_store(3)
a('v_and_b32 v2, 1, v%d' % V_TOK)
a('v_lshlrev_b32 v3, 2, v%d' % V_G)
a('v_add_u32 v6, 2, v%d' % V_TOK)
for i in range(4):
    a('v_add_u32 v4, %d, v3' % i)
    a('v_cmp_eq_u32 vcc, %d, v2' % (i & 1))
    a('s_mov_b64 %s, vcc' % sp(sMK))
    a('v_cmp_ge_u32 vcc, v4, v6')
    a('s_and_b64 %s, vcc, %s' % (sp(sM1 + 2 * i), sp(sMK)))
    a('v_cmp_le_u32 vcc, v4, v%d' % V_TOK)
    a('s_and_b64 %s, vcc, %s' % (sp(sM2 + 2 * i), sp(sMK)))
a('s_lshl_b32 s%d, s%d, 3' % (sA, sS))
a('s_lshl_b32 s%d, s%d, 1' % (sB, sW))
a('s_add_u32 s%d, s%d, s%d' % (sGT, sA, sB))
a('s_cmp_eq_u32 s%d, 0' % sGT)
for i in range(4):
    a('s_cselect_b64 %s, 0, %s' % (sp(sM0 + 2 * i), sp(sM1 + 2 * i)))
a('s_mov_b32 s%d, 0' % sPAIR)

def a_flag_addr(dst):
    pair_base(sA, L.FX)
    a('s_lshl_b32 s%d, s%d, 7' % (sB, sGT))
    a('s_add_u32 s%d, s%d, s%d' % (sA, sA, sB))
    a('s_sub_u32 s%d, s%d, 128' % (sA, sA))
    a('v_and_b32 v%d, 48, v0' % dst)
    a('v_add_u32 v%d, v%d, v0' % (dst, dst))
    a('v_lshl_add_u32 v%d, v%d, 2, s%d' % (dst, dst, sA))
    a('s_mov_b32 s%d, 0x3fff3fff' % sMK)
    a('s_mov_b32 s%d, 0x3fff' % (sMK + 1))
    a('s_cmp_eq_u32 s%d, 0' % sGT)
    a('s_cselect_b32 s%d, 0x3fff0000, s%d' % (sMK, sMK))


a('s_lshl_b32 s%d, s%d, 8' % (sA, sC))
a('s_add_u32 s%d, s%d, %d' % (sA, sA, L.FQ))
a('v_lshl_add_u32 v2, v0, 2, s%d' % sA)
a_flag_addr(3)
a('s_lshl_b32 s%d, s%d, 6' % (sA, sS))
a('s_add_u32 s%d, s%d, %d' % (sA, sA, L.FXC - 48 * 4))
a('v_lshl_add_u32 v4, v0, 2, s%d' % sA)
a('v_cmp_lt_u32 vcc, 47, v0')
a('v_cndmask_b32 v3, v3, v4, vcc')
a('v_mov_b32 v5, -1')
a('v_mov_b32 v6, -16')
a('v_cndmask_b32 v5, v5, v6, vcc')
a('s_or_b32 s%d, s%d, 0xffff0000' % (sMK + 1, sMK + 1))
a('s_mov_b32 s%d, 0' % sSPIN)
a.label('L_poll0')
a('buffer_load_dword v7, v2, %s, 0 offen sc1' % srd(S_WS))
a('s_mov_b64 exec, %s' % sp(sMK))
a('buffer_load_dword v8, v3, %s, 0 offen sc1' % srd(S_WS))
a('s_waitcnt vmcnt(0)')
a('v_and_b32 v9, v5, v8')
a('v_cmp_ne_u32 vcc, s%d, v9' % sT)
a('s_mov_b64 exec, -1')
a('s_mov_b64 %s, vcc' % sp(sTS))
a('v_cmp_ne_u32 vcc, s%d, v7' % sT)
a('s_or_b64 vcc, vcc, %s' % sp(sTS))
a('s_cbranch_vccz L_poll0_done')
a('s_add_u32 s%d, s%d, 1' % (sSPIN, sSPIN))
a('s_cmp_lt_u32 s%d, %d' % (sSPIN, SPIN_LIMIT))
a('s_cbranch_scc1 L_poll0')
a('s_add_u32 s%d, s%d, 1' % (sERR, sERR))
a.label('L_poll0_done')
a('s_mov_b64 exec, 3')
a('buffer_store_dword v%d, v22, %s, 0 offen sc1' % (V_T, srd(S_WS)))
a('s_mov_b64 exec, -1')
skew_store(2)
a('v_and_b32 v9, 15, v8')
a('v_cmp_ne_u32 vcc, s%d, v9' % sXCC)
a('s_and_b32 s%d, vcc_hi, 0xffff0000' % sA)
a('s_cmp_eq_u32 s%d, 0' % sA)
a('s_cselect_b32 s%d, 1, 0' % sFAST)
stamp()
AQ, AK, AV, HACC = 2, 18, 34, 50
WBUF = [66, 90]
XR = 114
CSACC = 186
STR = 210
SM, SR = 234, 237
NR, LOOK = 6, 4
A_ONES = 240


def a_xload(u):
    slot = u % NR
    return ['buffer_load_dwordx4 %s, v1, %s, s%d offen offset:%d sc1' %
            (vr(XR + (slot * 2 + t) * 4), srd(S_WS), sO + 4 * (t + 1) + (u >> 2), 1024 * (u & 3)) for t in range(2)]


def a_offsets():
    pair_base(sA, L.XA)
    a('s_mul_i32 s%d, s%d, 14336' % (sB, sGT))
    a('s_add_u32 s%d, s%d, s%d' % (sO + 4, sA, sB))
    a('s_add_u32 s%d, s%d, 14336' % (sO + 8, sO + 4))
    for t in range(1, 3):
        for q in range(1, 4):
            a('s_add_u32 s%d, s%d, %d' % (sO + 4 * t + q, sO + 4 * t, 4096 * q))
    a('s_lshl_b32 s%d, s%d, 3' % (sB, sS))
    a('s_max_u32 s%d, s%d, 1' % (sB, sB))
    a('s_sub_u32 s%d, s%d, 1' % (sB, sB))
    a('s_mul_i32 s%d, s%d, 14336' % (sB, sB))
    a('s_add_u32 s%d, s%d, s%d' % (sO + 0, sA, sB))
    a('s_lshl_b32 s%d, s%d, 12' % (sB, sW))
    a('s_add_u32 s%d, s%d, s%d' % (sO + 0, sO + 0, sB))
    a('s_add_u32 s%d, s%d, %d' % (sO + 1, sB, L.L_R2))


def a_setup():
    if FASTMODE == 'flags':
        a('s_mov_b32 s%d, 0' % sFD)
        a('s_mov_b32 s%d, 0' % sFH)
    elif FASTMODE == 'p0':
        a('s_xor_b32 s%d, s%d, 1' % (sFD, sPAIR))
        a('s_and_b32 s%d, s%d, s%d' % (sFD, sFD, sFAST))
        a('s_mov_b32 s%d, s%d' % (sFH, sFD))
    elif FASTMODE == 'small':
        a('s_mov_b32 s%d, s%d' % (sFD, sFAST))
        a('s_mov_b32 s%d, 0' % sFH)
    elif FASTMODE == 'smallp0':
        a('s_mov_b32 s%d, s%d' % (sFD, sFAST))
        a('s_xor_b32 s%d, s%d, 1' % (sFH, sPAIR))
        a('s_and_b32 s%d, s%d, s%d' % (sFH, sFH, sFAST))
    else:
        a('s_mov_b32 s%d, s%d' % (sFD, sFAST))
        a('s_mov_b32 s%d, s%d' % (sFH, sFAST))
    pair_base(sA, L.SA)
    a('s_mul_i32 s%d, s%d, 1792' % (sB, sGT))
    a('s_add_u32 s%d, s%d, s%d' % (sO + 13, sA, sB))
    a('s_add_u32 s%d, s%d, 1792' % (sO + 14, sO + 13))
    a('s_sub_u32 s%d, s%d, 1792' % (sO + 12, sO + 13))
    a('s_cmp_eq_u32 s%d, 0' % sGT)
    a('s_cselect_b32 s%d, s%d, s%d' % (sO + 12, sO + 13, sO + 12))
    a('v_and_b32 v%d, 15, v0' % V_TOK)
    a('v_lshrrev_b32 v%d, 4, v0' % V_G)
    a('v_lshlrev_b32 v240, 3, v%d' % V_TOK)
    a('v_lshl_add_u32 v240, v%d, 7, v240' % V_G)
    a('v_mov_b32 v242, 0x%x' % INV)
    a('v_cmp_lt_u32 vcc, 1, v%d' % V_G)
    a('v_cndmask_b32 v241, 0, v242, vcc')
    a('v_or_b32 v241, v241, v240')
    a('v_add_u32 v243, %d, v1' % (56 * 1024))
    a('v_lshlrev_b32 v244, 4, v%d' % V_G)
    a('v_add_u32 v244, %d, v244' % L.L_CSA)
    a('v_lshlrev_b32 v245, 2, v%d' % V_TOK)
    a('v_add_u32 v245, %d, v245' % L.L_CSA)
    a('s_lshl_b32 s%d, s%d, 7' % (sA, sJ))
    a('s_add_u32 s%d, s%d, %d' % (sA, sA, L.FP))
    a('v_lshl_add_u32 v248, v0, 2, s%d' % sA)
    a('s_lshr_b32 s%d, s%d, 1' % (sB, sW))
    a('s_lshl_b32 s%d, s%d, 2' % (sCc, sG))
    a('s_add_u32 s%d, s%d, s%d' % (sB, sB, sCc))
    a('s_lshl_b32 s%d, s%d, 5' % (sB, sB))
    a('s_and_b32 s%d, s%d, 1' % (sA, sW))
    a('s_add_u32 s%d, s%d, s%d' % (sB, sB, sA))
    a('s_min_u32 s%d, s%d, 6' % (sA, sJ))
    a('s_lshl_b32 s%d, s%d, 1' % (sA, sA))
    a('s_add_u32 s%d, s%d, s%d' % (sB, sB, sA))
    a('s_lshl_b32 s%d, s%d, 2' % (sB, sB))
    a('s_add_u32 s%d, s%d, %d' % (sB, sB, L.FX[0] - 32 * 256))
    a('v_lshl_add_u32 v249, v0, 8, s%d' % sB)
    a('v_cmp_lt_u32 vcc, 31, v0')
    a('v_cndmask_b32 v248, v248, v249, vcc')
    a('s_lshr_b32 s%d, s%d, 3' % (sA, sC))
    a('s_mul_i32 s%d, s%d, 7' % (sA, sA))
    a('s_min_u32 s%d, s%d, 6' % (sB, sJ))
    a('s_add_u32 s%d, s%d, s%d' % (sA, sA, sB))
    a('s_mul_i32 s%d, s%d, 112' % (sA, sA))
    a('s_add_u32 s%d, s%d, %d' % (sA, sA, L.FW1 - 34 * 4))
    a('v_lshl_add_u32 v249, v0, 2, s%d' % sA)
    a('v_cmp_lt_u32 vcc, 33, v0')
    a('v_cndmask_b32 v248, v248, v249, vcc')
    a('s_lshl_b32 s%d, s%d, 7' % (sA, sS))
    a('s_add_u32 s%d, s%d, %d' % (sA, sA, L.FH))
    a('v_and_b32 v247, 15, v0')
    a('v_lshl_add_u32 v247, v247, 2, s%d' % sA)
    a('s_lshl_b32 s%d, s%d, 7' % (sB, sGT))
    a('s_add_u32 s%d, s%d, %d' % (sB, sB, L.FX[1] - 128))
    a('v_lshl_add_u32 v253, v0, 2, s%d' % sB)
    a('s_cmp_eq_u32 s%d, 0' % sW)
    a('s_cselect_b32 s%d, 0, 16' % sA)
    a('v_cmp_gt_u32 vcc, s%d, v0' % sA)
    a('v_cndmask_b32 v247, v247, v253, vcc')
    a('s_mov_b32 s%d, 0x3fff3fff' % sMK2)
    a('s_mov_b32 s%d, 0' % (sMK2 + 1))
    a('s_cmp_eq_u32 s%d, 0' % sS)
    a('s_cselect_b32 s%d, 0x3fff, s%d' % (sMK2, sMK2))
    a('v_and_b32 v253, 15, v0')
    a('v_lshlrev_b32 v253, 2, v253')
    a('v_add_u32 v253, %d, v253' % L.FX[1])
    a('s_cmp_eq_u32 s%d, 0' % sGT)
    a('s_cselect_b64 vcc, -1, 0')
    a('v_cndmask_b32 v247, v247, v253, vcc')


stat_loads = ['buffer_load_dwordx2 %s, v%d, %s, s%d offen offset:%d sc1' %
              (vr(STR + (t * 4 + i) * 2, 2), 241 if i == 3 else 240, srd(S_WS), sO + 12 + t, 512 * i)
              for t in range(3) for i in range(4)]


def a_wread(u):
    b = WBUF[u & 1]
    o = []
    for p in range(6):
        if p < 4:
            o.append('ds_read_b128 %s, v1 offset:%d' % (vr(b + 4 * p), L.L_WA + (p * 14 + u) * 1024))
        else:
            o.append('ds_read_b128 %s, v243 offset:%d' % (vr(b + 4 * p), L.L_WA + ((p - 4) * 14 + u) * 1024))
    return o


stat_fill = []
for t in range(3):
    r = STR + 8 * t
    for c_ in range(2):
        stat_fill += ['v_add_f32 v%d, v%d, v%d' % (r + c_, r + c_, r + 2 + c_),
                      'v_add_f32 v%d, v%d, v%d' % (r + 4 + c_, r + 4 + c_, r + 6 + c_),
                      'v_add_f32 v%d, v%d, v%d' % (r + c_, r + c_, r + 4 + c_)]
    stat_fill += xg_reduce(r, r + 2) + xg_reduce(r + 1, r + 3)
    stat_fill += stats_finish(r, r + 1, r + 2, False)
    stat_fill += ['v_mov_b32 v%d, v%d' % (SM + t, r), 'v_mov_b32 v%d, v%d' % (SR + t, r + 1)]

sWA = [20, 21, 22]
sWAG = 23


def wa_dma(pr, i):
    def f():
        a('s_add_u32 m0, s%d, %d' % (sWA[i], L.L_WA + 2048 * pr))
        a('s_add_u32 s%d, s%d, s%d' % (sD, sWA[i], sWAG))
        if pr:
            a('s_add_u32 s%d, s%d, %d' % (sD, sD, 2048 * pr))
        a('buffer_load_dwordx4 v1, %s, s%d offen sc1 lds' % (srd(S_WS), sD))
    return f


amark = {}


def emit_a_loop(first, xmark, wam):
    ep_mark = es_mark = st_mark = None
    for t in a_wread(0):
        a(t)
    for u in range(14):
        need = xmark[u]
        if u == 11:
            need = max(need, st_mark)
        a.wait_vm(need)
        if not first and u == 6:
            early_check(246, 247, es_mark)
            a('s_nop 0')
        if u == 11:
            a('s_mov_b32 s%d, -1' % sMK2)
            a('s_mov_b32 s%d, 0x3fffffff' % (sMK2 + 1))
        a('s_waitcnt lgkmcnt(0)')
        wb = WBUF[u & 1]
        xs = XR + (u % NR) * 8
        mf = []
        cz = (lambda r: '0') if u == 0 else (lambda r: vr(r))
        for t in range(2):
            for hf in range(2):
                r = AQ + (t * 2 + hf) * 4
                mf.append('%s %s, %s, %s, %s' % (MFMA, vr(r), vr(wb + 4 * hf), vr(xs + 4 * t), cz(r)))
        for t in range(2):
            for hf in range(2):
                r = AK + (t * 2 + hf) * 4
                mf.append('%s %s, %s, %s, %s' % (MFMA, vr(r), vr(wb + 8 + 4 * hf), vr(xs + 4 * t), cz(r)))
        for t in range(2):
            for hf in range(2):
                r = AV + (t * 2 + hf) * 4
                mf.append('%s %s, %s, %s, %s' % (MFMA, vr(r), vr(xs + 4 * t), vr(wb + 16 + 4 * hf), cz(r)))
        if first:
            mf.append('%s %s, %s, %s, %s' % (MFMA, vr(CSACC + 8), vr(CSACC), ar(A_ONES), cz(CSACC + 8)))
            mf.append('%s %s, %s, %s, %s' % (MFMA, vr(CSACC + 12), ar(A_ONES), vr(CSACC + 4), cz(CSACC + 12)))
        mem = {}

        def put(k, x):
            mem.setdefault(k, []).append(x)
        nm = len(mf)
        off = 0
        if first:
            a('ds_read_b128 %s, v252 offset:%d' % (vr(CSACC), 1024 * u))
            a('ds_read_b128 %s, v242 offset:%d' % (vr(CSACC + 4), 1024 * u))
            put(11, 's_waitcnt lgkmcnt(%d)' % (6 if u < 13 else 0))
        if first and u % 2 == 1 and u < 13:
            put(2, ('bar', (u + 1) // 2))
            off = 3
        if u < 13:
            for k, x in enumerate(a_wread(u + 1)):
                put(off + k, x)
        elif not first:
            for p in range(4):
                put(p, 'ds_read_b128 %s, v244 offset:%d' % (vr(WBUF[0] + 4 * p), 64 * p))
            for d in range(2):
                put(4 + d, 'ds_read_b32 v%d, v245 offset:%d' % (WBUF[0] + 16 + d, 64 * (4 + d)))
        if first and u < 2:
            for j_, uu in enumerate((2 * u + 2, 2 * u + 3)):
                for k, x in zip((6, 8), a_xload(uu)):
                    put(k + 4 * j_, x)
                put(8 + 4 * j_, ('xm', uu))
            if u == 0:
                for i, k in enumerate((7, 9, 11)):
                    put(k, ('wa', 2, i))
        elif u + LOOK < 14:
            for k, x in zip((6, 9), a_xload(u + LOOK)):
                put(k, x)
            put(9, ('xm', u + LOOK))
        if first and u % 2 == 0 and u // 2 + 3 <= 6:
            for i, k in enumerate((12, 13, 13) if u == 0 else (7, 10, 12)):
                put(k, ('wa', u // 2 + 3, i))
        order = list(range(4, 12)) + list(range(0, 4))
        if 2 <= u < 6:
            for k, x in zip((8, 11), order[2 * (u - 2):2 * (u - 2) + 2]):
                put(k, stat_loads[x])
        if not first and u == 3:
            put(7, ('estat',))
        if u in (7, 8):
            for k, x in zip((8, 11), order[8 + 2 * (u - 7):8 + 2 * (u - 7) + 2]):
                put(k, stat_loads[x])
            if u == 8:
                put(11, ('st',))
        if u == 6:
            put(10, 's_mov_b32 m0, s%d' % (sO + 1))
            for i, k in enumerate((10, 10, 11, 11)):
                put(k, 'buffer_load_dwordx4 v1, %s, s%d offen offset:%d sc1 lds' % (srd(S_WS), sO + 0, 1024 * i))
            put(11, ('hm',))
        if u == 13:
            put(8, ('early',))
        fill = stat_fill[(u - 11) * 22:(u - 10) * 22] if u >= 11 else []
        fi = 0
        for k, m in enumerate(mf):
            a(m)
            for it in mem.get(k, []):
                if isinstance(it, str):
                    a(it)
                elif it[0] == 'early':
                    ep_mark = early_issue(249, 248)
                elif it[0] == 'estat':
                    es_mark = early_issue(246, 247)
                elif it[0] == 'xm':
                    xmark[it[1]] = a.vm_mark()
                elif it[0] == 'st':
                    st_mark = a.vm_mark()
                elif it[0] == 'hm':
                    amark['halo'] = a.vm_mark()
                elif it[0] == 'bar':
                    a.wait_vm(wam[it[1]])
                    a('s_barrier')
                elif it[0] == 'wa':
                    wa_dma(it[1], it[2])()
                    wam[it[1]] = a.vm_mark()
            for _ in range(2):
                if fi < len(fill) and k >= 1:
                    a(fill[fi])
                    fi += 1
        assert fi == len(fill), (u, fi, len(fill))
    amark['ep'] = ep_mark


for p in range(4):
    a('v_mov_b32 v4, 0x3f803f80')
    a('v_accvgpr_write_b32 a%d, v4' % (A_ONES + p))
a('s_mul_i32 s%d, s%d, 14336' % (sWA[0], sW))
a('s_add_u32 s%d, s%d, 4' % (sA, sW))
a('s_mul_i32 s%d, s%d, 14336' % (sA, sA))
a('s_sub_u32 s%d, s%d, 2' % (sB, sW))
a('s_mul_i32 s%d, s%d, 14336' % (sB, sB))
a('s_add_u32 s%d, s%d, 1024' % (sB, sB))
a('s_cmp_lt_u32 s%d, 2' % sW)
a('s_cselect_b32 s%d, s%d, s%d' % (sWA[1], sA, sB))
a('s_add_u32 s%d, s%d, 2' % (sA, sW))
a('s_mul_i32 s%d, s%d, 14336' % (sA, sA))
a('s_add_u32 s%d, s%d, 1024' % (sWA[2], sA))
a('s_mul_i32 s%d, s%d, %d' % (sWAG, sC, 84 * 1024))
a('s_add_u32 s%d, s%d, %d' % (sWAG, sWAG, L.WA))
a_offsets()
xm0, wam0 = {}, {}


def wa_pair(pr):
    for i in range(3):
        wa_dma(pr, i)()
    wam0[pr] = a.vm_mark()


wa_pair(0)
for u in range(2):
    for t in a_xload(u):
        a(t)
    xm0[u] = a.vm_mark()
wa_pair(1)
a_setup()
a('s_mul_i32 s%d, s%d, 14336' % (sA, sW))
a('v_add_u32 v252, s%d, v1' % sA)
a('s_and_b32 s%d, s%d, 1' % (sA, sW))
a('s_mul_i32 s%d, s%d, 14336' % (sA, sA))
a('v_add_u32 v242, s%d, v243' % sA)
a.wait_vm(wam0[0])
a('s_barrier')
a('s_lshl_b32 s%d, s%d, 5' % (sA, sJ))
a('s_add_u32 s%d, s%d, s%d' % (sA, sA, sG))
a('s_lshl_b32 s%d, s%d, 2' % (sA, sA))
a('s_add_u32 s%d, s%d, %d' % (sA, sA, L.FP))
a('s_cmp_eq_u32 s%d, 0' % sW)
a('s_cselect_b32 s%d, s%d, 0x%x' % (sA, sA, INV))
a('v_mov_b32 v2, s%d' % sA)
a('s_mov_b64 exec, 1')
a('buffer_store_dword v%d, v2, %s, 0 offen sc1' % (V_T, srd(S_WS)))
a.vm_issued -= 1
a('s_mov_b64 exec, -1')
stamp()
emit_a_loop(True, xm0, wam0)
n_join = a.vm_issued - amark['ep']
CSQ = WBUF[0]
a('v_cmp_eq_u32 vcc, 0, v%d' % V_TOK)
a('s_lshl_b32 s%d, s%d, 6' % (sA, sW))
a('v_add_u32 v252, s%d, v244' % sA)
a('s_and_b32 s%d, s%d, 1' % (sA, sW))
a('s_lshl_b32 s%d, s%d, 6' % (sA, sA))
a('v_add_u32 v242, s%d, v245' % sA)
a('s_mov_b64 exec, vcc')
a('ds_write_b128 v252, %s' % vr(CSACC + 8))
a('s_mov_b64 exec, 0xffff')
a('ds_write_b32 v242, v%d offset:256' % (CSACC + 12))
a('s_mov_b64 exec, -1')
a('s_waitcnt lgkmcnt(0)')
a('s_barrier')
for p in range(4):
    a('ds_read_b128 %s, v244 offset:%d' % (vr(WBUF[0] + 4 * p), 64 * p))
for d in range(2):
    a('ds_read_b32 v%d, v245 offset:%d' % (WBUF[0] + 16 + d, 64 * (4 + d)))
a('s_branch L_a_epi')

a.label('L_pair')
a_flag_addr(2)
a('s_mov_b32 s%d, 0x3fff0000' % sMK)
ASLEEP = int(([x[9:] for x in sys.argv if x.startswith('--asleep=')] + ['0'])[0])
poll(2, None, ASLEEP)
stamp()
a_offsets()
xmark = {}
for u in range(LOOK):
    for t in a_xload(u):
        a(t)
    xmark[u] = a.vm_mark()
a_setup()
emit_a_loop(False, xmark, None)
assert a.vm_issued - amark['ep'] == n_join
ep_mark = amark['ep']
a.label('L_a_epi')
stamp()
a('s_add_u32 s%d, s%d, 2' % (sA, sW))
a('s_mul_i32 s%d, s%d, 14336' % (sA, sA))
a('v_add_u32 v246, s%d, v1' % sA)
a('v_add_u32 v247, %d, v1' % L.L_R2)
a('s_cmp_lt_u32 s%d, 2' % sW)
a('s_cselect_b64 vcc, -1, 0')
a('v_cndmask_b32 v252, v247, v246, vcc')
a('v_cndmask_b32 v253, v246, v247, vcc')
a.wait_vm(amark['halo'])
a('s_barrier')
HOP = 90
def h_reads(u):
    r = HOP + 8 * (u % 3)
    return ['ds_read_b128 %s, v252 offset:%d' % (vr(r), 1024 * u), 'ds_read_b128 %s, v253 offset:%d' % (vr(r + 4), 1024 * u)]
for u in range(2):
    for x in h_reads(u):
        a(x)
rest = stat_fill[66:]
for u in range(14):
    if u + 2 < 14:
        for x in h_reads(u + 2):
            a(x)
    a('s_waitcnt lgkmcnt(%d)' % (4 if u < 12 else (2 if u == 12 else 0)))
    r = HOP + 8 * (u % 3)
    a('%s %s, %s, %s, %s' % (MFMA, vr(HACC), vr(r), vr(r + 4), '0' if u == 0 else vr(HACC)))
    if rest:
        a(rest.pop(0))
for x in rest:
    a(x)
stamp2()
early_check(249, 248, ep_mark)
BW = 2
a('s_lshl_b32 s%d, s%d, 6' % (sA, sJ))
a('s_lshl_b32 s%d, s%d, 2' % (sB, sW))
a('s_add_u32 s%d, s%d, s%d' % (sA, sA, sB))
a('s_lshl_b32 s%d, s%d, 10' % (sA, sA))
a('s_add_u32 s20, s%d, %d' % (sA, L.WB))
for t in range(1, 4):
    a('s_add_u32 s%d, s20, %d' % (20 + t, 16 * 1024 * t))
wb_all = ['buffer_load_dwordx4 %s, v1, %s, s%d offen offset:%d sc1' % (vr(BW + (i * 4 + t) * 4), srd(S_WS), 20 + t, 1024 * i)
          for i in range(4) for t in range(4)]
for x in wb_all[13:16]:
    a(x)
wb_loads = wb_all[8:13]
A_RES, A_B2 = 224, 232


def red_addrs():
    a('s_lshl_b32 s%d, s%d, 13' % (sA, sW))
    a('s_add_u32 s%d, s%d, %d' % (sA, sA, L.L_R2))
    a('v_add_u32 v248, s%d, v1' % sA)
    a('s_and_b32 s%d, s%d, 1' % (sA, sW))
    a('s_lshl_b32 s%d, s%d, 11' % (sA, sA))
    a('s_lshr_b32 s%d, s%d, 1' % (sB, sW))
    a('s_lshl_b32 s%d, s%d, 12' % (sB, sB))
    a('s_add_u32 s%d, s%d, s%d' % (sA, sA, sB))
    a('s_add_u32 s%d, s%d, %d' % (sA, sA, L.L_R2))
    a('v_add_u32 v249, s%d, v1' % sA)


def publish_setup(xbase, sbase, fbase, per_pair, fsh):
    owner_index()
    a('s_mul_i32 s%d, s%d, 14' % (sCc, sB))
    a('s_add_u32 s%d, s%d, s%d' % (sCc, sCc, sA))
    a('s_lshl_b32 s%d, s%d, 10' % (sPX, sCc))
    a('s_lshl_b32 s%d, s%d, 7' % (sPS, sCc))
    a('s_lshl_b32 s%d, s%d, %d' % (sPF, sB, fsh))
    a('s_add_u32 s%d, s%d, s%d' % (sPF, sPF, sA))
    a('s_lshl_b32 s%d, s%d, 2' % (sPF, sPF))
    for dst, arr in ((sPX, xbase), (sPS, sbase), (sPF, fbase)):
        if per_pair:
            pair_base(sD, arr)
            a('s_add_u32 s%d, s%d, s%d' % (dst, dst, sD))
        else:
            a('s_add_u32 s%d, s%d, %d' % (dst, dst, arr))
    a('s_add_u32 s%d, s%d, %d' % (sPX2, sPX, 2 * 14336))


def owner_index():
    a('s_lshr_b32 s%d, s%d, 1' % (sB, sW))
    a('s_lshl_b32 s%d, s%d, 2' % (sCc, sG))
    a('s_add_u32 s%d, s%d, s%d' % (sB, sB, sCc))
    a('s_and_b32 s%d, s%d, 1' % (sA, sW))
    a('s_lshl_b32 s%d, s%d, 1' % (sCc, sJ))
    a('s_add_u32 s%d, s%d, s%d' % (sA, sA, sCc))


a('s_cmp_eq_u32 s%d, 0' % sPAIR)
a('s_cbranch_scc0 L_a_nores')
owner_index()
a('s_mul_i32 s%d, s%d, 14' % (sB, sB))
a('s_add_u32 s%d, s%d, s%d' % (sB, sB, sA))
a('s_lshl_b32 s%d, s%d, 10' % (sB, sB))
a('s_add_u32 s%d, s%d, %d' % (sB, sB, L.XA[0]))
a('buffer_load_dwordx4 %s, v1, %s, s%d offen sc1' % (ar(A_RES), srd(S_WS), sB))
a('s_add_u32 s%d, s%d, %d' % (sB, sB, 2 * 14336))
a('buffer_load_dwordx4 %s, v1, %s, s%d offen sc1' % (ar(A_RES + 4), srd(S_WS), sB))
build_srd(S_TMP, P_B2, 896)
a('s_lshl_b32 s%d, s%d, 6' % (sB, sA))
a('v_lshlrev_b32 v240, 3, v%d' % V_G)
a('buffer_load_dwordx2 v[228:229], v240, %s, s%d offen' % (srd(S_TMP), sB))
a('buffer_load_dwordx2 v[230:231], v240, %s, s%d offen offset:32' % (srd(S_TMP), sB))
a.label('L_a_nores')
CSQ = WBUF[0]
a('s_mul_i32 s%d, s%d, 384' % (sA, sW))
a('s_add_u32 s%d, s%d, %d' % (sA, sA, L.L_STA))
a('v_lshl_add_u32 v246, v%d, 2, s%d' % (V_TOK, sA))
a('v_lshl_add_u32 v247, v%d, 4, s%d' % (V_G, sA))
a('s_mov_b64 exec, 0xffff')
for t in range(3):
    a('ds_write_b32 v246, v%d offset:%d' % (SM + t, 128 * t))
    a('ds_write_b32 v246, v%d offset:%d' % (SR + t, 128 * t + 64))
a('s_mov_b64 exec, -1')
MROW, RROW = 114, 126
a('s_waitcnt lgkmcnt(0)')
for t in range(3):
    a('ds_read_b128 %s, v247 offset:%d' % (vr(MROW + 4 * t), 128 * t))
    a('ds_read_b128 %s, v247 offset:%d' % (vr(RROW + 4 * t), 128 * t + 64))
QF, KF, VF = 140, 148, 160


def pk(op, dst, srcs, neg=None):
    ops, lo, hi = [], [], []
    for x in srcs:
        if isinstance(x, tuple):
            ops.append(vr(x[1] & ~1, 2))
            lo.append(x[1] & 1)
            hi.append(x[1] & 1)
        else:
            ops.append(vr(x, 2))
            lo.append(0)
            hi.append(1)
    t = '%s %s, %s op_sel:[%s] op_sel_hi:[%s]' % (op, vr(dst, 2), ', '.join(ops), ','.join(map(str, lo)), ','.join(map(str, hi)))
    if neg is not None:
        m = ','.join('1' if k == neg else '0' for k in range(len(srcs)))
        t += ' neg_lo:[%s] neg_hi:[%s]' % (m, m)
    return t


for t in range(2):
    for hf in range(2):
        r = AQ + (t * 2 + hf) * 4
        for i in (0, 2):
            a(pk('v_pk_fma_f32', r + i, [('b', SM + t + 1), CSQ + 4 * hf + i, r + i], 0))
        for p in range(2):
            a('v_cvt_pk_bf16_f32 v%d, v%d, v%d' % (QF + 4 * t + 2 * hf + p, r + 2 * p, r + 2 * p + 1))
        a(wb_all[2 * t + hf])
for t in range(2):
    for hf in range(2):
        r = AK + (t * 2 + hf) * 4
        for i in (0, 2):
            a(pk('v_pk_fma_f32', r + i, [('b', SM + t + 1), CSQ + 8 + 4 * hf + i, r + i], 0))
        for p in range(2):
            a('v_cvt_pk_bf16_f32 v%d, v%d, v%d' % (KF + 4 * (t + 1) + 2 * hf + p, r + 2 * p, r + 2 * p + 1))
        a(wb_all[4 + 2 * t + hf])
L_E, L_HX = L.L_R2 + 16384, L.L_R2 + 26624
a('s_lshl_b32 s%d, s%d, 11' % (sA, sW))
a('s_add_u32 s%d, s%d, %d' % (sA, sA, L_E))
a('v_add_u32 v246, s%d, v1' % sA)
a('s_lshl_b32 s%d, s%d, 10' % (sA, sW))
a('s_add_u32 s%d, s%d, %d' % (sA, sA, L_HX))
a('v_add_u32 v247, s%d, v1' % sA)
a('s_waitcnt lgkmcnt(0)')
for t in range(2):
    for d in range(2):
        r = AV + (t * 2 + d) * 4
        for i in (0, 2):
            a(pk('v_pk_fma_f32', r + i, [MROW + 4 * (t + 1) + i, ('b', CSQ + 16 + d), r + i], 0))
        for p in range(2):
            a('v_cvt_pk_bf16_f32 v%d, v%d, v%d' % (VF + 6 * d + 2 * (t + 1) + p, r + 2 * p, r + 2 * p + 1))
a('ds_write_b128 v246, %s offset:2048' % vr(KF + 8))
a('ds_write_b64 v246, %s offset:3072' % vr(VF + 4, 2))
a('ds_write_b64 v246, %s offset:3080' % vr(VF + 10, 2))
a('ds_write_b128 v247, %s' % vr(HACC))
pair_base(sA, L.O)
a('s_lshl_b32 s%d, s%d, 4' % (sB, sGT))
a('s_add_u32 s%d, s%d, s%d' % (sB, sB, sC))
a('s_lshl_b32 s%d, s%d, 10' % (sB, sB))
a('s_add_u32 s32, s%d, s%d' % (sA, sB))
a('s_add_u32 s33, s32, 16384')
stamp2()
a('s_waitcnt lgkmcnt(0)')
a('s_barrier')
stamp2()
SS = 172
a('s_cmp_eq_u32 s%d, 0' % sW)
a('s_cbranch_scc1 L_a_halo')
a('ds_read_b128 %s, v246' % vr(KF))
a('ds_read_b64 %s, v246 offset:1024' % vr(VF, 2))
a('ds_read_b64 %s, v246 offset:1032' % vr(VF + 6, 2))
a('s_waitcnt lgkmcnt(0)')
a('s_branch L_a_prev')
a.label('L_a_halo')
a('v_add_u32 v247, %d, v1' % L_HX)
for p in range(4):
    a('ds_read_b128 %s, v247 offset:%d' % (vr(SS + 4 * p), 1024 * p))
a('s_waitcnt lgkmcnt(0)')
for hf in range(2):
    r = SS + 4 * hf
    for i in (0, 2):
        a(pk('v_pk_fma_f32', r + i, [('b', SM), CSQ + 8 + 4 * hf + i, r + i], 0))
    for p in range(2):
        a('v_cvt_pk_bf16_f32 v%d, v%d, v%d' % (KF + 2 * hf + p, r + 2 * p, r + 2 * p + 1))
for d in range(2):
    r = SS + 8 + 4 * d
    for i in (0, 2):
        a(pk('v_pk_fma_f32', r + i, [MROW + i, ('b', CSQ + 16 + d), r + i], 0))
    for p in range(2):
        a('v_cvt_pk_bf16_f32 v%d, v%d, v%d' % (VF + 6 * d + p, r + 2 * p, r + 2 * p + 1))
a.label('L_a_prev')
a('s_nop 1')
for t in range(2):
    a('%s %s, %s, %s, 0' % (MFMA, vr(SS + 8 * t), vr(KF + 4 * t), vr(QF + 4 * t)))
    a('%s %s, %s, %s, 0' % (MFMA, vr(SS + 8 * t + 4), vr(KF + 4 * t + 4), vr(QF + 4 * t)))
SCALE = (28.0 ** -0.5) * 1.4426950408889634
MX, CC, LS, TMPR = 190, 192, 194, 196
PF = 200
SUMT = [(224, 226), (232, 188)]
a('v_mov_b32 v198, 0xff800000')
seq = [[], []]
for t in range(2):
    s_ = SS + 8 * t
    q = seq[t]
    rr = lambda e: RROW + 4 * (t + (e >> 2)) + (e & 3)
    for e in range(0, 8, 2):
        q.append(pk('v_pk_mul_f32', s_ + e, [s_ + e, rr(e)]))
    for e in range(8):
        mk = (sM0 if t == 0 else sM1) + 2 * e if e < 4 else sM2 + 2 * (e - 4)
        q.append('v_cndmask_b32 v%d, v198, v%d, %s' % (s_ + e, s_ + e, sp(mk)))
    q.append('v_max3_f32 v%d, v%d, v%d, v%d' % (MX + t, s_, s_ + 1, s_ + 2))
    q.append('v_max3_f32 v%d, v%d, v%d, v%d' % (MX + t, MX + t, s_ + 3, s_ + 4))
    q.append('v_max3_f32 v%d, v%d, v%d, v%d' % (MX + t, MX + t, s_ + 5, s_ + 6))
    q.append('v_max_f32 v%d, v%d, v%d' % (MX + t, MX + t, s_ + 7))
    q += xg_reduce(MX + t, TMPR + t, 'v_max_f32')
    q.append('v_mul_f32 v%d, %s, v%d' % (CC + t, f2h(SCALE), SR + t + 1))
    q.append('v_mul_f32 v%d, v%d, v%d' % (MX + t, MX + t, CC + t))
    for e in range(0, 8, 2):
        q.append(pk('v_pk_fma_f32', s_ + e, [s_ + e, ('b', CC + t), ('b', MX + t)], 2))
    for e in range(8):
        q.append('v_exp_f32 v%d, v%d' % (s_ + e, s_ + e))
    u_, u2 = SUMT[t]
    q.append(pk('v_pk_add_f32', u_, [s_, s_ + 2]))
    q.append(pk('v_pk_add_f32', u2, [s_ + 4, s_ + 6]))
    q.append(pk('v_pk_add_f32', u_, [u_, u2]))
    q.append('v_add_f32 v%d, v%d, v%d' % (LS + t, u_, u_ + 1))
    q += xg_reduce(LS + t, TMPR + t)
    q.append('v_rcp_f32 v%d, v%d' % (LS + t, LS + t))
    for e in range(0, 8, 2):
        q.append(pk('v_pk_mul_f32', s_ + e, [s_ + e, rr(e)]))
    for p in range(4):
        q.append('v_cvt_pk_bf16_f32 v%d, v%d, v%d' % (PF + 4 * t + p, s_ + 2 * p, s_ + 2 * p + 1))
merged = [z for xy in zip(*seq) for z in xy]
gap = len(merged) // (len(wb_loads) + 1)
for k, x in enumerate(merged):
    a(x)
    if k % gap == gap - 1 and wb_loads:
        a(wb_loads.pop(0))
assert not wb_loads
stamp2()
OO = 208
for t in range(2):
    for d in range(2):
        a('%s %s, %s, %s, 0' % (MFMA, vr(OO + 8 * t + 4 * d), vr(VF + 6 * d + 2 * t), vr(PF + 4 * t)))
for t in range(2):
    for e in range(0, 8, 2):
        a(pk('v_pk_mul_f32', OO + 8 * t + e, [OO + 8 * t + e, ('b', LS + t)]))
    for p in range(4):
        a('v_cvt_pk_bf16_f32 v%d, v%d, v%d' % (PF + 4 * t + p, OO + 8 * t + 2 * p, OO + 8 * t + 2 * p + 1))
    store('buffer_store_dwordx4 %s, v1, %s, s%d offen' % (vr(PF + 4 * t), srd(S_WS), 32 + t), sFD)
o_mark = a.vm_mark()
stamp2()
pair_base(sA, L.FA)
a('s_lshl_b32 s%d, s%d, 4' % (sB, sGT))
a('s_add_u32 s%d, s%d, s%d' % (sB, sB, sC))
a('s_lshl_b32 s%d, s%d, 2' % (sB, sB))
a('s_add_u32 s%d, s%d, s%d' % (sA, sA, sB))
a('v_lshlrev_b32 v241, 6, v0')
a('v_add_u32 v241, s%d, v241' % sA)
pair_base(sA, L.FA)
a('s_lshl_b32 s%d, s%d, 8' % (sB, sG))
a('s_add_u32 s%d, s%d, s%d' % (sA, sA, sB))
a('v_lshl_add_u32 v240, v0, 2, s%d' % sA)
a('s_lshl_b32 s%d, s%d, 2' % (sB, sW))
a('s_lshl_b32 s%d, 0x000f000f, s%d' % (sMK, sB))
a('s_mov_b32 s%d, s%d' % (sMK + 1, sMK))
red_addrs()
publish_setup(L.XB, L.SB, L.FB, True, 4)
a('s_mov_b32 s%d, s%d' % (sPC, sFD))
a('s_mov_b32 s%d, s%d' % (sPFC, sFAST))
pair_base(sA, L.O)
a('s_lshl_b32 s%d, s%d, 6' % (sB, sG))
a('s_lshl_b32 s%d, s%d, 2' % (sCc, sW))
a('s_add_u32 s%d, s%d, s%d' % (sB, sB, sCc))
a('s_lshl_b32 s%d, s%d, 10' % (sB, sB))
a('s_add_u32 s20, s%d, s%d' % (sA, sB))
for t in range(1, 4):
    a('s_add_u32 s%d, s20, %d' % (20 + t, 16384 * t))
a.wait_vm(o_mark)
a('s_mov_b64 exec, 3')
store('buffer_store_dword v%d, v241, %s, 0 offen' % (V_T, srd(S_WS)), sFAST)
a('s_mov_b64 exec, -1')
stamp()
a('s_cmp_eq_u32 s%d, 7' % sJ)
a('s_cbranch_scc1 L_next_pair')


def wd_bases():
    a('s_lshl_b32 s%d, s%d, 2' % (sA, sJ))
    a('s_mul_i32 s%d, s%d, %d' % (sA, sA, 56 * 1024))
    a('s_mul_i32 s%d, s%d, %d' % (sB, sW, 14 * 1024))
    a('s_add_u32 s%d, s%d, s%d' % (sA, sA, sB))
    a('s_add_u32 s%d, s%d, %d' % (sO, sA, L.WD))
    quarter_offsets(4, 56 * 1024)


def wd_load(fi):
    kk, t = fi >> 2, fi & 3
    return ('buffer_load_dwordx4 %s, v1, %s, s%d offen offset:%d sc1' %
            (ar(4 * fi), srd(S_WS), sO + 4 * t + (kk >> 2), 1024 * (kk & 3)))


WD_CH = [(0, 12), (12, 56)]
BO, BACC, BRD, BTMP = 66, 130, 194, 226
a('s_cmp_eq_u32 s%d, 0' % sPAIR)
a('s_cbranch_scc0 L_b_start')
for k in range(4):
    a('v_lshlrev_b32 v236, 16, v%d' % (228 + k))
    a('v_and_b32 v237, 0xffff0000, v%d' % (228 + k))
    a('v_accvgpr_write_b32 a%d, v236' % (A_B2 + 2 * k))
    a('v_accvgpr_write_b32 a%d, v237' % (A_B2 + 2 * k + 1))
wd_bases()
for fi in range(*WD_CH[0]):
    a(wd_load(fi))
a.label('L_b_start')
CWW = 66
sCI = 41
a('s_lshr_b32 s%d, s%d, 3' % (sA, sC))
a('s_mul_i32 s%d, s%d, 7' % (sA, sA))
a('s_add_u32 s%d, s%d, s%d' % (sCI, sA, sJ))
a('s_lshl_b32 s%d, s%d, 3' % (sA, sCI))
a('s_lshl_b32 s%d, s%d, 1' % (sB, sW))
a('s_add_u32 s%d, s%d, s%d' % (sA, sA, sB))
a('s_mul_i32 s%d, s%d, %d' % (sB, sA, 14 * 1024))
a('s_add_u32 s%d, s%d, %d' % (sO, sB, L.WC))
quarter_offsets(2, 14 * 1024)


def c_wload(idx):
    u, k = idx >> 1, idx & 1
    return ('buffer_load_dwordx4 %s, v1, %s, s%d offen offset:%d sc1' %
            (vr(CWW + 4 * idx), srd(S_WS), sO + 4 * k + (u >> 2), 1024 * (u & 3)))


def red_writes(acc, tile):
    return ['ds_write_b128 v248, %s offset:%d' % (vr(acc + 4 * t), (tile >> 1) * 32768 + (tile & 1) * 4096 + t * 1024)
            for t in range(4)]


def red_reads(st, rd):
    return ['ds_read_b128 %s, v249 offset:%d' % (vr(rd + (b * 2 + k) * 4), st * 32768 + b * 8192 + k * 1024)
            for b in range(4) for k in range(2)]


def add8(dst, x, y, packed):
    if packed:
        return ['v_pk_add_f32 %s, %s, %s' % (vr(dst + e, 2), vr(x + e, 2), vr(y + e, 2)) for e in range(0, 8, 2)]
    return ['v_add_f32 v%d, v%d, v%d' % (dst + e, x + e, y + e) for e in range(8)]


def finish_pre(st, is_d, tmp):
    res = A_RES + 4 * st
    o = ['v_accvgpr_read_b32 v%d, a%d' % (tmp + 8 + p, res + p) for p in range(4)]
    for p in range(4):
        o += ['v_lshlrev_b32 v%d, 16, v%d' % (tmp + 2 * p, tmp + 8 + p),
              'v_and_b32 v%d, 0xffff0000, v%d' % (tmp + 2 * p + 1, tmp + 8 + p)]
    if is_d:
        o += ['v_accvgpr_read_b32 v%d, a%d' % (tmp + 8 + e, A_B2 + e) for e in range(8)]
        o += ['v_add_f32 v%d, v%d, v%d' % (tmp + e, tmp + e, tmp + 8 + e) for e in range(8)]
    return o


def finish_sum(st, rd, tmp, pk, packed):
    o = add8(rd, rd, rd + 8, packed) + add8(rd + 16, rd + 16, rd + 24, packed) + add8(rd, rd, rd + 16, packed)
    o += add8(tmp, tmp, rd, packed)
    o += ['v_cvt_pk_bf16_f32 v%d, v%d, v%d' % (pk + p, tmp + 2 * p, tmp + 2 * p + 1) for p in range(4)]
    o += ['v_accvgpr_write_b32 a%d, v%d' % (A_RES + 4 * st + p, pk + p) for p in range(4)]
    return o


def owner_stats(tmp, s1, t):
    a('v_pk_add_f32 %s, %s, %s' % (vr(t, 2), vr(tmp, 2), vr(tmp + 2, 2)))
    a('v_pk_add_f32 %s, %s, %s' % (vr(t + 2, 2), vr(tmp + 4, 2), vr(tmp + 6, 2)))
    a('v_pk_add_f32 %s, %s, %s' % (vr(t, 2), vr(t, 2), vr(t + 2, 2)))
    a('v_add_f32 v%d, v%d, v%d' % (s1, t, t + 1))
    a('v_pk_mul_f32 %s, %s, %s' % (vr(t, 2), vr(tmp, 2), vr(tmp, 2)))
    for e in (2, 4, 6):
        a('v_pk_fma_f32 %s, %s, %s, %s' % (vr(t, 2), vr(tmp + e, 2), vr(tmp + e, 2), vr(t, 2)))
    a('v_add_f32 v%d, v%d, v%d' % (s1 + 1, t, t + 1))
    for x, y in zip(xg_reduce(s1, t), xg_reduce(s1 + 1, t + 1)):
        a(x)
        a(y)


def publish_data(st, pk):
    store('buffer_store_dwordx4 %s, v1, %s, s%d offen offset:0' % (vr(pk), srd(S_WS), sPX if st == 0 else sPX2), sPC)


def publish_stats(tmps, t, s1):
    a('v_and_b32 v%d, 15, v0' % V_TOK)
    a('v_lshlrev_b32 v%d, 3, v%d' % (t + 4, V_TOK))
    for st in range(2):
        owner_stats(tmps[st], s1 + 2 * st, t)
    a('s_mov_b64 exec, 0xffff')
    store('buffer_store_dwordx2 %s, v%d, %s, s%d offen' % (vr(s1, 2), t + 4, srd(S_WS), sPS), sPC)
    a('s_add_u32 s%d, s%d, %d' % (sPS, sPS, 2 * 1792))
    store('buffer_store_dwordx2 %s, v%d, %s, s%d offen' % (vr(s1 + 2, 2), t + 4, srd(S_WS), sPS), sPC)
    a('s_mov_b64 exec, -1')


def publish_flags(lsh, between=()):
    a('v_lshlrev_b32 v241, %d, v0' % lsh)
    a('v_add_u32 v241, s%d, v241' % sPF)
    set_flags(241, 2, sPFC, V_T, between)


def run_tiles(tile_items, extras):
    for tile in range(4):
        if tile and '--diag3' in sys.argv:
            stamp()
        items = tile_items(tile)
        ex = list(extras.get(tile, []))
        free = [k for k, it in enumerate(items) if k >= 3 and not it[2]]
        per = -(-len(ex) // max(1, len(free))) if ex else 0
        for k, (pre, m, post) in enumerate(items):
            for x in pre:
                x()
            a(m)
            if post:
                post()
            elif k >= 3:
                for _ in range(per):
                    if ex:
                        x = ex.pop(0)
                        if callable(x):
                            x()
                        else:
                            a(x)
        assert not ex


poll(240)
a('s_barrier')
stamp()


def b_oload(tile, i):
    return 'buffer_load_dwordx4 %s, v1, %s, s%d offen offset:%d sc1' % (vr(BO + (tile * 4 + i) * 4), srd(S_WS), 20 + tile, 1024 * i)


om = {}
for tile in range(2):
    for i in range(4):
        a(b_oload(tile, i))
        om[(tile, i)] = a.vm_mark()


def b_tile(tile):
    items = []
    for i in range(4):
        for t in range(4):
            r = BACC + (tile * 4 + t) * 4
            pre = [(lambda tl=tile, ii=i: a.wait_vm(om[(tl, ii)]))] if t == 0 else []
            post = None
            if tile < 2 and t == 1:
                def post(tl=tile + 2, ii=i):
                    a(b_oload(tl, ii))
                    om[(tl, ii)] = a.vm_mark()
            if tile >= 2 and t == 1:
                def post(idx=4 * (tile - 2) + i):
                    a(c_wload(idx))
            items.append((pre, '%s %s, %s, %s, %s' % (MFMA, vr(r), vr(BW + (i * 4 + t) * 4), vr(BO + (tile * 4 + i) * 4),
                                                      '0' if i == 0 else vr(r)), post))
    return items


BT0, BT1, BPK = 226, 2, 18
run_tiles(b_tile, {1: red_writes(BACC, 0), 2: red_writes(BACC + 16, 1), 3: red_writes(BACC + 32, 2)})
stamp2()
for x in red_writes(BACC + 48, 3):
    a(x)
for x in finish_pre(0, False, BT0) + finish_pre(1, False, BT1):
    a(x)
a('s_waitcnt lgkmcnt(0)')
a('s_barrier')
stamp2()
BRD1 = 162
for x in red_reads(0, BRD) + red_reads(1, BRD1):
    a(x)
a('s_waitcnt lgkmcnt(8)')
for x in finish_sum(0, BRD, BT0, BPK, True):
    a(x)
publish_data(0, BPK)
a('s_waitcnt lgkmcnt(0)')
for x in finish_sum(1, BRD1, BT1, BPK + 4, True):
    a(x)
publish_data(1, BPK + 4)
stamp2()
publish_stats([BT0, BT1], 36, 32)
b_mark = a.vm_mark()
a('v_lshlrev_b32 v236, 7, v0')
a('v_add_u32 v236, s%d, v236' % sPF)
for i in range(8, 16):
    a(c_wload(i))
CA = [2, 10]
XF, NXF = 18, 8
GTMP, GH = 50, 58
CCS, CB1, CB1R = 178, 186, 194
CSTR = 198
CMR = 214
VGA = 218
a('v_lshrrev_b32 v%d, 4, v0' % V_G)
a('v_and_b32 v%d, 15, v0' % V_TOK)
pair_base(sA, L.FB)
a('s_lshl_b32 s%d, s%d, 9' % (sB, sS))
a('s_add_u32 s%d, s%d, s%d' % (sA, sA, sB))
a('v_lshl_add_u32 v240, v0, 2, s%d' % sA)
a('s_mov_b32 s%d, 0x3fff3fff' % sMK)
a('s_mov_b32 s%d, 0x3fff3fff' % (sMK + 1))
pair_base(20, L.XB)
a('s_mul_i32 s%d, s%d, %d' % (sB, sS, 8 * 14336))
a('s_add_u32 s20, s20, s%d' % sB)
a('s_lshl_b32 s%d, s%d, 12' % (sB, sW))
a('s_add_u32 s20, s20, s%d' % sB)
a('s_add_u32 s21, s%d, %d' % (sB, L.L_R2))
pair_base(22, L.SB)
a('s_lshl_b32 s%d, s%d, 3' % (sB, sS))
a('s_add_u32 s%d, s%d, s%d' % (sB, sB, sW))
a('s_mul_i32 s%d, s%d, 1792' % (sB, sB))
a('s_add_u32 s22, s22, s%d' % sB)
a('s_add_u32 s23, s22, %d' % (4 * 1792))
pair_base(32, L.H)
a('s_mul_i32 s%d, s%d, %d' % (sB, sS, 8 * 56 * 1024))
a('s_add_u32 s32, s32, s%d' % sB)
a('s_lshl_b32 s%d, s%d, 2' % (sB, sCI))
a('s_add_u32 s%d, s%d, s%d' % (sB, sB, sW))
a('s_lshl_b32 s%d, s%d, 10' % (sCc, sB))
a('s_add_u32 s32, s32, s%d' % sCc)
pair_base(33, L.FC)
a('s_lshl_b32 s%d, s%d, 11' % (sCc, sS))
a('s_add_u32 s33, s33, s%d' % sCc)
a('s_lshl_b32 s%d, s%d, 2' % (sB, sB))
a('s_add_u32 s33, s33, s%d' % sB)
a('v_mov_b32 v241, s33')
a('v_mov_b32 v242, 0x%x' % INV)
a('v_cmp_eq_u32 vcc, 0, v0')
a('v_cndmask_b32 v241, v242, v241, vcc')
a('v_lshlrev_b32 v238, 3, v%d' % V_TOK)
a('v_lshl_add_u32 v238, v%d, 7, v238' % V_G)
a('v_mov_b32 v242, 0x%x' % INV)
a('v_cmp_lt_u32 vcc, 1, v%d' % V_G)
a('v_cndmask_b32 v239, 0, v242, vcc')
a('v_or_b32 v239, v239, v238')
a('v_add_u32 v252, %d, v1' % L.L_R2)
a('v_lshlrev_b32 v246, 3, v%d' % V_TOK)
a('v_add_u32 v246, %d, v246' % L.L_STC)
GA = 2.0 * 0.7978845608028654 * 1.4426950408889634
GB = GA * 0.044715
a('v_mov_b32 v%d, %s' % (VGA, f2h(-GA)))
a('v_mov_b32 v%d, %s' % (VGA + 1, f2h(-GA)))
a('s_mov_b32 s34, %s' % f2h(-GB))
a('s_mov_b32 s35, %s' % f2h(-GB))
wd_bases_hi = True
a.wait_vm(b_mark)
a('s_mov_b64 exec, 3')
store('buffer_store_dword v%d, v236, %s, 0 offen' % (V_T, srd(S_WS)), sPFC)
a('s_mov_b64 exec, -1')
stamp()

if '--wb' in sys.argv:
    a('s_or_b32 s%d, s%d, s%d' % (sA, sC, sW))
    a('s_xor_b32 s%d, s%d, 1' % (sB, sPAIR))
    a('s_or_b32 s%d, s%d, s%d' % (sA, sA, sB))
    a('s_cmp_eq_u32 s%d, 0' % sA)
    a('s_cbranch_scc0 L_nowb')
    a.ins.append(__import__('asmlib').Ins('s_nop 0'))
    a.ins[-1].text = 'buffer_wbl2 sc1'
    a.label('L_nowb')
for i in range(16, 22):
    a(c_wload(i))
a('s_lshl_b32 s%d, s%d, 3' % (sA, sCI))
a('s_lshl_b32 s%d, s%d, 1' % (sB, sW))
a('s_add_u32 s%d, s%d, s%d' % (sA, sA, sB))
a('s_lshl_b32 s24, s%d, 5' % sA)
a('v_lshlrev_b32 v248, 3, v%d' % V_G)
for k in range(2):
    a('buffer_load_dwordx2 %s, v248, %s, s24 offen offset:%d' % (vr(CB1R + 2 * k, 2), srd(S_B1), 32 * k))
poll(240, 256)
stamp()


def c_dma_setup(t):
    return ['s_add_u32 s36, s20, %d' % (t * 14336), 's_add_u32 m0, s21, %d' % ((t & 3) * 16384)]


def c_dma(t, i):
    return 'buffer_load_dwordx4 v1, %s, s36 offen offset:%d sc1 lds' % (srd(S_WS), 1024 * i)


dm = {}
for x in c_dma_setup(0) + [c_dma(0, i) for i in range(4)]:
    a(x)
dm[0] = a.vm_mark()
wlate = {}
for i in range(22, 28):
    a(c_wload(i))
    wlate[i >> 1] = a.vm_mark()
for tt in range(2):
    for i in range(4):
        a('buffer_load_dwordx2 %s, v%d, %s, s%d offen offset:%d sc1' %
          (vr(CSTR + 8 * tt + 2 * i, 2), 239 if i == 3 else 238, srd(S_WS), 22 + tt, 512 * i))
amark['cst'] = a.vm_mark()
for x in c_dma_setup(1) + [c_dma(1, i) for i in range(4)]:
    a(x)
dm[1] = a.vm_mark()
wd_bases()
t0_loads = []
b1_unpack = []
for k in range(2):
    for p in range(2):
        b1_unpack += ['v_lshlrev_b32 v%d, 16, v%d' % (CB1 + 4 * k + 2 * p, CB1R + 2 * k + p),
                      'v_and_b32 v%d, 0xffff0000, v%d' % (CB1 + 4 * k + 2 * p + 1, CB1R + 2 * k + p)]
a.wait_vm(dm[0])
a('s_barrier')
stamp()


def c_xread(t, u):
    n = t * 14 + u
    return 'ds_read_b128 %s, v252 offset:%d' % (vr(XF + 4 * (n % NXF)), (t & 3) * 16384 + u * 1024)


def gelu_pre(t):
    z, m = CA[t & 1], CMR + 2 * (t & 1)
    P = range(0, 8, 2)
    o = ['v_pk_fma_f32 %s, %s, %s, %s op_sel_hi:[1,0,1] neg_lo:[0,1,0] neg_hi:[0,1,0]' % (vr(z + e, 2), vr(CCS + e, 2), vr(m, 2), vr(z + e, 2)) for e in P]
    o += ['v_pk_fma_f32 %s, %s, %s, %s op_sel:[0,1,0] op_sel_hi:[1,1,1]' % (vr(z + e, 2), vr(z + e, 2), vr(m, 2), vr(CB1 + e, 2)) for e in P]
    o += ['v_pk_mul_f32 %s, %s, %s' % (vr(GTMP + e, 2), vr(z + e, 2), vr(z + e, 2)) for e in P]
    o += ['v_pk_fma_f32 %s, %s, s[34:35], %s' % (vr(GTMP + e, 2), vr(GTMP + e, 2), vr(VGA, 2)) for e in P]
    o += ['v_pk_mul_f32 %s, %s, %s' % (vr(GTMP + e, 2), vr(GTMP + e, 2), vr(z + e, 2)) for e in P]
    return o


def gelu_mid():
    o = {}
    for e in range(8):
        o.setdefault(2 * e, []).append('v_exp_f32 v%d, v%d' % (GTMP + e, GTMP + e))
        o.setdefault(2 * e + 3, []).append('v_add_f32 v%d, 1.0, v%d' % (GTMP + e, GTMP + e))
    for e in range(6):
        o.setdefault(16 + 2 * e, []).append('v_rcp_f32 v%d, v%d' % (GTMP + e, GTMP + e))
    o.setdefault(25, []).append('v_rcp_f32 v%d, v%d' % (GTMP + 6, GTMP + 6))
    o.setdefault(27, []).append('v_rcp_f32 v%d, v%d' % (GTMP + 7, GTMP + 7))
    return o


def gelu_post(t):
    z, h = CA[t & 1], GH + 4 * (t & 1)
    o = ['v_pk_mul_f32 %s, %s, %s' % (vr(GTMP + e, 2), vr(GTMP + e, 2), vr(z + e, 2)) for e in range(0, 8, 2)]
    o += ['v_cvt_pk_bf16_f32 v%d, v%d, v%d' % (h + p, GTMP + 2 * p, GTMP + 2 * p + 1) for p in range(4)]
    return o


def gelu_packed(t):
    z, m, h = CA[t & 1], CMR + 2 * (t & 1), GH + 4 * (t & 1)
    P = range(0, 8, 2)
    for e in P:
        a('v_pk_fma_f32 %s, %s, %s, %s op_sel_hi:[1,0,1] neg_lo:[0,1,0] neg_hi:[0,1,0]' % (vr(z + e, 2), vr(CCS + e, 2), vr(m, 2), vr(z + e, 2)))
    for e in P:
        a('v_pk_fma_f32 %s, %s, %s, %s op_sel:[0,1,0] op_sel_hi:[1,1,1]' % (vr(z + e, 2), vr(z + e, 2), vr(m, 2), vr(CB1 + e, 2)))
    for e in P:
        a('v_pk_mul_f32 %s, %s, %s' % (vr(GTMP + e, 2), vr(z + e, 2), vr(z + e, 2)))
    for e in P:
        a('v_pk_fma_f32 %s, %s, s[34:35], %s' % (vr(GTMP + e, 2), vr(GTMP + e, 2), vr(VGA, 2)))
    for e in P:
        a('v_pk_mul_f32 %s, %s, %s' % (vr(GTMP + e, 2), vr(GTMP + e, 2), vr(z + e, 2)))
    for e in range(8):
        a('v_exp_f32 v%d, v%d' % (GTMP + e, GTMP + e))
    for e in P:
        a('v_pk_add_f32 %s, %s, 1.0 op_sel_hi:[1,0]' % (vr(GTMP + e, 2), vr(GTMP + e, 2)))
    for e in range(8):
        a('v_rcp_f32 v%d, v%d' % (GTMP + e, GTMP + e))
    for e in P:
        a('v_pk_mul_f32 %s, %s, %s' % (vr(GTMP + e, 2), vr(GTMP + e, 2), vr(z + e, 2)))
    for p in range(4):
        a('v_cvt_pk_bf16_f32 v%d, v%d, v%d' % (h + p, GTMP + 2 * p, GTMP + 2 * p + 1))


hmk, fmk = {}, {}


def h_store(t):
    def f():
        a('s_add_u32 s24, s32, %d' % (t * 56 * 1024))
        store('buffer_store_dwordx4 %s, v1, %s, s24 offen' % (vr(GH + 4 * (t & 1)), srd(S_WS)), sFH)
        hmk[t] = a.vm_mark()
    return f


def h_flag(t):
    def f():
        a.wait_vm(hmk[t])
        store('buffer_store_dword v%d, v241, %s, 0 offen offset:%d' % (V_T, srd(S_WS), 256 * t), sFAST)
    return f


def wd_block(fis, wave):
    def f():
        skip = newlab('L_wd')
        a('s_cmp_eq_u32 s24, %d' % wave)
        a('s_cbranch_scc0 %s' % skip)
        for fi in fis:
            a(wd_load(fi))
            a.vm_issued -= 1
        a.label(skip)
    return f


cst_fill = []
for tt in range(2):
    r = CSTR + 8 * tt
    for c_ in range(2):
        cst_fill += ['v_add_f32 v%d, v%d, v%d' % (r + c_, r + c_, r + 2 + c_),
                     'v_add_f32 v%d, v%d, v%d' % (r + 4 + c_, r + 4 + c_, r + 6 + c_),
                     'v_add_f32 v%d, v%d, v%d' % (r + c_, r + c_, r + 4 + c_)]
    cst_fill += xg_reduce(r, r + 2) + xg_reduce(r + 1, r + 3) + stats_finish(r, r + 1, r + 2, True)
a('s_lshl_b32 s%d, s%d, 7' % (sA, sW))
a('v_add_u32 v247, s%d, v246' % sA)
cst_fill += ['ds_write_b64 v247, %s' % vr(CSTR, 2), 'ds_write_b64 v247, %s offset:512' % vr(CSTR + 8, 2)] + b1_unpack
LOOKX = 6


A_CCS = 244


def emit_c_loop(wd_list):
    pass0 = bool(wd_list)
    if not pass0:
        for e in range(8):
            a('v_accvgpr_read_b32 v%d, a%d' % (CCS + e, A_CCS + e))
    for u in range(LOOKX):
        a(c_xread(0, u))
    for t in range(8):
        nonvec = {}

        def put(k, x):
            nonvec.setdefault(k, []).append(x)
        for u in range(14):
            n = t * 14 + u
            m = n + LOOKX
            if m < 8 * 14:
                put(2 * u + 1, c_xread(m // 14, m % 14))
            if u % 2 == 1 and n + 1 < 8 * 14:
                put(2 * u + 1, 's_waitcnt lgkmcnt(%d)' % min(LOOKX - 2, 8 * 14 - 1 - (n + 2)))
        if t < 7:
            nonvec[14] = [('bar', t + 1)] + nonvec.get(14, [])
        if t + 2 < 8:
            su = c_dma_setup(t + 2)
            put(0, su[0])
            put(0, su[1])
            for i in range(4):
                put(2 + 2 * i, ('dma', t + 2, i))
        if t >= 3:
            put(20, ('call', h_flag(t - 3)))
        if t == 7:
            def issue_d0():
                amark['d0'] = early_issue(244, 243)
            put(22, ('call', issue_d0))
        if t < 7:
            for k in (10, 12, 16, 18, 22, 24, 26):
                if wd_list:
                    put(k, wd_load(wd_list.pop(0)))
        if t > 0:
            put(17, 'ds_read_b64 %s, v246 offset:%d' % (vr(CMR + 2 * (t & 1), 2), 128 * t))
        if t == 0:
            for k, it in enumerate(t0_loads):
                put(k, ('t0', it))
        valu = gelu_mid() if t >= 1 else {}
        if t >= 2:
            for x in gelu_post(t - 2):
                a(x)
            h_store(t - 2)()
        if t >= 1:
            for x in gelu_pre(t - 1):
                a(x)
        fill = list(cst_fill) if t == 0 else []
        first = 8
        fi = 0
        for k in range(28):
            u, kk = k >> 1, k & 1
            n = t * 14 + u
            if t == 0 and k == 0:
                a('s_waitcnt lgkmcnt(%d)' % (LOOKX - 2))
            if t == 0 and kk == 0 and u in wlate:
                a.wait_vm(wlate[u])
            if t == 0 and k == first:
                a.wait_vm(amark['cst'])
            r = CA[t & 1] + 4 * kk
            a('%s %s, %s, %s, %s' % (MFMA, vr(r), vr(CWW + 4 * (2 * u + kk)), vr(XF + 4 * (n % NXF)), '0' if u == 0 else vr(r)))
            if pass0 and t == 0:
                a('%s %s, %s, %s, %s' % (MFMA, vr(CCS + 4 * kk), vr(CWW + 4 * (2 * u + kk)), ar(A_ONES), '0' if u == 0 else vr(CCS + 4 * kk)))
            for it in nonvec.get(k, []):
                if isinstance(it, str):
                    a(it)
                elif it[0] == 'bar':
                    a.wait_vm(dm[it[1]])
                    a('s_barrier')
                elif it[0] == 'dma':
                    a(c_dma(it[1], it[2]))
                    dm[it[1]] = a.vm_mark()
                elif it[0] == 'call':
                    it[1]()
                elif it[0] == 't0':
                    if it[1][0] == 'w':
                        a(c_wload(it[1][1]))
                        wlate[it[1][1] >> 1] = a.vm_mark()
                    else:
                        a(it[1][1])
                        amark['cst'] = a.vm_mark()
            for x in valu.get(k, []):
                a(x)
            if fill and k >= first:
                want = -(-(len(fill)) * (k - first + 1) // (28 - first))
                while fi < want:
                    a(fill[fi])
                    fi += 1
        assert fi == len(fill)
        if t == 0:
            a('s_waitcnt lgkmcnt(0)')
            a('s_barrier')
            a('ds_read_b64 %s, v246 offset:0' % vr(CMR, 2))
            if pass0:
                for e in range(8):
                    a('v_accvgpr_write_b32 a%d, v%d' % (A_CCS + e, CCS + e))
            a('s_waitcnt lgkmcnt(0)')
    assert not wd_list


pair_base(sA, L.FC)
a('s_lshl_b32 s%d, s%d, 10' % (sB, sG))
a('s_add_u32 s%d, s%d, s%d' % (sA, sA, sB))
a('s_mul_i32 s%d, s%d, 56' % (sB, sW))
a('s_add_u32 s%d, s%d, s%d' % (sA, sA, sB))
a('v_lshl_add_u32 v243, v0, 2, s%d' % sA)
a('s_mov_b32 s%d, 0x3fff' % sMK2)
a('s_mov_b32 s%d, 0' % (sMK2 + 1))
n_before = a.vm_issued
dm_init = dict(dm)
a('s_cmp_eq_u32 s%d, 0' % sPAIR)
a('s_cbranch_scc0 L_c_loop1')
emit_c_loop(list(range(*WD_CH[1])))
a('s_branch L_c_done')
a.label('L_c_loop1')
extra = a.vm_issued - n_before
a.vm_issued = n_before
dm.clear()
dm.update(dm_init)
emit_c_loop([])
a.label('L_c_done')
stamp()
DH, DACC, DRD = 66, 130, 194
DRING, DLOOK = 16, int(([x[8:] for x in sys.argv if x.startswith('--dlook=')] + ['10'])[0])
red_addrs()
publish_setup(L.XA[1], L.SA[1], L.FX[1], False, 5)
a('s_and_b32 s%d, s%d, 1' % (sA, sG))
a('s_lshr_b32 s%d, s%d, 1' % (sB, sW))
a('s_and_b32 s%d, s%d, s%d' % (sA, sA, sB))
a('s_xor_b32 s%d, s%d, 1' % (sA, sA))
a('s_and_b32 s%d, s%d, s%d' % (sPC, sFD, sA))
a('s_mov_b32 s%d, s%d' % (sPFC, sFAST))
a('s_cmp_eq_u32 s%d, 0' % sA)
a('s_cselect_b32 s%d, 0, 0x%x' % (sCc, INV))
a('s_add_u32 s%d, s%d, 1' % (sA, sS))
a('s_lshl_b32 s%d, s%d, 5' % (sA, sA))
a('s_lshl_b32 s%d, s%d, 1' % (sB, sJ))
a('s_add_u32 s%d, s%d, s%d' % (sA, sA, sB))
a('s_and_b32 s%d, s%d, 1' % (sB, sW))
a('s_add_u32 s%d, s%d, s%d' % (sA, sA, sB))
a('s_lshl_b32 s%d, s%d, 2' % (sA, sA))
a('s_add_u32 s%d, s%d, %d' % (sA, sA, L.FH))
a('s_or_b32 s20, s%d, s%d' % (sA, sCc))
pair_base(sA, L.H)
a('s_mul_i32 s%d, s%d, %d' % (sB, sG, 4 * 56 * 1024))
a('s_add_u32 s%d, s%d, s%d' % (sA, sA, sB))
a('s_mul_i32 s%d, s%d, %d' % (sB, sW, 14 * 1024))
a('s_add_u32 s%d, s%d, s%d' % (sO, sA, sB))
quarter_offsets(4, 56 * 1024)
a('s_cmp_eq_u32 s%d, 0' % sPAIR)
a('s_cbranch_scc1 L_d_nout')
owner_index()
a('s_mul_i32 s%d, s%d, 14336' % (sPX, sB))
a('s_lshl_b32 s%d, s%d, 6' % (sA, sA))
a('s_add_u32 s%d, s%d, s%d' % (sPX, sPX, sA))
a('s_add_u32 s%d, s%d, %d' % (sPX2, sPX, 2 * 14336))
a.label('L_d_nout')
a('v_and_b32 v%d, 15, v0' % V_TOK)
a('v_lshrrev_b32 v%d, 4, v0' % V_G)
a('v_mul_u32_u24 v242, 896, v%d' % V_TOK)
a('v_lshl_add_u32 v242, v%d, 3, v242' % V_G)
early_check(244, 243, amark['d0'])


def d_hload(q):
    tile, kk = divmod(q, 14)
    return ('buffer_load_dwordx4 %s, v1, %s, s%d offen offset:%d sc1' %
            (vr(DH + (q % DRING) * 4), srd(S_WS), sO + 4 * tile + (kk >> 2), 1024 * (kk & 3)))


hm = {}
dmk = {}
for q in range(DLOOK):
    a(d_hload(q))
    hm[q] = a.vm_mark()
    if q == min(6, DLOOK - 1):
        dmk[1] = early_issue(244, 243, 256)
stamp()
for x in gelu_post(6):
    a(x)
h_store(6)()
a('s_waitcnt lgkmcnt(0)')
gelu_packed(7)
h_flag(5)()
h_store(7)()
stamp()

a('s_barrier')
stamp()


def d_tile(tile):
    items = []
    for kk in range(14):
        q = tile * 14 + kk
        for t in range(4):
            r = DACC + (tile * 4 + t) * 4
            pre = [(lambda qq=q: a.wait_vm(hm[qq]))] if t == 0 else []
            if t == 0 and q in (3, 9):
                pre.append(h_flag({3: 6, 9: 7}[q]))
            post = None
            if t == 0 and q + DLOOK < 56:
                def post(qq=q + DLOOK):
                    if qq % 14 == 0:
                        early_check(244, 243, dmk[qq // 14], 256 * (qq // 14))
                    a(d_hload(qq))
                    hm[qq] = a.vm_mark()
                    if qq % 14 == 6 and qq // 14 < 3:
                        dmk[qq // 14 + 1] = early_issue(244, 243, 256 * (qq // 14 + 1))
            items.append((pre, '%s %s, %s, %s, %s' % (MFMA, vr(r), ar((kk * 4 + t) * 4), vr(DH + (q % DRING) * 4),
                                                      '0' if kk == 0 else vr(r)), post))
    return items


def d_out_store(st, pk):
    a('buffer_store_dwordx2 %s, v242, %s, s%d offen %s' % (vr(pk, 2), srd(S_OUT), sPX if st == 0 else sPX2, OUTSC))
    a('buffer_store_dwordx2 %s, v242, %s, s%d offen offset:32 %s' % (vr(pk + 2, 2), srd(S_OUT), sPX if st == 0 else sPX2, OUTSC))


def d_store(st, pk):
    fin, done = newlab('L_dfin'), newlab('L_ddone')
    a('s_cmp_eq_u32 s%d, 0' % sPAIR)
    a('s_cbranch_scc0 %s' % fin)
    publish_data(st, pk)
    a('s_branch %s' % done)
    a.label(fin)
    n = a.vm_issued
    d_out_store(st, pk)
    a.vm_issued = n
    a.label(done)


DT0, DT1, DPK, DSTT, DSTS = 226, 2, 18, 28, 36
stage0 = [lambda: (a('s_waitcnt lgkmcnt(0)'), a('s_barrier'))] + red_reads(0, DRD) + finish_pre(0, True, DT0)
stage0 += [lambda: a('s_waitcnt lgkmcnt(0)')] + finish_sum(0, DRD, DT0, DPK, False) + [lambda: d_store(0, DPK)]
run_tiles(d_tile, {1: red_writes(DACC, 0), 2: red_writes(DACC + 16, 1), 3: red_writes(DACC + 32, 2) + stage0})
stamp2()
for x in red_writes(DACC + 48, 3):
    a(x)
for x in finish_pre(1, True, DT1):
    a(x)
a('s_waitcnt lgkmcnt(0)')
a('s_barrier')
stamp2()
for x in red_reads(1, DRD):
    a(x)
a('s_waitcnt lgkmcnt(0)')
for x in finish_sum(1, DRD, DT1, DPK + 4, True):
    a(x)
d_store(1, DPK + 4)
stamp()
a('s_cmp_eq_u32 s%d, 0' % sPAIR)
a('s_cbranch_scc0 L_next_pair')
publish_stats([DT0, DT1], DSTT, DSTS)
FHMODE = ([x[5:] for x in sys.argv if x.startswith('--fh=')] + ['after'])[0]
a('v_mov_b32 v240, s20')
if FHMODE == 'before':
    a('s_waitcnt vmcnt(0)')
    a('s_mov_b64 exec, 1')
    a('buffer_store_dword v%d, v240, %s, 0 offen sc1' % (V_T, srd(S_WS)))
    a('s_mov_b64 exec, -1')
    a('v_lshlrev_b32 v241, 8, v0')
    a('v_add_u32 v241, s%d, v241' % sPF)
    a('s_mov_b64 exec, 3')
    store('buffer_store_dword v%d, v241, %s, 0 offen' % (V_T, srd(S_WS)), sPFC)
    a('s_mov_b64 exec, -1')
else:
    publish_flags(8)
    if FHMODE == 'wait':
        a('s_waitcnt vmcnt(0)')
    a('s_mov_b64 exec, 1')
    a('buffer_store_dword v%d, v240, %s, 0 offen sc1' % (V_T, srd(S_WS)))
    a('s_mov_b64 exec, -1')
a.label('L_next_pair')
stamp()
a('s_add_u32 s%d, s%d, 1' % (sPAIR, sPAIR))
a('s_cmp_lt_u32 s%d, 2' % sPAIR)
a('s_cbranch_scc1 L_pair')

a('s_cmp_eq_u32 s2, 0')
a('s_cbranch_scc0 L_noepoch')
a('s_cmp_eq_u32 s%d, 0' % sW)
a('s_cbranch_scc0 L_noepoch')
a('buffer_load_dword v2, off, %s, 0 sc1' % srd(S_WS))
a('s_waitcnt vmcnt(0)')
a('v_add_u32 v2, 1, v2')
a('s_mov_b64 exec, 1')
a('buffer_store_dword v2, off, %s, 0 sc1' % srd(S_WS))
a('s_mov_b64 exec, -1')
a.label('L_noepoch')
if PAD:
    a.label('L_padspin')
    a('s_memrealtime s[34:35]')
    a('s_waitcnt lgkmcnt(0)')
    a('s_sub_u32 s34, s34, s0')
    a('s_cmp_lt_u32 s34, %d' % PAD[0])
    a('s_cbranch_scc1 L_padspin')
if DBG:
    a('s_memtime s[32:33]')
    a('s_memrealtime s[34:35]')
    a('s_waitcnt lgkmcnt(0)')
    a('s_sub_u32 s32, s32, s26')
    a('s_sub_u32 s34, s34, s0')
    build_srd(S_TMP, P_DBG, 256)
    a('v_mov_b32 v2, s32')
    a('v_mov_b32 v3, s34')
    a('v_mov_b32 v4, s%d' % sFAST)
    a('v_mov_b32 v5, s%d' % sXCC)
    a('s_lshr_b32 s%d, s2, 6' % sA)
    a('s_lshl_b32 s%d, s%d, 4' % (sA, sA))
    a('s_and_b32 s%d, s2, 63' % sB)
    a('s_or_b32 s%d, s%d, s%d' % (sB, sB, sW))
    a('s_cmp_eq_u32 s%d, 0' % sB)
    a('s_cselect_b32 s%d, s%d, 0x%x' % (sA, sA, INV))
    a('v_mov_b32 v6, s%d' % sA)
    a('s_mov_b64 exec, 1')
    a('buffer_store_dwordx4 v[2:5], v6, %s, 0 offen' % srd(S_TMP))
    a('s_mov_b64 exec, -1')
if DIAG:
    stamp()
    a('s_mov_b32 s%d, 63' % sSTI)
    a('s_lshl_b64 exec, 1, s%d' % sSTI)
    a('v_mov_b32 v%d, s%d' % (V_STAMP, sERR))
    a('s_mov_b32 s%d, 62' % sSTI)
    a('s_lshl_b64 exec, 1, s%d' % sSTI)
    a('v_mov_b32 v%d, s%d' % (V_STAMP, sFAST))
    a('s_mov_b64 exec, -1')
    a('s_lshl_b32 s%d, s2, 2' % sA)
    a('s_add_u32 s%d, s%d, s%d' % (sA, sA, sW))
    a('s_lshl_b32 s%d, s%d, 8' % (sA, sA))
    a('v_lshlrev_b32 v2, 2, v0')
    a('s_add_u32 s%d, s%d, %d' % (sA, sA, L.WS_USED))
    a('s_mov_b32 s%d, 0x%x' % (S_WS + 2, L.WS_USED + 256 * 1024))
    a('buffer_store_dword v%d, v2, %s, s%d offen' % (V_STAMP, srd(S_WS), sA))
    if DBGST:
        build_srd(S_TMP, P_DBG, 256)
        a('v_readfirstlane_b32 s%d, v%d' % (sA, V_STAMP))
        a('s_nop 4')
        a('v_subrev_u32 v3, s%d, v%d' % (sA, V_STAMP))
        a('s_or_b32 s%d, s2, s%d' % (sB, sW))
        a('s_cmp_eq_u32 s%d, 0' % sB)
        a('s_cselect_b32 s%d, 0, 0x%x' % (sB, INV))
        a('v_or_b32 v2, s%d, v2' % sB)
        SEL = [int(x[6:]) for x in sys.argv if x.startswith('--sel=')]
        sel = SEL[0] if SEL else 1
        a('v_subrev_u32 v2, %d, v2' % (4 * sel))
        a('buffer_store_dword v3, v2, %s, 0 offen' % srd(S_TMP))
a.label('L_end')
a('s_endpgm')

a.finalize()
body = a.text()

import os
hdr = open(os.path.join(os.path.dirname(os.path.abspath(__file__)), 'header.txt')).read()
out = hdr + '; @launch grid=(256,1,1) block=(256,1,1) lds=%d\n' % L.LDS_BYTES
out += '.amdgcn_target "amdgcn-amd-amdhsa--gfx950"\n.text\n.globl %s_kernel\n.p2align 8\n.type %s_kernel,@function\n%s_kernel:\n' % (NAME, NAME, NAME)
out += body
out += '''.section .rodata,"a"
.p2align 6
.amdhsa_kernel %s_kernel
  .amdhsa_next_free_vgpr 512
  .amdhsa_next_free_sgpr 102
  .amdhsa_accum_offset 256
  .amdhsa_group_segment_fixed_size 0
  .amdhsa_kernarg_size 88
  .amdhsa_user_sgpr_count 2
  .amdhsa_user_sgpr_kernarg_segment_ptr 1
  .amdhsa_system_sgpr_workgroup_id_x 1
.end_amdhsa_kernel
''' % NAME
sys.stdout.write(out)
```

```python
import struct
import sys
from asmlib import Asm
import layout as L

NAME = 'interleave_layers__sliding_local_dilated__mixer_channel_mlp__prompt'
DIAG = '--diag' in sys.argv
FASTMODE = ([x[7:] for x in sys.argv if x.startswith('--fast=')] + ['flags'])[0]
NOFAST = FASTMODE == 'none'
PAD = [int(x[6:]) for x in sys.argv if x.startswith('--pad=')]
DBG = '--dbg' in sys.argv or bool(PAD)
SPIN_LIMIT = 200000
OUTSC = ([x[8:] for x in sys.argv if x.startswith('--outsc=')] + [''])[0].replace('_', ' ')
SLEEP = int(([x[8:] for x in sys.argv if x.startswith('--sleep=')] + ['0'])[0])
INV = 0x80000000

a = Asm()

sXCC = 3
S_WS, S_TMP, S_B1, S_OUT = 4, 8, 12, 16
P_X, P_WQKV, P_WO, P_BX, P_W1, P_B1, P_W2, P_B2, P_OUT, P_DBG, P_WSP = 20, 22, 24, 26, 28, 30, 32, 34, 36, 38, 40
sS, sC, sG, sJ, sW, sT, sPAIR, sSPIN = 42, 43, 44, 45, 46, 47, 48, 49
sM1 = 50
sM2 = 58
sM0 = 66
sO = 74
sA, sB, sCc, sD = 90, 91, 92, 93
sMK = 94
sTS = 96
sGT = 98
sERR = 99
sSTI = 100
sFAST = 101
sFD = 27
sPFC = 26
sFH = 25


def srd(n):
    return 's[%d:%d]' % (n, n + 3)


def vr(n, k=4):
    return 'v[%d:%d]' % (n, n + k - 1)


def ar(n, k=4):
    return 'a[%d:%d]' % (n, n + k - 1)


def sp(n):
    return 's[%d:%d]' % (n, n + 1)


def f2h(x):
    return '0x%08x' % struct.unpack('<I', struct.pack('<f', x))[0]


V_T, V_STAMP = 254, 255
V_TOK, V_G = 250, 251
MFMA = 'v_mfma_f32_16x16x32_bf16'


DIAG2 = '--diag2' in sys.argv
PREF = '--pref' in sys.argv
TOUCH = '--notouch' not in sys.argv
STWAIT = '--stwait' in sys.argv
P2EARLY = '--p2early' in sys.argv
SKEW = [int(x[7:]) for x in sys.argv if x.startswith('--skew=')]
DBGST = '--dbgst' in sys.argv


def stamp2():
    if DIAG2:
        stamp()


def stamp():
    if not DIAG:
        return
    a('%s %s' % ('s_memrealtime' if '--rt' in sys.argv else 's_memtime', sp(sTS)))
    a('s_waitcnt lgkmcnt(0)')
    a('s_lshl_b64 exec, 1, s%d' % sSTI)
    a('v_mov_b32 v%d, s%d' % (V_STAMP, sTS))
    a('s_mov_b64 exec, -1')
    a('s_add_u32 s%d, s%d, 1' % (sSTI, sSTI))


lab_no = [0]


def newlab(p):
    lab_no[0] += 1
    return '%s_%d' % (p, lab_no[0])


def skew_store(point, have=False):
    if not SKEW or SKEW[0] != point:
        return
    if not have:
        a('s_memrealtime s[96:97]')
        a('s_waitcnt lgkmcnt(0)')
    build_srd(S_TMP, P_DBG, 256)
    a('s_and_b32 s%d, s2, 15' % sA)
    a('s_or_b32 s%d, s%d, s%d' % (sA, sA, sW))
    a('s_cmp_eq_u32 s%d, 0' % sA)
    a('s_cselect_b32 s%d, 0, 0x%x' % (sA, INV))
    a('s_lshr_b32 s%d, s2, 2' % sB)
    a('s_or_b32 s%d, s%d, s%d' % (sA, sA, sB))
    a('v_mov_b32 v21, s%d' % sA)
    a('v_mov_b32 v22, s96')
    a('s_mov_b64 exec, 1')
    a('buffer_store_dword v22, v21, %s, 0 offen' % srd(S_TMP))
    a.vm_issued -= 1
    a('s_mov_b64 exec, -1')


def build_srd(dst, ptr, nbytes):
    a('s_mov_b32 s%d, s%d' % (dst, ptr))
    a('s_and_b32 s%d, s%d, 0xffff' % (dst + 1, ptr + 1))
    a('s_mov_b32 s%d, 0x%x' % (dst + 2, nbytes))
    a('s_mov_b32 s%d, 0x20000' % (dst + 3))


def poll(voff, off2=None, sleep=None):
    lab, done = newlab('L_poll'), newlab('L_polldone')
    a('s_mov_b64 exec, %s' % sp(sMK))
    a('s_mov_b32 s%d, 0' % sSPIN)
    a.label(lab)
    a('buffer_load_dword v253, v%d, %s, 0 offen sc1' % (voff, srd(S_WS)))
    if off2 is not None:
        a('buffer_load_dword v245, v%d, %s, 0 offen offset:%d sc1' % (voff, srd(S_WS), off2))
    a('s_waitcnt vmcnt(0)')
    if off2 is not None:
        a('v_xor_b32 v245, s%d, v245' % sT)
        a('v_xor_b32 v253, s%d, v253' % sT)
        a('v_or_b32 v253, v253, v245')
        a('v_cmp_ne_u32 vcc, 0, v253')
    else:
        a('v_cmp_ne_u32 vcc, s%d, v253' % sT)
    a('s_nop 4')
    a('s_cbranch_vccz %s' % done)
    if sleep or SLEEP:
        a('s_sleep %d' % (sleep or SLEEP))
    a('s_add_u32 s%d, s%d, 1' % (sSPIN, sSPIN))
    a('s_cmp_lt_u32 s%d, %d' % (sSPIN, SPIN_LIMIT))
    a('s_cbranch_scc1 %s' % lab)
    a('s_add_u32 s%d, s%d, 1' % (sERR, sERR))
    a.label(done)
    a('s_mov_b64 exec, -1')


sMK2 = 30


def early_issue(dst, voff, off=0):
    a('s_mov_b64 exec, %s' % sp(sMK2))
    a('buffer_load_dword v%d, v%d, %s, 0 offen offset:%d sc1' % (dst, voff, srd(S_WS), off))
    a('s_mov_b64 exec, -1')
    return a.vm_mark()


def early_check(dst, voff, mark, off=0):
    ok = newlab('L_early')
    a.wait_vm(mark)
    a('s_mov_b64 exec, %s' % sp(sMK2))
    a('v_cmp_ne_u32 vcc, s%d, v%d' % (sT, dst))
    a('s_mov_b64 exec, -1')
    a('s_nop 2')
    a('s_cbranch_vccz %s' % ok)
    a('s_mov_b64 %s, %s' % (sp(sMK), sp(sMK2)))
    n = a.vm_issued
    if off:
        a('v_add_u32 v253, %d, v%d' % (off, voff))
        a('v_mov_b32 v%d, v253' % dst)
        poll(dst)
    else:
        poll(voff)
    a.vm_issued = n
    a.label(ok)


def store(fmt, cond=None):
    if cond is None or NOFAST or (FASTMODE == 'flags' and cond in (sFD, sFH, sPC)):
        a(fmt + ' sc1')
        return
    slow, done = newlab('L_slow'), newlab('L_st')
    a('s_cmp_eq_u32 s%d, 0' % cond)
    a('s_cbranch_scc1 %s' % slow)
    a(fmt)
    a('s_branch %s' % done)
    a.label(slow)
    a(fmt + ' sc1')
    a.vm_issued -= 1
    a.label(done)


def set_flags(voff, nlanes, cond=None, val=V_T, between=()):
    mark = a.vm_mark()
    for x in between:
        a(x)
    a.wait_vm(mark)
    a('s_mov_b64 exec, %d' % ((1 << nlanes) - 1))
    store('buffer_store_dword v%d, v%d, %s, 0 offen' % (val, voff, srd(S_WS)), cond)
    a('s_mov_b64 exec, -1')


def xg_reduce(x, t, op='v_add_f32'):
    return ['v_mov_b32 v%d, v%d' % (t, x),
            'v_permlane32_swap_b32 v%d, v%d' % (x, t),
            '%s v%d, v%d, v%d' % (op, x, x, t),
            'v_mov_b32 v%d, v%d' % (t, x),
            'v_permlane16_swap_b32 v%d, v%d' % (x, t),
            '%s v%d, v%d, v%d' % (op, x, x, t)]


EPS = 1e-5


def stats_finish(s1, s2, t, double_ln):
    o = ['v_mul_f32 v%d, %s, v%d' % (s1, f2h(1.0 / 448), s1),
         'v_mul_f32 v%d, %s, v%d' % (s2, f2h(1.0 / 448), s2),
         'v_fma_f32 v%d, -v%d, v%d, v%d' % (s2, s1, s1, s2),
         'v_max_f32 v%d, 0, v%d' % (s2, s2),
         'v_add_f32 v%d, %s, v%d' % (t, f2h(EPS), s2),
         'v_rsq_f32 v%d, v%d' % (t, t)]
    if not double_ln:
        o += ['v_mov_b32 v%d, v%d' % (s2, t)]
    else:
        o += ['v_mul_f32 v%d, v%d, v%d' % (s2, s2, t),
              'v_fmaak_f32 v%d, v%d, v%d, %s' % (s2, s2, t, f2h(EPS)),
              'v_rsq_f32 v%d, v%d' % (s2, s2),
              'v_mul_f32 v%d, v%d, v%d' % (s2, s2, t)]
    return o


def pair_base(dst, arr):
    a('s_mul_i32 s%d, s%d, %d' % (dst, sPAIR, arr[1] - arr[0]))
    a('s_add_u32 s%d, s%d, %d' % (dst, dst, arr[0]))


def quarter_offsets(n, stride):
    for t in range(n):
        if t:
            a('s_add_u32 s%d, s%d, %d' % (sO + 4 * t, sO + 4 * (t - 1), stride))
        for q in range(1, 4):
            a('s_add_u32 s%d, s%d, %d' % (sO + 4 * t + q, sO + 4 * t, 4096 * q))


sPX, sPS, sPF, sPC, sPX2 = 36, 37, 28, 29, 33


def stats_flags(delta, lsh):
    a('v_lshlrev_b32 v241, %d, v0' % lsh)
    a('s_add_u32 s%d, s%d, %d' % (sA, sPF, delta))
    a('v_add_u32 v241, s%d, v241' % sA)
    a('s_mov_b64 exec, 3')
    store('buffer_store_dword v%d, v241, %s, 0 offen' % (V_T, srd(S_WS)), sPFC)
    a('s_mov_b64 exec, -1')


a('s_cmp_ge_u32 s2, 256')
a('s_cbranch_scc1 L_end')
if '--perm' in sys.argv:
    a('s_and_b32 s90, s2, 7')
    a('s_lshr_b32 s91, s2, 3')
    a('s_and_b32 s91, s91, 7')
    a('s_and_b32 s2, s2, 0xc0')
    a('s_lshl_b32 s90, s90, 3')
    a('s_or_b32 s2, s2, s90')
    a('s_or_b32 s2, s2, s91')
a('s_load_dwordx16 s[20:35], s[0:1], 0')
a('s_load_dwordx4 s[36:39], s[0:1], 64')
a('s_load_dwordx2 s[40:41], s[0:1], 80')
a('s_getreg_b32 s%d, hwreg(HW_REG_XCC_ID, 0, 4)' % sXCC)
a('s_and_b32 s%d, s2, 7' % sA)
a('s_lshr_b32 s%d, s2, 3' % sB)
a('s_lshr_b32 s%d, s%d, 4' % (sCc, sB))
a('s_lshl_b32 s%d, s%d, 1' % (sS, sA))
a('s_add_u32 s%d, s%d, s%d' % (sS, sS, sCc))
a('s_and_b32 s%d, s%d, 15' % (sC, sB))
a('s_lshr_b32 s%d, s%d, 3' % (sA, sC))
a('s_lshl_b32 s%d, s%d, 1' % (sG, sS))
a('s_add_u32 s%d, s%d, s%d' % (sG, sG, sA))
a('s_and_b32 s%d, s%d, 7' % (sJ, sC))
a('s_mov_b32 s%d, 0' % sERR)
if SKEW and SKEW[0] == 0:
    a('s_memrealtime s[96:97]')
a('v_lshrrev_b32 v2, 6, v0')
a('v_and_b32 v0, 63, v0')
a('v_readfirstlane_b32 s%d, v2' % sW)
a('v_lshlrev_b32 v1, 4, v0')
if DIAG:
    a('v_mov_b32 v%d, 0' % V_STAMP)
    a('s_mov_b32 s%d, 0' % sSTI)
stamp()
a('v_and_b32 v%d, 15, v0' % V_TOK)
a('v_lshrrev_b32 v%d, 4, v0' % V_G)
sSTG = 40
a('s_waitcnt lgkmcnt(0)')
if DBG:
    a('s_memtime s[26:27]')
    a('s_memrealtime s[0:1]')
    a('s_waitcnt lgkmcnt(0)')
skew_store(0, True)
build_srd(S_WS, P_WSP, L.WS_USED)
a('buffer_load_dword v%d, off, %s, 0 sc1' % (V_T, srd(S_WS)))
a('s_lshl_b32 s%d, s%d, 14' % (sSTG, sW))
a('s_add_u32 s%d, s%d, %d' % (sSTG, sSTG, L.L_R2))

build_srd(S_TMP, P_X, 2048 * 896)
a('v_mul_u32_u24 v2, 896, v%d' % V_TOK)
a('v_lshl_add_u32 v2, v%d, 3, v2' % V_G)
a('s_lshr_b32 s%d, s%d, 1' % (sA, sC))
a('s_lshl_b32 s%d, s%d, 3' % (sB, sS))
a('s_add_u32 s%d, s%d, s%d' % (sO + 0, sA, sB))
a('s_and_b32 s%d, s%d, 1' % (sA, sC))
a('s_mul_i32 s%d, s%d, 7' % (sA, sA))
a('s_add_u32 s%d, s%d, s%d' % (sO + 1, sA, sW))
a('s_cmp_lt_u32 s%d, 3' % sW)
a('s_cselect_b32 s%d, 0, 0x%x' % (sO + 2, INV))
a('s_mul_i32 s%d, s%d, 14336' % (sA, sO + 0))
a('s_lshl_b32 s%d, s%d, 6' % (sB, sO + 1))
a('s_add_u32 s%d, s%d, s%d' % (sA, sA, sB))
a('v_or_b32 v3, s%d, v2' % (sO + 2))
a('buffer_load_dwordx2 v[10:11], v2, %s, s%d offen' % (srd(S_TMP), sA))
a('buffer_load_dwordx2 v[12:13], v2, %s, s%d offen offset:32' % (srd(S_TMP), sA))
a('buffer_load_dwordx2 v[14:15], v3, %s, s%d offen offset:256' % (srd(S_TMP), sA))
a('buffer_load_dwordx2 v[16:17], v3, %s, s%d offen offset:288' % (srd(S_TMP), sA))

build_srd(S_TMP, P_WQKV, 448 * 2688)
qMAT, qU, qINV = sO + 3, sO + 4, sO + 5
a('s_lshl_b32 s%d, s%d, 4' % (sA, sW))
a('s_add_u32 s%d, s%d, s%d' % (sA, sA, sS))
a('s_cmp_lt_u32 s%d, 42' % sA)
a('s_cselect_b32 s%d, 0, 0x%x' % (qINV, INV))
a('s_min_u32 s%d, s%d, 41' % (sA, sA))
a('s_mul_i32 s%d, s%d, 4682' % (qMAT, sA))
a('s_lshr_b32 s%d, s%d, 16' % (qMAT, qMAT))
a('s_mul_i32 s%d, s%d, 14' % (sB, qMAT))
a('s_sub_u32 s%d, s%d, s%d' % (qU, sA, sB))
a('s_mul_i32 s%d, s%d, %d' % (sA, qU, 32 * 2688))
a('s_mul_i32 s%d, s%d, 896' % (sB, qMAT))
a('s_add_u32 s%d, s%d, s%d' % (sA, sA, sB))
a('s_mul_i32 s%d, s%d, 56' % (sB, sC))
a('s_add_u32 s%d, s%d, s%d' % (sA, sA, sB))
a('v_lshrrev_b32 v4, 2, v0')
a('v_mul_u32_u24 v4, 2688, v4')
a('v_and_b32 v5, 3, v0')
a('v_lshl_add_u32 v4, v5, 4, v4')
a('v_or_b32 v4, s%d, v4' % qINV)
a('s_mov_b32 m0, s%d' % sSTG)
a('s_add_u32 s%d, s%d, %d' % (sB, sA, 16 * 2688))
a('buffer_load_dwordx4 v4, %s, s%d offen lds' % (srd(S_TMP), sA))
a('s_add_u32 m0, s%d, 1024' % sSTG)
a('s_nop 0')
a('buffer_load_dwordx4 v4, %s, s%d offen lds' % (srd(S_TMP), sB))

bINV, bDST, bSTR, bINV2, bDST2, sSTRD = 20, 21, 22, 23, 24, 25


def emit_p2_issue():
    a('s_cmp_eq_u32 s%d, 3' % sW)
    a('s_cbranch_scc1 L_p2_w1')
    a('s_lshl_b32 s%d, s%d, 5' % (sA, sW))
    a('s_add_u32 s%d, s%d, s%d' % (sA, sA, sG))
    a('s_cmp_lt_u32 s%d, 72' % sA)
    a('s_cselect_b32 s%d, 0, 0x%x' % (bINV, INV))
    a('s_cmp_eq_u32 s%d, 7' % sJ)
    a('s_cselect_b32 s%d, 0x%x, s%d' % (bINV, INV, bINV))
    a('s_min_u32 s%d, s%d, 71' % (sA, sA))
    a('s_min_u32 s%d, s%d, 6' % (sD, sJ))
    a('s_cmp_lt_u32 s%d, 16' % sA)
    a('s_cselect_b32 s%d, s%d, s%d' % (S_TMP, P_WO, P_W2))
    a('s_cselect_b32 s%d, s%d, s%d' % (S_TMP + 1, P_WO + 1, P_W2 + 1))
    a('s_mov_b32 s%d, 0x%x' % (S_TMP + 2, 1792 * 896))
    a('s_cselect_b32 s%d, 0x%x, s%d' % (S_TMP + 2, 448 * 896, S_TMP + 2))
    a('s_cselect_b32 s%d, 28, 32' % sB)
    a('s_cselect_b32 s%d, 0, 16' % sCc)
    a('s_mov_b32 s%d, %d' % (bSTR, 56 * 1024))
    a('s_cselect_b32 s%d, %d, s%d' % (bSTR, 16 * 1024, bSTR))
    a('s_mov_b32 s%d, %d' % (bDST, L.WD))
    a('s_cselect_b32 s%d, %d, s%d' % (bDST, L.WB, bDST))
    a('s_cselect_b32 s%d, 0x%x, 0' % (sO + 9, INV))
    a('s_and_b32 s%d, s%d, 0xffff' % (S_TMP + 1, S_TMP + 1))
    a('s_mov_b32 s%d, 0x20000' % (S_TMP + 3))
    a('s_sub_u32 s%d, s%d, s%d' % (sA, sA, sCc))
    a('s_lshl_b32 s%d, s%d, 10' % (sCc, sA))
    a('s_add_u32 s%d, s%d, s%d' % (bDST, bDST, sCc))
    a('s_lshl_b32 s%d, s%d, 2' % (sCc, sD))
    a('s_mul_i32 s%d, s%d, s%d' % (sCc, sCc, bSTR))
    a('s_add_u32 s%d, s%d, s%d' % (bDST, bDST, sCc))
    a('s_mul_i32 s%d, s%d, s%d' % (sA, sA, sB))
    a('s_mul_i32 s%d, s%d, 896' % (sA, sA))
    a('s_lshl_b32 s%d, s%d, 7' % (sB, sD))
    a('s_add_u32 s%d, s%d, s%d' % (sO + 10, sA, sB))
    a('s_mov_b32 s%d, 896' % sSTRD)
    a('s_mov_b32 s%d, 0x%x' % (bINV2, INV))
    a('s_mov_b32 s%d, 0' % bDST2)
    a('s_mov_b32 s%d, 0' % (sO + 11))
    a('s_branch L_p2_go')
    a.label('L_p2_w1')
    build_srd(S_TMP, P_W1, 448 * 3584)
    a('s_lshl_b32 s%d, s%d, 4' % (sA, sS))
    a('s_add_u32 s%d, s%d, s%d' % (sA, sA, sC))
    a('s_cmp_lt_u32 s%d, 136' % sA)
    a('s_cselect_b32 s%d, 0, 0x%x' % (bINV2, INV))
    a('s_mov_b32 s%d, 0' % bINV)
    a('s_mov_b32 s%d, 0' % (sO + 9))
    a('s_mov_b32 s%d, %d' % (bSTR, 14 * 1024))
    a('s_mov_b32 s%d, 3584' % sSTRD)
    for dst, src, add in ((bDST, sO + 10, 0), (bDST2, sO + 11, 256)):
        a('s_add_u32 s%d, s%d, %d' % (sB, sA, add))
        a('s_min_u32 s%d, s%d, 391' % (sB, sB))
        a('s_mul_i32 s%d, s%d, 4682' % (sCc, sB))
        a('s_lshr_b32 s%d, s%d, 16' % (sCc, sCc))
        a('s_mul_i32 s%d, s%d, 14' % (sD, sCc))
        a('s_sub_u32 s%d, s%d, s%d' % (sB, sB, sD))
        a('s_mul_i32 s%d, s%d, %d' % (src, sB, 32 * 3584))
        a('s_lshl_b32 s%d, s%d, 7' % (sD, sCc))
        a('s_add_u32 s%d, s%d, s%d' % (src, src, sD))
        a('s_mul_i32 s%d, s%d, 56' % (sD, sCc))
        a('s_add_u32 s%d, s%d, s%d' % (sD, sD, sB))
        a('s_lshl_b32 s%d, s%d, 10' % (sD, sD))
        a('s_add_u32 s%d, s%d, %d' % (dst, sD, L.WC))
    a.label('L_p2_go')
    a('v_lshrrev_b32 v6, 3, v0')
    a('v_mul_lo_u32 v6, v6, s%d' % sSTRD)
    a('v_and_b32 v5, 7, v0')
    a('v_lshl_add_u32 v6, v5, 4, v6')
    a('v_or_b32 v8, s%d, v6' % bINV2)
    a('v_or_b32 v6, s%d, v6' % bINV)
    a('v_cmp_lt_u32 vcc, 31, v0')
    a('v_mov_b32 v7, s%d' % (sO + 9))
    a('v_cndmask_b32 v7, 0, v7, vcc')
    a('v_or_b32 v7, v7, v6')
    a('s_lshl_b32 s%d, s%d, 3' % (sB, sSTRD))
    for slot in range(2):
        src = sO + 10 + slot
        for q in range(4):
            a('s_add_u32 m0, s%d, %d' % (sSTG, 2048 + 4096 * slot + 1024 * q))
            if q:
                a('s_add_u32 s%d, s%d, s%d' % (src, src, sB))
            else:
                a('s_nop 0')
            a('buffer_load_dwordx4 v%d, %s, s%d offen lds' % (8 if slot else (7 if q == 3 else 6), srd(S_TMP), src))


if P2EARLY:
    emit_p2_issue()
build_srd(S_B1, P_B1, 1792 * 2)
build_srd(S_OUT, P_OUT, 2048 * 896)
a('v_bfe_u32 v18, v0, 2, 2')
a('v_lshl_add_u32 v18, v%d, 2, v18' % V_G)
a('v_and_b32 v19, 3, v0')
a('v_lshlrev_b32 v19, 3, v19')
if TOUCH:
    a('v_lshlrev_b32 v21, 21, v0')
    a('s_mov_b64 exec, 0x1ffff')
    a('buffer_load_dword v253, v21, %s, 0 offen' % srd(S_WS))
    a('s_mov_b64 exec, -1')
    a('s_waitcnt vmcnt(%d)' % (9 if P2EARLY else 1))
else:
    a('s_waitcnt vmcnt(%d)' % (8 if P2EARLY else 0))
stamp()

a('s_mov_b32 s%d, 0x9E3779B1' % sA)
a('v_mul_lo_u32 v%d, v%d, s%d' % (V_T, V_T, sA))
a('v_add_u32 v%d, 0x7F4A7C15, v%d' % (V_T, V_T))
a('v_and_b32 v%d, -16, v%d' % (V_T, V_T))
a('v_lshl_add_u32 v20, v18, 6, v19')
a('v_add_u32 v20, s%d, v20' % sSTG)
for hf in range(2):
    a('ds_read_b64_tr_b16 %s, v20 offset:%d' % (vr(24 + 4 * hf, 2), 32 * hf))
    a('ds_read_b64_tr_b16 %s, v20 offset:%d' % (vr(26 + 4 * hf, 2), 32 * hf + 1024))
a('v_readfirstlane_b32 s%d, v%d' % (sT, V_T))
a('s_mul_i32 s%d, s%d, 14' % (sA, sO + 0))
a('s_add_u32 s%d, s%d, s%d' % (sA, sA, sO + 1))
a('s_lshl_b32 s%d, s%d, 10' % (sB, sA))
a('s_add_u32 s%d, s%d, %d' % (sB, sB, L.XA[0]))
a('v_or_b32 v3, s%d, v1' % (sO + 2))
a('buffer_store_dwordx4 v[10:13], v1, %s, s%d offen sc1' % (srd(S_WS), sB))
a('s_add_u32 s%d, s%d, 4096' % (sB, sB))
a('buffer_store_dwordx4 v[14:17], v3, %s, s%d offen sc1' % (srd(S_WS), sB))
a('v_cmp_gt_u32 vcc, 12, v%d' % V_TOK)
a('s_mul_i32 s%d, s%d, 84' % (sB, sC))
a('s_mul_i32 s%d, s%d, 28' % (sCc, qMAT))
a('s_add_u32 s%d, s%d, s%d' % (sB, sB, sCc))
a('s_add_u32 s%d, s%d, s%d' % (sB, sB, qU))
a('s_lshl_b32 s%d, s%d, 10' % (sB, sB))
a('s_add_u32 s%d, s%d, %d' % (sB, sB, L.WA))
a('v_or_b32 v4, s%d, v1' % qINV)
a('s_waitcnt lgkmcnt(0)')
for p in range(4):
    a('v_cndmask_b32 v%d, 0, v%d, vcc' % (28 + p, 28 + p))
a('buffer_store_dwordx4 v[24:27], v4, %s, s%d offen sc1' % (srd(S_WS), sB))
a('s_add_u32 s%d, s%d, %d' % (sB, sB, 14 * 1024))
a('buffer_store_dwordx4 v[28:31], v4, %s, s%d offen sc1' % (srd(S_WS), sB))
a('v_mov_b32 v2, 0x3f803f80')
for k in range(2):
    x, s1, s2 = 10 + 4 * k, 110 + 2 * k, 111 + 2 * k
    a('v_mov_b32 v%d, 0' % s1)
    a('v_mov_b32 v%d, 0' % s2)
    for p in range(4):
        a('v_dot2_f32_bf16 v%d, v%d, v2, v%d' % (s1, x + p, s1))
        a('v_dot2_f32_bf16 v%d, v%d, v%d, v%d' % (s2, x + p, x + p, s2))
    for t in xg_reduce(s1, 114) + xg_reduce(s2, 115):
        a(t)
a('s_lshl_b32 s%d, s%d, 7' % (sB, sA))
a('s_add_u32 s%d, s%d, %d' % (sB, sB, L.SA[0]))
a('v_lshlrev_b32 v2, 3, v%d' % V_TOK)
a('v_or_b32 v3, s%d, v2' % (sO + 2))
a('s_mov_b64 exec, 0xffff')
a('buffer_store_dwordx2 v[110:111], v2, %s, s%d offen sc1' % (srd(S_WS), sB))
a('buffer_store_dwordx2 v[112:113], v3, %s, s%d offen offset:512 sc1' % (srd(S_WS), sB))
a('s_mov_b64 exec, -1')
crit_mark = a.vm_mark()
if not P2EARLY:
    emit_p2_issue()
a('s_lshl_b32 s%d, s%d, 5' % (sA, sO + 0))
a('s_add_u32 s%d, s%d, s%d' % (sA, sA, sO + 1))
a('s_lshl_b32 s%d, s%d, 2' % (sA, sA))
a('s_add_u32 s%d, s%d, %d' % (sA, sA, L.FX[0]))
a('v_lshlrev_b32 v2, 4, v0')
a('v_add_u32 v2, s%d, v2' % sA)
a('v_cmp_eq_u32 vcc, 1, v0')
a('v_mov_b32 v3, s%d' % (sO + 2))
a('v_cndmask_b32 v3, 0, v3, vcc')
a('v_or_b32 v2, v2, v3')
a('s_lshl_b32 s%d, s%d, 6' % (sA, sC))
a('s_lshl_b32 s%d, s%d, 2' % (sB, sS))
a('s_add_u32 s%d, s%d, s%d' % (sA, sA, sB))
a('s_add_u32 s%d, s%d, s%d' % (sA, sA, sW))
a('s_lshl_b32 s%d, s%d, 2' % (sA, sA))
a('s_add_u32 s%d, s%d, %d' % (sA, sA, L.FQ))
a('v_mov_b32 v3, s%d' % sA)
a('v_cmp_eq_u32 vcc, 2, v0')
a('v_cndmask_b32 v2, v2, v3, vcc')
a('s_lshl_b32 s%d, s%d, 4' % (sA, sS))
a('s_add_u32 s%d, s%d, s%d' % (sA, sA, sC))
a('s_lshl_b32 s%d, s%d, 2' % (sA, sA))
a('s_add_u32 s%d, s%d, %d' % (sA, sA, L.FXC))
a('s_cmp_eq_u32 s%d, 0' % sW)
a('s_cselect_b32 s%d, s%d, 0x%x' % (sA, sA, INV))
a('v_mov_b32 v3, s%d' % sA)
a('v_cmp_eq_u32 vcc, 3, v0')
a('v_cndmask_b32 v2, v2, v3, vcc')
a('v_or_b32 v3, s%d, v%d' % (sXCC, V_T))
a('v_cndmask_b32 v3, v%d, v3, vcc' % V_T)
stamp2()
a.wait_vm(crit_mark)
a('s_mov_b64 exec, 15')
a('buffer_store_dword v3, v2, %s, 0 offen sc1' % srd(S_WS))
a('s_mov_b64 exec, -1')
stamp()

if PREF:
    a('s_getpc_b64 s[96:97]')
    a.label('L_pc')
    a('s_lshr_b32 s%d, s2, 3' % sA)
    a('s_lshl_b32 s%d, s%d, 11' % (sA, sA))
    a('s_lshl_b32 s%d, s%d, 9' % (sB, sW))
    a('s_add_u32 s%d, s%d, s%d' % (sA, sA, sB))
    a('v_lshlrev_b32 v21, 3, v0')
    a('v_add_u32 v21, s%d, v21' % sA)
    a('v_min_u32 v21, L_end-L_pc-8, v21')
    a('global_load_dwordx2 v[58:59], v21, s[96:97]')
skew_store(1)
a('s_waitcnt vmcnt(%d)' % (2 if PREF else 1))
a('v_lshl_add_u32 v20, v18, 7, v19')
a('v_add_u32 v20, s%d, v20' % sSTG)
for slot in range(2):
    for t in range(4):
        a('ds_read_b64_tr_b16 %s, v20 offset:%d' % (vr(24 + 16 * slot + 4 * t, 2), 2048 + 4096 * slot + 32 * t))
        a('ds_read_b64_tr_b16 %s, v20 offset:%d' % (vr(26 + 16 * slot + 4 * t, 2), 2048 + 4096 * slot + 32 * t + 2048))
a('v_or_b32 v6, s%d, v1' % bINV)
a('v_or_b32 v8, s%d, v1' % bINV2)
a('s_waitcnt lgkmcnt(8)')
for t in range(4):
    a('buffer_store_dwordx4 %s, v6, %s, s%d offen sc1' % (vr(24 + 4 * t), srd(S_WS), bDST))
    if t < 3:
        a('s_add_u32 s%d, s%d, s%d' % (bDST, bDST, bSTR))
a('s_waitcnt lgkmcnt(0)')
for t in range(4):
    a('buffer_store_dwordx4 %s, v8, %s, s%d offen sc1' % (vr(40 + 4 * t), srd(S_WS), bDST2))
    if t < 3:
        a('s_add_u32 s%d, s%d, s%d' % (bDST2, bDST2, bSTR))
a('s_lshl_b32 s%d, s%d, 4' % (sA, sS))
a('s_add_u32 s%d, s%d, s%d' % (sA, sA, sC))
a('s_lshl_b32 s%d, s%d, 2' % (sA, sA))
a('s_add_u32 s%d, s%d, %d' % (sA, sA, L.FW1))
a('v_lshlrev_b32 v22, 10, v0')
a('v_add_u32 v22, s%d, v22' % sA)
a('v_cmp_eq_u32 vcc, 1, v0')
a('v_mov_b32 v23, s%d' % bINV2)
a('v_cndmask_b32 v23, 0, v23, vcc')
a('v_or_b32 v22, v22, v23')
a('s_cmp_eq_u32 s%d, 3' % sW)
a('s_cselect_b32 s%d, 0, 0x%x' % (sA, INV))
a('v_or_b32 v22, s%d, v22' % sA)

skew_store(3)
a('v_and_b32 v2, 1, v%d' % V_TOK)
a('v_lshlrev_b32 v3, 2, v%d' % V_G)
a('v_add_u32 v6, 2, v%d' % V_TOK)
for i in range(4):
    a('v_add_u32 v4, %d, v3' % i)
    a('v_cmp_eq_u32 vcc, %d, v2' % (i & 1))
    a('s_mov_b64 %s, vcc' % sp(sMK))
    a('v_cmp_ge_u32 vcc, v4, v6')
    a('s_and_b64 %s, vcc, %s' % (sp(sM1 + 2 * i), sp(sMK)))
    a('v_cmp_le_u32 vcc, v4, v%d' % V_TOK)
    a('s_and_b64 %s, vcc, %s' % (sp(sM2 + 2 * i), sp(sMK)))
a('s_lshl_b32 s%d, s%d, 3' % (sA, sS))
a('s_lshl_b32 s%d, s%d, 1' % (sB, sW))
a('s_add_u32 s%d, s%d, s%d' % (sGT, sA, sB))
a('s_cmp_eq_u32 s%d, 0' % sGT)
for i in range(4):
    a('s_cselect_b64 %s, 0, %s' % (sp(sM0 + 2 * i), sp(sM1 + 2 * i)))
a('s_mov_b32 s%d, 0' % sPAIR)

def a_flag_addr(dst):
    pair_base(sA, L.FX)
    a('s_lshl_b32 s%d, s%d, 7' % (sB, sGT))
    a('s_add_u32 s%d, s%d, s%d' % (sA, sA, sB))
    a('s_sub_u32 s%d, s%d, 128' % (sA, sA))
    a('v_and_b32 v%d, 48, v0' % dst)
    a('v_add_u32 v%d, v%d, v0' % (dst, dst))
    a('v_lshl_add_u32 v%d, v%d, 2, s%d' % (dst, dst, sA))
    a('s_mov_b32 s%d, 0x3fff3fff' % sMK)
    a('s_mov_b32 s%d, 0x3fff' % (sMK + 1))
    a('s_cmp_eq_u32 s%d, 0' % sGT)
    a('s_cselect_b32 s%d, 0x3fff0000, s%d' % (sMK, sMK))


a('s_lshl_b32 s%d, s%d, 8' % (sA, sC))
a('s_add_u32 s%d, s%d, %d' % (sA, sA, L.FQ))
a('v_lshl_add_u32 v2, v0, 2, s%d' % sA)
a_flag_addr(3)
a('s_lshl_b32 s%d, s%d, 6' % (sA, sS))
a('s_add_u32 s%d, s%d, %d' % (sA, sA, L.FXC - 48 * 4))
a('v_lshl_add_u32 v4, v0, 2, s%d' % sA)
a('v_cmp_lt_u32 vcc, 47, v0')
a('v_cndmask_b32 v3, v3, v4, vcc')
a('v_mov_b32 v5, -1')
a('v_mov_b32 v6, -16')
a('v_cndmask_b32 v5, v5, v6, vcc')
a('s_or_b32 s%d, s%d, 0xffff0000' % (sMK + 1, sMK + 1))
a('s_mov_b32 s%d, 0' % sSPIN)
a.label('L_poll0')
a('buffer_load_dword v7, v2, %s, 0 offen sc1' % srd(S_WS))
a('s_mov_b64 exec, %s' % sp(sMK))
a('buffer_load_dword v8, v3, %s, 0 offen sc1' % srd(S_WS))
a('s_waitcnt vmcnt(0)')
a('v_and_b32 v9, v5, v8')
a('v_cmp_ne_u32 vcc, s%d, v9' % sT)
a('s_mov_b64 exec, -1')
a('s_mov_b64 %s, vcc' % sp(sTS))
a('v_cmp_ne_u32 vcc, s%d, v7' % sT)
a('s_or_b64 vcc, vcc, %s' % sp(sTS))
a('s_cbranch_vccz L_poll0_done')
a('s_add_u32 s%d, s%d, 1' % (sSPIN, sSPIN))
a('s_cmp_lt_u32 s%d, %d' % (sSPIN, SPIN_LIMIT))
a('s_cbranch_scc1 L_poll0')
a('s_add_u32 s%d, s%d, 1' % (sERR, sERR))
a.label('L_poll0_done')
a('s_mov_b64 exec, 3')
a('buffer_store_dword v%d, v22, %s, 0 offen sc1' % (V_T, srd(S_WS)))
a('s_mov_b64 exec, -1')
skew_store(2)
a('v_and_b32 v9, 15, v8')
a('v_cmp_ne_u32 vcc, s%d, v9' % sXCC)
a('s_and_b32 s%d, vcc_hi, 0xffff0000' % sA)
a('s_cmp_eq_u32 s%d, 0' % sA)
a('s_cselect_b32 s%d, 1, 0' % sFAST)
stamp()
AQ, AK, AV, HACC = 2, 18, 34, 50
WBUF = [66, 90]
XR = 114
CSACC = 186
STR = 210
SM, SR = 234, 237
NR, LOOK = 6, 4
A_ONES = 240


def a_xload(u):
    slot = u % NR
    return ['buffer_load_dwordx4 %s, v1, %s, s%d offen offset:%d sc1' %
            (vr(XR + (slot * 2 + t) * 4), srd(S_WS), sO + 4 * (t + 1) + (u >> 2), 1024 * (u & 3)) for t in range(2)]


def a_offsets():
    pair_base(sA, L.XA)
    a('s_mul_i32 s%d, s%d, 14336' % (sB, sGT))
    a('s_add_u32 s%d, s%d, s%d' % (sO + 4, sA, sB))
    a('s_add_u32 s%d, s%d, 14336' % (sO + 8, sO + 4))
    for t in range(1, 3):
        for q in range(1, 4):
            a('s_add_u32 s%d, s%d, %d' % (sO + 4 * t + q, sO + 4 * t, 4096 * q))
    a('s_lshl_b32 s%d, s%d, 3' % (sB, sS))
    a('s_max_u32 s%d, s%d, 1' % (sB, sB))
    a('s_sub_u32 s%d, s%d, 1' % (sB, sB))
    a('s_mul_i32 s%d, s%d, 14336' % (sB, sB))
    a('s_add_u32 s%d, s%d, s%d' % (sO + 0, sA, sB))
    a('s_lshl_b32 s%d, s%d, 12' % (sB, sW))
    a('s_add_u32 s%d, s%d, s%d' % (sO + 0, sO + 0, sB))
    a('s_add_u32 s%d, s%d, %d' % (sO + 1, sB, L.L_R2))


def a_setup():
    if FASTMODE == 'flags':
        a('s_mov_b32 s%d, 0' % sFD)
        a('s_mov_b32 s%d, 0' % sFH)
    elif FASTMODE == 'p0':
        a('s_xor_b32 s%d, s%d, 1' % (sFD, sPAIR))
        a('s_and_b32 s%d, s%d, s%d' % (sFD, sFD, sFAST))
        a('s_mov_b32 s%d, s%d' % (sFH, sFD))
    elif FASTMODE == 'small':
        a('s_mov_b32 s%d, s%d' % (sFD, sFAST))
        a('s_mov_b32 s%d, 0' % sFH)
    elif FASTMODE == 'smallp0':
        a('s_mov_b32 s%d, s%d' % (sFD, sFAST))
        a('s_xor_b32 s%d, s%d, 1' % (sFH, sPAIR))
        a('s_and_b32 s%d, s%d, s%d' % (sFH, sFH, sFAST))
    else:
        a('s_mov_b32 s%d, s%d' % (sFD, sFAST))
        a('s_mov_b32 s%d, s%d' % (sFH, sFAST))
    pair_base(sA, L.SA)
    a('s_mul_i32 s%d, s%d, 1792' % (sB, sGT))
    a('s_add_u32 s%d, s%d, s%d' % (sO + 13, sA, sB))
    a('s_add_u32 s%d, s%d, 1792' % (sO + 14, sO + 13))
    a('s_sub_u32 s%d, s%d, 1792' % (sO + 12, sO + 13))
    a('s_cmp_eq_u32 s%d, 0' % sGT)
    a('s_cselect_b32 s%d, s%d, s%d' % (sO + 12, sO + 13, sO + 12))
    a('v_and_b32 v%d, 15, v0' % V_TOK)
    a('v_lshrrev_b32 v%d, 4, v0' % V_G)
    a('v_lshlrev_b32 v240, 3, v%d' % V_TOK)
    a('v_lshl_add_u32 v240, v%d, 7, v240' % V_G)
    a('v_mov_b32 v242, 0x%x' % INV)
    a('v_cmp_lt_u32 vcc, 1, v%d' % V_G)
    a('v_cndmask_b32 v241, 0, v242, vcc')
    a('v_or_b32 v241, v241, v240')
    a('v_add_u32 v243, %d, v1' % (56 * 1024))
    a('v_lshlrev_b32 v244, 4, v%d' % V_G)
    a('v_add_u32 v244, %d, v244' % L.L_CSA)
    a('v_lshlrev_b32 v245, 2, v%d' % V_TOK)
    a('v_add_u32 v245, %d, v245' % L.L_CSA)
    a('s_lshl_b32 s%d, s%d, 7' % (sA, sJ))
    a('s_add_u32 s%d, s%d, %d' % (sA, sA, L.FP))
    a('v_lshl_add_u32 v248, v0, 2, s%d' % sA)
    a('s_lshr_b32 s%d, s%d, 1' % (sB, sW))
    a('s_lshl_b32 s%d, s%d, 2' % (sCc, sG))
    a('s_add_u32 s%d, s%d, s%d' % (sB, sB, sCc))
    a('s_lshl_b32 s%d, s%d, 5' % (sB, sB))
    a('s_and_b32 s%d, s%d, 1' % (sA, sW))
    a('s_add_u32 s%d, s%d, s%d' % (sB, sB, sA))
    a('s_min_u32 s%d, s%d, 6' % (sA, sJ))
    a('s_lshl_b32 s%d, s%d, 1' % (sA, sA))
    a('s_add_u32 s%d, s%d, s%d' % (sB, sB, sA))
    a('s_lshl_b32 s%d, s%d, 2' % (sB, sB))
    a('s_add_u32 s%d, s%d, %d' % (sB, sB, L.FX[0] - 32 * 256))
    a('v_lshl_add_u32 v249, v0, 8, s%d' % sB)
    a('v_cmp_lt_u32 vcc, 31, v0')
    a('v_cndmask_b32 v248, v248, v249, vcc')
    a('s_lshr_b32 s%d, s%d, 3' % (sA, sC))
    a('s_mul_i32 s%d, s%d, 7' % (sA, sA))
    a('s_min_u32 s%d, s%d, 6' % (sB, sJ))
    a('s_add_u32 s%d, s%d, s%d' % (sA, sA, sB))
    a('s_mul_i32 s%d, s%d, 112' % (sA, sA))
    a('s_add_u32 s%d, s%d, %d' % (sA, sA, L.FW1 - 34 * 4))
    a('v_lshl_add_u32 v249, v0, 2, s%d' % sA)
    a('v_cmp_lt_u32 vcc, 33, v0')
    a('v_cndmask_b32 v248, v248, v249, vcc')
    a('s_lshl_b32 s%d, s%d, 7' % (sA, sS))
    a('s_add_u32 s%d, s%d, %d' % (sA, sA, L.FH))
    a('v_and_b32 v247, 15, v0')
    a('v_lshl_add_u32 v247, v247, 2, s%d' % sA)
    a('s_lshl_b32 s%d, s%d, 7' % (sB, sGT))
    a('s_add_u32 s%d, s%d, %d' % (sB, sB, L.FX[1] - 128))
    a('v_lshl_add_u32 v253, v0, 2, s%d' % sB)
    a('s_cmp_eq_u32 s%d, 0' % sW)
    a('s_cselect_b32 s%d, 0, 16' % sA)
    a('v_cmp_gt_u32 vcc, s%d, v0' % sA)
    a('v_cndmask_b32 v247, v247, v253, vcc')
    a('s_mov_b32 s%d, 0x3fff3fff' % sMK2)
    a('s_mov_b32 s%d, 0' % (sMK2 + 1))
    a('s_cmp_eq_u32 s%d, 0' % sS)
    a('s_cselect_b32 s%d, 0x3fff, s%d' % (sMK2, sMK2))
    a('v_and_b32 v253, 15, v0')
    a('v_lshlrev_b32 v253, 2, v253')
    a('v_add_u32 v253, %d, v253' % L.FX[1])
    a('s_cmp_eq_u32 s%d, 0' % sGT)
    a('s_cselect_b64 vcc, -1, 0')
    a('v_cndmask_b32 v247, v247, v253, vcc')


stat_loads = ['buffer_load_dwordx2 %s, v%d, %s, s%d offen offset:%d sc1' %
              (vr(STR + (t * 4 + i) * 2, 2), 241 if i == 3 else 240, srd(S_WS), sO + 12 + t, 512 * i)
              for t in range(3) for i in range(4)]


def a_wread(u):
    b = WBUF[u & 1]
    o = []
    for p in range(6):
        if p < 4:
            o.append('ds_read_b128 %s, v1 offset:%d' % (vr(b + 4 * p), L.L_WA + (p * 14 + u) * 1024))
        else:
            o.append('ds_read_b128 %s, v243 offset:%d' % (vr(b + 4 * p), L.L_WA + ((p - 4) * 14 + u) * 1024))
    return o


stat_fill = []
for t in range(3):
    r = STR + 8 * t
    for c_ in range(2):
        stat_fill += ['v_add_f32 v%d, v%d, v%d' % (r + c_, r + c_, r + 2 + c_),
                      'v_add_f32 v%d, v%d, v%d' % (r + 4 + c_, r + 4 + c_, r + 6 + c_),
                      'v_add_f32 v%d, v%d, v%d' % (r + c_, r + c_, r + 4 + c_)]
    stat_fill += xg_reduce(r, r + 2) + xg_reduce(r + 1, r + 3)
    stat_fill += stats_finish(r, r + 1, r + 2, False)
    stat_fill += ['v_mov_b32 v%d, v%d' % (SM + t, r), 'v_mov_b32 v%d, v%d' % (SR + t, r + 1)]

sWA = [20, 21, 22]
sWAG = 23


def wa_dma(pr, i):
    def f():
        a('s_add_u32 m0, s%d, %d' % (sWA[i], L.L_WA + 2048 * pr))
        a('s_add_u32 s%d, s%d, s%d' % (sD, sWA[i], sWAG))
        if pr:
            a('s_add_u32 s%d, s%d, %d' % (sD, sD, 2048 * pr))
        a('buffer_load_dwordx4 v1, %s, s%d offen sc1 lds' % (srd(S_WS), sD))
    return f


amark = {}


def emit_a_loop(first, xmark, wam):
    ep_mark = es_mark = st_mark = None
    for t in a_wread(0):
        a(t)
    for u in range(14):
        need = xmark[u]
        if u == 11:
            need = max(need, st_mark)
        a.wait_vm(need)
        if not first and u == 6:
            early_check(246, 247, es_mark)
            a('s_nop 0')
        if u == 11:
            a('s_mov_b32 s%d, -1' % sMK2)
            a('s_mov_b32 s%d, 0x3fffffff' % (sMK2 + 1))
        a('s_waitcnt lgkmcnt(0)')
        wb = WBUF[u & 1]
        xs = XR + (u % NR) * 8
        mf = []
        cz = (lambda r: '0') if u == 0 else (lambda r: vr(r))
        for t in range(2):
            for hf in range(2):
                r = AQ + (t * 2 + hf) * 4
                mf.append('%s %s, %s, %s, %s' % (MFMA, vr(r), vr(wb + 4 * hf), vr(xs + 4 * t), cz(r)))
        for t in range(2):
            for hf in range(2):
                r = AK + (t * 2 + hf) * 4
                mf.append('%s %s, %s, %s, %s' % (MFMA, vr(r), vr(wb + 8 + 4 * hf), vr(xs + 4 * t), cz(r)))
        for t in range(2):
            for hf in range(2):
                r = AV + (t * 2 + hf) * 4
                mf.append('%s %s, %s, %s, %s' % (MFMA, vr(r), vr(xs + 4 * t), vr(wb + 16 + 4 * hf), cz(r)))
        if first:
            mf.append('%s %s, %s, %s, %s' % (MFMA, vr(CSACC + 8), vr(CSACC), ar(A_ONES), cz(CSACC + 8)))
            mf.append('%s %s, %s, %s, %s' % (MFMA, vr(CSACC + 12), ar(A_ONES), vr(CSACC + 4), cz(CSACC + 12)))
        mem = {}

        def put(k, x):
            mem.setdefault(k, []).append(x)
        nm = len(mf)
        off = 0
        if first:
            a('ds_read_b128 %s, v252 offset:%d' % (vr(CSACC), 1024 * u))
            a('ds_read_b128 %s, v242 offset:%d' % (vr(CSACC + 4), 1024 * u))
            put(11, 's_waitcnt lgkmcnt(%d)' % (6 if u < 13 else 0))
        if first and u % 2 == 1 and u < 13:
            put(2, ('bar', (u + 1) // 2))
            off = 3
        if u < 13:
            for k, x in enumerate(a_wread(u + 1)):
                put(off + k, x)
        elif not first:
            for p in range(4):
                put(p, 'ds_read_b128 %s, v244 offset:%d' % (vr(WBUF[0] + 4 * p), 64 * p))
            for d in range(2):
                put(4 + d, 'ds_read_b32 v%d, v245 offset:%d' % (WBUF[0] + 16 + d, 64 * (4 + d)))
        if first and u < 2:
            for j_, uu in enumerate((2 * u + 2, 2 * u + 3)):
                for k, x in zip((6, 8), a_xload(uu)):
                    put(k + 4 * j_, x)
                put(8 + 4 * j_, ('xm', uu))
            if u == 0:
                for i, k in enumerate((7, 9, 11)):
                    put(k, ('wa', 2, i))
        elif u + LOOK < 14:
            for k, x in zip((6, 9), a_xload(u + LOOK)):
                put(k, x)
            put(9, ('xm', u + LOOK))
        if first and u % 2 == 0 and u // 2 + 3 <= 6:
            for i, k in enumerate((12, 13, 13) if u == 0 else (7, 10, 12)):
                put(k, ('wa', u // 2 + 3, i))
        order = list(range(4, 12)) + list(range(0, 4))
        if 2 <= u < 6:
            for k, x in zip((8, 11), order[2 * (u - 2):2 * (u - 2) + 2]):
                put(k, stat_loads[x])
        if not first and u == 3:
            put(7, ('estat',))
        if u in (7, 8):
            for k, x in zip((8, 11), order[8 + 2 * (u - 7):8 + 2 * (u - 7) + 2]):
                put(k, stat_loads[x])
            if u == 8:
                put(11, ('st',))
        if u == 6:
            put(10, 's_mov_b32 m0, s%d' % (sO + 1))
            for i, k in enumerate((10, 10, 11, 11)):
                put(k, 'buffer_load_dwordx4 v1, %s, s%d offen offset:%d sc1 lds' % (srd(S_WS), sO + 0, 1024 * i))
            put(11, ('hm',))
        if u == 13:
            put(8, ('early',))
        fill = stat_fill[(u - 11) * 22:(u - 10) * 22] if u >= 11 else []
        fi = 0
        for k, m in enumerate(mf):
            a(m)
            for it in mem.get(k, []):
                if isinstance(it, str):
                    a(it)
                elif it[0] == 'early':
                    ep_mark = early_issue(249, 248)
                elif it[0] == 'estat':
                    es_mark = early_issue(246, 247)
                elif it[0] == 'xm':
                    xmark[it[1]] = a.vm_mark()
                elif it[0] == 'st':
                    st_mark = a.vm_mark()
                elif it[0] == 'hm':
                    amark['halo'] = a.vm_mark()
                elif it[0] == 'bar':
                    a.wait_vm(wam[it[1]])
                    a('s_barrier')
                elif it[0] == 'wa':
                    wa_dma(it[1], it[2])()
                    wam[it[1]] = a.vm_mark()
            for _ in range(2):
                if fi < len(fill) and k >= 1:
                    a(fill[fi])
                    fi += 1
        assert fi == len(fill), (u, fi, len(fill))
    amark['ep'] = ep_mark


for p in range(4):
    a('v_mov_b32 v4, 0x3f803f80')
    a('v_accvgpr_write_b32 a%d, v4' % (A_ONES + p))
a('s_mul_i32 s%d, s%d, 14336' % (sWA[0], sW))
a('s_add_u32 s%d, s%d, 4' % (sA, sW))
a('s_mul_i32 s%d, s%d, 14336' % (sA, sA))
a('s_sub_u32 s%d, s%d, 2' % (sB, sW))
a('s_mul_i32 s%d, s%d, 14336' % (sB, sB))
a('s_add_u32 s%d, s%d, 1024' % (sB, sB))
a('s_cmp_lt_u32 s%d, 2' % sW)
a('s_cselect_b32 s%d, s%d, s%d' % (sWA[1], sA, sB))
a('s_add_u32 s%d, s%d, 2' % (sA, sW))
a('s_mul_i32 s%d, s%d, 14336' % (sA, sA))
a('s_add_u32 s%d, s%d, 1024' % (sWA[2], sA))
a('s_mul_i32 s%d, s%d, %d' % (sWAG, sC, 84 * 1024))
a('s_add_u32 s%d, s%d, %d' % (sWAG, sWAG, L.WA))
a_offsets()
xm0, wam0 = {}, {}


def wa_pair(pr):
    for i in range(3):
        wa_dma(pr, i)()
    wam0[pr] = a.vm_mark()


wa_pair(0)
for u in range(2):
    for t in a_xload(u):
        a(t)
    xm0[u] = a.vm_mark()
wa_pair(1)
a_setup()
a('s_mul_i32 s%d, s%d, 14336' % (sA, sW))
a('v_add_u32 v252, s%d, v1' % sA)
a('s_and_b32 s%d, s%d, 1' % (sA, sW))
a('s_mul_i32 s%d, s%d, 14336' % (sA, sA))
a('v_add_u32 v242, s%d, v243' % sA)
a.wait_vm(wam0[0])
a('s_barrier')
a('s_lshl_b32 s%d, s%d, 5' % (sA, sJ))
a('s_add_u32 s%d, s%d, s%d' % (sA, sA, sG))
a('s_lshl_b32 s%d, s%d, 2' % (sA, sA))
a('s_add_u32 s%d, s%d, %d' % (sA, sA, L.FP))
a('s_cmp_eq_u32 s%d, 0' % sW)
a('s_cselect_b32 s%d, s%d, 0x%x' % (sA, sA, INV))
a('v_mov_b32 v2, s%d' % sA)
a('s_mov_b64 exec, 1')
a('buffer_store_dword v%d, v2, %s, 0 offen sc1' % (V_T, srd(S_WS)))
a.vm_issued -= 1
a('s_mov_b64 exec, -1')
stamp()
emit_a_loop(True, xm0, wam0)
n_join = a.vm_issued - amark['ep']
CSQ = WBUF[0]
a('v_cmp_eq_u32 vcc, 0, v%d' % V_TOK)
a('s_lshl_b32 s%d, s%d, 6' % (sA, sW))
a('v_add_u32 v252, s%d, v244' % sA)
a('s_and_b32 s%d, s%d, 1' % (sA, sW))
a('s_lshl_b32 s%d, s%d, 6' % (sA, sA))
a('v_add_u32 v242, s%d, v245' % sA)
a('s_mov_b64 exec, vcc')
a('ds_write_b128 v252, %s' % vr(CSACC + 8))
a('s_mov_b64 exec, 0xffff')
a('ds_write_b32 v242, v%d offset:256' % (CSACC + 12))
a('s_mov_b64 exec, -1')
a('s_waitcnt lgkmcnt(0)')
a('s_barrier')
for p in range(4):
    a('ds_read_b128 %s, v244 offset:%d' % (vr(WBUF[0] + 4 * p), 64 * p))
for d in range(2):
    a('ds_read_b32 v%d, v245 offset:%d' % (WBUF[0] + 16 + d, 64 * (4 + d)))
a('s_branch L_a_epi')

a.label('L_pair')
a_flag_addr(2)
a('s_mov_b32 s%d, 0x3fff0000' % sMK)
ASLEEP = int(([x[9:] for x in sys.argv if x.startswith('--asleep=')] + ['0'])[0])
poll(2, None, ASLEEP)
stamp()
a_offsets()
xmark = {}
for u in range(LOOK):
    for t in a_xload(u):
        a(t)
    xmark[u] = a.vm_mark()
a_setup()
emit_a_loop(False, xmark, None)
assert a.vm_issued - amark['ep'] == n_join
ep_mark = amark['ep']
a.label('L_a_epi')
stamp()
a('s_add_u32 s%d, s%d, 2' % (sA, sW))
a('s_mul_i32 s%d, s%d, 14336' % (sA, sA))
a('v_add_u32 v246, s%d, v1' % sA)
a('v_add_u32 v247, %d, v1' % L.L_R2)
a('s_cmp_lt_u32 s%d, 2' % sW)
a('s_cselect_b64 vcc, -1, 0')
a('v_cndmask_b32 v252, v247, v246, vcc')
a('v_cndmask_b32 v253, v246, v247, vcc')
a.wait_vm(amark['halo'])
a('s_barrier')
HOP = 90
def h_reads(u):
    r = HOP + 8 * (u % 3)
    return ['ds_read_b128 %s, v252 offset:%d' % (vr(r), 1024 * u), 'ds_read_b128 %s, v253 offset:%d' % (vr(r + 4), 1024 * u)]
for u in range(2):
    for x in h_reads(u):
        a(x)
rest = stat_fill[66:]
for u in range(14):
    if u + 2 < 14:
        for x in h_reads(u + 2):
            a(x)
    a('s_waitcnt lgkmcnt(%d)' % (4 if u < 12 else (2 if u == 12 else 0)))
    r = HOP + 8 * (u % 3)
    a('%s %s, %s, %s, %s' % (MFMA, vr(HACC), vr(r), vr(r + 4), '0' if u == 0 else vr(HACC)))
    if rest:
        a(rest.pop(0))
for x in rest:
    a(x)
stamp2()
early_check(249, 248, ep_mark)
BW = 2
a('s_lshl_b32 s%d, s%d, 6' % (sA, sJ))
a('s_lshl_b32 s%d, s%d, 2' % (sB, sW))
a('s_add_u32 s%d, s%d, s%d' % (sA, sA, sB))
a('s_lshl_b32 s%d, s%d, 10' % (sA, sA))
a('s_add_u32 s20, s%d, %d' % (sA, L.WB))
for t in range(1, 4):
    a('s_add_u32 s%d, s20, %d' % (20 + t, 16 * 1024 * t))
wb_all = ['buffer_load_dwordx4 %s, v1, %s, s%d offen offset:%d sc1' % (vr(BW + (i * 4 + t) * 4), srd(S_WS), 20 + t, 1024 * i)
          for i in range(4) for t in range(4)]
for x in wb_all[13:16]:
    a(x)
wb_loads = wb_all[8:13]
A_RES, A_B2 = 224, 232


def red_addrs():
    a('s_lshl_b32 s%d, s%d, 13' % (sA, sW))
    a('s_add_u32 s%d, s%d, %d' % (sA, sA, L.L_R2))
    a('v_add_u32 v248, s%d, v1' % sA)
    a('s_and_b32 s%d, s%d, 1' % (sA, sW))
    a('s_lshl_b32 s%d, s%d, 11' % (sA, sA))
    a('s_lshr_b32 s%d, s%d, 1' % (sB, sW))
    a('s_lshl_b32 s%d, s%d, 12' % (sB, sB))
    a('s_add_u32 s%d, s%d, s%d' % (sA, sA, sB))
    a('s_add_u32 s%d, s%d, %d' % (sA, sA, L.L_R2))
    a('v_add_u32 v249, s%d, v1' % sA)


def publish_setup(xbase, sbase, fbase, per_pair, fsh):
    owner_index()
    a('s_mul_i32 s%d, s%d, 14' % (sCc, sB))
    a('s_add_u32 s%d, s%d, s%d' % (sCc, sCc, sA))
    a('s_lshl_b32 s%d, s%d, 10' % (sPX, sCc))
    a('s_lshl_b32 s%d, s%d, 7' % (sPS, sCc))
    a('s_lshl_b32 s%d, s%d, %d' % (sPF, sB, fsh))
    a('s_add_u32 s%d, s%d, s%d' % (sPF, sPF, sA))
    a('s_lshl_b32 s%d, s%d, 2' % (sPF, sPF))
    for dst, arr in ((sPX, xbase), (sPS, sbase), (sPF, fbase)):
        if per_pair:
            pair_base(sD, arr)
            a('s_add_u32 s%d, s%d, s%d' % (dst, dst, sD))
        else:
            a('s_add_u32 s%d, s%d, %d' % (dst, dst, arr))
    a('s_add_u32 s%d, s%d, %d' % (sPX2, sPX, 2 * 14336))


def owner_index():
    a('s_lshr_b32 s%d, s%d, 1' % (sB, sW))
    a('s_lshl_b32 s%d, s%d, 2' % (sCc, sG))
    a('s_add_u32 s%d, s%d, s%d' % (sB, sB, sCc))
    a('s_and_b32 s%d, s%d, 1' % (sA, sW))
    a('s_lshl_b32 s%d, s%d, 1' % (sCc, sJ))
    a('s_add_u32 s%d, s%d, s%d' % (sA, sA, sCc))


a('s_cmp_eq_u32 s%d, 0' % sPAIR)
a('s_cbranch_scc0 L_a_nores')
owner_index()
a('s_mul_i32 s%d, s%d, 14' % (sB, sB))
a('s_add_u32 s%d, s%d, s%d' % (sB, sB, sA))
a('s_lshl_b32 s%d, s%d, 10' % (sB, sB))
a('s_add_u32 s%d, s%d, %d' % (sB, sB, L.XA[0]))
a('buffer_load_dwordx4 %s, v1, %s, s%d offen sc1' % (ar(A_RES), srd(S_WS), sB))
a('s_add_u32 s%d, s%d, %d' % (sB, sB, 2 * 14336))
a('buffer_load_dwordx4 %s, v1, %s, s%d offen sc1' % (ar(A_RES + 4), srd(S_WS), sB))
build_srd(S_TMP, P_B2, 896)
a('s_lshl_b32 s%d, s%d, 6' % (sB, sA))
a('v_lshlrev_b32 v240, 3, v%d' % V_G)
a('buffer_load_dwordx2 v[228:229], v240, %s, s%d offen' % (srd(S_TMP), sB))
a('buffer_load_dwordx2 v[230:231], v240, %s, s%d offen offset:32' % (srd(S_TMP), sB))
a.label('L_a_nores')
CSQ = WBUF[0]
a('s_mul_i32 s%d, s%d, 384' % (sA, sW))
a('s_add_u32 s%d, s%d, %d' % (sA, sA, L.L_STA))
a('v_lshl_add_u32 v246, v%d, 2, s%d' % (V_TOK, sA))
a('v_lshl_add_u32 v247, v%d, 4, s%d' % (V_G, sA))
a('s_mov_b64 exec, 0xffff')
for t in range(3):
    a('ds_write_b32 v246, v%d offset:%d' % (SM + t, 128 * t))
    a('ds_write_b32 v246, v%d offset:%d' % (SR + t, 128 * t + 64))
a('s_mov_b64 exec, -1')
MROW, RROW = 114, 126
a('s_waitcnt lgkmcnt(0)')
for t in range(3):
    a('ds_read_b128 %s, v247 offset:%d' % (vr(MROW + 4 * t), 128 * t))
    a('ds_read_b128 %s, v247 offset:%d' % (vr(RROW + 4 * t), 128 * t + 64))
QF, KF, VF = 140, 148, 160


def pk(op, dst, srcs, neg=None):
    ops, lo, hi = [], [], []
    for x in srcs:
        if isinstance(x, tuple):
            ops.append(vr(x[1] & ~1, 2))
            lo.append(x[1] & 1)
            hi.append(x[1] & 1)
        else:
            ops.append(vr(x, 2))
            lo.append(0)
            hi.append(1)
    t = '%s %s, %s op_sel:[%s] op_sel_hi:[%s]' % (op, vr(dst, 2), ', '.join(ops), ','.join(map(str, lo)), ','.join(map(str, hi)))
    if neg is not None:
        m = ','.join('1' if k == neg else '0' for k in range(len(srcs)))
        t += ' neg_lo:[%s] neg_hi:[%s]' % (m, m)
    return t


for t in range(2):
    for hf in range(2):
        r = AQ + (t * 2 + hf) * 4
        for i in (0, 2):
            a(pk('v_pk_fma_f32', r + i, [('b', SM + t + 1), CSQ + 4 * hf + i, r + i], 0))
        for p in range(2):
            a('v_cvt_pk_bf16_f32 v%d, v%d, v%d' % (QF + 4 * t + 2 * hf + p, r + 2 * p, r + 2 * p + 1))
        a(wb_all[2 * t + hf])
for t in range(2):
    for hf in range(2):
        r = AK + (t * 2 + hf) * 4
        for i in (0, 2):
            a(pk('v_pk_fma_f32', r + i, [('b', SM + t + 1), CSQ + 8 + 4 * hf + i, r + i], 0))
        for p in range(2):
            a('v_cvt_pk_bf16_f32 v%d, v%d, v%d' % (KF + 4 * (t + 1) + 2 * hf + p, r + 2 * p, r + 2 * p + 1))
        a(wb_all[4 + 2 * t + hf])
L_E, L_HX = L.L_R2 + 16384, L.L_R2 + 26624
a('s_lshl_b32 s%d, s%d, 11' % (sA, sW))
a('s_add_u32 s%d, s%d, %d' % (sA, sA, L_E))
a('v_add_u32 v246, s%d, v1' % sA)
a('s_lshl_b32 s%d, s%d, 10' % (sA, sW))
a('s_add_u32 s%d, s%d, %d' % (sA, sA, L_HX))
a('v_add_u32 v247, s%d, v1' % sA)
a('s_waitcnt lgkmcnt(0)')
for t in range(2):
    for d in range(2):
        r = AV + (t * 2 + d) * 4
        for i in (0, 2):
            a(pk('v_pk_fma_f32', r + i, [MROW + 4 * (t + 1) + i, ('b', CSQ + 16 + d), r + i], 0))
        for p in range(2):
            a('v_cvt_pk_bf16_f32 v%d, v%d, v%d' % (VF + 6 * d + 2 * (t + 1) + p, r + 2 * p, r + 2 * p + 1))
a('ds_write_b128 v246, %s offset:2048' % vr(KF + 8))
a('ds_write_b64 v246, %s offset:3072' % vr(VF + 4, 2))
a('ds_write_b64 v246, %s offset:3080' % vr(VF + 10, 2))
a('ds_write_b128 v247, %s' % vr(HACC))
pair_base(sA, L.O)
a('s_lshl_b32 s%d, s%d, 4' % (sB, sGT))
a('s_add_u32 s%d, s%d, s%d' % (sB, sB, sC))
a('s_lshl_b32 s%d, s%d, 10' % (sB, sB))
a('s_add_u32 s32, s%d, s%d' % (sA, sB))
a('s_add_u32 s33, s32, 16384')
stamp2()
a('s_waitcnt lgkmcnt(0)')
a('s_barrier')
stamp2()
SS = 172
a('s_cmp_eq_u32 s%d, 0' % sW)
a('s_cbranch_scc1 L_a_halo')
a('ds_read_b128 %s, v246' % vr(KF))
a('ds_read_b64 %s, v246 offset:1024' % vr(VF, 2))
a('ds_read_b64 %s, v246 offset:1032' % vr(VF + 6, 2))
a('s_waitcnt lgkmcnt(0)')
a('s_branch L_a_prev')
a.label('L_a_halo')
a('v_add_u32 v247, %d, v1' % L_HX)
for p in range(4):
    a('ds_read_b128 %s, v247 offset:%d' % (vr(SS + 4 * p), 1024 * p))
a('s_waitcnt lgkmcnt(0)')
for hf in range(2):
    r = SS + 4 * hf
    for i in (0, 2):
        a(pk('v_pk_fma_f32', r + i, [('b', SM), CSQ + 8 + 4 * hf + i, r + i], 0))
    for p in range(2):
        a('v_cvt_pk_bf16_f32 v%d, v%d, v%d' % (KF + 2 * hf + p, r + 2 * p, r + 2 * p + 1))
for d in range(2):
    r = SS + 8 + 4 * d
    for i in (0, 2):
        a(pk('v_pk_fma_f32', r + i, [MROW + i, ('b', CSQ + 16 + d), r + i], 0))
    for p in range(2):
        a('v_cvt_pk_bf16_f32 v%d, v%d, v%d' % (VF + 6 * d + p, r + 2 * p, r + 2 * p + 1))
a.label('L_a_prev')
a('s_nop 1')
for t in range(2):
    a('%s %s, %s, %s, 0' % (MFMA, vr(SS + 8 * t), vr(KF + 4 * t), vr(QF + 4 * t)))
    a('%s %s, %s, %s, 0' % (MFMA, vr(SS + 8 * t + 4), vr(KF + 4 * t + 4), vr(QF + 4 * t)))
SCALE = (28.0 ** -0.5) * 1.4426950408889634
MX, CC, LS, TMPR = 190, 192, 194, 196
PF = 200
SUMT = [(224, 226), (232, 188)]
a('v_mov_b32 v198, 0xff800000')
seq = [[], []]
for t in range(2):
    s_ = SS + 8 * t
    q = seq[t]
    rr = lambda e: RROW + 4 * (t + (e >> 2)) + (e & 3)
    for e in range(0, 8, 2):
        q.append(pk('v_pk_mul_f32', s_ + e, [s_ + e, rr(e)]))
    for e in range(8):
        mk = (sM0 if t == 0 else sM1) + 2 * e if e < 4 else sM2 + 2 * (e - 4)
        q.append('v_cndmask_b32 v%d, v198, v%d, %s' % (s_ + e, s_ + e, sp(mk)))
    q.append('v_max3_f32 v%d, v%d, v%d, v%d' % (MX + t, s_, s_ + 1, s_ + 2))
    q.append('v_max3_f32 v%d, v%d, v%d, v%d' % (MX + t, MX + t, s_ + 3, s_ + 4))
    q.append('v_max3_f32 v%d, v%d, v%d, v%d' % (MX + t, MX + t, s_ + 5, s_ + 6))
    q.append('v_max_f32 v%d, v%d, v%d' % (MX + t, MX + t, s_ + 7))
    q += xg_reduce(MX + t, TMPR + t, 'v_max_f32')
    q.append('v_mul_f32 v%d, %s, v%d' % (CC + t, f2h(SCALE), SR + t + 1))
    q.append('v_mul_f32 v%d, v%d, v%d' % (MX + t, MX + t, CC + t))
    for e in range(0, 8, 2):
        q.append(pk('v_pk_fma_f32', s_ + e, [s_ + e, ('b', CC + t), ('b', MX + t)], 2))
    for e in range(8):
        q.append('v_exp_f32 v%d, v%d' % (s_ + e, s_ + e))
    u_, u2 = SUMT[t]
    q.append(pk('v_pk_add_f32', u_, [s_, s_ + 2]))
    q.append(pk('v_pk_add_f32', u2, [s_ + 4, s_ + 6]))
    q.append(pk('v_pk_add_f32', u_, [u_, u2]))
    q.append('v_add_f32 v%d, v%d, v%d' % (LS + t, u_, u_ + 1))
    q += xg_reduce(LS + t, TMPR + t)
    q.append('v_rcp_f32 v%d, v%d' % (LS + t, LS + t))
    for e in range(0, 8, 2):
        q.append(pk('v_pk_mul_f32', s_ + e, [s_ + e, rr(e)]))
    for p in range(4):
        q.append('v_cvt_pk_bf16_f32 v%d, v%d, v%d' % (PF + 4 * t + p, s_ + 2 * p, s_ + 2 * p + 1))
merged = [z for xy in zip(*seq) for z in xy]
gap = len(merged) // (len(wb_loads) + 1)
for k, x in enumerate(merged):
    a(x)
    if k % gap == gap - 1 and wb_loads:
        a(wb_loads.pop(0))
assert not wb_loads
stamp2()
OO = 208
for t in range(2):
    for d in range(2):
        a('%s %s, %s, %s, 0' % (MFMA, vr(OO + 8 * t + 4 * d), vr(VF + 6 * d + 2 * t), vr(PF + 4 * t)))
for t in range(2):
    for e in range(0, 8, 2):
        a(pk('v_pk_mul_f32', OO + 8 * t + e, [OO + 8 * t + e, ('b', LS + t)]))
    for p in range(4):
        a('v_cvt_pk_bf16_f32 v%d, v%d, v%d' % (PF + 4 * t + p, OO + 8 * t + 2 * p, OO + 8 * t + 2 * p + 1))
    store('buffer_store_dwordx4 %s, v1, %s, s%d offen' % (vr(PF + 4 * t), srd(S_WS), 32 + t), sFD)
o_mark = a.vm_mark()
stamp2()
pair_base(sA, L.FA)
a('s_lshl_b32 s%d, s%d, 4' % (sB, sGT))
a('s_add_u32 s%d, s%d, s%d' % (sB, sB, sC))
a('s_lshl_b32 s%d, s%d, 2' % (sB, sB))
a('s_add_u32 s%d, s%d, s%d' % (sA, sA, sB))
a('v_lshlrev_b32 v241, 6, v0')
a('v_add_u32 v241, s%d, v241' % sA)
pair_base(sA, L.FA)
a('s_lshl_b32 s%d, s%d, 8' % (sB, sG))
a('s_add_u32 s%d, s%d, s%d' % (sA, sA, sB))
a('v_lshl_add_u32 v240, v0, 2, s%d' % sA)
a('s_lshl_b32 s%d, s%d, 2' % (sB, sW))
a('s_lshl_b32 s%d, 0x000f000f, s%d' % (sMK, sB))
a('s_mov_b32 s%d, s%d' % (sMK + 1, sMK))
red_addrs()
publish_setup(L.XB, L.SB, L.FB, True, 4)
a('s_mov_b32 s%d, s%d' % (sPC, sFD))
a('s_mov_b32 s%d, s%d' % (sPFC, sFAST))
pair_base(sA, L.O)
a('s_lshl_b32 s%d, s%d, 6' % (sB, sG))
a('s_lshl_b32 s%d, s%d, 2' % (sCc, sW))
a('s_add_u32 s%d, s%d, s%d' % (sB, sB, sCc))
a('s_lshl_b32 s%d, s%d, 10' % (sB, sB))
a('s_add_u32 s20, s%d, s%d' % (sA, sB))
for t in range(1, 4):
    a('s_add_u32 s%d, s20, %d' % (20 + t, 16384 * t))
a.wait_vm(o_mark)
a('s_mov_b64 exec, 3')
store('buffer_store_dword v%d, v241, %s, 0 offen' % (V_T, srd(S_WS)), sFAST)
a('s_mov_b64 exec, -1')
stamp()
a('s_cmp_eq_u32 s%d, 7' % sJ)
a('s_cbranch_scc1 L_next_pair')


def wd_bases():
    a('s_lshl_b32 s%d, s%d, 2' % (sA, sJ))
    a('s_mul_i32 s%d, s%d, %d' % (sA, sA, 56 * 1024))
    a('s_mul_i32 s%d, s%d, %d' % (sB, sW, 14 * 1024))
    a('s_add_u32 s%d, s%d, s%d' % (sA, sA, sB))
    a('s_add_u32 s%d, s%d, %d' % (sO, sA, L.WD))
    quarter_offsets(4, 56 * 1024)


def wd_load(fi):
    kk, t = fi >> 2, fi & 3
    return ('buffer_load_dwordx4 %s, v1, %s, s%d offen offset:%d sc1' %
            (ar(4 * fi), srd(S_WS), sO + 4 * t + (kk >> 2), 1024 * (kk & 3)))


WD_CH = [(0, 12), (12, 56)]
BO, BACC, BRD, BTMP = 66, 130, 194, 226
a('s_cmp_eq_u32 s%d, 0' % sPAIR)
a('s_cbranch_scc0 L_b_start')
for k in range(4):
    a('v_lshlrev_b32 v236, 16, v%d' % (228 + k))
    a('v_and_b32 v237, 0xffff0000, v%d' % (228 + k))
    a('v_accvgpr_write_b32 a%d, v236' % (A_B2 + 2 * k))
    a('v_accvgpr_write_b32 a%d, v237' % (A_B2 + 2 * k + 1))
wd_bases()
for fi in range(*WD_CH[0]):
    a(wd_load(fi))
a.label('L_b_start')
CWW = 66
sCI = 41
a('s_lshr_b32 s%d, s%d, 3' % (sA, sC))
a('s_mul_i32 s%d, s%d, 7' % (sA, sA))
a('s_add_u32 s%d, s%d, s%d' % (sCI, sA, sJ))
a('s_lshl_b32 s%d, s%d, 3' % (sA, sCI))
a('s_lshl_b32 s%d, s%d, 1' % (sB, sW))
a('s_add_u32 s%d, s%d, s%d' % (sA, sA, sB))
a('s_mul_i32 s%d, s%d, %d' % (sB, sA, 14 * 1024))
a('s_add_u32 s%d, s%d, %d' % (sO, sB, L.WC))
quarter_offsets(2, 14 * 1024)


def c_wload(idx):
    u, k = idx >> 1, idx & 1
    return ('buffer_load_dwordx4 %s, v1, %s, s%d offen offset:%d sc1' %
            (vr(CWW + 4 * idx), srd(S_WS), sO + 4 * k + (u >> 2), 1024 * (u & 3)))


def red_writes(acc, tile):
    return ['ds_write_b128 v248, %s offset:%d' % (vr(acc + 4 * t), (tile >> 1) * 32768 + (tile & 1) * 4096 + t * 1024)
            for t in range(4)]


def red_reads(st, rd):
    return ['ds_read_b128 %s, v249 offset:%d' % (vr(rd + (b * 2 + k) * 4), st * 32768 + b * 8192 + k * 1024)
            for b in range(4) for k in range(2)]


def add8(dst, x, y, packed):
    if packed:
        return ['v_pk_add_f32 %s, %s, %s' % (vr(dst + e, 2), vr(x + e, 2), vr(y + e, 2)) for e in range(0, 8, 2)]
    return ['v_add_f32 v%d, v%d, v%d' % (dst + e, x + e, y + e) for e in range(8)]


def finish_pre(st, is_d, tmp):
    res = A_RES + 4 * st
    o = ['v_accvgpr_read_b32 v%d, a%d' % (tmp + 8 + p, res + p) for p in range(4)]
    for p in range(4):
        o += ['v_lshlrev_b32 v%d, 16, v%d' % (tmp + 2 * p, tmp + 8 + p),
              'v_and_b32 v%d, 0xffff0000, v%d' % (tmp + 2 * p + 1, tmp + 8 + p)]
    if is_d:
        o += ['v_accvgpr_read_b32 v%d, a%d' % (tmp + 8 + e, A_B2 + e) for e in range(8)]
        o += ['v_add_f32 v%d, v%d, v%d' % (tmp + e, tmp + e, tmp + 8 + e) for e in range(8)]
    return o


def finish_sum(st, rd, tmp, pk, packed):
    o = add8(rd, rd, rd + 8, packed) + add8(rd + 16, rd + 16, rd + 24, packed) + add8(rd, rd, rd + 16, packed)
    o += add8(tmp, tmp, rd, packed)
    o += ['v_cvt_pk_bf16_f32 v%d, v%d, v%d' % (pk + p, tmp + 2 * p, tmp + 2 * p + 1) for p in range(4)]
    o += ['v_accvgpr_write_b32 a%d, v%d' % (A_RES + 4 * st + p, pk + p) for p in range(4)]
    return o


def owner_stats(tmp, s1, t):
    a('v_pk_add_f32 %s, %s, %s' % (vr(t, 2), vr(tmp, 2), vr(tmp + 2, 2)))
    a('v_pk_add_f32 %s, %s, %s' % (vr(t + 2, 2), vr(tmp + 4, 2), vr(tmp + 6, 2)))
    a('v_pk_add_f32 %s, %s, %s' % (vr(t, 2), vr(t, 2), vr(t + 2, 2)))
    a('v_add_f32 v%d, v%d, v%d' % (s1, t, t + 1))
    a('v_pk_mul_f32 %s, %s, %s' % (vr(t, 2), vr(tmp, 2), vr(tmp, 2)))
    for e in (2, 4, 6):
        a('v_pk_fma_f32 %s, %s, %s, %s' % (vr(t, 2), vr(tmp + e, 2), vr(tmp + e, 2), vr(t, 2)))
    a('v_add_f32 v%d, v%d, v%d' % (s1 + 1, t, t + 1))
    for x, y in zip(xg_reduce(s1, t), xg_reduce(s1 + 1, t + 1)):
        a(x)
        a(y)


def publish_data(st, pk):
    store('buffer_store_dwordx4 %s, v1, %s, s%d offen offset:0' % (vr(pk), srd(S_WS), sPX if st == 0 else sPX2), sPC)


def publish_stats(tmps, t, s1):
    a('v_and_b32 v%d, 15, v0' % V_TOK)
    a('v_lshlrev_b32 v%d, 3, v%d' % (t + 4, V_TOK))
    for st in range(2):
        owner_stats(tmps[st], s1 + 2 * st, t)
    a('s_mov_b64 exec, 0xffff')
    store('buffer_store_dwordx2 %s, v%d, %s, s%d offen' % (vr(s1, 2), t + 4, srd(S_WS), sPS), sPC)
    a('s_add_u32 s%d, s%d, %d' % (sPS, sPS, 2 * 1792))
    store('buffer_store_dwordx2 %s, v%d, %s, s%d offen' % (vr(s1 + 2, 2), t + 4, srd(S_WS), sPS), sPC)
    a('s_mov_b64 exec, -1')


def publish_flags(lsh, between=()):
    a('v_lshlrev_b32 v241, %d, v0' % lsh)
    a('v_add_u32 v241, s%d, v241' % sPF)
    set_flags(241, 2, sPFC, V_T, between)


def run_tiles(tile_items, extras):
    for tile in range(4):
        if tile and '--diag3' in sys.argv:
            stamp()
        items = tile_items(tile)
        ex = list(extras.get(tile, []))
        free = [k for k, it in enumerate(items) if k >= 3 and not it[2]]
        per = -(-len(ex) // max(1, len(free))) if ex else 0
        for k, (pre, m, post) in enumerate(items):
            for x in pre:
                x()
            a(m)
            if post:
                post()
            elif k >= 3:
                for _ in range(per):
                    if ex:
                        x = ex.pop(0)
                        if callable(x):
                            x()
                        else:
                            a(x)
        assert not ex


poll(240)
a('s_barrier')
stamp()


def b_oload(tile, i):
    return 'buffer_load_dwordx4 %s, v1, %s, s%d offen offset:%d sc1' % (vr(BO + (tile * 4 + i) * 4), srd(S_WS), 20 + tile, 1024 * i)


om = {}
for tile in range(2):
    for i in range(4):
        a(b_oload(tile, i))
        om[(tile, i)] = a.vm_mark()


def b_tile(tile):
    items = []
    for i in range(4):
        for t in range(4):
            r = BACC + (tile * 4 + t) * 4
            pre = [(lambda tl=tile, ii=i: a.wait_vm(om[(tl, ii)]))] if t == 0 else []
            post = None
            if tile < 2 and t == 1:
                def post(tl=tile + 2, ii=i):
                    a(b_oload(tl, ii))
                    om[(tl, ii)] = a.vm_mark()
            if tile >= 2 and t == 1:
                def post(idx=4 * (tile - 2) + i):
                    a(c_wload(idx))
            items.append((pre, '%s %s, %s, %s, %s' % (MFMA, vr(r), vr(BW + (i * 4 + t) * 4), vr(BO + (tile * 4 + i) * 4),
                                                      '0' if i == 0 else vr(r)), post))
    return items


BT0, BT1, BPK = 226, 2, 18
run_tiles(b_tile, {1: red_writes(BACC, 0), 2: red_writes(BACC + 16, 1), 3: red_writes(BACC + 32, 2)})
stamp2()
for x in red_writes(BACC + 48, 3):
    a(x)
for x in finish_pre(0, False, BT0) + finish_pre(1, False, BT1):
    a(x)
a('s_waitcnt lgkmcnt(0)')
a('s_barrier')
stamp2()
BRD1 = 162
for x in red_reads(0, BRD) + red_reads(1, BRD1):
    a(x)
a('s_waitcnt lgkmcnt(8)')
for x in finish_sum(0, BRD, BT0, BPK, True):
    a(x)
publish_data(0, BPK)
a('s_waitcnt lgkmcnt(0)')
for x in finish_sum(1, BRD1, BT1, BPK + 4, True):
    a(x)
publish_data(1, BPK + 4)
stamp2()
publish_stats([BT0, BT1], 36, 32)
b_mark = a.vm_mark()
a('v_lshlrev_b32 v236, 7, v0')
a('v_add_u32 v236, s%d, v236' % sPF)
for i in range(8, 16):
    a(c_wload(i))
CA = [2, 10]
XF, NXF = 18, 8
GTMP, GH = 50, 58
CCS, CB1, CB1R = 178, 186, 194
CSTR = 198
CMR = 214
VGA = 218
a('v_lshrrev_b32 v%d, 4, v0' % V_G)
a('v_and_b32 v%d, 15, v0' % V_TOK)
pair_base(sA, L.FB)
a('s_lshl_b32 s%d, s%d, 9' % (sB, sS))
a('s_add_u32 s%d, s%d, s%d' % (sA, sA, sB))
a('v_lshl_add_u32 v240, v0, 2, s%d' % sA)
a('s_mov_b32 s%d, 0x3fff3fff' % sMK)
a('s_mov_b32 s%d, 0x3fff3fff' % (sMK + 1))
pair_base(20, L.XB)
a('s_mul_i32 s%d, s%d, %d' % (sB, sS, 8 * 14336))
a('s_add_u32 s20, s20, s%d' % sB)
a('s_lshl_b32 s%d, s%d, 12' % (sB, sW))
a('s_add_u32 s20, s20, s%d' % sB)
a('s_add_u32 s21, s%d, %d' % (sB, L.L_R2))
pair_base(22, L.SB)
a('s_lshl_b32 s%d, s%d, 3' % (sB, sS))
a('s_add_u32 s%d, s%d, s%d' % (sB, sB, sW))
a('s_mul_i32 s%d, s%d, 1792' % (sB, sB))
a('s_add_u32 s22, s22, s%d' % sB)
a('s_add_u32 s23, s22, %d' % (4 * 1792))
pair_base(32, L.H)
a('s_mul_i32 s%d, s%d, %d' % (sB, sS, 8 * 56 * 1024))
a('s_add_u32 s32, s32, s%d' % sB)
a('s_lshl_b32 s%d, s%d, 2' % (sB, sCI))
a('s_add_u32 s%d, s%d, s%d' % (sB, sB, sW))
a('s_lshl_b32 s%d, s%d, 10' % (sCc, sB))
a('s_add_u32 s32, s32, s%d' % sCc)
pair_base(33, L.FC)
a('s_lshl_b32 s%d, s%d, 11' % (sCc, sS))
a('s_add_u32 s33, s33, s%d' % sCc)
a('s_lshl_b32 s%d, s%d, 2' % (sB, sB))
a('s_add_u32 s33, s33, s%d' % sB)
a('v_mov_b32 v241, s33')
a('v_mov_b32 v242, 0x%x' % INV)
a('v_cmp_eq_u32 vcc, 0, v0')
a('v_cndmask_b32 v241, v242, v241, vcc')
a('v_lshlrev_b32 v238, 3, v%d' % V_TOK)
a('v_lshl_add_u32 v238, v%d, 7, v238' % V_G)
a('v_mov_b32 v242, 0x%x' % INV)
a('v_cmp_lt_u32 vcc, 1, v%d' % V_G)
a('v_cndmask_b32 v239, 0, v242, vcc')
a('v_or_b32 v239, v239, v238')
a('v_add_u32 v252, %d, v1' % L.L_R2)
a('v_lshlrev_b32 v246, 3, v%d' % V_TOK)
a('v_add_u32 v246, %d, v246' % L.L_STC)
GA = 2.0 * 0.7978845608028654 * 1.4426950408889634
GB = GA * 0.044715
a('v_mov_b32 v%d, %s' % (VGA, f2h(-GA)))
a('v_mov_b32 v%d, %s' % (VGA + 1, f2h(-GA)))
a('s_mov_b32 s34, %s' % f2h(-GB))
a('s_mov_b32 s35, %s' % f2h(-GB))
wd_bases_hi = True
a.wait_vm(b_mark)
a('s_mov_b64 exec, 3')
store('buffer_store_dword v%d, v236, %s, 0 offen' % (V_T, srd(S_WS)), sPFC)
a('s_mov_b64 exec, -1')
stamp()

for i in range(16, 22):
    a(c_wload(i))
a('s_lshl_b32 s%d, s%d, 3' % (sA, sCI))
a('s_lshl_b32 s%d, s%d, 1' % (sB, sW))
a('s_add_u32 s%d, s%d, s%d' % (sA, sA, sB))
a('s_lshl_b32 s24, s%d, 5' % sA)
a('v_lshlrev_b32 v248, 3, v%d' % V_G)
for k in range(2):
    a('buffer_load_dwordx2 %s, v248, %s, s24 offen offset:%d' % (vr(CB1R + 2 * k, 2), srd(S_B1), 32 * k))
poll(240, 256)
stamp()


TORD = [0, 4, 1, 5, 2, 6, 3, 7]


def c_dma_setup(t):
    return ['s_add_u32 s36, s20, %d' % (TORD[t] * 14336), 's_add_u32 m0, s21, %d' % ((t & 3) * 16384)]


def c_dma(t, i):
    return 'buffer_load_dwordx4 v1, %s, s36 offen offset:%d sc1 lds' % (srd(S_WS), 1024 * i)


dm = {}
for x in c_dma_setup(0) + [c_dma(0, i) for i in range(4)]:
    a(x)
dm[0] = a.vm_mark()
wlate = {}
for i in range(22, 28):
    a(c_wload(i))
    wlate[i >> 1] = a.vm_mark()
for tt in range(2):
    for i in range(4):
        a('buffer_load_dwordx2 %s, v%d, %s, s%d offen offset:%d sc1' %
          (vr(CSTR + 8 * tt + 2 * i, 2), 239 if i == 3 else 238, srd(S_WS), 22 + tt, 512 * i))
amark['cst'] = a.vm_mark()
for x in c_dma_setup(1) + [c_dma(1, i) for i in range(4)]:
    a(x)
dm[1] = a.vm_mark()
wd_bases()
t0_loads = []
b1_unpack = []
for k in range(2):
    for p in range(2):
        b1_unpack += ['v_lshlrev_b32 v%d, 16, v%d' % (CB1 + 4 * k + 2 * p, CB1R + 2 * k + p),
                      'v_and_b32 v%d, 0xffff0000, v%d' % (CB1 + 4 * k + 2 * p + 1, CB1R + 2 * k + p)]
a.wait_vm(dm[0])
a('s_barrier')
stamp()


def c_xread(t, u):
    n = t * 14 + u
    return 'ds_read_b128 %s, v252 offset:%d' % (vr(XF + 4 * (n % NXF)), (t & 3) * 16384 + u * 1024)


def gelu_pre(t):
    z, m = CA[t & 1], CMR + 2 * (t & 1)
    P = range(0, 8, 2)
    o = ['v_pk_fma_f32 %s, %s, %s, %s op_sel_hi:[1,0,1] neg_lo:[0,1,0] neg_hi:[0,1,0]' % (vr(z + e, 2), vr(CCS + e, 2), vr(m, 2), vr(z + e, 2)) for e in P]
    o += ['v_pk_fma_f32 %s, %s, %s, %s op_sel:[0,1,0] op_sel_hi:[1,1,1]' % (vr(z + e, 2), vr(z + e, 2), vr(m, 2), vr(CB1 + e, 2)) for e in P]
    o += ['v_pk_mul_f32 %s, %s, %s' % (vr(GTMP + e, 2), vr(z + e, 2), vr(z + e, 2)) for e in P]
    o += ['v_pk_fma_f32 %s, %s, s[34:35], %s' % (vr(GTMP + e, 2), vr(GTMP + e, 2), vr(VGA, 2)) for e in P]
    o += ['v_pk_mul_f32 %s, %s, %s' % (vr(GTMP + e, 2), vr(GTMP + e, 2), vr(z + e, 2)) for e in P]
    return o


def gelu_mid():
    o = {}
    for e in range(8):
        o.setdefault(2 * e, []).append('v_exp_f32 v%d, v%d' % (GTMP + e, GTMP + e))
        o.setdefault(2 * e + 3, []).append('v_add_f32 v%d, 1.0, v%d' % (GTMP + e, GTMP + e))
    for e in range(6):
        o.setdefault(16 + 2 * e, []).append('v_rcp_f32 v%d, v%d' % (GTMP + e, GTMP + e))
    o.setdefault(25, []).append('v_rcp_f32 v%d, v%d' % (GTMP + 6, GTMP + 6))
    o.setdefault(27, []).append('v_rcp_f32 v%d, v%d' % (GTMP + 7, GTMP + 7))
    return o


def gelu_post(t):
    z, h = CA[t & 1], GH + 4 * (t & 1)
    o = ['v_pk_mul_f32 %s, %s, %s' % (vr(GTMP + e, 2), vr(GTMP + e, 2), vr(z + e, 2)) for e in range(0, 8, 2)]
    o += ['v_cvt_pk_bf16_f32 v%d, v%d, v%d' % (h + p, GTMP + 2 * p, GTMP + 2 * p + 1) for p in range(4)]
    return o


def gelu_packed(t):
    z, m, h = CA[t & 1], CMR + 2 * (t & 1), GH + 4 * (t & 1)
    P = range(0, 8, 2)
    for e in P:
        a('v_pk_fma_f32 %s, %s, %s, %s op_sel_hi:[1,0,1] neg_lo:[0,1,0] neg_hi:[0,1,0]' % (vr(z + e, 2), vr(CCS + e, 2), vr(m, 2), vr(z + e, 2)))
    for e in P:
        a('v_pk_fma_f32 %s, %s, %s, %s op_sel:[0,1,0] op_sel_hi:[1,1,1]' % (vr(z + e, 2), vr(z + e, 2), vr(m, 2), vr(CB1 + e, 2)))
    for e in P:
        a('v_pk_mul_f32 %s, %s, %s' % (vr(GTMP + e, 2), vr(z + e, 2), vr(z + e, 2)))
    for e in P:
        a('v_pk_fma_f32 %s, %s, s[34:35], %s' % (vr(GTMP + e, 2), vr(GTMP + e, 2), vr(VGA, 2)))
    for e in P:
        a('v_pk_mul_f32 %s, %s, %s' % (vr(GTMP + e, 2), vr(GTMP + e, 2), vr(z + e, 2)))
    for e in range(8):
        a('v_exp_f32 v%d, v%d' % (GTMP + e, GTMP + e))
    for e in P:
        a('v_pk_add_f32 %s, %s, 1.0 op_sel_hi:[1,0]' % (vr(GTMP + e, 2), vr(GTMP + e, 2)))
    for e in range(8):
        a('v_rcp_f32 v%d, v%d' % (GTMP + e, GTMP + e))
    for e in P:
        a('v_pk_mul_f32 %s, %s, %s' % (vr(GTMP + e, 2), vr(GTMP + e, 2), vr(z + e, 2)))
    for p in range(4):
        a('v_cvt_pk_bf16_f32 v%d, v%d, v%d' % (h + p, GTMP + 2 * p, GTMP + 2 * p + 1))


hmk, fmk = {}, {}


def h_store(t):
    def f():
        a('s_add_u32 s24, s32, %d' % (TORD[t] * 56 * 1024))
        store('buffer_store_dwordx4 %s, v1, %s, s24 offen' % (vr(GH + 4 * (t & 1)), srd(S_WS)), sFH)
        hmk[t] = a.vm_mark()
    return f


def h_flag(t):
    def f():
        a.wait_vm(hmk[t])
        store('buffer_store_dword v%d, v241, %s, 0 offen offset:%d' % (V_T, srd(S_WS), 256 * TORD[t]), sFAST)
    return f


def wd_block(fis, wave):
    def f():
        skip = newlab('L_wd')
        a('s_cmp_eq_u32 s24, %d' % wave)
        a('s_cbranch_scc0 %s' % skip)
        for fi in fis:
            a(wd_load(fi))
            a.vm_issued -= 1
        a.label(skip)
    return f


cst_fill = []
for tt in range(2):
    r = CSTR + 8 * tt
    for c_ in range(2):
        cst_fill += ['v_add_f32 v%d, v%d, v%d' % (r + c_, r + c_, r + 2 + c_),
                     'v_add_f32 v%d, v%d, v%d' % (r + 4 + c_, r + 4 + c_, r + 6 + c_),
                     'v_add_f32 v%d, v%d, v%d' % (r + c_, r + c_, r + 4 + c_)]
    cst_fill += xg_reduce(r, r + 2) + xg_reduce(r + 1, r + 3) + stats_finish(r, r + 1, r + 2, True)
a('s_lshl_b32 s%d, s%d, 7' % (sA, sW))
a('v_add_u32 v247, s%d, v246' % sA)
cst_fill += ['ds_write_b64 v247, %s' % vr(CSTR, 2), 'ds_write_b64 v247, %s offset:512' % vr(CSTR + 8, 2)] + b1_unpack
LOOKX = 6


A_CCS = 244


DFIRST = [194, 198, 202, 206, 210, 220, 224, 228, 232]
hm = {}


def emit_c_loop(wd_list):
    pass0 = bool(wd_list)
    if not pass0:
        for e in range(8):
            a('v_accvgpr_read_b32 v%d, a%d' % (CCS + e, A_CCS + e))
    for u in range(LOOKX):
        a(c_xread(0, u))
    for t in range(8):
        nonvec = {}

        def put(k, x):
            nonvec.setdefault(k, []).append(x)
        for u in range(14):
            n = t * 14 + u
            m = n + LOOKX
            if m < 8 * 14:
                put(2 * u + 1, c_xread(m // 14, m % 14))
            if u % 2 == 1 and n + 1 < 8 * 14:
                put(2 * u + 1, 's_waitcnt lgkmcnt(%d)' % min(LOOKX - 2, 8 * 14 - 1 - (n + 2)))
        if t < 7:
            nonvec[14] = [('bar', t + 1)] + nonvec.get(14, [])
        if t + 2 < 8:
            su = c_dma_setup(t + 2)
            put(0, su[0])
            put(0, su[1])
            for i in range(4):
                put(2 + 2 * i, ('dma', t + 2, i))
        if t >= 3:
            put(20, ('call', h_flag(t - 3)))
        if t == 1:
            put(0, 's_add_u32 s22, s25, 12288')
        if t == 5:
            def issue_d0():
                amark['d0'] = early_issue(244, 243)
            put(22, ('call', issue_d0))
        if t == 6:
            put(2, ('call', lambda: early_check(244, 243, amark['d0'])))
        if t in (6, 7):
            for k, q in zip((4, 6, 8, 20, 22) if t == 6 else (2, 4, 6, 8), range(0, 5) if t == 6 else range(5, 9)):
                put(k, ('h0', q))
        if t < 7:
            for k in (10, 12, 16, 18, 22, 24, 26):
                if wd_list:
                    put(k, wd_load(wd_list.pop(0)))
        if t > 0:
            put(17, 'ds_read_b64 %s, v246 offset:%d' % (vr(CMR + 2 * (t & 1), 2), 128 * TORD[t]))
        if t == 0:
            for k, it in enumerate(t0_loads):
                put(k, ('t0', it))
        valu = gelu_mid() if t >= 1 else {}
        if t >= 2:
            for x in gelu_post(t - 2):
                a(x)
            h_store(t - 2)()
        if t >= 1:
            for x in gelu_pre(t - 1):
                a(x)
        fill = list(cst_fill) if t == 0 else []
        first = 8
        fi = 0
        for k in range(28):
            u, kk = k >> 1, k & 1
            n = t * 14 + u
            if t == 0 and k == 0:
                a('s_waitcnt lgkmcnt(%d)' % (LOOKX - 2))
            if t == 0 and kk == 0 and u in wlate:
                a.wait_vm(wlate[u])
            if t == 0 and k == first:
                a.wait_vm(amark['cst'])
            r = CA[t & 1] + 4 * kk
            a('%s %s, %s, %s, %s' % (MFMA, vr(r), vr(CWW + 4 * (2 * u + kk)), vr(XF + 4 * (n % NXF)), '0' if u == 0 else vr(r)))
            if pass0 and t == 0:
                a('%s %s, %s, %s, %s' % (MFMA, vr(CCS + 4 * kk), vr(CWW + 4 * (2 * u + kk)), ar(A_ONES), '0' if u == 0 else vr(CCS + 4 * kk)))
            for it in nonvec.get(k, []):
                if isinstance(it, str):
                    a(it)
                elif it[0] == 'bar':
                    a.wait_vm(dm[it[1]])
                    a('s_barrier')
                elif it[0] == 'dma':
                    a(c_dma(it[1], it[2]))
                    dm[it[1]] = a.vm_mark()
                elif it[0] == 'call':
                    it[1]()
                elif it[0] == 'h0':
                    q = it[1]
                    a('buffer_load_dwordx4 %s, v1, %s, s%d offen offset:%d sc1' %
                      (vr(DFIRST[q] if q < 9 else 66 + 4 * q), srd(S_WS), (25, 27, 29, 22)[q >> 2], 1024 * (q & 3)))
                    hm[q] = a.vm_mark()
                elif it[0] == 't0':
                    if it[1][0] == 'w':
                        a(c_wload(it[1][1]))
                        wlate[it[1][1] >> 1] = a.vm_mark()
                    else:
                        a(it[1][1])
                        amark['cst'] = a.vm_mark()
            for x in valu.get(k, []):
                a(x)
            if fill and k >= first:
                want = -(-(len(fill)) * (k - first + 1) // (28 - first))
                while fi < want:
                    a(fill[fi])
                    fi += 1
        assert fi == len(fill)
        if t == 0:
            a('s_waitcnt lgkmcnt(0)')
            a('s_barrier')
            a('ds_read_b64 %s, v246 offset:0' % vr(CMR, 2))
            if pass0:
                for e in range(8):
                    a('v_accvgpr_write_b32 a%d, v%d' % (A_CCS + e, CCS + e))
            a('s_waitcnt lgkmcnt(0)')
    assert not wd_list


pair_base(sA, L.FC)
a('s_lshl_b32 s%d, s%d, 10' % (sB, sG))
a('s_add_u32 s%d, s%d, s%d' % (sA, sA, sB))
a('s_mul_i32 s%d, s%d, 56' % (sB, sW))
a('s_add_u32 s%d, s%d, s%d' % (sA, sA, sB))
a('v_lshl_add_u32 v243, v0, 2, s%d' % sA)
a('s_mov_b32 s%d, 0x3fff' % sMK2)
a('s_mov_b32 s%d, 0' % (sMK2 + 1))
pair_base(sA, L.H)
a('s_mul_i32 s%d, s%d, %d' % (sB, sG, 4 * 56 * 1024))
a('s_add_u32 s%d, s%d, s%d' % (sA, sA, sB))
a('s_mul_i32 s%d, s%d, %d' % (sB, sW, 14 * 1024))
a('s_add_u32 s25, s%d, s%d' % (sA, sB))
a('s_add_u32 s27, s25, 4096')
a('s_add_u32 s29, s25, 8192')
n_before = a.vm_issued
dm_init = dict(dm)
a('s_cmp_eq_u32 s%d, 0' % sPAIR)
a('s_cbranch_scc0 L_c_loop1')
emit_c_loop(list(range(*WD_CH[1])))
a('s_branch L_c_done')
a.label('L_c_loop1')
extra = a.vm_issued - n_before
a.vm_issued = n_before
dm.clear()
dm.update(dm_init)
emit_c_loop([])
a.label('L_c_done')
stamp()
DH, DACC, DRD = 66, 130, 194
DRING, DLOOK = 16, 10
red_addrs()
publish_setup(L.XA[1], L.SA[1], L.FX[1], False, 5)
a('s_and_b32 s%d, s%d, 1' % (sA, sG))
a('s_lshr_b32 s%d, s%d, 1' % (sB, sW))
a('s_and_b32 s%d, s%d, s%d' % (sA, sA, sB))
a('s_xor_b32 s%d, s%d, 1' % (sA, sA))
a('s_and_b32 s%d, s%d, s%d' % (sPC, sFD, sA))
a('s_mov_b32 s%d, s%d' % (sPFC, sFAST))
a('s_cmp_eq_u32 s%d, 0' % sA)
a('s_cselect_b32 s%d, 0, 0x%x' % (sCc, INV))
a('s_add_u32 s%d, s%d, 1' % (sA, sS))
a('s_lshl_b32 s%d, s%d, 5' % (sA, sA))
a('s_lshl_b32 s%d, s%d, 1' % (sB, sJ))
a('s_add_u32 s%d, s%d, s%d' % (sA, sA, sB))
a('s_and_b32 s%d, s%d, 1' % (sB, sW))
a('s_add_u32 s%d, s%d, s%d' % (sA, sA, sB))
a('s_lshl_b32 s%d, s%d, 2' % (sA, sA))
a('s_add_u32 s%d, s%d, %d' % (sA, sA, L.FH))
a('s_or_b32 s20, s%d, s%d' % (sA, sCc))
pair_base(sA, L.H)
a('s_mul_i32 s%d, s%d, %d' % (sB, sG, 4 * 56 * 1024))
a('s_add_u32 s%d, s%d, s%d' % (sA, sA, sB))
a('s_mul_i32 s%d, s%d, %d' % (sB, sW, 14 * 1024))
a('s_add_u32 s%d, s%d, s%d' % (sO, sA, sB))
quarter_offsets(4, 56 * 1024)
a('s_cmp_eq_u32 s%d, 0' % sPAIR)
a('s_cbranch_scc1 L_d_nout')
owner_index()
a('s_mul_i32 s%d, s%d, 14336' % (sPX, sB))
a('s_lshl_b32 s%d, s%d, 6' % (sA, sA))
a('s_add_u32 s%d, s%d, s%d' % (sPX, sPX, sA))
a('s_add_u32 s%d, s%d, %d' % (sPX2, sPX, 2 * 14336))
a.label('L_d_nout')
a('v_and_b32 v%d, 15, v0' % V_TOK)
a('v_lshrrev_b32 v%d, 4, v0' % V_G)
a('v_mul_u32_u24 v242, 896, v%d' % V_TOK)
a('v_lshl_add_u32 v242, v%d, 3, v242' % V_G)


def d_hload(q):
    tile, kk = divmod(q, 14)
    return ('buffer_load_dwordx4 %s, v1, %s, s%d offen offset:%d sc1' %
            (vr(d_reg(q)), srd(S_WS), sO + 4 * tile + (kk >> 2), 1024 * (kk & 3)))


def d_reg(q):
    return DFIRST[q] if q < len(DFIRST) else DH + (q % DRING) * 4


dmk = {}
for q in range(len(DFIRST), DLOOK):
    a(d_hload(q))
    hm[q] = a.vm_mark()
dmk[1] = early_issue(244, 243, 256)
stamp()
for x in gelu_post(6):
    a(x)
h_store(6)()
a('s_waitcnt lgkmcnt(0)')
gelu_packed(7)
h_flag(5)()
h_store(7)()
stamp()

a('s_barrier')
stamp()


def d_tile(tile):
    items = []
    for kk in range(14):
        q = tile * 14 + kk
        for t in range(4):
            r = DACC + (tile * 4 + t) * 4
            pre = [(lambda qq=q: a.wait_vm(hm[qq]))] if t == 0 else []
            if t == 0 and q in (6, 12):
                pre.append(h_flag({6: 6, 12: 7}[q]))
            post = None
            if t == 0 and q + DLOOK < 56:
                def post(qq=q + DLOOK):
                    if qq % 14 == 0:
                        early_check(244, 243, dmk[qq // 14], 256 * (qq // 14))
                    a(d_hload(qq))
                    hm[qq] = a.vm_mark()
                    if qq % 14 == 6 and qq // 14 < 3:
                        dmk[qq // 14 + 1] = early_issue(244, 243, 256 * (qq // 14 + 1))
            items.append((pre, '%s %s, %s, %s, %s' % (MFMA, vr(r), ar((kk * 4 + t) * 4), vr(d_reg(q)),
                                                      '0' if kk == 0 else vr(r)), post))
    return items


def d_out_store(st, pk):
    a('buffer_store_dwordx2 %s, v242, %s, s%d offen %s' % (vr(pk, 2), srd(S_OUT), sPX if st == 0 else sPX2, OUTSC))
    a('buffer_store_dwordx2 %s, v242, %s, s%d offen offset:32 %s' % (vr(pk + 2, 2), srd(S_OUT), sPX if st == 0 else sPX2, OUTSC))


def d_store(st, pk):
    fin, done = newlab('L_dfin'), newlab('L_ddone')
    a('s_cmp_eq_u32 s%d, 0' % sPAIR)
    a('s_cbranch_scc0 %s' % fin)
    publish_data(st, pk)
    a('s_branch %s' % done)
    a.label(fin)
    n = a.vm_issued
    d_out_store(st, pk)
    a.vm_issued = n
    a.label(done)


DT0, DT1, DPK, DSTT, DSTS = 226, 2, 18, 28, 36
stage0 = [lambda: (a('s_waitcnt lgkmcnt(0)'), a('s_barrier'))] + red_reads(0, DRD) + finish_pre(0, True, DT0)
stage0 += [lambda: a('s_waitcnt lgkmcnt(0)')] + finish_sum(0, DRD, DT0, DPK, False) + [lambda: d_store(0, DPK)]
run_tiles(d_tile, {1: red_writes(DACC, 0), 2: red_writes(DACC + 16, 1), 3: red_writes(DACC + 32, 2) + stage0})
stamp2()
for x in red_writes(DACC + 48, 3):
    a(x)
for x in finish_pre(1, True, DT1):
    a(x)
a('s_waitcnt lgkmcnt(0)')
a('s_barrier')
stamp2()
for x in red_reads(1, DRD):
    a(x)
a('s_waitcnt lgkmcnt(0)')
for x in finish_sum(1, DRD, DT1, DPK + 4, True):
    a(x)
d_store(1, DPK + 4)
stamp()
a('s_cmp_eq_u32 s%d, 0' % sPAIR)
a('s_cbranch_scc0 L_next_pair')
publish_stats([DT0, DT1], DSTT, DSTS)
FHMODE = ([x[5:] for x in sys.argv if x.startswith('--fh=')] + ['after'])[0]
a('v_mov_b32 v240, s20')
if FHMODE == 'before':
    a('s_waitcnt vmcnt(0)')
    a('s_mov_b64 exec, 1')
    a('buffer_store_dword v%d, v240, %s, 0 offen sc1' % (V_T, srd(S_WS)))
    a('s_mov_b64 exec, -1')
    a('v_lshlrev_b32 v241, 8, v0')
    a('v_add_u32 v241, s%d, v241' % sPF)
    a('s_mov_b64 exec, 3')
    store('buffer_store_dword v%d, v241, %s, 0 offen' % (V_T, srd(S_WS)), sPFC)
    a('s_mov_b64 exec, -1')
else:
    publish_flags(8)
    if FHMODE == 'wait':
        a('s_waitcnt vmcnt(0)')
    a('s_mov_b64 exec, 1')
    a('buffer_store_dword v%d, v240, %s, 0 offen sc1' % (V_T, srd(S_WS)))
    a('s_mov_b64 exec, -1')
a.label('L_next_pair')
stamp()
a('s_add_u32 s%d, s%d, 1' % (sPAIR, sPAIR))
a('s_cmp_lt_u32 s%d, 2' % sPAIR)
a('s_cbranch_scc1 L_pair')

a('s_cmp_eq_u32 s2, 0')
a('s_cbranch_scc0 L_noepoch')
a('s_cmp_eq_u32 s%d, 0' % sW)
a('s_cbranch_scc0 L_noepoch')
a('buffer_load_dword v2, off, %s, 0 sc1' % srd(S_WS))
a('s_waitcnt vmcnt(0)')
a('v_add_u32 v2, 1, v2')
a('s_mov_b64 exec, 1')
a('buffer_store_dword v2, off, %s, 0 sc1' % srd(S_WS))
a('s_mov_b64 exec, -1')
a.label('L_noepoch')
if PAD:
    a.label('L_padspin')
    a('s_memrealtime s[34:35]')
    a('s_waitcnt lgkmcnt(0)')
    a('s_sub_u32 s34, s34, s0')
    a('s_cmp_lt_u32 s34, %d' % PAD[0])
    a('s_cbranch_scc1 L_padspin')
if DBG:
    a('s_memtime s[32:33]')
    a('s_memrealtime s[34:35]')
    a('s_waitcnt lgkmcnt(0)')
    a('s_sub_u32 s32, s32, s26')
    a('s_sub_u32 s34, s34, s0')
    build_srd(S_TMP, P_DBG, 256)
    a('v_mov_b32 v2, s32')
    a('v_mov_b32 v3, s34')
    a('v_mov_b32 v4, s%d' % sFAST)
    a('v_mov_b32 v5, s%d' % sXCC)
    a('s_lshr_b32 s%d, s2, 6' % sA)
    a('s_lshl_b32 s%d, s%d, 4' % (sA, sA))
    a('s_and_b32 s%d, s2, 63' % sB)
    a('s_or_b32 s%d, s%d, s%d' % (sB, sB, sW))
    a('s_cmp_eq_u32 s%d, 0' % sB)
    a('s_cselect_b32 s%d, s%d, 0x%x' % (sA, sA, INV))
    a('v_mov_b32 v6, s%d' % sA)
    a('s_mov_b64 exec, 1')
    a('buffer_store_dwordx4 v[2:5], v6, %s, 0 offen' % srd(S_TMP))
    a('s_mov_b64 exec, -1')
if DIAG:
    stamp()
    a('s_mov_b32 s%d, 63' % sSTI)
    a('s_lshl_b64 exec, 1, s%d' % sSTI)
    a('v_mov_b32 v%d, s%d' % (V_STAMP, sERR))
    a('s_mov_b32 s%d, 62' % sSTI)
    a('s_lshl_b64 exec, 1, s%d' % sSTI)
    a('v_mov_b32 v%d, s%d' % (V_STAMP, sFAST))
    a('s_mov_b64 exec, -1')
    a('s_lshl_b32 s%d, s2, 2' % sA)
    a('s_add_u32 s%d, s%d, s%d' % (sA, sA, sW))
    a('s_lshl_b32 s%d, s%d, 8' % (sA, sA))
    a('v_lshlrev_b32 v2, 2, v0')
    a('s_add_u32 s%d, s%d, %d' % (sA, sA, L.WS_USED))
    a('s_mov_b32 s%d, 0x%x' % (S_WS + 2, L.WS_USED + 256 * 1024))
    a('buffer_store_dword v%d, v2, %s, s%d offen' % (V_STAMP, srd(S_WS), sA))
    if DBGST:
        build_srd(S_TMP, P_DBG, 256)
        a('v_readfirstlane_b32 s%d, v%d' % (sA, V_STAMP))
        a('s_nop 4')
        a('v_subrev_u32 v3, s%d, v%d' % (sA, V_STAMP))
        a('s_or_b32 s%d, s2, s%d' % (sB, sW))
        a('s_cmp_eq_u32 s%d, 0' % sB)
        a('s_cselect_b32 s%d, 0, 0x%x' % (sB, INV))
        a('v_or_b32 v2, s%d, v2' % sB)
        SEL = [int(x[6:]) for x in sys.argv if x.startswith('--sel=')]
        sel = SEL[0] if SEL else 1
        a('v_subrev_u32 v2, %d, v2' % (4 * sel))
        a('buffer_store_dword v3, v2, %s, 0 offen' % srd(S_TMP))
a.label('L_end')
a('s_endpgm')

a.finalize()
body = a.text()

import os
hdr = open(os.path.join(os.path.dirname(os.path.abspath(__file__)), 'header.txt')).read()
out = hdr + '; @launch grid=(256,1,1) block=(256,1,1) lds=%d\n' % L.LDS_BYTES
out += '.amdgcn_target "amdgcn-amd-amdhsa--gfx950"\n.text\n.globl %s_kernel\n.p2align 8\n.type %s_kernel,@function\n%s_kernel:\n' % (NAME, NAME, NAME)
out += body
out += '''.section .rodata,"a"
.p2align 6
.amdhsa_kernel %s_kernel
  .amdhsa_next_free_vgpr 512
  .amdhsa_next_free_sgpr 102
  .amdhsa_accum_offset 256
  .amdhsa_group_segment_fixed_size 0
  .amdhsa_kernarg_size 88
  .amdhsa_user_sgpr_count 2
  .amdhsa_user_sgpr_kernarg_segment_ptr 1
  .amdhsa_system_sgpr_workgroup_id_x 1
.end_amdhsa_kernel
''' % NAME
sys.stdout.write(out)
```

```python
import struct
import sys
from asmlib import Asm
import layout as L

NAME = 'interleave_layers__sliding_local_dilated__mixer_channel_mlp__prompt'
DIAG = '--diag' in sys.argv
FASTMODE = ([x[7:] for x in sys.argv if x.startswith('--fast=')] + ['flags'])[0]
NOFAST = FASTMODE == 'none'
PAD = [int(x[6:]) for x in sys.argv if x.startswith('--pad=')]
DBG = '--dbg' in sys.argv or bool(PAD)
SPIN_LIMIT = 200000
OUTSC = ([x[8:] for x in sys.argv if x.startswith('--outsc=')] + [''])[0].replace('_', ' ')
SLEEP = int(([x[8:] for x in sys.argv if x.startswith('--sleep=')] + ['0'])[0])
INV = 0x80000000

a = Asm()

sXCC = 3
S_WS, S_TMP, S_B1, S_OUT = 4, 8, 12, 16
P_X, P_WQKV, P_WO, P_BX, P_W1, P_B1, P_W2, P_B2, P_OUT, P_DBG, P_WSP = 20, 22, 24, 26, 28, 30, 32, 34, 36, 38, 40
sS, sC, sG, sJ, sW, sT, sPAIR, sSPIN = 42, 43, 44, 45, 46, 47, 48, 49
sM1 = 50
sM2 = 58
sM0 = 66
sO = 74
sA, sB, sCc, sD = 90, 91, 92, 93
sMK = 94
sTS = 96
sGT = 98
sERR = 99
sSTI = 100
sFAST = 101
sFD = 27
sPFC = 26
sFH = 25


def srd(n):
    return 's[%d:%d]' % (n, n + 3)


def vr(n, k=4):
    return 'v[%d:%d]' % (n, n + k - 1)


def ar(n, k=4):
    return 'a[%d:%d]' % (n, n + k - 1)


def sp(n):
    return 's[%d:%d]' % (n, n + 1)


def f2h(x):
    return '0x%08x' % struct.unpack('<I', struct.pack('<f', x))[0]


V_T, V_STAMP = 254, 255
V_TOK, V_G = 250, 251
MFMA = 'v_mfma_f32_16x16x32_bf16'


DIAG2 = '--diag2' in sys.argv
PREFPOS = ([x[7:] for x in sys.argv if x.startswith('--pref=')] + ['a'])[0]
PREF = PREFPOS != 'n'
TOUCH = '--notouch' not in sys.argv
STWAIT = '--stwait' in sys.argv
P2EARLY = '--p2early' in sys.argv
SKEW = [int(x[7:]) for x in sys.argv if x.startswith('--skew=')]
DBGST = '--dbgst' in sys.argv


def stamp2():
    if DIAG2:
        stamp()


def stamp():
    if not DIAG:
        return
    a('%s %s' % ('s_memrealtime' if '--rt' in sys.argv else 's_memtime', sp(sTS)))
    a('s_waitcnt lgkmcnt(0)')
    a('s_lshl_b64 exec, 1, s%d' % sSTI)
    a('v_mov_b32 v%d, s%d' % (V_STAMP, sTS))
    a('s_mov_b64 exec, -1')
    a('s_add_u32 s%d, s%d, 1' % (sSTI, sSTI))


lab_no = [0]


def newlab(p):
    lab_no[0] += 1
    return '%s_%d' % (p, lab_no[0])


def emit_pref():
    a('s_getpc_b64 s[96:97]')
    a.label('L_pc')
    a('s_lshr_b32 s%d, s2, 3' % sA)
    a('s_lshl_b32 s%d, s%d, 11' % (sA, sA))
    a('s_lshl_b32 s%d, s%d, 9' % (sB, sW))
    a('s_add_u32 s%d, s%d, s%d' % (sA, sA, sB))
    a('v_lshlrev_b32 v21, 3, v0')
    a('v_add_u32 v21, s%d, v21' % sA)
    a('v_min_u32 v21, L_end-L_pc-8, v21')
    a('global_load_dwordx2 v[58:59], v21, s[96:97]')


def skew_store(point, have=False):
    if not SKEW or SKEW[0] != point:
        return
    if not have:
        a('s_memrealtime s[96:97]')
        a('s_waitcnt lgkmcnt(0)')
    build_srd(S_TMP, P_DBG, 256)
    a('s_and_b32 s%d, s2, 15' % sA)
    a('s_or_b32 s%d, s%d, s%d' % (sA, sA, sW))
    a('s_cmp_eq_u32 s%d, 0' % sA)
    a('s_cselect_b32 s%d, 0, 0x%x' % (sA, INV))
    a('s_lshr_b32 s%d, s2, 2' % sB)
    a('s_or_b32 s%d, s%d, s%d' % (sA, sA, sB))
    a('v_mov_b32 v21, s%d' % sA)
    a('v_mov_b32 v22, s96')
    a('s_mov_b64 exec, 1')
    a('buffer_store_dword v22, v21, %s, 0 offen' % srd(S_TMP))
    a.vm_issued -= 1
    a('s_mov_b64 exec, -1')


def build_srd(dst, ptr, nbytes):
    a('s_mov_b32 s%d, s%d' % (dst, ptr))
    a('s_and_b32 s%d, s%d, 0xffff' % (dst + 1, ptr + 1))
    a('s_mov_b32 s%d, 0x%x' % (dst + 2, nbytes))
    a('s_mov_b32 s%d, 0x20000' % (dst + 3))


def poll(voff, off2=None, sleep=None):
    lab, done = newlab('L_poll'), newlab('L_polldone')
    a('s_mov_b64 exec, %s' % sp(sMK))
    a('s_mov_b32 s%d, 0' % sSPIN)
    a.label(lab)
    a('buffer_load_dword v253, v%d, %s, 0 offen sc1' % (voff, srd(S_WS)))
    if off2 is not None:
        a('buffer_load_dword v245, v%d, %s, 0 offen offset:%d sc1' % (voff, srd(S_WS), off2))
    a('s_waitcnt vmcnt(0)')
    if off2 is not None:
        a('v_xor_b32 v245, s%d, v245' % sT)
        a('v_xor_b32 v253, s%d, v253' % sT)
        a('v_or_b32 v253, v253, v245')
        a('v_cmp_ne_u32 vcc, 0, v253')
    else:
        a('v_cmp_ne_u32 vcc, s%d, v253' % sT)
    a('s_nop 4')
    a('s_cbranch_vccz %s' % done)
    if sleep or SLEEP:
        a('s_sleep %d' % (sleep or SLEEP))
    a('s_add_u32 s%d, s%d, 1' % (sSPIN, sSPIN))
    a('s_cmp_lt_u32 s%d, %d' % (sSPIN, SPIN_LIMIT))
    a('s_cbranch_scc1 %s' % lab)
    a('s_add_u32 s%d, s%d, 1' % (sERR, sERR))
    a.label(done)
    a('s_mov_b64 exec, -1')


sMK2 = 30


def early_issue(dst, voff, off=0):
    a('s_mov_b64 exec, %s' % sp(sMK2))
    a('buffer_load_dword v%d, v%d, %s, 0 offen offset:%d sc1' % (dst, voff, srd(S_WS), off))
    a('s_mov_b64 exec, -1')
    return a.vm_mark()


def early_check(dst, voff, mark, off=0):
    ok = newlab('L_early')
    a.wait_vm(mark)
    a('s_mov_b64 exec, %s' % sp(sMK2))
    a('v_cmp_ne_u32 vcc, s%d, v%d' % (sT, dst))
    a('s_mov_b64 exec, -1')
    a('s_nop 2')
    a('s_cbranch_vccz %s' % ok)
    a('s_mov_b64 %s, %s' % (sp(sMK), sp(sMK2)))
    n = a.vm_issued
    if off:
        a('v_add_u32 v253, %d, v%d' % (off, voff))
        a('v_mov_b32 v%d, v253' % dst)
        poll(dst)
    else:
        poll(voff)
    a.vm_issued = n
    a.label(ok)


def store(fmt, cond=None):
    if cond is None or NOFAST or (FASTMODE == 'flags' and cond in (sFD, sFH, sPC)):
        a(fmt + ' sc1')
        return
    slow, done = newlab('L_slow'), newlab('L_st')
    a('s_cmp_eq_u32 s%d, 0' % cond)
    a('s_cbranch_scc1 %s' % slow)
    a(fmt)
    a('s_branch %s' % done)
    a.label(slow)
    a(fmt + ' sc1')
    a.vm_issued -= 1
    a.label(done)


def set_flags(voff, nlanes, cond=None, val=V_T, between=()):
    mark = a.vm_mark()
    for x in between:
        a(x)
    a.wait_vm(mark)
    a('s_mov_b64 exec, %d' % ((1 << nlanes) - 1))
    store('buffer_store_dword v%d, v%d, %s, 0 offen' % (val, voff, srd(S_WS)), cond)
    a('s_mov_b64 exec, -1')


def xg_reduce(x, t, op='v_add_f32'):
    return ['v_mov_b32 v%d, v%d' % (t, x),
            'v_permlane32_swap_b32 v%d, v%d' % (x, t),
            '%s v%d, v%d, v%d' % (op, x, x, t),
            'v_mov_b32 v%d, v%d' % (t, x),
            'v_permlane16_swap_b32 v%d, v%d' % (x, t),
            '%s v%d, v%d, v%d' % (op, x, x, t)]


EPS = 1e-5


def stats_finish(s1, s2, t, double_ln):
    o = ['v_mul_f32 v%d, %s, v%d' % (s1, f2h(1.0 / 448), s1),
         'v_mul_f32 v%d, %s, v%d' % (s2, f2h(1.0 / 448), s2),
         'v_fma_f32 v%d, -v%d, v%d, v%d' % (s2, s1, s1, s2),
         'v_max_f32 v%d, 0, v%d' % (s2, s2),
         'v_add_f32 v%d, %s, v%d' % (t, f2h(EPS), s2),
         'v_rsq_f32 v%d, v%d' % (t, t)]
    if not double_ln:
        o += ['v_mov_b32 v%d, v%d' % (s2, t)]
    else:
        o += ['v_mul_f32 v%d, v%d, v%d' % (s2, s2, t),
              'v_fmaak_f32 v%d, v%d, v%d, %s' % (s2, s2, t, f2h(EPS)),
              'v_rsq_f32 v%d, v%d' % (s2, s2),
              'v_mul_f32 v%d, v%d, v%d' % (s2, s2, t)]
    return o


def pair_base(dst, arr):
    a('s_mul_i32 s%d, s%d, %d' % (dst, sPAIR, arr[1] - arr[0]))
    a('s_add_u32 s%d, s%d, %d' % (dst, dst, arr[0]))


def quarter_offsets(n, stride):
    for t in range(n):
        if t:
            a('s_add_u32 s%d, s%d, %d' % (sO + 4 * t, sO + 4 * (t - 1), stride))
        for q in range(1, 4):
            a('s_add_u32 s%d, s%d, %d' % (sO + 4 * t + q, sO + 4 * t, 4096 * q))


sPX, sPS, sPF, sPC, sPX2 = 36, 37, 28, 29, 33


def stats_flags(delta, lsh):
    a('v_lshlrev_b32 v241, %d, v0' % lsh)
    a('s_add_u32 s%d, s%d, %d' % (sA, sPF, delta))
    a('v_add_u32 v241, s%d, v241' % sA)
    a('s_mov_b64 exec, 3')
    store('buffer_store_dword v%d, v241, %s, 0 offen' % (V_T, srd(S_WS)), sPFC)
    a('s_mov_b64 exec, -1')


a('s_cmp_ge_u32 s2, 256')
a('s_cbranch_scc1 L_end')
if '--perm' in sys.argv:
    a('s_and_b32 s90, s2, 7')
    a('s_lshr_b32 s91, s2, 3')
    a('s_and_b32 s91, s91, 7')
    a('s_and_b32 s2, s2, 0xc0')
    a('s_lshl_b32 s90, s90, 3')
    a('s_or_b32 s2, s2, s90')
    a('s_or_b32 s2, s2, s91')
a('s_load_dwordx16 s[20:35], s[0:1], 0')
a('s_load_dwordx4 s[36:39], s[0:1], 64')
a('s_load_dwordx2 s[40:41], s[0:1], 80')
a('s_getreg_b32 s%d, hwreg(HW_REG_XCC_ID, 0, 4)' % sXCC)
a('s_and_b32 s%d, s2, 7' % sA)
a('s_lshr_b32 s%d, s2, 3' % sB)
a('s_lshr_b32 s%d, s%d, 4' % (sCc, sB))
a('s_lshl_b32 s%d, s%d, 1' % (sS, sA))
a('s_add_u32 s%d, s%d, s%d' % (sS, sS, sCc))
a('s_and_b32 s%d, s%d, 15' % (sC, sB))
a('s_lshr_b32 s%d, s%d, 3' % (sA, sC))
a('s_lshl_b32 s%d, s%d, 1' % (sG, sS))
a('s_add_u32 s%d, s%d, s%d' % (sG, sG, sA))
a('s_and_b32 s%d, s%d, 7' % (sJ, sC))
a('s_mov_b32 s%d, 0' % sERR)
if SKEW and SKEW[0] == 0:
    a('s_memrealtime s[96:97]')
a('v_lshrrev_b32 v2, 6, v0')
a('v_and_b32 v0, 63, v0')
a('v_readfirstlane_b32 s%d, v2' % sW)
a('v_lshlrev_b32 v1, 4, v0')
if DIAG:
    a('v_mov_b32 v%d, 0' % V_STAMP)
    a('s_mov_b32 s%d, 0' % sSTI)
stamp()
a('v_and_b32 v%d, 15, v0' % V_TOK)
a('v_lshrrev_b32 v%d, 4, v0' % V_G)
sSTG = 40
a('s_waitcnt lgkmcnt(0)')
if DBG:
    a('s_memtime s[26:27]')
    a('s_memrealtime s[0:1]')
    a('s_waitcnt lgkmcnt(0)')
skew_store(0, True)
build_srd(S_WS, P_WSP, L.WS_USED)
a('buffer_load_dword v%d, off, %s, 0 sc1' % (V_T, srd(S_WS)))
a('s_lshl_b32 s%d, s%d, 14' % (sSTG, sW))
a('s_add_u32 s%d, s%d, %d' % (sSTG, sSTG, L.L_R2))

build_srd(S_TMP, P_X, 2048 * 896)
a('v_mul_u32_u24 v2, 896, v%d' % V_TOK)
a('v_lshl_add_u32 v2, v%d, 3, v2' % V_G)
a('s_lshr_b32 s%d, s%d, 1' % (sA, sC))
a('s_lshl_b32 s%d, s%d, 3' % (sB, sS))
a('s_add_u32 s%d, s%d, s%d' % (sO + 0, sA, sB))
a('s_and_b32 s%d, s%d, 1' % (sA, sC))
a('s_mul_i32 s%d, s%d, 7' % (sA, sA))
a('s_add_u32 s%d, s%d, s%d' % (sO + 1, sA, sW))
a('s_cmp_lt_u32 s%d, 3' % sW)
a('s_cselect_b32 s%d, 0, 0x%x' % (sO + 2, INV))
a('s_mul_i32 s%d, s%d, 14336' % (sA, sO + 0))
a('s_lshl_b32 s%d, s%d, 6' % (sB, sO + 1))
a('s_add_u32 s%d, s%d, s%d' % (sA, sA, sB))
a('v_or_b32 v3, s%d, v2' % (sO + 2))
a('buffer_load_dwordx2 v[10:11], v2, %s, s%d offen' % (srd(S_TMP), sA))
a('buffer_load_dwordx2 v[12:13], v2, %s, s%d offen offset:32' % (srd(S_TMP), sA))
a('buffer_load_dwordx2 v[14:15], v3, %s, s%d offen offset:256' % (srd(S_TMP), sA))
a('buffer_load_dwordx2 v[16:17], v3, %s, s%d offen offset:288' % (srd(S_TMP), sA))

build_srd(S_TMP, P_WQKV, 448 * 2688)
qMAT, qU, qINV = sO + 3, sO + 4, sO + 5
a('s_lshl_b32 s%d, s%d, 4' % (sA, sW))
a('s_add_u32 s%d, s%d, s%d' % (sA, sA, sS))
a('s_cmp_lt_u32 s%d, 42' % sA)
a('s_cselect_b32 s%d, 0, 0x%x' % (qINV, INV))
a('s_min_u32 s%d, s%d, 41' % (sA, sA))
a('s_mul_i32 s%d, s%d, 4682' % (qMAT, sA))
a('s_lshr_b32 s%d, s%d, 16' % (qMAT, qMAT))
a('s_mul_i32 s%d, s%d, 14' % (sB, qMAT))
a('s_sub_u32 s%d, s%d, s%d' % (qU, sA, sB))
a('s_mul_i32 s%d, s%d, %d' % (sA, qU, 32 * 2688))
a('s_mul_i32 s%d, s%d, 896' % (sB, qMAT))
a('s_add_u32 s%d, s%d, s%d' % (sA, sA, sB))
a('s_mul_i32 s%d, s%d, 56' % (sB, sC))
a('s_add_u32 s%d, s%d, s%d' % (sA, sA, sB))
a('v_lshrrev_b32 v4, 2, v0')
a('v_mul_u32_u24 v4, 2688, v4')
a('v_and_b32 v5, 3, v0')
a('v_lshl_add_u32 v4, v5, 4, v4')
a('v_or_b32 v4, s%d, v4' % qINV)
a('s_mov_b32 m0, s%d' % sSTG)
a('s_add_u32 s%d, s%d, %d' % (sB, sA, 16 * 2688))
a('buffer_load_dwordx4 v4, %s, s%d offen lds' % (srd(S_TMP), sA))
a('s_add_u32 m0, s%d, 1024' % sSTG)
a('s_nop 0')
a('buffer_load_dwordx4 v4, %s, s%d offen lds' % (srd(S_TMP), sB))

bINV, bDST, bSTR, bINV2, bDST2, sSTRD = 20, 21, 22, 23, 24, 25


def emit_p2_issue():
    a('s_cmp_eq_u32 s%d, 3' % sW)
    a('s_cbranch_scc1 L_p2_w1')
    a('s_lshl_b32 s%d, s%d, 5' % (sA, sW))
    a('s_add_u32 s%d, s%d, s%d' % (sA, sA, sG))
    a('s_cmp_lt_u32 s%d, 72' % sA)
    a('s_cselect_b32 s%d, 0, 0x%x' % (bINV, INV))
    a('s_cmp_eq_u32 s%d, 7' % sJ)
    a('s_cselect_b32 s%d, 0x%x, s%d' % (bINV, INV, bINV))
    a('s_min_u32 s%d, s%d, 71' % (sA, sA))
    a('s_min_u32 s%d, s%d, 6' % (sD, sJ))
    a('s_cmp_lt_u32 s%d, 16' % sA)
    a('s_cselect_b32 s%d, s%d, s%d' % (S_TMP, P_WO, P_W2))
    a('s_cselect_b32 s%d, s%d, s%d' % (S_TMP + 1, P_WO + 1, P_W2 + 1))
    a('s_mov_b32 s%d, 0x%x' % (S_TMP + 2, 1792 * 896))
    a('s_cselect_b32 s%d, 0x%x, s%d' % (S_TMP + 2, 448 * 896, S_TMP + 2))
    a('s_cselect_b32 s%d, 28, 32' % sB)
    a('s_cselect_b32 s%d, 0, 16' % sCc)
    a('s_mov_b32 s%d, %d' % (bSTR, 56 * 1024))
    a('s_cselect_b32 s%d, %d, s%d' % (bSTR, 16 * 1024, bSTR))
    a('s_mov_b32 s%d, %d' % (bDST, L.WD))
    a('s_cselect_b32 s%d, %d, s%d' % (bDST, L.WB, bDST))
    a('s_cselect_b32 s%d, 0x%x, 0' % (sO + 9, INV))
    a('s_and_b32 s%d, s%d, 0xffff' % (S_TMP + 1, S_TMP + 1))
    a('s_mov_b32 s%d, 0x20000' % (S_TMP + 3))
    a('s_sub_u32 s%d, s%d, s%d' % (sA, sA, sCc))
    a('s_lshl_b32 s%d, s%d, 10' % (sCc, sA))
    a('s_add_u32 s%d, s%d, s%d' % (bDST, bDST, sCc))
    a('s_lshl_b32 s%d, s%d, 2' % (sCc, sD))
    a('s_mul_i32 s%d, s%d, s%d' % (sCc, sCc, bSTR))
    a('s_add_u32 s%d, s%d, s%d' % (bDST, bDST, sCc))
    a('s_mul_i32 s%d, s%d, s%d' % (sA, sA, sB))
    a('s_mul_i32 s%d, s%d, 896' % (sA, sA))
    a('s_lshl_b32 s%d, s%d, 7' % (sB, sD))
    a('s_add_u32 s%d, s%d, s%d' % (sO + 10, sA, sB))
    a('s_mov_b32 s%d, 896' % sSTRD)
    a('s_mov_b32 s%d, 0x%x' % (bINV2, INV))
    a('s_mov_b32 s%d, 0' % bDST2)
    a('s_mov_b32 s%d, 0' % (sO + 11))
    a('s_branch L_p2_go')
    a.label('L_p2_w1')
    build_srd(S_TMP, P_W1, 448 * 3584)
    a('s_lshl_b32 s%d, s%d, 4' % (sA, sS))
    a('s_add_u32 s%d, s%d, s%d' % (sA, sA, sC))
    a('s_cmp_lt_u32 s%d, 136' % sA)
    a('s_cselect_b32 s%d, 0, 0x%x' % (bINV2, INV))
    a('s_mov_b32 s%d, 0' % bINV)
    a('s_mov_b32 s%d, 0' % (sO + 9))
    a('s_mov_b32 s%d, %d' % (bSTR, 14 * 1024))
    a('s_mov_b32 s%d, 3584' % sSTRD)
    for dst, src, add in ((bDST, sO + 10, 0), (bDST2, sO + 11, 256)):
        a('s_add_u32 s%d, s%d, %d' % (sB, sA, add))
        a('s_min_u32 s%d, s%d, 391' % (sB, sB))
        a('s_mul_i32 s%d, s%d, 4682' % (sCc, sB))
        a('s_lshr_b32 s%d, s%d, 16' % (sCc, sCc))
        a('s_mul_i32 s%d, s%d, 14' % (sD, sCc))
        a('s_sub_u32 s%d, s%d, s%d' % (sB, sB, sD))
        a('s_mul_i32 s%d, s%d, %d' % (src, sB, 32 * 3584))
        a('s_lshl_b32 s%d, s%d, 7' % (sD, sCc))
        a('s_add_u32 s%d, s%d, s%d' % (src, src, sD))
        a('s_mul_i32 s%d, s%d, 56' % (sD, sCc))
        a('s_add_u32 s%d, s%d, s%d' % (sD, sD, sB))
        a('s_lshl_b32 s%d, s%d, 10' % (sD, sD))
        a('s_add_u32 s%d, s%d, %d' % (dst, sD, L.WC))
    a.label('L_p2_go')
    a('v_lshrrev_b32 v6, 3, v0')
    a('v_mul_lo_u32 v6, v6, s%d' % sSTRD)
    a('v_and_b32 v5, 7, v0')
    a('v_lshl_add_u32 v6, v5, 4, v6')
    a('v_or_b32 v8, s%d, v6' % bINV2)
    a('v_or_b32 v6, s%d, v6' % bINV)
    a('v_cmp_lt_u32 vcc, 31, v0')
    a('v_mov_b32 v7, s%d' % (sO + 9))
    a('v_cndmask_b32 v7, 0, v7, vcc')
    a('v_or_b32 v7, v7, v6')
    a('s_lshl_b32 s%d, s%d, 3' % (sB, sSTRD))
    for slot in range(2):
        src = sO + 10 + slot
        for q in range(4):
            a('s_add_u32 m0, s%d, %d' % (sSTG, 2048 + 4096 * slot + 1024 * q))
            if q:
                a('s_add_u32 s%d, s%d, s%d' % (src, src, sB))
            else:
                a('s_nop 0')
            a('buffer_load_dwordx4 v%d, %s, s%d offen lds' % (8 if slot else (7 if q == 3 else 6), srd(S_TMP), src))


if P2EARLY:
    emit_p2_issue()
build_srd(S_B1, P_B1, 1792 * 2)
build_srd(S_OUT, P_OUT, 2048 * 896)
a('v_bfe_u32 v18, v0, 2, 2')
a('v_lshl_add_u32 v18, v%d, 2, v18' % V_G)
a('v_and_b32 v19, 3, v0')
a('v_lshlrev_b32 v19, 3, v19')
if PREFPOS == 'b':
    emit_pref()
if TOUCH:
    a('v_lshlrev_b32 v21, 21, v0')
    a('s_mov_b64 exec, 0x1ffff')
    a('buffer_load_dword v253, v21, %s, 0 offen' % srd(S_WS))
    a('s_mov_b64 exec, -1')
    a('s_waitcnt vmcnt(%d)' % ((9 if P2EARLY else 1) + (PREFPOS == 'b')))
else:
    a('s_waitcnt vmcnt(%d)' % ((8 if P2EARLY else 0) + (PREFPOS == 'b')))
stamp()

a('s_mov_b32 s%d, 0x9E3779B1' % sA)
a('v_mul_lo_u32 v%d, v%d, s%d' % (V_T, V_T, sA))
a('v_add_u32 v%d, 0x7F4A7C15, v%d' % (V_T, V_T))
a('v_and_b32 v%d, -16, v%d' % (V_T, V_T))
a('v_lshl_add_u32 v20, v18, 6, v19')
a('v_add_u32 v20, s%d, v20' % sSTG)
for hf in range(2):
    a('ds_read_b64_tr_b16 %s, v20 offset:%d' % (vr(24 + 4 * hf, 2), 32 * hf))
    a('ds_read_b64_tr_b16 %s, v20 offset:%d' % (vr(26 + 4 * hf, 2), 32 * hf + 1024))
a('v_readfirstlane_b32 s%d, v%d' % (sT, V_T))
a('s_mul_i32 s%d, s%d, 14' % (sA, sO + 0))
a('s_add_u32 s%d, s%d, s%d' % (sA, sA, sO + 1))
a('s_lshl_b32 s%d, s%d, 10' % (sB, sA))
a('s_add_u32 s%d, s%d, %d' % (sB, sB, L.XA[0]))
a('v_or_b32 v3, s%d, v1' % (sO + 2))
a('buffer_store_dwordx4 v[10:13], v1, %s, s%d offen sc1' % (srd(S_WS), sB))
a('s_add_u32 s%d, s%d, 4096' % (sB, sB))
a('buffer_store_dwordx4 v[14:17], v3, %s, s%d offen sc1' % (srd(S_WS), sB))
a('v_cmp_gt_u32 vcc, 12, v%d' % V_TOK)
a('s_mul_i32 s%d, s%d, 84' % (sB, sC))
a('s_mul_i32 s%d, s%d, 28' % (sCc, qMAT))
a('s_add_u32 s%d, s%d, s%d' % (sB, sB, sCc))
a('s_add_u32 s%d, s%d, s%d' % (sB, sB, qU))
a('s_lshl_b32 s%d, s%d, 10' % (sB, sB))
a('s_add_u32 s%d, s%d, %d' % (sB, sB, L.WA))
a('v_or_b32 v4, s%d, v1' % qINV)
a('s_waitcnt lgkmcnt(0)')
for p in range(4):
    a('v_cndmask_b32 v%d, 0, v%d, vcc' % (28 + p, 28 + p))
a('buffer_store_dwordx4 v[24:27], v4, %s, s%d offen sc1' % (srd(S_WS), sB))
a('s_add_u32 s%d, s%d, %d' % (sB, sB, 14 * 1024))
a('buffer_store_dwordx4 v[28:31], v4, %s, s%d offen sc1' % (srd(S_WS), sB))
a('v_mov_b32 v2, 0x3f803f80')
for k in range(2):
    x, s1, s2 = 10 + 4 * k, 110 + 2 * k, 111 + 2 * k
    a('v_mov_b32 v%d, 0' % s1)
    a('v_mov_b32 v%d, 0' % s2)
    for p in range(4):
        a('v_dot2_f32_bf16 v%d, v%d, v2, v%d' % (s1, x + p, s1))
        a('v_dot2_f32_bf16 v%d, v%d, v%d, v%d' % (s2, x + p, x + p, s2))
    for t in xg_reduce(s1, 114) + xg_reduce(s2, 115):
        a(t)
a('s_lshl_b32 s%d, s%d, 7' % (sB, sA))
a('s_add_u32 s%d, s%d, %d' % (sB, sB, L.SA[0]))
a('v_lshlrev_b32 v2, 3, v%d' % V_TOK)
a('v_or_b32 v3, s%d, v2' % (sO + 2))
a('s_mov_b64 exec, 0xffff')
a('buffer_store_dwordx2 v[110:111], v2, %s, s%d offen sc1' % (srd(S_WS), sB))
a('buffer_store_dwordx2 v[112:113], v3, %s, s%d offen offset:512 sc1' % (srd(S_WS), sB))
a('s_mov_b64 exec, -1')
crit_mark = a.vm_mark()
if not P2EARLY:
    emit_p2_issue()
a('s_lshl_b32 s%d, s%d, 5' % (sA, sO + 0))
a('s_add_u32 s%d, s%d, s%d' % (sA, sA, sO + 1))
a('s_lshl_b32 s%d, s%d, 2' % (sA, sA))
a('s_add_u32 s%d, s%d, %d' % (sA, sA, L.FX[0]))
a('v_lshlrev_b32 v2, 4, v0')
a('v_add_u32 v2, s%d, v2' % sA)
a('v_cmp_eq_u32 vcc, 1, v0')
a('v_mov_b32 v3, s%d' % (sO + 2))
a('v_cndmask_b32 v3, 0, v3, vcc')
a('v_or_b32 v2, v2, v3')
a('s_lshl_b32 s%d, s%d, 6' % (sA, sC))
a('s_lshl_b32 s%d, s%d, 2' % (sB, sS))
a('s_add_u32 s%d, s%d, s%d' % (sA, sA, sB))
a('s_add_u32 s%d, s%d, s%d' % (sA, sA, sW))
a('s_lshl_b32 s%d, s%d, 2' % (sA, sA))
a('s_add_u32 s%d, s%d, %d' % (sA, sA, L.FQ))
a('v_mov_b32 v3, s%d' % sA)
a('v_cmp_eq_u32 vcc, 2, v0')
a('v_cndmask_b32 v2, v2, v3, vcc')
a('s_lshl_b32 s%d, s%d, 4' % (sA, sS))
a('s_add_u32 s%d, s%d, s%d' % (sA, sA, sC))
a('s_lshl_b32 s%d, s%d, 2' % (sA, sA))
a('s_add_u32 s%d, s%d, %d' % (sA, sA, L.FXC))
a('s_cmp_eq_u32 s%d, 0' % sW)
a('s_cselect_b32 s%d, s%d, 0x%x' % (sA, sA, INV))
a('v_mov_b32 v3, s%d' % sA)
a('v_cmp_eq_u32 vcc, 3, v0')
a('v_cndmask_b32 v2, v2, v3, vcc')
a('v_or_b32 v3, s%d, v%d' % (sXCC, V_T))
a('v_cndmask_b32 v3, v%d, v3, vcc' % V_T)
stamp2()
a.wait_vm(crit_mark)
a('s_mov_b64 exec, 15')
a('buffer_store_dword v3, v2, %s, 0 offen sc1' % srd(S_WS))
a('s_mov_b64 exec, -1')
stamp()

if PREFPOS == 'a':
    emit_pref()
skew_store(1)
a('s_waitcnt vmcnt(%d)' % (2 if PREFPOS == 'a' else 1))
a('v_lshl_add_u32 v20, v18, 7, v19')
a('v_add_u32 v20, s%d, v20' % sSTG)
for slot in range(2):
    for t in range(4):
        a('ds_read_b64_tr_b16 %s, v20 offset:%d' % (vr(24 + 16 * slot + 4 * t, 2), 2048 + 4096 * slot + 32 * t))
        a('ds_read_b64_tr_b16 %s, v20 offset:%d' % (vr(26 + 16 * slot + 4 * t, 2), 2048 + 4096 * slot + 32 * t + 2048))
a('v_or_b32 v6, s%d, v1' % bINV)
a('v_or_b32 v8, s%d, v1' % bINV2)
a('s_waitcnt lgkmcnt(8)')
for t in range(4):
    a('buffer_store_dwordx4 %s, v6, %s, s%d offen sc1' % (vr(24 + 4 * t), srd(S_WS), bDST))
    if t < 3:
        a('s_add_u32 s%d, s%d, s%d' % (bDST, bDST, bSTR))
a('s_waitcnt lgkmcnt(0)')
for t in range(4):
    a('buffer_store_dwordx4 %s, v8, %s, s%d offen sc1' % (vr(40 + 4 * t), srd(S_WS), bDST2))
    if t < 3:
        a('s_add_u32 s%d, s%d, s%d' % (bDST2, bDST2, bSTR))
a('s_lshl_b32 s%d, s%d, 4' % (sA, sS))
a('s_add_u32 s%d, s%d, s%d' % (sA, sA, sC))
a('s_lshl_b32 s%d, s%d, 2' % (sA, sA))
a('s_add_u32 s%d, s%d, %d' % (sA, sA, L.FW1))
a('v_lshlrev_b32 v22, 10, v0')
a('v_add_u32 v22, s%d, v22' % sA)
a('v_cmp_eq_u32 vcc, 1, v0')
a('v_mov_b32 v23, s%d' % bINV2)
a('v_cndmask_b32 v23, 0, v23, vcc')
a('v_or_b32 v22, v22, v23')
a('s_cmp_eq_u32 s%d, 3' % sW)
a('s_cselect_b32 s%d, 0, 0x%x' % (sA, INV))
a('v_or_b32 v22, s%d, v22' % sA)

skew_store(3)
a('v_and_b32 v2, 1, v%d' % V_TOK)
a('v_lshlrev_b32 v3, 2, v%d' % V_G)
a('v_add_u32 v6, 2, v%d' % V_TOK)
for i in range(4):
    a('v_add_u32 v4, %d, v3' % i)
    a('v_cmp_eq_u32 vcc, %d, v2' % (i & 1))
    a('s_mov_b64 %s, vcc' % sp(sMK))
    a('v_cmp_ge_u32 vcc, v4, v6')
    a('s_and_b64 %s, vcc, %s' % (sp(sM1 + 2 * i), sp(sMK)))
    a('v_cmp_le_u32 vcc, v4, v%d' % V_TOK)
    a('s_and_b64 %s, vcc, %s' % (sp(sM2 + 2 * i), sp(sMK)))
a('s_lshl_b32 s%d, s%d, 3' % (sA, sS))
a('s_lshl_b32 s%d, s%d, 1' % (sB, sW))
a('s_add_u32 s%d, s%d, s%d' % (sGT, sA, sB))
a('s_cmp_eq_u32 s%d, 0' % sGT)
for i in range(4):
    a('s_cselect_b64 %s, 0, %s' % (sp(sM0 + 2 * i), sp(sM1 + 2 * i)))
a('s_mov_b32 s%d, 0' % sPAIR)

def a_flag_addr(dst):
    pair_base(sA, L.FX)
    a('s_lshl_b32 s%d, s%d, 7' % (sB, sGT))
    a('s_add_u32 s%d, s%d, s%d' % (sA, sA, sB))
    a('s_sub_u32 s%d, s%d, 128' % (sA, sA))
    a('v_and_b32 v%d, 48, v0' % dst)
    a('v_add_u32 v%d, v%d, v0' % (dst, dst))
    a('v_lshl_add_u32 v%d, v%d, 2, s%d' % (dst, dst, sA))
    a('s_mov_b32 s%d, 0x3fff3fff' % sMK)
    a('s_mov_b32 s%d, 0x3fff' % (sMK + 1))
    a('s_cmp_eq_u32 s%d, 0' % sGT)
    a('s_cselect_b32 s%d, 0x3fff0000, s%d' % (sMK, sMK))


a('s_lshl_b32 s%d, s%d, 8' % (sA, sC))
a('s_add_u32 s%d, s%d, %d' % (sA, sA, L.FQ))
a('v_lshl_add_u32 v2, v0, 2, s%d' % sA)
a_flag_addr(3)
a('s_lshl_b32 s%d, s%d, 6' % (sA, sS))
a('s_add_u32 s%d, s%d, %d' % (sA, sA, L.FXC - 48 * 4))
a('v_lshl_add_u32 v4, v0, 2, s%d' % sA)
a('v_cmp_lt_u32 vcc, 47, v0')
a('v_cndmask_b32 v3, v3, v4, vcc')
a('v_mov_b32 v5, -1')
a('v_mov_b32 v6, -16')
a('v_cndmask_b32 v5, v5, v6, vcc')
a('s_or_b32 s%d, s%d, 0xffff0000' % (sMK + 1, sMK + 1))
a('s_mov_b32 s%d, 0' % sSPIN)
a.label('L_poll0')
a('buffer_load_dword v7, v2, %s, 0 offen sc1' % srd(S_WS))
a('s_mov_b64 exec, %s' % sp(sMK))
a('buffer_load_dword v8, v3, %s, 0 offen sc1' % srd(S_WS))
a('s_waitcnt vmcnt(0)')
a('v_and_b32 v9, v5, v8')
a('v_cmp_ne_u32 vcc, s%d, v9' % sT)
a('s_mov_b64 exec, -1')
a('s_mov_b64 %s, vcc' % sp(sTS))
a('v_cmp_ne_u32 vcc, s%d, v7' % sT)
a('s_or_b64 vcc, vcc, %s' % sp(sTS))
a('s_cbranch_vccz L_poll0_done')
a('s_add_u32 s%d, s%d, 1' % (sSPIN, sSPIN))
a('s_cmp_lt_u32 s%d, %d' % (sSPIN, SPIN_LIMIT))
a('s_cbranch_scc1 L_poll0')
a('s_add_u32 s%d, s%d, 1' % (sERR, sERR))
a.label('L_poll0_done')
a('s_mov_b64 exec, 3')
a('buffer_store_dword v%d, v22, %s, 0 offen sc1' % (V_T, srd(S_WS)))
a('s_mov_b64 exec, -1')
skew_store(2)
a('v_and_b32 v9, 15, v8')
a('v_cmp_ne_u32 vcc, s%d, v9' % sXCC)
a('s_and_b32 s%d, vcc_hi, 0xffff0000' % sA)
a('s_cmp_eq_u32 s%d, 0' % sA)
a('s_cselect_b32 s%d, 1, 0' % sFAST)
stamp()
AQ, AK, AV, HACC = 2, 18, 34, 50
WBUF = [66, 90]
XR = 114
CSACC = 186
STR = 210
SM, SR = 234, 237
NR, LOOK = 6, 4
A_ONES = 240


def a_xload(u):
    slot = u % NR
    return ['buffer_load_dwordx4 %s, v1, %s, s%d offen offset:%d sc1' %
            (vr(XR + (slot * 2 + t) * 4), srd(S_WS), sO + 4 * (t + 1) + (u >> 2), 1024 * (u & 3)) for t in range(2)]


def a_offsets():
    pair_base(sA, L.XA)
    a('s_mul_i32 s%d, s%d, 14336' % (sB, sGT))
    a('s_add_u32 s%d, s%d, s%d' % (sO + 4, sA, sB))
    a('s_add_u32 s%d, s%d, 14336' % (sO + 8, sO + 4))
    for t in range(1, 3):
        for q in range(1, 4):
            a('s_add_u32 s%d, s%d, %d' % (sO + 4 * t + q, sO + 4 * t, 4096 * q))
    a('s_lshl_b32 s%d, s%d, 3' % (sB, sS))
    a('s_max_u32 s%d, s%d, 1' % (sB, sB))
    a('s_sub_u32 s%d, s%d, 1' % (sB, sB))
    a('s_mul_i32 s%d, s%d, 14336' % (sB, sB))
    a('s_add_u32 s%d, s%d, s%d' % (sO + 0, sA, sB))
    a('s_lshl_b32 s%d, s%d, 12' % (sB, sW))
    a('s_add_u32 s%d, s%d, s%d' % (sO + 0, sO + 0, sB))
    a('s_add_u32 s%d, s%d, %d' % (sO + 1, sB, L.L_R2))


def a_setup():
    if FASTMODE == 'flags':
        a('s_mov_b32 s%d, 0' % sFD)
        a('s_mov_b32 s%d, 0' % sFH)
    elif FASTMODE == 'p0':
        a('s_xor_b32 s%d, s%d, 1' % (sFD, sPAIR))
        a('s_and_b32 s%d, s%d, s%d' % (sFD, sFD, sFAST))
        a('s_mov_b32 s%d, s%d' % (sFH, sFD))
    elif FASTMODE == 'small':
        a('s_mov_b32 s%d, s%d' % (sFD, sFAST))
        a('s_mov_b32 s%d, 0' % sFH)
    elif FASTMODE == 'smallp0':
        a('s_mov_b32 s%d, s%d' % (sFD, sFAST))
        a('s_xor_b32 s%d, s%d, 1' % (sFH, sPAIR))
        a('s_and_b32 s%d, s%d, s%d' % (sFH, sFH, sFAST))
    else:
        a('s_mov_b32 s%d, s%d' % (sFD, sFAST))
        a('s_mov_b32 s%d, s%d' % (sFH, sFAST))
    pair_base(sA, L.SA)
    a('s_mul_i32 s%d, s%d, 1792' % (sB, sGT))
    a('s_add_u32 s%d, s%d, s%d' % (sO + 13, sA, sB))
    a('s_add_u32 s%d, s%d, 1792' % (sO + 14, sO + 13))
    a('s_sub_u32 s%d, s%d, 1792' % (sO + 12, sO + 13))
    a('s_cmp_eq_u32 s%d, 0' % sGT)
    a('s_cselect_b32 s%d, s%d, s%d' % (sO + 12, sO + 13, sO + 12))
    a('v_and_b32 v%d, 15, v0' % V_TOK)
    a('v_lshrrev_b32 v%d, 4, v0' % V_G)
    a('v_lshlrev_b32 v240, 3, v%d' % V_TOK)
    a('v_lshl_add_u32 v240, v%d, 7, v240' % V_G)
    a('v_mov_b32 v242, 0x%x' % INV)
    a('v_cmp_lt_u32 vcc, 1, v%d' % V_G)
    a('v_cndmask_b32 v241, 0, v242, vcc')
    a('v_or_b32 v241, v241, v240')
    a('v_add_u32 v243, %d, v1' % (56 * 1024))
    a('v_lshlrev_b32 v244, 4, v%d' % V_G)
    a('v_add_u32 v244, %d, v244' % L.L_CSA)
    a('v_lshlrev_b32 v245, 2, v%d' % V_TOK)
    a('v_add_u32 v245, %d, v245' % L.L_CSA)
    a('s_lshl_b32 s%d, s%d, 7' % (sA, sJ))
    a('s_add_u32 s%d, s%d, %d' % (sA, sA, L.FP))
    a('v_lshl_add_u32 v248, v0, 2, s%d' % sA)
    a('s_lshr_b32 s%d, s%d, 1' % (sB, sW))
    a('s_lshl_b32 s%d, s%d, 2' % (sCc, sG))
    a('s_add_u32 s%d, s%d, s%d' % (sB, sB, sCc))
    a('s_lshl_b32 s%d, s%d, 5' % (sB, sB))
    a('s_and_b32 s%d, s%d, 1' % (sA, sW))
    a('s_add_u32 s%d, s%d, s%d' % (sB, sB, sA))
    a('s_min_u32 s%d, s%d, 6' % (sA, sJ))
    a('s_lshl_b32 s%d, s%d, 1' % (sA, sA))
    a('s_add_u32 s%d, s%d, s%d' % (sB, sB, sA))
    a('s_lshl_b32 s%d, s%d, 2' % (sB, sB))
    a('s_add_u32 s%d, s%d, %d' % (sB, sB, L.FX[0] - 32 * 256))
    a('v_lshl_add_u32 v249, v0, 8, s%d' % sB)
    a('v_cmp_lt_u32 vcc, 31, v0')
    a('v_cndmask_b32 v248, v248, v249, vcc')
    a('s_lshr_b32 s%d, s%d, 3' % (sA, sC))
    a('s_mul_i32 s%d, s%d, 7' % (sA, sA))
    a('s_min_u32 s%d, s%d, 6' % (sB, sJ))
    a('s_add_u32 s%d, s%d, s%d' % (sA, sA, sB))
    a('s_mul_i32 s%d, s%d, 112' % (sA, sA))
    a('s_add_u32 s%d, s%d, %d' % (sA, sA, L.FW1 - 34 * 4))
    a('v_lshl_add_u32 v249, v0, 2, s%d' % sA)
    a('v_cmp_lt_u32 vcc, 33, v0')
    a('v_cndmask_b32 v248, v248, v249, vcc')
    a('s_lshl_b32 s%d, s%d, 7' % (sA, sS))
    a('s_add_u32 s%d, s%d, %d' % (sA, sA, L.FH))
    a('v_and_b32 v247, 15, v0')
    a('v_lshl_add_u32 v247, v247, 2, s%d' % sA)
    a('s_lshl_b32 s%d, s%d, 7' % (sB, sGT))
    a('s_add_u32 s%d, s%d, %d' % (sB, sB, L.FX[1] - 128))
    a('v_lshl_add_u32 v253, v0, 2, s%d' % sB)
    a('s_cmp_eq_u32 s%d, 0' % sW)
    a('s_cselect_b32 s%d, 0, 16' % sA)
    a('v_cmp_gt_u32 vcc, s%d, v0' % sA)
    a('v_cndmask_b32 v247, v247, v253, vcc')
    a('s_mov_b32 s%d, 0x3fff3fff' % sMK2)
    a('s_mov_b32 s%d, 0' % (sMK2 + 1))
    a('s_cmp_eq_u32 s%d, 0' % sS)
    a('s_cselect_b32 s%d, 0x3fff, s%d' % (sMK2, sMK2))
    a('v_and_b32 v253, 15, v0')
    a('v_lshlrev_b32 v253, 2, v253')
    a('v_add_u32 v253, %d, v253' % L.FX[1])
    a('s_cmp_eq_u32 s%d, 0' % sGT)
    a('s_cselect_b64 vcc, -1, 0')
    a('v_cndmask_b32 v247, v247, v253, vcc')


stat_loads = ['buffer_load_dwordx2 %s, v%d, %s, s%d offen offset:%d sc1' %
              (vr(STR + (t * 4 + i) * 2, 2), 241 if i == 3 else 240, srd(S_WS), sO + 12 + t, 512 * i)
              for t in range(3) for i in range(4)]


def a_wread(u):
    b = WBUF[u & 1]
    o = []
    for p in range(6):
        if p < 4:
            o.append('ds_read_b128 %s, v1 offset:%d' % (vr(b + 4 * p), L.L_WA + (p * 14 + u) * 1024))
        else:
            o.append('ds_read_b128 %s, v243 offset:%d' % (vr(b + 4 * p), L.L_WA + ((p - 4) * 14 + u) * 1024))
    return o


stat_fill = []
for t in range(3):
    r = STR + 8 * t
    for c_ in range(2):
        stat_fill += ['v_add_f32 v%d, v%d, v%d' % (r + c_, r + c_, r + 2 + c_),
                      'v_add_f32 v%d, v%d, v%d' % (r + 4 + c_, r + 4 + c_, r + 6 + c_),
                      'v_add_f32 v%d, v%d, v%d' % (r + c_, r + c_, r + 4 + c_)]
    stat_fill += xg_reduce(r, r + 2) + xg_reduce(r + 1, r + 3)
    stat_fill += stats_finish(r, r + 1, r + 2, False)
    stat_fill += ['v_mov_b32 v%d, v%d' % (SM + t, r), 'v_mov_b32 v%d, v%d' % (SR + t, r + 1)]

sWA = [20, 21, 22]
sWAG = 23


def wa_dma(pr, i):
    def f():
        a('s_add_u32 m0, s%d, %d' % (sWA[i], L.L_WA + 2048 * pr))
        a('s_add_u32 s%d, s%d, s%d' % (sD, sWA[i], sWAG))
        if pr:
            a('s_add_u32 s%d, s%d, %d' % (sD, sD, 2048 * pr))
        a('buffer_load_dwordx4 v1, %s, s%d offen sc1 lds' % (srd(S_WS), sD))
    return f


amark = {}


def emit_a_loop(first, xmark, wam):
    ep_mark = es_mark = st_mark = None
    for t in a_wread(0):
        a(t)
    for u in range(14):
        need = xmark[u]
        if u == 11:
            need = max(need, st_mark)
        a.wait_vm(need)
        if not first and u == 6:
            early_check(246, 247, es_mark)
            a('s_nop 0')
        if u == 11:
            a('s_mov_b32 s%d, -1' % sMK2)
            a('s_mov_b32 s%d, 0x3fffffff' % (sMK2 + 1))
        a('s_waitcnt lgkmcnt(0)')
        wb = WBUF[u & 1]
        xs = XR + (u % NR) * 8
        mf = []
        cz = (lambda r: '0') if u == 0 else (lambda r: vr(r))
        for t in range(2):
            for hf in range(2):
                r = AQ + (t * 2 + hf) * 4
                mf.append('%s %s, %s, %s, %s' % (MFMA, vr(r), vr(wb + 4 * hf), vr(xs + 4 * t), cz(r)))
        for t in range(2):
            for hf in range(2):
                r = AK + (t * 2 + hf) * 4
                mf.append('%s %s, %s, %s, %s' % (MFMA, vr(r), vr(wb + 8 + 4 * hf), vr(xs + 4 * t), cz(r)))
        for t in range(2):
            for hf in range(2):
                r = AV + (t * 2 + hf) * 4
                mf.append('%s %s, %s, %s, %s' % (MFMA, vr(r), vr(xs + 4 * t), vr(wb + 16 + 4 * hf), cz(r)))
        if first:
            mf.append('%s %s, %s, %s, %s' % (MFMA, vr(CSACC + 8), vr(CSACC), ar(A_ONES), cz(CSACC + 8)))
            mf.append('%s %s, %s, %s, %s' % (MFMA, vr(CSACC + 12), ar(A_ONES), vr(CSACC + 4), cz(CSACC + 12)))
        mem = {}

        def put(k, x):
            mem.setdefault(k, []).append(x)
        nm = len(mf)
        off = 0
        if first:
            a('ds_read_b128 %s, v252 offset:%d' % (vr(CSACC), 1024 * u))
            a('ds_read_b128 %s, v242 offset:%d' % (vr(CSACC + 4), 1024 * u))
            put(11, 's_waitcnt lgkmcnt(%d)' % (6 if u < 13 else 0))
        if first and u % 2 == 1 and u < 13:
            put(2, ('bar', (u + 1) // 2))
            off = 3
        if u < 13:
            for k, x in enumerate(a_wread(u + 1)):
                put(off + k, x)
        elif not first:
            for p in range(4):
                put(p, 'ds_read_b128 %s, v244 offset:%d' % (vr(WBUF[0] + 4 * p), 64 * p))
            for d in range(2):
                put(4 + d, 'ds_read_b32 v%d, v245 offset:%d' % (WBUF[0] + 16 + d, 64 * (4 + d)))
        if first and u < 2:
            for j_, uu in enumerate((2 * u + 2, 2 * u + 3)):
                for k, x in zip((6, 8), a_xload(uu)):
                    put(k + 4 * j_, x)
                put(8 + 4 * j_, ('xm', uu))
            if u == 0:
                for i, k in enumerate((7, 9, 11)):
                    put(k, ('wa', 2, i))
        elif u + LOOK < 14:
            for k, x in zip((6, 9), a_xload(u + LOOK)):
                put(k, x)
            put(9, ('xm', u + LOOK))
        if first and u % 2 == 0 and u // 2 + 3 <= 6:
            for i, k in enumerate((12, 13, 13) if u == 0 else (7, 10, 12)):
                put(k, ('wa', u // 2 + 3, i))
        order = list(range(4, 12)) + list(range(0, 4))
        if 2 <= u < 6:
            for k, x in zip((8, 11), order[2 * (u - 2):2 * (u - 2) + 2]):
                put(k, stat_loads[x])
        if not first and u == 3:
            put(7, ('estat',))
        if u in (7, 8):
            for k, x in zip((8, 11), order[8 + 2 * (u - 7):8 + 2 * (u - 7) + 2]):
                put(k, stat_loads[x])
            if u == 8:
                put(11, ('st',))
        if u == 6:
            put(10, 's_mov_b32 m0, s%d' % (sO + 1))
            for i, k in enumerate((10, 10, 11, 11)):
                put(k, 'buffer_load_dwordx4 v1, %s, s%d offen offset:%d sc1 lds' % (srd(S_WS), sO + 0, 1024 * i))
            put(11, ('hm',))
        if u == 13:
            put(8, ('early',))
        fill = stat_fill[(u - 11) * 22:(u - 10) * 22] if u >= 11 else []
        fi = 0
        for k, m in enumerate(mf):
            a(m)
            for it in mem.get(k, []):
                if isinstance(it, str):
                    a(it)
                elif it[0] == 'early':
                    ep_mark = early_issue(249, 248)
                elif it[0] == 'estat':
                    es_mark = early_issue(246, 247)
                elif it[0] == 'xm':
                    xmark[it[1]] = a.vm_mark()
                elif it[0] == 'st':
                    st_mark = a.vm_mark()
                elif it[0] == 'hm':
                    amark['halo'] = a.vm_mark()
                elif it[0] == 'bar':
                    a.wait_vm(wam[it[1]])
                    a('s_barrier')
                elif it[0] == 'wa':
                    wa_dma(it[1], it[2])()
                    wam[it[1]] = a.vm_mark()
            for _ in range(2):
                if fi < len(fill) and k >= 1:
                    a(fill[fi])
                    fi += 1
        assert fi == len(fill), (u, fi, len(fill))
    amark['ep'] = ep_mark


for p in range(4):
    a('v_mov_b32 v4, 0x3f803f80')
    a('v_accvgpr_write_b32 a%d, v4' % (A_ONES + p))
a('s_mul_i32 s%d, s%d, 14336' % (sWA[0], sW))
a('s_add_u32 s%d, s%d, 4' % (sA, sW))
a('s_mul_i32 s%d, s%d, 14336' % (sA, sA))
a('s_sub_u32 s%d, s%d, 2' % (sB, sW))
a('s_mul_i32 s%d, s%d, 14336' % (sB, sB))
a('s_add_u32 s%d, s%d, 1024' % (sB, sB))
a('s_cmp_lt_u32 s%d, 2' % sW)
a('s_cselect_b32 s%d, s%d, s%d' % (sWA[1], sA, sB))
a('s_add_u32 s%d, s%d, 2' % (sA, sW))
a('s_mul_i32 s%d, s%d, 14336' % (sA, sA))
a('s_add_u32 s%d, s%d, 1024' % (sWA[2], sA))
a('s_mul_i32 s%d, s%d, %d' % (sWAG, sC, 84 * 1024))
a('s_add_u32 s%d, s%d, %d' % (sWAG, sWAG, L.WA))
a_offsets()
xm0, wam0 = {}, {}


def wa_pair(pr):
    for i in range(3):
        wa_dma(pr, i)()
    wam0[pr] = a.vm_mark()


wa_pair(0)
for u in range(2):
    for t in a_xload(u):
        a(t)
    xm0[u] = a.vm_mark()
wa_pair(1)
a_setup()
a('s_mul_i32 s%d, s%d, 14336' % (sA, sW))
a('v_add_u32 v252, s%d, v1' % sA)
a('s_and_b32 s%d, s%d, 1' % (sA, sW))
a('s_mul_i32 s%d, s%d, 14336' % (sA, sA))
a('v_add_u32 v242, s%d, v243' % sA)
a.wait_vm(wam0[0])
a('s_barrier')
a('s_lshl_b32 s%d, s%d, 5' % (sA, sJ))
a('s_add_u32 s%d, s%d, s%d' % (sA, sA, sG))
a('s_lshl_b32 s%d, s%d, 2' % (sA, sA))
a('s_add_u32 s%d, s%d, %d' % (sA, sA, L.FP))
a('s_cmp_eq_u32 s%d, 0' % sW)
a('s_cselect_b32 s%d, s%d, 0x%x' % (sA, sA, INV))
a('v_mov_b32 v2, s%d' % sA)
a('s_mov_b64 exec, 1')
a('buffer_store_dword v%d, v2, %s, 0 offen sc1' % (V_T, srd(S_WS)))
a.vm_issued -= 1
a('s_mov_b64 exec, -1')
stamp()
emit_a_loop(True, xm0, wam0)
n_join = a.vm_issued - amark['ep']
CSQ = WBUF[0]
a('v_cmp_eq_u32 vcc, 0, v%d' % V_TOK)
a('s_lshl_b32 s%d, s%d, 6' % (sA, sW))
a('v_add_u32 v252, s%d, v244' % sA)
a('s_and_b32 s%d, s%d, 1' % (sA, sW))
a('s_lshl_b32 s%d, s%d, 6' % (sA, sA))
a('v_add_u32 v242, s%d, v245' % sA)
a('s_mov_b64 exec, vcc')
a('ds_write_b128 v252, %s' % vr(CSACC + 8))
a('s_mov_b64 exec, 0xffff')
a('ds_write_b32 v242, v%d offset:256' % (CSACC + 12))
a('s_mov_b64 exec, -1')
a('s_waitcnt lgkmcnt(0)')
a('s_barrier')
for p in range(4):
    a('ds_read_b128 %s, v244 offset:%d' % (vr(WBUF[0] + 4 * p), 64 * p))
for d in range(2):
    a('ds_read_b32 v%d, v245 offset:%d' % (WBUF[0] + 16 + d, 64 * (4 + d)))
a('s_branch L_a_epi')

a.label('L_pair')
a_flag_addr(2)
a('s_mov_b32 s%d, 0x3fff0000' % sMK)
ASLEEP = int(([x[9:] for x in sys.argv if x.startswith('--asleep=')] + ['0'])[0])
poll(2, None, ASLEEP)
stamp()
a_offsets()
xmark = {}
for u in range(LOOK):
    for t in a_xload(u):
        a(t)
    xmark[u] = a.vm_mark()
a_setup()
emit_a_loop(False, xmark, None)
assert a.vm_issued - amark['ep'] == n_join
ep_mark = amark['ep']
a.label('L_a_epi')
stamp()
a('s_add_u32 s%d, s%d, 2' % (sA, sW))
a('s_mul_i32 s%d, s%d, 14336' % (sA, sA))
a('v_add_u32 v246, s%d, v1' % sA)
a('v_add_u32 v247, %d, v1' % L.L_R2)
a('s_cmp_lt_u32 s%d, 2' % sW)
a('s_cselect_b64 vcc, -1, 0')
a('v_cndmask_b32 v252, v247, v246, vcc')
a('v_cndmask_b32 v253, v246, v247, vcc')
a.wait_vm(amark['halo'])
a('s_barrier')
HOP = 90
def h_reads(u):
    r = HOP + 8 * (u % 3)
    return ['ds_read_b128 %s, v252 offset:%d' % (vr(r), 1024 * u), 'ds_read_b128 %s, v253 offset:%d' % (vr(r + 4), 1024 * u)]
for u in range(2):
    for x in h_reads(u):
        a(x)
rest = stat_fill[66:]
for u in range(14):
    if u + 2 < 14:
        for x in h_reads(u + 2):
            a(x)
    a('s_waitcnt lgkmcnt(%d)' % (4 if u < 12 else (2 if u == 12 else 0)))
    r = HOP + 8 * (u % 3)
    a('%s %s, %s, %s, %s' % (MFMA, vr(HACC), vr(r), vr(r + 4), '0' if u == 0 else vr(HACC)))
    if rest:
        a(rest.pop(0))
for x in rest:
    a(x)
stamp2()
early_check(249, 248, ep_mark)
BW = 2
a('s_lshl_b32 s%d, s%d, 6' % (sA, sJ))
a('s_lshl_b32 s%d, s%d, 2' % (sB, sW))
a('s_add_u32 s%d, s%d, s%d' % (sA, sA, sB))
a('s_lshl_b32 s%d, s%d, 10' % (sA, sA))
a('s_add_u32 s20, s%d, %d' % (sA, L.WB))
for t in range(1, 4):
    a('s_add_u32 s%d, s20, %d' % (20 + t, 16 * 1024 * t))
wb_all = ['buffer_load_dwordx4 %s, v1, %s, s%d offen offset:%d sc1' % (vr(BW + (i * 4 + t) * 4), srd(S_WS), 20 + t, 1024 * i)
          for i in range(4) for t in range(4)]
for x in wb_all[13:16]:
    a(x)
wb_loads = wb_all[8:13]
A_RES, A_B2 = 224, 232


def red_addrs():
    a('s_lshl_b32 s%d, s%d, 13' % (sA, sW))
    a('s_add_u32 s%d, s%d, %d' % (sA, sA, L.L_R2))
    a('v_add_u32 v248, s%d, v1' % sA)
    a('s_and_b32 s%d, s%d, 1' % (sA, sW))
    a('s_lshl_b32 s%d, s%d, 11' % (sA, sA))
    a('s_lshr_b32 s%d, s%d, 1' % (sB, sW))
    a('s_lshl_b32 s%d, s%d, 12' % (sB, sB))
    a('s_add_u32 s%d, s%d, s%d' % (sA, sA, sB))
    a('s_add_u32 s%d, s%d, %d' % (sA, sA, L.L_R2))
    a('v_add_u32 v249, s%d, v1' % sA)


def publish_setup(xbase, sbase, fbase, per_pair, fsh):
    owner_index()
    a('s_mul_i32 s%d, s%d, 14' % (sCc, sB))
    a('s_add_u32 s%d, s%d, s%d' % (sCc, sCc, sA))
    a('s_lshl_b32 s%d, s%d, 10' % (sPX, sCc))
    a('s_lshl_b32 s%d, s%d, 7' % (sPS, sCc))
    a('s_lshl_b32 s%d, s%d, %d' % (sPF, sB, fsh))
    a('s_add_u32 s%d, s%d, s%d' % (sPF, sPF, sA))
    a('s_lshl_b32 s%d, s%d, 2' % (sPF, sPF))
    for dst, arr in ((sPX, xbase), (sPS, sbase), (sPF, fbase)):
        if per_pair:
            pair_base(sD, arr)
            a('s_add_u32 s%d, s%d, s%d' % (dst, dst, sD))
        else:
            a('s_add_u32 s%d, s%d, %d' % (dst, dst, arr))
    a('s_add_u32 s%d, s%d, %d' % (sPX2, sPX, 2 * 14336))


def owner_index():
    a('s_lshr_b32 s%d, s%d, 1' % (sB, sW))
    a('s_lshl_b32 s%d, s%d, 2' % (sCc, sG))
    a('s_add_u32 s%d, s%d, s%d' % (sB, sB, sCc))
    a('s_and_b32 s%d, s%d, 1' % (sA, sW))
    a('s_lshl_b32 s%d, s%d, 1' % (sCc, sJ))
    a('s_add_u32 s%d, s%d, s%d' % (sA, sA, sCc))


a('s_cmp_eq_u32 s%d, 0' % sPAIR)
a('s_cbranch_scc0 L_a_nores')
owner_index()
a('s_mul_i32 s%d, s%d, 14' % (sB, sB))
a('s_add_u32 s%d, s%d, s%d' % (sB, sB, sA))
a('s_lshl_b32 s%d, s%d, 10' % (sB, sB))
a('s_add_u32 s%d, s%d, %d' % (sB, sB, L.XA[0]))
a('buffer_load_dwordx4 %s, v1, %s, s%d offen sc1' % (ar(A_RES), srd(S_WS), sB))
a('s_add_u32 s%d, s%d, %d' % (sB, sB, 2 * 14336))
a('buffer_load_dwordx4 %s, v1, %s, s%d offen sc1' % (ar(A_RES + 4), srd(S_WS), sB))
build_srd(S_TMP, P_B2, 896)
a('s_lshl_b32 s%d, s%d, 6' % (sB, sA))
a('v_lshlrev_b32 v240, 3, v%d' % V_G)
a('buffer_load_dwordx2 v[228:229], v240, %s, s%d offen' % (srd(S_TMP), sB))
a('buffer_load_dwordx2 v[230:231], v240, %s, s%d offen offset:32' % (srd(S_TMP), sB))
a.label('L_a_nores')
CSQ = WBUF[0]
a('s_mul_i32 s%d, s%d, 384' % (sA, sW))
a('s_add_u32 s%d, s%d, %d' % (sA, sA, L.L_STA))
a('v_lshl_add_u32 v246, v%d, 2, s%d' % (V_TOK, sA))
a('v_lshl_add_u32 v247, v%d, 4, s%d' % (V_G, sA))
a('s_mov_b64 exec, 0xffff')
for t in range(3):
    a('ds_write_b32 v246, v%d offset:%d' % (SM + t, 128 * t))
    a('ds_write_b32 v246, v%d offset:%d' % (SR + t, 128 * t + 64))
a('s_mov_b64 exec, -1')
MROW, RROW = 114, 126
a('s_waitcnt lgkmcnt(0)')
for t in range(3):
    a('ds_read_b128 %s, v247 offset:%d' % (vr(MROW + 4 * t), 128 * t))
    a('ds_read_b128 %s, v247 offset:%d' % (vr(RROW + 4 * t), 128 * t + 64))
QF, KF, VF = 140, 148, 160


def pk(op, dst, srcs, neg=None):
    ops, lo, hi = [], [], []
    for x in srcs:
        if isinstance(x, tuple):
            ops.append(vr(x[1] & ~1, 2))
            lo.append(x[1] & 1)
            hi.append(x[1] & 1)
        else:
            ops.append(vr(x, 2))
            lo.append(0)
            hi.append(1)
    t = '%s %s, %s op_sel:[%s] op_sel_hi:[%s]' % (op, vr(dst, 2), ', '.join(ops), ','.join(map(str, lo)), ','.join(map(str, hi)))
    if neg is not None:
        m = ','.join('1' if k == neg else '0' for k in range(len(srcs)))
        t += ' neg_lo:[%s] neg_hi:[%s]' % (m, m)
    return t


for t in range(2):
    for hf in range(2):
        r = AQ + (t * 2 + hf) * 4
        for i in (0, 2):
            a(pk('v_pk_fma_f32', r + i, [('b', SM + t + 1), CSQ + 4 * hf + i, r + i], 0))
        for p in range(2):
            a('v_cvt_pk_bf16_f32 v%d, v%d, v%d' % (QF + 4 * t + 2 * hf + p, r + 2 * p, r + 2 * p + 1))
        a(wb_all[2 * t + hf])
for t in range(2):
    for hf in range(2):
        r = AK + (t * 2 + hf) * 4
        for i in (0, 2):
            a(pk('v_pk_fma_f32', r + i, [('b', SM + t + 1), CSQ + 8 + 4 * hf + i, r + i], 0))
        for p in range(2):
            a('v_cvt_pk_bf16_f32 v%d, v%d, v%d' % (KF + 4 * (t + 1) + 2 * hf + p, r + 2 * p, r + 2 * p + 1))
        a(wb_all[4 + 2 * t + hf])
L_E, L_HX = L.L_R2 + 16384, L.L_R2 + 26624
a('s_lshl_b32 s%d, s%d, 11' % (sA, sW))
a('s_add_u32 s%d, s%d, %d' % (sA, sA, L_E))
a('v_add_u32 v246, s%d, v1' % sA)
a('s_lshl_b32 s%d, s%d, 10' % (sA, sW))
a('s_add_u32 s%d, s%d, %d' % (sA, sA, L_HX))
a('v_add_u32 v247, s%d, v1' % sA)
a('s_waitcnt lgkmcnt(0)')
for t in range(2):
    for d in range(2):
        r = AV + (t * 2 + d) * 4
        for i in (0, 2):
            a(pk('v_pk_fma_f32', r + i, [MROW + 4 * (t + 1) + i, ('b', CSQ + 16 + d), r + i], 0))
        for p in range(2):
            a('v_cvt_pk_bf16_f32 v%d, v%d, v%d' % (VF + 6 * d + 2 * (t + 1) + p, r + 2 * p, r + 2 * p + 1))
a('ds_write_b128 v246, %s offset:2048' % vr(KF + 8))
a('ds_write_b64 v246, %s offset:3072' % vr(VF + 4, 2))
a('ds_write_b64 v246, %s offset:3080' % vr(VF + 10, 2))
a('ds_write_b128 v247, %s' % vr(HACC))
pair_base(sA, L.O)
a('s_lshl_b32 s%d, s%d, 4' % (sB, sGT))
a('s_add_u32 s%d, s%d, s%d' % (sB, sB, sC))
a('s_lshl_b32 s%d, s%d, 10' % (sB, sB))
a('s_add_u32 s32, s%d, s%d' % (sA, sB))
a('s_add_u32 s33, s32, 16384')
stamp2()
a('s_waitcnt lgkmcnt(0)')
a('s_barrier')
stamp2()
SS = 172
a('s_cmp_eq_u32 s%d, 0' % sW)
a('s_cbranch_scc1 L_a_halo')
a('ds_read_b128 %s, v246' % vr(KF))
a('ds_read_b64 %s, v246 offset:1024' % vr(VF, 2))
a('ds_read_b64 %s, v246 offset:1032' % vr(VF + 6, 2))
a('s_waitcnt lgkmcnt(0)')
a('s_branch L_a_prev')
a.label('L_a_halo')
a('v_add_u32 v247, %d, v1' % L_HX)
for p in range(4):
    a('ds_read_b128 %s, v247 offset:%d' % (vr(SS + 4 * p), 1024 * p))
a('s_waitcnt lgkmcnt(0)')
for hf in range(2):
    r = SS + 4 * hf
    for i in (0, 2):
        a(pk('v_pk_fma_f32', r + i, [('b', SM), CSQ + 8 + 4 * hf + i, r + i], 0))
    for p in range(2):
        a('v_cvt_pk_bf16_f32 v%d, v%d, v%d' % (KF + 2 * hf + p, r + 2 * p, r + 2 * p + 1))
for d in range(2):
    r = SS + 8 + 4 * d
    for i in (0, 2):
        a(pk('v_pk_fma_f32', r + i, [MROW + i, ('b', CSQ + 16 + d), r + i], 0))
    for p in range(2):
        a('v_cvt_pk_bf16_f32 v%d, v%d, v%d' % (VF + 6 * d + p, r + 2 * p, r + 2 * p + 1))
a.label('L_a_prev')
a('s_nop 1')
for t in range(2):
    a('%s %s, %s, %s, 0' % (MFMA, vr(SS + 8 * t), vr(KF + 4 * t), vr(QF + 4 * t)))
    a('%s %s, %s, %s, 0' % (MFMA, vr(SS + 8 * t + 4), vr(KF + 4 * t + 4), vr(QF + 4 * t)))
SCALE = (28.0 ** -0.5) * 1.4426950408889634
MX, CC, LS, TMPR = 190, 192, 194, 196
PF = 200
SUMT = [(224, 226), (232, 188)]
a('v_mov_b32 v198, 0xff800000')
seq = [[], []]
for t in range(2):
    s_ = SS + 8 * t
    q = seq[t]
    rr = lambda e: RROW + 4 * (t + (e >> 2)) + (e & 3)
    for e in range(0, 8, 2):
        q.append(pk('v_pk_mul_f32', s_ + e, [s_ + e, rr(e)]))
    for e in range(8):
        mk = (sM0 if t == 0 else sM1) + 2 * e if e < 4 else sM2 + 2 * (e - 4)
        q.append('v_cndmask_b32 v%d, v198, v%d, %s' % (s_ + e, s_ + e, sp(mk)))
    q.append('v_max3_f32 v%d, v%d, v%d, v%d' % (MX + t, s_, s_ + 1, s_ + 2))
    q.append('v_max3_f32 v%d, v%d, v%d, v%d' % (MX + t, MX + t, s_ + 3, s_ + 4))
    q.append('v_max3_f32 v%d, v%d, v%d, v%d' % (MX + t, MX + t, s_ + 5, s_ + 6))
    q.append('v_max_f32 v%d, v%d, v%d' % (MX + t, MX + t, s_ + 7))
    q += xg_reduce(MX + t, TMPR + t, 'v_max_f32')
    q.append('v_mul_f32 v%d, %s, v%d' % (CC + t, f2h(SCALE), SR + t + 1))
    q.append('v_mul_f32 v%d, v%d, v%d' % (MX + t, MX + t, CC + t))
    for e in range(0, 8, 2):
        q.append(pk('v_pk_fma_f32', s_ + e, [s_ + e, ('b', CC + t), ('b', MX + t)], 2))
    for e in range(8):
        q.append('v_exp_f32 v%d, v%d' % (s_ + e, s_ + e))
    u_, u2 = SUMT[t]
    q.append(pk('v_pk_add_f32', u_, [s_, s_ + 2]))
    q.append(pk('v_pk_add_f32', u2, [s_ + 4, s_ + 6]))
    q.append(pk('v_pk_add_f32', u_, [u_, u2]))
    q.append('v_add_f32 v%d, v%d, v%d' % (LS + t, u_, u_ + 1))
    q += xg_reduce(LS + t, TMPR + t)
    q.append('v_rcp_f32 v%d, v%d' % (LS + t, LS + t))
    for e in range(0, 8, 2):
        q.append(pk('v_pk_mul_f32', s_ + e, [s_ + e, rr(e)]))
    for p in range(4):
        q.append('v_cvt_pk_bf16_f32 v%d, v%d, v%d' % (PF + 4 * t + p, s_ + 2 * p, s_ + 2 * p + 1))
merged = [z for xy in zip(*seq) for z in xy]
gap = len(merged) // (len(wb_loads) + 1)
for k, x in enumerate(merged):
    a(x)
    if k % gap == gap - 1 and wb_loads:
        a(wb_loads.pop(0))
assert not wb_loads
stamp2()
OO = 208
for t in range(2):
    for d in range(2):
        a('%s %s, %s, %s, 0' % (MFMA, vr(OO + 8 * t + 4 * d), vr(VF + 6 * d + 2 * t), vr(PF + 4 * t)))
for t in range(2):
    for e in range(0, 8, 2):
        a(pk('v_pk_mul_f32', OO + 8 * t + e, [OO + 8 * t + e, ('b', LS + t)]))
    for p in range(4):
        a('v_cvt_pk_bf16_f32 v%d, v%d, v%d' % (PF + 4 * t + p, OO + 8 * t + 2 * p, OO + 8 * t + 2 * p + 1))
    store('buffer_store_dwordx4 %s, v1, %s, s%d offen' % (vr(PF + 4 * t), srd(S_WS), 32 + t), sFD)
o_mark = a.vm_mark()
stamp2()
pair_base(sA, L.FA)
a('s_lshl_b32 s%d, s%d, 4' % (sB, sGT))
a('s_add_u32 s%d, s%d, s%d' % (sB, sB, sC))
a('s_lshl_b32 s%d, s%d, 2' % (sB, sB))
a('s_add_u32 s%d, s%d, s%d' % (sA, sA, sB))
a('v_lshlrev_b32 v241, 6, v0')
a('v_add_u32 v241, s%d, v241' % sA)
pair_base(sA, L.FA)
a('s_lshl_b32 s%d, s%d, 8' % (sB, sG))
a('s_add_u32 s%d, s%d, s%d' % (sA, sA, sB))
a('v_lshl_add_u32 v240, v0, 2, s%d' % sA)
a('s_lshl_b32 s%d, s%d, 2' % (sB, sW))
a('s_lshl_b32 s%d, 0x000f000f, s%d' % (sMK, sB))
a('s_mov_b32 s%d, s%d' % (sMK + 1, sMK))
red_addrs()
publish_setup(L.XB, L.SB, L.FB, True, 4)
a('s_mov_b32 s%d, s%d' % (sPC, sFD))
a('s_mov_b32 s%d, s%d' % (sPFC, sFAST))
pair_base(sA, L.O)
a('s_lshl_b32 s%d, s%d, 6' % (sB, sG))
a('s_lshl_b32 s%d, s%d, 2' % (sCc, sW))
a('s_add_u32 s%d, s%d, s%d' % (sB, sB, sCc))
a('s_lshl_b32 s%d, s%d, 10' % (sB, sB))
a('s_add_u32 s20, s%d, s%d' % (sA, sB))
for t in range(1, 4):
    a('s_add_u32 s%d, s20, %d' % (20 + t, 16384 * t))
a.wait_vm(o_mark)
a('s_mov_b64 exec, 3')
store('buffer_store_dword v%d, v241, %s, 0 offen' % (V_T, srd(S_WS)), sFAST)
a('s_mov_b64 exec, -1')
stamp()
a('s_cmp_eq_u32 s%d, 7' % sJ)
a('s_cbranch_scc1 L_next_pair')


def wd_bases():
    a('s_lshl_b32 s%d, s%d, 2' % (sA, sJ))
    a('s_mul_i32 s%d, s%d, %d' % (sA, sA, 56 * 1024))
    a('s_mul_i32 s%d, s%d, %d' % (sB, sW, 14 * 1024))
    a('s_add_u32 s%d, s%d, s%d' % (sA, sA, sB))
    a('s_add_u32 s%d, s%d, %d' % (sO, sA, L.WD))
    quarter_offsets(4, 56 * 1024)


def wd_load(fi):
    kk, t = fi >> 2, fi & 3
    return ('buffer_load_dwordx4 %s, v1, %s, s%d offen offset:%d sc1' %
            (ar(4 * fi), srd(S_WS), sO + 4 * t + (kk >> 2), 1024 * (kk & 3)))


WD_CH = [(0, 12), (12, 56)]
BO, BACC, BRD, BTMP = 66, 130, 194, 226
a('s_cmp_eq_u32 s%d, 0' % sPAIR)
a('s_cbranch_scc0 L_b_start')
for k in range(4):
    a('v_lshlrev_b32 v236, 16, v%d' % (228 + k))
    a('v_and_b32 v237, 0xffff0000, v%d' % (228 + k))
    a('v_accvgpr_write_b32 a%d, v236' % (A_B2 + 2 * k))
    a('v_accvgpr_write_b32 a%d, v237' % (A_B2 + 2 * k + 1))
wd_bases()
for fi in range(*WD_CH[0]):
    a(wd_load(fi))
a.label('L_b_start')
CWW = 66
sCI = 41
a('s_lshr_b32 s%d, s%d, 3' % (sA, sC))
a('s_mul_i32 s%d, s%d, 7' % (sA, sA))
a('s_add_u32 s%d, s%d, s%d' % (sCI, sA, sJ))
a('s_lshl_b32 s%d, s%d, 3' % (sA, sCI))
a('s_lshl_b32 s%d, s%d, 1' % (sB, sW))
a('s_add_u32 s%d, s%d, s%d' % (sA, sA, sB))
a('s_mul_i32 s%d, s%d, %d' % (sB, sA, 14 * 1024))
a('s_add_u32 s%d, s%d, %d' % (sO, sB, L.WC))
quarter_offsets(2, 14 * 1024)


def c_wload(idx):
    u, k = idx >> 1, idx & 1
    return ('buffer_load_dwordx4 %s, v1, %s, s%d offen offset:%d sc1' %
            (vr(CWW + 4 * idx), srd(S_WS), sO + 4 * k + (u >> 2), 1024 * (u & 3)))


def red_writes(acc, tile):
    return ['ds_write_b128 v248, %s offset:%d' % (vr(acc + 4 * t), (tile >> 1) * 32768 + (tile & 1) * 4096 + t * 1024)
            for t in range(4)]


def red_reads(st, rd):
    return ['ds_read_b128 %s, v249 offset:%d' % (vr(rd + (b * 2 + k) * 4), st * 32768 + b * 8192 + k * 1024)
            for b in range(4) for k in range(2)]


def add8(dst, x, y, packed):
    if packed:
        return ['v_pk_add_f32 %s, %s, %s' % (vr(dst + e, 2), vr(x + e, 2), vr(y + e, 2)) for e in range(0, 8, 2)]
    return ['v_add_f32 v%d, v%d, v%d' % (dst + e, x + e, y + e) for e in range(8)]


def finish_pre(st, is_d, tmp):
    res = A_RES + 4 * st
    o = ['v_accvgpr_read_b32 v%d, a%d' % (tmp + 8 + p, res + p) for p in range(4)]
    for p in range(4):
        o += ['v_lshlrev_b32 v%d, 16, v%d' % (tmp + 2 * p, tmp + 8 + p),
              'v_and_b32 v%d, 0xffff0000, v%d' % (tmp + 2 * p + 1, tmp + 8 + p)]
    if is_d:
        o += ['v_accvgpr_read_b32 v%d, a%d' % (tmp + 8 + e, A_B2 + e) for e in range(8)]
        o += ['v_add_f32 v%d, v%d, v%d' % (tmp + e, tmp + e, tmp + 8 + e) for e in range(8)]
    return o


def finish_sum(st, rd, tmp, pk, packed):
    o = add8(rd, rd, rd + 8, packed) + add8(rd + 16, rd + 16, rd + 24, packed) + add8(rd, rd, rd + 16, packed)
    o += add8(tmp, tmp, rd, packed)
    o += ['v_cvt_pk_bf16_f32 v%d, v%d, v%d' % (pk + p, tmp + 2 * p, tmp + 2 * p + 1) for p in range(4)]
    o += ['v_accvgpr_write_b32 a%d, v%d' % (A_RES + 4 * st + p, pk + p) for p in range(4)]
    return o


def owner_stats(tmp, s1, t):
    a('v_pk_add_f32 %s, %s, %s' % (vr(t, 2), vr(tmp, 2), vr(tmp + 2, 2)))
    a('v_pk_add_f32 %s, %s, %s' % (vr(t + 2, 2), vr(tmp + 4, 2), vr(tmp + 6, 2)))
    a('v_pk_add_f32 %s, %s, %s' % (vr(t, 2), vr(t, 2), vr(t + 2, 2)))
    a('v_add_f32 v%d, v%d, v%d' % (s1, t, t + 1))
    a('v_pk_mul_f32 %s, %s, %s' % (vr(t, 2), vr(tmp, 2), vr(tmp, 2)))
    for e in (2, 4, 6):
        a('v_pk_fma_f32 %s, %s, %s, %s' % (vr(t, 2), vr(tmp + e, 2), vr(tmp + e, 2), vr(t, 2)))
    a('v_add_f32 v%d, v%d, v%d' % (s1 + 1, t, t + 1))
    for x, y in zip(xg_reduce(s1, t), xg_reduce(s1 + 1, t + 1)):
        a(x)
        a(y)


def publish_data(st, pk):
    store('buffer_store_dwordx4 %s, v1, %s, s%d offen offset:0' % (vr(pk), srd(S_WS), sPX if st == 0 else sPX2), sPC)


def publish_stats(tmps, t, s1):
    a('v_and_b32 v%d, 15, v0' % V_TOK)
    a('v_lshlrev_b32 v%d, 3, v%d' % (t + 4, V_TOK))
    for st in range(2):
        owner_stats(tmps[st], s1 + 2 * st, t)
    a('s_mov_b64 exec, 0xffff')
    store('buffer_store_dwordx2 %s, v%d, %s, s%d offen' % (vr(s1, 2), t + 4, srd(S_WS), sPS), sPC)
    a('s_add_u32 s%d, s%d, %d' % (sPS, sPS, 2 * 1792))
    store('buffer_store_dwordx2 %s, v%d, %s, s%d offen' % (vr(s1 + 2, 2), t + 4, srd(S_WS), sPS), sPC)
    a('s_mov_b64 exec, -1')


def publish_flags(lsh, between=()):
    a('v_lshlrev_b32 v241, %d, v0' % lsh)
    a('v_add_u32 v241, s%d, v241' % sPF)
    set_flags(241, 2, sPFC, V_T, between)


def run_tiles(tile_items, extras):
    for tile in range(4):
        if tile and '--diag3' in sys.argv:
            stamp()
        items = tile_items(tile)
        ex = list(extras.get(tile, []))
        free = [k for k, it in enumerate(items) if k >= 3 and not it[2]]
        per = -(-len(ex) // max(1, len(free))) if ex else 0
        for k, (pre, m, post) in enumerate(items):
            for x in pre:
                x()
            a(m)
            if post:
                post()
            elif k >= 3:
                for _ in range(per):
                    if ex:
                        x = ex.pop(0)
                        if callable(x):
                            x()
                        else:
                            a(x)
        assert not ex


poll(240)
a('s_barrier')
stamp()


def b_oload(tile, i):
    return 'buffer_load_dwordx4 %s, v1, %s, s%d offen offset:%d sc1' % (vr(BO + (tile * 4 + i) * 4), srd(S_WS), 20 + tile, 1024 * i)


om = {}
for tile in range(2):
    for i in range(4):
        a(b_oload(tile, i))
        om[(tile, i)] = a.vm_mark()


def b_tile(tile):
    items = []
    for i in range(4):
        for t in range(4):
            r = BACC + (tile * 4 + t) * 4
            pre = [(lambda tl=tile, ii=i: a.wait_vm(om[(tl, ii)]))] if t == 0 else []
            post = None
            if tile < 2 and t == 1:
                def post(tl=tile + 2, ii=i):
                    a(b_oload(tl, ii))
                    om[(tl, ii)] = a.vm_mark()
            if tile >= 2 and t == 1:
                def post(idx=4 * (tile - 2) + i):
                    a(c_wload(idx))
            items.append((pre, '%s %s, %s, %s, %s' % (MFMA, vr(r), vr(BW + (i * 4 + t) * 4), vr(BO + (tile * 4 + i) * 4),
                                                      '0' if i == 0 else vr(r)), post))
    return items


BT0, BT1, BPK = 226, 2, 18
run_tiles(b_tile, {1: red_writes(BACC, 0), 2: red_writes(BACC + 16, 1), 3: red_writes(BACC + 32, 2)})
stamp2()
for x in red_writes(BACC + 48, 3):
    a(x)
for x in finish_pre(0, False, BT0) + finish_pre(1, False, BT1):
    a(x)
a('s_waitcnt lgkmcnt(0)')
a('s_barrier')
stamp2()
BRD1 = 162
for x in red_reads(0, BRD) + red_reads(1, BRD1):
    a(x)
a('s_waitcnt lgkmcnt(8)')
for x in finish_sum(0, BRD, BT0, BPK, True):
    a(x)
publish_data(0, BPK)
a('s_waitcnt lgkmcnt(0)')
for x in finish_sum(1, BRD1, BT1, BPK + 4, True):
    a(x)
publish_data(1, BPK + 4)
stamp2()
publish_stats([BT0, BT1], 36, 32)
b_mark = a.vm_mark()
a('v_lshlrev_b32 v236, 7, v0')
a('v_add_u32 v236, s%d, v236' % sPF)
for i in range(8, 16):
    a(c_wload(i))
CA = [2, 10]
XF, NXF = 18, 8
GTMP, GH = 50, 58
CCS, CB1, CB1R = 178, 186, 194
CSTR = 198
CMR = 214
VGA = 218
a('v_lshrrev_b32 v%d, 4, v0' % V_G)
a('v_and_b32 v%d, 15, v0' % V_TOK)
pair_base(sA, L.FB)
a('s_lshl_b32 s%d, s%d, 9' % (sB, sS))
a('s_add_u32 s%d, s%d, s%d' % (sA, sA, sB))
a('v_lshl_add_u32 v240, v0, 2, s%d' % sA)
a('s_mov_b32 s%d, 0x3fff3fff' % sMK)
a('s_mov_b32 s%d, 0x3fff3fff' % (sMK + 1))
pair_base(20, L.XB)
a('s_mul_i32 s%d, s%d, %d' % (sB, sS, 8 * 14336))
a('s_add_u32 s20, s20, s%d' % sB)
a('s_lshl_b32 s%d, s%d, 12' % (sB, sW))
a('s_add_u32 s20, s20, s%d' % sB)
a('s_add_u32 s21, s%d, %d' % (sB, L.L_R2))
pair_base(22, L.SB)
a('s_lshl_b32 s%d, s%d, 3' % (sB, sS))
a('s_add_u32 s%d, s%d, s%d' % (sB, sB, sW))
a('s_mul_i32 s%d, s%d, 1792' % (sB, sB))
a('s_add_u32 s22, s22, s%d' % sB)
a('s_add_u32 s23, s22, %d' % (4 * 1792))
pair_base(32, L.H)
a('s_mul_i32 s%d, s%d, %d' % (sB, sS, 8 * 56 * 1024))
a('s_add_u32 s32, s32, s%d' % sB)
a('s_lshl_b32 s%d, s%d, 2' % (sB, sCI))
a('s_add_u32 s%d, s%d, s%d' % (sB, sB, sW))
a('s_lshl_b32 s%d, s%d, 10' % (sCc, sB))
a('s_add_u32 s32, s32, s%d' % sCc)
pair_base(33, L.FC)
a('s_lshl_b32 s%d, s%d, 11' % (sCc, sS))
a('s_add_u32 s33, s33, s%d' % sCc)
a('s_lshl_b32 s%d, s%d, 2' % (sB, sB))
a('s_add_u32 s33, s33, s%d' % sB)
a('v_mov_b32 v241, s33')
a('v_mov_b32 v242, 0x%x' % INV)
a('v_cmp_eq_u32 vcc, 0, v0')
a('v_cndmask_b32 v241, v242, v241, vcc')
a('v_lshlrev_b32 v238, 3, v%d' % V_TOK)
a('v_lshl_add_u32 v238, v%d, 7, v238' % V_G)
a('v_mov_b32 v242, 0x%x' % INV)
a('v_cmp_lt_u32 vcc, 1, v%d' % V_G)
a('v_cndmask_b32 v239, 0, v242, vcc')
a('v_or_b32 v239, v239, v238')
a('v_add_u32 v252, %d, v1' % L.L_R2)
a('v_lshlrev_b32 v246, 3, v%d' % V_TOK)
a('v_add_u32 v246, %d, v246' % L.L_STC)
GA = 2.0 * 0.7978845608028654 * 1.4426950408889634
GB = GA * 0.044715
a('v_mov_b32 v%d, %s' % (VGA, f2h(-GA)))
a('v_mov_b32 v%d, %s' % (VGA + 1, f2h(-GA)))
a('s_mov_b32 s34, %s' % f2h(-GB))
a('s_mov_b32 s35, %s' % f2h(-GB))
wd_bases_hi = True
a.wait_vm(b_mark)
a('s_mov_b64 exec, 3')
store('buffer_store_dword v%d, v236, %s, 0 offen' % (V_T, srd(S_WS)), sPFC)
a('s_mov_b64 exec, -1')
stamp()

for i in range(16, 22):
    a(c_wload(i))
a('s_lshl_b32 s%d, s%d, 3' % (sA, sCI))
a('s_lshl_b32 s%d, s%d, 1' % (sB, sW))
a('s_add_u32 s%d, s%d, s%d' % (sA, sA, sB))
a('s_lshl_b32 s24, s%d, 5' % sA)
a('v_lshlrev_b32 v248, 3, v%d' % V_G)
for k in range(2):
    a('buffer_load_dwordx2 %s, v248, %s, s24 offen offset:%d' % (vr(CB1R + 2 * k, 2), srd(S_B1), 32 * k))
poll(240, 256)
stamp()


TORD = [0, 4, 1, 5, 2, 6, 3, 7]


def c_dma_setup(t):
    return ['s_add_u32 s36, s20, %d' % (TORD[t] * 14336), 's_add_u32 m0, s21, %d' % ((t & 3) * 16384)]


def c_dma(t, i):
    return 'buffer_load_dwordx4 v1, %s, s36 offen offset:%d sc1 lds' % (srd(S_WS), 1024 * i)


dm = {}
for x in c_dma_setup(0) + [c_dma(0, i) for i in range(4)]:
    a(x)
dm[0] = a.vm_mark()
wlate = {}
for i in range(22, 28):
    a(c_wload(i))
    wlate[i >> 1] = a.vm_mark()
for tt in range(2):
    for i in range(4):
        a('buffer_load_dwordx2 %s, v%d, %s, s%d offen offset:%d sc1' %
          (vr(CSTR + 8 * tt + 2 * i, 2), 239 if i == 3 else 238, srd(S_WS), 22 + tt, 512 * i))
amark['cst'] = a.vm_mark()
for x in c_dma_setup(1) + [c_dma(1, i) for i in range(4)]:
    a(x)
dm[1] = a.vm_mark()
wd_bases()
t0_loads = []
b1_unpack = []
for k in range(2):
    for p in range(2):
        b1_unpack += ['v_lshlrev_b32 v%d, 16, v%d' % (CB1 + 4 * k + 2 * p, CB1R + 2 * k + p),
                      'v_and_b32 v%d, 0xffff0000, v%d' % (CB1 + 4 * k + 2 * p + 1, CB1R + 2 * k + p)]
a.wait_vm(dm[0])
a('s_barrier')
stamp()


def c_xread(t, u):
    n = t * 14 + u
    return 'ds_read_b128 %s, v252 offset:%d' % (vr(XF + 4 * (n % NXF)), (t & 3) * 16384 + u * 1024)


def gelu_pre(t):
    z, m = CA[t & 1], CMR + 2 * (t & 1)
    P = range(0, 8, 2)
    o = ['v_pk_fma_f32 %s, %s, %s, %s op_sel_hi:[1,0,1] neg_lo:[0,1,0] neg_hi:[0,1,0]' % (vr(z + e, 2), vr(CCS + e, 2), vr(m, 2), vr(z + e, 2)) for e in P]
    o += ['v_pk_fma_f32 %s, %s, %s, %s op_sel:[0,1,0] op_sel_hi:[1,1,1]' % (vr(z + e, 2), vr(z + e, 2), vr(m, 2), vr(CB1 + e, 2)) for e in P]
    o += ['v_pk_mul_f32 %s, %s, %s' % (vr(GTMP + e, 2), vr(z + e, 2), vr(z + e, 2)) for e in P]
    o += ['v_pk_fma_f32 %s, %s, s[34:35], %s' % (vr(GTMP + e, 2), vr(GTMP + e, 2), vr(VGA, 2)) for e in P]
    o += ['v_pk_mul_f32 %s, %s, %s' % (vr(GTMP + e, 2), vr(GTMP + e, 2), vr(z + e, 2)) for e in P]
    return o


def gelu_mid():
    o = {}
    for e in range(8):
        o.setdefault(2 * e, []).append('v_exp_f32 v%d, v%d' % (GTMP + e, GTMP + e))
        o.setdefault(2 * e + 3, []).append('v_add_f32 v%d, 1.0, v%d' % (GTMP + e, GTMP + e))
    for e in range(6):
        o.setdefault(16 + 2 * e, []).append('v_rcp_f32 v%d, v%d' % (GTMP + e, GTMP + e))
    o.setdefault(25, []).append('v_rcp_f32 v%d, v%d' % (GTMP + 6, GTMP + 6))
    o.setdefault(27, []).append('v_rcp_f32 v%d, v%d' % (GTMP + 7, GTMP + 7))
    return o


def gelu_post(t):
    z, h = CA[t & 1], GH + 4 * (t & 1)
    o = ['v_pk_mul_f32 %s, %s, %s' % (vr(GTMP + e, 2), vr(GTMP + e, 2), vr(z + e, 2)) for e in range(0, 8, 2)]
    o += ['v_cvt_pk_bf16_f32 v%d, v%d, v%d' % (h + p, GTMP + 2 * p, GTMP + 2 * p + 1) for p in range(4)]
    return o


def gelu_packed(t):
    z, m, h = CA[t & 1], CMR + 2 * (t & 1), GH + 4 * (t & 1)
    P = range(0, 8, 2)
    for e in P:
        a('v_pk_fma_f32 %s, %s, %s, %s op_sel_hi:[1,0,1] neg_lo:[0,1,0] neg_hi:[0,1,0]' % (vr(z + e, 2), vr(CCS + e, 2), vr(m, 2), vr(z + e, 2)))
    for e in P:
        a('v_pk_fma_f32 %s, %s, %s, %s op_sel:[0,1,0] op_sel_hi:[1,1,1]' % (vr(z + e, 2), vr(z + e, 2), vr(m, 2), vr(CB1 + e, 2)))
    for e in P:
        a('v_pk_mul_f32 %s, %s, %s' % (vr(GTMP + e, 2), vr(z + e, 2), vr(z + e, 2)))
    for e in P:
        a('v_pk_fma_f32 %s, %s, s[34:35], %s' % (vr(GTMP + e, 2), vr(GTMP + e, 2), vr(VGA, 2)))
    for e in P:
        a('v_pk_mul_f32 %s, %s, %s' % (vr(GTMP + e, 2), vr(GTMP + e, 2), vr(z + e, 2)))
    for e in range(8):
        a('v_exp_f32 v%d, v%d' % (GTMP + e, GTMP + e))
    for e in P:
        a('v_pk_add_f32 %s, %s, 1.0 op_sel_hi:[1,0]' % (vr(GTMP + e, 2), vr(GTMP + e, 2)))
    for e in range(8):
        a('v_rcp_f32 v%d, v%d' % (GTMP + e, GTMP + e))
    for e in P:
        a('v_pk_mul_f32 %s, %s, %s' % (vr(GTMP + e, 2), vr(GTMP + e, 2), vr(z + e, 2)))
    for p in range(4):
        a('v_cvt_pk_bf16_f32 v%d, v%d, v%d' % (h + p, GTMP + 2 * p, GTMP + 2 * p + 1))


hmk, fmk = {}, {}


def h_store(t):
    def f():
        a('s_add_u32 s24, s32, %d' % (TORD[t] * 56 * 1024))
        store('buffer_store_dwordx4 %s, v1, %s, s24 offen' % (vr(GH + 4 * (t & 1)), srd(S_WS)), sFH)
        hmk[t] = a.vm_mark()
    return f


def h_flag(t):
    def f():
        a.wait_vm(hmk[t])
        store('buffer_store_dword v%d, v241, %s, 0 offen offset:%d' % (V_T, srd(S_WS), 256 * TORD[t]), sFAST)
    return f


def wd_block(fis, wave):
    def f():
        skip = newlab('L_wd')
        a('s_cmp_eq_u32 s24, %d' % wave)
        a('s_cbranch_scc0 %s' % skip)
        for fi in fis:
            a(wd_load(fi))
            a.vm_issued -= 1
        a.label(skip)
    return f


cst_fill = []
for tt in range(2):
    r = CSTR + 8 * tt
    for c_ in range(2):
        cst_fill += ['v_add_f32 v%d, v%d, v%d' % (r + c_, r + c_, r + 2 + c_),
                     'v_add_f32 v%d, v%d, v%d' % (r + 4 + c_, r + 4 + c_, r + 6 + c_),
                     'v_add_f32 v%d, v%d, v%d' % (r + c_, r + c_, r + 4 + c_)]
    cst_fill += xg_reduce(r, r + 2) + xg_reduce(r + 1, r + 3) + stats_finish(r, r + 1, r + 2, True)
a('s_lshl_b32 s%d, s%d, 7' % (sA, sW))
a('v_add_u32 v247, s%d, v246' % sA)
cst_fill += ['ds_write_b64 v247, %s' % vr(CSTR, 2), 'ds_write_b64 v247, %s offset:512' % vr(CSTR + 8, 2)] + b1_unpack
LOOKX = 6


A_CCS = 244


DFIRST = [194, 198, 202, 206, 210, 220, 224, 228, 232]
hm = {}


def emit_c_loop(wd_list):
    pass0 = bool(wd_list)
    if not pass0:
        for e in range(8):
            a('v_accvgpr_read_b32 v%d, a%d' % (CCS + e, A_CCS + e))
    for u in range(LOOKX):
        a(c_xread(0, u))
    for t in range(8):
        nonvec = {}

        def put(k, x):
            nonvec.setdefault(k, []).append(x)
        for u in range(14):
            n = t * 14 + u
            m = n + LOOKX
            if m < 8 * 14:
                put(2 * u + 1, c_xread(m // 14, m % 14))
            if u % 2 == 1 and n + 1 < 8 * 14:
                put(2 * u + 1, 's_waitcnt lgkmcnt(%d)' % min(LOOKX - 2, 8 * 14 - 1 - (n + 2)))
        if t < 7:
            nonvec[14] = [('bar', t + 1)] + nonvec.get(14, [])
        if t + 2 < 8:
            su = c_dma_setup(t + 2)
            put(0, su[0])
            put(0, su[1])
            for i in range(4):
                put(2 + 2 * i, ('dma', t + 2, i))
        if t >= 3:
            put(20, ('call', h_flag(t - 3)))
        if t == 1:
            put(0, 's_add_u32 s22, s25, 12288')
        if t == 5:
            def issue_d0():
                amark['d0'] = early_issue(244, 243)
            put(22, ('call', issue_d0))
        if t == 6:
            put(2, ('call', lambda: early_check(244, 243, amark['d0'])))
        if t in (6, 7):
            for k, q in zip((4, 6, 8, 20, 22) if t == 6 else (2, 4, 6, 8), range(0, 5) if t == 6 else range(5, 9)):
                put(k, ('h0', q))
        if t < 7:
            for k in (10, 12, 16, 18, 22, 24, 26):
                if wd_list:
                    put(k, wd_load(wd_list.pop(0)))
        if t > 0:
            put(17, 'ds_read_b64 %s, v246 offset:%d' % (vr(CMR + 2 * (t & 1), 2), 128 * TORD[t]))
        if t == 0:
            for k, it in enumerate(t0_loads):
                put(k, ('t0', it))
        valu = gelu_mid() if t >= 1 else {}
        if t >= 2:
            for x in gelu_post(t - 2):
                a(x)
            h_store(t - 2)()
        if t >= 1:
            for x in gelu_pre(t - 1):
                a(x)
        fill = list(cst_fill) if t == 0 else []
        first = 8
        fi = 0
        for k in range(28):
            u, kk = k >> 1, k & 1
            n = t * 14 + u
            if t == 0 and k == 0:
                a('s_waitcnt lgkmcnt(%d)' % (LOOKX - 2))
            if t == 0 and kk == 0 and u in wlate:
                a.wait_vm(wlate[u])
            if t == 0 and k == first:
                a.wait_vm(amark['cst'])
            r = CA[t & 1] + 4 * kk
            a('%s %s, %s, %s, %s' % (MFMA, vr(r), vr(CWW + 4 * (2 * u + kk)), vr(XF + 4 * (n % NXF)), '0' if u == 0 else vr(r)))
            if pass0 and t == 0:
                a('%s %s, %s, %s, %s' % (MFMA, vr(CCS + 4 * kk), vr(CWW + 4 * (2 * u + kk)), ar(A_ONES), '0' if u == 0 else vr(CCS + 4 * kk)))
            for it in nonvec.get(k, []):
                if isinstance(it, str):
                    a(it)
                elif it[0] == 'bar':
                    a.wait_vm(dm[it[1]])
                    a('s_barrier')
                elif it[0] == 'dma':
                    a(c_dma(it[1], it[2]))
                    dm[it[1]] = a.vm_mark()
                elif it[0] == 'call':
                    it[1]()
                elif it[0] == 'h0':
                    q = it[1]
                    a('buffer_load_dwordx4 %s, v1, %s, s%d offen offset:%d sc1' %
                      (vr(DFIRST[q] if q < 9 else 66 + 4 * q), srd(S_WS), (25, 27, 29, 22)[q >> 2], 1024 * (q & 3)))
                    hm[q] = a.vm_mark()
                elif it[0] == 't0':
                    if it[1][0] == 'w':
                        a(c_wload(it[1][1]))
                        wlate[it[1][1] >> 1] = a.vm_mark()
                    else:
                        a(it[1][1])
                        amark['cst'] = a.vm_mark()
            for x in valu.get(k, []):
                a(x)
            if fill and k >= first:
                want = -(-(len(fill)) * (k - first + 1) // (28 - first))
                while fi < want:
                    a(fill[fi])
                    fi += 1
        assert fi == len(fill)
        if t == 0:
            a('s_waitcnt lgkmcnt(0)')
            a('s_barrier')
            a('ds_read_b64 %s, v246 offset:0' % vr(CMR, 2))
            if pass0:
                for e in range(8):
                    a('v_accvgpr_write_b32 a%d, v%d' % (A_CCS + e, CCS + e))
            a('s_waitcnt lgkmcnt(0)')
    assert not wd_list


pair_base(sA, L.FC)
a('s_lshl_b32 s%d, s%d, 10' % (sB, sG))
a('s_add_u32 s%d, s%d, s%d' % (sA, sA, sB))
a('s_mul_i32 s%d, s%d, 56' % (sB, sW))
a('s_add_u32 s%d, s%d, s%d' % (sA, sA, sB))
a('v_lshl_add_u32 v243, v0, 2, s%d' % sA)
a('s_mov_b32 s%d, 0x3fff' % sMK2)
a('s_mov_b32 s%d, 0' % (sMK2 + 1))
pair_base(sA, L.H)
a('s_mul_i32 s%d, s%d, %d' % (sB, sG, 4 * 56 * 1024))
a('s_add_u32 s%d, s%d, s%d' % (sA, sA, sB))
a('s_mul_i32 s%d, s%d, %d' % (sB, sW, 14 * 1024))
a('s_add_u32 s25, s%d, s%d' % (sA, sB))
a('s_add_u32 s27, s25, 4096')
a('s_add_u32 s29, s25, 8192')
n_before = a.vm_issued
dm_init = dict(dm)
a('s_cmp_eq_u32 s%d, 0' % sPAIR)
a('s_cbranch_scc0 L_c_loop1')
emit_c_loop(list(range(*WD_CH[1])))
a('s_branch L_c_done')
a.label('L_c_loop1')
extra = a.vm_issued - n_before
a.vm_issued = n_before
dm.clear()
dm.update(dm_init)
emit_c_loop([])
a.label('L_c_done')
stamp()
DH, DACC, DRD = 66, 130, 194
DRING, DLOOK = 16, 10
red_addrs()
publish_setup(L.XA[1], L.SA[1], L.FX[1], False, 5)
a('s_and_b32 s%d, s%d, 1' % (sA, sG))
a('s_lshr_b32 s%d, s%d, 1' % (sB, sW))
a('s_and_b32 s%d, s%d, s%d' % (sA, sA, sB))
a('s_xor_b32 s%d, s%d, 1' % (sA, sA))
a('s_and_b32 s%d, s%d, s%d' % (sPC, sFD, sA))
a('s_mov_b32 s%d, s%d' % (sPFC, sFAST))
a('s_cmp_eq_u32 s%d, 0' % sA)
a('s_cselect_b32 s%d, 0, 0x%x' % (sCc, INV))
a('s_add_u32 s%d, s%d, 1' % (sA, sS))
a('s_lshl_b32 s%d, s%d, 5' % (sA, sA))
a('s_lshl_b32 s%d, s%d, 1' % (sB, sJ))
a('s_add_u32 s%d, s%d, s%d' % (sA, sA, sB))
a('s_and_b32 s%d, s%d, 1' % (sB, sW))
a('s_add_u32 s%d, s%d, s%d' % (sA, sA, sB))
a('s_lshl_b32 s%d, s%d, 2' % (sA, sA))
a('s_add_u32 s%d, s%d, %d' % (sA, sA, L.FH))
a('s_or_b32 s20, s%d, s%d' % (sA, sCc))
pair_base(sA, L.H)
a('s_mul_i32 s%d, s%d, %d' % (sB, sG, 4 * 56 * 1024))
a('s_add_u32 s%d, s%d, s%d' % (sA, sA, sB))
a('s_mul_i32 s%d, s%d, %d' % (sB, sW, 14 * 1024))
a('s_add_u32 s%d, s%d, s%d' % (sO, sA, sB))
quarter_offsets(4, 56 * 1024)
a('s_cmp_eq_u32 s%d, 0' % sPAIR)
a('s_cbranch_scc1 L_d_nout')
owner_index()
a('s_mul_i32 s%d, s%d, 14336' % (sPX, sB))
a('s_lshl_b32 s%d, s%d, 6' % (sA, sA))
a('s_add_u32 s%d, s%d, s%d' % (sPX, sPX, sA))
a('s_add_u32 s%d, s%d, %d' % (sPX2, sPX, 2 * 14336))
a.label('L_d_nout')
a('v_and_b32 v%d, 15, v0' % V_TOK)
a('v_lshrrev_b32 v%d, 4, v0' % V_G)
a('v_mul_u32_u24 v242, 896, v%d' % V_TOK)
a('v_lshl_add_u32 v242, v%d, 3, v242' % V_G)


def d_hload(q):
    tile, kk = divmod(q, 14)
    return ('buffer_load_dwordx4 %s, v1, %s, s%d offen offset:%d sc1' %
            (vr(d_reg(q)), srd(S_WS), sO + 4 * tile + (kk >> 2), 1024 * (kk & 3)))


def d_reg(q):
    return DFIRST[q] if q < len(DFIRST) else DH + (q % DRING) * 4


dmk = {}
for q in range(len(DFIRST), DLOOK):
    a(d_hload(q))
    hm[q] = a.vm_mark()
dmk[1] = early_issue(244, 243, 256)
stamp()
for x in gelu_post(6):
    a(x)
h_store(6)()
a('s_waitcnt lgkmcnt(0)')
gelu_packed(7)
h_flag(5)()
h_store(7)()
stamp()

a('s_barrier')
stamp()


def d_tile(tile):
    items = []
    for kk in range(14):
        q = tile * 14 + kk
        for t in range(4):
            r = DACC + (tile * 4 + t) * 4
            pre = [(lambda qq=q: a.wait_vm(hm[qq]))] if t == 0 else []
            if t == 0 and q in (6, 12):
                pre.append(h_flag({6: 6, 12: 7}[q]))
            post = None
            if t == 0 and q + DLOOK < 56:
                def post(qq=q + DLOOK):
                    if qq % 14 == 0:
                        early_check(244, 243, dmk[qq // 14], 256 * (qq // 14))
                    a(d_hload(qq))
                    hm[qq] = a.vm_mark()
                    if qq % 14 == 6 and qq // 14 < 3:
                        dmk[qq // 14 + 1] = early_issue(244, 243, 256 * (qq // 14 + 1))
            items.append((pre, '%s %s, %s, %s, %s' % (MFMA, vr(r), ar((kk * 4 + t) * 4), vr(d_reg(q)),
                                                      '0' if kk == 0 else vr(r)), post))
    return items


def d_out_store(st, pk):
    a('buffer_store_dwordx2 %s, v242, %s, s%d offen %s' % (vr(pk, 2), srd(S_OUT), sPX if st == 0 else sPX2, OUTSC))
    a('buffer_store_dwordx2 %s, v242, %s, s%d offen offset:32 %s' % (vr(pk + 2, 2), srd(S_OUT), sPX if st == 0 else sPX2, OUTSC))


def d_store(st, pk):
    fin, done = newlab('L_dfin'), newlab('L_ddone')
    a('s_cmp_eq_u32 s%d, 0' % sPAIR)
    a('s_cbranch_scc0 %s' % fin)
    publish_data(st, pk)
    a('s_branch %s' % done)
    a.label(fin)
    n = a.vm_issued
    d_out_store(st, pk)
    a.vm_issued = n
    a.label(done)


DT0, DT1, DPK, DSTT, DSTS = 226, 2, 18, 28, 36
stage0 = [lambda: (a('s_waitcnt lgkmcnt(0)'), a('s_barrier'))] + red_reads(0, DRD) + finish_pre(0, True, DT0)
stage0 += [lambda: a('s_waitcnt lgkmcnt(0)')] + finish_sum(0, DRD, DT0, DPK, False) + [lambda: d_store(0, DPK)]
run_tiles(d_tile, {1: red_writes(DACC, 0), 2: red_writes(DACC + 16, 1), 3: red_writes(DACC + 32, 2) + stage0})
stamp2()
for x in red_writes(DACC + 48, 3):
    a(x)
for x in finish_pre(1, True, DT1):
    a(x)
a('s_waitcnt lgkmcnt(0)')
a('s_barrier')
stamp2()
for x in red_reads(1, DRD):
    a(x)
a('s_waitcnt lgkmcnt(0)')
for x in finish_sum(1, DRD, DT1, DPK + 4, True):
    a(x)
d_store(1, DPK + 4)
stamp()
a('s_cmp_eq_u32 s%d, 0' % sPAIR)
a('s_cbranch_scc0 L_next_pair')
publish_stats([DT0, DT1], DSTT, DSTS)
FHMODE = ([x[5:] for x in sys.argv if x.startswith('--fh=')] + ['after'])[0]
a('v_mov_b32 v240, s20')
if FHMODE == 'before':
    a('s_waitcnt vmcnt(0)')
    a('s_mov_b64 exec, 1')
    a('buffer_store_dword v%d, v240, %s, 0 offen sc1' % (V_T, srd(S_WS)))
    a('s_mov_b64 exec, -1')
    a('v_lshlrev_b32 v241, 8, v0')
    a('v_add_u32 v241, s%d, v241' % sPF)
    a('s_mov_b64 exec, 3')
    store('buffer_store_dword v%d, v241, %s, 0 offen' % (V_T, srd(S_WS)), sPFC)
    a('s_mov_b64 exec, -1')
else:
    publish_flags(8)
    if FHMODE == 'wait':
        a('s_waitcnt vmcnt(0)')
    a('s_mov_b64 exec, 1')
    a('buffer_store_dword v%d, v240, %s, 0 offen sc1' % (V_T, srd(S_WS)))
    a('s_mov_b64 exec, -1')
a.label('L_next_pair')
stamp()
a('s_add_u32 s%d, s%d, 1' % (sPAIR, sPAIR))
a('s_cmp_lt_u32 s%d, 2' % sPAIR)
a('s_cbranch_scc1 L_pair')

a('s_cmp_eq_u32 s2, 0')
a('s_cbranch_scc0 L_noepoch')
a('s_cmp_eq_u32 s%d, 0' % sW)
a('s_cbranch_scc0 L_noepoch')
a('buffer_load_dword v2, off, %s, 0 sc1' % srd(S_WS))
a('s_waitcnt vmcnt(0)')
a('v_add_u32 v2, 1, v2')
a('s_mov_b64 exec, 1')
a('buffer_store_dword v2, off, %s, 0 sc1' % srd(S_WS))
a('s_mov_b64 exec, -1')
a.label('L_noepoch')
if PAD:
    a.label('L_padspin')
    a('s_memrealtime s[34:35]')
    a('s_waitcnt lgkmcnt(0)')
    a('s_sub_u32 s34, s34, s0')
    a('s_cmp_lt_u32 s34, %d' % PAD[0])
    a('s_cbranch_scc1 L_padspin')
if DBG:
    a('s_memtime s[32:33]')
    a('s_memrealtime s[34:35]')
    a('s_waitcnt lgkmcnt(0)')
    a('s_sub_u32 s32, s32, s26')
    a('s_sub_u32 s34, s34, s0')
    build_srd(S_TMP, P_DBG, 256)
    a('v_mov_b32 v2, s32')
    a('v_mov_b32 v3, s34')
    a('v_mov_b32 v4, s%d' % sFAST)
    a('v_mov_b32 v5, s%d' % sXCC)
    a('s_lshr_b32 s%d, s2, 6' % sA)
    a('s_lshl_b32 s%d, s%d, 4' % (sA, sA))
    a('s_and_b32 s%d, s2, 63' % sB)
    a('s_or_b32 s%d, s%d, s%d' % (sB, sB, sW))
    a('s_cmp_eq_u32 s%d, 0' % sB)
    a('s_cselect_b32 s%d, s%d, 0x%x' % (sA, sA, INV))
    a('v_mov_b32 v6, s%d' % sA)
    a('s_mov_b64 exec, 1')
    a('buffer_store_dwordx4 v[2:5], v6, %s, 0 offen' % srd(S_TMP))
    a('s_mov_b64 exec, -1')
if DIAG:
    stamp()
    a('s_mov_b32 s%d, 63' % sSTI)
    a('s_lshl_b64 exec, 1, s%d' % sSTI)
    a('v_mov_b32 v%d, s%d' % (V_STAMP, sERR))
    a('s_mov_b32 s%d, 62' % sSTI)
    a('s_lshl_b64 exec, 1, s%d' % sSTI)
    a('v_mov_b32 v%d, s%d' % (V_STAMP, sFAST))
    a('s_mov_b64 exec, -1')
    a('s_lshl_b32 s%d, s2, 2' % sA)
    a('s_add_u32 s%d, s%d, s%d' % (sA, sA, sW))
    a('s_lshl_b32 s%d, s%d, 8' % (sA, sA))
    a('v_lshlrev_b32 v2, 2, v0')
    a('s_add_u32 s%d, s%d, %d' % (sA, sA, L.WS_USED))
    a('s_mov_b32 s%d, 0x%x' % (S_WS + 2, L.WS_USED + 256 * 1024))
    a('buffer_store_dword v%d, v2, %s, s%d offen' % (V_STAMP, srd(S_WS), sA))
    if DBGST:
        build_srd(S_TMP, P_DBG, 256)
        a('v_readfirstlane_b32 s%d, v%d' % (sA, V_STAMP))
        a('s_nop 4')
        a('v_subrev_u32 v3, s%d, v%d' % (sA, V_STAMP))
        a('s_or_b32 s%d, s2, s%d' % (sB, sW))
        a('s_cmp_eq_u32 s%d, 0' % sB)
        a('s_cselect_b32 s%d, 0, 0x%x' % (sB, INV))
        a('v_or_b32 v2, s%d, v2' % sB)
        SEL = [int(x[6:]) for x in sys.argv if x.startswith('--sel=')]
        sel = SEL[0] if SEL else 1
        a('v_subrev_u32 v2, %d, v2' % (4 * sel))
        a('buffer_store_dword v3, v2, %s, 0 offen' % srd(S_TMP))
a.label('L_end')
a('s_endpgm')

a.finalize()
body = a.text()

import os
hdr = open(os.path.join(os.path.dirname(os.path.abspath(__file__)), 'header.txt')).read()
out = hdr + '; @launch grid=(256,1,1) block=(256,1,1) lds=%d\n' % L.LDS_BYTES
out += '.amdgcn_target "amdgcn-amd-amdhsa--gfx950"\n.text\n.globl %s_kernel\n.p2align 8\n.type %s_kernel,@function\n%s_kernel:\n' % (NAME, NAME, NAME)
out += body
out += '''.section .rodata,"a"
.p2align 6
.amdhsa_kernel %s_kernel
  .amdhsa_next_free_vgpr 512
  .amdhsa_next_free_sgpr 102
  .amdhsa_accum_offset 256
  .amdhsa_group_segment_fixed_size 0
  .amdhsa_kernarg_size 88
  .amdhsa_user_sgpr_count 2
  .amdhsa_user_sgpr_kernarg_segment_ptr 1
  .amdhsa_system_sgpr_workgroup_id_x 1
.end_amdhsa_kernel
''' % NAME
sys.stdout.write(out)
```

```python
import struct
import sys
from asmlib import Asm
import layout as L

NAME = 'interleave_layers__sliding_local_dilated__mixer_channel_mlp__prompt'
DIAG = '--diag' in sys.argv
FASTMODE = ([x[7:] for x in sys.argv if x.startswith('--fast=')] + ['flags'])[0]
NOFAST = FASTMODE == 'none'
PAD = [int(x[6:]) for x in sys.argv if x.startswith('--pad=')]
DBG = '--dbg' in sys.argv or bool(PAD)
SPIN_LIMIT = 200000
OUTSC = ([x[8:] for x in sys.argv if x.startswith('--outsc=')] + [''])[0].replace('_', ' ')
SLEEP = int(([x[8:] for x in sys.argv if x.startswith('--sleep=')] + ['0'])[0])
INV = 0x80000000

a = Asm()

sXCC = 3
S_WS, S_TMP, S_B1, S_OUT = 4, 8, 12, 16
P_X, P_WQKV, P_WO, P_BX, P_W1, P_B1, P_W2, P_B2, P_OUT, P_DBG, P_WSP = 20, 22, 24, 26, 28, 30, 32, 34, 36, 38, 40
sS, sC, sG, sJ, sW, sT, sPAIR, sSPIN = 42, 43, 44, 45, 46, 47, 48, 49
sM1 = 50
sM2 = 58
sM0 = 66
sO = 74
sA, sB, sCc, sD = 90, 91, 92, 93
sMK = 94
sTS = 96
sGT = 98
sERR = 99
sSTI = 100
sFAST = 101
sFD = 27
sPFC = 26
sFH = 25


def srd(n):
    return 's[%d:%d]' % (n, n + 3)


def vr(n, k=4):
    return 'v[%d:%d]' % (n, n + k - 1)


def ar(n, k=4):
    return 'a[%d:%d]' % (n, n + k - 1)


def sp(n):
    return 's[%d:%d]' % (n, n + 1)


def f2h(x):
    return '0x%08x' % struct.unpack('<I', struct.pack('<f', x))[0]


V_T, V_STAMP = 254, 255
V_TOK, V_G = 250, 251
MFMA = 'v_mfma_f32_16x16x32_bf16'


DIAG2 = '--diag2' in sys.argv
PREFPOS = ([x[7:] for x in sys.argv if x.startswith('--pref=')] + ['a'])[0]
PREF = PREFPOS != 'n'
TOUCH = '--notouch' not in sys.argv
STWAIT = '--stwait' in sys.argv
P2EARLY = '--p2early' in sys.argv
SKEW = [int(x[7:]) for x in sys.argv if x.startswith('--skew=')]
DBGST = '--dbgst' in sys.argv


def stamp2():
    if DIAG2:
        stamp()


def stamp():
    if not DIAG:
        return
    a('%s %s' % ('s_memrealtime' if '--rt' in sys.argv else 's_memtime', sp(sTS)))
    a('s_waitcnt lgkmcnt(0)')
    a('s_lshl_b64 exec, 1, s%d' % sSTI)
    a('v_mov_b32 v%d, s%d' % (V_STAMP, sTS))
    a('s_mov_b64 exec, -1')
    a('s_add_u32 s%d, s%d, 1' % (sSTI, sSTI))


lab_no = [0]


def newlab(p):
    lab_no[0] += 1
    return '%s_%d' % (p, lab_no[0])


def emit_pref():
    a('s_getpc_b64 s[96:97]')
    a.label('L_pc')
    a('s_lshr_b32 s%d, s2, 3' % sA)
    a('s_lshl_b32 s%d, s%d, 11' % (sA, sA))
    a('s_lshl_b32 s%d, s%d, 9' % (sB, sW))
    a('s_add_u32 s%d, s%d, s%d' % (sA, sA, sB))
    a('v_lshlrev_b32 v21, 3, v0')
    a('v_add_u32 v21, s%d, v21' % sA)
    a('v_min_u32 v21, L_end-L_pc-8, v21')
    a('global_load_dwordx2 v[58:59], v21, s[96:97]')


def skew_store(point, have=False):
    if not SKEW or SKEW[0] != point:
        return
    if not have:
        a('s_memrealtime s[96:97]')
        a('s_waitcnt lgkmcnt(0)')
    build_srd(S_TMP, P_DBG, 256)
    a('s_and_b32 s%d, s2, 15' % sA)
    a('s_or_b32 s%d, s%d, s%d' % (sA, sA, sW))
    a('s_cmp_eq_u32 s%d, 0' % sA)
    a('s_cselect_b32 s%d, 0, 0x%x' % (sA, INV))
    a('s_lshr_b32 s%d, s2, 2' % sB)
    a('s_or_b32 s%d, s%d, s%d' % (sA, sA, sB))
    a('v_mov_b32 v21, s%d' % sA)
    a('v_mov_b32 v22, s96')
    a('s_mov_b64 exec, 1')
    a('buffer_store_dword v22, v21, %s, 0 offen' % srd(S_TMP))
    a.vm_issued -= 1
    a('s_mov_b64 exec, -1')


def build_srd(dst, ptr, nbytes):
    a('s_mov_b32 s%d, s%d' % (dst, ptr))
    a('s_and_b32 s%d, s%d, 0xffff' % (dst + 1, ptr + 1))
    a('s_mov_b32 s%d, 0x%x' % (dst + 2, nbytes))
    a('s_mov_b32 s%d, 0x20000' % (dst + 3))


def poll(voff, off2=None, sleep=None):
    lab, done = newlab('L_poll'), newlab('L_polldone')
    a('s_mov_b64 exec, %s' % sp(sMK))
    a('s_mov_b32 s%d, 0' % sSPIN)
    a.label(lab)
    a('buffer_load_dword v253, v%d, %s, 0 offen sc1' % (voff, srd(S_WS)))
    if off2 is not None:
        a('buffer_load_dword v245, v%d, %s, 0 offen offset:%d sc1' % (voff, srd(S_WS), off2))
    a('s_waitcnt vmcnt(0)')
    if off2 is not None:
        a('v_xor_b32 v245, s%d, v245' % sT)
        a('v_xor_b32 v253, s%d, v253' % sT)
        a('v_or_b32 v253, v253, v245')
        a('v_cmp_ne_u32 vcc, 0, v253')
    else:
        a('v_cmp_ne_u32 vcc, s%d, v253' % sT)
    a('s_nop 4')
    a('s_cbranch_vccz %s' % done)
    if sleep or SLEEP:
        a('s_sleep %d' % (sleep or SLEEP))
    a('s_add_u32 s%d, s%d, 1' % (sSPIN, sSPIN))
    a('s_cmp_lt_u32 s%d, %d' % (sSPIN, SPIN_LIMIT))
    a('s_cbranch_scc1 %s' % lab)
    a('s_add_u32 s%d, s%d, 1' % (sERR, sERR))
    a.label(done)
    a('s_mov_b64 exec, -1')


sMK2 = 30


def early_issue(dst, voff, off=0):
    a('s_mov_b64 exec, %s' % sp(sMK2))
    a('buffer_load_dword v%d, v%d, %s, 0 offen offset:%d sc1' % (dst, voff, srd(S_WS), off))
    a('s_mov_b64 exec, -1')
    return a.vm_mark()


def early_check(dst, voff, mark, off=0):
    ok = newlab('L_early')
    a.wait_vm(mark)
    a('s_mov_b64 exec, %s' % sp(sMK2))
    a('v_cmp_ne_u32 vcc, s%d, v%d' % (sT, dst))
    a('s_mov_b64 exec, -1')
    a('s_nop 2')
    a('s_cbranch_vccz %s' % ok)
    a('s_mov_b64 %s, %s' % (sp(sMK), sp(sMK2)))
    n = a.vm_issued
    if off:
        a('v_add_u32 v253, %d, v%d' % (off, voff))
        a('v_mov_b32 v%d, v253' % dst)
        poll(dst)
    else:
        poll(voff)
    a.vm_issued = n
    a.label(ok)


def store(fmt, cond=None):
    if cond is None or NOFAST or (FASTMODE == 'flags' and cond in (sFD, sFH, sPC)):
        a(fmt + ' sc1')
        return
    slow, done = newlab('L_slow'), newlab('L_st')
    a('s_cmp_eq_u32 s%d, 0' % cond)
    a('s_cbranch_scc1 %s' % slow)
    a(fmt)
    a('s_branch %s' % done)
    a.label(slow)
    a(fmt + ' sc1')
    a.vm_issued -= 1
    a.label(done)


def set_flags(voff, nlanes, cond=None, val=V_T, between=()):
    mark = a.vm_mark()
    for x in between:
        a(x)
    a.wait_vm(mark)
    a('s_mov_b64 exec, %d' % ((1 << nlanes) - 1))
    store('buffer_store_dword v%d, v%d, %s, 0 offen' % (val, voff, srd(S_WS)), cond)
    a('s_mov_b64 exec, -1')


def xg_reduce(x, t, op='v_add_f32'):
    return ['v_mov_b32 v%d, v%d' % (t, x),
            'v_permlane32_swap_b32 v%d, v%d' % (x, t),
            '%s v%d, v%d, v%d' % (op, x, x, t),
            'v_mov_b32 v%d, v%d' % (t, x),
            'v_permlane16_swap_b32 v%d, v%d' % (x, t),
            '%s v%d, v%d, v%d' % (op, x, x, t)]


EPS = 1e-5


def stats_finish(s1, s2, t, double_ln):
    o = ['v_mul_f32 v%d, %s, v%d' % (s1, f2h(1.0 / 448), s1),
         'v_mul_f32 v%d, %s, v%d' % (s2, f2h(1.0 / 448), s2),
         'v_fma_f32 v%d, -v%d, v%d, v%d' % (s2, s1, s1, s2),
         'v_max_f32 v%d, 0, v%d' % (s2, s2),
         'v_add_f32 v%d, %s, v%d' % (t, f2h(EPS), s2),
         'v_rsq_f32 v%d, v%d' % (t, t)]
    if not double_ln:
        o += ['v_mov_b32 v%d, v%d' % (s2, t)]
    else:
        o += ['v_mul_f32 v%d, v%d, v%d' % (s2, s2, t),
              'v_fmaak_f32 v%d, v%d, v%d, %s' % (s2, s2, t, f2h(EPS)),
              'v_rsq_f32 v%d, v%d' % (s2, s2),
              'v_mul_f32 v%d, v%d, v%d' % (s2, s2, t)]
    return o


def pair_base(dst, arr):
    a('s_mul_i32 s%d, s%d, %d' % (dst, sPAIR, arr[1] - arr[0]))
    a('s_add_u32 s%d, s%d, %d' % (dst, dst, arr[0]))


def quarter_offsets(n, stride):
    for t in range(n):
        if t:
            a('s_add_u32 s%d, s%d, %d' % (sO + 4 * t, sO + 4 * (t - 1), stride))
        for q in range(1, 4):
            a('s_add_u32 s%d, s%d, %d' % (sO + 4 * t + q, sO + 4 * t, 4096 * q))


sPX, sPS, sPF, sPC, sPX2 = 36, 37, 28, 29, 33


def stats_flags(delta, lsh):
    a('v_lshlrev_b32 v241, %d, v0' % lsh)
    a('s_add_u32 s%d, s%d, %d' % (sA, sPF, delta))
    a('v_add_u32 v241, s%d, v241' % sA)
    a('s_mov_b64 exec, 3')
    store('buffer_store_dword v%d, v241, %s, 0 offen' % (V_T, srd(S_WS)), sPFC)
    a('s_mov_b64 exec, -1')


a('s_cmp_ge_u32 s2, 256')
a('s_cbranch_scc1 L_end')
if '--perm' in sys.argv:
    a('s_and_b32 s90, s2, 7')
    a('s_lshr_b32 s91, s2, 3')
    a('s_and_b32 s91, s91, 7')
    a('s_and_b32 s2, s2, 0xc0')
    a('s_lshl_b32 s90, s90, 3')
    a('s_or_b32 s2, s2, s90')
    a('s_or_b32 s2, s2, s91')
a('s_load_dwordx16 s[20:35], s[0:1], 0')
a('s_load_dwordx4 s[36:39], s[0:1], 64')
a('s_load_dwordx2 s[40:41], s[0:1], 80')
a('s_getreg_b32 s%d, hwreg(HW_REG_XCC_ID, 0, 4)' % sXCC)
a('s_and_b32 s%d, s2, 7' % sA)
a('s_lshr_b32 s%d, s2, 3' % sB)
a('s_lshr_b32 s%d, s%d, 4' % (sCc, sB))
a('s_lshl_b32 s%d, s%d, 1' % (sS, sA))
a('s_add_u32 s%d, s%d, s%d' % (sS, sS, sCc))
a('s_and_b32 s%d, s%d, 15' % (sC, sB))
a('s_lshr_b32 s%d, s%d, 3' % (sA, sC))
a('s_lshl_b32 s%d, s%d, 1' % (sG, sS))
a('s_add_u32 s%d, s%d, s%d' % (sG, sG, sA))
a('s_and_b32 s%d, s%d, 7' % (sJ, sC))
a('s_mov_b32 s%d, 0' % sERR)
if SKEW and SKEW[0] == 0:
    a('s_memrealtime s[96:97]')
a('v_lshrrev_b32 v2, 6, v0')
a('v_and_b32 v0, 63, v0')
a('v_readfirstlane_b32 s%d, v2' % sW)
a('v_lshlrev_b32 v1, 4, v0')
if DIAG:
    a('v_mov_b32 v%d, 0' % V_STAMP)
    a('s_mov_b32 s%d, 0' % sSTI)
stamp()
a('v_and_b32 v%d, 15, v0' % V_TOK)
a('v_lshrrev_b32 v%d, 4, v0' % V_G)
sSTG = 40
a('s_waitcnt lgkmcnt(0)')
if DBG:
    a('s_memtime s[26:27]')
    a('s_memrealtime s[0:1]')
    a('s_waitcnt lgkmcnt(0)')
skew_store(0, True)
build_srd(S_WS, P_WSP, L.WS_USED)
a('buffer_load_dword v%d, off, %s, 0 sc1' % (V_T, srd(S_WS)))
a('s_lshl_b32 s%d, s%d, 14' % (sSTG, sW))
a('s_add_u32 s%d, s%d, %d' % (sSTG, sSTG, L.L_R2))

build_srd(S_TMP, P_X, 2048 * 896)
a('v_mul_u32_u24 v2, 896, v%d' % V_TOK)
a('v_lshl_add_u32 v2, v%d, 3, v2' % V_G)
a('s_lshr_b32 s%d, s%d, 1' % (sA, sC))
a('s_lshl_b32 s%d, s%d, 3' % (sB, sS))
a('s_add_u32 s%d, s%d, s%d' % (sO + 0, sA, sB))
a('s_and_b32 s%d, s%d, 1' % (sA, sC))
a('s_mul_i32 s%d, s%d, 7' % (sA, sA))
a('s_add_u32 s%d, s%d, s%d' % (sO + 1, sA, sW))
a('s_cmp_lt_u32 s%d, 3' % sW)
a('s_cselect_b32 s%d, 0, 0x%x' % (sO + 2, INV))
a('s_mul_i32 s%d, s%d, 14336' % (sA, sO + 0))
a('s_lshl_b32 s%d, s%d, 6' % (sB, sO + 1))
a('s_add_u32 s%d, s%d, s%d' % (sA, sA, sB))
a('v_or_b32 v3, s%d, v2' % (sO + 2))
a('buffer_load_dwordx2 v[10:11], v2, %s, s%d offen' % (srd(S_TMP), sA))
a('buffer_load_dwordx2 v[12:13], v2, %s, s%d offen offset:32' % (srd(S_TMP), sA))
a('buffer_load_dwordx2 v[14:15], v3, %s, s%d offen offset:256' % (srd(S_TMP), sA))
a('buffer_load_dwordx2 v[16:17], v3, %s, s%d offen offset:288' % (srd(S_TMP), sA))

build_srd(S_TMP, P_WQKV, 448 * 2688)
qMAT, qU, qINV = sO + 3, sO + 4, sO + 5
a('s_lshl_b32 s%d, s%d, 4' % (sA, sW))
a('s_add_u32 s%d, s%d, s%d' % (sA, sA, sS))
a('s_cmp_lt_u32 s%d, 42' % sA)
a('s_cselect_b32 s%d, 0, 0x%x' % (qINV, INV))
a('s_min_u32 s%d, s%d, 41' % (sA, sA))
a('s_mul_i32 s%d, s%d, 4682' % (qMAT, sA))
a('s_lshr_b32 s%d, s%d, 16' % (qMAT, qMAT))
a('s_mul_i32 s%d, s%d, 14' % (sB, qMAT))
a('s_sub_u32 s%d, s%d, s%d' % (qU, sA, sB))
a('s_mul_i32 s%d, s%d, %d' % (sA, qU, 32 * 2688))
a('s_mul_i32 s%d, s%d, 896' % (sB, qMAT))
a('s_add_u32 s%d, s%d, s%d' % (sA, sA, sB))
a('s_mul_i32 s%d, s%d, 56' % (sB, sC))
a('s_add_u32 s%d, s%d, s%d' % (sA, sA, sB))
a('v_lshrrev_b32 v4, 2, v0')
a('v_mul_u32_u24 v4, 2688, v4')
a('v_and_b32 v5, 3, v0')
a('v_lshl_add_u32 v4, v5, 4, v4')
a('v_or_b32 v4, s%d, v4' % qINV)
a('s_mov_b32 m0, s%d' % sSTG)
a('s_add_u32 s%d, s%d, %d' % (sB, sA, 16 * 2688))
a('buffer_load_dwordx4 v4, %s, s%d offen lds' % (srd(S_TMP), sA))
a('s_add_u32 m0, s%d, 1024' % sSTG)
a('s_nop 0')
a('buffer_load_dwordx4 v4, %s, s%d offen lds' % (srd(S_TMP), sB))

bINV, bDST, bSTR, bINV2, bDST2, sSTRD = 20, 21, 22, 23, 24, 25


def emit_p2_issue():
    a('s_cmp_eq_u32 s%d, 3' % sW)
    a('s_cbranch_scc1 L_p2_w1')
    a('s_lshl_b32 s%d, s%d, 5' % (sA, sW))
    a('s_add_u32 s%d, s%d, s%d' % (sA, sA, sG))
    a('s_cmp_lt_u32 s%d, 72' % sA)
    a('s_cselect_b32 s%d, 0, 0x%x' % (bINV, INV))
    a('s_cmp_eq_u32 s%d, 7' % sJ)
    a('s_cselect_b32 s%d, 0x%x, s%d' % (bINV, INV, bINV))
    a('s_min_u32 s%d, s%d, 71' % (sA, sA))
    a('s_min_u32 s%d, s%d, 6' % (sD, sJ))
    a('s_cmp_lt_u32 s%d, 16' % sA)
    a('s_cselect_b32 s%d, s%d, s%d' % (S_TMP, P_WO, P_W2))
    a('s_cselect_b32 s%d, s%d, s%d' % (S_TMP + 1, P_WO + 1, P_W2 + 1))
    a('s_mov_b32 s%d, 0x%x' % (S_TMP + 2, 1792 * 896))
    a('s_cselect_b32 s%d, 0x%x, s%d' % (S_TMP + 2, 448 * 896, S_TMP + 2))
    a('s_cselect_b32 s%d, 28, 32' % sB)
    a('s_cselect_b32 s%d, 0, 16' % sCc)
    a('s_mov_b32 s%d, %d' % (bSTR, 56 * 1024))
    a('s_cselect_b32 s%d, %d, s%d' % (bSTR, 16 * 1024, bSTR))
    a('s_mov_b32 s%d, %d' % (bDST, L.WD))
    a('s_cselect_b32 s%d, %d, s%d' % (bDST, L.WB, bDST))
    a('s_cselect_b32 s%d, 0x%x, 0' % (sO + 9, INV))
    a('s_and_b32 s%d, s%d, 0xffff' % (S_TMP + 1, S_TMP + 1))
    a('s_mov_b32 s%d, 0x20000' % (S_TMP + 3))
    a('s_sub_u32 s%d, s%d, s%d' % (sA, sA, sCc))
    a('s_lshl_b32 s%d, s%d, 10' % (sCc, sA))
    a('s_add_u32 s%d, s%d, s%d' % (bDST, bDST, sCc))
    a('s_lshl_b32 s%d, s%d, 2' % (sCc, sD))
    a('s_mul_i32 s%d, s%d, s%d' % (sCc, sCc, bSTR))
    a('s_add_u32 s%d, s%d, s%d' % (bDST, bDST, sCc))
    a('s_mul_i32 s%d, s%d, s%d' % (sA, sA, sB))
    a('s_mul_i32 s%d, s%d, 896' % (sA, sA))
    a('s_lshl_b32 s%d, s%d, 7' % (sB, sD))
    a('s_add_u32 s%d, s%d, s%d' % (sO + 10, sA, sB))
    a('s_mov_b32 s%d, 896' % sSTRD)
    a('s_mov_b32 s%d, 0x%x' % (bINV2, INV))
    a('s_mov_b32 s%d, 0' % bDST2)
    a('s_mov_b32 s%d, 0' % (sO + 11))
    a('s_branch L_p2_go')
    a.label('L_p2_w1')
    build_srd(S_TMP, P_W1, 448 * 3584)
    a('s_lshl_b32 s%d, s%d, 4' % (sA, sS))
    a('s_add_u32 s%d, s%d, s%d' % (sA, sA, sC))
    a('s_cmp_lt_u32 s%d, 136' % sA)
    a('s_cselect_b32 s%d, 0, 0x%x' % (bINV2, INV))
    a('s_mov_b32 s%d, 0' % bINV)
    a('s_mov_b32 s%d, 0' % (sO + 9))
    a('s_mov_b32 s%d, %d' % (bSTR, 14 * 1024))
    a('s_mov_b32 s%d, 3584' % sSTRD)
    for dst, src, add in ((bDST, sO + 10, 0), (bDST2, sO + 11, 256)):
        a('s_add_u32 s%d, s%d, %d' % (sB, sA, add))
        a('s_min_u32 s%d, s%d, 391' % (sB, sB))
        a('s_mul_i32 s%d, s%d, 4682' % (sCc, sB))
        a('s_lshr_b32 s%d, s%d, 16' % (sCc, sCc))
        a('s_mul_i32 s%d, s%d, 14' % (sD, sCc))
        a('s_sub_u32 s%d, s%d, s%d' % (sB, sB, sD))
        a('s_mul_i32 s%d, s%d, %d' % (src, sB, 32 * 3584))
        a('s_lshl_b32 s%d, s%d, 7' % (sD, sCc))
        a('s_add_u32 s%d, s%d, s%d' % (src, src, sD))
        a('s_mul_i32 s%d, s%d, 56' % (sD, sCc))
        a('s_add_u32 s%d, s%d, s%d' % (sD, sD, sB))
        a('s_lshl_b32 s%d, s%d, 10' % (sD, sD))
        a('s_add_u32 s%d, s%d, %d' % (dst, sD, L.WC))
    a.label('L_p2_go')
    a('v_lshrrev_b32 v6, 3, v0')
    a('v_mul_lo_u32 v6, v6, s%d' % sSTRD)
    a('v_and_b32 v5, 7, v0')
    a('v_lshl_add_u32 v6, v5, 4, v6')
    a('v_or_b32 v8, s%d, v6' % bINV2)
    a('v_or_b32 v6, s%d, v6' % bINV)
    a('v_cmp_lt_u32 vcc, 31, v0')
    a('v_mov_b32 v7, s%d' % (sO + 9))
    a('v_cndmask_b32 v7, 0, v7, vcc')
    a('v_or_b32 v7, v7, v6')
    a('s_lshl_b32 s%d, s%d, 3' % (sB, sSTRD))
    for slot in range(2):
        src = sO + 10 + slot
        for q in range(4):
            a('s_add_u32 m0, s%d, %d' % (sSTG, 2048 + 4096 * slot + 1024 * q))
            if q:
                a('s_add_u32 s%d, s%d, s%d' % (src, src, sB))
            else:
                a('s_nop 0')
            a('buffer_load_dwordx4 v%d, %s, s%d offen lds' % (8 if slot else (7 if q == 3 else 6), srd(S_TMP), src))


if P2EARLY:
    emit_p2_issue()
build_srd(S_B1, P_B1, 1792 * 2)
build_srd(S_OUT, P_OUT, 2048 * 896)
a('v_bfe_u32 v18, v0, 2, 2')
a('v_lshl_add_u32 v18, v%d, 2, v18' % V_G)
a('v_and_b32 v19, 3, v0')
a('v_lshlrev_b32 v19, 3, v19')
if PREFPOS == 'b':
    emit_pref()
if TOUCH:
    a('v_lshlrev_b32 v21, 21, v0')
    a('s_mov_b64 exec, 0x1ffff')
    a('buffer_load_dword v253, v21, %s, 0 offen' % srd(S_WS))
    a('s_mov_b64 exec, -1')
    a('s_waitcnt vmcnt(%d)' % ((9 if P2EARLY else 1) + (PREFPOS == 'b')))
else:
    a('s_waitcnt vmcnt(%d)' % ((8 if P2EARLY else 0) + (PREFPOS == 'b')))
stamp()

a('s_mov_b32 s%d, 0x9E3779B1' % sA)
a('v_mul_lo_u32 v%d, v%d, s%d' % (V_T, V_T, sA))
a('v_add_u32 v%d, 0x7F4A7C15, v%d' % (V_T, V_T))
a('v_and_b32 v%d, -16, v%d' % (V_T, V_T))
a('v_lshl_add_u32 v20, v18, 6, v19')
a('v_add_u32 v20, s%d, v20' % sSTG)
for hf in range(2):
    a('ds_read_b64_tr_b16 %s, v20 offset:%d' % (vr(24 + 4 * hf, 2), 32 * hf))
    a('ds_read_b64_tr_b16 %s, v20 offset:%d' % (vr(26 + 4 * hf, 2), 32 * hf + 1024))
a('v_readfirstlane_b32 s%d, v%d' % (sT, V_T))
a('s_mul_i32 s%d, s%d, 14' % (sA, sO + 0))
a('s_add_u32 s%d, s%d, s%d' % (sA, sA, sO + 1))
a('s_lshl_b32 s%d, s%d, 10' % (sB, sA))
a('s_add_u32 s%d, s%d, %d' % (sB, sB, L.XA[0]))
a('v_or_b32 v3, s%d, v1' % (sO + 2))
a('buffer_store_dwordx4 v[10:13], v1, %s, s%d offen sc1' % (srd(S_WS), sB))
a('s_add_u32 s%d, s%d, 4096' % (sB, sB))
a('buffer_store_dwordx4 v[14:17], v3, %s, s%d offen sc1' % (srd(S_WS), sB))
a('v_cmp_gt_u32 vcc, 12, v%d' % V_TOK)
a('s_mul_i32 s%d, s%d, 84' % (sB, sC))
a('s_mul_i32 s%d, s%d, 28' % (sCc, qMAT))
a('s_add_u32 s%d, s%d, s%d' % (sB, sB, sCc))
a('s_add_u32 s%d, s%d, s%d' % (sB, sB, qU))
a('s_lshl_b32 s%d, s%d, 10' % (sB, sB))
a('s_add_u32 s%d, s%d, %d' % (sB, sB, L.WA))
a('v_or_b32 v4, s%d, v1' % qINV)
a('s_waitcnt lgkmcnt(0)')
for p in range(4):
    a('v_cndmask_b32 v%d, 0, v%d, vcc' % (28 + p, 28 + p))
a('buffer_store_dwordx4 v[24:27], v4, %s, s%d offen sc1' % (srd(S_WS), sB))
a('s_add_u32 s%d, s%d, %d' % (sB, sB, 14 * 1024))
a('buffer_store_dwordx4 v[28:31], v4, %s, s%d offen sc1' % (srd(S_WS), sB))
a('v_mov_b32 v2, 0x3f803f80')
for k in range(2):
    x, s1, s2 = 10 + 4 * k, 110 + 2 * k, 111 + 2 * k
    a('v_mov_b32 v%d, 0' % s1)
    a('v_mov_b32 v%d, 0' % s2)
    for p in range(4):
        a('v_dot2_f32_bf16 v%d, v%d, v2, v%d' % (s1, x + p, s1))
        a('v_dot2_f32_bf16 v%d, v%d, v%d, v%d' % (s2, x + p, x + p, s2))
    for t in xg_reduce(s1, 114) + xg_reduce(s2, 115):
        a(t)
a('s_lshl_b32 s%d, s%d, 7' % (sB, sA))
a('s_add_u32 s%d, s%d, %d' % (sB, sB, L.SA[0]))
a('v_lshlrev_b32 v2, 3, v%d' % V_TOK)
a('v_or_b32 v3, s%d, v2' % (sO + 2))
a('s_mov_b64 exec, 0xffff')
a('buffer_store_dwordx2 v[110:111], v2, %s, s%d offen sc1' % (srd(S_WS), sB))
a('buffer_store_dwordx2 v[112:113], v3, %s, s%d offen offset:512 sc1' % (srd(S_WS), sB))
a('s_mov_b64 exec, -1')
crit_mark = a.vm_mark()
if not P2EARLY:
    emit_p2_issue()
a('s_lshl_b32 s%d, s%d, 5' % (sA, sO + 0))
a('s_add_u32 s%d, s%d, s%d' % (sA, sA, sO + 1))
a('s_lshl_b32 s%d, s%d, 2' % (sA, sA))
a('s_add_u32 s%d, s%d, %d' % (sA, sA, L.FX[0]))
a('v_lshlrev_b32 v2, 4, v0')
a('v_add_u32 v2, s%d, v2' % sA)
a('v_cmp_eq_u32 vcc, 1, v0')
a('v_mov_b32 v3, s%d' % (sO + 2))
a('v_cndmask_b32 v3, 0, v3, vcc')
a('v_or_b32 v2, v2, v3')
a('s_lshl_b32 s%d, s%d, 6' % (sA, sC))
a('s_lshl_b32 s%d, s%d, 2' % (sB, sS))
a('s_add_u32 s%d, s%d, s%d' % (sA, sA, sB))
a('s_add_u32 s%d, s%d, s%d' % (sA, sA, sW))
a('s_lshl_b32 s%d, s%d, 2' % (sA, sA))
a('s_add_u32 s%d, s%d, %d' % (sA, sA, L.FQ))
a('v_mov_b32 v3, s%d' % sA)
a('v_cmp_eq_u32 vcc, 2, v0')
a('v_cndmask_b32 v2, v2, v3, vcc')
a('s_lshl_b32 s%d, s%d, 4' % (sA, sS))
a('s_add_u32 s%d, s%d, s%d' % (sA, sA, sC))
a('s_lshl_b32 s%d, s%d, 2' % (sA, sA))
a('s_add_u32 s%d, s%d, %d' % (sA, sA, L.FXC))
a('s_cmp_eq_u32 s%d, 0' % sW)
a('s_cselect_b32 s%d, s%d, 0x%x' % (sA, sA, INV))
a('v_mov_b32 v3, s%d' % sA)
a('v_cmp_eq_u32 vcc, 3, v0')
a('v_cndmask_b32 v2, v2, v3, vcc')
a('v_or_b32 v3, s%d, v%d' % (sXCC, V_T))
a('v_cndmask_b32 v3, v%d, v3, vcc' % V_T)
stamp2()
a.wait_vm(crit_mark)
a('s_mov_b64 exec, 15')
a('buffer_store_dword v3, v2, %s, 0 offen sc1' % srd(S_WS))
a('s_mov_b64 exec, -1')
stamp()

if PREFPOS == 'a':
    emit_pref()
BTOUCH = '--btouch' in sys.argv
if BTOUCH:
    a('v_lshlrev_b32 v21, 6, v0')
    a('buffer_load_dword v60, v21, %s, 0 offen' % srd(S_B1))
    build_srd(S_TMP, P_B2, 896)
    a('buffer_load_dword v61, v21, %s, 0 offen' % srd(S_TMP))
skew_store(1)
a('s_waitcnt vmcnt(%d)' % (1 + (PREFPOS == 'a') + 2 * BTOUCH))
a('v_lshl_add_u32 v20, v18, 7, v19')
a('v_add_u32 v20, s%d, v20' % sSTG)
for slot in range(2):
    for t in range(4):
        a('ds_read_b64_tr_b16 %s, v20 offset:%d' % (vr(24 + 16 * slot + 4 * t, 2), 2048 + 4096 * slot + 32 * t))
        a('ds_read_b64_tr_b16 %s, v20 offset:%d' % (vr(26 + 16 * slot + 4 * t, 2), 2048 + 4096 * slot + 32 * t + 2048))
a('v_or_b32 v6, s%d, v1' % bINV)
a('v_or_b32 v8, s%d, v1' % bINV2)
a('s_waitcnt lgkmcnt(8)')
for t in range(4):
    a('buffer_store_dwordx4 %s, v6, %s, s%d offen sc1' % (vr(24 + 4 * t), srd(S_WS), bDST))
    if t < 3:
        a('s_add_u32 s%d, s%d, s%d' % (bDST, bDST, bSTR))
a('s_waitcnt lgkmcnt(0)')
for t in range(4):
    a('buffer_store_dwordx4 %s, v8, %s, s%d offen sc1' % (vr(40 + 4 * t), srd(S_WS), bDST2))
    if t < 3:
        a('s_add_u32 s%d, s%d, s%d' % (bDST2, bDST2, bSTR))
a('s_lshl_b32 s%d, s%d, 4' % (sA, sS))
a('s_add_u32 s%d, s%d, s%d' % (sA, sA, sC))
a('s_lshl_b32 s%d, s%d, 2' % (sA, sA))
a('s_add_u32 s%d, s%d, %d' % (sA, sA, L.FW1))
a('v_lshlrev_b32 v22, 10, v0')
a('v_add_u32 v22, s%d, v22' % sA)
a('v_cmp_eq_u32 vcc, 1, v0')
a('v_mov_b32 v23, s%d' % bINV2)
a('v_cndmask_b32 v23, 0, v23, vcc')
a('v_or_b32 v22, v22, v23')
a('s_cmp_eq_u32 s%d, 3' % sW)
a('s_cselect_b32 s%d, 0, 0x%x' % (sA, INV))
a('v_or_b32 v22, s%d, v22' % sA)

skew_store(3)
a('v_and_b32 v2, 1, v%d' % V_TOK)
a('v_lshlrev_b32 v3, 2, v%d' % V_G)
a('v_add_u32 v6, 2, v%d' % V_TOK)
for i in range(4):
    a('v_add_u32 v4, %d, v3' % i)
    a('v_cmp_eq_u32 vcc, %d, v2' % (i & 1))
    a('s_mov_b64 %s, vcc' % sp(sMK))
    a('v_cmp_ge_u32 vcc, v4, v6')
    a('s_and_b64 %s, vcc, %s' % (sp(sM1 + 2 * i), sp(sMK)))
    a('v_cmp_le_u32 vcc, v4, v%d' % V_TOK)
    a('s_and_b64 %s, vcc, %s' % (sp(sM2 + 2 * i), sp(sMK)))
a('s_lshl_b32 s%d, s%d, 3' % (sA, sS))
a('s_lshl_b32 s%d, s%d, 1' % (sB, sW))
a('s_add_u32 s%d, s%d, s%d' % (sGT, sA, sB))
a('s_cmp_eq_u32 s%d, 0' % sGT)
for i in range(4):
    a('s_cselect_b64 %s, 0, %s' % (sp(sM0 + 2 * i), sp(sM1 + 2 * i)))
a('s_mov_b32 s%d, 0' % sPAIR)

def a_flag_addr(dst):
    pair_base(sA, L.FX)
    a('s_lshl_b32 s%d, s%d, 7' % (sB, sGT))
    a('s_add_u32 s%d, s%d, s%d' % (sA, sA, sB))
    a('s_sub_u32 s%d, s%d, 128' % (sA, sA))
    a('v_and_b32 v%d, 48, v0' % dst)
    a('v_add_u32 v%d, v%d, v0' % (dst, dst))
    a('v_lshl_add_u32 v%d, v%d, 2, s%d' % (dst, dst, sA))
    a('s_mov_b32 s%d, 0x3fff3fff' % sMK)
    a('s_mov_b32 s%d, 0x3fff' % (sMK + 1))
    a('s_cmp_eq_u32 s%d, 0' % sGT)
    a('s_cselect_b32 s%d, 0x3fff0000, s%d' % (sMK, sMK))


a('s_lshl_b32 s%d, s%d, 8' % (sA, sC))
a('s_add_u32 s%d, s%d, %d' % (sA, sA, L.FQ))
a('v_lshl_add_u32 v2, v0, 2, s%d' % sA)
a_flag_addr(3)
a('s_lshl_b32 s%d, s%d, 6' % (sA, sS))
a('s_add_u32 s%d, s%d, %d' % (sA, sA, L.FXC - 48 * 4))
a('v_lshl_add_u32 v4, v0, 2, s%d' % sA)
a('v_cmp_lt_u32 vcc, 47, v0')
a('v_cndmask_b32 v3, v3, v4, vcc')
a('v_mov_b32 v5, -1')
a('v_mov_b32 v6, -16')
a('v_cndmask_b32 v5, v5, v6, vcc')
a('s_or_b32 s%d, s%d, 0xffff0000' % (sMK + 1, sMK + 1))
a('s_mov_b32 s%d, 0' % sSPIN)
a.label('L_poll0')
a('buffer_load_dword v7, v2, %s, 0 offen sc1' % srd(S_WS))
a('s_mov_b64 exec, %s' % sp(sMK))
a('buffer_load_dword v8, v3, %s, 0 offen sc1' % srd(S_WS))
a('s_waitcnt vmcnt(0)')
a('v_and_b32 v9, v5, v8')
a('v_cmp_ne_u32 vcc, s%d, v9' % sT)
a('s_mov_b64 exec, -1')
a('s_mov_b64 %s, vcc' % sp(sTS))
a('v_cmp_ne_u32 vcc, s%d, v7' % sT)
a('s_or_b64 vcc, vcc, %s' % sp(sTS))
a('s_cbranch_vccz L_poll0_done')
a('s_add_u32 s%d, s%d, 1' % (sSPIN, sSPIN))
a('s_cmp_lt_u32 s%d, %d' % (sSPIN, SPIN_LIMIT))
a('s_cbranch_scc1 L_poll0')
a('s_add_u32 s%d, s%d, 1' % (sERR, sERR))
a.label('L_poll0_done')
a('s_mov_b64 exec, 3')
a('buffer_store_dword v%d, v22, %s, 0 offen sc1' % (V_T, srd(S_WS)))
a('s_mov_b64 exec, -1')
skew_store(2)
a('v_and_b32 v9, 15, v8')
a('v_cmp_ne_u32 vcc, s%d, v9' % sXCC)
a('s_and_b32 s%d, vcc_hi, 0xffff0000' % sA)
a('s_cmp_eq_u32 s%d, 0' % sA)
a('s_cselect_b32 s%d, 1, 0' % sFAST)
stamp()
AQ, AK, AV, HACC = 2, 18, 34, 50
WBUF = [66, 90]
XR = 114
CSACC = 186
STR = 210
SM, SR = 234, 237
NR, LOOK = 6, 4
A_ONES = 240


def a_xload(u):
    slot = u % NR
    return ['buffer_load_dwordx4 %s, v1, %s, s%d offen offset:%d sc1' %
            (vr(XR + (slot * 2 + t) * 4), srd(S_WS), sO + 4 * (t + 1) + (u >> 2), 1024 * (u & 3)) for t in range(2)]


def a_offsets():
    pair_base(sA, L.XA)
    a('s_mul_i32 s%d, s%d, 14336' % (sB, sGT))
    a('s_add_u32 s%d, s%d, s%d' % (sO + 4, sA, sB))
    a('s_add_u32 s%d, s%d, 14336' % (sO + 8, sO + 4))
    for t in range(1, 3):
        for q in range(1, 4):
            a('s_add_u32 s%d, s%d, %d' % (sO + 4 * t + q, sO + 4 * t, 4096 * q))
    a('s_lshl_b32 s%d, s%d, 3' % (sB, sS))
    a('s_max_u32 s%d, s%d, 1' % (sB, sB))
    a('s_sub_u32 s%d, s%d, 1' % (sB, sB))
    a('s_mul_i32 s%d, s%d, 14336' % (sB, sB))
    a('s_add_u32 s%d, s%d, s%d' % (sO + 0, sA, sB))
    a('s_lshl_b32 s%d, s%d, 12' % (sB, sW))
    a('s_add_u32 s%d, s%d, s%d' % (sO + 0, sO + 0, sB))
    a('s_add_u32 s%d, s%d, %d' % (sO + 1, sB, L.L_R2))


def a_setup():
    if FASTMODE == 'flags':
        a('s_mov_b32 s%d, 0' % sFD)
        a('s_mov_b32 s%d, 0' % sFH)
    elif FASTMODE == 'p0':
        a('s_xor_b32 s%d, s%d, 1' % (sFD, sPAIR))
        a('s_and_b32 s%d, s%d, s%d' % (sFD, sFD, sFAST))
        a('s_mov_b32 s%d, s%d' % (sFH, sFD))
    elif FASTMODE == 'small':
        a('s_mov_b32 s%d, s%d' % (sFD, sFAST))
        a('s_mov_b32 s%d, 0' % sFH)
    elif FASTMODE == 'smallp0':
        a('s_mov_b32 s%d, s%d' % (sFD, sFAST))
        a('s_xor_b32 s%d, s%d, 1' % (sFH, sPAIR))
        a('s_and_b32 s%d, s%d, s%d' % (sFH, sFH, sFAST))
    else:
        a('s_mov_b32 s%d, s%d' % (sFD, sFAST))
        a('s_mov_b32 s%d, s%d' % (sFH, sFAST))
    pair_base(sA, L.SA)
    a('s_mul_i32 s%d, s%d, 1792' % (sB, sGT))
    a('s_add_u32 s%d, s%d, s%d' % (sO + 13, sA, sB))
    a('s_add_u32 s%d, s%d, 1792' % (sO + 14, sO + 13))
    a('s_sub_u32 s%d, s%d, 1792' % (sO + 12, sO + 13))
    a('s_cmp_eq_u32 s%d, 0' % sGT)
    a('s_cselect_b32 s%d, s%d, s%d' % (sO + 12, sO + 13, sO + 12))
    a('v_and_b32 v%d, 15, v0' % V_TOK)
    a('v_lshrrev_b32 v%d, 4, v0' % V_G)
    a('v_lshlrev_b32 v240, 3, v%d' % V_TOK)
    a('v_lshl_add_u32 v240, v%d, 7, v240' % V_G)
    a('v_mov_b32 v242, 0x%x' % INV)
    a('v_cmp_lt_u32 vcc, 1, v%d' % V_G)
    a('v_cndmask_b32 v241, 0, v242, vcc')
    a('v_or_b32 v241, v241, v240')
    a('v_add_u32 v243, %d, v1' % (56 * 1024))
    a('v_lshlrev_b32 v244, 4, v%d' % V_G)
    a('v_add_u32 v244, %d, v244' % L.L_CSA)
    a('v_lshlrev_b32 v245, 2, v%d' % V_TOK)
    a('v_add_u32 v245, %d, v245' % L.L_CSA)
    a('s_lshl_b32 s%d, s%d, 7' % (sA, sJ))
    a('s_add_u32 s%d, s%d, %d' % (sA, sA, L.FP))
    a('v_lshl_add_u32 v248, v0, 2, s%d' % sA)
    a('s_lshr_b32 s%d, s%d, 1' % (sB, sW))
    a('s_lshl_b32 s%d, s%d, 2' % (sCc, sG))
    a('s_add_u32 s%d, s%d, s%d' % (sB, sB, sCc))
    a('s_lshl_b32 s%d, s%d, 5' % (sB, sB))
    a('s_and_b32 s%d, s%d, 1' % (sA, sW))
    a('s_add_u32 s%d, s%d, s%d' % (sB, sB, sA))
    a('s_min_u32 s%d, s%d, 6' % (sA, sJ))
    a('s_lshl_b32 s%d, s%d, 1' % (sA, sA))
    a('s_add_u32 s%d, s%d, s%d' % (sB, sB, sA))
    a('s_lshl_b32 s%d, s%d, 2' % (sB, sB))
    a('s_add_u32 s%d, s%d, %d' % (sB, sB, L.FX[0] - 32 * 256))
    a('v_lshl_add_u32 v249, v0, 8, s%d' % sB)
    a('v_cmp_lt_u32 vcc, 31, v0')
    a('v_cndmask_b32 v248, v248, v249, vcc')
    a('s_lshr_b32 s%d, s%d, 3' % (sA, sC))
    a('s_mul_i32 s%d, s%d, 7' % (sA, sA))
    a('s_min_u32 s%d, s%d, 6' % (sB, sJ))
    a('s_add_u32 s%d, s%d, s%d' % (sA, sA, sB))
    a('s_mul_i32 s%d, s%d, 112' % (sA, sA))
    a('s_add_u32 s%d, s%d, %d' % (sA, sA, L.FW1 - 34 * 4))
    a('v_lshl_add_u32 v249, v0, 2, s%d' % sA)
    a('v_cmp_lt_u32 vcc, 33, v0')
    a('v_cndmask_b32 v248, v248, v249, vcc')
    a('s_lshl_b32 s%d, s%d, 7' % (sA, sS))
    a('s_add_u32 s%d, s%d, %d' % (sA, sA, L.FH))
    a('v_and_b32 v247, 15, v0')
    a('v_lshl_add_u32 v247, v247, 2, s%d' % sA)
    a('s_lshl_b32 s%d, s%d, 7' % (sB, sGT))
    a('s_add_u32 s%d, s%d, %d' % (sB, sB, L.FX[1] - 128))
    a('v_lshl_add_u32 v253, v0, 2, s%d' % sB)
    a('s_cmp_eq_u32 s%d, 0' % sW)
    a('s_cselect_b32 s%d, 0, 16' % sA)
    a('v_cmp_gt_u32 vcc, s%d, v0' % sA)
    a('v_cndmask_b32 v247, v247, v253, vcc')
    a('s_mov_b32 s%d, 0x3fff3fff' % sMK2)
    a('s_mov_b32 s%d, 0' % (sMK2 + 1))
    a('s_cmp_eq_u32 s%d, 0' % sS)
    a('s_cselect_b32 s%d, 0x3fff, s%d' % (sMK2, sMK2))
    a('v_and_b32 v253, 15, v0')
    a('v_lshlrev_b32 v253, 2, v253')
    a('v_add_u32 v253, %d, v253' % L.FX[1])
    a('s_cmp_eq_u32 s%d, 0' % sGT)
    a('s_cselect_b64 vcc, -1, 0')
    a('v_cndmask_b32 v247, v247, v253, vcc')


stat_loads = ['buffer_load_dwordx2 %s, v%d, %s, s%d offen offset:%d sc1' %
              (vr(STR + (t * 4 + i) * 2, 2), 241 if i == 3 else 240, srd(S_WS), sO + 12 + t, 512 * i)
              for t in range(3) for i in range(4)]


def a_wread(u):
    b = WBUF[u & 1]
    o = []
    for p in range(6):
        if p < 4:
            o.append('ds_read_b128 %s, v1 offset:%d' % (vr(b + 4 * p), L.L_WA + (p * 14 + u) * 1024))
        else:
            o.append('ds_read_b128 %s, v243 offset:%d' % (vr(b + 4 * p), L.L_WA + ((p - 4) * 14 + u) * 1024))
    return o


stat_fill = []
for t in range(3):
    r = STR + 8 * t
    for c_ in range(2):
        stat_fill += ['v_add_f32 v%d, v%d, v%d' % (r + c_, r + c_, r + 2 + c_),
                      'v_add_f32 v%d, v%d, v%d' % (r + 4 + c_, r + 4 + c_, r + 6 + c_),
                      'v_add_f32 v%d, v%d, v%d' % (r + c_, r + c_, r + 4 + c_)]
    stat_fill += xg_reduce(r, r + 2) + xg_reduce(r + 1, r + 3)
    stat_fill += stats_finish(r, r + 1, r + 2, False)
    stat_fill += ['v_mov_b32 v%d, v%d' % (SM + t, r), 'v_mov_b32 v%d, v%d' % (SR + t, r + 1)]

sWA = [20, 21, 22]
sWAG = 23


def wa_dma(pr, i):
    def f():
        a('s_add_u32 m0, s%d, %d' % (sWA[i], L.L_WA + 2048 * pr))
        a('s_add_u32 s%d, s%d, s%d' % (sD, sWA[i], sWAG))
        if pr:
            a('s_add_u32 s%d, s%d, %d' % (sD, sD, 2048 * pr))
        a('buffer_load_dwordx4 v1, %s, s%d offen sc1 lds' % (srd(S_WS), sD))
    return f


amark = {}


def emit_a_loop(first, xmark, wam):
    ep_mark = es_mark = st_mark = None
    for t in a_wread(0):
        a(t)
    for u in range(14):
        need = xmark[u]
        if u == 11:
            need = max(need, st_mark)
        a.wait_vm(need)
        if not first and u == 6:
            early_check(246, 247, es_mark)
            a('s_nop 0')
        if u == 11:
            a('s_mov_b32 s%d, -1' % sMK2)
            a('s_mov_b32 s%d, 0x3fffffff' % (sMK2 + 1))
        a('s_waitcnt lgkmcnt(0)')
        wb = WBUF[u & 1]
        xs = XR + (u % NR) * 8
        mf = []
        cz = (lambda r: '0') if u == 0 else (lambda r: vr(r))
        for t in range(2):
            for hf in range(2):
                r = AQ + (t * 2 + hf) * 4
                mf.append('%s %s, %s, %s, %s' % (MFMA, vr(r), vr(wb + 4 * hf), vr(xs + 4 * t), cz(r)))
        for t in range(2):
            for hf in range(2):
                r = AK + (t * 2 + hf) * 4
                mf.append('%s %s, %s, %s, %s' % (MFMA, vr(r), vr(wb + 8 + 4 * hf), vr(xs + 4 * t), cz(r)))
        for t in range(2):
            for hf in range(2):
                r = AV + (t * 2 + hf) * 4
                mf.append('%s %s, %s, %s, %s' % (MFMA, vr(r), vr(xs + 4 * t), vr(wb + 16 + 4 * hf), cz(r)))
        if first:
            mf.append('%s %s, %s, %s, %s' % (MFMA, vr(CSACC + 8), vr(CSACC), ar(A_ONES), cz(CSACC + 8)))
            mf.append('%s %s, %s, %s, %s' % (MFMA, vr(CSACC + 12), ar(A_ONES), vr(CSACC + 4), cz(CSACC + 12)))
        mem = {}

        def put(k, x):
            mem.setdefault(k, []).append(x)
        nm = len(mf)
        off = 0
        if first:
            a('ds_read_b128 %s, v252 offset:%d' % (vr(CSACC), 1024 * u))
            a('ds_read_b128 %s, v242 offset:%d' % (vr(CSACC + 4), 1024 * u))
            put(11, 's_waitcnt lgkmcnt(%d)' % (6 if u < 13 else 0))
        if first and u % 2 == 1 and u < 13:
            put(2, ('bar', (u + 1) // 2))
            off = 3
        if u < 13:
            for k, x in enumerate(a_wread(u + 1)):
                put(off + k, x)
        elif not first:
            for p in range(4):
                put(p, 'ds_read_b128 %s, v244 offset:%d' % (vr(WBUF[0] + 4 * p), 64 * p))
            for d in range(2):
                put(4 + d, 'ds_read_b32 v%d, v245 offset:%d' % (WBUF[0] + 16 + d, 64 * (4 + d)))
        if first and u < 2:
            for j_, uu in enumerate((2 * u + 2, 2 * u + 3)):
                for k, x in zip((6, 8), a_xload(uu)):
                    put(k + 4 * j_, x)
                put(8 + 4 * j_, ('xm', uu))
            if u == 0:
                for i, k in enumerate((7, 9, 11)):
                    put(k, ('wa', 2, i))
        elif u + LOOK < 14:
            for k, x in zip((6, 9), a_xload(u + LOOK)):
                put(k, x)
            put(9, ('xm', u + LOOK))
        if first and u % 2 == 0 and u // 2 + 3 <= 6:
            for i, k in enumerate((12, 13, 13) if u == 0 else (7, 10, 12)):
                put(k, ('wa', u // 2 + 3, i))
        order = list(range(4, 12)) + list(range(0, 4))
        if 2 <= u < 6:
            for k, x in zip((8, 11), order[2 * (u - 2):2 * (u - 2) + 2]):
                put(k, stat_loads[x])
        if not first and u == 3:
            put(7, ('estat',))
        if u in (7, 8):
            for k, x in zip((8, 11), order[8 + 2 * (u - 7):8 + 2 * (u - 7) + 2]):
                put(k, stat_loads[x])
            if u == 8:
                put(11, ('st',))
        if u == 6:
            put(10, 's_mov_b32 m0, s%d' % (sO + 1))
            for i, k in enumerate((10, 10, 11, 11)):
                put(k, 'buffer_load_dwordx4 v1, %s, s%d offen offset:%d sc1 lds' % (srd(S_WS), sO + 0, 1024 * i))
            put(11, ('hm',))
        if u == 13:
            put(8, ('early',))
        fill = stat_fill[(u - 11) * 22:(u - 10) * 22] if u >= 11 else []
        fi = 0
        for k, m in enumerate(mf):
            a(m)
            for it in mem.get(k, []):
                if isinstance(it, str):
                    a(it)
                elif it[0] == 'early':
                    ep_mark = early_issue(249, 248)
                elif it[0] == 'estat':
                    es_mark = early_issue(246, 247)
                elif it[0] == 'xm':
                    xmark[it[1]] = a.vm_mark()
                elif it[0] == 'st':
                    st_mark = a.vm_mark()
                elif it[0] == 'hm':
                    amark['halo'] = a.vm_mark()
                elif it[0] == 'bar':
                    a.wait_vm(wam[it[1]])
                    a('s_barrier')
                elif it[0] == 'wa':
                    wa_dma(it[1], it[2])()
                    wam[it[1]] = a.vm_mark()
            for _ in range(2):
                if fi < len(fill) and k >= 1:
                    a(fill[fi])
                    fi += 1
        assert fi == len(fill), (u, fi, len(fill))
    amark['ep'] = ep_mark


for p in range(4):
    a('v_mov_b32 v4, 0x3f803f80')
    a('v_accvgpr_write_b32 a%d, v4' % (A_ONES + p))
a('s_mul_i32 s%d, s%d, 14336' % (sWA[0], sW))
a('s_add_u32 s%d, s%d, 4' % (sA, sW))
a('s_mul_i32 s%d, s%d, 14336' % (sA, sA))
a('s_sub_u32 s%d, s%d, 2' % (sB, sW))
a('s_mul_i32 s%d, s%d, 14336' % (sB, sB))
a('s_add_u32 s%d, s%d, 1024' % (sB, sB))
a('s_cmp_lt_u32 s%d, 2' % sW)
a('s_cselect_b32 s%d, s%d, s%d' % (sWA[1], sA, sB))
a('s_add_u32 s%d, s%d, 2' % (sA, sW))
a('s_mul_i32 s%d, s%d, 14336' % (sA, sA))
a('s_add_u32 s%d, s%d, 1024' % (sWA[2], sA))
a('s_mul_i32 s%d, s%d, %d' % (sWAG, sC, 84 * 1024))
a('s_add_u32 s%d, s%d, %d' % (sWAG, sWAG, L.WA))
a_offsets()
xm0, wam0 = {}, {}


def wa_pair(pr):
    for i in range(3):
        wa_dma(pr, i)()
    wam0[pr] = a.vm_mark()


wa_pair(0)
for u in range(2):
    for t in a_xload(u):
        a(t)
    xm0[u] = a.vm_mark()
wa_pair(1)
a_setup()
a('s_mul_i32 s%d, s%d, 14336' % (sA, sW))
a('v_add_u32 v252, s%d, v1' % sA)
a('s_and_b32 s%d, s%d, 1' % (sA, sW))
a('s_mul_i32 s%d, s%d, 14336' % (sA, sA))
a('v_add_u32 v242, s%d, v243' % sA)
a.wait_vm(wam0[0])
a('s_barrier')
a('s_lshl_b32 s%d, s%d, 5' % (sA, sJ))
a('s_add_u32 s%d, s%d, s%d' % (sA, sA, sG))
a('s_lshl_b32 s%d, s%d, 2' % (sA, sA))
a('s_add_u32 s%d, s%d, %d' % (sA, sA, L.FP))
a('s_cmp_eq_u32 s%d, 0' % sW)
a('s_cselect_b32 s%d, s%d, 0x%x' % (sA, sA, INV))
a('v_mov_b32 v2, s%d' % sA)
a('s_mov_b64 exec, 1')
a('buffer_store_dword v%d, v2, %s, 0 offen sc1' % (V_T, srd(S_WS)))
a.vm_issued -= 1
a('s_mov_b64 exec, -1')
stamp()
emit_a_loop(True, xm0, wam0)
n_join = a.vm_issued - amark['ep']
CSQ = WBUF[0]
a('v_cmp_eq_u32 vcc, 0, v%d' % V_TOK)
a('s_lshl_b32 s%d, s%d, 6' % (sA, sW))
a('v_add_u32 v252, s%d, v244' % sA)
a('s_and_b32 s%d, s%d, 1' % (sA, sW))
a('s_lshl_b32 s%d, s%d, 6' % (sA, sA))
a('v_add_u32 v242, s%d, v245' % sA)
a('s_mov_b64 exec, vcc')
a('ds_write_b128 v252, %s' % vr(CSACC + 8))
a('s_mov_b64 exec, 0xffff')
a('ds_write_b32 v242, v%d offset:256' % (CSACC + 12))
a('s_mov_b64 exec, -1')
a('s_waitcnt lgkmcnt(0)')
a('s_barrier')
for p in range(4):
    a('ds_read_b128 %s, v244 offset:%d' % (vr(WBUF[0] + 4 * p), 64 * p))
for d in range(2):
    a('ds_read_b32 v%d, v245 offset:%d' % (WBUF[0] + 16 + d, 64 * (4 + d)))
a('s_branch L_a_epi')

a.label('L_pair')
a_flag_addr(2)
a('s_mov_b32 s%d, 0x3fff0000' % sMK)
ASLEEP = int(([x[9:] for x in sys.argv if x.startswith('--asleep=')] + ['0'])[0])
poll(2, None, ASLEEP)
stamp()
a_offsets()
xmark = {}
for u in range(LOOK):
    for t in a_xload(u):
        a(t)
    xmark[u] = a.vm_mark()
a_setup()
emit_a_loop(False, xmark, None)
assert a.vm_issued - amark['ep'] == n_join
ep_mark = amark['ep']
a.label('L_a_epi')
stamp()
a('s_add_u32 s%d, s%d, 2' % (sA, sW))
a('s_mul_i32 s%d, s%d, 14336' % (sA, sA))
a('v_add_u32 v246, s%d, v1' % sA)
a('v_add_u32 v247, %d, v1' % L.L_R2)
a('s_cmp_lt_u32 s%d, 2' % sW)
a('s_cselect_b64 vcc, -1, 0')
a('v_cndmask_b32 v252, v247, v246, vcc')
a('v_cndmask_b32 v253, v246, v247, vcc')
a.wait_vm(amark['halo'])
a('s_barrier')
HOP = 90
def h_reads(u):
    r = HOP + 8 * (u % 3)
    return ['ds_read_b128 %s, v252 offset:%d' % (vr(r), 1024 * u), 'ds_read_b128 %s, v253 offset:%d' % (vr(r + 4), 1024 * u)]
for u in range(2):
    for x in h_reads(u):
        a(x)
rest = stat_fill[66:]
for u in range(14):
    if u + 2 < 14:
        for x in h_reads(u + 2):
            a(x)
    a('s_waitcnt lgkmcnt(%d)' % (4 if u < 12 else (2 if u == 12 else 0)))
    r = HOP + 8 * (u % 3)
    a('%s %s, %s, %s, %s' % (MFMA, vr(HACC), vr(r), vr(r + 4), '0' if u == 0 else vr(HACC)))
    if rest:
        a(rest.pop(0))
for x in rest:
    a(x)
stamp2()
early_check(249, 248, ep_mark)
BW = 2
a('s_lshl_b32 s%d, s%d, 6' % (sA, sJ))
a('s_lshl_b32 s%d, s%d, 2' % (sB, sW))
a('s_add_u32 s%d, s%d, s%d' % (sA, sA, sB))
a('s_lshl_b32 s%d, s%d, 10' % (sA, sA))
a('s_add_u32 s20, s%d, %d' % (sA, L.WB))
for t in range(1, 4):
    a('s_add_u32 s%d, s20, %d' % (20 + t, 16 * 1024 * t))
wb_all = ['buffer_load_dwordx4 %s, v1, %s, s%d offen offset:%d sc1' % (vr(BW + (i * 4 + t) * 4), srd(S_WS), 20 + t, 1024 * i)
          for i in range(4) for t in range(4)]
for x in wb_all[13:16]:
    a(x)
wb_loads = wb_all[8:13]
A_RES, A_B2 = 224, 232


def red_addrs():
    a('s_lshl_b32 s%d, s%d, 13' % (sA, sW))
    a('s_add_u32 s%d, s%d, %d' % (sA, sA, L.L_R2))
    a('v_add_u32 v248, s%d, v1' % sA)
    a('s_and_b32 s%d, s%d, 1' % (sA, sW))
    a('s_lshl_b32 s%d, s%d, 11' % (sA, sA))
    a('s_lshr_b32 s%d, s%d, 1' % (sB, sW))
    a('s_lshl_b32 s%d, s%d, 12' % (sB, sB))
    a('s_add_u32 s%d, s%d, s%d' % (sA, sA, sB))
    a('s_add_u32 s%d, s%d, %d' % (sA, sA, L.L_R2))
    a('v_add_u32 v249, s%d, v1' % sA)


def publish_setup(xbase, sbase, fbase, per_pair, fsh):
    owner_index()
    a('s_mul_i32 s%d, s%d, 14' % (sCc, sB))
    a('s_add_u32 s%d, s%d, s%d' % (sCc, sCc, sA))
    a('s_lshl_b32 s%d, s%d, 10' % (sPX, sCc))
    a('s_lshl_b32 s%d, s%d, 7' % (sPS, sCc))
    a('s_lshl_b32 s%d, s%d, %d' % (sPF, sB, fsh))
    a('s_add_u32 s%d, s%d, s%d' % (sPF, sPF, sA))
    a('s_lshl_b32 s%d, s%d, 2' % (sPF, sPF))
    for dst, arr in ((sPX, xbase), (sPS, sbase), (sPF, fbase)):
        if per_pair:
            pair_base(sD, arr)
            a('s_add_u32 s%d, s%d, s%d' % (dst, dst, sD))
        else:
            a('s_add_u32 s%d, s%d, %d' % (dst, dst, arr))
    a('s_add_u32 s%d, s%d, %d' % (sPX2, sPX, 2 * 14336))


def owner_index():
    a('s_lshr_b32 s%d, s%d, 1' % (sB, sW))
    a('s_lshl_b32 s%d, s%d, 2' % (sCc, sG))
    a('s_add_u32 s%d, s%d, s%d' % (sB, sB, sCc))
    a('s_and_b32 s%d, s%d, 1' % (sA, sW))
    a('s_lshl_b32 s%d, s%d, 1' % (sCc, sJ))
    a('s_add_u32 s%d, s%d, s%d' % (sA, sA, sCc))


a('s_cmp_eq_u32 s%d, 0' % sPAIR)
a('s_cbranch_scc0 L_a_nores')
owner_index()
a('s_mul_i32 s%d, s%d, 14' % (sB, sB))
a('s_add_u32 s%d, s%d, s%d' % (sB, sB, sA))
a('s_lshl_b32 s%d, s%d, 10' % (sB, sB))
a('s_add_u32 s%d, s%d, %d' % (sB, sB, L.XA[0]))
a('buffer_load_dwordx4 %s, v1, %s, s%d offen sc1' % (ar(A_RES), srd(S_WS), sB))
a('s_add_u32 s%d, s%d, %d' % (sB, sB, 2 * 14336))
a('buffer_load_dwordx4 %s, v1, %s, s%d offen sc1' % (ar(A_RES + 4), srd(S_WS), sB))
build_srd(S_TMP, P_B2, 896)
a('s_lshl_b32 s%d, s%d, 6' % (sB, sA))
a('v_lshlrev_b32 v240, 3, v%d' % V_G)
a('buffer_load_dwordx2 v[228:229], v240, %s, s%d offen' % (srd(S_TMP), sB))
a('buffer_load_dwordx2 v[230:231], v240, %s, s%d offen offset:32' % (srd(S_TMP), sB))
a.label('L_a_nores')
CSQ = WBUF[0]
a('s_mul_i32 s%d, s%d, 384' % (sA, sW))
a('s_add_u32 s%d, s%d, %d' % (sA, sA, L.L_STA))
a('v_lshl_add_u32 v246, v%d, 2, s%d' % (V_TOK, sA))
a('v_lshl_add_u32 v247, v%d, 4, s%d' % (V_G, sA))
a('s_mov_b64 exec, 0xffff')
for t in range(3):
    a('ds_write_b32 v246, v%d offset:%d' % (SM + t, 128 * t))
    a('ds_write_b32 v246, v%d offset:%d' % (SR + t, 128 * t + 64))
a('s_mov_b64 exec, -1')
MROW, RROW = 114, 126
a('s_waitcnt lgkmcnt(0)')
for t in range(3):
    a('ds_read_b128 %s, v247 offset:%d' % (vr(MROW + 4 * t), 128 * t))
    a('ds_read_b128 %s, v247 offset:%d' % (vr(RROW + 4 * t), 128 * t + 64))
QF, KF, VF = 140, 148, 160


def pk(op, dst, srcs, neg=None):
    ops, lo, hi = [], [], []
    for x in srcs:
        if isinstance(x, tuple):
            ops.append(vr(x[1] & ~1, 2))
            lo.append(x[1] & 1)
            hi.append(x[1] & 1)
        else:
            ops.append(vr(x, 2))
            lo.append(0)
            hi.append(1)
    t = '%s %s, %s op_sel:[%s] op_sel_hi:[%s]' % (op, vr(dst, 2), ', '.join(ops), ','.join(map(str, lo)), ','.join(map(str, hi)))
    if neg is not None:
        m = ','.join('1' if k == neg else '0' for k in range(len(srcs)))
        t += ' neg_lo:[%s] neg_hi:[%s]' % (m, m)
    return t


for t in range(2):
    for hf in range(2):
        r = AQ + (t * 2 + hf) * 4
        for i in (0, 2):
            a(pk('v_pk_fma_f32', r + i, [('b', SM + t + 1), CSQ + 4 * hf + i, r + i], 0))
        for p in range(2):
            a('v_cvt_pk_bf16_f32 v%d, v%d, v%d' % (QF + 4 * t + 2 * hf + p, r + 2 * p, r + 2 * p + 1))
        a(wb_all[2 * t + hf])
for t in range(2):
    for hf in range(2):
        r = AK + (t * 2 + hf) * 4
        for i in (0, 2):
            a(pk('v_pk_fma_f32', r + i, [('b', SM + t + 1), CSQ + 8 + 4 * hf + i, r + i], 0))
        for p in range(2):
            a('v_cvt_pk_bf16_f32 v%d, v%d, v%d' % (KF + 4 * (t + 1) + 2 * hf + p, r + 2 * p, r + 2 * p + 1))
        a(wb_all[4 + 2 * t + hf])
L_E, L_HX = L.L_R2 + 16384, L.L_R2 + 26624
a('s_lshl_b32 s%d, s%d, 11' % (sA, sW))
a('s_add_u32 s%d, s%d, %d' % (sA, sA, L_E))
a('v_add_u32 v246, s%d, v1' % sA)
a('s_lshl_b32 s%d, s%d, 10' % (sA, sW))
a('s_add_u32 s%d, s%d, %d' % (sA, sA, L_HX))
a('v_add_u32 v247, s%d, v1' % sA)
a('s_waitcnt lgkmcnt(0)')
for t in range(2):
    for d in range(2):
        r = AV + (t * 2 + d) * 4
        for i in (0, 2):
            a(pk('v_pk_fma_f32', r + i, [MROW + 4 * (t + 1) + i, ('b', CSQ + 16 + d), r + i], 0))
        for p in range(2):
            a('v_cvt_pk_bf16_f32 v%d, v%d, v%d' % (VF + 6 * d + 2 * (t + 1) + p, r + 2 * p, r + 2 * p + 1))
a('ds_write_b128 v246, %s offset:2048' % vr(KF + 8))
a('ds_write_b64 v246, %s offset:3072' % vr(VF + 4, 2))
a('ds_write_b64 v246, %s offset:3080' % vr(VF + 10, 2))
a('ds_write_b128 v247, %s' % vr(HACC))
pair_base(sA, L.O)
a('s_lshl_b32 s%d, s%d, 4' % (sB, sGT))
a('s_add_u32 s%d, s%d, s%d' % (sB, sB, sC))
a('s_lshl_b32 s%d, s%d, 10' % (sB, sB))
a('s_add_u32 s32, s%d, s%d' % (sA, sB))
a('s_add_u32 s33, s32, 16384')
stamp2()
a('s_waitcnt lgkmcnt(0)')
a('s_barrier')
stamp2()
SS = 172
a('s_cmp_eq_u32 s%d, 0' % sW)
a('s_cbranch_scc1 L_a_halo')
a('ds_read_b128 %s, v246' % vr(KF))
a('ds_read_b64 %s, v246 offset:1024' % vr(VF, 2))
a('ds_read_b64 %s, v246 offset:1032' % vr(VF + 6, 2))
a('s_waitcnt lgkmcnt(0)')
a('s_branch L_a_prev')
a.label('L_a_halo')
a('v_add_u32 v247, %d, v1' % L_HX)
for p in range(4):
    a('ds_read_b128 %s, v247 offset:%d' % (vr(SS + 4 * p), 1024 * p))
a('s_waitcnt lgkmcnt(0)')
for hf in range(2):
    r = SS + 4 * hf
    for i in (0, 2):
        a(pk('v_pk_fma_f32', r + i, [('b', SM), CSQ + 8 + 4 * hf + i, r + i], 0))
    for p in range(2):
        a('v_cvt_pk_bf16_f32 v%d, v%d, v%d' % (KF + 2 * hf + p, r + 2 * p, r + 2 * p + 1))
for d in range(2):
    r = SS + 8 + 4 * d
    for i in (0, 2):
        a(pk('v_pk_fma_f32', r + i, [MROW + i, ('b', CSQ + 16 + d), r + i], 0))
    for p in range(2):
        a('v_cvt_pk_bf16_f32 v%d, v%d, v%d' % (VF + 6 * d + p, r + 2 * p, r + 2 * p + 1))
a.label('L_a_prev')
a('s_nop 1')
for t in range(2):
    a('%s %s, %s, %s, 0' % (MFMA, vr(SS + 8 * t), vr(KF + 4 * t), vr(QF + 4 * t)))
    a('%s %s, %s, %s, 0' % (MFMA, vr(SS + 8 * t + 4), vr(KF + 4 * t + 4), vr(QF + 4 * t)))
SCALE = (28.0 ** -0.5) * 1.4426950408889634
MX, CC, LS, TMPR = 190, 192, 194, 196
PF = 200
SUMT = [(224, 226), (232, 188)]
a('v_mov_b32 v198, 0xff800000')
seq = [[], []]
for t in range(2):
    s_ = SS + 8 * t
    q = seq[t]
    rr = lambda e: RROW + 4 * (t + (e >> 2)) + (e & 3)
    for e in range(0, 8, 2):
        q.append(pk('v_pk_mul_f32', s_ + e, [s_ + e, rr(e)]))
    for e in range(8):
        mk = (sM0 if t == 0 else sM1) + 2 * e if e < 4 else sM2 + 2 * (e - 4)
        q.append('v_cndmask_b32 v%d, v198, v%d, %s' % (s_ + e, s_ + e, sp(mk)))
    q.append('v_max3_f32 v%d, v%d, v%d, v%d' % (MX + t, s_, s_ + 1, s_ + 2))
    q.append('v_max3_f32 v%d, v%d, v%d, v%d' % (MX + t, MX + t, s_ + 3, s_ + 4))
    q.append('v_max3_f32 v%d, v%d, v%d, v%d' % (MX + t, MX + t, s_ + 5, s_ + 6))
    q.append('v_max_f32 v%d, v%d, v%d' % (MX + t, MX + t, s_ + 7))
    q += xg_reduce(MX + t, TMPR + t, 'v_max_f32')
    q.append('v_mul_f32 v%d, %s, v%d' % (CC + t, f2h(SCALE), SR + t + 1))
    q.append('v_mul_f32 v%d, v%d, v%d' % (MX + t, MX + t, CC + t))
    for e in range(0, 8, 2):
        q.append(pk('v_pk_fma_f32', s_ + e, [s_ + e, ('b', CC + t), ('b', MX + t)], 2))
    for e in range(8):
        q.append('v_exp_f32 v%d, v%d' % (s_ + e, s_ + e))
    u_, u2 = SUMT[t]
    q.append(pk('v_pk_add_f32', u_, [s_, s_ + 2]))
    q.append(pk('v_pk_add_f32', u2, [s_ + 4, s_ + 6]))
    q.append(pk('v_pk_add_f32', u_, [u_, u2]))
    q.append('v_add_f32 v%d, v%d, v%d' % (LS + t, u_, u_ + 1))
    q += xg_reduce(LS + t, TMPR + t)
    q.append('v_rcp_f32 v%d, v%d' % (LS + t, LS + t))
    for e in range(0, 8, 2):
        q.append(pk('v_pk_mul_f32', s_ + e, [s_ + e, rr(e)]))
    for p in range(4):
        q.append('v_cvt_pk_bf16_f32 v%d, v%d, v%d' % (PF + 4 * t + p, s_ + 2 * p, s_ + 2 * p + 1))
merged = [z for xy in zip(*seq) for z in xy]
gap = len(merged) // (len(wb_loads) + 1)
for k, x in enumerate(merged):
    a(x)
    if k % gap == gap - 1 and wb_loads:
        a(wb_loads.pop(0))
assert not wb_loads
stamp2()
OO = 208
for t in range(2):
    for d in range(2):
        a('%s %s, %s, %s, 0' % (MFMA, vr(OO + 8 * t + 4 * d), vr(VF + 6 * d + 2 * t), vr(PF + 4 * t)))
for t in range(2):
    for e in range(0, 8, 2):
        a(pk('v_pk_mul_f32', OO + 8 * t + e, [OO + 8 * t + e, ('b', LS + t)]))
    for p in range(4):
        a('v_cvt_pk_bf16_f32 v%d, v%d, v%d' % (PF + 4 * t + p, OO + 8 * t + 2 * p, OO + 8 * t + 2 * p + 1))
    store('buffer_store_dwordx4 %s, v1, %s, s%d offen' % (vr(PF + 4 * t), srd(S_WS), 32 + t), sFD)
o_mark = a.vm_mark()
stamp2()
pair_base(sA, L.FA)
a('s_lshl_b32 s%d, s%d, 4' % (sB, sGT))
a('s_add_u32 s%d, s%d, s%d' % (sB, sB, sC))
a('s_lshl_b32 s%d, s%d, 2' % (sB, sB))
a('s_add_u32 s%d, s%d, s%d' % (sA, sA, sB))
a('v_lshlrev_b32 v241, 6, v0')
a('v_add_u32 v241, s%d, v241' % sA)
pair_base(sA, L.FA)
a('s_lshl_b32 s%d, s%d, 8' % (sB, sG))
a('s_add_u32 s%d, s%d, s%d' % (sA, sA, sB))
a('v_lshl_add_u32 v240, v0, 2, s%d' % sA)
a('s_lshl_b32 s%d, s%d, 2' % (sB, sW))
a('s_lshl_b32 s%d, 0x000f000f, s%d' % (sMK, sB))
a('s_mov_b32 s%d, s%d' % (sMK + 1, sMK))
red_addrs()
publish_setup(L.XB, L.SB, L.FB, True, 4)
a('s_mov_b32 s%d, s%d' % (sPC, sFD))
a('s_mov_b32 s%d, s%d' % (sPFC, sFAST))
pair_base(sA, L.O)
a('s_lshl_b32 s%d, s%d, 6' % (sB, sG))
a('s_lshl_b32 s%d, s%d, 2' % (sCc, sW))
a('s_add_u32 s%d, s%d, s%d' % (sB, sB, sCc))
a('s_lshl_b32 s%d, s%d, 10' % (sB, sB))
a('s_add_u32 s20, s%d, s%d' % (sA, sB))
for t in range(1, 4):
    a('s_add_u32 s%d, s20, %d' % (20 + t, 16384 * t))
a.wait_vm(o_mark)
a('s_mov_b64 exec, 3')
store('buffer_store_dword v%d, v241, %s, 0 offen' % (V_T, srd(S_WS)), sFAST)
a('s_mov_b64 exec, -1')
stamp()
a('s_cmp_eq_u32 s%d, 7' % sJ)
a('s_cbranch_scc1 L_next_pair')


def wd_bases():
    a('s_lshl_b32 s%d, s%d, 2' % (sA, sJ))
    a('s_mul_i32 s%d, s%d, %d' % (sA, sA, 56 * 1024))
    a('s_mul_i32 s%d, s%d, %d' % (sB, sW, 14 * 1024))
    a('s_add_u32 s%d, s%d, s%d' % (sA, sA, sB))
    a('s_add_u32 s%d, s%d, %d' % (sO, sA, L.WD))
    quarter_offsets(4, 56 * 1024)


def wd_load(fi):
    kk, t = fi >> 2, fi & 3
    return ('buffer_load_dwordx4 %s, v1, %s, s%d offen offset:%d sc1' %
            (ar(4 * fi), srd(S_WS), sO + 4 * t + (kk >> 2), 1024 * (kk & 3)))


WD_CH = [(0, 12), (12, 56)]
BO, BACC, BRD, BTMP = 66, 130, 194, 226
a('s_cmp_eq_u32 s%d, 0' % sPAIR)
a('s_cbranch_scc0 L_b_start')
for k in range(4):
    a('v_lshlrev_b32 v236, 16, v%d' % (228 + k))
    a('v_and_b32 v237, 0xffff0000, v%d' % (228 + k))
    a('v_accvgpr_write_b32 a%d, v236' % (A_B2 + 2 * k))
    a('v_accvgpr_write_b32 a%d, v237' % (A_B2 + 2 * k + 1))
wd_bases()
for fi in range(*WD_CH[0]):
    a(wd_load(fi))
a.label('L_b_start')
CWW = 66
sCI = 41
a('s_lshr_b32 s%d, s%d, 3' % (sA, sC))
a('s_mul_i32 s%d, s%d, 7' % (sA, sA))
a('s_add_u32 s%d, s%d, s%d' % (sCI, sA, sJ))
a('s_lshl_b32 s%d, s%d, 3' % (sA, sCI))
a('s_lshl_b32 s%d, s%d, 1' % (sB, sW))
a('s_add_u32 s%d, s%d, s%d' % (sA, sA, sB))
a('s_mul_i32 s%d, s%d, %d' % (sB, sA, 14 * 1024))
a('s_add_u32 s%d, s%d, %d' % (sO, sB, L.WC))
quarter_offsets(2, 14 * 1024)


def c_wload(idx):
    u, k = idx >> 1, idx & 1
    return ('buffer_load_dwordx4 %s, v1, %s, s%d offen offset:%d sc1' %
            (vr(CWW + 4 * idx), srd(S_WS), sO + 4 * k + (u >> 2), 1024 * (u & 3)))


def red_writes(acc, tile):
    return ['ds_write_b128 v248, %s offset:%d' % (vr(acc + 4 * t), (tile >> 1) * 32768 + (tile & 1) * 4096 + t * 1024)
            for t in range(4)]


def red_reads(st, rd):
    return ['ds_read_b128 %s, v249 offset:%d' % (vr(rd + (b * 2 + k) * 4), st * 32768 + b * 8192 + k * 1024)
            for b in range(4) for k in range(2)]


def add8(dst, x, y, packed):
    if packed:
        return ['v_pk_add_f32 %s, %s, %s' % (vr(dst + e, 2), vr(x + e, 2), vr(y + e, 2)) for e in range(0, 8, 2)]
    return ['v_add_f32 v%d, v%d, v%d' % (dst + e, x + e, y + e) for e in range(8)]


def finish_pre(st, is_d, tmp):
    res = A_RES + 4 * st
    o = ['v_accvgpr_read_b32 v%d, a%d' % (tmp + 8 + p, res + p) for p in range(4)]
    for p in range(4):
        o += ['v_lshlrev_b32 v%d, 16, v%d' % (tmp + 2 * p, tmp + 8 + p),
              'v_and_b32 v%d, 0xffff0000, v%d' % (tmp + 2 * p + 1, tmp + 8 + p)]
    if is_d:
        o += ['v_accvgpr_read_b32 v%d, a%d' % (tmp + 8 + e, A_B2 + e) for e in range(8)]
        o += ['v_add_f32 v%d, v%d, v%d' % (tmp + e, tmp + e, tmp + 8 + e) for e in range(8)]
    return o


def finish_sum(st, rd, tmp, pk, packed):
    o = add8(rd, rd, rd + 8, packed) + add8(rd + 16, rd + 16, rd + 24, packed) + add8(rd, rd, rd + 16, packed)
    o += add8(tmp, tmp, rd, packed)
    o += ['v_cvt_pk_bf16_f32 v%d, v%d, v%d' % (pk + p, tmp + 2 * p, tmp + 2 * p + 1) for p in range(4)]
    o += ['v_accvgpr_write_b32 a%d, v%d' % (A_RES + 4 * st + p, pk + p) for p in range(4)]
    return o


def owner_stats(tmp, s1, t):
    a('v_pk_add_f32 %s, %s, %s' % (vr(t, 2), vr(tmp, 2), vr(tmp + 2, 2)))
    a('v_pk_add_f32 %s, %s, %s' % (vr(t + 2, 2), vr(tmp + 4, 2), vr(tmp + 6, 2)))
    a('v_pk_add_f32 %s, %s, %s' % (vr(t, 2), vr(t, 2), vr(t + 2, 2)))
    a('v_add_f32 v%d, v%d, v%d' % (s1, t, t + 1))
    a('v_pk_mul_f32 %s, %s, %s' % (vr(t, 2), vr(tmp, 2), vr(tmp, 2)))
    for e in (2, 4, 6):
        a('v_pk_fma_f32 %s, %s, %s, %s' % (vr(t, 2), vr(tmp + e, 2), vr(tmp + e, 2), vr(t, 2)))
    a('v_add_f32 v%d, v%d, v%d' % (s1 + 1, t, t + 1))
    for x, y in zip(xg_reduce(s1, t), xg_reduce(s1 + 1, t + 1)):
        a(x)
        a(y)


def publish_data(st, pk):
    store('buffer_store_dwordx4 %s, v1, %s, s%d offen offset:0' % (vr(pk), srd(S_WS), sPX if st == 0 else sPX2), sPC)


def publish_stats(tmps, t, s1):
    a('v_and_b32 v%d, 15, v0' % V_TOK)
    a('v_lshlrev_b32 v%d, 3, v%d' % (t + 4, V_TOK))
    for st in range(2):
        owner_stats(tmps[st], s1 + 2 * st, t)
    a('s_mov_b64 exec, 0xffff')
    store('buffer_store_dwordx2 %s, v%d, %s, s%d offen' % (vr(s1, 2), t + 4, srd(S_WS), sPS), sPC)
    a('s_add_u32 s%d, s%d, %d' % (sPS, sPS, 2 * 1792))
    store('buffer_store_dwordx2 %s, v%d, %s, s%d offen' % (vr(s1 + 2, 2), t + 4, srd(S_WS), sPS), sPC)
    a('s_mov_b64 exec, -1')


def publish_flags(lsh, between=()):
    a('v_lshlrev_b32 v241, %d, v0' % lsh)
    a('v_add_u32 v241, s%d, v241' % sPF)
    set_flags(241, 2, sPFC, V_T, between)


def run_tiles(tile_items, extras):
    for tile in range(4):
        if tile and '--diag3' in sys.argv:
            stamp()
        items = tile_items(tile)
        ex = list(extras.get(tile, []))
        free = [k for k, it in enumerate(items) if k >= 3 and not it[2]]
        per = -(-len(ex) // max(1, len(free))) if ex else 0
        for k, (pre, m, post) in enumerate(items):
            for x in pre:
                x()
            a(m)
            if post:
                post()
            elif k >= 3:
                for _ in range(per):
                    if ex:
                        x = ex.pop(0)
                        if callable(x):
                            x()
                        else:
                            a(x)
        assert not ex


poll(240)
a('s_barrier')
stamp()


def b_oload(tile, i):
    return 'buffer_load_dwordx4 %s, v1, %s, s%d offen offset:%d sc1' % (vr(BO + (tile * 4 + i) * 4), srd(S_WS), 20 + tile, 1024 * i)


om = {}
for tile in range(2):
    for i in range(4):
        a(b_oload(tile, i))
        om[(tile, i)] = a.vm_mark()


def b_tile(tile):
    items = []
    for i in range(4):
        for t in range(4):
            r = BACC + (tile * 4 + t) * 4
            pre = [(lambda tl=tile, ii=i: a.wait_vm(om[(tl, ii)]))] if t == 0 else []
            post = None
            if tile < 2 and t == 1:
                def post(tl=tile + 2, ii=i):
                    a(b_oload(tl, ii))
                    om[(tl, ii)] = a.vm_mark()
            if tile >= 2 and t == 1:
                def post(idx=4 * (tile - 2) + i):
                    a(c_wload(idx))
            items.append((pre, '%s %s, %s, %s, %s' % (MFMA, vr(r), vr(BW + (i * 4 + t) * 4), vr(BO + (tile * 4 + i) * 4),
                                                      '0' if i == 0 else vr(r)), post))
    return items


BT0, BT1, BPK = 226, 2, 18
run_tiles(b_tile, {1: red_writes(BACC, 0), 2: red_writes(BACC + 16, 1), 3: red_writes(BACC + 32, 2)})
stamp2()
for x in red_writes(BACC + 48, 3):
    a(x)
for x in finish_pre(0, False, BT0) + finish_pre(1, False, BT1):
    a(x)
a('s_waitcnt lgkmcnt(0)')
a('s_barrier')
stamp2()
BRD1 = 162
for x in red_reads(0, BRD) + red_reads(1, BRD1):
    a(x)
a('s_waitcnt lgkmcnt(8)')
for x in finish_sum(0, BRD, BT0, BPK, True):
    a(x)
publish_data(0, BPK)
a('s_waitcnt lgkmcnt(0)')
for x in finish_sum(1, BRD1, BT1, BPK + 4, True):
    a(x)
publish_data(1, BPK + 4)
stamp2()
publish_stats([BT0, BT1], 36, 32)
b_mark = a.vm_mark()
a('v_lshlrev_b32 v236, 7, v0')
a('v_add_u32 v236, s%d, v236' % sPF)
for i in range(8, 16):
    a(c_wload(i))
CA = [2, 10]
XF, NXF = 18, 8
GTMP, GH = 50, 58
CCS, CB1, CB1R = 178, 186, 194
CSTR = 198
CMR = 214
VGA = 218
a('v_lshrrev_b32 v%d, 4, v0' % V_G)
a('v_and_b32 v%d, 15, v0' % V_TOK)
pair_base(sA, L.FB)
a('s_lshl_b32 s%d, s%d, 9' % (sB, sS))
a('s_add_u32 s%d, s%d, s%d' % (sA, sA, sB))
a('v_lshl_add_u32 v240, v0, 2, s%d' % sA)
a('s_mov_b32 s%d, 0x3fff3fff' % sMK)
a('s_mov_b32 s%d, 0x3fff3fff' % (sMK + 1))
pair_base(20, L.XB)
a('s_mul_i32 s%d, s%d, %d' % (sB, sS, 8 * 14336))
a('s_add_u32 s20, s20, s%d' % sB)
a('s_lshl_b32 s%d, s%d, 12' % (sB, sW))
a('s_add_u32 s20, s20, s%d' % sB)
a('s_add_u32 s21, s%d, %d' % (sB, L.L_R2))
pair_base(22, L.SB)
a('s_lshl_b32 s%d, s%d, 3' % (sB, sS))
a('s_add_u32 s%d, s%d, s%d' % (sB, sB, sW))
a('s_mul_i32 s%d, s%d, 1792' % (sB, sB))
a('s_add_u32 s22, s22, s%d' % sB)
a('s_add_u32 s23, s22, %d' % (4 * 1792))
pair_base(32, L.H)
a('s_mul_i32 s%d, s%d, %d' % (sB, sS, 8 * 56 * 1024))
a('s_add_u32 s32, s32, s%d' % sB)
a('s_lshl_b32 s%d, s%d, 2' % (sB, sCI))
a('s_add_u32 s%d, s%d, s%d' % (sB, sB, sW))
a('s_lshl_b32 s%d, s%d, 10' % (sCc, sB))
a('s_add_u32 s32, s32, s%d' % sCc)
pair_base(33, L.FC)
a('s_lshl_b32 s%d, s%d, 11' % (sCc, sS))
a('s_add_u32 s33, s33, s%d' % sCc)
a('s_lshl_b32 s%d, s%d, 2' % (sB, sB))
a('s_add_u32 s33, s33, s%d' % sB)
a('v_mov_b32 v241, s33')
a('v_mov_b32 v242, 0x%x' % INV)
a('v_cmp_eq_u32 vcc, 0, v0')
a('v_cndmask_b32 v241, v242, v241, vcc')
a('v_lshlrev_b32 v238, 3, v%d' % V_TOK)
a('v_lshl_add_u32 v238, v%d, 7, v238' % V_G)
a('v_mov_b32 v242, 0x%x' % INV)
a('v_cmp_lt_u32 vcc, 1, v%d' % V_G)
a('v_cndmask_b32 v239, 0, v242, vcc')
a('v_or_b32 v239, v239, v238')
a('v_add_u32 v252, %d, v1' % L.L_R2)
a('v_lshlrev_b32 v246, 3, v%d' % V_TOK)
a('v_add_u32 v246, %d, v246' % L.L_STC)
GA = 2.0 * 0.7978845608028654 * 1.4426950408889634
GB = GA * 0.044715
a('v_mov_b32 v%d, %s' % (VGA, f2h(-GA)))
a('v_mov_b32 v%d, %s' % (VGA + 1, f2h(-GA)))
a('s_mov_b32 s34, %s' % f2h(-GB))
a('s_mov_b32 s35, %s' % f2h(-GB))
wd_bases_hi = True
a.wait_vm(b_mark)
a('s_mov_b64 exec, 3')
store('buffer_store_dword v%d, v236, %s, 0 offen' % (V_T, srd(S_WS)), sPFC)
a('s_mov_b64 exec, -1')
stamp()

for i in range(16, 22):
    a(c_wload(i))
a('s_lshl_b32 s%d, s%d, 3' % (sA, sCI))
a('s_lshl_b32 s%d, s%d, 1' % (sB, sW))
a('s_add_u32 s%d, s%d, s%d' % (sA, sA, sB))
a('s_lshl_b32 s24, s%d, 5' % sA)
a('v_lshlrev_b32 v248, 3, v%d' % V_G)
for k in range(2):
    a('buffer_load_dwordx2 %s, v248, %s, s24 offen offset:%d' % (vr(CB1R + 2 * k, 2), srd(S_B1), 32 * k))
poll(240, 256)
stamp()


TORD = [0, 4, 1, 5, 2, 6, 3, 7]


def c_dma_setup(t):
    return ['s_add_u32 s36, s20, %d' % (TORD[t] * 14336), 's_add_u32 m0, s21, %d' % ((t & 3) * 16384)]


def c_dma(t, i):
    return 'buffer_load_dwordx4 v1, %s, s36 offen offset:%d sc1 lds' % (srd(S_WS), 1024 * i)


dm = {}
for x in c_dma_setup(0) + [c_dma(0, i) for i in range(4)]:
    a(x)
dm[0] = a.vm_mark()
wlate = {}
for i in range(22, 28):
    a(c_wload(i))
    wlate[i >> 1] = a.vm_mark()
for tt in range(2):
    for i in range(4):
        a('buffer_load_dwordx2 %s, v%d, %s, s%d offen offset:%d sc1' %
          (vr(CSTR + 8 * tt + 2 * i, 2), 239 if i == 3 else 238, srd(S_WS), 22 + tt, 512 * i))
amark['cst'] = a.vm_mark()
for x in c_dma_setup(1) + [c_dma(1, i) for i in range(4)]:
    a(x)
dm[1] = a.vm_mark()
wd_bases()
t0_loads = []
b1_unpack = []
for k in range(2):
    for p in range(2):
        b1_unpack += ['v_lshlrev_b32 v%d, 16, v%d' % (CB1 + 4 * k + 2 * p, CB1R + 2 * k + p),
                      'v_and_b32 v%d, 0xffff0000, v%d' % (CB1 + 4 * k + 2 * p + 1, CB1R + 2 * k + p)]
a.wait_vm(dm[0])
a('s_barrier')
stamp()


def c_xread(t, u):
    n = t * 14 + u
    return 'ds_read_b128 %s, v252 offset:%d' % (vr(XF + 4 * (n % NXF)), (t & 3) * 16384 + u * 1024)


def gelu_pre(t):
    z, m = CA[t & 1], CMR + 2 * (t & 1)
    P = range(0, 8, 2)
    o = ['v_pk_fma_f32 %s, %s, %s, %s op_sel_hi:[1,0,1] neg_lo:[0,1,0] neg_hi:[0,1,0]' % (vr(z + e, 2), vr(CCS + e, 2), vr(m, 2), vr(z + e, 2)) for e in P]
    o += ['v_pk_fma_f32 %s, %s, %s, %s op_sel:[0,1,0] op_sel_hi:[1,1,1]' % (vr(z + e, 2), vr(z + e, 2), vr(m, 2), vr(CB1 + e, 2)) for e in P]
    o += ['v_pk_mul_f32 %s, %s, %s' % (vr(GTMP + e, 2), vr(z + e, 2), vr(z + e, 2)) for e in P]
    o += ['v_pk_fma_f32 %s, %s, s[34:35], %s' % (vr(GTMP + e, 2), vr(GTMP + e, 2), vr(VGA, 2)) for e in P]
    o += ['v_pk_mul_f32 %s, %s, %s' % (vr(GTMP + e, 2), vr(GTMP + e, 2), vr(z + e, 2)) for e in P]
    return o


def gelu_mid():
    o = {}
    for e in range(8):
        o.setdefault(2 * e, []).append('v_exp_f32 v%d, v%d' % (GTMP + e, GTMP + e))
        o.setdefault(2 * e + 3, []).append('v_add_f32 v%d, 1.0, v%d' % (GTMP + e, GTMP + e))
    for e in range(6):
        o.setdefault(16 + 2 * e, []).append('v_rcp_f32 v%d, v%d' % (GTMP + e, GTMP + e))
    o.setdefault(25, []).append('v_rcp_f32 v%d, v%d' % (GTMP + 6, GTMP + 6))
    o.setdefault(27, []).append('v_rcp_f32 v%d, v%d' % (GTMP + 7, GTMP + 7))
    return o


def gelu_post(t):
    z, h = CA[t & 1], GH + 4 * (t & 1)
    o = ['v_pk_mul_f32 %s, %s, %s' % (vr(GTMP + e, 2), vr(GTMP + e, 2), vr(z + e, 2)) for e in range(0, 8, 2)]
    o += ['v_cvt_pk_bf16_f32 v%d, v%d, v%d' % (h + p, GTMP + 2 * p, GTMP + 2 * p + 1) for p in range(4)]
    return o


def gelu_packed(t):
    z, m, h = CA[t & 1], CMR + 2 * (t & 1), GH + 4 * (t & 1)
    P = range(0, 8, 2)
    for e in P:
        a('v_pk_fma_f32 %s, %s, %s, %s op_sel_hi:[1,0,1] neg_lo:[0,1,0] neg_hi:[0,1,0]' % (vr(z + e, 2), vr(CCS + e, 2), vr(m, 2), vr(z + e, 2)))
    for e in P:
        a('v_pk_fma_f32 %s, %s, %s, %s op_sel:[0,1,0] op_sel_hi:[1,1,1]' % (vr(z + e, 2), vr(z + e, 2), vr(m, 2), vr(CB1 + e, 2)))
    for e in P:
        a('v_pk_mul_f32 %s, %s, %s' % (vr(GTMP + e, 2), vr(z + e, 2), vr(z + e, 2)))
    for e in P:
        a('v_pk_fma_f32 %s, %s, s[34:35], %s' % (vr(GTMP + e, 2), vr(GTMP + e, 2), vr(VGA, 2)))
    for e in P:
        a('v_pk_mul_f32 %s, %s, %s' % (vr(GTMP + e, 2), vr(GTMP + e, 2), vr(z + e, 2)))
    for e in range(8):
        a('v_exp_f32 v%d, v%d' % (GTMP + e, GTMP + e))
    for e in P:
        a('v_pk_add_f32 %s, %s, 1.0 op_sel_hi:[1,0]' % (vr(GTMP + e, 2), vr(GTMP + e, 2)))
    for e in range(8):
        a('v_rcp_f32 v%d, v%d' % (GTMP + e, GTMP + e))
    for e in P:
        a('v_pk_mul_f32 %s, %s, %s' % (vr(GTMP + e, 2), vr(GTMP + e, 2), vr(z + e, 2)))
    for p in range(4):
        a('v_cvt_pk_bf16_f32 v%d, v%d, v%d' % (h + p, GTMP + 2 * p, GTMP + 2 * p + 1))


hmk, fmk = {}, {}


def h_store(t):
    def f():
        a('s_add_u32 s24, s32, %d' % (TORD[t] * 56 * 1024))
        store('buffer_store_dwordx4 %s, v1, %s, s24 offen' % (vr(GH + 4 * (t & 1)), srd(S_WS)), sFH)
        hmk[t] = a.vm_mark()
    return f


def h_flag(t):
    def f():
        a.wait_vm(hmk[t])
        store('buffer_store_dword v%d, v241, %s, 0 offen offset:%d' % (V_T, srd(S_WS), 256 * TORD[t]), sFAST)
    return f


def wd_block(fis, wave):
    def f():
        skip = newlab('L_wd')
        a('s_cmp_eq_u32 s24, %d' % wave)
        a('s_cbranch_scc0 %s' % skip)
        for fi in fis:
            a(wd_load(fi))
            a.vm_issued -= 1
        a.label(skip)
    return f


cst_fill = []
for tt in range(2):
    r = CSTR + 8 * tt
    for c_ in range(2):
        cst_fill += ['v_add_f32 v%d, v%d, v%d' % (r + c_, r + c_, r + 2 + c_),
                     'v_add_f32 v%d, v%d, v%d' % (r + 4 + c_, r + 4 + c_, r + 6 + c_),
                     'v_add_f32 v%d, v%d, v%d' % (r + c_, r + c_, r + 4 + c_)]
    cst_fill += xg_reduce(r, r + 2) + xg_reduce(r + 1, r + 3) + stats_finish(r, r + 1, r + 2, True)
a('s_lshl_b32 s%d, s%d, 7' % (sA, sW))
a('v_add_u32 v247, s%d, v246' % sA)
cst_fill += ['ds_write_b64 v247, %s' % vr(CSTR, 2), 'ds_write_b64 v247, %s offset:512' % vr(CSTR + 8, 2)] + b1_unpack
LOOKX = 6


A_CCS = 244


DFIRST = [194, 198, 202, 206, 210, 220, 224, 228, 232]
hm = {}


def emit_c_loop(wd_list):
    pass0 = bool(wd_list)
    if not pass0:
        for e in range(8):
            a('v_accvgpr_read_b32 v%d, a%d' % (CCS + e, A_CCS + e))
    for u in range(LOOKX):
        a(c_xread(0, u))
    for t in range(8):
        nonvec = {}

        def put(k, x):
            nonvec.setdefault(k, []).append(x)
        for u in range(14):
            n = t * 14 + u
            m = n + LOOKX
            if m < 8 * 14:
                put(2 * u + 1, c_xread(m // 14, m % 14))
            if u % 2 == 1 and n + 1 < 8 * 14:
                put(2 * u + 1, 's_waitcnt lgkmcnt(%d)' % min(LOOKX - 2, 8 * 14 - 1 - (n + 2)))
        if t < 7:
            nonvec[14] = [('bar', t + 1)] + nonvec.get(14, [])
        if t + 2 < 8:
            su = c_dma_setup(t + 2)
            put(0, su[0])
            put(0, su[1])
            for i in range(4):
                put(2 + 2 * i, ('dma', t + 2, i))
        if t >= 3:
            put(20, ('call', h_flag(t - 3)))
        if t == 1:
            put(0, 's_add_u32 s22, s25, 12288')
        if t == 5:
            def issue_d0():
                amark['d0'] = early_issue(244, 243)
            put(22, ('call', issue_d0))
        if t == 6:
            put(2, ('call', lambda: early_check(244, 243, amark['d0'])))
        if t in (6, 7):
            for k, q in zip((4, 6, 8, 20, 22) if t == 6 else (2, 4, 6, 8), range(0, 5) if t == 6 else range(5, 9)):
                put(k, ('h0', q))
        if t < 7:
            for k in (10, 12, 16, 18, 22, 24, 26):
                if wd_list:
                    put(k, wd_load(wd_list.pop(0)))
        if t > 0:
            put(17, 'ds_read_b64 %s, v246 offset:%d' % (vr(CMR + 2 * (t & 1), 2), 128 * TORD[t]))
        if t == 0:
            for k, it in enumerate(t0_loads):
                put(k, ('t0', it))
        valu = gelu_mid() if t >= 1 else {}
        if t >= 2:
            for x in gelu_post(t - 2):
                a(x)
            h_store(t - 2)()
        if t >= 1:
            for x in gelu_pre(t - 1):
                a(x)
        fill = list(cst_fill) if t == 0 else []
        first = 8
        fi = 0
        for k in range(28):
            u, kk = k >> 1, k & 1
            n = t * 14 + u
            if t == 0 and k == 0:
                a('s_waitcnt lgkmcnt(%d)' % (LOOKX - 2))
            if t == 0 and kk == 0 and u in wlate:
                a.wait_vm(wlate[u])
            if t == 0 and k == first:
                a.wait_vm(amark['cst'])
            r = CA[t & 1] + 4 * kk
            a('%s %s, %s, %s, %s' % (MFMA, vr(r), vr(CWW + 4 * (2 * u + kk)), vr(XF + 4 * (n % NXF)), '0' if u == 0 else vr(r)))
            if pass0 and t == 0:
                a('%s %s, %s, %s, %s' % (MFMA, vr(CCS + 4 * kk), vr(CWW + 4 * (2 * u + kk)), ar(A_ONES), '0' if u == 0 else vr(CCS + 4 * kk)))
            for it in nonvec.get(k, []):
                if isinstance(it, str):
                    a(it)
                elif it[0] == 'bar':
                    a.wait_vm(dm[it[1]])
                    a('s_barrier')
                elif it[0] == 'dma':
                    a(c_dma(it[1], it[2]))
                    dm[it[1]] = a.vm_mark()
                elif it[0] == 'call':
                    it[1]()
                elif it[0] == 'h0':
                    q = it[1]
                    a('buffer_load_dwordx4 %s, v1, %s, s%d offen offset:%d sc1' %
                      (vr(DFIRST[q] if q < 9 else 66 + 4 * q), srd(S_WS), (25, 27, 29, 22)[q >> 2], 1024 * (q & 3)))
                    hm[q] = a.vm_mark()
                elif it[0] == 't0':
                    if it[1][0] == 'w':
                        a(c_wload(it[1][1]))
                        wlate[it[1][1] >> 1] = a.vm_mark()
                    else:
                        a(it[1][1])
                        amark['cst'] = a.vm_mark()
            for x in valu.get(k, []):
                a(x)
            if fill and k >= first:
                want = -(-(len(fill)) * (k - first + 1) // (28 - first))
                while fi < want:
                    a(fill[fi])
                    fi += 1
        assert fi == len(fill)
        if t == 0:
            a('s_waitcnt lgkmcnt(0)')
            a('s_barrier')
            a('ds_read_b64 %s, v246 offset:0' % vr(CMR, 2))
            if pass0:
                for e in range(8):
                    a('v_accvgpr_write_b32 a%d, v%d' % (A_CCS + e, CCS + e))
            a('s_waitcnt lgkmcnt(0)')
    assert not wd_list


pair_base(sA, L.FC)
a('s_lshl_b32 s%d, s%d, 10' % (sB, sG))
a('s_add_u32 s%d, s%d, s%d' % (sA, sA, sB))
a('s_mul_i32 s%d, s%d, 56' % (sB, sW))
a('s_add_u32 s%d, s%d, s%d' % (sA, sA, sB))
a('v_lshl_add_u32 v243, v0, 2, s%d' % sA)
a('s_mov_b32 s%d, 0x3fff' % sMK2)
a('s_mov_b32 s%d, 0' % (sMK2 + 1))
pair_base(sA, L.H)
a('s_mul_i32 s%d, s%d, %d' % (sB, sG, 4 * 56 * 1024))
a('s_add_u32 s%d, s%d, s%d' % (sA, sA, sB))
a('s_mul_i32 s%d, s%d, %d' % (sB, sW, 14 * 1024))
a('s_add_u32 s25, s%d, s%d' % (sA, sB))
a('s_add_u32 s27, s25, 4096')
a('s_add_u32 s29, s25, 8192')
n_before = a.vm_issued
dm_init = dict(dm)
a('s_cmp_eq_u32 s%d, 0' % sPAIR)
a('s_cbranch_scc0 L_c_loop1')
emit_c_loop(list(range(*WD_CH[1])))
a('s_branch L_c_done')
a.label('L_c_loop1')
extra = a.vm_issued - n_before
a.vm_issued = n_before
dm.clear()
dm.update(dm_init)
emit_c_loop([])
a.label('L_c_done')
stamp()
DH, DACC, DRD = 66, 130, 194
DRING, DLOOK = 16, 10
red_addrs()
publish_setup(L.XA[1], L.SA[1], L.FX[1], False, 5)
a('s_and_b32 s%d, s%d, 1' % (sA, sG))
a('s_lshr_b32 s%d, s%d, 1' % (sB, sW))
a('s_and_b32 s%d, s%d, s%d' % (sA, sA, sB))
a('s_xor_b32 s%d, s%d, 1' % (sA, sA))
a('s_and_b32 s%d, s%d, s%d' % (sPC, sFD, sA))
a('s_mov_b32 s%d, s%d' % (sPFC, sFAST))
a('s_cmp_eq_u32 s%d, 0' % sA)
a('s_cselect_b32 s%d, 0, 0x%x' % (sCc, INV))
a('s_add_u32 s%d, s%d, 1' % (sA, sS))
a('s_lshl_b32 s%d, s%d, 5' % (sA, sA))
a('s_lshl_b32 s%d, s%d, 1' % (sB, sJ))
a('s_add_u32 s%d, s%d, s%d' % (sA, sA, sB))
a('s_and_b32 s%d, s%d, 1' % (sB, sW))
a('s_add_u32 s%d, s%d, s%d' % (sA, sA, sB))
a('s_lshl_b32 s%d, s%d, 2' % (sA, sA))
a('s_add_u32 s%d, s%d, %d' % (sA, sA, L.FH))
a('s_or_b32 s20, s%d, s%d' % (sA, sCc))
pair_base(sA, L.H)
a('s_mul_i32 s%d, s%d, %d' % (sB, sG, 4 * 56 * 1024))
a('s_add_u32 s%d, s%d, s%d' % (sA, sA, sB))
a('s_mul_i32 s%d, s%d, %d' % (sB, sW, 14 * 1024))
a('s_add_u32 s%d, s%d, s%d' % (sO, sA, sB))
quarter_offsets(4, 56 * 1024)
a('s_cmp_eq_u32 s%d, 0' % sPAIR)
a('s_cbranch_scc1 L_d_nout')
owner_index()
a('s_mul_i32 s%d, s%d, 14336' % (sPX, sB))
a('s_lshl_b32 s%d, s%d, 6' % (sA, sA))
a('s_add_u32 s%d, s%d, s%d' % (sPX, sPX, sA))
a('s_add_u32 s%d, s%d, %d' % (sPX2, sPX, 2 * 14336))
a.label('L_d_nout')
a('v_and_b32 v%d, 15, v0' % V_TOK)
a('v_lshrrev_b32 v%d, 4, v0' % V_G)
a('v_mul_u32_u24 v242, 896, v%d' % V_TOK)
a('v_lshl_add_u32 v242, v%d, 3, v242' % V_G)


def d_hload(q):
    tile, kk = divmod(q, 14)
    return ('buffer_load_dwordx4 %s, v1, %s, s%d offen offset:%d sc1' %
            (vr(d_reg(q)), srd(S_WS), sO + 4 * tile + (kk >> 2), 1024 * (kk & 3)))


def d_reg(q):
    return DFIRST[q] if q < len(DFIRST) else DH + (q % DRING) * 4


dmk = {}
for q in range(len(DFIRST), DLOOK):
    a(d_hload(q))
    hm[q] = a.vm_mark()
dmk[1] = early_issue(244, 243, 256)
stamp()
for x in gelu_post(6):
    a(x)
h_store(6)()
a('s_waitcnt lgkmcnt(0)')
gelu_packed(7)
h_flag(5)()
h_store(7)()
stamp()

a('s_barrier')
stamp()


def d_tile(tile):
    items = []
    for kk in range(14):
        q = tile * 14 + kk
        for t in range(4):
            r = DACC + (tile * 4 + t) * 4
            pre = [(lambda qq=q: a.wait_vm(hm[qq]))] if t == 0 else []
            if t == 0 and q in (6, 12):
                pre.append(h_flag({6: 6, 12: 7}[q]))
            post = None
            if t == 0 and q + DLOOK < 56:
                def post(qq=q + DLOOK):
                    if qq % 14 == 0:
                        early_check(244, 243, dmk[qq // 14], 256 * (qq // 14))
                    a(d_hload(qq))
                    hm[qq] = a.vm_mark()
                    if qq % 14 == 6 and qq // 14 < 3:
                        dmk[qq // 14 + 1] = early_issue(244, 243, 256 * (qq // 14 + 1))
            items.append((pre, '%s %s, %s, %s, %s' % (MFMA, vr(r), ar((kk * 4 + t) * 4), vr(d_reg(q)),
                                                      '0' if kk == 0 else vr(r)), post))
    return items


def d_out_store(st, pk):
    a('buffer_store_dwordx2 %s, v242, %s, s%d offen %s' % (vr(pk, 2), srd(S_OUT), sPX if st == 0 else sPX2, OUTSC))
    a('buffer_store_dwordx2 %s, v242, %s, s%d offen offset:32 %s' % (vr(pk + 2, 2), srd(S_OUT), sPX if st == 0 else sPX2, OUTSC))


def d_store(st, pk):
    fin, done = newlab('L_dfin'), newlab('L_ddone')
    a('s_cmp_eq_u32 s%d, 0' % sPAIR)
    a('s_cbranch_scc0 %s' % fin)
    publish_data(st, pk)
    a('s_branch %s' % done)
    a.label(fin)
    n = a.vm_issued
    d_out_store(st, pk)
    a.vm_issued = n
    a.label(done)


DT0, DT1, DPK, DSTT, DSTS = 226, 2, 18, 28, 36
stage0 = [lambda: (a('s_waitcnt lgkmcnt(0)'), a('s_barrier'))] + red_reads(0, DRD) + finish_pre(0, True, DT0)
stage0 += [lambda: a('s_waitcnt lgkmcnt(0)')] + finish_sum(0, DRD, DT0, DPK, False) + [lambda: d_store(0, DPK)]
run_tiles(d_tile, {1: red_writes(DACC, 0), 2: red_writes(DACC + 16, 1), 3: red_writes(DACC + 32, 2) + stage0})
stamp2()
for x in red_writes(DACC + 48, 3):
    a(x)
for x in finish_pre(1, True, DT1):
    a(x)
a('s_waitcnt lgkmcnt(0)')
a('s_barrier')
stamp2()
for x in red_reads(1, DRD):
    a(x)
a('s_waitcnt lgkmcnt(0)')
for x in finish_sum(1, DRD, DT1, DPK + 4, True):
    a(x)
d_store(1, DPK + 4)
stamp()
a('s_cmp_eq_u32 s%d, 0' % sPAIR)
a('s_cbranch_scc0 L_next_pair')
publish_stats([DT0, DT1], DSTT, DSTS)
FHMODE = ([x[5:] for x in sys.argv if x.startswith('--fh=')] + ['after'])[0]
a('v_mov_b32 v240, s20')
if FHMODE == 'before':
    a('s_waitcnt vmcnt(0)')
    a('s_mov_b64 exec, 1')
    a('buffer_store_dword v%d, v240, %s, 0 offen sc1' % (V_T, srd(S_WS)))
    a('s_mov_b64 exec, -1')
    a('v_lshlrev_b32 v241, 8, v0')
    a('v_add_u32 v241, s%d, v241' % sPF)
    a('s_mov_b64 exec, 3')
    store('buffer_store_dword v%d, v241, %s, 0 offen' % (V_T, srd(S_WS)), sPFC)
    a('s_mov_b64 exec, -1')
else:
    publish_flags(8)
    if FHMODE == 'wait':
        a('s_waitcnt vmcnt(0)')
    a('s_mov_b64 exec, 1')
    a('buffer_store_dword v%d, v240, %s, 0 offen sc1' % (V_T, srd(S_WS)))
    a('s_mov_b64 exec, -1')
a.label('L_next_pair')
stamp()
a('s_add_u32 s%d, s%d, 1' % (sPAIR, sPAIR))
a('s_cmp_lt_u32 s%d, 2' % sPAIR)
a('s_cbranch_scc1 L_pair')

a('s_cmp_eq_u32 s2, 0')
a('s_cbranch_scc0 L_noepoch')
a('s_cmp_eq_u32 s%d, 0' % sW)
a('s_cbranch_scc0 L_noepoch')
a('buffer_load_dword v2, off, %s, 0 sc1' % srd(S_WS))
a('s_waitcnt vmcnt(0)')
a('v_add_u32 v2, 1, v2')
a('s_mov_b64 exec, 1')
a('buffer_store_dword v2, off, %s, 0 sc1' % srd(S_WS))
a('s_mov_b64 exec, -1')
a.label('L_noepoch')
if PAD:
    a.label('L_padspin')
    a('s_memrealtime s[34:35]')
    a('s_waitcnt lgkmcnt(0)')
    a('s_sub_u32 s34, s34, s0')
    a('s_cmp_lt_u32 s34, %d' % PAD[0])
    a('s_cbranch_scc1 L_padspin')
if DBG:
    a('s_memtime s[32:33]')
    a('s_memrealtime s[34:35]')
    a('s_waitcnt lgkmcnt(0)')
    a('s_sub_u32 s32, s32, s26')
    a('s_sub_u32 s34, s34, s0')
    build_srd(S_TMP, P_DBG, 256)
    a('v_mov_b32 v2, s32')
    a('v_mov_b32 v3, s34')
    a('v_mov_b32 v4, s%d' % sFAST)
    a('v_mov_b32 v5, s%d' % sXCC)
    a('s_lshr_b32 s%d, s2, 6' % sA)
    a('s_lshl_b32 s%d, s%d, 4' % (sA, sA))
    a('s_and_b32 s%d, s2, 63' % sB)
    a('s_or_b32 s%d, s%d, s%d' % (sB, sB, sW))
    a('s_cmp_eq_u32 s%d, 0' % sB)
    a('s_cselect_b32 s%d, s%d, 0x%x' % (sA, sA, INV))
    a('v_mov_b32 v6, s%d' % sA)
    a('s_mov_b64 exec, 1')
    a('buffer_store_dwordx4 v[2:5], v6, %s, 0 offen' % srd(S_TMP))
    a('s_mov_b64 exec, -1')
if DIAG:
    stamp()
    a('s_mov_b32 s%d, 63' % sSTI)
    a('s_lshl_b64 exec, 1, s%d' % sSTI)
    a('v_mov_b32 v%d, s%d' % (V_STAMP, sERR))
    a('s_mov_b32 s%d, 62' % sSTI)
    a('s_lshl_b64 exec, 1, s%d' % sSTI)
    a('v_mov_b32 v%d, s%d' % (V_STAMP, sFAST))
    a('s_mov_b64 exec, -1')
    a('s_lshl_b32 s%d, s2, 2' % sA)
    a('s_add_u32 s%d, s%d, s%d' % (sA, sA, sW))
    a('s_lshl_b32 s%d, s%d, 8' % (sA, sA))
    a('v_lshlrev_b32 v2, 2, v0')
    a('s_add_u32 s%d, s%d, %d' % (sA, sA, L.WS_USED))
    a('s_mov_b32 s%d, 0x%x' % (S_WS + 2, L.WS_USED + 256 * 1024))
    a('buffer_store_dword v%d, v2, %s, s%d offen' % (V_STAMP, srd(S_WS), sA))
    if DBGST:
        build_srd(S_TMP, P_DBG, 256)
        a('v_readfirstlane_b32 s%d, v%d' % (sA, V_STAMP))
        a('s_nop 4')
        a('v_subrev_u32 v3, s%d, v%d' % (sA, V_STAMP))
        a('s_or_b32 s%d, s2, s%d' % (sB, sW))
        a('s_cmp_eq_u32 s%d, 0' % sB)
        a('s_cselect_b32 s%d, 0, 0x%x' % (sB, INV))
        a('v_or_b32 v2, s%d, v2' % sB)
        SEL = [int(x[6:]) for x in sys.argv if x.startswith('--sel=')]
        sel = SEL[0] if SEL else 1
        a('v_subrev_u32 v2, %d, v2' % (4 * sel))
        a('buffer_store_dword v3, v2, %s, 0 offen' % srd(S_TMP))
a.label('L_end')
a('s_endpgm')

a.finalize()
body = a.text()

import os
hdr = open(os.path.join(os.path.dirname(os.path.abspath(__file__)), 'header.txt')).read()
out = hdr + '; @launch grid=(256,1,1) block=(256,1,1) lds=%d\n' % L.LDS_BYTES
out += '.amdgcn_target "amdgcn-amd-amdhsa--gfx950"\n.text\n.globl %s_kernel\n.p2align 8\n.type %s_kernel,@function\n%s_kernel:\n' % (NAME, NAME, NAME)
out += body
out += '''.section .rodata,"a"
.p2align 6
.amdhsa_kernel %s_kernel
  .amdhsa_next_free_vgpr 512
  .amdhsa_next_free_sgpr 102
  .amdhsa_accum_offset 256
  .amdhsa_group_segment_fixed_size 0
  .amdhsa_kernarg_size 88
  .amdhsa_user_sgpr_count 2
  .amdhsa_user_sgpr_kernarg_segment_ptr 1
  .amdhsa_system_sgpr_workgroup_id_x 1
.end_amdhsa_kernel
''' % NAME
sys.stdout.write(out)
```

```python
import struct
import sys
from asmlib import Asm
import layout as L

NAME = 'interleave_layers__sliding_local_dilated__mixer_channel_mlp__prompt'
DIAG = '--diag' in sys.argv
FASTMODE = ([x[7:] for x in sys.argv if x.startswith('--fast=')] + ['flags'])[0]
NOFAST = FASTMODE == 'none'
PAD = [int(x[6:]) for x in sys.argv if x.startswith('--pad=')]
DBG = '--dbg' in sys.argv or bool(PAD)
SPIN_LIMIT = 200000
OUTSC = ([x[8:] for x in sys.argv if x.startswith('--outsc=')] + [''])[0].replace('_', ' ')
SLEEP = int(([x[8:] for x in sys.argv if x.startswith('--sleep=')] + ['0'])[0])
INV = 0x80000000

a = Asm()

sXCC = 3
S_WS, S_TMP, S_B1, S_OUT = 4, 8, 12, 16
P_X, P_WQKV, P_WO, P_BX, P_W1, P_B1, P_W2, P_B2, P_OUT, P_DBG, P_WSP = 20, 22, 24, 26, 28, 30, 32, 34, 36, 38, 40
sS, sC, sG, sJ, sW, sT, sPAIR, sSPIN = 42, 43, 44, 45, 46, 47, 48, 49
sM1 = 50
sM2 = 58
sM0 = 66
sO = 74
sA, sB, sCc, sD = 90, 91, 92, 93
sMK = 94
sTS = 96
sGT = 98
sERR = 99
sSTI = 100
sFAST = 101
sFD = 27
sPFC = 26
sFH = 25


def srd(n):
    return 's[%d:%d]' % (n, n + 3)


def vr(n, k=4):
    return 'v[%d:%d]' % (n, n + k - 1)


def ar(n, k=4):
    return 'a[%d:%d]' % (n, n + k - 1)


def sp(n):
    return 's[%d:%d]' % (n, n + 1)


def f2h(x):
    return '0x%08x' % struct.unpack('<I', struct.pack('<f', x))[0]


V_T, V_STAMP = 254, 255
V_TOK, V_G = 250, 251
MFMA = 'v_mfma_f32_16x16x32_bf16'


DIAG2 = '--diag2' in sys.argv
PREFPOS = ([x[7:] for x in sys.argv if x.startswith('--pref=')] + ['a'])[0]
PREF = PREFPOS != 'n'
TOUCH = '--notouch' not in sys.argv
STWAIT = '--stwait' in sys.argv
P2EARLY = '--p2early' in sys.argv
SKEW = [int(x[7:]) for x in sys.argv if x.startswith('--skew=')]
DBGST = '--dbgst' in sys.argv


def stamp2():
    if DIAG2:
        stamp()


def stamp():
    if not DIAG:
        return
    a('%s %s' % ('s_memrealtime' if '--rt' in sys.argv else 's_memtime', sp(sTS)))
    a('s_waitcnt lgkmcnt(0)')
    a('s_lshl_b64 exec, 1, s%d' % sSTI)
    a('v_mov_b32 v%d, s%d' % (V_STAMP, sTS))
    a('s_mov_b64 exec, -1')
    a('s_add_u32 s%d, s%d, 1' % (sSTI, sSTI))


ool = []


class OutOfLine:
    def __enter__(self):
        self.saved = a.ins
        a.ins = []

    def __exit__(self, *exc):
        ool.extend(a.ins)
        a.ins = self.saved


lab_no = [0]


def newlab(p):
    lab_no[0] += 1
    return '%s_%d' % (p, lab_no[0])


def emit_pref():
    a('s_getpc_b64 s[96:97]')
    a.label('L_pc')
    a('s_lshr_b32 s%d, s2, 3' % sA)
    a('s_lshl_b32 s%d, s%d, 11' % (sA, sA))
    a('s_lshl_b32 s%d, s%d, 9' % (sB, sW))
    a('s_add_u32 s%d, s%d, s%d' % (sA, sA, sB))
    a('v_lshlrev_b32 v21, 3, v0')
    a('v_add_u32 v21, s%d, v21' % sA)
    a('v_min_u32 v21, L_code_end-L_pc-8, v21')
    a('global_load_dwordx2 v[58:59], v21, s[96:97]')


def skew_store(point, have=False):
    if not SKEW or SKEW[0] != point:
        return
    if not have:
        a('s_memrealtime s[96:97]')
        a('s_waitcnt lgkmcnt(0)')
    build_srd(S_TMP, P_DBG, 256)
    a('s_and_b32 s%d, s2, 15' % sA)
    a('s_or_b32 s%d, s%d, s%d' % (sA, sA, sW))
    a('s_cmp_eq_u32 s%d, 0' % sA)
    a('s_cselect_b32 s%d, 0, 0x%x' % (sA, INV))
    a('s_lshr_b32 s%d, s2, 2' % sB)
    a('s_or_b32 s%d, s%d, s%d' % (sA, sA, sB))
    a('v_mov_b32 v21, s%d' % sA)
    a('v_mov_b32 v22, s96')
    a('s_mov_b64 exec, 1')
    a('buffer_store_dword v22, v21, %s, 0 offen' % srd(S_TMP))
    a.vm_issued -= 1
    a('s_mov_b64 exec, -1')


def build_srd(dst, ptr, nbytes):
    a('s_mov_b32 s%d, s%d' % (dst, ptr))
    a('s_and_b32 s%d, s%d, 0xffff' % (dst + 1, ptr + 1))
    a('s_mov_b32 s%d, 0x%x' % (dst + 2, nbytes))
    a('s_mov_b32 s%d, 0x20000' % (dst + 3))


def poll(voff, off2=None, sleep=None):
    lab, done = newlab('L_poll'), newlab('L_polldone')
    a('s_mov_b64 exec, %s' % sp(sMK))
    a('s_mov_b32 s%d, 0' % sSPIN)
    a.label(lab)
    a('buffer_load_dword v253, v%d, %s, 0 offen sc1' % (voff, srd(S_WS)))
    if off2 is not None:
        a('buffer_load_dword v245, v%d, %s, 0 offen offset:%d sc1' % (voff, srd(S_WS), off2))
    a('s_waitcnt vmcnt(0)')
    if off2 is not None:
        a('v_xor_b32 v245, s%d, v245' % sT)
        a('v_xor_b32 v253, s%d, v253' % sT)
        a('v_or_b32 v253, v253, v245')
        a('v_cmp_ne_u32 vcc, 0, v253')
    else:
        a('v_cmp_ne_u32 vcc, s%d, v253' % sT)
    a('s_nop 4')
    a('s_cbranch_vccz %s' % done)
    if sleep or SLEEP:
        a('s_sleep %d' % (sleep or SLEEP))
    a('s_add_u32 s%d, s%d, 1' % (sSPIN, sSPIN))
    a('s_cmp_lt_u32 s%d, %d' % (sSPIN, SPIN_LIMIT))
    a('s_cbranch_scc1 %s' % lab)
    a('s_add_u32 s%d, s%d, 1' % (sERR, sERR))
    a.label(done)
    a('s_mov_b64 exec, -1')


sMK2 = 30


def early_issue(dst, voff, off=0):
    a('s_mov_b64 exec, %s' % sp(sMK2))
    a('buffer_load_dword v%d, v%d, %s, 0 offen offset:%d sc1' % (dst, voff, srd(S_WS), off))
    a('s_mov_b64 exec, -1')
    return a.vm_mark()


def early_check(dst, voff, mark, off=0):
    ok = newlab('L_early')
    a.wait_vm(mark)
    a('s_mov_b64 exec, %s' % sp(sMK2))
    a('v_cmp_ne_u32 vcc, s%d, v%d' % (sT, dst))
    a('s_mov_b64 exec, -1')
    a('s_nop 2')
    a('s_cbranch_vccz %s' % ok)
    a('s_mov_b64 %s, %s' % (sp(sMK), sp(sMK2)))
    n = a.vm_issued
    if off:
        a('v_add_u32 v253, %d, v%d' % (off, voff))
        a('v_mov_b32 v%d, v253' % dst)
        poll(dst)
    else:
        poll(voff)
    a.vm_issued = n
    a.label(ok)


def store(fmt, cond=None):
    if cond is None or NOFAST or (FASTMODE == 'flags' and cond in (sFD, sFH, sPC)):
        a(fmt + ' sc1')
        return
    slow, done = newlab('L_slow'), newlab('L_st')
    a('s_cmp_eq_u32 s%d, 0' % cond)
    a('s_cbranch_scc1 %s' % slow)
    a(fmt)
    a('s_branch %s' % done)
    a.label(slow)
    a(fmt + ' sc1')
    a.vm_issued -= 1
    a.label(done)


def set_flags(voff, nlanes, cond=None, val=V_T, between=()):
    mark = a.vm_mark()
    for x in between:
        a(x)
    a.wait_vm(mark)
    a('s_mov_b64 exec, %d' % ((1 << nlanes) - 1))
    store('buffer_store_dword v%d, v%d, %s, 0 offen' % (val, voff, srd(S_WS)), cond)
    a('s_mov_b64 exec, -1')


def xg_reduce(x, t, op='v_add_f32'):
    return ['v_mov_b32 v%d, v%d' % (t, x),
            'v_permlane32_swap_b32 v%d, v%d' % (x, t),
            '%s v%d, v%d, v%d' % (op, x, x, t),
            'v_mov_b32 v%d, v%d' % (t, x),
            'v_permlane16_swap_b32 v%d, v%d' % (x, t),
            '%s v%d, v%d, v%d' % (op, x, x, t)]


EPS = 1e-5


def stats_finish(s1, s2, t, double_ln):
    o = ['v_mul_f32 v%d, %s, v%d' % (s1, f2h(1.0 / 448), s1),
         'v_mul_f32 v%d, %s, v%d' % (s2, f2h(1.0 / 448), s2),
         'v_fma_f32 v%d, -v%d, v%d, v%d' % (s2, s1, s1, s2),
         'v_max_f32 v%d, 0, v%d' % (s2, s2),
         'v_add_f32 v%d, %s, v%d' % (t, f2h(EPS), s2),
         'v_rsq_f32 v%d, v%d' % (t, t)]
    if not double_ln:
        o += ['v_mov_b32 v%d, v%d' % (s2, t)]
    else:
        o += ['v_mul_f32 v%d, v%d, v%d' % (s2, s2, t),
              'v_fmaak_f32 v%d, v%d, v%d, %s' % (s2, s2, t, f2h(EPS)),
              'v_rsq_f32 v%d, v%d' % (s2, s2),
              'v_mul_f32 v%d, v%d, v%d' % (s2, s2, t)]
    return o


def pair_base(dst, arr):
    a('s_mul_i32 s%d, s%d, %d' % (dst, sPAIR, arr[1] - arr[0]))
    a('s_add_u32 s%d, s%d, %d' % (dst, dst, arr[0]))


def quarter_offsets(n, stride):
    for t in range(n):
        if t:
            a('s_add_u32 s%d, s%d, %d' % (sO + 4 * t, sO + 4 * (t - 1), stride))
        for q in range(1, 4):
            a('s_add_u32 s%d, s%d, %d' % (sO + 4 * t + q, sO + 4 * t, 4096 * q))


sPX, sPS, sPF, sPC, sPX2 = 36, 37, 28, 29, 33


def stats_flags(delta, lsh):
    a('v_lshlrev_b32 v241, %d, v0' % lsh)
    a('s_add_u32 s%d, s%d, %d' % (sA, sPF, delta))
    a('v_add_u32 v241, s%d, v241' % sA)
    a('s_mov_b64 exec, 3')
    store('buffer_store_dword v%d, v241, %s, 0 offen' % (V_T, srd(S_WS)), sPFC)
    a('s_mov_b64 exec, -1')


a('s_cmp_ge_u32 s2, 256')
a('s_cbranch_scc1 L_end')
if '--perm' in sys.argv:
    a('s_and_b32 s90, s2, 7')
    a('s_lshr_b32 s91, s2, 3')
    a('s_and_b32 s91, s91, 7')
    a('s_and_b32 s2, s2, 0xc0')
    a('s_lshl_b32 s90, s90, 3')
    a('s_or_b32 s2, s2, s90')
    a('s_or_b32 s2, s2, s91')
a('s_load_dwordx16 s[20:35], s[0:1], 0')
a('s_load_dwordx4 s[36:39], s[0:1], 64')
a('s_load_dwordx2 s[40:41], s[0:1], 80')
a('s_getreg_b32 s%d, hwreg(HW_REG_XCC_ID, 0, 4)' % sXCC)
a('s_and_b32 s%d, s2, 7' % sA)
a('s_lshr_b32 s%d, s2, 3' % sB)
a('s_lshr_b32 s%d, s%d, 4' % (sCc, sB))
a('s_lshl_b32 s%d, s%d, 1' % (sS, sA))
a('s_add_u32 s%d, s%d, s%d' % (sS, sS, sCc))
a('s_and_b32 s%d, s%d, 15' % (sC, sB))
a('s_lshr_b32 s%d, s%d, 3' % (sA, sC))
a('s_lshl_b32 s%d, s%d, 1' % (sG, sS))
a('s_add_u32 s%d, s%d, s%d' % (sG, sG, sA))
a('s_and_b32 s%d, s%d, 7' % (sJ, sC))
a('s_mov_b32 s%d, 0' % sERR)
if SKEW and SKEW[0] == 0:
    a('s_memrealtime s[96:97]')
a('v_lshrrev_b32 v2, 6, v0')
a('v_and_b32 v0, 63, v0')
a('v_readfirstlane_b32 s%d, v2' % sW)
a('v_lshlrev_b32 v1, 4, v0')
if DIAG:
    a('v_mov_b32 v%d, 0' % V_STAMP)
    a('s_mov_b32 s%d, 0' % sSTI)
stamp()
a('v_and_b32 v%d, 15, v0' % V_TOK)
a('v_lshrrev_b32 v%d, 4, v0' % V_G)
sSTG = 40
a('s_waitcnt lgkmcnt(0)')
if DBG:
    a('s_memtime s[26:27]')
    a('s_memrealtime s[0:1]')
    a('s_waitcnt lgkmcnt(0)')
skew_store(0, True)
build_srd(S_WS, P_WSP, L.WS_USED)
a('buffer_load_dword v%d, off, %s, 0 sc1' % (V_T, srd(S_WS)))
a('s_lshl_b32 s%d, s%d, 14' % (sSTG, sW))
a('s_add_u32 s%d, s%d, %d' % (sSTG, sSTG, L.L_R2))

build_srd(S_TMP, P_X, 2048 * 896)
a('v_mul_u32_u24 v2, 896, v%d' % V_TOK)
a('v_lshl_add_u32 v2, v%d, 3, v2' % V_G)
a('s_lshr_b32 s%d, s%d, 1' % (sA, sC))
a('s_lshl_b32 s%d, s%d, 3' % (sB, sS))
a('s_add_u32 s%d, s%d, s%d' % (sO + 0, sA, sB))
a('s_and_b32 s%d, s%d, 1' % (sA, sC))
a('s_mul_i32 s%d, s%d, 7' % (sA, sA))
a('s_add_u32 s%d, s%d, s%d' % (sO + 1, sA, sW))
a('s_cmp_lt_u32 s%d, 3' % sW)
a('s_cselect_b32 s%d, 0, 0x%x' % (sO + 2, INV))
a('s_mul_i32 s%d, s%d, 14336' % (sA, sO + 0))
a('s_lshl_b32 s%d, s%d, 6' % (sB, sO + 1))
a('s_add_u32 s%d, s%d, s%d' % (sA, sA, sB))
a('v_or_b32 v3, s%d, v2' % (sO + 2))
a('buffer_load_dwordx2 v[10:11], v2, %s, s%d offen' % (srd(S_TMP), sA))
a('buffer_load_dwordx2 v[12:13], v2, %s, s%d offen offset:32' % (srd(S_TMP), sA))
a('buffer_load_dwordx2 v[14:15], v3, %s, s%d offen offset:256' % (srd(S_TMP), sA))
a('buffer_load_dwordx2 v[16:17], v3, %s, s%d offen offset:288' % (srd(S_TMP), sA))

build_srd(S_TMP, P_WQKV, 448 * 2688)
qMAT, qU, qINV = sO + 3, sO + 4, sO + 5
a('s_lshl_b32 s%d, s%d, 4' % (sA, sW))
a('s_add_u32 s%d, s%d, s%d' % (sA, sA, sS))
a('s_cmp_lt_u32 s%d, 42' % sA)
a('s_cselect_b32 s%d, 0, 0x%x' % (qINV, INV))
a('s_min_u32 s%d, s%d, 41' % (sA, sA))
a('s_mul_i32 s%d, s%d, 4682' % (qMAT, sA))
a('s_lshr_b32 s%d, s%d, 16' % (qMAT, qMAT))
a('s_mul_i32 s%d, s%d, 14' % (sB, qMAT))
a('s_sub_u32 s%d, s%d, s%d' % (qU, sA, sB))
a('s_mul_i32 s%d, s%d, %d' % (sA, qU, 32 * 2688))
a('s_mul_i32 s%d, s%d, 896' % (sB, qMAT))
a('s_add_u32 s%d, s%d, s%d' % (sA, sA, sB))
a('s_mul_i32 s%d, s%d, 56' % (sB, sC))
a('s_add_u32 s%d, s%d, s%d' % (sA, sA, sB))
a('v_lshrrev_b32 v4, 2, v0')
a('v_mul_u32_u24 v4, 2688, v4')
a('v_and_b32 v5, 3, v0')
a('v_lshl_add_u32 v4, v5, 4, v4')
a('v_or_b32 v4, s%d, v4' % qINV)
a('s_mov_b32 m0, s%d' % sSTG)
a('s_add_u32 s%d, s%d, %d' % (sB, sA, 16 * 2688))
a('buffer_load_dwordx4 v4, %s, s%d offen lds' % (srd(S_TMP), sA))
a('s_add_u32 m0, s%d, 1024' % sSTG)
a('s_nop 0')
a('buffer_load_dwordx4 v4, %s, s%d offen lds' % (srd(S_TMP), sB))

bINV, bDST, bSTR, bINV2, bDST2, sSTRD = 20, 21, 22, 23, 24, 25


def emit_p2_issue():
    a('s_cmp_eq_u32 s%d, 3' % sW)
    a('s_cbranch_scc1 L_p2_w1')
    a('s_lshl_b32 s%d, s%d, 5' % (sA, sW))
    a('s_add_u32 s%d, s%d, s%d' % (sA, sA, sG))
    a('s_cmp_lt_u32 s%d, 72' % sA)
    a('s_cselect_b32 s%d, 0, 0x%x' % (bINV, INV))
    a('s_cmp_eq_u32 s%d, 7' % sJ)
    a('s_cselect_b32 s%d, 0x%x, s%d' % (bINV, INV, bINV))
    a('s_min_u32 s%d, s%d, 71' % (sA, sA))
    a('s_min_u32 s%d, s%d, 6' % (sD, sJ))
    a('s_cmp_lt_u32 s%d, 16' % sA)
    a('s_cselect_b32 s%d, s%d, s%d' % (S_TMP, P_WO, P_W2))
    a('s_cselect_b32 s%d, s%d, s%d' % (S_TMP + 1, P_WO + 1, P_W2 + 1))
    a('s_mov_b32 s%d, 0x%x' % (S_TMP + 2, 1792 * 896))
    a('s_cselect_b32 s%d, 0x%x, s%d' % (S_TMP + 2, 448 * 896, S_TMP + 2))
    a('s_cselect_b32 s%d, 28, 32' % sB)
    a('s_cselect_b32 s%d, 0, 16' % sCc)
    a('s_mov_b32 s%d, %d' % (bSTR, 56 * 1024))
    a('s_cselect_b32 s%d, %d, s%d' % (bSTR, 16 * 1024, bSTR))
    a('s_mov_b32 s%d, %d' % (bDST, L.WD))
    a('s_cselect_b32 s%d, %d, s%d' % (bDST, L.WB, bDST))
    a('s_cselect_b32 s%d, 0x%x, 0' % (sO + 9, INV))
    a('s_and_b32 s%d, s%d, 0xffff' % (S_TMP + 1, S_TMP + 1))
    a('s_mov_b32 s%d, 0x20000' % (S_TMP + 3))
    a('s_sub_u32 s%d, s%d, s%d' % (sA, sA, sCc))
    a('s_lshl_b32 s%d, s%d, 10' % (sCc, sA))
    a('s_add_u32 s%d, s%d, s%d' % (bDST, bDST, sCc))
    a('s_lshl_b32 s%d, s%d, 2' % (sCc, sD))
    a('s_mul_i32 s%d, s%d, s%d' % (sCc, sCc, bSTR))
    a('s_add_u32 s%d, s%d, s%d' % (bDST, bDST, sCc))
    a('s_mul_i32 s%d, s%d, s%d' % (sA, sA, sB))
    a('s_mul_i32 s%d, s%d, 896' % (sA, sA))
    a('s_lshl_b32 s%d, s%d, 7' % (sB, sD))
    a('s_add_u32 s%d, s%d, s%d' % (sO + 10, sA, sB))
    a('s_mov_b32 s%d, 896' % sSTRD)
    a('s_mov_b32 s%d, 0x%x' % (bINV2, INV))
    a('s_mov_b32 s%d, 0' % bDST2)
    a('s_mov_b32 s%d, 0' % (sO + 11))
    a('s_branch L_p2_go')
    a.label('L_p2_w1')
    build_srd(S_TMP, P_W1, 448 * 3584)
    a('s_lshl_b32 s%d, s%d, 4' % (sA, sS))
    a('s_add_u32 s%d, s%d, s%d' % (sA, sA, sC))
    a('s_cmp_lt_u32 s%d, 136' % sA)
    a('s_cselect_b32 s%d, 0, 0x%x' % (bINV2, INV))
    a('s_mov_b32 s%d, 0' % bINV)
    a('s_mov_b32 s%d, 0' % (sO + 9))
    a('s_mov_b32 s%d, %d' % (bSTR, 14 * 1024))
    a('s_mov_b32 s%d, 3584' % sSTRD)
    for dst, src, add in ((bDST, sO + 10, 0), (bDST2, sO + 11, 256)):
        a('s_add_u32 s%d, s%d, %d' % (sB, sA, add))
        a('s_min_u32 s%d, s%d, 391' % (sB, sB))
        a('s_mul_i32 s%d, s%d, 4682' % (sCc, sB))
        a('s_lshr_b32 s%d, s%d, 16' % (sCc, sCc))
        a('s_mul_i32 s%d, s%d, 14' % (sD, sCc))
        a('s_sub_u32 s%d, s%d, s%d' % (sB, sB, sD))
        a('s_mul_i32 s%d, s%d, %d' % (src, sB, 32 * 3584))
        a('s_lshl_b32 s%d, s%d, 7' % (sD, sCc))
        a('s_add_u32 s%d, s%d, s%d' % (src, src, sD))
        a('s_mul_i32 s%d, s%d, 56' % (sD, sCc))
        a('s_add_u32 s%d, s%d, s%d' % (sD, sD, sB))
        a('s_lshl_b32 s%d, s%d, 10' % (sD, sD))
        a('s_add_u32 s%d, s%d, %d' % (dst, sD, L.WC))
    a.label('L_p2_go')
    a('v_lshrrev_b32 v6, 3, v0')
    a('v_mul_lo_u32 v6, v6, s%d' % sSTRD)
    a('v_and_b32 v5, 7, v0')
    a('v_lshl_add_u32 v6, v5, 4, v6')
    a('v_or_b32 v8, s%d, v6' % bINV2)
    a('v_or_b32 v6, s%d, v6' % bINV)
    a('v_cmp_lt_u32 vcc, 31, v0')
    a('v_mov_b32 v7, s%d' % (sO + 9))
    a('v_cndmask_b32 v7, 0, v7, vcc')
    a('v_or_b32 v7, v7, v6')
    a('s_lshl_b32 s%d, s%d, 3' % (sB, sSTRD))
    for slot in range(2):
        src = sO + 10 + slot
        for q in range(4):
            a('s_add_u32 m0, s%d, %d' % (sSTG, 2048 + 4096 * slot + 1024 * q))
            if q:
                a('s_add_u32 s%d, s%d, s%d' % (src, src, sB))
            else:
                a('s_nop 0')
            a('buffer_load_dwordx4 v%d, %s, s%d offen lds' % (8 if slot else (7 if q == 3 else 6), srd(S_TMP), src))


if P2EARLY:
    emit_p2_issue()
build_srd(S_B1, P_B1, 1792 * 2)
build_srd(S_OUT, P_OUT, 2048 * 896)
a('v_bfe_u32 v18, v0, 2, 2')
a('v_lshl_add_u32 v18, v%d, 2, v18' % V_G)
a('v_and_b32 v19, 3, v0')
a('v_lshlrev_b32 v19, 3, v19')
if PREFPOS == 'b':
    emit_pref()
if TOUCH:
    a('v_lshlrev_b32 v21, 21, v0')
    a('s_mov_b64 exec, 0x1ffff')
    a('buffer_load_dword v253, v21, %s, 0 offen' % srd(S_WS))
    a('s_mov_b64 exec, -1')
    a('s_waitcnt vmcnt(%d)' % ((9 if P2EARLY else 1) + (PREFPOS == 'b')))
else:
    a('s_waitcnt vmcnt(%d)' % ((8 if P2EARLY else 0) + (PREFPOS == 'b')))
stamp()

a('s_mov_b32 s%d, 0x9E3779B1' % sA)
a('v_mul_lo_u32 v%d, v%d, s%d' % (V_T, V_T, sA))
a('v_add_u32 v%d, 0x7F4A7C15, v%d' % (V_T, V_T))
a('v_and_b32 v%d, -16, v%d' % (V_T, V_T))
a('v_lshl_add_u32 v20, v18, 6, v19')
a('v_add_u32 v20, s%d, v20' % sSTG)
for hf in range(2):
    a('ds_read_b64_tr_b16 %s, v20 offset:%d' % (vr(24 + 4 * hf, 2), 32 * hf))
    a('ds_read_b64_tr_b16 %s, v20 offset:%d' % (vr(26 + 4 * hf, 2), 32 * hf + 1024))
a('v_readfirstlane_b32 s%d, v%d' % (sT, V_T))
a('s_mul_i32 s%d, s%d, 14' % (sA, sO + 0))
a('s_add_u32 s%d, s%d, s%d' % (sA, sA, sO + 1))
a('s_lshl_b32 s%d, s%d, 10' % (sB, sA))
a('s_add_u32 s%d, s%d, %d' % (sB, sB, L.XA[0]))
a('v_or_b32 v3, s%d, v1' % (sO + 2))
a('buffer_store_dwordx4 v[10:13], v1, %s, s%d offen sc1' % (srd(S_WS), sB))
a('s_add_u32 s%d, s%d, 4096' % (sB, sB))
a('buffer_store_dwordx4 v[14:17], v3, %s, s%d offen sc1' % (srd(S_WS), sB))
a('v_cmp_gt_u32 vcc, 12, v%d' % V_TOK)
a('s_mul_i32 s%d, s%d, 84' % (sB, sC))
a('s_mul_i32 s%d, s%d, 28' % (sCc, qMAT))
a('s_add_u32 s%d, s%d, s%d' % (sB, sB, sCc))
a('s_add_u32 s%d, s%d, s%d' % (sB, sB, qU))
a('s_lshl_b32 s%d, s%d, 10' % (sB, sB))
a('s_add_u32 s%d, s%d, %d' % (sB, sB, L.WA))
a('v_or_b32 v4, s%d, v1' % qINV)
a('s_waitcnt lgkmcnt(0)')
for p in range(4):
    a('v_cndmask_b32 v%d, 0, v%d, vcc' % (28 + p, 28 + p))
a('buffer_store_dwordx4 v[24:27], v4, %s, s%d offen sc1' % (srd(S_WS), sB))
a('s_add_u32 s%d, s%d, %d' % (sB, sB, 14 * 1024))
a('buffer_store_dwordx4 v[28:31], v4, %s, s%d offen sc1' % (srd(S_WS), sB))
a('v_mov_b32 v2, 0x3f803f80')
for k in range(2):
    x, s1, s2 = 10 + 4 * k, 110 + 2 * k, 111 + 2 * k
    a('v_mov_b32 v%d, 0' % s1)
    a('v_mov_b32 v%d, 0' % s2)
    for p in range(4):
        a('v_dot2_f32_bf16 v%d, v%d, v2, v%d' % (s1, x + p, s1))
        a('v_dot2_f32_bf16 v%d, v%d, v%d, v%d' % (s2, x + p, x + p, s2))
    for t in xg_reduce(s1, 114) + xg_reduce(s2, 115):
        a(t)
a('s_lshl_b32 s%d, s%d, 7' % (sB, sA))
a('s_add_u32 s%d, s%d, %d' % (sB, sB, L.SA[0]))
a('v_lshlrev_b32 v2, 3, v%d' % V_TOK)
a('v_or_b32 v3, s%d, v2' % (sO + 2))
a('s_mov_b64 exec, 0xffff')
a('buffer_store_dwordx2 v[110:111], v2, %s, s%d offen sc1' % (srd(S_WS), sB))
a('buffer_store_dwordx2 v[112:113], v3, %s, s%d offen offset:512 sc1' % (srd(S_WS), sB))
a('s_mov_b64 exec, -1')
crit_mark = a.vm_mark()
if not P2EARLY:
    emit_p2_issue()
a('s_lshl_b32 s%d, s%d, 5' % (sA, sO + 0))
a('s_add_u32 s%d, s%d, s%d' % (sA, sA, sO + 1))
a('s_lshl_b32 s%d, s%d, 2' % (sA, sA))
a('s_add_u32 s%d, s%d, %d' % (sA, sA, L.FX[0]))
a('v_lshlrev_b32 v2, 4, v0')
a('v_add_u32 v2, s%d, v2' % sA)
a('v_cmp_eq_u32 vcc, 1, v0')
a('v_mov_b32 v3, s%d' % (sO + 2))
a('v_cndmask_b32 v3, 0, v3, vcc')
a('v_or_b32 v2, v2, v3')
a('s_lshl_b32 s%d, s%d, 6' % (sA, sC))
a('s_lshl_b32 s%d, s%d, 2' % (sB, sS))
a('s_add_u32 s%d, s%d, s%d' % (sA, sA, sB))
a('s_add_u32 s%d, s%d, s%d' % (sA, sA, sW))
a('s_lshl_b32 s%d, s%d, 2' % (sA, sA))
a('s_add_u32 s%d, s%d, %d' % (sA, sA, L.FQ))
a('v_mov_b32 v3, s%d' % sA)
a('v_cmp_eq_u32 vcc, 2, v0')
a('v_cndmask_b32 v2, v2, v3, vcc')
a('s_lshl_b32 s%d, s%d, 4' % (sA, sS))
a('s_add_u32 s%d, s%d, s%d' % (sA, sA, sC))
a('s_lshl_b32 s%d, s%d, 2' % (sA, sA))
a('s_add_u32 s%d, s%d, %d' % (sA, sA, L.FXC))
a('s_cmp_eq_u32 s%d, 0' % sW)
a('s_cselect_b32 s%d, s%d, 0x%x' % (sA, sA, INV))
a('v_mov_b32 v3, s%d' % sA)
a('v_cmp_eq_u32 vcc, 3, v0')
a('v_cndmask_b32 v2, v2, v3, vcc')
a('v_or_b32 v3, s%d, v%d' % (sXCC, V_T))
a('v_cndmask_b32 v3, v%d, v3, vcc' % V_T)
stamp2()
a.wait_vm(crit_mark)
a('s_mov_b64 exec, 15')
a('buffer_store_dword v3, v2, %s, 0 offen sc1' % srd(S_WS))
a('s_mov_b64 exec, -1')
stamp()

if PREFPOS == 'a':
    emit_pref()
BTOUCH = '--btouch' in sys.argv
if BTOUCH:
    a('v_lshlrev_b32 v21, 6, v0')
    a('buffer_load_dword v60, v21, %s, 0 offen' % srd(S_B1))
    build_srd(S_TMP, P_B2, 896)
    a('buffer_load_dword v61, v21, %s, 0 offen' % srd(S_TMP))
skew_store(1)
a('s_waitcnt vmcnt(%d)' % (1 + (PREFPOS == 'a') + 2 * BTOUCH))
a('v_lshl_add_u32 v20, v18, 7, v19')
a('v_add_u32 v20, s%d, v20' % sSTG)
for slot in range(2):
    for t in range(4):
        a('ds_read_b64_tr_b16 %s, v20 offset:%d' % (vr(24 + 16 * slot + 4 * t, 2), 2048 + 4096 * slot + 32 * t))
        a('ds_read_b64_tr_b16 %s, v20 offset:%d' % (vr(26 + 16 * slot + 4 * t, 2), 2048 + 4096 * slot + 32 * t + 2048))
a('v_or_b32 v6, s%d, v1' % bINV)
a('v_or_b32 v8, s%d, v1' % bINV2)
a('s_waitcnt lgkmcnt(8)')
for t in range(4):
    a('buffer_store_dwordx4 %s, v6, %s, s%d offen sc1' % (vr(24 + 4 * t), srd(S_WS), bDST))
    if t < 3:
        a('s_add_u32 s%d, s%d, s%d' % (bDST, bDST, bSTR))
a('s_waitcnt lgkmcnt(0)')
for t in range(4):
    a('buffer_store_dwordx4 %s, v8, %s, s%d offen sc1' % (vr(40 + 4 * t), srd(S_WS), bDST2))
    if t < 3:
        a('s_add_u32 s%d, s%d, s%d' % (bDST2, bDST2, bSTR))
a('s_lshl_b32 s%d, s%d, 4' % (sA, sS))
a('s_add_u32 s%d, s%d, s%d' % (sA, sA, sC))
a('s_lshl_b32 s%d, s%d, 2' % (sA, sA))
a('s_add_u32 s%d, s%d, %d' % (sA, sA, L.FW1))
a('v_lshlrev_b32 v22, 10, v0')
a('v_add_u32 v22, s%d, v22' % sA)
a('v_cmp_eq_u32 vcc, 1, v0')
a('v_mov_b32 v23, s%d' % bINV2)
a('v_cndmask_b32 v23, 0, v23, vcc')
a('v_or_b32 v22, v22, v23')
a('s_cmp_eq_u32 s%d, 3' % sW)
a('s_cselect_b32 s%d, 0, 0x%x' % (sA, INV))
a('v_or_b32 v22, s%d, v22' % sA)

skew_store(3)
a('v_and_b32 v2, 1, v%d' % V_TOK)
a('v_lshlrev_b32 v3, 2, v%d' % V_G)
a('v_add_u32 v6, 2, v%d' % V_TOK)
for i in range(4):
    a('v_add_u32 v4, %d, v3' % i)
    a('v_cmp_eq_u32 vcc, %d, v2' % (i & 1))
    a('s_mov_b64 %s, vcc' % sp(sMK))
    a('v_cmp_ge_u32 vcc, v4, v6')
    a('s_and_b64 %s, vcc, %s' % (sp(sM1 + 2 * i), sp(sMK)))
    a('v_cmp_le_u32 vcc, v4, v%d' % V_TOK)
    a('s_and_b64 %s, vcc, %s' % (sp(sM2 + 2 * i), sp(sMK)))
a('s_lshl_b32 s%d, s%d, 3' % (sA, sS))
a('s_lshl_b32 s%d, s%d, 1' % (sB, sW))
a('s_add_u32 s%d, s%d, s%d' % (sGT, sA, sB))
a('s_cmp_eq_u32 s%d, 0' % sGT)
for i in range(4):
    a('s_cselect_b64 %s, 0, %s' % (sp(sM0 + 2 * i), sp(sM1 + 2 * i)))
a('s_mov_b32 s%d, 0' % sPAIR)

def a_flag_addr(dst):
    pair_base(sA, L.FX)
    a('s_lshl_b32 s%d, s%d, 7' % (sB, sGT))
    a('s_add_u32 s%d, s%d, s%d' % (sA, sA, sB))
    a('s_sub_u32 s%d, s%d, 128' % (sA, sA))
    a('v_and_b32 v%d, 48, v0' % dst)
    a('v_add_u32 v%d, v%d, v0' % (dst, dst))
    a('v_lshl_add_u32 v%d, v%d, 2, s%d' % (dst, dst, sA))
    a('s_mov_b32 s%d, 0x3fff3fff' % sMK)
    a('s_mov_b32 s%d, 0x3fff' % (sMK + 1))
    a('s_cmp_eq_u32 s%d, 0' % sGT)
    a('s_cselect_b32 s%d, 0x3fff0000, s%d' % (sMK, sMK))


a('s_lshl_b32 s%d, s%d, 8' % (sA, sC))
a('s_add_u32 s%d, s%d, %d' % (sA, sA, L.FQ))
a('v_lshl_add_u32 v2, v0, 2, s%d' % sA)
a_flag_addr(3)
a('s_lshl_b32 s%d, s%d, 6' % (sA, sS))
a('s_add_u32 s%d, s%d, %d' % (sA, sA, L.FXC - 48 * 4))
a('v_lshl_add_u32 v4, v0, 2, s%d' % sA)
a('v_cmp_lt_u32 vcc, 47, v0')
a('v_cndmask_b32 v3, v3, v4, vcc')
a('v_mov_b32 v5, -1')
a('v_mov_b32 v6, -16')
a('v_cndmask_b32 v5, v5, v6, vcc')
a('s_or_b32 s%d, s%d, 0xffff0000' % (sMK + 1, sMK + 1))
a('s_mov_b32 s%d, 0' % sSPIN)
a.label('L_poll0')
a('buffer_load_dword v7, v2, %s, 0 offen sc1' % srd(S_WS))
a('s_mov_b64 exec, %s' % sp(sMK))
a('buffer_load_dword v8, v3, %s, 0 offen sc1' % srd(S_WS))
a('s_waitcnt vmcnt(0)')
a('v_and_b32 v9, v5, v8')
a('v_cmp_ne_u32 vcc, s%d, v9' % sT)
a('s_mov_b64 exec, -1')
a('s_mov_b64 %s, vcc' % sp(sTS))
a('v_cmp_ne_u32 vcc, s%d, v7' % sT)
a('s_or_b64 vcc, vcc, %s' % sp(sTS))
a('s_cbranch_vccz L_poll0_done')
a('s_add_u32 s%d, s%d, 1' % (sSPIN, sSPIN))
a('s_cmp_lt_u32 s%d, %d' % (sSPIN, SPIN_LIMIT))
a('s_cbranch_scc1 L_poll0')
a('s_add_u32 s%d, s%d, 1' % (sERR, sERR))
a.label('L_poll0_done')
a('s_mov_b64 exec, 3')
a('buffer_store_dword v%d, v22, %s, 0 offen sc1' % (V_T, srd(S_WS)))
a('s_mov_b64 exec, -1')
skew_store(2)
a('v_and_b32 v9, 15, v8')
a('v_cmp_ne_u32 vcc, s%d, v9' % sXCC)
a('s_and_b32 s%d, vcc_hi, 0xffff0000' % sA)
a('s_cmp_eq_u32 s%d, 0' % sA)
a('s_cselect_b32 s%d, 1, 0' % sFAST)
stamp()
AQ, AK, AV, HACC = 2, 18, 34, 50
WBUF = [66, 90]
XR = 114
CSACC = 186
STR = 210
SM, SR = 234, 237
NR, LOOK = 6, 4
A_ONES = 240


def a_xload(u):
    slot = u % NR
    return ['buffer_load_dwordx4 %s, v1, %s, s%d offen offset:%d sc1' %
            (vr(XR + (slot * 2 + t) * 4), srd(S_WS), sO + 4 * (t + 1) + (u >> 2), 1024 * (u & 3)) for t in range(2)]


def a_offsets():
    pair_base(sA, L.XA)
    a('s_mul_i32 s%d, s%d, 14336' % (sB, sGT))
    a('s_add_u32 s%d, s%d, s%d' % (sO + 4, sA, sB))
    a('s_add_u32 s%d, s%d, 14336' % (sO + 8, sO + 4))
    for t in range(1, 3):
        for q in range(1, 4):
            a('s_add_u32 s%d, s%d, %d' % (sO + 4 * t + q, sO + 4 * t, 4096 * q))
    a('s_lshl_b32 s%d, s%d, 3' % (sB, sS))
    a('s_max_u32 s%d, s%d, 1' % (sB, sB))
    a('s_sub_u32 s%d, s%d, 1' % (sB, sB))
    a('s_mul_i32 s%d, s%d, 14336' % (sB, sB))
    a('s_add_u32 s%d, s%d, s%d' % (sO + 0, sA, sB))
    a('s_lshl_b32 s%d, s%d, 12' % (sB, sW))
    a('s_add_u32 s%d, s%d, s%d' % (sO + 0, sO + 0, sB))
    a('s_add_u32 s%d, s%d, %d' % (sO + 1, sB, L.L_R2))


def a_setup():
    if FASTMODE == 'flags':
        a('s_mov_b32 s%d, 0' % sFD)
        a('s_mov_b32 s%d, 0' % sFH)
    elif FASTMODE == 'p0':
        a('s_xor_b32 s%d, s%d, 1' % (sFD, sPAIR))
        a('s_and_b32 s%d, s%d, s%d' % (sFD, sFD, sFAST))
        a('s_mov_b32 s%d, s%d' % (sFH, sFD))
    elif FASTMODE == 'small':
        a('s_mov_b32 s%d, s%d' % (sFD, sFAST))
        a('s_mov_b32 s%d, 0' % sFH)
    elif FASTMODE == 'smallp0':
        a('s_mov_b32 s%d, s%d' % (sFD, sFAST))
        a('s_xor_b32 s%d, s%d, 1' % (sFH, sPAIR))
        a('s_and_b32 s%d, s%d, s%d' % (sFH, sFH, sFAST))
    else:
        a('s_mov_b32 s%d, s%d' % (sFD, sFAST))
        a('s_mov_b32 s%d, s%d' % (sFH, sFAST))
    pair_base(sA, L.SA)
    a('s_mul_i32 s%d, s%d, 1792' % (sB, sGT))
    a('s_add_u32 s%d, s%d, s%d' % (sO + 13, sA, sB))
    a('s_add_u32 s%d, s%d, 1792' % (sO + 14, sO + 13))
    a('s_sub_u32 s%d, s%d, 1792' % (sO + 12, sO + 13))
    a('s_cmp_eq_u32 s%d, 0' % sGT)
    a('s_cselect_b32 s%d, s%d, s%d' % (sO + 12, sO + 13, sO + 12))
    a('v_and_b32 v%d, 15, v0' % V_TOK)
    a('v_lshrrev_b32 v%d, 4, v0' % V_G)
    a('v_lshlrev_b32 v240, 3, v%d' % V_TOK)
    a('v_lshl_add_u32 v240, v%d, 7, v240' % V_G)
    a('v_mov_b32 v242, 0x%x' % INV)
    a('v_cmp_lt_u32 vcc, 1, v%d' % V_G)
    a('v_cndmask_b32 v241, 0, v242, vcc')
    a('v_or_b32 v241, v241, v240')
    a('v_add_u32 v243, %d, v1' % (56 * 1024))
    a('v_lshlrev_b32 v244, 4, v%d' % V_G)
    a('v_add_u32 v244, %d, v244' % L.L_CSA)
    a('v_lshlrev_b32 v245, 2, v%d' % V_TOK)
    a('v_add_u32 v245, %d, v245' % L.L_CSA)
    a('s_lshl_b32 s%d, s%d, 7' % (sA, sJ))
    a('s_add_u32 s%d, s%d, %d' % (sA, sA, L.FP))
    a('v_lshl_add_u32 v248, v0, 2, s%d' % sA)
    a('s_lshr_b32 s%d, s%d, 1' % (sB, sW))
    a('s_lshl_b32 s%d, s%d, 2' % (sCc, sG))
    a('s_add_u32 s%d, s%d, s%d' % (sB, sB, sCc))
    a('s_lshl_b32 s%d, s%d, 5' % (sB, sB))
    a('s_and_b32 s%d, s%d, 1' % (sA, sW))
    a('s_add_u32 s%d, s%d, s%d' % (sB, sB, sA))
    a('s_min_u32 s%d, s%d, 6' % (sA, sJ))
    a('s_lshl_b32 s%d, s%d, 1' % (sA, sA))
    a('s_add_u32 s%d, s%d, s%d' % (sB, sB, sA))
    a('s_lshl_b32 s%d, s%d, 2' % (sB, sB))
    a('s_add_u32 s%d, s%d, %d' % (sB, sB, L.FX[0] - 32 * 256))
    a('v_lshl_add_u32 v249, v0, 8, s%d' % sB)
    a('v_cmp_lt_u32 vcc, 31, v0')
    a('v_cndmask_b32 v248, v248, v249, vcc')
    a('s_lshr_b32 s%d, s%d, 3' % (sA, sC))
    a('s_mul_i32 s%d, s%d, 7' % (sA, sA))
    a('s_min_u32 s%d, s%d, 6' % (sB, sJ))
    a('s_add_u32 s%d, s%d, s%d' % (sA, sA, sB))
    a('s_mul_i32 s%d, s%d, 112' % (sA, sA))
    a('s_add_u32 s%d, s%d, %d' % (sA, sA, L.FW1 - 34 * 4))
    a('v_lshl_add_u32 v249, v0, 2, s%d' % sA)
    a('v_cmp_lt_u32 vcc, 33, v0')
    a('v_cndmask_b32 v248, v248, v249, vcc')
    a('s_lshl_b32 s%d, s%d, 7' % (sA, sS))
    a('s_add_u32 s%d, s%d, %d' % (sA, sA, L.FH))
    a('v_and_b32 v247, 15, v0')
    a('v_lshl_add_u32 v247, v247, 2, s%d' % sA)
    a('s_lshl_b32 s%d, s%d, 7' % (sB, sGT))
    a('s_add_u32 s%d, s%d, %d' % (sB, sB, L.FX[1] - 128))
    a('v_lshl_add_u32 v253, v0, 2, s%d' % sB)
    a('s_cmp_eq_u32 s%d, 0' % sW)
    a('s_cselect_b32 s%d, 0, 16' % sA)
    a('v_cmp_gt_u32 vcc, s%d, v0' % sA)
    a('v_cndmask_b32 v247, v247, v253, vcc')
    a('s_mov_b32 s%d, 0x3fff3fff' % sMK2)
    a('s_mov_b32 s%d, 0' % (sMK2 + 1))
    a('s_cmp_eq_u32 s%d, 0' % sS)
    a('s_cselect_b32 s%d, 0x3fff, s%d' % (sMK2, sMK2))
    a('v_and_b32 v253, 15, v0')
    a('v_lshlrev_b32 v253, 2, v253')
    a('v_add_u32 v253, %d, v253' % L.FX[1])
    a('s_cmp_eq_u32 s%d, 0' % sGT)
    a('s_cselect_b64 vcc, -1, 0')
    a('v_cndmask_b32 v247, v247, v253, vcc')


stat_loads = ['buffer_load_dwordx2 %s, v%d, %s, s%d offen offset:%d sc1' %
              (vr(STR + (t * 4 + i) * 2, 2), 241 if i == 3 else 240, srd(S_WS), sO + 12 + t, 512 * i)
              for t in range(3) for i in range(4)]


def a_wread(u):
    b = WBUF[u & 1]
    o = []
    for p in range(6):
        if p < 4:
            o.append('ds_read_b128 %s, v1 offset:%d' % (vr(b + 4 * p), L.L_WA + (p * 14 + u) * 1024))
        else:
            o.append('ds_read_b128 %s, v243 offset:%d' % (vr(b + 4 * p), L.L_WA + ((p - 4) * 14 + u) * 1024))
    return o


stat_fill = []
for t in range(3):
    r = STR + 8 * t
    for c_ in range(2):
        stat_fill += ['v_add_f32 v%d, v%d, v%d' % (r + c_, r + c_, r + 2 + c_),
                      'v_add_f32 v%d, v%d, v%d' % (r + 4 + c_, r + 4 + c_, r + 6 + c_),
                      'v_add_f32 v%d, v%d, v%d' % (r + c_, r + c_, r + 4 + c_)]
    stat_fill += xg_reduce(r, r + 2) + xg_reduce(r + 1, r + 3)
    stat_fill += stats_finish(r, r + 1, r + 2, False)
    stat_fill += ['v_mov_b32 v%d, v%d' % (SM + t, r), 'v_mov_b32 v%d, v%d' % (SR + t, r + 1)]

sWA = [20, 21, 22]
sWAG = 23


def wa_dma(pr, i):
    def f():
        a('s_add_u32 m0, s%d, %d' % (sWA[i], L.L_WA + 2048 * pr))
        a('s_add_u32 s%d, s%d, s%d' % (sD, sWA[i], sWAG))
        if pr:
            a('s_add_u32 s%d, s%d, %d' % (sD, sD, 2048 * pr))
        a('buffer_load_dwordx4 v1, %s, s%d offen sc1 lds' % (srd(S_WS), sD))
    return f


amark = {}


def emit_a_loop(first, xmark, wam):
    ep_mark = es_mark = st_mark = None
    for t in a_wread(0):
        a(t)
    for u in range(14):
        need = xmark[u]
        if u == 11:
            need = max(need, st_mark)
        a.wait_vm(need)
        if not first and u == 6:
            early_check(246, 247, es_mark)
            a('s_nop 0')
        if u == 11:
            a('s_mov_b32 s%d, -1' % sMK2)
            a('s_mov_b32 s%d, 0x3fffffff' % (sMK2 + 1))
        a('s_waitcnt lgkmcnt(0)')
        wb = WBUF[u & 1]
        xs = XR + (u % NR) * 8
        mf = []
        cz = (lambda r: '0') if u == 0 else (lambda r: vr(r))
        for t in range(2):
            for hf in range(2):
                r = AQ + (t * 2 + hf) * 4
                mf.append('%s %s, %s, %s, %s' % (MFMA, vr(r), vr(wb + 4 * hf), vr(xs + 4 * t), cz(r)))
        for t in range(2):
            for hf in range(2):
                r = AK + (t * 2 + hf) * 4
                mf.append('%s %s, %s, %s, %s' % (MFMA, vr(r), vr(wb + 8 + 4 * hf), vr(xs + 4 * t), cz(r)))
        for t in range(2):
            for hf in range(2):
                r = AV + (t * 2 + hf) * 4
                mf.append('%s %s, %s, %s, %s' % (MFMA, vr(r), vr(xs + 4 * t), vr(wb + 16 + 4 * hf), cz(r)))
        if first:
            mf.append('%s %s, %s, %s, %s' % (MFMA, vr(CSACC + 8), vr(CSACC), ar(A_ONES), cz(CSACC + 8)))
            mf.append('%s %s, %s, %s, %s' % (MFMA, vr(CSACC + 12), ar(A_ONES), vr(CSACC + 4), cz(CSACC + 12)))
        mem = {}

        def put(k, x):
            mem.setdefault(k, []).append(x)
        nm = len(mf)
        off = 0
        if first:
            a('ds_read_b128 %s, v252 offset:%d' % (vr(CSACC), 1024 * u))
            a('ds_read_b128 %s, v242 offset:%d' % (vr(CSACC + 4), 1024 * u))
            put(11, 's_waitcnt lgkmcnt(%d)' % (6 if u < 13 else 0))
        if first and u % 2 == 1 and u < 13:
            put(2, ('bar', (u + 1) // 2))
            off = 3
        if u < 13:
            for k, x in enumerate(a_wread(u + 1)):
                put(off + k, x)
        elif not first:
            for p in range(4):
                put(p, 'ds_read_b128 %s, v244 offset:%d' % (vr(WBUF[0] + 4 * p), 64 * p))
            for d in range(2):
                put(4 + d, 'ds_read_b32 v%d, v245 offset:%d' % (WBUF[0] + 16 + d, 64 * (4 + d)))
        if first and u < 2:
            for j_, uu in enumerate((2 * u + 2, 2 * u + 3)):
                for k, x in zip((6, 8), a_xload(uu)):
                    put(k + 4 * j_, x)
                put(8 + 4 * j_, ('xm', uu))
            if u == 0:
                for i, k in enumerate((7, 9, 11)):
                    put(k, ('wa', 2, i))
        elif u + LOOK < 14:
            for k, x in zip((6, 9), a_xload(u + LOOK)):
                put(k, x)
            put(9, ('xm', u + LOOK))
        if first and u % 2 == 0 and u // 2 + 3 <= 6:
            for i, k in enumerate((12, 13, 13) if u == 0 else (7, 10, 12)):
                put(k, ('wa', u // 2 + 3, i))
        order = list(range(4, 12)) + list(range(0, 4))
        if 2 <= u < 6:
            for k, x in zip((8, 11), order[2 * (u - 2):2 * (u - 2) + 2]):
                put(k, stat_loads[x])
        if not first and u == 3:
            put(7, ('estat',))
        if u in (7, 8):
            for k, x in zip((8, 11), order[8 + 2 * (u - 7):8 + 2 * (u - 7) + 2]):
                put(k, stat_loads[x])
            if u == 8:
                put(11, ('st',))
        if u == 6:
            put(10, 's_mov_b32 m0, s%d' % (sO + 1))
            for i, k in enumerate((10, 10, 11, 11)):
                put(k, 'buffer_load_dwordx4 v1, %s, s%d offen offset:%d sc1 lds' % (srd(S_WS), sO + 0, 1024 * i))
            put(11, ('hm',))
        if u == 13:
            put(8, ('early',))
        fill = stat_fill[(u - 11) * 22:(u - 10) * 22] if u >= 11 else []
        fi = 0
        for k, m in enumerate(mf):
            a(m)
            for it in mem.get(k, []):
                if isinstance(it, str):
                    a(it)
                elif it[0] == 'early':
                    ep_mark = early_issue(249, 248)
                elif it[0] == 'estat':
                    es_mark = early_issue(246, 247)
                elif it[0] == 'xm':
                    xmark[it[1]] = a.vm_mark()
                elif it[0] == 'st':
                    st_mark = a.vm_mark()
                elif it[0] == 'hm':
                    amark['halo'] = a.vm_mark()
                elif it[0] == 'bar':
                    a.wait_vm(wam[it[1]])
                    a('s_barrier')
                elif it[0] == 'wa':
                    wa_dma(it[1], it[2])()
                    wam[it[1]] = a.vm_mark()
            for _ in range(2):
                if fi < len(fill) and k >= 1:
                    a(fill[fi])
                    fi += 1
        assert fi == len(fill), (u, fi, len(fill))
    amark['ep'] = ep_mark


for p in range(4):
    a('v_mov_b32 v4, 0x3f803f80')
    a('v_accvgpr_write_b32 a%d, v4' % (A_ONES + p))
a('s_mul_i32 s%d, s%d, 14336' % (sWA[0], sW))
a('s_add_u32 s%d, s%d, 4' % (sA, sW))
a('s_mul_i32 s%d, s%d, 14336' % (sA, sA))
a('s_sub_u32 s%d, s%d, 2' % (sB, sW))
a('s_mul_i32 s%d, s%d, 14336' % (sB, sB))
a('s_add_u32 s%d, s%d, 1024' % (sB, sB))
a('s_cmp_lt_u32 s%d, 2' % sW)
a('s_cselect_b32 s%d, s%d, s%d' % (sWA[1], sA, sB))
a('s_add_u32 s%d, s%d, 2' % (sA, sW))
a('s_mul_i32 s%d, s%d, 14336' % (sA, sA))
a('s_add_u32 s%d, s%d, 1024' % (sWA[2], sA))
a('s_mul_i32 s%d, s%d, %d' % (sWAG, sC, 84 * 1024))
a('s_add_u32 s%d, s%d, %d' % (sWAG, sWAG, L.WA))
a_offsets()
xm0, wam0 = {}, {}


def wa_pair(pr):
    for i in range(3):
        wa_dma(pr, i)()
    wam0[pr] = a.vm_mark()


wa_pair(0)
for u in range(2):
    for t in a_xload(u):
        a(t)
    xm0[u] = a.vm_mark()
wa_pair(1)
a_setup()
a('s_mul_i32 s%d, s%d, 14336' % (sA, sW))
a('v_add_u32 v252, s%d, v1' % sA)
a('s_and_b32 s%d, s%d, 1' % (sA, sW))
a('s_mul_i32 s%d, s%d, 14336' % (sA, sA))
a('v_add_u32 v242, s%d, v243' % sA)
a.wait_vm(wam0[0])
a('s_barrier')
a('s_lshl_b32 s%d, s%d, 5' % (sA, sJ))
a('s_add_u32 s%d, s%d, s%d' % (sA, sA, sG))
a('s_lshl_b32 s%d, s%d, 2' % (sA, sA))
a('s_add_u32 s%d, s%d, %d' % (sA, sA, L.FP))
a('s_cmp_eq_u32 s%d, 0' % sW)
a('s_cselect_b32 s%d, s%d, 0x%x' % (sA, sA, INV))
a('v_mov_b32 v2, s%d' % sA)
a('s_mov_b64 exec, 1')
a('buffer_store_dword v%d, v2, %s, 0 offen sc1' % (V_T, srd(S_WS)))
a.vm_issued -= 1
a('s_mov_b64 exec, -1')
stamp()
emit_a_loop(True, xm0, wam0)
n_join = a.vm_issued - amark['ep']
CSQ = WBUF[0]
a('v_cmp_eq_u32 vcc, 0, v%d' % V_TOK)
a('s_lshl_b32 s%d, s%d, 6' % (sA, sW))
a('v_add_u32 v252, s%d, v244' % sA)
a('s_and_b32 s%d, s%d, 1' % (sA, sW))
a('s_lshl_b32 s%d, s%d, 6' % (sA, sA))
a('v_add_u32 v242, s%d, v245' % sA)
a('s_mov_b64 exec, vcc')
a('ds_write_b128 v252, %s' % vr(CSACC + 8))
a('s_mov_b64 exec, 0xffff')
a('ds_write_b32 v242, v%d offset:256' % (CSACC + 12))
a('s_mov_b64 exec, -1')
a('s_waitcnt lgkmcnt(0)')
a('s_barrier')
for p in range(4):
    a('ds_read_b128 %s, v244 offset:%d' % (vr(WBUF[0] + 4 * p), 64 * p))
for d in range(2):
    a('ds_read_b32 v%d, v245 offset:%d' % (WBUF[0] + 16 + d, 64 * (4 + d)))
with OutOfLine():
    a.label('L_pair')
    a_flag_addr(2)
    a('s_mov_b32 s%d, 0x3fff0000' % sMK)
    ASLEEP = int(([x[9:] for x in sys.argv if x.startswith('--asleep=')] + ['0'])[0])
    poll(2, None, ASLEEP)
    stamp()
    a_offsets()
    xmark = {}
    for u in range(LOOK):
        for t in a_xload(u):
            a(t)
        xmark[u] = a.vm_mark()
    a_setup()
    emit_a_loop(False, xmark, None)
    assert a.vm_issued - amark['ep'] == n_join
    ep_mark = amark['ep']
    a('s_branch L_a_epi')
a.label('L_a_epi')
stamp()
a('s_add_u32 s%d, s%d, 2' % (sA, sW))
a('s_mul_i32 s%d, s%d, 14336' % (sA, sA))
a('v_add_u32 v246, s%d, v1' % sA)
a('v_add_u32 v247, %d, v1' % L.L_R2)
a('s_cmp_lt_u32 s%d, 2' % sW)
a('s_cselect_b64 vcc, -1, 0')
a('v_cndmask_b32 v252, v247, v246, vcc')
a('v_cndmask_b32 v253, v246, v247, vcc')
a.wait_vm(amark['halo'])
a('s_barrier')
HOP = 90
def h_reads(u):
    r = HOP + 8 * (u % 3)
    return ['ds_read_b128 %s, v252 offset:%d' % (vr(r), 1024 * u), 'ds_read_b128 %s, v253 offset:%d' % (vr(r + 4), 1024 * u)]
for u in range(2):
    for x in h_reads(u):
        a(x)
rest = stat_fill[66:]
for u in range(14):
    if u + 2 < 14:
        for x in h_reads(u + 2):
            a(x)
    a('s_waitcnt lgkmcnt(%d)' % (4 if u < 12 else (2 if u == 12 else 0)))
    r = HOP + 8 * (u % 3)
    a('%s %s, %s, %s, %s' % (MFMA, vr(HACC), vr(r), vr(r + 4), '0' if u == 0 else vr(HACC)))
    if rest:
        a(rest.pop(0))
for x in rest:
    a(x)
stamp2()
early_check(249, 248, ep_mark)
BW = 2
a('s_lshl_b32 s%d, s%d, 6' % (sA, sJ))
a('s_lshl_b32 s%d, s%d, 2' % (sB, sW))
a('s_add_u32 s%d, s%d, s%d' % (sA, sA, sB))
a('s_lshl_b32 s%d, s%d, 10' % (sA, sA))
a('s_add_u32 s20, s%d, %d' % (sA, L.WB))
for t in range(1, 4):
    a('s_add_u32 s%d, s20, %d' % (20 + t, 16 * 1024 * t))
wb_all = ['buffer_load_dwordx4 %s, v1, %s, s%d offen offset:%d sc1' % (vr(BW + (i * 4 + t) * 4), srd(S_WS), 20 + t, 1024 * i)
          for i in range(4) for t in range(4)]
for x in wb_all[13:16]:
    a(x)
wb_loads = wb_all[8:13]
A_RES, A_B2 = 224, 232


def red_addrs():
    a('s_lshl_b32 s%d, s%d, 13' % (sA, sW))
    a('s_add_u32 s%d, s%d, %d' % (sA, sA, L.L_R2))
    a('v_add_u32 v248, s%d, v1' % sA)
    a('s_and_b32 s%d, s%d, 1' % (sA, sW))
    a('s_lshl_b32 s%d, s%d, 11' % (sA, sA))
    a('s_lshr_b32 s%d, s%d, 1' % (sB, sW))
    a('s_lshl_b32 s%d, s%d, 12' % (sB, sB))
    a('s_add_u32 s%d, s%d, s%d' % (sA, sA, sB))
    a('s_add_u32 s%d, s%d, %d' % (sA, sA, L.L_R2))
    a('v_add_u32 v249, s%d, v1' % sA)


def publish_setup(xbase, sbase, fbase, per_pair, fsh):
    owner_index()
    a('s_mul_i32 s%d, s%d, 14' % (sCc, sB))
    a('s_add_u32 s%d, s%d, s%d' % (sCc, sCc, sA))
    a('s_lshl_b32 s%d, s%d, 10' % (sPX, sCc))
    a('s_lshl_b32 s%d, s%d, 7' % (sPS, sCc))
    a('s_lshl_b32 s%d, s%d, %d' % (sPF, sB, fsh))
    a('s_add_u32 s%d, s%d, s%d' % (sPF, sPF, sA))
    a('s_lshl_b32 s%d, s%d, 2' % (sPF, sPF))
    for dst, arr in ((sPX, xbase), (sPS, sbase), (sPF, fbase)):
        if per_pair:
            pair_base(sD, arr)
            a('s_add_u32 s%d, s%d, s%d' % (dst, dst, sD))
        else:
            a('s_add_u32 s%d, s%d, %d' % (dst, dst, arr))
    a('s_add_u32 s%d, s%d, %d' % (sPX2, sPX, 2 * 14336))


def owner_index():
    a('s_lshr_b32 s%d, s%d, 1' % (sB, sW))
    a('s_lshl_b32 s%d, s%d, 2' % (sCc, sG))
    a('s_add_u32 s%d, s%d, s%d' % (sB, sB, sCc))
    a('s_and_b32 s%d, s%d, 1' % (sA, sW))
    a('s_lshl_b32 s%d, s%d, 1' % (sCc, sJ))
    a('s_add_u32 s%d, s%d, s%d' % (sA, sA, sCc))


a('s_cmp_eq_u32 s%d, 0' % sPAIR)
a('s_cbranch_scc0 L_a_nores')
owner_index()
a('s_mul_i32 s%d, s%d, 14' % (sB, sB))
a('s_add_u32 s%d, s%d, s%d' % (sB, sB, sA))
a('s_lshl_b32 s%d, s%d, 10' % (sB, sB))
a('s_add_u32 s%d, s%d, %d' % (sB, sB, L.XA[0]))
a('buffer_load_dwordx4 %s, v1, %s, s%d offen sc1' % (ar(A_RES), srd(S_WS), sB))
a('s_add_u32 s%d, s%d, %d' % (sB, sB, 2 * 14336))
a('buffer_load_dwordx4 %s, v1, %s, s%d offen sc1' % (ar(A_RES + 4), srd(S_WS), sB))
build_srd(S_TMP, P_B2, 896)
a('s_lshl_b32 s%d, s%d, 6' % (sB, sA))
a('v_lshlrev_b32 v240, 3, v%d' % V_G)
a('buffer_load_dwordx2 v[228:229], v240, %s, s%d offen' % (srd(S_TMP), sB))
a('buffer_load_dwordx2 v[230:231], v240, %s, s%d offen offset:32' % (srd(S_TMP), sB))
a.label('L_a_nores')
CSQ = WBUF[0]
a('s_mul_i32 s%d, s%d, 384' % (sA, sW))
a('s_add_u32 s%d, s%d, %d' % (sA, sA, L.L_STA))
a('v_lshl_add_u32 v246, v%d, 2, s%d' % (V_TOK, sA))
a('v_lshl_add_u32 v247, v%d, 4, s%d' % (V_G, sA))
a('s_mov_b64 exec, 0xffff')
for t in range(3):
    a('ds_write_b32 v246, v%d offset:%d' % (SM + t, 128 * t))
    a('ds_write_b32 v246, v%d offset:%d' % (SR + t, 128 * t + 64))
a('s_mov_b64 exec, -1')
MROW, RROW = 114, 126
a('s_waitcnt lgkmcnt(0)')
for t in range(3):
    a('ds_read_b128 %s, v247 offset:%d' % (vr(MROW + 4 * t), 128 * t))
    a('ds_read_b128 %s, v247 offset:%d' % (vr(RROW + 4 * t), 128 * t + 64))
QF, KF, VF = 140, 148, 160


def pk(op, dst, srcs, neg=None):
    ops, lo, hi = [], [], []
    for x in srcs:
        if isinstance(x, tuple):
            ops.append(vr(x[1] & ~1, 2))
            lo.append(x[1] & 1)
            hi.append(x[1] & 1)
        else:
            ops.append(vr(x, 2))
            lo.append(0)
            hi.append(1)
    t = '%s %s, %s op_sel:[%s] op_sel_hi:[%s]' % (op, vr(dst, 2), ', '.join(ops), ','.join(map(str, lo)), ','.join(map(str, hi)))
    if neg is not None:
        m = ','.join('1' if k == neg else '0' for k in range(len(srcs)))
        t += ' neg_lo:[%s] neg_hi:[%s]' % (m, m)
    return t


for t in range(2):
    for hf in range(2):
        r = AQ + (t * 2 + hf) * 4
        for i in (0, 2):
            a(pk('v_pk_fma_f32', r + i, [('b', SM + t + 1), CSQ + 4 * hf + i, r + i], 0))
        for p in range(2):
            a('v_cvt_pk_bf16_f32 v%d, v%d, v%d' % (QF + 4 * t + 2 * hf + p, r + 2 * p, r + 2 * p + 1))
        a(wb_all[2 * t + hf])
for t in range(2):
    for hf in range(2):
        r = AK + (t * 2 + hf) * 4
        for i in (0, 2):
            a(pk('v_pk_fma_f32', r + i, [('b', SM + t + 1), CSQ + 8 + 4 * hf + i, r + i], 0))
        for p in range(2):
            a('v_cvt_pk_bf16_f32 v%d, v%d, v%d' % (KF + 4 * (t + 1) + 2 * hf + p, r + 2 * p, r + 2 * p + 1))
        a(wb_all[4 + 2 * t + hf])
L_E, L_HX = L.L_R2 + 16384, L.L_R2 + 26624
a('s_lshl_b32 s%d, s%d, 11' % (sA, sW))
a('s_add_u32 s%d, s%d, %d' % (sA, sA, L_E))
a('v_add_u32 v246, s%d, v1' % sA)
a('s_lshl_b32 s%d, s%d, 10' % (sA, sW))
a('s_add_u32 s%d, s%d, %d' % (sA, sA, L_HX))
a('v_add_u32 v247, s%d, v1' % sA)
a('s_waitcnt lgkmcnt(0)')
for t in range(2):
    for d in range(2):
        r = AV + (t * 2 + d) * 4
        for i in (0, 2):
            a(pk('v_pk_fma_f32', r + i, [MROW + 4 * (t + 1) + i, ('b', CSQ + 16 + d), r + i], 0))
        for p in range(2):
            a('v_cvt_pk_bf16_f32 v%d, v%d, v%d' % (VF + 6 * d + 2 * (t + 1) + p, r + 2 * p, r + 2 * p + 1))
a('ds_write_b128 v246, %s offset:2048' % vr(KF + 8))
a('ds_write_b64 v246, %s offset:3072' % vr(VF + 4, 2))
a('ds_write_b64 v246, %s offset:3080' % vr(VF + 10, 2))
a('ds_write_b128 v247, %s' % vr(HACC))
pair_base(sA, L.O)
a('s_lshl_b32 s%d, s%d, 4' % (sB, sGT))
a('s_add_u32 s%d, s%d, s%d' % (sB, sB, sC))
a('s_lshl_b32 s%d, s%d, 10' % (sB, sB))
a('s_add_u32 s32, s%d, s%d' % (sA, sB))
a('s_add_u32 s33, s32, 16384')
stamp2()
a('s_waitcnt lgkmcnt(0)')
a('s_barrier')
stamp2()
SS = 172
a('s_cmp_eq_u32 s%d, 0' % sW)
a('s_cbranch_scc1 L_a_halo')
a('ds_read_b128 %s, v246' % vr(KF))
a('ds_read_b64 %s, v246 offset:1024' % vr(VF, 2))
a('ds_read_b64 %s, v246 offset:1032' % vr(VF + 6, 2))
a('s_waitcnt lgkmcnt(0)')
a('s_branch L_a_prev')
a.label('L_a_halo')
a('v_add_u32 v247, %d, v1' % L_HX)
for p in range(4):
    a('ds_read_b128 %s, v247 offset:%d' % (vr(SS + 4 * p), 1024 * p))
a('s_waitcnt lgkmcnt(0)')
for hf in range(2):
    r = SS + 4 * hf
    for i in (0, 2):
        a(pk('v_pk_fma_f32', r + i, [('b', SM), CSQ + 8 + 4 * hf + i, r + i], 0))
    for p in range(2):
        a('v_cvt_pk_bf16_f32 v%d, v%d, v%d' % (KF + 2 * hf + p, r + 2 * p, r + 2 * p + 1))
for d in range(2):
    r = SS + 8 + 4 * d
    for i in (0, 2):
        a(pk('v_pk_fma_f32', r + i, [MROW + i, ('b', CSQ + 16 + d), r + i], 0))
    for p in range(2):
        a('v_cvt_pk_bf16_f32 v%d, v%d, v%d' % (VF + 6 * d + p, r + 2 * p, r + 2 * p + 1))
a.label('L_a_prev')
a('s_nop 1')
for t in range(2):
    a('%s %s, %s, %s, 0' % (MFMA, vr(SS + 8 * t), vr(KF + 4 * t), vr(QF + 4 * t)))
    a('%s %s, %s, %s, 0' % (MFMA, vr(SS + 8 * t + 4), vr(KF + 4 * t + 4), vr(QF + 4 * t)))
SCALE = (28.0 ** -0.5) * 1.4426950408889634
MX, CC, LS, TMPR = 190, 192, 194, 196
PF = 200
SUMT = [(224, 226), (232, 188)]
a('v_mov_b32 v198, 0xff800000')
seq = [[], []]
for t in range(2):
    s_ = SS + 8 * t
    q = seq[t]
    rr = lambda e: RROW + 4 * (t + (e >> 2)) + (e & 3)
    for e in range(0, 8, 2):
        q.append(pk('v_pk_mul_f32', s_ + e, [s_ + e, rr(e)]))
    for e in range(8):
        mk = (sM0 if t == 0 else sM1) + 2 * e if e < 4 else sM2 + 2 * (e - 4)
        q.append('v_cndmask_b32 v%d, v198, v%d, %s' % (s_ + e, s_ + e, sp(mk)))
    q.append('v_max3_f32 v%d, v%d, v%d, v%d' % (MX + t, s_, s_ + 1, s_ + 2))
    q.append('v_max3_f32 v%d, v%d, v%d, v%d' % (MX + t, MX + t, s_ + 3, s_ + 4))
    q.append('v_max3_f32 v%d, v%d, v%d, v%d' % (MX + t, MX + t, s_ + 5, s_ + 6))
    q.append('v_max_f32 v%d, v%d, v%d' % (MX + t, MX + t, s_ + 7))
    q += xg_reduce(MX + t, TMPR + t, 'v_max_f32')
    q.append('v_mul_f32 v%d, %s, v%d' % (CC + t, f2h(SCALE), SR + t + 1))
    q.append('v_mul_f32 v%d, v%d, v%d' % (MX + t, MX + t, CC + t))
    for e in range(0, 8, 2):
        q.append(pk('v_pk_fma_f32', s_ + e, [s_ + e, ('b', CC + t), ('b', MX + t)], 2))
    for e in range(8):
        q.append('v_exp_f32 v%d, v%d' % (s_ + e, s_ + e))
    u_, u2 = SUMT[t]
    q.append(pk('v_pk_add_f32', u_, [s_, s_ + 2]))
    q.append(pk('v_pk_add_f32', u2, [s_ + 4, s_ + 6]))
    q.append(pk('v_pk_add_f32', u_, [u_, u2]))
    q.append('v_add_f32 v%d, v%d, v%d' % (LS + t, u_, u_ + 1))
    q += xg_reduce(LS + t, TMPR + t)
    q.append('v_rcp_f32 v%d, v%d' % (LS + t, LS + t))
    for e in range(0, 8, 2):
        q.append(pk('v_pk_mul_f32', s_ + e, [s_ + e, rr(e)]))
    for p in range(4):
        q.append('v_cvt_pk_bf16_f32 v%d, v%d, v%d' % (PF + 4 * t + p, s_ + 2 * p, s_ + 2 * p + 1))
merged = [z for xy in zip(*seq) for z in xy]
gap = len(merged) // (len(wb_loads) + 1)
for k, x in enumerate(merged):
    a(x)
    if k % gap == gap - 1 and wb_loads:
        a(wb_loads.pop(0))
assert not wb_loads
stamp2()
OO = 208
for t in range(2):
    for d in range(2):
        a('%s %s, %s, %s, 0' % (MFMA, vr(OO + 8 * t + 4 * d), vr(VF + 6 * d + 2 * t), vr(PF + 4 * t)))
for t in range(2):
    for e in range(0, 8, 2):
        a(pk('v_pk_mul_f32', OO + 8 * t + e, [OO + 8 * t + e, ('b', LS + t)]))
    for p in range(4):
        a('v_cvt_pk_bf16_f32 v%d, v%d, v%d' % (PF + 4 * t + p, OO + 8 * t + 2 * p, OO + 8 * t + 2 * p + 1))
    store('buffer_store_dwordx4 %s, v1, %s, s%d offen' % (vr(PF + 4 * t), srd(S_WS), 32 + t), sFD)
o_mark = a.vm_mark()
stamp2()
pair_base(sA, L.FA)
a('s_lshl_b32 s%d, s%d, 4' % (sB, sGT))
a('s_add_u32 s%d, s%d, s%d' % (sB, sB, sC))
a('s_lshl_b32 s%d, s%d, 2' % (sB, sB))
a('s_add_u32 s%d, s%d, s%d' % (sA, sA, sB))
a('v_lshlrev_b32 v241, 6, v0')
a('v_add_u32 v241, s%d, v241' % sA)
pair_base(sA, L.FA)
a('s_lshl_b32 s%d, s%d, 8' % (sB, sG))
a('s_add_u32 s%d, s%d, s%d' % (sA, sA, sB))
a('v_lshl_add_u32 v240, v0, 2, s%d' % sA)
a('s_lshl_b32 s%d, s%d, 2' % (sB, sW))
a('s_lshl_b32 s%d, 0x000f000f, s%d' % (sMK, sB))
a('s_mov_b32 s%d, s%d' % (sMK + 1, sMK))
red_addrs()
publish_setup(L.XB, L.SB, L.FB, True, 4)
a('s_mov_b32 s%d, s%d' % (sPC, sFD))
a('s_mov_b32 s%d, s%d' % (sPFC, sFAST))
pair_base(sA, L.O)
a('s_lshl_b32 s%d, s%d, 6' % (sB, sG))
a('s_lshl_b32 s%d, s%d, 2' % (sCc, sW))
a('s_add_u32 s%d, s%d, s%d' % (sB, sB, sCc))
a('s_lshl_b32 s%d, s%d, 10' % (sB, sB))
a('s_add_u32 s20, s%d, s%d' % (sA, sB))
for t in range(1, 4):
    a('s_add_u32 s%d, s20, %d' % (20 + t, 16384 * t))
a.wait_vm(o_mark)
a('s_mov_b64 exec, 3')
store('buffer_store_dword v%d, v241, %s, 0 offen' % (V_T, srd(S_WS)), sFAST)
a('s_mov_b64 exec, -1')
stamp()
a('s_cmp_eq_u32 s%d, 7' % sJ)
a('s_cbranch_scc1 L_next_pair')


def wd_bases():
    a('s_lshl_b32 s%d, s%d, 2' % (sA, sJ))
    a('s_mul_i32 s%d, s%d, %d' % (sA, sA, 56 * 1024))
    a('s_mul_i32 s%d, s%d, %d' % (sB, sW, 14 * 1024))
    a('s_add_u32 s%d, s%d, s%d' % (sA, sA, sB))
    a('s_add_u32 s%d, s%d, %d' % (sO, sA, L.WD))
    quarter_offsets(4, 56 * 1024)


def wd_load(fi):
    kk, t = fi >> 2, fi & 3
    return ('buffer_load_dwordx4 %s, v1, %s, s%d offen offset:%d sc1' %
            (ar(4 * fi), srd(S_WS), sO + 4 * t + (kk >> 2), 1024 * (kk & 3)))


WD_CH = [(0, 12), (12, 56)]
BO, BACC, BRD, BTMP = 66, 130, 194, 226
a('s_cmp_eq_u32 s%d, 0' % sPAIR)
a('s_cbranch_scc0 L_b_start')
for k in range(4):
    a('v_lshlrev_b32 v236, 16, v%d' % (228 + k))
    a('v_and_b32 v237, 0xffff0000, v%d' % (228 + k))
    a('v_accvgpr_write_b32 a%d, v236' % (A_B2 + 2 * k))
    a('v_accvgpr_write_b32 a%d, v237' % (A_B2 + 2 * k + 1))
wd_bases()
for fi in range(*WD_CH[0]):
    a(wd_load(fi))
a.label('L_b_start')
CWW = 66
sCI = 41
a('s_lshr_b32 s%d, s%d, 3' % (sA, sC))
a('s_mul_i32 s%d, s%d, 7' % (sA, sA))
a('s_add_u32 s%d, s%d, s%d' % (sCI, sA, sJ))
a('s_lshl_b32 s%d, s%d, 3' % (sA, sCI))
a('s_lshl_b32 s%d, s%d, 1' % (sB, sW))
a('s_add_u32 s%d, s%d, s%d' % (sA, sA, sB))
a('s_mul_i32 s%d, s%d, %d' % (sB, sA, 14 * 1024))
a('s_add_u32 s%d, s%d, %d' % (sO, sB, L.WC))
quarter_offsets(2, 14 * 1024)


def c_wload(idx):
    u, k = idx >> 1, idx & 1
    return ('buffer_load_dwordx4 %s, v1, %s, s%d offen offset:%d sc1' %
            (vr(CWW + 4 * idx), srd(S_WS), sO + 4 * k + (u >> 2), 1024 * (u & 3)))


def red_writes(acc, tile):
    return ['ds_write_b128 v248, %s offset:%d' % (vr(acc + 4 * t), (tile >> 1) * 32768 + (tile & 1) * 4096 + t * 1024)
            for t in range(4)]


def red_reads(st, rd):
    return ['ds_read_b128 %s, v249 offset:%d' % (vr(rd + (b * 2 + k) * 4), st * 32768 + b * 8192 + k * 1024)
            for b in range(4) for k in range(2)]


def add8(dst, x, y, packed):
    if packed:
        return ['v_pk_add_f32 %s, %s, %s' % (vr(dst + e, 2), vr(x + e, 2), vr(y + e, 2)) for e in range(0, 8, 2)]
    return ['v_add_f32 v%d, v%d, v%d' % (dst + e, x + e, y + e) for e in range(8)]


def finish_pre(st, is_d, tmp):
    res = A_RES + 4 * st
    o = ['v_accvgpr_read_b32 v%d, a%d' % (tmp + 8 + p, res + p) for p in range(4)]
    for p in range(4):
        o += ['v_lshlrev_b32 v%d, 16, v%d' % (tmp + 2 * p, tmp + 8 + p),
              'v_and_b32 v%d, 0xffff0000, v%d' % (tmp + 2 * p + 1, tmp + 8 + p)]
    if is_d:
        o += ['v_accvgpr_read_b32 v%d, a%d' % (tmp + 8 + e, A_B2 + e) for e in range(8)]
        o += ['v_add_f32 v%d, v%d, v%d' % (tmp + e, tmp + e, tmp + 8 + e) for e in range(8)]
    return o


def finish_sum(st, rd, tmp, pk, packed):
    o = add8(rd, rd, rd + 8, packed) + add8(rd + 16, rd + 16, rd + 24, packed) + add8(rd, rd, rd + 16, packed)
    o += add8(tmp, tmp, rd, packed)
    o += ['v_cvt_pk_bf16_f32 v%d, v%d, v%d' % (pk + p, tmp + 2 * p, tmp + 2 * p + 1) for p in range(4)]
    o += ['v_accvgpr_write_b32 a%d, v%d' % (A_RES + 4 * st + p, pk + p) for p in range(4)]
    return o


def owner_stats(tmp, s1, t):
    a('v_pk_add_f32 %s, %s, %s' % (vr(t, 2), vr(tmp, 2), vr(tmp + 2, 2)))
    a('v_pk_add_f32 %s, %s, %s' % (vr(t + 2, 2), vr(tmp + 4, 2), vr(tmp + 6, 2)))
    a('v_pk_add_f32 %s, %s, %s' % (vr(t, 2), vr(t, 2), vr(t + 2, 2)))
    a('v_add_f32 v%d, v%d, v%d' % (s1, t, t + 1))
    a('v_pk_mul_f32 %s, %s, %s' % (vr(t, 2), vr(tmp, 2), vr(tmp, 2)))
    for e in (2, 4, 6):
        a('v_pk_fma_f32 %s, %s, %s, %s' % (vr(t, 2), vr(tmp + e, 2), vr(tmp + e, 2), vr(t, 2)))
    a('v_add_f32 v%d, v%d, v%d' % (s1 + 1, t, t + 1))
    for x, y in zip(xg_reduce(s1, t), xg_reduce(s1 + 1, t + 1)):
        a(x)
        a(y)


def publish_data(st, pk):
    store('buffer_store_dwordx4 %s, v1, %s, s%d offen offset:0' % (vr(pk), srd(S_WS), sPX if st == 0 else sPX2), sPC)


def publish_stats(tmps, t, s1):
    a('v_and_b32 v%d, 15, v0' % V_TOK)
    a('v_lshlrev_b32 v%d, 3, v%d' % (t + 4, V_TOK))
    for st in range(2):
        owner_stats(tmps[st], s1 + 2 * st, t)
    a('s_mov_b64 exec, 0xffff')
    store('buffer_store_dwordx2 %s, v%d, %s, s%d offen' % (vr(s1, 2), t + 4, srd(S_WS), sPS), sPC)
    a('s_add_u32 s%d, s%d, %d' % (sPS, sPS, 2 * 1792))
    store('buffer_store_dwordx2 %s, v%d, %s, s%d offen' % (vr(s1 + 2, 2), t + 4, srd(S_WS), sPS), sPC)
    a('s_mov_b64 exec, -1')


def publish_flags(lsh, between=()):
    a('v_lshlrev_b32 v241, %d, v0' % lsh)
    a('v_add_u32 v241, s%d, v241' % sPF)
    set_flags(241, 2, sPFC, V_T, between)


def run_tiles(tile_items, extras):
    for tile in range(4):
        if tile and '--diag3' in sys.argv:
            stamp()
        items = tile_items(tile)
        ex = list(extras.get(tile, []))
        free = [k for k, it in enumerate(items) if k >= 3 and not it[2]]
        per = -(-len(ex) // max(1, len(free))) if ex else 0
        for k, (pre, m, post) in enumerate(items):
            for x in pre:
                x()
            a(m)
            if post:
                post()
            elif k >= 3:
                for _ in range(per):
                    if ex:
                        x = ex.pop(0)
                        if callable(x):
                            x()
                        else:
                            a(x)
        assert not ex


poll(240)
a('s_barrier')
stamp()


def b_oload(tile, i):
    return 'buffer_load_dwordx4 %s, v1, %s, s%d offen offset:%d sc1' % (vr(BO + (tile * 4 + i) * 4), srd(S_WS), 20 + tile, 1024 * i)


om = {}
for tile in range(2):
    for i in range(4):
        a(b_oload(tile, i))
        om[(tile, i)] = a.vm_mark()


def b_tile(tile):
    items = []
    for i in range(4):
        for t in range(4):
            r = BACC + (tile * 4 + t) * 4
            pre = [(lambda tl=tile, ii=i: a.wait_vm(om[(tl, ii)]))] if t == 0 else []
            post = None
            if tile < 2 and t == 1:
                def post(tl=tile + 2, ii=i):
                    a(b_oload(tl, ii))
                    om[(tl, ii)] = a.vm_mark()
            if tile >= 2 and t == 1:
                def post(idx=4 * (tile - 2) + i):
                    a(c_wload(idx))
            items.append((pre, '%s %s, %s, %s, %s' % (MFMA, vr(r), vr(BW + (i * 4 + t) * 4), vr(BO + (tile * 4 + i) * 4),
                                                      '0' if i == 0 else vr(r)), post))
    return items


BT0, BT1, BPK = 226, 2, 18
run_tiles(b_tile, {1: red_writes(BACC, 0), 2: red_writes(BACC + 16, 1), 3: red_writes(BACC + 32, 2)})
stamp2()
for x in red_writes(BACC + 48, 3):
    a(x)
for x in finish_pre(0, False, BT0) + finish_pre(1, False, BT1):
    a(x)
a('s_waitcnt lgkmcnt(0)')
a('s_barrier')
stamp2()
BRD1 = 162
for x in red_reads(0, BRD) + red_reads(1, BRD1):
    a(x)
a('s_waitcnt lgkmcnt(8)')
for x in finish_sum(0, BRD, BT0, BPK, True):
    a(x)
publish_data(0, BPK)
a('s_waitcnt lgkmcnt(0)')
for x in finish_sum(1, BRD1, BT1, BPK + 4, True):
    a(x)
publish_data(1, BPK + 4)
stamp2()
publish_stats([BT0, BT1], 36, 32)
b_mark = a.vm_mark()
a('v_lshlrev_b32 v236, 7, v0')
a('v_add_u32 v236, s%d, v236' % sPF)
for i in range(8, 16):
    a(c_wload(i))
CA = [2, 10]
XF, NXF = 18, 8
GTMP, GH = 50, 58
CCS, CB1, CB1R = 178, 186, 194
CSTR = 198
CMR = 214
VGA = 218
a('v_lshrrev_b32 v%d, 4, v0' % V_G)
a('v_and_b32 v%d, 15, v0' % V_TOK)
pair_base(sA, L.FB)
a('s_lshl_b32 s%d, s%d, 9' % (sB, sS))
a('s_add_u32 s%d, s%d, s%d' % (sA, sA, sB))
a('v_lshl_add_u32 v240, v0, 2, s%d' % sA)
a('s_mov_b32 s%d, 0x3fff3fff' % sMK)
a('s_mov_b32 s%d, 0x3fff3fff' % (sMK + 1))
pair_base(20, L.XB)
a('s_mul_i32 s%d, s%d, %d' % (sB, sS, 8 * 14336))
a('s_add_u32 s20, s20, s%d' % sB)
a('s_lshl_b32 s%d, s%d, 12' % (sB, sW))
a('s_add_u32 s20, s20, s%d' % sB)
a('s_add_u32 s21, s%d, %d' % (sB, L.L_R2))
pair_base(22, L.SB)
a('s_lshl_b32 s%d, s%d, 3' % (sB, sS))
a('s_add_u32 s%d, s%d, s%d' % (sB, sB, sW))
a('s_mul_i32 s%d, s%d, 1792' % (sB, sB))
a('s_add_u32 s22, s22, s%d' % sB)
a('s_add_u32 s23, s22, %d' % (4 * 1792))
pair_base(32, L.H)
a('s_mul_i32 s%d, s%d, %d' % (sB, sS, 8 * 56 * 1024))
a('s_add_u32 s32, s32, s%d' % sB)
a('s_lshl_b32 s%d, s%d, 2' % (sB, sCI))
a('s_add_u32 s%d, s%d, s%d' % (sB, sB, sW))
a('s_lshl_b32 s%d, s%d, 10' % (sCc, sB))
a('s_add_u32 s32, s32, s%d' % sCc)
pair_base(33, L.FC)
a('s_lshl_b32 s%d, s%d, 11' % (sCc, sS))
a('s_add_u32 s33, s33, s%d' % sCc)
a('s_lshl_b32 s%d, s%d, 2' % (sB, sB))
a('s_add_u32 s33, s33, s%d' % sB)
a('v_mov_b32 v241, s33')
a('v_mov_b32 v242, 0x%x' % INV)
a('v_cmp_eq_u32 vcc, 0, v0')
a('v_cndmask_b32 v241, v242, v241, vcc')
a('v_lshlrev_b32 v238, 3, v%d' % V_TOK)
a('v_lshl_add_u32 v238, v%d, 7, v238' % V_G)
a('v_mov_b32 v242, 0x%x' % INV)
a('v_cmp_lt_u32 vcc, 1, v%d' % V_G)
a('v_cndmask_b32 v239, 0, v242, vcc')
a('v_or_b32 v239, v239, v238')
a('v_add_u32 v252, %d, v1' % L.L_R2)
a('v_lshlrev_b32 v246, 3, v%d' % V_TOK)
a('v_add_u32 v246, %d, v246' % L.L_STC)
GA = 2.0 * 0.7978845608028654 * 1.4426950408889634
GB = GA * 0.044715
a('v_mov_b32 v%d, %s' % (VGA, f2h(-GA)))
a('v_mov_b32 v%d, %s' % (VGA + 1, f2h(-GA)))
a('s_mov_b32 s34, %s' % f2h(-GB))
a('s_mov_b32 s35, %s' % f2h(-GB))
wd_bases_hi = True
a.wait_vm(b_mark)
a('s_mov_b64 exec, 3')
store('buffer_store_dword v%d, v236, %s, 0 offen' % (V_T, srd(S_WS)), sPFC)
a('s_mov_b64 exec, -1')
stamp()

for i in range(16, 22):
    a(c_wload(i))
a('s_lshl_b32 s%d, s%d, 3' % (sA, sCI))
a('s_lshl_b32 s%d, s%d, 1' % (sB, sW))
a('s_add_u32 s%d, s%d, s%d' % (sA, sA, sB))
a('s_lshl_b32 s24, s%d, 5' % sA)
a('v_lshlrev_b32 v248, 3, v%d' % V_G)
for k in range(2):
    a('buffer_load_dwordx2 %s, v248, %s, s24 offen offset:%d' % (vr(CB1R + 2 * k, 2), srd(S_B1), 32 * k))
poll(240, 256)
stamp()


TORD = [0, 4, 1, 5, 2, 6, 3, 7]


def c_dma_setup(t):
    return ['s_add_u32 s36, s20, %d' % (TORD[t] * 14336), 's_add_u32 m0, s21, %d' % ((t & 3) * 16384)]


def c_dma(t, i):
    return 'buffer_load_dwordx4 v1, %s, s36 offen offset:%d sc1 lds' % (srd(S_WS), 1024 * i)


dm = {}
for x in c_dma_setup(0) + [c_dma(0, i) for i in range(4)]:
    a(x)
dm[0] = a.vm_mark()
wlate = {}
for i in range(22, 28):
    a(c_wload(i))
    wlate[i >> 1] = a.vm_mark()
for tt in range(2):
    for i in range(4):
        a('buffer_load_dwordx2 %s, v%d, %s, s%d offen offset:%d sc1' %
          (vr(CSTR + 8 * tt + 2 * i, 2), 239 if i == 3 else 238, srd(S_WS), 22 + tt, 512 * i))
amark['cst'] = a.vm_mark()
for x in c_dma_setup(1) + [c_dma(1, i) for i in range(4)]:
    a(x)
dm[1] = a.vm_mark()
wd_bases()
t0_loads = []
b1_unpack = []
for k in range(2):
    for p in range(2):
        b1_unpack += ['v_lshlrev_b32 v%d, 16, v%d' % (CB1 + 4 * k + 2 * p, CB1R + 2 * k + p),
                      'v_and_b32 v%d, 0xffff0000, v%d' % (CB1 + 4 * k + 2 * p + 1, CB1R + 2 * k + p)]
a.wait_vm(dm[0])
a('s_barrier')
stamp()


def c_xread(t, u):
    n = t * 14 + u
    return 'ds_read_b128 %s, v252 offset:%d' % (vr(XF + 4 * (n % NXF)), (t & 3) * 16384 + u * 1024)


def gelu_pre(t):
    z, m = CA[t & 1], CMR + 2 * (t & 1)
    P = range(0, 8, 2)
    o = ['v_pk_fma_f32 %s, %s, %s, %s op_sel_hi:[1,0,1] neg_lo:[0,1,0] neg_hi:[0,1,0]' % (vr(z + e, 2), vr(CCS + e, 2), vr(m, 2), vr(z + e, 2)) for e in P]
    o += ['v_pk_fma_f32 %s, %s, %s, %s op_sel:[0,1,0] op_sel_hi:[1,1,1]' % (vr(z + e, 2), vr(z + e, 2), vr(m, 2), vr(CB1 + e, 2)) for e in P]
    o += ['v_pk_mul_f32 %s, %s, %s' % (vr(GTMP + e, 2), vr(z + e, 2), vr(z + e, 2)) for e in P]
    o += ['v_pk_fma_f32 %s, %s, s[34:35], %s' % (vr(GTMP + e, 2), vr(GTMP + e, 2), vr(VGA, 2)) for e in P]
    o += ['v_pk_mul_f32 %s, %s, %s' % (vr(GTMP + e, 2), vr(GTMP + e, 2), vr(z + e, 2)) for e in P]
    return o


def gelu_mid():
    o = {}
    for e in range(8):
        o.setdefault(2 * e, []).append('v_exp_f32 v%d, v%d' % (GTMP + e, GTMP + e))
        o.setdefault(2 * e + 3, []).append('v_add_f32 v%d, 1.0, v%d' % (GTMP + e, GTMP + e))
    for e in range(6):
        o.setdefault(16 + 2 * e, []).append('v_rcp_f32 v%d, v%d' % (GTMP + e, GTMP + e))
    o.setdefault(25, []).append('v_rcp_f32 v%d, v%d' % (GTMP + 6, GTMP + 6))
    o.setdefault(27, []).append('v_rcp_f32 v%d, v%d' % (GTMP + 7, GTMP + 7))
    return o


def gelu_post(t):
    z, h = CA[t & 1], GH + 4 * (t & 1)
    o = ['v_pk_mul_f32 %s, %s, %s' % (vr(GTMP + e, 2), vr(GTMP + e, 2), vr(z + e, 2)) for e in range(0, 8, 2)]
    o += ['v_cvt_pk_bf16_f32 v%d, v%d, v%d' % (h + p, GTMP + 2 * p, GTMP + 2 * p + 1) for p in range(4)]
    return o


def gelu_packed(t):
    z, m, h = CA[t & 1], CMR + 2 * (t & 1), GH + 4 * (t & 1)
    P = range(0, 8, 2)
    for e in P:
        a('v_pk_fma_f32 %s, %s, %s, %s op_sel_hi:[1,0,1] neg_lo:[0,1,0] neg_hi:[0,1,0]' % (vr(z + e, 2), vr(CCS + e, 2), vr(m, 2), vr(z + e, 2)))
    for e in P:
        a('v_pk_fma_f32 %s, %s, %s, %s op_sel:[0,1,0] op_sel_hi:[1,1,1]' % (vr(z + e, 2), vr(z + e, 2), vr(m, 2), vr(CB1 + e, 2)))
    for e in P:
        a('v_pk_mul_f32 %s, %s, %s' % (vr(GTMP + e, 2), vr(z + e, 2), vr(z + e, 2)))
    for e in P:
        a('v_pk_fma_f32 %s, %s, s[34:35], %s' % (vr(GTMP + e, 2), vr(GTMP + e, 2), vr(VGA, 2)))
    for e in P:
        a('v_pk_mul_f32 %s, %s, %s' % (vr(GTMP + e, 2), vr(GTMP + e, 2), vr(z + e, 2)))
    for e in range(8):
        a('v_exp_f32 v%d, v%d' % (GTMP + e, GTMP + e))
    for e in P:
        a('v_pk_add_f32 %s, %s, 1.0 op_sel_hi:[1,0]' % (vr(GTMP + e, 2), vr(GTMP + e, 2)))
    for e in range(8):
        a('v_rcp_f32 v%d, v%d' % (GTMP + e, GTMP + e))
    for e in P:
        a('v_pk_mul_f32 %s, %s, %s' % (vr(GTMP + e, 2), vr(GTMP + e, 2), vr(z + e, 2)))
    for p in range(4):
        a('v_cvt_pk_bf16_f32 v%d, v%d, v%d' % (h + p, GTMP + 2 * p, GTMP + 2 * p + 1))


hmk, fmk = {}, {}


def h_store(t):
    def f():
        a('s_add_u32 s24, s32, %d' % (TORD[t] * 56 * 1024))
        store('buffer_store_dwordx4 %s, v1, %s, s24 offen' % (vr(GH + 4 * (t & 1)), srd(S_WS)), sFH)
        hmk[t] = a.vm_mark()
    return f


def h_flag(t):
    def f():
        a.wait_vm(hmk[t])
        store('buffer_store_dword v%d, v241, %s, 0 offen offset:%d' % (V_T, srd(S_WS), 256 * TORD[t]), sFAST)
    return f


def wd_block(fis, wave):
    def f():
        skip = newlab('L_wd')
        a('s_cmp_eq_u32 s24, %d' % wave)
        a('s_cbranch_scc0 %s' % skip)
        for fi in fis:
            a(wd_load(fi))
            a.vm_issued -= 1
        a.label(skip)
    return f


cst_fill = []
for tt in range(2):
    r = CSTR + 8 * tt
    for c_ in range(2):
        cst_fill += ['v_add_f32 v%d, v%d, v%d' % (r + c_, r + c_, r + 2 + c_),
                     'v_add_f32 v%d, v%d, v%d' % (r + 4 + c_, r + 4 + c_, r + 6 + c_),
                     'v_add_f32 v%d, v%d, v%d' % (r + c_, r + c_, r + 4 + c_)]
    cst_fill += xg_reduce(r, r + 2) + xg_reduce(r + 1, r + 3) + stats_finish(r, r + 1, r + 2, True)
a('s_lshl_b32 s%d, s%d, 7' % (sA, sW))
a('v_add_u32 v247, s%d, v246' % sA)
cst_fill += ['ds_write_b64 v247, %s' % vr(CSTR, 2), 'ds_write_b64 v247, %s offset:512' % vr(CSTR + 8, 2)] + b1_unpack
LOOKX = 6


A_CCS = 244


DFIRST = [194, 198, 202, 206, 210, 220, 224, 228, 232]
hm = {}


def emit_c_loop(wd_list):
    pass0 = bool(wd_list)
    if not pass0:
        for e in range(8):
            a('v_accvgpr_read_b32 v%d, a%d' % (CCS + e, A_CCS + e))
    for u in range(LOOKX):
        a(c_xread(0, u))
    for t in range(8):
        nonvec = {}

        def put(k, x):
            nonvec.setdefault(k, []).append(x)
        for u in range(14):
            n = t * 14 + u
            m = n + LOOKX
            if m < 8 * 14:
                put(2 * u + 1, c_xread(m // 14, m % 14))
            if u % 2 == 1 and n + 1 < 8 * 14:
                put(2 * u + 1, 's_waitcnt lgkmcnt(%d)' % min(LOOKX - 2, 8 * 14 - 1 - (n + 2)))
        if t < 7:
            nonvec[14] = [('bar', t + 1)] + nonvec.get(14, [])
        if t + 2 < 8:
            su = c_dma_setup(t + 2)
            put(0, su[0])
            put(0, su[1])
            for i in range(4):
                put(2 + 2 * i, ('dma', t + 2, i))
        if t >= 3:
            put(20, ('call', h_flag(t - 3)))
        if t == 1:
            put(0, 's_add_u32 s22, s25, 12288')
        if t == 5:
            def issue_d0():
                amark['d0'] = early_issue(244, 243)
            put(22, ('call', issue_d0))
        if t == 6:
            put(2, ('call', lambda: early_check(244, 243, amark['d0'])))
        if t in (6, 7):
            for k, q in zip((4, 6, 8, 20, 22) if t == 6 else (2, 4, 6, 8), range(0, 5) if t == 6 else range(5, 9)):
                put(k, ('h0', q))
        if t < 7:
            for k in (10, 12, 16, 18, 22, 24, 26):
                if wd_list:
                    put(k, wd_load(wd_list.pop(0)))
        if t > 0:
            put(17, 'ds_read_b64 %s, v246 offset:%d' % (vr(CMR + 2 * (t & 1), 2), 128 * TORD[t]))
        if t == 0:
            for k, it in enumerate(t0_loads):
                put(k, ('t0', it))
        valu = gelu_mid() if t >= 1 else {}
        if t >= 2:
            for x in gelu_post(t - 2):
                a(x)
            h_store(t - 2)()
        if t >= 1:
            for x in gelu_pre(t - 1):
                a(x)
        fill = list(cst_fill) if t == 0 else []
        first = 8
        fi = 0
        for k in range(28):
            u, kk = k >> 1, k & 1
            n = t * 14 + u
            if t == 0 and k == 0:
                a('s_waitcnt lgkmcnt(%d)' % (LOOKX - 2))
            if t == 0 and kk == 0 and u in wlate:
                a.wait_vm(wlate[u])
            if t == 0 and k == first:
                a.wait_vm(amark['cst'])
            r = CA[t & 1] + 4 * kk
            a('%s %s, %s, %s, %s' % (MFMA, vr(r), vr(CWW + 4 * (2 * u + kk)), vr(XF + 4 * (n % NXF)), '0' if u == 0 else vr(r)))
            if pass0 and t == 0:
                a('%s %s, %s, %s, %s' % (MFMA, vr(CCS + 4 * kk), vr(CWW + 4 * (2 * u + kk)), ar(A_ONES), '0' if u == 0 else vr(CCS + 4 * kk)))
            for it in nonvec.get(k, []):
                if isinstance(it, str):
                    a(it)
                elif it[0] == 'bar':
                    a.wait_vm(dm[it[1]])
                    a('s_barrier')
                elif it[0] == 'dma':
                    a(c_dma(it[1], it[2]))
                    dm[it[1]] = a.vm_mark()
                elif it[0] == 'call':
                    it[1]()
                elif it[0] == 'h0':
                    q = it[1]
                    a('buffer_load_dwordx4 %s, v1, %s, s%d offen offset:%d sc1' %
                      (vr(DFIRST[q] if q < 9 else 66 + 4 * q), srd(S_WS), (25, 27, 29, 22)[q >> 2], 1024 * (q & 3)))
                    hm[q] = a.vm_mark()
                elif it[0] == 't0':
                    if it[1][0] == 'w':
                        a(c_wload(it[1][1]))
                        wlate[it[1][1] >> 1] = a.vm_mark()
                    else:
                        a(it[1][1])
                        amark['cst'] = a.vm_mark()
            for x in valu.get(k, []):
                a(x)
            if fill and k >= first:
                want = -(-(len(fill)) * (k - first + 1) // (28 - first))
                while fi < want:
                    a(fill[fi])
                    fi += 1
        assert fi == len(fill)
        if t == 0:
            a('s_waitcnt lgkmcnt(0)')
            a('s_barrier')
            a('ds_read_b64 %s, v246 offset:0' % vr(CMR, 2))
            if pass0:
                for e in range(8):
                    a('v_accvgpr_write_b32 a%d, v%d' % (A_CCS + e, CCS + e))
            a('s_waitcnt lgkmcnt(0)')
    assert not wd_list


pair_base(sA, L.FC)
a('s_lshl_b32 s%d, s%d, 10' % (sB, sG))
a('s_add_u32 s%d, s%d, s%d' % (sA, sA, sB))
a('s_mul_i32 s%d, s%d, 56' % (sB, sW))
a('s_add_u32 s%d, s%d, s%d' % (sA, sA, sB))
a('v_lshl_add_u32 v243, v0, 2, s%d' % sA)
a('s_mov_b32 s%d, 0x3fff' % sMK2)
a('s_mov_b32 s%d, 0' % (sMK2 + 1))
pair_base(sA, L.H)
a('s_mul_i32 s%d, s%d, %d' % (sB, sG, 4 * 56 * 1024))
a('s_add_u32 s%d, s%d, s%d' % (sA, sA, sB))
a('s_mul_i32 s%d, s%d, %d' % (sB, sW, 14 * 1024))
a('s_add_u32 s25, s%d, s%d' % (sA, sB))
a('s_add_u32 s27, s25, 4096')
a('s_add_u32 s29, s25, 8192')
n_before = a.vm_issued
dm_init = dict(dm)
a('s_cmp_eq_u32 s%d, 0' % sPAIR)
a('s_cbranch_scc0 L_c_loop1')
emit_c_loop(list(range(*WD_CH[1])))
extra = a.vm_issued - n_before
with OutOfLine():
    a.label('L_c_loop1')
    a.vm_issued = n_before
    dm.clear()
    dm.update(dm_init)
    emit_c_loop([])
    a('s_branch L_c_done')
a.label('L_c_done')
stamp()
DH, DACC, DRD = 66, 130, 194
DRING, DLOOK = 16, 10
red_addrs()
publish_setup(L.XA[1], L.SA[1], L.FX[1], False, 5)
a('s_and_b32 s%d, s%d, 1' % (sA, sG))
a('s_lshr_b32 s%d, s%d, 1' % (sB, sW))
a('s_and_b32 s%d, s%d, s%d' % (sA, sA, sB))
a('s_xor_b32 s%d, s%d, 1' % (sA, sA))
a('s_and_b32 s%d, s%d, s%d' % (sPC, sFD, sA))
a('s_mov_b32 s%d, s%d' % (sPFC, sFAST))
a('s_cmp_eq_u32 s%d, 0' % sA)
a('s_cselect_b32 s%d, 0, 0x%x' % (sCc, INV))
a('s_add_u32 s%d, s%d, 1' % (sA, sS))
a('s_lshl_b32 s%d, s%d, 5' % (sA, sA))
a('s_lshl_b32 s%d, s%d, 1' % (sB, sJ))
a('s_add_u32 s%d, s%d, s%d' % (sA, sA, sB))
a('s_and_b32 s%d, s%d, 1' % (sB, sW))
a('s_add_u32 s%d, s%d, s%d' % (sA, sA, sB))
a('s_lshl_b32 s%d, s%d, 2' % (sA, sA))
a('s_add_u32 s%d, s%d, %d' % (sA, sA, L.FH))
a('s_or_b32 s20, s%d, s%d' % (sA, sCc))
pair_base(sA, L.H)
a('s_mul_i32 s%d, s%d, %d' % (sB, sG, 4 * 56 * 1024))
a('s_add_u32 s%d, s%d, s%d' % (sA, sA, sB))
a('s_mul_i32 s%d, s%d, %d' % (sB, sW, 14 * 1024))
a('s_add_u32 s%d, s%d, s%d' % (sO, sA, sB))
quarter_offsets(4, 56 * 1024)
a('s_cmp_eq_u32 s%d, 0' % sPAIR)
a('s_cbranch_scc1 L_d_nout')
owner_index()
a('s_mul_i32 s%d, s%d, 14336' % (sPX, sB))
a('s_lshl_b32 s%d, s%d, 6' % (sA, sA))
a('s_add_u32 s%d, s%d, s%d' % (sPX, sPX, sA))
a('s_add_u32 s%d, s%d, %d' % (sPX2, sPX, 2 * 14336))
a.label('L_d_nout')
a('v_and_b32 v%d, 15, v0' % V_TOK)
a('v_lshrrev_b32 v%d, 4, v0' % V_G)
a('v_mul_u32_u24 v242, 896, v%d' % V_TOK)
a('v_lshl_add_u32 v242, v%d, 3, v242' % V_G)


def d_hload(q):
    tile, kk = divmod(q, 14)
    return ('buffer_load_dwordx4 %s, v1, %s, s%d offen offset:%d sc1' %
            (vr(d_reg(q)), srd(S_WS), sO + 4 * tile + (kk >> 2), 1024 * (kk & 3)))


def d_reg(q):
    return DFIRST[q] if q < len(DFIRST) else DH + (q % DRING) * 4


dmk = {}
for q in range(len(DFIRST), DLOOK):
    a(d_hload(q))
    hm[q] = a.vm_mark()
dmk[1] = early_issue(244, 243, 256)
stamp()
for x in gelu_post(6):
    a(x)
h_store(6)()
a('s_waitcnt lgkmcnt(0)')
gelu_packed(7)
h_flag(5)()
h_store(7)()
stamp()

a('s_barrier')
stamp()


def d_tile(tile):
    items = []
    for kk in range(14):
        q = tile * 14 + kk
        for t in range(4):
            r = DACC + (tile * 4 + t) * 4
            pre = [(lambda qq=q: a.wait_vm(hm[qq]))] if t == 0 else []
            if t == 0 and q in (6, 12):
                pre.append(h_flag({6: 6, 12: 7}[q]))
            post = None
            if t == 0 and q + DLOOK < 56:
                def post(qq=q + DLOOK):
                    if qq % 14 == 0:
                        early_check(244, 243, dmk[qq // 14], 256 * (qq // 14))
                    a(d_hload(qq))
                    hm[qq] = a.vm_mark()
                    if qq % 14 == 6 and qq // 14 < 3:
                        dmk[qq // 14 + 1] = early_issue(244, 243, 256 * (qq // 14 + 1))
            items.append((pre, '%s %s, %s, %s, %s' % (MFMA, vr(r), ar((kk * 4 + t) * 4), vr(d_reg(q)),
                                                      '0' if kk == 0 else vr(r)), post))
    return items


def d_out_store(st, pk):
    a('buffer_store_dwordx2 %s, v242, %s, s%d offen %s' % (vr(pk, 2), srd(S_OUT), sPX if st == 0 else sPX2, OUTSC))
    a('buffer_store_dwordx2 %s, v242, %s, s%d offen offset:32 %s' % (vr(pk + 2, 2), srd(S_OUT), sPX if st == 0 else sPX2, OUTSC))


def d_store(st, pk):
    fin, done = newlab('L_dfin'), newlab('L_ddone')
    a('s_cmp_eq_u32 s%d, 0' % sPAIR)
    a('s_cbranch_scc0 %s' % fin)
    publish_data(st, pk)
    a('s_branch %s' % done)
    a.label(fin)
    n = a.vm_issued
    d_out_store(st, pk)
    a.vm_issued = n
    a.label(done)


DT0, DT1, DPK, DSTT, DSTS = 226, 2, 18, 28, 36
stage0 = [lambda: (a('s_waitcnt lgkmcnt(0)'), a('s_barrier'))] + red_reads(0, DRD) + finish_pre(0, True, DT0)
stage0 += [lambda: a('s_waitcnt lgkmcnt(0)')] + finish_sum(0, DRD, DT0, DPK, False) + [lambda: d_store(0, DPK)]
run_tiles(d_tile, {1: red_writes(DACC, 0), 2: red_writes(DACC + 16, 1), 3: red_writes(DACC + 32, 2) + stage0})
stamp2()
for x in red_writes(DACC + 48, 3):
    a(x)
for x in finish_pre(1, True, DT1):
    a(x)
a('s_waitcnt lgkmcnt(0)')
a('s_barrier')
stamp2()
for x in red_reads(1, DRD):
    a(x)
a('s_waitcnt lgkmcnt(0)')
for x in finish_sum(1, DRD, DT1, DPK + 4, True):
    a(x)
d_store(1, DPK + 4)
stamp()
a('s_cmp_eq_u32 s%d, 0' % sPAIR)
a('s_cbranch_scc0 L_next_pair')
publish_stats([DT0, DT1], DSTT, DSTS)
FHMODE = ([x[5:] for x in sys.argv if x.startswith('--fh=')] + ['after'])[0]
a('v_mov_b32 v240, s20')
if FHMODE == 'before':
    a('s_waitcnt vmcnt(0)')
    a('s_mov_b64 exec, 1')
    a('buffer_store_dword v%d, v240, %s, 0 offen sc1' % (V_T, srd(S_WS)))
    a('s_mov_b64 exec, -1')
    a('v_lshlrev_b32 v241, 8, v0')
    a('v_add_u32 v241, s%d, v241' % sPF)
    a('s_mov_b64 exec, 3')
    store('buffer_store_dword v%d, v241, %s, 0 offen' % (V_T, srd(S_WS)), sPFC)
    a('s_mov_b64 exec, -1')
else:
    publish_flags(8)
    if FHMODE == 'wait':
        a('s_waitcnt vmcnt(0)')
    a('s_mov_b64 exec, 1')
    a('buffer_store_dword v%d, v240, %s, 0 offen sc1' % (V_T, srd(S_WS)))
    a('s_mov_b64 exec, -1')
a.label('L_next_pair')
stamp()
a('s_add_u32 s%d, s%d, 1' % (sPAIR, sPAIR))
a('s_cmp_lt_u32 s%d, 2' % sPAIR)
a('s_cbranch_scc1 L_pair')

a('s_cmp_eq_u32 s2, 0')
a('s_cbranch_scc0 L_noepoch')
a('s_cmp_eq_u32 s%d, 0' % sW)
a('s_cbranch_scc0 L_noepoch')
a('buffer_load_dword v2, off, %s, 0 sc1' % srd(S_WS))
a('s_waitcnt vmcnt(0)')
a('v_add_u32 v2, 1, v2')
a('s_mov_b64 exec, 1')
a('buffer_store_dword v2, off, %s, 0 sc1' % srd(S_WS))
a('s_mov_b64 exec, -1')
a.label('L_noepoch')
if PAD:
    a.label('L_padspin')
    a('s_memrealtime s[34:35]')
    a('s_waitcnt lgkmcnt(0)')
    a('s_sub_u32 s34, s34, s0')
    a('s_cmp_lt_u32 s34, %d' % PAD[0])
    a('s_cbranch_scc1 L_padspin')
if DBG:
    a('s_memtime s[32:33]')
    a('s_memrealtime s[34:35]')
    a('s_waitcnt lgkmcnt(0)')
    a('s_sub_u32 s32, s32, s26')
    a('s_sub_u32 s34, s34, s0')
    build_srd(S_TMP, P_DBG, 256)
    a('v_mov_b32 v2, s32')
    a('v_mov_b32 v3, s34')
    a('v_mov_b32 v4, s%d' % sFAST)
    a('v_mov_b32 v5, s%d' % sXCC)
    a('s_lshr_b32 s%d, s2, 6' % sA)
    a('s_lshl_b32 s%d, s%d, 4' % (sA, sA))
    a('s_and_b32 s%d, s2, 63' % sB)
    a('s_or_b32 s%d, s%d, s%d' % (sB, sB, sW))
    a('s_cmp_eq_u32 s%d, 0' % sB)
    a('s_cselect_b32 s%d, s%d, 0x%x' % (sA, sA, INV))
    a('v_mov_b32 v6, s%d' % sA)
    a('s_mov_b64 exec, 1')
    a('buffer_store_dwordx4 v[2:5], v6, %s, 0 offen' % srd(S_TMP))
    a('s_mov_b64 exec, -1')
if DIAG:
    stamp()
    a('s_mov_b32 s%d, 63' % sSTI)
    a('s_lshl_b64 exec, 1, s%d' % sSTI)
    a('v_mov_b32 v%d, s%d' % (V_STAMP, sERR))
    a('s_mov_b32 s%d, 62' % sSTI)
    a('s_lshl_b64 exec, 1, s%d' % sSTI)
    a('v_mov_b32 v%d, s%d' % (V_STAMP, sFAST))
    a('s_mov_b64 exec, -1')
    a('s_lshl_b32 s%d, s2, 2' % sA)
    a('s_add_u32 s%d, s%d, s%d' % (sA, sA, sW))
    a('s_lshl_b32 s%d, s%d, 8' % (sA, sA))
    a('v_lshlrev_b32 v2, 2, v0')
    a('s_add_u32 s%d, s%d, %d' % (sA, sA, L.WS_USED))
    a('s_mov_b32 s%d, 0x%x' % (S_WS + 2, L.WS_USED + 256 * 1024))
    a('buffer_store_dword v%d, v2, %s, s%d offen' % (V_STAMP, srd(S_WS), sA))
    if DBGST:
        build_srd(S_TMP, P_DBG, 256)
        a('v_readfirstlane_b32 s%d, v%d' % (sA, V_STAMP))
        a('s_nop 4')
        a('v_subrev_u32 v3, s%d, v%d' % (sA, V_STAMP))
        a('s_or_b32 s%d, s2, s%d' % (sB, sW))
        a('s_cmp_eq_u32 s%d, 0' % sB)
        a('s_cselect_b32 s%d, 0, 0x%x' % (sB, INV))
        a('v_or_b32 v2, s%d, v2' % sB)
        SEL = [int(x[6:]) for x in sys.argv if x.startswith('--sel=')]
        sel = SEL[0] if SEL else 1
        a('v_subrev_u32 v2, %d, v2' % (4 * sel))
        a('buffer_store_dword v3, v2, %s, 0 offen' % srd(S_TMP))
a.label('L_end')
a('s_endpgm')
a.ins.extend(ool)
a.label('L_code_end')

a.finalize()
body = a.text()

import os
hdr = open(os.path.join(os.path.dirname(os.path.abspath(__file__)), 'header.txt')).read()
out = hdr + '; @launch grid=(256,1,1) block=(256,1,1) lds=%d\n' % L.LDS_BYTES
out += '.amdgcn_target "amdgcn-amd-amdhsa--gfx950"\n.text\n.globl %s_kernel\n.p2align 8\n.type %s_kernel,@function\n%s_kernel:\n' % (NAME, NAME, NAME)
out += body
out += '''.section .rodata,"a"
.p2align 6
.amdhsa_kernel %s_kernel
  .amdhsa_next_free_vgpr 512
  .amdhsa_next_free_sgpr 102
  .amdhsa_accum_offset 256
  .amdhsa_group_segment_fixed_size 0
  .amdhsa_kernarg_size 88
  .amdhsa_user_sgpr_count 2
  .amdhsa_user_sgpr_kernarg_segment_ptr 1
  .amdhsa_system_sgpr_workgroup_id_x 1
.end_amdhsa_kernel
''' % NAME
sys.stdout.write(out)
```

```python
import struct
import sys
from asmlib import Asm
import layout as L

NAME = 'interleave_layers__sliding_local_dilated__mixer_channel_mlp__prompt'
DIAG = '--diag' in sys.argv
FASTMODE = ([x[7:] for x in sys.argv if x.startswith('--fast=')] + ['flags'])[0]
NOFAST = FASTMODE == 'none'
PAD = [int(x[6:]) for x in sys.argv if x.startswith('--pad=')]
DBG = '--dbg' in sys.argv or bool(PAD)
SPIN_LIMIT = 200000
OUTSC = ([x[8:] for x in sys.argv if x.startswith('--outsc=')] + [''])[0].replace('_', ' ')
SLEEP = int(([x[8:] for x in sys.argv if x.startswith('--sleep=')] + ['0'])[0])
INV = 0x80000000

a = Asm()

sXCC = 3
S_WS, S_TMP, S_B1, S_OUT = 4, 8, 12, 16
P_X, P_WQKV, P_WO, P_BX, P_W1, P_B1, P_W2, P_B2, P_OUT, P_DBG, P_WSP = 20, 22, 24, 26, 28, 30, 32, 34, 36, 38, 40
sS, sC, sG, sJ, sW, sT, sPAIR, sSPIN = 42, 43, 44, 45, 46, 47, 48, 49
sM1 = 50
sM2 = 58
sM0 = 66
sO = 74
sA, sB, sCc, sD = 90, 91, 92, 93
sMK = 94
sTS = 96
sGT = 98
sERR = 99
sSTI = 100
sFAST = 101
sFD = 27
sPFC = 26
sFH = 25


def srd(n):
    return 's[%d:%d]' % (n, n + 3)


def vr(n, k=4):
    return 'v[%d:%d]' % (n, n + k - 1)


def ar(n, k=4):
    return 'a[%d:%d]' % (n, n + k - 1)


def sp(n):
    return 's[%d:%d]' % (n, n + 1)


def f2h(x):
    return '0x%08x' % struct.unpack('<I', struct.pack('<f', x))[0]


V_T, V_STAMP = 254, 255
V_TOK, V_G = 250, 251
MFMA = 'v_mfma_f32_16x16x32_bf16'


DIAG2 = '--diag2' in sys.argv
PREFPOS = ([x[7:] for x in sys.argv if x.startswith('--pref=')] + ['a'])[0]
PREF = PREFPOS != 'n'
TOUCH = '--notouch' not in sys.argv
STWAIT = '--stwait' in sys.argv
P2EARLY = '--p2early' in sys.argv
SKEW = [int(x[7:]) for x in sys.argv if x.startswith('--skew=')]
DBGST = '--dbgst' in sys.argv


def stamp2():
    if DIAG2:
        stamp()


def stamp():
    if not DIAG:
        return
    a('%s %s' % ('s_memrealtime' if '--rt' in sys.argv else 's_memtime', sp(sTS)))
    a('s_waitcnt lgkmcnt(0)')
    a('s_lshl_b64 exec, 1, s%d' % sSTI)
    a('v_mov_b32 v%d, s%d' % (V_STAMP, sTS))
    a('s_mov_b64 exec, -1')
    a('s_add_u32 s%d, s%d, 1' % (sSTI, sSTI))


ool = []


class OutOfLine:
    def __enter__(self):
        self.saved = a.ins
        a.ins = []

    def __exit__(self, *exc):
        ool.extend(a.ins)
        a.ins = self.saved


lab_no = [0]


def newlab(p):
    lab_no[0] += 1
    return '%s_%d' % (p, lab_no[0])


def emit_pref():
    a('s_getpc_b64 s[96:97]')
    a.label('L_pc')
    a('s_lshr_b32 s%d, s2, 3' % sA)
    a('s_lshl_b32 s%d, s%d, 11' % (sA, sA))
    a('s_lshl_b32 s%d, s%d, 9' % (sB, sW))
    a('s_add_u32 s%d, s%d, s%d' % (sA, sA, sB))
    a('v_lshlrev_b32 v21, 3, v0')
    a('v_add_u32 v21, s%d, v21' % sA)
    a('v_min_u32 v21, L_code_end-L_pc-8, v21')
    a('global_load_dwordx2 v[58:59], v21, s[96:97]')


def skew_store(point, have=False):
    if not SKEW or SKEW[0] != point:
        return
    if not have:
        a('s_memrealtime s[96:97]')
        a('s_waitcnt lgkmcnt(0)')
    build_srd(S_TMP, P_DBG, 256)
    a('s_and_b32 s%d, s2, 15' % sA)
    a('s_or_b32 s%d, s%d, s%d' % (sA, sA, sW))
    a('s_cmp_eq_u32 s%d, 0' % sA)
    a('s_cselect_b32 s%d, 0, 0x%x' % (sA, INV))
    a('s_lshr_b32 s%d, s2, 2' % sB)
    a('s_or_b32 s%d, s%d, s%d' % (sA, sA, sB))
    a('v_mov_b32 v21, s%d' % sA)
    a('v_mov_b32 v22, s96')
    a('s_mov_b64 exec, 1')
    a('buffer_store_dword v22, v21, %s, 0 offen' % srd(S_TMP))
    a.vm_issued -= 1
    a('s_mov_b64 exec, -1')


def build_srd(dst, ptr, nbytes):
    a('s_mov_b32 s%d, s%d' % (dst, ptr))
    a('s_and_b32 s%d, s%d, 0xffff' % (dst + 1, ptr + 1))
    a('s_mov_b32 s%d, 0x%x' % (dst + 2, nbytes))
    a('s_mov_b32 s%d, 0x20000' % (dst + 3))


def poll(voff, off2=None, sleep=None):
    lab, done = newlab('L_poll'), newlab('L_polldone')
    a('s_mov_b64 exec, %s' % sp(sMK))
    a('s_mov_b32 s%d, 0' % sSPIN)
    a.label(lab)
    a('buffer_load_dword v253, v%d, %s, 0 offen sc1' % (voff, srd(S_WS)))
    if off2 is not None:
        a('buffer_load_dword v245, v%d, %s, 0 offen offset:%d sc1' % (voff, srd(S_WS), off2))
    a('s_waitcnt vmcnt(0)')
    if off2 is not None:
        a('v_xor_b32 v245, s%d, v245' % sT)
        a('v_xor_b32 v253, s%d, v253' % sT)
        a('v_or_b32 v253, v253, v245')
        a('v_cmp_ne_u32 vcc, 0, v253')
    else:
        a('v_cmp_ne_u32 vcc, s%d, v253' % sT)
    a('s_nop 4')
    a('s_cbranch_vccz %s' % done)
    if sleep or SLEEP:
        a('s_sleep %d' % (sleep or SLEEP))
    a('s_add_u32 s%d, s%d, 1' % (sSPIN, sSPIN))
    a('s_cmp_lt_u32 s%d, %d' % (sSPIN, SPIN_LIMIT))
    a('s_cbranch_scc1 %s' % lab)
    a('s_add_u32 s%d, s%d, 1' % (sERR, sERR))
    a.label(done)
    a('s_mov_b64 exec, -1')


sMK2 = 30


def early_issue(dst, voff, off=0):
    a('s_mov_b64 exec, %s' % sp(sMK2))
    a('buffer_load_dword v%d, v%d, %s, 0 offen offset:%d sc1' % (dst, voff, srd(S_WS), off))
    a('s_mov_b64 exec, -1')
    return a.vm_mark()


def early_check(dst, voff, mark, off=0):
    ok = newlab('L_early')
    a.wait_vm(mark)
    a('s_mov_b64 exec, %s' % sp(sMK2))
    a('v_cmp_ne_u32 vcc, s%d, v%d' % (sT, dst))
    a('s_mov_b64 exec, -1')
    a('s_nop 2')
    a('s_cbranch_vccz %s' % ok)
    a('s_mov_b64 %s, %s' % (sp(sMK), sp(sMK2)))
    n = a.vm_issued
    if off:
        a('v_add_u32 v253, %d, v%d' % (off, voff))
        a('v_mov_b32 v%d, v253' % dst)
        poll(dst)
    else:
        poll(voff)
    a.vm_issued = n
    a.label(ok)


def store(fmt, cond=None):
    if cond is None or NOFAST or (FASTMODE == 'flags' and cond in (sFD, sFH, sPC)):
        a(fmt + ' sc1')
        return
    slow, done = newlab('L_slow'), newlab('L_st')
    a('s_cmp_eq_u32 s%d, 0' % cond)
    a('s_cbranch_scc1 %s' % slow)
    a(fmt)
    a('s_branch %s' % done)
    a.label(slow)
    a(fmt + ' sc1')
    a.vm_issued -= 1
    a.label(done)


def set_flags(voff, nlanes, cond=None, val=V_T, between=()):
    mark = a.vm_mark()
    for x in between:
        a(x)
    a.wait_vm(mark)
    a('s_mov_b64 exec, %d' % ((1 << nlanes) - 1))
    store('buffer_store_dword v%d, v%d, %s, 0 offen' % (val, voff, srd(S_WS)), cond)
    a('s_mov_b64 exec, -1')


def xg_reduce(x, t, op='v_add_f32'):
    return ['v_mov_b32 v%d, v%d' % (t, x),
            'v_permlane32_swap_b32 v%d, v%d' % (x, t),
            '%s v%d, v%d, v%d' % (op, x, x, t),
            'v_mov_b32 v%d, v%d' % (t, x),
            'v_permlane16_swap_b32 v%d, v%d' % (x, t),
            '%s v%d, v%d, v%d' % (op, x, x, t)]


EPS = 1e-5


def stats_finish(s1, s2, t, double_ln):
    o = ['v_mul_f32 v%d, %s, v%d' % (s1, f2h(1.0 / 448), s1),
         'v_mul_f32 v%d, %s, v%d' % (s2, f2h(1.0 / 448), s2),
         'v_fma_f32 v%d, -v%d, v%d, v%d' % (s2, s1, s1, s2),
         'v_max_f32 v%d, 0, v%d' % (s2, s2),
         'v_add_f32 v%d, %s, v%d' % (t, f2h(EPS), s2),
         'v_rsq_f32 v%d, v%d' % (t, t)]
    if not double_ln:
        o += ['v_mov_b32 v%d, v%d' % (s2, t)]
    else:
        o += ['v_mul_f32 v%d, v%d, v%d' % (s2, s2, t),
              'v_fmaak_f32 v%d, v%d, v%d, %s' % (s2, s2, t, f2h(EPS)),
              'v_rsq_f32 v%d, v%d' % (s2, s2),
              'v_mul_f32 v%d, v%d, v%d' % (s2, s2, t)]
    return o


def pair_base(dst, arr):
    a('s_mul_i32 s%d, s%d, %d' % (dst, sPAIR, arr[1] - arr[0]))
    a('s_add_u32 s%d, s%d, %d' % (dst, dst, arr[0]))


def quarter_offsets(n, stride):
    for t in range(n):
        if t:
            a('s_add_u32 s%d, s%d, %d' % (sO + 4 * t, sO + 4 * (t - 1), stride))
        for q in range(1, 4):
            a('s_add_u32 s%d, s%d, %d' % (sO + 4 * t + q, sO + 4 * t, 4096 * q))


sPX, sPS, sPF, sPC, sPX2 = 36, 37, 28, 29, 33


def stats_flags(delta, lsh):
    a('v_lshlrev_b32 v241, %d, v0' % lsh)
    a('s_add_u32 s%d, s%d, %d' % (sA, sPF, delta))
    a('v_add_u32 v241, s%d, v241' % sA)
    a('s_mov_b64 exec, 3')
    store('buffer_store_dword v%d, v241, %s, 0 offen' % (V_T, srd(S_WS)), sPFC)
    a('s_mov_b64 exec, -1')


a('s_cmp_ge_u32 s2, 256')
a('s_cbranch_scc1 L_end')
if '--perm' in sys.argv:
    a('s_and_b32 s90, s2, 7')
    a('s_lshr_b32 s91, s2, 3')
    a('s_and_b32 s91, s91, 7')
    a('s_and_b32 s2, s2, 0xc0')
    a('s_lshl_b32 s90, s90, 3')
    a('s_or_b32 s2, s2, s90')
    a('s_or_b32 s2, s2, s91')
SPRE = int(([x[7:] for x in sys.argv if x.startswith('--spre=')] + ['0'])[0])
if SPRE:
    a('s_getpc_b64 s[96:97]')
a('s_load_dwordx16 s[20:35], s[0:1], 0')
a('s_load_dwordx4 s[36:39], s[0:1], 64')
a('s_load_dwordx2 s[40:41], s[0:1], 80')
for i in range(SPRE):
    a('s_load_dword s98, s[96:97], %d' % (256 + 128 * i))
a('s_getreg_b32 s%d, hwreg(HW_REG_XCC_ID, 0, 4)' % sXCC)
a('s_and_b32 s%d, s2, 7' % sA)
a('s_lshr_b32 s%d, s2, 3' % sB)
a('s_lshr_b32 s%d, s%d, 4' % (sCc, sB))
a('s_lshl_b32 s%d, s%d, 1' % (sS, sA))
a('s_add_u32 s%d, s%d, s%d' % (sS, sS, sCc))
a('s_and_b32 s%d, s%d, 15' % (sC, sB))
a('s_lshr_b32 s%d, s%d, 3' % (sA, sC))
a('s_lshl_b32 s%d, s%d, 1' % (sG, sS))
a('s_add_u32 s%d, s%d, s%d' % (sG, sG, sA))
a('s_and_b32 s%d, s%d, 7' % (sJ, sC))
a('s_mov_b32 s%d, 0' % sERR)
if SKEW and SKEW[0] == 0:
    a('s_memrealtime s[96:97]')
a('v_lshrrev_b32 v2, 6, v0')
a('v_and_b32 v0, 63, v0')
a('v_readfirstlane_b32 s%d, v2' % sW)
a('v_lshlrev_b32 v1, 4, v0')
if DIAG:
    a('v_mov_b32 v%d, 0' % V_STAMP)
    a('s_mov_b32 s%d, 0' % sSTI)
stamp()
a('v_and_b32 v%d, 15, v0' % V_TOK)
a('v_lshrrev_b32 v%d, 4, v0' % V_G)
sSTG = 40
a('s_waitcnt lgkmcnt(0)')
if DBG:
    a('s_memtime s[26:27]')
    a('s_memrealtime s[0:1]')
    a('s_waitcnt lgkmcnt(0)')
skew_store(0, True)
build_srd(S_WS, P_WSP, L.WS_USED)
a('buffer_load_dword v%d, off, %s, 0 sc1' % (V_T, srd(S_WS)))
a('s_lshl_b32 s%d, s%d, 14' % (sSTG, sW))
a('s_add_u32 s%d, s%d, %d' % (sSTG, sSTG, L.L_R2))

build_srd(S_TMP, P_X, 2048 * 896)
a('v_mul_u32_u24 v2, 896, v%d' % V_TOK)
a('v_lshl_add_u32 v2, v%d, 3, v2' % V_G)
a('s_lshr_b32 s%d, s%d, 1' % (sA, sC))
a('s_lshl_b32 s%d, s%d, 3' % (sB, sS))
a('s_add_u32 s%d, s%d, s%d' % (sO + 0, sA, sB))
a('s_and_b32 s%d, s%d, 1' % (sA, sC))
a('s_mul_i32 s%d, s%d, 7' % (sA, sA))
a('s_add_u32 s%d, s%d, s%d' % (sO + 1, sA, sW))
a('s_cmp_lt_u32 s%d, 3' % sW)
a('s_cselect_b32 s%d, 0, 0x%x' % (sO + 2, INV))
a('s_mul_i32 s%d, s%d, 14336' % (sA, sO + 0))
a('s_lshl_b32 s%d, s%d, 6' % (sB, sO + 1))
a('s_add_u32 s%d, s%d, s%d' % (sA, sA, sB))
a('v_or_b32 v3, s%d, v2' % (sO + 2))
a('buffer_load_dwordx2 v[10:11], v2, %s, s%d offen' % (srd(S_TMP), sA))
a('buffer_load_dwordx2 v[12:13], v2, %s, s%d offen offset:32' % (srd(S_TMP), sA))
a('buffer_load_dwordx2 v[14:15], v3, %s, s%d offen offset:256' % (srd(S_TMP), sA))
a('buffer_load_dwordx2 v[16:17], v3, %s, s%d offen offset:288' % (srd(S_TMP), sA))

build_srd(S_TMP, P_WQKV, 448 * 2688)
qMAT, qU, qINV = sO + 3, sO + 4, sO + 5
a('s_lshl_b32 s%d, s%d, 4' % (sA, sW))
a('s_add_u32 s%d, s%d, s%d' % (sA, sA, sS))
a('s_cmp_lt_u32 s%d, 42' % sA)
a('s_cselect_b32 s%d, 0, 0x%x' % (qINV, INV))
a('s_min_u32 s%d, s%d, 41' % (sA, sA))
a('s_mul_i32 s%d, s%d, 4682' % (qMAT, sA))
a('s_lshr_b32 s%d, s%d, 16' % (qMAT, qMAT))
a('s_mul_i32 s%d, s%d, 14' % (sB, qMAT))
a('s_sub_u32 s%d, s%d, s%d' % (qU, sA, sB))
a('s_mul_i32 s%d, s%d, %d' % (sA, qU, 32 * 2688))
a('s_mul_i32 s%d, s%d, 896' % (sB, qMAT))
a('s_add_u32 s%d, s%d, s%d' % (sA, sA, sB))
a('s_mul_i32 s%d, s%d, 56' % (sB, sC))
a('s_add_u32 s%d, s%d, s%d' % (sA, sA, sB))
a('v_lshrrev_b32 v4, 2, v0')
a('v_mul_u32_u24 v4, 2688, v4')
a('v_and_b32 v5, 3, v0')
a('v_lshl_add_u32 v4, v5, 4, v4')
a('v_or_b32 v4, s%d, v4' % qINV)
a('s_mov_b32 m0, s%d' % sSTG)
a('s_add_u32 s%d, s%d, %d' % (sB, sA, 16 * 2688))
a('buffer_load_dwordx4 v4, %s, s%d offen lds' % (srd(S_TMP), sA))
a('s_add_u32 m0, s%d, 1024' % sSTG)
a('s_nop 0')
a('buffer_load_dwordx4 v4, %s, s%d offen lds' % (srd(S_TMP), sB))

bINV, bDST, bSTR, bINV2, bDST2, sSTRD = 20, 21, 22, 23, 24, 25


def emit_p2_issue():
    a('s_cmp_eq_u32 s%d, 3' % sW)
    a('s_cbranch_scc1 L_p2_w1')
    a('s_lshl_b32 s%d, s%d, 5' % (sA, sW))
    a('s_add_u32 s%d, s%d, s%d' % (sA, sA, sG))
    a('s_cmp_lt_u32 s%d, 72' % sA)
    a('s_cselect_b32 s%d, 0, 0x%x' % (bINV, INV))
    a('s_cmp_eq_u32 s%d, 7' % sJ)
    a('s_cselect_b32 s%d, 0x%x, s%d' % (bINV, INV, bINV))
    a('s_min_u32 s%d, s%d, 71' % (sA, sA))
    a('s_min_u32 s%d, s%d, 6' % (sD, sJ))
    a('s_cmp_lt_u32 s%d, 16' % sA)
    a('s_cselect_b32 s%d, s%d, s%d' % (S_TMP, P_WO, P_W2))
    a('s_cselect_b32 s%d, s%d, s%d' % (S_TMP + 1, P_WO + 1, P_W2 + 1))
    a('s_mov_b32 s%d, 0x%x' % (S_TMP + 2, 1792 * 896))
    a('s_cselect_b32 s%d, 0x%x, s%d' % (S_TMP + 2, 448 * 896, S_TMP + 2))
    a('s_cselect_b32 s%d, 28, 32' % sB)
    a('s_cselect_b32 s%d, 0, 16' % sCc)
    a('s_mov_b32 s%d, %d' % (bSTR, 56 * 1024))
    a('s_cselect_b32 s%d, %d, s%d' % (bSTR, 16 * 1024, bSTR))
    a('s_mov_b32 s%d, %d' % (bDST, L.WD))
    a('s_cselect_b32 s%d, %d, s%d' % (bDST, L.WB, bDST))
    a('s_cselect_b32 s%d, 0x%x, 0' % (sO + 9, INV))
    a('s_and_b32 s%d, s%d, 0xffff' % (S_TMP + 1, S_TMP + 1))
    a('s_mov_b32 s%d, 0x20000' % (S_TMP + 3))
    a('s_sub_u32 s%d, s%d, s%d' % (sA, sA, sCc))
    a('s_lshl_b32 s%d, s%d, 10' % (sCc, sA))
    a('s_add_u32 s%d, s%d, s%d' % (bDST, bDST, sCc))
    a('s_lshl_b32 s%d, s%d, 2' % (sCc, sD))
    a('s_mul_i32 s%d, s%d, s%d' % (sCc, sCc, bSTR))
    a('s_add_u32 s%d, s%d, s%d' % (bDST, bDST, sCc))
    a('s_mul_i32 s%d, s%d, s%d' % (sA, sA, sB))
    a('s_mul_i32 s%d, s%d, 896' % (sA, sA))
    a('s_lshl_b32 s%d, s%d, 7' % (sB, sD))
    a('s_add_u32 s%d, s%d, s%d' % (sO + 10, sA, sB))
    a('s_mov_b32 s%d, 896' % sSTRD)
    a('s_mov_b32 s%d, 0x%x' % (bINV2, INV))
    a('s_mov_b32 s%d, 0' % bDST2)
    a('s_mov_b32 s%d, 0' % (sO + 11))
    a('s_branch L_p2_go')
    a.label('L_p2_w1')
    build_srd(S_TMP, P_W1, 448 * 3584)
    a('s_lshl_b32 s%d, s%d, 4' % (sA, sS))
    a('s_add_u32 s%d, s%d, s%d' % (sA, sA, sC))
    a('s_cmp_lt_u32 s%d, 136' % sA)
    a('s_cselect_b32 s%d, 0, 0x%x' % (bINV2, INV))
    a('s_mov_b32 s%d, 0' % bINV)
    a('s_mov_b32 s%d, 0' % (sO + 9))
    a('s_mov_b32 s%d, %d' % (bSTR, 14 * 1024))
    a('s_mov_b32 s%d, 3584' % sSTRD)
    for dst, src, add in ((bDST, sO + 10, 0), (bDST2, sO + 11, 256)):
        a('s_add_u32 s%d, s%d, %d' % (sB, sA, add))
        a('s_min_u32 s%d, s%d, 391' % (sB, sB))
        a('s_mul_i32 s%d, s%d, 4682' % (sCc, sB))
        a('s_lshr_b32 s%d, s%d, 16' % (sCc, sCc))
        a('s_mul_i32 s%d, s%d, 14' % (sD, sCc))
        a('s_sub_u32 s%d, s%d, s%d' % (sB, sB, sD))
        a('s_mul_i32 s%d, s%d, %d' % (src, sB, 32 * 3584))
        a('s_lshl_b32 s%d, s%d, 7' % (sD, sCc))
        a('s_add_u32 s%d, s%d, s%d' % (src, src, sD))
        a('s_mul_i32 s%d, s%d, 56' % (sD, sCc))
        a('s_add_u32 s%d, s%d, s%d' % (sD, sD, sB))
        a('s_lshl_b32 s%d, s%d, 10' % (sD, sD))
        a('s_add_u32 s%d, s%d, %d' % (dst, sD, L.WC))
    a.label('L_p2_go')
    a('v_lshrrev_b32 v6, 3, v0')
    a('v_mul_lo_u32 v6, v6, s%d' % sSTRD)
    a('v_and_b32 v5, 7, v0')
    a('v_lshl_add_u32 v6, v5, 4, v6')
    a('v_or_b32 v8, s%d, v6' % bINV2)
    a('v_or_b32 v6, s%d, v6' % bINV)
    a('v_cmp_lt_u32 vcc, 31, v0')
    a('v_mov_b32 v7, s%d' % (sO + 9))
    a('v_cndmask_b32 v7, 0, v7, vcc')
    a('v_or_b32 v7, v7, v6')
    a('s_lshl_b32 s%d, s%d, 3' % (sB, sSTRD))
    for slot in range(2):
        src = sO + 10 + slot
        for q in range(4):
            a('s_add_u32 m0, s%d, %d' % (sSTG, 2048 + 4096 * slot + 1024 * q))
            if q:
                a('s_add_u32 s%d, s%d, s%d' % (src, src, sB))
            else:
                a('s_nop 0')
            a('buffer_load_dwordx4 v%d, %s, s%d offen lds' % (8 if slot else (7 if q == 3 else 6), srd(S_TMP), src))


if P2EARLY:
    emit_p2_issue()
build_srd(S_B1, P_B1, 1792 * 2)
build_srd(S_OUT, P_OUT, 2048 * 896)
a('v_bfe_u32 v18, v0, 2, 2')
a('v_lshl_add_u32 v18, v%d, 2, v18' % V_G)
a('v_and_b32 v19, 3, v0')
a('v_lshlrev_b32 v19, 3, v19')
if PREFPOS == 'b':
    emit_pref()
if TOUCH:
    a('v_lshlrev_b32 v21, 21, v0')
    a('s_mov_b64 exec, 0x1ffff')
    a('buffer_load_dword v253, v21, %s, 0 offen' % srd(S_WS))
    a('s_mov_b64 exec, -1')
    a('s_waitcnt vmcnt(%d)' % ((9 if P2EARLY else 1) + (PREFPOS == 'b')))
else:
    a('s_waitcnt vmcnt(%d)' % ((8 if P2EARLY else 0) + (PREFPOS == 'b')))
stamp()

a('s_mov_b32 s%d, 0x9E3779B1' % sA)
a('v_mul_lo_u32 v%d, v%d, s%d' % (V_T, V_T, sA))
a('v_add_u32 v%d, 0x7F4A7C15, v%d' % (V_T, V_T))
a('v_and_b32 v%d, -16, v%d' % (V_T, V_T))
a('v_lshl_add_u32 v20, v18, 6, v19')
a('v_add_u32 v20, s%d, v20' % sSTG)
for hf in range(2):
    a('ds_read_b64_tr_b16 %s, v20 offset:%d' % (vr(24 + 4 * hf, 2), 32 * hf))
    a('ds_read_b64_tr_b16 %s, v20 offset:%d' % (vr(26 + 4 * hf, 2), 32 * hf + 1024))
a('v_readfirstlane_b32 s%d, v%d' % (sT, V_T))
a('s_mul_i32 s%d, s%d, 14' % (sA, sO + 0))
a('s_add_u32 s%d, s%d, s%d' % (sA, sA, sO + 1))
a('s_lshl_b32 s%d, s%d, 10' % (sB, sA))
a('s_add_u32 s%d, s%d, %d' % (sB, sB, L.XA[0]))
a('v_or_b32 v3, s%d, v1' % (sO + 2))
a('buffer_store_dwordx4 v[10:13], v1, %s, s%d offen sc1' % (srd(S_WS), sB))
a('s_add_u32 s%d, s%d, 4096' % (sB, sB))
a('buffer_store_dwordx4 v[14:17], v3, %s, s%d offen sc1' % (srd(S_WS), sB))
a('v_cmp_gt_u32 vcc, 12, v%d' % V_TOK)
a('s_mul_i32 s%d, s%d, 84' % (sB, sC))
a('s_mul_i32 s%d, s%d, 28' % (sCc, qMAT))
a('s_add_u32 s%d, s%d, s%d' % (sB, sB, sCc))
a('s_add_u32 s%d, s%d, s%d' % (sB, sB, qU))
a('s_lshl_b32 s%d, s%d, 10' % (sB, sB))
a('s_add_u32 s%d, s%d, %d' % (sB, sB, L.WA))
a('v_or_b32 v4, s%d, v1' % qINV)
a('s_waitcnt lgkmcnt(0)')
for p in range(4):
    a('v_cndmask_b32 v%d, 0, v%d, vcc' % (28 + p, 28 + p))
a('buffer_store_dwordx4 v[24:27], v4, %s, s%d offen sc1' % (srd(S_WS), sB))
a('s_add_u32 s%d, s%d, %d' % (sB, sB, 14 * 1024))
a('buffer_store_dwordx4 v[28:31], v4, %s, s%d offen sc1' % (srd(S_WS), sB))
a('v_mov_b32 v2, 0x3f803f80')
for k in range(2):
    x, s1, s2 = 10 + 4 * k, 110 + 2 * k, 111 + 2 * k
    a('v_mov_b32 v%d, 0' % s1)
    a('v_mov_b32 v%d, 0' % s2)
    for p in range(4):
        a('v_dot2_f32_bf16 v%d, v%d, v2, v%d' % (s1, x + p, s1))
        a('v_dot2_f32_bf16 v%d, v%d, v%d, v%d' % (s2, x + p, x + p, s2))
    for t in xg_reduce(s1, 114) + xg_reduce(s2, 115):
        a(t)
a('s_lshl_b32 s%d, s%d, 7' % (sB, sA))
a('s_add_u32 s%d, s%d, %d' % (sB, sB, L.SA[0]))
a('v_lshlrev_b32 v2, 3, v%d' % V_TOK)
a('v_or_b32 v3, s%d, v2' % (sO + 2))
a('s_mov_b64 exec, 0xffff')
a('buffer_store_dwordx2 v[110:111], v2, %s, s%d offen sc1' % (srd(S_WS), sB))
a('buffer_store_dwordx2 v[112:113], v3, %s, s%d offen offset:512 sc1' % (srd(S_WS), sB))
a('s_mov_b64 exec, -1')
crit_mark = a.vm_mark()
if not P2EARLY:
    emit_p2_issue()
a('s_lshl_b32 s%d, s%d, 5' % (sA, sO + 0))
a('s_add_u32 s%d, s%d, s%d' % (sA, sA, sO + 1))
a('s_lshl_b32 s%d, s%d, 2' % (sA, sA))
a('s_add_u32 s%d, s%d, %d' % (sA, sA, L.FX[0]))
a('v_lshlrev_b32 v2, 4, v0')
a('v_add_u32 v2, s%d, v2' % sA)
a('v_cmp_eq_u32 vcc, 1, v0')
a('v_mov_b32 v3, s%d' % (sO + 2))
a('v_cndmask_b32 v3, 0, v3, vcc')
a('v_or_b32 v2, v2, v3')
a('s_lshl_b32 s%d, s%d, 6' % (sA, sC))
a('s_lshl_b32 s%d, s%d, 2' % (sB, sS))
a('s_add_u32 s%d, s%d, s%d' % (sA, sA, sB))
a('s_add_u32 s%d, s%d, s%d' % (sA, sA, sW))
a('s_lshl_b32 s%d, s%d, 2' % (sA, sA))
a('s_add_u32 s%d, s%d, %d' % (sA, sA, L.FQ))
a('v_mov_b32 v3, s%d' % sA)
a('v_cmp_eq_u32 vcc, 2, v0')
a('v_cndmask_b32 v2, v2, v3, vcc')
a('s_lshl_b32 s%d, s%d, 4' % (sA, sS))
a('s_add_u32 s%d, s%d, s%d' % (sA, sA, sC))
a('s_lshl_b32 s%d, s%d, 2' % (sA, sA))
a('s_add_u32 s%d, s%d, %d' % (sA, sA, L.FXC))
a('s_cmp_eq_u32 s%d, 0' % sW)
a('s_cselect_b32 s%d, s%d, 0x%x' % (sA, sA, INV))
a('v_mov_b32 v3, s%d' % sA)
a('v_cmp_eq_u32 vcc, 3, v0')
a('v_cndmask_b32 v2, v2, v3, vcc')
a('v_or_b32 v3, s%d, v%d' % (sXCC, V_T))
a('v_cndmask_b32 v3, v%d, v3, vcc' % V_T)
stamp2()
a.wait_vm(crit_mark)
a('s_mov_b64 exec, 15')
a('buffer_store_dword v3, v2, %s, 0 offen sc1' % srd(S_WS))
a('s_mov_b64 exec, -1')
stamp()

if PREFPOS == 'a':
    emit_pref()
BTOUCH = '--btouch' in sys.argv
if BTOUCH:
    a('v_lshlrev_b32 v21, 6, v0')
    a('buffer_load_dword v60, v21, %s, 0 offen' % srd(S_B1))
    build_srd(S_TMP, P_B2, 896)
    a('buffer_load_dword v61, v21, %s, 0 offen' % srd(S_TMP))
skew_store(1)
a('s_waitcnt vmcnt(%d)' % (1 + (PREFPOS == 'a') + 2 * BTOUCH))
a('v_lshl_add_u32 v20, v18, 7, v19')
a('v_add_u32 v20, s%d, v20' % sSTG)
for slot in range(2):
    for t in range(4):
        a('ds_read_b64_tr_b16 %s, v20 offset:%d' % (vr(24 + 16 * slot + 4 * t, 2), 2048 + 4096 * slot + 32 * t))
        a('ds_read_b64_tr_b16 %s, v20 offset:%d' % (vr(26 + 16 * slot + 4 * t, 2), 2048 + 4096 * slot + 32 * t + 2048))
a('v_or_b32 v6, s%d, v1' % bINV)
a('v_or_b32 v8, s%d, v1' % bINV2)
a('s_waitcnt lgkmcnt(8)')
for t in range(4):
    a('buffer_store_dwordx4 %s, v6, %s, s%d offen sc1' % (vr(24 + 4 * t), srd(S_WS), bDST))
    if t < 3:
        a('s_add_u32 s%d, s%d, s%d' % (bDST, bDST, bSTR))
a('s_waitcnt lgkmcnt(0)')
for t in range(4):
    a('buffer_store_dwordx4 %s, v8, %s, s%d offen sc1' % (vr(40 + 4 * t), srd(S_WS), bDST2))
    if t < 3:
        a('s_add_u32 s%d, s%d, s%d' % (bDST2, bDST2, bSTR))
a('s_lshl_b32 s%d, s%d, 4' % (sA, sS))
a('s_add_u32 s%d, s%d, s%d' % (sA, sA, sC))
a('s_lshl_b32 s%d, s%d, 2' % (sA, sA))
a('s_add_u32 s%d, s%d, %d' % (sA, sA, L.FW1))
a('v_lshlrev_b32 v22, 10, v0')
a('v_add_u32 v22, s%d, v22' % sA)
a('v_cmp_eq_u32 vcc, 1, v0')
a('v_mov_b32 v23, s%d' % bINV2)
a('v_cndmask_b32 v23, 0, v23, vcc')
a('v_or_b32 v22, v22, v23')
a('s_cmp_eq_u32 s%d, 3' % sW)
a('s_cselect_b32 s%d, 0, 0x%x' % (sA, INV))
a('v_or_b32 v22, s%d, v22' % sA)

skew_store(3)
a('v_and_b32 v2, 1, v%d' % V_TOK)
a('v_lshlrev_b32 v3, 2, v%d' % V_G)
a('v_add_u32 v6, 2, v%d' % V_TOK)
for i in range(4):
    a('v_add_u32 v4, %d, v3' % i)
    a('v_cmp_eq_u32 vcc, %d, v2' % (i & 1))
    a('s_mov_b64 %s, vcc' % sp(sMK))
    a('v_cmp_ge_u32 vcc, v4, v6')
    a('s_and_b64 %s, vcc, %s' % (sp(sM1 + 2 * i), sp(sMK)))
    a('v_cmp_le_u32 vcc, v4, v%d' % V_TOK)
    a('s_and_b64 %s, vcc, %s' % (sp(sM2 + 2 * i), sp(sMK)))
a('s_lshl_b32 s%d, s%d, 3' % (sA, sS))
a('s_lshl_b32 s%d, s%d, 1' % (sB, sW))
a('s_add_u32 s%d, s%d, s%d' % (sGT, sA, sB))
a('s_cmp_eq_u32 s%d, 0' % sGT)
for i in range(4):
    a('s_cselect_b64 %s, 0, %s' % (sp(sM0 + 2 * i), sp(sM1 + 2 * i)))
a('s_mov_b32 s%d, 0' % sPAIR)

def a_flag_addr(dst):
    pair_base(sA, L.FX)
    a('s_lshl_b32 s%d, s%d, 7' % (sB, sGT))
    a('s_add_u32 s%d, s%d, s%d' % (sA, sA, sB))
    a('s_sub_u32 s%d, s%d, 128' % (sA, sA))
    a('v_and_b32 v%d, 48, v0' % dst)
    a('v_add_u32 v%d, v%d, v0' % (dst, dst))
    a('v_lshl_add_u32 v%d, v%d, 2, s%d' % (dst, dst, sA))
    a('s_mov_b32 s%d, 0x3fff3fff' % sMK)
    a('s_mov_b32 s%d, 0x3fff' % (sMK + 1))
    a('s_cmp_eq_u32 s%d, 0' % sGT)
    a('s_cselect_b32 s%d, 0x3fff0000, s%d' % (sMK, sMK))


a('s_lshl_b32 s%d, s%d, 8' % (sA, sC))
a('s_add_u32 s%d, s%d, %d' % (sA, sA, L.FQ))
a('v_lshl_add_u32 v2, v0, 2, s%d' % sA)
a_flag_addr(3)
a('s_lshl_b32 s%d, s%d, 6' % (sA, sS))
a('s_add_u32 s%d, s%d, %d' % (sA, sA, L.FXC - 48 * 4))
a('v_lshl_add_u32 v4, v0, 2, s%d' % sA)
a('v_cmp_lt_u32 vcc, 47, v0')
a('v_cndmask_b32 v3, v3, v4, vcc')
a('v_mov_b32 v5, -1')
a('v_mov_b32 v6, -16')
a('v_cndmask_b32 v5, v5, v6, vcc')
a('s_or_b32 s%d, s%d, 0xffff0000' % (sMK + 1, sMK + 1))
a('s_mov_b32 s%d, 0' % sSPIN)
a.label('L_poll0')
a('buffer_load_dword v7, v2, %s, 0 offen sc1' % srd(S_WS))
a('s_mov_b64 exec, %s' % sp(sMK))
a('buffer_load_dword v8, v3, %s, 0 offen sc1' % srd(S_WS))
a('s_waitcnt vmcnt(0)')
a('v_and_b32 v9, v5, v8')
a('v_cmp_ne_u32 vcc, s%d, v9' % sT)
a('s_mov_b64 exec, -1')
a('s_mov_b64 %s, vcc' % sp(sTS))
a('v_cmp_ne_u32 vcc, s%d, v7' % sT)
a('s_or_b64 vcc, vcc, %s' % sp(sTS))
a('s_cbranch_vccz L_poll0_done')
a('s_add_u32 s%d, s%d, 1' % (sSPIN, sSPIN))
a('s_cmp_lt_u32 s%d, %d' % (sSPIN, SPIN_LIMIT))
a('s_cbranch_scc1 L_poll0')
a('s_add_u32 s%d, s%d, 1' % (sERR, sERR))
a.label('L_poll0_done')
a('s_mov_b64 exec, 3')
a('buffer_store_dword v%d, v22, %s, 0 offen sc1' % (V_T, srd(S_WS)))
a('s_mov_b64 exec, -1')
skew_store(2)
a('v_and_b32 v9, 15, v8')
a('v_cmp_ne_u32 vcc, s%d, v9' % sXCC)
a('s_and_b32 s%d, vcc_hi, 0xffff0000' % sA)
a('s_cmp_eq_u32 s%d, 0' % sA)
a('s_cselect_b32 s%d, 1, 0' % sFAST)
stamp()
AQ, AK, AV, HACC = 2, 18, 34, 50
WBUF = [66, 90]
XR = 114
CSACC = 186
STR = 210
SM, SR = 234, 237
NR, LOOK = 6, 4
A_ONES = 240


def a_xload(u):
    slot = u % NR
    return ['buffer_load_dwordx4 %s, v1, %s, s%d offen offset:%d sc1' %
            (vr(XR + (slot * 2 + t) * 4), srd(S_WS), sO + 4 * (t + 1) + (u >> 2), 1024 * (u & 3)) for t in range(2)]


def a_offsets():
    pair_base(sA, L.XA)
    a('s_mul_i32 s%d, s%d, 14336' % (sB, sGT))
    a('s_add_u32 s%d, s%d, s%d' % (sO + 4, sA, sB))
    a('s_add_u32 s%d, s%d, 14336' % (sO + 8, sO + 4))
    for t in range(1, 3):
        for q in range(1, 4):
            a('s_add_u32 s%d, s%d, %d' % (sO + 4 * t + q, sO + 4 * t, 4096 * q))
    a('s_lshl_b32 s%d, s%d, 3' % (sB, sS))
    a('s_max_u32 s%d, s%d, 1' % (sB, sB))
    a('s_sub_u32 s%d, s%d, 1' % (sB, sB))
    a('s_mul_i32 s%d, s%d, 14336' % (sB, sB))
    a('s_add_u32 s%d, s%d, s%d' % (sO + 0, sA, sB))
    a('s_lshl_b32 s%d, s%d, 12' % (sB, sW))
    a('s_add_u32 s%d, s%d, s%d' % (sO + 0, sO + 0, sB))
    a('s_add_u32 s%d, s%d, %d' % (sO + 1, sB, L.L_R2))


def a_setup():
    if FASTMODE == 'flags':
        a('s_mov_b32 s%d, 0' % sFD)
        a('s_mov_b32 s%d, 0' % sFH)
    elif FASTMODE == 'p0':
        a('s_xor_b32 s%d, s%d, 1' % (sFD, sPAIR))
        a('s_and_b32 s%d, s%d, s%d' % (sFD, sFD, sFAST))
        a('s_mov_b32 s%d, s%d' % (sFH, sFD))
    elif FASTMODE == 'small':
        a('s_mov_b32 s%d, s%d' % (sFD, sFAST))
        a('s_mov_b32 s%d, 0' % sFH)
    elif FASTMODE == 'smallp0':
        a('s_mov_b32 s%d, s%d' % (sFD, sFAST))
        a('s_xor_b32 s%d, s%d, 1' % (sFH, sPAIR))
        a('s_and_b32 s%d, s%d, s%d' % (sFH, sFH, sFAST))
    else:
        a('s_mov_b32 s%d, s%d' % (sFD, sFAST))
        a('s_mov_b32 s%d, s%d' % (sFH, sFAST))
    pair_base(sA, L.SA)
    a('s_mul_i32 s%d, s%d, 1792' % (sB, sGT))
    a('s_add_u32 s%d, s%d, s%d' % (sO + 13, sA, sB))
    a('s_add_u32 s%d, s%d, 1792' % (sO + 14, sO + 13))
    a('s_sub_u32 s%d, s%d, 1792' % (sO + 12, sO + 13))
    a('s_cmp_eq_u32 s%d, 0' % sGT)
    a('s_cselect_b32 s%d, s%d, s%d' % (sO + 12, sO + 13, sO + 12))
    a('v_and_b32 v%d, 15, v0' % V_TOK)
    a('v_lshrrev_b32 v%d, 4, v0' % V_G)
    a('v_lshlrev_b32 v240, 3, v%d' % V_TOK)
    a('v_lshl_add_u32 v240, v%d, 7, v240' % V_G)
    a('v_mov_b32 v242, 0x%x' % INV)
    a('v_cmp_lt_u32 vcc, 1, v%d' % V_G)
    a('v_cndmask_b32 v241, 0, v242, vcc')
    a('v_or_b32 v241, v241, v240')
    a('v_add_u32 v243, %d, v1' % (56 * 1024))
    a('v_lshlrev_b32 v244, 4, v%d' % V_G)
    a('v_add_u32 v244, %d, v244' % L.L_CSA)
    a('v_lshlrev_b32 v245, 2, v%d' % V_TOK)
    a('v_add_u32 v245, %d, v245' % L.L_CSA)
    a('s_lshl_b32 s%d, s%d, 7' % (sA, sJ))
    a('s_add_u32 s%d, s%d, %d' % (sA, sA, L.FP))
    a('v_lshl_add_u32 v248, v0, 2, s%d' % sA)
    a('s_lshr_b32 s%d, s%d, 1' % (sB, sW))
    a('s_lshl_b32 s%d, s%d, 2' % (sCc, sG))
    a('s_add_u32 s%d, s%d, s%d' % (sB, sB, sCc))
    a('s_lshl_b32 s%d, s%d, 5' % (sB, sB))
    a('s_and_b32 s%d, s%d, 1' % (sA, sW))
    a('s_add_u32 s%d, s%d, s%d' % (sB, sB, sA))
    a('s_min_u32 s%d, s%d, 6' % (sA, sJ))
    a('s_lshl_b32 s%d, s%d, 1' % (sA, sA))
    a('s_add_u32 s%d, s%d, s%d' % (sB, sB, sA))
    a('s_lshl_b32 s%d, s%d, 2' % (sB, sB))
    a('s_add_u32 s%d, s%d, %d' % (sB, sB, L.FX[0] - 32 * 256))
    a('v_lshl_add_u32 v249, v0, 8, s%d' % sB)
    a('v_cmp_lt_u32 vcc, 31, v0')
    a('v_cndmask_b32 v248, v248, v249, vcc')
    a('s_lshr_b32 s%d, s%d, 3' % (sA, sC))
    a('s_mul_i32 s%d, s%d, 7' % (sA, sA))
    a('s_min_u32 s%d, s%d, 6' % (sB, sJ))
    a('s_add_u32 s%d, s%d, s%d' % (sA, sA, sB))
    a('s_mul_i32 s%d, s%d, 112' % (sA, sA))
    a('s_add_u32 s%d, s%d, %d' % (sA, sA, L.FW1 - 34 * 4))
    a('v_lshl_add_u32 v249, v0, 2, s%d' % sA)
    a('v_cmp_lt_u32 vcc, 33, v0')
    a('v_cndmask_b32 v248, v248, v249, vcc')
    a('s_lshl_b32 s%d, s%d, 7' % (sA, sS))
    a('s_add_u32 s%d, s%d, %d' % (sA, sA, L.FH))
    a('v_and_b32 v247, 15, v0')
    a('v_lshl_add_u32 v247, v247, 2, s%d' % sA)
    a('s_lshl_b32 s%d, s%d, 7' % (sB, sGT))
    a('s_add_u32 s%d, s%d, %d' % (sB, sB, L.FX[1] - 128))
    a('v_lshl_add_u32 v253, v0, 2, s%d' % sB)
    a('s_cmp_eq_u32 s%d, 0' % sW)
    a('s_cselect_b32 s%d, 0, 16' % sA)
    a('v_cmp_gt_u32 vcc, s%d, v0' % sA)
    a('v_cndmask_b32 v247, v247, v253, vcc')
    a('s_mov_b32 s%d, 0x3fff3fff' % sMK2)
    a('s_mov_b32 s%d, 0' % (sMK2 + 1))
    a('s_cmp_eq_u32 s%d, 0' % sS)
    a('s_cselect_b32 s%d, 0x3fff, s%d' % (sMK2, sMK2))
    a('v_and_b32 v253, 15, v0')
    a('v_lshlrev_b32 v253, 2, v253')
    a('v_add_u32 v253, %d, v253' % L.FX[1])
    a('s_cmp_eq_u32 s%d, 0' % sGT)
    a('s_cselect_b64 vcc, -1, 0')
    a('v_cndmask_b32 v247, v247, v253, vcc')


stat_loads = ['buffer_load_dwordx2 %s, v%d, %s, s%d offen offset:%d sc1' %
              (vr(STR + (t * 4 + i) * 2, 2), 241 if i == 3 else 240, srd(S_WS), sO + 12 + t, 512 * i)
              for t in range(3) for i in range(4)]


def a_wread(u):
    b = WBUF[u & 1]
    o = []
    for p in range(6):
        if p < 4:
            o.append('ds_read_b128 %s, v1 offset:%d' % (vr(b + 4 * p), L.L_WA + (p * 14 + u) * 1024))
        else:
            o.append('ds_read_b128 %s, v243 offset:%d' % (vr(b + 4 * p), L.L_WA + ((p - 4) * 14 + u) * 1024))
    return o


stat_fill = []
for t in range(3):
    r = STR + 8 * t
    for c_ in range(2):
        stat_fill += ['v_add_f32 v%d, v%d, v%d' % (r + c_, r + c_, r + 2 + c_),
                      'v_add_f32 v%d, v%d, v%d' % (r + 4 + c_, r + 4 + c_, r + 6 + c_),
                      'v_add_f32 v%d, v%d, v%d' % (r + c_, r + c_, r + 4 + c_)]
    stat_fill += xg_reduce(r, r + 2) + xg_reduce(r + 1, r + 3)
    stat_fill += stats_finish(r, r + 1, r + 2, False)
    stat_fill += ['v_mov_b32 v%d, v%d' % (SM + t, r), 'v_mov_b32 v%d, v%d' % (SR + t, r + 1)]

sWA = [20, 21, 22]
sWAG = 23


def wa_dma(pr, i):
    def f():
        a('s_add_u32 m0, s%d, %d' % (sWA[i], L.L_WA + 2048 * pr))
        a('s_add_u32 s%d, s%d, s%d' % (sD, sWA[i], sWAG))
        if pr:
            a('s_add_u32 s%d, s%d, %d' % (sD, sD, 2048 * pr))
        a('buffer_load_dwordx4 v1, %s, s%d offen sc1 lds' % (srd(S_WS), sD))
    return f


amark = {}


def emit_a_loop(first, xmark, wam):
    ep_mark = es_mark = st_mark = None
    for t in a_wread(0):
        a(t)
    for u in range(14):
        need = xmark[u]
        if u == 11:
            need = max(need, st_mark)
        a.wait_vm(need)
        if not first and u == 6:
            early_check(246, 247, es_mark)
            a('s_nop 0')
        if u == 11:
            a('s_mov_b32 s%d, -1' % sMK2)
            a('s_mov_b32 s%d, 0x3fffffff' % (sMK2 + 1))
        a('s_waitcnt lgkmcnt(0)')
        wb = WBUF[u & 1]
        xs = XR + (u % NR) * 8
        mf = []
        cz = (lambda r: '0') if u == 0 else (lambda r: vr(r))
        for t in range(2):
            for hf in range(2):
                r = AQ + (t * 2 + hf) * 4
                mf.append('%s %s, %s, %s, %s' % (MFMA, vr(r), vr(wb + 4 * hf), vr(xs + 4 * t), cz(r)))
        for t in range(2):
            for hf in range(2):
                r = AK + (t * 2 + hf) * 4
                mf.append('%s %s, %s, %s, %s' % (MFMA, vr(r), vr(wb + 8 + 4 * hf), vr(xs + 4 * t), cz(r)))
        for t in range(2):
            for hf in range(2):
                r = AV + (t * 2 + hf) * 4
                mf.append('%s %s, %s, %s, %s' % (MFMA, vr(r), vr(xs + 4 * t), vr(wb + 16 + 4 * hf), cz(r)))
        if first:
            mf.append('%s %s, %s, %s, %s' % (MFMA, vr(CSACC + 8), vr(CSACC), ar(A_ONES), cz(CSACC + 8)))
            mf.append('%s %s, %s, %s, %s' % (MFMA, vr(CSACC + 12), ar(A_ONES), vr(CSACC + 4), cz(CSACC + 12)))
        mem = {}

        def put(k, x):
            mem.setdefault(k, []).append(x)
        nm = len(mf)
        off = 0
        if first:
            a('ds_read_b128 %s, v252 offset:%d' % (vr(CSACC), 1024 * u))
            a('ds_read_b128 %s, v242 offset:%d' % (vr(CSACC + 4), 1024 * u))
            put(11, 's_waitcnt lgkmcnt(%d)' % (6 if u < 13 else 0))
        if first and u % 2 == 1 and u < 13:
            put(2, ('bar', (u + 1) // 2))
            off = 3
        if u < 13:
            for k, x in enumerate(a_wread(u + 1)):
                put(off + k, x)
        elif not first:
            for p in range(4):
                put(p, 'ds_read_b128 %s, v244 offset:%d' % (vr(WBUF[0] + 4 * p), 64 * p))
            for d in range(2):
                put(4 + d, 'ds_read_b32 v%d, v245 offset:%d' % (WBUF[0] + 16 + d, 64 * (4 + d)))
        if first and u < 2:
            for j_, uu in enumerate((2 * u + 2, 2 * u + 3)):
                for k, x in zip((6, 8), a_xload(uu)):
                    put(k + 4 * j_, x)
                put(8 + 4 * j_, ('xm', uu))
            if u == 0:
                for i, k in enumerate((7, 9, 11)):
                    put(k, ('wa', 2, i))
        elif u + LOOK < 14:
            for k, x in zip((6, 9), a_xload(u + LOOK)):
                put(k, x)
            put(9, ('xm', u + LOOK))
        if first and u % 2 == 0 and u // 2 + 3 <= 6:
            for i, k in enumerate((12, 13, 13) if u == 0 else (7, 10, 12)):
                put(k, ('wa', u // 2 + 3, i))
        order = list(range(4, 12)) + list(range(0, 4))
        if 2 <= u < 6:
            for k, x in zip((8, 11), order[2 * (u - 2):2 * (u - 2) + 2]):
                put(k, stat_loads[x])
        if not first and u == 3:
            put(7, ('estat',))
        if u in (7, 8):
            for k, x in zip((8, 11), order[8 + 2 * (u - 7):8 + 2 * (u - 7) + 2]):
                put(k, stat_loads[x])
            if u == 8:
                put(11, ('st',))
        if u == 6:
            put(10, 's_mov_b32 m0, s%d' % (sO + 1))
            for i, k in enumerate((10, 10, 11, 11)):
                put(k, 'buffer_load_dwordx4 v1, %s, s%d offen offset:%d sc1 lds' % (srd(S_WS), sO + 0, 1024 * i))
            put(11, ('hm',))
        if u == 13:
            put(8, ('early',))
        fill = stat_fill[(u - 11) * 22:(u - 10) * 22] if u >= 11 else []
        fi = 0
        for k, m in enumerate(mf):
            a(m)
            for it in mem.get(k, []):
                if isinstance(it, str):
                    a(it)
                elif it[0] == 'early':
                    ep_mark = early_issue(249, 248)
                elif it[0] == 'estat':
                    es_mark = early_issue(246, 247)
                elif it[0] == 'xm':
                    xmark[it[1]] = a.vm_mark()
                elif it[0] == 'st':
                    st_mark = a.vm_mark()
                elif it[0] == 'hm':
                    amark['halo'] = a.vm_mark()
                elif it[0] == 'bar':
                    a.wait_vm(wam[it[1]])
                    a('s_barrier')
                elif it[0] == 'wa':
                    wa_dma(it[1], it[2])()
                    wam[it[1]] = a.vm_mark()
            for _ in range(2):
                if fi < len(fill) and k >= 1:
                    a(fill[fi])
                    fi += 1
        assert fi == len(fill), (u, fi, len(fill))
    amark['ep'] = ep_mark


for p in range(4):
    a('v_mov_b32 v4, 0x3f803f80')
    a('v_accvgpr_write_b32 a%d, v4' % (A_ONES + p))
a('s_mul_i32 s%d, s%d, 14336' % (sWA[0], sW))
a('s_add_u32 s%d, s%d, 4' % (sA, sW))
a('s_mul_i32 s%d, s%d, 14336' % (sA, sA))
a('s_sub_u32 s%d, s%d, 2' % (sB, sW))
a('s_mul_i32 s%d, s%d, 14336' % (sB, sB))
a('s_add_u32 s%d, s%d, 1024' % (sB, sB))
a('s_cmp_lt_u32 s%d, 2' % sW)
a('s_cselect_b32 s%d, s%d, s%d' % (sWA[1], sA, sB))
a('s_add_u32 s%d, s%d, 2' % (sA, sW))
a('s_mul_i32 s%d, s%d, 14336' % (sA, sA))
a('s_add_u32 s%d, s%d, 1024' % (sWA[2], sA))
a('s_mul_i32 s%d, s%d, %d' % (sWAG, sC, 84 * 1024))
a('s_add_u32 s%d, s%d, %d' % (sWAG, sWAG, L.WA))
a_offsets()
xm0, wam0 = {}, {}


def wa_pair(pr):
    for i in range(3):
        wa_dma(pr, i)()
    wam0[pr] = a.vm_mark()


wa_pair(0)
for u in range(2):
    for t in a_xload(u):
        a(t)
    xm0[u] = a.vm_mark()
wa_pair(1)
a_setup()
a('s_mul_i32 s%d, s%d, 14336' % (sA, sW))
a('v_add_u32 v252, s%d, v1' % sA)
a('s_and_b32 s%d, s%d, 1' % (sA, sW))
a('s_mul_i32 s%d, s%d, 14336' % (sA, sA))
a('v_add_u32 v242, s%d, v243' % sA)
a.wait_vm(wam0[0])
a('s_barrier')
a('s_lshl_b32 s%d, s%d, 5' % (sA, sJ))
a('s_add_u32 s%d, s%d, s%d' % (sA, sA, sG))
a('s_lshl_b32 s%d, s%d, 2' % (sA, sA))
a('s_add_u32 s%d, s%d, %d' % (sA, sA, L.FP))
a('s_cmp_eq_u32 s%d, 0' % sW)
a('s_cselect_b32 s%d, s%d, 0x%x' % (sA, sA, INV))
a('v_mov_b32 v2, s%d' % sA)
a('s_mov_b64 exec, 1')
a('buffer_store_dword v%d, v2, %s, 0 offen sc1' % (V_T, srd(S_WS)))
a.vm_issued -= 1
a('s_mov_b64 exec, -1')
stamp()
emit_a_loop(True, xm0, wam0)
n_join = a.vm_issued - amark['ep']
CSQ = WBUF[0]
a('v_cmp_eq_u32 vcc, 0, v%d' % V_TOK)
a('s_lshl_b32 s%d, s%d, 6' % (sA, sW))
a('v_add_u32 v252, s%d, v244' % sA)
a('s_and_b32 s%d, s%d, 1' % (sA, sW))
a('s_lshl_b32 s%d, s%d, 6' % (sA, sA))
a('v_add_u32 v242, s%d, v245' % sA)
a('s_mov_b64 exec, vcc')
a('ds_write_b128 v252, %s' % vr(CSACC + 8))
a('s_mov_b64 exec, 0xffff')
a('ds_write_b32 v242, v%d offset:256' % (CSACC + 12))
a('s_mov_b64 exec, -1')
a('s_waitcnt lgkmcnt(0)')
a('s_barrier')
for p in range(4):
    a('ds_read_b128 %s, v244 offset:%d' % (vr(WBUF[0] + 4 * p), 64 * p))
for d in range(2):
    a('ds_read_b32 v%d, v245 offset:%d' % (WBUF[0] + 16 + d, 64 * (4 + d)))
with OutOfLine():
    a.label('L_pair')
    a_flag_addr(2)
    a('s_mov_b32 s%d, 0x3fff0000' % sMK)
    ASLEEP = int(([x[9:] for x in sys.argv if x.startswith('--asleep=')] + ['0'])[0])
    poll(2, None, ASLEEP)
    stamp()
    a_offsets()
    xmark = {}
    for u in range(LOOK):
        for t in a_xload(u):
            a(t)
        xmark[u] = a.vm_mark()
    a_setup()
    emit_a_loop(False, xmark, None)
    assert a.vm_issued - amark['ep'] == n_join
    ep_mark = amark['ep']
    a('s_branch L_a_epi')
a.label('L_a_epi')
stamp()
a('s_add_u32 s%d, s%d, 2' % (sA, sW))
a('s_mul_i32 s%d, s%d, 14336' % (sA, sA))
a('v_add_u32 v246, s%d, v1' % sA)
a('v_add_u32 v247, %d, v1' % L.L_R2)
a('s_cmp_lt_u32 s%d, 2' % sW)
a('s_cselect_b64 vcc, -1, 0')
a('v_cndmask_b32 v252, v247, v246, vcc')
a('v_cndmask_b32 v253, v246, v247, vcc')
a.wait_vm(amark['halo'])
a('s_barrier')
HOP = 90
def h_reads(u):
    r = HOP + 8 * (u % 3)
    return ['ds_read_b128 %s, v252 offset:%d' % (vr(r), 1024 * u), 'ds_read_b128 %s, v253 offset:%d' % (vr(r + 4), 1024 * u)]
for u in range(2):
    for x in h_reads(u):
        a(x)
rest = stat_fill[66:]
for u in range(14):
    if u + 2 < 14:
        for x in h_reads(u + 2):
            a(x)
    a('s_waitcnt lgkmcnt(%d)' % (4 if u < 12 else (2 if u == 12 else 0)))
    r = HOP + 8 * (u % 3)
    a('%s %s, %s, %s, %s' % (MFMA, vr(HACC), vr(r), vr(r + 4), '0' if u == 0 else vr(HACC)))
    if rest:
        a(rest.pop(0))
for x in rest:
    a(x)
stamp2()
early_check(249, 248, ep_mark)
BW = 2
a('s_lshl_b32 s%d, s%d, 6' % (sA, sJ))
a('s_lshl_b32 s%d, s%d, 2' % (sB, sW))
a('s_add_u32 s%d, s%d, s%d' % (sA, sA, sB))
a('s_lshl_b32 s%d, s%d, 10' % (sA, sA))
a('s_add_u32 s20, s%d, %d' % (sA, L.WB))
for t in range(1, 4):
    a('s_add_u32 s%d, s20, %d' % (20 + t, 16 * 1024 * t))
wb_all = ['buffer_load_dwordx4 %s, v1, %s, s%d offen offset:%d sc1' % (vr(BW + (i * 4 + t) * 4), srd(S_WS), 20 + t, 1024 * i)
          for i in range(4) for t in range(4)]
for x in wb_all[13:16]:
    a(x)
wb_loads = wb_all[8:13]
A_RES, A_B2 = 224, 232


def red_addrs():
    a('s_lshl_b32 s%d, s%d, 13' % (sA, sW))
    a('s_add_u32 s%d, s%d, %d' % (sA, sA, L.L_R2))
    a('v_add_u32 v248, s%d, v1' % sA)
    a('s_and_b32 s%d, s%d, 1' % (sA, sW))
    a('s_lshl_b32 s%d, s%d, 11' % (sA, sA))
    a('s_lshr_b32 s%d, s%d, 1' % (sB, sW))
    a('s_lshl_b32 s%d, s%d, 12' % (sB, sB))
    a('s_add_u32 s%d, s%d, s%d' % (sA, sA, sB))
    a('s_add_u32 s%d, s%d, %d' % (sA, sA, L.L_R2))
    a('v_add_u32 v249, s%d, v1' % sA)


def publish_setup(xbase, sbase, fbase, per_pair, fsh):
    owner_index()
    a('s_mul_i32 s%d, s%d, 14' % (sCc, sB))
    a('s_add_u32 s%d, s%d, s%d' % (sCc, sCc, sA))
    a('s_lshl_b32 s%d, s%d, 10' % (sPX, sCc))
    a('s_lshl_b32 s%d, s%d, 7' % (sPS, sCc))
    a('s_lshl_b32 s%d, s%d, %d' % (sPF, sB, fsh))
    a('s_add_u32 s%d, s%d, s%d' % (sPF, sPF, sA))
    a('s_lshl_b32 s%d, s%d, 2' % (sPF, sPF))
    for dst, arr in ((sPX, xbase), (sPS, sbase), (sPF, fbase)):
        if per_pair:
            pair_base(sD, arr)
            a('s_add_u32 s%d, s%d, s%d' % (dst, dst, sD))
        else:
            a('s_add_u32 s%d, s%d, %d' % (dst, dst, arr))
    a('s_add_u32 s%d, s%d, %d' % (sPX2, sPX, 2 * 14336))


def owner_index():
    a('s_lshr_b32 s%d, s%d, 1' % (sB, sW))
    a('s_lshl_b32 s%d, s%d, 2' % (sCc, sG))
    a('s_add_u32 s%d, s%d, s%d' % (sB, sB, sCc))
    a('s_and_b32 s%d, s%d, 1' % (sA, sW))
    a('s_lshl_b32 s%d, s%d, 1' % (sCc, sJ))
    a('s_add_u32 s%d, s%d, s%d' % (sA, sA, sCc))


a('s_cmp_eq_u32 s%d, 0' % sPAIR)
a('s_cbranch_scc0 L_a_nores')
owner_index()
a('s_mul_i32 s%d, s%d, 14' % (sB, sB))
a('s_add_u32 s%d, s%d, s%d' % (sB, sB, sA))
a('s_lshl_b32 s%d, s%d, 10' % (sB, sB))
a('s_add_u32 s%d, s%d, %d' % (sB, sB, L.XA[0]))
a('buffer_load_dwordx4 %s, v1, %s, s%d offen sc1' % (ar(A_RES), srd(S_WS), sB))
a('s_add_u32 s%d, s%d, %d' % (sB, sB, 2 * 14336))
a('buffer_load_dwordx4 %s, v1, %s, s%d offen sc1' % (ar(A_RES + 4), srd(S_WS), sB))
build_srd(S_TMP, P_B2, 896)
a('s_lshl_b32 s%d, s%d, 6' % (sB, sA))
a('v_lshlrev_b32 v240, 3, v%d' % V_G)
a('buffer_load_dwordx2 v[228:229], v240, %s, s%d offen' % (srd(S_TMP), sB))
a('buffer_load_dwordx2 v[230:231], v240, %s, s%d offen offset:32' % (srd(S_TMP), sB))
a.label('L_a_nores')
CSQ = WBUF[0]
a('s_mul_i32 s%d, s%d, 384' % (sA, sW))
a('s_add_u32 s%d, s%d, %d' % (sA, sA, L.L_STA))
a('v_lshl_add_u32 v246, v%d, 2, s%d' % (V_TOK, sA))
a('v_lshl_add_u32 v247, v%d, 4, s%d' % (V_G, sA))
a('s_mov_b64 exec, 0xffff')
for t in range(3):
    a('ds_write_b32 v246, v%d offset:%d' % (SM + t, 128 * t))
    a('ds_write_b32 v246, v%d offset:%d' % (SR + t, 128 * t + 64))
a('s_mov_b64 exec, -1')
MROW, RROW = 114, 126
a('s_waitcnt lgkmcnt(0)')
for t in range(3):
    a('ds_read_b128 %s, v247 offset:%d' % (vr(MROW + 4 * t), 128 * t))
    a('ds_read_b128 %s, v247 offset:%d' % (vr(RROW + 4 * t), 128 * t + 64))
QF, KF, VF = 140, 148, 160


def pk(op, dst, srcs, neg=None):
    ops, lo, hi = [], [], []
    for x in srcs:
        if isinstance(x, tuple):
            ops.append(vr(x[1] & ~1, 2))
            lo.append(x[1] & 1)
            hi.append(x[1] & 1)
        else:
            ops.append(vr(x, 2))
            lo.append(0)
            hi.append(1)
    t = '%s %s, %s op_sel:[%s] op_sel_hi:[%s]' % (op, vr(dst, 2), ', '.join(ops), ','.join(map(str, lo)), ','.join(map(str, hi)))
    if neg is not None:
        m = ','.join('1' if k == neg else '0' for k in range(len(srcs)))
        t += ' neg_lo:[%s] neg_hi:[%s]' % (m, m)
    return t


for t in range(2):
    for hf in range(2):
        r = AQ + (t * 2 + hf) * 4
        for i in (0, 2):
            a(pk('v_pk_fma_f32', r + i, [('b', SM + t + 1), CSQ + 4 * hf + i, r + i], 0))
        for p in range(2):
            a('v_cvt_pk_bf16_f32 v%d, v%d, v%d' % (QF + 4 * t + 2 * hf + p, r + 2 * p, r + 2 * p + 1))
        a(wb_all[2 * t + hf])
for t in range(2):
    for hf in range(2):
        r = AK + (t * 2 + hf) * 4
        for i in (0, 2):
            a(pk('v_pk_fma_f32', r + i, [('b', SM + t + 1), CSQ + 8 + 4 * hf + i, r + i], 0))
        for p in range(2):
            a('v_cvt_pk_bf16_f32 v%d, v%d, v%d' % (KF + 4 * (t + 1) + 2 * hf + p, r + 2 * p, r + 2 * p + 1))
        a(wb_all[4 + 2 * t + hf])
L_E, L_HX = L.L_R2 + 16384, L.L_R2 + 26624
a('s_lshl_b32 s%d, s%d, 11' % (sA, sW))
a('s_add_u32 s%d, s%d, %d' % (sA, sA, L_E))
a('v_add_u32 v246, s%d, v1' % sA)
a('s_lshl_b32 s%d, s%d, 10' % (sA, sW))
a('s_add_u32 s%d, s%d, %d' % (sA, sA, L_HX))
a('v_add_u32 v247, s%d, v1' % sA)
a('s_waitcnt lgkmcnt(0)')
for t in range(2):
    for d in range(2):
        r = AV + (t * 2 + d) * 4
        for i in (0, 2):
            a(pk('v_pk_fma_f32', r + i, [MROW + 4 * (t + 1) + i, ('b', CSQ + 16 + d), r + i], 0))
        for p in range(2):
            a('v_cvt_pk_bf16_f32 v%d, v%d, v%d' % (VF + 6 * d + 2 * (t + 1) + p, r + 2 * p, r + 2 * p + 1))
a('ds_write_b128 v246, %s offset:2048' % vr(KF + 8))
a('ds_write_b64 v246, %s offset:3072' % vr(VF + 4, 2))
a('ds_write_b64 v246, %s offset:3080' % vr(VF + 10, 2))
a('ds_write_b128 v247, %s' % vr(HACC))
pair_base(sA, L.O)
a('s_lshl_b32 s%d, s%d, 4' % (sB, sGT))
a('s_add_u32 s%d, s%d, s%d' % (sB, sB, sC))
a('s_lshl_b32 s%d, s%d, 10' % (sB, sB))
a('s_add_u32 s32, s%d, s%d' % (sA, sB))
a('s_add_u32 s33, s32, 16384')
stamp2()
a('s_waitcnt lgkmcnt(0)')
a('s_barrier')
stamp2()
SS = 172
a('s_cmp_eq_u32 s%d, 0' % sW)
a('s_cbranch_scc1 L_a_halo')
a('ds_read_b128 %s, v246' % vr(KF))
a('ds_read_b64 %s, v246 offset:1024' % vr(VF, 2))
a('ds_read_b64 %s, v246 offset:1032' % vr(VF + 6, 2))
a('s_waitcnt lgkmcnt(0)')
a('s_branch L_a_prev')
a.label('L_a_halo')
a('v_add_u32 v247, %d, v1' % L_HX)
for p in range(4):
    a('ds_read_b128 %s, v247 offset:%d' % (vr(SS + 4 * p), 1024 * p))
a('s_waitcnt lgkmcnt(0)')
for hf in range(2):
    r = SS + 4 * hf
    for i in (0, 2):
        a(pk('v_pk_fma_f32', r + i, [('b', SM), CSQ + 8 + 4 * hf + i, r + i], 0))
    for p in range(2):
        a('v_cvt_pk_bf16_f32 v%d, v%d, v%d' % (KF + 2 * hf + p, r + 2 * p, r + 2 * p + 1))
for d in range(2):
    r = SS + 8 + 4 * d
    for i in (0, 2):
        a(pk('v_pk_fma_f32', r + i, [MROW + i, ('b', CSQ + 16 + d), r + i], 0))
    for p in range(2):
        a('v_cvt_pk_bf16_f32 v%d, v%d, v%d' % (VF + 6 * d + p, r + 2 * p, r + 2 * p + 1))
a.label('L_a_prev')
a('s_nop 1')
for t in range(2):
    a('%s %s, %s, %s, 0' % (MFMA, vr(SS + 8 * t), vr(KF + 4 * t), vr(QF + 4 * t)))
    a('%s %s, %s, %s, 0' % (MFMA, vr(SS + 8 * t + 4), vr(KF + 4 * t + 4), vr(QF + 4 * t)))
SCALE = (28.0 ** -0.5) * 1.4426950408889634
MX, CC, LS, TMPR = 190, 192, 194, 196
PF = 200
SUMT = [(224, 226), (232, 188)]
a('v_mov_b32 v198, 0xff800000')
seq = [[], []]
for t in range(2):
    s_ = SS + 8 * t
    q = seq[t]
    rr = lambda e: RROW + 4 * (t + (e >> 2)) + (e & 3)
    for e in range(0, 8, 2):
        q.append(pk('v_pk_mul_f32', s_ + e, [s_ + e, rr(e)]))
    for e in range(8):
        mk = (sM0 if t == 0 else sM1) + 2 * e if e < 4 else sM2 + 2 * (e - 4)
        q.append('v_cndmask_b32 v%d, v198, v%d, %s' % (s_ + e, s_ + e, sp(mk)))
    q.append('v_max3_f32 v%d, v%d, v%d, v%d' % (MX + t, s_, s_ + 1, s_ + 2))
    q.append('v_max3_f32 v%d, v%d, v%d, v%d' % (MX + t, MX + t, s_ + 3, s_ + 4))
    q.append('v_max3_f32 v%d, v%d, v%d, v%d' % (MX + t, MX + t, s_ + 5, s_ + 6))
    q.append('v_max_f32 v%d, v%d, v%d' % (MX + t, MX + t, s_ + 7))
    q += xg_reduce(MX + t, TMPR + t, 'v_max_f32')
    q.append('v_mul_f32 v%d, %s, v%d' % (CC + t, f2h(SCALE), SR + t + 1))
    q.append('v_mul_f32 v%d, v%d, v%d' % (MX + t, MX + t, CC + t))
    for e in range(0, 8, 2):
        q.append(pk('v_pk_fma_f32', s_ + e, [s_ + e, ('b', CC + t), ('b', MX + t)], 2))
    for e in range(8):
        q.append('v_exp_f32 v%d, v%d' % (s_ + e, s_ + e))
    u_, u2 = SUMT[t]
    q.append(pk('v_pk_add_f32', u_, [s_, s_ + 2]))
    q.append(pk('v_pk_add_f32', u2, [s_ + 4, s_ + 6]))
    q.append(pk('v_pk_add_f32', u_, [u_, u2]))
    q.append('v_add_f32 v%d, v%d, v%d' % (LS + t, u_, u_ + 1))
    q += xg_reduce(LS + t, TMPR + t)
    q.append('v_rcp_f32 v%d, v%d' % (LS + t, LS + t))
    for e in range(0, 8, 2):
        q.append(pk('v_pk_mul_f32', s_ + e, [s_ + e, rr(e)]))
    for p in range(4):
        q.append('v_cvt_pk_bf16_f32 v%d, v%d, v%d' % (PF + 4 * t + p, s_ + 2 * p, s_ + 2 * p + 1))
merged = [z for xy in zip(*seq) for z in xy]
gap = len(merged) // (len(wb_loads) + 1)
for k, x in enumerate(merged):
    a(x)
    if k % gap == gap - 1 and wb_loads:
        a(wb_loads.pop(0))
assert not wb_loads
stamp2()
OO = 208
for t in range(2):
    for d in range(2):
        a('%s %s, %s, %s, 0' % (MFMA, vr(OO + 8 * t + 4 * d), vr(VF + 6 * d + 2 * t), vr(PF + 4 * t)))
for t in range(2):
    for e in range(0, 8, 2):
        a(pk('v_pk_mul_f32', OO + 8 * t + e, [OO + 8 * t + e, ('b', LS + t)]))
    for p in range(4):
        a('v_cvt_pk_bf16_f32 v%d, v%d, v%d' % (PF + 4 * t + p, OO + 8 * t + 2 * p, OO + 8 * t + 2 * p + 1))
    store('buffer_store_dwordx4 %s, v1, %s, s%d offen' % (vr(PF + 4 * t), srd(S_WS), 32 + t), sFD)
o_mark = a.vm_mark()
stamp2()
pair_base(sA, L.FA)
a('s_lshl_b32 s%d, s%d, 4' % (sB, sGT))
a('s_add_u32 s%d, s%d, s%d' % (sB, sB, sC))
a('s_lshl_b32 s%d, s%d, 2' % (sB, sB))
a('s_add_u32 s%d, s%d, s%d' % (sA, sA, sB))
a('v_lshlrev_b32 v241, 6, v0')
a('v_add_u32 v241, s%d, v241' % sA)
pair_base(sA, L.FA)
a('s_lshl_b32 s%d, s%d, 8' % (sB, sG))
a('s_add_u32 s%d, s%d, s%d' % (sA, sA, sB))
a('v_lshl_add_u32 v240, v0, 2, s%d' % sA)
a('s_lshl_b32 s%d, s%d, 2' % (sB, sW))
a('s_lshl_b32 s%d, 0x000f000f, s%d' % (sMK, sB))
a('s_mov_b32 s%d, s%d' % (sMK + 1, sMK))
red_addrs()
publish_setup(L.XB, L.SB, L.FB, True, 4)
a('s_mov_b32 s%d, s%d' % (sPC, sFD))
a('s_mov_b32 s%d, s%d' % (sPFC, sFAST))
pair_base(sA, L.O)
a('s_lshl_b32 s%d, s%d, 6' % (sB, sG))
a('s_lshl_b32 s%d, s%d, 2' % (sCc, sW))
a('s_add_u32 s%d, s%d, s%d' % (sB, sB, sCc))
a('s_lshl_b32 s%d, s%d, 10' % (sB, sB))
a('s_add_u32 s20, s%d, s%d' % (sA, sB))
for t in range(1, 4):
    a('s_add_u32 s%d, s20, %d' % (20 + t, 16384 * t))
a.wait_vm(o_mark)
a('s_mov_b64 exec, 3')
store('buffer_store_dword v%d, v241, %s, 0 offen' % (V_T, srd(S_WS)), sFAST)
a('s_mov_b64 exec, -1')
stamp()
a('s_cmp_eq_u32 s%d, 7' % sJ)
a('s_cbranch_scc1 L_next_pair')


def wd_bases():
    a('s_lshl_b32 s%d, s%d, 2' % (sA, sJ))
    a('s_mul_i32 s%d, s%d, %d' % (sA, sA, 56 * 1024))
    a('s_mul_i32 s%d, s%d, %d' % (sB, sW, 14 * 1024))
    a('s_add_u32 s%d, s%d, s%d' % (sA, sA, sB))
    a('s_add_u32 s%d, s%d, %d' % (sO, sA, L.WD))
    quarter_offsets(4, 56 * 1024)


def wd_load(fi):
    kk, t = fi >> 2, fi & 3
    return ('buffer_load_dwordx4 %s, v1, %s, s%d offen offset:%d sc1' %
            (ar(4 * fi), srd(S_WS), sO + 4 * t + (kk >> 2), 1024 * (kk & 3)))


WD_CH = [(0, 12), (12, 56)]
BO, BACC, BRD, BTMP = 66, 130, 194, 226
a('s_cmp_eq_u32 s%d, 0' % sPAIR)
a('s_cbranch_scc0 L_b_start')
for k in range(4):
    a('v_lshlrev_b32 v236, 16, v%d' % (228 + k))
    a('v_and_b32 v237, 0xffff0000, v%d' % (228 + k))
    a('v_accvgpr_write_b32 a%d, v236' % (A_B2 + 2 * k))
    a('v_accvgpr_write_b32 a%d, v237' % (A_B2 + 2 * k + 1))
wd_bases()
for fi in range(*WD_CH[0]):
    a(wd_load(fi))
a.label('L_b_start')
CWW = 66
sCI = 41
a('s_lshr_b32 s%d, s%d, 3' % (sA, sC))
a('s_mul_i32 s%d, s%d, 7' % (sA, sA))
a('s_add_u32 s%d, s%d, s%d' % (sCI, sA, sJ))
a('s_lshl_b32 s%d, s%d, 3' % (sA, sCI))
a('s_lshl_b32 s%d, s%d, 1' % (sB, sW))
a('s_add_u32 s%d, s%d, s%d' % (sA, sA, sB))
a('s_mul_i32 s%d, s%d, %d' % (sB, sA, 14 * 1024))
a('s_add_u32 s%d, s%d, %d' % (sO, sB, L.WC))
quarter_offsets(2, 14 * 1024)


def c_wload(idx):
    u, k = idx >> 1, idx & 1
    return ('buffer_load_dwordx4 %s, v1, %s, s%d offen offset:%d sc1' %
            (vr(CWW + 4 * idx), srd(S_WS), sO + 4 * k + (u >> 2), 1024 * (u & 3)))


def red_writes(acc, tile):
    return ['ds_write_b128 v248, %s offset:%d' % (vr(acc + 4 * t), (tile >> 1) * 32768 + (tile & 1) * 4096 + t * 1024)
            for t in range(4)]


def red_reads(st, rd):
    return ['ds_read_b128 %s, v249 offset:%d' % (vr(rd + (b * 2 + k) * 4), st * 32768 + b * 8192 + k * 1024)
            for b in range(4) for k in range(2)]


def add8(dst, x, y, packed):
    if packed:
        return ['v_pk_add_f32 %s, %s, %s' % (vr(dst + e, 2), vr(x + e, 2), vr(y + e, 2)) for e in range(0, 8, 2)]
    return ['v_add_f32 v%d, v%d, v%d' % (dst + e, x + e, y + e) for e in range(8)]


def finish_pre(st, is_d, tmp):
    res = A_RES + 4 * st
    o = ['v_accvgpr_read_b32 v%d, a%d' % (tmp + 8 + p, res + p) for p in range(4)]
    for p in range(4):
        o += ['v_lshlrev_b32 v%d, 16, v%d' % (tmp + 2 * p, tmp + 8 + p),
              'v_and_b32 v%d, 0xffff0000, v%d' % (tmp + 2 * p + 1, tmp + 8 + p)]
    if is_d:
        o += ['v_accvgpr_read_b32 v%d, a%d' % (tmp + 8 + e, A_B2 + e) for e in range(8)]
        o += ['v_add_f32 v%d, v%d, v%d' % (tmp + e, tmp + e, tmp + 8 + e) for e in range(8)]
    return o


def finish_sum(st, rd, tmp, pk, packed):
    o = add8(rd, rd, rd + 8, packed) + add8(rd + 16, rd + 16, rd + 24, packed) + add8(rd, rd, rd + 16, packed)
    o += add8(tmp, tmp, rd, packed)
    o += ['v_cvt_pk_bf16_f32 v%d, v%d, v%d' % (pk + p, tmp + 2 * p, tmp + 2 * p + 1) for p in range(4)]
    o += ['v_accvgpr_write_b32 a%d, v%d' % (A_RES + 4 * st + p, pk + p) for p in range(4)]
    return o


def owner_stats(tmp, s1, t):
    a('v_pk_add_f32 %s, %s, %s' % (vr(t, 2), vr(tmp, 2), vr(tmp + 2, 2)))
    a('v_pk_add_f32 %s, %s, %s' % (vr(t + 2, 2), vr(tmp + 4, 2), vr(tmp + 6, 2)))
    a('v_pk_add_f32 %s, %s, %s' % (vr(t, 2), vr(t, 2), vr(t + 2, 2)))
    a('v_add_f32 v%d, v%d, v%d' % (s1, t, t + 1))
    a('v_pk_mul_f32 %s, %s, %s' % (vr(t, 2), vr(tmp, 2), vr(tmp, 2)))
    for e in (2, 4, 6):
        a('v_pk_fma_f32 %s, %s, %s, %s' % (vr(t, 2), vr(tmp + e, 2), vr(tmp + e, 2), vr(t, 2)))
    a('v_add_f32 v%d, v%d, v%d' % (s1 + 1, t, t + 1))
    for x, y in zip(xg_reduce(s1, t), xg_reduce(s1 + 1, t + 1)):
        a(x)
        a(y)


def publish_data(st, pk):
    store('buffer_store_dwordx4 %s, v1, %s, s%d offen offset:0' % (vr(pk), srd(S_WS), sPX if st == 0 else sPX2), sPC)


def publish_stats(tmps, t, s1):
    a('v_and_b32 v%d, 15, v0' % V_TOK)
    a('v_lshlrev_b32 v%d, 3, v%d' % (t + 4, V_TOK))
    for st in range(2):
        owner_stats(tmps[st], s1 + 2 * st, t)
    a('s_mov_b64 exec, 0xffff')
    store('buffer_store_dwordx2 %s, v%d, %s, s%d offen' % (vr(s1, 2), t + 4, srd(S_WS), sPS), sPC)
    a('s_add_u32 s%d, s%d, %d' % (sPS, sPS, 2 * 1792))
    store('buffer_store_dwordx2 %s, v%d, %s, s%d offen' % (vr(s1 + 2, 2), t + 4, srd(S_WS), sPS), sPC)
    a('s_mov_b64 exec, -1')


def publish_flags(lsh, between=()):
    a('v_lshlrev_b32 v241, %d, v0' % lsh)
    a('v_add_u32 v241, s%d, v241' % sPF)
    set_flags(241, 2, sPFC, V_T, between)


def run_tiles(tile_items, extras):
    for tile in range(4):
        if tile and '--diag3' in sys.argv:
            stamp()
        items = tile_items(tile)
        ex = list(extras.get(tile, []))
        free = [k for k, it in enumerate(items) if k >= 3 and not it[2]]
        per = -(-len(ex) // max(1, len(free))) if ex else 0
        for k, (pre, m, post) in enumerate(items):
            for x in pre:
                x()
            a(m)
            if post:
                post()
            elif k >= 3:
                for _ in range(per):
                    if ex:
                        x = ex.pop(0)
                        if callable(x):
                            x()
                        else:
                            a(x)
        assert not ex


poll(240)
a('s_barrier')
stamp()


def b_oload(tile, i):
    return 'buffer_load_dwordx4 %s, v1, %s, s%d offen offset:%d sc1' % (vr(BO + (tile * 4 + i) * 4), srd(S_WS), 20 + tile, 1024 * i)


om = {}
for tile in range(2):
    for i in range(4):
        a(b_oload(tile, i))
        om[(tile, i)] = a.vm_mark()


def b_tile(tile):
    items = []
    for i in range(4):
        for t in range(4):
            r = BACC + (tile * 4 + t) * 4
            pre = [(lambda tl=tile, ii=i: a.wait_vm(om[(tl, ii)]))] if t == 0 else []
            post = None
            if tile < 2 and t == 1:
                def post(tl=tile + 2, ii=i):
                    a(b_oload(tl, ii))
                    om[(tl, ii)] = a.vm_mark()
            if tile >= 2 and t == 1:
                def post(idx=4 * (tile - 2) + i):
                    a(c_wload(idx))
            items.append((pre, '%s %s, %s, %s, %s' % (MFMA, vr(r), vr(BW + (i * 4 + t) * 4), vr(BO + (tile * 4 + i) * 4),
                                                      '0' if i == 0 else vr(r)), post))
    return items


BT0, BT1, BPK = 226, 2, 18
run_tiles(b_tile, {1: red_writes(BACC, 0), 2: red_writes(BACC + 16, 1), 3: red_writes(BACC + 32, 2)})
stamp2()
for x in red_writes(BACC + 48, 3):
    a(x)
for x in finish_pre(0, False, BT0) + finish_pre(1, False, BT1):
    a(x)
a('s_waitcnt lgkmcnt(0)')
a('s_barrier')
stamp2()
BRD1 = 162
for x in red_reads(0, BRD) + red_reads(1, BRD1):
    a(x)
a('s_waitcnt lgkmcnt(8)')
for x in finish_sum(0, BRD, BT0, BPK, True):
    a(x)
publish_data(0, BPK)
a('s_waitcnt lgkmcnt(0)')
for x in finish_sum(1, BRD1, BT1, BPK + 4, True):
    a(x)
publish_data(1, BPK + 4)
stamp2()
publish_stats([BT0, BT1], 36, 32)
b_mark = a.vm_mark()
a('v_lshlrev_b32 v236, 7, v0')
a('v_add_u32 v236, s%d, v236' % sPF)
for i in range(8, 16):
    a(c_wload(i))
CA = [2, 10]
XF, NXF = 18, 8
GTMP, GH = 50, 58
CCS, CB1, CB1R = 178, 186, 194
CSTR = 198
CMR = 214
VGA = 218
a('v_lshrrev_b32 v%d, 4, v0' % V_G)
a('v_and_b32 v%d, 15, v0' % V_TOK)
pair_base(sA, L.FB)
a('s_lshl_b32 s%d, s%d, 9' % (sB, sS))
a('s_add_u32 s%d, s%d, s%d' % (sA, sA, sB))
a('v_lshl_add_u32 v240, v0, 2, s%d' % sA)
a('s_mov_b32 s%d, 0x3fff3fff' % sMK)
a('s_mov_b32 s%d, 0x3fff3fff' % (sMK + 1))
pair_base(20, L.XB)
a('s_mul_i32 s%d, s%d, %d' % (sB, sS, 8 * 14336))
a('s_add_u32 s20, s20, s%d' % sB)
a('s_lshl_b32 s%d, s%d, 12' % (sB, sW))
a('s_add_u32 s20, s20, s%d' % sB)
a('s_add_u32 s21, s%d, %d' % (sB, L.L_R2))
pair_base(22, L.SB)
a('s_lshl_b32 s%d, s%d, 3' % (sB, sS))
a('s_add_u32 s%d, s%d, s%d' % (sB, sB, sW))
a('s_mul_i32 s%d, s%d, 1792' % (sB, sB))
a('s_add_u32 s22, s22, s%d' % sB)
a('s_add_u32 s23, s22, %d' % (4 * 1792))
pair_base(32, L.H)
a('s_mul_i32 s%d, s%d, %d' % (sB, sS, 8 * 56 * 1024))
a('s_add_u32 s32, s32, s%d' % sB)
a('s_lshl_b32 s%d, s%d, 2' % (sB, sCI))
a('s_add_u32 s%d, s%d, s%d' % (sB, sB, sW))
a('s_lshl_b32 s%d, s%d, 10' % (sCc, sB))
a('s_add_u32 s32, s32, s%d' % sCc)
pair_base(33, L.FC)
a('s_lshl_b32 s%d, s%d, 11' % (sCc, sS))
a('s_add_u32 s33, s33, s%d' % sCc)
a('s_lshl_b32 s%d, s%d, 2' % (sB, sB))
a('s_add_u32 s33, s33, s%d' % sB)
a('v_mov_b32 v241, s33')
a('v_mov_b32 v242, 0x%x' % INV)
a('v_cmp_eq_u32 vcc, 0, v0')
a('v_cndmask_b32 v241, v242, v241, vcc')
a('v_lshlrev_b32 v238, 3, v%d' % V_TOK)
a('v_lshl_add_u32 v238, v%d, 7, v238' % V_G)
a('v_mov_b32 v242, 0x%x' % INV)
a('v_cmp_lt_u32 vcc, 1, v%d' % V_G)
a('v_cndmask_b32 v239, 0, v242, vcc')
a('v_or_b32 v239, v239, v238')
a('v_add_u32 v252, %d, v1' % L.L_R2)
a('v_lshlrev_b32 v246, 3, v%d' % V_TOK)
a('v_add_u32 v246, %d, v246' % L.L_STC)
GA = 2.0 * 0.7978845608028654 * 1.4426950408889634
GB = GA * 0.044715
a('v_mov_b32 v%d, %s' % (VGA, f2h(-GA)))
a('v_mov_b32 v%d, %s' % (VGA + 1, f2h(-GA)))
a('s_mov_b32 s34, %s' % f2h(-GB))
a('s_mov_b32 s35, %s' % f2h(-GB))
wd_bases_hi = True
a.wait_vm(b_mark)
a('s_mov_b64 exec, 3')
store('buffer_store_dword v%d, v236, %s, 0 offen' % (V_T, srd(S_WS)), sPFC)
a('s_mov_b64 exec, -1')
stamp()

for i in range(16, 22):
    a(c_wload(i))
a('s_lshl_b32 s%d, s%d, 3' % (sA, sCI))
a('s_lshl_b32 s%d, s%d, 1' % (sB, sW))
a('s_add_u32 s%d, s%d, s%d' % (sA, sA, sB))
a('s_lshl_b32 s24, s%d, 5' % sA)
a('v_lshlrev_b32 v248, 3, v%d' % V_G)
for k in range(2):
    a('buffer_load_dwordx2 %s, v248, %s, s24 offen offset:%d' % (vr(CB1R + 2 * k, 2), srd(S_B1), 32 * k))
poll(240, 256)
stamp()


TORD = [0, 4, 1, 5, 2, 6, 3, 7]


def c_dma_setup(t):
    return ['s_add_u32 s36, s20, %d' % (TORD[t] * 14336), 's_add_u32 m0, s21, %d' % ((t & 3) * 16384)]


def c_dma(t, i):
    return 'buffer_load_dwordx4 v1, %s, s36 offen offset:%d sc1 lds' % (srd(S_WS), 1024 * i)


dm = {}
for x in c_dma_setup(0) + [c_dma(0, i) for i in range(4)]:
    a(x)
dm[0] = a.vm_mark()
wlate = {}
for i in range(22, 28):
    a(c_wload(i))
    wlate[i >> 1] = a.vm_mark()
for tt in range(2):
    for i in range(4):
        a('buffer_load_dwordx2 %s, v%d, %s, s%d offen offset:%d sc1' %
          (vr(CSTR + 8 * tt + 2 * i, 2), 239 if i == 3 else 238, srd(S_WS), 22 + tt, 512 * i))
amark['cst'] = a.vm_mark()
for x in c_dma_setup(1) + [c_dma(1, i) for i in range(4)]:
    a(x)
dm[1] = a.vm_mark()
wd_bases()
t0_loads = []
b1_unpack = []
for k in range(2):
    for p in range(2):
        b1_unpack += ['v_lshlrev_b32 v%d, 16, v%d' % (CB1 + 4 * k + 2 * p, CB1R + 2 * k + p),
                      'v_and_b32 v%d, 0xffff0000, v%d' % (CB1 + 4 * k + 2 * p + 1, CB1R + 2 * k + p)]
a.wait_vm(dm[0])
a('s_barrier')
stamp()


def c_xread(t, u):
    n = t * 14 + u
    return 'ds_read_b128 %s, v252 offset:%d' % (vr(XF + 4 * (n % NXF)), (t & 3) * 16384 + u * 1024)


def gelu_pre(t):
    z, m = CA[t & 1], CMR + 2 * (t & 1)
    P = range(0, 8, 2)
    o = ['v_pk_fma_f32 %s, %s, %s, %s op_sel_hi:[1,0,1] neg_lo:[0,1,0] neg_hi:[0,1,0]' % (vr(z + e, 2), vr(CCS + e, 2), vr(m, 2), vr(z + e, 2)) for e in P]
    o += ['v_pk_fma_f32 %s, %s, %s, %s op_sel:[0,1,0] op_sel_hi:[1,1,1]' % (vr(z + e, 2), vr(z + e, 2), vr(m, 2), vr(CB1 + e, 2)) for e in P]
    o += ['v_pk_mul_f32 %s, %s, %s' % (vr(GTMP + e, 2), vr(z + e, 2), vr(z + e, 2)) for e in P]
    o += ['v_pk_fma_f32 %s, %s, s[34:35], %s' % (vr(GTMP + e, 2), vr(GTMP + e, 2), vr(VGA, 2)) for e in P]
    o += ['v_pk_mul_f32 %s, %s, %s' % (vr(GTMP + e, 2), vr(GTMP + e, 2), vr(z + e, 2)) for e in P]
    return o


def gelu_mid():
    o = {}
    for e in range(8):
        o.setdefault(2 * e, []).append('v_exp_f32 v%d, v%d' % (GTMP + e, GTMP + e))
        o.setdefault(2 * e + 3, []).append('v_add_f32 v%d, 1.0, v%d' % (GTMP + e, GTMP + e))
    for e in range(6):
        o.setdefault(16 + 2 * e, []).append('v_rcp_f32 v%d, v%d' % (GTMP + e, GTMP + e))
    o.setdefault(25, []).append('v_rcp_f32 v%d, v%d' % (GTMP + 6, GTMP + 6))
    o.setdefault(27, []).append('v_rcp_f32 v%d, v%d' % (GTMP + 7, GTMP + 7))
    return o


def gelu_post(t):
    z, h = CA[t & 1], GH + 4 * (t & 1)
    o = ['v_pk_mul_f32 %s, %s, %s' % (vr(GTMP + e, 2), vr(GTMP + e, 2), vr(z + e, 2)) for e in range(0, 8, 2)]
    o += ['v_cvt_pk_bf16_f32 v%d, v%d, v%d' % (h + p, GTMP + 2 * p, GTMP + 2 * p + 1) for p in range(4)]
    return o


def gelu_packed(t):
    z, m, h = CA[t & 1], CMR + 2 * (t & 1), GH + 4 * (t & 1)
    P = range(0, 8, 2)
    for e in P:
        a('v_pk_fma_f32 %s, %s, %s, %s op_sel_hi:[1,0,1] neg_lo:[0,1,0] neg_hi:[0,1,0]' % (vr(z + e, 2), vr(CCS + e, 2), vr(m, 2), vr(z + e, 2)))
    for e in P:
        a('v_pk_fma_f32 %s, %s, %s, %s op_sel:[0,1,0] op_sel_hi:[1,1,1]' % (vr(z + e, 2), vr(z + e, 2), vr(m, 2), vr(CB1 + e, 2)))
    for e in P:
        a('v_pk_mul_f32 %s, %s, %s' % (vr(GTMP + e, 2), vr(z + e, 2), vr(z + e, 2)))
    for e in P:
        a('v_pk_fma_f32 %s, %s, s[34:35], %s' % (vr(GTMP + e, 2), vr(GTMP + e, 2), vr(VGA, 2)))
    for e in P:
        a('v_pk_mul_f32 %s, %s, %s' % (vr(GTMP + e, 2), vr(GTMP + e, 2), vr(z + e, 2)))
    for e in range(8):
        a('v_exp_f32 v%d, v%d' % (GTMP + e, GTMP + e))
    for e in P:
        a('v_pk_add_f32 %s, %s, 1.0 op_sel_hi:[1,0]' % (vr(GTMP + e, 2), vr(GTMP + e, 2)))
    for e in range(8):
        a('v_rcp_f32 v%d, v%d' % (GTMP + e, GTMP + e))
    for e in P:
        a('v_pk_mul_f32 %s, %s, %s' % (vr(GTMP + e, 2), vr(GTMP + e, 2), vr(z + e, 2)))
    for p in range(4):
        a('v_cvt_pk_bf16_f32 v%d, v%d, v%d' % (h + p, GTMP + 2 * p, GTMP + 2 * p + 1))


hmk, fmk = {}, {}


def h_store(t):
    def f():
        a('s_add_u32 s24, s32, %d' % (TORD[t] * 56 * 1024))
        store('buffer_store_dwordx4 %s, v1, %s, s24 offen' % (vr(GH + 4 * (t & 1)), srd(S_WS)), sFH)
        hmk[t] = a.vm_mark()
    return f


def h_flag(t):
    def f():
        a.wait_vm(hmk[t])
        store('buffer_store_dword v%d, v241, %s, 0 offen offset:%d' % (V_T, srd(S_WS), 256 * TORD[t]), sFAST)
    return f


def wd_block(fis, wave):
    def f():
        skip = newlab('L_wd')
        a('s_cmp_eq_u32 s24, %d' % wave)
        a('s_cbranch_scc0 %s' % skip)
        for fi in fis:
            a(wd_load(fi))
            a.vm_issued -= 1
        a.label(skip)
    return f


cst_fill = []
for tt in range(2):
    r = CSTR + 8 * tt
    for c_ in range(2):
        cst_fill += ['v_add_f32 v%d, v%d, v%d' % (r + c_, r + c_, r + 2 + c_),
                     'v_add_f32 v%d, v%d, v%d' % (r + 4 + c_, r + 4 + c_, r + 6 + c_),
                     'v_add_f32 v%d, v%d, v%d' % (r + c_, r + c_, r + 4 + c_)]
    cst_fill += xg_reduce(r, r + 2) + xg_reduce(r + 1, r + 3) + stats_finish(r, r + 1, r + 2, True)
a('s_lshl_b32 s%d, s%d, 7' % (sA, sW))
a('v_add_u32 v247, s%d, v246' % sA)
cst_fill += ['ds_write_b64 v247, %s' % vr(CSTR, 2), 'ds_write_b64 v247, %s offset:512' % vr(CSTR + 8, 2)] + b1_unpack
LOOKX = 6


A_CCS = 244


DFIRST = [194, 198, 202, 206, 210, 220, 224, 228, 232]
hm = {}


def emit_c_loop(wd_list):
    pass0 = bool(wd_list)
    if not pass0:
        for e in range(8):
            a('v_accvgpr_read_b32 v%d, a%d' % (CCS + e, A_CCS + e))
    for u in range(LOOKX):
        a(c_xread(0, u))
    for t in range(8):
        nonvec = {}

        def put(k, x):
            nonvec.setdefault(k, []).append(x)
        for u in range(14):
            n = t * 14 + u
            m = n + LOOKX
            if m < 8 * 14:
                put(2 * u + 1, c_xread(m // 14, m % 14))
            if u % 2 == 1 and n + 1 < 8 * 14:
                put(2 * u + 1, 's_waitcnt lgkmcnt(%d)' % min(LOOKX - 2, 8 * 14 - 1 - (n + 2)))
        if t < 7:
            nonvec[14] = [('bar', t + 1)] + nonvec.get(14, [])
        if t + 2 < 8:
            su = c_dma_setup(t + 2)
            put(0, su[0])
            put(0, su[1])
            for i in range(4):
                put(2 + 2 * i, ('dma', t + 2, i))
        if t >= 3:
            put(20, ('call', h_flag(t - 3)))
        if t == 1:
            put(0, 's_add_u32 s22, s25, 12288')
        if t == 5:
            def issue_d0():
                amark['d0'] = early_issue(244, 243)
            put(22, ('call', issue_d0))
        if t == 6:
            put(2, ('call', lambda: early_check(244, 243, amark['d0'])))
        if t in (6, 7):
            for k, q in zip((4, 6, 8, 20, 22) if t == 6 else (2, 4, 6, 8), range(0, 5) if t == 6 else range(5, 9)):
                put(k, ('h0', q))
        if t < 7:
            for k in (10, 12, 16, 18, 22, 24, 26):
                if wd_list:
                    put(k, wd_load(wd_list.pop(0)))
        if t > 0:
            put(17, 'ds_read_b64 %s, v246 offset:%d' % (vr(CMR + 2 * (t & 1), 2), 128 * TORD[t]))
        if t == 0:
            for k, it in enumerate(t0_loads):
                put(k, ('t0', it))
        valu = gelu_mid() if t >= 1 else {}
        if t >= 2:
            for x in gelu_post(t - 2):
                a(x)
            h_store(t - 2)()
        if t >= 1:
            for x in gelu_pre(t - 1):
                a(x)
        fill = list(cst_fill) if t == 0 else []
        first = 8
        fi = 0
        for k in range(28):
            u, kk = k >> 1, k & 1
            n = t * 14 + u
            if t == 0 and k == 0:
                a('s_waitcnt lgkmcnt(%d)' % (LOOKX - 2))
            if t == 0 and kk == 0 and u in wlate:
                a.wait_vm(wlate[u])
            if t == 0 and k == first:
                a.wait_vm(amark['cst'])
            r = CA[t & 1] + 4 * kk
            a('%s %s, %s, %s, %s' % (MFMA, vr(r), vr(CWW + 4 * (2 * u + kk)), vr(XF + 4 * (n % NXF)), '0' if u == 0 else vr(r)))
            if pass0 and t == 0:
                a('%s %s, %s, %s, %s' % (MFMA, vr(CCS + 4 * kk), vr(CWW + 4 * (2 * u + kk)), ar(A_ONES), '0' if u == 0 else vr(CCS + 4 * kk)))
            for it in nonvec.get(k, []):
                if isinstance(it, str):
                    a(it)
                elif it[0] == 'bar':
                    a.wait_vm(dm[it[1]])
                    a('s_barrier')
                elif it[0] == 'dma':
                    a(c_dma(it[1], it[2]))
                    dm[it[1]] = a.vm_mark()
                elif it[0] == 'call':
                    it[1]()
                elif it[0] == 'h0':
                    q = it[1]
                    a('buffer_load_dwordx4 %s, v1, %s, s%d offen offset:%d sc1' %
                      (vr(DFIRST[q] if q < 9 else 66 + 4 * q), srd(S_WS), (25, 27, 29, 22)[q >> 2], 1024 * (q & 3)))
                    hm[q] = a.vm_mark()
                elif it[0] == 't0':
                    if it[1][0] == 'w':
                        a(c_wload(it[1][1]))
                        wlate[it[1][1] >> 1] = a.vm_mark()
                    else:
                        a(it[1][1])
                        amark['cst'] = a.vm_mark()
            for x in valu.get(k, []):
                a(x)
            if fill and k >= first:
                want = -(-(len(fill)) * (k - first + 1) // (28 - first))
                while fi < want:
                    a(fill[fi])
                    fi += 1
        assert fi == len(fill)
        if t == 0:
            a('s_waitcnt lgkmcnt(0)')
            a('s_barrier')
            a('ds_read_b64 %s, v246 offset:0' % vr(CMR, 2))
            if pass0:
                for e in range(8):
                    a('v_accvgpr_write_b32 a%d, v%d' % (A_CCS + e, CCS + e))
            a('s_waitcnt lgkmcnt(0)')
    assert not wd_list


pair_base(sA, L.FC)
a('s_lshl_b32 s%d, s%d, 10' % (sB, sG))
a('s_add_u32 s%d, s%d, s%d' % (sA, sA, sB))
a('s_mul_i32 s%d, s%d, 56' % (sB, sW))
a('s_add_u32 s%d, s%d, s%d' % (sA, sA, sB))
a('v_lshl_add_u32 v243, v0, 2, s%d' % sA)
a('s_mov_b32 s%d, 0x3fff' % sMK2)
a('s_mov_b32 s%d, 0' % (sMK2 + 1))
pair_base(sA, L.H)
a('s_mul_i32 s%d, s%d, %d' % (sB, sG, 4 * 56 * 1024))
a('s_add_u32 s%d, s%d, s%d' % (sA, sA, sB))
a('s_mul_i32 s%d, s%d, %d' % (sB, sW, 14 * 1024))
a('s_add_u32 s25, s%d, s%d' % (sA, sB))
a('s_add_u32 s27, s25, 4096')
a('s_add_u32 s29, s25, 8192')
n_before = a.vm_issued
dm_init = dict(dm)
a('s_cmp_eq_u32 s%d, 0' % sPAIR)
a('s_cbranch_scc0 L_c_loop1')
emit_c_loop(list(range(*WD_CH[1])))
extra = a.vm_issued - n_before
with OutOfLine():
    a.label('L_c_loop1')
    a.vm_issued = n_before
    dm.clear()
    dm.update(dm_init)
    emit_c_loop([])
    a('s_branch L_c_done')
a.label('L_c_done')
stamp()
DH, DACC, DRD = 66, 130, 194
DRING, DLOOK = 16, 10
red_addrs()
publish_setup(L.XA[1], L.SA[1], L.FX[1], False, 5)
a('s_and_b32 s%d, s%d, 1' % (sA, sG))
a('s_lshr_b32 s%d, s%d, 1' % (sB, sW))
a('s_and_b32 s%d, s%d, s%d' % (sA, sA, sB))
a('s_xor_b32 s%d, s%d, 1' % (sA, sA))
a('s_and_b32 s%d, s%d, s%d' % (sPC, sFD, sA))
a('s_mov_b32 s%d, s%d' % (sPFC, sFAST))
a('s_cmp_eq_u32 s%d, 0' % sA)
a('s_cselect_b32 s%d, 0, 0x%x' % (sCc, INV))
a('s_add_u32 s%d, s%d, 1' % (sA, sS))
a('s_lshl_b32 s%d, s%d, 5' % (sA, sA))
a('s_lshl_b32 s%d, s%d, 1' % (sB, sJ))
a('s_add_u32 s%d, s%d, s%d' % (sA, sA, sB))
a('s_and_b32 s%d, s%d, 1' % (sB, sW))
a('s_add_u32 s%d, s%d, s%d' % (sA, sA, sB))
a('s_lshl_b32 s%d, s%d, 2' % (sA, sA))
a('s_add_u32 s%d, s%d, %d' % (sA, sA, L.FH))
a('s_or_b32 s20, s%d, s%d' % (sA, sCc))
pair_base(sA, L.H)
a('s_mul_i32 s%d, s%d, %d' % (sB, sG, 4 * 56 * 1024))
a('s_add_u32 s%d, s%d, s%d' % (sA, sA, sB))
a('s_mul_i32 s%d, s%d, %d' % (sB, sW, 14 * 1024))
a('s_add_u32 s%d, s%d, s%d' % (sO, sA, sB))
quarter_offsets(4, 56 * 1024)
a('s_cmp_eq_u32 s%d, 0' % sPAIR)
a('s_cbranch_scc1 L_d_nout')
owner_index()
a('s_mul_i32 s%d, s%d, 14336' % (sPX, sB))
a('s_lshl_b32 s%d, s%d, 6' % (sA, sA))
a('s_add_u32 s%d, s%d, s%d' % (sPX, sPX, sA))
a('s_add_u32 s%d, s%d, %d' % (sPX2, sPX, 2 * 14336))
a.label('L_d_nout')
a('v_and_b32 v%d, 15, v0' % V_TOK)
a('v_lshrrev_b32 v%d, 4, v0' % V_G)
a('v_mul_u32_u24 v242, 896, v%d' % V_TOK)
a('v_lshl_add_u32 v242, v%d, 3, v242' % V_G)


def d_hload(q):
    tile, kk = divmod(q, 14)
    return ('buffer_load_dwordx4 %s, v1, %s, s%d offen offset:%d sc1' %
            (vr(d_reg(q)), srd(S_WS), sO + 4 * tile + (kk >> 2), 1024 * (kk & 3)))


def d_reg(q):
    return DFIRST[q] if q < len(DFIRST) else DH + (q % DRING) * 4


dmk = {}
for q in range(len(DFIRST), DLOOK):
    a(d_hload(q))
    hm[q] = a.vm_mark()
dmk[1] = early_issue(244, 243, 256)
stamp()
for x in gelu_post(6):
    a(x)
h_store(6)()
a('s_waitcnt lgkmcnt(0)')
gelu_packed(7)
h_flag(5)()
h_store(7)()
stamp()

a('s_barrier')
stamp()


def d_tile(tile):
    items = []
    for kk in range(14):
        q = tile * 14 + kk
        for t in range(4):
            r = DACC + (tile * 4 + t) * 4
            pre = [(lambda qq=q: a.wait_vm(hm[qq]))] if t == 0 else []
            if t == 0 and q in (6, 12):
                pre.append(h_flag({6: 6, 12: 7}[q]))
            post = None
            if t == 0 and q + DLOOK < 56:
                def post(qq=q + DLOOK):
                    if qq % 14 == 0:
                        early_check(244, 243, dmk[qq // 14], 256 * (qq // 14))
                    a(d_hload(qq))
                    hm[qq] = a.vm_mark()
                    if qq % 14 == 6 and qq // 14 < 3:
                        dmk[qq // 14 + 1] = early_issue(244, 243, 256 * (qq // 14 + 1))
            items.append((pre, '%s %s, %s, %s, %s' % (MFMA, vr(r), ar((kk * 4 + t) * 4), vr(d_reg(q)),
                                                      '0' if kk == 0 else vr(r)), post))
    return items


def d_out_store(st, pk):
    a('buffer_store_dwordx2 %s, v242, %s, s%d offen %s' % (vr(pk, 2), srd(S_OUT), sPX if st == 0 else sPX2, OUTSC))
    a('buffer_store_dwordx2 %s, v242, %s, s%d offen offset:32 %s' % (vr(pk + 2, 2), srd(S_OUT), sPX if st == 0 else sPX2, OUTSC))


def d_store(st, pk):
    fin, done = newlab('L_dfin'), newlab('L_ddone')
    a('s_cmp_eq_u32 s%d, 0' % sPAIR)
    a('s_cbranch_scc0 %s' % fin)
    publish_data(st, pk)
    a('s_branch %s' % done)
    a.label(fin)
    n = a.vm_issued
    d_out_store(st, pk)
    a.vm_issued = n
    a.label(done)


DT0, DT1, DPK, DSTT, DSTS = 226, 2, 18, 28, 36
stage0 = [lambda: (a('s_waitcnt lgkmcnt(0)'), a('s_barrier'))] + red_reads(0, DRD) + finish_pre(0, True, DT0)
stage0 += [lambda: a('s_waitcnt lgkmcnt(0)')] + finish_sum(0, DRD, DT0, DPK, False) + [lambda: d_store(0, DPK)]
run_tiles(d_tile, {1: red_writes(DACC, 0), 2: red_writes(DACC + 16, 1), 3: red_writes(DACC + 32, 2) + stage0})
stamp2()
for x in red_writes(DACC + 48, 3):
    a(x)
for x in finish_pre(1, True, DT1):
    a(x)
a('s_waitcnt lgkmcnt(0)')
a('s_barrier')
stamp2()
for x in red_reads(1, DRD):
    a(x)
a('s_waitcnt lgkmcnt(0)')
for x in finish_sum(1, DRD, DT1, DPK + 4, True):
    a(x)
d_store(1, DPK + 4)
stamp()
a('s_cmp_eq_u32 s%d, 0' % sPAIR)
a('s_cbranch_scc0 L_next_pair')
publish_stats([DT0, DT1], DSTT, DSTS)
FHMODE = ([x[5:] for x in sys.argv if x.startswith('--fh=')] + ['after'])[0]
a('v_mov_b32 v240, s20')
if FHMODE == 'before':
    a('s_waitcnt vmcnt(0)')
    a('s_mov_b64 exec, 1')
    a('buffer_store_dword v%d, v240, %s, 0 offen sc1' % (V_T, srd(S_WS)))
    a('s_mov_b64 exec, -1')
    a('v_lshlrev_b32 v241, 8, v0')
    a('v_add_u32 v241, s%d, v241' % sPF)
    a('s_mov_b64 exec, 3')
    store('buffer_store_dword v%d, v241, %s, 0 offen' % (V_T, srd(S_WS)), sPFC)
    a('s_mov_b64 exec, -1')
else:
    publish_flags(8)
    if FHMODE == 'wait':
        a('s_waitcnt vmcnt(0)')
    a('s_mov_b64 exec, 1')
    a('buffer_store_dword v%d, v240, %s, 0 offen sc1' % (V_T, srd(S_WS)))
    a('s_mov_b64 exec, -1')
a.label('L_next_pair')
stamp()
a('s_add_u32 s%d, s%d, 1' % (sPAIR, sPAIR))
a('s_cmp_lt_u32 s%d, 2' % sPAIR)
a('s_cbranch_scc1 L_pair')

a('s_cmp_eq_u32 s2, 0')
a('s_cbranch_scc0 L_noepoch')
a('s_cmp_eq_u32 s%d, 0' % sW)
a('s_cbranch_scc0 L_noepoch')
a('buffer_load_dword v2, off, %s, 0 sc1' % srd(S_WS))
a('s_waitcnt vmcnt(0)')
a('v_add_u32 v2, 1, v2')
a('s_mov_b64 exec, 1')
a('buffer_store_dword v2, off, %s, 0 sc1' % srd(S_WS))
a('s_mov_b64 exec, -1')
a.label('L_noepoch')
if PAD:
    a.label('L_padspin')
    a('s_memrealtime s[34:35]')
    a('s_waitcnt lgkmcnt(0)')
    a('s_sub_u32 s34, s34, s0')
    a('s_cmp_lt_u32 s34, %d' % PAD[0])
    a('s_cbranch_scc1 L_padspin')
if DBG:
    a('s_memtime s[32:33]')
    a('s_memrealtime s[34:35]')
    a('s_waitcnt lgkmcnt(0)')
    a('s_sub_u32 s32, s32, s26')
    a('s_sub_u32 s34, s34, s0')
    build_srd(S_TMP, P_DBG, 256)
    a('v_mov_b32 v2, s32')
    a('v_mov_b32 v3, s34')
    a('v_mov_b32 v4, s%d' % sFAST)
    a('v_mov_b32 v5, s%d' % sXCC)
    a('s_lshr_b32 s%d, s2, 6' % sA)
    a('s_lshl_b32 s%d, s%d, 4' % (sA, sA))
    a('s_and_b32 s%d, s2, 63' % sB)
    a('s_or_b32 s%d, s%d, s%d' % (sB, sB, sW))
    a('s_cmp_eq_u32 s%d, 0' % sB)
    a('s_cselect_b32 s%d, s%d, 0x%x' % (sA, sA, INV))
    a('v_mov_b32 v6, s%d' % sA)
    a('s_mov_b64 exec, 1')
    a('buffer_store_dwordx4 v[2:5], v6, %s, 0 offen' % srd(S_TMP))
    a('s_mov_b64 exec, -1')
if DIAG:
    stamp()
    a('s_mov_b32 s%d, 63' % sSTI)
    a('s_lshl_b64 exec, 1, s%d' % sSTI)
    a('v_mov_b32 v%d, s%d' % (V_STAMP, sERR))
    a('s_mov_b32 s%d, 62' % sSTI)
    a('s_lshl_b64 exec, 1, s%d' % sSTI)
    a('v_mov_b32 v%d, s%d' % (V_STAMP, sFAST))
    a('s_mov_b64 exec, -1')
    a('s_lshl_b32 s%d, s2, 2' % sA)
    a('s_add_u32 s%d, s%d, s%d' % (sA, sA, sW))
    a('s_lshl_b32 s%d, s%d, 8' % (sA, sA))
    a('v_lshlrev_b32 v2, 2, v0')
    a('s_add_u32 s%d, s%d, %d' % (sA, sA, L.WS_USED))
    a('s_mov_b32 s%d, 0x%x' % (S_WS + 2, L.WS_USED + 256 * 1024))
    a('buffer_store_dword v%d, v2, %s, s%d offen' % (V_STAMP, srd(S_WS), sA))
    if DBGST:
        build_srd(S_TMP, P_DBG, 256)
        a('v_readfirstlane_b32 s%d, v%d' % (sA, V_STAMP))
        a('s_nop 4')
        a('v_subrev_u32 v3, s%d, v%d' % (sA, V_STAMP))
        a('s_or_b32 s%d, s2, s%d' % (sB, sW))
        a('s_cmp_eq_u32 s%d, 0' % sB)
        a('s_cselect_b32 s%d, 0, 0x%x' % (sB, INV))
        a('v_or_b32 v2, s%d, v2' % sB)
        SEL = [int(x[6:]) for x in sys.argv if x.startswith('--sel=')]
        sel = SEL[0] if SEL else 1
        a('v_subrev_u32 v2, %d, v2' % (4 * sel))
        a('buffer_store_dword v3, v2, %s, 0 offen' % srd(S_TMP))
a.label('L_end')
a('s_endpgm')
a.ins.extend(ool)
a.label('L_code_end')

a.finalize()
body = a.text()

import os
hdr = open(os.path.join(os.path.dirname(os.path.abspath(__file__)), 'header.txt')).read()
out = hdr + '; @launch grid=(256,1,1) block=(256,1,1) lds=%d\n' % L.LDS_BYTES
out += '.amdgcn_target "amdgcn-amd-amdhsa--gfx950"\n.text\n.globl %s_kernel\n.p2align 8\n.type %s_kernel,@function\n%s_kernel:\n' % (NAME, NAME, NAME)
out += body
out += '''.section .rodata,"a"
.p2align 6
.amdhsa_kernel %s_kernel
  .amdhsa_next_free_vgpr 512
  .amdhsa_next_free_sgpr 102
  .amdhsa_accum_offset 256
  .amdhsa_group_segment_fixed_size 0
  .amdhsa_kernarg_size 88
  .amdhsa_user_sgpr_count 2
  .amdhsa_user_sgpr_kernarg_segment_ptr 1
  .amdhsa_system_sgpr_workgroup_id_x 1
.end_amdhsa_kernel
''' % NAME
sys.stdout.write(out)
```

```python
import struct
import sys
from asmlib import Asm
import layout as L

NAME = 'interleave_layers__sliding_local_dilated__mixer_channel_mlp__prompt'
DIAG = '--diag' in sys.argv
FASTMODE = ([x[7:] for x in sys.argv if x.startswith('--fast=')] + ['flags'])[0]
NOFAST = FASTMODE == 'none'
PAD = [int(x[6:]) for x in sys.argv if x.startswith('--pad=')]
DBG = '--dbg' in sys.argv or bool(PAD)
SPIN_LIMIT = 200000
OUTSC = ([x[8:] for x in sys.argv if x.startswith('--outsc=')] + [''])[0].replace('_', ' ')
SLEEP = int(([x[8:] for x in sys.argv if x.startswith('--sleep=')] + ['0'])[0])
INV = 0x80000000

a = Asm()

sXCC = 3
S_WS, S_TMP, S_B1, S_OUT = 4, 8, 12, 16
P_X, P_WQKV, P_WO, P_BX, P_W1, P_B1, P_W2, P_B2, P_OUT, P_DBG, P_WSP = 20, 22, 24, 26, 28, 30, 32, 34, 36, 38, 40
sS, sC, sG, sJ, sW, sT, sPAIR, sSPIN = 42, 43, 44, 45, 46, 47, 48, 49
sM1 = 50
sM2 = 58
sM0 = 66
sO = 74
sA, sB, sCc, sD = 90, 91, 92, 93
sMK = 94
sTS = 96
sGT = 98
sERR = 99
sSTI = 100
sFAST = 101
sFD = 27
sPFC = 26
sFH = 25


def srd(n):
    return 's[%d:%d]' % (n, n + 3)


def vr(n, k=4):
    return 'v[%d:%d]' % (n, n + k - 1)


def ar(n, k=4):
    return 'a[%d:%d]' % (n, n + k - 1)


def sp(n):
    return 's[%d:%d]' % (n, n + 1)


def f2h(x):
    return '0x%08x' % struct.unpack('<I', struct.pack('<f', x))[0]


V_T, V_STAMP = 254, 255
V_TOK, V_G = 250, 251
MFMA = 'v_mfma_f32_16x16x32_bf16'


DIAG2 = '--diag2' in sys.argv
PREFPOS = ([x[7:] for x in sys.argv if x.startswith('--pref=')] + ['a'])[0]
PREF = PREFPOS != 'n'
TOUCH = '--notouch' not in sys.argv
STWAIT = '--stwait' in sys.argv
P2EARLY = '--p2early' in sys.argv
SKEW = [int(x[7:]) for x in sys.argv if x.startswith('--skew=')]
DBGST = '--dbgst' in sys.argv


def stamp2():
    if DIAG2:
        stamp()


def stamp():
    if not DIAG:
        return
    a('%s %s' % ('s_memrealtime' if '--rt' in sys.argv else 's_memtime', sp(sTS)))
    a('s_waitcnt lgkmcnt(0)')
    a('s_lshl_b64 exec, 1, s%d' % sSTI)
    a('v_mov_b32 v%d, s%d' % (V_STAMP, sTS))
    a('s_mov_b64 exec, -1')
    a('s_add_u32 s%d, s%d, 1' % (sSTI, sSTI))


ool = []


class OutOfLine:
    def __enter__(self):
        self.saved = a.ins
        a.ins = []

    def __exit__(self, *exc):
        ool.extend(a.ins)
        a.ins = self.saved


lab_no = [0]


def newlab(p):
    lab_no[0] += 1
    return '%s_%d' % (p, lab_no[0])


def emit_pref():
    a('s_getpc_b64 s[96:97]')
    a.label('L_pc')
    a('s_lshr_b32 s%d, s2, 3' % sA)
    a('s_lshl_b32 s%d, s%d, 11' % (sA, sA))
    a('s_lshl_b32 s%d, s%d, 9' % (sB, sW))
    a('s_add_u32 s%d, s%d, s%d' % (sA, sA, sB))
    a('v_lshlrev_b32 v21, 3, v0')
    a('v_add_u32 v21, s%d, v21' % sA)
    a('v_min_u32 v21, L_code_end-L_pc-8, v21')
    a('global_load_dwordx2 v[58:59], v21, s[96:97]')


def skew_store(point, have=False):
    if not SKEW or SKEW[0] != point:
        return
    if not have:
        a('s_memrealtime s[96:97]')
        a('s_waitcnt lgkmcnt(0)')
    build_srd(S_TMP, P_DBG, 256)
    a('s_and_b32 s%d, s2, 15' % sA)
    a('s_or_b32 s%d, s%d, s%d' % (sA, sA, sW))
    a('s_cmp_eq_u32 s%d, 0' % sA)
    a('s_cselect_b32 s%d, 0, 0x%x' % (sA, INV))
    a('s_lshr_b32 s%d, s2, 2' % sB)
    a('s_or_b32 s%d, s%d, s%d' % (sA, sA, sB))
    a('v_mov_b32 v21, s%d' % sA)
    a('v_mov_b32 v22, s96')
    a('s_mov_b64 exec, 1')
    a('buffer_store_dword v22, v21, %s, 0 offen' % srd(S_TMP))
    a.vm_issued -= 1
    a('s_mov_b64 exec, -1')


def build_srd(dst, ptr, nbytes):
    a('s_mov_b32 s%d, s%d' % (dst, ptr))
    a('s_and_b32 s%d, s%d, 0xffff' % (dst + 1, ptr + 1))
    a('s_mov_b32 s%d, 0x%x' % (dst + 2, nbytes))
    a('s_mov_b32 s%d, 0x20000' % (dst + 3))


def poll(voff, off2=None, sleep=None):
    lab, done = newlab('L_poll'), newlab('L_polldone')
    a('s_mov_b64 exec, %s' % sp(sMK))
    a('s_mov_b32 s%d, 0' % sSPIN)
    a.label(lab)
    a('buffer_load_dword v253, v%d, %s, 0 offen sc1' % (voff, srd(S_WS)))
    if off2 is not None:
        a('buffer_load_dword v245, v%d, %s, 0 offen offset:%d sc1' % (voff, srd(S_WS), off2))
    a('s_waitcnt vmcnt(0)')
    if off2 is not None:
        a('v_xor_b32 v245, s%d, v245' % sT)
        a('v_xor_b32 v253, s%d, v253' % sT)
        a('v_or_b32 v253, v253, v245')
        a('v_cmp_ne_u32 vcc, 0, v253')
    else:
        a('v_cmp_ne_u32 vcc, s%d, v253' % sT)
    a('s_nop 4')
    a('s_cbranch_vccz %s' % done)
    if sleep or SLEEP:
        a('s_sleep %d' % (sleep or SLEEP))
    a('s_add_u32 s%d, s%d, 1' % (sSPIN, sSPIN))
    a('s_cmp_lt_u32 s%d, %d' % (sSPIN, SPIN_LIMIT))
    a('s_cbranch_scc1 %s' % lab)
    a('s_add_u32 s%d, s%d, 1' % (sERR, sERR))
    a.label(done)
    a('s_mov_b64 exec, -1')


sMK2 = 30


def early_issue(dst, voff, off=0):
    a('s_mov_b64 exec, %s' % sp(sMK2))
    a('buffer_load_dword v%d, v%d, %s, 0 offen offset:%d sc1' % (dst, voff, srd(S_WS), off))
    a('s_mov_b64 exec, -1')
    return a.vm_mark()


def early_check(dst, voff, mark, off=0):
    ok = newlab('L_early')
    a.wait_vm(mark)
    a('s_mov_b64 exec, %s' % sp(sMK2))
    a('v_cmp_ne_u32 vcc, s%d, v%d' % (sT, dst))
    a('s_mov_b64 exec, -1')
    a('s_nop 2')
    a('s_cbranch_vccz %s' % ok)
    a('s_mov_b64 %s, %s' % (sp(sMK), sp(sMK2)))
    n = a.vm_issued
    if off:
        a('v_add_u32 v253, %d, v%d' % (off, voff))
        a('v_mov_b32 v%d, v253' % dst)
        poll(dst)
    else:
        poll(voff)
    a.vm_issued = n
    a.label(ok)


def store(fmt, cond=None):
    if cond is None or NOFAST or (FASTMODE == 'flags' and cond in (sFD, sFH, sPC)):
        a(fmt + ' sc1')
        return
    slow, done = newlab('L_slow'), newlab('L_st')
    a('s_cmp_eq_u32 s%d, 0' % cond)
    a('s_cbranch_scc1 %s' % slow)
    a(fmt)
    a('s_branch %s' % done)
    a.label(slow)
    a(fmt + ' sc1')
    a.vm_issued -= 1
    a.label(done)


def set_flags(voff, nlanes, cond=None, val=V_T, between=()):
    mark = a.vm_mark()
    for x in between:
        a(x)
    a.wait_vm(mark)
    a('s_mov_b64 exec, %d' % ((1 << nlanes) - 1))
    store('buffer_store_dword v%d, v%d, %s, 0 offen' % (val, voff, srd(S_WS)), cond)
    a('s_mov_b64 exec, -1')


def xg_reduce(x, t, op='v_add_f32'):
    return ['v_mov_b32 v%d, v%d' % (t, x),
            'v_permlane32_swap_b32 v%d, v%d' % (x, t),
            '%s v%d, v%d, v%d' % (op, x, x, t),
            'v_mov_b32 v%d, v%d' % (t, x),
            'v_permlane16_swap_b32 v%d, v%d' % (x, t),
            '%s v%d, v%d, v%d' % (op, x, x, t)]


EPS = 1e-5


def stats_finish(s1, s2, t, double_ln):
    o = ['v_mul_f32 v%d, %s, v%d' % (s1, f2h(1.0 / 448), s1),
         'v_mul_f32 v%d, %s, v%d' % (s2, f2h(1.0 / 448), s2),
         'v_fma_f32 v%d, -v%d, v%d, v%d' % (s2, s1, s1, s2),
         'v_max_f32 v%d, 0, v%d' % (s2, s2),
         'v_add_f32 v%d, %s, v%d' % (t, f2h(EPS), s2),
         'v_rsq_f32 v%d, v%d' % (t, t)]
    if not double_ln:
        o += ['v_mov_b32 v%d, v%d' % (s2, t)]
    else:
        o += ['v_mul_f32 v%d, v%d, v%d' % (s2, s2, t),
              'v_fmaak_f32 v%d, v%d, v%d, %s' % (s2, s2, t, f2h(EPS)),
              'v_rsq_f32 v%d, v%d' % (s2, s2),
              'v_mul_f32 v%d, v%d, v%d' % (s2, s2, t)]
    return o


def pair_base(dst, arr):
    a('s_mul_i32 s%d, s%d, %d' % (dst, sPAIR, arr[1] - arr[0]))
    a('s_add_u32 s%d, s%d, %d' % (dst, dst, arr[0]))


def quarter_offsets(n, stride):
    for t in range(n):
        if t:
            a('s_add_u32 s%d, s%d, %d' % (sO + 4 * t, sO + 4 * (t - 1), stride))
        for q in range(1, 4):
            a('s_add_u32 s%d, s%d, %d' % (sO + 4 * t + q, sO + 4 * t, 4096 * q))


sPX, sPS, sPF, sPC, sPX2 = 36, 37, 28, 29, 33


def stats_flags(delta, lsh):
    a('v_lshlrev_b32 v241, %d, v0' % lsh)
    a('s_add_u32 s%d, s%d, %d' % (sA, sPF, delta))
    a('v_add_u32 v241, s%d, v241' % sA)
    a('s_mov_b64 exec, 3')
    store('buffer_store_dword v%d, v241, %s, 0 offen' % (V_T, srd(S_WS)), sPFC)
    a('s_mov_b64 exec, -1')


a('s_cmp_ge_u32 s2, 256')
a('s_cbranch_scc1 L_end')
if '--perm' in sys.argv:
    a('s_and_b32 s90, s2, 7')
    a('s_lshr_b32 s91, s2, 3')
    a('s_and_b32 s91, s91, 7')
    a('s_and_b32 s2, s2, 0xc0')
    a('s_lshl_b32 s90, s90, 3')
    a('s_or_b32 s2, s2, s90')
    a('s_or_b32 s2, s2, s91')
SPRE = int(([x[7:] for x in sys.argv if x.startswith('--spre=')] + ['0'])[0])
if SPRE:
    a('s_getpc_b64 s[96:97]')
a('s_load_dwordx16 s[20:35], s[0:1], 0')
a('s_load_dwordx4 s[36:39], s[0:1], 64')
a('s_load_dwordx2 s[40:41], s[0:1], 80')
for i in range(SPRE):
    a('s_load_dword s98, s[96:97], %d' % (256 + 128 * i))
a('s_getreg_b32 s%d, hwreg(HW_REG_XCC_ID, 0, 4)' % sXCC)
a('s_and_b32 s%d, s2, 7' % sA)
a('s_lshr_b32 s%d, s2, 3' % sB)
a('s_lshr_b32 s%d, s%d, 4' % (sCc, sB))
a('s_lshl_b32 s%d, s%d, 1' % (sS, sA))
a('s_add_u32 s%d, s%d, s%d' % (sS, sS, sCc))
a('s_and_b32 s%d, s%d, 15' % (sC, sB))
a('s_lshr_b32 s%d, s%d, 3' % (sA, sC))
a('s_lshl_b32 s%d, s%d, 1' % (sG, sS))
a('s_add_u32 s%d, s%d, s%d' % (sG, sG, sA))
a('s_and_b32 s%d, s%d, 7' % (sJ, sC))
a('s_mov_b32 s%d, 0' % sERR)
if SKEW and SKEW[0] == 0:
    a('s_memrealtime s[96:97]')
a('v_lshrrev_b32 v2, 6, v0')
a('v_and_b32 v0, 63, v0')
a('v_readfirstlane_b32 s%d, v2' % sW)
a('v_lshlrev_b32 v1, 4, v0')
if DIAG:
    a('v_mov_b32 v%d, 0' % V_STAMP)
    a('s_mov_b32 s%d, 0' % sSTI)
stamp()
a('v_and_b32 v%d, 15, v0' % V_TOK)
a('v_lshrrev_b32 v%d, 4, v0' % V_G)
sSTG = 40
a('s_waitcnt lgkmcnt(0)')
if DBG:
    a('s_memtime s[26:27]')
    a('s_memrealtime s[0:1]')
    a('s_waitcnt lgkmcnt(0)')
skew_store(0, True)
build_srd(S_WS, P_WSP, L.WS_USED)
a('buffer_load_dword v%d, off, %s, 0 sc1' % (V_T, srd(S_WS)))
a('s_lshl_b32 s%d, s%d, 14' % (sSTG, sW))
a('s_add_u32 s%d, s%d, %d' % (sSTG, sSTG, L.L_R2))

build_srd(S_TMP, P_X, 2048 * 896)
a('v_mul_u32_u24 v2, 896, v%d' % V_TOK)
a('v_lshl_add_u32 v2, v%d, 3, v2' % V_G)
a('s_lshr_b32 s%d, s%d, 1' % (sA, sC))
a('s_lshl_b32 s%d, s%d, 3' % (sB, sS))
a('s_add_u32 s%d, s%d, s%d' % (sO + 0, sA, sB))
a('s_and_b32 s%d, s%d, 1' % (sA, sC))
a('s_mul_i32 s%d, s%d, 7' % (sA, sA))
a('s_add_u32 s%d, s%d, s%d' % (sO + 1, sA, sW))
a('s_cmp_lt_u32 s%d, 3' % sW)
a('s_cselect_b32 s%d, 0, 0x%x' % (sO + 2, INV))
a('s_mul_i32 s%d, s%d, 14336' % (sA, sO + 0))
a('s_lshl_b32 s%d, s%d, 6' % (sB, sO + 1))
a('s_add_u32 s%d, s%d, s%d' % (sA, sA, sB))
a('v_or_b32 v3, s%d, v2' % (sO + 2))
a('buffer_load_dwordx2 v[10:11], v2, %s, s%d offen' % (srd(S_TMP), sA))
a('buffer_load_dwordx2 v[12:13], v2, %s, s%d offen offset:32' % (srd(S_TMP), sA))
a('buffer_load_dwordx2 v[14:15], v3, %s, s%d offen offset:256' % (srd(S_TMP), sA))
a('buffer_load_dwordx2 v[16:17], v3, %s, s%d offen offset:288' % (srd(S_TMP), sA))

build_srd(S_TMP, P_WQKV, 448 * 2688)
qMAT, qU, qINV = sO + 3, sO + 4, sO + 5
a('s_lshl_b32 s%d, s%d, 4' % (sA, sW))
a('s_add_u32 s%d, s%d, s%d' % (sA, sA, sS))
a('s_cmp_lt_u32 s%d, 42' % sA)
a('s_cselect_b32 s%d, 0, 0x%x' % (qINV, INV))
a('s_min_u32 s%d, s%d, 41' % (sA, sA))
a('s_mul_i32 s%d, s%d, 4682' % (qMAT, sA))
a('s_lshr_b32 s%d, s%d, 16' % (qMAT, qMAT))
a('s_mul_i32 s%d, s%d, 14' % (sB, qMAT))
a('s_sub_u32 s%d, s%d, s%d' % (qU, sA, sB))
a('s_mul_i32 s%d, s%d, %d' % (sA, qU, 32 * 2688))
a('s_mul_i32 s%d, s%d, 896' % (sB, qMAT))
a('s_add_u32 s%d, s%d, s%d' % (sA, sA, sB))
a('s_mul_i32 s%d, s%d, 56' % (sB, sC))
a('s_add_u32 s%d, s%d, s%d' % (sA, sA, sB))
a('v_lshrrev_b32 v4, 2, v0')
a('v_mul_u32_u24 v4, 2688, v4')
a('v_and_b32 v5, 3, v0')
a('v_lshl_add_u32 v4, v5, 4, v4')
a('v_or_b32 v4, s%d, v4' % qINV)
a('s_mov_b32 m0, s%d' % sSTG)
a('s_add_u32 s%d, s%d, %d' % (sB, sA, 16 * 2688))
a('buffer_load_dwordx4 v4, %s, s%d offen lds' % (srd(S_TMP), sA))
a('s_add_u32 m0, s%d, 1024' % sSTG)
a('s_nop 0')
a('buffer_load_dwordx4 v4, %s, s%d offen lds' % (srd(S_TMP), sB))

bINV, bDST, bSTR, bINV2, bDST2, sSTRD = 20, 21, 22, 23, 24, 25


def emit_p2_issue():
    a('s_cmp_eq_u32 s%d, 3' % sW)
    a('s_cbranch_scc1 L_p2_w1')
    a('s_lshl_b32 s%d, s%d, 5' % (sA, sW))
    a('s_add_u32 s%d, s%d, s%d' % (sA, sA, sG))
    a('s_cmp_lt_u32 s%d, 72' % sA)
    a('s_cselect_b32 s%d, 0, 0x%x' % (bINV, INV))
    a('s_cmp_eq_u32 s%d, 7' % sJ)
    a('s_cselect_b32 s%d, 0x%x, s%d' % (bINV, INV, bINV))
    a('s_min_u32 s%d, s%d, 71' % (sA, sA))
    a('s_min_u32 s%d, s%d, 6' % (sD, sJ))
    a('s_cmp_lt_u32 s%d, 16' % sA)
    a('s_cselect_b32 s%d, s%d, s%d' % (S_TMP, P_WO, P_W2))
    a('s_cselect_b32 s%d, s%d, s%d' % (S_TMP + 1, P_WO + 1, P_W2 + 1))
    a('s_mov_b32 s%d, 0x%x' % (S_TMP + 2, 1792 * 896))
    a('s_cselect_b32 s%d, 0x%x, s%d' % (S_TMP + 2, 448 * 896, S_TMP + 2))
    a('s_cselect_b32 s%d, 28, 32' % sB)
    a('s_cselect_b32 s%d, 0, 16' % sCc)
    a('s_mov_b32 s%d, %d' % (bSTR, 56 * 1024))
    a('s_cselect_b32 s%d, %d, s%d' % (bSTR, 16 * 1024, bSTR))
    a('s_mov_b32 s%d, %d' % (bDST, L.WD))
    a('s_cselect_b32 s%d, %d, s%d' % (bDST, L.WB, bDST))
    a('s_cselect_b32 s%d, 0x%x, 0' % (sO + 9, INV))
    a('s_and_b32 s%d, s%d, 0xffff' % (S_TMP + 1, S_TMP + 1))
    a('s_mov_b32 s%d, 0x20000' % (S_TMP + 3))
    a('s_sub_u32 s%d, s%d, s%d' % (sA, sA, sCc))
    a('s_lshl_b32 s%d, s%d, 10' % (sCc, sA))
    a('s_add_u32 s%d, s%d, s%d' % (bDST, bDST, sCc))
    a('s_lshl_b32 s%d, s%d, 2' % (sCc, sD))
    a('s_mul_i32 s%d, s%d, s%d' % (sCc, sCc, bSTR))
    a('s_add_u32 s%d, s%d, s%d' % (bDST, bDST, sCc))
    a('s_mul_i32 s%d, s%d, s%d' % (sA, sA, sB))
    a('s_mul_i32 s%d, s%d, 896' % (sA, sA))
    a('s_lshl_b32 s%d, s%d, 7' % (sB, sD))
    a('s_add_u32 s%d, s%d, s%d' % (sO + 10, sA, sB))
    a('s_mov_b32 s%d, 896' % sSTRD)
    a('s_mov_b32 s%d, 0x%x' % (bINV2, INV))
    a('s_mov_b32 s%d, 0' % bDST2)
    a('s_mov_b32 s%d, 0' % (sO + 11))
    a('s_branch L_p2_go')
    a.label('L_p2_w1')
    build_srd(S_TMP, P_W1, 448 * 3584)
    a('s_lshl_b32 s%d, s%d, 4' % (sA, sS))
    a('s_add_u32 s%d, s%d, s%d' % (sA, sA, sC))
    a('s_cmp_lt_u32 s%d, 136' % sA)
    a('s_cselect_b32 s%d, 0, 0x%x' % (bINV2, INV))
    a('s_mov_b32 s%d, 0' % bINV)
    a('s_mov_b32 s%d, 0' % (sO + 9))
    a('s_mov_b32 s%d, %d' % (bSTR, 14 * 1024))
    a('s_mov_b32 s%d, 3584' % sSTRD)
    for dst, src, add in ((bDST, sO + 10, 0), (bDST2, sO + 11, 256)):
        a('s_add_u32 s%d, s%d, %d' % (sB, sA, add))
        a('s_min_u32 s%d, s%d, 391' % (sB, sB))
        a('s_mul_i32 s%d, s%d, 4682' % (sCc, sB))
        a('s_lshr_b32 s%d, s%d, 16' % (sCc, sCc))
        a('s_mul_i32 s%d, s%d, 14' % (sD, sCc))
        a('s_sub_u32 s%d, s%d, s%d' % (sB, sB, sD))
        a('s_mul_i32 s%d, s%d, %d' % (src, sB, 32 * 3584))
        a('s_lshl_b32 s%d, s%d, 7' % (sD, sCc))
        a('s_add_u32 s%d, s%d, s%d' % (src, src, sD))
        a('s_mul_i32 s%d, s%d, 56' % (sD, sCc))
        a('s_add_u32 s%d, s%d, s%d' % (sD, sD, sB))
        a('s_lshl_b32 s%d, s%d, 10' % (sD, sD))
        a('s_add_u32 s%d, s%d, %d' % (dst, sD, L.WC))
    a.label('L_p2_go')
    a('v_lshrrev_b32 v6, 3, v0')
    a('v_mul_lo_u32 v6, v6, s%d' % sSTRD)
    a('v_and_b32 v5, 7, v0')
    a('v_lshl_add_u32 v6, v5, 4, v6')
    a('v_or_b32 v8, s%d, v6' % bINV2)
    a('v_or_b32 v6, s%d, v6' % bINV)
    a('v_cmp_lt_u32 vcc, 31, v0')
    a('v_mov_b32 v7, s%d' % (sO + 9))
    a('v_cndmask_b32 v7, 0, v7, vcc')
    a('v_or_b32 v7, v7, v6')
    a('s_lshl_b32 s%d, s%d, 3' % (sB, sSTRD))
    for slot in range(2):
        src = sO + 10 + slot
        for q in range(4):
            a('s_add_u32 m0, s%d, %d' % (sSTG, 2048 + 4096 * slot + 1024 * q))
            if q:
                a('s_add_u32 s%d, s%d, s%d' % (src, src, sB))
            else:
                a('s_nop 0')
            a('buffer_load_dwordx4 v%d, %s, s%d offen lds' % (8 if slot else (7 if q == 3 else 6), srd(S_TMP), src))


if P2EARLY:
    emit_p2_issue()
build_srd(S_B1, P_B1, 1792 * 2)
build_srd(S_OUT, P_OUT, 2048 * 896)
a('v_bfe_u32 v18, v0, 2, 2')
a('v_lshl_add_u32 v18, v%d, 2, v18' % V_G)
a('v_and_b32 v19, 3, v0')
a('v_lshlrev_b32 v19, 3, v19')
if PREFPOS == 'b':
    emit_pref()
if TOUCH:
    a('v_lshlrev_b32 v21, 21, v0')
    a('s_mov_b64 exec, 0x1ffff')
    a('buffer_load_dword v253, v21, %s, 0 offen' % srd(S_WS))
    a('s_mov_b64 exec, -1')
    a('s_waitcnt vmcnt(%d)' % ((9 if P2EARLY else 1) + (PREFPOS == 'b')))
else:
    a('s_waitcnt vmcnt(%d)' % ((8 if P2EARLY else 0) + (PREFPOS == 'b')))
stamp()

a('s_mov_b32 s%d, 0x9E3779B1' % sA)
a('v_mul_lo_u32 v%d, v%d, s%d' % (V_T, V_T, sA))
a('v_add_u32 v%d, 0x7F4A7C15, v%d' % (V_T, V_T))
a('v_and_b32 v%d, -16, v%d' % (V_T, V_T))
a('v_lshl_add_u32 v20, v18, 6, v19')
a('v_add_u32 v20, s%d, v20' % sSTG)
for hf in range(2):
    a('ds_read_b64_tr_b16 %s, v20 offset:%d' % (vr(24 + 4 * hf, 2), 32 * hf))
    a('ds_read_b64_tr_b16 %s, v20 offset:%d' % (vr(26 + 4 * hf, 2), 32 * hf + 1024))
a('v_readfirstlane_b32 s%d, v%d' % (sT, V_T))
a('s_mul_i32 s%d, s%d, 14' % (sA, sO + 0))
a('s_add_u32 s%d, s%d, s%d' % (sA, sA, sO + 1))
a('s_lshl_b32 s%d, s%d, 10' % (sB, sA))
a('s_add_u32 s%d, s%d, %d' % (sB, sB, L.XA[0]))
a('v_or_b32 v3, s%d, v1' % (sO + 2))
a('buffer_store_dwordx4 v[10:13], v1, %s, s%d offen sc1' % (srd(S_WS), sB))
a('s_add_u32 s%d, s%d, 4096' % (sB, sB))
a('buffer_store_dwordx4 v[14:17], v3, %s, s%d offen sc1' % (srd(S_WS), sB))
a('v_cmp_gt_u32 vcc, 12, v%d' % V_TOK)
a('s_mul_i32 s%d, s%d, 84' % (sB, sC))
a('s_mul_i32 s%d, s%d, 28' % (sCc, qMAT))
a('s_add_u32 s%d, s%d, s%d' % (sB, sB, sCc))
a('s_add_u32 s%d, s%d, s%d' % (sB, sB, qU))
a('s_lshl_b32 s%d, s%d, 10' % (sB, sB))
a('s_add_u32 s%d, s%d, %d' % (sB, sB, L.WA))
a('v_or_b32 v4, s%d, v1' % qINV)
a('s_waitcnt lgkmcnt(0)')
for p in range(4):
    a('v_cndmask_b32 v%d, 0, v%d, vcc' % (28 + p, 28 + p))
a('buffer_store_dwordx4 v[24:27], v4, %s, s%d offen sc1' % (srd(S_WS), sB))
a('s_add_u32 s%d, s%d, %d' % (sB, sB, 14 * 1024))
a('buffer_store_dwordx4 v[28:31], v4, %s, s%d offen sc1' % (srd(S_WS), sB))
a('v_mov_b32 v2, 0x3f803f80')
for k in range(2):
    x, s1, s2 = 10 + 4 * k, 110 + 2 * k, 111 + 2 * k
    a('v_mov_b32 v%d, 0' % s1)
    a('v_mov_b32 v%d, 0' % s2)
    for p in range(4):
        a('v_dot2_f32_bf16 v%d, v%d, v2, v%d' % (s1, x + p, s1))
        a('v_dot2_f32_bf16 v%d, v%d, v%d, v%d' % (s2, x + p, x + p, s2))
    for t in xg_reduce(s1, 114) + xg_reduce(s2, 115):
        a(t)
a('s_lshl_b32 s%d, s%d, 7' % (sB, sA))
a('s_add_u32 s%d, s%d, %d' % (sB, sB, L.SA[0]))
a('v_lshlrev_b32 v2, 3, v%d' % V_TOK)
a('v_or_b32 v3, s%d, v2' % (sO + 2))
a('s_mov_b64 exec, 0xffff')
a('buffer_store_dwordx2 v[110:111], v2, %s, s%d offen sc1' % (srd(S_WS), sB))
a('buffer_store_dwordx2 v[112:113], v3, %s, s%d offen offset:512 sc1' % (srd(S_WS), sB))
a('s_mov_b64 exec, -1')
crit_mark = a.vm_mark()
if not P2EARLY:
    emit_p2_issue()
a('s_lshl_b32 s%d, s%d, 5' % (sA, sO + 0))
a('s_add_u32 s%d, s%d, s%d' % (sA, sA, sO + 1))
a('s_lshl_b32 s%d, s%d, 2' % (sA, sA))
a('s_add_u32 s%d, s%d, %d' % (sA, sA, L.FX[0]))
a('v_lshlrev_b32 v2, 4, v0')
a('v_add_u32 v2, s%d, v2' % sA)
a('v_cmp_eq_u32 vcc, 1, v0')
a('v_mov_b32 v3, s%d' % (sO + 2))
a('v_cndmask_b32 v3, 0, v3, vcc')
a('v_or_b32 v2, v2, v3')
a('s_lshl_b32 s%d, s%d, 6' % (sA, sC))
a('s_lshl_b32 s%d, s%d, 2' % (sB, sS))
a('s_add_u32 s%d, s%d, s%d' % (sA, sA, sB))
a('s_add_u32 s%d, s%d, s%d' % (sA, sA, sW))
a('s_lshl_b32 s%d, s%d, 2' % (sA, sA))
a('s_add_u32 s%d, s%d, %d' % (sA, sA, L.FQ))
a('v_mov_b32 v3, s%d' % sA)
a('v_cmp_eq_u32 vcc, 2, v0')
a('v_cndmask_b32 v2, v2, v3, vcc')
a('s_lshl_b32 s%d, s%d, 4' % (sA, sS))
a('s_add_u32 s%d, s%d, s%d' % (sA, sA, sC))
a('s_lshl_b32 s%d, s%d, 2' % (sA, sA))
a('s_add_u32 s%d, s%d, %d' % (sA, sA, L.FXC))
a('s_cmp_eq_u32 s%d, 0' % sW)
a('s_cselect_b32 s%d, s%d, 0x%x' % (sA, sA, INV))
a('v_mov_b32 v3, s%d' % sA)
a('v_cmp_eq_u32 vcc, 3, v0')
a('v_cndmask_b32 v2, v2, v3, vcc')
a('v_or_b32 v3, s%d, v%d' % (sXCC, V_T))
a('v_cndmask_b32 v3, v%d, v3, vcc' % V_T)
stamp2()
a.wait_vm(crit_mark)
a('s_mov_b64 exec, 15')
a('buffer_store_dword v3, v2, %s, 0 offen sc1' % srd(S_WS))
a('s_mov_b64 exec, -1')
stamp()

if PREFPOS == 'a':
    emit_pref()
BTOUCH = '--btouch' in sys.argv
if BTOUCH:
    a('v_lshlrev_b32 v21, 6, v0')
    a('buffer_load_dword v60, v21, %s, 0 offen' % srd(S_B1))
    build_srd(S_TMP, P_B2, 896)
    a('buffer_load_dword v61, v21, %s, 0 offen' % srd(S_TMP))
skew_store(1)
a('s_waitcnt vmcnt(%d)' % (1 + (PREFPOS == 'a') + 2 * BTOUCH))
a('v_lshl_add_u32 v20, v18, 7, v19')
a('v_add_u32 v20, s%d, v20' % sSTG)
for slot in range(2):
    for t in range(4):
        a('ds_read_b64_tr_b16 %s, v20 offset:%d' % (vr(24 + 16 * slot + 4 * t, 2), 2048 + 4096 * slot + 32 * t))
        a('ds_read_b64_tr_b16 %s, v20 offset:%d' % (vr(26 + 16 * slot + 4 * t, 2), 2048 + 4096 * slot + 32 * t + 2048))
a('v_or_b32 v6, s%d, v1' % bINV)
a('v_or_b32 v8, s%d, v1' % bINV2)
a('s_waitcnt lgkmcnt(8)')
for t in range(4):
    a('buffer_store_dwordx4 %s, v6, %s, s%d offen sc1' % (vr(24 + 4 * t), srd(S_WS), bDST))
    if t < 3:
        a('s_add_u32 s%d, s%d, s%d' % (bDST, bDST, bSTR))
a('s_waitcnt lgkmcnt(0)')
for t in range(4):
    a('buffer_store_dwordx4 %s, v8, %s, s%d offen sc1' % (vr(40 + 4 * t), srd(S_WS), bDST2))
    if t < 3:
        a('s_add_u32 s%d, s%d, s%d' % (bDST2, bDST2, bSTR))
a('s_lshl_b32 s%d, s%d, 4' % (sA, sS))
a('s_add_u32 s%d, s%d, s%d' % (sA, sA, sC))
a('s_lshl_b32 s%d, s%d, 2' % (sA, sA))
a('s_add_u32 s%d, s%d, %d' % (sA, sA, L.FW1))
a('v_lshlrev_b32 v22, 10, v0')
a('v_add_u32 v22, s%d, v22' % sA)
a('v_cmp_eq_u32 vcc, 1, v0')
a('v_mov_b32 v23, s%d' % bINV2)
a('v_cndmask_b32 v23, 0, v23, vcc')
a('v_or_b32 v22, v22, v23')
a('s_cmp_eq_u32 s%d, 3' % sW)
a('s_cselect_b32 s%d, 0, 0x%x' % (sA, INV))
a('v_or_b32 v22, s%d, v22' % sA)

skew_store(3)
a('v_and_b32 v2, 1, v%d' % V_TOK)
a('v_lshlrev_b32 v3, 2, v%d' % V_G)
a('v_add_u32 v6, 2, v%d' % V_TOK)
for i in range(4):
    a('v_add_u32 v4, %d, v3' % i)
    a('v_cmp_eq_u32 vcc, %d, v2' % (i & 1))
    a('s_mov_b64 %s, vcc' % sp(sMK))
    a('v_cmp_ge_u32 vcc, v4, v6')
    a('s_and_b64 %s, vcc, %s' % (sp(sM1 + 2 * i), sp(sMK)))
    a('v_cmp_le_u32 vcc, v4, v%d' % V_TOK)
    a('s_and_b64 %s, vcc, %s' % (sp(sM2 + 2 * i), sp(sMK)))
a('s_lshl_b32 s%d, s%d, 3' % (sA, sS))
a('s_lshl_b32 s%d, s%d, 1' % (sB, sW))
a('s_add_u32 s%d, s%d, s%d' % (sGT, sA, sB))
a('s_cmp_eq_u32 s%d, 0' % sGT)
for i in range(4):
    a('s_cselect_b64 %s, 0, %s' % (sp(sM0 + 2 * i), sp(sM1 + 2 * i)))
a('s_mov_b32 s%d, 0' % sPAIR)

def a_flag_addr(dst):
    pair_base(sA, L.FX)
    a('s_lshl_b32 s%d, s%d, 7' % (sB, sGT))
    a('s_add_u32 s%d, s%d, s%d' % (sA, sA, sB))
    a('s_sub_u32 s%d, s%d, 128' % (sA, sA))
    a('v_and_b32 v%d, 48, v0' % dst)
    a('v_add_u32 v%d, v%d, v0' % (dst, dst))
    a('v_lshl_add_u32 v%d, v%d, 2, s%d' % (dst, dst, sA))
    a('s_mov_b32 s%d, 0x3fff3fff' % sMK)
    a('s_mov_b32 s%d, 0x3fff' % (sMK + 1))
    a('s_cmp_eq_u32 s%d, 0' % sGT)
    a('s_cselect_b32 s%d, 0x3fff0000, s%d' % (sMK, sMK))


a('s_lshl_b32 s%d, s%d, 8' % (sA, sC))
a('s_add_u32 s%d, s%d, %d' % (sA, sA, L.FQ))
a('v_lshl_add_u32 v2, v0, 2, s%d' % sA)
a_flag_addr(3)
a('s_lshl_b32 s%d, s%d, 6' % (sA, sS))
a('s_add_u32 s%d, s%d, %d' % (sA, sA, L.FXC - 48 * 4))
a('v_lshl_add_u32 v4, v0, 2, s%d' % sA)
a('v_cmp_lt_u32 vcc, 47, v0')
a('v_cndmask_b32 v3, v3, v4, vcc')
a('v_mov_b32 v5, -1')
a('v_mov_b32 v6, -16')
a('v_cndmask_b32 v5, v5, v6, vcc')
a('s_or_b32 s%d, s%d, 0xffff0000' % (sMK + 1, sMK + 1))
a('s_mov_b32 s%d, 0' % sSPIN)
a.label('L_poll0')
a('buffer_load_dword v7, v2, %s, 0 offen sc1' % srd(S_WS))
a('s_mov_b64 exec, %s' % sp(sMK))
a('buffer_load_dword v8, v3, %s, 0 offen sc1' % srd(S_WS))
a('s_waitcnt vmcnt(0)')
a('v_and_b32 v9, v5, v8')
a('v_cmp_ne_u32 vcc, s%d, v9' % sT)
a('s_mov_b64 exec, -1')
a('s_mov_b64 %s, vcc' % sp(sTS))
a('v_cmp_ne_u32 vcc, s%d, v7' % sT)
a('s_or_b64 vcc, vcc, %s' % sp(sTS))
a('s_cbranch_vccz L_poll0_done')
a('s_add_u32 s%d, s%d, 1' % (sSPIN, sSPIN))
a('s_cmp_lt_u32 s%d, %d' % (sSPIN, SPIN_LIMIT))
a('s_cbranch_scc1 L_poll0')
a('s_add_u32 s%d, s%d, 1' % (sERR, sERR))
a.label('L_poll0_done')
a('s_mov_b64 exec, 3')
a('buffer_store_dword v%d, v22, %s, 0 offen sc1' % (V_T, srd(S_WS)))
a('s_mov_b64 exec, -1')
skew_store(2)
a('v_and_b32 v9, 15, v8')
a('v_cmp_ne_u32 vcc, s%d, v9' % sXCC)
a('s_and_b32 s%d, vcc_hi, 0xffff0000' % sA)
a('s_cmp_eq_u32 s%d, 0' % sA)
a('s_cselect_b32 s%d, 1, 0' % sFAST)
stamp()
AQ, AK, AV, HACC = 2, 18, 34, 50
WBUF = [66, 90]
XR = 114
CSACC = 186
STR = 210
SM, SR = 234, 237
NR, LOOK = 6, 4
A_ONES = 240


def a_xload(u):
    slot = u % NR
    return ['buffer_load_dwordx4 %s, v1, %s, s%d offen offset:%d sc1' %
            (vr(XR + (slot * 2 + t) * 4), srd(S_WS), sO + 4 * (t + 1) + (u >> 2), 1024 * (u & 3)) for t in range(2)]


def a_offsets():
    pair_base(sA, L.XA)
    a('s_mul_i32 s%d, s%d, 14336' % (sB, sGT))
    a('s_add_u32 s%d, s%d, s%d' % (sO + 4, sA, sB))
    a('s_add_u32 s%d, s%d, 14336' % (sO + 8, sO + 4))
    for t in range(1, 3):
        for q in range(1, 4):
            a('s_add_u32 s%d, s%d, %d' % (sO + 4 * t + q, sO + 4 * t, 4096 * q))
    a('s_lshl_b32 s%d, s%d, 3' % (sB, sS))
    a('s_max_u32 s%d, s%d, 1' % (sB, sB))
    a('s_sub_u32 s%d, s%d, 1' % (sB, sB))
    a('s_mul_i32 s%d, s%d, 14336' % (sB, sB))
    a('s_add_u32 s%d, s%d, s%d' % (sO + 0, sA, sB))
    a('s_lshl_b32 s%d, s%d, 12' % (sB, sW))
    a('s_add_u32 s%d, s%d, s%d' % (sO + 0, sO + 0, sB))
    a('s_add_u32 s%d, s%d, %d' % (sO + 1, sB, L.L_R2))


def a_setup():
    if FASTMODE == 'flags':
        a('s_mov_b32 s%d, 0' % sFD)
        a('s_mov_b32 s%d, 0' % sFH)
    elif FASTMODE == 'p0':
        a('s_xor_b32 s%d, s%d, 1' % (sFD, sPAIR))
        a('s_and_b32 s%d, s%d, s%d' % (sFD, sFD, sFAST))
        a('s_mov_b32 s%d, s%d' % (sFH, sFD))
    elif FASTMODE == 'small':
        a('s_mov_b32 s%d, s%d' % (sFD, sFAST))
        a('s_mov_b32 s%d, 0' % sFH)
    elif FASTMODE == 'smallp0':
        a('s_mov_b32 s%d, s%d' % (sFD, sFAST))
        a('s_xor_b32 s%d, s%d, 1' % (sFH, sPAIR))
        a('s_and_b32 s%d, s%d, s%d' % (sFH, sFH, sFAST))
    else:
        a('s_mov_b32 s%d, s%d' % (sFD, sFAST))
        a('s_mov_b32 s%d, s%d' % (sFH, sFAST))
    pair_base(sA, L.SA)
    a('s_mul_i32 s%d, s%d, 1792' % (sB, sGT))
    a('s_add_u32 s%d, s%d, s%d' % (sO + 13, sA, sB))
    a('s_add_u32 s%d, s%d, 1792' % (sO + 14, sO + 13))
    a('s_sub_u32 s%d, s%d, 1792' % (sO + 12, sO + 13))
    a('s_cmp_eq_u32 s%d, 0' % sGT)
    a('s_cselect_b32 s%d, s%d, s%d' % (sO + 12, sO + 13, sO + 12))
    a('v_and_b32 v%d, 15, v0' % V_TOK)
    a('v_lshrrev_b32 v%d, 4, v0' % V_G)
    a('v_lshlrev_b32 v240, 3, v%d' % V_TOK)
    a('v_lshl_add_u32 v240, v%d, 7, v240' % V_G)
    a('v_mov_b32 v242, 0x%x' % INV)
    a('v_cmp_lt_u32 vcc, 1, v%d' % V_G)
    a('v_cndmask_b32 v241, 0, v242, vcc')
    a('v_or_b32 v241, v241, v240')
    a('v_add_u32 v243, %d, v1' % (56 * 1024))
    a('v_lshlrev_b32 v244, 4, v%d' % V_G)
    a('v_add_u32 v244, %d, v244' % L.L_CSA)
    a('v_lshlrev_b32 v245, 2, v%d' % V_TOK)
    a('v_add_u32 v245, %d, v245' % L.L_CSA)
    a('s_mul_i32 s%d, s%d, 384' % (sA, sW))
    a('s_add_u32 s%d, s%d, %d' % (sA, sA, L.L_STA))
    a('v_lshl_add_u32 v162, v%d, 2, s%d' % (V_TOK, sA))
    a('v_lshl_add_u32 v163, v%d, 4, s%d' % (V_G, sA))
    a('s_lshl_b32 s%d, s%d, 7' % (sA, sJ))
    a('s_add_u32 s%d, s%d, %d' % (sA, sA, L.FP))
    a('v_lshl_add_u32 v248, v0, 2, s%d' % sA)
    a('s_lshr_b32 s%d, s%d, 1' % (sB, sW))
    a('s_lshl_b32 s%d, s%d, 2' % (sCc, sG))
    a('s_add_u32 s%d, s%d, s%d' % (sB, sB, sCc))
    a('s_lshl_b32 s%d, s%d, 5' % (sB, sB))
    a('s_and_b32 s%d, s%d, 1' % (sA, sW))
    a('s_add_u32 s%d, s%d, s%d' % (sB, sB, sA))
    a('s_min_u32 s%d, s%d, 6' % (sA, sJ))
    a('s_lshl_b32 s%d, s%d, 1' % (sA, sA))
    a('s_add_u32 s%d, s%d, s%d' % (sB, sB, sA))
    a('s_lshl_b32 s%d, s%d, 2' % (sB, sB))
    a('s_add_u32 s%d, s%d, %d' % (sB, sB, L.FX[0] - 32 * 256))
    a('v_lshl_add_u32 v249, v0, 8, s%d' % sB)
    a('v_cmp_lt_u32 vcc, 31, v0')
    a('v_cndmask_b32 v248, v248, v249, vcc')
    a('s_lshr_b32 s%d, s%d, 3' % (sA, sC))
    a('s_mul_i32 s%d, s%d, 7' % (sA, sA))
    a('s_min_u32 s%d, s%d, 6' % (sB, sJ))
    a('s_add_u32 s%d, s%d, s%d' % (sA, sA, sB))
    a('s_mul_i32 s%d, s%d, 112' % (sA, sA))
    a('s_add_u32 s%d, s%d, %d' % (sA, sA, L.FW1 - 34 * 4))
    a('v_lshl_add_u32 v249, v0, 2, s%d' % sA)
    a('v_cmp_lt_u32 vcc, 33, v0')
    a('v_cndmask_b32 v248, v248, v249, vcc')
    a('s_lshl_b32 s%d, s%d, 7' % (sA, sS))
    a('s_add_u32 s%d, s%d, %d' % (sA, sA, L.FH))
    a('v_and_b32 v247, 15, v0')
    a('v_lshl_add_u32 v247, v247, 2, s%d' % sA)
    a('s_lshl_b32 s%d, s%d, 7' % (sB, sGT))
    a('s_add_u32 s%d, s%d, %d' % (sB, sB, L.FX[1] - 128))
    a('v_lshl_add_u32 v253, v0, 2, s%d' % sB)
    a('s_cmp_eq_u32 s%d, 0' % sW)
    a('s_cselect_b32 s%d, 0, 16' % sA)
    a('v_cmp_gt_u32 vcc, s%d, v0' % sA)
    a('v_cndmask_b32 v247, v247, v253, vcc')
    a('s_mov_b32 s%d, 0x3fff3fff' % sMK2)
    a('s_mov_b32 s%d, 0' % (sMK2 + 1))
    a('s_cmp_eq_u32 s%d, 0' % sS)
    a('s_cselect_b32 s%d, 0x3fff, s%d' % (sMK2, sMK2))
    a('v_and_b32 v253, 15, v0')
    a('v_lshlrev_b32 v253, 2, v253')
    a('v_add_u32 v253, %d, v253' % L.FX[1])
    a('s_cmp_eq_u32 s%d, 0' % sGT)
    a('s_cselect_b64 vcc, -1, 0')
    a('v_cndmask_b32 v247, v247, v253, vcc')


stat_loads = ['buffer_load_dwordx2 %s, v%d, %s, s%d offen offset:%d sc1' %
              (vr(STR + (t * 4 + i) * 2, 2), 241 if i == 3 else 240, srd(S_WS), sO + 12 + t, 512 * i)
              for t in range(3) for i in range(4)]


def a_wread(u):
    b = WBUF[u & 1]
    o = []
    for p in range(6):
        if p < 4:
            o.append('ds_read_b128 %s, v1 offset:%d' % (vr(b + 4 * p), L.L_WA + (p * 14 + u) * 1024))
        else:
            o.append('ds_read_b128 %s, v243 offset:%d' % (vr(b + 4 * p), L.L_WA + ((p - 4) * 14 + u) * 1024))
    return o


stat_fill = []
for t in (1, 2, 0):
    r = STR + 8 * t
    for c_ in range(2):
        stat_fill += ['v_add_f32 v%d, v%d, v%d' % (r + c_, r + c_, r + 2 + c_),
                      'v_add_f32 v%d, v%d, v%d' % (r + 4 + c_, r + 4 + c_, r + 6 + c_),
                      'v_add_f32 v%d, v%d, v%d' % (r + c_, r + c_, r + 4 + c_)]
    stat_fill += xg_reduce(r, r + 2) + xg_reduce(r + 1, r + 3)
    stat_fill += stats_finish(r, r + 1, r + 2, False)
    stat_fill += ['v_mov_b32 v%d, v%d' % (SM + t, r), 'v_mov_b32 v%d, v%d' % (SR + t, r + 1)]

sWA = [20, 21, 22]
sWAG = 23


def wa_dma(pr, i):
    def f():
        a('s_add_u32 m0, s%d, %d' % (sWA[i], L.L_WA + 2048 * pr))
        a('s_add_u32 s%d, s%d, s%d' % (sD, sWA[i], sWAG))
        if pr:
            a('s_add_u32 s%d, s%d, %d' % (sD, sD, 2048 * pr))
        a('buffer_load_dwordx4 v1, %s, s%d offen sc1 lds' % (srd(S_WS), sD))
    return f


amark = {}


def emit_a_loop(first, xmark, wam):
    ep_mark = es_mark = st_mark = None
    for t in a_wread(0):
        a(t)
    for u in range(14):
        need = xmark[u]
        if u == 8:
            need = max(need, amark['st_own'])
        if u == 11:
            need = max(need, st_mark)
        a.wait_vm(need)
        if not first and u == 6:
            early_check(246, 247, es_mark)
            a('s_nop 0')
        if u == 11:
            a('s_mov_b32 s%d, -1' % sMK2)
            a('s_mov_b32 s%d, 0x3fffffff' % (sMK2 + 1))
        a('s_waitcnt lgkmcnt(0)')
        wb = WBUF[u & 1]
        xs = XR + (u % NR) * 8
        mf = []
        cz = (lambda r: '0') if u == 0 else (lambda r: vr(r))
        for t in range(2):
            for hf in range(2):
                r = AQ + (t * 2 + hf) * 4
                mf.append('%s %s, %s, %s, %s' % (MFMA, vr(r), vr(wb + 4 * hf), vr(xs + 4 * t), cz(r)))
        for t in range(2):
            for hf in range(2):
                r = AK + (t * 2 + hf) * 4
                mf.append('%s %s, %s, %s, %s' % (MFMA, vr(r), vr(wb + 8 + 4 * hf), vr(xs + 4 * t), cz(r)))
        for t in range(2):
            for hf in range(2):
                r = AV + (t * 2 + hf) * 4
                mf.append('%s %s, %s, %s, %s' % (MFMA, vr(r), vr(xs + 4 * t), vr(wb + 16 + 4 * hf), cz(r)))
        if first:
            mf.append('%s %s, %s, %s, %s' % (MFMA, vr(CSACC + 8), vr(CSACC), ar(A_ONES), cz(CSACC + 8)))
            mf.append('%s %s, %s, %s, %s' % (MFMA, vr(CSACC + 12), ar(A_ONES), vr(CSACC + 4), cz(CSACC + 12)))
        mem = {}

        def put(k, x):
            mem.setdefault(k, []).append(x)
        nm = len(mf)
        off = 0
        if first:
            a('ds_read_b128 %s, v252 offset:%d' % (vr(CSACC), 1024 * u))
            a('ds_read_b128 %s, v242 offset:%d' % (vr(CSACC + 4), 1024 * u))
            put(11, 's_waitcnt lgkmcnt(%d)' % (6 if u < 13 else 0))
        if first and u % 2 == 1 and u < 13:
            put(2, ('bar', (u + 1) // 2))
            off = 3
        if u < 13:
            for k, x in enumerate(a_wread(u + 1)):
                put(off + k, x)
        elif not first:
            for p in range(4):
                put(p, 'ds_read_b128 %s, v244 offset:%d' % (vr(WBUF[0] + 4 * p), 64 * p))
            for d in range(2):
                put(4 + d, 'ds_read_b32 v%d, v245 offset:%d' % (WBUF[0] + 16 + d, 64 * (4 + d)))
        if first and u < 2:
            for j_, uu in enumerate((2 * u + 2, 2 * u + 3)):
                for k, x in zip((6, 8), a_xload(uu)):
                    put(k + 4 * j_, x)
                put(8 + 4 * j_, ('xm', uu))
            if u == 0:
                for i, k in enumerate((7, 9, 11)):
                    put(k, ('wa', 2, i))
        elif u + LOOK < 14:
            for k, x in zip((6, 9), a_xload(u + LOOK)):
                put(k, x)
            put(9, ('xm', u + LOOK))
        if first and u % 2 == 0 and u // 2 + 3 <= 6:
            for i, k in enumerate((12, 13, 13) if u == 0 else (7, 10, 12)):
                put(k, ('wa', u // 2 + 3, i))
        order = list(range(4, 12)) + list(range(0, 4))
        if 2 <= u < 6:
            for k, x in zip((8, 11), order[2 * (u - 2):2 * (u - 2) + 2]):
                put(k, stat_loads[x])
            if u == 5:
                put(11, ('sto',))
        if not first and u == 3:
            put(7, ('estat',))
        if u in (7, 8):
            for k, x in zip((8, 11), order[8 + 2 * (u - 7):8 + 2 * (u - 7) + 2]):
                put(k, stat_loads[x])
            if u == 8:
                put(11, ('st',))
        if u == 6:
            put(10, 's_mov_b32 m0, s%d' % (sO + 1))
            for i, k in enumerate((10, 10, 11, 11)):
                put(k, 'buffer_load_dwordx4 v1, %s, s%d offen offset:%d sc1 lds' % (srd(S_WS), sO + 0, 1024 * i))
            put(11, ('hm',))
        if u == 13:
            put(8, ('early',))
        fill = []
        if 8 <= u < 11:
            fill = stat_fill[(u - 8) * 18:(u - 7) * 18]
        elif u in (11, 12):
            fill = stat_fill[54 + (u - 11) * 14:54 + (u - 10) * 14]
        if u == 13:
            put(1, 's_mov_b64 exec, 0xffff')
            for t in range(3):
                put(1, 'ds_write_b32 v162, v%d offset:%d' % (SM + t, 128 * t))
                put(1, 'ds_write_b32 v162, v%d offset:%d' % (SR + t, 128 * t + 64))
            put(1, 's_mov_b64 exec, -1')
        fi = 0
        for k, m in enumerate(mf):
            a(m)
            for it in mem.get(k, []):
                if isinstance(it, str):
                    a(it)
                elif it[0] == 'early':
                    ep_mark = early_issue(249, 248)
                elif it[0] == 'estat':
                    es_mark = early_issue(246, 247)
                elif it[0] == 'xm':
                    xmark[it[1]] = a.vm_mark()
                elif it[0] == 'st':
                    st_mark = a.vm_mark()
                elif it[0] == 'sto':
                    amark['st_own'] = a.vm_mark()
                elif it[0] == 'hm':
                    amark['halo'] = a.vm_mark()
                elif it[0] == 'bar':
                    a.wait_vm(wam[it[1]])
                    a('s_barrier')
                elif it[0] == 'wa':
                    wa_dma(it[1], it[2])()
                    wam[it[1]] = a.vm_mark()
            for _ in range(2):
                if fi < len(fill) and k >= 1:
                    a(fill[fi])
                    fi += 1
        assert fi == len(fill), (u, fi, len(fill))
    amark['ep'] = ep_mark


for p in range(4):
    a('v_mov_b32 v4, 0x3f803f80')
    a('v_accvgpr_write_b32 a%d, v4' % (A_ONES + p))
a('s_mul_i32 s%d, s%d, 14336' % (sWA[0], sW))
a('s_add_u32 s%d, s%d, 4' % (sA, sW))
a('s_mul_i32 s%d, s%d, 14336' % (sA, sA))
a('s_sub_u32 s%d, s%d, 2' % (sB, sW))
a('s_mul_i32 s%d, s%d, 14336' % (sB, sB))
a('s_add_u32 s%d, s%d, 1024' % (sB, sB))
a('s_cmp_lt_u32 s%d, 2' % sW)
a('s_cselect_b32 s%d, s%d, s%d' % (sWA[1], sA, sB))
a('s_add_u32 s%d, s%d, 2' % (sA, sW))
a('s_mul_i32 s%d, s%d, 14336' % (sA, sA))
a('s_add_u32 s%d, s%d, 1024' % (sWA[2], sA))
a('s_mul_i32 s%d, s%d, %d' % (sWAG, sC, 84 * 1024))
a('s_add_u32 s%d, s%d, %d' % (sWAG, sWAG, L.WA))
a_offsets()
xm0, wam0 = {}, {}


def wa_pair(pr):
    for i in range(3):
        wa_dma(pr, i)()
    wam0[pr] = a.vm_mark()


wa_pair(0)
for u in range(2):
    for t in a_xload(u):
        a(t)
    xm0[u] = a.vm_mark()
wa_pair(1)
a_setup()
a('s_mul_i32 s%d, s%d, 14336' % (sA, sW))
a('v_add_u32 v252, s%d, v1' % sA)
a('s_and_b32 s%d, s%d, 1' % (sA, sW))
a('s_mul_i32 s%d, s%d, 14336' % (sA, sA))
a('v_add_u32 v242, s%d, v243' % sA)
a.wait_vm(wam0[0])
a('s_barrier')
a('s_lshl_b32 s%d, s%d, 5' % (sA, sJ))
a('s_add_u32 s%d, s%d, s%d' % (sA, sA, sG))
a('s_lshl_b32 s%d, s%d, 2' % (sA, sA))
a('s_add_u32 s%d, s%d, %d' % (sA, sA, L.FP))
a('s_cmp_eq_u32 s%d, 0' % sW)
a('s_cselect_b32 s%d, s%d, 0x%x' % (sA, sA, INV))
a('v_mov_b32 v2, s%d' % sA)
a('s_mov_b64 exec, 1')
a('buffer_store_dword v%d, v2, %s, 0 offen sc1' % (V_T, srd(S_WS)))
a.vm_issued -= 1
a('s_mov_b64 exec, -1')
stamp()
emit_a_loop(True, xm0, wam0)
n_join = a.vm_issued - amark['ep']
CSQ = WBUF[0]
a('v_cmp_eq_u32 vcc, 0, v%d' % V_TOK)
a('s_lshl_b32 s%d, s%d, 6' % (sA, sW))
a('v_add_u32 v252, s%d, v244' % sA)
a('s_and_b32 s%d, s%d, 1' % (sA, sW))
a('s_lshl_b32 s%d, s%d, 6' % (sA, sA))
a('v_add_u32 v242, s%d, v245' % sA)
a('s_mov_b64 exec, vcc')
a('ds_write_b128 v252, %s' % vr(CSACC + 8))
a('s_mov_b64 exec, 0xffff')
a('ds_write_b32 v242, v%d offset:256' % (CSACC + 12))
a('s_mov_b64 exec, -1')
a('s_waitcnt lgkmcnt(0)')
a('s_barrier')
for p in range(4):
    a('ds_read_b128 %s, v244 offset:%d' % (vr(WBUF[0] + 4 * p), 64 * p))
for d in range(2):
    a('ds_read_b32 v%d, v245 offset:%d' % (WBUF[0] + 16 + d, 64 * (4 + d)))
with OutOfLine():
    a.label('L_pair')
    a_flag_addr(2)
    a('s_mov_b32 s%d, 0x3fff0000' % sMK)
    ASLEEP = int(([x[9:] for x in sys.argv if x.startswith('--asleep=')] + ['0'])[0])
    poll(2, None, ASLEEP)
    stamp()
    a_offsets()
    xmark = {}
    for u in range(LOOK):
        for t in a_xload(u):
            a(t)
        xmark[u] = a.vm_mark()
    a_setup()
    emit_a_loop(False, xmark, None)
    assert a.vm_issued - amark['ep'] == n_join
    ep_mark = amark['ep']
    a('s_branch L_a_epi')
a.label('L_a_epi')
stamp()
a('s_add_u32 s%d, s%d, 2' % (sA, sW))
a('s_mul_i32 s%d, s%d, 14336' % (sA, sA))
a('v_add_u32 v246, s%d, v1' % sA)
a('v_add_u32 v247, %d, v1' % L.L_R2)
a('s_cmp_lt_u32 s%d, 2' % sW)
a('s_cselect_b64 vcc, -1, 0')
a('v_cndmask_b32 v252, v247, v246, vcc')
a('v_cndmask_b32 v253, v246, v247, vcc')
MROW, RROW = 114, 126
for t in range(3):
    a('ds_read_b128 %s, v163 offset:%d' % (vr(MROW + 4 * t), 128 * t))
    a('ds_read_b128 %s, v163 offset:%d' % (vr(RROW + 4 * t), 128 * t + 64))
a.wait_vm(amark['halo'])
a('s_barrier')
HOP = 90
def h_reads(u):
    r = HOP + 8 * (u % 3)
    return ['ds_read_b128 %s, v252 offset:%d' % (vr(r), 1024 * u), 'ds_read_b128 %s, v253 offset:%d' % (vr(r + 4), 1024 * u)]
for u in range(2):
    for x in h_reads(u):
        a(x)
rest = []
for u in range(14):
    if u + 2 < 14:
        for x in h_reads(u + 2):
            a(x)
    a('s_waitcnt lgkmcnt(%d)' % (4 if u < 12 else (2 if u == 12 else 0)))
    r = HOP + 8 * (u % 3)
    a('%s %s, %s, %s, %s' % (MFMA, vr(HACC), vr(r), vr(r + 4), '0' if u == 0 else vr(HACC)))
    if rest:
        a(rest.pop(0))
for x in rest:
    a(x)
stamp2()
early_check(249, 248, ep_mark)
BW = 2
a('s_lshl_b32 s%d, s%d, 6' % (sA, sJ))
a('s_lshl_b32 s%d, s%d, 2' % (sB, sW))
a('s_add_u32 s%d, s%d, s%d' % (sA, sA, sB))
a('s_lshl_b32 s%d, s%d, 10' % (sA, sA))
a('s_add_u32 s20, s%d, %d' % (sA, L.WB))
for t in range(1, 4):
    a('s_add_u32 s%d, s20, %d' % (20 + t, 16 * 1024 * t))
wb_all = ['buffer_load_dwordx4 %s, v1, %s, s%d offen offset:%d sc1' % (vr(BW + (i * 4 + t) * 4), srd(S_WS), 20 + t, 1024 * i)
          for i in range(4) for t in range(4)]
for x in wb_all[13:16]:
    a(x)
wb_loads = wb_all[8:13]
A_RES, A_B2 = 224, 232


def red_addrs():
    a('s_lshl_b32 s%d, s%d, 13' % (sA, sW))
    a('s_add_u32 s%d, s%d, %d' % (sA, sA, L.L_R2))
    a('v_add_u32 v248, s%d, v1' % sA)
    a('s_and_b32 s%d, s%d, 1' % (sA, sW))
    a('s_lshl_b32 s%d, s%d, 11' % (sA, sA))
    a('s_lshr_b32 s%d, s%d, 1' % (sB, sW))
    a('s_lshl_b32 s%d, s%d, 12' % (sB, sB))
    a('s_add_u32 s%d, s%d, s%d' % (sA, sA, sB))
    a('s_add_u32 s%d, s%d, %d' % (sA, sA, L.L_R2))
    a('v_add_u32 v249, s%d, v1' % sA)


def publish_setup(xbase, sbase, fbase, per_pair, fsh):
    owner_index()
    a('s_mul_i32 s%d, s%d, 14' % (sCc, sB))
    a('s_add_u32 s%d, s%d, s%d' % (sCc, sCc, sA))
    a('s_lshl_b32 s%d, s%d, 10' % (sPX, sCc))
    a('s_lshl_b32 s%d, s%d, 7' % (sPS, sCc))
    a('s_lshl_b32 s%d, s%d, %d' % (sPF, sB, fsh))
    a('s_add_u32 s%d, s%d, s%d' % (sPF, sPF, sA))
    a('s_lshl_b32 s%d, s%d, 2' % (sPF, sPF))
    for dst, arr in ((sPX, xbase), (sPS, sbase), (sPF, fbase)):
        if per_pair:
            pair_base(sD, arr)
            a('s_add_u32 s%d, s%d, s%d' % (dst, dst, sD))
        else:
            a('s_add_u32 s%d, s%d, %d' % (dst, dst, arr))
    a('s_add_u32 s%d, s%d, %d' % (sPX2, sPX, 2 * 14336))


def owner_index():
    a('s_lshr_b32 s%d, s%d, 1' % (sB, sW))
    a('s_lshl_b32 s%d, s%d, 2' % (sCc, sG))
    a('s_add_u32 s%d, s%d, s%d' % (sB, sB, sCc))
    a('s_and_b32 s%d, s%d, 1' % (sA, sW))
    a('s_lshl_b32 s%d, s%d, 1' % (sCc, sJ))
    a('s_add_u32 s%d, s%d, s%d' % (sA, sA, sCc))


a('s_cmp_eq_u32 s%d, 0' % sPAIR)
a('s_cbranch_scc0 L_a_nores')
owner_index()
a('s_mul_i32 s%d, s%d, 14' % (sB, sB))
a('s_add_u32 s%d, s%d, s%d' % (sB, sB, sA))
a('s_lshl_b32 s%d, s%d, 10' % (sB, sB))
a('s_add_u32 s%d, s%d, %d' % (sB, sB, L.XA[0]))
a('buffer_load_dwordx4 %s, v1, %s, s%d offen sc1' % (ar(A_RES), srd(S_WS), sB))
a('s_add_u32 s%d, s%d, %d' % (sB, sB, 2 * 14336))
a('buffer_load_dwordx4 %s, v1, %s, s%d offen sc1' % (ar(A_RES + 4), srd(S_WS), sB))
build_srd(S_TMP, P_B2, 896)
a('s_lshl_b32 s%d, s%d, 6' % (sB, sA))
a('v_lshlrev_b32 v240, 3, v%d' % V_G)
a('buffer_load_dwordx2 v[228:229], v240, %s, s%d offen' % (srd(S_TMP), sB))
a('buffer_load_dwordx2 v[230:231], v240, %s, s%d offen offset:32' % (srd(S_TMP), sB))
a.label('L_a_nores')
CSQ = WBUF[0]
QF, KF, VF = 140, 148, 160


def pk(op, dst, srcs, neg=None):
    ops, lo, hi = [], [], []
    for x in srcs:
        if isinstance(x, tuple):
            ops.append(vr(x[1] & ~1, 2))
            lo.append(x[1] & 1)
            hi.append(x[1] & 1)
        else:
            ops.append(vr(x, 2))
            lo.append(0)
            hi.append(1)
    t = '%s %s, %s op_sel:[%s] op_sel_hi:[%s]' % (op, vr(dst, 2), ', '.join(ops), ','.join(map(str, lo)), ','.join(map(str, hi)))
    if neg is not None:
        m = ','.join('1' if k == neg else '0' for k in range(len(srcs)))
        t += ' neg_lo:[%s] neg_hi:[%s]' % (m, m)
    return t


for t in range(2):
    for hf in range(2):
        r = AQ + (t * 2 + hf) * 4
        for i in (0, 2):
            a(pk('v_pk_fma_f32', r + i, [('b', SM + t + 1), CSQ + 4 * hf + i, r + i], 0))
        for p in range(2):
            a('v_cvt_pk_bf16_f32 v%d, v%d, v%d' % (QF + 4 * t + 2 * hf + p, r + 2 * p, r + 2 * p + 1))
        a(wb_all[2 * t + hf])
for t in range(2):
    for hf in range(2):
        r = AK + (t * 2 + hf) * 4
        for i in (0, 2):
            a(pk('v_pk_fma_f32', r + i, [('b', SM + t + 1), CSQ + 8 + 4 * hf + i, r + i], 0))
        for p in range(2):
            a('v_cvt_pk_bf16_f32 v%d, v%d, v%d' % (KF + 4 * (t + 1) + 2 * hf + p, r + 2 * p, r + 2 * p + 1))
        a(wb_all[4 + 2 * t + hf])
L_E, L_HX = L.L_R2 + 16384, L.L_R2 + 26624
a('s_lshl_b32 s%d, s%d, 11' % (sA, sW))
a('s_add_u32 s%d, s%d, %d' % (sA, sA, L_E))
a('v_add_u32 v246, s%d, v1' % sA)
a('s_lshl_b32 s%d, s%d, 10' % (sA, sW))
a('s_add_u32 s%d, s%d, %d' % (sA, sA, L_HX))
a('v_add_u32 v247, s%d, v1' % sA)
a('s_waitcnt lgkmcnt(0)')
for t in range(2):
    for d in range(2):
        r = AV + (t * 2 + d) * 4
        for i in (0, 2):
            a(pk('v_pk_fma_f32', r + i, [MROW + 4 * (t + 1) + i, ('b', CSQ + 16 + d), r + i], 0))
        for p in range(2):
            a('v_cvt_pk_bf16_f32 v%d, v%d, v%d' % (VF + 6 * d + 2 * (t + 1) + p, r + 2 * p, r + 2 * p + 1))
a('ds_write_b128 v246, %s offset:2048' % vr(KF + 8))
a('ds_write_b64 v246, %s offset:3072' % vr(VF + 4, 2))
a('ds_write_b64 v246, %s offset:3080' % vr(VF + 10, 2))
a('ds_write_b128 v247, %s' % vr(HACC))
pair_base(sA, L.O)
a('s_lshl_b32 s%d, s%d, 4' % (sB, sGT))
a('s_add_u32 s%d, s%d, s%d' % (sB, sB, sC))
a('s_lshl_b32 s%d, s%d, 10' % (sB, sB))
a('s_add_u32 s32, s%d, s%d' % (sA, sB))
a('s_add_u32 s33, s32, 16384')
stamp2()
a('s_waitcnt lgkmcnt(0)')
a('s_barrier')
stamp2()
SS = 172
a('s_cmp_eq_u32 s%d, 0' % sW)
a('s_cbranch_scc1 L_a_halo')
a('ds_read_b128 %s, v246' % vr(KF))
a('ds_read_b64 %s, v246 offset:1024' % vr(VF, 2))
a('ds_read_b64 %s, v246 offset:1032' % vr(VF + 6, 2))
a('s_waitcnt lgkmcnt(0)')
a('s_branch L_a_prev')
a.label('L_a_halo')
a('v_add_u32 v247, %d, v1' % L_HX)
for p in range(4):
    a('ds_read_b128 %s, v247 offset:%d' % (vr(SS + 4 * p), 1024 * p))
a('s_waitcnt lgkmcnt(0)')
for hf in range(2):
    r = SS + 4 * hf
    for i in (0, 2):
        a(pk('v_pk_fma_f32', r + i, [('b', SM), CSQ + 8 + 4 * hf + i, r + i], 0))
    for p in range(2):
        a('v_cvt_pk_bf16_f32 v%d, v%d, v%d' % (KF + 2 * hf + p, r + 2 * p, r + 2 * p + 1))
for d in range(2):
    r = SS + 8 + 4 * d
    for i in (0, 2):
        a(pk('v_pk_fma_f32', r + i, [MROW + i, ('b', CSQ + 16 + d), r + i], 0))
    for p in range(2):
        a('v_cvt_pk_bf16_f32 v%d, v%d, v%d' % (VF + 6 * d + p, r + 2 * p, r + 2 * p + 1))
a.label('L_a_prev')
a('s_nop 1')
for t in range(2):
    a('%s %s, %s, %s, 0' % (MFMA, vr(SS + 8 * t), vr(KF + 4 * t), vr(QF + 4 * t)))
    a('%s %s, %s, %s, 0' % (MFMA, vr(SS + 8 * t + 4), vr(KF + 4 * t + 4), vr(QF + 4 * t)))
SCALE = (28.0 ** -0.5) * 1.4426950408889634
MX, CC, LS, TMPR = 190, 192, 194, 196
PF = 200
SUMT = [(224, 226), (232, 188)]
a('v_mov_b32 v198, 0xff800000')
seq = [[], []]
for t in range(2):
    s_ = SS + 8 * t
    q = seq[t]
    rr = lambda e: RROW + 4 * (t + (e >> 2)) + (e & 3)
    for e in range(0, 8, 2):
        q.append(pk('v_pk_mul_f32', s_ + e, [s_ + e, rr(e)]))
    for e in range(8):
        mk = (sM0 if t == 0 else sM1) + 2 * e if e < 4 else sM2 + 2 * (e - 4)
        q.append('v_cndmask_b32 v%d, v198, v%d, %s' % (s_ + e, s_ + e, sp(mk)))
    q.append('v_max3_f32 v%d, v%d, v%d, v%d' % (MX + t, s_, s_ + 1, s_ + 2))
    q.append('v_max3_f32 v%d, v%d, v%d, v%d' % (MX + t, MX + t, s_ + 3, s_ + 4))
    q.append('v_max3_f32 v%d, v%d, v%d, v%d' % (MX + t, MX + t, s_ + 5, s_ + 6))
    q.append('v_max_f32 v%d, v%d, v%d' % (MX + t, MX + t, s_ + 7))
    q += xg_reduce(MX + t, TMPR + t, 'v_max_f32')
    q.append('v_mul_f32 v%d, %s, v%d' % (CC + t, f2h(SCALE), SR + t + 1))
    q.append('v_mul_f32 v%d, v%d, v%d' % (MX + t, MX + t, CC + t))
    for e in range(0, 8, 2):
        q.append(pk('v_pk_fma_f32', s_ + e, [s_ + e, ('b', CC + t), ('b', MX + t)], 2))
    for e in range(8):
        q.append('v_exp_f32 v%d, v%d' % (s_ + e, s_ + e))
    u_, u2 = SUMT[t]
    q.append(pk('v_pk_add_f32', u_, [s_, s_ + 2]))
    q.append(pk('v_pk_add_f32', u2, [s_ + 4, s_ + 6]))
    q.append(pk('v_pk_add_f32', u_, [u_, u2]))
    q.append('v_add_f32 v%d, v%d, v%d' % (LS + t, u_, u_ + 1))
    q += xg_reduce(LS + t, TMPR + t)
    q.append('v_rcp_f32 v%d, v%d' % (LS + t, LS + t))
    for e in range(0, 8, 2):
        q.append(pk('v_pk_mul_f32', s_ + e, [s_ + e, rr(e)]))
    for p in range(4):
        q.append('v_cvt_pk_bf16_f32 v%d, v%d, v%d' % (PF + 4 * t + p, s_ + 2 * p, s_ + 2 * p + 1))
merged = [z for xy in zip(*seq) for z in xy]
gap = len(merged) // (len(wb_loads) + 1)
for k, x in enumerate(merged):
    a(x)
    if k % gap == gap - 1 and wb_loads:
        a(wb_loads.pop(0))
assert not wb_loads
stamp2()
OO = 208
for t in range(2):
    for d in range(2):
        a('%s %s, %s, %s, 0' % (MFMA, vr(OO + 8 * t + 4 * d), vr(VF + 6 * d + 2 * t), vr(PF + 4 * t)))
for t in range(2):
    for e in range(0, 8, 2):
        a(pk('v_pk_mul_f32', OO + 8 * t + e, [OO + 8 * t + e, ('b', LS + t)]))
    for p in range(4):
        a('v_cvt_pk_bf16_f32 v%d, v%d, v%d' % (PF + 4 * t + p, OO + 8 * t + 2 * p, OO + 8 * t + 2 * p + 1))
    store('buffer_store_dwordx4 %s, v1, %s, s%d offen' % (vr(PF + 4 * t), srd(S_WS), 32 + t), sFD)
o_mark = a.vm_mark()
stamp2()
pair_base(sA, L.FA)
a('s_lshl_b32 s%d, s%d, 4' % (sB, sGT))
a('s_add_u32 s%d, s%d, s%d' % (sB, sB, sC))
a('s_lshl_b32 s%d, s%d, 2' % (sB, sB))
a('s_add_u32 s%d, s%d, s%d' % (sA, sA, sB))
a('v_lshlrev_b32 v241, 6, v0')
a('v_add_u32 v241, s%d, v241' % sA)
pair_base(sA, L.FA)
a('s_lshl_b32 s%d, s%d, 8' % (sB, sG))
a('s_add_u32 s%d, s%d, s%d' % (sA, sA, sB))
a('v_lshl_add_u32 v240, v0, 2, s%d' % sA)
a('s_lshl_b32 s%d, s%d, 2' % (sB, sW))
a('s_lshl_b32 s%d, 0x000f000f, s%d' % (sMK, sB))
a('s_mov_b32 s%d, s%d' % (sMK + 1, sMK))
red_addrs()
publish_setup(L.XB, L.SB, L.FB, True, 4)
a('s_mov_b32 s%d, s%d' % (sPC, sFD))
a('s_mov_b32 s%d, s%d' % (sPFC, sFAST))
pair_base(sA, L.O)
a('s_lshl_b32 s%d, s%d, 6' % (sB, sG))
a('s_lshl_b32 s%d, s%d, 2' % (sCc, sW))
a('s_add_u32 s%d, s%d, s%d' % (sB, sB, sCc))
a('s_lshl_b32 s%d, s%d, 10' % (sB, sB))
a('s_add_u32 s20, s%d, s%d' % (sA, sB))
for t in range(1, 4):
    a('s_add_u32 s%d, s20, %d' % (20 + t, 16384 * t))
a.wait_vm(o_mark)
a('s_mov_b64 exec, 3')
store('buffer_store_dword v%d, v241, %s, 0 offen' % (V_T, srd(S_WS)), sFAST)
a('s_mov_b64 exec, -1')
stamp()
a('s_cmp_eq_u32 s%d, 7' % sJ)
a('s_cbranch_scc1 L_next_pair')


def wd_bases():
    a('s_lshl_b32 s%d, s%d, 2' % (sA, sJ))
    a('s_mul_i32 s%d, s%d, %d' % (sA, sA, 56 * 1024))
    a('s_mul_i32 s%d, s%d, %d' % (sB, sW, 14 * 1024))
    a('s_add_u32 s%d, s%d, s%d' % (sA, sA, sB))
    a('s_add_u32 s%d, s%d, %d' % (sO, sA, L.WD))
    quarter_offsets(4, 56 * 1024)


def wd_load(fi):
    kk, t = fi >> 2, fi & 3
    return ('buffer_load_dwordx4 %s, v1, %s, s%d offen offset:%d sc1' %
            (ar(4 * fi), srd(S_WS), sO + 4 * t + (kk >> 2), 1024 * (kk & 3)))


WD_CH = [(0, 12), (12, 56)]
BO, BACC, BRD, BTMP = 66, 130, 194, 226
a('s_cmp_eq_u32 s%d, 0' % sPAIR)
a('s_cbranch_scc0 L_b_start')
for k in range(4):
    a('v_lshlrev_b32 v236, 16, v%d' % (228 + k))
    a('v_and_b32 v237, 0xffff0000, v%d' % (228 + k))
    a('v_accvgpr_write_b32 a%d, v236' % (A_B2 + 2 * k))
    a('v_accvgpr_write_b32 a%d, v237' % (A_B2 + 2 * k + 1))
wd_bases()
for fi in range(*WD_CH[0]):
    a(wd_load(fi))
a.label('L_b_start')
CWW = 66
sCI = 41
a('s_lshr_b32 s%d, s%d, 3' % (sA, sC))
a('s_mul_i32 s%d, s%d, 7' % (sA, sA))
a('s_add_u32 s%d, s%d, s%d' % (sCI, sA, sJ))
a('s_lshl_b32 s%d, s%d, 3' % (sA, sCI))
a('s_lshl_b32 s%d, s%d, 1' % (sB, sW))
a('s_add_u32 s%d, s%d, s%d' % (sA, sA, sB))
a('s_mul_i32 s%d, s%d, %d' % (sB, sA, 14 * 1024))
a('s_add_u32 s%d, s%d, %d' % (sO, sB, L.WC))
quarter_offsets(2, 14 * 1024)


def c_wload(idx):
    u, k = idx >> 1, idx & 1
    return ('buffer_load_dwordx4 %s, v1, %s, s%d offen offset:%d sc1' %
            (vr(CWW + 4 * idx), srd(S_WS), sO + 4 * k + (u >> 2), 1024 * (u & 3)))


def red_writes(acc, tile):
    return ['ds_write_b128 v248, %s offset:%d' % (vr(acc + 4 * t), (tile >> 1) * 32768 + (tile & 1) * 4096 + t * 1024)
            for t in range(4)]


def red_reads(st, rd):
    return ['ds_read_b128 %s, v249 offset:%d' % (vr(rd + (b * 2 + k) * 4), st * 32768 + b * 8192 + k * 1024)
            for b in range(4) for k in range(2)]


def add8(dst, x, y, packed):
    if packed:
        return ['v_pk_add_f32 %s, %s, %s' % (vr(dst + e, 2), vr(x + e, 2), vr(y + e, 2)) for e in range(0, 8, 2)]
    return ['v_add_f32 v%d, v%d, v%d' % (dst + e, x + e, y + e) for e in range(8)]


def finish_pre(st, is_d, tmp):
    res = A_RES + 4 * st
    o = ['v_accvgpr_read_b32 v%d, a%d' % (tmp + 8 + p, res + p) for p in range(4)]
    for p in range(4):
        o += ['v_lshlrev_b32 v%d, 16, v%d' % (tmp + 2 * p, tmp + 8 + p),
              'v_and_b32 v%d, 0xffff0000, v%d' % (tmp + 2 * p + 1, tmp + 8 + p)]
    if is_d:
        o += ['v_accvgpr_read_b32 v%d, a%d' % (tmp + 8 + e, A_B2 + e) for e in range(8)]
        o += ['v_add_f32 v%d, v%d, v%d' % (tmp + e, tmp + e, tmp + 8 + e) for e in range(8)]
    return o


def finish_sum(st, rd, tmp, pk, packed):
    o = add8(rd, rd, rd + 8, packed) + add8(rd + 16, rd + 16, rd + 24, packed) + add8(rd, rd, rd + 16, packed)
    o += add8(tmp, tmp, rd, packed)
    o += ['v_cvt_pk_bf16_f32 v%d, v%d, v%d' % (pk + p, tmp + 2 * p, tmp + 2 * p + 1) for p in range(4)]
    o += ['v_accvgpr_write_b32 a%d, v%d' % (A_RES + 4 * st + p, pk + p) for p in range(4)]
    return o


def owner_stats(tmp, s1, t):
    a('v_pk_add_f32 %s, %s, %s' % (vr(t, 2), vr(tmp, 2), vr(tmp + 2, 2)))
    a('v_pk_add_f32 %s, %s, %s' % (vr(t + 2, 2), vr(tmp + 4, 2), vr(tmp + 6, 2)))
    a('v_pk_add_f32 %s, %s, %s' % (vr(t, 2), vr(t, 2), vr(t + 2, 2)))
    a('v_add_f32 v%d, v%d, v%d' % (s1, t, t + 1))
    a('v_pk_mul_f32 %s, %s, %s' % (vr(t, 2), vr(tmp, 2), vr(tmp, 2)))
    for e in (2, 4, 6):
        a('v_pk_fma_f32 %s, %s, %s, %s' % (vr(t, 2), vr(tmp + e, 2), vr(tmp + e, 2), vr(t, 2)))
    a('v_add_f32 v%d, v%d, v%d' % (s1 + 1, t, t + 1))
    for x, y in zip(xg_reduce(s1, t), xg_reduce(s1 + 1, t + 1)):
        a(x)
        a(y)


def publish_data(st, pk):
    store('buffer_store_dwordx4 %s, v1, %s, s%d offen offset:0' % (vr(pk), srd(S_WS), sPX if st == 0 else sPX2), sPC)


def publish_stats(tmps, t, s1):
    a('v_and_b32 v%d, 15, v0' % V_TOK)
    a('v_lshlrev_b32 v%d, 3, v%d' % (t + 4, V_TOK))
    for st in range(2):
        owner_stats(tmps[st], s1 + 2 * st, t)
    a('s_mov_b64 exec, 0xffff')
    store('buffer_store_dwordx2 %s, v%d, %s, s%d offen' % (vr(s1, 2), t + 4, srd(S_WS), sPS), sPC)
    a('s_add_u32 s%d, s%d, %d' % (sPS, sPS, 2 * 1792))
    store('buffer_store_dwordx2 %s, v%d, %s, s%d offen' % (vr(s1 + 2, 2), t + 4, srd(S_WS), sPS), sPC)
    a('s_mov_b64 exec, -1')


def publish_flags(lsh, between=()):
    a('v_lshlrev_b32 v241, %d, v0' % lsh)
    a('v_add_u32 v241, s%d, v241' % sPF)
    set_flags(241, 2, sPFC, V_T, between)


def run_tiles(tile_items, extras):
    for tile in range(4):
        if tile and '--diag3' in sys.argv:
            stamp()
        items = tile_items(tile)
        ex = list(extras.get(tile, []))
        free = [k for k, it in enumerate(items) if k >= 3 and not it[2]]
        per = -(-len(ex) // max(1, len(free))) if ex else 0
        for k, (pre, m, post) in enumerate(items):
            for x in pre:
                x()
            a(m)
            if post:
                post()
            elif k >= 3:
                for _ in range(per):
                    if ex:
                        x = ex.pop(0)
                        if callable(x):
                            x()
                        else:
                            a(x)
        assert not ex


poll(240)
a('s_barrier')
stamp()


def b_oload(tile, i):
    return 'buffer_load_dwordx4 %s, v1, %s, s%d offen offset:%d sc1' % (vr(BO + (tile * 4 + i) * 4), srd(S_WS), 20 + tile, 1024 * i)


om = {}
for tile in range(2):
    for i in range(4):
        a(b_oload(tile, i))
        om[(tile, i)] = a.vm_mark()


def b_tile(tile):
    items = []
    for i in range(4):
        for t in range(4):
            r = BACC + (tile * 4 + t) * 4
            pre = [(lambda tl=tile, ii=i: a.wait_vm(om[(tl, ii)]))] if t == 0 else []
            post = None
            if tile < 2 and t == 1:
                def post(tl=tile + 2, ii=i):
                    a(b_oload(tl, ii))
                    om[(tl, ii)] = a.vm_mark()
            if tile >= 2 and t == 1:
                def post(idx=4 * (tile - 2) + i):
                    a(c_wload(idx))
            items.append((pre, '%s %s, %s, %s, %s' % (MFMA, vr(r), vr(BW + (i * 4 + t) * 4), vr(BO + (tile * 4 + i) * 4),
                                                      '0' if i == 0 else vr(r)), post))
    return items


BT0, BT1, BPK = 226, 2, 18
run_tiles(b_tile, {1: red_writes(BACC, 0), 2: red_writes(BACC + 16, 1), 3: red_writes(BACC + 32, 2)})
stamp2()
for x in red_writes(BACC + 48, 3):
    a(x)
for x in finish_pre(0, False, BT0) + finish_pre(1, False, BT1):
    a(x)
a('s_waitcnt lgkmcnt(0)')
a('s_barrier')
stamp2()
BRD1 = 162
for x in red_reads(0, BRD) + red_reads(1, BRD1):
    a(x)
a('s_waitcnt lgkmcnt(8)')
for x in finish_sum(0, BRD, BT0, BPK, True):
    a(x)
publish_data(0, BPK)
a('s_waitcnt lgkmcnt(0)')
for x in finish_sum(1, BRD1, BT1, BPK + 4, True):
    a(x)
publish_data(1, BPK + 4)
stamp2()
publish_stats([BT0, BT1], 36, 32)
b_mark = a.vm_mark()
a('v_lshlrev_b32 v236, 7, v0')
a('v_add_u32 v236, s%d, v236' % sPF)
for i in range(8, 16):
    a(c_wload(i))
CA = [2, 10]
XF, NXF = 18, 8
GTMP, GH = 50, 58
CCS, CB1, CB1R = 178, 186, 194
CSTR = 198
CMR = 214
VGA = 218
a('v_lshrrev_b32 v%d, 4, v0' % V_G)
a('v_and_b32 v%d, 15, v0' % V_TOK)
pair_base(sA, L.FB)
a('s_lshl_b32 s%d, s%d, 9' % (sB, sS))
a('s_add_u32 s%d, s%d, s%d' % (sA, sA, sB))
a('v_lshl_add_u32 v240, v0, 2, s%d' % sA)
a('s_mov_b32 s%d, 0x3fff3fff' % sMK)
a('s_mov_b32 s%d, 0x3fff3fff' % (sMK + 1))
pair_base(20, L.XB)
a('s_mul_i32 s%d, s%d, %d' % (sB, sS, 8 * 14336))
a('s_add_u32 s20, s20, s%d' % sB)
a('s_lshl_b32 s%d, s%d, 12' % (sB, sW))
a('s_add_u32 s20, s20, s%d' % sB)
a('s_add_u32 s21, s%d, %d' % (sB, L.L_R2))
pair_base(22, L.SB)
a('s_lshl_b32 s%d, s%d, 3' % (sB, sS))
a('s_add_u32 s%d, s%d, s%d' % (sB, sB, sW))
a('s_mul_i32 s%d, s%d, 1792' % (sB, sB))
a('s_add_u32 s22, s22, s%d' % sB)
a('s_add_u32 s23, s22, %d' % (4 * 1792))
pair_base(32, L.H)
a('s_mul_i32 s%d, s%d, %d' % (sB, sS, 8 * 56 * 1024))
a('s_add_u32 s32, s32, s%d' % sB)
a('s_lshl_b32 s%d, s%d, 2' % (sB, sCI))
a('s_add_u32 s%d, s%d, s%d' % (sB, sB, sW))
a('s_lshl_b32 s%d, s%d, 10' % (sCc, sB))
a('s_add_u32 s32, s32, s%d' % sCc)
pair_base(33, L.FC)
a('s_lshl_b32 s%d, s%d, 11' % (sCc, sS))
a('s_add_u32 s33, s33, s%d' % sCc)
a('s_lshl_b32 s%d, s%d, 2' % (sB, sB))
a('s_add_u32 s33, s33, s%d' % sB)
a('v_mov_b32 v241, s33')
a('v_mov_b32 v242, 0x%x' % INV)
a('v_cmp_eq_u32 vcc, 0, v0')
a('v_cndmask_b32 v241, v242, v241, vcc')
a('v_lshlrev_b32 v238, 3, v%d' % V_TOK)
a('v_lshl_add_u32 v238, v%d, 7, v238' % V_G)
a('v_mov_b32 v242, 0x%x' % INV)
a('v_cmp_lt_u32 vcc, 1, v%d' % V_G)
a('v_cndmask_b32 v239, 0, v242, vcc')
a('v_or_b32 v239, v239, v238')
a('v_add_u32 v252, %d, v1' % L.L_R2)
a('v_lshlrev_b32 v246, 3, v%d' % V_TOK)
a('v_add_u32 v246, %d, v246' % L.L_STC)
GA = 2.0 * 0.7978845608028654 * 1.4426950408889634
GB = GA * 0.044715
a('v_mov_b32 v%d, %s' % (VGA, f2h(-GA)))
a('v_mov_b32 v%d, %s' % (VGA + 1, f2h(-GA)))
a('s_mov_b32 s34, %s' % f2h(-GB))
a('s_mov_b32 s35, %s' % f2h(-GB))
wd_bases_hi = True
a.wait_vm(b_mark)
a('s_mov_b64 exec, 3')
store('buffer_store_dword v%d, v236, %s, 0 offen' % (V_T, srd(S_WS)), sPFC)
a('s_mov_b64 exec, -1')
stamp()

for i in range(16, 22):
    a(c_wload(i))
a('s_lshl_b32 s%d, s%d, 3' % (sA, sCI))
a('s_lshl_b32 s%d, s%d, 1' % (sB, sW))
a('s_add_u32 s%d, s%d, s%d' % (sA, sA, sB))
a('s_lshl_b32 s24, s%d, 5' % sA)
a('v_lshlrev_b32 v248, 3, v%d' % V_G)
for k in range(2):
    a('buffer_load_dwordx2 %s, v248, %s, s24 offen offset:%d' % (vr(CB1R + 2 * k, 2), srd(S_B1), 32 * k))
poll(240, 256)
stamp()


TORD = [0, 4, 1, 5, 2, 6, 3, 7]


def c_dma_setup(t):
    return ['s_add_u32 s36, s20, %d' % (TORD[t] * 14336), 's_add_u32 m0, s21, %d' % ((t & 3) * 16384)]


def c_dma(t, i):
    return 'buffer_load_dwordx4 v1, %s, s36 offen offset:%d sc1 lds' % (srd(S_WS), 1024 * i)


dm = {}
for x in c_dma_setup(0) + [c_dma(0, i) for i in range(4)]:
    a(x)
dm[0] = a.vm_mark()
wlate = {}
for i in range(22, 28):
    a(c_wload(i))
    wlate[i >> 1] = a.vm_mark()
for tt in range(2):
    for i in range(4):
        a('buffer_load_dwordx2 %s, v%d, %s, s%d offen offset:%d sc1' %
          (vr(CSTR + 8 * tt + 2 * i, 2), 239 if i == 3 else 238, srd(S_WS), 22 + tt, 512 * i))
amark['cst'] = a.vm_mark()
for x in c_dma_setup(1) + [c_dma(1, i) for i in range(4)]:
    a(x)
dm[1] = a.vm_mark()
wd_bases()
t0_loads = []
b1_unpack = []
for k in range(2):
    for p in range(2):
        b1_unpack += ['v_lshlrev_b32 v%d, 16, v%d' % (CB1 + 4 * k + 2 * p, CB1R + 2 * k + p),
                      'v_and_b32 v%d, 0xffff0000, v%d' % (CB1 + 4 * k + 2 * p + 1, CB1R + 2 * k + p)]
a.wait_vm(dm[0])
a('s_barrier')
stamp()


def c_xread(t, u):
    n = t * 14 + u
    return 'ds_read_b128 %s, v252 offset:%d' % (vr(XF + 4 * (n % NXF)), (t & 3) * 16384 + u * 1024)


def gelu_pre(t):
    z, m = CA[t & 1], CMR + 2 * (t & 1)
    P = range(0, 8, 2)
    o = ['v_pk_fma_f32 %s, %s, %s, %s op_sel_hi:[1,0,1] neg_lo:[0,1,0] neg_hi:[0,1,0]' % (vr(z + e, 2), vr(CCS + e, 2), vr(m, 2), vr(z + e, 2)) for e in P]
    o += ['v_pk_fma_f32 %s, %s, %s, %s op_sel:[0,1,0] op_sel_hi:[1,1,1]' % (vr(z + e, 2), vr(z + e, 2), vr(m, 2), vr(CB1 + e, 2)) for e in P]
    o += ['v_pk_mul_f32 %s, %s, %s' % (vr(GTMP + e, 2), vr(z + e, 2), vr(z + e, 2)) for e in P]
    o += ['v_pk_fma_f32 %s, %s, s[34:35], %s' % (vr(GTMP + e, 2), vr(GTMP + e, 2), vr(VGA, 2)) for e in P]
    o += ['v_pk_mul_f32 %s, %s, %s' % (vr(GTMP + e, 2), vr(GTMP + e, 2), vr(z + e, 2)) for e in P]
    return o


def gelu_mid():
    o = {}
    for e in range(8):
        o.setdefault(2 * e, []).append('v_exp_f32 v%d, v%d' % (GTMP + e, GTMP + e))
        o.setdefault(2 * e + 3, []).append('v_add_f32 v%d, 1.0, v%d' % (GTMP + e, GTMP + e))
    for e in range(6):
        o.setdefault(16 + 2 * e, []).append('v_rcp_f32 v%d, v%d' % (GTMP + e, GTMP + e))
    o.setdefault(25, []).append('v_rcp_f32 v%d, v%d' % (GTMP + 6, GTMP + 6))
    o.setdefault(27, []).append('v_rcp_f32 v%d, v%d' % (GTMP + 7, GTMP + 7))
    return o


def gelu_post(t):
    z, h = CA[t & 1], GH + 4 * (t & 1)
    o = ['v_pk_mul_f32 %s, %s, %s' % (vr(GTMP + e, 2), vr(GTMP + e, 2), vr(z + e, 2)) for e in range(0, 8, 2)]
    o += ['v_cvt_pk_bf16_f32 v%d, v%d, v%d' % (h + p, GTMP + 2 * p, GTMP + 2 * p + 1) for p in range(4)]
    return o


def gelu_packed(t):
    z, m, h = CA[t & 1], CMR + 2 * (t & 1), GH + 4 * (t & 1)
    P = range(0, 8, 2)
    for e in P:
        a('v_pk_fma_f32 %s, %s, %s, %s op_sel_hi:[1,0,1] neg_lo:[0,1,0] neg_hi:[0,1,0]' % (vr(z + e, 2), vr(CCS + e, 2), vr(m, 2), vr(z + e, 2)))
    for e in P:
        a('v_pk_fma_f32 %s, %s, %s, %s op_sel:[0,1,0] op_sel_hi:[1,1,1]' % (vr(z + e, 2), vr(z + e, 2), vr(m, 2), vr(CB1 + e, 2)))
    for e in P:
        a('v_pk_mul_f32 %s, %s, %s' % (vr(GTMP + e, 2), vr(z + e, 2), vr(z + e, 2)))
    for e in P:
        a('v_pk_fma_f32 %s, %s, s[34:35], %s' % (vr(GTMP + e, 2), vr(GTMP + e, 2), vr(VGA, 2)))
    for e in P:
        a('v_pk_mul_f32 %s, %s, %s' % (vr(GTMP + e, 2), vr(GTMP + e, 2), vr(z + e, 2)))
    for e in range(8):
        a('v_exp_f32 v%d, v%d' % (GTMP + e, GTMP + e))
    for e in P:
        a('v_pk_add_f32 %s, %s, 1.0 op_sel_hi:[1,0]' % (vr(GTMP + e, 2), vr(GTMP + e, 2)))
    for e in range(8):
        a('v_rcp_f32 v%d, v%d' % (GTMP + e, GTMP + e))
    for e in P:
        a('v_pk_mul_f32 %s, %s, %s' % (vr(GTMP + e, 2), vr(GTMP + e, 2), vr(z + e, 2)))
    for p in range(4):
        a('v_cvt_pk_bf16_f32 v%d, v%d, v%d' % (h + p, GTMP + 2 * p, GTMP + 2 * p + 1))


hmk, fmk = {}, {}


def h_store(t):
    def f():
        a('s_add_u32 s24, s32, %d' % (TORD[t] * 56 * 1024))
        store('buffer_store_dwordx4 %s, v1, %s, s24 offen' % (vr(GH + 4 * (t & 1)), srd(S_WS)), sFH)
        hmk[t] = a.vm_mark()
    return f


def h_flag(t):
    def f():
        a.wait_vm(hmk[t])
        store('buffer_store_dword v%d, v241, %s, 0 offen offset:%d' % (V_T, srd(S_WS), 256 * TORD[t]), sFAST)
    return f


def wd_block(fis, wave):
    def f():
        skip = newlab('L_wd')
        a('s_cmp_eq_u32 s24, %d' % wave)
        a('s_cbranch_scc0 %s' % skip)
        for fi in fis:
            a(wd_load(fi))
            a.vm_issued -= 1
        a.label(skip)
    return f


cst_fill = []
for tt in range(2):
    r = CSTR + 8 * tt
    for c_ in range(2):
        cst_fill += ['v_add_f32 v%d, v%d, v%d' % (r + c_, r + c_, r + 2 + c_),
                     'v_add_f32 v%d, v%d, v%d' % (r + 4 + c_, r + 4 + c_, r + 6 + c_),
                     'v_add_f32 v%d, v%d, v%d' % (r + c_, r + c_, r + 4 + c_)]
    cst_fill += xg_reduce(r, r + 2) + xg_reduce(r + 1, r + 3) + stats_finish(r, r + 1, r + 2, True)
a('s_lshl_b32 s%d, s%d, 7' % (sA, sW))
a('v_add_u32 v247, s%d, v246' % sA)
cst_fill += ['ds_write_b64 v247, %s' % vr(CSTR, 2), 'ds_write_b64 v247, %s offset:512' % vr(CSTR + 8, 2)] + b1_unpack
LOOKX = 6


A_CCS = 244


DFIRST = [194, 198, 202, 206, 210, 220, 224, 228, 232]
hm = {}


def emit_c_loop(wd_list):
    pass0 = bool(wd_list)
    if not pass0:
        for e in range(8):
            a('v_accvgpr_read_b32 v%d, a%d' % (CCS + e, A_CCS + e))
    for u in range(LOOKX):
        a(c_xread(0, u))
    for t in range(8):
        nonvec = {}

        def put(k, x):
            nonvec.setdefault(k, []).append(x)
        for u in range(14):
            n = t * 14 + u
            m = n + LOOKX
            if m < 8 * 14:
                put(2 * u + 1, c_xread(m // 14, m % 14))
            if u % 2 == 1 and n + 1 < 8 * 14:
                put(2 * u + 1, 's_waitcnt lgkmcnt(%d)' % min(LOOKX - 2, 8 * 14 - 1 - (n + 2)))
        if t < 7:
            nonvec[14] = [('bar', t + 1)] + nonvec.get(14, [])
        if t + 2 < 8:
            su = c_dma_setup(t + 2)
            put(0, su[0])
            put(0, su[1])
            for i in range(4):
                put(2 + 2 * i, ('dma', t + 2, i))
        if t >= 3:
            put(20, ('call', h_flag(t - 3)))
        if t == 1:
            put(0, 's_add_u32 s22, s25, 12288')
        if t == 5:
            def issue_d0():
                amark['d0'] = early_issue(244, 243)
            put(22, ('call', issue_d0))
        if t == 6:
            put(2, ('call', lambda: early_check(244, 243, amark['d0'])))
        if t in (6, 7):
            for k, q in zip((4, 6, 8, 20, 22) if t == 6 else (2, 4, 6, 8), range(0, 5) if t == 6 else range(5, 9)):
                put(k, ('h0', q))
        if t < 7:
            for k in (10, 12, 16, 18, 22, 24, 26):
                if wd_list:
                    put(k, wd_load(wd_list.pop(0)))
        if t > 0:
            put(17, 'ds_read_b64 %s, v246 offset:%d' % (vr(CMR + 2 * (t & 1), 2), 128 * TORD[t]))
        if t == 0:
            for k, it in enumerate(t0_loads):
                put(k, ('t0', it))
        valu = gelu_mid() if t >= 1 else {}
        if t >= 2:
            for x in gelu_post(t - 2):
                a(x)
            h_store(t - 2)()
        if t >= 1:
            for x in gelu_pre(t - 1):
                a(x)
        fill = list(cst_fill) if t == 0 else []
        first = 8
        fi = 0
        for k in range(28):
            u, kk = k >> 1, k & 1
            n = t * 14 + u
            if t == 0 and k == 0:
                a('s_waitcnt lgkmcnt(%d)' % (LOOKX - 2))
            if t == 0 and kk == 0 and u in wlate:
                a.wait_vm(wlate[u])
            if t == 0 and k == first:
                a.wait_vm(amark['cst'])
            r = CA[t & 1] + 4 * kk
            a('%s %s, %s, %s, %s' % (MFMA, vr(r), vr(CWW + 4 * (2 * u + kk)), vr(XF + 4 * (n % NXF)), '0' if u == 0 else vr(r)))
            if pass0 and t == 0:
                a('%s %s, %s, %s, %s' % (MFMA, vr(CCS + 4 * kk), vr(CWW + 4 * (2 * u + kk)), ar(A_ONES), '0' if u == 0 else vr(CCS + 4 * kk)))
            for it in nonvec.get(k, []):
                if isinstance(it, str):
                    a(it)
                elif it[0] == 'bar':
                    a.wait_vm(dm[it[1]])
                    a('s_barrier')
                elif it[0] == 'dma':
                    a(c_dma(it[1], it[2]))
                    dm[it[1]] = a.vm_mark()
                elif it[0] == 'call':
                    it[1]()
                elif it[0] == 'h0':
                    q = it[1]
                    a('buffer_load_dwordx4 %s, v1, %s, s%d offen offset:%d sc1' %
                      (vr(DFIRST[q] if q < 9 else 66 + 4 * q), srd(S_WS), (25, 27, 29, 22)[q >> 2], 1024 * (q & 3)))
                    hm[q] = a.vm_mark()
                elif it[0] == 't0':
                    if it[1][0] == 'w':
                        a(c_wload(it[1][1]))
                        wlate[it[1][1] >> 1] = a.vm_mark()
                    else:
                        a(it[1][1])
                        amark['cst'] = a.vm_mark()
            for x in valu.get(k, []):
                a(x)
            if fill and k >= first:
                want = -(-(len(fill)) * (k - first + 1) // (28 - first))
                while fi < want:
                    a(fill[fi])
                    fi += 1
        assert fi == len(fill)
        if t == 0:
            a('s_waitcnt lgkmcnt(0)')
            a('s_barrier')
            a('ds_read_b64 %s, v246 offset:0' % vr(CMR, 2))
            if pass0:
                for e in range(8):
                    a('v_accvgpr_write_b32 a%d, v%d' % (A_CCS + e, CCS + e))
            a('s_waitcnt lgkmcnt(0)')
    assert not wd_list


pair_base(sA, L.FC)
a('s_lshl_b32 s%d, s%d, 10' % (sB, sG))
a('s_add_u32 s%d, s%d, s%d' % (sA, sA, sB))
a('s_mul_i32 s%d, s%d, 56' % (sB, sW))
a('s_add_u32 s%d, s%d, s%d' % (sA, sA, sB))
a('v_lshl_add_u32 v243, v0, 2, s%d' % sA)
a('s_mov_b32 s%d, 0x3fff' % sMK2)
a('s_mov_b32 s%d, 0' % (sMK2 + 1))
pair_base(sA, L.H)
a('s_mul_i32 s%d, s%d, %d' % (sB, sG, 4 * 56 * 1024))
a('s_add_u32 s%d, s%d, s%d' % (sA, sA, sB))
a('s_mul_i32 s%d, s%d, %d' % (sB, sW, 14 * 1024))
a('s_add_u32 s25, s%d, s%d' % (sA, sB))
a('s_add_u32 s27, s25, 4096')
a('s_add_u32 s29, s25, 8192')
n_before = a.vm_issued
dm_init = dict(dm)
a('s_cmp_eq_u32 s%d, 0' % sPAIR)
a('s_cbranch_scc0 L_c_loop1')
emit_c_loop(list(range(*WD_CH[1])))
extra = a.vm_issued - n_before
with OutOfLine():
    a.label('L_c_loop1')
    a.vm_issued = n_before
    dm.clear()
    dm.update(dm_init)
    emit_c_loop([])
    a('s_branch L_c_done')
a.label('L_c_done')
stamp()
DH, DACC, DRD = 66, 130, 194
DRING, DLOOK = 16, 10
red_addrs()
publish_setup(L.XA[1], L.SA[1], L.FX[1], False, 5)
a('s_and_b32 s%d, s%d, 1' % (sA, sG))
a('s_lshr_b32 s%d, s%d, 1' % (sB, sW))
a('s_and_b32 s%d, s%d, s%d' % (sA, sA, sB))
a('s_xor_b32 s%d, s%d, 1' % (sA, sA))
a('s_and_b32 s%d, s%d, s%d' % (sPC, sFD, sA))
a('s_mov_b32 s%d, s%d' % (sPFC, sFAST))
a('s_cmp_eq_u32 s%d, 0' % sA)
a('s_cselect_b32 s%d, 0, 0x%x' % (sCc, INV))
a('s_add_u32 s%d, s%d, 1' % (sA, sS))
a('s_lshl_b32 s%d, s%d, 5' % (sA, sA))
a('s_lshl_b32 s%d, s%d, 1' % (sB, sJ))
a('s_add_u32 s%d, s%d, s%d' % (sA, sA, sB))
a('s_and_b32 s%d, s%d, 1' % (sB, sW))
a('s_add_u32 s%d, s%d, s%d' % (sA, sA, sB))
a('s_lshl_b32 s%d, s%d, 2' % (sA, sA))
a('s_add_u32 s%d, s%d, %d' % (sA, sA, L.FH))
a('s_or_b32 s20, s%d, s%d' % (sA, sCc))
pair_base(sA, L.H)
a('s_mul_i32 s%d, s%d, %d' % (sB, sG, 4 * 56 * 1024))
a('s_add_u32 s%d, s%d, s%d' % (sA, sA, sB))
a('s_mul_i32 s%d, s%d, %d' % (sB, sW, 14 * 1024))
a('s_add_u32 s%d, s%d, s%d' % (sO, sA, sB))
quarter_offsets(4, 56 * 1024)
a('s_cmp_eq_u32 s%d, 0' % sPAIR)
a('s_cbranch_scc1 L_d_nout')
owner_index()
a('s_mul_i32 s%d, s%d, 14336' % (sPX, sB))
a('s_lshl_b32 s%d, s%d, 6' % (sA, sA))
a('s_add_u32 s%d, s%d, s%d' % (sPX, sPX, sA))
a('s_add_u32 s%d, s%d, %d' % (sPX2, sPX, 2 * 14336))
a.label('L_d_nout')
a('v_and_b32 v%d, 15, v0' % V_TOK)
a('v_lshrrev_b32 v%d, 4, v0' % V_G)
a('v_mul_u32_u24 v242, 896, v%d' % V_TOK)
a('v_and_b32 v253, 1, v%d' % V_G)
a('v_lshl_add_u32 v242, v253, 5, v242')
a('v_lshrrev_b32 v253, 1, v%d' % V_G)
a('v_lshl_add_u32 v242, v253, 4, v242')


def d_hload(q):
    tile, kk = divmod(q, 14)
    return ('buffer_load_dwordx4 %s, v1, %s, s%d offen offset:%d sc1' %
            (vr(d_reg(q)), srd(S_WS), sO + 4 * tile + (kk >> 2), 1024 * (kk & 3)))


def d_reg(q):
    return DFIRST[q] if q < len(DFIRST) else DH + (q % DRING) * 4


dmk = {}
for q in range(len(DFIRST), DLOOK):
    a(d_hload(q))
    hm[q] = a.vm_mark()
dmk[1] = early_issue(244, 243, 256)
stamp()
for x in gelu_post(6):
    a(x)
h_store(6)()
a('s_waitcnt lgkmcnt(0)')
gelu_packed(7)
h_flag(5)()
h_store(7)()
stamp()

a('s_barrier')
stamp()


def d_tile(tile):
    items = []
    for kk in range(14):
        q = tile * 14 + kk
        for t in range(4):
            r = DACC + (tile * 4 + t) * 4
            pre = [(lambda qq=q: a.wait_vm(hm[qq]))] if t == 0 else []
            if t == 0 and q in (6, 12):
                pre.append(h_flag({6: 6, 12: 7}[q]))
            post = None
            if t == 0 and q + DLOOK < 56:
                def post(qq=q + DLOOK):
                    if qq % 14 == 0:
                        early_check(244, 243, dmk[qq // 14], 256 * (qq // 14))
                    a(d_hload(qq))
                    hm[qq] = a.vm_mark()
                    if qq % 14 == 6 and qq // 14 < 3:
                        dmk[qq // 14 + 1] = early_issue(244, 243, 256 * (qq // 14 + 1))
            items.append((pre, '%s %s, %s, %s, %s' % (MFMA, vr(r), ar((kk * 4 + t) * 4), vr(d_reg(q)),
                                                      '0' if kk == 0 else vr(r)), post))
    return items


def d_out_store(st, pk):
    a('s_nop 1')
    a('v_permlane16_swap_b32 v%d, v%d' % (pk, pk + 2))
    a('v_permlane16_swap_b32 v%d, v%d' % (pk + 1, pk + 3))
    a('buffer_store_dwordx4 %s, v242, %s, s%d offen %s' % (vr(pk), srd(S_OUT), sPX if st == 0 else sPX2, OUTSC))


def d_store(st, pk):
    fin, done = newlab('L_dfin'), newlab('L_ddone')
    a('s_cmp_eq_u32 s%d, 0' % sPAIR)
    a('s_cbranch_scc0 %s' % fin)
    publish_data(st, pk)
    a('s_branch %s' % done)
    a.label(fin)
    n = a.vm_issued
    d_out_store(st, pk)
    a.vm_issued = n
    a.label(done)


DT0, DT1, DPK, DSTT, DSTS = 226, 2, 18, 28, 36
stage0 = [lambda: (a('s_waitcnt lgkmcnt(0)'), a('s_barrier'))] + red_reads(0, DRD) + finish_pre(0, True, DT0)
stage0 += [lambda: a('s_waitcnt lgkmcnt(0)')] + finish_sum(0, DRD, DT0, DPK, False) + [lambda: d_store(0, DPK)]
run_tiles(d_tile, {1: red_writes(DACC, 0), 2: red_writes(DACC + 16, 1), 3: red_writes(DACC + 32, 2) + stage0})
stamp2()
for x in red_writes(DACC + 48, 3):
    a(x)
for x in finish_pre(1, True, DT1):
    a(x)
a('s_waitcnt lgkmcnt(0)')
a('s_barrier')
stamp2()
for x in red_reads(1, DRD):
    a(x)
a('s_waitcnt lgkmcnt(0)')
for x in finish_sum(1, DRD, DT1, DPK + 4, True):
    a(x)
d_store(1, DPK + 4)
stamp()
a('s_cmp_eq_u32 s%d, 0' % sPAIR)
a('s_cbranch_scc0 L_next_pair')
publish_stats([DT0, DT1], DSTT, DSTS)
FHMODE = ([x[5:] for x in sys.argv if x.startswith('--fh=')] + ['after'])[0]
a('v_mov_b32 v240, s20')
if FHMODE == 'before':
    a('s_waitcnt vmcnt(0)')
    a('s_mov_b64 exec, 1')
    a('buffer_store_dword v%d, v240, %s, 0 offen sc1' % (V_T, srd(S_WS)))
    a('s_mov_b64 exec, -1')
    a('v_lshlrev_b32 v241, 8, v0')
    a('v_add_u32 v241, s%d, v241' % sPF)
    a('s_mov_b64 exec, 3')
    store('buffer_store_dword v%d, v241, %s, 0 offen' % (V_T, srd(S_WS)), sPFC)
    a('s_mov_b64 exec, -1')
else:
    publish_flags(8)
    if FHMODE == 'wait':
        a('s_waitcnt vmcnt(0)')
    a('s_mov_b64 exec, 1')
    a('buffer_store_dword v%d, v240, %s, 0 offen sc1' % (V_T, srd(S_WS)))
    a('s_mov_b64 exec, -1')
a.label('L_next_pair')
stamp()
a('s_add_u32 s%d, s%d, 1' % (sPAIR, sPAIR))
a('s_cmp_lt_u32 s%d, 2' % sPAIR)
a('s_cbranch_scc1 L_pair')

a('s_cmp_eq_u32 s2, 0')
a('s_cbranch_scc0 L_noepoch')
a('s_cmp_eq_u32 s%d, 0' % sW)
a('s_cbranch_scc0 L_noepoch')
a('buffer_load_dword v2, off, %s, 0 sc1' % srd(S_WS))
a('s_waitcnt vmcnt(0)')
a('v_add_u32 v2, 1, v2')
a('s_mov_b64 exec, 1')
a('buffer_store_dword v2, off, %s, 0 sc1' % srd(S_WS))
a('s_mov_b64 exec, -1')
a.label('L_noepoch')
if PAD:
    a.label('L_padspin')
    a('s_memrealtime s[34:35]')
    a('s_waitcnt lgkmcnt(0)')
    a('s_sub_u32 s34, s34, s0')
    a('s_cmp_lt_u32 s34, %d' % PAD[0])
    a('s_cbranch_scc1 L_padspin')
if DBG:
    a('s_memtime s[32:33]')
    a('s_memrealtime s[34:35]')
    a('s_waitcnt lgkmcnt(0)')
    a('s_sub_u32 s32, s32, s26')
    a('s_sub_u32 s34, s34, s0')
    build_srd(S_TMP, P_DBG, 256)
    a('v_mov_b32 v2, s32')
    a('v_mov_b32 v3, s34')
    a('v_mov_b32 v4, s%d' % sFAST)
    a('v_mov_b32 v5, s%d' % sXCC)
    a('s_lshr_b32 s%d, s2, 6' % sA)
    a('s_lshl_b32 s%d, s%d, 4' % (sA, sA))
    a('s_and_b32 s%d, s2, 63' % sB)
    a('s_or_b32 s%d, s%d, s%d' % (sB, sB, sW))
    a('s_cmp_eq_u32 s%d, 0' % sB)
    a('s_cselect_b32 s%d, s%d, 0x%x' % (sA, sA, INV))
    a('v_mov_b32 v6, s%d' % sA)
    a('s_mov_b64 exec, 1')
    a('buffer_store_dwordx4 v[2:5], v6, %s, 0 offen' % srd(S_TMP))
    a('s_mov_b64 exec, -1')
if DIAG:
    stamp()
    a('s_mov_b32 s%d, 63' % sSTI)
    a('s_lshl_b64 exec, 1, s%d' % sSTI)
    a('v_mov_b32 v%d, s%d' % (V_STAMP, sERR))
    a('s_mov_b32 s%d, 62' % sSTI)
    a('s_lshl_b64 exec, 1, s%d' % sSTI)
    a('v_mov_b32 v%d, s%d' % (V_STAMP, sFAST))
    a('s_mov_b64 exec, -1')
    a('s_lshl_b32 s%d, s2, 2' % sA)
    a('s_add_u32 s%d, s%d, s%d' % (sA, sA, sW))
    a('s_lshl_b32 s%d, s%d, 8' % (sA, sA))
    a('v_lshlrev_b32 v2, 2, v0')
    a('s_add_u32 s%d, s%d, %d' % (sA, sA, L.WS_USED))
    a('s_mov_b32 s%d, 0x%x' % (S_WS + 2, L.WS_USED + 256 * 1024))
    a('buffer_store_dword v%d, v2, %s, s%d offen' % (V_STAMP, srd(S_WS), sA))
    if DBGST:
        build_srd(S_TMP, P_DBG, 256)
        a('v_readfirstlane_b32 s%d, v%d' % (sA, V_STAMP))
        a('s_nop 4')
        a('v_subrev_u32 v3, s%d, v%d' % (sA, V_STAMP))
        a('s_or_b32 s%d, s2, s%d' % (sB, sW))
        a('s_cmp_eq_u32 s%d, 0' % sB)
        a('s_cselect_b32 s%d, 0, 0x%x' % (sB, INV))
        a('v_or_b32 v2, s%d, v2' % sB)
        SEL = [int(x[6:]) for x in sys.argv if x.startswith('--sel=')]
        sel = SEL[0] if SEL else 1
        a('v_subrev_u32 v2, %d, v2' % (4 * sel))
        a('buffer_store_dword v3, v2, %s, 0 offen' % srd(S_TMP))
a.label('L_end')
a('s_endpgm')
a.ins.extend(ool)
a.label('L_code_end')

a.finalize()
body = a.text()

import os
hdr = open(os.path.join(os.path.dirname(os.path.abspath(__file__)), 'header.txt')).read()
out = hdr + '; @launch grid=(256,1,1) block=(256,1,1) lds=%d\n' % L.LDS_BYTES
out += '.amdgcn_target "amdgcn-amd-amdhsa--gfx950"\n.text\n.globl %s_kernel\n.p2align 8\n.type %s_kernel,@function\n%s_kernel:\n' % (NAME, NAME, NAME)
out += body
out += '''.section .rodata,"a"
.p2align 6
.amdhsa_kernel %s_kernel
  .amdhsa_next_free_vgpr 512
  .amdhsa_next_free_sgpr 102
  .amdhsa_accum_offset 256
  .amdhsa_group_segment_fixed_size 0
  .amdhsa_kernarg_size 88
  .amdhsa_user_sgpr_count 2
  .amdhsa_user_sgpr_kernarg_segment_ptr 1
  .amdhsa_system_sgpr_workgroup_id_x 1
.end_amdhsa_kernel
''' % NAME
sys.stdout.write(out)
```

```python
import struct
import sys
from asmlib import Asm
import layout as L

NAME = 'interleave_layers__sliding_local_dilated__mixer_channel_mlp__prompt'
DIAG = '--diag' in sys.argv
FASTMODE = ([x[7:] for x in sys.argv if x.startswith('--fast=')] + ['flags'])[0]
NOFAST = FASTMODE == 'none'
PAD = [int(x[6:]) for x in sys.argv if x.startswith('--pad=')]
DBG = '--dbg' in sys.argv or bool(PAD)
SPIN_LIMIT = 200000
OUTSC = ([x[8:] for x in sys.argv if x.startswith('--outsc=')] + [''])[0].replace('_', ' ')
SLEEP = int(([x[8:] for x in sys.argv if x.startswith('--sleep=')] + ['0'])[0])
INV = 0x80000000

a = Asm()

sXCC = 3
S_WS, S_TMP, S_B1, S_OUT = 4, 8, 12, 16
P_X, P_WQKV, P_WO, P_BX, P_W1, P_B1, P_W2, P_B2, P_OUT, P_DBG, P_WSP = 20, 22, 24, 26, 28, 30, 32, 34, 36, 38, 40
sS, sC, sG, sJ, sW, sT, sPAIR, sSPIN = 42, 43, 44, 45, 46, 47, 48, 49
sM1 = 50
sM2 = 58
sM0 = 66
sO = 74
sA, sB, sCc, sD = 90, 91, 92, 93
sMK = 94
sTS = 96
sGT = 98
sERR = 99
sEP = 1
sSTI = 100
sFAST = 101
sFD = 27
sPFC = 26
sFH = 25


def srd(n):
    return 's[%d:%d]' % (n, n + 3)


def vr(n, k=4):
    return 'v[%d:%d]' % (n, n + k - 1)


def ar(n, k=4):
    return 'a[%d:%d]' % (n, n + k - 1)


def sp(n):
    return 's[%d:%d]' % (n, n + 1)


def f2h(x):
    return '0x%08x' % struct.unpack('<I', struct.pack('<f', x))[0]


V_T, V_STAMP = 254, 255
V_TOK, V_G = 250, 251
MFMA = 'v_mfma_f32_16x16x32_bf16'


DIAG2 = '--diag2' in sys.argv
PREFPOS = ([x[7:] for x in sys.argv if x.startswith('--pref=')] + ['a'])[0]
PREF = PREFPOS != 'n'
TOUCH = '--notouch' not in sys.argv
STWAIT = '--stwait' in sys.argv
P2EARLY = '--p2early' in sys.argv
SKEW = [int(x[7:]) for x in sys.argv if x.startswith('--skew=')]
DBGST = '--dbgst' in sys.argv


def stamp2():
    if DIAG2:
        stamp()


def stamp():
    if not DIAG:
        return
    a('%s %s' % ('s_memrealtime' if '--rt' in sys.argv else 's_memtime', sp(sTS)))
    a('s_waitcnt lgkmcnt(0)')
    a('s_lshl_b64 exec, 1, s%d' % sSTI)
    a('v_mov_b32 v%d, s%d' % (V_STAMP, sTS))
    a('s_mov_b64 exec, -1')
    a('s_add_u32 s%d, s%d, 1' % (sSTI, sSTI))


ool = []


class OutOfLine:
    def __enter__(self):
        self.saved = a.ins
        a.ins = []

    def __exit__(self, *exc):
        ool.extend(a.ins)
        a.ins = self.saved


lab_no = [0]


def newlab(p):
    lab_no[0] += 1
    return '%s_%d' % (p, lab_no[0])


def emit_pref():
    a('s_getpc_b64 s[96:97]')
    a.label('L_pc')
    a('s_lshr_b32 s%d, s2, 3' % sA)
    a('s_lshl_b32 s%d, s%d, 11' % (sA, sA))
    a('s_lshl_b32 s%d, s%d, 9' % (sB, sW))
    a('s_add_u32 s%d, s%d, s%d' % (sA, sA, sB))
    a('v_lshlrev_b32 v21, 3, v0')
    a('v_add_u32 v21, s%d, v21' % sA)
    a('v_min_u32 v21, L_code_end-L_pc-8, v21')
    a('global_load_dwordx2 v[58:59], v21, s[96:97]')


def skew_store(point, have=False):
    if not SKEW or SKEW[0] != point:
        return
    if not have:
        a('s_memrealtime s[96:97]')
        a('s_waitcnt lgkmcnt(0)')
    build_srd(S_TMP, P_DBG, 256)
    a('s_and_b32 s%d, s2, 15' % sA)
    a('s_or_b32 s%d, s%d, s%d' % (sA, sA, sW))
    a('s_cmp_eq_u32 s%d, 0' % sA)
    a('s_cselect_b32 s%d, 0, 0x%x' % (sA, INV))
    a('s_lshr_b32 s%d, s2, 2' % sB)
    a('s_or_b32 s%d, s%d, s%d' % (sA, sA, sB))
    a('v_mov_b32 v21, s%d' % sA)
    a('v_mov_b32 v22, s96')
    a('s_mov_b64 exec, 1')
    a('buffer_store_dword v22, v21, %s, 0 offen' % srd(S_TMP))
    a.vm_issued -= 1
    a('s_mov_b64 exec, -1')


def build_srd(dst, ptr, nbytes):
    a('s_mov_b32 s%d, s%d' % (dst, ptr))
    a('s_and_b32 s%d, s%d, 0xffff' % (dst + 1, ptr + 1))
    a('s_mov_b32 s%d, 0x%x' % (dst + 2, nbytes))
    a('s_mov_b32 s%d, 0x20000' % (dst + 3))


def poll(voff, off2=None, sleep=None):
    lab, done = newlab('L_poll'), newlab('L_polldone')
    a('s_mov_b64 exec, %s' % sp(sMK))
    a('s_mov_b32 s%d, 0' % sSPIN)
    a.label(lab)
    a('buffer_load_dword v253, v%d, %s, 0 offen sc1' % (voff, srd(S_WS)))
    if off2 is not None:
        a('buffer_load_dword v245, v%d, %s, 0 offen offset:%d sc1' % (voff, srd(S_WS), off2))
    a('s_waitcnt vmcnt(0)')
    if off2 is not None:
        a('v_xor_b32 v245, s%d, v245' % sT)
        a('v_xor_b32 v253, s%d, v253' % sT)
        a('v_or_b32 v253, v253, v245')
        a('v_cmp_ne_u32 vcc, 0, v253')
    else:
        a('v_cmp_ne_u32 vcc, s%d, v253' % sT)
    a('s_nop 4')
    a('s_cbranch_vccz %s' % done)
    if sleep or SLEEP:
        a('s_sleep %d' % (sleep or SLEEP))
    a('s_add_u32 s%d, s%d, 1' % (sSPIN, sSPIN))
    a('s_cmp_lt_u32 s%d, %d' % (sSPIN, SPIN_LIMIT))
    a('s_cbranch_scc1 %s' % lab)
    a('s_add_u32 s%d, s%d, 1' % (sERR, sERR))
    a.label(done)
    a('s_mov_b64 exec, -1')


DPOLL = int(([x[8:] for x in sys.argv if x.startswith('--dpoll=')] + ['0'])[0])


def poll_dual(voff, base, off2=None):
    lab, done = newlab('L_dp'), newlab('L_dpdone')
    regs = [(base, base + 1), (base + 2, base + 3)]

    def issue(k):
        a('buffer_load_dword v%d, v%d, %s, 0 offen sc1' % (regs[k][0], voff, srd(S_WS)))
        if off2 is not None:
            a('buffer_load_dword v%d, v%d, %s, 0 offen offset:%d sc1' % (regs[k][1], voff, srd(S_WS), off2))

    def check(k):
        a('s_waitcnt vmcnt(%d)' % (2 if off2 is not None else 1))
        if off2 is not None:
            a('v_xor_b32 v%d, s%d, v%d' % (regs[k][1], sT, regs[k][1]))
            a('v_xor_b32 v%d, s%d, v%d' % (regs[k][0], sT, regs[k][0]))
            a('v_or_b32 v%d, v%d, v%d' % (regs[k][0], regs[k][0], regs[k][1]))
            a('v_cmp_ne_u32 vcc, 0, v%d' % regs[k][0])
        else:
            a('v_cmp_ne_u32 vcc, s%d, v%d' % (sT, regs[k][0]))
        a('s_nop 4')
        a('s_cbranch_vccz %s' % done)
    n0 = a.vm_issued
    a('s_mov_b64 exec, %s' % sp(sMK))
    a('s_mov_b32 s%d, 0' % sSPIN)
    issue(0)
    a('s_sleep %d' % DPOLL)
    issue(1)
    a.label(lab)
    check(0)
    issue(0)
    check(1)
    issue(1)
    a('s_add_u32 s%d, s%d, 1' % (sSPIN, sSPIN))
    a('s_cmp_lt_u32 s%d, %d' % (sSPIN, SPIN_LIMIT))
    a('s_cbranch_scc1 %s' % lab)
    a('s_add_u32 s%d, s%d, 1' % (sERR, sERR))
    a.label(done)
    a('s_mov_b64 exec, -1')
    a.vm_issued = n0


sMK2 = 30


def early_issue(dst, voff, off=0):
    a('s_mov_b64 exec, %s' % sp(sMK2))
    a('buffer_load_dword v%d, v%d, %s, 0 offen offset:%d sc1' % (dst, voff, srd(S_WS), off))
    a('s_mov_b64 exec, -1')
    return a.vm_mark()


def early_check(dst, voff, mark, off=0):
    ok = newlab('L_early')
    a.wait_vm(mark)
    a('s_mov_b64 exec, %s' % sp(sMK2))
    a('v_cmp_ne_u32 vcc, s%d, v%d' % (sT, dst))
    a('s_mov_b64 exec, -1')
    a('s_nop 2')
    a('s_cbranch_vccz %s' % ok)
    a('s_mov_b64 %s, %s' % (sp(sMK), sp(sMK2)))
    n = a.vm_issued
    if off:
        a('v_add_u32 v253, %d, v%d' % (off, voff))
        a('v_mov_b32 v%d, v253' % dst)
        poll(dst)
    else:
        poll(voff)
    a.vm_issued = n
    a.label(ok)


def store(fmt, cond=None):
    if cond is None or NOFAST or (FASTMODE == 'flags' and cond in (sFD, sFH, sPC)):
        a(fmt + ' sc1')
        return
    slow, done = newlab('L_slow'), newlab('L_st')
    a('s_cmp_eq_u32 s%d, 0' % cond)
    a('s_cbranch_scc1 %s' % slow)
    a(fmt)
    a('s_branch %s' % done)
    a.label(slow)
    a(fmt + ' sc1')
    a.vm_issued -= 1
    a.label(done)


def set_flags(voff, nlanes, cond=None, val=V_T, between=()):
    mark = a.vm_mark()
    for x in between:
        a(x)
    a.wait_vm(mark)
    a('s_mov_b64 exec, %d' % ((1 << nlanes) - 1))
    store('buffer_store_dword v%d, v%d, %s, 0 offen' % (val, voff, srd(S_WS)), cond)
    a('s_mov_b64 exec, -1')


def xg_reduce(x, t, op='v_add_f32'):
    return ['v_mov_b32 v%d, v%d' % (t, x),
            'v_permlane32_swap_b32 v%d, v%d' % (x, t),
            '%s v%d, v%d, v%d' % (op, x, x, t),
            'v_mov_b32 v%d, v%d' % (t, x),
            'v_permlane16_swap_b32 v%d, v%d' % (x, t),
            '%s v%d, v%d, v%d' % (op, x, x, t)]


EPS = 1e-5


def stats_finish(s1, s2, t, double_ln):
    o = ['v_mul_f32 v%d, %s, v%d' % (s1, f2h(1.0 / 448), s1),
         'v_mul_f32 v%d, %s, v%d' % (s2, f2h(1.0 / 448), s2),
         'v_fma_f32 v%d, -v%d, v%d, v%d' % (s2, s1, s1, s2),
         'v_max_f32 v%d, 0, v%d' % (s2, s2),
         'v_add_f32 v%d, %s, v%d' % (t, f2h(EPS), s2),
         'v_rsq_f32 v%d, v%d' % (t, t)]
    if not double_ln:
        o += ['v_mov_b32 v%d, v%d' % (s2, t)]
    else:
        o += ['v_mul_f32 v%d, v%d, v%d' % (s2, s2, t),
              'v_fmaak_f32 v%d, v%d, v%d, %s' % (s2, s2, t, f2h(EPS)),
              'v_rsq_f32 v%d, v%d' % (s2, s2),
              'v_mul_f32 v%d, v%d, v%d' % (s2, s2, t)]
    return o


def pair_base(dst, arr):
    a('s_mul_i32 s%d, s%d, %d' % (dst, sPAIR, arr[1] - arr[0]))
    a('s_add_u32 s%d, s%d, %d' % (dst, dst, arr[0]))


def quarter_offsets(n, stride):
    for t in range(n):
        if t:
            a('s_add_u32 s%d, s%d, %d' % (sO + 4 * t, sO + 4 * (t - 1), stride))
        for q in range(1, 4):
            a('s_add_u32 s%d, s%d, %d' % (sO + 4 * t + q, sO + 4 * t, 4096 * q))


sPX, sPS, sPF, sPC, sPX2 = 36, 37, 28, 29, 33


def stats_flags(delta, lsh):
    a('v_lshlrev_b32 v241, %d, v0' % lsh)
    a('s_add_u32 s%d, s%d, %d' % (sA, sPF, delta))
    a('v_add_u32 v241, s%d, v241' % sA)
    a('s_mov_b64 exec, 3')
    store('buffer_store_dword v%d, v241, %s, 0 offen' % (V_T, srd(S_WS)), sPFC)
    a('s_mov_b64 exec, -1')


a('s_cmp_ge_u32 s2, 256')
a('s_cbranch_scc1 L_end')
if '--perm' in sys.argv:
    a('s_and_b32 s90, s2, 7')
    a('s_lshr_b32 s91, s2, 3')
    a('s_and_b32 s91, s91, 7')
    a('s_and_b32 s2, s2, 0xc0')
    a('s_lshl_b32 s90, s90, 3')
    a('s_or_b32 s2, s2, s90')
    a('s_or_b32 s2, s2, s91')
SPRE = int(([x[7:] for x in sys.argv if x.startswith('--spre=')] + ['0'])[0])
if SPRE:
    a('s_getpc_b64 s[96:97]')
a('s_load_dwordx16 s[20:35], s[0:1], 0')
a('s_load_dwordx4 s[36:39], s[0:1], 64')
a('s_load_dwordx2 s[40:41], s[0:1], 80')
for i in range(SPRE):
    a('s_load_dword s98, s[96:97], %d' % (256 + 128 * i))
a('s_getreg_b32 s%d, hwreg(HW_REG_XCC_ID, 0, 4)' % sXCC)
a('s_and_b32 s%d, s2, 7' % sA)
a('s_lshr_b32 s%d, s2, 3' % sB)
a('s_lshr_b32 s%d, s%d, 4' % (sCc, sB))
a('s_lshl_b32 s%d, s%d, 1' % (sS, sA))
a('s_add_u32 s%d, s%d, s%d' % (sS, sS, sCc))
a('s_and_b32 s%d, s%d, 15' % (sC, sB))
a('s_lshr_b32 s%d, s%d, 3' % (sA, sC))
a('s_lshl_b32 s%d, s%d, 1' % (sG, sS))
a('s_add_u32 s%d, s%d, s%d' % (sG, sG, sA))
a('s_and_b32 s%d, s%d, 7' % (sJ, sC))
a('s_mov_b32 s%d, 0' % sERR)
if SKEW and SKEW[0] == 0:
    a('s_memrealtime s[96:97]')
a('v_lshrrev_b32 v2, 6, v0')
a('v_and_b32 v0, 63, v0')
a('v_readfirstlane_b32 s%d, v2' % sW)
a('v_lshlrev_b32 v1, 4, v0')
if DIAG:
    a('v_mov_b32 v%d, 0' % V_STAMP)
    a('s_mov_b32 s%d, 0' % sSTI)
stamp()
a('v_and_b32 v%d, 15, v0' % V_TOK)
a('v_lshrrev_b32 v%d, 4, v0' % V_G)
sSTG = 40
a('s_waitcnt lgkmcnt(0)')
if DBG:
    a('s_memtime s[26:27]')
    a('s_memrealtime s[0:1]')
    a('s_waitcnt lgkmcnt(0)')
skew_store(0, True)
build_srd(S_WS, P_WSP, L.WS_USED)
a('buffer_load_dword v%d, off, %s, 0 sc1' % (V_T, srd(S_WS)))
a('s_lshl_b32 s%d, s%d, 14' % (sSTG, sW))
a('s_add_u32 s%d, s%d, %d' % (sSTG, sSTG, L.L_R2))

build_srd(S_TMP, P_X, 2048 * 896)
a('v_mul_u32_u24 v2, 896, v%d' % V_TOK)
a('v_lshl_add_u32 v2, v%d, 3, v2' % V_G)
a('s_lshr_b32 s%d, s%d, 1' % (sA, sC))
a('s_lshl_b32 s%d, s%d, 3' % (sB, sS))
a('s_add_u32 s%d, s%d, s%d' % (sO + 0, sA, sB))
a('s_and_b32 s%d, s%d, 1' % (sA, sC))
a('s_mul_i32 s%d, s%d, 7' % (sA, sA))
a('s_add_u32 s%d, s%d, s%d' % (sO + 1, sA, sW))
a('s_cmp_lt_u32 s%d, 3' % sW)
a('s_cselect_b32 s%d, 0, 0x%x' % (sO + 2, INV))
a('s_mul_i32 s%d, s%d, 14336' % (sA, sO + 0))
a('s_lshl_b32 s%d, s%d, 6' % (sB, sO + 1))
a('s_add_u32 s%d, s%d, s%d' % (sA, sA, sB))
a('v_or_b32 v3, s%d, v2' % (sO + 2))
a('buffer_load_dwordx2 v[10:11], v2, %s, s%d offen' % (srd(S_TMP), sA))
a('buffer_load_dwordx2 v[12:13], v2, %s, s%d offen offset:32' % (srd(S_TMP), sA))
a('buffer_load_dwordx2 v[14:15], v3, %s, s%d offen offset:256' % (srd(S_TMP), sA))
a('buffer_load_dwordx2 v[16:17], v3, %s, s%d offen offset:288' % (srd(S_TMP), sA))

build_srd(S_TMP, P_WQKV, 448 * 2688)
qMAT, qU, qINV = sO + 3, sO + 4, sO + 5
a('s_lshl_b32 s%d, s%d, 4' % (sA, sW))
a('s_add_u32 s%d, s%d, s%d' % (sA, sA, sS))
a('s_cmp_lt_u32 s%d, 42' % sA)
a('s_cselect_b32 s%d, 0, 0x%x' % (qINV, INV))
a('s_min_u32 s%d, s%d, 41' % (sA, sA))
a('s_mul_i32 s%d, s%d, 4682' % (qMAT, sA))
a('s_lshr_b32 s%d, s%d, 16' % (qMAT, qMAT))
a('s_mul_i32 s%d, s%d, 14' % (sB, qMAT))
a('s_sub_u32 s%d, s%d, s%d' % (qU, sA, sB))
a('s_mul_i32 s%d, s%d, %d' % (sA, qU, 32 * 2688))
a('s_mul_i32 s%d, s%d, 896' % (sB, qMAT))
a('s_add_u32 s%d, s%d, s%d' % (sA, sA, sB))
a('s_mul_i32 s%d, s%d, 56' % (sB, sC))
a('s_add_u32 s%d, s%d, s%d' % (sA, sA, sB))
a('v_lshrrev_b32 v4, 2, v0')
a('v_mul_u32_u24 v4, 2688, v4')
a('v_and_b32 v5, 3, v0')
a('v_lshl_add_u32 v4, v5, 4, v4')
a('v_or_b32 v4, s%d, v4' % qINV)
a('s_mov_b32 m0, s%d' % sSTG)
a('s_add_u32 s%d, s%d, %d' % (sB, sA, 16 * 2688))
a('buffer_load_dwordx4 v4, %s, s%d offen lds' % (srd(S_TMP), sA))
a('s_add_u32 m0, s%d, 1024' % sSTG)
a('s_nop 0')
a('buffer_load_dwordx4 v4, %s, s%d offen lds' % (srd(S_TMP), sB))

bINV, bDST, bSTR, bINV2, bDST2, sSTRD = 20, 21, 22, 23, 24, 25


def emit_p2_issue():
    a('s_cmp_eq_u32 s%d, 3' % sW)
    a('s_cbranch_scc1 L_p2_w1')
    a('s_lshl_b32 s%d, s%d, 5' % (sA, sW))
    a('s_add_u32 s%d, s%d, s%d' % (sA, sA, sG))
    a('s_cmp_lt_u32 s%d, 72' % sA)
    a('s_cselect_b32 s%d, 0, 0x%x' % (bINV, INV))
    a('s_cmp_eq_u32 s%d, 7' % sJ)
    a('s_cselect_b32 s%d, 0x%x, s%d' % (bINV, INV, bINV))
    a('s_min_u32 s%d, s%d, 71' % (sA, sA))
    a('s_min_u32 s%d, s%d, 6' % (sD, sJ))
    a('s_cmp_lt_u32 s%d, 16' % sA)
    a('s_cselect_b32 s%d, s%d, s%d' % (S_TMP, P_WO, P_W2))
    a('s_cselect_b32 s%d, s%d, s%d' % (S_TMP + 1, P_WO + 1, P_W2 + 1))
    a('s_mov_b32 s%d, 0x%x' % (S_TMP + 2, 1792 * 896))
    a('s_cselect_b32 s%d, 0x%x, s%d' % (S_TMP + 2, 448 * 896, S_TMP + 2))
    a('s_cselect_b32 s%d, 28, 32' % sB)
    a('s_cselect_b32 s%d, 0, 16' % sCc)
    a('s_mov_b32 s%d, %d' % (bSTR, 56 * 1024))
    a('s_cselect_b32 s%d, %d, s%d' % (bSTR, 16 * 1024, bSTR))
    a('s_mov_b32 s%d, %d' % (bDST, L.WD))
    a('s_cselect_b32 s%d, %d, s%d' % (bDST, L.WB, bDST))
    a('s_cselect_b32 s%d, 0x%x, 0' % (sO + 9, INV))
    a('s_and_b32 s%d, s%d, 0xffff' % (S_TMP + 1, S_TMP + 1))
    a('s_mov_b32 s%d, 0x20000' % (S_TMP + 3))
    a('s_sub_u32 s%d, s%d, s%d' % (sA, sA, sCc))
    a('s_lshl_b32 s%d, s%d, 10' % (sCc, sA))
    a('s_add_u32 s%d, s%d, s%d' % (bDST, bDST, sCc))
    a('s_lshl_b32 s%d, s%d, 2' % (sCc, sD))
    a('s_mul_i32 s%d, s%d, s%d' % (sCc, sCc, bSTR))
    a('s_add_u32 s%d, s%d, s%d' % (bDST, bDST, sCc))
    a('s_mul_i32 s%d, s%d, s%d' % (sA, sA, sB))
    a('s_mul_i32 s%d, s%d, 896' % (sA, sA))
    a('s_lshl_b32 s%d, s%d, 7' % (sB, sD))
    a('s_add_u32 s%d, s%d, s%d' % (sO + 10, sA, sB))
    a('s_mov_b32 s%d, 896' % sSTRD)
    a('s_mov_b32 s%d, 0x%x' % (bINV2, INV))
    a('s_mov_b32 s%d, 0' % bDST2)
    a('s_mov_b32 s%d, 0' % (sO + 11))
    a('s_branch L_p2_go')
    a.label('L_p2_w1')
    build_srd(S_TMP, P_W1, 448 * 3584)
    a('s_lshl_b32 s%d, s%d, 4' % (sA, sS))
    a('s_add_u32 s%d, s%d, s%d' % (sA, sA, sC))
    a('s_cmp_lt_u32 s%d, 136' % sA)
    a('s_cselect_b32 s%d, 0, 0x%x' % (bINV2, INV))
    a('s_mov_b32 s%d, 0' % bINV)
    a('s_mov_b32 s%d, 0' % (sO + 9))
    a('s_mov_b32 s%d, %d' % (bSTR, 14 * 1024))
    a('s_mov_b32 s%d, 3584' % sSTRD)
    for dst, src, add in ((bDST, sO + 10, 0), (bDST2, sO + 11, 256)):
        a('s_add_u32 s%d, s%d, %d' % (sB, sA, add))
        a('s_min_u32 s%d, s%d, 391' % (sB, sB))
        a('s_mul_i32 s%d, s%d, 4682' % (sCc, sB))
        a('s_lshr_b32 s%d, s%d, 16' % (sCc, sCc))
        a('s_mul_i32 s%d, s%d, 14' % (sD, sCc))
        a('s_sub_u32 s%d, s%d, s%d' % (sB, sB, sD))
        a('s_mul_i32 s%d, s%d, %d' % (src, sB, 32 * 3584))
        a('s_lshl_b32 s%d, s%d, 7' % (sD, sCc))
        a('s_add_u32 s%d, s%d, s%d' % (src, src, sD))
        a('s_mul_i32 s%d, s%d, 56' % (sD, sCc))
        a('s_add_u32 s%d, s%d, s%d' % (sD, sD, sB))
        a('s_lshl_b32 s%d, s%d, 10' % (sD, sD))
        a('s_add_u32 s%d, s%d, %d' % (dst, sD, L.WC))
    a.label('L_p2_go')
    a('v_lshrrev_b32 v6, 3, v0')
    a('v_mul_lo_u32 v6, v6, s%d' % sSTRD)
    a('v_and_b32 v5, 7, v0')
    a('v_lshl_add_u32 v6, v5, 4, v6')
    a('v_or_b32 v8, s%d, v6' % bINV2)
    a('v_or_b32 v6, s%d, v6' % bINV)
    a('v_cmp_lt_u32 vcc, 31, v0')
    a('v_mov_b32 v7, s%d' % (sO + 9))
    a('v_cndmask_b32 v7, 0, v7, vcc')
    a('v_or_b32 v7, v7, v6')
    a('s_lshl_b32 s%d, s%d, 3' % (sB, sSTRD))
    for slot in range(2):
        src = sO + 10 + slot
        for q in range(4):
            a('s_add_u32 m0, s%d, %d' % (sSTG, 2048 + 4096 * slot + 1024 * q))
            if q:
                a('s_add_u32 s%d, s%d, s%d' % (src, src, sB))
            else:
                a('s_nop 0')
            a('buffer_load_dwordx4 v%d, %s, s%d offen lds' % (8 if slot else (7 if q == 3 else 6), srd(S_TMP), src))


if P2EARLY:
    emit_p2_issue()
build_srd(S_B1, P_B1, 1792 * 2)
build_srd(S_OUT, P_OUT, 2048 * 896)
a('v_bfe_u32 v18, v0, 2, 2')
a('v_lshl_add_u32 v18, v%d, 2, v18' % V_G)
a('v_and_b32 v19, 3, v0')
a('v_lshlrev_b32 v19, 3, v19')
if PREFPOS == 'b':
    emit_pref()
if TOUCH:
    a('v_lshlrev_b32 v21, 21, v0')
    a('s_mov_b64 exec, 0x1ffff')
    a('buffer_load_dword v253, v21, %s, 0 offen' % srd(S_WS))
    a('s_mov_b64 exec, -1')
    a('s_waitcnt vmcnt(%d)' % ((9 if P2EARLY else 1) + (PREFPOS == 'b')))
else:
    a('s_waitcnt vmcnt(%d)' % ((8 if P2EARLY else 0) + (PREFPOS == 'b')))
stamp()

a('v_readfirstlane_b32 s%d, v%d' % (sEP, V_T))
a('s_mov_b32 s%d, 0x9E3779B1' % sA)
a('v_mul_lo_u32 v%d, v%d, s%d' % (V_T, V_T, sA))
a('v_add_u32 v%d, 0x7F4A7C15, v%d' % (V_T, V_T))
a('v_and_b32 v%d, -16, v%d' % (V_T, V_T))
a('v_lshl_add_u32 v20, v18, 6, v19')
a('v_add_u32 v20, s%d, v20' % sSTG)
for hf in range(2):
    a('ds_read_b64_tr_b16 %s, v20 offset:%d' % (vr(24 + 4 * hf, 2), 32 * hf))
    a('ds_read_b64_tr_b16 %s, v20 offset:%d' % (vr(26 + 4 * hf, 2), 32 * hf + 1024))
a('v_readfirstlane_b32 s%d, v%d' % (sT, V_T))
a('s_mul_i32 s%d, s%d, 14' % (sA, sO + 0))
a('s_add_u32 s%d, s%d, s%d' % (sA, sA, sO + 1))
a('s_lshl_b32 s%d, s%d, 10' % (sB, sA))
a('s_add_u32 s%d, s%d, %d' % (sB, sB, L.XA[0]))
a('v_or_b32 v3, s%d, v1' % (sO + 2))
a('buffer_store_dwordx4 v[10:13], v1, %s, s%d offen sc1' % (srd(S_WS), sB))
a('s_add_u32 s%d, s%d, 4096' % (sB, sB))
a('buffer_store_dwordx4 v[14:17], v3, %s, s%d offen sc1' % (srd(S_WS), sB))
a('v_cmp_gt_u32 vcc, 12, v%d' % V_TOK)
a('s_mul_i32 s%d, s%d, 84' % (sB, sC))
a('s_mul_i32 s%d, s%d, 28' % (sCc, qMAT))
a('s_add_u32 s%d, s%d, s%d' % (sB, sB, sCc))
a('s_add_u32 s%d, s%d, s%d' % (sB, sB, qU))
a('s_lshl_b32 s%d, s%d, 10' % (sB, sB))
a('s_add_u32 s%d, s%d, %d' % (sB, sB, L.WA))
a('v_or_b32 v4, s%d, v1' % qINV)
a('s_waitcnt lgkmcnt(0)')
for p in range(4):
    a('v_cndmask_b32 v%d, 0, v%d, vcc' % (28 + p, 28 + p))
a('buffer_store_dwordx4 v[24:27], v4, %s, s%d offen sc1' % (srd(S_WS), sB))
a('s_add_u32 s%d, s%d, %d' % (sB, sB, 14 * 1024))
a('buffer_store_dwordx4 v[28:31], v4, %s, s%d offen sc1' % (srd(S_WS), sB))
a('v_mov_b32 v2, 0x3f803f80')
for k in range(2):
    x, s1, s2 = 10 + 4 * k, 110 + 2 * k, 111 + 2 * k
    a('v_mov_b32 v%d, 0' % s1)
    a('v_mov_b32 v%d, 0' % s2)
    for p in range(4):
        a('v_dot2_f32_bf16 v%d, v%d, v2, v%d' % (s1, x + p, s1))
        a('v_dot2_f32_bf16 v%d, v%d, v%d, v%d' % (s2, x + p, x + p, s2))
    for t in xg_reduce(s1, 114) + xg_reduce(s2, 115):
        a(t)
a('s_lshl_b32 s%d, s%d, 7' % (sB, sA))
a('s_add_u32 s%d, s%d, %d' % (sB, sB, L.SA[0]))
a('v_lshlrev_b32 v2, 3, v%d' % V_TOK)
a('v_or_b32 v3, s%d, v2' % (sO + 2))
a('s_mov_b64 exec, 0xffff')
a('buffer_store_dwordx2 v[110:111], v2, %s, s%d offen sc1' % (srd(S_WS), sB))
a('buffer_store_dwordx2 v[112:113], v3, %s, s%d offen offset:512 sc1' % (srd(S_WS), sB))
a('s_mov_b64 exec, -1')
crit_mark = a.vm_mark()
if not P2EARLY:
    emit_p2_issue()
a('s_lshl_b32 s%d, s%d, 5' % (sA, sO + 0))
a('s_add_u32 s%d, s%d, s%d' % (sA, sA, sO + 1))
a('s_lshl_b32 s%d, s%d, 2' % (sA, sA))
a('s_add_u32 s%d, s%d, %d' % (sA, sA, L.FX[0]))
a('v_lshlrev_b32 v2, 4, v0')
a('v_add_u32 v2, s%d, v2' % sA)
a('v_cmp_eq_u32 vcc, 1, v0')
a('v_mov_b32 v3, s%d' % (sO + 2))
a('v_cndmask_b32 v3, 0, v3, vcc')
a('v_or_b32 v2, v2, v3')
a('s_lshl_b32 s%d, s%d, 6' % (sA, sC))
a('s_lshl_b32 s%d, s%d, 2' % (sB, sS))
a('s_add_u32 s%d, s%d, s%d' % (sA, sA, sB))
a('s_add_u32 s%d, s%d, s%d' % (sA, sA, sW))
a('s_lshl_b32 s%d, s%d, 2' % (sA, sA))
a('s_add_u32 s%d, s%d, %d' % (sA, sA, L.FQ))
a('v_mov_b32 v3, s%d' % sA)
a('v_cmp_eq_u32 vcc, 2, v0')
a('v_cndmask_b32 v2, v2, v3, vcc')
a('s_lshl_b32 s%d, s%d, 4' % (sA, sS))
a('s_add_u32 s%d, s%d, s%d' % (sA, sA, sC))
a('s_lshl_b32 s%d, s%d, 2' % (sA, sA))
a('s_add_u32 s%d, s%d, %d' % (sA, sA, L.FXC))
a('s_cmp_eq_u32 s%d, 0' % sW)
a('s_cselect_b32 s%d, s%d, 0x%x' % (sA, sA, INV))
a('v_mov_b32 v3, s%d' % sA)
a('v_cmp_eq_u32 vcc, 3, v0')
a('v_cndmask_b32 v2, v2, v3, vcc')
a('v_or_b32 v3, s%d, v%d' % (sXCC, V_T))
a('v_cndmask_b32 v3, v%d, v3, vcc' % V_T)
stamp2()
a.wait_vm(crit_mark)
a('s_mov_b64 exec, 15')
a('buffer_store_dword v3, v2, %s, 0 offen sc1' % srd(S_WS))
a('s_mov_b64 exec, -1')
stamp()

if PREFPOS == 'a':
    emit_pref()
BTOUCH = '--btouch' in sys.argv
if BTOUCH:
    a('v_lshlrev_b32 v21, 6, v0')
    a('buffer_load_dword v60, v21, %s, 0 offen' % srd(S_B1))
    build_srd(S_TMP, P_B2, 896)
    a('buffer_load_dword v61, v21, %s, 0 offen' % srd(S_TMP))
skew_store(1)
a('s_waitcnt vmcnt(%d)' % (1 + (PREFPOS == 'a') + 2 * BTOUCH))
a('v_lshl_add_u32 v20, v18, 7, v19')
a('v_add_u32 v20, s%d, v20' % sSTG)
for slot in range(2):
    for t in range(4):
        a('ds_read_b64_tr_b16 %s, v20 offset:%d' % (vr(24 + 16 * slot + 4 * t, 2), 2048 + 4096 * slot + 32 * t))
        a('ds_read_b64_tr_b16 %s, v20 offset:%d' % (vr(26 + 16 * slot + 4 * t, 2), 2048 + 4096 * slot + 32 * t + 2048))
a('v_or_b32 v6, s%d, v1' % bINV)
a('v_or_b32 v8, s%d, v1' % bINV2)
a('s_waitcnt lgkmcnt(8)')
for t in range(4):
    a('buffer_store_dwordx4 %s, v6, %s, s%d offen sc1' % (vr(24 + 4 * t), srd(S_WS), bDST))
    if t < 3:
        a('s_add_u32 s%d, s%d, s%d' % (bDST, bDST, bSTR))
a('s_waitcnt lgkmcnt(0)')
for t in range(4):
    a('buffer_store_dwordx4 %s, v8, %s, s%d offen sc1' % (vr(40 + 4 * t), srd(S_WS), bDST2))
    if t < 3:
        a('s_add_u32 s%d, s%d, s%d' % (bDST2, bDST2, bSTR))
a('s_lshl_b32 s%d, s%d, 4' % (sA, sS))
a('s_add_u32 s%d, s%d, s%d' % (sA, sA, sC))
a('s_lshl_b32 s%d, s%d, 2' % (sA, sA))
a('s_add_u32 s%d, s%d, %d' % (sA, sA, L.FW1))
a('v_lshlrev_b32 v22, 10, v0')
a('v_add_u32 v22, s%d, v22' % sA)
a('v_cmp_eq_u32 vcc, 1, v0')
a('v_mov_b32 v23, s%d' % bINV2)
a('v_cndmask_b32 v23, 0, v23, vcc')
a('v_or_b32 v22, v22, v23')
a('s_cmp_eq_u32 s%d, 3' % sW)
a('s_cselect_b32 s%d, 0, 0x%x' % (sA, INV))
a('v_or_b32 v22, s%d, v22' % sA)

skew_store(3)
a('v_and_b32 v2, 1, v%d' % V_TOK)
a('v_lshlrev_b32 v3, 2, v%d' % V_G)
a('v_add_u32 v6, 2, v%d' % V_TOK)
for i in range(4):
    a('v_add_u32 v4, %d, v3' % i)
    a('v_cmp_eq_u32 vcc, %d, v2' % (i & 1))
    a('s_mov_b64 %s, vcc' % sp(sMK))
    a('v_cmp_ge_u32 vcc, v4, v6')
    a('s_and_b64 %s, vcc, %s' % (sp(sM1 + 2 * i), sp(sMK)))
    a('v_cmp_le_u32 vcc, v4, v%d' % V_TOK)
    a('s_and_b64 %s, vcc, %s' % (sp(sM2 + 2 * i), sp(sMK)))
a('s_lshl_b32 s%d, s%d, 3' % (sA, sS))
a('s_lshl_b32 s%d, s%d, 1' % (sB, sW))
a('s_add_u32 s%d, s%d, s%d' % (sGT, sA, sB))
a('s_cmp_eq_u32 s%d, 0' % sGT)
for i in range(4):
    a('s_cselect_b64 %s, 0, %s' % (sp(sM0 + 2 * i), sp(sM1 + 2 * i)))
a('s_mov_b32 s%d, 0' % sPAIR)

def a_flag_addr(dst):
    pair_base(sA, L.FX)
    a('s_lshl_b32 s%d, s%d, 7' % (sB, sGT))
    a('s_add_u32 s%d, s%d, s%d' % (sA, sA, sB))
    a('s_sub_u32 s%d, s%d, 128' % (sA, sA))
    a('v_and_b32 v%d, 48, v0' % dst)
    a('v_add_u32 v%d, v%d, v0' % (dst, dst))
    a('v_lshl_add_u32 v%d, v%d, 2, s%d' % (dst, dst, sA))
    a('s_mov_b32 s%d, 0x3fff3fff' % sMK)
    a('s_mov_b32 s%d, 0x3fff' % (sMK + 1))
    a('s_cmp_eq_u32 s%d, 0' % sGT)
    a('s_cselect_b32 s%d, 0x3fff0000, s%d' % (sMK, sMK))


a('s_lshl_b32 s%d, s%d, 8' % (sA, sC))
a('s_add_u32 s%d, s%d, %d' % (sA, sA, L.FQ))
a('v_lshl_add_u32 v2, v0, 2, s%d' % sA)
a_flag_addr(3)
a('s_lshl_b32 s%d, s%d, 6' % (sA, sS))
a('s_add_u32 s%d, s%d, %d' % (sA, sA, L.FXC - 48 * 4))
a('v_lshl_add_u32 v4, v0, 2, s%d' % sA)
a('v_cmp_lt_u32 vcc, 47, v0')
a('v_cndmask_b32 v3, v3, v4, vcc')
a('v_mov_b32 v5, -1')
a('v_mov_b32 v6, -16')
a('v_cndmask_b32 v5, v5, v6, vcc')
a('s_or_b32 s%d, s%d, 0xffff0000' % (sMK + 1, sMK + 1))
a('s_mov_b32 s%d, 0' % sSPIN)
a.label('L_poll0')
a('buffer_load_dword v7, v2, %s, 0 offen sc1' % srd(S_WS))
a('s_mov_b64 exec, %s' % sp(sMK))
a('buffer_load_dword v8, v3, %s, 0 offen sc1' % srd(S_WS))
a('s_waitcnt vmcnt(0)')
a('v_and_b32 v9, v5, v8')
a('v_cmp_ne_u32 vcc, s%d, v9' % sT)
a('s_mov_b64 exec, -1')
a('s_mov_b64 %s, vcc' % sp(sTS))
a('v_cmp_ne_u32 vcc, s%d, v7' % sT)
a('s_or_b64 vcc, vcc, %s' % sp(sTS))
a('s_cbranch_vccz L_poll0_done')
a('s_add_u32 s%d, s%d, 1' % (sSPIN, sSPIN))
a('s_cmp_lt_u32 s%d, %d' % (sSPIN, SPIN_LIMIT))
a('s_cbranch_scc1 L_poll0')
a('s_add_u32 s%d, s%d, 1' % (sERR, sERR))
a.label('L_poll0_done')
a('s_mov_b64 exec, 3')
a('buffer_store_dword v%d, v22, %s, 0 offen sc1' % (V_T, srd(S_WS)))
a('s_mov_b64 exec, -1')
skew_store(2)
a('v_and_b32 v9, 15, v8')
a('v_cmp_ne_u32 vcc, s%d, v9' % sXCC)
a('s_and_b32 s%d, vcc_hi, 0xffff0000' % sA)
a('s_cmp_eq_u32 s%d, 0' % sA)
a('s_cselect_b32 s%d, 1, 0' % sFAST)
stamp()
AQ, AK, AV, HACC = 2, 18, 34, 50
WBUF = [66, 90]
XR = 114
CSACC = 186
STR = 210
SM, SR = 234, 237
NR, LOOK = 6, 4
A_ONES = 240


def a_xload(u):
    slot = u % NR
    return ['buffer_load_dwordx4 %s, v1, %s, s%d offen offset:%d sc1' %
            (vr(XR + (slot * 2 + t) * 4), srd(S_WS), sO + 4 * (t + 1) + (u >> 2), 1024 * (u & 3)) for t in range(2)]


def a_offsets():
    pair_base(sA, L.XA)
    a('s_mul_i32 s%d, s%d, 14336' % (sB, sGT))
    a('s_add_u32 s%d, s%d, s%d' % (sO + 4, sA, sB))
    a('s_add_u32 s%d, s%d, 14336' % (sO + 8, sO + 4))
    for t in range(1, 3):
        for q in range(1, 4):
            a('s_add_u32 s%d, s%d, %d' % (sO + 4 * t + q, sO + 4 * t, 4096 * q))
    a('s_lshl_b32 s%d, s%d, 3' % (sB, sS))
    a('s_max_u32 s%d, s%d, 1' % (sB, sB))
    a('s_sub_u32 s%d, s%d, 1' % (sB, sB))
    a('s_mul_i32 s%d, s%d, 14336' % (sB, sB))
    a('s_add_u32 s%d, s%d, s%d' % (sO + 0, sA, sB))
    a('s_lshl_b32 s%d, s%d, 12' % (sB, sW))
    a('s_add_u32 s%d, s%d, s%d' % (sO + 0, sO + 0, sB))
    a('s_add_u32 s%d, s%d, %d' % (sO + 1, sB, L.L_R2))


def a_setup():
    if FASTMODE == 'flags':
        a('s_mov_b32 s%d, 0' % sFD)
        a('s_mov_b32 s%d, 0' % sFH)
    elif FASTMODE == 'p0':
        a('s_xor_b32 s%d, s%d, 1' % (sFD, sPAIR))
        a('s_and_b32 s%d, s%d, s%d' % (sFD, sFD, sFAST))
        a('s_mov_b32 s%d, s%d' % (sFH, sFD))
    elif FASTMODE == 'small':
        a('s_mov_b32 s%d, s%d' % (sFD, sFAST))
        a('s_mov_b32 s%d, 0' % sFH)
    elif FASTMODE == 'smallp0':
        a('s_mov_b32 s%d, s%d' % (sFD, sFAST))
        a('s_xor_b32 s%d, s%d, 1' % (sFH, sPAIR))
        a('s_and_b32 s%d, s%d, s%d' % (sFH, sFH, sFAST))
    else:
        a('s_mov_b32 s%d, s%d' % (sFD, sFAST))
        a('s_mov_b32 s%d, s%d' % (sFH, sFAST))
    pair_base(sA, L.SA)
    a('s_mul_i32 s%d, s%d, 1792' % (sB, sGT))
    a('s_add_u32 s%d, s%d, s%d' % (sO + 13, sA, sB))
    a('s_add_u32 s%d, s%d, 1792' % (sO + 14, sO + 13))
    a('s_sub_u32 s%d, s%d, 1792' % (sO + 12, sO + 13))
    a('s_cmp_eq_u32 s%d, 0' % sGT)
    a('s_cselect_b32 s%d, s%d, s%d' % (sO + 12, sO + 13, sO + 12))
    a('v_and_b32 v%d, 15, v0' % V_TOK)
    a('v_lshrrev_b32 v%d, 4, v0' % V_G)
    a('v_lshlrev_b32 v240, 3, v%d' % V_TOK)
    a('v_lshl_add_u32 v240, v%d, 7, v240' % V_G)
    a('v_mov_b32 v242, 0x%x' % INV)
    a('v_cmp_lt_u32 vcc, 1, v%d' % V_G)
    a('v_cndmask_b32 v241, 0, v242, vcc')
    a('v_or_b32 v241, v241, v240')
    a('v_add_u32 v243, %d, v1' % (56 * 1024))
    a('v_lshlrev_b32 v244, 4, v%d' % V_G)
    a('v_add_u32 v244, %d, v244' % L.L_CSA)
    a('v_lshlrev_b32 v245, 2, v%d' % V_TOK)
    a('v_add_u32 v245, %d, v245' % L.L_CSA)
    a('s_mul_i32 s%d, s%d, 384' % (sA, sW))
    a('s_add_u32 s%d, s%d, %d' % (sA, sA, L.L_STA))
    a('v_lshl_add_u32 v162, v%d, 2, s%d' % (V_TOK, sA))
    a('v_lshl_add_u32 v163, v%d, 4, s%d' % (V_G, sA))
    a('s_lshl_b32 s%d, s%d, 7' % (sA, sJ))
    a('s_add_u32 s%d, s%d, %d' % (sA, sA, L.FP))
    a('v_lshl_add_u32 v248, v0, 2, s%d' % sA)
    a('s_lshr_b32 s%d, s%d, 1' % (sB, sW))
    a('s_lshl_b32 s%d, s%d, 2' % (sCc, sG))
    a('s_add_u32 s%d, s%d, s%d' % (sB, sB, sCc))
    a('s_lshl_b32 s%d, s%d, 5' % (sB, sB))
    a('s_and_b32 s%d, s%d, 1' % (sA, sW))
    a('s_add_u32 s%d, s%d, s%d' % (sB, sB, sA))
    a('s_min_u32 s%d, s%d, 6' % (sA, sJ))
    a('s_lshl_b32 s%d, s%d, 1' % (sA, sA))
    a('s_add_u32 s%d, s%d, s%d' % (sB, sB, sA))
    a('s_lshl_b32 s%d, s%d, 2' % (sB, sB))
    a('s_add_u32 s%d, s%d, %d' % (sB, sB, L.FX[0] - 32 * 256))
    a('v_lshl_add_u32 v249, v0, 8, s%d' % sB)
    a('v_cmp_lt_u32 vcc, 31, v0')
    a('v_cndmask_b32 v248, v248, v249, vcc')
    a('s_lshr_b32 s%d, s%d, 3' % (sA, sC))
    a('s_mul_i32 s%d, s%d, 7' % (sA, sA))
    a('s_min_u32 s%d, s%d, 6' % (sB, sJ))
    a('s_add_u32 s%d, s%d, s%d' % (sA, sA, sB))
    a('s_mul_i32 s%d, s%d, 112' % (sA, sA))
    a('s_add_u32 s%d, s%d, %d' % (sA, sA, L.FW1 - 34 * 4))
    a('v_lshl_add_u32 v249, v0, 2, s%d' % sA)
    a('v_cmp_lt_u32 vcc, 33, v0')
    a('v_cndmask_b32 v248, v248, v249, vcc')
    a('s_lshl_b32 s%d, s%d, 7' % (sA, sS))
    a('s_add_u32 s%d, s%d, %d' % (sA, sA, L.FH))
    a('v_and_b32 v247, 15, v0')
    a('v_lshl_add_u32 v247, v247, 2, s%d' % sA)
    a('s_lshl_b32 s%d, s%d, 7' % (sB, sGT))
    a('s_add_u32 s%d, s%d, %d' % (sB, sB, L.FX[1] - 128))
    a('v_lshl_add_u32 v253, v0, 2, s%d' % sB)
    a('s_cmp_eq_u32 s%d, 0' % sW)
    a('s_cselect_b32 s%d, 0, 16' % sA)
    a('v_cmp_gt_u32 vcc, s%d, v0' % sA)
    a('v_cndmask_b32 v247, v247, v253, vcc')
    a('s_mov_b32 s%d, 0x3fff3fff' % sMK2)
    a('s_mov_b32 s%d, 0' % (sMK2 + 1))
    a('s_cmp_eq_u32 s%d, 0' % sS)
    a('s_cselect_b32 s%d, 0x3fff, s%d' % (sMK2, sMK2))
    a('v_and_b32 v253, 15, v0')
    a('v_lshlrev_b32 v253, 2, v253')
    a('v_add_u32 v253, %d, v253' % L.FX[1])
    a('s_cmp_eq_u32 s%d, 0' % sGT)
    a('s_cselect_b64 vcc, -1, 0')
    a('v_cndmask_b32 v247, v247, v253, vcc')


stat_loads = ['buffer_load_dwordx2 %s, v%d, %s, s%d offen offset:%d sc1' %
              (vr(STR + (t * 4 + i) * 2, 2), 241 if i == 3 else 240, srd(S_WS), sO + 12 + t, 512 * i)
              for t in range(3) for i in range(4)]


def a_wread(u):
    b = WBUF[u & 1]
    o = []
    for p in range(6):
        if p < 4:
            o.append('ds_read_b128 %s, v1 offset:%d' % (vr(b + 4 * p), L.L_WA + (p * 14 + u) * 1024))
        else:
            o.append('ds_read_b128 %s, v243 offset:%d' % (vr(b + 4 * p), L.L_WA + ((p - 4) * 14 + u) * 1024))
    return o


stat_fill = []
for t in (1, 2, 0):
    r = STR + 8 * t
    for c_ in range(2):
        stat_fill += ['v_add_f32 v%d, v%d, v%d' % (r + c_, r + c_, r + 2 + c_),
                      'v_add_f32 v%d, v%d, v%d' % (r + 4 + c_, r + 4 + c_, r + 6 + c_),
                      'v_add_f32 v%d, v%d, v%d' % (r + c_, r + c_, r + 4 + c_)]
    stat_fill += xg_reduce(r, r + 2) + xg_reduce(r + 1, r + 3)
    stat_fill += stats_finish(r, r + 1, r + 2, False)
    stat_fill += ['v_mov_b32 v%d, v%d' % (SM + t, r), 'v_mov_b32 v%d, v%d' % (SR + t, r + 1)]

sWA = [20, 21, 22]
sWAG = 23


def wa_dma(pr, i):
    def f():
        a('s_add_u32 m0, s%d, %d' % (sWA[i], L.L_WA + 2048 * pr))
        a('s_add_u32 s%d, s%d, s%d' % (sD, sWA[i], sWAG))
        if pr:
            a('s_add_u32 s%d, s%d, %d' % (sD, sD, 2048 * pr))
        a('buffer_load_dwordx4 v1, %s, s%d offen sc1 lds' % (srd(S_WS), sD))
    return f


amark = {}


def emit_a_loop(first, xmark, wam):
    ep_mark = es_mark = st_mark = None
    for t in a_wread(0):
        a(t)
    for u in range(14):
        need = xmark[u]
        if u == 8:
            need = max(need, amark['st_own'])
        if u == 11:
            need = max(need, st_mark)
        a.wait_vm(need)
        if not first and u == 6:
            early_check(246, 247, es_mark)
            a('s_nop 0')
        if u == 11:
            a('s_mov_b32 s%d, -1' % sMK2)
            a('s_mov_b32 s%d, 0x3fffffff' % (sMK2 + 1))
        a('s_waitcnt lgkmcnt(0)')
        wb = WBUF[u & 1]
        xs = XR + (u % NR) * 8
        mf = []
        cz = (lambda r: '0') if u == 0 else (lambda r: vr(r))
        for t in range(2):
            for hf in range(2):
                r = AQ + (t * 2 + hf) * 4
                mf.append('%s %s, %s, %s, %s' % (MFMA, vr(r), vr(wb + 4 * hf), vr(xs + 4 * t), cz(r)))
        for t in range(2):
            for hf in range(2):
                r = AK + (t * 2 + hf) * 4
                mf.append('%s %s, %s, %s, %s' % (MFMA, vr(r), vr(wb + 8 + 4 * hf), vr(xs + 4 * t), cz(r)))
        for t in range(2):
            for hf in range(2):
                r = AV + (t * 2 + hf) * 4
                mf.append('%s %s, %s, %s, %s' % (MFMA, vr(r), vr(xs + 4 * t), vr(wb + 16 + 4 * hf), cz(r)))
        if first:
            mf.append('%s %s, %s, %s, %s' % (MFMA, vr(CSACC + 8), vr(CSACC), ar(A_ONES), cz(CSACC + 8)))
            mf.append('%s %s, %s, %s, %s' % (MFMA, vr(CSACC + 12), ar(A_ONES), vr(CSACC + 4), cz(CSACC + 12)))
        mem = {}

        def put(k, x):
            mem.setdefault(k, []).append(x)
        nm = len(mf)
        off = 0
        if first:
            a('ds_read_b128 %s, v252 offset:%d' % (vr(CSACC), 1024 * u))
            a('ds_read_b128 %s, v242 offset:%d' % (vr(CSACC + 4), 1024 * u))
            put(11, 's_waitcnt lgkmcnt(%d)' % (6 if u < 13 else 0))
        if first and u % 2 == 1 and u < 13:
            put(2, ('bar', (u + 1) // 2))
            off = 3
        if u < 13:
            for k, x in enumerate(a_wread(u + 1)):
                put(off + k, x)
        elif not first:
            for p in range(4):
                put(p, 'ds_read_b128 %s, v244 offset:%d' % (vr(WBUF[0] + 4 * p), 64 * p))
            for d in range(2):
                put(4 + d, 'ds_read_b32 v%d, v245 offset:%d' % (WBUF[0] + 16 + d, 64 * (4 + d)))
        if first and u < 2:
            for j_, uu in enumerate((2 * u + 2, 2 * u + 3)):
                for k, x in zip((6, 8), a_xload(uu)):
                    put(k + 4 * j_, x)
                put(8 + 4 * j_, ('xm', uu))
            if u == 0:
                for i, k in enumerate((7, 9, 11)):
                    put(k, ('wa', 2, i))
        elif u + LOOK < 14:
            for k, x in zip((6, 9), a_xload(u + LOOK)):
                put(k, x)
            put(9, ('xm', u + LOOK))
        if first and u % 2 == 0 and u // 2 + 3 <= 6:
            for i, k in enumerate((12, 13, 13) if u == 0 else (7, 10, 12)):
                put(k, ('wa', u // 2 + 3, i))
        order = list(range(4, 12)) + list(range(0, 4))
        if 2 <= u < 6:
            for k, x in zip((8, 11), order[2 * (u - 2):2 * (u - 2) + 2]):
                put(k, stat_loads[x])
            if u == 5:
                put(11, ('sto',))
        if not first and u == 3:
            put(7, ('estat',))
        if u in (7, 8):
            for k, x in zip((8, 11), order[8 + 2 * (u - 7):8 + 2 * (u - 7) + 2]):
                put(k, stat_loads[x])
            if u == 8:
                put(11, ('st',))
        if u == 6:
            put(10, 's_mov_b32 m0, s%d' % (sO + 1))
            for i, k in enumerate((10, 10, 11, 11)):
                put(k, 'buffer_load_dwordx4 v1, %s, s%d offen offset:%d sc1 lds' % (srd(S_WS), sO + 0, 1024 * i))
            put(11, ('hm',))
        if u == 13:
            put(8, ('early',))
        fill = []
        if 8 <= u < 11:
            fill = stat_fill[(u - 8) * 18:(u - 7) * 18]
        elif u in (11, 12):
            fill = stat_fill[54 + (u - 11) * 14:54 + (u - 10) * 14]
        if u == 13:
            put(1, 's_mov_b64 exec, 0xffff')
            for t in range(3):
                put(1, 'ds_write_b32 v162, v%d offset:%d' % (SM + t, 128 * t))
                put(1, 'ds_write_b32 v162, v%d offset:%d' % (SR + t, 128 * t + 64))
            put(1, 's_mov_b64 exec, -1')
        fi = 0
        for k, m in enumerate(mf):
            a(m)
            for it in mem.get(k, []):
                if isinstance(it, str):
                    a(it)
                elif it[0] == 'early':
                    ep_mark = early_issue(249, 248)
                elif it[0] == 'estat':
                    es_mark = early_issue(246, 247)
                elif it[0] == 'xm':
                    xmark[it[1]] = a.vm_mark()
                elif it[0] == 'st':
                    st_mark = a.vm_mark()
                elif it[0] == 'sto':
                    amark['st_own'] = a.vm_mark()
                elif it[0] == 'hm':
                    amark['halo'] = a.vm_mark()
                elif it[0] == 'bar':
                    a.wait_vm(wam[it[1]])
                    a('s_barrier')
                elif it[0] == 'wa':
                    wa_dma(it[1], it[2])()
                    wam[it[1]] = a.vm_mark()
            for _ in range(2):
                if fi < len(fill) and k >= 1:
                    a(fill[fi])
                    fi += 1
        assert fi == len(fill), (u, fi, len(fill))
    amark['ep'] = ep_mark


for p in range(4):
    a('v_mov_b32 v4, 0x3f803f80')
    a('v_accvgpr_write_b32 a%d, v4' % (A_ONES + p))
a('s_mul_i32 s%d, s%d, 14336' % (sWA[0], sW))
a('s_add_u32 s%d, s%d, 4' % (sA, sW))
a('s_mul_i32 s%d, s%d, 14336' % (sA, sA))
a('s_sub_u32 s%d, s%d, 2' % (sB, sW))
a('s_mul_i32 s%d, s%d, 14336' % (sB, sB))
a('s_add_u32 s%d, s%d, 1024' % (sB, sB))
a('s_cmp_lt_u32 s%d, 2' % sW)
a('s_cselect_b32 s%d, s%d, s%d' % (sWA[1], sA, sB))
a('s_add_u32 s%d, s%d, 2' % (sA, sW))
a('s_mul_i32 s%d, s%d, 14336' % (sA, sA))
a('s_add_u32 s%d, s%d, 1024' % (sWA[2], sA))
a('s_mul_i32 s%d, s%d, %d' % (sWAG, sC, 84 * 1024))
a('s_add_u32 s%d, s%d, %d' % (sWAG, sWAG, L.WA))
a_offsets()
xm0, wam0 = {}, {}


def wa_pair(pr):
    for i in range(3):
        wa_dma(pr, i)()
    wam0[pr] = a.vm_mark()


wa_pair(0)
for u in range(2):
    for t in a_xload(u):
        a(t)
    xm0[u] = a.vm_mark()
wa_pair(1)
a_setup()
a('s_mul_i32 s%d, s%d, 14336' % (sA, sW))
a('v_add_u32 v252, s%d, v1' % sA)
a('s_and_b32 s%d, s%d, 1' % (sA, sW))
a('s_mul_i32 s%d, s%d, 14336' % (sA, sA))
a('v_add_u32 v242, s%d, v243' % sA)
a.wait_vm(wam0[0])
a('s_barrier')
a('s_lshl_b32 s%d, s%d, 5' % (sA, sJ))
a('s_add_u32 s%d, s%d, s%d' % (sA, sA, sG))
a('s_lshl_b32 s%d, s%d, 2' % (sA, sA))
a('s_add_u32 s%d, s%d, %d' % (sA, sA, L.FP))
a('s_cmp_eq_u32 s%d, 0' % sW)
a('s_cselect_b32 s%d, s%d, 0x%x' % (sA, sA, INV))
a('v_mov_b32 v2, s%d' % sA)
a('s_mov_b64 exec, 1')
a('buffer_store_dword v%d, v2, %s, 0 offen sc1' % (V_T, srd(S_WS)))
a.vm_issued -= 1
a('s_mov_b64 exec, -1')
stamp()
emit_a_loop(True, xm0, wam0)
n_join = a.vm_issued - amark['ep']
CSQ = WBUF[0]
a('v_cmp_eq_u32 vcc, 0, v%d' % V_TOK)
a('s_lshl_b32 s%d, s%d, 6' % (sA, sW))
a('v_add_u32 v252, s%d, v244' % sA)
a('s_and_b32 s%d, s%d, 1' % (sA, sW))
a('s_lshl_b32 s%d, s%d, 6' % (sA, sA))
a('v_add_u32 v242, s%d, v245' % sA)
a('s_mov_b64 exec, vcc')
a('ds_write_b128 v252, %s' % vr(CSACC + 8))
a('s_mov_b64 exec, 0xffff')
a('ds_write_b32 v242, v%d offset:256' % (CSACC + 12))
a('s_mov_b64 exec, -1')
a('s_waitcnt lgkmcnt(0)')
a('s_barrier')
for p in range(4):
    a('ds_read_b128 %s, v244 offset:%d' % (vr(WBUF[0] + 4 * p), 64 * p))
for d in range(2):
    a('ds_read_b32 v%d, v245 offset:%d' % (WBUF[0] + 16 + d, 64 * (4 + d)))
with OutOfLine():
    a.label('L_pair')
    a_flag_addr(2)
    a('s_mov_b32 s%d, 0x3fff0000' % sMK)
    ASLEEP = int(([x[9:] for x in sys.argv if x.startswith('--asleep=')] + ['0'])[0])
    (poll_dual(2, 164) if DPOLL else poll(2, None, ASLEEP))
    stamp()
    a_offsets()
    xmark = {}
    for u in range(LOOK):
        for t in a_xload(u):
            a(t)
        xmark[u] = a.vm_mark()
    a_setup()
    emit_a_loop(False, xmark, None)
    assert a.vm_issued - amark['ep'] == n_join
    ep_mark = amark['ep']
    a('s_branch L_a_epi')
a.label('L_a_epi')
stamp()
a('s_add_u32 s%d, s%d, 2' % (sA, sW))
a('s_mul_i32 s%d, s%d, 14336' % (sA, sA))
a('v_add_u32 v246, s%d, v1' % sA)
a('v_add_u32 v247, %d, v1' % L.L_R2)
a('s_cmp_lt_u32 s%d, 2' % sW)
a('s_cselect_b64 vcc, -1, 0')
a('v_cndmask_b32 v252, v247, v246, vcc')
a('v_cndmask_b32 v253, v246, v247, vcc')
MROW, RROW = 114, 126
for t in range(3):
    a('ds_read_b128 %s, v163 offset:%d' % (vr(MROW + 4 * t), 128 * t))
    a('ds_read_b128 %s, v163 offset:%d' % (vr(RROW + 4 * t), 128 * t + 64))
a.wait_vm(amark['halo'])
a('s_barrier')
HOP = 90
def h_reads(u):
    r = HOP + 8 * (u % 3)
    return ['ds_read_b128 %s, v252 offset:%d' % (vr(r), 1024 * u), 'ds_read_b128 %s, v253 offset:%d' % (vr(r + 4), 1024 * u)]
for u in range(2):
    for x in h_reads(u):
        a(x)
rest = []
for u in range(14):
    if u + 2 < 14:
        for x in h_reads(u + 2):
            a(x)
    a('s_waitcnt lgkmcnt(%d)' % (4 if u < 12 else (2 if u == 12 else 0)))
    r = HOP + 8 * (u % 3)
    a('%s %s, %s, %s, %s' % (MFMA, vr(HACC), vr(r), vr(r + 4), '0' if u == 0 else vr(HACC)))
    if rest:
        a(rest.pop(0))
for x in rest:
    a(x)
stamp2()
early_check(249, 248, ep_mark)
BW = 2
a('s_lshl_b32 s%d, s%d, 6' % (sA, sJ))
a('s_lshl_b32 s%d, s%d, 2' % (sB, sW))
a('s_add_u32 s%d, s%d, s%d' % (sA, sA, sB))
a('s_lshl_b32 s%d, s%d, 10' % (sA, sA))
a('s_add_u32 s20, s%d, %d' % (sA, L.WB))
for t in range(1, 4):
    a('s_add_u32 s%d, s20, %d' % (20 + t, 16 * 1024 * t))
wb_all = ['buffer_load_dwordx4 %s, v1, %s, s%d offen offset:%d sc1' % (vr(BW + (i * 4 + t) * 4), srd(S_WS), 20 + t, 1024 * i)
          for i in range(4) for t in range(4)]
for x in wb_all[13:16]:
    a(x)
wb_loads = wb_all[8:13]
A_RES, A_B2 = 224, 232


def red_addrs():
    a('s_lshl_b32 s%d, s%d, 13' % (sA, sW))
    a('s_add_u32 s%d, s%d, %d' % (sA, sA, L.L_R2))
    a('v_add_u32 v248, s%d, v1' % sA)
    a('s_and_b32 s%d, s%d, 1' % (sA, sW))
    a('s_lshl_b32 s%d, s%d, 11' % (sA, sA))
    a('s_lshr_b32 s%d, s%d, 1' % (sB, sW))
    a('s_lshl_b32 s%d, s%d, 12' % (sB, sB))
    a('s_add_u32 s%d, s%d, s%d' % (sA, sA, sB))
    a('s_add_u32 s%d, s%d, %d' % (sA, sA, L.L_R2))
    a('v_add_u32 v249, s%d, v1' % sA)


def publish_setup(xbase, sbase, fbase, per_pair, fsh):
    owner_index()
    a('s_mul_i32 s%d, s%d, 14' % (sCc, sB))
    a('s_add_u32 s%d, s%d, s%d' % (sCc, sCc, sA))
    a('s_lshl_b32 s%d, s%d, 10' % (sPX, sCc))
    a('s_lshl_b32 s%d, s%d, 7' % (sPS, sCc))
    a('s_lshl_b32 s%d, s%d, %d' % (sPF, sB, fsh))
    a('s_add_u32 s%d, s%d, s%d' % (sPF, sPF, sA))
    a('s_lshl_b32 s%d, s%d, 2' % (sPF, sPF))
    for dst, arr in ((sPX, xbase), (sPS, sbase), (sPF, fbase)):
        if per_pair:
            pair_base(sD, arr)
            a('s_add_u32 s%d, s%d, s%d' % (dst, dst, sD))
        else:
            a('s_add_u32 s%d, s%d, %d' % (dst, dst, arr))
    a('s_add_u32 s%d, s%d, %d' % (sPX2, sPX, 2 * 14336))


def owner_index():
    a('s_lshr_b32 s%d, s%d, 1' % (sB, sW))
    a('s_lshl_b32 s%d, s%d, 2' % (sCc, sG))
    a('s_add_u32 s%d, s%d, s%d' % (sB, sB, sCc))
    a('s_and_b32 s%d, s%d, 1' % (sA, sW))
    a('s_lshl_b32 s%d, s%d, 1' % (sCc, sJ))
    a('s_add_u32 s%d, s%d, s%d' % (sA, sA, sCc))


a('s_cmp_eq_u32 s%d, 0' % sPAIR)
a('s_cbranch_scc0 L_a_nores')
owner_index()
a('s_mul_i32 s%d, s%d, 14' % (sB, sB))
a('s_add_u32 s%d, s%d, s%d' % (sB, sB, sA))
a('s_lshl_b32 s%d, s%d, 10' % (sB, sB))
a('s_add_u32 s%d, s%d, %d' % (sB, sB, L.XA[0]))
a('buffer_load_dwordx4 %s, v1, %s, s%d offen sc1' % (ar(A_RES), srd(S_WS), sB))
a('s_add_u32 s%d, s%d, %d' % (sB, sB, 2 * 14336))
a('buffer_load_dwordx4 %s, v1, %s, s%d offen sc1' % (ar(A_RES + 4), srd(S_WS), sB))
build_srd(S_TMP, P_B2, 896)
a('s_lshl_b32 s%d, s%d, 6' % (sB, sA))
a('v_lshlrev_b32 v240, 3, v%d' % V_G)
a('buffer_load_dwordx2 v[228:229], v240, %s, s%d offen' % (srd(S_TMP), sB))
a('buffer_load_dwordx2 v[230:231], v240, %s, s%d offen offset:32' % (srd(S_TMP), sB))
a.label('L_a_nores')
CSQ = WBUF[0]
QF, KF, VF = 140, 148, 160


def pk(op, dst, srcs, neg=None):
    ops, lo, hi = [], [], []
    for x in srcs:
        if isinstance(x, tuple):
            ops.append(vr(x[1] & ~1, 2))
            lo.append(x[1] & 1)
            hi.append(x[1] & 1)
        else:
            ops.append(vr(x, 2))
            lo.append(0)
            hi.append(1)
    t = '%s %s, %s op_sel:[%s] op_sel_hi:[%s]' % (op, vr(dst, 2), ', '.join(ops), ','.join(map(str, lo)), ','.join(map(str, hi)))
    if neg is not None:
        m = ','.join('1' if k == neg else '0' for k in range(len(srcs)))
        t += ' neg_lo:[%s] neg_hi:[%s]' % (m, m)
    return t


for t in range(2):
    for hf in range(2):
        r = AQ + (t * 2 + hf) * 4
        for i in (0, 2):
            a(pk('v_pk_fma_f32', r + i, [('b', SM + t + 1), CSQ + 4 * hf + i, r + i], 0))
        for p in range(2):
            a('v_cvt_pk_bf16_f32 v%d, v%d, v%d' % (QF + 4 * t + 2 * hf + p, r + 2 * p, r + 2 * p + 1))
        a(wb_all[2 * t + hf])
for t in range(2):
    for hf in range(2):
        r = AK + (t * 2 + hf) * 4
        for i in (0, 2):
            a(pk('v_pk_fma_f32', r + i, [('b', SM + t + 1), CSQ + 8 + 4 * hf + i, r + i], 0))
        for p in range(2):
            a('v_cvt_pk_bf16_f32 v%d, v%d, v%d' % (KF + 4 * (t + 1) + 2 * hf + p, r + 2 * p, r + 2 * p + 1))
        a(wb_all[4 + 2 * t + hf])
L_E, L_HX = L.L_R2 + 16384, L.L_R2 + 26624
a('s_lshl_b32 s%d, s%d, 11' % (sA, sW))
a('s_add_u32 s%d, s%d, %d' % (sA, sA, L_E))
a('v_add_u32 v246, s%d, v1' % sA)
a('s_lshl_b32 s%d, s%d, 10' % (sA, sW))
a('s_add_u32 s%d, s%d, %d' % (sA, sA, L_HX))
a('v_add_u32 v247, s%d, v1' % sA)
a('s_waitcnt lgkmcnt(0)')
for t in range(2):
    for d in range(2):
        r = AV + (t * 2 + d) * 4
        for i in (0, 2):
            a(pk('v_pk_fma_f32', r + i, [MROW + 4 * (t + 1) + i, ('b', CSQ + 16 + d), r + i], 0))
        for p in range(2):
            a('v_cvt_pk_bf16_f32 v%d, v%d, v%d' % (VF + 6 * d + 2 * (t + 1) + p, r + 2 * p, r + 2 * p + 1))
a('ds_write_b128 v246, %s offset:2048' % vr(KF + 8))
a('ds_write_b64 v246, %s offset:3072' % vr(VF + 4, 2))
a('ds_write_b64 v246, %s offset:3080' % vr(VF + 10, 2))
a('ds_write_b128 v247, %s' % vr(HACC))
pair_base(sA, L.O)
a('s_lshl_b32 s%d, s%d, 4' % (sB, sGT))
a('s_add_u32 s%d, s%d, s%d' % (sB, sB, sC))
a('s_lshl_b32 s%d, s%d, 10' % (sB, sB))
a('s_add_u32 s32, s%d, s%d' % (sA, sB))
a('s_add_u32 s33, s32, 16384')
stamp2()
a('s_waitcnt lgkmcnt(0)')
a('s_barrier')
stamp2()
SS = 172
a('s_cmp_eq_u32 s%d, 0' % sW)
a('s_cbranch_scc1 L_a_halo')
a('ds_read_b128 %s, v246' % vr(KF))
a('ds_read_b64 %s, v246 offset:1024' % vr(VF, 2))
a('ds_read_b64 %s, v246 offset:1032' % vr(VF + 6, 2))
a('s_waitcnt lgkmcnt(0)')
a('s_branch L_a_prev')
a.label('L_a_halo')
a('v_add_u32 v247, %d, v1' % L_HX)
for p in range(4):
    a('ds_read_b128 %s, v247 offset:%d' % (vr(SS + 4 * p), 1024 * p))
a('s_waitcnt lgkmcnt(0)')
for hf in range(2):
    r = SS + 4 * hf
    for i in (0, 2):
        a(pk('v_pk_fma_f32', r + i, [('b', SM), CSQ + 8 + 4 * hf + i, r + i], 0))
    for p in range(2):
        a('v_cvt_pk_bf16_f32 v%d, v%d, v%d' % (KF + 2 * hf + p, r + 2 * p, r + 2 * p + 1))
for d in range(2):
    r = SS + 8 + 4 * d
    for i in (0, 2):
        a(pk('v_pk_fma_f32', r + i, [MROW + i, ('b', CSQ + 16 + d), r + i], 0))
    for p in range(2):
        a('v_cvt_pk_bf16_f32 v%d, v%d, v%d' % (VF + 6 * d + p, r + 2 * p, r + 2 * p + 1))
a.label('L_a_prev')
a('s_nop 1')
for t in range(2):
    a('%s %s, %s, %s, 0' % (MFMA, vr(SS + 8 * t), vr(KF + 4 * t), vr(QF + 4 * t)))
    a('%s %s, %s, %s, 0' % (MFMA, vr(SS + 8 * t + 4), vr(KF + 4 * t + 4), vr(QF + 4 * t)))
SCALE = (28.0 ** -0.5) * 1.4426950408889634
MX, CC, LS, TMPR = 190, 192, 194, 196
PF = 200
SUMT = [(224, 226), (232, 188)]
a('v_mov_b32 v198, 0xff800000')
seq = [[], []]
for t in range(2):
    s_ = SS + 8 * t
    q = seq[t]
    rr = lambda e: RROW + 4 * (t + (e >> 2)) + (e & 3)
    for e in range(0, 8, 2):
        q.append(pk('v_pk_mul_f32', s_ + e, [s_ + e, rr(e)]))
    for e in range(8):
        mk = (sM0 if t == 0 else sM1) + 2 * e if e < 4 else sM2 + 2 * (e - 4)
        q.append('v_cndmask_b32 v%d, v198, v%d, %s' % (s_ + e, s_ + e, sp(mk)))
    q.append('v_max3_f32 v%d, v%d, v%d, v%d' % (MX + t, s_, s_ + 1, s_ + 2))
    q.append('v_max3_f32 v%d, v%d, v%d, v%d' % (MX + t, MX + t, s_ + 3, s_ + 4))
    q.append('v_max3_f32 v%d, v%d, v%d, v%d' % (MX + t, MX + t, s_ + 5, s_ + 6))
    q.append('v_max_f32 v%d, v%d, v%d' % (MX + t, MX + t, s_ + 7))
    q += xg_reduce(MX + t, TMPR + t, 'v_max_f32')
    q.append('v_mul_f32 v%d, %s, v%d' % (CC + t, f2h(SCALE), SR + t + 1))
    q.append('v_mul_f32 v%d, v%d, v%d' % (MX + t, MX + t, CC + t))
    for e in range(0, 8, 2):
        q.append(pk('v_pk_fma_f32', s_ + e, [s_ + e, ('b', CC + t), ('b', MX + t)], 2))
    for e in range(8):
        q.append('v_exp_f32 v%d, v%d' % (s_ + e, s_ + e))
    u_, u2 = SUMT[t]
    q.append(pk('v_pk_add_f32', u_, [s_, s_ + 2]))
    q.append(pk('v_pk_add_f32', u2, [s_ + 4, s_ + 6]))
    q.append(pk('v_pk_add_f32', u_, [u_, u2]))
    q.append('v_add_f32 v%d, v%d, v%d' % (LS + t, u_, u_ + 1))
    q += xg_reduce(LS + t, TMPR + t)
    q.append('v_rcp_f32 v%d, v%d' % (LS + t, LS + t))
    for e in range(0, 8, 2):
        q.append(pk('v_pk_mul_f32', s_ + e, [s_ + e, rr(e)]))
    for p in range(4):
        q.append('v_cvt_pk_bf16_f32 v%d, v%d, v%d' % (PF + 4 * t + p, s_ + 2 * p, s_ + 2 * p + 1))
merged = [z for xy in zip(*seq) for z in xy]
gap = len(merged) // (len(wb_loads) + 1)
for k, x in enumerate(merged):
    a(x)
    if k % gap == gap - 1 and wb_loads:
        a(wb_loads.pop(0))
assert not wb_loads
stamp2()
OO = 208
for t in range(2):
    for d in range(2):
        a('%s %s, %s, %s, 0' % (MFMA, vr(OO + 8 * t + 4 * d), vr(VF + 6 * d + 2 * t), vr(PF + 4 * t)))
for t in range(2):
    for e in range(0, 8, 2):
        a(pk('v_pk_mul_f32', OO + 8 * t + e, [OO + 8 * t + e, ('b', LS + t)]))
    for p in range(4):
        a('v_cvt_pk_bf16_f32 v%d, v%d, v%d' % (PF + 4 * t + p, OO + 8 * t + 2 * p, OO + 8 * t + 2 * p + 1))
    store('buffer_store_dwordx4 %s, v1, %s, s%d offen' % (vr(PF + 4 * t), srd(S_WS), 32 + t), sFD)
o_mark = a.vm_mark()
stamp2()
pair_base(sA, L.FA)
a('s_lshl_b32 s%d, s%d, 4' % (sB, sGT))
a('s_add_u32 s%d, s%d, s%d' % (sB, sB, sC))
a('s_lshl_b32 s%d, s%d, 2' % (sB, sB))
a('s_add_u32 s%d, s%d, s%d' % (sA, sA, sB))
a('v_lshlrev_b32 v241, 6, v0')
a('v_add_u32 v241, s%d, v241' % sA)
pair_base(sA, L.FA)
a('s_lshl_b32 s%d, s%d, 8' % (sB, sG))
a('s_add_u32 s%d, s%d, s%d' % (sA, sA, sB))
a('v_lshl_add_u32 v240, v0, 2, s%d' % sA)
a('s_lshl_b32 s%d, s%d, 2' % (sB, sW))
a('s_lshl_b32 s%d, 0x000f000f, s%d' % (sMK, sB))
a('s_mov_b32 s%d, s%d' % (sMK + 1, sMK))
red_addrs()
publish_setup(L.XB, L.SB, L.FB, True, 4)
a('s_mov_b32 s%d, s%d' % (sPC, sFD))
a('s_mov_b32 s%d, s%d' % (sPFC, sFAST))
pair_base(sA, L.O)
a('s_lshl_b32 s%d, s%d, 6' % (sB, sG))
a('s_lshl_b32 s%d, s%d, 2' % (sCc, sW))
a('s_add_u32 s%d, s%d, s%d' % (sB, sB, sCc))
a('s_lshl_b32 s%d, s%d, 10' % (sB, sB))
a('s_add_u32 s20, s%d, s%d' % (sA, sB))
for t in range(1, 4):
    a('s_add_u32 s%d, s20, %d' % (20 + t, 16384 * t))
a.wait_vm(o_mark)
a('s_mov_b64 exec, 3')
store('buffer_store_dword v%d, v241, %s, 0 offen' % (V_T, srd(S_WS)), sFAST)
a('s_mov_b64 exec, -1')
stamp()
a('s_cmp_eq_u32 s%d, 7' % sJ)
a('s_cbranch_scc1 L_next_pair')


def wd_bases():
    a('s_lshl_b32 s%d, s%d, 2' % (sA, sJ))
    a('s_mul_i32 s%d, s%d, %d' % (sA, sA, 56 * 1024))
    a('s_mul_i32 s%d, s%d, %d' % (sB, sW, 14 * 1024))
    a('s_add_u32 s%d, s%d, s%d' % (sA, sA, sB))
    a('s_add_u32 s%d, s%d, %d' % (sO, sA, L.WD))
    quarter_offsets(4, 56 * 1024)


def wd_load(fi):
    kk, t = fi >> 2, fi & 3
    return ('buffer_load_dwordx4 %s, v1, %s, s%d offen offset:%d sc1' %
            (ar(4 * fi), srd(S_WS), sO + 4 * t + (kk >> 2), 1024 * (kk & 3)))


WD_CH = [(0, 12), (12, 56)]
BO, BACC, BRD, BTMP = 66, 130, 194, 226
a('s_cmp_eq_u32 s%d, 0' % sPAIR)
a('s_cbranch_scc0 L_b_start')
for k in range(4):
    a('v_lshlrev_b32 v236, 16, v%d' % (228 + k))
    a('v_and_b32 v237, 0xffff0000, v%d' % (228 + k))
    a('v_accvgpr_write_b32 a%d, v236' % (A_B2 + 2 * k))
    a('v_accvgpr_write_b32 a%d, v237' % (A_B2 + 2 * k + 1))
wd_bases()
for fi in range(*WD_CH[0]):
    a(wd_load(fi))
a.label('L_b_start')
CWW = 66
sCI = 41
a('s_lshr_b32 s%d, s%d, 3' % (sA, sC))
a('s_mul_i32 s%d, s%d, 7' % (sA, sA))
a('s_add_u32 s%d, s%d, s%d' % (sCI, sA, sJ))
a('s_lshl_b32 s%d, s%d, 3' % (sA, sCI))
a('s_lshl_b32 s%d, s%d, 1' % (sB, sW))
a('s_add_u32 s%d, s%d, s%d' % (sA, sA, sB))
a('s_mul_i32 s%d, s%d, %d' % (sB, sA, 14 * 1024))
a('s_add_u32 s%d, s%d, %d' % (sO, sB, L.WC))
quarter_offsets(2, 14 * 1024)


def c_wload(idx):
    u, k = idx >> 1, idx & 1
    return ('buffer_load_dwordx4 %s, v1, %s, s%d offen offset:%d sc1' %
            (vr(CWW + 4 * idx), srd(S_WS), sO + 4 * k + (u >> 2), 1024 * (u & 3)))


def red_writes(acc, tile):
    return ['ds_write_b128 v248, %s offset:%d' % (vr(acc + 4 * t), (tile >> 1) * 32768 + (tile & 1) * 4096 + t * 1024)
            for t in range(4)]


def red_reads(st, rd):
    return ['ds_read_b128 %s, v249 offset:%d' % (vr(rd + (b * 2 + k) * 4), st * 32768 + b * 8192 + k * 1024)
            for b in range(4) for k in range(2)]


def add8(dst, x, y, packed):
    if packed:
        return ['v_pk_add_f32 %s, %s, %s' % (vr(dst + e, 2), vr(x + e, 2), vr(y + e, 2)) for e in range(0, 8, 2)]
    return ['v_add_f32 v%d, v%d, v%d' % (dst + e, x + e, y + e) for e in range(8)]


def finish_pre(st, is_d, tmp):
    res = A_RES + 4 * st
    o = ['v_accvgpr_read_b32 v%d, a%d' % (tmp + 8 + p, res + p) for p in range(4)]
    for p in range(4):
        o += ['v_lshlrev_b32 v%d, 16, v%d' % (tmp + 2 * p, tmp + 8 + p),
              'v_and_b32 v%d, 0xffff0000, v%d' % (tmp + 2 * p + 1, tmp + 8 + p)]
    if is_d:
        o += ['v_accvgpr_read_b32 v%d, a%d' % (tmp + 8 + e, A_B2 + e) for e in range(8)]
        o += ['v_add_f32 v%d, v%d, v%d' % (tmp + e, tmp + e, tmp + 8 + e) for e in range(8)]
    return o


def finish_sum(st, rd, tmp, pk, packed):
    o = add8(rd, rd, rd + 8, packed) + add8(rd + 16, rd + 16, rd + 24, packed) + add8(rd, rd, rd + 16, packed)
    o += add8(tmp, tmp, rd, packed)
    o += ['v_cvt_pk_bf16_f32 v%d, v%d, v%d' % (pk + p, tmp + 2 * p, tmp + 2 * p + 1) for p in range(4)]
    o += ['v_accvgpr_write_b32 a%d, v%d' % (A_RES + 4 * st + p, pk + p) for p in range(4)]
    return o


def owner_stats(tmp, s1, t):
    a('v_pk_add_f32 %s, %s, %s' % (vr(t, 2), vr(tmp, 2), vr(tmp + 2, 2)))
    a('v_pk_add_f32 %s, %s, %s' % (vr(t + 2, 2), vr(tmp + 4, 2), vr(tmp + 6, 2)))
    a('v_pk_add_f32 %s, %s, %s' % (vr(t, 2), vr(t, 2), vr(t + 2, 2)))
    a('v_add_f32 v%d, v%d, v%d' % (s1, t, t + 1))
    a('v_pk_mul_f32 %s, %s, %s' % (vr(t, 2), vr(tmp, 2), vr(tmp, 2)))
    for e in (2, 4, 6):
        a('v_pk_fma_f32 %s, %s, %s, %s' % (vr(t, 2), vr(tmp + e, 2), vr(tmp + e, 2), vr(t, 2)))
    a('v_add_f32 v%d, v%d, v%d' % (s1 + 1, t, t + 1))
    for x, y in zip(xg_reduce(s1, t), xg_reduce(s1 + 1, t + 1)):
        a(x)
        a(y)


def publish_data(st, pk):
    store('buffer_store_dwordx4 %s, v1, %s, s%d offen offset:0' % (vr(pk), srd(S_WS), sPX if st == 0 else sPX2), sPC)


def publish_stats(tmps, t, s1):
    a('v_and_b32 v%d, 15, v0' % V_TOK)
    a('v_lshlrev_b32 v%d, 3, v%d' % (t + 4, V_TOK))
    for st in range(2):
        owner_stats(tmps[st], s1 + 2 * st, t)
    a('s_mov_b64 exec, 0xffff')
    store('buffer_store_dwordx2 %s, v%d, %s, s%d offen' % (vr(s1, 2), t + 4, srd(S_WS), sPS), sPC)
    a('s_add_u32 s%d, s%d, %d' % (sPS, sPS, 2 * 1792))
    store('buffer_store_dwordx2 %s, v%d, %s, s%d offen' % (vr(s1 + 2, 2), t + 4, srd(S_WS), sPS), sPC)
    a('s_mov_b64 exec, -1')


def publish_flags(lsh, between=()):
    a('v_lshlrev_b32 v241, %d, v0' % lsh)
    a('v_add_u32 v241, s%d, v241' % sPF)
    set_flags(241, 2, sPFC, V_T, between)


def run_tiles(tile_items, extras):
    for tile in range(4):
        if tile and '--diag3' in sys.argv:
            stamp()
        items = tile_items(tile)
        ex = list(extras.get(tile, []))
        free = [k for k, it in enumerate(items) if k >= 3 and not it[2]]
        per = -(-len(ex) // max(1, len(free))) if ex else 0
        for k, (pre, m, post) in enumerate(items):
            for x in pre:
                x()
            a(m)
            if post:
                post()
            elif k >= 3:
                for _ in range(per):
                    if ex:
                        x = ex.pop(0)
                        if callable(x):
                            x()
                        else:
                            a(x)
        assert not ex


(poll_dual(240, 200) if DPOLL else poll(240))
a('s_barrier')
a('s_or_b32 s%d, s2, s%d' % (sA, sW))
a('s_or_b32 s%d, s%d, s%d' % (sA, sA, sPAIR))
a('s_cmp_eq_u32 s%d, 0' % sA)
a('s_cbranch_scc0 L_noepoch')
a('s_add_u32 s%d, s%d, 1' % (sA, sEP))
a('v_mov_b32 v239, s%d' % sA)
a('s_mov_b64 exec, 1')
a('buffer_store_dword v239, off, %s, 0 sc1' % srd(S_WS))
a.vm_issued -= 1
a('s_mov_b64 exec, -1')
a.label('L_noepoch')
stamp()


def b_oload(tile, i):
    return 'buffer_load_dwordx4 %s, v1, %s, s%d offen offset:%d sc1' % (vr(BO + (tile * 4 + i) * 4), srd(S_WS), 20 + tile, 1024 * i)


om = {}
for tile in range(2):
    for i in range(4):
        a(b_oload(tile, i))
        om[(tile, i)] = a.vm_mark()


def b_tile(tile):
    items = []
    for i in range(4):
        for t in range(4):
            r = BACC + (tile * 4 + t) * 4
            pre = [(lambda tl=tile, ii=i: a.wait_vm(om[(tl, ii)]))] if t == 0 else []
            post = None
            if tile < 2 and t == 1:
                def post(tl=tile + 2, ii=i):
                    a(b_oload(tl, ii))
                    om[(tl, ii)] = a.vm_mark()
            if tile >= 2 and t == 1:
                def post(idx=4 * (tile - 2) + i):
                    a(c_wload(idx))
            items.append((pre, '%s %s, %s, %s, %s' % (MFMA, vr(r), vr(BW + (i * 4 + t) * 4), vr(BO + (tile * 4 + i) * 4),
                                                      '0' if i == 0 else vr(r)), post))
    return items


BT0, BT1, BPK = 226, 2, 18
run_tiles(b_tile, {1: red_writes(BACC, 0), 2: red_writes(BACC + 16, 1), 3: red_writes(BACC + 32, 2)})
stamp2()
for x in red_writes(BACC + 48, 3):
    a(x)
for x in finish_pre(0, False, BT0) + finish_pre(1, False, BT1):
    a(x)
a('s_waitcnt lgkmcnt(0)')
a('s_barrier')
stamp2()
BRD1 = 162
for x in red_reads(0, BRD) + red_reads(1, BRD1):
    a(x)
a('s_waitcnt lgkmcnt(8)')
for x in finish_sum(0, BRD, BT0, BPK, True):
    a(x)
publish_data(0, BPK)
a('s_waitcnt lgkmcnt(0)')
for x in finish_sum(1, BRD1, BT1, BPK + 4, True):
    a(x)
publish_data(1, BPK + 4)
stamp2()
publish_stats([BT0, BT1], 36, 32)
b_mark = a.vm_mark()
a('v_lshlrev_b32 v236, 7, v0')
a('v_add_u32 v236, s%d, v236' % sPF)
for i in range(8, 16):
    a(c_wload(i))
CA = [2, 10]
XF, NXF = 18, 8
GTMP, GH = 50, 58
CCS, CB1, CB1R = 178, 186, 194
CSTR = 198
CMR = 214
VGA = 218
a('v_lshrrev_b32 v%d, 4, v0' % V_G)
a('v_and_b32 v%d, 15, v0' % V_TOK)
pair_base(sA, L.FB)
a('s_lshl_b32 s%d, s%d, 9' % (sB, sS))
a('s_add_u32 s%d, s%d, s%d' % (sA, sA, sB))
a('v_lshl_add_u32 v240, v0, 2, s%d' % sA)
a('s_mov_b32 s%d, 0x3fff3fff' % sMK)
a('s_mov_b32 s%d, 0x3fff3fff' % (sMK + 1))
pair_base(20, L.XB)
a('s_mul_i32 s%d, s%d, %d' % (sB, sS, 8 * 14336))
a('s_add_u32 s20, s20, s%d' % sB)
a('s_lshl_b32 s%d, s%d, 12' % (sB, sW))
a('s_add_u32 s20, s20, s%d' % sB)
a('s_add_u32 s21, s%d, %d' % (sB, L.L_R2))
pair_base(22, L.SB)
a('s_lshl_b32 s%d, s%d, 3' % (sB, sS))
a('s_add_u32 s%d, s%d, s%d' % (sB, sB, sW))
a('s_mul_i32 s%d, s%d, 1792' % (sB, sB))
a('s_add_u32 s22, s22, s%d' % sB)
a('s_add_u32 s23, s22, %d' % (4 * 1792))
pair_base(32, L.H)
a('s_mul_i32 s%d, s%d, %d' % (sB, sS, 8 * 56 * 1024))
a('s_add_u32 s32, s32, s%d' % sB)
a('s_lshl_b32 s%d, s%d, 2' % (sB, sCI))
a('s_add_u32 s%d, s%d, s%d' % (sB, sB, sW))
a('s_lshl_b32 s%d, s%d, 10' % (sCc, sB))
a('s_add_u32 s32, s32, s%d' % sCc)
pair_base(33, L.FC)
a('s_lshl_b32 s%d, s%d, 11' % (sCc, sS))
a('s_add_u32 s33, s33, s%d' % sCc)
a('s_lshl_b32 s%d, s%d, 2' % (sB, sB))
a('s_add_u32 s33, s33, s%d' % sB)
a('v_mov_b32 v241, s33')
a('v_mov_b32 v242, 0x%x' % INV)
a('v_cmp_eq_u32 vcc, 0, v0')
a('v_cndmask_b32 v241, v242, v241, vcc')
a('v_lshlrev_b32 v238, 3, v%d' % V_TOK)
a('v_lshl_add_u32 v238, v%d, 7, v238' % V_G)
a('v_mov_b32 v242, 0x%x' % INV)
a('v_cmp_lt_u32 vcc, 1, v%d' % V_G)
a('v_cndmask_b32 v239, 0, v242, vcc')
a('v_or_b32 v239, v239, v238')
a('v_add_u32 v252, %d, v1' % L.L_R2)
a('v_lshlrev_b32 v246, 3, v%d' % V_TOK)
a('v_add_u32 v246, %d, v246' % L.L_STC)
GA = 2.0 * 0.7978845608028654 * 1.4426950408889634
GB = GA * 0.044715
a('v_mov_b32 v%d, %s' % (VGA, f2h(-GA)))
a('v_mov_b32 v%d, %s' % (VGA + 1, f2h(-GA)))
a('s_mov_b32 s34, %s' % f2h(-GB))
a('s_mov_b32 s35, %s' % f2h(-GB))
wd_bases_hi = True
a.wait_vm(b_mark)
a('s_mov_b64 exec, 3')
store('buffer_store_dword v%d, v236, %s, 0 offen' % (V_T, srd(S_WS)), sPFC)
a('s_mov_b64 exec, -1')
stamp()

for i in range(16, 22):
    a(c_wload(i))
a('s_lshl_b32 s%d, s%d, 3' % (sA, sCI))
a('s_lshl_b32 s%d, s%d, 1' % (sB, sW))
a('s_add_u32 s%d, s%d, s%d' % (sA, sA, sB))
a('s_lshl_b32 s24, s%d, 5' % sA)
a('v_lshlrev_b32 v248, 3, v%d' % V_G)
for k in range(2):
    a('buffer_load_dwordx2 %s, v248, %s, s24 offen offset:%d' % (vr(CB1R + 2 * k, 2), srd(S_B1), 32 * k))
(poll_dual(240, 230, 256) if DPOLL else poll(240, 256))
stamp()


TORD = [0, 4, 1, 5, 2, 6, 3, 7]


def c_dma_setup(t):
    return ['s_add_u32 s36, s20, %d' % (TORD[t] * 14336), 's_add_u32 m0, s21, %d' % ((t & 3) * 16384)]


def c_dma(t, i):
    return 'buffer_load_dwordx4 v1, %s, s36 offen offset:%d sc1 lds' % (srd(S_WS), 1024 * i)


dm = {}
for x in c_dma_setup(0) + [c_dma(0, i) for i in range(4)]:
    a(x)
dm[0] = a.vm_mark()
wlate = {}
for i in range(22, 28):
    a(c_wload(i))
    wlate[i >> 1] = a.vm_mark()
for tt in range(2):
    for i in range(4):
        a('buffer_load_dwordx2 %s, v%d, %s, s%d offen offset:%d sc1' %
          (vr(CSTR + 8 * tt + 2 * i, 2), 239 if i == 3 else 238, srd(S_WS), 22 + tt, 512 * i))
amark['cst'] = a.vm_mark()
for x in c_dma_setup(1) + [c_dma(1, i) for i in range(4)]:
    a(x)
dm[1] = a.vm_mark()
wd_bases()
t0_loads = []
b1_unpack = []
for k in range(2):
    for p in range(2):
        b1_unpack += ['v_lshlrev_b32 v%d, 16, v%d' % (CB1 + 4 * k + 2 * p, CB1R + 2 * k + p),
                      'v_and_b32 v%d, 0xffff0000, v%d' % (CB1 + 4 * k + 2 * p + 1, CB1R + 2 * k + p)]
a.wait_vm(dm[0])
a('s_barrier')
stamp()


def c_xread(t, u):
    n = t * 14 + u
    return 'ds_read_b128 %s, v252 offset:%d' % (vr(XF + 4 * (n % NXF)), (t & 3) * 16384 + u * 1024)


def gelu_pre(t):
    z, m = CA[t & 1], CMR + 2 * (t & 1)
    P = range(0, 8, 2)
    o = ['v_pk_fma_f32 %s, %s, %s, %s op_sel_hi:[1,0,1] neg_lo:[0,1,0] neg_hi:[0,1,0]' % (vr(z + e, 2), vr(CCS + e, 2), vr(m, 2), vr(z + e, 2)) for e in P]
    o += ['v_pk_fma_f32 %s, %s, %s, %s op_sel:[0,1,0] op_sel_hi:[1,1,1]' % (vr(z + e, 2), vr(z + e, 2), vr(m, 2), vr(CB1 + e, 2)) for e in P]
    o += ['v_pk_mul_f32 %s, %s, %s' % (vr(GTMP + e, 2), vr(z + e, 2), vr(z + e, 2)) for e in P]
    o += ['v_pk_fma_f32 %s, %s, s[34:35], %s' % (vr(GTMP + e, 2), vr(GTMP + e, 2), vr(VGA, 2)) for e in P]
    o += ['v_pk_mul_f32 %s, %s, %s' % (vr(GTMP + e, 2), vr(GTMP + e, 2), vr(z + e, 2)) for e in P]
    return o


def gelu_mid():
    o = {}
    for e in range(8):
        o.setdefault(2 * e, []).append('v_exp_f32 v%d, v%d' % (GTMP + e, GTMP + e))
        o.setdefault(2 * e + 3, []).append('v_add_f32 v%d, 1.0, v%d' % (GTMP + e, GTMP + e))
    for e in range(6):
        o.setdefault(16 + 2 * e, []).append('v_rcp_f32 v%d, v%d' % (GTMP + e, GTMP + e))
    o.setdefault(25, []).append('v_rcp_f32 v%d, v%d' % (GTMP + 6, GTMP + 6))
    o.setdefault(27, []).append('v_rcp_f32 v%d, v%d' % (GTMP + 7, GTMP + 7))
    return o


def gelu_post(t):
    z, h = CA[t & 1], GH + 4 * (t & 1)
    o = ['v_pk_mul_f32 %s, %s, %s' % (vr(GTMP + e, 2), vr(GTMP + e, 2), vr(z + e, 2)) for e in range(0, 8, 2)]
    o += ['v_cvt_pk_bf16_f32 v%d, v%d, v%d' % (h + p, GTMP + 2 * p, GTMP + 2 * p + 1) for p in range(4)]
    return o


def gelu_packed(t):
    z, m, h = CA[t & 1], CMR + 2 * (t & 1), GH + 4 * (t & 1)
    P = range(0, 8, 2)
    for e in P:
        a('v_pk_fma_f32 %s, %s, %s, %s op_sel_hi:[1,0,1] neg_lo:[0,1,0] neg_hi:[0,1,0]' % (vr(z + e, 2), vr(CCS + e, 2), vr(m, 2), vr(z + e, 2)))
    for e in P:
        a('v_pk_fma_f32 %s, %s, %s, %s op_sel:[0,1,0] op_sel_hi:[1,1,1]' % (vr(z + e, 2), vr(z + e, 2), vr(m, 2), vr(CB1 + e, 2)))
    for e in P:
        a('v_pk_mul_f32 %s, %s, %s' % (vr(GTMP + e, 2), vr(z + e, 2), vr(z + e, 2)))
    for e in P:
        a('v_pk_fma_f32 %s, %s, s[34:35], %s' % (vr(GTMP + e, 2), vr(GTMP + e, 2), vr(VGA, 2)))
    for e in P:
        a('v_pk_mul_f32 %s, %s, %s' % (vr(GTMP + e, 2), vr(GTMP + e, 2), vr(z + e, 2)))
    for e in range(8):
        a('v_exp_f32 v%d, v%d' % (GTMP + e, GTMP + e))
    for e in P:
        a('v_pk_add_f32 %s, %s, 1.0 op_sel_hi:[1,0]' % (vr(GTMP + e, 2), vr(GTMP + e, 2)))
    for e in range(8):
        a('v_rcp_f32 v%d, v%d' % (GTMP + e, GTMP + e))
    for e in P:
        a('v_pk_mul_f32 %s, %s, %s' % (vr(GTMP + e, 2), vr(GTMP + e, 2), vr(z + e, 2)))
    for p in range(4):
        a('v_cvt_pk_bf16_f32 v%d, v%d, v%d' % (h + p, GTMP + 2 * p, GTMP + 2 * p + 1))


hmk, fmk = {}, {}


def h_store(t):
    def f():
        a('s_add_u32 s24, s32, %d' % (TORD[t] * 56 * 1024))
        store('buffer_store_dwordx4 %s, v1, %s, s24 offen' % (vr(GH + 4 * (t & 1)), srd(S_WS)), sFH)
        hmk[t] = a.vm_mark()
    return f


def h_flag(t):
    def f():
        a.wait_vm(hmk[t])
        store('buffer_store_dword v%d, v241, %s, 0 offen offset:%d' % (V_T, srd(S_WS), 256 * TORD[t]), sFAST)
    return f


def wd_block(fis, wave):
    def f():
        skip = newlab('L_wd')
        a('s_cmp_eq_u32 s24, %d' % wave)
        a('s_cbranch_scc0 %s' % skip)
        for fi in fis:
            a(wd_load(fi))
            a.vm_issued -= 1
        a.label(skip)
    return f


cst_fill = []
for tt in range(2):
    r = CSTR + 8 * tt
    for c_ in range(2):
        cst_fill += ['v_add_f32 v%d, v%d, v%d' % (r + c_, r + c_, r + 2 + c_),
                     'v_add_f32 v%d, v%d, v%d' % (r + 4 + c_, r + 4 + c_, r + 6 + c_),
                     'v_add_f32 v%d, v%d, v%d' % (r + c_, r + c_, r + 4 + c_)]
    cst_fill += xg_reduce(r, r + 2) + xg_reduce(r + 1, r + 3) + stats_finish(r, r + 1, r + 2, True)
a('s_lshl_b32 s%d, s%d, 7' % (sA, sW))
a('v_add_u32 v247, s%d, v246' % sA)
cst_fill += ['ds_write_b64 v247, %s' % vr(CSTR, 2), 'ds_write_b64 v247, %s offset:512' % vr(CSTR + 8, 2)] + b1_unpack
LOOKX = 6


A_CCS = 244


DFIRST = [194, 198, 202, 206, 210, 220, 224, 228, 232]
hm = {}


def emit_c_loop(wd_list):
    pass0 = bool(wd_list)
    if not pass0:
        for e in range(8):
            a('v_accvgpr_read_b32 v%d, a%d' % (CCS + e, A_CCS + e))
    for u in range(LOOKX):
        a(c_xread(0, u))
    for t in range(8):
        nonvec = {}

        def put(k, x):
            nonvec.setdefault(k, []).append(x)
        for u in range(14):
            n = t * 14 + u
            m = n + LOOKX
            if m < 8 * 14:
                put(2 * u + 1, c_xread(m // 14, m % 14))
            if u % 2 == 1 and n + 1 < 8 * 14:
                put(2 * u + 1, 's_waitcnt lgkmcnt(%d)' % min(LOOKX - 2, 8 * 14 - 1 - (n + 2)))
        if t < 7:
            nonvec[14] = [('bar', t + 1)] + nonvec.get(14, [])
        if t + 2 < 8:
            su = c_dma_setup(t + 2)
            put(0, su[0])
            put(0, su[1])
            for i in range(4):
                put(2 + 2 * i, ('dma', t + 2, i))
        if t >= 3:
            put(20, ('call', h_flag(t - 3)))
        if t == 1:
            put(0, 's_add_u32 s22, s25, 12288')
        if t == 5:
            def issue_d0():
                amark['d0'] = early_issue(244, 243)
            put(22, ('call', issue_d0))
        if t == 6:
            put(2, ('call', lambda: early_check(244, 243, amark['d0'])))
        if t in (6, 7):
            for k, q in zip((4, 6, 8, 20, 22) if t == 6 else (2, 4, 6, 8), range(0, 5) if t == 6 else range(5, 9)):
                put(k, ('h0', q))
        if t < 7:
            for k in (10, 12, 16, 18, 22, 24, 26):
                if wd_list:
                    put(k, wd_load(wd_list.pop(0)))
        if t > 0:
            put(17, 'ds_read_b64 %s, v246 offset:%d' % (vr(CMR + 2 * (t & 1), 2), 128 * TORD[t]))
        if t == 0:
            for k, it in enumerate(t0_loads):
                put(k, ('t0', it))
        valu = gelu_mid() if t >= 1 else {}
        if t >= 2:
            for x in gelu_post(t - 2):
                a(x)
            h_store(t - 2)()
        if t >= 1:
            for x in gelu_pre(t - 1):
                a(x)
        fill = list(cst_fill) if t == 0 else []
        first = 8
        fi = 0
        for k in range(28):
            u, kk = k >> 1, k & 1
            n = t * 14 + u
            if t == 0 and k == 0:
                a('s_waitcnt lgkmcnt(%d)' % (LOOKX - 2))
            if t == 0 and kk == 0 and u in wlate:
                a.wait_vm(wlate[u])
            if t == 0 and k == first:
                a.wait_vm(amark['cst'])
            r = CA[t & 1] + 4 * kk
            a('%s %s, %s, %s, %s' % (MFMA, vr(r), vr(CWW + 4 * (2 * u + kk)), vr(XF + 4 * (n % NXF)), '0' if u == 0 else vr(r)))
            if pass0 and t == 0:
                a('%s %s, %s, %s, %s' % (MFMA, vr(CCS + 4 * kk), vr(CWW + 4 * (2 * u + kk)), ar(A_ONES), '0' if u == 0 else vr(CCS + 4 * kk)))
            for it in nonvec.get(k, []):
                if isinstance(it, str):
                    a(it)
                elif it[0] == 'bar':
                    a.wait_vm(dm[it[1]])
                    a('s_barrier')
                elif it[0] == 'dma':
                    a(c_dma(it[1], it[2]))
                    dm[it[1]] = a.vm_mark()
                elif it[0] == 'call':
                    it[1]()
                elif it[0] == 'h0':
                    q = it[1]
                    a('buffer_load_dwordx4 %s, v1, %s, s%d offen offset:%d sc1' %
                      (vr(DFIRST[q] if q < 9 else 66 + 4 * q), srd(S_WS), (25, 27, 29, 22)[q >> 2], 1024 * (q & 3)))
                    hm[q] = a.vm_mark()
                elif it[0] == 't0':
                    if it[1][0] == 'w':
                        a(c_wload(it[1][1]))
                        wlate[it[1][1] >> 1] = a.vm_mark()
                    else:
                        a(it[1][1])
                        amark['cst'] = a.vm_mark()
            for x in valu.get(k, []):
                a(x)
            if fill and k >= first:
                want = -(-(len(fill)) * (k - first + 1) // (28 - first))
                while fi < want:
                    a(fill[fi])
                    fi += 1
        assert fi == len(fill)
        if t == 0:
            a('s_waitcnt lgkmcnt(0)')
            a('s_barrier')
            a('ds_read_b64 %s, v246 offset:0' % vr(CMR, 2))
            if pass0:
                for e in range(8):
                    a('v_accvgpr_write_b32 a%d, v%d' % (A_CCS + e, CCS + e))
            a('s_waitcnt lgkmcnt(0)')
    assert not wd_list


pair_base(sA, L.FC)
a('s_lshl_b32 s%d, s%d, 10' % (sB, sG))
a('s_add_u32 s%d, s%d, s%d' % (sA, sA, sB))
a('s_mul_i32 s%d, s%d, 56' % (sB, sW))
a('s_add_u32 s%d, s%d, s%d' % (sA, sA, sB))
a('v_lshl_add_u32 v243, v0, 2, s%d' % sA)
a('s_mov_b32 s%d, 0x3fff' % sMK2)
a('s_mov_b32 s%d, 0' % (sMK2 + 1))
pair_base(sA, L.H)
a('s_mul_i32 s%d, s%d, %d' % (sB, sG, 4 * 56 * 1024))
a('s_add_u32 s%d, s%d, s%d' % (sA, sA, sB))
a('s_mul_i32 s%d, s%d, %d' % (sB, sW, 14 * 1024))
a('s_add_u32 s25, s%d, s%d' % (sA, sB))
a('s_add_u32 s27, s25, 4096')
a('s_add_u32 s29, s25, 8192')
n_before = a.vm_issued
dm_init = dict(dm)
a('s_cmp_eq_u32 s%d, 0' % sPAIR)
a('s_cbranch_scc0 L_c_loop1')
emit_c_loop(list(range(*WD_CH[1])))
extra = a.vm_issued - n_before
with OutOfLine():
    a.label('L_c_loop1')
    a.vm_issued = n_before
    dm.clear()
    dm.update(dm_init)
    emit_c_loop([])
    a('s_branch L_c_done')
a.label('L_c_done')
stamp()
DH, DACC, DRD = 66, 130, 194
DRING, DLOOK = 16, 10
red_addrs()
publish_setup(L.XA[1], L.SA[1], L.FX[1], False, 5)
a('s_and_b32 s%d, s%d, 1' % (sA, sG))
a('s_lshr_b32 s%d, s%d, 1' % (sB, sW))
a('s_and_b32 s%d, s%d, s%d' % (sA, sA, sB))
a('s_xor_b32 s%d, s%d, 1' % (sA, sA))
a('s_and_b32 s%d, s%d, s%d' % (sPC, sFD, sA))
a('s_mov_b32 s%d, s%d' % (sPFC, sFAST))
a('s_cmp_eq_u32 s%d, 0' % sA)
a('s_cselect_b32 s%d, 0, 0x%x' % (sCc, INV))
a('s_add_u32 s%d, s%d, 1' % (sA, sS))
a('s_lshl_b32 s%d, s%d, 5' % (sA, sA))
a('s_lshl_b32 s%d, s%d, 1' % (sB, sJ))
a('s_add_u32 s%d, s%d, s%d' % (sA, sA, sB))
a('s_and_b32 s%d, s%d, 1' % (sB, sW))
a('s_add_u32 s%d, s%d, s%d' % (sA, sA, sB))
a('s_lshl_b32 s%d, s%d, 2' % (sA, sA))
a('s_add_u32 s%d, s%d, %d' % (sA, sA, L.FH))
a('s_or_b32 s20, s%d, s%d' % (sA, sCc))
pair_base(sA, L.H)
a('s_mul_i32 s%d, s%d, %d' % (sB, sG, 4 * 56 * 1024))
a('s_add_u32 s%d, s%d, s%d' % (sA, sA, sB))
a('s_mul_i32 s%d, s%d, %d' % (sB, sW, 14 * 1024))
a('s_add_u32 s%d, s%d, s%d' % (sO, sA, sB))
quarter_offsets(4, 56 * 1024)
a('s_cmp_eq_u32 s%d, 0' % sPAIR)
a('s_cbranch_scc1 L_d_nout')
owner_index()
a('s_mul_i32 s%d, s%d, 14336' % (sPX, sB))
a('s_lshl_b32 s%d, s%d, 6' % (sA, sA))
a('s_add_u32 s%d, s%d, s%d' % (sPX, sPX, sA))
a('s_add_u32 s%d, s%d, %d' % (sPX2, sPX, 2 * 14336))
a.label('L_d_nout')
a('v_and_b32 v%d, 15, v0' % V_TOK)
a('v_lshrrev_b32 v%d, 4, v0' % V_G)
a('v_mul_u32_u24 v242, 896, v%d' % V_TOK)
a('v_and_b32 v253, 1, v%d' % V_G)
a('v_lshl_add_u32 v242, v253, 5, v242')
a('v_lshrrev_b32 v253, 1, v%d' % V_G)
a('v_lshl_add_u32 v242, v253, 4, v242')


def d_hload(q):
    tile, kk = divmod(q, 14)
    return ('buffer_load_dwordx4 %s, v1, %s, s%d offen offset:%d sc1' %
            (vr(d_reg(q)), srd(S_WS), sO + 4 * tile + (kk >> 2), 1024 * (kk & 3)))


def d_reg(q):
    return DFIRST[q] if q < len(DFIRST) else DH + (q % DRING) * 4


dmk = {}
for q in range(len(DFIRST), DLOOK):
    a(d_hload(q))
    hm[q] = a.vm_mark()
dmk[1] = early_issue(244, 243, 256)
stamp()
for x in gelu_post(6):
    a(x)
h_store(6)()
a('s_waitcnt lgkmcnt(0)')
gelu_packed(7)
h_flag(5)()
h_store(7)()
stamp()

a('s_barrier')
stamp()


def d_tile(tile):
    items = []
    for kk in range(14):
        q = tile * 14 + kk
        for t in range(4):
            r = DACC + (tile * 4 + t) * 4
            pre = [(lambda qq=q: a.wait_vm(hm[qq]))] if t == 0 else []
            if t == 0 and q in (6, 12):
                pre.append(h_flag({6: 6, 12: 7}[q]))
            post = None
            if t == 0 and q + DLOOK < 56:
                def post(qq=q + DLOOK):
                    if qq % 14 == 0:
                        early_check(244, 243, dmk[qq // 14], 256 * (qq // 14))
                    a(d_hload(qq))
                    hm[qq] = a.vm_mark()
                    if qq % 14 == 6 and qq // 14 < 3:
                        dmk[qq // 14 + 1] = early_issue(244, 243, 256 * (qq // 14 + 1))
            items.append((pre, '%s %s, %s, %s, %s' % (MFMA, vr(r), ar((kk * 4 + t) * 4), vr(d_reg(q)),
                                                      '0' if kk == 0 else vr(r)), post))
    return items


def d_out_store(st, pk):
    a('s_nop 1')
    a('v_permlane16_swap_b32 v%d, v%d' % (pk, pk + 2))
    a('v_permlane16_swap_b32 v%d, v%d' % (pk + 1, pk + 3))
    a('buffer_store_dwordx4 %s, v242, %s, s%d offen %s' % (vr(pk), srd(S_OUT), sPX if st == 0 else sPX2, OUTSC))


def d_store(st, pk):
    fin, done = newlab('L_dfin'), newlab('L_ddone')
    a('s_cmp_eq_u32 s%d, 0' % sPAIR)
    a('s_cbranch_scc0 %s' % fin)
    publish_data(st, pk)
    a('s_branch %s' % done)
    a.label(fin)
    n = a.vm_issued
    d_out_store(st, pk)
    a.vm_issued = n
    a.label(done)


DT0, DT1, DPK, DSTT, DSTS = 226, 2, 18, 28, 36
stage0 = [lambda: (a('s_waitcnt lgkmcnt(0)'), a('s_barrier'))] + red_reads(0, DRD) + finish_pre(0, True, DT0)
stage0 += [lambda: a('s_waitcnt lgkmcnt(0)')] + finish_sum(0, DRD, DT0, DPK, False) + [lambda: d_store(0, DPK)]
run_tiles(d_tile, {1: red_writes(DACC, 0), 2: red_writes(DACC + 16, 1), 3: red_writes(DACC + 32, 2) + stage0})
stamp2()
for x in red_writes(DACC + 48, 3):
    a(x)
for x in finish_pre(1, True, DT1):
    a(x)
a('s_waitcnt lgkmcnt(0)')
a('s_barrier')
stamp2()
for x in red_reads(1, DRD):
    a(x)
a('s_waitcnt lgkmcnt(0)')
for x in finish_sum(1, DRD, DT1, DPK + 4, True):
    a(x)
d_store(1, DPK + 4)
stamp()
a('s_cmp_eq_u32 s%d, 0' % sPAIR)
a('s_cbranch_scc0 L_next_pair')
publish_stats([DT0, DT1], DSTT, DSTS)
FHMODE = ([x[5:] for x in sys.argv if x.startswith('--fh=')] + ['after'])[0]
a('v_mov_b32 v240, s20')
if FHMODE == 'before':
    a('s_waitcnt vmcnt(0)')
    a('s_mov_b64 exec, 1')
    a('buffer_store_dword v%d, v240, %s, 0 offen sc1' % (V_T, srd(S_WS)))
    a('s_mov_b64 exec, -1')
    a('v_lshlrev_b32 v241, 8, v0')
    a('v_add_u32 v241, s%d, v241' % sPF)
    a('s_mov_b64 exec, 3')
    store('buffer_store_dword v%d, v241, %s, 0 offen' % (V_T, srd(S_WS)), sPFC)
    a('s_mov_b64 exec, -1')
else:
    publish_flags(8)
    if FHMODE == 'wait':
        a('s_waitcnt vmcnt(0)')
    a('s_mov_b64 exec, 1')
    a('buffer_store_dword v%d, v240, %s, 0 offen sc1' % (V_T, srd(S_WS)))
    a('s_mov_b64 exec, -1')
a.label('L_next_pair')
stamp()
a('s_add_u32 s%d, s%d, 1' % (sPAIR, sPAIR))
a('s_cmp_lt_u32 s%d, 2' % sPAIR)
a('s_cbranch_scc1 L_pair')

if PAD:
    a.label('L_padspin')
    a('s_memrealtime s[34:35]')
    a('s_waitcnt lgkmcnt(0)')
    a('s_sub_u32 s34, s34, s0')
    a('s_cmp_lt_u32 s34, %d' % PAD[0])
    a('s_cbranch_scc1 L_padspin')
if DBG:
    a('s_memtime s[32:33]')
    a('s_memrealtime s[34:35]')
    a('s_waitcnt lgkmcnt(0)')
    a('s_sub_u32 s32, s32, s26')
    a('s_sub_u32 s34, s34, s0')
    build_srd(S_TMP, P_DBG, 256)
    a('v_mov_b32 v2, s32')
    a('v_mov_b32 v3, s34')
    a('v_mov_b32 v4, s%d' % sFAST)
    a('v_mov_b32 v5, s%d' % sXCC)
    a('s_lshr_b32 s%d, s2, 6' % sA)
    a('s_lshl_b32 s%d, s%d, 4' % (sA, sA))
    a('s_and_b32 s%d, s2, 63' % sB)
    a('s_or_b32 s%d, s%d, s%d' % (sB, sB, sW))
    a('s_cmp_eq_u32 s%d, 0' % sB)
    a('s_cselect_b32 s%d, s%d, 0x%x' % (sA, sA, INV))
    a('v_mov_b32 v6, s%d' % sA)
    a('s_mov_b64 exec, 1')
    a('buffer_store_dwordx4 v[2:5], v6, %s, 0 offen' % srd(S_TMP))
    a('s_mov_b64 exec, -1')
if DIAG:
    stamp()
    a('s_mov_b32 s%d, 63' % sSTI)
    a('s_lshl_b64 exec, 1, s%d' % sSTI)
    a('v_mov_b32 v%d, s%d' % (V_STAMP, sERR))
    a('s_mov_b32 s%d, 62' % sSTI)
    a('s_lshl_b64 exec, 1, s%d' % sSTI)
    a('v_mov_b32 v%d, s%d' % (V_STAMP, sFAST))
    a('s_mov_b64 exec, -1')
    a('s_lshl_b32 s%d, s2, 2' % sA)
    a('s_add_u32 s%d, s%d, s%d' % (sA, sA, sW))
    a('s_lshl_b32 s%d, s%d, 8' % (sA, sA))
    a('v_lshlrev_b32 v2, 2, v0')
    a('s_add_u32 s%d, s%d, %d' % (sA, sA, L.WS_USED))
    a('s_mov_b32 s%d, 0x%x' % (S_WS + 2, L.WS_USED + 256 * 1024))
    a('buffer_store_dword v%d, v2, %s, s%d offen' % (V_STAMP, srd(S_WS), sA))
    if DBGST:
        build_srd(S_TMP, P_DBG, 256)
        a('v_readfirstlane_b32 s%d, v%d' % (sA, V_STAMP))
        a('s_nop 4')
        a('v_subrev_u32 v3, s%d, v%d' % (sA, V_STAMP))
        a('s_or_b32 s%d, s2, s%d' % (sB, sW))
        a('s_cmp_eq_u32 s%d, 0' % sB)
        a('s_cselect_b32 s%d, 0, 0x%x' % (sB, INV))
        a('v_or_b32 v2, s%d, v2' % sB)
        SEL = [int(x[6:]) for x in sys.argv if x.startswith('--sel=')]
        sel = SEL[0] if SEL else 1
        a('v_subrev_u32 v2, %d, v2' % (4 * sel))
        a('buffer_store_dword v3, v2, %s, 0 offen' % srd(S_TMP))
a.label('L_end')
a('s_endpgm')
a.ins.extend(ool)
a.label('L_code_end')

a.finalize()
body = a.text()

import os
hdr = open(os.path.join(os.path.dirname(os.path.abspath(__file__)), 'header.txt')).read()
out = hdr + '; @launch grid=(256,1,1) block=(256,1,1) lds=%d\n' % L.LDS_BYTES
out += '.amdgcn_target "amdgcn-amd-amdhsa--gfx950"\n.text\n.globl %s_kernel\n.p2align 8\n.type %s_kernel,@function\n%s_kernel:\n' % (NAME, NAME, NAME)
out += body
out += '''.section .rodata,"a"
.p2align 6
.amdhsa_kernel %s_kernel
  .amdhsa_next_free_vgpr 512
  .amdhsa_next_free_sgpr 102
  .amdhsa_accum_offset 256
  .amdhsa_group_segment_fixed_size 0
  .amdhsa_kernarg_size 88
  .amdhsa_user_sgpr_count 2
  .amdhsa_user_sgpr_kernarg_segment_ptr 1
  .amdhsa_system_sgpr_workgroup_id_x 1
.end_amdhsa_kernel
''' % NAME
sys.stdout.write(out)
```

```python
import struct
import sys
from asmlib import Asm
import layout as L

NAME = 'interleave_layers__sliding_local_dilated__mixer_channel_mlp__prompt'
DIAG = '--diag' in sys.argv
FASTMODE = ([x[7:] for x in sys.argv if x.startswith('--fast=')] + ['flags'])[0]
NOFAST = FASTMODE == 'none'
PAD = [int(x[6:]) for x in sys.argv if x.startswith('--pad=')]
DBG = '--dbg' in sys.argv or bool(PAD)
SPIN_LIMIT = 200000
OUTSC = ([x[8:] for x in sys.argv if x.startswith('--outsc=')] + [''])[0].replace('_', ' ')
SLEEP = int(([x[8:] for x in sys.argv if x.startswith('--sleep=')] + ['0'])[0])
INV = 0x80000000

a = Asm()

sXCC = 3
S_WS, S_TMP, S_B1, S_OUT = 4, 8, 12, 16
P_X, P_WQKV, P_WO, P_BX, P_W1, P_B1, P_W2, P_B2, P_OUT, P_DBG, P_WSP = 20, 22, 24, 26, 28, 30, 32, 34, 36, 38, 40
sS, sC, sG, sJ, sW, sT, sPAIR, sSPIN = 42, 43, 44, 45, 46, 47, 48, 49
sM1 = 50
sM2 = 58
sM0 = 66
sO = 74
sA, sB, sCc, sD = 90, 91, 92, 93
sMK = 94
sTS = 96
sGT = 98
sERR = 99
sEP = 1
sSTI = 100
sFAST = 101
sFD = 27
sPFC = 26
sFH = 25


def srd(n):
    return 's[%d:%d]' % (n, n + 3)


def vr(n, k=4):
    return 'v[%d:%d]' % (n, n + k - 1)


def ar(n, k=4):
    return 'a[%d:%d]' % (n, n + k - 1)


def sp(n):
    return 's[%d:%d]' % (n, n + 1)


def f2h(x):
    return '0x%08x' % struct.unpack('<I', struct.pack('<f', x))[0]


V_T, V_STAMP = 254, 255
V_TOK, V_G = 250, 251
MFMA = 'v_mfma_f32_16x16x32_bf16'


DIAG2 = '--diag2' in sys.argv
PREFPOS = ([x[7:] for x in sys.argv if x.startswith('--pref=')] + ['a'])[0]
PREF = PREFPOS != 'n'
TOUCH = '--notouch' not in sys.argv
STWAIT = '--stwait' in sys.argv
P2EARLY = '--p2early' in sys.argv
SKEW = [int(x[7:]) for x in sys.argv if x.startswith('--skew=')]
DBGST = '--dbgst' in sys.argv


def stamp2():
    if DIAG2:
        stamp()


def stamp():
    if not DIAG:
        return
    a('%s %s' % ('s_memrealtime' if '--rt' in sys.argv else 's_memtime', sp(sTS)))
    a('s_waitcnt lgkmcnt(0)')
    a('s_lshl_b64 exec, 1, s%d' % sSTI)
    a('v_mov_b32 v%d, s%d' % (V_STAMP, sTS))
    a('s_mov_b64 exec, -1')
    a('s_add_u32 s%d, s%d, 1' % (sSTI, sSTI))


ool = []


class OutOfLine:
    def __enter__(self):
        self.saved = a.ins
        a.ins = []

    def __exit__(self, *exc):
        ool.extend(a.ins)
        a.ins = self.saved


lab_no = [0]


def newlab(p):
    lab_no[0] += 1
    return '%s_%d' % (p, lab_no[0])


def emit_pref():
    a('s_getpc_b64 s[96:97]')
    a.label('L_pc')
    a('s_lshr_b32 s%d, s2, 3' % sA)
    a('s_lshl_b32 s%d, s%d, 11' % (sA, sA))
    a('s_lshl_b32 s%d, s%d, 9' % (sB, sW))
    a('s_add_u32 s%d, s%d, s%d' % (sA, sA, sB))
    a('v_lshlrev_b32 v21, 3, v0')
    a('v_add_u32 v21, s%d, v21' % sA)
    a('v_min_u32 v21, L_code_end-L_pc-8, v21')
    a('global_load_dwordx2 v[58:59], v21, s[96:97]')


def skew_store(point, have=False):
    if not SKEW or SKEW[0] != point:
        return
    if not have:
        a('s_memrealtime s[96:97]')
        a('s_waitcnt lgkmcnt(0)')
    build_srd(S_TMP, P_DBG, 256)
    a('s_and_b32 s%d, s2, 15' % sA)
    a('s_or_b32 s%d, s%d, s%d' % (sA, sA, sW))
    a('s_cmp_eq_u32 s%d, 0' % sA)
    a('s_cselect_b32 s%d, 0, 0x%x' % (sA, INV))
    a('s_lshr_b32 s%d, s2, 2' % sB)
    a('s_or_b32 s%d, s%d, s%d' % (sA, sA, sB))
    a('v_mov_b32 v21, s%d' % sA)
    a('v_mov_b32 v22, s96')
    a('s_mov_b64 exec, 1')
    a('buffer_store_dword v22, v21, %s, 0 offen' % srd(S_TMP))
    a.vm_issued -= 1
    a('s_mov_b64 exec, -1')


def build_srd(dst, ptr, nbytes):
    a('s_mov_b32 s%d, s%d' % (dst, ptr))
    a('s_and_b32 s%d, s%d, 0xffff' % (dst + 1, ptr + 1))
    a('s_mov_b32 s%d, 0x%x' % (dst + 2, nbytes))
    a('s_mov_b32 s%d, 0x20000' % (dst + 3))


def poll(voff, off2=None, sleep=None):
    lab, done = newlab('L_poll'), newlab('L_polldone')
    a('s_mov_b64 exec, %s' % sp(sMK))
    a('s_mov_b32 s%d, 0' % sSPIN)
    a.label(lab)
    a('buffer_load_dword v253, v%d, %s, 0 offen sc1' % (voff, srd(S_WS)))
    if off2 is not None:
        a('buffer_load_dword v245, v%d, %s, 0 offen offset:%d sc1' % (voff, srd(S_WS), off2))
    a('s_waitcnt vmcnt(0)')
    if off2 is not None:
        a('v_xor_b32 v245, s%d, v245' % sT)
        a('v_xor_b32 v253, s%d, v253' % sT)
        a('v_or_b32 v253, v253, v245')
        a('v_cmp_ne_u32 vcc, 0, v253')
    else:
        a('v_cmp_ne_u32 vcc, s%d, v253' % sT)
    a('s_nop 4')
    a('s_cbranch_vccz %s' % done)
    if sleep or SLEEP:
        a('s_sleep %d' % (sleep or SLEEP))
    a('s_add_u32 s%d, s%d, 1' % (sSPIN, sSPIN))
    a('s_cmp_lt_u32 s%d, %d' % (sSPIN, SPIN_LIMIT))
    a('s_cbranch_scc1 %s' % lab)
    a('s_add_u32 s%d, s%d, 1' % (sERR, sERR))
    a.label(done)
    a('s_mov_b64 exec, -1')


sMK2 = 30


def early_issue(dst, voff, off=0):
    a('s_mov_b64 exec, %s' % sp(sMK2))
    a('buffer_load_dword v%d, v%d, %s, 0 offen offset:%d sc1' % (dst, voff, srd(S_WS), off))
    a('s_mov_b64 exec, -1')
    return a.vm_mark()


def early_check(dst, voff, mark, off=0):
    ok = newlab('L_early')
    a.wait_vm(mark)
    a('s_mov_b64 exec, %s' % sp(sMK2))
    a('v_cmp_ne_u32 vcc, s%d, v%d' % (sT, dst))
    a('s_mov_b64 exec, -1')
    a('s_nop 2')
    a('s_cbranch_vccz %s' % ok)
    a('s_mov_b64 %s, %s' % (sp(sMK), sp(sMK2)))
    n = a.vm_issued
    if off:
        a('v_add_u32 v253, %d, v%d' % (off, voff))
        a('v_mov_b32 v%d, v253' % dst)
        poll(dst)
    else:
        poll(voff)
    a.vm_issued = n
    a.label(ok)


def store(fmt, cond=None):
    if cond is None or NOFAST or (FASTMODE == 'flags' and cond in (sFD, sFH, sPC)):
        a(fmt + ' sc1')
        return
    slow, done = newlab('L_slow'), newlab('L_st')
    a('s_cmp_eq_u32 s%d, 0' % cond)
    a('s_cbranch_scc1 %s' % slow)
    a(fmt)
    a('s_branch %s' % done)
    a.label(slow)
    a(fmt + ' sc1')
    a.vm_issued -= 1
    a.label(done)


def set_flags(voff, nlanes, cond=None, val=V_T, between=()):
    mark = a.vm_mark()
    for x in between:
        a(x)
    a.wait_vm(mark)
    a('s_mov_b64 exec, %d' % ((1 << nlanes) - 1))
    store('buffer_store_dword v%d, v%d, %s, 0 offen' % (val, voff, srd(S_WS)), cond)
    a('s_mov_b64 exec, -1')


def xg_reduce(x, t, op='v_add_f32'):
    return ['v_mov_b32 v%d, v%d' % (t, x),
            'v_permlane32_swap_b32 v%d, v%d' % (x, t),
            '%s v%d, v%d, v%d' % (op, x, x, t),
            'v_mov_b32 v%d, v%d' % (t, x),
            'v_permlane16_swap_b32 v%d, v%d' % (x, t),
            '%s v%d, v%d, v%d' % (op, x, x, t)]


EPS = 1e-5


def stats_finish(s1, s2, t, double_ln):
    o = ['v_mul_f32 v%d, %s, v%d' % (s1, f2h(1.0 / 448), s1),
         'v_mul_f32 v%d, %s, v%d' % (s2, f2h(1.0 / 448), s2),
         'v_fma_f32 v%d, -v%d, v%d, v%d' % (s2, s1, s1, s2),
         'v_max_f32 v%d, 0, v%d' % (s2, s2),
         'v_add_f32 v%d, %s, v%d' % (t, f2h(EPS), s2),
         'v_rsq_f32 v%d, v%d' % (t, t)]
    if not double_ln:
        o += ['v_mov_b32 v%d, v%d' % (s2, t)]
    else:
        o += ['v_mul_f32 v%d, v%d, v%d' % (s2, s2, t),
              'v_fmaak_f32 v%d, v%d, v%d, %s' % (s2, s2, t, f2h(EPS)),
              'v_rsq_f32 v%d, v%d' % (s2, s2),
              'v_mul_f32 v%d, v%d, v%d' % (s2, s2, t)]
    return o


def pair_base(dst, arr):
    a('s_mul_i32 s%d, s%d, %d' % (dst, sPAIR, arr[1] - arr[0]))
    a('s_add_u32 s%d, s%d, %d' % (dst, dst, arr[0]))


def quarter_offsets(n, stride):
    for t in range(n):
        if t:
            a('s_add_u32 s%d, s%d, %d' % (sO + 4 * t, sO + 4 * (t - 1), stride))
        for q in range(1, 4):
            a('s_add_u32 s%d, s%d, %d' % (sO + 4 * t + q, sO + 4 * t, 4096 * q))


sPX, sPS, sPF, sPC, sPX2 = 36, 37, 28, 29, 33


def stats_flags(delta, lsh):
    a('v_lshlrev_b32 v241, %d, v0' % lsh)
    a('s_add_u32 s%d, s%d, %d' % (sA, sPF, delta))
    a('v_add_u32 v241, s%d, v241' % sA)
    a('s_mov_b64 exec, 3')
    store('buffer_store_dword v%d, v241, %s, 0 offen' % (V_T, srd(S_WS)), sPFC)
    a('s_mov_b64 exec, -1')


a('s_cmp_ge_u32 s2, 256')
a('s_cbranch_scc1 L_end')
if '--perm' in sys.argv:
    a('s_and_b32 s90, s2, 7')
    a('s_lshr_b32 s91, s2, 3')
    a('s_and_b32 s91, s91, 7')
    a('s_and_b32 s2, s2, 0xc0')
    a('s_lshl_b32 s90, s90, 3')
    a('s_or_b32 s2, s2, s90')
    a('s_or_b32 s2, s2, s91')
SPRE = int(([x[7:] for x in sys.argv if x.startswith('--spre=')] + ['0'])[0])
if SPRE:
    a('s_getpc_b64 s[96:97]')
a('s_load_dwordx16 s[20:35], s[0:1], 0')
a('s_load_dwordx4 s[36:39], s[0:1], 64')
a('s_load_dwordx2 s[40:41], s[0:1], 80')
for i in range(SPRE):
    a('s_load_dword s98, s[96:97], %d' % (256 + 128 * i))
a('s_getreg_b32 s%d, hwreg(HW_REG_XCC_ID, 0, 4)' % sXCC)
a('s_and_b32 s%d, s2, 7' % sA)
a('s_lshr_b32 s%d, s2, 3' % sB)
a('s_lshr_b32 s%d, s%d, 4' % (sCc, sB))
a('s_lshl_b32 s%d, s%d, 1' % (sS, sA))
a('s_add_u32 s%d, s%d, s%d' % (sS, sS, sCc))
a('s_and_b32 s%d, s%d, 15' % (sC, sB))
a('s_lshr_b32 s%d, s%d, 3' % (sA, sC))
a('s_lshl_b32 s%d, s%d, 1' % (sG, sS))
a('s_add_u32 s%d, s%d, s%d' % (sG, sG, sA))
a('s_and_b32 s%d, s%d, 7' % (sJ, sC))
a('s_mov_b32 s%d, 0' % sERR)
if SKEW and SKEW[0] == 0:
    a('s_memrealtime s[96:97]')
a('v_lshrrev_b32 v2, 6, v0')
a('v_and_b32 v0, 63, v0')
a('v_readfirstlane_b32 s%d, v2' % sW)
a('v_lshlrev_b32 v1, 4, v0')
if DIAG:
    a('v_mov_b32 v%d, 0' % V_STAMP)
    a('s_mov_b32 s%d, 0' % sSTI)
stamp()
a('v_and_b32 v%d, 15, v0' % V_TOK)
a('v_lshrrev_b32 v%d, 4, v0' % V_G)
sSTG = 40
a('s_waitcnt lgkmcnt(0)')
if DBG:
    a('s_memtime s[26:27]')
    a('s_memrealtime s[0:1]')
    a('s_waitcnt lgkmcnt(0)')
skew_store(0, True)
build_srd(S_WS, P_WSP, L.WS_USED)
a('buffer_load_dword v%d, off, %s, 0 sc1' % (V_T, srd(S_WS)))
a('s_lshl_b32 s%d, s%d, 14' % (sSTG, sW))
a('s_add_u32 s%d, s%d, %d' % (sSTG, sSTG, L.L_R2))

build_srd(S_TMP, P_X, 2048 * 896)
a('v_mul_u32_u24 v2, 896, v%d' % V_TOK)
a('v_lshl_add_u32 v2, v%d, 3, v2' % V_G)
a('s_lshr_b32 s%d, s%d, 1' % (sA, sC))
a('s_lshl_b32 s%d, s%d, 3' % (sB, sS))
a('s_add_u32 s%d, s%d, s%d' % (sO + 0, sA, sB))
a('s_and_b32 s%d, s%d, 1' % (sA, sC))
a('s_mul_i32 s%d, s%d, 7' % (sA, sA))
a('s_add_u32 s%d, s%d, s%d' % (sO + 1, sA, sW))
a('s_cmp_lt_u32 s%d, 3' % sW)
a('s_cselect_b32 s%d, 0, 0x%x' % (sO + 2, INV))
a('s_mul_i32 s%d, s%d, 14336' % (sA, sO + 0))
a('s_lshl_b32 s%d, s%d, 6' % (sB, sO + 1))
a('s_add_u32 s%d, s%d, s%d' % (sA, sA, sB))
a('v_or_b32 v3, s%d, v2' % (sO + 2))
a('buffer_load_dwordx2 v[10:11], v2, %s, s%d offen' % (srd(S_TMP), sA))
a('buffer_load_dwordx2 v[12:13], v2, %s, s%d offen offset:32' % (srd(S_TMP), sA))
a('buffer_load_dwordx2 v[14:15], v3, %s, s%d offen offset:256' % (srd(S_TMP), sA))
a('buffer_load_dwordx2 v[16:17], v3, %s, s%d offen offset:288' % (srd(S_TMP), sA))

build_srd(S_TMP, P_WQKV, 448 * 2688)
qMAT, qU, qINV = sO + 3, sO + 4, sO + 5
a('s_lshl_b32 s%d, s%d, 4' % (sA, sW))
a('s_add_u32 s%d, s%d, s%d' % (sA, sA, sS))
a('s_cmp_lt_u32 s%d, 42' % sA)
a('s_cselect_b32 s%d, 0, 0x%x' % (qINV, INV))
a('s_min_u32 s%d, s%d, 41' % (sA, sA))
a('s_mul_i32 s%d, s%d, 4682' % (qMAT, sA))
a('s_lshr_b32 s%d, s%d, 16' % (qMAT, qMAT))
a('s_mul_i32 s%d, s%d, 14' % (sB, qMAT))
a('s_sub_u32 s%d, s%d, s%d' % (qU, sA, sB))
a('s_mul_i32 s%d, s%d, %d' % (sA, qU, 32 * 2688))
a('s_mul_i32 s%d, s%d, 896' % (sB, qMAT))
a('s_add_u32 s%d, s%d, s%d' % (sA, sA, sB))
a('s_mul_i32 s%d, s%d, 56' % (sB, sC))
a('s_add_u32 s%d, s%d, s%d' % (sA, sA, sB))
a('v_lshrrev_b32 v4, 2, v0')
a('v_mul_u32_u24 v4, 2688, v4')
a('v_and_b32 v5, 3, v0')
a('v_lshl_add_u32 v4, v5, 4, v4')
a('v_or_b32 v4, s%d, v4' % qINV)
a('s_mov_b32 m0, s%d' % sSTG)
a('s_add_u32 s%d, s%d, %d' % (sB, sA, 16 * 2688))
a('buffer_load_dwordx4 v4, %s, s%d offen lds' % (srd(S_TMP), sA))
a('s_add_u32 m0, s%d, 1024' % sSTG)
a('s_nop 0')
a('buffer_load_dwordx4 v4, %s, s%d offen lds' % (srd(S_TMP), sB))

bINV, bDST, bSTR, bINV2, bDST2, sSTRD = 20, 21, 22, 23, 24, 25


def emit_p2_issue():
    a('s_cmp_eq_u32 s%d, 3' % sW)
    a('s_cbranch_scc1 L_p2_w1')
    a('s_lshl_b32 s%d, s%d, 5' % (sA, sW))
    a('s_add_u32 s%d, s%d, s%d' % (sA, sA, sG))
    a('s_cmp_lt_u32 s%d, 72' % sA)
    a('s_cselect_b32 s%d, 0, 0x%x' % (bINV, INV))
    a('s_cmp_eq_u32 s%d, 7' % sJ)
    a('s_cselect_b32 s%d, 0x%x, s%d' % (bINV, INV, bINV))
    a('s_min_u32 s%d, s%d, 71' % (sA, sA))
    a('s_min_u32 s%d, s%d, 6' % (sD, sJ))
    a('s_cmp_lt_u32 s%d, 16' % sA)
    a('s_cselect_b32 s%d, s%d, s%d' % (S_TMP, P_WO, P_W2))
    a('s_cselect_b32 s%d, s%d, s%d' % (S_TMP + 1, P_WO + 1, P_W2 + 1))
    a('s_mov_b32 s%d, 0x%x' % (S_TMP + 2, 1792 * 896))
    a('s_cselect_b32 s%d, 0x%x, s%d' % (S_TMP + 2, 448 * 896, S_TMP + 2))
    a('s_cselect_b32 s%d, 28, 32' % sB)
    a('s_cselect_b32 s%d, 0, 16' % sCc)
    a('s_mov_b32 s%d, %d' % (bSTR, 56 * 1024))
    a('s_cselect_b32 s%d, %d, s%d' % (bSTR, 16 * 1024, bSTR))
    a('s_mov_b32 s%d, %d' % (bDST, L.WD))
    a('s_cselect_b32 s%d, %d, s%d' % (bDST, L.WB, bDST))
    a('s_cselect_b32 s%d, 0x%x, 0' % (sO + 9, INV))
    a('s_and_b32 s%d, s%d, 0xffff' % (S_TMP + 1, S_TMP + 1))
    a('s_mov_b32 s%d, 0x20000' % (S_TMP + 3))
    a('s_sub_u32 s%d, s%d, s%d' % (sA, sA, sCc))
    a('s_lshl_b32 s%d, s%d, 10' % (sCc, sA))
    a('s_add_u32 s%d, s%d, s%d' % (bDST, bDST, sCc))
    a('s_lshl_b32 s%d, s%d, 2' % (sCc, sD))
    a('s_mul_i32 s%d, s%d, s%d' % (sCc, sCc, bSTR))
    a('s_add_u32 s%d, s%d, s%d' % (bDST, bDST, sCc))
    a('s_mul_i32 s%d, s%d, s%d' % (sA, sA, sB))
    a('s_mul_i32 s%d, s%d, 896' % (sA, sA))
    a('s_lshl_b32 s%d, s%d, 7' % (sB, sD))
    a('s_add_u32 s%d, s%d, s%d' % (sO + 10, sA, sB))
    a('s_mov_b32 s%d, 896' % sSTRD)
    a('s_mov_b32 s%d, 0x%x' % (bINV2, INV))
    a('s_mov_b32 s%d, 0' % bDST2)
    a('s_mov_b32 s%d, 0' % (sO + 11))
    a('s_branch L_p2_go')
    a.label('L_p2_w1')
    build_srd(S_TMP, P_W1, 448 * 3584)
    a('s_lshl_b32 s%d, s%d, 4' % (sA, sS))
    a('s_add_u32 s%d, s%d, s%d' % (sA, sA, sC))
    a('s_cmp_lt_u32 s%d, 136' % sA)
    a('s_cselect_b32 s%d, 0, 0x%x' % (bINV2, INV))
    a('s_mov_b32 s%d, 0' % bINV)
    a('s_mov_b32 s%d, 0' % (sO + 9))
    a('s_mov_b32 s%d, %d' % (bSTR, 14 * 1024))
    a('s_mov_b32 s%d, 3584' % sSTRD)
    for dst, src, add in ((bDST, sO + 10, 0), (bDST2, sO + 11, 256)):
        a('s_add_u32 s%d, s%d, %d' % (sB, sA, add))
        a('s_min_u32 s%d, s%d, 391' % (sB, sB))
        a('s_mul_i32 s%d, s%d, 4682' % (sCc, sB))
        a('s_lshr_b32 s%d, s%d, 16' % (sCc, sCc))
        a('s_mul_i32 s%d, s%d, 14' % (sD, sCc))
        a('s_sub_u32 s%d, s%d, s%d' % (sB, sB, sD))
        a('s_mul_i32 s%d, s%d, %d' % (src, sB, 32 * 3584))
        a('s_lshl_b32 s%d, s%d, 7' % (sD, sCc))
        a('s_add_u32 s%d, s%d, s%d' % (src, src, sD))
        a('s_mul_i32 s%d, s%d, 56' % (sD, sCc))
        a('s_add_u32 s%d, s%d, s%d' % (sD, sD, sB))
        a('s_lshl_b32 s%d, s%d, 10' % (sD, sD))
        a('s_add_u32 s%d, s%d, %d' % (dst, sD, L.WC))
    a.label('L_p2_go')
    a('v_lshrrev_b32 v6, 3, v0')
    a('v_mul_lo_u32 v6, v6, s%d' % sSTRD)
    a('v_and_b32 v5, 7, v0')
    a('v_lshl_add_u32 v6, v5, 4, v6')
    a('v_or_b32 v8, s%d, v6' % bINV2)
    a('v_or_b32 v6, s%d, v6' % bINV)
    a('v_cmp_lt_u32 vcc, 31, v0')
    a('v_mov_b32 v7, s%d' % (sO + 9))
    a('v_cndmask_b32 v7, 0, v7, vcc')
    a('v_or_b32 v7, v7, v6')
    a('s_lshl_b32 s%d, s%d, 3' % (sB, sSTRD))
    for slot in range(2):
        src = sO + 10 + slot
        for q in range(4):
            a('s_add_u32 m0, s%d, %d' % (sSTG, 2048 + 4096 * slot + 1024 * q))
            if q:
                a('s_add_u32 s%d, s%d, s%d' % (src, src, sB))
            else:
                a('s_nop 0')
            a('buffer_load_dwordx4 v%d, %s, s%d offen lds' % (8 if slot else (7 if q == 3 else 6), srd(S_TMP), src))


if P2EARLY:
    emit_p2_issue()
build_srd(S_B1, P_B1, 1792 * 2)
build_srd(S_OUT, P_OUT, 2048 * 896)
a('v_bfe_u32 v18, v0, 2, 2')
a('v_lshl_add_u32 v18, v%d, 2, v18' % V_G)
a('v_and_b32 v19, 3, v0')
a('v_lshlrev_b32 v19, 3, v19')
if PREFPOS == 'b':
    emit_pref()
if TOUCH:
    a('v_lshlrev_b32 v21, 21, v0')
    a('s_mov_b64 exec, 0x1ffff')
    a('buffer_load_dword v253, v21, %s, 0 offen' % srd(S_WS))
    a('s_mov_b64 exec, -1')
    a('s_waitcnt vmcnt(%d)' % ((9 if P2EARLY else 1) + (PREFPOS == 'b')))
else:
    a('s_waitcnt vmcnt(%d)' % ((8 if P2EARLY else 0) + (PREFPOS == 'b')))
stamp()

a('v_readfirstlane_b32 s%d, v%d' % (sEP, V_T))
a('s_mov_b32 s%d, 0x9E3779B1' % sA)
a('v_mul_lo_u32 v%d, v%d, s%d' % (V_T, V_T, sA))
a('v_add_u32 v%d, 0x7F4A7C15, v%d' % (V_T, V_T))
a('v_and_b32 v%d, -16, v%d' % (V_T, V_T))
a('v_lshl_add_u32 v20, v18, 6, v19')
a('v_add_u32 v20, s%d, v20' % sSTG)
for hf in range(2):
    a('ds_read_b64_tr_b16 %s, v20 offset:%d' % (vr(24 + 4 * hf, 2), 32 * hf))
    a('ds_read_b64_tr_b16 %s, v20 offset:%d' % (vr(26 + 4 * hf, 2), 32 * hf + 1024))
a('v_readfirstlane_b32 s%d, v%d' % (sT, V_T))
a('s_mul_i32 s%d, s%d, 14' % (sA, sO + 0))
a('s_add_u32 s%d, s%d, s%d' % (sA, sA, sO + 1))
a('s_lshl_b32 s%d, s%d, 10' % (sB, sA))
a('s_add_u32 s%d, s%d, %d' % (sB, sB, L.XA[0]))
a('v_or_b32 v3, s%d, v1' % (sO + 2))
a('buffer_store_dwordx4 v[10:13], v1, %s, s%d offen sc1' % (srd(S_WS), sB))
a('s_add_u32 s%d, s%d, 4096' % (sB, sB))
a('buffer_store_dwordx4 v[14:17], v3, %s, s%d offen sc1' % (srd(S_WS), sB))
a('v_cmp_gt_u32 vcc, 12, v%d' % V_TOK)
a('s_mul_i32 s%d, s%d, 84' % (sB, sC))
a('s_mul_i32 s%d, s%d, 28' % (sCc, qMAT))
a('s_add_u32 s%d, s%d, s%d' % (sB, sB, sCc))
a('s_add_u32 s%d, s%d, s%d' % (sB, sB, qU))
a('s_lshl_b32 s%d, s%d, 10' % (sB, sB))
a('s_add_u32 s%d, s%d, %d' % (sB, sB, L.WA))
a('v_or_b32 v4, s%d, v1' % qINV)
a('s_waitcnt lgkmcnt(0)')
for p in range(4):
    a('v_cndmask_b32 v%d, 0, v%d, vcc' % (28 + p, 28 + p))
a('buffer_store_dwordx4 v[24:27], v4, %s, s%d offen sc1' % (srd(S_WS), sB))
a('s_add_u32 s%d, s%d, %d' % (sB, sB, 14 * 1024))
a('buffer_store_dwordx4 v[28:31], v4, %s, s%d offen sc1' % (srd(S_WS), sB))
a('v_mov_b32 v2, 0x3f803f80')
for k in range(2):
    x, s1, s2 = 10 + 4 * k, 110 + 2 * k, 111 + 2 * k
    a('v_mov_b32 v%d, 0' % s1)
    a('v_mov_b32 v%d, 0' % s2)
    for p in range(4):
        a('v_dot2_f32_bf16 v%d, v%d, v2, v%d' % (s1, x + p, s1))
        a('v_dot2_f32_bf16 v%d, v%d, v%d, v%d' % (s2, x + p, x + p, s2))
    for t in xg_reduce(s1, 114) + xg_reduce(s2, 115):
        a(t)
a('s_lshl_b32 s%d, s%d, 7' % (sB, sA))
a('s_add_u32 s%d, s%d, %d' % (sB, sB, L.SA[0]))
a('v_lshlrev_b32 v2, 3, v%d' % V_TOK)
a('v_or_b32 v3, s%d, v2' % (sO + 2))
a('s_mov_b64 exec, 0xffff')
a('buffer_store_dwordx2 v[110:111], v2, %s, s%d offen sc1' % (srd(S_WS), sB))
a('buffer_store_dwordx2 v[112:113], v3, %s, s%d offen offset:512 sc1' % (srd(S_WS), sB))
a('s_mov_b64 exec, -1')
crit_mark = a.vm_mark()
if not P2EARLY:
    emit_p2_issue()
a('s_lshl_b32 s%d, s%d, 5' % (sA, sO + 0))
a('s_add_u32 s%d, s%d, s%d' % (sA, sA, sO + 1))
a('s_lshl_b32 s%d, s%d, 2' % (sA, sA))
a('s_add_u32 s%d, s%d, %d' % (sA, sA, L.FX[0]))
a('v_lshlrev_b32 v2, 4, v0')
a('v_add_u32 v2, s%d, v2' % sA)
a('v_cmp_eq_u32 vcc, 1, v0')
a('v_mov_b32 v3, s%d' % (sO + 2))
a('v_cndmask_b32 v3, 0, v3, vcc')
a('v_or_b32 v2, v2, v3')
a('s_lshl_b32 s%d, s%d, 6' % (sA, sC))
a('s_lshl_b32 s%d, s%d, 2' % (sB, sS))
a('s_add_u32 s%d, s%d, s%d' % (sA, sA, sB))
a('s_add_u32 s%d, s%d, s%d' % (sA, sA, sW))
a('s_lshl_b32 s%d, s%d, 2' % (sA, sA))
a('s_add_u32 s%d, s%d, %d' % (sA, sA, L.FQ))
a('v_mov_b32 v3, s%d' % sA)
a('v_cmp_eq_u32 vcc, 2, v0')
a('v_cndmask_b32 v2, v2, v3, vcc')
a('s_lshl_b32 s%d, s%d, 4' % (sA, sS))
a('s_add_u32 s%d, s%d, s%d' % (sA, sA, sC))
a('s_lshl_b32 s%d, s%d, 2' % (sA, sA))
a('s_add_u32 s%d, s%d, %d' % (sA, sA, L.FXC))
a('s_cmp_eq_u32 s%d, 0' % sW)
a('s_cselect_b32 s%d, s%d, 0x%x' % (sA, sA, INV))
a('v_mov_b32 v3, s%d' % sA)
a('v_cmp_eq_u32 vcc, 3, v0')
a('v_cndmask_b32 v2, v2, v3, vcc')
a('v_or_b32 v3, s%d, v%d' % (sXCC, V_T))
a('v_cndmask_b32 v3, v%d, v3, vcc' % V_T)
stamp2()
a.wait_vm(crit_mark)
a('s_mov_b64 exec, 15')
a('buffer_store_dword v3, v2, %s, 0 offen sc1' % srd(S_WS))
a('s_mov_b64 exec, -1')
stamp()

if PREFPOS == 'a':
    emit_pref()
BTOUCH = '--btouch' in sys.argv
if BTOUCH:
    a('v_lshlrev_b32 v21, 6, v0')
    a('buffer_load_dword v60, v21, %s, 0 offen' % srd(S_B1))
    build_srd(S_TMP, P_B2, 896)
    a('buffer_load_dword v61, v21, %s, 0 offen' % srd(S_TMP))
skew_store(1)
a('s_waitcnt vmcnt(%d)' % (1 + (PREFPOS == 'a') + 2 * BTOUCH))
a('v_lshl_add_u32 v20, v18, 7, v19')
a('v_add_u32 v20, s%d, v20' % sSTG)
for slot in range(2):
    for t in range(4):
        a('ds_read_b64_tr_b16 %s, v20 offset:%d' % (vr(24 + 16 * slot + 4 * t, 2), 2048 + 4096 * slot + 32 * t))
        a('ds_read_b64_tr_b16 %s, v20 offset:%d' % (vr(26 + 16 * slot + 4 * t, 2), 2048 + 4096 * slot + 32 * t + 2048))
a('v_or_b32 v6, s%d, v1' % bINV)
a('v_or_b32 v8, s%d, v1' % bINV2)
a('s_waitcnt lgkmcnt(8)')
for t in range(4):
    a('buffer_store_dwordx4 %s, v6, %s, s%d offen sc1' % (vr(24 + 4 * t), srd(S_WS), bDST))
    if t < 3:
        a('s_add_u32 s%d, s%d, s%d' % (bDST, bDST, bSTR))
a('s_waitcnt lgkmcnt(0)')
for t in range(4):
    a('buffer_store_dwordx4 %s, v8, %s, s%d offen sc1' % (vr(40 + 4 * t), srd(S_WS), bDST2))
    if t < 3:
        a('s_add_u32 s%d, s%d, s%d' % (bDST2, bDST2, bSTR))
a('s_lshl_b32 s%d, s%d, 4' % (sA, sS))
a('s_add_u32 s%d, s%d, s%d' % (sA, sA, sC))
a('s_lshl_b32 s%d, s%d, 2' % (sA, sA))
a('s_add_u32 s%d, s%d, %d' % (sA, sA, L.FW1))
a('v_lshlrev_b32 v22, 10, v0')
a('v_add_u32 v22, s%d, v22' % sA)
a('v_cmp_eq_u32 vcc, 1, v0')
a('v_mov_b32 v23, s%d' % bINV2)
a('v_cndmask_b32 v23, 0, v23, vcc')
a('v_or_b32 v22, v22, v23')
a('s_cmp_eq_u32 s%d, 3' % sW)
a('s_cselect_b32 s%d, 0, 0x%x' % (sA, INV))
a('v_or_b32 v22, s%d, v22' % sA)

skew_store(3)
a('v_and_b32 v2, 1, v%d' % V_TOK)
a('v_lshlrev_b32 v3, 2, v%d' % V_G)
a('v_add_u32 v6, 2, v%d' % V_TOK)
for i in range(4):
    a('v_add_u32 v4, %d, v3' % i)
    a('v_cmp_eq_u32 vcc, %d, v2' % (i & 1))
    a('s_mov_b64 %s, vcc' % sp(sMK))
    a('v_cmp_ge_u32 vcc, v4, v6')
    a('s_and_b64 %s, vcc, %s' % (sp(sM1 + 2 * i), sp(sMK)))
    a('v_cmp_le_u32 vcc, v4, v%d' % V_TOK)
    a('s_and_b64 %s, vcc, %s' % (sp(sM2 + 2 * i), sp(sMK)))
a('s_lshl_b32 s%d, s%d, 3' % (sA, sS))
a('s_lshl_b32 s%d, s%d, 1' % (sB, sW))
a('s_add_u32 s%d, s%d, s%d' % (sGT, sA, sB))
a('s_cmp_eq_u32 s%d, 0' % sGT)
for i in range(4):
    a('s_cselect_b64 %s, 0, %s' % (sp(sM0 + 2 * i), sp(sM1 + 2 * i)))
a('s_mov_b32 s%d, 0' % sPAIR)

def a_flag_addr(dst):
    pair_base(sA, L.FX)
    a('s_lshl_b32 s%d, s%d, 7' % (sB, sGT))
    a('s_add_u32 s%d, s%d, s%d' % (sA, sA, sB))
    a('s_sub_u32 s%d, s%d, 128' % (sA, sA))
    a('v_and_b32 v%d, 48, v0' % dst)
    a('v_add_u32 v%d, v%d, v0' % (dst, dst))
    a('v_lshl_add_u32 v%d, v%d, 2, s%d' % (dst, dst, sA))
    a('s_mov_b32 s%d, 0x3fff3fff' % sMK)
    a('s_mov_b32 s%d, 0x3fff' % (sMK + 1))
    a('s_cmp_eq_u32 s%d, 0' % sGT)
    a('s_cselect_b32 s%d, 0x3fff0000, s%d' % (sMK, sMK))


a('s_lshl_b32 s%d, s%d, 8' % (sA, sC))
a('s_add_u32 s%d, s%d, %d' % (sA, sA, L.FQ))
a('v_lshl_add_u32 v2, v0, 2, s%d' % sA)
a_flag_addr(3)
a('s_lshl_b32 s%d, s%d, 6' % (sA, sS))
a('s_add_u32 s%d, s%d, %d' % (sA, sA, L.FXC - 48 * 4))
a('v_lshl_add_u32 v4, v0, 2, s%d' % sA)
a('v_cmp_lt_u32 vcc, 47, v0')
a('v_cndmask_b32 v3, v3, v4, vcc')
a('v_mov_b32 v5, -1')
a('v_mov_b32 v6, -16')
a('v_cndmask_b32 v5, v5, v6, vcc')
a('s_or_b32 s%d, s%d, 0xffff0000' % (sMK + 1, sMK + 1))
a('s_mov_b32 s%d, 0' % sSPIN)
a.label('L_poll0')
a('buffer_load_dword v7, v2, %s, 0 offen sc1' % srd(S_WS))
a('s_mov_b64 exec, %s' % sp(sMK))
a('buffer_load_dword v8, v3, %s, 0 offen sc1' % srd(S_WS))
a('s_waitcnt vmcnt(0)')
a('v_and_b32 v9, v5, v8')
a('v_cmp_ne_u32 vcc, s%d, v9' % sT)
a('s_mov_b64 exec, -1')
a('s_mov_b64 %s, vcc' % sp(sTS))
a('v_cmp_ne_u32 vcc, s%d, v7' % sT)
a('s_or_b64 vcc, vcc, %s' % sp(sTS))
a('s_cbranch_vccz L_poll0_done')
a('s_add_u32 s%d, s%d, 1' % (sSPIN, sSPIN))
a('s_cmp_lt_u32 s%d, %d' % (sSPIN, SPIN_LIMIT))
a('s_cbranch_scc1 L_poll0')
a('s_add_u32 s%d, s%d, 1' % (sERR, sERR))
a.label('L_poll0_done')
a('s_mov_b64 exec, 3')
a('buffer_store_dword v%d, v22, %s, 0 offen sc1' % (V_T, srd(S_WS)))
a('s_mov_b64 exec, -1')
skew_store(2)
a('v_and_b32 v9, 15, v8')
a('v_cmp_ne_u32 vcc, s%d, v9' % sXCC)
a('s_and_b32 s%d, vcc_hi, 0xffff0000' % sA)
a('s_cmp_eq_u32 s%d, 0' % sA)
a('s_cselect_b32 s%d, 1, 0' % sFAST)
stamp()
AQ, AK, AV, HACC = 2, 18, 34, 50
WBUF = [66, 90]
XR = 114
CSACC = 186
STR = 210
SM, SR = 234, 237
NR, LOOK = 6, 4
A_ONES = 240


def a_xload(u):
    slot = u % NR
    return ['buffer_load_dwordx4 %s, v1, %s, s%d offen offset:%d sc1' %
            (vr(XR + (slot * 2 + t) * 4), srd(S_WS), sO + 4 * (t + 1) + (u >> 2), 1024 * (u & 3)) for t in range(2)]


def a_offsets():
    pair_base(sA, L.XA)
    a('s_mul_i32 s%d, s%d, 14336' % (sB, sGT))
    a('s_add_u32 s%d, s%d, s%d' % (sO + 4, sA, sB))
    a('s_add_u32 s%d, s%d, 14336' % (sO + 8, sO + 4))
    for t in range(1, 3):
        for q in range(1, 4):
            a('s_add_u32 s%d, s%d, %d' % (sO + 4 * t + q, sO + 4 * t, 4096 * q))
    a('s_lshl_b32 s%d, s%d, 3' % (sB, sS))
    a('s_max_u32 s%d, s%d, 1' % (sB, sB))
    a('s_sub_u32 s%d, s%d, 1' % (sB, sB))
    a('s_mul_i32 s%d, s%d, 14336' % (sB, sB))
    a('s_add_u32 s%d, s%d, s%d' % (sO + 0, sA, sB))
    a('s_lshl_b32 s%d, s%d, 12' % (sB, sW))
    a('s_add_u32 s%d, s%d, s%d' % (sO + 0, sO + 0, sB))
    a('s_add_u32 s%d, s%d, %d' % (sO + 1, sB, L.L_R2))


def a_setup():
    if FASTMODE == 'flags':
        a('s_mov_b32 s%d, 0' % sFD)
        a('s_mov_b32 s%d, 0' % sFH)
    elif FASTMODE == 'p0':
        a('s_xor_b32 s%d, s%d, 1' % (sFD, sPAIR))
        a('s_and_b32 s%d, s%d, s%d' % (sFD, sFD, sFAST))
        a('s_mov_b32 s%d, s%d' % (sFH, sFD))
    elif FASTMODE == 'small':
        a('s_mov_b32 s%d, s%d' % (sFD, sFAST))
        a('s_mov_b32 s%d, 0' % sFH)
    elif FASTMODE == 'smallp0':
        a('s_mov_b32 s%d, s%d' % (sFD, sFAST))
        a('s_xor_b32 s%d, s%d, 1' % (sFH, sPAIR))
        a('s_and_b32 s%d, s%d, s%d' % (sFH, sFH, sFAST))
    else:
        a('s_mov_b32 s%d, s%d' % (sFD, sFAST))
        a('s_mov_b32 s%d, s%d' % (sFH, sFAST))
    pair_base(sA, L.SA)
    a('s_mul_i32 s%d, s%d, 1792' % (sB, sGT))
    a('s_add_u32 s%d, s%d, s%d' % (sO + 13, sA, sB))
    a('s_add_u32 s%d, s%d, 1792' % (sO + 14, sO + 13))
    a('s_sub_u32 s%d, s%d, 1792' % (sO + 12, sO + 13))
    a('s_cmp_eq_u32 s%d, 0' % sGT)
    a('s_cselect_b32 s%d, s%d, s%d' % (sO + 12, sO + 13, sO + 12))
    a('v_and_b32 v%d, 15, v0' % V_TOK)
    a('v_lshrrev_b32 v%d, 4, v0' % V_G)
    a('v_lshlrev_b32 v240, 3, v%d' % V_TOK)
    a('v_lshl_add_u32 v240, v%d, 7, v240' % V_G)
    a('v_mov_b32 v242, 0x%x' % INV)
    a('v_cmp_lt_u32 vcc, 1, v%d' % V_G)
    a('v_cndmask_b32 v241, 0, v242, vcc')
    a('v_or_b32 v241, v241, v240')
    a('v_add_u32 v243, %d, v1' % (56 * 1024))
    a('v_lshlrev_b32 v244, 4, v%d' % V_G)
    a('v_add_u32 v244, %d, v244' % L.L_CSA)
    a('v_lshlrev_b32 v245, 2, v%d' % V_TOK)
    a('v_add_u32 v245, %d, v245' % L.L_CSA)
    a('s_mul_i32 s%d, s%d, 384' % (sA, sW))
    a('s_add_u32 s%d, s%d, %d' % (sA, sA, L.L_STA))
    a('v_lshl_add_u32 v162, v%d, 2, s%d' % (V_TOK, sA))
    a('v_lshl_add_u32 v163, v%d, 4, s%d' % (V_G, sA))
    a('s_lshl_b32 s%d, s%d, 7' % (sA, sJ))
    a('s_add_u32 s%d, s%d, %d' % (sA, sA, L.FP))
    a('v_lshl_add_u32 v248, v0, 2, s%d' % sA)
    a('s_lshr_b32 s%d, s%d, 1' % (sB, sW))
    a('s_lshl_b32 s%d, s%d, 2' % (sCc, sG))
    a('s_add_u32 s%d, s%d, s%d' % (sB, sB, sCc))
    a('s_lshl_b32 s%d, s%d, 5' % (sB, sB))
    a('s_and_b32 s%d, s%d, 1' % (sA, sW))
    a('s_add_u32 s%d, s%d, s%d' % (sB, sB, sA))
    a('s_min_u32 s%d, s%d, 6' % (sA, sJ))
    a('s_lshl_b32 s%d, s%d, 1' % (sA, sA))
    a('s_add_u32 s%d, s%d, s%d' % (sB, sB, sA))
    a('s_lshl_b32 s%d, s%d, 2' % (sB, sB))
    a('s_add_u32 s%d, s%d, %d' % (sB, sB, L.FX[0] - 32 * 256))
    a('v_lshl_add_u32 v249, v0, 8, s%d' % sB)
    a('v_cmp_lt_u32 vcc, 31, v0')
    a('v_cndmask_b32 v248, v248, v249, vcc')
    a('s_lshr_b32 s%d, s%d, 3' % (sA, sC))
    a('s_mul_i32 s%d, s%d, 7' % (sA, sA))
    a('s_min_u32 s%d, s%d, 6' % (sB, sJ))
    a('s_add_u32 s%d, s%d, s%d' % (sA, sA, sB))
    a('s_mul_i32 s%d, s%d, 112' % (sA, sA))
    a('s_add_u32 s%d, s%d, %d' % (sA, sA, L.FW1 - 34 * 4))
    a('v_lshl_add_u32 v249, v0, 2, s%d' % sA)
    a('v_cmp_lt_u32 vcc, 33, v0')
    a('v_cndmask_b32 v248, v248, v249, vcc')
    a('s_lshl_b32 s%d, s%d, 7' % (sA, sS))
    a('s_add_u32 s%d, s%d, %d' % (sA, sA, L.FH))
    a('v_and_b32 v247, 15, v0')
    a('v_lshl_add_u32 v247, v247, 2, s%d' % sA)
    a('s_lshl_b32 s%d, s%d, 7' % (sB, sGT))
    a('s_add_u32 s%d, s%d, %d' % (sB, sB, L.FX[1] - 128))
    a('v_lshl_add_u32 v253, v0, 2, s%d' % sB)
    a('s_cmp_eq_u32 s%d, 0' % sW)
    a('s_cselect_b32 s%d, 0, 16' % sA)
    a('v_cmp_gt_u32 vcc, s%d, v0' % sA)
    a('v_cndmask_b32 v247, v247, v253, vcc')
    a('s_mov_b32 s%d, 0x3fff3fff' % sMK2)
    a('s_mov_b32 s%d, 0' % (sMK2 + 1))
    a('s_cmp_eq_u32 s%d, 0' % sS)
    a('s_cselect_b32 s%d, 0x3fff, s%d' % (sMK2, sMK2))
    a('v_and_b32 v253, 15, v0')
    a('v_lshlrev_b32 v253, 2, v253')
    a('v_add_u32 v253, %d, v253' % L.FX[1])
    a('s_cmp_eq_u32 s%d, 0' % sGT)
    a('s_cselect_b64 vcc, -1, 0')
    a('v_cndmask_b32 v247, v247, v253, vcc')


stat_loads = ['buffer_load_dwordx2 %s, v%d, %s, s%d offen offset:%d sc1' %
              (vr(STR + (t * 4 + i) * 2, 2), 241 if i == 3 else 240, srd(S_WS), sO + 12 + t, 512 * i)
              for t in range(3) for i in range(4)]


def a_wread(u):
    b = WBUF[u & 1]
    o = []
    for p in range(6):
        if p < 4:
            o.append('ds_read_b128 %s, v1 offset:%d' % (vr(b + 4 * p), L.L_WA + (p * 14 + u) * 1024))
        else:
            o.append('ds_read_b128 %s, v243 offset:%d' % (vr(b + 4 * p), L.L_WA + ((p - 4) * 14 + u) * 1024))
    return o


stat_fill = []
for t in (1, 2, 0):
    r = STR + 8 * t
    for c_ in range(2):
        stat_fill += ['v_add_f32 v%d, v%d, v%d' % (r + c_, r + c_, r + 2 + c_),
                      'v_add_f32 v%d, v%d, v%d' % (r + 4 + c_, r + 4 + c_, r + 6 + c_),
                      'v_add_f32 v%d, v%d, v%d' % (r + c_, r + c_, r + 4 + c_)]
    stat_fill += xg_reduce(r, r + 2) + xg_reduce(r + 1, r + 3)
    stat_fill += stats_finish(r, r + 1, r + 2, False)
    stat_fill += ['v_mov_b32 v%d, v%d' % (SM + t, r), 'v_mov_b32 v%d, v%d' % (SR + t, r + 1)]

sWA = [20, 21, 22]
sWAG = 23


def wa_dma(pr, i):
    def f():
        a('s_add_u32 m0, s%d, %d' % (sWA[i], L.L_WA + 2048 * pr))
        a('s_add_u32 s%d, s%d, s%d' % (sD, sWA[i], sWAG))
        if pr:
            a('s_add_u32 s%d, s%d, %d' % (sD, sD, 2048 * pr))
        a('buffer_load_dwordx4 v1, %s, s%d offen sc1 lds' % (srd(S_WS), sD))
    return f


amark = {}


def emit_a_loop(first, xmark, wam):
    ep_mark = es_mark = st_mark = None
    for t in a_wread(0):
        a(t)
    for u in range(14):
        need = xmark[u]
        if u == 8:
            need = max(need, amark['st_own'])
        if u == 11:
            need = max(need, st_mark)
        a.wait_vm(need)
        if not first and u == 6:
            early_check(246, 247, es_mark)
            a('s_nop 0')
        if u == 11:
            a('s_mov_b32 s%d, -1' % sMK2)
            a('s_mov_b32 s%d, 0x3fffffff' % (sMK2 + 1))
        a('s_waitcnt lgkmcnt(0)')
        wb = WBUF[u & 1]
        xs = XR + (u % NR) * 8
        mf = []
        cz = (lambda r: '0') if u == 0 else (lambda r: vr(r))
        for t in range(2):
            for hf in range(2):
                r = AQ + (t * 2 + hf) * 4
                mf.append('%s %s, %s, %s, %s' % (MFMA, vr(r), vr(wb + 4 * hf), vr(xs + 4 * t), cz(r)))
        for t in range(2):
            for hf in range(2):
                r = AK + (t * 2 + hf) * 4
                mf.append('%s %s, %s, %s, %s' % (MFMA, vr(r), vr(wb + 8 + 4 * hf), vr(xs + 4 * t), cz(r)))
        for t in range(2):
            for hf in range(2):
                r = AV + (t * 2 + hf) * 4
                mf.append('%s %s, %s, %s, %s' % (MFMA, vr(r), vr(xs + 4 * t), vr(wb + 16 + 4 * hf), cz(r)))
        if first:
            mf.append('%s %s, %s, %s, %s' % (MFMA, vr(CSACC + 8), vr(CSACC), ar(A_ONES), cz(CSACC + 8)))
            mf.append('%s %s, %s, %s, %s' % (MFMA, vr(CSACC + 12), ar(A_ONES), vr(CSACC + 4), cz(CSACC + 12)))
        mem = {}

        def put(k, x):
            mem.setdefault(k, []).append(x)
        nm = len(mf)
        off = 0
        if first:
            a('ds_read_b128 %s, v252 offset:%d' % (vr(CSACC), 1024 * u))
            a('ds_read_b128 %s, v242 offset:%d' % (vr(CSACC + 4), 1024 * u))
            put(11, 's_waitcnt lgkmcnt(%d)' % (6 if u < 13 else 0))
        if first and u % 2 == 1 and u < 13:
            put(2, ('bar', (u + 1) // 2))
            off = 3
        if u < 13:
            for k, x in enumerate(a_wread(u + 1)):
                put(off + k, x)
        elif not first:
            for p in range(4):
                put(p, 'ds_read_b128 %s, v244 offset:%d' % (vr(WBUF[0] + 4 * p), 64 * p))
            for d in range(2):
                put(4 + d, 'ds_read_b32 v%d, v245 offset:%d' % (WBUF[0] + 16 + d, 64 * (4 + d)))
        if first and u < 2:
            for j_, uu in enumerate((2 * u + 2, 2 * u + 3)):
                for k, x in zip((6, 8), a_xload(uu)):
                    put(k + 4 * j_, x)
                put(8 + 4 * j_, ('xm', uu))
            if u == 0:
                for i, k in enumerate((7, 9, 11)):
                    put(k, ('wa', 2, i))
        elif u + LOOK < 14:
            for k, x in zip((6, 9), a_xload(u + LOOK)):
                put(k, x)
            put(9, ('xm', u + LOOK))
        if first and u % 2 == 0 and u // 2 + 3 <= 6:
            for i, k in enumerate((12, 13, 13) if u == 0 else (7, 10, 12)):
                put(k, ('wa', u // 2 + 3, i))
        order = list(range(4, 12)) + list(range(0, 4))
        if 2 <= u < 6:
            for k, x in zip((8, 11), order[2 * (u - 2):2 * (u - 2) + 2]):
                put(k, stat_loads[x])
            if u == 5:
                put(11, ('sto',))
        if not first and u == 3:
            put(7, ('estat',))
        if u in (7, 8):
            for k, x in zip((8, 11), order[8 + 2 * (u - 7):8 + 2 * (u - 7) + 2]):
                put(k, stat_loads[x])
            if u == 8:
                put(11, ('st',))
        if u == 6:
            put(10, 's_mov_b32 m0, s%d' % (sO + 1))
            for i, k in enumerate((10, 10, 11, 11)):
                put(k, 'buffer_load_dwordx4 v1, %s, s%d offen offset:%d sc1 lds' % (srd(S_WS), sO + 0, 1024 * i))
            put(11, ('hm',))
        if u == 13:
            put(8, ('early',))
        fill = []
        if 8 <= u < 11:
            fill = stat_fill[(u - 8) * 18:(u - 7) * 18]
        elif u in (11, 12):
            fill = stat_fill[54 + (u - 11) * 14:54 + (u - 10) * 14]
        if u == 13:
            put(1, 's_mov_b64 exec, 0xffff')
            for t in range(3):
                put(1, 'ds_write_b32 v162, v%d offset:%d' % (SM + t, 128 * t))
                put(1, 'ds_write_b32 v162, v%d offset:%d' % (SR + t, 128 * t + 64))
            put(1, 's_mov_b64 exec, -1')
        fi = 0
        for k, m in enumerate(mf):
            a(m)
            for it in mem.get(k, []):
                if isinstance(it, str):
                    a(it)
                elif it[0] == 'early':
                    ep_mark = early_issue(249, 248)
                elif it[0] == 'estat':
                    es_mark = early_issue(246, 247)
                elif it[0] == 'xm':
                    xmark[it[1]] = a.vm_mark()
                elif it[0] == 'st':
                    st_mark = a.vm_mark()
                elif it[0] == 'sto':
                    amark['st_own'] = a.vm_mark()
                elif it[0] == 'hm':
                    amark['halo'] = a.vm_mark()
                elif it[0] == 'bar':
                    a.wait_vm(wam[it[1]])
                    a('s_barrier')
                elif it[0] == 'wa':
                    wa_dma(it[1], it[2])()
                    wam[it[1]] = a.vm_mark()
            for _ in range(2):
                if fi < len(fill) and k >= 1:
                    a(fill[fi])
                    fi += 1
        assert fi == len(fill), (u, fi, len(fill))
    amark['ep'] = ep_mark


for p in range(4):
    a('v_mov_b32 v4, 0x3f803f80')
    a('v_accvgpr_write_b32 a%d, v4' % (A_ONES + p))
a('s_mul_i32 s%d, s%d, 14336' % (sWA[0], sW))
a('s_add_u32 s%d, s%d, 4' % (sA, sW))
a('s_mul_i32 s%d, s%d, 14336' % (sA, sA))
a('s_sub_u32 s%d, s%d, 2' % (sB, sW))
a('s_mul_i32 s%d, s%d, 14336' % (sB, sB))
a('s_add_u32 s%d, s%d, 1024' % (sB, sB))
a('s_cmp_lt_u32 s%d, 2' % sW)
a('s_cselect_b32 s%d, s%d, s%d' % (sWA[1], sA, sB))
a('s_add_u32 s%d, s%d, 2' % (sA, sW))
a('s_mul_i32 s%d, s%d, 14336' % (sA, sA))
a('s_add_u32 s%d, s%d, 1024' % (sWA[2], sA))
a('s_mul_i32 s%d, s%d, %d' % (sWAG, sC, 84 * 1024))
a('s_add_u32 s%d, s%d, %d' % (sWAG, sWAG, L.WA))
a_offsets()
xm0, wam0 = {}, {}


def wa_pair(pr):
    for i in range(3):
        wa_dma(pr, i)()
    wam0[pr] = a.vm_mark()


wa_pair(0)
for u in range(2):
    for t in a_xload(u):
        a(t)
    xm0[u] = a.vm_mark()
wa_pair(1)
a_setup()
a('s_mul_i32 s%d, s%d, 14336' % (sA, sW))
a('v_add_u32 v252, s%d, v1' % sA)
a('s_and_b32 s%d, s%d, 1' % (sA, sW))
a('s_mul_i32 s%d, s%d, 14336' % (sA, sA))
a('v_add_u32 v242, s%d, v243' % sA)
a.wait_vm(wam0[0])
a('s_barrier')
a('s_lshl_b32 s%d, s%d, 5' % (sA, sJ))
a('s_add_u32 s%d, s%d, s%d' % (sA, sA, sG))
a('s_lshl_b32 s%d, s%d, 2' % (sA, sA))
a('s_add_u32 s%d, s%d, %d' % (sA, sA, L.FP))
a('s_cmp_eq_u32 s%d, 0' % sW)
a('s_cselect_b32 s%d, s%d, 0x%x' % (sA, sA, INV))
a('v_mov_b32 v2, s%d' % sA)
a('s_mov_b64 exec, 1')
a('buffer_store_dword v%d, v2, %s, 0 offen sc1' % (V_T, srd(S_WS)))
a.vm_issued -= 1
a('s_mov_b64 exec, -1')
stamp()
emit_a_loop(True, xm0, wam0)
n_join = a.vm_issued - amark['ep']
CSQ = WBUF[0]
a('v_cmp_eq_u32 vcc, 0, v%d' % V_TOK)
a('s_lshl_b32 s%d, s%d, 6' % (sA, sW))
a('v_add_u32 v252, s%d, v244' % sA)
a('s_and_b32 s%d, s%d, 1' % (sA, sW))
a('s_lshl_b32 s%d, s%d, 6' % (sA, sA))
a('v_add_u32 v242, s%d, v245' % sA)
a('s_mov_b64 exec, vcc')
a('ds_write_b128 v252, %s' % vr(CSACC + 8))
a('s_mov_b64 exec, 0xffff')
a('ds_write_b32 v242, v%d offset:256' % (CSACC + 12))
a('s_mov_b64 exec, -1')
a('s_waitcnt lgkmcnt(0)')
a('s_barrier')
for p in range(4):
    a('ds_read_b128 %s, v244 offset:%d' % (vr(WBUF[0] + 4 * p), 64 * p))
for d in range(2):
    a('ds_read_b32 v%d, v245 offset:%d' % (WBUF[0] + 16 + d, 64 * (4 + d)))
with OutOfLine():
    a.label('L_pair')
    a_flag_addr(2)
    a('s_mov_b32 s%d, 0x3fff0000' % sMK)
    ASLEEP = int(([x[9:] for x in sys.argv if x.startswith('--asleep=')] + ['0'])[0])
    poll(2, None, ASLEEP)
    stamp()
    a_offsets()
    xmark = {}
    for u in range(LOOK):
        for t in a_xload(u):
            a(t)
        xmark[u] = a.vm_mark()
    a_setup()
    emit_a_loop(False, xmark, None)
    assert a.vm_issued - amark['ep'] == n_join
    ep_mark = amark['ep']
    a('s_branch L_a_epi')
a.label('L_a_epi')
stamp()
a('s_add_u32 s%d, s%d, 2' % (sA, sW))
a('s_mul_i32 s%d, s%d, 14336' % (sA, sA))
a('v_add_u32 v246, s%d, v1' % sA)
a('v_add_u32 v247, %d, v1' % L.L_R2)
a('s_cmp_lt_u32 s%d, 2' % sW)
a('s_cselect_b64 vcc, -1, 0')
a('v_cndmask_b32 v252, v247, v246, vcc')
a('v_cndmask_b32 v253, v246, v247, vcc')
MROW, RROW = 114, 126
for t in range(3):
    a('ds_read_b128 %s, v163 offset:%d' % (vr(MROW + 4 * t), 128 * t))
    a('ds_read_b128 %s, v163 offset:%d' % (vr(RROW + 4 * t), 128 * t + 64))
a.wait_vm(amark['halo'])
a('s_barrier')
HOP = 90
def h_reads(u):
    r = HOP + 8 * (u % 3)
    return ['ds_read_b128 %s, v252 offset:%d' % (vr(r), 1024 * u), 'ds_read_b128 %s, v253 offset:%d' % (vr(r + 4), 1024 * u)]
for u in range(2):
    for x in h_reads(u):
        a(x)
rest = []
for u in range(14):
    if u + 2 < 14:
        for x in h_reads(u + 2):
            a(x)
    a('s_waitcnt lgkmcnt(%d)' % (4 if u < 12 else (2 if u == 12 else 0)))
    r = HOP + 8 * (u % 3)
    a('%s %s, %s, %s, %s' % (MFMA, vr(HACC), vr(r), vr(r + 4), '0' if u == 0 else vr(HACC)))
    if rest:
        a(rest.pop(0))
for x in rest:
    a(x)
stamp2()
early_check(249, 248, ep_mark)
BW = 2
a('s_lshl_b32 s%d, s%d, 6' % (sA, sJ))
a('s_lshl_b32 s%d, s%d, 2' % (sB, sW))
a('s_add_u32 s%d, s%d, s%d' % (sA, sA, sB))
a('s_lshl_b32 s%d, s%d, 10' % (sA, sA))
a('s_add_u32 s20, s%d, %d' % (sA, L.WB))
for t in range(1, 4):
    a('s_add_u32 s%d, s20, %d' % (20 + t, 16 * 1024 * t))
wb_all = ['buffer_load_dwordx4 %s, v1, %s, s%d offen offset:%d sc1' % (vr(BW + (i * 4 + t) * 4), srd(S_WS), 20 + t, 1024 * i)
          for i in range(4) for t in range(4)]
for x in wb_all[13:16]:
    a(x)
wb_loads = wb_all[8:13]
A_RES, A_B2 = 224, 232


def red_addrs():
    a('s_lshl_b32 s%d, s%d, 13' % (sA, sW))
    a('s_add_u32 s%d, s%d, %d' % (sA, sA, L.L_R2))
    a('v_add_u32 v248, s%d, v1' % sA)
    a('s_and_b32 s%d, s%d, 1' % (sA, sW))
    a('s_lshl_b32 s%d, s%d, 11' % (sA, sA))
    a('s_lshr_b32 s%d, s%d, 1' % (sB, sW))
    a('s_lshl_b32 s%d, s%d, 12' % (sB, sB))
    a('s_add_u32 s%d, s%d, s%d' % (sA, sA, sB))
    a('s_add_u32 s%d, s%d, %d' % (sA, sA, L.L_R2))
    a('v_add_u32 v249, s%d, v1' % sA)


def publish_setup(xbase, sbase, fbase, per_pair, fsh):
    owner_index()
    a('s_mul_i32 s%d, s%d, 14' % (sCc, sB))
    a('s_add_u32 s%d, s%d, s%d' % (sCc, sCc, sA))
    a('s_lshl_b32 s%d, s%d, 10' % (sPX, sCc))
    a('s_lshl_b32 s%d, s%d, 7' % (sPS, sCc))
    a('s_lshl_b32 s%d, s%d, %d' % (sPF, sB, fsh))
    a('s_add_u32 s%d, s%d, s%d' % (sPF, sPF, sA))
    a('s_lshl_b32 s%d, s%d, 2' % (sPF, sPF))
    for dst, arr in ((sPX, xbase), (sPS, sbase), (sPF, fbase)):
        if per_pair:
            pair_base(sD, arr)
            a('s_add_u32 s%d, s%d, s%d' % (dst, dst, sD))
        else:
            a('s_add_u32 s%d, s%d, %d' % (dst, dst, arr))
    a('s_add_u32 s%d, s%d, %d' % (sPX2, sPX, 2 * 14336))


def owner_index():
    a('s_lshr_b32 s%d, s%d, 1' % (sB, sW))
    a('s_lshl_b32 s%d, s%d, 2' % (sCc, sG))
    a('s_add_u32 s%d, s%d, s%d' % (sB, sB, sCc))
    a('s_and_b32 s%d, s%d, 1' % (sA, sW))
    a('s_lshl_b32 s%d, s%d, 1' % (sCc, sJ))
    a('s_add_u32 s%d, s%d, s%d' % (sA, sA, sCc))


a('s_cmp_eq_u32 s%d, 0' % sPAIR)
a('s_cbranch_scc0 L_a_nores')
owner_index()
a('s_mul_i32 s%d, s%d, 14' % (sB, sB))
a('s_add_u32 s%d, s%d, s%d' % (sB, sB, sA))
a('s_lshl_b32 s%d, s%d, 10' % (sB, sB))
a('s_add_u32 s%d, s%d, %d' % (sB, sB, L.XA[0]))
a('buffer_load_dwordx4 %s, v1, %s, s%d offen sc1' % (ar(A_RES), srd(S_WS), sB))
a('s_add_u32 s%d, s%d, %d' % (sB, sB, 2 * 14336))
a('buffer_load_dwordx4 %s, v1, %s, s%d offen sc1' % (ar(A_RES + 4), srd(S_WS), sB))
build_srd(S_TMP, P_B2, 896)
a('s_lshl_b32 s%d, s%d, 6' % (sB, sA))
a('v_lshlrev_b32 v240, 3, v%d' % V_G)
a('buffer_load_dwordx2 v[228:229], v240, %s, s%d offen' % (srd(S_TMP), sB))
a('buffer_load_dwordx2 v[230:231], v240, %s, s%d offen offset:32' % (srd(S_TMP), sB))
a.label('L_a_nores')
CSQ = WBUF[0]
QF, KF, VF = 140, 148, 160


def pk(op, dst, srcs, neg=None):
    ops, lo, hi = [], [], []
    for x in srcs:
        if isinstance(x, tuple):
            ops.append(vr(x[1] & ~1, 2))
            lo.append(x[1] & 1)
            hi.append(x[1] & 1)
        else:
            ops.append(vr(x, 2))
            lo.append(0)
            hi.append(1)
    t = '%s %s, %s op_sel:[%s] op_sel_hi:[%s]' % (op, vr(dst, 2), ', '.join(ops), ','.join(map(str, lo)), ','.join(map(str, hi)))
    if neg is not None:
        m = ','.join('1' if k == neg else '0' for k in range(len(srcs)))
        t += ' neg_lo:[%s] neg_hi:[%s]' % (m, m)
    return t


for t in range(2):
    for hf in range(2):
        r = AQ + (t * 2 + hf) * 4
        for i in (0, 2):
            a(pk('v_pk_fma_f32', r + i, [('b', SM + t + 1), CSQ + 4 * hf + i, r + i], 0))
        for p in range(2):
            a('v_cvt_pk_bf16_f32 v%d, v%d, v%d' % (QF + 4 * t + 2 * hf + p, r + 2 * p, r + 2 * p + 1))
        a(wb_all[2 * t + hf])
for t in range(2):
    for hf in range(2):
        r = AK + (t * 2 + hf) * 4
        for i in (0, 2):
            a(pk('v_pk_fma_f32', r + i, [('b', SM + t + 1), CSQ + 8 + 4 * hf + i, r + i], 0))
        for p in range(2):
            a('v_cvt_pk_bf16_f32 v%d, v%d, v%d' % (KF + 4 * (t + 1) + 2 * hf + p, r + 2 * p, r + 2 * p + 1))
        a(wb_all[4 + 2 * t + hf])
L_E, L_HX = L.L_R2 + 16384, L.L_R2 + 26624
a('s_lshl_b32 s%d, s%d, 11' % (sA, sW))
a('s_add_u32 s%d, s%d, %d' % (sA, sA, L_E))
a('v_add_u32 v246, s%d, v1' % sA)
a('s_lshl_b32 s%d, s%d, 10' % (sA, sW))
a('s_add_u32 s%d, s%d, %d' % (sA, sA, L_HX))
a('v_add_u32 v247, s%d, v1' % sA)
a('s_waitcnt lgkmcnt(0)')
for t in range(2):
    for d in range(2):
        r = AV + (t * 2 + d) * 4
        for i in (0, 2):
            a(pk('v_pk_fma_f32', r + i, [MROW + 4 * (t + 1) + i, ('b', CSQ + 16 + d), r + i], 0))
        for p in range(2):
            a('v_cvt_pk_bf16_f32 v%d, v%d, v%d' % (VF + 6 * d + 2 * (t + 1) + p, r + 2 * p, r + 2 * p + 1))
a('ds_write_b128 v246, %s offset:2048' % vr(KF + 8))
a('ds_write_b64 v246, %s offset:3072' % vr(VF + 4, 2))
a('ds_write_b64 v246, %s offset:3080' % vr(VF + 10, 2))
a('ds_write_b128 v247, %s' % vr(HACC))
pair_base(sA, L.O)
a('s_lshl_b32 s%d, s%d, 4' % (sB, sGT))
a('s_add_u32 s%d, s%d, s%d' % (sB, sB, sC))
a('s_lshl_b32 s%d, s%d, 10' % (sB, sB))
a('s_add_u32 s32, s%d, s%d' % (sA, sB))
a('s_add_u32 s33, s32, 16384')
stamp2()
a('s_waitcnt lgkmcnt(0)')
a('s_barrier')
stamp2()
SS = 172
a('s_cmp_eq_u32 s%d, 0' % sW)
a('s_cbranch_scc1 L_a_halo')
a('ds_read_b128 %s, v246' % vr(KF))
a('ds_read_b64 %s, v246 offset:1024' % vr(VF, 2))
a('ds_read_b64 %s, v246 offset:1032' % vr(VF + 6, 2))
a('s_waitcnt lgkmcnt(0)')
a('s_branch L_a_prev')
a.label('L_a_halo')
a('v_add_u32 v247, %d, v1' % L_HX)
for p in range(4):
    a('ds_read_b128 %s, v247 offset:%d' % (vr(SS + 4 * p), 1024 * p))
a('s_waitcnt lgkmcnt(0)')
for hf in range(2):
    r = SS + 4 * hf
    for i in (0, 2):
        a(pk('v_pk_fma_f32', r + i, [('b', SM), CSQ + 8 + 4 * hf + i, r + i], 0))
    for p in range(2):
        a('v_cvt_pk_bf16_f32 v%d, v%d, v%d' % (KF + 2 * hf + p, r + 2 * p, r + 2 * p + 1))
for d in range(2):
    r = SS + 8 + 4 * d
    for i in (0, 2):
        a(pk('v_pk_fma_f32', r + i, [MROW + i, ('b', CSQ + 16 + d), r + i], 0))
    for p in range(2):
        a('v_cvt_pk_bf16_f32 v%d, v%d, v%d' % (VF + 6 * d + p, r + 2 * p, r + 2 * p + 1))
a.label('L_a_prev')
a('s_nop 1')
for t in range(2):
    a('%s %s, %s, %s, 0' % (MFMA, vr(SS + 8 * t), vr(KF + 4 * t), vr(QF + 4 * t)))
    a('%s %s, %s, %s, 0' % (MFMA, vr(SS + 8 * t + 4), vr(KF + 4 * t + 4), vr(QF + 4 * t)))
SCALE = (28.0 ** -0.5) * 1.4426950408889634
MX, CC, LS, TMPR = 190, 192, 194, 196
PF = 200
SUMT = [(224, 226), (232, 188)]
a('v_mov_b32 v198, 0xff800000')
seq = [[], []]
for t in range(2):
    s_ = SS + 8 * t
    q = seq[t]
    rr = lambda e: RROW + 4 * (t + (e >> 2)) + (e & 3)
    for e in range(0, 8, 2):
        q.append(pk('v_pk_mul_f32', s_ + e, [s_ + e, rr(e)]))
    for e in range(8):
        mk = (sM0 if t == 0 else sM1) + 2 * e if e < 4 else sM2 + 2 * (e - 4)
        q.append('v_cndmask_b32 v%d, v198, v%d, %s' % (s_ + e, s_ + e, sp(mk)))
    q.append('v_max3_f32 v%d, v%d, v%d, v%d' % (MX + t, s_, s_ + 1, s_ + 2))
    q.append('v_max3_f32 v%d, v%d, v%d, v%d' % (MX + t, MX + t, s_ + 3, s_ + 4))
    q.append('v_max3_f32 v%d, v%d, v%d, v%d' % (MX + t, MX + t, s_ + 5, s_ + 6))
    q.append('v_max_f32 v%d, v%d, v%d' % (MX + t, MX + t, s_ + 7))
    q += xg_reduce(MX + t, TMPR + t, 'v_max_f32')
    q.append('v_mul_f32 v%d, %s, v%d' % (CC + t, f2h(SCALE), SR + t + 1))
    q.append('v_mul_f32 v%d, v%d, v%d' % (MX + t, MX + t, CC + t))
    for e in range(0, 8, 2):
        q.append(pk('v_pk_fma_f32', s_ + e, [s_ + e, ('b', CC + t), ('b', MX + t)], 2))
    for e in range(8):
        q.append('v_exp_f32 v%d, v%d' % (s_ + e, s_ + e))
    u_, u2 = SUMT[t]
    q.append(pk('v_pk_add_f32', u_, [s_, s_ + 2]))
    q.append(pk('v_pk_add_f32', u2, [s_ + 4, s_ + 6]))
    q.append(pk('v_pk_add_f32', u_, [u_, u2]))
    q.append('v_add_f32 v%d, v%d, v%d' % (LS + t, u_, u_ + 1))
    q += xg_reduce(LS + t, TMPR + t)
    q.append('v_rcp_f32 v%d, v%d' % (LS + t, LS + t))
    for e in range(0, 8, 2):
        q.append(pk('v_pk_mul_f32', s_ + e, [s_ + e, rr(e)]))
    for p in range(4):
        q.append('v_cvt_pk_bf16_f32 v%d, v%d, v%d' % (PF + 4 * t + p, s_ + 2 * p, s_ + 2 * p + 1))
merged = [z for xy in zip(*seq) for z in xy]
gap = len(merged) // (len(wb_loads) + 1)
for k, x in enumerate(merged):
    a(x)
    if k % gap == gap - 1 and wb_loads:
        a(wb_loads.pop(0))
assert not wb_loads
stamp2()
OO = 208
for t in range(2):
    for d in range(2):
        a('%s %s, %s, %s, 0' % (MFMA, vr(OO + 8 * t + 4 * d), vr(VF + 6 * d + 2 * t), vr(PF + 4 * t)))
for t in range(2):
    for e in range(0, 8, 2):
        a(pk('v_pk_mul_f32', OO + 8 * t + e, [OO + 8 * t + e, ('b', LS + t)]))
    for p in range(4):
        a('v_cvt_pk_bf16_f32 v%d, v%d, v%d' % (PF + 4 * t + p, OO + 8 * t + 2 * p, OO + 8 * t + 2 * p + 1))
    store('buffer_store_dwordx4 %s, v1, %s, s%d offen' % (vr(PF + 4 * t), srd(S_WS), 32 + t), sFD)
o_mark = a.vm_mark()
stamp2()
pair_base(sA, L.FA)
a('s_lshl_b32 s%d, s%d, 4' % (sB, sGT))
a('s_add_u32 s%d, s%d, s%d' % (sB, sB, sC))
a('s_lshl_b32 s%d, s%d, 2' % (sB, sB))
a('s_add_u32 s%d, s%d, s%d' % (sA, sA, sB))
a('v_lshlrev_b32 v241, 6, v0')
a('v_add_u32 v241, s%d, v241' % sA)
pair_base(sA, L.FA)
a('s_lshl_b32 s%d, s%d, 8' % (sB, sG))
a('s_add_u32 s%d, s%d, s%d' % (sA, sA, sB))
a('v_lshl_add_u32 v240, v0, 2, s%d' % sA)
a('s_lshl_b32 s%d, s%d, 2' % (sB, sW))
a('s_lshl_b32 s%d, 0x000f000f, s%d' % (sMK, sB))
a('s_mov_b32 s%d, s%d' % (sMK + 1, sMK))
red_addrs()
publish_setup(L.XB, L.SB, L.FB, True, 4)
a('s_mov_b32 s%d, s%d' % (sPC, sFD))
a('s_mov_b32 s%d, s%d' % (sPFC, sFAST))
pair_base(sA, L.O)
a('s_lshl_b32 s%d, s%d, 6' % (sB, sG))
a('s_lshl_b32 s%d, s%d, 2' % (sCc, sW))
a('s_add_u32 s%d, s%d, s%d' % (sB, sB, sCc))
a('s_lshl_b32 s%d, s%d, 10' % (sB, sB))
a('s_add_u32 s20, s%d, s%d' % (sA, sB))
for t in range(1, 4):
    a('s_add_u32 s%d, s20, %d' % (20 + t, 16384 * t))
a.wait_vm(o_mark)
a('s_mov_b64 exec, 3')
store('buffer_store_dword v%d, v241, %s, 0 offen' % (V_T, srd(S_WS)), sFAST)
a('s_mov_b64 exec, -1')
stamp()
a('s_cmp_eq_u32 s%d, 7' % sJ)
a('s_cbranch_scc1 L_next_pair')


def wd_bases():
    a('s_lshl_b32 s%d, s%d, 2' % (sA, sJ))
    a('s_mul_i32 s%d, s%d, %d' % (sA, sA, 56 * 1024))
    a('s_mul_i32 s%d, s%d, %d' % (sB, sW, 14 * 1024))
    a('s_add_u32 s%d, s%d, s%d' % (sA, sA, sB))
    a('s_add_u32 s%d, s%d, %d' % (sO, sA, L.WD))
    quarter_offsets(4, 56 * 1024)


def wd_load(fi):
    kk, t = fi >> 2, fi & 3
    return ('buffer_load_dwordx4 %s, v1, %s, s%d offen offset:%d sc1' %
            (ar(4 * fi), srd(S_WS), sO + 4 * t + (kk >> 2), 1024 * (kk & 3)))


WD_CH = [(0, 0), (0, 56)]
BO, BACC, BRD, BTMP = 66, 130, 194, 226
a('s_cmp_eq_u32 s%d, 0' % sPAIR)
a('s_cbranch_scc0 L_b_start')
for k in range(4):
    a('v_lshlrev_b32 v236, 16, v%d' % (228 + k))
    a('v_and_b32 v237, 0xffff0000, v%d' % (228 + k))
    a('v_accvgpr_write_b32 a%d, v236' % (A_B2 + 2 * k))
    a('v_accvgpr_write_b32 a%d, v237' % (A_B2 + 2 * k + 1))
a.label('L_b_start')
CWW = 66
sCI = 41
a('s_lshr_b32 s%d, s%d, 3' % (sA, sC))
a('s_mul_i32 s%d, s%d, 7' % (sA, sA))
a('s_add_u32 s%d, s%d, s%d' % (sCI, sA, sJ))
a('s_lshl_b32 s%d, s%d, 3' % (sA, sCI))
a('s_lshl_b32 s%d, s%d, 1' % (sB, sW))
a('s_add_u32 s%d, s%d, s%d' % (sA, sA, sB))
a('s_mul_i32 s%d, s%d, %d' % (sB, sA, 14 * 1024))
a('s_add_u32 s%d, s%d, %d' % (sO, sB, L.WC))
quarter_offsets(2, 14 * 1024)


def c_wload(idx):
    u, k = idx >> 1, idx & 1
    return ('buffer_load_dwordx4 %s, v1, %s, s%d offen offset:%d sc1' %
            (vr(CWW + 4 * idx), srd(S_WS), sO + 4 * k + (u >> 2), 1024 * (u & 3)))


def red_writes(acc, tile):
    return ['ds_write_b128 v248, %s offset:%d' % (vr(acc + 4 * t), (tile >> 1) * 32768 + (tile & 1) * 4096 + t * 1024)
            for t in range(4)]


def red_reads(st, rd):
    return ['ds_read_b128 %s, v249 offset:%d' % (vr(rd + (b * 2 + k) * 4), st * 32768 + b * 8192 + k * 1024)
            for b in range(4) for k in range(2)]


def add8(dst, x, y, packed):
    if packed:
        return ['v_pk_add_f32 %s, %s, %s' % (vr(dst + e, 2), vr(x + e, 2), vr(y + e, 2)) for e in range(0, 8, 2)]
    return ['v_add_f32 v%d, v%d, v%d' % (dst + e, x + e, y + e) for e in range(8)]


def finish_pre(st, is_d, tmp):
    res = A_RES + 4 * st
    o = ['v_accvgpr_read_b32 v%d, a%d' % (tmp + 8 + p, res + p) for p in range(4)]
    for p in range(4):
        o += ['v_lshlrev_b32 v%d, 16, v%d' % (tmp + 2 * p, tmp + 8 + p),
              'v_and_b32 v%d, 0xffff0000, v%d' % (tmp + 2 * p + 1, tmp + 8 + p)]
    if is_d:
        o += ['v_accvgpr_read_b32 v%d, a%d' % (tmp + 8 + e, A_B2 + e) for e in range(8)]
        o += ['v_add_f32 v%d, v%d, v%d' % (tmp + e, tmp + e, tmp + 8 + e) for e in range(8)]
    return o


def finish_sum(st, rd, tmp, pk, packed):
    o = add8(rd, rd, rd + 8, packed) + add8(rd + 16, rd + 16, rd + 24, packed) + add8(rd, rd, rd + 16, packed)
    o += add8(tmp, tmp, rd, packed)
    o += ['v_cvt_pk_bf16_f32 v%d, v%d, v%d' % (pk + p, tmp + 2 * p, tmp + 2 * p + 1) for p in range(4)]
    o += ['v_accvgpr_write_b32 a%d, v%d' % (A_RES + 4 * st + p, pk + p) for p in range(4)]
    return o


def owner_stats(tmp, s1, t):
    a('v_pk_add_f32 %s, %s, %s' % (vr(t, 2), vr(tmp, 2), vr(tmp + 2, 2)))
    a('v_pk_add_f32 %s, %s, %s' % (vr(t + 2, 2), vr(tmp + 4, 2), vr(tmp + 6, 2)))
    a('v_pk_add_f32 %s, %s, %s' % (vr(t, 2), vr(t, 2), vr(t + 2, 2)))
    a('v_add_f32 v%d, v%d, v%d' % (s1, t, t + 1))
    a('v_pk_mul_f32 %s, %s, %s' % (vr(t, 2), vr(tmp, 2), vr(tmp, 2)))
    for e in (2, 4, 6):
        a('v_pk_fma_f32 %s, %s, %s, %s' % (vr(t, 2), vr(tmp + e, 2), vr(tmp + e, 2), vr(t, 2)))
    a('v_add_f32 v%d, v%d, v%d' % (s1 + 1, t, t + 1))
    for x, y in zip(xg_reduce(s1, t), xg_reduce(s1 + 1, t + 1)):
        a(x)
        a(y)


def publish_data(st, pk):
    store('buffer_store_dwordx4 %s, v1, %s, s%d offen offset:0' % (vr(pk), srd(S_WS), sPX if st == 0 else sPX2), sPC)


def publish_stats(tmps, t, s1):
    a('v_and_b32 v%d, 15, v0' % V_TOK)
    a('v_lshlrev_b32 v%d, 3, v%d' % (t + 4, V_TOK))
    for st in range(2):
        owner_stats(tmps[st], s1 + 2 * st, t)
    a('s_mov_b64 exec, 0xffff')
    store('buffer_store_dwordx2 %s, v%d, %s, s%d offen' % (vr(s1, 2), t + 4, srd(S_WS), sPS), sPC)
    a('s_add_u32 s%d, s%d, %d' % (sPS, sPS, 2 * 1792))
    store('buffer_store_dwordx2 %s, v%d, %s, s%d offen' % (vr(s1 + 2, 2), t + 4, srd(S_WS), sPS), sPC)
    a('s_mov_b64 exec, -1')


def publish_flags(lsh, between=()):
    a('v_lshlrev_b32 v241, %d, v0' % lsh)
    a('v_add_u32 v241, s%d, v241' % sPF)
    set_flags(241, 2, sPFC, V_T, between)


def run_tiles(tile_items, extras):
    for tile in range(4):
        if tile and '--diag3' in sys.argv:
            stamp()
        items = tile_items(tile)
        ex = list(extras.get(tile, []))
        free = [k for k, it in enumerate(items) if k >= 3 and not it[2]]
        per = -(-len(ex) // max(1, len(free))) if ex else 0
        for k, (pre, m, post) in enumerate(items):
            for x in pre:
                x()
            a(m)
            if post:
                post()
            elif k >= 3:
                for _ in range(per):
                    if ex:
                        x = ex.pop(0)
                        if callable(x):
                            x()
                        else:
                            a(x)
        assert not ex


poll(240)
a('s_barrier')
a('s_or_b32 s%d, s2, s%d' % (sA, sW))
a('s_or_b32 s%d, s%d, s%d' % (sA, sA, sPAIR))
a('s_cmp_eq_u32 s%d, 0' % sA)
a('s_cbranch_scc0 L_noepoch')
a('s_add_u32 s%d, s%d, 1' % (sA, sEP))
a('v_mov_b32 v239, s%d' % sA)
a('s_mov_b64 exec, 1')
a('buffer_store_dword v239, off, %s, 0 sc1' % srd(S_WS))
a.vm_issued -= 1
a('s_mov_b64 exec, -1')
a.label('L_noepoch')
stamp()


def b_oload(tile, i):
    return 'buffer_load_dwordx4 %s, v1, %s, s%d offen offset:%d sc1' % (vr(BO + (tile * 4 + i) * 4), srd(S_WS), 20 + tile, 1024 * i)


om = {}
for tile in range(2):
    for i in range(4):
        a(b_oload(tile, i))
        om[(tile, i)] = a.vm_mark()


def b_tile(tile):
    items = []
    for i in range(4):
        for t in range(4):
            r = BACC + (tile * 4 + t) * 4
            pre = [(lambda tl=tile, ii=i: a.wait_vm(om[(tl, ii)]))] if t == 0 else []
            post = None
            if tile < 2 and t == 1:
                def post(tl=tile + 2, ii=i):
                    a(b_oload(tl, ii))
                    om[(tl, ii)] = a.vm_mark()
            if tile >= 2 and t == 1:
                def post(idx=4 * (tile - 2) + i):
                    a(c_wload(idx))
            items.append((pre, '%s %s, %s, %s, %s' % (MFMA, vr(r), vr(BW + (i * 4 + t) * 4), vr(BO + (tile * 4 + i) * 4),
                                                      '0' if i == 0 else vr(r)), post))
    return items


BT0, BT1, BPK = 226, 2, 18
run_tiles(b_tile, {1: red_writes(BACC, 0), 2: red_writes(BACC + 16, 1), 3: red_writes(BACC + 32, 2)})
stamp2()
for x in red_writes(BACC + 48, 3):
    a(x)
for x in finish_pre(0, False, BT0) + finish_pre(1, False, BT1):
    a(x)
a('s_waitcnt lgkmcnt(0)')
a('s_barrier')
stamp2()
BRD1 = 162
for x in red_reads(0, BRD) + red_reads(1, BRD1):
    a(x)
a('s_waitcnt lgkmcnt(8)')
for x in finish_sum(0, BRD, BT0, BPK, True):
    a(x)
publish_data(0, BPK)
a('s_waitcnt lgkmcnt(0)')
for x in finish_sum(1, BRD1, BT1, BPK + 4, True):
    a(x)
publish_data(1, BPK + 4)
stamp2()
publish_stats([BT0, BT1], 36, 32)
b_mark = a.vm_mark()
a('v_lshlrev_b32 v236, 7, v0')
a('v_add_u32 v236, s%d, v236' % sPF)
for i in range(8, 16):
    a(c_wload(i))
CA = [2, 10]
XF, NXF = 18, 8
GTMP, GH = 50, 58
CCS, CB1, CB1R = 178, 186, 194
CSTR = 198
CMR = 214
VGA = 218
a('v_lshrrev_b32 v%d, 4, v0' % V_G)
a('v_and_b32 v%d, 15, v0' % V_TOK)
pair_base(sA, L.FB)
a('s_lshl_b32 s%d, s%d, 9' % (sB, sS))
a('s_add_u32 s%d, s%d, s%d' % (sA, sA, sB))
a('v_lshl_add_u32 v240, v0, 2, s%d' % sA)
a('s_mov_b32 s%d, 0x3fff3fff' % sMK)
a('s_mov_b32 s%d, 0x3fff3fff' % (sMK + 1))
pair_base(20, L.XB)
a('s_mul_i32 s%d, s%d, %d' % (sB, sS, 8 * 14336))
a('s_add_u32 s20, s20, s%d' % sB)
a('s_lshl_b32 s%d, s%d, 12' % (sB, sW))
a('s_add_u32 s20, s20, s%d' % sB)
a('s_add_u32 s21, s%d, %d' % (sB, L.L_R2))
pair_base(22, L.SB)
a('s_lshl_b32 s%d, s%d, 3' % (sB, sS))
a('s_add_u32 s%d, s%d, s%d' % (sB, sB, sW))
a('s_mul_i32 s%d, s%d, 1792' % (sB, sB))
a('s_add_u32 s22, s22, s%d' % sB)
a('s_add_u32 s23, s22, %d' % (4 * 1792))
pair_base(32, L.H)
a('s_mul_i32 s%d, s%d, %d' % (sB, sS, 8 * 56 * 1024))
a('s_add_u32 s32, s32, s%d' % sB)
a('s_lshl_b32 s%d, s%d, 2' % (sB, sCI))
a('s_add_u32 s%d, s%d, s%d' % (sB, sB, sW))
a('s_lshl_b32 s%d, s%d, 10' % (sCc, sB))
a('s_add_u32 s32, s32, s%d' % sCc)
pair_base(33, L.FC)
a('s_lshl_b32 s%d, s%d, 11' % (sCc, sS))
a('s_add_u32 s33, s33, s%d' % sCc)
a('s_lshl_b32 s%d, s%d, 2' % (sB, sB))
a('s_add_u32 s33, s33, s%d' % sB)
a('v_mov_b32 v241, s33')
a('v_mov_b32 v242, 0x%x' % INV)
a('v_cmp_eq_u32 vcc, 0, v0')
a('v_cndmask_b32 v241, v242, v241, vcc')
a('v_lshlrev_b32 v238, 3, v%d' % V_TOK)
a('v_lshl_add_u32 v238, v%d, 7, v238' % V_G)
a('v_mov_b32 v242, 0x%x' % INV)
a('v_cmp_lt_u32 vcc, 1, v%d' % V_G)
a('v_cndmask_b32 v239, 0, v242, vcc')
a('v_or_b32 v239, v239, v238')
a('v_add_u32 v252, %d, v1' % L.L_R2)
a('v_lshlrev_b32 v246, 3, v%d' % V_TOK)
a('v_add_u32 v246, %d, v246' % L.L_STC)
GA = 2.0 * 0.7978845608028654 * 1.4426950408889634
GB = GA * 0.044715
a('v_mov_b32 v%d, %s' % (VGA, f2h(-GA)))
a('v_mov_b32 v%d, %s' % (VGA + 1, f2h(-GA)))
a('s_mov_b32 s34, %s' % f2h(-GB))
a('s_mov_b32 s35, %s' % f2h(-GB))
wd_bases_hi = True
a.wait_vm(b_mark)
a('s_mov_b64 exec, 3')
store('buffer_store_dword v%d, v236, %s, 0 offen' % (V_T, srd(S_WS)), sPFC)
a('s_mov_b64 exec, -1')
stamp()

for i in range(16, 22):
    a(c_wload(i))
a('s_lshl_b32 s%d, s%d, 3' % (sA, sCI))
a('s_lshl_b32 s%d, s%d, 1' % (sB, sW))
a('s_add_u32 s%d, s%d, s%d' % (sA, sA, sB))
a('s_lshl_b32 s24, s%d, 5' % sA)
a('v_lshlrev_b32 v248, 3, v%d' % V_G)
for k in range(2):
    a('buffer_load_dwordx2 %s, v248, %s, s24 offen offset:%d' % (vr(CB1R + 2 * k, 2), srd(S_B1), 32 * k))
poll(240, 256)
stamp()


TORD = [0, 4, 1, 5, 2, 6, 3, 7]


def c_dma_setup(t):
    return ['s_add_u32 s36, s20, %d' % (TORD[t] * 14336), 's_add_u32 m0, s21, %d' % ((t & 3) * 16384)]


def c_dma(t, i):
    return 'buffer_load_dwordx4 v1, %s, s36 offen offset:%d sc1 lds' % (srd(S_WS), 1024 * i)


dm = {}
for x in c_dma_setup(0) + [c_dma(0, i) for i in range(4)]:
    a(x)
dm[0] = a.vm_mark()
wlate = {}
for i in range(22, 28):
    a(c_wload(i))
    wlate[i >> 1] = a.vm_mark()
for tt in range(2):
    for i in range(4):
        a('buffer_load_dwordx2 %s, v%d, %s, s%d offen offset:%d sc1' %
          (vr(CSTR + 8 * tt + 2 * i, 2), 239 if i == 3 else 238, srd(S_WS), 22 + tt, 512 * i))
amark['cst'] = a.vm_mark()
for x in c_dma_setup(1) + [c_dma(1, i) for i in range(4)]:
    a(x)
dm[1] = a.vm_mark()
wd_bases()
t0_loads = []
b1_unpack = []
for k in range(2):
    for p in range(2):
        b1_unpack += ['v_lshlrev_b32 v%d, 16, v%d' % (CB1 + 4 * k + 2 * p, CB1R + 2 * k + p),
                      'v_and_b32 v%d, 0xffff0000, v%d' % (CB1 + 4 * k + 2 * p + 1, CB1R + 2 * k + p)]
a.wait_vm(dm[0])
a('s_barrier')
stamp()


def c_xread(t, u):
    n = t * 14 + u
    return 'ds_read_b128 %s, v252 offset:%d' % (vr(XF + 4 * (n % NXF)), (t & 3) * 16384 + u * 1024)


def gelu_pre(t):
    z, m = CA[t & 1], CMR + 2 * (t & 1)
    P = range(0, 8, 2)
    o = ['v_pk_fma_f32 %s, %s, %s, %s op_sel_hi:[1,0,1] neg_lo:[0,1,0] neg_hi:[0,1,0]' % (vr(z + e, 2), vr(CCS + e, 2), vr(m, 2), vr(z + e, 2)) for e in P]
    o += ['v_pk_fma_f32 %s, %s, %s, %s op_sel:[0,1,0] op_sel_hi:[1,1,1]' % (vr(z + e, 2), vr(z + e, 2), vr(m, 2), vr(CB1 + e, 2)) for e in P]
    o += ['v_pk_mul_f32 %s, %s, %s' % (vr(GTMP + e, 2), vr(z + e, 2), vr(z + e, 2)) for e in P]
    o += ['v_pk_fma_f32 %s, %s, s[34:35], %s' % (vr(GTMP + e, 2), vr(GTMP + e, 2), vr(VGA, 2)) for e in P]
    o += ['v_pk_mul_f32 %s, %s, %s' % (vr(GTMP + e, 2), vr(GTMP + e, 2), vr(z + e, 2)) for e in P]
    return o


def gelu_mid():
    o = {}
    for e in range(8):
        o.setdefault(2 * e, []).append('v_exp_f32 v%d, v%d' % (GTMP + e, GTMP + e))
        o.setdefault(2 * e + 3, []).append('v_add_f32 v%d, 1.0, v%d' % (GTMP + e, GTMP + e))
    for e in range(6):
        o.setdefault(16 + 2 * e, []).append('v_rcp_f32 v%d, v%d' % (GTMP + e, GTMP + e))
    o.setdefault(25, []).append('v_rcp_f32 v%d, v%d' % (GTMP + 6, GTMP + 6))
    o.setdefault(27, []).append('v_rcp_f32 v%d, v%d' % (GTMP + 7, GTMP + 7))
    return o


def gelu_post(t):
    z, h = CA[t & 1], GH + 4 * (t & 1)
    o = ['v_pk_mul_f32 %s, %s, %s' % (vr(GTMP + e, 2), vr(GTMP + e, 2), vr(z + e, 2)) for e in range(0, 8, 2)]
    o += ['v_cvt_pk_bf16_f32 v%d, v%d, v%d' % (h + p, GTMP + 2 * p, GTMP + 2 * p + 1) for p in range(4)]
    return o


def gelu_packed(t):
    z, m, h = CA[t & 1], CMR + 2 * (t & 1), GH + 4 * (t & 1)
    P = range(0, 8, 2)
    for e in P:
        a('v_pk_fma_f32 %s, %s, %s, %s op_sel_hi:[1,0,1] neg_lo:[0,1,0] neg_hi:[0,1,0]' % (vr(z + e, 2), vr(CCS + e, 2), vr(m, 2), vr(z + e, 2)))
    for e in P:
        a('v_pk_fma_f32 %s, %s, %s, %s op_sel:[0,1,0] op_sel_hi:[1,1,1]' % (vr(z + e, 2), vr(z + e, 2), vr(m, 2), vr(CB1 + e, 2)))
    for e in P:
        a('v_pk_mul_f32 %s, %s, %s' % (vr(GTMP + e, 2), vr(z + e, 2), vr(z + e, 2)))
    for e in P:
        a('v_pk_fma_f32 %s, %s, s[34:35], %s' % (vr(GTMP + e, 2), vr(GTMP + e, 2), vr(VGA, 2)))
    for e in P:
        a('v_pk_mul_f32 %s, %s, %s' % (vr(GTMP + e, 2), vr(GTMP + e, 2), vr(z + e, 2)))
    for e in range(8):
        a('v_exp_f32 v%d, v%d' % (GTMP + e, GTMP + e))
    for e in P:
        a('v_pk_add_f32 %s, %s, 1.0 op_sel_hi:[1,0]' % (vr(GTMP + e, 2), vr(GTMP + e, 2)))
    for e in range(8):
        a('v_rcp_f32 v%d, v%d' % (GTMP + e, GTMP + e))
    for e in P:
        a('v_pk_mul_f32 %s, %s, %s' % (vr(GTMP + e, 2), vr(GTMP + e, 2), vr(z + e, 2)))
    for p in range(4):
        a('v_cvt_pk_bf16_f32 v%d, v%d, v%d' % (h + p, GTMP + 2 * p, GTMP + 2 * p + 1))


hmk, fmk = {}, {}


def h_store(t):
    def f():
        a('s_add_u32 s24, s32, %d' % (TORD[t] * 56 * 1024))
        store('buffer_store_dwordx4 %s, v1, %s, s24 offen' % (vr(GH + 4 * (t & 1)), srd(S_WS)), sFH)
        hmk[t] = a.vm_mark()
    return f


def h_flag(t):
    def f():
        a.wait_vm(hmk[t])
        store('buffer_store_dword v%d, v241, %s, 0 offen offset:%d' % (V_T, srd(S_WS), 256 * TORD[t]), sFAST)
    return f


def wd_block(fis, wave):
    def f():
        skip = newlab('L_wd')
        a('s_cmp_eq_u32 s24, %d' % wave)
        a('s_cbranch_scc0 %s' % skip)
        for fi in fis:
            a(wd_load(fi))
            a.vm_issued -= 1
        a.label(skip)
    return f


cst_fill = []
for tt in range(2):
    r = CSTR + 8 * tt
    for c_ in range(2):
        cst_fill += ['v_add_f32 v%d, v%d, v%d' % (r + c_, r + c_, r + 2 + c_),
                     'v_add_f32 v%d, v%d, v%d' % (r + 4 + c_, r + 4 + c_, r + 6 + c_),
                     'v_add_f32 v%d, v%d, v%d' % (r + c_, r + c_, r + 4 + c_)]
    cst_fill += xg_reduce(r, r + 2) + xg_reduce(r + 1, r + 3) + stats_finish(r, r + 1, r + 2, True)
a('s_lshl_b32 s%d, s%d, 7' % (sA, sW))
a('v_add_u32 v247, s%d, v246' % sA)
cst_fill += ['ds_write_b64 v247, %s' % vr(CSTR, 2), 'ds_write_b64 v247, %s offset:512' % vr(CSTR + 8, 2)] + b1_unpack
LOOKX = 6


A_CCS = 244


DFIRST = [194, 198, 202, 206, 210, 220, 224, 228, 232]
hm = {}


def emit_c_loop(wd_list):
    pass0 = bool(wd_list)
    if not pass0:
        for e in range(8):
            a('v_accvgpr_read_b32 v%d, a%d' % (CCS + e, A_CCS + e))
    for u in range(LOOKX):
        a(c_xread(0, u))
    for t in range(8):
        nonvec = {}

        def put(k, x):
            nonvec.setdefault(k, []).append(x)
        for u in range(14):
            n = t * 14 + u
            m = n + LOOKX
            if m < 8 * 14:
                put(2 * u + 1, c_xread(m // 14, m % 14))
            if u % 2 == 1 and n + 1 < 8 * 14:
                put(2 * u + 1, 's_waitcnt lgkmcnt(%d)' % min(LOOKX - 2, 8 * 14 - 1 - (n + 2)))
        if t < 7:
            nonvec[14] = [('bar', t + 1)] + nonvec.get(14, [])
        if t + 2 < 8:
            su = c_dma_setup(t + 2)
            put(0, su[0])
            put(0, su[1])
            for i in range(4):
                put(2 + 2 * i, ('dma', t + 2, i))
        if t >= 3:
            put(20, ('call', h_flag(t - 3)))
        if t == 1:
            put(0, 's_add_u32 s22, s25, 12288')
        if t == 5:
            def issue_d0():
                amark['d0'] = early_issue(244, 243)
            put(22, ('call', issue_d0))
        if t == 6:
            put(2, ('call', lambda: early_check(244, 243, amark['d0'])))
        if t in (6, 7):
            for k, q in zip((4, 6, 8, 20, 22) if t == 6 else (2, 4, 6, 8), range(0, 5) if t == 6 else range(5, 9)):
                put(k, ('h0', q))
        if t < 7:
            for k in (10, 12, 13, 16, 18, 22, 24, 26):
                if wd_list:
                    put(k, wd_load(wd_list.pop(0)))
        if t > 0:
            put(17, 'ds_read_b64 %s, v246 offset:%d' % (vr(CMR + 2 * (t & 1), 2), 128 * TORD[t]))
        if t == 0:
            for k, it in enumerate(t0_loads):
                put(k, ('t0', it))
        valu = gelu_mid() if t >= 1 else {}
        if t >= 2:
            for x in gelu_post(t - 2):
                a(x)
            h_store(t - 2)()
        if t >= 1:
            for x in gelu_pre(t - 1):
                a(x)
        fill = list(cst_fill) if t == 0 else []
        first = 8
        fi = 0
        for k in range(28):
            u, kk = k >> 1, k & 1
            n = t * 14 + u
            if t == 0 and k == 0:
                a('s_waitcnt lgkmcnt(%d)' % (LOOKX - 2))
            if t == 0 and kk == 0 and u in wlate:
                a.wait_vm(wlate[u])
            if t == 0 and k == first:
                a.wait_vm(amark['cst'])
            r = CA[t & 1] + 4 * kk
            a('%s %s, %s, %s, %s' % (MFMA, vr(r), vr(CWW + 4 * (2 * u + kk)), vr(XF + 4 * (n % NXF)), '0' if u == 0 else vr(r)))
            if pass0 and t == 0:
                a('%s %s, %s, %s, %s' % (MFMA, vr(CCS + 4 * kk), vr(CWW + 4 * (2 * u + kk)), ar(A_ONES), '0' if u == 0 else vr(CCS + 4 * kk)))
            for it in nonvec.get(k, []):
                if isinstance(it, str):
                    a(it)
                elif it[0] == 'bar':
                    a.wait_vm(dm[it[1]])
                    a('s_barrier')
                elif it[0] == 'dma':
                    a(c_dma(it[1], it[2]))
                    dm[it[1]] = a.vm_mark()
                elif it[0] == 'call':
                    it[1]()
                elif it[0] == 'h0':
                    q = it[1]
                    a('buffer_load_dwordx4 %s, v1, %s, s%d offen offset:%d sc1' %
                      (vr(DFIRST[q] if q < 9 else 66 + 4 * q), srd(S_WS), (25, 27, 29, 22)[q >> 2], 1024 * (q & 3)))
                    hm[q] = a.vm_mark()
                elif it[0] == 't0':
                    if it[1][0] == 'w':
                        a(c_wload(it[1][1]))
                        wlate[it[1][1] >> 1] = a.vm_mark()
                    else:
                        a(it[1][1])
                        amark['cst'] = a.vm_mark()
            for x in valu.get(k, []):
                a(x)
            if fill and k >= first:
                want = -(-(len(fill)) * (k - first + 1) // (28 - first))
                while fi < want:
                    a(fill[fi])
                    fi += 1
        assert fi == len(fill)
        if t == 0:
            a('s_waitcnt lgkmcnt(0)')
            a('s_barrier')
            a('ds_read_b64 %s, v246 offset:0' % vr(CMR, 2))
            if pass0:
                for e in range(8):
                    a('v_accvgpr_write_b32 a%d, v%d' % (A_CCS + e, CCS + e))
            a('s_waitcnt lgkmcnt(0)')
    assert not wd_list


pair_base(sA, L.FC)
a('s_lshl_b32 s%d, s%d, 10' % (sB, sG))
a('s_add_u32 s%d, s%d, s%d' % (sA, sA, sB))
a('s_mul_i32 s%d, s%d, 56' % (sB, sW))
a('s_add_u32 s%d, s%d, s%d' % (sA, sA, sB))
a('v_lshl_add_u32 v243, v0, 2, s%d' % sA)
a('s_mov_b32 s%d, 0x3fff' % sMK2)
a('s_mov_b32 s%d, 0' % (sMK2 + 1))
pair_base(sA, L.H)
a('s_mul_i32 s%d, s%d, %d' % (sB, sG, 4 * 56 * 1024))
a('s_add_u32 s%d, s%d, s%d' % (sA, sA, sB))
a('s_mul_i32 s%d, s%d, %d' % (sB, sW, 14 * 1024))
a('s_add_u32 s25, s%d, s%d' % (sA, sB))
a('s_add_u32 s27, s25, 4096')
a('s_add_u32 s29, s25, 8192')
n_before = a.vm_issued
dm_init = dict(dm)
a('s_cmp_eq_u32 s%d, 0' % sPAIR)
a('s_cbranch_scc0 L_c_loop1')
emit_c_loop(list(range(*WD_CH[1])))
extra = a.vm_issued - n_before
with OutOfLine():
    a.label('L_c_loop1')
    a.vm_issued = n_before
    dm.clear()
    dm.update(dm_init)
    emit_c_loop([])
    a('s_branch L_c_done')
a.label('L_c_done')
stamp()
DH, DACC, DRD = 66, 130, 194
DRING, DLOOK = 16, 10
red_addrs()
publish_setup(L.XA[1], L.SA[1], L.FX[1], False, 5)
a('s_and_b32 s%d, s%d, 1' % (sA, sG))
a('s_lshr_b32 s%d, s%d, 1' % (sB, sW))
a('s_and_b32 s%d, s%d, s%d' % (sA, sA, sB))
a('s_xor_b32 s%d, s%d, 1' % (sA, sA))
a('s_and_b32 s%d, s%d, s%d' % (sPC, sFD, sA))
a('s_mov_b32 s%d, s%d' % (sPFC, sFAST))
a('s_cmp_eq_u32 s%d, 0' % sA)
a('s_cselect_b32 s%d, 0, 0x%x' % (sCc, INV))
a('s_add_u32 s%d, s%d, 1' % (sA, sS))
a('s_lshl_b32 s%d, s%d, 5' % (sA, sA))
a('s_lshl_b32 s%d, s%d, 1' % (sB, sJ))
a('s_add_u32 s%d, s%d, s%d' % (sA, sA, sB))
a('s_and_b32 s%d, s%d, 1' % (sB, sW))
a('s_add_u32 s%d, s%d, s%d' % (sA, sA, sB))
a('s_lshl_b32 s%d, s%d, 2' % (sA, sA))
a('s_add_u32 s%d, s%d, %d' % (sA, sA, L.FH))
a('s_or_b32 s20, s%d, s%d' % (sA, sCc))
pair_base(sA, L.H)
a('s_mul_i32 s%d, s%d, %d' % (sB, sG, 4 * 56 * 1024))
a('s_add_u32 s%d, s%d, s%d' % (sA, sA, sB))
a('s_mul_i32 s%d, s%d, %d' % (sB, sW, 14 * 1024))
a('s_add_u32 s%d, s%d, s%d' % (sO, sA, sB))
quarter_offsets(4, 56 * 1024)
a('s_cmp_eq_u32 s%d, 0' % sPAIR)
a('s_cbranch_scc1 L_d_nout')
owner_index()
a('s_mul_i32 s%d, s%d, 14336' % (sPX, sB))
a('s_lshl_b32 s%d, s%d, 6' % (sA, sA))
a('s_add_u32 s%d, s%d, s%d' % (sPX, sPX, sA))
a('s_add_u32 s%d, s%d, %d' % (sPX2, sPX, 2 * 14336))
a.label('L_d_nout')
a('v_and_b32 v%d, 15, v0' % V_TOK)
a('v_lshrrev_b32 v%d, 4, v0' % V_G)
a('v_mul_u32_u24 v242, 896, v%d' % V_TOK)
a('v_and_b32 v253, 1, v%d' % V_G)
a('v_lshl_add_u32 v242, v253, 5, v242')
a('v_lshrrev_b32 v253, 1, v%d' % V_G)
a('v_lshl_add_u32 v242, v253, 4, v242')


def d_hload(q):
    tile, kk = divmod(q, 14)
    return ('buffer_load_dwordx4 %s, v1, %s, s%d offen offset:%d sc1' %
            (vr(d_reg(q)), srd(S_WS), sO + 4 * tile + (kk >> 2), 1024 * (kk & 3)))


def d_reg(q):
    return DFIRST[q] if q < len(DFIRST) else DH + (q % DRING) * 4


dmk = {}
for q in range(len(DFIRST), DLOOK):
    a(d_hload(q))
    hm[q] = a.vm_mark()
dmk[1] = early_issue(244, 243, 256)
stamp()
for x in gelu_post(6):
    a(x)
h_store(6)()
a('s_waitcnt lgkmcnt(0)')
gelu_packed(7)
h_flag(5)()
h_store(7)()
stamp()

a('s_barrier')
stamp()


def d_tile(tile):
    items = []
    for kk in range(14):
        q = tile * 14 + kk
        for t in range(4):
            r = DACC + (tile * 4 + t) * 4
            pre = [(lambda qq=q: a.wait_vm(hm[qq]))] if t == 0 else []
            if t == 0 and q in (6, 12):
                pre.append(h_flag({6: 6, 12: 7}[q]))
            post = None
            if t == 0 and q + DLOOK < 56:
                def post(qq=q + DLOOK):
                    if qq % 14 == 0:
                        early_check(244, 243, dmk[qq // 14], 256 * (qq // 14))
                    a(d_hload(qq))
                    hm[qq] = a.vm_mark()
                    if qq % 14 == 6 and qq // 14 < 3:
                        dmk[qq // 14 + 1] = early_issue(244, 243, 256 * (qq // 14 + 1))
            items.append((pre, '%s %s, %s, %s, %s' % (MFMA, vr(r), ar((kk * 4 + t) * 4), vr(d_reg(q)),
                                                      '0' if kk == 0 else vr(r)), post))
    return items


def d_out_store(st, pk):
    a('s_nop 1')
    a('v_permlane16_swap_b32 v%d, v%d' % (pk, pk + 2))
    a('v_permlane16_swap_b32 v%d, v%d' % (pk + 1, pk + 3))
    a('buffer_store_dwordx4 %s, v242, %s, s%d offen %s' % (vr(pk), srd(S_OUT), sPX if st == 0 else sPX2, OUTSC))


def d_store(st, pk):
    fin, done = newlab('L_dfin'), newlab('L_ddone')
    a('s_cmp_eq_u32 s%d, 0' % sPAIR)
    a('s_cbranch_scc0 %s' % fin)
    publish_data(st, pk)
    a('s_branch %s' % done)
    a.label(fin)
    n = a.vm_issued
    d_out_store(st, pk)
    a.vm_issued = n
    a.label(done)


DT0, DT1, DPK, DSTT, DSTS = 226, 2, 18, 28, 36
stage0 = [lambda: (a('s_waitcnt lgkmcnt(0)'), a('s_barrier'))] + red_reads(0, DRD) + finish_pre(0, True, DT0)
stage0 += [lambda: a('s_waitcnt lgkmcnt(0)')] + finish_sum(0, DRD, DT0, DPK, False) + [lambda: d_store(0, DPK)]
run_tiles(d_tile, {1: red_writes(DACC, 0), 2: red_writes(DACC + 16, 1), 3: red_writes(DACC + 32, 2) + stage0})
stamp2()
for x in red_writes(DACC + 48, 3):
    a(x)
for x in finish_pre(1, True, DT1):
    a(x)
a('s_waitcnt lgkmcnt(0)')
a('s_barrier')
stamp2()
for x in red_reads(1, DRD):
    a(x)
a('s_waitcnt lgkmcnt(0)')
for x in finish_sum(1, DRD, DT1, DPK + 4, True):
    a(x)
d_store(1, DPK + 4)
stamp()
a('s_cmp_eq_u32 s%d, 0' % sPAIR)
a('s_cbranch_scc0 L_next_pair')
publish_stats([DT0, DT1], DSTT, DSTS)
FHMODE = ([x[5:] for x in sys.argv if x.startswith('--fh=')] + ['after'])[0]
a('v_mov_b32 v240, s20')
if FHMODE == 'before':
    a('s_waitcnt vmcnt(0)')
    a('s_mov_b64 exec, 1')
    a('buffer_store_dword v%d, v240, %s, 0 offen sc1' % (V_T, srd(S_WS)))
    a('s_mov_b64 exec, -1')
    a('v_lshlrev_b32 v241, 8, v0')
    a('v_add_u32 v241, s%d, v241' % sPF)
    a('s_mov_b64 exec, 3')
    store('buffer_store_dword v%d, v241, %s, 0 offen' % (V_T, srd(S_WS)), sPFC)
    a('s_mov_b64 exec, -1')
else:
    publish_flags(8)
    if FHMODE == 'wait':
        a('s_waitcnt vmcnt(0)')
    a('s_mov_b64 exec, 1')
    a('buffer_store_dword v%d, v240, %s, 0 offen sc1' % (V_T, srd(S_WS)))
    a('s_mov_b64 exec, -1')
a.label('L_next_pair')
stamp()
a('s_add_u32 s%d, s%d, 1' % (sPAIR, sPAIR))
a('s_cmp_lt_u32 s%d, 2' % sPAIR)
a('s_cbranch_scc1 L_pair')

if PAD:
    a.label('L_padspin')
    a('s_memrealtime s[34:35]')
    a('s_waitcnt lgkmcnt(0)')
    a('s_sub_u32 s34, s34, s0')
    a('s_cmp_lt_u32 s34, %d' % PAD[0])
    a('s_cbranch_scc1 L_padspin')
if DBG:
    a('s_memtime s[32:33]')
    a('s_memrealtime s[34:35]')
    a('s_waitcnt lgkmcnt(0)')
    a('s_sub_u32 s32, s32, s26')
    a('s_sub_u32 s34, s34, s0')
    build_srd(S_TMP, P_DBG, 256)
    a('v_mov_b32 v2, s32')
    a('v_mov_b32 v3, s34')
    a('v_mov_b32 v4, s%d' % sFAST)
    a('v_mov_b32 v5, s%d' % sXCC)
    a('s_lshr_b32 s%d, s2, 6' % sA)
    a('s_lshl_b32 s%d, s%d, 4' % (sA, sA))
    a('s_and_b32 s%d, s2, 63' % sB)
    a('s_or_b32 s%d, s%d, s%d' % (sB, sB, sW))
    a('s_cmp_eq_u32 s%d, 0' % sB)
    a('s_cselect_b32 s%d, s%d, 0x%x' % (sA, sA, INV))
    a('v_mov_b32 v6, s%d' % sA)
    a('s_mov_b64 exec, 1')
    a('buffer_store_dwordx4 v[2:5], v6, %s, 0 offen' % srd(S_TMP))
    a('s_mov_b64 exec, -1')
if DIAG:
    stamp()
    a('s_mov_b32 s%d, 63' % sSTI)
    a('s_lshl_b64 exec, 1, s%d' % sSTI)
    a('v_mov_b32 v%d, s%d' % (V_STAMP, sERR))
    a('s_mov_b32 s%d, 62' % sSTI)
    a('s_lshl_b64 exec, 1, s%d' % sSTI)
    a('v_mov_b32 v%d, s%d' % (V_STAMP, sFAST))
    a('s_mov_b64 exec, -1')
    a('s_lshl_b32 s%d, s2, 2' % sA)
    a('s_add_u32 s%d, s%d, s%d' % (sA, sA, sW))
    a('s_lshl_b32 s%d, s%d, 8' % (sA, sA))
    a('v_lshlrev_b32 v2, 2, v0')
    a('s_add_u32 s%d, s%d, %d' % (sA, sA, L.WS_USED))
    a('s_mov_b32 s%d, 0x%x' % (S_WS + 2, L.WS_USED + 256 * 1024))
    a('buffer_store_dword v%d, v2, %s, s%d offen' % (V_STAMP, srd(S_WS), sA))
    if DBGST:
        build_srd(S_TMP, P_DBG, 256)
        a('v_readfirstlane_b32 s%d, v%d' % (sA, V_STAMP))
        a('s_nop 4')
        a('v_subrev_u32 v3, s%d, v%d' % (sA, V_STAMP))
        a('s_or_b32 s%d, s2, s%d' % (sB, sW))
        a('s_cmp_eq_u32 s%d, 0' % sB)
        a('s_cselect_b32 s%d, 0, 0x%x' % (sB, INV))
        a('v_or_b32 v2, s%d, v2' % sB)
        SEL = [int(x[6:]) for x in sys.argv if x.startswith('--sel=')]
        sel = SEL[0] if SEL else 1
        a('v_subrev_u32 v2, %d, v2' % (4 * sel))
        a('buffer_store_dword v3, v2, %s, 0 offen' % srd(S_TMP))
a.label('L_end')
a('s_endpgm')
a.ins.extend(ool)
a.label('L_code_end')

a.finalize()
body = a.text()

import os
hdr = open(os.path.join(os.path.dirname(os.path.abspath(__file__)), 'header.txt')).read()
out = hdr + '; @launch grid=(256,1,1) block=(256,1,1) lds=%d\n' % L.LDS_BYTES
out += '.amdgcn_target "amdgcn-amd-amdhsa--gfx950"\n.text\n.globl %s_kernel\n.p2align 8\n.type %s_kernel,@function\n%s_kernel:\n' % (NAME, NAME, NAME)
out += body
out += '''.section .rodata,"a"
.p2align 6
.amdhsa_kernel %s_kernel
  .amdhsa_next_free_vgpr 512
  .amdhsa_next_free_sgpr 102
  .amdhsa_accum_offset 256
  .amdhsa_group_segment_fixed_size 0
  .amdhsa_kernarg_size 88
  .amdhsa_user_sgpr_count 2
  .amdhsa_user_sgpr_kernarg_segment_ptr 1
  .amdhsa_system_sgpr_workgroup_id_x 1
.end_amdhsa_kernel
''' % NAME
sys.stdout.write(out)
```

```python
import struct
import sys
from asmlib import Asm
import layout as L

NAME = 'interleave_layers__sliding_local_dilated__mixer_channel_mlp__prompt'
DIAG = '--diag' in sys.argv
FASTMODE = ([x[7:] for x in sys.argv if x.startswith('--fast=')] + ['flags'])[0]
NOFAST = FASTMODE == 'none'
PAD = [int(x[6:]) for x in sys.argv if x.startswith('--pad=')]
DBG = '--dbg' in sys.argv or bool(PAD)
SPIN_LIMIT = 200000
OUTSC = ([x[8:] for x in sys.argv if x.startswith('--outsc=')] + [''])[0].replace('_', ' ')
SLEEP = int(([x[8:] for x in sys.argv if x.startswith('--sleep=')] + ['0'])[0])
INV = 0x80000000

a = Asm()

sXCC = 3
S_WS, S_TMP, S_B1, S_OUT = 4, 8, 12, 16
P_X, P_WQKV, P_WO, P_BX, P_W1, P_B1, P_W2, P_B2, P_OUT, P_DBG, P_WSP = 20, 22, 24, 26, 28, 30, 32, 34, 36, 38, 40
sS, sC, sG, sJ, sW, sT, sPAIR, sSPIN = 42, 43, 44, 45, 46, 47, 48, 49
sM1 = 50
sM2 = 58
sM0 = 66
sO = 74
sA, sB, sCc, sD = 90, 91, 92, 93
sMK = 94
sTS = 96
sGT = 98
sERR = 99
sEP = 1
sSTI = 100
sFAST = 101
sFD = 27
sPFC = 26
sFH = 25


def srd(n):
    return 's[%d:%d]' % (n, n + 3)


def vr(n, k=4):
    return 'v[%d:%d]' % (n, n + k - 1)


def ar(n, k=4):
    return 'a[%d:%d]' % (n, n + k - 1)


def sp(n):
    return 's[%d:%d]' % (n, n + 1)


def f2h(x):
    return '0x%08x' % struct.unpack('<I', struct.pack('<f', x))[0]


V_T, V_STAMP = 254, 255
V_TOK, V_G = 250, 251
MFMA = 'v_mfma_f32_16x16x32_bf16'


DIAG2 = '--diag2' in sys.argv
PREFPOS = ([x[7:] for x in sys.argv if x.startswith('--pref=')] + ['a'])[0]
PREF = PREFPOS != 'n'
TOUCH = '--notouch' not in sys.argv
STWAIT = '--stwait' in sys.argv
P2EARLY = '--p2early' in sys.argv
SKEW = [int(x[7:]) for x in sys.argv if x.startswith('--skew=')]
DBGST = '--dbgst' in sys.argv


def stamp2():
    if DIAG2:
        stamp()


def stamp():
    if not DIAG:
        return
    a('%s %s' % ('s_memrealtime' if '--rt' in sys.argv else 's_memtime', sp(sTS)))
    a('s_waitcnt lgkmcnt(0)')
    a('s_lshl_b64 exec, 1, s%d' % sSTI)
    a('v_mov_b32 v%d, s%d' % (V_STAMP, sTS))
    a('s_mov_b64 exec, -1')
    a('s_add_u32 s%d, s%d, 1' % (sSTI, sSTI))


ool = []


class OutOfLine:
    def __enter__(self):
        self.saved = a.ins
        a.ins = []

    def __exit__(self, *exc):
        ool.extend(a.ins)
        a.ins = self.saved


lab_no = [0]


def newlab(p):
    lab_no[0] += 1
    return '%s_%d' % (p, lab_no[0])


def emit_pref():
    a('s_getpc_b64 s[96:97]')
    a.label('L_pc')
    a('s_lshr_b32 s%d, s2, 3' % sA)
    a('s_lshl_b32 s%d, s%d, 11' % (sA, sA))
    a('s_lshl_b32 s%d, s%d, 9' % (sB, sW))
    a('s_add_u32 s%d, s%d, s%d' % (sA, sA, sB))
    a('v_lshlrev_b32 v21, 3, v0')
    a('v_add_u32 v21, s%d, v21' % sA)
    a('v_min_u32 v21, L_code_end-L_pc-8, v21')
    a('global_load_dwordx2 v[58:59], v21, s[96:97]')


def skew_store(point, have=False):
    if not SKEW or SKEW[0] != point:
        return
    if not have:
        a('s_memrealtime s[96:97]')
        a('s_waitcnt lgkmcnt(0)')
    build_srd(S_TMP, P_DBG, 256)
    a('s_and_b32 s%d, s2, 15' % sA)
    a('s_or_b32 s%d, s%d, s%d' % (sA, sA, sW))
    a('s_cmp_eq_u32 s%d, 0' % sA)
    a('s_cselect_b32 s%d, 0, 0x%x' % (sA, INV))
    a('s_lshr_b32 s%d, s2, 2' % sB)
    a('s_or_b32 s%d, s%d, s%d' % (sA, sA, sB))
    a('v_mov_b32 v21, s%d' % sA)
    a('v_mov_b32 v22, s96')
    a('s_mov_b64 exec, 1')
    a('buffer_store_dword v22, v21, %s, 0 offen' % srd(S_TMP))
    a.vm_issued -= 1
    a('s_mov_b64 exec, -1')


def build_srd(dst, ptr, nbytes):
    a('s_mov_b32 s%d, s%d' % (dst, ptr))
    a('s_and_b32 s%d, s%d, 0xffff' % (dst + 1, ptr + 1))
    a('s_mov_b32 s%d, 0x%x' % (dst + 2, nbytes))
    a('s_mov_b32 s%d, 0x20000' % (dst + 3))


def poll(voff, off2=None, sleep=None):
    lab, done = newlab('L_poll'), newlab('L_polldone')
    a('s_mov_b64 exec, %s' % sp(sMK))
    a('s_mov_b32 s%d, 0' % sSPIN)
    a.label(lab)
    a('buffer_load_dword v253, v%d, %s, 0 offen sc1' % (voff, srd(S_WS)))
    if off2 is not None:
        a('buffer_load_dword v245, v%d, %s, 0 offen offset:%d sc1' % (voff, srd(S_WS), off2))
    a('s_waitcnt vmcnt(0)')
    if off2 is not None:
        a('v_xor_b32 v245, s%d, v245' % sT)
        a('v_xor_b32 v253, s%d, v253' % sT)
        a('v_or_b32 v253, v253, v245')
        a('v_cmp_ne_u32 vcc, 0, v253')
    else:
        a('v_cmp_ne_u32 vcc, s%d, v253' % sT)
    a('s_nop 4')
    a('s_cbranch_vccz %s' % done)
    if sleep or SLEEP:
        a('s_sleep %d' % (sleep or SLEEP))
    a('s_add_u32 s%d, s%d, 1' % (sSPIN, sSPIN))
    a('s_cmp_lt_u32 s%d, %d' % (sSPIN, SPIN_LIMIT))
    a('s_cbranch_scc1 %s' % lab)
    a('s_add_u32 s%d, s%d, 1' % (sERR, sERR))
    a.label(done)
    a('s_mov_b64 exec, -1')


sMK2 = 30


def early_issue(dst, voff, off=0):
    a('s_mov_b64 exec, %s' % sp(sMK2))
    a('buffer_load_dword v%d, v%d, %s, 0 offen offset:%d sc1' % (dst, voff, srd(S_WS), off))
    a('s_mov_b64 exec, -1')
    return a.vm_mark()


def early_check(dst, voff, mark, off=0):
    ok = newlab('L_early')
    a.wait_vm(mark)
    a('s_mov_b64 exec, %s' % sp(sMK2))
    a('v_cmp_ne_u32 vcc, s%d, v%d' % (sT, dst))
    a('s_mov_b64 exec, -1')
    a('s_nop 2')
    a('s_cbranch_vccz %s' % ok)
    a('s_mov_b64 %s, %s' % (sp(sMK), sp(sMK2)))
    n = a.vm_issued
    if off:
        a('v_add_u32 v253, %d, v%d' % (off, voff))
        a('v_mov_b32 v%d, v253' % dst)
        poll(dst)
    else:
        poll(voff)
    a.vm_issued = n
    a.label(ok)


def store(fmt, cond=None):
    if cond is None or NOFAST or (FASTMODE == 'flags' and cond in (sFD, sFH, sPC)):
        a(fmt + ' sc1')
        return
    slow, done = newlab('L_slow'), newlab('L_st')
    a('s_cmp_eq_u32 s%d, 0' % cond)
    a('s_cbranch_scc1 %s' % slow)
    a(fmt)
    a('s_branch %s' % done)
    a.label(slow)
    a(fmt + ' sc1')
    a.vm_issued -= 1
    a.label(done)


def set_flags(voff, nlanes, cond=None, val=V_T, between=()):
    mark = a.vm_mark()
    for x in between:
        a(x)
    a.wait_vm(mark)
    a('s_mov_b64 exec, %d' % ((1 << nlanes) - 1))
    store('buffer_store_dword v%d, v%d, %s, 0 offen' % (val, voff, srd(S_WS)), cond)
    a('s_mov_b64 exec, -1')


def xg_reduce(x, t, op='v_add_f32'):
    return ['v_mov_b32 v%d, v%d' % (t, x),
            'v_permlane32_swap_b32 v%d, v%d' % (x, t),
            '%s v%d, v%d, v%d' % (op, x, x, t),
            'v_mov_b32 v%d, v%d' % (t, x),
            'v_permlane16_swap_b32 v%d, v%d' % (x, t),
            '%s v%d, v%d, v%d' % (op, x, x, t)]


EPS = 1e-5


def stats_finish(s1, s2, t, double_ln):
    o = ['v_mul_f32 v%d, %s, v%d' % (s1, f2h(1.0 / 448), s1),
         'v_mul_f32 v%d, %s, v%d' % (s2, f2h(1.0 / 448), s2),
         'v_fma_f32 v%d, -v%d, v%d, v%d' % (s2, s1, s1, s2),
         'v_max_f32 v%d, 0, v%d' % (s2, s2),
         'v_add_f32 v%d, %s, v%d' % (t, f2h(EPS), s2),
         'v_rsq_f32 v%d, v%d' % (t, t)]
    if not double_ln:
        o += ['v_mov_b32 v%d, v%d' % (s2, t)]
    else:
        o += ['v_mul_f32 v%d, v%d, v%d' % (s2, s2, t),
              'v_fmaak_f32 v%d, v%d, v%d, %s' % (s2, s2, t, f2h(EPS)),
              'v_rsq_f32 v%d, v%d' % (s2, s2),
              'v_mul_f32 v%d, v%d, v%d' % (s2, s2, t)]
    return o


def pair_base(dst, arr):
    a('s_mul_i32 s%d, s%d, %d' % (dst, sPAIR, arr[1] - arr[0]))
    a('s_add_u32 s%d, s%d, %d' % (dst, dst, arr[0]))


def quarter_offsets(n, stride):
    for t in range(n):
        if t:
            a('s_add_u32 s%d, s%d, %d' % (sO + 4 * t, sO + 4 * (t - 1), stride))
        for q in range(1, 4):
            a('s_add_u32 s%d, s%d, %d' % (sO + 4 * t + q, sO + 4 * t, 4096 * q))


sPX, sPS, sPF, sPC, sPX2 = 36, 37, 28, 29, 33


def stats_flags(delta, lsh):
    a('v_lshlrev_b32 v241, %d, v0' % lsh)
    a('s_add_u32 s%d, s%d, %d' % (sA, sPF, delta))
    a('v_add_u32 v241, s%d, v241' % sA)
    a('s_mov_b64 exec, 3')
    store('buffer_store_dword v%d, v241, %s, 0 offen' % (V_T, srd(S_WS)), sPFC)
    a('s_mov_b64 exec, -1')


a('s_cmp_ge_u32 s2, 256')
a('s_cbranch_scc1 L_end')
if '--perm' in sys.argv:
    a('s_and_b32 s90, s2, 7')
    a('s_lshr_b32 s91, s2, 3')
    a('s_and_b32 s91, s91, 7')
    a('s_and_b32 s2, s2, 0xc0')
    a('s_lshl_b32 s90, s90, 3')
    a('s_or_b32 s2, s2, s90')
    a('s_or_b32 s2, s2, s91')
SPRE = int(([x[7:] for x in sys.argv if x.startswith('--spre=')] + ['0'])[0])
if SPRE:
    a('s_getpc_b64 s[96:97]')
a('s_load_dwordx16 s[20:35], s[0:1], 0')
a('s_load_dwordx4 s[36:39], s[0:1], 64')
a('s_load_dwordx2 s[40:41], s[0:1], 80')
for i in range(SPRE):
    a('s_load_dword s98, s[96:97], %d' % (256 + 128 * i))
a('s_getreg_b32 s%d, hwreg(HW_REG_XCC_ID, 0, 4)' % sXCC)
a('s_and_b32 s%d, s2, 7' % sA)
a('s_lshr_b32 s%d, s2, 3' % sB)
a('s_lshr_b32 s%d, s%d, 4' % (sCc, sB))
a('s_lshl_b32 s%d, s%d, 1' % (sS, sA))
a('s_add_u32 s%d, s%d, s%d' % (sS, sS, sCc))
a('s_and_b32 s%d, s%d, 15' % (sC, sB))
a('s_lshr_b32 s%d, s%d, 3' % (sA, sC))
a('s_lshl_b32 s%d, s%d, 1' % (sG, sS))
a('s_add_u32 s%d, s%d, s%d' % (sG, sG, sA))
a('s_and_b32 s%d, s%d, 7' % (sJ, sC))
a('s_mov_b32 s%d, 0' % sERR)
if SKEW and SKEW[0] == 0:
    a('s_memrealtime s[96:97]')
a('v_lshrrev_b32 v2, 6, v0')
a('v_and_b32 v0, 63, v0')
a('v_readfirstlane_b32 s%d, v2' % sW)
a('v_lshlrev_b32 v1, 4, v0')
if DIAG:
    a('v_mov_b32 v%d, 0' % V_STAMP)
    a('s_mov_b32 s%d, 0' % sSTI)
stamp()
a('v_and_b32 v%d, 15, v0' % V_TOK)
a('v_lshrrev_b32 v%d, 4, v0' % V_G)
sSTG = 40
a('s_waitcnt lgkmcnt(0)')
if DBG:
    a('s_memtime s[26:27]')
    a('s_memrealtime s[0:1]')
    a('s_waitcnt lgkmcnt(0)')
skew_store(0, True)
build_srd(S_WS, P_WSP, L.WS_USED)
a('buffer_load_dword v%d, off, %s, 0 sc1' % (V_T, srd(S_WS)))
a('s_lshl_b32 s%d, s%d, 14' % (sSTG, sW))
a('s_add_u32 s%d, s%d, %d' % (sSTG, sSTG, L.L_R2))

build_srd(S_TMP, P_X, 2048 * 896)
a('v_mul_u32_u24 v2, 896, v%d' % V_TOK)
a('v_lshl_add_u32 v2, v%d, 3, v2' % V_G)
a('s_lshr_b32 s%d, s%d, 1' % (sA, sC))
a('s_lshl_b32 s%d, s%d, 3' % (sB, sS))
a('s_add_u32 s%d, s%d, s%d' % (sO + 0, sA, sB))
a('s_and_b32 s%d, s%d, 1' % (sA, sC))
a('s_mul_i32 s%d, s%d, 7' % (sA, sA))
a('s_add_u32 s%d, s%d, s%d' % (sO + 1, sA, sW))
a('s_cmp_lt_u32 s%d, 3' % sW)
a('s_cselect_b32 s%d, 0, 0x%x' % (sO + 2, INV))
a('s_mul_i32 s%d, s%d, 14336' % (sA, sO + 0))
a('s_lshl_b32 s%d, s%d, 6' % (sB, sO + 1))
a('s_add_u32 s%d, s%d, s%d' % (sA, sA, sB))
a('v_or_b32 v3, s%d, v2' % (sO + 2))
a('buffer_load_dwordx2 v[10:11], v2, %s, s%d offen' % (srd(S_TMP), sA))
a('buffer_load_dwordx2 v[12:13], v2, %s, s%d offen offset:32' % (srd(S_TMP), sA))
a('buffer_load_dwordx2 v[14:15], v3, %s, s%d offen offset:256' % (srd(S_TMP), sA))
a('buffer_load_dwordx2 v[16:17], v3, %s, s%d offen offset:288' % (srd(S_TMP), sA))

build_srd(S_TMP, P_WQKV, 448 * 2688)
qMAT, qU, qINV = sO + 3, sO + 4, sO + 5
a('s_lshl_b32 s%d, s%d, 4' % (sA, sW))
a('s_add_u32 s%d, s%d, s%d' % (sA, sA, sS))
a('s_cmp_lt_u32 s%d, 42' % sA)
a('s_cselect_b32 s%d, 0, 0x%x' % (qINV, INV))
a('s_min_u32 s%d, s%d, 41' % (sA, sA))
a('s_mul_i32 s%d, s%d, 4682' % (qMAT, sA))
a('s_lshr_b32 s%d, s%d, 16' % (qMAT, qMAT))
a('s_mul_i32 s%d, s%d, 14' % (sB, qMAT))
a('s_sub_u32 s%d, s%d, s%d' % (qU, sA, sB))
a('s_mul_i32 s%d, s%d, %d' % (sA, qU, 32 * 2688))
a('s_mul_i32 s%d, s%d, 896' % (sB, qMAT))
a('s_add_u32 s%d, s%d, s%d' % (sA, sA, sB))
a('s_mul_i32 s%d, s%d, 56' % (sB, sC))
a('s_add_u32 s%d, s%d, s%d' % (sA, sA, sB))
a('v_lshrrev_b32 v4, 2, v0')
a('v_mul_u32_u24 v4, 2688, v4')
a('v_and_b32 v5, 3, v0')
a('v_lshl_add_u32 v4, v5, 4, v4')
a('v_or_b32 v4, s%d, v4' % qINV)
a('s_mov_b32 m0, s%d' % sSTG)
a('s_add_u32 s%d, s%d, %d' % (sB, sA, 16 * 2688))
a('buffer_load_dwordx4 v4, %s, s%d offen lds' % (srd(S_TMP), sA))
a('s_add_u32 m0, s%d, 1024' % sSTG)
a('s_nop 0')
a('buffer_load_dwordx4 v4, %s, s%d offen lds' % (srd(S_TMP), sB))

bINV, bDST, bSTR, bINV2, bDST2, sSTRD = 20, 21, 22, 23, 24, 25


def emit_p2_issue():
    a('s_cmp_eq_u32 s%d, 3' % sW)
    a('s_cbranch_scc1 L_p2_w1')
    a('s_lshl_b32 s%d, s%d, 5' % (sA, sW))
    a('s_add_u32 s%d, s%d, s%d' % (sA, sA, sG))
    a('s_cmp_lt_u32 s%d, 72' % sA)
    a('s_cselect_b32 s%d, 0, 0x%x' % (bINV, INV))
    a('s_cmp_eq_u32 s%d, 7' % sJ)
    a('s_cselect_b32 s%d, 0x%x, s%d' % (bINV, INV, bINV))
    a('s_min_u32 s%d, s%d, 71' % (sA, sA))
    a('s_min_u32 s%d, s%d, 6' % (sD, sJ))
    a('s_cmp_lt_u32 s%d, 16' % sA)
    a('s_cselect_b32 s%d, s%d, s%d' % (S_TMP, P_WO, P_W2))
    a('s_cselect_b32 s%d, s%d, s%d' % (S_TMP + 1, P_WO + 1, P_W2 + 1))
    a('s_mov_b32 s%d, 0x%x' % (S_TMP + 2, 1792 * 896))
    a('s_cselect_b32 s%d, 0x%x, s%d' % (S_TMP + 2, 448 * 896, S_TMP + 2))
    a('s_cselect_b32 s%d, 28, 32' % sB)
    a('s_cselect_b32 s%d, 0, 16' % sCc)
    a('s_mov_b32 s%d, %d' % (bSTR, 56 * 1024))
    a('s_cselect_b32 s%d, %d, s%d' % (bSTR, 16 * 1024, bSTR))
    a('s_mov_b32 s%d, %d' % (bDST, L.WD))
    a('s_cselect_b32 s%d, %d, s%d' % (bDST, L.WB, bDST))
    a('s_cselect_b32 s%d, 0x%x, 0' % (sO + 9, INV))
    a('s_and_b32 s%d, s%d, 0xffff' % (S_TMP + 1, S_TMP + 1))
    a('s_mov_b32 s%d, 0x20000' % (S_TMP + 3))
    a('s_sub_u32 s%d, s%d, s%d' % (sA, sA, sCc))
    a('s_lshl_b32 s%d, s%d, 10' % (sCc, sA))
    a('s_add_u32 s%d, s%d, s%d' % (bDST, bDST, sCc))
    a('s_lshl_b32 s%d, s%d, 2' % (sCc, sD))
    a('s_mul_i32 s%d, s%d, s%d' % (sCc, sCc, bSTR))
    a('s_add_u32 s%d, s%d, s%d' % (bDST, bDST, sCc))
    a('s_mul_i32 s%d, s%d, s%d' % (sA, sA, sB))
    a('s_mul_i32 s%d, s%d, 896' % (sA, sA))
    a('s_lshl_b32 s%d, s%d, 7' % (sB, sD))
    a('s_add_u32 s%d, s%d, s%d' % (sO + 10, sA, sB))
    a('s_mov_b32 s%d, 896' % sSTRD)
    a('s_mov_b32 s%d, 0x%x' % (bINV2, INV))
    a('s_mov_b32 s%d, 0' % bDST2)
    a('s_mov_b32 s%d, 0' % (sO + 11))
    a('s_branch L_p2_go')
    a.label('L_p2_w1')
    build_srd(S_TMP, P_W1, 448 * 3584)
    a('s_lshl_b32 s%d, s%d, 4' % (sA, sS))
    a('s_add_u32 s%d, s%d, s%d' % (sA, sA, sC))
    a('s_cmp_lt_u32 s%d, 136' % sA)
    a('s_cselect_b32 s%d, 0, 0x%x' % (bINV2, INV))
    a('s_mov_b32 s%d, 0' % bINV)
    a('s_mov_b32 s%d, 0' % (sO + 9))
    a('s_mov_b32 s%d, %d' % (bSTR, 14 * 1024))
    a('s_mov_b32 s%d, 3584' % sSTRD)
    for dst, src, add in ((bDST, sO + 10, 0), (bDST2, sO + 11, 256)):
        a('s_add_u32 s%d, s%d, %d' % (sB, sA, add))
        a('s_min_u32 s%d, s%d, 391' % (sB, sB))
        a('s_mul_i32 s%d, s%d, 4682' % (sCc, sB))
        a('s_lshr_b32 s%d, s%d, 16' % (sCc, sCc))
        a('s_mul_i32 s%d, s%d, 14' % (sD, sCc))
        a('s_sub_u32 s%d, s%d, s%d' % (sB, sB, sD))
        a('s_mul_i32 s%d, s%d, %d' % (src, sB, 32 * 3584))
        a('s_lshl_b32 s%d, s%d, 7' % (sD, sCc))
        a('s_add_u32 s%d, s%d, s%d' % (src, src, sD))
        a('s_mul_i32 s%d, s%d, 56' % (sD, sCc))
        a('s_add_u32 s%d, s%d, s%d' % (sD, sD, sB))
        a('s_lshl_b32 s%d, s%d, 10' % (sD, sD))
        a('s_add_u32 s%d, s%d, %d' % (dst, sD, L.WC))
    a.label('L_p2_go')
    a('v_lshrrev_b32 v6, 3, v0')
    a('v_mul_lo_u32 v6, v6, s%d' % sSTRD)
    a('v_and_b32 v5, 7, v0')
    a('v_lshl_add_u32 v6, v5, 4, v6')
    a('v_or_b32 v8, s%d, v6' % bINV2)
    a('v_or_b32 v6, s%d, v6' % bINV)
    a('v_cmp_lt_u32 vcc, 31, v0')
    a('v_mov_b32 v7, s%d' % (sO + 9))
    a('v_cndmask_b32 v7, 0, v7, vcc')
    a('v_or_b32 v7, v7, v6')
    a('s_lshl_b32 s%d, s%d, 3' % (sB, sSTRD))
    for slot in range(2):
        src = sO + 10 + slot
        for q in range(4):
            a('s_add_u32 m0, s%d, %d' % (sSTG, 2048 + 4096 * slot + 1024 * q))
            if q:
                a('s_add_u32 s%d, s%d, s%d' % (src, src, sB))
            else:
                a('s_nop 0')
            a('buffer_load_dwordx4 v%d, %s, s%d offen lds' % (8 if slot else (7 if q == 3 else 6), srd(S_TMP), src))


if P2EARLY:
    emit_p2_issue()
build_srd(S_B1, P_B1, 1792 * 2)
build_srd(S_OUT, P_OUT, 2048 * 896)
a('v_bfe_u32 v18, v0, 2, 2')
a('v_lshl_add_u32 v18, v%d, 2, v18' % V_G)
a('v_and_b32 v19, 3, v0')
a('v_lshlrev_b32 v19, 3, v19')
if PREFPOS == 'b':
    emit_pref()
if TOUCH:
    a('v_lshlrev_b32 v21, 21, v0')
    a('s_mov_b64 exec, 0x1ffff')
    a('buffer_load_dword v253, v21, %s, 0 offen' % srd(S_WS))
    a('s_mov_b64 exec, -1')
    a('s_waitcnt vmcnt(%d)' % ((9 if P2EARLY else 1) + (PREFPOS == 'b')))
else:
    a('s_waitcnt vmcnt(%d)' % ((8 if P2EARLY else 0) + (PREFPOS == 'b')))
stamp()

a('v_readfirstlane_b32 s%d, v%d' % (sEP, V_T))
a('s_mov_b32 s%d, 0x9E3779B1' % sA)
a('v_mul_lo_u32 v%d, v%d, s%d' % (V_T, V_T, sA))
a('v_add_u32 v%d, 0x7F4A7C15, v%d' % (V_T, V_T))
a('v_and_b32 v%d, -16, v%d' % (V_T, V_T))
a('v_lshl_add_u32 v20, v18, 6, v19')
a('v_add_u32 v20, s%d, v20' % sSTG)
for hf in range(2):
    a('ds_read_b64_tr_b16 %s, v20 offset:%d' % (vr(24 + 4 * hf, 2), 32 * hf))
    a('ds_read_b64_tr_b16 %s, v20 offset:%d' % (vr(26 + 4 * hf, 2), 32 * hf + 1024))
a('v_readfirstlane_b32 s%d, v%d' % (sT, V_T))
a('s_mul_i32 s%d, s%d, 14' % (sA, sO + 0))
a('s_add_u32 s%d, s%d, s%d' % (sA, sA, sO + 1))
a('s_lshl_b32 s%d, s%d, 10' % (sB, sA))
a('s_add_u32 s%d, s%d, %d' % (sB, sB, L.XA[0]))
a('v_or_b32 v3, s%d, v1' % (sO + 2))
a('buffer_store_dwordx4 v[10:13], v1, %s, s%d offen sc1' % (srd(S_WS), sB))
a('s_add_u32 s%d, s%d, 4096' % (sB, sB))
a('buffer_store_dwordx4 v[14:17], v3, %s, s%d offen sc1' % (srd(S_WS), sB))
a('v_cmp_gt_u32 vcc, 12, v%d' % V_TOK)
a('s_mul_i32 s%d, s%d, 84' % (sB, sC))
a('s_mul_i32 s%d, s%d, 28' % (sCc, qMAT))
a('s_add_u32 s%d, s%d, s%d' % (sB, sB, sCc))
a('s_add_u32 s%d, s%d, s%d' % (sB, sB, qU))
a('s_lshl_b32 s%d, s%d, 10' % (sB, sB))
a('s_add_u32 s%d, s%d, %d' % (sB, sB, L.WA))
a('v_or_b32 v4, s%d, v1' % qINV)
a('s_waitcnt lgkmcnt(0)')
for p in range(4):
    a('v_cndmask_b32 v%d, 0, v%d, vcc' % (28 + p, 28 + p))
a('buffer_store_dwordx4 v[24:27], v4, %s, s%d offen sc1' % (srd(S_WS), sB))
a('s_add_u32 s%d, s%d, %d' % (sB, sB, 14 * 1024))
a('buffer_store_dwordx4 v[28:31], v4, %s, s%d offen sc1' % (srd(S_WS), sB))
a('v_mov_b32 v2, 0x3f803f80')
for k in range(2):
    x, s1, s2 = 10 + 4 * k, 110 + 2 * k, 111 + 2 * k
    a('v_mov_b32 v%d, 0' % s1)
    a('v_mov_b32 v%d, 0' % s2)
    for p in range(4):
        a('v_dot2_f32_bf16 v%d, v%d, v2, v%d' % (s1, x + p, s1))
        a('v_dot2_f32_bf16 v%d, v%d, v%d, v%d' % (s2, x + p, x + p, s2))
    for t in xg_reduce(s1, 114) + xg_reduce(s2, 115):
        a(t)
a('s_lshl_b32 s%d, s%d, 7' % (sB, sA))
a('s_add_u32 s%d, s%d, %d' % (sB, sB, L.SA[0]))
a('v_lshlrev_b32 v2, 3, v%d' % V_TOK)
a('v_or_b32 v3, s%d, v2' % (sO + 2))
a('s_mov_b64 exec, 0xffff')
a('buffer_store_dwordx2 v[110:111], v2, %s, s%d offen sc1' % (srd(S_WS), sB))
a('buffer_store_dwordx2 v[112:113], v3, %s, s%d offen offset:512 sc1' % (srd(S_WS), sB))
a('s_mov_b64 exec, -1')
crit_mark = a.vm_mark()
if not P2EARLY:
    emit_p2_issue()
a('s_lshl_b32 s%d, s%d, 5' % (sA, sO + 0))
a('s_add_u32 s%d, s%d, s%d' % (sA, sA, sO + 1))
a('s_lshl_b32 s%d, s%d, 2' % (sA, sA))
a('s_add_u32 s%d, s%d, %d' % (sA, sA, L.FX[0]))
a('v_lshlrev_b32 v2, 4, v0')
a('v_add_u32 v2, s%d, v2' % sA)
a('v_cmp_eq_u32 vcc, 1, v0')
a('v_mov_b32 v3, s%d' % (sO + 2))
a('v_cndmask_b32 v3, 0, v3, vcc')
a('v_or_b32 v2, v2, v3')
a('s_lshl_b32 s%d, s%d, 6' % (sA, sC))
a('s_lshl_b32 s%d, s%d, 2' % (sB, sS))
a('s_add_u32 s%d, s%d, s%d' % (sA, sA, sB))
a('s_add_u32 s%d, s%d, s%d' % (sA, sA, sW))
a('s_lshl_b32 s%d, s%d, 2' % (sA, sA))
a('s_add_u32 s%d, s%d, %d' % (sA, sA, L.FQ))
a('v_mov_b32 v3, s%d' % sA)
a('v_cmp_eq_u32 vcc, 2, v0')
a('v_cndmask_b32 v2, v2, v3, vcc')
a('s_lshl_b32 s%d, s%d, 4' % (sA, sS))
a('s_add_u32 s%d, s%d, s%d' % (sA, sA, sC))
a('s_lshl_b32 s%d, s%d, 2' % (sA, sA))
a('s_add_u32 s%d, s%d, %d' % (sA, sA, L.FXC))
a('s_cmp_eq_u32 s%d, 0' % sW)
a('s_cselect_b32 s%d, s%d, 0x%x' % (sA, sA, INV))
a('v_mov_b32 v3, s%d' % sA)
a('v_cmp_eq_u32 vcc, 3, v0')
a('v_cndmask_b32 v2, v2, v3, vcc')
a('v_or_b32 v3, s%d, v%d' % (sXCC, V_T))
a('v_cndmask_b32 v3, v%d, v3, vcc' % V_T)
stamp2()
a.wait_vm(crit_mark)
a('s_mov_b64 exec, 15')
a('buffer_store_dword v3, v2, %s, 0 offen sc1' % srd(S_WS))
a('s_mov_b64 exec, -1')
stamp()

if PREFPOS == 'a':
    emit_pref()
BTOUCH = '--btouch' in sys.argv
if BTOUCH:
    a('v_lshlrev_b32 v21, 6, v0')
    a('buffer_load_dword v60, v21, %s, 0 offen' % srd(S_B1))
    build_srd(S_TMP, P_B2, 896)
    a('buffer_load_dword v61, v21, %s, 0 offen' % srd(S_TMP))
skew_store(1)
a('s_waitcnt vmcnt(%d)' % (1 + (PREFPOS == 'a') + 2 * BTOUCH))
a('v_lshl_add_u32 v20, v18, 7, v19')
a('v_add_u32 v20, s%d, v20' % sSTG)
for slot in range(2):
    for t in range(4):
        a('ds_read_b64_tr_b16 %s, v20 offset:%d' % (vr(24 + 16 * slot + 4 * t, 2), 2048 + 4096 * slot + 32 * t))
        a('ds_read_b64_tr_b16 %s, v20 offset:%d' % (vr(26 + 16 * slot + 4 * t, 2), 2048 + 4096 * slot + 32 * t + 2048))
a('v_or_b32 v6, s%d, v1' % bINV)
a('v_or_b32 v8, s%d, v1' % bINV2)
a('s_waitcnt lgkmcnt(8)')
for t in range(4):
    a('buffer_store_dwordx4 %s, v6, %s, s%d offen sc1' % (vr(24 + 4 * t), srd(S_WS), bDST))
    if t < 3:
        a('s_add_u32 s%d, s%d, s%d' % (bDST, bDST, bSTR))
a('s_waitcnt lgkmcnt(0)')
for t in range(4):
    a('buffer_store_dwordx4 %s, v8, %s, s%d offen sc1' % (vr(40 + 4 * t), srd(S_WS), bDST2))
    if t < 3:
        a('s_add_u32 s%d, s%d, s%d' % (bDST2, bDST2, bSTR))
a('s_lshl_b32 s%d, s%d, 4' % (sA, sS))
a('s_add_u32 s%d, s%d, s%d' % (sA, sA, sC))
a('s_lshl_b32 s%d, s%d, 2' % (sA, sA))
a('s_add_u32 s%d, s%d, %d' % (sA, sA, L.FW1))
a('v_lshlrev_b32 v22, 10, v0')
a('v_add_u32 v22, s%d, v22' % sA)
a('v_cmp_eq_u32 vcc, 1, v0')
a('v_mov_b32 v23, s%d' % bINV2)
a('v_cndmask_b32 v23, 0, v23, vcc')
a('v_or_b32 v22, v22, v23')
a('s_cmp_eq_u32 s%d, 3' % sW)
a('s_cselect_b32 s%d, 0, 0x%x' % (sA, INV))
a('v_or_b32 v22, s%d, v22' % sA)

skew_store(3)
a('v_and_b32 v2, 1, v%d' % V_TOK)
a('v_lshlrev_b32 v3, 2, v%d' % V_G)
a('v_add_u32 v6, 2, v%d' % V_TOK)
for i in range(4):
    a('v_add_u32 v4, %d, v3' % i)
    a('v_cmp_eq_u32 vcc, %d, v2' % (i & 1))
    a('s_mov_b64 %s, vcc' % sp(sMK))
    a('v_cmp_ge_u32 vcc, v4, v6')
    a('s_and_b64 %s, vcc, %s' % (sp(sM1 + 2 * i), sp(sMK)))
    a('v_cmp_le_u32 vcc, v4, v%d' % V_TOK)
    a('s_and_b64 %s, vcc, %s' % (sp(sM2 + 2 * i), sp(sMK)))
a('s_lshl_b32 s%d, s%d, 3' % (sA, sS))
a('s_lshl_b32 s%d, s%d, 1' % (sB, sW))
a('s_add_u32 s%d, s%d, s%d' % (sGT, sA, sB))
a('s_cmp_eq_u32 s%d, 0' % sGT)
for i in range(4):
    a('s_cselect_b64 %s, 0, %s' % (sp(sM0 + 2 * i), sp(sM1 + 2 * i)))
a('s_mov_b32 s%d, 0' % sPAIR)

def a_flag_addr(dst):
    pair_base(sA, L.FX)
    a('s_lshl_b32 s%d, s%d, 7' % (sB, sGT))
    a('s_add_u32 s%d, s%d, s%d' % (sA, sA, sB))
    a('s_sub_u32 s%d, s%d, 128' % (sA, sA))
    a('v_and_b32 v%d, 48, v0' % dst)
    a('v_add_u32 v%d, v%d, v0' % (dst, dst))
    a('v_lshl_add_u32 v%d, v%d, 2, s%d' % (dst, dst, sA))
    a('s_mov_b32 s%d, 0x3fff3fff' % sMK)
    a('s_mov_b32 s%d, 0x3fff' % (sMK + 1))
    a('s_cmp_eq_u32 s%d, 0' % sGT)
    a('s_cselect_b32 s%d, 0x3fff0000, s%d' % (sMK, sMK))


a('s_lshl_b32 s%d, s%d, 8' % (sA, sC))
a('s_add_u32 s%d, s%d, %d' % (sA, sA, L.FQ))
a('v_lshl_add_u32 v2, v0, 2, s%d' % sA)
a_flag_addr(3)
a('s_lshl_b32 s%d, s%d, 6' % (sA, sS))
a('s_add_u32 s%d, s%d, %d' % (sA, sA, L.FXC - 48 * 4))
a('v_lshl_add_u32 v4, v0, 2, s%d' % sA)
a('v_cmp_lt_u32 vcc, 47, v0')
a('v_cndmask_b32 v3, v3, v4, vcc')
a('v_mov_b32 v5, -1')
a('v_mov_b32 v6, -16')
a('v_cndmask_b32 v5, v5, v6, vcc')
a('s_or_b32 s%d, s%d, 0xffff0000' % (sMK + 1, sMK + 1))
a('s_mov_b32 s%d, 0' % sSPIN)
a.label('L_poll0')
a('buffer_load_dword v7, v2, %s, 0 offen sc1' % srd(S_WS))
a('s_mov_b64 exec, %s' % sp(sMK))
a('buffer_load_dword v8, v3, %s, 0 offen sc1' % srd(S_WS))
a('s_waitcnt vmcnt(0)')
a('v_and_b32 v9, v5, v8')
a('v_cmp_ne_u32 vcc, s%d, v9' % sT)
a('s_mov_b64 exec, -1')
a('s_mov_b64 %s, vcc' % sp(sTS))
a('v_cmp_ne_u32 vcc, s%d, v7' % sT)
a('s_or_b64 vcc, vcc, %s' % sp(sTS))
a('s_cbranch_vccz L_poll0_done')
a('s_add_u32 s%d, s%d, 1' % (sSPIN, sSPIN))
a('s_cmp_lt_u32 s%d, %d' % (sSPIN, SPIN_LIMIT))
a('s_cbranch_scc1 L_poll0')
a('s_add_u32 s%d, s%d, 1' % (sERR, sERR))
a.label('L_poll0_done')
a('s_mov_b64 exec, 3')
a('buffer_store_dword v%d, v22, %s, 0 offen sc1' % (V_T, srd(S_WS)))
a('s_mov_b64 exec, -1')
skew_store(2)
a('v_and_b32 v9, 15, v8')
a('v_cmp_ne_u32 vcc, s%d, v9' % sXCC)
a('s_and_b32 s%d, vcc_hi, 0xffff0000' % sA)
a('s_cmp_eq_u32 s%d, 0' % sA)
a('s_cselect_b32 s%d, 1, 0' % sFAST)
stamp()
AQ, AK, AV, HACC = 2, 18, 34, 50
WBUF = [66, 90]
XR = 114
CSACC = 186
STR = 210
SM, SR = 234, 237
NR, LOOK = 6, 4
A_ONES = 240


def a_xload(u):
    slot = u % NR
    return ['buffer_load_dwordx4 %s, v1, %s, s%d offen offset:%d sc1' %
            (vr(XR + (slot * 2 + t) * 4), srd(S_WS), sO + 4 * (t + 1) + (u >> 2), 1024 * (u & 3)) for t in range(2)]


def a_offsets():
    pair_base(sA, L.XA)
    a('s_mul_i32 s%d, s%d, 14336' % (sB, sGT))
    a('s_add_u32 s%d, s%d, s%d' % (sO + 4, sA, sB))
    a('s_add_u32 s%d, s%d, 14336' % (sO + 8, sO + 4))
    for t in range(1, 3):
        for q in range(1, 4):
            a('s_add_u32 s%d, s%d, %d' % (sO + 4 * t + q, sO + 4 * t, 4096 * q))
    a('s_lshl_b32 s%d, s%d, 3' % (sB, sS))
    a('s_max_u32 s%d, s%d, 1' % (sB, sB))
    a('s_sub_u32 s%d, s%d, 1' % (sB, sB))
    a('s_mul_i32 s%d, s%d, 14336' % (sB, sB))
    a('s_add_u32 s%d, s%d, s%d' % (sO + 0, sA, sB))
    a('s_lshl_b32 s%d, s%d, 12' % (sB, sW))
    a('s_add_u32 s%d, s%d, s%d' % (sO + 0, sO + 0, sB))
    a('s_add_u32 s%d, s%d, %d' % (sO + 1, sB, L.L_R2))


def a_setup():
    if FASTMODE == 'flags':
        a('s_mov_b32 s%d, 0' % sFD)
        a('s_mov_b32 s%d, 0' % sFH)
    elif FASTMODE == 'p0':
        a('s_xor_b32 s%d, s%d, 1' % (sFD, sPAIR))
        a('s_and_b32 s%d, s%d, s%d' % (sFD, sFD, sFAST))
        a('s_mov_b32 s%d, s%d' % (sFH, sFD))
    elif FASTMODE == 'small':
        a('s_mov_b32 s%d, s%d' % (sFD, sFAST))
        a('s_mov_b32 s%d, 0' % sFH)
    elif FASTMODE == 'smallp0':
        a('s_mov_b32 s%d, s%d' % (sFD, sFAST))
        a('s_xor_b32 s%d, s%d, 1' % (sFH, sPAIR))
        a('s_and_b32 s%d, s%d, s%d' % (sFH, sFH, sFAST))
    else:
        a('s_mov_b32 s%d, s%d' % (sFD, sFAST))
        a('s_mov_b32 s%d, s%d' % (sFH, sFAST))
    pair_base(sA, L.SA)
    a('s_mul_i32 s%d, s%d, 1792' % (sB, sGT))
    a('s_add_u32 s%d, s%d, s%d' % (sO + 13, sA, sB))
    a('s_add_u32 s%d, s%d, 1792' % (sO + 14, sO + 13))
    a('s_sub_u32 s%d, s%d, 1792' % (sO + 12, sO + 13))
    a('s_cmp_eq_u32 s%d, 0' % sGT)
    a('s_cselect_b32 s%d, s%d, s%d' % (sO + 12, sO + 13, sO + 12))
    a('v_and_b32 v%d, 15, v0' % V_TOK)
    a('v_lshrrev_b32 v%d, 4, v0' % V_G)
    a('v_lshlrev_b32 v240, 3, v%d' % V_TOK)
    a('v_lshl_add_u32 v240, v%d, 7, v240' % V_G)
    a('v_mov_b32 v242, 0x%x' % INV)
    a('v_cmp_lt_u32 vcc, 1, v%d' % V_G)
    a('v_cndmask_b32 v241, 0, v242, vcc')
    a('v_or_b32 v241, v241, v240')
    a('v_add_u32 v243, %d, v1' % (56 * 1024))
    a('v_lshlrev_b32 v244, 4, v%d' % V_G)
    a('v_add_u32 v244, %d, v244' % L.L_CSA)
    a('v_lshlrev_b32 v245, 2, v%d' % V_TOK)
    a('v_add_u32 v245, %d, v245' % L.L_CSA)
    a('s_mul_i32 s%d, s%d, 384' % (sA, sW))
    a('s_add_u32 s%d, s%d, %d' % (sA, sA, L.L_STA))
    a('v_lshl_add_u32 v162, v%d, 2, s%d' % (V_TOK, sA))
    a('v_lshl_add_u32 v163, v%d, 4, s%d' % (V_G, sA))
    a('s_lshl_b32 s%d, s%d, 7' % (sA, sJ))
    a('s_add_u32 s%d, s%d, %d' % (sA, sA, L.FP))
    a('v_lshl_add_u32 v248, v0, 2, s%d' % sA)
    a('s_lshr_b32 s%d, s%d, 1' % (sB, sW))
    a('s_lshl_b32 s%d, s%d, 2' % (sCc, sG))
    a('s_add_u32 s%d, s%d, s%d' % (sB, sB, sCc))
    a('s_lshl_b32 s%d, s%d, 5' % (sB, sB))
    a('s_and_b32 s%d, s%d, 1' % (sA, sW))
    a('s_add_u32 s%d, s%d, s%d' % (sB, sB, sA))
    a('s_min_u32 s%d, s%d, 6' % (sA, sJ))
    a('s_lshl_b32 s%d, s%d, 1' % (sA, sA))
    a('s_add_u32 s%d, s%d, s%d' % (sB, sB, sA))
    a('s_lshl_b32 s%d, s%d, 2' % (sB, sB))
    a('s_add_u32 s%d, s%d, %d' % (sB, sB, L.FX[0] - 32 * 256))
    a('v_lshl_add_u32 v249, v0, 8, s%d' % sB)
    a('v_cmp_lt_u32 vcc, 31, v0')
    a('v_cndmask_b32 v248, v248, v249, vcc')
    a('s_lshr_b32 s%d, s%d, 3' % (sA, sC))
    a('s_mul_i32 s%d, s%d, 7' % (sA, sA))
    a('s_min_u32 s%d, s%d, 6' % (sB, sJ))
    a('s_add_u32 s%d, s%d, s%d' % (sA, sA, sB))
    a('s_mul_i32 s%d, s%d, 112' % (sA, sA))
    a('s_add_u32 s%d, s%d, %d' % (sA, sA, L.FW1 - 34 * 4))
    a('v_lshl_add_u32 v249, v0, 2, s%d' % sA)
    a('v_cmp_lt_u32 vcc, 33, v0')
    a('v_cndmask_b32 v248, v248, v249, vcc')
    a('s_lshl_b32 s%d, s%d, 7' % (sA, sS))
    a('s_add_u32 s%d, s%d, %d' % (sA, sA, L.FH))
    a('v_and_b32 v247, 15, v0')
    a('v_lshl_add_u32 v247, v247, 2, s%d' % sA)
    a('s_lshl_b32 s%d, s%d, 7' % (sB, sGT))
    a('s_add_u32 s%d, s%d, %d' % (sB, sB, L.FX[1] - 128))
    a('v_lshl_add_u32 v253, v0, 2, s%d' % sB)
    a('s_cmp_eq_u32 s%d, 0' % sW)
    a('s_cselect_b32 s%d, 0, 16' % sA)
    a('v_cmp_gt_u32 vcc, s%d, v0' % sA)
    a('v_cndmask_b32 v247, v247, v253, vcc')
    a('s_mov_b32 s%d, 0x3fff3fff' % sMK2)
    a('s_mov_b32 s%d, 0' % (sMK2 + 1))
    a('s_cmp_eq_u32 s%d, 0' % sS)
    a('s_cselect_b32 s%d, 0x3fff, s%d' % (sMK2, sMK2))
    a('v_and_b32 v253, 15, v0')
    a('v_lshlrev_b32 v253, 2, v253')
    a('v_add_u32 v253, %d, v253' % L.FX[1])
    a('s_cmp_eq_u32 s%d, 0' % sGT)
    a('s_cselect_b64 vcc, -1, 0')
    a('v_cndmask_b32 v247, v247, v253, vcc')


stat_loads = ['buffer_load_dwordx2 %s, v%d, %s, s%d offen offset:%d sc1' %
              (vr(STR + (t * 4 + i) * 2, 2), 241 if i == 3 else 240, srd(S_WS), sO + 12 + t, 512 * i)
              for t in range(3) for i in range(4)]


def a_wread(u):
    b = WBUF[u & 1]
    o = []
    for p in range(6):
        if p < 4:
            o.append('ds_read_b128 %s, v1 offset:%d' % (vr(b + 4 * p), L.L_WA + (p * 14 + u) * 1024))
        else:
            o.append('ds_read_b128 %s, v243 offset:%d' % (vr(b + 4 * p), L.L_WA + ((p - 4) * 14 + u) * 1024))
    return o


stat_fill = []
for t in (1, 2, 0):
    r = STR + 8 * t
    for c_ in range(2):
        stat_fill += ['v_add_f32 v%d, v%d, v%d' % (r + c_, r + c_, r + 2 + c_),
                      'v_add_f32 v%d, v%d, v%d' % (r + 4 + c_, r + 4 + c_, r + 6 + c_),
                      'v_add_f32 v%d, v%d, v%d' % (r + c_, r + c_, r + 4 + c_)]
    stat_fill += xg_reduce(r, r + 2) + xg_reduce(r + 1, r + 3)
    stat_fill += stats_finish(r, r + 1, r + 2, False)
    stat_fill += ['v_mov_b32 v%d, v%d' % (SM + t, r), 'v_mov_b32 v%d, v%d' % (SR + t, r + 1)]

sWA = [20, 21, 22]
sWAG = 23


def wa_dma(pr, i):
    def f():
        a('s_add_u32 m0, s%d, %d' % (sWA[i], L.L_WA + 2048 * pr))
        a('s_add_u32 s%d, s%d, s%d' % (sD, sWA[i], sWAG))
        if pr:
            a('s_add_u32 s%d, s%d, %d' % (sD, sD, 2048 * pr))
        a('buffer_load_dwordx4 v1, %s, s%d offen sc1 lds' % (srd(S_WS), sD))
    return f


amark = {}


def emit_a_loop(first, xmark, wam):
    ep_mark = es_mark = st_mark = None
    for t in a_wread(0):
        a(t)
    for u in range(14):
        need = xmark[u]
        if u == 8:
            need = max(need, amark['st_own'])
        if u == 11:
            need = max(need, st_mark)
        a.wait_vm(need)
        if not first and u == 6:
            early_check(246, 247, es_mark)
            a('s_nop 0')
        if u == 11:
            a('s_mov_b32 s%d, -1' % sMK2)
            a('s_mov_b32 s%d, 0x3fffffff' % (sMK2 + 1))
        a('s_waitcnt lgkmcnt(0)')
        wb = WBUF[u & 1]
        xs = XR + (u % NR) * 8
        mf = []
        cz = (lambda r: '0') if u == 0 else (lambda r: vr(r))
        for t in range(2):
            for hf in range(2):
                r = AQ + (t * 2 + hf) * 4
                mf.append('%s %s, %s, %s, %s' % (MFMA, vr(r), vr(wb + 4 * hf), vr(xs + 4 * t), cz(r)))
        for t in range(2):
            for hf in range(2):
                r = AK + (t * 2 + hf) * 4
                mf.append('%s %s, %s, %s, %s' % (MFMA, vr(r), vr(wb + 8 + 4 * hf), vr(xs + 4 * t), cz(r)))
        for t in range(2):
            for hf in range(2):
                r = AV + (t * 2 + hf) * 4
                mf.append('%s %s, %s, %s, %s' % (MFMA, vr(r), vr(xs + 4 * t), vr(wb + 16 + 4 * hf), cz(r)))
        if first:
            mf.append('%s %s, %s, %s, %s' % (MFMA, vr(CSACC + 8), vr(CSACC), ar(A_ONES), cz(CSACC + 8)))
            mf.append('%s %s, %s, %s, %s' % (MFMA, vr(CSACC + 12), ar(A_ONES), vr(CSACC + 4), cz(CSACC + 12)))
        mem = {}

        def put(k, x):
            mem.setdefault(k, []).append(x)
        nm = len(mf)
        off = 0
        if first:
            a('ds_read_b128 %s, v252 offset:%d' % (vr(CSACC), 1024 * u))
            a('ds_read_b128 %s, v242 offset:%d' % (vr(CSACC + 4), 1024 * u))
            put(11, 's_waitcnt lgkmcnt(%d)' % (6 if u < 13 else 0))
        if first and u % 2 == 1 and u < 13:
            put(2, ('bar', (u + 1) // 2))
            off = 3
        if u < 13:
            for k, x in enumerate(a_wread(u + 1)):
                put(off + k, x)
        elif not first:
            for p in range(4):
                put(p, 'ds_read_b128 %s, v244 offset:%d' % (vr(WBUF[0] + 4 * p), 64 * p))
            for d in range(2):
                put(4 + d, 'ds_read_b32 v%d, v245 offset:%d' % (WBUF[0] + 16 + d, 64 * (4 + d)))
        if first and u < 2:
            for j_, uu in enumerate((2 * u + 2, 2 * u + 3)):
                for k, x in zip((6, 8), a_xload(uu)):
                    put(k + 4 * j_, x)
                put(8 + 4 * j_, ('xm', uu))
            if u == 0:
                for i, k in enumerate((7, 9, 11)):
                    put(k, ('wa', 2, i))
        elif u + LOOK < 14:
            for k, x in zip((6, 9), a_xload(u + LOOK)):
                put(k, x)
            put(9, ('xm', u + LOOK))
        if first and u % 2 == 0 and u // 2 + 3 <= 6:
            for i, k in enumerate((12, 13, 13) if u == 0 else (7, 10, 12)):
                put(k, ('wa', u // 2 + 3, i))
        order = list(range(4, 12)) + list(range(0, 4))
        if 2 <= u < 6:
            for k, x in zip((8, 11), order[2 * (u - 2):2 * (u - 2) + 2]):
                put(k, stat_loads[x])
            if u == 5:
                put(11, ('sto',))
        if not first and u == 3:
            put(7, ('estat',))
        if u in (7, 8):
            for k, x in zip((8, 11), order[8 + 2 * (u - 7):8 + 2 * (u - 7) + 2]):
                put(k, stat_loads[x])
            if u == 8:
                put(11, ('st',))
        if u == 6:
            put(10, 's_mov_b32 m0, s%d' % (sO + 1))
            for i, k in enumerate((10, 10, 11, 11)):
                put(k, 'buffer_load_dwordx4 v1, %s, s%d offen offset:%d sc1 lds' % (srd(S_WS), sO + 0, 1024 * i))
            put(11, ('hm',))
        if u == 13:
            put(8, ('early',))
        fill = []
        if 8 <= u < 11:
            fill = stat_fill[(u - 8) * 18:(u - 7) * 18]
        elif u in (11, 12):
            fill = stat_fill[54 + (u - 11) * 14:54 + (u - 10) * 14]
        if u == 13:
            put(1, 's_mov_b64 exec, 0xffff')
            for t in range(3):
                put(1, 'ds_write_b32 v162, v%d offset:%d' % (SM + t, 128 * t))
                put(1, 'ds_write_b32 v162, v%d offset:%d' % (SR + t, 128 * t + 64))
            put(1, 's_mov_b64 exec, -1')
        fi = 0
        for k, m in enumerate(mf):
            a(m)
            for it in mem.get(k, []):
                if isinstance(it, str):
                    a(it)
                elif it[0] == 'early':
                    ep_mark = early_issue(249, 248)
                elif it[0] == 'estat':
                    es_mark = early_issue(246, 247)
                elif it[0] == 'xm':
                    xmark[it[1]] = a.vm_mark()
                elif it[0] == 'st':
                    st_mark = a.vm_mark()
                elif it[0] == 'sto':
                    amark['st_own'] = a.vm_mark()
                elif it[0] == 'hm':
                    amark['halo'] = a.vm_mark()
                elif it[0] == 'bar':
                    a.wait_vm(wam[it[1]])
                    a('s_barrier')
                elif it[0] == 'wa':
                    wa_dma(it[1], it[2])()
                    wam[it[1]] = a.vm_mark()
            for _ in range(2):
                if fi < len(fill) and k >= 1:
                    a(fill[fi])
                    fi += 1
        assert fi == len(fill), (u, fi, len(fill))
    amark['ep'] = ep_mark


for p in range(4):
    a('v_mov_b32 v4, 0x3f803f80')
    a('v_accvgpr_write_b32 a%d, v4' % (A_ONES + p))
a('s_mul_i32 s%d, s%d, 14336' % (sWA[0], sW))
a('s_add_u32 s%d, s%d, 4' % (sA, sW))
a('s_mul_i32 s%d, s%d, 14336' % (sA, sA))
a('s_sub_u32 s%d, s%d, 2' % (sB, sW))
a('s_mul_i32 s%d, s%d, 14336' % (sB, sB))
a('s_add_u32 s%d, s%d, 1024' % (sB, sB))
a('s_cmp_lt_u32 s%d, 2' % sW)
a('s_cselect_b32 s%d, s%d, s%d' % (sWA[1], sA, sB))
a('s_add_u32 s%d, s%d, 2' % (sA, sW))
a('s_mul_i32 s%d, s%d, 14336' % (sA, sA))
a('s_add_u32 s%d, s%d, 1024' % (sWA[2], sA))
a('s_mul_i32 s%d, s%d, %d' % (sWAG, sC, 84 * 1024))
a('s_add_u32 s%d, s%d, %d' % (sWAG, sWAG, L.WA))
a_offsets()
xm0, wam0 = {}, {}


def wa_pair(pr):
    for i in range(3):
        wa_dma(pr, i)()
    wam0[pr] = a.vm_mark()


wa_pair(0)
for u in range(2):
    for t in a_xload(u):
        a(t)
    xm0[u] = a.vm_mark()
wa_pair(1)
a_setup()
a('s_mul_i32 s%d, s%d, 14336' % (sA, sW))
a('v_add_u32 v252, s%d, v1' % sA)
a('s_and_b32 s%d, s%d, 1' % (sA, sW))
a('s_mul_i32 s%d, s%d, 14336' % (sA, sA))
a('v_add_u32 v242, s%d, v243' % sA)
a.wait_vm(wam0[0])
a('s_barrier')
a('s_lshl_b32 s%d, s%d, 5' % (sA, sJ))
a('s_add_u32 s%d, s%d, s%d' % (sA, sA, sG))
a('s_lshl_b32 s%d, s%d, 2' % (sA, sA))
a('s_add_u32 s%d, s%d, %d' % (sA, sA, L.FP))
a('s_cmp_eq_u32 s%d, 0' % sW)
a('s_cselect_b32 s%d, s%d, 0x%x' % (sA, sA, INV))
a('v_mov_b32 v2, s%d' % sA)
a('s_mov_b64 exec, 1')
a('buffer_store_dword v%d, v2, %s, 0 offen sc1' % (V_T, srd(S_WS)))
a.vm_issued -= 1
a('s_mov_b64 exec, -1')
stamp()
emit_a_loop(True, xm0, wam0)
n_join = a.vm_issued - amark['ep']
CSQ = WBUF[0]
a('v_cmp_eq_u32 vcc, 0, v%d' % V_TOK)
a('s_lshl_b32 s%d, s%d, 6' % (sA, sW))
a('v_add_u32 v252, s%d, v244' % sA)
a('s_and_b32 s%d, s%d, 1' % (sA, sW))
a('s_lshl_b32 s%d, s%d, 6' % (sA, sA))
a('v_add_u32 v242, s%d, v245' % sA)
a('s_mov_b64 exec, vcc')
a('ds_write_b128 v252, %s' % vr(CSACC + 8))
a('s_mov_b64 exec, 0xffff')
a('ds_write_b32 v242, v%d offset:256' % (CSACC + 12))
a('s_mov_b64 exec, -1')
a('s_waitcnt lgkmcnt(0)')
a('s_barrier')
for p in range(4):
    a('ds_read_b128 %s, v244 offset:%d' % (vr(WBUF[0] + 4 * p), 64 * p))
for d in range(2):
    a('ds_read_b32 v%d, v245 offset:%d' % (WBUF[0] + 16 + d, 64 * (4 + d)))
with OutOfLine():
    a.label('L_pair')
    a_flag_addr(2)
    a('s_mov_b32 s%d, 0x3fff0000' % sMK)
    ASLEEP = int(([x[9:] for x in sys.argv if x.startswith('--asleep=')] + ['0'])[0])
    poll(2, None, ASLEEP)
    stamp()
    a_offsets()
    xmark = {}
    for u in range(LOOK):
        for t in a_xload(u):
            a(t)
        xmark[u] = a.vm_mark()
    a_setup()
    emit_a_loop(False, xmark, None)
    assert a.vm_issued - amark['ep'] == n_join
    ep_mark = amark['ep']
    a('s_branch L_a_epi')
a.label('L_a_epi')
stamp()
a('s_add_u32 s%d, s%d, 2' % (sA, sW))
a('s_mul_i32 s%d, s%d, 14336' % (sA, sA))
a('v_add_u32 v246, s%d, v1' % sA)
a('v_add_u32 v247, %d, v1' % L.L_R2)
a('s_cmp_lt_u32 s%d, 2' % sW)
a('s_cselect_b64 vcc, -1, 0')
a('v_cndmask_b32 v252, v247, v246, vcc')
a('v_cndmask_b32 v253, v246, v247, vcc')
MROW, RROW = 114, 126
for t in range(3):
    a('ds_read_b128 %s, v163 offset:%d' % (vr(MROW + 4 * t), 128 * t))
    a('ds_read_b128 %s, v163 offset:%d' % (vr(RROW + 4 * t), 128 * t + 64))
a.wait_vm(amark['halo'])
a('s_barrier')
HOP = 90
def h_reads(u):
    r = HOP + 8 * (u % 3)
    return ['ds_read_b128 %s, v252 offset:%d' % (vr(r), 1024 * u), 'ds_read_b128 %s, v253 offset:%d' % (vr(r + 4), 1024 * u)]
for u in range(2):
    for x in h_reads(u):
        a(x)
rest = []
for u in range(14):
    if u + 2 < 14:
        for x in h_reads(u + 2):
            a(x)
    a('s_waitcnt lgkmcnt(%d)' % (4 if u < 12 else (2 if u == 12 else 0)))
    r = HOP + 8 * (u % 3)
    a('%s %s, %s, %s, %s' % (MFMA, vr(HACC), vr(r), vr(r + 4), '0' if u == 0 else vr(HACC)))
    if rest:
        a(rest.pop(0))
for x in rest:
    a(x)
stamp2()
early_check(249, 248, ep_mark)
BW = 2
a('s_lshl_b32 s%d, s%d, 6' % (sA, sJ))
a('s_lshl_b32 s%d, s%d, 2' % (sB, sW))
a('s_add_u32 s%d, s%d, s%d' % (sA, sA, sB))
a('s_lshl_b32 s%d, s%d, 10' % (sA, sA))
a('s_add_u32 s20, s%d, %d' % (sA, L.WB))
for t in range(1, 4):
    a('s_add_u32 s%d, s20, %d' % (20 + t, 16 * 1024 * t))
wb_all = ['buffer_load_dwordx4 %s, v1, %s, s%d offen offset:%d sc1' % (vr(BW + (i * 4 + t) * 4), srd(S_WS), 20 + t, 1024 * i)
          for i in range(4) for t in range(4)]
for x in wb_all[13:16]:
    a(x)
wb_loads = wb_all[8:13]
A_RES, A_B2 = 224, 232


def red_addrs():
    a('s_lshl_b32 s%d, s%d, 13' % (sA, sW))
    a('s_add_u32 s%d, s%d, %d' % (sA, sA, L.L_R2))
    a('v_add_u32 v248, s%d, v1' % sA)
    a('s_and_b32 s%d, s%d, 1' % (sA, sW))
    a('s_lshl_b32 s%d, s%d, 11' % (sA, sA))
    a('s_lshr_b32 s%d, s%d, 1' % (sB, sW))
    a('s_lshl_b32 s%d, s%d, 12' % (sB, sB))
    a('s_add_u32 s%d, s%d, s%d' % (sA, sA, sB))
    a('s_add_u32 s%d, s%d, %d' % (sA, sA, L.L_R2))
    a('v_add_u32 v249, s%d, v1' % sA)


def publish_setup(xbase, sbase, fbase, per_pair, fsh):
    owner_index()
    a('s_mul_i32 s%d, s%d, 14' % (sCc, sB))
    a('s_add_u32 s%d, s%d, s%d' % (sCc, sCc, sA))
    a('s_lshl_b32 s%d, s%d, 10' % (sPX, sCc))
    a('s_lshl_b32 s%d, s%d, 7' % (sPS, sCc))
    a('s_lshl_b32 s%d, s%d, %d' % (sPF, sB, fsh))
    a('s_add_u32 s%d, s%d, s%d' % (sPF, sPF, sA))
    a('s_lshl_b32 s%d, s%d, 2' % (sPF, sPF))
    for dst, arr in ((sPX, xbase), (sPS, sbase), (sPF, fbase)):
        if per_pair:
            pair_base(sD, arr)
            a('s_add_u32 s%d, s%d, s%d' % (dst, dst, sD))
        else:
            a('s_add_u32 s%d, s%d, %d' % (dst, dst, arr))
    a('s_add_u32 s%d, s%d, %d' % (sPX2, sPX, 2 * 14336))


def owner_index():
    a('s_lshr_b32 s%d, s%d, 1' % (sB, sW))
    a('s_lshl_b32 s%d, s%d, 2' % (sCc, sG))
    a('s_add_u32 s%d, s%d, s%d' % (sB, sB, sCc))
    a('s_and_b32 s%d, s%d, 1' % (sA, sW))
    a('s_lshl_b32 s%d, s%d, 1' % (sCc, sJ))
    a('s_add_u32 s%d, s%d, s%d' % (sA, sA, sCc))


a('s_cmp_eq_u32 s%d, 0' % sPAIR)
a('s_cbranch_scc0 L_a_nores')
owner_index()
a('s_mul_i32 s%d, s%d, 14' % (sB, sB))
a('s_add_u32 s%d, s%d, s%d' % (sB, sB, sA))
a('s_lshl_b32 s%d, s%d, 10' % (sB, sB))
a('s_add_u32 s%d, s%d, %d' % (sB, sB, L.XA[0]))
a('buffer_load_dwordx4 %s, v1, %s, s%d offen sc1' % (ar(A_RES), srd(S_WS), sB))
a('s_add_u32 s%d, s%d, %d' % (sB, sB, 2 * 14336))
a('buffer_load_dwordx4 %s, v1, %s, s%d offen sc1' % (ar(A_RES + 4), srd(S_WS), sB))
build_srd(S_TMP, P_B2, 896)
a('s_lshl_b32 s%d, s%d, 6' % (sB, sA))
a('v_lshlrev_b32 v240, 3, v%d' % V_G)
a('buffer_load_dwordx2 v[228:229], v240, %s, s%d offen' % (srd(S_TMP), sB))
a('buffer_load_dwordx2 v[230:231], v240, %s, s%d offen offset:32' % (srd(S_TMP), sB))
a.label('L_a_nores')
CSQ = WBUF[0]
QF, KF, VF = 140, 148, 160


def pk(op, dst, srcs, neg=None):
    ops, lo, hi = [], [], []
    for x in srcs:
        if isinstance(x, tuple):
            ops.append(vr(x[1] & ~1, 2))
            lo.append(x[1] & 1)
            hi.append(x[1] & 1)
        else:
            ops.append(vr(x, 2))
            lo.append(0)
            hi.append(1)
    t = '%s %s, %s op_sel:[%s] op_sel_hi:[%s]' % (op, vr(dst, 2), ', '.join(ops), ','.join(map(str, lo)), ','.join(map(str, hi)))
    if neg is not None:
        m = ','.join('1' if k == neg else '0' for k in range(len(srcs)))
        t += ' neg_lo:[%s] neg_hi:[%s]' % (m, m)
    return t


for t in range(2):
    for hf in range(2):
        r = AQ + (t * 2 + hf) * 4
        for i in (0, 2):
            a(pk('v_pk_fma_f32', r + i, [('b', SM + t + 1), CSQ + 4 * hf + i, r + i], 0))
        for p in range(2):
            a('v_cvt_pk_bf16_f32 v%d, v%d, v%d' % (QF + 4 * t + 2 * hf + p, r + 2 * p, r + 2 * p + 1))
        a(wb_all[2 * t + hf])
for t in range(2):
    for hf in range(2):
        r = AK + (t * 2 + hf) * 4
        for i in (0, 2):
            a(pk('v_pk_fma_f32', r + i, [('b', SM + t + 1), CSQ + 8 + 4 * hf + i, r + i], 0))
        for p in range(2):
            a('v_cvt_pk_bf16_f32 v%d, v%d, v%d' % (KF + 4 * (t + 1) + 2 * hf + p, r + 2 * p, r + 2 * p + 1))
        a(wb_all[4 + 2 * t + hf])
L_E, L_HX = L.L_R2 + 16384, L.L_R2 + 26624
a('s_lshl_b32 s%d, s%d, 11' % (sA, sW))
a('s_add_u32 s%d, s%d, %d' % (sA, sA, L_E))
a('v_add_u32 v246, s%d, v1' % sA)
a('s_lshl_b32 s%d, s%d, 10' % (sA, sW))
a('s_add_u32 s%d, s%d, %d' % (sA, sA, L_HX))
a('v_add_u32 v247, s%d, v1' % sA)
a('s_waitcnt lgkmcnt(0)')
for t in range(2):
    for d in range(2):
        r = AV + (t * 2 + d) * 4
        for i in (0, 2):
            a(pk('v_pk_fma_f32', r + i, [MROW + 4 * (t + 1) + i, ('b', CSQ + 16 + d), r + i], 0))
        for p in range(2):
            a('v_cvt_pk_bf16_f32 v%d, v%d, v%d' % (VF + 6 * d + 2 * (t + 1) + p, r + 2 * p, r + 2 * p + 1))
a('ds_write_b128 v246, %s offset:2048' % vr(KF + 8))
a('ds_write_b64 v246, %s offset:3072' % vr(VF + 4, 2))
a('ds_write_b64 v246, %s offset:3080' % vr(VF + 10, 2))
a('ds_write_b128 v247, %s' % vr(HACC))
pair_base(sA, L.O)
a('s_lshl_b32 s%d, s%d, 4' % (sB, sGT))
a('s_add_u32 s%d, s%d, s%d' % (sB, sB, sC))
a('s_lshl_b32 s%d, s%d, 10' % (sB, sB))
a('s_add_u32 s32, s%d, s%d' % (sA, sB))
a('s_add_u32 s33, s32, 16384')
stamp2()
a('s_waitcnt lgkmcnt(0)')
a('s_barrier')
stamp2()
SS = 172
a('s_cmp_eq_u32 s%d, 0' % sW)
a('s_cbranch_scc1 L_a_halo')
a('ds_read_b128 %s, v246' % vr(KF))
a('ds_read_b64 %s, v246 offset:1024' % vr(VF, 2))
a('ds_read_b64 %s, v246 offset:1032' % vr(VF + 6, 2))
a('s_waitcnt lgkmcnt(0)')
a('s_branch L_a_prev')
a.label('L_a_halo')
a('v_add_u32 v247, %d, v1' % L_HX)
for p in range(4):
    a('ds_read_b128 %s, v247 offset:%d' % (vr(SS + 4 * p), 1024 * p))
a('s_waitcnt lgkmcnt(0)')
for hf in range(2):
    r = SS + 4 * hf
    for i in (0, 2):
        a(pk('v_pk_fma_f32', r + i, [('b', SM), CSQ + 8 + 4 * hf + i, r + i], 0))
    for p in range(2):
        a('v_cvt_pk_bf16_f32 v%d, v%d, v%d' % (KF + 2 * hf + p, r + 2 * p, r + 2 * p + 1))
for d in range(2):
    r = SS + 8 + 4 * d
    for i in (0, 2):
        a(pk('v_pk_fma_f32', r + i, [MROW + i, ('b', CSQ + 16 + d), r + i], 0))
    for p in range(2):
        a('v_cvt_pk_bf16_f32 v%d, v%d, v%d' % (VF + 6 * d + p, r + 2 * p, r + 2 * p + 1))
a.label('L_a_prev')
a('s_nop 1')
for t in range(2):
    a('%s %s, %s, %s, 0' % (MFMA, vr(SS + 8 * t), vr(KF + 4 * t), vr(QF + 4 * t)))
    a('%s %s, %s, %s, 0' % (MFMA, vr(SS + 8 * t + 4), vr(KF + 4 * t + 4), vr(QF + 4 * t)))
SCALE = (28.0 ** -0.5) * 1.4426950408889634
MX, CC, LS, TMPR = 190, 192, 194, 196
PF = 200
SUMT = [(224, 226), (232, 188)]
a('v_mov_b32 v198, 0xff800000')
seq = [[], []]
for t in range(2):
    s_ = SS + 8 * t
    q = seq[t]
    rr = lambda e: RROW + 4 * (t + (e >> 2)) + (e & 3)
    for e in range(0, 8, 2):
        q.append(pk('v_pk_mul_f32', s_ + e, [s_ + e, rr(e)]))
    for e in range(8):
        mk = (sM0 if t == 0 else sM1) + 2 * e if e < 4 else sM2 + 2 * (e - 4)
        q.append('v_cndmask_b32 v%d, v198, v%d, %s' % (s_ + e, s_ + e, sp(mk)))
    q.append('v_max3_f32 v%d, v%d, v%d, v%d' % (MX + t, s_, s_ + 1, s_ + 2))
    q.append('v_max3_f32 v%d, v%d, v%d, v%d' % (MX + t, MX + t, s_ + 3, s_ + 4))
    q.append('v_max3_f32 v%d, v%d, v%d, v%d' % (MX + t, MX + t, s_ + 5, s_ + 6))
    q.append('v_max_f32 v%d, v%d, v%d' % (MX + t, MX + t, s_ + 7))
    q += xg_reduce(MX + t, TMPR + t, 'v_max_f32')
    q.append('v_mul_f32 v%d, %s, v%d' % (CC + t, f2h(SCALE), SR + t + 1))
    q.append('v_mul_f32 v%d, v%d, v%d' % (MX + t, MX + t, CC + t))
    for e in range(0, 8, 2):
        q.append(pk('v_pk_fma_f32', s_ + e, [s_ + e, ('b', CC + t), ('b', MX + t)], 2))
    for e in range(8):
        q.append('v_exp_f32 v%d, v%d' % (s_ + e, s_ + e))
    u_, u2 = SUMT[t]
    q.append(pk('v_pk_add_f32', u_, [s_, s_ + 2]))
    q.append(pk('v_pk_add_f32', u2, [s_ + 4, s_ + 6]))
    q.append(pk('v_pk_add_f32', u_, [u_, u2]))
    q.append('v_add_f32 v%d, v%d, v%d' % (LS + t, u_, u_ + 1))
    q += xg_reduce(LS + t, TMPR + t)
    q.append('v_rcp_f32 v%d, v%d' % (LS + t, LS + t))
    for e in range(0, 8, 2):
        q.append(pk('v_pk_mul_f32', s_ + e, [s_ + e, rr(e)]))
    for p in range(4):
        q.append('v_cvt_pk_bf16_f32 v%d, v%d, v%d' % (PF + 4 * t + p, s_ + 2 * p, s_ + 2 * p + 1))
merged = [z for xy in zip(*seq) for z in xy]
gap = len(merged) // (len(wb_loads) + 1)
for k, x in enumerate(merged):
    a(x)
    if k % gap == gap - 1 and wb_loads:
        a(wb_loads.pop(0))
assert not wb_loads
stamp2()
OO = 208
for t in range(2):
    for d in range(2):
        a('%s %s, %s, %s, 0' % (MFMA, vr(OO + 8 * t + 4 * d), vr(VF + 6 * d + 2 * t), vr(PF + 4 * t)))
for t in range(2):
    for e in range(0, 8, 2):
        a(pk('v_pk_mul_f32', OO + 8 * t + e, [OO + 8 * t + e, ('b', LS + t)]))
    for p in range(4):
        a('v_cvt_pk_bf16_f32 v%d, v%d, v%d' % (PF + 4 * t + p, OO + 8 * t + 2 * p, OO + 8 * t + 2 * p + 1))
    store('buffer_store_dwordx4 %s, v1, %s, s%d offen' % (vr(PF + 4 * t), srd(S_WS), 32 + t), sFD)
o_mark = a.vm_mark()
stamp2()
pair_base(sA, L.FA)
a('s_lshl_b32 s%d, s%d, 4' % (sB, sGT))
a('s_add_u32 s%d, s%d, s%d' % (sB, sB, sC))
a('s_lshl_b32 s%d, s%d, 2' % (sB, sB))
a('s_add_u32 s%d, s%d, s%d' % (sA, sA, sB))
a('v_lshlrev_b32 v241, 6, v0')
a('v_add_u32 v241, s%d, v241' % sA)
pair_base(sA, L.FA)
a('s_lshl_b32 s%d, s%d, 8' % (sB, sG))
a('s_add_u32 s%d, s%d, s%d' % (sA, sA, sB))
a('v_lshl_add_u32 v240, v0, 2, s%d' % sA)
a('s_lshl_b32 s%d, s%d, 2' % (sB, sW))
a('s_lshl_b32 s%d, 0x000f000f, s%d' % (sMK, sB))
a('s_mov_b32 s%d, s%d' % (sMK + 1, sMK))
red_addrs()
publish_setup(L.XB, L.SB, L.FB, True, 4)
a('s_mov_b32 s%d, s%d' % (sPC, sFD))
a('s_mov_b32 s%d, s%d' % (sPFC, sFAST))
pair_base(sA, L.O)
a('s_lshl_b32 s%d, s%d, 6' % (sB, sG))
a('s_lshl_b32 s%d, s%d, 2' % (sCc, sW))
a('s_add_u32 s%d, s%d, s%d' % (sB, sB, sCc))
a('s_lshl_b32 s%d, s%d, 10' % (sB, sB))
a('s_add_u32 s20, s%d, s%d' % (sA, sB))
for t in range(1, 4):
    a('s_add_u32 s%d, s20, %d' % (20 + t, 16384 * t))
a.wait_vm(o_mark)
a('s_mov_b64 exec, 3')
store('buffer_store_dword v%d, v241, %s, 0 offen' % (V_T, srd(S_WS)), sFAST)
a('s_mov_b64 exec, -1')
stamp()
a('s_cmp_eq_u32 s%d, 7' % sJ)
a('s_cbranch_scc1 L_next_pair')


def wd_bases():
    a('s_lshl_b32 s%d, s%d, 2' % (sA, sJ))
    a('s_mul_i32 s%d, s%d, %d' % (sA, sA, 56 * 1024))
    a('s_mul_i32 s%d, s%d, %d' % (sB, sW, 14 * 1024))
    a('s_add_u32 s%d, s%d, s%d' % (sA, sA, sB))
    a('s_add_u32 s%d, s%d, %d' % (sO, sA, L.WD))
    quarter_offsets(4, 56 * 1024)


def wd_load(fi):
    kk, t = fi >> 2, fi & 3
    return ('buffer_load_dwordx4 %s, v1, %s, s%d offen offset:%d sc1' %
            (ar(4 * fi), srd(S_WS), sO + 4 * t + (kk >> 2), 1024 * (kk & 3)))


WD_CH = [(0, 0), (0, 56)]
BO, BACC, BRD, BTMP = 66, 130, 194, 226
a('s_cmp_eq_u32 s%d, 0' % sPAIR)
a('s_cbranch_scc0 L_b_start')
for k in range(4):
    a('v_lshlrev_b32 v236, 16, v%d' % (228 + k))
    a('v_and_b32 v237, 0xffff0000, v%d' % (228 + k))
    a('v_accvgpr_write_b32 a%d, v236' % (A_B2 + 2 * k))
    a('v_accvgpr_write_b32 a%d, v237' % (A_B2 + 2 * k + 1))
a.label('L_b_start')
CWW = 66
sCI = 41
a('s_lshr_b32 s%d, s%d, 3' % (sA, sC))
a('s_mul_i32 s%d, s%d, 7' % (sA, sA))
a('s_add_u32 s%d, s%d, s%d' % (sCI, sA, sJ))
a('s_lshl_b32 s%d, s%d, 3' % (sA, sCI))
a('s_lshl_b32 s%d, s%d, 1' % (sB, sW))
a('s_add_u32 s%d, s%d, s%d' % (sA, sA, sB))
a('s_mul_i32 s%d, s%d, %d' % (sB, sA, 14 * 1024))
a('s_add_u32 s%d, s%d, %d' % (sO, sB, L.WC))
quarter_offsets(2, 14 * 1024)


def c_wload(idx):
    u, k = idx >> 1, idx & 1
    return ('buffer_load_dwordx4 %s, v1, %s, s%d offen offset:%d sc1' %
            (vr(CWW + 4 * idx), srd(S_WS), sO + 4 * k + (u >> 2), 1024 * (u & 3)))


def red_writes(acc, tile):
    return ['ds_write_b128 v248, %s offset:%d' % (vr(acc + 4 * t), (tile >> 1) * 32768 + (tile & 1) * 4096 + t * 1024)
            for t in range(4)]


def red_reads(st, rd):
    return ['ds_read_b128 %s, v249 offset:%d' % (vr(rd + (b * 2 + k) * 4), st * 32768 + b * 8192 + k * 1024)
            for b in range(4) for k in range(2)]


def add8(dst, x, y, packed):
    if packed:
        return ['v_pk_add_f32 %s, %s, %s' % (vr(dst + e, 2), vr(x + e, 2), vr(y + e, 2)) for e in range(0, 8, 2)]
    return ['v_add_f32 v%d, v%d, v%d' % (dst + e, x + e, y + e) for e in range(8)]


def finish_pre(st, is_d, tmp):
    res = A_RES + 4 * st
    o = ['v_accvgpr_read_b32 v%d, a%d' % (tmp + 8 + p, res + p) for p in range(4)]
    for p in range(4):
        o += ['v_lshlrev_b32 v%d, 16, v%d' % (tmp + 2 * p, tmp + 8 + p),
              'v_and_b32 v%d, 0xffff0000, v%d' % (tmp + 2 * p + 1, tmp + 8 + p)]
    if is_d:
        o += ['v_accvgpr_read_b32 v%d, a%d' % (tmp + 8 + e, A_B2 + e) for e in range(8)]
        o += ['v_add_f32 v%d, v%d, v%d' % (tmp + e, tmp + e, tmp + 8 + e) for e in range(8)]
    return o


def finish_sum(st, rd, tmp, pk, packed):
    o = add8(rd, rd, rd + 8, packed) + add8(rd + 16, rd + 16, rd + 24, packed) + add8(rd, rd, rd + 16, packed)
    o += add8(tmp, tmp, rd, packed)
    o += ['v_cvt_pk_bf16_f32 v%d, v%d, v%d' % (pk + p, tmp + 2 * p, tmp + 2 * p + 1) for p in range(4)]
    o += ['v_accvgpr_write_b32 a%d, v%d' % (A_RES + 4 * st + p, pk + p) for p in range(4)]
    return o


def owner_stats(tmp, s1, t):
    a('v_pk_add_f32 %s, %s, %s' % (vr(t, 2), vr(tmp, 2), vr(tmp + 2, 2)))
    a('v_pk_add_f32 %s, %s, %s' % (vr(t + 2, 2), vr(tmp + 4, 2), vr(tmp + 6, 2)))
    a('v_pk_add_f32 %s, %s, %s' % (vr(t, 2), vr(t, 2), vr(t + 2, 2)))
    a('v_add_f32 v%d, v%d, v%d' % (s1, t, t + 1))
    a('v_pk_mul_f32 %s, %s, %s' % (vr(t, 2), vr(tmp, 2), vr(tmp, 2)))
    for e in (2, 4, 6):
        a('v_pk_fma_f32 %s, %s, %s, %s' % (vr(t, 2), vr(tmp + e, 2), vr(tmp + e, 2), vr(t, 2)))
    a('v_add_f32 v%d, v%d, v%d' % (s1 + 1, t, t + 1))
    for x, y in zip(xg_reduce(s1, t), xg_reduce(s1 + 1, t + 1)):
        a(x)
        a(y)


def publish_data(st, pk):
    store('buffer_store_dwordx4 %s, v1, %s, s%d offen offset:0' % (vr(pk), srd(S_WS), sPX if st == 0 else sPX2), sPC)


def publish_stats(tmps, t, s1):
    a('v_and_b32 v%d, 15, v0' % V_TOK)
    a('v_lshlrev_b32 v%d, 3, v%d' % (t + 4, V_TOK))
    for st in range(2):
        owner_stats(tmps[st], s1 + 2 * st, t)
    a('s_mov_b64 exec, 0xffff')
    store('buffer_store_dwordx2 %s, v%d, %s, s%d offen' % (vr(s1, 2), t + 4, srd(S_WS), sPS), sPC)
    a('s_add_u32 s%d, s%d, %d' % (sPS, sPS, 2 * 1792))
    store('buffer_store_dwordx2 %s, v%d, %s, s%d offen' % (vr(s1 + 2, 2), t + 4, srd(S_WS), sPS), sPC)
    a('s_mov_b64 exec, -1')


def publish_flags(lsh, between=()):
    a('v_lshlrev_b32 v241, %d, v0' % lsh)
    a('v_add_u32 v241, s%d, v241' % sPF)
    set_flags(241, 2, sPFC, V_T, between)


def run_tiles(tile_items, extras):
    for tile in range(4):
        if tile and '--diag3' in sys.argv:
            stamp()
        items = tile_items(tile)
        ex = list(extras.get(tile, []))
        free = [k for k, it in enumerate(items) if k >= 3 and not it[2]]
        per = -(-len(ex) // max(1, len(free))) if ex else 0
        for k, (pre, m, post) in enumerate(items):
            for x in pre:
                x()
            a(m)
            if post:
                post()
            elif k >= 3:
                for _ in range(per):
                    if ex:
                        x = ex.pop(0)
                        if callable(x):
                            x()
                        else:
                            a(x)
        assert not ex


poll(240)
a('s_barrier')
a('s_or_b32 s%d, s2, s%d' % (sA, sW))
a('s_or_b32 s%d, s%d, s%d' % (sA, sA, sPAIR))
a('s_cmp_eq_u32 s%d, 0' % sA)
a('s_cbranch_scc0 L_noepoch')
a('s_add_u32 s%d, s%d, 1' % (sA, sEP))
a('v_mov_b32 v239, s%d' % sA)
a('s_mov_b64 exec, 1')
a('buffer_store_dword v239, off, %s, 0 sc1' % srd(S_WS))
a.vm_issued -= 1
a('s_mov_b64 exec, -1')
a.label('L_noepoch')
stamp()


def b_oload(tile, i):
    return 'buffer_load_dwordx4 %s, v1, %s, s%d offen offset:%d sc1' % (vr(BO + (tile * 4 + i) * 4), srd(S_WS), 20 + tile, 1024 * i)


om = {}
for tile in range(2):
    for i in range(4):
        a(b_oload(tile, i))
        om[(tile, i)] = a.vm_mark()


def b_tile(tile):
    items = []
    for i in range(4):
        for t in range(4):
            r = BACC + (tile * 4 + t) * 4
            pre = [(lambda tl=tile, ii=i: a.wait_vm(om[(tl, ii)]))] if t == 0 else []
            post = None
            if tile < 2 and t == 1:
                def post(tl=tile + 2, ii=i):
                    a(b_oload(tl, ii))
                    om[(tl, ii)] = a.vm_mark()
            if tile >= 2 and t == 1:
                def post(idx=4 * (tile - 2) + i):
                    a(c_wload(idx))
            items.append((pre, '%s %s, %s, %s, %s' % (MFMA, vr(r), vr(BW + (i * 4 + t) * 4), vr(BO + (tile * 4 + i) * 4),
                                                      '0' if i == 0 else vr(r)), post))
    return items


BT0, BT1, BPK = 226, 2, 18
run_tiles(b_tile, {1: red_writes(BACC, 0), 2: red_writes(BACC + 16, 1), 3: red_writes(BACC + 32, 2)})
stamp2()
for x in red_writes(BACC + 48, 3):
    a(x)
for x in finish_pre(0, False, BT0) + finish_pre(1, False, BT1):
    a(x)
a('s_waitcnt lgkmcnt(0)')
a('s_barrier')
stamp2()
BRD1 = 162
for x in red_reads(0, BRD) + red_reads(1, BRD1):
    a(x)
a('s_waitcnt lgkmcnt(8)')
for x in finish_sum(0, BRD, BT0, BPK, True):
    a(x)
publish_data(0, BPK)
a('s_waitcnt lgkmcnt(0)')
for x in finish_sum(1, BRD1, BT1, BPK + 4, True):
    a(x)
publish_data(1, BPK + 4)
stamp2()
publish_stats([BT0, BT1], 36, 32)
b_mark = a.vm_mark()
a('v_lshlrev_b32 v236, 7, v0')
a('v_add_u32 v236, s%d, v236' % sPF)
for i in range(8, 16):
    a(c_wload(i))
CA = [2, 10]
XF, NXF = 18, 8
GTMP, GH = 50, 58
CCS, CB1, CB1R = 178, 186, 194
CSTR = 198
CMR = 214
VGA = 218
a('v_lshrrev_b32 v%d, 4, v0' % V_G)
a('v_and_b32 v%d, 15, v0' % V_TOK)
pair_base(sA, L.FB)
a('s_lshl_b32 s%d, s%d, 9' % (sB, sS))
a('s_add_u32 s%d, s%d, s%d' % (sA, sA, sB))
a('v_lshl_add_u32 v240, v0, 2, s%d' % sA)
a('s_mov_b32 s%d, 0x3fff3fff' % sMK)
a('s_mov_b32 s%d, 0x3fff3fff' % (sMK + 1))
pair_base(20, L.XB)
a('s_mul_i32 s%d, s%d, %d' % (sB, sS, 8 * 14336))
a('s_add_u32 s20, s20, s%d' % sB)
a('s_lshl_b32 s%d, s%d, 12' % (sB, sW))
a('s_add_u32 s20, s20, s%d' % sB)
a('s_add_u32 s21, s%d, %d' % (sB, L.L_R2))
pair_base(22, L.SB)
a('s_lshl_b32 s%d, s%d, 3' % (sB, sS))
a('s_add_u32 s%d, s%d, s%d' % (sB, sB, sW))
a('s_mul_i32 s%d, s%d, 1792' % (sB, sB))
a('s_add_u32 s22, s22, s%d' % sB)
a('s_add_u32 s23, s22, %d' % (4 * 1792))
pair_base(32, L.H)
a('s_mul_i32 s%d, s%d, %d' % (sB, sS, 8 * 56 * 1024))
a('s_add_u32 s32, s32, s%d' % sB)
a('s_lshl_b32 s%d, s%d, 2' % (sB, sCI))
a('s_add_u32 s%d, s%d, s%d' % (sB, sB, sW))
a('s_lshl_b32 s%d, s%d, 10' % (sCc, sB))
a('s_add_u32 s32, s32, s%d' % sCc)
pair_base(33, L.FC)
a('s_lshl_b32 s%d, s%d, 11' % (sCc, sS))
a('s_add_u32 s33, s33, s%d' % sCc)
a('s_lshl_b32 s%d, s%d, 2' % (sB, sB))
a('s_add_u32 s33, s33, s%d' % sB)
a('v_mov_b32 v241, s33')
a('v_mov_b32 v242, 0x%x' % INV)
a('v_cmp_eq_u32 vcc, 0, v0')
a('v_cndmask_b32 v241, v242, v241, vcc')
a('v_lshlrev_b32 v238, 3, v%d' % V_TOK)
a('v_lshl_add_u32 v238, v%d, 7, v238' % V_G)
a('v_mov_b32 v242, 0x%x' % INV)
a('v_cmp_lt_u32 vcc, 1, v%d' % V_G)
a('v_cndmask_b32 v239, 0, v242, vcc')
a('v_or_b32 v239, v239, v238')
a('v_add_u32 v252, %d, v1' % L.L_R2)
a('v_lshlrev_b32 v246, 3, v%d' % V_TOK)
a('v_add_u32 v246, %d, v246' % L.L_STC)
GA = 2.0 * 0.7978845608028654 * 1.4426950408889634
GB = GA * 0.044715
a('v_mov_b32 v%d, %s' % (VGA, f2h(-GA)))
a('v_mov_b32 v%d, %s' % (VGA + 1, f2h(-GA)))
a('s_mov_b32 s34, %s' % f2h(-GB))
a('s_mov_b32 s35, %s' % f2h(-GB))
wd_bases_hi = True
a.wait_vm(b_mark)
a('s_mov_b64 exec, 3')
store('buffer_store_dword v%d, v236, %s, 0 offen' % (V_T, srd(S_WS)), sPFC)
a('s_mov_b64 exec, -1')
stamp()

for i in range(16, 22):
    a(c_wload(i))
a('s_lshl_b32 s%d, s%d, 3' % (sA, sCI))
a('s_lshl_b32 s%d, s%d, 1' % (sB, sW))
a('s_add_u32 s%d, s%d, s%d' % (sA, sA, sB))
a('s_lshl_b32 s24, s%d, 5' % sA)
a('v_lshlrev_b32 v248, 3, v%d' % V_G)
for k in range(2):
    a('buffer_load_dwordx2 %s, v248, %s, s24 offen offset:%d' % (vr(CB1R + 2 * k, 2), srd(S_B1), 32 * k))
poll(240, 256)
stamp()


TORD = [0, 4, 1, 5, 2, 6, 3, 7]


def c_dma_setup(t):
    return ['s_add_u32 s36, s20, %d' % (TORD[t] * 14336), 's_add_u32 m0, s21, %d' % ((t & 3) * 16384)]


def c_dma(t, i):
    return 'buffer_load_dwordx4 v1, %s, s36 offen offset:%d sc1 lds' % (srd(S_WS), 1024 * i)


dm = {}
for x in c_dma_setup(0) + [c_dma(0, i) for i in range(4)]:
    a(x)
dm[0] = a.vm_mark()
wlate = {}
for i in range(22, 28):
    a(c_wload(i))
    wlate[i >> 1] = a.vm_mark()
for tt in range(2):
    for i in range(4):
        a('buffer_load_dwordx2 %s, v%d, %s, s%d offen offset:%d sc1' %
          (vr(CSTR + 8 * tt + 2 * i, 2), 239 if i == 3 else 238, srd(S_WS), 22 + tt, 512 * i))
amark['cst'] = a.vm_mark()
for x in c_dma_setup(1) + [c_dma(1, i) for i in range(4)]:
    a(x)
dm[1] = a.vm_mark()
wd_bases()
t0_loads = []
b1_unpack = []
for k in range(2):
    for p in range(2):
        b1_unpack += ['v_lshlrev_b32 v%d, 16, v%d' % (CB1 + 4 * k + 2 * p, CB1R + 2 * k + p),
                      'v_and_b32 v%d, 0xffff0000, v%d' % (CB1 + 4 * k + 2 * p + 1, CB1R + 2 * k + p)]
a.wait_vm(dm[0])
a('s_barrier')
stamp()


def c_xread(t, u):
    n = t * 14 + u
    return 'ds_read_b128 %s, v252 offset:%d' % (vr(XF + 4 * (n % NXF)), (t & 3) * 16384 + u * 1024)


def gelu_pre(t):
    z, m = CA[t & 1], CMR + 2 * (t & 1)
    P = range(0, 8, 2)
    o = ['v_pk_fma_f32 %s, %s, %s, %s op_sel_hi:[1,0,1] neg_lo:[0,1,0] neg_hi:[0,1,0]' % (vr(z + e, 2), vr(CCS + e, 2), vr(m, 2), vr(z + e, 2)) for e in P]
    o += ['v_pk_fma_f32 %s, %s, %s, %s op_sel:[0,1,0] op_sel_hi:[1,1,1]' % (vr(z + e, 2), vr(z + e, 2), vr(m, 2), vr(CB1 + e, 2)) for e in P]
    o += ['v_pk_mul_f32 %s, %s, %s' % (vr(GTMP + e, 2), vr(z + e, 2), vr(z + e, 2)) for e in P]
    o += ['v_pk_fma_f32 %s, %s, s[34:35], %s' % (vr(GTMP + e, 2), vr(GTMP + e, 2), vr(VGA, 2)) for e in P]
    o += ['v_pk_mul_f32 %s, %s, %s' % (vr(GTMP + e, 2), vr(GTMP + e, 2), vr(z + e, 2)) for e in P]
    return o


def gelu_mid():
    o = {}
    for e in range(8):
        o.setdefault(2 * e, []).append('v_exp_f32 v%d, v%d' % (GTMP + e, GTMP + e))
        o.setdefault(2 * e + 3, []).append('v_add_f32 v%d, 1.0, v%d' % (GTMP + e, GTMP + e))
    for e in range(6):
        o.setdefault(16 + 2 * e, []).append('v_rcp_f32 v%d, v%d' % (GTMP + e, GTMP + e))
    o.setdefault(25, []).append('v_rcp_f32 v%d, v%d' % (GTMP + 6, GTMP + 6))
    o.setdefault(27, []).append('v_rcp_f32 v%d, v%d' % (GTMP + 7, GTMP + 7))
    return o


def gelu_post(t):
    z, h = CA[t & 1], GH + 4 * (t & 1)
    o = ['v_pk_mul_f32 %s, %s, %s' % (vr(GTMP + e, 2), vr(GTMP + e, 2), vr(z + e, 2)) for e in range(0, 8, 2)]
    o += ['v_cvt_pk_bf16_f32 v%d, v%d, v%d' % (h + p, GTMP + 2 * p, GTMP + 2 * p + 1) for p in range(4)]
    return o


def gelu_packed(t):
    z, m, h = CA[t & 1], CMR + 2 * (t & 1), GH + 4 * (t & 1)
    P = range(0, 8, 2)
    for e in P:
        a('v_pk_fma_f32 %s, %s, %s, %s op_sel_hi:[1,0,1] neg_lo:[0,1,0] neg_hi:[0,1,0]' % (vr(z + e, 2), vr(CCS + e, 2), vr(m, 2), vr(z + e, 2)))
    for e in P:
        a('v_pk_fma_f32 %s, %s, %s, %s op_sel:[0,1,0] op_sel_hi:[1,1,1]' % (vr(z + e, 2), vr(z + e, 2), vr(m, 2), vr(CB1 + e, 2)))
    for e in P:
        a('v_pk_mul_f32 %s, %s, %s' % (vr(GTMP + e, 2), vr(z + e, 2), vr(z + e, 2)))
    for e in P:
        a('v_pk_fma_f32 %s, %s, s[34:35], %s' % (vr(GTMP + e, 2), vr(GTMP + e, 2), vr(VGA, 2)))
    for e in P:
        a('v_pk_mul_f32 %s, %s, %s' % (vr(GTMP + e, 2), vr(GTMP + e, 2), vr(z + e, 2)))
    for e in range(8):
        a('v_exp_f32 v%d, v%d' % (GTMP + e, GTMP + e))
    for e in P:
        a('v_pk_add_f32 %s, %s, 1.0 op_sel_hi:[1,0]' % (vr(GTMP + e, 2), vr(GTMP + e, 2)))
    for e in range(8):
        a('v_rcp_f32 v%d, v%d' % (GTMP + e, GTMP + e))
    for e in P:
        a('v_pk_mul_f32 %s, %s, %s' % (vr(GTMP + e, 2), vr(GTMP + e, 2), vr(z + e, 2)))
    for p in range(4):
        a('v_cvt_pk_bf16_f32 v%d, v%d, v%d' % (h + p, GTMP + 2 * p, GTMP + 2 * p + 1))


hmk, fmk = {}, {}


def h_store(t):
    def f():
        a('s_add_u32 s24, s32, %d' % (TORD[t] * 56 * 1024))
        store('buffer_store_dwordx4 %s, v1, %s, s24 offen' % (vr(GH + 4 * (t & 1)), srd(S_WS)), sFH)
        hmk[t] = a.vm_mark()
    return f


def h_flag(t):
    def f():
        a.wait_vm(hmk[t])
        store('buffer_store_dword v%d, v241, %s, 0 offen offset:%d' % (V_T, srd(S_WS), 256 * TORD[t]), sFAST)
    return f


def wd_block(fis, wave):
    def f():
        skip = newlab('L_wd')
        a('s_cmp_eq_u32 s24, %d' % wave)
        a('s_cbranch_scc0 %s' % skip)
        for fi in fis:
            a(wd_load(fi))
            a.vm_issued -= 1
        a.label(skip)
    return f


cst_fill = []
for tt in range(2):
    r = CSTR + 8 * tt
    for c_ in range(2):
        cst_fill += ['v_add_f32 v%d, v%d, v%d' % (r + c_, r + c_, r + 2 + c_),
                     'v_add_f32 v%d, v%d, v%d' % (r + 4 + c_, r + 4 + c_, r + 6 + c_),
                     'v_add_f32 v%d, v%d, v%d' % (r + c_, r + c_, r + 4 + c_)]
    cst_fill += xg_reduce(r, r + 2) + xg_reduce(r + 1, r + 3) + stats_finish(r, r + 1, r + 2, True)
a('s_lshl_b32 s%d, s%d, 7' % (sA, sW))
a('v_add_u32 v247, s%d, v246' % sA)
cst_fill += ['ds_write_b64 v247, %s' % vr(CSTR, 2), 'ds_write_b64 v247, %s offset:512' % vr(CSTR + 8, 2)] + b1_unpack
LOOKX = 6


A_CCS = 244


DFIRST = [194, 198, 202, 206, 210, 220, 224, 228, 232]
hm = {}


def emit_c_loop(wd_list):
    pass0 = bool(wd_list)
    if not pass0:
        for e in range(8):
            a('v_accvgpr_read_b32 v%d, a%d' % (CCS + e, A_CCS + e))
    for u in range(LOOKX):
        a(c_xread(0, u))
    for t in range(8):
        nonvec = {}

        def put(k, x):
            nonvec.setdefault(k, []).append(x)
        for u in range(14):
            n = t * 14 + u
            m = n + LOOKX
            if m < 8 * 14:
                put(2 * u + 1, c_xread(m // 14, m % 14))
            if u % 2 == 1 and n + 1 < 8 * 14:
                put(2 * u + 1, 's_waitcnt lgkmcnt(%d)' % min(LOOKX - 2, 8 * 14 - 1 - (n + 2)))
        if t < 7:
            nonvec[14] = [('bar', t + 1)] + nonvec.get(14, [])
        if t + 2 < 8:
            su = c_dma_setup(t + 2)
            put(0, su[0])
            put(0, su[1])
            for i in range(4):
                put(2 + 2 * i, ('dma', t + 2, i))
        if t >= 3:
            put(20, ('call', h_flag(t - 3)))
        if t == 1:
            put(0, 's_add_u32 s22, s25, 12288')
        if t == 5:
            def issue_d0():
                amark['d0'] = early_issue(244, 243)
            put(22, ('call', issue_d0))
        if t == 6:
            put(2, ('call', lambda: early_check(244, 243, amark['d0'])))
        if t in (6, 7):
            for k, q in zip((4, 6, 8, 20, 22) if t == 6 else (2, 4, 6, 8), range(0, 5) if t == 6 else range(5, 9)):
                put(k, ('h0', q))
        if t < 7:
            for k in (10, 12, 13, 16, 18, 22, 24, 26):
                if wd_list:
                    put(k, wd_load(wd_list.pop(0)))
        if t > 0:
            put(17, 'ds_read_b64 %s, v246 offset:%d' % (vr(CMR + 2 * (t & 1), 2), 128 * TORD[t]))
        if t == 0:
            for k, it in enumerate(t0_loads):
                put(k, ('t0', it))
        valu = gelu_mid() if t >= 1 else {}
        if t >= 2:
            for x in gelu_post(t - 2):
                a(x)
            h_store(t - 2)()
        if t >= 1:
            for x in gelu_pre(t - 1):
                a(x)
        fill = list(cst_fill) if t == 0 else []
        first = 8
        fi = 0
        for k in range(28):
            u, kk = k >> 1, k & 1
            n = t * 14 + u
            if t == 0 and k == 0:
                a('s_waitcnt lgkmcnt(%d)' % (LOOKX - 2))
            if t == 0 and kk == 0 and u in wlate:
                a.wait_vm(wlate[u])
            if t == 0 and k == first:
                a.wait_vm(amark['cst'])
            r = CA[t & 1] + 4 * kk
            a('%s %s, %s, %s, %s' % (MFMA, vr(r), vr(CWW + 4 * (2 * u + kk)), vr(XF + 4 * (n % NXF)), '0' if u == 0 else vr(r)))
            if pass0 and t == 0:
                a('%s %s, %s, %s, %s' % (MFMA, vr(CCS + 4 * kk), vr(CWW + 4 * (2 * u + kk)), ar(A_ONES), '0' if u == 0 else vr(CCS + 4 * kk)))
            for it in nonvec.get(k, []):
                if isinstance(it, str):
                    a(it)
                elif it[0] == 'bar':
                    a.wait_vm(dm[it[1]])
                    a('s_barrier')
                elif it[0] == 'dma':
                    a(c_dma(it[1], it[2]))
                    dm[it[1]] = a.vm_mark()
                elif it[0] == 'call':
                    it[1]()
                elif it[0] == 'h0':
                    q = it[1]
                    a('buffer_load_dwordx4 %s, v1, %s, s%d offen offset:%d sc1' %
                      (vr(DFIRST[q] if q < 9 else 66 + 4 * q), srd(S_WS), (25, 27, 29, 22)[q >> 2], 1024 * (q & 3)))
                    hm[q] = a.vm_mark()
                elif it[0] == 't0':
                    if it[1][0] == 'w':
                        a(c_wload(it[1][1]))
                        wlate[it[1][1] >> 1] = a.vm_mark()
                    else:
                        a(it[1][1])
                        amark['cst'] = a.vm_mark()
            for x in valu.get(k, []):
                a(x)
            if fill and k >= first:
                want = -(-(len(fill)) * (k - first + 1) // (28 - first))
                while fi < want:
                    a(fill[fi])
                    fi += 1
        assert fi == len(fill)
        if t == 0:
            a('s_waitcnt lgkmcnt(0)')
            a('s_barrier')
            a('ds_read_b64 %s, v246 offset:0' % vr(CMR, 2))
            if pass0:
                for e in range(8):
                    a('v_accvgpr_write_b32 a%d, v%d' % (A_CCS + e, CCS + e))
            a('s_waitcnt lgkmcnt(0)')
    assert not wd_list


pair_base(sA, L.FC)
a('s_lshl_b32 s%d, s%d, 10' % (sB, sG))
a('s_add_u32 s%d, s%d, s%d' % (sA, sA, sB))
a('s_mul_i32 s%d, s%d, 56' % (sB, sW))
a('s_add_u32 s%d, s%d, s%d' % (sA, sA, sB))
a('v_lshl_add_u32 v243, v0, 2, s%d' % sA)
a('s_mov_b32 s%d, 0x3fff' % sMK2)
a('s_mov_b32 s%d, 0' % (sMK2 + 1))
pair_base(sA, L.H)
a('s_mul_i32 s%d, s%d, %d' % (sB, sG, 4 * 56 * 1024))
a('s_add_u32 s%d, s%d, s%d' % (sA, sA, sB))
a('s_mul_i32 s%d, s%d, %d' % (sB, sW, 14 * 1024))
a('s_add_u32 s25, s%d, s%d' % (sA, sB))
a('s_add_u32 s27, s25, 4096')
a('s_add_u32 s29, s25, 8192')
n_before = a.vm_issued
dm_init = dict(dm)
a('s_cmp_eq_u32 s%d, 0' % sPAIR)
a('s_cbranch_scc0 L_c_loop1')
emit_c_loop(list(range(*WD_CH[1])))
extra = a.vm_issued - n_before
with OutOfLine():
    a.label('L_c_loop1')
    a.vm_issued = n_before
    dm.clear()
    dm.update(dm_init)
    emit_c_loop([])
    a('s_branch L_c_done')
a.label('L_c_done')
stamp()
DH, DACC, DRD = 66, 130, 194
DRING, DLOOK = 16, 10
red_addrs()
publish_setup(L.XA[1], L.SA[1], L.FX[1], False, 5)
a('s_and_b32 s%d, s%d, 1' % (sA, sG))
a('s_lshr_b32 s%d, s%d, 1' % (sB, sW))
a('s_and_b32 s%d, s%d, s%d' % (sA, sA, sB))
a('s_xor_b32 s%d, s%d, 1' % (sA, sA))
a('s_and_b32 s%d, s%d, s%d' % (sPC, sFD, sA))
a('s_mov_b32 s%d, s%d' % (sPFC, sFAST))
a('s_cmp_eq_u32 s%d, 0' % sA)
a('s_cselect_b32 s%d, 0, 0x%x' % (sCc, INV))
a('s_add_u32 s%d, s%d, 1' % (sA, sS))
a('s_lshl_b32 s%d, s%d, 5' % (sA, sA))
a('s_lshl_b32 s%d, s%d, 1' % (sB, sJ))
a('s_add_u32 s%d, s%d, s%d' % (sA, sA, sB))
a('s_and_b32 s%d, s%d, 1' % (sB, sW))
a('s_add_u32 s%d, s%d, s%d' % (sA, sA, sB))
a('s_lshl_b32 s%d, s%d, 2' % (sA, sA))
a('s_add_u32 s%d, s%d, %d' % (sA, sA, L.FH))
a('s_or_b32 s20, s%d, s%d' % (sA, sCc))
pair_base(sA, L.H)
a('s_mul_i32 s%d, s%d, %d' % (sB, sG, 4 * 56 * 1024))
a('s_add_u32 s%d, s%d, s%d' % (sA, sA, sB))
a('s_mul_i32 s%d, s%d, %d' % (sB, sW, 14 * 1024))
a('s_add_u32 s%d, s%d, s%d' % (sO, sA, sB))
quarter_offsets(4, 56 * 1024)
a('s_cmp_eq_u32 s%d, 0' % sPAIR)
a('s_cbranch_scc1 L_d_nout')
owner_index()
a('s_mul_i32 s%d, s%d, 14336' % (sPX, sB))
a('s_lshl_b32 s%d, s%d, 6' % (sA, sA))
a('s_add_u32 s%d, s%d, s%d' % (sPX, sPX, sA))
a('s_add_u32 s%d, s%d, %d' % (sPX2, sPX, 2 * 14336))
a.label('L_d_nout')
a('v_and_b32 v%d, 15, v0' % V_TOK)
a('v_lshrrev_b32 v%d, 4, v0' % V_G)
a('v_mul_u32_u24 v242, 896, v%d' % V_TOK)
a('v_and_b32 v253, 1, v%d' % V_G)
a('v_lshl_add_u32 v242, v253, 5, v242')
a('v_lshrrev_b32 v253, 1, v%d' % V_G)
a('v_lshl_add_u32 v242, v253, 4, v242')


def d_hload(q):
    tile, kk = divmod(q, 14)
    return ('buffer_load_dwordx4 %s, v1, %s, s%d offen offset:%d sc1' %
            (vr(d_reg(q)), srd(S_WS), sO + 4 * tile + (kk >> 2), 1024 * (kk & 3)))


def d_reg(q):
    return DFIRST[q] if q < len(DFIRST) else DH + (q % DRING) * 4


dmk = {}
for q in range(len(DFIRST), DLOOK):
    a(d_hload(q))
    hm[q] = a.vm_mark()
dmk[1] = early_issue(244, 243, 256)
stamp()
for x in gelu_post(6):
    a(x)
h_store(6)()
a('s_waitcnt lgkmcnt(0)')
gelu_packed(7)
h_flag(5)()
h_store(7)()
stamp()

a('s_barrier')
stamp()


def d_tile(tile):
    items = []
    for kk in range(14):
        q = tile * 14 + kk
        for t in range(4):
            r = DACC + (tile * 4 + t) * 4
            pre = [(lambda qq=q: a.wait_vm(hm[qq]))] if t == 0 else []
            if t == 0 and q in (6, 12):
                pre.append(h_flag({6: 6, 12: 7}[q]))
            post = None
            if t == 0 and q + DLOOK < 56:
                def post(qq=q + DLOOK):
                    if qq % 14 == 0:
                        early_check(244, 243, dmk[qq // 14], 256 * (qq // 14))
                    a(d_hload(qq))
                    hm[qq] = a.vm_mark()
                    if qq % 14 == 6 and qq // 14 < 3:
                        dmk[qq // 14 + 1] = early_issue(244, 243, 256 * (qq // 14 + 1))
            items.append((pre, '%s %s, %s, %s, %s' % (MFMA, vr(r), ar((kk * 4 + t) * 4), vr(d_reg(q)),
                                                      '0' if kk == 0 else vr(r)), post))
    return items


def d_out_store(st, pk):
    a('s_nop 1')
    a('v_permlane16_swap_b32 v%d, v%d' % (pk, pk + 2))
    a('v_permlane16_swap_b32 v%d, v%d' % (pk + 1, pk + 3))
    a('buffer_store_dwordx4 %s, v242, %s, s%d offen %s' % (vr(pk), srd(S_OUT), sPX if st == 0 else sPX2, OUTSC))


def d_store(st, pk):
    fin, done = newlab('L_dfin'), newlab('L_ddone')
    a('s_cmp_eq_u32 s%d, 0' % sPAIR)
    a('s_cbranch_scc0 %s' % fin)
    publish_data(st, pk)
    a('s_branch %s' % done)
    a.label(fin)
    n = a.vm_issued
    d_out_store(st, pk)
    a.vm_issued = n
    a.label(done)


DT0, DT1, DPK, DSTT, DSTS = 226, 2, 18, 28, 36
stage0 = [lambda: (a('s_waitcnt lgkmcnt(0)'), a('s_barrier'))] + red_reads(0, DRD) + finish_pre(0, True, DT0)
stage0 += [lambda: a('s_waitcnt lgkmcnt(0)')] + finish_sum(0, DRD, DT0, DPK, False) + [lambda: d_store(0, DPK)]
run_tiles(d_tile, {1: red_writes(DACC, 0), 2: red_writes(DACC + 16, 1), 3: red_writes(DACC + 32, 2) + stage0})
stamp2()
for x in red_writes(DACC + 48, 3):
    a(x)
for x in finish_pre(1, True, DT1):
    a(x)
a('s_waitcnt lgkmcnt(0)')
a('s_barrier')
stamp2()
for x in red_reads(1, DRD):
    a(x)
a('s_waitcnt lgkmcnt(0)')
for x in finish_sum(1, DRD, DT1, DPK + 4, True):
    a(x)
d_store(1, DPK + 4)
stamp()
a('s_cmp_eq_u32 s%d, 0' % sPAIR)
a('s_cbranch_scc0 L_next_pair')
publish_stats([DT0, DT1], DSTT, DSTS)
FHMODE = ([x[5:] for x in sys.argv if x.startswith('--fh=')] + ['after'])[0]
a('v_mov_b32 v240, s20')
if FHMODE == 'before':
    a('s_waitcnt vmcnt(0)')
    a('s_mov_b64 exec, 1')
    a('buffer_store_dword v%d, v240, %s, 0 offen sc1' % (V_T, srd(S_WS)))
    a('s_mov_b64 exec, -1')
    a('v_lshlrev_b32 v241, 8, v0')
    a('v_add_u32 v241, s%d, v241' % sPF)
    a('s_mov_b64 exec, 3')
    store('buffer_store_dword v%d, v241, %s, 0 offen' % (V_T, srd(S_WS)), sPFC)
    a('s_mov_b64 exec, -1')
else:
    publish_flags(8)
    if FHMODE == 'wait':
        a('s_waitcnt vmcnt(0)')
    a('s_mov_b64 exec, 1')
    a('buffer_store_dword v%d, v240, %s, 0 offen sc1' % (V_T, srd(S_WS)))
    a('s_mov_b64 exec, -1')
a.label('L_next_pair')
stamp()
a('s_add_u32 s%d, s%d, 1' % (sPAIR, sPAIR))
a('s_cmp_lt_u32 s%d, 2' % sPAIR)
a('s_cbranch_scc1 L_pair')

if PAD:
    a.label('L_padspin')
    a('s_memrealtime s[34:35]')
    a('s_waitcnt lgkmcnt(0)')
    a('s_sub_u32 s34, s34, s0')
    a('s_cmp_lt_u32 s34, %d' % PAD[0])
    a('s_cbranch_scc1 L_padspin')
if DBG:
    a('s_memtime s[32:33]')
    a('s_memrealtime s[34:35]')
    a('s_waitcnt lgkmcnt(0)')
    a('s_sub_u32 s32, s32, s26')
    a('s_sub_u32 s34, s34, s0')
    build_srd(S_TMP, P_DBG, 256)
    a('v_mov_b32 v2, s32')
    a('v_mov_b32 v3, s34')
    a('v_mov_b32 v4, s%d' % sFAST)
    a('v_mov_b32 v5, s%d' % sXCC)
    a('s_lshr_b32 s%d, s2, 6' % sA)
    a('s_lshl_b32 s%d, s%d, 4' % (sA, sA))
    a('s_and_b32 s%d, s2, 63' % sB)
    a('s_or_b32 s%d, s%d, s%d' % (sB, sB, sW))
    a('s_cmp_eq_u32 s%d, 0' % sB)
    a('s_cselect_b32 s%d, s%d, 0x%x' % (sA, sA, INV))
    a('v_mov_b32 v6, s%d' % sA)
    a('s_mov_b64 exec, 1')
    a('buffer_store_dwordx4 v[2:5], v6, %s, 0 offen' % srd(S_TMP))
    a('s_mov_b64 exec, -1')
if DIAG:
    stamp()
    a('s_mov_b32 s%d, 63' % sSTI)
    a('s_lshl_b64 exec, 1, s%d' % sSTI)
    a('v_mov_b32 v%d, s%d' % (V_STAMP, sERR))
    a('s_mov_b32 s%d, 62' % sSTI)
    a('s_lshl_b64 exec, 1, s%d' % sSTI)
    a('v_mov_b32 v%d, s%d' % (V_STAMP, sFAST))
    a('s_mov_b64 exec, -1')
    a('s_lshl_b32 s%d, s2, 2' % sA)
    a('s_add_u32 s%d, s%d, s%d' % (sA, sA, sW))
    a('s_lshl_b32 s%d, s%d, 8' % (sA, sA))
    a('v_lshlrev_b32 v2, 2, v0')
    a('s_add_u32 s%d, s%d, %d' % (sA, sA, L.WS_USED))
    a('s_mov_b32 s%d, 0x%x' % (S_WS + 2, L.WS_USED + 256 * 1024))
    a('buffer_store_dword v%d, v2, %s, s%d offen' % (V_STAMP, srd(S_WS), sA))
    if DBGST:
        build_srd(S_TMP, P_DBG, 256)
        a('v_readfirstlane_b32 s%d, v%d' % (sA, V_STAMP))
        a('s_nop 4')
        a('v_subrev_u32 v3, s%d, v%d' % (sA, V_STAMP))
        a('s_or_b32 s%d, s2, s%d' % (sB, sW))
        a('s_cmp_eq_u32 s%d, 0' % sB)
        a('s_cselect_b32 s%d, 0, 0x%x' % (sB, INV))
        a('v_or_b32 v2, s%d, v2' % sB)
        SEL = [int(x[6:]) for x in sys.argv if x.startswith('--sel=')]
        sel = SEL[0] if SEL else 1
        a('v_subrev_u32 v2, %d, v2' % (4 * sel))
        a('buffer_store_dword v3, v2, %s, 0 offen' % srd(S_TMP))
a.label('L_end')
a('s_endpgm')
a.ins.extend(ool)
a.label('L_code_end')

DESC = "; Persistent kernel, 256 workgroups x 4 waves, one workgroup per CU (160 KB LDS, 512 registers per wave).\n; Workgroup id -> super-group s (128 tokens, 16 workgroups, ids with equal id%8 so that they share an XCD under the\n;   A  (member = head)      q,k,v = LN(x)*Wqkv (layer norm folded into the epilogue), dilated window attention in registers\n; at the start of every launch.  Hand-offs: write-through stores, s_waitcnt, then a flag word holding a tag derived from\n; an epoch word in d_ws; flags stay in the XCD's L2 only when all 16 members report the same XCC id.\n"
a.finalize()
body = a.text()

import os
hdr = open(os.path.join(os.path.dirname(os.path.abspath(__file__)), 'header.txt')).read()
out = hdr + '; @launch grid=(256,1,1) block=(256,1,1) lds=%d\n' % L.LDS_BYTES + DESC
out += '.amdgcn_target "amdgcn-amd-amdhsa--gfx950"\n.text\n.globl %s_kernel\n.p2align 8\n.type %s_kernel,@function\n%s_kernel:\n' % (NAME, NAME, NAME)
out += body
out += '''.section .rodata,"a"
.p2align 6
.amdhsa_kernel %s_kernel
  .amdhsa_next_free_vgpr 512
  .amdhsa_next_free_sgpr 102
  .amdhsa_accum_offset 256
  .amdhsa_group_segment_fixed_size 0
  .amdhsa_kernarg_size 88
  .amdhsa_user_sgpr_count 2
  .amdhsa_user_sgpr_kernarg_segment_ptr 1
  .amdhsa_system_sgpr_workgroup_id_x 1
.end_amdhsa_kernel
''' % NAME
sys.stdout.write(out)
```

```python
import struct
import sys
from asmlib import Asm
import layout as L

NAME = 'interleave_layers__sliding_local_dilated__mixer_channel_mlp__prompt'
DIAG = '--diag' in sys.argv
FASTMODE = ([x[7:] for x in sys.argv if x.startswith('--fast=')] + ['flags'])[0]
NOFAST = FASTMODE == 'none'
PAD = [int(x[6:]) for x in sys.argv if x.startswith('--pad=')]
DBG = '--dbg' in sys.argv or bool(PAD)
SPIN_LIMIT = 200000
OUTSC = ([x[8:] for x in sys.argv if x.startswith('--outsc=')] + [''])[0].replace('_', ' ')
SLEEP = int(([x[8:] for x in sys.argv if x.startswith('--sleep=')] + ['0'])[0])
INV = 0x80000000

a = Asm()

sXCC = 3
S_WS, S_TMP, S_B1, S_OUT = 4, 8, 12, 16
P_X, P_WQKV, P_WO, P_BX, P_W1, P_B1, P_W2, P_B2, P_OUT, P_DBG, P_WSP = 20, 22, 24, 26, 28, 30, 32, 34, 36, 38, 40
sS, sC, sG, sJ, sW, sT, sPAIR, sSPIN = 42, 43, 44, 45, 46, 47, 48, 49
sM1 = 50
sM2 = 58
sM0 = 66
sO = 74
sA, sB, sCc, sD = 90, 91, 92, 93
sMK = 94
sTS = 96
sGT = 98
sERR = 99
sEP = 1
sSTI = 100
sFAST = 101
sFD = 27
sPFC = 26
sFH = 25


def srd(n):
    return 's[%d:%d]' % (n, n + 3)


def vr(n, k=4):
    return 'v[%d:%d]' % (n, n + k - 1)


def ar(n, k=4):
    return 'a[%d:%d]' % (n, n + k - 1)


def sp(n):
    return 's[%d:%d]' % (n, n + 1)


def f2h(x):
    return '0x%08x' % struct.unpack('<I', struct.pack('<f', x))[0]


V_T, V_STAMP = 254, 255
V_TOK, V_G = 250, 251
MFMA = 'v_mfma_f32_16x16x32_bf16'


DIAG2 = '--diag2' in sys.argv
PREFPOS = ([x[7:] for x in sys.argv if x.startswith('--pref=')] + ['a'])[0]
PREF = PREFPOS != 'n'
TOUCH = '--notouch' not in sys.argv
STWAIT = '--stwait' in sys.argv
P2EARLY = '--p2early' in sys.argv
SKEW = [int(x[7:]) for x in sys.argv if x.startswith('--skew=')]
DBGST = '--dbgst' in sys.argv


def stamp2():
    if DIAG2:
        stamp()


def stamp():
    if not DIAG:
        return
    a('%s %s' % ('s_memrealtime' if '--rt' in sys.argv else 's_memtime', sp(sTS)))
    a('s_waitcnt lgkmcnt(0)')
    a('s_lshl_b64 exec, 1, s%d' % sSTI)
    a('v_mov_b32 v%d, s%d' % (V_STAMP, sTS))
    a('s_mov_b64 exec, -1')
    a('s_add_u32 s%d, s%d, 1' % (sSTI, sSTI))


ool = []


class OutOfLine:
    def __enter__(self):
        self.saved = a.ins
        a.ins = []

    def __exit__(self, *exc):
        ool.extend(a.ins)
        a.ins = self.saved


lab_no = [0]


def newlab(p):
    lab_no[0] += 1
    return '%s_%d' % (p, lab_no[0])


def emit_pref():
    a('s_getpc_b64 s[96:97]')
    a.label('L_pc')
    a('s_lshr_b32 s%d, s2, 3' % sA)
    a('s_lshl_b32 s%d, s%d, 11' % (sA, sA))
    a('s_lshl_b32 s%d, s%d, 9' % (sB, sW))
    a('s_add_u32 s%d, s%d, s%d' % (sA, sA, sB))
    a('v_lshlrev_b32 v21, 3, v0')
    a('v_add_u32 v21, s%d, v21' % sA)
    a('v_min_u32 v21, L_code_end-L_pc-8, v21')
    a('global_load_dwordx2 v[58:59], v21, s[96:97]')


def skew_store(point, have=False):
    if not SKEW or SKEW[0] != point:
        return
    if not have:
        a('s_memrealtime s[96:97]')
        a('s_waitcnt lgkmcnt(0)')
    build_srd(S_TMP, P_DBG, 256)
    a('s_and_b32 s%d, s2, 15' % sA)
    a('s_or_b32 s%d, s%d, s%d' % (sA, sA, sW))
    a('s_cmp_eq_u32 s%d, 0' % sA)
    a('s_cselect_b32 s%d, 0, 0x%x' % (sA, INV))
    a('s_lshr_b32 s%d, s2, 2' % sB)
    a('s_or_b32 s%d, s%d, s%d' % (sA, sA, sB))
    a('v_mov_b32 v21, s%d' % sA)
    a('v_mov_b32 v22, s96')
    a('s_mov_b64 exec, 1')
    a('buffer_store_dword v22, v21, %s, 0 offen' % srd(S_TMP))
    a.vm_issued -= 1
    a('s_mov_b64 exec, -1')


def build_srd(dst, ptr, nbytes):
    a('s_mov_b32 s%d, s%d' % (dst, ptr))
    a('s_and_b32 s%d, s%d, 0xffff' % (dst + 1, ptr + 1))
    a('s_mov_b32 s%d, 0x%x' % (dst + 2, nbytes))
    a('s_mov_b32 s%d, 0x20000' % (dst + 3))


def poll(voff, off2=None, sleep=None):
    lab, done = newlab('L_poll'), newlab('L_polldone')
    a('s_mov_b64 exec, %s' % sp(sMK))
    a('s_mov_b32 s%d, 0' % sSPIN)
    a.label(lab)
    a('buffer_load_dword v253, v%d, %s, 0 offen sc1' % (voff, srd(S_WS)))
    if off2 is not None:
        a('buffer_load_dword v245, v%d, %s, 0 offen offset:%d sc1' % (voff, srd(S_WS), off2))
    a('s_waitcnt vmcnt(0)')
    if off2 is not None:
        a('v_xor_b32 v245, s%d, v245' % sT)
        a('v_xor_b32 v253, s%d, v253' % sT)
        a('v_or_b32 v253, v253, v245')
        a('v_cmp_ne_u32 vcc, 0, v253')
    else:
        a('v_cmp_ne_u32 vcc, s%d, v253' % sT)
    a('s_nop 4')
    a('s_cbranch_vccz %s' % done)
    if sleep or SLEEP:
        a('s_sleep %d' % (sleep or SLEEP))
    a('s_add_u32 s%d, s%d, 1' % (sSPIN, sSPIN))
    a('s_cmp_lt_u32 s%d, %d' % (sSPIN, SPIN_LIMIT))
    a('s_cbranch_scc1 %s' % lab)
    a('s_add_u32 s%d, s%d, 1' % (sERR, sERR))
    a.label(done)
    a('s_mov_b64 exec, -1')


sMK2 = 30


def early_issue(dst, voff, off=0):
    a('s_mov_b64 exec, %s' % sp(sMK2))
    a('buffer_load_dword v%d, v%d, %s, 0 offen offset:%d sc1' % (dst, voff, srd(S_WS), off))
    a('s_mov_b64 exec, -1')
    return a.vm_mark()


def early_check(dst, voff, mark, off=0):
    ok = newlab('L_early')
    a.wait_vm(mark)
    a('s_mov_b64 exec, %s' % sp(sMK2))
    a('v_cmp_ne_u32 vcc, s%d, v%d' % (sT, dst))
    a('s_mov_b64 exec, -1')
    a('s_nop 2')
    a('s_cbranch_vccz %s' % ok)
    a('s_mov_b64 %s, %s' % (sp(sMK), sp(sMK2)))
    n = a.vm_issued
    if off:
        a('v_add_u32 v253, %d, v%d' % (off, voff))
        a('v_mov_b32 v%d, v253' % dst)
        poll(dst)
    else:
        poll(voff)
    a.vm_issued = n
    a.label(ok)


def store(fmt, cond=None):
    if cond is None or NOFAST or (FASTMODE == 'flags' and cond in (sFD, sFH, sPC)):
        a(fmt + ' sc1')
        return
    slow, done = newlab('L_slow'), newlab('L_st')
    a('s_cmp_eq_u32 s%d, 0' % cond)
    a('s_cbranch_scc1 %s' % slow)
    a(fmt)
    a('s_branch %s' % done)
    a.label(slow)
    a(fmt + ' sc1')
    a.vm_issued -= 1
    a.label(done)


def set_flags(voff, nlanes, cond=None, val=V_T, between=()):
    mark = a.vm_mark()
    for x in between:
        a(x)
    a.wait_vm(mark)
    a('s_mov_b64 exec, %d' % ((1 << nlanes) - 1))
    store('buffer_store_dword v%d, v%d, %s, 0 offen' % (val, voff, srd(S_WS)), cond)
    a('s_mov_b64 exec, -1')


def xg_reduce(x, t, op='v_add_f32'):
    return ['v_mov_b32 v%d, v%d' % (t, x),
            'v_permlane32_swap_b32 v%d, v%d' % (x, t),
            '%s v%d, v%d, v%d' % (op, x, x, t),
            'v_mov_b32 v%d, v%d' % (t, x),
            'v_permlane16_swap_b32 v%d, v%d' % (x, t),
            '%s v%d, v%d, v%d' % (op, x, x, t)]


EPS = 1e-5


def stats_finish(s1, s2, t, double_ln):
    o = ['v_mul_f32 v%d, %s, v%d' % (s1, f2h(1.0 / 448), s1),
         'v_mul_f32 v%d, %s, v%d' % (s2, f2h(1.0 / 448), s2),
         'v_fma_f32 v%d, -v%d, v%d, v%d' % (s2, s1, s1, s2),
         'v_max_f32 v%d, 0, v%d' % (s2, s2),
         'v_add_f32 v%d, %s, v%d' % (t, f2h(EPS), s2),
         'v_rsq_f32 v%d, v%d' % (t, t)]
    if not double_ln:
        o += ['v_mov_b32 v%d, v%d' % (s2, t)]
    else:
        o += ['v_mul_f32 v%d, v%d, v%d' % (s2, s2, t),
              'v_fmaak_f32 v%d, v%d, v%d, %s' % (s2, s2, t, f2h(EPS)),
              'v_rsq_f32 v%d, v%d' % (s2, s2),
              'v_mul_f32 v%d, v%d, v%d' % (s2, s2, t)]
    return o


def pair_base(dst, arr):
    a('s_mul_i32 s%d, s%d, %d' % (dst, sPAIR, arr[1] - arr[0]))
    a('s_add_u32 s%d, s%d, %d' % (dst, dst, arr[0]))


def quarter_offsets(n, stride):
    for t in range(n):
        if t:
            a('s_add_u32 s%d, s%d, %d' % (sO + 4 * t, sO + 4 * (t - 1), stride))
        for q in range(1, 4):
            a('s_add_u32 s%d, s%d, %d' % (sO + 4 * t + q, sO + 4 * t, 4096 * q))


sPX, sPS, sPF, sPC, sPX2 = 36, 37, 28, 29, 33


def stats_flags(delta, lsh):
    a('v_lshlrev_b32 v241, %d, v0' % lsh)
    a('s_add_u32 s%d, s%d, %d' % (sA, sPF, delta))
    a('v_add_u32 v241, s%d, v241' % sA)
    a('s_mov_b64 exec, 3')
    store('buffer_store_dword v%d, v241, %s, 0 offen' % (V_T, srd(S_WS)), sPFC)
    a('s_mov_b64 exec, -1')


a('s_cmp_ge_u32 s2, 256')
a('s_cbranch_scc1 L_end')
if '--perm' in sys.argv:
    a('s_and_b32 s90, s2, 7')
    a('s_lshr_b32 s91, s2, 3')
    a('s_and_b32 s91, s91, 7')
    a('s_and_b32 s2, s2, 0xc0')
    a('s_lshl_b32 s90, s90, 3')
    a('s_or_b32 s2, s2, s90')
    a('s_or_b32 s2, s2, s91')
SPRE = int(([x[7:] for x in sys.argv if x.startswith('--spre=')] + ['0'])[0])
if SPRE:
    a('s_getpc_b64 s[96:97]')
a('s_load_dwordx16 s[20:35], s[0:1], 0')
a('s_load_dwordx4 s[36:39], s[0:1], 64')
a('s_load_dwordx2 s[40:41], s[0:1], 80')
for i in range(SPRE):
    a('s_load_dword s98, s[96:97], %d' % (256 + 128 * i))
a('s_getreg_b32 s%d, hwreg(HW_REG_XCC_ID, 0, 4)' % sXCC)
a('s_and_b32 s%d, s2, 7' % sA)
a('s_lshr_b32 s%d, s2, 3' % sB)
a('s_lshr_b32 s%d, s%d, 4' % (sCc, sB))
a('s_lshl_b32 s%d, s%d, 1' % (sS, sA))
a('s_add_u32 s%d, s%d, s%d' % (sS, sS, sCc))
a('s_and_b32 s%d, s%d, 15' % (sC, sB))
a('s_lshr_b32 s%d, s%d, 3' % (sA, sC))
a('s_lshl_b32 s%d, s%d, 1' % (sG, sS))
a('s_add_u32 s%d, s%d, s%d' % (sG, sG, sA))
a('s_and_b32 s%d, s%d, 7' % (sJ, sC))
a('s_mov_b32 s%d, 0' % sERR)
if SKEW and SKEW[0] == 0:
    a('s_memrealtime s[96:97]')
a('v_lshrrev_b32 v2, 6, v0')
a('v_and_b32 v0, 63, v0')
a('v_readfirstlane_b32 s%d, v2' % sW)
a('v_lshlrev_b32 v1, 4, v0')
if DIAG:
    a('v_mov_b32 v%d, 0' % V_STAMP)
    a('s_mov_b32 s%d, 0' % sSTI)
stamp()
a('v_and_b32 v%d, 15, v0' % V_TOK)
a('v_lshrrev_b32 v%d, 4, v0' % V_G)
sSTG = 40
a('s_waitcnt lgkmcnt(0)')
if DBG:
    a('s_memtime s[26:27]')
    a('s_memrealtime s[0:1]')
    a('s_waitcnt lgkmcnt(0)')
skew_store(0, True)
build_srd(S_WS, P_WSP, L.WS_USED)
a('buffer_load_dword v%d, off, %s, 0 sc1' % (V_T, srd(S_WS)))
a('s_lshl_b32 s%d, s%d, 14' % (sSTG, sW))
a('s_add_u32 s%d, s%d, %d' % (sSTG, sSTG, L.L_R2))

build_srd(S_TMP, P_X, 2048 * 896)
a('v_mul_u32_u24 v2, 896, v%d' % V_TOK)
a('v_lshl_add_u32 v2, v%d, 3, v2' % V_G)
a('s_lshr_b32 s%d, s%d, 1' % (sA, sC))
a('s_lshl_b32 s%d, s%d, 3' % (sB, sS))
a('s_add_u32 s%d, s%d, s%d' % (sO + 0, sA, sB))
a('s_and_b32 s%d, s%d, 1' % (sA, sC))
a('s_mul_i32 s%d, s%d, 7' % (sA, sA))
a('s_add_u32 s%d, s%d, s%d' % (sO + 1, sA, sW))
a('s_cmp_lt_u32 s%d, 3' % sW)
a('s_cselect_b32 s%d, 0, 0x%x' % (sO + 2, INV))
a('s_mul_i32 s%d, s%d, 14336' % (sA, sO + 0))
a('s_lshl_b32 s%d, s%d, 6' % (sB, sO + 1))
a('s_add_u32 s%d, s%d, s%d' % (sA, sA, sB))
a('v_or_b32 v3, s%d, v2' % (sO + 2))
a('buffer_load_dwordx2 v[10:11], v2, %s, s%d offen' % (srd(S_TMP), sA))
a('buffer_load_dwordx2 v[12:13], v2, %s, s%d offen offset:32' % (srd(S_TMP), sA))
a('buffer_load_dwordx2 v[14:15], v3, %s, s%d offen offset:256' % (srd(S_TMP), sA))
a('buffer_load_dwordx2 v[16:17], v3, %s, s%d offen offset:288' % (srd(S_TMP), sA))

build_srd(S_TMP, P_WQKV, 448 * 2688)
qMAT, qU, qINV = sO + 3, sO + 4, sO + 5
a('s_lshl_b32 s%d, s%d, 4' % (sA, sW))
a('s_add_u32 s%d, s%d, s%d' % (sA, sA, sS))
a('s_cmp_lt_u32 s%d, 42' % sA)
a('s_cselect_b32 s%d, 0, 0x%x' % (qINV, INV))
a('s_min_u32 s%d, s%d, 41' % (sA, sA))
a('s_mul_i32 s%d, s%d, 4682' % (qMAT, sA))
a('s_lshr_b32 s%d, s%d, 16' % (qMAT, qMAT))
a('s_mul_i32 s%d, s%d, 14' % (sB, qMAT))
a('s_sub_u32 s%d, s%d, s%d' % (qU, sA, sB))
a('s_mul_i32 s%d, s%d, %d' % (sA, qU, 32 * 2688))
a('s_mul_i32 s%d, s%d, 896' % (sB, qMAT))
a('s_add_u32 s%d, s%d, s%d' % (sA, sA, sB))
a('s_mul_i32 s%d, s%d, 56' % (sB, sC))
a('s_add_u32 s%d, s%d, s%d' % (sA, sA, sB))
a('v_lshrrev_b32 v4, 2, v0')
a('v_mul_u32_u24 v4, 2688, v4')
a('v_and_b32 v5, 3, v0')
a('v_lshl_add_u32 v4, v5, 4, v4')
a('v_or_b32 v4, s%d, v4' % qINV)
a('s_mov_b32 m0, s%d' % sSTG)
a('s_add_u32 s%d, s%d, %d' % (sB, sA, 16 * 2688))
a('buffer_load_dwordx4 v4, %s, s%d offen lds' % (srd(S_TMP), sA))
a('s_add_u32 m0, s%d, 1024' % sSTG)
a('s_nop 0')
a('buffer_load_dwordx4 v4, %s, s%d offen lds' % (srd(S_TMP), sB))

bINV, bDST, bSTR, bINV2, bDST2, sSTRD = 20, 21, 22, 23, 24, 25


def emit_p2_issue():
    a('s_cmp_eq_u32 s%d, 3' % sW)
    a('s_cbranch_scc1 L_p2_w1')
    a('s_lshl_b32 s%d, s%d, 5' % (sA, sW))
    a('s_add_u32 s%d, s%d, s%d' % (sA, sA, sG))
    a('s_cmp_lt_u32 s%d, 72' % sA)
    a('s_cselect_b32 s%d, 0, 0x%x' % (bINV, INV))
    a('s_cmp_eq_u32 s%d, 7' % sJ)
    a('s_cselect_b32 s%d, 0x%x, s%d' % (bINV, INV, bINV))
    a('s_min_u32 s%d, s%d, 71' % (sA, sA))
    a('s_min_u32 s%d, s%d, 6' % (sD, sJ))
    a('s_cmp_lt_u32 s%d, 16' % sA)
    a('s_cselect_b32 s%d, s%d, s%d' % (S_TMP, P_WO, P_W2))
    a('s_cselect_b32 s%d, s%d, s%d' % (S_TMP + 1, P_WO + 1, P_W2 + 1))
    a('s_mov_b32 s%d, 0x%x' % (S_TMP + 2, 1792 * 896))
    a('s_cselect_b32 s%d, 0x%x, s%d' % (S_TMP + 2, 448 * 896, S_TMP + 2))
    a('s_cselect_b32 s%d, 28, 32' % sB)
    a('s_cselect_b32 s%d, 0, 16' % sCc)
    a('s_mov_b32 s%d, %d' % (bSTR, 56 * 1024))
    a('s_cselect_b32 s%d, %d, s%d' % (bSTR, 16 * 1024, bSTR))
    a('s_mov_b32 s%d, %d' % (bDST, L.WD))
    a('s_cselect_b32 s%d, %d, s%d' % (bDST, L.WB, bDST))
    a('s_cselect_b32 s%d, 0x%x, 0' % (sO + 9, INV))
    a('s_and_b32 s%d, s%d, 0xffff' % (S_TMP + 1, S_TMP + 1))
    a('s_mov_b32 s%d, 0x20000' % (S_TMP + 3))
    a('s_sub_u32 s%d, s%d, s%d' % (sA, sA, sCc))
    a('s_lshl_b32 s%d, s%d, 10' % (sCc, sA))
    a('s_add_u32 s%d, s%d, s%d' % (bDST, bDST, sCc))
    a('s_lshl_b32 s%d, s%d, 2' % (sCc, sD))
    a('s_mul_i32 s%d, s%d, s%d' % (sCc, sCc, bSTR))
    a('s_add_u32 s%d, s%d, s%d' % (bDST, bDST, sCc))
    a('s_mul_i32 s%d, s%d, s%d' % (sA, sA, sB))
    a('s_mul_i32 s%d, s%d, 896' % (sA, sA))
    a('s_lshl_b32 s%d, s%d, 7' % (sB, sD))
    a('s_add_u32 s%d, s%d, s%d' % (sO + 10, sA, sB))
    a('s_mov_b32 s%d, 896' % sSTRD)
    a('s_mov_b32 s%d, 0x%x' % (bINV2, INV))
    a('s_mov_b32 s%d, 0' % bDST2)
    a('s_mov_b32 s%d, 0' % (sO + 11))
    a('s_branch L_p2_go')
    a.label('L_p2_w1')
    build_srd(S_TMP, P_W1, 448 * 3584)
    a('s_lshl_b32 s%d, s%d, 4' % (sA, sS))
    a('s_add_u32 s%d, s%d, s%d' % (sA, sA, sC))
    a('s_cmp_lt_u32 s%d, 136' % sA)
    a('s_cselect_b32 s%d, 0, 0x%x' % (bINV2, INV))
    a('s_mov_b32 s%d, 0' % bINV)
    a('s_mov_b32 s%d, 0' % (sO + 9))
    a('s_mov_b32 s%d, %d' % (bSTR, 14 * 1024))
    a('s_mov_b32 s%d, 3584' % sSTRD)
    for dst, src, add in ((bDST, sO + 10, 0), (bDST2, sO + 11, 256)):
        a('s_add_u32 s%d, s%d, %d' % (sB, sA, add))
        a('s_min_u32 s%d, s%d, 391' % (sB, sB))
        a('s_mul_i32 s%d, s%d, 4682' % (sCc, sB))
        a('s_lshr_b32 s%d, s%d, 16' % (sCc, sCc))
        a('s_mul_i32 s%d, s%d, 14' % (sD, sCc))
        a('s_sub_u32 s%d, s%d, s%d' % (sB, sB, sD))
        a('s_mul_i32 s%d, s%d, %d' % (src, sB, 32 * 3584))
        a('s_lshl_b32 s%d, s%d, 7' % (sD, sCc))
        a('s_add_u32 s%d, s%d, s%d' % (src, src, sD))
        a('s_mul_i32 s%d, s%d, 56' % (sD, sCc))
        a('s_add_u32 s%d, s%d, s%d' % (sD, sD, sB))
        a('s_lshl_b32 s%d, s%d, 10' % (sD, sD))
        a('s_add_u32 s%d, s%d, %d' % (dst, sD, L.WC))
    a.label('L_p2_go')
    a('v_lshrrev_b32 v6, 3, v0')
    a('v_mul_lo_u32 v6, v6, s%d' % sSTRD)
    a('v_and_b32 v5, 7, v0')
    a('v_lshl_add_u32 v6, v5, 4, v6')
    a('v_or_b32 v8, s%d, v6' % bINV2)
    a('v_or_b32 v6, s%d, v6' % bINV)
    a('v_cmp_lt_u32 vcc, 31, v0')
    a('v_mov_b32 v7, s%d' % (sO + 9))
    a('v_cndmask_b32 v7, 0, v7, vcc')
    a('v_or_b32 v7, v7, v6')
    a('s_lshl_b32 s%d, s%d, 3' % (sB, sSTRD))
    for slot in range(2):
        src = sO + 10 + slot
        for q in range(4):
            a('s_add_u32 m0, s%d, %d' % (sSTG, 2048 + 4096 * slot + 1024 * q))
            if q:
                a('s_add_u32 s%d, s%d, s%d' % (src, src, sB))
            else:
                a('s_nop 0')
            a('buffer_load_dwordx4 v%d, %s, s%d offen lds' % (8 if slot else (7 if q == 3 else 6), srd(S_TMP), src))


if P2EARLY:
    emit_p2_issue()
build_srd(S_B1, P_B1, 1792 * 2)
build_srd(S_OUT, P_OUT, 2048 * 896)
a('v_bfe_u32 v18, v0, 2, 2')
a('v_lshl_add_u32 v18, v%d, 2, v18' % V_G)
a('v_and_b32 v19, 3, v0')
a('v_lshlrev_b32 v19, 3, v19')
if PREFPOS == 'b':
    emit_pref()
if TOUCH:
    a('v_lshlrev_b32 v21, 21, v0')
    a('s_mov_b64 exec, 0x1ffff')
    a('buffer_load_dword v253, v21, %s, 0 offen' % srd(S_WS))
    a('s_mov_b64 exec, -1')
    a('s_waitcnt vmcnt(%d)' % ((9 if P2EARLY else 1) + (PREFPOS == 'b')))
else:
    a('s_waitcnt vmcnt(%d)' % ((8 if P2EARLY else 0) + (PREFPOS == 'b')))
stamp()

a('v_readfirstlane_b32 s%d, v%d' % (sEP, V_T))
a('s_mov_b32 s%d, 0x9E3779B1' % sA)
a('v_mul_lo_u32 v%d, v%d, s%d' % (V_T, V_T, sA))
a('v_add_u32 v%d, 0x7F4A7C15, v%d' % (V_T, V_T))
a('v_and_b32 v%d, -16, v%d' % (V_T, V_T))
a('v_lshl_add_u32 v20, v18, 6, v19')
a('v_add_u32 v20, s%d, v20' % sSTG)
for hf in range(2):
    a('ds_read_b64_tr_b16 %s, v20 offset:%d' % (vr(24 + 4 * hf, 2), 32 * hf))
    a('ds_read_b64_tr_b16 %s, v20 offset:%d' % (vr(26 + 4 * hf, 2), 32 * hf + 1024))
a('v_readfirstlane_b32 s%d, v%d' % (sT, V_T))
a('s_mul_i32 s%d, s%d, 14' % (sA, sO + 0))
a('s_add_u32 s%d, s%d, s%d' % (sA, sA, sO + 1))
a('s_lshl_b32 s%d, s%d, 10' % (sB, sA))
a('s_add_u32 s%d, s%d, %d' % (sB, sB, L.XA[0]))
a('v_or_b32 v3, s%d, v1' % (sO + 2))
a('buffer_store_dwordx4 v[10:13], v1, %s, s%d offen sc1' % (srd(S_WS), sB))
a('s_add_u32 s%d, s%d, 4096' % (sB, sB))
a('buffer_store_dwordx4 v[14:17], v3, %s, s%d offen sc1' % (srd(S_WS), sB))
a('v_cmp_gt_u32 vcc, 12, v%d' % V_TOK)
a('s_mul_i32 s%d, s%d, 84' % (sB, sC))
a('s_mul_i32 s%d, s%d, 28' % (sCc, qMAT))
a('s_add_u32 s%d, s%d, s%d' % (sB, sB, sCc))
a('s_add_u32 s%d, s%d, s%d' % (sB, sB, qU))
a('s_lshl_b32 s%d, s%d, 10' % (sB, sB))
a('s_add_u32 s%d, s%d, %d' % (sB, sB, L.WA))
a('v_or_b32 v4, s%d, v1' % qINV)
a('s_waitcnt lgkmcnt(0)')
for p in range(4):
    a('v_cndmask_b32 v%d, 0, v%d, vcc' % (28 + p, 28 + p))
a('buffer_store_dwordx4 v[24:27], v4, %s, s%d offen sc1' % (srd(S_WS), sB))
a('s_add_u32 s%d, s%d, %d' % (sB, sB, 14 * 1024))
a('buffer_store_dwordx4 v[28:31], v4, %s, s%d offen sc1' % (srd(S_WS), sB))
a('v_mov_b32 v2, 0x3f803f80')
for k in range(2):
    x, s1, s2 = 10 + 4 * k, 110 + 2 * k, 111 + 2 * k
    a('v_mov_b32 v%d, 0' % s1)
    a('v_mov_b32 v%d, 0' % s2)
    for p in range(4):
        a('v_dot2_f32_bf16 v%d, v%d, v2, v%d' % (s1, x + p, s1))
        a('v_dot2_f32_bf16 v%d, v%d, v%d, v%d' % (s2, x + p, x + p, s2))
    for t in xg_reduce(s1, 114) + xg_reduce(s2, 115):
        a(t)
a('s_lshl_b32 s%d, s%d, 7' % (sB, sA))
a('s_add_u32 s%d, s%d, %d' % (sB, sB, L.SA[0]))
a('v_lshlrev_b32 v2, 3, v%d' % V_TOK)
a('v_or_b32 v3, s%d, v2' % (sO + 2))
a('s_mov_b64 exec, 0xffff')
a('buffer_store_dwordx2 v[110:111], v2, %s, s%d offen sc1' % (srd(S_WS), sB))
a('buffer_store_dwordx2 v[112:113], v3, %s, s%d offen offset:512 sc1' % (srd(S_WS), sB))
a('s_mov_b64 exec, -1')
crit_mark = a.vm_mark()
if not P2EARLY:
    emit_p2_issue()
a('s_lshl_b32 s%d, s%d, 5' % (sA, sO + 0))
a('s_add_u32 s%d, s%d, s%d' % (sA, sA, sO + 1))
a('s_lshl_b32 s%d, s%d, 2' % (sA, sA))
a('s_add_u32 s%d, s%d, %d' % (sA, sA, L.FX[0]))
a('v_lshlrev_b32 v2, 4, v0')
a('v_add_u32 v2, s%d, v2' % sA)
a('v_cmp_eq_u32 vcc, 1, v0')
a('v_mov_b32 v3, s%d' % (sO + 2))
a('v_cndmask_b32 v3, 0, v3, vcc')
a('v_or_b32 v2, v2, v3')
a('s_lshl_b32 s%d, s%d, 6' % (sA, sC))
a('s_lshl_b32 s%d, s%d, 2' % (sB, sS))
a('s_add_u32 s%d, s%d, s%d' % (sA, sA, sB))
a('s_add_u32 s%d, s%d, s%d' % (sA, sA, sW))
a('s_lshl_b32 s%d, s%d, 2' % (sA, sA))
a('s_add_u32 s%d, s%d, %d' % (sA, sA, L.FQ))
a('v_mov_b32 v3, s%d' % sA)
a('v_cmp_eq_u32 vcc, 2, v0')
a('v_cndmask_b32 v2, v2, v3, vcc')
a('s_lshl_b32 s%d, s%d, 4' % (sA, sS))
a('s_add_u32 s%d, s%d, s%d' % (sA, sA, sC))
a('s_lshl_b32 s%d, s%d, 2' % (sA, sA))
a('s_add_u32 s%d, s%d, %d' % (sA, sA, L.FXC))
a('s_cmp_eq_u32 s%d, 0' % sW)
a('s_cselect_b32 s%d, s%d, 0x%x' % (sA, sA, INV))
a('v_mov_b32 v3, s%d' % sA)
a('v_cmp_eq_u32 vcc, 3, v0')
a('v_cndmask_b32 v2, v2, v3, vcc')
a('v_or_b32 v3, s%d, v%d' % (sXCC, V_T))
a('v_cndmask_b32 v3, v%d, v3, vcc' % V_T)
stamp2()
a.wait_vm(crit_mark)
a('s_mov_b64 exec, 15')
a('buffer_store_dword v3, v2, %s, 0 offen sc1' % srd(S_WS))
a('s_mov_b64 exec, -1')
stamp()

if PREFPOS == 'a':
    emit_pref()
BTOUCH = '--btouch' in sys.argv
if BTOUCH:
    a('v_lshlrev_b32 v21, 6, v0')
    a('buffer_load_dword v60, v21, %s, 0 offen' % srd(S_B1))
    build_srd(S_TMP, P_B2, 896)
    a('buffer_load_dword v61, v21, %s, 0 offen' % srd(S_TMP))
skew_store(1)
a('s_waitcnt vmcnt(%d)' % (1 + (PREFPOS == 'a') + 2 * BTOUCH))
a('v_lshl_add_u32 v20, v18, 7, v19')
a('v_add_u32 v20, s%d, v20' % sSTG)
for slot in range(2):
    for t in range(4):
        a('ds_read_b64_tr_b16 %s, v20 offset:%d' % (vr(24 + 16 * slot + 4 * t, 2), 2048 + 4096 * slot + 32 * t))
        a('ds_read_b64_tr_b16 %s, v20 offset:%d' % (vr(26 + 16 * slot + 4 * t, 2), 2048 + 4096 * slot + 32 * t + 2048))
a('v_or_b32 v6, s%d, v1' % bINV)
a('v_or_b32 v8, s%d, v1' % bINV2)
a('s_waitcnt lgkmcnt(8)')
for t in range(4):
    a('buffer_store_dwordx4 %s, v6, %s, s%d offen sc1' % (vr(24 + 4 * t), srd(S_WS), bDST))
    if t < 3:
        a('s_add_u32 s%d, s%d, s%d' % (bDST, bDST, bSTR))
a('s_waitcnt lgkmcnt(0)')
for t in range(4):
    a('buffer_store_dwordx4 %s, v8, %s, s%d offen sc1' % (vr(40 + 4 * t), srd(S_WS), bDST2))
    if t < 3:
        a('s_add_u32 s%d, s%d, s%d' % (bDST2, bDST2, bSTR))
a('s_lshl_b32 s%d, s%d, 4' % (sA, sS))
a('s_add_u32 s%d, s%d, s%d' % (sA, sA, sC))
a('s_lshl_b32 s%d, s%d, 2' % (sA, sA))
a('s_add_u32 s%d, s%d, %d' % (sA, sA, L.FW1))
a('v_lshlrev_b32 v22, 10, v0')
a('v_add_u32 v22, s%d, v22' % sA)
a('v_cmp_eq_u32 vcc, 1, v0')
a('v_mov_b32 v23, s%d' % bINV2)
a('v_cndmask_b32 v23, 0, v23, vcc')
a('v_or_b32 v22, v22, v23')
a('s_cmp_eq_u32 s%d, 3' % sW)
a('s_cselect_b32 s%d, 0, 0x%x' % (sA, INV))
a('v_or_b32 v22, s%d, v22' % sA)

skew_store(3)
a('v_and_b32 v2, 1, v%d' % V_TOK)
a('v_lshlrev_b32 v3, 2, v%d' % V_G)
a('v_add_u32 v6, 2, v%d' % V_TOK)
for i in range(4):
    a('v_add_u32 v4, %d, v3' % i)
    a('v_cmp_eq_u32 vcc, %d, v2' % (i & 1))
    a('s_mov_b64 %s, vcc' % sp(sMK))
    a('v_cmp_ge_u32 vcc, v4, v6')
    a('s_and_b64 %s, vcc, %s' % (sp(sM1 + 2 * i), sp(sMK)))
    a('v_cmp_le_u32 vcc, v4, v%d' % V_TOK)
    a('s_and_b64 %s, vcc, %s' % (sp(sM2 + 2 * i), sp(sMK)))
a('s_lshl_b32 s%d, s%d, 3' % (sA, sS))
a('s_lshl_b32 s%d, s%d, 1' % (sB, sW))
a('s_add_u32 s%d, s%d, s%d' % (sGT, sA, sB))
a('s_cmp_eq_u32 s%d, 0' % sGT)
for i in range(4):
    a('s_cselect_b64 %s, 0, %s' % (sp(sM0 + 2 * i), sp(sM1 + 2 * i)))
a('s_mov_b32 s%d, 0' % sPAIR)

def a_flag_addr(dst):
    pair_base(sA, L.FX)
    a('s_lshl_b32 s%d, s%d, 7' % (sB, sGT))
    a('s_add_u32 s%d, s%d, s%d' % (sA, sA, sB))
    a('s_sub_u32 s%d, s%d, 128' % (sA, sA))
    a('v_and_b32 v%d, 48, v0' % dst)
    a('v_add_u32 v%d, v%d, v0' % (dst, dst))
    a('v_lshl_add_u32 v%d, v%d, 2, s%d' % (dst, dst, sA))
    a('s_mov_b32 s%d, 0x3fff3fff' % sMK)
    a('s_mov_b32 s%d, 0x3fff' % (sMK + 1))
    a('s_cmp_eq_u32 s%d, 0' % sGT)
    a('s_cselect_b32 s%d, 0x3fff0000, s%d' % (sMK, sMK))


a('s_lshl_b32 s%d, s%d, 8' % (sA, sC))
a('s_add_u32 s%d, s%d, %d' % (sA, sA, L.FQ))
a('v_lshl_add_u32 v2, v0, 2, s%d' % sA)
a_flag_addr(3)
a('s_lshl_b32 s%d, s%d, 6' % (sA, sS))
a('s_add_u32 s%d, s%d, %d' % (sA, sA, L.FXC - 48 * 4))
a('v_lshl_add_u32 v4, v0, 2, s%d' % sA)
a('v_cmp_lt_u32 vcc, 47, v0')
a('v_cndmask_b32 v3, v3, v4, vcc')
a('v_mov_b32 v5, -1')
a('v_mov_b32 v6, -16')
a('v_cndmask_b32 v5, v5, v6, vcc')
a('s_or_b32 s%d, s%d, 0xffff0000' % (sMK + 1, sMK + 1))
a('s_mov_b32 s%d, 0' % sSPIN)
a.label('L_poll0')
a('buffer_load_dword v7, v2, %s, 0 offen sc1' % srd(S_WS))
a('s_mov_b64 exec, %s' % sp(sMK))
a('buffer_load_dword v8, v3, %s, 0 offen sc1' % srd(S_WS))
a('s_waitcnt vmcnt(0)')
a('v_and_b32 v9, v5, v8')
a('v_cmp_ne_u32 vcc, s%d, v9' % sT)
a('s_mov_b64 exec, -1')
a('s_mov_b64 %s, vcc' % sp(sTS))
a('v_cmp_ne_u32 vcc, s%d, v7' % sT)
a('s_or_b64 vcc, vcc, %s' % sp(sTS))
a('s_cbranch_vccz L_poll0_done')
a('s_add_u32 s%d, s%d, 1' % (sSPIN, sSPIN))
a('s_cmp_lt_u32 s%d, %d' % (sSPIN, SPIN_LIMIT))
a('s_cbranch_scc1 L_poll0')
a('s_add_u32 s%d, s%d, 1' % (sERR, sERR))
a.label('L_poll0_done')
a('s_mov_b64 exec, 3')
a('buffer_store_dword v%d, v22, %s, 0 offen sc1' % (V_T, srd(S_WS)))
a('s_mov_b64 exec, -1')
skew_store(2)
a('v_and_b32 v9, 15, v8')
a('v_cmp_ne_u32 vcc, s%d, v9' % sXCC)
a('s_and_b32 s%d, vcc_hi, 0xffff0000' % sA)
a('s_cmp_eq_u32 s%d, 0' % sA)
a('s_cselect_b32 s%d, 1, 0' % sFAST)
stamp()
AQ, AK, AV, HACC = 2, 18, 34, 50
WBUF = [66, 90]
XR = 114
CSACC = 186
STR = 210
SM, SR = 234, 237
NR, LOOK = 6, 4
A_ONES = 240


def a_xload(u):
    slot = u % NR
    return ['buffer_load_dwordx4 %s, v1, %s, s%d offen offset:%d sc1' %
            (vr(XR + (slot * 2 + t) * 4), srd(S_WS), sO + 4 * (t + 1) + (u >> 2), 1024 * (u & 3)) for t in range(2)]


def a_offsets():
    pair_base(sA, L.XA)
    a('s_mul_i32 s%d, s%d, 14336' % (sB, sGT))
    a('s_add_u32 s%d, s%d, s%d' % (sO + 4, sA, sB))
    a('s_add_u32 s%d, s%d, 14336' % (sO + 8, sO + 4))
    for t in range(1, 3):
        for q in range(1, 4):
            a('s_add_u32 s%d, s%d, %d' % (sO + 4 * t + q, sO + 4 * t, 4096 * q))
    a('s_lshl_b32 s%d, s%d, 3' % (sB, sS))
    a('s_max_u32 s%d, s%d, 1' % (sB, sB))
    a('s_sub_u32 s%d, s%d, 1' % (sB, sB))
    a('s_mul_i32 s%d, s%d, 14336' % (sB, sB))
    a('s_add_u32 s%d, s%d, s%d' % (sO + 0, sA, sB))
    a('s_lshl_b32 s%d, s%d, 12' % (sB, sW))
    a('s_add_u32 s%d, s%d, s%d' % (sO + 0, sO + 0, sB))
    a('s_add_u32 s%d, s%d, %d' % (sO + 1, sB, L.L_R2))


def a_setup():
    if FASTMODE == 'flags':
        a('s_mov_b32 s%d, 0' % sFD)
        a('s_mov_b32 s%d, 0' % sFH)
    elif FASTMODE == 'p0':
        a('s_xor_b32 s%d, s%d, 1' % (sFD, sPAIR))
        a('s_and_b32 s%d, s%d, s%d' % (sFD, sFD, sFAST))
        a('s_mov_b32 s%d, s%d' % (sFH, sFD))
    elif FASTMODE == 'small':
        a('s_mov_b32 s%d, s%d' % (sFD, sFAST))
        a('s_mov_b32 s%d, 0' % sFH)
    elif FASTMODE == 'smallp0':
        a('s_mov_b32 s%d, s%d' % (sFD, sFAST))
        a('s_xor_b32 s%d, s%d, 1' % (sFH, sPAIR))
        a('s_and_b32 s%d, s%d, s%d' % (sFH, sFH, sFAST))
    else:
        a('s_mov_b32 s%d, s%d' % (sFD, sFAST))
        a('s_mov_b32 s%d, s%d' % (sFH, sFAST))
    pair_base(sA, L.SA)
    a('s_mul_i32 s%d, s%d, 1792' % (sB, sGT))
    a('s_add_u32 s%d, s%d, s%d' % (sO + 13, sA, sB))
    a('s_add_u32 s%d, s%d, 1792' % (sO + 14, sO + 13))
    a('s_sub_u32 s%d, s%d, 1792' % (sO + 12, sO + 13))
    a('s_cmp_eq_u32 s%d, 0' % sGT)
    a('s_cselect_b32 s%d, s%d, s%d' % (sO + 12, sO + 13, sO + 12))
    a('v_and_b32 v%d, 15, v0' % V_TOK)
    a('v_lshrrev_b32 v%d, 4, v0' % V_G)
    a('v_lshlrev_b32 v240, 3, v%d' % V_TOK)
    a('v_lshl_add_u32 v240, v%d, 7, v240' % V_G)
    a('v_mov_b32 v242, 0x%x' % INV)
    a('v_cmp_lt_u32 vcc, 1, v%d' % V_G)
    a('v_cndmask_b32 v241, 0, v242, vcc')
    a('v_or_b32 v241, v241, v240')
    a('v_add_u32 v243, %d, v1' % (56 * 1024))
    a('v_lshlrev_b32 v244, 4, v%d' % V_G)
    a('v_add_u32 v244, %d, v244' % L.L_CSA)
    a('v_lshlrev_b32 v245, 2, v%d' % V_TOK)
    a('v_add_u32 v245, %d, v245' % L.L_CSA)
    a('s_mul_i32 s%d, s%d, 384' % (sA, sW))
    a('s_add_u32 s%d, s%d, %d' % (sA, sA, L.L_STA))
    a('v_lshl_add_u32 v162, v%d, 2, s%d' % (V_TOK, sA))
    a('v_lshl_add_u32 v163, v%d, 4, s%d' % (V_G, sA))
    a('s_lshl_b32 s%d, s%d, 7' % (sA, sJ))
    a('s_add_u32 s%d, s%d, %d' % (sA, sA, L.FP))
    a('v_lshl_add_u32 v248, v0, 2, s%d' % sA)
    a('s_lshr_b32 s%d, s%d, 1' % (sB, sW))
    a('s_lshl_b32 s%d, s%d, 2' % (sCc, sG))
    a('s_add_u32 s%d, s%d, s%d' % (sB, sB, sCc))
    a('s_lshl_b32 s%d, s%d, 5' % (sB, sB))
    a('s_and_b32 s%d, s%d, 1' % (sA, sW))
    a('s_add_u32 s%d, s%d, s%d' % (sB, sB, sA))
    a('s_min_u32 s%d, s%d, 6' % (sA, sJ))
    a('s_lshl_b32 s%d, s%d, 1' % (sA, sA))
    a('s_add_u32 s%d, s%d, s%d' % (sB, sB, sA))
    a('s_lshl_b32 s%d, s%d, 2' % (sB, sB))
    a('s_add_u32 s%d, s%d, %d' % (sB, sB, L.FX[0] - 32 * 256))
    a('v_lshl_add_u32 v249, v0, 8, s%d' % sB)
    a('v_cmp_lt_u32 vcc, 31, v0')
    a('v_cndmask_b32 v248, v248, v249, vcc')
    a('s_lshr_b32 s%d, s%d, 3' % (sA, sC))
    a('s_mul_i32 s%d, s%d, 7' % (sA, sA))
    a('s_min_u32 s%d, s%d, 6' % (sB, sJ))
    a('s_add_u32 s%d, s%d, s%d' % (sA, sA, sB))
    a('s_mul_i32 s%d, s%d, 112' % (sA, sA))
    a('s_add_u32 s%d, s%d, %d' % (sA, sA, L.FW1 - 34 * 4))
    a('v_lshl_add_u32 v249, v0, 2, s%d' % sA)
    a('v_cmp_lt_u32 vcc, 33, v0')
    a('v_cndmask_b32 v248, v248, v249, vcc')
    a('s_lshl_b32 s%d, s%d, 7' % (sA, sS))
    a('s_add_u32 s%d, s%d, %d' % (sA, sA, L.FH))
    a('v_and_b32 v247, 15, v0')
    a('v_lshl_add_u32 v247, v247, 2, s%d' % sA)
    a('s_lshl_b32 s%d, s%d, 7' % (sB, sGT))
    a('s_add_u32 s%d, s%d, %d' % (sB, sB, L.FX[1] - 128))
    a('v_lshl_add_u32 v253, v0, 2, s%d' % sB)
    a('s_cmp_eq_u32 s%d, 0' % sW)
    a('s_cselect_b32 s%d, 0, 16' % sA)
    a('v_cmp_gt_u32 vcc, s%d, v0' % sA)
    a('v_cndmask_b32 v247, v247, v253, vcc')
    a('s_mov_b32 s%d, 0x3fff3fff' % sMK2)
    a('s_mov_b32 s%d, 0' % (sMK2 + 1))
    a('s_cmp_eq_u32 s%d, 0' % sS)
    a('s_cselect_b32 s%d, 0x3fff, s%d' % (sMK2, sMK2))
    a('v_and_b32 v253, 15, v0')
    a('v_lshlrev_b32 v253, 2, v253')
    a('v_add_u32 v253, %d, v253' % L.FX[1])
    a('s_cmp_eq_u32 s%d, 0' % sGT)
    a('s_cselect_b64 vcc, -1, 0')
    a('v_cndmask_b32 v247, v247, v253, vcc')


stat_loads = ['buffer_load_dwordx2 %s, v%d, %s, s%d offen offset:%d sc1' %
              (vr(STR + (t * 4 + i) * 2, 2), 241 if i == 3 else 240, srd(S_WS), sO + 12 + t, 512 * i)
              for t in range(3) for i in range(4)]


def a_wread(u):
    b = WBUF[u & 1]
    o = []
    for p in range(6):
        if p < 4:
            o.append('ds_read_b128 %s, v1 offset:%d' % (vr(b + 4 * p), L.L_WA + (p * 14 + u) * 1024))
        else:
            o.append('ds_read_b128 %s, v243 offset:%d' % (vr(b + 4 * p), L.L_WA + ((p - 4) * 14 + u) * 1024))
    return o


stat_fill = []
for t in (1, 2, 0):
    r = STR + 8 * t
    for c_ in range(2):
        stat_fill += ['v_add_f32 v%d, v%d, v%d' % (r + c_, r + c_, r + 2 + c_),
                      'v_add_f32 v%d, v%d, v%d' % (r + 4 + c_, r + 4 + c_, r + 6 + c_),
                      'v_add_f32 v%d, v%d, v%d' % (r + c_, r + c_, r + 4 + c_)]
    stat_fill += xg_reduce(r, r + 2) + xg_reduce(r + 1, r + 3)
    stat_fill += stats_finish(r, r + 1, r + 2, False)
    stat_fill += ['v_mov_b32 v%d, v%d' % (SM + t, r), 'v_mov_b32 v%d, v%d' % (SR + t, r + 1)]

sWA = [20, 21, 22]
sWAG = 23


def wa_dma(pr, i):
    def f():
        a('s_add_u32 m0, s%d, %d' % (sWA[i], L.L_WA + 2048 * pr))
        a('s_add_u32 s%d, s%d, s%d' % (sD, sWA[i], sWAG))
        if pr:
            a('s_add_u32 s%d, s%d, %d' % (sD, sD, 2048 * pr))
        a('buffer_load_dwordx4 v1, %s, s%d offen sc1 lds' % (srd(S_WS), sD))
    return f


amark = {}


def emit_a_loop(first, xmark, wam):
    ep_mark = es_mark = st_mark = None
    for t in a_wread(0):
        a(t)
    for u in range(14):
        need = xmark[u]
        if u == 8:
            need = max(need, amark['st_own'])
        if u == 11:
            need = max(need, st_mark)
        a.wait_vm(need)
        if not first and u == 6:
            early_check(246, 247, es_mark)
            a('s_nop 0')
        if u == 11:
            a('s_mov_b32 s%d, -1' % sMK2)
            a('s_mov_b32 s%d, 0x3fffffff' % (sMK2 + 1))
        a('s_waitcnt lgkmcnt(0)')
        wb = WBUF[u & 1]
        xs = XR + (u % NR) * 8
        mf = []
        cz = (lambda r: '0') if u == 0 else (lambda r: vr(r))
        for t in range(2):
            for hf in range(2):
                r = AQ + (t * 2 + hf) * 4
                mf.append('%s %s, %s, %s, %s' % (MFMA, vr(r), vr(wb + 4 * hf), vr(xs + 4 * t), cz(r)))
        for t in range(2):
            for hf in range(2):
                r = AK + (t * 2 + hf) * 4
                mf.append('%s %s, %s, %s, %s' % (MFMA, vr(r), vr(wb + 8 + 4 * hf), vr(xs + 4 * t), cz(r)))
        for t in range(2):
            for hf in range(2):
                r = AV + (t * 2 + hf) * 4
                mf.append('%s %s, %s, %s, %s' % (MFMA, vr(r), vr(xs + 4 * t), vr(wb + 16 + 4 * hf), cz(r)))
        if first:
            mf.append('%s %s, %s, %s, %s' % (MFMA, vr(CSACC + 8), vr(CSACC), ar(A_ONES), cz(CSACC + 8)))
            mf.append('%s %s, %s, %s, %s' % (MFMA, vr(CSACC + 12), ar(A_ONES), vr(CSACC + 4), cz(CSACC + 12)))
        mem = {}

        def put(k, x):
            mem.setdefault(k, []).append(x)
        nm = len(mf)
        off = 0
        if first:
            a('ds_read_b128 %s, v252 offset:%d' % (vr(CSACC), 1024 * u))
            a('ds_read_b128 %s, v242 offset:%d' % (vr(CSACC + 4), 1024 * u))
            put(11, 's_waitcnt lgkmcnt(%d)' % (6 if u < 13 else 0))
        if first and u % 2 == 1 and u < 13:
            put(2, ('bar', (u + 1) // 2))
            off = 3
        if u < 13:
            for k, x in enumerate(a_wread(u + 1)):
                put(off + k, x)
        elif not first:
            for p in range(4):
                put(p, 'ds_read_b128 %s, v244 offset:%d' % (vr(WBUF[0] + 4 * p), 64 * p))
            for d in range(2):
                put(4 + d, 'ds_read_b32 v%d, v245 offset:%d' % (WBUF[0] + 16 + d, 64 * (4 + d)))
        if first and u < 2:
            for j_, uu in enumerate((2 * u + 2, 2 * u + 3)):
                for k, x in zip((6, 8), a_xload(uu)):
                    put(k + 4 * j_, x)
                put(8 + 4 * j_, ('xm', uu))
            if u == 0:
                for i, k in enumerate((7, 9, 11)):
                    put(k, ('wa', 2, i))
        elif u + LOOK < 14:
            for k, x in zip((6, 9), a_xload(u + LOOK)):
                put(k, x)
            put(9, ('xm', u + LOOK))
        if first and u % 2 == 0 and u // 2 + 3 <= 6:
            for i, k in enumerate((12, 13, 13) if u == 0 else (7, 10, 12)):
                put(k, ('wa', u // 2 + 3, i))
        order = list(range(4, 12)) + list(range(0, 4))
        if 2 <= u < 6:
            for k, x in zip((8, 11), order[2 * (u - 2):2 * (u - 2) + 2]):
                put(k, stat_loads[x])
            if u == 5:
                put(11, ('sto',))
        if not first and u == 3:
            put(7, ('estat',))
        if u in (7, 8):
            for k, x in zip((8, 11), order[8 + 2 * (u - 7):8 + 2 * (u - 7) + 2]):
                put(k, stat_loads[x])
            if u == 8:
                put(11, ('st',))
        if u == 6:
            put(10, 's_mov_b32 m0, s%d' % (sO + 1))
            for i, k in enumerate((10, 10, 11, 11)):
                put(k, 'buffer_load_dwordx4 v1, %s, s%d offen offset:%d sc1 lds' % (srd(S_WS), sO + 0, 1024 * i))
            put(11, ('hm',))
        if u == 13:
            put(8, ('early',))
        fill = []
        if 8 <= u < 11:
            fill = stat_fill[(u - 8) * 18:(u - 7) * 18]
        elif u in (11, 12):
            fill = stat_fill[54 + (u - 11) * 14:54 + (u - 10) * 14]
        if u == 13:
            put(1, 's_mov_b64 exec, 0xffff')
            for t in range(3):
                put(1, 'ds_write_b32 v162, v%d offset:%d' % (SM + t, 128 * t))
                put(1, 'ds_write_b32 v162, v%d offset:%d' % (SR + t, 128 * t + 64))
            put(1, 's_mov_b64 exec, -1')
        fi = 0
        for k, m in enumerate(mf):
            a(m)
            for it in mem.get(k, []):
                if isinstance(it, str):
                    a(it)
                elif it[0] == 'early':
                    ep_mark = early_issue(249, 248)
                elif it[0] == 'estat':
                    es_mark = early_issue(246, 247)
                elif it[0] == 'xm':
                    xmark[it[1]] = a.vm_mark()
                elif it[0] == 'st':
                    st_mark = a.vm_mark()
                elif it[0] == 'sto':
                    amark['st_own'] = a.vm_mark()
                elif it[0] == 'hm':
                    amark['halo'] = a.vm_mark()
                elif it[0] == 'bar':
                    a.wait_vm(wam[it[1]])
                    a('s_barrier')
                elif it[0] == 'wa':
                    wa_dma(it[1], it[2])()
                    wam[it[1]] = a.vm_mark()
            for _ in range(2):
                if fi < len(fill) and k >= 1:
                    a(fill[fi])
                    fi += 1
        assert fi == len(fill), (u, fi, len(fill))
    amark['ep'] = ep_mark


for p in range(4):
    a('v_mov_b32 v4, 0x3f803f80')
    a('v_accvgpr_write_b32 a%d, v4' % (A_ONES + p))
a('s_mul_i32 s%d, s%d, 14336' % (sWA[0], sW))
a('s_add_u32 s%d, s%d, 4' % (sA, sW))
a('s_mul_i32 s%d, s%d, 14336' % (sA, sA))
a('s_sub_u32 s%d, s%d, 2' % (sB, sW))
a('s_mul_i32 s%d, s%d, 14336' % (sB, sB))
a('s_add_u32 s%d, s%d, 1024' % (sB, sB))
a('s_cmp_lt_u32 s%d, 2' % sW)
a('s_cselect_b32 s%d, s%d, s%d' % (sWA[1], sA, sB))
a('s_add_u32 s%d, s%d, 2' % (sA, sW))
a('s_mul_i32 s%d, s%d, 14336' % (sA, sA))
a('s_add_u32 s%d, s%d, 1024' % (sWA[2], sA))
a('s_mul_i32 s%d, s%d, %d' % (sWAG, sC, 84 * 1024))
a('s_add_u32 s%d, s%d, %d' % (sWAG, sWAG, L.WA))
a_offsets()
xm0, wam0 = {}, {}


def wa_pair(pr):
    for i in range(3):
        wa_dma(pr, i)()
    wam0[pr] = a.vm_mark()


wa_pair(0)
for u in range(2):
    for t in a_xload(u):
        a(t)
    xm0[u] = a.vm_mark()
wa_pair(1)
a_setup()
a('s_mul_i32 s%d, s%d, 14336' % (sA, sW))
a('v_add_u32 v252, s%d, v1' % sA)
a('s_and_b32 s%d, s%d, 1' % (sA, sW))
a('s_mul_i32 s%d, s%d, 14336' % (sA, sA))
a('v_add_u32 v242, s%d, v243' % sA)
a.wait_vm(wam0[0])
a('s_barrier')
a('s_lshl_b32 s%d, s%d, 5' % (sA, sJ))
a('s_add_u32 s%d, s%d, s%d' % (sA, sA, sG))
a('s_lshl_b32 s%d, s%d, 2' % (sA, sA))
a('s_add_u32 s%d, s%d, %d' % (sA, sA, L.FP))
a('s_cmp_eq_u32 s%d, 0' % sW)
a('s_cselect_b32 s%d, s%d, 0x%x' % (sA, sA, INV))
a('v_mov_b32 v2, s%d' % sA)
a('s_mov_b64 exec, 1')
a('buffer_store_dword v%d, v2, %s, 0 offen sc1' % (V_T, srd(S_WS)))
a.vm_issued -= 1
a('s_mov_b64 exec, -1')
stamp()
emit_a_loop(True, xm0, wam0)
n_join = a.vm_issued - amark['ep']
CSQ = WBUF[0]
a('v_cmp_eq_u32 vcc, 0, v%d' % V_TOK)
a('s_lshl_b32 s%d, s%d, 6' % (sA, sW))
a('v_add_u32 v252, s%d, v244' % sA)
a('s_and_b32 s%d, s%d, 1' % (sA, sW))
a('s_lshl_b32 s%d, s%d, 6' % (sA, sA))
a('v_add_u32 v242, s%d, v245' % sA)
a('s_mov_b64 exec, vcc')
a('ds_write_b128 v252, %s' % vr(CSACC + 8))
a('s_mov_b64 exec, 0xffff')
a('ds_write_b32 v242, v%d offset:256' % (CSACC + 12))
a('s_mov_b64 exec, -1')
a('s_waitcnt lgkmcnt(0)')
a('s_barrier')
for p in range(4):
    a('ds_read_b128 %s, v244 offset:%d' % (vr(WBUF[0] + 4 * p), 64 * p))
for d in range(2):
    a('ds_read_b32 v%d, v245 offset:%d' % (WBUF[0] + 16 + d, 64 * (4 + d)))
with OutOfLine():
    a.label('L_pair')
    a_flag_addr(2)
    a('s_mov_b32 s%d, 0x3fff0000' % sMK)
    ASLEEP = int(([x[9:] for x in sys.argv if x.startswith('--asleep=')] + ['0'])[0])
    poll(2, None, ASLEEP)
    stamp()
    a_offsets()
    xmark = {}
    for u in range(LOOK):
        for t in a_xload(u):
            a(t)
        xmark[u] = a.vm_mark()
    a_setup()
    emit_a_loop(False, xmark, None)
    assert a.vm_issued - amark['ep'] == n_join
    ep_mark = amark['ep']
    a('s_branch L_a_epi')
a.label('L_a_epi')
stamp()
a('s_add_u32 s%d, s%d, 2' % (sA, sW))
a('s_mul_i32 s%d, s%d, 14336' % (sA, sA))
a('v_add_u32 v246, s%d, v1' % sA)
a('v_add_u32 v247, %d, v1' % L.L_R2)
a('s_cmp_lt_u32 s%d, 2' % sW)
a('s_cselect_b64 vcc, -1, 0')
a('v_cndmask_b32 v252, v247, v246, vcc')
a('v_cndmask_b32 v253, v246, v247, vcc')
MROW, RROW = 114, 126
for t in range(3):
    a('ds_read_b128 %s, v163 offset:%d' % (vr(MROW + 4 * t), 128 * t))
    a('ds_read_b128 %s, v163 offset:%d' % (vr(RROW + 4 * t), 128 * t + 64))
a.wait_vm(amark['halo'])
a('s_barrier')
HOP = 90
def h_reads(u):
    r = HOP + 8 * (u % 3)
    return ['ds_read_b128 %s, v252 offset:%d' % (vr(r), 1024 * u), 'ds_read_b128 %s, v253 offset:%d' % (vr(r + 4), 1024 * u)]
for u in range(2):
    for x in h_reads(u):
        a(x)
rest = []
for u in range(14):
    if u + 2 < 14:
        for x in h_reads(u + 2):
            a(x)
    a('s_waitcnt lgkmcnt(%d)' % (4 if u < 12 else (2 if u == 12 else 0)))
    r = HOP + 8 * (u % 3)
    a('%s %s, %s, %s, %s' % (MFMA, vr(HACC), vr(r), vr(r + 4), '0' if u == 0 else vr(HACC)))
    if rest:
        a(rest.pop(0))
for x in rest:
    a(x)
stamp2()
early_check(249, 248, ep_mark)
BW = 2
a('s_lshl_b32 s%d, s%d, 6' % (sA, sJ))
a('s_lshl_b32 s%d, s%d, 2' % (sB, sW))
a('s_add_u32 s%d, s%d, s%d' % (sA, sA, sB))
a('s_lshl_b32 s%d, s%d, 10' % (sA, sA))
a('s_add_u32 s20, s%d, %d' % (sA, L.WB))
for t in range(1, 4):
    a('s_add_u32 s%d, s20, %d' % (20 + t, 16 * 1024 * t))
wb_all = ['buffer_load_dwordx4 %s, v1, %s, s%d offen offset:%d sc1' % (vr(BW + (i * 4 + t) * 4), srd(S_WS), 20 + t, 1024 * i)
          for i in range(4) for t in range(4)]
for x in wb_all[13:16]:
    a(x)
wb_loads = wb_all[8:13]
A_RES, A_B2 = 224, 232


def red_addrs():
    a('s_lshl_b32 s%d, s%d, 13' % (sA, sW))
    a('s_add_u32 s%d, s%d, %d' % (sA, sA, L.L_R2))
    a('v_add_u32 v248, s%d, v1' % sA)
    a('s_and_b32 s%d, s%d, 1' % (sA, sW))
    a('s_lshl_b32 s%d, s%d, 11' % (sA, sA))
    a('s_lshr_b32 s%d, s%d, 1' % (sB, sW))
    a('s_lshl_b32 s%d, s%d, 12' % (sB, sB))
    a('s_add_u32 s%d, s%d, s%d' % (sA, sA, sB))
    a('s_add_u32 s%d, s%d, %d' % (sA, sA, L.L_R2))
    a('v_add_u32 v249, s%d, v1' % sA)


def publish_setup(xbase, sbase, fbase, per_pair, fsh):
    owner_index()
    a('s_mul_i32 s%d, s%d, 14' % (sCc, sB))
    a('s_add_u32 s%d, s%d, s%d' % (sCc, sCc, sA))
    a('s_lshl_b32 s%d, s%d, 10' % (sPX, sCc))
    a('s_lshl_b32 s%d, s%d, 7' % (sPS, sCc))
    a('s_lshl_b32 s%d, s%d, %d' % (sPF, sB, fsh))
    a('s_add_u32 s%d, s%d, s%d' % (sPF, sPF, sA))
    a('s_lshl_b32 s%d, s%d, 2' % (sPF, sPF))
    for dst, arr in ((sPX, xbase), (sPS, sbase), (sPF, fbase)):
        if per_pair:
            pair_base(sD, arr)
            a('s_add_u32 s%d, s%d, s%d' % (dst, dst, sD))
        else:
            a('s_add_u32 s%d, s%d, %d' % (dst, dst, arr))
    a('s_add_u32 s%d, s%d, %d' % (sPX2, sPX, 2 * 14336))


def owner_index():
    a('s_lshr_b32 s%d, s%d, 1' % (sB, sW))
    a('s_lshl_b32 s%d, s%d, 2' % (sCc, sG))
    a('s_add_u32 s%d, s%d, s%d' % (sB, sB, sCc))
    a('s_and_b32 s%d, s%d, 1' % (sA, sW))
    a('s_lshl_b32 s%d, s%d, 1' % (sCc, sJ))
    a('s_add_u32 s%d, s%d, s%d' % (sA, sA, sCc))


a('s_cmp_eq_u32 s%d, 0' % sPAIR)
a('s_cbranch_scc0 L_a_nores')
owner_index()
a('s_mul_i32 s%d, s%d, 14' % (sB, sB))
a('s_add_u32 s%d, s%d, s%d' % (sB, sB, sA))
a('s_lshl_b32 s%d, s%d, 10' % (sB, sB))
a('s_add_u32 s%d, s%d, %d' % (sB, sB, L.XA[0]))
a('buffer_load_dwordx4 %s, v1, %s, s%d offen sc1' % (ar(A_RES), srd(S_WS), sB))
a('s_add_u32 s%d, s%d, %d' % (sB, sB, 2 * 14336))
a('buffer_load_dwordx4 %s, v1, %s, s%d offen sc1' % (ar(A_RES + 4), srd(S_WS), sB))
build_srd(S_TMP, P_B2, 896)
a('s_lshl_b32 s%d, s%d, 6' % (sB, sA))
a('v_lshlrev_b32 v240, 3, v%d' % V_G)
a('buffer_load_dwordx2 v[228:229], v240, %s, s%d offen' % (srd(S_TMP), sB))
a('buffer_load_dwordx2 v[230:231], v240, %s, s%d offen offset:32' % (srd(S_TMP), sB))
a.label('L_a_nores')
CSQ = WBUF[0]
QF, KF, VF = 140, 148, 160


def pk(op, dst, srcs, neg=None):
    ops, lo, hi = [], [], []
    for x in srcs:
        if isinstance(x, tuple):
            ops.append(vr(x[1] & ~1, 2))
            lo.append(x[1] & 1)
            hi.append(x[1] & 1)
        else:
            ops.append(vr(x, 2))
            lo.append(0)
            hi.append(1)
    t = '%s %s, %s op_sel:[%s] op_sel_hi:[%s]' % (op, vr(dst, 2), ', '.join(ops), ','.join(map(str, lo)), ','.join(map(str, hi)))
    if neg is not None:
        m = ','.join('1' if k == neg else '0' for k in range(len(srcs)))
        t += ' neg_lo:[%s] neg_hi:[%s]' % (m, m)
    return t


for t in range(2):
    for hf in range(2):
        r = AQ + (t * 2 + hf) * 4
        for i in (0, 2):
            a(pk('v_pk_fma_f32', r + i, [('b', SM + t + 1), CSQ + 4 * hf + i, r + i], 0))
        for p in range(2):
            a('v_cvt_pk_bf16_f32 v%d, v%d, v%d' % (QF + 4 * t + 2 * hf + p, r + 2 * p, r + 2 * p + 1))
        a(wb_all[2 * t + hf])
for t in range(2):
    for hf in range(2):
        r = AK + (t * 2 + hf) * 4
        for i in (0, 2):
            a(pk('v_pk_fma_f32', r + i, [('b', SM + t + 1), CSQ + 8 + 4 * hf + i, r + i], 0))
        for p in range(2):
            a('v_cvt_pk_bf16_f32 v%d, v%d, v%d' % (KF + 4 * (t + 1) + 2 * hf + p, r + 2 * p, r + 2 * p + 1))
        a(wb_all[4 + 2 * t + hf])
L_E, L_HX = L.L_R2 + 16384, L.L_R2 + 26624
a('s_lshl_b32 s%d, s%d, 11' % (sA, sW))
a('s_add_u32 s%d, s%d, %d' % (sA, sA, L_E))
a('v_add_u32 v246, s%d, v1' % sA)
a('s_lshl_b32 s%d, s%d, 10' % (sA, sW))
a('s_add_u32 s%d, s%d, %d' % (sA, sA, L_HX))
a('v_add_u32 v247, s%d, v1' % sA)
a('s_waitcnt lgkmcnt(0)')
for t in range(2):
    for d in range(2):
        r = AV + (t * 2 + d) * 4
        for i in (0, 2):
            a(pk('v_pk_fma_f32', r + i, [MROW + 4 * (t + 1) + i, ('b', CSQ + 16 + d), r + i], 0))
        for p in range(2):
            a('v_cvt_pk_bf16_f32 v%d, v%d, v%d' % (VF + 6 * d + 2 * (t + 1) + p, r + 2 * p, r + 2 * p + 1))
a('ds_write_b128 v246, %s offset:2048' % vr(KF + 8))
a('ds_write_b64 v246, %s offset:3072' % vr(VF + 4, 2))
a('ds_write_b64 v246, %s offset:3080' % vr(VF + 10, 2))
a('ds_write_b128 v247, %s' % vr(HACC))
pair_base(sA, L.O)
a('s_lshl_b32 s%d, s%d, 4' % (sB, sGT))
a('s_add_u32 s%d, s%d, s%d' % (sB, sB, sC))
a('s_lshl_b32 s%d, s%d, 10' % (sB, sB))
a('s_add_u32 s32, s%d, s%d' % (sA, sB))
a('s_add_u32 s33, s32, 16384')
stamp2()
a('s_waitcnt lgkmcnt(0)')
a('s_barrier')
stamp2()
SS = 172
a('s_cmp_eq_u32 s%d, 0' % sW)
a('s_cbranch_scc1 L_a_halo')
a('ds_read_b128 %s, v246' % vr(KF))
a('ds_read_b64 %s, v246 offset:1024' % vr(VF, 2))
a('ds_read_b64 %s, v246 offset:1032' % vr(VF + 6, 2))
a('s_waitcnt lgkmcnt(0)')
a('s_branch L_a_prev')
a.label('L_a_halo')
a('v_add_u32 v247, %d, v1' % L_HX)
for p in range(4):
    a('ds_read_b128 %s, v247 offset:%d' % (vr(SS + 4 * p), 1024 * p))
a('s_waitcnt lgkmcnt(0)')
for hf in range(2):
    r = SS + 4 * hf
    for i in (0, 2):
        a(pk('v_pk_fma_f32', r + i, [('b', SM), CSQ + 8 + 4 * hf + i, r + i], 0))
    for p in range(2):
        a('v_cvt_pk_bf16_f32 v%d, v%d, v%d' % (KF + 2 * hf + p, r + 2 * p, r + 2 * p + 1))
for d in range(2):
    r = SS + 8 + 4 * d
    for i in (0, 2):
        a(pk('v_pk_fma_f32', r + i, [MROW + i, ('b', CSQ + 16 + d), r + i], 0))
    for p in range(2):
        a('v_cvt_pk_bf16_f32 v%d, v%d, v%d' % (VF + 6 * d + p, r + 2 * p, r + 2 * p + 1))
a.label('L_a_prev')
a('s_nop 1')
for t in range(2):
    a('%s %s, %s, %s, 0' % (MFMA, vr(SS + 8 * t), vr(KF + 4 * t), vr(QF + 4 * t)))
    a('%s %s, %s, %s, 0' % (MFMA, vr(SS + 8 * t + 4), vr(KF + 4 * t + 4), vr(QF + 4 * t)))
SCALE = (28.0 ** -0.5) * 1.4426950408889634
MX, CC, LS, TMPR = 190, 192, 194, 196
PF = 200
SUMT = [(224, 226), (232, 188)]
a('v_mov_b32 v198, 0xff800000')
seq = [[], []]
for t in range(2):
    s_ = SS + 8 * t
    q = seq[t]
    rr = lambda e: RROW + 4 * (t + (e >> 2)) + (e & 3)
    for e in range(0, 8, 2):
        q.append(pk('v_pk_mul_f32', s_ + e, [s_ + e, rr(e)]))
    for e in range(8):
        mk = (sM0 if t == 0 else sM1) + 2 * e if e < 4 else sM2 + 2 * (e - 4)
        q.append('v_cndmask_b32 v%d, v198, v%d, %s' % (s_ + e, s_ + e, sp(mk)))
    q.append('v_max3_f32 v%d, v%d, v%d, v%d' % (MX + t, s_, s_ + 1, s_ + 2))
    q.append('v_max3_f32 v%d, v%d, v%d, v%d' % (MX + t, MX + t, s_ + 3, s_ + 4))
    q.append('v_max3_f32 v%d, v%d, v%d, v%d' % (MX + t, MX + t, s_ + 5, s_ + 6))
    q.append('v_max_f32 v%d, v%d, v%d' % (MX + t, MX + t, s_ + 7))
    q += xg_reduce(MX + t, TMPR + t, 'v_max_f32')
    q.append('v_mul_f32 v%d, %s, v%d' % (CC + t, f2h(SCALE), SR + t + 1))
    q.append('v_mul_f32 v%d, v%d, v%d' % (MX + t, MX + t, CC + t))
    for e in range(0, 8, 2):
        q.append(pk('v_pk_fma_f32', s_ + e, [s_ + e, ('b', CC + t), ('b', MX + t)], 2))
    for e in range(8):
        q.append('v_exp_f32 v%d, v%d' % (s_ + e, s_ + e))
    u_, u2 = SUMT[t]
    q.append(pk('v_pk_add_f32', u_, [s_, s_ + 2]))
    q.append(pk('v_pk_add_f32', u2, [s_ + 4, s_ + 6]))
    q.append(pk('v_pk_add_f32', u_, [u_, u2]))
    q.append('v_add_f32 v%d, v%d, v%d' % (LS + t, u_, u_ + 1))
    q += xg_reduce(LS + t, TMPR + t)
    q.append('v_rcp_f32 v%d, v%d' % (LS + t, LS + t))
    for e in range(0, 8, 2):
        q.append(pk('v_pk_mul_f32', s_ + e, [s_ + e, rr(e)]))
    for p in range(4):
        q.append('v_cvt_pk_bf16_f32 v%d, v%d, v%d' % (PF + 4 * t + p, s_ + 2 * p, s_ + 2 * p + 1))
merged = [z for xy in zip(*seq) for z in xy]
gap = len(merged) // (len(wb_loads) + 1)
for k, x in enumerate(merged):
    a(x)
    if k % gap == gap - 1 and wb_loads:
        a(wb_loads.pop(0))
assert not wb_loads
stamp2()
OO = 208
for t in range(2):
    for d in range(2):
        a('%s %s, %s, %s, 0' % (MFMA, vr(OO + 8 * t + 4 * d), vr(VF + 6 * d + 2 * t), vr(PF + 4 * t)))
for t in range(2):
    for e in range(0, 8, 2):
        a(pk('v_pk_mul_f32', OO + 8 * t + e, [OO + 8 * t + e, ('b', LS + t)]))
    for p in range(4):
        a('v_cvt_pk_bf16_f32 v%d, v%d, v%d' % (PF + 4 * t + p, OO + 8 * t + 2 * p, OO + 8 * t + 2 * p + 1))
    store('buffer_store_dwordx4 %s, v1, %s, s%d offen' % (vr(PF + 4 * t), srd(S_WS), 32 + t), sFD)
o_mark = a.vm_mark()
stamp2()
pair_base(sA, L.FA)
a('s_lshl_b32 s%d, s%d, 4' % (sB, sGT))
a('s_add_u32 s%d, s%d, s%d' % (sB, sB, sC))
a('s_lshl_b32 s%d, s%d, 2' % (sB, sB))
a('s_add_u32 s%d, s%d, s%d' % (sA, sA, sB))
a('v_lshlrev_b32 v241, 6, v0')
a('v_add_u32 v241, s%d, v241' % sA)
pair_base(sA, L.FA)
a('s_lshl_b32 s%d, s%d, 8' % (sB, sG))
a('s_add_u32 s%d, s%d, s%d' % (sA, sA, sB))
a('v_lshl_add_u32 v240, v0, 2, s%d' % sA)
a('s_lshl_b32 s%d, s%d, 2' % (sB, sW))
a('s_lshl_b32 s%d, 0x000f000f, s%d' % (sMK, sB))
a('s_mov_b32 s%d, s%d' % (sMK + 1, sMK))
red_addrs()
publish_setup(L.XB, L.SB, L.FB, True, 4)
a('s_mov_b32 s%d, s%d' % (sPC, sFD))
a('s_mov_b32 s%d, s%d' % (sPFC, sFAST))
pair_base(sA, L.O)
a('s_lshl_b32 s%d, s%d, 6' % (sB, sG))
a('s_lshl_b32 s%d, s%d, 2' % (sCc, sW))
a('s_add_u32 s%d, s%d, s%d' % (sB, sB, sCc))
a('s_lshl_b32 s%d, s%d, 10' % (sB, sB))
a('s_add_u32 s20, s%d, s%d' % (sA, sB))
for t in range(1, 4):
    a('s_add_u32 s%d, s20, %d' % (20 + t, 16384 * t))
a.wait_vm(o_mark)
a('s_mov_b64 exec, 3')
store('buffer_store_dword v%d, v241, %s, 0 offen' % (V_T, srd(S_WS)), sFAST)
a('s_mov_b64 exec, -1')
stamp()
a('s_cmp_eq_u32 s%d, 7' % sJ)
a('s_cbranch_scc1 L_next_pair')


def wd_bases():
    a('s_lshl_b32 s%d, s%d, 2' % (sA, sJ))
    a('s_mul_i32 s%d, s%d, %d' % (sA, sA, 56 * 1024))
    a('s_mul_i32 s%d, s%d, %d' % (sB, sW, 14 * 1024))
    a('s_add_u32 s%d, s%d, s%d' % (sA, sA, sB))
    a('s_add_u32 s%d, s%d, %d' % (sO, sA, L.WD))
    quarter_offsets(4, 56 * 1024)


def wd_load(fi):
    kk, t = fi >> 2, fi & 3
    return ('buffer_load_dwordx4 %s, v1, %s, s%d offen offset:%d sc1' %
            (ar(4 * fi), srd(S_WS), sO + 4 * t + (kk >> 2), 1024 * (kk & 3)))


WD_CH = [(0, 0), (0, 56)]
BO, BACC, BRD, BTMP = 66, 130, 194, 226
a('s_cmp_eq_u32 s%d, 0' % sPAIR)
a('s_cbranch_scc0 L_b_start')
for k in range(4):
    a('v_lshlrev_b32 v236, 16, v%d' % (228 + k))
    a('v_and_b32 v237, 0xffff0000, v%d' % (228 + k))
    a('v_accvgpr_write_b32 a%d, v236' % (A_B2 + 2 * k))
    a('v_accvgpr_write_b32 a%d, v237' % (A_B2 + 2 * k + 1))
a.label('L_b_start')
CWW = 66
sCI = 41
a('s_lshr_b32 s%d, s%d, 3' % (sA, sC))
a('s_mul_i32 s%d, s%d, 7' % (sA, sA))
a('s_add_u32 s%d, s%d, s%d' % (sCI, sA, sJ))
a('s_lshl_b32 s%d, s%d, 3' % (sA, sCI))
a('s_lshl_b32 s%d, s%d, 1' % (sB, sW))
a('s_add_u32 s%d, s%d, s%d' % (sA, sA, sB))
a('s_mul_i32 s%d, s%d, %d' % (sB, sA, 14 * 1024))
a('s_add_u32 s%d, s%d, %d' % (sO, sB, L.WC))
quarter_offsets(2, 14 * 1024)


def c_wload(idx):
    u, k = idx >> 1, idx & 1
    return ('buffer_load_dwordx4 %s, v1, %s, s%d offen offset:%d sc1' %
            (vr(CWW + 4 * idx), srd(S_WS), sO + 4 * k + (u >> 2), 1024 * (u & 3)))


def red_writes(acc, tile):
    return ['ds_write_b128 v248, %s offset:%d' % (vr(acc + 4 * t), (tile >> 1) * 32768 + (tile & 1) * 4096 + t * 1024)
            for t in range(4)]


def red_reads(st, rd):
    return ['ds_read_b128 %s, v249 offset:%d' % (vr(rd + (b * 2 + k) * 4), st * 32768 + b * 8192 + k * 1024)
            for b in range(4) for k in range(2)]


def add8(dst, x, y, packed):
    if packed:
        return ['v_pk_add_f32 %s, %s, %s' % (vr(dst + e, 2), vr(x + e, 2), vr(y + e, 2)) for e in range(0, 8, 2)]
    return ['v_add_f32 v%d, v%d, v%d' % (dst + e, x + e, y + e) for e in range(8)]


def finish_pre(st, is_d, tmp):
    res = A_RES + 4 * st
    o = ['v_accvgpr_read_b32 v%d, a%d' % (tmp + 8 + p, res + p) for p in range(4)]
    for p in range(4):
        o += ['v_lshlrev_b32 v%d, 16, v%d' % (tmp + 2 * p, tmp + 8 + p),
              'v_and_b32 v%d, 0xffff0000, v%d' % (tmp + 2 * p + 1, tmp + 8 + p)]
    if is_d:
        o += ['v_accvgpr_read_b32 v%d, a%d' % (tmp + 8 + e, A_B2 + e) for e in range(8)]
        o += ['v_add_f32 v%d, v%d, v%d' % (tmp + e, tmp + e, tmp + 8 + e) for e in range(8)]
    return o


def finish_sum(st, rd, tmp, pk, packed):
    o = add8(rd, rd, rd + 8, packed) + add8(rd + 16, rd + 16, rd + 24, packed) + add8(rd, rd, rd + 16, packed)
    o += add8(tmp, tmp, rd, packed)
    o += ['v_cvt_pk_bf16_f32 v%d, v%d, v%d' % (pk + p, tmp + 2 * p, tmp + 2 * p + 1) for p in range(4)]
    o += ['v_accvgpr_write_b32 a%d, v%d' % (A_RES + 4 * st + p, pk + p) for p in range(4)]
    return o


def owner_stats(tmp, s1, t):
    a('v_pk_add_f32 %s, %s, %s' % (vr(t, 2), vr(tmp, 2), vr(tmp + 2, 2)))
    a('v_pk_add_f32 %s, %s, %s' % (vr(t + 2, 2), vr(tmp + 4, 2), vr(tmp + 6, 2)))
    a('v_pk_add_f32 %s, %s, %s' % (vr(t, 2), vr(t, 2), vr(t + 2, 2)))
    a('v_add_f32 v%d, v%d, v%d' % (s1, t, t + 1))
    a('v_pk_mul_f32 %s, %s, %s' % (vr(t, 2), vr(tmp, 2), vr(tmp, 2)))
    for e in (2, 4, 6):
        a('v_pk_fma_f32 %s, %s, %s, %s' % (vr(t, 2), vr(tmp + e, 2), vr(tmp + e, 2), vr(t, 2)))
    a('v_add_f32 v%d, v%d, v%d' % (s1 + 1, t, t + 1))
    for x, y in zip(xg_reduce(s1, t), xg_reduce(s1 + 1, t + 1)):
        a(x)
        a(y)


def publish_data(st, pk):
    store('buffer_store_dwordx4 %s, v1, %s, s%d offen offset:0' % (vr(pk), srd(S_WS), sPX if st == 0 else sPX2), sPC)


def publish_stats(tmps, t, s1):
    a('v_and_b32 v%d, 15, v0' % V_TOK)
    a('v_lshlrev_b32 v%d, 3, v%d' % (t + 4, V_TOK))
    for st in range(2):
        owner_stats(tmps[st], s1 + 2 * st, t)
    a('s_mov_b64 exec, 0xffff')
    store('buffer_store_dwordx2 %s, v%d, %s, s%d offen' % (vr(s1, 2), t + 4, srd(S_WS), sPS), sPC)
    a('s_add_u32 s%d, s%d, %d' % (sPS, sPS, 2 * 1792))
    store('buffer_store_dwordx2 %s, v%d, %s, s%d offen' % (vr(s1 + 2, 2), t + 4, srd(S_WS), sPS), sPC)
    a('s_mov_b64 exec, -1')


def publish_flags(lsh, between=()):
    a('v_lshlrev_b32 v241, %d, v0' % lsh)
    a('v_add_u32 v241, s%d, v241' % sPF)
    set_flags(241, 2, sPFC, V_T, between)


def run_tiles(tile_items, extras):
    for tile in range(4):
        if tile and '--diag3' in sys.argv:
            stamp()
        items = tile_items(tile)
        ex = list(extras.get(tile, []))
        free = [k for k, it in enumerate(items) if k >= 3 and not it[2]]
        per = -(-len(ex) // max(1, len(free))) if ex else 0
        for k, (pre, m, post) in enumerate(items):
            for x in pre:
                x()
            a(m)
            if post:
                post()
            elif k >= 3:
                for _ in range(per):
                    if ex:
                        x = ex.pop(0)
                        if callable(x):
                            x()
                        else:
                            a(x)
        assert not ex


poll(240)
a('s_barrier')
a('s_or_b32 s%d, s2, s%d' % (sA, sW))
a('s_or_b32 s%d, s%d, s%d' % (sA, sA, sPAIR))
a('s_cmp_eq_u32 s%d, 0' % sA)
a('s_cbranch_scc0 L_noepoch')
a('s_add_u32 s%d, s%d, 1' % (sA, sEP))
a('v_mov_b32 v239, s%d' % sA)
a('s_mov_b64 exec, 1')
a('buffer_store_dword v239, off, %s, 0 sc1' % srd(S_WS))
a.vm_issued -= 1
a('s_mov_b64 exec, -1')
a.label('L_noepoch')
stamp()


def b_oload(tile, i):
    return 'buffer_load_dwordx4 %s, v1, %s, s%d offen offset:%d sc1' % (vr(BO + (tile * 4 + i) * 4), srd(S_WS), 20 + tile, 1024 * i)


om = {}
for tile in range(2):
    for i in range(4):
        a(b_oload(tile, i))
        om[(tile, i)] = a.vm_mark()


def b_tile(tile):
    items = []
    for i in range(4):
        for t in range(4):
            r = BACC + (tile * 4 + t) * 4
            pre = [(lambda tl=tile, ii=i: a.wait_vm(om[(tl, ii)]))] if t == 0 else []
            post = None
            if tile < 2 and t == 1:
                def post(tl=tile + 2, ii=i):
                    a(b_oload(tl, ii))
                    om[(tl, ii)] = a.vm_mark()
            if tile >= 2 and t == 1:
                def post(idx=4 * (tile - 2) + i):
                    a(c_wload(idx))
            items.append((pre, '%s %s, %s, %s, %s' % (MFMA, vr(r), vr(BW + (i * 4 + t) * 4), vr(BO + (tile * 4 + i) * 4),
                                                      '0' if i == 0 else vr(r)), post))
    return items


BT0, BT1, BPK = 226, 2, 18
run_tiles(b_tile, {1: red_writes(BACC, 0), 2: red_writes(BACC + 16, 1), 3: red_writes(BACC + 32, 2)})
stamp2()
for x in red_writes(BACC + 48, 3):
    a(x)
for x in finish_pre(0, False, BT0) + finish_pre(1, False, BT1):
    a(x)
for i in range(8, 16):
    a(c_wload(i))
a('s_waitcnt lgkmcnt(0)')
a('s_barrier')
stamp2()
BRD1 = 34
for x in red_reads(0, BRD) + red_reads(1, BRD1):
    a(x)
NMID = int(([x[7:] for x in sys.argv if x.startswith('--nmid=')] + ['4'])[0])
for i in range(16, 16 + NMID):
    a(c_wload(i))
a('s_waitcnt lgkmcnt(8)')
for x in finish_sum(0, BRD, BT0, BPK, True):
    a(x)
publish_data(0, BPK)
a('s_waitcnt lgkmcnt(0)')
for x in finish_sum(1, BRD1, BT1, BPK + 4, True):
    a(x)
publish_data(1, BPK + 4)
stamp2()
publish_stats([BT0, BT1], 36, 32)
b_mark = a.vm_mark()
a('v_lshlrev_b32 v236, 7, v0')
a('v_add_u32 v236, s%d, v236' % sPF)
for i in range(16 + NMID, 28):
    a(c_wload(i))
CA = [2, 10]
XF, NXF = 18, 8
GTMP, GH = 50, 58
CCS, CB1, CB1R = 178, 186, 194
CSTR = 198
CMR = 214
VGA = 218
a('v_lshrrev_b32 v%d, 4, v0' % V_G)
a('v_and_b32 v%d, 15, v0' % V_TOK)
pair_base(sA, L.FB)
a('s_lshl_b32 s%d, s%d, 9' % (sB, sS))
a('s_add_u32 s%d, s%d, s%d' % (sA, sA, sB))
a('v_lshl_add_u32 v240, v0, 2, s%d' % sA)
a('s_mov_b32 s%d, 0x3fff3fff' % sMK)
a('s_mov_b32 s%d, 0x3fff3fff' % (sMK + 1))
pair_base(20, L.XB)
a('s_mul_i32 s%d, s%d, %d' % (sB, sS, 8 * 14336))
a('s_add_u32 s20, s20, s%d' % sB)
a('s_lshl_b32 s%d, s%d, 12' % (sB, sW))
a('s_add_u32 s20, s20, s%d' % sB)
a('s_add_u32 s21, s%d, %d' % (sB, L.L_R2))
pair_base(22, L.SB)
a('s_lshl_b32 s%d, s%d, 3' % (sB, sS))
a('s_add_u32 s%d, s%d, s%d' % (sB, sB, sW))
a('s_mul_i32 s%d, s%d, 1792' % (sB, sB))
a('s_add_u32 s22, s22, s%d' % sB)
a('s_add_u32 s23, s22, %d' % (4 * 1792))
pair_base(32, L.H)
a('s_mul_i32 s%d, s%d, %d' % (sB, sS, 8 * 56 * 1024))
a('s_add_u32 s32, s32, s%d' % sB)
a('s_lshl_b32 s%d, s%d, 2' % (sB, sCI))
a('s_add_u32 s%d, s%d, s%d' % (sB, sB, sW))
a('s_lshl_b32 s%d, s%d, 10' % (sCc, sB))
a('s_add_u32 s32, s32, s%d' % sCc)
pair_base(33, L.FC)
a('s_lshl_b32 s%d, s%d, 11' % (sCc, sS))
a('s_add_u32 s33, s33, s%d' % sCc)
a('s_lshl_b32 s%d, s%d, 2' % (sB, sB))
a('s_add_u32 s33, s33, s%d' % sB)
a('v_mov_b32 v241, s33')
a('v_mov_b32 v242, 0x%x' % INV)
a('v_cmp_eq_u32 vcc, 0, v0')
a('v_cndmask_b32 v241, v242, v241, vcc')
a('v_lshlrev_b32 v238, 3, v%d' % V_TOK)
a('v_lshl_add_u32 v238, v%d, 7, v238' % V_G)
a('v_mov_b32 v242, 0x%x' % INV)
a('v_cmp_lt_u32 vcc, 1, v%d' % V_G)
a('v_cndmask_b32 v239, 0, v242, vcc')
a('v_or_b32 v239, v239, v238')
a('v_add_u32 v252, %d, v1' % L.L_R2)
a('v_lshlrev_b32 v246, 3, v%d' % V_TOK)
a('v_add_u32 v246, %d, v246' % L.L_STC)
GA = 2.0 * 0.7978845608028654 * 1.4426950408889634
GB = GA * 0.044715
a('v_mov_b32 v%d, %s' % (VGA, f2h(-GA)))
a('v_mov_b32 v%d, %s' % (VGA + 1, f2h(-GA)))
a('s_mov_b32 s34, %s' % f2h(-GB))
a('s_mov_b32 s35, %s' % f2h(-GB))
wd_bases_hi = True
a('s_lshl_b32 s%d, s%d, 3' % (sA, sCI))
a('s_lshl_b32 s%d, s%d, 1' % (sB, sW))
a('s_add_u32 s%d, s%d, s%d' % (sA, sA, sB))
a('s_lshl_b32 s24, s%d, 5' % sA)
a('v_lshlrev_b32 v248, 3, v%d' % V_G)
for k in range(2):
    a('buffer_load_dwordx2 %s, v248, %s, s24 offen offset:%d' % (vr(CB1R + 2 * k, 2), srd(S_B1), 32 * k))
a.wait_vm(b_mark)
a('s_mov_b64 exec, 3')
store('buffer_store_dword v%d, v236, %s, 0 offen' % (V_T, srd(S_WS)), sPFC)
a('s_mov_b64 exec, -1')
stamp()

poll(240, 256)
stamp()


TORD = [0, 4, 1, 5, 2, 6, 3, 7]


def c_dma_setup(t):
    return ['s_add_u32 s36, s20, %d' % (TORD[t] * 14336), 's_add_u32 m0, s21, %d' % ((t & 3) * 16384)]


def c_dma(t, i):
    return 'buffer_load_dwordx4 v1, %s, s36 offen offset:%d sc1 lds' % (srd(S_WS), 1024 * i)


dm = {}
for x in c_dma_setup(0) + [c_dma(0, i) for i in range(4)]:
    a(x)
dm[0] = a.vm_mark()
wlate = {}
for tt in range(2):
    for i in range(4):
        a('buffer_load_dwordx2 %s, v%d, %s, s%d offen offset:%d sc1' %
          (vr(CSTR + 8 * tt + 2 * i, 2), 239 if i == 3 else 238, srd(S_WS), 22 + tt, 512 * i))
amark['cst'] = a.vm_mark()
for x in c_dma_setup(1) + [c_dma(1, i) for i in range(4)]:
    a(x)
dm[1] = a.vm_mark()
wd_bases()
t0_loads = []
b1_unpack = []
for k in range(2):
    for p in range(2):
        b1_unpack += ['v_lshlrev_b32 v%d, 16, v%d' % (CB1 + 4 * k + 2 * p, CB1R + 2 * k + p),
                      'v_and_b32 v%d, 0xffff0000, v%d' % (CB1 + 4 * k + 2 * p + 1, CB1R + 2 * k + p)]
a.wait_vm(dm[0])
a('s_barrier')
stamp()


def c_xread(t, u):
    n = t * 14 + u
    return 'ds_read_b128 %s, v252 offset:%d' % (vr(XF + 4 * (n % NXF)), (t & 3) * 16384 + u * 1024)


def gelu_pre(t):
    z, m = CA[t & 1], CMR + 2 * (t & 1)
    P = range(0, 8, 2)
    o = ['v_pk_fma_f32 %s, %s, %s, %s op_sel_hi:[1,0,1] neg_lo:[0,1,0] neg_hi:[0,1,0]' % (vr(z + e, 2), vr(CCS + e, 2), vr(m, 2), vr(z + e, 2)) for e in P]
    o += ['v_pk_fma_f32 %s, %s, %s, %s op_sel:[0,1,0] op_sel_hi:[1,1,1]' % (vr(z + e, 2), vr(z + e, 2), vr(m, 2), vr(CB1 + e, 2)) for e in P]
    o += ['v_pk_mul_f32 %s, %s, %s' % (vr(GTMP + e, 2), vr(z + e, 2), vr(z + e, 2)) for e in P]
    o += ['v_pk_fma_f32 %s, %s, s[34:35], %s' % (vr(GTMP + e, 2), vr(GTMP + e, 2), vr(VGA, 2)) for e in P]
    o += ['v_pk_mul_f32 %s, %s, %s' % (vr(GTMP + e, 2), vr(GTMP + e, 2), vr(z + e, 2)) for e in P]
    return o


def gelu_mid():
    o = {}
    for e in range(8):
        o.setdefault(2 * e, []).append('v_exp_f32 v%d, v%d' % (GTMP + e, GTMP + e))
        o.setdefault(2 * e + 3, []).append('v_add_f32 v%d, 1.0, v%d' % (GTMP + e, GTMP + e))
    for e in range(6):
        o.setdefault(16 + 2 * e, []).append('v_rcp_f32 v%d, v%d' % (GTMP + e, GTMP + e))
    o.setdefault(25, []).append('v_rcp_f32 v%d, v%d' % (GTMP + 6, GTMP + 6))
    o.setdefault(27, []).append('v_rcp_f32 v%d, v%d' % (GTMP + 7, GTMP + 7))
    return o


def gelu_post(t):
    z, h = CA[t & 1], GH + 4 * (t & 1)
    o = ['v_pk_mul_f32 %s, %s, %s' % (vr(GTMP + e, 2), vr(GTMP + e, 2), vr(z + e, 2)) for e in range(0, 8, 2)]
    o += ['v_cvt_pk_bf16_f32 v%d, v%d, v%d' % (h + p, GTMP + 2 * p, GTMP + 2 * p + 1) for p in range(4)]
    return o


def gelu_packed(t):
    z, m, h = CA[t & 1], CMR + 2 * (t & 1), GH + 4 * (t & 1)
    P = range(0, 8, 2)
    for e in P:
        a('v_pk_fma_f32 %s, %s, %s, %s op_sel_hi:[1,0,1] neg_lo:[0,1,0] neg_hi:[0,1,0]' % (vr(z + e, 2), vr(CCS + e, 2), vr(m, 2), vr(z + e, 2)))
    for e in P:
        a('v_pk_fma_f32 %s, %s, %s, %s op_sel:[0,1,0] op_sel_hi:[1,1,1]' % (vr(z + e, 2), vr(z + e, 2), vr(m, 2), vr(CB1 + e, 2)))
    for e in P:
        a('v_pk_mul_f32 %s, %s, %s' % (vr(GTMP + e, 2), vr(z + e, 2), vr(z + e, 2)))
    for e in P:
        a('v_pk_fma_f32 %s, %s, s[34:35], %s' % (vr(GTMP + e, 2), vr(GTMP + e, 2), vr(VGA, 2)))
    for e in P:
        a('v_pk_mul_f32 %s, %s, %s' % (vr(GTMP + e, 2), vr(GTMP + e, 2), vr(z + e, 2)))
    for e in range(8):
        a('v_exp_f32 v%d, v%d' % (GTMP + e, GTMP + e))
    for e in P:
        a('v_pk_add_f32 %s, %s, 1.0 op_sel_hi:[1,0]' % (vr(GTMP + e, 2), vr(GTMP + e, 2)))
    for e in range(8):
        a('v_rcp_f32 v%d, v%d' % (GTMP + e, GTMP + e))
    for e in P:
        a('v_pk_mul_f32 %s, %s, %s' % (vr(GTMP + e, 2), vr(GTMP + e, 2), vr(z + e, 2)))
    for p in range(4):
        a('v_cvt_pk_bf16_f32 v%d, v%d, v%d' % (h + p, GTMP + 2 * p, GTMP + 2 * p + 1))


hmk, fmk = {}, {}


def h_store(t):
    def f():
        a('s_add_u32 s24, s32, %d' % (TORD[t] * 56 * 1024))
        store('buffer_store_dwordx4 %s, v1, %s, s24 offen' % (vr(GH + 4 * (t & 1)), srd(S_WS)), sFH)
        hmk[t] = a.vm_mark()
    return f


def h_flag(t):
    def f():
        a.wait_vm(hmk[t])
        store('buffer_store_dword v%d, v241, %s, 0 offen offset:%d' % (V_T, srd(S_WS), 256 * TORD[t]), sFAST)
    return f


def wd_block(fis, wave):
    def f():
        skip = newlab('L_wd')
        a('s_cmp_eq_u32 s24, %d' % wave)
        a('s_cbranch_scc0 %s' % skip)
        for fi in fis:
            a(wd_load(fi))
            a.vm_issued -= 1
        a.label(skip)
    return f


cst_fill = []
for tt in range(2):
    r = CSTR + 8 * tt
    for c_ in range(2):
        cst_fill += ['v_add_f32 v%d, v%d, v%d' % (r + c_, r + c_, r + 2 + c_),
                     'v_add_f32 v%d, v%d, v%d' % (r + 4 + c_, r + 4 + c_, r + 6 + c_),
                     'v_add_f32 v%d, v%d, v%d' % (r + c_, r + c_, r + 4 + c_)]
    cst_fill += xg_reduce(r, r + 2) + xg_reduce(r + 1, r + 3) + stats_finish(r, r + 1, r + 2, True)
a('s_lshl_b32 s%d, s%d, 7' % (sA, sW))
a('v_add_u32 v247, s%d, v246' % sA)
cst_fill += ['ds_write_b64 v247, %s' % vr(CSTR, 2), 'ds_write_b64 v247, %s offset:512' % vr(CSTR + 8, 2)] + b1_unpack
LOOKX = 6


A_CCS = 244


DFIRST = [194, 198, 202, 206, 210, 220, 224, 228, 232]
hm = {}


def emit_c_loop(wd_list):
    pass0 = bool(wd_list)
    if not pass0:
        for e in range(8):
            a('v_accvgpr_read_b32 v%d, a%d' % (CCS + e, A_CCS + e))
    for u in range(LOOKX):
        a(c_xread(0, u))
    for t in range(8):
        nonvec = {}

        def put(k, x):
            nonvec.setdefault(k, []).append(x)
        for u in range(14):
            n = t * 14 + u
            m = n + LOOKX
            if m < 8 * 14:
                put(2 * u + 1, c_xread(m // 14, m % 14))
            if u % 2 == 1 and n + 1 < 8 * 14:
                put(2 * u + 1, 's_waitcnt lgkmcnt(%d)' % min(LOOKX - 2, 8 * 14 - 1 - (n + 2)))
        if t < 7:
            nonvec[14] = [('bar', t + 1)] + nonvec.get(14, [])
        if t + 2 < 8:
            su = c_dma_setup(t + 2)
            put(0, su[0])
            put(0, su[1])
            for i in range(4):
                put(2 + 2 * i, ('dma', t + 2, i))
        if t >= 3:
            put(20, ('call', h_flag(t - 3)))
        if t == 1:
            put(0, 's_add_u32 s22, s25, 12288')
        if t == 5:
            def issue_d0():
                amark['d0'] = early_issue(244, 243)
            put(22, ('call', issue_d0))
        if t == 6:
            put(2, ('call', lambda: early_check(244, 243, amark['d0'])))
        if t in (6, 7):
            for k, q in zip((4, 6, 8, 20, 22) if t == 6 else (2, 4, 6, 8), range(0, 5) if t == 6 else range(5, 9)):
                put(k, ('h0', q))
        if t < 7:
            for k in (10, 12, 13, 16, 18, 22, 24, 26):
                if wd_list:
                    put(k, wd_load(wd_list.pop(0)))
        if t > 0:
            put(17, 'ds_read_b64 %s, v246 offset:%d' % (vr(CMR + 2 * (t & 1), 2), 128 * TORD[t]))
        if t == 0:
            for k, it in enumerate(t0_loads):
                put(k, ('t0', it))
        valu = gelu_mid() if t >= 1 else {}
        if t >= 2:
            for x in gelu_post(t - 2):
                a(x)
            h_store(t - 2)()
        if t >= 1:
            for x in gelu_pre(t - 1):
                a(x)
        fill = list(cst_fill) if t == 0 else []
        first = 8
        fi = 0
        for k in range(28):
            u, kk = k >> 1, k & 1
            n = t * 14 + u
            if t == 0 and k == 0:
                a('s_waitcnt lgkmcnt(%d)' % (LOOKX - 2))
            if t == 0 and kk == 0 and u in wlate:
                a.wait_vm(wlate[u])
            if t == 0 and k == first:
                a.wait_vm(amark['cst'])
            r = CA[t & 1] + 4 * kk
            a('%s %s, %s, %s, %s' % (MFMA, vr(r), vr(CWW + 4 * (2 * u + kk)), vr(XF + 4 * (n % NXF)), '0' if u == 0 else vr(r)))
            if pass0 and t == 0:
                a('%s %s, %s, %s, %s' % (MFMA, vr(CCS + 4 * kk), vr(CWW + 4 * (2 * u + kk)), ar(A_ONES), '0' if u == 0 else vr(CCS + 4 * kk)))
            for it in nonvec.get(k, []):
                if isinstance(it, str):
                    a(it)
                elif it[0] == 'bar':
                    a.wait_vm(dm[it[1]])
                    a('s_barrier')
                elif it[0] == 'dma':
                    a(c_dma(it[1], it[2]))
                    dm[it[1]] = a.vm_mark()
                elif it[0] == 'call':
                    it[1]()
                elif it[0] == 'h0':
                    q = it[1]
                    a('buffer_load_dwordx4 %s, v1, %s, s%d offen offset:%d sc1' %
                      (vr(DFIRST[q] if q < 9 else 66 + 4 * q), srd(S_WS), (25, 27, 29, 22)[q >> 2], 1024 * (q & 3)))
                    hm[q] = a.vm_mark()
                elif it[0] == 't0':
                    if it[1][0] == 'w':
                        a(c_wload(it[1][1]))
                        wlate[it[1][1] >> 1] = a.vm_mark()
                    else:
                        a(it[1][1])
                        amark['cst'] = a.vm_mark()
            for x in valu.get(k, []):
                a(x)
            if fill and k >= first:
                want = -(-(len(fill)) * (k - first + 1) // (28 - first))
                while fi < want:
                    a(fill[fi])
                    fi += 1
        assert fi == len(fill)
        if t == 0:
            a('s_waitcnt lgkmcnt(0)')
            a('s_barrier')
            a('ds_read_b64 %s, v246 offset:0' % vr(CMR, 2))
            if pass0:
                for e in range(8):
                    a('v_accvgpr_write_b32 a%d, v%d' % (A_CCS + e, CCS + e))
            a('s_waitcnt lgkmcnt(0)')
    assert not wd_list


pair_base(sA, L.FC)
a('s_lshl_b32 s%d, s%d, 10' % (sB, sG))
a('s_add_u32 s%d, s%d, s%d' % (sA, sA, sB))
a('s_mul_i32 s%d, s%d, 56' % (sB, sW))
a('s_add_u32 s%d, s%d, s%d' % (sA, sA, sB))
a('v_lshl_add_u32 v243, v0, 2, s%d' % sA)
a('s_mov_b32 s%d, 0x3fff' % sMK2)
a('s_mov_b32 s%d, 0' % (sMK2 + 1))
pair_base(sA, L.H)
a('s_mul_i32 s%d, s%d, %d' % (sB, sG, 4 * 56 * 1024))
a('s_add_u32 s%d, s%d, s%d' % (sA, sA, sB))
a('s_mul_i32 s%d, s%d, %d' % (sB, sW, 14 * 1024))
a('s_add_u32 s25, s%d, s%d' % (sA, sB))
a('s_add_u32 s27, s25, 4096')
a('s_add_u32 s29, s25, 8192')
n_before = a.vm_issued
dm_init = dict(dm)
a('s_cmp_eq_u32 s%d, 0' % sPAIR)
a('s_cbranch_scc0 L_c_loop1')
emit_c_loop(list(range(*WD_CH[1])))
extra = a.vm_issued - n_before
with OutOfLine():
    a.label('L_c_loop1')
    a.vm_issued = n_before
    dm.clear()
    dm.update(dm_init)
    emit_c_loop([])
    a('s_branch L_c_done')
a.label('L_c_done')
stamp()
DH, DACC, DRD = 66, 130, 194
DRING, DLOOK = 16, 10
red_addrs()
publish_setup(L.XA[1], L.SA[1], L.FX[1], False, 5)
a('s_and_b32 s%d, s%d, 1' % (sA, sG))
a('s_lshr_b32 s%d, s%d, 1' % (sB, sW))
a('s_and_b32 s%d, s%d, s%d' % (sA, sA, sB))
a('s_xor_b32 s%d, s%d, 1' % (sA, sA))
a('s_and_b32 s%d, s%d, s%d' % (sPC, sFD, sA))
a('s_mov_b32 s%d, s%d' % (sPFC, sFAST))
a('s_cmp_eq_u32 s%d, 0' % sA)
a('s_cselect_b32 s%d, 0, 0x%x' % (sCc, INV))
a('s_add_u32 s%d, s%d, 1' % (sA, sS))
a('s_lshl_b32 s%d, s%d, 5' % (sA, sA))
a('s_lshl_b32 s%d, s%d, 1' % (sB, sJ))
a('s_add_u32 s%d, s%d, s%d' % (sA, sA, sB))
a('s_and_b32 s%d, s%d, 1' % (sB, sW))
a('s_add_u32 s%d, s%d, s%d' % (sA, sA, sB))
a('s_lshl_b32 s%d, s%d, 2' % (sA, sA))
a('s_add_u32 s%d, s%d, %d' % (sA, sA, L.FH))
a('s_or_b32 s20, s%d, s%d' % (sA, sCc))
pair_base(sA, L.H)
a('s_mul_i32 s%d, s%d, %d' % (sB, sG, 4 * 56 * 1024))
a('s_add_u32 s%d, s%d, s%d' % (sA, sA, sB))
a('s_mul_i32 s%d, s%d, %d' % (sB, sW, 14 * 1024))
a('s_add_u32 s%d, s%d, s%d' % (sO, sA, sB))
quarter_offsets(4, 56 * 1024)
a('s_cmp_eq_u32 s%d, 0' % sPAIR)
a('s_cbranch_scc1 L_d_nout')
owner_index()
a('s_mul_i32 s%d, s%d, 14336' % (sPX, sB))
a('s_lshl_b32 s%d, s%d, 6' % (sA, sA))
a('s_add_u32 s%d, s%d, s%d' % (sPX, sPX, sA))
a('s_add_u32 s%d, s%d, %d' % (sPX2, sPX, 2 * 14336))
a.label('L_d_nout')
a('v_and_b32 v%d, 15, v0' % V_TOK)
a('v_lshrrev_b32 v%d, 4, v0' % V_G)
a('v_mul_u32_u24 v242, 896, v%d' % V_TOK)
a('v_and_b32 v253, 1, v%d' % V_G)
a('v_lshl_add_u32 v242, v253, 5, v242')
a('v_lshrrev_b32 v253, 1, v%d' % V_G)
a('v_lshl_add_u32 v242, v253, 4, v242')


def d_hload(q):
    tile, kk = divmod(q, 14)
    return ('buffer_load_dwordx4 %s, v1, %s, s%d offen offset:%d sc1' %
            (vr(d_reg(q)), srd(S_WS), sO + 4 * tile + (kk >> 2), 1024 * (kk & 3)))


def d_reg(q):
    return DFIRST[q] if q < len(DFIRST) else DH + (q % DRING) * 4


dmk = {}
for q in range(len(DFIRST), DLOOK):
    a(d_hload(q))
    hm[q] = a.vm_mark()
dmk[1] = early_issue(244, 243, 256)
stamp()
for x in gelu_post(6):
    a(x)
h_store(6)()
a('s_waitcnt lgkmcnt(0)')
gelu_packed(7)
h_flag(5)()
h_store(7)()
stamp()

a('s_barrier')
stamp()


def d_tile(tile):
    items = []
    for kk in range(14):
        q = tile * 14 + kk
        for t in range(4):
            r = DACC + (tile * 4 + t) * 4
            pre = [(lambda qq=q: a.wait_vm(hm[qq]))] if t == 0 else []
            if t == 0 and q in (6, 12):
                pre.append(h_flag({6: 6, 12: 7}[q]))
            post = None
            if t == 0 and q + DLOOK < 56:
                def post(qq=q + DLOOK):
                    if qq % 14 == 0:
                        early_check(244, 243, dmk[qq // 14], 256 * (qq // 14))
                    a(d_hload(qq))
                    hm[qq] = a.vm_mark()
                    if qq % 14 == 6 and qq // 14 < 3:
                        dmk[qq // 14 + 1] = early_issue(244, 243, 256 * (qq // 14 + 1))
            items.append((pre, '%s %s, %s, %s, %s' % (MFMA, vr(r), ar((kk * 4 + t) * 4), vr(d_reg(q)),
                                                      '0' if kk == 0 else vr(r)), post))
    return items


def d_out_store(st, pk):
    a('s_nop 1')
    a('v_permlane16_swap_b32 v%d, v%d' % (pk, pk + 2))
    a('v_permlane16_swap_b32 v%d, v%d' % (pk + 1, pk + 3))
    a('buffer_store_dwordx4 %s, v242, %s, s%d offen %s' % (vr(pk), srd(S_OUT), sPX if st == 0 else sPX2, OUTSC))


def d_store(st, pk):
    fin, done = newlab('L_dfin'), newlab('L_ddone')
    a('s_cmp_eq_u32 s%d, 0' % sPAIR)
    a('s_cbranch_scc0 %s' % fin)
    publish_data(st, pk)
    a('s_branch %s' % done)
    a.label(fin)
    n = a.vm_issued
    d_out_store(st, pk)
    a.vm_issued = n
    a.label(done)


DT0, DT1, DPK, DSTT, DSTS = 226, 2, 18, 28, 36
stage0 = [lambda: (a('s_waitcnt lgkmcnt(0)'), a('s_barrier'))] + red_reads(0, DRD) + finish_pre(0, True, DT0)
stage0 += [lambda: a('s_waitcnt lgkmcnt(0)')] + finish_sum(0, DRD, DT0, DPK, False) + [lambda: d_store(0, DPK)]
run_tiles(d_tile, {1: red_writes(DACC, 0), 2: red_writes(DACC + 16, 1), 3: red_writes(DACC + 32, 2) + stage0})
stamp2()
for x in red_writes(DACC + 48, 3):
    a(x)
for x in finish_pre(1, True, DT1):
    a(x)
a('s_waitcnt lgkmcnt(0)')
a('s_barrier')
stamp2()
for x in red_reads(1, DRD):
    a(x)
a('s_waitcnt lgkmcnt(0)')
for x in finish_sum(1, DRD, DT1, DPK + 4, True):
    a(x)
d_store(1, DPK + 4)
stamp()
a('s_cmp_eq_u32 s%d, 0' % sPAIR)
a('s_cbranch_scc0 L_next_pair')
publish_stats([DT0, DT1], DSTT, DSTS)
FHMODE = ([x[5:] for x in sys.argv if x.startswith('--fh=')] + ['after'])[0]
a('v_mov_b32 v240, s20')
if FHMODE == 'before':
    a('s_waitcnt vmcnt(0)')
    a('s_mov_b64 exec, 1')
    a('buffer_store_dword v%d, v240, %s, 0 offen sc1' % (V_T, srd(S_WS)))
    a('s_mov_b64 exec, -1')
    a('v_lshlrev_b32 v241, 8, v0')
    a('v_add_u32 v241, s%d, v241' % sPF)
    a('s_mov_b64 exec, 3')
    store('buffer_store_dword v%d, v241, %s, 0 offen' % (V_T, srd(S_WS)), sPFC)
    a('s_mov_b64 exec, -1')
else:
    publish_flags(8)
    if FHMODE == 'wait':
        a('s_waitcnt vmcnt(0)')
    a('s_mov_b64 exec, 1')
    a('buffer_store_dword v%d, v240, %s, 0 offen sc1' % (V_T, srd(S_WS)))
    a('s_mov_b64 exec, -1')
a.label('L_next_pair')
stamp()
a('s_add_u32 s%d, s%d, 1' % (sPAIR, sPAIR))
a('s_cmp_lt_u32 s%d, 2' % sPAIR)
a('s_cbranch_scc1 L_pair')

if PAD:
    a.label('L_padspin')
    a('s_memrealtime s[34:35]')
    a('s_waitcnt lgkmcnt(0)')
    a('s_sub_u32 s34, s34, s0')
    a('s_cmp_lt_u32 s34, %d' % PAD[0])
    a('s_cbranch_scc1 L_padspin')
if DBG:
    a('s_memtime s[32:33]')
    a('s_memrealtime s[34:35]')
    a('s_waitcnt lgkmcnt(0)')
    a('s_sub_u32 s32, s32, s26')
    a('s_sub_u32 s34, s34, s0')
    build_srd(S_TMP, P_DBG, 256)
    a('v_mov_b32 v2, s32')
    a('v_mov_b32 v3, s34')
    a('v_mov_b32 v4, s%d' % sFAST)
    a('v_mov_b32 v5, s%d' % sXCC)
    a('s_lshr_b32 s%d, s2, 6' % sA)
    a('s_lshl_b32 s%d, s%d, 4' % (sA, sA))
    a('s_and_b32 s%d, s2, 63' % sB)
    a('s_or_b32 s%d, s%d, s%d' % (sB, sB, sW))
    a('s_cmp_eq_u32 s%d, 0' % sB)
    a('s_cselect_b32 s%d, s%d, 0x%x' % (sA, sA, INV))
    a('v_mov_b32 v6, s%d' % sA)
    a('s_mov_b64 exec, 1')
    a('buffer_store_dwordx4 v[2:5], v6, %s, 0 offen' % srd(S_TMP))
    a('s_mov_b64 exec, -1')
if DIAG:
    stamp()
    a('s_mov_b32 s%d, 63' % sSTI)
    a('s_lshl_b64 exec, 1, s%d' % sSTI)
    a('v_mov_b32 v%d, s%d' % (V_STAMP, sERR))
    a('s_mov_b32 s%d, 62' % sSTI)
    a('s_lshl_b64 exec, 1, s%d' % sSTI)
    a('v_mov_b32 v%d, s%d' % (V_STAMP, sFAST))
    a('s_mov_b64 exec, -1')
    a('s_lshl_b32 s%d, s2, 2' % sA)
    a('s_add_u32 s%d, s%d, s%d' % (sA, sA, sW))
    a('s_lshl_b32 s%d, s%d, 8' % (sA, sA))
    a('v_lshlrev_b32 v2, 2, v0')
    a('s_add_u32 s%d, s%d, %d' % (sA, sA, L.WS_USED))
    a('s_mov_b32 s%d, 0x%x' % (S_WS + 2, L.WS_USED + 256 * 1024))
    a('buffer_store_dword v%d, v2, %s, s%d offen' % (V_STAMP, srd(S_WS), sA))
    if DBGST:
        build_srd(S_TMP, P_DBG, 256)
        a('v_readfirstlane_b32 s%d, v%d' % (sA, V_STAMP))
        a('s_nop 4')
        a('v_subrev_u32 v3, s%d, v%d' % (sA, V_STAMP))
        a('s_or_b32 s%d, s2, s%d' % (sB, sW))
        a('s_cmp_eq_u32 s%d, 0' % sB)
        a('s_cselect_b32 s%d, 0, 0x%x' % (sB, INV))
        a('v_or_b32 v2, s%d, v2' % sB)
        SEL = [int(x[6:]) for x in sys.argv if x.startswith('--sel=')]
        sel = SEL[0] if SEL else 1
        a('v_subrev_u32 v2, %d, v2' % (4 * sel))
        a('buffer_store_dword v3, v2, %s, 0 offen' % srd(S_TMP))
a.label('L_end')
a('s_endpgm')
a.ins.extend(ool)
a.label('L_code_end')

a.finalize()
body = a.text()

import os
hdr = open(os.path.join(os.path.dirname(os.path.abspath(__file__)), 'header.txt')).read()
out = hdr + '; @launch grid=(256,1,1) block=(256,1,1) lds=%d\n' % L.LDS_BYTES
out += '.amdgcn_target "amdgcn-amd-amdhsa--gfx950"\n.text\n.globl %s_kernel\n.p2align 8\n.type %s_kernel,@function\n%s_kernel:\n' % (NAME, NAME, NAME)
out += body
out += '''.section .rodata,"a"
.p2align 6
.amdhsa_kernel %s_kernel
  .amdhsa_next_free_vgpr 512
  .amdhsa_next_free_sgpr 102
  .amdhsa_accum_offset 256
  .amdhsa_group_segment_fixed_size 0
  .amdhsa_kernarg_size 88
  .amdhsa_user_sgpr_count 2
  .amdhsa_user_sgpr_kernarg_segment_ptr 1
  .amdhsa_system_sgpr_workgroup_id_x 1
.end_amdhsa_kernel
''' % NAME
sys.stdout.write(out)
```

```python
import struct
import sys
from asmlib import Asm
import layout as L

NAME = 'interleave_layers__sliding_local_dilated__mixer_channel_mlp__prompt'
DIAG = '--diag' in sys.argv
FASTMODE = ([x[7:] for x in sys.argv if x.startswith('--fast=')] + ['flags'])[0]
NOFAST = FASTMODE == 'none'
PAD = [int(x[6:]) for x in sys.argv if x.startswith('--pad=')]
DBG = '--dbg' in sys.argv or bool(PAD)
SPIN_LIMIT = 200000
OUTSC = ([x[8:] for x in sys.argv if x.startswith('--outsc=')] + [''])[0].replace('_', ' ')
SLEEP = int(([x[8:] for x in sys.argv if x.startswith('--sleep=')] + ['0'])[0])
INV = 0x80000000

a = Asm()

sXCC = 3
S_WS, S_TMP, S_B1, S_OUT = 4, 8, 12, 16
P_X, P_WQKV, P_WO, P_BX, P_W1, P_B1, P_W2, P_B2, P_OUT, P_DBG, P_WSP = 20, 22, 24, 26, 28, 30, 32, 34, 36, 38, 40
sS, sC, sG, sJ, sW, sT, sPAIR, sSPIN = 42, 43, 44, 45, 46, 47, 48, 49
sM1 = 50
sM2 = 58
sM0 = 66
sO = 74
sA, sB, sCc, sD = 90, 91, 92, 93
sMK = 94
sTS = 96
sGT = 98
sERR = 99
sEP = 1
sSTI = 100
sFAST = 101
sFD = 27
sPFC = 26
sFH = 25


def srd(n):
    return 's[%d:%d]' % (n, n + 3)


def vr(n, k=4):
    return 'v[%d:%d]' % (n, n + k - 1)


def ar(n, k=4):
    return 'a[%d:%d]' % (n, n + k - 1)


def sp(n):
    return 's[%d:%d]' % (n, n + 1)


def f2h(x):
    return '0x%08x' % struct.unpack('<I', struct.pack('<f', x))[0]


V_T, V_STAMP = 254, 255
V_TOK, V_G = 250, 251
MFMA = 'v_mfma_f32_16x16x32_bf16'


DIAG2 = '--diag2' in sys.argv
PREFPOS = ([x[7:] for x in sys.argv if x.startswith('--pref=')] + ['a'])[0]
PREF = PREFPOS != 'n'
TOUCH = '--notouch' not in sys.argv
STWAIT = '--stwait' in sys.argv
P2EARLY = '--p2early' in sys.argv
SKEW = [int(x[7:]) for x in sys.argv if x.startswith('--skew=')]
DBGST = '--dbgst' in sys.argv


def stamp2():
    if DIAG2:
        stamp()


def stamp():
    if not DIAG:
        return
    a('%s %s' % ('s_memrealtime' if '--rt' in sys.argv else 's_memtime', sp(sTS)))
    a('s_waitcnt lgkmcnt(0)')
    a('s_lshl_b64 exec, 1, s%d' % sSTI)
    a('v_mov_b32 v%d, s%d' % (V_STAMP, sTS))
    a('s_mov_b64 exec, -1')
    a('s_add_u32 s%d, s%d, 1' % (sSTI, sSTI))


ool = []


class OutOfLine:
    def __enter__(self):
        self.saved = a.ins
        a.ins = []

    def __exit__(self, *exc):
        ool.extend(a.ins)
        a.ins = self.saved


lab_no = [0]


def newlab(p):
    lab_no[0] += 1
    return '%s_%d' % (p, lab_no[0])


def emit_pref():
    a('s_getpc_b64 s[96:97]')
    a.label('L_pc')
    a('s_lshr_b32 s%d, s2, 3' % sA)
    a('s_lshl_b32 s%d, s%d, 11' % (sA, sA))
    a('s_lshl_b32 s%d, s%d, 9' % (sB, sW))
    a('s_add_u32 s%d, s%d, s%d' % (sA, sA, sB))
    a('v_lshlrev_b32 v21, 3, v0')
    a('v_add_u32 v21, s%d, v21' % sA)
    a('v_min_u32 v21, L_code_end-L_pc-8, v21')
    a('global_load_dwordx2 v[58:59], v21, s[96:97]')


def skew_store(point, have=False):
    if not SKEW or SKEW[0] != point:
        return
    if not have:
        a('s_memrealtime s[96:97]')
        a('s_waitcnt lgkmcnt(0)')
    build_srd(S_TMP, P_DBG, 256)
    a('s_and_b32 s%d, s2, 15' % sA)
    a('s_or_b32 s%d, s%d, s%d' % (sA, sA, sW))
    a('s_cmp_eq_u32 s%d, 0' % sA)
    a('s_cselect_b32 s%d, 0, 0x%x' % (sA, INV))
    a('s_lshr_b32 s%d, s2, 2' % sB)
    a('s_or_b32 s%d, s%d, s%d' % (sA, sA, sB))
    a('v_mov_b32 v21, s%d' % sA)
    a('v_mov_b32 v22, s96')
    a('s_mov_b64 exec, 1')
    a('buffer_store_dword v22, v21, %s, 0 offen' % srd(S_TMP))
    a.vm_issued -= 1
    a('s_mov_b64 exec, -1')


def build_srd(dst, ptr, nbytes):
    a('s_mov_b32 s%d, s%d' % (dst, ptr))
    a('s_and_b32 s%d, s%d, 0xffff' % (dst + 1, ptr + 1))
    a('s_mov_b32 s%d, 0x%x' % (dst + 2, nbytes))
    a('s_mov_b32 s%d, 0x20000' % (dst + 3))


def poll(voff, off2=None, sleep=None):
    lab, done = newlab('L_poll'), newlab('L_polldone')
    a('s_mov_b64 exec, %s' % sp(sMK))
    a('s_mov_b32 s%d, 0' % sSPIN)
    a.label(lab)
    a('buffer_load_dword v253, v%d, %s, 0 offen sc1' % (voff, srd(S_WS)))
    if off2 is not None:
        a('buffer_load_dword v245, v%d, %s, 0 offen offset:%d sc1' % (voff, srd(S_WS), off2))
    a('s_waitcnt vmcnt(0)')
    if off2 is not None:
        a('v_xor_b32 v245, s%d, v245' % sT)
        a('v_xor_b32 v253, s%d, v253' % sT)
        a('v_or_b32 v253, v253, v245')
        a('v_cmp_ne_u32 vcc, 0, v253')
    else:
        a('v_cmp_ne_u32 vcc, s%d, v253' % sT)
    a('s_nop 4')
    a('s_cbranch_vccz %s' % done)
    if sleep or SLEEP:
        a('s_sleep %d' % (sleep or SLEEP))
    a('s_add_u32 s%d, s%d, 1' % (sSPIN, sSPIN))
    a('s_cmp_lt_u32 s%d, %d' % (sSPIN, SPIN_LIMIT))
    a('s_cbranch_scc1 %s' % lab)
    a('s_add_u32 s%d, s%d, 1' % (sERR, sERR))
    a.label(done)
    a('s_mov_b64 exec, -1')


sMK2 = 30


def early_issue(dst, voff, off=0):
    a('s_mov_b64 exec, %s' % sp(sMK2))
    a('buffer_load_dword v%d, v%d, %s, 0 offen offset:%d sc1' % (dst, voff, srd(S_WS), off))
    a('s_mov_b64 exec, -1')
    return a.vm_mark()


def early_check(dst, voff, mark, off=0):
    ok = newlab('L_early')
    a.wait_vm(mark)
    a('s_mov_b64 exec, %s' % sp(sMK2))
    a('v_cmp_ne_u32 vcc, s%d, v%d' % (sT, dst))
    a('s_mov_b64 exec, -1')
    a('s_nop 2')
    a('s_cbranch_vccz %s' % ok)
    a('s_mov_b64 %s, %s' % (sp(sMK), sp(sMK2)))
    n = a.vm_issued
    if off:
        a('v_add_u32 v253, %d, v%d' % (off, voff))
        a('v_mov_b32 v%d, v253' % dst)
        poll(dst)
    else:
        poll(voff)
    a.vm_issued = n
    a.label(ok)


def store(fmt, cond=None):
    if cond is None or NOFAST or (FASTMODE == 'flags' and cond in (sFD, sFH, sPC)):
        a(fmt + ' sc1')
        return
    slow, done = newlab('L_slow'), newlab('L_st')
    a('s_cmp_eq_u32 s%d, 0' % cond)
    a('s_cbranch_scc1 %s' % slow)
    a(fmt)
    a('s_branch %s' % done)
    a.label(slow)
    a(fmt + ' sc1')
    a.vm_issued -= 1
    a.label(done)


def set_flags(voff, nlanes, cond=None, val=V_T, between=()):
    mark = a.vm_mark()
    for x in between:
        a(x)
    a.wait_vm(mark)
    a('s_mov_b64 exec, %d' % ((1 << nlanes) - 1))
    store('buffer_store_dword v%d, v%d, %s, 0 offen' % (val, voff, srd(S_WS)), cond)
    a('s_mov_b64 exec, -1')


def xg_reduce(x, t, op='v_add_f32'):
    return ['v_mov_b32 v%d, v%d' % (t, x),
            'v_permlane32_swap_b32 v%d, v%d' % (x, t),
            '%s v%d, v%d, v%d' % (op, x, x, t),
            'v_mov_b32 v%d, v%d' % (t, x),
            'v_permlane16_swap_b32 v%d, v%d' % (x, t),
            '%s v%d, v%d, v%d' % (op, x, x, t)]


EPS = 1e-5


def stats_finish(s1, s2, t, double_ln):
    o = ['v_mul_f32 v%d, %s, v%d' % (s1, f2h(1.0 / 448), s1),
         'v_mul_f32 v%d, %s, v%d' % (s2, f2h(1.0 / 448), s2),
         'v_fma_f32 v%d, -v%d, v%d, v%d' % (s2, s1, s1, s2),
         'v_max_f32 v%d, 0, v%d' % (s2, s2),
         'v_add_f32 v%d, %s, v%d' % (t, f2h(EPS), s2),
         'v_rsq_f32 v%d, v%d' % (t, t)]
    if not double_ln:
        o += ['v_mov_b32 v%d, v%d' % (s2, t)]
    else:
        o += ['v_mul_f32 v%d, v%d, v%d' % (s2, s2, t),
              'v_fmaak_f32 v%d, v%d, v%d, %s' % (s2, s2, t, f2h(EPS)),
              'v_rsq_f32 v%d, v%d' % (s2, s2),
              'v_mul_f32 v%d, v%d, v%d' % (s2, s2, t)]
    return o


def pair_base(dst, arr):
    a('s_mul_i32 s%d, s%d, %d' % (dst, sPAIR, arr[1] - arr[0]))
    a('s_add_u32 s%d, s%d, %d' % (dst, dst, arr[0]))


def quarter_offsets(n, stride):
    for t in range(n):
        if t:
            a('s_add_u32 s%d, s%d, %d' % (sO + 4 * t, sO + 4 * (t - 1), stride))
        for q in range(1, 4):
            a('s_add_u32 s%d, s%d, %d' % (sO + 4 * t + q, sO + 4 * t, 4096 * q))


sPX, sPS, sPF, sPC, sPX2 = 36, 37, 28, 29, 33


def stats_flags(delta, lsh):
    a('v_lshlrev_b32 v241, %d, v0' % lsh)
    a('s_add_u32 s%d, s%d, %d' % (sA, sPF, delta))
    a('v_add_u32 v241, s%d, v241' % sA)
    a('s_mov_b64 exec, 3')
    store('buffer_store_dword v%d, v241, %s, 0 offen' % (V_T, srd(S_WS)), sPFC)
    a('s_mov_b64 exec, -1')


a('s_cmp_ge_u32 s2, 256')
a('s_cbranch_scc1 L_end')
if '--perm' in sys.argv:
    a('s_and_b32 s90, s2, 7')
    a('s_lshr_b32 s91, s2, 3')
    a('s_and_b32 s91, s91, 7')
    a('s_and_b32 s2, s2, 0xc0')
    a('s_lshl_b32 s90, s90, 3')
    a('s_or_b32 s2, s2, s90')
    a('s_or_b32 s2, s2, s91')
SPRE = int(([x[7:] for x in sys.argv if x.startswith('--spre=')] + ['0'])[0])
if SPRE:
    a('s_getpc_b64 s[96:97]')
a('s_load_dwordx16 s[20:35], s[0:1], 0')
a('s_load_dwordx4 s[36:39], s[0:1], 64')
a('s_load_dwordx2 s[40:41], s[0:1], 80')
for i in range(SPRE):
    a('s_load_dword s98, s[96:97], %d' % (256 + 128 * i))
a('s_getreg_b32 s%d, hwreg(HW_REG_XCC_ID, 0, 4)' % sXCC)
a('s_and_b32 s%d, s2, 7' % sA)
a('s_lshr_b32 s%d, s2, 3' % sB)
a('s_lshr_b32 s%d, s%d, 4' % (sCc, sB))
a('s_lshl_b32 s%d, s%d, 1' % (sS, sA))
a('s_add_u32 s%d, s%d, s%d' % (sS, sS, sCc))
a('s_and_b32 s%d, s%d, 15' % (sC, sB))
a('s_lshr_b32 s%d, s%d, 3' % (sA, sC))
a('s_lshl_b32 s%d, s%d, 1' % (sG, sS))
a('s_add_u32 s%d, s%d, s%d' % (sG, sG, sA))
a('s_and_b32 s%d, s%d, 7' % (sJ, sC))
a('s_mov_b32 s%d, 0' % sERR)
if SKEW and SKEW[0] == 0:
    a('s_memrealtime s[96:97]')
a('v_lshrrev_b32 v2, 6, v0')
a('v_and_b32 v0, 63, v0')
a('v_readfirstlane_b32 s%d, v2' % sW)
a('v_lshlrev_b32 v1, 4, v0')
if DIAG:
    a('v_mov_b32 v%d, 0' % V_STAMP)
    a('s_mov_b32 s%d, 0' % sSTI)
stamp()
a('v_and_b32 v%d, 15, v0' % V_TOK)
a('v_lshrrev_b32 v%d, 4, v0' % V_G)
sSTG = 40
a('s_waitcnt lgkmcnt(0)')
if DBG:
    a('s_memtime s[26:27]')
    a('s_memrealtime s[0:1]')
    a('s_waitcnt lgkmcnt(0)')
skew_store(0, True)
build_srd(S_WS, P_WSP, L.WS_USED)
a('buffer_load_dword v%d, off, %s, 0 sc1' % (V_T, srd(S_WS)))
a('s_lshl_b32 s%d, s%d, 14' % (sSTG, sW))
a('s_add_u32 s%d, s%d, %d' % (sSTG, sSTG, L.L_R2))

build_srd(S_TMP, P_X, 2048 * 896)
a('v_mul_u32_u24 v2, 896, v%d' % V_TOK)
a('v_lshl_add_u32 v2, v%d, 3, v2' % V_G)
a('s_lshr_b32 s%d, s%d, 1' % (sA, sC))
a('s_lshl_b32 s%d, s%d, 3' % (sB, sS))
a('s_add_u32 s%d, s%d, s%d' % (sO + 0, sA, sB))
a('s_and_b32 s%d, s%d, 1' % (sA, sC))
a('s_mul_i32 s%d, s%d, 7' % (sA, sA))
a('s_add_u32 s%d, s%d, s%d' % (sO + 1, sA, sW))
a('s_cmp_lt_u32 s%d, 3' % sW)
a('s_cselect_b32 s%d, 0, 0x%x' % (sO + 2, INV))
a('s_mul_i32 s%d, s%d, 14336' % (sA, sO + 0))
a('s_lshl_b32 s%d, s%d, 6' % (sB, sO + 1))
a('s_add_u32 s%d, s%d, s%d' % (sA, sA, sB))
a('v_or_b32 v3, s%d, v2' % (sO + 2))
a('buffer_load_dwordx2 v[10:11], v2, %s, s%d offen' % (srd(S_TMP), sA))
a('buffer_load_dwordx2 v[12:13], v2, %s, s%d offen offset:32' % (srd(S_TMP), sA))
a('buffer_load_dwordx2 v[14:15], v3, %s, s%d offen offset:256' % (srd(S_TMP), sA))
a('buffer_load_dwordx2 v[16:17], v3, %s, s%d offen offset:288' % (srd(S_TMP), sA))

build_srd(S_TMP, P_WQKV, 448 * 2688)
qMAT, qU, qINV = sO + 3, sO + 4, sO + 5
a('s_lshl_b32 s%d, s%d, 4' % (sA, sW))
a('s_add_u32 s%d, s%d, s%d' % (sA, sA, sS))
a('s_cmp_lt_u32 s%d, 42' % sA)
a('s_cselect_b32 s%d, 0, 0x%x' % (qINV, INV))
a('s_min_u32 s%d, s%d, 41' % (sA, sA))
a('s_mul_i32 s%d, s%d, 4682' % (qMAT, sA))
a('s_lshr_b32 s%d, s%d, 16' % (qMAT, qMAT))
a('s_mul_i32 s%d, s%d, 14' % (sB, qMAT))
a('s_sub_u32 s%d, s%d, s%d' % (qU, sA, sB))
a('s_mul_i32 s%d, s%d, %d' % (sA, qU, 32 * 2688))
a('s_mul_i32 s%d, s%d, 896' % (sB, qMAT))
a('s_add_u32 s%d, s%d, s%d' % (sA, sA, sB))
a('s_mul_i32 s%d, s%d, 56' % (sB, sC))
a('s_add_u32 s%d, s%d, s%d' % (sA, sA, sB))
a('v_lshrrev_b32 v4, 2, v0')
a('v_mul_u32_u24 v4, 2688, v4')
a('v_and_b32 v5, 3, v0')
a('v_lshl_add_u32 v4, v5, 4, v4')
a('v_or_b32 v4, s%d, v4' % qINV)
a('s_mov_b32 m0, s%d' % sSTG)
a('s_add_u32 s%d, s%d, %d' % (sB, sA, 16 * 2688))
a('buffer_load_dwordx4 v4, %s, s%d offen lds' % (srd(S_TMP), sA))
a('s_add_u32 m0, s%d, 1024' % sSTG)
a('s_nop 0')
a('buffer_load_dwordx4 v4, %s, s%d offen lds' % (srd(S_TMP), sB))

bINV, bDST, bSTR, bINV2, bDST2, sSTRD = 20, 21, 22, 23, 24, 25


def emit_p2_issue():
    a('s_cmp_eq_u32 s%d, 3' % sW)
    a('s_cbranch_scc1 L_p2_w1')
    a('s_lshl_b32 s%d, s%d, 5' % (sA, sW))
    a('s_add_u32 s%d, s%d, s%d' % (sA, sA, sG))
    a('s_cmp_lt_u32 s%d, 72' % sA)
    a('s_cselect_b32 s%d, 0, 0x%x' % (bINV, INV))
    a('s_cmp_eq_u32 s%d, 7' % sJ)
    a('s_cselect_b32 s%d, 0x%x, s%d' % (bINV, INV, bINV))
    a('s_min_u32 s%d, s%d, 71' % (sA, sA))
    a('s_min_u32 s%d, s%d, 6' % (sD, sJ))
    a('s_cmp_lt_u32 s%d, 16' % sA)
    a('s_cselect_b32 s%d, s%d, s%d' % (S_TMP, P_WO, P_W2))
    a('s_cselect_b32 s%d, s%d, s%d' % (S_TMP + 1, P_WO + 1, P_W2 + 1))
    a('s_mov_b32 s%d, 0x%x' % (S_TMP + 2, 1792 * 896))
    a('s_cselect_b32 s%d, 0x%x, s%d' % (S_TMP + 2, 448 * 896, S_TMP + 2))
    a('s_cselect_b32 s%d, 28, 32' % sB)
    a('s_cselect_b32 s%d, 0, 16' % sCc)
    a('s_mov_b32 s%d, %d' % (bSTR, 56 * 1024))
    a('s_cselect_b32 s%d, %d, s%d' % (bSTR, 16 * 1024, bSTR))
    a('s_mov_b32 s%d, %d' % (bDST, L.WD))
    a('s_cselect_b32 s%d, %d, s%d' % (bDST, L.WB, bDST))
    a('s_cselect_b32 s%d, 0x%x, 0' % (sO + 9, INV))
    a('s_and_b32 s%d, s%d, 0xffff' % (S_TMP + 1, S_TMP + 1))
    a('s_mov_b32 s%d, 0x20000' % (S_TMP + 3))
    a('s_sub_u32 s%d, s%d, s%d' % (sA, sA, sCc))
    a('s_lshl_b32 s%d, s%d, 10' % (sCc, sA))
    a('s_add_u32 s%d, s%d, s%d' % (bDST, bDST, sCc))
    a('s_lshl_b32 s%d, s%d, 2' % (sCc, sD))
    a('s_mul_i32 s%d, s%d, s%d' % (sCc, sCc, bSTR))
    a('s_add_u32 s%d, s%d, s%d' % (bDST, bDST, sCc))
    a('s_mul_i32 s%d, s%d, s%d' % (sA, sA, sB))
    a('s_mul_i32 s%d, s%d, 896' % (sA, sA))
    a('s_lshl_b32 s%d, s%d, 7' % (sB, sD))
    a('s_add_u32 s%d, s%d, s%d' % (sO + 10, sA, sB))
    a('s_mov_b32 s%d, 896' % sSTRD)
    a('s_mov_b32 s%d, 0x%x' % (bINV2, INV))
    a('s_mov_b32 s%d, 0' % bDST2)
    a('s_mov_b32 s%d, 0' % (sO + 11))
    a('s_branch L_p2_go')
    a.label('L_p2_w1')
    build_srd(S_TMP, P_W1, 448 * 3584)
    a('s_lshl_b32 s%d, s%d, 4' % (sA, sS))
    a('s_add_u32 s%d, s%d, s%d' % (sA, sA, sC))
    a('s_cmp_lt_u32 s%d, 136' % sA)
    a('s_cselect_b32 s%d, 0, 0x%x' % (bINV2, INV))
    a('s_mov_b32 s%d, 0' % bINV)
    a('s_mov_b32 s%d, 0' % (sO + 9))
    a('s_mov_b32 s%d, %d' % (bSTR, 14 * 1024))
    a('s_mov_b32 s%d, 3584' % sSTRD)
    for dst, src, add in ((bDST, sO + 10, 0), (bDST2, sO + 11, 256)):
        a('s_add_u32 s%d, s%d, %d' % (sB, sA, add))
        a('s_min_u32 s%d, s%d, 391' % (sB, sB))
        a('s_mul_i32 s%d, s%d, 4682' % (sCc, sB))
        a('s_lshr_b32 s%d, s%d, 16' % (sCc, sCc))
        a('s_mul_i32 s%d, s%d, 14' % (sD, sCc))
        a('s_sub_u32 s%d, s%d, s%d' % (sB, sB, sD))
        a('s_mul_i32 s%d, s%d, %d' % (src, sB, 32 * 3584))
        a('s_lshl_b32 s%d, s%d, 7' % (sD, sCc))
        a('s_add_u32 s%d, s%d, s%d' % (src, src, sD))
        a('s_mul_i32 s%d, s%d, 56' % (sD, sCc))
        a('s_add_u32 s%d, s%d, s%d' % (sD, sD, sB))
        a('s_lshl_b32 s%d, s%d, 10' % (sD, sD))
        a('s_add_u32 s%d, s%d, %d' % (dst, sD, L.WC))
    a.label('L_p2_go')
    a('v_lshrrev_b32 v6, 3, v0')
    a('v_mul_lo_u32 v6, v6, s%d' % sSTRD)
    a('v_and_b32 v5, 7, v0')
    a('v_lshl_add_u32 v6, v5, 4, v6')
    a('v_or_b32 v8, s%d, v6' % bINV2)
    a('v_or_b32 v6, s%d, v6' % bINV)
    a('v_cmp_lt_u32 vcc, 31, v0')
    a('v_mov_b32 v7, s%d' % (sO + 9))
    a('v_cndmask_b32 v7, 0, v7, vcc')
    a('v_or_b32 v7, v7, v6')
    a('s_lshl_b32 s%d, s%d, 3' % (sB, sSTRD))
    for slot in range(2):
        src = sO + 10 + slot
        for q in range(4):
            a('s_add_u32 m0, s%d, %d' % (sSTG, 2048 + 4096 * slot + 1024 * q))
            if q:
                a('s_add_u32 s%d, s%d, s%d' % (src, src, sB))
            else:
                a('s_nop 0')
            a('buffer_load_dwordx4 v%d, %s, s%d offen lds' % (8 if slot else (7 if q == 3 else 6), srd(S_TMP), src))


if P2EARLY:
    emit_p2_issue()
build_srd(S_B1, P_B1, 1792 * 2)
build_srd(S_OUT, P_OUT, 2048 * 896)
a('v_bfe_u32 v18, v0, 2, 2')
a('v_lshl_add_u32 v18, v%d, 2, v18' % V_G)
a('v_and_b32 v19, 3, v0')
a('v_lshlrev_b32 v19, 3, v19')
if PREFPOS == 'b':
    emit_pref()
if TOUCH:
    a('v_lshlrev_b32 v21, 21, v0')
    a('s_mov_b64 exec, 0x1ffff')
    a('buffer_load_dword v253, v21, %s, 0 offen' % srd(S_WS))
    a('s_mov_b64 exec, -1')
    a('s_waitcnt vmcnt(%d)' % ((9 if P2EARLY else 1) + (PREFPOS == 'b')))
else:
    a('s_waitcnt vmcnt(%d)' % ((8 if P2EARLY else 0) + (PREFPOS == 'b')))
stamp()

a('v_readfirstlane_b32 s%d, v%d' % (sEP, V_T))
a('s_mov_b32 s%d, 0x9E3779B1' % sA)
a('v_mul_lo_u32 v%d, v%d, s%d' % (V_T, V_T, sA))
a('v_add_u32 v%d, 0x7F4A7C15, v%d' % (V_T, V_T))
a('v_and_b32 v%d, -16, v%d' % (V_T, V_T))
a('v_lshl_add_u32 v20, v18, 6, v19')
a('v_add_u32 v20, s%d, v20' % sSTG)
for hf in range(2):
    a('ds_read_b64_tr_b16 %s, v20 offset:%d' % (vr(24 + 4 * hf, 2), 32 * hf))
    a('ds_read_b64_tr_b16 %s, v20 offset:%d' % (vr(26 + 4 * hf, 2), 32 * hf + 1024))
a('v_readfirstlane_b32 s%d, v%d' % (sT, V_T))
a('s_mul_i32 s%d, s%d, 14' % (sA, sO + 0))
a('s_add_u32 s%d, s%d, s%d' % (sA, sA, sO + 1))
a('s_lshl_b32 s%d, s%d, 10' % (sB, sA))
a('s_add_u32 s%d, s%d, %d' % (sB, sB, L.XA[0]))
a('v_or_b32 v3, s%d, v1' % (sO + 2))
a('buffer_store_dwordx4 v[10:13], v1, %s, s%d offen sc1' % (srd(S_WS), sB))
a('s_add_u32 s%d, s%d, 4096' % (sB, sB))
a('buffer_store_dwordx4 v[14:17], v3, %s, s%d offen sc1' % (srd(S_WS), sB))
a('v_cmp_gt_u32 vcc, 12, v%d' % V_TOK)
a('s_mul_i32 s%d, s%d, 84' % (sB, sC))
a('s_mul_i32 s%d, s%d, 28' % (sCc, qMAT))
a('s_add_u32 s%d, s%d, s%d' % (sB, sB, sCc))
a('s_add_u32 s%d, s%d, s%d' % (sB, sB, qU))
a('s_lshl_b32 s%d, s%d, 10' % (sB, sB))
a('s_add_u32 s%d, s%d, %d' % (sB, sB, L.WA))
a('v_or_b32 v4, s%d, v1' % qINV)
a('s_waitcnt lgkmcnt(0)')
for p in range(4):
    a('v_cndmask_b32 v%d, 0, v%d, vcc' % (28 + p, 28 + p))
a('buffer_store_dwordx4 v[24:27], v4, %s, s%d offen sc1' % (srd(S_WS), sB))
a('s_add_u32 s%d, s%d, %d' % (sB, sB, 14 * 1024))
a('buffer_store_dwordx4 v[28:31], v4, %s, s%d offen sc1' % (srd(S_WS), sB))
a('v_mov_b32 v2, 0x3f803f80')
for k in range(2):
    x, s1, s2 = 10 + 4 * k, 110 + 2 * k, 111 + 2 * k
    a('v_mov_b32 v%d, 0' % s1)
    a('v_mov_b32 v%d, 0' % s2)
    for p in range(4):
        a('v_dot2_f32_bf16 v%d, v%d, v2, v%d' % (s1, x + p, s1))
        a('v_dot2_f32_bf16 v%d, v%d, v%d, v%d' % (s2, x + p, x + p, s2))
    for t in xg_reduce(s1, 114) + xg_reduce(s2, 115):
        a(t)
a('s_lshl_b32 s%d, s%d, 7' % (sB, sA))
a('s_add_u32 s%d, s%d, %d' % (sB, sB, L.SA[0]))
a('v_lshlrev_b32 v2, 3, v%d' % V_TOK)
a('v_or_b32 v3, s%d, v2' % (sO + 2))
a('s_mov_b64 exec, 0xffff')
a('buffer_store_dwordx2 v[110:111], v2, %s, s%d offen sc1' % (srd(S_WS), sB))
a('buffer_store_dwordx2 v[112:113], v3, %s, s%d offen offset:512 sc1' % (srd(S_WS), sB))
a('s_mov_b64 exec, -1')
crit_mark = a.vm_mark()
if not P2EARLY:
    emit_p2_issue()
a('s_lshl_b32 s%d, s%d, 5' % (sA, sO + 0))
a('s_add_u32 s%d, s%d, s%d' % (sA, sA, sO + 1))
a('s_lshl_b32 s%d, s%d, 2' % (sA, sA))
a('s_add_u32 s%d, s%d, %d' % (sA, sA, L.FX[0]))
a('v_lshlrev_b32 v2, 4, v0')
a('v_add_u32 v2, s%d, v2' % sA)
a('v_cmp_eq_u32 vcc, 1, v0')
a('v_mov_b32 v3, s%d' % (sO + 2))
a('v_cndmask_b32 v3, 0, v3, vcc')
a('v_or_b32 v2, v2, v3')
a('s_lshl_b32 s%d, s%d, 6' % (sA, sC))
a('s_lshl_b32 s%d, s%d, 2' % (sB, sS))
a('s_add_u32 s%d, s%d, s%d' % (sA, sA, sB))
a('s_add_u32 s%d, s%d, s%d' % (sA, sA, sW))
a('s_lshl_b32 s%d, s%d, 2' % (sA, sA))
a('s_add_u32 s%d, s%d, %d' % (sA, sA, L.FQ))
a('v_mov_b32 v3, s%d' % sA)
a('v_cmp_eq_u32 vcc, 2, v0')
a('v_cndmask_b32 v2, v2, v3, vcc')
a('s_lshl_b32 s%d, s%d, 4' % (sA, sS))
a('s_add_u32 s%d, s%d, s%d' % (sA, sA, sC))
a('s_lshl_b32 s%d, s%d, 2' % (sA, sA))
a('s_add_u32 s%d, s%d, %d' % (sA, sA, L.FXC))
a('s_cmp_eq_u32 s%d, 0' % sW)
a('s_cselect_b32 s%d, s%d, 0x%x' % (sA, sA, INV))
a('v_mov_b32 v3, s%d' % sA)
a('v_cmp_eq_u32 vcc, 3, v0')
a('v_cndmask_b32 v2, v2, v3, vcc')
a('v_or_b32 v3, s%d, v%d' % (sXCC, V_T))
a('v_cndmask_b32 v3, v%d, v3, vcc' % V_T)
stamp2()
a.wait_vm(crit_mark)
a('s_mov_b64 exec, 15')
a('buffer_store_dword v3, v2, %s, 0 offen sc1' % srd(S_WS))
a('s_mov_b64 exec, -1')
stamp()

if PREFPOS == 'a':
    emit_pref()
BTOUCH = '--btouch' in sys.argv
if BTOUCH:
    a('v_lshlrev_b32 v21, 6, v0')
    a('buffer_load_dword v60, v21, %s, 0 offen' % srd(S_B1))
    build_srd(S_TMP, P_B2, 896)
    a('buffer_load_dword v61, v21, %s, 0 offen' % srd(S_TMP))
skew_store(1)
a('s_waitcnt vmcnt(%d)' % (1 + (PREFPOS == 'a') + 2 * BTOUCH))
a('v_lshl_add_u32 v20, v18, 7, v19')
a('v_add_u32 v20, s%d, v20' % sSTG)
for slot in range(2):
    for t in range(4):
        a('ds_read_b64_tr_b16 %s, v20 offset:%d' % (vr(24 + 16 * slot + 4 * t, 2), 2048 + 4096 * slot + 32 * t))
        a('ds_read_b64_tr_b16 %s, v20 offset:%d' % (vr(26 + 16 * slot + 4 * t, 2), 2048 + 4096 * slot + 32 * t + 2048))
a('v_or_b32 v6, s%d, v1' % bINV)
a('v_or_b32 v8, s%d, v1' % bINV2)
a('s_waitcnt lgkmcnt(8)')
for t in range(4):
    a('buffer_store_dwordx4 %s, v6, %s, s%d offen sc1' % (vr(24 + 4 * t), srd(S_WS), bDST))
    if t < 3:
        a('s_add_u32 s%d, s%d, s%d' % (bDST, bDST, bSTR))
a('s_waitcnt lgkmcnt(0)')
for t in range(4):
    a('buffer_store_dwordx4 %s, v8, %s, s%d offen sc1' % (vr(40 + 4 * t), srd(S_WS), bDST2))
    if t < 3:
        a('s_add_u32 s%d, s%d, s%d' % (bDST2, bDST2, bSTR))
a('s_lshl_b32 s%d, s%d, 4' % (sA, sS))
a('s_add_u32 s%d, s%d, s%d' % (sA, sA, sC))
a('s_lshl_b32 s%d, s%d, 2' % (sA, sA))
a('s_add_u32 s%d, s%d, %d' % (sA, sA, L.FW1))
a('v_lshlrev_b32 v22, 10, v0')
a('v_add_u32 v22, s%d, v22' % sA)
a('v_cmp_eq_u32 vcc, 1, v0')
a('v_mov_b32 v23, s%d' % bINV2)
a('v_cndmask_b32 v23, 0, v23, vcc')
a('v_or_b32 v22, v22, v23')
a('s_cmp_eq_u32 s%d, 3' % sW)
a('s_cselect_b32 s%d, 0, 0x%x' % (sA, INV))
a('v_or_b32 v22, s%d, v22' % sA)

skew_store(3)
a('v_and_b32 v2, 1, v%d' % V_TOK)
a('v_lshlrev_b32 v3, 2, v%d' % V_G)
a('v_add_u32 v6, 2, v%d' % V_TOK)
for i in range(4):
    a('v_add_u32 v4, %d, v3' % i)
    a('v_cmp_eq_u32 vcc, %d, v2' % (i & 1))
    a('s_mov_b64 %s, vcc' % sp(sMK))
    a('v_cmp_ge_u32 vcc, v4, v6')
    a('s_and_b64 %s, vcc, %s' % (sp(sM1 + 2 * i), sp(sMK)))
    a('v_cmp_le_u32 vcc, v4, v%d' % V_TOK)
    a('s_and_b64 %s, vcc, %s' % (sp(sM2 + 2 * i), sp(sMK)))
a('s_lshl_b32 s%d, s%d, 3' % (sA, sS))
a('s_lshl_b32 s%d, s%d, 1' % (sB, sW))
a('s_add_u32 s%d, s%d, s%d' % (sGT, sA, sB))
a('s_cmp_eq_u32 s%d, 0' % sGT)
for i in range(4):
    a('s_cselect_b64 %s, 0, %s' % (sp(sM0 + 2 * i), sp(sM1 + 2 * i)))
a('s_mov_b32 s%d, 0' % sPAIR)

def a_flag_addr(dst):
    pair_base(sA, L.FX)
    a('s_lshl_b32 s%d, s%d, 7' % (sB, sGT))
    a('s_add_u32 s%d, s%d, s%d' % (sA, sA, sB))
    a('s_sub_u32 s%d, s%d, 128' % (sA, sA))
    a('v_and_b32 v%d, 48, v0' % dst)
    a('v_add_u32 v%d, v%d, v0' % (dst, dst))
    a('v_lshl_add_u32 v%d, v%d, 2, s%d' % (dst, dst, sA))
    a('s_mov_b32 s%d, 0x3fff3fff' % sMK)
    a('s_mov_b32 s%d, 0x3fff' % (sMK + 1))
    a('s_cmp_eq_u32 s%d, 0' % sGT)
    a('s_cselect_b32 s%d, 0x3fff0000, s%d' % (sMK, sMK))


a('s_lshl_b32 s%d, s%d, 8' % (sA, sC))
a('s_add_u32 s%d, s%d, %d' % (sA, sA, L.FQ))
a('v_lshl_add_u32 v2, v0, 2, s%d' % sA)
a_flag_addr(3)
a('s_lshl_b32 s%d, s%d, 6' % (sA, sS))
a('s_add_u32 s%d, s%d, %d' % (sA, sA, L.FXC - 48 * 4))
a('v_lshl_add_u32 v4, v0, 2, s%d' % sA)
a('v_cmp_lt_u32 vcc, 47, v0')
a('v_cndmask_b32 v3, v3, v4, vcc')
a('v_mov_b32 v5, -1')
a('v_mov_b32 v6, -16')
a('v_cndmask_b32 v5, v5, v6, vcc')
a('s_or_b32 s%d, s%d, 0xffff0000' % (sMK + 1, sMK + 1))
a('s_mov_b32 s%d, 0' % sSPIN)
a.label('L_poll0')
a('buffer_load_dword v7, v2, %s, 0 offen sc1' % srd(S_WS))
a('s_mov_b64 exec, %s' % sp(sMK))
a('buffer_load_dword v8, v3, %s, 0 offen sc1' % srd(S_WS))
a('s_waitcnt vmcnt(0)')
a('v_and_b32 v9, v5, v8')
a('v_cmp_ne_u32 vcc, s%d, v9' % sT)
a('s_mov_b64 exec, -1')
a('s_mov_b64 %s, vcc' % sp(sTS))
a('v_cmp_ne_u32 vcc, s%d, v7' % sT)
a('s_or_b64 vcc, vcc, %s' % sp(sTS))
a('s_cbranch_vccz L_poll0_done')
a('s_add_u32 s%d, s%d, 1' % (sSPIN, sSPIN))
a('s_cmp_lt_u32 s%d, %d' % (sSPIN, SPIN_LIMIT))
a('s_cbranch_scc1 L_poll0')
a('s_add_u32 s%d, s%d, 1' % (sERR, sERR))
a.label('L_poll0_done')
a('s_mov_b64 exec, 3')
a('buffer_store_dword v%d, v22, %s, 0 offen sc1' % (V_T, srd(S_WS)))
a('s_mov_b64 exec, -1')
skew_store(2)
a('v_and_b32 v9, 15, v8')
a('v_cmp_ne_u32 vcc, s%d, v9' % sXCC)
a('s_and_b32 s%d, vcc_hi, 0xffff0000' % sA)
a('s_cmp_eq_u32 s%d, 0' % sA)
a('s_cselect_b32 s%d, 1, 0' % sFAST)
stamp()
AQ, AK, AV, HACC = 2, 18, 34, 50
WBUF = [66, 90]
XR = 114
CSACC = 186
STR = 210
SM, SR = 234, 237
NR, LOOK = 6, 4
A_ONES = 240


def a_xload(u):
    slot = u % NR
    return ['buffer_load_dwordx4 %s, v1, %s, s%d offen offset:%d sc1' %
            (vr(XR + (slot * 2 + t) * 4), srd(S_WS), sO + 4 * (t + 1) + (u >> 2), 1024 * (u & 3)) for t in range(2)]


def a_offsets():
    pair_base(sA, L.XA)
    a('s_mul_i32 s%d, s%d, 14336' % (sB, sGT))
    a('s_add_u32 s%d, s%d, s%d' % (sO + 4, sA, sB))
    a('s_add_u32 s%d, s%d, 14336' % (sO + 8, sO + 4))
    for t in range(1, 3):
        for q in range(1, 4):
            a('s_add_u32 s%d, s%d, %d' % (sO + 4 * t + q, sO + 4 * t, 4096 * q))
    a('s_lshl_b32 s%d, s%d, 3' % (sB, sS))
    a('s_max_u32 s%d, s%d, 1' % (sB, sB))
    a('s_sub_u32 s%d, s%d, 1' % (sB, sB))
    a('s_mul_i32 s%d, s%d, 14336' % (sB, sB))
    a('s_add_u32 s%d, s%d, s%d' % (sO + 0, sA, sB))
    a('s_lshl_b32 s%d, s%d, 12' % (sB, sW))
    a('s_add_u32 s%d, s%d, s%d' % (sO + 0, sO + 0, sB))
    a('s_add_u32 s%d, s%d, %d' % (sO + 1, sB, L.L_R2))


def a_setup():
    if FASTMODE == 'flags':
        a('s_mov_b32 s%d, 0' % sFD)
        a('s_mov_b32 s%d, 0' % sFH)
    elif FASTMODE == 'p0':
        a('s_xor_b32 s%d, s%d, 1' % (sFD, sPAIR))
        a('s_and_b32 s%d, s%d, s%d' % (sFD, sFD, sFAST))
        a('s_mov_b32 s%d, s%d' % (sFH, sFD))
    elif FASTMODE == 'small':
        a('s_mov_b32 s%d, s%d' % (sFD, sFAST))
        a('s_mov_b32 s%d, 0' % sFH)
    elif FASTMODE == 'smallp0':
        a('s_mov_b32 s%d, s%d' % (sFD, sFAST))
        a('s_xor_b32 s%d, s%d, 1' % (sFH, sPAIR))
        a('s_and_b32 s%d, s%d, s%d' % (sFH, sFH, sFAST))
    else:
        a('s_mov_b32 s%d, s%d' % (sFD, sFAST))
        a('s_mov_b32 s%d, s%d' % (sFH, sFAST))
    pair_base(sA, L.SA)
    a('s_mul_i32 s%d, s%d, 1792' % (sB, sGT))
    a('s_add_u32 s%d, s%d, s%d' % (sO + 13, sA, sB))
    a('s_add_u32 s%d, s%d, 1792' % (sO + 14, sO + 13))
    a('s_sub_u32 s%d, s%d, 1792' % (sO + 12, sO + 13))
    a('s_cmp_eq_u32 s%d, 0' % sGT)
    a('s_cselect_b32 s%d, s%d, s%d' % (sO + 12, sO + 13, sO + 12))
    a('v_and_b32 v%d, 15, v0' % V_TOK)
    a('v_lshrrev_b32 v%d, 4, v0' % V_G)
    a('v_lshlrev_b32 v240, 3, v%d' % V_TOK)
    a('v_lshl_add_u32 v240, v%d, 7, v240' % V_G)
    a('v_mov_b32 v242, 0x%x' % INV)
    a('v_cmp_lt_u32 vcc, 1, v%d' % V_G)
    a('v_cndmask_b32 v241, 0, v242, vcc')
    a('v_or_b32 v241, v241, v240')
    a('v_add_u32 v243, %d, v1' % (56 * 1024))
    a('v_lshlrev_b32 v244, 4, v%d' % V_G)
    a('v_add_u32 v244, %d, v244' % L.L_CSA)
    a('v_lshlrev_b32 v245, 2, v%d' % V_TOK)
    a('v_add_u32 v245, %d, v245' % L.L_CSA)
    a('s_mul_i32 s%d, s%d, 384' % (sA, sW))
    a('s_add_u32 s%d, s%d, %d' % (sA, sA, L.L_STA))
    a('v_lshl_add_u32 v162, v%d, 2, s%d' % (V_TOK, sA))
    a('v_lshl_add_u32 v163, v%d, 4, s%d' % (V_G, sA))
    a('s_lshl_b32 s%d, s%d, 7' % (sA, sJ))
    a('s_add_u32 s%d, s%d, %d' % (sA, sA, L.FP))
    a('v_lshl_add_u32 v248, v0, 2, s%d' % sA)
    a('s_lshr_b32 s%d, s%d, 1' % (sB, sW))
    a('s_lshl_b32 s%d, s%d, 2' % (sCc, sG))
    a('s_add_u32 s%d, s%d, s%d' % (sB, sB, sCc))
    a('s_lshl_b32 s%d, s%d, 5' % (sB, sB))
    a('s_and_b32 s%d, s%d, 1' % (sA, sW))
    a('s_add_u32 s%d, s%d, s%d' % (sB, sB, sA))
    a('s_min_u32 s%d, s%d, 6' % (sA, sJ))
    a('s_lshl_b32 s%d, s%d, 1' % (sA, sA))
    a('s_add_u32 s%d, s%d, s%d' % (sB, sB, sA))
    a('s_lshl_b32 s%d, s%d, 2' % (sB, sB))
    a('s_add_u32 s%d, s%d, %d' % (sB, sB, L.FX[0] - 32 * 256))
    a('v_lshl_add_u32 v249, v0, 8, s%d' % sB)
    a('v_cmp_lt_u32 vcc, 31, v0')
    a('v_cndmask_b32 v248, v248, v249, vcc')
    a('s_lshr_b32 s%d, s%d, 3' % (sA, sC))
    a('s_mul_i32 s%d, s%d, 7' % (sA, sA))
    a('s_min_u32 s%d, s%d, 6' % (sB, sJ))
    a('s_add_u32 s%d, s%d, s%d' % (sA, sA, sB))
    a('s_mul_i32 s%d, s%d, 112' % (sA, sA))
    a('s_add_u32 s%d, s%d, %d' % (sA, sA, L.FW1 - 34 * 4))
    a('v_lshl_add_u32 v249, v0, 2, s%d' % sA)
    a('v_cmp_lt_u32 vcc, 33, v0')
    a('v_cndmask_b32 v248, v248, v249, vcc')
    a('s_lshl_b32 s%d, s%d, 7' % (sA, sS))
    a('s_add_u32 s%d, s%d, %d' % (sA, sA, L.FH))
    a('v_and_b32 v247, 15, v0')
    a('v_lshl_add_u32 v247, v247, 2, s%d' % sA)
    a('s_lshl_b32 s%d, s%d, 7' % (sB, sGT))
    a('s_add_u32 s%d, s%d, %d' % (sB, sB, L.FX[1] - 128))
    a('v_lshl_add_u32 v253, v0, 2, s%d' % sB)
    a('s_cmp_eq_u32 s%d, 0' % sW)
    a('s_cselect_b32 s%d, 0, 16' % sA)
    a('v_cmp_gt_u32 vcc, s%d, v0' % sA)
    a('v_cndmask_b32 v247, v247, v253, vcc')
    a('s_mov_b32 s%d, 0x3fff3fff' % sMK2)
    a('s_mov_b32 s%d, 0' % (sMK2 + 1))
    a('s_cmp_eq_u32 s%d, 0' % sS)
    a('s_cselect_b32 s%d, 0x3fff, s%d' % (sMK2, sMK2))
    a('v_and_b32 v253, 15, v0')
    a('v_lshlrev_b32 v253, 2, v253')
    a('v_add_u32 v253, %d, v253' % L.FX[1])
    a('s_cmp_eq_u32 s%d, 0' % sGT)
    a('s_cselect_b64 vcc, -1, 0')
    a('v_cndmask_b32 v247, v247, v253, vcc')


stat_loads = ['buffer_load_dwordx2 %s, v%d, %s, s%d offen offset:%d sc1' %
              (vr(STR + (t * 4 + i) * 2, 2), 241 if i == 3 else 240, srd(S_WS), sO + 12 + t, 512 * i)
              for t in range(3) for i in range(4)]


def a_wread(u):
    b = WBUF[u & 1]
    o = []
    for p in range(6):
        if p < 4:
            o.append('ds_read_b128 %s, v1 offset:%d' % (vr(b + 4 * p), L.L_WA + (p * 14 + u) * 1024))
        else:
            o.append('ds_read_b128 %s, v243 offset:%d' % (vr(b + 4 * p), L.L_WA + ((p - 4) * 14 + u) * 1024))
    return o


stat_fill = []
for t in (1, 2, 0):
    r = STR + 8 * t
    for c_ in range(2):
        stat_fill += ['v_add_f32 v%d, v%d, v%d' % (r + c_, r + c_, r + 2 + c_),
                      'v_add_f32 v%d, v%d, v%d' % (r + 4 + c_, r + 4 + c_, r + 6 + c_),
                      'v_add_f32 v%d, v%d, v%d' % (r + c_, r + c_, r + 4 + c_)]
    stat_fill += xg_reduce(r, r + 2) + xg_reduce(r + 1, r + 3)
    stat_fill += stats_finish(r, r + 1, r + 2, False)
    stat_fill += ['v_mov_b32 v%d, v%d' % (SM + t, r), 'v_mov_b32 v%d, v%d' % (SR + t, r + 1)]

sWA = [20, 21, 22]
sWAG = 23


def wa_dma(pr, i):
    def f():
        a('s_add_u32 m0, s%d, %d' % (sWA[i], L.L_WA + 2048 * pr))
        a('s_add_u32 s%d, s%d, s%d' % (sD, sWA[i], sWAG))
        if pr:
            a('s_add_u32 s%d, s%d, %d' % (sD, sD, 2048 * pr))
        a('buffer_load_dwordx4 v1, %s, s%d offen sc1 lds' % (srd(S_WS), sD))
    return f


amark = {}


def emit_a_loop(first, xmark, wam):
    ep_mark = es_mark = st_mark = None
    for t in a_wread(0):
        a(t)
    for u in range(14):
        need = xmark[u]
        if u == 8:
            need = max(need, amark['st_own'])
        if u == 13:
            need = max(need, st_mark)
        a.wait_vm(need)
        if not first and u == 9:
            early_check(246, 247, es_mark)
            a('s_nop 0')
        if u == 12:
            a('s_mov_b32 s%d, -1' % sMK2)
            a('s_mov_b32 s%d, 0x3fffffff' % (sMK2 + 1))
        a('s_waitcnt lgkmcnt(0)')
        wb = WBUF[u & 1]
        xs = XR + (u % NR) * 8
        mf = []
        cz = (lambda r: '0') if u == 0 else (lambda r: vr(r))
        for t in range(2):
            for hf in range(2):
                r = AQ + (t * 2 + hf) * 4
                mf.append('%s %s, %s, %s, %s' % (MFMA, vr(r), vr(wb + 4 * hf), vr(xs + 4 * t), cz(r)))
        for t in range(2):
            for hf in range(2):
                r = AK + (t * 2 + hf) * 4
                mf.append('%s %s, %s, %s, %s' % (MFMA, vr(r), vr(wb + 8 + 4 * hf), vr(xs + 4 * t), cz(r)))
        for t in range(2):
            for hf in range(2):
                r = AV + (t * 2 + hf) * 4
                mf.append('%s %s, %s, %s, %s' % (MFMA, vr(r), vr(xs + 4 * t), vr(wb + 16 + 4 * hf), cz(r)))
        if first:
            mf.append('%s %s, %s, %s, %s' % (MFMA, vr(CSACC + 8), vr(CSACC), ar(A_ONES), cz(CSACC + 8)))
            mf.append('%s %s, %s, %s, %s' % (MFMA, vr(CSACC + 12), ar(A_ONES), vr(CSACC + 4), cz(CSACC + 12)))
        mem = {}

        def put(k, x):
            mem.setdefault(k, []).append(x)
        nm = len(mf)
        off = 0
        if first:
            a('ds_read_b128 %s, v252 offset:%d' % (vr(CSACC), 1024 * u))
            a('ds_read_b128 %s, v242 offset:%d' % (vr(CSACC + 4), 1024 * u))
            put(11, 's_waitcnt lgkmcnt(%d)' % (6 if u < 13 else 0))
        if first and u % 2 == 1 and u < 13:
            put(2, ('bar', (u + 1) // 2))
            off = 3
        if u < 13:
            for k, x in enumerate(a_wread(u + 1)):
                put(off + k, x)
        elif not first:
            for p in range(4):
                put(p, 'ds_read_b128 %s, v244 offset:%d' % (vr(WBUF[0] + 4 * p), 64 * p))
            for d in range(2):
                put(4 + d, 'ds_read_b32 v%d, v245 offset:%d' % (WBUF[0] + 16 + d, 64 * (4 + d)))
        if first and u < 2:
            for j_, uu in enumerate((2 * u + 2, 2 * u + 3)):
                for k, x in zip((6, 8), a_xload(uu)):
                    put(k + 4 * j_, x)
                put(8 + 4 * j_, ('xm', uu))
            if u == 0:
                for i, k in enumerate((7, 9, 11)):
                    put(k, ('wa', 2, i))
        elif u + LOOK < 14:
            for k, x in zip((6, 9), a_xload(u + LOOK)):
                put(k, x)
            put(9, ('xm', u + LOOK))
        if first and u % 2 == 0 and u // 2 + 3 <= 6:
            for i, k in enumerate((12, 13, 13) if u == 0 else (7, 10, 12)):
                put(k, ('wa', u // 2 + 3, i))
        order = list(range(4, 12)) + list(range(0, 4))
        if 2 <= u < 6:
            for k, x in zip((8, 11), order[2 * (u - 2):2 * (u - 2) + 2]):
                put(k, stat_loads[x])
            if u == 5:
                put(11, ('sto',))
        if not first and u == 6:
            put(7, ('estat',))
        if u in (9, 10):
            for k, x in zip((8, 11) if u == 10 else (3, 5), order[8 + 2 * (u - 9):8 + 2 * (u - 9) + 2]):
                put(k, stat_loads[x])
            if u == 10:
                put(11, ('st',))
        if u == 9:
            put(10, 's_mov_b32 m0, s%d' % (sO + 1))
            for i, k in enumerate((10, 10, 11, 11)):
                put(k, 'buffer_load_dwordx4 v1, %s, s%d offen offset:%d sc1 lds' % (srd(S_WS), sO + 0, 1024 * i))
            put(11, ('hm',))
        if u == 13:
            put(8, ('early',))
        fill = []
        if 8 <= u < 11:
            fill = stat_fill[(u - 8) * 18:(u - 7) * 18]
        elif u == 13:
            fill = stat_fill[54:76]
        fi = 0
        for k, m in enumerate(mf):
            a(m)
            for it in mem.get(k, []):
                if isinstance(it, str):
                    a(it)
                elif it[0] == 'early':
                    ep_mark = early_issue(249, 248)
                elif it[0] == 'estat':
                    es_mark = early_issue(246, 247)
                elif it[0] == 'xm':
                    xmark[it[1]] = a.vm_mark()
                elif it[0] == 'st':
                    st_mark = a.vm_mark()
                elif it[0] == 'sto':
                    amark['st_own'] = a.vm_mark()
                elif it[0] == 'hm':
                    amark['halo'] = a.vm_mark()
                elif it[0] == 'bar':
                    a.wait_vm(wam[it[1]])
                    a('s_barrier')
                elif it[0] == 'wa':
                    wa_dma(it[1], it[2])()
                    wam[it[1]] = a.vm_mark()
            for _ in range(2):
                if fi < len(fill) and k >= 1:
                    a(fill[fi])
                    fi += 1
        assert fi == len(fill), (u, fi, len(fill))
    amark['ep'] = ep_mark


for p in range(4):
    a('v_mov_b32 v4, 0x3f803f80')
    a('v_accvgpr_write_b32 a%d, v4' % (A_ONES + p))
a('s_mul_i32 s%d, s%d, 14336' % (sWA[0], sW))
a('s_add_u32 s%d, s%d, 4' % (sA, sW))
a('s_mul_i32 s%d, s%d, 14336' % (sA, sA))
a('s_sub_u32 s%d, s%d, 2' % (sB, sW))
a('s_mul_i32 s%d, s%d, 14336' % (sB, sB))
a('s_add_u32 s%d, s%d, 1024' % (sB, sB))
a('s_cmp_lt_u32 s%d, 2' % sW)
a('s_cselect_b32 s%d, s%d, s%d' % (sWA[1], sA, sB))
a('s_add_u32 s%d, s%d, 2' % (sA, sW))
a('s_mul_i32 s%d, s%d, 14336' % (sA, sA))
a('s_add_u32 s%d, s%d, 1024' % (sWA[2], sA))
a('s_mul_i32 s%d, s%d, %d' % (sWAG, sC, 84 * 1024))
a('s_add_u32 s%d, s%d, %d' % (sWAG, sWAG, L.WA))
a_offsets()
xm0, wam0 = {}, {}


def wa_pair(pr):
    for i in range(3):
        wa_dma(pr, i)()
    wam0[pr] = a.vm_mark()


wa_pair(0)
for u in range(2):
    for t in a_xload(u):
        a(t)
    xm0[u] = a.vm_mark()
wa_pair(1)
a_setup()
a('s_mul_i32 s%d, s%d, 14336' % (sA, sW))
a('v_add_u32 v252, s%d, v1' % sA)
a('s_and_b32 s%d, s%d, 1' % (sA, sW))
a('s_mul_i32 s%d, s%d, 14336' % (sA, sA))
a('v_add_u32 v242, s%d, v243' % sA)
a.wait_vm(wam0[0])
a('s_barrier')
a('s_lshl_b32 s%d, s%d, 5' % (sA, sJ))
a('s_add_u32 s%d, s%d, s%d' % (sA, sA, sG))
a('s_lshl_b32 s%d, s%d, 2' % (sA, sA))
a('s_add_u32 s%d, s%d, %d' % (sA, sA, L.FP))
a('s_cmp_eq_u32 s%d, 0' % sW)
a('s_cselect_b32 s%d, s%d, 0x%x' % (sA, sA, INV))
a('v_mov_b32 v2, s%d' % sA)
a('s_mov_b64 exec, 1')
a('buffer_store_dword v%d, v2, %s, 0 offen sc1' % (V_T, srd(S_WS)))
a.vm_issued -= 1
a('s_mov_b64 exec, -1')
stamp()
emit_a_loop(True, xm0, wam0)
n_join = a.vm_issued - amark['ep']
CSQ = WBUF[0]
a('v_cmp_eq_u32 vcc, 0, v%d' % V_TOK)
a('s_lshl_b32 s%d, s%d, 6' % (sA, sW))
a('v_add_u32 v252, s%d, v244' % sA)
a('s_and_b32 s%d, s%d, 1' % (sA, sW))
a('s_lshl_b32 s%d, s%d, 6' % (sA, sA))
a('v_add_u32 v242, s%d, v245' % sA)
a('s_mov_b64 exec, vcc')
a('ds_write_b128 v252, %s' % vr(CSACC + 8))
a('s_mov_b64 exec, 0xffff')
a('ds_write_b32 v242, v%d offset:256' % (CSACC + 12))
a('s_mov_b64 exec, -1')
a('s_waitcnt lgkmcnt(0)')
a('s_barrier')
for p in range(4):
    a('ds_read_b128 %s, v244 offset:%d' % (vr(WBUF[0] + 4 * p), 64 * p))
for d in range(2):
    a('ds_read_b32 v%d, v245 offset:%d' % (WBUF[0] + 16 + d, 64 * (4 + d)))
with OutOfLine():
    a.label('L_pair')
    a_flag_addr(2)
    a('s_mov_b32 s%d, 0x3fff0000' % sMK)
    ASLEEP = int(([x[9:] for x in sys.argv if x.startswith('--asleep=')] + ['0'])[0])
    poll(2, None, ASLEEP)
    stamp()
    a_offsets()
    xmark = {}
    for u in range(LOOK):
        for t in a_xload(u):
            a(t)
        xmark[u] = a.vm_mark()
    a_setup()
    emit_a_loop(False, xmark, None)
    assert a.vm_issued - amark['ep'] == n_join
    ep_mark = amark['ep']
    a('s_branch L_a_epi')
a.label('L_a_epi')
stamp()
a('s_add_u32 s%d, s%d, 2' % (sA, sW))
a('s_mul_i32 s%d, s%d, 14336' % (sA, sA))
a('v_add_u32 v246, s%d, v1' % sA)
a('v_add_u32 v247, %d, v1' % L.L_R2)
a('s_cmp_lt_u32 s%d, 2' % sW)
a('s_cselect_b64 vcc, -1, 0')
a('v_cndmask_b32 v252, v247, v246, vcc')
a('v_cndmask_b32 v253, v246, v247, vcc')
MROW, RROW = 114, 126
for x in stat_fill[76:]:
    a(x)
a('s_mov_b64 exec, 0xffff')
for t in range(3):
    a('ds_write_b32 v162, v%d offset:%d' % (SM + t, 128 * t))
    a('ds_write_b32 v162, v%d offset:%d' % (SR + t, 128 * t + 64))
a('s_mov_b64 exec, -1')
for t in range(3):
    a('ds_read_b128 %s, v163 offset:%d' % (vr(MROW + 4 * t), 128 * t))
    a('ds_read_b128 %s, v163 offset:%d' % (vr(RROW + 4 * t), 128 * t + 64))
a.wait_vm(amark['halo'])
a('s_barrier')
HOP = 90
def h_reads(u):
    r = HOP + 8 * (u % 3)
    return ['ds_read_b128 %s, v252 offset:%d' % (vr(r), 1024 * u), 'ds_read_b128 %s, v253 offset:%d' % (vr(r + 4), 1024 * u)]
for u in range(2):
    for x in h_reads(u):
        a(x)
rest = []
for u in range(14):
    if u + 2 < 14:
        for x in h_reads(u + 2):
            a(x)
    a('s_waitcnt lgkmcnt(%d)' % (4 if u < 12 else (2 if u == 12 else 0)))
    r = HOP + 8 * (u % 3)
    a('%s %s, %s, %s, %s' % (MFMA, vr(HACC), vr(r), vr(r + 4), '0' if u == 0 else vr(HACC)))
    if rest:
        a(rest.pop(0))
for x in rest:
    a(x)
stamp2()
early_check(249, 248, ep_mark)
BW = 2
a('s_lshl_b32 s%d, s%d, 6' % (sA, sJ))
a('s_lshl_b32 s%d, s%d, 2' % (sB, sW))
a('s_add_u32 s%d, s%d, s%d' % (sA, sA, sB))
a('s_lshl_b32 s%d, s%d, 10' % (sA, sA))
a('s_add_u32 s20, s%d, %d' % (sA, L.WB))
for t in range(1, 4):
    a('s_add_u32 s%d, s20, %d' % (20 + t, 16 * 1024 * t))
wb_all = ['buffer_load_dwordx4 %s, v1, %s, s%d offen offset:%d sc1' % (vr(BW + (i * 4 + t) * 4), srd(S_WS), 20 + t, 1024 * i)
          for i in range(4) for t in range(4)]
for x in wb_all[13:16]:
    a(x)
wb_loads = wb_all[8:13]
A_RES, A_B2 = 224, 232


def red_addrs():
    a('s_lshl_b32 s%d, s%d, 13' % (sA, sW))
    a('s_add_u32 s%d, s%d, %d' % (sA, sA, L.L_R2))
    a('v_add_u32 v248, s%d, v1' % sA)
    a('s_and_b32 s%d, s%d, 1' % (sA, sW))
    a('s_lshl_b32 s%d, s%d, 11' % (sA, sA))
    a('s_lshr_b32 s%d, s%d, 1' % (sB, sW))
    a('s_lshl_b32 s%d, s%d, 12' % (sB, sB))
    a('s_add_u32 s%d, s%d, s%d' % (sA, sA, sB))
    a('s_add_u32 s%d, s%d, %d' % (sA, sA, L.L_R2))
    a('v_add_u32 v249, s%d, v1' % sA)


def publish_setup(xbase, sbase, fbase, per_pair, fsh):
    owner_index()
    a('s_mul_i32 s%d, s%d, 14' % (sCc, sB))
    a('s_add_u32 s%d, s%d, s%d' % (sCc, sCc, sA))
    a('s_lshl_b32 s%d, s%d, 10' % (sPX, sCc))
    a('s_lshl_b32 s%d, s%d, 7' % (sPS, sCc))
    a('s_lshl_b32 s%d, s%d, %d' % (sPF, sB, fsh))
    a('s_add_u32 s%d, s%d, s%d' % (sPF, sPF, sA))
    a('s_lshl_b32 s%d, s%d, 2' % (sPF, sPF))
    for dst, arr in ((sPX, xbase), (sPS, sbase), (sPF, fbase)):
        if per_pair:
            pair_base(sD, arr)
            a('s_add_u32 s%d, s%d, s%d' % (dst, dst, sD))
        else:
            a('s_add_u32 s%d, s%d, %d' % (dst, dst, arr))
    a('s_add_u32 s%d, s%d, %d' % (sPX2, sPX, 2 * 14336))


def owner_index():
    a('s_lshr_b32 s%d, s%d, 1' % (sB, sW))
    a('s_lshl_b32 s%d, s%d, 2' % (sCc, sG))
    a('s_add_u32 s%d, s%d, s%d' % (sB, sB, sCc))
    a('s_and_b32 s%d, s%d, 1' % (sA, sW))
    a('s_lshl_b32 s%d, s%d, 1' % (sCc, sJ))
    a('s_add_u32 s%d, s%d, s%d' % (sA, sA, sCc))


a('s_cmp_eq_u32 s%d, 0' % sPAIR)
a('s_cbranch_scc0 L_a_nores')
owner_index()
a('s_mul_i32 s%d, s%d, 14' % (sB, sB))
a('s_add_u32 s%d, s%d, s%d' % (sB, sB, sA))
a('s_lshl_b32 s%d, s%d, 10' % (sB, sB))
a('s_add_u32 s%d, s%d, %d' % (sB, sB, L.XA[0]))
a('buffer_load_dwordx4 %s, v1, %s, s%d offen sc1' % (ar(A_RES), srd(S_WS), sB))
a('s_add_u32 s%d, s%d, %d' % (sB, sB, 2 * 14336))
a('buffer_load_dwordx4 %s, v1, %s, s%d offen sc1' % (ar(A_RES + 4), srd(S_WS), sB))
build_srd(S_TMP, P_B2, 896)
a('s_lshl_b32 s%d, s%d, 6' % (sB, sA))
a('v_lshlrev_b32 v240, 3, v%d' % V_G)
a('buffer_load_dwordx2 v[228:229], v240, %s, s%d offen' % (srd(S_TMP), sB))
a('buffer_load_dwordx2 v[230:231], v240, %s, s%d offen offset:32' % (srd(S_TMP), sB))
a.label('L_a_nores')
CSQ = WBUF[0]
QF, KF, VF = 140, 148, 160


def pk(op, dst, srcs, neg=None):
    ops, lo, hi = [], [], []
    for x in srcs:
        if isinstance(x, tuple):
            ops.append(vr(x[1] & ~1, 2))
            lo.append(x[1] & 1)
            hi.append(x[1] & 1)
        else:
            ops.append(vr(x, 2))
            lo.append(0)
            hi.append(1)
    t = '%s %s, %s op_sel:[%s] op_sel_hi:[%s]' % (op, vr(dst, 2), ', '.join(ops), ','.join(map(str, lo)), ','.join(map(str, hi)))
    if neg is not None:
        m = ','.join('1' if k == neg else '0' for k in range(len(srcs)))
        t += ' neg_lo:[%s] neg_hi:[%s]' % (m, m)
    return t


for t in range(2):
    for hf in range(2):
        r = AQ + (t * 2 + hf) * 4
        for i in (0, 2):
            a(pk('v_pk_fma_f32', r + i, [('b', SM + t + 1), CSQ + 4 * hf + i, r + i], 0))
        for p in range(2):
            a('v_cvt_pk_bf16_f32 v%d, v%d, v%d' % (QF + 4 * t + 2 * hf + p, r + 2 * p, r + 2 * p + 1))
        a(wb_all[2 * t + hf])
for t in range(2):
    for hf in range(2):
        r = AK + (t * 2 + hf) * 4
        for i in (0, 2):
            a(pk('v_pk_fma_f32', r + i, [('b', SM + t + 1), CSQ + 8 + 4 * hf + i, r + i], 0))
        for p in range(2):
            a('v_cvt_pk_bf16_f32 v%d, v%d, v%d' % (KF + 4 * (t + 1) + 2 * hf + p, r + 2 * p, r + 2 * p + 1))
        a(wb_all[4 + 2 * t + hf])
L_E, L_HX = L.L_R2 + 16384, L.L_R2 + 26624
a('s_lshl_b32 s%d, s%d, 11' % (sA, sW))
a('s_add_u32 s%d, s%d, %d' % (sA, sA, L_E))
a('v_add_u32 v246, s%d, v1' % sA)
a('s_lshl_b32 s%d, s%d, 10' % (sA, sW))
a('s_add_u32 s%d, s%d, %d' % (sA, sA, L_HX))
a('v_add_u32 v247, s%d, v1' % sA)
a('s_waitcnt lgkmcnt(0)')
for t in range(2):
    for d in range(2):
        r = AV + (t * 2 + d) * 4
        for i in (0, 2):
            a(pk('v_pk_fma_f32', r + i, [MROW + 4 * (t + 1) + i, ('b', CSQ + 16 + d), r + i], 0))
        for p in range(2):
            a('v_cvt_pk_bf16_f32 v%d, v%d, v%d' % (VF + 6 * d + 2 * (t + 1) + p, r + 2 * p, r + 2 * p + 1))
a('ds_write_b128 v246, %s offset:2048' % vr(KF + 8))
a('ds_write_b64 v246, %s offset:3072' % vr(VF + 4, 2))
a('ds_write_b64 v246, %s offset:3080' % vr(VF + 10, 2))
a('ds_write_b128 v247, %s' % vr(HACC))
pair_base(sA, L.O)
a('s_lshl_b32 s%d, s%d, 4' % (sB, sGT))
a('s_add_u32 s%d, s%d, s%d' % (sB, sB, sC))
a('s_lshl_b32 s%d, s%d, 10' % (sB, sB))
a('s_add_u32 s32, s%d, s%d' % (sA, sB))
a('s_add_u32 s33, s32, 16384')
stamp2()
a('s_waitcnt lgkmcnt(0)')
a('s_barrier')
stamp2()
SS = 172
a('s_cmp_eq_u32 s%d, 0' % sW)
a('s_cbranch_scc1 L_a_halo')
a('ds_read_b128 %s, v246' % vr(KF))
a('ds_read_b64 %s, v246 offset:1024' % vr(VF, 2))
a('ds_read_b64 %s, v246 offset:1032' % vr(VF + 6, 2))
a('s_waitcnt lgkmcnt(0)')
a('s_branch L_a_prev')
a.label('L_a_halo')
a('v_add_u32 v247, %d, v1' % L_HX)
for p in range(4):
    a('ds_read_b128 %s, v247 offset:%d' % (vr(SS + 4 * p), 1024 * p))
a('s_waitcnt lgkmcnt(0)')
for hf in range(2):
    r = SS + 4 * hf
    for i in (0, 2):
        a(pk('v_pk_fma_f32', r + i, [('b', SM), CSQ + 8 + 4 * hf + i, r + i], 0))
    for p in range(2):
        a('v_cvt_pk_bf16_f32 v%d, v%d, v%d' % (KF + 2 * hf + p, r + 2 * p, r + 2 * p + 1))
for d in range(2):
    r = SS + 8 + 4 * d
    for i in (0, 2):
        a(pk('v_pk_fma_f32', r + i, [MROW + i, ('b', CSQ + 16 + d), r + i], 0))
    for p in range(2):
        a('v_cvt_pk_bf16_f32 v%d, v%d, v%d' % (VF + 6 * d + p, r + 2 * p, r + 2 * p + 1))
a.label('L_a_prev')
a('s_nop 1')
for t in range(2):
    a('%s %s, %s, %s, 0' % (MFMA, vr(SS + 8 * t), vr(KF + 4 * t), vr(QF + 4 * t)))
    a('%s %s, %s, %s, 0' % (MFMA, vr(SS + 8 * t + 4), vr(KF + 4 * t + 4), vr(QF + 4 * t)))
SCALE = (28.0 ** -0.5) * 1.4426950408889634
MX, CC, LS, TMPR = 190, 192, 194, 196
PF = 200
SUMT = [(224, 226), (232, 188)]
a('v_mov_b32 v198, 0xff800000')
seq = [[], []]
for t in range(2):
    s_ = SS + 8 * t
    q = seq[t]
    rr = lambda e: RROW + 4 * (t + (e >> 2)) + (e & 3)
    for e in range(0, 8, 2):
        q.append(pk('v_pk_mul_f32', s_ + e, [s_ + e, rr(e)]))
    for e in range(8):
        mk = (sM0 if t == 0 else sM1) + 2 * e if e < 4 else sM2 + 2 * (e - 4)
        q.append('v_cndmask_b32 v%d, v198, v%d, %s' % (s_ + e, s_ + e, sp(mk)))
    q.append('v_max3_f32 v%d, v%d, v%d, v%d' % (MX + t, s_, s_ + 1, s_ + 2))
    q.append('v_max3_f32 v%d, v%d, v%d, v%d' % (MX + t, MX + t, s_ + 3, s_ + 4))
    q.append('v_max3_f32 v%d, v%d, v%d, v%d' % (MX + t, MX + t, s_ + 5, s_ + 6))
    q.append('v_max_f32 v%d, v%d, v%d' % (MX + t, MX + t, s_ + 7))
    q += xg_reduce(MX + t, TMPR + t, 'v_max_f32')
    q.append('v_mul_f32 v%d, %s, v%d' % (CC + t, f2h(SCALE), SR + t + 1))
    q.append('v_mul_f32 v%d, v%d, v%d' % (MX + t, MX + t, CC + t))
    for e in range(0, 8, 2):
        q.append(pk('v_pk_fma_f32', s_ + e, [s_ + e, ('b', CC + t), ('b', MX + t)], 2))
    for e in range(8):
        q.append('v_exp_f32 v%d, v%d' % (s_ + e, s_ + e))
    u_, u2 = SUMT[t]
    q.append(pk('v_pk_add_f32', u_, [s_, s_ + 2]))
    q.append(pk('v_pk_add_f32', u2, [s_ + 4, s_ + 6]))
    q.append(pk('v_pk_add_f32', u_, [u_, u2]))
    q.append('v_add_f32 v%d, v%d, v%d' % (LS + t, u_, u_ + 1))
    q += xg_reduce(LS + t, TMPR + t)
    q.append('v_rcp_f32 v%d, v%d' % (LS + t, LS + t))
    for e in range(0, 8, 2):
        q.append(pk('v_pk_mul_f32', s_ + e, [s_ + e, rr(e)]))
    for p in range(4):
        q.append('v_cvt_pk_bf16_f32 v%d, v%d, v%d' % (PF + 4 * t + p, s_ + 2 * p, s_ + 2 * p + 1))
merged = [z for xy in zip(*seq) for z in xy]
gap = len(merged) // (len(wb_loads) + 1)
for k, x in enumerate(merged):
    a(x)
    if k % gap == gap - 1 and wb_loads:
        a(wb_loads.pop(0))
assert not wb_loads
stamp2()
OO = 208
for t in range(2):
    for d in range(2):
        a('%s %s, %s, %s, 0' % (MFMA, vr(OO + 8 * t + 4 * d), vr(VF + 6 * d + 2 * t), vr(PF + 4 * t)))
for t in range(2):
    for e in range(0, 8, 2):
        a(pk('v_pk_mul_f32', OO + 8 * t + e, [OO + 8 * t + e, ('b', LS + t)]))
    for p in range(4):
        a('v_cvt_pk_bf16_f32 v%d, v%d, v%d' % (PF + 4 * t + p, OO + 8 * t + 2 * p, OO + 8 * t + 2 * p + 1))
    store('buffer_store_dwordx4 %s, v1, %s, s%d offen' % (vr(PF + 4 * t), srd(S_WS), 32 + t), sFD)
o_mark = a.vm_mark()
stamp2()
pair_base(sA, L.FA)
a('s_lshl_b32 s%d, s%d, 4' % (sB, sGT))
a('s_add_u32 s%d, s%d, s%d' % (sB, sB, sC))
a('s_lshl_b32 s%d, s%d, 2' % (sB, sB))
a('s_add_u32 s%d, s%d, s%d' % (sA, sA, sB))
a('v_lshlrev_b32 v241, 6, v0')
a('v_add_u32 v241, s%d, v241' % sA)
pair_base(sA, L.FA)
a('s_lshl_b32 s%d, s%d, 8' % (sB, sG))
a('s_add_u32 s%d, s%d, s%d' % (sA, sA, sB))
a('v_lshl_add_u32 v240, v0, 2, s%d' % sA)
a('s_lshl_b32 s%d, s%d, 2' % (sB, sW))
a('s_lshl_b32 s%d, 0x000f000f, s%d' % (sMK, sB))
a('s_mov_b32 s%d, s%d' % (sMK + 1, sMK))
red_addrs()
publish_setup(L.XB, L.SB, L.FB, True, 4)
a('s_mov_b32 s%d, s%d' % (sPC, sFD))
a('s_mov_b32 s%d, s%d' % (sPFC, sFAST))
pair_base(sA, L.O)
a('s_lshl_b32 s%d, s%d, 6' % (sB, sG))
a('s_lshl_b32 s%d, s%d, 2' % (sCc, sW))
a('s_add_u32 s%d, s%d, s%d' % (sB, sB, sCc))
a('s_lshl_b32 s%d, s%d, 10' % (sB, sB))
a('s_add_u32 s20, s%d, s%d' % (sA, sB))
for t in range(1, 4):
    a('s_add_u32 s%d, s20, %d' % (20 + t, 16384 * t))
a.wait_vm(o_mark)
a('s_mov_b64 exec, 3')
store('buffer_store_dword v%d, v241, %s, 0 offen' % (V_T, srd(S_WS)), sFAST)
a('s_mov_b64 exec, -1')
stamp()
a('s_cmp_eq_u32 s%d, 7' % sJ)
a('s_cbranch_scc1 L_next_pair')


def wd_bases():
    a('s_lshl_b32 s%d, s%d, 2' % (sA, sJ))
    a('s_mul_i32 s%d, s%d, %d' % (sA, sA, 56 * 1024))
    a('s_mul_i32 s%d, s%d, %d' % (sB, sW, 14 * 1024))
    a('s_add_u32 s%d, s%d, s%d' % (sA, sA, sB))
    a('s_add_u32 s%d, s%d, %d' % (sO, sA, L.WD))
    quarter_offsets(4, 56 * 1024)


def wd_load(fi):
    kk, t = fi >> 2, fi & 3
    return ('buffer_load_dwordx4 %s, v1, %s, s%d offen offset:%d sc1' %
            (ar(4 * fi), srd(S_WS), sO + 4 * t + (kk >> 2), 1024 * (kk & 3)))


WD_CH = [(0, 0), (0, 56)]
BO, BACC, BRD, BTMP = 66, 130, 194, 226
a('s_cmp_eq_u32 s%d, 0' % sPAIR)
a('s_cbranch_scc0 L_b_start')
for k in range(4):
    a('v_lshlrev_b32 v236, 16, v%d' % (228 + k))
    a('v_and_b32 v237, 0xffff0000, v%d' % (228 + k))
    a('v_accvgpr_write_b32 a%d, v236' % (A_B2 + 2 * k))
    a('v_accvgpr_write_b32 a%d, v237' % (A_B2 + 2 * k + 1))
a.label('L_b_start')
CWW = 66
sCI = 41
a('s_lshr_b32 s%d, s%d, 3' % (sA, sC))
a('s_mul_i32 s%d, s%d, 7' % (sA, sA))
a('s_add_u32 s%d, s%d, s%d' % (sCI, sA, sJ))
a('s_lshl_b32 s%d, s%d, 3' % (sA, sCI))
a('s_lshl_b32 s%d, s%d, 1' % (sB, sW))
a('s_add_u32 s%d, s%d, s%d' % (sA, sA, sB))
a('s_mul_i32 s%d, s%d, %d' % (sB, sA, 14 * 1024))
a('s_add_u32 s%d, s%d, %d' % (sO, sB, L.WC))
quarter_offsets(2, 14 * 1024)


def c_wload(idx):
    u, k = idx >> 1, idx & 1
    return ('buffer_load_dwordx4 %s, v1, %s, s%d offen offset:%d sc1' %
            (vr(CWW + 4 * idx), srd(S_WS), sO + 4 * k + (u >> 2), 1024 * (u & 3)))


def red_writes(acc, tile):
    return ['ds_write_b128 v248, %s offset:%d' % (vr(acc + 4 * t), (tile >> 1) * 32768 + (tile & 1) * 4096 + t * 1024)
            for t in range(4)]


def red_reads(st, rd):
    return ['ds_read_b128 %s, v249 offset:%d' % (vr(rd + (b * 2 + k) * 4), st * 32768 + b * 8192 + k * 1024)
            for b in range(4) for k in range(2)]


def add8(dst, x, y, packed):
    if packed:
        return ['v_pk_add_f32 %s, %s, %s' % (vr(dst + e, 2), vr(x + e, 2), vr(y + e, 2)) for e in range(0, 8, 2)]
    return ['v_add_f32 v%d, v%d, v%d' % (dst + e, x + e, y + e) for e in range(8)]


def finish_pre(st, is_d, tmp):
    res = A_RES + 4 * st
    o = ['v_accvgpr_read_b32 v%d, a%d' % (tmp + 8 + p, res + p) for p in range(4)]
    for p in range(4):
        o += ['v_lshlrev_b32 v%d, 16, v%d' % (tmp + 2 * p, tmp + 8 + p),
              'v_and_b32 v%d, 0xffff0000, v%d' % (tmp + 2 * p + 1, tmp + 8 + p)]
    if is_d:
        o += ['v_accvgpr_read_b32 v%d, a%d' % (tmp + 8 + e, A_B2 + e) for e in range(8)]
        o += ['v_add_f32 v%d, v%d, v%d' % (tmp + e, tmp + e, tmp + 8 + e) for e in range(8)]
    return o


def finish_sum(st, rd, tmp, pk, packed):
    o = add8(rd, rd, rd + 8, packed) + add8(rd + 16, rd + 16, rd + 24, packed) + add8(rd, rd, rd + 16, packed)
    o += add8(tmp, tmp, rd, packed)
    o += ['v_cvt_pk_bf16_f32 v%d, v%d, v%d' % (pk + p, tmp + 2 * p, tmp + 2 * p + 1) for p in range(4)]
    o += ['v_accvgpr_write_b32 a%d, v%d' % (A_RES + 4 * st + p, pk + p) for p in range(4)]
    return o


def owner_stats(tmp, s1, t):
    a('v_pk_add_f32 %s, %s, %s' % (vr(t, 2), vr(tmp, 2), vr(tmp + 2, 2)))
    a('v_pk_add_f32 %s, %s, %s' % (vr(t + 2, 2), vr(tmp + 4, 2), vr(tmp + 6, 2)))
    a('v_pk_add_f32 %s, %s, %s' % (vr(t, 2), vr(t, 2), vr(t + 2, 2)))
    a('v_add_f32 v%d, v%d, v%d' % (s1, t, t + 1))
    a('v_pk_mul_f32 %s, %s, %s' % (vr(t, 2), vr(tmp, 2), vr(tmp, 2)))
    for e in (2, 4, 6):
        a('v_pk_fma_f32 %s, %s, %s, %s' % (vr(t, 2), vr(tmp + e, 2), vr(tmp + e, 2), vr(t, 2)))
    a('v_add_f32 v%d, v%d, v%d' % (s1 + 1, t, t + 1))
    for x, y in zip(xg_reduce(s1, t), xg_reduce(s1 + 1, t + 1)):
        a(x)
        a(y)


def publish_data(st, pk):
    store('buffer_store_dwordx4 %s, v1, %s, s%d offen offset:0' % (vr(pk), srd(S_WS), sPX if st == 0 else sPX2), sPC)


def publish_stats(tmps, t, s1):
    a('v_and_b32 v%d, 15, v0' % V_TOK)
    a('v_lshlrev_b32 v%d, 3, v%d' % (t + 4, V_TOK))
    for st in range(2):
        owner_stats(tmps[st], s1 + 2 * st, t)
    a('s_mov_b64 exec, 0xffff')
    store('buffer_store_dwordx2 %s, v%d, %s, s%d offen' % (vr(s1, 2), t + 4, srd(S_WS), sPS), sPC)
    a('s_add_u32 s%d, s%d, %d' % (sPS, sPS, 2 * 1792))
    store('buffer_store_dwordx2 %s, v%d, %s, s%d offen' % (vr(s1 + 2, 2), t + 4, srd(S_WS), sPS), sPC)
    a('s_mov_b64 exec, -1')


def publish_flags(lsh, between=()):
    a('v_lshlrev_b32 v241, %d, v0' % lsh)
    a('v_add_u32 v241, s%d, v241' % sPF)
    set_flags(241, 2, sPFC, V_T, between)


def run_tiles(tile_items, extras):
    for tile in range(4):
        if tile and '--diag3' in sys.argv:
            stamp()
        items = tile_items(tile)
        ex = list(extras.get(tile, []))
        free = [k for k, it in enumerate(items) if k >= 3 and not it[2]]
        per = -(-len(ex) // max(1, len(free))) if ex else 0
        for k, (pre, m, post) in enumerate(items):
            for x in pre:
                x()
            a(m)
            if post:
                post()
            elif k >= 3:
                for _ in range(per):
                    if ex:
                        x = ex.pop(0)
                        if callable(x):
                            x()
                        else:
                            a(x)
        assert not ex


poll(240)
a('s_barrier')
a('s_or_b32 s%d, s2, s%d' % (sA, sW))
a('s_or_b32 s%d, s%d, s%d' % (sA, sA, sPAIR))
a('s_cmp_eq_u32 s%d, 0' % sA)
a('s_cbranch_scc0 L_noepoch')
a('s_add_u32 s%d, s%d, 1' % (sA, sEP))
a('v_mov_b32 v239, s%d' % sA)
a('s_mov_b64 exec, 1')
a('buffer_store_dword v239, off, %s, 0 sc1' % srd(S_WS))
a.vm_issued -= 1
a('s_mov_b64 exec, -1')
a.label('L_noepoch')
stamp()


def b_oload(tile, i):
    return 'buffer_load_dwordx4 %s, v1, %s, s%d offen offset:%d sc1' % (vr(BO + (tile * 4 + i) * 4), srd(S_WS), 20 + tile, 1024 * i)


om = {}
for tile in range(2):
    for i in range(4):
        a(b_oload(tile, i))
        om[(tile, i)] = a.vm_mark()


def b_tile(tile):
    items = []
    for i in range(4):
        for t in range(4):
            r = BACC + (tile * 4 + t) * 4
            pre = [(lambda tl=tile, ii=i: a.wait_vm(om[(tl, ii)]))] if t == 0 else []
            post = None
            if tile < 2 and t == 1:
                def post(tl=tile + 2, ii=i):
                    a(b_oload(tl, ii))
                    om[(tl, ii)] = a.vm_mark()
            if tile >= 2 and t == 1:
                def post(idx=4 * (tile - 2) + i):
                    a(c_wload(idx))
            items.append((pre, '%s %s, %s, %s, %s' % (MFMA, vr(r), vr(BW + (i * 4 + t) * 4), vr(BO + (tile * 4 + i) * 4),
                                                      '0' if i == 0 else vr(r)), post))
    return items


BT0, BT1, BPK = 226, 2, 18
run_tiles(b_tile, {1: red_writes(BACC, 0), 2: red_writes(BACC + 16, 1), 3: red_writes(BACC + 32, 2)})
stamp2()
for x in red_writes(BACC + 48, 3):
    a(x)
for x in finish_pre(0, False, BT0) + finish_pre(1, False, BT1):
    a(x)
for i in range(8, 16):
    a(c_wload(i))
a('s_waitcnt lgkmcnt(0)')
a('s_barrier')
stamp2()
BRD1 = 34
for x in red_reads(0, BRD) + red_reads(1, BRD1):
    a(x)
NMID = int(([x[7:] for x in sys.argv if x.startswith('--nmid=')] + ['8'])[0])
for i in range(16, 16 + NMID):
    a(c_wload(i))
a('s_waitcnt lgkmcnt(8)')
for x in finish_sum(0, BRD, BT0, BPK, True):
    a(x)
publish_data(0, BPK)
a('s_waitcnt lgkmcnt(0)')
for x in finish_sum(1, BRD1, BT1, BPK + 4, True):
    a(x)
publish_data(1, BPK + 4)
stamp2()
publish_stats([BT0, BT1], 36, 32)
b_mark = a.vm_mark()
a('v_lshlrev_b32 v236, 7, v0')
a('v_add_u32 v236, s%d, v236' % sPF)
for i in range(16 + NMID, 28):
    a(c_wload(i))
CA = [2, 10]
XF, NXF = 18, 8
GTMP, GH = 50, 58
CCS, CB1, CB1R = 178, 186, 194
CSTR = 198
CMR = 214
VGA = 218
a('v_lshrrev_b32 v%d, 4, v0' % V_G)
a('v_and_b32 v%d, 15, v0' % V_TOK)
pair_base(sA, L.FB)
a('s_lshl_b32 s%d, s%d, 9' % (sB, sS))
a('s_add_u32 s%d, s%d, s%d' % (sA, sA, sB))
a('v_lshl_add_u32 v240, v0, 2, s%d' % sA)
a('s_mov_b32 s%d, 0x3fff3fff' % sMK)
a('s_mov_b32 s%d, 0x3fff3fff' % (sMK + 1))
pair_base(20, L.XB)
a('s_mul_i32 s%d, s%d, %d' % (sB, sS, 8 * 14336))
a('s_add_u32 s20, s20, s%d' % sB)
a('s_lshl_b32 s%d, s%d, 12' % (sB, sW))
a('s_add_u32 s20, s20, s%d' % sB)
a('s_add_u32 s21, s%d, %d' % (sB, L.L_R2))
pair_base(22, L.SB)
a('s_lshl_b32 s%d, s%d, 3' % (sB, sS))
a('s_add_u32 s%d, s%d, s%d' % (sB, sB, sW))
a('s_mul_i32 s%d, s%d, 1792' % (sB, sB))
a('s_add_u32 s22, s22, s%d' % sB)
a('s_add_u32 s23, s22, %d' % (4 * 1792))
pair_base(32, L.H)
a('s_mul_i32 s%d, s%d, %d' % (sB, sS, 8 * 56 * 1024))
a('s_add_u32 s32, s32, s%d' % sB)
a('s_lshl_b32 s%d, s%d, 2' % (sB, sCI))
a('s_add_u32 s%d, s%d, s%d' % (sB, sB, sW))
a('s_lshl_b32 s%d, s%d, 10' % (sCc, sB))
a('s_add_u32 s32, s32, s%d' % sCc)
pair_base(33, L.FC)
a('s_lshl_b32 s%d, s%d, 11' % (sCc, sS))
a('s_add_u32 s33, s33, s%d' % sCc)
a('s_lshl_b32 s%d, s%d, 2' % (sB, sB))
a('s_add_u32 s33, s33, s%d' % sB)
a('v_mov_b32 v241, s33')
a('v_mov_b32 v242, 0x%x' % INV)
a('v_cmp_eq_u32 vcc, 0, v0')
a('v_cndmask_b32 v241, v242, v241, vcc')
a('v_lshlrev_b32 v238, 3, v%d' % V_TOK)
a('v_lshl_add_u32 v238, v%d, 7, v238' % V_G)
a('v_mov_b32 v242, 0x%x' % INV)
a('v_cmp_lt_u32 vcc, 1, v%d' % V_G)
a('v_cndmask_b32 v239, 0, v242, vcc')
a('v_or_b32 v239, v239, v238')
a('v_add_u32 v252, %d, v1' % L.L_R2)
a('v_lshlrev_b32 v246, 3, v%d' % V_TOK)
a('v_add_u32 v246, %d, v246' % L.L_STC)
GA = 2.0 * 0.7978845608028654 * 1.4426950408889634
GB = GA * 0.044715
a('v_mov_b32 v%d, %s' % (VGA, f2h(-GA)))
a('v_mov_b32 v%d, %s' % (VGA + 1, f2h(-GA)))
a('s_mov_b32 s34, %s' % f2h(-GB))
a('s_mov_b32 s35, %s' % f2h(-GB))
wd_bases_hi = True
a('s_lshl_b32 s%d, s%d, 3' % (sA, sCI))
a('s_lshl_b32 s%d, s%d, 1' % (sB, sW))
a('s_add_u32 s%d, s%d, s%d' % (sA, sA, sB))
a('s_lshl_b32 s24, s%d, 5' % sA)
a('v_lshlrev_b32 v248, 3, v%d' % V_G)
for k in range(2):
    a('buffer_load_dwordx2 %s, v248, %s, s24 offen offset:%d' % (vr(CB1R + 2 * k, 2), srd(S_B1), 32 * k))
a.wait_vm(b_mark)
a('s_mov_b64 exec, 3')
store('buffer_store_dword v%d, v236, %s, 0 offen' % (V_T, srd(S_WS)), sPFC)
a('s_mov_b64 exec, -1')
stamp()

poll(240, 256)
stamp()


TORD = [0, 4, 1, 5, 2, 6, 3, 7]


def c_dma_setup(t):
    return ['s_add_u32 s36, s20, %d' % (TORD[t] * 14336), 's_add_u32 m0, s21, %d' % ((t & 3) * 16384)]


def c_dma(t, i):
    return 'buffer_load_dwordx4 v1, %s, s36 offen offset:%d sc1 lds' % (srd(S_WS), 1024 * i)


dm = {}
for x in c_dma_setup(0) + [c_dma(0, i) for i in range(4)]:
    a(x)
dm[0] = a.vm_mark()
wlate = {}
for tt in range(2):
    for i in range(4):
        a('buffer_load_dwordx2 %s, v%d, %s, s%d offen offset:%d sc1' %
          (vr(CSTR + 8 * tt + 2 * i, 2), 239 if i == 3 else 238, srd(S_WS), 22 + tt, 512 * i))
amark['cst'] = a.vm_mark()
for x in c_dma_setup(1) + [c_dma(1, i) for i in range(4)]:
    a(x)
dm[1] = a.vm_mark()
wd_bases()
t0_loads = []
b1_unpack = []
for k in range(2):
    for p in range(2):
        b1_unpack += ['v_lshlrev_b32 v%d, 16, v%d' % (CB1 + 4 * k + 2 * p, CB1R + 2 * k + p),
                      'v_and_b32 v%d, 0xffff0000, v%d' % (CB1 + 4 * k + 2 * p + 1, CB1R + 2 * k + p)]
a.wait_vm(dm[0])
a('s_barrier')
stamp()


def c_xread(t, u):
    n = t * 14 + u
    return 'ds_read_b128 %s, v252 offset:%d' % (vr(XF + 4 * (n % NXF)), (t & 3) * 16384 + u * 1024)


def gelu_pre(t):
    z, m = CA[t & 1], CMR + 2 * (t & 1)
    P = range(0, 8, 2)
    o = ['v_pk_fma_f32 %s, %s, %s, %s op_sel_hi:[1,0,1] neg_lo:[0,1,0] neg_hi:[0,1,0]' % (vr(z + e, 2), vr(CCS + e, 2), vr(m, 2), vr(z + e, 2)) for e in P]
    o += ['v_pk_fma_f32 %s, %s, %s, %s op_sel:[0,1,0] op_sel_hi:[1,1,1]' % (vr(z + e, 2), vr(z + e, 2), vr(m, 2), vr(CB1 + e, 2)) for e in P]
    o += ['v_pk_mul_f32 %s, %s, %s' % (vr(GTMP + e, 2), vr(z + e, 2), vr(z + e, 2)) for e in P]
    o += ['v_pk_fma_f32 %s, %s, s[34:35], %s' % (vr(GTMP + e, 2), vr(GTMP + e, 2), vr(VGA, 2)) for e in P]
    o += ['v_pk_mul_f32 %s, %s, %s' % (vr(GTMP + e, 2), vr(GTMP + e, 2), vr(z + e, 2)) for e in P]
    return o


def gelu_mid():
    o = {}
    for e in range(8):
        o.setdefault(2 * e, []).append('v_exp_f32 v%d, v%d' % (GTMP + e, GTMP + e))
        o.setdefault(2 * e + 3, []).append('v_add_f32 v%d, 1.0, v%d' % (GTMP + e, GTMP + e))
    for e in range(6):
        o.setdefault(16 + 2 * e, []).append('v_rcp_f32 v%d, v%d' % (GTMP + e, GTMP + e))
    o.setdefault(25, []).append('v_rcp_f32 v%d, v%d' % (GTMP + 6, GTMP + 6))
    o.setdefault(27, []).append('v_rcp_f32 v%d, v%d' % (GTMP + 7, GTMP + 7))
    return o


def gelu_post(t):
    z, h = CA[t & 1], GH + 4 * (t & 1)
    o = ['v_pk_mul_f32 %s, %s, %s' % (vr(GTMP + e, 2), vr(GTMP + e, 2), vr(z + e, 2)) for e in range(0, 8, 2)]
    o += ['v_cvt_pk_bf16_f32 v%d, v%d, v%d' % (h + p, GTMP + 2 * p, GTMP + 2 * p + 1) for p in range(4)]
    return o


def gelu_packed(t):
    z, m, h = CA[t & 1], CMR + 2 * (t & 1), GH + 4 * (t & 1)
    P = range(0, 8, 2)
    for e in P:
        a('v_pk_fma_f32 %s, %s, %s, %s op_sel_hi:[1,0,1] neg_lo:[0,1,0] neg_hi:[0,1,0]' % (vr(z + e, 2), vr(CCS + e, 2), vr(m, 2), vr(z + e, 2)))
    for e in P:
        a('v_pk_fma_f32 %s, %s, %s, %s op_sel:[0,1,0] op_sel_hi:[1,1,1]' % (vr(z + e, 2), vr(z + e, 2), vr(m, 2), vr(CB1 + e, 2)))
    for e in P:
        a('v_pk_mul_f32 %s, %s, %s' % (vr(GTMP + e, 2), vr(z + e, 2), vr(z + e, 2)))
    for e in P:
        a('v_pk_fma_f32 %s, %s, s[34:35], %s' % (vr(GTMP + e, 2), vr(GTMP + e, 2), vr(VGA, 2)))
    for e in P:
        a('v_pk_mul_f32 %s, %s, %s' % (vr(GTMP + e, 2), vr(GTMP + e, 2), vr(z + e, 2)))
    for e in range(8):
        a('v_exp_f32 v%d, v%d' % (GTMP + e, GTMP + e))
    for e in P:
        a('v_pk_add_f32 %s, %s, 1.0 op_sel_hi:[1,0]' % (vr(GTMP + e, 2), vr(GTMP + e, 2)))
    for e in range(8):
        a('v_rcp_f32 v%d, v%d' % (GTMP + e, GTMP + e))
    for e in P:
        a('v_pk_mul_f32 %s, %s, %s' % (vr(GTMP + e, 2), vr(GTMP + e, 2), vr(z + e, 2)))
    for p in range(4):
        a('v_cvt_pk_bf16_f32 v%d, v%d, v%d' % (h + p, GTMP + 2 * p, GTMP + 2 * p + 1))


hmk, fmk = {}, {}


def h_store(t):
    def f():
        a('s_add_u32 s24, s32, %d' % (TORD[t] * 56 * 1024))
        store('buffer_store_dwordx4 %s, v1, %s, s24 offen' % (vr(GH + 4 * (t & 1)), srd(S_WS)), sFH)
        hmk[t] = a.vm_mark()
    return f


def h_flag(t):
    def f():
        a.wait_vm(hmk[t])
        store('buffer_store_dword v%d, v241, %s, 0 offen offset:%d' % (V_T, srd(S_WS), 256 * TORD[t]), sFAST)
    return f


def wd_block(fis, wave):
    def f():
        skip = newlab('L_wd')
        a('s_cmp_eq_u32 s24, %d' % wave)
        a('s_cbranch_scc0 %s' % skip)
        for fi in fis:
            a(wd_load(fi))
            a.vm_issued -= 1
        a.label(skip)
    return f


cst_fill = []
for tt in range(2):
    r = CSTR + 8 * tt
    for c_ in range(2):
        cst_fill += ['v_add_f32 v%d, v%d, v%d' % (r + c_, r + c_, r + 2 + c_),
                     'v_add_f32 v%d, v%d, v%d' % (r + 4 + c_, r + 4 + c_, r + 6 + c_),
                     'v_add_f32 v%d, v%d, v%d' % (r + c_, r + c_, r + 4 + c_)]
    cst_fill += xg_reduce(r, r + 2) + xg_reduce(r + 1, r + 3) + stats_finish(r, r + 1, r + 2, True)
a('s_lshl_b32 s%d, s%d, 7' % (sA, sW))
a('v_add_u32 v247, s%d, v246' % sA)
cst_fill += ['ds_write_b64 v247, %s' % vr(CSTR, 2), 'ds_write_b64 v247, %s offset:512' % vr(CSTR + 8, 2)] + b1_unpack
LOOKX = 6


A_CCS = 244


DFIRST = [194, 198, 202, 206, 210, 220, 224, 228, 232]
hm = {}


def emit_c_loop(wd_list):
    pass0 = bool(wd_list)
    if not pass0:
        for e in range(8):
            a('v_accvgpr_read_b32 v%d, a%d' % (CCS + e, A_CCS + e))
    for u in range(LOOKX):
        a(c_xread(0, u))
    for t in range(8):
        nonvec = {}

        def put(k, x):
            nonvec.setdefault(k, []).append(x)
        for u in range(14):
            n = t * 14 + u
            m = n + LOOKX
            if m < 8 * 14:
                put(2 * u + 1, c_xread(m // 14, m % 14))
            if u % 2 == 1 and n + 1 < 8 * 14:
                put(2 * u + 1, 's_waitcnt lgkmcnt(%d)' % min(LOOKX - 2, 8 * 14 - 1 - (n + 2)))
        if t < 7:
            nonvec[14] = [('bar', t + 1)] + nonvec.get(14, [])
        if t + 2 < 8:
            su = c_dma_setup(t + 2)
            put(0, su[0])
            put(0, su[1])
            for i in range(4):
                put(2 + 2 * i, ('dma', t + 2, i))
        if t >= 3:
            put(20, ('call', h_flag(t - 3)))
        if t == 1:
            put(0, 's_add_u32 s22, s25, 12288')
        if t == 5:
            def issue_d0():
                amark['d0'] = early_issue(244, 243)
            put(22, ('call', issue_d0))
        if t == 6:
            put(2, ('call', lambda: early_check(244, 243, amark['d0'])))
        if t in (6, 7):
            for k, q in zip((4, 6, 8, 20, 22) if t == 6 else (2, 4, 6, 8), range(0, 5) if t == 6 else range(5, 9)):
                put(k, ('h0', q))
        if t < 7:
            for k in (10, 12, 13, 16, 18, 22, 24, 26):
                if wd_list:
                    put(k, wd_load(wd_list.pop(0)))
        if t > 0:
            put(17, 'ds_read_b64 %s, v246 offset:%d' % (vr(CMR + 2 * (t & 1), 2), 128 * TORD[t]))
        if t == 0:
            for k, it in enumerate(t0_loads):
                put(k, ('t0', it))
        valu = gelu_mid() if t >= 1 else {}
        if t >= 2:
            for x in gelu_post(t - 2):
                a(x)
            h_store(t - 2)()
        if t >= 1:
            for x in gelu_pre(t - 1):
                a(x)
        fill = list(cst_fill) if t == 0 else []
        first = 8
        fi = 0
        for k in range(28):
            u, kk = k >> 1, k & 1
            n = t * 14 + u
            if t == 0 and k == 0:
                a('s_waitcnt lgkmcnt(%d)' % (LOOKX - 2))
            if t == 0 and kk == 0 and u in wlate:
                a.wait_vm(wlate[u])
            if t == 0 and k == first:
                a.wait_vm(amark['cst'])
            r = CA[t & 1] + 4 * kk
            a('%s %s, %s, %s, %s' % (MFMA, vr(r), vr(CWW + 4 * (2 * u + kk)), vr(XF + 4 * (n % NXF)), '0' if u == 0 else vr(r)))
            if pass0 and t == 0:
                a('%s %s, %s, %s, %s' % (MFMA, vr(CCS + 4 * kk), vr(CWW + 4 * (2 * u + kk)), ar(A_ONES), '0' if u == 0 else vr(CCS + 4 * kk)))
            for it in nonvec.get(k, []):
                if isinstance(it, str):
                    a(it)
                elif it[0] == 'bar':
                    a.wait_vm(dm[it[1]])
                    a('s_barrier')
                elif it[0] == 'dma':
                    a(c_dma(it[1], it[2]))
                    dm[it[1]] = a.vm_mark()
                elif it[0] == 'call':
                    it[1]()
                elif it[0] == 'h0':
                    q = it[1]
                    a('buffer_load_dwordx4 %s, v1, %s, s%d offen offset:%d sc1' %
                      (vr(DFIRST[q] if q < 9 else 66 + 4 * q), srd(S_WS), (25, 27, 29, 22)[q >> 2], 1024 * (q & 3)))
                    hm[q] = a.vm_mark()
                elif it[0] == 't0':
                    if it[1][0] == 'w':
                        a(c_wload(it[1][1]))
                        wlate[it[1][1] >> 1] = a.vm_mark()
                    else:
                        a(it[1][1])
                        amark['cst'] = a.vm_mark()
            for x in valu.get(k, []):
                a(x)
            if fill and k >= first:
                want = -(-(len(fill)) * (k - first + 1) // (28 - first))
                while fi < want:
                    a(fill[fi])
                    fi += 1
        assert fi == len(fill)
        if t == 0:
            a('s_waitcnt lgkmcnt(0)')
            a('s_barrier')
            a('ds_read_b64 %s, v246 offset:0' % vr(CMR, 2))
            if pass0:
                for e in range(8):
                    a('v_accvgpr_write_b32 a%d, v%d' % (A_CCS + e, CCS + e))
            a('s_waitcnt lgkmcnt(0)')
    assert not wd_list


pair_base(sA, L.FC)
a('s_lshl_b32 s%d, s%d, 10' % (sB, sG))
a('s_add_u32 s%d, s%d, s%d' % (sA, sA, sB))
a('s_mul_i32 s%d, s%d, 56' % (sB, sW))
a('s_add_u32 s%d, s%d, s%d' % (sA, sA, sB))
a('v_lshl_add_u32 v243, v0, 2, s%d' % sA)
a('s_mov_b32 s%d, 0x3fff' % sMK2)
a('s_mov_b32 s%d, 0' % (sMK2 + 1))
pair_base(sA, L.H)
a('s_mul_i32 s%d, s%d, %d' % (sB, sG, 4 * 56 * 1024))
a('s_add_u32 s%d, s%d, s%d' % (sA, sA, sB))
a('s_mul_i32 s%d, s%d, %d' % (sB, sW, 14 * 1024))
a('s_add_u32 s25, s%d, s%d' % (sA, sB))
a('s_add_u32 s27, s25, 4096')
a('s_add_u32 s29, s25, 8192')
n_before = a.vm_issued
dm_init = dict(dm)
a('s_cmp_eq_u32 s%d, 0' % sPAIR)
a('s_cbranch_scc0 L_c_loop1')
emit_c_loop(list(range(*WD_CH[1])))
extra = a.vm_issued - n_before
with OutOfLine():
    a.label('L_c_loop1')
    a.vm_issued = n_before
    dm.clear()
    dm.update(dm_init)
    emit_c_loop([])
    a('s_branch L_c_done')
a.label('L_c_done')
stamp()
DH, DACC, DRD = 66, 130, 194
DRING, DLOOK = 16, 10
red_addrs()
publish_setup(L.XA[1], L.SA[1], L.FX[1], False, 5)
a('s_and_b32 s%d, s%d, 1' % (sA, sG))
a('s_lshr_b32 s%d, s%d, 1' % (sB, sW))
a('s_and_b32 s%d, s%d, s%d' % (sA, sA, sB))
a('s_xor_b32 s%d, s%d, 1' % (sA, sA))
a('s_and_b32 s%d, s%d, s%d' % (sPC, sFD, sA))
a('s_mov_b32 s%d, s%d' % (sPFC, sFAST))
a('s_cmp_eq_u32 s%d, 0' % sA)
a('s_cselect_b32 s%d, 0, 0x%x' % (sCc, INV))
a('s_add_u32 s%d, s%d, 1' % (sA, sS))
a('s_lshl_b32 s%d, s%d, 5' % (sA, sA))
a('s_lshl_b32 s%d, s%d, 1' % (sB, sJ))
a('s_add_u32 s%d, s%d, s%d' % (sA, sA, sB))
a('s_and_b32 s%d, s%d, 1' % (sB, sW))
a('s_add_u32 s%d, s%d, s%d' % (sA, sA, sB))
a('s_lshl_b32 s%d, s%d, 2' % (sA, sA))
a('s_add_u32 s%d, s%d, %d' % (sA, sA, L.FH))
a('s_or_b32 s20, s%d, s%d' % (sA, sCc))
pair_base(sA, L.H)
a('s_mul_i32 s%d, s%d, %d' % (sB, sG, 4 * 56 * 1024))
a('s_add_u32 s%d, s%d, s%d' % (sA, sA, sB))
a('s_mul_i32 s%d, s%d, %d' % (sB, sW, 14 * 1024))
a('s_add_u32 s%d, s%d, s%d' % (sO, sA, sB))
quarter_offsets(4, 56 * 1024)
a('s_cmp_eq_u32 s%d, 0' % sPAIR)
a('s_cbranch_scc1 L_d_nout')
owner_index()
a('s_mul_i32 s%d, s%d, 14336' % (sPX, sB))
a('s_lshl_b32 s%d, s%d, 6' % (sA, sA))
a('s_add_u32 s%d, s%d, s%d' % (sPX, sPX, sA))
a('s_add_u32 s%d, s%d, %d' % (sPX2, sPX, 2 * 14336))
a.label('L_d_nout')
a('v_and_b32 v%d, 15, v0' % V_TOK)
a('v_lshrrev_b32 v%d, 4, v0' % V_G)
a('v_mul_u32_u24 v242, 896, v%d' % V_TOK)
a('v_and_b32 v253, 1, v%d' % V_G)
a('v_lshl_add_u32 v242, v253, 5, v242')
a('v_lshrrev_b32 v253, 1, v%d' % V_G)
a('v_lshl_add_u32 v242, v253, 4, v242')


def d_hload(q):
    tile, kk = divmod(q, 14)
    return ('buffer_load_dwordx4 %s, v1, %s, s%d offen offset:%d sc1' %
            (vr(d_reg(q)), srd(S_WS), sO + 4 * tile + (kk >> 2), 1024 * (kk & 3)))


def d_reg(q):
    return DFIRST[q] if q < len(DFIRST) else DH + (q % DRING) * 4


dmk = {}
for q in range(len(DFIRST), DLOOK):
    a(d_hload(q))
    hm[q] = a.vm_mark()
dmk[1] = early_issue(244, 243, 256)
stamp()
for x in gelu_post(6):
    a(x)
h_store(6)()
a('s_waitcnt lgkmcnt(0)')
gelu_packed(7)
h_flag(5)()
h_store(7)()
stamp()

a('s_barrier')
stamp()


def d_tile(tile):
    items = []
    for kk in range(14):
        q = tile * 14 + kk
        for t in range(4):
            r = DACC + (tile * 4 + t) * 4
            pre = [(lambda qq=q: a.wait_vm(hm[qq]))] if t == 0 else []
            if t == 0 and q in (6, 12):
                pre.append(h_flag({6: 6, 12: 7}[q]))
            post = None
            if t == 0 and q + DLOOK < 56:
                def post(qq=q + DLOOK):
                    if qq % 14 == 0:
                        early_check(244, 243, dmk[qq // 14], 256 * (qq // 14))
                    a(d_hload(qq))
                    hm[qq] = a.vm_mark()
                    if qq % 14 == 6 and qq // 14 < 3:
                        dmk[qq // 14 + 1] = early_issue(244, 243, 256 * (qq // 14 + 1))
            items.append((pre, '%s %s, %s, %s, %s' % (MFMA, vr(r), ar((kk * 4 + t) * 4), vr(d_reg(q)),
                                                      '0' if kk == 0 else vr(r)), post))
    return items


def d_out_store(st, pk):
    a('s_nop 1')
    a('v_permlane16_swap_b32 v%d, v%d' % (pk, pk + 2))
    a('v_permlane16_swap_b32 v%d, v%d' % (pk + 1, pk + 3))
    a('buffer_store_dwordx4 %s, v242, %s, s%d offen %s' % (vr(pk), srd(S_OUT), sPX if st == 0 else sPX2, OUTSC))


def d_store(st, pk):
    fin, done = newlab('L_dfin'), newlab('L_ddone')
    a('s_cmp_eq_u32 s%d, 0' % sPAIR)
    a('s_cbranch_scc0 %s' % fin)
    publish_data(st, pk)
    a('s_branch %s' % done)
    a.label(fin)
    n = a.vm_issued
    d_out_store(st, pk)
    a.vm_issued = n
    a.label(done)


DT0, DT1, DPK, DSTT, DSTS = 226, 2, 18, 28, 36
stage0 = [lambda: (a('s_waitcnt lgkmcnt(0)'), a('s_barrier'))] + red_reads(0, DRD) + finish_pre(0, True, DT0)
stage0 += [lambda: a('s_waitcnt lgkmcnt(0)')] + finish_sum(0, DRD, DT0, DPK, False) + [lambda: d_store(0, DPK)]
run_tiles(d_tile, {1: red_writes(DACC, 0), 2: red_writes(DACC + 16, 1), 3: red_writes(DACC + 32, 2) + stage0})
stamp2()
for x in red_writes(DACC + 48, 3):
    a(x)
for x in finish_pre(1, True, DT1):
    a(x)
a('s_waitcnt lgkmcnt(0)')
a('s_barrier')
stamp2()
for x in red_reads(1, DRD):
    a(x)
a('s_waitcnt lgkmcnt(0)')
for x in finish_sum(1, DRD, DT1, DPK + 4, True):
    a(x)
d_store(1, DPK + 4)
stamp()
a('s_cmp_eq_u32 s%d, 0' % sPAIR)
a('s_cbranch_scc0 L_next_pair')
publish_stats([DT0, DT1], DSTT, DSTS)
FHMODE = ([x[5:] for x in sys.argv if x.startswith('--fh=')] + ['after'])[0]
a('v_mov_b32 v240, s20')
if FHMODE == 'before':
    a('s_waitcnt vmcnt(0)')
    a('s_mov_b64 exec, 1')
    a('buffer_store_dword v%d, v240, %s, 0 offen sc1' % (V_T, srd(S_WS)))
    a('s_mov_b64 exec, -1')
    a('v_lshlrev_b32 v241, 8, v0')
    a('v_add_u32 v241, s%d, v241' % sPF)
    a('s_mov_b64 exec, 3')
    store('buffer_store_dword v%d, v241, %s, 0 offen' % (V_T, srd(S_WS)), sPFC)
    a('s_mov_b64 exec, -1')
else:
    publish_flags(8)
    if FHMODE == 'wait':
        a('s_waitcnt vmcnt(0)')
    a('s_mov_b64 exec, 1')
    a('buffer_store_dword v%d, v240, %s, 0 offen sc1' % (V_T, srd(S_WS)))
    a('s_mov_b64 exec, -1')
a.label('L_next_pair')
stamp()
a('s_add_u32 s%d, s%d, 1' % (sPAIR, sPAIR))
a('s_cmp_lt_u32 s%d, 2' % sPAIR)
a('s_cbranch_scc1 L_pair')

if PAD:
    a.label('L_padspin')
    a('s_memrealtime s[34:35]')
    a('s_waitcnt lgkmcnt(0)')
    a('s_sub_u32 s34, s34, s0')
    a('s_cmp_lt_u32 s34, %d' % PAD[0])
    a('s_cbranch_scc1 L_padspin')
if DBG:
    a('s_memtime s[32:33]')
    a('s_memrealtime s[34:35]')
    a('s_waitcnt lgkmcnt(0)')
    a('s_sub_u32 s32, s32, s26')
    a('s_sub_u32 s34, s34, s0')
    build_srd(S_TMP, P_DBG, 256)
    a('v_mov_b32 v2, s32')
    a('v_mov_b32 v3, s34')
    a('v_mov_b32 v4, s%d' % sFAST)
    a('v_mov_b32 v5, s%d' % sXCC)
    a('s_lshr_b32 s%d, s2, 6' % sA)
    a('s_lshl_b32 s%d, s%d, 4' % (sA, sA))
    a('s_and_b32 s%d, s2, 63' % sB)
    a('s_or_b32 s%d, s%d, s%d' % (sB, sB, sW))
    a('s_cmp_eq_u32 s%d, 0' % sB)
    a('s_cselect_b32 s%d, s%d, 0x%x' % (sA, sA, INV))
    a('v_mov_b32 v6, s%d' % sA)
    a('s_mov_b64 exec, 1')
    a('buffer_store_dwordx4 v[2:5], v6, %s, 0 offen' % srd(S_TMP))
    a('s_mov_b64 exec, -1')
if DIAG:
    stamp()
    a('s_mov_b32 s%d, 63' % sSTI)
    a('s_lshl_b64 exec, 1, s%d' % sSTI)
    a('v_mov_b32 v%d, s%d' % (V_STAMP, sERR))
    a('s_mov_b32 s%d, 62' % sSTI)
    a('s_lshl_b64 exec, 1, s%d' % sSTI)
    a('v_mov_b32 v%d, s%d' % (V_STAMP, sFAST))
    a('s_mov_b64 exec, -1')
    a('s_lshl_b32 s%d, s2, 2' % sA)
    a('s_add_u32 s%d, s%d, s%d' % (sA, sA, sW))
    a('s_lshl_b32 s%d, s%d, 8' % (sA, sA))
    a('v_lshlrev_b32 v2, 2, v0')
    a('s_add_u32 s%d, s%d, %d' % (sA, sA, L.WS_USED))
    a('s_mov_b32 s%d, 0x%x' % (S_WS + 2, L.WS_USED + 256 * 1024))
    a('buffer_store_dword v%d, v2, %s, s%d offen' % (V_STAMP, srd(S_WS), sA))
    if DBGST:
        build_srd(S_TMP, P_DBG, 256)
        a('v_readfirstlane_b32 s%d, v%d' % (sA, V_STAMP))
        a('s_nop 4')
        a('v_subrev_u32 v3, s%d, v%d' % (sA, V_STAMP))
        a('s_or_b32 s%d, s2, s%d' % (sB, sW))
        a('s_cmp_eq_u32 s%d, 0' % sB)
        a('s_cselect_b32 s%d, 0, 0x%x' % (sB, INV))
        a('v_or_b32 v2, s%d, v2' % sB)
        SEL = [int(x[6:]) for x in sys.argv if x.startswith('--sel=')]
        sel = SEL[0] if SEL else 1
        a('v_subrev_u32 v2, %d, v2' % (4 * sel))
        a('buffer_store_dword v3, v2, %s, 0 offen' % srd(S_TMP))
a.label('L_end')
a('s_endpgm')
a.ins.extend(ool)
a.label('L_code_end')

a.finalize()
body = a.text()

import os
hdr = open(os.path.join(os.path.dirname(os.path.abspath(__file__)), 'header.txt')).read()
out = hdr + '; @launch grid=(256,1,1) block=(256,1,1) lds=%d\n' % L.LDS_BYTES
out += '.amdgcn_target "amdgcn-amd-amdhsa--gfx950"\n.text\n.globl %s_kernel\n.p2align 8\n.type %s_kernel,@function\n%s_kernel:\n' % (NAME, NAME, NAME)
out += body
out += '''.section .rodata,"a"
.p2align 6
.amdhsa_kernel %s_kernel
  .amdhsa_next_free_vgpr 512
  .amdhsa_next_free_sgpr 102
  .amdhsa_accum_offset 256
  .amdhsa_group_segment_fixed_size 0
  .amdhsa_kernarg_size 88
  .amdhsa_user_sgpr_count 2
  .amdhsa_user_sgpr_kernarg_segment_ptr 1
  .amdhsa_system_sgpr_workgroup_id_x 1
.end_amdhsa_kernel
''' % NAME
sys.stdout.write(out)
```

```python
import struct
import sys
from asmlib import Asm
import layout as L

NAME = 'interleave_layers__sliding_local_dilated__mixer_channel_mlp__prompt'
DIAG = '--diag' in sys.argv
FASTMODE = ([x[7:] for x in sys.argv if x.startswith('--fast=')] + ['flags'])[0]
NOFAST = FASTMODE == 'none'
PAD = [int(x[6:]) for x in sys.argv if x.startswith('--pad=')]
DBG = '--dbg' in sys.argv or bool(PAD)
SPIN_LIMIT = 200000
OUTSC = ([x[8:] for x in sys.argv if x.startswith('--outsc=')] + [''])[0].replace('_', ' ')
SLEEP = int(([x[8:] for x in sys.argv if x.startswith('--sleep=')] + ['0'])[0])
INV = 0x80000000

a = Asm()

sXCC = 3
S_WS, S_TMP, S_B1, S_OUT = 4, 8, 12, 16
P_X, P_WQKV, P_WO, P_BX, P_W1, P_B1, P_W2, P_B2, P_OUT, P_DBG, P_WSP = 20, 22, 24, 26, 28, 30, 32, 34, 36, 38, 40
sS, sC, sG, sJ, sW, sT, sPAIR, sSPIN = 42, 43, 44, 45, 46, 47, 48, 49
sM1 = 50
sM2 = 58
sM0 = 66
sO = 74
sA, sB, sCc, sD = 90, 91, 92, 93
sMK = 94
sTS = 96
sGT = 98
sERR = 99
sEP = 1
sSTI = 100
sFAST = 101
sFD = 27
sPFC = 26
sFH = 25


def srd(n):
    return 's[%d:%d]' % (n, n + 3)


def vr(n, k=4):
    return 'v[%d:%d]' % (n, n + k - 1)


def ar(n, k=4):
    return 'a[%d:%d]' % (n, n + k - 1)


def sp(n):
    return 's[%d:%d]' % (n, n + 1)


def f2h(x):
    return '0x%08x' % struct.unpack('<I', struct.pack('<f', x))[0]


V_T, V_STAMP = 254, 255
V_TOK, V_G = 250, 251
MFMA = 'v_mfma_f32_16x16x32_bf16'


DIAG2 = '--diag2' in sys.argv
PREFPOS = ([x[7:] for x in sys.argv if x.startswith('--pref=')] + ['a'])[0]
PREF = PREFPOS != 'n'
TOUCH = '--notouch' not in sys.argv
STWAIT = '--stwait' in sys.argv
P2EARLY = '--p2early' in sys.argv
SKEW = [int(x[7:]) for x in sys.argv if x.startswith('--skew=')]
DBGST = '--dbgst' in sys.argv


def stamp2():
    if DIAG2:
        stamp()


def stamp():
    if not DIAG:
        return
    a('%s %s' % ('s_memrealtime' if '--rt' in sys.argv else 's_memtime', sp(sTS)))
    a('s_waitcnt lgkmcnt(0)')
    a('s_lshl_b64 exec, 1, s%d' % sSTI)
    a('v_mov_b32 v%d, s%d' % (V_STAMP, sTS))
    a('s_mov_b64 exec, -1')
    a('s_add_u32 s%d, s%d, 1' % (sSTI, sSTI))


ool = []


class OutOfLine:
    def __enter__(self):
        self.saved = a.ins
        a.ins = []

    def __exit__(self, *exc):
        ool.extend(a.ins)
        a.ins = self.saved


lab_no = [0]


def newlab(p):
    lab_no[0] += 1
    return '%s_%d' % (p, lab_no[0])


def emit_pref():
    a('s_getpc_b64 s[96:97]')
    a.label('L_pc')
    a('s_lshr_b32 s%d, s2, 3' % sA)
    a('s_lshl_b32 s%d, s%d, 11' % (sA, sA))
    a('s_lshl_b32 s%d, s%d, 9' % (sB, sW))
    a('s_add_u32 s%d, s%d, s%d' % (sA, sA, sB))
    a('v_lshlrev_b32 v21, 3, v0')
    a('v_add_u32 v21, s%d, v21' % sA)
    a('v_min_u32 v21, L_code_end-L_pc-8, v21')
    a('global_load_dwordx2 v[58:59], v21, s[96:97]')


def skew_store(point, have=False):
    if not SKEW or SKEW[0] != point:
        return
    if not have:
        a('s_memrealtime s[96:97]')
        a('s_waitcnt lgkmcnt(0)')
    build_srd(S_TMP, P_DBG, 256)
    a('s_and_b32 s%d, s2, 15' % sA)
    a('s_or_b32 s%d, s%d, s%d' % (sA, sA, sW))
    a('s_cmp_eq_u32 s%d, 0' % sA)
    a('s_cselect_b32 s%d, 0, 0x%x' % (sA, INV))
    a('s_lshr_b32 s%d, s2, 2' % sB)
    a('s_or_b32 s%d, s%d, s%d' % (sA, sA, sB))
    a('v_mov_b32 v21, s%d' % sA)
    a('v_mov_b32 v22, s96')
    a('s_mov_b64 exec, 1')
    a('buffer_store_dword v22, v21, %s, 0 offen' % srd(S_TMP))
    a.vm_issued -= 1
    a('s_mov_b64 exec, -1')


def build_srd(dst, ptr, nbytes):
    a('s_mov_b32 s%d, s%d' % (dst, ptr))
    a('s_and_b32 s%d, s%d, 0xffff' % (dst + 1, ptr + 1))
    a('s_mov_b32 s%d, 0x%x' % (dst + 2, nbytes))
    a('s_mov_b32 s%d, 0x20000' % (dst + 3))


def poll(voff, off2=None, sleep=None):
    lab, done = newlab('L_poll'), newlab('L_polldone')
    a('s_mov_b64 exec, %s' % sp(sMK))
    a('s_mov_b32 s%d, 0' % sSPIN)
    a.label(lab)
    a('buffer_load_dword v253, v%d, %s, 0 offen sc1' % (voff, srd(S_WS)))
    if off2 is not None:
        a('buffer_load_dword v245, v%d, %s, 0 offen offset:%d sc1' % (voff, srd(S_WS), off2))
    a('s_waitcnt vmcnt(0)')
    if off2 is not None:
        a('v_xor_b32 v245, s%d, v245' % sT)
        a('v_xor_b32 v253, s%d, v253' % sT)
        a('v_or_b32 v253, v253, v245')
        a('v_cmp_ne_u32 vcc, 0, v253')
    else:
        a('v_cmp_ne_u32 vcc, s%d, v253' % sT)
    a('s_nop 4')
    a('s_cbranch_vccz %s' % done)
    if sleep or SLEEP:
        a('s_sleep %d' % (sleep or SLEEP))
    a('s_add_u32 s%d, s%d, 1' % (sSPIN, sSPIN))
    a('s_cmp_lt_u32 s%d, %d' % (sSPIN, SPIN_LIMIT))
    a('s_cbranch_scc1 %s' % lab)
    a('s_add_u32 s%d, s%d, 1' % (sERR, sERR))
    a.label(done)
    a('s_mov_b64 exec, -1')


sMK2 = 30


def early_issue(dst, voff, off=0):
    a('s_mov_b64 exec, %s' % sp(sMK2))
    a('buffer_load_dword v%d, v%d, %s, 0 offen offset:%d sc1' % (dst, voff, srd(S_WS), off))
    a('s_mov_b64 exec, -1')
    return a.vm_mark()


def early_check(dst, voff, mark, off=0):
    ok = newlab('L_early')
    a.wait_vm(mark)
    a('s_mov_b64 exec, %s' % sp(sMK2))
    a('v_cmp_ne_u32 vcc, s%d, v%d' % (sT, dst))
    a('s_mov_b64 exec, -1')
    a('s_nop 2')
    a('s_cbranch_vccz %s' % ok)
    a('s_mov_b64 %s, %s' % (sp(sMK), sp(sMK2)))
    n = a.vm_issued
    if off:
        a('v_add_u32 v253, %d, v%d' % (off, voff))
        a('v_mov_b32 v%d, v253' % dst)
        poll(dst)
    else:
        poll(voff)
    a.vm_issued = n
    a.label(ok)


def store(fmt, cond=None):
    if cond is None or NOFAST or (FASTMODE == 'flags' and cond in (sFD, sFH, sPC)):
        a(fmt + ' sc1')
        return
    slow, done = newlab('L_slow'), newlab('L_st')
    a('s_cmp_eq_u32 s%d, 0' % cond)
    a('s_cbranch_scc1 %s' % slow)
    a(fmt)
    a('s_branch %s' % done)
    a.label(slow)
    a(fmt + ' sc1')
    a.vm_issued -= 1
    a.label(done)


def set_flags(voff, nlanes, cond=None, val=V_T, between=()):
    mark = a.vm_mark()
    for x in between:
        a(x)
    a.wait_vm(mark)
    a('s_mov_b64 exec, %d' % ((1 << nlanes) - 1))
    store('buffer_store_dword v%d, v%d, %s, 0 offen' % (val, voff, srd(S_WS)), cond)
    a('s_mov_b64 exec, -1')


def xg_reduce(x, t, op='v_add_f32'):
    return ['v_mov_b32 v%d, v%d' % (t, x),
            'v_permlane32_swap_b32 v%d, v%d' % (x, t),
            '%s v%d, v%d, v%d' % (op, x, x, t),
            'v_mov_b32 v%d, v%d' % (t, x),
            'v_permlane16_swap_b32 v%d, v%d' % (x, t),
            '%s v%d, v%d, v%d' % (op, x, x, t)]


EPS = 1e-5


def stats_finish(s1, s2, t, double_ln):
    o = ['v_mul_f32 v%d, %s, v%d' % (s1, f2h(1.0 / 448), s1),
         'v_mul_f32 v%d, %s, v%d' % (s2, f2h(1.0 / 448), s2),
         'v_fma_f32 v%d, -v%d, v%d, v%d' % (s2, s1, s1, s2),
         'v_max_f32 v%d, 0, v%d' % (s2, s2),
         'v_add_f32 v%d, %s, v%d' % (t, f2h(EPS), s2),
         'v_rsq_f32 v%d, v%d' % (t, t)]
    if not double_ln:
        o += ['v_mov_b32 v%d, v%d' % (s2, t)]
    else:
        o += ['v_mul_f32 v%d, v%d, v%d' % (s2, s2, t),
              'v_fmaak_f32 v%d, v%d, v%d, %s' % (s2, s2, t, f2h(EPS)),
              'v_rsq_f32 v%d, v%d' % (s2, s2),
              'v_mul_f32 v%d, v%d, v%d' % (s2, s2, t)]
    return o


def pair_base(dst, arr):
    a('s_mul_i32 s%d, s%d, %d' % (dst, sPAIR, arr[1] - arr[0]))
    a('s_add_u32 s%d, s%d, %d' % (dst, dst, arr[0]))


def quarter_offsets(n, stride):
    for t in range(n):
        if t:
            a('s_add_u32 s%d, s%d, %d' % (sO + 4 * t, sO + 4 * (t - 1), stride))
        for q in range(1, 4):
            a('s_add_u32 s%d, s%d, %d' % (sO + 4 * t + q, sO + 4 * t, 4096 * q))


sPX, sPS, sPF, sPC, sPX2 = 36, 37, 28, 29, 33


def stats_flags(delta, lsh):
    a('v_lshlrev_b32 v241, %d, v0' % lsh)
    a('s_add_u32 s%d, s%d, %d' % (sA, sPF, delta))
    a('v_add_u32 v241, s%d, v241' % sA)
    a('s_mov_b64 exec, 3')
    store('buffer_store_dword v%d, v241, %s, 0 offen' % (V_T, srd(S_WS)), sPFC)
    a('s_mov_b64 exec, -1')


a('s_cmp_ge_u32 s2, 256')
a('s_cbranch_scc1 L_end')
if '--perm' in sys.argv:
    a('s_and_b32 s90, s2, 7')
    a('s_lshr_b32 s91, s2, 3')
    a('s_and_b32 s91, s91, 7')
    a('s_and_b32 s2, s2, 0xc0')
    a('s_lshl_b32 s90, s90, 3')
    a('s_or_b32 s2, s2, s90')
    a('s_or_b32 s2, s2, s91')
SPRE = int(([x[7:] for x in sys.argv if x.startswith('--spre=')] + ['0'])[0])
if SPRE:
    a('s_getpc_b64 s[96:97]')
a('s_load_dwordx16 s[20:35], s[0:1], 0')
a('s_load_dwordx4 s[36:39], s[0:1], 64')
a('s_load_dwordx2 s[40:41], s[0:1], 80')
for i in range(SPRE):
    a('s_load_dword s98, s[96:97], %d' % (256 + 128 * i))
a('s_getreg_b32 s%d, hwreg(HW_REG_XCC_ID, 0, 4)' % sXCC)
a('s_and_b32 s%d, s2, 7' % sA)
a('s_lshr_b32 s%d, s2, 3' % sB)
a('s_lshr_b32 s%d, s%d, 4' % (sCc, sB))
a('s_lshl_b32 s%d, s%d, 1' % (sS, sA))
a('s_add_u32 s%d, s%d, s%d' % (sS, sS, sCc))
a('s_and_b32 s%d, s%d, 15' % (sC, sB))
a('s_lshr_b32 s%d, s%d, 3' % (sA, sC))
a('s_lshl_b32 s%d, s%d, 1' % (sG, sS))
a('s_add_u32 s%d, s%d, s%d' % (sG, sG, sA))
a('s_and_b32 s%d, s%d, 7' % (sJ, sC))
a('s_mov_b32 s%d, 0' % sERR)
if SKEW and SKEW[0] == 0:
    a('s_memrealtime s[96:97]')
a('v_lshrrev_b32 v2, 6, v0')
a('v_and_b32 v0, 63, v0')
a('v_readfirstlane_b32 s%d, v2' % sW)
a('v_lshlrev_b32 v1, 4, v0')
if DIAG:
    a('v_mov_b32 v%d, 0' % V_STAMP)
    a('s_mov_b32 s%d, 0' % sSTI)
stamp()
a('v_and_b32 v%d, 15, v0' % V_TOK)
a('v_lshrrev_b32 v%d, 4, v0' % V_G)
sSTG = 40
a('s_waitcnt lgkmcnt(0)')
if DBG:
    a('s_memtime s[26:27]')
    a('s_memrealtime s[0:1]')
    a('s_waitcnt lgkmcnt(0)')
skew_store(0, True)
build_srd(S_WS, P_WSP, L.WS_USED)
a('buffer_load_dword v%d, off, %s, 0 sc1' % (V_T, srd(S_WS)))
a('s_lshl_b32 s%d, s%d, 14' % (sSTG, sW))
a('s_add_u32 s%d, s%d, %d' % (sSTG, sSTG, L.L_R2))

build_srd(S_TMP, P_X, 2048 * 896)
a('v_mul_u32_u24 v2, 896, v%d' % V_TOK)
a('v_lshl_add_u32 v2, v%d, 3, v2' % V_G)
a('s_lshr_b32 s%d, s%d, 1' % (sA, sC))
a('s_lshl_b32 s%d, s%d, 3' % (sB, sS))
a('s_add_u32 s%d, s%d, s%d' % (sO + 0, sA, sB))
a('s_and_b32 s%d, s%d, 1' % (sA, sC))
a('s_mul_i32 s%d, s%d, 7' % (sA, sA))
a('s_add_u32 s%d, s%d, s%d' % (sO + 1, sA, sW))
a('s_cmp_lt_u32 s%d, 3' % sW)
a('s_cselect_b32 s%d, 0, 0x%x' % (sO + 2, INV))
a('s_mul_i32 s%d, s%d, 14336' % (sA, sO + 0))
a('s_lshl_b32 s%d, s%d, 6' % (sB, sO + 1))
a('s_add_u32 s%d, s%d, s%d' % (sA, sA, sB))
a('v_or_b32 v3, s%d, v2' % (sO + 2))
a('buffer_load_dwordx2 v[10:11], v2, %s, s%d offen' % (srd(S_TMP), sA))
a('buffer_load_dwordx2 v[12:13], v2, %s, s%d offen offset:32' % (srd(S_TMP), sA))
a('buffer_load_dwordx2 v[14:15], v3, %s, s%d offen offset:256' % (srd(S_TMP), sA))
a('buffer_load_dwordx2 v[16:17], v3, %s, s%d offen offset:288' % (srd(S_TMP), sA))

build_srd(S_TMP, P_WQKV, 448 * 2688)
qMAT, qU, qINV = sO + 3, sO + 4, sO + 5
a('s_lshl_b32 s%d, s%d, 4' % (sA, sW))
a('s_add_u32 s%d, s%d, s%d' % (sA, sA, sS))
a('s_cmp_lt_u32 s%d, 42' % sA)
a('s_cselect_b32 s%d, 0, 0x%x' % (qINV, INV))
a('s_min_u32 s%d, s%d, 41' % (sA, sA))
a('s_mul_i32 s%d, s%d, 4682' % (qMAT, sA))
a('s_lshr_b32 s%d, s%d, 16' % (qMAT, qMAT))
a('s_mul_i32 s%d, s%d, 14' % (sB, qMAT))
a('s_sub_u32 s%d, s%d, s%d' % (qU, sA, sB))
a('s_mul_i32 s%d, s%d, %d' % (sA, qU, 32 * 2688))
a('s_mul_i32 s%d, s%d, 896' % (sB, qMAT))
a('s_add_u32 s%d, s%d, s%d' % (sA, sA, sB))
a('s_mul_i32 s%d, s%d, 56' % (sB, sC))
a('s_add_u32 s%d, s%d, s%d' % (sA, sA, sB))
a('v_lshrrev_b32 v4, 2, v0')
a('v_mul_u32_u24 v4, 2688, v4')
a('v_and_b32 v5, 3, v0')
a('v_lshl_add_u32 v4, v5, 4, v4')
a('v_or_b32 v4, s%d, v4' % qINV)
a('s_mov_b32 m0, s%d' % sSTG)
a('s_add_u32 s%d, s%d, %d' % (sB, sA, 16 * 2688))
a('buffer_load_dwordx4 v4, %s, s%d offen lds' % (srd(S_TMP), sA))
a('s_add_u32 m0, s%d, 1024' % sSTG)
a('s_nop 0')
a('buffer_load_dwordx4 v4, %s, s%d offen lds' % (srd(S_TMP), sB))

bINV, bDST, bSTR, bINV2, bDST2, sSTRD = 20, 21, 22, 23, 24, 25


def emit_p2_issue():
    a('s_cmp_eq_u32 s%d, 3' % sW)
    a('s_cbranch_scc1 L_p2_w1')
    a('s_lshl_b32 s%d, s%d, 5' % (sA, sW))
    a('s_add_u32 s%d, s%d, s%d' % (sA, sA, sG))
    a('s_cmp_lt_u32 s%d, 72' % sA)
    a('s_cselect_b32 s%d, 0, 0x%x' % (bINV, INV))
    a('s_cmp_eq_u32 s%d, 7' % sJ)
    a('s_cselect_b32 s%d, 0x%x, s%d' % (bINV, INV, bINV))
    a('s_min_u32 s%d, s%d, 71' % (sA, sA))
    a('s_min_u32 s%d, s%d, 6' % (sD, sJ))
    a('s_cmp_lt_u32 s%d, 16' % sA)
    a('s_cselect_b32 s%d, s%d, s%d' % (S_TMP, P_WO, P_W2))
    a('s_cselect_b32 s%d, s%d, s%d' % (S_TMP + 1, P_WO + 1, P_W2 + 1))
    a('s_mov_b32 s%d, 0x%x' % (S_TMP + 2, 1792 * 896))
    a('s_cselect_b32 s%d, 0x%x, s%d' % (S_TMP + 2, 448 * 896, S_TMP + 2))
    a('s_cselect_b32 s%d, 28, 32' % sB)
    a('s_cselect_b32 s%d, 0, 16' % sCc)
    a('s_mov_b32 s%d, %d' % (bSTR, 56 * 1024))
    a('s_cselect_b32 s%d, %d, s%d' % (bSTR, 16 * 1024, bSTR))
    a('s_mov_b32 s%d, %d' % (bDST, L.WD))
    a('s_cselect_b32 s%d, %d, s%d' % (bDST, L.WB, bDST))
    a('s_cselect_b32 s%d, 0x%x, 0' % (sO + 9, INV))
    a('s_and_b32 s%d, s%d, 0xffff' % (S_TMP + 1, S_TMP + 1))
    a('s_mov_b32 s%d, 0x20000' % (S_TMP + 3))
    a('s_sub_u32 s%d, s%d, s%d' % (sA, sA, sCc))
    a('s_lshl_b32 s%d, s%d, 10' % (sCc, sA))
    a('s_add_u32 s%d, s%d, s%d' % (bDST, bDST, sCc))
    a('s_lshl_b32 s%d, s%d, 2' % (sCc, sD))
    a('s_mul_i32 s%d, s%d, s%d' % (sCc, sCc, bSTR))
    a('s_add_u32 s%d, s%d, s%d' % (bDST, bDST, sCc))
    a('s_mul_i32 s%d, s%d, s%d' % (sA, sA, sB))
    a('s_mul_i32 s%d, s%d, 896' % (sA, sA))
    a('s_lshl_b32 s%d, s%d, 7' % (sB, sD))
    a('s_add_u32 s%d, s%d, s%d' % (sO + 10, sA, sB))
    a('s_mov_b32 s%d, 896' % sSTRD)
    a('s_mov_b32 s%d, 0x%x' % (bINV2, INV))
    a('s_mov_b32 s%d, 0' % bDST2)
    a('s_mov_b32 s%d, 0' % (sO + 11))
    a('s_branch L_p2_go')
    a.label('L_p2_w1')
    build_srd(S_TMP, P_W1, 448 * 3584)
    a('s_lshl_b32 s%d, s%d, 4' % (sA, sS))
    a('s_add_u32 s%d, s%d, s%d' % (sA, sA, sC))
    a('s_cmp_lt_u32 s%d, 136' % sA)
    a('s_cselect_b32 s%d, 0, 0x%x' % (bINV2, INV))
    a('s_mov_b32 s%d, 0' % bINV)
    a('s_mov_b32 s%d, 0' % (sO + 9))
    a('s_mov_b32 s%d, %d' % (bSTR, 14 * 1024))
    a('s_mov_b32 s%d, 3584' % sSTRD)
    for dst, src, add in ((bDST, sO + 10, 0), (bDST2, sO + 11, 256)):
        a('s_add_u32 s%d, s%d, %d' % (sB, sA, add))
        a('s_min_u32 s%d, s%d, 391' % (sB, sB))
        a('s_mul_i32 s%d, s%d, 4682' % (sCc, sB))
        a('s_lshr_b32 s%d, s%d, 16' % (sCc, sCc))
        a('s_mul_i32 s%d, s%d, 14' % (sD, sCc))
        a('s_sub_u32 s%d, s%d, s%d' % (sB, sB, sD))
        a('s_mul_i32 s%d, s%d, %d' % (src, sB, 32 * 3584))
        a('s_lshl_b32 s%d, s%d, 7' % (sD, sCc))
        a('s_add_u32 s%d, s%d, s%d' % (src, src, sD))
        a('s_mul_i32 s%d, s%d, 56' % (sD, sCc))
        a('s_add_u32 s%d, s%d, s%d' % (sD, sD, sB))
        a('s_lshl_b32 s%d, s%d, 10' % (sD, sD))
        a('s_add_u32 s%d, s%d, %d' % (dst, sD, L.WC))
    a.label('L_p2_go')
    a('v_lshrrev_b32 v6, 3, v0')
    a('v_mul_lo_u32 v6, v6, s%d' % sSTRD)
    a('v_and_b32 v5, 7, v0')
    a('v_lshl_add_u32 v6, v5, 4, v6')
    a('v_or_b32 v8, s%d, v6' % bINV2)
    a('v_or_b32 v6, s%d, v6' % bINV)
    a('v_cmp_lt_u32 vcc, 31, v0')
    a('v_mov_b32 v7, s%d' % (sO + 9))
    a('v_cndmask_b32 v7, 0, v7, vcc')
    a('v_or_b32 v7, v7, v6')
    a('s_lshl_b32 s%d, s%d, 3' % (sB, sSTRD))
    for slot in range(2):
        src = sO + 10 + slot
        for q in range(4):
            a('s_add_u32 m0, s%d, %d' % (sSTG, 2048 + 4096 * slot + 1024 * q))
            if q:
                a('s_add_u32 s%d, s%d, s%d' % (src, src, sB))
            else:
                a('s_nop 0')
            a('buffer_load_dwordx4 v%d, %s, s%d offen lds' % (8 if slot else (7 if q == 3 else 6), srd(S_TMP), src))


if P2EARLY:
    emit_p2_issue()
build_srd(S_B1, P_B1, 1792 * 2)
build_srd(S_OUT, P_OUT, 2048 * 896)
a('v_bfe_u32 v18, v0, 2, 2')
a('v_lshl_add_u32 v18, v%d, 2, v18' % V_G)
a('v_and_b32 v19, 3, v0')
a('v_lshlrev_b32 v19, 3, v19')
if PREFPOS == 'b':
    emit_pref()
if TOUCH:
    a('v_lshlrev_b32 v21, 21, v0')
    a('s_mov_b64 exec, 0x1ffff')
    a('buffer_load_dword v253, v21, %s, 0 offen' % srd(S_WS))
    a('s_mov_b64 exec, -1')
    a('s_waitcnt vmcnt(%d)' % ((9 if P2EARLY else 1) + (PREFPOS == 'b')))
else:
    a('s_waitcnt vmcnt(%d)' % ((8 if P2EARLY else 0) + (PREFPOS == 'b')))
stamp()

a('v_readfirstlane_b32 s%d, v%d' % (sEP, V_T))
a('s_mov_b32 s%d, 0x9E3779B1' % sA)
a('v_mul_lo_u32 v%d, v%d, s%d' % (V_T, V_T, sA))
a('v_add_u32 v%d, 0x7F4A7C15, v%d' % (V_T, V_T))
a('v_and_b32 v%d, -16, v%d' % (V_T, V_T))
a('v_lshl_add_u32 v20, v18, 6, v19')
a('v_add_u32 v20, s%d, v20' % sSTG)
for hf in range(2):
    a('ds_read_b64_tr_b16 %s, v20 offset:%d' % (vr(24 + 4 * hf, 2), 32 * hf))
    a('ds_read_b64_tr_b16 %s, v20 offset:%d' % (vr(26 + 4 * hf, 2), 32 * hf + 1024))
a('v_readfirstlane_b32 s%d, v%d' % (sT, V_T))
a('s_mul_i32 s%d, s%d, 14' % (sA, sO + 0))
a('s_add_u32 s%d, s%d, s%d' % (sA, sA, sO + 1))
a('s_lshl_b32 s%d, s%d, 10' % (sB, sA))
a('s_add_u32 s%d, s%d, %d' % (sB, sB, L.XA[0]))
a('v_or_b32 v3, s%d, v1' % (sO + 2))
a('buffer_store_dwordx4 v[10:13], v1, %s, s%d offen sc1' % (srd(S_WS), sB))
a('s_add_u32 s%d, s%d, 4096' % (sB, sB))
a('buffer_store_dwordx4 v[14:17], v3, %s, s%d offen sc1' % (srd(S_WS), sB))
a('v_cmp_gt_u32 vcc, 12, v%d' % V_TOK)
a('s_mul_i32 s%d, s%d, 84' % (sB, sC))
a('s_mul_i32 s%d, s%d, 28' % (sCc, qMAT))
a('s_add_u32 s%d, s%d, s%d' % (sB, sB, sCc))
a('s_add_u32 s%d, s%d, s%d' % (sB, sB, qU))
a('s_lshl_b32 s%d, s%d, 10' % (sB, sB))
a('s_add_u32 s%d, s%d, %d' % (sB, sB, L.WA))
a('v_or_b32 v4, s%d, v1' % qINV)
a('s_waitcnt lgkmcnt(0)')
for p in range(4):
    a('v_cndmask_b32 v%d, 0, v%d, vcc' % (28 + p, 28 + p))
a('buffer_store_dwordx4 v[24:27], v4, %s, s%d offen sc1' % (srd(S_WS), sB))
a('s_add_u32 s%d, s%d, %d' % (sB, sB, 14 * 1024))
a('buffer_store_dwordx4 v[28:31], v4, %s, s%d offen sc1' % (srd(S_WS), sB))
a('v_mov_b32 v2, 0x3f803f80')
for k in range(2):
    x, s1, s2 = 10 + 4 * k, 110 + 2 * k, 111 + 2 * k
    a('v_mov_b32 v%d, 0' % s1)
    a('v_mov_b32 v%d, 0' % s2)
    for p in range(4):
        a('v_dot2_f32_bf16 v%d, v%d, v2, v%d' % (s1, x + p, s1))
        a('v_dot2_f32_bf16 v%d, v%d, v%d, v%d' % (s2, x + p, x + p, s2))
    for t in xg_reduce(s1, 114) + xg_reduce(s2, 115):
        a(t)
a('s_lshl_b32 s%d, s%d, 7' % (sB, sA))
a('s_add_u32 s%d, s%d, %d' % (sB, sB, L.SA[0]))
a('v_lshlrev_b32 v2, 3, v%d' % V_TOK)
a('v_or_b32 v3, s%d, v2' % (sO + 2))
a('s_mov_b64 exec, 0xffff')
a('buffer_store_dwordx2 v[110:111], v2, %s, s%d offen sc1' % (srd(S_WS), sB))
a('buffer_store_dwordx2 v[112:113], v3, %s, s%d offen offset:512 sc1' % (srd(S_WS), sB))
a('s_mov_b64 exec, -1')
crit_mark = a.vm_mark()
if not P2EARLY:
    emit_p2_issue()
a('s_lshl_b32 s%d, s%d, 5' % (sA, sO + 0))
a('s_add_u32 s%d, s%d, s%d' % (sA, sA, sO + 1))
a('s_lshl_b32 s%d, s%d, 2' % (sA, sA))
a('s_add_u32 s%d, s%d, %d' % (sA, sA, L.FX[0]))
a('v_lshlrev_b32 v2, 4, v0')
a('v_add_u32 v2, s%d, v2' % sA)
a('v_cmp_eq_u32 vcc, 1, v0')
a('v_mov_b32 v3, s%d' % (sO + 2))
a('v_cndmask_b32 v3, 0, v3, vcc')
a('v_or_b32 v2, v2, v3')
a('s_lshl_b32 s%d, s%d, 6' % (sA, sC))
a('s_lshl_b32 s%d, s%d, 2' % (sB, sS))
a('s_add_u32 s%d, s%d, s%d' % (sA, sA, sB))
a('s_add_u32 s%d, s%d, s%d' % (sA, sA, sW))
a('s_lshl_b32 s%d, s%d, 2' % (sA, sA))
a('s_add_u32 s%d, s%d, %d' % (sA, sA, L.FQ))
a('v_mov_b32 v3, s%d' % sA)
a('v_cmp_eq_u32 vcc, 2, v0')
a('v_cndmask_b32 v2, v2, v3, vcc')
a('s_lshl_b32 s%d, s%d, 4' % (sA, sS))
a('s_add_u32 s%d, s%d, s%d' % (sA, sA, sC))
a('s_lshl_b32 s%d, s%d, 2' % (sA, sA))
a('s_add_u32 s%d, s%d, %d' % (sA, sA, L.FXC))
a('s_cmp_eq_u32 s%d, 0' % sW)
a('s_cselect_b32 s%d, s%d, 0x%x' % (sA, sA, INV))
a('v_mov_b32 v3, s%d' % sA)
a('v_cmp_eq_u32 vcc, 3, v0')
a('v_cndmask_b32 v2, v2, v3, vcc')
a('v_or_b32 v3, s%d, v%d' % (sXCC, V_T))
a('v_cndmask_b32 v3, v%d, v3, vcc' % V_T)
stamp2()
a.wait_vm(crit_mark)
a('s_mov_b64 exec, 15')
a('buffer_store_dword v3, v2, %s, 0 offen sc1' % srd(S_WS))
a('s_mov_b64 exec, -1')
stamp()

if PREFPOS == 'a':
    emit_pref()
BTOUCH = '--btouch' in sys.argv
if BTOUCH:
    a('v_lshlrev_b32 v21, 6, v0')
    a('buffer_load_dword v60, v21, %s, 0 offen' % srd(S_B1))
    build_srd(S_TMP, P_B2, 896)
    a('buffer_load_dword v61, v21, %s, 0 offen' % srd(S_TMP))
skew_store(1)
a('s_waitcnt vmcnt(%d)' % (1 + (PREFPOS == 'a') + 2 * BTOUCH))
a('v_lshl_add_u32 v20, v18, 7, v19')
a('v_add_u32 v20, s%d, v20' % sSTG)
for slot in range(2):
    for t in range(4):
        a('ds_read_b64_tr_b16 %s, v20 offset:%d' % (vr(24 + 16 * slot + 4 * t, 2), 2048 + 4096 * slot + 32 * t))
        a('ds_read_b64_tr_b16 %s, v20 offset:%d' % (vr(26 + 16 * slot + 4 * t, 2), 2048 + 4096 * slot + 32 * t + 2048))
a('v_or_b32 v6, s%d, v1' % bINV)
a('v_or_b32 v8, s%d, v1' % bINV2)
a('s_waitcnt lgkmcnt(8)')
for t in range(4):
    a('buffer_store_dwordx4 %s, v6, %s, s%d offen sc1' % (vr(24 + 4 * t), srd(S_WS), bDST))
    if t < 3:
        a('s_add_u32 s%d, s%d, s%d' % (bDST, bDST, bSTR))
a('s_waitcnt lgkmcnt(0)')
for t in range(4):
    a('buffer_store_dwordx4 %s, v8, %s, s%d offen sc1' % (vr(40 + 4 * t), srd(S_WS), bDST2))
    if t < 3:
        a('s_add_u32 s%d, s%d, s%d' % (bDST2, bDST2, bSTR))
a('s_lshl_b32 s%d, s%d, 4' % (sA, sS))
a('s_add_u32 s%d, s%d, s%d' % (sA, sA, sC))
a('s_lshl_b32 s%d, s%d, 2' % (sA, sA))
a('s_add_u32 s%d, s%d, %d' % (sA, sA, L.FW1))
a('v_lshlrev_b32 v22, 10, v0')
a('v_add_u32 v22, s%d, v22' % sA)
a('v_cmp_eq_u32 vcc, 1, v0')
a('v_mov_b32 v23, s%d' % bINV2)
a('v_cndmask_b32 v23, 0, v23, vcc')
a('v_or_b32 v22, v22, v23')
a('s_cmp_eq_u32 s%d, 3' % sW)
a('s_cselect_b32 s%d, 0, 0x%x' % (sA, INV))
a('v_or_b32 v22, s%d, v22' % sA)

skew_store(3)
a('v_and_b32 v2, 1, v%d' % V_TOK)
a('v_lshlrev_b32 v3, 2, v%d' % V_G)
a('v_add_u32 v6, 2, v%d' % V_TOK)
for i in range(4):
    a('v_add_u32 v4, %d, v3' % i)
    a('v_cmp_eq_u32 vcc, %d, v2' % (i & 1))
    a('s_mov_b64 %s, vcc' % sp(sMK))
    a('v_cmp_ge_u32 vcc, v4, v6')
    a('s_and_b64 %s, vcc, %s' % (sp(sM1 + 2 * i), sp(sMK)))
    a('v_cmp_le_u32 vcc, v4, v%d' % V_TOK)
    a('s_and_b64 %s, vcc, %s' % (sp(sM2 + 2 * i), sp(sMK)))
a('s_lshl_b32 s%d, s%d, 3' % (sA, sS))
a('s_lshl_b32 s%d, s%d, 1' % (sB, sW))
a('s_add_u32 s%d, s%d, s%d' % (sGT, sA, sB))
a('s_cmp_eq_u32 s%d, 0' % sGT)
for i in range(4):
    a('s_cselect_b64 %s, 0, %s' % (sp(sM0 + 2 * i), sp(sM1 + 2 * i)))
a('s_mov_b32 s%d, 0' % sPAIR)

def a_flag_addr(dst):
    pair_base(sA, L.FX)
    a('s_lshl_b32 s%d, s%d, 7' % (sB, sGT))
    a('s_add_u32 s%d, s%d, s%d' % (sA, sA, sB))
    a('s_sub_u32 s%d, s%d, 128' % (sA, sA))
    a('v_and_b32 v%d, 48, v0' % dst)
    a('v_add_u32 v%d, v%d, v0' % (dst, dst))
    a('v_lshl_add_u32 v%d, v%d, 2, s%d' % (dst, dst, sA))
    a('s_mov_b32 s%d, 0x3fff3fff' % sMK)
    a('s_mov_b32 s%d, 0x3fff' % (sMK + 1))
    a('s_cmp_eq_u32 s%d, 0' % sGT)
    a('s_cselect_b32 s%d, 0x3fff0000, s%d' % (sMK, sMK))


a('s_lshl_b32 s%d, s%d, 8' % (sA, sC))
a('s_add_u32 s%d, s%d, %d' % (sA, sA, L.FQ))
a('v_lshl_add_u32 v2, v0, 2, s%d' % sA)
a_flag_addr(3)
a('s_lshl_b32 s%d, s%d, 6' % (sA, sS))
a('s_add_u32 s%d, s%d, %d' % (sA, sA, L.FXC - 48 * 4))
a('v_lshl_add_u32 v4, v0, 2, s%d' % sA)
a('v_cmp_lt_u32 vcc, 47, v0')
a('v_cndmask_b32 v3, v3, v4, vcc')
a('v_mov_b32 v5, -1')
a('v_mov_b32 v6, -16')
a('v_cndmask_b32 v5, v5, v6, vcc')
a('s_or_b32 s%d, s%d, 0xffff0000' % (sMK + 1, sMK + 1))
a('s_mov_b32 s%d, 0' % sSPIN)
a.label('L_poll0')
a('buffer_load_dword v7, v2, %s, 0 offen sc1' % srd(S_WS))
a('s_mov_b64 exec, %s' % sp(sMK))
a('buffer_load_dword v8, v3, %s, 0 offen sc1' % srd(S_WS))
a('s_waitcnt vmcnt(0)')
a('v_and_b32 v9, v5, v8')
a('v_cmp_ne_u32 vcc, s%d, v9' % sT)
a('s_mov_b64 exec, -1')
a('s_mov_b64 %s, vcc' % sp(sTS))
a('v_cmp_ne_u32 vcc, s%d, v7' % sT)
a('s_or_b64 vcc, vcc, %s' % sp(sTS))
a('s_cbranch_vccz L_poll0_done')
a('s_add_u32 s%d, s%d, 1' % (sSPIN, sSPIN))
a('s_cmp_lt_u32 s%d, %d' % (sSPIN, SPIN_LIMIT))
a('s_cbranch_scc1 L_poll0')
a('s_add_u32 s%d, s%d, 1' % (sERR, sERR))
a.label('L_poll0_done')
a('s_mov_b64 exec, 3')
a('buffer_store_dword v%d, v22, %s, 0 offen sc1' % (V_T, srd(S_WS)))
a('s_mov_b64 exec, -1')
skew_store(2)
a('v_and_b32 v9, 15, v8')
a('v_cmp_ne_u32 vcc, s%d, v9' % sXCC)
a('s_and_b32 s%d, vcc_hi, 0xffff0000' % sA)
a('s_cmp_eq_u32 s%d, 0' % sA)
a('s_cselect_b32 s%d, 1, 0' % sFAST)
stamp()
AQ, AK, AV, HACC = 2, 18, 34, 50
WBUF = [66, 90]
XR = 114
CSACC = 186
STR = 210
SM, SR = 234, 237
NR, LOOK = 6, 4
A_ONES = 240


def a_xload(u):
    slot = u % NR
    return ['buffer_load_dwordx4 %s, v1, %s, s%d offen offset:%d sc1' %
            (vr(XR + (slot * 2 + t) * 4), srd(S_WS), sO + 4 * (t + 1) + (u >> 2), 1024 * (u & 3)) for t in range(2)]


def a_offsets():
    pair_base(sA, L.XA)
    a('s_mul_i32 s%d, s%d, 14336' % (sB, sGT))
    a('s_add_u32 s%d, s%d, s%d' % (sO + 4, sA, sB))
    a('s_add_u32 s%d, s%d, 14336' % (sO + 8, sO + 4))
    for t in range(1, 3):
        for q in range(1, 4):
            a('s_add_u32 s%d, s%d, %d' % (sO + 4 * t + q, sO + 4 * t, 4096 * q))
    a('s_lshl_b32 s%d, s%d, 3' % (sB, sS))
    a('s_max_u32 s%d, s%d, 1' % (sB, sB))
    a('s_sub_u32 s%d, s%d, 1' % (sB, sB))
    a('s_mul_i32 s%d, s%d, 14336' % (sB, sB))
    a('s_add_u32 s%d, s%d, s%d' % (sO + 0, sA, sB))
    a('s_lshl_b32 s%d, s%d, 12' % (sB, sW))
    a('s_add_u32 s%d, s%d, s%d' % (sO + 0, sO + 0, sB))
    a('s_add_u32 s%d, s%d, %d' % (sO + 1, sB, L.L_R2))


def a_setup():
    if FASTMODE == 'flags':
        a('s_mov_b32 s%d, 0' % sFD)
        a('s_mov_b32 s%d, 0' % sFH)
    elif FASTMODE == 'p0':
        a('s_xor_b32 s%d, s%d, 1' % (sFD, sPAIR))
        a('s_and_b32 s%d, s%d, s%d' % (sFD, sFD, sFAST))
        a('s_mov_b32 s%d, s%d' % (sFH, sFD))
    elif FASTMODE == 'small':
        a('s_mov_b32 s%d, s%d' % (sFD, sFAST))
        a('s_mov_b32 s%d, 0' % sFH)
    elif FASTMODE == 'smallp0':
        a('s_mov_b32 s%d, s%d' % (sFD, sFAST))
        a('s_xor_b32 s%d, s%d, 1' % (sFH, sPAIR))
        a('s_and_b32 s%d, s%d, s%d' % (sFH, sFH, sFAST))
    else:
        a('s_mov_b32 s%d, s%d' % (sFD, sFAST))
        a('s_mov_b32 s%d, s%d' % (sFH, sFAST))
    pair_base(sA, L.SA)
    a('s_mul_i32 s%d, s%d, 1792' % (sB, sGT))
    a('s_add_u32 s%d, s%d, s%d' % (sO + 13, sA, sB))
    a('s_add_u32 s%d, s%d, 1792' % (sO + 14, sO + 13))
    a('s_sub_u32 s%d, s%d, 1792' % (sO + 12, sO + 13))
    a('s_cmp_eq_u32 s%d, 0' % sGT)
    a('s_cselect_b32 s%d, s%d, s%d' % (sO + 12, sO + 13, sO + 12))
    a('v_and_b32 v%d, 15, v0' % V_TOK)
    a('v_lshrrev_b32 v%d, 4, v0' % V_G)
    a('v_lshlrev_b32 v240, 3, v%d' % V_TOK)
    a('v_lshl_add_u32 v240, v%d, 7, v240' % V_G)
    a('v_mov_b32 v242, 0x%x' % INV)
    a('v_cmp_lt_u32 vcc, 1, v%d' % V_G)
    a('v_cndmask_b32 v241, 0, v242, vcc')
    a('v_or_b32 v241, v241, v240')
    a('v_add_u32 v243, %d, v1' % (56 * 1024))
    a('v_lshlrev_b32 v244, 4, v%d' % V_G)
    a('v_add_u32 v244, %d, v244' % L.L_CSA)
    a('v_lshlrev_b32 v245, 2, v%d' % V_TOK)
    a('v_add_u32 v245, %d, v245' % L.L_CSA)
    a('s_mul_i32 s%d, s%d, 384' % (sA, sW))
    a('s_add_u32 s%d, s%d, %d' % (sA, sA, L.L_STA))
    a('v_lshl_add_u32 v162, v%d, 2, s%d' % (V_TOK, sA))
    a('v_lshl_add_u32 v163, v%d, 4, s%d' % (V_G, sA))
    a('s_lshl_b32 s%d, s%d, 7' % (sA, sJ))
    a('s_add_u32 s%d, s%d, %d' % (sA, sA, L.FP))
    a('v_lshl_add_u32 v248, v0, 2, s%d' % sA)
    a('s_lshr_b32 s%d, s%d, 1' % (sB, sW))
    a('s_lshl_b32 s%d, s%d, 2' % (sCc, sG))
    a('s_add_u32 s%d, s%d, s%d' % (sB, sB, sCc))
    a('s_lshl_b32 s%d, s%d, 5' % (sB, sB))
    a('s_and_b32 s%d, s%d, 1' % (sA, sW))
    a('s_add_u32 s%d, s%d, s%d' % (sB, sB, sA))
    a('s_min_u32 s%d, s%d, 6' % (sA, sJ))
    a('s_lshl_b32 s%d, s%d, 1' % (sA, sA))
    a('s_add_u32 s%d, s%d, s%d' % (sB, sB, sA))
    a('s_lshl_b32 s%d, s%d, 2' % (sB, sB))
    a('s_add_u32 s%d, s%d, %d' % (sB, sB, L.FX[0] - 32 * 256))
    a('v_lshl_add_u32 v249, v0, 8, s%d' % sB)
    a('v_cmp_lt_u32 vcc, 31, v0')
    a('v_cndmask_b32 v248, v248, v249, vcc')
    a('s_lshr_b32 s%d, s%d, 3' % (sA, sC))
    a('s_mul_i32 s%d, s%d, 7' % (sA, sA))
    a('s_min_u32 s%d, s%d, 6' % (sB, sJ))
    a('s_add_u32 s%d, s%d, s%d' % (sA, sA, sB))
    a('s_mul_i32 s%d, s%d, 112' % (sA, sA))
    a('s_add_u32 s%d, s%d, %d' % (sA, sA, L.FW1 - 34 * 4))
    a('v_lshl_add_u32 v249, v0, 2, s%d' % sA)
    a('v_cmp_lt_u32 vcc, 33, v0')
    a('v_cndmask_b32 v248, v248, v249, vcc')
    a('s_lshl_b32 s%d, s%d, 7' % (sA, sS))
    a('s_add_u32 s%d, s%d, %d' % (sA, sA, L.FH))
    a('v_and_b32 v247, 15, v0')
    a('v_lshl_add_u32 v247, v247, 2, s%d' % sA)
    a('s_lshl_b32 s%d, s%d, 7' % (sB, sGT))
    a('s_add_u32 s%d, s%d, %d' % (sB, sB, L.FX[1] - 128))
    a('v_lshl_add_u32 v253, v0, 2, s%d' % sB)
    a('s_cmp_eq_u32 s%d, 0' % sW)
    a('s_cselect_b32 s%d, 0, 16' % sA)
    a('v_cmp_gt_u32 vcc, s%d, v0' % sA)
    a('v_cndmask_b32 v247, v247, v253, vcc')
    a('s_mov_b32 s%d, 0x3fff3fff' % sMK2)
    a('s_mov_b32 s%d, 0' % (sMK2 + 1))
    a('s_cmp_eq_u32 s%d, 0' % sS)
    a('s_cselect_b32 s%d, 0x3fff, s%d' % (sMK2, sMK2))
    a('v_and_b32 v253, 15, v0')
    a('v_lshlrev_b32 v253, 2, v253')
    a('v_add_u32 v253, %d, v253' % L.FX[1])
    a('s_cmp_eq_u32 s%d, 0' % sGT)
    a('s_cselect_b64 vcc, -1, 0')
    a('v_cndmask_b32 v247, v247, v253, vcc')


stat_loads = ['buffer_load_dwordx2 %s, v%d, %s, s%d offen offset:%d sc1' %
              (vr(STR + (t * 4 + i) * 2, 2), 241 if i == 3 else 240, srd(S_WS), sO + 12 + t, 512 * i)
              for t in range(3) for i in range(4)]


def a_wread(u):
    b = WBUF[u & 1]
    o = []
    for p in range(6):
        if p < 4:
            o.append('ds_read_b128 %s, v1 offset:%d' % (vr(b + 4 * p), L.L_WA + (p * 14 + u) * 1024))
        else:
            o.append('ds_read_b128 %s, v243 offset:%d' % (vr(b + 4 * p), L.L_WA + ((p - 4) * 14 + u) * 1024))
    return o


stat_fill = []
for t in (1, 2, 0):
    r = STR + 8 * t
    for c_ in range(2):
        stat_fill += ['v_add_f32 v%d, v%d, v%d' % (r + c_, r + c_, r + 2 + c_),
                      'v_add_f32 v%d, v%d, v%d' % (r + 4 + c_, r + 4 + c_, r + 6 + c_),
                      'v_add_f32 v%d, v%d, v%d' % (r + c_, r + c_, r + 4 + c_)]
    stat_fill += xg_reduce(r, r + 2) + xg_reduce(r + 1, r + 3)
    stat_fill += stats_finish(r, r + 1, r + 2, False)
    stat_fill += ['v_mov_b32 v%d, v%d' % (SM + t, r), 'v_mov_b32 v%d, v%d' % (SR + t, r + 1)]

sWA = [20, 21, 22]
sWAG = 23


def wa_dma(pr, i):
    def f():
        a('s_add_u32 m0, s%d, %d' % (sWA[i], L.L_WA + 2048 * pr))
        a('s_add_u32 s%d, s%d, s%d' % (sD, sWA[i], sWAG))
        if pr:
            a('s_add_u32 s%d, s%d, %d' % (sD, sD, 2048 * pr))
        a('buffer_load_dwordx4 v1, %s, s%d offen sc1 lds' % (srd(S_WS), sD))
    return f


amark = {}


def emit_a_loop(first, xmark, wam):
    ep_mark = es_mark = st_mark = None
    for t in a_wread(0):
        a(t)
    for u in range(14):
        need = xmark[u]
        if u == 8:
            need = max(need, amark['st_own'])
        if u == 13:
            need = max(need, st_mark)
        a.wait_vm(need)
        if not first and u == 9:
            early_check(246, 247, es_mark)
            a('s_nop 0')
        if u == 12:
            a('s_mov_b32 s%d, -1' % sMK2)
            a('s_mov_b32 s%d, 0x3fffffff' % (sMK2 + 1))
        a('s_waitcnt lgkmcnt(0)')
        wb = WBUF[u & 1]
        xs = XR + (u % NR) * 8
        mf = []
        cz = (lambda r: '0') if u == 0 else (lambda r: vr(r))
        for t in range(2):
            for hf in range(2):
                r = AQ + (t * 2 + hf) * 4
                mf.append('%s %s, %s, %s, %s' % (MFMA, vr(r), vr(wb + 4 * hf), vr(xs + 4 * t), cz(r)))
        for t in range(2):
            for hf in range(2):
                r = AK + (t * 2 + hf) * 4
                mf.append('%s %s, %s, %s, %s' % (MFMA, vr(r), vr(wb + 8 + 4 * hf), vr(xs + 4 * t), cz(r)))
        for t in range(2):
            for hf in range(2):
                r = AV + (t * 2 + hf) * 4
                mf.append('%s %s, %s, %s, %s' % (MFMA, vr(r), vr(xs + 4 * t), vr(wb + 16 + 4 * hf), cz(r)))
        if first:
            mf.append('%s %s, %s, %s, %s' % (MFMA, vr(CSACC + 8), vr(CSACC), ar(A_ONES), cz(CSACC + 8)))
            mf.append('%s %s, %s, %s, %s' % (MFMA, vr(CSACC + 12), ar(A_ONES), vr(CSACC + 4), cz(CSACC + 12)))
        mem = {}

        def put(k, x):
            mem.setdefault(k, []).append(x)
        nm = len(mf)
        off = 0
        if first:
            a('ds_read_b128 %s, v252 offset:%d' % (vr(CSACC), 1024 * u))
            a('ds_read_b128 %s, v242 offset:%d' % (vr(CSACC + 4), 1024 * u))
            put(11, 's_waitcnt lgkmcnt(%d)' % (6 if u < 13 else 0))
        if first and u % 2 == 1 and u < 13:
            put(2, ('bar', (u + 1) // 2))
            off = 3
        if u < 13:
            for k, x in enumerate(a_wread(u + 1)):
                put(off + k, x)
        elif not first:
            for p in range(4):
                put(p, 'ds_read_b128 %s, v244 offset:%d' % (vr(WBUF[0] + 4 * p), 64 * p))
            for d in range(2):
                put(4 + d, 'ds_read_b32 v%d, v245 offset:%d' % (WBUF[0] + 16 + d, 64 * (4 + d)))
        if first and u < 2:
            for j_, uu in enumerate((2 * u + 2, 2 * u + 3)):
                for k, x in zip((6, 8), a_xload(uu)):
                    put(k + 4 * j_, x)
                put(8 + 4 * j_, ('xm', uu))
            if u == 0:
                for i, k in enumerate((7, 9, 11)):
                    put(k, ('wa', 2, i))
        elif u + LOOK < 14:
            for k, x in zip((6, 9), a_xload(u + LOOK)):
                put(k, x)
            put(9, ('xm', u + LOOK))
        if first and u % 2 == 0 and u // 2 + 3 <= 6:
            for i, k in enumerate((12, 13, 13) if u == 0 else (7, 10, 12)):
                put(k, ('wa', u // 2 + 3, i))
        order = list(range(4, 12)) + list(range(0, 4))
        if 2 <= u < 6:
            for k, x in zip((8, 11), order[2 * (u - 2):2 * (u - 2) + 2]):
                put(k, stat_loads[x])
            if u == 5:
                put(11, ('sto',))
        if not first and u == 6:
            put(7, ('estat',))
        if u in (9, 10):
            for k, x in zip((8, 11) if u == 10 else (3, 5), order[8 + 2 * (u - 9):8 + 2 * (u - 9) + 2]):
                put(k, stat_loads[x])
            if u == 10:
                put(11, ('st',))
        if u == 9:
            put(10, 's_mov_b32 m0, s%d' % (sO + 1))
            for i, k in enumerate((10, 10, 11, 11)):
                put(k, 'buffer_load_dwordx4 v1, %s, s%d offen offset:%d sc1 lds' % (srd(S_WS), sO + 0, 1024 * i))
            put(11, ('hm',))
        if u == 13:
            put(8, ('early',))
        fill = []
        if 8 <= u < 11:
            fill = stat_fill[(u - 8) * 18:(u - 7) * 18]
        elif u == 13:
            fill = stat_fill[54:76]
        fi = 0
        for k, m in enumerate(mf):
            a(m)
            for it in mem.get(k, []):
                if isinstance(it, str):
                    a(it)
                elif it[0] == 'early':
                    ep_mark = early_issue(249, 248)
                elif it[0] == 'estat':
                    es_mark = early_issue(246, 247)
                elif it[0] == 'xm':
                    xmark[it[1]] = a.vm_mark()
                elif it[0] == 'st':
                    st_mark = a.vm_mark()
                elif it[0] == 'sto':
                    amark['st_own'] = a.vm_mark()
                elif it[0] == 'hm':
                    amark['halo'] = a.vm_mark()
                elif it[0] == 'bar':
                    a.wait_vm(wam[it[1]])
                    a('s_barrier')
                elif it[0] == 'wa':
                    wa_dma(it[1], it[2])()
                    wam[it[1]] = a.vm_mark()
            for _ in range(2):
                if fi < len(fill) and k >= 1:
                    a(fill[fi])
                    fi += 1
        assert fi == len(fill), (u, fi, len(fill))
    amark['ep'] = ep_mark


for p in range(4):
    a('v_mov_b32 v4, 0x3f803f80')
    a('v_accvgpr_write_b32 a%d, v4' % (A_ONES + p))
a('s_mul_i32 s%d, s%d, 14336' % (sWA[0], sW))
a('s_add_u32 s%d, s%d, 4' % (sA, sW))
a('s_mul_i32 s%d, s%d, 14336' % (sA, sA))
a('s_sub_u32 s%d, s%d, 2' % (sB, sW))
a('s_mul_i32 s%d, s%d, 14336' % (sB, sB))
a('s_add_u32 s%d, s%d, 1024' % (sB, sB))
a('s_cmp_lt_u32 s%d, 2' % sW)
a('s_cselect_b32 s%d, s%d, s%d' % (sWA[1], sA, sB))
a('s_add_u32 s%d, s%d, 2' % (sA, sW))
a('s_mul_i32 s%d, s%d, 14336' % (sA, sA))
a('s_add_u32 s%d, s%d, 1024' % (sWA[2], sA))
a('s_mul_i32 s%d, s%d, %d' % (sWAG, sC, 84 * 1024))
a('s_add_u32 s%d, s%d, %d' % (sWAG, sWAG, L.WA))
a_offsets()
xm0, wam0 = {}, {}


def wa_pair(pr):
    for i in range(3):
        wa_dma(pr, i)()
    wam0[pr] = a.vm_mark()


wa_pair(0)
for u in range(2):
    for t in a_xload(u):
        a(t)
    xm0[u] = a.vm_mark()
wa_pair(1)
a_setup()
a('s_mul_i32 s%d, s%d, 14336' % (sA, sW))
a('v_add_u32 v252, s%d, v1' % sA)
a('s_and_b32 s%d, s%d, 1' % (sA, sW))
a('s_mul_i32 s%d, s%d, 14336' % (sA, sA))
a('v_add_u32 v242, s%d, v243' % sA)
a.wait_vm(wam0[0])
a('s_barrier')
a('s_lshl_b32 s%d, s%d, 5' % (sA, sJ))
a('s_add_u32 s%d, s%d, s%d' % (sA, sA, sG))
a('s_lshl_b32 s%d, s%d, 2' % (sA, sA))
a('s_add_u32 s%d, s%d, %d' % (sA, sA, L.FP))
a('s_cmp_eq_u32 s%d, 0' % sW)
a('s_cselect_b32 s%d, s%d, 0x%x' % (sA, sA, INV))
a('v_mov_b32 v2, s%d' % sA)
a('s_mov_b64 exec, 1')
a('buffer_store_dword v%d, v2, %s, 0 offen sc1' % (V_T, srd(S_WS)))
a.vm_issued -= 1
a('s_mov_b64 exec, -1')
stamp()
emit_a_loop(True, xm0, wam0)
n_join = a.vm_issued - amark['ep']
CSQ = WBUF[0]
a('v_cmp_eq_u32 vcc, 0, v%d' % V_TOK)
a('s_lshl_b32 s%d, s%d, 6' % (sA, sW))
a('v_add_u32 v252, s%d, v244' % sA)
a('s_and_b32 s%d, s%d, 1' % (sA, sW))
a('s_lshl_b32 s%d, s%d, 6' % (sA, sA))
a('v_add_u32 v242, s%d, v245' % sA)
a('s_mov_b64 exec, vcc')
a('ds_write_b128 v252, %s' % vr(CSACC + 8))
a('s_mov_b64 exec, 0xffff')
a('ds_write_b32 v242, v%d offset:256' % (CSACC + 12))
a('s_mov_b64 exec, -1')
a('s_waitcnt lgkmcnt(0)')
a('s_barrier')
for p in range(4):
    a('ds_read_b128 %s, v244 offset:%d' % (vr(WBUF[0] + 4 * p), 64 * p))
for d in range(2):
    a('ds_read_b32 v%d, v245 offset:%d' % (WBUF[0] + 16 + d, 64 * (4 + d)))
with OutOfLine():
    a.label('L_pair')
    a_flag_addr(2)
    a('s_mov_b32 s%d, 0x3fff0000' % sMK)
    ASLEEP = int(([x[9:] for x in sys.argv if x.startswith('--asleep=')] + ['0'])[0])
    poll(2, None, ASLEEP)
    stamp()
    a_offsets()
    xmark = {}
    for u in range(LOOK):
        for t in a_xload(u):
            a(t)
        xmark[u] = a.vm_mark()
    a_setup()
    emit_a_loop(False, xmark, None)
    assert a.vm_issued - amark['ep'] == n_join
    ep_mark = amark['ep']
    a('s_branch L_a_epi')
a.label('L_a_epi')
stamp()
a('s_add_u32 s%d, s%d, 2' % (sA, sW))
a('s_mul_i32 s%d, s%d, 14336' % (sA, sA))
a('v_add_u32 v246, s%d, v1' % sA)
a('v_add_u32 v247, %d, v1' % L.L_R2)
a('s_cmp_lt_u32 s%d, 2' % sW)
a('s_cselect_b64 vcc, -1, 0')
a('v_cndmask_b32 v252, v247, v246, vcc')
a('v_cndmask_b32 v253, v246, v247, vcc')
MROW, RROW = 114, 126
for x in stat_fill[76:]:
    a(x)
a('s_mov_b64 exec, 0xffff')
for t in range(3):
    a('ds_write_b32 v162, v%d offset:%d' % (SM + t, 128 * t))
    a('ds_write_b32 v162, v%d offset:%d' % (SR + t, 128 * t + 64))
a('s_mov_b64 exec, -1')
for t in range(3):
    a('ds_read_b128 %s, v163 offset:%d' % (vr(MROW + 4 * t), 128 * t))
    a('ds_read_b128 %s, v163 offset:%d' % (vr(RROW + 4 * t), 128 * t + 64))
a.wait_vm(amark['halo'])
a('s_barrier')
HOP = 90
def h_reads(u):
    r = HOP + 8 * (u % 3)
    return ['ds_read_b128 %s, v252 offset:%d' % (vr(r), 1024 * u), 'ds_read_b128 %s, v253 offset:%d' % (vr(r + 4), 1024 * u)]
for u in range(2):
    for x in h_reads(u):
        a(x)
rest = []
for u in range(14):
    if u + 2 < 14:
        for x in h_reads(u + 2):
            a(x)
    a('s_waitcnt lgkmcnt(%d)' % (4 if u < 12 else (2 if u == 12 else 0)))
    r = HOP + 8 * (u % 3)
    a('%s %s, %s, %s, %s' % (MFMA, vr(HACC), vr(r), vr(r + 4), '0' if u == 0 else vr(HACC)))
    if rest:
        a(rest.pop(0))
for x in rest:
    a(x)
stamp2()
early_check(249, 248, ep_mark)
BW = 2
a('s_lshl_b32 s%d, s%d, 6' % (sA, sJ))
a('s_lshl_b32 s%d, s%d, 2' % (sB, sW))
a('s_add_u32 s%d, s%d, s%d' % (sA, sA, sB))
a('s_lshl_b32 s%d, s%d, 10' % (sA, sA))
a('s_add_u32 s20, s%d, %d' % (sA, L.WB))
for t in range(1, 4):
    a('s_add_u32 s%d, s20, %d' % (20 + t, 16 * 1024 * t))
wb_all = ['buffer_load_dwordx4 %s, v1, %s, s%d offen offset:%d sc1' % (vr(BW + (i * 4 + t) * 4), srd(S_WS), 20 + t, 1024 * i)
          for i in range(4) for t in range(4)]
for x in wb_all[13:16]:
    a(x)
wb_loads = wb_all[8:13]
A_RES, A_B2 = 224, 232


def red_addrs():
    a('s_lshl_b32 s%d, s%d, 13' % (sA, sW))
    a('s_add_u32 s%d, s%d, %d' % (sA, sA, L.L_R2))
    a('v_add_u32 v248, s%d, v1' % sA)
    a('s_and_b32 s%d, s%d, 1' % (sA, sW))
    a('s_lshl_b32 s%d, s%d, 11' % (sA, sA))
    a('s_lshr_b32 s%d, s%d, 1' % (sB, sW))
    a('s_lshl_b32 s%d, s%d, 12' % (sB, sB))
    a('s_add_u32 s%d, s%d, s%d' % (sA, sA, sB))
    a('s_add_u32 s%d, s%d, %d' % (sA, sA, L.L_R2))
    a('v_add_u32 v249, s%d, v1' % sA)


def publish_setup(xbase, sbase, fbase, per_pair, fsh):
    owner_index()
    a('s_mul_i32 s%d, s%d, 14' % (sCc, sB))
    a('s_add_u32 s%d, s%d, s%d' % (sCc, sCc, sA))
    a('s_lshl_b32 s%d, s%d, 10' % (sPX, sCc))
    a('s_lshl_b32 s%d, s%d, 7' % (sPS, sCc))
    a('s_lshl_b32 s%d, s%d, %d' % (sPF, sB, fsh))
    a('s_add_u32 s%d, s%d, s%d' % (sPF, sPF, sA))
    a('s_lshl_b32 s%d, s%d, 2' % (sPF, sPF))
    for dst, arr in ((sPX, xbase), (sPS, sbase), (sPF, fbase)):
        if per_pair:
            pair_base(sD, arr)
            a('s_add_u32 s%d, s%d, s%d' % (dst, dst, sD))
        else:
            a('s_add_u32 s%d, s%d, %d' % (dst, dst, arr))
    a('s_add_u32 s%d, s%d, %d' % (sPX2, sPX, 2 * 14336))


def owner_index():
    a('s_lshr_b32 s%d, s%d, 1' % (sB, sW))
    a('s_lshl_b32 s%d, s%d, 2' % (sCc, sG))
    a('s_add_u32 s%d, s%d, s%d' % (sB, sB, sCc))
    a('s_and_b32 s%d, s%d, 1' % (sA, sW))
    a('s_lshl_b32 s%d, s%d, 1' % (sCc, sJ))
    a('s_add_u32 s%d, s%d, s%d' % (sA, sA, sCc))


a('s_cmp_eq_u32 s%d, 0' % sPAIR)
a('s_cbranch_scc0 L_a_nores')
owner_index()
a('s_mul_i32 s%d, s%d, 14' % (sB, sB))
a('s_add_u32 s%d, s%d, s%d' % (sB, sB, sA))
a('s_lshl_b32 s%d, s%d, 10' % (sB, sB))
a('s_add_u32 s%d, s%d, %d' % (sB, sB, L.XA[0]))
a('buffer_load_dwordx4 %s, v1, %s, s%d offen sc1' % (ar(A_RES), srd(S_WS), sB))
a('s_add_u32 s%d, s%d, %d' % (sB, sB, 2 * 14336))
a('buffer_load_dwordx4 %s, v1, %s, s%d offen sc1' % (ar(A_RES + 4), srd(S_WS), sB))
build_srd(S_TMP, P_B2, 896)
a('s_lshl_b32 s%d, s%d, 6' % (sB, sA))
a('v_lshlrev_b32 v240, 3, v%d' % V_G)
a('buffer_load_dwordx2 v[228:229], v240, %s, s%d offen' % (srd(S_TMP), sB))
a('buffer_load_dwordx2 v[230:231], v240, %s, s%d offen offset:32' % (srd(S_TMP), sB))
a.label('L_a_nores')
CSQ = WBUF[0]
QF, KF, VF = 140, 148, 160


def pk(op, dst, srcs, neg=None):
    ops, lo, hi = [], [], []
    for x in srcs:
        if isinstance(x, tuple):
            ops.append(vr(x[1] & ~1, 2))
            lo.append(x[1] & 1)
            hi.append(x[1] & 1)
        else:
            ops.append(vr(x, 2))
            lo.append(0)
            hi.append(1)
    t = '%s %s, %s op_sel:[%s] op_sel_hi:[%s]' % (op, vr(dst, 2), ', '.join(ops), ','.join(map(str, lo)), ','.join(map(str, hi)))
    if neg is not None:
        m = ','.join('1' if k == neg else '0' for k in range(len(srcs)))
        t += ' neg_lo:[%s] neg_hi:[%s]' % (m, m)
    return t


for t in range(2):
    for hf in range(2):
        r = AQ + (t * 2 + hf) * 4
        for i in (0, 2):
            a(pk('v_pk_fma_f32', r + i, [('b', SM + t + 1), CSQ + 4 * hf + i, r + i], 0))
        for p in range(2):
            a('v_cvt_pk_bf16_f32 v%d, v%d, v%d' % (QF + 4 * t + 2 * hf + p, r + 2 * p, r + 2 * p + 1))
        a(wb_all[2 * t + hf])
for t in range(2):
    for hf in range(2):
        r = AK + (t * 2 + hf) * 4
        for i in (0, 2):
            a(pk('v_pk_fma_f32', r + i, [('b', SM + t + 1), CSQ + 8 + 4 * hf + i, r + i], 0))
        for p in range(2):
            a('v_cvt_pk_bf16_f32 v%d, v%d, v%d' % (KF + 4 * (t + 1) + 2 * hf + p, r + 2 * p, r + 2 * p + 1))
        a(wb_all[4 + 2 * t + hf])
L_E, L_HX = L.L_R2 + 16384, L.L_R2 + 26624
a('s_lshl_b32 s%d, s%d, 11' % (sA, sW))
a('s_add_u32 s%d, s%d, %d' % (sA, sA, L_E))
a('v_add_u32 v246, s%d, v1' % sA)
a('s_lshl_b32 s%d, s%d, 10' % (sA, sW))
a('s_add_u32 s%d, s%d, %d' % (sA, sA, L_HX))
a('v_add_u32 v247, s%d, v1' % sA)
a('s_waitcnt lgkmcnt(0)')
for t in range(2):
    for d in range(2):
        r = AV + (t * 2 + d) * 4
        for i in (0, 2):
            a(pk('v_pk_fma_f32', r + i, [MROW + 4 * (t + 1) + i, ('b', CSQ + 16 + d), r + i], 0))
        for p in range(2):
            a('v_cvt_pk_bf16_f32 v%d, v%d, v%d' % (VF + 6 * d + 2 * (t + 1) + p, r + 2 * p, r + 2 * p + 1))
a('ds_write_b128 v246, %s offset:2048' % vr(KF + 8))
a('ds_write_b64 v246, %s offset:3072' % vr(VF + 4, 2))
a('ds_write_b64 v246, %s offset:3080' % vr(VF + 10, 2))
a('ds_write_b128 v247, %s' % vr(HACC))
pair_base(sA, L.O)
a('s_lshl_b32 s%d, s%d, 4' % (sB, sGT))
a('s_add_u32 s%d, s%d, s%d' % (sB, sB, sC))
a('s_lshl_b32 s%d, s%d, 10' % (sB, sB))
a('s_add_u32 s32, s%d, s%d' % (sA, sB))
a('s_add_u32 s33, s32, 16384')
stamp2()
a('s_waitcnt lgkmcnt(0)')
a('s_barrier')
stamp2()
SS = 172
a('s_cmp_eq_u32 s%d, 0' % sW)
a('s_cbranch_scc1 L_a_halo')
a('ds_read_b128 %s, v246' % vr(KF))
a('ds_read_b64 %s, v246 offset:1024' % vr(VF, 2))
a('ds_read_b64 %s, v246 offset:1032' % vr(VF + 6, 2))
a('s_waitcnt lgkmcnt(0)')
a('s_branch L_a_prev')
a.label('L_a_halo')
a('v_add_u32 v247, %d, v1' % L_HX)
for p in range(4):
    a('ds_read_b128 %s, v247 offset:%d' % (vr(SS + 4 * p), 1024 * p))
a('s_waitcnt lgkmcnt(0)')
for hf in range(2):
    r = SS + 4 * hf
    for i in (0, 2):
        a(pk('v_pk_fma_f32', r + i, [('b', SM), CSQ + 8 + 4 * hf + i, r + i], 0))
    for p in range(2):
        a('v_cvt_pk_bf16_f32 v%d, v%d, v%d' % (KF + 2 * hf + p, r + 2 * p, r + 2 * p + 1))
for d in range(2):
    r = SS + 8 + 4 * d
    for i in (0, 2):
        a(pk('v_pk_fma_f32', r + i, [MROW + i, ('b', CSQ + 16 + d), r + i], 0))
    for p in range(2):
        a('v_cvt_pk_bf16_f32 v%d, v%d, v%d' % (VF + 6 * d + p, r + 2 * p, r + 2 * p + 1))
a.label('L_a_prev')
a('s_nop 1')
for t in range(2):
    a('%s %s, %s, %s, 0' % (MFMA, vr(SS + 8 * t), vr(KF + 4 * t), vr(QF + 4 * t)))
    a('%s %s, %s, %s, 0' % (MFMA, vr(SS + 8 * t + 4), vr(KF + 4 * t + 4), vr(QF + 4 * t)))
SCALE = (28.0 ** -0.5) * 1.4426950408889634
MX, CC, LS, TMPR = 190, 192, 194, 196
PF = 200
SUMT = [(224, 226), (232, 188)]
a('v_mov_b32 v198, 0xff800000')
seq = [[], []]
for t in range(2):
    s_ = SS + 8 * t
    q = seq[t]
    rr = lambda e: RROW + 4 * (t + (e >> 2)) + (e & 3)
    for e in range(0, 8, 2):
        q.append(pk('v_pk_mul_f32', s_ + e, [s_ + e, rr(e)]))
    for e in range(8):
        mk = (sM0 if t == 0 else sM1) + 2 * e if e < 4 else sM2 + 2 * (e - 4)
        q.append('v_cndmask_b32 v%d, v198, v%d, %s' % (s_ + e, s_ + e, sp(mk)))
    q.append('v_max3_f32 v%d, v%d, v%d, v%d' % (MX + t, s_, s_ + 1, s_ + 2))
    q.append('v_max3_f32 v%d, v%d, v%d, v%d' % (MX + t, MX + t, s_ + 3, s_ + 4))
    q.append('v_max3_f32 v%d, v%d, v%d, v%d' % (MX + t, MX + t, s_ + 5, s_ + 6))
    q.append('v_max_f32 v%d, v%d, v%d' % (MX + t, MX + t, s_ + 7))
    q += xg_reduce(MX + t, TMPR + t, 'v_max_f32')
    q.append('v_mul_f32 v%d, %s, v%d' % (CC + t, f2h(SCALE), SR + t + 1))
    q.append('v_mul_f32 v%d, v%d, v%d' % (MX + t, MX + t, CC + t))
    for e in range(0, 8, 2):
        q.append(pk('v_pk_fma_f32', s_ + e, [s_ + e, ('b', CC + t), ('b', MX + t)], 2))
    for e in range(8):
        q.append('v_exp_f32 v%d, v%d' % (s_ + e, s_ + e))
    u_, u2 = SUMT[t]
    q.append(pk('v_pk_add_f32', u_, [s_, s_ + 2]))
    q.append(pk('v_pk_add_f32', u2, [s_ + 4, s_ + 6]))
    q.append(pk('v_pk_add_f32', u_, [u_, u2]))
    q.append('v_add_f32 v%d, v%d, v%d' % (LS + t, u_, u_ + 1))
    q += xg_reduce(LS + t, TMPR + t)
    q.append('v_rcp_f32 v%d, v%d' % (LS + t, LS + t))
    for e in range(0, 8, 2):
        q.append(pk('v_pk_mul_f32', s_ + e, [s_ + e, rr(e)]))
    for p in range(4):
        q.append('v_cvt_pk_bf16_f32 v%d, v%d, v%d' % (PF + 4 * t + p, s_ + 2 * p, s_ + 2 * p + 1))
merged = [z for xy in zip(*seq) for z in xy]
gap = len(merged) // (len(wb_loads) + 1)
for k, x in enumerate(merged):
    a(x)
    if k % gap == gap - 1 and wb_loads:
        a(wb_loads.pop(0))
assert not wb_loads
stamp2()
OO = 208
for t in range(2):
    for d in range(2):
        a('%s %s, %s, %s, 0' % (MFMA, vr(OO + 8 * t + 4 * d), vr(VF + 6 * d + 2 * t), vr(PF + 4 * t)))
for t in range(2):
    for e in range(0, 8, 2):
        a(pk('v_pk_mul_f32', OO + 8 * t + e, [OO + 8 * t + e, ('b', LS + t)]))
    for p in range(4):
        a('v_cvt_pk_bf16_f32 v%d, v%d, v%d' % (PF + 4 * t + p, OO + 8 * t + 2 * p, OO + 8 * t + 2 * p + 1))
    store('buffer_store_dwordx4 %s, v1, %s, s%d offen' % (vr(PF + 4 * t), srd(S_WS), 32 + t), sFD)
o_mark = a.vm_mark()
stamp2()
pair_base(sA, L.FA)
a('s_lshl_b32 s%d, s%d, 4' % (sB, sGT))
a('s_add_u32 s%d, s%d, s%d' % (sB, sB, sC))
a('s_lshl_b32 s%d, s%d, 2' % (sB, sB))
a('s_add_u32 s%d, s%d, s%d' % (sA, sA, sB))
a('v_lshlrev_b32 v241, 6, v0')
a('v_add_u32 v241, s%d, v241' % sA)
pair_base(sA, L.FA)
a('s_lshl_b32 s%d, s%d, 8' % (sB, sG))
a('s_add_u32 s%d, s%d, s%d' % (sA, sA, sB))
a('v_lshl_add_u32 v240, v0, 2, s%d' % sA)
a('s_lshl_b32 s%d, s%d, 2' % (sB, sW))
a('s_lshl_b32 s%d, 0x000f000f, s%d' % (sMK, sB))
a('s_mov_b32 s%d, s%d' % (sMK + 1, sMK))
red_addrs()
publish_setup(L.XB, L.SB, L.FB, True, 4)
a('s_mov_b32 s%d, s%d' % (sPC, sFD))
a('s_mov_b32 s%d, s%d' % (sPFC, sFAST))
pair_base(sA, L.O)
a('s_lshl_b32 s%d, s%d, 6' % (sB, sG))
a('s_lshl_b32 s%d, s%d, 2' % (sCc, sW))
a('s_add_u32 s%d, s%d, s%d' % (sB, sB, sCc))
a('s_lshl_b32 s%d, s%d, 10' % (sB, sB))
a('s_add_u32 s20, s%d, s%d' % (sA, sB))
for t in range(1, 4):
    a('s_add_u32 s%d, s20, %d' % (20 + t, 16384 * t))
a.wait_vm(o_mark)
a('s_mov_b64 exec, 3')
store('buffer_store_dword v%d, v241, %s, 0 offen' % (V_T, srd(S_WS)), sFAST)
a('s_mov_b64 exec, -1')
stamp()
a('s_cmp_eq_u32 s%d, 7' % sJ)
a('s_cbranch_scc1 L_next_pair')


def wd_bases():
    a('s_lshl_b32 s%d, s%d, 2' % (sA, sJ))
    a('s_mul_i32 s%d, s%d, %d' % (sA, sA, 56 * 1024))
    a('s_mul_i32 s%d, s%d, %d' % (sB, sW, 14 * 1024))
    a('s_add_u32 s%d, s%d, s%d' % (sA, sA, sB))
    a('s_add_u32 s%d, s%d, %d' % (sO, sA, L.WD))
    quarter_offsets(4, 56 * 1024)


def wd_load(fi):
    kk, t = fi >> 2, fi & 3
    return ('buffer_load_dwordx4 %s, v1, %s, s%d offen offset:%d sc1' %
            (ar(4 * fi), srd(S_WS), sO + 4 * t + (kk >> 2), 1024 * (kk & 3)))


WD_CH = [(0, 0), (0, 56)]
BO, BACC, BRD, BTMP = 66, 130, 194, 226
a('s_cmp_eq_u32 s%d, 0' % sPAIR)
a('s_cbranch_scc0 L_b_start')
for k in range(4):
    a('v_lshlrev_b32 v236, 16, v%d' % (228 + k))
    a('v_and_b32 v237, 0xffff0000, v%d' % (228 + k))
    a('v_accvgpr_write_b32 a%d, v236' % (A_B2 + 2 * k))
    a('v_accvgpr_write_b32 a%d, v237' % (A_B2 + 2 * k + 1))
a.label('L_b_start')
CWW = 66
sCI = 41
a('s_lshr_b32 s%d, s%d, 3' % (sA, sC))
a('s_mul_i32 s%d, s%d, 7' % (sA, sA))
a('s_add_u32 s%d, s%d, s%d' % (sCI, sA, sJ))
a('s_lshl_b32 s%d, s%d, 3' % (sA, sCI))
a('s_lshl_b32 s%d, s%d, 1' % (sB, sW))
a('s_add_u32 s%d, s%d, s%d' % (sA, sA, sB))
a('s_mul_i32 s%d, s%d, %d' % (sB, sA, 14 * 1024))
a('s_add_u32 s%d, s%d, %d' % (sO, sB, L.WC))
quarter_offsets(2, 14 * 1024)


def c_wload(idx):
    u, k = idx >> 1, idx & 1
    return ('buffer_load_dwordx4 %s, v1, %s, s%d offen offset:%d sc1' %
            (vr(CWW + 4 * idx), srd(S_WS), sO + 4 * k + (u >> 2), 1024 * (u & 3)))


def red_writes(acc, tile):
    return ['ds_write_b128 v248, %s offset:%d' % (vr(acc + 4 * t), (tile >> 1) * 32768 + (tile & 1) * 4096 + t * 1024)
            for t in range(4)]


def red_reads(st, rd):
    return ['ds_read_b128 %s, v249 offset:%d' % (vr(rd + (b * 2 + k) * 4), st * 32768 + b * 8192 + k * 1024)
            for b in range(4) for k in range(2)]


def add8(dst, x, y, packed):
    if packed:
        return ['v_pk_add_f32 %s, %s, %s' % (vr(dst + e, 2), vr(x + e, 2), vr(y + e, 2)) for e in range(0, 8, 2)]
    return ['v_add_f32 v%d, v%d, v%d' % (dst + e, x + e, y + e) for e in range(8)]


def finish_pre(st, is_d, tmp):
    res = A_RES + 4 * st
    o = ['v_accvgpr_read_b32 v%d, a%d' % (tmp + 8 + p, res + p) for p in range(4)]
    for p in range(4):
        o += ['v_lshlrev_b32 v%d, 16, v%d' % (tmp + 2 * p, tmp + 8 + p),
              'v_and_b32 v%d, 0xffff0000, v%d' % (tmp + 2 * p + 1, tmp + 8 + p)]
    if is_d:
        o += ['v_accvgpr_read_b32 v%d, a%d' % (tmp + 8 + e, A_B2 + e) for e in range(8)]
        o += ['v_add_f32 v%d, v%d, v%d' % (tmp + e, tmp + e, tmp + 8 + e) for e in range(8)]
    return o


def finish_sum(st, rd, tmp, pk, packed):
    o = add8(rd, rd, rd + 8, packed) + add8(rd + 16, rd + 16, rd + 24, packed) + add8(rd, rd, rd + 16, packed)
    o += add8(tmp, tmp, rd, packed)
    o += ['v_cvt_pk_bf16_f32 v%d, v%d, v%d' % (pk + p, tmp + 2 * p, tmp + 2 * p + 1) for p in range(4)]
    o += ['v_accvgpr_write_b32 a%d, v%d' % (A_RES + 4 * st + p, pk + p) for p in range(4)]
    return o


def owner_stats(tmp, s1, t):
    a('v_pk_add_f32 %s, %s, %s' % (vr(t, 2), vr(tmp, 2), vr(tmp + 2, 2)))
    a('v_pk_add_f32 %s, %s, %s' % (vr(t + 2, 2), vr(tmp + 4, 2), vr(tmp + 6, 2)))
    a('v_pk_add_f32 %s, %s, %s' % (vr(t, 2), vr(t, 2), vr(t + 2, 2)))
    a('v_add_f32 v%d, v%d, v%d' % (s1, t, t + 1))
    a('v_pk_mul_f32 %s, %s, %s' % (vr(t, 2), vr(tmp, 2), vr(tmp, 2)))
    for e in (2, 4, 6):
        a('v_pk_fma_f32 %s, %s, %s, %s' % (vr(t, 2), vr(tmp + e, 2), vr(tmp + e, 2), vr(t, 2)))
    a('v_add_f32 v%d, v%d, v%d' % (s1 + 1, t, t + 1))
    for x, y in zip(xg_reduce(s1, t), xg_reduce(s1 + 1, t + 1)):
        a(x)
        a(y)


def publish_data(st, pk):
    store('buffer_store_dwordx4 %s, v1, %s, s%d offen offset:0' % (vr(pk), srd(S_WS), sPX if st == 0 else sPX2), sPC)


def publish_stats(tmps, t, s1):
    a('v_and_b32 v%d, 15, v0' % V_TOK)
    a('v_lshlrev_b32 v%d, 3, v%d' % (t + 4, V_TOK))
    for st in range(2):
        owner_stats(tmps[st], s1 + 2 * st, t)
    a('s_mov_b64 exec, 0xffff')
    store('buffer_store_dwordx2 %s, v%d, %s, s%d offen' % (vr(s1, 2), t + 4, srd(S_WS), sPS), sPC)
    a('s_add_u32 s%d, s%d, %d' % (sPS, sPS, 2 * 1792))
    store('buffer_store_dwordx2 %s, v%d, %s, s%d offen' % (vr(s1 + 2, 2), t + 4, srd(S_WS), sPS), sPC)
    a('s_mov_b64 exec, -1')


def publish_flags(lsh, between=()):
    a('v_lshlrev_b32 v241, %d, v0' % lsh)
    a('v_add_u32 v241, s%d, v241' % sPF)
    set_flags(241, 2, sPFC, V_T, between)


def run_tiles(tile_items, extras):
    for tile in range(4):
        if tile and '--diag3' in sys.argv:
            stamp()
        items = tile_items(tile)
        ex = list(extras.get(tile, []))
        free = [k for k, it in enumerate(items) if k >= 3 and not it[2]]
        per = -(-len(ex) // max(1, len(free))) if ex else 0
        for k, (pre, m, post) in enumerate(items):
            for x in pre:
                x()
            a(m)
            if post:
                post()
            elif k >= 3:
                for _ in range(per):
                    if ex:
                        x = ex.pop(0)
                        if callable(x):
                            x()
                        else:
                            a(x)
        assert not ex


poll(240)
a('s_barrier')
a('s_or_b32 s%d, s2, s%d' % (sA, sW))
a('s_or_b32 s%d, s%d, s%d' % (sA, sA, sPAIR))
a('s_cmp_eq_u32 s%d, 0' % sA)
a('s_cbranch_scc0 L_noepoch')
a('s_add_u32 s%d, s%d, 1' % (sA, sEP))
a('v_mov_b32 v239, s%d' % sA)
a('s_mov_b64 exec, 1')
a('buffer_store_dword v239, off, %s, 0 sc1' % srd(S_WS))
a.vm_issued -= 1
a('s_mov_b64 exec, -1')
a.label('L_noepoch')
stamp()


def b_oload(tile, i):
    return 'buffer_load_dwordx4 %s, v1, %s, s%d offen offset:%d sc1' % (vr(BO + (tile * 4 + i) * 4), srd(S_WS), 20 + tile, 1024 * i)


om = {}
for tile in range(2):
    for i in range(4):
        a(b_oload(tile, i))
        om[(tile, i)] = a.vm_mark()


def b_tile(tile):
    items = []
    for i in range(4):
        for t in range(4):
            r = BACC + (tile * 4 + t) * 4
            pre = [(lambda tl=tile, ii=i: a.wait_vm(om[(tl, ii)]))] if t == 0 else []
            post = None
            if tile < 2 and t == 1:
                def post(tl=tile + 2, ii=i):
                    a(b_oload(tl, ii))
                    om[(tl, ii)] = a.vm_mark()
            if tile >= 2 and t == 1:
                def post(idx=4 * (tile - 2) + i):
                    a(c_wload(idx))
            items.append((pre, '%s %s, %s, %s, %s' % (MFMA, vr(r), vr(BW + (i * 4 + t) * 4), vr(BO + (tile * 4 + i) * 4),
                                                      '0' if i == 0 else vr(r)), post))
    return items


BT0, BT1, BPK = 226, 2, 18
run_tiles(b_tile, {1: red_writes(BACC, 0), 2: red_writes(BACC + 16, 1), 3: red_writes(BACC + 32, 2)})
stamp2()
for x in red_writes(BACC + 48, 3):
    a(x)
for x in finish_pre(0, False, BT0) + finish_pre(1, False, BT1):
    a(x)
for i in range(8, 16):
    a(c_wload(i))
a('s_waitcnt lgkmcnt(0)')
a('s_barrier')
stamp2()
BRD1 = 34
for x in red_reads(0, BRD) + red_reads(1, BRD1):
    a(x)
NMID = int(([x[7:] for x in sys.argv if x.startswith('--nmid=')] + ['8'])[0])
for i in range(16, 16 + NMID):
    a(c_wload(i))
a('s_waitcnt lgkmcnt(8)')
for x in finish_sum(0, BRD, BT0, BPK, True):
    a(x)
publish_data(0, BPK)
a('s_waitcnt lgkmcnt(0)')
for x in finish_sum(1, BRD1, BT1, BPK + 4, True):
    a(x)
publish_data(1, BPK + 4)
stamp2()
publish_stats([BT0, BT1], 36, 32)
b_mark = a.vm_mark()
a('v_lshlrev_b32 v236, 7, v0')
a('v_add_u32 v236, s%d, v236' % sPF)
for i in range(16 + NMID, 28):
    a(c_wload(i))
CA = [2, 10]
XF, NXF = 18, 8
GTMP, GH = 50, 58
CCS, CB1, CB1R = 178, 186, 194
CSTR = 198
CMR = 214
VGA = 218
a('v_lshrrev_b32 v%d, 4, v0' % V_G)
a('v_and_b32 v%d, 15, v0' % V_TOK)
pair_base(sA, L.FB)
a('s_lshl_b32 s%d, s%d, 9' % (sB, sS))
a('s_add_u32 s%d, s%d, s%d' % (sA, sA, sB))
a('v_lshl_add_u32 v240, v0, 2, s%d' % sA)
a('s_mov_b32 s%d, 0x3fff3fff' % sMK)
a('s_mov_b32 s%d, 0x3fff3fff' % (sMK + 1))
pair_base(20, L.XB)
a('s_mul_i32 s%d, s%d, %d' % (sB, sS, 8 * 14336))
a('s_add_u32 s20, s20, s%d' % sB)
a('s_lshl_b32 s%d, s%d, 12' % (sB, sW))
a('s_add_u32 s20, s20, s%d' % sB)
a('s_add_u32 s21, s%d, %d' % (sB, L.L_R2))
pair_base(22, L.SB)
a('s_lshl_b32 s%d, s%d, 3' % (sB, sS))
a('s_add_u32 s%d, s%d, s%d' % (sB, sB, sW))
a('s_mul_i32 s%d, s%d, 1792' % (sB, sB))
a('s_add_u32 s22, s22, s%d' % sB)
a('s_add_u32 s23, s22, %d' % (4 * 1792))
pair_base(32, L.H)
a('s_mul_i32 s%d, s%d, %d' % (sB, sS, 8 * 56 * 1024))
a('s_add_u32 s32, s32, s%d' % sB)
a('s_lshl_b32 s%d, s%d, 2' % (sB, sCI))
a('s_add_u32 s%d, s%d, s%d' % (sB, sB, sW))
a('s_lshl_b32 s%d, s%d, 10' % (sCc, sB))
a('s_add_u32 s32, s32, s%d' % sCc)
pair_base(33, L.FC)
a('s_lshl_b32 s%d, s%d, 11' % (sCc, sS))
a('s_add_u32 s33, s33, s%d' % sCc)
a('s_lshl_b32 s%d, s%d, 2' % (sB, sB))
a('s_add_u32 s33, s33, s%d' % sB)
a('v_mov_b32 v241, s33')
a('v_mov_b32 v242, 0x%x' % INV)
a('v_cmp_eq_u32 vcc, 0, v0')
a('v_cndmask_b32 v241, v242, v241, vcc')
a('v_lshlrev_b32 v238, 3, v%d' % V_TOK)
a('v_lshl_add_u32 v238, v%d, 7, v238' % V_G)
a('v_mov_b32 v242, 0x%x' % INV)
a('v_cmp_lt_u32 vcc, 1, v%d' % V_G)
a('v_cndmask_b32 v239, 0, v242, vcc')
a('v_or_b32 v239, v239, v238')
a('v_add_u32 v252, %d, v1' % L.L_R2)
a('v_lshlrev_b32 v246, 3, v%d' % V_TOK)
a('v_add_u32 v246, %d, v246' % L.L_STC)
GA = 2.0 * 0.7978845608028654 * 1.4426950408889634
GB = GA * 0.044715
a('v_mov_b32 v%d, %s' % (VGA, f2h(-GA)))
a('v_mov_b32 v%d, %s' % (VGA + 1, f2h(-GA)))
a('s_mov_b32 s34, %s' % f2h(-GB))
a('s_mov_b32 s35, %s' % f2h(-GB))
wd_bases_hi = True
a('s_lshl_b32 s%d, s%d, 3' % (sA, sCI))
a('s_lshl_b32 s%d, s%d, 1' % (sB, sW))
a('s_add_u32 s%d, s%d, s%d' % (sA, sA, sB))
a('s_lshl_b32 s24, s%d, 5' % sA)
a('v_lshlrev_b32 v248, 3, v%d' % V_G)
for k in range(2):
    a('buffer_load_dwordx2 %s, v248, %s, s24 offen offset:%d' % (vr(CB1R + 2 * k, 2), srd(S_B1), 32 * k))
a.wait_vm(b_mark)
a('s_mov_b64 exec, 3')
store('buffer_store_dword v%d, v236, %s, 0 offen' % (V_T, srd(S_WS)), sPFC)
a('s_mov_b64 exec, -1')
stamp()

poll(240, 256)
stamp()


TORD = [0, 4, 1, 5, 2, 6, 3, 7]


def c_dma_setup(t):
    return ['s_add_u32 s36, s20, %d' % (TORD[t] * 14336), 's_add_u32 m0, s21, %d' % ((t & 3) * 16384)]


def c_dma(t, i):
    return 'buffer_load_dwordx4 v1, %s, s36 offen offset:%d sc1 lds' % (srd(S_WS), 1024 * i)


dm = {}
for x in c_dma_setup(0) + [c_dma(0, i) for i in range(4)]:
    a(x)
dm[0] = a.vm_mark()
wlate = {}
for tt in range(2):
    for i in range(4):
        a('buffer_load_dwordx2 %s, v%d, %s, s%d offen offset:%d sc1' %
          (vr(CSTR + 8 * tt + 2 * i, 2), 239 if i == 3 else 238, srd(S_WS), 22 + tt, 512 * i))
amark['cst'] = a.vm_mark()
for x in c_dma_setup(1) + [c_dma(1, i) for i in range(4)]:
    a(x)
dm[1] = a.vm_mark()
wd_bases()
t0_loads = []
b1_unpack = []
for k in range(2):
    for p in range(2):
        b1_unpack += ['v_lshlrev_b32 v%d, 16, v%d' % (CB1 + 4 * k + 2 * p, CB1R + 2 * k + p),
                      'v_and_b32 v%d, 0xffff0000, v%d' % (CB1 + 4 * k + 2 * p + 1, CB1R + 2 * k + p)]
a.wait_vm(dm[0])
a('s_barrier')
stamp()


def c_xread(t, u):
    n = t * 14 + u
    return 'ds_read_b128 %s, v252 offset:%d' % (vr(XF + 4 * (n % NXF)), (t & 3) * 16384 + u * 1024)


def gelu_pre(t):
    z, m = CA[t & 1], CMR + 2 * (t & 1)
    P = range(0, 8, 2)
    o = ['v_pk_fma_f32 %s, %s, %s, %s op_sel_hi:[1,0,1] neg_lo:[0,1,0] neg_hi:[0,1,0]' % (vr(z + e, 2), vr(CCS + e, 2), vr(m, 2), vr(z + e, 2)) for e in P]
    o += ['v_pk_fma_f32 %s, %s, %s, %s op_sel:[0,1,0] op_sel_hi:[1,1,1]' % (vr(z + e, 2), vr(z + e, 2), vr(m, 2), vr(CB1 + e, 2)) for e in P]
    o += ['v_pk_mul_f32 %s, %s, %s' % (vr(GTMP + e, 2), vr(z + e, 2), vr(z + e, 2)) for e in P]
    o += ['v_pk_fma_f32 %s, %s, s[34:35], %s' % (vr(GTMP + e, 2), vr(GTMP + e, 2), vr(VGA, 2)) for e in P]
    o += ['v_pk_mul_f32 %s, %s, %s' % (vr(GTMP + e, 2), vr(GTMP + e, 2), vr(z + e, 2)) for e in P]
    return o


def gelu_mid():
    o = {}
    for e in range(8):
        o.setdefault(2 * e, []).append('v_exp_f32 v%d, v%d' % (GTMP + e, GTMP + e))
        o.setdefault(2 * e + 3, []).append('v_add_f32 v%d, 1.0, v%d' % (GTMP + e, GTMP + e))
    for e in range(6):
        o.setdefault(16 + 2 * e, []).append('v_rcp_f32 v%d, v%d' % (GTMP + e, GTMP + e))
    o.setdefault(25, []).append('v_rcp_f32 v%d, v%d' % (GTMP + 6, GTMP + 6))
    o.setdefault(27, []).append('v_rcp_f32 v%d, v%d' % (GTMP + 7, GTMP + 7))
    return o


def gelu_post(t):
    z, h = CA[t & 1], GH + 4 * (t & 1)
    o = ['v_pk_mul_f32 %s, %s, %s' % (vr(GTMP + e, 2), vr(GTMP + e, 2), vr(z + e, 2)) for e in range(0, 8, 2)]
    o += ['v_cvt_pk_bf16_f32 v%d, v%d, v%d' % (h + p, GTMP + 2 * p, GTMP + 2 * p + 1) for p in range(4)]
    return o


def gelu_packed(t):
    z, m, h = CA[t & 1], CMR + 2 * (t & 1), GH + 4 * (t & 1)
    P = range(0, 8, 2)
    for e in P:
        a('v_pk_fma_f32 %s, %s, %s, %s op_sel_hi:[1,0,1] neg_lo:[0,1,0] neg_hi:[0,1,0]' % (vr(z + e, 2), vr(CCS + e, 2), vr(m, 2), vr(z + e, 2)))
    for e in P:
        a('v_pk_fma_f32 %s, %s, %s, %s op_sel:[0,1,0] op_sel_hi:[1,1,1]' % (vr(z + e, 2), vr(z + e, 2), vr(m, 2), vr(CB1 + e, 2)))
    for e in P:
        a('v_pk_mul_f32 %s, %s, %s' % (vr(GTMP + e, 2), vr(z + e, 2), vr(z + e, 2)))
    for e in P:
        a('v_pk_fma_f32 %s, %s, s[34:35], %s' % (vr(GTMP + e, 2), vr(GTMP + e, 2), vr(VGA, 2)))
    for e in P:
        a('v_pk_mul_f32 %s, %s, %s' % (vr(GTMP + e, 2), vr(GTMP + e, 2), vr(z + e, 2)))
    for e in range(8):
        a('v_exp_f32 v%d, v%d' % (GTMP + e, GTMP + e))
    for e in P:
        a('v_pk_add_f32 %s, %s, 1.0 op_sel_hi:[1,0]' % (vr(GTMP + e, 2), vr(GTMP + e, 2)))
    for e in range(8):
        a('v_rcp_f32 v%d, v%d' % (GTMP + e, GTMP + e))
    for e in P:
        a('v_pk_mul_f32 %s, %s, %s' % (vr(GTMP + e, 2), vr(GTMP + e, 2), vr(z + e, 2)))
    for p in range(4):
        a('v_cvt_pk_bf16_f32 v%d, v%d, v%d' % (h + p, GTMP + 2 * p, GTMP + 2 * p + 1))


hmk, fmk = {}, {}


def h_store(t):
    def f():
        a('s_add_u32 s24, s32, %d' % (TORD[t] * 56 * 1024))
        store('buffer_store_dwordx4 %s, v1, %s, s24 offen' % (vr(GH + 4 * (t & 1)), srd(S_WS)), sFH)
        hmk[t] = a.vm_mark()
    return f


def h_flag(t):
    def f():
        a.wait_vm(hmk[t])
        store('buffer_store_dword v%d, v241, %s, 0 offen offset:%d' % (V_T, srd(S_WS), 256 * TORD[t]), sFAST)
    return f


def wd_block(fis, wave):
    def f():
        skip = newlab('L_wd')
        a('s_cmp_eq_u32 s24, %d' % wave)
        a('s_cbranch_scc0 %s' % skip)
        for fi in fis:
            a(wd_load(fi))
            a.vm_issued -= 1
        a.label(skip)
    return f


cst_fill = []
for tt in range(2):
    r = CSTR + 8 * tt
    for c_ in range(2):
        cst_fill += ['v_add_f32 v%d, v%d, v%d' % (r + c_, r + c_, r + 2 + c_),
                     'v_add_f32 v%d, v%d, v%d' % (r + 4 + c_, r + 4 + c_, r + 6 + c_),
                     'v_add_f32 v%d, v%d, v%d' % (r + c_, r + c_, r + 4 + c_)]
    cst_fill += xg_reduce(r, r + 2) + xg_reduce(r + 1, r + 3) + stats_finish(r, r + 1, r + 2, True)
a('s_lshl_b32 s%d, s%d, 7' % (sA, sW))
a('v_add_u32 v247, s%d, v246' % sA)
cst_fill += ['ds_write_b64 v247, %s' % vr(CSTR, 2), 'ds_write_b64 v247, %s offset:512' % vr(CSTR + 8, 2)] + b1_unpack
LOOKX = 6


A_CCS = 244


DFIRST = [194, 198, 202, 206, 210, 220, 224, 228, 232]
hm = {}


def emit_c_loop(wd_list):
    pass0 = bool(wd_list)
    if not pass0:
        for e in range(8):
            a('v_accvgpr_read_b32 v%d, a%d' % (CCS + e, A_CCS + e))
    for u in range(LOOKX):
        a(c_xread(0, u))
    for t in range(8):
        nonvec = {}

        def put(k, x):
            nonvec.setdefault(k, []).append(x)
        for u in range(14):
            n = t * 14 + u
            m = n + LOOKX
            if m < 8 * 14:
                put(2 * u + 1, c_xread(m // 14, m % 14))
            if u % 2 == 1 and n + 1 < 8 * 14:
                put(2 * u + 1, 's_waitcnt lgkmcnt(%d)' % min(LOOKX - 2, 8 * 14 - 1 - (n + 2)))
        if t < 7:
            nonvec[14] = [('bar', t + 1)] + nonvec.get(14, [])
        if t + 2 < 8:
            su = c_dma_setup(t + 2)
            put(0, su[0])
            put(0, su[1])
            for i in range(4):
                put(2 + 2 * i, ('dma', t + 2, i))
        if t >= 3:
            put(20, ('call', h_flag(t - 3)))
        if t == 1:
            put(0, 's_add_u32 s22, s25, 12288')
        if t == 5:
            def issue_d0():
                amark['d0'] = early_issue(244, 243)
            put(22, ('call', issue_d0))
        if t == 6:
            put(2, ('call', lambda: early_check(244, 243, amark['d0'])))
        if t in (6, 7):
            for k, q in zip((4, 6, 8, 20, 22) if t == 6 else (2, 4, 6, 8), range(0, 5) if t == 6 else range(5, 9)):
                put(k, ('h0', q))
        if t < 7:
            for k in (10, 12, 13, 16, 18, 22, 24, 26):
                if wd_list:
                    put(k, wd_load(wd_list.pop(0)))
        if t > 0:
            put(17, 'ds_read_b64 %s, v246 offset:%d' % (vr(CMR + 2 * (t & 1), 2), 128 * TORD[t]))
        if t == 0:
            for k, it in enumerate(t0_loads):
                put(k, ('t0', it))
        valu = gelu_mid() if t >= 1 else {}
        if t >= 2:
            for x in gelu_post(t - 2):
                a(x)
            h_store(t - 2)()
        if t >= 1:
            for x in gelu_pre(t - 1):
                a(x)
        fill = list(cst_fill) if t == 0 else []
        first = 8
        fi = 0
        for k in range(28):
            u, kk = k >> 1, k & 1
            n = t * 14 + u
            if t == 0 and k == 0:
                a('s_waitcnt lgkmcnt(%d)' % (LOOKX - 2))
            if t == 0 and kk == 0 and u in wlate:
                a.wait_vm(wlate[u])
            if t == 0 and k == first:
                a.wait_vm(amark['cst'])
            r = CA[t & 1] + 4 * kk
            a('%s %s, %s, %s, %s' % (MFMA, vr(r), vr(CWW + 4 * (2 * u + kk)), vr(XF + 4 * (n % NXF)), '0' if u == 0 else vr(r)))
            if pass0 and t == 0:
                a('%s %s, %s, %s, %s' % (MFMA, vr(CCS + 4 * kk), vr(CWW + 4 * (2 * u + kk)), ar(A_ONES), '0' if u == 0 else vr(CCS + 4 * kk)))
            for it in nonvec.get(k, []):
                if isinstance(it, str):
                    a(it)
                elif it[0] == 'bar':
                    a.wait_vm(dm[it[1]])
                    a('s_barrier')
                elif it[0] == 'dma':
                    a(c_dma(it[1], it[2]))
                    dm[it[1]] = a.vm_mark()
                elif it[0] == 'call':
                    it[1]()
                elif it[0] == 'h0':
                    q = it[1]
                    a('buffer_load_dwordx4 %s, v1, %s, s%d offen offset:%d sc1' %
                      (vr(DFIRST[q] if q < 9 else 66 + 4 * q), srd(S_WS), (25, 27, 29, 22)[q >> 2], 1024 * (q & 3)))
                    hm[q] = a.vm_mark()
                elif it[0] == 't0':
                    if it[1][0] == 'w':
                        a(c_wload(it[1][1]))
                        wlate[it[1][1] >> 1] = a.vm_mark()
                    else:
                        a(it[1][1])
                        amark['cst'] = a.vm_mark()
            for x in valu.get(k, []):
                a(x)
            if fill and k >= first:
                want = -(-(len(fill)) * (k - first + 1) // (28 - first))
                while fi < want:
                    a(fill[fi])
                    fi += 1
        assert fi == len(fill)
        if t == 0:
            a('s_waitcnt lgkmcnt(0)')
            a('s_barrier')
            a('ds_read_b64 %s, v246 offset:0' % vr(CMR, 2))
            if pass0:
                for e in range(8):
                    a('v_accvgpr_write_b32 a%d, v%d' % (A_CCS + e, CCS + e))
            a('s_waitcnt lgkmcnt(0)')
    assert not wd_list


pair_base(sA, L.FC)
a('s_lshl_b32 s%d, s%d, 10' % (sB, sG))
a('s_add_u32 s%d, s%d, s%d' % (sA, sA, sB))
a('s_mul_i32 s%d, s%d, 56' % (sB, sW))
a('s_add_u32 s%d, s%d, s%d' % (sA, sA, sB))
a('v_lshl_add_u32 v243, v0, 2, s%d' % sA)
a('s_mov_b32 s%d, 0x3fff' % sMK2)
a('s_mov_b32 s%d, 0' % (sMK2 + 1))
pair_base(sA, L.H)
a('s_mul_i32 s%d, s%d, %d' % (sB, sG, 4 * 56 * 1024))
a('s_add_u32 s%d, s%d, s%d' % (sA, sA, sB))
a('s_mul_i32 s%d, s%d, %d' % (sB, sW, 14 * 1024))
a('s_add_u32 s25, s%d, s%d' % (sA, sB))
a('s_add_u32 s27, s25, 4096')
a('s_add_u32 s29, s25, 8192')
n_before = a.vm_issued
dm_init = dict(dm)
a('s_cmp_eq_u32 s%d, 0' % sPAIR)
a('s_cbranch_scc0 L_c_loop1')
emit_c_loop(list(range(*WD_CH[1])))
extra = a.vm_issued - n_before
with OutOfLine():
    a.label('L_c_loop1')
    a.vm_issued = n_before
    dm.clear()
    dm.update(dm_init)
    emit_c_loop([])
    a('s_branch L_c_done')
a.label('L_c_done')
stamp()
DH, DACC, DRD = 66, 130, 194
DRING, DLOOK = 16, 10
red_addrs()
publish_setup(L.XA[1], L.SA[1], L.FX[1], False, 5)
a('s_and_b32 s%d, s%d, 1' % (sA, sG))
a('s_lshr_b32 s%d, s%d, 1' % (sB, sW))
a('s_and_b32 s%d, s%d, s%d' % (sA, sA, sB))
a('s_xor_b32 s%d, s%d, 1' % (sA, sA))
a('s_and_b32 s%d, s%d, s%d' % (sPC, sFD, sA))
a('s_mov_b32 s%d, s%d' % (sPFC, sFAST))
a('s_cmp_eq_u32 s%d, 0' % sA)
a('s_cselect_b32 s%d, 0, 0x%x' % (sCc, INV))
a('s_add_u32 s%d, s%d, 1' % (sA, sS))
a('s_lshl_b32 s%d, s%d, 5' % (sA, sA))
a('s_lshl_b32 s%d, s%d, 1' % (sB, sJ))
a('s_add_u32 s%d, s%d, s%d' % (sA, sA, sB))
a('s_and_b32 s%d, s%d, 1' % (sB, sW))
a('s_add_u32 s%d, s%d, s%d' % (sA, sA, sB))
a('s_lshl_b32 s%d, s%d, 2' % (sA, sA))
a('s_add_u32 s%d, s%d, %d' % (sA, sA, L.FH))
a('s_or_b32 s20, s%d, s%d' % (sA, sCc))
pair_base(sA, L.H)
a('s_mul_i32 s%d, s%d, %d' % (sB, sG, 4 * 56 * 1024))
a('s_add_u32 s%d, s%d, s%d' % (sA, sA, sB))
a('s_mul_i32 s%d, s%d, %d' % (sB, sW, 14 * 1024))
a('s_add_u32 s%d, s%d, s%d' % (sO, sA, sB))
quarter_offsets(4, 56 * 1024)
a('s_cmp_eq_u32 s%d, 0' % sPAIR)
a('s_cbranch_scc1 L_d_nout')
owner_index()
a('s_mul_i32 s%d, s%d, 14336' % (sPX, sB))
a('s_lshl_b32 s%d, s%d, 6' % (sA, sA))
a('s_add_u32 s%d, s%d, s%d' % (sPX, sPX, sA))
a('s_add_u32 s%d, s%d, %d' % (sPX2, sPX, 2 * 14336))
a.label('L_d_nout')
a('v_and_b32 v%d, 15, v0' % V_TOK)
a('v_lshrrev_b32 v%d, 4, v0' % V_G)
a('v_mul_u32_u24 v242, 896, v%d' % V_TOK)
a('v_and_b32 v253, 1, v%d' % V_G)
a('v_lshl_add_u32 v242, v253, 5, v242')
a('v_lshrrev_b32 v253, 1, v%d' % V_G)
a('v_lshl_add_u32 v242, v253, 4, v242')


def d_hload(q):
    tile, kk = divmod(q, 14)
    return ('buffer_load_dwordx4 %s, v1, %s, s%d offen offset:%d sc1' %
            (vr(d_reg(q)), srd(S_WS), sO + 4 * tile + (kk >> 2), 1024 * (kk & 3)))


def d_reg(q):
    return DFIRST[q] if q < len(DFIRST) else DH + (q % DRING) * 4


dmk = {}
for q in range(len(DFIRST), DLOOK):
    a(d_hload(q))
    hm[q] = a.vm_mark()
dmk[1] = early_issue(244, 243, 256)
stamp()
for x in gelu_post(6):
    a(x)
h_store(6)()
a('s_waitcnt lgkmcnt(0)')
gelu_packed(7)
h_flag(5)()
h_store(7)()
stamp()

a('s_barrier')
stamp()


def d_tile(tile):
    items = []
    for kk in range(14):
        q = tile * 14 + kk
        for t in range(4):
            r = DACC + (tile * 4 + t) * 4
            pre = [(lambda qq=q: a.wait_vm(hm[qq]))] if t == 0 else []
            if t == 0 and q in (6, 12):
                pre.append(h_flag({6: 6, 12: 7}[q]))
            post = None
            if t == 0 and q + DLOOK < 56:
                def post(qq=q + DLOOK):
                    if qq % 14 == 0:
                        early_check(244, 243, dmk[qq // 14], 256 * (qq // 14))
                    a(d_hload(qq))
                    hm[qq] = a.vm_mark()
                    if qq % 14 == 6 and qq // 14 < 3:
                        dmk[qq // 14 + 1] = early_issue(244, 243, 256 * (qq // 14 + 1))
            items.append((pre, '%s %s, %s, %s, %s' % (MFMA, vr(r), ar((kk * 4 + t) * 4), vr(d_reg(q)),
                                                      '0' if kk == 0 else vr(r)), post))
    return items


def d_out_store(st, pk):
    a('s_nop 1')
    a('v_permlane16_swap_b32 v%d, v%d' % (pk, pk + 2))
    a('v_permlane16_swap_b32 v%d, v%d' % (pk + 1, pk + 3))
    a('buffer_store_dwordx4 %s, v242, %s, s%d offen %s' % (vr(pk), srd(S_OUT), sPX if st == 0 else sPX2, OUTSC))


def d_store(st, pk):
    fin, done = newlab('L_dfin'), newlab('L_ddone')
    a('s_cmp_eq_u32 s%d, 0' % sPAIR)
    a('s_cbranch_scc0 %s' % fin)
    publish_data(st, pk)
    a('s_branch %s' % done)
    a.label(fin)
    n = a.vm_issued
    d_out_store(st, pk)
    a.vm_issued = n
    a.label(done)


DT0, DT1, DPK, DSTT, DSTS = 226, 2, 18, 28, 36
stage0 = [lambda: (a('s_waitcnt lgkmcnt(0)'), a('s_barrier'))] + red_reads(0, DRD) + finish_pre(0, True, DT0)
stage0 += [lambda: a('s_waitcnt lgkmcnt(0)')] + finish_sum(0, DRD, DT0, DPK, False) + [lambda: d_store(0, DPK)]
run_tiles(d_tile, {1: red_writes(DACC, 0), 2: red_writes(DACC + 16, 1), 3: red_writes(DACC + 32, 2) + stage0})
stamp2()
for x in red_writes(DACC + 48, 3):
    a(x)
for x in finish_pre(1, True, DT1):
    a(x)
a('s_waitcnt lgkmcnt(0)')
a('s_barrier')
stamp2()
for x in red_reads(1, DRD):
    a(x)
a('s_waitcnt lgkmcnt(0)')
for x in finish_sum(1, DRD, DT1, DPK + 4, True):
    a(x)
d_store(1, DPK + 4)
stamp()
a('s_cmp_eq_u32 s%d, 0' % sPAIR)
a('s_cbranch_scc0 L_next_pair')
publish_stats([DT0, DT1], DSTT, DSTS)
FHMODE = ([x[5:] for x in sys.argv if x.startswith('--fh=')] + ['after'])[0]
a('v_mov_b32 v240, s20')
if FHMODE == 'before':
    a('s_waitcnt vmcnt(0)')
    a('s_mov_b64 exec, 1')
    a('buffer_store_dword v%d, v240, %s, 0 offen sc1' % (V_T, srd(S_WS)))
    a('s_mov_b64 exec, -1')
    a('v_lshlrev_b32 v241, 8, v0')
    a('v_add_u32 v241, s%d, v241' % sPF)
    a('s_mov_b64 exec, 3')
    store('buffer_store_dword v%d, v241, %s, 0 offen' % (V_T, srd(S_WS)), sPFC)
    a('s_mov_b64 exec, -1')
else:
    publish_flags(8)
    if FHMODE == 'wait':
        a('s_waitcnt vmcnt(0)')
    a('s_mov_b64 exec, 1')
    a('buffer_store_dword v%d, v240, %s, 0 offen sc1' % (V_T, srd(S_WS)))
    a('s_mov_b64 exec, -1')
a.label('L_next_pair')
stamp()
a('s_add_u32 s%d, s%d, 1' % (sPAIR, sPAIR))
a('s_cmp_lt_u32 s%d, 2' % sPAIR)
a('s_cbranch_scc1 L_pair')

if PAD:
    a.label('L_padspin')
    a('s_memrealtime s[34:35]')
    a('s_waitcnt lgkmcnt(0)')
    a('s_sub_u32 s34, s34, s0')
    a('s_cmp_lt_u32 s34, %d' % PAD[0])
    a('s_cbranch_scc1 L_padspin')
if DBG:
    a('s_memtime s[32:33]')
    a('s_memrealtime s[34:35]')
    a('s_waitcnt lgkmcnt(0)')
    a('s_sub_u32 s32, s32, s26')
    a('s_sub_u32 s34, s34, s0')
    build_srd(S_TMP, P_DBG, 256)
    a('v_mov_b32 v2, s32')
    a('v_mov_b32 v3, s34')
    a('v_mov_b32 v4, s%d' % sFAST)
    a('v_mov_b32 v5, s%d' % sXCC)
    a('s_lshr_b32 s%d, s2, 6' % sA)
    a('s_lshl_b32 s%d, s%d, 4' % (sA, sA))
    a('s_and_b32 s%d, s2, 63' % sB)
    a('s_or_b32 s%d, s%d, s%d' % (sB, sB, sW))
    a('s_cmp_eq_u32 s%d, 0' % sB)
    a('s_cselect_b32 s%d, s%d, 0x%x' % (sA, sA, INV))
    a('v_mov_b32 v6, s%d' % sA)
    a('s_mov_b64 exec, 1')
    a('buffer_store_dwordx4 v[2:5], v6, %s, 0 offen' % srd(S_TMP))
    a('s_mov_b64 exec, -1')
if DIAG:
    stamp()
    a('s_mov_b32 s%d, 63' % sSTI)
    a('s_lshl_b64 exec, 1, s%d' % sSTI)
    a('v_mov_b32 v%d, s%d' % (V_STAMP, sERR))
    a('s_mov_b32 s%d, 62' % sSTI)
    a('s_lshl_b64 exec, 1, s%d' % sSTI)
    a('v_mov_b32 v%d, s%d' % (V_STAMP, sFAST))
    a('s_mov_b64 exec, -1')
    a('s_lshl_b32 s%d, s2, 2' % sA)
    a('s_add_u32 s%d, s%d, s%d' % (sA, sA, sW))
    a('s_lshl_b32 s%d, s%d, 8' % (sA, sA))
    a('v_lshlrev_b32 v2, 2, v0')
    a('s_add_u32 s%d, s%d, %d' % (sA, sA, L.WS_USED))
    a('s_mov_b32 s%d, 0x%x' % (S_WS + 2, L.WS_USED + 256 * 1024))
    a('buffer_store_dword v%d, v2, %s, s%d offen' % (V_STAMP, srd(S_WS), sA))
    if DBGST:
        build_srd(S_TMP, P_DBG, 256)
        a('v_readfirstlane_b32 s%d, v%d' % (sA, V_STAMP))
        a('s_nop 4')
        a('v_subrev_u32 v3, s%d, v%d' % (sA, V_STAMP))
        a('s_or_b32 s%d, s2, s%d' % (sB, sW))
        a('s_cmp_eq_u32 s%d, 0' % sB)
        a('s_cselect_b32 s%d, 0, 0x%x' % (sB, INV))
        a('v_or_b32 v2, s%d, v2' % sB)
        SEL = [int(x[6:]) for x in sys.argv if x.startswith('--sel=')]
        sel = SEL[0] if SEL else 1
        a('v_subrev_u32 v2, %d, v2' % (4 * sel))
        a('buffer_store_dword v3, v2, %s, 0 offen' % srd(S_TMP))
a.label('L_end')
a('s_endpgm')
a.ins.extend(ool)
a.label('L_code_end')

DESC = "; Persistent kernel, 256 workgroups x 4 waves, one workgroup per CU (160 KB LDS, 512 registers per wave).\n; Workgroup id -> super-group s (128 tokens, 16 workgroups, ids with equal id%8 so that they share an XCD under the\n;   A  (member = head)      q,k,v = LN(x)*Wqkv (layer norm folded into the epilogue), dilated window attention in registers\n; at the start of every launch.  Hand-offs: write-through stores, s_waitcnt, then a flag word holding a tag derived from\n; an epoch word in d_ws; flags stay in the XCD's L2 only when all 16 members report the same XCC id.\n; Code of the second pass that differs from the first (k-loop of A, tile loop of C) sits behind the end of the main path.\n"
a.finalize()
body = a.text()

import os
hdr = open(os.path.join(os.path.dirname(os.path.abspath(__file__)), 'header.txt')).read()
out = hdr + '; @launch grid=(256,1,1) block=(256,1,1) lds=%d\n' % L.LDS_BYTES + DESC
out += '.amdgcn_target "amdgcn-amd-amdhsa--gfx950"\n.text\n.globl %s_kernel\n.p2align 8\n.type %s_kernel,@function\n%s_kernel:\n' % (NAME, NAME, NAME)
out += body
out += '''.section .rodata,"a"
.p2align 6
.amdhsa_kernel %s_kernel
  .amdhsa_next_free_vgpr 512
  .amdhsa_next_free_sgpr 102
  .amdhsa_accum_offset 256
  .amdhsa_group_segment_fixed_size 0
  .amdhsa_kernarg_size 88
  .amdhsa_user_sgpr_count 2
  .amdhsa_user_sgpr_kernarg_segment_ptr 1
  .amdhsa_system_sgpr_workgroup_id_x 1
.end_amdhsa_kernel
''' % NAME
sys.stdout.write(out)
```

```python
import struct
import sys
from asmlib import Asm
import layout as L

NAME = 'interleave_layers__sliding_local_dilated__mixer_channel_mlp__prompt'
DIAG = '--diag' in sys.argv
FASTMODE = ([x[7:] for x in sys.argv if x.startswith('--fast=')] + ['flags'])[0]
NOFAST = FASTMODE == 'none'
PAD = [int(x[6:]) for x in sys.argv if x.startswith('--pad=')]
DBG = '--dbg' in sys.argv or bool(PAD)
SPIN_LIMIT = 200000
OUTSC = ([x[8:] for x in sys.argv if x.startswith('--outsc=')] + [''])[0].replace('_', ' ')
SLEEP = int(([x[8:] for x in sys.argv if x.startswith('--sleep=')] + ['0'])[0])
INV = 0x80000000

a = Asm()

sXCC = 3
S_WS, S_TMP, S_B1, S_OUT = 4, 8, 12, 16
P_X, P_WQKV, P_WO, P_BX, P_W1, P_B1, P_W2, P_B2, P_OUT, P_DBG, P_WSP = 20, 22, 24, 26, 28, 30, 32, 34, 36, 38, 40
sS, sC, sG, sJ, sW, sT, sPAIR, sSPIN = 42, 43, 44, 45, 46, 47, 48, 49
sM1 = 50
sM2 = 58
sM0 = 66
sO = 74
sA, sB, sCc, sD = 90, 91, 92, 93
sMK = 94
sTS = 96
sGT = 98
sERR = 99
sEP = 1
sSTI = 100
sFAST = 101
sFD = 27
sPFC = 26
sFH = 25


def srd(n):
    return 's[%d:%d]' % (n, n + 3)


def vr(n, k=4):
    return 'v[%d:%d]' % (n, n + k - 1)


def ar(n, k=4):
    return 'a[%d:%d]' % (n, n + k - 1)


def sp(n):
    return 's[%d:%d]' % (n, n + 1)


def f2h(x):
    return '0x%08x' % struct.unpack('<I', struct.pack('<f', x))[0]


V_T, V_STAMP = 254, 255
V_TOK, V_G = 250, 251
MFMA = 'v_mfma_f32_16x16x32_bf16'


DIAG2 = '--diag2' in sys.argv
PREFPOS = ([x[7:] for x in sys.argv if x.startswith('--pref=')] + ['a'])[0]
PREF = PREFPOS != 'n'
TOUCH = '--notouch' not in sys.argv
STWAIT = '--stwait' in sys.argv
P2EARLY = '--p2early' in sys.argv
SKEW = [int(x[7:]) for x in sys.argv if x.startswith('--skew=')]
DBGST = '--dbgst' in sys.argv


def stamp2():
    if DIAG2:
        stamp()


def stamp():
    if not DIAG:
        return
    a('%s %s' % ('s_memrealtime' if '--rt' in sys.argv else 's_memtime', sp(sTS)))
    a('s_waitcnt lgkmcnt(0)')
    a('s_lshl_b64 exec, 1, s%d' % sSTI)
    a('v_mov_b32 v%d, s%d' % (V_STAMP, sTS))
    a('s_mov_b64 exec, -1')
    a('s_add_u32 s%d, s%d, 1' % (sSTI, sSTI))


ool = []


class OutOfLine:
    def __enter__(self):
        self.saved = a.ins
        a.ins = []

    def __exit__(self, *exc):
        ool.extend(a.ins)
        a.ins = self.saved


lab_no = [0]


def newlab(p):
    lab_no[0] += 1
    return '%s_%d' % (p, lab_no[0])


def emit_pref():
    a('s_getpc_b64 s[96:97]')
    a.label('L_pc')
    a('s_lshr_b32 s%d, s2, 3' % sA)
    a('s_lshl_b32 s%d, s%d, 11' % (sA, sA))
    a('s_lshl_b32 s%d, s%d, 9' % (sB, sW))
    a('s_add_u32 s%d, s%d, s%d' % (sA, sA, sB))
    a('v_lshlrev_b32 v21, 3, v0')
    a('v_add_u32 v21, s%d, v21' % sA)
    a('v_min_u32 v21, L_code_end-L_pc-8, v21')
    a('global_load_dwordx2 v[58:59], v21, s[96:97]')


def skew_store(point, have=False):
    if not SKEW or SKEW[0] != point:
        return
    if not have:
        a('s_memrealtime s[96:97]')
        a('s_waitcnt lgkmcnt(0)')
    build_srd(S_TMP, P_DBG, 256)
    a('s_and_b32 s%d, s2, 15' % sA)
    a('s_or_b32 s%d, s%d, s%d' % (sA, sA, sW))
    a('s_cmp_eq_u32 s%d, 0' % sA)
    a('s_cselect_b32 s%d, 0, 0x%x' % (sA, INV))
    a('s_lshr_b32 s%d, s2, 2' % sB)
    a('s_or_b32 s%d, s%d, s%d' % (sA, sA, sB))
    a('v_mov_b32 v21, s%d' % sA)
    a('v_mov_b32 v22, s96')
    a('s_mov_b64 exec, 1')
    a('buffer_store_dword v22, v21, %s, 0 offen' % srd(S_TMP))
    a.vm_issued -= 1
    a('s_mov_b64 exec, -1')


def build_srd(dst, ptr, nbytes):
    a('s_mov_b32 s%d, s%d' % (dst, ptr))
    a('s_and_b32 s%d, s%d, 0xffff' % (dst + 1, ptr + 1))
    a('s_mov_b32 s%d, 0x%x' % (dst + 2, nbytes))
    a('s_mov_b32 s%d, 0x20000' % (dst + 3))


def poll(voff, off2=None, sleep=None):
    lab, done = newlab('L_poll'), newlab('L_polldone')
    a('s_mov_b64 exec, %s' % sp(sMK))
    a('s_mov_b32 s%d, 0' % sSPIN)
    a.label(lab)
    a('buffer_load_dword v253, v%d, %s, 0 offen sc1' % (voff, srd(S_WS)))
    if off2 is not None:
        a('buffer_load_dword v245, v%d, %s, 0 offen offset:%d sc1' % (voff, srd(S_WS), off2))
    a('s_waitcnt vmcnt(0)')
    if off2 is not None:
        a('v_xor_b32 v245, s%d, v245' % sT)
        a('v_xor_b32 v253, s%d, v253' % sT)
        a('v_or_b32 v253, v253, v245')
        a('v_cmp_ne_u32 vcc, 0, v253')
    else:
        a('v_cmp_ne_u32 vcc, s%d, v253' % sT)
    a('s_nop 4')
    a('s_cbranch_vccz %s' % done)
    if sleep or SLEEP:
        a('s_sleep %d' % (sleep or SLEEP))
    a('s_add_u32 s%d, s%d, 1' % (sSPIN, sSPIN))
    a('s_cmp_lt_u32 s%d, %d' % (sSPIN, SPIN_LIMIT))
    a('s_cbranch_scc1 %s' % lab)
    a('s_add_u32 s%d, s%d, 1' % (sERR, sERR))
    a.label(done)
    a('s_mov_b64 exec, -1')


sMK2 = 30


def early_issue(dst, voff, off=0):
    a('s_mov_b64 exec, %s' % sp(sMK2))
    a('buffer_load_dword v%d, v%d, %s, 0 offen offset:%d sc1' % (dst, voff, srd(S_WS), off))
    a('s_mov_b64 exec, -1')
    return a.vm_mark()


def early_check(dst, voff, mark, off=0):
    ok = newlab('L_early')
    a.wait_vm(mark)
    a('s_mov_b64 exec, %s' % sp(sMK2))
    a('v_cmp_ne_u32 vcc, s%d, v%d' % (sT, dst))
    a('s_mov_b64 exec, -1')
    a('s_nop 2')
    a('s_cbranch_vccz %s' % ok)
    a('s_mov_b64 %s, %s' % (sp(sMK), sp(sMK2)))
    n = a.vm_issued
    if off:
        a('v_add_u32 v253, %d, v%d' % (off, voff))
        a('v_mov_b32 v%d, v253' % dst)
        poll(dst)
    else:
        poll(voff)
    a.vm_issued = n
    a.label(ok)


def store(fmt, cond=None):
    if cond is None or NOFAST or (FASTMODE == 'flags' and cond in (sFD, sFH, sPC)):
        a(fmt + ' sc1')
        return
    slow, done = newlab('L_slow'), newlab('L_st')
    a('s_cmp_eq_u32 s%d, 0' % cond)
    a('s_cbranch_scc1 %s' % slow)
    a(fmt)
    a('s_branch %s' % done)
    a.label(slow)
    a(fmt + ' sc1')
    a.vm_issued -= 1
    a.label(done)


def set_flags(voff, nlanes, cond=None, val=V_T, between=()):
    mark = a.vm_mark()
    for x in between:
        a(x)
    a.wait_vm(mark)
    a('s_mov_b64 exec, %d' % ((1 << nlanes) - 1))
    store('buffer_store_dword v%d, v%d, %s, 0 offen' % (val, voff, srd(S_WS)), cond)
    a('s_mov_b64 exec, -1')


def xg_reduce(x, t, op='v_add_f32'):
    return ['v_mov_b32 v%d, v%d' % (t, x),
            'v_permlane32_swap_b32 v%d, v%d' % (x, t),
            '%s v%d, v%d, v%d' % (op, x, x, t),
            'v_mov_b32 v%d, v%d' % (t, x),
            'v_permlane16_swap_b32 v%d, v%d' % (x, t),
            '%s v%d, v%d, v%d' % (op, x, x, t)]


EPS = 1e-5


def stats_finish(s1, s2, t, double_ln):
    o = ['v_mul_f32 v%d, %s, v%d' % (s1, f2h(1.0 / 448), s1),
         'v_mul_f32 v%d, %s, v%d' % (s2, f2h(1.0 / 448), s2),
         'v_fma_f32 v%d, -v%d, v%d, v%d' % (s2, s1, s1, s2),
         'v_max_f32 v%d, 0, v%d' % (s2, s2),
         'v_add_f32 v%d, %s, v%d' % (t, f2h(EPS), s2),
         'v_rsq_f32 v%d, v%d' % (t, t)]
    if not double_ln:
        o += ['v_mov_b32 v%d, v%d' % (s2, t)]
    else:
        o += ['v_mul_f32 v%d, v%d, v%d' % (s2, s2, t),
              'v_fmaak_f32 v%d, v%d, v%d, %s' % (s2, s2, t, f2h(EPS)),
              'v_rsq_f32 v%d, v%d' % (s2, s2),
              'v_mul_f32 v%d, v%d, v%d' % (s2, s2, t)]
    return o


def pair_base(dst, arr):
    a('s_mul_i32 s%d, s%d, %d' % (dst, sPAIR, arr[1] - arr[0]))
    a('s_add_u32 s%d, s%d, %d' % (dst, dst, arr[0]))


def quarter_offsets(n, stride):
    for t in range(n):
        if t:
            a('s_add_u32 s%d, s%d, %d' % (sO + 4 * t, sO + 4 * (t - 1), stride))
        for q in range(1, 4):
            a('s_add_u32 s%d, s%d, %d' % (sO + 4 * t + q, sO + 4 * t, 4096 * q))


sPX, sPS, sPF, sPC, sPX2 = 36, 37, 28, 29, 33


def stats_flags(delta, lsh):
    a('v_lshlrev_b32 v241, %d, v0' % lsh)
    a('s_add_u32 s%d, s%d, %d' % (sA, sPF, delta))
    a('v_add_u32 v241, s%d, v241' % sA)
    a('s_mov_b64 exec, 3')
    store('buffer_store_dword v%d, v241, %s, 0 offen' % (V_T, srd(S_WS)), sPFC)
    a('s_mov_b64 exec, -1')


a('s_cmp_ge_u32 s2, 256')
a('s_cbranch_scc1 L_end')
if '--perm' in sys.argv:
    a('s_and_b32 s90, s2, 7')
    a('s_lshr_b32 s91, s2, 3')
    a('s_and_b32 s91, s91, 7')
    a('s_and_b32 s2, s2, 0xc0')
    a('s_lshl_b32 s90, s90, 3')
    a('s_or_b32 s2, s2, s90')
    a('s_or_b32 s2, s2, s91')
SPRE = int(([x[7:] for x in sys.argv if x.startswith('--spre=')] + ['0'])[0])
if SPRE:
    a('s_getpc_b64 s[96:97]')
a('s_load_dwordx16 s[20:35], s[0:1], 0')
a('s_load_dwordx4 s[36:39], s[0:1], 64')
a('s_load_dwordx2 s[40:41], s[0:1], 80')
for i in range(SPRE):
    a('s_load_dword s98, s[96:97], %d' % (256 + 128 * i))
a('s_getreg_b32 s%d, hwreg(HW_REG_XCC_ID, 0, 4)' % sXCC)
a('s_and_b32 s%d, s2, 7' % sA)
a('s_lshr_b32 s%d, s2, 3' % sB)
a('s_lshr_b32 s%d, s%d, 4' % (sCc, sB))
a('s_lshl_b32 s%d, s%d, 1' % (sS, sA))
a('s_add_u32 s%d, s%d, s%d' % (sS, sS, sCc))
a('s_and_b32 s%d, s%d, 15' % (sC, sB))
a('s_lshr_b32 s%d, s%d, 3' % (sA, sC))
a('s_lshl_b32 s%d, s%d, 1' % (sG, sS))
a('s_add_u32 s%d, s%d, s%d' % (sG, sG, sA))
a('s_and_b32 s%d, s%d, 7' % (sJ, sC))
a('s_mov_b32 s%d, 0' % sERR)
if SKEW and SKEW[0] == 0:
    a('s_memrealtime s[96:97]')
a('v_lshrrev_b32 v2, 6, v0')
a('v_and_b32 v0, 63, v0')
a('v_readfirstlane_b32 s%d, v2' % sW)
a('v_lshlrev_b32 v1, 4, v0')
if DIAG:
    a('v_mov_b32 v%d, 0' % V_STAMP)
    a('s_mov_b32 s%d, 0' % sSTI)
stamp()
a('v_and_b32 v%d, 15, v0' % V_TOK)
a('v_lshrrev_b32 v%d, 4, v0' % V_G)
sSTG = 40
a('s_waitcnt lgkmcnt(0)')
if DBG:
    a('s_memtime s[26:27]')
    a('s_memrealtime s[0:1]')
    a('s_waitcnt lgkmcnt(0)')
skew_store(0, True)
build_srd(S_WS, P_WSP, L.WS_USED)
a('buffer_load_dword v%d, off, %s, 0 sc1' % (V_T, srd(S_WS)))
a('s_lshl_b32 s%d, s%d, 14' % (sSTG, sW))
a('s_add_u32 s%d, s%d, %d' % (sSTG, sSTG, L.L_R2))

build_srd(S_TMP, P_X, 2048 * 896)
a('v_mul_u32_u24 v2, 896, v%d' % V_TOK)
a('v_lshl_add_u32 v2, v%d, 3, v2' % V_G)
a('s_lshr_b32 s%d, s%d, 1' % (sA, sC))
a('s_lshl_b32 s%d, s%d, 3' % (sB, sS))
a('s_add_u32 s%d, s%d, s%d' % (sO + 0, sA, sB))
a('s_and_b32 s%d, s%d, 1' % (sA, sC))
a('s_mul_i32 s%d, s%d, 7' % (sA, sA))
a('s_add_u32 s%d, s%d, s%d' % (sO + 1, sA, sW))
a('s_cmp_lt_u32 s%d, 3' % sW)
a('s_cselect_b32 s%d, 0, 0x%x' % (sO + 2, INV))
a('s_mul_i32 s%d, s%d, 14336' % (sA, sO + 0))
a('s_lshl_b32 s%d, s%d, 6' % (sB, sO + 1))
a('s_add_u32 s%d, s%d, s%d' % (sA, sA, sB))
a('v_or_b32 v3, s%d, v2' % (sO + 2))
a('buffer_load_dwordx2 v[10:11], v2, %s, s%d offen' % (srd(S_TMP), sA))
a('buffer_load_dwordx2 v[12:13], v2, %s, s%d offen offset:32' % (srd(S_TMP), sA))
a('buffer_load_dwordx2 v[14:15], v3, %s, s%d offen offset:256' % (srd(S_TMP), sA))
a('buffer_load_dwordx2 v[16:17], v3, %s, s%d offen offset:288' % (srd(S_TMP), sA))

build_srd(S_TMP, P_WQKV, 448 * 2688)
qMAT, qU, qINV = sO + 3, sO + 4, sO + 5
a('s_lshl_b32 s%d, s%d, 4' % (sA, sW))
a('s_add_u32 s%d, s%d, s%d' % (sA, sA, sS))
a('s_cmp_lt_u32 s%d, 42' % sA)
a('s_cselect_b32 s%d, 0, 0x%x' % (qINV, INV))
a('s_min_u32 s%d, s%d, 41' % (sA, sA))
a('s_mul_i32 s%d, s%d, 4682' % (qMAT, sA))
a('s_lshr_b32 s%d, s%d, 16' % (qMAT, qMAT))
a('s_mul_i32 s%d, s%d, 14' % (sB, qMAT))
a('s_sub_u32 s%d, s%d, s%d' % (qU, sA, sB))
a('s_mul_i32 s%d, s%d, %d' % (sA, qU, 32 * 2688))
a('s_mul_i32 s%d, s%d, 896' % (sB, qMAT))
a('s_add_u32 s%d, s%d, s%d' % (sA, sA, sB))
a('s_mul_i32 s%d, s%d, 56' % (sB, sC))
a('s_add_u32 s%d, s%d, s%d' % (sA, sA, sB))
a('v_lshrrev_b32 v4, 2, v0')
a('v_mul_u32_u24 v4, 2688, v4')
a('v_and_b32 v5, 3, v0')
a('v_lshl_add_u32 v4, v5, 4, v4')
a('v_or_b32 v4, s%d, v4' % qINV)
a('s_mov_b32 m0, s%d' % sSTG)
a('s_add_u32 s%d, s%d, %d' % (sB, sA, 16 * 2688))
a('buffer_load_dwordx4 v4, %s, s%d offen lds' % (srd(S_TMP), sA))
a('s_add_u32 m0, s%d, 1024' % sSTG)
a('s_nop 0')
a('buffer_load_dwordx4 v4, %s, s%d offen lds' % (srd(S_TMP), sB))

bINV, bDST, bSTR, bINV2, bDST2, sSTRD = 20, 21, 22, 23, 24, 25


def emit_p2_issue():
    a('s_cmp_eq_u32 s%d, 3' % sW)
    a('s_cbranch_scc1 L_p2_w1')
    a('s_lshl_b32 s%d, s%d, 5' % (sA, sW))
    a('s_add_u32 s%d, s%d, s%d' % (sA, sA, sG))
    a('s_cmp_lt_u32 s%d, 72' % sA)
    a('s_cselect_b32 s%d, 0, 0x%x' % (bINV, INV))
    a('s_cmp_eq_u32 s%d, 7' % sJ)
    a('s_cselect_b32 s%d, 0x%x, s%d' % (bINV, INV, bINV))
    a('s_min_u32 s%d, s%d, 71' % (sA, sA))
    a('s_min_u32 s%d, s%d, 6' % (sD, sJ))
    a('s_cmp_lt_u32 s%d, 16' % sA)
    a('s_cselect_b32 s%d, s%d, s%d' % (S_TMP, P_WO, P_W2))
    a('s_cselect_b32 s%d, s%d, s%d' % (S_TMP + 1, P_WO + 1, P_W2 + 1))
    a('s_mov_b32 s%d, 0x%x' % (S_TMP + 2, 1792 * 896))
    a('s_cselect_b32 s%d, 0x%x, s%d' % (S_TMP + 2, 448 * 896, S_TMP + 2))
    a('s_cselect_b32 s%d, 28, 32' % sB)
    a('s_cselect_b32 s%d, 0, 16' % sCc)
    a('s_mov_b32 s%d, %d' % (bSTR, 56 * 1024))
    a('s_cselect_b32 s%d, %d, s%d' % (bSTR, 16 * 1024, bSTR))
    a('s_mov_b32 s%d, %d' % (bDST, L.WD))
    a('s_cselect_b32 s%d, %d, s%d' % (bDST, L.WB, bDST))
    a('s_cselect_b32 s%d, 0x%x, 0' % (sO + 9, INV))
    a('s_and_b32 s%d, s%d, 0xffff' % (S_TMP + 1, S_TMP + 1))
    a('s_mov_b32 s%d, 0x20000' % (S_TMP + 3))
    a('s_sub_u32 s%d, s%d, s%d' % (sA, sA, sCc))
    a('s_lshl_b32 s%d, s%d, 10' % (sCc, sA))
    a('s_add_u32 s%d, s%d, s%d' % (bDST, bDST, sCc))
    a('s_lshl_b32 s%d, s%d, 2' % (sCc, sD))
    a('s_mul_i32 s%d, s%d, s%d' % (sCc, sCc, bSTR))
    a('s_add_u32 s%d, s%d, s%d' % (bDST, bDST, sCc))
    a('s_mul_i32 s%d, s%d, s%d' % (sA, sA, sB))
    a('s_mul_i32 s%d, s%d, 896' % (sA, sA))
    a('s_lshl_b32 s%d, s%d, 7' % (sB, sD))
    a('s_add_u32 s%d, s%d, s%d' % (sO + 10, sA, sB))
    a('s_mov_b32 s%d, 896' % sSTRD)
    a('s_mov_b32 s%d, 0x%x' % (bINV2, INV))
    a('s_mov_b32 s%d, 0' % bDST2)
    a('s_mov_b32 s%d, 0' % (sO + 11))
    a('s_branch L_p2_go')
    a.label('L_p2_w1')
    build_srd(S_TMP, P_W1, 448 * 3584)
    a('s_lshl_b32 s%d, s%d, 4' % (sA, sS))
    a('s_add_u32 s%d, s%d, s%d' % (sA, sA, sC))
    a('s_cmp_lt_u32 s%d, 136' % sA)
    a('s_cselect_b32 s%d, 0, 0x%x' % (bINV2, INV))
    a('s_mov_b32 s%d, 0' % bINV)
    a('s_mov_b32 s%d, 0' % (sO + 9))
    a('s_mov_b32 s%d, %d' % (bSTR, 14 * 1024))
    a('s_mov_b32 s%d, 3584' % sSTRD)
    for dst, src, add in ((bDST, sO + 10, 0), (bDST2, sO + 11, 256)):
        a('s_add_u32 s%d, s%d, %d' % (sB, sA, add))
        a('s_min_u32 s%d, s%d, 391' % (sB, sB))
        a('s_mul_i32 s%d, s%d, 4682' % (sCc, sB))
        a('s_lshr_b32 s%d, s%d, 16' % (sCc, sCc))
        a('s_mul_i32 s%d, s%d, 14' % (sD, sCc))
        a('s_sub_u32 s%d, s%d, s%d' % (sB, sB, sD))
        a('s_mul_i32 s%d, s%d, %d' % (src, sB, 32 * 3584))
        a('s_lshl_b32 s%d, s%d, 7' % (sD, sCc))
        a('s_add_u32 s%d, s%d, s%d' % (src, src, sD))
        a('s_mul_i32 s%d, s%d, 56' % (sD, sCc))
        a('s_add_u32 s%d, s%d, s%d' % (sD, sD, sB))
        a('s_lshl_b32 s%d, s%d, 10' % (sD, sD))
        a('s_add_u32 s%d, s%d, %d' % (dst, sD, L.WC))
    a.label('L_p2_go')
    a('v_lshrrev_b32 v6, 3, v0')
    a('v_mul_lo_u32 v6, v6, s%d' % sSTRD)
    a('v_and_b32 v5, 7, v0')
    a('v_lshl_add_u32 v6, v5, 4, v6')
    a('v_or_b32 v8, s%d, v6' % bINV2)
    a('v_or_b32 v6, s%d, v6' % bINV)
    a('v_cmp_lt_u32 vcc, 31, v0')
    a('v_mov_b32 v7, s%d' % (sO + 9))
    a('v_cndmask_b32 v7, 0, v7, vcc')
    a('v_or_b32 v7, v7, v6')
    a('s_lshl_b32 s%d, s%d, 3' % (sB, sSTRD))
    for slot in range(2):
        src = sO + 10 + slot
        for q in range(4):
            a('s_add_u32 m0, s%d, %d' % (sSTG, 2048 + 4096 * slot + 1024 * q))
            if q:
                a('s_add_u32 s%d, s%d, s%d' % (src, src, sB))
            else:
                a('s_nop 0')
            a('buffer_load_dwordx4 v%d, %s, s%d offen lds' % (8 if slot else (7 if q == 3 else 6), srd(S_TMP), src))


if P2EARLY:
    emit_p2_issue()
build_srd(S_B1, P_B1, 1792 * 2)
build_srd(S_OUT, P_OUT, 2048 * 896)
a('v_bfe_u32 v18, v0, 2, 2')
a('v_lshl_add_u32 v18, v%d, 2, v18' % V_G)
a('v_and_b32 v19, 3, v0')
a('v_lshlrev_b32 v19, 3, v19')
if PREFPOS == 'b':
    emit_pref()
if TOUCH:
    if '--touch2' in sys.argv:
        a('s_lshl_b32 s%d, s%d, 23' % (sA, sW))
        a('v_lshlrev_b32 v21, 17, v0')
        a('v_add_u32 v21, s%d, v21' % sA)
        a('buffer_load_dword v253, v21, %s, 0 offen' % srd(S_WS))
    else:
        a('v_lshlrev_b32 v21, 21, v0')
        a('s_mov_b64 exec, 0x1ffff')
        a('buffer_load_dword v253, v21, %s, 0 offen' % srd(S_WS))
        a('s_mov_b64 exec, -1')
    a('s_waitcnt vmcnt(%d)' % ((9 if P2EARLY else 1) + (PREFPOS == 'b')))
else:
    a('s_waitcnt vmcnt(%d)' % ((8 if P2EARLY else 0) + (PREFPOS == 'b')))
stamp()

a('v_readfirstlane_b32 s%d, v%d' % (sEP, V_T))
a('s_mov_b32 s%d, 0x9E3779B1' % sA)
a('v_mul_lo_u32 v%d, v%d, s%d' % (V_T, V_T, sA))
a('v_add_u32 v%d, 0x7F4A7C15, v%d' % (V_T, V_T))
a('v_and_b32 v%d, -16, v%d' % (V_T, V_T))
a('v_lshl_add_u32 v20, v18, 6, v19')
a('v_add_u32 v20, s%d, v20' % sSTG)
for hf in range(2):
    a('ds_read_b64_tr_b16 %s, v20 offset:%d' % (vr(24 + 4 * hf, 2), 32 * hf))
    a('ds_read_b64_tr_b16 %s, v20 offset:%d' % (vr(26 + 4 * hf, 2), 32 * hf + 1024))
a('v_readfirstlane_b32 s%d, v%d' % (sT, V_T))
a('s_mul_i32 s%d, s%d, 14' % (sA, sO + 0))
a('s_add_u32 s%d, s%d, s%d' % (sA, sA, sO + 1))
a('s_lshl_b32 s%d, s%d, 10' % (sB, sA))
a('s_add_u32 s%d, s%d, %d' % (sB, sB, L.XA[0]))
a('v_or_b32 v3, s%d, v1' % (sO + 2))
a('buffer_store_dwordx4 v[10:13], v1, %s, s%d offen sc1' % (srd(S_WS), sB))
a('s_add_u32 s%d, s%d, 4096' % (sB, sB))
a('buffer_store_dwordx4 v[14:17], v3, %s, s%d offen sc1' % (srd(S_WS), sB))
a('v_cmp_gt_u32 vcc, 12, v%d' % V_TOK)
a('s_mul_i32 s%d, s%d, 84' % (sB, sC))
a('s_mul_i32 s%d, s%d, 28' % (sCc, qMAT))
a('s_add_u32 s%d, s%d, s%d' % (sB, sB, sCc))
a('s_add_u32 s%d, s%d, s%d' % (sB, sB, qU))
a('s_lshl_b32 s%d, s%d, 10' % (sB, sB))
a('s_add_u32 s%d, s%d, %d' % (sB, sB, L.WA))
a('v_or_b32 v4, s%d, v1' % qINV)
a('s_waitcnt lgkmcnt(0)')
for p in range(4):
    a('v_cndmask_b32 v%d, 0, v%d, vcc' % (28 + p, 28 + p))
a('buffer_store_dwordx4 v[24:27], v4, %s, s%d offen sc1' % (srd(S_WS), sB))
a('s_add_u32 s%d, s%d, %d' % (sB, sB, 14 * 1024))
a('buffer_store_dwordx4 v[28:31], v4, %s, s%d offen sc1' % (srd(S_WS), sB))
a('v_mov_b32 v2, 0x3f803f80')
for k in range(2):
    x, s1, s2 = 10 + 4 * k, 110 + 2 * k, 111 + 2 * k
    a('v_mov_b32 v%d, 0' % s1)
    a('v_mov_b32 v%d, 0' % s2)
    for p in range(4):
        a('v_dot2_f32_bf16 v%d, v%d, v2, v%d' % (s1, x + p, s1))
        a('v_dot2_f32_bf16 v%d, v%d, v%d, v%d' % (s2, x + p, x + p, s2))
    for t in xg_reduce(s1, 114) + xg_reduce(s2, 115):
        a(t)
a('s_lshl_b32 s%d, s%d, 7' % (sB, sA))
a('s_add_u32 s%d, s%d, %d' % (sB, sB, L.SA[0]))
a('v_lshlrev_b32 v2, 3, v%d' % V_TOK)
a('v_or_b32 v3, s%d, v2' % (sO + 2))
a('s_mov_b64 exec, 0xffff')
a('buffer_store_dwordx2 v[110:111], v2, %s, s%d offen sc1' % (srd(S_WS), sB))
a('buffer_store_dwordx2 v[112:113], v3, %s, s%d offen offset:512 sc1' % (srd(S_WS), sB))
a('s_mov_b64 exec, -1')
crit_mark = a.vm_mark()
if not P2EARLY:
    emit_p2_issue()
a('s_lshl_b32 s%d, s%d, 5' % (sA, sO + 0))
a('s_add_u32 s%d, s%d, s%d' % (sA, sA, sO + 1))
a('s_lshl_b32 s%d, s%d, 2' % (sA, sA))
a('s_add_u32 s%d, s%d, %d' % (sA, sA, L.FX[0]))
a('v_lshlrev_b32 v2, 4, v0')
a('v_add_u32 v2, s%d, v2' % sA)
a('v_cmp_eq_u32 vcc, 1, v0')
a('v_mov_b32 v3, s%d' % (sO + 2))
a('v_cndmask_b32 v3, 0, v3, vcc')
a('v_or_b32 v2, v2, v3')
a('s_lshl_b32 s%d, s%d, 6' % (sA, sC))
a('s_lshl_b32 s%d, s%d, 2' % (sB, sS))
a('s_add_u32 s%d, s%d, s%d' % (sA, sA, sB))
a('s_add_u32 s%d, s%d, s%d' % (sA, sA, sW))
a('s_lshl_b32 s%d, s%d, 2' % (sA, sA))
a('s_add_u32 s%d, s%d, %d' % (sA, sA, L.FQ))
a('v_mov_b32 v3, s%d' % sA)
a('v_cmp_eq_u32 vcc, 2, v0')
a('v_cndmask_b32 v2, v2, v3, vcc')
a('s_lshl_b32 s%d, s%d, 4' % (sA, sS))
a('s_add_u32 s%d, s%d, s%d' % (sA, sA, sC))
a('s_lshl_b32 s%d, s%d, 2' % (sA, sA))
a('s_add_u32 s%d, s%d, %d' % (sA, sA, L.FXC))
a('s_cmp_eq_u32 s%d, 0' % sW)
a('s_cselect_b32 s%d, s%d, 0x%x' % (sA, sA, INV))
a('v_mov_b32 v3, s%d' % sA)
a('v_cmp_eq_u32 vcc, 3, v0')
a('v_cndmask_b32 v2, v2, v3, vcc')
a('v_or_b32 v3, s%d, v%d' % (sXCC, V_T))
a('v_cndmask_b32 v3, v%d, v3, vcc' % V_T)
stamp2()
a.wait_vm(crit_mark)
a('s_mov_b64 exec, 15')
a('buffer_store_dword v3, v2, %s, 0 offen sc1' % srd(S_WS))
a('s_mov_b64 exec, -1')
stamp()

if PREFPOS == 'a':
    emit_pref()
BTOUCH = '--btouch' in sys.argv
if BTOUCH:
    a('v_lshlrev_b32 v21, 6, v0')
    a('buffer_load_dword v60, v21, %s, 0 offen' % srd(S_B1))
    build_srd(S_TMP, P_B2, 896)
    a('buffer_load_dword v61, v21, %s, 0 offen' % srd(S_TMP))
skew_store(1)
a('s_waitcnt vmcnt(%d)' % (1 + (PREFPOS == 'a') + 2 * BTOUCH))
a('v_lshl_add_u32 v20, v18, 7, v19')
a('v_add_u32 v20, s%d, v20' % sSTG)
for slot in range(2):
    for t in range(4):
        a('ds_read_b64_tr_b16 %s, v20 offset:%d' % (vr(24 + 16 * slot + 4 * t, 2), 2048 + 4096 * slot + 32 * t))
        a('ds_read_b64_tr_b16 %s, v20 offset:%d' % (vr(26 + 16 * slot + 4 * t, 2), 2048 + 4096 * slot + 32 * t + 2048))
a('v_or_b32 v6, s%d, v1' % bINV)
a('v_or_b32 v8, s%d, v1' % bINV2)
a('s_waitcnt lgkmcnt(8)')
for t in range(4):
    a('buffer_store_dwordx4 %s, v6, %s, s%d offen sc1' % (vr(24 + 4 * t), srd(S_WS), bDST))
    if t < 3:
        a('s_add_u32 s%d, s%d, s%d' % (bDST, bDST, bSTR))
a('s_waitcnt lgkmcnt(0)')
for t in range(4):
    a('buffer_store_dwordx4 %s, v8, %s, s%d offen sc1' % (vr(40 + 4 * t), srd(S_WS), bDST2))
    if t < 3:
        a('s_add_u32 s%d, s%d, s%d' % (bDST2, bDST2, bSTR))
a('s_lshl_b32 s%d, s%d, 4' % (sA, sS))
a('s_add_u32 s%d, s%d, s%d' % (sA, sA, sC))
a('s_lshl_b32 s%d, s%d, 2' % (sA, sA))
a('s_add_u32 s%d, s%d, %d' % (sA, sA, L.FW1))
a('v_lshlrev_b32 v22, 10, v0')
a('v_add_u32 v22, s%d, v22' % sA)
a('v_cmp_eq_u32 vcc, 1, v0')
a('v_mov_b32 v23, s%d' % bINV2)
a('v_cndmask_b32 v23, 0, v23, vcc')
a('v_or_b32 v22, v22, v23')
a('s_cmp_eq_u32 s%d, 3' % sW)
a('s_cselect_b32 s%d, 0, 0x%x' % (sA, INV))
a('v_or_b32 v22, s%d, v22' % sA)

skew_store(3)
a('v_and_b32 v2, 1, v%d' % V_TOK)
a('v_lshlrev_b32 v3, 2, v%d' % V_G)
a('v_add_u32 v6, 2, v%d' % V_TOK)
for i in range(4):
    a('v_add_u32 v4, %d, v3' % i)
    a('v_cmp_eq_u32 vcc, %d, v2' % (i & 1))
    a('s_mov_b64 %s, vcc' % sp(sMK))
    a('v_cmp_ge_u32 vcc, v4, v6')
    a('s_and_b64 %s, vcc, %s' % (sp(sM1 + 2 * i), sp(sMK)))
    a('v_cmp_le_u32 vcc, v4, v%d' % V_TOK)
    a('s_and_b64 %s, vcc, %s' % (sp(sM2 + 2 * i), sp(sMK)))
a('s_lshl_b32 s%d, s%d, 3' % (sA, sS))
a('s_lshl_b32 s%d, s%d, 1' % (sB, sW))
a('s_add_u32 s%d, s%d, s%d' % (sGT, sA, sB))
a('s_cmp_eq_u32 s%d, 0' % sGT)
for i in range(4):
    a('s_cselect_b64 %s, 0, %s' % (sp(sM0 + 2 * i), sp(sM1 + 2 * i)))
a('s_mov_b32 s%d, 0' % sPAIR)

def a_flag_addr(dst):
    pair_base(sA, L.FX)
    a('s_lshl_b32 s%d, s%d, 7' % (sB, sGT))
    a('s_add_u32 s%d, s%d, s%d' % (sA, sA, sB))
    a('s_sub_u32 s%d, s%d, 128' % (sA, sA))
    a('v_and_b32 v%d, 48, v0' % dst)
    a('v_add_u32 v%d, v%d, v0' % (dst, dst))
    a('v_lshl_add_u32 v%d, v%d, 2, s%d' % (dst, dst, sA))
    a('s_mov_b32 s%d, 0x3fff3fff' % sMK)
    a('s_mov_b32 s%d, 0x3fff' % (sMK + 1))
    a('s_cmp_eq_u32 s%d, 0' % sGT)
    a('s_cselect_b32 s%d, 0x3fff0000, s%d' % (sMK, sMK))


a('s_lshl_b32 s%d, s%d, 8' % (sA, sC))
a('s_add_u32 s%d, s%d, %d' % (sA, sA, L.FQ))
a('v_lshl_add_u32 v2, v0, 2, s%d' % sA)
a_flag_addr(3)
a('s_lshl_b32 s%d, s%d, 6' % (sA, sS))
a('s_add_u32 s%d, s%d, %d' % (sA, sA, L.FXC - 48 * 4))
a('v_lshl_add_u32 v4, v0, 2, s%d' % sA)
a('v_cmp_lt_u32 vcc, 47, v0')
a('v_cndmask_b32 v3, v3, v4, vcc')
a('v_mov_b32 v5, -1')
a('v_mov_b32 v6, -16')
a('v_cndmask_b32 v5, v5, v6, vcc')
a('s_or_b32 s%d, s%d, 0xffff0000' % (sMK + 1, sMK + 1))
a('s_mov_b32 s%d, 0' % sSPIN)
a.label('L_poll0')
a('buffer_load_dword v7, v2, %s, 0 offen sc1' % srd(S_WS))
a('s_mov_b64 exec, %s' % sp(sMK))
a('buffer_load_dword v8, v3, %s, 0 offen sc1' % srd(S_WS))
a('s_waitcnt vmcnt(0)')
a('v_and_b32 v9, v5, v8')
a('v_cmp_ne_u32 vcc, s%d, v9' % sT)
a('s_mov_b64 exec, -1')
a('s_mov_b64 %s, vcc' % sp(sTS))
a('v_cmp_ne_u32 vcc, s%d, v7' % sT)
a('s_or_b64 vcc, vcc, %s' % sp(sTS))
a('s_cbranch_vccz L_poll0_done')
a('s_add_u32 s%d, s%d, 1' % (sSPIN, sSPIN))
a('s_cmp_lt_u32 s%d, %d' % (sSPIN, SPIN_LIMIT))
a('s_cbranch_scc1 L_poll0')
a('s_add_u32 s%d, s%d, 1' % (sERR, sERR))
a.label('L_poll0_done')
a('s_mov_b64 exec, 3')
a('buffer_store_dword v%d, v22, %s, 0 offen sc1' % (V_T, srd(S_WS)))
a('s_mov_b64 exec, -1')
skew_store(2)
a('v_and_b32 v9, 15, v8')
a('v_cmp_ne_u32 vcc, s%d, v9' % sXCC)
a('s_and_b32 s%d, vcc_hi, 0xffff0000' % sA)
a('s_cmp_eq_u32 s%d, 0' % sA)
a('s_cselect_b32 s%d, 1, 0' % sFAST)
stamp()
AQ, AK, AV, HACC = 2, 18, 34, 50
WBUF = [66, 90]
XR = 114
CSACC = 186
STR = 210
SM, SR = 234, 237
NR, LOOK = 6, 4
A_ONES = 240


def a_xload(u):
    slot = u % NR
    return ['buffer_load_dwordx4 %s, v1, %s, s%d offen offset:%d sc1' %
            (vr(XR + (slot * 2 + t) * 4), srd(S_WS), sO + 4 * (t + 1) + (u >> 2), 1024 * (u & 3)) for t in range(2)]


def a_offsets():
    pair_base(sA, L.XA)
    a('s_mul_i32 s%d, s%d, 14336' % (sB, sGT))
    a('s_add_u32 s%d, s%d, s%d' % (sO + 4, sA, sB))
    a('s_add_u32 s%d, s%d, 14336' % (sO + 8, sO + 4))
    for t in range(1, 3):
        for q in range(1, 4):
            a('s_add_u32 s%d, s%d, %d' % (sO + 4 * t + q, sO + 4 * t, 4096 * q))
    a('s_lshl_b32 s%d, s%d, 3' % (sB, sS))
    a('s_max_u32 s%d, s%d, 1' % (sB, sB))
    a('s_sub_u32 s%d, s%d, 1' % (sB, sB))
    a('s_mul_i32 s%d, s%d, 14336' % (sB, sB))
    a('s_add_u32 s%d, s%d, s%d' % (sO + 0, sA, sB))
    a('s_lshl_b32 s%d, s%d, 12' % (sB, sW))
    a('s_add_u32 s%d, s%d, s%d' % (sO + 0, sO + 0, sB))
    a('s_add_u32 s%d, s%d, %d' % (sO + 1, sB, L.L_R2))


def a_setup():
    if FASTMODE == 'flags':
        a('s_mov_b32 s%d, 0' % sFD)
        a('s_mov_b32 s%d, 0' % sFH)
    elif FASTMODE == 'p0':
        a('s_xor_b32 s%d, s%d, 1' % (sFD, sPAIR))
        a('s_and_b32 s%d, s%d, s%d' % (sFD, sFD, sFAST))
        a('s_mov_b32 s%d, s%d' % (sFH, sFD))
    elif FASTMODE == 'small':
        a('s_mov_b32 s%d, s%d' % (sFD, sFAST))
        a('s_mov_b32 s%d, 0' % sFH)
    elif FASTMODE == 'smallp0':
        a('s_mov_b32 s%d, s%d' % (sFD, sFAST))
        a('s_xor_b32 s%d, s%d, 1' % (sFH, sPAIR))
        a('s_and_b32 s%d, s%d, s%d' % (sFH, sFH, sFAST))
    else:
        a('s_mov_b32 s%d, s%d' % (sFD, sFAST))
        a('s_mov_b32 s%d, s%d' % (sFH, sFAST))
    pair_base(sA, L.SA)
    a('s_mul_i32 s%d, s%d, 1792' % (sB, sGT))
    a('s_add_u32 s%d, s%d, s%d' % (sO + 13, sA, sB))
    a('s_add_u32 s%d, s%d, 1792' % (sO + 14, sO + 13))
    a('s_sub_u32 s%d, s%d, 1792' % (sO + 12, sO + 13))
    a('s_cmp_eq_u32 s%d, 0' % sGT)
    a('s_cselect_b32 s%d, s%d, s%d' % (sO + 12, sO + 13, sO + 12))
    a('v_and_b32 v%d, 15, v0' % V_TOK)
    a('v_lshrrev_b32 v%d, 4, v0' % V_G)
    a('v_lshlrev_b32 v240, 3, v%d' % V_TOK)
    a('v_lshl_add_u32 v240, v%d, 7, v240' % V_G)
    a('v_mov_b32 v242, 0x%x' % INV)
    a('v_cmp_lt_u32 vcc, 1, v%d' % V_G)
    a('v_cndmask_b32 v241, 0, v242, vcc')
    a('v_or_b32 v241, v241, v240')
    a('v_add_u32 v243, %d, v1' % (56 * 1024))
    a('v_lshlrev_b32 v244, 4, v%d' % V_G)
    a('v_add_u32 v244, %d, v244' % L.L_CSA)
    a('v_lshlrev_b32 v245, 2, v%d' % V_TOK)
    a('v_add_u32 v245, %d, v245' % L.L_CSA)
    a('s_mul_i32 s%d, s%d, 384' % (sA, sW))
    a('s_add_u32 s%d, s%d, %d' % (sA, sA, L.L_STA))
    a('v_lshl_add_u32 v162, v%d, 2, s%d' % (V_TOK, sA))
    a('v_lshl_add_u32 v163, v%d, 4, s%d' % (V_G, sA))
    a('s_lshl_b32 s%d, s%d, 7' % (sA, sJ))
    a('s_add_u32 s%d, s%d, %d' % (sA, sA, L.FP))
    a('v_lshl_add_u32 v248, v0, 2, s%d' % sA)
    a('s_lshr_b32 s%d, s%d, 1' % (sB, sW))
    a('s_lshl_b32 s%d, s%d, 2' % (sCc, sG))
    a('s_add_u32 s%d, s%d, s%d' % (sB, sB, sCc))
    a('s_lshl_b32 s%d, s%d, 5' % (sB, sB))
    a('s_and_b32 s%d, s%d, 1' % (sA, sW))
    a('s_add_u32 s%d, s%d, s%d' % (sB, sB, sA))
    a('s_min_u32 s%d, s%d, 6' % (sA, sJ))
    a('s_lshl_b32 s%d, s%d, 1' % (sA, sA))
    a('s_add_u32 s%d, s%d, s%d' % (sB, sB, sA))
    a('s_lshl_b32 s%d, s%d, 2' % (sB, sB))
    a('s_add_u32 s%d, s%d, %d' % (sB, sB, L.FX[0] - 32 * 256))
    a('v_lshl_add_u32 v249, v0, 8, s%d' % sB)
    a('v_cmp_lt_u32 vcc, 31, v0')
    a('v_cndmask_b32 v248, v248, v249, vcc')
    a('s_lshr_b32 s%d, s%d, 3' % (sA, sC))
    a('s_mul_i32 s%d, s%d, 7' % (sA, sA))
    a('s_min_u32 s%d, s%d, 6' % (sB, sJ))
    a('s_add_u32 s%d, s%d, s%d' % (sA, sA, sB))
    a('s_mul_i32 s%d, s%d, 112' % (sA, sA))
    a('s_add_u32 s%d, s%d, %d' % (sA, sA, L.FW1 - 34 * 4))
    a('v_lshl_add_u32 v249, v0, 2, s%d' % sA)
    a('v_cmp_lt_u32 vcc, 33, v0')
    a('v_cndmask_b32 v248, v248, v249, vcc')
    a('s_lshl_b32 s%d, s%d, 7' % (sA, sS))
    a('s_add_u32 s%d, s%d, %d' % (sA, sA, L.FH))
    a('v_and_b32 v247, 15, v0')
    a('v_lshl_add_u32 v247, v247, 2, s%d' % sA)
    a('s_lshl_b32 s%d, s%d, 7' % (sB, sGT))
    a('s_add_u32 s%d, s%d, %d' % (sB, sB, L.FX[1] - 128))
    a('v_lshl_add_u32 v253, v0, 2, s%d' % sB)
    a('s_cmp_eq_u32 s%d, 0' % sW)
    a('s_cselect_b32 s%d, 0, 16' % sA)
    a('v_cmp_gt_u32 vcc, s%d, v0' % sA)
    a('v_cndmask_b32 v247, v247, v253, vcc')
    a('s_mov_b32 s%d, 0x3fff3fff' % sMK2)
    a('s_mov_b32 s%d, 0' % (sMK2 + 1))
    a('s_cmp_eq_u32 s%d, 0' % sS)
    a('s_cselect_b32 s%d, 0x3fff, s%d' % (sMK2, sMK2))
    a('v_and_b32 v253, 15, v0')
    a('v_lshlrev_b32 v253, 2, v253')
    a('v_add_u32 v253, %d, v253' % L.FX[1])
    a('s_cmp_eq_u32 s%d, 0' % sGT)
    a('s_cselect_b64 vcc, -1, 0')
    a('v_cndmask_b32 v247, v247, v253, vcc')


stat_loads = ['buffer_load_dwordx2 %s, v%d, %s, s%d offen offset:%d sc1' %
              (vr(STR + (t * 4 + i) * 2, 2), 241 if i == 3 else 240, srd(S_WS), sO + 12 + t, 512 * i)
              for t in range(3) for i in range(4)]


def a_wread(u):
    b = WBUF[u & 1]
    o = []
    for p in range(6):
        if p < 4:
            o.append('ds_read_b128 %s, v1 offset:%d' % (vr(b + 4 * p), L.L_WA + (p * 14 + u) * 1024))
        else:
            o.append('ds_read_b128 %s, v243 offset:%d' % (vr(b + 4 * p), L.L_WA + ((p - 4) * 14 + u) * 1024))
    return o


stat_fill = []
for t in (1, 2, 0):
    r = STR + 8 * t
    for c_ in range(2):
        stat_fill += ['v_add_f32 v%d, v%d, v%d' % (r + c_, r + c_, r + 2 + c_),
                      'v_add_f32 v%d, v%d, v%d' % (r + 4 + c_, r + 4 + c_, r + 6 + c_),
                      'v_add_f32 v%d, v%d, v%d' % (r + c_, r + c_, r + 4 + c_)]
    stat_fill += xg_reduce(r, r + 2) + xg_reduce(r + 1, r + 3)
    stat_fill += stats_finish(r, r + 1, r + 2, False)
    stat_fill += ['v_mov_b32 v%d, v%d' % (SM + t, r), 'v_mov_b32 v%d, v%d' % (SR + t, r + 1)]

sWA = [20, 21, 22]
sWAG = 23


def wa_dma(pr, i):
    def f():
        a('s_add_u32 m0, s%d, %d' % (sWA[i], L.L_WA + 2048 * pr))
        a('s_add_u32 s%d, s%d, s%d' % (sD, sWA[i], sWAG))
        if pr:
            a('s_add_u32 s%d, s%d, %d' % (sD, sD, 2048 * pr))
        a('buffer_load_dwordx4 v1, %s, s%d offen sc1 lds' % (srd(S_WS), sD))
    return f


amark = {}


def emit_a_loop(first, xmark, wam):
    ep_mark = es_mark = st_mark = None
    for t in a_wread(0):
        a(t)
    for u in range(14):
        need = xmark[u]
        if u == 8:
            need = max(need, amark['st_own'])
        if u == 13:
            need = max(need, st_mark)
        a.wait_vm(need)
        if not first and u == 9:
            early_check(246, 247, es_mark)
            a('s_nop 0')
        if u == 12:
            a('s_mov_b32 s%d, -1' % sMK2)
            a('s_mov_b32 s%d, 0x3fffffff' % (sMK2 + 1))
        a('s_waitcnt lgkmcnt(0)')
        wb = WBUF[u & 1]
        xs = XR + (u % NR) * 8
        mf = []
        cz = (lambda r: '0') if u == 0 else (lambda r: vr(r))
        for t in range(2):
            for hf in range(2):
                r = AQ + (t * 2 + hf) * 4
                mf.append('%s %s, %s, %s, %s' % (MFMA, vr(r), vr(wb + 4 * hf), vr(xs + 4 * t), cz(r)))
        for t in range(2):
            for hf in range(2):
                r = AK + (t * 2 + hf) * 4
                mf.append('%s %s, %s, %s, %s' % (MFMA, vr(r), vr(wb + 8 + 4 * hf), vr(xs + 4 * t), cz(r)))
        for t in range(2):
            for hf in range(2):
                r = AV + (t * 2 + hf) * 4
                mf.append('%s %s, %s, %s, %s' % (MFMA, vr(r), vr(xs + 4 * t), vr(wb + 16 + 4 * hf), cz(r)))
        if first:
            mf.append('%s %s, %s, %s, %s' % (MFMA, vr(CSACC + 8), vr(CSACC), ar(A_ONES), cz(CSACC + 8)))
            mf.append('%s %s, %s, %s, %s' % (MFMA, vr(CSACC + 12), ar(A_ONES), vr(CSACC + 4), cz(CSACC + 12)))
        mem = {}

        def put(k, x):
            mem.setdefault(k, []).append(x)
        nm = len(mf)
        off = 0
        if first:
            a('ds_read_b128 %s, v252 offset:%d' % (vr(CSACC), 1024 * u))
            a('ds_read_b128 %s, v242 offset:%d' % (vr(CSACC + 4), 1024 * u))
            put(11, 's_waitcnt lgkmcnt(%d)' % (6 if u < 13 else 0))
        if first and u % 2 == 1 and u < 13:
            put(2, ('bar', (u + 1) // 2))
            off = 3
        if u < 13:
            for k, x in enumerate(a_wread(u + 1)):
                put(off + k, x)
        elif not first:
            for p in range(4):
                put(p, 'ds_read_b128 %s, v244 offset:%d' % (vr(WBUF[0] + 4 * p), 64 * p))
            for d in range(2):
                put(4 + d, 'ds_read_b32 v%d, v245 offset:%d' % (WBUF[0] + 16 + d, 64 * (4 + d)))
        if first and u < 2:
            for j_, uu in enumerate((2 * u + 2, 2 * u + 3)):
                for k, x in zip((6, 8), a_xload(uu)):
                    put(k + 4 * j_, x)
                put(8 + 4 * j_, ('xm', uu))
            if u == 0:
                for i, k in enumerate((7, 9, 11)):
                    put(k, ('wa', 2, i))
        elif u + LOOK < 14:
            for k, x in zip((6, 9), a_xload(u + LOOK)):
                put(k, x)
            put(9, ('xm', u + LOOK))
        if first and u % 2 == 0 and u // 2 + 3 <= 6:
            for i, k in enumerate((12, 13, 13) if u == 0 else (7, 10, 12)):
                put(k, ('wa', u // 2 + 3, i))
        order = list(range(4, 12)) + list(range(0, 4))
        if 2 <= u < 6:
            for k, x in zip((8, 11), order[2 * (u - 2):2 * (u - 2) + 2]):
                put(k, stat_loads[x])
            if u == 5:
                put(11, ('sto',))
        if not first and u == 6:
            put(7, ('estat',))
        if u in (9, 10):
            for k, x in zip((8, 11) if u == 10 else (3, 5), order[8 + 2 * (u - 9):8 + 2 * (u - 9) + 2]):
                put(k, stat_loads[x])
            if u == 10:
                put(11, ('st',))
        if u == 9:
            put(10, 's_mov_b32 m0, s%d' % (sO + 1))
            for i, k in enumerate((10, 10, 11, 11)):
                put(k, 'buffer_load_dwordx4 v1, %s, s%d offen offset:%d sc1 lds' % (srd(S_WS), sO + 0, 1024 * i))
            put(11, ('hm',))
        if u == 13:
            put(8, ('early',))
        fill = []
        if 8 <= u < 11:
            fill = stat_fill[(u - 8) * 18:(u - 7) * 18]
        elif u == 13:
            fill = stat_fill[54:76]
        fi = 0
        for k, m in enumerate(mf):
            a(m)
            for it in mem.get(k, []):
                if isinstance(it, str):
                    a(it)
                elif it[0] == 'early':
                    ep_mark = early_issue(249, 248)
                elif it[0] == 'estat':
                    es_mark = early_issue(246, 247)
                elif it[0] == 'xm':
                    xmark[it[1]] = a.vm_mark()
                elif it[0] == 'st':
                    st_mark = a.vm_mark()
                elif it[0] == 'sto':
                    amark['st_own'] = a.vm_mark()
                elif it[0] == 'hm':
                    amark['halo'] = a.vm_mark()
                elif it[0] == 'bar':
                    a.wait_vm(wam[it[1]])
                    a('s_barrier')
                elif it[0] == 'wa':
                    wa_dma(it[1], it[2])()
                    wam[it[1]] = a.vm_mark()
            for _ in range(2):
                if fi < len(fill) and k >= 1:
                    a(fill[fi])
                    fi += 1
        assert fi == len(fill), (u, fi, len(fill))
    amark['ep'] = ep_mark


for p in range(4):
    a('v_mov_b32 v4, 0x3f803f80')
    a('v_accvgpr_write_b32 a%d, v4' % (A_ONES + p))
a('s_mul_i32 s%d, s%d, 14336' % (sWA[0], sW))
a('s_add_u32 s%d, s%d, 4' % (sA, sW))
a('s_mul_i32 s%d, s%d, 14336' % (sA, sA))
a('s_sub_u32 s%d, s%d, 2' % (sB, sW))
a('s_mul_i32 s%d, s%d, 14336' % (sB, sB))
a('s_add_u32 s%d, s%d, 1024' % (sB, sB))
a('s_cmp_lt_u32 s%d, 2' % sW)
a('s_cselect_b32 s%d, s%d, s%d' % (sWA[1], sA, sB))
a('s_add_u32 s%d, s%d, 2' % (sA, sW))
a('s_mul_i32 s%d, s%d, 14336' % (sA, sA))
a('s_add_u32 s%d, s%d, 1024' % (sWA[2], sA))
a('s_mul_i32 s%d, s%d, %d' % (sWAG, sC, 84 * 1024))
a('s_add_u32 s%d, s%d, %d' % (sWAG, sWAG, L.WA))
a_offsets()
xm0, wam0 = {}, {}


def wa_pair(pr):
    for i in range(3):
        wa_dma(pr, i)()
    wam0[pr] = a.vm_mark()


wa_pair(0)
for u in range(2):
    for t in a_xload(u):
        a(t)
    xm0[u] = a.vm_mark()
wa_pair(1)
a_setup()
a('s_mul_i32 s%d, s%d, 14336' % (sA, sW))
a('v_add_u32 v252, s%d, v1' % sA)
a('s_and_b32 s%d, s%d, 1' % (sA, sW))
a('s_mul_i32 s%d, s%d, 14336' % (sA, sA))
a('v_add_u32 v242, s%d, v243' % sA)
a.wait_vm(wam0[0])
a('s_barrier')
a('s_lshl_b32 s%d, s%d, 5' % (sA, sJ))
a('s_add_u32 s%d, s%d, s%d' % (sA, sA, sG))
a('s_lshl_b32 s%d, s%d, 2' % (sA, sA))
a('s_add_u32 s%d, s%d, %d' % (sA, sA, L.FP))
a('s_cmp_eq_u32 s%d, 0' % sW)
a('s_cselect_b32 s%d, s%d, 0x%x' % (sA, sA, INV))
a('v_mov_b32 v2, s%d' % sA)
a('s_mov_b64 exec, 1')
a('buffer_store_dword v%d, v2, %s, 0 offen sc1' % (V_T, srd(S_WS)))
a.vm_issued -= 1
a('s_mov_b64 exec, -1')
stamp()
emit_a_loop(True, xm0, wam0)
n_join = a.vm_issued - amark['ep']
CSQ = WBUF[0]
a('v_cmp_eq_u32 vcc, 0, v%d' % V_TOK)
a('s_lshl_b32 s%d, s%d, 6' % (sA, sW))
a('v_add_u32 v252, s%d, v244' % sA)
a('s_and_b32 s%d, s%d, 1' % (sA, sW))
a('s_lshl_b32 s%d, s%d, 6' % (sA, sA))
a('v_add_u32 v242, s%d, v245' % sA)
a('s_mov_b64 exec, vcc')
a('ds_write_b128 v252, %s' % vr(CSACC + 8))
a('s_mov_b64 exec, 0xffff')
a('ds_write_b32 v242, v%d offset:256' % (CSACC + 12))
a('s_mov_b64 exec, -1')
a('s_waitcnt lgkmcnt(0)')
a('s_barrier')
for p in range(4):
    a('ds_read_b128 %s, v244 offset:%d' % (vr(WBUF[0] + 4 * p), 64 * p))
for d in range(2):
    a('ds_read_b32 v%d, v245 offset:%d' % (WBUF[0] + 16 + d, 64 * (4 + d)))
with OutOfLine():
    a.label('L_pair')
    a_flag_addr(2)
    a('s_mov_b32 s%d, 0x3fff0000' % sMK)
    ASLEEP = int(([x[9:] for x in sys.argv if x.startswith('--asleep=')] + ['0'])[0])
    poll(2, None, ASLEEP)
    stamp()
    a_offsets()
    xmark = {}
    for u in range(LOOK):
        for t in a_xload(u):
            a(t)
        xmark[u] = a.vm_mark()
    a_setup()
    emit_a_loop(False, xmark, None)
    assert a.vm_issued - amark['ep'] == n_join
    ep_mark = amark['ep']
    a('s_branch L_a_epi')
a.label('L_a_epi')
stamp()
a('s_add_u32 s%d, s%d, 2' % (sA, sW))
a('s_mul_i32 s%d, s%d, 14336' % (sA, sA))
a('v_add_u32 v246, s%d, v1' % sA)
a('v_add_u32 v247, %d, v1' % L.L_R2)
a('s_cmp_lt_u32 s%d, 2' % sW)
a('s_cselect_b64 vcc, -1, 0')
a('v_cndmask_b32 v252, v247, v246, vcc')
a('v_cndmask_b32 v253, v246, v247, vcc')
MROW, RROW = 114, 126
for x in stat_fill[76:]:
    a(x)
a('s_mov_b64 exec, 0xffff')
for t in range(3):
    a('ds_write_b32 v162, v%d offset:%d' % (SM + t, 128 * t))
    a('ds_write_b32 v162, v%d offset:%d' % (SR + t, 128 * t + 64))
a('s_mov_b64 exec, -1')
for t in range(3):
    a('ds_read_b128 %s, v163 offset:%d' % (vr(MROW + 4 * t), 128 * t))
    a('ds_read_b128 %s, v163 offset:%d' % (vr(RROW + 4 * t), 128 * t + 64))
a.wait_vm(amark['halo'])
a('s_barrier')
HOP = 90
def h_reads(u):
    r = HOP + 8 * (u % 3)
    return ['ds_read_b128 %s, v252 offset:%d' % (vr(r), 1024 * u), 'ds_read_b128 %s, v253 offset:%d' % (vr(r + 4), 1024 * u)]
for u in range(2):
    for x in h_reads(u):
        a(x)
rest = []
for u in range(14):
    if u + 2 < 14:
        for x in h_reads(u + 2):
            a(x)
    a('s_waitcnt lgkmcnt(%d)' % (4 if u < 12 else (2 if u == 12 else 0)))
    r = HOP + 8 * (u % 3)
    a('%s %s, %s, %s, %s' % (MFMA, vr(HACC), vr(r), vr(r + 4), '0' if u == 0 else vr(HACC)))
    if rest:
        a(rest.pop(0))
for x in rest:
    a(x)
stamp2()
early_check(249, 248, ep_mark)
BW = 2
a('s_lshl_b32 s%d, s%d, 6' % (sA, sJ))
a('s_lshl_b32 s%d, s%d, 2' % (sB, sW))
a('s_add_u32 s%d, s%d, s%d' % (sA, sA, sB))
a('s_lshl_b32 s%d, s%d, 10' % (sA, sA))
a('s_add_u32 s20, s%d, %d' % (sA, L.WB))
for t in range(1, 4):
    a('s_add_u32 s%d, s20, %d' % (20 + t, 16 * 1024 * t))
wb_all = ['buffer_load_dwordx4 %s, v1, %s, s%d offen offset:%d sc1' % (vr(BW + (i * 4 + t) * 4), srd(S_WS), 20 + t, 1024 * i)
          for i in range(4) for t in range(4)]
for x in wb_all[13:16]:
    a(x)
wb_loads = wb_all[8:13]
A_RES, A_B2 = 224, 232


def red_addrs():
    a('s_lshl_b32 s%d, s%d, 13' % (sA, sW))
    a('s_add_u32 s%d, s%d, %d' % (sA, sA, L.L_R2))
    a('v_add_u32 v248, s%d, v1' % sA)
    a('s_and_b32 s%d, s%d, 1' % (sA, sW))
    a('s_lshl_b32 s%d, s%d, 11' % (sA, sA))
    a('s_lshr_b32 s%d, s%d, 1' % (sB, sW))
    a('s_lshl_b32 s%d, s%d, 12' % (sB, sB))
    a('s_add_u32 s%d, s%d, s%d' % (sA, sA, sB))
    a('s_add_u32 s%d, s%d, %d' % (sA, sA, L.L_R2))
    a('v_add_u32 v249, s%d, v1' % sA)


def publish_setup(xbase, sbase, fbase, per_pair, fsh):
    owner_index()
    a('s_mul_i32 s%d, s%d, 14' % (sCc, sB))
    a('s_add_u32 s%d, s%d, s%d' % (sCc, sCc, sA))
    a('s_lshl_b32 s%d, s%d, 10' % (sPX, sCc))
    a('s_lshl_b32 s%d, s%d, 7' % (sPS, sCc))
    a('s_lshl_b32 s%d, s%d, %d' % (sPF, sB, fsh))
    a('s_add_u32 s%d, s%d, s%d' % (sPF, sPF, sA))
    a('s_lshl_b32 s%d, s%d, 2' % (sPF, sPF))
    for dst, arr in ((sPX, xbase), (sPS, sbase), (sPF, fbase)):
        if per_pair:
            pair_base(sD, arr)
            a('s_add_u32 s%d, s%d, s%d' % (dst, dst, sD))
        else:
            a('s_add_u32 s%d, s%d, %d' % (dst, dst, arr))
    a('s_add_u32 s%d, s%d, %d' % (sPX2, sPX, 2 * 14336))


def owner_index():
    a('s_lshr_b32 s%d, s%d, 1' % (sB, sW))
    a('s_lshl_b32 s%d, s%d, 2' % (sCc, sG))
    a('s_add_u32 s%d, s%d, s%d' % (sB, sB, sCc))
    a('s_and_b32 s%d, s%d, 1' % (sA, sW))
    a('s_lshl_b32 s%d, s%d, 1' % (sCc, sJ))
    a('s_add_u32 s%d, s%d, s%d' % (sA, sA, sCc))


a('s_cmp_eq_u32 s%d, 0' % sPAIR)
a('s_cbranch_scc0 L_a_nores')
owner_index()
a('s_mul_i32 s%d, s%d, 14' % (sB, sB))
a('s_add_u32 s%d, s%d, s%d' % (sB, sB, sA))
a('s_lshl_b32 s%d, s%d, 10' % (sB, sB))
a('s_add_u32 s%d, s%d, %d' % (sB, sB, L.XA[0]))
a('buffer_load_dwordx4 %s, v1, %s, s%d offen sc1' % (ar(A_RES), srd(S_WS), sB))
a('s_add_u32 s%d, s%d, %d' % (sB, sB, 2 * 14336))
a('buffer_load_dwordx4 %s, v1, %s, s%d offen sc1' % (ar(A_RES + 4), srd(S_WS), sB))
build_srd(S_TMP, P_B2, 896)
a('s_lshl_b32 s%d, s%d, 6' % (sB, sA))
a('v_lshlrev_b32 v240, 3, v%d' % V_G)
a('buffer_load_dwordx2 v[228:229], v240, %s, s%d offen' % (srd(S_TMP), sB))
a('buffer_load_dwordx2 v[230:231], v240, %s, s%d offen offset:32' % (srd(S_TMP), sB))
a.label('L_a_nores')
CSQ = WBUF[0]
QF, KF, VF = 140, 148, 160


def pk(op, dst, srcs, neg=None):
    ops, lo, hi = [], [], []
    for x in srcs:
        if isinstance(x, tuple):
            ops.append(vr(x[1] & ~1, 2))
            lo.append(x[1] & 1)
            hi.append(x[1] & 1)
        else:
            ops.append(vr(x, 2))
            lo.append(0)
            hi.append(1)
    t = '%s %s, %s op_sel:[%s] op_sel_hi:[%s]' % (op, vr(dst, 2), ', '.join(ops), ','.join(map(str, lo)), ','.join(map(str, hi)))
    if neg is not None:
        m = ','.join('1' if k == neg else '0' for k in range(len(srcs)))
        t += ' neg_lo:[%s] neg_hi:[%s]' % (m, m)
    return t


for t in range(2):
    for hf in range(2):
        r = AQ + (t * 2 + hf) * 4
        for i in (0, 2):
            a(pk('v_pk_fma_f32', r + i, [('b', SM + t + 1), CSQ + 4 * hf + i, r + i], 0))
        for p in range(2):
            a('v_cvt_pk_bf16_f32 v%d, v%d, v%d' % (QF + 4 * t + 2 * hf + p, r + 2 * p, r + 2 * p + 1))
        a(wb_all[2 * t + hf])
for t in range(2):
    for hf in range(2):
        r = AK + (t * 2 + hf) * 4
        for i in (0, 2):
            a(pk('v_pk_fma_f32', r + i, [('b', SM + t + 1), CSQ + 8 + 4 * hf + i, r + i], 0))
        for p in range(2):
            a('v_cvt_pk_bf16_f32 v%d, v%d, v%d' % (KF + 4 * (t + 1) + 2 * hf + p, r + 2 * p, r + 2 * p + 1))
        a(wb_all[4 + 2 * t + hf])
L_E, L_HX = L.L_R2 + 16384, L.L_R2 + 26624
a('s_lshl_b32 s%d, s%d, 11' % (sA, sW))
a('s_add_u32 s%d, s%d, %d' % (sA, sA, L_E))
a('v_add_u32 v246, s%d, v1' % sA)
a('s_lshl_b32 s%d, s%d, 10' % (sA, sW))
a('s_add_u32 s%d, s%d, %d' % (sA, sA, L_HX))
a('v_add_u32 v247, s%d, v1' % sA)
a('s_waitcnt lgkmcnt(0)')
for t in range(2):
    for d in range(2):
        r = AV + (t * 2 + d) * 4
        for i in (0, 2):
            a(pk('v_pk_fma_f32', r + i, [MROW + 4 * (t + 1) + i, ('b', CSQ + 16 + d), r + i], 0))
        for p in range(2):
            a('v_cvt_pk_bf16_f32 v%d, v%d, v%d' % (VF + 6 * d + 2 * (t + 1) + p, r + 2 * p, r + 2 * p + 1))
a('ds_write_b128 v246, %s offset:2048' % vr(KF + 8))
a('ds_write_b64 v246, %s offset:3072' % vr(VF + 4, 2))
a('ds_write_b64 v246, %s offset:3080' % vr(VF + 10, 2))
a('ds_write_b128 v247, %s' % vr(HACC))
pair_base(sA, L.O)
a('s_lshl_b32 s%d, s%d, 4' % (sB, sGT))
a('s_add_u32 s%d, s%d, s%d' % (sB, sB, sC))
a('s_lshl_b32 s%d, s%d, 10' % (sB, sB))
a('s_add_u32 s32, s%d, s%d' % (sA, sB))
a('s_add_u32 s33, s32, 16384')
stamp2()
a('s_waitcnt lgkmcnt(0)')
a('s_barrier')
stamp2()
SS = 172
a('s_cmp_eq_u32 s%d, 0' % sW)
a('s_cbranch_scc1 L_a_halo')
a('ds_read_b128 %s, v246' % vr(KF))
a('ds_read_b64 %s, v246 offset:1024' % vr(VF, 2))
a('ds_read_b64 %s, v246 offset:1032' % vr(VF + 6, 2))
a('s_waitcnt lgkmcnt(0)')
a('s_branch L_a_prev')
a.label('L_a_halo')
a('v_add_u32 v247, %d, v1' % L_HX)
for p in range(4):
    a('ds_read_b128 %s, v247 offset:%d' % (vr(SS + 4 * p), 1024 * p))
a('s_waitcnt lgkmcnt(0)')
for hf in range(2):
    r = SS + 4 * hf
    for i in (0, 2):
        a(pk('v_pk_fma_f32', r + i, [('b', SM), CSQ + 8 + 4 * hf + i, r + i], 0))
    for p in range(2):
        a('v_cvt_pk_bf16_f32 v%d, v%d, v%d' % (KF + 2 * hf + p, r + 2 * p, r + 2 * p + 1))
for d in range(2):
    r = SS + 8 + 4 * d
    for i in (0, 2):
        a(pk('v_pk_fma_f32', r + i, [MROW + i, ('b', CSQ + 16 + d), r + i], 0))
    for p in range(2):
        a('v_cvt_pk_bf16_f32 v%d, v%d, v%d' % (VF + 6 * d + p, r + 2 * p, r + 2 * p + 1))
a.label('L_a_prev')
a('s_nop 1')
for t in range(2):
    a('%s %s, %s, %s, 0' % (MFMA, vr(SS + 8 * t), vr(KF + 4 * t), vr(QF + 4 * t)))
    a('%s %s, %s, %s, 0' % (MFMA, vr(SS + 8 * t + 4), vr(KF + 4 * t + 4), vr(QF + 4 * t)))
SCALE = (28.0 ** -0.5) * 1.4426950408889634
MX, CC, LS, TMPR = 190, 192, 194, 196
PF = 200
SUMT = [(224, 226), (232, 188)]
a('v_mov_b32 v198, 0xff800000')
seq = [[], []]
for t in range(2):
    s_ = SS + 8 * t
    q = seq[t]
    rr = lambda e: RROW + 4 * (t + (e >> 2)) + (e & 3)
    for e in range(0, 8, 2):
        q.append(pk('v_pk_mul_f32', s_ + e, [s_ + e, rr(e)]))
    for e in range(8):
        mk = (sM0 if t == 0 else sM1) + 2 * e if e < 4 else sM2 + 2 * (e - 4)
        q.append('v_cndmask_b32 v%d, v198, v%d, %s' % (s_ + e, s_ + e, sp(mk)))
    q.append('v_max3_f32 v%d, v%d, v%d, v%d' % (MX + t, s_, s_ + 1, s_ + 2))
    q.append('v_max3_f32 v%d, v%d, v%d, v%d' % (MX + t, MX + t, s_ + 3, s_ + 4))
    q.append('v_max3_f32 v%d, v%d, v%d, v%d' % (MX + t, MX + t, s_ + 5, s_ + 6))
    q.append('v_max_f32 v%d, v%d, v%d' % (MX + t, MX + t, s_ + 7))
    q += xg_reduce(MX + t, TMPR + t, 'v_max_f32')
    q.append('v_mul_f32 v%d, %s, v%d' % (CC + t, f2h(SCALE), SR + t + 1))
    q.append('v_mul_f32 v%d, v%d, v%d' % (MX + t, MX + t, CC + t))
    for e in range(0, 8, 2):
        q.append(pk('v_pk_fma_f32', s_ + e, [s_ + e, ('b', CC + t), ('b', MX + t)], 2))
    for e in range(8):
        q.append('v_exp_f32 v%d, v%d' % (s_ + e, s_ + e))
    u_, u2 = SUMT[t]
    q.append(pk('v_pk_add_f32', u_, [s_, s_ + 2]))
    q.append(pk('v_pk_add_f32', u2, [s_ + 4, s_ + 6]))
    q.append(pk('v_pk_add_f32', u_, [u_, u2]))
    q.append('v_add_f32 v%d, v%d, v%d' % (LS + t, u_, u_ + 1))
    q += xg_reduce(LS + t, TMPR + t)
    q.append('v_rcp_f32 v%d, v%d' % (LS + t, LS + t))
    for e in range(0, 8, 2):
        q.append(pk('v_pk_mul_f32', s_ + e, [s_ + e, rr(e)]))
    for p in range(4):
        q.append('v_cvt_pk_bf16_f32 v%d, v%d, v%d' % (PF + 4 * t + p, s_ + 2 * p, s_ + 2 * p + 1))
merged = [z for xy in zip(*seq) for z in xy]
gap = len(merged) // (len(wb_loads) + 1)
for k, x in enumerate(merged):
    a(x)
    if k % gap == gap - 1 and wb_loads:
        a(wb_loads.pop(0))
assert not wb_loads
stamp2()
OO = 208
for t in range(2):
    for d in range(2):
        a('%s %s, %s, %s, 0' % (MFMA, vr(OO + 8 * t + 4 * d), vr(VF + 6 * d + 2 * t), vr(PF + 4 * t)))
for t in range(2):
    for e in range(0, 8, 2):
        a(pk('v_pk_mul_f32', OO + 8 * t + e, [OO + 8 * t + e, ('b', LS + t)]))
    for p in range(4):
        a('v_cvt_pk_bf16_f32 v%d, v%d, v%d' % (PF + 4 * t + p, OO + 8 * t + 2 * p, OO + 8 * t + 2 * p + 1))
    store('buffer_store_dwordx4 %s, v1, %s, s%d offen' % (vr(PF + 4 * t), srd(S_WS), 32 + t), sFD)
o_mark = a.vm_mark()
stamp2()
pair_base(sA, L.FA)
a('s_lshl_b32 s%d, s%d, 4' % (sB, sGT))
a('s_add_u32 s%d, s%d, s%d' % (sB, sB, sC))
a('s_lshl_b32 s%d, s%d, 2' % (sB, sB))
a('s_add_u32 s%d, s%d, s%d' % (sA, sA, sB))
a('v_lshlrev_b32 v241, 6, v0')
a('v_add_u32 v241, s%d, v241' % sA)
pair_base(sA, L.FA)
a('s_lshl_b32 s%d, s%d, 8' % (sB, sG))
a('s_add_u32 s%d, s%d, s%d' % (sA, sA, sB))
a('v_lshl_add_u32 v240, v0, 2, s%d' % sA)
a('s_lshl_b32 s%d, s%d, 2' % (sB, sW))
a('s_lshl_b32 s%d, 0x000f000f, s%d' % (sMK, sB))
a('s_mov_b32 s%d, s%d' % (sMK + 1, sMK))
red_addrs()
publish_setup(L.XB, L.SB, L.FB, True, 4)
a('s_mov_b32 s%d, s%d' % (sPC, sFD))
a('s_mov_b32 s%d, s%d' % (sPFC, sFAST))
pair_base(sA, L.O)
a('s_lshl_b32 s%d, s%d, 6' % (sB, sG))
a('s_lshl_b32 s%d, s%d, 2' % (sCc, sW))
a('s_add_u32 s%d, s%d, s%d' % (sB, sB, sCc))
a('s_lshl_b32 s%d, s%d, 10' % (sB, sB))
a('s_add_u32 s20, s%d, s%d' % (sA, sB))
for t in range(1, 4):
    a('s_add_u32 s%d, s20, %d' % (20 + t, 16384 * t))
a.wait_vm(o_mark)
a('s_mov_b64 exec, 3')
store('buffer_store_dword v%d, v241, %s, 0 offen' % (V_T, srd(S_WS)), sFAST)
a('s_mov_b64 exec, -1')
stamp()
a('s_cmp_eq_u32 s%d, 7' % sJ)
a('s_cbranch_scc1 L_next_pair')


def wd_bases():
    a('s_lshl_b32 s%d, s%d, 2' % (sA, sJ))
    a('s_mul_i32 s%d, s%d, %d' % (sA, sA, 56 * 1024))
    a('s_mul_i32 s%d, s%d, %d' % (sB, sW, 14 * 1024))
    a('s_add_u32 s%d, s%d, s%d' % (sA, sA, sB))
    a('s_add_u32 s%d, s%d, %d' % (sO, sA, L.WD))
    quarter_offsets(4, 56 * 1024)


def wd_load(fi):
    kk, t = fi >> 2, fi & 3
    return ('buffer_load_dwordx4 %s, v1, %s, s%d offen offset:%d sc1' %
            (ar(4 * fi), srd(S_WS), sO + 4 * t + (kk >> 2), 1024 * (kk & 3)))


WD_CH = [(0, 0), (0, 56)]
BO, BACC, BRD, BTMP = 66, 130, 194, 226
a('s_cmp_eq_u32 s%d, 0' % sPAIR)
a('s_cbranch_scc0 L_b_start')
for k in range(4):
    a('v_lshlrev_b32 v236, 16, v%d' % (228 + k))
    a('v_and_b32 v237, 0xffff0000, v%d' % (228 + k))
    a('v_accvgpr_write_b32 a%d, v236' % (A_B2 + 2 * k))
    a('v_accvgpr_write_b32 a%d, v237' % (A_B2 + 2 * k + 1))
a.label('L_b_start')
CWW = 66
sCI = 41
a('s_lshr_b32 s%d, s%d, 3' % (sA, sC))
a('s_mul_i32 s%d, s%d, 7' % (sA, sA))
a('s_add_u32 s%d, s%d, s%d' % (sCI, sA, sJ))
a('s_lshl_b32 s%d, s%d, 3' % (sA, sCI))
a('s_lshl_b32 s%d, s%d, 1' % (sB, sW))
a('s_add_u32 s%d, s%d, s%d' % (sA, sA, sB))
a('s_mul_i32 s%d, s%d, %d' % (sB, sA, 14 * 1024))
a('s_add_u32 s%d, s%d, %d' % (sO, sB, L.WC))
quarter_offsets(2, 14 * 1024)


def c_wload(idx):
    u, k = idx >> 1, idx & 1
    return ('buffer_load_dwordx4 %s, v1, %s, s%d offen offset:%d sc1' %
            (vr(CWW + 4 * idx), srd(S_WS), sO + 4 * k + (u >> 2), 1024 * (u & 3)))


def red_writes(acc, tile):
    return ['ds_write_b128 v248, %s offset:%d' % (vr(acc + 4 * t), (tile >> 1) * 32768 + (tile & 1) * 4096 + t * 1024)
            for t in range(4)]


def red_reads(st, rd):
    return ['ds_read_b128 %s, v249 offset:%d' % (vr(rd + (b * 2 + k) * 4), st * 32768 + b * 8192 + k * 1024)
            for b in range(4) for k in range(2)]


def add8(dst, x, y, packed):
    if packed:
        return ['v_pk_add_f32 %s, %s, %s' % (vr(dst + e, 2), vr(x + e, 2), vr(y + e, 2)) for e in range(0, 8, 2)]
    return ['v_add_f32 v%d, v%d, v%d' % (dst + e, x + e, y + e) for e in range(8)]


def finish_pre(st, is_d, tmp):
    res = A_RES + 4 * st
    o = ['v_accvgpr_read_b32 v%d, a%d' % (tmp + 8 + p, res + p) for p in range(4)]
    for p in range(4):
        o += ['v_lshlrev_b32 v%d, 16, v%d' % (tmp + 2 * p, tmp + 8 + p),
              'v_and_b32 v%d, 0xffff0000, v%d' % (tmp + 2 * p + 1, tmp + 8 + p)]
    if is_d:
        o += ['v_accvgpr_read_b32 v%d, a%d' % (tmp + 8 + e, A_B2 + e) for e in range(8)]
        o += ['v_add_f32 v%d, v%d, v%d' % (tmp + e, tmp + e, tmp + 8 + e) for e in range(8)]
    return o


def finish_sum(st, rd, tmp, pk, packed):
    o = add8(rd, rd, rd + 8, packed) + add8(rd + 16, rd + 16, rd + 24, packed) + add8(rd, rd, rd + 16, packed)
    o += add8(tmp, tmp, rd, packed)
    o += ['v_cvt_pk_bf16_f32 v%d, v%d, v%d' % (pk + p, tmp + 2 * p, tmp + 2 * p + 1) for p in range(4)]
    o += ['v_accvgpr_write_b32 a%d, v%d' % (A_RES + 4 * st + p, pk + p) for p in range(4)]
    return o


def owner_stats(tmp, s1, t):
    a('v_pk_add_f32 %s, %s, %s' % (vr(t, 2), vr(tmp, 2), vr(tmp + 2, 2)))
    a('v_pk_add_f32 %s, %s, %s' % (vr(t + 2, 2), vr(tmp + 4, 2), vr(tmp + 6, 2)))
    a('v_pk_add_f32 %s, %s, %s' % (vr(t, 2), vr(t, 2), vr(t + 2, 2)))
    a('v_add_f32 v%d, v%d, v%d' % (s1, t, t + 1))
    a('v_pk_mul_f32 %s, %s, %s' % (vr(t, 2), vr(tmp, 2), vr(tmp, 2)))
    for e in (2, 4, 6):
        a('v_pk_fma_f32 %s, %s, %s, %s' % (vr(t, 2), vr(tmp + e, 2), vr(tmp + e, 2), vr(t, 2)))
    a('v_add_f32 v%d, v%d, v%d' % (s1 + 1, t, t + 1))
    for x, y in zip(xg_reduce(s1, t), xg_reduce(s1 + 1, t + 1)):
        a(x)
        a(y)


def publish_data(st, pk):
    store('buffer_store_dwordx4 %s, v1, %s, s%d offen offset:0' % (vr(pk), srd(S_WS), sPX if st == 0 else sPX2), sPC)


def publish_stats(tmps, t, s1):
    a('v_and_b32 v%d, 15, v0' % V_TOK)
    a('v_lshlrev_b32 v%d, 3, v%d' % (t + 4, V_TOK))
    for st in range(2):
        owner_stats(tmps[st], s1 + 2 * st, t)
    a('s_mov_b64 exec, 0xffff')
    store('buffer_store_dwordx2 %s, v%d, %s, s%d offen' % (vr(s1, 2), t + 4, srd(S_WS), sPS), sPC)
    a('s_add_u32 s%d, s%d, %d' % (sPS, sPS, 2 * 1792))
    store('buffer_store_dwordx2 %s, v%d, %s, s%d offen' % (vr(s1 + 2, 2), t + 4, srd(S_WS), sPS), sPC)
    a('s_mov_b64 exec, -1')


def publish_flags(lsh, between=()):
    a('v_lshlrev_b32 v241, %d, v0' % lsh)
    a('v_add_u32 v241, s%d, v241' % sPF)
    set_flags(241, 2, sPFC, V_T, between)


def run_tiles(tile_items, extras):
    for tile in range(4):
        if tile and '--diag3' in sys.argv:
            stamp()
        items = tile_items(tile)
        ex = list(extras.get(tile, []))
        free = [k for k, it in enumerate(items) if k >= 3 and not it[2]]
        per = -(-len(ex) // max(1, len(free))) if ex else 0
        for k, (pre, m, post) in enumerate(items):
            for x in pre:
                x()
            a(m)
            if post:
                post()
            elif k >= 3:
                for _ in range(per):
                    if ex:
                        x = ex.pop(0)
                        if callable(x):
                            x()
                        else:
                            a(x)
        assert not ex


poll(240)
a('s_barrier')
a('s_or_b32 s%d, s2, s%d' % (sA, sW))
a('s_or_b32 s%d, s%d, s%d' % (sA, sA, sPAIR))
a('s_cmp_eq_u32 s%d, 0' % sA)
a('s_cbranch_scc0 L_noepoch')
a('s_add_u32 s%d, s%d, 1' % (sA, sEP))
a('v_mov_b32 v239, s%d' % sA)
a('s_mov_b64 exec, 1')
a('buffer_store_dword v239, off, %s, 0 sc1' % srd(S_WS))
a.vm_issued -= 1
a('s_mov_b64 exec, -1')
a.label('L_noepoch')
stamp()


def b_oload(tile, i):
    return 'buffer_load_dwordx4 %s, v1, %s, s%d offen offset:%d sc1' % (vr(BO + (tile * 4 + i) * 4), srd(S_WS), 20 + tile, 1024 * i)


om = {}
for tile in range(2):
    for i in range(4):
        a(b_oload(tile, i))
        om[(tile, i)] = a.vm_mark()


def b_tile(tile):
    items = []
    for i in range(4):
        for t in range(4):
            r = BACC + (tile * 4 + t) * 4
            pre = [(lambda tl=tile, ii=i: a.wait_vm(om[(tl, ii)]))] if t == 0 else []
            post = None
            if tile < 2 and t == 1:
                def post(tl=tile + 2, ii=i):
                    a(b_oload(tl, ii))
                    om[(tl, ii)] = a.vm_mark()
            if tile >= 2 and t == 1:
                def post(idx=4 * (tile - 2) + i):
                    a(c_wload(idx))
            items.append((pre, '%s %s, %s, %s, %s' % (MFMA, vr(r), vr(BW + (i * 4 + t) * 4), vr(BO + (tile * 4 + i) * 4),
                                                      '0' if i == 0 else vr(r)), post))
    return items


BT0, BT1, BPK = 226, 2, 18
run_tiles(b_tile, {1: red_writes(BACC, 0), 2: red_writes(BACC + 16, 1), 3: red_writes(BACC + 32, 2)})
stamp2()
for x in red_writes(BACC + 48, 3):
    a(x)
for x in finish_pre(0, False, BT0) + finish_pre(1, False, BT1):
    a(x)
for i in range(8, 16):
    a(c_wload(i))
a('s_waitcnt lgkmcnt(0)')
a('s_barrier')
stamp2()
BRD1 = 34
for x in red_reads(0, BRD) + red_reads(1, BRD1):
    a(x)
NMID = int(([x[7:] for x in sys.argv if x.startswith('--nmid=')] + ['8'])[0])
for i in range(16, 16 + NMID):
    a(c_wload(i))
a('s_waitcnt lgkmcnt(8)')
for x in finish_sum(0, BRD, BT0, BPK, True):
    a(x)
publish_data(0, BPK)
a('s_waitcnt lgkmcnt(0)')
for x in finish_sum(1, BRD1, BT1, BPK + 4, True):
    a(x)
publish_data(1, BPK + 4)
stamp2()
publish_stats([BT0, BT1], 36, 32)
b_mark = a.vm_mark()
a('v_lshlrev_b32 v236, 7, v0')
a('v_add_u32 v236, s%d, v236' % sPF)
for i in range(16 + NMID, 28):
    a(c_wload(i))
CA = [2, 10]
XF, NXF = 18, 8
GTMP, GH = 50, 58
CCS, CB1, CB1R = 178, 186, 194
CSTR = 198
CMR = 214
VGA = 218
a('v_lshrrev_b32 v%d, 4, v0' % V_G)
a('v_and_b32 v%d, 15, v0' % V_TOK)
pair_base(sA, L.FB)
a('s_lshl_b32 s%d, s%d, 9' % (sB, sS))
a('s_add_u32 s%d, s%d, s%d' % (sA, sA, sB))
a('v_lshl_add_u32 v240, v0, 2, s%d' % sA)
a('s_mov_b32 s%d, 0x3fff3fff' % sMK)
a('s_mov_b32 s%d, 0x3fff3fff' % (sMK + 1))
pair_base(20, L.XB)
a('s_mul_i32 s%d, s%d, %d' % (sB, sS, 8 * 14336))
a('s_add_u32 s20, s20, s%d' % sB)
a('s_lshl_b32 s%d, s%d, 12' % (sB, sW))
a('s_add_u32 s20, s20, s%d' % sB)
a('s_add_u32 s21, s%d, %d' % (sB, L.L_R2))
pair_base(22, L.SB)
a('s_lshl_b32 s%d, s%d, 3' % (sB, sS))
a('s_add_u32 s%d, s%d, s%d' % (sB, sB, sW))
a('s_mul_i32 s%d, s%d, 1792' % (sB, sB))
a('s_add_u32 s22, s22, s%d' % sB)
a('s_add_u32 s23, s22, %d' % (4 * 1792))
pair_base(32, L.H)
a('s_mul_i32 s%d, s%d, %d' % (sB, sS, 8 * 56 * 1024))
a('s_add_u32 s32, s32, s%d' % sB)
a('s_lshl_b32 s%d, s%d, 2' % (sB, sCI))
a('s_add_u32 s%d, s%d, s%d' % (sB, sB, sW))
a('s_lshl_b32 s%d, s%d, 10' % (sCc, sB))
a('s_add_u32 s32, s32, s%d' % sCc)
pair_base(33, L.FC)
a('s_lshl_b32 s%d, s%d, 11' % (sCc, sS))
a('s_add_u32 s33, s33, s%d' % sCc)
a('s_lshl_b32 s%d, s%d, 2' % (sB, sB))
a('s_add_u32 s33, s33, s%d' % sB)
a('v_mov_b32 v241, s33')
a('v_mov_b32 v242, 0x%x' % INV)
a('v_cmp_eq_u32 vcc, 0, v0')
a('v_cndmask_b32 v241, v242, v241, vcc')
a('v_lshlrev_b32 v238, 3, v%d' % V_TOK)
a('v_lshl_add_u32 v238, v%d, 7, v238' % V_G)
a('v_mov_b32 v242, 0x%x' % INV)
a('v_cmp_lt_u32 vcc, 1, v%d' % V_G)
a('v_cndmask_b32 v239, 0, v242, vcc')
a('v_or_b32 v239, v239, v238')
a('v_add_u32 v252, %d, v1' % L.L_R2)
a('v_lshlrev_b32 v246, 3, v%d' % V_TOK)
a('v_add_u32 v246, %d, v246' % L.L_STC)
GA = 2.0 * 0.7978845608028654 * 1.4426950408889634
GB = GA * 0.044715
a('v_mov_b32 v%d, %s' % (VGA, f2h(-GA)))
a('v_mov_b32 v%d, %s' % (VGA + 1, f2h(-GA)))
a('s_mov_b32 s34, %s' % f2h(-GB))
a('s_mov_b32 s35, %s' % f2h(-GB))
wd_bases_hi = True
a('s_lshl_b32 s%d, s%d, 3' % (sA, sCI))
a('s_lshl_b32 s%d, s%d, 1' % (sB, sW))
a('s_add_u32 s%d, s%d, s%d' % (sA, sA, sB))
a('s_lshl_b32 s24, s%d, 5' % sA)
a('v_lshlrev_b32 v248, 3, v%d' % V_G)
for k in range(2):
    a('buffer_load_dwordx2 %s, v248, %s, s24 offen offset:%d' % (vr(CB1R + 2 * k, 2), srd(S_B1), 32 * k))
a.wait_vm(b_mark)
a('s_mov_b64 exec, 3')
store('buffer_store_dword v%d, v236, %s, 0 offen' % (V_T, srd(S_WS)), sPFC)
a('s_mov_b64 exec, -1')
stamp()

poll(240, 256)
stamp()


TORD = [0, 4, 1, 5, 2, 6, 3, 7]


def c_dma_setup(t):
    return ['s_add_u32 s36, s20, %d' % (TORD[t] * 14336), 's_add_u32 m0, s21, %d' % ((t & 3) * 16384)]


def c_dma(t, i):
    return 'buffer_load_dwordx4 v1, %s, s36 offen offset:%d sc1 lds' % (srd(S_WS), 1024 * i)


dm = {}
for x in c_dma_setup(0) + [c_dma(0, i) for i in range(4)]:
    a(x)
dm[0] = a.vm_mark()
wlate = {}
for tt in range(2):
    for i in range(4):
        a('buffer_load_dwordx2 %s, v%d, %s, s%d offen offset:%d sc1' %
          (vr(CSTR + 8 * tt + 2 * i, 2), 239 if i == 3 else 238, srd(S_WS), 22 + tt, 512 * i))
amark['cst'] = a.vm_mark()
for x in c_dma_setup(1) + [c_dma(1, i) for i in range(4)]:
    a(x)
dm[1] = a.vm_mark()
wd_bases()
t0_loads = []
b1_unpack = []
for k in range(2):
    for p in range(2):
        b1_unpack += ['v_lshlrev_b32 v%d, 16, v%d' % (CB1 + 4 * k + 2 * p, CB1R + 2 * k + p),
                      'v_and_b32 v%d, 0xffff0000, v%d' % (CB1 + 4 * k + 2 * p + 1, CB1R + 2 * k + p)]
a.wait_vm(dm[0])
a('s_barrier')
stamp()


def c_xread(t, u):
    n = t * 14 + u
    return 'ds_read_b128 %s, v252 offset:%d' % (vr(XF + 4 * (n % NXF)), (t & 3) * 16384 + u * 1024)


def gelu_pre(t):
    z, m = CA[t & 1], CMR + 2 * (t & 1)
    P = range(0, 8, 2)
    o = ['v_pk_fma_f32 %s, %s, %s, %s op_sel_hi:[1,0,1] neg_lo:[0,1,0] neg_hi:[0,1,0]' % (vr(z + e, 2), vr(CCS + e, 2), vr(m, 2), vr(z + e, 2)) for e in P]
    o += ['v_pk_fma_f32 %s, %s, %s, %s op_sel:[0,1,0] op_sel_hi:[1,1,1]' % (vr(z + e, 2), vr(z + e, 2), vr(m, 2), vr(CB1 + e, 2)) for e in P]
    o += ['v_pk_mul_f32 %s, %s, %s' % (vr(GTMP + e, 2), vr(z + e, 2), vr(z + e, 2)) for e in P]
    o += ['v_pk_fma_f32 %s, %s, s[34:35], %s' % (vr(GTMP + e, 2), vr(GTMP + e, 2), vr(VGA, 2)) for e in P]
    o += ['v_pk_mul_f32 %s, %s, %s' % (vr(GTMP + e, 2), vr(GTMP + e, 2), vr(z + e, 2)) for e in P]
    return o


def gelu_mid():
    o = {}
    for e in range(8):
        o.setdefault(2 * e, []).append('v_exp_f32 v%d, v%d' % (GTMP + e, GTMP + e))
        o.setdefault(2 * e + 3, []).append('v_add_f32 v%d, 1.0, v%d' % (GTMP + e, GTMP + e))
    for e in range(6):
        o.setdefault(16 + 2 * e, []).append('v_rcp_f32 v%d, v%d' % (GTMP + e, GTMP + e))
    o.setdefault(25, []).append('v_rcp_f32 v%d, v%d' % (GTMP + 6, GTMP + 6))
    o.setdefault(27, []).append('v_rcp_f32 v%d, v%d' % (GTMP + 7, GTMP + 7))
    return o


def gelu_post(t):
    z, h = CA[t & 1], GH + 4 * (t & 1)
    o = ['v_pk_mul_f32 %s, %s, %s' % (vr(GTMP + e, 2), vr(GTMP + e, 2), vr(z + e, 2)) for e in range(0, 8, 2)]
    o += ['v_cvt_pk_bf16_f32 v%d, v%d, v%d' % (h + p, GTMP + 2 * p, GTMP + 2 * p + 1) for p in range(4)]
    return o


def gelu_packed(t):
    z, m, h = CA[t & 1], CMR + 2 * (t & 1), GH + 4 * (t & 1)
    P = range(0, 8, 2)
    for e in P:
        a('v_pk_fma_f32 %s, %s, %s, %s op_sel_hi:[1,0,1] neg_lo:[0,1,0] neg_hi:[0,1,0]' % (vr(z + e, 2), vr(CCS + e, 2), vr(m, 2), vr(z + e, 2)))
    for e in P:
        a('v_pk_fma_f32 %s, %s, %s, %s op_sel:[0,1,0] op_sel_hi:[1,1,1]' % (vr(z + e, 2), vr(z + e, 2), vr(m, 2), vr(CB1 + e, 2)))
    for e in P:
        a('v_pk_mul_f32 %s, %s, %s' % (vr(GTMP + e, 2), vr(z + e, 2), vr(z + e, 2)))
    for e in P:
        a('v_pk_fma_f32 %s, %s, s[34:35], %s' % (vr(GTMP + e, 2), vr(GTMP + e, 2), vr(VGA, 2)))
    for e in P:
        a('v_pk_mul_f32 %s, %s, %s' % (vr(GTMP + e, 2), vr(GTMP + e, 2), vr(z + e, 2)))
    for e in range(8):
        a('v_exp_f32 v%d, v%d' % (GTMP + e, GTMP + e))
    for e in P:
        a('v_pk_add_f32 %s, %s, 1.0 op_sel_hi:[1,0]' % (vr(GTMP + e, 2), vr(GTMP + e, 2)))
    for e in range(8):
        a('v_rcp_f32 v%d, v%d' % (GTMP + e, GTMP + e))
    for e in P:
        a('v_pk_mul_f32 %s, %s, %s' % (vr(GTMP + e, 2), vr(GTMP + e, 2), vr(z + e, 2)))
    for p in range(4):
        a('v_cvt_pk_bf16_f32 v%d, v%d, v%d' % (h + p, GTMP + 2 * p, GTMP + 2 * p + 1))


hmk, fmk = {}, {}


def h_store(t):
    def f():
        a('s_add_u32 s24, s32, %d' % (TORD[t] * 56 * 1024))
        store('buffer_store_dwordx4 %s, v1, %s, s24 offen' % (vr(GH + 4 * (t & 1)), srd(S_WS)), sFH)
        hmk[t] = a.vm_mark()
    return f


def h_flag(t):
    def f():
        a.wait_vm(hmk[t])
        store('buffer_store_dword v%d, v241, %s, 0 offen offset:%d' % (V_T, srd(S_WS), 256 * TORD[t]), sFAST)
    return f


def wd_block(fis, wave):
    def f():
        skip = newlab('L_wd')
        a('s_cmp_eq_u32 s24, %d' % wave)
        a('s_cbranch_scc0 %s' % skip)
        for fi in fis:
            a(wd_load(fi))
            a.vm_issued -= 1
        a.label(skip)
    return f


cst_fill = []
for tt in range(2):
    r = CSTR + 8 * tt
    for c_ in range(2):
        cst_fill += ['v_add_f32 v%d, v%d, v%d' % (r + c_, r + c_, r + 2 + c_),
                     'v_add_f32 v%d, v%d, v%d' % (r + 4 + c_, r + 4 + c_, r + 6 + c_),
                     'v_add_f32 v%d, v%d, v%d' % (r + c_, r + c_, r + 4 + c_)]
    cst_fill += xg_reduce(r, r + 2) + xg_reduce(r + 1, r + 3) + stats_finish(r, r + 1, r + 2, True)
a('s_lshl_b32 s%d, s%d, 7' % (sA, sW))
a('v_add_u32 v247, s%d, v246' % sA)
cst_fill += ['ds_write_b64 v247, %s' % vr(CSTR, 2), 'ds_write_b64 v247, %s offset:512' % vr(CSTR + 8, 2)] + b1_unpack
LOOKX = 6


A_CCS = 244


DFIRST = [194, 198, 202, 206, 210, 220, 224, 228, 232]
hm = {}


def emit_c_loop(wd_list):
    pass0 = bool(wd_list)
    if not pass0:
        for e in range(8):
            a('v_accvgpr_read_b32 v%d, a%d' % (CCS + e, A_CCS + e))
    for u in range(LOOKX):
        a(c_xread(0, u))
    for t in range(8):
        nonvec = {}

        def put(k, x):
            nonvec.setdefault(k, []).append(x)
        for u in range(14):
            n = t * 14 + u
            m = n + LOOKX
            if m < 8 * 14:
                put(2 * u + 1, c_xread(m // 14, m % 14))
            if u % 2 == 1 and n + 1 < 8 * 14:
                put(2 * u + 1, 's_waitcnt lgkmcnt(%d)' % min(LOOKX - 2, 8 * 14 - 1 - (n + 2)))
        if t < 7:
            nonvec[14] = [('bar', t + 1)] + nonvec.get(14, [])
        if t + 2 < 8:
            su = c_dma_setup(t + 2)
            put(0, su[0])
            put(0, su[1])
            for i in range(4):
                put(2 + 2 * i, ('dma', t + 2, i))
        if t >= 3:
            put(20, ('call', h_flag(t - 3)))
        if t == 1:
            put(0, 's_add_u32 s22, s25, 12288')
        if t == 5:
            def issue_d0():
                amark['d0'] = early_issue(244, 243)
            put(22, ('call', issue_d0))
        if t == 6:
            put(2, ('call', lambda: early_check(244, 243, amark['d0'])))
        if t in (6, 7):
            for k, q in zip((4, 6, 8, 20, 22) if t == 6 else (2, 4, 6, 8), range(0, 5) if t == 6 else range(5, 9)):
                put(k, ('h0', q))
        if t < 7:
            for k in (10, 12, 13, 16, 18, 22, 24, 26):
                if wd_list:
                    put(k, wd_load(wd_list.pop(0)))
        if t > 0:
            put(17, 'ds_read_b64 %s, v246 offset:%d' % (vr(CMR + 2 * (t & 1), 2), 128 * TORD[t]))
        if t == 0:
            for k, it in enumerate(t0_loads):
                put(k, ('t0', it))
        valu = gelu_mid() if t >= 1 else {}
        if t >= 2:
            for x in gelu_post(t - 2):
                a(x)
            h_store(t - 2)()
        if t >= 1:
            for x in gelu_pre(t - 1):
                a(x)
        fill = list(cst_fill) if t == 0 else []
        first = 8
        fi = 0
        for k in range(28):
            u, kk = k >> 1, k & 1
            n = t * 14 + u
            if t == 0 and k == 0:
                a('s_waitcnt lgkmcnt(%d)' % (LOOKX - 2))
            if t == 0 and kk == 0 and u in wlate:
                a.wait_vm(wlate[u])
            if t == 0 and k == first:
                a.wait_vm(amark['cst'])
            r = CA[t & 1] + 4 * kk
            a('%s %s, %s, %s, %s' % (MFMA, vr(r), vr(CWW + 4 * (2 * u + kk)), vr(XF + 4 * (n % NXF)), '0' if u == 0 else vr(r)))
            if pass0 and t == 0:
                a('%s %s, %s, %s, %s' % (MFMA, vr(CCS + 4 * kk), vr(CWW + 4 * (2 * u + kk)), ar(A_ONES), '0' if u == 0 else vr(CCS + 4 * kk)))
            for it in nonvec.get(k, []):
                if isinstance(it, str):
                    a(it)
                elif it[0] == 'bar':
                    a.wait_vm(dm[it[1]])
                    a('s_barrier')
                elif it[0] == 'dma':
                    a(c_dma(it[1], it[2]))
                    dm[it[1]] = a.vm_mark()
                elif it[0] == 'call':
                    it[1]()
                elif it[0] == 'h0':
                    q = it[1]
                    a('buffer_load_dwordx4 %s, v1, %s, s%d offen offset:%d sc1' %
                      (vr(DFIRST[q] if q < 9 else 66 + 4 * q), srd(S_WS), (25, 27, 29, 22)[q >> 2], 1024 * (q & 3)))
                    hm[q] = a.vm_mark()
                elif it[0] == 't0':
                    if it[1][0] == 'w':
                        a(c_wload(it[1][1]))
                        wlate[it[1][1] >> 1] = a.vm_mark()
                    else:
                        a(it[1][1])
                        amark['cst'] = a.vm_mark()
            for x in valu.get(k, []):
                a(x)
            if fill and k >= first:
                want = -(-(len(fill)) * (k - first + 1) // (28 - first))
                while fi < want:
                    a(fill[fi])
                    fi += 1
        assert fi == len(fill)
        if t == 0:
            a('s_waitcnt lgkmcnt(0)')
            a('s_barrier')
            a('ds_read_b64 %s, v246 offset:0' % vr(CMR, 2))
            if pass0:
                for e in range(8):
                    a('v_accvgpr_write_b32 a%d, v%d' % (A_CCS + e, CCS + e))
            a('s_waitcnt lgkmcnt(0)')
    assert not wd_list


pair_base(sA, L.FC)
a('s_lshl_b32 s%d, s%d, 10' % (sB, sG))
a('s_add_u32 s%d, s%d, s%d' % (sA, sA, sB))
a('s_mul_i32 s%d, s%d, 56' % (sB, sW))
a('s_add_u32 s%d, s%d, s%d' % (sA, sA, sB))
a('v_lshl_add_u32 v243, v0, 2, s%d' % sA)
a('s_mov_b32 s%d, 0x3fff' % sMK2)
a('s_mov_b32 s%d, 0' % (sMK2 + 1))
pair_base(sA, L.H)
a('s_mul_i32 s%d, s%d, %d' % (sB, sG, 4 * 56 * 1024))
a('s_add_u32 s%d, s%d, s%d' % (sA, sA, sB))
a('s_mul_i32 s%d, s%d, %d' % (sB, sW, 14 * 1024))
a('s_add_u32 s25, s%d, s%d' % (sA, sB))
a('s_add_u32 s27, s25, 4096')
a('s_add_u32 s29, s25, 8192')
n_before = a.vm_issued
dm_init = dict(dm)
a('s_cmp_eq_u32 s%d, 0' % sPAIR)
a('s_cbranch_scc0 L_c_loop1')
emit_c_loop(list(range(*WD_CH[1])))
extra = a.vm_issued - n_before
with OutOfLine():
    a.label('L_c_loop1')
    a.vm_issued = n_before
    dm.clear()
    dm.update(dm_init)
    emit_c_loop([])
    a('s_branch L_c_done')
a.label('L_c_done')
stamp()
DH, DACC, DRD = 66, 130, 194
DRING, DLOOK = 16, 10
red_addrs()
publish_setup(L.XA[1], L.SA[1], L.FX[1], False, 5)
a('s_and_b32 s%d, s%d, 1' % (sA, sG))
a('s_lshr_b32 s%d, s%d, 1' % (sB, sW))
a('s_and_b32 s%d, s%d, s%d' % (sA, sA, sB))
a('s_xor_b32 s%d, s%d, 1' % (sA, sA))
a('s_and_b32 s%d, s%d, s%d' % (sPC, sFD, sA))
a('s_mov_b32 s%d, s%d' % (sPFC, sFAST))
a('s_cmp_eq_u32 s%d, 0' % sA)
a('s_cselect_b32 s%d, 0, 0x%x' % (sCc, INV))
a('s_add_u32 s%d, s%d, 1' % (sA, sS))
a('s_lshl_b32 s%d, s%d, 5' % (sA, sA))
a('s_lshl_b32 s%d, s%d, 1' % (sB, sJ))
a('s_add_u32 s%d, s%d, s%d' % (sA, sA, sB))
a('s_and_b32 s%d, s%d, 1' % (sB, sW))
a('s_add_u32 s%d, s%d, s%d' % (sA, sA, sB))
a('s_lshl_b32 s%d, s%d, 2' % (sA, sA))
a('s_add_u32 s%d, s%d, %d' % (sA, sA, L.FH))
a('s_or_b32 s20, s%d, s%d' % (sA, sCc))
pair_base(sA, L.H)
a('s_mul_i32 s%d, s%d, %d' % (sB, sG, 4 * 56 * 1024))
a('s_add_u32 s%d, s%d, s%d' % (sA, sA, sB))
a('s_mul_i32 s%d, s%d, %d' % (sB, sW, 14 * 1024))
a('s_add_u32 s%d, s%d, s%d' % (sO, sA, sB))
quarter_offsets(4, 56 * 1024)
a('s_cmp_eq_u32 s%d, 0' % sPAIR)
a('s_cbranch_scc1 L_d_nout')
owner_index()
a('s_mul_i32 s%d, s%d, 14336' % (sPX, sB))
a('s_lshl_b32 s%d, s%d, 6' % (sA, sA))
a('s_add_u32 s%d, s%d, s%d' % (sPX, sPX, sA))
a('s_add_u32 s%d, s%d, %d' % (sPX2, sPX, 2 * 14336))
a.label('L_d_nout')
a('v_and_b32 v%d, 15, v0' % V_TOK)
a('v_lshrrev_b32 v%d, 4, v0' % V_G)
a('v_mul_u32_u24 v242, 896, v%d' % V_TOK)
a('v_and_b32 v253, 1, v%d' % V_G)
a('v_lshl_add_u32 v242, v253, 5, v242')
a('v_lshrrev_b32 v253, 1, v%d' % V_G)
a('v_lshl_add_u32 v242, v253, 4, v242')


def d_hload(q):
    tile, kk = divmod(q, 14)
    return ('buffer_load_dwordx4 %s, v1, %s, s%d offen offset:%d sc1' %
            (vr(d_reg(q)), srd(S_WS), sO + 4 * tile + (kk >> 2), 1024 * (kk & 3)))


def d_reg(q):
    return DFIRST[q] if q < len(DFIRST) else DH + (q % DRING) * 4


dmk = {}
for q in range(len(DFIRST), DLOOK):
    a(d_hload(q))
    hm[q] = a.vm_mark()
dmk[1] = early_issue(244, 243, 256)
stamp()
for x in gelu_post(6):
    a(x)
h_store(6)()
a('s_waitcnt lgkmcnt(0)')
gelu_packed(7)
h_flag(5)()
h_store(7)()
stamp()

a('s_barrier')
stamp()


def d_tile(tile):
    items = []
    for kk in range(14):
        q = tile * 14 + kk
        for t in range(4):
            r = DACC + (tile * 4 + t) * 4
            pre = [(lambda qq=q: a.wait_vm(hm[qq]))] if t == 0 else []
            if t == 0 and q in (6, 12):
                pre.append(h_flag({6: 6, 12: 7}[q]))
            post = None
            if t == 0 and q + DLOOK < 56:
                def post(qq=q + DLOOK):
                    if qq % 14 == 0:
                        early_check(244, 243, dmk[qq // 14], 256 * (qq // 14))
                    a(d_hload(qq))
                    hm[qq] = a.vm_mark()
                    if qq % 14 == 6 and qq // 14 < 3:
                        dmk[qq // 14 + 1] = early_issue(244, 243, 256 * (qq // 14 + 1))
            items.append((pre, '%s %s, %s, %s, %s' % (MFMA, vr(r), ar((kk * 4 + t) * 4), vr(d_reg(q)),
                                                      '0' if kk == 0 else vr(r)), post))
    return items


def d_out_store(st, pk):
    a('s_nop 1')
    a('v_permlane16_swap_b32 v%d, v%d' % (pk, pk + 2))
    a('v_permlane16_swap_b32 v%d, v%d' % (pk + 1, pk + 3))
    a('buffer_store_dwordx4 %s, v242, %s, s%d offen %s' % (vr(pk), srd(S_OUT), sPX if st == 0 else sPX2, OUTSC))


def d_store(st, pk):
    fin, done = newlab('L_dfin'), newlab('L_ddone')
    a('s_cmp_eq_u32 s%d, 0' % sPAIR)
    a('s_cbranch_scc0 %s' % fin)
    publish_data(st, pk)
    a('s_branch %s' % done)
    a.label(fin)
    n = a.vm_issued
    d_out_store(st, pk)
    a.vm_issued = n
    a.label(done)


DT0, DT1, DPK, DSTT, DSTS = 226, 2, 18, 28, 36
stage0 = [lambda: (a('s_waitcnt lgkmcnt(0)'), a('s_barrier'))] + red_reads(0, DRD) + finish_pre(0, True, DT0)
stage0 += [lambda: a('s_waitcnt lgkmcnt(0)')] + finish_sum(0, DRD, DT0, DPK, False) + [lambda: d_store(0, DPK)]
run_tiles(d_tile, {1: red_writes(DACC, 0), 2: red_writes(DACC + 16, 1), 3: red_writes(DACC + 32, 2) + stage0})
stamp2()
for x in red_writes(DACC + 48, 3):
    a(x)
for x in finish_pre(1, True, DT1):
    a(x)
a('s_waitcnt lgkmcnt(0)')
a('s_barrier')
stamp2()
for x in red_reads(1, DRD):
    a(x)
a('s_waitcnt lgkmcnt(0)')
for x in finish_sum(1, DRD, DT1, DPK + 4, True):
    a(x)
d_store(1, DPK + 4)
stamp()
a('s_cmp_eq_u32 s%d, 0' % sPAIR)
a('s_cbranch_scc0 L_next_pair')
publish_stats([DT0, DT1], DSTT, DSTS)
FHMODE = ([x[5:] for x in sys.argv if x.startswith('--fh=')] + ['after'])[0]
a('v_mov_b32 v240, s20')
if FHMODE == 'before':
    a('s_waitcnt vmcnt(0)')
    a('s_mov_b64 exec, 1')
    a('buffer_store_dword v%d, v240, %s, 0 offen sc1' % (V_T, srd(S_WS)))
    a('s_mov_b64 exec, -1')
    a('v_lshlrev_b32 v241, 8, v0')
    a('v_add_u32 v241, s%d, v241' % sPF)
    a('s_mov_b64 exec, 3')
    store('buffer_store_dword v%d, v241, %s, 0 offen' % (V_T, srd(S_WS)), sPFC)
    a('s_mov_b64 exec, -1')
else:
    publish_flags(8)
    if FHMODE == 'wait':
        a('s_waitcnt vmcnt(0)')
    a('s_mov_b64 exec, 1')
    a('buffer_store_dword v%d, v240, %s, 0 offen sc1' % (V_T, srd(S_WS)))
    a('s_mov_b64 exec, -1')
a.label('L_next_pair')
stamp()
a('s_add_u32 s%d, s%d, 1' % (sPAIR, sPAIR))
a('s_cmp_lt_u32 s%d, 2' % sPAIR)
a('s_cbranch_scc1 L_pair')

if PAD:
    a.label('L_padspin')
    a('s_memrealtime s[34:35]')
    a('s_waitcnt lgkmcnt(0)')
    a('s_sub_u32 s34, s34, s0')
    a('s_cmp_lt_u32 s34, %d' % PAD[0])
    a('s_cbranch_scc1 L_padspin')
if DBG:
    a('s_memtime s[32:33]')
    a('s_memrealtime s[34:35]')
    a('s_waitcnt lgkmcnt(0)')
    a('s_sub_u32 s32, s32, s26')
    a('s_sub_u32 s34, s34, s0')
    build_srd(S_TMP, P_DBG, 256)
    a('v_mov_b32 v2, s32')
    a('v_mov_b32 v3, s34')
    a('v_mov_b32 v4, s%d' % sFAST)
    a('v_mov_b32 v5, s%d' % sXCC)
    a('s_lshr_b32 s%d, s2, 6' % sA)
    a('s_lshl_b32 s%d, s%d, 4' % (sA, sA))
    a('s_and_b32 s%d, s2, 63' % sB)
    a('s_or_b32 s%d, s%d, s%d' % (sB, sB, sW))
    a('s_cmp_eq_u32 s%d, 0' % sB)
    a('s_cselect_b32 s%d, s%d, 0x%x' % (sA, sA, INV))
    a('v_mov_b32 v6, s%d' % sA)
    a('s_mov_b64 exec, 1')
    a('buffer_store_dwordx4 v[2:5], v6, %s, 0 offen' % srd(S_TMP))
    a('s_mov_b64 exec, -1')
if DIAG:
    stamp()
    a('s_mov_b32 s%d, 63' % sSTI)
    a('s_lshl_b64 exec, 1, s%d' % sSTI)
    a('v_mov_b32 v%d, s%d' % (V_STAMP, sERR))
    a('s_mov_b32 s%d, 62' % sSTI)
    a('s_lshl_b64 exec, 1, s%d' % sSTI)
    a('v_mov_b32 v%d, s%d' % (V_STAMP, sFAST))
    a('s_mov_b64 exec, -1')
    a('s_lshl_b32 s%d, s2, 2' % sA)
    a('s_add_u32 s%d, s%d, s%d' % (sA, sA, sW))
    a('s_lshl_b32 s%d, s%d, 8' % (sA, sA))
    a('v_lshlrev_b32 v2, 2, v0')
    a('s_add_u32 s%d, s%d, %d' % (sA, sA, L.WS_USED))
    a('s_mov_b32 s%d, 0x%x' % (S_WS + 2, L.WS_USED + 256 * 1024))
    a('buffer_store_dword v%d, v2, %s, s%d offen' % (V_STAMP, srd(S_WS), sA))
    if DBGST:
        build_srd(S_TMP, P_DBG, 256)
        a('v_readfirstlane_b32 s%d, v%d' % (sA, V_STAMP))
        a('s_nop 4')
        a('v_subrev_u32 v3, s%d, v%d' % (sA, V_STAMP))
        a('s_or_b32 s%d, s2, s%d' % (sB, sW))
        a('s_cmp_eq_u32 s%d, 0' % sB)
        a('s_cselect_b32 s%d, 0, 0x%x' % (sB, INV))
        a('v_or_b32 v2, s%d, v2' % sB)
        SEL = [int(x[6:]) for x in sys.argv if x.startswith('--sel=')]
        sel = SEL[0] if SEL else 1
        a('v_subrev_u32 v2, %d, v2' % (4 * sel))
        a('buffer_store_dword v3, v2, %s, 0 offen' % srd(S_TMP))
a.label('L_end')
a('s_endpgm')
a.ins.extend(ool)
a.label('L_code_end')

a.finalize()
body = a.text()

import os
hdr = open(os.path.join(os.path.dirname(os.path.abspath(__file__)), 'header.txt')).read()
out = hdr + '; @launch grid=(256,1,1) block=(256,1,1) lds=%d\n' % L.LDS_BYTES
out += '.amdgcn_target "amdgcn-amd-amdhsa--gfx950"\n.text\n.globl %s_kernel\n.p2align 8\n.type %s_kernel,@function\n%s_kernel:\n' % (NAME, NAME, NAME)
out += body
out += '''.section .rodata,"a"
.p2align 6
.amdhsa_kernel %s_kernel
  .amdhsa_next_free_vgpr 512
  .amdhsa_next_free_sgpr 102
  .amdhsa_accum_offset 256
  .amdhsa_group_segment_fixed_size 0
  .amdhsa_kernarg_size 88
  .amdhsa_user_sgpr_count 2
  .amdhsa_user_sgpr_kernarg_segment_ptr 1
  .amdhsa_system_sgpr_workgroup_id_x 1
.end_amdhsa_kernel
''' % NAME
sys.stdout.write(out)
```
